```python
import torch

def _softmax(x, axis=-1):
    return torch.softmax(x, dim=axis)
def _gelu(x):
    return torch.nn.functional.gelu(x, approximate="tanh")
def _silu(x):
    return torch.nn.functional.silu(x)
def _sigmoid(x):
    return torch.sigmoid(x)
def _layernorm(x, axis=-1, eps=1e-5):
    m = x.mean(dim=axis, keepdim=True)
    v = x.var(dim=axis, keepdim=True, unbiased=False)
    return (x - m) / torch.sqrt(v + eps)
def _scatter_add(tgt, idx, src, axis=0):
    return tgt.clone().index_add_(axis, idx, src)
def _segment_sum(src, seg, n):
    out = torch.zeros((n,) + src.shape[1:], dtype=src.dtype)
    return out.index_add_(0, seg, src)
def _pad(x, pw):
    flat = tuple(v for pair in reversed(pw) for v in pair)
    return torch.nn.functional.pad(x, flat)

kernel_name = 'concat_heads__spectral_gfnet__spectral_gfnet__prompt'

def setup_inputs():

    _w = (lambda a: (lambda t: t.to(torch.bfloat16) if t.is_floating_point() else t)(torch.as_tensor(a)))
    def _A_setup():
        B, S, D = 1, 2048, 1024
        Df = D // 2 + 1
        return {
            "x": _w((lambda *s: torch.randn(*s, dtype=torch.bfloat16) * 0.05)(B, S, D)),
            "w_r": _w((lambda *s: torch.randn(*s, dtype=torch.bfloat16) * 0.05)(S, Df) * 0.02),
            "w_i": _w((lambda *s: torch.randn(*s, dtype=torch.bfloat16) * 0.05)(S, Df) * 0.02),
        }
    _A_in = _A_setup()

    def _B_setup():
        B, S, D = 1, 2048, 1024
        Df = D // 2 + 1
        return {
            "x": _w((lambda *s: torch.randn(*s, dtype=torch.bfloat16) * 0.05)(B, S, D)),
            "w_r": _w((lambda *s: torch.randn(*s, dtype=torch.bfloat16) * 0.05)(S, Df) * 0.02),
            "w_i": _w((lambda *s: torch.randn(*s, dtype=torch.bfloat16) * 0.05)(S, Df) * 0.02),
        }
    _B_in = _B_setup()

    return {
        "A_x": _A_in["x"],
        "A_w_r": _A_in["w_r"],
        "A_w_i": _A_in["w_i"],
        "B_x": _B_in["x"],
        "B_w_r": _B_in["w_r"],
        "B_w_i": _B_in["w_i"],
    }

def reference(A_x, A_w_r, A_w_i, B_x, B_w_r, B_w_i):
    def _A_ref(x, w_r, w_i):
        B, S, D = x.shape
        X = (lambda x, axes=(-2,-1): torch.fft.rfft2(x.float(), dim=axes))(x, axes=(-2, -1))
        W = w_r + 1j * w_i
        X = X * W
        y = (lambda x, s, axes=(-2,-1): torch.fft.irfft2(x, s=s, dim=axes).to(torch.bfloat16))(X, (S, D), axes=(-2, -1))
        return y

    def _B_ref(x, w_r, w_i):
        B, S, D = x.shape
        X = (lambda x, axes=(-2,-1): torch.fft.rfft2(x.float(), dim=axes))(x, axes=(-2, -1))
        W = w_r + 1j * w_i
        X = X * W
        y = (lambda x, s, axes=(-2,-1): torch.fft.irfft2(x, s=s, dim=axes).to(torch.bfloat16))(X, (S, D), axes=(-2, -1))
        return y

    a = _A_ref(A_x, A_w_r, A_w_i)
    b = _B_ref(B_x, B_w_r, B_w_i)
    return torch.concatenate([a, b], axis=-1)
```

```python
import re

TRANS = ('v_sin_f32','v_cos_f32','v_exp_f32','v_log_f32','v_rcp_f32','v_rsq_f32','v_sqrt_f32')

def regs_of(tok):
    tok = tok.strip()
    out = set()
    t = tok.lstrip('-')
    if t.startswith('abs(') : t = t[4:-1]
    m = re.fullmatch(r'([vsa])(\d+)', t)
    if m: out.add((m.group(1), int(m.group(2)))); return out
    m = re.fullmatch(r'([vsa])\[(\d+):(\d+)\]', t)
    if m:
        for i in range(int(m.group(2)), int(m.group(3))+1): out.add((m.group(1), i))
        return out
    if t in ('vcc','exec','m0','scc'): out.add((t,0))
    if t in ('vcc_lo','vcc_hi'): out.add(('vcc',0))
    if t in ('exec_lo','exec_hi'): out.add(('exec',0))
    return out

class Ins:
    def __init__(self, text):
        self.text = text
        s = text.split(';')[0].strip()
        self.label = s.endswith(':')
        self.directive = s.startswith('.') and not self.label
        self.op = ''
        self.w = set(); self.r = set()
        self.kind = 'other'
        if self.label or self.directive or not s: self.kind='none'; return
        parts = s.split(None, 1)
        self.op = op = parts[0]
        ops = []
        if len(parts) > 1:
            ops = [o.strip() for o in re.split(r',(?![^\[]*\])', parts[1])]
            if ops:
                last = ops[-1].split()
                ops[-1] = last[0] if last else ''
                self.mods = last[1:]
        self.ops = ops
        R = lambda i: regs_of(ops[i]) if i < len(ops) else set()
        if op.startswith('v_mfma'):
            self.kind = 'mfma'; self.passes = 8 if '32x32' in op else 4
            self.w = R(0); self.srcC = R(3); self.srcAB = R(1) | R(2); self.r = self.srcAB | self.srcC
        elif op.startswith('v_cmp'):
            self.kind = 'valu'; self.w = R(0); self.r = R(1) | R(2)
        elif op.startswith('v_readfirstlane') or op.startswith('v_readlane'):
            self.kind = 'valu'; self.w = R(0); self.r = R(1) | R(2); self.rdlane = True
        elif op.startswith('v_'):
            self.kind = 'valu'; self.w = R(0)
            for i in range(1, len(ops)): self.r |= R(i)
            if op.startswith('v_fmac') or op.startswith('v_pk_fmac'): self.r |= R(0)
            if op.startswith('v_add_co') or op.startswith('v_addc_co') or op.startswith('v_sub_co'): self.w |= R(1)
            if op.startswith('v_cndmask') and len(ops) == 3: self.r.add(('vcc',0))
            if op.startswith('v_permlane') or op.startswith('v_swap'): self.w |= R(1); self.r |= R(0)
        elif op.startswith('buffer_') or op.startswith('global_'):
            self.kind = 'vmem'
            lds = 'lds' in getattr(self,'mods',[])
            self.ldsdma = lds
            if op.startswith('buffer_load') and not lds:
                self.w = R(0)
                for i in range(1, len(ops)): self.r |= R(i)
            elif op.startswith('global_load') and not lds:
                self.w = R(0)
                for i in range(1, len(ops)): self.r |= R(i)
            else:
                for i in range(len(ops)): self.r |= R(i)
                if lds: self.r.add(('m0',0))
            self.widestore = ('store_dwordx4' in op or 'store_dwordx3' in op)
            if self.widestore:
                self.sdata = R(0) if op.startswith('buffer') else R(1)
        elif op.startswith('ds_'):
            self.kind = 'ds'
            if op.startswith('ds_read') or op.startswith('ds_bpermute'):
                self.w = R(0)
                for i in range(1, len(ops)): self.r |= R(i)
            else:
                for i in range(len(ops)): self.r |= R(i)
        elif op.startswith('s_'):
            self.kind = 'salu'
            if op in ('s_nop',): self.kind = 'nop'; self.n = int(ops[0], 0) + 1
            elif op.startswith('s_cmp') or op.startswith('s_cbranch') or op.startswith('s_branch') or op.startswith('s_waitcnt') or op in ('s_barrier','s_endpgm','s_setprio','s_sleep'):
                for i in range(len(ops)): self.r |= R(i)
            else:
                self.w = R(0)
                for i in range(1, len(ops)): self.r |= R(i)
    def slots(self):
        if self.kind == 'none': return 0
        if self.kind == 'nop': return self.n
        return 1

def need(p, c):
    n = 0
    V = lambda s: {x for x in s if x[0] in 'va'}
    S = lambda s: {x for x in s if x[0] in ('s','vcc')}
    if p.kind == 'valu':
        pw = V(p.w)
        if c.kind == 'mfma' and pw & c.r: n = max(n, 2)
        if getattr(c,'rdlane',False) and pw & c.r: n = max(n, 1)
        if c.kind == 'valu' and c.op.startswith('v_permlane') and pw & c.r: n = max(n, 2)
        if c.kind == 'valu' and ('dpp' in c.text) and pw & c.r: n = max(n, 2)
        if p.op in TRANS and c.kind in ('valu',) and c.op not in TRANS and pw & c.r: n = max(n, 1)
        if p.op in TRANS and c.kind in ('vmem','ds') and pw & c.r: n = max(n, 1)
        if ('sdwa' in p.text or 'op_sel' in p.text) and c.kind == 'valu' and pw & (c.r | c.w): n = max(n, 1)
        ps = S(p.w)
        if ps:
            if c.kind == 'vmem' and ps & c.r: n = max(n, 5)
            if c.kind == 'valu' and ps & c.r: n = max(n, 4 if getattr(c,'rdlane',False) else 2)
            if c.kind == 'salu' and ps & c.r: n = max(n, 1)
    if p.kind == 'mfma':
        t = {4: (0, 6, 8), 8: (0, 10, 12)}[p.passes]
        if c.kind == 'mfma':
            if p.w & c.srcC:
                if not (p.w == c.srcC and p.passes == c.passes): n = max(n, t[1])
            if p.w & c.srcAB: n = max(n, t[2])
            if p.w & c.w and not (p.w == c.srcC): n = max(n, t[1])
        elif c.kind in ('valu','vmem','ds'):
            if p.w & (c.r | c.w): n = max(n, t[2])
        if c.kind == 'valu' and p.srcC & c.w: n = max(n, {4: 3, 8: 7}[p.passes])
    if p.kind == 'salu' and ('m0',0) in p.w and c.kind == 'vmem' and getattr(c,'ldsdma',False): n = max(n, 1)
    if p.kind == 'vmem' and getattr(p,'widestore',False):
        if c.kind in ('valu','mfma') and p.sdata & c.w: n = max(n, 2)
        elif p.sdata & c.w: n = max(n, 1)
    return n

class Asm:
    def __init__(self):
        self.ins = []
        self.nops = 0
    def raw(self, text):
        for line in text.split('\n'):
            self.ins.append(Ins(line))
    def __call__(self, text):
        for line in text.strip().split('\n'):
            line = line.strip()
            if not line: continue
            c = Ins(line)
            if c.kind not in ('none',):
                dist = 0; req = 0
                for p in reversed(self.ins):
                    if p.op in ('s_endpgm', 's_branch'): break
                    if p.kind == 'none': continue
                    r = need(p, c)
                    if r - dist > req: req = r - dist
                    dist += p.slots()
                    if dist > 24: break
                if req > 0:
                    self.ins.append(Ins('s_nop %d' % (req-1))); self.nops += req
            self.ins.append(c)
    def text(self):
        out = []
        for i in self.ins:
            t = i.text
            if i.label or i.directive or not t.strip() or t.strip().startswith(';'): out.append(t)
            else: out.append('    ' + t)
        return '\n'.join(out) + '\n'
```

```python
import sys, struct, math
import numpy as np
from asmlib import Asm

NAME = 'concat_heads__spectral_gfnet__spectral_gfnet__prompt'

def f2u(x): return struct.unpack('<I', struct.pack('<f', x))[0]
def lit(x): return '0x%08x' % f2u(x)
def bf16bits(x):
    u = f2u(float(x)); return ((u + 0x7FFF + ((u >> 16) & 1)) >> 16) & 0xFFFF
def sigma(m): return (m & 1) | ((m >> 1) & 1) << 3 | ((m >> 2) & 1) << 1 | ((m >> 3) & 1) << 2 | (m & 16)

S11 = 2.0**-11
R0 = 0
R1 = 33024
WL = 66048
SCR = WL + 8*4*1056
SCR_B = SCR + 36*256
LDS_TOTAL = SCR_B + 8192
WS_U1 = 0
WS_U2 = 8 << 20
WS_FLAG = 16 << 20
WS_TS = 17 << 20
WS_SIZE = 18 << 20

class V: pass
_n = [0]
def alloc(n, align=1):
    b = (_n[0] + align - 1)//align*align
    _n[0] = b + n
    return b
V.tid = alloc(1); V.lane = alloc(1)
for nm in 'g n Xoff Est Eld X0w X0r0 X0r1 X1w X1r X2w X2r WP WM flag l16'.split(): setattr(V, nm, alloc(1))
V.Ooff, V.X3w0, V.X3w1, V.X3r = V.Xoff, V.X0w, V.X0r0, V.X0r1
V.T = alloc(10, 2)
V.O = alloc(16, 4)
V.DA = alloc(32, 4)
V.DB = alloc(32, 4)
V.L = V.DB
V.F16 = alloc(8, 4)
V.M2 = alloc(16, 4)
V.F32 = alloc(32, 4)
V.TW = alloc(32, 4)
V.W = alloc(32, 4)
V.B = alloc(12, 4)
V.Bp = alloc(8, 4)
NVGPR = _n[0]
assert NVGPR <= 256, NVGPR
def v(i): return 'v%d' % i
def vr(i, n): return 'v[%d:%d]' % (i, i+n-1)

SX, SWR, SWI, SOUT, SDBG, SWS = 's[4:7]', 's[8:11]', 's[12:15]', 's[16:19]', 's[20:23]', 's[24:27]'
sP, sT, sW, sSB, sCB, sK0 = 's30', 's31', 's32', 's33', 's34', 's35'
sKP, sKM = 's36', 's37'
sA, sB, sC, sD, sE, sF = 's40', 's41', 's42', 's43', 's44', 's45'
sEst, sEld, sCnt, sSpec = 's46', 's47', 's48', 's49'
sO = ['s52', 's53', 's54', 's55']
sTS = 56

class Gen:
    def __init__(self, mode='one', **opt):
        self.mode = mode
        self.o = dict(ldx='nt', ldw='nt', st1='sc1', st2='sc1', sto='sc1', ld1='sc1', ld2='sc1', ts=False, stagger=True, pf=True)
        self.o.update(opt)
        self.a = Asm()
        self.lab = 0
        self.nts = 0
        self.tail = []

    def label(self, p='L'):
        self.lab += 1
        return '%s_%d' % (p, self.lab)

    def stamp(self):
        if not self.o['ts']: return
        self.a('s_memrealtime s[%d:%d]' % (sTS+2*self.nts, sTS+2*self.nts+1))
        self.nts += 1

    def dump_stamps(self, slot0=0):
        if not self.o['ts']: return
        a = self.a
        a('s_waitcnt lgkmcnt(0)')
        a('s_lshl_b32 %s, s2, 3' % sA); a('s_add_u32 %s, %s, %s' % (sA, sA, sW)); a('s_lshl_b32 %s, %s, 7' % (sA, sA))
        a('s_add_u32 %s, %s, 0x%x' % (sA, sA, WS_TS + slot0*4))
        a('s_mov_b64 exec, 1')
        a('v_mov_b32 %s, 0' % v(V.T+1))
        for i in range(self.nts):
            a('v_mov_b32 %s, s%d' % (v(V.T), sTS+2*i))
            a('buffer_store_dword %s, %s, %s, %s offen offset:%d' % (v(V.T), v(V.T+1), SWS, sA, 4*i))
            a('s_nop 1')
        a('s_mov_b64 exec, -1')
        self.nts = 0

    def prologue(self, end):
        a = self.a
        a('s_cmp_ge_u32 s2, 0x100')
        a('s_cbranch_scc1 %s' % end)
        self.stamp()
        a('s_bfe_u32 %s, s2, 0x10003' % sP)
        a('s_mul_i32 s3, %s, 24' % sP)
        a('s_add_u32 s28, s0, s3')
        a('s_addc_u32 s29, s1, 0')
        a('s_load_dwordx2 s[4:5], s[28:29], 0x0')
        a('s_load_dwordx2 s[8:9], s[28:29], 0x8')
        a('s_load_dwordx2 s[12:13], s[28:29], 0x10')
        a('s_load_dwordx2 s[16:17], s[0:1], 0x30')
        a('s_load_dwordx2 s[20:21], s[0:1], 0x38')
        a('s_load_dwordx2 s[24:25], s[0:1], 0x40')
        a('v_lshrrev_b32 %s, 6, v0' % v(V.T))
        a('v_and_b32 %s, 63, v0' % v(V.lane))
        a('v_readfirstlane_b32 %s, %s' % (sW, v(V.T)))
        a('s_and_b32 %s, s2, 7' % sA)
        a('s_lshl_b32 %s, %s, 4' % (sT, sA))
        a('s_lshr_b32 %s, s2, 4' % sB)
        a('s_or_b32 %s, %s, %s' % (sT, sT, sB))
        a('s_lshl_b32 %s, %s, 1' % (sCB, sA))
        a('s_bfe_u32 %s, %s, 0x10001' % (sC, sB))
        a('s_or_b32 %s, %s, %s' % (sCB, sCB, sC))
        a('s_bfe_u32 %s, %s, 0x20002' % (sSB, sB))
        a('s_lshl_b32 %s, %s, 1' % (sSB, sSB))
        a('s_and_b32 %s, %s, 1' % (sC, sB))
        a('s_or_b32 %s, %s, %s' % (sSB, sSB, sC))
        a('s_mov_b32 s6, 0x400000'); a('s_mov_b32 s7, 0x20000')
        a('s_mov_b32 s10, 2101248'); a('s_mov_b32 s11, 0x20000')
        a('s_mov_b32 s14, 2101248'); a('s_mov_b32 s15, 0x20000')
        a('s_mov_b32 s18, 0x800000'); a('s_mov_b32 s19, 0x20000')
        a('s_mov_b32 s22, 256'); a('s_mov_b32 s23, 0x20000')
        a('s_mov_b32 s26, 0x%x' % WS_SIZE); a('s_mov_b32 s27, 0x20000')
        a('v_lshrrev_b32 %s, 4, %s' % (v(V.g), v(V.lane)))
        a('v_and_b32 %s, 15, %s' % (v(V.n), v(V.lane)))
        a('v_lshlrev_b32 %s, 4, %s' % (v(V.l16), v(V.lane)))

    def ex_addrs(self):
        a = self.a
        a('v_lshlrev_b32 %s, 4, %s' % (v(V.T), v(V.n)))
        a('v_lshl_add_u32 %s, %s, 17, %s' % (v(V.Est), v(V.g), v(V.T)))
        a('v_lshl_add_u32 %s, %s, 10, %s' % (v(V.Eld), v(V.g), v(V.T)))
        a('s_lshl_b32 %s, %s, 22' % (sA, sP))
        a('s_lshl_b32 %s, %s, 19' % (sEst, sW)); a('s_add_u32 %s, %s, %s' % (sEst, sEst, sA))
        a('s_lshl_b32 %s, %s, 8' % (sB, sT)); a('s_add_u32 %s, %s, %s' % (sEst, sEst, sB))
        a('s_lshl_b32 %s, %s, 15' % (sEld, sT)); a('s_add_u32 %s, %s, %s' % (sEld, sEld, sA))
        a('s_lshl_b32 %s, %s, 12' % (sB, sW)); a('s_add_u32 %s, %s, %s' % (sEld, sEld, sB))

    def trig(self, x, re, im, conj_re=None, conj_im=None):
        a = self.a; c, s = V.T+8, V.T+9
        a('v_cos_f32 %s, %s' % (v(c), v(x)))
        a('v_sin_f32 %s, %s' % (v(s), v(x)))
        a('v_cvt_pk_bf16_f32 %s, %s, %s' % (v(re), v(c), v(s)))
        a('v_cvt_pk_bf16_f32 %s, -%s, %s' % (v(im), v(s), v(c)))
        if conj_re is not None:
            a('v_cvt_pk_bf16_f32 %s, %s, -%s' % (v(conj_re), v(c), v(s)))
            a('v_cvt_pk_bf16_f32 %s, %s, %s' % (v(conj_im), v(s), v(c)))

    def gen_F16(self):
        a = self.a; T = V.T
        a('v_cvt_f32_u32 %s, %s' % (v(T), v(V.n)))
        a('v_mul_f32 %s, %s, %s' % (v(T), lit(1/16), v(T)))
        a('v_cvt_f32_u32 %s, %s' % (v(T+1), v(V.g)))
        a('v_mul_f32 %s, 4.0, %s' % (v(T+1), v(T+1)))
        a('v_mul_f32 %s, %s, %s' % (v(T+2), v(T), v(T+1)))
        for r in range(4):
            self.trig(T+2, V.F16+r, V.F16+4+r)
            if r < 3: a('v_add_f32 %s, %s, %s' % (v(T+2), v(T+2), v(T)))

    def gen_M2(self):
        a = self.a; T = V.T
        l0, l1 = self.label('M2w0'), self.label('M2end')
        a('v_cvt_f32_u32 %s, %s' % (v(T+1), v(V.g)))
        a('v_mul_f32 %s, 4.0, %s' % (v(T+1), v(T+1)))
        a('s_cmp_eq_u32 %s, 0' % sW)
        a('s_cbranch_scc1 %s' % l0)
        a('v_lshl_add_u32 %s, %s, 4, %s' % (v(T), v(V.n), sW))
        a('v_cvt_f32_u32 %s, %s' % (v(T), v(T)))
        a('v_mul_f32 %s, %s, %s' % (v(T), lit(1/256), v(T)))
        a('v_mul_f32 %s, %s, %s' % (v(T+2), v(T), v(T+1)))
        for r in range(4):
            self.trig(T+2, V.M2+r, V.M2+4+r, V.M2+8+r, V.M2+12+r)
            if r < 3: a('v_add_f32 %s, %s, %s' % (v(T+2), v(T+2), v(T)))
        a(l1+':')
        def tail():
            a(l0+':')
            for ts in range(2):
                a('v_lshrrev_b32 %s, 1, %s' % (v(T), v(V.n)))
                a('v_lshlrev_b32 %s, 4, %s' % (v(T), v(T)))
                if ts: a('v_add_u32 %s, 8, %s' % (v(T), v(T)))
                else:
                    a('v_mov_b32 %s, 0x80' % v(T+3))
                    a('v_cmp_eq_u32 vcc, 1, %s' % v(V.n))
                    a('v_cndmask_b32 %s, %s, %s, vcc' % (v(T), v(T), v(T+3)))
                a('v_cvt_f32_u32 %s, %s' % (v(T), v(T)))
                a('v_mul_f32 %s, %s, %s' % (v(T), lit(1/256), v(T)))
                a('v_lshlrev_b32 %s, 31, %s' % (v(T+3), v(V.n)))
                a('v_xor_b32 %s, %s, %s' % (v(T), v(T), v(T+3)))
                a('v_mul_f32 %s, %s, %s' % (v(T+2), v(T), v(T+1)))
                for r in range(4):
                    self.trig(T+2, V.M2+8*ts+r, V.M2+8*ts+4+r)
                    if r < 3: a('v_add_f32 %s, %s, %s' % (v(T+2), v(T+2), v(T)))
            a('s_branch %s' % l1)
        self.tail.append(tail)

    def gen_M3(self):
        a = self.a; T = V.T
        l0, l1 = self.label('M3w0'), self.label('M3end')
        a('v_cvt_f32_u32 %s, %s' % (v(T), v(V.n)))
        a('v_mul_f32 %s, %s, %s' % (v(T+1), lit(1/256), v(T)))
        a('v_mul_f32 %s, %s, %s' % (v(T), lit(1/16), v(T)))
        a('s_cmp_eq_u32 %s, 0' % sW)
        a('s_cbranch_scc1 %s' % l0)
        a('v_lshl_add_u32 %s, %s, 6, %s' % (v(T+2), v(V.g), sW))
        a('v_cvt_f32_u32 %s, %s' % (v(T+2), v(T+2)))
        a('v_mul_f32 %s, %s, %s' % (v(T+2), v(T+2), v(T+1)))
        for r in range(4):
            self.trig(T+2, V.M2+r, V.M2+4+r, V.M2+8+r, V.M2+12+r)
            if r < 3: a('v_add_f32 %s, %s, %s' % (v(T+2), v(T+2), v(T)))
        a(l1+':')
        def tail():
            a(l0+':')
            for ts in range(2):
                a('v_lshlrev_b32 %s, 5, %s' % (v(T+2), v(V.g)))
                if ts: a('v_add_u32 %s, 8, %s' % (v(T+2), v(T+2)))
                a('v_cvt_f32_u32 %s, %s' % (v(T+2), v(T+2)))
                a('v_mul_f32 %s, %s, %s' % (v(T+2), v(T+2), v(T+1)))
                for eb in range(2):
                    b = V.M2+8*ts
                    self.trig(T+2, b+2*eb, b+4+2*eb, b+2*eb+1, b+4+2*eb+1)
                    if eb == 0: a('v_add_f32 %s, %s, %s' % (v(T+2), v(T+2), v(T)))
            a('s_mov_b64 exec, 0xffff')
            a('v_lshlrev_b32 %s, 15, %s' % (v(T+2), v(V.n)))
            a('v_and_b32 %s, 0x8000, %s' % (v(T+2), v(T+2)))
            a('v_or_b32 %s, 0x3f80, %s' % (v(V.M2+1), v(T+2)))
            a('v_lshlrev_b32 %s, 16, %s' % (v(V.M2+5), v(V.M2+1)))
            a('s_mov_b64 exec, -1')
            a('s_branch %s' % l1)
        self.tail.append(tail)

    def sigma_lane(self, dst):
        a = self.a; T = V.T
        a('v_and_b32 %s, 17, %s' % (v(dst), v(V.lane)))
        a('v_bfe_u32 %s, %s, 2, 2' % (v(T+7), v(V.lane)))
        a('v_lshl_add_u32 %s, %s, 1, %s' % (v(dst), v(T+7), v(dst)))
        a('v_bfe_u32 %s, %s, 1, 1' % (v(T+7), v(V.lane)))
        a('v_lshl_add_u32 %s, %s, 3, %s' % (v(dst), v(T+7), v(dst)))

    def gen_F32TW(self):
        a = self.a; T = V.T
        self.sigma_lane(T)
        a('v_cvt_f32_u32 %s, %s' % (v(T), v(T)))
        a('v_mul_f32 %s, %s, %s' % (v(T), lit(1/1024), v(T)))
        a('v_lshrrev_b32 %s, 5, %s' % (v(T+1), v(V.lane)))
        a('v_cvt_f32_u32 %s, %s' % (v(T+1), v(T+1)))
        a('v_add_f32 %s, %s, %s' % (v(T+1), v(T+1), v(T+1)))
        a('v_mul_f32 %s, %s, %s' % (v(T+1), v(T+1), v(T)))
        for rho in range(16):
            k = sigma(8*(rho >> 2) + (rho & 3))
            a('v_fmamk_f32 %s, %s, %s, %s' % (v(T+2), v(T), lit(float(k)), v(T+1)))
            a('v_mul_f32 %s, %s, %s' % (v(T+3), lit(32.0), v(T+2)))
            a('v_cos_f32 %s, %s' % (v(V.TW+rho), v(T+2)))
            a('v_sin_f32 %s, %s' % (v(V.TW+16+rho), v(T+2)))
            self.trig(T+3, V.F32+rho, V.F32+16+rho)

    def calc_k0(self):
        a = self.a
        a('s_lshr_b32 %s, %s, 4' % (sA, sT))
        a('s_and_b32 %s, %s, 15' % (sB, sT))
        a('s_lshl_b32 %s, %s, 4' % (sK0, sB))
        a('s_add_u32 %s, %s, %s' % (sK0, sK0, sA))
        a('s_lshr_b32 %s, %s, 2' % (sC, sB)); a('s_lshl_b32 %s, %s, 5' % (sC, sC))
        a('s_and_b32 %s, %s, 1' % (sD, sB)); a('s_lshl_b32 %s, %s, 4' % (sD, sD)); a('s_add_u32 %s, %s, %s' % (sC, sC, sD))
        a('s_and_b32 %s, %s, 2' % (sD, sB)); a('s_lshl_b32 %s, %s, 2' % (sD, sD)); a('s_add_u32 %s, %s, %s' % (sC, sC, sD))
        a('s_cmp_eq_u32 %s, 0' % sA)
        a('s_cselect_b32 %s, %s, %s' % (sK0, sC, sK0))
        a('s_cmp_eq_u32 %s, 0' % sT)
        a('s_cselect_b32 %s, 7, 8' % sA)
        a('s_lshl_b32 %s, %s, %s' % (sKP, sW, sA))
        a('s_add_u32 %s, %s, %s' % (sKP, sKP, sK0))
        a('s_sub_u32 %s, 0x800, %s' % (sKM, sKP))
        a('s_cmp_eq_u32 %s, 0' % sKP)
        a('s_cselect_b32 %s, 0x400, %s' % (sKM, sKM))
        a('s_cselect_b32 %s, 1, 0' % sSpec)
        a('s_mul_i32 %s, %s, 1026' % (sKP, sKP))
        a('s_mul_i32 %s, %s, 1026' % (sKM, sKM))

    def w_dma(self):
        a = self.a
        md = self.o['ldw']
        a('s_mul_i32 %s, %s, 4224' % (sA, sW))
        a('s_add_u32 %s, %s, %d' % (sA, sA, WL))
        a('s_and_b32 %s, %s, -16' % (sB, sKP))
        a('s_and_b32 %s, %s, -16' % (sC, sKM))
        rows = [(SWR, sB), (SWI, sB), (SWR, sC), (SWI, sC)]
        for i, (srd, so) in enumerate(rows):
            a('s_add_u32 m0, %s, %d' % (sA, 1056*i))
            a('buffer_load_dwordx4 %s, %s, %s offen %s lds' % (v(V.l16), srd, so, md))
        a('s_mov_b64 exec, 1')
        for i, (srd, so) in enumerate(rows):
            a('s_add_u32 m0, %s, %d' % (sA, 1056*i))
            a('buffer_load_dwordx4 %s, %s, %s offen offset:1024 %s lds' % (v(V.l16), srd, so, md))
        a('s_mov_b64 exec, -1')

    def w_regs(self):
        a = self.a; T = V.T
        self.sigma_lane(T)
        a('v_lshrrev_b32 %s, 5, %s' % (v(T+1), v(V.lane)))
        a('v_lshlrev_b32 %s, 7, %s' % (v(T+1), v(T+1)))
        a('v_lshl_add_u32 %s, %s, 1, %s' % (v(T), v(T), v(T+1)))
        a('s_mul_i32 %s, %s, 4224' % (sA, sW))
        a('s_and_b32 %s, %s, 15' % (sB, sKP)); a('s_add_u32 %s, %s, %s' % (sB, sB, sA)); a('s_add_u32 %s, %s, %d' % (sB, sB, WL))
        a('s_and_b32 %s, %s, 15' % (sC, sKM)); a('s_add_u32 %s, %s, %s' % (sC, sC, sA)); a('s_add_u32 %s, %s, %d' % (sC, sC, WL+2112))
        a('v_add_u32 %s, %s, %s' % (v(V.WP), sB, v(T)))
        a('s_add_u32 %s, %s, %d' % (sD, sC, 1024-832))
        a('v_sub_u32 %s, %s, %s' % (v(V.WM), sD, v(T)))
        def q(rho): return (rho & 1) + 8*((rho >> 1) & 1) + 4*((rho >> 2) & 1)
        for rho in range(8):
            a('ds_read_u16_d16_hi %s, %s offset:%d' % (v(V.W+rho), v(V.WP), 64*q(rho)))
            a('ds_read_u16_d16_hi %s, %s offset:%d' % (v(V.W+16+rho), v(V.WP), 64*q(rho)+1056))
            if rho == 5: a('s_waitcnt lgkmcnt(6)')
        for rho in range(8, 16):
            a('ds_read_u16_d16_hi %s, %s offset:%d' % (v(V.W+rho), v(V.WM), 64*(13-q(rho))))
            a('ds_read_u16_d16_hi %s, %s offset:%d' % (v(V.W+16+rho), v(V.WM), 64*(13-q(rho))+1056))
        l0, l1 = self.label('Wspec'), self.label('Wend')
        a('s_cmp_eq_u32 %s, 1' % sSpec)
        a('s_cbranch_scc1 %s' % l0)
        a('v_mov_b32 %s, %s' % (v(T+1), sC))
        a('ds_read_u16_d16_hi %s, %s' % (v(T+2), v(T+1)))
        a('ds_read_u16_d16_hi %s, %s offset:1056' % (v(T+3), v(T+1)))
        a('ds_read_u16_d16_hi %s, %s offset:1024' % (v(T+4), v(V.WP)))
        a('ds_read_u16_d16_hi %s, %s offset:2080' % (v(T+5), v(V.WP)))
        a('s_waitcnt lgkmcnt(0)')
        a('s_mov_b64 exec, 1')
        a('v_add_f32 %s, %s, %s' % (v(V.W), v(V.W), v(T+2)))
        a('v_sub_f32 %s, %s, %s' % (v(V.W+16), v(V.W+16), v(T+3)))
        a('v_add_f32 %s, %s, %s' % (v(V.W+8), v(V.W+8), v(T+4)))
        a('v_sub_f32 %s, %s, %s' % (v(V.W+24), v(V.W+24), v(T+5)))
        for r in (0, 16, 8, 24): a('v_mul_f32 %s, 0.5, %s' % (v(V.W+r), v(V.W+r)))
        a('s_mov_b64 exec, -1')
        a(l1+':')
        def tail():
            X = V.DA
            a(l0+':')
            a('v_add_u32 %s, %s, %s' % (v(T+1), sC, v(T)))
            a('s_add_u32 %s, %s, %d' % (sD, sB, 1024-832))
            a('v_sub_u32 %s, %s, %s' % (v(T+2), sD, v(T)))
            a('s_waitcnt lgkmcnt(0)')
            for rho in range(8):
                a('ds_read_u16_d16_hi %s, %s offset:%d' % (v(X+rho), v(T+1), 64*q(rho)))
                a('ds_read_u16_d16_hi %s, %s offset:%d' % (v(X+16+rho), v(T+1), 64*q(rho)+1056))
            for rho in range(8, 16):
                a('ds_read_u16_d16_hi %s, %s offset:%d' % (v(X+rho), v(T+2), 64*(13-q(rho))))
                a('ds_read_u16_d16_hi %s, %s offset:%d' % (v(X+16+rho), v(T+2), 64*(13-q(rho))+1056))
            a('s_waitcnt lgkmcnt(0)')
            a('s_mov_b64 exec, 1')
            for r in (V.W+16, V.W+24, X+16, X+24): a('v_mov_b32 %s, 0' % v(r))
            a('s_mov_b64 exec, -1')
            for i in range(32):
                a('v_add_f32 %s, %s, %s' % (v(T+3), v(V.W+i), v(X+i)))
                if (i & 15) < 8: a('v_sub_f32 %s, %s, %s' % (v(X+i), v(V.W+i), v(X+i)))
                else: a('v_sub_f32 %s, %s, %s' % (v(X+i), v(X+i), v(V.W+i)))
                a('v_mov_b32 %s, %s' % (v(V.W+i), v(T+3)))
            a('v_add_u32 %s, %d, %s' % (v(T+1), SCR_B, v(V.l16)))
            for i in range(8):
                a('ds_write_b128 %s, %s offset:%d' % (v(T+1), vr(X+4*i, 4), 1024*i))
            a('s_waitcnt lgkmcnt(0)')
            a('s_branch %s' % l1)
        self.tail.append(tail)

    def gen_B(self):
        a = self.a; T = V.T
        l0, l1 = self.label('Bspec'), self.label('Bend')
        a('s_cmp_eq_u32 %s, 0' % sT)
        a('s_cbranch_scc1 %s' % l0)
        c, s = T+8, T+9
        a('v_lshrrev_b32 %s, 1, %s' % (v(T), v(V.n)))
        a('v_lshl_add_u32 %s, %s, 8, %s' % (v(T+1), v(T), sK0))
        a('v_cvt_f32_u32 %s, %s' % (v(T+1), v(T+1)))
        a('v_mul_f32 %s, %s, %s' % (v(T+1), lit(1/2048), v(T+1)))
        a('v_cvt_f32_u32 %s, %s' % (v(T+2), v(V.g)))
        a('v_add_f32 %s, %s, %s' % (v(T+2), v(T+2), v(T+2)))
        a('v_and_b32 %s, 1, %s' % (v(T+3), v(V.n)))
        a('v_cvt_f32_u32 %s, %s' % (v(T+3), v(T+3)))
        a('v_mul_f32 %s, %s, %s' % (v(T+4), lit(0.25), v(T+3)))
        a('v_mul_f32 %s, %s, %s' % (v(T+5), v(T+1), v(T+2)))
        for sbb in range(2):
            for half in range(2):
                a('v_%s_f32 %s, %s, %s' % ('sub' if half else 'add', v(T+6), v(T+5), v(T+4)))
                a('v_cos_f32 %s, %s' % (v(c), v(T+6)))
                a('v_sin_f32 %s, %s' % (v(s), v(T+6)))
                a('v_mul_f32 %s, %s, %s' % (v(c), lit(S11), v(c)))
                a('v_mul_f32 %s, %s, %s' % (v(s), lit(S11), v(s)))
                ng = '-' if half else ''
                a('v_cvt_pk_bf16_f32 %s, %s, %s%s' % (v(V.B+2*sbb+half), v(c), ng, v(s)))
                a('v_cvt_pk_bf16_f32 %s, -%s, %s%s' % (v(V.B+6+2*sbb+half), v(s), ng, v(c)))
            if sbb == 0: a('v_add_f32 %s, %s, %s' % (v(T+5), v(T+5), v(T+1)))
        a('v_cvt_f32_u32 %s, %s' % (v(T), v(T)))
        a('v_lshlrev_b32 %s, 31, %s' % (v(T+4), v(V.n)))
        a('v_xor_b32 %s, %s, %s' % (v(T), v(T), v(T+4)))
        a('v_xor_b32 %s, %s, %s' % (v(T+4), lit(S11), v(T+4)))
        a('v_lshl_add_u32 %s, %s, 9, %s' % (v(T+1), v(V.g), sK0))
        a('v_cvt_f32_u32 %s, %s' % (v(T+1), v(T+1)))
        a('v_mul_f32 %s, %s, %s' % (v(T+1), lit(1/2048), v(T+1)))
        a('v_mul_f32 %s, %s, %s' % (v(T+5), v(T+1), v(T)))
        a('v_fmac_f32 %s, 0.5, %s' % (v(T+5), v(T+3)))
        for ii in range(2):
            a('v_cos_f32 %s, %s' % (v(c), v(T+5)))
            a('v_sin_f32 %s, %s' % (v(s), v(T+5)))
            a('v_mul_f32 %s, %s, %s' % (v(T+6), v(T+4), v(c)))
            a('v_mul_f32 %s, %s, %s' % (v(T+7), v(T+4), v(s)))
            a('v_mul_f32 %s, %s, %s' % (v(c), lit(S11), v(c)))
            a('v_mul_f32 %s, %s, %s' % (v(s), lit(S11), v(s)))
            a('v_cvt_pk_bf16_f32 %s, %s, %s' % (v(V.Bp+2*ii), v(c), v(T+7)))
            a('v_cvt_pk_bf16_f32 %s, -%s, %s' % (v(V.Bp+4+2*ii), v(s), v(T+6)))
            a('v_cvt_pk_bf16_f32 %s, -%s, %s' % (v(V.Bp+2*ii+1), v(s), v(T+6)))
            a('v_cvt_pk_bf16_f32 %s, -%s, -%s' % (v(V.Bp+4+2*ii+1), v(c), v(T+7)))
            if ii == 0: a('v_fmac_f32 %s, %s, %s' % (v(T+5), lit(0.125), v(T)))
        a(l1+':')
        a('v_mov_b32 %s, %s' % (v(V.B+4), v(V.B))); a('v_mov_b32 %s, %s' % (v(V.B+5), v(V.B+1)))
        a('v_mov_b32 %s, %s' % (v(V.B+10), v(V.B+6))); a('v_mov_b32 %s, %s' % (v(V.B+11), v(V.B+7)))
        def tail():
            a(l0+':')
            a('s_getpc_b64 s[28:29]')
            a('s_add_u32 s28, s28, spec_tab@rel32@lo+4')
            a('s_addc_u32 s29, s29, spec_tab@rel32@hi+12')
            a('global_load_dwordx4 %s, %s, s[28:29]' % (vr(V.B, 4), v(V.l16)))
            a('global_load_dwordx4 %s, %s, s[28:29] offset:1024' % (vr(V.B+6, 4), v(V.l16)))
            a('global_load_dwordx4 %s, %s, s[28:29] offset:2048' % (vr(V.Bp, 4), v(V.l16)))
            a('global_load_dwordx4 %s, %s, s[28:29] offset:3072' % (vr(V.Bp+4, 4), v(V.l16)))
            a('s_waitcnt vmcnt(0)')
            a('s_branch %s' % l1)
        self.tail.append(tail)

    def spec_table(self):
        tab = np.zeros((4, 64, 4, 2))
        for lane in range(64):
            m, g = lane & 15, lane >> 4
            for r in range(4):
                t, c = m >> 1, m & 1; sb, hf = 2*g + (r >> 1), r & 1
                if hf == (t & 1):
                    th = 2*math.pi*sb*t/16
                    tab[0, lane, r, c] = (2*S11 if t else S11)*math.cos(th)
                    tab[1, lane, r, c] = -2*S11*math.sin(th) if t else S11*(-1.0)**sb
                sb, hf = m >> 1, m & 1; t, c = 2*g + (r >> 1), r & 1
                if hf == (t & 1):
                    th = 2*math.pi*sb*t/16
                    if t: cre, cim = 2*math.cos(th), -2*math.sin(th)
                    else: cre, cim = 1.0, (-1.0)**sb
                    pl = 2 + (1 - c)
                    tab[pl, lane, r, 0] = S11*cim
                    tab[pl, lane, r, 1] = S11*cre
        tab[abs(tab) < 1e-12] = 0
        out = ['.p2align 6', '.type spec_tab,@object', 'spec_tab:']
        w = [bf16bits(tab[p, l, r, 0]) | bf16bits(tab[p, l, r, 1]) << 16 for p in range(4) for l in range(64) for r in range(4)]
        for i in range(0, len(w), 8):
            out.append('.long ' + ','.join('0x%x' % x for x in w[i:i+8]))
        return '\n'.join(out)

    def p1_load(self):
        a = self.a; T = V.T
        a('v_bfe_u32 %s, %s, 3, 1' % (v(T), v(V.lane)))
        a('v_lshlrev_b32 %s, 14, %s' % (v(T), v(T)))
        a('v_lshl_add_u32 %s, %s, 20, %s' % (v(T), v(V.g), v(T)))
        a('v_and_b32 %s, 0x70, %s' % (v(T+1), v(V.l16)))
        a('v_add_u32 %s, %s, %s' % (v(V.Xoff), v(T), v(T+1)))
        a('s_lshl_b32 %s, %s, 15' % (sO[0], sW))
        a('s_lshl_b32 %s, %s, 11' % (sA, sSB)); a('s_add_u32 %s, %s, %s' % (sO[0], sO[0], sA))
        a('s_lshl_b32 %s, %s, 7' % (sA, sCB)); a('s_add_u32 %s, %s, %s' % (sO[0], sO[0], sA))
        for r in range(1, 4): a('s_add_u32 %s, %s, 0x%x' % (sO[r], sO[0], r*262144))
    def p1_issue(self):
        a = self.a
        for r in range(4):
            a('buffer_load_dwordx4 %s, %s, %s, %s offen %s' % (vr(V.L+4*r, 4), v(V.Xoff), SX, sO[r], self.o['ldx']))
    def p1_addrs(self):
        a = self.a; T = V.T
        a('v_xor_b32 %s, %s, %s' % (v(T), sSB, v(V.lane)))
        a('v_and_b32 %s, 1, %s' % (v(T), v(T)))
        a('v_mul_u32_u24 %s, 16448, %s' % (v(T), v(T)))
        a('v_lshl_add_u32 %s, %s, 12, %s' % (v(T), v(V.g), v(T)))
        a('v_and_b32 %s, 14, %s' % (v(T+1), v(V.lane)))
        a('v_lshl_add_u32 %s, %s, 3, %s' % (v(T), v(T+1), v(T)))
        a('s_lshr_b32 %s, %s, 2' % (sA, sW)); a('s_lshl_b32 %s, %s, 9' % (sA, sA))
        a('s_and_b32 %s, %s, 1' % (sB, sW)); a('s_lshl_b32 %s, %s, 8' % (sB, sB)); a('s_add_u32 %s, %s, %s' % (sA, sA, sB))
        a('s_and_b32 %s, %s, 2' % (sB, sW)); a('s_lshl_b32 %s, %s, 6' % (sB, sB)); a('s_add_u32 %s, %s, %s' % (sA, sA, sB))
        if R0: a('s_add_u32 %s, %s, %d' % (sA, sA, R0))
        a('v_add_u32 %s, %s, %s' % (v(V.X0w), sA, v(T)))
        self.tr_lane(T, 512, 128)
        a('s_lshl_b32 %s, %s, 10' % (sA, sW))
        a('s_sub_u32 %s, 0x4000, %s' % (sB, sA))
        a('s_cmp_eq_u32 %s, 0' % sW)
        a('s_cselect_b32 %s, 0x2000, %s' % (sB, sB))
        if R0: a('s_add_u32 %s, %s, %d' % (sA, sA, R0)); a('s_add_u32 %s, %s, %d' % (sB, sB, R0))
        a('v_add_u32 %s, %s, %s' % (v(V.X0r0), sA, v(T)))
        a('v_add_u32 %s, %s, %s' % (v(V.X0r1), sB, v(T)))
    def tr_lane(self, dst, g1s, g0s, b3s=64):
        a = self.a; t = V.T+7
        sh = lambda x: int(math.log2(x))
        a('v_and_b32 %s, 0x30, %s' % (v(dst), v(V.l16)))
        for bit, st in ((2, 8), (3, b3s), (4, g0s), (5, g1s)):
            a('v_bfe_u32 %s, %s, %d, 1' % (v(t), v(V.lane), bit))
            a('v_lshl_add_u32 %s, %s, %d, %s' % (v(dst), v(t), sh(st), v(dst)))

    def mf16(self, d, A, B):
        self.a('v_mfma_f32_16x16x32_bf16 %s, %s, %s, 0' % (vr(d, 4), vr(A, 4), vr(B, 4)))
    def cvt(self, d, lo, hi):
        self.a('v_cvt_pk_bf16_f32 %s, %s, %s' % (v(d), v(lo), v(hi)))

    def p1_compute(self, nafter):
        a = self.a; O, L, D = V.O, V.L, V.DA
        for r in range(4):
            a('s_waitcnt vmcnt(%d)' % (nafter + 3 - r))
            if r == 3: self.stamp()
            for t in range(4):
                a('v_mov_b32 %s, %s' % (v(O+4*t+r), v(L+4*r+t)))
        for t in range(4):
            self.mf16(D+4*t, V.F16, O+4*t)
            self.mf16(D+16+4*t, V.F16+4, O+4*t)
        P = V.DB
        for r in range(4):
            self.cvt(P+4*r, D+r, D+4+r); self.cvt(P+4*r+2, D+16+r, D+20+r)
        for r in range(4):
            self.cvt(P+4*r+1, D+8+r, D+12+r); self.cvt(P+4*r+3, D+24+r, D+28+r)
            a('ds_write_b128 %s, %s offset:%d' % (v(V.X0w), vr(P+4*r, 4), 1024*r))
        a('s_waitcnt lgkmcnt(0)')
        a('s_barrier')
        for sel in range(2):
            for tau in range(2):
                for ii in range(2):
                    a('ds_read_b64_tr_b16 %s, %s offset:%d' % (vr(O+4*(2*sel+tau)+2*ii, 2), v(V.X0r1 if sel else V.X0r0), tau*16448+ii*256))
        for r in range(4): a('s_add_u32 %s, %s, 0x%x' % (sO[r], sEst, WS_U1 + r*32768))
        for ti in range(4):
            a('s_waitcnt lgkmcnt(%d)' % (6-2*ti))
            self.mf16(D+4*ti, V.M2+8*(ti >> 1), O+4*ti)
            self.mf16(D+16+4*ti, V.M2+8*(ti >> 1)+4, O+4*ti)
        l0, l1 = self.label('P1w0'), self.label('P1end')
        a('s_cmp_eq_u32 %s, 0' % sW)
        a('s_cbranch_scc1 %s' % l0)
        st = lambda i: a('buffer_store_dwordx4 %s, %s, %s, %s offen %s' % (vr(P+4*i, 4), v(V.Est), SWS, sO[i], self.o['st1']))
        for i in range(4):
            for tau in range(2): self.cvt(P+4*i+2*tau, D+4*tau+i, D+16+4*tau+i)
        for i in range(4):
            for tau in range(2): self.cvt(P+4*i+2*tau+1, D+4*(2+tau)+i, D+16+4*(2+tau)+i)
            st(i)
        a(l1+':')
        def tail():
            a(l0+':')
            a('s_nop 7')
            for i in range(4):
                ts, eb = i >> 1, i & 1
                for tau in range(2):
                    for sg in range(2):
                        x = 4*(2*ts+tau)+2*eb+sg
                        self.cvt(P+4*i+2*tau+sg, D+x, D+16+x)
                st(i)
            a('s_branch %s' % l1)
        self.tail.append(tail)

    def p2_addrs(self):
        a = self.a; T = V.T
        a('v_lshlrev_b32 %s, 4, %s' % (v(T), v(V.n)))
        a('v_lshl_add_u32 %s, %s, 13, %s' % (v(T), v(V.g), v(T)))
        a('s_lshl_b32 %s, %s, 9' % (sA, sW)); a('s_add_u32 %s, %s, %d' % (sA, sA, R1))
        a('v_add_u32 %s, %s, %s' % (v(V.X1w), sA, v(T)))
        self.tr_lane(T, 256, 64, 128)
        a('s_lshl_b32 %s, %s, 12' % (sA, sW)); a('s_add_u32 %s, %s, %d' % (sA, sA, R1))
        a('v_add_u32 %s, %s, %s' % (v(V.X1r), sA, v(T)))
        a('v_and_b32 %s, 16, %s' % (v(T), v(V.l16)))
        for bit, st in ((1, 16448), (2, 8224)):
            a('v_bfe_u32 %s, %s, %d, 1' % (v(T+1), v(V.lane), bit))
            a('v_mul_u32_u24 %s, %d, %s' % (v(T+1), st, v(T+1)))
            a('v_add_u32 %s, %s, %s' % (v(T), v(T), v(T+1)))
        a('v_bfe_u32 %s, %s, 3, 2' % (v(T+1), v(V.lane)))
        a('v_lshl_add_u32 %s, %s, 11, %s' % (v(T), v(T+1), v(T)))
        a('v_and_b32 %s, 32, %s' % (v(T+1), v(V.lane)))
        a('v_add_u32 %s, %s, %s' % (v(T), v(T), v(T+1)))
        a('s_lshr_b32 %s, %s, 2' % (sA, sW)); a('s_lshl_b32 %s, %s, 9' % (sA, sA))
        a('s_and_b32 %s, %s, 1' % (sB, sW)); a('s_lshl_b32 %s, %s, 8' % (sB, sB)); a('s_add_u32 %s, %s, %s' % (sA, sA, sB))
        a('s_and_b32 %s, %s, 2' % (sB, sW)); a('s_lshl_b32 %s, %s, 6' % (sB, sB)); a('s_add_u32 %s, %s, %s' % (sA, sA, sB))
        if R0: a('s_add_u32 %s, %s, %d' % (sA, sA, R0))
        a('v_add_u32 %s, %s, %s' % (v(V.X2w), sA, v(T)))
        self.tr_lane(T, 512, 128)
        a('s_and_b32 %s, %s, 1' % (sA, sW)); a('s_lshl_b32 %s, %s, 11' % (sA, sA))
        a('s_bfe_u32 %s, %s, 0x10001' % (sB, sW)); a('s_mul_i32 %s, %s, 16448' % (sB, sB)); a('s_add_u32 %s, %s, %s' % (sA, sA, sB))
        a('s_lshr_b32 %s, %s, 2' % (sB, sW)); a('s_lshl_b32 %s, %s, 12' % (sB, sB)); a('s_add_u32 %s, %s, %s' % (sA, sA, sB))
        if R0: a('s_add_u32 %s, %s, %d' % (sA, sA, R0))
        a('v_add_u32 %s, %s, %s' % (v(V.X2r), sA, v(T)))

    def p2_issue(self):
        a = self.a
        a('s_add_u32 %s, %s, 0x%x' % (sA, sEld, WS_U1))
        for q in range(4):
            a('buffer_load_dwordx4 %s, %s, %s, %s offen offset:%d %s' % (vr(V.L+12*(q >> 1)+4*(q & 1), 4), v(V.Eld), SWS, sA, 256*q, self.o['ld1']))

    def mf32(self, d, i, dataA):
        for pl in range(2):
            M = vr(V.F32+16*pl+4*i, 4); X = vr(V.O+4*i, 4)
            A, B = (X, M) if dataA else (M, X)
            D = vr(d+16*pl, 16)
            self.a('v_mfma_f32_32x32x16_bf16 %s, %s, %s, %s' % (D, A, B, D if i else '0'))

    def cmul_stage(self, src, dst, dataA, coef, kind):
        a = self.a; T = V.T
        for i in range(4):
            for r in range(4):
                rho = 4*i+r
                x, y = v(src+rho), v(src+16+rho)
                c, s = v(coef+rho), v(coef+16+rho)
                t0, t1 = v(T+2*r), v(T+2*r+1)
                a('v_mul_f32 %s, %s, %s' % (t0, x, c))
                a('v_mul_f32 %s, %s, %s' % (t1, y, c))
            for r in range(4):
                rho = 4*i+r
                x, y = v(src+rho), v(src+16+rho)
                c, s = v(coef+rho), v(coef+16+rho)
                t0, t1 = v(T+2*r), v(T+2*r+1)
                if kind == 'tw' or rho >= 8:
                    a('v_fmac_f32 %s, %s, %s' % (t0, y, s))
                    a('v_fma_f32 %s, -%s, %s, %s' % (t1, x, s, t1))
                else:
                    a('v_fma_f32 %s, -%s, %s, %s' % (t0, y, s, t0))
                    a('v_fmac_f32 %s, %s, %s' % (t1, x, s))
            for r in range(4):
                if kind == 'tw': self.cvt(V.O+4*i+r, T+2*r, T+2*r+1)
                else: self.cvt(V.O+4*i+r, T+2*r+1, T+2*r)
            self.mf32(dst, i, dataA)

    def p2_compute(self):
        a = self.a; O, L, D, T = V.O, V.L, V.DA, V.T
        for cbb in range(2):
            b = L+12*cbb
            a('s_waitcnt vmcnt(%d)' % (3-2*cbb))
            a('v_mov_b32 %s, %s' % (v(b+8), v(b))); a('v_mov_b32 %s, %s' % (v(b+9), v(b+1)))
            a('s_waitcnt vmcnt(%d)' % (2-2*cbb))
            if cbb: self.stamp()
            for jj2 in (1, 0):
                ti = 2*cbb+jj2
                op = b+2 if jj2 else b+6
                mo = 0 if jj2 else 2
                self.mf16(D+4*ti, V.B+mo, op)
                self.mf16(D+16+4*ti, V.B+6+mo, op)
        for cbb in range(2):
            for k1b in range(2):
                P = O+4*(2*cbb+k1b)
                for pl in range(2):
                    for jj2 in (1, 0):
                        x = D+16*pl+4*(2*cbb+jj2)+2*k1b
                        self.cvt(P+2*pl+jj2, x, x+1)
                a('ds_write_b128 %s, %s offset:%d' % (v(V.X1w), vr(P, 4), k1b*4096+cbb*256))
        a('s_waitcnt lgkmcnt(0)')
        a('s_barrier')
        for i in range(4):
            for ii in range(2):
                a('ds_read_b64_tr_b16 %s, %s offset:%d' % (vr(O+4*i+2*ii, 2), v(V.X1r), ii*1024+(i & 1)*512+(i >> 1)*2048))
        for i in range(4):
            a('s_waitcnt lgkmcnt(%d)' % (6-2*i))
            self.mf32(V.DA, i, True)
        self.cmul_stage(V.DA, V.DB, False, V.TW, 'tw')
        l0, l1 = self.label('PWspec'), self.label('PWend')
        a('s_cmp_eq_u32 %s, 1' % sSpec)
        a('s_cbranch_scc1 %s' % l0)
        self.cmul_stage(V.DB, V.DA, True, V.W, 'w')
        a(l1+':')
        self.cmul_stage(V.DA, V.DB, True, V.TW, 'tw')
        D = V.DB
        rho = lambda jj3, jj1, jj2, c: 4*(2*jj3+jj1)+2*jj2+c
        for c in range(2):
            for jj1 in range(2):
                P = O+4*(2*c+jj1)
                for pl in range(2):
                    for jj3 in range(2):
                        self.cvt(P+2*pl+jj3, D+16*pl+rho(jj3, jj1, 0, c), D+16*pl+rho(jj3, jj1, 1, c))
                a('ds_write_b128 %s, %s offset:%d' % (v(V.X2w), vr(P, 4), c*64+jj1*1024))
        a('s_waitcnt lgkmcnt(0)')
        a('s_barrier')
        for cbb in range(2):
            for jj1 in range(2):
                for ii in range(2):
                    a('ds_read_b64_tr_b16 %s, %s offset:%d' % (vr(O+4*(2*cbb+jj1)+2*ii, 2), v(V.X2r), ii*256+jj1*1024+cbb*8224))
        for r in range(4): a('s_add_u32 %s, %s, 0x%x' % (sO[r], sEst, WS_U2 + r*32768))
        D = V.DA
        for ti in range(4):
            a('s_waitcnt lgkmcnt(%d)' % (6-2*ti))
            self.mf16(D+4*ti, V.Bp, O+4*ti)
            self.mf16(D+16+4*ti, V.Bp+4, O+4*ti)
        P = V.DB
        for q in range(4):
            cbb, sbb = q >> 1, q & 1
            for jj1 in range(2):
                for hf in range(2):
                    x = 4*(2*cbb+jj1)+2*sbb+hf
                    self.cvt(P+4*q+2*jj1+hf, D+x, D+16+x)
            a('buffer_store_dwordx4 %s, %s, %s, %s offen %s' % (vr(P+4*q, 4), v(V.Est), SWS, sO[q], self.o['st2']))
        def tail():
            C = V.DB; X = V.DA
            a(l0+':')
            self.sigma_lane(T)
            a('v_lshrrev_b32 %s, 5, %s' % (v(T+1), v(V.lane)))
            a('v_lshlrev_b32 %s, 9, %s' % (v(T+1), v(T+1)))
            a('v_lshl_add_u32 %s, %s, 2, %s' % (v(T+2), v(T), v(T+1)))
            a('v_add_u32 %s, %d, %s' % (v(T+2), SCR, v(T+2)))
            a('v_add_u32 %s, 128, %s' % (v(T+3), v(T+2)))
            a('v_sub_u32 %s, 32, %s' % (v(T+4), v(T)))
            a('v_lshrrev_b32 %s, 5, %s' % (v(T+5), v(T+4)))
            a('v_and_b32 %s, 31, %s' % (v(T+4), v(T+4)))
            a('v_lshlrev_b32 %s, 2, %s' % (v(T+4), v(T+4)))
            a('v_lshl_add_u32 %s, %s, 8, %s' % (v(T+4), v(T+5), v(T+4)))
            a('v_sub_u32 %s, %s, %s' % (v(T+4), v(T+4), v(T+1)))
            a('v_add_u32 %s, %d, %s' % (v(T+4), SCR + 2*256, v(T+4)))
            a('v_add_u32 %s, 128, %s' % (v(T+5), v(T+4)))
            a('v_add_u32 %s, %d, %s' % (v(T+6), SCR_B, v(V.l16)))
            qs = lambda rho: sigma(8*(rho >> 2) + (rho & 3))
            for pl in range(2):
                for rho in range(0, 16, 2):
                    a('ds_write2st64_b32 %s, %s, %s offset0:%d offset1:%d' % (v(T+2+pl), v(C+16*pl+rho), v(C+16*pl+rho+1), qs(rho), qs(rho+1)))
                a('ds_write_b32 %s, %s offset:%d' % (v(T+2+pl), v(C+16*pl), 32*256))
            a('s_waitcnt lgkmcnt(0)')
            t0, t1 = v(T+8), v(T+9)
            for half in range(2):
                for pl in range(2):
                    for k in range(0, 8, 2):
                        rho_ = 8*half+k
                        a('ds_read2st64_b32 %s, %s offset0:%d offset1:%d' % (vr(X+8*pl+k, 2), v(T+4+pl), 29-qs(rho_), 29-qs(rho_+1)))
                    for k in range(2):
                        a('ds_read_b128 %s, %s offset:%d' % (vr(X+16+8*pl+4*k, 4), v(T+6), 1024*(4*pl+2*half+k)))
                a('s_waitcnt lgkmcnt(0)')
                for k in range(8):
                    rho_ = 8*half+k
                    x, y = v(C+rho_), v(C+16+rho_); ar, ai = v(V.W+rho_), v(V.W+16+rho_)
                    p, q_ = v(X+k), v(X+8+k); br, bi = v(X+16+k), v(X+24+k)
                    ng, ps = ('', '-') if half else ('-', '')
                    a('v_mul_f32 %s, %s, %s' % (t0, x, ar))
                    a('v_mul_f32 %s, %s, %s' % (t1, y, ar))
                    a('v_fma_f32 %s, %s%s, %s, %s' % (t0, ng, y, ai, t0))
                    a('v_fma_f32 %s, %s%s, %s, %s' % (t1, ps, x, ai, t1))
                    a('v_fmac_f32 %s, %s, %s' % (t0, p, br))
                    a('v_fma_f32 %s, -%s, %s, %s' % (t1, q_, br, t1))
                    a('v_fma_f32 %s, %s%s, %s, %s' % (t0, ps, q_, bi, t0))
                    a('v_fma_f32 %s, %s%s, %s, %s' % (t1, ps, p, bi, t1))
                    self.cvt(O+rho_, T+9, T+8)
            for i in range(4): self.mf32(V.DA, i, True)
            a('s_nop 11')
            a('s_branch %s' % l1)
        self.tail.append(tail)

    def p3_addrs(self):
        a = self.a; T = V.T
        a('v_and_b32 %s, 16, %s' % (v(T), v(V.lane)))
        for bit, st in ((0, 32), (3, 4096), (5, 1024)):
            a('v_bfe_u32 %s, %s, %d, 1' % (v(T+1), v(V.lane), bit))
            a('v_lshl_add_u32 %s, %s, %d, %s' % (v(T), v(T+1), int(math.log2(st)), v(T)))
        for bit, st in ((1, 8208), (2, 16448)):
            a('v_bfe_u32 %s, %s, %d, 1' % (v(T+1), v(V.lane), bit))
            a('v_mul_u32_u24 %s, %d, %s' % (v(T+1), st, v(T+1)))
            a('v_add_u32 %s, %s, %s' % (v(T), v(T), v(T+1)))
        a('s_sub_u32 %s, 16, %s' % (sC, sW))
        a('s_cmp_eq_u32 %s, 0' % sW)
        a('s_cselect_b32 %s, 8, %s' % (sC, sC))
        for kl, dst in ((sW, V.X3w0), (sC, V.X3w1)):
            a('s_and_b32 %s, %s, 9' % (sA, kl)); a('s_lshl_b32 %s, %s, 6' % (sA, sA))
            a('s_and_b32 %s, %s, 2' % (sB, kl)); a('s_lshl_b32 %s, %s, 7' % (sB, sB)); a('s_add_u32 %s, %s, %s' % (sA, sA, sB))
            a('s_and_b32 %s, %s, 4' % (sB, kl)); a('s_lshl_b32 %s, %s, 5' % (sB, sB)); a('s_add_u32 %s, %s, %s' % (sA, sA, sB))
            a('s_add_u32 %s, %s, %d' % (sA, sA, R1))
            a('v_add_u32 %s, %s, %s' % (v(dst), sA, v(T)))
        self.tr_lane(T, 512, 128)
        a('s_and_b32 %s, %s, 1' % (sA, sW)); a('s_mul_i32 %s, %s, 8208' % (sA, sA))
        a('s_bfe_u32 %s, %s, 0x10001' % (sB, sW)); a('s_mul_i32 %s, %s, 16448' % (sB, sB)); a('s_add_u32 %s, %s, %s' % (sA, sA, sB))
        a('s_lshr_b32 %s, %s, 2' % (sB, sW)); a('s_lshl_b32 %s, %s, 12' % (sB, sB)); a('s_add_u32 %s, %s, %s' % (sA, sA, sB))
        a('s_add_u32 %s, %s, %d' % (sA, sA, R1))
        a('v_add_u32 %s, %s, %s' % (v(V.X3r), sA, v(T)))
        a('v_bfe_u32 %s, %s, 3, 1' % (v(T), v(V.lane)))
        a('v_lshlrev_b32 %s, 15, %s' % (v(T), v(T)))
        a('v_lshl_add_u32 %s, %s, 21, %s' % (v(T), v(V.g), v(T)))
        a('v_and_b32 %s, 0x70, %s' % (v(T+1), v(V.l16)))
        a('v_add_u32 %s, %s, %s' % (v(V.Ooff), v(T), v(T+1)))
    def p3_soff(self):
        a = self.a
        a('s_lshl_b32 %s, %s, 16' % (sO[0], sW))
        a('s_lshl_b32 %s, %s, 12' % (sA, sSB)); a('s_add_u32 %s, %s, %s' % (sO[0], sO[0], sA))
        a('s_lshl_b32 %s, %s, 7' % (sA, sCB)); a('s_add_u32 %s, %s, %s' % (sO[0], sO[0], sA))
        a('s_lshl_b32 %s, %s, 11' % (sA, sP)); a('s_add_u32 %s, %s, %s' % (sO[0], sO[0], sA))
        for r in range(1, 4): a('s_add_u32 %s, %s, 0x%x' % (sO[r], sO[0], r*524288))
    def p3_issue(self):
        a = self.a
        a('s_add_u32 %s, %s, 0x%x' % (sA, sEld, WS_U2))
        for q in range(4):
            a('buffer_load_dwordx4 %s, %s, %s, %s offen offset:%d %s' % (vr(V.L+4*q, 4), v(V.Eld), SWS, sA, 256*q, self.o['ld2']))
    def p3_compute(self):
        a = self.a; O, L, D = V.O, V.L, V.DA
        l0, l1 = self.label('P3w0'), self.label('P3m')
        a('s_cmp_eq_u32 %s, 0' % sW)
        a('s_cbranch_scc1 %s' % l0)
        for i in range(4):
            a('s_waitcnt vmcnt(%d)' % (3-i))
            for sel in range(2):
                for col in range(2):
                    a('v_mov_b32 %s, %s' % (v(O+4*(2*sel+col)+i), v(L+4*i+2*col+sel)))
        a(l1+':')
        self.stamp()
        def tail():
            a(l0+':')
            for i in range(4):
                ts, eb = i >> 1, i & 1
                a('s_waitcnt vmcnt(%d)' % (3-i))
                for col in range(2):
                    for sg in range(2):
                        a('v_mov_b32 %s, %s' % (v(O+4*(2*ts+col)+2*eb+sg), v(L+4*i+2*col+sg)))
            a('s_nop 1')
            a('s_branch %s' % l1)
        self.tail.append(tail)
        for ti in range(4):
            self.mf16(D+4*ti, O+4*ti, V.M2+8*(ti >> 1))
            self.mf16(D+16+4*ti, O+4*ti, V.M2+8*(ti >> 1)+4)
        P = V.DB
        for ti in range(4):
            for pl in range(2):
                for k in range(2):
                    x = D+16*pl+4*ti+2*k
                    self.cvt(P+4*ti+2*pl+k, x, x+1)
            a('ds_write_b128 %s, %s offset:%d' % (v(V.X3w1 if ti >> 1 else V.X3w0), vr(P+4*ti, 4), (ti & 1)*2048))
        a('s_waitcnt lgkmcnt(0)')
        a('s_barrier')
        for t in range(4):
            for ii in range(2):
                a('ds_read_b64_tr_b16 %s, %s offset:%d' % (vr(O+4*t+2*ii, 2), v(V.X3r), ii*256+t*1024))
        for t in range(4):
            a('s_waitcnt lgkmcnt(%d)' % (6-2*t))
            self.mf16(D+4*t, V.F16, O+4*t)
            self.mf16(D+16+4*t, V.F16+4, O+4*t)
        for t in range(3):
            for r in range(4): self.cvt(P+4*r+t, D+16+4*t+r, D+4*t+r)
        for r in range(4):
            self.cvt(P+4*r+3, D+16+12+r, D+12+r)
            a('buffer_store_dwordx4 %s, %s, %s, %s offen %s' % (vr(P+4*r, 4), v(V.Ooff), SOUT, sO[r], self.o['sto']))

    def flush_tail(self):
        t, self.tail = self.tail, []
        for f in t: f()

    def kernel_head(self, name):
        self.a.raw('.globl %s\n.p2align 8\n.type %s,@function\n%s:' % (name, name, name))
    def kd(self, name):
        return '''.p2align 6
.amdhsa_kernel %s
  .amdhsa_next_free_vgpr %d
  .amdhsa_next_free_sgpr 96
  .amdhsa_accum_offset %d
  .amdhsa_group_segment_fixed_size 0
  .amdhsa_kernarg_size 72
  .amdhsa_user_sgpr_count 2
  .amdhsa_user_sgpr_kernarg_segment_ptr 1
  .amdhsa_system_sgpr_workgroup_id_x 1
.end_amdhsa_kernel''' % (name, NVGPR, (NVGPR+3)//4*4)

    def build_three(self):
        a = self.a
        names = ['gf_p1_kernel', 'gf_p2_kernel', 'gf_p3_kernel']
        self.kernel_head(names[0]); end = self.label('end')
        self.prologue(end); self.p1_load(); a('s_waitcnt lgkmcnt(0)'); self.p1_issue()
        self.ex_addrs(); self.p1_addrs(); self.gen_F16(); self.gen_M2()
        self.p1_compute(0)
        if self.o['ts']: self.stamp(); a('s_waitcnt vmcnt(0)'); self.stamp(); self.dump_stamps(0)
        a(end+':'); a('s_endpgm'); self.flush_tail()
        self.kernel_head(names[1]); end = self.label('end')
        self.prologue(end); self.ex_addrs(); self.calc_k0(); a('s_waitcnt lgkmcnt(0)')
        self.w_dma(); self.p2_addrs(); self.gen_B(); self.gen_F32TW()
        a('s_waitcnt vmcnt(0)'); self.w_regs(); a('s_waitcnt lgkmcnt(0)')
        self.p2_issue(); self.p2_compute()
        if self.o['ts']: self.stamp(); a('s_waitcnt vmcnt(0)'); self.stamp(); self.dump_stamps(8)
        a(end+':'); a('s_endpgm'); self.flush_tail()
        self.kernel_head(names[2]); end = self.label('end')
        self.prologue(end); self.ex_addrs(); a('s_waitcnt lgkmcnt(0)'); self.p3_issue()
        self.p3_addrs(); self.p3_soff(); self.gen_F16(); self.gen_M3()
        self.p3_compute()
        if self.o['ts']: self.stamp(); a('s_waitcnt vmcnt(0)'); self.stamp(); self.dump_stamps(16)
        a(end+':'); a('s_endpgm'); self.flush_tail()
        launch = ''.join('; @launch kernel=%s grid=(256,1,1) block=(512,1,1) lds=%d\n' % (n, LDS_TOTAL) for n in names)
        return self.finish(launch, names)

    def finish(self, launch, names):
        hdr = '; GFNet spectral filter (two heads): 2-D FFT via bf16 MFMA DFT stages. Generated by dev/gen.py\n' + launch
        s = hdr + '.amdgcn_target "amdgcn-amd-amdhsa--gfx950"\n.text\n' + self.a.text()
        s += '.section .rodata,"a"\n' + '\n'.join(self.kd(n) for n in names) + '\n' + self.spec_table() + '\n'
        return s

if __name__ == '__main__':
    mode = sys.argv[1]; out = sys.argv[2]
    opt = {}
    for kv in sys.argv[3:]:
        k, x = kv.split('=')
        opt[k] = {'True': True, 'False': False}.get(x, x.replace('+', ' '))
    g = Gen(mode, **opt)
    s = g.build_three() if mode == 'three' else g.build_one()
    open(out, 'w').write(s)
    print('vgprs', NVGPR, 'lds', LDS_TOTAL, 'nops', g.a.nops, 'lines', len(g.a.ins))
```

```python
import sys, struct, math
import numpy as np
from asmlib import Asm

NAME = 'concat_heads__spectral_gfnet__spectral_gfnet__prompt'

def f2u(x): return struct.unpack('<I', struct.pack('<f', x))[0]
def lit(x): return '0x%08x' % f2u(x)
def bf16bits(x):
    u = f2u(float(x)); return ((u + 0x7FFF + ((u >> 16) & 1)) >> 16) & 0xFFFF
def sigma(m): return (m & 1) | ((m >> 1) & 1) << 3 | ((m >> 2) & 1) << 1 | ((m >> 3) & 1) << 2 | (m & 16)

S11 = 2.0**-11
SPIN_MAX = 0x4000
R0 = 0
R1 = 33024
WL = 66048
SCR = WL + 8*4*1056
SCR_B = SCR + 36*256
LDS_TOTAL = SCR_B + 8192
WS_U1 = 0
WS_U2 = 8 << 20
WS_FLAG = 16 << 20
WS_TS = 17 << 20
WS_SIZE = 18 << 20

class V: pass
_n = [0]
def alloc(n, align=1):
    b = (_n[0] + align - 1)//align*align
    _n[0] = b + n
    return b
V.tid = alloc(1); V.lane = alloc(1)
for nm in 'g n Xoff Est Eld X0w X0r0 X0r1 X1w X1r X2w X2r WP WM flag l16 dummy'.split(): setattr(V, nm, alloc(1))
V.Ooff, V.X3w0, V.X3w1, V.X3r = V.Xoff, V.X0w, V.X0r0, V.X0r1
V.T = alloc(10, 2)
V.O = alloc(16, 4)
V.DA = alloc(32, 4)
V.DB = alloc(32, 4)
V.L = V.DB
V.F16 = alloc(8, 4)
V.M2 = alloc(16, 4)
V.F32 = alloc(32, 4)
V.TW = alloc(32, 4)
V.W = alloc(32, 4)
V.B = alloc(12, 4)
V.Bp = alloc(8, 4)
NVGPR = _n[0]
assert NVGPR <= 256, NVGPR
def v(i): return 'v%d' % i
def vr(i, n): return 'v[%d:%d]' % (i, i+n-1)

SX, SWR, SWI, SOUT, SDBG, SWS = 's[4:7]', 's[8:11]', 's[12:15]', 's[16:19]', 's[20:23]', 's[24:27]'
sP, sT, sW, sSB, sCB, sK0 = 's30', 's31', 's32', 's33', 's34', 's35'
sKP, sKM = 's36', 's37'
sA, sB, sC, sD, sE, sF = 's40', 's41', 's42', 's43', 's44', 's45'
sEst, sEld, sCnt, sSpec = 's46', 's47', 's48', 's49'
sO = ['s52', 's53', 's54', 's55']
sTS = 56

class Gen:
    def __init__(self, mode='one', **opt):
        self.mode = mode
        self.o = dict(ldx='nt', ldw='nt', st1='sc1', st2='sc1', sto='sc1', ld1='sc1', ld2='sc1', ts=False, stagger=True, pf=True)
        self.o.update(opt)
        self.a = Asm()
        self.lab = 0
        self.nts = 0
        self.tail = []

    def label(self, p='L'):
        self.lab += 1
        return '%s_%d' % (p, self.lab)

    def stamp(self):
        if not self.o['ts']: return
        self.a('s_memrealtime s[%d:%d]' % (sTS+2*self.nts, sTS+2*self.nts+1))
        self.nts += 1

    def dump_stamps(self, slot0=0):
        if not self.o['ts']: return
        a = self.a
        a('s_waitcnt lgkmcnt(0)')
        a('s_lshl_b32 %s, s2, 3' % sA); a('s_add_u32 %s, %s, %s' % (sA, sA, sW)); a('s_lshl_b32 %s, %s, 7' % (sA, sA))
        a('s_add_u32 %s, %s, 0x%x' % (sA, sA, WS_TS + slot0*4))
        a('s_mov_b64 exec, 1')
        a('v_mov_b32 %s, 0' % v(V.T+1))
        for i in range(self.nts):
            a('v_mov_b32 %s, s%d' % (v(V.T), sTS+2*i))
            a('buffer_store_dword %s, %s, %s, %s offen offset:%d' % (v(V.T), v(V.T+1), SWS, sA, 4*i))
            a('s_nop 1')
        a('s_mov_b64 exec, -1')
        self.nts = 0

    def prologue(self, end):
        a = self.a
        a('s_cmp_ge_u32 s2, 0x100')
        a('s_cbranch_scc1 %s' % end)
        self.stamp()
        a('s_bfe_u32 %s, s2, 0x10003' % sP)
        a('s_mul_i32 s3, %s, 24' % sP)
        a('s_add_u32 s28, s0, s3')
        a('s_addc_u32 s29, s1, 0')
        a('s_load_dwordx2 s[4:5], s[28:29], 0x0')
        a('s_load_dwordx2 s[8:9], s[28:29], 0x8')
        a('s_load_dwordx2 s[12:13], s[28:29], 0x10')
        a('s_load_dwordx2 s[16:17], s[0:1], 0x30')
        a('s_load_dwordx2 s[20:21], s[0:1], 0x38')
        a('s_load_dwordx2 s[24:25], s[0:1], 0x40')
        a('v_lshrrev_b32 %s, 6, v0' % v(V.T))
        a('v_and_b32 %s, 63, v0' % v(V.lane))
        a('v_readfirstlane_b32 %s, %s' % (sW, v(V.T)))
        a('s_and_b32 %s, s2, 7' % sA)
        a('s_lshl_b32 %s, %s, 4' % (sT, sA))
        a('s_lshr_b32 %s, s2, 4' % sB)
        a('s_or_b32 %s, %s, %s' % (sT, sT, sB))
        a('s_lshl_b32 %s, %s, 1' % (sCB, sA))
        a('s_bfe_u32 %s, %s, 0x10001' % (sC, sB))
        a('s_or_b32 %s, %s, %s' % (sCB, sCB, sC))
        a('s_bfe_u32 %s, %s, 0x20002' % (sSB, sB))
        a('s_lshl_b32 %s, %s, 1' % (sSB, sSB))
        a('s_and_b32 %s, %s, 1' % (sC, sB))
        a('s_or_b32 %s, %s, %s' % (sSB, sSB, sC))
        a('s_mov_b32 s6, 0x400000'); a('s_mov_b32 s7, 0x20000')
        a('s_mov_b32 s10, 2101248'); a('s_mov_b32 s11, 0x20000')
        a('s_mov_b32 s14, 2101248'); a('s_mov_b32 s15, 0x20000')
        a('s_mov_b32 s18, 0x800000'); a('s_mov_b32 s19, 0x20000')
        a('s_mov_b32 s22, 256'); a('s_mov_b32 s23, 0x20000')
        a('s_mov_b32 s26, 0x%x' % WS_SIZE); a('s_mov_b32 s27, 0x20000')
        a('v_lshrrev_b32 %s, 4, %s' % (v(V.g), v(V.lane)))
        a('v_and_b32 %s, 15, %s' % (v(V.n), v(V.lane)))
        a('v_lshlrev_b32 %s, 4, %s' % (v(V.l16), v(V.lane)))

    def ex_addrs(self):
        a = self.a
        a('v_lshlrev_b32 %s, 4, %s' % (v(V.T), v(V.n)))
        a('v_lshl_add_u32 %s, %s, 17, %s' % (v(V.Est), v(V.g), v(V.T)))
        a('v_lshl_add_u32 %s, %s, 10, %s' % (v(V.Eld), v(V.g), v(V.T)))
        a('s_lshl_b32 %s, %s, 22' % (sA, sP))
        a('s_lshl_b32 %s, %s, 19' % (sEst, sW)); a('s_add_u32 %s, %s, %s' % (sEst, sEst, sA))
        a('s_lshl_b32 %s, %s, 8' % (sB, sT)); a('s_add_u32 %s, %s, %s' % (sEst, sEst, sB))
        a('s_lshl_b32 %s, %s, 15' % (sEld, sT)); a('s_add_u32 %s, %s, %s' % (sEld, sEld, sA))
        a('s_lshl_b32 %s, %s, 12' % (sB, sW)); a('s_add_u32 %s, %s, %s' % (sEld, sEld, sB))

    def trig(self, x, re, im, conj_re=None, conj_im=None):
        a = self.a; c, s = V.T+8, V.T+9
        a('v_cos_f32 %s, %s' % (v(c), v(x)))
        a('v_sin_f32 %s, %s' % (v(s), v(x)))
        a('v_cvt_pk_bf16_f32 %s, %s, %s' % (v(re), v(c), v(s)))
        a('v_cvt_pk_bf16_f32 %s, -%s, %s' % (v(im), v(s), v(c)))
        if conj_re is not None:
            a('v_cvt_pk_bf16_f32 %s, %s, -%s' % (v(conj_re), v(c), v(s)))
            a('v_cvt_pk_bf16_f32 %s, %s, %s' % (v(conj_im), v(s), v(c)))

    def gen_F16(self):
        a = self.a; T = V.T
        a('v_cvt_f32_u32 %s, %s' % (v(T), v(V.n)))
        a('v_mul_f32 %s, %s, %s' % (v(T), lit(1/16), v(T)))
        a('v_cvt_f32_u32 %s, %s' % (v(T+1), v(V.g)))
        a('v_mul_f32 %s, 4.0, %s' % (v(T+1), v(T+1)))
        a('v_mul_f32 %s, %s, %s' % (v(T+2), v(T), v(T+1)))
        for r in range(4):
            self.trig(T+2, V.F16+r, V.F16+4+r)
            if r < 3: a('v_add_f32 %s, %s, %s' % (v(T+2), v(T+2), v(T)))

    def gen_M2(self):
        a = self.a; T = V.T
        l0, l1 = self.label('M2w0'), self.label('M2end')
        a('v_cvt_f32_u32 %s, %s' % (v(T+1), v(V.g)))
        a('v_mul_f32 %s, 4.0, %s' % (v(T+1), v(T+1)))
        a('s_cmp_eq_u32 %s, 0' % sW)
        a('s_cbranch_scc1 %s' % l0)
        a('v_lshl_add_u32 %s, %s, 4, %s' % (v(T), v(V.n), sW))
        a('v_cvt_f32_u32 %s, %s' % (v(T), v(T)))
        a('v_mul_f32 %s, %s, %s' % (v(T), lit(1/256), v(T)))
        a('v_mul_f32 %s, %s, %s' % (v(T+2), v(T), v(T+1)))
        for r in range(4):
            self.trig(T+2, V.M2+r, V.M2+4+r, V.M2+8+r, V.M2+12+r)
            if r < 3: a('v_add_f32 %s, %s, %s' % (v(T+2), v(T+2), v(T)))
        a(l1+':')
        def tail():
            a(l0+':')
            for ts in range(2):
                a('v_lshrrev_b32 %s, 1, %s' % (v(T), v(V.n)))
                a('v_lshlrev_b32 %s, 4, %s' % (v(T), v(T)))
                if ts: a('v_add_u32 %s, 8, %s' % (v(T), v(T)))
                else:
                    a('v_mov_b32 %s, 0x80' % v(T+3))
                    a('v_cmp_eq_u32 vcc, 1, %s' % v(V.n))
                    a('v_cndmask_b32 %s, %s, %s, vcc' % (v(T), v(T), v(T+3)))
                a('v_cvt_f32_u32 %s, %s' % (v(T), v(T)))
                a('v_mul_f32 %s, %s, %s' % (v(T), lit(1/256), v(T)))
                a('v_lshlrev_b32 %s, 31, %s' % (v(T+3), v(V.n)))
                a('v_xor_b32 %s, %s, %s' % (v(T), v(T), v(T+3)))
                a('v_mul_f32 %s, %s, %s' % (v(T+2), v(T), v(T+1)))
                for r in range(4):
                    self.trig(T+2, V.M2+8*ts+r, V.M2+8*ts+4+r)
                    if r < 3: a('v_add_f32 %s, %s, %s' % (v(T+2), v(T+2), v(T)))
            a('s_branch %s' % l1)
        self.tail.append(tail)

    def gen_M3(self):
        a = self.a; T = V.T
        l0, l1 = self.label('M3w0'), self.label('M3end')
        a('v_cvt_f32_u32 %s, %s' % (v(T), v(V.n)))
        a('v_mul_f32 %s, %s, %s' % (v(T+1), lit(1/256), v(T)))
        a('v_mul_f32 %s, %s, %s' % (v(T), lit(1/16), v(T)))
        a('s_cmp_eq_u32 %s, 0' % sW)
        a('s_cbranch_scc1 %s' % l0)
        a('v_lshl_add_u32 %s, %s, 6, %s' % (v(T+2), v(V.g), sW))
        a('v_cvt_f32_u32 %s, %s' % (v(T+2), v(T+2)))
        a('v_mul_f32 %s, %s, %s' % (v(T+2), v(T+2), v(T+1)))
        for r in range(4):
            self.trig(T+2, V.M2+r, V.M2+4+r, V.M2+8+r, V.M2+12+r)
            if r < 3: a('v_add_f32 %s, %s, %s' % (v(T+2), v(T+2), v(T)))
        a(l1+':')
        def tail():
            a(l0+':')
            for ts in range(2):
                a('v_lshlrev_b32 %s, 5, %s' % (v(T+2), v(V.g)))
                if ts: a('v_add_u32 %s, 8, %s' % (v(T+2), v(T+2)))
                a('v_cvt_f32_u32 %s, %s' % (v(T+2), v(T+2)))
                a('v_mul_f32 %s, %s, %s' % (v(T+2), v(T+2), v(T+1)))
                for eb in range(2):
                    b = V.M2+8*ts
                    self.trig(T+2, b+2*eb, b+4+2*eb, b+2*eb+1, b+4+2*eb+1)
                    if eb == 0: a('v_add_f32 %s, %s, %s' % (v(T+2), v(T+2), v(T)))
            a('s_mov_b64 exec, 0xffff')
            a('v_lshlrev_b32 %s, 15, %s' % (v(T+2), v(V.n)))
            a('v_and_b32 %s, 0x8000, %s' % (v(T+2), v(T+2)))
            a('v_or_b32 %s, 0x3f80, %s' % (v(V.M2+1), v(T+2)))
            a('v_lshlrev_b32 %s, 16, %s' % (v(V.M2+5), v(V.M2+1)))
            a('s_mov_b64 exec, -1')
            a('s_branch %s' % l1)
        self.tail.append(tail)

    def sigma_lane(self, dst):
        a = self.a; T = V.T
        a('v_and_b32 %s, 17, %s' % (v(dst), v(V.lane)))
        a('v_bfe_u32 %s, %s, 2, 2' % (v(T+7), v(V.lane)))
        a('v_lshl_add_u32 %s, %s, 1, %s' % (v(dst), v(T+7), v(dst)))
        a('v_bfe_u32 %s, %s, 1, 1' % (v(T+7), v(V.lane)))
        a('v_lshl_add_u32 %s, %s, 3, %s' % (v(dst), v(T+7), v(dst)))

    def gen_F32TW(self):
        a = self.a; T = V.T
        self.sigma_lane(T)
        a('v_cvt_f32_u32 %s, %s' % (v(T), v(T)))
        a('v_mul_f32 %s, %s, %s' % (v(T), lit(1/1024), v(T)))
        a('v_lshrrev_b32 %s, 5, %s' % (v(T+1), v(V.lane)))
        a('v_cvt_f32_u32 %s, %s' % (v(T+1), v(T+1)))
        a('v_add_f32 %s, %s, %s' % (v(T+1), v(T+1), v(T+1)))
        a('v_mul_f32 %s, %s, %s' % (v(T+1), v(T+1), v(T)))
        for rho in range(16):
            k = sigma(8*(rho >> 2) + (rho & 3))
            a('v_fmamk_f32 %s, %s, %s, %s' % (v(T+2), v(T), lit(float(k)), v(T+1)))
            a('v_mul_f32 %s, %s, %s' % (v(T+3), lit(32.0), v(T+2)))
            a('v_cos_f32 %s, %s' % (v(V.TW+rho), v(T+2)))
            a('v_sin_f32 %s, %s' % (v(V.TW+16+rho), v(T+2)))
            self.trig(T+3, V.F32+rho, V.F32+16+rho)

    def calc_k0(self):
        a = self.a
        a('s_lshr_b32 %s, %s, 4' % (sA, sT))
        a('s_and_b32 %s, %s, 15' % (sB, sT))
        a('s_lshl_b32 %s, %s, 4' % (sK0, sB))
        a('s_add_u32 %s, %s, %s' % (sK0, sK0, sA))
        a('s_lshr_b32 %s, %s, 2' % (sC, sB)); a('s_lshl_b32 %s, %s, 5' % (sC, sC))
        a('s_and_b32 %s, %s, 1' % (sD, sB)); a('s_lshl_b32 %s, %s, 4' % (sD, sD)); a('s_add_u32 %s, %s, %s' % (sC, sC, sD))
        a('s_and_b32 %s, %s, 2' % (sD, sB)); a('s_lshl_b32 %s, %s, 2' % (sD, sD)); a('s_add_u32 %s, %s, %s' % (sC, sC, sD))
        a('s_cmp_eq_u32 %s, 0' % sA)
        a('s_cselect_b32 %s, %s, %s' % (sK0, sC, sK0))
        a('s_cmp_eq_u32 %s, 0' % sT)
        a('s_cselect_b32 %s, 7, 8' % sA)
        a('s_lshl_b32 %s, %s, %s' % (sKP, sW, sA))
        a('s_add_u32 %s, %s, %s' % (sKP, sKP, sK0))
        a('s_sub_u32 %s, 0x800, %s' % (sKM, sKP))
        a('s_cmp_eq_u32 %s, 0' % sKP)
        a('s_cselect_b32 %s, 0x400, %s' % (sKM, sKM))
        a('s_cselect_b32 %s, 1, 0' % sSpec)
        a('s_mul_i32 %s, %s, 1026' % (sKP, sKP))
        a('s_mul_i32 %s, %s, 1026' % (sKM, sKM))

    def w_dma(self):
        a = self.a
        md = self.o['ldw']
        a('s_mul_i32 %s, %s, 4224' % (sA, sW))
        a('s_add_u32 %s, %s, %d' % (sA, sA, WL))
        a('s_and_b32 %s, %s, -16' % (sB, sKP))
        a('s_and_b32 %s, %s, -16' % (sC, sKM))
        rows = [(SWR, sB), (SWI, sB), (SWR, sC), (SWI, sC)]
        for i, (srd, so) in enumerate(rows):
            a('s_add_u32 m0, %s, %d' % (sA, 1056*i))
            a('buffer_load_dwordx4 %s, %s, %s offen %s lds' % (v(V.l16), srd, so, md))
        a('s_mov_b64 exec, 1')
        for i, (srd, so) in enumerate(rows):
            a('s_add_u32 m0, %s, %d' % (sA, 1056*i))
            a('buffer_load_dwordx4 %s, %s, %s offen offset:1024 %s lds' % (v(V.l16), srd, so, md))
        a('s_mov_b64 exec, -1')

    def w_regs(self):
        a = self.a; T = V.T
        self.sigma_lane(T)
        a('v_lshrrev_b32 %s, 5, %s' % (v(T+1), v(V.lane)))
        a('v_lshlrev_b32 %s, 7, %s' % (v(T+1), v(T+1)))
        a('v_lshl_add_u32 %s, %s, 1, %s' % (v(T), v(T), v(T+1)))
        a('s_mul_i32 %s, %s, 4224' % (sA, sW))
        a('s_and_b32 %s, %s, 15' % (sB, sKP)); a('s_add_u32 %s, %s, %s' % (sB, sB, sA)); a('s_add_u32 %s, %s, %d' % (sB, sB, WL))
        a('s_and_b32 %s, %s, 15' % (sC, sKM)); a('s_add_u32 %s, %s, %s' % (sC, sC, sA)); a('s_add_u32 %s, %s, %d' % (sC, sC, WL+2112))
        a('v_add_u32 %s, %s, %s' % (v(V.WP), sB, v(T)))
        a('s_add_u32 %s, %s, %d' % (sD, sC, 1024-832))
        a('v_sub_u32 %s, %s, %s' % (v(V.WM), sD, v(T)))
        def q(rho): return (rho & 1) + 8*((rho >> 1) & 1) + 4*((rho >> 2) & 1)
        for rho in range(8):
            a('ds_read_u16_d16_hi %s, %s offset:%d' % (v(V.W+rho), v(V.WP), 64*q(rho)))
            a('ds_read_u16_d16_hi %s, %s offset:%d' % (v(V.W+16+rho), v(V.WP), 64*q(rho)+1056))
            if rho == 5: a('s_waitcnt lgkmcnt(6)')
        for rho in range(8, 16):
            a('ds_read_u16_d16_hi %s, %s offset:%d' % (v(V.W+rho), v(V.WM), 64*(13-q(rho))))
            a('ds_read_u16_d16_hi %s, %s offset:%d' % (v(V.W+16+rho), v(V.WM), 64*(13-q(rho))+1056))
        l0, l1 = self.label('Wspec'), self.label('Wend')
        a('s_cmp_eq_u32 %s, 1' % sSpec)
        a('s_cbranch_scc1 %s' % l0)
        a('v_mov_b32 %s, %s' % (v(T+1), sC))
        a('ds_read_u16_d16_hi %s, %s' % (v(T+2), v(T+1)))
        a('ds_read_u16_d16_hi %s, %s offset:1056' % (v(T+3), v(T+1)))
        a('ds_read_u16_d16_hi %s, %s offset:1024' % (v(T+4), v(V.WP)))
        a('ds_read_u16_d16_hi %s, %s offset:2080' % (v(T+5), v(V.WP)))
        a('s_waitcnt lgkmcnt(0)')
        a('s_mov_b64 exec, 1')
        a('v_add_f32 %s, %s, %s' % (v(V.W), v(V.W), v(T+2)))
        a('v_sub_f32 %s, %s, %s' % (v(V.W+16), v(V.W+16), v(T+3)))
        a('v_add_f32 %s, %s, %s' % (v(V.W+8), v(V.W+8), v(T+4)))
        a('v_sub_f32 %s, %s, %s' % (v(V.W+24), v(V.W+24), v(T+5)))
        for r in (0, 16, 8, 24): a('v_mul_f32 %s, 0.5, %s' % (v(V.W+r), v(V.W+r)))
        a('s_mov_b64 exec, -1')
        a(l1+':')
        def tail():
            X = V.DA
            a(l0+':')
            a('v_add_u32 %s, %s, %s' % (v(T+1), sC, v(T)))
            a('s_add_u32 %s, %s, %d' % (sD, sB, 1024-832))
            a('v_sub_u32 %s, %s, %s' % (v(T+2), sD, v(T)))
            a('s_waitcnt lgkmcnt(0)')
            for rho in range(8):
                a('ds_read_u16_d16_hi %s, %s offset:%d' % (v(X+rho), v(T+1), 64*q(rho)))
                a('ds_read_u16_d16_hi %s, %s offset:%d' % (v(X+16+rho), v(T+1), 64*q(rho)+1056))
            for rho in range(8, 16):
                a('ds_read_u16_d16_hi %s, %s offset:%d' % (v(X+rho), v(T+2), 64*(13-q(rho))))
                a('ds_read_u16_d16_hi %s, %s offset:%d' % (v(X+16+rho), v(T+2), 64*(13-q(rho))+1056))
            a('s_waitcnt lgkmcnt(0)')
            a('s_mov_b64 exec, 1')
            for r in (V.W+16, V.W+24, X+16, X+24): a('v_mov_b32 %s, 0' % v(r))
            a('s_mov_b64 exec, -1')
            for i in range(32):
                a('v_add_f32 %s, %s, %s' % (v(T+3), v(V.W+i), v(X+i)))
                if (i & 15) < 8: a('v_sub_f32 %s, %s, %s' % (v(X+i), v(V.W+i), v(X+i)))
                else: a('v_sub_f32 %s, %s, %s' % (v(X+i), v(X+i), v(V.W+i)))
                a('v_mov_b32 %s, %s' % (v(V.W+i), v(T+3)))
            a('v_add_u32 %s, %d, %s' % (v(T+1), SCR_B, v(V.l16)))
            for i in range(8):
                a('ds_write_b128 %s, %s offset:%d' % (v(T+1), vr(X+4*i, 4), 1024*i))
            a('s_waitcnt lgkmcnt(0)')
            a('s_branch %s' % l1)
        self.tail.append(tail)

    def gen_B(self):
        a = self.a; T = V.T
        l0, l1 = self.label('Bspec'), self.label('Bend')
        a('s_cmp_eq_u32 %s, 0' % sT)
        a('s_cbranch_scc1 %s' % l0)
        c, s = T+8, T+9
        a('v_lshrrev_b32 %s, 1, %s' % (v(T), v(V.n)))
        a('v_lshl_add_u32 %s, %s, 8, %s' % (v(T+1), v(T), sK0))
        a('v_cvt_f32_u32 %s, %s' % (v(T+1), v(T+1)))
        a('v_mul_f32 %s, %s, %s' % (v(T+1), lit(1/2048), v(T+1)))
        a('v_cvt_f32_u32 %s, %s' % (v(T+2), v(V.g)))
        a('v_add_f32 %s, %s, %s' % (v(T+2), v(T+2), v(T+2)))
        a('v_and_b32 %s, 1, %s' % (v(T+3), v(V.n)))
        a('v_cvt_f32_u32 %s, %s' % (v(T+3), v(T+3)))
        a('v_mul_f32 %s, %s, %s' % (v(T+4), lit(0.25), v(T+3)))
        a('v_mul_f32 %s, %s, %s' % (v(T+5), v(T+1), v(T+2)))
        for sbb in range(2):
            for half in range(2):
                a('v_%s_f32 %s, %s, %s' % ('sub' if half else 'add', v(T+6), v(T+5), v(T+4)))
                a('v_cos_f32 %s, %s' % (v(c), v(T+6)))
                a('v_sin_f32 %s, %s' % (v(s), v(T+6)))
                a('v_mul_f32 %s, %s, %s' % (v(c), lit(S11), v(c)))
                a('v_mul_f32 %s, %s, %s' % (v(s), lit(S11), v(s)))
                ng = '-' if half else ''
                a('v_cvt_pk_bf16_f32 %s, %s, %s%s' % (v(V.B+2*sbb+half), v(c), ng, v(s)))
                a('v_cvt_pk_bf16_f32 %s, -%s, %s%s' % (v(V.B+6+2*sbb+half), v(s), ng, v(c)))
            if sbb == 0: a('v_add_f32 %s, %s, %s' % (v(T+5), v(T+5), v(T+1)))
        a('v_cvt_f32_u32 %s, %s' % (v(T), v(T)))
        a('v_lshlrev_b32 %s, 31, %s' % (v(T+4), v(V.n)))
        a('v_xor_b32 %s, %s, %s' % (v(T), v(T), v(T+4)))
        a('v_xor_b32 %s, %s, %s' % (v(T+4), lit(S11), v(T+4)))
        a('v_lshl_add_u32 %s, %s, 9, %s' % (v(T+1), v(V.g), sK0))
        a('v_cvt_f32_u32 %s, %s' % (v(T+1), v(T+1)))
        a('v_mul_f32 %s, %s, %s' % (v(T+1), lit(1/2048), v(T+1)))
        a('v_mul_f32 %s, %s, %s' % (v(T+5), v(T+1), v(T)))
        a('v_fmac_f32 %s, 0.5, %s' % (v(T+5), v(T+3)))
        for ii in range(2):
            a('v_cos_f32 %s, %s' % (v(c), v(T+5)))
            a('v_sin_f32 %s, %s' % (v(s), v(T+5)))
            a('v_mul_f32 %s, %s, %s' % (v(T+6), v(T+4), v(c)))
            a('v_mul_f32 %s, %s, %s' % (v(T+7), v(T+4), v(s)))
            a('v_mul_f32 %s, %s, %s' % (v(c), lit(S11), v(c)))
            a('v_mul_f32 %s, %s, %s' % (v(s), lit(S11), v(s)))
            a('v_cvt_pk_bf16_f32 %s, %s, %s' % (v(V.Bp+2*ii), v(c), v(T+7)))
            a('v_cvt_pk_bf16_f32 %s, -%s, %s' % (v(V.Bp+4+2*ii), v(s), v(T+6)))
            a('v_cvt_pk_bf16_f32 %s, -%s, %s' % (v(V.Bp+2*ii+1), v(s), v(T+6)))
            a('v_cvt_pk_bf16_f32 %s, -%s, -%s' % (v(V.Bp+4+2*ii+1), v(c), v(T+7)))
            if ii == 0: a('v_fmac_f32 %s, %s, %s' % (v(T+5), lit(0.125), v(T)))
        a(l1+':')
        a('v_mov_b32 %s, %s' % (v(V.B+4), v(V.B))); a('v_mov_b32 %s, %s' % (v(V.B+5), v(V.B+1)))
        a('v_mov_b32 %s, %s' % (v(V.B+10), v(V.B+6))); a('v_mov_b32 %s, %s' % (v(V.B+11), v(V.B+7)))
        def tail():
            a(l0+':')
            a('s_getpc_b64 s[28:29]')
            a('s_add_u32 s28, s28, spec_tab@rel32@lo+4')
            a('s_addc_u32 s29, s29, spec_tab@rel32@hi+12')
            a('global_load_dwordx4 %s, %s, s[28:29]' % (vr(V.B, 4), v(V.l16)))
            a('global_load_dwordx4 %s, %s, s[28:29] offset:1024' % (vr(V.B+6, 4), v(V.l16)))
            a('global_load_dwordx4 %s, %s, s[28:29] offset:2048' % (vr(V.Bp, 4), v(V.l16)))
            a('global_load_dwordx4 %s, %s, s[28:29] offset:3072' % (vr(V.Bp+4, 4), v(V.l16)))
            a('s_waitcnt vmcnt(0)')
            a('s_branch %s' % l1)
        self.tail.append(tail)

    def spec_table(self):
        tab = np.zeros((4, 64, 4, 2))
        for lane in range(64):
            m, g = lane & 15, lane >> 4
            for r in range(4):
                t, c = m >> 1, m & 1; sb, hf = 2*g + (r >> 1), r & 1
                if hf == (t & 1):
                    th = 2*math.pi*sb*t/16
                    tab[0, lane, r, c] = (2*S11 if t else S11)*math.cos(th)
                    tab[1, lane, r, c] = -2*S11*math.sin(th) if t else S11*(-1.0)**sb
                sb, hf = m >> 1, m & 1; t, c = 2*g + (r >> 1), r & 1
                if hf == (t & 1):
                    th = 2*math.pi*sb*t/16
                    if t: cre, cim = 2*math.cos(th), -2*math.sin(th)
                    else: cre, cim = 1.0, (-1.0)**sb
                    pl = 2 + (1 - c)
                    tab[pl, lane, r, 0] = S11*cim
                    tab[pl, lane, r, 1] = S11*cre
        tab[abs(tab) < 1e-12] = 0
        out = ['.p2align 6', '.type spec_tab,@object', 'spec_tab:']
        w = [bf16bits(tab[p, l, r, 0]) | bf16bits(tab[p, l, r, 1]) << 16 for p in range(4) for l in range(64) for r in range(4)]
        for i in range(0, len(w), 8):
            out.append('.long ' + ','.join('0x%x' % x for x in w[i:i+8]))
        return '\n'.join(out)

    def p1_load(self):
        a = self.a; T = V.T
        a('v_bfe_u32 %s, %s, 3, 1' % (v(T), v(V.lane)))
        a('v_lshlrev_b32 %s, 14, %s' % (v(T), v(T)))
        a('v_lshl_add_u32 %s, %s, 20, %s' % (v(T), v(V.g), v(T)))
        a('v_and_b32 %s, 0x70, %s' % (v(T+1), v(V.l16)))
        a('v_add_u32 %s, %s, %s' % (v(V.Xoff), v(T), v(T+1)))
        a('s_lshl_b32 %s, %s, 15' % (sO[0], sW))
        a('s_lshl_b32 %s, %s, 11' % (sA, sSB)); a('s_add_u32 %s, %s, %s' % (sO[0], sO[0], sA))
        a('s_lshl_b32 %s, %s, 7' % (sA, sCB)); a('s_add_u32 %s, %s, %s' % (sO[0], sO[0], sA))
        for r in range(1, 4): a('s_add_u32 %s, %s, 0x%x' % (sO[r], sO[0], r*262144))
    def p1_issue(self):
        a = self.a
        for r in range(4):
            a('buffer_load_dwordx4 %s, %s, %s, %s offen %s' % (vr(V.L+4*r, 4), v(V.Xoff), SX, sO[r], self.o['ldx']))
    def p1_addrs(self):
        a = self.a; T = V.T
        a('v_xor_b32 %s, %s, %s' % (v(T), sSB, v(V.lane)))
        a('v_and_b32 %s, 1, %s' % (v(T), v(T)))
        a('v_mul_u32_u24 %s, 16448, %s' % (v(T), v(T)))
        a('v_lshl_add_u32 %s, %s, 12, %s' % (v(T), v(V.g), v(T)))
        a('v_and_b32 %s, 14, %s' % (v(T+1), v(V.lane)))
        a('v_lshl_add_u32 %s, %s, 3, %s' % (v(T), v(T+1), v(T)))
        a('s_lshr_b32 %s, %s, 2' % (sA, sW)); a('s_lshl_b32 %s, %s, 9' % (sA, sA))
        a('s_and_b32 %s, %s, 1' % (sB, sW)); a('s_lshl_b32 %s, %s, 8' % (sB, sB)); a('s_add_u32 %s, %s, %s' % (sA, sA, sB))
        a('s_and_b32 %s, %s, 2' % (sB, sW)); a('s_lshl_b32 %s, %s, 6' % (sB, sB)); a('s_add_u32 %s, %s, %s' % (sA, sA, sB))
        if R0: a('s_add_u32 %s, %s, %d' % (sA, sA, R0))
        a('v_add_u32 %s, %s, %s' % (v(V.X0w), sA, v(T)))
        self.tr_lane(T, 512, 128)
        a('s_lshl_b32 %s, %s, 10' % (sA, sW))
        a('s_sub_u32 %s, 0x4000, %s' % (sB, sA))
        a('s_cmp_eq_u32 %s, 0' % sW)
        a('s_cselect_b32 %s, 0x2000, %s' % (sB, sB))
        if R0: a('s_add_u32 %s, %s, %d' % (sA, sA, R0)); a('s_add_u32 %s, %s, %d' % (sB, sB, R0))
        a('v_add_u32 %s, %s, %s' % (v(V.X0r0), sA, v(T)))
        a('v_add_u32 %s, %s, %s' % (v(V.X0r1), sB, v(T)))
    def tr_lane(self, dst, g1s, g0s, b3s=64):
        a = self.a; t = V.T+7
        sh = lambda x: int(math.log2(x))
        a('v_and_b32 %s, 0x30, %s' % (v(dst), v(V.l16)))
        for bit, st in ((2, 8), (3, b3s), (4, g0s), (5, g1s)):
            a('v_bfe_u32 %s, %s, %d, 1' % (v(t), v(V.lane), bit))
            a('v_lshl_add_u32 %s, %s, %d, %s' % (v(dst), v(t), sh(st), v(dst)))

    def mf16(self, d, A, B):
        self.a('v_mfma_f32_16x16x32_bf16 %s, %s, %s, 0' % (vr(d, 4), vr(A, 4), vr(B, 4)))
    def cvt(self, d, lo, hi):
        self.a('v_cvt_pk_bf16_f32 %s, %s, %s' % (v(d), v(lo), v(hi)))

    def p1_compute(self, nafter, hook=None):
        a = self.a; O, L, D = V.O, V.L, V.DA
        for r in range(4):
            a('s_waitcnt vmcnt(%d)' % (nafter + 3 - r))
            if r == 3: self.stamp()
            for t in range(4):
                a('v_mov_b32 %s, %s' % (v(O+4*t+r), v(L+4*r+t)))
        for t in range(4):
            self.mf16(D+4*t, V.F16, O+4*t)
            self.mf16(D+16+4*t, V.F16+4, O+4*t)
        if hook: hook()
        P = V.DB
        for r in range(4):
            self.cvt(P+4*r, D+r, D+4+r); self.cvt(P+4*r+2, D+16+r, D+20+r)
        for r in range(4):
            self.cvt(P+4*r+1, D+8+r, D+12+r); self.cvt(P+4*r+3, D+24+r, D+28+r)
            a('ds_write_b128 %s, %s offset:%d' % (v(V.X0w), vr(P+4*r, 4), 1024*r))
        a('s_waitcnt lgkmcnt(0)')
        a('s_barrier')
        for sel in range(2):
            for tau in range(2):
                for ii in range(2):
                    a('ds_read_b64_tr_b16 %s, %s offset:%d' % (vr(O+4*(2*sel+tau)+2*ii, 2), v(V.X0r1 if sel else V.X0r0), tau*16448+ii*256))
        for r in range(4): a('s_add_u32 %s, %s, 0x%x' % (sO[r], sEst, WS_U1 + r*32768))
        for ti in range(4):
            a('s_waitcnt lgkmcnt(%d)' % (6-2*ti))
            self.mf16(D+4*ti, V.M2+8*(ti >> 1), O+4*ti)
            self.mf16(D+16+4*ti, V.M2+8*(ti >> 1)+4, O+4*ti)
        l0, l1 = self.label('P1w0'), self.label('P1end')
        a('s_cmp_eq_u32 %s, 0' % sW)
        a('s_cbranch_scc1 %s' % l0)
        st = lambda i: a('buffer_store_dwordx4 %s, %s, %s, %s offen %s' % (vr(P+4*i, 4), v(V.Est), SWS, sO[i], self.o['st1']))
        for i in range(4):
            for tau in range(2): self.cvt(P+4*i+2*tau, D+4*tau+i, D+16+4*tau+i)
        for i in range(4):
            for tau in range(2): self.cvt(P+4*i+2*tau+1, D+4*(2+tau)+i, D+16+4*(2+tau)+i)
            st(i)
        a(l1+':')
        def tail():
            a(l0+':')
            a('s_nop 7')
            for i in range(4):
                ts, eb = i >> 1, i & 1
                for tau in range(2):
                    for sg in range(2):
                        x = 4*(2*ts+tau)+2*eb+sg
                        self.cvt(P+4*i+2*tau+sg, D+x, D+16+x)
                st(i)
            a('s_branch %s' % l1)
        self.tail.append(tail)

    def p2_addrs(self):
        a = self.a; T = V.T
        a('v_lshlrev_b32 %s, 4, %s' % (v(T), v(V.n)))
        a('v_lshl_add_u32 %s, %s, 13, %s' % (v(T), v(V.g), v(T)))
        a('s_lshl_b32 %s, %s, 9' % (sA, sW)); a('s_add_u32 %s, %s, %d' % (sA, sA, R1))
        a('v_add_u32 %s, %s, %s' % (v(V.X1w), sA, v(T)))
        self.tr_lane(T, 256, 64, 128)
        a('s_lshl_b32 %s, %s, 12' % (sA, sW)); a('s_add_u32 %s, %s, %d' % (sA, sA, R1))
        a('v_add_u32 %s, %s, %s' % (v(V.X1r), sA, v(T)))
        a('v_and_b32 %s, 16, %s' % (v(T), v(V.l16)))
        for bit, st in ((1, 16448), (2, 8224)):
            a('v_bfe_u32 %s, %s, %d, 1' % (v(T+1), v(V.lane), bit))
            a('v_mul_u32_u24 %s, %d, %s' % (v(T+1), st, v(T+1)))
            a('v_add_u32 %s, %s, %s' % (v(T), v(T), v(T+1)))
        a('v_bfe_u32 %s, %s, 3, 2' % (v(T+1), v(V.lane)))
        a('v_lshl_add_u32 %s, %s, 11, %s' % (v(T), v(T+1), v(T)))
        a('v_and_b32 %s, 32, %s' % (v(T+1), v(V.lane)))
        a('v_add_u32 %s, %s, %s' % (v(T), v(T), v(T+1)))
        a('s_lshr_b32 %s, %s, 2' % (sA, sW)); a('s_lshl_b32 %s, %s, 9' % (sA, sA))
        a('s_and_b32 %s, %s, 1' % (sB, sW)); a('s_lshl_b32 %s, %s, 8' % (sB, sB)); a('s_add_u32 %s, %s, %s' % (sA, sA, sB))
        a('s_and_b32 %s, %s, 2' % (sB, sW)); a('s_lshl_b32 %s, %s, 6' % (sB, sB)); a('s_add_u32 %s, %s, %s' % (sA, sA, sB))
        if R0: a('s_add_u32 %s, %s, %d' % (sA, sA, R0))
        a('v_add_u32 %s, %s, %s' % (v(V.X2w), sA, v(T)))
        self.tr_lane(T, 512, 128)
        a('s_and_b32 %s, %s, 1' % (sA, sW)); a('s_lshl_b32 %s, %s, 11' % (sA, sA))
        a('s_bfe_u32 %s, %s, 0x10001' % (sB, sW)); a('s_mul_i32 %s, %s, 16448' % (sB, sB)); a('s_add_u32 %s, %s, %s' % (sA, sA, sB))
        a('s_lshr_b32 %s, %s, 2' % (sB, sW)); a('s_lshl_b32 %s, %s, 12' % (sB, sB)); a('s_add_u32 %s, %s, %s' % (sA, sA, sB))
        if R0: a('s_add_u32 %s, %s, %d' % (sA, sA, R0))
        a('v_add_u32 %s, %s, %s' % (v(V.X2r), sA, v(T)))

    def p2_issue(self):
        a = self.a
        a('s_add_u32 %s, %s, 0x%x' % (sA, sEld, WS_U1))
        for q in range(4):
            a('buffer_load_dwordx4 %s, %s, %s, %s offen offset:%d %s' % (vr(V.L+12*(q >> 1)+4*(q & 1), 4), v(V.Eld), SWS, sA, 256*q, self.o['ld1']))

    def mf32(self, d, i, dataA):
        for pl in range(2):
            M = vr(V.F32+16*pl+4*i, 4); X = vr(V.O+4*i, 4)
            A, B = (X, M) if dataA else (M, X)
            D = vr(d+16*pl, 16)
            self.a('v_mfma_f32_32x32x16_bf16 %s, %s, %s, %s' % (D, A, B, D if i else '0'))

    def cmul_stage(self, src, dst, dataA, coef, kind):
        a = self.a; T = V.T
        for i in range(4):
            for r in range(4):
                rho = 4*i+r
                x, y = v(src+rho), v(src+16+rho)
                c, s = v(coef+rho), v(coef+16+rho)
                t0, t1 = v(T+2*r), v(T+2*r+1)
                a('v_mul_f32 %s, %s, %s' % (t0, x, c))
                a('v_mul_f32 %s, %s, %s' % (t1, y, c))
            for r in range(4):
                rho = 4*i+r
                x, y = v(src+rho), v(src+16+rho)
                c, s = v(coef+rho), v(coef+16+rho)
                t0, t1 = v(T+2*r), v(T+2*r+1)
                if kind == 'tw' or rho >= 8:
                    a('v_fmac_f32 %s, %s, %s' % (t0, y, s))
                    a('v_fma_f32 %s, -%s, %s, %s' % (t1, x, s, t1))
                else:
                    a('v_fma_f32 %s, -%s, %s, %s' % (t0, y, s, t0))
                    a('v_fmac_f32 %s, %s, %s' % (t1, x, s))
            for r in range(4):
                if kind == 'tw': self.cvt(V.O+4*i+r, T+2*r, T+2*r+1)
                else: self.cvt(V.O+4*i+r, T+2*r+1, T+2*r)
            self.mf32(dst, i, dataA)

    def p2_compute(self):
        a = self.a; O, L, D, T = V.O, V.L, V.DA, V.T
        for cbb in range(2):
            b = L+12*cbb
            a('s_waitcnt vmcnt(%d)' % (3-2*cbb))
            a('v_mov_b32 %s, %s' % (v(b+8), v(b))); a('v_mov_b32 %s, %s' % (v(b+9), v(b+1)))
            a('s_waitcnt vmcnt(%d)' % (2-2*cbb))
            if cbb: self.stamp()
            for jj2 in (1, 0):
                ti = 2*cbb+jj2
                op = b+2 if jj2 else b+6
                mo = 0 if jj2 else 2
                self.mf16(D+4*ti, V.B+mo, op)
                self.mf16(D+16+4*ti, V.B+6+mo, op)
        for cbb in range(2):
            for k1b in range(2):
                P = O+4*(2*cbb+k1b)
                for pl in range(2):
                    for jj2 in (1, 0):
                        x = D+16*pl+4*(2*cbb+jj2)+2*k1b
                        self.cvt(P+2*pl+jj2, x, x+1)
                a('ds_write_b128 %s, %s offset:%d' % (v(V.X1w), vr(P, 4), k1b*4096+cbb*256))
        a('s_waitcnt lgkmcnt(0)')
        a('s_barrier')
        for i in range(4):
            for ii in range(2):
                a('ds_read_b64_tr_b16 %s, %s offset:%d' % (vr(O+4*i+2*ii, 2), v(V.X1r), ii*1024+(i & 1)*512+(i >> 1)*2048))
        for i in range(4):
            a('s_waitcnt lgkmcnt(%d)' % (6-2*i))
            self.mf32(V.DA, i, True)
        self.cmul_stage(V.DA, V.DB, False, V.TW, 'tw')
        l0, l1 = self.label('PWspec'), self.label('PWend')
        a('s_cmp_eq_u32 %s, 1' % sSpec)
        a('s_cbranch_scc1 %s' % l0)
        self.cmul_stage(V.DB, V.DA, True, V.W, 'w')
        a(l1+':')
        self.cmul_stage(V.DA, V.DB, True, V.TW, 'tw')
        D = V.DB
        rho = lambda jj3, jj1, jj2, c: 4*(2*jj3+jj1)+2*jj2+c
        for c in range(2):
            for jj1 in range(2):
                P = O+4*(2*c+jj1)
                for pl in range(2):
                    for jj3 in range(2):
                        self.cvt(P+2*pl+jj3, D+16*pl+rho(jj3, jj1, 0, c), D+16*pl+rho(jj3, jj1, 1, c))
                a('ds_write_b128 %s, %s offset:%d' % (v(V.X2w), vr(P, 4), c*64+jj1*1024))
        a('s_waitcnt lgkmcnt(0)')
        a('s_barrier')
        for cbb in range(2):
            for jj1 in range(2):
                for ii in range(2):
                    a('ds_read_b64_tr_b16 %s, %s offset:%d' % (vr(O+4*(2*cbb+jj1)+2*ii, 2), v(V.X2r), ii*256+jj1*1024+cbb*8224))
        for r in range(4): a('s_add_u32 %s, %s, 0x%x' % (sO[r], sEst, WS_U2 + r*32768))
        D = V.DA
        for ti in range(4):
            a('s_waitcnt lgkmcnt(%d)' % (6-2*ti))
            self.mf16(D+4*ti, V.Bp, O+4*ti)
            self.mf16(D+16+4*ti, V.Bp+4, O+4*ti)
        P = V.DB
        for q in range(4):
            cbb, sbb = q >> 1, q & 1
            for jj1 in range(2):
                for hf in range(2):
                    x = 4*(2*cbb+jj1)+2*sbb+hf
                    self.cvt(P+4*q+2*jj1+hf, D+x, D+16+x)
            a('buffer_store_dwordx4 %s, %s, %s, %s offen %s' % (vr(P+4*q, 4), v(V.Est), SWS, sO[q], self.o['st2']))
        def tail():
            C = V.DB; X = V.DA
            a(l0+':')
            self.sigma_lane(T)
            a('v_lshrrev_b32 %s, 5, %s' % (v(T+1), v(V.lane)))
            a('v_lshlrev_b32 %s, 9, %s' % (v(T+1), v(T+1)))
            a('v_lshl_add_u32 %s, %s, 2, %s' % (v(T+2), v(T), v(T+1)))
            a('v_add_u32 %s, %d, %s' % (v(T+2), SCR, v(T+2)))
            a('v_add_u32 %s, 128, %s' % (v(T+3), v(T+2)))
            a('v_sub_u32 %s, 32, %s' % (v(T+4), v(T)))
            a('v_lshrrev_b32 %s, 5, %s' % (v(T+5), v(T+4)))
            a('v_and_b32 %s, 31, %s' % (v(T+4), v(T+4)))
            a('v_lshlrev_b32 %s, 2, %s' % (v(T+4), v(T+4)))
            a('v_lshl_add_u32 %s, %s, 8, %s' % (v(T+4), v(T+5), v(T+4)))
            a('v_sub_u32 %s, %s, %s' % (v(T+4), v(T+4), v(T+1)))
            a('v_add_u32 %s, %d, %s' % (v(T+4), SCR + 2*256, v(T+4)))
            a('v_add_u32 %s, 128, %s' % (v(T+5), v(T+4)))
            a('v_add_u32 %s, %d, %s' % (v(T+6), SCR_B, v(V.l16)))
            qs = lambda rho: sigma(8*(rho >> 2) + (rho & 3))
            for pl in range(2):
                for rho in range(0, 16, 2):
                    a('ds_write2st64_b32 %s, %s, %s offset0:%d offset1:%d' % (v(T+2+pl), v(C+16*pl+rho), v(C+16*pl+rho+1), qs(rho), qs(rho+1)))
                a('ds_write_b32 %s, %s offset:%d' % (v(T+2+pl), v(C+16*pl), 32*256))
            a('s_waitcnt lgkmcnt(0)')
            t0, t1 = v(T+8), v(T+9)
            for half in range(2):
                for pl in range(2):
                    for k in range(0, 8, 2):
                        rho_ = 8*half+k
                        a('ds_read2st64_b32 %s, %s offset0:%d offset1:%d' % (vr(X+8*pl+k, 2), v(T+4+pl), 29-qs(rho_), 29-qs(rho_+1)))
                    for k in range(2):
                        a('ds_read_b128 %s, %s offset:%d' % (vr(X+16+8*pl+4*k, 4), v(T+6), 1024*(4*pl+2*half+k)))
                a('s_waitcnt lgkmcnt(0)')
                for k in range(8):
                    rho_ = 8*half+k
                    x, y = v(C+rho_), v(C+16+rho_); ar, ai = v(V.W+rho_), v(V.W+16+rho_)
                    p, q_ = v(X+k), v(X+8+k); br, bi = v(X+16+k), v(X+24+k)
                    ng, ps = ('', '-') if half else ('-', '')
                    a('v_mul_f32 %s, %s, %s' % (t0, x, ar))
                    a('v_mul_f32 %s, %s, %s' % (t1, y, ar))
                    a('v_fma_f32 %s, %s%s, %s, %s' % (t0, ng, y, ai, t0))
                    a('v_fma_f32 %s, %s%s, %s, %s' % (t1, ps, x, ai, t1))
                    a('v_fmac_f32 %s, %s, %s' % (t0, p, br))
                    a('v_fma_f32 %s, -%s, %s, %s' % (t1, q_, br, t1))
                    a('v_fma_f32 %s, %s%s, %s, %s' % (t0, ps, q_, bi, t0))
                    a('v_fma_f32 %s, %s%s, %s, %s' % (t1, ps, p, bi, t1))
                    self.cvt(O+rho_, T+9, T+8)
            for i in range(4): self.mf32(V.DA, i, True)
            a('s_nop 11')
            a('s_branch %s' % l1)
        self.tail.append(tail)

    def p3_addrs(self):
        a = self.a; T = V.T
        a('v_and_b32 %s, 16, %s' % (v(T), v(V.lane)))
        for bit, st in ((0, 32), (3, 4096), (5, 1024)):
            a('v_bfe_u32 %s, %s, %d, 1' % (v(T+1), v(V.lane), bit))
            a('v_lshl_add_u32 %s, %s, %d, %s' % (v(T), v(T+1), int(math.log2(st)), v(T)))
        for bit, st in ((1, 8208), (2, 16448)):
            a('v_bfe_u32 %s, %s, %d, 1' % (v(T+1), v(V.lane), bit))
            a('v_mul_u32_u24 %s, %d, %s' % (v(T+1), st, v(T+1)))
            a('v_add_u32 %s, %s, %s' % (v(T), v(T), v(T+1)))
        a('s_sub_u32 %s, 16, %s' % (sC, sW))
        a('s_cmp_eq_u32 %s, 0' % sW)
        a('s_cselect_b32 %s, 8, %s' % (sC, sC))
        for kl, dst in ((sW, V.X3w0), (sC, V.X3w1)):
            a('s_and_b32 %s, %s, 9' % (sA, kl)); a('s_lshl_b32 %s, %s, 6' % (sA, sA))
            a('s_and_b32 %s, %s, 2' % (sB, kl)); a('s_lshl_b32 %s, %s, 7' % (sB, sB)); a('s_add_u32 %s, %s, %s' % (sA, sA, sB))
            a('s_and_b32 %s, %s, 4' % (sB, kl)); a('s_lshl_b32 %s, %s, 5' % (sB, sB)); a('s_add_u32 %s, %s, %s' % (sA, sA, sB))
            a('s_add_u32 %s, %s, %d' % (sA, sA, R1))
            a('v_add_u32 %s, %s, %s' % (v(dst), sA, v(T)))
        self.tr_lane(T, 512, 128)
        a('s_and_b32 %s, %s, 1' % (sA, sW)); a('s_mul_i32 %s, %s, 8208' % (sA, sA))
        a('s_bfe_u32 %s, %s, 0x10001' % (sB, sW)); a('s_mul_i32 %s, %s, 16448' % (sB, sB)); a('s_add_u32 %s, %s, %s' % (sA, sA, sB))
        a('s_lshr_b32 %s, %s, 2' % (sB, sW)); a('s_lshl_b32 %s, %s, 12' % (sB, sB)); a('s_add_u32 %s, %s, %s' % (sA, sA, sB))
        a('s_add_u32 %s, %s, %d' % (sA, sA, R1))
        a('v_add_u32 %s, %s, %s' % (v(V.X3r), sA, v(T)))
        a('v_bfe_u32 %s, %s, 3, 1' % (v(T), v(V.lane)))
        a('v_lshlrev_b32 %s, 15, %s' % (v(T), v(T)))
        a('v_lshl_add_u32 %s, %s, 21, %s' % (v(T), v(V.g), v(T)))
        a('v_and_b32 %s, 0x70, %s' % (v(T+1), v(V.l16)))
        a('v_add_u32 %s, %s, %s' % (v(V.Ooff), v(T), v(T+1)))
    def p3_soff(self):
        a = self.a
        a('s_lshl_b32 %s, %s, 16' % (sO[0], sW))
        a('s_lshl_b32 %s, %s, 12' % (sA, sSB)); a('s_add_u32 %s, %s, %s' % (sO[0], sO[0], sA))
        a('s_lshl_b32 %s, %s, 7' % (sA, sCB)); a('s_add_u32 %s, %s, %s' % (sO[0], sO[0], sA))
        a('s_lshl_b32 %s, %s, 11' % (sA, sP)); a('s_add_u32 %s, %s, %s' % (sO[0], sO[0], sA))
        for r in range(1, 4): a('s_add_u32 %s, %s, 0x%x' % (sO[r], sO[0], r*524288))
    def p3_issue(self):
        a = self.a
        a('s_add_u32 %s, %s, 0x%x' % (sA, sEld, WS_U2))
        for q in range(4):
            a('buffer_load_dwordx4 %s, %s, %s, %s offen offset:%d %s' % (vr(V.L+4*q, 4), v(V.Eld), SWS, sA, 256*q, self.o['ld2']))
    def p3_compute(self):
        a = self.a; O, L, D = V.O, V.L, V.DA
        l0, l1 = self.label('P3w0'), self.label('P3m')
        a('s_cmp_eq_u32 %s, 0' % sW)
        a('s_cbranch_scc1 %s' % l0)
        for i in range(4):
            a('s_waitcnt vmcnt(%d)' % (3-i))
            for sel in range(2):
                for col in range(2):
                    a('v_mov_b32 %s, %s' % (v(O+4*(2*sel+col)+i), v(L+4*i+2*col+sel)))
        a(l1+':')
        self.stamp()
        def tail():
            a(l0+':')
            for i in range(4):
                ts, eb = i >> 1, i & 1
                a('s_waitcnt vmcnt(%d)' % (3-i))
                for col in range(2):
                    for sg in range(2):
                        a('v_mov_b32 %s, %s' % (v(O+4*(2*ts+col)+2*eb+sg), v(L+4*i+2*col+sg)))
            a('s_nop 1')
            a('s_branch %s' % l1)
        self.tail.append(tail)
        for ti in range(4):
            self.mf16(D+4*ti, O+4*ti, V.M2+8*(ti >> 1))
            self.mf16(D+16+4*ti, O+4*ti, V.M2+8*(ti >> 1)+4)
        P = V.DB
        for ti in range(4):
            for pl in range(2):
                for k in range(2):
                    x = D+16*pl+4*ti+2*k
                    self.cvt(P+4*ti+2*pl+k, x, x+1)
            a('ds_write_b128 %s, %s offset:%d' % (v(V.X3w1 if ti >> 1 else V.X3w0), vr(P+4*ti, 4), (ti & 1)*2048))
        a('s_waitcnt lgkmcnt(0)')
        a('s_barrier')
        for t in range(4):
            for ii in range(2):
                a('ds_read_b64_tr_b16 %s, %s offset:%d' % (vr(O+4*t+2*ii, 2), v(V.X3r), ii*256+t*1024))
        for t in range(4):
            a('s_waitcnt lgkmcnt(%d)' % (6-2*t))
            self.mf16(D+4*t, V.F16, O+4*t)
            self.mf16(D+16+4*t, V.F16+4, O+4*t)
        for t in range(3):
            for r in range(4): self.cvt(P+4*r+t, D+16+4*t+r, D+4*t+r)
        for r in range(4):
            self.cvt(P+4*r+3, D+16+12+r, D+12+r)
            a('buffer_store_dwordx4 %s, %s, %s, %s offen %s' % (vr(P+4*r, 4), v(V.Ooff), SOUT, sO[r], self.o['sto']))

    def flush_tail(self):
        t, self.tail = self.tail, []
        for f in t: f()

    def kernel_head(self, name):
        self.a.raw('.globl %s\n.p2align 8\n.type %s,@function\n%s:' % (name, name, name))
    def kd(self, name):
        return '''.p2align 6
.amdhsa_kernel %s
  .amdhsa_next_free_vgpr %d
  .amdhsa_next_free_sgpr 96
  .amdhsa_accum_offset %d
  .amdhsa_group_segment_fixed_size 0
  .amdhsa_kernarg_size 72
  .amdhsa_user_sgpr_count 2
  .amdhsa_user_sgpr_kernarg_segment_ptr 1
  .amdhsa_system_sgpr_workgroup_id_x 1
.end_amdhsa_kernel''' % (name, NVGPR, (NVGPR+3)//4*4)

    def build_three(self):
        a = self.a
        names = ['gf_p1_kernel', 'gf_p2_kernel', 'gf_p3_kernel']
        self.kernel_head(names[0]); end = self.label('end')
        self.prologue(end); self.p1_load(); a('s_waitcnt lgkmcnt(0)'); self.p1_issue()
        self.ex_addrs(); self.p1_addrs(); self.gen_F16(); self.gen_M2()
        self.p1_compute(0)
        if self.o['ts']: self.stamp(); a('s_waitcnt vmcnt(0)'); self.stamp(); self.dump_stamps(0)
        a(end+':'); a('s_endpgm'); self.flush_tail()
        self.kernel_head(names[1]); end = self.label('end')
        self.prologue(end); self.ex_addrs(); self.calc_k0(); a('s_waitcnt lgkmcnt(0)')
        self.w_dma(); self.p2_addrs(); self.gen_B(); self.gen_F32TW()
        a('s_waitcnt vmcnt(0)'); self.w_regs(); a('s_waitcnt lgkmcnt(0)')
        self.p2_issue(); self.p2_compute()
        if self.o['ts']: self.stamp(); a('s_waitcnt vmcnt(0)'); self.stamp(); self.dump_stamps(8)
        a(end+':'); a('s_endpgm'); self.flush_tail()
        self.kernel_head(names[2]); end = self.label('end')
        self.prologue(end); self.ex_addrs(); a('s_waitcnt lgkmcnt(0)'); self.p3_issue()
        self.p3_addrs(); self.p3_soff(); self.gen_F16(); self.gen_M3()
        self.p3_compute()
        if self.o['ts']: self.stamp(); a('s_waitcnt vmcnt(0)'); self.stamp(); self.dump_stamps(16)
        a(end+':'); a('s_endpgm'); self.flush_tail()
        launch = ''.join('; @launch kernel=%s grid=(256,1,1) block=(512,1,1) lds=%d\n' % (n, LDS_TOTAL) for n in names)
        return self.finish(launch, names)

    def flag_addrs(self):
        a = self.a
        a('s_lshl_b32 %s, %s, 13' % (sA, sP)); a('s_add_u32 %s, %s, 0x%x' % (sA, sA, WS_FLAG))
        a('s_lshr_b32 %s, %s, 4' % (sB, sT))
        a('s_lshl_b32 %s, %s, 10' % (sF, sW)); a('s_add_u32 %s, %s, %s' % (sF, sF, sA))
        a('s_lshl_b32 %s, %s, 7' % (sC, sB)); a('s_add_u32 %s, %s, %s' % (sF, sF, sC))
        a('s_and_b32 %s, %s, 15' % (sC, sT)); a('s_lshl_b32 %s, %s, 2' % (sC, sC)); a('s_add_u32 %s, %s, %s' % (sF, sF, sC))
        a('s_lshl_b32 %s, %s, 10' % (sE, sB)); a('s_add_u32 %s, %s, %s' % (sE, sE, sA))
        a('s_lshl_b32 %s, %s, 7' % (sC, sW)); a('s_add_u32 %s, %s, %s' % (sE, sE, sC))
        a('v_lshlrev_b32 %s, 2, %s' % (v(V.flag), v(V.n)))
    def zero_flags(self):
        a = self.a; l = self.label('nz'); T = V.T
        a('s_cmp_lg_u32 %s, 0' % sT)
        a('s_cbranch_scc1 %s' % l)
        a('s_lshl_b32 %s, %s, 13' % (sA, sP)); a('s_add_u32 %s, %s, 0x%x' % (sA, sA, WS_FLAG))
        a('s_lshl_b32 %s, %s, 10' % (sB, sW)); a('s_add_u32 %s, %s, %s' % (sA, sA, sB))
        for i in range(4): a('v_mov_b32 %s, 0' % v(V.O+i))
        a('buffer_store_dwordx4 %s, %s, %s, %s offen sc1' % (vr(V.O, 4), v(V.l16), SWS, sA))
        a(l+':')
    def set_ready(self, nafter):
        a = self.a; l = self.label('nr'); T = V.T
        a('s_cmp_lg_u32 %s, 0' % sT)
        a('s_cbranch_scc1 %s' % l)
        a('s_lshl_b32 %s, %s, 7' % (sA, sP)); a('s_lshl_b32 %s, %s, 2' % (sB, sW)); a('s_add_u32 %s, %s, %s' % (sA, sA, sB))
        a('v_mov_b32 %s, 1' % v(V.O+4)); a('v_mov_b32 %s, 0' % v(V.O+5))
        a('s_waitcnt vmcnt(%d)' % nafter)
        a('s_mov_b64 exec, 1')
        a('buffer_store_dword %s, %s, %s, %s offen sc1' % (v(V.O+4), v(V.O+5), SDBG, sA))
        a('s_mov_b64 exec, -1')
        a(l+':')
    def ready_issue(self):
        a = self.a
        a('s_lshl_b32 %s, %s, 7' % (sD, sP))
        a('v_and_b32 %s, 28, %s' % (v(V.O+1), v(V.flag)))
        a('buffer_load_dword %s, %s, %s, %s offen sc1' % (v(V.O), v(V.O+1), SDBG, sD))
    def ready_check(self, end):
        a = self.a; l0, l1 = self.label('rdy'), self.label('rdyok')
        a('v_cmp_eq_u32 vcc, 0, %s' % v(V.O))
        a('s_cbranch_vccnz %s' % l0)
        a(l1+':')
        def tail():
            lp = self.label('rdyl')
            a(l0+':')
            a('s_mov_b32 %s, 0' % sCnt)
            a('s_lshl_b32 %s, %s, 7' % (sD, sP))
            a(lp+':')
            a('buffer_load_dword %s, %s, %s, %s offen sc1' % (v(V.O), v(V.O+1), SDBG, sD))
            a('s_add_u32 %s, %s, 1' % (sCnt, sCnt))
            a('s_cmp_gt_u32 %s, 0x%x' % (sCnt, SPIN_MAX))
            a('s_cbranch_scc1 %s' % l1)
            a('s_waitcnt vmcnt(0)')
            a('v_cmp_eq_u32 vcc, 0, %s' % v(V.O))
            a('s_cbranch_vccnz %s' % lp)
            a('s_branch %s' % l1)
        self.tail.append(tail)
    def set_flag(self, val):
        a = self.a
        a('v_mov_b32 %s, %d' % (v(V.O+2), val)); a('v_mov_b32 %s, 0' % v(V.O+3))
        a('s_mov_b64 exec, 1')
        a('buffer_store_dword %s, %s, %s, %s offen sc1' % (v(V.O+2), v(V.O+3), SWS, sF))
        a('s_mov_b64 exec, -1')
    def poll(self, val):
        a = self.a; lp, ok = self.label('poll'), self.label('pollok')
        a('s_mov_b32 %s, 0' % sCnt)
        a(lp+':')
        a('buffer_load_dword %s, %s, %s, %s offen sc1' % (v(V.O), v(V.flag), SWS, sE))
        a('s_add_u32 %s, %s, 1' % (sCnt, sCnt))
        a('s_cmp_gt_u32 %s, 0x%x' % (sCnt, SPIN_MAX))
        a('s_cbranch_scc1 %s' % ok)
        a('s_waitcnt vmcnt(0)')
        a('v_cmp_gt_u32 vcc, %d, %s' % (val, v(V.O)))
        a('s_cbranch_vccnz %s' % lp)
        a(ok+':')
    def code_pf(self, name):
        a = self.a
        l = self.label('pc')
        a('s_getpc_b64 s[28:29]')
        a(l+':')
        a('s_sub_u32 s28, s28, %s-%s' % (l, name))
        a('s_subb_u32 s29, s29, 0')
        a('v_lshlrev_b32 %s, 5, v0' % v(V.O+6))
        a('global_load_dword %s, %s, s[28:29]' % (v(V.dummy), v(V.O+6)))

    def build_one(self):
        a = self.a; o = self.o
        name = NAME + '_kernel'
        self.kernel_head(name); end = self.label('end')
        self.prologue(end); self.p1_load(); self.calc_k0()
        wpos = o.get('wpos', 'c1')
        if o['stagger']:
            l = self.label('stg')
            a('s_cmp_eq_u32 %s, 0' % sP); a('s_cbranch_scc1 %s' % l)
            self.gen_F32TW()
            a(l+':')
        a('s_waitcnt lgkmcnt(0)')
        self.zero_flags()
        self.p1_issue()
        na = 0
        if o['pf']: self.code_pf(name); na += 1
        if wpos == 'afterx': self.w_dma(); na += 8
        self.set_ready(4+na)
        self.ex_addrs(); self.p1_addrs(); self.flag_addrs(); self.gen_F16(); self.gen_M2()
        if o['stagger']:
            l = self.label('stg')
            a('s_cmp_eq_u32 %s, 1' % sP); a('s_cbranch_scc1 %s' % l)
            self.gen_F32TW()
            a(l+':')
        else: self.gen_F32TW()
        self.p1_compute(na, self.w_dma if wpos == 'c1' else None)
        self.stamp()
        self.ready_issue()
        self.p2_addrs(); self.gen_B()
        a('s_waitcnt vmcnt(0)')
        self.stamp()
        self.ready_check(end)
        self.set_flag(1)
        if wpos != 'afterL1': self.w_regs()
        self.poll(1)
        self.stamp()
        self.p2_issue()
        assert wpos != 'afterL1'
        a('s_waitcnt lgkmcnt(0)')
        self.p2_compute()
        self.stamp()
        self.p3_addrs(); self.gen_M3()
        a('s_waitcnt vmcnt(0)')
        self.stamp()
        self.set_flag(2)
        self.p3_soff()
        self.poll(2)
        self.stamp()
        self.p3_issue()
        self.p3_compute()
        if o['ts']: self.stamp(); a('s_waitcnt vmcnt(0)'); self.stamp(); self.dump_stamps(0)
        a(end+':'); a('s_endpgm'); self.flush_tail()
        a.raw('.fill (%s+16384-.)/4, 4, 0xbf810000' % name)
        launch = '; @launch grid=(256,1,1) block=(512,1,1) lds=%d\n' % LDS_TOTAL
        return self.finish(launch, [name])

    def finish(self, launch, names):
        hdr = '; GFNet spectral filter (two heads): 2-D FFT via bf16 MFMA DFT stages. Generated by dev/gen.py\n' + launch
        s = hdr + '.amdgcn_target "amdgcn-amd-amdhsa--gfx950"\n.text\n' + self.a.text()
        s += '.section .rodata,"a"\n' + '\n'.join(self.kd(n) for n in names) + '\n' + self.spec_table() + '\n'
        return s

if __name__ == '__main__':
    mode = sys.argv[1]; out = sys.argv[2]
    opt = {}
    for kv in sys.argv[3:]:
        k, x = kv.split('=')
        opt[k] = {'True': True, 'False': False}.get(x, x.replace('+', ' '))
    g = Gen(mode, **opt)
    s = g.build_three() if mode == 'three' else g.build_one()
    open(out, 'w').write(s)
    print('vgprs', NVGPR, 'lds', LDS_TOTAL, 'nops', g.a.nops, 'lines', len(g.a.ins))
```

```python
import sys, struct, math
import numpy as np
from asmlib import Asm

NAME = 'concat_heads__spectral_gfnet__spectral_gfnet__prompt'

def f2u(x): return struct.unpack('<I', struct.pack('<f', x))[0]
def lit(x): return '0x%08x' % f2u(x)
def bf16bits(x):
    u = f2u(float(x)); return ((u + 0x7FFF + ((u >> 16) & 1)) >> 16) & 0xFFFF
def sigma(m): return (m & 1) | ((m >> 1) & 1) << 3 | ((m >> 2) & 1) << 1 | ((m >> 3) & 1) << 2 | (m & 16)

S11 = 2.0**-11
SPIN_MAX = 0x4000
R0 = 0
R1 = 33024
WL = 66048
SCR = WL + 8*4*1056
SCR_B = SCR + 36*256
LDS_TOTAL = SCR_B + 8192
WS_U1 = 0
WS_U2 = 8 << 20
WS_FLAG = 16 << 20
WS_TS = 17 << 20
WS_SIZE = 18 << 20

class V: pass
_n = [0]
def alloc(n, align=1):
    b = (_n[0] + align - 1)//align*align
    _n[0] = b + n
    return b
V.tid = alloc(1); V.lane = alloc(1)
for nm in 'g n Xoff Est Eld X0w X0r0 X0r1 X1w X1r X2w X2r WP WM flag l16 dummy'.split(): setattr(V, nm, alloc(1))
V.Ooff, V.X3w0, V.X3w1, V.X3r = V.Xoff, V.X0w, V.X0r0, V.X0r1
V.T = alloc(10, 2)
V.O = alloc(16, 4)
V.DA = alloc(32, 4)
V.DB = alloc(32, 4)
V.L = V.DB
V.F16 = alloc(8, 4)
V.M2 = alloc(16, 4)
V.F32 = alloc(32, 4)
V.TW = alloc(32, 4)
V.W = alloc(32, 4)
V.B = alloc(12, 4)
V.Bp = alloc(8, 4)
NVGPR = _n[0]
assert NVGPR <= 256, NVGPR
def v(i): return 'v%d' % i
def vr(i, n): return 'v[%d:%d]' % (i, i+n-1)

SX, SWR, SWI, SOUT, SDBG, SWS = 's[4:7]', 's[8:11]', 's[12:15]', 's[16:19]', 's[20:23]', 's[24:27]'
sP, sT, sW, sSB, sCB, sK0 = 's30', 's31', 's32', 's33', 's34', 's35'
sKP, sKM = 's36', 's37'
sA, sB, sC, sD, sE, sF = 's40', 's41', 's42', 's43', 's44', 's45'
sEst, sEld, sCnt, sSpec = 's46', 's47', 's48', 's49'
sO = ['s52', 's53', 's54', 's55']
sTS = 56

class Gen:
    def __init__(self, mode='one', **opt):
        self.mode = mode
        self.o = dict(ldx='nt', ldw='nt', st1='sc1', st2='sc1', sto='sc1', ld1='sc1', ld2='sc1', ts=False, stagger=True, pf=True)
        self.o.update(opt)
        self.a = Asm()
        self.lab = 0
        self.nts = 0
        self.tail = []

    def label(self, p='L'):
        self.lab += 1
        return '%s_%d' % (p, self.lab)

    def stamp(self):
        if not self.o['ts']: return
        self.a('s_memrealtime s[%d:%d]' % (sTS+2*self.nts, sTS+2*self.nts+1))
        self.nts += 1

    def dump_stamps(self, slot0=0):
        if not self.o['ts']: return
        a = self.a
        a('s_waitcnt lgkmcnt(0)')
        a('s_lshl_b32 %s, s2, 3' % sA); a('s_add_u32 %s, %s, %s' % (sA, sA, sW)); a('s_lshl_b32 %s, %s, 7' % (sA, sA))
        a('s_add_u32 %s, %s, 0x%x' % (sA, sA, WS_TS + slot0*4))
        a('s_mov_b64 exec, 1')
        a('v_mov_b32 %s, 0' % v(V.T+1))
        for i in range(self.nts):
            a('v_mov_b32 %s, s%d' % (v(V.T), sTS+2*i))
            a('buffer_store_dword %s, %s, %s, %s offen offset:%d' % (v(V.T), v(V.T+1), SWS, sA, 4*i))
            a('s_nop 1')
        a('s_mov_b64 exec, -1')
        self.nts = 0

    def prologue(self, end):
        a = self.a
        a('s_cmp_ge_u32 s2, 0x100')
        a('s_cbranch_scc1 %s' % end)
        self.stamp()
        a('s_bfe_u32 %s, s2, 0x10003' % sP)
        a('s_mul_i32 s3, %s, 24' % sP)
        a('s_add_u32 s28, s0, s3')
        a('s_addc_u32 s29, s1, 0')
        a('s_load_dwordx2 s[4:5], s[28:29], 0x0')
        a('s_load_dwordx2 s[8:9], s[28:29], 0x8')
        a('s_load_dwordx2 s[12:13], s[28:29], 0x10')
        a('s_load_dwordx2 s[16:17], s[0:1], 0x30')
        a('s_load_dwordx2 s[20:21], s[0:1], 0x38')
        a('s_load_dwordx2 s[24:25], s[0:1], 0x40')
        a('v_lshrrev_b32 %s, 6, v0' % v(V.T))
        a('v_and_b32 %s, 63, v0' % v(V.lane))
        a('v_readfirstlane_b32 %s, %s' % (sW, v(V.T)))
        a('s_and_b32 %s, s2, 7' % sA)
        a('s_lshl_b32 %s, %s, 4' % (sT, sA))
        a('s_lshr_b32 %s, s2, 4' % sB)
        a('s_or_b32 %s, %s, %s' % (sT, sT, sB))
        a('s_lshl_b32 %s, %s, 1' % (sCB, sA))
        a('s_bfe_u32 %s, %s, 0x10001' % (sC, sB))
        a('s_or_b32 %s, %s, %s' % (sCB, sCB, sC))
        a('s_bfe_u32 %s, %s, 0x20002' % (sSB, sB))
        a('s_lshl_b32 %s, %s, 1' % (sSB, sSB))
        a('s_and_b32 %s, %s, 1' % (sC, sB))
        a('s_or_b32 %s, %s, %s' % (sSB, sSB, sC))
        a('s_mov_b32 s6, 0x400000'); a('s_mov_b32 s7, 0x20000')
        a('s_mov_b32 s10, 2101248'); a('s_mov_b32 s11, 0x20000')
        a('s_mov_b32 s14, 2101248'); a('s_mov_b32 s15, 0x20000')
        a('s_mov_b32 s18, 0x800000'); a('s_mov_b32 s19, 0x20000')
        a('s_mov_b32 s22, 256'); a('s_mov_b32 s23, 0x20000')
        a('s_mov_b32 s26, 0x%x' % WS_SIZE); a('s_mov_b32 s27, 0x20000')
        a('v_lshrrev_b32 %s, 4, %s' % (v(V.g), v(V.lane)))
        a('v_and_b32 %s, 15, %s' % (v(V.n), v(V.lane)))
        a('v_lshlrev_b32 %s, 4, %s' % (v(V.l16), v(V.lane)))

    def ex_addrs(self):
        a = self.a
        a('v_lshlrev_b32 %s, 4, %s' % (v(V.T), v(V.n)))
        a('v_lshl_add_u32 %s, %s, 17, %s' % (v(V.Est), v(V.g), v(V.T)))
        a('v_lshl_add_u32 %s, %s, 10, %s' % (v(V.Eld), v(V.g), v(V.T)))
        a('s_lshl_b32 %s, %s, 22' % (sA, sP))
        a('s_lshl_b32 %s, %s, 19' % (sEst, sW)); a('s_add_u32 %s, %s, %s' % (sEst, sEst, sA))
        a('s_lshl_b32 %s, %s, 8' % (sB, sT)); a('s_add_u32 %s, %s, %s' % (sEst, sEst, sB))
        a('s_lshl_b32 %s, %s, 15' % (sEld, sT)); a('s_add_u32 %s, %s, %s' % (sEld, sEld, sA))
        a('s_lshl_b32 %s, %s, 12' % (sB, sW)); a('s_add_u32 %s, %s, %s' % (sEld, sEld, sB))

    def trig(self, x, re, im, conj_re=None, conj_im=None):
        a = self.a; c, s = V.T+8, V.T+9
        a('v_cos_f32 %s, %s' % (v(c), v(x)))
        a('v_sin_f32 %s, %s' % (v(s), v(x)))
        a('v_cvt_pk_bf16_f32 %s, %s, %s' % (v(re), v(c), v(s)))
        a('v_cvt_pk_bf16_f32 %s, -%s, %s' % (v(im), v(s), v(c)))
        if conj_re is not None:
            a('v_cvt_pk_bf16_f32 %s, %s, -%s' % (v(conj_re), v(c), v(s)))
            a('v_cvt_pk_bf16_f32 %s, %s, %s' % (v(conj_im), v(s), v(c)))

    def gen_F16(self):
        a = self.a; T = V.T
        a('v_cvt_f32_u32 %s, %s' % (v(T), v(V.n)))
        a('v_mul_f32 %s, %s, %s' % (v(T), lit(1/16), v(T)))
        a('v_cvt_f32_u32 %s, %s' % (v(T+1), v(V.g)))
        a('v_mul_f32 %s, 4.0, %s' % (v(T+1), v(T+1)))
        a('v_mul_f32 %s, %s, %s' % (v(T+2), v(T), v(T+1)))
        for r in range(4):
            self.trig(T+2, V.F16+r, V.F16+4+r)
            if r < 3: a('v_add_f32 %s, %s, %s' % (v(T+2), v(T+2), v(T)))

    def gen_M2(self):
        a = self.a; T = V.T
        l0, l1 = self.label('M2w0'), self.label('M2end')
        a('v_cvt_f32_u32 %s, %s' % (v(T+1), v(V.g)))
        a('v_mul_f32 %s, 4.0, %s' % (v(T+1), v(T+1)))
        a('s_cmp_eq_u32 %s, 0' % sW)
        a('s_cbranch_scc1 %s' % l0)
        a('v_lshl_add_u32 %s, %s, 4, %s' % (v(T), v(V.n), sW))
        a('v_cvt_f32_u32 %s, %s' % (v(T), v(T)))
        a('v_mul_f32 %s, %s, %s' % (v(T), lit(1/256), v(T)))
        a('v_mul_f32 %s, %s, %s' % (v(T+2), v(T), v(T+1)))
        for r in range(4):
            self.trig(T+2, V.M2+r, V.M2+4+r, V.M2+8+r, V.M2+12+r)
            if r < 3: a('v_add_f32 %s, %s, %s' % (v(T+2), v(T+2), v(T)))
        a(l1+':')
        def tail():
            a(l0+':')
            for ts in range(2):
                a('v_lshrrev_b32 %s, 1, %s' % (v(T), v(V.n)))
                a('v_lshlrev_b32 %s, 4, %s' % (v(T), v(T)))
                if ts: a('v_add_u32 %s, 8, %s' % (v(T), v(T)))
                else:
                    a('v_mov_b32 %s, 0x80' % v(T+3))
                    a('v_cmp_eq_u32 vcc, 1, %s' % v(V.n))
                    a('v_cndmask_b32 %s, %s, %s, vcc' % (v(T), v(T), v(T+3)))
                a('v_cvt_f32_u32 %s, %s' % (v(T), v(T)))
                a('v_mul_f32 %s, %s, %s' % (v(T), lit(1/256), v(T)))
                a('v_lshlrev_b32 %s, 31, %s' % (v(T+3), v(V.n)))
                a('v_xor_b32 %s, %s, %s' % (v(T), v(T), v(T+3)))
                a('v_mul_f32 %s, %s, %s' % (v(T+2), v(T), v(T+1)))
                for r in range(4):
                    self.trig(T+2, V.M2+8*ts+r, V.M2+8*ts+4+r)
                    if r < 3: a('v_add_f32 %s, %s, %s' % (v(T+2), v(T+2), v(T)))
            a('s_branch %s' % l1)
        self.tail.append(tail)

    def gen_M3(self):
        a = self.a; T = V.T
        l0, l1 = self.label('M3w0'), self.label('M3end')
        a('v_cvt_f32_u32 %s, %s' % (v(T), v(V.n)))
        a('v_mul_f32 %s, %s, %s' % (v(T+1), lit(1/256), v(T)))
        a('v_mul_f32 %s, %s, %s' % (v(T), lit(1/16), v(T)))
        a('s_cmp_eq_u32 %s, 0' % sW)
        a('s_cbranch_scc1 %s' % l0)
        a('v_lshl_add_u32 %s, %s, 6, %s' % (v(T+2), v(V.g), sW))
        a('v_cvt_f32_u32 %s, %s' % (v(T+2), v(T+2)))
        a('v_mul_f32 %s, %s, %s' % (v(T+2), v(T+2), v(T+1)))
        for r in range(4):
            self.trig(T+2, V.M2+r, V.M2+4+r, V.M2+8+r, V.M2+12+r)
            if r < 3: a('v_add_f32 %s, %s, %s' % (v(T+2), v(T+2), v(T)))
        a(l1+':')
        def tail():
            a(l0+':')
            for ts in range(2):
                a('v_lshlrev_b32 %s, 5, %s' % (v(T+2), v(V.g)))
                if ts: a('v_add_u32 %s, 8, %s' % (v(T+2), v(T+2)))
                a('v_cvt_f32_u32 %s, %s' % (v(T+2), v(T+2)))
                a('v_mul_f32 %s, %s, %s' % (v(T+2), v(T+2), v(T+1)))
                for eb in range(2):
                    b = V.M2+8*ts
                    self.trig(T+2, b+2*eb, b+4+2*eb, b+2*eb+1, b+4+2*eb+1)
                    if eb == 0: a('v_add_f32 %s, %s, %s' % (v(T+2), v(T+2), v(T)))
            a('s_mov_b64 exec, 0xffff')
            a('v_lshlrev_b32 %s, 15, %s' % (v(T+2), v(V.n)))
            a('v_and_b32 %s, 0x8000, %s' % (v(T+2), v(T+2)))
            a('v_or_b32 %s, 0x3f80, %s' % (v(V.M2+1), v(T+2)))
            a('v_lshlrev_b32 %s, 16, %s' % (v(V.M2+5), v(V.M2+1)))
            a('s_mov_b64 exec, -1')
            a('s_branch %s' % l1)
        self.tail.append(tail)

    def sigma_lane(self, dst):
        a = self.a; T = V.T
        a('v_and_b32 %s, 17, %s' % (v(dst), v(V.lane)))
        a('v_bfe_u32 %s, %s, 2, 2' % (v(T+7), v(V.lane)))
        a('v_lshl_add_u32 %s, %s, 1, %s' % (v(dst), v(T+7), v(dst)))
        a('v_bfe_u32 %s, %s, 1, 1' % (v(T+7), v(V.lane)))
        a('v_lshl_add_u32 %s, %s, 3, %s' % (v(dst), v(T+7), v(dst)))

    def gen_F32TW(self):
        a = self.a; T = V.T
        self.sigma_lane(T)
        a('v_cvt_f32_u32 %s, %s' % (v(T), v(T)))
        a('v_mul_f32 %s, %s, %s' % (v(T), lit(1/1024), v(T)))
        a('v_lshrrev_b32 %s, 5, %s' % (v(T+1), v(V.lane)))
        a('v_cvt_f32_u32 %s, %s' % (v(T+1), v(T+1)))
        a('v_add_f32 %s, %s, %s' % (v(T+1), v(T+1), v(T+1)))
        a('v_mul_f32 %s, %s, %s' % (v(T+1), v(T+1), v(T)))
        for rho in range(16):
            k = sigma(8*(rho >> 2) + (rho & 3))
            a('v_fmamk_f32 %s, %s, %s, %s' % (v(T+2), v(T), lit(float(k)), v(T+1)))
            a('v_mul_f32 %s, %s, %s' % (v(T+3), lit(32.0), v(T+2)))
            a('v_cos_f32 %s, %s' % (v(V.TW+rho), v(T+2)))
            a('v_sin_f32 %s, %s' % (v(V.TW+16+rho), v(T+2)))
            self.trig(T+3, V.F32+rho, V.F32+16+rho)

    def calc_k0(self):
        a = self.a
        a('s_lshr_b32 %s, %s, 4' % (sA, sT))
        a('s_and_b32 %s, %s, 15' % (sB, sT))
        a('s_lshl_b32 %s, %s, 4' % (sK0, sB))
        a('s_add_u32 %s, %s, %s' % (sK0, sK0, sA))
        a('s_lshr_b32 %s, %s, 2' % (sC, sB)); a('s_lshl_b32 %s, %s, 5' % (sC, sC))
        a('s_and_b32 %s, %s, 1' % (sD, sB)); a('s_lshl_b32 %s, %s, 4' % (sD, sD)); a('s_add_u32 %s, %s, %s' % (sC, sC, sD))
        a('s_and_b32 %s, %s, 2' % (sD, sB)); a('s_lshl_b32 %s, %s, 2' % (sD, sD)); a('s_add_u32 %s, %s, %s' % (sC, sC, sD))
        a('s_cmp_eq_u32 %s, 0' % sA)
        a('s_cselect_b32 %s, %s, %s' % (sK0, sC, sK0))
        a('s_cmp_eq_u32 %s, 0' % sT)
        a('s_cselect_b32 %s, 7, 8' % sA)
        a('s_lshl_b32 %s, %s, %s' % (sKP, sW, sA))
        a('s_add_u32 %s, %s, %s' % (sKP, sKP, sK0))
        a('s_sub_u32 %s, 0x800, %s' % (sKM, sKP))
        a('s_cmp_eq_u32 %s, 0' % sKP)
        a('s_cselect_b32 %s, 0x400, %s' % (sKM, sKM))
        a('s_cselect_b32 %s, 1, 0' % sSpec)
        a('s_mul_i32 %s, %s, 1026' % (sKP, sKP))
        a('s_mul_i32 %s, %s, 1026' % (sKM, sKM))

    def w_dma(self):
        a = self.a
        md = self.o['ldw']
        a('s_mul_i32 %s, %s, 4224' % (sA, sW))
        a('s_add_u32 %s, %s, %d' % (sA, sA, WL))
        a('s_and_b32 %s, %s, -16' % (sB, sKP))
        a('s_and_b32 %s, %s, -16' % (sC, sKM))
        rows = [(SWR, sB), (SWI, sB), (SWR, sC), (SWI, sC)]
        for i, (srd, so) in enumerate(rows):
            a('s_add_u32 m0, %s, %d' % (sA, 1056*i))
            a('buffer_load_dwordx4 %s, %s, %s offen %s lds' % (v(V.l16), srd, so, md))
        a('s_mov_b64 exec, 1')
        for i, (srd, so) in enumerate(rows):
            a('s_add_u32 m0, %s, %d' % (sA, 1056*i))
            a('buffer_load_dwordx4 %s, %s, %s offen offset:1024 %s lds' % (v(V.l16), srd, so, md))
        a('s_mov_b64 exec, -1')

    def w_regs(self):
        a = self.a; T = V.T
        self.sigma_lane(T)
        a('v_lshrrev_b32 %s, 5, %s' % (v(T+1), v(V.lane)))
        a('v_lshlrev_b32 %s, 7, %s' % (v(T+1), v(T+1)))
        a('v_lshl_add_u32 %s, %s, 1, %s' % (v(T), v(T), v(T+1)))
        a('s_mul_i32 %s, %s, 4224' % (sA, sW))
        a('s_and_b32 %s, %s, 15' % (sB, sKP)); a('s_add_u32 %s, %s, %s' % (sB, sB, sA)); a('s_add_u32 %s, %s, %d' % (sB, sB, WL))
        a('s_and_b32 %s, %s, 15' % (sC, sKM)); a('s_add_u32 %s, %s, %s' % (sC, sC, sA)); a('s_add_u32 %s, %s, %d' % (sC, sC, WL+2112))
        a('v_add_u32 %s, %s, %s' % (v(V.WP), sB, v(T)))
        a('s_add_u32 %s, %s, %d' % (sD, sC, 1024-832))
        a('v_sub_u32 %s, %s, %s' % (v(V.WM), sD, v(T)))
        def q(rho): return (rho & 1) + 8*((rho >> 1) & 1) + 4*((rho >> 2) & 1)
        for rho in range(8):
            a('ds_read_u16_d16_hi %s, %s offset:%d' % (v(V.W+rho), v(V.WP), 64*q(rho)))
            a('ds_read_u16_d16_hi %s, %s offset:%d' % (v(V.W+16+rho), v(V.WP), 64*q(rho)+1056))
            if rho == 5: a('s_waitcnt lgkmcnt(6)')
        for rho in range(8, 16):
            a('ds_read_u16_d16_hi %s, %s offset:%d' % (v(V.W+rho), v(V.WM), 64*(13-q(rho))))
            a('ds_read_u16_d16_hi %s, %s offset:%d' % (v(V.W+16+rho), v(V.WM), 64*(13-q(rho))+1056))
        l0, l1 = self.label('Wspec'), self.label('Wend')
        a('s_cmp_eq_u32 %s, 1' % sSpec)
        a('s_cbranch_scc1 %s' % l0)
        a('v_mov_b32 %s, %s' % (v(T+1), sC))
        a('ds_read_u16_d16_hi %s, %s' % (v(T+2), v(T+1)))
        a('ds_read_u16_d16_hi %s, %s offset:1056' % (v(T+3), v(T+1)))
        a('ds_read_u16_d16_hi %s, %s offset:1024' % (v(T+4), v(V.WP)))
        a('ds_read_u16_d16_hi %s, %s offset:2080' % (v(T+5), v(V.WP)))
        a('s_waitcnt lgkmcnt(0)')
        a('s_mov_b64 exec, 1')
        a('v_add_f32 %s, %s, %s' % (v(V.W), v(V.W), v(T+2)))
        a('v_sub_f32 %s, %s, %s' % (v(V.W+16), v(V.W+16), v(T+3)))
        a('v_add_f32 %s, %s, %s' % (v(V.W+8), v(V.W+8), v(T+4)))
        a('v_sub_f32 %s, %s, %s' % (v(V.W+24), v(V.W+24), v(T+5)))
        for r in (0, 16, 8, 24): a('v_mul_f32 %s, 0.5, %s' % (v(V.W+r), v(V.W+r)))
        a('s_mov_b64 exec, -1')
        a(l1+':')
        def tail():
            X = V.DA
            a(l0+':')
            a('v_add_u32 %s, %s, %s' % (v(T+1), sC, v(T)))
            a('s_add_u32 %s, %s, %d' % (sD, sB, 1024-832))
            a('v_sub_u32 %s, %s, %s' % (v(T+2), sD, v(T)))
            a('s_waitcnt lgkmcnt(0)')
            for rho in range(8):
                a('ds_read_u16_d16_hi %s, %s offset:%d' % (v(X+rho), v(T+1), 64*q(rho)))
                a('ds_read_u16_d16_hi %s, %s offset:%d' % (v(X+16+rho), v(T+1), 64*q(rho)+1056))
            for rho in range(8, 16):
                a('ds_read_u16_d16_hi %s, %s offset:%d' % (v(X+rho), v(T+2), 64*(13-q(rho))))
                a('ds_read_u16_d16_hi %s, %s offset:%d' % (v(X+16+rho), v(T+2), 64*(13-q(rho))+1056))
            a('s_waitcnt lgkmcnt(0)')
            a('s_mov_b64 exec, 1')
            for r in (V.W+16, V.W+24, X+16, X+24): a('v_mov_b32 %s, 0' % v(r))
            a('s_mov_b64 exec, -1')
            for i in range(32):
                a('v_add_f32 %s, %s, %s' % (v(T+3), v(V.W+i), v(X+i)))
                if (i & 15) < 8: a('v_sub_f32 %s, %s, %s' % (v(X+i), v(V.W+i), v(X+i)))
                else: a('v_sub_f32 %s, %s, %s' % (v(X+i), v(X+i), v(V.W+i)))
                a('v_mov_b32 %s, %s' % (v(V.W+i), v(T+3)))
            a('v_add_u32 %s, %d, %s' % (v(T+1), SCR_B, v(V.l16)))
            for i in range(8):
                a('ds_write_b128 %s, %s offset:%d' % (v(T+1), vr(X+4*i, 4), 1024*i))
            a('s_waitcnt lgkmcnt(0)')
            a('s_branch %s' % l1)
        self.tail.append(tail)

    def gen_B(self):
        a = self.a; T = V.T
        l0, l1 = self.label('Bspec'), self.label('Bend')
        a('s_cmp_eq_u32 %s, 0' % sT)
        a('s_cbranch_scc1 %s' % l0)
        c, s = T+8, T+9
        a('v_lshrrev_b32 %s, 1, %s' % (v(T), v(V.n)))
        a('v_lshl_add_u32 %s, %s, 8, %s' % (v(T+1), v(T), sK0))
        a('v_cvt_f32_u32 %s, %s' % (v(T+1), v(T+1)))
        a('v_mul_f32 %s, %s, %s' % (v(T+1), lit(1/2048), v(T+1)))
        a('v_cvt_f32_u32 %s, %s' % (v(T+2), v(V.g)))
        a('v_add_f32 %s, %s, %s' % (v(T+2), v(T+2), v(T+2)))
        a('v_and_b32 %s, 1, %s' % (v(T+3), v(V.n)))
        a('v_cvt_f32_u32 %s, %s' % (v(T+3), v(T+3)))
        a('v_mul_f32 %s, %s, %s' % (v(T+4), lit(0.25), v(T+3)))
        a('v_mul_f32 %s, %s, %s' % (v(T+5), v(T+1), v(T+2)))
        for sbb in range(2):
            for half in range(2):
                a('v_%s_f32 %s, %s, %s' % ('sub' if half else 'add', v(T+6), v(T+5), v(T+4)))
                a('v_cos_f32 %s, %s' % (v(c), v(T+6)))
                a('v_sin_f32 %s, %s' % (v(s), v(T+6)))
                a('v_mul_f32 %s, %s, %s' % (v(c), lit(S11), v(c)))
                a('v_mul_f32 %s, %s, %s' % (v(s), lit(S11), v(s)))
                ng = '-' if half else ''
                a('v_cvt_pk_bf16_f32 %s, %s, %s%s' % (v(V.B+2*sbb+half), v(c), ng, v(s)))
                a('v_cvt_pk_bf16_f32 %s, -%s, %s%s' % (v(V.B+6+2*sbb+half), v(s), ng, v(c)))
            if sbb == 0: a('v_add_f32 %s, %s, %s' % (v(T+5), v(T+5), v(T+1)))
        a('v_cvt_f32_u32 %s, %s' % (v(T), v(T)))
        a('v_lshlrev_b32 %s, 31, %s' % (v(T+4), v(V.n)))
        a('v_xor_b32 %s, %s, %s' % (v(T), v(T), v(T+4)))
        a('v_xor_b32 %s, %s, %s' % (v(T+4), lit(S11), v(T+4)))
        a('v_lshl_add_u32 %s, %s, 9, %s' % (v(T+1), v(V.g), sK0))
        a('v_cvt_f32_u32 %s, %s' % (v(T+1), v(T+1)))
        a('v_mul_f32 %s, %s, %s' % (v(T+1), lit(1/2048), v(T+1)))
        a('v_mul_f32 %s, %s, %s' % (v(T+5), v(T+1), v(T)))
        a('v_fmac_f32 %s, 0.5, %s' % (v(T+5), v(T+3)))
        for ii in range(2):
            a('v_cos_f32 %s, %s' % (v(c), v(T+5)))
            a('v_sin_f32 %s, %s' % (v(s), v(T+5)))
            a('v_mul_f32 %s, %s, %s' % (v(T+6), v(T+4), v(c)))
            a('v_mul_f32 %s, %s, %s' % (v(T+7), v(T+4), v(s)))
            a('v_mul_f32 %s, %s, %s' % (v(c), lit(S11), v(c)))
            a('v_mul_f32 %s, %s, %s' % (v(s), lit(S11), v(s)))
            a('v_cvt_pk_bf16_f32 %s, %s, %s' % (v(V.Bp+2*ii), v(c), v(T+7)))
            a('v_cvt_pk_bf16_f32 %s, -%s, %s' % (v(V.Bp+4+2*ii), v(s), v(T+6)))
            a('v_cvt_pk_bf16_f32 %s, -%s, %s' % (v(V.Bp+2*ii+1), v(s), v(T+6)))
            a('v_cvt_pk_bf16_f32 %s, -%s, -%s' % (v(V.Bp+4+2*ii+1), v(c), v(T+7)))
            if ii == 0: a('v_fmac_f32 %s, %s, %s' % (v(T+5), lit(0.125), v(T)))
        a(l1+':')
        a('v_mov_b32 %s, %s' % (v(V.B+4), v(V.B))); a('v_mov_b32 %s, %s' % (v(V.B+5), v(V.B+1)))
        a('v_mov_b32 %s, %s' % (v(V.B+10), v(V.B+6))); a('v_mov_b32 %s, %s' % (v(V.B+11), v(V.B+7)))
        def tail():
            a(l0+':')
            a('s_getpc_b64 s[28:29]')
            a('s_add_u32 s28, s28, spec_tab@rel32@lo+4')
            a('s_addc_u32 s29, s29, spec_tab@rel32@hi+12')
            a('global_load_dwordx4 %s, %s, s[28:29]' % (vr(V.B, 4), v(V.l16)))
            a('global_load_dwordx4 %s, %s, s[28:29] offset:1024' % (vr(V.B+6, 4), v(V.l16)))
            a('global_load_dwordx4 %s, %s, s[28:29] offset:2048' % (vr(V.Bp, 4), v(V.l16)))
            a('global_load_dwordx4 %s, %s, s[28:29] offset:3072' % (vr(V.Bp+4, 4), v(V.l16)))
            a('s_waitcnt vmcnt(0)')
            a('s_branch %s' % l1)
        self.tail.append(tail)

    def spec_table(self):
        tab = np.zeros((4, 64, 4, 2))
        for lane in range(64):
            m, g = lane & 15, lane >> 4
            for r in range(4):
                t, c = m >> 1, m & 1; sb, hf = 2*g + (r >> 1), r & 1
                if hf == (t & 1):
                    th = 2*math.pi*sb*t/16
                    tab[0, lane, r, c] = (2*S11 if t else S11)*math.cos(th)
                    tab[1, lane, r, c] = -2*S11*math.sin(th) if t else S11*(-1.0)**sb
                sb, hf = m >> 1, m & 1; t, c = 2*g + (r >> 1), r & 1
                if hf == (t & 1):
                    th = 2*math.pi*sb*t/16
                    if t: cre, cim = 2*math.cos(th), -2*math.sin(th)
                    else: cre, cim = 1.0, (-1.0)**sb
                    pl = 2 + (1 - c)
                    tab[pl, lane, r, 0] = S11*cim
                    tab[pl, lane, r, 1] = S11*cre
        tab[abs(tab) < 1e-12] = 0
        out = ['.p2align 6', '.type spec_tab,@object', 'spec_tab:']
        w = [bf16bits(tab[p, l, r, 0]) | bf16bits(tab[p, l, r, 1]) << 16 for p in range(4) for l in range(64) for r in range(4)]
        for i in range(0, len(w), 8):
            out.append('.long ' + ','.join('0x%x' % x for x in w[i:i+8]))
        return '\n'.join(out)

    def p1_load(self):
        a = self.a; T = V.T
        a('v_bfe_u32 %s, %s, 3, 1' % (v(T), v(V.lane)))
        a('v_lshlrev_b32 %s, 14, %s' % (v(T), v(T)))
        a('v_lshl_add_u32 %s, %s, 20, %s' % (v(T), v(V.g), v(T)))
        a('v_and_b32 %s, 0x70, %s' % (v(T+1), v(V.l16)))
        a('v_add_u32 %s, %s, %s' % (v(V.Xoff), v(T), v(T+1)))
        a('s_lshl_b32 %s, %s, 15' % (sO[0], sW))
        a('s_lshl_b32 %s, %s, 11' % (sA, sSB)); a('s_add_u32 %s, %s, %s' % (sO[0], sO[0], sA))
        a('s_lshl_b32 %s, %s, 7' % (sA, sCB)); a('s_add_u32 %s, %s, %s' % (sO[0], sO[0], sA))
        for r in range(1, 4): a('s_add_u32 %s, %s, 0x%x' % (sO[r], sO[0], r*262144))
    def p1_issue(self):
        a = self.a
        for r in range(4):
            a('buffer_load_dwordx4 %s, %s, %s, %s offen %s' % (vr(V.L+4*r, 4), v(V.Xoff), SX, sO[r], self.o['ldx']))
    def p1_addrs(self):
        a = self.a; T = V.T
        a('v_xor_b32 %s, %s, %s' % (v(T), sSB, v(V.lane)))
        a('v_and_b32 %s, 1, %s' % (v(T), v(T)))
        a('v_mul_u32_u24 %s, 16448, %s' % (v(T), v(T)))
        a('v_lshl_add_u32 %s, %s, 12, %s' % (v(T), v(V.g), v(T)))
        a('v_and_b32 %s, 14, %s' % (v(T+1), v(V.lane)))
        a('v_lshl_add_u32 %s, %s, 3, %s' % (v(T), v(T+1), v(T)))
        a('s_lshr_b32 %s, %s, 2' % (sA, sW)); a('s_lshl_b32 %s, %s, 9' % (sA, sA))
        a('s_and_b32 %s, %s, 1' % (sB, sW)); a('s_lshl_b32 %s, %s, 8' % (sB, sB)); a('s_add_u32 %s, %s, %s' % (sA, sA, sB))
        a('s_and_b32 %s, %s, 2' % (sB, sW)); a('s_lshl_b32 %s, %s, 6' % (sB, sB)); a('s_add_u32 %s, %s, %s' % (sA, sA, sB))
        if R0: a('s_add_u32 %s, %s, %d' % (sA, sA, R0))
        a('v_add_u32 %s, %s, %s' % (v(V.X0w), sA, v(T)))
        self.tr_lane(T, 512, 128)
        a('s_lshl_b32 %s, %s, 10' % (sA, sW))
        a('s_sub_u32 %s, 0x4000, %s' % (sB, sA))
        a('s_cmp_eq_u32 %s, 0' % sW)
        a('s_cselect_b32 %s, 0x2000, %s' % (sB, sB))
        if R0: a('s_add_u32 %s, %s, %d' % (sA, sA, R0)); a('s_add_u32 %s, %s, %d' % (sB, sB, R0))
        a('v_add_u32 %s, %s, %s' % (v(V.X0r0), sA, v(T)))
        a('v_add_u32 %s, %s, %s' % (v(V.X0r1), sB, v(T)))
    def tr_lane(self, dst, g1s, g0s, b3s=64):
        a = self.a; t = V.T+7
        sh = lambda x: int(math.log2(x))
        a('v_and_b32 %s, 0x30, %s' % (v(dst), v(V.l16)))
        for bit, st in ((2, 8), (3, b3s), (4, g0s), (5, g1s)):
            a('v_bfe_u32 %s, %s, %d, 1' % (v(t), v(V.lane), bit))
            a('v_lshl_add_u32 %s, %s, %d, %s' % (v(dst), v(t), sh(st), v(dst)))

    def mf16(self, d, A, B):
        self.a('v_mfma_f32_16x16x32_bf16 %s, %s, %s, 0' % (vr(d, 4), vr(A, 4), vr(B, 4)))
    def cvt(self, d, lo, hi):
        self.a('v_cvt_pk_bf16_f32 %s, %s, %s' % (v(d), v(lo), v(hi)))

    def p1_compute(self, nafter, hook=None):
        a = self.a; O, L, D = V.O, V.L, V.DA
        for r in range(4):
            a('s_waitcnt vmcnt(%d)' % (nafter + 3 - r))
            if r == 3: self.stamp()
            for t in range(4):
                a('v_mov_b32 %s, %s' % (v(O+4*t+r), v(L+4*r+t)))
        for t in range(4):
            self.mf16(D+4*t, V.F16, O+4*t)
            self.mf16(D+16+4*t, V.F16+4, O+4*t)
        if hook: hook()
        P = V.DB
        for r in range(4):
            self.cvt(P+4*r, D+r, D+4+r); self.cvt(P+4*r+2, D+16+r, D+20+r)
        for r in range(4):
            self.cvt(P+4*r+1, D+8+r, D+12+r); self.cvt(P+4*r+3, D+24+r, D+28+r)
            a('ds_write_b128 %s, %s offset:%d' % (v(V.X0w), vr(P+4*r, 4), 1024*r))
        a('s_waitcnt lgkmcnt(0)')
        a('s_barrier')
        for sel in range(2):
            for tau in range(2):
                for ii in range(2):
                    a('ds_read_b64_tr_b16 %s, %s offset:%d' % (vr(O+4*(2*sel+tau)+2*ii, 2), v(V.X0r1 if sel else V.X0r0), tau*16448+ii*256))
        for r in range(4): a('s_add_u32 %s, %s, 0x%x' % (sO[r], sEst, WS_U1 + r*32768))
        for ti in range(4):
            a('s_waitcnt lgkmcnt(%d)' % (6-2*ti))
            self.mf16(D+4*ti, V.M2+8*(ti >> 1), O+4*ti)
            self.mf16(D+16+4*ti, V.M2+8*(ti >> 1)+4, O+4*ti)
        l0, l1 = self.label('P1w0'), self.label('P1end')
        a('s_cmp_eq_u32 %s, 0' % sW)
        a('s_cbranch_scc1 %s' % l0)
        st = lambda i: a('buffer_store_dwordx4 %s, %s, %s, %s offen %s' % (vr(P+4*i, 4), v(V.Est), SWS, sO[i], self.o['st1']))
        for i in range(4):
            for tau in range(2): self.cvt(P+4*i+2*tau, D+4*tau+i, D+16+4*tau+i)
        for i in range(4):
            for tau in range(2): self.cvt(P+4*i+2*tau+1, D+4*(2+tau)+i, D+16+4*(2+tau)+i)
            st(i)
        a(l1+':')
        def tail():
            a(l0+':')
            a('s_nop 7')
            for i in range(4):
                ts, eb = i >> 1, i & 1
                for tau in range(2):
                    for sg in range(2):
                        x = 4*(2*ts+tau)+2*eb+sg
                        self.cvt(P+4*i+2*tau+sg, D+x, D+16+x)
                st(i)
            a('s_branch %s' % l1)
        self.tail.append(tail)

    def p2_addrs(self):
        a = self.a; T = V.T
        a('v_lshlrev_b32 %s, 4, %s' % (v(T), v(V.n)))
        a('v_lshl_add_u32 %s, %s, 13, %s' % (v(T), v(V.g), v(T)))
        a('s_lshl_b32 %s, %s, 9' % (sA, sW)); a('s_add_u32 %s, %s, %d' % (sA, sA, R1))
        a('v_add_u32 %s, %s, %s' % (v(V.X1w), sA, v(T)))
        self.tr_lane(T, 256, 64, 128)
        a('s_lshl_b32 %s, %s, 12' % (sA, sW)); a('s_add_u32 %s, %s, %d' % (sA, sA, R1))
        a('v_add_u32 %s, %s, %s' % (v(V.X1r), sA, v(T)))
        a('v_and_b32 %s, 16, %s' % (v(T), v(V.l16)))
        for bit, st in ((1, 16448), (2, 8224)):
            a('v_bfe_u32 %s, %s, %d, 1' % (v(T+1), v(V.lane), bit))
            a('v_mul_u32_u24 %s, %d, %s' % (v(T+1), st, v(T+1)))
            a('v_add_u32 %s, %s, %s' % (v(T), v(T), v(T+1)))
        a('v_bfe_u32 %s, %s, 3, 2' % (v(T+1), v(V.lane)))
        a('v_lshl_add_u32 %s, %s, 11, %s' % (v(T), v(T+1), v(T)))
        a('v_and_b32 %s, 32, %s' % (v(T+1), v(V.lane)))
        a('v_add_u32 %s, %s, %s' % (v(T), v(T), v(T+1)))
        a('s_lshr_b32 %s, %s, 2' % (sA, sW)); a('s_lshl_b32 %s, %s, 9' % (sA, sA))
        a('s_and_b32 %s, %s, 1' % (sB, sW)); a('s_lshl_b32 %s, %s, 8' % (sB, sB)); a('s_add_u32 %s, %s, %s' % (sA, sA, sB))
        a('s_and_b32 %s, %s, 2' % (sB, sW)); a('s_lshl_b32 %s, %s, 6' % (sB, sB)); a('s_add_u32 %s, %s, %s' % (sA, sA, sB))
        if R0: a('s_add_u32 %s, %s, %d' % (sA, sA, R0))
        a('v_add_u32 %s, %s, %s' % (v(V.X2w), sA, v(T)))
        self.tr_lane(T, 512, 128)
        a('s_and_b32 %s, %s, 1' % (sA, sW)); a('s_lshl_b32 %s, %s, 11' % (sA, sA))
        a('s_bfe_u32 %s, %s, 0x10001' % (sB, sW)); a('s_mul_i32 %s, %s, 16448' % (sB, sB)); a('s_add_u32 %s, %s, %s' % (sA, sA, sB))
        a('s_lshr_b32 %s, %s, 2' % (sB, sW)); a('s_lshl_b32 %s, %s, 12' % (sB, sB)); a('s_add_u32 %s, %s, %s' % (sA, sA, sB))
        if R0: a('s_add_u32 %s, %s, %d' % (sA, sA, R0))
        a('v_add_u32 %s, %s, %s' % (v(V.X2r), sA, v(T)))

    def p2_issue(self):
        a = self.a
        a('s_add_u32 %s, %s, 0x%x' % (sA, sEld, WS_U1))
        for q in range(4):
            a('buffer_load_dwordx4 %s, %s, %s, %s offen offset:%d %s' % (vr(V.L+12*(q >> 1)+4*(q & 1), 4), v(V.Eld), SWS, sA, 256*q, self.o['ld1']))

    def mf32(self, d, i, dataA):
        for pl in range(2):
            M = vr(V.F32+16*pl+4*i, 4); X = vr(V.O+4*i, 4)
            A, B = (X, M) if dataA else (M, X)
            D = vr(d+16*pl, 16)
            self.a('v_mfma_f32_32x32x16_bf16 %s, %s, %s, %s' % (D, A, B, D if i else '0'))

    def cmul_stage(self, src, dst, dataA, coef, kind):
        a = self.a; T = V.T
        for i in range(4):
            for r in range(4):
                rho = 4*i+r
                x, y = v(src+rho), v(src+16+rho)
                c, s = v(coef+rho), v(coef+16+rho)
                t0, t1 = v(T+2*r), v(T+2*r+1)
                a('v_mul_f32 %s, %s, %s' % (t0, x, c))
                a('v_mul_f32 %s, %s, %s' % (t1, y, c))
            for r in range(4):
                rho = 4*i+r
                x, y = v(src+rho), v(src+16+rho)
                c, s = v(coef+rho), v(coef+16+rho)
                t0, t1 = v(T+2*r), v(T+2*r+1)
                if kind == 'tw' or rho >= 8:
                    a('v_fmac_f32 %s, %s, %s' % (t0, y, s))
                    a('v_fma_f32 %s, -%s, %s, %s' % (t1, x, s, t1))
                else:
                    a('v_fma_f32 %s, -%s, %s, %s' % (t0, y, s, t0))
                    a('v_fmac_f32 %s, %s, %s' % (t1, x, s))
            for r in range(4):
                if kind == 'tw': self.cvt(V.O+4*i+r, T+2*r, T+2*r+1)
                else: self.cvt(V.O+4*i+r, T+2*r+1, T+2*r)
            self.mf32(dst, i, dataA)

    def p2_compute(self):
        a = self.a; O, L, D, T = V.O, V.L, V.DA, V.T
        for cbb in range(2):
            b = L+12*cbb
            a('s_waitcnt vmcnt(%d)' % (3-2*cbb))
            a('v_mov_b32 %s, %s' % (v(b+8), v(b))); a('v_mov_b32 %s, %s' % (v(b+9), v(b+1)))
            a('s_waitcnt vmcnt(%d)' % (2-2*cbb))
            if cbb: self.stamp()
            for jj2 in (1, 0):
                ti = 2*cbb+jj2
                op = b+2 if jj2 else b+6
                mo = 0 if jj2 else 2
                self.mf16(D+4*ti, V.B+mo, op)
                self.mf16(D+16+4*ti, V.B+6+mo, op)
        for cbb in range(2):
            for k1b in range(2):
                P = O+4*(2*cbb+k1b)
                for pl in range(2):
                    for jj2 in (1, 0):
                        x = D+16*pl+4*(2*cbb+jj2)+2*k1b
                        self.cvt(P+2*pl+jj2, x, x+1)
                a('ds_write_b128 %s, %s offset:%d' % (v(V.X1w), vr(P, 4), k1b*4096+cbb*256))
        a('s_waitcnt lgkmcnt(0)')
        a('s_barrier')
        for i in range(4):
            for ii in range(2):
                a('ds_read_b64_tr_b16 %s, %s offset:%d' % (vr(O+4*i+2*ii, 2), v(V.X1r), ii*1024+(i & 1)*512+(i >> 1)*2048))
        for i in range(4):
            a('s_waitcnt lgkmcnt(%d)' % (6-2*i))
            self.mf32(V.DA, i, True)
        self.cmul_stage(V.DA, V.DB, False, V.TW, 'tw')
        l0, l1 = self.label('PWspec'), self.label('PWend')
        a('s_cmp_eq_u32 %s, 1' % sSpec)
        a('s_cbranch_scc1 %s' % l0)
        self.cmul_stage(V.DB, V.DA, True, V.W, 'w')
        a(l1+':')
        self.cmul_stage(V.DA, V.DB, True, V.TW, 'tw')
        D = V.DB
        rho = lambda jj3, jj1, jj2, c: 4*(2*jj3+jj1)+2*jj2+c
        for c in range(2):
            for jj1 in range(2):
                P = O+4*(2*c+jj1)
                for pl in range(2):
                    for jj3 in range(2):
                        self.cvt(P+2*pl+jj3, D+16*pl+rho(jj3, jj1, 0, c), D+16*pl+rho(jj3, jj1, 1, c))
                a('ds_write_b128 %s, %s offset:%d' % (v(V.X2w), vr(P, 4), c*64+jj1*1024))
        a('s_waitcnt lgkmcnt(0)')
        a('s_barrier')
        for cbb in range(2):
            for jj1 in range(2):
                for ii in range(2):
                    a('ds_read_b64_tr_b16 %s, %s offset:%d' % (vr(O+4*(2*cbb+jj1)+2*ii, 2), v(V.X2r), ii*256+jj1*1024+cbb*8224))
        for r in range(4): a('s_add_u32 %s, %s, 0x%x' % (sO[r], sEst, WS_U2 + r*32768))
        D = V.DA
        for ti in range(4):
            a('s_waitcnt lgkmcnt(%d)' % (6-2*ti))
            self.mf16(D+4*ti, V.Bp, O+4*ti)
            self.mf16(D+16+4*ti, V.Bp+4, O+4*ti)
        P = V.DB
        for q in range(4):
            cbb, sbb = q >> 1, q & 1
            for jj1 in range(2):
                for hf in range(2):
                    x = 4*(2*cbb+jj1)+2*sbb+hf
                    self.cvt(P+4*q+2*jj1+hf, D+x, D+16+x)
            a('buffer_store_dwordx4 %s, %s, %s, %s offen %s' % (vr(P+4*q, 4), v(V.Est), SWS, sO[q], self.o['st2']))
        def tail():
            C = V.DB; X = V.DA
            a(l0+':')
            self.sigma_lane(T)
            a('v_lshrrev_b32 %s, 5, %s' % (v(T+1), v(V.lane)))
            a('v_lshlrev_b32 %s, 9, %s' % (v(T+1), v(T+1)))
            a('v_lshl_add_u32 %s, %s, 2, %s' % (v(T+2), v(T), v(T+1)))
            a('v_add_u32 %s, %d, %s' % (v(T+2), SCR, v(T+2)))
            a('v_add_u32 %s, 128, %s' % (v(T+3), v(T+2)))
            a('v_sub_u32 %s, 32, %s' % (v(T+4), v(T)))
            a('v_lshrrev_b32 %s, 5, %s' % (v(T+5), v(T+4)))
            a('v_and_b32 %s, 31, %s' % (v(T+4), v(T+4)))
            a('v_lshlrev_b32 %s, 2, %s' % (v(T+4), v(T+4)))
            a('v_lshl_add_u32 %s, %s, 8, %s' % (v(T+4), v(T+5), v(T+4)))
            a('v_sub_u32 %s, %s, %s' % (v(T+4), v(T+4), v(T+1)))
            a('v_add_u32 %s, %d, %s' % (v(T+4), SCR + 2*256, v(T+4)))
            a('v_add_u32 %s, 128, %s' % (v(T+5), v(T+4)))
            a('v_add_u32 %s, %d, %s' % (v(T+6), SCR_B, v(V.l16)))
            qs = lambda rho: sigma(8*(rho >> 2) + (rho & 3))
            for pl in range(2):
                for rho in range(0, 16, 2):
                    a('ds_write2st64_b32 %s, %s, %s offset0:%d offset1:%d' % (v(T+2+pl), v(C+16*pl+rho), v(C+16*pl+rho+1), qs(rho), qs(rho+1)))
                a('ds_write_b32 %s, %s offset:%d' % (v(T+2+pl), v(C+16*pl), 32*256))
            a('s_waitcnt lgkmcnt(0)')
            t0, t1 = v(T+8), v(T+9)
            for half in range(2):
                for pl in range(2):
                    for k in range(0, 8, 2):
                        rho_ = 8*half+k
                        a('ds_read2st64_b32 %s, %s offset0:%d offset1:%d' % (vr(X+8*pl+k, 2), v(T+4+pl), 29-qs(rho_), 29-qs(rho_+1)))
                    for k in range(2):
                        a('ds_read_b128 %s, %s offset:%d' % (vr(X+16+8*pl+4*k, 4), v(T+6), 1024*(4*pl+2*half+k)))
                a('s_waitcnt lgkmcnt(0)')
                for k in range(8):
                    rho_ = 8*half+k
                    x, y = v(C+rho_), v(C+16+rho_); ar, ai = v(V.W+rho_), v(V.W+16+rho_)
                    p, q_ = v(X+k), v(X+8+k); br, bi = v(X+16+k), v(X+24+k)
                    ng, ps = ('', '-') if half else ('-', '')
                    a('v_mul_f32 %s, %s, %s' % (t0, x, ar))
                    a('v_mul_f32 %s, %s, %s' % (t1, y, ar))
                    a('v_fma_f32 %s, %s%s, %s, %s' % (t0, ng, y, ai, t0))
                    a('v_fma_f32 %s, %s%s, %s, %s' % (t1, ps, x, ai, t1))
                    a('v_fmac_f32 %s, %s, %s' % (t0, p, br))
                    a('v_fma_f32 %s, -%s, %s, %s' % (t1, q_, br, t1))
                    a('v_fma_f32 %s, %s%s, %s, %s' % (t0, ps, q_, bi, t0))
                    a('v_fma_f32 %s, %s%s, %s, %s' % (t1, ps, p, bi, t1))
                    self.cvt(O+rho_, T+9, T+8)
            for i in range(4): self.mf32(V.DA, i, True)
            a('s_nop 11')
            a('s_branch %s' % l1)
        self.tail.append(tail)

    def p3_addrs(self):
        a = self.a; T = V.T
        a('v_and_b32 %s, 16, %s' % (v(T), v(V.lane)))
        for bit, st in ((0, 32), (3, 4096), (5, 1024)):
            a('v_bfe_u32 %s, %s, %d, 1' % (v(T+1), v(V.lane), bit))
            a('v_lshl_add_u32 %s, %s, %d, %s' % (v(T), v(T+1), int(math.log2(st)), v(T)))
        for bit, st in ((1, 8208), (2, 16448)):
            a('v_bfe_u32 %s, %s, %d, 1' % (v(T+1), v(V.lane), bit))
            a('v_mul_u32_u24 %s, %d, %s' % (v(T+1), st, v(T+1)))
            a('v_add_u32 %s, %s, %s' % (v(T), v(T), v(T+1)))
        a('s_sub_u32 %s, 16, %s' % (sC, sW))
        a('s_cmp_eq_u32 %s, 0' % sW)
        a('s_cselect_b32 %s, 8, %s' % (sC, sC))
        for kl, dst in ((sW, V.X3w0), (sC, V.X3w1)):
            a('s_and_b32 %s, %s, 9' % (sA, kl)); a('s_lshl_b32 %s, %s, 6' % (sA, sA))
            a('s_and_b32 %s, %s, 2' % (sB, kl)); a('s_lshl_b32 %s, %s, 7' % (sB, sB)); a('s_add_u32 %s, %s, %s' % (sA, sA, sB))
            a('s_and_b32 %s, %s, 4' % (sB, kl)); a('s_lshl_b32 %s, %s, 5' % (sB, sB)); a('s_add_u32 %s, %s, %s' % (sA, sA, sB))
            a('s_add_u32 %s, %s, %d' % (sA, sA, R1))
            a('v_add_u32 %s, %s, %s' % (v(dst), sA, v(T)))
        self.tr_lane(T, 512, 128)
        a('s_and_b32 %s, %s, 1' % (sA, sW)); a('s_mul_i32 %s, %s, 8208' % (sA, sA))
        a('s_bfe_u32 %s, %s, 0x10001' % (sB, sW)); a('s_mul_i32 %s, %s, 16448' % (sB, sB)); a('s_add_u32 %s, %s, %s' % (sA, sA, sB))
        a('s_lshr_b32 %s, %s, 2' % (sB, sW)); a('s_lshl_b32 %s, %s, 12' % (sB, sB)); a('s_add_u32 %s, %s, %s' % (sA, sA, sB))
        a('s_add_u32 %s, %s, %d' % (sA, sA, R1))
        a('v_add_u32 %s, %s, %s' % (v(V.X3r), sA, v(T)))
        a('v_bfe_u32 %s, %s, 3, 1' % (v(T), v(V.lane)))
        a('v_lshlrev_b32 %s, 15, %s' % (v(T), v(T)))
        a('v_lshl_add_u32 %s, %s, 21, %s' % (v(T), v(V.g), v(T)))
        a('v_and_b32 %s, 0x70, %s' % (v(T+1), v(V.l16)))
        a('v_add_u32 %s, %s, %s' % (v(V.Ooff), v(T), v(T+1)))
    def p3_soff(self):
        a = self.a
        a('s_lshl_b32 %s, %s, 16' % (sO[0], sW))
        a('s_lshl_b32 %s, %s, 12' % (sA, sSB)); a('s_add_u32 %s, %s, %s' % (sO[0], sO[0], sA))
        a('s_lshl_b32 %s, %s, 7' % (sA, sCB)); a('s_add_u32 %s, %s, %s' % (sO[0], sO[0], sA))
        a('s_lshl_b32 %s, %s, 11' % (sA, sP)); a('s_add_u32 %s, %s, %s' % (sO[0], sO[0], sA))
        for r in range(1, 4): a('s_add_u32 %s, %s, 0x%x' % (sO[r], sO[0], r*524288))
    def p3_issue(self):
        a = self.a
        a('s_add_u32 %s, %s, 0x%x' % (sA, sEld, WS_U2))
        for q in range(4):
            a('buffer_load_dwordx4 %s, %s, %s, %s offen offset:%d %s' % (vr(V.L+4*q, 4), v(V.Eld), SWS, sA, 256*q, self.o['ld2']))
    def p3_compute(self):
        a = self.a; O, L, D = V.O, V.L, V.DA
        l0, l1 = self.label('P3w0'), self.label('P3m')
        a('s_cmp_eq_u32 %s, 0' % sW)
        a('s_cbranch_scc1 %s' % l0)
        for i in range(4):
            a('s_waitcnt vmcnt(%d)' % (3-i))
            for sel in range(2):
                for col in range(2):
                    a('v_mov_b32 %s, %s' % (v(O+4*(2*sel+col)+i), v(L+4*i+2*col+sel)))
        a(l1+':')
        self.stamp()
        def tail():
            a(l0+':')
            for i in range(4):
                ts, eb = i >> 1, i & 1
                a('s_waitcnt vmcnt(%d)' % (3-i))
                for col in range(2):
                    for sg in range(2):
                        a('v_mov_b32 %s, %s' % (v(O+4*(2*ts+col)+2*eb+sg), v(L+4*i+2*col+sg)))
            a('s_nop 1')
            a('s_branch %s' % l1)
        self.tail.append(tail)
        for ti in range(4):
            self.mf16(D+4*ti, O+4*ti, V.M2+8*(ti >> 1))
            self.mf16(D+16+4*ti, O+4*ti, V.M2+8*(ti >> 1)+4)
        P = V.DB
        for ti in range(4):
            for pl in range(2):
                for k in range(2):
                    x = D+16*pl+4*ti+2*k
                    self.cvt(P+4*ti+2*pl+k, x, x+1)
            a('ds_write_b128 %s, %s offset:%d' % (v(V.X3w1 if ti >> 1 else V.X3w0), vr(P+4*ti, 4), (ti & 1)*2048))
        a('s_waitcnt lgkmcnt(0)')
        a('s_barrier')
        for t in range(4):
            for ii in range(2):
                a('ds_read_b64_tr_b16 %s, %s offset:%d' % (vr(O+4*t+2*ii, 2), v(V.X3r), ii*256+t*1024))
        for t in range(4):
            a('s_waitcnt lgkmcnt(%d)' % (6-2*t))
            self.mf16(D+4*t, V.F16, O+4*t)
            self.mf16(D+16+4*t, V.F16+4, O+4*t)
        for t in range(3):
            for r in range(4): self.cvt(P+4*r+t, D+16+4*t+r, D+4*t+r)
        for r in range(4):
            self.cvt(P+4*r+3, D+16+12+r, D+12+r)
            a('buffer_store_dwordx4 %s, %s, %s, %s offen %s' % (vr(P+4*r, 4), v(V.Ooff), SOUT, sO[r], self.o['sto']))

    def flush_tail(self):
        t, self.tail = self.tail, []
        for f in t: f()

    def kernel_head(self, name):
        self.a.raw('.globl %s\n.p2align 8\n.type %s,@function\n%s:' % (name, name, name))
    def kd(self, name):
        return '''.p2align 6
.amdhsa_kernel %s
  .amdhsa_next_free_vgpr %d
  .amdhsa_next_free_sgpr 96
  .amdhsa_accum_offset %d
  .amdhsa_group_segment_fixed_size 0
  .amdhsa_kernarg_size 72
  .amdhsa_user_sgpr_count 2
  .amdhsa_user_sgpr_kernarg_segment_ptr 1
  .amdhsa_system_sgpr_workgroup_id_x 1
.end_amdhsa_kernel''' % (name, NVGPR, (NVGPR+3)//4*4)

    def build_three(self):
        a = self.a
        names = ['gf_p1_kernel', 'gf_p2_kernel', 'gf_p3_kernel']
        self.kernel_head(names[0]); end = self.label('end')
        self.prologue(end); self.p1_load(); a('s_waitcnt lgkmcnt(0)'); self.p1_issue()
        self.ex_addrs(); self.p1_addrs(); self.gen_F16(); self.gen_M2()
        self.p1_compute(0)
        if self.o['ts']: self.stamp(); a('s_waitcnt vmcnt(0)'); self.stamp(); self.dump_stamps(0)
        a(end+':'); a('s_endpgm'); self.flush_tail()
        self.kernel_head(names[1]); end = self.label('end')
        self.prologue(end); self.ex_addrs(); self.calc_k0(); a('s_waitcnt lgkmcnt(0)')
        self.w_dma(); self.p2_addrs(); self.gen_B(); self.gen_F32TW()
        a('s_waitcnt vmcnt(0)'); self.w_regs(); a('s_waitcnt lgkmcnt(0)')
        self.p2_issue(); self.p2_compute()
        if self.o['ts']: self.stamp(); a('s_waitcnt vmcnt(0)'); self.stamp(); self.dump_stamps(8)
        a(end+':'); a('s_endpgm'); self.flush_tail()
        self.kernel_head(names[2]); end = self.label('end')
        self.prologue(end); self.ex_addrs(); a('s_waitcnt lgkmcnt(0)'); self.p3_issue()
        self.p3_addrs(); self.p3_soff(); self.gen_F16(); self.gen_M3()
        self.p3_compute()
        if self.o['ts']: self.stamp(); a('s_waitcnt vmcnt(0)'); self.stamp(); self.dump_stamps(16)
        a(end+':'); a('s_endpgm'); self.flush_tail()
        launch = ''.join('; @launch kernel=%s grid=(256,1,1) block=(512,1,1) lds=%d\n' % (n, LDS_TOTAL) for n in names)
        return self.finish(launch, names)

    def flag_addrs(self):
        a = self.a
        a('s_lshl_b32 %s, %s, 13' % (sA, sP)); a('s_add_u32 %s, %s, 0x%x' % (sA, sA, WS_FLAG))
        a('s_lshr_b32 %s, %s, 4' % (sB, sT))
        a('s_lshl_b32 %s, %s, 10' % (sF, sW)); a('s_add_u32 %s, %s, %s' % (sF, sF, sA))
        a('s_lshl_b32 %s, %s, 7' % (sC, sB)); a('s_add_u32 %s, %s, %s' % (sF, sF, sC))
        a('s_and_b32 %s, %s, 15' % (sC, sT)); a('s_lshl_b32 %s, %s, 2' % (sC, sC)); a('s_add_u32 %s, %s, %s' % (sF, sF, sC))
        a('s_lshl_b32 %s, %s, 10' % (sE, sB)); a('s_add_u32 %s, %s, %s' % (sE, sE, sA))
        a('s_lshl_b32 %s, %s, 7' % (sC, sW)); a('s_add_u32 %s, %s, %s' % (sE, sE, sC))
        a('v_lshlrev_b32 %s, 2, %s' % (v(V.flag), v(V.n)))
    def zero_flags(self):
        a = self.a; l = self.label('nz'); T = V.T
        a('s_cmp_lg_u32 %s, 0' % sT)
        a('s_cbranch_scc1 %s' % l)
        a('s_lshl_b32 %s, %s, 13' % (sA, sP)); a('s_add_u32 %s, %s, 0x%x' % (sA, sA, WS_FLAG))
        a('s_lshl_b32 %s, %s, 10' % (sB, sW)); a('s_add_u32 %s, %s, %s' % (sA, sA, sB))
        for i in range(4): a('v_mov_b32 %s, 0' % v(V.O+i))
        a('buffer_store_dwordx4 %s, %s, %s, %s offen sc1' % (vr(V.O, 4), v(V.l16), SWS, sA))
        a(l+':')
    def set_ready(self, nafter):
        a = self.a; l = self.label('nr'); T = V.T
        a('s_cmp_lg_u32 %s, 0' % sT)
        a('s_cbranch_scc1 %s' % l)
        a('s_lshl_b32 %s, %s, 7' % (sA, sP)); a('s_lshl_b32 %s, %s, 2' % (sB, sW)); a('s_add_u32 %s, %s, %s' % (sA, sA, sB))
        a('v_mov_b32 %s, 1' % v(V.O+4)); a('v_mov_b32 %s, 0' % v(V.O+5))
        a('s_waitcnt vmcnt(%d)' % nafter)
        a('s_mov_b64 exec, 1')
        a('buffer_store_dword %s, %s, %s, %s offen sc1' % (v(V.O+4), v(V.O+5), SDBG, sA))
        a('s_mov_b64 exec, -1')
        a(l+':')
    def ready_issue(self):
        a = self.a
        a('s_lshl_b32 %s, %s, 7' % (sD, sP))
        a('v_and_b32 %s, 28, %s' % (v(V.O+1), v(V.flag)))
        a('buffer_load_dword %s, %s, %s, %s offen sc1' % (v(V.O), v(V.O+1), SDBG, sD))
    def ready_check(self, end):
        a = self.a; l0, l1 = self.label('rdy'), self.label('rdyok')
        a('v_cmp_eq_u32 vcc, 0, %s' % v(V.O))
        a('s_cbranch_vccnz %s' % l0)
        a(l1+':')
        def tail():
            lp = self.label('rdyl')
            a(l0+':')
            a('s_mov_b32 %s, 0' % sCnt)
            a('s_lshl_b32 %s, %s, 7' % (sD, sP))
            a(lp+':')
            a('buffer_load_dword %s, %s, %s, %s offen sc1' % (v(V.O), v(V.O+1), SDBG, sD))
            a('s_add_u32 %s, %s, 1' % (sCnt, sCnt))
            a('s_cmp_gt_u32 %s, 0x%x' % (sCnt, SPIN_MAX))
            a('s_cbranch_scc1 %s' % l1)
            a('s_waitcnt vmcnt(0)')
            a('v_cmp_eq_u32 vcc, 0, %s' % v(V.O))
            a('s_cbranch_vccnz %s' % lp)
            a('s_branch %s' % l1)
        self.tail.append(tail)
    def set_flag(self, val):
        a = self.a
        a('v_mov_b32 %s, %d' % (v(V.O+2), val)); a('v_mov_b32 %s, 0' % v(V.O+3))
        a('s_mov_b64 exec, 1')
        a('buffer_store_dword %s, %s, %s, %s offen sc1' % (v(V.O+2), v(V.O+3), SWS, sF))
        a('s_mov_b64 exec, -1')
    def poll(self, val):
        a = self.a; lp, ok = self.label('poll'), self.label('pollok')
        a('s_mov_b32 %s, 0' % sCnt)
        a(lp+':')
        a('buffer_load_dword %s, %s, %s, %s offen sc1' % (v(V.O), v(V.flag), SWS, sE))
        a('s_add_u32 %s, %s, 1' % (sCnt, sCnt))
        a('s_cmp_gt_u32 %s, 0x%x' % (sCnt, SPIN_MAX))
        a('s_cbranch_scc1 %s' % ok)
        a('s_waitcnt vmcnt(0)')
        a('v_cmp_gt_u32 vcc, %d, %s' % (val, v(V.O)))
        a('s_cbranch_vccnz %s' % lp)
        a(ok+':')
    def code_pf(self, name):
        a = self.a
        l = self.label('pc')
        a('s_getpc_b64 s[28:29]')
        a(l+':')
        a('s_sub_u32 s28, s28, %s-%s' % (l, name))
        a('s_subb_u32 s29, s29, 0')
        a('v_lshlrev_b32 %s, 5, v0' % v(V.O+6))
        a('global_load_dword %s, %s, s[28:29]' % (v(V.dummy), v(V.O+6)))

    def build_one(self):
        a = self.a; o = self.o
        name = NAME + '_kernel'
        self.kernel_head(name); end = self.label('end')
        self.prologue(end); self.p1_load(); self.calc_k0()
        wpos = o.get('wpos', 'c1')
        if o['stagger']:
            l = self.label('stg')
            a('s_cmp_eq_u32 %s, 0' % sP); a('s_cbranch_scc1 %s' % l)
            self.gen_F32TW()
            a(l+':')
        a('s_waitcnt lgkmcnt(0)')
        self.zero_flags()
        self.p1_issue()
        na = 0
        if o['pf']: self.code_pf(name); na += 1
        if wpos == 'afterx': self.w_dma(); na += 8
        self.set_ready(4+na)
        self.ex_addrs(); self.p1_addrs(); self.flag_addrs(); self.gen_F16(); self.gen_M2()
        if o['stagger']:
            l = self.label('stg')
            a('s_cmp_eq_u32 %s, 1' % sP); a('s_cbranch_scc1 %s' % l)
            self.gen_F32TW()
            a(l+':')
        else: self.gen_F32TW()
        self.p1_compute(na, self.w_dma if wpos == 'c1' else None)
        self.stamp()
        self.ready_issue()
        self.p2_addrs(); self.gen_B()
        a('s_waitcnt vmcnt(0)')
        self.stamp()
        self.ready_check(end)
        self.set_flag(1)
        if wpos != 'afterL1': self.w_regs()
        self.poll(1)
        self.stamp()
        self.p2_issue()
        assert wpos != 'afterL1'
        a('s_waitcnt lgkmcnt(0)')
        self.p2_compute()
        self.stamp()
        self.p3_addrs(); self.gen_M3()
        a('s_waitcnt vmcnt(0)')
        self.stamp()
        self.set_flag(2)
        self.p3_soff()
        self.poll(2)
        self.stamp()
        self.p3_issue()
        self.p3_compute()
        if o['ts']:
            self.stamp(); a('s_waitcnt vmcnt(0)'); self.stamp()
            if 'diag' in o:
                i = int(o['diag']); lp = self.label('dg')
                a('s_waitcnt lgkmcnt(0)')
                a('s_sub_u32 %s, s%d, s%d' % (sA, sTS+2*i, sTS))
                a('s_lshl_b32 %s, %s, 1' % (sA, sA))
                a('s_add_u32 %s, %s, 3000' % (sA, sA))
                a(lp+':')
                a('s_memrealtime s[28:29]')
                a('s_waitcnt lgkmcnt(0)')
                a('s_sub_u32 %s, s28, s%d' % (sB, sTS))
                a('s_cmp_lt_u32 %s, %s' % (sB, sA))
                a('s_cbranch_scc1 %s' % lp)
            else: self.dump_stamps(0)
        a(end+':'); a('s_endpgm'); self.flush_tail()
        a.raw('.fill (%s+16384-.)/4, 4, 0xbf810000' % name)
        launch = '; @launch grid=(256,1,1) block=(512,1,1) lds=%d\n' % LDS_TOTAL
        return self.finish(launch, [name])

    def finish(self, launch, names):
        hdr = '; GFNet spectral filter (two heads): 2-D FFT via bf16 MFMA DFT stages. Generated by dev/gen.py\n' + launch
        s = hdr + '.amdgcn_target "amdgcn-amd-amdhsa--gfx950"\n.text\n' + self.a.text()
        s += '.section .rodata,"a"\n' + '\n'.join(self.kd(n) for n in names) + '\n' + self.spec_table() + '\n'
        return s

if __name__ == '__main__':
    mode = sys.argv[1]; out = sys.argv[2]
    opt = {}
    for kv in sys.argv[3:]:
        k, x = kv.split('=')
        opt[k] = {'True': True, 'False': False}.get(x, x.replace('+', ' '))
    g = Gen(mode, **opt)
    s = g.build_three() if mode == 'three' else g.build_one()
    open(out, 'w').write(s)
    print('vgprs', NVGPR, 'lds', LDS_TOTAL, 'nops', g.a.nops, 'lines', len(g.a.ins))
```

```python
import re

TRANS = ('v_sin_f32','v_cos_f32','v_exp_f32','v_log_f32','v_rcp_f32','v_rsq_f32','v_sqrt_f32')

def regs_of(tok):
    tok = tok.strip()
    out = set()
    t = tok.lstrip('-')
    if t.startswith('abs(') : t = t[4:-1]
    m = re.fullmatch(r'([vsa])(\d+)', t)
    if m: out.add((m.group(1), int(m.group(2)))); return out
    m = re.fullmatch(r'([vsa])\[(\d+):(\d+)\]', t)
    if m:
        for i in range(int(m.group(2)), int(m.group(3))+1): out.add((m.group(1), i))
        return out
    if t in ('vcc','exec','m0','scc'): out.add((t,0))
    if t in ('vcc_lo','vcc_hi'): out.add(('vcc',0))
    if t in ('exec_lo','exec_hi'): out.add(('exec',0))
    return out

class Ins:
    def __init__(self, text):
        self.text = text
        s = text.split(';')[0].strip()
        self.label = s.endswith(':')
        self.directive = s.startswith('.') and not self.label
        self.op = ''
        self.w = set(); self.r = set()
        self.kind = 'other'
        if self.label or self.directive or not s: self.kind='none'; return
        parts = s.split(None, 1)
        self.op = op = parts[0]
        ops = []
        if len(parts) > 1:
            ops = [o.strip() for o in re.split(r',(?![^\[]*\])', parts[1])]
            if ops:
                last = ops[-1].split()
                ops[-1] = last[0] if last else ''
                self.mods = last[1:]
        self.ops = ops
        R = lambda i: regs_of(ops[i]) if i < len(ops) else set()
        if op.startswith('v_mfma'):
            self.kind = 'mfma'; self.passes = 8 if '32x32' in op else 4
            self.w = R(0); self.srcC = R(3); self.srcAB = R(1) | R(2); self.r = self.srcAB | self.srcC
        elif op.startswith('v_cmp'):
            self.kind = 'valu'; self.w = R(0); self.r = R(1) | R(2)
        elif op.startswith('v_readfirstlane') or op.startswith('v_readlane'):
            self.kind = 'valu'; self.w = R(0); self.r = R(1) | R(2); self.rdlane = True
        elif op.startswith('v_'):
            self.kind = 'valu'; self.w = R(0)
            for i in range(1, len(ops)): self.r |= R(i)
            if op.startswith('v_fmac') or op.startswith('v_pk_fmac'): self.r |= R(0)
            if op.startswith('v_add_co') or op.startswith('v_addc_co') or op.startswith('v_sub_co'): self.w |= R(1)
            if op.startswith('v_cndmask') and len(ops) == 3: self.r.add(('vcc',0))
            if op.startswith('v_permlane') or op.startswith('v_swap'): self.w |= R(1); self.r |= R(0)
        elif op.startswith('buffer_') or op.startswith('global_'):
            self.kind = 'vmem'
            lds = 'lds' in getattr(self,'mods',[])
            self.ldsdma = lds
            if op.startswith('buffer_load') and not lds:
                self.w = R(0)
                for i in range(1, len(ops)): self.r |= R(i)
            elif op.startswith('global_load') and not lds:
                self.w = R(0)
                for i in range(1, len(ops)): self.r |= R(i)
            else:
                for i in range(len(ops)): self.r |= R(i)
                if lds: self.r.add(('m0',0))
            self.widestore = ('store_dwordx4' in op or 'store_dwordx3' in op)
            if self.widestore:
                self.sdata = R(0) if op.startswith('buffer') else R(1)
        elif op.startswith('ds_'):
            self.kind = 'ds'
            if op.startswith('ds_read') or op.startswith('ds_bpermute'):
                self.w = R(0)
                for i in range(1, len(ops)): self.r |= R(i)
            else:
                for i in range(len(ops)): self.r |= R(i)
        elif op.startswith('s_'):
            self.kind = 'salu'
            if op in ('s_nop',): self.kind = 'nop'; self.n = int(ops[0], 0) + 1
            elif op.startswith('s_cmp') or op.startswith('s_cbranch') or op.startswith('s_branch') or op.startswith('s_waitcnt') or op in ('s_barrier','s_endpgm','s_setprio','s_sleep'):
                for i in range(len(ops)): self.r |= R(i)
            else:
                self.w = R(0)
                for i in range(1, len(ops)): self.r |= R(i)
    def slots(self):
        if self.kind == 'none': return 0
        if self.kind == 'nop': return self.n
        return 1

def need(p, c):
    n = 0
    V = lambda s: {x for x in s if x[0] in 'va'}
    S = lambda s: {x for x in s if x[0] in ('s','vcc')}
    if p.kind == 'valu':
        pw = V(p.w)
        if c.kind == 'mfma' and pw & c.r: n = max(n, 2)
        if getattr(c,'rdlane',False) and pw & c.r: n = max(n, 1)
        if c.kind == 'valu' and c.op.startswith('v_permlane') and pw & c.r: n = max(n, 2)
        if c.kind == 'valu' and ('dpp' in c.text) and pw & c.r: n = max(n, 2)
        if p.op in TRANS and c.kind in ('valu',) and c.op not in TRANS and pw & c.r: n = max(n, 1)
        if p.op in TRANS and c.kind in ('vmem','ds') and pw & c.r: n = max(n, 1)
        if ('sdwa' in p.text or 'op_sel' in p.text) and c.kind == 'valu' and pw & (c.r | c.w): n = max(n, 1)
        ps = S(p.w)
        if ps:
            if c.kind == 'vmem' and ps & c.r: n = max(n, 5)
            if c.kind == 'valu' and ps & c.r: n = max(n, 4 if getattr(c,'rdlane',False) else 2)
            if c.kind == 'salu' and ps & c.r: n = max(n, 1)
    if p.kind == 'mfma':
        t = {4: (0, 6, 8), 8: (0, 10, 12)}[p.passes]
        if c.kind == 'mfma':
            if p.w & c.srcC:
                if not (p.w == c.srcC and p.passes == c.passes): n = max(n, t[1])
            if p.w & c.srcAB: n = max(n, t[2])
            if p.w & c.w and not (p.w == c.srcC): n = max(n, t[1])
        elif c.kind in ('valu','vmem','ds'):
            if p.w & (c.r | c.w): n = max(n, t[2])
        if c.kind == 'valu' and p.srcC & c.w: n = max(n, {4: 3, 8: 7}[p.passes])
    if p.kind == 'salu' and ('m0',0) in p.w and c.kind == 'vmem' and getattr(c,'ldsdma',False): n = max(n, 1)
    if p.kind == 'vmem' and getattr(p,'widestore',False):
        if c.kind in ('valu','mfma') and p.sdata & c.w: n = max(n, 2)
        elif p.sdata & c.w: n = max(n, 1)
    return n

class Asm:
    def __init__(self):
        self.ins = []
        self.nops = 0
    def raw(self, text):
        for line in text.split('\n'):
            self.ins.append(Ins(line))
    def _branches(self):
        br = {}
        for q, p in enumerate(self.ins):
            if p.op == 's_cbranch_execz': continue
            if p.op.startswith('s_cbranch') or p.op == 's_branch':
                br.setdefault(p.ops[0], []).append(q)
        return br
    def _req(self, c, pos, br):
        req = 0
        stack = [(pos-1, 0, True)]
        seen = {}
        while stack:
            q, dist, fall = stack.pop()
            while q >= 0 and dist <= 24:
                if seen.get(q, 99) <= dist: break
                seen[q] = dist
                p = self.ins[q]
                if fall and p.op in ('s_endpgm', 's_branch'): break
                fall = True
                if p.label:
                    for b in br.get(p.text.split(':')[0].strip(), []):
                        stack.append((b, dist, False))
                elif p.kind != 'none':
                    r = need(p, c)
                    if r - dist > req: req = r - dist
                    dist += p.slots()
                q -= 1
        return req
    def __call__(self, text):
        for line in text.strip().split('\n'):
            line = line.strip()
            if not line: continue
            c = Ins(line)
            if c.kind not in ('none',):
                near = any(p.label for p in self.ins[-400:])
                req = self._req(c, len(self.ins), self._branches() if near else {})
                if req > 0:
                    self.ins.append(Ins('s_nop %d' % (req-1))); self.nops += req
            self.ins.append(c)
    def verify(self):
        br = self._branches(); bad = 0
        for pos, c in enumerate(self.ins):
            if c.kind in ('none', 'nop'): continue
            r = self._req(c, pos, br)
            if r > 0:
                print('HAZARD: need %d more before #%d: %s' % (r, pos, c.text)); bad += 1
        return bad
    def text(self):
        out = []
        for i in self.ins:
            t = i.text
            if i.label or i.directive or not t.strip() or t.strip().startswith(';'): out.append(t)
            else: out.append('    ' + t)
        return '\n'.join(out) + '\n'
```

```python
import sys, struct, math
import numpy as np
from asmlib import Asm

NAME = 'concat_heads__spectral_gfnet__spectral_gfnet__prompt'

def f2u(x): return struct.unpack('<I', struct.pack('<f', x))[0]
def lit(x): return '0x%08x' % f2u(x)
def bf16bits(x):
    u = f2u(float(x)); return ((u + 0x7FFF + ((u >> 16) & 1)) >> 16) & 0xFFFF
def sigma(m): return (m & 1) | ((m >> 1) & 1) << 3 | ((m >> 2) & 1) << 1 | ((m >> 3) & 1) << 2 | (m & 16)

S11 = 2.0**-11
SPIN_MAX = 0x4000
R0 = 0
R1 = 33024
WL = 66048
SCR = WL + 8*4*1056
SCR_B = SCR + 36*256
TABL = SCR_B + 8192
LDS_TOTAL = TABL + 16384
WS_U1 = 0
WS_U2 = 8 << 20
WS_FLAG = 16 << 20
WS_TS = 17 << 20
WS_SIZE = 18 << 20

class V: pass
_n = [0]
def alloc(n, align=1):
    b = (_n[0] + align - 1)//align*align
    _n[0] = b + n
    return b
V.tid = alloc(1); V.lane = alloc(1)
for nm in 'g n Xoff Est Eld X0w X0r0 X0r1 X1w X1r X2w X2r WP WM l16 dummy'.split(): setattr(V, nm, alloc(1))
V.Ooff, V.X3w0, V.X3w1, V.X3r = V.Xoff, V.X0w, V.X0r0, V.X0r1
V.T = alloc(10, 2)
V.O = alloc(16, 4)
V.DA = alloc(32, 4)
V.DB = alloc(32, 4)
V.L = V.DB
V.F16 = alloc(8, 4)
V.M2 = alloc(16, 4)
V.F32 = alloc(32, 4)
V.TW = alloc(32, 4)
V.W = alloc(32, 4)
V.B = alloc(12, 4)
V.Bp = alloc(8, 4)
V.WF = alloc(4)
NVGPR = _n[0]
assert NVGPR <= 256, NVGPR
def v(i): return 'v%d' % i
def vr(i, n): return 'v[%d:%d]' % (i, i+n-1)

SX, SWR, SWI, SOUT, SDBG, SWS = 's[4:7]', 's[8:11]', 's[12:15]', 's[16:19]', 's[20:23]', 's[24:27]'
sP, sT, sW, sSB, sCB, sK0 = 's30', 's31', 's32', 's33', 's34', 's35'
sKP, sKM = 's36', 's37'
sA, sB, sC, sD, sE, sF = 's40', 's41', 's42', 's43', 's44', 's45'
sEst, sEld, sCnt, sSpec = 's46', 's47', 's48', 's49'
sO = ['s52', 's53', 's54', 's55']
sRd, sRv, sInc, sCl = 's38', 's39', 's50', 's51'
ZT = 16
sTS = 56

class Gen:
    def __init__(self, mode='one', **opt):
        self.mode = mode
        self.o = dict(ldx='nt', ldw='nt', st1='sc1', st2='sc1', sto='sc1', ld1='sc1', ld2='sc1', ts=False, stagger=True, pf=True, fst='sc1', fld='sc1', slp='', fsh='', pbar=False, shear=True, prio=True, wA='postX1', wB='first')
        self.o.update(opt)
        self.a = Asm()
        self.lab = 0
        self.nts = 0
        self.tail = []

    def label(self, p='L'):
        self.lab += 1
        return '%s_%d' % (p, self.lab)

    def stamp(self):
        if not self.o['ts'] or self.o.get('fine'): return
        self.a('s_memrealtime s[%d:%d]' % (sTS+2*self.nts, sTS+2*self.nts+1))
        self.nts += 1

    def fstamp(self):
        if not self.o.get('fine'): return
        self.a('s_memtime s[%d:%d]' % (sTS+2*self.nts, sTS+2*self.nts+1))
        self.nts += 1

    def dump_stamps(self, slot0=0):
        if not self.o['ts']: return
        a = self.a
        a('s_waitcnt lgkmcnt(0)')
        a('s_lshl_b32 %s, s2, 3' % sA); a('s_add_u32 %s, %s, %s' % (sA, sA, sW)); a('s_lshl_b32 %s, %s, 7' % (sA, sA))
        a('s_add_u32 %s, %s, 0x%x' % (sA, sA, WS_TS + slot0*4))
        a('s_mov_b64 exec, 1')
        a('v_mov_b32 %s, 0' % v(V.T+1))
        for i in range(self.nts):
            a('v_mov_b32 %s, s%d' % (v(V.T), sTS+2*i))
            a('buffer_store_dword %s, %s, %s, %s offen offset:%d' % (v(V.T), v(V.T+1), SWS, sA, 4*i))
            a('s_nop 1')
        a('s_mov_b64 exec, -1')
        self.nts = 0

    def prologue(self, end):
        a = self.a
        a('s_cmp_ge_u32 s2, 0x100')
        a('s_cbranch_scc1 %s' % end)
        self.stamp()
        a('s_bfe_u32 %s, s2, 0x10003' % sP)
        a('s_mul_i32 s3, %s, 24' % sP)
        a('s_add_u32 s28, s0, s3')
        a('s_addc_u32 s29, s1, 0')
        a('s_load_dwordx2 s[4:5], s[28:29], 0x0')
        a('s_load_dwordx2 s[8:9], s[28:29], 0x8')
        a('s_load_dwordx2 s[12:13], s[28:29], 0x10')
        a('s_load_dwordx2 s[16:17], s[0:1], 0x30')
        a('s_load_dwordx2 s[20:21], s[0:1], 0x38')
        a('s_load_dwordx2 s[24:25], s[0:1], 0x40')
        a('v_lshrrev_b32 %s, 6, v0' % v(V.T))
        a('v_and_b32 %s, 63, v0' % v(V.lane))
        a('v_readfirstlane_b32 %s, %s' % (sW, v(V.T)))
        a('s_and_b32 %s, s2, 7' % sA)
        a('s_xor_b32 %s, %s, 2' % (sA, sA))
        a('s_lshl_b32 %s, %s, 4' % (sT, sA))
        a('s_lshr_b32 %s, s2, 4' % sB)
        a('s_or_b32 %s, %s, %s' % (sT, sT, sB))
        a('s_lshl_b32 %s, %s, 1' % (sCB, sA))
        a('s_bfe_u32 %s, %s, 0x10001' % (sC, sB))
        a('s_or_b32 %s, %s, %s' % (sCB, sCB, sC))
        a('s_bfe_u32 %s, %s, 0x20002' % (sSB, sB))
        a('s_lshl_b32 %s, %s, 1' % (sSB, sSB))
        a('s_and_b32 %s, %s, 1' % (sC, sB))
        a('s_or_b32 %s, %s, %s' % (sSB, sSB, sC))
        a('s_mov_b32 s6, 0x400000'); a('s_mov_b32 s7, 0x20000')
        a('s_mov_b32 s10, 2101248'); a('s_mov_b32 s11, 0x20000')
        a('s_mov_b32 s14, 2101248'); a('s_mov_b32 s15, 0x20000')
        a('s_mov_b32 s18, 0x800000'); a('s_mov_b32 s19, 0x20000')
        a('s_mov_b32 s22, 256'); a('s_mov_b32 s23, 0x20000')
        a('s_mov_b32 s26, 0x%x' % WS_SIZE); a('s_mov_b32 s27, 0x20000')
        a('v_lshrrev_b32 %s, 4, %s' % (v(V.g), v(V.lane)))
        a('v_and_b32 %s, 15, %s' % (v(V.n), v(V.lane)))
        a('v_lshlrev_b32 %s, 4, %s' % (v(V.l16), v(V.lane)))

    def ex_addrs(self):
        a = self.a
        a('v_lshlrev_b32 %s, 4, %s' % (v(V.T), v(V.n)))
        a('v_lshl_add_u32 %s, %s, 17, %s' % (v(V.Est), v(V.g), v(V.T)))
        a('v_lshl_add_u32 %s, %s, 10, %s' % (v(V.Eld), v(V.g), v(V.T)))
        a('s_lshl_b32 %s, %s, 22' % (sA, sP))
        a('s_lshl_b32 %s, %s, 19' % (sEst, sW)); a('s_add_u32 %s, %s, %s' % (sEst, sEst, sA))
        a('s_lshl_b32 %s, %s, 8' % (sB, sT)); a('s_add_u32 %s, %s, %s' % (sEst, sEst, sB))
        a('s_lshl_b32 %s, %s, 15' % (sEld, sT)); a('s_add_u32 %s, %s, %s' % (sEld, sEld, sA))
        a('s_lshl_b32 %s, %s, 12' % (sB, sW)); a('s_add_u32 %s, %s, %s' % (sEld, sEld, sB))

    def trig(self, x, re, im, conj_re=None, conj_im=None):
        a = self.a; c, s = V.T+8, V.T+9
        a('v_cos_f32 %s, %s' % (v(c), v(x)))
        a('v_sin_f32 %s, %s' % (v(s), v(x)))
        a('v_cvt_pk_bf16_f32 %s, %s, %s' % (v(re), v(c), v(s)))
        a('v_cvt_pk_bf16_f32 %s, -%s, %s' % (v(im), v(s), v(c)))
        if conj_re is not None:
            a('v_cvt_pk_bf16_f32 %s, %s, -%s' % (v(conj_re), v(c), v(s)))
            a('v_cvt_pk_bf16_f32 %s, %s, %s' % (v(conj_im), v(s), v(c)))

    def gen_F16(self):
        a = self.a; T = V.T
        a('v_cvt_f32_u32 %s, %s' % (v(T), v(V.n)))
        a('v_mul_f32 %s, %s, %s' % (v(T), lit(1/16), v(T)))
        a('v_cvt_f32_u32 %s, %s' % (v(T+1), v(V.g)))
        a('v_mul_f32 %s, 4.0, %s' % (v(T+1), v(T+1)))
        a('v_mul_f32 %s, %s, %s' % (v(T+2), v(T), v(T+1)))
        for r in range(4):
            self.trig(T+2, V.F16+r, V.F16+4+r)
            if r < 3: a('v_add_f32 %s, %s, %s' % (v(T+2), v(T+2), v(T)))

    def gen_M2(self):
        a = self.a; T = V.T
        l0, l1 = self.label('M2w0'), self.label('M2end')
        a('v_cvt_f32_u32 %s, %s' % (v(T+1), v(V.g)))
        a('v_mul_f32 %s, 4.0, %s' % (v(T+1), v(T+1)))
        a('s_cmp_eq_u32 %s, 0' % sW)
        a('s_cbranch_scc1 %s' % l0)
        a('v_lshl_add_u32 %s, %s, 4, %s' % (v(T), v(V.n), sW))
        a('v_cvt_f32_u32 %s, %s' % (v(T), v(T)))
        a('v_mul_f32 %s, %s, %s' % (v(T), lit(1/256), v(T)))
        a('v_mul_f32 %s, %s, %s' % (v(T+2), v(T), v(T+1)))
        for r in range(4):
            self.trig(T+2, V.M2+r, V.M2+4+r, V.M2+8+r, V.M2+12+r)
            if r < 3: a('v_add_f32 %s, %s, %s' % (v(T+2), v(T+2), v(T)))
        a(l1+':')
        def tail():
            a(l0+':')
            for ts in range(2):
                a('v_lshrrev_b32 %s, 1, %s' % (v(T), v(V.n)))
                a('v_lshlrev_b32 %s, 4, %s' % (v(T), v(T)))
                if ts: a('v_add_u32 %s, 8, %s' % (v(T), v(T)))
                else:
                    a('v_mov_b32 %s, 0x80' % v(T+3))
                    a('v_cmp_eq_u32 vcc, 1, %s' % v(V.n))
                    a('v_cndmask_b32 %s, %s, %s, vcc' % (v(T), v(T), v(T+3)))
                a('v_cvt_f32_u32 %s, %s' % (v(T), v(T)))
                a('v_mul_f32 %s, %s, %s' % (v(T), lit(1/256), v(T)))
                a('v_lshlrev_b32 %s, 31, %s' % (v(T+3), v(V.n)))
                a('v_xor_b32 %s, %s, %s' % (v(T), v(T), v(T+3)))
                a('v_mul_f32 %s, %s, %s' % (v(T+2), v(T), v(T+1)))
                for r in range(4):
                    self.trig(T+2, V.M2+8*ts+r, V.M2+8*ts+4+r)
                    if r < 3: a('v_add_f32 %s, %s, %s' % (v(T+2), v(T+2), v(T)))
            a('s_branch %s' % l1)
        self.tail.append(tail)

    def gen_M3(self):
        a = self.a; T = V.T
        l0, l1 = self.label('M3w0'), self.label('M3end')
        a('v_cvt_f32_u32 %s, %s' % (v(T), v(V.n)))
        a('v_mul_f32 %s, %s, %s' % (v(T+1), lit(1/256), v(T)))
        a('v_mul_f32 %s, %s, %s' % (v(T), lit(1/16), v(T)))
        a('s_cmp_eq_u32 %s, 0' % sW)
        a('s_cbranch_scc1 %s' % l0)
        a('v_lshl_add_u32 %s, %s, 6, %s' % (v(T+2), v(V.g), sW))
        a('v_cvt_f32_u32 %s, %s' % (v(T+2), v(T+2)))
        a('v_mul_f32 %s, %s, %s' % (v(T+2), v(T+2), v(T+1)))
        for r in range(4):
            self.trig(T+2, V.M2+r, V.M2+4+r, V.M2+8+r, V.M2+12+r)
            if r < 3: a('v_add_f32 %s, %s, %s' % (v(T+2), v(T+2), v(T)))
        a(l1+':')
        def tail():
            a(l0+':')
            for ts in range(2):
                a('v_lshlrev_b32 %s, 5, %s' % (v(T+2), v(V.g)))
                if ts: a('v_add_u32 %s, 8, %s' % (v(T+2), v(T+2)))
                a('v_cvt_f32_u32 %s, %s' % (v(T+2), v(T+2)))
                a('v_mul_f32 %s, %s, %s' % (v(T+2), v(T+2), v(T+1)))
                for eb in range(2):
                    b = V.M2+8*ts
                    self.trig(T+2, b+2*eb, b+4+2*eb, b+2*eb+1, b+4+2*eb+1)
                    if eb == 0: a('v_add_f32 %s, %s, %s' % (v(T+2), v(T+2), v(T)))
            a('s_mov_b64 exec, 0xffff')
            a('v_lshlrev_b32 %s, 15, %s' % (v(T+2), v(V.n)))
            a('v_and_b32 %s, 0x8000, %s' % (v(T+2), v(T+2)))
            a('v_or_b32 %s, 0x3f80, %s' % (v(V.M2+1), v(T+2)))
            a('v_lshlrev_b32 %s, 16, %s' % (v(V.M2+5), v(V.M2+1)))
            a('s_mov_b64 exec, -1')
            a('s_branch %s' % l1)
        self.tail.append(tail)

    def sigma_lane(self, dst):
        a = self.a; T = V.T
        a('v_and_b32 %s, 17, %s' % (v(dst), v(V.lane)))
        a('v_bfe_u32 %s, %s, 2, 2' % (v(T+7), v(V.lane)))
        a('v_lshl_add_u32 %s, %s, 1, %s' % (v(dst), v(T+7), v(dst)))
        a('v_bfe_u32 %s, %s, 1, 1' % (v(T+7), v(V.lane)))
        a('v_lshl_add_u32 %s, %s, 3, %s' % (v(dst), v(T+7), v(dst)))

    def gen_F32TW(self):
        a = self.a; T = V.T
        self.sigma_lane(T)
        a('v_cvt_f32_u32 %s, %s' % (v(T), v(T)))
        a('v_mul_f32 %s, %s, %s' % (v(T), lit(1/1024), v(T)))
        a('v_lshrrev_b32 %s, 5, %s' % (v(T+1), v(V.lane)))
        a('v_cvt_f32_u32 %s, %s' % (v(T+1), v(T+1)))
        a('v_add_f32 %s, %s, %s' % (v(T+1), v(T+1), v(T+1)))
        a('v_mul_f32 %s, %s, %s' % (v(T+1), v(T+1), v(T)))
        for rho in range(16):
            k = sigma(8*(rho >> 2) + (rho & 3))
            a('v_fmamk_f32 %s, %s, %s, %s' % (v(T+2), v(T), lit(float(k)), v(T+1)))
            a('v_mul_f32 %s, %s, %s' % (v(T+3), lit(32.0), v(T+2)))
            a('v_cos_f32 %s, %s' % (v(V.TW+rho), v(T+2)))
            a('v_sin_f32 %s, %s' % (v(V.TW+16+rho), v(T+2)))
            self.trig(T+3, V.F32+rho, V.F32+16+rho)

    def coop_gen(self):
        a = self.a; T = V.T; X = V.DA
        self.sigma_lane(T)
        a('v_cvt_f32_u32 %s, %s' % (v(T), v(T)))
        a('v_mul_f32 %s, %s, %s' % (v(T), lit(1/1024), v(T)))
        a('s_and_b32 %s, %s, 1' % (sA, sW)); a('s_lshl_b32 %s, %s, 3' % (sA, sA))
        a('s_and_b32 %s, %s, 2' % (sB, sW)); a('s_lshl_b32 %s, %s, 1' % (sB, sB)); a('s_add_u32 %s, %s, %s' % (sA, sA, sB))
        a('s_and_b32 %s, %s, 4' % (sB, sW)); a('s_lshl_b32 %s, %s, 2' % (sB, sB)); a('s_add_u32 %s, %s, %s' % (sA, sA, sB))
        a('v_lshrrev_b32 %s, 5, %s' % (v(T+1), v(V.lane)))
        a('v_lshl_add_u32 %s, %s, 1, %s' % (v(T+1), v(T+1), sA))
        a('v_cvt_f32_u32 %s, %s' % (v(T+1), v(T+1)))
        a('v_mul_f32 %s, %s, %s' % (v(T+2), v(T+1), v(T)))
        for e in range(2):
            a('v_mul_f32 %s, %s, %s' % (v(T+3), lit(32.0), v(T+2)))
            if self.o['shear']:
                a('v_mul_f32 %s, 0.5, %s' % (v(T+4), v(T+2)))
                a('v_cos_f32 %s, %s' % (v(T+5), v(T+4)))
                a('v_sin_f32 %s, %s' % (v(T+6), v(T+4)))
                a('v_rcp_f32 %s, %s' % (v(T+5), v(T+5)))
                a('v_mul_f32 %s, %s, %s' % (v(X+4+e), v(T+6), v(T+5)))
                a('v_fma_f32 %s, %s, %s, 1.0' % (v(T+5), v(X+4+e), v(X+4+e)))
                a('v_rcp_f32 %s, %s' % (v(T+6), v(T+5)))
                a('v_fma_f32 %s, -%s, %s, 1.0' % (v(T+5), v(T+5), v(T+6)))
                a('v_fmac_f32 %s, %s, %s' % (v(T+6), v(T+5), v(T+6)))
                a('v_mul_f32 %s, -2.0, %s' % (v(T+6), v(T+6)))
                a('v_mul_f32 %s, %s, %s' % (v(X+6+e), v(T+6), v(X+4+e)))
            else:
                a('v_cos_f32 %s, %s' % (v(X+4+e), v(T+2)))
                a('v_sin_f32 %s, %s' % (v(X+6+e), v(T+2)))
            self.trig(T+3, X+e, X+2+e)
            if e == 0: a('v_add_f32 %s, %s, %s' % (v(T+2), v(T+2), v(T)))
        a('s_lshr_b32 %s, %s, 1' % (sA, sW)); a('s_lshl_b32 %s, %s, 10' % (sA, sA))
        a('s_and_b32 %s, %s, 1' % (sB, sW)); a('s_lshl_b32 %s, %s, 3' % (sB, sB)); a('s_add_u32 %s, %s, %s' % (sA, sA, sB))
        a('s_add_u32 %s, %s, %d' % (sA, sA, TABL))
        a('v_add_u32 %s, %s, %s' % (v(T), sA, v(V.l16)))
        for k in range(4):
            a('ds_write_b64 %s, %s offset:%d' % (v(T), vr(X+2*k, 2), 4096*k))
    def coop_read(self):
        a = self.a; T = V.T
        assert V.TW == V.F32+32
        a('v_add_u32 %s, %d, %s' % (v(T), TABL, v(V.l16)))
        for k in range(16):
            a('ds_read_b128 %s, %s offset:%d' % (vr(V.F32+4*k, 4), v(T), 1024*k))

    def calc_k0(self):
        a = self.a
        a('s_lshr_b32 %s, %s, 4' % (sA, sT))
        a('s_and_b32 %s, %s, 15' % (sB, sT))
        a('s_lshl_b32 %s, %s, 4' % (sK0, sB))
        a('s_add_u32 %s, %s, %s' % (sK0, sK0, sA))
        a('s_lshr_b32 %s, %s, 2' % (sC, sB)); a('s_lshl_b32 %s, %s, 5' % (sC, sC))
        a('s_and_b32 %s, %s, 1' % (sD, sB)); a('s_lshl_b32 %s, %s, 4' % (sD, sD)); a('s_add_u32 %s, %s, %s' % (sC, sC, sD))
        a('s_and_b32 %s, %s, 2' % (sD, sB)); a('s_lshl_b32 %s, %s, 2' % (sD, sD)); a('s_add_u32 %s, %s, %s' % (sC, sC, sD))
        a('s_cmp_eq_u32 %s, 0' % sA)
        a('s_cselect_b32 %s, %s, %s' % (sK0, sC, sK0))
        a('s_cmp_eq_u32 %s, 0' % sT)
        a('s_cselect_b32 %s, 7, 8' % sA)
        a('s_lshl_b32 %s, %s, %s' % (sKP, sW, sA))
        a('s_add_u32 %s, %s, %s' % (sKP, sKP, sK0))
        a('s_sub_u32 %s, 0x800, %s' % (sKM, sKP))
        a('s_cmp_eq_u32 %s, 0' % sKP)
        a('s_cselect_b32 %s, 0x400, %s' % (sKM, sKM))
        a('s_cselect_b32 %s, 1, 0' % sSpec)
        a('s_mul_i32 %s, %s, 1026' % (sKP, sKP))
        a('s_mul_i32 %s, %s, 1026' % (sKM, sKM))

    def w_dma(self):
        a = self.a
        md = self.o['ldw']
        a('s_mul_i32 %s, %s, 4224' % (sA, sW))
        a('s_add_u32 %s, %s, %d' % (sA, sA, WL))
        a('s_and_b32 %s, %s, -16' % (sB, sKP))
        a('s_and_b32 %s, %s, -16' % (sC, sKM))
        rows = [(SWR, sB), (SWI, sB), (SWR, sC), (SWI, sC)]
        for i, (srd, so) in enumerate(rows):
            a('s_add_u32 m0, %s, %d' % (sA, 1056*i))
            a('buffer_load_dwordx4 %s, %s, %s offen %s lds' % (v(V.l16), srd, so, md))
        a('s_mov_b64 exec, 1')
        for i, (srd, so) in enumerate(rows):
            a('s_add_u32 m0, %s, %d' % (sA, 1056*i))
            a('buffer_load_dwordx4 %s, %s, %s offen offset:1024 %s lds' % (v(V.l16), srd, so, md))
        a('s_mov_b64 exec, -1')

    def w_regs(self, spec=True):
        a = self.a; T = V.T
        self.sigma_lane(T)
        a('v_lshrrev_b32 %s, 5, %s' % (v(T+1), v(V.lane)))
        a('v_lshlrev_b32 %s, 7, %s' % (v(T+1), v(T+1)))
        a('v_lshl_add_u32 %s, %s, 1, %s' % (v(T), v(T), v(T+1)))
        a('s_mul_i32 %s, %s, 4224' % (sA, sW))
        a('s_and_b32 %s, %s, 15' % (sB, sKP)); a('s_add_u32 %s, %s, %s' % (sB, sB, sA)); a('s_add_u32 %s, %s, %d' % (sB, sB, WL))
        a('s_and_b32 %s, %s, 15' % (sC, sKM)); a('s_add_u32 %s, %s, %s' % (sC, sC, sA)); a('s_add_u32 %s, %s, %d' % (sC, sC, WL+2112))
        a('v_add_u32 %s, %s, %s' % (v(V.WP), sB, v(T)))
        a('s_add_u32 %s, %s, %d' % (sD, sC, 1024-832))
        a('v_sub_u32 %s, %s, %s' % (v(V.WM), sD, v(T)))
        def q(rho): return (rho & 1) + 8*((rho >> 1) & 1) + 4*((rho >> 2) & 1)
        for rho in range(8):
            a('ds_read_u16_d16_hi %s, %s offset:%d' % (v(V.W+rho), v(V.WP), 64*q(rho)))
            a('ds_read_u16_d16_hi %s, %s offset:%d' % (v(V.W+16+rho), v(V.WP), 64*q(rho)+1056))
        for rho in range(8, 16):
            a('ds_read_u16_d16_hi %s, %s offset:%d' % (v(V.W+rho), v(V.WM), 64*(13-q(rho))))
            a('ds_read_u16_d16_hi %s, %s offset:%d' % (v(V.W+16+rho), v(V.WM), 64*(13-q(rho))+1056))
        l0, l1 = self.label('Wspec'), self.label('Wend')
        if spec:
            a('s_cmp_eq_u32 %s, 1' % sSpec)
            a('s_cbranch_scc1 %s' % l0)
        a('v_mov_b32 %s, %s' % (v(T+1), sC))
        a('ds_read_u16_d16_hi %s, %s' % (v(T+2), v(T+1)))
        a('ds_read_u16_d16_hi %s, %s offset:1056' % (v(T+3), v(T+1)))
        a('ds_read_u16_d16_hi %s, %s offset:1024' % (v(T+4), v(V.WP)))
        a('ds_read_u16_d16_hi %s, %s offset:2080' % (v(T+5), v(V.WP)))
        a('s_waitcnt lgkmcnt(0)')
        a('s_mov_b64 exec, 1')
        a('v_add_f32 %s, %s, %s' % (v(V.W), v(V.W), v(T+2)))
        a('v_sub_f32 %s, %s, %s' % (v(V.W+16), v(V.W+16), v(T+3)))
        a('v_add_f32 %s, %s, %s' % (v(V.W+8), v(V.W+8), v(T+4)))
        a('v_sub_f32 %s, %s, %s' % (v(V.W+24), v(V.W+24), v(T+5)))
        for r in (0, 16, 8, 24): a('v_mul_f32 %s, 0.5, %s' % (v(V.W+r), v(V.W+r)))
        a('s_mov_b64 exec, -1')
        a(l1+':')
        def tail():
            X = V.DA
            a(l0+':')
            a('v_add_u32 %s, %s, %s' % (v(T+1), sC, v(T)))
            a('s_add_u32 %s, %s, %d' % (sD, sB, 1024-832))
            a('v_sub_u32 %s, %s, %s' % (v(T+2), sD, v(T)))
            a('s_waitcnt lgkmcnt(0)')
            for rho in range(8):
                a('ds_read_u16_d16_hi %s, %s offset:%d' % (v(X+rho), v(T+1), 64*q(rho)))
                a('ds_read_u16_d16_hi %s, %s offset:%d' % (v(X+16+rho), v(T+1), 64*q(rho)+1056))
            for rho in range(8, 16):
                a('ds_read_u16_d16_hi %s, %s offset:%d' % (v(X+rho), v(T+2), 64*(13-q(rho))))
                a('ds_read_u16_d16_hi %s, %s offset:%d' % (v(X+16+rho), v(T+2), 64*(13-q(rho))+1056))
            a('s_waitcnt lgkmcnt(0)')
            a('s_mov_b64 exec, 1')
            for r in (V.W+16, V.W+24, X+16, X+24): a('v_mov_b32 %s, 0' % v(r))
            a('s_mov_b64 exec, -1')
            for i in range(32):
                a('v_add_f32 %s, %s, %s' % (v(T+3), v(V.W+i), v(X+i)))
                if (i & 15) < 8: a('v_sub_f32 %s, %s, %s' % (v(X+i), v(V.W+i), v(X+i)))
                else: a('v_sub_f32 %s, %s, %s' % (v(X+i), v(X+i), v(V.W+i)))
                a('v_mov_b32 %s, %s' % (v(V.W+i), v(T+3)))
            a('v_add_u32 %s, %d, %s' % (v(T+1), SCR_B, v(V.l16)))
            for i in range(8):
                a('ds_write_b128 %s, %s offset:%d' % (v(T+1), vr(X+4*i, 4), 1024*i))
            a('s_waitcnt lgkmcnt(0)')
            a('s_branch %s' % l1)
        if spec: self.tail.append(tail)

    def wq(self, rho): return (rho & 1) + 8*((rho >> 1) & 1) + 4*((rho >> 2) & 1)
    def w_addr(self):
        a = self.a; T = V.T
        self.sigma_lane(T)
        a('v_lshrrev_b32 %s, 5, %s' % (v(T+1), v(V.lane)))
        a('v_lshlrev_b32 %s, 7, %s' % (v(T+1), v(T+1)))
        a('v_lshl_add_u32 %s, %s, 1, %s' % (v(V.WP), v(T), v(T+1)))
        a('v_sub_u32 %s, 192, %s' % (v(V.WM), v(V.WP)))
    def w_loads(self, dst, rowP, rowM):
        a = self.a; md = self.o['ldw']
        for rho in range(16):
            for im, srd in ((0, SWR), (1, SWI)):
                if rho < 8: a('buffer_load_short_d16_hi %s, %s, %s, %s offen offset:%d %s' % (v(dst+16*im+rho), v(V.WP), srd, rowP, 64*self.wq(rho), md))
                else: a('buffer_load_short_d16_hi %s, %s, %s, %s offen offset:%d %s' % (v(dst+16*im+rho), v(V.WM), srd, rowM, 64*(13-self.wq(rho)), md))
    def w_direct(self):
        a = self.a; l = self.label('wskip'); md = self.o['ldw']
        a('s_cmp_eq_u32 %s, 1' % sSpec)
        a('s_cbranch_scc1 %s' % l)
        a('s_mov_b64 exec, 1')
        a('buffer_load_short_d16_hi %s, %s, %s, %s offen %s' % (v(V.WF), v(V.WP), SWR, sKM, md))
        a('buffer_load_short_d16_hi %s, %s, %s, %s offen %s' % (v(V.WF+1), v(V.WP), SWI, sKM, md))
        a('buffer_load_short_d16_hi %s, %s, %s, %s offen offset:1024 %s' % (v(V.WF+2), v(V.WP), SWR, sKP, md))
        a('buffer_load_short_d16_hi %s, %s, %s, %s offen offset:1024 %s' % (v(V.WF+3), v(V.WP), SWI, sKP, md))
        a('s_mov_b64 exec, -1')
        self.w_loads(V.W, sKP, sKM)
        l2 = self.label('wdone')
        a(l2+':')
        def tail():
            a(l+':')
            a('s_waitcnt vmcnt(0)')
            a('s_branch %s' % l2)
        self.tail.append(tail)
    def w_fix(self):
        a = self.a
        a('s_mov_b64 exec, 1')
        a('v_add_f32 %s, %s, %s' % (v(V.W), v(V.W), v(V.WF)))
        a('v_sub_f32 %s, %s, %s' % (v(V.W+16), v(V.W+16), v(V.WF+1)))
        a('v_add_f32 %s, %s, %s' % (v(V.W+8), v(V.W+8), v(V.WF+2)))
        a('v_sub_f32 %s, %s, %s' % (v(V.W+24), v(V.W+24), v(V.WF+3)))
        for r in (0, 16, 8, 24): a('v_mul_f32 %s, 0.5, %s' % (v(V.W+r), v(V.W+r)))
        a('s_mov_b64 exec, -1')
    def w_special(self):
        a = self.a; T = V.T
        l0, l1 = self.label('Wspec'), self.label('Wend')
        a('s_cmp_eq_u32 %s, 1' % sSpec)
        a('s_cbranch_scc1 %s' % l0)
        a(l1+':')
        def tail():
            X = V.DA
            a(l0+':')
            self.w_loads(V.W, sKP, sKM)
            a('s_waitcnt vmcnt(16)')
            self.w_loads(X, sKM, sKP)
            a('s_waitcnt vmcnt(0)')
            a('s_mov_b64 exec, 1')
            for r in (V.W+16, V.W+24, X+16, X+24): a('v_mov_b32 %s, 0' % v(r))
            a('s_mov_b64 exec, -1')
            for i in range(32):
                a('v_add_f32 %s, %s, %s' % (v(T+3), v(V.W+i), v(X+i)))
                if (i & 15) < 8: a('v_sub_f32 %s, %s, %s' % (v(X+i), v(V.W+i), v(X+i)))
                else: a('v_sub_f32 %s, %s, %s' % (v(X+i), v(X+i), v(V.W+i)))
                a('v_mov_b32 %s, %s' % (v(V.W+i), v(T+3)))
            a('v_add_u32 %s, %d, %s' % (v(T+1), SCR_B, v(V.l16)))
            for i in range(8):
                a('ds_write_b128 %s, %s offset:%d' % (v(T+1), vr(X+4*i, 4), 1024*i))
            a('s_waitcnt lgkmcnt(0)')
            a('s_branch %s' % l1)
        self.tail.append(tail)

    def gen_B(self, early=False):
        a = self.a; T = V.T
        l0, l1 = self.label('Bspec'), self.label('Bend')
        a('s_cmp_eq_u32 %s, 0' % sT)
        a('s_cbranch_scc1 %s' % l0)
        c, s = T+8, T+9
        a('v_lshrrev_b32 %s, 1, %s' % (v(T), v(V.n)))
        a('v_lshl_add_u32 %s, %s, 8, %s' % (v(T+1), v(T), sK0))
        a('v_cvt_f32_u32 %s, %s' % (v(T+1), v(T+1)))
        a('v_mul_f32 %s, %s, %s' % (v(T+1), lit(1/2048), v(T+1)))
        a('v_cvt_f32_u32 %s, %s' % (v(T+2), v(V.g)))
        a('v_add_f32 %s, %s, %s' % (v(T+2), v(T+2), v(T+2)))
        a('v_and_b32 %s, 1, %s' % (v(T+3), v(V.n)))
        a('v_cvt_f32_u32 %s, %s' % (v(T+3), v(T+3)))
        a('v_mul_f32 %s, %s, %s' % (v(T+4), lit(0.25), v(T+3)))
        a('v_mul_f32 %s, %s, %s' % (v(T+5), v(T+1), v(T+2)))
        for sbb in range(2):
            for half in range(2):
                a('v_%s_f32 %s, %s, %s' % ('sub' if half else 'add', v(T+6), v(T+5), v(T+4)))
                a('v_cos_f32 %s, %s' % (v(c), v(T+6)))
                a('v_sin_f32 %s, %s' % (v(s), v(T+6)))
                a('v_mul_f32 %s, %s, %s' % (v(c), lit(S11), v(c)))
                a('v_mul_f32 %s, %s, %s' % (v(s), lit(S11), v(s)))
                ng = '-' if half else ''
                a('v_cvt_pk_bf16_f32 %s, %s, %s%s' % (v(V.B+2*sbb+half), v(c), ng, v(s)))
                a('v_cvt_pk_bf16_f32 %s, -%s, %s%s' % (v(V.B+6+2*sbb+half), v(s), ng, v(c)))
            if sbb == 0: a('v_add_f32 %s, %s, %s' % (v(T+5), v(T+5), v(T+1)))
        a('v_cvt_f32_u32 %s, %s' % (v(T), v(T)))
        a('v_lshlrev_b32 %s, 31, %s' % (v(T+4), v(V.n)))
        a('v_xor_b32 %s, %s, %s' % (v(T), v(T), v(T+4)))
        a('v_xor_b32 %s, %s, %s' % (v(T+4), lit(S11), v(T+4)))
        a('v_lshl_add_u32 %s, %s, 9, %s' % (v(T+1), v(V.g), sK0))
        a('v_cvt_f32_u32 %s, %s' % (v(T+1), v(T+1)))
        a('v_mul_f32 %s, %s, %s' % (v(T+1), lit(1/2048), v(T+1)))
        a('v_mul_f32 %s, %s, %s' % (v(T+5), v(T+1), v(T)))
        a('v_fmac_f32 %s, 0.5, %s' % (v(T+5), v(T+3)))
        for ii in range(2):
            a('v_cos_f32 %s, %s' % (v(c), v(T+5)))
            a('v_sin_f32 %s, %s' % (v(s), v(T+5)))
            a('v_mul_f32 %s, %s, %s' % (v(T+6), v(T+4), v(c)))
            a('v_mul_f32 %s, %s, %s' % (v(T+7), v(T+4), v(s)))
            a('v_mul_f32 %s, %s, %s' % (v(c), lit(S11), v(c)))
            a('v_mul_f32 %s, %s, %s' % (v(s), lit(S11), v(s)))
            a('v_cvt_pk_bf16_f32 %s, %s, %s' % (v(V.Bp+2*ii), v(c), v(T+7)))
            a('v_cvt_pk_bf16_f32 %s, -%s, %s' % (v(V.Bp+4+2*ii), v(s), v(T+6)))
            a('v_cvt_pk_bf16_f32 %s, -%s, %s' % (v(V.Bp+2*ii+1), v(s), v(T+6)))
            a('v_cvt_pk_bf16_f32 %s, -%s, -%s' % (v(V.Bp+4+2*ii+1), v(c), v(T+7)))
            if ii == 0: a('v_fmac_f32 %s, %s, %s' % (v(T+5), lit(0.125), v(T)))
        a(l1+':')
        a('v_mov_b32 %s, %s' % (v(V.B+4), v(V.B))); a('v_mov_b32 %s, %s' % (v(V.B+5), v(V.B+1)))
        a('v_mov_b32 %s, %s' % (v(V.B+10), v(V.B+6))); a('v_mov_b32 %s, %s' % (v(V.B+11), v(V.B+7)))
        def tail():
            a(l0+':')
            if not early: self.spec_load(); a('s_waitcnt vmcnt(0)')
            else: a('s_waitcnt vmcnt(4)')
            a('s_branch %s' % l1)
        self.tail.append(tail)
    def spec_load(self):
        a = self.a
        a('s_getpc_b64 s[28:29]')
        a('s_add_u32 s28, s28, spec_tab@rel32@lo+4')
        a('s_addc_u32 s29, s29, spec_tab@rel32@hi+12')
        a('global_load_dwordx4 %s, %s, s[28:29]' % (vr(V.B, 4), v(V.l16)))
        a('global_load_dwordx4 %s, %s, s[28:29] offset:1024' % (vr(V.B+6, 4), v(V.l16)))
        a('global_load_dwordx4 %s, %s, s[28:29] offset:2048' % (vr(V.Bp, 4), v(V.l16)))
        a('global_load_dwordx4 %s, %s, s[28:29] offset:3072' % (vr(V.Bp+4, 4), v(V.l16)))
    def spec_early(self):
        a = self.a; l0, l1 = self.label('SE'), self.label('SEend')
        a('s_cmp_eq_u32 %s, 0' % sT)
        a('s_cbranch_scc1 %s' % l0)
        a(l1+':')
        def tail():
            a(l0+':'); self.spec_load(); a('s_branch %s' % l1)
        self.tail.append(tail)

    def spec_table(self):
        tab = np.zeros((4, 64, 4, 2))
        for lane in range(64):
            m, g = lane & 15, lane >> 4
            for r in range(4):
                t, c = m >> 1, m & 1; sb, hf = 2*g + (r >> 1), r & 1
                if hf == (t & 1):
                    th = 2*math.pi*sb*t/16
                    tab[0, lane, r, c] = (2*S11 if t else S11)*math.cos(th)
                    tab[1, lane, r, c] = -2*S11*math.sin(th) if t else S11*(-1.0)**sb
                sb, hf = m >> 1, m & 1; t, c = 2*g + (r >> 1), r & 1
                if hf == (t & 1):
                    th = 2*math.pi*sb*t/16
                    if t: cre, cim = 2*math.cos(th), -2*math.sin(th)
                    else: cre, cim = 1.0, (-1.0)**sb
                    pl = 2 + (1 - c)
                    tab[pl, lane, r, 0] = S11*cim
                    tab[pl, lane, r, 1] = S11*cre
        tab[abs(tab) < 1e-12] = 0
        out = ['.p2align 6', '.type spec_tab,@object', 'spec_tab:']
        w = [bf16bits(tab[p, l, r, 0]) | bf16bits(tab[p, l, r, 1]) << 16 for p in range(4) for l in range(64) for r in range(4)]
        for i in range(0, len(w), 8):
            out.append('.long ' + ','.join('0x%x' % x for x in w[i:i+8]))
        return '\n'.join(out)

    def p1_load(self):
        a = self.a; T = V.T
        a('v_bfe_u32 %s, %s, 3, 1' % (v(T), v(V.lane)))
        a('v_lshlrev_b32 %s, 14, %s' % (v(T), v(T)))
        a('v_lshl_add_u32 %s, %s, 20, %s' % (v(T), v(V.g), v(T)))
        a('v_and_b32 %s, 0x70, %s' % (v(T+1), v(V.l16)))
        a('v_add_u32 %s, %s, %s' % (v(V.Xoff), v(T), v(T+1)))
        a('s_lshl_b32 %s, %s, 15' % (sO[0], sW))
        a('s_lshl_b32 %s, %s, 11' % (sA, sSB)); a('s_add_u32 %s, %s, %s' % (sO[0], sO[0], sA))
        a('s_lshl_b32 %s, %s, 7' % (sA, sCB)); a('s_add_u32 %s, %s, %s' % (sO[0], sO[0], sA))
        for r in range(1, 4): a('s_add_u32 %s, %s, 0x%x' % (sO[r], sO[0], r*262144))
    def p1_issue(self):
        a = self.a
        for r in range(4):
            a('buffer_load_dwordx4 %s, %s, %s, %s offen %s' % (vr(V.L+4*r, 4), v(V.Xoff), SX, sO[r], self.o['ldx']))
    def p1_addrs(self):
        a = self.a; T = V.T
        a('v_xor_b32 %s, %s, %s' % (v(T), sSB, v(V.lane)))
        a('v_and_b32 %s, 1, %s' % (v(T), v(T)))
        a('v_mul_u32_u24 %s, 16448, %s' % (v(T), v(T)))
        a('v_lshl_add_u32 %s, %s, 12, %s' % (v(T), v(V.g), v(T)))
        a('v_and_b32 %s, 14, %s' % (v(T+1), v(V.lane)))
        a('v_lshl_add_u32 %s, %s, 3, %s' % (v(T), v(T+1), v(T)))
        a('s_lshr_b32 %s, %s, 2' % (sA, sW)); a('s_lshl_b32 %s, %s, 9' % (sA, sA))
        a('s_and_b32 %s, %s, 1' % (sB, sW)); a('s_lshl_b32 %s, %s, 8' % (sB, sB)); a('s_add_u32 %s, %s, %s' % (sA, sA, sB))
        a('s_and_b32 %s, %s, 2' % (sB, sW)); a('s_lshl_b32 %s, %s, 6' % (sB, sB)); a('s_add_u32 %s, %s, %s' % (sA, sA, sB))
        if R0: a('s_add_u32 %s, %s, %d' % (sA, sA, R0))
        a('v_add_u32 %s, %s, %s' % (v(V.X0w), sA, v(T)))
        self.tr_lane(T, 512, 128)
        a('s_lshl_b32 %s, %s, 10' % (sA, sW))
        a('s_sub_u32 %s, 0x4000, %s' % (sB, sA))
        a('s_cmp_eq_u32 %s, 0' % sW)
        a('s_cselect_b32 %s, 0x2000, %s' % (sB, sB))
        if R0: a('s_add_u32 %s, %s, %d' % (sA, sA, R0)); a('s_add_u32 %s, %s, %d' % (sB, sB, R0))
        a('v_add_u32 %s, %s, %s' % (v(V.X0r0), sA, v(T)))
        a('v_add_u32 %s, %s, %s' % (v(V.X0r1), sB, v(T)))
    def tr_lane(self, dst, g1s, g0s, b3s=64):
        a = self.a; t = V.T+7
        sh = lambda x: int(math.log2(x))
        a('v_and_b32 %s, 0x30, %s' % (v(dst), v(V.l16)))
        for bit, st in ((2, 8), (3, b3s), (4, g0s), (5, g1s)):
            a('v_bfe_u32 %s, %s, %d, 1' % (v(t), v(V.lane), bit))
            a('v_lshl_add_u32 %s, %s, %d, %s' % (v(dst), v(t), sh(st), v(dst)))

    def mf16(self, d, A, B):
        self.a('v_mfma_f32_16x16x32_bf16 %s, %s, %s, 0' % (vr(d, 4), vr(A, 4), vr(B, 4)))
    def cvt(self, d, lo, hi):
        self.a('v_cvt_pk_bf16_f32 %s, %s, %s' % (v(d), v(lo), v(hi)))

    def p1_compute(self, nafter, hook=None, hook2=None):
        a = self.a; O, L, D = V.O, V.L, V.DA
        for r in range(4):
            a('s_waitcnt vmcnt(%d)' % (nafter + 3 - r))
            if r == 3: self.stamp()
            for t in range(4):
                a('v_mov_b32 %s, %s' % (v(O+4*t+r), v(L+4*r+t)))
        for t in range(4):
            self.mf16(D+4*t, V.F16, O+4*t)
            self.mf16(D+16+4*t, V.F16+4, O+4*t)
        if hook: hook()
        P = V.DB
        for r in range(4):
            self.cvt(P+4*r, D+r, D+4+r); self.cvt(P+4*r+2, D+16+r, D+20+r)
        for r in range(4):
            self.cvt(P+4*r+1, D+8+r, D+12+r); self.cvt(P+4*r+3, D+24+r, D+28+r)
            a('ds_write_b128 %s, %s offset:%d' % (v(V.X0w), vr(P+4*r, 4), 1024*r))
        a('s_waitcnt lgkmcnt(0)')
        a('s_barrier')
        for sel in range(2):
            for tau in range(2):
                for ii in range(2):
                    a('ds_read_b64_tr_b16 %s, %s offset:%d' % (vr(O+4*(2*sel+tau)+2*ii, 2), v(V.X0r1 if sel else V.X0r0), tau*16448+ii*256))
        if hook2: hook2()
        for r in range(4): a('s_add_u32 %s, %s, 0x%x' % (sO[r], sEst, WS_U1 + r*32768))
        for ti in range(4):
            a('s_waitcnt lgkmcnt(%d)' % (6-2*ti))
            self.mf16(D+4*ti, V.M2+8*(ti >> 1), O+4*ti)
            self.mf16(D+16+4*ti, V.M2+8*(ti >> 1)+4, O+4*ti)
        l0, l1 = self.label('P1w0'), self.label('P1end')
        a('s_cmp_eq_u32 %s, 0' % sW)
        a('s_cbranch_scc1 %s' % l0)
        st = lambda i: a('buffer_store_dwordx4 %s, %s, %s, %s offen %s' % (vr(P+4*i, 4), v(V.Est), SWS, sO[i], self.o['st1']))
        for i in range(4):
            for tau in range(2): self.cvt(P+4*i+2*tau, D+4*tau+i, D+16+4*tau+i)
        for i in range(4):
            for tau in range(2): self.cvt(P+4*i+2*tau+1, D+4*(2+tau)+i, D+16+4*(2+tau)+i)
            st(i)
        a(l1+':')
        def tail():
            a(l0+':')
            a('s_nop 7')
            for i in range(4):
                ts, eb = i >> 1, i & 1
                for tau in range(2):
                    for sg in range(2):
                        x = 4*(2*ts+tau)+2*eb+sg
                        self.cvt(P+4*i+2*tau+sg, D+x, D+16+x)
                st(i)
            a('s_branch %s' % l1)
        self.tail.append(tail)

    def p2_addrs(self):
        a = self.a; T = V.T
        a('v_lshlrev_b32 %s, 4, %s' % (v(T), v(V.n)))
        a('v_lshl_add_u32 %s, %s, 13, %s' % (v(T), v(V.g), v(T)))
        a('s_lshl_b32 %s, %s, 9' % (sA, sW)); a('s_add_u32 %s, %s, %d' % (sA, sA, R1))
        a('v_add_u32 %s, %s, %s' % (v(V.X1w), sA, v(T)))
        self.tr_lane(T, 256, 64, 128)
        a('s_lshl_b32 %s, %s, 12' % (sA, sW)); a('s_add_u32 %s, %s, %d' % (sA, sA, R1))
        a('v_add_u32 %s, %s, %s' % (v(V.X1r), sA, v(T)))
        a('v_and_b32 %s, 16, %s' % (v(T), v(V.l16)))
        for bit, st in ((1, 16448), (2, 8224)):
            a('v_bfe_u32 %s, %s, %d, 1' % (v(T+1), v(V.lane), bit))
            a('v_mul_u32_u24 %s, %d, %s' % (v(T+1), st, v(T+1)))
            a('v_add_u32 %s, %s, %s' % (v(T), v(T), v(T+1)))
        a('v_bfe_u32 %s, %s, 3, 2' % (v(T+1), v(V.lane)))
        a('v_lshl_add_u32 %s, %s, 11, %s' % (v(T), v(T+1), v(T)))
        a('v_and_b32 %s, 32, %s' % (v(T+1), v(V.lane)))
        a('v_add_u32 %s, %s, %s' % (v(T), v(T), v(T+1)))
        a('s_lshr_b32 %s, %s, 2' % (sA, sW)); a('s_lshl_b32 %s, %s, 9' % (sA, sA))
        a('s_and_b32 %s, %s, 1' % (sB, sW)); a('s_lshl_b32 %s, %s, 8' % (sB, sB)); a('s_add_u32 %s, %s, %s' % (sA, sA, sB))
        a('s_and_b32 %s, %s, 2' % (sB, sW)); a('s_lshl_b32 %s, %s, 6' % (sB, sB)); a('s_add_u32 %s, %s, %s' % (sA, sA, sB))
        if R0: a('s_add_u32 %s, %s, %d' % (sA, sA, R0))
        a('v_add_u32 %s, %s, %s' % (v(V.X2w), sA, v(T)))
        self.tr_lane(T, 512, 128)
        a('s_and_b32 %s, %s, 1' % (sA, sW)); a('s_lshl_b32 %s, %s, 11' % (sA, sA))
        a('s_bfe_u32 %s, %s, 0x10001' % (sB, sW)); a('s_mul_i32 %s, %s, 16448' % (sB, sB)); a('s_add_u32 %s, %s, %s' % (sA, sA, sB))
        a('s_lshr_b32 %s, %s, 2' % (sB, sW)); a('s_lshl_b32 %s, %s, 12' % (sB, sB)); a('s_add_u32 %s, %s, %s' % (sA, sA, sB))
        if R0: a('s_add_u32 %s, %s, %d' % (sA, sA, R0))
        a('v_add_u32 %s, %s, %s' % (v(V.X2r), sA, v(T)))

    def p2_issue(self):
        a = self.a
        a('s_add_u32 %s, %s, 0x%x' % (sA, sEld, WS_U1))
        for q in range(4):
            a('buffer_load_dwordx4 %s, %s, %s, %s offen offset:%d %s' % (vr(V.L+12*(q >> 1)+4*(q & 1), 4), v(V.Eld), SWS, sA, 256*q, self.o['ld1']))

    def mf32(self, d, i, dataA):
        for pl in range(2):
            M = vr(V.F32+16*pl+4*i, 4); X = vr(V.O+4*i, 4)
            A, B = (X, M) if dataA else (M, X)
            D = vr(d+16*pl, 16)
            self.a('v_mfma_f32_32x32x16_bf16 %s, %s, %s, %s' % (D, A, B, D if i else '0'))

    def cmul_stage(self, src, dst, dataA, coef, kind, prio=None):
        a = self.a; T = V.T
        if prio is not None and self.o['prio']: a('s_setprio %d' % prio)
        if kind == 'tw' and self.o['shear']:
            for i in range(4):
                for st in range(3):
                    for r in range(4):
                        rho = 4*i+r
                        x, y = v(src+rho), v(src+16+rho)
                        if st == 1: a('v_fmac_f32 %s, %s, %s' % (y, v(coef+16+rho), x))
                        else: a('v_fmac_f32 %s, %s, %s' % (x, v(coef+rho), y))
                for r in range(4): self.cvt(V.O+4*i+r, src+4*i+r, src+16+4*i+r)
                self.mf32(dst, i, dataA)
            return
        for i in range(4):
            for r in range(4):
                rho = 4*i+r
                x, y = v(src+rho), v(src+16+rho)
                c, s = v(coef+rho), v(coef+16+rho)
                t0, t1 = v(T+2*r), v(T+2*r+1)
                a('v_mul_f32 %s, %s, %s' % (t0, x, c))
                a('v_mul_f32 %s, %s, %s' % (t1, y, c))
            for r in range(4):
                rho = 4*i+r
                x, y = v(src+rho), v(src+16+rho)
                c, s = v(coef+rho), v(coef+16+rho)
                t0, t1 = v(T+2*r), v(T+2*r+1)
                if kind == 'tw' or rho >= 8:
                    a('v_fmac_f32 %s, %s, %s' % (t0, y, s))
                    a('v_fma_f32 %s, -%s, %s, %s' % (t1, x, s, t1))
                else:
                    a('v_fma_f32 %s, -%s, %s, %s' % (t0, y, s, t0))
                    a('v_fmac_f32 %s, %s, %s' % (t1, x, s))
            for r in range(4):
                if kind == 'tw': self.cvt(V.O+4*i+r, T+2*r, T+2*r+1)
                else: self.cvt(V.O+4*i+r, T+2*r+1, T+2*r)
            self.mf32(dst, i, dataA)

    def p2_compute(self, na=0, hookX1=None, hookPW=None):
        a = self.a; O, L, D, T = V.O, V.L, V.DA, V.T
        for cbb in range(2):
            b = L+12*cbb
            a('s_waitcnt vmcnt(%d)' % (na+3-2*cbb))
            a('v_mov_b32 %s, %s' % (v(b+8), v(b))); a('v_mov_b32 %s, %s' % (v(b+9), v(b+1)))
            a('s_waitcnt vmcnt(%d)' % (na+2-2*cbb))
            if cbb: self.stamp(); self.fstamp()
            for jj2 in (1, 0):
                ti = 2*cbb+jj2
                op = b+2 if jj2 else b+6
                mo = 0 if jj2 else 2
                self.mf16(D+4*ti, V.B+mo, op)
                self.mf16(D+16+4*ti, V.B+6+mo, op)
        for cbb in range(2):
            for k1b in range(2):
                P = O+4*(2*cbb+k1b)
                for pl in range(2):
                    for jj2 in (1, 0):
                        x = D+16*pl+4*(2*cbb+jj2)+2*k1b
                        self.cvt(P+2*pl+jj2, x, x+1)
                a('ds_write_b128 %s, %s offset:%d' % (v(V.X1w), vr(P, 4), k1b*4096+cbb*256))
        self.fstamp()
        a('s_waitcnt lgkmcnt(0)')
        self.fstamp()
        if self.o.get('fine'): a('s_waitcnt lgkmcnt(0)')
        a('s_barrier')
        if self.o['prio']: a('s_setprio 3')
        for i in range(4):
            for ii in range(2):
                a('ds_read_b64_tr_b16 %s, %s offset:%d' % (vr(O+4*i+2*ii, 2), v(V.X1r), ii*1024+(i & 1)*512+(i >> 1)*2048))
        if hookX1: hookX1()
        for i in range(4):
            a('s_waitcnt lgkmcnt(%d)' % (6-2*i))
            self.mf32(V.DA, i, True)
        self.fstamp()
        self.cmul_stage(V.DA, V.DB, False, V.TW, 'tw', 2)
        self.fstamp()
        if hookPW: hookPW()
        l0, l1 = self.label('PWspec'), self.label('PWend')
        a('s_cmp_eq_u32 %s, 1' % sSpec)
        a('s_cbranch_scc1 %s' % l0)
        if na:
            a('s_waitcnt vmcnt(0)')
            self.w_fix()
        self.cmul_stage(V.DB, V.DA, True, V.W, 'w', 1)
        a(l1+':')
        self.fstamp()
        self.cmul_stage(V.DA, V.DB, True, V.TW, 'tw', 0)
        self.fstamp()
        D = V.DB
        rho = lambda jj3, jj1, jj2, c: 4*(2*jj3+jj1)+2*jj2+c
        for c in range(2):
            for jj1 in range(2):
                P = O+4*(2*c+jj1)
                for pl in range(2):
                    for jj3 in range(2):
                        self.cvt(P+2*pl+jj3, D+16*pl+rho(jj3, jj1, 0, c), D+16*pl+rho(jj3, jj1, 1, c))
                a('ds_write_b128 %s, %s offset:%d' % (v(V.X2w), vr(P, 4), c*64+jj1*1024))
        self.fstamp()
        a('s_waitcnt lgkmcnt(0)')
        self.fstamp()
        if self.o.get('fine'): a('s_waitcnt lgkmcnt(0)')
        a('s_barrier')
        for cbb in range(2):
            for jj1 in range(2):
                for ii in range(2):
                    a('ds_read_b64_tr_b16 %s, %s offset:%d' % (vr(O+4*(2*cbb+jj1)+2*ii, 2), v(V.X2r), ii*256+jj1*1024+cbb*8224))
        for r in range(4): a('s_add_u32 %s, %s, 0x%x' % (sO[r], sEst, WS_U2 + r*32768))
        D = V.DA
        for ti in range(4):
            a('s_waitcnt lgkmcnt(%d)' % (6-2*ti))
            self.mf16(D+4*ti, V.Bp, O+4*ti)
            self.mf16(D+16+4*ti, V.Bp+4, O+4*ti)
        self.fstamp()
        P = V.DB
        for q in range(4):
            cbb, sbb = q >> 1, q & 1
            for jj1 in range(2):
                for hf in range(2):
                    x = 4*(2*cbb+jj1)+2*sbb+hf
                    self.cvt(P+4*q+2*jj1+hf, D+x, D+16+x)
            a('buffer_store_dwordx4 %s, %s, %s, %s offen %s' % (vr(P+4*q, 4), v(V.Est), SWS, sO[q], self.o['st2']))
        self.fstamp()
        if self.o.get('fine'):
            a('s_memrealtime s[%d:%d]' % (sTS+2*self.nts, sTS+2*self.nts+1)); self.nts += 1
        def tail():
            C = V.DB; X = V.DA
            a(l0+':')
            self.sigma_lane(T)
            a('v_lshrrev_b32 %s, 5, %s' % (v(T+1), v(V.lane)))
            a('v_lshlrev_b32 %s, 9, %s' % (v(T+1), v(T+1)))
            a('v_lshl_add_u32 %s, %s, 2, %s' % (v(T+2), v(T), v(T+1)))
            a('v_add_u32 %s, %d, %s' % (v(T+2), SCR, v(T+2)))
            a('v_add_u32 %s, 128, %s' % (v(T+3), v(T+2)))
            a('v_sub_u32 %s, 32, %s' % (v(T+4), v(T)))
            a('v_lshrrev_b32 %s, 5, %s' % (v(T+5), v(T+4)))
            a('v_and_b32 %s, 31, %s' % (v(T+4), v(T+4)))
            a('v_lshlrev_b32 %s, 2, %s' % (v(T+4), v(T+4)))
            a('v_lshl_add_u32 %s, %s, 8, %s' % (v(T+4), v(T+5), v(T+4)))
            a('v_sub_u32 %s, %s, %s' % (v(T+4), v(T+4), v(T+1)))
            a('v_add_u32 %s, %d, %s' % (v(T+4), SCR + 2*256, v(T+4)))
            a('v_add_u32 %s, 128, %s' % (v(T+5), v(T+4)))
            a('v_add_u32 %s, %d, %s' % (v(T+6), SCR_B, v(V.l16)))
            qs = lambda rho: sigma(8*(rho >> 2) + (rho & 3))
            for pl in range(2):
                for rho in range(0, 16, 2):
                    a('ds_write2st64_b32 %s, %s, %s offset0:%d offset1:%d' % (v(T+2+pl), v(C+16*pl+rho), v(C+16*pl+rho+1), qs(rho), qs(rho+1)))
                a('ds_write_b32 %s, %s offset:%d' % (v(T+2+pl), v(C+16*pl), 32*256))
            a('s_waitcnt lgkmcnt(0)')
            t0, t1 = v(T+8), v(T+9)
            for half in range(2):
                for pl in range(2):
                    for k in range(0, 8, 2):
                        rho_ = 8*half+k
                        a('ds_read2st64_b32 %s, %s offset0:%d offset1:%d' % (vr(X+8*pl+k, 2), v(T+4+pl), 29-qs(rho_), 29-qs(rho_+1)))
                    for k in range(2):
                        a('ds_read_b128 %s, %s offset:%d' % (vr(X+16+8*pl+4*k, 4), v(T+6), 1024*(4*pl+2*half+k)))
                a('s_waitcnt lgkmcnt(0)')
                for k in range(8):
                    rho_ = 8*half+k
                    x, y = v(C+rho_), v(C+16+rho_); ar, ai = v(V.W+rho_), v(V.W+16+rho_)
                    p, q_ = v(X+k), v(X+8+k); br, bi = v(X+16+k), v(X+24+k)
                    ng, ps = ('', '-') if half else ('-', '')
                    a('v_mul_f32 %s, %s, %s' % (t0, x, ar))
                    a('v_mul_f32 %s, %s, %s' % (t1, y, ar))
                    a('v_fma_f32 %s, %s%s, %s, %s' % (t0, ng, y, ai, t0))
                    a('v_fma_f32 %s, %s%s, %s, %s' % (t1, ps, x, ai, t1))
                    a('v_fmac_f32 %s, %s, %s' % (t0, p, br))
                    a('v_fma_f32 %s, -%s, %s, %s' % (t1, q_, br, t1))
                    a('v_fma_f32 %s, %s%s, %s, %s' % (t0, ps, q_, bi, t0))
                    a('v_fma_f32 %s, %s%s, %s, %s' % (t1, ps, p, bi, t1))
                    self.cvt(O+rho_, T+9, T+8)
            for i in range(4): self.mf32(V.DA, i, True)
            a('s_nop 11')
            a('s_branch %s' % l1)
        self.tail.append(tail)

    def p3_addrs(self):
        a = self.a; T = V.T
        a('v_and_b32 %s, 16, %s' % (v(T), v(V.lane)))
        for bit, st in ((0, 32), (3, 4096), (5, 1024)):
            a('v_bfe_u32 %s, %s, %d, 1' % (v(T+1), v(V.lane), bit))
            a('v_lshl_add_u32 %s, %s, %d, %s' % (v(T), v(T+1), int(math.log2(st)), v(T)))
        for bit, st in ((1, 8208), (2, 16448)):
            a('v_bfe_u32 %s, %s, %d, 1' % (v(T+1), v(V.lane), bit))
            a('v_mul_u32_u24 %s, %d, %s' % (v(T+1), st, v(T+1)))
            a('v_add_u32 %s, %s, %s' % (v(T), v(T), v(T+1)))
        a('s_sub_u32 %s, 16, %s' % (sC, sW))
        a('s_cmp_eq_u32 %s, 0' % sW)
        a('s_cselect_b32 %s, 8, %s' % (sC, sC))
        for kl, dst in ((sW, V.X3w0), (sC, V.X3w1)):
            a('s_and_b32 %s, %s, 9' % (sA, kl)); a('s_lshl_b32 %s, %s, 6' % (sA, sA))
            a('s_and_b32 %s, %s, 2' % (sB, kl)); a('s_lshl_b32 %s, %s, 7' % (sB, sB)); a('s_add_u32 %s, %s, %s' % (sA, sA, sB))
            a('s_and_b32 %s, %s, 4' % (sB, kl)); a('s_lshl_b32 %s, %s, 5' % (sB, sB)); a('s_add_u32 %s, %s, %s' % (sA, sA, sB))
            a('s_add_u32 %s, %s, %d' % (sA, sA, R1))
            a('v_add_u32 %s, %s, %s' % (v(dst), sA, v(T)))
        self.tr_lane(T, 512, 128)
        a('s_and_b32 %s, %s, 1' % (sA, sW)); a('s_mul_i32 %s, %s, 8208' % (sA, sA))
        a('s_bfe_u32 %s, %s, 0x10001' % (sB, sW)); a('s_mul_i32 %s, %s, 16448' % (sB, sB)); a('s_add_u32 %s, %s, %s' % (sA, sA, sB))
        a('s_lshr_b32 %s, %s, 2' % (sB, sW)); a('s_lshl_b32 %s, %s, 12' % (sB, sB)); a('s_add_u32 %s, %s, %s' % (sA, sA, sB))
        a('s_add_u32 %s, %s, %d' % (sA, sA, R1))
        a('v_add_u32 %s, %s, %s' % (v(V.X3r), sA, v(T)))
        a('v_bfe_u32 %s, %s, 3, 1' % (v(T), v(V.lane)))
        a('v_lshlrev_b32 %s, 15, %s' % (v(T), v(T)))
        a('v_lshl_add_u32 %s, %s, 21, %s' % (v(T), v(V.g), v(T)))
        a('v_and_b32 %s, 0x70, %s' % (v(T+1), v(V.l16)))
        a('v_add_u32 %s, %s, %s' % (v(V.Ooff), v(T), v(T+1)))
    def p3_soff(self):
        a = self.a
        a('s_lshl_b32 %s, %s, 16' % (sO[0], sW))
        a('s_lshl_b32 %s, %s, 12' % (sA, sSB)); a('s_add_u32 %s, %s, %s' % (sO[0], sO[0], sA))
        a('s_lshl_b32 %s, %s, 7' % (sA, sCB)); a('s_add_u32 %s, %s, %s' % (sO[0], sO[0], sA))
        a('s_lshl_b32 %s, %s, 11' % (sA, sP)); a('s_add_u32 %s, %s, %s' % (sO[0], sO[0], sA))
        for r in range(1, 4): a('s_add_u32 %s, %s, 0x%x' % (sO[r], sO[0], r*524288))
    def p3_issue(self):
        a = self.a
        a('s_add_u32 %s, %s, 0x%x' % (sA, sEld, WS_U2))
        for q in range(4):
            a('buffer_load_dwordx4 %s, %s, %s, %s offen offset:%d %s' % (vr(V.L+4*q, 4), v(V.Eld), SWS, sA, 256*q, self.o['ld2']))
    def p3_compute(self):
        a = self.a; O, L, D = V.O, V.L, V.DA
        l0, l1 = self.label('P3w0'), self.label('P3m')
        a('s_cmp_eq_u32 %s, 0' % sW)
        a('s_cbranch_scc1 %s' % l0)
        for i in range(4):
            a('s_waitcnt vmcnt(%d)' % (3-i))
            for sel in range(2):
                for col in range(2):
                    a('v_mov_b32 %s, %s' % (v(O+4*(2*sel+col)+i), v(L+4*i+2*col+sel)))
        a(l1+':')
        self.stamp()
        def tail():
            a(l0+':')
            for i in range(4):
                ts, eb = i >> 1, i & 1
                a('s_waitcnt vmcnt(%d)' % (3-i))
                for col in range(2):
                    for sg in range(2):
                        a('v_mov_b32 %s, %s' % (v(O+4*(2*ts+col)+2*eb+sg), v(L+4*i+2*col+sg)))
            a('s_nop 1')
            a('s_branch %s' % l1)
        self.tail.append(tail)
        for ti in range(4):
            self.mf16(D+4*ti, O+4*ti, V.M2+8*(ti >> 1))
            self.mf16(D+16+4*ti, O+4*ti, V.M2+8*(ti >> 1)+4)
        P = V.DB
        for ti in range(4):
            for pl in range(2):
                for k in range(2):
                    x = D+16*pl+4*ti+2*k
                    self.cvt(P+4*ti+2*pl+k, x, x+1)
            a('ds_write_b128 %s, %s offset:%d' % (v(V.X3w1 if ti >> 1 else V.X3w0), vr(P+4*ti, 4), (ti & 1)*2048))
        a('s_waitcnt lgkmcnt(0)')
        a('s_barrier')
        for t in range(4):
            for ii in range(2):
                a('ds_read_b64_tr_b16 %s, %s offset:%d' % (vr(O+4*t+2*ii, 2), v(V.X3r), ii*256+t*1024))
        for t in range(4):
            a('s_waitcnt lgkmcnt(%d)' % (6-2*t))
            self.mf16(D+4*t, V.F16, O+4*t)
            self.mf16(D+16+4*t, V.F16+4, O+4*t)
        for t in range(3):
            for r in range(4): self.cvt(P+4*r+t, D+16+4*t+r, D+4*t+r)
        for r in range(4):
            self.cvt(P+4*r+3, D+16+12+r, D+12+r)
            a('buffer_store_dwordx4 %s, %s, %s, %s offen %s' % (vr(P+4*r, 4), v(V.Ooff), SOUT, sO[r], self.o['sto']))

    def flush_tail(self):
        t, self.tail = self.tail, []
        for f in t: f()

    def kernel_head(self, name):
        self.a.raw('.globl %s\n.p2align 8\n.type %s,@function\n%s:' % (name, name, name))
    def kd(self, name):
        return '''.p2align 6
.amdhsa_kernel %s
  .amdhsa_next_free_vgpr %d
  .amdhsa_next_free_sgpr 100
  .amdhsa_accum_offset %d
  .amdhsa_group_segment_fixed_size 0
  .amdhsa_kernarg_size 72
  .amdhsa_user_sgpr_count 2
  .amdhsa_user_sgpr_kernarg_segment_ptr 1
  .amdhsa_system_sgpr_workgroup_id_x 1
.end_amdhsa_kernel''' % (name, NVGPR, (NVGPR+3)//4*4)

    def build_three(self):
        a = self.a
        names = ['gf_p1_kernel', 'gf_p2_kernel', 'gf_p3_kernel']
        self.kernel_head(names[0]); end = self.label('end')
        self.prologue(end); self.p1_load(); a('s_waitcnt lgkmcnt(0)'); self.p1_issue()
        self.ex_addrs(); self.p1_addrs(); self.gen_F16(); self.gen_M2()
        self.p1_compute(0)
        if self.o['ts']: self.stamp(); a('s_waitcnt vmcnt(0)'); self.stamp(); self.dump_stamps(0)
        a(end+':'); a('s_endpgm'); self.flush_tail()
        self.kernel_head(names[1]); end = self.label('end')
        self.prologue(end); self.ex_addrs(); self.calc_k0(); a('s_waitcnt lgkmcnt(0)')
        self.w_dma(); self.p2_addrs(); self.gen_B(); self.gen_F32TW()
        a('s_waitcnt vmcnt(0)'); self.w_regs(); a('s_waitcnt lgkmcnt(0)')
        self.p2_issue(); self.p2_compute()
        if self.o['ts']: self.stamp(); a('s_waitcnt vmcnt(0)'); self.stamp(); self.dump_stamps(8)
        a(end+':'); a('s_endpgm'); self.flush_tail()
        self.kernel_head(names[2]); end = self.label('end')
        self.prologue(end); self.ex_addrs(); a('s_waitcnt lgkmcnt(0)'); self.p3_issue()
        self.p3_addrs(); self.p3_soff(); self.gen_F16(); self.gen_M3()
        self.p3_compute()
        if self.o['ts']: self.stamp(); a('s_waitcnt vmcnt(0)'); self.stamp(); self.dump_stamps(16)
        a(end+':'); a('s_endpgm'); self.flush_tail()
        launch = ''.join('; @launch kernel=%s grid=(256,1,1) block=(512,1,1) lds=%d\n' % (n, LDS_TOTAL) for n in names)
        return self.finish(launch, names)

    def flag_addrs(self):
        a = self.a
        a('s_lshl_b32 %s, %s, 13' % (sA, sP)); a('s_add_u32 %s, %s, 0x%x' % (sA, sA, WS_FLAG))
        a('s_lshr_b32 %s, %s, 4' % (sB, sT))
        a('s_lshl_b32 %s, %s, 10' % (sF, sW)); a('s_add_u32 %s, %s, %s' % (sF, sF, sA))
        a('s_lshl_b32 %s, %s, 7' % (sC, sB)); a('s_add_u32 %s, %s, %s' % (sF, sF, sC))
        a('s_lshl_b32 %s, %s, 10' % (sE, sB)); a('s_add_u32 %s, %s, %s' % (sE, sE, sA))
        a('s_lshl_b32 %s, %s, 7' % (sC, sW)); a('s_add_u32 %s, %s, %s' % (sE, sE, sC))
        a('s_lshl_b32 %s, %s, 7' % (sRd, sP))
    def zero_flags(self):
        a = self.a; l0, l1 = self.label('zf'), self.label('zfend')
        a('s_cmp_eq_u32 %s, %d' % (sT, ZT))
        a('s_cbranch_scc1 %s' % l0)
        a(l1+':')
        def tail():
            a(l0+':')
            a('s_lshl_b32 %s, %s, 13' % (sA, sP)); a('s_add_u32 %s, %s, 0x%x' % (sA, sA, WS_FLAG))
            a('s_lshl_b32 %s, %s, 10' % (sB, sW)); a('s_add_u32 %s, %s, %s' % (sA, sA, sB))
            a('s_add_u32 s28, s24, %s' % sA); a('s_addc_u32 s29, s25, 0')
            for i in range(8):
                a('s_mov_b32 s%d, 0' % (84+i))
                a('s_atomic_swap s%d, s[28:29], 0x%x glc' % (84+i, 128*i))
            a('s_branch %s' % l1)
        self.tail.append(tail)
    def set_ready(self):
        a = self.a; l0, l1 = self.label('sr'), self.label('srend')
        a('s_cmp_eq_u32 %s, %d' % (sT, ZT))
        a('s_cbranch_scc1 %s' % l0)
        a(l1+':')
        def tail():
            a(l0+':')
            a('s_mov_b32 %s, 1' % sInc)
            a('s_waitcnt lgkmcnt(0)')
            a('s_atomic_add %s, s[20:21], %s' % (sInc, sRd))
            a('s_branch %s' % l1)
        self.tail.append(tail)
    def ready_issue(self):
        self.a('s_load_dword %s, s[20:21], %s' % (sRv, sRd))
    def ready_check(self):
        a = self.a; l0, l1 = self.label('rdy'), self.label('rdyok')
        a('s_cmp_lg_u32 %s, 8' % sRv)
        a('s_cbranch_scc1 %s' % l0)
        a(l1+':')
        def tail():
            lp = self.label('rdyl')
            a(l0+':')
            a('s_mov_b32 %s, 0' % sCnt)
            a('v_mov_b32 %s, 0' % v(V.O+1))
            a(lp+':')
            a('buffer_load_dword %s, %s, %s, %s offen sc1' % (v(V.O), v(V.O+1), SDBG, sRd))
            a('s_add_u32 %s, %s, 1' % (sCnt, sCnt))
            a('s_cmp_gt_u32 %s, 0x%x' % (sCnt, SPIN_MAX))
            a('s_waitcnt vmcnt(0)')
            a('s_cbranch_scc1 %s' % l1)
            a('v_cmp_ne_u32 vcc, 8, %s' % v(V.O))
            a('s_cbranch_vccnz %s' % lp)
            a('s_branch %s' % l1)
        self.tail.append(tail)
    def set_flag(self, ex):
        a = self.a
        a('s_mov_b32 %s, 0x%x' % (sInc, 1 << (16*ex)))
        a('s_atomic_add %s, s[24:25], %s' % (sInc, sF))
    def poll(self, ex):
        a = self.a; lp, ok = self.label('poll'), self.label('pollok')
        a('s_mov_b32 %s, 0' % sCnt)
        a(lp+':')
        a('s_mov_b32 %s, 0' % sRv)
        a('s_atomic_add %s, s[24:25], %s glc' % (sRv, sE))
        a('s_add_u32 %s, %s, 1' % (sCnt, sCnt))
        a('s_cmp_gt_u32 %s, 0x%x' % (sCnt, SPIN_MAX))
        a('s_waitcnt lgkmcnt(0)')
        a('s_cbranch_scc1 %s' % ok)
        a('s_bitcmp0_b32 %s, %d' % (sRv, 4+16*ex))
        a('s_cbranch_scc1 %s' % lp)
        a(ok+':')
        if self.o['pbar']: a('s_barrier')
    def code_pf(self, name):
        a = self.a
        l = self.label('pc')
        a('s_getpc_b64 s[28:29]')
        a(l+':')
        a('s_sub_u32 s28, s28, %s-%s' % (l, name))
        a('s_subb_u32 s29, s29, 0')
        a('v_lshlrev_b32 %s, 5, v0' % v(V.O+6))
        a('global_load_dword %s, %s, s[28:29]' % (v(V.dummy), v(V.O+6)))

    def cond(self, reg, val, f):
        a = self.a; l = self.label('c')
        a('s_cmp_lg_u32 %s, %d' % (reg, val)); a('s_cbranch_scc1 %s' % l)
        f()
        a(l+':')

    def build_one(self):
        a = self.a; o = self.o
        name = NAME + '_kernel'
        self.kernel_head(name); end = self.label('end')
        self.prologue(end); self.p1_load(); self.calc_k0()
        wA, wB = o['wA'], o['wB']
        a('s_mov_b32 %s, %s' % (sCl, sP))
        if wA == 'postX1':
            assert wB != 'postX1'
            a('s_cmp_eq_u32 %s, 0' % sT); a('s_cselect_b32 %s, 1, %s' % (sCl, sCl))
        def wat(pos, f=None):
            f = f or self.w_dma
            if wA == pos and wB == pos: f()
            elif wA == pos: self.cond(sCl, 0, f)
            elif wB == pos: self.cond(sCl, 1, f)
        na = (1 if o['pf'] else 0)
        a('s_waitcnt lgkmcnt(0)')
        self.zero_flags()
        wat('first')
        self.p1_issue()
        self.ex_addrs(); self.p1_addrs(); self.flag_addrs(); self.gen_F16()
        self.set_ready()
        if o['pf']: self.code_pf(name)
        self.gen_M2(); self.coop_gen()
        def hook1():
            self.spec_early(); wat('c1pre')
        self.p1_compute(na, hook1, lambda: wat('c1post'))
        self.stamp()
        self.ready_issue()
        self.coop_read()
        self.p2_addrs(); self.gen_B(True)
        if 'postS1' in (wA, wB):
            def f():
                self.w_dma(); a('s_waitcnt vmcnt(8)')
            if wA == wB: f()
            else:
                cl = 0 if wA == 'postS1' else 1
                self.cond(sCl, cl, f); self.cond(sCl, 1-cl, lambda: a('s_waitcnt vmcnt(0)'))
            a('s_waitcnt lgkmcnt(0)')
        else: a('s_waitcnt vmcnt(0) lgkmcnt(0)')
        self.stamp()
        self.ready_check()
        self.set_flag(0)
        def wr():
            a('s_waitcnt vmcnt(0)'); self.w_regs()
        if wA == 'postX1': self.cond(sCl, 1, wr)
        else: wr()
        self.poll(0)
        self.stamp()
        if self.o.get('fine'):
            a('s_memrealtime s[%d:%d]' % (sTS+2*self.nts, sTS+2*self.nts+1)); self.nts += 1
            self.fstamp()
        self.p2_issue()
        def wr2():
            a('s_waitcnt vmcnt(0)'); self.w_regs(False)
        self.p2_compute(0, lambda: wat('postX1'), lambda: wat('postX1', wr2))
        self.stamp()
        self.p3_addrs(); self.gen_M3()
        a('s_waitcnt vmcnt(0)')
        self.stamp()
        self.set_flag(1)
        self.p3_soff()
        self.poll(1)
        self.stamp()
        self.p3_issue()
        self.p3_compute()
        if o['ts']:
            self.stamp(); a('s_waitcnt vmcnt(0)'); self.stamp()
            if 'diag' in o:
                i = int(o['diag']); lp = self.label('dg')
                a('s_waitcnt lgkmcnt(0)')
                a('s_sub_u32 %s, s%d, s%d' % (sA, sTS+2*i, sTS))
                a('s_lshl_b32 %s, %s, 1' % (sA, sA))
                a('s_add_u32 %s, %s, 3000' % (sA, sA))
                a(lp+':')
                a('s_memrealtime s[28:29]')
                a('s_waitcnt lgkmcnt(0)')
                a('s_sub_u32 %s, s28, s%d' % (sB, sTS))
                a('s_cmp_lt_u32 %s, %s' % (sB, sA))
                a('s_cbranch_scc1 %s' % lp)
            else: self.dump_stamps(0)
        a(end+':'); a('s_endpgm'); self.flush_tail()
        a.raw('.fill (%s+16384-.)/4, 4, 0xbf810000' % name)
        launch = '; @launch grid=(256,1,1) block=(512,1,1) lds=%d\n' % LDS_TOTAL
        return self.finish(launch, [name])

    def finish(self, launch, names):
        hdr = '; GFNet spectral filter (two heads): 2-D FFT via bf16 MFMA DFT stages. Generated by dev/gen.py\n' + launch
        s = hdr + '.amdgcn_target "amdgcn-amd-amdhsa--gfx950"\n.text\n' + self.a.text()
        s += '.section .rodata,"a"\n' + '\n'.join(self.kd(n) for n in names) + '\n' + self.spec_table() + '\n'
        return s

if __name__ == '__main__':
    mode = sys.argv[1]; out = sys.argv[2]
    opt = {}
    for kv in sys.argv[3:]:
        k, x = kv.split('=')
        opt[k] = {'True': True, 'False': False}.get(x, x.replace('+', ' '))
    g = Gen(mode, **opt)
    s = g.build_three() if mode == 'three' else g.build_one()
    assert g.a.verify() == 0
    open(out, 'w').write(s)
    print('vgprs', NVGPR, 'lds', LDS_TOTAL, 'nops', g.a.nops, 'lines', len(g.a.ins))
```

```python
import sys, struct, math
import numpy as np
from asmlib import Asm

NAME = 'concat_heads__spectral_gfnet__spectral_gfnet__prompt'

def f2u(x): return struct.unpack('<I', struct.pack('<f', x))[0]
def lit(x): return '0x%08x' % f2u(x)
def bf16bits(x):
    u = f2u(float(x)); return ((u + 0x7FFF + ((u >> 16) & 1)) >> 16) & 0xFFFF
def sigma(m): return (m & 1) | ((m >> 1) & 1) << 3 | ((m >> 2) & 1) << 1 | ((m >> 3) & 1) << 2 | (m & 16)

S11 = 2.0**-11
SPIN_MAX = 0x4000
R0 = 0
R1 = 33024
WL = 66048
SCR = WL + 8*4*1056
SCR_B = SCR + 36*256
TABL = SCR_B + 8192
CNT = TABL + 16384
LDS_TOTAL = CNT + 64
WS_U1 = 0
WS_U2 = 8 << 20
WS_FLAG = 16 << 20
WS_TS = 17 << 20
WS_SIZE = 18 << 20

class V: pass
_n = [0]
def alloc(n, align=1):
    b = (_n[0] + align - 1)//align*align
    _n[0] = b + n
    return b
V.tid = alloc(1); V.lane = alloc(1)
for nm in 'g n Xoff Est Eld X0w X0r0 X0r1 X1w X1r X2w X2r WP WM l16 dummy dummy2'.split(): setattr(V, nm, alloc(1))
V.Ooff, V.X3w0, V.X3w1, V.X3r = V.Xoff, V.X0w, V.X0r0, V.X0r1
V.T = alloc(10, 2)
V.O = alloc(16, 4)
V.DA = alloc(32, 4)
V.DB = alloc(32, 4)
V.L = V.DB
V.F16 = alloc(8, 4)
V.M2 = alloc(16, 4)
V.F32 = alloc(32, 4)
V.TW = alloc(32, 4)
V.W = alloc(32, 4)
V.B = alloc(12, 4)
V.Bp = alloc(8, 4)
V.WF = alloc(4)
NVGPR = _n[0]
assert NVGPR <= 256, NVGPR
def v(i): return 'v%d' % i
def vr(i, n): return 'v[%d:%d]' % (i, i+n-1)

SX, SWR, SWI, SOUT, SDBG, SWS = 's[4:7]', 's[8:11]', 's[12:15]', 's[16:19]', 's[20:23]', 's[24:27]'
sP, sT, sW, sSB, sCB, sK0 = 's30', 's31', 's32', 's33', 's34', 's35'
sKP, sKM = 's36', 's37'
sA, sB, sC, sD, sE, sF = 's40', 's41', 's42', 's43', 's44', 's45'
sEst, sEld, sCnt, sSpec = 's46', 's47', 's48', 's49'
sO = ['s52', 's53', 's54', 's55']
sRd, sRv, sInc, sWL = 's38', 's39', 's50', 's51'
ZT = 16
sTS = 56

class Gen:
    def __init__(self, mode='one', **opt):
        self.mode = mode
        self.o = dict(ldx='', ldw='', st1='sc1', st2='sc1', sto='sc1', ld1='sc1', ld2='sc1', ts=False, stagger=True, pf=False, spf=False, fst='sc1', fld='sc1', slp='', fsh='', pbar=False, shear=True, prio=True, wP='postX1', wM='postX1', bdelay='0', skew=True, fstride=12)
        self.o.update(opt)
        self.a = Asm()
        self.lab = 0
        self.nts = 0
        self.tail = []

    def label(self, p='L'):
        self.lab += 1
        return '%s_%d' % (p, self.lab)

    def stamp(self):
        if not self.o['ts'] or self.o.get('fine'): return
        self.a('s_memrealtime s[%d:%d]' % (sTS+2*self.nts, sTS+2*self.nts+1))
        self.nts += 1

    def fstamp(self):
        if not self.o.get('fine'): return
        self.a('s_memtime s[%d:%d]' % (sTS+2*self.nts, sTS+2*self.nts+1))
        self.nts += 1

    def dump_stamps(self, slot0=0):
        if not self.o['ts']: return
        a = self.a
        a('s_waitcnt lgkmcnt(0)')
        a('s_lshl_b32 %s, s2, 3' % sA); a('s_add_u32 %s, %s, %s' % (sA, sA, sW)); a('s_lshl_b32 %s, %s, 7' % (sA, sA))
        a('s_add_u32 %s, %s, 0x%x' % (sA, sA, WS_TS + slot0*4))
        a('s_mov_b64 exec, 1')
        a('v_mov_b32 %s, 0' % v(V.T+1))
        for i in range(self.nts):
            a('v_mov_b32 %s, s%d' % (v(V.T), sTS+2*i))
            a('buffer_store_dword %s, %s, %s, %s offen offset:%d' % (v(V.T), v(V.T+1), SWS, sA, 4*i))
            a('s_nop 1')
        a('s_mov_b64 exec, -1')
        self.nts = 0

    def prologue(self, end):
        a = self.a
        a('s_cmp_ge_u32 s2, 0x100')
        a('s_cbranch_scc1 %s' % end)
        self.stamp()
        a('s_bfe_u32 %s, s2, 0x10003' % sP)
        a('s_mul_i32 s3, %s, 24' % sP)
        a('s_add_u32 s28, s0, s3')
        a('s_addc_u32 s29, s1, 0')
        a('s_load_dwordx2 s[4:5], s[28:29], 0x0')
        a('s_load_dwordx2 s[8:9], s[28:29], 0x8')
        a('s_load_dwordx2 s[12:13], s[28:29], 0x10')
        a('s_load_dwordx2 s[16:17], s[0:1], 0x30')
        a('s_load_dwordx2 s[20:21], s[0:1], 0x38')
        a('s_load_dwordx2 s[24:25], s[0:1], 0x40')
        a('v_lshrrev_b32 %s, 6, v0' % v(V.T))
        a('v_and_b32 %s, 63, v0' % v(V.lane))
        a('v_readfirstlane_b32 %s, %s' % (sW, v(V.T)))
        a('s_and_b32 %s, s2, 7' % sA)
        a('s_xor_b32 %s, %s, 2' % (sA, sA))
        a('s_lshl_b32 %s, %s, 4' % (sT, sA))
        a('s_lshr_b32 %s, s2, 4' % sB)
        a('s_or_b32 %s, %s, %s' % (sT, sT, sB))
        a('s_lshl_b32 %s, %s, 1' % (sCB, sA))
        a('s_bfe_u32 %s, %s, 0x10001' % (sC, sB))
        a('s_or_b32 %s, %s, %s' % (sCB, sCB, sC))
        a('s_bfe_u32 %s, %s, 0x20002' % (sSB, sB))
        a('s_lshl_b32 %s, %s, 1' % (sSB, sSB))
        a('s_and_b32 %s, %s, 1' % (sC, sB))
        a('s_or_b32 %s, %s, %s' % (sSB, sSB, sC))
        a('s_mov_b32 s6, 0x400000'); a('s_mov_b32 s7, 0x20000')
        a('s_mov_b32 s10, 2101248'); a('s_mov_b32 s11, 0x20000')
        a('s_mov_b32 s14, 2101248'); a('s_mov_b32 s15, 0x20000')
        a('s_mov_b32 s18, 0x800000'); a('s_mov_b32 s19, 0x20000')
        a('s_mov_b32 s22, 256'); a('s_mov_b32 s23, 0x20000')
        a('s_mov_b32 s26, 0x%x' % WS_SIZE); a('s_mov_b32 s27, 0x20000')
        a('v_lshrrev_b32 %s, 4, %s' % (v(V.g), v(V.lane)))
        a('v_and_b32 %s, 15, %s' % (v(V.n), v(V.lane)))
        a('v_lshlrev_b32 %s, 4, %s' % (v(V.l16), v(V.lane)))

    def prologue1(self, end):
        a = self.a; T = V.T
        a('s_cmp_ge_u32 s2, 0x100')
        a('s_cbranch_scc1 %s' % end)
        a('s_bfe_u32 %s, s2, 0x10003' % sP)
        a('s_mul_i32 s3, %s, 24' % sP)
        a('s_load_dwordx2 s[4:5], s[0:1], s3')
        a('s_load_dwordx2 s[24:25], s[0:1], 0x40')
        a('s_load_dwordx2 s[8:9], s[0:1], s3 offset:8')
        a('s_load_dwordx2 s[12:13], s[0:1], s3 offset:16')
        a('s_load_dwordx2 s[16:17], s[0:1], 0x30')
        a('s_load_dwordx2 s[20:21], s[0:1], 0x38')
        self.stamp()
        a('v_lshrrev_b32 %s, 6, v0' % v(T))
        a('v_and_b32 %s, 63, v0' % v(V.lane))
        a('v_readfirstlane_b32 %s, %s' % (sW, v(T)))
        a('s_and_b32 %s, s2, 7' % sA)
        a('s_xor_b32 %s, %s, 2' % (sA, sA))
        a('s_lshr_b32 %s, s2, 4' % sB)
        a('s_lshl4_add_u32 %s, %s, %s' % (sT, sA, sB))
        a('s_bfe_u32 %s, %s, 0x10001' % (sC, sB))
        a('s_lshl1_add_u32 %s, %s, %s' % (sCB, sA, sC))
        a('s_lshr_b32 %s, %s, 2' % (sSB, sB))
        a('s_and_b32 %s, %s, 1' % (sC, sB))
        a('s_lshl1_add_u32 %s, %s, %s' % (sSB, sSB, sC))
        a('s_mov_b32 s6, 0x400000'); a('s_mov_b32 s7, 0x20000')
        a('v_lshrrev_b32 %s, 4, %s' % (v(V.g), v(V.lane)))
        a('v_lshlrev_b32 %s, 4, %s' % (v(V.l16), v(V.lane)))
        a('v_and_b32 %s, 8, v0' % v(T))
        a('v_lshlrev_b32 %s, 11, %s' % (v(T), v(T)))
        a('v_lshl_add_u32 %s, %s, 20, %s' % (v(T), v(V.g), v(T)))
        a('v_and_b32 %s, 0x70, %s' % (v(T+1), v(V.l16)))
        a('v_add_u32 %s, %s, %s' % (v(V.Xoff), v(T), v(T+1)))
        a('s_lshl4_add_u32 %s, %s, %s' % (sA, sW, sSB))
        a('s_lshl4_add_u32 %s, %s, %s' % (sA, sA, sCB))
        a('s_lshl_b32 %s, %s, 7' % (sO[0], sA))
        for r in range(1, 4): a('s_add_u32 %s, %s, 0x%x' % (sO[r], sO[0], r*262144))
        a('v_and_b32 %s, 15, %s' % (v(V.n), v(V.lane)))
        a('s_mov_b32 s26, 0x%x' % WS_SIZE); a('s_mov_b32 s27, 0x20000')
        a('s_lshl_b32 %s, %s, 7' % (sRd, sP))
    def srds(self):
        a = self.a
        a('s_mov_b32 s10, 2101248'); a('s_mov_b32 s11, 0x20000')
        a('s_mov_b32 s14, 2101248'); a('s_mov_b32 s15, 0x20000')
        a('s_mov_b32 s18, 0x800000'); a('s_mov_b32 s19, 0x20000')
        a('s_mov_b32 s22, 256'); a('s_mov_b32 s23, 0x20000')

    def ex_addrs(self):
        a = self.a
        if self.o['skew']:
            T = V.T
            a('s_lshl_b32 %s, %s, 4' % (sB, sW)); a('s_xor_b32 %s, %s, %s' % (sB, sB, sT)); a('s_lshl_b32 %s, %s, 8' % (sB, sB))
            a('v_lshlrev_b32 %s, 4, %s' % (v(T), v(V.n)))
            a('v_lshl_add_u32 %s, %s, 10, %s' % (v(T), v(V.g), v(T)))
            a('v_xor_b32 %s, %s, %s' % (v(T), sB, v(T)))
            a('v_lshl_add_u32 %s, %s, 17, %s' % (v(V.Est), v(V.g), v(T)))
            a('v_and_b32 %s, 0x7cff, %s' % (v(V.Eld), v(T)))
            a('s_lshl_b32 %s, %s, 22' % (sA, sP))
            a('s_lshl_b32 %s, %s, 19' % (sEst, sW)); a('s_add_u32 %s, %s, %s' % (sEst, sEst, sA))
            a('s_lshl_b32 %s, %s, 15' % (sEld, sT)); a('s_add_u32 %s, %s, %s' % (sEld, sEld, sA))
            return
        a('v_lshlrev_b32 %s, 4, %s' % (v(V.T), v(V.n)))
        a('v_lshl_add_u32 %s, %s, 17, %s' % (v(V.Est), v(V.g), v(V.T)))
        a('v_lshl_add_u32 %s, %s, 10, %s' % (v(V.Eld), v(V.g), v(V.T)))
        a('s_lshl_b32 %s, %s, 22' % (sA, sP))
        a('s_lshl_b32 %s, %s, 19' % (sEst, sW)); a('s_add_u32 %s, %s, %s' % (sEst, sEst, sA))
        a('s_lshl_b32 %s, %s, 8' % (sB, sT)); a('s_add_u32 %s, %s, %s' % (sEst, sEst, sB))
        a('s_lshl_b32 %s, %s, 15' % (sEld, sT)); a('s_add_u32 %s, %s, %s' % (sEld, sEld, sA))
        a('s_lshl_b32 %s, %s, 12' % (sB, sW)); a('s_add_u32 %s, %s, %s' % (sEld, sEld, sB))

    def trig(self, x, re, im, conj_re=None, conj_im=None):
        a = self.a; c, s = V.T+8, V.T+9
        a('v_cos_f32 %s, %s' % (v(c), v(x)))
        a('v_sin_f32 %s, %s' % (v(s), v(x)))
        a('v_cvt_pk_bf16_f32 %s, %s, %s' % (v(re), v(c), v(s)))
        a('v_cvt_pk_bf16_f32 %s, -%s, %s' % (v(im), v(s), v(c)))
        if conj_re is not None:
            a('v_cvt_pk_bf16_f32 %s, %s, -%s' % (v(conj_re), v(c), v(s)))
            a('v_cvt_pk_bf16_f32 %s, %s, %s' % (v(conj_im), v(s), v(c)))

    def gen_F16(self):
        a = self.a; T = V.T
        a('v_cvt_f32_u32 %s, %s' % (v(T), v(V.n)))
        a('v_mul_f32 %s, %s, %s' % (v(T), lit(1/16), v(T)))
        a('v_cvt_f32_u32 %s, %s' % (v(T+1), v(V.g)))
        a('v_mul_f32 %s, 4.0, %s' % (v(T+1), v(T+1)))
        a('v_mul_f32 %s, %s, %s' % (v(T+2), v(T), v(T+1)))
        for r in range(4):
            self.trig(T+2, V.F16+r, V.F16+4+r)
            if r < 3: a('v_add_f32 %s, %s, %s' % (v(T+2), v(T+2), v(T)))

    def gen_M2(self):
        a = self.a; T = V.T
        l0, l1 = self.label('M2w0'), self.label('M2end')
        a('v_cvt_f32_u32 %s, %s' % (v(T+1), v(V.g)))
        a('v_mul_f32 %s, 4.0, %s' % (v(T+1), v(T+1)))
        a('s_cmp_eq_u32 %s, 0' % sW)
        a('s_cbranch_scc1 %s' % l0)
        a('v_lshl_add_u32 %s, %s, 4, %s' % (v(T), v(V.n), sW))
        a('v_cvt_f32_u32 %s, %s' % (v(T), v(T)))
        a('v_mul_f32 %s, %s, %s' % (v(T), lit(1/256), v(T)))
        a('v_mul_f32 %s, %s, %s' % (v(T+2), v(T), v(T+1)))
        for r in range(4):
            self.trig(T+2, V.M2+r, V.M2+4+r, V.M2+8+r, V.M2+12+r)
            if r < 3: a('v_add_f32 %s, %s, %s' % (v(T+2), v(T+2), v(T)))
        a(l1+':')
        def tail():
            a(l0+':')
            for ts in range(2):
                a('v_lshrrev_b32 %s, 1, %s' % (v(T), v(V.n)))
                a('v_lshlrev_b32 %s, 4, %s' % (v(T), v(T)))
                if ts: a('v_add_u32 %s, 8, %s' % (v(T), v(T)))
                else:
                    a('v_mov_b32 %s, 0x80' % v(T+3))
                    a('v_cmp_eq_u32 vcc, 1, %s' % v(V.n))
                    a('v_cndmask_b32 %s, %s, %s, vcc' % (v(T), v(T), v(T+3)))
                a('v_cvt_f32_u32 %s, %s' % (v(T), v(T)))
                a('v_mul_f32 %s, %s, %s' % (v(T), lit(1/256), v(T)))
                a('v_lshlrev_b32 %s, 31, %s' % (v(T+3), v(V.n)))
                a('v_xor_b32 %s, %s, %s' % (v(T), v(T), v(T+3)))
                a('v_mul_f32 %s, %s, %s' % (v(T+2), v(T), v(T+1)))
                for r in range(4):
                    self.trig(T+2, V.M2+8*ts+r, V.M2+8*ts+4+r)
                    if r < 3: a('v_add_f32 %s, %s, %s' % (v(T+2), v(T+2), v(T)))
            a('s_branch %s' % l1)
        self.tail.append(tail)

    def gen_M3(self):
        a = self.a; T = V.T
        l0, l1 = self.label('M3w0'), self.label('M3end')
        a('v_cvt_f32_u32 %s, %s' % (v(T), v(V.n)))
        a('v_mul_f32 %s, %s, %s' % (v(T+1), lit(1/256), v(T)))
        a('v_mul_f32 %s, %s, %s' % (v(T), lit(1/16), v(T)))
        a('s_cmp_eq_u32 %s, 0' % sW)
        a('s_cbranch_scc1 %s' % l0)
        a('v_lshl_add_u32 %s, %s, 6, %s' % (v(T+2), v(V.g), sW))
        a('v_cvt_f32_u32 %s, %s' % (v(T+2), v(T+2)))
        a('v_mul_f32 %s, %s, %s' % (v(T+2), v(T+2), v(T+1)))
        for r in range(4):
            self.trig(T+2, V.M2+r, V.M2+4+r, V.M2+8+r, V.M2+12+r)
            if r < 3: a('v_add_f32 %s, %s, %s' % (v(T+2), v(T+2), v(T)))
        a(l1+':')
        def tail():
            a(l0+':')
            for ts in range(2):
                a('v_lshlrev_b32 %s, 5, %s' % (v(T+2), v(V.g)))
                if ts: a('v_add_u32 %s, 8, %s' % (v(T+2), v(T+2)))
                a('v_cvt_f32_u32 %s, %s' % (v(T+2), v(T+2)))
                a('v_mul_f32 %s, %s, %s' % (v(T+2), v(T+2), v(T+1)))
                for eb in range(2):
                    b = V.M2+8*ts
                    self.trig(T+2, b+2*eb, b+4+2*eb, b+2*eb+1, b+4+2*eb+1)
                    if eb == 0: a('v_add_f32 %s, %s, %s' % (v(T+2), v(T+2), v(T)))
            a('s_mov_b64 exec, 0xffff')
            a('v_lshlrev_b32 %s, 15, %s' % (v(T+2), v(V.n)))
            a('v_and_b32 %s, 0x8000, %s' % (v(T+2), v(T+2)))
            a('v_or_b32 %s, 0x3f80, %s' % (v(V.M2+1), v(T+2)))
            a('v_lshlrev_b32 %s, 16, %s' % (v(V.M2+5), v(V.M2+1)))
            a('s_mov_b64 exec, -1')
            a('s_branch %s' % l1)
        self.tail.append(tail)

    def sigma_lane(self, dst):
        a = self.a; T = V.T
        a('v_and_b32 %s, 17, %s' % (v(dst), v(V.lane)))
        a('v_bfe_u32 %s, %s, 2, 2' % (v(T+7), v(V.lane)))
        a('v_lshl_add_u32 %s, %s, 1, %s' % (v(dst), v(T+7), v(dst)))
        a('v_bfe_u32 %s, %s, 1, 1' % (v(T+7), v(V.lane)))
        a('v_lshl_add_u32 %s, %s, 3, %s' % (v(dst), v(T+7), v(dst)))

    def gen_F32TW(self):
        a = self.a; T = V.T
        self.sigma_lane(T)
        a('v_cvt_f32_u32 %s, %s' % (v(T), v(T)))
        a('v_mul_f32 %s, %s, %s' % (v(T), lit(1/1024), v(T)))
        a('v_lshrrev_b32 %s, 5, %s' % (v(T+1), v(V.lane)))
        a('v_cvt_f32_u32 %s, %s' % (v(T+1), v(T+1)))
        a('v_add_f32 %s, %s, %s' % (v(T+1), v(T+1), v(T+1)))
        a('v_mul_f32 %s, %s, %s' % (v(T+1), v(T+1), v(T)))
        for rho in range(16):
            k = sigma(8*(rho >> 2) + (rho & 3))
            a('v_fmamk_f32 %s, %s, %s, %s' % (v(T+2), v(T), lit(float(k)), v(T+1)))
            a('v_mul_f32 %s, %s, %s' % (v(T+3), lit(32.0), v(T+2)))
            a('v_cos_f32 %s, %s' % (v(V.TW+rho), v(T+2)))
            a('v_sin_f32 %s, %s' % (v(V.TW+16+rho), v(T+2)))
            self.trig(T+3, V.F32+rho, V.F32+16+rho)

    def coop_gen(self):
        a = self.a; T = V.T; X = V.DA
        self.sigma_lane(T)
        a('v_cvt_f32_u32 %s, %s' % (v(T), v(T)))
        a('v_mul_f32 %s, %s, %s' % (v(T), lit(1/1024), v(T)))
        a('s_and_b32 %s, %s, 1' % (sA, sW)); a('s_lshl_b32 %s, %s, 3' % (sA, sA))
        a('s_and_b32 %s, %s, 2' % (sB, sW)); a('s_lshl_b32 %s, %s, 1' % (sB, sB)); a('s_add_u32 %s, %s, %s' % (sA, sA, sB))
        a('s_and_b32 %s, %s, 4' % (sB, sW)); a('s_lshl_b32 %s, %s, 2' % (sB, sB)); a('s_add_u32 %s, %s, %s' % (sA, sA, sB))
        a('v_lshrrev_b32 %s, 5, %s' % (v(T+1), v(V.lane)))
        a('v_lshl_add_u32 %s, %s, 1, %s' % (v(T+1), v(T+1), sA))
        a('v_cvt_f32_u32 %s, %s' % (v(T+1), v(T+1)))
        a('v_mul_f32 %s, %s, %s' % (v(T+2), v(T+1), v(T)))
        for e in range(2):
            a('v_mul_f32 %s, %s, %s' % (v(T+3), lit(32.0), v(T+2)))
            if self.o['shear']:
                a('v_mul_f32 %s, 0.5, %s' % (v(T+4), v(T+2)))
                a('v_cos_f32 %s, %s' % (v(T+5), v(T+4)))
                a('v_sin_f32 %s, %s' % (v(T+6), v(T+4)))
                a('v_rcp_f32 %s, %s' % (v(T+5), v(T+5)))
                a('v_mul_f32 %s, %s, %s' % (v(X+4+e), v(T+6), v(T+5)))
                a('v_fma_f32 %s, %s, %s, 1.0' % (v(T+5), v(X+4+e), v(X+4+e)))
                a('v_rcp_f32 %s, %s' % (v(T+6), v(T+5)))
                a('v_fma_f32 %s, -%s, %s, 1.0' % (v(T+5), v(T+5), v(T+6)))
                a('v_fmac_f32 %s, %s, %s' % (v(T+6), v(T+5), v(T+6)))
                a('v_mul_f32 %s, -2.0, %s' % (v(T+6), v(T+6)))
                a('v_mul_f32 %s, %s, %s' % (v(X+6+e), v(T+6), v(X+4+e)))
            else:
                a('v_cos_f32 %s, %s' % (v(X+4+e), v(T+2)))
                a('v_sin_f32 %s, %s' % (v(X+6+e), v(T+2)))
            self.trig(T+3, X+e, X+2+e)
            if e == 0: a('v_add_f32 %s, %s, %s' % (v(T+2), v(T+2), v(T)))
        a('s_lshr_b32 %s, %s, 1' % (sA, sW)); a('s_lshl_b32 %s, %s, 10' % (sA, sA))
        a('s_and_b32 %s, %s, 1' % (sB, sW)); a('s_lshl_b32 %s, %s, 3' % (sB, sB)); a('s_add_u32 %s, %s, %s' % (sA, sA, sB))
        a('s_add_u32 %s, %s, %d' % (sA, sA, TABL))
        a('v_add_u32 %s, %s, %s' % (v(T), sA, v(V.l16)))
        for k in range(4):
            a('ds_write_b64 %s, %s offset:%d' % (v(T), vr(X+2*k, 2), 4096*k))
    def coop_init(self):
        a = self.a; T = V.T
        a('v_mov_b32 %s, %d' % (v(V.dummy2), CNT)); a('v_mov_b32 %s, 0' % v(T))
        a('ds_write_b32 %s, %s' % (v(V.dummy2), v(T)))
    def coop_post(self):
        a = self.a; T = V.T
        a('v_mov_b32 %s, 1' % v(T+1))
        a('ds_add_u32 %s, %s' % (v(V.dummy2), v(T+1)))
    def coop_wait(self):
        a = self.a; T = V.T; lp, ok = self.label('cw'), self.label('cwok')
        a('s_mov_b32 %s, 0' % sCnt)
        a(lp+':')
        a('ds_read_b32 %s, %s' % (v(T), v(V.dummy2)))
        a('s_add_u32 %s, %s, 1' % (sCnt, sCnt))
        a('s_cmp_gt_u32 %s, 0x%x' % (sCnt, SPIN_MAX*8))
        a('s_waitcnt lgkmcnt(0)')
        a('s_cbranch_scc1 %s' % ok)
        a('v_cmp_gt_u32 vcc, 0x200, %s' % v(T))
        a('s_cbranch_vccnz %s' % lp)
        a(ok+':')
    def coop_read(self):
        a = self.a; T = V.T
        assert V.TW == V.F32+32
        a('v_add_u32 %s, %d, %s' % (v(T), TABL, v(V.l16)))
        for k in range(16):
            a('ds_read_b128 %s, %s offset:%d' % (vr(V.F32+4*k, 4), v(T), 1024*k))

    def calc_k0(self):
        a = self.a
        a('s_lshr_b32 %s, %s, 4' % (sA, sT))
        a('s_and_b32 %s, %s, 15' % (sB, sT))
        a('s_lshl_b32 %s, %s, 4' % (sK0, sB))
        a('s_add_u32 %s, %s, %s' % (sK0, sK0, sA))
        a('s_lshr_b32 %s, %s, 2' % (sC, sB)); a('s_lshl_b32 %s, %s, 5' % (sC, sC))
        a('s_and_b32 %s, %s, 1' % (sD, sB)); a('s_lshl_b32 %s, %s, 4' % (sD, sD)); a('s_add_u32 %s, %s, %s' % (sC, sC, sD))
        a('s_and_b32 %s, %s, 2' % (sD, sB)); a('s_lshl_b32 %s, %s, 2' % (sD, sD)); a('s_add_u32 %s, %s, %s' % (sC, sC, sD))
        a('s_cmp_eq_u32 %s, 0' % sA)
        a('s_cselect_b32 %s, %s, %s' % (sK0, sC, sK0))
        a('s_cmp_eq_u32 %s, 0' % sT)
        a('s_cselect_b32 %s, 7, 8' % sA)
        a('s_lshl_b32 %s, %s, %s' % (sKP, sW, sA))
        a('s_add_u32 %s, %s, %s' % (sKP, sKP, sK0))
        a('s_sub_u32 %s, 0x800, %s' % (sKM, sKP))
        a('s_cmp_eq_u32 %s, 0' % sKP)
        a('s_cselect_b32 %s, 0x400, %s' % (sKM, sKM))
        a('s_cselect_b32 %s, 1, 0' % sSpec)
        a('s_mul_i32 %s, %s, 1026' % (sKP, sKP))
        a('s_mul_i32 %s, %s, 1026' % (sKM, sKM))

    def wq(self, rho): return (rho & 1) + 8*((rho >> 1) & 1) + 4*((rho >> 2) & 1)
    def w_prep(self):
        a = self.a
        a('s_mul_i32 %s, %s, 4224' % (sWL, sW))
        a('s_add_u32 %s, %s, %d' % (sWL, sWL, WL))
    def w_dma1(self, i):
        a = self.a
        srd, so = [(SWR, sKP), (SWI, sKP), (SWR, sKM), (SWI, sKM)][i]
        a('s_add_u32 m0, %s, %d' % (sWL, 1056*i))
        a('buffer_load_dwordx4 %s, %s, %s offen %s lds' % (v(V.l16), srd, so, self.o['ldw']))
    def w_dma(self):
        for i in range(4): self.w_dma1(i)
    def w_sload(self):
        a = self.a; T = V.T
        a('s_mov_b64 exec, 15')
        a('v_mov_b32 %s, %s' % (v(T), sKP)); a('v_mov_b32 %s, %s' % (v(T+1), sKM))
        a('s_mov_b64 vcc, 10')
        a('v_cndmask_b32 %s, %s, %s, vcc' % (v(T), v(T), v(T+1)))
        a('v_and_b32 %s, 2, %s' % (v(T+1), v(V.lane)))
        a('v_lshl_add_u32 %s, %s, 9, %s' % (v(T), v(T+1), v(T)))
        a('buffer_load_short_d16_hi %s, %s, %s, 0 offen' % (v(V.WF), v(T), SWR))
        a('buffer_load_short_d16_hi %s, %s, %s, 0 offen' % (v(V.WF+1), v(T), SWI))
        a('s_mov_b64 exec, -1')
    def w_edge_rl(self):
        a = self.a
        for l in range(4):
            for im in range(2):
                a('v_readlane_b32 s%d, %s, %d' % (84+2*l+im, v(V.WF+im), l))
    def w_edge(self):
        a = self.a; T = V.T
        self.w_edge_rl()
        for i, (x, y, op) in enumerate(((84, 86, 'add'), (85, 87, 'sub'), (90, 88, 'add'), (91, 89, 'sub'))):
            a('v_mov_b32 %s, s%d' % (v(T), y))
            a('v_%s_f32 %s, s%d, %s' % (op, v(V.WF+i), x, v(T)))
            a('v_mul_f32 %s, 0.5, %s' % (v(V.WF+i), v(V.WF+i)))
        a('s_mov_b64 s[92:93], 1')
    def w_addr(self):
        a = self.a; T = V.T
        self.sigma_lane(T)
        a('v_lshrrev_b32 %s, 5, %s' % (v(T+1), v(V.lane)))
        a('v_lshlrev_b32 %s, 7, %s' % (v(T+1), v(T+1)))
        a('v_lshl_add_u32 %s, %s, 1, %s' % (v(T), v(T), v(T+1)))
        a('v_add_u32 %s, %s, %s' % (v(V.WP), sWL, v(T)))
        a('s_add_u32 %s, %s, %d' % (sD, sWL, 1024-832))
        a('v_sub_u32 %s, %s, %s' % (v(V.WM), sD, v(T)))
    def w_read(self, rho, dst=None, swap=False):
        a = self.a; dst = V.W if dst is None else dst
        for im in range(2):
            if rho < 8: ad, off = V.WP, 64*self.wq(rho) + (2112 if swap else 0)
            else: ad, off = V.WM, 64*(13-self.wq(rho)) + (0 if swap else 2112)
            a('ds_read_u16_d16_hi %s, %s offset:%d' % (v(dst+16*im+rho), v(ad), off+1056*im))
    def w_fix(self, half):
        a = self.a
        for im in range(2):
            r = V.W+8*half+16*im
            a('v_cndmask_b32 %s, %s, %s, s[92:93]' % (v(r), v(r), v(V.WF+2*half+im)))
    def w_regs_early(self):
        a = self.a
        for rho in range(16): self.w_read(rho)
        a('s_waitcnt lgkmcnt(0)')
        self.w_fix(0); self.w_fix(1)
    def w_special(self):
        a = self.a; T = V.T
        l0, l1 = self.label('Wspec'), self.label('Wend')
        a('s_cmp_eq_u32 %s, 1' % sSpec)
        a('s_cbranch_scc1 %s' % l0)
        a(l1+':')
        def tail():
            X = V.DA
            a(l0+':')
            for rho in range(16): self.w_read(rho)
            for rho in range(16): self.w_read(rho, X, True)
            a('s_waitcnt lgkmcnt(0) vmcnt(0)')
            self.w_edge_rl()
            a('s_mov_b64 exec, 1')
            for r in (V.W+16, V.W+24, X+16, X+24): a('v_mov_b32 %s, 0' % v(r))
            a('v_mov_b32 %s, s90' % v(V.W+8)); a('v_mov_b32 %s, s88' % v(X+8))
            a('s_mov_b64 exec, -1')
            for i in range(32):
                a('v_add_f32 %s, %s, %s' % (v(T+3), v(V.W+i), v(X+i)))
                if (i & 15) < 8: a('v_sub_f32 %s, %s, %s' % (v(X+i), v(V.W+i), v(X+i)))
                else: a('v_sub_f32 %s, %s, %s' % (v(X+i), v(X+i), v(V.W+i)))
                a('v_mov_b32 %s, %s' % (v(V.W+i), v(T+3)))
            a('v_add_u32 %s, %d, %s' % (v(T+1), SCR_B, v(V.l16)))
            for i in range(8):
                a('ds_write_b128 %s, %s offset:%d' % (v(T+1), vr(X+4*i, 4), 1024*i))
            a('s_waitcnt lgkmcnt(0)')
            a('s_branch %s' % l1)
        self.tail.append(tail)

    def gen_B(self, early=False):
        a = self.a; T = V.T
        l0, l1 = self.label('Bspec'), self.label('Bend')
        a('s_cmp_eq_u32 %s, 0' % sT)
        a('s_cbranch_scc1 %s' % l0)
        c, s = T+8, T+9
        a('v_lshrrev_b32 %s, 1, %s' % (v(T), v(V.n)))
        a('v_lshl_add_u32 %s, %s, 8, %s' % (v(T+1), v(T), sK0))
        a('v_cvt_f32_u32 %s, %s' % (v(T+1), v(T+1)))
        a('v_mul_f32 %s, %s, %s' % (v(T+1), lit(1/2048), v(T+1)))
        a('v_cvt_f32_u32 %s, %s' % (v(T+2), v(V.g)))
        a('v_add_f32 %s, %s, %s' % (v(T+2), v(T+2), v(T+2)))
        a('v_and_b32 %s, 1, %s' % (v(T+3), v(V.n)))
        a('v_cvt_f32_u32 %s, %s' % (v(T+3), v(T+3)))
        a('v_mul_f32 %s, %s, %s' % (v(T+4), lit(0.25), v(T+3)))
        a('v_mul_f32 %s, %s, %s' % (v(T+5), v(T+1), v(T+2)))
        for sbb in range(2):
            for half in range(2):
                a('v_%s_f32 %s, %s, %s' % ('sub' if half else 'add', v(T+6), v(T+5), v(T+4)))
                a('v_cos_f32 %s, %s' % (v(c), v(T+6)))
                a('v_sin_f32 %s, %s' % (v(s), v(T+6)))
                a('v_mul_f32 %s, %s, %s' % (v(c), lit(S11), v(c)))
                a('v_mul_f32 %s, %s, %s' % (v(s), lit(S11), v(s)))
                ng = '-' if half else ''
                a('v_cvt_pk_bf16_f32 %s, %s, %s%s' % (v(V.B+2*sbb+half), v(c), ng, v(s)))
                a('v_cvt_pk_bf16_f32 %s, -%s, %s%s' % (v(V.B+6+2*sbb+half), v(s), ng, v(c)))
            if sbb == 0: a('v_add_f32 %s, %s, %s' % (v(T+5), v(T+5), v(T+1)))
        a('v_cvt_f32_u32 %s, %s' % (v(T), v(T)))
        a('v_lshlrev_b32 %s, 31, %s' % (v(T+4), v(V.n)))
        a('v_xor_b32 %s, %s, %s' % (v(T), v(T), v(T+4)))
        a('v_xor_b32 %s, %s, %s' % (v(T+4), lit(S11), v(T+4)))
        a('v_lshl_add_u32 %s, %s, 9, %s' % (v(T+1), v(V.g), sK0))
        a('v_cvt_f32_u32 %s, %s' % (v(T+1), v(T+1)))
        a('v_mul_f32 %s, %s, %s' % (v(T+1), lit(1/2048), v(T+1)))
        a('v_mul_f32 %s, %s, %s' % (v(T+5), v(T+1), v(T)))
        a('v_fmac_f32 %s, 0.5, %s' % (v(T+5), v(T+3)))
        for ii in range(2):
            a('v_cos_f32 %s, %s' % (v(c), v(T+5)))
            a('v_sin_f32 %s, %s' % (v(s), v(T+5)))
            a('v_mul_f32 %s, %s, %s' % (v(T+6), v(T+4), v(c)))
            a('v_mul_f32 %s, %s, %s' % (v(T+7), v(T+4), v(s)))
            a('v_mul_f32 %s, %s, %s' % (v(c), lit(S11), v(c)))
            a('v_mul_f32 %s, %s, %s' % (v(s), lit(S11), v(s)))
            a('v_cvt_pk_bf16_f32 %s, %s, %s' % (v(V.Bp+2*ii), v(c), v(T+7)))
            a('v_cvt_pk_bf16_f32 %s, -%s, %s' % (v(V.Bp+4+2*ii), v(s), v(T+6)))
            a('v_cvt_pk_bf16_f32 %s, -%s, %s' % (v(V.Bp+2*ii+1), v(s), v(T+6)))
            a('v_cvt_pk_bf16_f32 %s, -%s, -%s' % (v(V.Bp+4+2*ii+1), v(c), v(T+7)))
            if ii == 0: a('v_fmac_f32 %s, %s, %s' % (v(T+5), lit(0.125), v(T)))
        a(l1+':')
        a('v_mov_b32 %s, %s' % (v(V.B+4), v(V.B))); a('v_mov_b32 %s, %s' % (v(V.B+5), v(V.B+1)))
        a('v_mov_b32 %s, %s' % (v(V.B+10), v(V.B+6))); a('v_mov_b32 %s, %s' % (v(V.B+11), v(V.B+7)))
        def tail():
            a(l0+':')
            if not early: self.spec_load(); a('s_waitcnt vmcnt(0)')
            a('s_branch %s' % l1)
        self.tail.append(tail)
    def spec_load(self):
        a = self.a
        a('s_getpc_b64 s[28:29]')
        a('s_add_u32 s28, s28, spec_tab@rel32@lo+4')
        a('s_addc_u32 s29, s29, spec_tab@rel32@hi+12')
        a('global_load_dwordx4 %s, %s, s[28:29]' % (vr(V.B, 4), v(V.l16)))
        a('global_load_dwordx4 %s, %s, s[28:29] offset:1024' % (vr(V.B+6, 4), v(V.l16)))
        a('global_load_dwordx4 %s, %s, s[28:29] offset:2048' % (vr(V.Bp, 4), v(V.l16)))
        a('global_load_dwordx4 %s, %s, s[28:29] offset:3072' % (vr(V.Bp+4, 4), v(V.l16)))
    def spec_early(self):
        a = self.a; l0, l1 = self.label('SE'), self.label('SEend')
        a('s_cmp_eq_u32 %s, 0' % sT)
        a('s_cbranch_scc1 %s' % l0)
        a(l1+':')
        def tail():
            a(l0+':'); self.spec_load()
            a('s_cmp_lg_u32 %s, 0' % sW); a('s_cbranch_scc1 %s' % l1)
            self.srds()
            a('s_mov_b32 %s, 0' % sKP); a('s_mov_b32 %s, %d' % (sKM, 1024*1026)); a('s_mov_b32 %s, %d' % (sWL, WL))
            self.w_dma()
            a('s_branch %s' % l1)
        self.tail.append(tail)

    def spec_table(self):
        tab = np.zeros((4, 64, 4, 2))
        for lane in range(64):
            m, g = lane & 15, lane >> 4
            for r in range(4):
                t, c = m >> 1, m & 1; sb, hf = 2*g + (r >> 1), r & 1
                if hf == (t & 1):
                    th = 2*math.pi*sb*t/16
                    tab[0, lane, r, c] = (2*S11 if t else S11)*math.cos(th)
                    tab[1, lane, r, c] = -2*S11*math.sin(th) if t else S11*(-1.0)**sb
                sb, hf = m >> 1, m & 1; t, c = 2*g + (r >> 1), r & 1
                if hf == (t & 1):
                    th = 2*math.pi*sb*t/16
                    if t: cre, cim = 2*math.cos(th), -2*math.sin(th)
                    else: cre, cim = 1.0, (-1.0)**sb
                    pl = 2 + (1 - c)
                    tab[pl, lane, r, 0] = S11*cim
                    tab[pl, lane, r, 1] = S11*cre
        tab[abs(tab) < 1e-12] = 0
        out = ['.p2align 6', '.type spec_tab,@object', 'spec_tab:']
        w = [bf16bits(tab[p, l, r, 0]) | bf16bits(tab[p, l, r, 1]) << 16 for p in range(4) for l in range(64) for r in range(4)]
        for i in range(0, len(w), 8):
            out.append('.long ' + ','.join('0x%x' % x for x in w[i:i+8]))
        return '\n'.join(out)

    def p1_load(self):
        a = self.a; T = V.T
        a('v_bfe_u32 %s, %s, 3, 1' % (v(T), v(V.lane)))
        a('v_lshlrev_b32 %s, 14, %s' % (v(T), v(T)))
        a('v_lshl_add_u32 %s, %s, 20, %s' % (v(T), v(V.g), v(T)))
        a('v_and_b32 %s, 0x70, %s' % (v(T+1), v(V.l16)))
        a('v_add_u32 %s, %s, %s' % (v(V.Xoff), v(T), v(T+1)))
        a('s_lshl_b32 %s, %s, 15' % (sO[0], sW))
        a('s_lshl_b32 %s, %s, 11' % (sA, sSB)); a('s_add_u32 %s, %s, %s' % (sO[0], sO[0], sA))
        a('s_lshl_b32 %s, %s, 7' % (sA, sCB)); a('s_add_u32 %s, %s, %s' % (sO[0], sO[0], sA))
        for r in range(1, 4): a('s_add_u32 %s, %s, 0x%x' % (sO[r], sO[0], r*262144))
    def p1_issue(self):
        a = self.a
        for r in range(4):
            a('buffer_load_dwordx4 %s, %s, %s, %s offen %s' % (vr(V.L+4*r, 4), v(V.Xoff), SX, sO[r], self.o['ldx']))
    def p1_addrs(self):
        a = self.a; T = V.T
        a('v_xor_b32 %s, %s, %s' % (v(T), sSB, v(V.lane)))
        a('v_and_b32 %s, 1, %s' % (v(T), v(T)))
        a('v_mul_u32_u24 %s, 16448, %s' % (v(T), v(T)))
        a('v_lshl_add_u32 %s, %s, 12, %s' % (v(T), v(V.g), v(T)))
        a('v_and_b32 %s, 14, %s' % (v(T+1), v(V.lane)))
        a('v_lshl_add_u32 %s, %s, 3, %s' % (v(T), v(T+1), v(T)))
        a('s_lshr_b32 %s, %s, 2' % (sA, sW)); a('s_lshl_b32 %s, %s, 9' % (sA, sA))
        a('s_and_b32 %s, %s, 1' % (sB, sW)); a('s_lshl_b32 %s, %s, 8' % (sB, sB)); a('s_add_u32 %s, %s, %s' % (sA, sA, sB))
        a('s_and_b32 %s, %s, 2' % (sB, sW)); a('s_lshl_b32 %s, %s, 6' % (sB, sB)); a('s_add_u32 %s, %s, %s' % (sA, sA, sB))
        if R0: a('s_add_u32 %s, %s, %d' % (sA, sA, R0))
        a('v_add_u32 %s, %s, %s' % (v(V.X0w), sA, v(T)))
        self.tr_lane(T, 512, 128)
        a('s_lshl_b32 %s, %s, 10' % (sA, sW))
        a('s_sub_u32 %s, 0x4000, %s' % (sB, sA))
        a('s_cmp_eq_u32 %s, 0' % sW)
        a('s_cselect_b32 %s, 0x2000, %s' % (sB, sB))
        if R0: a('s_add_u32 %s, %s, %d' % (sA, sA, R0)); a('s_add_u32 %s, %s, %d' % (sB, sB, R0))
        a('v_add_u32 %s, %s, %s' % (v(V.X0r0), sA, v(T)))
        a('v_add_u32 %s, %s, %s' % (v(V.X0r1), sB, v(T)))
    def tr_lane(self, dst, g1s, g0s, b3s=64):
        a = self.a; t = V.T+7
        sh = lambda x: int(math.log2(x))
        a('v_and_b32 %s, 0x30, %s' % (v(dst), v(V.l16)))
        for bit, st in ((2, 8), (3, b3s), (4, g0s), (5, g1s)):
            a('v_bfe_u32 %s, %s, %d, 1' % (v(t), v(V.lane), bit))
            a('v_lshl_add_u32 %s, %s, %d, %s' % (v(dst), v(t), sh(st), v(dst)))

    def mf16(self, d, A, B):
        self.a('v_mfma_f32_16x16x32_bf16 %s, %s, %s, 0' % (vr(d, 4), vr(A, 4), vr(B, 4)))
    def cvt(self, d, lo, hi):
        self.a('v_cvt_pk_bf16_f32 %s, %s, %s' % (v(d), v(lo), v(hi)))

    def p1_compute(self, nafter, hook=None, hook2=None):
        a = self.a; O, L, D = V.O, V.L, V.DA
        for r in range(4):
            a('s_waitcnt vmcnt(%d)' % (nafter + 3 - r))
            if r == 3: self.stamp()
            for t in range(4):
                a('v_mov_b32 %s, %s' % (v(O+4*t+r), v(L+4*r+t)))
        for t in range(4):
            self.mf16(D+4*t, V.F16, O+4*t)
            self.mf16(D+16+4*t, V.F16+4, O+4*t)
        if hook: hook()
        P = V.DB
        for r in range(4):
            self.cvt(P+4*r, D+r, D+4+r); self.cvt(P+4*r+2, D+16+r, D+20+r)
        for r in range(4):
            self.cvt(P+4*r+1, D+8+r, D+12+r); self.cvt(P+4*r+3, D+24+r, D+28+r)
            a('ds_write_b128 %s, %s offset:%d' % (v(V.X0w), vr(P+4*r, 4), 1024*r))
        a('s_waitcnt lgkmcnt(0)')
        a('s_barrier')
        for sel in range(2):
            for tau in range(2):
                for ii in range(2):
                    a('ds_read_b64_tr_b16 %s, %s offset:%d' % (vr(O+4*(2*sel+tau)+2*ii, 2), v(V.X0r1 if sel else V.X0r0), tau*16448+ii*256))
        if hook2: hook2()
        for r in range(4): a('s_add_u32 %s, %s, 0x%x' % (sO[r], sEst, WS_U1 + r*32768))
        for ti in range(4):
            a('s_waitcnt lgkmcnt(%d)' % (6-2*ti))
            self.mf16(D+4*ti, V.M2+8*(ti >> 1), O+4*ti)
            self.mf16(D+16+4*ti, V.M2+8*(ti >> 1)+4, O+4*ti)
        l0, l1 = self.label('P1w0'), self.label('P1end')
        a('s_cmp_eq_u32 %s, 0' % sW)
        a('s_cbranch_scc1 %s' % l0)
        st = lambda i: a('buffer_store_dwordx4 %s, %s, %s, %s offen %s' % (vr(P+4*i, 4), v(V.Est), SWS, sO[i], self.o['st1']))
        for i in range(4):
            for tau in range(2): self.cvt(P+4*i+2*tau, D+4*tau+i, D+16+4*tau+i)
        for i in range(4):
            for tau in range(2): self.cvt(P+4*i+2*tau+1, D+4*(2+tau)+i, D+16+4*(2+tau)+i)
            st(i)
        a(l1+':')
        def tail():
            a(l0+':')
            a('s_nop 7')
            for i in range(4):
                ts, eb = i >> 1, i & 1
                for tau in range(2):
                    for sg in range(2):
                        x = 4*(2*ts+tau)+2*eb+sg
                        self.cvt(P+4*i+2*tau+sg, D+x, D+16+x)
                st(i)
            a('s_branch %s' % l1)
        self.tail.append(tail)

    def p2_addrs(self):
        a = self.a; T = V.T
        a('v_lshlrev_b32 %s, 4, %s' % (v(T), v(V.n)))
        a('v_lshl_add_u32 %s, %s, 13, %s' % (v(T), v(V.g), v(T)))
        a('s_lshl_b32 %s, %s, 9' % (sA, sW)); a('s_add_u32 %s, %s, %d' % (sA, sA, R1))
        a('v_add_u32 %s, %s, %s' % (v(V.X1w), sA, v(T)))
        self.tr_lane(T, 256, 64, 128)
        a('s_lshl_b32 %s, %s, 12' % (sA, sW)); a('s_add_u32 %s, %s, %d' % (sA, sA, R1))
        a('v_add_u32 %s, %s, %s' % (v(V.X1r), sA, v(T)))
        a('v_and_b32 %s, 16, %s' % (v(T), v(V.l16)))
        for bit, st in ((1, 16448), (2, 8224)):
            a('v_bfe_u32 %s, %s, %d, 1' % (v(T+1), v(V.lane), bit))
            a('v_mul_u32_u24 %s, %d, %s' % (v(T+1), st, v(T+1)))
            a('v_add_u32 %s, %s, %s' % (v(T), v(T), v(T+1)))
        a('v_bfe_u32 %s, %s, 3, 2' % (v(T+1), v(V.lane)))
        a('v_lshl_add_u32 %s, %s, 11, %s' % (v(T), v(T+1), v(T)))
        a('v_and_b32 %s, 32, %s' % (v(T+1), v(V.lane)))
        a('v_add_u32 %s, %s, %s' % (v(T), v(T), v(T+1)))
        a('s_lshr_b32 %s, %s, 2' % (sA, sW)); a('s_lshl_b32 %s, %s, 9' % (sA, sA))
        a('s_and_b32 %s, %s, 1' % (sB, sW)); a('s_lshl_b32 %s, %s, 8' % (sB, sB)); a('s_add_u32 %s, %s, %s' % (sA, sA, sB))
        a('s_and_b32 %s, %s, 2' % (sB, sW)); a('s_lshl_b32 %s, %s, 6' % (sB, sB)); a('s_add_u32 %s, %s, %s' % (sA, sA, sB))
        if R0: a('s_add_u32 %s, %s, %d' % (sA, sA, R0))
        a('v_add_u32 %s, %s, %s' % (v(V.X2w), sA, v(T)))
        self.tr_lane(T, 512, 128)
        a('s_and_b32 %s, %s, 1' % (sA, sW)); a('s_lshl_b32 %s, %s, 11' % (sA, sA))
        a('s_bfe_u32 %s, %s, 0x10001' % (sB, sW)); a('s_mul_i32 %s, %s, 16448' % (sB, sB)); a('s_add_u32 %s, %s, %s' % (sA, sA, sB))
        a('s_lshr_b32 %s, %s, 2' % (sB, sW)); a('s_lshl_b32 %s, %s, 12' % (sB, sB)); a('s_add_u32 %s, %s, %s' % (sA, sA, sB))
        if R0: a('s_add_u32 %s, %s, %d' % (sA, sA, R0))
        a('v_add_u32 %s, %s, %s' % (v(V.X2r), sA, v(T)))

    def p2_issue(self):
        a = self.a
        a('s_add_u32 %s, %s, 0x%x' % (sA, sEld, WS_U1))
        for q in range(4):
            a('buffer_load_dwordx4 %s, %s, %s, %s offen offset:%d %s' % (vr(V.L+12*(q >> 1)+4*(q & 1), 4), v(V.Eld), SWS, sA, 256*q, self.o['ld1']))

    def mf32(self, d, i, dataA):
        for pl in range(2):
            M = vr(V.F32+16*pl+4*i, 4); X = vr(V.O+4*i, 4)
            A, B = (X, M) if dataA else (M, X)
            D = vr(d+16*pl, 16)
            self.a('v_mfma_f32_32x32x16_bf16 %s, %s, %s, %s' % (D, A, B, D if i else '0'))

    def cmul_stage(self, src, dst, dataA, coef, kind, prio=None, late=False):
        a = self.a; T = V.T
        if prio is not None and self.o['prio']: a('s_setprio %d' % prio)
        if kind == 'tw' and self.o['shear']:
            for i in range(4):
                for st in range(3):
                    for r in range(4):
                        rho = 4*i+r
                        x, y = v(src+rho), v(src+16+rho)
                        if st == 1: a('v_fmac_f32 %s, %s, %s' % (y, v(coef+16+rho), x))
                        else: a('v_fmac_f32 %s, %s, %s' % (x, v(coef+rho), y))
                for r in range(4): self.cvt(V.O+4*i+r, src+4*i+r, src+16+4*i+r)
                self.mf32(dst, i, dataA)
            return
        if late:
            a('s_waitcnt vmcnt(2)')
            for rho in range(8): self.w_read(rho)
        for i in range(4):
            if late:
                if i == 0: a('s_waitcnt lgkmcnt(8)'); self.w_fix(0)
                if i == 1:
                    a('s_waitcnt vmcnt(0)')
                    for rho in range(8, 12): self.w_read(rho)
                    a('s_waitcnt lgkmcnt(8)')
                if i == 2:
                    for rho in range(12, 16): self.w_read(rho)
                    a('s_waitcnt lgkmcnt(8)'); self.w_fix(1)
                if i == 3: a('s_waitcnt lgkmcnt(0)')
            for r in range(4):
                rho = 4*i+r
                x, y = v(src+rho), v(src+16+rho)
                c, s = v(coef+rho), v(coef+16+rho)
                t0, t1 = v(T+2*r), v(T+2*r+1)
                a('v_mul_f32 %s, %s, %s' % (t0, x, c))
                a('v_mul_f32 %s, %s, %s' % (t1, y, c))
            for r in range(4):
                rho = 4*i+r
                x, y = v(src+rho), v(src+16+rho)
                c, s = v(coef+rho), v(coef+16+rho)
                t0, t1 = v(T+2*r), v(T+2*r+1)
                if kind == 'tw' or rho >= 8:
                    a('v_fmac_f32 %s, %s, %s' % (t0, y, s))
                    a('v_fma_f32 %s, -%s, %s, %s' % (t1, x, s, t1))
                else:
                    a('v_fma_f32 %s, -%s, %s, %s' % (t0, y, s, t0))
                    a('v_fmac_f32 %s, %s, %s' % (t1, x, s))
            for r in range(4):
                if kind == 'tw': self.cvt(V.O+4*i+r, T+2*r, T+2*r+1)
                else: self.cvt(V.O+4*i+r, T+2*r+1, T+2*r)
            self.mf32(dst, i, dataA)

    def p2_compute(self, wl=None):
        a = self.a; O, L, D, T = V.O, V.L, V.DA, V.T
        late = wl is not None
        na = 0
        for cbb in range(2):
            b = L+12*cbb
            a('s_waitcnt vmcnt(%d)' % (na+3-2*cbb))
            a('v_mov_b32 %s, %s' % (v(b+8), v(b))); a('v_mov_b32 %s, %s' % (v(b+9), v(b+1)))
            a('s_waitcnt vmcnt(%d)' % (na+2-2*cbb))
            if cbb: self.stamp(); self.fstamp()
            for jj2 in (1, 0):
                ti = 2*cbb+jj2
                op = b+2 if jj2 else b+6
                mo = 0 if jj2 else 2
                self.mf16(D+4*ti, V.B+mo, op)
                self.mf16(D+16+4*ti, V.B+6+mo, op)
        for cbb in range(2):
            for k1b in range(2):
                P = O+4*(2*cbb+k1b)
                for pl in range(2):
                    for jj2 in (1, 0):
                        x = D+16*pl+4*(2*cbb+jj2)+2*k1b
                        self.cvt(P+2*pl+jj2, x, x+1)
                a('ds_write_b128 %s, %s offset:%d' % (v(V.X1w), vr(P, 4), k1b*4096+cbb*256))
        self.fstamp()
        a('s_waitcnt lgkmcnt(0)')
        self.fstamp()
        if self.o.get('fine'): a('s_waitcnt lgkmcnt(0)')
        a('s_barrier')
        if self.o['prio']: a('s_setprio 3')
        for i in range(4):
            for ii in range(2):
                a('ds_read_b64_tr_b16 %s, %s offset:%d' % (vr(O+4*i+2*ii, 2), v(V.X1r), ii*1024+(i & 1)*512+(i >> 1)*2048))
        for i in range(4):
            if late and i < len(wl): self.w_dma1(wl[i])
            a('s_waitcnt lgkmcnt(%d)' % (6-2*i))
            self.mf32(V.DA, i, True)
        self.fstamp()
        self.cmul_stage(V.DA, V.DB, False, V.TW, 'tw', 2)
        self.fstamp()
        l0, l1 = self.label('PWspec'), self.label('PWend')
        a('s_cmp_eq_u32 %s, 1' % sSpec)
        a('s_cbranch_scc1 %s' % l0)
        if self.o.get('fine'): a('s_waitcnt lgkmcnt(0)')
        self.cmul_stage(V.DB, V.DA, True, V.W, 'w', 1, late)
        a(l1+':')
        self.fstamp()
        self.cmul_stage(V.DA, V.DB, True, V.TW, 'tw', 0)
        self.fstamp()
        D = V.DB
        rho = lambda jj3, jj1, jj2, c: 4*(2*jj3+jj1)+2*jj2+c
        for c in range(2):
            for jj1 in range(2):
                P = O+4*(2*c+jj1)
                for pl in range(2):
                    for jj3 in range(2):
                        self.cvt(P+2*pl+jj3, D+16*pl+rho(jj3, jj1, 0, c), D+16*pl+rho(jj3, jj1, 1, c))
                a('ds_write_b128 %s, %s offset:%d' % (v(V.X2w), vr(P, 4), c*64+jj1*1024))
        self.fstamp()
        a('s_waitcnt lgkmcnt(0)')
        self.fstamp()
        if self.o.get('fine'): a('s_waitcnt lgkmcnt(0)')
        a('s_barrier')
        for cbb in range(2):
            for jj1 in range(2):
                for ii in range(2):
                    a('ds_read_b64_tr_b16 %s, %s offset:%d' % (vr(O+4*(2*cbb+jj1)+2*ii, 2), v(V.X2r), ii*256+jj1*1024+cbb*8224))
        for r in range(4): a('s_add_u32 %s, %s, 0x%x' % (sO[r], sEst, WS_U2 + r*32768))
        D = V.DA
        for ti in range(4):
            a('s_waitcnt lgkmcnt(%d)' % (6-2*ti))
            self.mf16(D+4*ti, V.Bp, O+4*ti)
            self.mf16(D+16+4*ti, V.Bp+4, O+4*ti)
        self.fstamp()
        P = V.DB
        for q in range(4):
            cbb, sbb = q >> 1, q & 1
            for jj1 in range(2):
                for hf in range(2):
                    x = 4*(2*cbb+jj1)+2*sbb+hf
                    self.cvt(P+4*q+2*jj1+hf, D+x, D+16+x)
            a('buffer_store_dwordx4 %s, %s, %s, %s offen %s' % (vr(P+4*q, 4), v(V.Est), SWS, sO[q], self.o['st2']))
        self.fstamp()
        if self.o.get('fine'):
            a('s_memrealtime s[%d:%d]' % (sTS+2*self.nts, sTS+2*self.nts+1)); self.nts += 1
        def tail():
            C = V.DB; X = V.DA
            a(l0+':')
            self.sigma_lane(T)
            a('v_lshrrev_b32 %s, 5, %s' % (v(T+1), v(V.lane)))
            a('v_lshlrev_b32 %s, 9, %s' % (v(T+1), v(T+1)))
            a('v_lshl_add_u32 %s, %s, 2, %s' % (v(T+2), v(T), v(T+1)))
            a('v_add_u32 %s, %d, %s' % (v(T+2), SCR, v(T+2)))
            a('v_add_u32 %s, 128, %s' % (v(T+3), v(T+2)))
            a('v_sub_u32 %s, 32, %s' % (v(T+4), v(T)))
            a('v_lshrrev_b32 %s, 5, %s' % (v(T+5), v(T+4)))
            a('v_and_b32 %s, 31, %s' % (v(T+4), v(T+4)))
            a('v_lshlrev_b32 %s, 2, %s' % (v(T+4), v(T+4)))
            a('v_lshl_add_u32 %s, %s, 8, %s' % (v(T+4), v(T+5), v(T+4)))
            a('v_sub_u32 %s, %s, %s' % (v(T+4), v(T+4), v(T+1)))
            a('v_add_u32 %s, %d, %s' % (v(T+4), SCR + 2*256, v(T+4)))
            a('v_add_u32 %s, 128, %s' % (v(T+5), v(T+4)))
            a('v_add_u32 %s, %d, %s' % (v(T+6), SCR_B, v(V.l16)))
            qs = lambda rho: sigma(8*(rho >> 2) + (rho & 3))
            for pl in range(2):
                for rho in range(0, 16, 2):
                    a('ds_write2st64_b32 %s, %s, %s offset0:%d offset1:%d' % (v(T+2+pl), v(C+16*pl+rho), v(C+16*pl+rho+1), qs(rho), qs(rho+1)))
                a('ds_write_b32 %s, %s offset:%d' % (v(T+2+pl), v(C+16*pl), 32*256))
            a('s_waitcnt lgkmcnt(0)')
            t0, t1 = v(T+8), v(T+9)
            for half in range(2):
                for pl in range(2):
                    for k in range(0, 8, 2):
                        rho_ = 8*half+k
                        a('ds_read2st64_b32 %s, %s offset0:%d offset1:%d' % (vr(X+8*pl+k, 2), v(T+4+pl), 29-qs(rho_), 29-qs(rho_+1)))
                    for k in range(2):
                        a('ds_read_b128 %s, %s offset:%d' % (vr(X+16+8*pl+4*k, 4), v(T+6), 1024*(4*pl+2*half+k)))
                a('s_waitcnt lgkmcnt(0)')
                for k in range(8):
                    rho_ = 8*half+k
                    x, y = v(C+rho_), v(C+16+rho_); ar, ai = v(V.W+rho_), v(V.W+16+rho_)
                    p, q_ = v(X+k), v(X+8+k); br, bi = v(X+16+k), v(X+24+k)
                    ng, ps = ('', '-') if half else ('-', '')
                    a('v_mul_f32 %s, %s, %s' % (t0, x, ar))
                    a('v_mul_f32 %s, %s, %s' % (t1, y, ar))
                    a('v_fma_f32 %s, %s%s, %s, %s' % (t0, ng, y, ai, t0))
                    a('v_fma_f32 %s, %s%s, %s, %s' % (t1, ps, x, ai, t1))
                    a('v_fmac_f32 %s, %s, %s' % (t0, p, br))
                    a('v_fma_f32 %s, -%s, %s, %s' % (t1, q_, br, t1))
                    a('v_fma_f32 %s, %s%s, %s, %s' % (t0, ps, q_, bi, t0))
                    a('v_fma_f32 %s, %s%s, %s, %s' % (t1, ps, p, bi, t1))
                    self.cvt(O+rho_, T+9, T+8)
            for i in range(4): self.mf32(V.DA, i, True)
            a('s_nop 11')
            a('s_branch %s' % l1)
        self.tail.append(tail)

    def p3_addrs(self):
        a = self.a; T = V.T
        a('v_and_b32 %s, 16, %s' % (v(T), v(V.lane)))
        for bit, st in ((0, 32), (3, 4096), (5, 1024)):
            a('v_bfe_u32 %s, %s, %d, 1' % (v(T+1), v(V.lane), bit))
            a('v_lshl_add_u32 %s, %s, %d, %s' % (v(T), v(T+1), int(math.log2(st)), v(T)))
        for bit, st in ((1, 8208), (2, 16448)):
            a('v_bfe_u32 %s, %s, %d, 1' % (v(T+1), v(V.lane), bit))
            a('v_mul_u32_u24 %s, %d, %s' % (v(T+1), st, v(T+1)))
            a('v_add_u32 %s, %s, %s' % (v(T), v(T), v(T+1)))
        a('s_sub_u32 %s, 16, %s' % (sC, sW))
        a('s_cmp_eq_u32 %s, 0' % sW)
        a('s_cselect_b32 %s, 8, %s' % (sC, sC))
        for kl, dst in ((sW, V.X3w0), (sC, V.X3w1)):
            a('s_and_b32 %s, %s, 9' % (sA, kl)); a('s_lshl_b32 %s, %s, 6' % (sA, sA))
            a('s_and_b32 %s, %s, 2' % (sB, kl)); a('s_lshl_b32 %s, %s, 7' % (sB, sB)); a('s_add_u32 %s, %s, %s' % (sA, sA, sB))
            a('s_and_b32 %s, %s, 4' % (sB, kl)); a('s_lshl_b32 %s, %s, 5' % (sB, sB)); a('s_add_u32 %s, %s, %s' % (sA, sA, sB))
            a('s_add_u32 %s, %s, %d' % (sA, sA, R1))
            a('v_add_u32 %s, %s, %s' % (v(dst), sA, v(T)))
        self.tr_lane(T, 512, 128)
        a('s_and_b32 %s, %s, 1' % (sA, sW)); a('s_mul_i32 %s, %s, 8208' % (sA, sA))
        a('s_bfe_u32 %s, %s, 0x10001' % (sB, sW)); a('s_mul_i32 %s, %s, 16448' % (sB, sB)); a('s_add_u32 %s, %s, %s' % (sA, sA, sB))
        a('s_lshr_b32 %s, %s, 2' % (sB, sW)); a('s_lshl_b32 %s, %s, 12' % (sB, sB)); a('s_add_u32 %s, %s, %s' % (sA, sA, sB))
        a('s_add_u32 %s, %s, %d' % (sA, sA, R1))
        a('v_add_u32 %s, %s, %s' % (v(V.X3r), sA, v(T)))
        a('v_bfe_u32 %s, %s, 3, 1' % (v(T), v(V.lane)))
        a('v_lshlrev_b32 %s, 15, %s' % (v(T), v(T)))
        a('v_lshl_add_u32 %s, %s, 21, %s' % (v(T), v(V.g), v(T)))
        a('v_and_b32 %s, 0x70, %s' % (v(T+1), v(V.l16)))
        a('v_add_u32 %s, %s, %s' % (v(V.Ooff), v(T), v(T+1)))
    def p3_soff(self):
        a = self.a
        a('s_lshl_b32 %s, %s, 16' % (sO[0], sW))
        a('s_lshl_b32 %s, %s, 12' % (sA, sSB)); a('s_add_u32 %s, %s, %s' % (sO[0], sO[0], sA))
        a('s_lshl_b32 %s, %s, 7' % (sA, sCB)); a('s_add_u32 %s, %s, %s' % (sO[0], sO[0], sA))
        a('s_lshl_b32 %s, %s, 11' % (sA, sP)); a('s_add_u32 %s, %s, %s' % (sO[0], sO[0], sA))
        for r in range(1, 4): a('s_add_u32 %s, %s, 0x%x' % (sO[r], sO[0], r*524288))
    def p3_issue(self):
        a = self.a
        a('s_add_u32 %s, %s, 0x%x' % (sA, sEld, WS_U2))
        for q in range(4):
            a('buffer_load_dwordx4 %s, %s, %s, %s offen offset:%d %s' % (vr(V.L+4*q, 4), v(V.Eld), SWS, sA, 256*q, self.o['ld2']))
    def p3_compute(self):
        a = self.a; O, L, D = V.O, V.L, V.DA
        l0, l1 = self.label('P3w0'), self.label('P3m')
        a('s_cmp_eq_u32 %s, 0' % sW)
        a('s_cbranch_scc1 %s' % l0)
        for i in range(4):
            a('s_waitcnt vmcnt(%d)' % (3-i))
            for sel in range(2):
                for col in range(2):
                    a('v_mov_b32 %s, %s' % (v(O+4*(2*sel+col)+i), v(L+4*i+2*col+sel)))
        a(l1+':')
        self.stamp()
        def tail():
            a(l0+':')
            for i in range(4):
                ts, eb = i >> 1, i & 1
                a('s_waitcnt vmcnt(%d)' % (3-i))
                for col in range(2):
                    for sg in range(2):
                        a('v_mov_b32 %s, %s' % (v(O+4*(2*ts+col)+2*eb+sg), v(L+4*i+2*col+sg)))
            a('s_nop 1')
            a('s_branch %s' % l1)
        self.tail.append(tail)
        for ti in range(4):
            self.mf16(D+4*ti, O+4*ti, V.M2+8*(ti >> 1))
            self.mf16(D+16+4*ti, O+4*ti, V.M2+8*(ti >> 1)+4)
        P = V.DB
        for ti in range(4):
            for pl in range(2):
                for k in range(2):
                    x = D+16*pl+4*ti+2*k
                    self.cvt(P+4*ti+2*pl+k, x, x+1)
            a('ds_write_b128 %s, %s offset:%d' % (v(V.X3w1 if ti >> 1 else V.X3w0), vr(P+4*ti, 4), (ti & 1)*2048))
        a('s_waitcnt lgkmcnt(0)')
        a('s_barrier')
        for t in range(4):
            for ii in range(2):
                a('ds_read_b64_tr_b16 %s, %s offset:%d' % (vr(O+4*t+2*ii, 2), v(V.X3r), ii*256+t*1024))
        for t in range(4):
            a('s_waitcnt lgkmcnt(%d)' % (6-2*t))
            self.mf16(D+4*t, V.F16, O+4*t)
            self.mf16(D+16+4*t, V.F16+4, O+4*t)
        for t in range(3):
            for r in range(4): self.cvt(P+4*r+t, D+16+4*t+r, D+4*t+r)
        for r in range(4):
            self.cvt(P+4*r+3, D+16+12+r, D+12+r)
            a('buffer_store_dwordx4 %s, %s, %s, %s offen %s' % (vr(P+4*r, 4), v(V.Ooff), SOUT, sO[r], self.o['sto']))

    def flush_tail(self):
        t, self.tail = self.tail, []
        for f in t: f()

    def kernel_head(self, name):
        self.a.raw('.globl %s\n.p2align 8\n.type %s,@function\n%s:' % (name, name, name))
    def kd(self, name):
        return '''.p2align 6
.amdhsa_kernel %s
  .amdhsa_next_free_vgpr %d
  .amdhsa_next_free_sgpr 100
  .amdhsa_accum_offset %d
  .amdhsa_group_segment_fixed_size 0
  .amdhsa_kernarg_size 72
  .amdhsa_user_sgpr_count 2
  .amdhsa_user_sgpr_kernarg_segment_ptr 1
  .amdhsa_system_sgpr_workgroup_id_x 1
.end_amdhsa_kernel''' % (name, NVGPR, (NVGPR+3)//4*4)

    def build_three(self):
        a = self.a
        names = ['gf_p1_kernel', 'gf_p2_kernel', 'gf_p3_kernel']
        self.kernel_head(names[0]); end = self.label('end')
        self.prologue(end); self.p1_load(); a('s_waitcnt lgkmcnt(0)'); self.p1_issue()
        self.ex_addrs(); self.p1_addrs(); self.gen_F16(); self.gen_M2()
        self.p1_compute(0)
        if self.o['ts']: self.stamp(); a('s_waitcnt vmcnt(0)'); self.stamp(); self.dump_stamps(0)
        a(end+':'); a('s_endpgm'); self.flush_tail()
        self.kernel_head(names[1]); end = self.label('end')
        self.prologue(end); self.ex_addrs(); self.calc_k0(); a('s_waitcnt lgkmcnt(0)')
        self.w_dma(); self.p2_addrs(); self.gen_B(); self.gen_F32TW()
        a('s_waitcnt vmcnt(0)'); self.w_regs(); a('s_waitcnt lgkmcnt(0)')
        self.p2_issue(); self.p2_compute()
        if self.o['ts']: self.stamp(); a('s_waitcnt vmcnt(0)'); self.stamp(); self.dump_stamps(8)
        a(end+':'); a('s_endpgm'); self.flush_tail()
        self.kernel_head(names[2]); end = self.label('end')
        self.prologue(end); self.ex_addrs(); a('s_waitcnt lgkmcnt(0)'); self.p3_issue()
        self.p3_addrs(); self.p3_soff(); self.gen_F16(); self.gen_M3()
        self.p3_compute()
        if self.o['ts']: self.stamp(); a('s_waitcnt vmcnt(0)'); self.stamp(); self.dump_stamps(16)
        a(end+':'); a('s_endpgm'); self.flush_tail()
        launch = ''.join('; @launch kernel=%s grid=(256,1,1) block=(512,1,1) lds=%d\n' % (n, LDS_TOTAL) for n in names)
        return self.finish(launch, names)

    def flag_addrs(self):
        a = self.a
        fs = int(self.o['fstride'])
        a('s_lshl_b32 %s, %s, %d' % (sA, sP, fs+6)); a('s_add_u32 %s, %s, 0x%x' % (sA, sA, WS_FLAG))
        a('s_lshr_b32 %s, %s, 4' % (sB, sT))
        a('s_lshl_b32 %s, %s, %d' % (sF, sW, fs+3)); a('s_add_u32 %s, %s, %s' % (sF, sF, sA))
        a('s_lshl_b32 %s, %s, %d' % (sC, sB, fs)); a('s_add_u32 %s, %s, %s' % (sF, sF, sC))
        a('s_lshl_b32 %s, %s, %d' % (sE, sB, fs+3)); a('s_add_u32 %s, %s, %s' % (sE, sE, sA))
        a('s_lshl_b32 %s, %s, %d' % (sC, sW, fs)); a('s_add_u32 %s, %s, %s' % (sE, sE, sC))
    def zero_flags(self):
        a = self.a; l0, l1 = self.label('zf'), self.label('zfend')
        a('s_cmp_eq_u32 %s, %d' % (sT, ZT))
        a('s_cbranch_scc1 %s' % l0)
        a(l1+':')
        def tail():
            a(l0+':')
            fs = int(self.o['fstride'])
            a('s_lshl_b32 %s, %s, %d' % (sA, sP, fs+6)); a('s_add_u32 %s, %s, 0x%x' % (sA, sA, WS_FLAG))
            a('s_lshl_b32 %s, %s, %d' % (sB, sW, fs+3)); a('s_add_u32 %s, %s, %s' % (sA, sA, sB))
            a('s_add_u32 s28, s24, %s' % sA); a('s_addc_u32 s29, s25, 0')
            for i in range(8):
                a('s_mov_b32 s%d, 0' % (84+i))
                a('s_atomic_swap s%d, s[28:29], 0x%x glc' % (84+i, i << fs))
            a('s_branch %s' % l1)
        self.tail.append(tail)
    def set_ready(self):
        a = self.a; l0, l1 = self.label('sr'), self.label('srend')
        a('s_cmp_eq_u32 %s, %d' % (sT, ZT))
        a('s_cbranch_scc1 %s' % l0)
        a(l1+':')
        def tail():
            a(l0+':')
            a('s_mov_b32 %s, 1' % sInc)
            a('s_waitcnt lgkmcnt(0)')
            a('s_atomic_add %s, s[20:21], %s' % (sInc, sRd))
            a('s_branch %s' % l1)
        self.tail.append(tail)
    def ready_issue(self):
        self.a('s_load_dword %s, s[20:21], %s' % (sRv, sRd))
    def ready_check(self):
        a = self.a; l0, l1 = self.label('rdy'), self.label('rdyok')
        a('s_cmp_lt_u32 %s, 8' % sRv)
        a('s_cbranch_scc1 %s' % l0)
        a(l1+':')
        def tail():
            lp = self.label('rdyl')
            a(l0+':')
            a('s_mov_b32 %s, 0' % sCnt)
            a('v_mov_b32 %s, 0' % v(V.O+1))
            a(lp+':')
            a('buffer_load_dword %s, %s, %s, %s offen sc1' % (v(V.O), v(V.O+1), SDBG, sRd))
            a('s_add_u32 %s, %s, 1' % (sCnt, sCnt))
            a('s_cmp_gt_u32 %s, 0x%x' % (sCnt, SPIN_MAX))
            a('s_waitcnt vmcnt(0)')
            a('s_cbranch_scc1 %s' % l1)
            a('v_cmp_gt_u32 vcc, 8, %s' % v(V.O))
            a('s_cbranch_vccnz %s' % lp)
            a('s_branch %s' % l1)
        self.tail.append(tail)
    def set_flag(self, ex):
        a = self.a
        a('s_mov_b32 %s, 0x%x' % (sInc, 1 << (16*ex)))
        a('s_atomic_add %s, s[24:25], %s' % (sInc, sF))
    def poll(self, ex):
        a = self.a; lp, ok = self.label('poll'), self.label('pollok')
        a('s_mov_b32 %s, 0' % sCnt)
        a(lp+':')
        a('s_mov_b32 %s, 0' % sRv)
        a('s_atomic_add %s, s[24:25], %s glc' % (sRv, sE))
        a('s_add_u32 %s, %s, 1' % (sCnt, sCnt))
        a('s_cmp_gt_u32 %s, 0x%x' % (sCnt, SPIN_MAX))
        a('s_waitcnt lgkmcnt(0)')
        a('s_cbranch_scc1 %s' % ok)
        if self.o['slp']:
            a('s_bitcmp1_b32 %s, %d' % (sRv, 4+16*ex))
            a('s_cbranch_scc1 %s' % ok)
            a('s_sleep %s' % self.o['slp'])
            a('s_branch %s' % lp)
        else:
            a('s_bitcmp0_b32 %s, %d' % (sRv, 4+16*ex))
            a('s_cbranch_scc1 %s' % lp)
        a(ok+':')
        if self.o['pbar']: a('s_barrier')
    def code_pf(self, name):
        a = self.a
        l = self.label('pc')
        a('s_getpc_b64 s[28:29]')
        a(l+':')
        a('s_sub_u32 s28, s28, %s-%s' % (l, name))
        a('s_subb_u32 s29, s29, 0')
        a('v_lshlrev_b32 %s, 5, v0' % v(V.O+6))
        a('global_load_dword %s, %s, s[28:29]' % (v(V.dummy), v(V.O+6)))

    def code_spf(self, name):
        a = self.a
        l = self.label('pc')
        a('s_getpc_b64 s[28:29]')
        a(l+':')
        a('s_sub_u32 s28, s28, %s-%s' % (l, name))
        a('s_subb_u32 s29, s29, 0')
        a('s_lshr_b32 %s, s2, 4' % sA)
        a('s_lshl3_add_u32 %s, %s, %s' % (sA, sA, sW))
        a('s_lshl_b32 %s, %s, 7' % (sA, sA))
        a('s_load_dword s94, s[28:29], %s' % sA)

    def cond(self, reg, val, f):
        a = self.a; l = self.label('c')
        a('s_cmp_lg_u32 %s, %d' % (reg, val)); a('s_cbranch_scc1 %s' % l)
        f()
        a(l+':')

    def build_one(self):
        a = self.a; o = self.o
        name = NAME + '_kernel'
        self.kernel_head(name); end = self.label('end')
        self.prologue1(end)
        wP, wM = o['wP'], o['wM']
        def wat(pos):
            n = 0
            if wP == pos: self.w_dma1(0); self.w_dma1(1); n += 2
            if wM == pos: self.w_dma1(2); self.w_dma1(3); n += 2
            return n
        bd = int(o['bdelay'])
        a('s_waitcnt lgkmcnt(0)')
        if bd: self.cond(sP, 0, self.p1_issue)
        else: self.p1_issue()
        if o['spf']: self.cond(sP, 1, lambda: self.code_spf(name))
        self.zero_flags()
        self.p1_addrs(); self.gen_F16(); self.coop_init()
        if bd == 1: self.cond(sP, 1, self.p1_issue)
        self.set_ready()
        self.gen_M2(); self.ex_addrs()
        misc = lambda: (self.srds(), self.calc_k0(), self.w_prep(), self.flag_addrs())
        X = [misc, self.coop_gen, lambda: (self.p2_addrs(), self.w_addr())]
        nearly = max(0, bd-2)
        def early():
            for f in X[:nearly]: f()
            self.p1_issue()
        if bd >= 2: self.cond(sP, 1, early)
        def Xat(k):
            if k < nearly: self.cond(sP, 0, X[k])
            else: X[k]()
        self.p1_compute(0, self.spec_early)
        self.stamp()
        self.ready_issue()
        Xat(0)
        n = wat('postS1')
        if o['pf']: self.code_pf(name); n += 1
        Xat(1)
        self.coop_post()
        a('s_waitcnt vmcnt(%d) lgkmcnt(0)' % n)
        self.stamp()
        self.ready_check()
        self.set_flag(0)
        self.w_sload()
        wat('postF')
        self.gen_B(True)
        Xat(2)
        self.w_special()
        self.poll(0)
        self.stamp()
        if self.o.get('fine'):
            a('s_memrealtime s[%d:%d]' % (sTS+2*self.nts, sTS+2*self.nts+1)); self.nts += 1
            self.fstamp()
        self.p2_issue()
        self.coop_wait(); self.coop_read()
        a('s_waitcnt vmcnt(4)')
        self.w_edge()
        self.p2_compute([i for i in range(4) if (wP, wM)[i >> 1] == 'postX1'])
        self.stamp()
        self.p3_addrs(); self.gen_M3()
        a('s_waitcnt vmcnt(0)')
        self.stamp()
        self.set_flag(1)
        self.p3_soff()
        self.poll(1)
        self.stamp()
        self.p3_issue()
        self.p3_compute()
        if o['ts']:
            self.stamp(); a('s_waitcnt vmcnt(0)'); self.stamp()
            if 'diag' in o:
                i = int(o['diag']); lp = self.label('dg')
                a('s_waitcnt lgkmcnt(0)')
                a('s_sub_u32 %s, s%d, s%d' % (sA, sTS+2*i, sTS))
                a('s_lshl_b32 %s, %s, 1' % (sA, sA))
                a('s_add_u32 %s, %s, 3000' % (sA, sA))
                a(lp+':')
                a('s_memrealtime s[28:29]')
                a('s_waitcnt lgkmcnt(0)')
                a('s_sub_u32 %s, s28, s%d' % (sB, sTS))
                a('s_cmp_lt_u32 %s, %s' % (sB, sA))
                a('s_cbranch_scc1 %s' % lp)
            else: self.dump_stamps(0)
        a(end+':'); a('s_endpgm'); self.flush_tail()
        a.raw('.fill (%s+16384-.)/4, 4, 0xbf810000' % name)
        launch = '; @launch grid=(256,1,1) block=(512,1,1) lds=%d\n' % LDS_TOTAL
        return self.finish(launch, [name])

    def finish(self, launch, names):
        hdr = '; GFNet spectral filter (two heads): 2-D FFT via bf16 MFMA DFT stages. Generated by dev/gen.py\n' + launch
        s = hdr + '.amdgcn_target "amdgcn-amd-amdhsa--gfx950"\n.text\n' + self.a.text()
        s += '.section .rodata,"a"\n' + '\n'.join(self.kd(n) for n in names) + '\n' + self.spec_table() + '\n'
        return s

if __name__ == '__main__':
    mode = sys.argv[1]; out = sys.argv[2]
    opt = {}
    for kv in sys.argv[3:]:
        k, x = kv.split('=')
        opt[k] = {'True': True, 'False': False}.get(x, x.replace('+', ' '))
    g = Gen(mode, **opt)
    s = g.build_three() if mode == 'three' else g.build_one()
    assert g.a.verify() == 0
    open(out, 'w').write(s)
    print('vgprs', NVGPR, 'lds', LDS_TOTAL, 'nops', g.a.nops, 'lines', len(g.a.ins))
```

```python
import sys, struct, math
import numpy as np
from asmlib import Asm

NAME = 'concat_heads__spectral_gfnet__spectral_gfnet__prompt'

def f2u(x): return struct.unpack('<I', struct.pack('<f', x))[0]
def lit(x): return '0x%08x' % f2u(x)
def bf16bits(x):
    u = f2u(float(x)); return ((u + 0x7FFF + ((u >> 16) & 1)) >> 16) & 0xFFFF
def sigma(m): return (m & 1) | ((m >> 1) & 1) << 3 | ((m >> 2) & 1) << 1 | ((m >> 3) & 1) << 2 | (m & 16)

S11 = 2.0**-11
SPIN_MAX = 0x4000
ENTRY_OFF = 0x300
R0 = 0
R1 = 33024
WL = 66048
SCR = WL + 8*4*1056
SCR_B = SCR + 36*256
TABL = SCR_B + 8192
CNT = TABL + 16384
LDS_TOTAL = CNT + 64
WS_U1 = 0
WS_U2 = 8 << 20
WS_FLAG = 16 << 20
WS_TS = 17 << 20
WS_SIZE = 18 << 20

class V: pass
_n = [0]
def alloc(n, align=1):
    b = (_n[0] + align - 1)//align*align
    _n[0] = b + n
    return b
V.tid = alloc(1); V.lane = alloc(1)
for nm in 'g n Xoff Est Eld X0w X0r0 X0r1 X1w X1r X2w X2r WP WM l16 dummy dummy2'.split(): setattr(V, nm, alloc(1))
V.Ooff, V.X3w0, V.X3w1, V.X3r = V.Xoff, V.X0w, V.X0r0, V.X0r1
V.T = alloc(10, 2)
V.O = alloc(16, 4)
V.DA = alloc(32, 4)
V.DB = alloc(32, 4)
V.L = V.DB
V.F16 = alloc(8, 4)
V.M2 = alloc(16, 4)
V.F32 = alloc(32, 4)
V.TW = alloc(32, 4)
V.W = alloc(32, 4)
V.B = alloc(12, 4)
V.Bp = alloc(8, 4)
V.WF = alloc(4)
NVGPR = _n[0]
assert NVGPR <= 256, NVGPR
def v(i): return 'v%d' % i
def vr(i, n): return 'v[%d:%d]' % (i, i+n-1)

SX, SWR, SWI, SOUT, SDBG, SWS = 's[4:7]', 's[8:11]', 's[12:15]', 's[16:19]', 's[20:23]', 's[24:27]'
sP, sT, sW, sSB, sCB, sK0 = 's30', 's31', 's32', 's33', 's34', 's35'
sKP, sKM = 's36', 's37'
sA, sB, sC, sD, sE, sF = 's40', 's41', 's42', 's43', 's44', 's45'
sEst, sEld, sCnt, sSpec = 's46', 's47', 's48', 's49'
sO = ['s52', 's53', 's54', 's55']
sRd, sRv, sInc, sWL = 's38', 's39', 's50', 's51'
ZT = 16
sTS = 56

class Gen:
    def __init__(self, mode='one', **opt):
        self.mode = mode
        self.o = dict(ldx='', ldw='', st1='sc1', st2='sc1', sto='sc1', ld1='sc1', ld2='sc1', ts=False, stagger=True, pf=False, spf=False, touch='pre', fst='sc1', fld='sc1', slp='', fsh='', pbar=False, shear=True, prio=True, wP='postX1', wM='postX1', bdelay='0', skew=True, fstride=12)
        self.o.update(opt)
        self.a = Asm()
        self.lab = 0
        self.nts = 0
        self.tail = []

    def label(self, p='L'):
        self.lab += 1
        return '%s_%d' % (p, self.lab)

    def stamp(self):
        if not self.o['ts'] or self.o.get('fine'): return
        self.a('s_memrealtime s[%d:%d]' % (sTS+2*self.nts, sTS+2*self.nts+1))
        self.nts += 1

    def fstamp(self):
        if not self.o.get('fine'): return
        self.a('s_memtime s[%d:%d]' % (sTS+2*self.nts, sTS+2*self.nts+1))
        self.nts += 1

    def dump_stamps(self, slot0=0):
        if not self.o['ts']: return
        a = self.a
        a('s_waitcnt lgkmcnt(0)')
        a('s_lshl_b32 %s, s2, 3' % sA); a('s_add_u32 %s, %s, %s' % (sA, sA, sW)); a('s_lshl_b32 %s, %s, 7' % (sA, sA))
        a('s_add_u32 %s, %s, 0x%x' % (sA, sA, WS_TS + slot0*4))
        a('s_mov_b64 exec, 1')
        a('v_mov_b32 %s, 0' % v(V.T+1))
        for i in range(self.nts):
            a('v_mov_b32 %s, s%d' % (v(V.T), sTS+2*i))
            a('buffer_store_dword %s, %s, %s, %s offen offset:%d' % (v(V.T), v(V.T+1), SWS, sA, 4*i))
            a('s_nop 1')
        a('s_mov_b64 exec, -1')
        self.nts = 0

    def prologue(self, end):
        a = self.a
        a('s_cmp_ge_u32 s2, 0x100')
        a('s_cbranch_scc1 %s' % end)
        self.stamp()
        a('s_bfe_u32 %s, s2, 0x10003' % sP)
        a('s_mul_i32 s3, %s, 24' % sP)
        a('s_add_u32 s28, s0, s3')
        a('s_addc_u32 s29, s1, 0')
        a('s_load_dwordx2 s[4:5], s[28:29], 0x0')
        a('s_load_dwordx2 s[8:9], s[28:29], 0x8')
        a('s_load_dwordx2 s[12:13], s[28:29], 0x10')
        a('s_load_dwordx2 s[16:17], s[0:1], 0x30')
        a('s_load_dwordx2 s[20:21], s[0:1], 0x38')
        a('s_load_dwordx2 s[24:25], s[0:1], 0x40')
        a('v_lshrrev_b32 %s, 6, v0' % v(V.T))
        a('v_and_b32 %s, 63, v0' % v(V.lane))
        a('v_readfirstlane_b32 %s, %s' % (sW, v(V.T)))
        a('s_and_b32 %s, s2, 7' % sA)
        a('s_xor_b32 %s, %s, 2' % (sA, sA))
        a('s_lshl_b32 %s, %s, 4' % (sT, sA))
        a('s_lshr_b32 %s, s2, 4' % sB)
        a('s_or_b32 %s, %s, %s' % (sT, sT, sB))
        a('s_lshl_b32 %s, %s, 1' % (sCB, sA))
        a('s_bfe_u32 %s, %s, 0x10001' % (sC, sB))
        a('s_or_b32 %s, %s, %s' % (sCB, sCB, sC))
        a('s_bfe_u32 %s, %s, 0x20002' % (sSB, sB))
        a('s_lshl_b32 %s, %s, 1' % (sSB, sSB))
        a('s_and_b32 %s, %s, 1' % (sC, sB))
        a('s_or_b32 %s, %s, %s' % (sSB, sSB, sC))
        a('s_mov_b32 s6, 0x400000'); a('s_mov_b32 s7, 0x20000')
        a('s_mov_b32 s10, 2101248'); a('s_mov_b32 s11, 0x20000')
        a('s_mov_b32 s14, 2101248'); a('s_mov_b32 s15, 0x20000')
        a('s_mov_b32 s18, 0x800000'); a('s_mov_b32 s19, 0x20000')
        a('s_mov_b32 s22, 256'); a('s_mov_b32 s23, 0x20000')
        a('s_mov_b32 s26, 0x%x' % WS_SIZE); a('s_mov_b32 s27, 0x20000')
        a('v_lshrrev_b32 %s, 4, %s' % (v(V.g), v(V.lane)))
        a('v_and_b32 %s, 15, %s' % (v(V.n), v(V.lane)))
        a('v_lshlrev_b32 %s, 4, %s' % (v(V.l16), v(V.lane)))

    def prologue1(self, end):
        a = self.a; T = V.T
        a('s_cmp_ge_u32 s2, 0x100')
        a('s_cbranch_scc1 %s' % end)
        a('s_bfe_u32 %s, s2, 0x10003' % sP)
        a('s_mul_i32 s3, %s, 24' % sP)
        a('s_load_dwordx2 s[4:5], s[0:1], s3')
        a('s_load_dwordx2 s[24:25], s[0:1], 0x40')
        a('s_load_dwordx2 s[8:9], s[0:1], s3 offset:8')
        a('s_load_dwordx2 s[12:13], s[0:1], s3 offset:16')
        a('s_load_dwordx2 s[16:17], s[0:1], 0x30')
        a('s_load_dwordx2 s[20:21], s[0:1], 0x38')
        self.stamp()
        a('v_lshrrev_b32 %s, 6, v0' % v(T))
        a('v_and_b32 %s, 63, v0' % v(V.lane))
        a('v_readfirstlane_b32 %s, %s' % (sW, v(T)))
        a('s_and_b32 %s, s2, 7' % sA)
        a('s_xor_b32 %s, %s, 2' % (sA, sA))
        a('s_lshr_b32 %s, s2, 4' % sB)
        a('s_lshl4_add_u32 %s, %s, %s' % (sT, sA, sB))
        a('s_bfe_u32 %s, %s, 0x10001' % (sC, sB))
        a('s_lshl1_add_u32 %s, %s, %s' % (sCB, sA, sC))
        a('s_lshr_b32 %s, %s, 2' % (sSB, sB))
        a('s_and_b32 %s, %s, 1' % (sC, sB))
        a('s_lshl1_add_u32 %s, %s, %s' % (sSB, sSB, sC))
        a('s_mov_b32 s6, 0x400000'); a('s_mov_b32 s7, 0x20000')
        a('v_lshrrev_b32 %s, 4, %s' % (v(V.g), v(V.lane)))
        a('v_lshlrev_b32 %s, 4, %s' % (v(V.l16), v(V.lane)))
        a('v_and_b32 %s, 8, v0' % v(T))
        a('v_lshlrev_b32 %s, 11, %s' % (v(T), v(T)))
        a('v_lshl_add_u32 %s, %s, 20, %s' % (v(T), v(V.g), v(T)))
        a('v_and_b32 %s, 0x70, %s' % (v(T+1), v(V.l16)))
        a('v_add_u32 %s, %s, %s' % (v(V.Xoff), v(T), v(T+1)))
        a('s_lshl4_add_u32 %s, %s, %s' % (sA, sW, sSB))
        a('s_lshl4_add_u32 %s, %s, %s' % (sA, sA, sCB))
        a('s_lshl_b32 %s, %s, 7' % (sO[0], sA))
        for r in range(1, 4): a('s_add_u32 %s, %s, 0x%x' % (sO[r], sO[0], r*262144))
        a('v_and_b32 %s, 15, %s' % (v(V.n), v(V.lane)))
        a('s_mov_b32 s26, 0x%x' % WS_SIZE); a('s_mov_b32 s27, 0x20000')
        a('s_lshl_b32 %s, %s, 7' % (sRd, sP))
    def srds(self):
        a = self.a
        a('s_mov_b32 s10, 2101248'); a('s_mov_b32 s11, 0x20000')
        a('s_mov_b32 s14, 2101248'); a('s_mov_b32 s15, 0x20000')
        a('s_mov_b32 s18, 0x800000'); a('s_mov_b32 s19, 0x20000')
        a('s_mov_b32 s22, 256'); a('s_mov_b32 s23, 0x20000')

    def ex_addrs(self):
        a = self.a
        if self.o['skew']:
            T = V.T
            a('s_lshl_b32 %s, %s, 4' % (sB, sW)); a('s_xor_b32 %s, %s, %s' % (sB, sB, sT)); a('s_lshl_b32 %s, %s, 8' % (sB, sB))
            a('v_lshlrev_b32 %s, 4, %s' % (v(T), v(V.n)))
            a('v_lshl_add_u32 %s, %s, 10, %s' % (v(T), v(V.g), v(T)))
            a('v_xor_b32 %s, %s, %s' % (v(T), sB, v(T)))
            a('v_lshl_add_u32 %s, %s, 17, %s' % (v(V.Est), v(V.g), v(T)))
            a('v_and_b32 %s, 0x7cff, %s' % (v(V.Eld), v(T)))
            a('s_lshl_b32 %s, %s, 22' % (sA, sP))
            a('s_lshl_b32 %s, %s, 19' % (sEst, sW)); a('s_add_u32 %s, %s, %s' % (sEst, sEst, sA))
            a('s_lshl_b32 %s, %s, 15' % (sEld, sT)); a('s_add_u32 %s, %s, %s' % (sEld, sEld, sA))
            return
        a('v_lshlrev_b32 %s, 4, %s' % (v(V.T), v(V.n)))
        a('v_lshl_add_u32 %s, %s, 17, %s' % (v(V.Est), v(V.g), v(V.T)))
        a('v_lshl_add_u32 %s, %s, 10, %s' % (v(V.Eld), v(V.g), v(V.T)))
        a('s_lshl_b32 %s, %s, 22' % (sA, sP))
        a('s_lshl_b32 %s, %s, 19' % (sEst, sW)); a('s_add_u32 %s, %s, %s' % (sEst, sEst, sA))
        a('s_lshl_b32 %s, %s, 8' % (sB, sT)); a('s_add_u32 %s, %s, %s' % (sEst, sEst, sB))
        a('s_lshl_b32 %s, %s, 15' % (sEld, sT)); a('s_add_u32 %s, %s, %s' % (sEld, sEld, sA))
        a('s_lshl_b32 %s, %s, 12' % (sB, sW)); a('s_add_u32 %s, %s, %s' % (sEld, sEld, sB))

    def trig(self, x, re, im, conj_re=None, conj_im=None):
        a = self.a; c, s = V.T+8, V.T+9
        a('v_cos_f32 %s, %s' % (v(c), v(x)))
        a('v_sin_f32 %s, %s' % (v(s), v(x)))
        a('v_cvt_pk_bf16_f32 %s, %s, %s' % (v(re), v(c), v(s)))
        a('v_cvt_pk_bf16_f32 %s, -%s, %s' % (v(im), v(s), v(c)))
        if conj_re is not None:
            a('v_cvt_pk_bf16_f32 %s, %s, -%s' % (v(conj_re), v(c), v(s)))
            a('v_cvt_pk_bf16_f32 %s, %s, %s' % (v(conj_im), v(s), v(c)))

    def gen_F16(self):
        a = self.a; T = V.T
        a('v_cvt_f32_u32 %s, %s' % (v(T), v(V.n)))
        a('v_mul_f32 %s, %s, %s' % (v(T), lit(1/16), v(T)))
        a('v_cvt_f32_u32 %s, %s' % (v(T+1), v(V.g)))
        a('v_mul_f32 %s, 4.0, %s' % (v(T+1), v(T+1)))
        a('v_mul_f32 %s, %s, %s' % (v(T+2), v(T), v(T+1)))
        for r in range(4):
            self.trig(T+2, V.F16+r, V.F16+4+r)
            if r < 3: a('v_add_f32 %s, %s, %s' % (v(T+2), v(T+2), v(T)))

    def gen_M2(self):
        a = self.a; T = V.T
        a('v_cvt_f32_u32 %s, %s' % (v(T+1), v(V.g)))
        a('v_mul_f32 %s, 4.0, %s' % (v(T+1), v(T+1)))
        def normal():
            a('v_lshl_add_u32 %s, %s, 4, %s' % (v(T), v(V.n), sW))
            a('v_cvt_f32_u32 %s, %s' % (v(T), v(T)))
            a('v_mul_f32 %s, %s, %s' % (v(T), lit(1/256), v(T)))
            a('v_mul_f32 %s, %s, %s' % (v(T+2), v(T), v(T+1)))
            for r in range(4):
                self.trig(T+2, V.M2+r, V.M2+4+r, V.M2+8+r, V.M2+12+r)
                if r < 3: a('v_add_f32 %s, %s, %s' % (v(T+2), v(T+2), v(T)))
        def w0():
            a('v_lshrrev_b32 %s, 1, %s' % (v(T), v(V.n)))
            a('v_cvt_f32_u32 %s, %s' % (v(T), v(T)))
            a('v_lshlrev_b32 %s, 31, %s' % (v(T+3), v(V.n)))
            a('v_add_f32 %s, 0.5, %s' % (v(T+4), v(T)))
            a('v_xor_b32 %s, %s, %s' % (v(T+3), lit(1/16), v(T+3)))
            a('v_mul_f32 %s, %s, %s' % (v(T), v(T), v(T+3)))
            a('v_mul_f32 %s, %s, %s' % (v(T+4), v(T+4), v(T+3)))
            a('v_cmp_ne_u32 vcc, 1, %s' % v(V.n))
            a('v_cndmask_b32 %s, 0.5, %s, vcc' % (v(T), v(T)))
            for ts in range(2):
                d = T+4*ts
                a('v_mul_f32 %s, %s, %s' % (v(T+2), v(d), v(T+1)))
                for r in range(4):
                    self.trig(T+2, V.M2+8*ts+r, V.M2+8*ts+4+r)
                    if r < 3: a('v_add_f32 %s, %s, %s' % (v(T+2), v(T+2), v(d)))
        self.ifelse(sW, 0, w0, normal)

    def gen_M3(self):
        a = self.a; T = V.T
        a('v_cvt_f32_u32 %s, %s' % (v(T), v(V.n)))
        a('v_mul_f32 %s, %s, %s' % (v(T+1), lit(1/256), v(T)))
        a('v_mul_f32 %s, %s, %s' % (v(T), lit(1/16), v(T)))
        def normal():
            a('v_lshl_add_u32 %s, %s, 6, %s' % (v(T+2), v(V.g), sW))
            a('v_cvt_f32_u32 %s, %s' % (v(T+2), v(T+2)))
            a('v_mul_f32 %s, %s, %s' % (v(T+2), v(T+2), v(T+1)))
            for r in range(4):
                self.trig(T+2, V.M2+r, V.M2+4+r, V.M2+8+r, V.M2+12+r)
                if r < 3: a('v_add_f32 %s, %s, %s' % (v(T+2), v(T+2), v(T)))
        def w0():
            for ts in range(2):
                a('v_lshlrev_b32 %s, 5, %s' % (v(T+2), v(V.g)))
                if ts: a('v_add_u32 %s, 8, %s' % (v(T+2), v(T+2)))
                a('v_cvt_f32_u32 %s, %s' % (v(T+2), v(T+2)))
                a('v_mul_f32 %s, %s, %s' % (v(T+2), v(T+2), v(T+1)))
                for eb in range(2):
                    b = V.M2+8*ts
                    self.trig(T+2, b+2*eb, b+4+2*eb, b+2*eb+1, b+4+2*eb+1)
                    if eb == 0: a('v_add_f32 %s, %s, %s' % (v(T+2), v(T+2), v(T)))
            a('s_mov_b64 exec, 0xffff')
            a('v_lshlrev_b32 %s, 15, %s' % (v(T+2), v(V.n)))
            a('v_and_b32 %s, 0x8000, %s' % (v(T+2), v(T+2)))
            a('v_or_b32 %s, 0x3f80, %s' % (v(V.M2+1), v(T+2)))
            a('v_lshlrev_b32 %s, 16, %s' % (v(V.M2+5), v(V.M2+1)))
            a('s_mov_b64 exec, -1')
        self.ifelse(sW, 0, w0, normal)

    def sigma_lane(self, dst):
        a = self.a; T = V.T
        a('v_and_b32 %s, 17, %s' % (v(dst), v(V.lane)))
        a('v_bfe_u32 %s, %s, 2, 2' % (v(T+7), v(V.lane)))
        a('v_lshl_add_u32 %s, %s, 1, %s' % (v(dst), v(T+7), v(dst)))
        a('v_bfe_u32 %s, %s, 1, 1' % (v(T+7), v(V.lane)))
        a('v_lshl_add_u32 %s, %s, 3, %s' % (v(dst), v(T+7), v(dst)))

    def gen_F32TW(self):
        a = self.a; T = V.T
        self.sigma_lane(T)
        a('v_cvt_f32_u32 %s, %s' % (v(T), v(T)))
        a('v_mul_f32 %s, %s, %s' % (v(T), lit(1/1024), v(T)))
        a('v_lshrrev_b32 %s, 5, %s' % (v(T+1), v(V.lane)))
        a('v_cvt_f32_u32 %s, %s' % (v(T+1), v(T+1)))
        a('v_add_f32 %s, %s, %s' % (v(T+1), v(T+1), v(T+1)))
        a('v_mul_f32 %s, %s, %s' % (v(T+1), v(T+1), v(T)))
        for rho in range(16):
            k = sigma(8*(rho >> 2) + (rho & 3))
            a('v_fmamk_f32 %s, %s, %s, %s' % (v(T+2), v(T), lit(float(k)), v(T+1)))
            a('v_mul_f32 %s, %s, %s' % (v(T+3), lit(32.0), v(T+2)))
            a('v_cos_f32 %s, %s' % (v(V.TW+rho), v(T+2)))
            a('v_sin_f32 %s, %s' % (v(V.TW+16+rho), v(T+2)))
            self.trig(T+3, V.F32+rho, V.F32+16+rho)

    def coop_gen(self):
        a = self.a; T = V.T; X = V.DA
        self.sigma_lane(T)
        a('v_cvt_f32_u32 %s, %s' % (v(T), v(T)))
        a('v_mul_f32 %s, %s, %s' % (v(T), lit(1/1024), v(T)))
        a('s_and_b32 %s, %s, 1' % (sA, sW)); a('s_lshl_b32 %s, %s, 3' % (sA, sA))
        a('s_and_b32 %s, %s, 2' % (sB, sW)); a('s_lshl_b32 %s, %s, 1' % (sB, sB)); a('s_add_u32 %s, %s, %s' % (sA, sA, sB))
        a('s_and_b32 %s, %s, 4' % (sB, sW)); a('s_lshl_b32 %s, %s, 2' % (sB, sB)); a('s_add_u32 %s, %s, %s' % (sA, sA, sB))
        a('v_lshrrev_b32 %s, 5, %s' % (v(T+1), v(V.lane)))
        a('v_lshl_add_u32 %s, %s, 1, %s' % (v(T+1), v(T+1), sA))
        a('v_cvt_f32_u32 %s, %s' % (v(T+1), v(T+1)))
        a('v_mul_f32 %s, %s, %s' % (v(T+2), v(T+1), v(T)))
        for e in range(2):
            a('v_mul_f32 %s, %s, %s' % (v(T+3), lit(32.0), v(T+2)))
            if self.o['shear']:
                a('v_mul_f32 %s, 0.5, %s' % (v(T+4), v(T+2)))
                a('v_cos_f32 %s, %s' % (v(T+5), v(T+4)))
                a('v_sin_f32 %s, %s' % (v(T+6), v(T+4)))
                a('v_rcp_f32 %s, %s' % (v(T+5), v(T+5)))
                a('v_mul_f32 %s, %s, %s' % (v(X+4+e), v(T+6), v(T+5)))
                a('v_fma_f32 %s, %s, %s, 1.0' % (v(T+5), v(X+4+e), v(X+4+e)))
                a('v_rcp_f32 %s, %s' % (v(T+6), v(T+5)))
                a('v_fma_f32 %s, -%s, %s, 1.0' % (v(T+5), v(T+5), v(T+6)))
                a('v_fmac_f32 %s, %s, %s' % (v(T+6), v(T+5), v(T+6)))
                a('v_mul_f32 %s, -2.0, %s' % (v(T+6), v(T+6)))
                a('v_mul_f32 %s, %s, %s' % (v(X+6+e), v(T+6), v(X+4+e)))
            else:
                a('v_cos_f32 %s, %s' % (v(X+4+e), v(T+2)))
                a('v_sin_f32 %s, %s' % (v(X+6+e), v(T+2)))
            self.trig(T+3, X+e, X+2+e)
            if e == 0: a('v_add_f32 %s, %s, %s' % (v(T+2), v(T+2), v(T)))
        a('s_lshr_b32 %s, %s, 1' % (sA, sW)); a('s_lshl_b32 %s, %s, 10' % (sA, sA))
        a('s_and_b32 %s, %s, 1' % (sB, sW)); a('s_lshl_b32 %s, %s, 3' % (sB, sB)); a('s_add_u32 %s, %s, %s' % (sA, sA, sB))
        a('s_add_u32 %s, %s, %d' % (sA, sA, TABL))
        a('v_add_u32 %s, %s, %s' % (v(T), sA, v(V.l16)))
        for k in range(4):
            a('ds_write_b64 %s, %s offset:%d' % (v(T), vr(X+2*k, 2), 4096*k))
    def coop_init(self):
        a = self.a; T = V.T
        a('v_mov_b32 %s, %d' % (v(V.dummy2), CNT)); a('v_mov_b32 %s, 0' % v(T))
        a('ds_write_b32 %s, %s' % (v(V.dummy2), v(T)))
    def coop_post(self):
        a = self.a; T = V.T
        a('v_mov_b32 %s, 1' % v(T+1))
        a('ds_add_u32 %s, %s' % (v(V.dummy2), v(T+1)))
    def coop_wait(self):
        a = self.a; T = V.T; lp, ok = self.label('cw'), self.label('cwok')
        a('s_mov_b32 %s, 0' % sCnt)
        a(lp+':')
        a('ds_read_b32 %s, %s' % (v(T), v(V.dummy2)))
        a('s_add_u32 %s, %s, 1' % (sCnt, sCnt))
        a('s_cmp_gt_u32 %s, 0x%x' % (sCnt, SPIN_MAX*8))
        a('s_waitcnt lgkmcnt(0)')
        a('s_cbranch_scc1 %s' % ok)
        a('v_cmp_gt_u32 vcc, 0x200, %s' % v(T))
        a('s_cbranch_vccnz %s' % lp)
        a(ok+':')
    def coop_read(self):
        a = self.a; T = V.T
        assert V.TW == V.F32+32
        a('v_add_u32 %s, %d, %s' % (v(T), TABL, v(V.l16)))
        for k in range(16):
            a('ds_read_b128 %s, %s offset:%d' % (vr(V.F32+4*k, 4), v(T), 1024*k))

    def calc_k0(self):
        a = self.a
        a('s_lshr_b32 %s, %s, 4' % (sA, sT))
        a('s_and_b32 %s, %s, 15' % (sB, sT))
        a('s_lshl_b32 %s, %s, 4' % (sK0, sB))
        a('s_add_u32 %s, %s, %s' % (sK0, sK0, sA))
        a('s_lshr_b32 %s, %s, 2' % (sC, sB)); a('s_lshl_b32 %s, %s, 5' % (sC, sC))
        a('s_and_b32 %s, %s, 1' % (sD, sB)); a('s_lshl_b32 %s, %s, 4' % (sD, sD)); a('s_add_u32 %s, %s, %s' % (sC, sC, sD))
        a('s_and_b32 %s, %s, 2' % (sD, sB)); a('s_lshl_b32 %s, %s, 2' % (sD, sD)); a('s_add_u32 %s, %s, %s' % (sC, sC, sD))
        a('s_cmp_eq_u32 %s, 0' % sA)
        a('s_cselect_b32 %s, %s, %s' % (sK0, sC, sK0))
        a('s_cmp_eq_u32 %s, 0' % sT)
        a('s_cselect_b32 %s, 7, 8' % sA)
        a('s_lshl_b32 %s, %s, %s' % (sKP, sW, sA))
        a('s_add_u32 %s, %s, %s' % (sKP, sKP, sK0))
        a('s_sub_u32 %s, 0x800, %s' % (sKM, sKP))
        a('s_cmp_eq_u32 %s, 0' % sKP)
        a('s_cselect_b32 %s, 0x400, %s' % (sKM, sKM))
        a('s_cselect_b32 %s, 1, 0' % sSpec)
        a('s_mul_i32 %s, %s, 1026' % (sKP, sKP))
        a('s_mul_i32 %s, %s, 1026' % (sKM, sKM))

    def wq(self, rho): return (rho & 1) + 8*((rho >> 1) & 1) + 4*((rho >> 2) & 1)
    def w_prep(self):
        a = self.a
        a('s_mul_i32 %s, %s, 4224' % (sWL, sW))
        a('s_add_u32 %s, %s, %d' % (sWL, sWL, WL))
    def w_dma1(self, i):
        a = self.a
        srd, so = [(SWR, sKP), (SWI, sKP), (SWR, sKM), (SWI, sKM)][i]
        a('s_add_u32 m0, %s, %d' % (sWL, 1056*i))
        a('buffer_load_dwordx4 %s, %s, %s offen %s lds' % (v(V.l16), srd, so, self.o['ldw']))
    def w_dma(self):
        for i in range(4): self.w_dma1(i)
    def w_sload(self):
        a = self.a; T = V.T
        a('s_mov_b64 exec, 15')
        a('v_mov_b32 %s, %s' % (v(T), sKP)); a('v_mov_b32 %s, %s' % (v(T+1), sKM))
        a('s_mov_b64 vcc, 10')
        a('v_cndmask_b32 %s, %s, %s, vcc' % (v(T), v(T), v(T+1)))
        a('v_and_b32 %s, 2, %s' % (v(T+1), v(V.lane)))
        a('v_lshl_add_u32 %s, %s, 9, %s' % (v(T), v(T+1), v(T)))
        a('buffer_load_short_d16_hi %s, %s, %s, 0 offen' % (v(V.WF), v(T), SWR))
        a('buffer_load_short_d16_hi %s, %s, %s, 0 offen' % (v(V.WF+1), v(T), SWI))
        a('s_mov_b64 exec, -1')
    def w_edge_rl(self):
        a = self.a
        for l in range(4):
            for im in range(2):
                a('v_readlane_b32 s%d, %s, %d' % (84+2*l+im, v(V.WF+im), l))
    def w_edge(self):
        a = self.a; T = V.T
        self.w_edge_rl()
        for i, (x, y, op) in enumerate(((84, 86, 'add'), (85, 87, 'sub'), (90, 88, 'add'), (91, 89, 'sub'))):
            a('v_mov_b32 %s, s%d' % (v(T), y))
            a('v_%s_f32 %s, s%d, %s' % (op, v(V.WF+i), x, v(T)))
            a('v_mul_f32 %s, 0.5, %s' % (v(V.WF+i), v(V.WF+i)))
        a('s_mov_b64 s[92:93], 1')
    def w_addr(self):
        a = self.a; T = V.T
        self.sigma_lane(T)
        a('v_lshrrev_b32 %s, 5, %s' % (v(T+1), v(V.lane)))
        a('v_lshlrev_b32 %s, 7, %s' % (v(T+1), v(T+1)))
        a('v_lshl_add_u32 %s, %s, 1, %s' % (v(T), v(T), v(T+1)))
        a('v_add_u32 %s, %s, %s' % (v(V.WP), sWL, v(T)))
        a('s_add_u32 %s, %s, %d' % (sD, sWL, 1024-832))
        a('v_sub_u32 %s, %s, %s' % (v(V.WM), sD, v(T)))
    def w_read(self, rho, dst=None, swap=False):
        a = self.a; dst = V.W if dst is None else dst
        for im in range(2):
            if rho < 8: ad, off = V.WP, 64*self.wq(rho) + (2112 if swap else 0)
            else: ad, off = V.WM, 64*(13-self.wq(rho)) + (0 if swap else 2112)
            a('ds_read_u16_d16_hi %s, %s offset:%d' % (v(dst+16*im+rho), v(ad), off+1056*im))
    def w_fix(self, half):
        a = self.a
        for im in range(2):
            r = V.W+8*half+16*im
            a('v_cndmask_b32 %s, %s, %s, s[92:93]' % (v(r), v(r), v(V.WF+2*half+im)))
    def w_regs_early(self):
        a = self.a
        for rho in range(16): self.w_read(rho)
        a('s_waitcnt lgkmcnt(0)')
        self.w_fix(0); self.w_fix(1)
    def w_special(self):
        a = self.a; T = V.T
        l0, l1 = self.label('Wspec'), self.label('Wend')
        a('s_cmp_eq_u32 %s, 1' % sSpec)
        a('s_cbranch_scc1 %s' % l0)
        a(l1+':')
        def tail():
            X = V.DA
            a(l0+':')
            for rho in range(16): self.w_read(rho)
            for rho in range(16): self.w_read(rho, X, True)
            a('s_waitcnt lgkmcnt(0) vmcnt(0)')
            self.w_edge_rl()
            a('s_mov_b64 exec, 1')
            for r in (V.W+16, V.W+24, X+16, X+24): a('v_mov_b32 %s, 0' % v(r))
            a('v_mov_b32 %s, s90' % v(V.W+8)); a('v_mov_b32 %s, s88' % v(X+8))
            a('s_mov_b64 exec, -1')
            for i in range(32):
                a('v_add_f32 %s, %s, %s' % (v(T+3), v(V.W+i), v(X+i)))
                if (i & 15) < 8: a('v_sub_f32 %s, %s, %s' % (v(X+i), v(V.W+i), v(X+i)))
                else: a('v_sub_f32 %s, %s, %s' % (v(X+i), v(X+i), v(V.W+i)))
                a('v_mov_b32 %s, %s' % (v(V.W+i), v(T+3)))
            a('v_add_u32 %s, %d, %s' % (v(T+1), SCR_B, v(V.l16)))
            for i in range(8):
                a('ds_write_b128 %s, %s offset:%d' % (v(T+1), vr(X+4*i, 4), 1024*i))
            a('s_waitcnt lgkmcnt(0)')
            a('s_branch %s' % l1)
        self.tail.append(tail)

    def gen_B(self, early=False):
        a = self.a; T = V.T
        l0, l1 = self.label('Bspec'), self.label('Bend')
        a('s_cmp_eq_u32 %s, 0' % sT)
        a('s_cbranch_scc1 %s' % (l1 if early else l0))
        c, s = T+8, T+9
        a('v_lshrrev_b32 %s, 1, %s' % (v(T), v(V.n)))
        a('v_lshl_add_u32 %s, %s, 8, %s' % (v(T+1), v(T), sK0))
        a('v_cvt_f32_u32 %s, %s' % (v(T+1), v(T+1)))
        a('v_mul_f32 %s, %s, %s' % (v(T+1), lit(1/2048), v(T+1)))
        a('v_cvt_f32_u32 %s, %s' % (v(T+2), v(V.g)))
        a('v_add_f32 %s, %s, %s' % (v(T+2), v(T+2), v(T+2)))
        a('v_and_b32 %s, 1, %s' % (v(T+3), v(V.n)))
        a('v_cvt_f32_u32 %s, %s' % (v(T+3), v(T+3)))
        a('v_mul_f32 %s, %s, %s' % (v(T+4), lit(0.25), v(T+3)))
        a('v_mul_f32 %s, %s, %s' % (v(T+5), v(T+1), v(T+2)))
        for sbb in range(2):
            for half in range(2):
                a('v_%s_f32 %s, %s, %s' % ('sub' if half else 'add', v(T+6), v(T+5), v(T+4)))
                a('v_cos_f32 %s, %s' % (v(c), v(T+6)))
                a('v_sin_f32 %s, %s' % (v(s), v(T+6)))
                a('v_mul_f32 %s, %s, %s' % (v(c), lit(S11), v(c)))
                a('v_mul_f32 %s, %s, %s' % (v(s), lit(S11), v(s)))
                ng = '-' if half else ''
                a('v_cvt_pk_bf16_f32 %s, %s, %s%s' % (v(V.B+2*sbb+half), v(c), ng, v(s)))
                a('v_cvt_pk_bf16_f32 %s, -%s, %s%s' % (v(V.B+6+2*sbb+half), v(s), ng, v(c)))
            if sbb == 0: a('v_add_f32 %s, %s, %s' % (v(T+5), v(T+5), v(T+1)))
        a('v_cvt_f32_u32 %s, %s' % (v(T), v(T)))
        a('v_lshlrev_b32 %s, 31, %s' % (v(T+4), v(V.n)))
        a('v_xor_b32 %s, %s, %s' % (v(T), v(T), v(T+4)))
        a('v_xor_b32 %s, %s, %s' % (v(T+4), lit(S11), v(T+4)))
        a('v_lshl_add_u32 %s, %s, 9, %s' % (v(T+1), v(V.g), sK0))
        a('v_cvt_f32_u32 %s, %s' % (v(T+1), v(T+1)))
        a('v_mul_f32 %s, %s, %s' % (v(T+1), lit(1/2048), v(T+1)))
        a('v_mul_f32 %s, %s, %s' % (v(T+5), v(T+1), v(T)))
        a('v_fmac_f32 %s, 0.5, %s' % (v(T+5), v(T+3)))
        for ii in range(2):
            a('v_cos_f32 %s, %s' % (v(c), v(T+5)))
            a('v_sin_f32 %s, %s' % (v(s), v(T+5)))
            a('v_mul_f32 %s, %s, %s' % (v(T+6), v(T+4), v(c)))
            a('v_mul_f32 %s, %s, %s' % (v(T+7), v(T+4), v(s)))
            a('v_mul_f32 %s, %s, %s' % (v(c), lit(S11), v(c)))
            a('v_mul_f32 %s, %s, %s' % (v(s), lit(S11), v(s)))
            a('v_cvt_pk_bf16_f32 %s, %s, %s' % (v(V.Bp+2*ii), v(c), v(T+7)))
            a('v_cvt_pk_bf16_f32 %s, -%s, %s' % (v(V.Bp+4+2*ii), v(s), v(T+6)))
            a('v_cvt_pk_bf16_f32 %s, -%s, %s' % (v(V.Bp+2*ii+1), v(s), v(T+6)))
            a('v_cvt_pk_bf16_f32 %s, -%s, -%s' % (v(V.Bp+4+2*ii+1), v(c), v(T+7)))
            if ii == 0: a('v_fmac_f32 %s, %s, %s' % (v(T+5), lit(0.125), v(T)))
        a(l1+':')
        a('v_mov_b32 %s, %s' % (v(V.B+4), v(V.B))); a('v_mov_b32 %s, %s' % (v(V.B+5), v(V.B+1)))
        a('v_mov_b32 %s, %s' % (v(V.B+10), v(V.B+6))); a('v_mov_b32 %s, %s' % (v(V.B+11), v(V.B+7)))
        def tail():
            a(l0+':')
            if not early: self.spec_load(); a('s_waitcnt vmcnt(0)')
            a('s_branch %s' % l1)
        if not early: self.tail.append(tail)
    def spec_load(self):
        a = self.a
        a('s_getpc_b64 s[28:29]')
        a('s_add_u32 s28, s28, spec_tab@rel32@lo+4')
        a('s_addc_u32 s29, s29, spec_tab@rel32@hi+12')
        a('global_load_dwordx4 %s, %s, s[28:29]' % (vr(V.B, 4), v(V.l16)))
        a('global_load_dwordx4 %s, %s, s[28:29] offset:1024' % (vr(V.B+6, 4), v(V.l16)))
        a('global_load_dwordx4 %s, %s, s[28:29] offset:2048' % (vr(V.Bp, 4), v(V.l16)))
        a('global_load_dwordx4 %s, %s, s[28:29] offset:3072' % (vr(V.Bp+4, 4), v(V.l16)))
    def spec_early(self):
        a = self.a
        def g():
            self.srds()
            a('s_mov_b32 %s, 0' % sKP); a('s_mov_b32 %s, %d' % (sKM, 1024*1026)); a('s_mov_b32 %s, %d' % (sWL, WL))
            self.w_dma()
        def f():
            self.spec_load(); self.cond(sW, 0, g)
        self.cond(sT, 0, f)

    def spec_table(self):
        tab = np.zeros((4, 64, 4, 2))
        for lane in range(64):
            m, g = lane & 15, lane >> 4
            for r in range(4):
                t, c = m >> 1, m & 1; sb, hf = 2*g + (r >> 1), r & 1
                if hf == (t & 1):
                    th = 2*math.pi*sb*t/16
                    tab[0, lane, r, c] = (2*S11 if t else S11)*math.cos(th)
                    tab[1, lane, r, c] = -2*S11*math.sin(th) if t else S11*(-1.0)**sb
                sb, hf = m >> 1, m & 1; t, c = 2*g + (r >> 1), r & 1
                if hf == (t & 1):
                    th = 2*math.pi*sb*t/16
                    if t: cre, cim = 2*math.cos(th), -2*math.sin(th)
                    else: cre, cim = 1.0, (-1.0)**sb
                    pl = 2 + (1 - c)
                    tab[pl, lane, r, 0] = S11*cim
                    tab[pl, lane, r, 1] = S11*cre
        tab[abs(tab) < 1e-12] = 0
        out = ['.p2align 6', '.type spec_tab,@object', 'spec_tab:']
        w = [bf16bits(tab[p, l, r, 0]) | bf16bits(tab[p, l, r, 1]) << 16 for p in range(4) for l in range(64) for r in range(4)]
        for i in range(0, len(w), 8):
            out.append('.long ' + ','.join('0x%x' % x for x in w[i:i+8]))
        return '\n'.join(out)

    def p1_load(self):
        a = self.a; T = V.T
        a('v_bfe_u32 %s, %s, 3, 1' % (v(T), v(V.lane)))
        a('v_lshlrev_b32 %s, 14, %s' % (v(T), v(T)))
        a('v_lshl_add_u32 %s, %s, 20, %s' % (v(T), v(V.g), v(T)))
        a('v_and_b32 %s, 0x70, %s' % (v(T+1), v(V.l16)))
        a('v_add_u32 %s, %s, %s' % (v(V.Xoff), v(T), v(T+1)))
        a('s_lshl_b32 %s, %s, 15' % (sO[0], sW))
        a('s_lshl_b32 %s, %s, 11' % (sA, sSB)); a('s_add_u32 %s, %s, %s' % (sO[0], sO[0], sA))
        a('s_lshl_b32 %s, %s, 7' % (sA, sCB)); a('s_add_u32 %s, %s, %s' % (sO[0], sO[0], sA))
        for r in range(1, 4): a('s_add_u32 %s, %s, 0x%x' % (sO[r], sO[0], r*262144))
    def p1_issue(self):
        a = self.a
        for r in range(4):
            a('buffer_load_dwordx4 %s, %s, %s, %s offen %s' % (vr(V.L+4*r, 4), v(V.Xoff), SX, sO[r], self.o['ldx']))
    def p1_addrs(self):
        a = self.a; T = V.T
        a('v_xor_b32 %s, %s, %s' % (v(T), sSB, v(V.lane)))
        a('v_and_b32 %s, 1, %s' % (v(T), v(T)))
        a('v_mul_u32_u24 %s, 16448, %s' % (v(T), v(T)))
        a('v_lshl_add_u32 %s, %s, 12, %s' % (v(T), v(V.g), v(T)))
        a('v_and_b32 %s, 14, %s' % (v(T+1), v(V.lane)))
        a('v_lshl_add_u32 %s, %s, 3, %s' % (v(T), v(T+1), v(T)))
        a('s_lshr_b32 %s, %s, 2' % (sA, sW)); a('s_lshl_b32 %s, %s, 9' % (sA, sA))
        a('s_and_b32 %s, %s, 1' % (sB, sW)); a('s_lshl_b32 %s, %s, 8' % (sB, sB)); a('s_add_u32 %s, %s, %s' % (sA, sA, sB))
        a('s_and_b32 %s, %s, 2' % (sB, sW)); a('s_lshl_b32 %s, %s, 6' % (sB, sB)); a('s_add_u32 %s, %s, %s' % (sA, sA, sB))
        if R0: a('s_add_u32 %s, %s, %d' % (sA, sA, R0))
        a('v_add_u32 %s, %s, %s' % (v(V.X0w), sA, v(T)))
        self.tr_lane(T, 512, 128)
        a('s_lshl_b32 %s, %s, 10' % (sA, sW))
        a('s_sub_u32 %s, 0x4000, %s' % (sB, sA))
        a('s_cmp_eq_u32 %s, 0' % sW)
        a('s_cselect_b32 %s, 0x2000, %s' % (sB, sB))
        if R0: a('s_add_u32 %s, %s, %d' % (sA, sA, R0)); a('s_add_u32 %s, %s, %d' % (sB, sB, R0))
        a('v_add_u32 %s, %s, %s' % (v(V.X0r0), sA, v(T)))
        a('v_add_u32 %s, %s, %s' % (v(V.X0r1), sB, v(T)))
    def tr_lane(self, dst, g1s, g0s, b3s=64):
        a = self.a; t = V.T+7
        sh = lambda x: int(math.log2(x))
        a('v_and_b32 %s, 0x30, %s' % (v(dst), v(V.l16)))
        for bit, st in ((2, 8), (3, b3s), (4, g0s), (5, g1s)):
            a('v_bfe_u32 %s, %s, %d, 1' % (v(t), v(V.lane), bit))
            a('v_lshl_add_u32 %s, %s, %d, %s' % (v(dst), v(t), sh(st), v(dst)))

    def mf16(self, d, A, B):
        self.a('v_mfma_f32_16x16x32_bf16 %s, %s, %s, 0' % (vr(d, 4), vr(A, 4), vr(B, 4)))
    def cvt(self, d, lo, hi):
        self.a('v_cvt_pk_bf16_f32 %s, %s, %s' % (v(d), v(lo), v(hi)))

    def p1_compute(self, nafter, hook=None, hook2=None):
        a = self.a; O, L, D = V.O, V.L, V.DA
        for r in range(4):
            a('s_waitcnt vmcnt(%d)' % (nafter + 3 - r))
            if r == 3: self.stamp()
            for t in range(4):
                a('v_mov_b32 %s, %s' % (v(O+4*t+r), v(L+4*r+t)))
        for t in range(4):
            self.mf16(D+4*t, V.F16, O+4*t)
            self.mf16(D+16+4*t, V.F16+4, O+4*t)
        if hook: hook()
        P = V.DB
        for r in range(4):
            self.cvt(P+4*r, D+r, D+4+r); self.cvt(P+4*r+2, D+16+r, D+20+r)
        for r in range(4):
            self.cvt(P+4*r+1, D+8+r, D+12+r); self.cvt(P+4*r+3, D+24+r, D+28+r)
            a('ds_write_b128 %s, %s offset:%d' % (v(V.X0w), vr(P+4*r, 4), 1024*r))
        a('s_waitcnt lgkmcnt(0)')
        a('s_barrier')
        for sel in range(2):
            for tau in range(2):
                for ii in range(2):
                    a('ds_read_b64_tr_b16 %s, %s offset:%d' % (vr(O+4*(2*sel+tau)+2*ii, 2), v(V.X0r1 if sel else V.X0r0), tau*16448+ii*256))
        if hook2: hook2()
        for r in range(4): a('s_add_u32 %s, %s, 0x%x' % (sO[r], sEst, WS_U1 + r*32768))
        for ti in range(4):
            a('s_waitcnt lgkmcnt(%d)' % (6-2*ti))
            self.mf16(D+4*ti, V.M2+8*(ti >> 1), O+4*ti)
            self.mf16(D+16+4*ti, V.M2+8*(ti >> 1)+4, O+4*ti)
        st = lambda i: a('buffer_store_dwordx4 %s, %s, %s, %s offen %s' % (vr(P+4*i, 4), v(V.Est), SWS, sO[i], self.o['st1']))
        def normal():
            for i in range(4):
                for tau in range(2): self.cvt(P+4*i+2*tau, D+4*tau+i, D+16+4*tau+i)
            for i in range(4):
                for tau in range(2): self.cvt(P+4*i+2*tau+1, D+4*(2+tau)+i, D+16+4*(2+tau)+i)
                st(i)
        def w0():
            for i in range(4):
                ts, eb = i >> 1, i & 1
                for tau in range(2):
                    for sg in range(2):
                        x = 4*(2*ts+tau)+2*eb+sg
                        self.cvt(P+4*i+2*tau+sg, D+x, D+16+x)
                st(i)
        self.ifelse(sW, 0, w0, normal)

    def p2_addrs(self):
        a = self.a; T = V.T
        a('v_lshlrev_b32 %s, 4, %s' % (v(T), v(V.n)))
        a('v_lshl_add_u32 %s, %s, 13, %s' % (v(T), v(V.g), v(T)))
        a('s_lshl_b32 %s, %s, 9' % (sA, sW)); a('s_add_u32 %s, %s, %d' % (sA, sA, R1))
        a('v_add_u32 %s, %s, %s' % (v(V.X1w), sA, v(T)))
        self.tr_lane(T, 256, 64, 128)
        a('s_lshl_b32 %s, %s, 12' % (sA, sW)); a('s_add_u32 %s, %s, %d' % (sA, sA, R1))
        a('v_add_u32 %s, %s, %s' % (v(V.X1r), sA, v(T)))
        a('v_and_b32 %s, 16, %s' % (v(T), v(V.l16)))
        for bit, st in ((1, 16448), (2, 8224)):
            a('v_bfe_u32 %s, %s, %d, 1' % (v(T+1), v(V.lane), bit))
            a('v_mul_u32_u24 %s, %d, %s' % (v(T+1), st, v(T+1)))
            a('v_add_u32 %s, %s, %s' % (v(T), v(T), v(T+1)))
        a('v_bfe_u32 %s, %s, 3, 2' % (v(T+1), v(V.lane)))
        a('v_lshl_add_u32 %s, %s, 11, %s' % (v(T), v(T+1), v(T)))
        a('v_and_b32 %s, 32, %s' % (v(T+1), v(V.lane)))
        a('v_add_u32 %s, %s, %s' % (v(T), v(T), v(T+1)))
        a('s_lshr_b32 %s, %s, 2' % (sA, sW)); a('s_lshl_b32 %s, %s, 9' % (sA, sA))
        a('s_and_b32 %s, %s, 1' % (sB, sW)); a('s_lshl_b32 %s, %s, 8' % (sB, sB)); a('s_add_u32 %s, %s, %s' % (sA, sA, sB))
        a('s_and_b32 %s, %s, 2' % (sB, sW)); a('s_lshl_b32 %s, %s, 6' % (sB, sB)); a('s_add_u32 %s, %s, %s' % (sA, sA, sB))
        if R0: a('s_add_u32 %s, %s, %d' % (sA, sA, R0))
        a('v_add_u32 %s, %s, %s' % (v(V.X2w), sA, v(T)))
        self.tr_lane(T, 512, 128)
        a('s_and_b32 %s, %s, 1' % (sA, sW)); a('s_lshl_b32 %s, %s, 11' % (sA, sA))
        a('s_bfe_u32 %s, %s, 0x10001' % (sB, sW)); a('s_mul_i32 %s, %s, 16448' % (sB, sB)); a('s_add_u32 %s, %s, %s' % (sA, sA, sB))
        a('s_lshr_b32 %s, %s, 2' % (sB, sW)); a('s_lshl_b32 %s, %s, 12' % (sB, sB)); a('s_add_u32 %s, %s, %s' % (sA, sA, sB))
        if R0: a('s_add_u32 %s, %s, %d' % (sA, sA, R0))
        a('v_add_u32 %s, %s, %s' % (v(V.X2r), sA, v(T)))

    def p2_issue(self):
        a = self.a
        a('s_add_u32 %s, %s, 0x%x' % (sA, sEld, WS_U1))
        for q in range(4):
            a('buffer_load_dwordx4 %s, %s, %s, %s offen offset:%d %s' % (vr(V.L+12*(q >> 1)+4*(q & 1), 4), v(V.Eld), SWS, sA, 256*q, self.o['ld1']))

    def mf32(self, d, i, dataA):
        for pl in range(2):
            M = vr(V.F32+16*pl+4*i, 4); X = vr(V.O+4*i, 4)
            A, B = (X, M) if dataA else (M, X)
            D = vr(d+16*pl, 16)
            self.a('v_mfma_f32_32x32x16_bf16 %s, %s, %s, %s' % (D, A, B, D if i else '0'))

    def cmul_stage(self, src, dst, dataA, coef, kind, prio=None, late=False):
        a = self.a; T = V.T
        if prio is not None and self.o['prio']: a('s_setprio %d' % prio)
        if kind == 'tw' and self.o['shear']:
            for i in range(4):
                for st in range(3):
                    for r in range(4):
                        rho = 4*i+r
                        x, y = v(src+rho), v(src+16+rho)
                        if st == 1: a('v_fmac_f32 %s, %s, %s' % (y, v(coef+16+rho), x))
                        else: a('v_fmac_f32 %s, %s, %s' % (x, v(coef+rho), y))
                for r in range(4): self.cvt(V.O+4*i+r, src+4*i+r, src+16+4*i+r)
                self.mf32(dst, i, dataA)
            return
        if late:
            a('s_waitcnt vmcnt(2)')
            for rho in range(8): self.w_read(rho)
        for i in range(4):
            if late:
                if i == 0: a('s_waitcnt lgkmcnt(8)'); self.w_fix(0)
                if i == 1:
                    a('s_waitcnt vmcnt(0)')
                    for rho in range(8, 12): self.w_read(rho)
                    a('s_waitcnt lgkmcnt(8)')
                if i == 2:
                    for rho in range(12, 16): self.w_read(rho)
                    a('s_waitcnt lgkmcnt(8)'); self.w_fix(1)
                if i == 3: a('s_waitcnt lgkmcnt(0)')
            for r in range(4):
                rho = 4*i+r
                x, y = v(src+rho), v(src+16+rho)
                c, s = v(coef+rho), v(coef+16+rho)
                t0, t1 = v(T+2*r), v(T+2*r+1)
                a('v_mul_f32 %s, %s, %s' % (t0, x, c))
                a('v_mul_f32 %s, %s, %s' % (t1, y, c))
            for r in range(4):
                rho = 4*i+r
                x, y = v(src+rho), v(src+16+rho)
                c, s = v(coef+rho), v(coef+16+rho)
                t0, t1 = v(T+2*r), v(T+2*r+1)
                if kind == 'tw' or rho >= 8:
                    a('v_fmac_f32 %s, %s, %s' % (t0, y, s))
                    a('v_fma_f32 %s, -%s, %s, %s' % (t1, x, s, t1))
                else:
                    a('v_fma_f32 %s, -%s, %s, %s' % (t0, y, s, t0))
                    a('v_fmac_f32 %s, %s, %s' % (t1, x, s))
            for r in range(4):
                if kind == 'tw': self.cvt(V.O+4*i+r, T+2*r, T+2*r+1)
                else: self.cvt(V.O+4*i+r, T+2*r+1, T+2*r)
            self.mf32(dst, i, dataA)

    def p2_compute(self, wl=None):
        a = self.a; O, L, D, T = V.O, V.L, V.DA, V.T
        late = wl is not None
        na = 0
        for cbb in range(2):
            b = L+12*cbb
            a('s_waitcnt vmcnt(%d)' % (na+3-2*cbb))
            a('v_mov_b32 %s, %s' % (v(b+8), v(b))); a('v_mov_b32 %s, %s' % (v(b+9), v(b+1)))
            a('s_waitcnt vmcnt(%d)' % (na+2-2*cbb))
            if cbb: self.stamp(); self.fstamp()
            for jj2 in (1, 0):
                ti = 2*cbb+jj2
                op = b+2 if jj2 else b+6
                mo = 0 if jj2 else 2
                self.mf16(D+4*ti, V.B+mo, op)
                self.mf16(D+16+4*ti, V.B+6+mo, op)
        for cbb in range(2):
            for k1b in range(2):
                P = O+4*(2*cbb+k1b)
                for pl in range(2):
                    for jj2 in (1, 0):
                        x = D+16*pl+4*(2*cbb+jj2)+2*k1b
                        self.cvt(P+2*pl+jj2, x, x+1)
                a('ds_write_b128 %s, %s offset:%d' % (v(V.X1w), vr(P, 4), k1b*4096+cbb*256))
        self.fstamp()
        a('s_waitcnt lgkmcnt(0)')
        self.fstamp()
        if self.o.get('fine'): a('s_waitcnt lgkmcnt(0)')
        a('s_barrier')
        if self.o['prio']: a('s_setprio 3')
        for i in range(4):
            for ii in range(2):
                a('ds_read_b64_tr_b16 %s, %s offset:%d' % (vr(O+4*i+2*ii, 2), v(V.X1r), ii*1024+(i & 1)*512+(i >> 1)*2048))
        for i in range(4):
            if late and i < len(wl): self.w_dma1(wl[i])
            a('s_waitcnt lgkmcnt(%d)' % (6-2*i))
            self.mf32(V.DA, i, True)
        self.fstamp()
        self.cmul_stage(V.DA, V.DB, False, V.TW, 'tw', 2)
        self.fstamp()
        l0, l1 = self.label('PWspec'), self.label('PWend')
        a('s_cmp_eq_u32 %s, 1' % sSpec)
        a('s_cbranch_scc1 %s' % l0)
        if self.o.get('fine'): a('s_waitcnt lgkmcnt(0)')
        self.cmul_stage(V.DB, V.DA, True, V.W, 'w', 1, late)
        a(l1+':')
        self.fstamp()
        self.cmul_stage(V.DA, V.DB, True, V.TW, 'tw', 0)
        self.fstamp()
        D = V.DB
        rho = lambda jj3, jj1, jj2, c: 4*(2*jj3+jj1)+2*jj2+c
        for c in range(2):
            for jj1 in range(2):
                P = O+4*(2*c+jj1)
                for pl in range(2):
                    for jj3 in range(2):
                        self.cvt(P+2*pl+jj3, D+16*pl+rho(jj3, jj1, 0, c), D+16*pl+rho(jj3, jj1, 1, c))
                a('ds_write_b128 %s, %s offset:%d' % (v(V.X2w), vr(P, 4), c*64+jj1*1024))
        self.fstamp()
        a('s_waitcnt lgkmcnt(0)')
        self.fstamp()
        if self.o.get('fine'): a('s_waitcnt lgkmcnt(0)')
        a('s_barrier')
        for cbb in range(2):
            for jj1 in range(2):
                for ii in range(2):
                    a('ds_read_b64_tr_b16 %s, %s offset:%d' % (vr(O+4*(2*cbb+jj1)+2*ii, 2), v(V.X2r), ii*256+jj1*1024+cbb*8224))
        for r in range(4): a('s_add_u32 %s, %s, 0x%x' % (sO[r], sEst, WS_U2 + r*32768))
        D = V.DA
        for ti in range(4):
            a('s_waitcnt lgkmcnt(%d)' % (6-2*ti))
            self.mf16(D+4*ti, V.Bp, O+4*ti)
            self.mf16(D+16+4*ti, V.Bp+4, O+4*ti)
        self.fstamp()
        P = V.DB
        for q in range(4):
            cbb, sbb = q >> 1, q & 1
            for jj1 in range(2):
                for hf in range(2):
                    x = 4*(2*cbb+jj1)+2*sbb+hf
                    self.cvt(P+4*q+2*jj1+hf, D+x, D+16+x)
            a('buffer_store_dwordx4 %s, %s, %s, %s offen %s' % (vr(P+4*q, 4), v(V.Est), SWS, sO[q], self.o['st2']))
        self.fstamp()
        if self.o.get('fine'):
            a('s_memrealtime s[%d:%d]' % (sTS+2*self.nts, sTS+2*self.nts+1)); self.nts += 1
        def tail():
            C = V.DB; X = V.DA
            a(l0+':')
            self.sigma_lane(T)
            a('v_lshrrev_b32 %s, 5, %s' % (v(T+1), v(V.lane)))
            a('v_lshlrev_b32 %s, 9, %s' % (v(T+1), v(T+1)))
            a('v_lshl_add_u32 %s, %s, 2, %s' % (v(T+2), v(T), v(T+1)))
            a('v_add_u32 %s, %d, %s' % (v(T+2), SCR, v(T+2)))
            a('v_add_u32 %s, 128, %s' % (v(T+3), v(T+2)))
            a('v_sub_u32 %s, 32, %s' % (v(T+4), v(T)))
            a('v_lshrrev_b32 %s, 5, %s' % (v(T+5), v(T+4)))
            a('v_and_b32 %s, 31, %s' % (v(T+4), v(T+4)))
            a('v_lshlrev_b32 %s, 2, %s' % (v(T+4), v(T+4)))
            a('v_lshl_add_u32 %s, %s, 8, %s' % (v(T+4), v(T+5), v(T+4)))
            a('v_sub_u32 %s, %s, %s' % (v(T+4), v(T+4), v(T+1)))
            a('v_add_u32 %s, %d, %s' % (v(T+4), SCR + 2*256, v(T+4)))
            a('v_add_u32 %s, 128, %s' % (v(T+5), v(T+4)))
            a('v_add_u32 %s, %d, %s' % (v(T+6), SCR_B, v(V.l16)))
            qs = lambda rho: sigma(8*(rho >> 2) + (rho & 3))
            for pl in range(2):
                for rho in range(0, 16, 2):
                    a('ds_write2st64_b32 %s, %s, %s offset0:%d offset1:%d' % (v(T+2+pl), v(C+16*pl+rho), v(C+16*pl+rho+1), qs(rho), qs(rho+1)))
                a('ds_write_b32 %s, %s offset:%d' % (v(T+2+pl), v(C+16*pl), 32*256))
            a('s_waitcnt lgkmcnt(0)')
            t0, t1 = v(T+8), v(T+9)
            for half in range(2):
                for pl in range(2):
                    for k in range(0, 8, 2):
                        rho_ = 8*half+k
                        a('ds_read2st64_b32 %s, %s offset0:%d offset1:%d' % (vr(X+8*pl+k, 2), v(T+4+pl), 29-qs(rho_), 29-qs(rho_+1)))
                    for k in range(2):
                        a('ds_read_b128 %s, %s offset:%d' % (vr(X+16+8*pl+4*k, 4), v(T+6), 1024*(4*pl+2*half+k)))
                a('s_waitcnt lgkmcnt(0)')
                for k in range(8):
                    rho_ = 8*half+k
                    x, y = v(C+rho_), v(C+16+rho_); ar, ai = v(V.W+rho_), v(V.W+16+rho_)
                    p, q_ = v(X+k), v(X+8+k); br, bi = v(X+16+k), v(X+24+k)
                    ng, ps = ('', '-') if half else ('-', '')
                    a('v_mul_f32 %s, %s, %s' % (t0, x, ar))
                    a('v_mul_f32 %s, %s, %s' % (t1, y, ar))
                    a('v_fma_f32 %s, %s%s, %s, %s' % (t0, ng, y, ai, t0))
                    a('v_fma_f32 %s, %s%s, %s, %s' % (t1, ps, x, ai, t1))
                    a('v_fmac_f32 %s, %s, %s' % (t0, p, br))
                    a('v_fma_f32 %s, -%s, %s, %s' % (t1, q_, br, t1))
                    a('v_fma_f32 %s, %s%s, %s, %s' % (t0, ps, q_, bi, t0))
                    a('v_fma_f32 %s, %s%s, %s, %s' % (t1, ps, p, bi, t1))
                    self.cvt(O+rho_, T+9, T+8)
            for i in range(4): self.mf32(V.DA, i, True)
            a('s_nop 11')
            a('s_branch %s' % l1)
        self.tail.append(tail)

    def p3_addrs(self):
        a = self.a; T = V.T
        a('v_and_b32 %s, 16, %s' % (v(T), v(V.lane)))
        for bit, st in ((0, 32), (3, 4096), (5, 1024)):
            a('v_bfe_u32 %s, %s, %d, 1' % (v(T+1), v(V.lane), bit))
            a('v_lshl_add_u32 %s, %s, %d, %s' % (v(T), v(T+1), int(math.log2(st)), v(T)))
        for bit, st in ((1, 8208), (2, 16448)):
            a('v_bfe_u32 %s, %s, %d, 1' % (v(T+1), v(V.lane), bit))
            a('v_mul_u32_u24 %s, %d, %s' % (v(T+1), st, v(T+1)))
            a('v_add_u32 %s, %s, %s' % (v(T), v(T), v(T+1)))
        a('s_sub_u32 %s, 16, %s' % (sC, sW))
        a('s_cmp_eq_u32 %s, 0' % sW)
        a('s_cselect_b32 %s, 8, %s' % (sC, sC))
        for kl, dst in ((sW, V.X3w0), (sC, V.X3w1)):
            a('s_and_b32 %s, %s, 9' % (sA, kl)); a('s_lshl_b32 %s, %s, 6' % (sA, sA))
            a('s_and_b32 %s, %s, 2' % (sB, kl)); a('s_lshl_b32 %s, %s, 7' % (sB, sB)); a('s_add_u32 %s, %s, %s' % (sA, sA, sB))
            a('s_and_b32 %s, %s, 4' % (sB, kl)); a('s_lshl_b32 %s, %s, 5' % (sB, sB)); a('s_add_u32 %s, %s, %s' % (sA, sA, sB))
            a('s_add_u32 %s, %s, %d' % (sA, sA, R1))
            a('v_add_u32 %s, %s, %s' % (v(dst), sA, v(T)))
        self.tr_lane(T, 512, 128)
        a('s_and_b32 %s, %s, 1' % (sA, sW)); a('s_mul_i32 %s, %s, 8208' % (sA, sA))
        a('s_bfe_u32 %s, %s, 0x10001' % (sB, sW)); a('s_mul_i32 %s, %s, 16448' % (sB, sB)); a('s_add_u32 %s, %s, %s' % (sA, sA, sB))
        a('s_lshr_b32 %s, %s, 2' % (sB, sW)); a('s_lshl_b32 %s, %s, 12' % (sB, sB)); a('s_add_u32 %s, %s, %s' % (sA, sA, sB))
        a('s_add_u32 %s, %s, %d' % (sA, sA, R1))
        a('v_add_u32 %s, %s, %s' % (v(V.X3r), sA, v(T)))
        a('v_bfe_u32 %s, %s, 3, 1' % (v(T), v(V.lane)))
        a('v_lshlrev_b32 %s, 15, %s' % (v(T), v(T)))
        a('v_lshl_add_u32 %s, %s, 21, %s' % (v(T), v(V.g), v(T)))
        a('v_and_b32 %s, 0x70, %s' % (v(T+1), v(V.l16)))
        a('v_add_u32 %s, %s, %s' % (v(V.Ooff), v(T), v(T+1)))
    def p3_soff(self):
        a = self.a
        a('s_lshl_b32 %s, %s, 16' % (sO[0], sW))
        a('s_lshl_b32 %s, %s, 12' % (sA, sSB)); a('s_add_u32 %s, %s, %s' % (sO[0], sO[0], sA))
        a('s_lshl_b32 %s, %s, 7' % (sA, sCB)); a('s_add_u32 %s, %s, %s' % (sO[0], sO[0], sA))
        a('s_lshl_b32 %s, %s, 11' % (sA, sP)); a('s_add_u32 %s, %s, %s' % (sO[0], sO[0], sA))
        for r in range(1, 4): a('s_add_u32 %s, %s, 0x%x' % (sO[r], sO[0], r*524288))
    def p3_issue(self):
        a = self.a
        a('s_add_u32 %s, %s, 0x%x' % (sA, sEld, WS_U2))
        for q in range(4):
            a('buffer_load_dwordx4 %s, %s, %s, %s offen offset:%d %s' % (vr(V.L+4*q, 4), v(V.Eld), SWS, sA, 256*q, self.o['ld2']))
    def p3_compute(self):
        a = self.a; O, L, D = V.O, V.L, V.DA
        def normal():
            for i in range(4):
                a('s_waitcnt vmcnt(%d)' % (3-i))
                for sel in range(2):
                    for col in range(2):
                        a('v_mov_b32 %s, %s' % (v(O+4*(2*sel+col)+i), v(L+4*i+2*col+sel)))
        def w0():
            for i in range(4):
                ts, eb = i >> 1, i & 1
                a('s_waitcnt vmcnt(%d)' % (3-i))
                for col in range(2):
                    for sg in range(2):
                        a('v_mov_b32 %s, %s' % (v(O+4*(2*ts+col)+2*eb+sg), v(L+4*i+2*col+sg)))
        self.ifelse(sW, 0, w0, normal, True)
        self.stamp()
        for ti in range(4):
            self.mf16(D+4*ti, O+4*ti, V.M2+8*(ti >> 1))
            self.mf16(D+16+4*ti, O+4*ti, V.M2+8*(ti >> 1)+4)
        P = V.DB
        for ti in range(4):
            for pl in range(2):
                for k in range(2):
                    x = D+16*pl+4*ti+2*k
                    self.cvt(P+4*ti+2*pl+k, x, x+1)
            a('ds_write_b128 %s, %s offset:%d' % (v(V.X3w1 if ti >> 1 else V.X3w0), vr(P+4*ti, 4), (ti & 1)*2048))
        a('s_waitcnt lgkmcnt(0)')
        a('s_barrier')
        for t in range(4):
            for ii in range(2):
                a('ds_read_b64_tr_b16 %s, %s offset:%d' % (vr(O+4*t+2*ii, 2), v(V.X3r), ii*256+t*1024))
        for t in range(4):
            a('s_waitcnt lgkmcnt(%d)' % (6-2*t))
            self.mf16(D+4*t, V.F16, O+4*t)
            self.mf16(D+16+4*t, V.F16+4, O+4*t)
        for t in range(3):
            for r in range(4): self.cvt(P+4*r+t, D+16+4*t+r, D+4*t+r)
        for r in range(4):
            self.cvt(P+4*r+3, D+16+12+r, D+12+r)
            a('buffer_store_dwordx4 %s, %s, %s, %s offen %s' % (vr(P+4*r, 4), v(V.Ooff), SOUT, sO[r], self.o['sto']))

    def flush_tail(self):
        t, self.tail = self.tail, []
        for f in t: f()

    def kernel_head(self, name):
        self.a.raw('.globl %s\n.p2align 12\n.p2align 8\n.type %s,@function\n%s:' % (name, name, name))
    def kd(self, name):
        return '''.p2align 6
.amdhsa_kernel %s
  .amdhsa_next_free_vgpr %d
  .amdhsa_next_free_sgpr 100
  .amdhsa_accum_offset %d
  .amdhsa_group_segment_fixed_size 0
  .amdhsa_kernarg_size 72
  .amdhsa_user_sgpr_count 2
  .amdhsa_user_sgpr_kernarg_segment_ptr 1
  .amdhsa_system_sgpr_workgroup_id_x 1
.end_amdhsa_kernel''' % (name, NVGPR, (NVGPR+3)//4*4)

    def build_three(self):
        a = self.a
        names = ['gf_p1_kernel', 'gf_p2_kernel', 'gf_p3_kernel']
        self.kernel_head(names[0]); end = self.label('end')
        self.prologue(end); self.p1_load(); a('s_waitcnt lgkmcnt(0)'); self.p1_issue()
        self.ex_addrs(); self.p1_addrs(); self.gen_F16(); self.gen_M2()
        self.p1_compute(0)
        if self.o['ts']: self.stamp(); a('s_waitcnt vmcnt(0)'); self.stamp(); self.dump_stamps(0)
        a(end+':'); a('s_endpgm'); self.flush_tail()
        self.kernel_head(names[1]); end = self.label('end')
        self.prologue(end); self.ex_addrs(); self.calc_k0(); a('s_waitcnt lgkmcnt(0)')
        self.w_dma(); self.p2_addrs(); self.gen_B(); self.gen_F32TW()
        a('s_waitcnt vmcnt(0)'); self.w_regs(); a('s_waitcnt lgkmcnt(0)')
        self.p2_issue(); self.p2_compute()
        if self.o['ts']: self.stamp(); a('s_waitcnt vmcnt(0)'); self.stamp(); self.dump_stamps(8)
        a(end+':'); a('s_endpgm'); self.flush_tail()
        self.kernel_head(names[2]); end = self.label('end')
        self.prologue(end); self.ex_addrs(); a('s_waitcnt lgkmcnt(0)'); self.p3_issue()
        self.p3_addrs(); self.p3_soff(); self.gen_F16(); self.gen_M3()
        self.p3_compute()
        if self.o['ts']: self.stamp(); a('s_waitcnt vmcnt(0)'); self.stamp(); self.dump_stamps(16)
        a(end+':'); a('s_endpgm'); self.flush_tail()
        launch = ''.join('; @launch kernel=%s grid=(256,1,1) block=(512,1,1) lds=%d\n' % (n, LDS_TOTAL) for n in names)
        return self.finish(launch, names)

    def flag_addrs(self):
        a = self.a
        fs = int(self.o['fstride'])
        a('s_lshl_b32 %s, %s, %d' % (sA, sP, fs+6)); a('s_add_u32 %s, %s, 0x%x' % (sA, sA, WS_FLAG))
        a('s_lshr_b32 %s, %s, 4' % (sB, sT))
        a('s_lshl_b32 %s, %s, %d' % (sF, sW, fs+3)); a('s_add_u32 %s, %s, %s' % (sF, sF, sA))
        a('s_lshl_b32 %s, %s, %d' % (sC, sB, fs)); a('s_add_u32 %s, %s, %s' % (sF, sF, sC))
        a('s_lshl_b32 %s, %s, %d' % (sE, sB, fs+3)); a('s_add_u32 %s, %s, %s' % (sE, sE, sA))
        a('s_lshl_b32 %s, %s, %d' % (sC, sW, fs)); a('s_add_u32 %s, %s, %s' % (sE, sE, sC))
    def zero_flags(self):
        a = self.a
        def f():
            fs = int(self.o['fstride'])
            a('s_lshl3_add_u32 %s, %s, %s' % (sA, sP, sW))
            a('s_lshl_b32 %s, %s, %d' % (sA, sA, fs+3)); a('s_add_u32 %s, %s, 0x%x' % (sA, sA, WS_FLAG))
            for i in range(0, 8, 2): a('s_mov_b64 s[%d:%d], 0' % (84+i, 85+i))
            for i in range(8):
                a('s_atomic_swap s%d, s[24:25], %s offset:0x%x glc' % (84+i, sA, i << fs))
        self.cond(sT, ZT, f)
    def set_ready(self):
        a = self.a
        def f():
            a('s_mov_b32 %s, 1' % sInc)
            a('s_waitcnt lgkmcnt(0)')
            a('s_atomic_add %s, s[20:21], %s' % (sInc, sRd))
        self.cond(sT, ZT, f)
    def ready_issue(self):
        self.a('s_load_dword %s, s[20:21], %s' % (sRv, sRd))
    def ready_check(self):
        a = self.a; l0, l1 = self.label('rdy'), self.label('rdyok')
        a('s_cmp_lt_u32 %s, 8' % sRv)
        a('s_cbranch_scc1 %s' % l0)
        a(l1+':')
        def tail():
            lp = self.label('rdyl')
            a(l0+':')
            a('s_mov_b32 %s, 0' % sCnt)
            a('v_mov_b32 %s, 0' % v(V.O+1))
            a(lp+':')
            a('buffer_load_dword %s, %s, %s, %s offen sc1' % (v(V.O), v(V.O+1), SDBG, sRd))
            a('s_add_u32 %s, %s, 1' % (sCnt, sCnt))
            a('s_cmp_gt_u32 %s, 0x%x' % (sCnt, SPIN_MAX))
            a('s_waitcnt vmcnt(0)')
            a('s_cbranch_scc1 %s' % l1)
            a('v_cmp_gt_u32 vcc, 8, %s' % v(V.O))
            a('s_cbranch_vccnz %s' % lp)
            a('s_branch %s' % l1)
        self.tail.append(tail)
    def set_flag(self, ex):
        a = self.a
        a('s_mov_b32 %s, 0x%x' % (sInc, 1 << (16*ex)))
        a('s_atomic_add %s, s[24:25], %s' % (sInc, sF))
    def poll(self, ex):
        a = self.a; lp, ok = self.label('poll'), self.label('pollok')
        a('s_mov_b32 %s, 0' % sCnt)
        a(lp+':')
        a('s_mov_b32 %s, 0' % sRv)
        a('s_atomic_add %s, s[24:25], %s glc' % (sRv, sE))
        a('s_add_u32 %s, %s, 1' % (sCnt, sCnt))
        a('s_cmp_gt_u32 %s, 0x%x' % (sCnt, SPIN_MAX))
        a('s_waitcnt lgkmcnt(0)')
        a('s_cbranch_scc1 %s' % ok)
        if self.o['slp']:
            a('s_bitcmp1_b32 %s, %d' % (sRv, 4+16*ex))
            a('s_cbranch_scc1 %s' % ok)
            a('s_sleep %s' % self.o['slp'])
            a('s_branch %s' % lp)
        else:
            a('s_bitcmp0_b32 %s, %d' % (sRv, 4+16*ex))
            a('s_cbranch_scc1 %s' % lp)
        a(ok+':')
        if self.o['pbar']: a('s_barrier')
    def code_pf(self, name):
        a = self.a
        l = self.label('pc')
        a('s_getpc_b64 s[28:29]')
        a(l+':')
        a('s_sub_u32 s28, s28, %s-%s' % (l, name))
        a('s_subb_u32 s29, s29, 0')
        a('v_lshlrev_b32 %s, 5, v0' % v(V.O+6))
        a('global_load_dword %s, %s, s[28:29]' % (v(V.dummy), v(V.O+6)))

    def code_spf(self, name):
        a = self.a
        l = self.label('pc')
        a('s_getpc_b64 s[28:29]')
        a(l+':')
        a('s_sub_u32 s28, s28, %s-%s' % (l, name))
        a('s_subb_u32 s29, s29, 0')
        a('s_lshr_b32 %s, s2, 4' % sA)
        a('s_lshl3_add_u32 %s, %s, %s' % (sA, sA, sW))
        a('s_lshl_b32 %s, %s, 7' % (sA, sA))
        a('s_load_dword s94, s[28:29], %s' % sA)

    def ifelse(self, reg, val, feq, fne, eq_first=False):
        a = self.a; l0, l1 = self.label('ie'), self.label('iend')
        if eq_first:
            a('s_cmp_lg_u32 %s, %d' % (reg, val)); a('s_cbranch_scc1 %s' % l0)
            feq(); a('s_branch %s' % l1); a(l0+':'); fne()
        else:
            a('s_cmp_eq_u32 %s, %d' % (reg, val)); a('s_cbranch_scc1 %s' % l0)
            fne(); a('s_branch %s' % l1); a(l0+':'); feq()
        a(l1+':')
    def touch(self, rnd):
        a = self.a
        a('s_mov_b64 exec, 0')
        for k in range(7):
            a('s_cmp_eq_u32 %s, %d' % (sW, k)); a('s_cbranch_scc1 stub_%d' % (8*rnd+k))
        a('s_branch stub_%d' % (8*rnd+7))
        a('ret_%d:' % rnd)
        a('s_mov_b64 exec, -1')

    def cond(self, reg, val, f):
        a = self.a; l = self.label('c')
        a('s_cmp_lg_u32 %s, %d' % (reg, val)); a('s_cbranch_scc1 %s' % l)
        f()
        a(l+':')

    def build_one(self):
        a = self.a; o = self.o
        name = NAME + '_kernel'
        self.kernel_head(name); end = self.label('end')
        self.prologue1(end)
        wP, wM = o['wP'], o['wM']
        def wat(pos):
            n = 0
            if wP == pos: self.w_dma1(0); self.w_dma1(1); n += 2
            if wM == pos: self.w_dma1(2); self.w_dma1(3); n += 2
            return n
        bd = int(o['bdelay'])
        if o['touch'] == 'pre': self.touch(0)
        a('s_waitcnt lgkmcnt(0)')
        if bd: self.cond(sP, 0, self.p1_issue)
        else: self.p1_issue()
        if o['spf']: self.cond(sP, 1, lambda: self.code_spf(name))
        self.zero_flags()
        if o['touch'] == 'post': self.touch(0)
        if o['touch']: self.cond(sT, 0, lambda: self.touch(1))
        self.p1_addrs(); self.gen_F16(); self.coop_init()
        if bd == 1: self.cond(sP, 1, self.p1_issue)
        self.set_ready()
        self.gen_M2(); self.ex_addrs()
        misc = lambda: (self.srds(), self.calc_k0(), self.w_prep(), self.flag_addrs())
        X = [misc, self.coop_gen, lambda: (self.p2_addrs(), self.w_addr())]
        nearly = max(0, bd-2)
        def early():
            for f in X[:nearly]: f()
            self.p1_issue()
        if bd >= 2: self.cond(sP, 1, early)
        def Xat(k):
            if k < nearly: self.cond(sP, 0, X[k])
            else: X[k]()
        self.p1_compute(0, self.spec_early)
        self.stamp()
        self.ready_issue()
        Xat(0)
        n = wat('postS1')
        if o['pf']: self.code_pf(name); n += 1
        Xat(1)
        self.coop_post()
        a('s_waitcnt vmcnt(%d) lgkmcnt(0)' % n)
        self.stamp()
        self.ready_check()
        self.set_flag(0)
        self.w_sload()
        wat('postF')
        self.gen_B(True)
        Xat(2)
        self.w_special()
        self.poll(0)
        self.stamp()
        if self.o.get('fine'):
            a('s_memrealtime s[%d:%d]' % (sTS+2*self.nts, sTS+2*self.nts+1)); self.nts += 1
            self.fstamp()
        self.p2_issue()
        self.coop_wait(); self.coop_read()
        a('s_waitcnt vmcnt(4)')
        self.w_edge()
        self.p2_compute([i for i in range(4) if (wP, wM)[i >> 1] == 'postX1'])
        self.stamp()
        self.p3_addrs(); self.gen_M3()
        a('s_waitcnt vmcnt(0)')
        self.stamp()
        self.set_flag(1)
        self.p3_soff()
        self.poll(1)
        self.stamp()
        self.p3_issue()
        self.p3_compute()
        if o['ts']:
            self.stamp(); a('s_waitcnt vmcnt(0)'); self.stamp()
            if 'diag' in o:
                i = int(o['diag']); lp = self.label('dg')
                a('s_waitcnt lgkmcnt(0)')
                a('s_sub_u32 %s, s%d, s%d' % (sA, sTS+2*i, sTS))
                a('s_lshl_b32 %s, %s, 1' % (sA, sA))
                a('s_add_u32 %s, %s, 3000' % (sA, sA))
                a(lp+':')
                a('s_memrealtime s[28:29]')
                a('s_waitcnt lgkmcnt(0)')
                a('s_sub_u32 %s, s28, s%d' % (sB, sTS))
                a('s_cmp_lt_u32 %s, %s' % (sB, sA))
                a('s_cbranch_scc1 %s' % lp)
            else: self.dump_stamps(0)
        a(end+':'); a('s_endpgm'); self.flush_tail()
        if o['touch']: self.insert_stubs(name)
        a.raw('.fill (%s+16384-.)/4, 4, 0xbf810000' % name)
        launch = '; @launch grid=(256,1,1) block=(512,1,1) lds=%d\n' % LDS_TOTAL
        return self.finish(launch, [name])

    def insert_stubs(self, name):
        import subprocess, re
        from asmlib import Ins
        a = self.a
        txt = '.amdgcn_target "amdgcn-amd-amdhsa--gfx950"\n.text\n' + a.text() + ''.join('stub_%d:\n' % k for k in range(16)) + 's_endpgm\nspec_tab:\n'
        open('pass1.s', 'w').write(txt)
        subprocess.check_call(['clang', '-x', 'assembler', '-target', 'amdgcn-amd-amdhsa', '-mcpu=gfx950', '-c', 'pass1.s', '-o', 'pass1.o'])
        dis = subprocess.check_output(['llvm-objdump', '-d', '--mcpu=gfx950', 'pass1.o']).decode()
        addrs = [int(m.group(1), 16) for m in re.finditer(r'// ([0-9A-F]{12}):', dis)]
        real = [i for i, x in enumerate(a.ins) if x.kind != 'none']
        assert len(addrs) == len(real) + 1, (len(addrs), len(real))
        size = {real[k]: addrs[k+1] - addrs[k] for k in range(len(real))}
        pos = ENTRY_OFF; nxt = ENTRY_OFF + 1024 - 256
        nxt = (nxt + 1023)//1024*1024
        out = []; k = 0; prev = None; ez = False
        for i, x in enumerate(a.ins):
            if i in size:
                glued = prev is not None and (prev.op == 's_getpc_b64' or 'rel32' in x.text)
                if prev is not None and prev.text.strip() == 's_mov_b64 exec, 0': ez = True
                if prev is not None and prev.text.strip() == 's_mov_b64 exec, -1': ez = False
                glued = glued or ez
                if pos >= nxt and k < 16 and not glued:
                    out.append(Ins('stub_%d:' % k)); out.append(Ins('s_cbranch_execz ret_%d' % (k >> 3)))
                    pos += 4; k += 1; nxt += 1024
                pos += size[i]; prev = x
            out.append(x)
        self.code_end = pos
        while k < 16:
            out.append(Ins('stub_%d:' % k)); out.append(Ins('s_branch ret_%d' % (k >> 3))); k += 1
        a.ins = out

    def finish(self, launch, names):
        hdr = '; GFNet spectral filter (two heads): 2-D FFT via bf16 MFMA DFT stages. Generated by dev/gen.py\n' + launch
        s = hdr + '.amdgcn_target "amdgcn-amd-amdhsa--gfx950"\n.text\n' + self.a.text()
        s += '.section .rodata,"a"\n' + '\n'.join(self.kd(n) for n in names) + '\n' + self.spec_table() + '\n'
        return s

if __name__ == '__main__':
    mode = sys.argv[1]; out = sys.argv[2]
    opt = {}
    for kv in sys.argv[3:]:
        k, x = kv.split('=')
        opt[k] = {'True': True, 'False': False}.get(x, x.replace('+', ' '))
    g = Gen(mode, **opt)
    s = g.build_three() if mode == 'three' else g.build_one()
    assert g.a.verify() == 0
    open(out, 'w').write(s)
    print('vgprs', NVGPR, 'lds', LDS_TOTAL, 'nops', g.a.nops, 'lines', len(g.a.ins))
```

```python
import sys, struct, math
import numpy as np
from asmlib import Asm

NAME = 'concat_heads__spectral_gfnet__spectral_gfnet__prompt'

def f2u(x): return struct.unpack('<I', struct.pack('<f', x))[0]
def lit(x): return '0x%08x' % f2u(x)
def bf16bits(x):
    u = f2u(float(x)); return ((u + 0x7FFF + ((u >> 16) & 1)) >> 16) & 0xFFFF
def sigma(m): return (m & 1) | ((m >> 1) & 1) << 3 | ((m >> 2) & 1) << 1 | ((m >> 3) & 1) << 2 | (m & 16)

S11 = 2.0**-11
SPIN_MAX = 0x4000
ENTRY_OFF = 0x300
SENT = 0x13572468
WS_FLAG_IB = 32 << 20
WS_FLAG2 = 33 << 20
PW = 7
sCh2 = 's100'
R0 = 0
R1 = 33024
WL = 66048
SCR = WL + 8*4*1056
SCR_B = SCR + 36*256
TABL = SCR_B + 8192
CNT = TABL + 16384
LDS_TOTAL = CNT + 64
WS_U1 = 0
WS_U2 = 8 << 20
WS_FLAG = 32 << 20
WS_TS = 72 << 20
WS_SIZE = 80 << 20

class V: pass
_n = [0]
def alloc(n, align=1):
    b = (_n[0] + align - 1)//align*align
    _n[0] = b + n
    return b
V.tid = alloc(1); V.lane = alloc(1)
for nm in 'g n Xoff Est X0w X0r0 X0r1 X1w X1r X2w X2r WP WM l16 dummy dummy2'.split(): setattr(V, nm, alloc(1))
V.Ooff, V.X3w0, V.X3w1, V.X3r = V.Xoff, V.X0w, V.X0r0, V.X0r1
V.T = alloc(10, 1)
V.EL = alloc(4); V.Eld = V.EL+3; V.Eld0 = V.EL+3
V.O = alloc(16, 4)
V.DA = alloc(32, 4)
V.DB = alloc(32, 4)
V.L = V.DB
V.F16 = alloc(8, 4)
V.M2 = alloc(16, 4)
V.F32 = alloc(32, 4)
V.TW = alloc(32, 4)
V.W = alloc(32, 4)
V.B = alloc(12, 4)
V.Bp = alloc(8, 4)
V.WF = alloc(4)
NVGPR = _n[0]
assert NVGPR <= 256, NVGPR
def v(i): return 'v%d' % i
def vr(i, n): return 'v[%d:%d]' % (i, i+n-1)

SX, SWR, SWI, SOUT, SDBG, SWS = 's[4:7]', 's[8:11]', 's[12:15]', 's[16:19]', 's[20:23]', 's[24:27]'
sP, sT, sW, sSB, sCB, sK0 = 's30', 's31', 's32', 's33', 's34', 's35'
sKP, sKM = 's36', 's37'
sA, sB, sC, sD, sE, sF = 's40', 's41', 's42', 's43', 's44', 's45'
sEst, sEld, sCnt, sSpec = 's46', 's47', 's48', 's49'
sO = ['s52', 's53', 's54', 's55']
sRd, sRv, sInc, sWL = 's38', 's39', 's50', 's51'
ZT = 16
sDP, sDM, sZ, sZp, sCh = 's96', 's97', 's98', 's99', 's95'
sTS = 56

class Gen:
    def __init__(self, mode='one', **opt):
        self.mode = mode
        self.o = dict(ldx='', ldw='', st1='sc1', st2='sc1', sto='sc1', ld1='sc1', ld2='sc1', ts=False, stagger=True, pf=False, spf=False, touch='pre', fst='sc1', fld='sc1', slp='', fsh='', pbar=False, shear=True, prio=True, wA='postX1', wB='postX1', bdelay='4', optx=False, numa='', fl='', ib=False, ib2=False, ib3=False, pnop='15', gz=False, force='', skew=True, fstride=12)
        self.o.update(opt)
        self.a = Asm()
        self.lab = 0
        self.nts = 0
        self.tail = []

    def tstride(self): return 65536 if (self.o['numa'] != '' or self.o['ib'] or self.o['ib2']) else 32768
    def ubase(self, ex): return (ex << 24) if self.o['ib2'] else (ex << 20) if self.o['ib'] else (WS_U2 if ex else WS_U1)
    def eld(self, q, ex=0): return v(V.T+2+q) if (self.o['ib2'] and ex == 0) else v(V.EL+q) if self.o['ib'] else v(V.Eld)
    def est(self): return sZp if self.o['ib2'] else sEst
    def label(self, p='L'):
        self.lab += 1
        return '%s_%d' % (p, self.lab)

    def stamp(self):
        if not self.o['ts'] or self.o.get('fine'): return
        self.a('s_memrealtime s[%d:%d]' % (sTS+2*self.nts, sTS+2*self.nts+1))
        self.nts += 1

    def fstamp(self):
        if not self.o.get('fine'): return
        self.a('s_memtime s[%d:%d]' % (sTS+2*self.nts, sTS+2*self.nts+1))
        self.nts += 1

    def dump_stamps(self, slot0=0):
        if not self.o['ts']: return
        a = self.a
        a('s_waitcnt lgkmcnt(0)')
        a('s_lshl_b32 %s, s2, 3' % sA); a('s_add_u32 %s, %s, %s' % (sA, sA, sW)); a('s_lshl_b32 %s, %s, 7' % (sA, sA))
        a('s_add_u32 %s, %s, 0x%x' % (sA, sA, WS_TS + slot0*4))
        a('s_mov_b64 exec, 1')
        a('v_mov_b32 %s, 0' % v(V.T+1))
        for i in range(self.nts):
            a('v_mov_b32 %s, s%d' % (v(V.T), sTS+2*i))
            a('buffer_store_dword %s, %s, %s, %s offen offset:%d' % (v(V.T), v(V.T+1), SWS, sA, 4*i))
            a('s_nop 1')
        a('s_mov_b64 exec, -1')
        self.nts = 0

    def prologue(self, end):
        a = self.a
        a('s_cmp_ge_u32 s2, 0x100')
        a('s_cbranch_scc1 %s' % end)
        self.stamp()
        a('s_bfe_u32 %s, s2, 0x10003' % sP)
        a('s_mul_i32 s3, %s, 24' % sP)
        a('s_add_u32 s28, s0, s3')
        a('s_addc_u32 s29, s1, 0')
        a('s_load_dwordx2 s[4:5], s[28:29], 0x0')
        a('s_load_dwordx2 s[8:9], s[28:29], 0x8')
        a('s_load_dwordx2 s[12:13], s[28:29], 0x10')
        a('s_load_dwordx2 s[16:17], s[0:1], 0x30')
        a('s_load_dwordx2 s[20:21], s[0:1], 0x38')
        a('s_load_dwordx2 s[24:25], s[0:1], 0x40')
        a('v_lshrrev_b32 %s, 6, v0' % v(V.T))
        a('v_and_b32 %s, 63, v0' % v(V.lane))
        a('v_readfirstlane_b32 %s, %s' % (sW, v(V.T)))
        a('s_and_b32 %s, s2, 7' % sA)
        a('s_xor_b32 %s, %s, 2' % (sA, sA))
        a('s_lshl_b32 %s, %s, 4' % (sT, sA))
        a('s_lshr_b32 %s, s2, 4' % sB)
        a('s_or_b32 %s, %s, %s' % (sT, sT, sB))
        a('s_lshl_b32 %s, %s, 1' % (sCB, sA))
        a('s_bfe_u32 %s, %s, 0x10001' % (sC, sB))
        a('s_or_b32 %s, %s, %s' % (sCB, sCB, sC))
        a('s_bfe_u32 %s, %s, 0x20002' % (sSB, sB))
        a('s_lshl_b32 %s, %s, 1' % (sSB, sSB))
        a('s_and_b32 %s, %s, 1' % (sC, sB))
        a('s_or_b32 %s, %s, %s' % (sSB, sSB, sC))
        a('s_mov_b32 s6, 0x400000'); a('s_mov_b32 s7, 0x20000')
        a('s_mov_b32 s10, 2101248'); a('s_mov_b32 s11, 0x20000')
        a('s_mov_b32 s14, 2101248'); a('s_mov_b32 s15, 0x20000')
        a('s_mov_b32 s18, 0x800000'); a('s_mov_b32 s19, 0x20000')
        a('s_mov_b32 s22, 256'); a('s_mov_b32 s23, 0x20000')
        a('s_mov_b32 s26, 0x%x' % WS_SIZE); a('s_mov_b32 s27, 0x20000')
        a('v_lshrrev_b32 %s, 4, %s' % (v(V.g), v(V.lane)))
        a('v_and_b32 %s, 15, %s' % (v(V.n), v(V.lane)))
        a('v_lshlrev_b32 %s, 4, %s' % (v(V.l16), v(V.lane)))

    def prologue1(self, end):
        a = self.a; T = V.T
        a('s_cmp_ge_u32 s2, 0x100')
        a('s_cbranch_scc1 %s' % end)
        a('s_bfe_u32 %s, s2, 0x%x' % (sP, 0x10002 if self.o['optx'] else 0x10003))
        a('s_mul_i32 s3, %s, 24' % sP)
        a('s_load_dwordx2 s[4:5], s[0:1], s3')
        a('s_load_dwordx2 s[24:25], s[0:1], 0x40')
        a('s_load_dwordx2 s[8:9], s[0:1], s3 offset:8')
        a('s_load_dwordx2 s[12:13], s[0:1], s3 offset:16')
        a('s_load_dwordx2 s[16:17], s[0:1], 0x30')
        a('s_load_dwordx2 s[20:21], s[0:1], 0x38')
        self.stamp()
        a('v_lshrrev_b32 %s, 6, v0' % v(T))
        a('v_and_b32 %s, 63, v0' % v(V.lane))
        a('v_readfirstlane_b32 %s, %s' % (sW, v(T)))
        if self.o['optx']:
            a('s_and_b32 %s, s2, 3' % sA)
            a('s_bfe_u32 %s, s2, 0x10003' % sB)
            a('s_lshl1_add_u32 %s, %s, %s' % (sA, sA, sB))
        else: a('s_and_b32 %s, s2, 7' % sA)
        a('s_lshr_b32 %s, s2, 4' % sB)
        a('s_lshl4_add_u32 %s, %s, %s' % (sT, sA, sB))
        a('s_bfe_u32 %s, %s, 0x10001' % (sC, sB))
        a('s_lshl1_add_u32 %s, %s, %s' % (sCB, sA, sC))
        a('s_lshr_b32 %s, %s, 2' % (sSB, sB))
        a('s_and_b32 %s, %s, 1' % (sC, sB))
        a('s_lshl1_add_u32 %s, %s, %s' % (sSB, sSB, sC))
        a('s_mov_b32 s6, 0x400000'); a('s_mov_b32 s7, 0x20000')
        a('v_lshrrev_b32 %s, 4, %s' % (v(V.g), v(V.lane)))
        a('v_lshlrev_b32 %s, 4, %s' % (v(V.l16), v(V.lane)))
        a('v_and_b32 %s, 8, v0' % v(T))
        a('v_lshlrev_b32 %s, 11, %s' % (v(T), v(T)))
        a('v_lshl_add_u32 %s, %s, 20, %s' % (v(T), v(V.g), v(T)))
        a('v_and_b32 %s, 0x70, %s' % (v(T+1), v(V.l16)))
        a('v_add_u32 %s, %s, %s' % (v(V.Xoff), v(T), v(T+1)))
        a('s_lshl4_add_u32 %s, %s, %s' % (sA, sW, sSB))
        a('s_lshl4_add_u32 %s, %s, %s' % (sA, sA, sCB))
        a('s_lshl_b32 %s, %s, 7' % (sO[0], sA))
        for r in range(1, 4): a('s_add_u32 %s, %s, 0x%x' % (sO[r], sO[0], r*262144))
        a('v_and_b32 %s, 15, %s' % (v(V.n), v(V.lane)))
        a('s_mov_b32 s26, 0x%x' % WS_SIZE); a('s_mov_b32 s27, 0x20000')
        a('s_lshl_b32 %s, %s, 7' % (sRd, sP))
    def srds(self):
        a = self.a
        a('s_mov_b32 s10, 2101248'); a('s_mov_b32 s11, 0x20000')
        a('s_mov_b32 s14, 2101248'); a('s_mov_b32 s15, 0x20000')
        a('s_mov_b32 s18, 0x800000'); a('s_mov_b32 s19, 0x20000')
        a('s_mov_b32 s22, 256'); a('s_mov_b32 s23, 0x20000')

    def probe_issue(self):
        a = self.a
        a('s_lshl3_add_u32 %s, %s, %s' % (sEst, sP, sW)); a('s_lshl_b32 %s, %s, 21' % (sEst, sEst))
        a('s_and_b32 %s, %s, 0x60' % (sA, sT)); a('s_add_u32 %s, %s, %s' % (sA, sA, sT)); a('s_lshl_b32 %s, %s, 8' % (sA, sA))
        a('s_add_u32 %s, %s, %s' % (sA, sA, sEst))
        for i in range(8): a('s_mov_b32 s%d, 0x%x' % (84+i, SENT))
        for k, side in ((0, 0), (0, 1), (1, 1), (1, 0), (2, 1), (2, 0), (3, 0), (3, 1)):
            a('s_load_dword s%d, s[24:25], %s offset:0x%x glc' % (84+4*side+k, sA, k*65536+side*8192))
    def probe_eval(self):
        a = self.a
        a('s_mov_b32 %s, 0' % sA); a('s_mov_b32 %s, 0' % sB)
        a('s_waitcnt lgkmcnt(4)')
        for k in range(4):
            a('s_cmp_lg_u32 s%d, 0x%x' % (84+k, SENT)); a('s_addc_u32 %s, %s, 0' % (sA, sA))
            a('s_cmp_lg_u32 s%d, 0x%x' % (88+k, SENT)); a('s_addc_u32 %s, %s, 0' % (sB, sB))
        a('s_cmp_gt_u32 %s, %s' % (sB, sA))
        a('s_cselect_b32 %s, 1, 0' % sCh)
        if self.o['force'] != '':
            a('s_and_b32 %s, %s, 1' % (sC, sW)); a('s_xor_b32 %s, %s, %s' % (sC, sC, sP)); a('s_xor_b32 %s, %s, %s' % (sCh, sC, self.o['force']))
        if self.o['ts']:
            a('s_lshl4_add_u32 s%d, %s, %s' % (sTS+24, sA, sB))
    def ex_addrs_ib(self):
        a = self.a; T = V.T
        a('s_lshl_b32 %s, %s, 4' % (sB, sW)); a('s_xor_b32 %s, %s, %s' % (sB, sB, sT)); a('s_lshl_b32 %s, %s, 8' % (sB, sB))
        a('v_lshlrev_b32 %s, 4, %s' % (v(T), v(V.n)))
        a('v_lshl_add_u32 %s, %s, 10, %s' % (v(T), v(V.g), v(T)))
        a('v_xor_b32 %s, %s, %s' % (v(T), sB, v(T)))
        a('v_and_b32 %s, 0x6000, %s' % (v(T+1), v(T)))
        a('v_add_u32 %s, %s, %s' % (v(T), v(T), v(T+1)))
        a('v_lshl_add_u32 %s, %s, 18, %s' % (v(V.Est), v(V.g), v(T)))
        a('v_and_b32 %s, 0xdcff, %s' % (v(V.Eld), v(T)))
        a('s_lshl_b32 %s, %s, 13' % (sA, sCh)); a('s_add_u32 %s, %s, %s' % (sEst, sEst, sA))
        a('s_lshr_b32 %s, %s, 4' % (sA, sT)); a('s_lshl3_add_u32 %s, %s, %s' % (sA, sP, sA)); a('s_lshl_b32 %s, %s, 21' % (sA, sA))
        a('s_and_b32 %s, %s, 15' % (sEld, sT)); a('s_lshl_b32 %s, %s, 16' % (sEld, sEld)); a('s_add_u32 %s, %s, %s' % (sEld, sEld, sA))
    def ld_addrs_ib(self):
        a = self.a; T = V.T
        a('v_lshrrev_b32 %s, %s, %s' % (v(T), v(V.dummy), sRv))
        for q in range(4):
            a('v_bfe_u32 %s, %s, %d, 1' % (v(T+1), v(T), q))
            a('v_lshl_add_u32 %s, %s, 13, %s' % (v(V.EL+q), v(T+1), v(V.Eld)))

    def ex_addrs(self):
        a = self.a
        if self.o['skew']:
            T = V.T
            a('s_lshl_b32 %s, %s, 4' % (sB, sW)); a('s_xor_b32 %s, %s, %s' % (sB, sB, sT)); a('s_lshl_b32 %s, %s, 8' % (sB, sB))
            a('v_lshlrev_b32 %s, 4, %s' % (v(T), v(V.n)))
            a('v_lshl_add_u32 %s, %s, 10, %s' % (v(T), v(V.g), v(T)))
            a('v_xor_b32 %s, %s, %s' % (v(T), sB, v(T)))
            if self.o['numa'] != '':
                pol = int(self.o['numa'][1]); mode = self.o['numa'][0]
                if mode == 'p':
                    a('v_and_b32 %s, 0x6000, %s' % (v(T+1), v(T)))
                    a('v_add_u32 %s, %s, %s' % (v(T), v(T), v(T+1)))
                    a('v_lshl_add_u32 %s, %s, 18, %s' % (v(V.Est), v(V.g), v(T)))
                    a('v_and_b32 %s, 0xdcff, %s' % (v(V.Eld), v(T)))
                    a('s_lshr_b32 %s, %s, 1' % (sA, sW)); a('s_lshr_b32 %s, %s, 6' % (sD, sT)); a('s_xor_b32 %s, %s, %s' % (sA, sA, sD))
                    a('s_lshr_b32 %s, %s, 5' % (sC, sT)); a('s_lshr_b32 %s, %s, 2' % (sD, sW)); a('s_xor_b32 %s, %s, %s' % (sC, sC, sD))
                    if pol: a('s_xor_b32 %s, %s, 1' % (sA, sA)); a('s_xor_b32 %s, %s, 1' % (sC, sC))
                    a('s_and_b32 %s, %s, 1' % (sA, sA)); a('s_and_b32 %s, %s, 1' % (sC, sC))
                    a('s_lshl_b32 %s, %s, 13' % (sA, sA)); a('s_lshl_b32 %s, %s, 13' % (sC, sC))
                    a('s_lshl_b32 %s, %s, 25' % (sD, sP)); a('s_add_u32 %s, %s, %s' % (sA, sA, sD)); a('s_add_u32 %s, %s, %s' % (sC, sC, sD))
                    a('s_lshl_b32 %s, %s, 20' % (sEst, sW)); a('s_add_u32 %s, %s, %s' % (sEst, sEst, sA))
                    a('s_lshl_b32 %s, %s, 16' % (sEld, sT)); a('s_add_u32 %s, %s, %s' % (sEld, sEld, sC))
                    return
                a('v_and_b32 %s, 0x6000, %s' % (v(T+1), v(T)))
                a('v_add_u32 %s, %s, %s' % (v(T), v(T), v(T+1)))
                a('v_lshl_add_u32 %s, %s, 18, %s' % (v(V.Est), v(V.g), v(T)))
                a('v_and_b32 %s, 0xdcff, %s' % (v(V.Eld), v(T)))
                if mode == 'x':
                    a('s_bfe_u32 %s, %s, 0x10001' % (sA, sW)); a('s_xor_b32 %s, %s, %s' % (sA, sA, sP))
                    a('s_bfe_u32 %s, %s, 0x10005' % (sC, sT)); a('s_xor_b32 %s, %s, %s' % (sC, sC, sP))
                    if pol: a('s_xor_b32 %s, %s, 1' % (sA, sA)); a('s_xor_b32 %s, %s, 1' % (sC, sC))
                    a('s_lshl_b32 %s, %s, 13' % (sA, sA)); a('s_lshl_b32 %s, %s, 13' % (sC, sC))
                    a('s_lshl_b32 %s, %s, 20' % (sEst, sW)); a('s_add_u32 %s, %s, %s' % (sEst, sEst, sA))
                    a('s_lshl_b32 %s, %s, 16' % (sEld, sT)); a('s_add_u32 %s, %s, %s' % (sEld, sEld, sC))
                else:
                    a('s_lshr_b32 %s, %s, 1' % (sA, sW)); a('s_lshr_b32 %s, %s, 2' % (sD, sW)); a('s_xor_b32 %s, %s, %s' % (sA, sA, sD))
                    a('s_lshr_b32 %s, %s, 5' % (sC, sT)); a('s_lshr_b32 %s, %s, 6' % (sD, sT)); a('s_xor_b32 %s, %s, %s' % (sC, sC, sD))
                    if pol: a('s_xor_b32 %s, %s, 1' % (sA, sA)); a('s_xor_b32 %s, %s, 1' % (sC, sC))
                    a('s_and_b32 %s, %s, 1' % (sA, sA)); a('s_and_b32 %s, %s, 1' % (sC, sC))
                    a('s_lshl_b32 %s, %s, 13' % (sA, sA)); a('s_lshl_b32 %s, %s, 13' % (sC, sC))
                    a('s_lshl_b32 %s, %s, 22' % (sD, sP)); a('s_add_u32 %s, %s, %s' % (sA, sA, sD)); a('s_add_u32 %s, %s, %s' % (sC, sC, sD))
                    a('s_and_b32 %s, %s, 3' % (sEst, sW)); a('s_lshl_b32 %s, %s, 20' % (sEst, sEst)); a('s_add_u32 %s, %s, %s' % (sEst, sEst, sA))
                    a('s_and_b32 %s, %s, 63' % (sEld, sT)); a('s_lshl_b32 %s, %s, 16' % (sEld, sEld)); a('s_add_u32 %s, %s, %s' % (sEld, sEld, sC))
                return
            a('v_lshl_add_u32 %s, %s, 17, %s' % (v(V.Est), v(V.g), v(T)))
            a('v_and_b32 %s, 0x7cff, %s' % (v(V.Eld), v(T)))
            a('s_lshl_b32 %s, %s, 22' % (sA, sP))
            a('s_lshl_b32 %s, %s, 19' % (sEst, sW)); a('s_add_u32 %s, %s, %s' % (sEst, sEst, sA))
            a('s_lshl_b32 %s, %s, 15' % (sEld, sT)); a('s_add_u32 %s, %s, %s' % (sEld, sEld, sA))
            return
        a('v_lshlrev_b32 %s, 4, %s' % (v(V.T), v(V.n)))
        a('v_lshl_add_u32 %s, %s, 17, %s' % (v(V.Est), v(V.g), v(V.T)))
        a('v_lshl_add_u32 %s, %s, 10, %s' % (v(V.Eld), v(V.g), v(V.T)))
        a('s_lshl_b32 %s, %s, 22' % (sA, sP))
        a('s_lshl_b32 %s, %s, 19' % (sEst, sW)); a('s_add_u32 %s, %s, %s' % (sEst, sEst, sA))
        a('s_lshl_b32 %s, %s, 8' % (sB, sT)); a('s_add_u32 %s, %s, %s' % (sEst, sEst, sB))
        a('s_lshl_b32 %s, %s, 15' % (sEld, sT)); a('s_add_u32 %s, %s, %s' % (sEld, sEld, sA))
        a('s_lshl_b32 %s, %s, 12' % (sB, sW)); a('s_add_u32 %s, %s, %s' % (sEld, sEld, sB))

    def trig(self, x, re, im, conj_re=None, conj_im=None):
        a = self.a; c, s = V.T+8, V.T+9
        a('v_cos_f32 %s, %s' % (v(c), v(x)))
        a('v_sin_f32 %s, %s' % (v(s), v(x)))
        a('v_cvt_pk_bf16_f32 %s, %s, %s' % (v(re), v(c), v(s)))
        a('v_cvt_pk_bf16_f32 %s, -%s, %s' % (v(im), v(s), v(c)))
        if conj_re is not None:
            a('v_cvt_pk_bf16_f32 %s, %s, -%s' % (v(conj_re), v(c), v(s)))
            a('v_cvt_pk_bf16_f32 %s, %s, %s' % (v(conj_im), v(s), v(c)))

    def gen_F16(self):
        a = self.a; T = V.T
        a('v_cvt_f32_u32 %s, %s' % (v(T), v(V.n)))
        a('v_mul_f32 %s, %s, %s' % (v(T), lit(1/16), v(T)))
        a('v_cvt_f32_u32 %s, %s' % (v(T+1), v(V.g)))
        a('v_mul_f32 %s, 4.0, %s' % (v(T+1), v(T+1)))
        a('v_mul_f32 %s, %s, %s' % (v(T+2), v(T), v(T+1)))
        for r in range(4):
            self.trig(T+2, V.F16+r, V.F16+4+r)
            if r < 3: a('v_add_f32 %s, %s, %s' % (v(T+2), v(T+2), v(T)))

    def gen_M2(self):
        a = self.a; T = V.T
        a('v_cvt_f32_u32 %s, %s' % (v(T+1), v(V.g)))
        a('v_mul_f32 %s, 4.0, %s' % (v(T+1), v(T+1)))
        def normal():
            a('v_lshl_add_u32 %s, %s, 4, %s' % (v(T), v(V.n), sW))
            a('v_cvt_f32_u32 %s, %s' % (v(T), v(T)))
            a('v_mul_f32 %s, %s, %s' % (v(T), lit(1/256), v(T)))
            a('v_mul_f32 %s, %s, %s' % (v(T+2), v(T), v(T+1)))
            for r in range(4):
                self.trig(T+2, V.M2+r, V.M2+4+r, V.M2+8+r, V.M2+12+r)
                if r < 3: a('v_add_f32 %s, %s, %s' % (v(T+2), v(T+2), v(T)))
        def w0():
            a('v_lshrrev_b32 %s, 1, %s' % (v(T), v(V.n)))
            a('v_cvt_f32_u32 %s, %s' % (v(T), v(T)))
            a('v_lshlrev_b32 %s, 31, %s' % (v(T+3), v(V.n)))
            a('v_add_f32 %s, 0.5, %s' % (v(T+4), v(T)))
            a('v_xor_b32 %s, %s, %s' % (v(T+3), lit(1/16), v(T+3)))
            a('v_mul_f32 %s, %s, %s' % (v(T), v(T), v(T+3)))
            a('v_mul_f32 %s, %s, %s' % (v(T+4), v(T+4), v(T+3)))
            a('v_cmp_ne_u32 vcc, 1, %s' % v(V.n))
            a('v_cndmask_b32 %s, 0.5, %s, vcc' % (v(T), v(T)))
            for ts in range(2):
                d = T+4*ts
                a('v_mul_f32 %s, %s, %s' % (v(T+2), v(d), v(T+1)))
                for r in range(4):
                    self.trig(T+2, V.M2+8*ts+r, V.M2+8*ts+4+r)
                    if r < 3: a('v_add_f32 %s, %s, %s' % (v(T+2), v(T+2), v(d)))
        self.ifelse(sW, 0, w0, normal)

    def gen_M3(self):
        a = self.a; T = V.T
        a('v_cvt_f32_u32 %s, %s' % (v(T), v(V.n)))
        a('v_mul_f32 %s, %s, %s' % (v(T+1), lit(1/256), v(T)))
        a('v_mul_f32 %s, %s, %s' % (v(T), lit(1/16), v(T)))
        def normal():
            a('v_lshl_add_u32 %s, %s, 6, %s' % (v(T+2), v(V.g), sW))
            a('v_cvt_f32_u32 %s, %s' % (v(T+2), v(T+2)))
            a('v_mul_f32 %s, %s, %s' % (v(T+2), v(T+2), v(T+1)))
            for r in range(4):
                self.trig(T+2, V.M2+r, V.M2+4+r, V.M2+8+r, V.M2+12+r)
                if r < 3: a('v_add_f32 %s, %s, %s' % (v(T+2), v(T+2), v(T)))
        def w0():
            for ts in range(2):
                a('v_lshlrev_b32 %s, 5, %s' % (v(T+2), v(V.g)))
                if ts: a('v_add_u32 %s, 8, %s' % (v(T+2), v(T+2)))
                a('v_cvt_f32_u32 %s, %s' % (v(T+2), v(T+2)))
                a('v_mul_f32 %s, %s, %s' % (v(T+2), v(T+2), v(T+1)))
                for eb in range(2):
                    b = V.M2+8*ts
                    self.trig(T+2, b+2*eb, b+4+2*eb, b+2*eb+1, b+4+2*eb+1)
                    if eb == 0: a('v_add_f32 %s, %s, %s' % (v(T+2), v(T+2), v(T)))
            a('s_mov_b64 exec, 0xffff')
            a('v_lshlrev_b32 %s, 15, %s' % (v(T+2), v(V.n)))
            a('v_and_b32 %s, 0x8000, %s' % (v(T+2), v(T+2)))
            a('v_or_b32 %s, 0x3f80, %s' % (v(V.M2+1), v(T+2)))
            a('v_lshlrev_b32 %s, 16, %s' % (v(V.M2+5), v(V.M2+1)))
            a('s_mov_b64 exec, -1')
        self.ifelse(sW, 0, w0, normal)

    def sigma_lane(self, dst):
        a = self.a; T = V.T
        a('v_and_b32 %s, 17, %s' % (v(dst), v(V.lane)))
        a('v_bfe_u32 %s, %s, 2, 2' % (v(T+7), v(V.lane)))
        a('v_lshl_add_u32 %s, %s, 1, %s' % (v(dst), v(T+7), v(dst)))
        a('v_bfe_u32 %s, %s, 1, 1' % (v(T+7), v(V.lane)))
        a('v_lshl_add_u32 %s, %s, 3, %s' % (v(dst), v(T+7), v(dst)))

    def gen_F32TW(self):
        a = self.a; T = V.T
        self.sigma_lane(T)
        a('v_cvt_f32_u32 %s, %s' % (v(T), v(T)))
        a('v_mul_f32 %s, %s, %s' % (v(T), lit(1/1024), v(T)))
        a('v_lshrrev_b32 %s, 5, %s' % (v(T+1), v(V.lane)))
        a('v_cvt_f32_u32 %s, %s' % (v(T+1), v(T+1)))
        a('v_add_f32 %s, %s, %s' % (v(T+1), v(T+1), v(T+1)))
        a('v_mul_f32 %s, %s, %s' % (v(T+1), v(T+1), v(T)))
        for rho in range(16):
            k = sigma(8*(rho >> 2) + (rho & 3))
            a('v_fmamk_f32 %s, %s, %s, %s' % (v(T+2), v(T), lit(float(k)), v(T+1)))
            a('v_mul_f32 %s, %s, %s' % (v(T+3), lit(32.0), v(T+2)))
            a('v_cos_f32 %s, %s' % (v(V.TW+rho), v(T+2)))
            a('v_sin_f32 %s, %s' % (v(V.TW+16+rho), v(T+2)))
            self.trig(T+3, V.F32+rho, V.F32+16+rho)

    def coop_gen(self):
        a = self.a; T = V.T; X = V.DA
        self.sigma_lane(T)
        a('v_cvt_f32_u32 %s, %s' % (v(T), v(T)))
        a('v_mul_f32 %s, %s, %s' % (v(T), lit(1/1024), v(T)))
        a('s_and_b32 %s, %s, 1' % (sA, sW)); a('s_lshl_b32 %s, %s, 3' % (sA, sA))
        a('s_and_b32 %s, %s, 2' % (sB, sW)); a('s_lshl_b32 %s, %s, 1' % (sB, sB)); a('s_add_u32 %s, %s, %s' % (sA, sA, sB))
        a('s_and_b32 %s, %s, 4' % (sB, sW)); a('s_lshl_b32 %s, %s, 2' % (sB, sB)); a('s_add_u32 %s, %s, %s' % (sA, sA, sB))
        a('v_lshrrev_b32 %s, 5, %s' % (v(T+1), v(V.lane)))
        a('v_lshl_add_u32 %s, %s, 1, %s' % (v(T+1), v(T+1), sA))
        a('v_cvt_f32_u32 %s, %s' % (v(T+1), v(T+1)))
        a('v_mul_f32 %s, %s, %s' % (v(T+2), v(T+1), v(T)))
        for e in range(2):
            a('v_mul_f32 %s, %s, %s' % (v(T+3), lit(32.0), v(T+2)))
            if self.o['shear']:
                a('v_mul_f32 %s, 0.5, %s' % (v(T+4), v(T+2)))
                a('v_cos_f32 %s, %s' % (v(T+5), v(T+4)))
                a('v_sin_f32 %s, %s' % (v(T+6), v(T+4)))
                a('v_rcp_f32 %s, %s' % (v(T+5), v(T+5)))
                a('v_mul_f32 %s, %s, %s' % (v(X+4+e), v(T+6), v(T+5)))
                a('v_fma_f32 %s, %s, %s, 1.0' % (v(T+5), v(X+4+e), v(X+4+e)))
                a('v_rcp_f32 %s, %s' % (v(T+6), v(T+5)))
                a('v_fma_f32 %s, -%s, %s, 1.0' % (v(T+5), v(T+5), v(T+6)))
                a('v_fmac_f32 %s, %s, %s' % (v(T+6), v(T+5), v(T+6)))
                a('v_mul_f32 %s, -2.0, %s' % (v(T+6), v(T+6)))
                a('v_mul_f32 %s, %s, %s' % (v(X+6+e), v(T+6), v(X+4+e)))
            else:
                a('v_cos_f32 %s, %s' % (v(X+4+e), v(T+2)))
                a('v_sin_f32 %s, %s' % (v(X+6+e), v(T+2)))
            self.trig(T+3, X+e, X+2+e)
            if e == 0: a('v_add_f32 %s, %s, %s' % (v(T+2), v(T+2), v(T)))
        a('s_lshr_b32 %s, %s, 1' % (sA, sW)); a('s_lshl_b32 %s, %s, 10' % (sA, sA))
        a('s_and_b32 %s, %s, 1' % (sB, sW)); a('s_lshl_b32 %s, %s, 3' % (sB, sB)); a('s_add_u32 %s, %s, %s' % (sA, sA, sB))
        a('s_add_u32 %s, %s, %d' % (sA, sA, TABL))
        a('v_add_u32 %s, %s, %s' % (v(T), sA, v(V.l16)))
        for k in range(4):
            a('ds_write_b64 %s, %s offset:%d' % (v(T), vr(X+2*k, 2), 4096*k))
    def coop_init(self):
        a = self.a; T = V.T
        a('v_mov_b32 %s, %d' % (v(V.dummy2), CNT)); a('v_mov_b32 %s, 0' % v(T))
        a('ds_write_b32 %s, %s' % (v(V.dummy2), v(T)))
    def coop_post(self):
        a = self.a; T = V.T
        a('v_mov_b32 %s, 1' % v(T+1))
        a('ds_add_u32 %s, %s' % (v(V.dummy2), v(T+1)))
    def coop_wait(self):
        a = self.a; T = V.T; lp, ok = self.label('cw'), self.label('cwok')
        a('s_mov_b32 %s, 0' % sCnt)
        a(lp+':')
        a('ds_read_b32 %s, %s' % (v(T), v(V.dummy2)))
        a('s_add_u32 %s, %s, 1' % (sCnt, sCnt))
        a('s_cmp_gt_u32 %s, 0x%x' % (sCnt, SPIN_MAX*8))
        a('s_waitcnt lgkmcnt(0)')
        a('s_cbranch_scc1 %s' % ok)
        a('v_cmp_gt_u32 vcc, 0x200, %s' % v(T))
        a('s_cbranch_vccnz %s' % lp)
        a(ok+':')
    def coop_read(self):
        a = self.a; T = V.T
        assert V.TW == V.F32+32
        a('v_add_u32 %s, %d, %s' % (v(T), TABL, v(V.l16)))
        for k in range(16):
            a('ds_read_b128 %s, %s offset:%d' % (vr(V.F32+4*k, 4), v(T), 1024*k))

    def calc_k0(self):
        a = self.a
        a('s_lshr_b32 %s, %s, 4' % (sA, sT))
        a('s_and_b32 %s, %s, 15' % (sB, sT))
        a('s_lshl_b32 %s, %s, 4' % (sK0, sB))
        a('s_add_u32 %s, %s, %s' % (sK0, sK0, sA))
        a('s_lshr_b32 %s, %s, 2' % (sC, sB)); a('s_lshl_b32 %s, %s, 5' % (sC, sC))
        a('s_and_b32 %s, %s, 1' % (sD, sB)); a('s_lshl_b32 %s, %s, 4' % (sD, sD)); a('s_add_u32 %s, %s, %s' % (sC, sC, sD))
        a('s_and_b32 %s, %s, 2' % (sD, sB)); a('s_lshl_b32 %s, %s, 2' % (sD, sD)); a('s_add_u32 %s, %s, %s' % (sC, sC, sD))
        a('s_cmp_eq_u32 %s, 0' % sA)
        a('s_cselect_b32 %s, %s, %s' % (sK0, sC, sK0))
        a('s_cmp_eq_u32 %s, 0' % sT)
        a('s_cselect_b32 %s, 7, 8' % sA)
        a('s_lshl_b32 %s, %s, %s' % (sKP, sW, sA))
        a('s_add_u32 %s, %s, %s' % (sKP, sKP, sK0))
        a('s_sub_u32 %s, 0x800, %s' % (sKM, sKP))
        a('s_cmp_eq_u32 %s, 0' % sKP)
        a('s_cselect_b32 %s, 0x400, %s' % (sKM, sKM))
        a('s_cselect_b32 %s, 1, 0' % sSpec)
        a('s_mul_i32 %s, %s, 1026' % (sKP, sKP))
        a('s_mul_i32 %s, %s, 1026' % (sKM, sKM))

    def wq(self, rho): return (rho & 1) + 8*((rho >> 1) & 1) + 4*((rho >> 2) & 1)
    def w_prep(self):
        a = self.a
        a('s_mul_i32 %s, %s, 4224' % (sWL, sW))
        a('s_add_u32 %s, %s, %d' % (sWL, sWL, WL))
        a('s_and_b32 %s, %s, 2' % (sA, sKP))
        a('s_add_u32 %s, %s, %s' % (sDP, sKP, sA)); a('s_add_u32 %s, %s, %s' % (sDM, sKM, sA))
    def w_dma1(self, i):
        a = self.a
        srd, so = [(SWR, sDP), (SWI, sDP), (SWR, sDM), (SWI, sDM)][i]
        a('s_add_u32 m0, %s, %d' % (sWL, 1056*i))
        a('buffer_load_dwordx4 %s, %s, %s offen %s lds' % (v(V.l16), srd, so, self.o['ldw']))
    def w_dma(self):
        for i in range(4): self.w_dma1(i)
    def w_sload(self):
        a = self.a; T = V.T
        a('s_mov_b64 exec, 15')
        a('v_mov_b32 %s, %s' % (v(T), sKP)); a('v_mov_b32 %s, %s' % (v(T+1), sKM))
        a('s_mov_b64 vcc, 10')
        a('v_cndmask_b32 %s, %s, %s, vcc' % (v(T), v(T), v(T+1)))
        a('v_and_b32 %s, 2, %s' % (v(T+1), v(V.lane)))
        a('v_lshl_add_u32 %s, %s, 9, %s' % (v(T), v(T+1), v(T)))
        a('buffer_load_short_d16_hi %s, %s, %s, 0 offen' % (v(V.WF), v(T), SWR))
        a('buffer_load_short_d16_hi %s, %s, %s, 0 offen' % (v(V.WF+1), v(T), SWI))
        a('s_mov_b64 exec, -1')
    def w_edge_rl(self):
        a = self.a
        for l in range(4):
            for im in range(2):
                a('v_readlane_b32 s%d, %s, %d' % (84+2*l+im, v(V.WF+im), l))
    def w_edge(self):
        a = self.a; T = V.T
        self.w_edge_rl()
        for i, (x, y, op) in enumerate(((84, 86, 'add'), (85, 87, 'sub'), (90, 88, 'add'), (91, 89, 'sub'))):
            a('v_mov_b32 %s, s%d' % (v(T), y))
            a('v_%s_f32 %s, s%d, %s' % (op, v(V.WF+i), x, v(T)))
            a('v_mul_f32 %s, 0.5, %s' % (v(V.WF+i), v(V.WF+i)))
        a('s_mov_b64 s[92:93], 1')
    def w_addr(self):
        a = self.a; T = V.T
        self.sigma_lane(T)
        a('v_lshrrev_b32 %s, 5, %s' % (v(T+1), v(V.lane)))
        a('v_lshlrev_b32 %s, 7, %s' % (v(T+1), v(T+1)))
        a('v_lshl_add_u32 %s, %s, 1, %s' % (v(T), v(T), v(T+1)))
        a('s_and_b32 %s, %s, 2' % (sD, sKP)); a('s_sub_u32 %s, %s, %s' % (sD, sWL, sD))
        a('v_add_u32 %s, %s, %s' % (v(V.WP), sD, v(T)))
        a('s_add_u32 %s, %s, %d' % (sD, sD, 1024-832))
        a('v_sub_u32 %s, %s, %s' % (v(V.WM), sD, v(T)))
    def w_read(self, rho, dst=None, swap=False):
        a = self.a; dst = V.W if dst is None else dst
        for im in range(2):
            if rho < 8: ad, off = V.WP, 64*self.wq(rho) + (2112 if swap else 0)
            else: ad, off = V.WM, 64*(13-self.wq(rho)) + (0 if swap else 2112)
            a('ds_read_u16_d16_hi %s, %s offset:%d' % (v(dst+16*im+rho), v(ad), off+1056*im))
    def w_fix(self, half):
        a = self.a
        for im in range(2):
            r = V.W+8*half+16*im
            a('v_cndmask_b32 %s, %s, %s, s[92:93]' % (v(r), v(r), v(V.WF+2*half+im)))
    def w_regs_early(self):
        a = self.a
        for rho in range(16): self.w_read(rho)
        a('s_waitcnt lgkmcnt(0)')
        self.w_fix(0); self.w_fix(1)
    def w_special(self):
        a = self.a; T = V.T
        l0, l1 = self.label('Wspec'), self.label('Wend')
        a('s_cmp_eq_u32 %s, 1' % sSpec)
        a('s_cbranch_scc1 %s' % l0)
        a(l1+':')
        def tail():
            X = V.DA
            a(l0+':')
            for rho in range(16): self.w_read(rho)
            for rho in range(16): self.w_read(rho, X, True)
            a('s_waitcnt lgkmcnt(0) vmcnt(0)')
            self.w_edge_rl()
            a('s_mov_b64 exec, 1')
            for r in (V.W+16, V.W+24, X+16, X+24): a('v_mov_b32 %s, 0' % v(r))
            a('v_mov_b32 %s, s90' % v(V.W+8)); a('v_mov_b32 %s, s88' % v(X+8))
            a('s_mov_b64 exec, -1')
            for i in range(32):
                a('v_add_f32 %s, %s, %s' % (v(T+3), v(V.W+i), v(X+i)))
                if (i & 15) < 8: a('v_sub_f32 %s, %s, %s' % (v(X+i), v(V.W+i), v(X+i)))
                else: a('v_sub_f32 %s, %s, %s' % (v(X+i), v(X+i), v(V.W+i)))
                a('v_mov_b32 %s, %s' % (v(V.W+i), v(T+3)))
            a('v_add_u32 %s, %d, %s' % (v(T+1), SCR_B, v(V.l16)))
            for i in range(8):
                a('ds_write_b128 %s, %s offset:%d' % (v(T+1), vr(X+4*i, 4), 1024*i))
            a('s_waitcnt lgkmcnt(0)')
            a('s_branch %s' % l1)
        self.tail.append(tail)

    def B_dup(self):
        a = self.a
        a('v_mov_b32 %s, %s' % (v(V.B+4), v(V.B))); a('v_mov_b32 %s, %s' % (v(V.B+5), v(V.B+1)))
        a('v_mov_b32 %s, %s' % (v(V.B+10), v(V.B+6))); a('v_mov_b32 %s, %s' % (v(V.B+11), v(V.B+7)))
    def gen_B(self, early=False, dup=True):
        a = self.a; T = V.T
        l0, l1 = self.label('Bspec'), self.label('Bend')
        a('s_cmp_eq_u32 %s, 0' % sT)
        a('s_cbranch_scc1 %s' % (l1 if early else l0))
        c, s = T+8, T+9
        a('v_lshrrev_b32 %s, 1, %s' % (v(T), v(V.n)))
        a('v_lshl_add_u32 %s, %s, 8, %s' % (v(T+1), v(T), sK0))
        a('v_cvt_f32_u32 %s, %s' % (v(T+1), v(T+1)))
        a('v_mul_f32 %s, %s, %s' % (v(T+1), lit(1/2048), v(T+1)))
        a('v_cvt_f32_u32 %s, %s' % (v(T+2), v(V.g)))
        a('v_add_f32 %s, %s, %s' % (v(T+2), v(T+2), v(T+2)))
        a('v_and_b32 %s, 1, %s' % (v(T+3), v(V.n)))
        a('v_cvt_f32_u32 %s, %s' % (v(T+3), v(T+3)))
        a('v_mul_f32 %s, %s, %s' % (v(T+4), lit(0.25), v(T+3)))
        a('v_mul_f32 %s, %s, %s' % (v(T+5), v(T+1), v(T+2)))
        for sbb in range(2):
            for half in range(2):
                a('v_%s_f32 %s, %s, %s' % ('sub' if half else 'add', v(T+6), v(T+5), v(T+4)))
                a('v_cos_f32 %s, %s' % (v(c), v(T+6)))
                a('v_sin_f32 %s, %s' % (v(s), v(T+6)))
                a('v_mul_f32 %s, %s, %s' % (v(c), lit(S11), v(c)))
                a('v_mul_f32 %s, %s, %s' % (v(s), lit(S11), v(s)))
                ng = '-' if half else ''
                a('v_cvt_pk_bf16_f32 %s, %s, %s%s' % (v(V.B+2*sbb+half), v(c), ng, v(s)))
                a('v_cvt_pk_bf16_f32 %s, -%s, %s%s' % (v(V.B+6+2*sbb+half), v(s), ng, v(c)))
            if sbb == 0: a('v_add_f32 %s, %s, %s' % (v(T+5), v(T+5), v(T+1)))
        a('v_cvt_f32_u32 %s, %s' % (v(T), v(T)))
        a('v_lshlrev_b32 %s, 31, %s' % (v(T+4), v(V.n)))
        a('v_xor_b32 %s, %s, %s' % (v(T), v(T), v(T+4)))
        a('v_xor_b32 %s, %s, %s' % (v(T+4), lit(S11), v(T+4)))
        a('v_lshl_add_u32 %s, %s, 9, %s' % (v(T+1), v(V.g), sK0))
        a('v_cvt_f32_u32 %s, %s' % (v(T+1), v(T+1)))
        a('v_mul_f32 %s, %s, %s' % (v(T+1), lit(1/2048), v(T+1)))
        a('v_mul_f32 %s, %s, %s' % (v(T+5), v(T+1), v(T)))
        a('v_fmac_f32 %s, 0.5, %s' % (v(T+5), v(T+3)))
        for ii in range(2):
            a('v_cos_f32 %s, %s' % (v(c), v(T+5)))
            a('v_sin_f32 %s, %s' % (v(s), v(T+5)))
            a('v_mul_f32 %s, %s, %s' % (v(T+6), v(T+4), v(c)))
            a('v_mul_f32 %s, %s, %s' % (v(T+7), v(T+4), v(s)))
            a('v_mul_f32 %s, %s, %s' % (v(c), lit(S11), v(c)))
            a('v_mul_f32 %s, %s, %s' % (v(s), lit(S11), v(s)))
            a('v_cvt_pk_bf16_f32 %s, %s, %s' % (v(V.Bp+2*ii), v(c), v(T+7)))
            a('v_cvt_pk_bf16_f32 %s, -%s, %s' % (v(V.Bp+4+2*ii), v(s), v(T+6)))
            a('v_cvt_pk_bf16_f32 %s, -%s, %s' % (v(V.Bp+2*ii+1), v(s), v(T+6)))
            a('v_cvt_pk_bf16_f32 %s, -%s, -%s' % (v(V.Bp+4+2*ii+1), v(c), v(T+7)))
            if ii == 0: a('v_fmac_f32 %s, %s, %s' % (v(T+5), lit(0.125), v(T)))
        a(l1+':')
        if dup: self.B_dup()
        def tail():
            a(l0+':')
            if not early: self.spec_load(); a('s_waitcnt vmcnt(0)')
            a('s_branch %s' % l1)
        if not early: self.tail.append(tail)
    def spec_load(self):
        a = self.a
        a('s_getpc_b64 s[28:29]')
        a('s_add_u32 s28, s28, spec_tab@rel32@lo+4')
        a('s_addc_u32 s29, s29, spec_tab@rel32@hi+12')
        a('global_load_dwordx4 %s, %s, s[28:29]' % (vr(V.B, 4), v(V.l16)))
        a('global_load_dwordx4 %s, %s, s[28:29] offset:1024' % (vr(V.B+6, 4), v(V.l16)))
        a('global_load_dwordx4 %s, %s, s[28:29] offset:2048' % (vr(V.Bp, 4), v(V.l16)))
        a('global_load_dwordx4 %s, %s, s[28:29] offset:3072' % (vr(V.Bp+4, 4), v(V.l16)))
    def spec_early(self):
        a = self.a
        def g():
            self.srds()
            a('s_mov_b32 %s, 0' % sDP); a('s_mov_b32 %s, %d' % (sDM, 1024*1026)); a('s_mov_b32 %s, %d' % (sWL, WL))
            self.w_dma()
        def f():
            self.spec_load(); self.cond(sW, 0, g)
        self.cond(sT, 0, f)

    def spec_table(self):
        tab = np.zeros((4, 64, 4, 2))
        for lane in range(64):
            m, g = lane & 15, lane >> 4
            for r in range(4):
                t, c = m >> 1, m & 1; sb, hf = 2*g + (r >> 1), r & 1
                if hf == (t & 1):
                    th = 2*math.pi*sb*t/16
                    tab[0, lane, r, c] = (2*S11 if t else S11)*math.cos(th)
                    tab[1, lane, r, c] = -2*S11*math.sin(th) if t else S11*(-1.0)**sb
                sb, hf = m >> 1, m & 1; t, c = 2*g + (r >> 1), r & 1
                if hf == (t & 1):
                    th = 2*math.pi*sb*t/16
                    if t: cre, cim = 2*math.cos(th), -2*math.sin(th)
                    else: cre, cim = 1.0, (-1.0)**sb
                    pl = 2 + (1 - c)
                    tab[pl, lane, r, 0] = S11*cim
                    tab[pl, lane, r, 1] = S11*cre
        tab[abs(tab) < 1e-12] = 0
        out = ['.p2align 6', '.type spec_tab,@object', 'spec_tab:']
        w = [bf16bits(tab[p, l, r, 0]) | bf16bits(tab[p, l, r, 1]) << 16 for p in range(4) for l in range(64) for r in range(4)]
        for i in range(0, len(w), 8):
            out.append('.long ' + ','.join('0x%x' % x for x in w[i:i+8]))
        return '\n'.join(out)

    def p1_load(self):
        a = self.a; T = V.T
        a('v_bfe_u32 %s, %s, 3, 1' % (v(T), v(V.lane)))
        a('v_lshlrev_b32 %s, 14, %s' % (v(T), v(T)))
        a('v_lshl_add_u32 %s, %s, 20, %s' % (v(T), v(V.g), v(T)))
        a('v_and_b32 %s, 0x70, %s' % (v(T+1), v(V.l16)))
        a('v_add_u32 %s, %s, %s' % (v(V.Xoff), v(T), v(T+1)))
        a('s_lshl_b32 %s, %s, 15' % (sO[0], sW))
        a('s_lshl_b32 %s, %s, 11' % (sA, sSB)); a('s_add_u32 %s, %s, %s' % (sO[0], sO[0], sA))
        a('s_lshl_b32 %s, %s, 7' % (sA, sCB)); a('s_add_u32 %s, %s, %s' % (sO[0], sO[0], sA))
        for r in range(1, 4): a('s_add_u32 %s, %s, 0x%x' % (sO[r], sO[0], r*262144))
    def p1_issue(self):
        a = self.a
        for r in range(4):
            a('buffer_load_dwordx4 %s, %s, %s, %s offen %s' % (vr(V.L+4*r, 4), v(V.Xoff), SX, sO[r], self.o['ldx']))
    def p1_addrs(self):
        a = self.a; T = V.T
        a('v_xor_b32 %s, %s, %s' % (v(T), sSB, v(V.lane)))
        a('v_and_b32 %s, 1, %s' % (v(T), v(T)))
        a('v_mul_u32_u24 %s, 16448, %s' % (v(T), v(T)))
        a('v_lshl_add_u32 %s, %s, 12, %s' % (v(T), v(V.g), v(T)))
        a('v_and_b32 %s, 14, %s' % (v(T+1), v(V.lane)))
        a('v_lshl_add_u32 %s, %s, 3, %s' % (v(T), v(T+1), v(T)))
        a('s_lshr_b32 %s, %s, 2' % (sA, sW)); a('s_lshl_b32 %s, %s, 9' % (sA, sA))
        a('s_and_b32 %s, %s, 1' % (sB, sW)); a('s_lshl_b32 %s, %s, 8' % (sB, sB)); a('s_add_u32 %s, %s, %s' % (sA, sA, sB))
        a('s_and_b32 %s, %s, 2' % (sB, sW)); a('s_lshl_b32 %s, %s, 6' % (sB, sB)); a('s_add_u32 %s, %s, %s' % (sA, sA, sB))
        if R0: a('s_add_u32 %s, %s, %d' % (sA, sA, R0))
        a('v_add_u32 %s, %s, %s' % (v(V.X0w), sA, v(T)))
        self.tr_lane(T, 512, 128)
        a('s_lshl_b32 %s, %s, 10' % (sA, sW))
        a('s_sub_u32 %s, 0x4000, %s' % (sB, sA))
        a('s_cmp_eq_u32 %s, 0' % sW)
        a('s_cselect_b32 %s, 0x2000, %s' % (sB, sB))
        if R0: a('s_add_u32 %s, %s, %d' % (sA, sA, R0)); a('s_add_u32 %s, %s, %d' % (sB, sB, R0))
        a('v_add_u32 %s, %s, %s' % (v(V.X0r0), sA, v(T)))
        a('v_add_u32 %s, %s, %s' % (v(V.X0r1), sB, v(T)))
    def tr_lane(self, dst, g1s, g0s, b3s=64):
        a = self.a; t = V.T+7
        sh = lambda x: int(math.log2(x))
        a('v_and_b32 %s, 0x30, %s' % (v(dst), v(V.l16)))
        for bit, st in ((2, 8), (3, b3s), (4, g0s), (5, g1s)):
            a('v_bfe_u32 %s, %s, %d, 1' % (v(t), v(V.lane), bit))
            a('v_lshl_add_u32 %s, %s, %d, %s' % (v(dst), v(t), sh(st), v(dst)))

    def mf16(self, d, A, B):
        self.a('v_mfma_f32_16x16x32_bf16 %s, %s, %s, 0' % (vr(d, 4), vr(A, 4), vr(B, 4)))
    def cvt(self, d, lo, hi):
        self.a('v_cvt_pk_bf16_f32 %s, %s, %s' % (v(d), v(lo), v(hi)))

    def p1_compute(self, nafter, hook=None, hook2=None, hook3=None, hook4=None):
        a = self.a; O, L, D = V.O, V.L, V.DA
        for r in range(4):
            a('s_waitcnt vmcnt(%d)' % (nafter + 3 - r))
            if r == 3: self.stamp()
            for t in range(4):
                a('v_mov_b32 %s, %s' % (v(O+4*t+r), v(L+4*r+t)))
        for t in range(4):
            self.mf16(D+4*t, V.F16, O+4*t)
            self.mf16(D+16+4*t, V.F16+4, O+4*t)
        if hook: hook()
        P = V.DB
        for r in range(4):
            self.cvt(P+4*r, D+r, D+4+r); self.cvt(P+4*r+2, D+16+r, D+20+r)
        for r in range(4):
            self.cvt(P+4*r+1, D+8+r, D+12+r); self.cvt(P+4*r+3, D+24+r, D+28+r)
            a('ds_write_b128 %s, %s offset:%d' % (v(V.X0w), vr(P+4*r, 4), 1024*r))
        a('s_waitcnt lgkmcnt(0)')
        a('s_barrier')
        if hook4: hook4()
        for sel in range(2):
            for tau in range(2):
                for ii in range(2):
                    a('ds_read_b64_tr_b16 %s, %s offset:%d' % (vr(O+4*(2*sel+tau)+2*ii, 2), v(V.X0r1 if sel else V.X0r0), tau*16448+ii*256))
        if hook2: hook2()
        if hook3: hook3()
        for r in range(4): a('s_add_u32 %s, %s, 0x%x' % (sO[r], self.est(), self.ubase(0) + r*self.tstride()))
        for ti in range(4):
            a('s_waitcnt lgkmcnt(%d)' % (6-2*ti))
            self.mf16(D+4*ti, V.M2+8*(ti >> 1), O+4*ti)
            self.mf16(D+16+4*ti, V.M2+8*(ti >> 1)+4, O+4*ti)
        st = lambda i: a('buffer_store_dwordx4 %s, %s, %s, %s offen %s' % (vr(P+4*i, 4), v(V.Est), SWS, sO[i], self.o['st1']))
        def normal():
            for i in range(4):
                for tau in range(2): self.cvt(P+4*i+2*tau, D+4*tau+i, D+16+4*tau+i)
            for i in range(4):
                for tau in range(2): self.cvt(P+4*i+2*tau+1, D+4*(2+tau)+i, D+16+4*(2+tau)+i)
                st(i)
        def w0():
            for i in range(4):
                ts, eb = i >> 1, i & 1
                for tau in range(2):
                    for sg in range(2):
                        x = 4*(2*ts+tau)+2*eb+sg
                        self.cvt(P+4*i+2*tau+sg, D+x, D+16+x)
                st(i)
        self.ifelse(sW, 0, w0, normal)

    def p2_addrs(self):
        a = self.a; T = V.T
        a('v_lshlrev_b32 %s, 4, %s' % (v(T), v(V.n)))
        a('v_lshl_add_u32 %s, %s, 13, %s' % (v(T), v(V.g), v(T)))
        a('s_lshl_b32 %s, %s, 9' % (sA, sW)); a('s_add_u32 %s, %s, %d' % (sA, sA, R1))
        a('v_add_u32 %s, %s, %s' % (v(V.X1w), sA, v(T)))
    def p2_addrs2(self):
        a = self.a; T = V.T
        self.tr_lane(T, 256, 64, 128)
        a('s_lshl_b32 %s, %s, 12' % (sA, sW)); a('s_add_u32 %s, %s, %d' % (sA, sA, R1))
        a('v_add_u32 %s, %s, %s' % (v(V.X1r), sA, v(T)))
        a('v_and_b32 %s, 16, %s' % (v(T), v(V.l16)))
        for bit, st in ((1, 16448), (2, 8224)):
            a('v_bfe_u32 %s, %s, %d, 1' % (v(T+1), v(V.lane), bit))
            a('v_mul_u32_u24 %s, %d, %s' % (v(T+1), st, v(T+1)))
            a('v_add_u32 %s, %s, %s' % (v(T), v(T), v(T+1)))
        a('v_bfe_u32 %s, %s, 3, 2' % (v(T+1), v(V.lane)))
        a('v_lshl_add_u32 %s, %s, 11, %s' % (v(T), v(T+1), v(T)))
        a('v_and_b32 %s, 32, %s' % (v(T+1), v(V.lane)))
        a('v_add_u32 %s, %s, %s' % (v(T), v(T), v(T+1)))
        a('s_lshr_b32 %s, %s, 2' % (sA, sW)); a('s_lshl_b32 %s, %s, 9' % (sA, sA))
        a('s_and_b32 %s, %s, 1' % (sB, sW)); a('s_lshl_b32 %s, %s, 8' % (sB, sB)); a('s_add_u32 %s, %s, %s' % (sA, sA, sB))
        a('s_and_b32 %s, %s, 2' % (sB, sW)); a('s_lshl_b32 %s, %s, 6' % (sB, sB)); a('s_add_u32 %s, %s, %s' % (sA, sA, sB))
        if R0: a('s_add_u32 %s, %s, %d' % (sA, sA, R0))
        a('v_add_u32 %s, %s, %s' % (v(V.X2w), sA, v(T)))
        self.tr_lane(T, 512, 128)
        a('s_and_b32 %s, %s, 1' % (sA, sW)); a('s_lshl_b32 %s, %s, 11' % (sA, sA))
        a('s_bfe_u32 %s, %s, 0x10001' % (sB, sW)); a('s_mul_i32 %s, %s, 16448' % (sB, sB)); a('s_add_u32 %s, %s, %s' % (sA, sA, sB))
        a('s_lshr_b32 %s, %s, 2' % (sB, sW)); a('s_lshl_b32 %s, %s, 12' % (sB, sB)); a('s_add_u32 %s, %s, %s' % (sA, sA, sB))
        if R0: a('s_add_u32 %s, %s, %d' % (sA, sA, R0))
        a('v_add_u32 %s, %s, %s' % (v(V.X2r), sA, v(T)))

    def p2_issue(self):
        a = self.a
        a('s_add_u32 %s, %s, 0x%x' % (sA, sEld, self.ubase(0)))
        for q in range(4):
            a('buffer_load_dwordx4 %s, %s, %s, %s offen offset:%d %s' % (vr(V.L+12*(q >> 1)+4*(q & 1), 4), self.eld(q), SWS, sA, 256*q, self.o['ld1']))

    def mf32(self, d, i, dataA):
        for pl in range(2):
            M = vr(V.F32+16*pl+4*i, 4); X = vr(V.O+4*i, 4)
            A, B = (X, M) if dataA else (M, X)
            D = vr(d+16*pl, 16)
            self.a('v_mfma_f32_32x32x16_bf16 %s, %s, %s, %s' % (D, A, B, D if i else '0'))

    def cmul_stage(self, src, dst, dataA, coef, kind, prio=None, late=False):
        a = self.a; T = V.T
        if prio is not None and self.o['prio']: a('s_setprio %d' % prio)
        if kind == 'tw' and self.o['shear']:
            for i in range(4):
                for st in range(3):
                    for r in range(4):
                        rho = 4*i+r
                        x, y = v(src+rho), v(src+16+rho)
                        if st == 1: a('v_fmac_f32 %s, %s, %s' % (y, v(coef+16+rho), x))
                        else: a('v_fmac_f32 %s, %s, %s' % (x, v(coef+rho), y))
                for r in range(4): self.cvt(V.O+4*i+r, src+4*i+r, src+16+4*i+r)
                self.mf32(dst, i, dataA)
            return
        if late:
            a('s_waitcnt vmcnt(2)')
            for rho in range(8): self.w_read(rho)
        for i in range(4):
            if late:
                if i == 0: a('s_waitcnt lgkmcnt(8)'); self.w_fix(0)
                if i == 1:
                    a('s_waitcnt vmcnt(0)')
                    for rho in range(8, 12): self.w_read(rho)
                    a('s_waitcnt lgkmcnt(8)')
                if i == 2:
                    for rho in range(12, 16): self.w_read(rho)
                    a('s_waitcnt lgkmcnt(8)'); self.w_fix(1)
                if i == 3: a('s_waitcnt lgkmcnt(0)')
            for r in range(4):
                rho = 4*i+r
                x, y = v(src+rho), v(src+16+rho)
                c, s = v(coef+rho), v(coef+16+rho)
                t0, t1 = v(T+2*r), v(T+2*r+1)
                a('v_mul_f32 %s, %s, %s' % (t0, x, c))
                a('v_mul_f32 %s, %s, %s' % (t1, y, c))
            for r in range(4):
                rho = 4*i+r
                x, y = v(src+rho), v(src+16+rho)
                c, s = v(coef+rho), v(coef+16+rho)
                t0, t1 = v(T+2*r), v(T+2*r+1)
                if kind == 'tw' or rho >= 8:
                    a('v_fmac_f32 %s, %s, %s' % (t0, y, s))
                    a('v_fma_f32 %s, -%s, %s, %s' % (t1, x, s, t1))
                else:
                    a('v_fma_f32 %s, -%s, %s, %s' % (t0, y, s, t0))
                    a('v_fmac_f32 %s, %s, %s' % (t1, x, s))
            for r in range(4):
                if kind == 'tw': self.cvt(V.O+4*i+r, T+2*r, T+2*r+1)
                else: self.cvt(V.O+4*i+r, T+2*r+1, T+2*r)
            self.mf32(dst, i, dataA)

    def p2_compute(self, wl=None):
        a = self.a; O, L, D, T = V.O, V.L, V.DA, V.T
        late = wl is not None
        na = 0
        for cbb in range(2):
            b = L+12*cbb
            a('s_waitcnt vmcnt(%d)' % (na+3-2*cbb))
            a('v_mov_b32 %s, %s' % (v(b+8), v(b))); a('v_mov_b32 %s, %s' % (v(b+9), v(b+1)))
            a('s_waitcnt vmcnt(%d)' % (na+2-2*cbb))
            if cbb: self.stamp(); self.fstamp()
            for jj2 in (1, 0):
                ti = 2*cbb+jj2
                op = b+2 if jj2 else b+6
                mo = 0 if jj2 else 2
                self.mf16(D+4*ti, V.B+mo, op)
                self.mf16(D+16+4*ti, V.B+6+mo, op)
        for cbb in range(2):
            for k1b in range(2):
                P = O+4*(2*cbb+k1b)
                for pl in range(2):
                    for jj2 in (1, 0):
                        x = D+16*pl+4*(2*cbb+jj2)+2*k1b
                        self.cvt(P+2*pl+jj2, x, x+1)
                a('ds_write_b128 %s, %s offset:%d' % (v(V.X1w), vr(P, 4), k1b*4096+cbb*256))
        self.fstamp()
        a('s_waitcnt lgkmcnt(0)')
        self.fstamp()
        if self.o.get('fine'): a('s_waitcnt lgkmcnt(0)')
        a('s_barrier')
        if self.o['prio']: a('s_setprio 3')
        for i in range(4):
            for ii in range(2):
                a('ds_read_b64_tr_b16 %s, %s offset:%d' % (vr(O+4*i+2*ii, 2), v(V.X1r), ii*1024+(i & 1)*512+(i >> 1)*2048))
        for i in range(4):
            if late and i in (0, 2): self.wat('postX1', (i, i+1))
            a('s_waitcnt lgkmcnt(%d)' % (6-2*i))
            self.mf32(V.DA, i, True)
        self.fstamp()
        if late: self.wat('tw1')
        self.cmul_stage(V.DA, V.DB, False, V.TW, 'tw', 2)
        self.fstamp()
        l0, l1 = self.label('PWspec'), self.label('PWend')
        a('s_cmp_eq_u32 %s, 1' % sSpec)
        a('s_cbranch_scc1 %s' % l0)
        if self.o.get('fine'): a('s_waitcnt lgkmcnt(0)')
        self.cmul_stage(V.DB, V.DA, True, V.W, 'w', 1, late)
        a(l1+':')
        self.fstamp()
        self.cmul_stage(V.DA, V.DB, True, V.TW, 'tw', 0)
        self.fstamp()
        D = V.DB
        rho = lambda jj3, jj1, jj2, c: 4*(2*jj3+jj1)+2*jj2+c
        for c in range(2):
            for jj1 in range(2):
                P = O+4*(2*c+jj1)
                for pl in range(2):
                    for jj3 in range(2):
                        self.cvt(P+2*pl+jj3, D+16*pl+rho(jj3, jj1, 0, c), D+16*pl+rho(jj3, jj1, 1, c))
                a('ds_write_b128 %s, %s offset:%d' % (v(V.X2w), vr(P, 4), c*64+jj1*1024))
                if self.o['ib2'] and not self.o['ib3'] and c == 0 and jj1 == 0: self.major_read()
        self.fstamp()
        a('s_waitcnt lgkmcnt(0)')
        if self.o['ib2'] and not self.o['ib3']: self.major_use()
        self.fstamp()
        if self.o.get('fine'): a('s_waitcnt lgkmcnt(0)')
        a('s_barrier')
        for cbb in range(2):
            for jj1 in range(2):
                for ii in range(2):
                    a('ds_read_b64_tr_b16 %s, %s offset:%d' % (vr(O+4*(2*cbb+jj1)+2*ii, 2), v(V.X2r), ii*256+jj1*1024+cbb*8224))
        for r in range(4): a('s_add_u32 %s, %s, 0x%x' % (sO[r], self.est(), self.ubase(1) + r*self.tstride()))
        D = V.DA
        for ti in range(4):
            a('s_waitcnt lgkmcnt(%d)' % (6-2*ti))
            self.mf16(D+4*ti, V.Bp, O+4*ti)
            self.mf16(D+16+4*ti, V.Bp+4, O+4*ti)
        self.fstamp()
        P = V.DB
        for q in range(4):
            cbb, sbb = q >> 1, q & 1
            for jj1 in range(2):
                for hf in range(2):
                    x = 4*(2*cbb+jj1)+2*sbb+hf
                    self.cvt(P+4*q+2*jj1+hf, D+x, D+16+x)
            a('buffer_store_dwordx4 %s, %s, %s, %s offen %s' % (vr(P+4*q, 4), v(V.Est), SWS, sO[q], self.o['st2']))
        self.fstamp()
        if self.o.get('fine'):
            a('s_memrealtime s[%d:%d]' % (sTS+2*self.nts, sTS+2*self.nts+1)); self.nts += 1
        def tail():
            C = V.DB; X = V.DA
            a(l0+':')
            self.sigma_lane(T)
            a('v_lshrrev_b32 %s, 5, %s' % (v(T+1), v(V.lane)))
            a('v_lshlrev_b32 %s, 9, %s' % (v(T+1), v(T+1)))
            a('v_lshl_add_u32 %s, %s, 2, %s' % (v(T+2), v(T), v(T+1)))
            a('v_add_u32 %s, %d, %s' % (v(T+2), SCR, v(T+2)))
            a('v_add_u32 %s, 128, %s' % (v(T+3), v(T+2)))
            a('v_sub_u32 %s, 32, %s' % (v(T+4), v(T)))
            a('v_lshrrev_b32 %s, 5, %s' % (v(T+5), v(T+4)))
            a('v_and_b32 %s, 31, %s' % (v(T+4), v(T+4)))
            a('v_lshlrev_b32 %s, 2, %s' % (v(T+4), v(T+4)))
            a('v_lshl_add_u32 %s, %s, 8, %s' % (v(T+4), v(T+5), v(T+4)))
            a('v_sub_u32 %s, %s, %s' % (v(T+4), v(T+4), v(T+1)))
            a('v_add_u32 %s, %d, %s' % (v(T+4), SCR + 2*256, v(T+4)))
            a('v_add_u32 %s, 128, %s' % (v(T+5), v(T+4)))
            a('v_add_u32 %s, %d, %s' % (v(T+6), SCR_B, v(V.l16)))
            qs = lambda rho: sigma(8*(rho >> 2) + (rho & 3))
            for pl in range(2):
                for rho in range(0, 16, 2):
                    a('ds_write2st64_b32 %s, %s, %s offset0:%d offset1:%d' % (v(T+2+pl), v(C+16*pl+rho), v(C+16*pl+rho+1), qs(rho), qs(rho+1)))
                a('ds_write_b32 %s, %s offset:%d' % (v(T+2+pl), v(C+16*pl), 32*256))
            a('s_waitcnt lgkmcnt(0)')
            t0, t1 = v(T+8), v(T+9)
            for half in range(2):
                for pl in range(2):
                    for k in range(0, 8, 2):
                        rho_ = 8*half+k
                        a('ds_read2st64_b32 %s, %s offset0:%d offset1:%d' % (vr(X+8*pl+k, 2), v(T+4+pl), 29-qs(rho_), 29-qs(rho_+1)))
                    for k in range(2):
                        a('ds_read_b128 %s, %s offset:%d' % (vr(X+16+8*pl+4*k, 4), v(T+6), 1024*(4*pl+2*half+k)))
                a('s_waitcnt lgkmcnt(0)')
                for k in range(8):
                    rho_ = 8*half+k
                    x, y = v(C+rho_), v(C+16+rho_); ar, ai = v(V.W+rho_), v(V.W+16+rho_)
                    p, q_ = v(X+k), v(X+8+k); br, bi = v(X+16+k), v(X+24+k)
                    ng, ps = ('', '-') if half else ('-', '')
                    a('v_mul_f32 %s, %s, %s' % (t0, x, ar))
                    a('v_mul_f32 %s, %s, %s' % (t1, y, ar))
                    a('v_fma_f32 %s, %s%s, %s, %s' % (t0, ng, y, ai, t0))
                    a('v_fma_f32 %s, %s%s, %s, %s' % (t1, ps, x, ai, t1))
                    a('v_fmac_f32 %s, %s, %s' % (t0, p, br))
                    a('v_fma_f32 %s, -%s, %s, %s' % (t1, q_, br, t1))
                    a('v_fma_f32 %s, %s%s, %s, %s' % (t0, ps, q_, bi, t0))
                    a('v_fma_f32 %s, %s%s, %s, %s' % (t1, ps, p, bi, t1))
                    self.cvt(O+rho_, T+9, T+8)
            for i in range(4): self.mf32(V.DA, i, True)
            a('s_nop 11')
            a('s_branch %s' % l1)
        self.tail.append(tail)

    def p3_addrs(self):
        a = self.a; T = V.T
        a('v_and_b32 %s, 16, %s' % (v(T), v(V.lane)))
        for bit, st in ((0, 32), (3, 4096), (5, 1024)):
            a('v_bfe_u32 %s, %s, %d, 1' % (v(T+1), v(V.lane), bit))
            a('v_lshl_add_u32 %s, %s, %d, %s' % (v(T), v(T+1), int(math.log2(st)), v(T)))
        for bit, st in ((1, 8208), (2, 16448)):
            a('v_bfe_u32 %s, %s, %d, 1' % (v(T+1), v(V.lane), bit))
            a('v_mul_u32_u24 %s, %d, %s' % (v(T+1), st, v(T+1)))
            a('v_add_u32 %s, %s, %s' % (v(T), v(T), v(T+1)))
        a('s_sub_u32 %s, 16, %s' % (sC, sW))
        a('s_cmp_eq_u32 %s, 0' % sW)
        a('s_cselect_b32 %s, 8, %s' % (sC, sC))
        for kl, dst in ((sW, V.X3w0), (sC, V.X3w1)):
            a('s_and_b32 %s, %s, 9' % (sA, kl)); a('s_lshl_b32 %s, %s, 6' % (sA, sA))
            a('s_and_b32 %s, %s, 2' % (sB, kl)); a('s_lshl_b32 %s, %s, 7' % (sB, sB)); a('s_add_u32 %s, %s, %s' % (sA, sA, sB))
            a('s_and_b32 %s, %s, 4' % (sB, kl)); a('s_lshl_b32 %s, %s, 5' % (sB, sB)); a('s_add_u32 %s, %s, %s' % (sA, sA, sB))
            a('s_add_u32 %s, %s, %d' % (sA, sA, R1))
            a('v_add_u32 %s, %s, %s' % (v(dst), sA, v(T)))
        self.tr_lane(T, 512, 128)
        a('s_and_b32 %s, %s, 1' % (sA, sW)); a('s_mul_i32 %s, %s, 8208' % (sA, sA))
        a('s_bfe_u32 %s, %s, 0x10001' % (sB, sW)); a('s_mul_i32 %s, %s, 16448' % (sB, sB)); a('s_add_u32 %s, %s, %s' % (sA, sA, sB))
        a('s_lshr_b32 %s, %s, 2' % (sB, sW)); a('s_lshl_b32 %s, %s, 12' % (sB, sB)); a('s_add_u32 %s, %s, %s' % (sA, sA, sB))
        a('s_add_u32 %s, %s, %d' % (sA, sA, R1))
        a('v_add_u32 %s, %s, %s' % (v(V.X3r), sA, v(T)))
        a('v_bfe_u32 %s, %s, 3, 1' % (v(T), v(V.lane)))
        a('v_lshlrev_b32 %s, 15, %s' % (v(T), v(T)))
        a('v_lshl_add_u32 %s, %s, 21, %s' % (v(T), v(V.g), v(T)))
        a('v_and_b32 %s, 0x70, %s' % (v(T+1), v(V.l16)))
        a('v_add_u32 %s, %s, %s' % (v(V.Ooff), v(T), v(T+1)))
    def p3_soff(self):
        a = self.a
        a('s_lshl_b32 %s, %s, 16' % (sO[0], sW))
        a('s_lshl_b32 %s, %s, 12' % (sA, sSB)); a('s_add_u32 %s, %s, %s' % (sO[0], sO[0], sA))
        a('s_lshl_b32 %s, %s, 7' % (sA, sCB)); a('s_add_u32 %s, %s, %s' % (sO[0], sO[0], sA))
        a('s_lshl_b32 %s, %s, 11' % (sA, sP)); a('s_add_u32 %s, %s, %s' % (sO[0], sO[0], sA))
        for r in range(1, 4): a('s_add_u32 %s, %s, 0x%x' % (sO[r], sO[0], r*524288))
    def p3_issue(self):
        a = self.a
        a('s_add_u32 %s, %s, 0x%x' % (sA, sEld, self.ubase(1)))
        for q in range(4):
            a('buffer_load_dwordx4 %s, %s, %s, %s offen offset:%d %s' % (vr(V.L+4*q, 4), self.eld(q, 1), SWS, sA, 256*q, self.o['ld2']))
    def p3_compute(self):
        a = self.a; O, L, D = V.O, V.L, V.DA
        def normal():
            for i in range(4):
                a('s_waitcnt vmcnt(%d)' % (3-i))
                for sel in range(2):
                    for col in range(2):
                        a('v_mov_b32 %s, %s' % (v(O+4*(2*sel+col)+i), v(L+4*i+2*col+sel)))
        def w0():
            for i in range(4):
                ts, eb = i >> 1, i & 1
                a('s_waitcnt vmcnt(%d)' % (3-i))
                for col in range(2):
                    for sg in range(2):
                        a('v_mov_b32 %s, %s' % (v(O+4*(2*ts+col)+2*eb+sg), v(L+4*i+2*col+sg)))
        self.ifelse(sW, 0, w0, normal, True)
        self.stamp()
        for ti in range(4):
            self.mf16(D+4*ti, O+4*ti, V.M2+8*(ti >> 1))
            self.mf16(D+16+4*ti, O+4*ti, V.M2+8*(ti >> 1)+4)
        P = V.DB
        for ti in range(4):
            for pl in range(2):
                for k in range(2):
                    x = D+16*pl+4*ti+2*k
                    self.cvt(P+4*ti+2*pl+k, x, x+1)
            a('ds_write_b128 %s, %s offset:%d' % (v(V.X3w1 if ti >> 1 else V.X3w0), vr(P+4*ti, 4), (ti & 1)*2048))
        a('s_waitcnt lgkmcnt(0)')
        a('s_barrier')
        for t in range(4):
            for ii in range(2):
                a('ds_read_b64_tr_b16 %s, %s offset:%d' % (vr(O+4*t+2*ii, 2), v(V.X3r), ii*256+t*1024))
        for t in range(4):
            a('s_waitcnt lgkmcnt(%d)' % (6-2*t))
            self.mf16(D+4*t, V.F16, O+4*t)
            self.mf16(D+16+4*t, V.F16+4, O+4*t)
        for t in range(3):
            for r in range(4): self.cvt(P+4*r+t, D+16+4*t+r, D+4*t+r)
        for r in range(4):
            self.cvt(P+4*r+3, D+16+12+r, D+12+r)
            a('buffer_store_dwordx4 %s, %s, %s, %s offen %s' % (vr(P+4*r, 4), v(V.Ooff), SOUT, sO[r], self.o['sto']))

    def flush_tail(self):
        t, self.tail = self.tail, []
        for f in t: f()

    def kernel_head(self, name):
        self.a.raw('.globl %s\n.p2align 12\n.p2align 8\n.type %s,@function\n%s:' % (name, name, name))
    def kd(self, name):
        return '''.p2align 6
.amdhsa_kernel %s
  .amdhsa_next_free_vgpr %d
  .amdhsa_next_free_sgpr 102
  .amdhsa_accum_offset %d
  .amdhsa_group_segment_fixed_size 0
  .amdhsa_kernarg_size 72
  .amdhsa_user_sgpr_count 2
  .amdhsa_user_sgpr_kernarg_segment_ptr 1
  .amdhsa_system_sgpr_workgroup_id_x 1
.end_amdhsa_kernel''' % (name, NVGPR, (NVGPR+3)//4*4)

    def build_three(self):
        a = self.a
        names = ['gf_p1_kernel', 'gf_p2_kernel', 'gf_p3_kernel']
        self.kernel_head(names[0]); end = self.label('end')
        self.prologue(end); self.p1_load(); a('s_waitcnt lgkmcnt(0)'); self.p1_issue()
        self.ex_addrs(); self.p1_addrs(); self.gen_F16(); self.gen_M2()
        self.p1_compute(0)
        if self.o['ts']: self.stamp(); a('s_waitcnt vmcnt(0)'); self.stamp(); self.dump_stamps(0)
        a(end+':'); a('s_endpgm'); self.flush_tail()
        self.kernel_head(names[1]); end = self.label('end')
        self.prologue(end); self.ex_addrs(); self.calc_k0(); a('s_waitcnt lgkmcnt(0)')
        self.w_dma(); self.p2_addrs(); self.gen_B(); self.gen_F32TW()
        a('s_waitcnt vmcnt(0)'); self.w_regs(); a('s_waitcnt lgkmcnt(0)')
        self.p2_issue(); self.p2_compute()
        if self.o['ts']: self.stamp(); a('s_waitcnt vmcnt(0)'); self.stamp(); self.dump_stamps(8)
        a(end+':'); a('s_endpgm'); self.flush_tail()
        self.kernel_head(names[2]); end = self.label('end')
        self.prologue(end); self.ex_addrs(); a('s_waitcnt lgkmcnt(0)'); self.p3_issue()
        self.p3_addrs(); self.p3_soff(); self.gen_F16(); self.gen_M3()
        self.p3_compute()
        if self.o['ts']: self.stamp(); a('s_waitcnt vmcnt(0)'); self.stamp(); self.dump_stamps(16)
        a(end+':'); a('s_endpgm'); self.flush_tail()
        launch = ''.join('; @launch kernel=%s grid=(256,1,1) block=(512,1,1) lds=%d\n' % (n, LDS_TOTAL) for n in names)
        return self.finish(launch, names)

    def flag_addrs(self):
        a = self.a
        if self.o['ib']:
            a('s_lshr_b32 %s, %s, 4' % (sB, sT))
            for dst, wp, gr in ((sF, sW, sB), (sE, sB, sW)):
                a('s_lshl3_add_u32 %s, %s, %s' % (sA, sP, wp)); a('s_lshl_b32 %s, %s, 21' % (sA, sA))
                a('s_lshl_b32 %s, %s, 10' % (sC, gr)); a('s_add_u32 %s, %s, %s' % (sA, sA, sC))
                a('s_add_u32 %s, %s, 0x%x' % (dst, sA, WS_FLAG_IB))
            a('s_and_b32 %s, %s, 15' % (sA, sT)); a('s_add_u32 %s, %s, 8' % (sA, sA))
            a('s_lshl_b32 %s, %s, %s' % (sInc, sCh, sA)); a('s_add_u32 %s, %s, 1' % (sInc, sInc))
            a('v_lshl_add_u32 %s, %s, 2, 8' % (v(V.dummy), v(V.g)))
            return
        if self.o['fl'] != '':
            pol = int(self.o['fl'][1]); mode = self.o['fl'][0]
            a('s_lshr_b32 %s, %s, 4' % (sB, sT))
            for dst, wp, gr in ((sF, sW, sB), (sE, sB, sW)):
                a('s_lshl3_add_u32 %s, %s, %s' % (sA, sP, wp))
                if mode == 'x': a('s_xor_b32 %s, %s, %d' % (sC, sP, pol))
                else: a('s_lshr_b32 %s, %s, 2' % (sC, wp)); a('s_xor_b32 %s, %s, %d' % (sC, sC, pol))
                a('s_lshl1_add_u32 %s, %s, %s' % (sA, sA, sC))
                a('s_lshl3_add_u32 %s, %s, %s' % (sA, sA, gr))
                a('s_lshl_b32 %s, %s, 10' % (sA, sA))
                a('s_add_u32 %s, %s, 0x%x' % (dst, sA, WS_FLAG))
            return
        fs = int(self.o['fstride'])
        a('s_lshl_b32 %s, %s, %d' % (sA, sP, fs+6)); a('s_add_u32 %s, %s, 0x%x' % (sA, sA, WS_FLAG))
        a('s_lshr_b32 %s, %s, 4' % (sB, sT))
        a('s_lshl_b32 %s, %s, %d' % (sF, sW, fs+3)); a('s_add_u32 %s, %s, %s' % (sF, sF, sA))
        a('s_lshl_b32 %s, %s, %d' % (sC, sB, fs)); a('s_add_u32 %s, %s, %s' % (sF, sF, sC))
        a('s_lshl_b32 %s, %s, %d' % (sE, sB, fs+3)); a('s_add_u32 %s, %s, %s' % (sE, sE, sA))
        a('s_lshl_b32 %s, %s, %d' % (sC, sW, fs)); a('s_add_u32 %s, %s, %s' % (sE, sE, sC))
    def p2_probe_issue(self):
        a = self.a
        def f():
            a('s_bfe_u32 %s, %s, 0x30003' % (sA, sT)); a('s_lshl3_add_u32 %s, %s, %s' % (sA, sP, sA))
            a('s_lshr_b32 %s, %s, 6' % (sCh2, sT))
            a('s_lshl1_add_u32 %s, %s, %s' % (sA, sA, sCh2))
            a('s_and_b32 %s, %s, 7' % (sB, sT)); a('s_lshl3_add_u32 %s, %s, %s' % (sA, sA, sB))
            a('s_lshl_b32 %s, %s, 10' % (sA, sA)); a('s_add_u32 %s, %s, 0x%x' % (sA, sA, WS_FLAG2))
            a('s_xor_b32 %s, %s, 0x2000' % (sB, sA))
            a('s_mov_b64 s[92:93], 0')
            a('s_atomic_swap s92, s[24:25], %s glc' % sA)
            a('s_atomic_swap s93, s[24:25], %s glc' % sB)
        self.cond(sW, PW, f)
    def p2_probe_eval(self):
        a = self.a; T = V.T
        def f():
            a('s_waitcnt lgkmcnt(1)')
            a('s_nop %s' % self.o['pnop'])
            a('s_getreg_b32 %s, hwreg(HW_REG_IB_STS, 8, 4)' % sA)
            a('s_cmp_eq_u32 %s, 0' % sA)
            a('s_cselect_b32 %s, 1, 0' % sA)
            a('s_xor_b32 %s, %s, %s' % (sCh2, sCh2, sA))
            if self.o['force'] != '': a('s_xor_b32 %s, %s, %s' % (sCh2, sP, self.o['force']))
            if not self.o['ib3']:
                a('v_mov_b32 %s, %d' % (v(T), CNT)); a('v_mov_b32 %s, %s' % (v(T+1), sCh2))
                a('ds_write_b32 %s, %s offset:4' % (v(T), v(T+1)))
            if self.o['ib3']:
                l = self.label('nv')
                a('s_and_b32 %s, s2, 0x8f' % sA); a('s_cmp_lg_u32 %s, 8' % sA); a('s_cbranch_scc1 %s' % l)
                a('s_cmp_eq_u32 s2, 120'); a('s_cbranch_scc1 %s' % l)
                a('s_lshl_b32 s94, %s, 8' % sCh2); a('s_add_u32 s94, s94, 0x1001')
                a('s_atomic_add s94, s[20:21], 0x0')
                a(l+':')
        self.cond(sW, PW, f)
    def vote_read(self):
        a = self.a
        def f():
            a('s_mov_b32 s22, 256'); a('s_mov_b32 s23, 0x20000')
            a('v_mov_b32 %s, 0' % v(V.EL))
            a('buffer_load_dword %s, %s, %s, 0 offen sc1' % (v(V.dummy), v(V.EL), SDBG))
        self.cond(sW, PW, f)
    def vote_use(self):
        a = self.a; T = V.T
        def f():
            a('v_readfirstlane_b32 %s, %s' % (sA, v(V.dummy)))
            a('s_bfe_u32 %s, %s, 0x40008' % (sB, sA)); a('s_bfe_u32 %s, %s, 0x4000c' % (sC, sA))
            a('s_sub_u32 %s, %s, %s' % (sC, sC, sB))
            a('s_xor_b32 %s, %s, 1' % (sA, sP))
            a('s_cmp_ge_u32 %s, 4' % sB); a('s_cselect_b32 %s, %s, %s' % (sCh2, sA, sCh2))
            a('s_cmp_ge_u32 %s, 4' % sC); a('s_cselect_b32 %s, %s, %s' % (sCh2, sP, sCh2))
            a('v_mov_b32 %s, %s' % (v(T+1), sCh2))
            a('ds_write_b32 %s, %s offset:4' % (v(V.dummy2), v(T+1)))
        self.cond(sW, PW, f)
    def zero3(self):
        a = self.a
        a('s_sub_u32 %s, s2, 16' % sZ)
        a('s_and_b32 %s, %s, 0xffffffef' % (sZ, sZ))
        def f():
            a('s_lshr_b32 %s, s2, 5' % sA)
            a('s_lshl1_add_u32 %s, %s, %s' % (sA, sW, sA))
            a('s_lshl_b32 %s, %s, 13' % (sA, sA)); a('s_add_u32 %s, %s, 0x%x' % (sA, sA, WS_FLAG))
            for i in range(0, 8, 2): a('s_mov_b64 s[%d:%d], 0' % (84+i, 85+i))
            for i in range(8):
                a('s_atomic_swap s%d, s[24:25], %s offset:0x%x glc' % (84+i, sA, i << 10))
        self.cond(sZ, 0, f)
    def ready3(self):
        a = self.a
        def f():
            a('s_mov_b32 s94, 1')
            a('s_waitcnt lgkmcnt(0)')
            a('s_atomic_add s94, s[20:21], 0x0')
        self.cond(sZ, 0, f)
    def flag_addrs3(self):
        a = self.a
        a('s_lshr_b32 %s, %s, 4' % (sB, sT))
        for dst, wp, gr in ((sF, sW, sB), (sE, sB, sW)):
            a('s_lshl4_add_u32 %s, %s, %s' % (sC, wp, gr)); a('s_lshl_b32 %s, %s, 10' % (sC, sC))
            a('s_add_u32 %s, %s, 0x%x' % (dst, sC, WS_FLAG))
    def side3(self):
        a = self.a
        a('s_bfe_u32 %s, %s, 0x1000a' % (sCh2, sRv))
        a('s_xor_b32 %s, %s, %s' % (sCh2, sCh2, sP)); a('s_lshl_b32 %s, %s, 13' % (sCh2, sCh2))
        a('s_add_u32 %s, %s, %s' % (sF, sF, sCh2))
    def side3b(self):
        a = self.a
        a('s_add_u32 %s, %s, %s' % (sE, sE, sCh2))
        a('s_xor_b32 %s, %s, %s' % (sZp, sEst, sCh2))
    def side3c(self):
        a = self.a
        a('s_and_b32 %s, %s, 0x2000' % (sA, sZ)); a('s_xor_b32 %s, %s, %s' % (sA, sA, sCh2)); a('s_add_u32 %s, %s, %s' % (sEld, sEld, sA))
    def p2_choice_read(self):
        self.a('ds_read_b32 %s, %s offset:4' % (v(V.dummy), v(V.dummy2)))
    def p2_choice_use(self):
        a = self.a
        a('s_waitcnt lgkmcnt(8)')
        a('v_readfirstlane_b32 %s, %s' % (sCh2, v(V.dummy)))
        a('s_lshl_b32 %s, %s, 13' % (sA, sCh2))
        a('s_xor_b32 %s, %s, %s' % (sZp, sEst, sA))
        if self.o['ts']: a('s_mov_b32 s%d, %s' % (sTS+24, sCh2))
    def ex_addrs_ib2(self):
        a = self.a; T = V.T
        a('s_lshl_b32 %s, %s, 4' % (sB, sW)); a('s_xor_b32 %s, %s, %s' % (sB, sB, sT)); a('s_lshl_b32 %s, %s, 8' % (sB, sB))
        a('v_lshlrev_b32 %s, 4, %s' % (v(T), v(V.n)))
        a('v_lshl_add_u32 %s, %s, 10, %s' % (v(T), v(V.g), v(T)))
        a('v_xor_b32 %s, %s, %s' % (v(T), sB, v(T)))
        a('v_and_b32 %s, 0x6000, %s' % (v(T+1), v(T)))
        a('v_add_u32 %s, %s, %s' % (v(T), v(T), v(T+1)))
        a('v_lshl_add_u32 %s, %s, 18, %s' % (v(V.Est), v(V.g), v(T)))
        a('v_and_b32 %s, 0xdcff, %s' % (v(V.Eld0), v(T)))
        a('s_lshl3_add_u32 %s, %s, %s' % (sEst, sP, sW)); a('s_lshl_b32 %s, %s, 20' % (sEst, sEst))
        a('s_and_b32 %s, %s, 2' % (sA, sW)); a('s_lshl_b32 %s, %s, 12' % (sA, sA)); a('s_add_u32 %s, %s, %s' % (sEst, sEst, sA))
    def misc_ib2(self):
        a = self.a
        a('s_lshl_b32 %s, %s, 7' % (sEld, sP)); a('s_add_u32 %s, %s, %s' % (sEld, sEld, sT)); a('s_lshl_b32 %s, %s, 16' % (sEld, sEld))
        a('s_and_b32 %s, %s, 15' % (sA, sT)); a('s_add_u32 %s, %s, 8' % (sA, sA))
        a('s_lshl_b32 %s, %s, %s' % (sInc, sCh2, sA)); a('s_add_u32 %s, %s, 1' % (sInc, sInc))
        a('v_lshl_add_u32 %s, %s, 2, 8' % (v(V.dummy), v(V.g)))
        a('s_bfe_i32 %s, %s, 0x10005' % (sZ, sT))
    def ld_addrs_ib2(self):
        a = self.a; T = V.T
        a('s_xor_b32 %s, %s, %s' % (sA, sRv, sZ))
        a('v_lshrrev_b32 %s, %s, %s' % (v(T), v(V.dummy), sA))
        for q in range(4):
            a('v_bfe_u32 %s, %s, %d, 1' % (v(T+1), v(T), q))
            a('v_lshl_add_u32 %s, %s, 13, %s' % (v(T+2+q), v(T+1), v(V.Eld0)))
    def major_post(self):
        a = self.a; T = V.T
        def f():
            a('s_bfe_u32 %s, %s, 0x100008' % (sA, sRv)); a('s_bcnt1_i32_b32 %s, %s' % (sA, sA))
            a('s_cmp_gt_u32 %s, 8' % sA); a('s_cselect_b32 %s, 0x2000, 0' % sA)
            a('v_mov_b32 %s, %s' % (v(T), sA))
            a('ds_write_b32 %s, %s offset:8' % (v(V.dummy2), v(T)))
        self.cond(sW, 0, f)
    def major_read(self):
        self.a('ds_read_b32 %s, %s offset:8' % (v(V.dummy), v(V.dummy2)))
    def major_use(self):
        a = self.a
        a('v_readfirstlane_b32 %s, %s' % (sCh2, v(V.dummy)))
        a('s_xor_b32 %s, %s, %s' % (sZp, sEst, sCh2))
    def major_use2(self):
        a = self.a
        a('s_and_b32 %s, %s, 0x2000' % (sA, sZ)); a('s_xor_b32 %s, %s, %s' % (sA, sA, sCh2)); a('s_add_u32 %s, %s, %s' % (sEld, sEld, sA))
        a('s_lshr_b32 %s, %s, 4' % (sB, sT))
        for dst, wp, gr in ((sF, sW, sB), (sE, sB, sW)):
            a('s_lshl3_add_u32 %s, %s, %s' % (sA, sP, wp)); a('s_lshl4_add_u32 %s, %s, %s' % (sA, sA, gr)); a('s_lshl_b32 %s, %s, 10' % (sA, sA))
            a('s_add_u32 %s, %s, %s' % (sA, sA, sCh2)); a('s_add_u32 %s, %s, 0x%x' % (dst, sA, WS_FLAG2))

    def gz_issue(self):
        a = self.a
        a('s_sub_u32 %s, s2, 16' % sZ)
        a('s_and_b32 %s, %s, 0xffffffef' % (sZ, sZ))
        def f():
            a('s_lshr_b32 %s, s2, 5' % sZp)
            a('s_lshl1_add_u32 %s, %s, %s' % (sCh, sW, sZp))
            a('s_lshl_b32 %s, %s, 13' % (sCh, sCh)); a('s_add_u32 %s, %s, 0x%x' % (sCh, sCh, WS_FLAG))
            for i in range(0, 8, 2): a('s_mov_b64 s[%d:%d], 0' % (84+i, 85+i))
            for i in range(8):
                a('s_atomic_swap s%d, s[24:25], %s offset:0x%x glc' % (84+i, sCh, i << 10))
        self.cond(sZ, 0, f)
    def gz_publish(self):
        a = self.a
        def f():
            a('s_waitcnt lgkmcnt(0)')
            a('s_memtime s[84:85]')
            a('s_mov_b32 s88, 0')
            a('s_waitcnt lgkmcnt(0)')
            a('s_atomic_add s88, s[24:25], %s glc' % sCh)
            a('s_waitcnt lgkmcnt(0)')
            a('s_memtime s[86:87]')
            a('s_mul_i32 %s, %s, 13' % (sZp, sZp)); a('s_add_u32 %s, %s, 5' % (sZp, sZp))
            a('s_waitcnt lgkmcnt(0)')
            a('s_sub_u32 s84, s86, s84'); a('s_lshr_b32 s84, s84, 3'); a('s_min_u32 s84, s84, 0x3ff')
            a('s_lshl_b32 s84, s84, %s' % sZp); a('s_add_u32 s84, s84, 1')
            a('s_atomic_add s84, s[20:21], 0x0')
        self.cond(sZ, 0, f)
    def gz_read(self):
        a = self.a
        a('v_mov_b32 %s, 0' % v(V.EL))
        a('buffer_load_dword %s, %s, %s, 0 offen sc1' % (v(V.dummy), v(V.EL), SDBG))
    def gz_check(self):
        a = self.a; l0, l1 = self.label('gz'), self.label('gzok')
        a('s_waitcnt vmcnt(0)')
        a('v_readfirstlane_b32 %s, %s' % (sRv, v(V.dummy)))
        a('s_bitcmp1_b32 %s, 4' % sRv)
        a('s_cbranch_scc1 %s' % l1)
        a('s_mov_b32 %s, 0' % sCnt)
        a(l0+':')
        a('buffer_load_dword %s, %s, %s, 0 offen sc1' % (v(V.dummy), v(V.EL), SDBG))
        a('s_add_u32 %s, %s, 1' % (sCnt, sCnt))
        a('s_cmp_gt_u32 %s, 0x%x' % (sCnt, SPIN_MAX))
        a('s_waitcnt vmcnt(0)')
        a('v_readfirstlane_b32 %s, %s' % (sRv, v(V.dummy)))
        a('s_cbranch_scc1 %s' % l1)
        a('s_bitcmp0_b32 %s, 4' % sRv)
        a('s_cbranch_scc1 %s' % l0)
        a(l1+':')
        a('s_bfe_u32 %s, %s, 0xd0005' % (sA, sRv)); a('s_bfe_u32 %s, %s, 0xd0012' % (sB, sRv))
        a('s_cmp_lt_u32 %s, %s' % (sB, sA))
        a('s_cselect_b32 %s, 0x2000, 0' % sCh)
        if self.o['force'] != '': a('s_mov_b32 %s, %d' % (sCh, int(self.o['force']) << 13))
        a('s_xor_b32 %s, %s, %s' % (sEst, sEst, sCh))
        if self.o['ts']: a('s_mov_b32 s%d, %s' % (sTS+24, sRv))
    def gz_flag_addrs(self):
        a = self.a
        a('s_xor_b32 %s, %s, %s' % (sEld, sEld, sCh))
        a('s_lshr_b32 %s, %s, 4' % (sB, sT))
        a('s_lshl_b32 %s, %s, 13' % (sA, sP)); a('s_xor_b32 %s, %s, %s' % (sA, sA, sCh)); a('s_add_u32 %s, %s, 0x%x' % (sA, sA, WS_FLAG))
        for dst, wp, gr in ((sF, sW, sB), (sE, sB, sW)):
            a('s_lshl4_add_u32 %s, %s, %s' % (sC, wp, gr)); a('s_lshl_b32 %s, %s, 10' % (sC, sC))
            a('s_add_u32 %s, %s, %s' % (dst, sC, sA))

    def zero_flags_ib(self):
        a = self.a
        def f():
            a('s_waitcnt lgkmcnt(0)')
            a('s_lshl_b32 %s, %s, 13' % (sA, sCh)); a('s_add_u32 %s, %s, %s' % (sA, sA, sEst)); a('s_add_u32 %s, %s, 0x%x' % (sA, sA, WS_FLAG_IB))
            for i in range(0, 8, 2): a('s_mov_b64 s[%d:%d], 0' % (84+i, 85+i))
            for i in range(8):
                a('s_atomic_swap s%d, s[24:25], %s offset:0x%x glc' % (84+i, sA, i << 10))
        self.cond(sT, 1, f)
    def set_ready_ib(self):
        a = self.a
        def f():
            a('s_add_u32 %s, %s, 8' % (sA, sW)); a('s_lshl_b32 %s, %s, %s' % (sZ, sCh, sA)); a('s_add_u32 %s, %s, 1' % (sZ, sZ))
            a('s_waitcnt lgkmcnt(0)')
            a('s_atomic_add %s, s[20:21], %s' % (sZ, sRd))
        self.cond(sT, 1, f)
    def flag_side(self):
        a = self.a
        a('s_lshr_b32 %s, %s, 8' % (sRv, sRv))
        a('s_lshr_b32 %s, %s, %s' % (sA, sRv, sW)); a('s_and_b32 %s, %s, 1' % (sA, sA)); a('s_lshl_b32 %s, %s, 13' % (sA, sA)); a('s_add_u32 %s, %s, %s' % (sF, sF, sA))
    def flag_side2(self):
        a = self.a
        a('s_lshr_b32 %s, %s, 4' % (sB, sT))
        a('s_lshr_b32 %s, %s, %s' % (sA, sRv, sB)); a('s_and_b32 %s, %s, 1' % (sA, sA)); a('s_lshl_b32 %s, %s, 13' % (sA, sA)); a('s_add_u32 %s, %s, %s' % (sE, sE, sA))
    def zero_flags(self):
        a = self.a
        a('s_sub_u32 %s, s2, 16' % sZ)
        a('s_and_b32 %s, %s, 0xffffffef' % (sZ, sZ))
        def f():
            fs = int(self.o['fstride'])
            a('s_lshr_b32 %s, s2, 5' % sZp)
            a('s_lshl3_add_u32 %s, %s, %s' % (sA, sZp, sW))
            if self.o['fl'] != '':
                pol = int(self.o['fl'][1]); mode = self.o['fl'][0]; fs = 10
                if mode == 'x': a('s_xor_b32 %s, %s, %d' % (sC, sZp, pol))
                else: a('s_lshr_b32 %s, %s, 2' % (sC, sW)); a('s_xor_b32 %s, %s, %d' % (sC, sC, pol))
                a('s_lshl1_add_u32 %s, %s, %s' % (sA, sA, sC))
            a('s_lshl_b32 %s, %s, %d' % (sA, sA, fs+3)); a('s_add_u32 %s, %s, 0x%x' % (sA, sA, WS_FLAG))
            for i in range(0, 8, 2): a('s_mov_b64 s[%d:%d], 0' % (84+i, 85+i))
            for i in range(8):
                a('s_atomic_swap s%d, s[24:25], %s offset:0x%x glc' % (84+i, sA, i << fs))
            a('s_lshl_b32 %s, %s, 7' % (sZp, sZp))
        self.cond(sZ, 0, f)
    def set_ready(self):
        a = self.a
        def f():
            a('s_mov_b32 %s, 1' % sInc)
            a('s_waitcnt lgkmcnt(0)')
            a('s_atomic_add %s, s[20:21], %s' % (sInc, sZp))
        self.cond(sZ, 0, f)
    def ready_issue(self):
        self.a('s_load_dword %s, s[20:21], %s' % (sRv, sRd))
    def ready_check(self):
        a = self.a; l0, l1 = self.label('rdy'), self.label('rdyok')
        def notready():
            if self.o['ib3']: a('s_and_b32 %s, %s, 0xff' % (sA, sRv)); a('s_cmp_lt_u32 %s, 23' % sA)
            else: a('s_bitcmp0_b32 %s, 3' % sRv)
        notready()
        a('s_cbranch_scc1 %s' % l0)
        a(l1+':')
        def tail():
            lp = self.label('rdyl')
            a(l0+':')
            a('s_mov_b32 %s, 0' % sCnt)
            a('v_mov_b32 %s, 0' % v(V.O+1))
            a(lp+':')
            a('buffer_load_dword %s, %s, %s, %s offen sc1' % (v(V.O), v(V.O+1), SDBG, sRd))
            a('s_add_u32 %s, %s, 1' % (sCnt, sCnt))
            a('s_cmp_gt_u32 %s, 0x%x' % (sCnt, SPIN_MAX))
            a('s_waitcnt vmcnt(0)')
            a('v_readfirstlane_b32 %s, %s' % (sRv, v(V.O)))
            a('s_cbranch_scc1 %s' % l1)
            notready()
            a('s_cbranch_scc1 %s' % lp)
            a('s_branch %s' % l1)
        self.tail.append(tail)
    def set_flag(self, ex):
        a = self.a
        if not ((self.o['ib'] or self.o['ib2']) and ex == 0): a('s_mov_b32 %s, 0x%x' % (sInc, 1 << (24*ex)))
        a('s_atomic_add %s, s[24:25], %s' % (sInc, sF))
    def poll(self, ex, under=None):
        a = self.a; lp, ok = self.label('poll'), self.label('pollok')
        if under:
            a('s_mov_b32 %s, 0' % sRv)
            a('s_atomic_add %s, s[24:25], %s glc' % (sRv, sE))
            under()
            a('s_waitcnt lgkmcnt(0)')
            a('s_bitcmp1_b32 %s, %d' % (sRv, 4+24*ex))
            a('s_cbranch_scc1 %s' % ok)
        a('s_mov_b32 %s, 0' % sCnt)
        a(lp+':')
        a('s_mov_b32 %s, 0' % sRv)
        a('s_atomic_add %s, s[24:25], %s glc' % (sRv, sE))
        a('s_add_u32 %s, %s, 1' % (sCnt, sCnt))
        a('s_cmp_gt_u32 %s, 0x%x' % (sCnt, SPIN_MAX))
        a('s_waitcnt lgkmcnt(0)')
        a('s_cbranch_scc1 %s' % ok)
        if self.o['slp']:
            a('s_bitcmp1_b32 %s, %d' % (sRv, 4+24*ex))
            a('s_cbranch_scc1 %s' % ok)
            a('s_sleep %s' % self.o['slp'])
            a('s_branch %s' % lp)
        else:
            a('s_bitcmp0_b32 %s, %d' % (sRv, 4+24*ex))
            a('s_cbranch_scc1 %s' % lp)
        a(ok+':')
        if self.o['pbar']: a('s_barrier')
    def code_pf(self, name):
        a = self.a
        l = self.label('pc')
        a('s_getpc_b64 s[28:29]')
        a(l+':')
        a('s_sub_u32 s28, s28, %s-%s' % (l, name))
        a('s_subb_u32 s29, s29, 0')
        a('v_lshlrev_b32 %s, 5, v0' % v(V.O+6))
        a('global_load_dword %s, %s, s[28:29]' % (v(V.dummy), v(V.O+6)))

    def code_spf(self, name):
        a = self.a
        l = self.label('pc')
        a('s_getpc_b64 s[28:29]')
        a(l+':')
        a('s_sub_u32 s28, s28, %s-%s' % (l, name))
        a('s_subb_u32 s29, s29, 0')
        a('s_lshr_b32 %s, s2, 4' % sA)
        a('s_lshl3_add_u32 %s, %s, %s' % (sA, sA, sW))
        a('s_lshl_b32 %s, %s, 7' % (sA, sA))
        a('s_load_dword s94, s[28:29], %s' % sA)

    def ifelse(self, reg, val, feq, fne, eq_first=False):
        a = self.a; l0, l1 = self.label('ie'), self.label('iend')
        if eq_first:
            a('s_cmp_lg_u32 %s, %d' % (reg, val)); a('s_cbranch_scc1 %s' % l0)
            feq(); a('s_branch %s' % l1); a(l0+':'); fne()
        else:
            a('s_cmp_eq_u32 %s, %d' % (reg, val)); a('s_cbranch_scc1 %s' % l0)
            fne(); a('s_branch %s' % l1); a(l0+':'); feq()
        a(l1+':')
    def touch(self, rnd):
        a = self.a
        a('s_mov_b64 exec, 0')
        for k in range(7):
            a('s_cmp_eq_u32 %s, %d' % (sW, k)); a('s_cbranch_scc1 stub_%d' % (8*rnd+k))
        a('s_branch stub_%d' % (8*rnd+7))
        a('ret_%d:' % rnd)
        a('s_mov_b64 exec, -1')

    def cond(self, reg, val, f):
        a = self.a; l = self.label('c')
        a('s_cmp_lg_u32 %s, %d' % (reg, val)); a('s_cbranch_scc1 %s' % l)
        f()
        a(l+':')

    def build_one(self):
        a = self.a; o = self.o
        name = NAME + '_kernel'
        self.kernel_head(name); end = self.label('end')
        self.prologue1(end)
        wA, wB = o['wA'], o['wB']
        def wat(pos, rows=(0, 1, 2, 3)):
            f = lambda: [self.w_dma1(i) for i in rows]
            if wA == pos and wB == pos: f()
            elif wA == pos: self.cond(sP, 0, f)
            elif wB == pos: self.cond(sP, 1, f)
        self.wat = wat
        bd = int(o['bdelay'])
        if o['touch'] == 'pre': self.touch(0)
        a('s_waitcnt lgkmcnt(0)')
        gz = o['gz']
        if gz: self.gz_issue()
        elif o['ib']: self.probe_issue()
        elif o['ib3']: self.p2_probe_issue(); self.zero3(); a('s_mov_b32 %s, 0' % sRd)
        elif o['ib2']: self.p2_probe_issue(); self.zero_flags()
        else: self.zero_flags()
        misc = lambda: (self.srds(), self.calc_k0(), self.w_prep(), self.gz_flag_addrs() if gz else self.flag_addrs3() if o['ib3'] else self.flag_addrs(), self.misc_ib2() if o['ib2'] else 0)
        if wB == 'first':
            def fb():
                misc(); self.w_dma()
                if bd == 0: self.p1_issue()
            self.ifelse(sP, 1, fb, self.p1_issue)
        elif bd: self.cond(sP, 0, self.p1_issue)
        else: self.p1_issue()
        if o['ib']: self.probe_eval(); self.zero_flags_ib()
        if gz: self.gz_publish(); a('s_mov_b32 s22, 256'); a('s_mov_b32 s23, 0x20000')
        if o['touch'] == 'post': self.touch(0)
        if o['touch']: self.cond(sT, 0, lambda: self.touch(1))
        if o['ib2']:
            self.p1_addrs(); self.p2_probe_eval(); self.gen_F16(); self.coop_init()
        else: self.p1_addrs(); self.gen_F16(); self.coop_init()
        if bd == 1: self.cond(sP, 1, self.p1_issue)
        self.gen_M2()
        if o['ib']: self.ex_addrs_ib(); self.set_ready_ib()
        elif gz: self.ex_addrs()
        elif o['ib3']: self.ex_addrs_ib2(); self.ready3()
        elif o['ib2']: self.ex_addrs_ib2(); self.set_ready()
        else: self.ex_addrs(); self.set_ready()
        X = [misc, self.coop_gen, lambda: self.gen_B(True, False), lambda: (self.p2_addrs(), self.w_addr())]
        nearly = max(0, bd-2)
        def early():
            for f in X[(1 if wB == 'first' else 0):nearly]: f()
            self.p1_issue()
        if bd >= 2: self.cond(sP, 1, early)
        def Xat(k):
            if k < nearly or (k == 0 and wB == 'first'): self.cond(sP, 0, X[k])
            else: X[k]()
        if gz: self.p1_compute(0, self.gz_read, None, lambda: (self.gz_check(), self.spec_early()))
        elif o['ib3']:
            self.vote_read()
            self.p1_compute(0, lambda: (self.vote_use(), self.spec_early()), None, self.p2_choice_use, self.p2_choice_read)
        elif o['ib2']: self.p1_compute(0, self.spec_early, None, self.p2_choice_use, self.p2_choice_read)
        else: self.p1_compute(0, self.spec_early)
        self.stamp()
        if not gz: self.ready_issue()
        Xat(0)
        n = 0
        Xat(1)
        self.coop_post()
        a('s_waitcnt vmcnt(%d) lgkmcnt(0)' % n)
        self.stamp()
        if not gz: self.ready_check()
        if o['ib']: self.flag_side()
        if o['ib3']: self.side3()
        self.set_flag(0)
        if o['ib']: self.flag_side2()
        if o['ib3']: self.side3b()
        def under1():
            self.w_sload()
            Xat(2); self.B_dup()
            Xat(3)
            self.w_special()
        self.poll(0, under1)
        self.stamp()
        if self.o.get('fine'):
            a('s_memrealtime s[%d:%d]' % (sTS+2*self.nts, sTS+2*self.nts+1)); self.nts += 1
            self.fstamp()
        if o['ib']: self.ld_addrs_ib()
        if o['ib2']: self.ld_addrs_ib2()
        self.p2_issue()
        if o['ib3']: self.side3c()
        elif o['ib2']: self.major_post()
        self.coop_wait(); self.coop_read()
        self.p2_addrs2()
        a('s_waitcnt vmcnt(4)')
        self.w_edge()
        self.p2_compute(True)
        self.stamp()
        if o['ib2'] and not o['ib3']: self.major_use2()
        self.gen_M3()
        a('s_waitcnt vmcnt(0)')
        self.stamp()
        self.set_flag(1)
        self.poll(1, self.p3_addrs)
        self.stamp()
        self.p3_issue()
        self.p3_soff()
        self.p3_compute()
        if o['ts']:
            self.stamp(); a('s_waitcnt vmcnt(0)'); self.stamp()
            if 'diag' in o:
                i = int(o['diag']); lp = self.label('dg')
                a('s_waitcnt lgkmcnt(0)')
                a('s_sub_u32 %s, s%d, s%d' % (sA, sTS+2*i, sTS))
                a('s_lshl_b32 %s, %s, 1' % (sA, sA))
                a('s_add_u32 %s, %s, 3000' % (sA, sA))
                a(lp+':')
                a('s_memrealtime s[28:29]')
                a('s_waitcnt lgkmcnt(0)')
                a('s_sub_u32 %s, s28, s%d' % (sB, sTS))
                a('s_cmp_lt_u32 %s, %s' % (sB, sA))
                a('s_cbranch_scc1 %s' % lp)
            else:
                if o['ib'] or o['gz'] or o['ib2']: self.nts += 1
                self.dump_stamps(0)
        a(end+':'); a('s_endpgm'); self.flush_tail()
        if o['touch']: self.insert_stubs(name)
        a.raw('.fill (%s+16384-.)/4, 4, 0xbf810000' % name)
        launch = '; @launch grid=(256,1,1) block=(512,1,1) lds=%d\n' % LDS_TOTAL
        return self.finish(launch, [name])

    def insert_stubs(self, name):
        import subprocess, re
        from asmlib import Ins
        a = self.a
        txt = '.amdgcn_target "amdgcn-amd-amdhsa--gfx950"\n.text\n' + a.text() + ''.join('stub_%d:\n' % k for k in range(16)) + 's_endpgm\nspec_tab:\n'
        open('pass1.s', 'w').write(txt)
        subprocess.check_call(['clang', '-x', 'assembler', '-target', 'amdgcn-amd-amdhsa', '-mcpu=gfx950', '-c', 'pass1.s', '-o', 'pass1.o'])
        dis = subprocess.check_output(['llvm-objdump', '-d', '--mcpu=gfx950', 'pass1.o']).decode()
        addrs = [int(m.group(1), 16) for m in re.finditer(r'// ([0-9A-F]{12}):', dis)]
        real = [i for i, x in enumerate(a.ins) if x.kind != 'none']
        assert len(addrs) == len(real) + 1, (len(addrs), len(real))
        size = {real[k]: addrs[k+1] - addrs[k] for k in range(len(real))}
        pos = ENTRY_OFF; nxt = ENTRY_OFF + 1024 - 256
        nxt = (nxt + 1023)//1024*1024
        out = []; k = 0; prev = None; ez = False
        for i, x in enumerate(a.ins):
            if i in size:
                glued = prev is not None and (prev.op == 's_getpc_b64' or 'rel32' in x.text)
                if prev is not None and prev.text.strip() == 's_mov_b64 exec, 0': ez = True
                if prev is not None and prev.text.strip() == 's_mov_b64 exec, -1': ez = False
                glued = glued or ez
                if pos >= nxt and k < 16 and not glued:
                    out.append(Ins('stub_%d:' % k)); out.append(Ins('s_cbranch_execz ret_%d' % (k >> 3)))
                    pos += 4; k += 1; nxt += 1024
                pos += size[i]; prev = x
            out.append(x)
        self.code_end = pos
        while k < 16:
            out.append(Ins('stub_%d:' % k)); out.append(Ins('s_branch ret_%d' % (k >> 3))); k += 1
        a.ins = out

    def finish(self, launch, names):
        hdr = '; GFNet spectral filter (two heads): 2-D FFT via bf16 MFMA DFT stages. Generated by dev/gen.py\n' + launch
        s = hdr + '.amdgcn_target "amdgcn-amd-amdhsa--gfx950"\n.text\n' + self.a.text()
        s += '.section .rodata,"a"\n' + '\n'.join(self.kd(n) for n in names) + '\n' + self.spec_table() + '\n'
        return s

if __name__ == '__main__':
    mode = sys.argv[1]; out = sys.argv[2]
    opt = {}
    for kv in sys.argv[3:]:
        k, x = kv.split('=')
        opt[k] = {'True': True, 'False': False}.get(x, x.replace('+', ' '))
    g = Gen(mode, **opt)
    s = g.build_three() if mode == 'three' else g.build_one()
    assert g.a.verify() == 0
    open(out, 'w').write(s)
    print('vgprs', NVGPR, 'lds', LDS_TOTAL, 'nops', g.a.nops, 'lines', len(g.a.ins))
```

```python
import sys, struct, math
import numpy as np
from asmlib import Asm

NAME = 'concat_heads__spectral_gfnet__spectral_gfnet__prompt'

def f2u(x): return struct.unpack('<I', struct.pack('<f', x))[0]
def lit(x): return '0x%08x' % f2u(x)
def bf16bits(x):
    u = f2u(float(x)); return ((u + 0x7FFF + ((u >> 16) & 1)) >> 16) & 0xFFFF
def sigma(m): return (m & 1) | ((m >> 1) & 1) << 3 | ((m >> 2) & 1) << 1 | ((m >> 3) & 1) << 2 | (m & 16)

S11 = 2.0**-11
SPIN_MAX = 0x4000
ENTRY_OFF = 0x300
SENT = 0x13572468
WS_FLAG_IB = 32 << 20
WS_FLAG2 = 33 << 20
PW = 7
sCh2 = 's100'
R0 = 0
R1 = 33024
WL = 66048
SCR = WL + 8*4*1056
SCR_B = SCR + 36*256
TABL = SCR_B + 8192
CNT = TABL + 16384
LDS_TOTAL = CNT + 64
WS_U1 = 0
WS_U2 = 8 << 20
WS_FLAG = 32 << 20
WS_TS = 72 << 20
WS_SIZE = 80 << 20

class V: pass
_n = [0]
def alloc(n, align=1):
    b = (_n[0] + align - 1)//align*align
    _n[0] = b + n
    return b
V.tid = alloc(1); V.lane = alloc(1)
for nm in 'g n Xoff Est X0w X0r0 X0r1 X1w X1r X2w X2r WP WM l16 dummy dummy2'.split(): setattr(V, nm, alloc(1))
V.Ooff, V.X3w0, V.X3w1, V.X3r = V.Xoff, V.X0w, V.X0r0, V.X0r1
V.T = alloc(10, 1)
V.EL = alloc(4); V.Eld = V.EL+3; V.Eld0 = V.EL+3
V.O = alloc(16, 4)
V.DA = alloc(32, 4)
V.DB = alloc(32, 4)
V.L = V.DB
V.F16 = alloc(8, 4)
V.M2 = alloc(16, 4)
V.F32 = alloc(32, 4)
V.TW = alloc(32, 4)
V.W = alloc(32, 4)
V.B = alloc(12, 4)
V.Bp = alloc(8, 4)
V.WF = alloc(4)
NVGPR = _n[0]
assert NVGPR <= 256, NVGPR
def v(i): return 'v%d' % i
def vr(i, n): return 'v[%d:%d]' % (i, i+n-1)

SX, SWR, SWI, SOUT, SDBG, SWS = 's[4:7]', 's[8:11]', 's[12:15]', 's[16:19]', 's[20:23]', 's[24:27]'
sP, sT, sW, sSB, sCB, sK0 = 's30', 's31', 's32', 's33', 's34', 's35'
sKP, sKM = 's36', 's37'
sA, sB, sC, sD, sE, sF = 's40', 's41', 's42', 's43', 's44', 's45'
sEst, sEld, sCnt, sSpec = 's46', 's47', 's48', 's49'
sO = ['s52', 's53', 's54', 's55']
sRd, sRv, sInc, sWL = 's38', 's39', 's50', 's51'
ZT = 16
sDP, sDM, sZ, sZp, sCh = 's96', 's97', 's98', 's99', 's95'
sTS = 56

class Gen:
    def __init__(self, mode='one', **opt):
        self.mode = mode
        self.o = dict(ldx='', ldw='', st1='sc1', st2='sc1', sto='sc1', ld1='sc1', ld2='sc1', ts=False, stagger=True, pf=False, spf=False, touch='pre', fst='sc1', fld='sc1', slp='', fsh='', pbar=False, shear=True, prio=True, wA='postX1', wB='postX1', bdelay='4', optx=False, numa='', fl='', ib=False, ib2=False, ib3=False, pnop='15', gz=False, force='', skew=True, fstride=12)
        self.o.update(opt)
        self.a = Asm()
        self.lab = 0
        self.nts = 0
        self.tail = []

    def tstride(self): return 65536 if (self.o['numa'] != '' or self.o['ib'] or self.o['ib2']) else 32768
    def ubase(self, ex): return (ex << 24) if self.o['ib2'] else (ex << 20) if self.o['ib'] else (WS_U2 if ex else WS_U1)
    def eld(self, q, ex=0): return v(V.T+2+q) if (self.o['ib2'] and ex == 0) else v(V.EL+q) if self.o['ib'] else v(V.Eld)
    def est(self): return sZp if self.o['ib2'] else sEst
    def label(self, p='L'):
        self.lab += 1
        return '%s_%d' % (p, self.lab)

    def stamp(self):
        if not self.o['ts'] or self.o.get('fine'): return
        self.a('s_memrealtime s[%d:%d]' % (sTS+2*self.nts, sTS+2*self.nts+1))
        self.nts += 1

    def fstamp(self):
        if not self.o.get('fine'): return
        self.a('s_memtime s[%d:%d]' % (sTS+2*self.nts, sTS+2*self.nts+1))
        self.nts += 1

    def dump_stamps(self, slot0=0):
        if not self.o['ts']: return
        a = self.a
        a('s_waitcnt lgkmcnt(0)')
        a('s_lshl_b32 %s, s2, 3' % sA); a('s_add_u32 %s, %s, %s' % (sA, sA, sW)); a('s_lshl_b32 %s, %s, 7' % (sA, sA))
        a('s_add_u32 %s, %s, 0x%x' % (sA, sA, WS_TS + slot0*4))
        a('s_mov_b64 exec, 1')
        a('v_mov_b32 %s, 0' % v(V.T+1))
        for i in range(self.nts):
            a('v_mov_b32 %s, s%d' % (v(V.T), sTS+2*i))
            a('buffer_store_dword %s, %s, %s, %s offen offset:%d' % (v(V.T), v(V.T+1), SWS, sA, 4*i))
            a('s_nop 1')
        a('s_mov_b64 exec, -1')
        self.nts = 0

    def prologue(self, end):
        a = self.a
        a('s_cmp_ge_u32 s2, 0x100')
        a('s_cbranch_scc1 %s' % end)
        self.stamp()
        a('s_bfe_u32 %s, s2, 0x10003' % sP)
        a('s_mul_i32 s3, %s, 24' % sP)
        a('s_add_u32 s28, s0, s3')
        a('s_addc_u32 s29, s1, 0')
        a('s_load_dwordx2 s[4:5], s[28:29], 0x0')
        a('s_load_dwordx2 s[8:9], s[28:29], 0x8')
        a('s_load_dwordx2 s[12:13], s[28:29], 0x10')
        a('s_load_dwordx2 s[16:17], s[0:1], 0x30')
        a('s_load_dwordx2 s[20:21], s[0:1], 0x38')
        a('s_load_dwordx2 s[24:25], s[0:1], 0x40')
        a('v_lshrrev_b32 %s, 6, v0' % v(V.T))
        a('v_and_b32 %s, 63, v0' % v(V.lane))
        a('v_readfirstlane_b32 %s, %s' % (sW, v(V.T)))
        a('s_and_b32 %s, s2, 7' % sA)
        a('s_xor_b32 %s, %s, 2' % (sA, sA))
        a('s_lshl_b32 %s, %s, 4' % (sT, sA))
        a('s_lshr_b32 %s, s2, 4' % sB)
        a('s_or_b32 %s, %s, %s' % (sT, sT, sB))
        a('s_lshl_b32 %s, %s, 1' % (sCB, sA))
        a('s_bfe_u32 %s, %s, 0x10001' % (sC, sB))
        a('s_or_b32 %s, %s, %s' % (sCB, sCB, sC))
        a('s_bfe_u32 %s, %s, 0x20002' % (sSB, sB))
        a('s_lshl_b32 %s, %s, 1' % (sSB, sSB))
        a('s_and_b32 %s, %s, 1' % (sC, sB))
        a('s_or_b32 %s, %s, %s' % (sSB, sSB, sC))
        a('s_mov_b32 s6, 0x400000'); a('s_mov_b32 s7, 0x20000')
        a('s_mov_b32 s10, 2101248'); a('s_mov_b32 s11, 0x20000')
        a('s_mov_b32 s14, 2101248'); a('s_mov_b32 s15, 0x20000')
        a('s_mov_b32 s18, 0x800000'); a('s_mov_b32 s19, 0x20000')
        a('s_mov_b32 s22, 256'); a('s_mov_b32 s23, 0x20000')
        a('s_mov_b32 s26, 0x%x' % WS_SIZE); a('s_mov_b32 s27, 0x20000')
        a('v_lshrrev_b32 %s, 4, %s' % (v(V.g), v(V.lane)))
        a('v_and_b32 %s, 15, %s' % (v(V.n), v(V.lane)))
        a('v_lshlrev_b32 %s, 4, %s' % (v(V.l16), v(V.lane)))

    def prologue1(self, end):
        a = self.a; T = V.T
        a('s_cmp_ge_u32 s2, 0x100')
        a('s_cbranch_scc1 %s' % end)
        a('s_bfe_u32 %s, s2, 0x%x' % (sP, 0x10002 if self.o['optx'] else 0x10003))
        a('s_mul_i32 s3, %s, 24' % sP)
        a('s_load_dwordx2 s[4:5], s[0:1], s3')
        a('s_load_dwordx2 s[24:25], s[0:1], 0x40')
        a('s_load_dwordx2 s[8:9], s[0:1], s3 offset:8')
        a('s_load_dwordx2 s[12:13], s[0:1], s3 offset:16')
        a('s_load_dwordx2 s[16:17], s[0:1], 0x30')
        a('s_load_dwordx2 s[20:21], s[0:1], 0x38')
        self.stamp()
        a('v_lshrrev_b32 %s, 6, v0' % v(T))
        a('v_and_b32 %s, 63, v0' % v(V.lane))
        a('v_readfirstlane_b32 %s, %s' % (sW, v(T)))
        if self.o['optx']:
            a('s_and_b32 %s, s2, 3' % sA)
            a('s_bfe_u32 %s, s2, 0x10003' % sB)
            a('s_lshl1_add_u32 %s, %s, %s' % (sA, sA, sB))
        else: a('s_and_b32 %s, s2, 7' % sA)
        a('s_lshr_b32 %s, s2, 4' % sB)
        a('s_lshl4_add_u32 %s, %s, %s' % (sT, sA, sB))
        a('s_bfe_u32 %s, %s, 0x10001' % (sC, sB))
        a('s_lshl1_add_u32 %s, %s, %s' % (sCB, sA, sC))
        a('s_lshr_b32 %s, %s, 2' % (sSB, sB))
        a('s_and_b32 %s, %s, 1' % (sC, sB))
        a('s_lshl1_add_u32 %s, %s, %s' % (sSB, sSB, sC))
        a('s_mov_b32 s6, 0x400000'); a('s_mov_b32 s7, 0x20000')
        a('v_lshrrev_b32 %s, 4, %s' % (v(V.g), v(V.lane)))
        a('v_lshlrev_b32 %s, 4, %s' % (v(V.l16), v(V.lane)))
        a('v_and_b32 %s, 8, v0' % v(T))
        a('v_lshlrev_b32 %s, 11, %s' % (v(T), v(T)))
        a('v_lshl_add_u32 %s, %s, 20, %s' % (v(T), v(V.g), v(T)))
        a('v_and_b32 %s, 0x70, %s' % (v(T+1), v(V.l16)))
        a('v_add_u32 %s, %s, %s' % (v(V.Xoff), v(T), v(T+1)))
        a('s_lshl4_add_u32 %s, %s, %s' % (sA, sW, sSB))
        a('s_lshl4_add_u32 %s, %s, %s' % (sA, sA, sCB))
        a('s_lshl_b32 %s, %s, 7' % (sO[0], sA))
        for r in range(1, 4): a('s_add_u32 %s, %s, 0x%x' % (sO[r], sO[0], r*262144))
        a('v_and_b32 %s, 15, %s' % (v(V.n), v(V.lane)))
        a('s_mov_b32 s26, 0x%x' % WS_SIZE); a('s_mov_b32 s27, 0x20000')
        a('s_lshl_b32 %s, %s, 7' % (sRd, sP))
    def srds(self):
        a = self.a
        a('s_mov_b32 s10, 2101248'); a('s_mov_b32 s11, 0x20000')
        a('s_mov_b32 s14, 2101248'); a('s_mov_b32 s15, 0x20000')
        a('s_mov_b32 s18, 0x800000'); a('s_mov_b32 s19, 0x20000')
        a('s_mov_b32 s22, 256'); a('s_mov_b32 s23, 0x20000')

    def probe_issue(self):
        a = self.a
        a('s_lshl3_add_u32 %s, %s, %s' % (sEst, sP, sW)); a('s_lshl_b32 %s, %s, 21' % (sEst, sEst))
        a('s_and_b32 %s, %s, 0x60' % (sA, sT)); a('s_add_u32 %s, %s, %s' % (sA, sA, sT)); a('s_lshl_b32 %s, %s, 8' % (sA, sA))
        a('s_add_u32 %s, %s, %s' % (sA, sA, sEst))
        for i in range(8): a('s_mov_b32 s%d, 0x%x' % (84+i, SENT))
        for k, side in ((0, 0), (0, 1), (1, 1), (1, 0), (2, 1), (2, 0), (3, 0), (3, 1)):
            a('s_load_dword s%d, s[24:25], %s offset:0x%x glc' % (84+4*side+k, sA, k*65536+side*8192))
    def probe_eval(self):
        a = self.a
        a('s_mov_b32 %s, 0' % sA); a('s_mov_b32 %s, 0' % sB)
        a('s_waitcnt lgkmcnt(4)')
        for k in range(4):
            a('s_cmp_lg_u32 s%d, 0x%x' % (84+k, SENT)); a('s_addc_u32 %s, %s, 0' % (sA, sA))
            a('s_cmp_lg_u32 s%d, 0x%x' % (88+k, SENT)); a('s_addc_u32 %s, %s, 0' % (sB, sB))
        a('s_cmp_gt_u32 %s, %s' % (sB, sA))
        a('s_cselect_b32 %s, 1, 0' % sCh)
        if self.o['force'] != '':
            a('s_and_b32 %s, %s, 1' % (sC, sW)); a('s_xor_b32 %s, %s, %s' % (sC, sC, sP)); a('s_xor_b32 %s, %s, %s' % (sCh, sC, self.o['force']))
        if self.o['ts']:
            a('s_lshl4_add_u32 s%d, %s, %s' % (sTS+24, sA, sB))
    def ex_addrs_ib(self):
        a = self.a; T = V.T
        a('s_lshl_b32 %s, %s, 4' % (sB, sW)); a('s_xor_b32 %s, %s, %s' % (sB, sB, sT)); a('s_lshl_b32 %s, %s, 8' % (sB, sB))
        a('v_lshlrev_b32 %s, 4, %s' % (v(T), v(V.n)))
        a('v_lshl_add_u32 %s, %s, 10, %s' % (v(T), v(V.g), v(T)))
        a('v_xor_b32 %s, %s, %s' % (v(T), sB, v(T)))
        a('v_and_b32 %s, 0x6000, %s' % (v(T+1), v(T)))
        a('v_add_u32 %s, %s, %s' % (v(T), v(T), v(T+1)))
        a('v_lshl_add_u32 %s, %s, 18, %s' % (v(V.Est), v(V.g), v(T)))
        a('v_and_b32 %s, 0xdcff, %s' % (v(V.Eld), v(T)))
        a('s_lshl_b32 %s, %s, 13' % (sA, sCh)); a('s_add_u32 %s, %s, %s' % (sEst, sEst, sA))
        a('s_lshr_b32 %s, %s, 4' % (sA, sT)); a('s_lshl3_add_u32 %s, %s, %s' % (sA, sP, sA)); a('s_lshl_b32 %s, %s, 21' % (sA, sA))
        a('s_and_b32 %s, %s, 15' % (sEld, sT)); a('s_lshl_b32 %s, %s, 16' % (sEld, sEld)); a('s_add_u32 %s, %s, %s' % (sEld, sEld, sA))
    def ld_addrs_ib(self):
        a = self.a; T = V.T
        a('v_lshrrev_b32 %s, %s, %s' % (v(T), v(V.dummy), sRv))
        for q in range(4):
            a('v_bfe_u32 %s, %s, %d, 1' % (v(T+1), v(T), q))
            a('v_lshl_add_u32 %s, %s, 13, %s' % (v(V.EL+q), v(T+1), v(V.Eld)))

    def ex_addrs(self):
        a = self.a
        if self.o['skew']:
            T = V.T
            a('s_lshl_b32 %s, %s, 4' % (sB, sW)); a('s_xor_b32 %s, %s, %s' % (sB, sB, sT)); a('s_lshl_b32 %s, %s, 8' % (sB, sB))
            a('v_lshlrev_b32 %s, 4, %s' % (v(T), v(V.n)))
            a('v_lshl_add_u32 %s, %s, 10, %s' % (v(T), v(V.g), v(T)))
            a('v_xor_b32 %s, %s, %s' % (v(T), sB, v(T)))
            if self.o['numa'] != '':
                pol = int(self.o['numa'][1]); mode = self.o['numa'][0]
                if mode == 'p':
                    a('v_and_b32 %s, 0x6000, %s' % (v(T+1), v(T)))
                    a('v_add_u32 %s, %s, %s' % (v(T), v(T), v(T+1)))
                    a('v_lshl_add_u32 %s, %s, 18, %s' % (v(V.Est), v(V.g), v(T)))
                    a('v_and_b32 %s, 0xdcff, %s' % (v(V.Eld), v(T)))
                    a('s_lshr_b32 %s, %s, 1' % (sA, sW)); a('s_lshr_b32 %s, %s, 6' % (sD, sT)); a('s_xor_b32 %s, %s, %s' % (sA, sA, sD))
                    a('s_lshr_b32 %s, %s, 5' % (sC, sT)); a('s_lshr_b32 %s, %s, 2' % (sD, sW)); a('s_xor_b32 %s, %s, %s' % (sC, sC, sD))
                    if pol: a('s_xor_b32 %s, %s, 1' % (sA, sA)); a('s_xor_b32 %s, %s, 1' % (sC, sC))
                    a('s_and_b32 %s, %s, 1' % (sA, sA)); a('s_and_b32 %s, %s, 1' % (sC, sC))
                    a('s_lshl_b32 %s, %s, 13' % (sA, sA)); a('s_lshl_b32 %s, %s, 13' % (sC, sC))
                    a('s_lshl_b32 %s, %s, 25' % (sD, sP)); a('s_add_u32 %s, %s, %s' % (sA, sA, sD)); a('s_add_u32 %s, %s, %s' % (sC, sC, sD))
                    a('s_lshl_b32 %s, %s, 20' % (sEst, sW)); a('s_add_u32 %s, %s, %s' % (sEst, sEst, sA))
                    a('s_lshl_b32 %s, %s, 16' % (sEld, sT)); a('s_add_u32 %s, %s, %s' % (sEld, sEld, sC))
                    return
                a('v_and_b32 %s, 0x6000, %s' % (v(T+1), v(T)))
                a('v_add_u32 %s, %s, %s' % (v(T), v(T), v(T+1)))
                a('v_lshl_add_u32 %s, %s, 18, %s' % (v(V.Est), v(V.g), v(T)))
                a('v_and_b32 %s, 0xdcff, %s' % (v(V.Eld), v(T)))
                if mode == 'x':
                    a('s_bfe_u32 %s, %s, 0x10001' % (sA, sW)); a('s_xor_b32 %s, %s, %s' % (sA, sA, sP))
                    a('s_bfe_u32 %s, %s, 0x10005' % (sC, sT)); a('s_xor_b32 %s, %s, %s' % (sC, sC, sP))
                    if pol: a('s_xor_b32 %s, %s, 1' % (sA, sA)); a('s_xor_b32 %s, %s, 1' % (sC, sC))
                    a('s_lshl_b32 %s, %s, 13' % (sA, sA)); a('s_lshl_b32 %s, %s, 13' % (sC, sC))
                    a('s_lshl_b32 %s, %s, 20' % (sEst, sW)); a('s_add_u32 %s, %s, %s' % (sEst, sEst, sA))
                    a('s_lshl_b32 %s, %s, 16' % (sEld, sT)); a('s_add_u32 %s, %s, %s' % (sEld, sEld, sC))
                else:
                    a('s_lshr_b32 %s, %s, 1' % (sA, sW)); a('s_lshr_b32 %s, %s, 2' % (sD, sW)); a('s_xor_b32 %s, %s, %s' % (sA, sA, sD))
                    a('s_lshr_b32 %s, %s, 5' % (sC, sT)); a('s_lshr_b32 %s, %s, 6' % (sD, sT)); a('s_xor_b32 %s, %s, %s' % (sC, sC, sD))
                    if pol: a('s_xor_b32 %s, %s, 1' % (sA, sA)); a('s_xor_b32 %s, %s, 1' % (sC, sC))
                    a('s_and_b32 %s, %s, 1' % (sA, sA)); a('s_and_b32 %s, %s, 1' % (sC, sC))
                    a('s_lshl_b32 %s, %s, 13' % (sA, sA)); a('s_lshl_b32 %s, %s, 13' % (sC, sC))
                    a('s_lshl_b32 %s, %s, 22' % (sD, sP)); a('s_add_u32 %s, %s, %s' % (sA, sA, sD)); a('s_add_u32 %s, %s, %s' % (sC, sC, sD))
                    a('s_and_b32 %s, %s, 3' % (sEst, sW)); a('s_lshl_b32 %s, %s, 20' % (sEst, sEst)); a('s_add_u32 %s, %s, %s' % (sEst, sEst, sA))
                    a('s_and_b32 %s, %s, 63' % (sEld, sT)); a('s_lshl_b32 %s, %s, 16' % (sEld, sEld)); a('s_add_u32 %s, %s, %s' % (sEld, sEld, sC))
                return
            a('v_lshl_add_u32 %s, %s, 17, %s' % (v(V.Est), v(V.g), v(T)))
            a('v_and_b32 %s, 0x7cff, %s' % (v(V.Eld), v(T)))
            a('s_lshl_b32 %s, %s, 22' % (sA, sP))
            a('s_lshl_b32 %s, %s, 19' % (sEst, sW)); a('s_add_u32 %s, %s, %s' % (sEst, sEst, sA))
            a('s_lshl_b32 %s, %s, 15' % (sEld, sT)); a('s_add_u32 %s, %s, %s' % (sEld, sEld, sA))
            return
        a('v_lshlrev_b32 %s, 4, %s' % (v(V.T), v(V.n)))
        a('v_lshl_add_u32 %s, %s, 17, %s' % (v(V.Est), v(V.g), v(V.T)))
        a('v_lshl_add_u32 %s, %s, 10, %s' % (v(V.Eld), v(V.g), v(V.T)))
        a('s_lshl_b32 %s, %s, 22' % (sA, sP))
        a('s_lshl_b32 %s, %s, 19' % (sEst, sW)); a('s_add_u32 %s, %s, %s' % (sEst, sEst, sA))
        a('s_lshl_b32 %s, %s, 8' % (sB, sT)); a('s_add_u32 %s, %s, %s' % (sEst, sEst, sB))
        a('s_lshl_b32 %s, %s, 15' % (sEld, sT)); a('s_add_u32 %s, %s, %s' % (sEld, sEld, sA))
        a('s_lshl_b32 %s, %s, 12' % (sB, sW)); a('s_add_u32 %s, %s, %s' % (sEld, sEld, sB))

    def trig(self, x, re, im, conj_re=None, conj_im=None):
        a = self.a; c, s = V.T+8, V.T+9
        a('v_cos_f32 %s, %s' % (v(c), v(x)))
        a('v_sin_f32 %s, %s' % (v(s), v(x)))
        a('v_cvt_pk_bf16_f32 %s, %s, %s' % (v(re), v(c), v(s)))
        a('v_cvt_pk_bf16_f32 %s, -%s, %s' % (v(im), v(s), v(c)))
        if conj_re is not None:
            a('v_cvt_pk_bf16_f32 %s, %s, -%s' % (v(conj_re), v(c), v(s)))
            a('v_cvt_pk_bf16_f32 %s, %s, %s' % (v(conj_im), v(s), v(c)))

    def gen_F16(self):
        a = self.a; T = V.T
        a('v_cvt_f32_u32 %s, %s' % (v(T), v(V.n)))
        a('v_mul_f32 %s, %s, %s' % (v(T), lit(1/16), v(T)))
        a('v_cvt_f32_u32 %s, %s' % (v(T+1), v(V.g)))
        a('v_mul_f32 %s, 4.0, %s' % (v(T+1), v(T+1)))
        a('v_mul_f32 %s, %s, %s' % (v(T+2), v(T), v(T+1)))
        for r in range(4):
            self.trig(T+2, V.F16+r, V.F16+4+r)
            if r < 3: a('v_add_f32 %s, %s, %s' % (v(T+2), v(T+2), v(T)))

    def gen_M2(self):
        a = self.a; T = V.T
        a('v_cvt_f32_u32 %s, %s' % (v(T+1), v(V.g)))
        a('v_mul_f32 %s, 4.0, %s' % (v(T+1), v(T+1)))
        def normal():
            a('v_lshl_add_u32 %s, %s, 4, %s' % (v(T), v(V.n), sW))
            a('v_cvt_f32_u32 %s, %s' % (v(T), v(T)))
            a('v_mul_f32 %s, %s, %s' % (v(T), lit(1/256), v(T)))
            a('v_mul_f32 %s, %s, %s' % (v(T+2), v(T), v(T+1)))
            for r in range(4):
                self.trig(T+2, V.M2+r, V.M2+4+r, V.M2+8+r, V.M2+12+r)
                if r < 3: a('v_add_f32 %s, %s, %s' % (v(T+2), v(T+2), v(T)))
        def w0():
            a('v_lshrrev_b32 %s, 1, %s' % (v(T), v(V.n)))
            a('v_cvt_f32_u32 %s, %s' % (v(T), v(T)))
            a('v_lshlrev_b32 %s, 31, %s' % (v(T+3), v(V.n)))
            a('v_add_f32 %s, 0.5, %s' % (v(T+4), v(T)))
            a('v_xor_b32 %s, %s, %s' % (v(T+3), lit(1/16), v(T+3)))
            a('v_mul_f32 %s, %s, %s' % (v(T), v(T), v(T+3)))
            a('v_mul_f32 %s, %s, %s' % (v(T+4), v(T+4), v(T+3)))
            a('v_cmp_ne_u32 vcc, 1, %s' % v(V.n))
            a('v_cndmask_b32 %s, 0.5, %s, vcc' % (v(T), v(T)))
            for ts in range(2):
                d = T+4*ts
                a('v_mul_f32 %s, %s, %s' % (v(T+2), v(d), v(T+1)))
                for r in range(4):
                    self.trig(T+2, V.M2+8*ts+r, V.M2+8*ts+4+r)
                    if r < 3: a('v_add_f32 %s, %s, %s' % (v(T+2), v(T+2), v(d)))
        self.ifelse(sW, 0, w0, normal)

    def gen_M3(self):
        a = self.a; T = V.T
        a('v_cvt_f32_u32 %s, %s' % (v(T), v(V.n)))
        a('v_mul_f32 %s, %s, %s' % (v(T+1), lit(1/256), v(T)))
        a('v_mul_f32 %s, %s, %s' % (v(T), lit(1/16), v(T)))
        def normal():
            a('v_lshl_add_u32 %s, %s, 6, %s' % (v(T+2), v(V.g), sW))
            a('v_cvt_f32_u32 %s, %s' % (v(T+2), v(T+2)))
            a('v_mul_f32 %s, %s, %s' % (v(T+2), v(T+2), v(T+1)))
            for r in range(4):
                self.trig(T+2, V.M2+r, V.M2+4+r, V.M2+8+r, V.M2+12+r)
                if r < 3: a('v_add_f32 %s, %s, %s' % (v(T+2), v(T+2), v(T)))
        def w0():
            for ts in range(2):
                a('v_lshlrev_b32 %s, 5, %s' % (v(T+2), v(V.g)))
                if ts: a('v_add_u32 %s, 8, %s' % (v(T+2), v(T+2)))
                a('v_cvt_f32_u32 %s, %s' % (v(T+2), v(T+2)))
                a('v_mul_f32 %s, %s, %s' % (v(T+2), v(T+2), v(T+1)))
                for eb in range(2):
                    b = V.M2+8*ts
                    self.trig(T+2, b+2*eb, b+4+2*eb, b+2*eb+1, b+4+2*eb+1)
                    if eb == 0: a('v_add_f32 %s, %s, %s' % (v(T+2), v(T+2), v(T)))
            a('s_mov_b64 exec, 0xffff')
            a('v_lshlrev_b32 %s, 15, %s' % (v(T+2), v(V.n)))
            a('v_and_b32 %s, 0x8000, %s' % (v(T+2), v(T+2)))
            a('v_or_b32 %s, 0x3f80, %s' % (v(V.M2+1), v(T+2)))
            a('v_lshlrev_b32 %s, 16, %s' % (v(V.M2+5), v(V.M2+1)))
            a('s_mov_b64 exec, -1')
        self.ifelse(sW, 0, w0, normal)

    def sigma_lane(self, dst):
        a = self.a; T = V.T
        a('v_and_b32 %s, 17, %s' % (v(dst), v(V.lane)))
        a('v_bfe_u32 %s, %s, 2, 2' % (v(T+7), v(V.lane)))
        a('v_lshl_add_u32 %s, %s, 1, %s' % (v(dst), v(T+7), v(dst)))
        a('v_bfe_u32 %s, %s, 1, 1' % (v(T+7), v(V.lane)))
        a('v_lshl_add_u32 %s, %s, 3, %s' % (v(dst), v(T+7), v(dst)))

    def gen_F32TW(self):
        a = self.a; T = V.T
        self.sigma_lane(T)
        a('v_cvt_f32_u32 %s, %s' % (v(T), v(T)))
        a('v_mul_f32 %s, %s, %s' % (v(T), lit(1/1024), v(T)))
        a('v_lshrrev_b32 %s, 5, %s' % (v(T+1), v(V.lane)))
        a('v_cvt_f32_u32 %s, %s' % (v(T+1), v(T+1)))
        a('v_add_f32 %s, %s, %s' % (v(T+1), v(T+1), v(T+1)))
        a('v_mul_f32 %s, %s, %s' % (v(T+1), v(T+1), v(T)))
        for rho in range(16):
            k = sigma(8*(rho >> 2) + (rho & 3))
            a('v_fmamk_f32 %s, %s, %s, %s' % (v(T+2), v(T), lit(float(k)), v(T+1)))
            a('v_mul_f32 %s, %s, %s' % (v(T+3), lit(32.0), v(T+2)))
            a('v_cos_f32 %s, %s' % (v(V.TW+rho), v(T+2)))
            a('v_sin_f32 %s, %s' % (v(V.TW+16+rho), v(T+2)))
            self.trig(T+3, V.F32+rho, V.F32+16+rho)

    def coop_gen(self):
        a = self.a; T = V.T; X = V.DA
        self.sigma_lane(T)
        a('v_cvt_f32_u32 %s, %s' % (v(T), v(T)))
        a('v_mul_f32 %s, %s, %s' % (v(T), lit(1/1024), v(T)))
        a('s_and_b32 %s, %s, 1' % (sA, sW)); a('s_lshl_b32 %s, %s, 3' % (sA, sA))
        a('s_and_b32 %s, %s, 2' % (sB, sW)); a('s_lshl_b32 %s, %s, 1' % (sB, sB)); a('s_add_u32 %s, %s, %s' % (sA, sA, sB))
        a('s_and_b32 %s, %s, 4' % (sB, sW)); a('s_lshl_b32 %s, %s, 2' % (sB, sB)); a('s_add_u32 %s, %s, %s' % (sA, sA, sB))
        a('v_lshrrev_b32 %s, 5, %s' % (v(T+1), v(V.lane)))
        a('v_lshl_add_u32 %s, %s, 1, %s' % (v(T+1), v(T+1), sA))
        a('v_cvt_f32_u32 %s, %s' % (v(T+1), v(T+1)))
        a('v_mul_f32 %s, %s, %s' % (v(T+2), v(T+1), v(T)))
        for e in range(2):
            a('v_mul_f32 %s, %s, %s' % (v(T+3), lit(32.0), v(T+2)))
            if self.o['shear']:
                a('v_mul_f32 %s, 0.5, %s' % (v(T+4), v(T+2)))
                a('v_cos_f32 %s, %s' % (v(T+5), v(T+4)))
                a('v_sin_f32 %s, %s' % (v(T+6), v(T+4)))
                a('v_rcp_f32 %s, %s' % (v(T+5), v(T+5)))
                a('v_mul_f32 %s, %s, %s' % (v(X+4+e), v(T+6), v(T+5)))
                a('v_fma_f32 %s, %s, %s, 1.0' % (v(T+5), v(X+4+e), v(X+4+e)))
                a('v_rcp_f32 %s, %s' % (v(T+6), v(T+5)))
                a('v_fma_f32 %s, -%s, %s, 1.0' % (v(T+5), v(T+5), v(T+6)))
                a('v_fmac_f32 %s, %s, %s' % (v(T+6), v(T+5), v(T+6)))
                a('v_mul_f32 %s, -2.0, %s' % (v(T+6), v(T+6)))
                a('v_mul_f32 %s, %s, %s' % (v(X+6+e), v(T+6), v(X+4+e)))
            else:
                a('v_cos_f32 %s, %s' % (v(X+4+e), v(T+2)))
                a('v_sin_f32 %s, %s' % (v(X+6+e), v(T+2)))
            self.trig(T+3, X+e, X+2+e)
            if e == 0: a('v_add_f32 %s, %s, %s' % (v(T+2), v(T+2), v(T)))
        a('s_lshr_b32 %s, %s, 1' % (sA, sW)); a('s_lshl_b32 %s, %s, 10' % (sA, sA))
        a('s_and_b32 %s, %s, 1' % (sB, sW)); a('s_lshl_b32 %s, %s, 3' % (sB, sB)); a('s_add_u32 %s, %s, %s' % (sA, sA, sB))
        a('s_add_u32 %s, %s, %d' % (sA, sA, TABL))
        a('v_add_u32 %s, %s, %s' % (v(T), sA, v(V.l16)))
        for k in range(4):
            a('ds_write_b64 %s, %s offset:%d' % (v(T), vr(X+2*k, 2), 4096*k))
    def coop_init(self):
        a = self.a; T = V.T
        a('v_mov_b32 %s, %d' % (v(V.dummy2), CNT)); a('v_mov_b32 %s, 0' % v(T))
        a('ds_write_b32 %s, %s' % (v(V.dummy2), v(T)))
    def coop_post(self):
        a = self.a; T = V.T
        a('v_mov_b32 %s, 1' % v(T+1))
        a('ds_add_u32 %s, %s' % (v(V.dummy2), v(T+1)))
    def coop_wait(self):
        a = self.a; T = V.T; lp, ok = self.label('cw'), self.label('cwok')
        a('s_mov_b32 %s, 0' % sCnt)
        a(lp+':')
        a('ds_read_b32 %s, %s' % (v(T), v(V.dummy2)))
        a('s_add_u32 %s, %s, 1' % (sCnt, sCnt))
        a('s_cmp_gt_u32 %s, 0x%x' % (sCnt, SPIN_MAX*8))
        a('s_waitcnt lgkmcnt(0)')
        a('s_cbranch_scc1 %s' % ok)
        a('v_cmp_gt_u32 vcc, 0x200, %s' % v(T))
        a('s_cbranch_vccnz %s' % lp)
        a(ok+':')
    def coop_read(self):
        a = self.a; T = V.T
        assert V.TW == V.F32+32
        a('v_add_u32 %s, %d, %s' % (v(T), TABL, v(V.l16)))
        for k in range(16):
            a('ds_read_b128 %s, %s offset:%d' % (vr(V.F32+4*k, 4), v(T), 1024*k))

    def calc_k0(self):
        a = self.a
        a('s_lshr_b32 %s, %s, 4' % (sA, sT))
        a('s_and_b32 %s, %s, 15' % (sB, sT))
        a('s_lshl_b32 %s, %s, 4' % (sK0, sB))
        a('s_add_u32 %s, %s, %s' % (sK0, sK0, sA))
        a('s_lshr_b32 %s, %s, 2' % (sC, sB)); a('s_lshl_b32 %s, %s, 5' % (sC, sC))
        a('s_and_b32 %s, %s, 1' % (sD, sB)); a('s_lshl_b32 %s, %s, 4' % (sD, sD)); a('s_add_u32 %s, %s, %s' % (sC, sC, sD))
        a('s_and_b32 %s, %s, 2' % (sD, sB)); a('s_lshl_b32 %s, %s, 2' % (sD, sD)); a('s_add_u32 %s, %s, %s' % (sC, sC, sD))
        a('s_cmp_eq_u32 %s, 0' % sA)
        a('s_cselect_b32 %s, %s, %s' % (sK0, sC, sK0))
        a('s_cmp_eq_u32 %s, 0' % sT)
        a('s_cselect_b32 %s, 7, 8' % sA)
        a('s_lshl_b32 %s, %s, %s' % (sKP, sW, sA))
        a('s_add_u32 %s, %s, %s' % (sKP, sKP, sK0))
        a('s_sub_u32 %s, 0x800, %s' % (sKM, sKP))
        a('s_cmp_eq_u32 %s, 0' % sKP)
        a('s_cselect_b32 %s, 0x400, %s' % (sKM, sKM))
        a('s_cselect_b32 %s, 1, 0' % sSpec)
        a('s_mul_i32 %s, %s, 1026' % (sKP, sKP))
        a('s_mul_i32 %s, %s, 1026' % (sKM, sKM))

    def wq(self, rho): return (rho & 1) + 8*((rho >> 1) & 1) + 4*((rho >> 2) & 1)
    def w_prep(self):
        a = self.a
        a('s_mul_i32 %s, %s, 4224' % (sWL, sW))
        a('s_add_u32 %s, %s, %d' % (sWL, sWL, WL))
        a('s_and_b32 %s, %s, 2' % (sA, sKP))
        a('s_add_u32 %s, %s, %s' % (sDP, sKP, sA)); a('s_add_u32 %s, %s, %s' % (sDM, sKM, sA))
    def w_dma1(self, i):
        a = self.a
        srd, so = [(SWR, sDP), (SWI, sDP), (SWR, sDM), (SWI, sDM)][i]
        a('s_add_u32 m0, %s, %d' % (sWL, 1056*i))
        a('buffer_load_dwordx4 %s, %s, %s offen %s lds' % (v(V.l16), srd, so, self.o['ldw']))
    def w_dma(self):
        for i in range(4): self.w_dma1(i)
    def w_sload(self):
        a = self.a; T = V.T
        a('s_mov_b64 exec, 15')
        a('v_mov_b32 %s, %s' % (v(T), sKP)); a('v_mov_b32 %s, %s' % (v(T+1), sKM))
        a('s_mov_b64 vcc, 10')
        a('v_cndmask_b32 %s, %s, %s, vcc' % (v(T), v(T), v(T+1)))
        a('v_and_b32 %s, 2, %s' % (v(T+1), v(V.lane)))
        a('v_lshl_add_u32 %s, %s, 9, %s' % (v(T), v(T+1), v(T)))
        a('buffer_load_short_d16_hi %s, %s, %s, 0 offen' % (v(V.WF), v(T), SWR))
        a('buffer_load_short_d16_hi %s, %s, %s, 0 offen' % (v(V.WF+1), v(T), SWI))
        a('s_mov_b64 exec, -1')
    def w_edge_rl(self):
        a = self.a
        for l in range(4):
            for im in range(2):
                a('v_readlane_b32 s%d, %s, %d' % (84+2*l+im, v(V.WF+im), l))
    def w_edge(self):
        a = self.a; T = V.T
        self.w_edge_rl()
        for i, (x, y, op) in enumerate(((84, 86, 'add'), (85, 87, 'sub'), (90, 88, 'add'), (91, 89, 'sub'))):
            a('v_mov_b32 %s, s%d' % (v(T), y))
            a('v_%s_f32 %s, s%d, %s' % (op, v(V.WF+i), x, v(T)))
            a('v_mul_f32 %s, 0.5, %s' % (v(V.WF+i), v(V.WF+i)))
        a('s_mov_b64 s[92:93], 1')
    def w_addr(self):
        a = self.a; T = V.T
        self.sigma_lane(T)
        a('v_lshrrev_b32 %s, 5, %s' % (v(T+1), v(V.lane)))
        a('v_lshlrev_b32 %s, 7, %s' % (v(T+1), v(T+1)))
        a('v_lshl_add_u32 %s, %s, 1, %s' % (v(T), v(T), v(T+1)))
        a('s_and_b32 %s, %s, 2' % (sD, sKP)); a('s_sub_u32 %s, %s, %s' % (sD, sWL, sD))
        a('v_add_u32 %s, %s, %s' % (v(V.WP), sD, v(T)))
        a('s_add_u32 %s, %s, %d' % (sD, sD, 1024-832))
        a('v_sub_u32 %s, %s, %s' % (v(V.WM), sD, v(T)))
    def w_read(self, rho, dst=None, swap=False):
        a = self.a; dst = V.W if dst is None else dst
        for im in range(2):
            if rho < 8: ad, off = V.WP, 64*self.wq(rho) + (2112 if swap else 0)
            else: ad, off = V.WM, 64*(13-self.wq(rho)) + (0 if swap else 2112)
            a('ds_read_u16_d16_hi %s, %s offset:%d' % (v(dst+16*im+rho), v(ad), off+1056*im))
    def w_fix(self, half):
        a = self.a
        for im in range(2):
            r = V.W+8*half+16*im
            a('v_cndmask_b32 %s, %s, %s, s[92:93]' % (v(r), v(r), v(V.WF+2*half+im)))
    def w_regs_early(self):
        a = self.a
        for rho in range(16): self.w_read(rho)
        a('s_waitcnt lgkmcnt(0)')
        self.w_fix(0); self.w_fix(1)
    def w_special(self):
        a = self.a; T = V.T
        l0, l1 = self.label('Wspec'), self.label('Wend')
        a('s_cmp_eq_u32 %s, 1' % sSpec)
        a('s_cbranch_scc1 %s' % l0)
        a(l1+':')
        def tail():
            X = V.DA
            a(l0+':')
            for rho in range(16): self.w_read(rho)
            for rho in range(16): self.w_read(rho, X, True)
            a('s_waitcnt lgkmcnt(0) vmcnt(0)')
            self.w_edge_rl()
            a('s_mov_b64 exec, 1')
            for r in (V.W+16, V.W+24, X+16, X+24): a('v_mov_b32 %s, 0' % v(r))
            a('v_mov_b32 %s, s90' % v(V.W+8)); a('v_mov_b32 %s, s88' % v(X+8))
            a('s_mov_b64 exec, -1')
            for i in range(32):
                a('v_add_f32 %s, %s, %s' % (v(T+3), v(V.W+i), v(X+i)))
                if (i & 15) < 8: a('v_sub_f32 %s, %s, %s' % (v(X+i), v(V.W+i), v(X+i)))
                else: a('v_sub_f32 %s, %s, %s' % (v(X+i), v(X+i), v(V.W+i)))
                a('v_mov_b32 %s, %s' % (v(V.W+i), v(T+3)))
            a('v_add_u32 %s, %d, %s' % (v(T+1), SCR_B, v(V.l16)))
            for i in range(8):
                a('ds_write_b128 %s, %s offset:%d' % (v(T+1), vr(X+4*i, 4), 1024*i))
            a('s_waitcnt lgkmcnt(0)')
            a('s_branch %s' % l1)
        self.tail.append(tail)

    def B_dup(self):
        a = self.a
        a('v_mov_b32 %s, %s' % (v(V.B+4), v(V.B))); a('v_mov_b32 %s, %s' % (v(V.B+5), v(V.B+1)))
        a('v_mov_b32 %s, %s' % (v(V.B+10), v(V.B+6))); a('v_mov_b32 %s, %s' % (v(V.B+11), v(V.B+7)))
    def gen_B(self, early=False, dup=True):
        a = self.a; T = V.T
        l0, l1 = self.label('Bspec'), self.label('Bend')
        a('s_cmp_eq_u32 %s, 0' % sT)
        a('s_cbranch_scc1 %s' % (l1 if early else l0))
        c, s = T+8, T+9
        a('v_lshrrev_b32 %s, 1, %s' % (v(T), v(V.n)))
        a('v_lshl_add_u32 %s, %s, 8, %s' % (v(T+1), v(T), sK0))
        a('v_cvt_f32_u32 %s, %s' % (v(T+1), v(T+1)))
        a('v_mul_f32 %s, %s, %s' % (v(T+1), lit(1/2048), v(T+1)))
        a('v_cvt_f32_u32 %s, %s' % (v(T+2), v(V.g)))
        a('v_add_f32 %s, %s, %s' % (v(T+2), v(T+2), v(T+2)))
        a('v_and_b32 %s, 1, %s' % (v(T+3), v(V.n)))
        a('v_cvt_f32_u32 %s, %s' % (v(T+3), v(T+3)))
        a('v_mul_f32 %s, %s, %s' % (v(T+4), lit(0.25), v(T+3)))
        a('v_mul_f32 %s, %s, %s' % (v(T+5), v(T+1), v(T+2)))
        for sbb in range(2):
            for half in range(2):
                a('v_%s_f32 %s, %s, %s' % ('sub' if half else 'add', v(T+6), v(T+5), v(T+4)))
                a('v_cos_f32 %s, %s' % (v(c), v(T+6)))
                a('v_sin_f32 %s, %s' % (v(s), v(T+6)))
                a('v_mul_f32 %s, %s, %s' % (v(c), lit(S11), v(c)))
                a('v_mul_f32 %s, %s, %s' % (v(s), lit(S11), v(s)))
                ng = '-' if half else ''
                a('v_cvt_pk_bf16_f32 %s, %s, %s%s' % (v(V.B+2*sbb+half), v(c), ng, v(s)))
                a('v_cvt_pk_bf16_f32 %s, -%s, %s%s' % (v(V.B+6+2*sbb+half), v(s), ng, v(c)))
            if sbb == 0: a('v_add_f32 %s, %s, %s' % (v(T+5), v(T+5), v(T+1)))
        a('v_cvt_f32_u32 %s, %s' % (v(T), v(T)))
        a('v_lshlrev_b32 %s, 31, %s' % (v(T+4), v(V.n)))
        a('v_xor_b32 %s, %s, %s' % (v(T), v(T), v(T+4)))
        a('v_xor_b32 %s, %s, %s' % (v(T+4), lit(S11), v(T+4)))
        a('v_lshl_add_u32 %s, %s, 9, %s' % (v(T+1), v(V.g), sK0))
        a('v_cvt_f32_u32 %s, %s' % (v(T+1), v(T+1)))
        a('v_mul_f32 %s, %s, %s' % (v(T+1), lit(1/2048), v(T+1)))
        a('v_mul_f32 %s, %s, %s' % (v(T+5), v(T+1), v(T)))
        a('v_fmac_f32 %s, 0.5, %s' % (v(T+5), v(T+3)))
        for ii in range(2):
            a('v_cos_f32 %s, %s' % (v(c), v(T+5)))
            a('v_sin_f32 %s, %s' % (v(s), v(T+5)))
            a('v_mul_f32 %s, %s, %s' % (v(T+6), v(T+4), v(c)))
            a('v_mul_f32 %s, %s, %s' % (v(T+7), v(T+4), v(s)))
            a('v_mul_f32 %s, %s, %s' % (v(c), lit(S11), v(c)))
            a('v_mul_f32 %s, %s, %s' % (v(s), lit(S11), v(s)))
            a('v_cvt_pk_bf16_f32 %s, %s, %s' % (v(V.Bp+2*ii), v(c), v(T+7)))
            a('v_cvt_pk_bf16_f32 %s, -%s, %s' % (v(V.Bp+4+2*ii), v(s), v(T+6)))
            a('v_cvt_pk_bf16_f32 %s, -%s, %s' % (v(V.Bp+2*ii+1), v(s), v(T+6)))
            a('v_cvt_pk_bf16_f32 %s, -%s, -%s' % (v(V.Bp+4+2*ii+1), v(c), v(T+7)))
            if ii == 0: a('v_fmac_f32 %s, %s, %s' % (v(T+5), lit(0.125), v(T)))
        a(l1+':')
        if dup: self.B_dup()
        def tail():
            a(l0+':')
            if not early: self.spec_load(); a('s_waitcnt vmcnt(0)')
            a('s_branch %s' % l1)
        if not early: self.tail.append(tail)
    def spec_load(self):
        a = self.a
        a('s_getpc_b64 s[28:29]')
        a('s_add_u32 s28, s28, spec_tab@rel32@lo+4')
        a('s_addc_u32 s29, s29, spec_tab@rel32@hi+12')
        a('global_load_dwordx4 %s, %s, s[28:29]' % (vr(V.B, 4), v(V.l16)))
        a('global_load_dwordx4 %s, %s, s[28:29] offset:1024' % (vr(V.B+6, 4), v(V.l16)))
        a('global_load_dwordx4 %s, %s, s[28:29] offset:2048' % (vr(V.Bp, 4), v(V.l16)))
        a('global_load_dwordx4 %s, %s, s[28:29] offset:3072' % (vr(V.Bp+4, 4), v(V.l16)))
    def spec_early(self):
        a = self.a
        def g():
            self.srds()
            a('s_mov_b32 %s, 0' % sDP); a('s_mov_b32 %s, %d' % (sDM, 1024*1026)); a('s_mov_b32 %s, %d' % (sWL, WL))
            self.w_dma()
        def f():
            self.spec_load(); self.cond(sW, 0, g)
        self.cond(sT, 0, f)

    def spec_table(self):
        tab = np.zeros((4, 64, 4, 2))
        for lane in range(64):
            m, g = lane & 15, lane >> 4
            for r in range(4):
                t, c = m >> 1, m & 1; sb, hf = 2*g + (r >> 1), r & 1
                if hf == (t & 1):
                    th = 2*math.pi*sb*t/16
                    tab[0, lane, r, c] = (2*S11 if t else S11)*math.cos(th)
                    tab[1, lane, r, c] = -2*S11*math.sin(th) if t else S11*(-1.0)**sb
                sb, hf = m >> 1, m & 1; t, c = 2*g + (r >> 1), r & 1
                if hf == (t & 1):
                    th = 2*math.pi*sb*t/16
                    if t: cre, cim = 2*math.cos(th), -2*math.sin(th)
                    else: cre, cim = 1.0, (-1.0)**sb
                    pl = 2 + (1 - c)
                    tab[pl, lane, r, 0] = S11*cim
                    tab[pl, lane, r, 1] = S11*cre
        tab[abs(tab) < 1e-12] = 0
        out = ['.p2align 6', '.type spec_tab,@object', 'spec_tab:']
        w = [bf16bits(tab[p, l, r, 0]) | bf16bits(tab[p, l, r, 1]) << 16 for p in range(4) for l in range(64) for r in range(4)]
        for i in range(0, len(w), 8):
            out.append('.long ' + ','.join('0x%x' % x for x in w[i:i+8]))
        return '\n'.join(out)

    def p1_load(self):
        a = self.a; T = V.T
        a('v_bfe_u32 %s, %s, 3, 1' % (v(T), v(V.lane)))
        a('v_lshlrev_b32 %s, 14, %s' % (v(T), v(T)))
        a('v_lshl_add_u32 %s, %s, 20, %s' % (v(T), v(V.g), v(T)))
        a('v_and_b32 %s, 0x70, %s' % (v(T+1), v(V.l16)))
        a('v_add_u32 %s, %s, %s' % (v(V.Xoff), v(T), v(T+1)))
        a('s_lshl_b32 %s, %s, 15' % (sO[0], sW))
        a('s_lshl_b32 %s, %s, 11' % (sA, sSB)); a('s_add_u32 %s, %s, %s' % (sO[0], sO[0], sA))
        a('s_lshl_b32 %s, %s, 7' % (sA, sCB)); a('s_add_u32 %s, %s, %s' % (sO[0], sO[0], sA))
        for r in range(1, 4): a('s_add_u32 %s, %s, 0x%x' % (sO[r], sO[0], r*262144))
    def p1_issue(self):
        a = self.a
        for r in range(4):
            a('buffer_load_dwordx4 %s, %s, %s, %s offen %s' % (vr(V.L+4*r, 4), v(V.Xoff), SX, sO[r], self.o['ldx']))
    def p1_addrs(self):
        a = self.a; T = V.T
        a('v_xor_b32 %s, %s, %s' % (v(T), sSB, v(V.lane)))
        a('v_and_b32 %s, 1, %s' % (v(T), v(T)))
        a('v_mul_u32_u24 %s, 16448, %s' % (v(T), v(T)))
        a('v_lshl_add_u32 %s, %s, 12, %s' % (v(T), v(V.g), v(T)))
        a('v_and_b32 %s, 14, %s' % (v(T+1), v(V.lane)))
        a('v_lshl_add_u32 %s, %s, 3, %s' % (v(T), v(T+1), v(T)))
        a('s_lshr_b32 %s, %s, 2' % (sA, sW)); a('s_lshl_b32 %s, %s, 9' % (sA, sA))
        a('s_and_b32 %s, %s, 1' % (sB, sW)); a('s_lshl_b32 %s, %s, 8' % (sB, sB)); a('s_add_u32 %s, %s, %s' % (sA, sA, sB))
        a('s_and_b32 %s, %s, 2' % (sB, sW)); a('s_lshl_b32 %s, %s, 6' % (sB, sB)); a('s_add_u32 %s, %s, %s' % (sA, sA, sB))
        if R0: a('s_add_u32 %s, %s, %d' % (sA, sA, R0))
        a('v_add_u32 %s, %s, %s' % (v(V.X0w), sA, v(T)))
        self.tr_lane(T, 512, 128)
        a('s_lshl_b32 %s, %s, 10' % (sA, sW))
        a('s_sub_u32 %s, 0x4000, %s' % (sB, sA))
        a('s_cmp_eq_u32 %s, 0' % sW)
        a('s_cselect_b32 %s, 0x2000, %s' % (sB, sB))
        if R0: a('s_add_u32 %s, %s, %d' % (sA, sA, R0)); a('s_add_u32 %s, %s, %d' % (sB, sB, R0))
        a('v_add_u32 %s, %s, %s' % (v(V.X0r0), sA, v(T)))
        a('v_add_u32 %s, %s, %s' % (v(V.X0r1), sB, v(T)))
    def tr_lane(self, dst, g1s, g0s, b3s=64):
        a = self.a; t = V.T+7
        sh = lambda x: int(math.log2(x))
        a('v_and_b32 %s, 0x30, %s' % (v(dst), v(V.l16)))
        for bit, st in ((2, 8), (3, b3s), (4, g0s), (5, g1s)):
            a('v_bfe_u32 %s, %s, %d, 1' % (v(t), v(V.lane), bit))
            a('v_lshl_add_u32 %s, %s, %d, %s' % (v(dst), v(t), sh(st), v(dst)))

    def mf16(self, d, A, B):
        self.a('v_mfma_f32_16x16x32_bf16 %s, %s, %s, 0' % (vr(d, 4), vr(A, 4), vr(B, 4)))
    def cvt(self, d, lo, hi):
        self.a('v_cvt_pk_bf16_f32 %s, %s, %s' % (v(d), v(lo), v(hi)))

    def p1_compute(self, nafter, hook=None, hook2=None, hook3=None, hook4=None):
        a = self.a; O, L, D = V.O, V.L, V.DA
        for r in range(4):
            a('s_waitcnt vmcnt(%d)' % (nafter + 3 - r))
            if r == 3: self.stamp()
            for t in range(4):
                a('v_mov_b32 %s, %s' % (v(O+4*t+r), v(L+4*r+t)))
        for t in range(4):
            self.mf16(D+4*t, V.F16, O+4*t)
            self.mf16(D+16+4*t, V.F16+4, O+4*t)
        if hook: hook()
        P = V.DB
        for r in range(4):
            self.cvt(P+4*r, D+r, D+4+r); self.cvt(P+4*r+2, D+16+r, D+20+r)
        for r in range(4):
            self.cvt(P+4*r+1, D+8+r, D+12+r); self.cvt(P+4*r+3, D+24+r, D+28+r)
            a('ds_write_b128 %s, %s offset:%d' % (v(V.X0w), vr(P+4*r, 4), 1024*r))
        a('s_waitcnt lgkmcnt(0)')
        a('s_barrier')
        if hook4: hook4()
        for sel in range(2):
            for tau in range(2):
                for ii in range(2):
                    a('ds_read_b64_tr_b16 %s, %s offset:%d' % (vr(O+4*(2*sel+tau)+2*ii, 2), v(V.X0r1 if sel else V.X0r0), tau*16448+ii*256))
        if hook2: hook2()
        if hook3: hook3()
        for r in range(4): a('s_add_u32 %s, %s, 0x%x' % (sO[r], self.est(), self.ubase(0) + r*self.tstride()))
        for ti in range(4):
            a('s_waitcnt lgkmcnt(%d)' % (6-2*ti))
            self.mf16(D+4*ti, V.M2+8*(ti >> 1), O+4*ti)
            self.mf16(D+16+4*ti, V.M2+8*(ti >> 1)+4, O+4*ti)
        st = lambda i: a('buffer_store_dwordx4 %s, %s, %s, %s offen %s' % (vr(P+4*i, 4), v(V.Est), SWS, sO[i], self.o['st1']))
        def normal():
            for i in range(4):
                for tau in range(2): self.cvt(P+4*i+2*tau, D+4*tau+i, D+16+4*tau+i)
            for i in range(4):
                for tau in range(2): self.cvt(P+4*i+2*tau+1, D+4*(2+tau)+i, D+16+4*(2+tau)+i)
                st(i)
        def w0():
            for i in range(4):
                ts, eb = i >> 1, i & 1
                for tau in range(2):
                    for sg in range(2):
                        x = 4*(2*ts+tau)+2*eb+sg
                        self.cvt(P+4*i+2*tau+sg, D+x, D+16+x)
                st(i)
        self.ifelse(sW, 0, w0, normal)

    def p2_addrs(self):
        a = self.a; T = V.T
        a('v_lshlrev_b32 %s, 4, %s' % (v(T), v(V.n)))
        a('v_lshl_add_u32 %s, %s, 13, %s' % (v(T), v(V.g), v(T)))
        a('s_lshl_b32 %s, %s, 9' % (sA, sW)); a('s_add_u32 %s, %s, %d' % (sA, sA, R1))
        a('v_add_u32 %s, %s, %s' % (v(V.X1w), sA, v(T)))
    def p2_addrs2(self):
        a = self.a; T = V.T
        self.tr_lane(T, 256, 64, 128)
        a('s_lshl_b32 %s, %s, 12' % (sA, sW)); a('s_add_u32 %s, %s, %d' % (sA, sA, R1))
        a('v_add_u32 %s, %s, %s' % (v(V.X1r), sA, v(T)))
        a('v_and_b32 %s, 16, %s' % (v(T), v(V.l16)))
        for bit, st in ((1, 16448), (2, 8224)):
            a('v_bfe_u32 %s, %s, %d, 1' % (v(T+1), v(V.lane), bit))
            a('v_mul_u32_u24 %s, %d, %s' % (v(T+1), st, v(T+1)))
            a('v_add_u32 %s, %s, %s' % (v(T), v(T), v(T+1)))
        a('v_bfe_u32 %s, %s, 3, 2' % (v(T+1), v(V.lane)))
        a('v_lshl_add_u32 %s, %s, 11, %s' % (v(T), v(T+1), v(T)))
        a('v_and_b32 %s, 32, %s' % (v(T+1), v(V.lane)))
        a('v_add_u32 %s, %s, %s' % (v(T), v(T), v(T+1)))
        a('s_lshr_b32 %s, %s, 2' % (sA, sW)); a('s_lshl_b32 %s, %s, 9' % (sA, sA))
        a('s_and_b32 %s, %s, 1' % (sB, sW)); a('s_lshl_b32 %s, %s, 8' % (sB, sB)); a('s_add_u32 %s, %s, %s' % (sA, sA, sB))
        a('s_and_b32 %s, %s, 2' % (sB, sW)); a('s_lshl_b32 %s, %s, 6' % (sB, sB)); a('s_add_u32 %s, %s, %s' % (sA, sA, sB))
        if R0: a('s_add_u32 %s, %s, %d' % (sA, sA, R0))
        a('v_add_u32 %s, %s, %s' % (v(V.X2w), sA, v(T)))
        self.tr_lane(T, 512, 128)
        a('s_and_b32 %s, %s, 1' % (sA, sW)); a('s_lshl_b32 %s, %s, 11' % (sA, sA))
        a('s_bfe_u32 %s, %s, 0x10001' % (sB, sW)); a('s_mul_i32 %s, %s, 16448' % (sB, sB)); a('s_add_u32 %s, %s, %s' % (sA, sA, sB))
        a('s_lshr_b32 %s, %s, 2' % (sB, sW)); a('s_lshl_b32 %s, %s, 12' % (sB, sB)); a('s_add_u32 %s, %s, %s' % (sA, sA, sB))
        if R0: a('s_add_u32 %s, %s, %d' % (sA, sA, R0))
        a('v_add_u32 %s, %s, %s' % (v(V.X2r), sA, v(T)))

    def p2_issue(self):
        a = self.a
        a('s_add_u32 %s, %s, 0x%x' % (sA, sEld, self.ubase(0)))
        for q in range(4):
            a('buffer_load_dwordx4 %s, %s, %s, %s offen offset:%d %s' % (vr(V.L+12*(q >> 1)+4*(q & 1), 4), self.eld(q), SWS, sA, 256*q, self.o['ld1']))

    def mf32(self, d, i, dataA):
        for pl in range(2):
            M = vr(V.F32+16*pl+4*i, 4); X = vr(V.O+4*i, 4)
            A, B = (X, M) if dataA else (M, X)
            D = vr(d+16*pl, 16)
            self.a('v_mfma_f32_32x32x16_bf16 %s, %s, %s, %s' % (D, A, B, D if i else '0'))

    def cmul_stage(self, src, dst, dataA, coef, kind, prio=None, late=False):
        a = self.a; T = V.T
        if prio is not None and self.o['prio']: a('s_setprio %d' % prio)
        if kind == 'tw' and self.o['shear']:
            for i in range(4):
                for st in range(3):
                    for r in range(4):
                        rho = 4*i+r
                        x, y = v(src+rho), v(src+16+rho)
                        if st == 1: a('v_fmac_f32 %s, %s, %s' % (y, v(coef+16+rho), x))
                        else: a('v_fmac_f32 %s, %s, %s' % (x, v(coef+rho), y))
                for r in range(4): self.cvt(V.O+4*i+r, src+4*i+r, src+16+4*i+r)
                self.mf32(dst, i, dataA)
            return
        if late:
            a('s_waitcnt vmcnt(2)')
            for rho in range(8): self.w_read(rho)
        for i in range(4):
            if late:
                if i == 0: a('s_waitcnt lgkmcnt(8)'); self.w_fix(0)
                if i == 1:
                    a('s_waitcnt vmcnt(0)')
                    for rho in range(8, 12): self.w_read(rho)
                    a('s_waitcnt lgkmcnt(8)')
                if i == 2:
                    for rho in range(12, 16): self.w_read(rho)
                    a('s_waitcnt lgkmcnt(8)'); self.w_fix(1)
                if i == 3: a('s_waitcnt lgkmcnt(0)')
            for r in range(4):
                rho = 4*i+r
                x, y = v(src+rho), v(src+16+rho)
                c, s = v(coef+rho), v(coef+16+rho)
                t0, t1 = v(T+2*r), v(T+2*r+1)
                a('v_mul_f32 %s, %s, %s' % (t0, x, c))
                a('v_mul_f32 %s, %s, %s' % (t1, y, c))
            for r in range(4):
                rho = 4*i+r
                x, y = v(src+rho), v(src+16+rho)
                c, s = v(coef+rho), v(coef+16+rho)
                t0, t1 = v(T+2*r), v(T+2*r+1)
                if kind == 'tw' or rho >= 8:
                    a('v_fmac_f32 %s, %s, %s' % (t0, y, s))
                    a('v_fma_f32 %s, -%s, %s, %s' % (t1, x, s, t1))
                else:
                    a('v_fma_f32 %s, -%s, %s, %s' % (t0, y, s, t0))
                    a('v_fmac_f32 %s, %s, %s' % (t1, x, s))
            for r in range(4):
                if kind == 'tw': self.cvt(V.O+4*i+r, T+2*r, T+2*r+1)
                else: self.cvt(V.O+4*i+r, T+2*r+1, T+2*r)
            self.mf32(dst, i, dataA)

    def p2_compute(self, wl=None):
        a = self.a; O, L, D, T = V.O, V.L, V.DA, V.T
        late = wl is not None
        na = 0
        for cbb in range(2):
            b = L+12*cbb
            a('s_waitcnt vmcnt(%d)' % (na+3-2*cbb))
            a('v_mov_b32 %s, %s' % (v(b+8), v(b))); a('v_mov_b32 %s, %s' % (v(b+9), v(b+1)))
            a('s_waitcnt vmcnt(%d)' % (na+2-2*cbb))
            if cbb: self.stamp(); self.fstamp()
            for jj2 in (1, 0):
                ti = 2*cbb+jj2
                op = b+2 if jj2 else b+6
                mo = 0 if jj2 else 2
                self.mf16(D+4*ti, V.B+mo, op)
                self.mf16(D+16+4*ti, V.B+6+mo, op)
        for cbb in range(2):
            for k1b in range(2):
                P = O+4*(2*cbb+k1b)
                for pl in range(2):
                    for jj2 in (1, 0):
                        x = D+16*pl+4*(2*cbb+jj2)+2*k1b
                        self.cvt(P+2*pl+jj2, x, x+1)
                a('ds_write_b128 %s, %s offset:%d' % (v(V.X1w), vr(P, 4), k1b*4096+cbb*256))
        self.fstamp()
        a('s_waitcnt lgkmcnt(0)')
        self.fstamp()
        if self.o.get('fine'): a('s_waitcnt lgkmcnt(0)')
        a('s_barrier')
        if self.o['prio']: a('s_setprio 3')
        for i in range(4):
            for ii in range(2):
                a('ds_read_b64_tr_b16 %s, %s offset:%d' % (vr(O+4*i+2*ii, 2), v(V.X1r), ii*1024+(i & 1)*512+(i >> 1)*2048))
        for i in range(4):
            if late and i in (0, 2): self.wat('postX1', (i, i+1))
            a('s_waitcnt lgkmcnt(%d)' % (6-2*i))
            self.mf32(V.DA, i, True)
        self.fstamp()
        if late: self.wat('tw1')
        self.cmul_stage(V.DA, V.DB, False, V.TW, 'tw', 2)
        self.fstamp()
        l0, l1 = self.label('PWspec'), self.label('PWend')
        a('s_cmp_eq_u32 %s, 1' % sSpec)
        a('s_cbranch_scc1 %s' % l0)
        if self.o.get('fine'): a('s_waitcnt lgkmcnt(0)')
        self.cmul_stage(V.DB, V.DA, True, V.W, 'w', 1, late)
        a(l1+':')
        self.fstamp()
        self.cmul_stage(V.DA, V.DB, True, V.TW, 'tw', 0)
        self.fstamp()
        D = V.DB
        rho = lambda jj3, jj1, jj2, c: 4*(2*jj3+jj1)+2*jj2+c
        for c in range(2):
            for jj1 in range(2):
                P = O+4*(2*c+jj1)
                for pl in range(2):
                    for jj3 in range(2):
                        self.cvt(P+2*pl+jj3, D+16*pl+rho(jj3, jj1, 0, c), D+16*pl+rho(jj3, jj1, 1, c))
                a('ds_write_b128 %s, %s offset:%d' % (v(V.X2w), vr(P, 4), c*64+jj1*1024))
                if self.o['ib2'] and not self.o['ib3'] and c == 0 and jj1 == 0: self.major_read()
        self.fstamp()
        a('s_waitcnt lgkmcnt(0)')
        if self.o['ib2'] and not self.o['ib3']: self.major_use()
        self.fstamp()
        if self.o.get('fine'): a('s_waitcnt lgkmcnt(0)')
        a('s_barrier')
        for cbb in range(2):
            for jj1 in range(2):
                for ii in range(2):
                    a('ds_read_b64_tr_b16 %s, %s offset:%d' % (vr(O+4*(2*cbb+jj1)+2*ii, 2), v(V.X2r), ii*256+jj1*1024+cbb*8224))
        for r in range(4): a('s_add_u32 %s, %s, 0x%x' % (sO[r], self.est(), self.ubase(1) + r*self.tstride()))
        D = V.DA
        for ti in range(4):
            a('s_waitcnt lgkmcnt(%d)' % (6-2*ti))
            self.mf16(D+4*ti, V.Bp, O+4*ti)
            self.mf16(D+16+4*ti, V.Bp+4, O+4*ti)
        self.fstamp()
        P = V.DB
        for q in range(4):
            cbb, sbb = q >> 1, q & 1
            for jj1 in range(2):
                for hf in range(2):
                    x = 4*(2*cbb+jj1)+2*sbb+hf
                    self.cvt(P+4*q+2*jj1+hf, D+x, D+16+x)
            a('buffer_store_dwordx4 %s, %s, %s, %s offen %s' % (vr(P+4*q, 4), v(V.Est), SWS, sO[q], self.o['st2']))
        self.fstamp()
        if self.o.get('fine'):
            a('s_memrealtime s[%d:%d]' % (sTS+2*self.nts, sTS+2*self.nts+1)); self.nts += 1
        def tail():
            C = V.DB; X = V.DA
            a(l0+':')
            self.sigma_lane(T)
            a('v_lshrrev_b32 %s, 5, %s' % (v(T+1), v(V.lane)))
            a('v_lshlrev_b32 %s, 9, %s' % (v(T+1), v(T+1)))
            a('v_lshl_add_u32 %s, %s, 2, %s' % (v(T+2), v(T), v(T+1)))
            a('v_add_u32 %s, %d, %s' % (v(T+2), SCR, v(T+2)))
            a('v_add_u32 %s, 128, %s' % (v(T+3), v(T+2)))
            a('v_sub_u32 %s, 32, %s' % (v(T+4), v(T)))
            a('v_lshrrev_b32 %s, 5, %s' % (v(T+5), v(T+4)))
            a('v_and_b32 %s, 31, %s' % (v(T+4), v(T+4)))
            a('v_lshlrev_b32 %s, 2, %s' % (v(T+4), v(T+4)))
            a('v_lshl_add_u32 %s, %s, 8, %s' % (v(T+4), v(T+5), v(T+4)))
            a('v_sub_u32 %s, %s, %s' % (v(T+4), v(T+4), v(T+1)))
            a('v_add_u32 %s, %d, %s' % (v(T+4), SCR + 2*256, v(T+4)))
            a('v_add_u32 %s, 128, %s' % (v(T+5), v(T+4)))
            a('v_add_u32 %s, %d, %s' % (v(T+6), SCR_B, v(V.l16)))
            qs = lambda rho: sigma(8*(rho >> 2) + (rho & 3))
            for pl in range(2):
                for rho in range(0, 16, 2):
                    a('ds_write2st64_b32 %s, %s, %s offset0:%d offset1:%d' % (v(T+2+pl), v(C+16*pl+rho), v(C+16*pl+rho+1), qs(rho), qs(rho+1)))
                a('ds_write_b32 %s, %s offset:%d' % (v(T+2+pl), v(C+16*pl), 32*256))
            a('s_waitcnt lgkmcnt(0)')
            t0, t1 = v(T+8), v(T+9)
            for half in range(2):
                for pl in range(2):
                    for k in range(0, 8, 2):
                        rho_ = 8*half+k
                        a('ds_read2st64_b32 %s, %s offset0:%d offset1:%d' % (vr(X+8*pl+k, 2), v(T+4+pl), 29-qs(rho_), 29-qs(rho_+1)))
                    for k in range(2):
                        a('ds_read_b128 %s, %s offset:%d' % (vr(X+16+8*pl+4*k, 4), v(T+6), 1024*(4*pl+2*half+k)))
                a('s_waitcnt lgkmcnt(0)')
                for k in range(8):
                    rho_ = 8*half+k
                    x, y = v(C+rho_), v(C+16+rho_); ar, ai = v(V.W+rho_), v(V.W+16+rho_)
                    p, q_ = v(X+k), v(X+8+k); br, bi = v(X+16+k), v(X+24+k)
                    ng, ps = ('', '-') if half else ('-', '')
                    a('v_mul_f32 %s, %s, %s' % (t0, x, ar))
                    a('v_mul_f32 %s, %s, %s' % (t1, y, ar))
                    a('v_fma_f32 %s, %s%s, %s, %s' % (t0, ng, y, ai, t0))
                    a('v_fma_f32 %s, %s%s, %s, %s' % (t1, ps, x, ai, t1))
                    a('v_fmac_f32 %s, %s, %s' % (t0, p, br))
                    a('v_fma_f32 %s, -%s, %s, %s' % (t1, q_, br, t1))
                    a('v_fma_f32 %s, %s%s, %s, %s' % (t0, ps, q_, bi, t0))
                    a('v_fma_f32 %s, %s%s, %s, %s' % (t1, ps, p, bi, t1))
                    self.cvt(O+rho_, T+9, T+8)
            for i in range(4): self.mf32(V.DA, i, True)
            a('s_nop 11')
            a('s_branch %s' % l1)
        self.tail.append(tail)

    def p3_addrs(self):
        a = self.a; T = V.T
        a('v_and_b32 %s, 16, %s' % (v(T), v(V.lane)))
        for bit, st in ((0, 32), (3, 4096), (5, 1024)):
            a('v_bfe_u32 %s, %s, %d, 1' % (v(T+1), v(V.lane), bit))
            a('v_lshl_add_u32 %s, %s, %d, %s' % (v(T), v(T+1), int(math.log2(st)), v(T)))
        for bit, st in ((1, 8208), (2, 16448)):
            a('v_bfe_u32 %s, %s, %d, 1' % (v(T+1), v(V.lane), bit))
            a('v_mul_u32_u24 %s, %d, %s' % (v(T+1), st, v(T+1)))
            a('v_add_u32 %s, %s, %s' % (v(T), v(T), v(T+1)))
        a('s_sub_u32 %s, 16, %s' % (sC, sW))
        a('s_cmp_eq_u32 %s, 0' % sW)
        a('s_cselect_b32 %s, 8, %s' % (sC, sC))
        for kl, dst in ((sW, V.X3w0), (sC, V.X3w1)):
            a('s_and_b32 %s, %s, 9' % (sA, kl)); a('s_lshl_b32 %s, %s, 6' % (sA, sA))
            a('s_and_b32 %s, %s, 2' % (sB, kl)); a('s_lshl_b32 %s, %s, 7' % (sB, sB)); a('s_add_u32 %s, %s, %s' % (sA, sA, sB))
            a('s_and_b32 %s, %s, 4' % (sB, kl)); a('s_lshl_b32 %s, %s, 5' % (sB, sB)); a('s_add_u32 %s, %s, %s' % (sA, sA, sB))
            a('s_add_u32 %s, %s, %d' % (sA, sA, R1))
            a('v_add_u32 %s, %s, %s' % (v(dst), sA, v(T)))
        self.tr_lane(T, 512, 128)
        a('s_and_b32 %s, %s, 1' % (sA, sW)); a('s_mul_i32 %s, %s, 8208' % (sA, sA))
        a('s_bfe_u32 %s, %s, 0x10001' % (sB, sW)); a('s_mul_i32 %s, %s, 16448' % (sB, sB)); a('s_add_u32 %s, %s, %s' % (sA, sA, sB))
        a('s_lshr_b32 %s, %s, 2' % (sB, sW)); a('s_lshl_b32 %s, %s, 12' % (sB, sB)); a('s_add_u32 %s, %s, %s' % (sA, sA, sB))
        a('s_add_u32 %s, %s, %d' % (sA, sA, R1))
        a('v_add_u32 %s, %s, %s' % (v(V.X3r), sA, v(T)))
        a('v_bfe_u32 %s, %s, 3, 1' % (v(T), v(V.lane)))
        a('v_lshlrev_b32 %s, 15, %s' % (v(T), v(T)))
        a('v_lshl_add_u32 %s, %s, 21, %s' % (v(T), v(V.g), v(T)))
        a('v_and_b32 %s, 0x70, %s' % (v(T+1), v(V.l16)))
        a('v_add_u32 %s, %s, %s' % (v(V.Ooff), v(T), v(T+1)))
    def p3_soff(self):
        a = self.a
        a('s_lshl_b32 %s, %s, 16' % (sO[0], sW))
        a('s_lshl_b32 %s, %s, 12' % (sA, sSB)); a('s_add_u32 %s, %s, %s' % (sO[0], sO[0], sA))
        a('s_lshl_b32 %s, %s, 7' % (sA, sCB)); a('s_add_u32 %s, %s, %s' % (sO[0], sO[0], sA))
        a('s_lshl_b32 %s, %s, 11' % (sA, sP)); a('s_add_u32 %s, %s, %s' % (sO[0], sO[0], sA))
        for r in range(1, 4): a('s_add_u32 %s, %s, 0x%x' % (sO[r], sO[0], r*524288))
    def p3_issue(self):
        a = self.a
        a('s_add_u32 %s, %s, 0x%x' % (sA, sEld, self.ubase(1)))
        for q in range(4):
            a('buffer_load_dwordx4 %s, %s, %s, %s offen offset:%d %s' % (vr(V.L+4*q, 4), self.eld(q, 1), SWS, sA, 256*q, self.o['ld2']))
    def p3_compute(self):
        a = self.a; O, L, D = V.O, V.L, V.DA
        def normal():
            for i in range(4):
                a('s_waitcnt vmcnt(%d)' % (3-i))
                for sel in range(2):
                    for col in range(2):
                        a('v_mov_b32 %s, %s' % (v(O+4*(2*sel+col)+i), v(L+4*i+2*col+sel)))
        def w0():
            for i in range(4):
                ts, eb = i >> 1, i & 1
                a('s_waitcnt vmcnt(%d)' % (3-i))
                for col in range(2):
                    for sg in range(2):
                        a('v_mov_b32 %s, %s' % (v(O+4*(2*ts+col)+2*eb+sg), v(L+4*i+2*col+sg)))
        self.ifelse(sW, 0, w0, normal, True)
        self.stamp()
        for ti in range(4):
            self.mf16(D+4*ti, O+4*ti, V.M2+8*(ti >> 1))
            self.mf16(D+16+4*ti, O+4*ti, V.M2+8*(ti >> 1)+4)
        P = V.DB
        for ti in range(4):
            for pl in range(2):
                for k in range(2):
                    x = D+16*pl+4*ti+2*k
                    self.cvt(P+4*ti+2*pl+k, x, x+1)
            a('ds_write_b128 %s, %s offset:%d' % (v(V.X3w1 if ti >> 1 else V.X3w0), vr(P+4*ti, 4), (ti & 1)*2048))
        a('s_waitcnt lgkmcnt(0)')
        a('s_barrier')
        for t in range(4):
            for ii in range(2):
                a('ds_read_b64_tr_b16 %s, %s offset:%d' % (vr(O+4*t+2*ii, 2), v(V.X3r), ii*256+t*1024))
        for t in range(4):
            a('s_waitcnt lgkmcnt(%d)' % (6-2*t))
            self.mf16(D+4*t, V.F16, O+4*t)
            self.mf16(D+16+4*t, V.F16+4, O+4*t)
        for t in range(3):
            for r in range(4): self.cvt(P+4*r+t, D+16+4*t+r, D+4*t+r)
        for r in range(4):
            self.cvt(P+4*r+3, D+16+12+r, D+12+r)
            a('buffer_store_dwordx4 %s, %s, %s, %s offen %s' % (vr(P+4*r, 4), v(V.Ooff), SOUT, sO[r], self.o['sto']))

    def flush_tail(self):
        t, self.tail = self.tail, []
        for f in t: f()

    def kernel_head(self, name):
        self.a.raw('.globl %s\n.p2align 12\n.p2align 8\n.type %s,@function\n%s:' % (name, name, name))
    def kd(self, name):
        return '''.p2align 6
.amdhsa_kernel %s
  .amdhsa_next_free_vgpr %d
  .amdhsa_next_free_sgpr 102
  .amdhsa_accum_offset %d
  .amdhsa_group_segment_fixed_size 0
  .amdhsa_kernarg_size 72
  .amdhsa_user_sgpr_count 2
  .amdhsa_user_sgpr_kernarg_segment_ptr 1
  .amdhsa_system_sgpr_workgroup_id_x 1
.end_amdhsa_kernel''' % (name, NVGPR, (NVGPR+3)//4*4)

    def build_three(self):
        a = self.a
        names = ['gf_p1_kernel', 'gf_p2_kernel', 'gf_p3_kernel']
        self.kernel_head(names[0]); end = self.label('end')
        self.prologue(end); self.p1_load(); a('s_waitcnt lgkmcnt(0)'); self.p1_issue()
        self.ex_addrs(); self.p1_addrs(); self.gen_F16(); self.gen_M2()
        self.p1_compute(0)
        if self.o['ts']: self.stamp(); a('s_waitcnt vmcnt(0)'); self.stamp(); self.dump_stamps(0)
        a(end+':'); a('s_endpgm'); self.flush_tail()
        self.kernel_head(names[1]); end = self.label('end')
        self.prologue(end); self.ex_addrs(); self.calc_k0(); a('s_waitcnt lgkmcnt(0)')
        self.w_dma(); self.p2_addrs(); self.gen_B(); self.gen_F32TW()
        a('s_waitcnt vmcnt(0)'); self.w_regs(); a('s_waitcnt lgkmcnt(0)')
        self.p2_issue(); self.p2_compute()
        if self.o['ts']: self.stamp(); a('s_waitcnt vmcnt(0)'); self.stamp(); self.dump_stamps(8)
        a(end+':'); a('s_endpgm'); self.flush_tail()
        self.kernel_head(names[2]); end = self.label('end')
        self.prologue(end); self.ex_addrs(); a('s_waitcnt lgkmcnt(0)'); self.p3_issue()
        self.p3_addrs(); self.p3_soff(); self.gen_F16(); self.gen_M3()
        self.p3_compute()
        if self.o['ts']: self.stamp(); a('s_waitcnt vmcnt(0)'); self.stamp(); self.dump_stamps(16)
        a(end+':'); a('s_endpgm'); self.flush_tail()
        launch = ''.join('; @launch kernel=%s grid=(256,1,1) block=(512,1,1) lds=%d\n' % (n, LDS_TOTAL) for n in names)
        return self.finish(launch, names)

    def flag_addrs(self):
        a = self.a
        if self.o['ib']:
            a('s_lshr_b32 %s, %s, 4' % (sB, sT))
            for dst, wp, gr in ((sF, sW, sB), (sE, sB, sW)):
                a('s_lshl3_add_u32 %s, %s, %s' % (sA, sP, wp)); a('s_lshl_b32 %s, %s, 21' % (sA, sA))
                a('s_lshl_b32 %s, %s, 10' % (sC, gr)); a('s_add_u32 %s, %s, %s' % (sA, sA, sC))
                a('s_add_u32 %s, %s, 0x%x' % (dst, sA, WS_FLAG_IB))
            a('s_and_b32 %s, %s, 15' % (sA, sT)); a('s_add_u32 %s, %s, 8' % (sA, sA))
            a('s_lshl_b32 %s, %s, %s' % (sInc, sCh, sA)); a('s_add_u32 %s, %s, 1' % (sInc, sInc))
            a('v_lshl_add_u32 %s, %s, 2, 8' % (v(V.dummy), v(V.g)))
            return
        if self.o['fl'] != '':
            pol = int(self.o['fl'][1]); mode = self.o['fl'][0]
            a('s_lshr_b32 %s, %s, 4' % (sB, sT))
            for dst, wp, gr in ((sF, sW, sB), (sE, sB, sW)):
                a('s_lshl3_add_u32 %s, %s, %s' % (sA, sP, wp))
                if mode == 'x': a('s_xor_b32 %s, %s, %d' % (sC, sP, pol))
                else: a('s_lshr_b32 %s, %s, 2' % (sC, wp)); a('s_xor_b32 %s, %s, %d' % (sC, sC, pol))
                a('s_lshl1_add_u32 %s, %s, %s' % (sA, sA, sC))
                a('s_lshl3_add_u32 %s, %s, %s' % (sA, sA, gr))
                a('s_lshl_b32 %s, %s, 10' % (sA, sA))
                a('s_add_u32 %s, %s, 0x%x' % (dst, sA, WS_FLAG))
            return
        fs = int(self.o['fstride'])
        a('s_lshl_b32 %s, %s, %d' % (sA, sP, fs+6)); a('s_add_u32 %s, %s, 0x%x' % (sA, sA, WS_FLAG))
        a('s_lshr_b32 %s, %s, 4' % (sB, sT))
        a('s_lshl_b32 %s, %s, %d' % (sF, sW, fs+3)); a('s_add_u32 %s, %s, %s' % (sF, sF, sA))
        a('s_lshl_b32 %s, %s, %d' % (sC, sB, fs)); a('s_add_u32 %s, %s, %s' % (sF, sF, sC))
        a('s_lshl_b32 %s, %s, %d' % (sE, sB, fs+3)); a('s_add_u32 %s, %s, %s' % (sE, sE, sA))
        a('s_lshl_b32 %s, %s, %d' % (sC, sW, fs)); a('s_add_u32 %s, %s, %s' % (sE, sE, sC))
    def p2_probe_issue(self):
        a = self.a
        def f():
            a('s_bfe_u32 %s, %s, 0x30003' % (sA, sT)); a('s_lshl3_add_u32 %s, %s, %s' % (sA, sP, sA))
            a('s_lshr_b32 %s, %s, 6' % (sCh2, sT))
            a('s_lshl1_add_u32 %s, %s, %s' % (sA, sA, sCh2))
            a('s_and_b32 %s, %s, 7' % (sB, sT)); a('s_lshl3_add_u32 %s, %s, %s' % (sA, sA, sB))
            a('s_lshl_b32 %s, %s, 10' % (sA, sA)); a('s_add_u32 %s, %s, 0x%x' % (sA, sA, WS_FLAG2))
            a('s_xor_b32 %s, %s, 0x2000' % (sB, sA))
            a('s_mov_b64 s[92:93], 0')
            a('s_atomic_swap s92, s[24:25], %s glc' % sA)
            a('s_atomic_swap s93, s[24:25], %s glc' % sB)
        self.cond(sW, PW, f)
    def p2_probe_eval(self):
        a = self.a; T = V.T
        def f():
            a('s_waitcnt lgkmcnt(1)')
            a('s_nop %s' % self.o['pnop'])
            a('s_getreg_b32 %s, hwreg(HW_REG_IB_STS, 8, 4)' % sA)
            a('s_cmp_eq_u32 %s, 0' % sA)
            a('s_cselect_b32 %s, 1, 0' % sA)
            a('s_xor_b32 %s, %s, %s' % (sCh2, sCh2, sA))
            if self.o['force'] != '': a('s_xor_b32 %s, %s, %s' % (sCh2, sP, self.o['force']))
            if not self.o['ib3']:
                a('v_mov_b32 %s, %d' % (v(T), CNT)); a('v_mov_b32 %s, %s' % (v(T+1), sCh2))
                a('ds_write_b32 %s, %s offset:4' % (v(T), v(T+1)))
            if self.o['ib3']:
                l = self.label('nv')
                a('s_and_b32 %s, s2, 0x8f' % sA); a('s_cmp_lg_u32 %s, 8' % sA); a('s_cbranch_scc1 %s' % l)
                a('s_cmp_eq_u32 s2, 120'); a('s_cbranch_scc1 %s' % l)
                a('s_lshl_b32 s94, %s, 8' % sCh2); a('s_add_u32 s94, s94, 0x1001')
                a('s_atomic_add s94, s[20:21], 0x0')
                a(l+':')
        self.cond(sW, PW, f)
    def vote_read(self):
        a = self.a
        def f():
            a('s_mov_b32 s22, 256'); a('s_mov_b32 s23, 0x20000')
            a('v_mov_b32 %s, 0' % v(V.EL))
            a('buffer_load_dword %s, %s, %s, 0 offen sc1' % (v(V.dummy), v(V.EL), SDBG))
        self.cond(sW, PW, f)
    def vote_use(self):
        a = self.a; T = V.T
        def f():
            a('v_readfirstlane_b32 %s, %s' % (sA, v(V.dummy)))
            a('s_bfe_u32 %s, %s, 0x40008' % (sB, sA)); a('s_bfe_u32 %s, %s, 0x4000c' % (sC, sA))
            a('s_sub_u32 %s, %s, %s' % (sC, sC, sB))
            a('s_xor_b32 %s, %s, 1' % (sA, sP))
            a('s_cmp_ge_u32 %s, 4' % sB); a('s_cselect_b32 %s, %s, %s' % (sCh2, sA, sCh2))
            a('s_cmp_ge_u32 %s, 4' % sC); a('s_cselect_b32 %s, %s, %s' % (sCh2, sP, sCh2))
            a('v_mov_b32 %s, %s' % (v(T+1), sCh2))
            a('ds_write_b32 %s, %s offset:4' % (v(V.dummy2), v(T+1)))
        self.cond(sW, PW, f)
    def zero3(self):
        a = self.a
        a('s_sub_u32 %s, s2, 16' % sZ)
        a('s_and_b32 %s, %s, 0xffffffef' % (sZ, sZ))
        def f():
            a('s_lshr_b32 %s, s2, 5' % sA)
            a('s_lshl1_add_u32 %s, %s, %s' % (sA, sW, sA))
            a('s_lshl_b32 %s, %s, 13' % (sA, sA)); a('s_add_u32 %s, %s, 0x%x' % (sA, sA, WS_FLAG))
            for i in range(0, 8, 2): a('s_mov_b64 s[%d:%d], 0' % (84+i, 85+i))
            for i in range(8):
                a('s_atomic_swap s%d, s[24:25], %s offset:0x%x glc' % (84+i, sA, i << 10))
        self.cond(sZ, 0, f)
    def ready3(self):
        a = self.a
        def f():
            a('s_mov_b32 s94, 1')
            a('s_waitcnt lgkmcnt(0)')
            a('s_atomic_add s94, s[20:21], 0x0')
        self.cond(sZ, 0, f)
    def flag_addrs3(self):
        a = self.a
        a('s_lshr_b32 %s, %s, 4' % (sB, sT))
        for dst, wp, gr in ((sF, sW, sB), (sE, sB, sW)):
            a('s_lshl4_add_u32 %s, %s, %s' % (sC, wp, gr)); a('s_lshl_b32 %s, %s, 10' % (sC, sC))
            a('s_add_u32 %s, %s, 0x%x' % (dst, sC, WS_FLAG))
    def side3(self):
        a = self.a
        a('s_bfe_u32 %s, %s, 0x1000a' % (sCh2, sRv))
        a('s_xor_b32 %s, %s, %s' % (sCh2, sCh2, sP)); a('s_lshl_b32 %s, %s, 13' % (sCh2, sCh2))
        a('s_add_u32 %s, %s, %s' % (sF, sF, sCh2))
    def side3b(self):
        a = self.a
        a('s_add_u32 %s, %s, %s' % (sE, sE, sCh2))
        a('s_xor_b32 %s, %s, %s' % (sZp, sEst, sCh2))
    def side3c(self):
        a = self.a
        a('s_and_b32 %s, %s, 0x2000' % (sA, sZ)); a('s_xor_b32 %s, %s, %s' % (sA, sA, sCh2)); a('s_add_u32 %s, %s, %s' % (sEld, sEld, sA))
    def p2_choice_read(self):
        self.a('ds_read_b32 %s, %s offset:4' % (v(V.dummy), v(V.dummy2)))
    def p2_choice_use(self):
        a = self.a
        a('s_waitcnt lgkmcnt(8)')
        a('v_readfirstlane_b32 %s, %s' % (sCh2, v(V.dummy)))
        a('s_lshl_b32 %s, %s, 13' % (sA, sCh2))
        a('s_xor_b32 %s, %s, %s' % (sZp, sEst, sA))
        if self.o['ts']: a('s_mov_b32 s%d, %s' % (sTS+24, sCh2))
    def ex_addrs_ib2(self):
        a = self.a; T = V.T
        a('s_lshl_b32 %s, %s, 4' % (sB, sW)); a('s_xor_b32 %s, %s, %s' % (sB, sB, sT)); a('s_lshl_b32 %s, %s, 8' % (sB, sB))
        a('v_lshlrev_b32 %s, 4, %s' % (v(T), v(V.n)))
        a('v_lshl_add_u32 %s, %s, 10, %s' % (v(T), v(V.g), v(T)))
        a('v_xor_b32 %s, %s, %s' % (v(T), sB, v(T)))
        a('v_and_b32 %s, 0x6000, %s' % (v(T+1), v(T)))
        a('v_add_u32 %s, %s, %s' % (v(T), v(T), v(T+1)))
        a('v_lshl_add_u32 %s, %s, 18, %s' % (v(V.Est), v(V.g), v(T)))
        a('v_and_b32 %s, 0xdcff, %s' % (v(V.Eld0), v(T)))
        a('s_lshl3_add_u32 %s, %s, %s' % (sEst, sP, sW)); a('s_lshl_b32 %s, %s, 20' % (sEst, sEst))
        a('s_and_b32 %s, %s, 2' % (sA, sW)); a('s_lshl_b32 %s, %s, 12' % (sA, sA)); a('s_add_u32 %s, %s, %s' % (sEst, sEst, sA))
    def misc_ib2(self):
        a = self.a
        a('s_lshl_b32 %s, %s, 7' % (sEld, sP)); a('s_add_u32 %s, %s, %s' % (sEld, sEld, sT)); a('s_lshl_b32 %s, %s, 16' % (sEld, sEld))
        a('s_and_b32 %s, %s, 15' % (sA, sT)); a('s_add_u32 %s, %s, 8' % (sA, sA))
        a('s_lshl_b32 %s, %s, %s' % (sInc, sCh2, sA)); a('s_add_u32 %s, %s, 1' % (sInc, sInc))
        a('v_lshl_add_u32 %s, %s, 2, 8' % (v(V.dummy), v(V.g)))
        a('s_bfe_i32 %s, %s, 0x10005' % (sZ, sT))
    def ld_addrs_ib2(self):
        a = self.a; T = V.T
        a('s_xor_b32 %s, %s, %s' % (sA, sRv, sZ))
        a('v_lshrrev_b32 %s, %s, %s' % (v(T), v(V.dummy), sA))
        for q in range(4):
            a('v_bfe_u32 %s, %s, %d, 1' % (v(T+1), v(T), q))
            a('v_lshl_add_u32 %s, %s, 13, %s' % (v(T+2+q), v(T+1), v(V.Eld0)))
    def major_post(self):
        a = self.a; T = V.T
        def f():
            a('s_bfe_u32 %s, %s, 0x100008' % (sA, sRv)); a('s_bcnt1_i32_b32 %s, %s' % (sA, sA))
            a('s_cmp_gt_u32 %s, 8' % sA); a('s_cselect_b32 %s, 0x2000, 0' % sA)
            a('v_mov_b32 %s, %s' % (v(T), sA))
            a('ds_write_b32 %s, %s offset:8' % (v(V.dummy2), v(T)))
        self.cond(sW, 0, f)
    def major_read(self):
        self.a('ds_read_b32 %s, %s offset:8' % (v(V.dummy), v(V.dummy2)))
    def major_use(self):
        a = self.a
        a('v_readfirstlane_b32 %s, %s' % (sCh2, v(V.dummy)))
        a('s_xor_b32 %s, %s, %s' % (sZp, sEst, sCh2))
    def major_use2(self):
        a = self.a
        a('s_and_b32 %s, %s, 0x2000' % (sA, sZ)); a('s_xor_b32 %s, %s, %s' % (sA, sA, sCh2)); a('s_add_u32 %s, %s, %s' % (sEld, sEld, sA))
        a('s_lshr_b32 %s, %s, 4' % (sB, sT))
        for dst, wp, gr in ((sF, sW, sB), (sE, sB, sW)):
            a('s_lshl3_add_u32 %s, %s, %s' % (sA, sP, wp)); a('s_lshl4_add_u32 %s, %s, %s' % (sA, sA, gr)); a('s_lshl_b32 %s, %s, 10' % (sA, sA))
            a('s_add_u32 %s, %s, %s' % (sA, sA, sCh2)); a('s_add_u32 %s, %s, 0x%x' % (dst, sA, WS_FLAG2))

    def gz_issue(self):
        a = self.a
        a('s_sub_u32 %s, s2, 16' % sZ)
        a('s_and_b32 %s, %s, 0xffffffef' % (sZ, sZ))
        def f():
            a('s_lshr_b32 %s, s2, 5' % sZp)
            a('s_lshl1_add_u32 %s, %s, %s' % (sCh, sW, sZp))
            a('s_lshl_b32 %s, %s, 13' % (sCh, sCh)); a('s_add_u32 %s, %s, 0x%x' % (sCh, sCh, WS_FLAG))
            for i in range(0, 8, 2): a('s_mov_b64 s[%d:%d], 0' % (84+i, 85+i))
            for i in range(8):
                a('s_atomic_swap s%d, s[24:25], %s offset:0x%x glc' % (84+i, sCh, i << 10))
        self.cond(sZ, 0, f)
    def gz_publish(self):
        a = self.a
        def f():
            a('s_waitcnt lgkmcnt(0)')
            a('s_memtime s[84:85]')
            a('s_mov_b32 s88, 0')
            a('s_waitcnt lgkmcnt(0)')
            a('s_atomic_add s88, s[24:25], %s glc' % sCh)
            a('s_waitcnt lgkmcnt(0)')
            a('s_memtime s[86:87]')
            a('s_mul_i32 %s, %s, 13' % (sZp, sZp)); a('s_add_u32 %s, %s, 5' % (sZp, sZp))
            a('s_waitcnt lgkmcnt(0)')
            a('s_sub_u32 s84, s86, s84'); a('s_lshr_b32 s84, s84, 3'); a('s_min_u32 s84, s84, 0x3ff')
            a('s_lshl_b32 s84, s84, %s' % sZp); a('s_add_u32 s84, s84, 1')
            a('s_atomic_add s84, s[20:21], 0x0')
        self.cond(sZ, 0, f)
    def gz_read(self):
        a = self.a
        a('v_mov_b32 %s, 0' % v(V.EL))
        a('buffer_load_dword %s, %s, %s, 0 offen sc1' % (v(V.dummy), v(V.EL), SDBG))
    def gz_check(self):
        a = self.a; l0, l1 = self.label('gz'), self.label('gzok')
        a('s_waitcnt vmcnt(0)')
        a('v_readfirstlane_b32 %s, %s' % (sRv, v(V.dummy)))
        a('s_bitcmp1_b32 %s, 4' % sRv)
        a('s_cbranch_scc1 %s' % l1)
        a('s_mov_b32 %s, 0' % sCnt)
        a(l0+':')
        a('buffer_load_dword %s, %s, %s, 0 offen sc1' % (v(V.dummy), v(V.EL), SDBG))
        a('s_add_u32 %s, %s, 1' % (sCnt, sCnt))
        a('s_cmp_gt_u32 %s, 0x%x' % (sCnt, SPIN_MAX))
        a('s_waitcnt vmcnt(0)')
        a('v_readfirstlane_b32 %s, %s' % (sRv, v(V.dummy)))
        a('s_cbranch_scc1 %s' % l1)
        a('s_bitcmp0_b32 %s, 4' % sRv)
        a('s_cbranch_scc1 %s' % l0)
        a(l1+':')
        a('s_bfe_u32 %s, %s, 0xd0005' % (sA, sRv)); a('s_bfe_u32 %s, %s, 0xd0012' % (sB, sRv))
        a('s_cmp_lt_u32 %s, %s' % (sB, sA))
        a('s_cselect_b32 %s, 0x2000, 0' % sCh)
        if self.o['force'] != '': a('s_mov_b32 %s, %d' % (sCh, int(self.o['force']) << 13))
        a('s_xor_b32 %s, %s, %s' % (sEst, sEst, sCh))
        if self.o['ts']: a('s_mov_b32 s%d, %s' % (sTS+24, sRv))
    def gz_flag_addrs(self):
        a = self.a
        a('s_xor_b32 %s, %s, %s' % (sEld, sEld, sCh))
        a('s_lshr_b32 %s, %s, 4' % (sB, sT))
        a('s_lshl_b32 %s, %s, 13' % (sA, sP)); a('s_xor_b32 %s, %s, %s' % (sA, sA, sCh)); a('s_add_u32 %s, %s, 0x%x' % (sA, sA, WS_FLAG))
        for dst, wp, gr in ((sF, sW, sB), (sE, sB, sW)):
            a('s_lshl4_add_u32 %s, %s, %s' % (sC, wp, gr)); a('s_lshl_b32 %s, %s, 10' % (sC, sC))
            a('s_add_u32 %s, %s, %s' % (dst, sC, sA))

    def zero_flags_ib(self):
        a = self.a
        def f():
            a('s_waitcnt lgkmcnt(0)')
            a('s_lshl_b32 %s, %s, 13' % (sA, sCh)); a('s_add_u32 %s, %s, %s' % (sA, sA, sEst)); a('s_add_u32 %s, %s, 0x%x' % (sA, sA, WS_FLAG_IB))
            for i in range(0, 8, 2): a('s_mov_b64 s[%d:%d], 0' % (84+i, 85+i))
            for i in range(8):
                a('s_atomic_swap s%d, s[24:25], %s offset:0x%x glc' % (84+i, sA, i << 10))
        self.cond(sT, 1, f)
    def set_ready_ib(self):
        a = self.a
        def f():
            a('s_add_u32 %s, %s, 8' % (sA, sW)); a('s_lshl_b32 %s, %s, %s' % (sZ, sCh, sA)); a('s_add_u32 %s, %s, 1' % (sZ, sZ))
            a('s_waitcnt lgkmcnt(0)')
            a('s_atomic_add %s, s[20:21], %s' % (sZ, sRd))
        self.cond(sT, 1, f)
    def flag_side(self):
        a = self.a
        a('s_lshr_b32 %s, %s, 8' % (sRv, sRv))
        a('s_lshr_b32 %s, %s, %s' % (sA, sRv, sW)); a('s_and_b32 %s, %s, 1' % (sA, sA)); a('s_lshl_b32 %s, %s, 13' % (sA, sA)); a('s_add_u32 %s, %s, %s' % (sF, sF, sA))
    def flag_side2(self):
        a = self.a
        a('s_lshr_b32 %s, %s, 4' % (sB, sT))
        a('s_lshr_b32 %s, %s, %s' % (sA, sRv, sB)); a('s_and_b32 %s, %s, 1' % (sA, sA)); a('s_lshl_b32 %s, %s, 13' % (sA, sA)); a('s_add_u32 %s, %s, %s' % (sE, sE, sA))
    def zero_flags(self):
        a = self.a
        a('s_sub_u32 %s, s2, 16' % sZ)
        a('s_and_b32 %s, %s, 0xffffffef' % (sZ, sZ))
        def f():
            fs = int(self.o['fstride'])
            a('s_lshr_b32 %s, s2, 5' % sZp)
            a('s_lshl3_add_u32 %s, %s, %s' % (sA, sZp, sW))
            if self.o['fl'] != '':
                pol = int(self.o['fl'][1]); mode = self.o['fl'][0]; fs = 10
                if mode == 'x': a('s_xor_b32 %s, %s, %d' % (sC, sZp, pol))
                else: a('s_lshr_b32 %s, %s, 2' % (sC, sW)); a('s_xor_b32 %s, %s, %d' % (sC, sC, pol))
                a('s_lshl1_add_u32 %s, %s, %s' % (sA, sA, sC))
            a('s_lshl_b32 %s, %s, %d' % (sA, sA, fs+3)); a('s_add_u32 %s, %s, 0x%x' % (sA, sA, WS_FLAG))
            for i in range(0, 8, 2): a('s_mov_b64 s[%d:%d], 0' % (84+i, 85+i))
            for i in range(8):
                a('s_atomic_swap s%d, s[24:25], %s offset:0x%x glc' % (84+i, sA, i << fs))
            a('s_lshl_b32 %s, %s, 7' % (sZp, sZp))
        self.cond(sZ, 0, f)
    def set_ready(self):
        a = self.a
        def f():
            a('s_mov_b32 %s, 1' % sInc)
            a('s_waitcnt lgkmcnt(0)')
            a('s_atomic_add %s, s[20:21], %s' % (sInc, sZp))
        self.cond(sZ, 0, f)
    def ready_issue(self):
        self.a('s_load_dword %s, s[20:21], %s' % (sRv, sRd))
    def ready_check(self):
        a = self.a; l0, l1 = self.label('rdy'), self.label('rdyok')
        def notready():
            if self.o['ib3']: a('s_and_b32 %s, %s, 0xff' % (sA, sRv)); a('s_cmp_lt_u32 %s, 23' % sA)
            else: a('s_bitcmp0_b32 %s, 3' % sRv)
        notready()
        a('s_cbranch_scc1 %s' % l0)
        a(l1+':')
        def tail():
            lp = self.label('rdyl')
            a(l0+':')
            a('s_mov_b32 %s, 0' % sCnt)
            a('v_mov_b32 %s, 0' % v(V.O+1))
            a(lp+':')
            a('buffer_load_dword %s, %s, %s, %s offen sc1' % (v(V.O), v(V.O+1), SDBG, sRd))
            a('s_add_u32 %s, %s, 1' % (sCnt, sCnt))
            a('s_cmp_gt_u32 %s, 0x%x' % (sCnt, SPIN_MAX))
            a('s_waitcnt vmcnt(0)')
            a('v_readfirstlane_b32 %s, %s' % (sRv, v(V.O)))
            a('s_cbranch_scc1 %s' % l1)
            notready()
            a('s_cbranch_scc1 %s' % lp)
            a('s_branch %s' % l1)
        self.tail.append(tail)
    def set_flag(self, ex):
        a = self.a
        if not ((self.o['ib'] or self.o['ib2']) and ex == 0): a('s_mov_b32 %s, 0x%x' % (sInc, 1 << (24*ex)))
        a('s_atomic_add %s, s[24:25], %s' % (sInc, sF))
    def poll(self, ex, under=None):
        a = self.a; lp, ok = self.label('poll'), self.label('pollok')
        if under:
            a('s_mov_b32 %s, 0' % sRv)
            a('s_atomic_add %s, s[24:25], %s glc' % (sRv, sE))
            under()
            a('s_waitcnt lgkmcnt(0)')
            a('s_bitcmp1_b32 %s, %d' % (sRv, 4+24*ex))
            a('s_cbranch_scc1 %s' % ok)
        a('s_mov_b32 %s, 0' % sCnt)
        a(lp+':')
        a('s_mov_b32 %s, 0' % sRv)
        a('s_atomic_add %s, s[24:25], %s glc' % (sRv, sE))
        a('s_add_u32 %s, %s, 1' % (sCnt, sCnt))
        a('s_cmp_gt_u32 %s, 0x%x' % (sCnt, SPIN_MAX))
        a('s_waitcnt lgkmcnt(0)')
        a('s_cbranch_scc1 %s' % ok)
        if self.o['slp']:
            a('s_bitcmp1_b32 %s, %d' % (sRv, 4+24*ex))
            a('s_cbranch_scc1 %s' % ok)
            a('s_sleep %s' % self.o['slp'])
            a('s_branch %s' % lp)
        else:
            a('s_bitcmp0_b32 %s, %d' % (sRv, 4+24*ex))
            a('s_cbranch_scc1 %s' % lp)
        a(ok+':')
        if self.o['pbar']: a('s_barrier')
    def code_pf(self, name):
        a = self.a
        l = self.label('pc')
        a('s_getpc_b64 s[28:29]')
        a(l+':')
        a('s_sub_u32 s28, s28, %s-%s' % (l, name))
        a('s_subb_u32 s29, s29, 0')
        a('v_lshlrev_b32 %s, 5, v0' % v(V.O+6))
        a('global_load_dword %s, %s, s[28:29]' % (v(V.dummy), v(V.O+6)))

    def code_spf(self, name):
        a = self.a
        l = self.label('pc')
        a('s_getpc_b64 s[28:29]')
        a(l+':')
        a('s_sub_u32 s28, s28, %s-%s' % (l, name))
        a('s_subb_u32 s29, s29, 0')
        a('s_lshr_b32 %s, s2, 4' % sA)
        a('s_lshl3_add_u32 %s, %s, %s' % (sA, sA, sW))
        a('s_lshl_b32 %s, %s, 7' % (sA, sA))
        a('s_load_dword s94, s[28:29], %s' % sA)

    def ifelse(self, reg, val, feq, fne, eq_first=False):
        a = self.a; l0, l1 = self.label('ie'), self.label('iend')
        if eq_first:
            a('s_cmp_lg_u32 %s, %d' % (reg, val)); a('s_cbranch_scc1 %s' % l0)
            feq(); a('s_branch %s' % l1); a(l0+':'); fne()
        else:
            a('s_cmp_eq_u32 %s, %d' % (reg, val)); a('s_cbranch_scc1 %s' % l0)
            fne(); a('s_branch %s' % l1); a(l0+':'); feq()
        a(l1+':')
    def touch(self, rnd):
        a = self.a
        a('s_mov_b64 exec, 0')
        for k in range(7):
            a('s_cmp_eq_u32 %s, %d' % (sW, k)); a('s_cbranch_scc1 stub_%d' % (8*rnd+k))
        a('s_branch stub_%d' % (8*rnd+7))
        a('ret_%d:' % rnd)
        a('s_mov_b64 exec, -1')

    def cond(self, reg, val, f):
        a = self.a; l = self.label('c')
        a('s_cmp_lg_u32 %s, %d' % (reg, val)); a('s_cbranch_scc1 %s' % l)
        f()
        a(l+':')

    def build_one(self):
        a = self.a; o = self.o
        name = NAME + '_kernel'
        self.kernel_head(name); end = self.label('end')
        self.prologue1(end)
        wA, wB = o['wA'], o['wB']
        def wat(pos, rows=(0, 1, 2, 3)):
            f = lambda: [self.w_dma1(i) for i in rows]
            if wA == pos and wB == pos: f()
            elif wA == pos: self.cond(sP, 0, f)
            elif wB == pos: self.cond(sP, 1, f)
        self.wat = wat
        bd = int(o['bdelay'])
        if o['touch'] == 'pre': self.touch(0)
        a('s_waitcnt lgkmcnt(0)')
        gz = o['gz']
        if gz: self.gz_issue()
        elif o['ib']: self.probe_issue()
        elif o['ib3']: self.p2_probe_issue(); self.zero3(); a('s_mov_b32 %s, 0' % sRd)
        elif o['ib2']: self.p2_probe_issue(); self.zero_flags()
        else: self.zero_flags()
        misc = lambda: (self.srds(), self.calc_k0(), self.w_prep(), self.gz_flag_addrs() if gz else self.flag_addrs3() if o['ib3'] else self.flag_addrs(), self.misc_ib2() if o['ib2'] else 0)
        if wB == 'first':
            def fb():
                misc(); self.w_dma()
                if bd == 0: self.p1_issue()
            self.ifelse(sP, 1, fb, self.p1_issue)
        elif bd: self.cond(sP, 0, self.p1_issue)
        else: self.p1_issue()
        if o['ib']: self.probe_eval(); self.zero_flags_ib()
        if gz: self.gz_publish(); a('s_mov_b32 s22, 256'); a('s_mov_b32 s23, 0x20000')
        if o['touch'] == 'post': self.touch(0)
        if o['touch']: self.cond(sT, 0, lambda: self.touch(1))
        if o['ib2']:
            self.p1_addrs(); self.p2_probe_eval(); self.gen_F16(); self.coop_init()
        else: self.p1_addrs(); self.gen_F16(); self.coop_init()
        if bd == 1: self.cond(sP, 1, self.p1_issue)
        self.gen_M2()
        if o['ib']: self.ex_addrs_ib(); self.set_ready_ib()
        elif gz: self.ex_addrs()
        elif o['ib3']: self.ex_addrs_ib2(); self.ready3()
        elif o['ib2']: self.ex_addrs_ib2(); self.set_ready()
        else: self.ex_addrs(); self.set_ready()
        X = [misc, self.coop_gen, lambda: self.gen_B(True, False), lambda: (self.p2_addrs(), self.w_addr())]
        nearly = max(0, bd-2)
        def early():
            for f in X[(1 if wB == 'first' else 0):nearly]: f()
            self.p1_issue()
        if bd >= 2: self.cond(sP, 1, early)
        def Xat(k):
            if k < nearly or (k == 0 and wB == 'first'): self.cond(sP, 0, X[k])
            else: X[k]()
        if gz: self.p1_compute(0, self.gz_read, None, lambda: (self.gz_check(), self.spec_early()))
        elif o['ib3']:
            self.vote_read()
            self.p1_compute(0, lambda: (self.vote_use(), self.spec_early()), None, self.p2_choice_use, self.p2_choice_read)
        elif o['ib2']: self.p1_compute(0, self.spec_early, None, self.p2_choice_use, self.p2_choice_read)
        else: self.p1_compute(0, self.spec_early)
        self.stamp()
        if not gz: self.ready_issue()
        Xat(0)
        n = 0
        Xat(1)
        self.coop_post()
        a('s_waitcnt vmcnt(%d) lgkmcnt(0)' % n)
        self.stamp()
        if not gz: self.ready_check()
        if o['ib']: self.flag_side()
        if o['ib3']: self.side3()
        self.set_flag(0)
        if o['ib']: self.flag_side2()
        if o['ib3']: self.side3b()
        def under1():
            self.w_sload()
            Xat(2); self.B_dup()
            Xat(3)
            self.w_special()
        self.poll(0, under1)
        self.stamp()
        if self.o.get('fine'):
            a('s_memrealtime s[%d:%d]' % (sTS+2*self.nts, sTS+2*self.nts+1)); self.nts += 1
            self.fstamp()
        if o['ib']: self.ld_addrs_ib()
        if o['ib2']: self.ld_addrs_ib2()
        self.p2_issue()
        if o['ib3']: self.side3c()
        elif o['ib2']: self.major_post()
        self.coop_wait(); self.coop_read()
        self.p2_addrs2()
        a('s_waitcnt vmcnt(4)')
        self.w_edge()
        self.p2_compute(True)
        self.stamp()
        if o['ib2'] and not o['ib3']: self.major_use2()
        self.gen_M3()
        a('s_waitcnt vmcnt(0)')
        self.stamp()
        self.set_flag(1)
        self.poll(1, self.p3_addrs)
        self.stamp()
        self.p3_issue()
        self.p3_soff()
        self.p3_compute()
        if o['ts']:
            self.stamp(); a('s_waitcnt vmcnt(0)'); self.stamp()
            if 'diag' in o:
                i = int(o['diag']); lp = self.label('dg')
                a('s_waitcnt lgkmcnt(0)')
                if 'xw' in o:
                    a('s_getreg_b32 %s, hwreg(HW_REG_XCC_ID, 0, 4)' % sA)
                    a('s_sub_u32 %s, %s, s2' % (sA, sA)); a('s_and_b32 %s, %s, 7' % (sA, sA)); a('s_mul_i32 %s, %s, 400' % (sA, sA))
                    if int(o['xw']) >= 0:
                        a('s_cmp_eq_u32 s2, %s' % o['xw']); a('s_cselect_b32 %s, %s, 0' % (sA, sA))
                else:
                    a('s_sub_u32 %s, s%d, s%d' % (sA, sTS+2*i, sTS))
                    a('s_lshl_b32 %s, %s, 1' % (sA, sA))
                a('s_add_u32 %s, %s, 3000' % (sA, sA))
                a(lp+':')
                a('s_memrealtime s[28:29]')
                a('s_waitcnt lgkmcnt(0)')
                a('s_sub_u32 %s, s28, s%d' % (sB, sTS))
                a('s_cmp_lt_u32 %s, %s' % (sB, sA))
                a('s_cbranch_scc1 %s' % lp)
            else:
                if o['ib'] or o['gz'] or o['ib2']: self.nts += 1
                self.dump_stamps(0)
        a(end+':'); a('s_endpgm'); self.flush_tail()
        if o['touch']: self.insert_stubs(name)
        a.raw('.fill (%s+16384-.)/4, 4, 0xbf810000' % name)
        launch = '; @launch grid=(256,1,1) block=(512,1,1) lds=%d\n' % LDS_TOTAL
        return self.finish(launch, [name])

    def insert_stubs(self, name):
        import subprocess, re
        from asmlib import Ins
        a = self.a
        txt = '.amdgcn_target "amdgcn-amd-amdhsa--gfx950"\n.text\n' + a.text() + ''.join('stub_%d:\n' % k for k in range(16)) + 's_endpgm\nspec_tab:\n'
        open('pass1.s', 'w').write(txt)
        subprocess.check_call(['clang', '-x', 'assembler', '-target', 'amdgcn-amd-amdhsa', '-mcpu=gfx950', '-c', 'pass1.s', '-o', 'pass1.o'])
        dis = subprocess.check_output(['llvm-objdump', '-d', '--mcpu=gfx950', 'pass1.o']).decode()
        addrs = [int(m.group(1), 16) for m in re.finditer(r'// ([0-9A-F]{12}):', dis)]
        real = [i for i, x in enumerate(a.ins) if x.kind != 'none']
        assert len(addrs) == len(real) + 1, (len(addrs), len(real))
        size = {real[k]: addrs[k+1] - addrs[k] for k in range(len(real))}
        pos = ENTRY_OFF; nxt = ENTRY_OFF + 1024 - 256
        nxt = (nxt + 1023)//1024*1024
        out = []; k = 0; prev = None; ez = False
        for i, x in enumerate(a.ins):
            if i in size:
                glued = prev is not None and (prev.op == 's_getpc_b64' or 'rel32' in x.text)
                if prev is not None and prev.text.strip() == 's_mov_b64 exec, 0': ez = True
                if prev is not None and prev.text.strip() == 's_mov_b64 exec, -1': ez = False
                glued = glued or ez
                if pos >= nxt and k < 16 and not glued:
                    out.append(Ins('stub_%d:' % k)); out.append(Ins('s_cbranch_execz ret_%d' % (k >> 3)))
                    pos += 4; k += 1; nxt += 1024
                pos += size[i]; prev = x
            out.append(x)
        self.code_end = pos
        while k < 16:
            out.append(Ins('stub_%d:' % k)); out.append(Ins('s_branch ret_%d' % (k >> 3))); k += 1
        a.ins = out

    def finish(self, launch, names):
        hdr = '; GFNet spectral filter (two heads): 2-D FFT via bf16 MFMA DFT stages. Generated by dev/gen.py\n' + launch
        s = hdr + '.amdgcn_target "amdgcn-amd-amdhsa--gfx950"\n.text\n' + self.a.text()
        s += '.section .rodata,"a"\n' + '\n'.join(self.kd(n) for n in names) + '\n' + self.spec_table() + '\n'
        return s

if __name__ == '__main__':
    mode = sys.argv[1]; out = sys.argv[2]
    opt = {}
    for kv in sys.argv[3:]:
        k, x = kv.split('=')
        opt[k] = {'True': True, 'False': False}.get(x, x.replace('+', ' '))
    g = Gen(mode, **opt)
    s = g.build_three() if mode == 'three' else g.build_one()
    assert g.a.verify() == 0
    open(out, 'w').write(s)
    print('vgprs', NVGPR, 'lds', LDS_TOTAL, 'nops', g.a.nops, 'lines', len(g.a.ins))
```

```python
import sys, struct, math
import numpy as np
from asmlib import Asm

NAME = 'concat_heads__spectral_gfnet__spectral_gfnet__prompt'

def f2u(x): return struct.unpack('<I', struct.pack('<f', x))[0]
def lit(x): return '0x%08x' % f2u(x)
def bf16bits(x):
    u = f2u(float(x)); return ((u + 0x7FFF + ((u >> 16) & 1)) >> 16) & 0xFFFF
def sigma(m): return (m & 1) | ((m >> 1) & 1) << 3 | ((m >> 2) & 1) << 1 | ((m >> 3) & 1) << 2 | (m & 16)

S11 = 2.0**-11
SPIN_MAX = 0x4000
ENTRY_OFF = 0x300
SENT = 0x13572468
WS_FLAG_IB = 32 << 20
WS_FLAG2 = 33 << 20
PW = 7
sCh2 = 's100'
R0 = 0
R1 = 33024
WL = 66048
SCR = WL + 8*4*1056
SCR_B = SCR + 36*256
TABL = SCR_B + 8192
CNT = TABL + 16384
LDS_TOTAL = CNT + 64
WS_U1 = 0
WS_U2 = 8 << 20
WS_FLAG = 32 << 20
WS_TS = 72 << 20
WS_SIZE = 80 << 20

class V: pass
_n = [0]
def alloc(n, align=1):
    b = (_n[0] + align - 1)//align*align
    _n[0] = b + n
    return b
V.tid = alloc(1); V.lane = alloc(1)
for nm in 'g n Xoff Est X0w X0r0 X0r1 X1w X1r X2w X2r WP WM l16 dummy dummy2'.split(): setattr(V, nm, alloc(1))
V.Ooff, V.X3w0, V.X3w1, V.X3r = V.Xoff, V.X0w, V.X0r0, V.X0r1
V.T = alloc(10, 1)
V.EL = alloc(4); V.Eld = V.EL+3; V.Eld0 = V.EL+3
V.O = alloc(16, 4)
V.DA = alloc(32, 4)
V.DB = alloc(32, 4)
V.L = V.DB
V.F16 = alloc(8, 4)
V.M2 = alloc(16, 4)
V.F32 = alloc(32, 4)
V.TW = alloc(32, 4)
V.W = alloc(32, 4)
V.B = alloc(12, 4)
V.Bp = alloc(8, 4)
V.WF = alloc(4)
NVGPR = _n[0]
assert NVGPR <= 256, NVGPR
def v(i): return 'v%d' % i
def vr(i, n): return 'v[%d:%d]' % (i, i+n-1)

SX, SWR, SWI, SOUT, SDBG, SWS = 's[4:7]', 's[8:11]', 's[12:15]', 's[16:19]', 's[20:23]', 's[24:27]'
sP, sT, sW, sSB, sCB, sK0 = 's30', 's31', 's32', 's33', 's34', 's35'
sKP, sKM = 's36', 's37'
sA, sB, sC, sD, sE, sF = 's40', 's41', 's42', 's43', 's44', 's45'
sEst, sEld, sCnt, sSpec = 's46', 's47', 's48', 's49'
sO = ['s52', 's53', 's54', 's55']
sRd, sRv, sInc, sWL = 's38', 's39', 's50', 's51'
ZT = 16
sDP, sDM, sZ, sZp, sCh = 's96', 's97', 's98', 's99', 's95'
sTS = 56

class Gen:
    def __init__(self, mode='one', **opt):
        self.mode = mode
        self.o = dict(ldx='', ldw='', st1='sc1', st2='sc1', sto='sc1', ld1='sc1', ld2='sc1', ts=False, stagger=True, pf=False, spf=False, touch='pre', fst='sc1', fld='sc1', slp='', fsh='', pbar=False, shear=True, prio=True, wA='postX1', wB='postX1', bdelay='4', optx=False, numa='', fl='', ib=False, ib2=False, ib3=False, pnop='15', gz=False, force='', skew=True, fstride=12)
        self.o.update(opt)
        self.a = Asm()
        self.lab = 0
        self.nts = 0
        self.tail = []

    def tstride(self): return 65536 if (self.o['numa'] != '' or self.o['ib'] or self.o['ib2']) else 32768
    def ubase(self, ex): return (ex << 24) if self.o['ib2'] else (ex << 20) if self.o['ib'] else (WS_U2 if ex else WS_U1)
    def eld(self, q, ex=0): return v(V.T+2+q) if (self.o['ib2'] and ex == 0) else v(V.EL+q) if self.o['ib'] else v(V.Eld)
    def est(self): return sZp if self.o['ib2'] else sEst
    def label(self, p='L'):
        self.lab += 1
        return '%s_%d' % (p, self.lab)

    def stamp(self):
        if not self.o['ts'] or self.o.get('fine'): return
        self.a('s_memrealtime s[%d:%d]' % (sTS+2*self.nts, sTS+2*self.nts+1))
        self.nts += 1

    def fstamp(self):
        if not self.o.get('fine'): return
        self.a('s_memtime s[%d:%d]' % (sTS+2*self.nts, sTS+2*self.nts+1))
        self.nts += 1

    def dump_stamps(self, slot0=0):
        if not self.o['ts']: return
        a = self.a
        a('s_waitcnt lgkmcnt(0)')
        a('s_lshl_b32 %s, s2, 3' % sA); a('s_add_u32 %s, %s, %s' % (sA, sA, sW)); a('s_lshl_b32 %s, %s, 7' % (sA, sA))
        a('s_add_u32 %s, %s, 0x%x' % (sA, sA, WS_TS + slot0*4))
        a('s_mov_b64 exec, 1')
        a('v_mov_b32 %s, 0' % v(V.T+1))
        for i in range(self.nts):
            a('v_mov_b32 %s, s%d' % (v(V.T), sTS+2*i))
            a('buffer_store_dword %s, %s, %s, %s offen offset:%d' % (v(V.T), v(V.T+1), SWS, sA, 4*i))
            a('s_nop 1')
        a('s_mov_b64 exec, -1')
        self.nts = 0

    def prologue(self, end):
        a = self.a
        a('s_cmp_ge_u32 s2, 0x100')
        a('s_cbranch_scc1 %s' % end)
        self.stamp()
        a('s_bfe_u32 %s, s2, 0x10003' % sP)
        a('s_mul_i32 s3, %s, 24' % sP)
        a('s_add_u32 s28, s0, s3')
        a('s_addc_u32 s29, s1, 0')
        a('s_load_dwordx2 s[4:5], s[28:29], 0x0')
        a('s_load_dwordx2 s[8:9], s[28:29], 0x8')
        a('s_load_dwordx2 s[12:13], s[28:29], 0x10')
        a('s_load_dwordx2 s[16:17], s[0:1], 0x30')
        a('s_load_dwordx2 s[20:21], s[0:1], 0x38')
        a('s_load_dwordx2 s[24:25], s[0:1], 0x40')
        a('v_lshrrev_b32 %s, 6, v0' % v(V.T))
        a('v_and_b32 %s, 63, v0' % v(V.lane))
        a('v_readfirstlane_b32 %s, %s' % (sW, v(V.T)))
        a('s_and_b32 %s, s2, 7' % sA)
        a('s_xor_b32 %s, %s, 2' % (sA, sA))
        a('s_lshl_b32 %s, %s, 4' % (sT, sA))
        a('s_lshr_b32 %s, s2, 4' % sB)
        a('s_or_b32 %s, %s, %s' % (sT, sT, sB))
        a('s_lshl_b32 %s, %s, 1' % (sCB, sA))
        a('s_bfe_u32 %s, %s, 0x10001' % (sC, sB))
        a('s_or_b32 %s, %s, %s' % (sCB, sCB, sC))
        a('s_bfe_u32 %s, %s, 0x20002' % (sSB, sB))
        a('s_lshl_b32 %s, %s, 1' % (sSB, sSB))
        a('s_and_b32 %s, %s, 1' % (sC, sB))
        a('s_or_b32 %s, %s, %s' % (sSB, sSB, sC))
        a('s_mov_b32 s6, 0x400000'); a('s_mov_b32 s7, 0x20000')
        a('s_mov_b32 s10, 2101248'); a('s_mov_b32 s11, 0x20000')
        a('s_mov_b32 s14, 2101248'); a('s_mov_b32 s15, 0x20000')
        a('s_mov_b32 s18, 0x800000'); a('s_mov_b32 s19, 0x20000')
        a('s_mov_b32 s22, 256'); a('s_mov_b32 s23, 0x20000')
        a('s_mov_b32 s26, 0x%x' % WS_SIZE); a('s_mov_b32 s27, 0x20000')
        a('v_lshrrev_b32 %s, 4, %s' % (v(V.g), v(V.lane)))
        a('v_and_b32 %s, 15, %s' % (v(V.n), v(V.lane)))
        a('v_lshlrev_b32 %s, 4, %s' % (v(V.l16), v(V.lane)))

    def prologue1(self, end):
        a = self.a; T = V.T
        a('s_cmp_ge_u32 s2, 0x100')
        a('s_cbranch_scc1 %s' % end)
        a('s_bfe_u32 %s, s2, 0x%x' % (sP, 0x10002 if self.o['optx'] else 0x10003))
        a('s_mul_i32 s3, %s, 24' % sP)
        a('s_load_dwordx2 s[4:5], s[0:1], s3')
        a('s_load_dwordx2 s[24:25], s[0:1], 0x40')
        a('s_load_dwordx2 s[8:9], s[0:1], s3 offset:8')
        a('s_load_dwordx2 s[12:13], s[0:1], s3 offset:16')
        a('s_load_dwordx2 s[16:17], s[0:1], 0x30')
        a('s_load_dwordx2 s[20:21], s[0:1], 0x38')
        self.stamp()
        a('v_lshrrev_b32 %s, 6, v0' % v(T))
        a('v_and_b32 %s, 63, v0' % v(V.lane))
        a('v_readfirstlane_b32 %s, %s' % (sW, v(T)))
        if self.o['optx']:
            a('s_and_b32 %s, s2, 3' % sA)
            a('s_bfe_u32 %s, s2, 0x10003' % sB)
            a('s_lshl1_add_u32 %s, %s, %s' % (sA, sA, sB))
        else: a('s_and_b32 %s, s2, 7' % sA)
        a('s_lshr_b32 %s, s2, 4' % sB)
        a('s_lshl4_add_u32 %s, %s, %s' % (sT, sA, sB))
        a('s_bfe_u32 %s, %s, 0x10001' % (sC, sB))
        a('s_lshl1_add_u32 %s, %s, %s' % (sCB, sA, sC))
        a('s_lshr_b32 %s, %s, 2' % (sSB, sB))
        a('s_and_b32 %s, %s, 1' % (sC, sB))
        a('s_lshl1_add_u32 %s, %s, %s' % (sSB, sSB, sC))
        a('s_mov_b32 s6, 0x400000'); a('s_mov_b32 s7, 0x20000')
        a('v_lshrrev_b32 %s, 4, %s' % (v(V.g), v(V.lane)))
        a('v_lshlrev_b32 %s, 4, %s' % (v(V.l16), v(V.lane)))
        a('v_and_b32 %s, 8, v0' % v(T))
        a('v_lshlrev_b32 %s, 11, %s' % (v(T), v(T)))
        a('v_lshl_add_u32 %s, %s, 20, %s' % (v(T), v(V.g), v(T)))
        a('v_and_b32 %s, 0x70, %s' % (v(T+1), v(V.l16)))
        a('v_add_u32 %s, %s, %s' % (v(V.Xoff), v(T), v(T+1)))
        a('s_lshl4_add_u32 %s, %s, %s' % (sA, sW, sSB))
        a('s_lshl4_add_u32 %s, %s, %s' % (sA, sA, sCB))
        a('s_lshl_b32 %s, %s, 7' % (sO[0], sA))
        for r in range(1, 4): a('s_add_u32 %s, %s, 0x%x' % (sO[r], sO[0], r*262144))
        a('v_and_b32 %s, 15, %s' % (v(V.n), v(V.lane)))
        a('s_mov_b32 s26, 0x%x' % WS_SIZE); a('s_mov_b32 s27, 0x20000')
        a('s_lshl_b32 %s, %s, 7' % (sRd, sP))
    def srds(self):
        a = self.a
        a('s_mov_b32 s10, 2101248'); a('s_mov_b32 s11, 0x20000')
        a('s_mov_b32 s14, 2101248'); a('s_mov_b32 s15, 0x20000')
        a('s_mov_b32 s18, 0x800000'); a('s_mov_b32 s19, 0x20000')
        a('s_mov_b32 s22, 256'); a('s_mov_b32 s23, 0x20000')

    def probe_issue(self):
        a = self.a
        a('s_lshl3_add_u32 %s, %s, %s' % (sEst, sP, sW)); a('s_lshl_b32 %s, %s, 21' % (sEst, sEst))
        a('s_and_b32 %s, %s, 0x60' % (sA, sT)); a('s_add_u32 %s, %s, %s' % (sA, sA, sT)); a('s_lshl_b32 %s, %s, 8' % (sA, sA))
        a('s_add_u32 %s, %s, %s' % (sA, sA, sEst))
        for i in range(8): a('s_mov_b32 s%d, 0x%x' % (84+i, SENT))
        for k, side in ((0, 0), (0, 1), (1, 1), (1, 0), (2, 1), (2, 0), (3, 0), (3, 1)):
            a('s_load_dword s%d, s[24:25], %s offset:0x%x glc' % (84+4*side+k, sA, k*65536+side*8192))
    def probe_eval(self):
        a = self.a
        a('s_mov_b32 %s, 0' % sA); a('s_mov_b32 %s, 0' % sB)
        a('s_waitcnt lgkmcnt(4)')
        for k in range(4):
            a('s_cmp_lg_u32 s%d, 0x%x' % (84+k, SENT)); a('s_addc_u32 %s, %s, 0' % (sA, sA))
            a('s_cmp_lg_u32 s%d, 0x%x' % (88+k, SENT)); a('s_addc_u32 %s, %s, 0' % (sB, sB))
        a('s_cmp_gt_u32 %s, %s' % (sB, sA))
        a('s_cselect_b32 %s, 1, 0' % sCh)
        if self.o['force'] != '':
            a('s_and_b32 %s, %s, 1' % (sC, sW)); a('s_xor_b32 %s, %s, %s' % (sC, sC, sP)); a('s_xor_b32 %s, %s, %s' % (sCh, sC, self.o['force']))
        if self.o['ts']:
            a('s_lshl4_add_u32 s%d, %s, %s' % (sTS+24, sA, sB))
    def ex_addrs_ib(self):
        a = self.a; T = V.T
        a('s_lshl_b32 %s, %s, 4' % (sB, sW)); a('s_xor_b32 %s, %s, %s' % (sB, sB, sT)); a('s_lshl_b32 %s, %s, 8' % (sB, sB))
        a('v_lshlrev_b32 %s, 4, %s' % (v(T), v(V.n)))
        a('v_lshl_add_u32 %s, %s, 10, %s' % (v(T), v(V.g), v(T)))
        a('v_xor_b32 %s, %s, %s' % (v(T), sB, v(T)))
        a('v_and_b32 %s, 0x6000, %s' % (v(T+1), v(T)))
        a('v_add_u32 %s, %s, %s' % (v(T), v(T), v(T+1)))
        a('v_lshl_add_u32 %s, %s, 18, %s' % (v(V.Est), v(V.g), v(T)))
        a('v_and_b32 %s, 0xdcff, %s' % (v(V.Eld), v(T)))
        a('s_lshl_b32 %s, %s, 13' % (sA, sCh)); a('s_add_u32 %s, %s, %s' % (sEst, sEst, sA))
        a('s_lshr_b32 %s, %s, 4' % (sA, sT)); a('s_lshl3_add_u32 %s, %s, %s' % (sA, sP, sA)); a('s_lshl_b32 %s, %s, 21' % (sA, sA))
        a('s_and_b32 %s, %s, 15' % (sEld, sT)); a('s_lshl_b32 %s, %s, 16' % (sEld, sEld)); a('s_add_u32 %s, %s, %s' % (sEld, sEld, sA))
    def ld_addrs_ib(self):
        a = self.a; T = V.T
        a('v_lshrrev_b32 %s, %s, %s' % (v(T), v(V.dummy), sRv))
        for q in range(4):
            a('v_bfe_u32 %s, %s, %d, 1' % (v(T+1), v(T), q))
            a('v_lshl_add_u32 %s, %s, 13, %s' % (v(V.EL+q), v(T+1), v(V.Eld)))

    def ex_addrs(self):
        a = self.a
        if self.o['skew']:
            T = V.T
            a('s_lshl_b32 %s, %s, 4' % (sB, sW)); a('s_xor_b32 %s, %s, %s' % (sB, sB, sT)); a('s_lshl_b32 %s, %s, 8' % (sB, sB))
            a('v_lshlrev_b32 %s, 4, %s' % (v(T), v(V.n)))
            a('v_lshl_add_u32 %s, %s, 10, %s' % (v(T), v(V.g), v(T)))
            a('v_xor_b32 %s, %s, %s' % (v(T), sB, v(T)))
            if self.o['numa'] != '':
                pol = int(self.o['numa'][1]); mode = self.o['numa'][0]
                if mode == 'p':
                    a('v_and_b32 %s, 0x6000, %s' % (v(T+1), v(T)))
                    a('v_add_u32 %s, %s, %s' % (v(T), v(T), v(T+1)))
                    a('v_lshl_add_u32 %s, %s, 18, %s' % (v(V.Est), v(V.g), v(T)))
                    a('v_and_b32 %s, 0xdcff, %s' % (v(V.Eld), v(T)))
                    a('s_lshr_b32 %s, %s, 1' % (sA, sW)); a('s_lshr_b32 %s, %s, 6' % (sD, sT)); a('s_xor_b32 %s, %s, %s' % (sA, sA, sD))
                    a('s_lshr_b32 %s, %s, 5' % (sC, sT)); a('s_lshr_b32 %s, %s, 2' % (sD, sW)); a('s_xor_b32 %s, %s, %s' % (sC, sC, sD))
                    if pol: a('s_xor_b32 %s, %s, 1' % (sA, sA)); a('s_xor_b32 %s, %s, 1' % (sC, sC))
                    a('s_and_b32 %s, %s, 1' % (sA, sA)); a('s_and_b32 %s, %s, 1' % (sC, sC))
                    a('s_lshl_b32 %s, %s, 13' % (sA, sA)); a('s_lshl_b32 %s, %s, 13' % (sC, sC))
                    a('s_lshl_b32 %s, %s, 25' % (sD, sP)); a('s_add_u32 %s, %s, %s' % (sA, sA, sD)); a('s_add_u32 %s, %s, %s' % (sC, sC, sD))
                    a('s_lshl_b32 %s, %s, 20' % (sEst, sW)); a('s_add_u32 %s, %s, %s' % (sEst, sEst, sA))
                    a('s_lshl_b32 %s, %s, 16' % (sEld, sT)); a('s_add_u32 %s, %s, %s' % (sEld, sEld, sC))
                    return
                a('v_and_b32 %s, 0x6000, %s' % (v(T+1), v(T)))
                a('v_add_u32 %s, %s, %s' % (v(T), v(T), v(T+1)))
                a('v_lshl_add_u32 %s, %s, 18, %s' % (v(V.Est), v(V.g), v(T)))
                a('v_and_b32 %s, 0xdcff, %s' % (v(V.Eld), v(T)))
                if mode == 'x':
                    a('s_bfe_u32 %s, %s, 0x10001' % (sA, sW)); a('s_xor_b32 %s, %s, %s' % (sA, sA, sP))
                    a('s_bfe_u32 %s, %s, 0x10005' % (sC, sT)); a('s_xor_b32 %s, %s, %s' % (sC, sC, sP))
                    if pol: a('s_xor_b32 %s, %s, 1' % (sA, sA)); a('s_xor_b32 %s, %s, 1' % (sC, sC))
                    a('s_lshl_b32 %s, %s, 13' % (sA, sA)); a('s_lshl_b32 %s, %s, 13' % (sC, sC))
                    a('s_lshl_b32 %s, %s, 20' % (sEst, sW)); a('s_add_u32 %s, %s, %s' % (sEst, sEst, sA))
                    a('s_lshl_b32 %s, %s, 16' % (sEld, sT)); a('s_add_u32 %s, %s, %s' % (sEld, sEld, sC))
                else:
                    a('s_lshr_b32 %s, %s, 1' % (sA, sW)); a('s_lshr_b32 %s, %s, 2' % (sD, sW)); a('s_xor_b32 %s, %s, %s' % (sA, sA, sD))
                    a('s_lshr_b32 %s, %s, 5' % (sC, sT)); a('s_lshr_b32 %s, %s, 6' % (sD, sT)); a('s_xor_b32 %s, %s, %s' % (sC, sC, sD))
                    if pol: a('s_xor_b32 %s, %s, 1' % (sA, sA)); a('s_xor_b32 %s, %s, 1' % (sC, sC))
                    a('s_and_b32 %s, %s, 1' % (sA, sA)); a('s_and_b32 %s, %s, 1' % (sC, sC))
                    a('s_lshl_b32 %s, %s, 13' % (sA, sA)); a('s_lshl_b32 %s, %s, 13' % (sC, sC))
                    a('s_lshl_b32 %s, %s, 22' % (sD, sP)); a('s_add_u32 %s, %s, %s' % (sA, sA, sD)); a('s_add_u32 %s, %s, %s' % (sC, sC, sD))
                    a('s_and_b32 %s, %s, 3' % (sEst, sW)); a('s_lshl_b32 %s, %s, 20' % (sEst, sEst)); a('s_add_u32 %s, %s, %s' % (sEst, sEst, sA))
                    a('s_and_b32 %s, %s, 63' % (sEld, sT)); a('s_lshl_b32 %s, %s, 16' % (sEld, sEld)); a('s_add_u32 %s, %s, %s' % (sEld, sEld, sC))
                return
            a('v_lshl_add_u32 %s, %s, 17, %s' % (v(V.Est), v(V.g), v(T)))
            a('v_and_b32 %s, 0x7cff, %s' % (v(V.Eld), v(T)))
            a('s_lshl_b32 %s, %s, 22' % (sA, sP))
            a('s_lshl_b32 %s, %s, 19' % (sEst, sW)); a('s_add_u32 %s, %s, %s' % (sEst, sEst, sA))
            a('s_lshl_b32 %s, %s, 15' % (sEld, sT)); a('s_add_u32 %s, %s, %s' % (sEld, sEld, sA))
            return
        a('v_lshlrev_b32 %s, 4, %s' % (v(V.T), v(V.n)))
        a('v_lshl_add_u32 %s, %s, 17, %s' % (v(V.Est), v(V.g), v(V.T)))
        a('v_lshl_add_u32 %s, %s, 10, %s' % (v(V.Eld), v(V.g), v(V.T)))
        a('s_lshl_b32 %s, %s, 22' % (sA, sP))
        a('s_lshl_b32 %s, %s, 19' % (sEst, sW)); a('s_add_u32 %s, %s, %s' % (sEst, sEst, sA))
        a('s_lshl_b32 %s, %s, 8' % (sB, sT)); a('s_add_u32 %s, %s, %s' % (sEst, sEst, sB))
        a('s_lshl_b32 %s, %s, 15' % (sEld, sT)); a('s_add_u32 %s, %s, %s' % (sEld, sEld, sA))
        a('s_lshl_b32 %s, %s, 12' % (sB, sW)); a('s_add_u32 %s, %s, %s' % (sEld, sEld, sB))

    def trig(self, x, re, im, conj_re=None, conj_im=None):
        a = self.a; c, s = V.T+8, V.T+9
        a('v_cos_f32 %s, %s' % (v(c), v(x)))
        a('v_sin_f32 %s, %s' % (v(s), v(x)))
        a('v_cvt_pk_bf16_f32 %s, %s, %s' % (v(re), v(c), v(s)))
        a('v_cvt_pk_bf16_f32 %s, -%s, %s' % (v(im), v(s), v(c)))
        if conj_re is not None:
            a('v_cvt_pk_bf16_f32 %s, %s, -%s' % (v(conj_re), v(c), v(s)))
            a('v_cvt_pk_bf16_f32 %s, %s, %s' % (v(conj_im), v(s), v(c)))

    def gen_F16(self):
        a = self.a; T = V.T
        a('v_cvt_f32_u32 %s, %s' % (v(T), v(V.n)))
        a('v_mul_f32 %s, %s, %s' % (v(T), lit(1/16), v(T)))
        a('v_cvt_f32_u32 %s, %s' % (v(T+1), v(V.g)))
        a('v_mul_f32 %s, 4.0, %s' % (v(T+1), v(T+1)))
        a('v_mul_f32 %s, %s, %s' % (v(T+2), v(T), v(T+1)))
        for r in range(4):
            self.trig(T+2, V.F16+r, V.F16+4+r)
            if r < 3: a('v_add_f32 %s, %s, %s' % (v(T+2), v(T+2), v(T)))

    def gen_M2(self):
        a = self.a; T = V.T
        a('v_cvt_f32_u32 %s, %s' % (v(T+1), v(V.g)))
        a('v_mul_f32 %s, 4.0, %s' % (v(T+1), v(T+1)))
        def normal():
            a('v_lshl_add_u32 %s, %s, 4, %s' % (v(T), v(V.n), sW))
            a('v_cvt_f32_u32 %s, %s' % (v(T), v(T)))
            a('v_mul_f32 %s, %s, %s' % (v(T), lit(1/256), v(T)))
            a('v_mul_f32 %s, %s, %s' % (v(T+2), v(T), v(T+1)))
            for r in range(4):
                self.trig(T+2, V.M2+r, V.M2+4+r, V.M2+8+r, V.M2+12+r)
                if r < 3: a('v_add_f32 %s, %s, %s' % (v(T+2), v(T+2), v(T)))
        def w0():
            a('v_lshrrev_b32 %s, 1, %s' % (v(T), v(V.n)))
            a('v_cvt_f32_u32 %s, %s' % (v(T), v(T)))
            a('v_lshlrev_b32 %s, 31, %s' % (v(T+3), v(V.n)))
            a('v_add_f32 %s, 0.5, %s' % (v(T+4), v(T)))
            a('v_xor_b32 %s, %s, %s' % (v(T+3), lit(1/16), v(T+3)))
            a('v_mul_f32 %s, %s, %s' % (v(T), v(T), v(T+3)))
            a('v_mul_f32 %s, %s, %s' % (v(T+4), v(T+4), v(T+3)))
            a('v_cmp_ne_u32 vcc, 1, %s' % v(V.n))
            a('v_cndmask_b32 %s, 0.5, %s, vcc' % (v(T), v(T)))
            for ts in range(2):
                d = T+4*ts
                a('v_mul_f32 %s, %s, %s' % (v(T+2), v(d), v(T+1)))
                for r in range(4):
                    self.trig(T+2, V.M2+8*ts+r, V.M2+8*ts+4+r)
                    if r < 3: a('v_add_f32 %s, %s, %s' % (v(T+2), v(T+2), v(d)))
        self.ifelse(sW, 0, w0, normal)

    def gen_M3(self):
        a = self.a; T = V.T
        a('v_cvt_f32_u32 %s, %s' % (v(T), v(V.n)))
        a('v_mul_f32 %s, %s, %s' % (v(T+1), lit(1/256), v(T)))
        a('v_mul_f32 %s, %s, %s' % (v(T), lit(1/16), v(T)))
        def normal():
            a('v_lshl_add_u32 %s, %s, 6, %s' % (v(T+2), v(V.g), sW))
            a('v_cvt_f32_u32 %s, %s' % (v(T+2), v(T+2)))
            a('v_mul_f32 %s, %s, %s' % (v(T+2), v(T+2), v(T+1)))
            for r in range(4):
                self.trig(T+2, V.M2+r, V.M2+4+r, V.M2+8+r, V.M2+12+r)
                if r < 3: a('v_add_f32 %s, %s, %s' % (v(T+2), v(T+2), v(T)))
        def w0():
            for ts in range(2):
                a('v_lshlrev_b32 %s, 5, %s' % (v(T+2), v(V.g)))
                if ts: a('v_add_u32 %s, 8, %s' % (v(T+2), v(T+2)))
                a('v_cvt_f32_u32 %s, %s' % (v(T+2), v(T+2)))
                a('v_mul_f32 %s, %s, %s' % (v(T+2), v(T+2), v(T+1)))
                for eb in range(2):
                    b = V.M2+8*ts
                    self.trig(T+2, b+2*eb, b+4+2*eb, b+2*eb+1, b+4+2*eb+1)
                    if eb == 0: a('v_add_f32 %s, %s, %s' % (v(T+2), v(T+2), v(T)))
            a('s_mov_b64 exec, 0xffff')
            a('v_lshlrev_b32 %s, 15, %s' % (v(T+2), v(V.n)))
            a('v_and_b32 %s, 0x8000, %s' % (v(T+2), v(T+2)))
            a('v_or_b32 %s, 0x3f80, %s' % (v(V.M2+1), v(T+2)))
            a('v_lshlrev_b32 %s, 16, %s' % (v(V.M2+5), v(V.M2+1)))
            a('s_mov_b64 exec, -1')
        self.ifelse(sW, 0, w0, normal)

    def sigma_lane(self, dst):
        a = self.a; T = V.T
        a('v_and_b32 %s, 17, %s' % (v(dst), v(V.lane)))
        a('v_bfe_u32 %s, %s, 2, 2' % (v(T+7), v(V.lane)))
        a('v_lshl_add_u32 %s, %s, 1, %s' % (v(dst), v(T+7), v(dst)))
        a('v_bfe_u32 %s, %s, 1, 1' % (v(T+7), v(V.lane)))
        a('v_lshl_add_u32 %s, %s, 3, %s' % (v(dst), v(T+7), v(dst)))

    def gen_F32TW(self):
        a = self.a; T = V.T
        self.sigma_lane(T)
        a('v_cvt_f32_u32 %s, %s' % (v(T), v(T)))
        a('v_mul_f32 %s, %s, %s' % (v(T), lit(1/1024), v(T)))
        a('v_lshrrev_b32 %s, 5, %s' % (v(T+1), v(V.lane)))
        a('v_cvt_f32_u32 %s, %s' % (v(T+1), v(T+1)))
        a('v_add_f32 %s, %s, %s' % (v(T+1), v(T+1), v(T+1)))
        a('v_mul_f32 %s, %s, %s' % (v(T+1), v(T+1), v(T)))
        for rho in range(16):
            k = sigma(8*(rho >> 2) + (rho & 3))
            a('v_fmamk_f32 %s, %s, %s, %s' % (v(T+2), v(T), lit(float(k)), v(T+1)))
            a('v_mul_f32 %s, %s, %s' % (v(T+3), lit(32.0), v(T+2)))
            a('v_cos_f32 %s, %s' % (v(V.TW+rho), v(T+2)))
            a('v_sin_f32 %s, %s' % (v(V.TW+16+rho), v(T+2)))
            self.trig(T+3, V.F32+rho, V.F32+16+rho)

    def coop_gen(self):
        a = self.a; T = V.T; X = V.DA
        self.sigma_lane(T)
        a('v_cvt_f32_u32 %s, %s' % (v(T), v(T)))
        a('v_mul_f32 %s, %s, %s' % (v(T), lit(1/1024), v(T)))
        a('s_and_b32 %s, %s, 1' % (sA, sW)); a('s_lshl_b32 %s, %s, 3' % (sA, sA))
        a('s_and_b32 %s, %s, 2' % (sB, sW)); a('s_lshl_b32 %s, %s, 1' % (sB, sB)); a('s_add_u32 %s, %s, %s' % (sA, sA, sB))
        a('s_and_b32 %s, %s, 4' % (sB, sW)); a('s_lshl_b32 %s, %s, 2' % (sB, sB)); a('s_add_u32 %s, %s, %s' % (sA, sA, sB))
        a('v_lshrrev_b32 %s, 5, %s' % (v(T+1), v(V.lane)))
        a('v_lshl_add_u32 %s, %s, 1, %s' % (v(T+1), v(T+1), sA))
        a('v_cvt_f32_u32 %s, %s' % (v(T+1), v(T+1)))
        a('v_mul_f32 %s, %s, %s' % (v(T+2), v(T+1), v(T)))
        for e in range(2):
            a('v_mul_f32 %s, %s, %s' % (v(T+3), lit(32.0), v(T+2)))
            if self.o['shear']:
                a('v_mul_f32 %s, 0.5, %s' % (v(T+4), v(T+2)))
                a('v_cos_f32 %s, %s' % (v(T+5), v(T+4)))
                a('v_sin_f32 %s, %s' % (v(T+6), v(T+4)))
                a('v_rcp_f32 %s, %s' % (v(T+5), v(T+5)))
                a('v_mul_f32 %s, %s, %s' % (v(X+4+e), v(T+6), v(T+5)))
                a('v_fma_f32 %s, %s, %s, 1.0' % (v(T+5), v(X+4+e), v(X+4+e)))
                a('v_rcp_f32 %s, %s' % (v(T+6), v(T+5)))
                a('v_fma_f32 %s, -%s, %s, 1.0' % (v(T+5), v(T+5), v(T+6)))
                a('v_fmac_f32 %s, %s, %s' % (v(T+6), v(T+5), v(T+6)))
                a('v_mul_f32 %s, -2.0, %s' % (v(T+6), v(T+6)))
                a('v_mul_f32 %s, %s, %s' % (v(X+6+e), v(T+6), v(X+4+e)))
            else:
                a('v_cos_f32 %s, %s' % (v(X+4+e), v(T+2)))
                a('v_sin_f32 %s, %s' % (v(X+6+e), v(T+2)))
            self.trig(T+3, X+e, X+2+e)
            if e == 0: a('v_add_f32 %s, %s, %s' % (v(T+2), v(T+2), v(T)))
        a('s_lshr_b32 %s, %s, 1' % (sA, sW)); a('s_lshl_b32 %s, %s, 10' % (sA, sA))
        a('s_and_b32 %s, %s, 1' % (sB, sW)); a('s_lshl_b32 %s, %s, 3' % (sB, sB)); a('s_add_u32 %s, %s, %s' % (sA, sA, sB))
        a('s_add_u32 %s, %s, %d' % (sA, sA, TABL))
        a('v_add_u32 %s, %s, %s' % (v(T), sA, v(V.l16)))
        for k in range(4):
            a('ds_write_b64 %s, %s offset:%d' % (v(T), vr(X+2*k, 2), 4096*k))
    def coop_init(self):
        a = self.a; T = V.T
        a('v_mov_b32 %s, %d' % (v(V.dummy2), CNT)); a('v_mov_b32 %s, 0' % v(T))
        a('ds_write_b32 %s, %s' % (v(V.dummy2), v(T)))
    def coop_post(self):
        a = self.a; T = V.T
        a('v_mov_b32 %s, 1' % v(T+1))
        a('ds_add_u32 %s, %s' % (v(V.dummy2), v(T+1)))
    def coop_wait(self):
        a = self.a; T = V.T; lp, ok = self.label('cw'), self.label('cwok')
        a('s_mov_b32 %s, 0' % sCnt)
        a(lp+':')
        a('ds_read_b32 %s, %s' % (v(T), v(V.dummy2)))
        a('s_add_u32 %s, %s, 1' % (sCnt, sCnt))
        a('s_cmp_gt_u32 %s, 0x%x' % (sCnt, SPIN_MAX*8))
        a('s_waitcnt lgkmcnt(0)')
        a('s_cbranch_scc1 %s' % ok)
        a('v_cmp_gt_u32 vcc, 0x200, %s' % v(T))
        a('s_cbranch_vccnz %s' % lp)
        a(ok+':')
    def coop_read(self):
        a = self.a; T = V.T
        assert V.TW == V.F32+32
        a('v_add_u32 %s, %d, %s' % (v(T), TABL, v(V.l16)))
        for k in range(16):
            a('ds_read_b128 %s, %s offset:%d' % (vr(V.F32+4*k, 4), v(T), 1024*k))

    def calc_k0(self):
        a = self.a
        a('s_lshr_b32 %s, %s, 4' % (sA, sT))
        a('s_and_b32 %s, %s, 15' % (sB, sT))
        a('s_lshl_b32 %s, %s, 4' % (sK0, sB))
        a('s_add_u32 %s, %s, %s' % (sK0, sK0, sA))
        a('s_lshr_b32 %s, %s, 2' % (sC, sB)); a('s_lshl_b32 %s, %s, 5' % (sC, sC))
        a('s_and_b32 %s, %s, 1' % (sD, sB)); a('s_lshl_b32 %s, %s, 4' % (sD, sD)); a('s_add_u32 %s, %s, %s' % (sC, sC, sD))
        a('s_and_b32 %s, %s, 2' % (sD, sB)); a('s_lshl_b32 %s, %s, 2' % (sD, sD)); a('s_add_u32 %s, %s, %s' % (sC, sC, sD))
        a('s_cmp_eq_u32 %s, 0' % sA)
        a('s_cselect_b32 %s, %s, %s' % (sK0, sC, sK0))
        a('s_cmp_eq_u32 %s, 0' % sT)
        a('s_cselect_b32 %s, 7, 8' % sA)
        a('s_lshl_b32 %s, %s, %s' % (sKP, sW, sA))
        a('s_add_u32 %s, %s, %s' % (sKP, sKP, sK0))
        a('s_sub_u32 %s, 0x800, %s' % (sKM, sKP))
        a('s_cmp_eq_u32 %s, 0' % sKP)
        a('s_cselect_b32 %s, 0x400, %s' % (sKM, sKM))
        a('s_cselect_b32 %s, 1, 0' % sSpec)
        a('s_mul_i32 %s, %s, 1026' % (sKP, sKP))
        a('s_mul_i32 %s, %s, 1026' % (sKM, sKM))

    def wq(self, rho): return (rho & 1) + 8*((rho >> 1) & 1) + 4*((rho >> 2) & 1)
    def w_prep(self):
        a = self.a
        a('s_mul_i32 %s, %s, 4224' % (sWL, sW))
        a('s_add_u32 %s, %s, %d' % (sWL, sWL, WL))
        a('s_and_b32 %s, %s, 2' % (sA, sKP))
        a('s_add_u32 %s, %s, %s' % (sDP, sKP, sA)); a('s_add_u32 %s, %s, %s' % (sDM, sKM, sA))
    def w_dma1(self, i):
        a = self.a
        srd, so = [(SWR, sDP), (SWI, sDP), (SWR, sDM), (SWI, sDM)][i]
        a('s_add_u32 m0, %s, %d' % (sWL, 1056*i))
        a('buffer_load_dwordx4 %s, %s, %s offen %s lds' % (v(V.l16), srd, so, self.o['ldw']))
    def w_dma(self):
        for i in range(4): self.w_dma1(i)
    def w_sload(self):
        a = self.a; T = V.T
        a('s_mov_b64 exec, 15')
        a('v_mov_b32 %s, %s' % (v(T), sKP)); a('v_mov_b32 %s, %s' % (v(T+1), sKM))
        a('s_mov_b64 vcc, 10')
        a('v_cndmask_b32 %s, %s, %s, vcc' % (v(T), v(T), v(T+1)))
        a('v_and_b32 %s, 2, %s' % (v(T+1), v(V.lane)))
        a('v_lshl_add_u32 %s, %s, 9, %s' % (v(T), v(T+1), v(T)))
        a('buffer_load_short_d16_hi %s, %s, %s, 0 offen' % (v(V.WF), v(T), SWR))
        a('buffer_load_short_d16_hi %s, %s, %s, 0 offen' % (v(V.WF+1), v(T), SWI))
        a('s_mov_b64 exec, -1')
    def w_edge_rl(self):
        a = self.a
        for l in range(4):
            for im in range(2):
                a('v_readlane_b32 s%d, %s, %d' % (84+2*l+im, v(V.WF+im), l))
    def w_edge(self):
        a = self.a; T = V.T
        self.w_edge_rl()
        for i, (x, y, op) in enumerate(((84, 86, 'add'), (85, 87, 'sub'), (90, 88, 'add'), (91, 89, 'sub'))):
            a('v_mov_b32 %s, s%d' % (v(T), y))
            a('v_%s_f32 %s, s%d, %s' % (op, v(V.WF+i), x, v(T)))
            a('v_mul_f32 %s, 0.5, %s' % (v(V.WF+i), v(V.WF+i)))
        a('s_mov_b64 s[92:93], 1')
    def w_addr(self):
        a = self.a; T = V.T
        self.sigma_lane(T)
        a('v_lshrrev_b32 %s, 5, %s' % (v(T+1), v(V.lane)))
        a('v_lshlrev_b32 %s, 7, %s' % (v(T+1), v(T+1)))
        a('v_lshl_add_u32 %s, %s, 1, %s' % (v(T), v(T), v(T+1)))
        a('s_and_b32 %s, %s, 2' % (sD, sKP)); a('s_sub_u32 %s, %s, %s' % (sD, sWL, sD))
        a('v_add_u32 %s, %s, %s' % (v(V.WP), sD, v(T)))
        a('s_add_u32 %s, %s, %d' % (sD, sD, 1024-832))
        a('v_sub_u32 %s, %s, %s' % (v(V.WM), sD, v(T)))
    def w_read(self, rho, dst=None, swap=False):
        a = self.a; dst = V.W if dst is None else dst
        for im in range(2):
            if rho < 8: ad, off = V.WP, 64*self.wq(rho) + (2112 if swap else 0)
            else: ad, off = V.WM, 64*(13-self.wq(rho)) + (0 if swap else 2112)
            a('ds_read_u16_d16_hi %s, %s offset:%d' % (v(dst+16*im+rho), v(ad), off+1056*im))
    def w_fix(self, half):
        a = self.a
        for im in range(2):
            r = V.W+8*half+16*im
            a('v_cndmask_b32 %s, %s, %s, s[92:93]' % (v(r), v(r), v(V.WF+2*half+im)))
    def w_regs_early(self):
        a = self.a
        for rho in range(16): self.w_read(rho)
        a('s_waitcnt lgkmcnt(0)')
        self.w_fix(0); self.w_fix(1)
    def w_special(self):
        a = self.a; T = V.T
        l0, l1 = self.label('Wspec'), self.label('Wend')
        a('s_cmp_eq_u32 %s, 1' % sSpec)
        a('s_cbranch_scc1 %s' % l0)
        a(l1+':')
        def tail():
            X = V.DA
            a(l0+':')
            for rho in range(16): self.w_read(rho)
            for rho in range(16): self.w_read(rho, X, True)
            a('s_waitcnt lgkmcnt(0) vmcnt(0)')
            self.w_edge_rl()
            a('s_mov_b64 exec, 1')
            for r in (V.W+16, V.W+24, X+16, X+24): a('v_mov_b32 %s, 0' % v(r))
            a('v_mov_b32 %s, s90' % v(V.W+8)); a('v_mov_b32 %s, s88' % v(X+8))
            a('s_mov_b64 exec, -1')
            for i in range(32):
                a('v_add_f32 %s, %s, %s' % (v(T+3), v(V.W+i), v(X+i)))
                if (i & 15) < 8: a('v_sub_f32 %s, %s, %s' % (v(X+i), v(V.W+i), v(X+i)))
                else: a('v_sub_f32 %s, %s, %s' % (v(X+i), v(X+i), v(V.W+i)))
                a('v_mov_b32 %s, %s' % (v(V.W+i), v(T+3)))
            a('v_add_u32 %s, %d, %s' % (v(T+1), SCR_B, v(V.l16)))
            for i in range(8):
                a('ds_write_b128 %s, %s offset:%d' % (v(T+1), vr(X+4*i, 4), 1024*i))
            a('s_waitcnt lgkmcnt(0)')
            a('s_branch %s' % l1)
        self.tail.append(tail)

    def B_dup(self):
        a = self.a
        a('v_mov_b32 %s, %s' % (v(V.B+4), v(V.B))); a('v_mov_b32 %s, %s' % (v(V.B+5), v(V.B+1)))
        a('v_mov_b32 %s, %s' % (v(V.B+10), v(V.B+6))); a('v_mov_b32 %s, %s' % (v(V.B+11), v(V.B+7)))
    def gen_B(self, early=False, dup=True):
        a = self.a; T = V.T
        l0, l1 = self.label('Bspec'), self.label('Bend')
        a('s_cmp_eq_u32 %s, 0' % sT)
        a('s_cbranch_scc1 %s' % (l1 if early else l0))
        c, s = T+8, T+9
        a('v_lshrrev_b32 %s, 1, %s' % (v(T), v(V.n)))
        a('v_lshl_add_u32 %s, %s, 8, %s' % (v(T+1), v(T), sK0))
        a('v_cvt_f32_u32 %s, %s' % (v(T+1), v(T+1)))
        a('v_mul_f32 %s, %s, %s' % (v(T+1), lit(1/2048), v(T+1)))
        a('v_cvt_f32_u32 %s, %s' % (v(T+2), v(V.g)))
        a('v_add_f32 %s, %s, %s' % (v(T+2), v(T+2), v(T+2)))
        a('v_and_b32 %s, 1, %s' % (v(T+3), v(V.n)))
        a('v_cvt_f32_u32 %s, %s' % (v(T+3), v(T+3)))
        a('v_mul_f32 %s, %s, %s' % (v(T+4), lit(0.25), v(T+3)))
        a('v_mul_f32 %s, %s, %s' % (v(T+5), v(T+1), v(T+2)))
        for sbb in range(2):
            for half in range(2):
                a('v_%s_f32 %s, %s, %s' % ('sub' if half else 'add', v(T+6), v(T+5), v(T+4)))
                a('v_cos_f32 %s, %s' % (v(c), v(T+6)))
                a('v_sin_f32 %s, %s' % (v(s), v(T+6)))
                a('v_mul_f32 %s, %s, %s' % (v(c), lit(S11), v(c)))
                a('v_mul_f32 %s, %s, %s' % (v(s), lit(S11), v(s)))
                ng = '-' if half else ''
                a('v_cvt_pk_bf16_f32 %s, %s, %s%s' % (v(V.B+2*sbb+half), v(c), ng, v(s)))
                a('v_cvt_pk_bf16_f32 %s, -%s, %s%s' % (v(V.B+6+2*sbb+half), v(s), ng, v(c)))
            if sbb == 0: a('v_add_f32 %s, %s, %s' % (v(T+5), v(T+5), v(T+1)))
        a('v_cvt_f32_u32 %s, %s' % (v(T), v(T)))
        a('v_lshlrev_b32 %s, 31, %s' % (v(T+4), v(V.n)))
        a('v_xor_b32 %s, %s, %s' % (v(T), v(T), v(T+4)))
        a('v_xor_b32 %s, %s, %s' % (v(T+4), lit(S11), v(T+4)))
        a('v_lshl_add_u32 %s, %s, 9, %s' % (v(T+1), v(V.g), sK0))
        a('v_cvt_f32_u32 %s, %s' % (v(T+1), v(T+1)))
        a('v_mul_f32 %s, %s, %s' % (v(T+1), lit(1/2048), v(T+1)))
        a('v_mul_f32 %s, %s, %s' % (v(T+5), v(T+1), v(T)))
        a('v_fmac_f32 %s, 0.5, %s' % (v(T+5), v(T+3)))
        for ii in range(2):
            a('v_cos_f32 %s, %s' % (v(c), v(T+5)))
            a('v_sin_f32 %s, %s' % (v(s), v(T+5)))
            a('v_mul_f32 %s, %s, %s' % (v(T+6), v(T+4), v(c)))
            a('v_mul_f32 %s, %s, %s' % (v(T+7), v(T+4), v(s)))
            a('v_mul_f32 %s, %s, %s' % (v(c), lit(S11), v(c)))
            a('v_mul_f32 %s, %s, %s' % (v(s), lit(S11), v(s)))
            a('v_cvt_pk_bf16_f32 %s, %s, %s' % (v(V.Bp+2*ii), v(c), v(T+7)))
            a('v_cvt_pk_bf16_f32 %s, -%s, %s' % (v(V.Bp+4+2*ii), v(s), v(T+6)))
            a('v_cvt_pk_bf16_f32 %s, -%s, %s' % (v(V.Bp+2*ii+1), v(s), v(T+6)))
            a('v_cvt_pk_bf16_f32 %s, -%s, -%s' % (v(V.Bp+4+2*ii+1), v(c), v(T+7)))
            if ii == 0: a('v_fmac_f32 %s, %s, %s' % (v(T+5), lit(0.125), v(T)))
        a(l1+':')
        if dup: self.B_dup()
        def tail():
            a(l0+':')
            if not early: self.spec_load(); a('s_waitcnt vmcnt(0)')
            a('s_branch %s' % l1)
        if not early: self.tail.append(tail)
    def spec_load(self):
        a = self.a
        a('s_getpc_b64 s[28:29]')
        a('s_add_u32 s28, s28, spec_tab@rel32@lo+4')
        a('s_addc_u32 s29, s29, spec_tab@rel32@hi+12')
        a('global_load_dwordx4 %s, %s, s[28:29]' % (vr(V.B, 4), v(V.l16)))
        a('global_load_dwordx4 %s, %s, s[28:29] offset:1024' % (vr(V.B+6, 4), v(V.l16)))
        a('global_load_dwordx4 %s, %s, s[28:29] offset:2048' % (vr(V.Bp, 4), v(V.l16)))
        a('global_load_dwordx4 %s, %s, s[28:29] offset:3072' % (vr(V.Bp+4, 4), v(V.l16)))
    def spec_early(self):
        a = self.a
        def g():
            self.srds()
            a('s_mov_b32 %s, 0' % sDP); a('s_mov_b32 %s, %d' % (sDM, 1024*1026)); a('s_mov_b32 %s, %d' % (sWL, WL))
            self.w_dma()
        def f():
            self.spec_load(); self.cond(sW, 0, g)
        self.cond(sT, 0, f)

    def spec_table(self):
        tab = np.zeros((4, 64, 4, 2))
        for lane in range(64):
            m, g = lane & 15, lane >> 4
            for r in range(4):
                t, c = m >> 1, m & 1; sb, hf = 2*g + (r >> 1), r & 1
                if hf == (t & 1):
                    th = 2*math.pi*sb*t/16
                    tab[0, lane, r, c] = (2*S11 if t else S11)*math.cos(th)
                    tab[1, lane, r, c] = -2*S11*math.sin(th) if t else S11*(-1.0)**sb
                sb, hf = m >> 1, m & 1; t, c = 2*g + (r >> 1), r & 1
                if hf == (t & 1):
                    th = 2*math.pi*sb*t/16
                    if t: cre, cim = 2*math.cos(th), -2*math.sin(th)
                    else: cre, cim = 1.0, (-1.0)**sb
                    pl = 2 + (1 - c)
                    tab[pl, lane, r, 0] = S11*cim
                    tab[pl, lane, r, 1] = S11*cre
        tab[abs(tab) < 1e-12] = 0
        out = ['.p2align 6', '.type spec_tab,@object', 'spec_tab:']
        w = [bf16bits(tab[p, l, r, 0]) | bf16bits(tab[p, l, r, 1]) << 16 for p in range(4) for l in range(64) for r in range(4)]
        for i in range(0, len(w), 8):
            out.append('.long ' + ','.join('0x%x' % x for x in w[i:i+8]))
        return '\n'.join(out)

    def p1_load(self):
        a = self.a; T = V.T
        a('v_bfe_u32 %s, %s, 3, 1' % (v(T), v(V.lane)))
        a('v_lshlrev_b32 %s, 14, %s' % (v(T), v(T)))
        a('v_lshl_add_u32 %s, %s, 20, %s' % (v(T), v(V.g), v(T)))
        a('v_and_b32 %s, 0x70, %s' % (v(T+1), v(V.l16)))
        a('v_add_u32 %s, %s, %s' % (v(V.Xoff), v(T), v(T+1)))
        a('s_lshl_b32 %s, %s, 15' % (sO[0], sW))
        a('s_lshl_b32 %s, %s, 11' % (sA, sSB)); a('s_add_u32 %s, %s, %s' % (sO[0], sO[0], sA))
        a('s_lshl_b32 %s, %s, 7' % (sA, sCB)); a('s_add_u32 %s, %s, %s' % (sO[0], sO[0], sA))
        for r in range(1, 4): a('s_add_u32 %s, %s, 0x%x' % (sO[r], sO[0], r*262144))
    def p1_issue(self):
        a = self.a
        for r in range(4):
            a('buffer_load_dwordx4 %s, %s, %s, %s offen %s' % (vr(V.L+4*r, 4), v(V.Xoff), SX, sO[r], self.o['ldx']))
    def p1_addrs(self):
        a = self.a; T = V.T
        a('v_xor_b32 %s, %s, %s' % (v(T), sSB, v(V.lane)))
        a('v_and_b32 %s, 1, %s' % (v(T), v(T)))
        a('v_mul_u32_u24 %s, 16448, %s' % (v(T), v(T)))
        a('v_lshl_add_u32 %s, %s, 12, %s' % (v(T), v(V.g), v(T)))
        a('v_and_b32 %s, 14, %s' % (v(T+1), v(V.lane)))
        a('v_lshl_add_u32 %s, %s, 3, %s' % (v(T), v(T+1), v(T)))
        a('s_lshr_b32 %s, %s, 2' % (sA, sW)); a('s_lshl_b32 %s, %s, 9' % (sA, sA))
        a('s_and_b32 %s, %s, 1' % (sB, sW)); a('s_lshl_b32 %s, %s, 8' % (sB, sB)); a('s_add_u32 %s, %s, %s' % (sA, sA, sB))
        a('s_and_b32 %s, %s, 2' % (sB, sW)); a('s_lshl_b32 %s, %s, 6' % (sB, sB)); a('s_add_u32 %s, %s, %s' % (sA, sA, sB))
        if R0: a('s_add_u32 %s, %s, %d' % (sA, sA, R0))
        a('v_add_u32 %s, %s, %s' % (v(V.X0w), sA, v(T)))
        self.tr_lane(T, 512, 128)
        a('s_lshl_b32 %s, %s, 10' % (sA, sW))
        a('s_sub_u32 %s, 0x4000, %s' % (sB, sA))
        a('s_cmp_eq_u32 %s, 0' % sW)
        a('s_cselect_b32 %s, 0x2000, %s' % (sB, sB))
        if R0: a('s_add_u32 %s, %s, %d' % (sA, sA, R0)); a('s_add_u32 %s, %s, %d' % (sB, sB, R0))
        a('v_add_u32 %s, %s, %s' % (v(V.X0r0), sA, v(T)))
        a('v_add_u32 %s, %s, %s' % (v(V.X0r1), sB, v(T)))
    def tr_lane(self, dst, g1s, g0s, b3s=64):
        a = self.a; t = V.T+7
        sh = lambda x: int(math.log2(x))
        a('v_and_b32 %s, 0x30, %s' % (v(dst), v(V.l16)))
        for bit, st in ((2, 8), (3, b3s), (4, g0s), (5, g1s)):
            a('v_bfe_u32 %s, %s, %d, 1' % (v(t), v(V.lane), bit))
            a('v_lshl_add_u32 %s, %s, %d, %s' % (v(dst), v(t), sh(st), v(dst)))

    def mf16(self, d, A, B):
        self.a('v_mfma_f32_16x16x32_bf16 %s, %s, %s, 0' % (vr(d, 4), vr(A, 4), vr(B, 4)))
    def cvt(self, d, lo, hi):
        self.a('v_cvt_pk_bf16_f32 %s, %s, %s' % (v(d), v(lo), v(hi)))

    def p1_compute(self, nafter, hook=None, hook2=None, hook3=None, hook4=None):
        a = self.a; O, L, D = V.O, V.L, V.DA
        for r in range(4):
            a('s_waitcnt vmcnt(%d)' % (nafter + 3 - r))
            if r == 3: self.stamp()
            for t in range(4):
                a('v_mov_b32 %s, %s' % (v(O+4*t+r), v(L+4*r+t)))
        for t in range(4):
            self.mf16(D+4*t, V.F16, O+4*t)
            self.mf16(D+16+4*t, V.F16+4, O+4*t)
        if hook: hook()
        P = V.DB
        for r in range(4):
            self.cvt(P+4*r, D+r, D+4+r); self.cvt(P+4*r+2, D+16+r, D+20+r)
        for r in range(4):
            self.cvt(P+4*r+1, D+8+r, D+12+r); self.cvt(P+4*r+3, D+24+r, D+28+r)
            a('ds_write_b128 %s, %s offset:%d' % (v(V.X0w), vr(P+4*r, 4), 1024*r))
        a('s_waitcnt lgkmcnt(0)')
        a('s_barrier')
        if hook4: hook4()
        for sel in range(2):
            for tau in range(2):
                for ii in range(2):
                    a('ds_read_b64_tr_b16 %s, %s offset:%d' % (vr(O+4*(2*sel+tau)+2*ii, 2), v(V.X0r1 if sel else V.X0r0), tau*16448+ii*256))
        if hook2: hook2()
        if hook3: hook3()
        for r in range(4): a('s_add_u32 %s, %s, 0x%x' % (sO[r], self.est(), self.ubase(0) + r*self.tstride()))
        for ti in range(4):
            a('s_waitcnt lgkmcnt(%d)' % (6-2*ti))
            self.mf16(D+4*ti, V.M2+8*(ti >> 1), O+4*ti)
            self.mf16(D+16+4*ti, V.M2+8*(ti >> 1)+4, O+4*ti)
        st = lambda i: a('buffer_store_dwordx4 %s, %s, %s, %s offen %s' % (vr(P+4*i, 4), v(V.Est), SWS, sO[i], self.o['st1']))
        def normal():
            for i in range(4):
                for tau in range(2): self.cvt(P+4*i+2*tau, D+4*tau+i, D+16+4*tau+i)
            for i in range(4):
                for tau in range(2): self.cvt(P+4*i+2*tau+1, D+4*(2+tau)+i, D+16+4*(2+tau)+i)
                st(i)
        def w0():
            for i in range(4):
                ts, eb = i >> 1, i & 1
                for tau in range(2):
                    for sg in range(2):
                        x = 4*(2*ts+tau)+2*eb+sg
                        self.cvt(P+4*i+2*tau+sg, D+x, D+16+x)
                st(i)
        self.ifelse(sW, 0, w0, normal)

    def p2_addrs(self):
        a = self.a; T = V.T
        a('v_lshlrev_b32 %s, 4, %s' % (v(T), v(V.n)))
        a('v_lshl_add_u32 %s, %s, 13, %s' % (v(T), v(V.g), v(T)))
        a('s_lshl_b32 %s, %s, 9' % (sA, sW)); a('s_add_u32 %s, %s, %d' % (sA, sA, R1))
        a('v_add_u32 %s, %s, %s' % (v(V.X1w), sA, v(T)))
    def p2_addrs2(self):
        a = self.a; T = V.T
        self.tr_lane(T, 256, 64, 128)
        a('s_lshl_b32 %s, %s, 12' % (sA, sW)); a('s_add_u32 %s, %s, %d' % (sA, sA, R1))
        a('v_add_u32 %s, %s, %s' % (v(V.X1r), sA, v(T)))
        a('v_and_b32 %s, 16, %s' % (v(T), v(V.l16)))
        for bit, st in ((1, 16448), (2, 8224)):
            a('v_bfe_u32 %s, %s, %d, 1' % (v(T+1), v(V.lane), bit))
            a('v_mul_u32_u24 %s, %d, %s' % (v(T+1), st, v(T+1)))
            a('v_add_u32 %s, %s, %s' % (v(T), v(T), v(T+1)))
        a('v_bfe_u32 %s, %s, 3, 2' % (v(T+1), v(V.lane)))
        a('v_lshl_add_u32 %s, %s, 11, %s' % (v(T), v(T+1), v(T)))
        a('v_and_b32 %s, 32, %s' % (v(T+1), v(V.lane)))
        a('v_add_u32 %s, %s, %s' % (v(T), v(T), v(T+1)))
        a('s_lshr_b32 %s, %s, 2' % (sA, sW)); a('s_lshl_b32 %s, %s, 9' % (sA, sA))
        a('s_and_b32 %s, %s, 1' % (sB, sW)); a('s_lshl_b32 %s, %s, 8' % (sB, sB)); a('s_add_u32 %s, %s, %s' % (sA, sA, sB))
        a('s_and_b32 %s, %s, 2' % (sB, sW)); a('s_lshl_b32 %s, %s, 6' % (sB, sB)); a('s_add_u32 %s, %s, %s' % (sA, sA, sB))
        if R0: a('s_add_u32 %s, %s, %d' % (sA, sA, R0))
        a('v_add_u32 %s, %s, %s' % (v(V.X2w), sA, v(T)))
        self.tr_lane(T, 512, 128)
        a('s_and_b32 %s, %s, 1' % (sA, sW)); a('s_lshl_b32 %s, %s, 11' % (sA, sA))
        a('s_bfe_u32 %s, %s, 0x10001' % (sB, sW)); a('s_mul_i32 %s, %s, 16448' % (sB, sB)); a('s_add_u32 %s, %s, %s' % (sA, sA, sB))
        a('s_lshr_b32 %s, %s, 2' % (sB, sW)); a('s_lshl_b32 %s, %s, 12' % (sB, sB)); a('s_add_u32 %s, %s, %s' % (sA, sA, sB))
        if R0: a('s_add_u32 %s, %s, %d' % (sA, sA, R0))
        a('v_add_u32 %s, %s, %s' % (v(V.X2r), sA, v(T)))

    def p2_issue(self):
        a = self.a
        a('s_add_u32 %s, %s, 0x%x' % (sA, sEld, self.ubase(0)))
        for q in range(4):
            a('buffer_load_dwordx4 %s, %s, %s, %s offen offset:%d %s' % (vr(V.L+12*(q >> 1)+4*(q & 1), 4), self.eld(q), SWS, sA, 256*q, self.o['ld1']))

    def mf32(self, d, i, dataA):
        for pl in range(2):
            M = vr(V.F32+16*pl+4*i, 4); X = vr(V.O+4*i, 4)
            A, B = (X, M) if dataA else (M, X)
            D = vr(d+16*pl, 16)
            self.a('v_mfma_f32_32x32x16_bf16 %s, %s, %s, %s' % (D, A, B, D if i else '0'))

    def cmul_stage(self, src, dst, dataA, coef, kind, prio=None, late=False):
        a = self.a; T = V.T
        if prio is not None and self.o['prio']: a('s_setprio %d' % prio)
        if kind == 'tw' and self.o['shear']:
            for i in range(4):
                for st in range(3):
                    for r in range(4):
                        rho = 4*i+r
                        x, y = v(src+rho), v(src+16+rho)
                        if st == 1: a('v_fmac_f32 %s, %s, %s' % (y, v(coef+16+rho), x))
                        else: a('v_fmac_f32 %s, %s, %s' % (x, v(coef+rho), y))
                for r in range(4): self.cvt(V.O+4*i+r, src+4*i+r, src+16+4*i+r)
                self.mf32(dst, i, dataA)
            return
        if late:
            a('s_waitcnt vmcnt(2)')
            for rho in range(8): self.w_read(rho)
        for i in range(4):
            if late:
                if i == 0: a('s_waitcnt lgkmcnt(8)'); self.w_fix(0)
                if i == 1:
                    a('s_waitcnt vmcnt(0)')
                    for rho in range(8, 12): self.w_read(rho)
                    a('s_waitcnt lgkmcnt(8)')
                if i == 2:
                    for rho in range(12, 16): self.w_read(rho)
                    a('s_waitcnt lgkmcnt(8)'); self.w_fix(1)
                if i == 3: a('s_waitcnt lgkmcnt(0)')
            for r in range(4):
                rho = 4*i+r
                x, y = v(src+rho), v(src+16+rho)
                c, s = v(coef+rho), v(coef+16+rho)
                t0, t1 = v(T+2*r), v(T+2*r+1)
                a('v_mul_f32 %s, %s, %s' % (t0, x, c))
                a('v_mul_f32 %s, %s, %s' % (t1, y, c))
            for r in range(4):
                rho = 4*i+r
                x, y = v(src+rho), v(src+16+rho)
                c, s = v(coef+rho), v(coef+16+rho)
                t0, t1 = v(T+2*r), v(T+2*r+1)
                if kind == 'tw' or rho >= 8:
                    a('v_fmac_f32 %s, %s, %s' % (t0, y, s))
                    a('v_fma_f32 %s, -%s, %s, %s' % (t1, x, s, t1))
                else:
                    a('v_fma_f32 %s, -%s, %s, %s' % (t0, y, s, t0))
                    a('v_fmac_f32 %s, %s, %s' % (t1, x, s))
            for r in range(4):
                if kind == 'tw': self.cvt(V.O+4*i+r, T+2*r, T+2*r+1)
                else: self.cvt(V.O+4*i+r, T+2*r+1, T+2*r)
            self.mf32(dst, i, dataA)

    def p2_compute(self, wl=None):
        a = self.a; O, L, D, T = V.O, V.L, V.DA, V.T
        late = wl is not None
        na = 0
        for cbb in range(2):
            b = L+12*cbb
            a('s_waitcnt vmcnt(%d)' % (na+3-2*cbb))
            a('v_mov_b32 %s, %s' % (v(b+8), v(b))); a('v_mov_b32 %s, %s' % (v(b+9), v(b+1)))
            a('s_waitcnt vmcnt(%d)' % (na+2-2*cbb))
            if cbb: self.stamp(); self.fstamp()
            for jj2 in (1, 0):
                ti = 2*cbb+jj2
                op = b+2 if jj2 else b+6
                mo = 0 if jj2 else 2
                self.mf16(D+4*ti, V.B+mo, op)
                self.mf16(D+16+4*ti, V.B+6+mo, op)
        for cbb in range(2):
            for k1b in range(2):
                P = O+4*(2*cbb+k1b)
                for pl in range(2):
                    for jj2 in (1, 0):
                        x = D+16*pl+4*(2*cbb+jj2)+2*k1b
                        self.cvt(P+2*pl+jj2, x, x+1)
                a('ds_write_b128 %s, %s offset:%d' % (v(V.X1w), vr(P, 4), k1b*4096+cbb*256))
        self.fstamp()
        a('s_waitcnt lgkmcnt(0)')
        self.fstamp()
        if self.o.get('fine'): a('s_waitcnt lgkmcnt(0)')
        a('s_barrier')
        if self.o['prio']: a('s_setprio 3')
        for i in range(4):
            for ii in range(2):
                a('ds_read_b64_tr_b16 %s, %s offset:%d' % (vr(O+4*i+2*ii, 2), v(V.X1r), ii*1024+(i & 1)*512+(i >> 1)*2048))
        for i in range(4):
            if late and i in (0, 2): self.wat('postX1', (i, i+1))
            a('s_waitcnt lgkmcnt(%d)' % (6-2*i))
            self.mf32(V.DA, i, True)
        self.fstamp()
        if late: self.wat('tw1')
        self.cmul_stage(V.DA, V.DB, False, V.TW, 'tw', 2)
        self.fstamp()
        l0, l1 = self.label('PWspec'), self.label('PWend')
        a('s_cmp_eq_u32 %s, 1' % sSpec)
        a('s_cbranch_scc1 %s' % l0)
        if self.o.get('fine'): a('s_waitcnt lgkmcnt(0)')
        self.cmul_stage(V.DB, V.DA, True, V.W, 'w', 1, late)
        a(l1+':')
        self.fstamp()
        self.cmul_stage(V.DA, V.DB, True, V.TW, 'tw', 0)
        self.fstamp()
        D = V.DB
        rho = lambda jj3, jj1, jj2, c: 4*(2*jj3+jj1)+2*jj2+c
        for c in range(2):
            for jj1 in range(2):
                P = O+4*(2*c+jj1)
                for pl in range(2):
                    for jj3 in range(2):
                        self.cvt(P+2*pl+jj3, D+16*pl+rho(jj3, jj1, 0, c), D+16*pl+rho(jj3, jj1, 1, c))
                a('ds_write_b128 %s, %s offset:%d' % (v(V.X2w), vr(P, 4), c*64+jj1*1024))
                if self.o['ib2'] and not self.o['ib3'] and c == 0 and jj1 == 0: self.major_read()
        self.fstamp()
        a('s_waitcnt lgkmcnt(0)')
        if self.o['ib2'] and not self.o['ib3']: self.major_use()
        self.fstamp()
        if self.o.get('fine'): a('s_waitcnt lgkmcnt(0)')
        a('s_barrier')
        for cbb in range(2):
            for jj1 in range(2):
                for ii in range(2):
                    a('ds_read_b64_tr_b16 %s, %s offset:%d' % (vr(O+4*(2*cbb+jj1)+2*ii, 2), v(V.X2r), ii*256+jj1*1024+cbb*8224))
        for r in range(4): a('s_add_u32 %s, %s, 0x%x' % (sO[r], self.est(), self.ubase(1) + r*self.tstride()))
        D = V.DA
        for ti in range(4):
            a('s_waitcnt lgkmcnt(%d)' % (6-2*ti))
            self.mf16(D+4*ti, V.Bp, O+4*ti)
            self.mf16(D+16+4*ti, V.Bp+4, O+4*ti)
        self.fstamp()
        P = V.DB
        for q in range(4):
            cbb, sbb = q >> 1, q & 1
            for jj1 in range(2):
                for hf in range(2):
                    x = 4*(2*cbb+jj1)+2*sbb+hf
                    self.cvt(P+4*q+2*jj1+hf, D+x, D+16+x)
            a('buffer_store_dwordx4 %s, %s, %s, %s offen %s' % (vr(P+4*q, 4), v(V.Est), SWS, sO[q], self.o['st2']))
        self.fstamp()
        if self.o.get('fine'):
            a('s_memrealtime s[%d:%d]' % (sTS+2*self.nts, sTS+2*self.nts+1)); self.nts += 1
        def tail():
            C = V.DB; X = V.DA
            a(l0+':')
            self.sigma_lane(T)
            a('v_lshrrev_b32 %s, 5, %s' % (v(T+1), v(V.lane)))
            a('v_lshlrev_b32 %s, 9, %s' % (v(T+1), v(T+1)))
            a('v_lshl_add_u32 %s, %s, 2, %s' % (v(T+2), v(T), v(T+1)))
            a('v_add_u32 %s, %d, %s' % (v(T+2), SCR, v(T+2)))
            a('v_add_u32 %s, 128, %s' % (v(T+3), v(T+2)))
            a('v_sub_u32 %s, 32, %s' % (v(T+4), v(T)))
            a('v_lshrrev_b32 %s, 5, %s' % (v(T+5), v(T+4)))
            a('v_and_b32 %s, 31, %s' % (v(T+4), v(T+4)))
            a('v_lshlrev_b32 %s, 2, %s' % (v(T+4), v(T+4)))
            a('v_lshl_add_u32 %s, %s, 8, %s' % (v(T+4), v(T+5), v(T+4)))
            a('v_sub_u32 %s, %s, %s' % (v(T+4), v(T+4), v(T+1)))
            a('v_add_u32 %s, %d, %s' % (v(T+4), SCR + 2*256, v(T+4)))
            a('v_add_u32 %s, 128, %s' % (v(T+5), v(T+4)))
            a('v_add_u32 %s, %d, %s' % (v(T+6), SCR_B, v(V.l16)))
            qs = lambda rho: sigma(8*(rho >> 2) + (rho & 3))
            for pl in range(2):
                for rho in range(0, 16, 2):
                    a('ds_write2st64_b32 %s, %s, %s offset0:%d offset1:%d' % (v(T+2+pl), v(C+16*pl+rho), v(C+16*pl+rho+1), qs(rho), qs(rho+1)))
                a('ds_write_b32 %s, %s offset:%d' % (v(T+2+pl), v(C+16*pl), 32*256))
            a('s_waitcnt lgkmcnt(0)')
            t0, t1 = v(T+8), v(T+9)
            for half in range(2):
                for pl in range(2):
                    for k in range(0, 8, 2):
                        rho_ = 8*half+k
                        a('ds_read2st64_b32 %s, %s offset0:%d offset1:%d' % (vr(X+8*pl+k, 2), v(T+4+pl), 29-qs(rho_), 29-qs(rho_+1)))
                    for k in range(2):
                        a('ds_read_b128 %s, %s offset:%d' % (vr(X+16+8*pl+4*k, 4), v(T+6), 1024*(4*pl+2*half+k)))
                a('s_waitcnt lgkmcnt(0)')
                for k in range(8):
                    rho_ = 8*half+k
                    x, y = v(C+rho_), v(C+16+rho_); ar, ai = v(V.W+rho_), v(V.W+16+rho_)
                    p, q_ = v(X+k), v(X+8+k); br, bi = v(X+16+k), v(X+24+k)
                    ng, ps = ('', '-') if half else ('-', '')
                    a('v_mul_f32 %s, %s, %s' % (t0, x, ar))
                    a('v_mul_f32 %s, %s, %s' % (t1, y, ar))
                    a('v_fma_f32 %s, %s%s, %s, %s' % (t0, ng, y, ai, t0))
                    a('v_fma_f32 %s, %s%s, %s, %s' % (t1, ps, x, ai, t1))
                    a('v_fmac_f32 %s, %s, %s' % (t0, p, br))
                    a('v_fma_f32 %s, -%s, %s, %s' % (t1, q_, br, t1))
                    a('v_fma_f32 %s, %s%s, %s, %s' % (t0, ps, q_, bi, t0))
                    a('v_fma_f32 %s, %s%s, %s, %s' % (t1, ps, p, bi, t1))
                    self.cvt(O+rho_, T+9, T+8)
            for i in range(4): self.mf32(V.DA, i, True)
            a('s_nop 11')
            a('s_branch %s' % l1)
        self.tail.append(tail)

    def p3_addrs(self):
        a = self.a; T = V.T
        a('v_and_b32 %s, 16, %s' % (v(T), v(V.lane)))
        for bit, st in ((0, 32), (3, 4096), (5, 1024)):
            a('v_bfe_u32 %s, %s, %d, 1' % (v(T+1), v(V.lane), bit))
            a('v_lshl_add_u32 %s, %s, %d, %s' % (v(T), v(T+1), int(math.log2(st)), v(T)))
        for bit, st in ((1, 8208), (2, 16448)):
            a('v_bfe_u32 %s, %s, %d, 1' % (v(T+1), v(V.lane), bit))
            a('v_mul_u32_u24 %s, %d, %s' % (v(T+1), st, v(T+1)))
            a('v_add_u32 %s, %s, %s' % (v(T), v(T), v(T+1)))
        a('s_sub_u32 %s, 16, %s' % (sC, sW))
        a('s_cmp_eq_u32 %s, 0' % sW)
        a('s_cselect_b32 %s, 8, %s' % (sC, sC))
        for kl, dst in ((sW, V.X3w0), (sC, V.X3w1)):
            a('s_and_b32 %s, %s, 9' % (sA, kl)); a('s_lshl_b32 %s, %s, 6' % (sA, sA))
            a('s_and_b32 %s, %s, 2' % (sB, kl)); a('s_lshl_b32 %s, %s, 7' % (sB, sB)); a('s_add_u32 %s, %s, %s' % (sA, sA, sB))
            a('s_and_b32 %s, %s, 4' % (sB, kl)); a('s_lshl_b32 %s, %s, 5' % (sB, sB)); a('s_add_u32 %s, %s, %s' % (sA, sA, sB))
            a('s_add_u32 %s, %s, %d' % (sA, sA, R1))
            a('v_add_u32 %s, %s, %s' % (v(dst), sA, v(T)))
        self.tr_lane(T, 512, 128)
        a('s_and_b32 %s, %s, 1' % (sA, sW)); a('s_mul_i32 %s, %s, 8208' % (sA, sA))
        a('s_bfe_u32 %s, %s, 0x10001' % (sB, sW)); a('s_mul_i32 %s, %s, 16448' % (sB, sB)); a('s_add_u32 %s, %s, %s' % (sA, sA, sB))
        a('s_lshr_b32 %s, %s, 2' % (sB, sW)); a('s_lshl_b32 %s, %s, 12' % (sB, sB)); a('s_add_u32 %s, %s, %s' % (sA, sA, sB))
        a('s_add_u32 %s, %s, %d' % (sA, sA, R1))
        a('v_add_u32 %s, %s, %s' % (v(V.X3r), sA, v(T)))
        a('v_bfe_u32 %s, %s, 3, 1' % (v(T), v(V.lane)))
        a('v_lshlrev_b32 %s, 15, %s' % (v(T), v(T)))
        a('v_lshl_add_u32 %s, %s, 21, %s' % (v(T), v(V.g), v(T)))
        a('v_and_b32 %s, 0x70, %s' % (v(T+1), v(V.l16)))
        a('v_add_u32 %s, %s, %s' % (v(V.Ooff), v(T), v(T+1)))
    def p3_soff(self):
        a = self.a
        a('s_lshl_b32 %s, %s, 16' % (sO[0], sW))
        a('s_lshl_b32 %s, %s, 12' % (sA, sSB)); a('s_add_u32 %s, %s, %s' % (sO[0], sO[0], sA))
        a('s_lshl_b32 %s, %s, 7' % (sA, sCB)); a('s_add_u32 %s, %s, %s' % (sO[0], sO[0], sA))
        a('s_lshl_b32 %s, %s, 11' % (sA, sP)); a('s_add_u32 %s, %s, %s' % (sO[0], sO[0], sA))
        for r in range(1, 4): a('s_add_u32 %s, %s, 0x%x' % (sO[r], sO[0], r*524288))
    def p3_issue(self):
        a = self.a
        a('s_add_u32 %s, %s, 0x%x' % (sA, sEld, self.ubase(1)))
        for q in range(4):
            a('buffer_load_dwordx4 %s, %s, %s, %s offen offset:%d %s' % (vr(V.L+4*q, 4), self.eld(q, 1), SWS, sA, 256*q, self.o['ld2']))
    def p3_compute(self):
        a = self.a; O, L, D = V.O, V.L, V.DA
        def normal():
            for i in range(4):
                a('s_waitcnt vmcnt(%d)' % (3-i))
                for sel in range(2):
                    for col in range(2):
                        a('v_mov_b32 %s, %s' % (v(O+4*(2*sel+col)+i), v(L+4*i+2*col+sel)))
        def w0():
            for i in range(4):
                ts, eb = i >> 1, i & 1
                a('s_waitcnt vmcnt(%d)' % (3-i))
                for col in range(2):
                    for sg in range(2):
                        a('v_mov_b32 %s, %s' % (v(O+4*(2*ts+col)+2*eb+sg), v(L+4*i+2*col+sg)))
        self.ifelse(sW, 0, w0, normal, True)
        self.stamp()
        for ti in range(4):
            self.mf16(D+4*ti, O+4*ti, V.M2+8*(ti >> 1))
            self.mf16(D+16+4*ti, O+4*ti, V.M2+8*(ti >> 1)+4)
        P = V.DB
        for ti in range(4):
            for pl in range(2):
                for k in range(2):
                    x = D+16*pl+4*ti+2*k
                    self.cvt(P+4*ti+2*pl+k, x, x+1)
            a('ds_write_b128 %s, %s offset:%d' % (v(V.X3w1 if ti >> 1 else V.X3w0), vr(P+4*ti, 4), (ti & 1)*2048))
        a('s_waitcnt lgkmcnt(0)')
        a('s_barrier')
        for t in range(4):
            for ii in range(2):
                a('ds_read_b64_tr_b16 %s, %s offset:%d' % (vr(O+4*t+2*ii, 2), v(V.X3r), ii*256+t*1024))
        for t in range(4):
            a('s_waitcnt lgkmcnt(%d)' % (6-2*t))
            self.mf16(D+4*t, V.F16, O+4*t)
            self.mf16(D+16+4*t, V.F16+4, O+4*t)
        for t in range(3):
            for r in range(4): self.cvt(P+4*r+t, D+16+4*t+r, D+4*t+r)
        for r in range(4):
            self.cvt(P+4*r+3, D+16+12+r, D+12+r)
            a('buffer_store_dwordx4 %s, %s, %s, %s offen %s' % (vr(P+4*r, 4), v(V.Ooff), SOUT, sO[r], self.o['sto']))

    def flush_tail(self):
        t, self.tail = self.tail, []
        for f in t: f()

    def kernel_head(self, name):
        self.a.raw('.globl %s\n.p2align 12\n.p2align 8\n.type %s,@function\n%s:' % (name, name, name))
    def kd(self, name):
        return '''.p2align 6
.amdhsa_kernel %s
  .amdhsa_next_free_vgpr %d
  .amdhsa_next_free_sgpr 102
  .amdhsa_accum_offset %d
  .amdhsa_group_segment_fixed_size 0
  .amdhsa_kernarg_size 72
  .amdhsa_user_sgpr_count 2
  .amdhsa_user_sgpr_kernarg_segment_ptr 1
  .amdhsa_system_sgpr_workgroup_id_x 1
.end_amdhsa_kernel''' % (name, NVGPR, (NVGPR+3)//4*4)

    def build_three(self):
        a = self.a
        names = ['gf_p1_kernel', 'gf_p2_kernel', 'gf_p3_kernel']
        self.kernel_head(names[0]); end = self.label('end')
        self.prologue(end); self.p1_load(); a('s_waitcnt lgkmcnt(0)'); self.p1_issue()
        self.ex_addrs(); self.p1_addrs(); self.gen_F16(); self.gen_M2()
        self.p1_compute(0)
        if self.o['ts']: self.stamp(); a('s_waitcnt vmcnt(0)'); self.stamp(); self.dump_stamps(0)
        a(end+':'); a('s_endpgm'); self.flush_tail()
        self.kernel_head(names[1]); end = self.label('end')
        self.prologue(end); self.ex_addrs(); self.calc_k0(); a('s_waitcnt lgkmcnt(0)')
        self.w_dma(); self.p2_addrs(); self.gen_B(); self.gen_F32TW()
        a('s_waitcnt vmcnt(0)'); self.w_regs(); a('s_waitcnt lgkmcnt(0)')
        self.p2_issue(); self.p2_compute()
        if self.o['ts']: self.stamp(); a('s_waitcnt vmcnt(0)'); self.stamp(); self.dump_stamps(8)
        a(end+':'); a('s_endpgm'); self.flush_tail()
        self.kernel_head(names[2]); end = self.label('end')
        self.prologue(end); self.ex_addrs(); a('s_waitcnt lgkmcnt(0)'); self.p3_issue()
        self.p3_addrs(); self.p3_soff(); self.gen_F16(); self.gen_M3()
        self.p3_compute()
        if self.o['ts']: self.stamp(); a('s_waitcnt vmcnt(0)'); self.stamp(); self.dump_stamps(16)
        a(end+':'); a('s_endpgm'); self.flush_tail()
        launch = ''.join('; @launch kernel=%s grid=(256,1,1) block=(512,1,1) lds=%d\n' % (n, LDS_TOTAL) for n in names)
        return self.finish(launch, names)

    def flag_addrs(self):
        a = self.a
        if self.o['ib']:
            a('s_lshr_b32 %s, %s, 4' % (sB, sT))
            for dst, wp, gr in ((sF, sW, sB), (sE, sB, sW)):
                a('s_lshl3_add_u32 %s, %s, %s' % (sA, sP, wp)); a('s_lshl_b32 %s, %s, 21' % (sA, sA))
                a('s_lshl_b32 %s, %s, 10' % (sC, gr)); a('s_add_u32 %s, %s, %s' % (sA, sA, sC))
                a('s_add_u32 %s, %s, 0x%x' % (dst, sA, WS_FLAG_IB))
            a('s_and_b32 %s, %s, 15' % (sA, sT)); a('s_add_u32 %s, %s, 8' % (sA, sA))
            a('s_lshl_b32 %s, %s, %s' % (sInc, sCh, sA)); a('s_add_u32 %s, %s, 1' % (sInc, sInc))
            a('v_lshl_add_u32 %s, %s, 2, 8' % (v(V.dummy), v(V.g)))
            return
        if self.o['fl'] != '':
            pol = int(self.o['fl'][1]); mode = self.o['fl'][0]
            a('s_lshr_b32 %s, %s, 4' % (sB, sT))
            for dst, wp, gr in ((sF, sW, sB), (sE, sB, sW)):
                a('s_lshl3_add_u32 %s, %s, %s' % (sA, sP, wp))
                if mode == 'x': a('s_xor_b32 %s, %s, %d' % (sC, sP, pol))
                else: a('s_lshr_b32 %s, %s, 2' % (sC, wp)); a('s_xor_b32 %s, %s, %d' % (sC, sC, pol))
                a('s_lshl1_add_u32 %s, %s, %s' % (sA, sA, sC))
                a('s_lshl3_add_u32 %s, %s, %s' % (sA, sA, gr))
                a('s_lshl_b32 %s, %s, 10' % (sA, sA))
                a('s_add_u32 %s, %s, 0x%x' % (dst, sA, WS_FLAG))
            return
        fs = int(self.o['fstride'])
        a('s_lshl_b32 %s, %s, %d' % (sA, sP, fs+6)); a('s_add_u32 %s, %s, 0x%x' % (sA, sA, WS_FLAG))
        a('s_lshr_b32 %s, %s, 4' % (sB, sT))
        a('s_lshl_b32 %s, %s, %d' % (sF, sW, fs+3)); a('s_add_u32 %s, %s, %s' % (sF, sF, sA))
        a('s_lshl_b32 %s, %s, %d' % (sC, sB, fs)); a('s_add_u32 %s, %s, %s' % (sF, sF, sC))
        a('s_lshl_b32 %s, %s, %d' % (sE, sB, fs+3)); a('s_add_u32 %s, %s, %s' % (sE, sE, sA))
        a('s_lshl_b32 %s, %s, %d' % (sC, sW, fs)); a('s_add_u32 %s, %s, %s' % (sE, sE, sC))
    def p2_probe_issue(self):
        a = self.a
        def f():
            a('s_bfe_u32 %s, %s, 0x30003' % (sA, sT)); a('s_lshl3_add_u32 %s, %s, %s' % (sA, sP, sA))
            a('s_lshr_b32 %s, %s, 6' % (sCh2, sT))
            a('s_lshl1_add_u32 %s, %s, %s' % (sA, sA, sCh2))
            a('s_and_b32 %s, %s, 7' % (sB, sT)); a('s_lshl3_add_u32 %s, %s, %s' % (sA, sA, sB))
            a('s_lshl_b32 %s, %s, 10' % (sA, sA)); a('s_add_u32 %s, %s, 0x%x' % (sA, sA, WS_FLAG2))
            a('s_xor_b32 %s, %s, 0x2000' % (sB, sA))
            a('s_mov_b64 s[92:93], 0')
            a('s_atomic_swap s92, s[24:25], %s glc' % sA)
            a('s_atomic_swap s93, s[24:25], %s glc' % sB)
        self.cond(sW, PW, f)
    def p2_probe_eval(self):
        a = self.a; T = V.T
        def f():
            a('s_waitcnt lgkmcnt(1)')
            a('s_nop %s' % self.o['pnop'])
            a('s_getreg_b32 %s, hwreg(HW_REG_IB_STS, 8, 4)' % sA)
            a('s_cmp_eq_u32 %s, 0' % sA)
            a('s_cselect_b32 %s, 1, 0' % sA)
            a('s_xor_b32 %s, %s, %s' % (sCh2, sCh2, sA))
            if self.o['force'] != '': a('s_xor_b32 %s, %s, %s' % (sCh2, sP, self.o['force']))
            if not self.o['ib3']:
                a('v_mov_b32 %s, %d' % (v(T), CNT)); a('v_mov_b32 %s, %s' % (v(T+1), sCh2))
                a('ds_write_b32 %s, %s offset:4' % (v(T), v(T+1)))
            if self.o['ib3']:
                l = self.label('nv')
                a('s_and_b32 %s, s2, 0x8f' % sA); a('s_cmp_lg_u32 %s, 8' % sA); a('s_cbranch_scc1 %s' % l)
                a('s_cmp_eq_u32 s2, 120'); a('s_cbranch_scc1 %s' % l)
                a('s_lshl_b32 s94, %s, 8' % sCh2); a('s_add_u32 s94, s94, 0x1001')
                a('s_atomic_add s94, s[20:21], 0x0')
                a(l+':')
        self.cond(sW, PW, f)
    def vote_read(self):
        a = self.a
        def f():
            a('s_mov_b32 s22, 256'); a('s_mov_b32 s23, 0x20000')
            a('v_mov_b32 %s, 0' % v(V.EL))
            a('buffer_load_dword %s, %s, %s, 0 offen sc1' % (v(V.dummy), v(V.EL), SDBG))
        self.cond(sW, PW, f)
    def vote_use(self):
        a = self.a; T = V.T
        def f():
            a('v_readfirstlane_b32 %s, %s' % (sA, v(V.dummy)))
            a('s_bfe_u32 %s, %s, 0x40008' % (sB, sA)); a('s_bfe_u32 %s, %s, 0x4000c' % (sC, sA))
            a('s_sub_u32 %s, %s, %s' % (sC, sC, sB))
            a('s_xor_b32 %s, %s, 1' % (sA, sP))
            a('s_cmp_ge_u32 %s, 4' % sB); a('s_cselect_b32 %s, %s, %s' % (sCh2, sA, sCh2))
            a('s_cmp_ge_u32 %s, 4' % sC); a('s_cselect_b32 %s, %s, %s' % (sCh2, sP, sCh2))
            a('v_mov_b32 %s, %s' % (v(T+1), sCh2))
            a('ds_write_b32 %s, %s offset:4' % (v(V.dummy2), v(T+1)))
        self.cond(sW, PW, f)
    def zero3(self):
        a = self.a
        a('s_sub_u32 %s, s2, 16' % sZ)
        a('s_and_b32 %s, %s, 0xffffffef' % (sZ, sZ))
        def f():
            a('s_lshr_b32 %s, s2, 5' % sA)
            a('s_lshl1_add_u32 %s, %s, %s' % (sA, sW, sA))
            a('s_lshl_b32 %s, %s, 13' % (sA, sA)); a('s_add_u32 %s, %s, 0x%x' % (sA, sA, WS_FLAG))
            for i in range(0, 8, 2): a('s_mov_b64 s[%d:%d], 0' % (84+i, 85+i))
            for i in range(8):
                a('s_atomic_swap s%d, s[24:25], %s offset:0x%x glc' % (84+i, sA, i << 10))
        self.cond(sZ, 0, f)
    def ready3(self):
        a = self.a
        def f():
            a('s_mov_b32 s94, 1')
            a('s_waitcnt lgkmcnt(0)')
            a('s_atomic_add s94, s[20:21], 0x0')
        self.cond(sZ, 0, f)
    def flag_addrs3(self):
        a = self.a
        a('s_lshr_b32 %s, %s, 4' % (sB, sT))
        for dst, wp, gr in ((sF, sW, sB), (sE, sB, sW)):
            a('s_lshl4_add_u32 %s, %s, %s' % (sC, wp, gr)); a('s_lshl_b32 %s, %s, 10' % (sC, sC))
            a('s_add_u32 %s, %s, 0x%x' % (dst, sC, WS_FLAG))
    def side3(self):
        a = self.a
        a('s_bfe_u32 %s, %s, 0x1000a' % (sCh2, sRv))
        a('s_xor_b32 %s, %s, %s' % (sCh2, sCh2, sP)); a('s_lshl_b32 %s, %s, 13' % (sCh2, sCh2))
        a('s_add_u32 %s, %s, %s' % (sF, sF, sCh2))
    def side3b(self):
        a = self.a
        a('s_add_u32 %s, %s, %s' % (sE, sE, sCh2))
        a('s_xor_b32 %s, %s, %s' % (sZp, sEst, sCh2))
    def side3c(self):
        a = self.a
        a('s_and_b32 %s, %s, 0x2000' % (sA, sZ)); a('s_xor_b32 %s, %s, %s' % (sA, sA, sCh2)); a('s_add_u32 %s, %s, %s' % (sEld, sEld, sA))
    def p2_choice_read(self):
        self.a('ds_read_b32 %s, %s offset:4' % (v(V.dummy), v(V.dummy2)))
    def p2_choice_use(self):
        a = self.a
        a('s_waitcnt lgkmcnt(8)')
        a('v_readfirstlane_b32 %s, %s' % (sCh2, v(V.dummy)))
        a('s_lshl_b32 %s, %s, 13' % (sA, sCh2))
        a('s_xor_b32 %s, %s, %s' % (sZp, sEst, sA))
        if self.o['ts']: a('s_mov_b32 s%d, %s' % (sTS+24, sCh2))
    def ex_addrs_ib2(self):
        a = self.a; T = V.T
        a('s_lshl_b32 %s, %s, 4' % (sB, sW)); a('s_xor_b32 %s, %s, %s' % (sB, sB, sT)); a('s_lshl_b32 %s, %s, 8' % (sB, sB))
        a('v_lshlrev_b32 %s, 4, %s' % (v(T), v(V.n)))
        a('v_lshl_add_u32 %s, %s, 10, %s' % (v(T), v(V.g), v(T)))
        a('v_xor_b32 %s, %s, %s' % (v(T), sB, v(T)))
        a('v_and_b32 %s, 0x6000, %s' % (v(T+1), v(T)))
        a('v_add_u32 %s, %s, %s' % (v(T), v(T), v(T+1)))
        a('v_lshl_add_u32 %s, %s, 18, %s' % (v(V.Est), v(V.g), v(T)))
        a('v_and_b32 %s, 0xdcff, %s' % (v(V.Eld0), v(T)))
        a('s_lshl3_add_u32 %s, %s, %s' % (sEst, sP, sW)); a('s_lshl_b32 %s, %s, 20' % (sEst, sEst))
        a('s_and_b32 %s, %s, 2' % (sA, sW)); a('s_lshl_b32 %s, %s, 12' % (sA, sA)); a('s_add_u32 %s, %s, %s' % (sEst, sEst, sA))
    def misc_ib2(self):
        a = self.a
        a('s_lshl_b32 %s, %s, 7' % (sEld, sP)); a('s_add_u32 %s, %s, %s' % (sEld, sEld, sT)); a('s_lshl_b32 %s, %s, 16' % (sEld, sEld))
        a('s_and_b32 %s, %s, 15' % (sA, sT)); a('s_add_u32 %s, %s, 8' % (sA, sA))
        a('s_lshl_b32 %s, %s, %s' % (sInc, sCh2, sA)); a('s_add_u32 %s, %s, 1' % (sInc, sInc))
        a('v_lshl_add_u32 %s, %s, 2, 8' % (v(V.dummy), v(V.g)))
        a('s_bfe_i32 %s, %s, 0x10005' % (sZ, sT))
    def ld_addrs_ib2(self):
        a = self.a; T = V.T
        a('s_xor_b32 %s, %s, %s' % (sA, sRv, sZ))
        a('v_lshrrev_b32 %s, %s, %s' % (v(T), v(V.dummy), sA))
        for q in range(4):
            a('v_bfe_u32 %s, %s, %d, 1' % (v(T+1), v(T), q))
            a('v_lshl_add_u32 %s, %s, 13, %s' % (v(T+2+q), v(T+1), v(V.Eld0)))
    def major_post(self):
        a = self.a; T = V.T
        def f():
            a('s_bfe_u32 %s, %s, 0x100008' % (sA, sRv)); a('s_bcnt1_i32_b32 %s, %s' % (sA, sA))
            a('s_cmp_gt_u32 %s, 8' % sA); a('s_cselect_b32 %s, 0x2000, 0' % sA)
            a('v_mov_b32 %s, %s' % (v(T), sA))
            a('ds_write_b32 %s, %s offset:8' % (v(V.dummy2), v(T)))
        self.cond(sW, 0, f)
    def major_read(self):
        self.a('ds_read_b32 %s, %s offset:8' % (v(V.dummy), v(V.dummy2)))
    def major_use(self):
        a = self.a
        a('v_readfirstlane_b32 %s, %s' % (sCh2, v(V.dummy)))
        a('s_xor_b32 %s, %s, %s' % (sZp, sEst, sCh2))
    def major_use2(self):
        a = self.a
        a('s_and_b32 %s, %s, 0x2000' % (sA, sZ)); a('s_xor_b32 %s, %s, %s' % (sA, sA, sCh2)); a('s_add_u32 %s, %s, %s' % (sEld, sEld, sA))
        a('s_lshr_b32 %s, %s, 4' % (sB, sT))
        for dst, wp, gr in ((sF, sW, sB), (sE, sB, sW)):
            a('s_lshl3_add_u32 %s, %s, %s' % (sA, sP, wp)); a('s_lshl4_add_u32 %s, %s, %s' % (sA, sA, gr)); a('s_lshl_b32 %s, %s, 10' % (sA, sA))
            a('s_add_u32 %s, %s, %s' % (sA, sA, sCh2)); a('s_add_u32 %s, %s, 0x%x' % (dst, sA, WS_FLAG2))

    def gz_issue(self):
        a = self.a
        a('s_sub_u32 %s, s2, 16' % sZ)
        a('s_and_b32 %s, %s, 0xffffffef' % (sZ, sZ))
        def f():
            a('s_lshr_b32 %s, s2, 5' % sZp)
            a('s_lshl1_add_u32 %s, %s, %s' % (sCh, sW, sZp))
            a('s_lshl_b32 %s, %s, 13' % (sCh, sCh)); a('s_add_u32 %s, %s, 0x%x' % (sCh, sCh, WS_FLAG))
            for i in range(0, 8, 2): a('s_mov_b64 s[%d:%d], 0' % (84+i, 85+i))
            for i in range(8):
                a('s_atomic_swap s%d, s[24:25], %s offset:0x%x glc' % (84+i, sCh, i << 10))
        self.cond(sZ, 0, f)
    def gz_publish(self):
        a = self.a
        def f():
            a('s_waitcnt lgkmcnt(0)')
            a('s_memtime s[84:85]')
            a('s_mov_b32 s88, 0')
            a('s_waitcnt lgkmcnt(0)')
            a('s_atomic_add s88, s[24:25], %s glc' % sCh)
            a('s_waitcnt lgkmcnt(0)')
            a('s_memtime s[86:87]')
            a('s_mul_i32 %s, %s, 13' % (sZp, sZp)); a('s_add_u32 %s, %s, 5' % (sZp, sZp))
            a('s_waitcnt lgkmcnt(0)')
            a('s_sub_u32 s84, s86, s84'); a('s_lshr_b32 s84, s84, 3'); a('s_min_u32 s84, s84, 0x3ff')
            a('s_lshl_b32 s84, s84, %s' % sZp); a('s_add_u32 s84, s84, 1')
            a('s_atomic_add s84, s[20:21], 0x0')
        self.cond(sZ, 0, f)
    def gz_read(self):
        a = self.a
        a('v_mov_b32 %s, 0' % v(V.EL))
        a('buffer_load_dword %s, %s, %s, 0 offen sc1' % (v(V.dummy), v(V.EL), SDBG))
    def gz_check(self):
        a = self.a; l0, l1 = self.label('gz'), self.label('gzok')
        a('s_waitcnt vmcnt(0)')
        a('v_readfirstlane_b32 %s, %s' % (sRv, v(V.dummy)))
        a('s_bitcmp1_b32 %s, 4' % sRv)
        a('s_cbranch_scc1 %s' % l1)
        a('s_mov_b32 %s, 0' % sCnt)
        a(l0+':')
        a('buffer_load_dword %s, %s, %s, 0 offen sc1' % (v(V.dummy), v(V.EL), SDBG))
        a('s_add_u32 %s, %s, 1' % (sCnt, sCnt))
        a('s_cmp_gt_u32 %s, 0x%x' % (sCnt, SPIN_MAX))
        a('s_waitcnt vmcnt(0)')
        a('v_readfirstlane_b32 %s, %s' % (sRv, v(V.dummy)))
        a('s_cbranch_scc1 %s' % l1)
        a('s_bitcmp0_b32 %s, 4' % sRv)
        a('s_cbranch_scc1 %s' % l0)
        a(l1+':')
        a('s_bfe_u32 %s, %s, 0xd0005' % (sA, sRv)); a('s_bfe_u32 %s, %s, 0xd0012' % (sB, sRv))
        a('s_cmp_lt_u32 %s, %s' % (sB, sA))
        a('s_cselect_b32 %s, 0x2000, 0' % sCh)
        if self.o['force'] != '': a('s_mov_b32 %s, %d' % (sCh, int(self.o['force']) << 13))
        a('s_xor_b32 %s, %s, %s' % (sEst, sEst, sCh))
        if self.o['ts']: a('s_mov_b32 s%d, %s' % (sTS+24, sRv))
    def gz_flag_addrs(self):
        a = self.a
        a('s_xor_b32 %s, %s, %s' % (sEld, sEld, sCh))
        a('s_lshr_b32 %s, %s, 4' % (sB, sT))
        a('s_lshl_b32 %s, %s, 13' % (sA, sP)); a('s_xor_b32 %s, %s, %s' % (sA, sA, sCh)); a('s_add_u32 %s, %s, 0x%x' % (sA, sA, WS_FLAG))
        for dst, wp, gr in ((sF, sW, sB), (sE, sB, sW)):
            a('s_lshl4_add_u32 %s, %s, %s' % (sC, wp, gr)); a('s_lshl_b32 %s, %s, 10' % (sC, sC))
            a('s_add_u32 %s, %s, %s' % (dst, sC, sA))

    def zero_flags_ib(self):
        a = self.a
        def f():
            a('s_waitcnt lgkmcnt(0)')
            a('s_lshl_b32 %s, %s, 13' % (sA, sCh)); a('s_add_u32 %s, %s, %s' % (sA, sA, sEst)); a('s_add_u32 %s, %s, 0x%x' % (sA, sA, WS_FLAG_IB))
            for i in range(0, 8, 2): a('s_mov_b64 s[%d:%d], 0' % (84+i, 85+i))
            for i in range(8):
                a('s_atomic_swap s%d, s[24:25], %s offset:0x%x glc' % (84+i, sA, i << 10))
        self.cond(sT, 1, f)
    def set_ready_ib(self):
        a = self.a
        def f():
            a('s_add_u32 %s, %s, 8' % (sA, sW)); a('s_lshl_b32 %s, %s, %s' % (sZ, sCh, sA)); a('s_add_u32 %s, %s, 1' % (sZ, sZ))
            a('s_waitcnt lgkmcnt(0)')
            a('s_atomic_add %s, s[20:21], %s' % (sZ, sRd))
        self.cond(sT, 1, f)
    def flag_side(self):
        a = self.a
        a('s_lshr_b32 %s, %s, 8' % (sRv, sRv))
        a('s_lshr_b32 %s, %s, %s' % (sA, sRv, sW)); a('s_and_b32 %s, %s, 1' % (sA, sA)); a('s_lshl_b32 %s, %s, 13' % (sA, sA)); a('s_add_u32 %s, %s, %s' % (sF, sF, sA))
    def flag_side2(self):
        a = self.a
        a('s_lshr_b32 %s, %s, 4' % (sB, sT))
        a('s_lshr_b32 %s, %s, %s' % (sA, sRv, sB)); a('s_and_b32 %s, %s, 1' % (sA, sA)); a('s_lshl_b32 %s, %s, 13' % (sA, sA)); a('s_add_u32 %s, %s, %s' % (sE, sE, sA))
    def zero_flags(self):
        a = self.a
        a('s_sub_u32 %s, s2, 16' % sZ)
        a('s_and_b32 %s, %s, 0xffffffef' % (sZ, sZ))
        def f():
            fs = int(self.o['fstride'])
            a('s_lshr_b32 %s, s2, 5' % sZp)
            a('s_lshl3_add_u32 %s, %s, %s' % (sA, sZp, sW))
            if self.o['fl'] != '':
                pol = int(self.o['fl'][1]); mode = self.o['fl'][0]; fs = 10
                if mode == 'x': a('s_xor_b32 %s, %s, %d' % (sC, sZp, pol))
                else: a('s_lshr_b32 %s, %s, 2' % (sC, sW)); a('s_xor_b32 %s, %s, %d' % (sC, sC, pol))
                a('s_lshl1_add_u32 %s, %s, %s' % (sA, sA, sC))
            a('s_lshl_b32 %s, %s, %d' % (sA, sA, fs+3)); a('s_add_u32 %s, %s, 0x%x' % (sA, sA, WS_FLAG))
            for i in range(0, 8, 2): a('s_mov_b64 s[%d:%d], 0' % (84+i, 85+i))
            for i in range(8):
                a('s_atomic_swap s%d, s[24:25], %s offset:0x%x glc' % (84+i, sA, i << fs))
            a('s_lshl_b32 %s, %s, 7' % (sZp, sZp))
        self.cond(sZ, 0, f)
    def set_ready(self):
        a = self.a
        def f():
            a('s_mov_b32 %s, 1' % sInc)
            a('s_waitcnt lgkmcnt(0)')
            a('s_atomic_add %s, s[20:21], %s' % (sInc, sZp))
        self.cond(sZ, 0, f)
    def ready_issue(self):
        self.a('s_load_dword %s, s[20:21], %s' % (sRv, sRd))
    def ready_check(self):
        a = self.a; l0, l1 = self.label('rdy'), self.label('rdyok')
        def notready():
            if self.o['ib3']: a('s_and_b32 %s, %s, 0xff' % (sA, sRv)); a('s_cmp_lt_u32 %s, 23' % sA)
            else: a('s_bitcmp0_b32 %s, 3' % sRv)
        notready()
        a('s_cbranch_scc1 %s' % l0)
        a(l1+':')
        def tail():
            lp = self.label('rdyl')
            a(l0+':')
            a('s_mov_b32 %s, 0' % sCnt)
            a('v_mov_b32 %s, 0' % v(V.O+1))
            a(lp+':')
            a('buffer_load_dword %s, %s, %s, %s offen sc1' % (v(V.O), v(V.O+1), SDBG, sRd))
            a('s_add_u32 %s, %s, 1' % (sCnt, sCnt))
            a('s_cmp_gt_u32 %s, 0x%x' % (sCnt, SPIN_MAX))
            a('s_waitcnt vmcnt(0)')
            a('v_readfirstlane_b32 %s, %s' % (sRv, v(V.O)))
            a('s_cbranch_scc1 %s' % l1)
            notready()
            a('s_cbranch_scc1 %s' % lp)
            a('s_branch %s' % l1)
        self.tail.append(tail)
    def set_flag(self, ex):
        a = self.a
        if not ((self.o['ib'] or self.o['ib2']) and ex == 0): a('s_mov_b32 %s, 0x%x' % (sInc, 1 << (24*ex)))
        a('s_atomic_add %s, s[24:25], %s' % (sInc, sF))
    def poll(self, ex, under=None):
        a = self.a; lp, ok = self.label('poll'), self.label('pollok')
        if under:
            a('s_mov_b32 %s, 0' % sRv)
            a('s_atomic_add %s, s[24:25], %s glc' % (sRv, sE))
            under()
            a('s_waitcnt lgkmcnt(0)')
            a('s_bitcmp1_b32 %s, %d' % (sRv, 4+24*ex))
            a('s_cbranch_scc1 %s' % ok)
        a('s_mov_b32 %s, 0' % sCnt)
        a(lp+':')
        a('s_mov_b32 %s, 0' % sRv)
        a('s_atomic_add %s, s[24:25], %s glc' % (sRv, sE))
        a('s_add_u32 %s, %s, 1' % (sCnt, sCnt))
        a('s_cmp_gt_u32 %s, 0x%x' % (sCnt, SPIN_MAX))
        a('s_waitcnt lgkmcnt(0)')
        a('s_cbranch_scc1 %s' % ok)
        if self.o['slp']:
            a('s_bitcmp1_b32 %s, %d' % (sRv, 4+24*ex))
            a('s_cbranch_scc1 %s' % ok)
            a('s_sleep %s' % self.o['slp'])
            a('s_branch %s' % lp)
        else:
            a('s_bitcmp0_b32 %s, %d' % (sRv, 4+24*ex))
            a('s_cbranch_scc1 %s' % lp)
        a(ok+':')
        if self.o['pbar']: a('s_barrier')
    def code_pf(self, name):
        a = self.a
        l = self.label('pc')
        a('s_getpc_b64 s[28:29]')
        a(l+':')
        a('s_sub_u32 s28, s28, %s-%s' % (l, name))
        a('s_subb_u32 s29, s29, 0')
        a('v_lshlrev_b32 %s, 5, v0' % v(V.O+6))
        a('global_load_dword %s, %s, s[28:29]' % (v(V.dummy), v(V.O+6)))

    def code_spf(self, name):
        a = self.a
        l = self.label('pc')
        a('s_getpc_b64 s[28:29]')
        a(l+':')
        a('s_sub_u32 s28, s28, %s-%s' % (l, name))
        a('s_subb_u32 s29, s29, 0')
        a('s_lshr_b32 %s, s2, 4' % sA)
        a('s_lshl3_add_u32 %s, %s, %s' % (sA, sA, sW))
        a('s_lshl_b32 %s, %s, 7' % (sA, sA))
        a('s_load_dword s94, s[28:29], %s' % sA)

    def ifelse(self, reg, val, feq, fne, eq_first=False):
        a = self.a; l0, l1 = self.label('ie'), self.label('iend')
        if eq_first:
            a('s_cmp_lg_u32 %s, %d' % (reg, val)); a('s_cbranch_scc1 %s' % l0)
            feq(); a('s_branch %s' % l1); a(l0+':'); fne()
        else:
            a('s_cmp_eq_u32 %s, %d' % (reg, val)); a('s_cbranch_scc1 %s' % l0)
            fne(); a('s_branch %s' % l1); a(l0+':'); feq()
        a(l1+':')
    def touch(self, rnd):
        a = self.a
        a('s_mov_b64 exec, 0')
        for k in range(7):
            a('s_cmp_eq_u32 %s, %d' % (sW, k)); a('s_cbranch_scc1 stub_%d' % (8*rnd+k))
        a('s_branch stub_%d' % (8*rnd+7))
        a('ret_%d:' % rnd)
        a('s_mov_b64 exec, -1')

    def cond(self, reg, val, f):
        a = self.a; l = self.label('c')
        a('s_cmp_lg_u32 %s, %d' % (reg, val)); a('s_cbranch_scc1 %s' % l)
        f()
        a(l+':')

    def build_one(self):
        a = self.a; o = self.o
        name = NAME + '_kernel'
        self.kernel_head(name); end = self.label('end')
        self.prologue1(end)
        wA, wB = o['wA'], o['wB']
        def wat(pos, rows=(0, 1, 2, 3)):
            f = lambda: [self.w_dma1(i) for i in rows]
            if wA == pos and wB == pos: f()
            elif wA == pos: self.cond(sP, 0, f)
            elif wB == pos: self.cond(sP, 1, f)
        self.wat = wat
        bd = int(o['bdelay'])
        if o['touch'] == 'pre': self.touch(0)
        a('s_waitcnt lgkmcnt(0)')
        gz = o['gz']
        if gz: self.gz_issue()
        elif o['ib']: self.probe_issue()
        elif o['ib3']: self.p2_probe_issue(); self.zero3(); a('s_mov_b32 %s, 0' % sRd)
        elif o['ib2']: self.p2_probe_issue(); self.zero_flags()
        else: self.zero_flags()
        misc = lambda: (self.srds(), self.calc_k0(), self.w_prep(), self.gz_flag_addrs() if gz else self.flag_addrs3() if o['ib3'] else self.flag_addrs(), self.misc_ib2() if o['ib2'] else 0)
        if wB == 'first':
            def fb():
                misc(); self.w_dma()
                if bd == 0: self.p1_issue()
            self.ifelse(sP, 1, fb, self.p1_issue)
        elif bd: self.cond(sP, 0, self.p1_issue)
        else: self.p1_issue()
        if o['ib']: self.probe_eval(); self.zero_flags_ib()
        if gz: self.gz_publish(); a('s_mov_b32 s22, 256'); a('s_mov_b32 s23, 0x20000')
        if o['touch'] == 'post': self.touch(0)
        if o['touch']: self.cond(sT, 0, lambda: self.touch(1))
        if o['ib2']:
            self.p1_addrs(); self.p2_probe_eval(); self.gen_F16(); self.coop_init()
        else: self.p1_addrs(); self.gen_F16(); self.coop_init()
        if bd == 1: self.cond(sP, 1, self.p1_issue)
        self.gen_M2()
        if o['ib']: self.ex_addrs_ib(); self.set_ready_ib()
        elif gz: self.ex_addrs()
        elif o['ib3']: self.ex_addrs_ib2(); self.ready3()
        elif o['ib2']: self.ex_addrs_ib2(); self.set_ready()
        else: self.ex_addrs(); self.set_ready()
        X = [misc, self.coop_gen, lambda: self.gen_B(True, False), lambda: (self.p2_addrs(), self.w_addr())]
        nearly = max(0, bd-2)
        def early():
            for f in X[(1 if wB == 'first' else 0):nearly]: f()
            self.p1_issue()
        if bd >= 2: self.cond(sP, 1, early)
        def Xat(k):
            if k < nearly or (k == 0 and wB == 'first'): self.cond(sP, 0, X[k])
            else: X[k]()
        if gz: self.p1_compute(0, self.gz_read, None, lambda: (self.gz_check(), self.spec_early()))
        elif o['ib3']:
            self.vote_read()
            self.p1_compute(0, lambda: (self.vote_use(), self.spec_early()), None, self.p2_choice_use, self.p2_choice_read)
        elif o['ib2']: self.p1_compute(0, self.spec_early, None, self.p2_choice_use, self.p2_choice_read)
        else: self.p1_compute(0, self.spec_early)
        self.stamp()
        if not gz: self.ready_issue()
        Xat(0)
        n = 0
        Xat(1)
        self.coop_post()
        a('s_waitcnt vmcnt(%d) lgkmcnt(0)' % n)
        self.stamp()
        if not gz: self.ready_check()
        if o['ib']: self.flag_side()
        if o['ib3']: self.side3()
        self.set_flag(0)
        if o['ib']: self.flag_side2()
        if o['ib3']: self.side3b()
        def under1():
            self.w_sload()
            Xat(2); self.B_dup()
            Xat(3)
            self.w_special()
        self.poll(0, under1)
        self.stamp()
        if self.o.get('fine'):
            a('s_memrealtime s[%d:%d]' % (sTS+2*self.nts, sTS+2*self.nts+1)); self.nts += 1
            self.fstamp()
        if o['ib']: self.ld_addrs_ib()
        if o['ib2']: self.ld_addrs_ib2()
        self.p2_issue()
        if o['ib3']: self.side3c()
        elif o['ib2']: self.major_post()
        self.coop_wait(); self.coop_read()
        self.p2_addrs2()
        a('s_waitcnt vmcnt(4)')
        self.w_edge()
        self.p2_compute(True)
        self.stamp()
        if o['ib2'] and not o['ib3']: self.major_use2()
        self.gen_M3()
        a('s_waitcnt vmcnt(0)')
        self.stamp()
        self.set_flag(1)
        self.poll(1, self.p3_addrs)
        self.stamp()
        self.p3_issue()
        self.p3_soff()
        self.p3_compute()
        if o['ts']:
            self.stamp(); a('s_waitcnt vmcnt(0)'); self.stamp()
            if 'diag' in o:
                i = int(o['diag']); lp = self.label('dg')
                a('s_waitcnt lgkmcnt(0)')
                if 'xw' in o:
                    a('s_getreg_b32 %s, hwreg(HW_REG_XCC_ID, 0, 4)' % sA)
                    a('s_sub_u32 %s, %s, s2' % (sA, sA)); a('s_and_b32 %s, %s, 7' % (sA, sA)); a('s_mul_i32 %s, %s, 400' % (sA, sA))
                    if int(o['xw']) >= 0:
                        a('s_cmp_eq_u32 s2, %s' % o['xw']); a('s_cselect_b32 %s, %s, 0' % (sA, sA))
                else:
                    a('s_sub_u32 %s, s%d, s%d' % (sA, sTS+2*i, sTS+2*int(o.get('dj', 0))))
                    a('s_lshl_b32 %s, %s, 2' % (sA, sA))
                    if 'dp' in o:
                        a('s_cmp_eq_u32 %s, %s' % (sP, o['dp'])); a('s_cselect_b32 %s, %s, 0' % (sA, sA))
                a('s_add_u32 %s, %s, 3000' % (sA, sA))
                a(lp+':')
                a('s_memrealtime s[28:29]')
                a('s_waitcnt lgkmcnt(0)')
                a('s_sub_u32 %s, s28, s%d' % (sB, sTS))
                a('s_cmp_lt_u32 %s, %s' % (sB, sA))
                a('s_cbranch_scc1 %s' % lp)
            else:
                if o['ib'] or o['gz'] or o['ib2']: self.nts += 1
                self.dump_stamps(0)
        a(end+':'); a('s_endpgm'); self.flush_tail()
        if o['touch']: self.insert_stubs(name)
        a.raw('.fill (%s+16384-.)/4, 4, 0xbf810000' % name)
        launch = '; @launch grid=(256,1,1) block=(512,1,1) lds=%d\n' % LDS_TOTAL
        return self.finish(launch, [name])

    def insert_stubs(self, name):
        import subprocess, re
        from asmlib import Ins
        a = self.a
        txt = '.amdgcn_target "amdgcn-amd-amdhsa--gfx950"\n.text\n' + a.text() + ''.join('stub_%d:\n' % k for k in range(16)) + 's_endpgm\nspec_tab:\n'
        open('pass1.s', 'w').write(txt)
        subprocess.check_call(['clang', '-x', 'assembler', '-target', 'amdgcn-amd-amdhsa', '-mcpu=gfx950', '-c', 'pass1.s', '-o', 'pass1.o'])
        dis = subprocess.check_output(['llvm-objdump', '-d', '--mcpu=gfx950', 'pass1.o']).decode()
        addrs = [int(m.group(1), 16) for m in re.finditer(r'// ([0-9A-F]{12}):', dis)]
        real = [i for i, x in enumerate(a.ins) if x.kind != 'none']
        assert len(addrs) == len(real) + 1, (len(addrs), len(real))
        size = {real[k]: addrs[k+1] - addrs[k] for k in range(len(real))}
        pos = ENTRY_OFF; nxt = ENTRY_OFF + 1024 - 256
        nxt = (nxt + 1023)//1024*1024
        out = []; k = 0; prev = None; ez = False
        for i, x in enumerate(a.ins):
            if i in size:
                glued = prev is not None and (prev.op == 's_getpc_b64' or 'rel32' in x.text)
                if prev is not None and prev.text.strip() == 's_mov_b64 exec, 0': ez = True
                if prev is not None and prev.text.strip() == 's_mov_b64 exec, -1': ez = False
                glued = glued or ez
                if pos >= nxt and k < 16 and not glued:
                    out.append(Ins('stub_%d:' % k)); out.append(Ins('s_cbranch_execz ret_%d' % (k >> 3)))
                    pos += 4; k += 1; nxt += 1024
                pos += size[i]; prev = x
            out.append(x)
        self.code_end = pos
        while k < 16:
            out.append(Ins('stub_%d:' % k)); out.append(Ins('s_branch ret_%d' % (k >> 3))); k += 1
        a.ins = out

    def finish(self, launch, names):
        hdr = '; GFNet spectral filter (two heads): 2-D FFT via bf16 MFMA DFT stages. Generated by dev/gen.py\n' + launch
        s = hdr + '.amdgcn_target "amdgcn-amd-amdhsa--gfx950"\n.text\n' + self.a.text()
        s += '.section .rodata,"a"\n' + '\n'.join(self.kd(n) for n in names) + '\n' + self.spec_table() + '\n'
        return s

if __name__ == '__main__':
    mode = sys.argv[1]; out = sys.argv[2]
    opt = {}
    for kv in sys.argv[3:]:
        k, x = kv.split('=')
        opt[k] = {'True': True, 'False': False}.get(x, x.replace('+', ' '))
    g = Gen(mode, **opt)
    s = g.build_three() if mode == 'three' else g.build_one()
    assert g.a.verify() == 0
    open(out, 'w').write(s)
    print('vgprs', NVGPR, 'lds', LDS_TOTAL, 'nops', g.a.nops, 'lines', len(g.a.ins))
```

```python
import sys, struct, math
import numpy as np
from asmlib import Asm

NAME = 'concat_heads__spectral_gfnet__spectral_gfnet__prompt'

def f2u(x): return struct.unpack('<I', struct.pack('<f', x))[0]
def lit(x): return '0x%08x' % f2u(x)
def bf16bits(x):
    u = f2u(float(x)); return ((u + 0x7FFF + ((u >> 16) & 1)) >> 16) & 0xFFFF
def sigma(m): return (m & 1) | ((m >> 1) & 1) << 3 | ((m >> 2) & 1) << 1 | ((m >> 3) & 1) << 2 | (m & 16)

S11 = 2.0**-11
SPIN_MAX = 0x4000
ENTRY_OFF = 0x300
SENT = 0x13572468
WS_FLAG_IB = 32 << 20
WS_FLAG2 = 33 << 20
PW = 7
sCh2 = 's100'
R0 = 0
R1 = 33024
WL = 66048
SCR = WL + 8*4*1056
SCR_B = SCR + 36*256
TABL = SCR_B + 8192
CNT = TABL + 16384
LDS_TOTAL = CNT + 64
WS_U1 = 0
WS_U2 = 8 << 20
WS_FLAG = 32 << 20
WS_TS = 72 << 20
WS_SIZE = 80 << 20

class V: pass
_n = [0]
def alloc(n, align=1):
    b = (_n[0] + align - 1)//align*align
    _n[0] = b + n
    return b
V.tid = alloc(1); V.lane = alloc(1)
for nm in 'g n Xoff Est X0w X0r0 X0r1 X1w X1r X2w X2r WP WM l16 dummy dummy2'.split(): setattr(V, nm, alloc(1))
V.Ooff, V.X3w0, V.X3w1, V.X3r = V.Xoff, V.X0w, V.X0r0, V.X0r1
V.T = alloc(10, 1)
V.EL = alloc(4); V.Eld = V.EL+3; V.Eld0 = V.EL+3
V.O = alloc(16, 4)
V.DA = alloc(32, 4)
V.DB = alloc(32, 4)
V.L = V.DB
V.F16 = alloc(8, 4)
V.M2 = alloc(16, 4)
V.F32 = alloc(32, 4)
V.TW = alloc(32, 4)
V.W = alloc(32, 4)
V.B = alloc(12, 4)
V.Bp = alloc(8, 4)
V.WF = alloc(4)
NVGPR = _n[0]
assert NVGPR <= 256, NVGPR
def v(i): return 'v%d' % i
def vr(i, n): return 'v[%d:%d]' % (i, i+n-1)

SX, SWR, SWI, SOUT, SDBG, SWS = 's[4:7]', 's[8:11]', 's[12:15]', 's[16:19]', 's[20:23]', 's[24:27]'
sP, sT, sW, sSB, sCB, sK0 = 's30', 's31', 's32', 's33', 's34', 's35'
sKP, sKM = 's36', 's37'
sA, sB, sC, sD, sE, sF = 's40', 's41', 's42', 's43', 's44', 's45'
sEst, sEld, sCnt, sSpec = 's46', 's47', 's48', 's49'
sO = ['s52', 's53', 's54', 's55']
sRd, sRv, sInc, sWL = 's38', 's39', 's50', 's51'
ZT = 16
sDP, sDM, sZ, sZp, sCh = 's96', 's97', 's98', 's99', 's95'
sTS = 56

class Gen:
    def __init__(self, mode='one', **opt):
        self.mode = mode
        self.o = dict(ldx='', ldw='', st1='sc1', st2='sc1', sto='sc1', ld1='sc1', ld2='sc1', ts=False, stagger=True, pf=False, spf=False, touch='pre', fst='sc1', fld='sc1', slp='', fsh='', pbar=False, shear=True, prio=True, wA='postX1', wB='postX1', bdelay='4', optx=False, numa='', fl='', ib=False, ib2=False, ib3=False, pnop='15', gz=False, force='', skew=True, fstride=12)
        self.o.update(opt)
        self.a = Asm()
        self.lab = 0
        self.nts = 0
        self.tail = []

    def tstride(self): return 65536 if (self.o['numa'] != '' or self.o['ib'] or self.o['ib2']) else 32768
    def ubase(self, ex): return (ex << 24) if self.o['ib2'] else (ex << 20) if self.o['ib'] else (WS_U2 if ex else WS_U1)
    def eld(self, q, ex=0): return v(V.T+2+q) if (self.o['ib2'] and ex == 0) else v(V.EL+q) if self.o['ib'] else v(V.Eld)
    def est(self): return sZp if self.o['ib2'] else sEst
    def label(self, p='L'):
        self.lab += 1
        return '%s_%d' % (p, self.lab)

    def stamp(self):
        if 'da' in self.o:
            self.sid = getattr(self, 'sid', -1) + 1
            self.mark('s%d' % self.sid); return
        if not self.o['ts'] or self.o.get('fine'): return
        self.a('s_memrealtime s[%d:%d]' % (sTS+2*self.nts, sTS+2*self.nts+1))
        self.nts += 1

    def mark(self, nm):
        for key, reg in (('da', 58), ('db', 60)):
            if self.o.get(key) == nm: self.a('s_memrealtime s[%d:%d]' % (reg, reg+1))
    def fstamp(self):
        if not self.o.get('fine'): return
        self.a('s_memtime s[%d:%d]' % (sTS+2*self.nts, sTS+2*self.nts+1))
        self.nts += 1

    def dump_stamps(self, slot0=0):
        if not self.o['ts']: return
        a = self.a
        a('s_waitcnt lgkmcnt(0)')
        a('s_lshl_b32 %s, s2, 3' % sA); a('s_add_u32 %s, %s, %s' % (sA, sA, sW)); a('s_lshl_b32 %s, %s, 7' % (sA, sA))
        a('s_add_u32 %s, %s, 0x%x' % (sA, sA, WS_TS + slot0*4))
        a('s_mov_b64 exec, 1')
        a('v_mov_b32 %s, 0' % v(V.T+1))
        for i in range(self.nts):
            a('v_mov_b32 %s, s%d' % (v(V.T), sTS+2*i))
            a('buffer_store_dword %s, %s, %s, %s offen offset:%d' % (v(V.T), v(V.T+1), SWS, sA, 4*i))
            a('s_nop 1')
        a('s_mov_b64 exec, -1')
        self.nts = 0

    def prologue(self, end):
        a = self.a
        a('s_cmp_ge_u32 s2, 0x100')
        a('s_cbranch_scc1 %s' % end)
        self.stamp()
        a('s_bfe_u32 %s, s2, 0x10003' % sP)
        a('s_mul_i32 s3, %s, 24' % sP)
        a('s_add_u32 s28, s0, s3')
        a('s_addc_u32 s29, s1, 0')
        a('s_load_dwordx2 s[4:5], s[28:29], 0x0')
        a('s_load_dwordx2 s[8:9], s[28:29], 0x8')
        a('s_load_dwordx2 s[12:13], s[28:29], 0x10')
        a('s_load_dwordx2 s[16:17], s[0:1], 0x30')
        a('s_load_dwordx2 s[20:21], s[0:1], 0x38')
        a('s_load_dwordx2 s[24:25], s[0:1], 0x40')
        a('v_lshrrev_b32 %s, 6, v0' % v(V.T))
        a('v_and_b32 %s, 63, v0' % v(V.lane))
        a('v_readfirstlane_b32 %s, %s' % (sW, v(V.T)))
        a('s_and_b32 %s, s2, 7' % sA)
        a('s_xor_b32 %s, %s, 2' % (sA, sA))
        a('s_lshl_b32 %s, %s, 4' % (sT, sA))
        a('s_lshr_b32 %s, s2, 4' % sB)
        a('s_or_b32 %s, %s, %s' % (sT, sT, sB))
        a('s_lshl_b32 %s, %s, 1' % (sCB, sA))
        a('s_bfe_u32 %s, %s, 0x10001' % (sC, sB))
        a('s_or_b32 %s, %s, %s' % (sCB, sCB, sC))
        a('s_bfe_u32 %s, %s, 0x20002' % (sSB, sB))
        a('s_lshl_b32 %s, %s, 1' % (sSB, sSB))
        a('s_and_b32 %s, %s, 1' % (sC, sB))
        a('s_or_b32 %s, %s, %s' % (sSB, sSB, sC))
        a('s_mov_b32 s6, 0x400000'); a('s_mov_b32 s7, 0x20000')
        a('s_mov_b32 s10, 2101248'); a('s_mov_b32 s11, 0x20000')
        a('s_mov_b32 s14, 2101248'); a('s_mov_b32 s15, 0x20000')
        a('s_mov_b32 s18, 0x800000'); a('s_mov_b32 s19, 0x20000')
        a('s_mov_b32 s22, 256'); a('s_mov_b32 s23, 0x20000')
        a('s_mov_b32 s26, 0x%x' % WS_SIZE); a('s_mov_b32 s27, 0x20000')
        a('v_lshrrev_b32 %s, 4, %s' % (v(V.g), v(V.lane)))
        a('v_and_b32 %s, 15, %s' % (v(V.n), v(V.lane)))
        a('v_lshlrev_b32 %s, 4, %s' % (v(V.l16), v(V.lane)))

    def prologue1(self, end):
        a = self.a; T = V.T
        a('s_cmp_ge_u32 s2, 0x100')
        a('s_cbranch_scc1 %s' % end)
        if 'da' in self.o: a('s_memrealtime s[56:57]'); self.mark('start')
        a('s_bfe_u32 %s, s2, 0x%x' % (sP, 0x10002 if self.o['optx'] else 0x10003))
        a('s_mul_i32 s3, %s, 24' % sP)
        a('s_load_dwordx2 s[4:5], s[0:1], s3')
        a('s_load_dwordx2 s[24:25], s[0:1], 0x40')
        a('s_load_dwordx2 s[8:9], s[0:1], s3 offset:8')
        a('s_load_dwordx2 s[12:13], s[0:1], s3 offset:16')
        a('s_load_dwordx2 s[16:17], s[0:1], 0x30')
        a('s_load_dwordx2 s[20:21], s[0:1], 0x38')
        self.stamp()
        a('v_lshrrev_b32 %s, 6, v0' % v(T))
        a('v_and_b32 %s, 63, v0' % v(V.lane))
        a('v_readfirstlane_b32 %s, %s' % (sW, v(T)))
        if self.o['optx']:
            a('s_and_b32 %s, s2, 3' % sA)
            a('s_bfe_u32 %s, s2, 0x10003' % sB)
            a('s_lshl1_add_u32 %s, %s, %s' % (sA, sA, sB))
        else: a('s_and_b32 %s, s2, 7' % sA)
        a('s_lshr_b32 %s, s2, 4' % sB)
        a('s_lshl4_add_u32 %s, %s, %s' % (sT, sA, sB))
        a('s_bfe_u32 %s, %s, 0x10001' % (sC, sB))
        a('s_lshl1_add_u32 %s, %s, %s' % (sCB, sA, sC))
        a('s_lshr_b32 %s, %s, 2' % (sSB, sB))
        a('s_and_b32 %s, %s, 1' % (sC, sB))
        a('s_lshl1_add_u32 %s, %s, %s' % (sSB, sSB, sC))
        a('s_mov_b32 s6, 0x400000'); a('s_mov_b32 s7, 0x20000')
        a('v_lshrrev_b32 %s, 4, %s' % (v(V.g), v(V.lane)))
        a('v_lshlrev_b32 %s, 4, %s' % (v(V.l16), v(V.lane)))
        a('v_and_b32 %s, 8, v0' % v(T))
        a('v_lshlrev_b32 %s, 11, %s' % (v(T), v(T)))
        a('v_lshl_add_u32 %s, %s, 20, %s' % (v(T), v(V.g), v(T)))
        a('v_and_b32 %s, 0x70, %s' % (v(T+1), v(V.l16)))
        a('v_add_u32 %s, %s, %s' % (v(V.Xoff), v(T), v(T+1)))
        a('s_lshl4_add_u32 %s, %s, %s' % (sA, sW, sSB))
        a('s_lshl4_add_u32 %s, %s, %s' % (sA, sA, sCB))
        a('s_lshl_b32 %s, %s, 7' % (sO[0], sA))
        for r in range(1, 4): a('s_add_u32 %s, %s, 0x%x' % (sO[r], sO[0], r*262144))
        a('v_and_b32 %s, 15, %s' % (v(V.n), v(V.lane)))
        a('s_mov_b32 s26, 0x%x' % WS_SIZE); a('s_mov_b32 s27, 0x20000')
        a('s_lshl_b32 %s, %s, 7' % (sRd, sP))
    def srds(self):
        a = self.a
        a('s_mov_b32 s10, 2101248'); a('s_mov_b32 s11, 0x20000')
        a('s_mov_b32 s14, 2101248'); a('s_mov_b32 s15, 0x20000')
        a('s_mov_b32 s18, 0x800000'); a('s_mov_b32 s19, 0x20000')
        a('s_mov_b32 s22, 256'); a('s_mov_b32 s23, 0x20000')

    def probe_issue(self):
        a = self.a
        a('s_lshl3_add_u32 %s, %s, %s' % (sEst, sP, sW)); a('s_lshl_b32 %s, %s, 21' % (sEst, sEst))
        a('s_and_b32 %s, %s, 0x60' % (sA, sT)); a('s_add_u32 %s, %s, %s' % (sA, sA, sT)); a('s_lshl_b32 %s, %s, 8' % (sA, sA))
        a('s_add_u32 %s, %s, %s' % (sA, sA, sEst))
        for i in range(8): a('s_mov_b32 s%d, 0x%x' % (84+i, SENT))
        for k, side in ((0, 0), (0, 1), (1, 1), (1, 0), (2, 1), (2, 0), (3, 0), (3, 1)):
            a('s_load_dword s%d, s[24:25], %s offset:0x%x glc' % (84+4*side+k, sA, k*65536+side*8192))
    def probe_eval(self):
        a = self.a
        a('s_mov_b32 %s, 0' % sA); a('s_mov_b32 %s, 0' % sB)
        a('s_waitcnt lgkmcnt(4)')
        for k in range(4):
            a('s_cmp_lg_u32 s%d, 0x%x' % (84+k, SENT)); a('s_addc_u32 %s, %s, 0' % (sA, sA))
            a('s_cmp_lg_u32 s%d, 0x%x' % (88+k, SENT)); a('s_addc_u32 %s, %s, 0' % (sB, sB))
        a('s_cmp_gt_u32 %s, %s' % (sB, sA))
        a('s_cselect_b32 %s, 1, 0' % sCh)
        if self.o['force'] != '':
            a('s_and_b32 %s, %s, 1' % (sC, sW)); a('s_xor_b32 %s, %s, %s' % (sC, sC, sP)); a('s_xor_b32 %s, %s, %s' % (sCh, sC, self.o['force']))
        if self.o['ts']:
            a('s_lshl4_add_u32 s%d, %s, %s' % (sTS+24, sA, sB))
    def ex_addrs_ib(self):
        a = self.a; T = V.T
        a('s_lshl_b32 %s, %s, 4' % (sB, sW)); a('s_xor_b32 %s, %s, %s' % (sB, sB, sT)); a('s_lshl_b32 %s, %s, 8' % (sB, sB))
        a('v_lshlrev_b32 %s, 4, %s' % (v(T), v(V.n)))
        a('v_lshl_add_u32 %s, %s, 10, %s' % (v(T), v(V.g), v(T)))
        a('v_xor_b32 %s, %s, %s' % (v(T), sB, v(T)))
        a('v_and_b32 %s, 0x6000, %s' % (v(T+1), v(T)))
        a('v_add_u32 %s, %s, %s' % (v(T), v(T), v(T+1)))
        a('v_lshl_add_u32 %s, %s, 18, %s' % (v(V.Est), v(V.g), v(T)))
        a('v_and_b32 %s, 0xdcff, %s' % (v(V.Eld), v(T)))
        a('s_lshl_b32 %s, %s, 13' % (sA, sCh)); a('s_add_u32 %s, %s, %s' % (sEst, sEst, sA))
        a('s_lshr_b32 %s, %s, 4' % (sA, sT)); a('s_lshl3_add_u32 %s, %s, %s' % (sA, sP, sA)); a('s_lshl_b32 %s, %s, 21' % (sA, sA))
        a('s_and_b32 %s, %s, 15' % (sEld, sT)); a('s_lshl_b32 %s, %s, 16' % (sEld, sEld)); a('s_add_u32 %s, %s, %s' % (sEld, sEld, sA))
    def ld_addrs_ib(self):
        a = self.a; T = V.T
        a('v_lshrrev_b32 %s, %s, %s' % (v(T), v(V.dummy), sRv))
        for q in range(4):
            a('v_bfe_u32 %s, %s, %d, 1' % (v(T+1), v(T), q))
            a('v_lshl_add_u32 %s, %s, 13, %s' % (v(V.EL+q), v(T+1), v(V.Eld)))

    def ex_addrs(self):
        a = self.a
        if self.o['skew']:
            T = V.T
            a('s_lshl_b32 %s, %s, 4' % (sB, sW)); a('s_xor_b32 %s, %s, %s' % (sB, sB, sT)); a('s_lshl_b32 %s, %s, 8' % (sB, sB))
            a('v_lshlrev_b32 %s, 4, %s' % (v(T), v(V.n)))
            a('v_lshl_add_u32 %s, %s, 10, %s' % (v(T), v(V.g), v(T)))
            a('v_xor_b32 %s, %s, %s' % (v(T), sB, v(T)))
            if self.o['numa'] != '':
                pol = int(self.o['numa'][1]); mode = self.o['numa'][0]
                if mode == 'p':
                    a('v_and_b32 %s, 0x6000, %s' % (v(T+1), v(T)))
                    a('v_add_u32 %s, %s, %s' % (v(T), v(T), v(T+1)))
                    a('v_lshl_add_u32 %s, %s, 18, %s' % (v(V.Est), v(V.g), v(T)))
                    a('v_and_b32 %s, 0xdcff, %s' % (v(V.Eld), v(T)))
                    a('s_lshr_b32 %s, %s, 1' % (sA, sW)); a('s_lshr_b32 %s, %s, 6' % (sD, sT)); a('s_xor_b32 %s, %s, %s' % (sA, sA, sD))
                    a('s_lshr_b32 %s, %s, 5' % (sC, sT)); a('s_lshr_b32 %s, %s, 2' % (sD, sW)); a('s_xor_b32 %s, %s, %s' % (sC, sC, sD))
                    if pol: a('s_xor_b32 %s, %s, 1' % (sA, sA)); a('s_xor_b32 %s, %s, 1' % (sC, sC))
                    a('s_and_b32 %s, %s, 1' % (sA, sA)); a('s_and_b32 %s, %s, 1' % (sC, sC))
                    a('s_lshl_b32 %s, %s, 13' % (sA, sA)); a('s_lshl_b32 %s, %s, 13' % (sC, sC))
                    a('s_lshl_b32 %s, %s, 25' % (sD, sP)); a('s_add_u32 %s, %s, %s' % (sA, sA, sD)); a('s_add_u32 %s, %s, %s' % (sC, sC, sD))
                    a('s_lshl_b32 %s, %s, 20' % (sEst, sW)); a('s_add_u32 %s, %s, %s' % (sEst, sEst, sA))
                    a('s_lshl_b32 %s, %s, 16' % (sEld, sT)); a('s_add_u32 %s, %s, %s' % (sEld, sEld, sC))
                    return
                a('v_and_b32 %s, 0x6000, %s' % (v(T+1), v(T)))
                a('v_add_u32 %s, %s, %s' % (v(T), v(T), v(T+1)))
                a('v_lshl_add_u32 %s, %s, 18, %s' % (v(V.Est), v(V.g), v(T)))
                a('v_and_b32 %s, 0xdcff, %s' % (v(V.Eld), v(T)))
                if mode == 'x':
                    a('s_bfe_u32 %s, %s, 0x10001' % (sA, sW)); a('s_xor_b32 %s, %s, %s' % (sA, sA, sP))
                    a('s_bfe_u32 %s, %s, 0x10005' % (sC, sT)); a('s_xor_b32 %s, %s, %s' % (sC, sC, sP))
                    if pol: a('s_xor_b32 %s, %s, 1' % (sA, sA)); a('s_xor_b32 %s, %s, 1' % (sC, sC))
                    a('s_lshl_b32 %s, %s, 13' % (sA, sA)); a('s_lshl_b32 %s, %s, 13' % (sC, sC))
                    a('s_lshl_b32 %s, %s, 20' % (sEst, sW)); a('s_add_u32 %s, %s, %s' % (sEst, sEst, sA))
                    a('s_lshl_b32 %s, %s, 16' % (sEld, sT)); a('s_add_u32 %s, %s, %s' % (sEld, sEld, sC))
                else:
                    a('s_lshr_b32 %s, %s, 1' % (sA, sW)); a('s_lshr_b32 %s, %s, 2' % (sD, sW)); a('s_xor_b32 %s, %s, %s' % (sA, sA, sD))
                    a('s_lshr_b32 %s, %s, 5' % (sC, sT)); a('s_lshr_b32 %s, %s, 6' % (sD, sT)); a('s_xor_b32 %s, %s, %s' % (sC, sC, sD))
                    if pol: a('s_xor_b32 %s, %s, 1' % (sA, sA)); a('s_xor_b32 %s, %s, 1' % (sC, sC))
                    a('s_and_b32 %s, %s, 1' % (sA, sA)); a('s_and_b32 %s, %s, 1' % (sC, sC))
                    a('s_lshl_b32 %s, %s, 13' % (sA, sA)); a('s_lshl_b32 %s, %s, 13' % (sC, sC))
                    a('s_lshl_b32 %s, %s, 22' % (sD, sP)); a('s_add_u32 %s, %s, %s' % (sA, sA, sD)); a('s_add_u32 %s, %s, %s' % (sC, sC, sD))
                    a('s_and_b32 %s, %s, 3' % (sEst, sW)); a('s_lshl_b32 %s, %s, 20' % (sEst, sEst)); a('s_add_u32 %s, %s, %s' % (sEst, sEst, sA))
                    a('s_and_b32 %s, %s, 63' % (sEld, sT)); a('s_lshl_b32 %s, %s, 16' % (sEld, sEld)); a('s_add_u32 %s, %s, %s' % (sEld, sEld, sC))
                return
            a('v_lshl_add_u32 %s, %s, 17, %s' % (v(V.Est), v(V.g), v(T)))
            a('v_and_b32 %s, 0x7cff, %s' % (v(V.Eld), v(T)))
            a('s_lshl_b32 %s, %s, 22' % (sA, sP))
            a('s_lshl_b32 %s, %s, 19' % (sEst, sW)); a('s_add_u32 %s, %s, %s' % (sEst, sEst, sA))
            a('s_lshl_b32 %s, %s, 15' % (sEld, sT)); a('s_add_u32 %s, %s, %s' % (sEld, sEld, sA))
            return
        a('v_lshlrev_b32 %s, 4, %s' % (v(V.T), v(V.n)))
        a('v_lshl_add_u32 %s, %s, 17, %s' % (v(V.Est), v(V.g), v(V.T)))
        a('v_lshl_add_u32 %s, %s, 10, %s' % (v(V.Eld), v(V.g), v(V.T)))
        a('s_lshl_b32 %s, %s, 22' % (sA, sP))
        a('s_lshl_b32 %s, %s, 19' % (sEst, sW)); a('s_add_u32 %s, %s, %s' % (sEst, sEst, sA))
        a('s_lshl_b32 %s, %s, 8' % (sB, sT)); a('s_add_u32 %s, %s, %s' % (sEst, sEst, sB))
        a('s_lshl_b32 %s, %s, 15' % (sEld, sT)); a('s_add_u32 %s, %s, %s' % (sEld, sEld, sA))
        a('s_lshl_b32 %s, %s, 12' % (sB, sW)); a('s_add_u32 %s, %s, %s' % (sEld, sEld, sB))

    def trig(self, x, re, im, conj_re=None, conj_im=None):
        a = self.a; c, s = V.T+8, V.T+9
        a('v_cos_f32 %s, %s' % (v(c), v(x)))
        a('v_sin_f32 %s, %s' % (v(s), v(x)))
        a('v_cvt_pk_bf16_f32 %s, %s, %s' % (v(re), v(c), v(s)))
        a('v_cvt_pk_bf16_f32 %s, -%s, %s' % (v(im), v(s), v(c)))
        if conj_re is not None:
            a('v_cvt_pk_bf16_f32 %s, %s, -%s' % (v(conj_re), v(c), v(s)))
            a('v_cvt_pk_bf16_f32 %s, %s, %s' % (v(conj_im), v(s), v(c)))

    def gen_F16(self):
        a = self.a; T = V.T
        a('v_cvt_f32_u32 %s, %s' % (v(T), v(V.n)))
        a('v_mul_f32 %s, %s, %s' % (v(T), lit(1/16), v(T)))
        a('v_cvt_f32_u32 %s, %s' % (v(T+1), v(V.g)))
        a('v_mul_f32 %s, 4.0, %s' % (v(T+1), v(T+1)))
        a('v_mul_f32 %s, %s, %s' % (v(T+2), v(T), v(T+1)))
        for r in range(4):
            self.trig(T+2, V.F16+r, V.F16+4+r)
            if r < 3: a('v_add_f32 %s, %s, %s' % (v(T+2), v(T+2), v(T)))

    def gen_M2(self):
        a = self.a; T = V.T
        a('v_cvt_f32_u32 %s, %s' % (v(T+1), v(V.g)))
        a('v_mul_f32 %s, 4.0, %s' % (v(T+1), v(T+1)))
        def normal():
            a('v_lshl_add_u32 %s, %s, 4, %s' % (v(T), v(V.n), sW))
            a('v_cvt_f32_u32 %s, %s' % (v(T), v(T)))
            a('v_mul_f32 %s, %s, %s' % (v(T), lit(1/256), v(T)))
            a('v_mul_f32 %s, %s, %s' % (v(T+2), v(T), v(T+1)))
            for r in range(4):
                self.trig(T+2, V.M2+r, V.M2+4+r, V.M2+8+r, V.M2+12+r)
                if r < 3: a('v_add_f32 %s, %s, %s' % (v(T+2), v(T+2), v(T)))
        def w0():
            a('v_lshrrev_b32 %s, 1, %s' % (v(T), v(V.n)))
            a('v_cvt_f32_u32 %s, %s' % (v(T), v(T)))
            a('v_lshlrev_b32 %s, 31, %s' % (v(T+3), v(V.n)))
            a('v_add_f32 %s, 0.5, %s' % (v(T+4), v(T)))
            a('v_xor_b32 %s, %s, %s' % (v(T+3), lit(1/16), v(T+3)))
            a('v_mul_f32 %s, %s, %s' % (v(T), v(T), v(T+3)))
            a('v_mul_f32 %s, %s, %s' % (v(T+4), v(T+4), v(T+3)))
            a('v_cmp_ne_u32 vcc, 1, %s' % v(V.n))
            a('v_cndmask_b32 %s, 0.5, %s, vcc' % (v(T), v(T)))
            for ts in range(2):
                d = T+4*ts
                a('v_mul_f32 %s, %s, %s' % (v(T+2), v(d), v(T+1)))
                for r in range(4):
                    self.trig(T+2, V.M2+8*ts+r, V.M2+8*ts+4+r)
                    if r < 3: a('v_add_f32 %s, %s, %s' % (v(T+2), v(T+2), v(d)))
        self.ifelse(sW, 0, w0, normal)

    def gen_M3(self):
        a = self.a; T = V.T
        a('v_cvt_f32_u32 %s, %s' % (v(T), v(V.n)))
        a('v_mul_f32 %s, %s, %s' % (v(T+1), lit(1/256), v(T)))
        a('v_mul_f32 %s, %s, %s' % (v(T), lit(1/16), v(T)))
        def normal():
            a('v_lshl_add_u32 %s, %s, 6, %s' % (v(T+2), v(V.g), sW))
            a('v_cvt_f32_u32 %s, %s' % (v(T+2), v(T+2)))
            a('v_mul_f32 %s, %s, %s' % (v(T+2), v(T+2), v(T+1)))
            for r in range(4):
                self.trig(T+2, V.M2+r, V.M2+4+r, V.M2+8+r, V.M2+12+r)
                if r < 3: a('v_add_f32 %s, %s, %s' % (v(T+2), v(T+2), v(T)))
        def w0():
            for ts in range(2):
                a('v_lshlrev_b32 %s, 5, %s' % (v(T+2), v(V.g)))
                if ts: a('v_add_u32 %s, 8, %s' % (v(T+2), v(T+2)))
                a('v_cvt_f32_u32 %s, %s' % (v(T+2), v(T+2)))
                a('v_mul_f32 %s, %s, %s' % (v(T+2), v(T+2), v(T+1)))
                for eb in range(2):
                    b = V.M2+8*ts
                    self.trig(T+2, b+2*eb, b+4+2*eb, b+2*eb+1, b+4+2*eb+1)
                    if eb == 0: a('v_add_f32 %s, %s, %s' % (v(T+2), v(T+2), v(T)))
            a('s_mov_b64 exec, 0xffff')
            a('v_lshlrev_b32 %s, 15, %s' % (v(T+2), v(V.n)))
            a('v_and_b32 %s, 0x8000, %s' % (v(T+2), v(T+2)))
            a('v_or_b32 %s, 0x3f80, %s' % (v(V.M2+1), v(T+2)))
            a('v_lshlrev_b32 %s, 16, %s' % (v(V.M2+5), v(V.M2+1)))
            a('s_mov_b64 exec, -1')
        self.ifelse(sW, 0, w0, normal)

    def sigma_lane(self, dst):
        a = self.a; T = V.T
        a('v_and_b32 %s, 17, %s' % (v(dst), v(V.lane)))
        a('v_bfe_u32 %s, %s, 2, 2' % (v(T+7), v(V.lane)))
        a('v_lshl_add_u32 %s, %s, 1, %s' % (v(dst), v(T+7), v(dst)))
        a('v_bfe_u32 %s, %s, 1, 1' % (v(T+7), v(V.lane)))
        a('v_lshl_add_u32 %s, %s, 3, %s' % (v(dst), v(T+7), v(dst)))

    def gen_F32TW(self):
        a = self.a; T = V.T
        self.sigma_lane(T)
        a('v_cvt_f32_u32 %s, %s' % (v(T), v(T)))
        a('v_mul_f32 %s, %s, %s' % (v(T), lit(1/1024), v(T)))
        a('v_lshrrev_b32 %s, 5, %s' % (v(T+1), v(V.lane)))
        a('v_cvt_f32_u32 %s, %s' % (v(T+1), v(T+1)))
        a('v_add_f32 %s, %s, %s' % (v(T+1), v(T+1), v(T+1)))
        a('v_mul_f32 %s, %s, %s' % (v(T+1), v(T+1), v(T)))
        for rho in range(16):
            k = sigma(8*(rho >> 2) + (rho & 3))
            a('v_fmamk_f32 %s, %s, %s, %s' % (v(T+2), v(T), lit(float(k)), v(T+1)))
            a('v_mul_f32 %s, %s, %s' % (v(T+3), lit(32.0), v(T+2)))
            a('v_cos_f32 %s, %s' % (v(V.TW+rho), v(T+2)))
            a('v_sin_f32 %s, %s' % (v(V.TW+16+rho), v(T+2)))
            self.trig(T+3, V.F32+rho, V.F32+16+rho)

    def coop_gen(self):
        a = self.a; T = V.T; X = V.DA
        self.sigma_lane(T)
        a('v_cvt_f32_u32 %s, %s' % (v(T), v(T)))
        a('v_mul_f32 %s, %s, %s' % (v(T), lit(1/1024), v(T)))
        a('s_and_b32 %s, %s, 1' % (sA, sW)); a('s_lshl_b32 %s, %s, 3' % (sA, sA))
        a('s_and_b32 %s, %s, 2' % (sB, sW)); a('s_lshl_b32 %s, %s, 1' % (sB, sB)); a('s_add_u32 %s, %s, %s' % (sA, sA, sB))
        a('s_and_b32 %s, %s, 4' % (sB, sW)); a('s_lshl_b32 %s, %s, 2' % (sB, sB)); a('s_add_u32 %s, %s, %s' % (sA, sA, sB))
        a('v_lshrrev_b32 %s, 5, %s' % (v(T+1), v(V.lane)))
        a('v_lshl_add_u32 %s, %s, 1, %s' % (v(T+1), v(T+1), sA))
        a('v_cvt_f32_u32 %s, %s' % (v(T+1), v(T+1)))
        a('v_mul_f32 %s, %s, %s' % (v(T+2), v(T+1), v(T)))
        for e in range(2):
            a('v_mul_f32 %s, %s, %s' % (v(T+3), lit(32.0), v(T+2)))
            if self.o['shear']:
                a('v_mul_f32 %s, 0.5, %s' % (v(T+4), v(T+2)))
                a('v_cos_f32 %s, %s' % (v(T+5), v(T+4)))
                a('v_sin_f32 %s, %s' % (v(T+6), v(T+4)))
                a('v_rcp_f32 %s, %s' % (v(T+5), v(T+5)))
                a('v_mul_f32 %s, %s, %s' % (v(X+4+e), v(T+6), v(T+5)))
                a('v_fma_f32 %s, %s, %s, 1.0' % (v(T+5), v(X+4+e), v(X+4+e)))
                a('v_rcp_f32 %s, %s' % (v(T+6), v(T+5)))
                a('v_fma_f32 %s, -%s, %s, 1.0' % (v(T+5), v(T+5), v(T+6)))
                a('v_fmac_f32 %s, %s, %s' % (v(T+6), v(T+5), v(T+6)))
                a('v_mul_f32 %s, -2.0, %s' % (v(T+6), v(T+6)))
                a('v_mul_f32 %s, %s, %s' % (v(X+6+e), v(T+6), v(X+4+e)))
            else:
                a('v_cos_f32 %s, %s' % (v(X+4+e), v(T+2)))
                a('v_sin_f32 %s, %s' % (v(X+6+e), v(T+2)))
            self.trig(T+3, X+e, X+2+e)
            if e == 0: a('v_add_f32 %s, %s, %s' % (v(T+2), v(T+2), v(T)))
        a('s_lshr_b32 %s, %s, 1' % (sA, sW)); a('s_lshl_b32 %s, %s, 10' % (sA, sA))
        a('s_and_b32 %s, %s, 1' % (sB, sW)); a('s_lshl_b32 %s, %s, 3' % (sB, sB)); a('s_add_u32 %s, %s, %s' % (sA, sA, sB))
        a('s_add_u32 %s, %s, %d' % (sA, sA, TABL))
        a('v_add_u32 %s, %s, %s' % (v(T), sA, v(V.l16)))
        for k in range(4):
            a('ds_write_b64 %s, %s offset:%d' % (v(T), vr(X+2*k, 2), 4096*k))
    def coop_init(self):
        a = self.a; T = V.T
        a('v_mov_b32 %s, %d' % (v(V.dummy2), CNT)); a('v_mov_b32 %s, 0' % v(T))
        a('ds_write_b32 %s, %s' % (v(V.dummy2), v(T)))
    def coop_post(self):
        a = self.a; T = V.T
        a('v_mov_b32 %s, 1' % v(T+1))
        a('ds_add_u32 %s, %s' % (v(V.dummy2), v(T+1)))
    def coop_wait(self):
        a = self.a; T = V.T; lp, ok = self.label('cw'), self.label('cwok')
        a('s_mov_b32 %s, 0' % sCnt)
        a(lp+':')
        a('ds_read_b32 %s, %s' % (v(T), v(V.dummy2)))
        a('s_add_u32 %s, %s, 1' % (sCnt, sCnt))
        a('s_cmp_gt_u32 %s, 0x%x' % (sCnt, SPIN_MAX*8))
        a('s_waitcnt lgkmcnt(0)')
        a('s_cbranch_scc1 %s' % ok)
        a('v_cmp_gt_u32 vcc, 0x200, %s' % v(T))
        a('s_cbranch_vccnz %s' % lp)
        a(ok+':')
    def coop_read(self):
        a = self.a; T = V.T
        assert V.TW == V.F32+32
        a('v_add_u32 %s, %d, %s' % (v(T), TABL, v(V.l16)))
        for k in range(16):
            a('ds_read_b128 %s, %s offset:%d' % (vr(V.F32+4*k, 4), v(T), 1024*k))

    def calc_k0(self):
        a = self.a
        a('s_lshr_b32 %s, %s, 4' % (sA, sT))
        a('s_and_b32 %s, %s, 15' % (sB, sT))
        a('s_lshl_b32 %s, %s, 4' % (sK0, sB))
        a('s_add_u32 %s, %s, %s' % (sK0, sK0, sA))
        a('s_lshr_b32 %s, %s, 2' % (sC, sB)); a('s_lshl_b32 %s, %s, 5' % (sC, sC))
        a('s_and_b32 %s, %s, 1' % (sD, sB)); a('s_lshl_b32 %s, %s, 4' % (sD, sD)); a('s_add_u32 %s, %s, %s' % (sC, sC, sD))
        a('s_and_b32 %s, %s, 2' % (sD, sB)); a('s_lshl_b32 %s, %s, 2' % (sD, sD)); a('s_add_u32 %s, %s, %s' % (sC, sC, sD))
        a('s_cmp_eq_u32 %s, 0' % sA)
        a('s_cselect_b32 %s, %s, %s' % (sK0, sC, sK0))
        a('s_cmp_eq_u32 %s, 0' % sT)
        a('s_cselect_b32 %s, 7, 8' % sA)
        a('s_lshl_b32 %s, %s, %s' % (sKP, sW, sA))
        a('s_add_u32 %s, %s, %s' % (sKP, sKP, sK0))
        a('s_sub_u32 %s, 0x800, %s' % (sKM, sKP))
        a('s_cmp_eq_u32 %s, 0' % sKP)
        a('s_cselect_b32 %s, 0x400, %s' % (sKM, sKM))
        a('s_cselect_b32 %s, 1, 0' % sSpec)
        a('s_mul_i32 %s, %s, 1026' % (sKP, sKP))
        a('s_mul_i32 %s, %s, 1026' % (sKM, sKM))

    def wq(self, rho): return (rho & 1) + 8*((rho >> 1) & 1) + 4*((rho >> 2) & 1)
    def w_prep(self):
        a = self.a
        a('s_mul_i32 %s, %s, 4224' % (sWL, sW))
        a('s_add_u32 %s, %s, %d' % (sWL, sWL, WL))
        a('s_and_b32 %s, %s, 2' % (sA, sKP))
        a('s_add_u32 %s, %s, %s' % (sDP, sKP, sA)); a('s_add_u32 %s, %s, %s' % (sDM, sKM, sA))
    def w_dma1(self, i):
        a = self.a
        srd, so = [(SWR, sDP), (SWI, sDP), (SWR, sDM), (SWI, sDM)][i]
        a('s_add_u32 m0, %s, %d' % (sWL, 1056*i))
        a('buffer_load_dwordx4 %s, %s, %s offen %s lds' % (v(V.l16), srd, so, self.o['ldw']))
    def w_dma(self):
        for i in range(4): self.w_dma1(i)
    def w_sload(self):
        a = self.a; T = V.T
        a('s_mov_b64 exec, 15')
        a('v_mov_b32 %s, %s' % (v(T), sKP)); a('v_mov_b32 %s, %s' % (v(T+1), sKM))
        a('s_mov_b64 vcc, 10')
        a('v_cndmask_b32 %s, %s, %s, vcc' % (v(T), v(T), v(T+1)))
        a('v_and_b32 %s, 2, %s' % (v(T+1), v(V.lane)))
        a('v_lshl_add_u32 %s, %s, 9, %s' % (v(T), v(T+1), v(T)))
        a('buffer_load_short_d16_hi %s, %s, %s, 0 offen' % (v(V.WF), v(T), SWR))
        a('buffer_load_short_d16_hi %s, %s, %s, 0 offen' % (v(V.WF+1), v(T), SWI))
        a('s_mov_b64 exec, -1')
    def w_edge_rl(self):
        a = self.a
        for l in range(4):
            for im in range(2):
                a('v_readlane_b32 s%d, %s, %d' % (84+2*l+im, v(V.WF+im), l))
    def w_edge(self):
        a = self.a; T = V.T
        self.w_edge_rl()
        for i, (x, y, op) in enumerate(((84, 86, 'add'), (85, 87, 'sub'), (90, 88, 'add'), (91, 89, 'sub'))):
            a('v_mov_b32 %s, s%d' % (v(T), y))
            a('v_%s_f32 %s, s%d, %s' % (op, v(V.WF+i), x, v(T)))
            a('v_mul_f32 %s, 0.5, %s' % (v(V.WF+i), v(V.WF+i)))
        a('s_mov_b64 s[92:93], 1')
    def w_addr(self):
        a = self.a; T = V.T
        self.sigma_lane(T)
        a('v_lshrrev_b32 %s, 5, %s' % (v(T+1), v(V.lane)))
        a('v_lshlrev_b32 %s, 7, %s' % (v(T+1), v(T+1)))
        a('v_lshl_add_u32 %s, %s, 1, %s' % (v(T), v(T), v(T+1)))
        a('s_and_b32 %s, %s, 2' % (sD, sKP)); a('s_sub_u32 %s, %s, %s' % (sD, sWL, sD))
        a('v_add_u32 %s, %s, %s' % (v(V.WP), sD, v(T)))
        a('s_add_u32 %s, %s, %d' % (sD, sD, 1024-832))
        a('v_sub_u32 %s, %s, %s' % (v(V.WM), sD, v(T)))
    def w_read(self, rho, dst=None, swap=False):
        a = self.a; dst = V.W if dst is None else dst
        for im in range(2):
            if rho < 8: ad, off = V.WP, 64*self.wq(rho) + (2112 if swap else 0)
            else: ad, off = V.WM, 64*(13-self.wq(rho)) + (0 if swap else 2112)
            a('ds_read_u16_d16_hi %s, %s offset:%d' % (v(dst+16*im+rho), v(ad), off+1056*im))
    def w_fix(self, half):
        a = self.a
        for im in range(2):
            r = V.W+8*half+16*im
            a('v_cndmask_b32 %s, %s, %s, s[92:93]' % (v(r), v(r), v(V.WF+2*half+im)))
    def w_regs_early(self):
        a = self.a
        for rho in range(16): self.w_read(rho)
        a('s_waitcnt lgkmcnt(0)')
        self.w_fix(0); self.w_fix(1)
    def w_special(self):
        a = self.a; T = V.T
        l0, l1 = self.label('Wspec'), self.label('Wend')
        a('s_cmp_eq_u32 %s, 1' % sSpec)
        a('s_cbranch_scc1 %s' % l0)
        a(l1+':')
        def tail():
            X = V.DA
            a(l0+':')
            for rho in range(16): self.w_read(rho)
            for rho in range(16): self.w_read(rho, X, True)
            a('s_waitcnt lgkmcnt(0) vmcnt(0)')
            self.w_edge_rl()
            a('s_mov_b64 exec, 1')
            for r in (V.W+16, V.W+24, X+16, X+24): a('v_mov_b32 %s, 0' % v(r))
            a('v_mov_b32 %s, s90' % v(V.W+8)); a('v_mov_b32 %s, s88' % v(X+8))
            a('s_mov_b64 exec, -1')
            for i in range(32):
                a('v_add_f32 %s, %s, %s' % (v(T+3), v(V.W+i), v(X+i)))
                if (i & 15) < 8: a('v_sub_f32 %s, %s, %s' % (v(X+i), v(V.W+i), v(X+i)))
                else: a('v_sub_f32 %s, %s, %s' % (v(X+i), v(X+i), v(V.W+i)))
                a('v_mov_b32 %s, %s' % (v(V.W+i), v(T+3)))
            a('v_add_u32 %s, %d, %s' % (v(T+1), SCR_B, v(V.l16)))
            for i in range(8):
                a('ds_write_b128 %s, %s offset:%d' % (v(T+1), vr(X+4*i, 4), 1024*i))
            a('s_waitcnt lgkmcnt(0)')
            a('s_branch %s' % l1)
        self.tail.append(tail)

    def B_dup(self):
        a = self.a
        a('v_mov_b32 %s, %s' % (v(V.B+4), v(V.B))); a('v_mov_b32 %s, %s' % (v(V.B+5), v(V.B+1)))
        a('v_mov_b32 %s, %s' % (v(V.B+10), v(V.B+6))); a('v_mov_b32 %s, %s' % (v(V.B+11), v(V.B+7)))
    def gen_B(self, early=False, dup=True):
        a = self.a; T = V.T
        l0, l1 = self.label('Bspec'), self.label('Bend')
        a('s_cmp_eq_u32 %s, 0' % sT)
        a('s_cbranch_scc1 %s' % (l1 if early else l0))
        c, s = T+8, T+9
        a('v_lshrrev_b32 %s, 1, %s' % (v(T), v(V.n)))
        a('v_lshl_add_u32 %s, %s, 8, %s' % (v(T+1), v(T), sK0))
        a('v_cvt_f32_u32 %s, %s' % (v(T+1), v(T+1)))
        a('v_mul_f32 %s, %s, %s' % (v(T+1), lit(1/2048), v(T+1)))
        a('v_cvt_f32_u32 %s, %s' % (v(T+2), v(V.g)))
        a('v_add_f32 %s, %s, %s' % (v(T+2), v(T+2), v(T+2)))
        a('v_and_b32 %s, 1, %s' % (v(T+3), v(V.n)))
        a('v_cvt_f32_u32 %s, %s' % (v(T+3), v(T+3)))
        a('v_mul_f32 %s, %s, %s' % (v(T+4), lit(0.25), v(T+3)))
        a('v_mul_f32 %s, %s, %s' % (v(T+5), v(T+1), v(T+2)))
        for sbb in range(2):
            for half in range(2):
                a('v_%s_f32 %s, %s, %s' % ('sub' if half else 'add', v(T+6), v(T+5), v(T+4)))
                a('v_cos_f32 %s, %s' % (v(c), v(T+6)))
                a('v_sin_f32 %s, %s' % (v(s), v(T+6)))
                a('v_mul_f32 %s, %s, %s' % (v(c), lit(S11), v(c)))
                a('v_mul_f32 %s, %s, %s' % (v(s), lit(S11), v(s)))
                ng = '-' if half else ''
                a('v_cvt_pk_bf16_f32 %s, %s, %s%s' % (v(V.B+2*sbb+half), v(c), ng, v(s)))
                a('v_cvt_pk_bf16_f32 %s, -%s, %s%s' % (v(V.B+6+2*sbb+half), v(s), ng, v(c)))
            if sbb == 0: a('v_add_f32 %s, %s, %s' % (v(T+5), v(T+5), v(T+1)))
        a('v_cvt_f32_u32 %s, %s' % (v(T), v(T)))
        a('v_lshlrev_b32 %s, 31, %s' % (v(T+4), v(V.n)))
        a('v_xor_b32 %s, %s, %s' % (v(T), v(T), v(T+4)))
        a('v_xor_b32 %s, %s, %s' % (v(T+4), lit(S11), v(T+4)))
        a('v_lshl_add_u32 %s, %s, 9, %s' % (v(T+1), v(V.g), sK0))
        a('v_cvt_f32_u32 %s, %s' % (v(T+1), v(T+1)))
        a('v_mul_f32 %s, %s, %s' % (v(T+1), lit(1/2048), v(T+1)))
        a('v_mul_f32 %s, %s, %s' % (v(T+5), v(T+1), v(T)))
        a('v_fmac_f32 %s, 0.5, %s' % (v(T+5), v(T+3)))
        for ii in range(2):
            a('v_cos_f32 %s, %s' % (v(c), v(T+5)))
            a('v_sin_f32 %s, %s' % (v(s), v(T+5)))
            a('v_mul_f32 %s, %s, %s' % (v(T+6), v(T+4), v(c)))
            a('v_mul_f32 %s, %s, %s' % (v(T+7), v(T+4), v(s)))
            a('v_mul_f32 %s, %s, %s' % (v(c), lit(S11), v(c)))
            a('v_mul_f32 %s, %s, %s' % (v(s), lit(S11), v(s)))
            a('v_cvt_pk_bf16_f32 %s, %s, %s' % (v(V.Bp+2*ii), v(c), v(T+7)))
            a('v_cvt_pk_bf16_f32 %s, -%s, %s' % (v(V.Bp+4+2*ii), v(s), v(T+6)))
            a('v_cvt_pk_bf16_f32 %s, -%s, %s' % (v(V.Bp+2*ii+1), v(s), v(T+6)))
            a('v_cvt_pk_bf16_f32 %s, -%s, -%s' % (v(V.Bp+4+2*ii+1), v(c), v(T+7)))
            if ii == 0: a('v_fmac_f32 %s, %s, %s' % (v(T+5), lit(0.125), v(T)))
        a(l1+':')
        if dup: self.B_dup()
        def tail():
            a(l0+':')
            if not early: self.spec_load(); a('s_waitcnt vmcnt(0)')
            a('s_branch %s' % l1)
        if not early: self.tail.append(tail)
    def spec_load(self):
        a = self.a
        a('s_getpc_b64 s[28:29]')
        a('s_add_u32 s28, s28, spec_tab@rel32@lo+4')
        a('s_addc_u32 s29, s29, spec_tab@rel32@hi+12')
        a('global_load_dwordx4 %s, %s, s[28:29]' % (vr(V.B, 4), v(V.l16)))
        a('global_load_dwordx4 %s, %s, s[28:29] offset:1024' % (vr(V.B+6, 4), v(V.l16)))
        a('global_load_dwordx4 %s, %s, s[28:29] offset:2048' % (vr(V.Bp, 4), v(V.l16)))
        a('global_load_dwordx4 %s, %s, s[28:29] offset:3072' % (vr(V.Bp+4, 4), v(V.l16)))
    def spec_early(self):
        a = self.a
        def g():
            self.srds()
            a('s_mov_b32 %s, 0' % sDP); a('s_mov_b32 %s, %d' % (sDM, 1024*1026)); a('s_mov_b32 %s, %d' % (sWL, WL))
            self.w_dma()
        def f():
            self.spec_load(); self.cond(sW, 0, g)
        self.cond(sT, 0, f)

    def spec_table(self):
        tab = np.zeros((4, 64, 4, 2))
        for lane in range(64):
            m, g = lane & 15, lane >> 4
            for r in range(4):
                t, c = m >> 1, m & 1; sb, hf = 2*g + (r >> 1), r & 1
                if hf == (t & 1):
                    th = 2*math.pi*sb*t/16
                    tab[0, lane, r, c] = (2*S11 if t else S11)*math.cos(th)
                    tab[1, lane, r, c] = -2*S11*math.sin(th) if t else S11*(-1.0)**sb
                sb, hf = m >> 1, m & 1; t, c = 2*g + (r >> 1), r & 1
                if hf == (t & 1):
                    th = 2*math.pi*sb*t/16
                    if t: cre, cim = 2*math.cos(th), -2*math.sin(th)
                    else: cre, cim = 1.0, (-1.0)**sb
                    pl = 2 + (1 - c)
                    tab[pl, lane, r, 0] = S11*cim
                    tab[pl, lane, r, 1] = S11*cre
        tab[abs(tab) < 1e-12] = 0
        out = ['.p2align 6', '.type spec_tab,@object', 'spec_tab:']
        w = [bf16bits(tab[p, l, r, 0]) | bf16bits(tab[p, l, r, 1]) << 16 for p in range(4) for l in range(64) for r in range(4)]
        for i in range(0, len(w), 8):
            out.append('.long ' + ','.join('0x%x' % x for x in w[i:i+8]))
        return '\n'.join(out)

    def p1_load(self):
        a = self.a; T = V.T
        a('v_bfe_u32 %s, %s, 3, 1' % (v(T), v(V.lane)))
        a('v_lshlrev_b32 %s, 14, %s' % (v(T), v(T)))
        a('v_lshl_add_u32 %s, %s, 20, %s' % (v(T), v(V.g), v(T)))
        a('v_and_b32 %s, 0x70, %s' % (v(T+1), v(V.l16)))
        a('v_add_u32 %s, %s, %s' % (v(V.Xoff), v(T), v(T+1)))
        a('s_lshl_b32 %s, %s, 15' % (sO[0], sW))
        a('s_lshl_b32 %s, %s, 11' % (sA, sSB)); a('s_add_u32 %s, %s, %s' % (sO[0], sO[0], sA))
        a('s_lshl_b32 %s, %s, 7' % (sA, sCB)); a('s_add_u32 %s, %s, %s' % (sO[0], sO[0], sA))
        for r in range(1, 4): a('s_add_u32 %s, %s, 0x%x' % (sO[r], sO[0], r*262144))
    def p1_issue(self):
        a = self.a
        for r in range(4):
            a('buffer_load_dwordx4 %s, %s, %s, %s offen %s' % (vr(V.L+4*r, 4), v(V.Xoff), SX, sO[r], self.o['ldx']))
    def p1_addrs(self):
        a = self.a; T = V.T
        a('v_xor_b32 %s, %s, %s' % (v(T), sSB, v(V.lane)))
        a('v_and_b32 %s, 1, %s' % (v(T), v(T)))
        a('v_mul_u32_u24 %s, 16448, %s' % (v(T), v(T)))
        a('v_lshl_add_u32 %s, %s, 12, %s' % (v(T), v(V.g), v(T)))
        a('v_and_b32 %s, 14, %s' % (v(T+1), v(V.lane)))
        a('v_lshl_add_u32 %s, %s, 3, %s' % (v(T), v(T+1), v(T)))
        a('s_lshr_b32 %s, %s, 2' % (sA, sW)); a('s_lshl_b32 %s, %s, 9' % (sA, sA))
        a('s_and_b32 %s, %s, 1' % (sB, sW)); a('s_lshl_b32 %s, %s, 8' % (sB, sB)); a('s_add_u32 %s, %s, %s' % (sA, sA, sB))
        a('s_and_b32 %s, %s, 2' % (sB, sW)); a('s_lshl_b32 %s, %s, 6' % (sB, sB)); a('s_add_u32 %s, %s, %s' % (sA, sA, sB))
        if R0: a('s_add_u32 %s, %s, %d' % (sA, sA, R0))
        a('v_add_u32 %s, %s, %s' % (v(V.X0w), sA, v(T)))
        self.tr_lane(T, 512, 128)
        a('s_lshl_b32 %s, %s, 10' % (sA, sW))
        a('s_sub_u32 %s, 0x4000, %s' % (sB, sA))
        a('s_cmp_eq_u32 %s, 0' % sW)
        a('s_cselect_b32 %s, 0x2000, %s' % (sB, sB))
        if R0: a('s_add_u32 %s, %s, %d' % (sA, sA, R0)); a('s_add_u32 %s, %s, %d' % (sB, sB, R0))
        a('v_add_u32 %s, %s, %s' % (v(V.X0r0), sA, v(T)))
        a('v_add_u32 %s, %s, %s' % (v(V.X0r1), sB, v(T)))
    def tr_lane(self, dst, g1s, g0s, b3s=64):
        a = self.a; t = V.T+7
        sh = lambda x: int(math.log2(x))
        a('v_and_b32 %s, 0x30, %s' % (v(dst), v(V.l16)))
        for bit, st in ((2, 8), (3, b3s), (4, g0s), (5, g1s)):
            a('v_bfe_u32 %s, %s, %d, 1' % (v(t), v(V.lane), bit))
            a('v_lshl_add_u32 %s, %s, %d, %s' % (v(dst), v(t), sh(st), v(dst)))

    def mf16(self, d, A, B):
        self.a('v_mfma_f32_16x16x32_bf16 %s, %s, %s, 0' % (vr(d, 4), vr(A, 4), vr(B, 4)))
    def cvt(self, d, lo, hi):
        self.a('v_cvt_pk_bf16_f32 %s, %s, %s' % (v(d), v(lo), v(hi)))

    def p1_compute(self, nafter, hook=None, hook2=None, hook3=None, hook4=None):
        a = self.a; O, L, D = V.O, V.L, V.DA
        for r in range(4):
            a('s_waitcnt vmcnt(%d)' % (nafter + 3 - r))
            if r == 3: self.stamp()
            for t in range(4):
                a('v_mov_b32 %s, %s' % (v(O+4*t+r), v(L+4*r+t)))
        for t in range(4):
            self.mf16(D+4*t, V.F16, O+4*t)
            self.mf16(D+16+4*t, V.F16+4, O+4*t)
        if hook: hook()
        P = V.DB
        for r in range(4):
            self.cvt(P+4*r, D+r, D+4+r); self.cvt(P+4*r+2, D+16+r, D+20+r)
        for r in range(4):
            self.cvt(P+4*r+1, D+8+r, D+12+r); self.cvt(P+4*r+3, D+24+r, D+28+r)
            a('ds_write_b128 %s, %s offset:%d' % (v(V.X0w), vr(P+4*r, 4), 1024*r))
        a('s_waitcnt lgkmcnt(0)')
        a('s_barrier')
        if hook4: hook4()
        for sel in range(2):
            for tau in range(2):
                for ii in range(2):
                    a('ds_read_b64_tr_b16 %s, %s offset:%d' % (vr(O+4*(2*sel+tau)+2*ii, 2), v(V.X0r1 if sel else V.X0r0), tau*16448+ii*256))
        if hook2: hook2()
        if hook3: hook3()
        for r in range(4): a('s_add_u32 %s, %s, 0x%x' % (sO[r], self.est(), self.ubase(0) + r*self.tstride()))
        for ti in range(4):
            a('s_waitcnt lgkmcnt(%d)' % (6-2*ti))
            self.mf16(D+4*ti, V.M2+8*(ti >> 1), O+4*ti)
            self.mf16(D+16+4*ti, V.M2+8*(ti >> 1)+4, O+4*ti)
        st = lambda i: a('buffer_store_dwordx4 %s, %s, %s, %s offen %s' % (vr(P+4*i, 4), v(V.Est), SWS, sO[i], self.o['st1']))
        def normal():
            for i in range(4):
                for tau in range(2): self.cvt(P+4*i+2*tau, D+4*tau+i, D+16+4*tau+i)
            for i in range(4):
                for tau in range(2): self.cvt(P+4*i+2*tau+1, D+4*(2+tau)+i, D+16+4*(2+tau)+i)
                st(i)
        def w0():
            for i in range(4):
                ts, eb = i >> 1, i & 1
                for tau in range(2):
                    for sg in range(2):
                        x = 4*(2*ts+tau)+2*eb+sg
                        self.cvt(P+4*i+2*tau+sg, D+x, D+16+x)
                st(i)
        self.ifelse(sW, 0, w0, normal)

    def p2_addrs(self):
        a = self.a; T = V.T
        a('v_lshlrev_b32 %s, 4, %s' % (v(T), v(V.n)))
        a('v_lshl_add_u32 %s, %s, 13, %s' % (v(T), v(V.g), v(T)))
        a('s_lshl_b32 %s, %s, 9' % (sA, sW)); a('s_add_u32 %s, %s, %d' % (sA, sA, R1))
        a('v_add_u32 %s, %s, %s' % (v(V.X1w), sA, v(T)))
    def p2_addrs2(self):
        a = self.a; T = V.T
        self.tr_lane(T, 256, 64, 128)
        a('s_lshl_b32 %s, %s, 12' % (sA, sW)); a('s_add_u32 %s, %s, %d' % (sA, sA, R1))
        a('v_add_u32 %s, %s, %s' % (v(V.X1r), sA, v(T)))
        a('v_and_b32 %s, 16, %s' % (v(T), v(V.l16)))
        for bit, st in ((1, 16448), (2, 8224)):
            a('v_bfe_u32 %s, %s, %d, 1' % (v(T+1), v(V.lane), bit))
            a('v_mul_u32_u24 %s, %d, %s' % (v(T+1), st, v(T+1)))
            a('v_add_u32 %s, %s, %s' % (v(T), v(T), v(T+1)))
        a('v_bfe_u32 %s, %s, 3, 2' % (v(T+1), v(V.lane)))
        a('v_lshl_add_u32 %s, %s, 11, %s' % (v(T), v(T+1), v(T)))
        a('v_and_b32 %s, 32, %s' % (v(T+1), v(V.lane)))
        a('v_add_u32 %s, %s, %s' % (v(T), v(T), v(T+1)))
        a('s_lshr_b32 %s, %s, 2' % (sA, sW)); a('s_lshl_b32 %s, %s, 9' % (sA, sA))
        a('s_and_b32 %s, %s, 1' % (sB, sW)); a('s_lshl_b32 %s, %s, 8' % (sB, sB)); a('s_add_u32 %s, %s, %s' % (sA, sA, sB))
        a('s_and_b32 %s, %s, 2' % (sB, sW)); a('s_lshl_b32 %s, %s, 6' % (sB, sB)); a('s_add_u32 %s, %s, %s' % (sA, sA, sB))
        if R0: a('s_add_u32 %s, %s, %d' % (sA, sA, R0))
        a('v_add_u32 %s, %s, %s' % (v(V.X2w), sA, v(T)))
        self.tr_lane(T, 512, 128)
        a('s_and_b32 %s, %s, 1' % (sA, sW)); a('s_lshl_b32 %s, %s, 11' % (sA, sA))
        a('s_bfe_u32 %s, %s, 0x10001' % (sB, sW)); a('s_mul_i32 %s, %s, 16448' % (sB, sB)); a('s_add_u32 %s, %s, %s' % (sA, sA, sB))
        a('s_lshr_b32 %s, %s, 2' % (sB, sW)); a('s_lshl_b32 %s, %s, 12' % (sB, sB)); a('s_add_u32 %s, %s, %s' % (sA, sA, sB))
        if R0: a('s_add_u32 %s, %s, %d' % (sA, sA, R0))
        a('v_add_u32 %s, %s, %s' % (v(V.X2r), sA, v(T)))

    def p2_issue(self):
        a = self.a
        a('s_add_u32 %s, %s, 0x%x' % (sA, sEld, self.ubase(0)))
        for q in range(4):
            a('buffer_load_dwordx4 %s, %s, %s, %s offen offset:%d %s' % (vr(V.L+12*(q >> 1)+4*(q & 1), 4), self.eld(q), SWS, sA, 256*q, self.o['ld1']))

    def mf32(self, d, i, dataA):
        for pl in range(2):
            M = vr(V.F32+16*pl+4*i, 4); X = vr(V.O+4*i, 4)
            A, B = (X, M) if dataA else (M, X)
            D = vr(d+16*pl, 16)
            self.a('v_mfma_f32_32x32x16_bf16 %s, %s, %s, %s' % (D, A, B, D if i else '0'))

    def cmul_stage(self, src, dst, dataA, coef, kind, prio=None, late=False):
        a = self.a; T = V.T
        if prio is not None and self.o['prio']: a('s_setprio %d' % prio)
        if kind == 'tw' and self.o['shear']:
            for i in range(4):
                for st in range(3):
                    for r in range(4):
                        rho = 4*i+r
                        x, y = v(src+rho), v(src+16+rho)
                        if st == 1: a('v_fmac_f32 %s, %s, %s' % (y, v(coef+16+rho), x))
                        else: a('v_fmac_f32 %s, %s, %s' % (x, v(coef+rho), y))
                for r in range(4): self.cvt(V.O+4*i+r, src+4*i+r, src+16+4*i+r)
                self.mf32(dst, i, dataA)
            return
        if late:
            a('s_waitcnt vmcnt(2)')
            for rho in range(8): self.w_read(rho)
        for i in range(4):
            if late:
                if i == 0: a('s_waitcnt lgkmcnt(8)'); self.w_fix(0)
                if i == 1:
                    a('s_waitcnt vmcnt(0)')
                    for rho in range(8, 12): self.w_read(rho)
                    a('s_waitcnt lgkmcnt(8)')
                if i == 2:
                    for rho in range(12, 16): self.w_read(rho)
                    a('s_waitcnt lgkmcnt(8)'); self.w_fix(1)
                if i == 3: a('s_waitcnt lgkmcnt(0)')
            for r in range(4):
                rho = 4*i+r
                x, y = v(src+rho), v(src+16+rho)
                c, s = v(coef+rho), v(coef+16+rho)
                t0, t1 = v(T+2*r), v(T+2*r+1)
                a('v_mul_f32 %s, %s, %s' % (t0, x, c))
                a('v_mul_f32 %s, %s, %s' % (t1, y, c))
            for r in range(4):
                rho = 4*i+r
                x, y = v(src+rho), v(src+16+rho)
                c, s = v(coef+rho), v(coef+16+rho)
                t0, t1 = v(T+2*r), v(T+2*r+1)
                if kind == 'tw' or rho >= 8:
                    a('v_fmac_f32 %s, %s, %s' % (t0, y, s))
                    a('v_fma_f32 %s, -%s, %s, %s' % (t1, x, s, t1))
                else:
                    a('v_fma_f32 %s, -%s, %s, %s' % (t0, y, s, t0))
                    a('v_fmac_f32 %s, %s, %s' % (t1, x, s))
            for r in range(4):
                if kind == 'tw': self.cvt(V.O+4*i+r, T+2*r, T+2*r+1)
                else: self.cvt(V.O+4*i+r, T+2*r+1, T+2*r)
            self.mf32(dst, i, dataA)

    def p2_compute(self, wl=None):
        a = self.a; O, L, D, T = V.O, V.L, V.DA, V.T
        late = wl is not None
        na = 0
        for cbb in range(2):
            b = L+12*cbb
            a('s_waitcnt vmcnt(%d)' % (na+3-2*cbb))
            a('v_mov_b32 %s, %s' % (v(b+8), v(b))); a('v_mov_b32 %s, %s' % (v(b+9), v(b+1)))
            a('s_waitcnt vmcnt(%d)' % (na+2-2*cbb))
            if cbb: self.stamp(); self.fstamp()
            for jj2 in (1, 0):
                ti = 2*cbb+jj2
                op = b+2 if jj2 else b+6
                mo = 0 if jj2 else 2
                self.mf16(D+4*ti, V.B+mo, op)
                self.mf16(D+16+4*ti, V.B+6+mo, op)
        for cbb in range(2):
            for k1b in range(2):
                P = O+4*(2*cbb+k1b)
                for pl in range(2):
                    for jj2 in (1, 0):
                        x = D+16*pl+4*(2*cbb+jj2)+2*k1b
                        self.cvt(P+2*pl+jj2, x, x+1)
                a('ds_write_b128 %s, %s offset:%d' % (v(V.X1w), vr(P, 4), k1b*4096+cbb*256))
        self.fstamp()
        a('s_waitcnt lgkmcnt(0)')
        self.fstamp()
        if self.o.get('fine'): a('s_waitcnt lgkmcnt(0)')
        a('s_barrier')
        if self.o['prio']: a('s_setprio 3')
        for i in range(4):
            for ii in range(2):
                a('ds_read_b64_tr_b16 %s, %s offset:%d' % (vr(O+4*i+2*ii, 2), v(V.X1r), ii*1024+(i & 1)*512+(i >> 1)*2048))
        for i in range(4):
            if late and i in (0, 2): self.wat('postX1', (i, i+1))
            a('s_waitcnt lgkmcnt(%d)' % (6-2*i))
            self.mf32(V.DA, i, True)
        self.fstamp()
        if late: self.wat('tw1')
        self.cmul_stage(V.DA, V.DB, False, V.TW, 'tw', 2)
        self.fstamp()
        l0, l1 = self.label('PWspec'), self.label('PWend')
        a('s_cmp_eq_u32 %s, 1' % sSpec)
        a('s_cbranch_scc1 %s' % l0)
        if self.o.get('fine'): a('s_waitcnt lgkmcnt(0)')
        self.cmul_stage(V.DB, V.DA, True, V.W, 'w', 1, late)
        a(l1+':')
        self.fstamp()
        self.cmul_stage(V.DA, V.DB, True, V.TW, 'tw', 0)
        self.fstamp()
        D = V.DB
        rho = lambda jj3, jj1, jj2, c: 4*(2*jj3+jj1)+2*jj2+c
        for c in range(2):
            for jj1 in range(2):
                P = O+4*(2*c+jj1)
                for pl in range(2):
                    for jj3 in range(2):
                        self.cvt(P+2*pl+jj3, D+16*pl+rho(jj3, jj1, 0, c), D+16*pl+rho(jj3, jj1, 1, c))
                a('ds_write_b128 %s, %s offset:%d' % (v(V.X2w), vr(P, 4), c*64+jj1*1024))
                if self.o['ib2'] and not self.o['ib3'] and c == 0 and jj1 == 0: self.major_read()
        self.fstamp()
        a('s_waitcnt lgkmcnt(0)')
        if self.o['ib2'] and not self.o['ib3']: self.major_use()
        self.fstamp()
        if self.o.get('fine'): a('s_waitcnt lgkmcnt(0)')
        a('s_barrier')
        for cbb in range(2):
            for jj1 in range(2):
                for ii in range(2):
                    a('ds_read_b64_tr_b16 %s, %s offset:%d' % (vr(O+4*(2*cbb+jj1)+2*ii, 2), v(V.X2r), ii*256+jj1*1024+cbb*8224))
        for r in range(4): a('s_add_u32 %s, %s, 0x%x' % (sO[r], self.est(), self.ubase(1) + r*self.tstride()))
        D = V.DA
        for ti in range(4):
            a('s_waitcnt lgkmcnt(%d)' % (6-2*ti))
            self.mf16(D+4*ti, V.Bp, O+4*ti)
            self.mf16(D+16+4*ti, V.Bp+4, O+4*ti)
        self.fstamp()
        P = V.DB
        for q in range(4):
            cbb, sbb = q >> 1, q & 1
            for jj1 in range(2):
                for hf in range(2):
                    x = 4*(2*cbb+jj1)+2*sbb+hf
                    self.cvt(P+4*q+2*jj1+hf, D+x, D+16+x)
            a('buffer_store_dwordx4 %s, %s, %s, %s offen %s' % (vr(P+4*q, 4), v(V.Est), SWS, sO[q], self.o['st2']))
        self.fstamp()
        if self.o.get('fine'):
            a('s_memrealtime s[%d:%d]' % (sTS+2*self.nts, sTS+2*self.nts+1)); self.nts += 1
        def tail():
            C = V.DB; X = V.DA
            a(l0+':')
            self.sigma_lane(T)
            a('v_lshrrev_b32 %s, 5, %s' % (v(T+1), v(V.lane)))
            a('v_lshlrev_b32 %s, 9, %s' % (v(T+1), v(T+1)))
            a('v_lshl_add_u32 %s, %s, 2, %s' % (v(T+2), v(T), v(T+1)))
            a('v_add_u32 %s, %d, %s' % (v(T+2), SCR, v(T+2)))
            a('v_add_u32 %s, 128, %s' % (v(T+3), v(T+2)))
            a('v_sub_u32 %s, 32, %s' % (v(T+4), v(T)))
            a('v_lshrrev_b32 %s, 5, %s' % (v(T+5), v(T+4)))
            a('v_and_b32 %s, 31, %s' % (v(T+4), v(T+4)))
            a('v_lshlrev_b32 %s, 2, %s' % (v(T+4), v(T+4)))
            a('v_lshl_add_u32 %s, %s, 8, %s' % (v(T+4), v(T+5), v(T+4)))
            a('v_sub_u32 %s, %s, %s' % (v(T+4), v(T+4), v(T+1)))
            a('v_add_u32 %s, %d, %s' % (v(T+4), SCR + 2*256, v(T+4)))
            a('v_add_u32 %s, 128, %s' % (v(T+5), v(T+4)))
            a('v_add_u32 %s, %d, %s' % (v(T+6), SCR_B, v(V.l16)))
            qs = lambda rho: sigma(8*(rho >> 2) + (rho & 3))
            for pl in range(2):
                for rho in range(0, 16, 2):
                    a('ds_write2st64_b32 %s, %s, %s offset0:%d offset1:%d' % (v(T+2+pl), v(C+16*pl+rho), v(C+16*pl+rho+1), qs(rho), qs(rho+1)))
                a('ds_write_b32 %s, %s offset:%d' % (v(T+2+pl), v(C+16*pl), 32*256))
            a('s_waitcnt lgkmcnt(0)')
            t0, t1 = v(T+8), v(T+9)
            for half in range(2):
                for pl in range(2):
                    for k in range(0, 8, 2):
                        rho_ = 8*half+k
                        a('ds_read2st64_b32 %s, %s offset0:%d offset1:%d' % (vr(X+8*pl+k, 2), v(T+4+pl), 29-qs(rho_), 29-qs(rho_+1)))
                    for k in range(2):
                        a('ds_read_b128 %s, %s offset:%d' % (vr(X+16+8*pl+4*k, 4), v(T+6), 1024*(4*pl+2*half+k)))
                a('s_waitcnt lgkmcnt(0)')
                for k in range(8):
                    rho_ = 8*half+k
                    x, y = v(C+rho_), v(C+16+rho_); ar, ai = v(V.W+rho_), v(V.W+16+rho_)
                    p, q_ = v(X+k), v(X+8+k); br, bi = v(X+16+k), v(X+24+k)
                    ng, ps = ('', '-') if half else ('-', '')
                    a('v_mul_f32 %s, %s, %s' % (t0, x, ar))
                    a('v_mul_f32 %s, %s, %s' % (t1, y, ar))
                    a('v_fma_f32 %s, %s%s, %s, %s' % (t0, ng, y, ai, t0))
                    a('v_fma_f32 %s, %s%s, %s, %s' % (t1, ps, x, ai, t1))
                    a('v_fmac_f32 %s, %s, %s' % (t0, p, br))
                    a('v_fma_f32 %s, -%s, %s, %s' % (t1, q_, br, t1))
                    a('v_fma_f32 %s, %s%s, %s, %s' % (t0, ps, q_, bi, t0))
                    a('v_fma_f32 %s, %s%s, %s, %s' % (t1, ps, p, bi, t1))
                    self.cvt(O+rho_, T+9, T+8)
            for i in range(4): self.mf32(V.DA, i, True)
            a('s_nop 11')
            a('s_branch %s' % l1)
        self.tail.append(tail)

    def p3_addrs(self):
        a = self.a; T = V.T
        a('v_and_b32 %s, 16, %s' % (v(T), v(V.lane)))
        for bit, st in ((0, 32), (3, 4096), (5, 1024)):
            a('v_bfe_u32 %s, %s, %d, 1' % (v(T+1), v(V.lane), bit))
            a('v_lshl_add_u32 %s, %s, %d, %s' % (v(T), v(T+1), int(math.log2(st)), v(T)))
        for bit, st in ((1, 8208), (2, 16448)):
            a('v_bfe_u32 %s, %s, %d, 1' % (v(T+1), v(V.lane), bit))
            a('v_mul_u32_u24 %s, %d, %s' % (v(T+1), st, v(T+1)))
            a('v_add_u32 %s, %s, %s' % (v(T), v(T), v(T+1)))
        a('s_sub_u32 %s, 16, %s' % (sC, sW))
        a('s_cmp_eq_u32 %s, 0' % sW)
        a('s_cselect_b32 %s, 8, %s' % (sC, sC))
        for kl, dst in ((sW, V.X3w0), (sC, V.X3w1)):
            a('s_and_b32 %s, %s, 9' % (sA, kl)); a('s_lshl_b32 %s, %s, 6' % (sA, sA))
            a('s_and_b32 %s, %s, 2' % (sB, kl)); a('s_lshl_b32 %s, %s, 7' % (sB, sB)); a('s_add_u32 %s, %s, %s' % (sA, sA, sB))
            a('s_and_b32 %s, %s, 4' % (sB, kl)); a('s_lshl_b32 %s, %s, 5' % (sB, sB)); a('s_add_u32 %s, %s, %s' % (sA, sA, sB))
            a('s_add_u32 %s, %s, %d' % (sA, sA, R1))
            a('v_add_u32 %s, %s, %s' % (v(dst), sA, v(T)))
        self.tr_lane(T, 512, 128)
        a('s_and_b32 %s, %s, 1' % (sA, sW)); a('s_mul_i32 %s, %s, 8208' % (sA, sA))
        a('s_bfe_u32 %s, %s, 0x10001' % (sB, sW)); a('s_mul_i32 %s, %s, 16448' % (sB, sB)); a('s_add_u32 %s, %s, %s' % (sA, sA, sB))
        a('s_lshr_b32 %s, %s, 2' % (sB, sW)); a('s_lshl_b32 %s, %s, 12' % (sB, sB)); a('s_add_u32 %s, %s, %s' % (sA, sA, sB))
        a('s_add_u32 %s, %s, %d' % (sA, sA, R1))
        a('v_add_u32 %s, %s, %s' % (v(V.X3r), sA, v(T)))
        a('v_bfe_u32 %s, %s, 3, 1' % (v(T), v(V.lane)))
        a('v_lshlrev_b32 %s, 15, %s' % (v(T), v(T)))
        a('v_lshl_add_u32 %s, %s, 21, %s' % (v(T), v(V.g), v(T)))
        a('v_and_b32 %s, 0x70, %s' % (v(T+1), v(V.l16)))
        a('v_add_u32 %s, %s, %s' % (v(V.Ooff), v(T), v(T+1)))
    def p3_soff(self):
        a = self.a
        a('s_lshl_b32 %s, %s, 16' % (sO[0], sW))
        a('s_lshl_b32 %s, %s, 12' % (sA, sSB)); a('s_add_u32 %s, %s, %s' % (sO[0], sO[0], sA))
        a('s_lshl_b32 %s, %s, 7' % (sA, sCB)); a('s_add_u32 %s, %s, %s' % (sO[0], sO[0], sA))
        a('s_lshl_b32 %s, %s, 11' % (sA, sP)); a('s_add_u32 %s, %s, %s' % (sO[0], sO[0], sA))
        for r in range(1, 4): a('s_add_u32 %s, %s, 0x%x' % (sO[r], sO[0], r*524288))
    def p3_issue(self):
        a = self.a
        a('s_add_u32 %s, %s, 0x%x' % (sA, sEld, self.ubase(1)))
        for q in range(4):
            a('buffer_load_dwordx4 %s, %s, %s, %s offen offset:%d %s' % (vr(V.L+4*q, 4), self.eld(q, 1), SWS, sA, 256*q, self.o['ld2']))
    def p3_compute(self):
        a = self.a; O, L, D = V.O, V.L, V.DA
        def normal():
            for i in range(4):
                a('s_waitcnt vmcnt(%d)' % (3-i))
                for sel in range(2):
                    for col in range(2):
                        a('v_mov_b32 %s, %s' % (v(O+4*(2*sel+col)+i), v(L+4*i+2*col+sel)))
        def w0():
            for i in range(4):
                ts, eb = i >> 1, i & 1
                a('s_waitcnt vmcnt(%d)' % (3-i))
                for col in range(2):
                    for sg in range(2):
                        a('v_mov_b32 %s, %s' % (v(O+4*(2*ts+col)+2*eb+sg), v(L+4*i+2*col+sg)))
        self.ifelse(sW, 0, w0, normal, True)
        self.stamp()
        for ti in range(4):
            self.mf16(D+4*ti, O+4*ti, V.M2+8*(ti >> 1))
            self.mf16(D+16+4*ti, O+4*ti, V.M2+8*(ti >> 1)+4)
        P = V.DB
        for ti in range(4):
            for pl in range(2):
                for k in range(2):
                    x = D+16*pl+4*ti+2*k
                    self.cvt(P+4*ti+2*pl+k, x, x+1)
            a('ds_write_b128 %s, %s offset:%d' % (v(V.X3w1 if ti >> 1 else V.X3w0), vr(P+4*ti, 4), (ti & 1)*2048))
        a('s_waitcnt lgkmcnt(0)')
        a('s_barrier')
        for t in range(4):
            for ii in range(2):
                a('ds_read_b64_tr_b16 %s, %s offset:%d' % (vr(O+4*t+2*ii, 2), v(V.X3r), ii*256+t*1024))
        for t in range(4):
            a('s_waitcnt lgkmcnt(%d)' % (6-2*t))
            self.mf16(D+4*t, V.F16, O+4*t)
            self.mf16(D+16+4*t, V.F16+4, O+4*t)
        for t in range(3):
            for r in range(4): self.cvt(P+4*r+t, D+16+4*t+r, D+4*t+r)
        for r in range(4):
            self.cvt(P+4*r+3, D+16+12+r, D+12+r)
            a('buffer_store_dwordx4 %s, %s, %s, %s offen %s' % (vr(P+4*r, 4), v(V.Ooff), SOUT, sO[r], self.o['sto']))

    def flush_tail(self):
        t, self.tail = self.tail, []
        for f in t: f()

    def kernel_head(self, name):
        self.a.raw('.globl %s\n.p2align 12\n.p2align 8\n.type %s,@function\n%s:' % (name, name, name))
    def kd(self, name):
        return '''.p2align 6
.amdhsa_kernel %s
  .amdhsa_next_free_vgpr %d
  .amdhsa_next_free_sgpr 102
  .amdhsa_accum_offset %d
  .amdhsa_group_segment_fixed_size 0
  .amdhsa_kernarg_size 72
  .amdhsa_user_sgpr_count 2
  .amdhsa_user_sgpr_kernarg_segment_ptr 1
  .amdhsa_system_sgpr_workgroup_id_x 1
.end_amdhsa_kernel''' % (name, NVGPR, (NVGPR+3)//4*4)

    def build_three(self):
        a = self.a
        names = ['gf_p1_kernel', 'gf_p2_kernel', 'gf_p3_kernel']
        self.kernel_head(names[0]); end = self.label('end')
        self.prologue(end); self.p1_load(); a('s_waitcnt lgkmcnt(0)'); self.p1_issue()
        self.ex_addrs(); self.p1_addrs(); self.gen_F16(); self.gen_M2()
        self.p1_compute(0)
        if self.o['ts']: self.stamp(); a('s_waitcnt vmcnt(0)'); self.stamp(); self.dump_stamps(0)
        a(end+':'); a('s_endpgm'); self.flush_tail()
        self.kernel_head(names[1]); end = self.label('end')
        self.prologue(end); self.ex_addrs(); self.calc_k0(); a('s_waitcnt lgkmcnt(0)')
        self.w_dma(); self.p2_addrs(); self.gen_B(); self.gen_F32TW()
        a('s_waitcnt vmcnt(0)'); self.w_regs(); a('s_waitcnt lgkmcnt(0)')
        self.p2_issue(); self.p2_compute()
        if self.o['ts']: self.stamp(); a('s_waitcnt vmcnt(0)'); self.stamp(); self.dump_stamps(8)
        a(end+':'); a('s_endpgm'); self.flush_tail()
        self.kernel_head(names[2]); end = self.label('end')
        self.prologue(end); self.ex_addrs(); a('s_waitcnt lgkmcnt(0)'); self.p3_issue()
        self.p3_addrs(); self.p3_soff(); self.gen_F16(); self.gen_M3()
        self.p3_compute()
        if self.o['ts']: self.stamp(); a('s_waitcnt vmcnt(0)'); self.stamp(); self.dump_stamps(16)
        a(end+':'); a('s_endpgm'); self.flush_tail()
        launch = ''.join('; @launch kernel=%s grid=(256,1,1) block=(512,1,1) lds=%d\n' % (n, LDS_TOTAL) for n in names)
        return self.finish(launch, names)

    def flag_addrs(self):
        a = self.a
        if self.o['ib']:
            a('s_lshr_b32 %s, %s, 4' % (sB, sT))
            for dst, wp, gr in ((sF, sW, sB), (sE, sB, sW)):
                a('s_lshl3_add_u32 %s, %s, %s' % (sA, sP, wp)); a('s_lshl_b32 %s, %s, 21' % (sA, sA))
                a('s_lshl_b32 %s, %s, 10' % (sC, gr)); a('s_add_u32 %s, %s, %s' % (sA, sA, sC))
                a('s_add_u32 %s, %s, 0x%x' % (dst, sA, WS_FLAG_IB))
            a('s_and_b32 %s, %s, 15' % (sA, sT)); a('s_add_u32 %s, %s, 8' % (sA, sA))
            a('s_lshl_b32 %s, %s, %s' % (sInc, sCh, sA)); a('s_add_u32 %s, %s, 1' % (sInc, sInc))
            a('v_lshl_add_u32 %s, %s, 2, 8' % (v(V.dummy), v(V.g)))
            return
        if self.o['fl'] != '':
            pol = int(self.o['fl'][1]); mode = self.o['fl'][0]
            a('s_lshr_b32 %s, %s, 4' % (sB, sT))
            for dst, wp, gr in ((sF, sW, sB), (sE, sB, sW)):
                a('s_lshl3_add_u32 %s, %s, %s' % (sA, sP, wp))
                if mode == 'x': a('s_xor_b32 %s, %s, %d' % (sC, sP, pol))
                else: a('s_lshr_b32 %s, %s, 2' % (sC, wp)); a('s_xor_b32 %s, %s, %d' % (sC, sC, pol))
                a('s_lshl1_add_u32 %s, %s, %s' % (sA, sA, sC))
                a('s_lshl3_add_u32 %s, %s, %s' % (sA, sA, gr))
                a('s_lshl_b32 %s, %s, 10' % (sA, sA))
                a('s_add_u32 %s, %s, 0x%x' % (dst, sA, WS_FLAG))
            return
        fs = int(self.o['fstride'])
        a('s_lshl_b32 %s, %s, %d' % (sA, sP, fs+6)); a('s_add_u32 %s, %s, 0x%x' % (sA, sA, WS_FLAG))
        a('s_lshr_b32 %s, %s, 4' % (sB, sT))
        a('s_lshl_b32 %s, %s, %d' % (sF, sW, fs+3)); a('s_add_u32 %s, %s, %s' % (sF, sF, sA))
        a('s_lshl_b32 %s, %s, %d' % (sC, sB, fs)); a('s_add_u32 %s, %s, %s' % (sF, sF, sC))
        a('s_lshl_b32 %s, %s, %d' % (sE, sB, fs+3)); a('s_add_u32 %s, %s, %s' % (sE, sE, sA))
        a('s_lshl_b32 %s, %s, %d' % (sC, sW, fs)); a('s_add_u32 %s, %s, %s' % (sE, sE, sC))
    def p2_probe_issue(self):
        a = self.a
        def f():
            a('s_bfe_u32 %s, %s, 0x30003' % (sA, sT)); a('s_lshl3_add_u32 %s, %s, %s' % (sA, sP, sA))
            a('s_lshr_b32 %s, %s, 6' % (sCh2, sT))
            a('s_lshl1_add_u32 %s, %s, %s' % (sA, sA, sCh2))
            a('s_and_b32 %s, %s, 7' % (sB, sT)); a('s_lshl3_add_u32 %s, %s, %s' % (sA, sA, sB))
            a('s_lshl_b32 %s, %s, 10' % (sA, sA)); a('s_add_u32 %s, %s, 0x%x' % (sA, sA, WS_FLAG2))
            a('s_xor_b32 %s, %s, 0x2000' % (sB, sA))
            a('s_mov_b64 s[92:93], 0')
            a('s_atomic_swap s92, s[24:25], %s glc' % sA)
            a('s_atomic_swap s93, s[24:25], %s glc' % sB)
        self.cond(sW, PW, f)
    def p2_probe_eval(self):
        a = self.a; T = V.T
        def f():
            a('s_waitcnt lgkmcnt(1)')
            a('s_nop %s' % self.o['pnop'])
            a('s_getreg_b32 %s, hwreg(HW_REG_IB_STS, 8, 4)' % sA)
            a('s_cmp_eq_u32 %s, 0' % sA)
            a('s_cselect_b32 %s, 1, 0' % sA)
            a('s_xor_b32 %s, %s, %s' % (sCh2, sCh2, sA))
            if self.o['force'] != '': a('s_xor_b32 %s, %s, %s' % (sCh2, sP, self.o['force']))
            if not self.o['ib3']:
                a('v_mov_b32 %s, %d' % (v(T), CNT)); a('v_mov_b32 %s, %s' % (v(T+1), sCh2))
                a('ds_write_b32 %s, %s offset:4' % (v(T), v(T+1)))
            if self.o['ib3']:
                l = self.label('nv')
                a('s_and_b32 %s, s2, 0x8f' % sA); a('s_cmp_lg_u32 %s, 8' % sA); a('s_cbranch_scc1 %s' % l)
                a('s_cmp_eq_u32 s2, 120'); a('s_cbranch_scc1 %s' % l)
                a('s_lshl_b32 s94, %s, 8' % sCh2); a('s_add_u32 s94, s94, 0x1001')
                a('s_atomic_add s94, s[20:21], 0x0')
                a(l+':')
        self.cond(sW, PW, f)
    def vote_read(self):
        a = self.a
        def f():
            a('s_mov_b32 s22, 256'); a('s_mov_b32 s23, 0x20000')
            a('v_mov_b32 %s, 0' % v(V.EL))
            a('buffer_load_dword %s, %s, %s, 0 offen sc1' % (v(V.dummy), v(V.EL), SDBG))
        self.cond(sW, PW, f)
    def vote_use(self):
        a = self.a; T = V.T
        def f():
            a('v_readfirstlane_b32 %s, %s' % (sA, v(V.dummy)))
            a('s_bfe_u32 %s, %s, 0x40008' % (sB, sA)); a('s_bfe_u32 %s, %s, 0x4000c' % (sC, sA))
            a('s_sub_u32 %s, %s, %s' % (sC, sC, sB))
            a('s_xor_b32 %s, %s, 1' % (sA, sP))
            a('s_cmp_ge_u32 %s, 4' % sB); a('s_cselect_b32 %s, %s, %s' % (sCh2, sA, sCh2))
            a('s_cmp_ge_u32 %s, 4' % sC); a('s_cselect_b32 %s, %s, %s' % (sCh2, sP, sCh2))
            a('v_mov_b32 %s, %s' % (v(T+1), sCh2))
            a('ds_write_b32 %s, %s offset:4' % (v(V.dummy2), v(T+1)))
        self.cond(sW, PW, f)
    def zero3(self):
        a = self.a
        a('s_sub_u32 %s, s2, 16' % sZ)
        a('s_and_b32 %s, %s, 0xffffffef' % (sZ, sZ))
        def f():
            a('s_lshr_b32 %s, s2, 5' % sA)
            a('s_lshl1_add_u32 %s, %s, %s' % (sA, sW, sA))
            a('s_lshl_b32 %s, %s, 13' % (sA, sA)); a('s_add_u32 %s, %s, 0x%x' % (sA, sA, WS_FLAG))
            for i in range(0, 8, 2): a('s_mov_b64 s[%d:%d], 0' % (84+i, 85+i))
            for i in range(8):
                a('s_atomic_swap s%d, s[24:25], %s offset:0x%x glc' % (84+i, sA, i << 10))
        self.cond(sZ, 0, f)
    def ready3(self):
        a = self.a
        def f():
            a('s_mov_b32 s94, 1')
            a('s_waitcnt lgkmcnt(0)')
            a('s_atomic_add s94, s[20:21], 0x0')
        self.cond(sZ, 0, f)
    def flag_addrs3(self):
        a = self.a
        a('s_lshr_b32 %s, %s, 4' % (sB, sT))
        for dst, wp, gr in ((sF, sW, sB), (sE, sB, sW)):
            a('s_lshl4_add_u32 %s, %s, %s' % (sC, wp, gr)); a('s_lshl_b32 %s, %s, 10' % (sC, sC))
            a('s_add_u32 %s, %s, 0x%x' % (dst, sC, WS_FLAG))
    def side3(self):
        a = self.a
        a('s_bfe_u32 %s, %s, 0x1000a' % (sCh2, sRv))
        a('s_xor_b32 %s, %s, %s' % (sCh2, sCh2, sP)); a('s_lshl_b32 %s, %s, 13' % (sCh2, sCh2))
        a('s_add_u32 %s, %s, %s' % (sF, sF, sCh2))
    def side3b(self):
        a = self.a
        a('s_add_u32 %s, %s, %s' % (sE, sE, sCh2))
        a('s_xor_b32 %s, %s, %s' % (sZp, sEst, sCh2))
    def side3c(self):
        a = self.a
        a('s_and_b32 %s, %s, 0x2000' % (sA, sZ)); a('s_xor_b32 %s, %s, %s' % (sA, sA, sCh2)); a('s_add_u32 %s, %s, %s' % (sEld, sEld, sA))
    def p2_choice_read(self):
        self.a('ds_read_b32 %s, %s offset:4' % (v(V.dummy), v(V.dummy2)))
    def p2_choice_use(self):
        a = self.a
        a('s_waitcnt lgkmcnt(8)')
        a('v_readfirstlane_b32 %s, %s' % (sCh2, v(V.dummy)))
        a('s_lshl_b32 %s, %s, 13' % (sA, sCh2))
        a('s_xor_b32 %s, %s, %s' % (sZp, sEst, sA))
        if self.o['ts']: a('s_mov_b32 s%d, %s' % (sTS+24, sCh2))
    def ex_addrs_ib2(self):
        a = self.a; T = V.T
        a('s_lshl_b32 %s, %s, 4' % (sB, sW)); a('s_xor_b32 %s, %s, %s' % (sB, sB, sT)); a('s_lshl_b32 %s, %s, 8' % (sB, sB))
        a('v_lshlrev_b32 %s, 4, %s' % (v(T), v(V.n)))
        a('v_lshl_add_u32 %s, %s, 10, %s' % (v(T), v(V.g), v(T)))
        a('v_xor_b32 %s, %s, %s' % (v(T), sB, v(T)))
        a('v_and_b32 %s, 0x6000, %s' % (v(T+1), v(T)))
        a('v_add_u32 %s, %s, %s' % (v(T), v(T), v(T+1)))
        a('v_lshl_add_u32 %s, %s, 18, %s' % (v(V.Est), v(V.g), v(T)))
        a('v_and_b32 %s, 0xdcff, %s' % (v(V.Eld0), v(T)))
        a('s_lshl3_add_u32 %s, %s, %s' % (sEst, sP, sW)); a('s_lshl_b32 %s, %s, 20' % (sEst, sEst))
        a('s_and_b32 %s, %s, 2' % (sA, sW)); a('s_lshl_b32 %s, %s, 12' % (sA, sA)); a('s_add_u32 %s, %s, %s' % (sEst, sEst, sA))
    def misc_ib2(self):
        a = self.a
        a('s_lshl_b32 %s, %s, 7' % (sEld, sP)); a('s_add_u32 %s, %s, %s' % (sEld, sEld, sT)); a('s_lshl_b32 %s, %s, 16' % (sEld, sEld))
        a('s_and_b32 %s, %s, 15' % (sA, sT)); a('s_add_u32 %s, %s, 8' % (sA, sA))
        a('s_lshl_b32 %s, %s, %s' % (sInc, sCh2, sA)); a('s_add_u32 %s, %s, 1' % (sInc, sInc))
        a('v_lshl_add_u32 %s, %s, 2, 8' % (v(V.dummy), v(V.g)))
        a('s_bfe_i32 %s, %s, 0x10005' % (sZ, sT))
    def ld_addrs_ib2(self):
        a = self.a; T = V.T
        a('s_xor_b32 %s, %s, %s' % (sA, sRv, sZ))
        a('v_lshrrev_b32 %s, %s, %s' % (v(T), v(V.dummy), sA))
        for q in range(4):
            a('v_bfe_u32 %s, %s, %d, 1' % (v(T+1), v(T), q))
            a('v_lshl_add_u32 %s, %s, 13, %s' % (v(T+2+q), v(T+1), v(V.Eld0)))
    def major_post(self):
        a = self.a; T = V.T
        def f():
            a('s_bfe_u32 %s, %s, 0x100008' % (sA, sRv)); a('s_bcnt1_i32_b32 %s, %s' % (sA, sA))
            a('s_cmp_gt_u32 %s, 8' % sA); a('s_cselect_b32 %s, 0x2000, 0' % sA)
            a('v_mov_b32 %s, %s' % (v(T), sA))
            a('ds_write_b32 %s, %s offset:8' % (v(V.dummy2), v(T)))
        self.cond(sW, 0, f)
    def major_read(self):
        self.a('ds_read_b32 %s, %s offset:8' % (v(V.dummy), v(V.dummy2)))
    def major_use(self):
        a = self.a
        a('v_readfirstlane_b32 %s, %s' % (sCh2, v(V.dummy)))
        a('s_xor_b32 %s, %s, %s' % (sZp, sEst, sCh2))
    def major_use2(self):
        a = self.a
        a('s_and_b32 %s, %s, 0x2000' % (sA, sZ)); a('s_xor_b32 %s, %s, %s' % (sA, sA, sCh2)); a('s_add_u32 %s, %s, %s' % (sEld, sEld, sA))
        a('s_lshr_b32 %s, %s, 4' % (sB, sT))
        for dst, wp, gr in ((sF, sW, sB), (sE, sB, sW)):
            a('s_lshl3_add_u32 %s, %s, %s' % (sA, sP, wp)); a('s_lshl4_add_u32 %s, %s, %s' % (sA, sA, gr)); a('s_lshl_b32 %s, %s, 10' % (sA, sA))
            a('s_add_u32 %s, %s, %s' % (sA, sA, sCh2)); a('s_add_u32 %s, %s, 0x%x' % (dst, sA, WS_FLAG2))

    def gz_issue(self):
        a = self.a
        a('s_sub_u32 %s, s2, 16' % sZ)
        a('s_and_b32 %s, %s, 0xffffffef' % (sZ, sZ))
        def f():
            a('s_lshr_b32 %s, s2, 5' % sZp)
            a('s_lshl1_add_u32 %s, %s, %s' % (sCh, sW, sZp))
            a('s_lshl_b32 %s, %s, 13' % (sCh, sCh)); a('s_add_u32 %s, %s, 0x%x' % (sCh, sCh, WS_FLAG))
            for i in range(0, 8, 2): a('s_mov_b64 s[%d:%d], 0' % (84+i, 85+i))
            for i in range(8):
                a('s_atomic_swap s%d, s[24:25], %s offset:0x%x glc' % (84+i, sCh, i << 10))
        self.cond(sZ, 0, f)
    def gz_publish(self):
        a = self.a
        def f():
            a('s_waitcnt lgkmcnt(0)')
            a('s_memtime s[84:85]')
            a('s_mov_b32 s88, 0')
            a('s_waitcnt lgkmcnt(0)')
            a('s_atomic_add s88, s[24:25], %s glc' % sCh)
            a('s_waitcnt lgkmcnt(0)')
            a('s_memtime s[86:87]')
            a('s_mul_i32 %s, %s, 13' % (sZp, sZp)); a('s_add_u32 %s, %s, 5' % (sZp, sZp))
            a('s_waitcnt lgkmcnt(0)')
            a('s_sub_u32 s84, s86, s84'); a('s_lshr_b32 s84, s84, 3'); a('s_min_u32 s84, s84, 0x3ff')
            a('s_lshl_b32 s84, s84, %s' % sZp); a('s_add_u32 s84, s84, 1')
            a('s_atomic_add s84, s[20:21], 0x0')
        self.cond(sZ, 0, f)
    def gz_read(self):
        a = self.a
        a('v_mov_b32 %s, 0' % v(V.EL))
        a('buffer_load_dword %s, %s, %s, 0 offen sc1' % (v(V.dummy), v(V.EL), SDBG))
    def gz_check(self):
        a = self.a; l0, l1 = self.label('gz'), self.label('gzok')
        a('s_waitcnt vmcnt(0)')
        a('v_readfirstlane_b32 %s, %s' % (sRv, v(V.dummy)))
        a('s_bitcmp1_b32 %s, 4' % sRv)
        a('s_cbranch_scc1 %s' % l1)
        a('s_mov_b32 %s, 0' % sCnt)
        a(l0+':')
        a('buffer_load_dword %s, %s, %s, 0 offen sc1' % (v(V.dummy), v(V.EL), SDBG))
        a('s_add_u32 %s, %s, 1' % (sCnt, sCnt))
        a('s_cmp_gt_u32 %s, 0x%x' % (sCnt, SPIN_MAX))
        a('s_waitcnt vmcnt(0)')
        a('v_readfirstlane_b32 %s, %s' % (sRv, v(V.dummy)))
        a('s_cbranch_scc1 %s' % l1)
        a('s_bitcmp0_b32 %s, 4' % sRv)
        a('s_cbranch_scc1 %s' % l0)
        a(l1+':')
        a('s_bfe_u32 %s, %s, 0xd0005' % (sA, sRv)); a('s_bfe_u32 %s, %s, 0xd0012' % (sB, sRv))
        a('s_cmp_lt_u32 %s, %s' % (sB, sA))
        a('s_cselect_b32 %s, 0x2000, 0' % sCh)
        if self.o['force'] != '': a('s_mov_b32 %s, %d' % (sCh, int(self.o['force']) << 13))
        a('s_xor_b32 %s, %s, %s' % (sEst, sEst, sCh))
        if self.o['ts']: a('s_mov_b32 s%d, %s' % (sTS+24, sRv))
    def gz_flag_addrs(self):
        a = self.a
        a('s_xor_b32 %s, %s, %s' % (sEld, sEld, sCh))
        a('s_lshr_b32 %s, %s, 4' % (sB, sT))
        a('s_lshl_b32 %s, %s, 13' % (sA, sP)); a('s_xor_b32 %s, %s, %s' % (sA, sA, sCh)); a('s_add_u32 %s, %s, 0x%x' % (sA, sA, WS_FLAG))
        for dst, wp, gr in ((sF, sW, sB), (sE, sB, sW)):
            a('s_lshl4_add_u32 %s, %s, %s' % (sC, wp, gr)); a('s_lshl_b32 %s, %s, 10' % (sC, sC))
            a('s_add_u32 %s, %s, %s' % (dst, sC, sA))

    def zero_flags_ib(self):
        a = self.a
        def f():
            a('s_waitcnt lgkmcnt(0)')
            a('s_lshl_b32 %s, %s, 13' % (sA, sCh)); a('s_add_u32 %s, %s, %s' % (sA, sA, sEst)); a('s_add_u32 %s, %s, 0x%x' % (sA, sA, WS_FLAG_IB))
            for i in range(0, 8, 2): a('s_mov_b64 s[%d:%d], 0' % (84+i, 85+i))
            for i in range(8):
                a('s_atomic_swap s%d, s[24:25], %s offset:0x%x glc' % (84+i, sA, i << 10))
        self.cond(sT, 1, f)
    def set_ready_ib(self):
        a = self.a
        def f():
            a('s_add_u32 %s, %s, 8' % (sA, sW)); a('s_lshl_b32 %s, %s, %s' % (sZ, sCh, sA)); a('s_add_u32 %s, %s, 1' % (sZ, sZ))
            a('s_waitcnt lgkmcnt(0)')
            a('s_atomic_add %s, s[20:21], %s' % (sZ, sRd))
        self.cond(sT, 1, f)
    def flag_side(self):
        a = self.a
        a('s_lshr_b32 %s, %s, 8' % (sRv, sRv))
        a('s_lshr_b32 %s, %s, %s' % (sA, sRv, sW)); a('s_and_b32 %s, %s, 1' % (sA, sA)); a('s_lshl_b32 %s, %s, 13' % (sA, sA)); a('s_add_u32 %s, %s, %s' % (sF, sF, sA))
    def flag_side2(self):
        a = self.a
        a('s_lshr_b32 %s, %s, 4' % (sB, sT))
        a('s_lshr_b32 %s, %s, %s' % (sA, sRv, sB)); a('s_and_b32 %s, %s, 1' % (sA, sA)); a('s_lshl_b32 %s, %s, 13' % (sA, sA)); a('s_add_u32 %s, %s, %s' % (sE, sE, sA))
    def zero_flags(self):
        a = self.a
        a('s_sub_u32 %s, s2, 16' % sZ)
        a('s_and_b32 %s, %s, 0xffffffef' % (sZ, sZ))
        def f():
            fs = int(self.o['fstride'])
            a('s_lshr_b32 %s, s2, 5' % sZp)
            a('s_lshl3_add_u32 %s, %s, %s' % (sA, sZp, sW))
            if self.o['fl'] != '':
                pol = int(self.o['fl'][1]); mode = self.o['fl'][0]; fs = 10
                if mode == 'x': a('s_xor_b32 %s, %s, %d' % (sC, sZp, pol))
                else: a('s_lshr_b32 %s, %s, 2' % (sC, sW)); a('s_xor_b32 %s, %s, %d' % (sC, sC, pol))
                a('s_lshl1_add_u32 %s, %s, %s' % (sA, sA, sC))
            a('s_lshl_b32 %s, %s, %d' % (sA, sA, fs+3)); a('s_add_u32 %s, %s, 0x%x' % (sA, sA, WS_FLAG))
            for i in range(0, 8, 2): a('s_mov_b64 s[%d:%d], 0' % (84+i, 85+i))
            for i in range(8):
                a('s_atomic_swap s%d, s[24:25], %s offset:0x%x glc' % (84+i, sA, i << fs))
            a('s_lshl_b32 %s, %s, 7' % (sZp, sZp))
        self.cond(sZ, 0, f)
    def set_ready(self):
        a = self.a
        def f():
            a('s_mov_b32 %s, 1' % sInc)
            a('s_waitcnt lgkmcnt(0)')
            a('s_atomic_add %s, s[20:21], %s' % (sInc, sZp))
        self.cond(sZ, 0, f)
    def ready_issue(self):
        self.a('s_load_dword %s, s[20:21], %s' % (sRv, sRd))
    def ready_check(self):
        a = self.a; l0, l1 = self.label('rdy'), self.label('rdyok')
        def notready():
            if self.o['ib3']: a('s_and_b32 %s, %s, 0xff' % (sA, sRv)); a('s_cmp_lt_u32 %s, 23' % sA)
            else: a('s_bitcmp0_b32 %s, 3' % sRv)
        notready()
        a('s_cbranch_scc1 %s' % l0)
        a(l1+':')
        def tail():
            lp = self.label('rdyl')
            a(l0+':')
            a('s_mov_b32 %s, 0' % sCnt)
            a('v_mov_b32 %s, 0' % v(V.O+1))
            a(lp+':')
            a('buffer_load_dword %s, %s, %s, %s offen sc1' % (v(V.O), v(V.O+1), SDBG, sRd))
            a('s_add_u32 %s, %s, 1' % (sCnt, sCnt))
            a('s_cmp_gt_u32 %s, 0x%x' % (sCnt, SPIN_MAX))
            a('s_waitcnt vmcnt(0)')
            a('v_readfirstlane_b32 %s, %s' % (sRv, v(V.O)))
            a('s_cbranch_scc1 %s' % l1)
            notready()
            a('s_cbranch_scc1 %s' % lp)
            a('s_branch %s' % l1)
        self.tail.append(tail)
    def set_flag(self, ex):
        a = self.a
        if not ((self.o['ib'] or self.o['ib2']) and ex == 0): a('s_mov_b32 %s, 0x%x' % (sInc, 1 << (24*ex)))
        a('s_atomic_add %s, s[24:25], %s' % (sInc, sF))
    def poll(self, ex, under=None):
        a = self.a; lp, ok = self.label('poll'), self.label('pollok')
        if under:
            a('s_mov_b32 %s, 0' % sRv)
            a('s_atomic_add %s, s[24:25], %s glc' % (sRv, sE))
            under()
            a('s_waitcnt lgkmcnt(0)')
            a('s_bitcmp1_b32 %s, %d' % (sRv, 4+24*ex))
            a('s_cbranch_scc1 %s' % ok)
        a('s_mov_b32 %s, 0' % sCnt)
        a(lp+':')
        a('s_mov_b32 %s, 0' % sRv)
        a('s_atomic_add %s, s[24:25], %s glc' % (sRv, sE))
        a('s_add_u32 %s, %s, 1' % (sCnt, sCnt))
        a('s_cmp_gt_u32 %s, 0x%x' % (sCnt, SPIN_MAX))
        a('s_waitcnt lgkmcnt(0)')
        a('s_cbranch_scc1 %s' % ok)
        if self.o['slp']:
            a('s_bitcmp1_b32 %s, %d' % (sRv, 4+24*ex))
            a('s_cbranch_scc1 %s' % ok)
            a('s_sleep %s' % self.o['slp'])
            a('s_branch %s' % lp)
        else:
            a('s_bitcmp0_b32 %s, %d' % (sRv, 4+24*ex))
            a('s_cbranch_scc1 %s' % lp)
        a(ok+':')
        if self.o['pbar']: a('s_barrier')
    def code_pf(self, name):
        a = self.a
        l = self.label('pc')
        a('s_getpc_b64 s[28:29]')
        a(l+':')
        a('s_sub_u32 s28, s28, %s-%s' % (l, name))
        a('s_subb_u32 s29, s29, 0')
        a('v_lshlrev_b32 %s, 5, v0' % v(V.O+6))
        a('global_load_dword %s, %s, s[28:29]' % (v(V.dummy), v(V.O+6)))

    def code_spf(self, name):
        a = self.a
        l = self.label('pc')
        a('s_getpc_b64 s[28:29]')
        a(l+':')
        a('s_sub_u32 s28, s28, %s-%s' % (l, name))
        a('s_subb_u32 s29, s29, 0')
        a('s_lshr_b32 %s, s2, 4' % sA)
        a('s_lshl3_add_u32 %s, %s, %s' % (sA, sA, sW))
        a('s_lshl_b32 %s, %s, 7' % (sA, sA))
        a('s_load_dword s94, s[28:29], %s' % sA)

    def ifelse(self, reg, val, feq, fne, eq_first=False):
        a = self.a; l0, l1 = self.label('ie'), self.label('iend')
        if eq_first:
            a('s_cmp_lg_u32 %s, %d' % (reg, val)); a('s_cbranch_scc1 %s' % l0)
            feq(); a('s_branch %s' % l1); a(l0+':'); fne()
        else:
            a('s_cmp_eq_u32 %s, %d' % (reg, val)); a('s_cbranch_scc1 %s' % l0)
            fne(); a('s_branch %s' % l1); a(l0+':'); feq()
        a(l1+':')
    def touch(self, rnd):
        a = self.a
        a('s_mov_b64 exec, 0')
        for k in range(7):
            a('s_cmp_eq_u32 %s, %d' % (sW, k)); a('s_cbranch_scc1 stub_%d' % (8*rnd+k))
        a('s_branch stub_%d' % (8*rnd+7))
        a('ret_%d:' % rnd)
        a('s_mov_b64 exec, -1')

    def cond(self, reg, val, f):
        a = self.a; l = self.label('c')
        a('s_cmp_lg_u32 %s, %d' % (reg, val)); a('s_cbranch_scc1 %s' % l)
        f()
        a(l+':')

    def build_one(self):
        a = self.a; o = self.o
        name = NAME + '_kernel'
        self.kernel_head(name); end = self.label('end')
        self.prologue1(end)
        wA, wB = o['wA'], o['wB']
        def wat(pos, rows=(0, 1, 2, 3)):
            f = lambda: [self.w_dma1(i) for i in rows]
            if wA == pos and wB == pos: f()
            elif wA == pos: self.cond(sP, 0, f)
            elif wB == pos: self.cond(sP, 1, f)
        self.wat = wat
        bd = int(o['bdelay'])
        if o['touch'] == 'pre': self.touch(0)
        self.mark('touched')
        a('s_waitcnt lgkmcnt(0)')
        self.mark('karg')
        gz = o['gz']
        if gz: self.gz_issue()
        elif o['ib']: self.probe_issue()
        elif o['ib3']: self.p2_probe_issue(); self.zero3(); a('s_mov_b32 %s, 0' % sRd)
        elif o['ib2']: self.p2_probe_issue(); self.zero_flags()
        else: self.zero_flags()
        misc = lambda: (self.srds(), self.calc_k0(), self.w_prep(), self.gz_flag_addrs() if gz else self.flag_addrs3() if o['ib3'] else self.flag_addrs(), self.misc_ib2() if o['ib2'] else 0)
        if wB == 'first':
            def fb():
                misc(); self.w_dma()
                if bd == 0: self.p1_issue()
            self.ifelse(sP, 1, fb, self.p1_issue)
        elif bd: self.cond(sP, 0, self.p1_issue)
        else: self.p1_issue()
        if o['ib']: self.probe_eval(); self.zero_flags_ib()
        if gz: self.gz_publish(); a('s_mov_b32 s22, 256'); a('s_mov_b32 s23, 0x20000')
        if o['touch'] == 'post': self.touch(0)
        if o['touch']: self.cond(sT, 0, lambda: self.touch(1))
        if o['ib2']:
            self.p1_addrs(); self.p2_probe_eval(); self.gen_F16(); self.coop_init()
        else: self.p1_addrs(); self.gen_F16(); self.coop_init()
        if bd == 1: self.cond(sP, 1, self.p1_issue)
        self.gen_M2()
        if o['ib']: self.ex_addrs_ib(); self.set_ready_ib()
        elif gz: self.ex_addrs()
        elif o['ib3']: self.ex_addrs_ib2(); self.ready3()
        elif o['ib2']: self.ex_addrs_ib2(); self.set_ready()
        else: self.ex_addrs(); self.set_ready()
        X = [misc, self.coop_gen, lambda: self.gen_B(True, False), lambda: (self.p2_addrs(), self.w_addr())]
        nearly = max(0, bd-2)
        def early():
            for f in X[(1 if wB == 'first' else 0):nearly]: f()
            self.p1_issue()
        if bd >= 2: self.cond(sP, 1, early)
        self.mark('w1')
        def Xat(k):
            if k < nearly or (k == 0 and wB == 'first'): self.cond(sP, 0, X[k])
            else: X[k]()
        if gz: self.p1_compute(0, self.gz_read, None, lambda: (self.gz_check(), self.spec_early()))
        elif o['ib3']:
            self.vote_read()
            self.p1_compute(0, lambda: (self.vote_use(), self.spec_early()), None, self.p2_choice_use, self.p2_choice_read)
        elif o['ib2']: self.p1_compute(0, self.spec_early, None, self.p2_choice_use, self.p2_choice_read)
        else: self.p1_compute(0, self.spec_early)
        self.stamp()
        if not gz: self.ready_issue()
        Xat(0)
        n = 0
        Xat(1)
        self.coop_post()
        self.mark('w2a')
        if 'da' in o: a('s_waitcnt vmcnt(0)'); self.mark('vm1')
        a('s_waitcnt vmcnt(%d) lgkmcnt(0)' % n)
        self.stamp()
        if not gz: self.ready_check()
        if o['ib']: self.flag_side()
        if o['ib3']: self.side3()
        self.mark('rdy')
        self.set_flag(0)
        if o['ib']: self.flag_side2()
        if o['ib3']: self.side3b()
        def under1():
            self.w_sload()
            Xat(2); self.B_dup()
            Xat(3)
            self.w_special()
        self.poll(0, under1)
        self.stamp()
        if self.o.get('fine'):
            a('s_memrealtime s[%d:%d]' % (sTS+2*self.nts, sTS+2*self.nts+1)); self.nts += 1
            self.fstamp()
        if o['ib']: self.ld_addrs_ib()
        if o['ib2']: self.ld_addrs_ib2()
        self.p2_issue()
        if o['ib3']: self.side3c()
        elif o['ib2']: self.major_post()
        self.coop_wait(); self.coop_read()
        self.p2_addrs2()
        a('s_waitcnt vmcnt(4)')
        self.w_edge()
        self.p2_compute(True)
        self.stamp()
        if o['ib2'] and not o['ib3']: self.major_use2()
        self.gen_M3()
        self.mark('w3a')
        a('s_waitcnt vmcnt(0)')
        self.stamp()
        self.set_flag(1)
        self.poll(1, self.p3_addrs)
        self.stamp()
        self.p3_issue()
        self.p3_soff()
        self.p3_compute()
        if 'da' in o:
            self.stamp(); a('s_waitcnt vmcnt(0)'); self.stamp()
            lp = self.label('dg')
            a('s_waitcnt lgkmcnt(0)')
            a('s_sub_u32 %s, s60, s58' % sA)
            a('s_lshl_b32 %s, %s, 2' % (sA, sA))
            if 'dp' in o:
                a('s_cmp_eq_u32 %s, %s' % (sP, o['dp'])); a('s_cselect_b32 %s, %s, 0' % (sA, sA))
            a('s_add_u32 %s, %s, 3000' % (sA, sA))
            a(lp+':')
            a('s_memrealtime s[28:29]')
            a('s_waitcnt lgkmcnt(0)')
            a('s_sub_u32 %s, s28, s56' % sB)
            a('s_cmp_lt_u32 %s, %s' % (sB, sA))
            a('s_cbranch_scc1 %s' % lp)
        if o['ts']:
            self.stamp(); a('s_waitcnt vmcnt(0)'); self.stamp()
            if 'diag' in o:
                i = int(o['diag']); lp = self.label('dg')
                a('s_waitcnt lgkmcnt(0)')
                if 'xw' in o:
                    a('s_getreg_b32 %s, hwreg(HW_REG_XCC_ID, 0, 4)' % sA)
                    a('s_sub_u32 %s, %s, s2' % (sA, sA)); a('s_and_b32 %s, %s, 7' % (sA, sA)); a('s_mul_i32 %s, %s, 400' % (sA, sA))
                    if int(o['xw']) >= 0:
                        a('s_cmp_eq_u32 s2, %s' % o['xw']); a('s_cselect_b32 %s, %s, 0' % (sA, sA))
                else:
                    a('s_sub_u32 %s, s%d, s%d' % (sA, sTS+2*i, sTS+2*int(o.get('dj', 0))))
                    a('s_lshl_b32 %s, %s, 2' % (sA, sA))
                    if 'dp' in o:
                        a('s_cmp_eq_u32 %s, %s' % (sP, o['dp'])); a('s_cselect_b32 %s, %s, 0' % (sA, sA))
                a('s_add_u32 %s, %s, 3000' % (sA, sA))
                a(lp+':')
                a('s_memrealtime s[28:29]')
                a('s_waitcnt lgkmcnt(0)')
                a('s_sub_u32 %s, s28, s%d' % (sB, sTS))
                a('s_cmp_lt_u32 %s, %s' % (sB, sA))
                a('s_cbranch_scc1 %s' % lp)
            else:
                if o['ib'] or o['gz'] or o['ib2']: self.nts += 1
                self.dump_stamps(0)
        a(end+':'); a('s_endpgm'); self.flush_tail()
        if o['touch']: self.insert_stubs(name)
        a.raw('.fill (%s+16384-.)/4, 4, 0xbf810000' % name)
        launch = '; @launch grid=(256,1,1) block=(512,1,1) lds=%d\n' % LDS_TOTAL
        return self.finish(launch, [name])

    def insert_stubs(self, name):
        import subprocess, re
        from asmlib import Ins
        a = self.a
        txt = '.amdgcn_target "amdgcn-amd-amdhsa--gfx950"\n.text\n' + a.text() + ''.join('stub_%d:\n' % k for k in range(16)) + 's_endpgm\nspec_tab:\n'
        open('pass1.s', 'w').write(txt)
        subprocess.check_call(['clang', '-x', 'assembler', '-target', 'amdgcn-amd-amdhsa', '-mcpu=gfx950', '-c', 'pass1.s', '-o', 'pass1.o'])
        dis = subprocess.check_output(['llvm-objdump', '-d', '--mcpu=gfx950', 'pass1.o']).decode()
        addrs = [int(m.group(1), 16) for m in re.finditer(r'// ([0-9A-F]{12}):', dis)]
        real = [i for i, x in enumerate(a.ins) if x.kind != 'none']
        assert len(addrs) == len(real) + 1, (len(addrs), len(real))
        size = {real[k]: addrs[k+1] - addrs[k] for k in range(len(real))}
        pos = ENTRY_OFF; nxt = ENTRY_OFF + 1024 - 256
        nxt = (nxt + 1023)//1024*1024
        out = []; k = 0; prev = None; ez = False
        for i, x in enumerate(a.ins):
            if i in size:
                glued = prev is not None and (prev.op == 's_getpc_b64' or 'rel32' in x.text)
                if prev is not None and prev.text.strip() == 's_mov_b64 exec, 0': ez = True
                if prev is not None and prev.text.strip() == 's_mov_b64 exec, -1': ez = False
                glued = glued or ez
                if pos >= nxt and k < 16 and not glued:
                    out.append(Ins('stub_%d:' % k)); out.append(Ins('s_cbranch_execz ret_%d' % (k >> 3)))
                    pos += 4; k += 1; nxt += 1024
                pos += size[i]; prev = x
            out.append(x)
        self.code_end = pos
        while k < 16:
            out.append(Ins('stub_%d:' % k)); out.append(Ins('s_branch ret_%d' % (k >> 3))); k += 1
        a.ins = out

    def finish(self, launch, names):
        hdr = '; GFNet spectral filter (two heads): 2-D FFT via bf16 MFMA DFT stages. Generated by dev/gen.py\n' + launch
        s = hdr + '.amdgcn_target "amdgcn-amd-amdhsa--gfx950"\n.text\n' + self.a.text()
        s += '.section .rodata,"a"\n' + '\n'.join(self.kd(n) for n in names) + '\n' + self.spec_table() + '\n'
        return s

if __name__ == '__main__':
    mode = sys.argv[1]; out = sys.argv[2]
    opt = {}
    for kv in sys.argv[3:]:
        k, x = kv.split('=')
        opt[k] = {'True': True, 'False': False}.get(x, x.replace('+', ' '))
    g = Gen(mode, **opt)
    s = g.build_three() if mode == 'three' else g.build_one()
    assert g.a.verify() == 0
    open(out, 'w').write(s)
    print('vgprs', NVGPR, 'lds', LDS_TOTAL, 'nops', g.a.nops, 'lines', len(g.a.ins))
```

```python
import sys, struct, math
import numpy as np
from asmlib import Asm

NAME = 'concat_heads__spectral_gfnet__spectral_gfnet__prompt'

def f2u(x): return struct.unpack('<I', struct.pack('<f', x))[0]
def lit(x): return '0x%08x' % f2u(x)
def bf16bits(x):
    u = f2u(float(x)); return ((u + 0x7FFF + ((u >> 16) & 1)) >> 16) & 0xFFFF
def sigma(m): return (m & 1) | ((m >> 1) & 1) << 3 | ((m >> 2) & 1) << 1 | ((m >> 3) & 1) << 2 | (m & 16)

S11 = 2.0**-11
SPIN_MAX = 0x4000
ENTRY_OFF = 0x300
SENT = 0x13572468
WS_FLAG_IB = 32 << 20
WS_FLAG2 = 33 << 20
PW = 7
sCh2 = 's100'
R0 = 0
R1 = 33024
WL = 66048
SCR = WL + 8*4*1056
SCR_B = SCR + 36*256
TABL = SCR_B + 8192
CNT = TABL + 16384
LDS_TOTAL = CNT + 64
WS_U1 = 0
WS_U2 = 8 << 20
WS_FLAG = 32 << 20
WS_TS = 72 << 20
WS_SIZE = 80 << 20

class V: pass
_n = [0]
def alloc(n, align=1):
    b = (_n[0] + align - 1)//align*align
    _n[0] = b + n
    return b
V.tid = alloc(1); V.lane = alloc(1)
for nm in 'g n Xoff Est X0w X0r0 X0r1 X1w X1r X2w X2r WP WM l16 dummy dummy2'.split(): setattr(V, nm, alloc(1))
V.Ooff, V.X3w0, V.X3w1, V.X3r = V.Xoff, V.X0w, V.X0r0, V.X0r1
V.T = alloc(10, 1)
V.EL = alloc(4); V.Eld = V.EL+3; V.Eld0 = V.EL+3
V.O = alloc(16, 4)
V.DA = alloc(32, 4)
V.DB = alloc(32, 4)
V.L = V.DB
V.F16 = alloc(8, 4)
V.M2 = alloc(16, 4)
V.F32 = alloc(32, 4)
V.TW = alloc(32, 4)
V.W = alloc(32, 4)
V.B = alloc(12, 4)
V.Bp = alloc(8, 4)
V.WF = alloc(4)
NVGPR = _n[0]
assert NVGPR <= 256, NVGPR
def v(i): return 'v%d' % i
def vr(i, n): return 'v[%d:%d]' % (i, i+n-1)

SX, SWR, SWI, SOUT, SDBG, SWS = 's[4:7]', 's[8:11]', 's[12:15]', 's[16:19]', 's[20:23]', 's[24:27]'
sP, sT, sW, sSB, sCB, sK0 = 's30', 's31', 's32', 's33', 's34', 's35'
sKP, sKM = 's36', 's37'
sA, sB, sC, sD, sE, sF = 's40', 's41', 's42', 's43', 's44', 's45'
sEst, sEld, sCnt, sSpec = 's46', 's47', 's48', 's49'
sO = ['s52', 's53', 's54', 's55']
sRd, sRv, sInc, sWL = 's38', 's39', 's50', 's51'
ZT = 16
sDP, sDM, sZ, sZp, sCh = 's96', 's97', 's98', 's99', 's95'
sTS = 56

class Gen:
    def __init__(self, mode='one', **opt):
        self.mode = mode
        self.o = dict(ldx='', ldw='', st1='sc1', st2='sc1', sto='sc1', ld1='sc1', ld2='sc1', ts=False, stagger=True, pf=False, spf=False, touch='pre', fst='sc1', fld='sc1', slp='', fsh='', pbar=False, shear=True, prio=True, wA='postX1', wB='postX1', bdelay='4', optx=False, numa='', fl='', ib=False, wsoff='', tlb1=False, tlb2=False, ib2=False, ib3=False, pnop='15', gz=False, force='', skew=True, fstride=12)
        self.o.update(opt)
        self.a = Asm()
        self.lab = 0
        self.nts = 0
        self.tail = []

    def tstride(self): return 65536 if (self.o['numa'] != '' or self.o['ib'] or self.o['ib2']) else 32768
    def ubase(self, ex): return (ex << 24) if self.o['ib2'] else (ex << 20) if self.o['ib'] else (WS_U2 if ex else WS_U1)
    def eld(self, q, ex=0): return v(V.T+2+q) if (self.o['ib2'] and ex == 0) else v(V.EL+q) if self.o['ib'] else v(V.Eld)
    def est(self): return sZp if self.o['ib2'] else sEst
    def label(self, p='L'):
        self.lab += 1
        return '%s_%d' % (p, self.lab)

    def stamp(self):
        if 'da' in self.o:
            self.sid = getattr(self, 'sid', -1) + 1
            self.mark('s%d' % self.sid); return
        if not self.o['ts'] or self.o.get('fine'): return
        self.a('s_memrealtime s[%d:%d]' % (sTS+2*self.nts, sTS+2*self.nts+1))
        self.nts += 1

    def mark(self, nm):
        for key, reg in (('da', 58), ('db', 60)):
            if self.o.get(key) == nm: self.a('s_memrealtime s[%d:%d]' % (reg, reg+1))
    def fstamp(self):
        if not self.o.get('fine'): return
        self.a('s_memtime s[%d:%d]' % (sTS+2*self.nts, sTS+2*self.nts+1))
        self.nts += 1

    def dump_stamps(self, slot0=0):
        if not self.o['ts']: return
        a = self.a
        a('s_waitcnt lgkmcnt(0)')
        a('s_lshl_b32 %s, s2, 3' % sA); a('s_add_u32 %s, %s, %s' % (sA, sA, sW)); a('s_lshl_b32 %s, %s, 7' % (sA, sA))
        a('s_add_u32 %s, %s, 0x%x' % (sA, sA, WS_TS + slot0*4))
        a('s_mov_b64 exec, 1')
        a('v_mov_b32 %s, 0' % v(V.T+1))
        for i in range(self.nts):
            a('v_mov_b32 %s, s%d' % (v(V.T), sTS+2*i))
            a('buffer_store_dword %s, %s, %s, %s offen offset:%d' % (v(V.T), v(V.T+1), SWS, sA, 4*i))
            a('s_nop 1')
        a('s_mov_b64 exec, -1')
        self.nts = 0

    def prologue(self, end):
        a = self.a
        a('s_cmp_ge_u32 s2, 0x100')
        a('s_cbranch_scc1 %s' % end)
        self.stamp()
        a('s_bfe_u32 %s, s2, 0x10003' % sP)
        a('s_mul_i32 s3, %s, 24' % sP)
        a('s_add_u32 s28, s0, s3')
        a('s_addc_u32 s29, s1, 0')
        a('s_load_dwordx2 s[4:5], s[28:29], 0x0')
        a('s_load_dwordx2 s[8:9], s[28:29], 0x8')
        a('s_load_dwordx2 s[12:13], s[28:29], 0x10')
        a('s_load_dwordx2 s[16:17], s[0:1], 0x30')
        a('s_load_dwordx2 s[20:21], s[0:1], 0x38')
        a('s_load_dwordx2 s[24:25], s[0:1], 0x40')
        a('v_lshrrev_b32 %s, 6, v0' % v(V.T))
        a('v_and_b32 %s, 63, v0' % v(V.lane))
        a('v_readfirstlane_b32 %s, %s' % (sW, v(V.T)))
        a('s_and_b32 %s, s2, 7' % sA)
        a('s_xor_b32 %s, %s, 2' % (sA, sA))
        a('s_lshl_b32 %s, %s, 4' % (sT, sA))
        a('s_lshr_b32 %s, s2, 4' % sB)
        a('s_or_b32 %s, %s, %s' % (sT, sT, sB))
        a('s_lshl_b32 %s, %s, 1' % (sCB, sA))
        a('s_bfe_u32 %s, %s, 0x10001' % (sC, sB))
        a('s_or_b32 %s, %s, %s' % (sCB, sCB, sC))
        a('s_bfe_u32 %s, %s, 0x20002' % (sSB, sB))
        a('s_lshl_b32 %s, %s, 1' % (sSB, sSB))
        a('s_and_b32 %s, %s, 1' % (sC, sB))
        a('s_or_b32 %s, %s, %s' % (sSB, sSB, sC))
        a('s_mov_b32 s6, 0x400000'); a('s_mov_b32 s7, 0x20000')
        a('s_mov_b32 s10, 2101248'); a('s_mov_b32 s11, 0x20000')
        a('s_mov_b32 s14, 2101248'); a('s_mov_b32 s15, 0x20000')
        a('s_mov_b32 s18, 0x800000'); a('s_mov_b32 s19, 0x20000')
        a('s_mov_b32 s22, 256'); a('s_mov_b32 s23, 0x20000')
        a('s_mov_b32 s26, 0x%x' % WS_SIZE); a('s_mov_b32 s27, 0x20000')
        a('v_lshrrev_b32 %s, 4, %s' % (v(V.g), v(V.lane)))
        a('v_and_b32 %s, 15, %s' % (v(V.n), v(V.lane)))
        a('v_lshlrev_b32 %s, 4, %s' % (v(V.l16), v(V.lane)))

    def prologue1(self, end):
        a = self.a; T = V.T
        a('s_cmp_ge_u32 s2, 0x100')
        a('s_cbranch_scc1 %s' % end)
        if 'da' in self.o: a('s_memrealtime s[56:57]'); self.mark('start')
        a('s_bfe_u32 %s, s2, 0x%x' % (sP, 0x10002 if self.o['optx'] else 0x10003))
        a('s_mul_i32 s3, %s, 24' % sP)
        a('s_load_dwordx2 s[4:5], s[0:1], s3')
        a('s_load_dwordx2 s[24:25], s[0:1], 0x40')
        a('s_load_dwordx2 s[8:9], s[0:1], s3 offset:8')
        a('s_load_dwordx2 s[12:13], s[0:1], s3 offset:16')
        a('s_load_dwordx2 s[16:17], s[0:1], 0x30')
        a('s_load_dwordx2 s[20:21], s[0:1], 0x38')
        self.stamp()
        a('v_lshrrev_b32 %s, 6, v0' % v(T))
        a('v_and_b32 %s, 63, v0' % v(V.lane))
        a('v_readfirstlane_b32 %s, %s' % (sW, v(T)))
        if self.o['optx']:
            a('s_and_b32 %s, s2, 3' % sA)
            a('s_bfe_u32 %s, s2, 0x10003' % sB)
            a('s_lshl1_add_u32 %s, %s, %s' % (sA, sA, sB))
        else: a('s_and_b32 %s, s2, 7' % sA)
        a('s_lshr_b32 %s, s2, 4' % sB)
        a('s_lshl4_add_u32 %s, %s, %s' % (sT, sA, sB))
        a('s_bfe_u32 %s, %s, 0x10001' % (sC, sB))
        a('s_lshl1_add_u32 %s, %s, %s' % (sCB, sA, sC))
        a('s_lshr_b32 %s, %s, 2' % (sSB, sB))
        a('s_and_b32 %s, %s, 1' % (sC, sB))
        a('s_lshl1_add_u32 %s, %s, %s' % (sSB, sSB, sC))
        a('s_mov_b32 s6, 0x400000'); a('s_mov_b32 s7, 0x20000')
        a('v_lshrrev_b32 %s, 4, %s' % (v(V.g), v(V.lane)))
        a('v_lshlrev_b32 %s, 4, %s' % (v(V.l16), v(V.lane)))
        a('v_and_b32 %s, 8, v0' % v(T))
        a('v_lshlrev_b32 %s, 11, %s' % (v(T), v(T)))
        a('v_lshl_add_u32 %s, %s, 20, %s' % (v(T), v(V.g), v(T)))
        a('v_and_b32 %s, 0x70, %s' % (v(T+1), v(V.l16)))
        a('v_add_u32 %s, %s, %s' % (v(V.Xoff), v(T), v(T+1)))
        a('s_lshl4_add_u32 %s, %s, %s' % (sA, sW, sSB))
        a('s_lshl4_add_u32 %s, %s, %s' % (sA, sA, sCB))
        a('s_lshl_b32 %s, %s, 7' % (sO[0], sA))
        for r in range(1, 4): a('s_add_u32 %s, %s, 0x%x' % (sO[r], sO[0], r*262144))
        a('v_and_b32 %s, 15, %s' % (v(V.n), v(V.lane)))
        a('s_mov_b32 s26, 0x%x' % WS_SIZE); a('s_mov_b32 s27, 0x20000')
        a('s_lshl_b32 %s, %s, 7' % (sRd, sP))
    def srds(self):
        a = self.a
        a('s_mov_b32 s10, 2101248'); a('s_mov_b32 s11, 0x20000')
        a('s_mov_b32 s14, 2101248'); a('s_mov_b32 s15, 0x20000')
        a('s_mov_b32 s18, 0x800000'); a('s_mov_b32 s19, 0x20000')
        a('s_mov_b32 s22, 256'); a('s_mov_b32 s23, 0x20000')

    def probe_issue(self):
        a = self.a
        a('s_lshl3_add_u32 %s, %s, %s' % (sEst, sP, sW)); a('s_lshl_b32 %s, %s, 21' % (sEst, sEst))
        a('s_and_b32 %s, %s, 0x60' % (sA, sT)); a('s_add_u32 %s, %s, %s' % (sA, sA, sT)); a('s_lshl_b32 %s, %s, 8' % (sA, sA))
        a('s_add_u32 %s, %s, %s' % (sA, sA, sEst))
        for i in range(8): a('s_mov_b32 s%d, 0x%x' % (84+i, SENT))
        for k, side in ((0, 0), (0, 1), (1, 1), (1, 0), (2, 1), (2, 0), (3, 0), (3, 1)):
            a('s_load_dword s%d, s[24:25], %s offset:0x%x glc' % (84+4*side+k, sA, k*65536+side*8192))
    def probe_eval(self):
        a = self.a
        a('s_mov_b32 %s, 0' % sA); a('s_mov_b32 %s, 0' % sB)
        a('s_waitcnt lgkmcnt(4)')
        for k in range(4):
            a('s_cmp_lg_u32 s%d, 0x%x' % (84+k, SENT)); a('s_addc_u32 %s, %s, 0' % (sA, sA))
            a('s_cmp_lg_u32 s%d, 0x%x' % (88+k, SENT)); a('s_addc_u32 %s, %s, 0' % (sB, sB))
        a('s_cmp_gt_u32 %s, %s' % (sB, sA))
        a('s_cselect_b32 %s, 1, 0' % sCh)
        if self.o['force'] != '':
            a('s_and_b32 %s, %s, 1' % (sC, sW)); a('s_xor_b32 %s, %s, %s' % (sC, sC, sP)); a('s_xor_b32 %s, %s, %s' % (sCh, sC, self.o['force']))
        if self.o['ts']:
            a('s_lshl4_add_u32 s%d, %s, %s' % (sTS+24, sA, sB))
    def ex_addrs_ib(self):
        a = self.a; T = V.T
        a('s_lshl_b32 %s, %s, 4' % (sB, sW)); a('s_xor_b32 %s, %s, %s' % (sB, sB, sT)); a('s_lshl_b32 %s, %s, 8' % (sB, sB))
        a('v_lshlrev_b32 %s, 4, %s' % (v(T), v(V.n)))
        a('v_lshl_add_u32 %s, %s, 10, %s' % (v(T), v(V.g), v(T)))
        a('v_xor_b32 %s, %s, %s' % (v(T), sB, v(T)))
        a('v_and_b32 %s, 0x6000, %s' % (v(T+1), v(T)))
        a('v_add_u32 %s, %s, %s' % (v(T), v(T), v(T+1)))
        a('v_lshl_add_u32 %s, %s, 18, %s' % (v(V.Est), v(V.g), v(T)))
        a('v_and_b32 %s, 0xdcff, %s' % (v(V.Eld), v(T)))
        a('s_lshl_b32 %s, %s, 13' % (sA, sCh)); a('s_add_u32 %s, %s, %s' % (sEst, sEst, sA))
        a('s_lshr_b32 %s, %s, 4' % (sA, sT)); a('s_lshl3_add_u32 %s, %s, %s' % (sA, sP, sA)); a('s_lshl_b32 %s, %s, 21' % (sA, sA))
        a('s_and_b32 %s, %s, 15' % (sEld, sT)); a('s_lshl_b32 %s, %s, 16' % (sEld, sEld)); a('s_add_u32 %s, %s, %s' % (sEld, sEld, sA))
    def ld_addrs_ib(self):
        a = self.a; T = V.T
        a('v_lshrrev_b32 %s, %s, %s' % (v(T), v(V.dummy), sRv))
        for q in range(4):
            a('v_bfe_u32 %s, %s, %d, 1' % (v(T+1), v(T), q))
            a('v_lshl_add_u32 %s, %s, 13, %s' % (v(V.EL+q), v(T+1), v(V.Eld)))

    def ex_addrs(self):
        a = self.a
        if self.o['skew']:
            T = V.T
            a('s_lshl_b32 %s, %s, 4' % (sB, sW)); a('s_xor_b32 %s, %s, %s' % (sB, sB, sT)); a('s_lshl_b32 %s, %s, 8' % (sB, sB))
            a('v_lshlrev_b32 %s, 4, %s' % (v(T), v(V.n)))
            a('v_lshl_add_u32 %s, %s, 10, %s' % (v(T), v(V.g), v(T)))
            a('v_xor_b32 %s, %s, %s' % (v(T), sB, v(T)))
            if self.o['numa'] != '':
                pol = int(self.o['numa'][1]); mode = self.o['numa'][0]
                if mode == 'p':
                    a('v_and_b32 %s, 0x6000, %s' % (v(T+1), v(T)))
                    a('v_add_u32 %s, %s, %s' % (v(T), v(T), v(T+1)))
                    a('v_lshl_add_u32 %s, %s, 18, %s' % (v(V.Est), v(V.g), v(T)))
                    a('v_and_b32 %s, 0xdcff, %s' % (v(V.Eld), v(T)))
                    a('s_lshr_b32 %s, %s, 1' % (sA, sW)); a('s_lshr_b32 %s, %s, 6' % (sD, sT)); a('s_xor_b32 %s, %s, %s' % (sA, sA, sD))
                    a('s_lshr_b32 %s, %s, 5' % (sC, sT)); a('s_lshr_b32 %s, %s, 2' % (sD, sW)); a('s_xor_b32 %s, %s, %s' % (sC, sC, sD))
                    if pol: a('s_xor_b32 %s, %s, 1' % (sA, sA)); a('s_xor_b32 %s, %s, 1' % (sC, sC))
                    a('s_and_b32 %s, %s, 1' % (sA, sA)); a('s_and_b32 %s, %s, 1' % (sC, sC))
                    a('s_lshl_b32 %s, %s, 13' % (sA, sA)); a('s_lshl_b32 %s, %s, 13' % (sC, sC))
                    a('s_lshl_b32 %s, %s, 25' % (sD, sP)); a('s_add_u32 %s, %s, %s' % (sA, sA, sD)); a('s_add_u32 %s, %s, %s' % (sC, sC, sD))
                    a('s_lshl_b32 %s, %s, 20' % (sEst, sW)); a('s_add_u32 %s, %s, %s' % (sEst, sEst, sA))
                    a('s_lshl_b32 %s, %s, 16' % (sEld, sT)); a('s_add_u32 %s, %s, %s' % (sEld, sEld, sC))
                    return
                a('v_and_b32 %s, 0x6000, %s' % (v(T+1), v(T)))
                a('v_add_u32 %s, %s, %s' % (v(T), v(T), v(T+1)))
                a('v_lshl_add_u32 %s, %s, 18, %s' % (v(V.Est), v(V.g), v(T)))
                a('v_and_b32 %s, 0xdcff, %s' % (v(V.Eld), v(T)))
                if mode == 'x':
                    a('s_bfe_u32 %s, %s, 0x10001' % (sA, sW)); a('s_xor_b32 %s, %s, %s' % (sA, sA, sP))
                    a('s_bfe_u32 %s, %s, 0x10005' % (sC, sT)); a('s_xor_b32 %s, %s, %s' % (sC, sC, sP))
                    if pol: a('s_xor_b32 %s, %s, 1' % (sA, sA)); a('s_xor_b32 %s, %s, 1' % (sC, sC))
                    a('s_lshl_b32 %s, %s, 13' % (sA, sA)); a('s_lshl_b32 %s, %s, 13' % (sC, sC))
                    a('s_lshl_b32 %s, %s, 20' % (sEst, sW)); a('s_add_u32 %s, %s, %s' % (sEst, sEst, sA))
                    a('s_lshl_b32 %s, %s, 16' % (sEld, sT)); a('s_add_u32 %s, %s, %s' % (sEld, sEld, sC))
                else:
                    a('s_lshr_b32 %s, %s, 1' % (sA, sW)); a('s_lshr_b32 %s, %s, 2' % (sD, sW)); a('s_xor_b32 %s, %s, %s' % (sA, sA, sD))
                    a('s_lshr_b32 %s, %s, 5' % (sC, sT)); a('s_lshr_b32 %s, %s, 6' % (sD, sT)); a('s_xor_b32 %s, %s, %s' % (sC, sC, sD))
                    if pol: a('s_xor_b32 %s, %s, 1' % (sA, sA)); a('s_xor_b32 %s, %s, 1' % (sC, sC))
                    a('s_and_b32 %s, %s, 1' % (sA, sA)); a('s_and_b32 %s, %s, 1' % (sC, sC))
                    a('s_lshl_b32 %s, %s, 13' % (sA, sA)); a('s_lshl_b32 %s, %s, 13' % (sC, sC))
                    a('s_lshl_b32 %s, %s, 22' % (sD, sP)); a('s_add_u32 %s, %s, %s' % (sA, sA, sD)); a('s_add_u32 %s, %s, %s' % (sC, sC, sD))
                    a('s_and_b32 %s, %s, 3' % (sEst, sW)); a('s_lshl_b32 %s, %s, 20' % (sEst, sEst)); a('s_add_u32 %s, %s, %s' % (sEst, sEst, sA))
                    a('s_and_b32 %s, %s, 63' % (sEld, sT)); a('s_lshl_b32 %s, %s, 16' % (sEld, sEld)); a('s_add_u32 %s, %s, %s' % (sEld, sEld, sC))
                return
            a('v_lshl_add_u32 %s, %s, 17, %s' % (v(V.Est), v(V.g), v(T)))
            a('v_and_b32 %s, 0x7cff, %s' % (v(V.Eld), v(T)))
            a('s_lshl_b32 %s, %s, 22' % (sA, sP))
            a('s_lshl_b32 %s, %s, 19' % (sEst, sW)); a('s_add_u32 %s, %s, %s' % (sEst, sEst, sA))
            a('s_lshl_b32 %s, %s, 15' % (sEld, sT)); a('s_add_u32 %s, %s, %s' % (sEld, sEld, sA))
            return
        a('v_lshlrev_b32 %s, 4, %s' % (v(V.T), v(V.n)))
        a('v_lshl_add_u32 %s, %s, 17, %s' % (v(V.Est), v(V.g), v(V.T)))
        a('v_lshl_add_u32 %s, %s, 10, %s' % (v(V.Eld), v(V.g), v(V.T)))
        a('s_lshl_b32 %s, %s, 22' % (sA, sP))
        a('s_lshl_b32 %s, %s, 19' % (sEst, sW)); a('s_add_u32 %s, %s, %s' % (sEst, sEst, sA))
        a('s_lshl_b32 %s, %s, 8' % (sB, sT)); a('s_add_u32 %s, %s, %s' % (sEst, sEst, sB))
        a('s_lshl_b32 %s, %s, 15' % (sEld, sT)); a('s_add_u32 %s, %s, %s' % (sEld, sEld, sA))
        a('s_lshl_b32 %s, %s, 12' % (sB, sW)); a('s_add_u32 %s, %s, %s' % (sEld, sEld, sB))

    def trig(self, x, re, im, conj_re=None, conj_im=None):
        a = self.a; c, s = V.T+8, V.T+9
        a('v_cos_f32 %s, %s' % (v(c), v(x)))
        a('v_sin_f32 %s, %s' % (v(s), v(x)))
        a('v_cvt_pk_bf16_f32 %s, %s, %s' % (v(re), v(c), v(s)))
        a('v_cvt_pk_bf16_f32 %s, -%s, %s' % (v(im), v(s), v(c)))
        if conj_re is not None:
            a('v_cvt_pk_bf16_f32 %s, %s, -%s' % (v(conj_re), v(c), v(s)))
            a('v_cvt_pk_bf16_f32 %s, %s, %s' % (v(conj_im), v(s), v(c)))

    def gen_F16(self):
        a = self.a; T = V.T
        a('v_cvt_f32_u32 %s, %s' % (v(T), v(V.n)))
        a('v_mul_f32 %s, %s, %s' % (v(T), lit(1/16), v(T)))
        a('v_cvt_f32_u32 %s, %s' % (v(T+1), v(V.g)))
        a('v_mul_f32 %s, 4.0, %s' % (v(T+1), v(T+1)))
        a('v_mul_f32 %s, %s, %s' % (v(T+2), v(T), v(T+1)))
        for r in range(4):
            self.trig(T+2, V.F16+r, V.F16+4+r)
            if r < 3: a('v_add_f32 %s, %s, %s' % (v(T+2), v(T+2), v(T)))

    def gen_M2(self):
        a = self.a; T = V.T
        a('v_cvt_f32_u32 %s, %s' % (v(T+1), v(V.g)))
        a('v_mul_f32 %s, 4.0, %s' % (v(T+1), v(T+1)))
        def normal():
            a('v_lshl_add_u32 %s, %s, 4, %s' % (v(T), v(V.n), sW))
            a('v_cvt_f32_u32 %s, %s' % (v(T), v(T)))
            a('v_mul_f32 %s, %s, %s' % (v(T), lit(1/256), v(T)))
            a('v_mul_f32 %s, %s, %s' % (v(T+2), v(T), v(T+1)))
            for r in range(4):
                self.trig(T+2, V.M2+r, V.M2+4+r, V.M2+8+r, V.M2+12+r)
                if r < 3: a('v_add_f32 %s, %s, %s' % (v(T+2), v(T+2), v(T)))
        def w0():
            a('v_lshrrev_b32 %s, 1, %s' % (v(T), v(V.n)))
            a('v_cvt_f32_u32 %s, %s' % (v(T), v(T)))
            a('v_lshlrev_b32 %s, 31, %s' % (v(T+3), v(V.n)))
            a('v_add_f32 %s, 0.5, %s' % (v(T+4), v(T)))
            a('v_xor_b32 %s, %s, %s' % (v(T+3), lit(1/16), v(T+3)))
            a('v_mul_f32 %s, %s, %s' % (v(T), v(T), v(T+3)))
            a('v_mul_f32 %s, %s, %s' % (v(T+4), v(T+4), v(T+3)))
            a('v_cmp_ne_u32 vcc, 1, %s' % v(V.n))
            a('v_cndmask_b32 %s, 0.5, %s, vcc' % (v(T), v(T)))
            for ts in range(2):
                d = T+4*ts
                a('v_mul_f32 %s, %s, %s' % (v(T+2), v(d), v(T+1)))
                for r in range(4):
                    self.trig(T+2, V.M2+8*ts+r, V.M2+8*ts+4+r)
                    if r < 3: a('v_add_f32 %s, %s, %s' % (v(T+2), v(T+2), v(d)))
        self.ifelse(sW, 0, w0, normal)

    def gen_M3(self):
        a = self.a; T = V.T
        a('v_cvt_f32_u32 %s, %s' % (v(T), v(V.n)))
        a('v_mul_f32 %s, %s, %s' % (v(T+1), lit(1/256), v(T)))
        a('v_mul_f32 %s, %s, %s' % (v(T), lit(1/16), v(T)))
        def normal():
            a('v_lshl_add_u32 %s, %s, 6, %s' % (v(T+2), v(V.g), sW))
            a('v_cvt_f32_u32 %s, %s' % (v(T+2), v(T+2)))
            a('v_mul_f32 %s, %s, %s' % (v(T+2), v(T+2), v(T+1)))
            for r in range(4):
                self.trig(T+2, V.M2+r, V.M2+4+r, V.M2+8+r, V.M2+12+r)
                if r < 3: a('v_add_f32 %s, %s, %s' % (v(T+2), v(T+2), v(T)))
        def w0():
            for ts in range(2):
                a('v_lshlrev_b32 %s, 5, %s' % (v(T+2), v(V.g)))
                if ts: a('v_add_u32 %s, 8, %s' % (v(T+2), v(T+2)))
                a('v_cvt_f32_u32 %s, %s' % (v(T+2), v(T+2)))
                a('v_mul_f32 %s, %s, %s' % (v(T+2), v(T+2), v(T+1)))
                for eb in range(2):
                    b = V.M2+8*ts
                    self.trig(T+2, b+2*eb, b+4+2*eb, b+2*eb+1, b+4+2*eb+1)
                    if eb == 0: a('v_add_f32 %s, %s, %s' % (v(T+2), v(T+2), v(T)))
            a('s_mov_b64 exec, 0xffff')
            a('v_lshlrev_b32 %s, 15, %s' % (v(T+2), v(V.n)))
            a('v_and_b32 %s, 0x8000, %s' % (v(T+2), v(T+2)))
            a('v_or_b32 %s, 0x3f80, %s' % (v(V.M2+1), v(T+2)))
            a('v_lshlrev_b32 %s, 16, %s' % (v(V.M2+5), v(V.M2+1)))
            a('s_mov_b64 exec, -1')
        self.ifelse(sW, 0, w0, normal)

    def sigma_lane(self, dst):
        a = self.a; T = V.T
        a('v_and_b32 %s, 17, %s' % (v(dst), v(V.lane)))
        a('v_bfe_u32 %s, %s, 2, 2' % (v(T+7), v(V.lane)))
        a('v_lshl_add_u32 %s, %s, 1, %s' % (v(dst), v(T+7), v(dst)))
        a('v_bfe_u32 %s, %s, 1, 1' % (v(T+7), v(V.lane)))
        a('v_lshl_add_u32 %s, %s, 3, %s' % (v(dst), v(T+7), v(dst)))

    def gen_F32TW(self):
        a = self.a; T = V.T
        self.sigma_lane(T)
        a('v_cvt_f32_u32 %s, %s' % (v(T), v(T)))
        a('v_mul_f32 %s, %s, %s' % (v(T), lit(1/1024), v(T)))
        a('v_lshrrev_b32 %s, 5, %s' % (v(T+1), v(V.lane)))
        a('v_cvt_f32_u32 %s, %s' % (v(T+1), v(T+1)))
        a('v_add_f32 %s, %s, %s' % (v(T+1), v(T+1), v(T+1)))
        a('v_mul_f32 %s, %s, %s' % (v(T+1), v(T+1), v(T)))
        for rho in range(16):
            k = sigma(8*(rho >> 2) + (rho & 3))
            a('v_fmamk_f32 %s, %s, %s, %s' % (v(T+2), v(T), lit(float(k)), v(T+1)))
            a('v_mul_f32 %s, %s, %s' % (v(T+3), lit(32.0), v(T+2)))
            a('v_cos_f32 %s, %s' % (v(V.TW+rho), v(T+2)))
            a('v_sin_f32 %s, %s' % (v(V.TW+16+rho), v(T+2)))
            self.trig(T+3, V.F32+rho, V.F32+16+rho)

    def coop_gen(self):
        a = self.a; T = V.T; X = V.DA
        self.sigma_lane(T)
        a('v_cvt_f32_u32 %s, %s' % (v(T), v(T)))
        a('v_mul_f32 %s, %s, %s' % (v(T), lit(1/1024), v(T)))
        a('s_and_b32 %s, %s, 1' % (sA, sW)); a('s_lshl_b32 %s, %s, 3' % (sA, sA))
        a('s_and_b32 %s, %s, 2' % (sB, sW)); a('s_lshl_b32 %s, %s, 1' % (sB, sB)); a('s_add_u32 %s, %s, %s' % (sA, sA, sB))
        a('s_and_b32 %s, %s, 4' % (sB, sW)); a('s_lshl_b32 %s, %s, 2' % (sB, sB)); a('s_add_u32 %s, %s, %s' % (sA, sA, sB))
        a('v_lshrrev_b32 %s, 5, %s' % (v(T+1), v(V.lane)))
        a('v_lshl_add_u32 %s, %s, 1, %s' % (v(T+1), v(T+1), sA))
        a('v_cvt_f32_u32 %s, %s' % (v(T+1), v(T+1)))
        a('v_mul_f32 %s, %s, %s' % (v(T+2), v(T+1), v(T)))
        for e in range(2):
            a('v_mul_f32 %s, %s, %s' % (v(T+3), lit(32.0), v(T+2)))
            if self.o['shear']:
                a('v_mul_f32 %s, 0.5, %s' % (v(T+4), v(T+2)))
                a('v_cos_f32 %s, %s' % (v(T+5), v(T+4)))
                a('v_sin_f32 %s, %s' % (v(T+6), v(T+4)))
                a('v_rcp_f32 %s, %s' % (v(T+5), v(T+5)))
                a('v_mul_f32 %s, %s, %s' % (v(X+4+e), v(T+6), v(T+5)))
                a('v_fma_f32 %s, %s, %s, 1.0' % (v(T+5), v(X+4+e), v(X+4+e)))
                a('v_rcp_f32 %s, %s' % (v(T+6), v(T+5)))
                a('v_fma_f32 %s, -%s, %s, 1.0' % (v(T+5), v(T+5), v(T+6)))
                a('v_fmac_f32 %s, %s, %s' % (v(T+6), v(T+5), v(T+6)))
                a('v_mul_f32 %s, -2.0, %s' % (v(T+6), v(T+6)))
                a('v_mul_f32 %s, %s, %s' % (v(X+6+e), v(T+6), v(X+4+e)))
            else:
                a('v_cos_f32 %s, %s' % (v(X+4+e), v(T+2)))
                a('v_sin_f32 %s, %s' % (v(X+6+e), v(T+2)))
            self.trig(T+3, X+e, X+2+e)
            if e == 0: a('v_add_f32 %s, %s, %s' % (v(T+2), v(T+2), v(T)))
        a('s_lshr_b32 %s, %s, 1' % (sA, sW)); a('s_lshl_b32 %s, %s, 10' % (sA, sA))
        a('s_and_b32 %s, %s, 1' % (sB, sW)); a('s_lshl_b32 %s, %s, 3' % (sB, sB)); a('s_add_u32 %s, %s, %s' % (sA, sA, sB))
        a('s_add_u32 %s, %s, %d' % (sA, sA, TABL))
        a('v_add_u32 %s, %s, %s' % (v(T), sA, v(V.l16)))
        for k in range(4):
            a('ds_write_b64 %s, %s offset:%d' % (v(T), vr(X+2*k, 2), 4096*k))
    def coop_init(self):
        a = self.a; T = V.T
        a('v_mov_b32 %s, %d' % (v(V.dummy2), CNT)); a('v_mov_b32 %s, 0' % v(T))
        a('ds_write_b32 %s, %s' % (v(V.dummy2), v(T)))
    def coop_post(self):
        a = self.a; T = V.T
        a('v_mov_b32 %s, 1' % v(T+1))
        a('ds_add_u32 %s, %s' % (v(V.dummy2), v(T+1)))
    def coop_wait(self):
        a = self.a; T = V.T; lp, ok = self.label('cw'), self.label('cwok')
        a('s_mov_b32 %s, 0' % sCnt)
        a(lp+':')
        a('ds_read_b32 %s, %s' % (v(T), v(V.dummy2)))
        a('s_add_u32 %s, %s, 1' % (sCnt, sCnt))
        a('s_cmp_gt_u32 %s, 0x%x' % (sCnt, SPIN_MAX*8))
        a('s_waitcnt lgkmcnt(0)')
        a('s_cbranch_scc1 %s' % ok)
        a('v_cmp_gt_u32 vcc, 0x200, %s' % v(T))
        a('s_cbranch_vccnz %s' % lp)
        a(ok+':')
    def coop_read(self):
        a = self.a; T = V.T
        assert V.TW == V.F32+32
        a('v_add_u32 %s, %d, %s' % (v(T), TABL, v(V.l16)))
        for k in range(16):
            a('ds_read_b128 %s, %s offset:%d' % (vr(V.F32+4*k, 4), v(T), 1024*k))

    def calc_k0(self):
        a = self.a
        a('s_lshr_b32 %s, %s, 4' % (sA, sT))
        a('s_and_b32 %s, %s, 15' % (sB, sT))
        a('s_lshl_b32 %s, %s, 4' % (sK0, sB))
        a('s_add_u32 %s, %s, %s' % (sK0, sK0, sA))
        a('s_lshr_b32 %s, %s, 2' % (sC, sB)); a('s_lshl_b32 %s, %s, 5' % (sC, sC))
        a('s_and_b32 %s, %s, 1' % (sD, sB)); a('s_lshl_b32 %s, %s, 4' % (sD, sD)); a('s_add_u32 %s, %s, %s' % (sC, sC, sD))
        a('s_and_b32 %s, %s, 2' % (sD, sB)); a('s_lshl_b32 %s, %s, 2' % (sD, sD)); a('s_add_u32 %s, %s, %s' % (sC, sC, sD))
        a('s_cmp_eq_u32 %s, 0' % sA)
        a('s_cselect_b32 %s, %s, %s' % (sK0, sC, sK0))
        a('s_cmp_eq_u32 %s, 0' % sT)
        a('s_cselect_b32 %s, 7, 8' % sA)
        a('s_lshl_b32 %s, %s, %s' % (sKP, sW, sA))
        a('s_add_u32 %s, %s, %s' % (sKP, sKP, sK0))
        a('s_sub_u32 %s, 0x800, %s' % (sKM, sKP))
        a('s_cmp_eq_u32 %s, 0' % sKP)
        a('s_cselect_b32 %s, 0x400, %s' % (sKM, sKM))
        a('s_cselect_b32 %s, 1, 0' % sSpec)
        a('s_mul_i32 %s, %s, 1026' % (sKP, sKP))
        a('s_mul_i32 %s, %s, 1026' % (sKM, sKM))

    def wq(self, rho): return (rho & 1) + 8*((rho >> 1) & 1) + 4*((rho >> 2) & 1)
    def w_prep(self):
        a = self.a
        a('s_mul_i32 %s, %s, 4224' % (sWL, sW))
        a('s_add_u32 %s, %s, %d' % (sWL, sWL, WL))
        a('s_and_b32 %s, %s, 2' % (sA, sKP))
        a('s_add_u32 %s, %s, %s' % (sDP, sKP, sA)); a('s_add_u32 %s, %s, %s' % (sDM, sKM, sA))
    def w_dma1(self, i):
        a = self.a
        srd, so = [(SWR, sDP), (SWI, sDP), (SWR, sDM), (SWI, sDM)][i]
        a('s_add_u32 m0, %s, %d' % (sWL, 1056*i))
        a('buffer_load_dwordx4 %s, %s, %s offen %s lds' % (v(V.l16), srd, so, self.o['ldw']))
    def w_dma(self):
        for i in range(4): self.w_dma1(i)
    def w_sload(self):
        a = self.a; T = V.T
        a('s_mov_b64 exec, 15')
        a('v_mov_b32 %s, %s' % (v(T), sKP)); a('v_mov_b32 %s, %s' % (v(T+1), sKM))
        a('s_mov_b64 vcc, 10')
        a('v_cndmask_b32 %s, %s, %s, vcc' % (v(T), v(T), v(T+1)))
        a('v_and_b32 %s, 2, %s' % (v(T+1), v(V.lane)))
        a('v_lshl_add_u32 %s, %s, 9, %s' % (v(T), v(T+1), v(T)))
        a('buffer_load_short_d16_hi %s, %s, %s, 0 offen' % (v(V.WF), v(T), SWR))
        a('buffer_load_short_d16_hi %s, %s, %s, 0 offen' % (v(V.WF+1), v(T), SWI))
        a('s_mov_b64 exec, -1')
    def w_edge_rl(self):
        a = self.a
        for l in range(4):
            for im in range(2):
                a('v_readlane_b32 s%d, %s, %d' % (84+2*l+im, v(V.WF+im), l))
    def w_edge(self):
        a = self.a; T = V.T
        self.w_edge_rl()
        for i, (x, y, op) in enumerate(((84, 86, 'add'), (85, 87, 'sub'), (90, 88, 'add'), (91, 89, 'sub'))):
            a('v_mov_b32 %s, s%d' % (v(T), y))
            a('v_%s_f32 %s, s%d, %s' % (op, v(V.WF+i), x, v(T)))
            a('v_mul_f32 %s, 0.5, %s' % (v(V.WF+i), v(V.WF+i)))
        a('s_mov_b64 s[92:93], 1')
    def w_addr(self):
        a = self.a; T = V.T
        self.sigma_lane(T)
        a('v_lshrrev_b32 %s, 5, %s' % (v(T+1), v(V.lane)))
        a('v_lshlrev_b32 %s, 7, %s' % (v(T+1), v(T+1)))
        a('v_lshl_add_u32 %s, %s, 1, %s' % (v(T), v(T), v(T+1)))
        a('s_and_b32 %s, %s, 2' % (sD, sKP)); a('s_sub_u32 %s, %s, %s' % (sD, sWL, sD))
        a('v_add_u32 %s, %s, %s' % (v(V.WP), sD, v(T)))
        a('s_add_u32 %s, %s, %d' % (sD, sD, 1024-832))
        a('v_sub_u32 %s, %s, %s' % (v(V.WM), sD, v(T)))
    def w_read(self, rho, dst=None, swap=False):
        a = self.a; dst = V.W if dst is None else dst
        for im in range(2):
            if rho < 8: ad, off = V.WP, 64*self.wq(rho) + (2112 if swap else 0)
            else: ad, off = V.WM, 64*(13-self.wq(rho)) + (0 if swap else 2112)
            a('ds_read_u16_d16_hi %s, %s offset:%d' % (v(dst+16*im+rho), v(ad), off+1056*im))
    def w_fix(self, half):
        a = self.a
        for im in range(2):
            r = V.W+8*half+16*im
            a('v_cndmask_b32 %s, %s, %s, s[92:93]' % (v(r), v(r), v(V.WF+2*half+im)))
    def w_regs_early(self):
        a = self.a
        for rho in range(16): self.w_read(rho)
        a('s_waitcnt lgkmcnt(0)')
        self.w_fix(0); self.w_fix(1)
    def w_special(self):
        a = self.a; T = V.T
        l0, l1 = self.label('Wspec'), self.label('Wend')
        a('s_cmp_eq_u32 %s, 1' % sSpec)
        a('s_cbranch_scc1 %s' % l0)
        a(l1+':')
        def tail():
            X = V.DA
            a(l0+':')
            for rho in range(16): self.w_read(rho)
            for rho in range(16): self.w_read(rho, X, True)
            a('s_waitcnt lgkmcnt(0) vmcnt(0)')
            self.w_edge_rl()
            a('s_mov_b64 exec, 1')
            for r in (V.W+16, V.W+24, X+16, X+24): a('v_mov_b32 %s, 0' % v(r))
            a('v_mov_b32 %s, s90' % v(V.W+8)); a('v_mov_b32 %s, s88' % v(X+8))
            a('s_mov_b64 exec, -1')
            for i in range(32):
                a('v_add_f32 %s, %s, %s' % (v(T+3), v(V.W+i), v(X+i)))
                if (i & 15) < 8: a('v_sub_f32 %s, %s, %s' % (v(X+i), v(V.W+i), v(X+i)))
                else: a('v_sub_f32 %s, %s, %s' % (v(X+i), v(X+i), v(V.W+i)))
                a('v_mov_b32 %s, %s' % (v(V.W+i), v(T+3)))
            a('v_add_u32 %s, %d, %s' % (v(T+1), SCR_B, v(V.l16)))
            for i in range(8):
                a('ds_write_b128 %s, %s offset:%d' % (v(T+1), vr(X+4*i, 4), 1024*i))
            a('s_waitcnt lgkmcnt(0)')
            a('s_branch %s' % l1)
        self.tail.append(tail)

    def B_dup(self):
        a = self.a
        a('v_mov_b32 %s, %s' % (v(V.B+4), v(V.B))); a('v_mov_b32 %s, %s' % (v(V.B+5), v(V.B+1)))
        a('v_mov_b32 %s, %s' % (v(V.B+10), v(V.B+6))); a('v_mov_b32 %s, %s' % (v(V.B+11), v(V.B+7)))
    def gen_B(self, early=False, dup=True):
        a = self.a; T = V.T
        l0, l1 = self.label('Bspec'), self.label('Bend')
        a('s_cmp_eq_u32 %s, 0' % sT)
        a('s_cbranch_scc1 %s' % (l1 if early else l0))
        c, s = T+8, T+9
        a('v_lshrrev_b32 %s, 1, %s' % (v(T), v(V.n)))
        a('v_lshl_add_u32 %s, %s, 8, %s' % (v(T+1), v(T), sK0))
        a('v_cvt_f32_u32 %s, %s' % (v(T+1), v(T+1)))
        a('v_mul_f32 %s, %s, %s' % (v(T+1), lit(1/2048), v(T+1)))
        a('v_cvt_f32_u32 %s, %s' % (v(T+2), v(V.g)))
        a('v_add_f32 %s, %s, %s' % (v(T+2), v(T+2), v(T+2)))
        a('v_and_b32 %s, 1, %s' % (v(T+3), v(V.n)))
        a('v_cvt_f32_u32 %s, %s' % (v(T+3), v(T+3)))
        a('v_mul_f32 %s, %s, %s' % (v(T+4), lit(0.25), v(T+3)))
        a('v_mul_f32 %s, %s, %s' % (v(T+5), v(T+1), v(T+2)))
        for sbb in range(2):
            for half in range(2):
                a('v_%s_f32 %s, %s, %s' % ('sub' if half else 'add', v(T+6), v(T+5), v(T+4)))
                a('v_cos_f32 %s, %s' % (v(c), v(T+6)))
                a('v_sin_f32 %s, %s' % (v(s), v(T+6)))
                a('v_mul_f32 %s, %s, %s' % (v(c), lit(S11), v(c)))
                a('v_mul_f32 %s, %s, %s' % (v(s), lit(S11), v(s)))
                ng = '-' if half else ''
                a('v_cvt_pk_bf16_f32 %s, %s, %s%s' % (v(V.B+2*sbb+half), v(c), ng, v(s)))
                a('v_cvt_pk_bf16_f32 %s, -%s, %s%s' % (v(V.B+6+2*sbb+half), v(s), ng, v(c)))
            if sbb == 0: a('v_add_f32 %s, %s, %s' % (v(T+5), v(T+5), v(T+1)))
        a('v_cvt_f32_u32 %s, %s' % (v(T), v(T)))
        a('v_lshlrev_b32 %s, 31, %s' % (v(T+4), v(V.n)))
        a('v_xor_b32 %s, %s, %s' % (v(T), v(T), v(T+4)))
        a('v_xor_b32 %s, %s, %s' % (v(T+4), lit(S11), v(T+4)))
        a('v_lshl_add_u32 %s, %s, 9, %s' % (v(T+1), v(V.g), sK0))
        a('v_cvt_f32_u32 %s, %s' % (v(T+1), v(T+1)))
        a('v_mul_f32 %s, %s, %s' % (v(T+1), lit(1/2048), v(T+1)))
        a('v_mul_f32 %s, %s, %s' % (v(T+5), v(T+1), v(T)))
        a('v_fmac_f32 %s, 0.5, %s' % (v(T+5), v(T+3)))
        for ii in range(2):
            a('v_cos_f32 %s, %s' % (v(c), v(T+5)))
            a('v_sin_f32 %s, %s' % (v(s), v(T+5)))
            a('v_mul_f32 %s, %s, %s' % (v(T+6), v(T+4), v(c)))
            a('v_mul_f32 %s, %s, %s' % (v(T+7), v(T+4), v(s)))
            a('v_mul_f32 %s, %s, %s' % (v(c), lit(S11), v(c)))
            a('v_mul_f32 %s, %s, %s' % (v(s), lit(S11), v(s)))
            a('v_cvt_pk_bf16_f32 %s, %s, %s' % (v(V.Bp+2*ii), v(c), v(T+7)))
            a('v_cvt_pk_bf16_f32 %s, -%s, %s' % (v(V.Bp+4+2*ii), v(s), v(T+6)))
            a('v_cvt_pk_bf16_f32 %s, -%s, %s' % (v(V.Bp+2*ii+1), v(s), v(T+6)))
            a('v_cvt_pk_bf16_f32 %s, -%s, -%s' % (v(V.Bp+4+2*ii+1), v(c), v(T+7)))
            if ii == 0: a('v_fmac_f32 %s, %s, %s' % (v(T+5), lit(0.125), v(T)))
        a(l1+':')
        if dup: self.B_dup()
        def tail():
            a(l0+':')
            if not early: self.spec_load(); a('s_waitcnt vmcnt(0)')
            a('s_branch %s' % l1)
        if not early: self.tail.append(tail)
    def spec_load(self):
        a = self.a
        a('s_getpc_b64 s[28:29]')
        a('s_add_u32 s28, s28, spec_tab@rel32@lo+4')
        a('s_addc_u32 s29, s29, spec_tab@rel32@hi+12')
        a('global_load_dwordx4 %s, %s, s[28:29]' % (vr(V.B, 4), v(V.l16)))
        a('global_load_dwordx4 %s, %s, s[28:29] offset:1024' % (vr(V.B+6, 4), v(V.l16)))
        a('global_load_dwordx4 %s, %s, s[28:29] offset:2048' % (vr(V.Bp, 4), v(V.l16)))
        a('global_load_dwordx4 %s, %s, s[28:29] offset:3072' % (vr(V.Bp+4, 4), v(V.l16)))
    def spec_early(self):
        a = self.a
        def g():
            self.srds()
            a('s_mov_b32 %s, 0' % sDP); a('s_mov_b32 %s, %d' % (sDM, 1024*1026)); a('s_mov_b32 %s, %d' % (sWL, WL))
            self.w_dma()
        def f():
            self.spec_load(); self.cond(sW, 0, g)
        self.cond(sT, 0, f)

    def spec_table(self):
        tab = np.zeros((4, 64, 4, 2))
        for lane in range(64):
            m, g = lane & 15, lane >> 4
            for r in range(4):
                t, c = m >> 1, m & 1; sb, hf = 2*g + (r >> 1), r & 1
                if hf == (t & 1):
                    th = 2*math.pi*sb*t/16
                    tab[0, lane, r, c] = (2*S11 if t else S11)*math.cos(th)
                    tab[1, lane, r, c] = -2*S11*math.sin(th) if t else S11*(-1.0)**sb
                sb, hf = m >> 1, m & 1; t, c = 2*g + (r >> 1), r & 1
                if hf == (t & 1):
                    th = 2*math.pi*sb*t/16
                    if t: cre, cim = 2*math.cos(th), -2*math.sin(th)
                    else: cre, cim = 1.0, (-1.0)**sb
                    pl = 2 + (1 - c)
                    tab[pl, lane, r, 0] = S11*cim
                    tab[pl, lane, r, 1] = S11*cre
        tab[abs(tab) < 1e-12] = 0
        out = ['.p2align 6', '.type spec_tab,@object', 'spec_tab:']
        w = [bf16bits(tab[p, l, r, 0]) | bf16bits(tab[p, l, r, 1]) << 16 for p in range(4) for l in range(64) for r in range(4)]
        for i in range(0, len(w), 8):
            out.append('.long ' + ','.join('0x%x' % x for x in w[i:i+8]))
        return '\n'.join(out)

    def p1_load(self):
        a = self.a; T = V.T
        a('v_bfe_u32 %s, %s, 3, 1' % (v(T), v(V.lane)))
        a('v_lshlrev_b32 %s, 14, %s' % (v(T), v(T)))
        a('v_lshl_add_u32 %s, %s, 20, %s' % (v(T), v(V.g), v(T)))
        a('v_and_b32 %s, 0x70, %s' % (v(T+1), v(V.l16)))
        a('v_add_u32 %s, %s, %s' % (v(V.Xoff), v(T), v(T+1)))
        a('s_lshl_b32 %s, %s, 15' % (sO[0], sW))
        a('s_lshl_b32 %s, %s, 11' % (sA, sSB)); a('s_add_u32 %s, %s, %s' % (sO[0], sO[0], sA))
        a('s_lshl_b32 %s, %s, 7' % (sA, sCB)); a('s_add_u32 %s, %s, %s' % (sO[0], sO[0], sA))
        for r in range(1, 4): a('s_add_u32 %s, %s, 0x%x' % (sO[r], sO[0], r*262144))
    def p1_issue(self):
        a = self.a
        for r in range(4):
            a('buffer_load_dwordx4 %s, %s, %s, %s offen %s' % (vr(V.L+4*r, 4), v(V.Xoff), SX, sO[r], self.o['ldx']))
    def p1_addrs(self):
        a = self.a; T = V.T
        a('v_xor_b32 %s, %s, %s' % (v(T), sSB, v(V.lane)))
        a('v_and_b32 %s, 1, %s' % (v(T), v(T)))
        a('v_mul_u32_u24 %s, 16448, %s' % (v(T), v(T)))
        a('v_lshl_add_u32 %s, %s, 12, %s' % (v(T), v(V.g), v(T)))
        a('v_and_b32 %s, 14, %s' % (v(T+1), v(V.lane)))
        a('v_lshl_add_u32 %s, %s, 3, %s' % (v(T), v(T+1), v(T)))
        a('s_lshr_b32 %s, %s, 2' % (sA, sW)); a('s_lshl_b32 %s, %s, 9' % (sA, sA))
        a('s_and_b32 %s, %s, 1' % (sB, sW)); a('s_lshl_b32 %s, %s, 8' % (sB, sB)); a('s_add_u32 %s, %s, %s' % (sA, sA, sB))
        a('s_and_b32 %s, %s, 2' % (sB, sW)); a('s_lshl_b32 %s, %s, 6' % (sB, sB)); a('s_add_u32 %s, %s, %s' % (sA, sA, sB))
        if R0: a('s_add_u32 %s, %s, %d' % (sA, sA, R0))
        a('v_add_u32 %s, %s, %s' % (v(V.X0w), sA, v(T)))
        self.tr_lane(T, 512, 128)
        a('s_lshl_b32 %s, %s, 10' % (sA, sW))
        a('s_sub_u32 %s, 0x4000, %s' % (sB, sA))
        a('s_cmp_eq_u32 %s, 0' % sW)
        a('s_cselect_b32 %s, 0x2000, %s' % (sB, sB))
        if R0: a('s_add_u32 %s, %s, %d' % (sA, sA, R0)); a('s_add_u32 %s, %s, %d' % (sB, sB, R0))
        a('v_add_u32 %s, %s, %s' % (v(V.X0r0), sA, v(T)))
        a('v_add_u32 %s, %s, %s' % (v(V.X0r1), sB, v(T)))
    def tr_lane(self, dst, g1s, g0s, b3s=64):
        a = self.a; t = V.T+7
        sh = lambda x: int(math.log2(x))
        a('v_and_b32 %s, 0x30, %s' % (v(dst), v(V.l16)))
        for bit, st in ((2, 8), (3, b3s), (4, g0s), (5, g1s)):
            a('v_bfe_u32 %s, %s, %d, 1' % (v(t), v(V.lane), bit))
            a('v_lshl_add_u32 %s, %s, %d, %s' % (v(dst), v(t), sh(st), v(dst)))

    def mf16(self, d, A, B):
        self.a('v_mfma_f32_16x16x32_bf16 %s, %s, %s, 0' % (vr(d, 4), vr(A, 4), vr(B, 4)))
    def cvt(self, d, lo, hi):
        self.a('v_cvt_pk_bf16_f32 %s, %s, %s' % (v(d), v(lo), v(hi)))

    def p1_compute(self, nafter, hook=None, hook2=None, hook3=None, hook4=None):
        a = self.a; O, L, D = V.O, V.L, V.DA
        for r in range(4):
            a('s_waitcnt vmcnt(%d)' % (nafter + 3 - r))
            if r == 3: self.stamp()
            for t in range(4):
                a('v_mov_b32 %s, %s' % (v(O+4*t+r), v(L+4*r+t)))
        for t in range(4):
            self.mf16(D+4*t, V.F16, O+4*t)
            self.mf16(D+16+4*t, V.F16+4, O+4*t)
        if hook: hook()
        P = V.DB
        for r in range(4):
            self.cvt(P+4*r, D+r, D+4+r); self.cvt(P+4*r+2, D+16+r, D+20+r)
        for r in range(4):
            self.cvt(P+4*r+1, D+8+r, D+12+r); self.cvt(P+4*r+3, D+24+r, D+28+r)
            a('ds_write_b128 %s, %s offset:%d' % (v(V.X0w), vr(P+4*r, 4), 1024*r))
        a('s_waitcnt lgkmcnt(0)')
        a('s_barrier')
        if hook4: hook4()
        for sel in range(2):
            for tau in range(2):
                for ii in range(2):
                    a('ds_read_b64_tr_b16 %s, %s offset:%d' % (vr(O+4*(2*sel+tau)+2*ii, 2), v(V.X0r1 if sel else V.X0r0), tau*16448+ii*256))
        if hook2: hook2()
        if hook3: hook3()
        for r in range(4): a('s_add_u32 %s, %s, 0x%x' % (sO[r], self.est(), self.ubase(0) + r*self.tstride()))
        for ti in range(4):
            a('s_waitcnt lgkmcnt(%d)' % (6-2*ti))
            self.mf16(D+4*ti, V.M2+8*(ti >> 1), O+4*ti)
            self.mf16(D+16+4*ti, V.M2+8*(ti >> 1)+4, O+4*ti)
        st = lambda i: a('buffer_store_dwordx4 %s, %s, %s, %s offen %s' % (vr(P+4*i, 4), v(V.Est), SWS, sO[i], self.o['st1']))
        def normal():
            for i in range(4):
                for tau in range(2): self.cvt(P+4*i+2*tau, D+4*tau+i, D+16+4*tau+i)
            for i in range(4):
                for tau in range(2): self.cvt(P+4*i+2*tau+1, D+4*(2+tau)+i, D+16+4*(2+tau)+i)
                st(i)
        def w0():
            for i in range(4):
                ts, eb = i >> 1, i & 1
                for tau in range(2):
                    for sg in range(2):
                        x = 4*(2*ts+tau)+2*eb+sg
                        self.cvt(P+4*i+2*tau+sg, D+x, D+16+x)
                st(i)
        self.ifelse(sW, 0, w0, normal)

    def p2_addrs(self):
        a = self.a; T = V.T
        a('v_lshlrev_b32 %s, 4, %s' % (v(T), v(V.n)))
        a('v_lshl_add_u32 %s, %s, 13, %s' % (v(T), v(V.g), v(T)))
        a('s_lshl_b32 %s, %s, 9' % (sA, sW)); a('s_add_u32 %s, %s, %d' % (sA, sA, R1))
        a('v_add_u32 %s, %s, %s' % (v(V.X1w), sA, v(T)))
    def p2_addrs2(self):
        a = self.a; T = V.T
        self.tr_lane(T, 256, 64, 128)
        a('s_lshl_b32 %s, %s, 12' % (sA, sW)); a('s_add_u32 %s, %s, %d' % (sA, sA, R1))
        a('v_add_u32 %s, %s, %s' % (v(V.X1r), sA, v(T)))
        a('v_and_b32 %s, 16, %s' % (v(T), v(V.l16)))
        for bit, st in ((1, 16448), (2, 8224)):
            a('v_bfe_u32 %s, %s, %d, 1' % (v(T+1), v(V.lane), bit))
            a('v_mul_u32_u24 %s, %d, %s' % (v(T+1), st, v(T+1)))
            a('v_add_u32 %s, %s, %s' % (v(T), v(T), v(T+1)))
        a('v_bfe_u32 %s, %s, 3, 2' % (v(T+1), v(V.lane)))
        a('v_lshl_add_u32 %s, %s, 11, %s' % (v(T), v(T+1), v(T)))
        a('v_and_b32 %s, 32, %s' % (v(T+1), v(V.lane)))
        a('v_add_u32 %s, %s, %s' % (v(T), v(T), v(T+1)))
        a('s_lshr_b32 %s, %s, 2' % (sA, sW)); a('s_lshl_b32 %s, %s, 9' % (sA, sA))
        a('s_and_b32 %s, %s, 1' % (sB, sW)); a('s_lshl_b32 %s, %s, 8' % (sB, sB)); a('s_add_u32 %s, %s, %s' % (sA, sA, sB))
        a('s_and_b32 %s, %s, 2' % (sB, sW)); a('s_lshl_b32 %s, %s, 6' % (sB, sB)); a('s_add_u32 %s, %s, %s' % (sA, sA, sB))
        if R0: a('s_add_u32 %s, %s, %d' % (sA, sA, R0))
        a('v_add_u32 %s, %s, %s' % (v(V.X2w), sA, v(T)))
        self.tr_lane(T, 512, 128)
        a('s_and_b32 %s, %s, 1' % (sA, sW)); a('s_lshl_b32 %s, %s, 11' % (sA, sA))
        a('s_bfe_u32 %s, %s, 0x10001' % (sB, sW)); a('s_mul_i32 %s, %s, 16448' % (sB, sB)); a('s_add_u32 %s, %s, %s' % (sA, sA, sB))
        a('s_lshr_b32 %s, %s, 2' % (sB, sW)); a('s_lshl_b32 %s, %s, 12' % (sB, sB)); a('s_add_u32 %s, %s, %s' % (sA, sA, sB))
        if R0: a('s_add_u32 %s, %s, %d' % (sA, sA, R0))
        a('v_add_u32 %s, %s, %s' % (v(V.X2r), sA, v(T)))

    def p2_issue(self):
        a = self.a
        a('s_add_u32 %s, %s, 0x%x' % (sA, sEld, self.ubase(0)))
        for q in range(4):
            a('buffer_load_dwordx4 %s, %s, %s, %s offen offset:%d %s' % (vr(V.L+12*(q >> 1)+4*(q & 1), 4), self.eld(q), SWS, sA, 256*q, self.o['ld1']))

    def mf32(self, d, i, dataA):
        for pl in range(2):
            M = vr(V.F32+16*pl+4*i, 4); X = vr(V.O+4*i, 4)
            A, B = (X, M) if dataA else (M, X)
            D = vr(d+16*pl, 16)
            self.a('v_mfma_f32_32x32x16_bf16 %s, %s, %s, %s' % (D, A, B, D if i else '0'))

    def cmul_stage(self, src, dst, dataA, coef, kind, prio=None, late=False):
        a = self.a; T = V.T
        if prio is not None and self.o['prio']: a('s_setprio %d' % prio)
        if kind == 'tw' and self.o['shear']:
            for i in range(4):
                for st in range(3):
                    for r in range(4):
                        rho = 4*i+r
                        x, y = v(src+rho), v(src+16+rho)
                        if st == 1: a('v_fmac_f32 %s, %s, %s' % (y, v(coef+16+rho), x))
                        else: a('v_fmac_f32 %s, %s, %s' % (x, v(coef+rho), y))
                for r in range(4): self.cvt(V.O+4*i+r, src+4*i+r, src+16+4*i+r)
                self.mf32(dst, i, dataA)
            return
        if late:
            a('s_waitcnt vmcnt(2)')
            for rho in range(8): self.w_read(rho)
        for i in range(4):
            if late:
                if i == 0: a('s_waitcnt lgkmcnt(8)'); self.w_fix(0)
                if i == 1:
                    a('s_waitcnt vmcnt(0)')
                    for rho in range(8, 12): self.w_read(rho)
                    a('s_waitcnt lgkmcnt(8)')
                if i == 2:
                    for rho in range(12, 16): self.w_read(rho)
                    a('s_waitcnt lgkmcnt(8)'); self.w_fix(1)
                if i == 3: a('s_waitcnt lgkmcnt(0)')
            for r in range(4):
                rho = 4*i+r
                x, y = v(src+rho), v(src+16+rho)
                c, s = v(coef+rho), v(coef+16+rho)
                t0, t1 = v(T+2*r), v(T+2*r+1)
                a('v_mul_f32 %s, %s, %s' % (t0, x, c))
                a('v_mul_f32 %s, %s, %s' % (t1, y, c))
            for r in range(4):
                rho = 4*i+r
                x, y = v(src+rho), v(src+16+rho)
                c, s = v(coef+rho), v(coef+16+rho)
                t0, t1 = v(T+2*r), v(T+2*r+1)
                if kind == 'tw' or rho >= 8:
                    a('v_fmac_f32 %s, %s, %s' % (t0, y, s))
                    a('v_fma_f32 %s, -%s, %s, %s' % (t1, x, s, t1))
                else:
                    a('v_fma_f32 %s, -%s, %s, %s' % (t0, y, s, t0))
                    a('v_fmac_f32 %s, %s, %s' % (t1, x, s))
            for r in range(4):
                if kind == 'tw': self.cvt(V.O+4*i+r, T+2*r, T+2*r+1)
                else: self.cvt(V.O+4*i+r, T+2*r+1, T+2*r)
            self.mf32(dst, i, dataA)

    def p2_compute(self, wl=None):
        a = self.a; O, L, D, T = V.O, V.L, V.DA, V.T
        late = wl is not None
        na = 0
        for cbb in range(2):
            b = L+12*cbb
            a('s_waitcnt vmcnt(%d)' % (na+3-2*cbb))
            a('v_mov_b32 %s, %s' % (v(b+8), v(b))); a('v_mov_b32 %s, %s' % (v(b+9), v(b+1)))
            a('s_waitcnt vmcnt(%d)' % (na+2-2*cbb))
            if cbb: self.stamp(); self.fstamp()
            for jj2 in (1, 0):
                ti = 2*cbb+jj2
                op = b+2 if jj2 else b+6
                mo = 0 if jj2 else 2
                self.mf16(D+4*ti, V.B+mo, op)
                self.mf16(D+16+4*ti, V.B+6+mo, op)
        for cbb in range(2):
            for k1b in range(2):
                P = O+4*(2*cbb+k1b)
                for pl in range(2):
                    for jj2 in (1, 0):
                        x = D+16*pl+4*(2*cbb+jj2)+2*k1b
                        self.cvt(P+2*pl+jj2, x, x+1)
                a('ds_write_b128 %s, %s offset:%d' % (v(V.X1w), vr(P, 4), k1b*4096+cbb*256))
        self.fstamp()
        a('s_waitcnt lgkmcnt(0)')
        self.fstamp()
        if self.o.get('fine'): a('s_waitcnt lgkmcnt(0)')
        a('s_barrier')
        if self.o['prio']: a('s_setprio 3')
        for i in range(4):
            for ii in range(2):
                a('ds_read_b64_tr_b16 %s, %s offset:%d' % (vr(O+4*i+2*ii, 2), v(V.X1r), ii*1024+(i & 1)*512+(i >> 1)*2048))
        for i in range(4):
            if late and i in (0, 2): self.wat('postX1', (i, i+1))
            a('s_waitcnt lgkmcnt(%d)' % (6-2*i))
            self.mf32(V.DA, i, True)
        self.fstamp()
        if late: self.wat('tw1')
        self.cmul_stage(V.DA, V.DB, False, V.TW, 'tw', 2)
        self.fstamp()
        l0, l1 = self.label('PWspec'), self.label('PWend')
        a('s_cmp_eq_u32 %s, 1' % sSpec)
        a('s_cbranch_scc1 %s' % l0)
        if self.o.get('fine'): a('s_waitcnt lgkmcnt(0)')
        self.cmul_stage(V.DB, V.DA, True, V.W, 'w', 1, late)
        a(l1+':')
        self.fstamp()
        self.cmul_stage(V.DA, V.DB, True, V.TW, 'tw', 0)
        self.fstamp()
        D = V.DB
        rho = lambda jj3, jj1, jj2, c: 4*(2*jj3+jj1)+2*jj2+c
        for c in range(2):
            for jj1 in range(2):
                P = O+4*(2*c+jj1)
                for pl in range(2):
                    for jj3 in range(2):
                        self.cvt(P+2*pl+jj3, D+16*pl+rho(jj3, jj1, 0, c), D+16*pl+rho(jj3, jj1, 1, c))
                a('ds_write_b128 %s, %s offset:%d' % (v(V.X2w), vr(P, 4), c*64+jj1*1024))
                if self.o['ib2'] and not self.o['ib3'] and c == 0 and jj1 == 0: self.major_read()
        self.fstamp()
        a('s_waitcnt lgkmcnt(0)')
        if self.o['ib2'] and not self.o['ib3']: self.major_use()
        self.fstamp()
        if self.o.get('fine'): a('s_waitcnt lgkmcnt(0)')
        a('s_barrier')
        for cbb in range(2):
            for jj1 in range(2):
                for ii in range(2):
                    a('ds_read_b64_tr_b16 %s, %s offset:%d' % (vr(O+4*(2*cbb+jj1)+2*ii, 2), v(V.X2r), ii*256+jj1*1024+cbb*8224))
        for r in range(4): a('s_add_u32 %s, %s, 0x%x' % (sO[r], self.est(), self.ubase(1) + r*self.tstride()))
        D = V.DA
        for ti in range(4):
            a('s_waitcnt lgkmcnt(%d)' % (6-2*ti))
            self.mf16(D+4*ti, V.Bp, O+4*ti)
            self.mf16(D+16+4*ti, V.Bp+4, O+4*ti)
        self.fstamp()
        P = V.DB
        for q in range(4):
            cbb, sbb = q >> 1, q & 1
            for jj1 in range(2):
                for hf in range(2):
                    x = 4*(2*cbb+jj1)+2*sbb+hf
                    self.cvt(P+4*q+2*jj1+hf, D+x, D+16+x)
            a('buffer_store_dwordx4 %s, %s, %s, %s offen %s' % (vr(P+4*q, 4), v(V.Est), SWS, sO[q], self.o['st2']))
        self.fstamp()
        if self.o.get('fine'):
            a('s_memrealtime s[%d:%d]' % (sTS+2*self.nts, sTS+2*self.nts+1)); self.nts += 1
        def tail():
            C = V.DB; X = V.DA
            a(l0+':')
            self.sigma_lane(T)
            a('v_lshrrev_b32 %s, 5, %s' % (v(T+1), v(V.lane)))
            a('v_lshlrev_b32 %s, 9, %s' % (v(T+1), v(T+1)))
            a('v_lshl_add_u32 %s, %s, 2, %s' % (v(T+2), v(T), v(T+1)))
            a('v_add_u32 %s, %d, %s' % (v(T+2), SCR, v(T+2)))
            a('v_add_u32 %s, 128, %s' % (v(T+3), v(T+2)))
            a('v_sub_u32 %s, 32, %s' % (v(T+4), v(T)))
            a('v_lshrrev_b32 %s, 5, %s' % (v(T+5), v(T+4)))
            a('v_and_b32 %s, 31, %s' % (v(T+4), v(T+4)))
            a('v_lshlrev_b32 %s, 2, %s' % (v(T+4), v(T+4)))
            a('v_lshl_add_u32 %s, %s, 8, %s' % (v(T+4), v(T+5), v(T+4)))
            a('v_sub_u32 %s, %s, %s' % (v(T+4), v(T+4), v(T+1)))
            a('v_add_u32 %s, %d, %s' % (v(T+4), SCR + 2*256, v(T+4)))
            a('v_add_u32 %s, 128, %s' % (v(T+5), v(T+4)))
            a('v_add_u32 %s, %d, %s' % (v(T+6), SCR_B, v(V.l16)))
            qs = lambda rho: sigma(8*(rho >> 2) + (rho & 3))
            for pl in range(2):
                for rho in range(0, 16, 2):
                    a('ds_write2st64_b32 %s, %s, %s offset0:%d offset1:%d' % (v(T+2+pl), v(C+16*pl+rho), v(C+16*pl+rho+1), qs(rho), qs(rho+1)))
                a('ds_write_b32 %s, %s offset:%d' % (v(T+2+pl), v(C+16*pl), 32*256))
            a('s_waitcnt lgkmcnt(0)')
            t0, t1 = v(T+8), v(T+9)
            for half in range(2):
                for pl in range(2):
                    for k in range(0, 8, 2):
                        rho_ = 8*half+k
                        a('ds_read2st64_b32 %s, %s offset0:%d offset1:%d' % (vr(X+8*pl+k, 2), v(T+4+pl), 29-qs(rho_), 29-qs(rho_+1)))
                    for k in range(2):
                        a('ds_read_b128 %s, %s offset:%d' % (vr(X+16+8*pl+4*k, 4), v(T+6), 1024*(4*pl+2*half+k)))
                a('s_waitcnt lgkmcnt(0)')
                for k in range(8):
                    rho_ = 8*half+k
                    x, y = v(C+rho_), v(C+16+rho_); ar, ai = v(V.W+rho_), v(V.W+16+rho_)
                    p, q_ = v(X+k), v(X+8+k); br, bi = v(X+16+k), v(X+24+k)
                    ng, ps = ('', '-') if half else ('-', '')
                    a('v_mul_f32 %s, %s, %s' % (t0, x, ar))
                    a('v_mul_f32 %s, %s, %s' % (t1, y, ar))
                    a('v_fma_f32 %s, %s%s, %s, %s' % (t0, ng, y, ai, t0))
                    a('v_fma_f32 %s, %s%s, %s, %s' % (t1, ps, x, ai, t1))
                    a('v_fmac_f32 %s, %s, %s' % (t0, p, br))
                    a('v_fma_f32 %s, -%s, %s, %s' % (t1, q_, br, t1))
                    a('v_fma_f32 %s, %s%s, %s, %s' % (t0, ps, q_, bi, t0))
                    a('v_fma_f32 %s, %s%s, %s, %s' % (t1, ps, p, bi, t1))
                    self.cvt(O+rho_, T+9, T+8)
            for i in range(4): self.mf32(V.DA, i, True)
            a('s_nop 11')
            a('s_branch %s' % l1)
        self.tail.append(tail)

    def p3_addrs(self):
        a = self.a; T = V.T
        a('v_and_b32 %s, 16, %s' % (v(T), v(V.lane)))
        for bit, st in ((0, 32), (3, 4096), (5, 1024)):
            a('v_bfe_u32 %s, %s, %d, 1' % (v(T+1), v(V.lane), bit))
            a('v_lshl_add_u32 %s, %s, %d, %s' % (v(T), v(T+1), int(math.log2(st)), v(T)))
        for bit, st in ((1, 8208), (2, 16448)):
            a('v_bfe_u32 %s, %s, %d, 1' % (v(T+1), v(V.lane), bit))
            a('v_mul_u32_u24 %s, %d, %s' % (v(T+1), st, v(T+1)))
            a('v_add_u32 %s, %s, %s' % (v(T), v(T), v(T+1)))
        a('s_sub_u32 %s, 16, %s' % (sC, sW))
        a('s_cmp_eq_u32 %s, 0' % sW)
        a('s_cselect_b32 %s, 8, %s' % (sC, sC))
        for kl, dst in ((sW, V.X3w0), (sC, V.X3w1)):
            a('s_and_b32 %s, %s, 9' % (sA, kl)); a('s_lshl_b32 %s, %s, 6' % (sA, sA))
            a('s_and_b32 %s, %s, 2' % (sB, kl)); a('s_lshl_b32 %s, %s, 7' % (sB, sB)); a('s_add_u32 %s, %s, %s' % (sA, sA, sB))
            a('s_and_b32 %s, %s, 4' % (sB, kl)); a('s_lshl_b32 %s, %s, 5' % (sB, sB)); a('s_add_u32 %s, %s, %s' % (sA, sA, sB))
            a('s_add_u32 %s, %s, %d' % (sA, sA, R1))
            a('v_add_u32 %s, %s, %s' % (v(dst), sA, v(T)))
        self.tr_lane(T, 512, 128)
        a('s_and_b32 %s, %s, 1' % (sA, sW)); a('s_mul_i32 %s, %s, 8208' % (sA, sA))
        a('s_bfe_u32 %s, %s, 0x10001' % (sB, sW)); a('s_mul_i32 %s, %s, 16448' % (sB, sB)); a('s_add_u32 %s, %s, %s' % (sA, sA, sB))
        a('s_lshr_b32 %s, %s, 2' % (sB, sW)); a('s_lshl_b32 %s, %s, 12' % (sB, sB)); a('s_add_u32 %s, %s, %s' % (sA, sA, sB))
        a('s_add_u32 %s, %s, %d' % (sA, sA, R1))
        a('v_add_u32 %s, %s, %s' % (v(V.X3r), sA, v(T)))
        a('v_bfe_u32 %s, %s, 3, 1' % (v(T), v(V.lane)))
        a('v_lshlrev_b32 %s, 15, %s' % (v(T), v(T)))
        a('v_lshl_add_u32 %s, %s, 21, %s' % (v(T), v(V.g), v(T)))
        a('v_and_b32 %s, 0x70, %s' % (v(T+1), v(V.l16)))
        a('v_add_u32 %s, %s, %s' % (v(V.Ooff), v(T), v(T+1)))
    def p3_soff(self):
        a = self.a
        a('s_lshl_b32 %s, %s, 16' % (sO[0], sW))
        a('s_lshl_b32 %s, %s, 12' % (sA, sSB)); a('s_add_u32 %s, %s, %s' % (sO[0], sO[0], sA))
        a('s_lshl_b32 %s, %s, 7' % (sA, sCB)); a('s_add_u32 %s, %s, %s' % (sO[0], sO[0], sA))
        a('s_lshl_b32 %s, %s, 11' % (sA, sP)); a('s_add_u32 %s, %s, %s' % (sO[0], sO[0], sA))
        for r in range(1, 4): a('s_add_u32 %s, %s, 0x%x' % (sO[r], sO[0], r*524288))
    def p3_issue(self):
        a = self.a
        a('s_add_u32 %s, %s, 0x%x' % (sA, sEld, self.ubase(1)))
        for q in range(4):
            a('buffer_load_dwordx4 %s, %s, %s, %s offen offset:%d %s' % (vr(V.L+4*q, 4), self.eld(q, 1), SWS, sA, 256*q, self.o['ld2']))
    def p3_compute(self):
        a = self.a; O, L, D = V.O, V.L, V.DA
        def normal():
            for i in range(4):
                a('s_waitcnt vmcnt(%d)' % (3-i))
                for sel in range(2):
                    for col in range(2):
                        a('v_mov_b32 %s, %s' % (v(O+4*(2*sel+col)+i), v(L+4*i+2*col+sel)))
        def w0():
            for i in range(4):
                ts, eb = i >> 1, i & 1
                a('s_waitcnt vmcnt(%d)' % (3-i))
                for col in range(2):
                    for sg in range(2):
                        a('v_mov_b32 %s, %s' % (v(O+4*(2*ts+col)+2*eb+sg), v(L+4*i+2*col+sg)))
        self.ifelse(sW, 0, w0, normal, True)
        self.stamp()
        for ti in range(4):
            self.mf16(D+4*ti, O+4*ti, V.M2+8*(ti >> 1))
            self.mf16(D+16+4*ti, O+4*ti, V.M2+8*(ti >> 1)+4)
        P = V.DB
        for ti in range(4):
            for pl in range(2):
                for k in range(2):
                    x = D+16*pl+4*ti+2*k
                    self.cvt(P+4*ti+2*pl+k, x, x+1)
            a('ds_write_b128 %s, %s offset:%d' % (v(V.X3w1 if ti >> 1 else V.X3w0), vr(P+4*ti, 4), (ti & 1)*2048))
        a('s_waitcnt lgkmcnt(0)')
        a('s_barrier')
        for t in range(4):
            for ii in range(2):
                a('ds_read_b64_tr_b16 %s, %s offset:%d' % (vr(O+4*t+2*ii, 2), v(V.X3r), ii*256+t*1024))
        for t in range(4):
            a('s_waitcnt lgkmcnt(%d)' % (6-2*t))
            self.mf16(D+4*t, V.F16, O+4*t)
            self.mf16(D+16+4*t, V.F16+4, O+4*t)
        for t in range(3):
            for r in range(4): self.cvt(P+4*r+t, D+16+4*t+r, D+4*t+r)
        for r in range(4):
            self.cvt(P+4*r+3, D+16+12+r, D+12+r)
            a('buffer_store_dwordx4 %s, %s, %s, %s offen %s' % (vr(P+4*r, 4), v(V.Ooff), SOUT, sO[r], self.o['sto']))

    def flush_tail(self):
        t, self.tail = self.tail, []
        for f in t: f()

    def kernel_head(self, name):
        self.a.raw('.globl %s\n.p2align 12\n.p2align 8\n.type %s,@function\n%s:' % (name, name, name))
    def kd(self, name):
        return '''.p2align 6
.amdhsa_kernel %s
  .amdhsa_next_free_vgpr %d
  .amdhsa_next_free_sgpr 102
  .amdhsa_accum_offset %d
  .amdhsa_group_segment_fixed_size 0
  .amdhsa_kernarg_size 72
  .amdhsa_user_sgpr_count 2
  .amdhsa_user_sgpr_kernarg_segment_ptr 1
  .amdhsa_system_sgpr_workgroup_id_x 1
.end_amdhsa_kernel''' % (name, NVGPR, (NVGPR+3)//4*4)

    def build_three(self):
        a = self.a
        names = ['gf_p1_kernel', 'gf_p2_kernel', 'gf_p3_kernel']
        self.kernel_head(names[0]); end = self.label('end')
        self.prologue(end); self.p1_load(); a('s_waitcnt lgkmcnt(0)'); self.p1_issue()
        self.ex_addrs(); self.p1_addrs(); self.gen_F16(); self.gen_M2()
        self.p1_compute(0)
        if self.o['ts']: self.stamp(); a('s_waitcnt vmcnt(0)'); self.stamp(); self.dump_stamps(0)
        a(end+':'); a('s_endpgm'); self.flush_tail()
        self.kernel_head(names[1]); end = self.label('end')
        self.prologue(end); self.ex_addrs(); self.calc_k0(); a('s_waitcnt lgkmcnt(0)')
        self.w_dma(); self.p2_addrs(); self.gen_B(); self.gen_F32TW()
        a('s_waitcnt vmcnt(0)'); self.w_regs(); a('s_waitcnt lgkmcnt(0)')
        self.p2_issue(); self.p2_compute()
        if self.o['ts']: self.stamp(); a('s_waitcnt vmcnt(0)'); self.stamp(); self.dump_stamps(8)
        a(end+':'); a('s_endpgm'); self.flush_tail()
        self.kernel_head(names[2]); end = self.label('end')
        self.prologue(end); self.ex_addrs(); a('s_waitcnt lgkmcnt(0)'); self.p3_issue()
        self.p3_addrs(); self.p3_soff(); self.gen_F16(); self.gen_M3()
        self.p3_compute()
        if self.o['ts']: self.stamp(); a('s_waitcnt vmcnt(0)'); self.stamp(); self.dump_stamps(16)
        a(end+':'); a('s_endpgm'); self.flush_tail()
        launch = ''.join('; @launch kernel=%s grid=(256,1,1) block=(512,1,1) lds=%d\n' % (n, LDS_TOTAL) for n in names)
        return self.finish(launch, names)

    def flag_addrs(self):
        a = self.a
        if self.o['ib']:
            a('s_lshr_b32 %s, %s, 4' % (sB, sT))
            for dst, wp, gr in ((sF, sW, sB), (sE, sB, sW)):
                a('s_lshl3_add_u32 %s, %s, %s' % (sA, sP, wp)); a('s_lshl_b32 %s, %s, 21' % (sA, sA))
                a('s_lshl_b32 %s, %s, 10' % (sC, gr)); a('s_add_u32 %s, %s, %s' % (sA, sA, sC))
                a('s_add_u32 %s, %s, 0x%x' % (dst, sA, WS_FLAG_IB))
            a('s_and_b32 %s, %s, 15' % (sA, sT)); a('s_add_u32 %s, %s, 8' % (sA, sA))
            a('s_lshl_b32 %s, %s, %s' % (sInc, sCh, sA)); a('s_add_u32 %s, %s, 1' % (sInc, sInc))
            a('v_lshl_add_u32 %s, %s, 2, 8' % (v(V.dummy), v(V.g)))
            return
        if self.o['fl'] != '':
            pol = int(self.o['fl'][1]); mode = self.o['fl'][0]
            a('s_lshr_b32 %s, %s, 4' % (sB, sT))
            for dst, wp, gr in ((sF, sW, sB), (sE, sB, sW)):
                a('s_lshl3_add_u32 %s, %s, %s' % (sA, sP, wp))
                if mode == 'x': a('s_xor_b32 %s, %s, %d' % (sC, sP, pol))
                else: a('s_lshr_b32 %s, %s, 2' % (sC, wp)); a('s_xor_b32 %s, %s, %d' % (sC, sC, pol))
                a('s_lshl1_add_u32 %s, %s, %s' % (sA, sA, sC))
                a('s_lshl3_add_u32 %s, %s, %s' % (sA, sA, gr))
                a('s_lshl_b32 %s, %s, 10' % (sA, sA))
                a('s_add_u32 %s, %s, 0x%x' % (dst, sA, WS_FLAG))
            return
        fs = int(self.o['fstride'])
        a('s_lshl_b32 %s, %s, %d' % (sA, sP, fs+6)); a('s_add_u32 %s, %s, 0x%x' % (sA, sA, WS_FLAG))
        a('s_lshr_b32 %s, %s, 4' % (sB, sT))
        a('s_lshl_b32 %s, %s, %d' % (sF, sW, fs+3)); a('s_add_u32 %s, %s, %s' % (sF, sF, sA))
        a('s_lshl_b32 %s, %s, %d' % (sC, sB, fs)); a('s_add_u32 %s, %s, %s' % (sF, sF, sC))
        a('s_lshl_b32 %s, %s, %d' % (sE, sB, fs+3)); a('s_add_u32 %s, %s, %s' % (sE, sE, sA))
        a('s_lshl_b32 %s, %s, %d' % (sC, sW, fs)); a('s_add_u32 %s, %s, %s' % (sE, sE, sC))
    def p2_probe_issue(self):
        a = self.a
        def f():
            a('s_bfe_u32 %s, %s, 0x30003' % (sA, sT)); a('s_lshl3_add_u32 %s, %s, %s' % (sA, sP, sA))
            a('s_lshr_b32 %s, %s, 6' % (sCh2, sT))
            a('s_lshl1_add_u32 %s, %s, %s' % (sA, sA, sCh2))
            a('s_and_b32 %s, %s, 7' % (sB, sT)); a('s_lshl3_add_u32 %s, %s, %s' % (sA, sA, sB))
            a('s_lshl_b32 %s, %s, 10' % (sA, sA)); a('s_add_u32 %s, %s, 0x%x' % (sA, sA, WS_FLAG2))
            a('s_xor_b32 %s, %s, 0x2000' % (sB, sA))
            a('s_mov_b64 s[92:93], 0')
            a('s_atomic_swap s92, s[24:25], %s glc' % sA)
            a('s_atomic_swap s93, s[24:25], %s glc' % sB)
        self.cond(sW, PW, f)
    def p2_probe_eval(self):
        a = self.a; T = V.T
        def f():
            a('s_waitcnt lgkmcnt(1)')
            a('s_nop %s' % self.o['pnop'])
            a('s_getreg_b32 %s, hwreg(HW_REG_IB_STS, 8, 4)' % sA)
            a('s_cmp_eq_u32 %s, 0' % sA)
            a('s_cselect_b32 %s, 1, 0' % sA)
            a('s_xor_b32 %s, %s, %s' % (sCh2, sCh2, sA))
            if self.o['force'] != '': a('s_xor_b32 %s, %s, %s' % (sCh2, sP, self.o['force']))
            if not self.o['ib3']:
                a('v_mov_b32 %s, %d' % (v(T), CNT)); a('v_mov_b32 %s, %s' % (v(T+1), sCh2))
                a('ds_write_b32 %s, %s offset:4' % (v(T), v(T+1)))
            if self.o['ib3']:
                l = self.label('nv')
                a('s_and_b32 %s, s2, 0x8f' % sA); a('s_cmp_lg_u32 %s, 8' % sA); a('s_cbranch_scc1 %s' % l)
                a('s_cmp_eq_u32 s2, 120'); a('s_cbranch_scc1 %s' % l)
                a('s_lshl_b32 s94, %s, 8' % sCh2); a('s_add_u32 s94, s94, 0x1001')
                a('s_atomic_add s94, s[20:21], 0x0')
                a(l+':')
        self.cond(sW, PW, f)
    def vote_read(self):
        a = self.a
        def f():
            a('s_mov_b32 s22, 256'); a('s_mov_b32 s23, 0x20000')
            a('v_mov_b32 %s, 0' % v(V.EL))
            a('buffer_load_dword %s, %s, %s, 0 offen sc1' % (v(V.dummy), v(V.EL), SDBG))
        self.cond(sW, PW, f)
    def vote_use(self):
        a = self.a; T = V.T
        def f():
            a('v_readfirstlane_b32 %s, %s' % (sA, v(V.dummy)))
            a('s_bfe_u32 %s, %s, 0x40008' % (sB, sA)); a('s_bfe_u32 %s, %s, 0x4000c' % (sC, sA))
            a('s_sub_u32 %s, %s, %s' % (sC, sC, sB))
            a('s_xor_b32 %s, %s, 1' % (sA, sP))
            a('s_cmp_ge_u32 %s, 4' % sB); a('s_cselect_b32 %s, %s, %s' % (sCh2, sA, sCh2))
            a('s_cmp_ge_u32 %s, 4' % sC); a('s_cselect_b32 %s, %s, %s' % (sCh2, sP, sCh2))
            a('v_mov_b32 %s, %s' % (v(T+1), sCh2))
            a('ds_write_b32 %s, %s offset:4' % (v(V.dummy2), v(T+1)))
        self.cond(sW, PW, f)
    def zero3(self):
        a = self.a
        a('s_sub_u32 %s, s2, 16' % sZ)
        a('s_and_b32 %s, %s, 0xffffffef' % (sZ, sZ))
        def f():
            a('s_lshr_b32 %s, s2, 5' % sA)
            a('s_lshl1_add_u32 %s, %s, %s' % (sA, sW, sA))
            a('s_lshl_b32 %s, %s, 13' % (sA, sA)); a('s_add_u32 %s, %s, 0x%x' % (sA, sA, WS_FLAG))
            for i in range(0, 8, 2): a('s_mov_b64 s[%d:%d], 0' % (84+i, 85+i))
            for i in range(8):
                a('s_atomic_swap s%d, s[24:25], %s offset:0x%x glc' % (84+i, sA, i << 10))
        self.cond(sZ, 0, f)
    def ready3(self):
        a = self.a
        def f():
            a('s_mov_b32 s94, 1')
            a('s_waitcnt lgkmcnt(0)')
            a('s_atomic_add s94, s[20:21], 0x0')
        self.cond(sZ, 0, f)
    def flag_addrs3(self):
        a = self.a
        a('s_lshr_b32 %s, %s, 4' % (sB, sT))
        for dst, wp, gr in ((sF, sW, sB), (sE, sB, sW)):
            a('s_lshl4_add_u32 %s, %s, %s' % (sC, wp, gr)); a('s_lshl_b32 %s, %s, 10' % (sC, sC))
            a('s_add_u32 %s, %s, 0x%x' % (dst, sC, WS_FLAG))
    def side3(self):
        a = self.a
        a('s_bfe_u32 %s, %s, 0x1000a' % (sCh2, sRv))
        a('s_xor_b32 %s, %s, %s' % (sCh2, sCh2, sP)); a('s_lshl_b32 %s, %s, 13' % (sCh2, sCh2))
        a('s_add_u32 %s, %s, %s' % (sF, sF, sCh2))
    def side3b(self):
        a = self.a
        a('s_add_u32 %s, %s, %s' % (sE, sE, sCh2))
        a('s_xor_b32 %s, %s, %s' % (sZp, sEst, sCh2))
    def side3c(self):
        a = self.a
        a('s_and_b32 %s, %s, 0x2000' % (sA, sZ)); a('s_xor_b32 %s, %s, %s' % (sA, sA, sCh2)); a('s_add_u32 %s, %s, %s' % (sEld, sEld, sA))
    def p2_choice_read(self):
        self.a('ds_read_b32 %s, %s offset:4' % (v(V.dummy), v(V.dummy2)))
    def p2_choice_use(self):
        a = self.a
        a('s_waitcnt lgkmcnt(8)')
        a('v_readfirstlane_b32 %s, %s' % (sCh2, v(V.dummy)))
        a('s_lshl_b32 %s, %s, 13' % (sA, sCh2))
        a('s_xor_b32 %s, %s, %s' % (sZp, sEst, sA))
        if self.o['ts']: a('s_mov_b32 s%d, %s' % (sTS+24, sCh2))
    def ex_addrs_ib2(self):
        a = self.a; T = V.T
        a('s_lshl_b32 %s, %s, 4' % (sB, sW)); a('s_xor_b32 %s, %s, %s' % (sB, sB, sT)); a('s_lshl_b32 %s, %s, 8' % (sB, sB))
        a('v_lshlrev_b32 %s, 4, %s' % (v(T), v(V.n)))
        a('v_lshl_add_u32 %s, %s, 10, %s' % (v(T), v(V.g), v(T)))
        a('v_xor_b32 %s, %s, %s' % (v(T), sB, v(T)))
        a('v_and_b32 %s, 0x6000, %s' % (v(T+1), v(T)))
        a('v_add_u32 %s, %s, %s' % (v(T), v(T), v(T+1)))
        a('v_lshl_add_u32 %s, %s, 18, %s' % (v(V.Est), v(V.g), v(T)))
        a('v_and_b32 %s, 0xdcff, %s' % (v(V.Eld0), v(T)))
        a('s_lshl3_add_u32 %s, %s, %s' % (sEst, sP, sW)); a('s_lshl_b32 %s, %s, 20' % (sEst, sEst))
        a('s_and_b32 %s, %s, 2' % (sA, sW)); a('s_lshl_b32 %s, %s, 12' % (sA, sA)); a('s_add_u32 %s, %s, %s' % (sEst, sEst, sA))
    def misc_ib2(self):
        a = self.a
        a('s_lshl_b32 %s, %s, 7' % (sEld, sP)); a('s_add_u32 %s, %s, %s' % (sEld, sEld, sT)); a('s_lshl_b32 %s, %s, 16' % (sEld, sEld))
        a('s_and_b32 %s, %s, 15' % (sA, sT)); a('s_add_u32 %s, %s, 8' % (sA, sA))
        a('s_lshl_b32 %s, %s, %s' % (sInc, sCh2, sA)); a('s_add_u32 %s, %s, 1' % (sInc, sInc))
        a('v_lshl_add_u32 %s, %s, 2, 8' % (v(V.dummy), v(V.g)))
        a('s_bfe_i32 %s, %s, 0x10005' % (sZ, sT))
    def ld_addrs_ib2(self):
        a = self.a; T = V.T
        a('s_xor_b32 %s, %s, %s' % (sA, sRv, sZ))
        a('v_lshrrev_b32 %s, %s, %s' % (v(T), v(V.dummy), sA))
        for q in range(4):
            a('v_bfe_u32 %s, %s, %d, 1' % (v(T+1), v(T), q))
            a('v_lshl_add_u32 %s, %s, 13, %s' % (v(T+2+q), v(T+1), v(V.Eld0)))
    def major_post(self):
        a = self.a; T = V.T
        def f():
            a('s_bfe_u32 %s, %s, 0x100008' % (sA, sRv)); a('s_bcnt1_i32_b32 %s, %s' % (sA, sA))
            a('s_cmp_gt_u32 %s, 8' % sA); a('s_cselect_b32 %s, 0x2000, 0' % sA)
            a('v_mov_b32 %s, %s' % (v(T), sA))
            a('ds_write_b32 %s, %s offset:8' % (v(V.dummy2), v(T)))
        self.cond(sW, 0, f)
    def major_read(self):
        self.a('ds_read_b32 %s, %s offset:8' % (v(V.dummy), v(V.dummy2)))
    def major_use(self):
        a = self.a
        a('v_readfirstlane_b32 %s, %s' % (sCh2, v(V.dummy)))
        a('s_xor_b32 %s, %s, %s' % (sZp, sEst, sCh2))
    def major_use2(self):
        a = self.a
        a('s_and_b32 %s, %s, 0x2000' % (sA, sZ)); a('s_xor_b32 %s, %s, %s' % (sA, sA, sCh2)); a('s_add_u32 %s, %s, %s' % (sEld, sEld, sA))
        a('s_lshr_b32 %s, %s, 4' % (sB, sT))
        for dst, wp, gr in ((sF, sW, sB), (sE, sB, sW)):
            a('s_lshl3_add_u32 %s, %s, %s' % (sA, sP, wp)); a('s_lshl4_add_u32 %s, %s, %s' % (sA, sA, gr)); a('s_lshl_b32 %s, %s, 10' % (sA, sA))
            a('s_add_u32 %s, %s, %s' % (sA, sA, sCh2)); a('s_add_u32 %s, %s, 0x%x' % (dst, sA, WS_FLAG2))

    def gz_issue(self):
        a = self.a
        a('s_sub_u32 %s, s2, 16' % sZ)
        a('s_and_b32 %s, %s, 0xffffffef' % (sZ, sZ))
        def f():
            a('s_lshr_b32 %s, s2, 5' % sZp)
            a('s_lshl1_add_u32 %s, %s, %s' % (sCh, sW, sZp))
            a('s_lshl_b32 %s, %s, 13' % (sCh, sCh)); a('s_add_u32 %s, %s, 0x%x' % (sCh, sCh, WS_FLAG))
            for i in range(0, 8, 2): a('s_mov_b64 s[%d:%d], 0' % (84+i, 85+i))
            for i in range(8):
                a('s_atomic_swap s%d, s[24:25], %s offset:0x%x glc' % (84+i, sCh, i << 10))
        self.cond(sZ, 0, f)
    def gz_publish(self):
        a = self.a
        def f():
            a('s_waitcnt lgkmcnt(0)')
            a('s_memtime s[84:85]')
            a('s_mov_b32 s88, 0')
            a('s_waitcnt lgkmcnt(0)')
            a('s_atomic_add s88, s[24:25], %s glc' % sCh)
            a('s_waitcnt lgkmcnt(0)')
            a('s_memtime s[86:87]')
            a('s_mul_i32 %s, %s, 13' % (sZp, sZp)); a('s_add_u32 %s, %s, 5' % (sZp, sZp))
            a('s_waitcnt lgkmcnt(0)')
            a('s_sub_u32 s84, s86, s84'); a('s_lshr_b32 s84, s84, 3'); a('s_min_u32 s84, s84, 0x3ff')
            a('s_lshl_b32 s84, s84, %s' % sZp); a('s_add_u32 s84, s84, 1')
            a('s_atomic_add s84, s[20:21], 0x0')
        self.cond(sZ, 0, f)
    def gz_read(self):
        a = self.a
        a('v_mov_b32 %s, 0' % v(V.EL))
        a('buffer_load_dword %s, %s, %s, 0 offen sc1' % (v(V.dummy), v(V.EL), SDBG))
    def gz_check(self):
        a = self.a; l0, l1 = self.label('gz'), self.label('gzok')
        a('s_waitcnt vmcnt(0)')
        a('v_readfirstlane_b32 %s, %s' % (sRv, v(V.dummy)))
        a('s_bitcmp1_b32 %s, 4' % sRv)
        a('s_cbranch_scc1 %s' % l1)
        a('s_mov_b32 %s, 0' % sCnt)
        a(l0+':')
        a('buffer_load_dword %s, %s, %s, 0 offen sc1' % (v(V.dummy), v(V.EL), SDBG))
        a('s_add_u32 %s, %s, 1' % (sCnt, sCnt))
        a('s_cmp_gt_u32 %s, 0x%x' % (sCnt, SPIN_MAX))
        a('s_waitcnt vmcnt(0)')
        a('v_readfirstlane_b32 %s, %s' % (sRv, v(V.dummy)))
        a('s_cbranch_scc1 %s' % l1)
        a('s_bitcmp0_b32 %s, 4' % sRv)
        a('s_cbranch_scc1 %s' % l0)
        a(l1+':')
        a('s_bfe_u32 %s, %s, 0xd0005' % (sA, sRv)); a('s_bfe_u32 %s, %s, 0xd0012' % (sB, sRv))
        a('s_cmp_lt_u32 %s, %s' % (sB, sA))
        a('s_cselect_b32 %s, 0x2000, 0' % sCh)
        if self.o['force'] != '': a('s_mov_b32 %s, %d' % (sCh, int(self.o['force']) << 13))
        a('s_xor_b32 %s, %s, %s' % (sEst, sEst, sCh))
        if self.o['ts']: a('s_mov_b32 s%d, %s' % (sTS+24, sRv))
    def gz_flag_addrs(self):
        a = self.a
        a('s_xor_b32 %s, %s, %s' % (sEld, sEld, sCh))
        a('s_lshr_b32 %s, %s, 4' % (sB, sT))
        a('s_lshl_b32 %s, %s, 13' % (sA, sP)); a('s_xor_b32 %s, %s, %s' % (sA, sA, sCh)); a('s_add_u32 %s, %s, 0x%x' % (sA, sA, WS_FLAG))
        for dst, wp, gr in ((sF, sW, sB), (sE, sB, sW)):
            a('s_lshl4_add_u32 %s, %s, %s' % (sC, wp, gr)); a('s_lshl_b32 %s, %s, 10' % (sC, sC))
            a('s_add_u32 %s, %s, %s' % (dst, sC, sA))

    def zero_flags_ib(self):
        a = self.a
        def f():
            a('s_waitcnt lgkmcnt(0)')
            a('s_lshl_b32 %s, %s, 13' % (sA, sCh)); a('s_add_u32 %s, %s, %s' % (sA, sA, sEst)); a('s_add_u32 %s, %s, 0x%x' % (sA, sA, WS_FLAG_IB))
            for i in range(0, 8, 2): a('s_mov_b64 s[%d:%d], 0' % (84+i, 85+i))
            for i in range(8):
                a('s_atomic_swap s%d, s[24:25], %s offset:0x%x glc' % (84+i, sA, i << 10))
        self.cond(sT, 1, f)
    def set_ready_ib(self):
        a = self.a
        def f():
            a('s_add_u32 %s, %s, 8' % (sA, sW)); a('s_lshl_b32 %s, %s, %s' % (sZ, sCh, sA)); a('s_add_u32 %s, %s, 1' % (sZ, sZ))
            a('s_waitcnt lgkmcnt(0)')
            a('s_atomic_add %s, s[20:21], %s' % (sZ, sRd))
        self.cond(sT, 1, f)
    def flag_side(self):
        a = self.a
        a('s_lshr_b32 %s, %s, 8' % (sRv, sRv))
        a('s_lshr_b32 %s, %s, %s' % (sA, sRv, sW)); a('s_and_b32 %s, %s, 1' % (sA, sA)); a('s_lshl_b32 %s, %s, 13' % (sA, sA)); a('s_add_u32 %s, %s, %s' % (sF, sF, sA))
    def flag_side2(self):
        a = self.a
        a('s_lshr_b32 %s, %s, 4' % (sB, sT))
        a('s_lshr_b32 %s, %s, %s' % (sA, sRv, sB)); a('s_and_b32 %s, %s, 1' % (sA, sA)); a('s_lshl_b32 %s, %s, 13' % (sA, sA)); a('s_add_u32 %s, %s, %s' % (sE, sE, sA))
    def zero_flags(self):
        a = self.a
        a('s_sub_u32 %s, s2, 16' % sZ)
        a('s_and_b32 %s, %s, 0xffffffef' % (sZ, sZ))
        def f():
            fs = int(self.o['fstride'])
            a('s_lshr_b32 %s, s2, 5' % sZp)
            a('s_lshl3_add_u32 %s, %s, %s' % (sA, sZp, sW))
            if self.o['fl'] != '':
                pol = int(self.o['fl'][1]); mode = self.o['fl'][0]; fs = 10
                if mode == 'x': a('s_xor_b32 %s, %s, %d' % (sC, sZp, pol))
                else: a('s_lshr_b32 %s, %s, 2' % (sC, sW)); a('s_xor_b32 %s, %s, %d' % (sC, sC, pol))
                a('s_lshl1_add_u32 %s, %s, %s' % (sA, sA, sC))
            a('s_lshl_b32 %s, %s, %d' % (sA, sA, fs+3)); a('s_add_u32 %s, %s, 0x%x' % (sA, sA, WS_FLAG))
            for i in range(0, 8, 2): a('s_mov_b64 s[%d:%d], 0' % (84+i, 85+i))
            for i in range(8):
                a('s_atomic_swap s%d, s[24:25], %s offset:0x%x glc' % (84+i, sA, i << fs))
            a('s_lshl_b32 %s, %s, 7' % (sZp, sZp))
        self.cond(sZ, 0, f)
    def set_ready(self):
        a = self.a
        def f():
            a('s_mov_b32 %s, 1' % sInc)
            a('s_waitcnt lgkmcnt(0)')
            a('s_atomic_add %s, s[20:21], %s' % (sInc, sZp))
        self.cond(sZ, 0, f)
    def ready_issue(self):
        self.a('s_load_dword %s, s[20:21], %s' % (sRv, sRd))
    def ready_check(self):
        a = self.a; l0, l1 = self.label('rdy'), self.label('rdyok')
        def notready():
            if self.o['ib3']: a('s_and_b32 %s, %s, 0xff' % (sA, sRv)); a('s_cmp_lt_u32 %s, 23' % sA)
            else: a('s_bitcmp0_b32 %s, 3' % sRv)
        notready()
        a('s_cbranch_scc1 %s' % l0)
        a(l1+':')
        def tail():
            lp = self.label('rdyl')
            a(l0+':')
            a('s_mov_b32 %s, 0' % sCnt)
            a('v_mov_b32 %s, 0' % v(V.O+1))
            a(lp+':')
            a('buffer_load_dword %s, %s, %s, %s offen sc1' % (v(V.O), v(V.O+1), SDBG, sRd))
            a('s_add_u32 %s, %s, 1' % (sCnt, sCnt))
            a('s_cmp_gt_u32 %s, 0x%x' % (sCnt, SPIN_MAX))
            a('s_waitcnt vmcnt(0)')
            a('v_readfirstlane_b32 %s, %s' % (sRv, v(V.O)))
            a('s_cbranch_scc1 %s' % l1)
            notready()
            a('s_cbranch_scc1 %s' % lp)
            a('s_branch %s' % l1)
        self.tail.append(tail)
    def set_flag(self, ex):
        a = self.a
        if not ((self.o['ib'] or self.o['ib2']) and ex == 0): a('s_mov_b32 %s, 0x%x' % (sInc, 1 << (24*ex)))
        a('s_atomic_add %s, s[24:25], %s' % (sInc, sF))
    def poll(self, ex, under=None):
        a = self.a; lp, ok = self.label('poll'), self.label('pollok')
        if under:
            a('s_mov_b32 %s, 0' % sRv)
            a('s_atomic_add %s, s[24:25], %s glc' % (sRv, sE))
            under()
            a('s_waitcnt lgkmcnt(0)')
            a('s_bitcmp1_b32 %s, %d' % (sRv, 4+24*ex))
            a('s_cbranch_scc1 %s' % ok)
        a('s_mov_b32 %s, 0' % sCnt)
        a(lp+':')
        a('s_mov_b32 %s, 0' % sRv)
        a('s_atomic_add %s, s[24:25], %s glc' % (sRv, sE))
        a('s_add_u32 %s, %s, 1' % (sCnt, sCnt))
        a('s_cmp_gt_u32 %s, 0x%x' % (sCnt, SPIN_MAX))
        a('s_waitcnt lgkmcnt(0)')
        a('s_cbranch_scc1 %s' % ok)
        if self.o['slp']:
            a('s_bitcmp1_b32 %s, %d' % (sRv, 4+24*ex))
            a('s_cbranch_scc1 %s' % ok)
            a('s_sleep %s' % self.o['slp'])
            a('s_branch %s' % lp)
        else:
            a('s_bitcmp0_b32 %s, %d' % (sRv, 4+24*ex))
            a('s_cbranch_scc1 %s' % lp)
        a(ok+':')
        if self.o['pbar']: a('s_barrier')
    def code_pf(self, name):
        a = self.a
        l = self.label('pc')
        a('s_getpc_b64 s[28:29]')
        a(l+':')
        a('s_sub_u32 s28, s28, %s-%s' % (l, name))
        a('s_subb_u32 s29, s29, 0')
        a('v_lshlrev_b32 %s, 5, v0' % v(V.O+6))
        a('global_load_dword %s, %s, s[28:29]' % (v(V.dummy), v(V.O+6)))

    def code_spf(self, name):
        a = self.a
        l = self.label('pc')
        a('s_getpc_b64 s[28:29]')
        a(l+':')
        a('s_sub_u32 s28, s28, %s-%s' % (l, name))
        a('s_subb_u32 s29, s29, 0')
        a('s_lshr_b32 %s, s2, 4' % sA)
        a('s_lshl3_add_u32 %s, %s, %s' % (sA, sA, sW))
        a('s_lshl_b32 %s, %s, 7' % (sA, sA))
        a('s_load_dword s94, s[28:29], %s' % sA)

    def ifelse(self, reg, val, feq, fne, eq_first=False):
        a = self.a; l0, l1 = self.label('ie'), self.label('iend')
        if eq_first:
            a('s_cmp_lg_u32 %s, %d' % (reg, val)); a('s_cbranch_scc1 %s' % l0)
            feq(); a('s_branch %s' % l1); a(l0+':'); fne()
        else:
            a('s_cmp_eq_u32 %s, %d' % (reg, val)); a('s_cbranch_scc1 %s' % l0)
            fne(); a('s_branch %s' % l1); a(l0+':'); feq()
        a(l1+':')
    def touch(self, rnd):
        a = self.a
        a('s_mov_b64 exec, 0')
        for k in range(7):
            a('s_cmp_eq_u32 %s, %d' % (sW, k)); a('s_cbranch_scc1 stub_%d' % (8*rnd+k))
        a('s_branch stub_%d' % (8*rnd+7))
        a('ret_%d:' % rnd)
        a('s_mov_b64 exec, -1')

    def cond(self, reg, val, f):
        a = self.a; l = self.label('c')
        a('s_cmp_lg_u32 %s, %d' % (reg, val)); a('s_cbranch_scc1 %s' % l)
        f()
        a(l+':')

    def build_one(self):
        a = self.a; o = self.o
        name = NAME + '_kernel'
        self.kernel_head(name); end = self.label('end')
        self.prologue1(end)
        wA, wB = o['wA'], o['wB']
        def wat(pos, rows=(0, 1, 2, 3)):
            f = lambda: [self.w_dma1(i) for i in rows]
            if wA == pos and wB == pos: f()
            elif wA == pos: self.cond(sP, 0, f)
            elif wB == pos: self.cond(sP, 1, f)
        self.wat = wat
        bd = int(o['bdelay'])
        if o['touch'] == 'pre': self.touch(0)
        self.mark('touched')
        a('s_waitcnt lgkmcnt(0)')
        self.mark('karg')
        if o['wsoff']:
            a('s_add_u32 s24, s24, 0x%x' % (int(o['wsoff']) << 20)); a('s_addc_u32 s25, s25, 0')
        gz = o['gz']
        if gz: self.gz_issue()
        elif o['ib']: self.probe_issue()
        elif o['ib3']: self.p2_probe_issue(); self.zero3(); a('s_mov_b32 %s, 0' % sRd)
        elif o['ib2']: self.p2_probe_issue(); self.zero_flags()
        else: self.zero_flags()
        misc = lambda: (self.srds(), self.calc_k0(), self.w_prep(), self.gz_flag_addrs() if gz else self.flag_addrs3() if o['ib3'] else self.flag_addrs(), self.misc_ib2() if o['ib2'] else 0)
        if wB == 'first':
            def fb():
                misc(); self.w_dma()
                if bd == 0: self.p1_issue()
            self.ifelse(sP, 1, fb, self.p1_issue)
        elif bd: self.cond(sP, 0, self.p1_issue)
        else: self.p1_issue()
        if o['ib']: self.probe_eval(); self.zero_flags_ib()
        if gz: self.gz_publish(); a('s_mov_b32 s22, 256'); a('s_mov_b32 s23, 0x20000')
        if o['touch'] == 'post': self.touch(0)
        if o['touch']: self.cond(sT, 0, lambda: self.touch(1))
        if o['ib2']:
            self.p1_addrs(); self.p2_probe_eval(); self.gen_F16(); self.coop_init()
        else: self.p1_addrs(); self.gen_F16(); self.coop_init()
        if bd == 1: self.cond(sP, 1, self.p1_issue)
        self.gen_M2()
        if o['ib']: self.ex_addrs_ib(); self.set_ready_ib()
        elif gz: self.ex_addrs()
        elif o['ib3']: self.ex_addrs_ib2(); self.ready3()
        elif o['ib2']: self.ex_addrs_ib2(); self.set_ready()
        else: self.ex_addrs(); self.set_ready()
        X = [misc, self.coop_gen, lambda: self.gen_B(True, False), lambda: (self.p2_addrs(), self.w_addr())]
        nearly = max(0, bd-2)
        def early():
            for f in X[(1 if wB == 'first' else 0):nearly]: f()
            self.p1_issue()
        if bd >= 2: self.cond(sP, 1, early)
        self.mark('w1')
        def Xat(k):
            if k < nearly or (k == 0 and wB == 'first'): self.cond(sP, 0, X[k])
            else: X[k]()
        if gz: self.p1_compute(0, self.gz_read, None, lambda: (self.gz_check(), self.spec_early()))
        elif o['ib3']:
            self.vote_read()
            self.p1_compute(0, lambda: (self.vote_use(), self.spec_early()), None, self.p2_choice_use, self.p2_choice_read)
        elif o['ib2']: self.p1_compute(0, self.spec_early, None, self.p2_choice_use, self.p2_choice_read)
        else:
            def h1():
                if o['tlb1']:
                    a('s_add_u32 %s, %s, 0x%x' % (sA, sEst, self.ubase(0)))
                    a('v_and_b32 %s, 3, %s' % (v(V.T), v(V.lane)))
                    a('v_lshl_add_u32 %s, %s, 15, %s' % (v(V.T), v(V.T), v(V.Est)))
                    a('buffer_load_dword %s, %s, %s, %s offen' % (v(V.dummy), v(V.T), SWS, sA))
            if o['tlb1']: h1()
            self.p1_compute(1 if o['tlb1'] else 0, self.spec_early)
        self.stamp()
        if not gz: self.ready_issue()
        Xat(0)
        n = 0
        Xat(1)
        self.coop_post()
        self.mark('w2a')
        if 'da' in o: a('s_waitcnt vmcnt(0)'); self.mark('vm1')
        a('s_waitcnt vmcnt(%d) lgkmcnt(0)' % n)
        self.stamp()
        if not gz: self.ready_check()
        if o['ib']: self.flag_side()
        if o['ib3']: self.side3()
        self.mark('rdy')
        self.set_flag(0)
        if o['ib']: self.flag_side2()
        if o['ib3']: self.side3b()
        def under1():
            self.w_sload()
            if o['tlb2']:
                a('s_add_u32 %s, %s, 0x%x' % (sA, sEst, self.ubase(1)))
                a('v_and_b32 %s, 3, %s' % (v(V.T), v(V.lane)))
                a('v_lshl_add_u32 %s, %s, 15, %s' % (v(V.T), v(V.T), v(V.Est)))
                a('buffer_load_dword %s, %s, %s, %s offen' % (v(V.dummy), v(V.T), SWS, sA))
            Xat(2); self.B_dup()
            Xat(3)
            self.w_special()
        self.poll(0, under1)
        self.stamp()
        if self.o.get('fine'):
            a('s_memrealtime s[%d:%d]' % (sTS+2*self.nts, sTS+2*self.nts+1)); self.nts += 1
            self.fstamp()
        if o['ib']: self.ld_addrs_ib()
        if o['ib2']: self.ld_addrs_ib2()
        self.p2_issue()
        if o['ib3']: self.side3c()
        elif o['ib2']: self.major_post()
        self.coop_wait(); self.coop_read()
        self.p2_addrs2()
        a('s_waitcnt vmcnt(4)')
        self.w_edge()
        self.p2_compute(True)
        self.stamp()
        if o['ib2'] and not o['ib3']: self.major_use2()
        self.gen_M3()
        self.mark('w3a')
        a('s_waitcnt vmcnt(0)')
        self.stamp()
        self.set_flag(1)
        self.poll(1, self.p3_addrs)
        self.stamp()
        self.p3_issue()
        self.p3_soff()
        self.p3_compute()
        if 'da' in o:
            self.stamp(); a('s_waitcnt vmcnt(0)'); self.stamp()
            lp = self.label('dg')
            a('s_waitcnt lgkmcnt(0)')
            a('s_sub_u32 %s, s60, s58' % sA)
            a('s_lshl_b32 %s, %s, 2' % (sA, sA))
            if 'dp' in o:
                a('s_cmp_eq_u32 %s, %s' % (sP, o['dp'])); a('s_cselect_b32 %s, %s, 0' % (sA, sA))
            a('s_add_u32 %s, %s, 3000' % (sA, sA))
            a(lp+':')
            a('s_memrealtime s[28:29]')
            a('s_waitcnt lgkmcnt(0)')
            a('s_sub_u32 %s, s28, s56' % sB)
            a('s_cmp_lt_u32 %s, %s' % (sB, sA))
            a('s_cbranch_scc1 %s' % lp)
        if o['ts']:
            self.stamp(); a('s_waitcnt vmcnt(0)'); self.stamp()
            if 'diag' in o:
                i = int(o['diag']); lp = self.label('dg')
                a('s_waitcnt lgkmcnt(0)')
                if 'xw' in o:
                    a('s_getreg_b32 %s, hwreg(HW_REG_XCC_ID, 0, 4)' % sA)
                    a('s_sub_u32 %s, %s, s2' % (sA, sA)); a('s_and_b32 %s, %s, 7' % (sA, sA)); a('s_mul_i32 %s, %s, 400' % (sA, sA))
                    if int(o['xw']) >= 0:
                        a('s_cmp_eq_u32 s2, %s' % o['xw']); a('s_cselect_b32 %s, %s, 0' % (sA, sA))
                else:
                    a('s_sub_u32 %s, s%d, s%d' % (sA, sTS+2*i, sTS+2*int(o.get('dj', 0))))
                    a('s_lshl_b32 %s, %s, 2' % (sA, sA))
                    if 'dp' in o:
                        a('s_cmp_eq_u32 %s, %s' % (sP, o['dp'])); a('s_cselect_b32 %s, %s, 0' % (sA, sA))
                a('s_add_u32 %s, %s, 3000' % (sA, sA))
                a(lp+':')
                a('s_memrealtime s[28:29]')
                a('s_waitcnt lgkmcnt(0)')
                a('s_sub_u32 %s, s28, s%d' % (sB, sTS))
                a('s_cmp_lt_u32 %s, %s' % (sB, sA))
                a('s_cbranch_scc1 %s' % lp)
            else:
                if o['ib'] or o['gz'] or o['ib2']: self.nts += 1
                self.dump_stamps(0)
        a(end+':'); a('s_endpgm'); self.flush_tail()
        if o['touch']: self.insert_stubs(name)
        a.raw('.fill (%s+16384-.)/4, 4, 0xbf810000' % name)
        launch = '; @launch grid=(256,1,1) block=(512,1,1) lds=%d\n' % LDS_TOTAL
        return self.finish(launch, [name])

    def insert_stubs(self, name):
        import subprocess, re
        from asmlib import Ins
        a = self.a
        txt = '.amdgcn_target "amdgcn-amd-amdhsa--gfx950"\n.text\n' + a.text() + ''.join('stub_%d:\n' % k for k in range(16)) + 's_endpgm\nspec_tab:\n'
        open('pass1.s', 'w').write(txt)
        subprocess.check_call(['clang', '-x', 'assembler', '-target', 'amdgcn-amd-amdhsa', '-mcpu=gfx950', '-c', 'pass1.s', '-o', 'pass1.o'])
        dis = subprocess.check_output(['llvm-objdump', '-d', '--mcpu=gfx950', 'pass1.o']).decode()
        addrs = [int(m.group(1), 16) for m in re.finditer(r'// ([0-9A-F]{12}):', dis)]
        real = [i for i, x in enumerate(a.ins) if x.kind != 'none']
        assert len(addrs) == len(real) + 1, (len(addrs), len(real))
        size = {real[k]: addrs[k+1] - addrs[k] for k in range(len(real))}
        pos = ENTRY_OFF; nxt = ENTRY_OFF + 1024 - 256
        nxt = (nxt + 1023)//1024*1024
        out = []; k = 0; prev = None; ez = False
        for i, x in enumerate(a.ins):
            if i in size:
                glued = prev is not None and (prev.op == 's_getpc_b64' or 'rel32' in x.text)
                if prev is not None and prev.text.strip() == 's_mov_b64 exec, 0': ez = True
                if prev is not None and prev.text.strip() == 's_mov_b64 exec, -1': ez = False
                glued = glued or ez
                if pos >= nxt and k < 16 and not glued:
                    out.append(Ins('stub_%d:' % k)); out.append(Ins('s_cbranch_execz ret_%d' % (k >> 3)))
                    pos += 4; k += 1; nxt += 1024
                pos += size[i]; prev = x
            out.append(x)
        self.code_end = pos
        while k < 16:
            out.append(Ins('stub_%d:' % k)); out.append(Ins('s_branch ret_%d' % (k >> 3))); k += 1
        a.ins = out

    def finish(self, launch, names):
        hdr = '; GFNet spectral filter (two heads): 2-D FFT via bf16 MFMA DFT stages. Generated by dev/gen.py\n' + launch
        s = hdr + '.amdgcn_target "amdgcn-amd-amdhsa--gfx950"\n.text\n' + self.a.text()
        s += '.section .rodata,"a"\n' + '\n'.join(self.kd(n) for n in names) + '\n' + self.spec_table() + '\n'
        return s

if __name__ == '__main__':
    mode = sys.argv[1]; out = sys.argv[2]
    opt = {}
    for kv in sys.argv[3:]:
        k, x = kv.split('=')
        opt[k] = {'True': True, 'False': False}.get(x, x.replace('+', ' '))
    g = Gen(mode, **opt)
    s = g.build_three() if mode == 'three' else g.build_one()
    assert g.a.verify() == 0
    open(out, 'w').write(s)
    print('vgprs', NVGPR, 'lds', LDS_TOTAL, 'nops', g.a.nops, 'lines', len(g.a.ins))
```

```python
import sys, struct, math
import numpy as np
from asmlib import Asm

NAME = 'concat_heads__spectral_gfnet__spectral_gfnet__prompt'

def f2u(x): return struct.unpack('<I', struct.pack('<f', x))[0]
def lit(x): return '0x%08x' % f2u(x)
def bf16bits(x):
    u = f2u(float(x)); return ((u + 0x7FFF + ((u >> 16) & 1)) >> 16) & 0xFFFF
def sigma(m): return (m & 1) | ((m >> 1) & 1) << 3 | ((m >> 2) & 1) << 1 | ((m >> 3) & 1) << 2 | (m & 16)

S11 = 2.0**-11
SPIN_MAX = 0x4000
ENTRY_OFF = 0x300
SENT = 0x13572468
WS_FLAG_IB = 32 << 20
WS_FLAG2 = 33 << 20
PW = 7
sCh2 = 's100'
R0 = 0
R1 = 33024
WL = 66048
SCR = WL + 8*4*1056
SCR_B = SCR + 36*256
TABL = SCR_B + 8192
CNT = TABL + 16384
LDS_TOTAL = CNT + 64
WS_U1 = 0
WS_U2 = 8 << 20
WS_FLAG = 32 << 20
WS_TS = 72 << 20
WS_SIZE = 80 << 20

class V: pass
_n = [0]
def alloc(n, align=1):
    b = (_n[0] + align - 1)//align*align
    _n[0] = b + n
    return b
V.tid = alloc(1); V.lane = alloc(1)
for nm in 'g n Xoff Est X0w X0r0 X0r1 X1w X1r X2w X2r WP WM l16 dummy dummy2'.split(): setattr(V, nm, alloc(1))
V.Ooff, V.X3w0, V.X3w1, V.X3r = V.Xoff, V.X0w, V.X0r0, V.X0r1
V.T = alloc(10, 1)
V.EL = alloc(4); V.Eld = V.EL+3; V.Eld0 = V.EL+3
V.O = alloc(16, 4)
V.DA = alloc(32, 4)
V.DB = alloc(32, 4)
V.L = V.DB
V.F16 = alloc(8, 4)
V.M2 = alloc(16, 4)
V.F32 = alloc(32, 4)
V.TW = alloc(32, 4)
V.W = alloc(32, 4)
V.B = alloc(12, 4)
V.Bp = alloc(8, 4)
V.WF = alloc(4)
NVGPR = _n[0]
assert NVGPR <= 256, NVGPR
def v(i): return 'v%d' % i
def vr(i, n): return 'v[%d:%d]' % (i, i+n-1)

SX, SWR, SWI, SOUT, SDBG, SWS = 's[4:7]', 's[8:11]', 's[12:15]', 's[16:19]', 's[20:23]', 's[24:27]'
sP, sT, sW, sSB, sCB, sK0 = 's30', 's31', 's32', 's33', 's34', 's35'
sKP, sKM = 's36', 's37'
sA, sB, sC, sD, sE, sF = 's40', 's41', 's42', 's43', 's44', 's45'
sEst, sEld, sCnt, sSpec = 's46', 's47', 's48', 's49'
sO = ['s52', 's53', 's54', 's55']
sRd, sRv, sInc, sWL = 's38', 's39', 's50', 's51'
ZT = 16
sDP, sDM, sZ, sZp, sCh = 's96', 's97', 's98', 's99', 's95'
sTS = 56

class Gen:
    def __init__(self, mode='one', **opt):
        self.mode = mode
        self.o = dict(ldx='', ldw='', st1='sc1', st2='sc1', sto='sc1', ld1='sc1', ld2='sc1', ts=False, stagger=True, pf=False, spf=False, touch='pre', fst='sc1', fld='sc1', slp='', fsh='', pbar=False, shear=True, prio=True, wA='postX1', wB='postX1', bdelay='4', optx=False, numa='', fl='', ib=False, wsoff='', tlb1=False, tlb2=False, ib2=False, r2=False, novr=False, ib3=False, pnop='15', gz=False, force='', skew=True, fstride=12)
        self.o.update(opt)
        self.a = Asm()
        self.lab = 0
        self.nts = 0
        self.tail = []

    def tstride(self): return 65536 if (self.o['numa'] != '' or self.o['ib'] or self.o['ib2']) else 32768
    def ubase(self, ex): return (ex << 24) if self.o['ib2'] else (ex << 20) if self.o['ib'] else (WS_U2 if ex else WS_U1)
    def eld(self, q, ex=0): return v(V.T+2+q) if (self.o['ib2'] and ex == 0) else v(V.EL+q) if self.o['ib'] else v(V.Eld)
    def est(self): return sZp if self.o['ib2'] else sEst
    def label(self, p='L'):
        self.lab += 1
        return '%s_%d' % (p, self.lab)

    def stamp(self):
        if 'da' in self.o:
            self.sid = getattr(self, 'sid', -1) + 1
            self.mark('s%d' % self.sid); return
        if not self.o['ts'] or self.o.get('fine'): return
        self.a('s_memrealtime s[%d:%d]' % (sTS+2*self.nts, sTS+2*self.nts+1))
        self.nts += 1

    def mark(self, nm):
        for key, reg in (('da', 58), ('db', 60)):
            if self.o.get(key) == nm: self.a('s_memrealtime s[%d:%d]' % (reg, reg+1))
    def fstamp(self):
        if not self.o.get('fine'): return
        self.a('s_memtime s[%d:%d]' % (sTS+2*self.nts, sTS+2*self.nts+1))
        self.nts += 1

    def dump_stamps(self, slot0=0):
        if not self.o['ts']: return
        a = self.a
        a('s_waitcnt lgkmcnt(0)')
        a('s_lshl_b32 %s, s2, 3' % sA); a('s_add_u32 %s, %s, %s' % (sA, sA, sW)); a('s_lshl_b32 %s, %s, 7' % (sA, sA))
        a('s_add_u32 %s, %s, 0x%x' % (sA, sA, WS_TS + slot0*4))
        a('s_mov_b64 exec, 1')
        a('v_mov_b32 %s, 0' % v(V.T+1))
        for i in range(self.nts):
            a('v_mov_b32 %s, s%d' % (v(V.T), sTS+2*i))
            a('buffer_store_dword %s, %s, %s, %s offen offset:%d' % (v(V.T), v(V.T+1), SWS, sA, 4*i))
            a('s_nop 1')
        a('s_mov_b64 exec, -1')
        self.nts = 0

    def prologue(self, end):
        a = self.a
        a('s_cmp_ge_u32 s2, 0x100')
        a('s_cbranch_scc1 %s' % end)
        self.stamp()
        a('s_bfe_u32 %s, s2, 0x10003' % sP)
        a('s_mul_i32 s3, %s, 24' % sP)
        a('s_add_u32 s28, s0, s3')
        a('s_addc_u32 s29, s1, 0')
        a('s_load_dwordx2 s[4:5], s[28:29], 0x0')
        a('s_load_dwordx2 s[8:9], s[28:29], 0x8')
        a('s_load_dwordx2 s[12:13], s[28:29], 0x10')
        a('s_load_dwordx2 s[16:17], s[0:1], 0x30')
        a('s_load_dwordx2 s[20:21], s[0:1], 0x38')
        a('s_load_dwordx2 s[24:25], s[0:1], 0x40')
        a('v_lshrrev_b32 %s, 6, v0' % v(V.T))
        a('v_and_b32 %s, 63, v0' % v(V.lane))
        a('v_readfirstlane_b32 %s, %s' % (sW, v(V.T)))
        a('s_and_b32 %s, s2, 7' % sA)
        a('s_xor_b32 %s, %s, 2' % (sA, sA))
        a('s_lshl_b32 %s, %s, 4' % (sT, sA))
        a('s_lshr_b32 %s, s2, 4' % sB)
        a('s_or_b32 %s, %s, %s' % (sT, sT, sB))
        a('s_lshl_b32 %s, %s, 1' % (sCB, sA))
        a('s_bfe_u32 %s, %s, 0x10001' % (sC, sB))
        a('s_or_b32 %s, %s, %s' % (sCB, sCB, sC))
        a('s_bfe_u32 %s, %s, 0x20002' % (sSB, sB))
        a('s_lshl_b32 %s, %s, 1' % (sSB, sSB))
        a('s_and_b32 %s, %s, 1' % (sC, sB))
        a('s_or_b32 %s, %s, %s' % (sSB, sSB, sC))
        a('s_mov_b32 s6, 0x400000'); a('s_mov_b32 s7, 0x20000')
        a('s_mov_b32 s10, 2101248'); a('s_mov_b32 s11, 0x20000')
        a('s_mov_b32 s14, 2101248'); a('s_mov_b32 s15, 0x20000')
        a('s_mov_b32 s18, 0x800000'); a('s_mov_b32 s19, 0x20000')
        a('s_mov_b32 s22, 256'); a('s_mov_b32 s23, 0x20000')
        a('s_mov_b32 s26, 0x%x' % WS_SIZE); a('s_mov_b32 s27, 0x20000')
        a('v_lshrrev_b32 %s, 4, %s' % (v(V.g), v(V.lane)))
        a('v_and_b32 %s, 15, %s' % (v(V.n), v(V.lane)))
        a('v_lshlrev_b32 %s, 4, %s' % (v(V.l16), v(V.lane)))

    def prologue1(self, end):
        a = self.a; T = V.T
        a('s_cmp_ge_u32 s2, 0x100')
        a('s_cbranch_scc1 %s' % end)
        if 'da' in self.o: a('s_memrealtime s[56:57]'); self.mark('start')
        a('s_bfe_u32 %s, s2, 0x%x' % (sP, 0x10002 if self.o['optx'] else 0x10003))
        a('s_mul_i32 s3, %s, 24' % sP)
        a('s_load_dwordx2 s[4:5], s[0:1], s3')
        a('s_load_dwordx2 s[24:25], s[0:1], 0x40')
        a('s_load_dwordx2 s[8:9], s[0:1], s3 offset:8')
        a('s_load_dwordx2 s[12:13], s[0:1], s3 offset:16')
        a('s_load_dwordx2 s[16:17], s[0:1], 0x30')
        a('s_load_dwordx2 s[20:21], s[0:1], 0x38')
        self.stamp()
        a('v_lshrrev_b32 %s, 6, v0' % v(T))
        a('v_and_b32 %s, 63, v0' % v(V.lane))
        a('v_readfirstlane_b32 %s, %s' % (sW, v(T)))
        if self.o['optx']:
            a('s_and_b32 %s, s2, 3' % sA)
            a('s_bfe_u32 %s, s2, 0x10003' % sB)
            a('s_lshl1_add_u32 %s, %s, %s' % (sA, sA, sB))
        else: a('s_and_b32 %s, s2, 7' % sA)
        a('s_lshr_b32 %s, s2, 4' % sB)
        a('s_lshl4_add_u32 %s, %s, %s' % (sT, sA, sB))
        a('s_bfe_u32 %s, %s, 0x10001' % (sC, sB))
        a('s_lshl1_add_u32 %s, %s, %s' % (sCB, sA, sC))
        a('s_lshr_b32 %s, %s, 2' % (sSB, sB))
        a('s_and_b32 %s, %s, 1' % (sC, sB))
        a('s_lshl1_add_u32 %s, %s, %s' % (sSB, sSB, sC))
        a('s_mov_b32 s6, 0x400000'); a('s_mov_b32 s7, 0x20000')
        a('v_lshrrev_b32 %s, 4, %s' % (v(V.g), v(V.lane)))
        a('v_lshlrev_b32 %s, 4, %s' % (v(V.l16), v(V.lane)))
        a('v_and_b32 %s, 8, v0' % v(T))
        a('v_lshlrev_b32 %s, 11, %s' % (v(T), v(T)))
        a('v_lshl_add_u32 %s, %s, 20, %s' % (v(T), v(V.g), v(T)))
        a('v_and_b32 %s, 0x70, %s' % (v(T+1), v(V.l16)))
        a('v_add_u32 %s, %s, %s' % (v(V.Xoff), v(T), v(T+1)))
        a('s_lshl4_add_u32 %s, %s, %s' % (sA, sW, sSB))
        a('s_lshl4_add_u32 %s, %s, %s' % (sA, sA, sCB))
        a('s_lshl_b32 %s, %s, 7' % (sO[0], sA))
        for r in range(1, 4): a('s_add_u32 %s, %s, 0x%x' % (sO[r], sO[0], r*262144))
        a('v_and_b32 %s, 15, %s' % (v(V.n), v(V.lane)))
        a('s_mov_b32 s26, 0x%x' % WS_SIZE); a('s_mov_b32 s27, 0x20000')
        a('s_lshl_b32 %s, %s, 7' % (sRd, sP))
    def srds(self):
        a = self.a
        a('s_mov_b32 s10, 2101248'); a('s_mov_b32 s11, 0x20000')
        a('s_mov_b32 s14, 2101248'); a('s_mov_b32 s15, 0x20000')
        a('s_mov_b32 s18, 0x800000'); a('s_mov_b32 s19, 0x20000')
        a('s_mov_b32 s22, 256'); a('s_mov_b32 s23, 0x20000')

    def probe_issue(self):
        a = self.a
        a('s_lshl3_add_u32 %s, %s, %s' % (sEst, sP, sW)); a('s_lshl_b32 %s, %s, 21' % (sEst, sEst))
        a('s_and_b32 %s, %s, 0x60' % (sA, sT)); a('s_add_u32 %s, %s, %s' % (sA, sA, sT)); a('s_lshl_b32 %s, %s, 8' % (sA, sA))
        a('s_add_u32 %s, %s, %s' % (sA, sA, sEst))
        for i in range(8): a('s_mov_b32 s%d, 0x%x' % (84+i, SENT))
        for k, side in ((0, 0), (0, 1), (1, 1), (1, 0), (2, 1), (2, 0), (3, 0), (3, 1)):
            a('s_load_dword s%d, s[24:25], %s offset:0x%x glc' % (84+4*side+k, sA, k*65536+side*8192))
    def probe_eval(self):
        a = self.a
        a('s_mov_b32 %s, 0' % sA); a('s_mov_b32 %s, 0' % sB)
        a('s_waitcnt lgkmcnt(4)')
        for k in range(4):
            a('s_cmp_lg_u32 s%d, 0x%x' % (84+k, SENT)); a('s_addc_u32 %s, %s, 0' % (sA, sA))
            a('s_cmp_lg_u32 s%d, 0x%x' % (88+k, SENT)); a('s_addc_u32 %s, %s, 0' % (sB, sB))
        a('s_cmp_gt_u32 %s, %s' % (sB, sA))
        a('s_cselect_b32 %s, 1, 0' % sCh)
        if self.o['force'] != '':
            a('s_and_b32 %s, %s, 1' % (sC, sW)); a('s_xor_b32 %s, %s, %s' % (sC, sC, sP)); a('s_xor_b32 %s, %s, %s' % (sCh, sC, self.o['force']))
        if self.o['ts']:
            a('s_lshl4_add_u32 s%d, %s, %s' % (sTS+24, sA, sB))
    def ex_addrs_ib(self):
        a = self.a; T = V.T
        a('s_lshl_b32 %s, %s, 4' % (sB, sW)); a('s_xor_b32 %s, %s, %s' % (sB, sB, sT)); a('s_lshl_b32 %s, %s, 8' % (sB, sB))
        a('v_lshlrev_b32 %s, 4, %s' % (v(T), v(V.n)))
        a('v_lshl_add_u32 %s, %s, 10, %s' % (v(T), v(V.g), v(T)))
        a('v_xor_b32 %s, %s, %s' % (v(T), sB, v(T)))
        a('v_and_b32 %s, 0x6000, %s' % (v(T+1), v(T)))
        a('v_add_u32 %s, %s, %s' % (v(T), v(T), v(T+1)))
        a('v_lshl_add_u32 %s, %s, 18, %s' % (v(V.Est), v(V.g), v(T)))
        a('v_and_b32 %s, 0xdcff, %s' % (v(V.Eld), v(T)))
        a('s_lshl_b32 %s, %s, 13' % (sA, sCh)); a('s_add_u32 %s, %s, %s' % (sEst, sEst, sA))
        a('s_lshr_b32 %s, %s, 4' % (sA, sT)); a('s_lshl3_add_u32 %s, %s, %s' % (sA, sP, sA)); a('s_lshl_b32 %s, %s, 21' % (sA, sA))
        a('s_and_b32 %s, %s, 15' % (sEld, sT)); a('s_lshl_b32 %s, %s, 16' % (sEld, sEld)); a('s_add_u32 %s, %s, %s' % (sEld, sEld, sA))
    def ld_addrs_ib(self):
        a = self.a; T = V.T
        a('v_lshrrev_b32 %s, %s, %s' % (v(T), v(V.dummy), sRv))
        for q in range(4):
            a('v_bfe_u32 %s, %s, %d, 1' % (v(T+1), v(T), q))
            a('v_lshl_add_u32 %s, %s, 13, %s' % (v(V.EL+q), v(T+1), v(V.Eld)))

    def ex_addrs(self):
        a = self.a
        if self.o['skew']:
            T = V.T
            a('s_lshl_b32 %s, %s, 4' % (sB, sW)); a('s_xor_b32 %s, %s, %s' % (sB, sB, sT)); a('s_lshl_b32 %s, %s, 8' % (sB, sB))
            a('v_lshlrev_b32 %s, 4, %s' % (v(T), v(V.n)))
            a('v_lshl_add_u32 %s, %s, 10, %s' % (v(T), v(V.g), v(T)))
            a('v_xor_b32 %s, %s, %s' % (v(T), sB, v(T)))
            if self.o['numa'] != '':
                pol = int(self.o['numa'][1]); mode = self.o['numa'][0]
                if mode == 'p':
                    a('v_and_b32 %s, 0x6000, %s' % (v(T+1), v(T)))
                    a('v_add_u32 %s, %s, %s' % (v(T), v(T), v(T+1)))
                    a('v_lshl_add_u32 %s, %s, 18, %s' % (v(V.Est), v(V.g), v(T)))
                    a('v_and_b32 %s, 0xdcff, %s' % (v(V.Eld), v(T)))
                    a('s_lshr_b32 %s, %s, 1' % (sA, sW)); a('s_lshr_b32 %s, %s, 6' % (sD, sT)); a('s_xor_b32 %s, %s, %s' % (sA, sA, sD))
                    a('s_lshr_b32 %s, %s, 5' % (sC, sT)); a('s_lshr_b32 %s, %s, 2' % (sD, sW)); a('s_xor_b32 %s, %s, %s' % (sC, sC, sD))
                    if pol: a('s_xor_b32 %s, %s, 1' % (sA, sA)); a('s_xor_b32 %s, %s, 1' % (sC, sC))
                    a('s_and_b32 %s, %s, 1' % (sA, sA)); a('s_and_b32 %s, %s, 1' % (sC, sC))
                    a('s_lshl_b32 %s, %s, 13' % (sA, sA)); a('s_lshl_b32 %s, %s, 13' % (sC, sC))
                    a('s_lshl_b32 %s, %s, 25' % (sD, sP)); a('s_add_u32 %s, %s, %s' % (sA, sA, sD)); a('s_add_u32 %s, %s, %s' % (sC, sC, sD))
                    a('s_lshl_b32 %s, %s, 20' % (sEst, sW)); a('s_add_u32 %s, %s, %s' % (sEst, sEst, sA))
                    a('s_lshl_b32 %s, %s, 16' % (sEld, sT)); a('s_add_u32 %s, %s, %s' % (sEld, sEld, sC))
                    return
                a('v_and_b32 %s, 0x6000, %s' % (v(T+1), v(T)))
                a('v_add_u32 %s, %s, %s' % (v(T), v(T), v(T+1)))
                a('v_lshl_add_u32 %s, %s, 18, %s' % (v(V.Est), v(V.g), v(T)))
                a('v_and_b32 %s, 0xdcff, %s' % (v(V.Eld), v(T)))
                if mode == 'x':
                    a('s_bfe_u32 %s, %s, 0x10001' % (sA, sW)); a('s_xor_b32 %s, %s, %s' % (sA, sA, sP))
                    a('s_bfe_u32 %s, %s, 0x10005' % (sC, sT)); a('s_xor_b32 %s, %s, %s' % (sC, sC, sP))
                    if pol: a('s_xor_b32 %s, %s, 1' % (sA, sA)); a('s_xor_b32 %s, %s, 1' % (sC, sC))
                    a('s_lshl_b32 %s, %s, 13' % (sA, sA)); a('s_lshl_b32 %s, %s, 13' % (sC, sC))
                    a('s_lshl_b32 %s, %s, 20' % (sEst, sW)); a('s_add_u32 %s, %s, %s' % (sEst, sEst, sA))
                    a('s_lshl_b32 %s, %s, 16' % (sEld, sT)); a('s_add_u32 %s, %s, %s' % (sEld, sEld, sC))
                else:
                    a('s_lshr_b32 %s, %s, 1' % (sA, sW)); a('s_lshr_b32 %s, %s, 2' % (sD, sW)); a('s_xor_b32 %s, %s, %s' % (sA, sA, sD))
                    a('s_lshr_b32 %s, %s, 5' % (sC, sT)); a('s_lshr_b32 %s, %s, 6' % (sD, sT)); a('s_xor_b32 %s, %s, %s' % (sC, sC, sD))
                    if pol: a('s_xor_b32 %s, %s, 1' % (sA, sA)); a('s_xor_b32 %s, %s, 1' % (sC, sC))
                    a('s_and_b32 %s, %s, 1' % (sA, sA)); a('s_and_b32 %s, %s, 1' % (sC, sC))
                    a('s_lshl_b32 %s, %s, 13' % (sA, sA)); a('s_lshl_b32 %s, %s, 13' % (sC, sC))
                    a('s_lshl_b32 %s, %s, 22' % (sD, sP)); a('s_add_u32 %s, %s, %s' % (sA, sA, sD)); a('s_add_u32 %s, %s, %s' % (sC, sC, sD))
                    a('s_and_b32 %s, %s, 3' % (sEst, sW)); a('s_lshl_b32 %s, %s, 20' % (sEst, sEst)); a('s_add_u32 %s, %s, %s' % (sEst, sEst, sA))
                    a('s_and_b32 %s, %s, 63' % (sEld, sT)); a('s_lshl_b32 %s, %s, 16' % (sEld, sEld)); a('s_add_u32 %s, %s, %s' % (sEld, sEld, sC))
                return
            a('v_lshl_add_u32 %s, %s, 17, %s' % (v(V.Est), v(V.g), v(T)))
            a('v_and_b32 %s, 0x7cff, %s' % (v(V.Eld), v(T)))
            a('s_lshl_b32 %s, %s, 22' % (sA, sP))
            a('s_lshl_b32 %s, %s, 19' % (sEst, sW)); a('s_add_u32 %s, %s, %s' % (sEst, sEst, sA))
            a('s_lshl_b32 %s, %s, 15' % (sEld, sT)); a('s_add_u32 %s, %s, %s' % (sEld, sEld, sA))
            return
        a('v_lshlrev_b32 %s, 4, %s' % (v(V.T), v(V.n)))
        a('v_lshl_add_u32 %s, %s, 17, %s' % (v(V.Est), v(V.g), v(V.T)))
        a('v_lshl_add_u32 %s, %s, 10, %s' % (v(V.Eld), v(V.g), v(V.T)))
        a('s_lshl_b32 %s, %s, 22' % (sA, sP))
        a('s_lshl_b32 %s, %s, 19' % (sEst, sW)); a('s_add_u32 %s, %s, %s' % (sEst, sEst, sA))
        a('s_lshl_b32 %s, %s, 8' % (sB, sT)); a('s_add_u32 %s, %s, %s' % (sEst, sEst, sB))
        a('s_lshl_b32 %s, %s, 15' % (sEld, sT)); a('s_add_u32 %s, %s, %s' % (sEld, sEld, sA))
        a('s_lshl_b32 %s, %s, 12' % (sB, sW)); a('s_add_u32 %s, %s, %s' % (sEld, sEld, sB))

    def trig(self, x, re, im, conj_re=None, conj_im=None):
        a = self.a; c, s = V.T+8, V.T+9
        a('v_cos_f32 %s, %s' % (v(c), v(x)))
        a('v_sin_f32 %s, %s' % (v(s), v(x)))
        a('v_cvt_pk_bf16_f32 %s, %s, %s' % (v(re), v(c), v(s)))
        a('v_cvt_pk_bf16_f32 %s, -%s, %s' % (v(im), v(s), v(c)))
        if conj_re is not None:
            a('v_cvt_pk_bf16_f32 %s, %s, -%s' % (v(conj_re), v(c), v(s)))
            a('v_cvt_pk_bf16_f32 %s, %s, %s' % (v(conj_im), v(s), v(c)))

    def gen_F16(self):
        a = self.a; T = V.T
        a('v_cvt_f32_u32 %s, %s' % (v(T), v(V.n)))
        a('v_mul_f32 %s, %s, %s' % (v(T), lit(1/16), v(T)))
        a('v_cvt_f32_u32 %s, %s' % (v(T+1), v(V.g)))
        a('v_mul_f32 %s, 4.0, %s' % (v(T+1), v(T+1)))
        a('v_mul_f32 %s, %s, %s' % (v(T+2), v(T), v(T+1)))
        for r in range(4):
            self.trig(T+2, V.F16+r, V.F16+4+r)
            if r < 3: a('v_add_f32 %s, %s, %s' % (v(T+2), v(T+2), v(T)))

    def gen_M2(self):
        a = self.a; T = V.T
        a('v_cvt_f32_u32 %s, %s' % (v(T+1), v(V.g)))
        a('v_mul_f32 %s, 4.0, %s' % (v(T+1), v(T+1)))
        def normal():
            a('v_lshl_add_u32 %s, %s, 4, %s' % (v(T), v(V.n), sW))
            a('v_cvt_f32_u32 %s, %s' % (v(T), v(T)))
            a('v_mul_f32 %s, %s, %s' % (v(T), lit(1/256), v(T)))
            a('v_mul_f32 %s, %s, %s' % (v(T+2), v(T), v(T+1)))
            for r in range(4):
                self.trig(T+2, V.M2+r, V.M2+4+r, V.M2+8+r, V.M2+12+r)
                if r < 3: a('v_add_f32 %s, %s, %s' % (v(T+2), v(T+2), v(T)))
        def w0():
            a('v_lshrrev_b32 %s, 1, %s' % (v(T), v(V.n)))
            a('v_cvt_f32_u32 %s, %s' % (v(T), v(T)))
            a('v_lshlrev_b32 %s, 31, %s' % (v(T+3), v(V.n)))
            a('v_add_f32 %s, 0.5, %s' % (v(T+4), v(T)))
            a('v_xor_b32 %s, %s, %s' % (v(T+3), lit(1/16), v(T+3)))
            a('v_mul_f32 %s, %s, %s' % (v(T), v(T), v(T+3)))
            a('v_mul_f32 %s, %s, %s' % (v(T+4), v(T+4), v(T+3)))
            a('v_cmp_ne_u32 vcc, 1, %s' % v(V.n))
            a('v_cndmask_b32 %s, 0.5, %s, vcc' % (v(T), v(T)))
            for ts in range(2):
                d = T+4*ts
                a('v_mul_f32 %s, %s, %s' % (v(T+2), v(d), v(T+1)))
                for r in range(4):
                    self.trig(T+2, V.M2+8*ts+r, V.M2+8*ts+4+r)
                    if r < 3: a('v_add_f32 %s, %s, %s' % (v(T+2), v(T+2), v(d)))
        self.ifelse(sW, 0, w0, normal)

    def gen_M3(self):
        a = self.a; T = V.T
        a('v_cvt_f32_u32 %s, %s' % (v(T), v(V.n)))
        a('v_mul_f32 %s, %s, %s' % (v(T+1), lit(1/256), v(T)))
        a('v_mul_f32 %s, %s, %s' % (v(T), lit(1/16), v(T)))
        def normal():
            a('v_lshl_add_u32 %s, %s, 6, %s' % (v(T+2), v(V.g), sW))
            a('v_cvt_f32_u32 %s, %s' % (v(T+2), v(T+2)))
            a('v_mul_f32 %s, %s, %s' % (v(T+2), v(T+2), v(T+1)))
            for r in range(4):
                self.trig(T+2, V.M2+r, V.M2+4+r, V.M2+8+r, V.M2+12+r)
                if r < 3: a('v_add_f32 %s, %s, %s' % (v(T+2), v(T+2), v(T)))
        def w0():
            for ts in range(2):
                a('v_lshlrev_b32 %s, 5, %s' % (v(T+2), v(V.g)))
                if ts: a('v_add_u32 %s, 8, %s' % (v(T+2), v(T+2)))
                a('v_cvt_f32_u32 %s, %s' % (v(T+2), v(T+2)))
                a('v_mul_f32 %s, %s, %s' % (v(T+2), v(T+2), v(T+1)))
                for eb in range(2):
                    b = V.M2+8*ts
                    self.trig(T+2, b+2*eb, b+4+2*eb, b+2*eb+1, b+4+2*eb+1)
                    if eb == 0: a('v_add_f32 %s, %s, %s' % (v(T+2), v(T+2), v(T)))
            a('s_mov_b64 exec, 0xffff')
            a('v_lshlrev_b32 %s, 15, %s' % (v(T+2), v(V.n)))
            a('v_and_b32 %s, 0x8000, %s' % (v(T+2), v(T+2)))
            a('v_or_b32 %s, 0x3f80, %s' % (v(V.M2+1), v(T+2)))
            a('v_lshlrev_b32 %s, 16, %s' % (v(V.M2+5), v(V.M2+1)))
            a('s_mov_b64 exec, -1')
        self.ifelse(sW, 0, w0, normal)

    def sigma_lane(self, dst):
        a = self.a; T = V.T
        a('v_and_b32 %s, 17, %s' % (v(dst), v(V.lane)))
        a('v_bfe_u32 %s, %s, 2, 2' % (v(T+7), v(V.lane)))
        a('v_lshl_add_u32 %s, %s, 1, %s' % (v(dst), v(T+7), v(dst)))
        a('v_bfe_u32 %s, %s, 1, 1' % (v(T+7), v(V.lane)))
        a('v_lshl_add_u32 %s, %s, 3, %s' % (v(dst), v(T+7), v(dst)))

    def gen_F32TW(self):
        a = self.a; T = V.T
        self.sigma_lane(T)
        a('v_cvt_f32_u32 %s, %s' % (v(T), v(T)))
        a('v_mul_f32 %s, %s, %s' % (v(T), lit(1/1024), v(T)))
        a('v_lshrrev_b32 %s, 5, %s' % (v(T+1), v(V.lane)))
        a('v_cvt_f32_u32 %s, %s' % (v(T+1), v(T+1)))
        a('v_add_f32 %s, %s, %s' % (v(T+1), v(T+1), v(T+1)))
        a('v_mul_f32 %s, %s, %s' % (v(T+1), v(T+1), v(T)))
        for rho in range(16):
            k = sigma(8*(rho >> 2) + (rho & 3))
            a('v_fmamk_f32 %s, %s, %s, %s' % (v(T+2), v(T), lit(float(k)), v(T+1)))
            a('v_mul_f32 %s, %s, %s' % (v(T+3), lit(32.0), v(T+2)))
            a('v_cos_f32 %s, %s' % (v(V.TW+rho), v(T+2)))
            a('v_sin_f32 %s, %s' % (v(V.TW+16+rho), v(T+2)))
            self.trig(T+3, V.F32+rho, V.F32+16+rho)

    def coop_gen(self):
        a = self.a; T = V.T; X = V.DA
        self.sigma_lane(T)
        a('v_cvt_f32_u32 %s, %s' % (v(T), v(T)))
        a('v_mul_f32 %s, %s, %s' % (v(T), lit(1/1024), v(T)))
        a('s_and_b32 %s, %s, 1' % (sA, sW)); a('s_lshl_b32 %s, %s, 3' % (sA, sA))
        a('s_and_b32 %s, %s, 2' % (sB, sW)); a('s_lshl_b32 %s, %s, 1' % (sB, sB)); a('s_add_u32 %s, %s, %s' % (sA, sA, sB))
        a('s_and_b32 %s, %s, 4' % (sB, sW)); a('s_lshl_b32 %s, %s, 2' % (sB, sB)); a('s_add_u32 %s, %s, %s' % (sA, sA, sB))
        a('v_lshrrev_b32 %s, 5, %s' % (v(T+1), v(V.lane)))
        a('v_lshl_add_u32 %s, %s, 1, %s' % (v(T+1), v(T+1), sA))
        a('v_cvt_f32_u32 %s, %s' % (v(T+1), v(T+1)))
        a('v_mul_f32 %s, %s, %s' % (v(T+2), v(T+1), v(T)))
        for e in range(2):
            a('v_mul_f32 %s, %s, %s' % (v(T+3), lit(32.0), v(T+2)))
            if self.o['shear']:
                a('v_mul_f32 %s, 0.5, %s' % (v(T+4), v(T+2)))
                a('v_cos_f32 %s, %s' % (v(T+5), v(T+4)))
                a('v_sin_f32 %s, %s' % (v(T+6), v(T+4)))
                a('v_rcp_f32 %s, %s' % (v(T+5), v(T+5)))
                a('v_mul_f32 %s, %s, %s' % (v(X+4+e), v(T+6), v(T+5)))
                a('v_fma_f32 %s, %s, %s, 1.0' % (v(T+5), v(X+4+e), v(X+4+e)))
                a('v_rcp_f32 %s, %s' % (v(T+6), v(T+5)))
                a('v_fma_f32 %s, -%s, %s, 1.0' % (v(T+5), v(T+5), v(T+6)))
                a('v_fmac_f32 %s, %s, %s' % (v(T+6), v(T+5), v(T+6)))
                a('v_mul_f32 %s, -2.0, %s' % (v(T+6), v(T+6)))
                a('v_mul_f32 %s, %s, %s' % (v(X+6+e), v(T+6), v(X+4+e)))
            else:
                a('v_cos_f32 %s, %s' % (v(X+4+e), v(T+2)))
                a('v_sin_f32 %s, %s' % (v(X+6+e), v(T+2)))
            self.trig(T+3, X+e, X+2+e)
            if e == 0: a('v_add_f32 %s, %s, %s' % (v(T+2), v(T+2), v(T)))
        a('s_lshr_b32 %s, %s, 1' % (sA, sW)); a('s_lshl_b32 %s, %s, 10' % (sA, sA))
        a('s_and_b32 %s, %s, 1' % (sB, sW)); a('s_lshl_b32 %s, %s, 3' % (sB, sB)); a('s_add_u32 %s, %s, %s' % (sA, sA, sB))
        a('s_add_u32 %s, %s, %d' % (sA, sA, TABL))
        a('v_add_u32 %s, %s, %s' % (v(T), sA, v(V.l16)))
        for k in range(4):
            a('ds_write_b64 %s, %s offset:%d' % (v(T), vr(X+2*k, 2), 4096*k))
    def coop_init(self):
        a = self.a; T = V.T
        a('v_mov_b32 %s, %d' % (v(V.dummy2), CNT)); a('v_mov_b32 %s, 0' % v(T))
        a('ds_write_b32 %s, %s' % (v(V.dummy2), v(T)))
    def coop_post(self):
        a = self.a; T = V.T
        a('v_mov_b32 %s, 1' % v(T+1))
        a('ds_add_u32 %s, %s' % (v(V.dummy2), v(T+1)))
    def coop_wait(self):
        a = self.a; T = V.T; lp, ok = self.label('cw'), self.label('cwok')
        a('s_mov_b32 %s, 0' % sCnt)
        a(lp+':')
        a('ds_read_b32 %s, %s' % (v(T), v(V.dummy2)))
        a('s_add_u32 %s, %s, 1' % (sCnt, sCnt))
        a('s_cmp_gt_u32 %s, 0x%x' % (sCnt, SPIN_MAX*8))
        a('s_waitcnt lgkmcnt(0)')
        a('s_cbranch_scc1 %s' % ok)
        a('v_cmp_gt_u32 vcc, 0x200, %s' % v(T))
        a('s_cbranch_vccnz %s' % lp)
        a(ok+':')
    def coop_read(self):
        a = self.a; T = V.T
        assert V.TW == V.F32+32
        a('v_add_u32 %s, %d, %s' % (v(T), TABL, v(V.l16)))
        for k in range(16):
            a('ds_read_b128 %s, %s offset:%d' % (vr(V.F32+4*k, 4), v(T), 1024*k))

    def calc_k0(self):
        a = self.a
        a('s_lshr_b32 %s, %s, 4' % (sA, sT))
        a('s_and_b32 %s, %s, 15' % (sB, sT))
        a('s_lshl_b32 %s, %s, 4' % (sK0, sB))
        a('s_add_u32 %s, %s, %s' % (sK0, sK0, sA))
        a('s_lshr_b32 %s, %s, 2' % (sC, sB)); a('s_lshl_b32 %s, %s, 5' % (sC, sC))
        a('s_and_b32 %s, %s, 1' % (sD, sB)); a('s_lshl_b32 %s, %s, 4' % (sD, sD)); a('s_add_u32 %s, %s, %s' % (sC, sC, sD))
        a('s_and_b32 %s, %s, 2' % (sD, sB)); a('s_lshl_b32 %s, %s, 2' % (sD, sD)); a('s_add_u32 %s, %s, %s' % (sC, sC, sD))
        a('s_cmp_eq_u32 %s, 0' % sA)
        a('s_cselect_b32 %s, %s, %s' % (sK0, sC, sK0))
        a('s_cmp_eq_u32 %s, 0' % sT)
        a('s_cselect_b32 %s, 7, 8' % sA)
        a('s_lshl_b32 %s, %s, %s' % (sKP, sW, sA))
        a('s_add_u32 %s, %s, %s' % (sKP, sKP, sK0))
        a('s_sub_u32 %s, 0x800, %s' % (sKM, sKP))
        a('s_cmp_eq_u32 %s, 0' % sKP)
        a('s_cselect_b32 %s, 0x400, %s' % (sKM, sKM))
        a('s_cselect_b32 %s, 1, 0' % sSpec)
        a('s_mul_i32 %s, %s, 1026' % (sKP, sKP))
        a('s_mul_i32 %s, %s, 1026' % (sKM, sKM))

    def wq(self, rho): return (rho & 1) + 8*((rho >> 1) & 1) + 4*((rho >> 2) & 1)
    def w_prep(self):
        a = self.a
        a('s_mul_i32 %s, %s, 4224' % (sWL, sW))
        a('s_add_u32 %s, %s, %d' % (sWL, sWL, WL))
        a('s_and_b32 %s, %s, 2' % (sA, sKP))
        a('s_add_u32 %s, %s, %s' % (sDP, sKP, sA)); a('s_add_u32 %s, %s, %s' % (sDM, sKM, sA))
    def w_dma1(self, i):
        a = self.a
        srd, so = [(SWR, sDP), (SWI, sDP), (SWR, sDM), (SWI, sDM)][i]
        a('s_add_u32 m0, %s, %d' % (sWL, 1056*i))
        a('buffer_load_dwordx4 %s, %s, %s offen %s lds' % (v(V.l16), srd, so, self.o['ldw']))
    def w_dma(self):
        for i in range(4): self.w_dma1(i)
    def w_sload(self):
        a = self.a; T = V.T
        a('s_mov_b64 exec, 15')
        a('v_mov_b32 %s, %s' % (v(T), sKP)); a('v_mov_b32 %s, %s' % (v(T+1), sKM))
        a('s_mov_b64 vcc, 10')
        a('v_cndmask_b32 %s, %s, %s, vcc' % (v(T), v(T), v(T+1)))
        a('v_and_b32 %s, 2, %s' % (v(T+1), v(V.lane)))
        a('v_lshl_add_u32 %s, %s, 9, %s' % (v(T), v(T+1), v(T)))
        a('buffer_load_short_d16_hi %s, %s, %s, 0 offen' % (v(V.WF), v(T), SWR))
        a('buffer_load_short_d16_hi %s, %s, %s, 0 offen' % (v(V.WF+1), v(T), SWI))
        a('s_mov_b64 exec, -1')
    def w_edge_rl(self):
        a = self.a
        for l in range(4):
            for im in range(2):
                a('v_readlane_b32 s%d, %s, %d' % (84+2*l+im, v(V.WF+im), l))
    def w_edge(self):
        a = self.a; T = V.T
        self.w_edge_rl()
        for i, (x, y, op) in enumerate(((84, 86, 'add'), (85, 87, 'sub'), (90, 88, 'add'), (91, 89, 'sub'))):
            a('v_mov_b32 %s, s%d' % (v(T), y))
            a('v_%s_f32 %s, s%d, %s' % (op, v(V.WF+i), x, v(T)))
            a('v_mul_f32 %s, 0.5, %s' % (v(V.WF+i), v(V.WF+i)))
        a('s_mov_b64 s[92:93], 1')
    def w_addr(self):
        a = self.a; T = V.T
        self.sigma_lane(T)
        a('v_lshrrev_b32 %s, 5, %s' % (v(T+1), v(V.lane)))
        a('v_lshlrev_b32 %s, 7, %s' % (v(T+1), v(T+1)))
        a('v_lshl_add_u32 %s, %s, 1, %s' % (v(T), v(T), v(T+1)))
        a('s_and_b32 %s, %s, 2' % (sD, sKP)); a('s_sub_u32 %s, %s, %s' % (sD, sWL, sD))
        a('v_add_u32 %s, %s, %s' % (v(V.WP), sD, v(T)))
        a('s_add_u32 %s, %s, %d' % (sD, sD, 1024-832))
        a('v_sub_u32 %s, %s, %s' % (v(V.WM), sD, v(T)))
    def w_read(self, rho, dst=None, swap=False):
        a = self.a; dst = V.W if dst is None else dst
        for im in range(2):
            if rho < 8: ad, off = V.WP, 64*self.wq(rho) + (2112 if swap else 0)
            else: ad, off = V.WM, 64*(13-self.wq(rho)) + (0 if swap else 2112)
            a('ds_read_u16_d16_hi %s, %s offset:%d' % (v(dst+16*im+rho), v(ad), off+1056*im))
    def w_fix(self, half):
        a = self.a
        for im in range(2):
            r = V.W+8*half+16*im
            a('v_cndmask_b32 %s, %s, %s, s[92:93]' % (v(r), v(r), v(V.WF+2*half+im)))
    def w_regs_early(self):
        a = self.a
        for rho in range(16): self.w_read(rho)
        a('s_waitcnt lgkmcnt(0)')
        self.w_fix(0); self.w_fix(1)
    def w_special(self):
        a = self.a; T = V.T
        l0, l1 = self.label('Wspec'), self.label('Wend')
        a('s_cmp_eq_u32 %s, 1' % sSpec)
        a('s_cbranch_scc1 %s' % l0)
        a(l1+':')
        def tail():
            X = V.DA
            a(l0+':')
            for rho in range(16): self.w_read(rho)
            for rho in range(16): self.w_read(rho, X, True)
            a('s_waitcnt lgkmcnt(0) vmcnt(0)')
            self.w_edge_rl()
            a('s_mov_b64 exec, 1')
            for r in (V.W+16, V.W+24, X+16, X+24): a('v_mov_b32 %s, 0' % v(r))
            a('v_mov_b32 %s, s90' % v(V.W+8)); a('v_mov_b32 %s, s88' % v(X+8))
            a('s_mov_b64 exec, -1')
            for i in range(32):
                a('v_add_f32 %s, %s, %s' % (v(T+3), v(V.W+i), v(X+i)))
                if (i & 15) < 8: a('v_sub_f32 %s, %s, %s' % (v(X+i), v(V.W+i), v(X+i)))
                else: a('v_sub_f32 %s, %s, %s' % (v(X+i), v(X+i), v(V.W+i)))
                a('v_mov_b32 %s, %s' % (v(V.W+i), v(T+3)))
            a('v_add_u32 %s, %d, %s' % (v(T+1), SCR_B, v(V.l16)))
            for i in range(8):
                a('ds_write_b128 %s, %s offset:%d' % (v(T+1), vr(X+4*i, 4), 1024*i))
            a('s_waitcnt lgkmcnt(0)')
            a('s_branch %s' % l1)
        self.tail.append(tail)

    def B_dup(self):
        a = self.a
        a('v_mov_b32 %s, %s' % (v(V.B+4), v(V.B))); a('v_mov_b32 %s, %s' % (v(V.B+5), v(V.B+1)))
        a('v_mov_b32 %s, %s' % (v(V.B+10), v(V.B+6))); a('v_mov_b32 %s, %s' % (v(V.B+11), v(V.B+7)))
    def gen_B(self, early=False, dup=True):
        a = self.a; T = V.T
        l0, l1 = self.label('Bspec'), self.label('Bend')
        a('s_cmp_eq_u32 %s, 0' % sT)
        a('s_cbranch_scc1 %s' % (l1 if early else l0))
        c, s = T+8, T+9
        a('v_lshrrev_b32 %s, 1, %s' % (v(T), v(V.n)))
        a('v_lshl_add_u32 %s, %s, 8, %s' % (v(T+1), v(T), sK0))
        a('v_cvt_f32_u32 %s, %s' % (v(T+1), v(T+1)))
        a('v_mul_f32 %s, %s, %s' % (v(T+1), lit(1/2048), v(T+1)))
        a('v_cvt_f32_u32 %s, %s' % (v(T+2), v(V.g)))
        a('v_add_f32 %s, %s, %s' % (v(T+2), v(T+2), v(T+2)))
        a('v_and_b32 %s, 1, %s' % (v(T+3), v(V.n)))
        a('v_cvt_f32_u32 %s, %s' % (v(T+3), v(T+3)))
        a('v_mul_f32 %s, %s, %s' % (v(T+4), lit(0.25), v(T+3)))
        a('v_mul_f32 %s, %s, %s' % (v(T+5), v(T+1), v(T+2)))
        for sbb in range(2):
            for half in range(2):
                a('v_%s_f32 %s, %s, %s' % ('sub' if half else 'add', v(T+6), v(T+5), v(T+4)))
                a('v_cos_f32 %s, %s' % (v(c), v(T+6)))
                a('v_sin_f32 %s, %s' % (v(s), v(T+6)))
                a('v_mul_f32 %s, %s, %s' % (v(c), lit(S11), v(c)))
                a('v_mul_f32 %s, %s, %s' % (v(s), lit(S11), v(s)))
                ng = '-' if half else ''
                a('v_cvt_pk_bf16_f32 %s, %s, %s%s' % (v(V.B+2*sbb+half), v(c), ng, v(s)))
                a('v_cvt_pk_bf16_f32 %s, -%s, %s%s' % (v(V.B+6+2*sbb+half), v(s), ng, v(c)))
            if sbb == 0: a('v_add_f32 %s, %s, %s' % (v(T+5), v(T+5), v(T+1)))
        a('v_cvt_f32_u32 %s, %s' % (v(T), v(T)))
        a('v_lshlrev_b32 %s, 31, %s' % (v(T+4), v(V.n)))
        a('v_xor_b32 %s, %s, %s' % (v(T), v(T), v(T+4)))
        a('v_xor_b32 %s, %s, %s' % (v(T+4), lit(S11), v(T+4)))
        a('v_lshl_add_u32 %s, %s, 9, %s' % (v(T+1), v(V.g), sK0))
        a('v_cvt_f32_u32 %s, %s' % (v(T+1), v(T+1)))
        a('v_mul_f32 %s, %s, %s' % (v(T+1), lit(1/2048), v(T+1)))
        a('v_mul_f32 %s, %s, %s' % (v(T+5), v(T+1), v(T)))
        a('v_fmac_f32 %s, 0.5, %s' % (v(T+5), v(T+3)))
        for ii in range(2):
            a('v_cos_f32 %s, %s' % (v(c), v(T+5)))
            a('v_sin_f32 %s, %s' % (v(s), v(T+5)))
            a('v_mul_f32 %s, %s, %s' % (v(T+6), v(T+4), v(c)))
            a('v_mul_f32 %s, %s, %s' % (v(T+7), v(T+4), v(s)))
            a('v_mul_f32 %s, %s, %s' % (v(c), lit(S11), v(c)))
            a('v_mul_f32 %s, %s, %s' % (v(s), lit(S11), v(s)))
            a('v_cvt_pk_bf16_f32 %s, %s, %s' % (v(V.Bp+2*ii), v(c), v(T+7)))
            a('v_cvt_pk_bf16_f32 %s, -%s, %s' % (v(V.Bp+4+2*ii), v(s), v(T+6)))
            a('v_cvt_pk_bf16_f32 %s, -%s, %s' % (v(V.Bp+2*ii+1), v(s), v(T+6)))
            a('v_cvt_pk_bf16_f32 %s, -%s, -%s' % (v(V.Bp+4+2*ii+1), v(c), v(T+7)))
            if ii == 0: a('v_fmac_f32 %s, %s, %s' % (v(T+5), lit(0.125), v(T)))
        a(l1+':')
        if dup: self.B_dup()
        def tail():
            a(l0+':')
            if not early: self.spec_load(); a('s_waitcnt vmcnt(0)')
            a('s_branch %s' % l1)
        if not early: self.tail.append(tail)
    def spec_load(self):
        a = self.a
        a('s_getpc_b64 s[28:29]')
        a('s_add_u32 s28, s28, spec_tab@rel32@lo+4')
        a('s_addc_u32 s29, s29, spec_tab@rel32@hi+12')
        a('global_load_dwordx4 %s, %s, s[28:29]' % (vr(V.B, 4), v(V.l16)))
        a('global_load_dwordx4 %s, %s, s[28:29] offset:1024' % (vr(V.B+6, 4), v(V.l16)))
        a('global_load_dwordx4 %s, %s, s[28:29] offset:2048' % (vr(V.Bp, 4), v(V.l16)))
        a('global_load_dwordx4 %s, %s, s[28:29] offset:3072' % (vr(V.Bp+4, 4), v(V.l16)))
    def spec_early(self):
        a = self.a
        def g():
            self.srds()
            a('s_mov_b32 %s, 0' % sDP); a('s_mov_b32 %s, %d' % (sDM, 1024*1026)); a('s_mov_b32 %s, %d' % (sWL, WL))
            self.w_dma()
        def f():
            self.spec_load(); self.cond(sW, 0, g)
        self.cond(sT, 0, f)

    def spec_table(self):
        tab = np.zeros((4, 64, 4, 2))
        for lane in range(64):
            m, g = lane & 15, lane >> 4
            for r in range(4):
                t, c = m >> 1, m & 1; sb, hf = 2*g + (r >> 1), r & 1
                if hf == (t & 1):
                    th = 2*math.pi*sb*t/16
                    tab[0, lane, r, c] = (2*S11 if t else S11)*math.cos(th)
                    tab[1, lane, r, c] = -2*S11*math.sin(th) if t else S11*(-1.0)**sb
                sb, hf = m >> 1, m & 1; t, c = 2*g + (r >> 1), r & 1
                if hf == (t & 1):
                    th = 2*math.pi*sb*t/16
                    if t: cre, cim = 2*math.cos(th), -2*math.sin(th)
                    else: cre, cim = 1.0, (-1.0)**sb
                    pl = 2 + (1 - c)
                    tab[pl, lane, r, 0] = S11*cim
                    tab[pl, lane, r, 1] = S11*cre
        tab[abs(tab) < 1e-12] = 0
        out = ['.p2align 6', '.type spec_tab,@object', 'spec_tab:']
        w = [bf16bits(tab[p, l, r, 0]) | bf16bits(tab[p, l, r, 1]) << 16 for p in range(4) for l in range(64) for r in range(4)]
        for i in range(0, len(w), 8):
            out.append('.long ' + ','.join('0x%x' % x for x in w[i:i+8]))
        return '\n'.join(out)

    def p1_load(self):
        a = self.a; T = V.T
        a('v_bfe_u32 %s, %s, 3, 1' % (v(T), v(V.lane)))
        a('v_lshlrev_b32 %s, 14, %s' % (v(T), v(T)))
        a('v_lshl_add_u32 %s, %s, 20, %s' % (v(T), v(V.g), v(T)))
        a('v_and_b32 %s, 0x70, %s' % (v(T+1), v(V.l16)))
        a('v_add_u32 %s, %s, %s' % (v(V.Xoff), v(T), v(T+1)))
        a('s_lshl_b32 %s, %s, 15' % (sO[0], sW))
        a('s_lshl_b32 %s, %s, 11' % (sA, sSB)); a('s_add_u32 %s, %s, %s' % (sO[0], sO[0], sA))
        a('s_lshl_b32 %s, %s, 7' % (sA, sCB)); a('s_add_u32 %s, %s, %s' % (sO[0], sO[0], sA))
        for r in range(1, 4): a('s_add_u32 %s, %s, 0x%x' % (sO[r], sO[0], r*262144))
    def p1_issue(self):
        a = self.a
        for r in range(4):
            a('buffer_load_dwordx4 %s, %s, %s, %s offen %s' % (vr(V.L+4*r, 4), v(V.Xoff), SX, sO[r], self.o['ldx']))
    def p1_addrs(self):
        a = self.a; T = V.T
        a('v_xor_b32 %s, %s, %s' % (v(T), sSB, v(V.lane)))
        a('v_and_b32 %s, 1, %s' % (v(T), v(T)))
        a('v_mul_u32_u24 %s, 16448, %s' % (v(T), v(T)))
        a('v_lshl_add_u32 %s, %s, 12, %s' % (v(T), v(V.g), v(T)))
        a('v_and_b32 %s, 14, %s' % (v(T+1), v(V.lane)))
        a('v_lshl_add_u32 %s, %s, 3, %s' % (v(T), v(T+1), v(T)))
        a('s_lshr_b32 %s, %s, 2' % (sA, sW)); a('s_lshl_b32 %s, %s, 9' % (sA, sA))
        a('s_and_b32 %s, %s, 1' % (sB, sW)); a('s_lshl_b32 %s, %s, 8' % (sB, sB)); a('s_add_u32 %s, %s, %s' % (sA, sA, sB))
        a('s_and_b32 %s, %s, 2' % (sB, sW)); a('s_lshl_b32 %s, %s, 6' % (sB, sB)); a('s_add_u32 %s, %s, %s' % (sA, sA, sB))
        if R0: a('s_add_u32 %s, %s, %d' % (sA, sA, R0))
        a('v_add_u32 %s, %s, %s' % (v(V.X0w), sA, v(T)))
        self.tr_lane(T, 512, 128)
        a('s_lshl_b32 %s, %s, 10' % (sA, sW))
        a('s_sub_u32 %s, 0x4000, %s' % (sB, sA))
        a('s_cmp_eq_u32 %s, 0' % sW)
        a('s_cselect_b32 %s, 0x2000, %s' % (sB, sB))
        if R0: a('s_add_u32 %s, %s, %d' % (sA, sA, R0)); a('s_add_u32 %s, %s, %d' % (sB, sB, R0))
        a('v_add_u32 %s, %s, %s' % (v(V.X0r0), sA, v(T)))
        a('v_add_u32 %s, %s, %s' % (v(V.X0r1), sB, v(T)))
    def tr_lane(self, dst, g1s, g0s, b3s=64):
        a = self.a; t = V.T+7
        sh = lambda x: int(math.log2(x))
        a('v_and_b32 %s, 0x30, %s' % (v(dst), v(V.l16)))
        for bit, st in ((2, 8), (3, b3s), (4, g0s), (5, g1s)):
            a('v_bfe_u32 %s, %s, %d, 1' % (v(t), v(V.lane), bit))
            a('v_lshl_add_u32 %s, %s, %d, %s' % (v(dst), v(t), sh(st), v(dst)))

    def mf16(self, d, A, B):
        self.a('v_mfma_f32_16x16x32_bf16 %s, %s, %s, 0' % (vr(d, 4), vr(A, 4), vr(B, 4)))
    def cvt(self, d, lo, hi):
        self.a('v_cvt_pk_bf16_f32 %s, %s, %s' % (v(d), v(lo), v(hi)))

    def p1_compute(self, nafter, hook=None, hook2=None, hook3=None, hook4=None):
        a = self.a; O, L, D = V.O, V.L, V.DA
        for r in range(4):
            a('s_waitcnt vmcnt(%d)' % (nafter + 3 - r))
            if r == 3: self.stamp()
            for t in range(4):
                a('v_mov_b32 %s, %s' % (v(O+4*t+r), v(L+4*r+t)))
        for t in range(4):
            self.mf16(D+4*t, V.F16, O+4*t)
            self.mf16(D+16+4*t, V.F16+4, O+4*t)
        if hook: hook()
        P = V.DB
        for r in range(4):
            self.cvt(P+4*r, D+r, D+4+r); self.cvt(P+4*r+2, D+16+r, D+20+r)
        for r in range(4):
            self.cvt(P+4*r+1, D+8+r, D+12+r); self.cvt(P+4*r+3, D+24+r, D+28+r)
            a('ds_write_b128 %s, %s offset:%d' % (v(V.X0w), vr(P+4*r, 4), 1024*r))
        a('s_waitcnt lgkmcnt(0)')
        a('s_barrier')
        if hook4: hook4()
        for sel in range(2):
            for tau in range(2):
                for ii in range(2):
                    a('ds_read_b64_tr_b16 %s, %s offset:%d' % (vr(O+4*(2*sel+tau)+2*ii, 2), v(V.X0r1 if sel else V.X0r0), tau*16448+ii*256))
        if hook2: hook2()
        if hook3: hook3()
        for r in range(4): a('s_add_u32 %s, %s, 0x%x' % (sO[r], self.est(), self.ubase(0) + r*self.tstride()))
        for ti in range(4):
            a('s_waitcnt lgkmcnt(%d)' % (6-2*ti))
            self.mf16(D+4*ti, V.M2+8*(ti >> 1), O+4*ti)
            self.mf16(D+16+4*ti, V.M2+8*(ti >> 1)+4, O+4*ti)
        st = lambda i: a('buffer_store_dwordx4 %s, %s, %s, %s offen %s' % (vr(P+4*i, 4), v(V.Est), SWS, sO[i], self.o['st1']))
        def normal():
            for i in range(4):
                for tau in range(2): self.cvt(P+4*i+2*tau, D+4*tau+i, D+16+4*tau+i)
            for i in range(4):
                for tau in range(2): self.cvt(P+4*i+2*tau+1, D+4*(2+tau)+i, D+16+4*(2+tau)+i)
                st(i)
        def w0():
            for i in range(4):
                ts, eb = i >> 1, i & 1
                for tau in range(2):
                    for sg in range(2):
                        x = 4*(2*ts+tau)+2*eb+sg
                        self.cvt(P+4*i+2*tau+sg, D+x, D+16+x)
                st(i)
        self.ifelse(sW, 0, w0, normal)

    def p2_addrs(self):
        a = self.a; T = V.T
        a('v_lshlrev_b32 %s, 4, %s' % (v(T), v(V.n)))
        a('v_lshl_add_u32 %s, %s, 13, %s' % (v(T), v(V.g), v(T)))
        a('s_lshl_b32 %s, %s, 9' % (sA, sW)); a('s_add_u32 %s, %s, %d' % (sA, sA, R1))
        a('v_add_u32 %s, %s, %s' % (v(V.X1w), sA, v(T)))
    def p2_addrs2(self):
        a = self.a; T = V.T
        self.tr_lane(T, 256, 64, 128)
        a('s_lshl_b32 %s, %s, 12' % (sA, sW)); a('s_add_u32 %s, %s, %d' % (sA, sA, R1))
        a('v_add_u32 %s, %s, %s' % (v(V.X1r), sA, v(T)))
        a('v_and_b32 %s, 16, %s' % (v(T), v(V.l16)))
        for bit, st in ((1, 16448), (2, 8224)):
            a('v_bfe_u32 %s, %s, %d, 1' % (v(T+1), v(V.lane), bit))
            a('v_mul_u32_u24 %s, %d, %s' % (v(T+1), st, v(T+1)))
            a('v_add_u32 %s, %s, %s' % (v(T), v(T), v(T+1)))
        a('v_bfe_u32 %s, %s, 3, 2' % (v(T+1), v(V.lane)))
        a('v_lshl_add_u32 %s, %s, 11, %s' % (v(T), v(T+1), v(T)))
        a('v_and_b32 %s, 32, %s' % (v(T+1), v(V.lane)))
        a('v_add_u32 %s, %s, %s' % (v(T), v(T), v(T+1)))
        a('s_lshr_b32 %s, %s, 2' % (sA, sW)); a('s_lshl_b32 %s, %s, 9' % (sA, sA))
        a('s_and_b32 %s, %s, 1' % (sB, sW)); a('s_lshl_b32 %s, %s, 8' % (sB, sB)); a('s_add_u32 %s, %s, %s' % (sA, sA, sB))
        a('s_and_b32 %s, %s, 2' % (sB, sW)); a('s_lshl_b32 %s, %s, 6' % (sB, sB)); a('s_add_u32 %s, %s, %s' % (sA, sA, sB))
        if R0: a('s_add_u32 %s, %s, %d' % (sA, sA, R0))
        a('v_add_u32 %s, %s, %s' % (v(V.X2w), sA, v(T)))
        self.tr_lane(T, 512, 128)
        a('s_and_b32 %s, %s, 1' % (sA, sW)); a('s_lshl_b32 %s, %s, 11' % (sA, sA))
        a('s_bfe_u32 %s, %s, 0x10001' % (sB, sW)); a('s_mul_i32 %s, %s, 16448' % (sB, sB)); a('s_add_u32 %s, %s, %s' % (sA, sA, sB))
        a('s_lshr_b32 %s, %s, 2' % (sB, sW)); a('s_lshl_b32 %s, %s, 12' % (sB, sB)); a('s_add_u32 %s, %s, %s' % (sA, sA, sB))
        if R0: a('s_add_u32 %s, %s, %d' % (sA, sA, R0))
        a('v_add_u32 %s, %s, %s' % (v(V.X2r), sA, v(T)))

    def p2_issue(self):
        a = self.a
        a('s_add_u32 %s, %s, 0x%x' % (sA, sEld, self.ubase(0)))
        for q in range(4):
            a('buffer_load_dwordx4 %s, %s, %s, %s offen offset:%d %s' % (vr(V.L+12*(q >> 1)+4*(q & 1), 4), self.eld(q), SWS, sA, 256*q, self.o['ld1']))

    def mf32(self, d, i, dataA):
        for pl in range(2):
            M = vr(V.F32+16*pl+4*i, 4); X = vr(V.O+4*i, 4)
            A, B = (X, M) if dataA else (M, X)
            D = vr(d+16*pl, 16)
            self.a('v_mfma_f32_32x32x16_bf16 %s, %s, %s, %s' % (D, A, B, D if i else '0'))

    def cmul_stage(self, src, dst, dataA, coef, kind, prio=None, late=False):
        a = self.a; T = V.T
        if prio is not None and self.o['prio']: a('s_setprio %d' % prio)
        if kind == 'tw' and self.o['shear']:
            for i in range(4):
                for st in range(3):
                    for r in range(4):
                        rho = 4*i+r
                        x, y = v(src+rho), v(src+16+rho)
                        if st == 1: a('v_fmac_f32 %s, %s, %s' % (y, v(coef+16+rho), x))
                        else: a('v_fmac_f32 %s, %s, %s' % (x, v(coef+rho), y))
                for r in range(4): self.cvt(V.O+4*i+r, src+4*i+r, src+16+4*i+r)
                self.mf32(dst, i, dataA)
            return
        if late:
            a('s_waitcnt vmcnt(2)')
            for rho in range(8): self.w_read(rho)
        for i in range(4):
            if late:
                if i == 0: a('s_waitcnt lgkmcnt(8)'); self.w_fix(0)
                if i == 1:
                    a('s_waitcnt vmcnt(0)')
                    for rho in range(8, 12): self.w_read(rho)
                    a('s_waitcnt lgkmcnt(8)')
                if i == 2:
                    for rho in range(12, 16): self.w_read(rho)
                    a('s_waitcnt lgkmcnt(8)'); self.w_fix(1)
                if i == 3: a('s_waitcnt lgkmcnt(0)')
            for r in range(4):
                rho = 4*i+r
                x, y = v(src+rho), v(src+16+rho)
                c, s = v(coef+rho), v(coef+16+rho)
                t0, t1 = v(T+2*r), v(T+2*r+1)
                a('v_mul_f32 %s, %s, %s' % (t0, x, c))
                a('v_mul_f32 %s, %s, %s' % (t1, y, c))
            for r in range(4):
                rho = 4*i+r
                x, y = v(src+rho), v(src+16+rho)
                c, s = v(coef+rho), v(coef+16+rho)
                t0, t1 = v(T+2*r), v(T+2*r+1)
                if kind == 'tw' or rho >= 8:
                    a('v_fmac_f32 %s, %s, %s' % (t0, y, s))
                    a('v_fma_f32 %s, -%s, %s, %s' % (t1, x, s, t1))
                else:
                    a('v_fma_f32 %s, -%s, %s, %s' % (t0, y, s, t0))
                    a('v_fmac_f32 %s, %s, %s' % (t1, x, s))
            for r in range(4):
                if kind == 'tw': self.cvt(V.O+4*i+r, T+2*r, T+2*r+1)
                else: self.cvt(V.O+4*i+r, T+2*r+1, T+2*r)
            self.mf32(dst, i, dataA)

    def p2_compute(self, wl=None):
        a = self.a; O, L, D, T = V.O, V.L, V.DA, V.T
        late = wl is not None
        na = 0
        for cbb in range(2):
            b = L+12*cbb
            a('s_waitcnt vmcnt(%d)' % (na+3-2*cbb))
            a('v_mov_b32 %s, %s' % (v(b+8), v(b))); a('v_mov_b32 %s, %s' % (v(b+9), v(b+1)))
            a('s_waitcnt vmcnt(%d)' % (na+2-2*cbb))
            if cbb: self.stamp(); self.fstamp()
            for jj2 in (1, 0):
                ti = 2*cbb+jj2
                op = b+2 if jj2 else b+6
                mo = 0 if jj2 else 2
                self.mf16(D+4*ti, V.B+mo, op)
                self.mf16(D+16+4*ti, V.B+6+mo, op)
        for cbb in range(2):
            for k1b in range(2):
                P = O+4*(2*cbb+k1b)
                for pl in range(2):
                    for jj2 in (1, 0):
                        x = D+16*pl+4*(2*cbb+jj2)+2*k1b
                        self.cvt(P+2*pl+jj2, x, x+1)
                a('ds_write_b128 %s, %s offset:%d' % (v(V.X1w), vr(P, 4), k1b*4096+cbb*256))
        self.fstamp()
        a('s_waitcnt lgkmcnt(0)')
        self.fstamp()
        if self.o.get('fine'): a('s_waitcnt lgkmcnt(0)')
        a('s_barrier')
        if self.o['prio']: a('s_setprio 3')
        for i in range(4):
            for ii in range(2):
                a('ds_read_b64_tr_b16 %s, %s offset:%d' % (vr(O+4*i+2*ii, 2), v(V.X1r), ii*1024+(i & 1)*512+(i >> 1)*2048))
        for i in range(4):
            if late and i in (0, 2): self.wat('postX1', (i, i+1))
            a('s_waitcnt lgkmcnt(%d)' % (6-2*i))
            self.mf32(V.DA, i, True)
        self.fstamp()
        if late: self.wat('tw1')
        self.cmul_stage(V.DA, V.DB, False, V.TW, 'tw', 2)
        self.fstamp()
        l0, l1 = self.label('PWspec'), self.label('PWend')
        a('s_cmp_eq_u32 %s, 1' % sSpec)
        a('s_cbranch_scc1 %s' % l0)
        if self.o.get('fine'): a('s_waitcnt lgkmcnt(0)')
        self.cmul_stage(V.DB, V.DA, True, V.W, 'w', 1, late)
        a(l1+':')
        self.fstamp()
        self.cmul_stage(V.DA, V.DB, True, V.TW, 'tw', 0)
        self.fstamp()
        D = V.DB
        rho = lambda jj3, jj1, jj2, c: 4*(2*jj3+jj1)+2*jj2+c
        for c in range(2):
            for jj1 in range(2):
                P = O+4*(2*c+jj1)
                for pl in range(2):
                    for jj3 in range(2):
                        self.cvt(P+2*pl+jj3, D+16*pl+rho(jj3, jj1, 0, c), D+16*pl+rho(jj3, jj1, 1, c))
                a('ds_write_b128 %s, %s offset:%d' % (v(V.X2w), vr(P, 4), c*64+jj1*1024))
                if self.o['ib2'] and not self.o['ib3'] and c == 0 and jj1 == 0: self.major_read()
        self.fstamp()
        a('s_waitcnt lgkmcnt(0)')
        if self.o['ib2'] and not self.o['ib3']: self.major_use()
        self.fstamp()
        if self.o.get('fine'): a('s_waitcnt lgkmcnt(0)')
        a('s_barrier')
        for cbb in range(2):
            for jj1 in range(2):
                for ii in range(2):
                    a('ds_read_b64_tr_b16 %s, %s offset:%d' % (vr(O+4*(2*cbb+jj1)+2*ii, 2), v(V.X2r), ii*256+jj1*1024+cbb*8224))
        for r in range(4): a('s_add_u32 %s, %s, 0x%x' % (sO[r], self.est(), self.ubase(1) + r*self.tstride()))
        D = V.DA
        for ti in range(4):
            a('s_waitcnt lgkmcnt(%d)' % (6-2*ti))
            self.mf16(D+4*ti, V.Bp, O+4*ti)
            self.mf16(D+16+4*ti, V.Bp+4, O+4*ti)
        self.fstamp()
        P = V.DB
        for q in range(4):
            cbb, sbb = q >> 1, q & 1
            for jj1 in range(2):
                for hf in range(2):
                    x = 4*(2*cbb+jj1)+2*sbb+hf
                    self.cvt(P+4*q+2*jj1+hf, D+x, D+16+x)
            a('buffer_store_dwordx4 %s, %s, %s, %s offen %s' % (vr(P+4*q, 4), v(V.Est), SWS, sO[q], self.o['st2']))
        self.fstamp()
        if self.o.get('fine'):
            a('s_memrealtime s[%d:%d]' % (sTS+2*self.nts, sTS+2*self.nts+1)); self.nts += 1
        def tail():
            C = V.DB; X = V.DA
            a(l0+':')
            self.sigma_lane(T)
            a('v_lshrrev_b32 %s, 5, %s' % (v(T+1), v(V.lane)))
            a('v_lshlrev_b32 %s, 9, %s' % (v(T+1), v(T+1)))
            a('v_lshl_add_u32 %s, %s, 2, %s' % (v(T+2), v(T), v(T+1)))
            a('v_add_u32 %s, %d, %s' % (v(T+2), SCR, v(T+2)))
            a('v_add_u32 %s, 128, %s' % (v(T+3), v(T+2)))
            a('v_sub_u32 %s, 32, %s' % (v(T+4), v(T)))
            a('v_lshrrev_b32 %s, 5, %s' % (v(T+5), v(T+4)))
            a('v_and_b32 %s, 31, %s' % (v(T+4), v(T+4)))
            a('v_lshlrev_b32 %s, 2, %s' % (v(T+4), v(T+4)))
            a('v_lshl_add_u32 %s, %s, 8, %s' % (v(T+4), v(T+5), v(T+4)))
            a('v_sub_u32 %s, %s, %s' % (v(T+4), v(T+4), v(T+1)))
            a('v_add_u32 %s, %d, %s' % (v(T+4), SCR + 2*256, v(T+4)))
            a('v_add_u32 %s, 128, %s' % (v(T+5), v(T+4)))
            a('v_add_u32 %s, %d, %s' % (v(T+6), SCR_B, v(V.l16)))
            qs = lambda rho: sigma(8*(rho >> 2) + (rho & 3))
            for pl in range(2):
                for rho in range(0, 16, 2):
                    a('ds_write2st64_b32 %s, %s, %s offset0:%d offset1:%d' % (v(T+2+pl), v(C+16*pl+rho), v(C+16*pl+rho+1), qs(rho), qs(rho+1)))
                a('ds_write_b32 %s, %s offset:%d' % (v(T+2+pl), v(C+16*pl), 32*256))
            a('s_waitcnt lgkmcnt(0)')
            t0, t1 = v(T+8), v(T+9)
            for half in range(2):
                for pl in range(2):
                    for k in range(0, 8, 2):
                        rho_ = 8*half+k
                        a('ds_read2st64_b32 %s, %s offset0:%d offset1:%d' % (vr(X+8*pl+k, 2), v(T+4+pl), 29-qs(rho_), 29-qs(rho_+1)))
                    for k in range(2):
                        a('ds_read_b128 %s, %s offset:%d' % (vr(X+16+8*pl+4*k, 4), v(T+6), 1024*(4*pl+2*half+k)))
                a('s_waitcnt lgkmcnt(0)')
                for k in range(8):
                    rho_ = 8*half+k
                    x, y = v(C+rho_), v(C+16+rho_); ar, ai = v(V.W+rho_), v(V.W+16+rho_)
                    p, q_ = v(X+k), v(X+8+k); br, bi = v(X+16+k), v(X+24+k)
                    ng, ps = ('', '-') if half else ('-', '')
                    a('v_mul_f32 %s, %s, %s' % (t0, x, ar))
                    a('v_mul_f32 %s, %s, %s' % (t1, y, ar))
                    a('v_fma_f32 %s, %s%s, %s, %s' % (t0, ng, y, ai, t0))
                    a('v_fma_f32 %s, %s%s, %s, %s' % (t1, ps, x, ai, t1))
                    a('v_fmac_f32 %s, %s, %s' % (t0, p, br))
                    a('v_fma_f32 %s, -%s, %s, %s' % (t1, q_, br, t1))
                    a('v_fma_f32 %s, %s%s, %s, %s' % (t0, ps, q_, bi, t0))
                    a('v_fma_f32 %s, %s%s, %s, %s' % (t1, ps, p, bi, t1))
                    self.cvt(O+rho_, T+9, T+8)
            for i in range(4): self.mf32(V.DA, i, True)
            a('s_nop 11')
            a('s_branch %s' % l1)
        self.tail.append(tail)

    def p3_addrs(self):
        a = self.a; T = V.T
        a('v_and_b32 %s, 16, %s' % (v(T), v(V.lane)))
        for bit, st in ((0, 32), (3, 4096), (5, 1024)):
            a('v_bfe_u32 %s, %s, %d, 1' % (v(T+1), v(V.lane), bit))
            a('v_lshl_add_u32 %s, %s, %d, %s' % (v(T), v(T+1), int(math.log2(st)), v(T)))
        for bit, st in ((1, 8208), (2, 16448)):
            a('v_bfe_u32 %s, %s, %d, 1' % (v(T+1), v(V.lane), bit))
            a('v_mul_u32_u24 %s, %d, %s' % (v(T+1), st, v(T+1)))
            a('v_add_u32 %s, %s, %s' % (v(T), v(T), v(T+1)))
        a('s_sub_u32 %s, 16, %s' % (sC, sW))
        a('s_cmp_eq_u32 %s, 0' % sW)
        a('s_cselect_b32 %s, 8, %s' % (sC, sC))
        for kl, dst in ((sW, V.X3w0), (sC, V.X3w1)):
            a('s_and_b32 %s, %s, 9' % (sA, kl)); a('s_lshl_b32 %s, %s, 6' % (sA, sA))
            a('s_and_b32 %s, %s, 2' % (sB, kl)); a('s_lshl_b32 %s, %s, 7' % (sB, sB)); a('s_add_u32 %s, %s, %s' % (sA, sA, sB))
            a('s_and_b32 %s, %s, 4' % (sB, kl)); a('s_lshl_b32 %s, %s, 5' % (sB, sB)); a('s_add_u32 %s, %s, %s' % (sA, sA, sB))
            a('s_add_u32 %s, %s, %d' % (sA, sA, R1))
            a('v_add_u32 %s, %s, %s' % (v(dst), sA, v(T)))
        self.tr_lane(T, 512, 128)
        a('s_and_b32 %s, %s, 1' % (sA, sW)); a('s_mul_i32 %s, %s, 8208' % (sA, sA))
        a('s_bfe_u32 %s, %s, 0x10001' % (sB, sW)); a('s_mul_i32 %s, %s, 16448' % (sB, sB)); a('s_add_u32 %s, %s, %s' % (sA, sA, sB))
        a('s_lshr_b32 %s, %s, 2' % (sB, sW)); a('s_lshl_b32 %s, %s, 12' % (sB, sB)); a('s_add_u32 %s, %s, %s' % (sA, sA, sB))
        a('s_add_u32 %s, %s, %d' % (sA, sA, R1))
        a('v_add_u32 %s, %s, %s' % (v(V.X3r), sA, v(T)))
        a('v_bfe_u32 %s, %s, 3, 1' % (v(T), v(V.lane)))
        a('v_lshlrev_b32 %s, 15, %s' % (v(T), v(T)))
        a('v_lshl_add_u32 %s, %s, 21, %s' % (v(T), v(V.g), v(T)))
        a('v_and_b32 %s, 0x70, %s' % (v(T+1), v(V.l16)))
        a('v_add_u32 %s, %s, %s' % (v(V.Ooff), v(T), v(T+1)))
    def p3_soff(self):
        a = self.a
        a('s_lshl_b32 %s, %s, 16' % (sO[0], sW))
        a('s_lshl_b32 %s, %s, 12' % (sA, sSB)); a('s_add_u32 %s, %s, %s' % (sO[0], sO[0], sA))
        a('s_lshl_b32 %s, %s, 7' % (sA, sCB)); a('s_add_u32 %s, %s, %s' % (sO[0], sO[0], sA))
        a('s_lshl_b32 %s, %s, 11' % (sA, sP)); a('s_add_u32 %s, %s, %s' % (sO[0], sO[0], sA))
        for r in range(1, 4): a('s_add_u32 %s, %s, 0x%x' % (sO[r], sO[0], r*524288))
    def p3_issue(self):
        a = self.a
        a('s_add_u32 %s, %s, 0x%x' % (sA, sEld, self.ubase(1)))
        for q in range(4):
            a('buffer_load_dwordx4 %s, %s, %s, %s offen offset:%d %s' % (vr(V.L+4*q, 4), self.eld(q, 1), SWS, sA, 256*q, self.o['ld2']))
    def p3_compute(self):
        a = self.a; O, L, D = V.O, V.L, V.DA
        def normal():
            for i in range(4):
                a('s_waitcnt vmcnt(%d)' % (3-i))
                for sel in range(2):
                    for col in range(2):
                        a('v_mov_b32 %s, %s' % (v(O+4*(2*sel+col)+i), v(L+4*i+2*col+sel)))
        def w0():
            for i in range(4):
                ts, eb = i >> 1, i & 1
                a('s_waitcnt vmcnt(%d)' % (3-i))
                for col in range(2):
                    for sg in range(2):
                        a('v_mov_b32 %s, %s' % (v(O+4*(2*ts+col)+2*eb+sg), v(L+4*i+2*col+sg)))
        self.ifelse(sW, 0, w0, normal, True)
        self.stamp()
        for ti in range(4):
            self.mf16(D+4*ti, O+4*ti, V.M2+8*(ti >> 1))
            self.mf16(D+16+4*ti, O+4*ti, V.M2+8*(ti >> 1)+4)
        P = V.DB
        for ti in range(4):
            for pl in range(2):
                for k in range(2):
                    x = D+16*pl+4*ti+2*k
                    self.cvt(P+4*ti+2*pl+k, x, x+1)
            a('ds_write_b128 %s, %s offset:%d' % (v(V.X3w1 if ti >> 1 else V.X3w0), vr(P+4*ti, 4), (ti & 1)*2048))
        a('s_waitcnt lgkmcnt(0)')
        a('s_barrier')
        for t in range(4):
            for ii in range(2):
                a('ds_read_b64_tr_b16 %s, %s offset:%d' % (vr(O+4*t+2*ii, 2), v(V.X3r), ii*256+t*1024))
        for t in range(4):
            a('s_waitcnt lgkmcnt(%d)' % (6-2*t))
            self.mf16(D+4*t, V.F16, O+4*t)
            self.mf16(D+16+4*t, V.F16+4, O+4*t)
        for t in range(3):
            for r in range(4): self.cvt(P+4*r+t, D+16+4*t+r, D+4*t+r)
        for r in range(4):
            self.cvt(P+4*r+3, D+16+12+r, D+12+r)
            a('buffer_store_dwordx4 %s, %s, %s, %s offen %s' % (vr(P+4*r, 4), v(V.Ooff), SOUT, sO[r], self.o['sto']))

    def flush_tail(self):
        t, self.tail = self.tail, []
        for f in t: f()

    def kernel_head(self, name):
        self.a.raw('.globl %s\n.p2align 12\n.p2align 8\n.type %s,@function\n%s:' % (name, name, name))
    def kd(self, name):
        return '''.p2align 6
.amdhsa_kernel %s
  .amdhsa_next_free_vgpr %d
  .amdhsa_next_free_sgpr 102
  .amdhsa_accum_offset %d
  .amdhsa_group_segment_fixed_size 0
  .amdhsa_kernarg_size 72
  .amdhsa_user_sgpr_count 2
  .amdhsa_user_sgpr_kernarg_segment_ptr 1
  .amdhsa_system_sgpr_workgroup_id_x 1
.end_amdhsa_kernel''' % (name, NVGPR, (NVGPR+3)//4*4)

    def build_three(self):
        a = self.a
        names = ['gf_p1_kernel', 'gf_p2_kernel', 'gf_p3_kernel']
        self.kernel_head(names[0]); end = self.label('end')
        self.prologue(end); self.p1_load(); a('s_waitcnt lgkmcnt(0)'); self.p1_issue()
        self.ex_addrs(); self.p1_addrs(); self.gen_F16(); self.gen_M2()
        self.p1_compute(0)
        if self.o['ts']: self.stamp(); a('s_waitcnt vmcnt(0)'); self.stamp(); self.dump_stamps(0)
        a(end+':'); a('s_endpgm'); self.flush_tail()
        self.kernel_head(names[1]); end = self.label('end')
        self.prologue(end); self.ex_addrs(); self.calc_k0(); a('s_waitcnt lgkmcnt(0)')
        self.w_dma(); self.p2_addrs(); self.gen_B(); self.gen_F32TW()
        a('s_waitcnt vmcnt(0)'); self.w_regs(); a('s_waitcnt lgkmcnt(0)')
        self.p2_issue(); self.p2_compute()
        if self.o['ts']: self.stamp(); a('s_waitcnt vmcnt(0)'); self.stamp(); self.dump_stamps(8)
        a(end+':'); a('s_endpgm'); self.flush_tail()
        self.kernel_head(names[2]); end = self.label('end')
        self.prologue(end); self.ex_addrs(); a('s_waitcnt lgkmcnt(0)'); self.p3_issue()
        self.p3_addrs(); self.p3_soff(); self.gen_F16(); self.gen_M3()
        self.p3_compute()
        if self.o['ts']: self.stamp(); a('s_waitcnt vmcnt(0)'); self.stamp(); self.dump_stamps(16)
        a(end+':'); a('s_endpgm'); self.flush_tail()
        launch = ''.join('; @launch kernel=%s grid=(256,1,1) block=(512,1,1) lds=%d\n' % (n, LDS_TOTAL) for n in names)
        return self.finish(launch, names)

    def flag_addrs(self):
        a = self.a
        if self.o['ib']:
            a('s_lshr_b32 %s, %s, 4' % (sB, sT))
            for dst, wp, gr in ((sF, sW, sB), (sE, sB, sW)):
                a('s_lshl3_add_u32 %s, %s, %s' % (sA, sP, wp)); a('s_lshl_b32 %s, %s, 21' % (sA, sA))
                a('s_lshl_b32 %s, %s, 10' % (sC, gr)); a('s_add_u32 %s, %s, %s' % (sA, sA, sC))
                a('s_add_u32 %s, %s, 0x%x' % (dst, sA, WS_FLAG_IB))
            a('s_and_b32 %s, %s, 15' % (sA, sT)); a('s_add_u32 %s, %s, 8' % (sA, sA))
            a('s_lshl_b32 %s, %s, %s' % (sInc, sCh, sA)); a('s_add_u32 %s, %s, 1' % (sInc, sInc))
            a('v_lshl_add_u32 %s, %s, 2, 8' % (v(V.dummy), v(V.g)))
            return
        if self.o['fl'] != '':
            pol = int(self.o['fl'][1]); mode = self.o['fl'][0]
            a('s_lshr_b32 %s, %s, 4' % (sB, sT))
            for dst, wp, gr in ((sF, sW, sB), (sE, sB, sW)):
                a('s_lshl3_add_u32 %s, %s, %s' % (sA, sP, wp))
                if mode == 'x': a('s_xor_b32 %s, %s, %d' % (sC, sP, pol))
                else: a('s_lshr_b32 %s, %s, 2' % (sC, wp)); a('s_xor_b32 %s, %s, %d' % (sC, sC, pol))
                a('s_lshl1_add_u32 %s, %s, %s' % (sA, sA, sC))
                a('s_lshl3_add_u32 %s, %s, %s' % (sA, sA, gr))
                a('s_lshl_b32 %s, %s, 10' % (sA, sA))
                a('s_add_u32 %s, %s, 0x%x' % (dst, sA, WS_FLAG))
            return
        fs = int(self.o['fstride'])
        a('s_lshl_b32 %s, %s, %d' % (sA, sP, fs+6)); a('s_add_u32 %s, %s, 0x%x' % (sA, sA, WS_FLAG))
        a('s_lshr_b32 %s, %s, 4' % (sB, sT))
        a('s_lshl_b32 %s, %s, %d' % (sF, sW, fs+3)); a('s_add_u32 %s, %s, %s' % (sF, sF, sA))
        a('s_lshl_b32 %s, %s, %d' % (sC, sB, fs)); a('s_add_u32 %s, %s, %s' % (sF, sF, sC))
        a('s_lshl_b32 %s, %s, %d' % (sE, sB, fs+3)); a('s_add_u32 %s, %s, %s' % (sE, sE, sA))
        a('s_lshl_b32 %s, %s, %d' % (sC, sW, fs)); a('s_add_u32 %s, %s, %s' % (sE, sE, sC))
    def p2_probe_issue(self):
        a = self.a
        def f():
            if self.o['ib3']:
                a('s_lshr_b32 %s, s2, 5' % sA); a('s_bfe_u32 %s, s2, 0x10004' % sCh2)
                a('s_lshl1_add_u32 %s, %s, %s' % (sA, sA, sCh2)); a('s_lshl_b32 %s, %s, 5' % (sA, sA))
                a('s_and_b32 %s, s2, 31' % sB); a('s_add_u32 %s, %s, %s' % (sA, sA, sB))
                a('s_lshl_b32 %s, %s, 8' % (sA, sA)); a('s_add_u32 %s, %s, 0x%x' % (sDP, sA, WS_FLAG2))
            else:
                a('s_bfe_u32 %s, %s, 0x30003' % (sA, sT)); a('s_lshl3_add_u32 %s, %s, %s' % (sA, sP, sA))
                a('s_lshr_b32 %s, %s, 6' % (sCh2, sT))
                a('s_lshl1_add_u32 %s, %s, %s' % (sA, sA, sCh2))
                a('s_and_b32 %s, %s, 7' % (sB, sT)); a('s_lshl3_add_u32 %s, %s, %s' % (sA, sA, sB))
                a('s_lshl_b32 %s, %s, 10' % (sA, sA)); a('s_add_u32 %s, %s, 0x%x' % (sDP, sA, WS_FLAG2))
            a('s_xor_b32 %s, %s, 0x2000' % (sDM, sDP))
            a('s_mov_b64 s[92:93], 0')
            a('s_atomic_swap s92, s[24:25], %s glc' % sDP)
            a('s_atomic_swap s93, s[24:25], %s glc' % sDM)
        self.cond(sW, PW, f)
    def p2_probe_eval(self):
        a = self.a; T = V.T
        def f():
            if self.o['r2']:
                a('s_waitcnt lgkmcnt(0)')
                a('s_atomic_swap s92, s[24:25], %s glc' % sDP)
                a('s_atomic_swap s93, s[24:25], %s glc' % sDM)
            a('s_waitcnt lgkmcnt(1)')
            a('s_nop %s' % self.o['pnop'])
            a('s_getreg_b32 %s, hwreg(HW_REG_IB_STS, 8, 4)' % sA)
            a('s_cmp_eq_u32 %s, 0' % sA)
            a('s_cselect_b32 %s, 1, 0' % sA)
            a('s_xor_b32 %s, %s, %s' % (sCh2, sCh2, sA))
            if self.o['force'] != '': a('s_xor_b32 %s, %s, %s' % (sCh2, sP, self.o['force']))
            if not self.o['ib3']:
                a('v_mov_b32 %s, %d' % (v(T), CNT)); a('v_mov_b32 %s, %s' % (v(T+1), sCh2))
                a('ds_write_b32 %s, %s offset:4' % (v(T), v(T+1)))
            if self.o['ib3']:
                l = self.label('nv')
                a('s_and_b32 %s, s2, 0x8f' % sA); a('s_cmp_lg_u32 %s, 8' % sA); a('s_cbranch_scc1 %s' % l)
                a('s_cmp_eq_u32 s2, 120'); a('s_cbranch_scc1 %s' % l)
                a('s_lshl_b32 s94, %s, 8' % sCh2); a('s_add_u32 s94, s94, 0x1001')
                a('s_atomic_add s94, s[20:21], 0x0')
                a(l+':')
        self.cond(sW, PW, f)
    def vote_read(self):
        a = self.a
        if self.o['novr']: return
        def f():
            a('s_mov_b32 s22, 256'); a('s_mov_b32 s23, 0x20000')
            a('v_mov_b32 %s, 0' % v(V.EL))
            a('buffer_load_dword %s, %s, %s, 0 offen sc1' % (v(V.dummy), v(V.EL), SDBG))
        self.cond(sW, PW, f)
    def vote_use(self):
        a = self.a; T = V.T
        def f():
            if not self.o['novr']:
                a('v_readfirstlane_b32 %s, %s' % (sA, v(V.dummy)))
                a('s_bfe_u32 %s, %s, 0x40008' % (sB, sA)); a('s_bfe_u32 %s, %s, 0x4000c' % (sC, sA))
                a('s_sub_u32 %s, %s, %s' % (sC, sC, sB))
                a('s_xor_b32 %s, %s, 1' % (sA, sP))
                a('s_cmp_ge_u32 %s, 4' % sB); a('s_cselect_b32 %s, %s, %s' % (sCh2, sA, sCh2))
                a('s_cmp_ge_u32 %s, 4' % sC); a('s_cselect_b32 %s, %s, %s' % (sCh2, sP, sCh2))
            a('v_mov_b32 %s, %s' % (v(T+1), sCh2))
            a('ds_write_b32 %s, %s offset:4' % (v(V.dummy2), v(T+1)))
        self.cond(sW, PW, f)
    def zero3(self):
        a = self.a
        a('s_sub_u32 %s, s2, 16' % sZ)
        a('s_and_b32 %s, %s, 0xffffffef' % (sZ, sZ))
        def f():
            a('s_lshr_b32 %s, s2, 5' % sA)
            a('s_lshl1_add_u32 %s, %s, %s' % (sA, sW, sA))
            a('s_lshl_b32 %s, %s, 13' % (sA, sA)); a('s_add_u32 %s, %s, 0x%x' % (sA, sA, WS_FLAG))
            for i in range(0, 8, 2): a('s_mov_b64 s[%d:%d], 0' % (84+i, 85+i))
            for i in range(8):
                a('s_atomic_swap s%d, s[24:25], %s offset:0x%x glc' % (84+i, sA, i << 10))
        self.cond(sZ, 0, f)
    def ready3(self):
        a = self.a
        def f():
            a('s_mov_b32 s94, 1')
            a('s_waitcnt lgkmcnt(0)')
            a('s_atomic_add s94, s[20:21], 0x0')
        self.cond(sZ, 0, f)
    def flag_addrs3(self):
        a = self.a
        a('s_lshr_b32 %s, %s, 4' % (sB, sT))
        for dst, wp, gr in ((sF, sW, sB), (sE, sB, sW)):
            a('s_lshl4_add_u32 %s, %s, %s' % (sC, wp, gr)); a('s_lshl_b32 %s, %s, 10' % (sC, sC))
            a('s_add_u32 %s, %s, 0x%x' % (dst, sC, WS_FLAG))
    def side3(self):
        a = self.a
        a('s_bfe_u32 %s, %s, 0x1000a' % (sCh2, sRv))
        a('s_xor_b32 %s, %s, %s' % (sCh2, sCh2, sP)); a('s_lshl_b32 %s, %s, 13' % (sCh2, sCh2))
        a('s_add_u32 %s, %s, %s' % (sF, sF, sCh2))
    def side3b(self):
        a = self.a
        a('s_add_u32 %s, %s, %s' % (sE, sE, sCh2))
        a('s_xor_b32 %s, %s, %s' % (sZp, sEst, sCh2))
    def side3c(self):
        a = self.a
        a('s_and_b32 %s, %s, 0x2000' % (sA, sZ)); a('s_xor_b32 %s, %s, %s' % (sA, sA, sCh2)); a('s_add_u32 %s, %s, %s' % (sEld, sEld, sA))
    def p2_choice_read(self):
        self.a('ds_read_b32 %s, %s offset:4' % (v(V.dummy), v(V.dummy2)))
    def p2_choice_use(self):
        a = self.a
        a('s_waitcnt lgkmcnt(8)')
        a('v_readfirstlane_b32 %s, %s' % (sCh2, v(V.dummy)))
        a('s_lshl_b32 %s, %s, 13' % (sA, sCh2))
        a('s_xor_b32 %s, %s, %s' % (sZp, sEst, sA))
        if self.o['ts']: a('s_mov_b32 s%d, %s' % (sTS+24, sCh2))
    def ex_addrs_ib2(self):
        a = self.a; T = V.T
        a('s_lshl_b32 %s, %s, 4' % (sB, sW)); a('s_xor_b32 %s, %s, %s' % (sB, sB, sT)); a('s_lshl_b32 %s, %s, 8' % (sB, sB))
        a('v_lshlrev_b32 %s, 4, %s' % (v(T), v(V.n)))
        a('v_lshl_add_u32 %s, %s, 10, %s' % (v(T), v(V.g), v(T)))
        a('v_xor_b32 %s, %s, %s' % (v(T), sB, v(T)))
        a('v_and_b32 %s, 0x6000, %s' % (v(T+1), v(T)))
        a('v_add_u32 %s, %s, %s' % (v(T), v(T), v(T+1)))
        a('v_lshl_add_u32 %s, %s, 18, %s' % (v(V.Est), v(V.g), v(T)))
        a('v_and_b32 %s, 0xdcff, %s' % (v(V.Eld0), v(T)))
        a('s_lshl3_add_u32 %s, %s, %s' % (sEst, sP, sW)); a('s_lshl_b32 %s, %s, 20' % (sEst, sEst))
        a('s_and_b32 %s, %s, 2' % (sA, sW)); a('s_lshl_b32 %s, %s, 12' % (sA, sA)); a('s_add_u32 %s, %s, %s' % (sEst, sEst, sA))
    def misc_ib2(self):
        a = self.a
        a('s_lshl_b32 %s, %s, 7' % (sEld, sP)); a('s_add_u32 %s, %s, %s' % (sEld, sEld, sT)); a('s_lshl_b32 %s, %s, 16' % (sEld, sEld))
        a('s_and_b32 %s, %s, 15' % (sA, sT)); a('s_add_u32 %s, %s, 8' % (sA, sA))
        a('s_lshl_b32 %s, %s, %s' % (sInc, sCh2, sA)); a('s_add_u32 %s, %s, 1' % (sInc, sInc))
        a('v_lshl_add_u32 %s, %s, 2, 8' % (v(V.dummy), v(V.g)))
        a('s_bfe_i32 %s, %s, 0x10005' % (sZ, sT))
    def ld_addrs_ib2(self):
        a = self.a; T = V.T
        a('s_xor_b32 %s, %s, %s' % (sA, sRv, sZ))
        a('v_lshrrev_b32 %s, %s, %s' % (v(T), v(V.dummy), sA))
        for q in range(4):
            a('v_bfe_u32 %s, %s, %d, 1' % (v(T+1), v(T), q))
            a('v_lshl_add_u32 %s, %s, 13, %s' % (v(T+2+q), v(T+1), v(V.Eld0)))
    def major_post(self):
        a = self.a; T = V.T
        def f():
            a('s_bfe_u32 %s, %s, 0x100008' % (sA, sRv)); a('s_bcnt1_i32_b32 %s, %s' % (sA, sA))
            a('s_cmp_gt_u32 %s, 8' % sA); a('s_cselect_b32 %s, 0x2000, 0' % sA)
            a('v_mov_b32 %s, %s' % (v(T), sA))
            a('ds_write_b32 %s, %s offset:8' % (v(V.dummy2), v(T)))
        self.cond(sW, 0, f)
    def major_read(self):
        self.a('ds_read_b32 %s, %s offset:8' % (v(V.dummy), v(V.dummy2)))
    def major_use(self):
        a = self.a
        a('v_readfirstlane_b32 %s, %s' % (sCh2, v(V.dummy)))
        a('s_xor_b32 %s, %s, %s' % (sZp, sEst, sCh2))
    def major_use2(self):
        a = self.a
        a('s_and_b32 %s, %s, 0x2000' % (sA, sZ)); a('s_xor_b32 %s, %s, %s' % (sA, sA, sCh2)); a('s_add_u32 %s, %s, %s' % (sEld, sEld, sA))
        a('s_lshr_b32 %s, %s, 4' % (sB, sT))
        for dst, wp, gr in ((sF, sW, sB), (sE, sB, sW)):
            a('s_lshl3_add_u32 %s, %s, %s' % (sA, sP, wp)); a('s_lshl4_add_u32 %s, %s, %s' % (sA, sA, gr)); a('s_lshl_b32 %s, %s, 10' % (sA, sA))
            a('s_add_u32 %s, %s, %s' % (sA, sA, sCh2)); a('s_add_u32 %s, %s, 0x%x' % (dst, sA, WS_FLAG2))

    def gz_issue(self):
        a = self.a
        a('s_sub_u32 %s, s2, 16' % sZ)
        a('s_and_b32 %s, %s, 0xffffffef' % (sZ, sZ))
        def f():
            a('s_lshr_b32 %s, s2, 5' % sZp)
            a('s_lshl1_add_u32 %s, %s, %s' % (sCh, sW, sZp))
            a('s_lshl_b32 %s, %s, 13' % (sCh, sCh)); a('s_add_u32 %s, %s, 0x%x' % (sCh, sCh, WS_FLAG))
            for i in range(0, 8, 2): a('s_mov_b64 s[%d:%d], 0' % (84+i, 85+i))
            for i in range(8):
                a('s_atomic_swap s%d, s[24:25], %s offset:0x%x glc' % (84+i, sCh, i << 10))
        self.cond(sZ, 0, f)
    def gz_publish(self):
        a = self.a
        def f():
            a('s_waitcnt lgkmcnt(0)')
            a('s_memtime s[84:85]')
            a('s_mov_b32 s88, 0')
            a('s_waitcnt lgkmcnt(0)')
            a('s_atomic_add s88, s[24:25], %s glc' % sCh)
            a('s_waitcnt lgkmcnt(0)')
            a('s_memtime s[86:87]')
            a('s_mul_i32 %s, %s, 13' % (sZp, sZp)); a('s_add_u32 %s, %s, 5' % (sZp, sZp))
            a('s_waitcnt lgkmcnt(0)')
            a('s_sub_u32 s84, s86, s84'); a('s_lshr_b32 s84, s84, 3'); a('s_min_u32 s84, s84, 0x3ff')
            a('s_lshl_b32 s84, s84, %s' % sZp); a('s_add_u32 s84, s84, 1')
            a('s_atomic_add s84, s[20:21], 0x0')
        self.cond(sZ, 0, f)
    def gz_read(self):
        a = self.a
        a('v_mov_b32 %s, 0' % v(V.EL))
        a('buffer_load_dword %s, %s, %s, 0 offen sc1' % (v(V.dummy), v(V.EL), SDBG))
    def gz_check(self):
        a = self.a; l0, l1 = self.label('gz'), self.label('gzok')
        a('s_waitcnt vmcnt(0)')
        a('v_readfirstlane_b32 %s, %s' % (sRv, v(V.dummy)))
        a('s_bitcmp1_b32 %s, 4' % sRv)
        a('s_cbranch_scc1 %s' % l1)
        a('s_mov_b32 %s, 0' % sCnt)
        a(l0+':')
        a('buffer_load_dword %s, %s, %s, 0 offen sc1' % (v(V.dummy), v(V.EL), SDBG))
        a('s_add_u32 %s, %s, 1' % (sCnt, sCnt))
        a('s_cmp_gt_u32 %s, 0x%x' % (sCnt, SPIN_MAX))
        a('s_waitcnt vmcnt(0)')
        a('v_readfirstlane_b32 %s, %s' % (sRv, v(V.dummy)))
        a('s_cbranch_scc1 %s' % l1)
        a('s_bitcmp0_b32 %s, 4' % sRv)
        a('s_cbranch_scc1 %s' % l0)
        a(l1+':')
        a('s_bfe_u32 %s, %s, 0xd0005' % (sA, sRv)); a('s_bfe_u32 %s, %s, 0xd0012' % (sB, sRv))
        a('s_cmp_lt_u32 %s, %s' % (sB, sA))
        a('s_cselect_b32 %s, 0x2000, 0' % sCh)
        if self.o['force'] != '': a('s_mov_b32 %s, %d' % (sCh, int(self.o['force']) << 13))
        a('s_xor_b32 %s, %s, %s' % (sEst, sEst, sCh))
        if self.o['ts']: a('s_mov_b32 s%d, %s' % (sTS+24, sRv))
    def gz_flag_addrs(self):
        a = self.a
        a('s_xor_b32 %s, %s, %s' % (sEld, sEld, sCh))
        a('s_lshr_b32 %s, %s, 4' % (sB, sT))
        a('s_lshl_b32 %s, %s, 13' % (sA, sP)); a('s_xor_b32 %s, %s, %s' % (sA, sA, sCh)); a('s_add_u32 %s, %s, 0x%x' % (sA, sA, WS_FLAG))
        for dst, wp, gr in ((sF, sW, sB), (sE, sB, sW)):
            a('s_lshl4_add_u32 %s, %s, %s' % (sC, wp, gr)); a('s_lshl_b32 %s, %s, 10' % (sC, sC))
            a('s_add_u32 %s, %s, %s' % (dst, sC, sA))

    def zero_flags_ib(self):
        a = self.a
        def f():
            a('s_waitcnt lgkmcnt(0)')
            a('s_lshl_b32 %s, %s, 13' % (sA, sCh)); a('s_add_u32 %s, %s, %s' % (sA, sA, sEst)); a('s_add_u32 %s, %s, 0x%x' % (sA, sA, WS_FLAG_IB))
            for i in range(0, 8, 2): a('s_mov_b64 s[%d:%d], 0' % (84+i, 85+i))
            for i in range(8):
                a('s_atomic_swap s%d, s[24:25], %s offset:0x%x glc' % (84+i, sA, i << 10))
        self.cond(sT, 1, f)
    def set_ready_ib(self):
        a = self.a
        def f():
            a('s_add_u32 %s, %s, 8' % (sA, sW)); a('s_lshl_b32 %s, %s, %s' % (sZ, sCh, sA)); a('s_add_u32 %s, %s, 1' % (sZ, sZ))
            a('s_waitcnt lgkmcnt(0)')
            a('s_atomic_add %s, s[20:21], %s' % (sZ, sRd))
        self.cond(sT, 1, f)
    def flag_side(self):
        a = self.a
        a('s_lshr_b32 %s, %s, 8' % (sRv, sRv))
        a('s_lshr_b32 %s, %s, %s' % (sA, sRv, sW)); a('s_and_b32 %s, %s, 1' % (sA, sA)); a('s_lshl_b32 %s, %s, 13' % (sA, sA)); a('s_add_u32 %s, %s, %s' % (sF, sF, sA))
    def flag_side2(self):
        a = self.a
        a('s_lshr_b32 %s, %s, 4' % (sB, sT))
        a('s_lshr_b32 %s, %s, %s' % (sA, sRv, sB)); a('s_and_b32 %s, %s, 1' % (sA, sA)); a('s_lshl_b32 %s, %s, 13' % (sA, sA)); a('s_add_u32 %s, %s, %s' % (sE, sE, sA))
    def zero_flags(self):
        a = self.a
        a('s_sub_u32 %s, s2, 16' % sZ)
        a('s_and_b32 %s, %s, 0xffffffef' % (sZ, sZ))
        def f():
            fs = int(self.o['fstride'])
            a('s_lshr_b32 %s, s2, 5' % sZp)
            a('s_lshl3_add_u32 %s, %s, %s' % (sA, sZp, sW))
            if self.o['fl'] != '':
                pol = int(self.o['fl'][1]); mode = self.o['fl'][0]; fs = 10
                if mode == 'x': a('s_xor_b32 %s, %s, %d' % (sC, sZp, pol))
                else: a('s_lshr_b32 %s, %s, 2' % (sC, sW)); a('s_xor_b32 %s, %s, %d' % (sC, sC, pol))
                a('s_lshl1_add_u32 %s, %s, %s' % (sA, sA, sC))
            a('s_lshl_b32 %s, %s, %d' % (sA, sA, fs+3)); a('s_add_u32 %s, %s, 0x%x' % (sA, sA, WS_FLAG))
            for i in range(0, 8, 2): a('s_mov_b64 s[%d:%d], 0' % (84+i, 85+i))
            for i in range(8):
                a('s_atomic_swap s%d, s[24:25], %s offset:0x%x glc' % (84+i, sA, i << fs))
            a('s_lshl_b32 %s, %s, 7' % (sZp, sZp))
        self.cond(sZ, 0, f)
    def set_ready(self):
        a = self.a
        def f():
            a('s_mov_b32 %s, 1' % sInc)
            a('s_waitcnt lgkmcnt(0)')
            a('s_atomic_add %s, s[20:21], %s' % (sInc, sZp))
        self.cond(sZ, 0, f)
    def ready_issue(self):
        self.a('s_load_dword %s, s[20:21], %s' % (sRv, sRd))
    def ready_check(self):
        a = self.a; l0, l1 = self.label('rdy'), self.label('rdyok')
        def notready():
            if self.o['ib3']: a('s_and_b32 %s, %s, 0xff' % (sA, sRv)); a('s_cmp_lt_u32 %s, 23' % sA)
            else: a('s_bitcmp0_b32 %s, 3' % sRv)
        notready()
        a('s_cbranch_scc1 %s' % l0)
        a(l1+':')
        def tail():
            lp = self.label('rdyl')
            a(l0+':')
            a('s_mov_b32 %s, 0' % sCnt)
            a('v_mov_b32 %s, 0' % v(V.O+1))
            a(lp+':')
            a('buffer_load_dword %s, %s, %s, %s offen sc1' % (v(V.O), v(V.O+1), SDBG, sRd))
            a('s_add_u32 %s, %s, 1' % (sCnt, sCnt))
            a('s_cmp_gt_u32 %s, 0x%x' % (sCnt, SPIN_MAX))
            a('s_waitcnt vmcnt(0)')
            a('v_readfirstlane_b32 %s, %s' % (sRv, v(V.O)))
            a('s_cbranch_scc1 %s' % l1)
            notready()
            a('s_cbranch_scc1 %s' % lp)
            a('s_branch %s' % l1)
        self.tail.append(tail)
    def set_flag(self, ex):
        a = self.a
        if not ((self.o['ib'] or self.o['ib2']) and ex == 0): a('s_mov_b32 %s, 0x%x' % (sInc, 1 << (24*ex)))
        a('s_atomic_add %s, s[24:25], %s' % (sInc, sF))
    def poll(self, ex, under=None):
        a = self.a; lp, ok = self.label('poll'), self.label('pollok')
        if under:
            a('s_mov_b32 %s, 0' % sRv)
            a('s_atomic_add %s, s[24:25], %s glc' % (sRv, sE))
            under()
            a('s_waitcnt lgkmcnt(0)')
            a('s_bitcmp1_b32 %s, %d' % (sRv, 4+24*ex))
            a('s_cbranch_scc1 %s' % ok)
        a('s_mov_b32 %s, 0' % sCnt)
        a(lp+':')
        a('s_mov_b32 %s, 0' % sRv)
        a('s_atomic_add %s, s[24:25], %s glc' % (sRv, sE))
        a('s_add_u32 %s, %s, 1' % (sCnt, sCnt))
        a('s_cmp_gt_u32 %s, 0x%x' % (sCnt, SPIN_MAX))
        a('s_waitcnt lgkmcnt(0)')
        a('s_cbranch_scc1 %s' % ok)
        if self.o['slp']:
            a('s_bitcmp1_b32 %s, %d' % (sRv, 4+24*ex))
            a('s_cbranch_scc1 %s' % ok)
            a('s_sleep %s' % self.o['slp'])
            a('s_branch %s' % lp)
        else:
            a('s_bitcmp0_b32 %s, %d' % (sRv, 4+24*ex))
            a('s_cbranch_scc1 %s' % lp)
        a(ok+':')
        if self.o['pbar']: a('s_barrier')
    def code_pf(self, name):
        a = self.a
        l = self.label('pc')
        a('s_getpc_b64 s[28:29]')
        a(l+':')
        a('s_sub_u32 s28, s28, %s-%s' % (l, name))
        a('s_subb_u32 s29, s29, 0')
        a('v_lshlrev_b32 %s, 5, v0' % v(V.O+6))
        a('global_load_dword %s, %s, s[28:29]' % (v(V.dummy), v(V.O+6)))

    def code_spf(self, name):
        a = self.a
        l = self.label('pc')
        a('s_getpc_b64 s[28:29]')
        a(l+':')
        a('s_sub_u32 s28, s28, %s-%s' % (l, name))
        a('s_subb_u32 s29, s29, 0')
        a('s_lshr_b32 %s, s2, 4' % sA)
        a('s_lshl3_add_u32 %s, %s, %s' % (sA, sA, sW))
        a('s_lshl_b32 %s, %s, 7' % (sA, sA))
        a('s_load_dword s94, s[28:29], %s' % sA)

    def ifelse(self, reg, val, feq, fne, eq_first=False):
        a = self.a; l0, l1 = self.label('ie'), self.label('iend')
        if eq_first:
            a('s_cmp_lg_u32 %s, %d' % (reg, val)); a('s_cbranch_scc1 %s' % l0)
            feq(); a('s_branch %s' % l1); a(l0+':'); fne()
        else:
            a('s_cmp_eq_u32 %s, %d' % (reg, val)); a('s_cbranch_scc1 %s' % l0)
            fne(); a('s_branch %s' % l1); a(l0+':'); feq()
        a(l1+':')
    def touch(self, rnd):
        a = self.a
        a('s_mov_b64 exec, 0')
        for k in range(7):
            a('s_cmp_eq_u32 %s, %d' % (sW, k)); a('s_cbranch_scc1 stub_%d' % (8*rnd+k))
        a('s_branch stub_%d' % (8*rnd+7))
        a('ret_%d:' % rnd)
        a('s_mov_b64 exec, -1')

    def cond(self, reg, val, f):
        a = self.a; l = self.label('c')
        a('s_cmp_lg_u32 %s, %d' % (reg, val)); a('s_cbranch_scc1 %s' % l)
        f()
        a(l+':')

    def build_one(self):
        a = self.a; o = self.o
        name = NAME + '_kernel'
        self.kernel_head(name); end = self.label('end')
        self.prologue1(end)
        wA, wB = o['wA'], o['wB']
        def wat(pos, rows=(0, 1, 2, 3)):
            f = lambda: [self.w_dma1(i) for i in rows]
            if wA == pos and wB == pos: f()
            elif wA == pos: self.cond(sP, 0, f)
            elif wB == pos: self.cond(sP, 1, f)
        self.wat = wat
        bd = int(o['bdelay'])
        if o['touch'] == 'pre': self.touch(0)
        self.mark('touched')
        a('s_waitcnt lgkmcnt(0)')
        self.mark('karg')
        if o['wsoff']:
            a('s_add_u32 s24, s24, 0x%x' % (int(o['wsoff']) << 20)); a('s_addc_u32 s25, s25, 0')
        gz = o['gz']
        if gz: self.gz_issue()
        elif o['ib']: self.probe_issue()
        elif o['ib3']: self.p2_probe_issue(); self.zero3(); a('s_mov_b32 %s, 0' % sRd)
        elif o['ib2']: self.p2_probe_issue(); self.zero_flags()
        else: self.zero_flags()
        misc = lambda: (self.srds(), self.calc_k0(), self.w_prep(), self.gz_flag_addrs() if gz else self.flag_addrs3() if o['ib3'] else self.flag_addrs(), self.misc_ib2() if o['ib2'] else 0)
        if wB == 'first':
            def fb():
                misc(); self.w_dma()
                if bd == 0: self.p1_issue()
            self.ifelse(sP, 1, fb, self.p1_issue)
        elif bd: self.cond(sP, 0, self.p1_issue)
        else: self.p1_issue()
        if o['ib']: self.probe_eval(); self.zero_flags_ib()
        if gz: self.gz_publish(); a('s_mov_b32 s22, 256'); a('s_mov_b32 s23, 0x20000')
        if o['touch'] == 'post': self.touch(0)
        if o['touch']: self.cond(sT, 0, lambda: self.touch(1))
        if o['ib2']:
            if o['r2']: self.p1_addrs(); self.gen_F16(); self.p2_probe_eval(); self.coop_init()
            else: self.p2_probe_eval(); self.p1_addrs(); self.gen_F16(); self.coop_init()
        else: self.p1_addrs(); self.gen_F16(); self.coop_init()
        if bd == 1: self.cond(sP, 1, self.p1_issue)
        self.gen_M2()
        if o['ib']: self.ex_addrs_ib(); self.set_ready_ib()
        elif gz: self.ex_addrs()
        elif o['ib3']: self.ex_addrs_ib2(); self.ready3()
        elif o['ib2']: self.ex_addrs_ib2(); self.set_ready()
        else: self.ex_addrs(); self.set_ready()
        X = [misc, self.coop_gen, lambda: self.gen_B(True, False), lambda: (self.p2_addrs(), self.w_addr())]
        nearly = max(0, bd-2)
        def early():
            for f in X[(1 if wB == 'first' else 0):nearly]: f()
            self.p1_issue()
        if bd >= 2: self.cond(sP, 1, early)
        self.mark('w1')
        def Xat(k):
            if k < nearly or (k == 0 and wB == 'first'): self.cond(sP, 0, X[k])
            else: X[k]()
        if gz: self.p1_compute(0, self.gz_read, None, lambda: (self.gz_check(), self.spec_early()))
        elif o['ib3']:
            self.vote_read()
            self.p1_compute(0, lambda: (self.vote_use(), self.spec_early()), None, self.p2_choice_use, self.p2_choice_read)
        elif o['ib2']: self.p1_compute(0, self.spec_early, None, self.p2_choice_use, self.p2_choice_read)
        else:
            def h1():
                if o['tlb1']:
                    a('s_add_u32 %s, %s, 0x%x' % (sA, sEst, self.ubase(0)))
                    a('v_and_b32 %s, 3, %s' % (v(V.T), v(V.lane)))
                    a('v_lshl_add_u32 %s, %s, 15, %s' % (v(V.T), v(V.T), v(V.Est)))
                    a('buffer_load_dword %s, %s, %s, %s offen' % (v(V.dummy), v(V.T), SWS, sA))
            if o['tlb1']: h1()
            self.p1_compute(1 if o['tlb1'] else 0, self.spec_early)
        self.stamp()
        if not gz: self.ready_issue()
        Xat(0)
        n = 0
        Xat(1)
        self.coop_post()
        self.mark('w2a')
        if 'da' in o: a('s_waitcnt vmcnt(0)'); self.mark('vm1')
        a('s_waitcnt vmcnt(%d) lgkmcnt(0)' % n)
        self.stamp()
        if not gz: self.ready_check()
        if o['ib']: self.flag_side()
        if o['ib3']: self.side3()
        self.mark('rdy')
        self.set_flag(0)
        if o['ib']: self.flag_side2()
        if o['ib3']: self.side3b()
        def under1():
            self.w_sload()
            if o['tlb2']:
                a('s_add_u32 %s, %s, 0x%x' % (sA, sEst, self.ubase(1)))
                a('v_and_b32 %s, 3, %s' % (v(V.T), v(V.lane)))
                a('v_lshl_add_u32 %s, %s, 15, %s' % (v(V.T), v(V.T), v(V.Est)))
                a('buffer_load_dword %s, %s, %s, %s offen' % (v(V.dummy), v(V.T), SWS, sA))
            Xat(2); self.B_dup()
            Xat(3)
            self.w_special()
        self.poll(0, under1)
        self.stamp()
        if self.o.get('fine'):
            a('s_memrealtime s[%d:%d]' % (sTS+2*self.nts, sTS+2*self.nts+1)); self.nts += 1
            self.fstamp()
        if o['ib']: self.ld_addrs_ib()
        if o.get('da') == 'votes':
            a('s_bfe_u32 s60, %s, 0x100008' % sRv); a('s_bcnt1_i32_b32 s60, s60')
            a('s_cmp_eq_u32 %s, 0' % sCh2); a('s_sub_u32 s58, 16, s60'); a('s_cmp_eq_u32 %s, 0' % sCh2); a('s_cselect_b32 s60, s60, s58')
            if 'dw' in o: a('s_cmp_eq_u32 %s, %s' % (sW, o['dw'])); a('s_cselect_b32 s60, s60, 0')
            a('s_mul_i32 s60, s60, 25'); a('s_mov_b32 s58, 0')
        if o['ib2']: self.ld_addrs_ib2()
        self.p2_issue()
        if o['ib3']: self.side3c()
        elif o['ib2']: self.major_post()
        self.coop_wait(); self.coop_read()
        self.p2_addrs2()
        a('s_waitcnt vmcnt(4)')
        self.w_edge()
        self.p2_compute(True)
        self.stamp()
        if o['ib2'] and not o['ib3']: self.major_use2()
        self.gen_M3()
        self.mark('w3a')
        a('s_waitcnt vmcnt(0)')
        self.stamp()
        self.set_flag(1)
        self.poll(1, self.p3_addrs)
        self.stamp()
        self.p3_issue()
        self.p3_soff()
        self.p3_compute()
        if 'da' in o:
            self.stamp(); a('s_waitcnt vmcnt(0)'); self.stamp()
            lp = self.label('dg')
            a('s_waitcnt lgkmcnt(0)')
            a('s_sub_u32 %s, s60, s58' % sA)
            a('s_lshl_b32 %s, %s, 2' % (sA, sA))
            if 'dp' in o:
                a('s_cmp_eq_u32 %s, %s' % (sP, o['dp'])); a('s_cselect_b32 %s, %s, 0' % (sA, sA))
            a('s_add_u32 %s, %s, 3000' % (sA, sA))
            a(lp+':')
            a('s_memrealtime s[28:29]')
            a('s_waitcnt lgkmcnt(0)')
            a('s_sub_u32 %s, s28, s56' % sB)
            a('s_cmp_lt_u32 %s, %s' % (sB, sA))
            a('s_cbranch_scc1 %s' % lp)
        if o['ts']:
            self.stamp(); a('s_waitcnt vmcnt(0)'); self.stamp()
            if 'diag' in o:
                i = int(o['diag']); lp = self.label('dg')
                a('s_waitcnt lgkmcnt(0)')
                if 'xw' in o:
                    a('s_getreg_b32 %s, hwreg(HW_REG_XCC_ID, 0, 4)' % sA)
                    a('s_sub_u32 %s, %s, s2' % (sA, sA)); a('s_and_b32 %s, %s, 7' % (sA, sA)); a('s_mul_i32 %s, %s, 400' % (sA, sA))
                    if int(o['xw']) >= 0:
                        a('s_cmp_eq_u32 s2, %s' % o['xw']); a('s_cselect_b32 %s, %s, 0' % (sA, sA))
                else:
                    a('s_sub_u32 %s, s%d, s%d' % (sA, sTS+2*i, sTS+2*int(o.get('dj', 0))))
                    a('s_lshl_b32 %s, %s, 2' % (sA, sA))
                    if 'dp' in o:
                        a('s_cmp_eq_u32 %s, %s' % (sP, o['dp'])); a('s_cselect_b32 %s, %s, 0' % (sA, sA))
                a('s_add_u32 %s, %s, 3000' % (sA, sA))
                a(lp+':')
                a('s_memrealtime s[28:29]')
                a('s_waitcnt lgkmcnt(0)')
                a('s_sub_u32 %s, s28, s%d' % (sB, sTS))
                a('s_cmp_lt_u32 %s, %s' % (sB, sA))
                a('s_cbranch_scc1 %s' % lp)
            else:
                if o['ib'] or o['gz'] or o['ib2']: self.nts += 1
                self.dump_stamps(0)
        a(end+':'); a('s_endpgm'); self.flush_tail()
        if o['touch']: self.insert_stubs(name)
        a.raw('.fill (%s+16384-.)/4, 4, 0xbf810000' % name)
        launch = '; @launch grid=(256,1,1) block=(512,1,1) lds=%d\n' % LDS_TOTAL
        return self.finish(launch, [name])

    def insert_stubs(self, name):
        import subprocess, re
        from asmlib import Ins
        a = self.a
        txt = '.amdgcn_target "amdgcn-amd-amdhsa--gfx950"\n.text\n' + a.text() + ''.join('stub_%d:\n' % k for k in range(16)) + 's_endpgm\nspec_tab:\n'
        open('pass1.s', 'w').write(txt)
        subprocess.check_call(['clang', '-x', 'assembler', '-target', 'amdgcn-amd-amdhsa', '-mcpu=gfx950', '-c', 'pass1.s', '-o', 'pass1.o'])
        dis = subprocess.check_output(['llvm-objdump', '-d', '--mcpu=gfx950', 'pass1.o']).decode()
        addrs = [int(m.group(1), 16) for m in re.finditer(r'// ([0-9A-F]{12}):', dis)]
        real = [i for i, x in enumerate(a.ins) if x.kind != 'none']
        assert len(addrs) == len(real) + 1, (len(addrs), len(real))
        size = {real[k]: addrs[k+1] - addrs[k] for k in range(len(real))}
        pos = ENTRY_OFF; nxt = ENTRY_OFF + 1024 - 256
        nxt = (nxt + 1023)//1024*1024
        out = []; k = 0; prev = None; ez = False
        for i, x in enumerate(a.ins):
            if i in size:
                glued = prev is not None and (prev.op == 's_getpc_b64' or 'rel32' in x.text)
                if prev is not None and prev.text.strip() == 's_mov_b64 exec, 0': ez = True
                if prev is not None and prev.text.strip() == 's_mov_b64 exec, -1': ez = False
                glued = glued or ez
                if pos >= nxt and k < 16 and not glued:
                    out.append(Ins('stub_%d:' % k)); out.append(Ins('s_cbranch_execz ret_%d' % (k >> 3)))
                    pos += 4; k += 1; nxt += 1024
                pos += size[i]; prev = x
            out.append(x)
        self.code_end = pos
        while k < 16:
            out.append(Ins('stub_%d:' % k)); out.append(Ins('s_branch ret_%d' % (k >> 3))); k += 1
        a.ins = out

    def finish(self, launch, names):
        hdr = '; GFNet spectral filter (two heads): 2-D FFT via bf16 MFMA DFT stages. Generated by dev/gen.py\n' + launch
        s = hdr + '.amdgcn_target "amdgcn-amd-amdhsa--gfx950"\n.text\n' + self.a.text()
        s += '.section .rodata,"a"\n' + '\n'.join(self.kd(n) for n in names) + '\n' + self.spec_table() + '\n'
        return s

if __name__ == '__main__':
    mode = sys.argv[1]; out = sys.argv[2]
    opt = {}
    for kv in sys.argv[3:]:
        k, x = kv.split('=')
        opt[k] = {'True': True, 'False': False}.get(x, x.replace('+', ' '))
    g = Gen(mode, **opt)
    s = g.build_three() if mode == 'three' else g.build_one()
    assert g.a.verify() == 0
    open(out, 'w').write(s)
    print('vgprs', NVGPR, 'lds', LDS_TOTAL, 'nops', g.a.nops, 'lines', len(g.a.ins))
```

```python
import sys, struct, math
import numpy as np
from asmlib import Asm

NAME = 'concat_heads__spectral_gfnet__spectral_gfnet__prompt'

def f2u(x): return struct.unpack('<I', struct.pack('<f', x))[0]
def lit(x): return '0x%08x' % f2u(x)
def bf16bits(x):
    u = f2u(float(x)); return ((u + 0x7FFF + ((u >> 16) & 1)) >> 16) & 0xFFFF
def sigma(m): return (m & 1) | ((m >> 1) & 1) << 3 | ((m >> 2) & 1) << 1 | ((m >> 3) & 1) << 2 | (m & 16)

S11 = 2.0**-11
SPIN_MAX = 0x4000
ENTRY_OFF = 0x300
SENT = 0x13572468
WS_FLAG_IB = 32 << 20
WS_FLAG2 = 33 << 20
PW = 7
sCh2 = 's100'
R0 = 0
R1 = 33024
WL = 66048
SCR = WL + 8*4*1056
SCR_B = SCR + 36*256
TABL = SCR_B + 8192
CNT = TABL + 16384
LDS_TOTAL = CNT + 64
WS_U1 = 0
WS_U2 = 8 << 20
WS_FLAG = 32 << 20
WS_TS = 72 << 20
WS_SIZE = 80 << 20

class V: pass
_n = [0]
def alloc(n, align=1):
    b = (_n[0] + align - 1)//align*align
    _n[0] = b + n
    return b
V.tid = alloc(1); V.lane = alloc(1)
for nm in 'g n Xoff Est X0w X0r0 X0r1 X1w X1r X2w X2r WP WM l16 dummy dummy2'.split(): setattr(V, nm, alloc(1))
V.Ooff, V.X3w0, V.X3w1, V.X3r = V.Xoff, V.X0w, V.X0r0, V.X0r1
V.T = alloc(10, 1)
V.EL = alloc(4); V.Eld = V.EL+3; V.Eld0 = V.EL+3
V.O = alloc(16, 4)
V.DA = alloc(32, 4)
V.DB = alloc(32, 4)
V.L = V.DB
V.F16 = alloc(8, 4)
V.M2 = alloc(16, 4)
V.F32 = alloc(32, 4)
V.TW = alloc(32, 4)
V.W = alloc(32, 4)
V.B = alloc(12, 4)
V.Bp = alloc(8, 4)
V.WF = alloc(4)
NVGPR = _n[0]
assert NVGPR <= 256, NVGPR
def v(i): return 'v%d' % i
def vr(i, n): return 'v[%d:%d]' % (i, i+n-1)

SX, SWR, SWI, SOUT, SDBG, SWS = 's[4:7]', 's[8:11]', 's[12:15]', 's[16:19]', 's[20:23]', 's[24:27]'
sP, sT, sW, sSB, sCB, sK0 = 's30', 's31', 's32', 's33', 's34', 's35'
sKP, sKM = 's36', 's37'
sA, sB, sC, sD, sE, sF = 's40', 's41', 's42', 's43', 's44', 's45'
sEst, sEld, sCnt, sSpec = 's46', 's47', 's48', 's49'
sO = ['s52', 's53', 's54', 's55']
sRd, sRv, sInc, sWL = 's38', 's39', 's50', 's51'
ZT = 16
sDP, sDM, sZ, sZp, sCh = 's96', 's97', 's98', 's99', 's95'
sTS = 56

class Gen:
    def __init__(self, mode='one', **opt):
        self.mode = mode
        self.o = dict(ldx='', ldw='', st1='sc1', st2='sc1', sto='sc1', ld1='sc1', ld2='sc1', ts=False, stagger=True, pf=False, spf=False, touch='pre', fst='sc1', fld='sc1', slp='', fsh='', pbar=False, shear=True, prio=True, wA='postX1', wB='postX1', bdelay='4', optx=False, numa='', fl='', ib=False, wsoff='', tlb1=False, tlb2=False, ib2=False, g1=False, nb='6', pthr='2', r2=False, novr=False, ib3=False, pnop='15', gz=False, force='', skew=True, fstride=12)
        self.o.update(opt)
        self.a = Asm()
        self.lab = 0
        self.nts = 0
        self.tail = []

    def tstride(self): return 65536 if (self.o['numa'] != '' or self.o['ib'] or self.o['ib2']) else 32768
    def ubase(self, ex): return (ex << 24) if self.o['ib2'] else (ex << 20) if self.o['ib'] else (WS_U2 if ex else WS_U1)
    def eld(self, q, ex=0): return v(V.T+2+q) if (self.o['ib2'] and ex == 0) else v(V.EL+q) if self.o['ib'] else v(V.Eld)
    def est(self): return sZp if self.o['ib2'] else sEst
    def label(self, p='L'):
        self.lab += 1
        return '%s_%d' % (p, self.lab)

    def stamp(self):
        if 'da' in self.o:
            self.sid = getattr(self, 'sid', -1) + 1
            self.mark('s%d' % self.sid); return
        if not self.o['ts'] or self.o.get('fine'): return
        self.a('s_memrealtime s[%d:%d]' % (sTS+2*self.nts, sTS+2*self.nts+1))
        self.nts += 1

    def mark(self, nm):
        for key, reg in (('da', 58), ('db', 60)):
            if self.o.get(key) == nm: self.a('s_memrealtime s[%d:%d]' % (reg, reg+1))
    def fstamp(self):
        if not self.o.get('fine'): return
        self.a('s_memtime s[%d:%d]' % (sTS+2*self.nts, sTS+2*self.nts+1))
        self.nts += 1

    def dump_stamps(self, slot0=0):
        if not self.o['ts']: return
        a = self.a
        a('s_waitcnt lgkmcnt(0)')
        a('s_lshl_b32 %s, s2, 3' % sA); a('s_add_u32 %s, %s, %s' % (sA, sA, sW)); a('s_lshl_b32 %s, %s, 7' % (sA, sA))
        a('s_add_u32 %s, %s, 0x%x' % (sA, sA, WS_TS + slot0*4))
        a('s_mov_b64 exec, 1')
        a('v_mov_b32 %s, 0' % v(V.T+1))
        for i in range(self.nts):
            a('v_mov_b32 %s, s%d' % (v(V.T), sTS+2*i))
            a('buffer_store_dword %s, %s, %s, %s offen offset:%d' % (v(V.T), v(V.T+1), SWS, sA, 4*i))
            a('s_nop 1')
        a('s_mov_b64 exec, -1')
        self.nts = 0

    def prologue(self, end):
        a = self.a
        a('s_cmp_ge_u32 s2, 0x100')
        a('s_cbranch_scc1 %s' % end)
        self.stamp()
        a('s_bfe_u32 %s, s2, 0x10003' % sP)
        a('s_mul_i32 s3, %s, 24' % sP)
        a('s_add_u32 s28, s0, s3')
        a('s_addc_u32 s29, s1, 0')
        a('s_load_dwordx2 s[4:5], s[28:29], 0x0')
        a('s_load_dwordx2 s[8:9], s[28:29], 0x8')
        a('s_load_dwordx2 s[12:13], s[28:29], 0x10')
        a('s_load_dwordx2 s[16:17], s[0:1], 0x30')
        a('s_load_dwordx2 s[20:21], s[0:1], 0x38')
        a('s_load_dwordx2 s[24:25], s[0:1], 0x40')
        a('v_lshrrev_b32 %s, 6, v0' % v(V.T))
        a('v_and_b32 %s, 63, v0' % v(V.lane))
        a('v_readfirstlane_b32 %s, %s' % (sW, v(V.T)))
        a('s_and_b32 %s, s2, 7' % sA)
        a('s_xor_b32 %s, %s, 2' % (sA, sA))
        a('s_lshl_b32 %s, %s, 4' % (sT, sA))
        a('s_lshr_b32 %s, s2, 4' % sB)
        a('s_or_b32 %s, %s, %s' % (sT, sT, sB))
        a('s_lshl_b32 %s, %s, 1' % (sCB, sA))
        a('s_bfe_u32 %s, %s, 0x10001' % (sC, sB))
        a('s_or_b32 %s, %s, %s' % (sCB, sCB, sC))
        a('s_bfe_u32 %s, %s, 0x20002' % (sSB, sB))
        a('s_lshl_b32 %s, %s, 1' % (sSB, sSB))
        a('s_and_b32 %s, %s, 1' % (sC, sB))
        a('s_or_b32 %s, %s, %s' % (sSB, sSB, sC))
        a('s_mov_b32 s6, 0x400000'); a('s_mov_b32 s7, 0x20000')
        a('s_mov_b32 s10, 2101248'); a('s_mov_b32 s11, 0x20000')
        a('s_mov_b32 s14, 2101248'); a('s_mov_b32 s15, 0x20000')
        a('s_mov_b32 s18, 0x800000'); a('s_mov_b32 s19, 0x20000')
        a('s_mov_b32 s22, 256'); a('s_mov_b32 s23, 0x20000')
        a('s_mov_b32 s26, 0x%x' % WS_SIZE); a('s_mov_b32 s27, 0x20000')
        a('v_lshrrev_b32 %s, 4, %s' % (v(V.g), v(V.lane)))
        a('v_and_b32 %s, 15, %s' % (v(V.n), v(V.lane)))
        a('v_lshlrev_b32 %s, 4, %s' % (v(V.l16), v(V.lane)))

    def prologue1(self, end):
        a = self.a; T = V.T
        a('s_cmp_ge_u32 s2, 0x100')
        a('s_cbranch_scc1 %s' % end)
        if 'da' in self.o: a('s_memrealtime s[56:57]'); self.mark('start')
        a('s_bfe_u32 %s, s2, 0x%x' % (sP, 0x10002 if self.o['optx'] else 0x10003))
        a('s_mul_i32 s3, %s, 24' % sP)
        a('s_load_dwordx2 s[4:5], s[0:1], s3')
        a('s_load_dwordx2 s[24:25], s[0:1], 0x40')
        a('s_load_dwordx2 s[8:9], s[0:1], s3 offset:8')
        a('s_load_dwordx2 s[12:13], s[0:1], s3 offset:16')
        a('s_load_dwordx2 s[16:17], s[0:1], 0x30')
        a('s_load_dwordx2 s[20:21], s[0:1], 0x38')
        self.stamp()
        a('v_lshrrev_b32 %s, 6, v0' % v(T))
        a('v_and_b32 %s, 63, v0' % v(V.lane))
        a('v_readfirstlane_b32 %s, %s' % (sW, v(T)))
        if self.o['optx']:
            a('s_and_b32 %s, s2, 3' % sA)
            a('s_bfe_u32 %s, s2, 0x10003' % sB)
            a('s_lshl1_add_u32 %s, %s, %s' % (sA, sA, sB))
        else: a('s_and_b32 %s, s2, 7' % sA)
        a('s_lshr_b32 %s, s2, 4' % sB)
        a('s_lshl4_add_u32 %s, %s, %s' % (sT, sA, sB))
        a('s_bfe_u32 %s, %s, 0x10001' % (sC, sB))
        a('s_lshl1_add_u32 %s, %s, %s' % (sCB, sA, sC))
        a('s_lshr_b32 %s, %s, 2' % (sSB, sB))
        a('s_and_b32 %s, %s, 1' % (sC, sB))
        a('s_lshl1_add_u32 %s, %s, %s' % (sSB, sSB, sC))
        a('s_mov_b32 s6, 0x400000'); a('s_mov_b32 s7, 0x20000')
        a('v_lshrrev_b32 %s, 4, %s' % (v(V.g), v(V.lane)))
        a('v_lshlrev_b32 %s, 4, %s' % (v(V.l16), v(V.lane)))
        a('v_and_b32 %s, 8, v0' % v(T))
        a('v_lshlrev_b32 %s, 11, %s' % (v(T), v(T)))
        a('v_lshl_add_u32 %s, %s, 20, %s' % (v(T), v(V.g), v(T)))
        a('v_and_b32 %s, 0x70, %s' % (v(T+1), v(V.l16)))
        a('v_add_u32 %s, %s, %s' % (v(V.Xoff), v(T), v(T+1)))
        a('s_lshl4_add_u32 %s, %s, %s' % (sA, sW, sSB))
        a('s_lshl4_add_u32 %s, %s, %s' % (sA, sA, sCB))
        a('s_lshl_b32 %s, %s, 7' % (sO[0], sA))
        for r in range(1, 4): a('s_add_u32 %s, %s, 0x%x' % (sO[r], sO[0], r*262144))
        a('v_and_b32 %s, 15, %s' % (v(V.n), v(V.lane)))
        a('s_mov_b32 s26, 0x%x' % WS_SIZE); a('s_mov_b32 s27, 0x20000')
        a('s_lshl_b32 %s, %s, 7' % (sRd, sP))
    def srds(self):
        a = self.a
        a('s_mov_b32 s10, 2101248'); a('s_mov_b32 s11, 0x20000')
        a('s_mov_b32 s14, 2101248'); a('s_mov_b32 s15, 0x20000')
        a('s_mov_b32 s18, 0x800000'); a('s_mov_b32 s19, 0x20000')
        a('s_mov_b32 s22, 256'); a('s_mov_b32 s23, 0x20000')

    def probe_issue(self):
        a = self.a
        a('s_lshl3_add_u32 %s, %s, %s' % (sEst, sP, sW)); a('s_lshl_b32 %s, %s, 21' % (sEst, sEst))
        a('s_and_b32 %s, %s, 0x60' % (sA, sT)); a('s_add_u32 %s, %s, %s' % (sA, sA, sT)); a('s_lshl_b32 %s, %s, 8' % (sA, sA))
        a('s_add_u32 %s, %s, %s' % (sA, sA, sEst))
        for i in range(8): a('s_mov_b32 s%d, 0x%x' % (84+i, SENT))
        for k, side in ((0, 0), (0, 1), (1, 1), (1, 0), (2, 1), (2, 0), (3, 0), (3, 1)):
            a('s_load_dword s%d, s[24:25], %s offset:0x%x glc' % (84+4*side+k, sA, k*65536+side*8192))
    def probe_eval(self):
        a = self.a
        a('s_mov_b32 %s, 0' % sA); a('s_mov_b32 %s, 0' % sB)
        a('s_waitcnt lgkmcnt(4)')
        for k in range(4):
            a('s_cmp_lg_u32 s%d, 0x%x' % (84+k, SENT)); a('s_addc_u32 %s, %s, 0' % (sA, sA))
            a('s_cmp_lg_u32 s%d, 0x%x' % (88+k, SENT)); a('s_addc_u32 %s, %s, 0' % (sB, sB))
        a('s_cmp_gt_u32 %s, %s' % (sB, sA))
        a('s_cselect_b32 %s, 1, 0' % sCh)
        if self.o['force'] != '':
            a('s_and_b32 %s, %s, 1' % (sC, sW)); a('s_xor_b32 %s, %s, %s' % (sC, sC, sP)); a('s_xor_b32 %s, %s, %s' % (sCh, sC, self.o['force']))
        if self.o['ts']:
            a('s_lshl4_add_u32 s%d, %s, %s' % (sTS+24, sA, sB))
    def ex_addrs_ib(self):
        a = self.a; T = V.T
        a('s_lshl_b32 %s, %s, 4' % (sB, sW)); a('s_xor_b32 %s, %s, %s' % (sB, sB, sT)); a('s_lshl_b32 %s, %s, 8' % (sB, sB))
        a('v_lshlrev_b32 %s, 4, %s' % (v(T), v(V.n)))
        a('v_lshl_add_u32 %s, %s, 10, %s' % (v(T), v(V.g), v(T)))
        a('v_xor_b32 %s, %s, %s' % (v(T), sB, v(T)))
        a('v_and_b32 %s, 0x6000, %s' % (v(T+1), v(T)))
        a('v_add_u32 %s, %s, %s' % (v(T), v(T), v(T+1)))
        a('v_lshl_add_u32 %s, %s, 18, %s' % (v(V.Est), v(V.g), v(T)))
        a('v_and_b32 %s, 0xdcff, %s' % (v(V.Eld), v(T)))
        a('s_lshl_b32 %s, %s, 13' % (sA, sCh)); a('s_add_u32 %s, %s, %s' % (sEst, sEst, sA))
        a('s_lshr_b32 %s, %s, 4' % (sA, sT)); a('s_lshl3_add_u32 %s, %s, %s' % (sA, sP, sA)); a('s_lshl_b32 %s, %s, 21' % (sA, sA))
        a('s_and_b32 %s, %s, 15' % (sEld, sT)); a('s_lshl_b32 %s, %s, 16' % (sEld, sEld)); a('s_add_u32 %s, %s, %s' % (sEld, sEld, sA))
    def ld_addrs_ib(self):
        a = self.a; T = V.T
        a('v_lshrrev_b32 %s, %s, %s' % (v(T), v(V.dummy), sRv))
        for q in range(4):
            a('v_bfe_u32 %s, %s, %d, 1' % (v(T+1), v(T), q))
            a('v_lshl_add_u32 %s, %s, 13, %s' % (v(V.EL+q), v(T+1), v(V.Eld)))

    def ex_addrs(self):
        a = self.a
        if self.o['skew']:
            T = V.T
            a('s_lshl_b32 %s, %s, 4' % (sB, sW)); a('s_xor_b32 %s, %s, %s' % (sB, sB, sT)); a('s_lshl_b32 %s, %s, 8' % (sB, sB))
            a('v_lshlrev_b32 %s, 4, %s' % (v(T), v(V.n)))
            a('v_lshl_add_u32 %s, %s, 10, %s' % (v(T), v(V.g), v(T)))
            a('v_xor_b32 %s, %s, %s' % (v(T), sB, v(T)))
            if self.o['numa'] != '':
                pol = int(self.o['numa'][1]); mode = self.o['numa'][0]
                if mode == 'p':
                    a('v_and_b32 %s, 0x6000, %s' % (v(T+1), v(T)))
                    a('v_add_u32 %s, %s, %s' % (v(T), v(T), v(T+1)))
                    a('v_lshl_add_u32 %s, %s, 18, %s' % (v(V.Est), v(V.g), v(T)))
                    a('v_and_b32 %s, 0xdcff, %s' % (v(V.Eld), v(T)))
                    a('s_lshr_b32 %s, %s, 1' % (sA, sW)); a('s_lshr_b32 %s, %s, 6' % (sD, sT)); a('s_xor_b32 %s, %s, %s' % (sA, sA, sD))
                    a('s_lshr_b32 %s, %s, 5' % (sC, sT)); a('s_lshr_b32 %s, %s, 2' % (sD, sW)); a('s_xor_b32 %s, %s, %s' % (sC, sC, sD))
                    if pol: a('s_xor_b32 %s, %s, 1' % (sA, sA)); a('s_xor_b32 %s, %s, 1' % (sC, sC))
                    a('s_and_b32 %s, %s, 1' % (sA, sA)); a('s_and_b32 %s, %s, 1' % (sC, sC))
                    a('s_lshl_b32 %s, %s, 13' % (sA, sA)); a('s_lshl_b32 %s, %s, 13' % (sC, sC))
                    a('s_lshl_b32 %s, %s, 25' % (sD, sP)); a('s_add_u32 %s, %s, %s' % (sA, sA, sD)); a('s_add_u32 %s, %s, %s' % (sC, sC, sD))
                    a('s_lshl_b32 %s, %s, 20' % (sEst, sW)); a('s_add_u32 %s, %s, %s' % (sEst, sEst, sA))
                    a('s_lshl_b32 %s, %s, 16' % (sEld, sT)); a('s_add_u32 %s, %s, %s' % (sEld, sEld, sC))
                    return
                a('v_and_b32 %s, 0x6000, %s' % (v(T+1), v(T)))
                a('v_add_u32 %s, %s, %s' % (v(T), v(T), v(T+1)))
                a('v_lshl_add_u32 %s, %s, 18, %s' % (v(V.Est), v(V.g), v(T)))
                a('v_and_b32 %s, 0xdcff, %s' % (v(V.Eld), v(T)))
                if mode == 'x':
                    a('s_bfe_u32 %s, %s, 0x10001' % (sA, sW)); a('s_xor_b32 %s, %s, %s' % (sA, sA, sP))
                    a('s_bfe_u32 %s, %s, 0x10005' % (sC, sT)); a('s_xor_b32 %s, %s, %s' % (sC, sC, sP))
                    if pol: a('s_xor_b32 %s, %s, 1' % (sA, sA)); a('s_xor_b32 %s, %s, 1' % (sC, sC))
                    a('s_lshl_b32 %s, %s, 13' % (sA, sA)); a('s_lshl_b32 %s, %s, 13' % (sC, sC))
                    a('s_lshl_b32 %s, %s, 20' % (sEst, sW)); a('s_add_u32 %s, %s, %s' % (sEst, sEst, sA))
                    a('s_lshl_b32 %s, %s, 16' % (sEld, sT)); a('s_add_u32 %s, %s, %s' % (sEld, sEld, sC))
                else:
                    a('s_lshr_b32 %s, %s, 1' % (sA, sW)); a('s_lshr_b32 %s, %s, 2' % (sD, sW)); a('s_xor_b32 %s, %s, %s' % (sA, sA, sD))
                    a('s_lshr_b32 %s, %s, 5' % (sC, sT)); a('s_lshr_b32 %s, %s, 6' % (sD, sT)); a('s_xor_b32 %s, %s, %s' % (sC, sC, sD))
                    if pol: a('s_xor_b32 %s, %s, 1' % (sA, sA)); a('s_xor_b32 %s, %s, 1' % (sC, sC))
                    a('s_and_b32 %s, %s, 1' % (sA, sA)); a('s_and_b32 %s, %s, 1' % (sC, sC))
                    a('s_lshl_b32 %s, %s, 13' % (sA, sA)); a('s_lshl_b32 %s, %s, 13' % (sC, sC))
                    a('s_lshl_b32 %s, %s, 22' % (sD, sP)); a('s_add_u32 %s, %s, %s' % (sA, sA, sD)); a('s_add_u32 %s, %s, %s' % (sC, sC, sD))
                    a('s_and_b32 %s, %s, 3' % (sEst, sW)); a('s_lshl_b32 %s, %s, 20' % (sEst, sEst)); a('s_add_u32 %s, %s, %s' % (sEst, sEst, sA))
                    a('s_and_b32 %s, %s, 63' % (sEld, sT)); a('s_lshl_b32 %s, %s, 16' % (sEld, sEld)); a('s_add_u32 %s, %s, %s' % (sEld, sEld, sC))
                return
            a('v_lshl_add_u32 %s, %s, 17, %s' % (v(V.Est), v(V.g), v(T)))
            a('v_and_b32 %s, 0x7cff, %s' % (v(V.Eld), v(T)))
            a('s_lshl_b32 %s, %s, 22' % (sA, sP))
            a('s_lshl_b32 %s, %s, 19' % (sEst, sW)); a('s_add_u32 %s, %s, %s' % (sEst, sEst, sA))
            a('s_lshl_b32 %s, %s, 15' % (sEld, sT)); a('s_add_u32 %s, %s, %s' % (sEld, sEld, sA))
            return
        a('v_lshlrev_b32 %s, 4, %s' % (v(V.T), v(V.n)))
        a('v_lshl_add_u32 %s, %s, 17, %s' % (v(V.Est), v(V.g), v(V.T)))
        a('v_lshl_add_u32 %s, %s, 10, %s' % (v(V.Eld), v(V.g), v(V.T)))
        a('s_lshl_b32 %s, %s, 22' % (sA, sP))
        a('s_lshl_b32 %s, %s, 19' % (sEst, sW)); a('s_add_u32 %s, %s, %s' % (sEst, sEst, sA))
        a('s_lshl_b32 %s, %s, 8' % (sB, sT)); a('s_add_u32 %s, %s, %s' % (sEst, sEst, sB))
        a('s_lshl_b32 %s, %s, 15' % (sEld, sT)); a('s_add_u32 %s, %s, %s' % (sEld, sEld, sA))
        a('s_lshl_b32 %s, %s, 12' % (sB, sW)); a('s_add_u32 %s, %s, %s' % (sEld, sEld, sB))

    def trig(self, x, re, im, conj_re=None, conj_im=None):
        a = self.a; c, s = V.T+8, V.T+9
        a('v_cos_f32 %s, %s' % (v(c), v(x)))
        a('v_sin_f32 %s, %s' % (v(s), v(x)))
        a('v_cvt_pk_bf16_f32 %s, %s, %s' % (v(re), v(c), v(s)))
        a('v_cvt_pk_bf16_f32 %s, -%s, %s' % (v(im), v(s), v(c)))
        if conj_re is not None:
            a('v_cvt_pk_bf16_f32 %s, %s, -%s' % (v(conj_re), v(c), v(s)))
            a('v_cvt_pk_bf16_f32 %s, %s, %s' % (v(conj_im), v(s), v(c)))

    def gen_F16(self):
        a = self.a; T = V.T
        a('v_cvt_f32_u32 %s, %s' % (v(T), v(V.n)))
        a('v_mul_f32 %s, %s, %s' % (v(T), lit(1/16), v(T)))
        a('v_cvt_f32_u32 %s, %s' % (v(T+1), v(V.g)))
        a('v_mul_f32 %s, 4.0, %s' % (v(T+1), v(T+1)))
        a('v_mul_f32 %s, %s, %s' % (v(T+2), v(T), v(T+1)))
        for r in range(4):
            self.trig(T+2, V.F16+r, V.F16+4+r)
            if r < 3: a('v_add_f32 %s, %s, %s' % (v(T+2), v(T+2), v(T)))

    def gen_M2(self):
        a = self.a; T = V.T
        a('v_cvt_f32_u32 %s, %s' % (v(T+1), v(V.g)))
        a('v_mul_f32 %s, 4.0, %s' % (v(T+1), v(T+1)))
        def normal():
            a('v_lshl_add_u32 %s, %s, 4, %s' % (v(T), v(V.n), sW))
            a('v_cvt_f32_u32 %s, %s' % (v(T), v(T)))
            a('v_mul_f32 %s, %s, %s' % (v(T), lit(1/256), v(T)))
            a('v_mul_f32 %s, %s, %s' % (v(T+2), v(T), v(T+1)))
            for r in range(4):
                self.trig(T+2, V.M2+r, V.M2+4+r, V.M2+8+r, V.M2+12+r)
                if r < 3: a('v_add_f32 %s, %s, %s' % (v(T+2), v(T+2), v(T)))
        def w0():
            a('v_lshrrev_b32 %s, 1, %s' % (v(T), v(V.n)))
            a('v_cvt_f32_u32 %s, %s' % (v(T), v(T)))
            a('v_lshlrev_b32 %s, 31, %s' % (v(T+3), v(V.n)))
            a('v_add_f32 %s, 0.5, %s' % (v(T+4), v(T)))
            a('v_xor_b32 %s, %s, %s' % (v(T+3), lit(1/16), v(T+3)))
            a('v_mul_f32 %s, %s, %s' % (v(T), v(T), v(T+3)))
            a('v_mul_f32 %s, %s, %s' % (v(T+4), v(T+4), v(T+3)))
            a('v_cmp_ne_u32 vcc, 1, %s' % v(V.n))
            a('v_cndmask_b32 %s, 0.5, %s, vcc' % (v(T), v(T)))
            for ts in range(2):
                d = T+4*ts
                a('v_mul_f32 %s, %s, %s' % (v(T+2), v(d), v(T+1)))
                for r in range(4):
                    self.trig(T+2, V.M2+8*ts+r, V.M2+8*ts+4+r)
                    if r < 3: a('v_add_f32 %s, %s, %s' % (v(T+2), v(T+2), v(d)))
        self.ifelse(sW, 0, w0, normal)

    def gen_M3(self):
        a = self.a; T = V.T
        a('v_cvt_f32_u32 %s, %s' % (v(T), v(V.n)))
        a('v_mul_f32 %s, %s, %s' % (v(T+1), lit(1/256), v(T)))
        a('v_mul_f32 %s, %s, %s' % (v(T), lit(1/16), v(T)))
        def normal():
            a('v_lshl_add_u32 %s, %s, 6, %s' % (v(T+2), v(V.g), sW))
            a('v_cvt_f32_u32 %s, %s' % (v(T+2), v(T+2)))
            a('v_mul_f32 %s, %s, %s' % (v(T+2), v(T+2), v(T+1)))
            for r in range(4):
                self.trig(T+2, V.M2+r, V.M2+4+r, V.M2+8+r, V.M2+12+r)
                if r < 3: a('v_add_f32 %s, %s, %s' % (v(T+2), v(T+2), v(T)))
        def w0():
            for ts in range(2):
                a('v_lshlrev_b32 %s, 5, %s' % (v(T+2), v(V.g)))
                if ts: a('v_add_u32 %s, 8, %s' % (v(T+2), v(T+2)))
                a('v_cvt_f32_u32 %s, %s' % (v(T+2), v(T+2)))
                a('v_mul_f32 %s, %s, %s' % (v(T+2), v(T+2), v(T+1)))
                for eb in range(2):
                    b = V.M2+8*ts
                    self.trig(T+2, b+2*eb, b+4+2*eb, b+2*eb+1, b+4+2*eb+1)
                    if eb == 0: a('v_add_f32 %s, %s, %s' % (v(T+2), v(T+2), v(T)))
            a('s_mov_b64 exec, 0xffff')
            a('v_lshlrev_b32 %s, 15, %s' % (v(T+2), v(V.n)))
            a('v_and_b32 %s, 0x8000, %s' % (v(T+2), v(T+2)))
            a('v_or_b32 %s, 0x3f80, %s' % (v(V.M2+1), v(T+2)))
            a('v_lshlrev_b32 %s, 16, %s' % (v(V.M2+5), v(V.M2+1)))
            a('s_mov_b64 exec, -1')
        self.ifelse(sW, 0, w0, normal)

    def sigma_lane(self, dst):
        a = self.a; T = V.T
        a('v_and_b32 %s, 17, %s' % (v(dst), v(V.lane)))
        a('v_bfe_u32 %s, %s, 2, 2' % (v(T+7), v(V.lane)))
        a('v_lshl_add_u32 %s, %s, 1, %s' % (v(dst), v(T+7), v(dst)))
        a('v_bfe_u32 %s, %s, 1, 1' % (v(T+7), v(V.lane)))
        a('v_lshl_add_u32 %s, %s, 3, %s' % (v(dst), v(T+7), v(dst)))

    def gen_F32TW(self):
        a = self.a; T = V.T
        self.sigma_lane(T)
        a('v_cvt_f32_u32 %s, %s' % (v(T), v(T)))
        a('v_mul_f32 %s, %s, %s' % (v(T), lit(1/1024), v(T)))
        a('v_lshrrev_b32 %s, 5, %s' % (v(T+1), v(V.lane)))
        a('v_cvt_f32_u32 %s, %s' % (v(T+1), v(T+1)))
        a('v_add_f32 %s, %s, %s' % (v(T+1), v(T+1), v(T+1)))
        a('v_mul_f32 %s, %s, %s' % (v(T+1), v(T+1), v(T)))
        for rho in range(16):
            k = sigma(8*(rho >> 2) + (rho & 3))
            a('v_fmamk_f32 %s, %s, %s, %s' % (v(T+2), v(T), lit(float(k)), v(T+1)))
            a('v_mul_f32 %s, %s, %s' % (v(T+3), lit(32.0), v(T+2)))
            a('v_cos_f32 %s, %s' % (v(V.TW+rho), v(T+2)))
            a('v_sin_f32 %s, %s' % (v(V.TW+16+rho), v(T+2)))
            self.trig(T+3, V.F32+rho, V.F32+16+rho)

    def coop_gen(self):
        a = self.a; T = V.T; X = V.DA
        self.sigma_lane(T)
        a('v_cvt_f32_u32 %s, %s' % (v(T), v(T)))
        a('v_mul_f32 %s, %s, %s' % (v(T), lit(1/1024), v(T)))
        a('s_and_b32 %s, %s, 1' % (sA, sW)); a('s_lshl_b32 %s, %s, 3' % (sA, sA))
        a('s_and_b32 %s, %s, 2' % (sB, sW)); a('s_lshl_b32 %s, %s, 1' % (sB, sB)); a('s_add_u32 %s, %s, %s' % (sA, sA, sB))
        a('s_and_b32 %s, %s, 4' % (sB, sW)); a('s_lshl_b32 %s, %s, 2' % (sB, sB)); a('s_add_u32 %s, %s, %s' % (sA, sA, sB))
        a('v_lshrrev_b32 %s, 5, %s' % (v(T+1), v(V.lane)))
        a('v_lshl_add_u32 %s, %s, 1, %s' % (v(T+1), v(T+1), sA))
        a('v_cvt_f32_u32 %s, %s' % (v(T+1), v(T+1)))
        a('v_mul_f32 %s, %s, %s' % (v(T+2), v(T+1), v(T)))
        for e in range(2):
            a('v_mul_f32 %s, %s, %s' % (v(T+3), lit(32.0), v(T+2)))
            if self.o['shear']:
                a('v_mul_f32 %s, 0.5, %s' % (v(T+4), v(T+2)))
                a('v_cos_f32 %s, %s' % (v(T+5), v(T+4)))
                a('v_sin_f32 %s, %s' % (v(T+6), v(T+4)))
                a('v_rcp_f32 %s, %s' % (v(T+5), v(T+5)))
                a('v_mul_f32 %s, %s, %s' % (v(X+4+e), v(T+6), v(T+5)))
                a('v_fma_f32 %s, %s, %s, 1.0' % (v(T+5), v(X+4+e), v(X+4+e)))
                a('v_rcp_f32 %s, %s' % (v(T+6), v(T+5)))
                a('v_fma_f32 %s, -%s, %s, 1.0' % (v(T+5), v(T+5), v(T+6)))
                a('v_fmac_f32 %s, %s, %s' % (v(T+6), v(T+5), v(T+6)))
                a('v_mul_f32 %s, -2.0, %s' % (v(T+6), v(T+6)))
                a('v_mul_f32 %s, %s, %s' % (v(X+6+e), v(T+6), v(X+4+e)))
            else:
                a('v_cos_f32 %s, %s' % (v(X+4+e), v(T+2)))
                a('v_sin_f32 %s, %s' % (v(X+6+e), v(T+2)))
            self.trig(T+3, X+e, X+2+e)
            if e == 0: a('v_add_f32 %s, %s, %s' % (v(T+2), v(T+2), v(T)))
        a('s_lshr_b32 %s, %s, 1' % (sA, sW)); a('s_lshl_b32 %s, %s, 10' % (sA, sA))
        a('s_and_b32 %s, %s, 1' % (sB, sW)); a('s_lshl_b32 %s, %s, 3' % (sB, sB)); a('s_add_u32 %s, %s, %s' % (sA, sA, sB))
        a('s_add_u32 %s, %s, %d' % (sA, sA, TABL))
        a('v_add_u32 %s, %s, %s' % (v(T), sA, v(V.l16)))
        for k in range(4):
            a('ds_write_b64 %s, %s offset:%d' % (v(T), vr(X+2*k, 2), 4096*k))
    def coop_init(self):
        a = self.a; T = V.T
        a('v_mov_b32 %s, %d' % (v(V.dummy2), CNT)); a('v_mov_b32 %s, 0' % v(T))
        a('ds_write_b32 %s, %s' % (v(V.dummy2), v(T)))
    def coop_post(self):
        a = self.a; T = V.T
        a('v_mov_b32 %s, 1' % v(T+1))
        a('ds_add_u32 %s, %s' % (v(V.dummy2), v(T+1)))
    def coop_wait(self):
        a = self.a; T = V.T; lp, ok = self.label('cw'), self.label('cwok')
        a('s_mov_b32 %s, 0' % sCnt)
        a(lp+':')
        a('ds_read_b32 %s, %s' % (v(T), v(V.dummy2)))
        a('s_add_u32 %s, %s, 1' % (sCnt, sCnt))
        a('s_cmp_gt_u32 %s, 0x%x' % (sCnt, SPIN_MAX*8))
        a('s_waitcnt lgkmcnt(0)')
        a('s_cbranch_scc1 %s' % ok)
        a('v_cmp_gt_u32 vcc, 0x200, %s' % v(T))
        a('s_cbranch_vccnz %s' % lp)
        a(ok+':')
    def coop_read(self):
        a = self.a; T = V.T
        assert V.TW == V.F32+32
        a('v_add_u32 %s, %d, %s' % (v(T), TABL, v(V.l16)))
        for k in range(16):
            a('ds_read_b128 %s, %s offset:%d' % (vr(V.F32+4*k, 4), v(T), 1024*k))

    def calc_k0(self):
        a = self.a
        a('s_lshr_b32 %s, %s, 4' % (sA, sT))
        a('s_and_b32 %s, %s, 15' % (sB, sT))
        a('s_lshl_b32 %s, %s, 4' % (sK0, sB))
        a('s_add_u32 %s, %s, %s' % (sK0, sK0, sA))
        a('s_lshr_b32 %s, %s, 2' % (sC, sB)); a('s_lshl_b32 %s, %s, 5' % (sC, sC))
        a('s_and_b32 %s, %s, 1' % (sD, sB)); a('s_lshl_b32 %s, %s, 4' % (sD, sD)); a('s_add_u32 %s, %s, %s' % (sC, sC, sD))
        a('s_and_b32 %s, %s, 2' % (sD, sB)); a('s_lshl_b32 %s, %s, 2' % (sD, sD)); a('s_add_u32 %s, %s, %s' % (sC, sC, sD))
        a('s_cmp_eq_u32 %s, 0' % sA)
        a('s_cselect_b32 %s, %s, %s' % (sK0, sC, sK0))
        a('s_cmp_eq_u32 %s, 0' % sT)
        a('s_cselect_b32 %s, 7, 8' % sA)
        a('s_lshl_b32 %s, %s, %s' % (sKP, sW, sA))
        a('s_add_u32 %s, %s, %s' % (sKP, sKP, sK0))
        a('s_sub_u32 %s, 0x800, %s' % (sKM, sKP))
        a('s_cmp_eq_u32 %s, 0' % sKP)
        a('s_cselect_b32 %s, 0x400, %s' % (sKM, sKM))
        a('s_cselect_b32 %s, 1, 0' % sSpec)
        a('s_mul_i32 %s, %s, 1026' % (sKP, sKP))
        a('s_mul_i32 %s, %s, 1026' % (sKM, sKM))

    def wq(self, rho): return (rho & 1) + 8*((rho >> 1) & 1) + 4*((rho >> 2) & 1)
    def w_prep(self):
        a = self.a
        a('s_mul_i32 %s, %s, 4224' % (sWL, sW))
        a('s_add_u32 %s, %s, %d' % (sWL, sWL, WL))
        a('s_and_b32 %s, %s, 2' % (sA, sKP))
        a('s_add_u32 %s, %s, %s' % (sDP, sKP, sA)); a('s_add_u32 %s, %s, %s' % (sDM, sKM, sA))
    def w_dma1(self, i):
        a = self.a
        srd, so = [(SWR, sDP), (SWI, sDP), (SWR, sDM), (SWI, sDM)][i]
        a('s_add_u32 m0, %s, %d' % (sWL, 1056*i))
        a('buffer_load_dwordx4 %s, %s, %s offen %s lds' % (v(V.l16), srd, so, self.o['ldw']))
    def w_dma(self):
        for i in range(4): self.w_dma1(i)
    def w_sload(self):
        a = self.a; T = V.T
        a('s_mov_b64 exec, 15')
        a('v_mov_b32 %s, %s' % (v(T), sKP)); a('v_mov_b32 %s, %s' % (v(T+1), sKM))
        a('s_mov_b64 vcc, 10')
        a('v_cndmask_b32 %s, %s, %s, vcc' % (v(T), v(T), v(T+1)))
        a('v_and_b32 %s, 2, %s' % (v(T+1), v(V.lane)))
        a('v_lshl_add_u32 %s, %s, 9, %s' % (v(T), v(T+1), v(T)))
        a('buffer_load_short_d16_hi %s, %s, %s, 0 offen' % (v(V.WF), v(T), SWR))
        a('buffer_load_short_d16_hi %s, %s, %s, 0 offen' % (v(V.WF+1), v(T), SWI))
        a('s_mov_b64 exec, -1')
    def w_edge_rl(self):
        a = self.a
        for l in range(4):
            for im in range(2):
                a('v_readlane_b32 s%d, %s, %d' % (84+2*l+im, v(V.WF+im), l))
    def w_edge(self):
        a = self.a; T = V.T
        self.w_edge_rl()
        for i, (x, y, op) in enumerate(((84, 86, 'add'), (85, 87, 'sub'), (90, 88, 'add'), (91, 89, 'sub'))):
            a('v_mov_b32 %s, s%d' % (v(T), y))
            a('v_%s_f32 %s, s%d, %s' % (op, v(V.WF+i), x, v(T)))
            a('v_mul_f32 %s, 0.5, %s' % (v(V.WF+i), v(V.WF+i)))
        a('s_mov_b64 s[92:93], 1')
    def w_addr(self):
        a = self.a; T = V.T
        self.sigma_lane(T)
        a('v_lshrrev_b32 %s, 5, %s' % (v(T+1), v(V.lane)))
        a('v_lshlrev_b32 %s, 7, %s' % (v(T+1), v(T+1)))
        a('v_lshl_add_u32 %s, %s, 1, %s' % (v(T), v(T), v(T+1)))
        a('s_and_b32 %s, %s, 2' % (sD, sKP)); a('s_sub_u32 %s, %s, %s' % (sD, sWL, sD))
        a('v_add_u32 %s, %s, %s' % (v(V.WP), sD, v(T)))
        a('s_add_u32 %s, %s, %d' % (sD, sD, 1024-832))
        a('v_sub_u32 %s, %s, %s' % (v(V.WM), sD, v(T)))
    def w_read(self, rho, dst=None, swap=False):
        a = self.a; dst = V.W if dst is None else dst
        for im in range(2):
            if rho < 8: ad, off = V.WP, 64*self.wq(rho) + (2112 if swap else 0)
            else: ad, off = V.WM, 64*(13-self.wq(rho)) + (0 if swap else 2112)
            a('ds_read_u16_d16_hi %s, %s offset:%d' % (v(dst+16*im+rho), v(ad), off+1056*im))
    def w_fix(self, half):
        a = self.a
        for im in range(2):
            r = V.W+8*half+16*im
            a('v_cndmask_b32 %s, %s, %s, s[92:93]' % (v(r), v(r), v(V.WF+2*half+im)))
    def w_regs_early(self):
        a = self.a
        for rho in range(16): self.w_read(rho)
        a('s_waitcnt lgkmcnt(0)')
        self.w_fix(0); self.w_fix(1)
    def w_special(self):
        a = self.a; T = V.T
        l0, l1 = self.label('Wspec'), self.label('Wend')
        a('s_cmp_eq_u32 %s, 1' % sSpec)
        a('s_cbranch_scc1 %s' % l0)
        a(l1+':')
        def tail():
            X = V.DA
            a(l0+':')
            for rho in range(16): self.w_read(rho)
            for rho in range(16): self.w_read(rho, X, True)
            a('s_waitcnt lgkmcnt(0) vmcnt(0)')
            self.w_edge_rl()
            a('s_mov_b64 exec, 1')
            for r in (V.W+16, V.W+24, X+16, X+24): a('v_mov_b32 %s, 0' % v(r))
            a('v_mov_b32 %s, s90' % v(V.W+8)); a('v_mov_b32 %s, s88' % v(X+8))
            a('s_mov_b64 exec, -1')
            for i in range(32):
                a('v_add_f32 %s, %s, %s' % (v(T+3), v(V.W+i), v(X+i)))
                if (i & 15) < 8: a('v_sub_f32 %s, %s, %s' % (v(X+i), v(V.W+i), v(X+i)))
                else: a('v_sub_f32 %s, %s, %s' % (v(X+i), v(X+i), v(V.W+i)))
                a('v_mov_b32 %s, %s' % (v(V.W+i), v(T+3)))
            a('v_add_u32 %s, %d, %s' % (v(T+1), SCR_B, v(V.l16)))
            for i in range(8):
                a('ds_write_b128 %s, %s offset:%d' % (v(T+1), vr(X+4*i, 4), 1024*i))
            a('s_waitcnt lgkmcnt(0)')
            a('s_branch %s' % l1)
        self.tail.append(tail)

    def B_dup(self):
        a = self.a
        a('v_mov_b32 %s, %s' % (v(V.B+4), v(V.B))); a('v_mov_b32 %s, %s' % (v(V.B+5), v(V.B+1)))
        a('v_mov_b32 %s, %s' % (v(V.B+10), v(V.B+6))); a('v_mov_b32 %s, %s' % (v(V.B+11), v(V.B+7)))
    def gen_B(self, early=False, dup=True):
        a = self.a; T = V.T
        l0, l1 = self.label('Bspec'), self.label('Bend')
        a('s_cmp_eq_u32 %s, 0' % sT)
        a('s_cbranch_scc1 %s' % (l1 if early else l0))
        c, s = T+8, T+9
        a('v_lshrrev_b32 %s, 1, %s' % (v(T), v(V.n)))
        a('v_lshl_add_u32 %s, %s, 8, %s' % (v(T+1), v(T), sK0))
        a('v_cvt_f32_u32 %s, %s' % (v(T+1), v(T+1)))
        a('v_mul_f32 %s, %s, %s' % (v(T+1), lit(1/2048), v(T+1)))
        a('v_cvt_f32_u32 %s, %s' % (v(T+2), v(V.g)))
        a('v_add_f32 %s, %s, %s' % (v(T+2), v(T+2), v(T+2)))
        a('v_and_b32 %s, 1, %s' % (v(T+3), v(V.n)))
        a('v_cvt_f32_u32 %s, %s' % (v(T+3), v(T+3)))
        a('v_mul_f32 %s, %s, %s' % (v(T+4), lit(0.25), v(T+3)))
        a('v_mul_f32 %s, %s, %s' % (v(T+5), v(T+1), v(T+2)))
        for sbb in range(2):
            for half in range(2):
                a('v_%s_f32 %s, %s, %s' % ('sub' if half else 'add', v(T+6), v(T+5), v(T+4)))
                a('v_cos_f32 %s, %s' % (v(c), v(T+6)))
                a('v_sin_f32 %s, %s' % (v(s), v(T+6)))
                a('v_mul_f32 %s, %s, %s' % (v(c), lit(S11), v(c)))
                a('v_mul_f32 %s, %s, %s' % (v(s), lit(S11), v(s)))
                ng = '-' if half else ''
                a('v_cvt_pk_bf16_f32 %s, %s, %s%s' % (v(V.B+2*sbb+half), v(c), ng, v(s)))
                a('v_cvt_pk_bf16_f32 %s, -%s, %s%s' % (v(V.B+6+2*sbb+half), v(s), ng, v(c)))
            if sbb == 0: a('v_add_f32 %s, %s, %s' % (v(T+5), v(T+5), v(T+1)))
        a('v_cvt_f32_u32 %s, %s' % (v(T), v(T)))
        a('v_lshlrev_b32 %s, 31, %s' % (v(T+4), v(V.n)))
        a('v_xor_b32 %s, %s, %s' % (v(T), v(T), v(T+4)))
        a('v_xor_b32 %s, %s, %s' % (v(T+4), lit(S11), v(T+4)))
        a('v_lshl_add_u32 %s, %s, 9, %s' % (v(T+1), v(V.g), sK0))
        a('v_cvt_f32_u32 %s, %s' % (v(T+1), v(T+1)))
        a('v_mul_f32 %s, %s, %s' % (v(T+1), lit(1/2048), v(T+1)))
        a('v_mul_f32 %s, %s, %s' % (v(T+5), v(T+1), v(T)))
        a('v_fmac_f32 %s, 0.5, %s' % (v(T+5), v(T+3)))
        for ii in range(2):
            a('v_cos_f32 %s, %s' % (v(c), v(T+5)))
            a('v_sin_f32 %s, %s' % (v(s), v(T+5)))
            a('v_mul_f32 %s, %s, %s' % (v(T+6), v(T+4), v(c)))
            a('v_mul_f32 %s, %s, %s' % (v(T+7), v(T+4), v(s)))
            a('v_mul_f32 %s, %s, %s' % (v(c), lit(S11), v(c)))
            a('v_mul_f32 %s, %s, %s' % (v(s), lit(S11), v(s)))
            a('v_cvt_pk_bf16_f32 %s, %s, %s' % (v(V.Bp+2*ii), v(c), v(T+7)))
            a('v_cvt_pk_bf16_f32 %s, -%s, %s' % (v(V.Bp+4+2*ii), v(s), v(T+6)))
            a('v_cvt_pk_bf16_f32 %s, -%s, %s' % (v(V.Bp+2*ii+1), v(s), v(T+6)))
            a('v_cvt_pk_bf16_f32 %s, -%s, -%s' % (v(V.Bp+4+2*ii+1), v(c), v(T+7)))
            if ii == 0: a('v_fmac_f32 %s, %s, %s' % (v(T+5), lit(0.125), v(T)))
        a(l1+':')
        if dup: self.B_dup()
        def tail():
            a(l0+':')
            if not early: self.spec_load(); a('s_waitcnt vmcnt(0)')
            a('s_branch %s' % l1)
        if not early: self.tail.append(tail)
    def spec_load(self):
        a = self.a
        a('s_getpc_b64 s[28:29]')
        a('s_add_u32 s28, s28, spec_tab@rel32@lo+4')
        a('s_addc_u32 s29, s29, spec_tab@rel32@hi+12')
        a('global_load_dwordx4 %s, %s, s[28:29]' % (vr(V.B, 4), v(V.l16)))
        a('global_load_dwordx4 %s, %s, s[28:29] offset:1024' % (vr(V.B+6, 4), v(V.l16)))
        a('global_load_dwordx4 %s, %s, s[28:29] offset:2048' % (vr(V.Bp, 4), v(V.l16)))
        a('global_load_dwordx4 %s, %s, s[28:29] offset:3072' % (vr(V.Bp+4, 4), v(V.l16)))
    def spec_early(self):
        a = self.a
        def g():
            self.srds()
            a('s_mov_b32 %s, 0' % sDP); a('s_mov_b32 %s, %d' % (sDM, 1024*1026)); a('s_mov_b32 %s, %d' % (sWL, WL))
            self.w_dma()
        def f():
            self.spec_load(); self.cond(sW, 0, g)
        self.cond(sT, 0, f)

    def spec_table(self):
        tab = np.zeros((4, 64, 4, 2))
        for lane in range(64):
            m, g = lane & 15, lane >> 4
            for r in range(4):
                t, c = m >> 1, m & 1; sb, hf = 2*g + (r >> 1), r & 1
                if hf == (t & 1):
                    th = 2*math.pi*sb*t/16
                    tab[0, lane, r, c] = (2*S11 if t else S11)*math.cos(th)
                    tab[1, lane, r, c] = -2*S11*math.sin(th) if t else S11*(-1.0)**sb
                sb, hf = m >> 1, m & 1; t, c = 2*g + (r >> 1), r & 1
                if hf == (t & 1):
                    th = 2*math.pi*sb*t/16
                    if t: cre, cim = 2*math.cos(th), -2*math.sin(th)
                    else: cre, cim = 1.0, (-1.0)**sb
                    pl = 2 + (1 - c)
                    tab[pl, lane, r, 0] = S11*cim
                    tab[pl, lane, r, 1] = S11*cre
        tab[abs(tab) < 1e-12] = 0
        out = ['.p2align 6', '.type spec_tab,@object', 'spec_tab:']
        w = [bf16bits(tab[p, l, r, 0]) | bf16bits(tab[p, l, r, 1]) << 16 for p in range(4) for l in range(64) for r in range(4)]
        for i in range(0, len(w), 8):
            out.append('.long ' + ','.join('0x%x' % x for x in w[i:i+8]))
        return '\n'.join(out)

    def p1_load(self):
        a = self.a; T = V.T
        a('v_bfe_u32 %s, %s, 3, 1' % (v(T), v(V.lane)))
        a('v_lshlrev_b32 %s, 14, %s' % (v(T), v(T)))
        a('v_lshl_add_u32 %s, %s, 20, %s' % (v(T), v(V.g), v(T)))
        a('v_and_b32 %s, 0x70, %s' % (v(T+1), v(V.l16)))
        a('v_add_u32 %s, %s, %s' % (v(V.Xoff), v(T), v(T+1)))
        a('s_lshl_b32 %s, %s, 15' % (sO[0], sW))
        a('s_lshl_b32 %s, %s, 11' % (sA, sSB)); a('s_add_u32 %s, %s, %s' % (sO[0], sO[0], sA))
        a('s_lshl_b32 %s, %s, 7' % (sA, sCB)); a('s_add_u32 %s, %s, %s' % (sO[0], sO[0], sA))
        for r in range(1, 4): a('s_add_u32 %s, %s, 0x%x' % (sO[r], sO[0], r*262144))
    def p1_issue(self):
        a = self.a
        for r in range(4):
            a('buffer_load_dwordx4 %s, %s, %s, %s offen %s' % (vr(V.L+4*r, 4), v(V.Xoff), SX, sO[r], self.o['ldx']))
    def p1_addrs(self):
        a = self.a; T = V.T
        a('v_xor_b32 %s, %s, %s' % (v(T), sSB, v(V.lane)))
        a('v_and_b32 %s, 1, %s' % (v(T), v(T)))
        a('v_mul_u32_u24 %s, 16448, %s' % (v(T), v(T)))
        a('v_lshl_add_u32 %s, %s, 12, %s' % (v(T), v(V.g), v(T)))
        a('v_and_b32 %s, 14, %s' % (v(T+1), v(V.lane)))
        a('v_lshl_add_u32 %s, %s, 3, %s' % (v(T), v(T+1), v(T)))
        a('s_lshr_b32 %s, %s, 2' % (sA, sW)); a('s_lshl_b32 %s, %s, 9' % (sA, sA))
        a('s_and_b32 %s, %s, 1' % (sB, sW)); a('s_lshl_b32 %s, %s, 8' % (sB, sB)); a('s_add_u32 %s, %s, %s' % (sA, sA, sB))
        a('s_and_b32 %s, %s, 2' % (sB, sW)); a('s_lshl_b32 %s, %s, 6' % (sB, sB)); a('s_add_u32 %s, %s, %s' % (sA, sA, sB))
        if R0: a('s_add_u32 %s, %s, %d' % (sA, sA, R0))
        a('v_add_u32 %s, %s, %s' % (v(V.X0w), sA, v(T)))
        self.tr_lane(T, 512, 128)
        a('s_lshl_b32 %s, %s, 10' % (sA, sW))
        a('s_sub_u32 %s, 0x4000, %s' % (sB, sA))
        a('s_cmp_eq_u32 %s, 0' % sW)
        a('s_cselect_b32 %s, 0x2000, %s' % (sB, sB))
        if R0: a('s_add_u32 %s, %s, %d' % (sA, sA, R0)); a('s_add_u32 %s, %s, %d' % (sB, sB, R0))
        a('v_add_u32 %s, %s, %s' % (v(V.X0r0), sA, v(T)))
        a('v_add_u32 %s, %s, %s' % (v(V.X0r1), sB, v(T)))
    def tr_lane(self, dst, g1s, g0s, b3s=64):
        a = self.a; t = V.T+7
        sh = lambda x: int(math.log2(x))
        a('v_and_b32 %s, 0x30, %s' % (v(dst), v(V.l16)))
        for bit, st in ((2, 8), (3, b3s), (4, g0s), (5, g1s)):
            a('v_bfe_u32 %s, %s, %d, 1' % (v(t), v(V.lane), bit))
            a('v_lshl_add_u32 %s, %s, %d, %s' % (v(dst), v(t), sh(st), v(dst)))

    def mf16(self, d, A, B):
        self.a('v_mfma_f32_16x16x32_bf16 %s, %s, %s, 0' % (vr(d, 4), vr(A, 4), vr(B, 4)))
    def cvt(self, d, lo, hi):
        self.a('v_cvt_pk_bf16_f32 %s, %s, %s' % (v(d), v(lo), v(hi)))

    def p1_compute(self, nafter, hook=None, hook2=None, hook3=None, hook4=None, hook5=None):
        a = self.a; O, L, D = V.O, V.L, V.DA
        for r in range(4):
            a('s_waitcnt vmcnt(%d)' % (nafter + 3 - r))
            if r == 3: self.stamp()
            for t in range(4):
                a('v_mov_b32 %s, %s' % (v(O+4*t+r), v(L+4*r+t)))
        for t in range(4):
            self.mf16(D+4*t, V.F16, O+4*t)
            self.mf16(D+16+4*t, V.F16+4, O+4*t)
        if hook: hook()
        P = V.DB
        for r in range(4):
            self.cvt(P+4*r, D+r, D+4+r); self.cvt(P+4*r+2, D+16+r, D+20+r)
        for r in range(4):
            self.cvt(P+4*r+1, D+8+r, D+12+r); self.cvt(P+4*r+3, D+24+r, D+28+r)
            a('ds_write_b128 %s, %s offset:%d' % (v(V.X0w), vr(P+4*r, 4), 1024*r))
        self.mark('g1a')
        if hook5: hook5()
        self.mark('g1b')
        a('s_waitcnt lgkmcnt(0)')
        a('s_barrier')
        if hook4: hook4()
        for sel in range(2):
            for tau in range(2):
                for ii in range(2):
                    a('ds_read_b64_tr_b16 %s, %s offset:%d' % (vr(O+4*(2*sel+tau)+2*ii, 2), v(V.X0r1 if sel else V.X0r0), tau*16448+ii*256))
        if hook2: hook2()
        if hook3: hook3()
        for r in range(4): a('s_add_u32 %s, %s, 0x%x' % (sO[r], self.est(), self.ubase(0) + r*self.tstride()))
        for ti in range(4):
            a('s_waitcnt lgkmcnt(%d)' % (6-2*ti))
            self.mf16(D+4*ti, V.M2+8*(ti >> 1), O+4*ti)
            self.mf16(D+16+4*ti, V.M2+8*(ti >> 1)+4, O+4*ti)
        st = lambda i: a('buffer_store_dwordx4 %s, %s, %s, %s offen %s' % (vr(P+4*i, 4), v(V.Est), SWS, sO[i], self.o['st1']))
        def normal():
            for i in range(4):
                for tau in range(2): self.cvt(P+4*i+2*tau, D+4*tau+i, D+16+4*tau+i)
            for i in range(4):
                for tau in range(2): self.cvt(P+4*i+2*tau+1, D+4*(2+tau)+i, D+16+4*(2+tau)+i)
                st(i)
        def w0():
            for i in range(4):
                ts, eb = i >> 1, i & 1
                for tau in range(2):
                    for sg in range(2):
                        x = 4*(2*ts+tau)+2*eb+sg
                        self.cvt(P+4*i+2*tau+sg, D+x, D+16+x)
                st(i)
        self.ifelse(sW, 0, w0, normal)

    def p2_addrs(self):
        a = self.a; T = V.T
        a('v_lshlrev_b32 %s, 4, %s' % (v(T), v(V.n)))
        a('v_lshl_add_u32 %s, %s, 13, %s' % (v(T), v(V.g), v(T)))
        a('s_lshl_b32 %s, %s, 9' % (sA, sW)); a('s_add_u32 %s, %s, %d' % (sA, sA, R1))
        a('v_add_u32 %s, %s, %s' % (v(V.X1w), sA, v(T)))
    def p2_addrs2(self):
        a = self.a; T = V.T
        self.tr_lane(T, 256, 64, 128)
        a('s_lshl_b32 %s, %s, 12' % (sA, sW)); a('s_add_u32 %s, %s, %d' % (sA, sA, R1))
        a('v_add_u32 %s, %s, %s' % (v(V.X1r), sA, v(T)))
        a('v_and_b32 %s, 16, %s' % (v(T), v(V.l16)))
        for bit, st in ((1, 16448), (2, 8224)):
            a('v_bfe_u32 %s, %s, %d, 1' % (v(T+1), v(V.lane), bit))
            a('v_mul_u32_u24 %s, %d, %s' % (v(T+1), st, v(T+1)))
            a('v_add_u32 %s, %s, %s' % (v(T), v(T), v(T+1)))
        a('v_bfe_u32 %s, %s, 3, 2' % (v(T+1), v(V.lane)))
        a('v_lshl_add_u32 %s, %s, 11, %s' % (v(T), v(T+1), v(T)))
        a('v_and_b32 %s, 32, %s' % (v(T+1), v(V.lane)))
        a('v_add_u32 %s, %s, %s' % (v(T), v(T), v(T+1)))
        a('s_lshr_b32 %s, %s, 2' % (sA, sW)); a('s_lshl_b32 %s, %s, 9' % (sA, sA))
        a('s_and_b32 %s, %s, 1' % (sB, sW)); a('s_lshl_b32 %s, %s, 8' % (sB, sB)); a('s_add_u32 %s, %s, %s' % (sA, sA, sB))
        a('s_and_b32 %s, %s, 2' % (sB, sW)); a('s_lshl_b32 %s, %s, 6' % (sB, sB)); a('s_add_u32 %s, %s, %s' % (sA, sA, sB))
        if R0: a('s_add_u32 %s, %s, %d' % (sA, sA, R0))
        a('v_add_u32 %s, %s, %s' % (v(V.X2w), sA, v(T)))
        self.tr_lane(T, 512, 128)
        a('s_and_b32 %s, %s, 1' % (sA, sW)); a('s_lshl_b32 %s, %s, 11' % (sA, sA))
        a('s_bfe_u32 %s, %s, 0x10001' % (sB, sW)); a('s_mul_i32 %s, %s, 16448' % (sB, sB)); a('s_add_u32 %s, %s, %s' % (sA, sA, sB))
        a('s_lshr_b32 %s, %s, 2' % (sB, sW)); a('s_lshl_b32 %s, %s, 12' % (sB, sB)); a('s_add_u32 %s, %s, %s' % (sA, sA, sB))
        if R0: a('s_add_u32 %s, %s, %d' % (sA, sA, R0))
        a('v_add_u32 %s, %s, %s' % (v(V.X2r), sA, v(T)))

    def p2_issue(self):
        a = self.a
        a('s_add_u32 %s, %s, 0x%x' % (sA, sEld, self.ubase(0)))
        for q in range(4):
            a('buffer_load_dwordx4 %s, %s, %s, %s offen offset:%d %s' % (vr(V.L+12*(q >> 1)+4*(q & 1), 4), self.eld(q), SWS, sA, 256*q, self.o['ld1']))

    def mf32(self, d, i, dataA):
        for pl in range(2):
            M = vr(V.F32+16*pl+4*i, 4); X = vr(V.O+4*i, 4)
            A, B = (X, M) if dataA else (M, X)
            D = vr(d+16*pl, 16)
            self.a('v_mfma_f32_32x32x16_bf16 %s, %s, %s, %s' % (D, A, B, D if i else '0'))

    def cmul_stage(self, src, dst, dataA, coef, kind, prio=None, late=False):
        a = self.a; T = V.T
        if prio is not None and self.o['prio']: a('s_setprio %d' % prio)
        if kind == 'tw' and self.o['shear']:
            for i in range(4):
                for st in range(3):
                    for r in range(4):
                        rho = 4*i+r
                        x, y = v(src+rho), v(src+16+rho)
                        if st == 1: a('v_fmac_f32 %s, %s, %s' % (y, v(coef+16+rho), x))
                        else: a('v_fmac_f32 %s, %s, %s' % (x, v(coef+rho), y))
                for r in range(4): self.cvt(V.O+4*i+r, src+4*i+r, src+16+4*i+r)
                self.mf32(dst, i, dataA)
            return
        if late:
            a('s_waitcnt vmcnt(2)')
            for rho in range(8): self.w_read(rho)
        for i in range(4):
            if late:
                if i == 0: a('s_waitcnt lgkmcnt(8)'); self.w_fix(0)
                if i == 1:
                    a('s_waitcnt vmcnt(0)')
                    for rho in range(8, 12): self.w_read(rho)
                    a('s_waitcnt lgkmcnt(8)')
                if i == 2:
                    for rho in range(12, 16): self.w_read(rho)
                    a('s_waitcnt lgkmcnt(8)'); self.w_fix(1)
                if i == 3: a('s_waitcnt lgkmcnt(0)')
            for r in range(4):
                rho = 4*i+r
                x, y = v(src+rho), v(src+16+rho)
                c, s = v(coef+rho), v(coef+16+rho)
                t0, t1 = v(T+2*r), v(T+2*r+1)
                a('v_mul_f32 %s, %s, %s' % (t0, x, c))
                a('v_mul_f32 %s, %s, %s' % (t1, y, c))
            for r in range(4):
                rho = 4*i+r
                x, y = v(src+rho), v(src+16+rho)
                c, s = v(coef+rho), v(coef+16+rho)
                t0, t1 = v(T+2*r), v(T+2*r+1)
                if kind == 'tw' or rho >= 8:
                    a('v_fmac_f32 %s, %s, %s' % (t0, y, s))
                    a('v_fma_f32 %s, -%s, %s, %s' % (t1, x, s, t1))
                else:
                    a('v_fma_f32 %s, -%s, %s, %s' % (t0, y, s, t0))
                    a('v_fmac_f32 %s, %s, %s' % (t1, x, s))
            for r in range(4):
                if kind == 'tw': self.cvt(V.O+4*i+r, T+2*r, T+2*r+1)
                else: self.cvt(V.O+4*i+r, T+2*r+1, T+2*r)
            self.mf32(dst, i, dataA)

    def p2_compute(self, wl=None):
        a = self.a; O, L, D, T = V.O, V.L, V.DA, V.T
        late = wl is not None
        na = 0
        for cbb in range(2):
            b = L+12*cbb
            a('s_waitcnt vmcnt(%d)' % (na+3-2*cbb))
            a('v_mov_b32 %s, %s' % (v(b+8), v(b))); a('v_mov_b32 %s, %s' % (v(b+9), v(b+1)))
            a('s_waitcnt vmcnt(%d)' % (na+2-2*cbb))
            if cbb: self.stamp(); self.fstamp()
            for jj2 in (1, 0):
                ti = 2*cbb+jj2
                op = b+2 if jj2 else b+6
                mo = 0 if jj2 else 2
                self.mf16(D+4*ti, V.B+mo, op)
                self.mf16(D+16+4*ti, V.B+6+mo, op)
        for cbb in range(2):
            for k1b in range(2):
                P = O+4*(2*cbb+k1b)
                for pl in range(2):
                    for jj2 in (1, 0):
                        x = D+16*pl+4*(2*cbb+jj2)+2*k1b
                        self.cvt(P+2*pl+jj2, x, x+1)
                a('ds_write_b128 %s, %s offset:%d' % (v(V.X1w), vr(P, 4), k1b*4096+cbb*256))
        self.fstamp()
        a('s_waitcnt lgkmcnt(0)')
        self.fstamp()
        if self.o.get('fine'): a('s_waitcnt lgkmcnt(0)')
        a('s_barrier')
        if self.o['prio']: a('s_setprio 3')
        for i in range(4):
            for ii in range(2):
                a('ds_read_b64_tr_b16 %s, %s offset:%d' % (vr(O+4*i+2*ii, 2), v(V.X1r), ii*1024+(i & 1)*512+(i >> 1)*2048))
        for i in range(4):
            if late and i in (0, 2): self.wat('postX1', (i, i+1))
            a('s_waitcnt lgkmcnt(%d)' % (6-2*i))
            self.mf32(V.DA, i, True)
        self.fstamp()
        if late: self.wat('tw1')
        self.cmul_stage(V.DA, V.DB, False, V.TW, 'tw', 2)
        self.fstamp()
        l0, l1 = self.label('PWspec'), self.label('PWend')
        a('s_cmp_eq_u32 %s, 1' % sSpec)
        a('s_cbranch_scc1 %s' % l0)
        if self.o.get('fine'): a('s_waitcnt lgkmcnt(0)')
        self.cmul_stage(V.DB, V.DA, True, V.W, 'w', 1, late)
        a(l1+':')
        self.fstamp()
        self.cmul_stage(V.DA, V.DB, True, V.TW, 'tw', 0)
        self.fstamp()
        D = V.DB
        rho = lambda jj3, jj1, jj2, c: 4*(2*jj3+jj1)+2*jj2+c
        for c in range(2):
            for jj1 in range(2):
                P = O+4*(2*c+jj1)
                for pl in range(2):
                    for jj3 in range(2):
                        self.cvt(P+2*pl+jj3, D+16*pl+rho(jj3, jj1, 0, c), D+16*pl+rho(jj3, jj1, 1, c))
                a('ds_write_b128 %s, %s offset:%d' % (v(V.X2w), vr(P, 4), c*64+jj1*1024))
                if self.o['ib2'] and not self.o['ib3'] and c == 0 and jj1 == 0: self.major_read()
        self.fstamp()
        a('s_waitcnt lgkmcnt(0)')
        if self.o['ib2'] and not self.o['ib3']: self.major_use()
        self.fstamp()
        if self.o.get('fine'): a('s_waitcnt lgkmcnt(0)')
        a('s_barrier')
        for cbb in range(2):
            for jj1 in range(2):
                for ii in range(2):
                    a('ds_read_b64_tr_b16 %s, %s offset:%d' % (vr(O+4*(2*cbb+jj1)+2*ii, 2), v(V.X2r), ii*256+jj1*1024+cbb*8224))
        for r in range(4): a('s_add_u32 %s, %s, 0x%x' % (sO[r], self.est(), self.ubase(1) + r*self.tstride()))
        D = V.DA
        for ti in range(4):
            a('s_waitcnt lgkmcnt(%d)' % (6-2*ti))
            self.mf16(D+4*ti, V.Bp, O+4*ti)
            self.mf16(D+16+4*ti, V.Bp+4, O+4*ti)
        self.fstamp()
        P = V.DB
        for q in range(4):
            cbb, sbb = q >> 1, q & 1
            for jj1 in range(2):
                for hf in range(2):
                    x = 4*(2*cbb+jj1)+2*sbb+hf
                    self.cvt(P+4*q+2*jj1+hf, D+x, D+16+x)
            a('buffer_store_dwordx4 %s, %s, %s, %s offen %s' % (vr(P+4*q, 4), v(V.Est), SWS, sO[q], self.o['st2']))
        self.fstamp()
        if self.o.get('fine'):
            a('s_memrealtime s[%d:%d]' % (sTS+2*self.nts, sTS+2*self.nts+1)); self.nts += 1
        def tail():
            C = V.DB; X = V.DA
            a(l0+':')
            self.sigma_lane(T)
            a('v_lshrrev_b32 %s, 5, %s' % (v(T+1), v(V.lane)))
            a('v_lshlrev_b32 %s, 9, %s' % (v(T+1), v(T+1)))
            a('v_lshl_add_u32 %s, %s, 2, %s' % (v(T+2), v(T), v(T+1)))
            a('v_add_u32 %s, %d, %s' % (v(T+2), SCR, v(T+2)))
            a('v_add_u32 %s, 128, %s' % (v(T+3), v(T+2)))
            a('v_sub_u32 %s, 32, %s' % (v(T+4), v(T)))
            a('v_lshrrev_b32 %s, 5, %s' % (v(T+5), v(T+4)))
            a('v_and_b32 %s, 31, %s' % (v(T+4), v(T+4)))
            a('v_lshlrev_b32 %s, 2, %s' % (v(T+4), v(T+4)))
            a('v_lshl_add_u32 %s, %s, 8, %s' % (v(T+4), v(T+5), v(T+4)))
            a('v_sub_u32 %s, %s, %s' % (v(T+4), v(T+4), v(T+1)))
            a('v_add_u32 %s, %d, %s' % (v(T+4), SCR + 2*256, v(T+4)))
            a('v_add_u32 %s, 128, %s' % (v(T+5), v(T+4)))
            a('v_add_u32 %s, %d, %s' % (v(T+6), SCR_B, v(V.l16)))
            qs = lambda rho: sigma(8*(rho >> 2) + (rho & 3))
            for pl in range(2):
                for rho in range(0, 16, 2):
                    a('ds_write2st64_b32 %s, %s, %s offset0:%d offset1:%d' % (v(T+2+pl), v(C+16*pl+rho), v(C+16*pl+rho+1), qs(rho), qs(rho+1)))
                a('ds_write_b32 %s, %s offset:%d' % (v(T+2+pl), v(C+16*pl), 32*256))
            a('s_waitcnt lgkmcnt(0)')
            t0, t1 = v(T+8), v(T+9)
            for half in range(2):
                for pl in range(2):
                    for k in range(0, 8, 2):
                        rho_ = 8*half+k
                        a('ds_read2st64_b32 %s, %s offset0:%d offset1:%d' % (vr(X+8*pl+k, 2), v(T+4+pl), 29-qs(rho_), 29-qs(rho_+1)))
                    for k in range(2):
                        a('ds_read_b128 %s, %s offset:%d' % (vr(X+16+8*pl+4*k, 4), v(T+6), 1024*(4*pl+2*half+k)))
                a('s_waitcnt lgkmcnt(0)')
                for k in range(8):
                    rho_ = 8*half+k
                    x, y = v(C+rho_), v(C+16+rho_); ar, ai = v(V.W+rho_), v(V.W+16+rho_)
                    p, q_ = v(X+k), v(X+8+k); br, bi = v(X+16+k), v(X+24+k)
                    ng, ps = ('', '-') if half else ('-', '')
                    a('v_mul_f32 %s, %s, %s' % (t0, x, ar))
                    a('v_mul_f32 %s, %s, %s' % (t1, y, ar))
                    a('v_fma_f32 %s, %s%s, %s, %s' % (t0, ng, y, ai, t0))
                    a('v_fma_f32 %s, %s%s, %s, %s' % (t1, ps, x, ai, t1))
                    a('v_fmac_f32 %s, %s, %s' % (t0, p, br))
                    a('v_fma_f32 %s, -%s, %s, %s' % (t1, q_, br, t1))
                    a('v_fma_f32 %s, %s%s, %s, %s' % (t0, ps, q_, bi, t0))
                    a('v_fma_f32 %s, %s%s, %s, %s' % (t1, ps, p, bi, t1))
                    self.cvt(O+rho_, T+9, T+8)
            for i in range(4): self.mf32(V.DA, i, True)
            a('s_nop 11')
            a('s_branch %s' % l1)
        self.tail.append(tail)

    def p3_addrs(self):
        a = self.a; T = V.T
        a('v_and_b32 %s, 16, %s' % (v(T), v(V.lane)))
        for bit, st in ((0, 32), (3, 4096), (5, 1024)):
            a('v_bfe_u32 %s, %s, %d, 1' % (v(T+1), v(V.lane), bit))
            a('v_lshl_add_u32 %s, %s, %d, %s' % (v(T), v(T+1), int(math.log2(st)), v(T)))
        for bit, st in ((1, 8208), (2, 16448)):
            a('v_bfe_u32 %s, %s, %d, 1' % (v(T+1), v(V.lane), bit))
            a('v_mul_u32_u24 %s, %d, %s' % (v(T+1), st, v(T+1)))
            a('v_add_u32 %s, %s, %s' % (v(T), v(T), v(T+1)))
        a('s_sub_u32 %s, 16, %s' % (sC, sW))
        a('s_cmp_eq_u32 %s, 0' % sW)
        a('s_cselect_b32 %s, 8, %s' % (sC, sC))
        for kl, dst in ((sW, V.X3w0), (sC, V.X3w1)):
            a('s_and_b32 %s, %s, 9' % (sA, kl)); a('s_lshl_b32 %s, %s, 6' % (sA, sA))
            a('s_and_b32 %s, %s, 2' % (sB, kl)); a('s_lshl_b32 %s, %s, 7' % (sB, sB)); a('s_add_u32 %s, %s, %s' % (sA, sA, sB))
            a('s_and_b32 %s, %s, 4' % (sB, kl)); a('s_lshl_b32 %s, %s, 5' % (sB, sB)); a('s_add_u32 %s, %s, %s' % (sA, sA, sB))
            a('s_add_u32 %s, %s, %d' % (sA, sA, R1))
            a('v_add_u32 %s, %s, %s' % (v(dst), sA, v(T)))
        self.tr_lane(T, 512, 128)
        a('s_and_b32 %s, %s, 1' % (sA, sW)); a('s_mul_i32 %s, %s, 8208' % (sA, sA))
        a('s_bfe_u32 %s, %s, 0x10001' % (sB, sW)); a('s_mul_i32 %s, %s, 16448' % (sB, sB)); a('s_add_u32 %s, %s, %s' % (sA, sA, sB))
        a('s_lshr_b32 %s, %s, 2' % (sB, sW)); a('s_lshl_b32 %s, %s, 12' % (sB, sB)); a('s_add_u32 %s, %s, %s' % (sA, sA, sB))
        a('s_add_u32 %s, %s, %d' % (sA, sA, R1))
        a('v_add_u32 %s, %s, %s' % (v(V.X3r), sA, v(T)))
        a('v_bfe_u32 %s, %s, 3, 1' % (v(T), v(V.lane)))
        a('v_lshlrev_b32 %s, 15, %s' % (v(T), v(T)))
        a('v_lshl_add_u32 %s, %s, 21, %s' % (v(T), v(V.g), v(T)))
        a('v_and_b32 %s, 0x70, %s' % (v(T+1), v(V.l16)))
        a('v_add_u32 %s, %s, %s' % (v(V.Ooff), v(T), v(T+1)))
    def p3_soff(self):
        a = self.a
        a('s_lshl_b32 %s, %s, 16' % (sO[0], sW))
        a('s_lshl_b32 %s, %s, 12' % (sA, sSB)); a('s_add_u32 %s, %s, %s' % (sO[0], sO[0], sA))
        a('s_lshl_b32 %s, %s, 7' % (sA, sCB)); a('s_add_u32 %s, %s, %s' % (sO[0], sO[0], sA))
        a('s_lshl_b32 %s, %s, 11' % (sA, sP)); a('s_add_u32 %s, %s, %s' % (sO[0], sO[0], sA))
        for r in range(1, 4): a('s_add_u32 %s, %s, 0x%x' % (sO[r], sO[0], r*524288))
    def p3_issue(self):
        a = self.a
        a('s_add_u32 %s, %s, 0x%x' % (sA, sEld, self.ubase(1)))
        for q in range(4):
            a('buffer_load_dwordx4 %s, %s, %s, %s offen offset:%d %s' % (vr(V.L+4*q, 4), self.eld(q, 1), SWS, sA, 256*q, self.o['ld2']))
    def p3_compute(self):
        a = self.a; O, L, D = V.O, V.L, V.DA
        def normal():
            for i in range(4):
                a('s_waitcnt vmcnt(%d)' % (3-i))
                for sel in range(2):
                    for col in range(2):
                        a('v_mov_b32 %s, %s' % (v(O+4*(2*sel+col)+i), v(L+4*i+2*col+sel)))
        def w0():
            for i in range(4):
                ts, eb = i >> 1, i & 1
                a('s_waitcnt vmcnt(%d)' % (3-i))
                for col in range(2):
                    for sg in range(2):
                        a('v_mov_b32 %s, %s' % (v(O+4*(2*ts+col)+2*eb+sg), v(L+4*i+2*col+sg)))
        self.ifelse(sW, 0, w0, normal, True)
        self.stamp()
        for ti in range(4):
            self.mf16(D+4*ti, O+4*ti, V.M2+8*(ti >> 1))
            self.mf16(D+16+4*ti, O+4*ti, V.M2+8*(ti >> 1)+4)
        P = V.DB
        for ti in range(4):
            for pl in range(2):
                for k in range(2):
                    x = D+16*pl+4*ti+2*k
                    self.cvt(P+4*ti+2*pl+k, x, x+1)
            a('ds_write_b128 %s, %s offset:%d' % (v(V.X3w1 if ti >> 1 else V.X3w0), vr(P+4*ti, 4), (ti & 1)*2048))
        a('s_waitcnt lgkmcnt(0)')
        a('s_barrier')
        for t in range(4):
            for ii in range(2):
                a('ds_read_b64_tr_b16 %s, %s offset:%d' % (vr(O+4*t+2*ii, 2), v(V.X3r), ii*256+t*1024))
        for t in range(4):
            a('s_waitcnt lgkmcnt(%d)' % (6-2*t))
            self.mf16(D+4*t, V.F16, O+4*t)
            self.mf16(D+16+4*t, V.F16+4, O+4*t)
        for t in range(3):
            for r in range(4): self.cvt(P+4*r+t, D+16+4*t+r, D+4*t+r)
        for r in range(4):
            self.cvt(P+4*r+3, D+16+12+r, D+12+r)
            a('buffer_store_dwordx4 %s, %s, %s, %s offen %s' % (vr(P+4*r, 4), v(V.Ooff), SOUT, sO[r], self.o['sto']))

    def flush_tail(self):
        t, self.tail = self.tail, []
        for f in t: f()

    def kernel_head(self, name):
        self.a.raw('.globl %s\n.p2align 12\n.p2align 8\n.type %s,@function\n%s:' % (name, name, name))
    def kd(self, name):
        return '''.p2align 6
.amdhsa_kernel %s
  .amdhsa_next_free_vgpr %d
  .amdhsa_next_free_sgpr 102
  .amdhsa_accum_offset %d
  .amdhsa_group_segment_fixed_size 0
  .amdhsa_kernarg_size 72
  .amdhsa_user_sgpr_count 2
  .amdhsa_user_sgpr_kernarg_segment_ptr 1
  .amdhsa_system_sgpr_workgroup_id_x 1
.end_amdhsa_kernel''' % (name, NVGPR, (NVGPR+3)//4*4)

    def build_three(self):
        a = self.a
        names = ['gf_p1_kernel', 'gf_p2_kernel', 'gf_p3_kernel']
        self.kernel_head(names[0]); end = self.label('end')
        self.prologue(end); self.p1_load(); a('s_waitcnt lgkmcnt(0)'); self.p1_issue()
        self.ex_addrs(); self.p1_addrs(); self.gen_F16(); self.gen_M2()
        self.p1_compute(0)
        if self.o['ts']: self.stamp(); a('s_waitcnt vmcnt(0)'); self.stamp(); self.dump_stamps(0)
        a(end+':'); a('s_endpgm'); self.flush_tail()
        self.kernel_head(names[1]); end = self.label('end')
        self.prologue(end); self.ex_addrs(); self.calc_k0(); a('s_waitcnt lgkmcnt(0)')
        self.w_dma(); self.p2_addrs(); self.gen_B(); self.gen_F32TW()
        a('s_waitcnt vmcnt(0)'); self.w_regs(); a('s_waitcnt lgkmcnt(0)')
        self.p2_issue(); self.p2_compute()
        if self.o['ts']: self.stamp(); a('s_waitcnt vmcnt(0)'); self.stamp(); self.dump_stamps(8)
        a(end+':'); a('s_endpgm'); self.flush_tail()
        self.kernel_head(names[2]); end = self.label('end')
        self.prologue(end); self.ex_addrs(); a('s_waitcnt lgkmcnt(0)'); self.p3_issue()
        self.p3_addrs(); self.p3_soff(); self.gen_F16(); self.gen_M3()
        self.p3_compute()
        if self.o['ts']: self.stamp(); a('s_waitcnt vmcnt(0)'); self.stamp(); self.dump_stamps(16)
        a(end+':'); a('s_endpgm'); self.flush_tail()
        launch = ''.join('; @launch kernel=%s grid=(256,1,1) block=(512,1,1) lds=%d\n' % (n, LDS_TOTAL) for n in names)
        return self.finish(launch, names)

    def flag_addrs(self):
        a = self.a
        if self.o['ib']:
            a('s_lshr_b32 %s, %s, 4' % (sB, sT))
            for dst, wp, gr in ((sF, sW, sB), (sE, sB, sW)):
                a('s_lshl3_add_u32 %s, %s, %s' % (sA, sP, wp)); a('s_lshl_b32 %s, %s, 21' % (sA, sA))
                a('s_lshl_b32 %s, %s, 10' % (sC, gr)); a('s_add_u32 %s, %s, %s' % (sA, sA, sC))
                a('s_add_u32 %s, %s, 0x%x' % (dst, sA, WS_FLAG_IB))
            a('s_and_b32 %s, %s, 15' % (sA, sT)); a('s_add_u32 %s, %s, 8' % (sA, sA))
            a('s_lshl_b32 %s, %s, %s' % (sInc, sCh, sA)); a('s_add_u32 %s, %s, 1' % (sInc, sInc))
            a('v_lshl_add_u32 %s, %s, 2, 8' % (v(V.dummy), v(V.g)))
            return
        if self.o['fl'] != '':
            pol = int(self.o['fl'][1]); mode = self.o['fl'][0]
            a('s_lshr_b32 %s, %s, 4' % (sB, sT))
            for dst, wp, gr in ((sF, sW, sB), (sE, sB, sW)):
                a('s_lshl3_add_u32 %s, %s, %s' % (sA, sP, wp))
                if mode == 'x': a('s_xor_b32 %s, %s, %d' % (sC, sP, pol))
                else: a('s_lshr_b32 %s, %s, 2' % (sC, wp)); a('s_xor_b32 %s, %s, %d' % (sC, sC, pol))
                a('s_lshl1_add_u32 %s, %s, %s' % (sA, sA, sC))
                a('s_lshl3_add_u32 %s, %s, %s' % (sA, sA, gr))
                a('s_lshl_b32 %s, %s, 10' % (sA, sA))
                a('s_add_u32 %s, %s, 0x%x' % (dst, sA, WS_FLAG))
            return
        fs = int(self.o['fstride'])
        a('s_lshl_b32 %s, %s, %d' % (sA, sP, fs+6)); a('s_add_u32 %s, %s, 0x%x' % (sA, sA, WS_FLAG))
        a('s_lshr_b32 %s, %s, 4' % (sB, sT))
        a('s_lshl_b32 %s, %s, %d' % (sF, sW, fs+3)); a('s_add_u32 %s, %s, %s' % (sF, sF, sA))
        a('s_lshl_b32 %s, %s, %d' % (sC, sB, fs)); a('s_add_u32 %s, %s, %s' % (sF, sF, sC))
        a('s_lshl_b32 %s, %s, %d' % (sE, sB, fs+3)); a('s_add_u32 %s, %s, %s' % (sE, sE, sA))
        a('s_lshl_b32 %s, %s, %d' % (sC, sW, fs)); a('s_add_u32 %s, %s, %s' % (sE, sE, sC))
    def g1_probe(self):
        a = self.a
        NB = int(self.o['nb'])
        a('s_lshl3_add_u32 %s, s2, %s' % (sCh2, sW))
        def f():
            a('s_mov_b32 %s, 0x%x' % (sA, WS_FLAG2))
            for side in range(2):
                for k in range(NB):
                    r = 62+side*NB+k
                    a('s_mov_b32 s%d, 0' % r)
                    a('s_atomic_add s%d, s[24:25], %s offset:0x%x glc' % (r, sA, side*0x2000 + (k & 1)*0x1000 + (k >> 1)*0x4000 + k*0x100))
        self.cond(sCh2, 8*8+PW, f)
    def g1_eval(self):
        a = self.a
        NB = int(self.o['nb'])
        def f():
            a('s_waitcnt lgkmcnt(%d)' % (NB+1))
            a('s_nop %s' % self.o['pnop'])
            a('s_getreg_b32 %s, hwreg(HW_REG_IB_STS, 8, 4)' % sA)
            a('s_cmp_le_u32 %s, %s' % (sA, self.o['pthr']))
            a('s_cselect_b32 s94, 3, 2')
            if self.o['force'] != '': a('s_mov_b32 s94, %d' % (2+int(self.o['force'])))
            a('s_atomic_or s94, s[20:21], 0x80')
        self.cond(sCh2, 8*8+PW, f)
    def g1_pre(self):
        a = self.a
        self.cond(sW, PW, lambda: a('s_load_dword s95, s[20:21], 0x80'))
    def g1_read(self):
        a = self.a
        def f():
            a('buffer_load_dword %s, %s, %s, 0 offen offset:128 sc1' % (v(V.dummy), v(V.EL), SDBG))
        self.cond(sW, PW, f)
    def g1_wait(self):
        a = self.a
        def f():
            lp, ok = self.label('g1'), self.label('g1ok')
            a('s_mov_b32 %s, 0' % sCnt)
            a(lp+':')
            a('s_waitcnt vmcnt(0)')
            a('v_cmp_ne_u32 vcc, 0, %s' % v(V.dummy))
            a('s_cbranch_vccnz %s' % ok)
            a('buffer_load_dword %s, %s, %s, 0 offen offset:128 sc1' % (v(V.dummy), v(V.EL), SDBG))
            a('s_add_u32 %s, %s, 1' % (sCnt, sCnt))
            a('s_cmp_lt_u32 %s, 0x%x' % (sCnt, SPIN_MAX))
            a('s_cbranch_scc1 %s' % lp)
            a('s_waitcnt vmcnt(0)')
            a(ok+':')
            a('ds_write_b32 %s, %s offset:4' % (v(V.dummy2), v(V.dummy)))
        self.cond(sW, PW, f)
    def g1_use(self):
        a = self.a
        a('s_waitcnt lgkmcnt(8)')
        a('v_readfirstlane_b32 %s, %s' % (sCh, v(V.dummy)))
        a('s_and_b32 %s, %s, 1' % (sCh, sCh)); a('s_lshl_b32 %s, %s, 13' % (sCh, sCh))
        a('s_xor_b32 %s, %s, %s' % (sEst, sEst, sCh))
        if self.o['ts']: a('s_mov_b32 s%d, %s' % (sTS+24, sCh))

    def p2_probe_issue(self):
        a = self.a
        def f():
            if self.o['ib3']:
                a('s_lshr_b32 %s, s2, 5' % sA); a('s_bfe_u32 %s, s2, 0x10004' % sCh2)
                a('s_lshl1_add_u32 %s, %s, %s' % (sA, sA, sCh2)); a('s_lshl_b32 %s, %s, 5' % (sA, sA))
                a('s_and_b32 %s, s2, 31' % sB); a('s_add_u32 %s, %s, %s' % (sA, sA, sB))
                a('s_lshl_b32 %s, %s, 8' % (sA, sA)); a('s_add_u32 %s, %s, 0x%x' % (sDP, sA, WS_FLAG2))
            else:
                a('s_bfe_u32 %s, %s, 0x30003' % (sA, sT)); a('s_lshl3_add_u32 %s, %s, %s' % (sA, sP, sA))
                a('s_lshr_b32 %s, %s, 6' % (sCh2, sT))
                a('s_lshl1_add_u32 %s, %s, %s' % (sA, sA, sCh2))
                a('s_and_b32 %s, %s, 7' % (sB, sT)); a('s_lshl3_add_u32 %s, %s, %s' % (sA, sA, sB))
                a('s_lshl_b32 %s, %s, 10' % (sA, sA)); a('s_add_u32 %s, %s, 0x%x' % (sDP, sA, WS_FLAG2))
            a('s_xor_b32 %s, %s, 0x2000' % (sDM, sDP))
            a('s_mov_b64 s[92:93], 0')
            a('s_atomic_swap s92, s[24:25], %s glc' % sDP)
            a('s_atomic_swap s93, s[24:25], %s glc' % sDM)
        self.cond(sW, PW, f)
    def p2_probe_eval(self):
        a = self.a; T = V.T
        def f():
            if self.o['r2']:
                a('s_waitcnt lgkmcnt(0)')
                a('s_atomic_swap s92, s[24:25], %s glc' % sDP)
                a('s_atomic_swap s93, s[24:25], %s glc' % sDM)
            a('s_waitcnt lgkmcnt(1)')
            a('s_nop %s' % self.o['pnop'])
            a('s_getreg_b32 %s, hwreg(HW_REG_IB_STS, 8, 4)' % sA)
            a('s_cmp_eq_u32 %s, 0' % sA)
            a('s_cselect_b32 %s, 1, 0' % sA)
            a('s_xor_b32 %s, %s, %s' % (sCh2, sCh2, sA))
            if self.o['force'] != '': a('s_xor_b32 %s, %s, %s' % (sCh2, sP, self.o['force']))
            if not self.o['ib3']:
                a('v_mov_b32 %s, %d' % (v(T), CNT)); a('v_mov_b32 %s, %s' % (v(T+1), sCh2))
                a('ds_write_b32 %s, %s offset:4' % (v(T), v(T+1)))
            if self.o['ib3']:
                l = self.label('nv')
                a('s_and_b32 %s, s2, 0x8f' % sA); a('s_cmp_lg_u32 %s, 8' % sA); a('s_cbranch_scc1 %s' % l)
                a('s_cmp_eq_u32 s2, 120'); a('s_cbranch_scc1 %s' % l)
                a('s_lshl_b32 s94, %s, 8' % sCh2); a('s_add_u32 s94, s94, 0x1001')
                a('s_atomic_add s94, s[20:21], 0x0')
                a(l+':')
        self.cond(sW, PW, f)
    def vote_read(self):
        a = self.a
        if self.o['novr']: return
        def f():
            a('s_mov_b32 s22, 256'); a('s_mov_b32 s23, 0x20000')
            a('v_mov_b32 %s, 0' % v(V.EL))
            a('buffer_load_dword %s, %s, %s, 0 offen sc1' % (v(V.dummy), v(V.EL), SDBG))
        self.cond(sW, PW, f)
    def vote_use(self):
        a = self.a; T = V.T
        def f():
            if not self.o['novr']:
                a('v_readfirstlane_b32 %s, %s' % (sA, v(V.dummy)))
                a('s_bfe_u32 %s, %s, 0x40008' % (sB, sA)); a('s_bfe_u32 %s, %s, 0x4000c' % (sC, sA))
                a('s_sub_u32 %s, %s, %s' % (sC, sC, sB))
                a('s_xor_b32 %s, %s, 1' % (sA, sP))
                a('s_cmp_ge_u32 %s, 4' % sB); a('s_cselect_b32 %s, %s, %s' % (sCh2, sA, sCh2))
                a('s_cmp_ge_u32 %s, 4' % sC); a('s_cselect_b32 %s, %s, %s' % (sCh2, sP, sCh2))
            a('v_mov_b32 %s, %s' % (v(T+1), sCh2))
            a('ds_write_b32 %s, %s offset:4' % (v(V.dummy2), v(T+1)))
        self.cond(sW, PW, f)
    def zero3(self):
        a = self.a
        a('s_sub_u32 %s, s2, 16' % sZ)
        a('s_and_b32 %s, %s, 0xffffffef' % (sZ, sZ))
        def f():
            a('s_lshr_b32 %s, s2, 5' % sA)
            a('s_lshl1_add_u32 %s, %s, %s' % (sA, sW, sA))
            a('s_lshl_b32 %s, %s, 13' % (sA, sA)); a('s_add_u32 %s, %s, 0x%x' % (sA, sA, WS_FLAG))
            for i in range(0, 8, 2): a('s_mov_b64 s[%d:%d], 0' % (84+i, 85+i))
            for i in range(8):
                a('s_atomic_swap s%d, s[24:25], %s offset:0x%x glc' % (84+i, sA, i << 10))
        self.cond(sZ, 0, f)
    def ready3(self):
        a = self.a
        def f():
            a('s_mov_b32 s94, 1')
            a('s_waitcnt lgkmcnt(0)')
            a('s_atomic_add s94, s[20:21], 0x0')
        self.cond(sZ, 0, f)
    def flag_addrs3(self):
        a = self.a
        a('s_lshr_b32 %s, %s, 4' % (sB, sT))
        for dst, wp, gr in ((sF, sW, sB), (sE, sB, sW)):
            a('s_lshl4_add_u32 %s, %s, %s' % (sC, wp, gr)); a('s_lshl_b32 %s, %s, 10' % (sC, sC))
            a('s_add_u32 %s, %s, 0x%x' % (dst, sC, WS_FLAG))
    def side3(self):
        a = self.a
        a('s_bfe_u32 %s, %s, 0x1000a' % (sCh2, sRv))
        a('s_xor_b32 %s, %s, %s' % (sCh2, sCh2, sP)); a('s_lshl_b32 %s, %s, 13' % (sCh2, sCh2))
        a('s_add_u32 %s, %s, %s' % (sF, sF, sCh2))
    def side3b(self):
        a = self.a
        a('s_add_u32 %s, %s, %s' % (sE, sE, sCh2))
        a('s_xor_b32 %s, %s, %s' % (sZp, sEst, sCh2))
    def side3c(self):
        a = self.a
        a('s_and_b32 %s, %s, 0x2000' % (sA, sZ)); a('s_xor_b32 %s, %s, %s' % (sA, sA, sCh2)); a('s_add_u32 %s, %s, %s' % (sEld, sEld, sA))
    def p2_choice_read(self):
        self.a('ds_read_b32 %s, %s offset:4' % (v(V.dummy), v(V.dummy2)))
    def p2_choice_use(self):
        a = self.a
        a('s_waitcnt lgkmcnt(8)')
        a('v_readfirstlane_b32 %s, %s' % (sCh2, v(V.dummy)))
        a('s_lshl_b32 %s, %s, 13' % (sA, sCh2))
        a('s_xor_b32 %s, %s, %s' % (sZp, sEst, sA))
        if self.o['ts']: a('s_mov_b32 s%d, %s' % (sTS+24, sCh2))
    def ex_addrs_ib2(self):
        a = self.a; T = V.T
        a('s_lshl_b32 %s, %s, 4' % (sB, sW)); a('s_xor_b32 %s, %s, %s' % (sB, sB, sT)); a('s_lshl_b32 %s, %s, 8' % (sB, sB))
        a('v_lshlrev_b32 %s, 4, %s' % (v(T), v(V.n)))
        a('v_lshl_add_u32 %s, %s, 10, %s' % (v(T), v(V.g), v(T)))
        a('v_xor_b32 %s, %s, %s' % (v(T), sB, v(T)))
        a('v_and_b32 %s, 0x6000, %s' % (v(T+1), v(T)))
        a('v_add_u32 %s, %s, %s' % (v(T), v(T), v(T+1)))
        a('v_lshl_add_u32 %s, %s, 18, %s' % (v(V.Est), v(V.g), v(T)))
        a('v_and_b32 %s, 0xdcff, %s' % (v(V.Eld0), v(T)))
        a('s_lshl3_add_u32 %s, %s, %s' % (sEst, sP, sW)); a('s_lshl_b32 %s, %s, 20' % (sEst, sEst))
        a('s_and_b32 %s, %s, 2' % (sA, sW)); a('s_lshl_b32 %s, %s, 12' % (sA, sA)); a('s_add_u32 %s, %s, %s' % (sEst, sEst, sA))
    def misc_ib2(self):
        a = self.a
        a('s_lshl_b32 %s, %s, 7' % (sEld, sP)); a('s_add_u32 %s, %s, %s' % (sEld, sEld, sT)); a('s_lshl_b32 %s, %s, 16' % (sEld, sEld))
        a('s_and_b32 %s, %s, 15' % (sA, sT)); a('s_add_u32 %s, %s, 8' % (sA, sA))
        a('s_lshl_b32 %s, %s, %s' % (sInc, sCh2, sA)); a('s_add_u32 %s, %s, 1' % (sInc, sInc))
        a('v_lshl_add_u32 %s, %s, 2, 8' % (v(V.dummy), v(V.g)))
        a('s_bfe_i32 %s, %s, 0x10005' % (sZ, sT))
    def ld_addrs_ib2(self):
        a = self.a; T = V.T
        a('s_xor_b32 %s, %s, %s' % (sA, sRv, sZ))
        a('v_lshrrev_b32 %s, %s, %s' % (v(T), v(V.dummy), sA))
        for q in range(4):
            a('v_bfe_u32 %s, %s, %d, 1' % (v(T+1), v(T), q))
            a('v_lshl_add_u32 %s, %s, 13, %s' % (v(T+2+q), v(T+1), v(V.Eld0)))
    def major_post(self):
        a = self.a; T = V.T
        def f():
            a('s_bfe_u32 %s, %s, 0x100008' % (sA, sRv)); a('s_bcnt1_i32_b32 %s, %s' % (sA, sA))
            a('s_cmp_gt_u32 %s, 8' % sA); a('s_cselect_b32 %s, 0x2000, 0' % sA)
            a('v_mov_b32 %s, %s' % (v(T), sA))
            a('ds_write_b32 %s, %s offset:8' % (v(V.dummy2), v(T)))
        self.cond(sW, 0, f)
    def major_read(self):
        self.a('ds_read_b32 %s, %s offset:8' % (v(V.dummy), v(V.dummy2)))
    def major_use(self):
        a = self.a
        a('v_readfirstlane_b32 %s, %s' % (sCh2, v(V.dummy)))
        a('s_xor_b32 %s, %s, %s' % (sZp, sEst, sCh2))
    def major_use2(self):
        a = self.a
        a('s_and_b32 %s, %s, 0x2000' % (sA, sZ)); a('s_xor_b32 %s, %s, %s' % (sA, sA, sCh2)); a('s_add_u32 %s, %s, %s' % (sEld, sEld, sA))
        a('s_lshr_b32 %s, %s, 4' % (sB, sT))
        for dst, wp, gr in ((sF, sW, sB), (sE, sB, sW)):
            a('s_lshl3_add_u32 %s, %s, %s' % (sA, sP, wp)); a('s_lshl4_add_u32 %s, %s, %s' % (sA, sA, gr)); a('s_lshl_b32 %s, %s, 10' % (sA, sA))
            a('s_add_u32 %s, %s, %s' % (sA, sA, sCh2)); a('s_add_u32 %s, %s, 0x%x' % (dst, sA, WS_FLAG2))

    def gz_issue(self):
        a = self.a
        a('s_sub_u32 %s, s2, 16' % sZ)
        a('s_and_b32 %s, %s, 0xffffffef' % (sZ, sZ))
        def f():
            a('s_lshr_b32 %s, s2, 5' % sZp)
            a('s_lshl1_add_u32 %s, %s, %s' % (sCh, sW, sZp))
            a('s_lshl_b32 %s, %s, 13' % (sCh, sCh)); a('s_add_u32 %s, %s, 0x%x' % (sCh, sCh, WS_FLAG))
            for i in range(0, 8, 2): a('s_mov_b64 s[%d:%d], 0' % (84+i, 85+i))
            for i in range(8):
                a('s_atomic_swap s%d, s[24:25], %s offset:0x%x glc' % (84+i, sCh, i << 10))
        self.cond(sZ, 0, f)
    def gz_publish(self):
        a = self.a
        def f():
            a('s_waitcnt lgkmcnt(0)')
            a('s_memtime s[84:85]')
            a('s_mov_b32 s88, 0')
            a('s_waitcnt lgkmcnt(0)')
            a('s_atomic_add s88, s[24:25], %s glc' % sCh)
            a('s_waitcnt lgkmcnt(0)')
            a('s_memtime s[86:87]')
            a('s_mul_i32 %s, %s, 13' % (sZp, sZp)); a('s_add_u32 %s, %s, 5' % (sZp, sZp))
            a('s_waitcnt lgkmcnt(0)')
            a('s_sub_u32 s84, s86, s84'); a('s_lshr_b32 s84, s84, 3'); a('s_min_u32 s84, s84, 0x3ff')
            a('s_lshl_b32 s84, s84, %s' % sZp); a('s_add_u32 s84, s84, 1')
            a('s_atomic_add s84, s[20:21], 0x0')
        self.cond(sZ, 0, f)
    def gz_read(self):
        a = self.a
        a('v_mov_b32 %s, 0' % v(V.EL))
        a('buffer_load_dword %s, %s, %s, 0 offen sc1' % (v(V.dummy), v(V.EL), SDBG))
    def gz_check(self):
        a = self.a; l0, l1 = self.label('gz'), self.label('gzok')
        a('s_waitcnt vmcnt(0)')
        a('v_readfirstlane_b32 %s, %s' % (sRv, v(V.dummy)))
        a('s_bitcmp1_b32 %s, 4' % sRv)
        a('s_cbranch_scc1 %s' % l1)
        a('s_mov_b32 %s, 0' % sCnt)
        a(l0+':')
        a('buffer_load_dword %s, %s, %s, 0 offen sc1' % (v(V.dummy), v(V.EL), SDBG))
        a('s_add_u32 %s, %s, 1' % (sCnt, sCnt))
        a('s_cmp_gt_u32 %s, 0x%x' % (sCnt, SPIN_MAX))
        a('s_waitcnt vmcnt(0)')
        a('v_readfirstlane_b32 %s, %s' % (sRv, v(V.dummy)))
        a('s_cbranch_scc1 %s' % l1)
        a('s_bitcmp0_b32 %s, 4' % sRv)
        a('s_cbranch_scc1 %s' % l0)
        a(l1+':')
        a('s_bfe_u32 %s, %s, 0xd0005' % (sA, sRv)); a('s_bfe_u32 %s, %s, 0xd0012' % (sB, sRv))
        a('s_cmp_lt_u32 %s, %s' % (sB, sA))
        a('s_cselect_b32 %s, 0x2000, 0' % sCh)
        if self.o['force'] != '': a('s_mov_b32 %s, %d' % (sCh, int(self.o['force']) << 13))
        a('s_xor_b32 %s, %s, %s' % (sEst, sEst, sCh))
        if self.o['ts']: a('s_mov_b32 s%d, %s' % (sTS+24, sRv))
    def gz_flag_addrs(self):
        a = self.a
        a('s_xor_b32 %s, %s, %s' % (sEld, sEld, sCh))
        a('s_lshr_b32 %s, %s, 4' % (sB, sT))
        a('s_lshl_b32 %s, %s, 13' % (sA, sP)); a('s_xor_b32 %s, %s, %s' % (sA, sA, sCh)); a('s_add_u32 %s, %s, 0x%x' % (sA, sA, WS_FLAG))
        for dst, wp, gr in ((sF, sW, sB), (sE, sB, sW)):
            a('s_lshl4_add_u32 %s, %s, %s' % (sC, wp, gr)); a('s_lshl_b32 %s, %s, 10' % (sC, sC))
            a('s_add_u32 %s, %s, %s' % (dst, sC, sA))

    def zero_flags_ib(self):
        a = self.a
        def f():
            a('s_waitcnt lgkmcnt(0)')
            a('s_lshl_b32 %s, %s, 13' % (sA, sCh)); a('s_add_u32 %s, %s, %s' % (sA, sA, sEst)); a('s_add_u32 %s, %s, 0x%x' % (sA, sA, WS_FLAG_IB))
            for i in range(0, 8, 2): a('s_mov_b64 s[%d:%d], 0' % (84+i, 85+i))
            for i in range(8):
                a('s_atomic_swap s%d, s[24:25], %s offset:0x%x glc' % (84+i, sA, i << 10))
        self.cond(sT, 1, f)
    def set_ready_ib(self):
        a = self.a
        def f():
            a('s_add_u32 %s, %s, 8' % (sA, sW)); a('s_lshl_b32 %s, %s, %s' % (sZ, sCh, sA)); a('s_add_u32 %s, %s, 1' % (sZ, sZ))
            a('s_waitcnt lgkmcnt(0)')
            a('s_atomic_add %s, s[20:21], %s' % (sZ, sRd))
        self.cond(sT, 1, f)
    def flag_side(self):
        a = self.a
        a('s_lshr_b32 %s, %s, 8' % (sRv, sRv))
        a('s_lshr_b32 %s, %s, %s' % (sA, sRv, sW)); a('s_and_b32 %s, %s, 1' % (sA, sA)); a('s_lshl_b32 %s, %s, 13' % (sA, sA)); a('s_add_u32 %s, %s, %s' % (sF, sF, sA))
    def flag_side2(self):
        a = self.a
        a('s_lshr_b32 %s, %s, 4' % (sB, sT))
        a('s_lshr_b32 %s, %s, %s' % (sA, sRv, sB)); a('s_and_b32 %s, %s, 1' % (sA, sA)); a('s_lshl_b32 %s, %s, 13' % (sA, sA)); a('s_add_u32 %s, %s, %s' % (sE, sE, sA))
    def zero_flags(self):
        a = self.a
        a('s_sub_u32 %s, s2, 16' % sZ)
        a('s_and_b32 %s, %s, 0xffffffef' % (sZ, sZ))
        def f():
            fs = int(self.o['fstride'])
            a('s_lshr_b32 %s, s2, 5' % sZp)
            a('s_lshl3_add_u32 %s, %s, %s' % (sA, sZp, sW))
            if self.o['fl'] != '':
                pol = int(self.o['fl'][1]); mode = self.o['fl'][0]; fs = 10
                if mode == 'x': a('s_xor_b32 %s, %s, %d' % (sC, sZp, pol))
                else: a('s_lshr_b32 %s, %s, 2' % (sC, sW)); a('s_xor_b32 %s, %s, %d' % (sC, sC, pol))
                a('s_lshl1_add_u32 %s, %s, %s' % (sA, sA, sC))
            a('s_lshl_b32 %s, %s, %d' % (sA, sA, fs+3)); a('s_add_u32 %s, %s, 0x%x' % (sA, sA, WS_FLAG))
            for i in range(0, 8, 2): a('s_mov_b64 s[%d:%d], 0' % (84+i, 85+i))
            for i in range(8):
                a('s_atomic_swap s%d, s[24:25], %s offset:0x%x glc' % (84+i, sA, i << fs))
            a('s_lshl_b32 %s, %s, 7' % (sZp, sZp))
        self.cond(sZ, 0, f)
    def set_ready(self):
        a = self.a
        def f():
            a('s_mov_b32 %s, 1' % sInc)
            a('s_waitcnt lgkmcnt(0)')
            a('s_atomic_add %s, s[20:21], %s' % (sInc, sZp))
        self.cond(sZ, 0, f)
    def ready_issue(self):
        self.a('s_load_dword %s, s[20:21], %s' % (sRv, sRd))
    def ready_check(self):
        a = self.a; l0, l1 = self.label('rdy'), self.label('rdyok')
        def notready():
            if self.o['g1']: a('s_cmp_lt_u32 %s, 16' % sRv)
            elif self.o['ib3']: a('s_and_b32 %s, %s, 0xff' % (sA, sRv)); a('s_cmp_lt_u32 %s, 23' % sA)
            else: a('s_bitcmp0_b32 %s, 3' % sRv)
        notready()
        a('s_cbranch_scc1 %s' % l0)
        a(l1+':')
        def tail():
            lp = self.label('rdyl')
            a(l0+':')
            a('s_mov_b32 %s, 0' % sCnt)
            a('v_mov_b32 %s, 0' % v(V.O+1))
            a(lp+':')
            a('buffer_load_dword %s, %s, %s, %s offen sc1' % (v(V.O), v(V.O+1), SDBG, sRd))
            a('s_add_u32 %s, %s, 1' % (sCnt, sCnt))
            a('s_cmp_gt_u32 %s, 0x%x' % (sCnt, SPIN_MAX))
            a('s_waitcnt vmcnt(0)')
            a('v_readfirstlane_b32 %s, %s' % (sRv, v(V.O)))
            a('s_cbranch_scc1 %s' % l1)
            notready()
            a('s_cbranch_scc1 %s' % lp)
            a('s_branch %s' % l1)
        self.tail.append(tail)
    def set_flag(self, ex):
        a = self.a
        if not ((self.o['ib'] or self.o['ib2']) and ex == 0): a('s_mov_b32 %s, 0x%x' % (sInc, 1 << (24*ex)))
        a('s_atomic_add %s, s[24:25], %s' % (sInc, sF))
    def poll(self, ex, under=None):
        a = self.a; lp, ok = self.label('poll'), self.label('pollok')
        if under:
            a('s_mov_b32 %s, 0' % sRv)
            a('s_atomic_add %s, s[24:25], %s glc' % (sRv, sE))
            under()
            a('s_waitcnt lgkmcnt(0)')
            a('s_bitcmp1_b32 %s, %d' % (sRv, 4+24*ex))
            a('s_cbranch_scc1 %s' % ok)
        a('s_mov_b32 %s, 0' % sCnt)
        a(lp+':')
        a('s_mov_b32 %s, 0' % sRv)
        a('s_atomic_add %s, s[24:25], %s glc' % (sRv, sE))
        a('s_add_u32 %s, %s, 1' % (sCnt, sCnt))
        a('s_cmp_gt_u32 %s, 0x%x' % (sCnt, SPIN_MAX))
        a('s_waitcnt lgkmcnt(0)')
        a('s_cbranch_scc1 %s' % ok)
        if self.o['slp']:
            a('s_bitcmp1_b32 %s, %d' % (sRv, 4+24*ex))
            a('s_cbranch_scc1 %s' % ok)
            a('s_sleep %s' % self.o['slp'])
            a('s_branch %s' % lp)
        else:
            a('s_bitcmp0_b32 %s, %d' % (sRv, 4+24*ex))
            a('s_cbranch_scc1 %s' % lp)
        a(ok+':')
        if self.o['pbar']: a('s_barrier')
    def code_pf(self, name):
        a = self.a
        l = self.label('pc')
        a('s_getpc_b64 s[28:29]')
        a(l+':')
        a('s_sub_u32 s28, s28, %s-%s' % (l, name))
        a('s_subb_u32 s29, s29, 0')
        a('v_lshlrev_b32 %s, 5, v0' % v(V.O+6))
        a('global_load_dword %s, %s, s[28:29]' % (v(V.dummy), v(V.O+6)))

    def code_spf(self, name):
        a = self.a
        l = self.label('pc')
        a('s_getpc_b64 s[28:29]')
        a(l+':')
        a('s_sub_u32 s28, s28, %s-%s' % (l, name))
        a('s_subb_u32 s29, s29, 0')
        a('s_lshr_b32 %s, s2, 4' % sA)
        a('s_lshl3_add_u32 %s, %s, %s' % (sA, sA, sW))
        a('s_lshl_b32 %s, %s, 7' % (sA, sA))
        a('s_load_dword s94, s[28:29], %s' % sA)

    def ifelse(self, reg, val, feq, fne, eq_first=False):
        a = self.a; l0, l1 = self.label('ie'), self.label('iend')
        if eq_first:
            a('s_cmp_lg_u32 %s, %d' % (reg, val)); a('s_cbranch_scc1 %s' % l0)
            feq(); a('s_branch %s' % l1); a(l0+':'); fne()
        else:
            a('s_cmp_eq_u32 %s, %d' % (reg, val)); a('s_cbranch_scc1 %s' % l0)
            fne(); a('s_branch %s' % l1); a(l0+':'); feq()
        a(l1+':')
    def touch(self, rnd):
        a = self.a
        a('s_mov_b64 exec, 0')
        for k in range(7):
            a('s_cmp_eq_u32 %s, %d' % (sW, k)); a('s_cbranch_scc1 stub_%d' % (8*rnd+k))
        a('s_branch stub_%d' % (8*rnd+7))
        a('ret_%d:' % rnd)
        a('s_mov_b64 exec, -1')

    def cond(self, reg, val, f):
        a = self.a; l = self.label('c')
        a('s_cmp_lg_u32 %s, %d' % (reg, val)); a('s_cbranch_scc1 %s' % l)
        f()
        a(l+':')

    def build_one(self):
        a = self.a; o = self.o
        name = NAME + '_kernel'
        self.kernel_head(name); end = self.label('end')
        self.prologue1(end)
        wA, wB = o['wA'], o['wB']
        def wat(pos, rows=(0, 1, 2, 3)):
            f = lambda: [self.w_dma1(i) for i in rows]
            if wA == pos and wB == pos: f()
            elif wA == pos: self.cond(sP, 0, f)
            elif wB == pos: self.cond(sP, 1, f)
        self.wat = wat
        bd = int(o['bdelay'])
        if o['touch'] == 'pre': self.touch(0)
        self.mark('touched')
        a('s_waitcnt lgkmcnt(0)')
        self.mark('karg')
        if o['wsoff']:
            a('s_add_u32 s24, s24, 0x%x' % (int(o['wsoff']) << 20)); a('s_addc_u32 s25, s25, 0')
        gz = o['gz']
        g1 = o['g1']
        if g1: self.g1_probe(); self.g1_pre(); self.zero3(); a('s_mov_b32 %s, 0' % sRd)
        elif gz: self.gz_issue()
        elif o['ib']: self.probe_issue()
        elif o['ib3']: self.p2_probe_issue(); self.zero3(); a('s_mov_b32 %s, 0' % sRd)
        elif o['ib2']: self.p2_probe_issue(); self.zero_flags()
        else: self.zero_flags()
        misc = lambda: (self.srds(), self.calc_k0(), self.w_prep(), self.gz_flag_addrs() if (gz or g1) else self.flag_addrs3() if o['ib3'] else self.flag_addrs(), self.misc_ib2() if o['ib2'] else 0)
        if wB == 'first':
            def fb():
                misc(); self.w_dma()
                if bd == 0: self.p1_issue()
            self.ifelse(sP, 1, fb, self.p1_issue)
        elif bd: self.cond(sP, 0, self.p1_issue)
        else: self.p1_issue()
        if o['ib']: self.probe_eval(); self.zero_flags_ib()
        if g1: self.g1_eval(); a('s_mov_b32 s22, 256'); a('s_mov_b32 s23, 0x20000'); a('v_mov_b32 %s, 0' % v(V.EL))
        if gz: self.gz_publish(); a('s_mov_b32 s22, 256'); a('s_mov_b32 s23, 0x20000')
        if o['touch'] == 'post': self.touch(0)
        if o['touch']: self.cond(sT, 0, lambda: self.touch(1))
        if o['ib2']:
            if o['r2']: self.p1_addrs(); self.gen_F16(); self.p2_probe_eval(); self.coop_init()
            else: self.p2_probe_eval(); self.p1_addrs(); self.gen_F16(); self.coop_init()
        else: self.p1_addrs(); self.gen_F16(); self.coop_init()
        if bd == 1: self.cond(sP, 1, self.p1_issue)
        self.gen_M2()
        if o['ib']: self.ex_addrs_ib(); self.set_ready_ib()
        elif gz: self.ex_addrs()
        elif g1: self.ex_addrs(); self.ready3()
        elif o['ib3']: self.ex_addrs_ib2(); self.ready3()
        elif o['ib2']: self.ex_addrs_ib2(); self.set_ready()
        else: self.ex_addrs(); self.set_ready()
        X = [misc, self.coop_gen, lambda: self.gen_B(True, False), lambda: (self.p2_addrs(), self.w_addr())]
        nearly = max(0, bd-2)
        def early():
            for f in X[(1 if wB == 'first' else 0):nearly]: f()
            self.p1_issue()
        if bd >= 2: self.cond(sP, 1, early)
        self.mark('w1')
        def Xat(k):
            if k < nearly or (k == 0 and wB == 'first'): self.cond(sP, 0, X[k])
            else: X[k]()
        if gz: self.p1_compute(0, self.gz_read, None, lambda: (self.gz_check(), self.spec_early()))
        elif g1:
            self.p1_compute(0, lambda: self.g1_read(), None, lambda: (self.g1_use(), self.spec_early()), self.p2_choice_read, self.g1_wait)
        elif o['ib3']:
            self.vote_read()
            self.p1_compute(0, lambda: (self.vote_use(), self.spec_early()), None, self.p2_choice_use, self.p2_choice_read)
        elif o['ib2']: self.p1_compute(0, self.spec_early, None, self.p2_choice_use, self.p2_choice_read)
        else:
            def h1():
                if o['tlb1']:
                    a('s_add_u32 %s, %s, 0x%x' % (sA, sEst, self.ubase(0)))
                    a('v_and_b32 %s, 3, %s' % (v(V.T), v(V.lane)))
                    a('v_lshl_add_u32 %s, %s, 15, %s' % (v(V.T), v(V.T), v(V.Est)))
                    a('buffer_load_dword %s, %s, %s, %s offen' % (v(V.dummy), v(V.T), SWS, sA))
            if o['tlb1']: h1()
            self.p1_compute(1 if o['tlb1'] else 0, self.spec_early)
        self.stamp()
        if not gz: self.ready_issue()
        Xat(0)
        n = 0
        Xat(1)
        self.coop_post()
        self.mark('w2a')
        if 'da' in o: a('s_waitcnt vmcnt(0)'); self.mark('vm1')
        a('s_waitcnt vmcnt(%d) lgkmcnt(0)' % n)
        self.stamp()
        if not gz: self.ready_check()
        if o['ib']: self.flag_side()
        if o['ib3']: self.side3()
        self.mark('rdy')
        self.set_flag(0)
        if o['ib']: self.flag_side2()
        if o['ib3']: self.side3b()
        def under1():
            self.w_sload()
            if o['tlb2']:
                a('s_add_u32 %s, %s, 0x%x' % (sA, sEst, self.ubase(1)))
                a('v_and_b32 %s, 3, %s' % (v(V.T), v(V.lane)))
                a('v_lshl_add_u32 %s, %s, 15, %s' % (v(V.T), v(V.T), v(V.Est)))
                a('buffer_load_dword %s, %s, %s, %s offen' % (v(V.dummy), v(V.T), SWS, sA))
            Xat(2); self.B_dup()
            Xat(3)
            self.w_special()
        self.poll(0, under1)
        self.stamp()
        if self.o.get('fine'):
            a('s_memrealtime s[%d:%d]' % (sTS+2*self.nts, sTS+2*self.nts+1)); self.nts += 1
            self.fstamp()
        if o['ib']: self.ld_addrs_ib()
        if o.get('da') == 'votes':
            a('s_bfe_u32 s60, %s, 0x100008' % sRv); a('s_bcnt1_i32_b32 s60, s60')
            a('s_cmp_eq_u32 %s, 0' % sCh2); a('s_sub_u32 s58, 16, s60'); a('s_cmp_eq_u32 %s, 0' % sCh2); a('s_cselect_b32 s60, s60, s58')
            if 'dw' in o: a('s_cmp_eq_u32 %s, %s' % (sW, o['dw'])); a('s_cselect_b32 s60, s60, 0')
            a('s_mul_i32 s60, s60, 25'); a('s_mov_b32 s58, 0')
        if o['ib2']: self.ld_addrs_ib2()
        self.p2_issue()
        if o['ib3']: self.side3c()
        elif o['ib2']: self.major_post()
        self.coop_wait(); self.coop_read()
        self.p2_addrs2()
        a('s_waitcnt vmcnt(4)')
        self.w_edge()
        self.p2_compute(True)
        self.stamp()
        if o['ib2'] and not o['ib3']: self.major_use2()
        self.gen_M3()
        self.mark('w3a')
        a('s_waitcnt vmcnt(0)')
        self.stamp()
        self.set_flag(1)
        self.poll(1, self.p3_addrs)
        self.stamp()
        self.p3_issue()
        self.p3_soff()
        self.p3_compute()
        if 'da' in o:
            self.stamp(); a('s_waitcnt vmcnt(0)'); self.stamp()
            lp = self.label('dg')
            a('s_waitcnt lgkmcnt(0)')
            a('s_sub_u32 %s, s60, s58' % sA)
            a('s_lshl_b32 %s, %s, 2' % (sA, sA))
            if 'dp' in o:
                a('s_cmp_eq_u32 %s, %s' % (sP, o['dp'])); a('s_cselect_b32 %s, %s, 0' % (sA, sA))
            a('s_add_u32 %s, %s, 3000' % (sA, sA))
            a(lp+':')
            a('s_memrealtime s[28:29]')
            a('s_waitcnt lgkmcnt(0)')
            a('s_sub_u32 %s, s28, s56' % sB)
            a('s_cmp_lt_u32 %s, %s' % (sB, sA))
            a('s_cbranch_scc1 %s' % lp)
        if o['ts']:
            self.stamp(); a('s_waitcnt vmcnt(0)'); self.stamp()
            if 'diag' in o:
                i = int(o['diag']); lp = self.label('dg')
                a('s_waitcnt lgkmcnt(0)')
                if 'xw' in o:
                    a('s_getreg_b32 %s, hwreg(HW_REG_XCC_ID, 0, 4)' % sA)
                    a('s_sub_u32 %s, %s, s2' % (sA, sA)); a('s_and_b32 %s, %s, 7' % (sA, sA)); a('s_mul_i32 %s, %s, 400' % (sA, sA))
                    if int(o['xw']) >= 0:
                        a('s_cmp_eq_u32 s2, %s' % o['xw']); a('s_cselect_b32 %s, %s, 0' % (sA, sA))
                else:
                    a('s_sub_u32 %s, s%d, s%d' % (sA, sTS+2*i, sTS+2*int(o.get('dj', 0))))
                    a('s_lshl_b32 %s, %s, 2' % (sA, sA))
                    if 'dp' in o:
                        a('s_cmp_eq_u32 %s, %s' % (sP, o['dp'])); a('s_cselect_b32 %s, %s, 0' % (sA, sA))
                a('s_add_u32 %s, %s, 3000' % (sA, sA))
                a(lp+':')
                a('s_memrealtime s[28:29]')
                a('s_waitcnt lgkmcnt(0)')
                a('s_sub_u32 %s, s28, s%d' % (sB, sTS))
                a('s_cmp_lt_u32 %s, %s' % (sB, sA))
                a('s_cbranch_scc1 %s' % lp)
            else:
                if o['ib'] or o['gz'] or o['ib2'] or o['g1']: self.nts += 1
                self.dump_stamps(0)
        a(end+':'); a('s_endpgm'); self.flush_tail()
        if o['touch']: self.insert_stubs(name)
        a.raw('.fill (%s+16384-.)/4, 4, 0xbf810000' % name)
        launch = '; @launch grid=(256,1,1) block=(512,1,1) lds=%d\n' % LDS_TOTAL
        return self.finish(launch, [name])

    def insert_stubs(self, name):
        import subprocess, re
        from asmlib import Ins
        a = self.a
        txt = '.amdgcn_target "amdgcn-amd-amdhsa--gfx950"\n.text\n' + a.text() + ''.join('stub_%d:\n' % k for k in range(16)) + 's_endpgm\nspec_tab:\n'
        open('pass1.s', 'w').write(txt)
        subprocess.check_call(['clang', '-x', 'assembler', '-target', 'amdgcn-amd-amdhsa', '-mcpu=gfx950', '-c', 'pass1.s', '-o', 'pass1.o'])
        dis = subprocess.check_output(['llvm-objdump', '-d', '--mcpu=gfx950', 'pass1.o']).decode()
        addrs = [int(m.group(1), 16) for m in re.finditer(r'// ([0-9A-F]{12}):', dis)]
        real = [i for i, x in enumerate(a.ins) if x.kind != 'none']
        assert len(addrs) == len(real) + 1, (len(addrs), len(real))
        size = {real[k]: addrs[k+1] - addrs[k] for k in range(len(real))}
        pos = ENTRY_OFF; nxt = ENTRY_OFF + 1024 - 256
        nxt = (nxt + 1023)//1024*1024
        out = []; k = 0; prev = None; ez = False
        for i, x in enumerate(a.ins):
            if i in size:
                glued = prev is not None and (prev.op == 's_getpc_b64' or 'rel32' in x.text)
                if prev is not None and prev.text.strip() == 's_mov_b64 exec, 0': ez = True
                if prev is not None and prev.text.strip() == 's_mov_b64 exec, -1': ez = False
                glued = glued or ez
                if pos >= nxt and k < 16 and not glued:
                    out.append(Ins('stub_%d:' % k)); out.append(Ins('s_cbranch_execz ret_%d' % (k >> 3)))
                    pos += 4; k += 1; nxt += 1024
                pos += size[i]; prev = x
            out.append(x)
        self.code_end = pos
        while k < 16:
            out.append(Ins('stub_%d:' % k)); out.append(Ins('s_branch ret_%d' % (k >> 3))); k += 1
        a.ins = out

    def finish(self, launch, names):
        hdr = '; GFNet spectral filter (two heads): 2-D FFT via bf16 MFMA DFT stages. Generated by dev/gen.py\n' + launch
        s = hdr + '.amdgcn_target "amdgcn-amd-amdhsa--gfx950"\n.text\n' + self.a.text()
        s += '.section .rodata,"a"\n' + '\n'.join(self.kd(n) for n in names) + '\n' + self.spec_table() + '\n'
        return s

if __name__ == '__main__':
    mode = sys.argv[1]; out = sys.argv[2]
    opt = {}
    for kv in sys.argv[3:]:
        k, x = kv.split('=')
        opt[k] = {'True': True, 'False': False}.get(x, x.replace('+', ' '))
    g = Gen(mode, **opt)
    s = g.build_three() if mode == 'three' else g.build_one()
    assert g.a.verify() == 0
    open(out, 'w').write(s)
    print('vgprs', NVGPR, 'lds', LDS_TOTAL, 'nops', g.a.nops, 'lines', len(g.a.ins))
```

```python
import sys, struct, math
import numpy as np
from asmlib import Asm

NAME = 'concat_heads__spectral_gfnet__spectral_gfnet__prompt'

def f2u(x): return struct.unpack('<I', struct.pack('<f', x))[0]
def lit(x): return '0x%08x' % f2u(x)
def bf16bits(x):
    u = f2u(float(x)); return ((u + 0x7FFF + ((u >> 16) & 1)) >> 16) & 0xFFFF
def sigma(m): return (m & 1) | ((m >> 1) & 1) << 3 | ((m >> 2) & 1) << 1 | ((m >> 3) & 1) << 2 | (m & 16)

S11 = 2.0**-11
SPIN_MAX = 0x4000
ENTRY_OFF = 0x300
SENT = 0x13572468
WS_FLAG_IB = 32 << 20
WS_FLAG2 = 33 << 20
PW = 7
sCh2 = 's100'
R0 = 0
R1 = 33024
WL = 66048
SCR = WL + 8*4*1056
SCR_B = SCR + 36*256
TABL = SCR_B + 8192
CNT = TABL + 16384
LDS_TOTAL = CNT + 64
WS_U1 = 0
WS_U2 = 8 << 20
WS_FLAG = 32 << 20
WS_TS = 72 << 20
WS_SIZE = 80 << 20

class V: pass
_n = [0]
def alloc(n, align=1):
    b = (_n[0] + align - 1)//align*align
    _n[0] = b + n
    return b
V.tid = alloc(1); V.lane = alloc(1)
for nm in 'g n Xoff Est X0w X0r0 X0r1 X1w X1r X2w X2r WP WM l16 dummy dummy2'.split(): setattr(V, nm, alloc(1))
V.Ooff, V.X3w0, V.X3w1, V.X3r = V.Xoff, V.X0w, V.X0r0, V.X0r1
V.T = alloc(10, 1)
V.EL = alloc(4); V.Eld = V.EL+3; V.Eld0 = V.EL+3
V.O = alloc(16, 4)
V.DA = alloc(32, 4)
V.DB = alloc(32, 4)
V.L = V.DB
V.F16 = alloc(8, 4)
V.M2 = alloc(16, 4)
V.F32 = alloc(32, 4)
V.TW = alloc(32, 4)
V.W = alloc(32, 4)
V.B = alloc(12, 4)
V.Bp = alloc(8, 4)
V.WF = alloc(4)
NVGPR = _n[0]
assert NVGPR <= 256, NVGPR
def v(i): return 'v%d' % i
def vr(i, n): return 'v[%d:%d]' % (i, i+n-1)

SX, SWR, SWI, SOUT, SDBG, SWS = 's[4:7]', 's[8:11]', 's[12:15]', 's[16:19]', 's[20:23]', 's[24:27]'
sP, sT, sW, sSB, sCB, sK0 = 's30', 's31', 's32', 's33', 's34', 's35'
sKP, sKM = 's36', 's37'
sA, sB, sC, sD, sE, sF = 's40', 's41', 's42', 's43', 's44', 's45'
sEst, sEld, sCnt, sSpec = 's46', 's47', 's48', 's49'
sO = ['s52', 's53', 's54', 's55']
sRd, sRv, sInc, sWL = 's38', 's39', 's50', 's51'
ZT = 16
sDP, sDM, sZ, sZp, sCh = 's96', 's97', 's98', 's99', 's95'
sTS = 56

class Gen:
    def __init__(self, mode='one', **opt):
        self.mode = mode
        self.o = dict(ldx='', ldw='', st1='sc1', st2='sc1', sto='sc1', ld1='sc1', ld2='sc1', ts=False, stagger=True, pf=False, spf=False, touch='pre', fst='sc1', fld='sc1', slp='', fsh='', pbar=False, shear=True, prio=True, wA='postX1', wB='postX1', bdelay='4', optx=False, numa='', fl='', ib=False, wsoff='', tlb1=False, tlb2=False, ib2=False, g1=False, nb='6', pthr='2', pop='load_dword', pbase='0', r2=False, novr=False, ib3=False, pnop='15', gz=False, force='', skew=True, fstride=12)
        self.o.update(opt)
        self.a = Asm()
        self.lab = 0
        self.nts = 0
        self.tail = []

    def tstride(self): return 65536 if (self.o['numa'] != '' or self.o['ib'] or self.o['ib2']) else 32768
    def ubase(self, ex): return (ex << 24) if self.o['ib2'] else (ex << 20) if self.o['ib'] else (WS_U2 if ex else WS_U1)
    def eld(self, q, ex=0): return v(V.T+2+q) if (self.o['ib2'] and ex == 0) else v(V.EL+q) if self.o['ib'] else v(V.Eld)
    def est(self): return sZp if self.o['ib2'] else sEst
    def label(self, p='L'):
        self.lab += 1
        return '%s_%d' % (p, self.lab)

    def stamp(self):
        if 'da' in self.o:
            self.sid = getattr(self, 'sid', -1) + 1
            self.mark('s%d' % self.sid); return
        if not self.o['ts'] or self.o.get('fine'): return
        self.a('s_memrealtime s[%d:%d]' % (sTS+2*self.nts, sTS+2*self.nts+1))
        self.nts += 1

    def mark(self, nm):
        for key, reg in (('da', 58), ('db', 60)):
            if self.o.get(key) == nm: self.a('s_memrealtime s[%d:%d]' % (reg, reg+1))
    def fstamp(self):
        if not self.o.get('fine'): return
        self.a('s_memtime s[%d:%d]' % (sTS+2*self.nts, sTS+2*self.nts+1))
        self.nts += 1

    def dump_stamps(self, slot0=0):
        if not self.o['ts']: return
        a = self.a
        a('s_waitcnt lgkmcnt(0)')
        a('s_lshl_b32 %s, s2, 3' % sA); a('s_add_u32 %s, %s, %s' % (sA, sA, sW)); a('s_lshl_b32 %s, %s, 7' % (sA, sA))
        a('s_add_u32 %s, %s, 0x%x' % (sA, sA, WS_TS + slot0*4))
        a('s_mov_b64 exec, 1')
        a('v_mov_b32 %s, 0' % v(V.T+1))
        for i in range(self.nts):
            a('v_mov_b32 %s, s%d' % (v(V.T), sTS+2*i))
            a('buffer_store_dword %s, %s, %s, %s offen offset:%d' % (v(V.T), v(V.T+1), SWS, sA, 4*i))
            a('s_nop 1')
        a('s_mov_b64 exec, -1')
        self.nts = 0

    def prologue(self, end):
        a = self.a
        a('s_cmp_ge_u32 s2, 0x100')
        a('s_cbranch_scc1 %s' % end)
        self.stamp()
        a('s_bfe_u32 %s, s2, 0x10003' % sP)
        a('s_mul_i32 s3, %s, 24' % sP)
        a('s_add_u32 s28, s0, s3')
        a('s_addc_u32 s29, s1, 0')
        a('s_load_dwordx2 s[4:5], s[28:29], 0x0')
        a('s_load_dwordx2 s[8:9], s[28:29], 0x8')
        a('s_load_dwordx2 s[12:13], s[28:29], 0x10')
        a('s_load_dwordx2 s[16:17], s[0:1], 0x30')
        a('s_load_dwordx2 s[20:21], s[0:1], 0x38')
        a('s_load_dwordx2 s[24:25], s[0:1], 0x40')
        a('v_lshrrev_b32 %s, 6, v0' % v(V.T))
        a('v_and_b32 %s, 63, v0' % v(V.lane))
        a('v_readfirstlane_b32 %s, %s' % (sW, v(V.T)))
        a('s_and_b32 %s, s2, 7' % sA)
        a('s_xor_b32 %s, %s, 2' % (sA, sA))
        a('s_lshl_b32 %s, %s, 4' % (sT, sA))
        a('s_lshr_b32 %s, s2, 4' % sB)
        a('s_or_b32 %s, %s, %s' % (sT, sT, sB))
        a('s_lshl_b32 %s, %s, 1' % (sCB, sA))
        a('s_bfe_u32 %s, %s, 0x10001' % (sC, sB))
        a('s_or_b32 %s, %s, %s' % (sCB, sCB, sC))
        a('s_bfe_u32 %s, %s, 0x20002' % (sSB, sB))
        a('s_lshl_b32 %s, %s, 1' % (sSB, sSB))
        a('s_and_b32 %s, %s, 1' % (sC, sB))
        a('s_or_b32 %s, %s, %s' % (sSB, sSB, sC))
        a('s_mov_b32 s6, 0x400000'); a('s_mov_b32 s7, 0x20000')
        a('s_mov_b32 s10, 2101248'); a('s_mov_b32 s11, 0x20000')
        a('s_mov_b32 s14, 2101248'); a('s_mov_b32 s15, 0x20000')
        a('s_mov_b32 s18, 0x800000'); a('s_mov_b32 s19, 0x20000')
        a('s_mov_b32 s22, 256'); a('s_mov_b32 s23, 0x20000')
        a('s_mov_b32 s26, 0x%x' % WS_SIZE); a('s_mov_b32 s27, 0x20000')
        a('v_lshrrev_b32 %s, 4, %s' % (v(V.g), v(V.lane)))
        a('v_and_b32 %s, 15, %s' % (v(V.n), v(V.lane)))
        a('v_lshlrev_b32 %s, 4, %s' % (v(V.l16), v(V.lane)))

    def prologue1(self, end):
        a = self.a; T = V.T
        a('s_cmp_ge_u32 s2, 0x100')
        a('s_cbranch_scc1 %s' % end)
        if 'da' in self.o: a('s_memrealtime s[56:57]'); self.mark('start')
        a('s_bfe_u32 %s, s2, 0x%x' % (sP, 0x10002 if self.o['optx'] else 0x10003))
        a('s_mul_i32 s3, %s, 24' % sP)
        a('s_load_dwordx2 s[4:5], s[0:1], s3')
        a('s_load_dwordx2 s[24:25], s[0:1], 0x40')
        a('s_load_dwordx2 s[8:9], s[0:1], s3 offset:8')
        a('s_load_dwordx2 s[12:13], s[0:1], s3 offset:16')
        a('s_load_dwordx2 s[16:17], s[0:1], 0x30')
        a('s_load_dwordx2 s[20:21], s[0:1], 0x38')
        self.stamp()
        a('v_lshrrev_b32 %s, 6, v0' % v(T))
        a('v_and_b32 %s, 63, v0' % v(V.lane))
        a('v_readfirstlane_b32 %s, %s' % (sW, v(T)))
        if self.o['optx']:
            a('s_and_b32 %s, s2, 3' % sA)
            a('s_bfe_u32 %s, s2, 0x10003' % sB)
            a('s_lshl1_add_u32 %s, %s, %s' % (sA, sA, sB))
        else: a('s_and_b32 %s, s2, 7' % sA)
        a('s_lshr_b32 %s, s2, 4' % sB)
        a('s_lshl4_add_u32 %s, %s, %s' % (sT, sA, sB))
        a('s_bfe_u32 %s, %s, 0x10001' % (sC, sB))
        a('s_lshl1_add_u32 %s, %s, %s' % (sCB, sA, sC))
        a('s_lshr_b32 %s, %s, 2' % (sSB, sB))
        a('s_and_b32 %s, %s, 1' % (sC, sB))
        a('s_lshl1_add_u32 %s, %s, %s' % (sSB, sSB, sC))
        a('s_mov_b32 s6, 0x400000'); a('s_mov_b32 s7, 0x20000')
        a('v_lshrrev_b32 %s, 4, %s' % (v(V.g), v(V.lane)))
        a('v_lshlrev_b32 %s, 4, %s' % (v(V.l16), v(V.lane)))
        a('v_and_b32 %s, 8, v0' % v(T))
        a('v_lshlrev_b32 %s, 11, %s' % (v(T), v(T)))
        a('v_lshl_add_u32 %s, %s, 20, %s' % (v(T), v(V.g), v(T)))
        a('v_and_b32 %s, 0x70, %s' % (v(T+1), v(V.l16)))
        a('v_add_u32 %s, %s, %s' % (v(V.Xoff), v(T), v(T+1)))
        a('s_lshl4_add_u32 %s, %s, %s' % (sA, sW, sSB))
        a('s_lshl4_add_u32 %s, %s, %s' % (sA, sA, sCB))
        a('s_lshl_b32 %s, %s, 7' % (sO[0], sA))
        for r in range(1, 4): a('s_add_u32 %s, %s, 0x%x' % (sO[r], sO[0], r*262144))
        a('v_and_b32 %s, 15, %s' % (v(V.n), v(V.lane)))
        a('s_mov_b32 s26, 0x%x' % WS_SIZE); a('s_mov_b32 s27, 0x20000')
        a('s_lshl_b32 %s, %s, 7' % (sRd, sP))
    def srds(self):
        a = self.a
        a('s_mov_b32 s10, 2101248'); a('s_mov_b32 s11, 0x20000')
        a('s_mov_b32 s14, 2101248'); a('s_mov_b32 s15, 0x20000')
        a('s_mov_b32 s18, 0x800000'); a('s_mov_b32 s19, 0x20000')
        a('s_mov_b32 s22, 256'); a('s_mov_b32 s23, 0x20000')

    def probe_issue(self):
        a = self.a
        a('s_lshl3_add_u32 %s, %s, %s' % (sEst, sP, sW)); a('s_lshl_b32 %s, %s, 21' % (sEst, sEst))
        a('s_and_b32 %s, %s, 0x60' % (sA, sT)); a('s_add_u32 %s, %s, %s' % (sA, sA, sT)); a('s_lshl_b32 %s, %s, 8' % (sA, sA))
        a('s_add_u32 %s, %s, %s' % (sA, sA, sEst))
        for i in range(8): a('s_mov_b32 s%d, 0x%x' % (84+i, SENT))
        for k, side in ((0, 0), (0, 1), (1, 1), (1, 0), (2, 1), (2, 0), (3, 0), (3, 1)):
            a('s_load_dword s%d, s[24:25], %s offset:0x%x glc' % (84+4*side+k, sA, k*65536+side*8192))
    def probe_eval(self):
        a = self.a
        a('s_mov_b32 %s, 0' % sA); a('s_mov_b32 %s, 0' % sB)
        a('s_waitcnt lgkmcnt(4)')
        for k in range(4):
            a('s_cmp_lg_u32 s%d, 0x%x' % (84+k, SENT)); a('s_addc_u32 %s, %s, 0' % (sA, sA))
            a('s_cmp_lg_u32 s%d, 0x%x' % (88+k, SENT)); a('s_addc_u32 %s, %s, 0' % (sB, sB))
        a('s_cmp_gt_u32 %s, %s' % (sB, sA))
        a('s_cselect_b32 %s, 1, 0' % sCh)
        if self.o['force'] != '':
            a('s_and_b32 %s, %s, 1' % (sC, sW)); a('s_xor_b32 %s, %s, %s' % (sC, sC, sP)); a('s_xor_b32 %s, %s, %s' % (sCh, sC, self.o['force']))
        if self.o['ts']:
            a('s_lshl4_add_u32 s%d, %s, %s' % (sTS+24, sA, sB))
    def ex_addrs_ib(self):
        a = self.a; T = V.T
        a('s_lshl_b32 %s, %s, 4' % (sB, sW)); a('s_xor_b32 %s, %s, %s' % (sB, sB, sT)); a('s_lshl_b32 %s, %s, 8' % (sB, sB))
        a('v_lshlrev_b32 %s, 4, %s' % (v(T), v(V.n)))
        a('v_lshl_add_u32 %s, %s, 10, %s' % (v(T), v(V.g), v(T)))
        a('v_xor_b32 %s, %s, %s' % (v(T), sB, v(T)))
        a('v_and_b32 %s, 0x6000, %s' % (v(T+1), v(T)))
        a('v_add_u32 %s, %s, %s' % (v(T), v(T), v(T+1)))
        a('v_lshl_add_u32 %s, %s, 18, %s' % (v(V.Est), v(V.g), v(T)))
        a('v_and_b32 %s, 0xdcff, %s' % (v(V.Eld), v(T)))
        a('s_lshl_b32 %s, %s, 13' % (sA, sCh)); a('s_add_u32 %s, %s, %s' % (sEst, sEst, sA))
        a('s_lshr_b32 %s, %s, 4' % (sA, sT)); a('s_lshl3_add_u32 %s, %s, %s' % (sA, sP, sA)); a('s_lshl_b32 %s, %s, 21' % (sA, sA))
        a('s_and_b32 %s, %s, 15' % (sEld, sT)); a('s_lshl_b32 %s, %s, 16' % (sEld, sEld)); a('s_add_u32 %s, %s, %s' % (sEld, sEld, sA))
    def ld_addrs_ib(self):
        a = self.a; T = V.T
        a('v_lshrrev_b32 %s, %s, %s' % (v(T), v(V.dummy), sRv))
        for q in range(4):
            a('v_bfe_u32 %s, %s, %d, 1' % (v(T+1), v(T), q))
            a('v_lshl_add_u32 %s, %s, 13, %s' % (v(V.EL+q), v(T+1), v(V.Eld)))

    def ex_addrs(self):
        a = self.a
        if self.o['skew']:
            T = V.T
            a('s_lshl_b32 %s, %s, 4' % (sB, sW)); a('s_xor_b32 %s, %s, %s' % (sB, sB, sT)); a('s_lshl_b32 %s, %s, 8' % (sB, sB))
            a('v_lshlrev_b32 %s, 4, %s' % (v(T), v(V.n)))
            a('v_lshl_add_u32 %s, %s, 10, %s' % (v(T), v(V.g), v(T)))
            a('v_xor_b32 %s, %s, %s' % (v(T), sB, v(T)))
            if self.o['numa'] != '':
                pol = int(self.o['numa'][1]); mode = self.o['numa'][0]
                if mode == 'p':
                    a('v_and_b32 %s, 0x6000, %s' % (v(T+1), v(T)))
                    a('v_add_u32 %s, %s, %s' % (v(T), v(T), v(T+1)))
                    a('v_lshl_add_u32 %s, %s, 18, %s' % (v(V.Est), v(V.g), v(T)))
                    a('v_and_b32 %s, 0xdcff, %s' % (v(V.Eld), v(T)))
                    a('s_lshr_b32 %s, %s, 1' % (sA, sW)); a('s_lshr_b32 %s, %s, 6' % (sD, sT)); a('s_xor_b32 %s, %s, %s' % (sA, sA, sD))
                    a('s_lshr_b32 %s, %s, 5' % (sC, sT)); a('s_lshr_b32 %s, %s, 2' % (sD, sW)); a('s_xor_b32 %s, %s, %s' % (sC, sC, sD))
                    if pol: a('s_xor_b32 %s, %s, 1' % (sA, sA)); a('s_xor_b32 %s, %s, 1' % (sC, sC))
                    a('s_and_b32 %s, %s, 1' % (sA, sA)); a('s_and_b32 %s, %s, 1' % (sC, sC))
                    a('s_lshl_b32 %s, %s, 13' % (sA, sA)); a('s_lshl_b32 %s, %s, 13' % (sC, sC))
                    a('s_lshl_b32 %s, %s, 25' % (sD, sP)); a('s_add_u32 %s, %s, %s' % (sA, sA, sD)); a('s_add_u32 %s, %s, %s' % (sC, sC, sD))
                    a('s_lshl_b32 %s, %s, 20' % (sEst, sW)); a('s_add_u32 %s, %s, %s' % (sEst, sEst, sA))
                    a('s_lshl_b32 %s, %s, 16' % (sEld, sT)); a('s_add_u32 %s, %s, %s' % (sEld, sEld, sC))
                    return
                a('v_and_b32 %s, 0x6000, %s' % (v(T+1), v(T)))
                a('v_add_u32 %s, %s, %s' % (v(T), v(T), v(T+1)))
                a('v_lshl_add_u32 %s, %s, 18, %s' % (v(V.Est), v(V.g), v(T)))
                a('v_and_b32 %s, 0xdcff, %s' % (v(V.Eld), v(T)))
                if mode == 'x':
                    a('s_bfe_u32 %s, %s, 0x10001' % (sA, sW)); a('s_xor_b32 %s, %s, %s' % (sA, sA, sP))
                    a('s_bfe_u32 %s, %s, 0x10005' % (sC, sT)); a('s_xor_b32 %s, %s, %s' % (sC, sC, sP))
                    if pol: a('s_xor_b32 %s, %s, 1' % (sA, sA)); a('s_xor_b32 %s, %s, 1' % (sC, sC))
                    a('s_lshl_b32 %s, %s, 13' % (sA, sA)); a('s_lshl_b32 %s, %s, 13' % (sC, sC))
                    a('s_lshl_b32 %s, %s, 20' % (sEst, sW)); a('s_add_u32 %s, %s, %s' % (sEst, sEst, sA))
                    a('s_lshl_b32 %s, %s, 16' % (sEld, sT)); a('s_add_u32 %s, %s, %s' % (sEld, sEld, sC))
                else:
                    a('s_lshr_b32 %s, %s, 1' % (sA, sW)); a('s_lshr_b32 %s, %s, 2' % (sD, sW)); a('s_xor_b32 %s, %s, %s' % (sA, sA, sD))
                    a('s_lshr_b32 %s, %s, 5' % (sC, sT)); a('s_lshr_b32 %s, %s, 6' % (sD, sT)); a('s_xor_b32 %s, %s, %s' % (sC, sC, sD))
                    if pol: a('s_xor_b32 %s, %s, 1' % (sA, sA)); a('s_xor_b32 %s, %s, 1' % (sC, sC))
                    a('s_and_b32 %s, %s, 1' % (sA, sA)); a('s_and_b32 %s, %s, 1' % (sC, sC))
                    a('s_lshl_b32 %s, %s, 13' % (sA, sA)); a('s_lshl_b32 %s, %s, 13' % (sC, sC))
                    a('s_lshl_b32 %s, %s, 22' % (sD, sP)); a('s_add_u32 %s, %s, %s' % (sA, sA, sD)); a('s_add_u32 %s, %s, %s' % (sC, sC, sD))
                    a('s_and_b32 %s, %s, 3' % (sEst, sW)); a('s_lshl_b32 %s, %s, 20' % (sEst, sEst)); a('s_add_u32 %s, %s, %s' % (sEst, sEst, sA))
                    a('s_and_b32 %s, %s, 63' % (sEld, sT)); a('s_lshl_b32 %s, %s, 16' % (sEld, sEld)); a('s_add_u32 %s, %s, %s' % (sEld, sEld, sC))
                return
            a('v_lshl_add_u32 %s, %s, 17, %s' % (v(V.Est), v(V.g), v(T)))
            a('v_and_b32 %s, 0x7cff, %s' % (v(V.Eld), v(T)))
            a('s_lshl_b32 %s, %s, 22' % (sA, sP))
            a('s_lshl_b32 %s, %s, 19' % (sEst, sW)); a('s_add_u32 %s, %s, %s' % (sEst, sEst, sA))
            a('s_lshl_b32 %s, %s, 15' % (sEld, sT)); a('s_add_u32 %s, %s, %s' % (sEld, sEld, sA))
            return
        a('v_lshlrev_b32 %s, 4, %s' % (v(V.T), v(V.n)))
        a('v_lshl_add_u32 %s, %s, 17, %s' % (v(V.Est), v(V.g), v(V.T)))
        a('v_lshl_add_u32 %s, %s, 10, %s' % (v(V.Eld), v(V.g), v(V.T)))
        a('s_lshl_b32 %s, %s, 22' % (sA, sP))
        a('s_lshl_b32 %s, %s, 19' % (sEst, sW)); a('s_add_u32 %s, %s, %s' % (sEst, sEst, sA))
        a('s_lshl_b32 %s, %s, 8' % (sB, sT)); a('s_add_u32 %s, %s, %s' % (sEst, sEst, sB))
        a('s_lshl_b32 %s, %s, 15' % (sEld, sT)); a('s_add_u32 %s, %s, %s' % (sEld, sEld, sA))
        a('s_lshl_b32 %s, %s, 12' % (sB, sW)); a('s_add_u32 %s, %s, %s' % (sEld, sEld, sB))

    def trig(self, x, re, im, conj_re=None, conj_im=None):
        a = self.a; c, s = V.T+8, V.T+9
        a('v_cos_f32 %s, %s' % (v(c), v(x)))
        a('v_sin_f32 %s, %s' % (v(s), v(x)))
        a('v_cvt_pk_bf16_f32 %s, %s, %s' % (v(re), v(c), v(s)))
        a('v_cvt_pk_bf16_f32 %s, -%s, %s' % (v(im), v(s), v(c)))
        if conj_re is not None:
            a('v_cvt_pk_bf16_f32 %s, %s, -%s' % (v(conj_re), v(c), v(s)))
            a('v_cvt_pk_bf16_f32 %s, %s, %s' % (v(conj_im), v(s), v(c)))

    def gen_F16(self):
        a = self.a; T = V.T
        a('v_cvt_f32_u32 %s, %s' % (v(T), v(V.n)))
        a('v_mul_f32 %s, %s, %s' % (v(T), lit(1/16), v(T)))
        a('v_cvt_f32_u32 %s, %s' % (v(T+1), v(V.g)))
        a('v_mul_f32 %s, 4.0, %s' % (v(T+1), v(T+1)))
        a('v_mul_f32 %s, %s, %s' % (v(T+2), v(T), v(T+1)))
        for r in range(4):
            self.trig(T+2, V.F16+r, V.F16+4+r)
            if r < 3: a('v_add_f32 %s, %s, %s' % (v(T+2), v(T+2), v(T)))

    def gen_M2(self):
        a = self.a; T = V.T
        a('v_cvt_f32_u32 %s, %s' % (v(T+1), v(V.g)))
        a('v_mul_f32 %s, 4.0, %s' % (v(T+1), v(T+1)))
        def normal():
            a('v_lshl_add_u32 %s, %s, 4, %s' % (v(T), v(V.n), sW))
            a('v_cvt_f32_u32 %s, %s' % (v(T), v(T)))
            a('v_mul_f32 %s, %s, %s' % (v(T), lit(1/256), v(T)))
            a('v_mul_f32 %s, %s, %s' % (v(T+2), v(T), v(T+1)))
            for r in range(4):
                self.trig(T+2, V.M2+r, V.M2+4+r, V.M2+8+r, V.M2+12+r)
                if r < 3: a('v_add_f32 %s, %s, %s' % (v(T+2), v(T+2), v(T)))
        def w0():
            a('v_lshrrev_b32 %s, 1, %s' % (v(T), v(V.n)))
            a('v_cvt_f32_u32 %s, %s' % (v(T), v(T)))
            a('v_lshlrev_b32 %s, 31, %s' % (v(T+3), v(V.n)))
            a('v_add_f32 %s, 0.5, %s' % (v(T+4), v(T)))
            a('v_xor_b32 %s, %s, %s' % (v(T+3), lit(1/16), v(T+3)))
            a('v_mul_f32 %s, %s, %s' % (v(T), v(T), v(T+3)))
            a('v_mul_f32 %s, %s, %s' % (v(T+4), v(T+4), v(T+3)))
            a('v_cmp_ne_u32 vcc, 1, %s' % v(V.n))
            a('v_cndmask_b32 %s, 0.5, %s, vcc' % (v(T), v(T)))
            for ts in range(2):
                d = T+4*ts
                a('v_mul_f32 %s, %s, %s' % (v(T+2), v(d), v(T+1)))
                for r in range(4):
                    self.trig(T+2, V.M2+8*ts+r, V.M2+8*ts+4+r)
                    if r < 3: a('v_add_f32 %s, %s, %s' % (v(T+2), v(T+2), v(d)))
        self.ifelse(sW, 0, w0, normal)

    def gen_M3(self):
        a = self.a; T = V.T
        a('v_cvt_f32_u32 %s, %s' % (v(T), v(V.n)))
        a('v_mul_f32 %s, %s, %s' % (v(T+1), lit(1/256), v(T)))
        a('v_mul_f32 %s, %s, %s' % (v(T), lit(1/16), v(T)))
        def normal():
            a('v_lshl_add_u32 %s, %s, 6, %s' % (v(T+2), v(V.g), sW))
            a('v_cvt_f32_u32 %s, %s' % (v(T+2), v(T+2)))
            a('v_mul_f32 %s, %s, %s' % (v(T+2), v(T+2), v(T+1)))
            for r in range(4):
                self.trig(T+2, V.M2+r, V.M2+4+r, V.M2+8+r, V.M2+12+r)
                if r < 3: a('v_add_f32 %s, %s, %s' % (v(T+2), v(T+2), v(T)))
        def w0():
            for ts in range(2):
                a('v_lshlrev_b32 %s, 5, %s' % (v(T+2), v(V.g)))
                if ts: a('v_add_u32 %s, 8, %s' % (v(T+2), v(T+2)))
                a('v_cvt_f32_u32 %s, %s' % (v(T+2), v(T+2)))
                a('v_mul_f32 %s, %s, %s' % (v(T+2), v(T+2), v(T+1)))
                for eb in range(2):
                    b = V.M2+8*ts
                    self.trig(T+2, b+2*eb, b+4+2*eb, b+2*eb+1, b+4+2*eb+1)
                    if eb == 0: a('v_add_f32 %s, %s, %s' % (v(T+2), v(T+2), v(T)))
            a('s_mov_b64 exec, 0xffff')
            a('v_lshlrev_b32 %s, 15, %s' % (v(T+2), v(V.n)))
            a('v_and_b32 %s, 0x8000, %s' % (v(T+2), v(T+2)))
            a('v_or_b32 %s, 0x3f80, %s' % (v(V.M2+1), v(T+2)))
            a('v_lshlrev_b32 %s, 16, %s' % (v(V.M2+5), v(V.M2+1)))
            a('s_mov_b64 exec, -1')
        self.ifelse(sW, 0, w0, normal)

    def sigma_lane(self, dst):
        a = self.a; T = V.T
        a('v_and_b32 %s, 17, %s' % (v(dst), v(V.lane)))
        a('v_bfe_u32 %s, %s, 2, 2' % (v(T+7), v(V.lane)))
        a('v_lshl_add_u32 %s, %s, 1, %s' % (v(dst), v(T+7), v(dst)))
        a('v_bfe_u32 %s, %s, 1, 1' % (v(T+7), v(V.lane)))
        a('v_lshl_add_u32 %s, %s, 3, %s' % (v(dst), v(T+7), v(dst)))

    def gen_F32TW(self):
        a = self.a; T = V.T
        self.sigma_lane(T)
        a('v_cvt_f32_u32 %s, %s' % (v(T), v(T)))
        a('v_mul_f32 %s, %s, %s' % (v(T), lit(1/1024), v(T)))
        a('v_lshrrev_b32 %s, 5, %s' % (v(T+1), v(V.lane)))
        a('v_cvt_f32_u32 %s, %s' % (v(T+1), v(T+1)))
        a('v_add_f32 %s, %s, %s' % (v(T+1), v(T+1), v(T+1)))
        a('v_mul_f32 %s, %s, %s' % (v(T+1), v(T+1), v(T)))
        for rho in range(16):
            k = sigma(8*(rho >> 2) + (rho & 3))
            a('v_fmamk_f32 %s, %s, %s, %s' % (v(T+2), v(T), lit(float(k)), v(T+1)))
            a('v_mul_f32 %s, %s, %s' % (v(T+3), lit(32.0), v(T+2)))
            a('v_cos_f32 %s, %s' % (v(V.TW+rho), v(T+2)))
            a('v_sin_f32 %s, %s' % (v(V.TW+16+rho), v(T+2)))
            self.trig(T+3, V.F32+rho, V.F32+16+rho)

    def coop_gen(self):
        a = self.a; T = V.T; X = V.DA
        self.sigma_lane(T)
        a('v_cvt_f32_u32 %s, %s' % (v(T), v(T)))
        a('v_mul_f32 %s, %s, %s' % (v(T), lit(1/1024), v(T)))
        a('s_and_b32 %s, %s, 1' % (sA, sW)); a('s_lshl_b32 %s, %s, 3' % (sA, sA))
        a('s_and_b32 %s, %s, 2' % (sB, sW)); a('s_lshl_b32 %s, %s, 1' % (sB, sB)); a('s_add_u32 %s, %s, %s' % (sA, sA, sB))
        a('s_and_b32 %s, %s, 4' % (sB, sW)); a('s_lshl_b32 %s, %s, 2' % (sB, sB)); a('s_add_u32 %s, %s, %s' % (sA, sA, sB))
        a('v_lshrrev_b32 %s, 5, %s' % (v(T+1), v(V.lane)))
        a('v_lshl_add_u32 %s, %s, 1, %s' % (v(T+1), v(T+1), sA))
        a('v_cvt_f32_u32 %s, %s' % (v(T+1), v(T+1)))
        a('v_mul_f32 %s, %s, %s' % (v(T+2), v(T+1), v(T)))
        for e in range(2):
            a('v_mul_f32 %s, %s, %s' % (v(T+3), lit(32.0), v(T+2)))
            if self.o['shear']:
                a('v_mul_f32 %s, 0.5, %s' % (v(T+4), v(T+2)))
                a('v_cos_f32 %s, %s' % (v(T+5), v(T+4)))
                a('v_sin_f32 %s, %s' % (v(T+6), v(T+4)))
                a('v_rcp_f32 %s, %s' % (v(T+5), v(T+5)))
                a('v_mul_f32 %s, %s, %s' % (v(X+4+e), v(T+6), v(T+5)))
                a('v_fma_f32 %s, %s, %s, 1.0' % (v(T+5), v(X+4+e), v(X+4+e)))
                a('v_rcp_f32 %s, %s' % (v(T+6), v(T+5)))
                a('v_fma_f32 %s, -%s, %s, 1.0' % (v(T+5), v(T+5), v(T+6)))
                a('v_fmac_f32 %s, %s, %s' % (v(T+6), v(T+5), v(T+6)))
                a('v_mul_f32 %s, -2.0, %s' % (v(T+6), v(T+6)))
                a('v_mul_f32 %s, %s, %s' % (v(X+6+e), v(T+6), v(X+4+e)))
            else:
                a('v_cos_f32 %s, %s' % (v(X+4+e), v(T+2)))
                a('v_sin_f32 %s, %s' % (v(X+6+e), v(T+2)))
            self.trig(T+3, X+e, X+2+e)
            if e == 0: a('v_add_f32 %s, %s, %s' % (v(T+2), v(T+2), v(T)))
        a('s_lshr_b32 %s, %s, 1' % (sA, sW)); a('s_lshl_b32 %s, %s, 10' % (sA, sA))
        a('s_and_b32 %s, %s, 1' % (sB, sW)); a('s_lshl_b32 %s, %s, 3' % (sB, sB)); a('s_add_u32 %s, %s, %s' % (sA, sA, sB))
        a('s_add_u32 %s, %s, %d' % (sA, sA, TABL))
        a('v_add_u32 %s, %s, %s' % (v(T), sA, v(V.l16)))
        for k in range(4):
            a('ds_write_b64 %s, %s offset:%d' % (v(T), vr(X+2*k, 2), 4096*k))
    def coop_init(self):
        a = self.a; T = V.T
        a('v_mov_b32 %s, %d' % (v(V.dummy2), CNT)); a('v_mov_b32 %s, 0' % v(T))
        a('ds_write_b32 %s, %s' % (v(V.dummy2), v(T)))
    def coop_post(self):
        a = self.a; T = V.T
        a('v_mov_b32 %s, 1' % v(T+1))
        a('ds_add_u32 %s, %s' % (v(V.dummy2), v(T+1)))
    def coop_wait(self):
        a = self.a; T = V.T; lp, ok = self.label('cw'), self.label('cwok')
        a('s_mov_b32 %s, 0' % sCnt)
        a(lp+':')
        a('ds_read_b32 %s, %s' % (v(T), v(V.dummy2)))
        a('s_add_u32 %s, %s, 1' % (sCnt, sCnt))
        a('s_cmp_gt_u32 %s, 0x%x' % (sCnt, SPIN_MAX*8))
        a('s_waitcnt lgkmcnt(0)')
        a('s_cbranch_scc1 %s' % ok)
        a('v_cmp_gt_u32 vcc, 0x200, %s' % v(T))
        a('s_cbranch_vccnz %s' % lp)
        a(ok+':')
    def coop_read(self):
        a = self.a; T = V.T
        assert V.TW == V.F32+32
        a('v_add_u32 %s, %d, %s' % (v(T), TABL, v(V.l16)))
        for k in range(16):
            a('ds_read_b128 %s, %s offset:%d' % (vr(V.F32+4*k, 4), v(T), 1024*k))

    def calc_k0(self):
        a = self.a
        a('s_lshr_b32 %s, %s, 4' % (sA, sT))
        a('s_and_b32 %s, %s, 15' % (sB, sT))
        a('s_lshl_b32 %s, %s, 4' % (sK0, sB))
        a('s_add_u32 %s, %s, %s' % (sK0, sK0, sA))
        a('s_lshr_b32 %s, %s, 2' % (sC, sB)); a('s_lshl_b32 %s, %s, 5' % (sC, sC))
        a('s_and_b32 %s, %s, 1' % (sD, sB)); a('s_lshl_b32 %s, %s, 4' % (sD, sD)); a('s_add_u32 %s, %s, %s' % (sC, sC, sD))
        a('s_and_b32 %s, %s, 2' % (sD, sB)); a('s_lshl_b32 %s, %s, 2' % (sD, sD)); a('s_add_u32 %s, %s, %s' % (sC, sC, sD))
        a('s_cmp_eq_u32 %s, 0' % sA)
        a('s_cselect_b32 %s, %s, %s' % (sK0, sC, sK0))
        a('s_cmp_eq_u32 %s, 0' % sT)
        a('s_cselect_b32 %s, 7, 8' % sA)
        a('s_lshl_b32 %s, %s, %s' % (sKP, sW, sA))
        a('s_add_u32 %s, %s, %s' % (sKP, sKP, sK0))
        a('s_sub_u32 %s, 0x800, %s' % (sKM, sKP))
        a('s_cmp_eq_u32 %s, 0' % sKP)
        a('s_cselect_b32 %s, 0x400, %s' % (sKM, sKM))
        a('s_cselect_b32 %s, 1, 0' % sSpec)
        a('s_mul_i32 %s, %s, 1026' % (sKP, sKP))
        a('s_mul_i32 %s, %s, 1026' % (sKM, sKM))

    def wq(self, rho): return (rho & 1) + 8*((rho >> 1) & 1) + 4*((rho >> 2) & 1)
    def w_prep(self):
        a = self.a
        a('s_mul_i32 %s, %s, 4224' % (sWL, sW))
        a('s_add_u32 %s, %s, %d' % (sWL, sWL, WL))
        a('s_and_b32 %s, %s, 2' % (sA, sKP))
        a('s_add_u32 %s, %s, %s' % (sDP, sKP, sA)); a('s_add_u32 %s, %s, %s' % (sDM, sKM, sA))
    def w_dma1(self, i):
        a = self.a
        srd, so = [(SWR, sDP), (SWI, sDP), (SWR, sDM), (SWI, sDM)][i]
        a('s_add_u32 m0, %s, %d' % (sWL, 1056*i))
        a('buffer_load_dwordx4 %s, %s, %s offen %s lds' % (v(V.l16), srd, so, self.o['ldw']))
    def w_dma(self):
        for i in range(4): self.w_dma1(i)
    def w_sload(self):
        a = self.a; T = V.T
        a('s_mov_b64 exec, 15')
        a('v_mov_b32 %s, %s' % (v(T), sKP)); a('v_mov_b32 %s, %s' % (v(T+1), sKM))
        a('s_mov_b64 vcc, 10')
        a('v_cndmask_b32 %s, %s, %s, vcc' % (v(T), v(T), v(T+1)))
        a('v_and_b32 %s, 2, %s' % (v(T+1), v(V.lane)))
        a('v_lshl_add_u32 %s, %s, 9, %s' % (v(T), v(T+1), v(T)))
        a('buffer_load_short_d16_hi %s, %s, %s, 0 offen' % (v(V.WF), v(T), SWR))
        a('buffer_load_short_d16_hi %s, %s, %s, 0 offen' % (v(V.WF+1), v(T), SWI))
        a('s_mov_b64 exec, -1')
    def w_edge_rl(self):
        a = self.a
        for l in range(4):
            for im in range(2):
                a('v_readlane_b32 s%d, %s, %d' % (84+2*l+im, v(V.WF+im), l))
    def w_edge(self):
        a = self.a; T = V.T
        self.w_edge_rl()
        for i, (x, y, op) in enumerate(((84, 86, 'add'), (85, 87, 'sub'), (90, 88, 'add'), (91, 89, 'sub'))):
            a('v_mov_b32 %s, s%d' % (v(T), y))
            a('v_%s_f32 %s, s%d, %s' % (op, v(V.WF+i), x, v(T)))
            a('v_mul_f32 %s, 0.5, %s' % (v(V.WF+i), v(V.WF+i)))
        a('s_mov_b64 s[92:93], 1')
    def w_addr(self):
        a = self.a; T = V.T
        self.sigma_lane(T)
        a('v_lshrrev_b32 %s, 5, %s' % (v(T+1), v(V.lane)))
        a('v_lshlrev_b32 %s, 7, %s' % (v(T+1), v(T+1)))
        a('v_lshl_add_u32 %s, %s, 1, %s' % (v(T), v(T), v(T+1)))
        a('s_and_b32 %s, %s, 2' % (sD, sKP)); a('s_sub_u32 %s, %s, %s' % (sD, sWL, sD))
        a('v_add_u32 %s, %s, %s' % (v(V.WP), sD, v(T)))
        a('s_add_u32 %s, %s, %d' % (sD, sD, 1024-832))
        a('v_sub_u32 %s, %s, %s' % (v(V.WM), sD, v(T)))
    def w_read(self, rho, dst=None, swap=False):
        a = self.a; dst = V.W if dst is None else dst
        for im in range(2):
            if rho < 8: ad, off = V.WP, 64*self.wq(rho) + (2112 if swap else 0)
            else: ad, off = V.WM, 64*(13-self.wq(rho)) + (0 if swap else 2112)
            a('ds_read_u16_d16_hi %s, %s offset:%d' % (v(dst+16*im+rho), v(ad), off+1056*im))
    def w_fix(self, half):
        a = self.a
        for im in range(2):
            r = V.W+8*half+16*im
            a('v_cndmask_b32 %s, %s, %s, s[92:93]' % (v(r), v(r), v(V.WF+2*half+im)))
    def w_regs_early(self):
        a = self.a
        for rho in range(16): self.w_read(rho)
        a('s_waitcnt lgkmcnt(0)')
        self.w_fix(0); self.w_fix(1)
    def w_special(self):
        a = self.a; T = V.T
        l0, l1 = self.label('Wspec'), self.label('Wend')
        a('s_cmp_eq_u32 %s, 1' % sSpec)
        a('s_cbranch_scc1 %s' % l0)
        a(l1+':')
        def tail():
            X = V.DA
            a(l0+':')
            for rho in range(16): self.w_read(rho)
            for rho in range(16): self.w_read(rho, X, True)
            a('s_waitcnt lgkmcnt(0) vmcnt(0)')
            self.w_edge_rl()
            a('s_mov_b64 exec, 1')
            for r in (V.W+16, V.W+24, X+16, X+24): a('v_mov_b32 %s, 0' % v(r))
            a('v_mov_b32 %s, s90' % v(V.W+8)); a('v_mov_b32 %s, s88' % v(X+8))
            a('s_mov_b64 exec, -1')
            for i in range(32):
                a('v_add_f32 %s, %s, %s' % (v(T+3), v(V.W+i), v(X+i)))
                if (i & 15) < 8: a('v_sub_f32 %s, %s, %s' % (v(X+i), v(V.W+i), v(X+i)))
                else: a('v_sub_f32 %s, %s, %s' % (v(X+i), v(X+i), v(V.W+i)))
                a('v_mov_b32 %s, %s' % (v(V.W+i), v(T+3)))
            a('v_add_u32 %s, %d, %s' % (v(T+1), SCR_B, v(V.l16)))
            for i in range(8):
                a('ds_write_b128 %s, %s offset:%d' % (v(T+1), vr(X+4*i, 4), 1024*i))
            a('s_waitcnt lgkmcnt(0)')
            a('s_branch %s' % l1)
        self.tail.append(tail)

    def B_dup(self):
        a = self.a
        a('v_mov_b32 %s, %s' % (v(V.B+4), v(V.B))); a('v_mov_b32 %s, %s' % (v(V.B+5), v(V.B+1)))
        a('v_mov_b32 %s, %s' % (v(V.B+10), v(V.B+6))); a('v_mov_b32 %s, %s' % (v(V.B+11), v(V.B+7)))
    def gen_B(self, early=False, dup=True):
        a = self.a; T = V.T
        l0, l1 = self.label('Bspec'), self.label('Bend')
        a('s_cmp_eq_u32 %s, 0' % sT)
        a('s_cbranch_scc1 %s' % (l1 if early else l0))
        c, s = T+8, T+9
        a('v_lshrrev_b32 %s, 1, %s' % (v(T), v(V.n)))
        a('v_lshl_add_u32 %s, %s, 8, %s' % (v(T+1), v(T), sK0))
        a('v_cvt_f32_u32 %s, %s' % (v(T+1), v(T+1)))
        a('v_mul_f32 %s, %s, %s' % (v(T+1), lit(1/2048), v(T+1)))
        a('v_cvt_f32_u32 %s, %s' % (v(T+2), v(V.g)))
        a('v_add_f32 %s, %s, %s' % (v(T+2), v(T+2), v(T+2)))
        a('v_and_b32 %s, 1, %s' % (v(T+3), v(V.n)))
        a('v_cvt_f32_u32 %s, %s' % (v(T+3), v(T+3)))
        a('v_mul_f32 %s, %s, %s' % (v(T+4), lit(0.25), v(T+3)))
        a('v_mul_f32 %s, %s, %s' % (v(T+5), v(T+1), v(T+2)))
        for sbb in range(2):
            for half in range(2):
                a('v_%s_f32 %s, %s, %s' % ('sub' if half else 'add', v(T+6), v(T+5), v(T+4)))
                a('v_cos_f32 %s, %s' % (v(c), v(T+6)))
                a('v_sin_f32 %s, %s' % (v(s), v(T+6)))
                a('v_mul_f32 %s, %s, %s' % (v(c), lit(S11), v(c)))
                a('v_mul_f32 %s, %s, %s' % (v(s), lit(S11), v(s)))
                ng = '-' if half else ''
                a('v_cvt_pk_bf16_f32 %s, %s, %s%s' % (v(V.B+2*sbb+half), v(c), ng, v(s)))
                a('v_cvt_pk_bf16_f32 %s, -%s, %s%s' % (v(V.B+6+2*sbb+half), v(s), ng, v(c)))
            if sbb == 0: a('v_add_f32 %s, %s, %s' % (v(T+5), v(T+5), v(T+1)))
        a('v_cvt_f32_u32 %s, %s' % (v(T), v(T)))
        a('v_lshlrev_b32 %s, 31, %s' % (v(T+4), v(V.n)))
        a('v_xor_b32 %s, %s, %s' % (v(T), v(T), v(T+4)))
        a('v_xor_b32 %s, %s, %s' % (v(T+4), lit(S11), v(T+4)))
        a('v_lshl_add_u32 %s, %s, 9, %s' % (v(T+1), v(V.g), sK0))
        a('v_cvt_f32_u32 %s, %s' % (v(T+1), v(T+1)))
        a('v_mul_f32 %s, %s, %s' % (v(T+1), lit(1/2048), v(T+1)))
        a('v_mul_f32 %s, %s, %s' % (v(T+5), v(T+1), v(T)))
        a('v_fmac_f32 %s, 0.5, %s' % (v(T+5), v(T+3)))
        for ii in range(2):
            a('v_cos_f32 %s, %s' % (v(c), v(T+5)))
            a('v_sin_f32 %s, %s' % (v(s), v(T+5)))
            a('v_mul_f32 %s, %s, %s' % (v(T+6), v(T+4), v(c)))
            a('v_mul_f32 %s, %s, %s' % (v(T+7), v(T+4), v(s)))
            a('v_mul_f32 %s, %s, %s' % (v(c), lit(S11), v(c)))
            a('v_mul_f32 %s, %s, %s' % (v(s), lit(S11), v(s)))
            a('v_cvt_pk_bf16_f32 %s, %s, %s' % (v(V.Bp+2*ii), v(c), v(T+7)))
            a('v_cvt_pk_bf16_f32 %s, -%s, %s' % (v(V.Bp+4+2*ii), v(s), v(T+6)))
            a('v_cvt_pk_bf16_f32 %s, -%s, %s' % (v(V.Bp+2*ii+1), v(s), v(T+6)))
            a('v_cvt_pk_bf16_f32 %s, -%s, -%s' % (v(V.Bp+4+2*ii+1), v(c), v(T+7)))
            if ii == 0: a('v_fmac_f32 %s, %s, %s' % (v(T+5), lit(0.125), v(T)))
        a(l1+':')
        if dup: self.B_dup()
        def tail():
            a(l0+':')
            if not early: self.spec_load(); a('s_waitcnt vmcnt(0)')
            a('s_branch %s' % l1)
        if not early: self.tail.append(tail)
    def spec_load(self):
        a = self.a
        a('s_getpc_b64 s[28:29]')
        a('s_add_u32 s28, s28, spec_tab@rel32@lo+4')
        a('s_addc_u32 s29, s29, spec_tab@rel32@hi+12')
        a('global_load_dwordx4 %s, %s, s[28:29]' % (vr(V.B, 4), v(V.l16)))
        a('global_load_dwordx4 %s, %s, s[28:29] offset:1024' % (vr(V.B+6, 4), v(V.l16)))
        a('global_load_dwordx4 %s, %s, s[28:29] offset:2048' % (vr(V.Bp, 4), v(V.l16)))
        a('global_load_dwordx4 %s, %s, s[28:29] offset:3072' % (vr(V.Bp+4, 4), v(V.l16)))
    def spec_early(self):
        a = self.a
        def g():
            self.srds()
            a('s_mov_b32 %s, 0' % sDP); a('s_mov_b32 %s, %d' % (sDM, 1024*1026)); a('s_mov_b32 %s, %d' % (sWL, WL))
            self.w_dma()
        def f():
            self.spec_load(); self.cond(sW, 0, g)
        self.cond(sT, 0, f)

    def spec_table(self):
        tab = np.zeros((4, 64, 4, 2))
        for lane in range(64):
            m, g = lane & 15, lane >> 4
            for r in range(4):
                t, c = m >> 1, m & 1; sb, hf = 2*g + (r >> 1), r & 1
                if hf == (t & 1):
                    th = 2*math.pi*sb*t/16
                    tab[0, lane, r, c] = (2*S11 if t else S11)*math.cos(th)
                    tab[1, lane, r, c] = -2*S11*math.sin(th) if t else S11*(-1.0)**sb
                sb, hf = m >> 1, m & 1; t, c = 2*g + (r >> 1), r & 1
                if hf == (t & 1):
                    th = 2*math.pi*sb*t/16
                    if t: cre, cim = 2*math.cos(th), -2*math.sin(th)
                    else: cre, cim = 1.0, (-1.0)**sb
                    pl = 2 + (1 - c)
                    tab[pl, lane, r, 0] = S11*cim
                    tab[pl, lane, r, 1] = S11*cre
        tab[abs(tab) < 1e-12] = 0
        out = ['.p2align 6', '.type spec_tab,@object', 'spec_tab:']
        w = [bf16bits(tab[p, l, r, 0]) | bf16bits(tab[p, l, r, 1]) << 16 for p in range(4) for l in range(64) for r in range(4)]
        for i in range(0, len(w), 8):
            out.append('.long ' + ','.join('0x%x' % x for x in w[i:i+8]))
        return '\n'.join(out)

    def p1_load(self):
        a = self.a; T = V.T
        a('v_bfe_u32 %s, %s, 3, 1' % (v(T), v(V.lane)))
        a('v_lshlrev_b32 %s, 14, %s' % (v(T), v(T)))
        a('v_lshl_add_u32 %s, %s, 20, %s' % (v(T), v(V.g), v(T)))
        a('v_and_b32 %s, 0x70, %s' % (v(T+1), v(V.l16)))
        a('v_add_u32 %s, %s, %s' % (v(V.Xoff), v(T), v(T+1)))
        a('s_lshl_b32 %s, %s, 15' % (sO[0], sW))
        a('s_lshl_b32 %s, %s, 11' % (sA, sSB)); a('s_add_u32 %s, %s, %s' % (sO[0], sO[0], sA))
        a('s_lshl_b32 %s, %s, 7' % (sA, sCB)); a('s_add_u32 %s, %s, %s' % (sO[0], sO[0], sA))
        for r in range(1, 4): a('s_add_u32 %s, %s, 0x%x' % (sO[r], sO[0], r*262144))
    def p1_issue(self):
        a = self.a
        for r in range(4):
            a('buffer_load_dwordx4 %s, %s, %s, %s offen %s' % (vr(V.L+4*r, 4), v(V.Xoff), SX, sO[r], self.o['ldx']))
    def p1_addrs(self):
        a = self.a; T = V.T
        a('v_xor_b32 %s, %s, %s' % (v(T), sSB, v(V.lane)))
        a('v_and_b32 %s, 1, %s' % (v(T), v(T)))
        a('v_mul_u32_u24 %s, 16448, %s' % (v(T), v(T)))
        a('v_lshl_add_u32 %s, %s, 12, %s' % (v(T), v(V.g), v(T)))
        a('v_and_b32 %s, 14, %s' % (v(T+1), v(V.lane)))
        a('v_lshl_add_u32 %s, %s, 3, %s' % (v(T), v(T+1), v(T)))
        a('s_lshr_b32 %s, %s, 2' % (sA, sW)); a('s_lshl_b32 %s, %s, 9' % (sA, sA))
        a('s_and_b32 %s, %s, 1' % (sB, sW)); a('s_lshl_b32 %s, %s, 8' % (sB, sB)); a('s_add_u32 %s, %s, %s' % (sA, sA, sB))
        a('s_and_b32 %s, %s, 2' % (sB, sW)); a('s_lshl_b32 %s, %s, 6' % (sB, sB)); a('s_add_u32 %s, %s, %s' % (sA, sA, sB))
        if R0: a('s_add_u32 %s, %s, %d' % (sA, sA, R0))
        a('v_add_u32 %s, %s, %s' % (v(V.X0w), sA, v(T)))
        self.tr_lane(T, 512, 128)
        a('s_lshl_b32 %s, %s, 10' % (sA, sW))
        a('s_sub_u32 %s, 0x4000, %s' % (sB, sA))
        a('s_cmp_eq_u32 %s, 0' % sW)
        a('s_cselect_b32 %s, 0x2000, %s' % (sB, sB))
        if R0: a('s_add_u32 %s, %s, %d' % (sA, sA, R0)); a('s_add_u32 %s, %s, %d' % (sB, sB, R0))
        a('v_add_u32 %s, %s, %s' % (v(V.X0r0), sA, v(T)))
        a('v_add_u32 %s, %s, %s' % (v(V.X0r1), sB, v(T)))
    def tr_lane(self, dst, g1s, g0s, b3s=64):
        a = self.a; t = V.T+7
        sh = lambda x: int(math.log2(x))
        a('v_and_b32 %s, 0x30, %s' % (v(dst), v(V.l16)))
        for bit, st in ((2, 8), (3, b3s), (4, g0s), (5, g1s)):
            a('v_bfe_u32 %s, %s, %d, 1' % (v(t), v(V.lane), bit))
            a('v_lshl_add_u32 %s, %s, %d, %s' % (v(dst), v(t), sh(st), v(dst)))

    def mf16(self, d, A, B):
        self.a('v_mfma_f32_16x16x32_bf16 %s, %s, %s, 0' % (vr(d, 4), vr(A, 4), vr(B, 4)))
    def cvt(self, d, lo, hi):
        self.a('v_cvt_pk_bf16_f32 %s, %s, %s' % (v(d), v(lo), v(hi)))

    def p1_compute(self, nafter, hook=None, hook2=None, hook3=None, hook4=None, hook5=None):
        a = self.a; O, L, D = V.O, V.L, V.DA
        for r in range(4):
            a('s_waitcnt vmcnt(%d)' % (nafter + 3 - r))
            if r == 3: self.stamp()
            for t in range(4):
                a('v_mov_b32 %s, %s' % (v(O+4*t+r), v(L+4*r+t)))
        for t in range(4):
            self.mf16(D+4*t, V.F16, O+4*t)
            self.mf16(D+16+4*t, V.F16+4, O+4*t)
        if hook: hook()
        P = V.DB
        for r in range(4):
            self.cvt(P+4*r, D+r, D+4+r); self.cvt(P+4*r+2, D+16+r, D+20+r)
        for r in range(4):
            self.cvt(P+4*r+1, D+8+r, D+12+r); self.cvt(P+4*r+3, D+24+r, D+28+r)
            a('ds_write_b128 %s, %s offset:%d' % (v(V.X0w), vr(P+4*r, 4), 1024*r))
        self.mark('g1a')
        if hook5: hook5()
        self.mark('g1b')
        a('s_waitcnt lgkmcnt(0)')
        a('s_barrier')
        if hook4: hook4()
        for sel in range(2):
            for tau in range(2):
                for ii in range(2):
                    a('ds_read_b64_tr_b16 %s, %s offset:%d' % (vr(O+4*(2*sel+tau)+2*ii, 2), v(V.X0r1 if sel else V.X0r0), tau*16448+ii*256))
        if hook2: hook2()
        if hook3: hook3()
        for r in range(4): a('s_add_u32 %s, %s, 0x%x' % (sO[r], self.est(), self.ubase(0) + r*self.tstride()))
        for ti in range(4):
            a('s_waitcnt lgkmcnt(%d)' % (6-2*ti))
            self.mf16(D+4*ti, V.M2+8*(ti >> 1), O+4*ti)
            self.mf16(D+16+4*ti, V.M2+8*(ti >> 1)+4, O+4*ti)
        st = lambda i: a('buffer_store_dwordx4 %s, %s, %s, %s offen %s' % (vr(P+4*i, 4), v(V.Est), SWS, sO[i], self.o['st1']))
        def normal():
            for i in range(4):
                for tau in range(2): self.cvt(P+4*i+2*tau, D+4*tau+i, D+16+4*tau+i)
            for i in range(4):
                for tau in range(2): self.cvt(P+4*i+2*tau+1, D+4*(2+tau)+i, D+16+4*(2+tau)+i)
                st(i)
        def w0():
            for i in range(4):
                ts, eb = i >> 1, i & 1
                for tau in range(2):
                    for sg in range(2):
                        x = 4*(2*ts+tau)+2*eb+sg
                        self.cvt(P+4*i+2*tau+sg, D+x, D+16+x)
                st(i)
        self.ifelse(sW, 0, w0, normal)

    def p2_addrs(self):
        a = self.a; T = V.T
        a('v_lshlrev_b32 %s, 4, %s' % (v(T), v(V.n)))
        a('v_lshl_add_u32 %s, %s, 13, %s' % (v(T), v(V.g), v(T)))
        a('s_lshl_b32 %s, %s, 9' % (sA, sW)); a('s_add_u32 %s, %s, %d' % (sA, sA, R1))
        a('v_add_u32 %s, %s, %s' % (v(V.X1w), sA, v(T)))
    def p2_addrs2(self):
        a = self.a; T = V.T
        self.tr_lane(T, 256, 64, 128)
        a('s_lshl_b32 %s, %s, 12' % (sA, sW)); a('s_add_u32 %s, %s, %d' % (sA, sA, R1))
        a('v_add_u32 %s, %s, %s' % (v(V.X1r), sA, v(T)))
        a('v_and_b32 %s, 16, %s' % (v(T), v(V.l16)))
        for bit, st in ((1, 16448), (2, 8224)):
            a('v_bfe_u32 %s, %s, %d, 1' % (v(T+1), v(V.lane), bit))
            a('v_mul_u32_u24 %s, %d, %s' % (v(T+1), st, v(T+1)))
            a('v_add_u32 %s, %s, %s' % (v(T), v(T), v(T+1)))
        a('v_bfe_u32 %s, %s, 3, 2' % (v(T+1), v(V.lane)))
        a('v_lshl_add_u32 %s, %s, 11, %s' % (v(T), v(T+1), v(T)))
        a('v_and_b32 %s, 32, %s' % (v(T+1), v(V.lane)))
        a('v_add_u32 %s, %s, %s' % (v(T), v(T), v(T+1)))
        a('s_lshr_b32 %s, %s, 2' % (sA, sW)); a('s_lshl_b32 %s, %s, 9' % (sA, sA))
        a('s_and_b32 %s, %s, 1' % (sB, sW)); a('s_lshl_b32 %s, %s, 8' % (sB, sB)); a('s_add_u32 %s, %s, %s' % (sA, sA, sB))
        a('s_and_b32 %s, %s, 2' % (sB, sW)); a('s_lshl_b32 %s, %s, 6' % (sB, sB)); a('s_add_u32 %s, %s, %s' % (sA, sA, sB))
        if R0: a('s_add_u32 %s, %s, %d' % (sA, sA, R0))
        a('v_add_u32 %s, %s, %s' % (v(V.X2w), sA, v(T)))
        self.tr_lane(T, 512, 128)
        a('s_and_b32 %s, %s, 1' % (sA, sW)); a('s_lshl_b32 %s, %s, 11' % (sA, sA))
        a('s_bfe_u32 %s, %s, 0x10001' % (sB, sW)); a('s_mul_i32 %s, %s, 16448' % (sB, sB)); a('s_add_u32 %s, %s, %s' % (sA, sA, sB))
        a('s_lshr_b32 %s, %s, 2' % (sB, sW)); a('s_lshl_b32 %s, %s, 12' % (sB, sB)); a('s_add_u32 %s, %s, %s' % (sA, sA, sB))
        if R0: a('s_add_u32 %s, %s, %d' % (sA, sA, R0))
        a('v_add_u32 %s, %s, %s' % (v(V.X2r), sA, v(T)))

    def p2_issue(self):
        a = self.a
        a('s_add_u32 %s, %s, 0x%x' % (sA, sEld, self.ubase(0)))
        for q in range(4):
            a('buffer_load_dwordx4 %s, %s, %s, %s offen offset:%d %s' % (vr(V.L+12*(q >> 1)+4*(q & 1), 4), self.eld(q), SWS, sA, 256*q, self.o['ld1']))

    def mf32(self, d, i, dataA):
        for pl in range(2):
            M = vr(V.F32+16*pl+4*i, 4); X = vr(V.O+4*i, 4)
            A, B = (X, M) if dataA else (M, X)
            D = vr(d+16*pl, 16)
            self.a('v_mfma_f32_32x32x16_bf16 %s, %s, %s, %s' % (D, A, B, D if i else '0'))

    def cmul_stage(self, src, dst, dataA, coef, kind, prio=None, late=False):
        a = self.a; T = V.T
        if prio is not None and self.o['prio']: a('s_setprio %d' % prio)
        if kind == 'tw' and self.o['shear']:
            for i in range(4):
                for st in range(3):
                    for r in range(4):
                        rho = 4*i+r
                        x, y = v(src+rho), v(src+16+rho)
                        if st == 1: a('v_fmac_f32 %s, %s, %s' % (y, v(coef+16+rho), x))
                        else: a('v_fmac_f32 %s, %s, %s' % (x, v(coef+rho), y))
                for r in range(4): self.cvt(V.O+4*i+r, src+4*i+r, src+16+4*i+r)
                self.mf32(dst, i, dataA)
            return
        if late:
            a('s_waitcnt vmcnt(2)')
            for rho in range(8): self.w_read(rho)
        for i in range(4):
            if late:
                if i == 0: a('s_waitcnt lgkmcnt(8)'); self.w_fix(0)
                if i == 1:
                    a('s_waitcnt vmcnt(0)')
                    for rho in range(8, 12): self.w_read(rho)
                    a('s_waitcnt lgkmcnt(8)')
                if i == 2:
                    for rho in range(12, 16): self.w_read(rho)
                    a('s_waitcnt lgkmcnt(8)'); self.w_fix(1)
                if i == 3: a('s_waitcnt lgkmcnt(0)')
            for r in range(4):
                rho = 4*i+r
                x, y = v(src+rho), v(src+16+rho)
                c, s = v(coef+rho), v(coef+16+rho)
                t0, t1 = v(T+2*r), v(T+2*r+1)
                a('v_mul_f32 %s, %s, %s' % (t0, x, c))
                a('v_mul_f32 %s, %s, %s' % (t1, y, c))
            for r in range(4):
                rho = 4*i+r
                x, y = v(src+rho), v(src+16+rho)
                c, s = v(coef+rho), v(coef+16+rho)
                t0, t1 = v(T+2*r), v(T+2*r+1)
                if kind == 'tw' or rho >= 8:
                    a('v_fmac_f32 %s, %s, %s' % (t0, y, s))
                    a('v_fma_f32 %s, -%s, %s, %s' % (t1, x, s, t1))
                else:
                    a('v_fma_f32 %s, -%s, %s, %s' % (t0, y, s, t0))
                    a('v_fmac_f32 %s, %s, %s' % (t1, x, s))
            for r in range(4):
                if kind == 'tw': self.cvt(V.O+4*i+r, T+2*r, T+2*r+1)
                else: self.cvt(V.O+4*i+r, T+2*r+1, T+2*r)
            self.mf32(dst, i, dataA)

    def p2_compute(self, wl=None):
        a = self.a; O, L, D, T = V.O, V.L, V.DA, V.T
        late = wl is not None
        na = 0
        for cbb in range(2):
            b = L+12*cbb
            a('s_waitcnt vmcnt(%d)' % (na+3-2*cbb))
            a('v_mov_b32 %s, %s' % (v(b+8), v(b))); a('v_mov_b32 %s, %s' % (v(b+9), v(b+1)))
            a('s_waitcnt vmcnt(%d)' % (na+2-2*cbb))
            if cbb: self.stamp(); self.fstamp()
            for jj2 in (1, 0):
                ti = 2*cbb+jj2
                op = b+2 if jj2 else b+6
                mo = 0 if jj2 else 2
                self.mf16(D+4*ti, V.B+mo, op)
                self.mf16(D+16+4*ti, V.B+6+mo, op)
        for cbb in range(2):
            for k1b in range(2):
                P = O+4*(2*cbb+k1b)
                for pl in range(2):
                    for jj2 in (1, 0):
                        x = D+16*pl+4*(2*cbb+jj2)+2*k1b
                        self.cvt(P+2*pl+jj2, x, x+1)
                a('ds_write_b128 %s, %s offset:%d' % (v(V.X1w), vr(P, 4), k1b*4096+cbb*256))
        self.fstamp()
        a('s_waitcnt lgkmcnt(0)')
        self.fstamp()
        if self.o.get('fine'): a('s_waitcnt lgkmcnt(0)')
        a('s_barrier')
        if self.o['prio']: a('s_setprio 3')
        for i in range(4):
            for ii in range(2):
                a('ds_read_b64_tr_b16 %s, %s offset:%d' % (vr(O+4*i+2*ii, 2), v(V.X1r), ii*1024+(i & 1)*512+(i >> 1)*2048))
        for i in range(4):
            if late and i in (0, 2): self.wat('postX1', (i, i+1))
            a('s_waitcnt lgkmcnt(%d)' % (6-2*i))
            self.mf32(V.DA, i, True)
        self.fstamp()
        if late: self.wat('tw1')
        self.cmul_stage(V.DA, V.DB, False, V.TW, 'tw', 2)
        self.fstamp()
        l0, l1 = self.label('PWspec'), self.label('PWend')
        a('s_cmp_eq_u32 %s, 1' % sSpec)
        a('s_cbranch_scc1 %s' % l0)
        if self.o.get('fine'): a('s_waitcnt lgkmcnt(0)')
        self.cmul_stage(V.DB, V.DA, True, V.W, 'w', 1, late)
        a(l1+':')
        self.fstamp()
        self.cmul_stage(V.DA, V.DB, True, V.TW, 'tw', 0)
        self.fstamp()
        D = V.DB
        rho = lambda jj3, jj1, jj2, c: 4*(2*jj3+jj1)+2*jj2+c
        for c in range(2):
            for jj1 in range(2):
                P = O+4*(2*c+jj1)
                for pl in range(2):
                    for jj3 in range(2):
                        self.cvt(P+2*pl+jj3, D+16*pl+rho(jj3, jj1, 0, c), D+16*pl+rho(jj3, jj1, 1, c))
                a('ds_write_b128 %s, %s offset:%d' % (v(V.X2w), vr(P, 4), c*64+jj1*1024))
                if self.o['ib2'] and not self.o['ib3'] and c == 0 and jj1 == 0: self.major_read()
        self.fstamp()
        a('s_waitcnt lgkmcnt(0)')
        if self.o['ib2'] and not self.o['ib3']: self.major_use()
        self.fstamp()
        if self.o.get('fine'): a('s_waitcnt lgkmcnt(0)')
        a('s_barrier')
        for cbb in range(2):
            for jj1 in range(2):
                for ii in range(2):
                    a('ds_read_b64_tr_b16 %s, %s offset:%d' % (vr(O+4*(2*cbb+jj1)+2*ii, 2), v(V.X2r), ii*256+jj1*1024+cbb*8224))
        for r in range(4): a('s_add_u32 %s, %s, 0x%x' % (sO[r], self.est(), self.ubase(1) + r*self.tstride()))
        D = V.DA
        for ti in range(4):
            a('s_waitcnt lgkmcnt(%d)' % (6-2*ti))
            self.mf16(D+4*ti, V.Bp, O+4*ti)
            self.mf16(D+16+4*ti, V.Bp+4, O+4*ti)
        self.fstamp()
        P = V.DB
        for q in range(4):
            cbb, sbb = q >> 1, q & 1
            for jj1 in range(2):
                for hf in range(2):
                    x = 4*(2*cbb+jj1)+2*sbb+hf
                    self.cvt(P+4*q+2*jj1+hf, D+x, D+16+x)
            a('buffer_store_dwordx4 %s, %s, %s, %s offen %s' % (vr(P+4*q, 4), v(V.Est), SWS, sO[q], self.o['st2']))
        self.fstamp()
        if self.o.get('fine'):
            a('s_memrealtime s[%d:%d]' % (sTS+2*self.nts, sTS+2*self.nts+1)); self.nts += 1
        def tail():
            C = V.DB; X = V.DA
            a(l0+':')
            self.sigma_lane(T)
            a('v_lshrrev_b32 %s, 5, %s' % (v(T+1), v(V.lane)))
            a('v_lshlrev_b32 %s, 9, %s' % (v(T+1), v(T+1)))
            a('v_lshl_add_u32 %s, %s, 2, %s' % (v(T+2), v(T), v(T+1)))
            a('v_add_u32 %s, %d, %s' % (v(T+2), SCR, v(T+2)))
            a('v_add_u32 %s, 128, %s' % (v(T+3), v(T+2)))
            a('v_sub_u32 %s, 32, %s' % (v(T+4), v(T)))
            a('v_lshrrev_b32 %s, 5, %s' % (v(T+5), v(T+4)))
            a('v_and_b32 %s, 31, %s' % (v(T+4), v(T+4)))
            a('v_lshlrev_b32 %s, 2, %s' % (v(T+4), v(T+4)))
            a('v_lshl_add_u32 %s, %s, 8, %s' % (v(T+4), v(T+5), v(T+4)))
            a('v_sub_u32 %s, %s, %s' % (v(T+4), v(T+4), v(T+1)))
            a('v_add_u32 %s, %d, %s' % (v(T+4), SCR + 2*256, v(T+4)))
            a('v_add_u32 %s, 128, %s' % (v(T+5), v(T+4)))
            a('v_add_u32 %s, %d, %s' % (v(T+6), SCR_B, v(V.l16)))
            qs = lambda rho: sigma(8*(rho >> 2) + (rho & 3))
            for pl in range(2):
                for rho in range(0, 16, 2):
                    a('ds_write2st64_b32 %s, %s, %s offset0:%d offset1:%d' % (v(T+2+pl), v(C+16*pl+rho), v(C+16*pl+rho+1), qs(rho), qs(rho+1)))
                a('ds_write_b32 %s, %s offset:%d' % (v(T+2+pl), v(C+16*pl), 32*256))
            a('s_waitcnt lgkmcnt(0)')
            t0, t1 = v(T+8), v(T+9)
            for half in range(2):
                for pl in range(2):
                    for k in range(0, 8, 2):
                        rho_ = 8*half+k
                        a('ds_read2st64_b32 %s, %s offset0:%d offset1:%d' % (vr(X+8*pl+k, 2), v(T+4+pl), 29-qs(rho_), 29-qs(rho_+1)))
                    for k in range(2):
                        a('ds_read_b128 %s, %s offset:%d' % (vr(X+16+8*pl+4*k, 4), v(T+6), 1024*(4*pl+2*half+k)))
                a('s_waitcnt lgkmcnt(0)')
                for k in range(8):
                    rho_ = 8*half+k
                    x, y = v(C+rho_), v(C+16+rho_); ar, ai = v(V.W+rho_), v(V.W+16+rho_)
                    p, q_ = v(X+k), v(X+8+k); br, bi = v(X+16+k), v(X+24+k)
                    ng, ps = ('', '-') if half else ('-', '')
                    a('v_mul_f32 %s, %s, %s' % (t0, x, ar))
                    a('v_mul_f32 %s, %s, %s' % (t1, y, ar))
                    a('v_fma_f32 %s, %s%s, %s, %s' % (t0, ng, y, ai, t0))
                    a('v_fma_f32 %s, %s%s, %s, %s' % (t1, ps, x, ai, t1))
                    a('v_fmac_f32 %s, %s, %s' % (t0, p, br))
                    a('v_fma_f32 %s, -%s, %s, %s' % (t1, q_, br, t1))
                    a('v_fma_f32 %s, %s%s, %s, %s' % (t0, ps, q_, bi, t0))
                    a('v_fma_f32 %s, %s%s, %s, %s' % (t1, ps, p, bi, t1))
                    self.cvt(O+rho_, T+9, T+8)
            for i in range(4): self.mf32(V.DA, i, True)
            a('s_nop 11')
            a('s_branch %s' % l1)
        self.tail.append(tail)

    def p3_addrs(self):
        a = self.a; T = V.T
        a('v_and_b32 %s, 16, %s' % (v(T), v(V.lane)))
        for bit, st in ((0, 32), (3, 4096), (5, 1024)):
            a('v_bfe_u32 %s, %s, %d, 1' % (v(T+1), v(V.lane), bit))
            a('v_lshl_add_u32 %s, %s, %d, %s' % (v(T), v(T+1), int(math.log2(st)), v(T)))
        for bit, st in ((1, 8208), (2, 16448)):
            a('v_bfe_u32 %s, %s, %d, 1' % (v(T+1), v(V.lane), bit))
            a('v_mul_u32_u24 %s, %d, %s' % (v(T+1), st, v(T+1)))
            a('v_add_u32 %s, %s, %s' % (v(T), v(T), v(T+1)))
        a('s_sub_u32 %s, 16, %s' % (sC, sW))
        a('s_cmp_eq_u32 %s, 0' % sW)
        a('s_cselect_b32 %s, 8, %s' % (sC, sC))
        for kl, dst in ((sW, V.X3w0), (sC, V.X3w1)):
            a('s_and_b32 %s, %s, 9' % (sA, kl)); a('s_lshl_b32 %s, %s, 6' % (sA, sA))
            a('s_and_b32 %s, %s, 2' % (sB, kl)); a('s_lshl_b32 %s, %s, 7' % (sB, sB)); a('s_add_u32 %s, %s, %s' % (sA, sA, sB))
            a('s_and_b32 %s, %s, 4' % (sB, kl)); a('s_lshl_b32 %s, %s, 5' % (sB, sB)); a('s_add_u32 %s, %s, %s' % (sA, sA, sB))
            a('s_add_u32 %s, %s, %d' % (sA, sA, R1))
            a('v_add_u32 %s, %s, %s' % (v(dst), sA, v(T)))
        self.tr_lane(T, 512, 128)
        a('s_and_b32 %s, %s, 1' % (sA, sW)); a('s_mul_i32 %s, %s, 8208' % (sA, sA))
        a('s_bfe_u32 %s, %s, 0x10001' % (sB, sW)); a('s_mul_i32 %s, %s, 16448' % (sB, sB)); a('s_add_u32 %s, %s, %s' % (sA, sA, sB))
        a('s_lshr_b32 %s, %s, 2' % (sB, sW)); a('s_lshl_b32 %s, %s, 12' % (sB, sB)); a('s_add_u32 %s, %s, %s' % (sA, sA, sB))
        a('s_add_u32 %s, %s, %d' % (sA, sA, R1))
        a('v_add_u32 %s, %s, %s' % (v(V.X3r), sA, v(T)))
        a('v_bfe_u32 %s, %s, 3, 1' % (v(T), v(V.lane)))
        a('v_lshlrev_b32 %s, 15, %s' % (v(T), v(T)))
        a('v_lshl_add_u32 %s, %s, 21, %s' % (v(T), v(V.g), v(T)))
        a('v_and_b32 %s, 0x70, %s' % (v(T+1), v(V.l16)))
        a('v_add_u32 %s, %s, %s' % (v(V.Ooff), v(T), v(T+1)))
    def p3_soff(self):
        a = self.a
        a('s_lshl_b32 %s, %s, 16' % (sO[0], sW))
        a('s_lshl_b32 %s, %s, 12' % (sA, sSB)); a('s_add_u32 %s, %s, %s' % (sO[0], sO[0], sA))
        a('s_lshl_b32 %s, %s, 7' % (sA, sCB)); a('s_add_u32 %s, %s, %s' % (sO[0], sO[0], sA))
        a('s_lshl_b32 %s, %s, 11' % (sA, sP)); a('s_add_u32 %s, %s, %s' % (sO[0], sO[0], sA))
        for r in range(1, 4): a('s_add_u32 %s, %s, 0x%x' % (sO[r], sO[0], r*524288))
    def p3_issue(self):
        a = self.a
        a('s_add_u32 %s, %s, 0x%x' % (sA, sEld, self.ubase(1)))
        for q in range(4):
            a('buffer_load_dwordx4 %s, %s, %s, %s offen offset:%d %s' % (vr(V.L+4*q, 4), self.eld(q, 1), SWS, sA, 256*q, self.o['ld2']))
    def p3_compute(self):
        a = self.a; O, L, D = V.O, V.L, V.DA
        def normal():
            for i in range(4):
                a('s_waitcnt vmcnt(%d)' % (3-i))
                for sel in range(2):
                    for col in range(2):
                        a('v_mov_b32 %s, %s' % (v(O+4*(2*sel+col)+i), v(L+4*i+2*col+sel)))
        def w0():
            for i in range(4):
                ts, eb = i >> 1, i & 1
                a('s_waitcnt vmcnt(%d)' % (3-i))
                for col in range(2):
                    for sg in range(2):
                        a('v_mov_b32 %s, %s' % (v(O+4*(2*ts+col)+2*eb+sg), v(L+4*i+2*col+sg)))
        self.ifelse(sW, 0, w0, normal, True)
        self.stamp()
        for ti in range(4):
            self.mf16(D+4*ti, O+4*ti, V.M2+8*(ti >> 1))
            self.mf16(D+16+4*ti, O+4*ti, V.M2+8*(ti >> 1)+4)
        P = V.DB
        for ti in range(4):
            for pl in range(2):
                for k in range(2):
                    x = D+16*pl+4*ti+2*k
                    self.cvt(P+4*ti+2*pl+k, x, x+1)
            a('ds_write_b128 %s, %s offset:%d' % (v(V.X3w1 if ti >> 1 else V.X3w0), vr(P+4*ti, 4), (ti & 1)*2048))
        a('s_waitcnt lgkmcnt(0)')
        a('s_barrier')
        for t in range(4):
            for ii in range(2):
                a('ds_read_b64_tr_b16 %s, %s offset:%d' % (vr(O+4*t+2*ii, 2), v(V.X3r), ii*256+t*1024))
        for t in range(4):
            a('s_waitcnt lgkmcnt(%d)' % (6-2*t))
            self.mf16(D+4*t, V.F16, O+4*t)
            self.mf16(D+16+4*t, V.F16+4, O+4*t)
        for t in range(3):
            for r in range(4): self.cvt(P+4*r+t, D+16+4*t+r, D+4*t+r)
        for r in range(4):
            self.cvt(P+4*r+3, D+16+12+r, D+12+r)
            a('buffer_store_dwordx4 %s, %s, %s, %s offen %s' % (vr(P+4*r, 4), v(V.Ooff), SOUT, sO[r], self.o['sto']))

    def flush_tail(self):
        t, self.tail = self.tail, []
        for f in t: f()

    def kernel_head(self, name):
        self.a.raw('.globl %s\n.p2align 12\n.p2align 8\n.type %s,@function\n%s:' % (name, name, name))
    def kd(self, name):
        return '''.p2align 6
.amdhsa_kernel %s
  .amdhsa_next_free_vgpr %d
  .amdhsa_next_free_sgpr 102
  .amdhsa_accum_offset %d
  .amdhsa_group_segment_fixed_size 0
  .amdhsa_kernarg_size 72
  .amdhsa_user_sgpr_count 2
  .amdhsa_user_sgpr_kernarg_segment_ptr 1
  .amdhsa_system_sgpr_workgroup_id_x 1
.end_amdhsa_kernel''' % (name, NVGPR, (NVGPR+3)//4*4)

    def build_three(self):
        a = self.a
        names = ['gf_p1_kernel', 'gf_p2_kernel', 'gf_p3_kernel']
        self.kernel_head(names[0]); end = self.label('end')
        self.prologue(end); self.p1_load(); a('s_waitcnt lgkmcnt(0)'); self.p1_issue()
        self.ex_addrs(); self.p1_addrs(); self.gen_F16(); self.gen_M2()
        self.p1_compute(0)
        if self.o['ts']: self.stamp(); a('s_waitcnt vmcnt(0)'); self.stamp(); self.dump_stamps(0)
        a(end+':'); a('s_endpgm'); self.flush_tail()
        self.kernel_head(names[1]); end = self.label('end')
        self.prologue(end); self.ex_addrs(); self.calc_k0(); a('s_waitcnt lgkmcnt(0)')
        self.w_dma(); self.p2_addrs(); self.gen_B(); self.gen_F32TW()
        a('s_waitcnt vmcnt(0)'); self.w_regs(); a('s_waitcnt lgkmcnt(0)')
        self.p2_issue(); self.p2_compute()
        if self.o['ts']: self.stamp(); a('s_waitcnt vmcnt(0)'); self.stamp(); self.dump_stamps(8)
        a(end+':'); a('s_endpgm'); self.flush_tail()
        self.kernel_head(names[2]); end = self.label('end')
        self.prologue(end); self.ex_addrs(); a('s_waitcnt lgkmcnt(0)'); self.p3_issue()
        self.p3_addrs(); self.p3_soff(); self.gen_F16(); self.gen_M3()
        self.p3_compute()
        if self.o['ts']: self.stamp(); a('s_waitcnt vmcnt(0)'); self.stamp(); self.dump_stamps(16)
        a(end+':'); a('s_endpgm'); self.flush_tail()
        launch = ''.join('; @launch kernel=%s grid=(256,1,1) block=(512,1,1) lds=%d\n' % (n, LDS_TOTAL) for n in names)
        return self.finish(launch, names)

    def flag_addrs(self):
        a = self.a
        if self.o['ib']:
            a('s_lshr_b32 %s, %s, 4' % (sB, sT))
            for dst, wp, gr in ((sF, sW, sB), (sE, sB, sW)):
                a('s_lshl3_add_u32 %s, %s, %s' % (sA, sP, wp)); a('s_lshl_b32 %s, %s, 21' % (sA, sA))
                a('s_lshl_b32 %s, %s, 10' % (sC, gr)); a('s_add_u32 %s, %s, %s' % (sA, sA, sC))
                a('s_add_u32 %s, %s, 0x%x' % (dst, sA, WS_FLAG_IB))
            a('s_and_b32 %s, %s, 15' % (sA, sT)); a('s_add_u32 %s, %s, 8' % (sA, sA))
            a('s_lshl_b32 %s, %s, %s' % (sInc, sCh, sA)); a('s_add_u32 %s, %s, 1' % (sInc, sInc))
            a('v_lshl_add_u32 %s, %s, 2, 8' % (v(V.dummy), v(V.g)))
            return
        if self.o['fl'] != '':
            pol = int(self.o['fl'][1]); mode = self.o['fl'][0]
            a('s_lshr_b32 %s, %s, 4' % (sB, sT))
            for dst, wp, gr in ((sF, sW, sB), (sE, sB, sW)):
                a('s_lshl3_add_u32 %s, %s, %s' % (sA, sP, wp))
                if mode == 'x': a('s_xor_b32 %s, %s, %d' % (sC, sP, pol))
                else: a('s_lshr_b32 %s, %s, 2' % (sC, wp)); a('s_xor_b32 %s, %s, %d' % (sC, sC, pol))
                a('s_lshl1_add_u32 %s, %s, %s' % (sA, sA, sC))
                a('s_lshl3_add_u32 %s, %s, %s' % (sA, sA, gr))
                a('s_lshl_b32 %s, %s, 10' % (sA, sA))
                a('s_add_u32 %s, %s, 0x%x' % (dst, sA, WS_FLAG))
            return
        fs = int(self.o['fstride'])
        a('s_lshl_b32 %s, %s, %d' % (sA, sP, fs+6)); a('s_add_u32 %s, %s, 0x%x' % (sA, sA, WS_FLAG))
        a('s_lshr_b32 %s, %s, 4' % (sB, sT))
        a('s_lshl_b32 %s, %s, %d' % (sF, sW, fs+3)); a('s_add_u32 %s, %s, %s' % (sF, sF, sA))
        a('s_lshl_b32 %s, %s, %d' % (sC, sB, fs)); a('s_add_u32 %s, %s, %s' % (sF, sF, sC))
        a('s_lshl_b32 %s, %s, %d' % (sE, sB, fs+3)); a('s_add_u32 %s, %s, %s' % (sE, sE, sA))
        a('s_lshl_b32 %s, %s, %d' % (sC, sW, fs)); a('s_add_u32 %s, %s, %s' % (sE, sE, sC))
    def g1_probe(self):
        a = self.a
        NB = int(self.o['nb'])
        a('s_lshl3_add_u32 %s, s2, %s' % (sCh2, sW))
        def f():
            a('s_mov_b32 %s, 0x%x' % (sA, WS_FLAG2 + (int(self.o['pbase']) << 21)))
            for side in range(2):
                for k in range(NB):
                    r = 62+side*NB+k
                    a('s_mov_b32 s%d, 0x%x' % (r, SENT))
                    a('s_%s s%d, s[24:25], %s offset:0x%x glc' % (self.o['pop'], r, sA, side*0x2000 + (k & 1)*0x1000 + (k >> 1)*0x4000 + k*0x100))
        self.cond(sCh2, 8*8+PW, f)
    def g1_eval(self):
        a = self.a
        NB = int(self.o['nb'])
        def f():
            a('s_waitcnt lgkmcnt(%d)' % (NB+1))
            a('s_nop %s' % self.o['pnop'])
            a('s_mov_b32 %s, 0' % sA); a('s_mov_b32 %s, 0' % sB)
            for k in range(NB):
                a('s_cmp_lg_u32 s%d, 0x%x' % (62+NB+k, SENT)); a('s_addc_u32 %s, %s, 0' % (sB, sB))
            a('s_cmp_le_u32 %s, %s' % (sB, self.o['pthr']))
            a('s_cselect_b32 s94, 2, 3')
            if self.o['ts']:
                a('s_lshl_b32 %s, %s, 4' % (sA, sA)); a('s_lshl_b32 %s, %s, 8' % (sB, sB)); a('s_or_b32 s94, s94, %s' % sA); a('s_or_b32 s94, s94, %s' % sB)
            if self.o['force'] != '': a('s_mov_b32 s94, %d' % (2+int(self.o['force'])))
            a('s_atomic_or s94, s[20:21], 0x80')
        self.cond(sCh2, 8*8+PW, f)
    def g1_pre(self):
        a = self.a
        self.cond(sW, PW, lambda: a('s_load_dword s95, s[20:21], 0x80'))
    def g1_read(self):
        a = self.a
        def f():
            a('buffer_load_dword %s, %s, %s, 0 offen offset:128 sc1' % (v(V.dummy), v(V.EL), SDBG))
        self.cond(sW, PW, f)
    def g1_wait(self):
        a = self.a
        def f():
            lp, ok = self.label('g1'), self.label('g1ok')
            a('s_mov_b32 %s, 0' % sCnt)
            a(lp+':')
            a('s_waitcnt vmcnt(0)')
            a('v_cmp_ne_u32 vcc, 0, %s' % v(V.dummy))
            a('s_cbranch_vccnz %s' % ok)
            a('buffer_load_dword %s, %s, %s, 0 offen offset:128 sc1' % (v(V.dummy), v(V.EL), SDBG))
            a('s_add_u32 %s, %s, 1' % (sCnt, sCnt))
            a('s_cmp_lt_u32 %s, 0x%x' % (sCnt, SPIN_MAX))
            a('s_cbranch_scc1 %s' % lp)
            a('s_waitcnt vmcnt(0)')
            a(ok+':')
            a('ds_write_b32 %s, %s offset:4' % (v(V.dummy2), v(V.dummy)))
        self.cond(sW, PW, f)
    def g1_use(self):
        a = self.a
        a('s_waitcnt lgkmcnt(8)')
        a('v_readfirstlane_b32 %s, %s' % (sCh, v(V.dummy)))
        if self.o['ts']: a('s_mov_b32 s%d, %s' % (sTS+24, sCh))
        a('s_and_b32 %s, %s, 1' % (sCh, sCh)); a('s_lshl_b32 %s, %s, 13' % (sCh, sCh))
        a('s_xor_b32 %s, %s, %s' % (sEst, sEst, sCh))

    def p2_probe_issue(self):
        a = self.a
        def f():
            if self.o['ib3']:
                a('s_lshr_b32 %s, s2, 5' % sA); a('s_bfe_u32 %s, s2, 0x10004' % sCh2)
                a('s_lshl1_add_u32 %s, %s, %s' % (sA, sA, sCh2)); a('s_lshl_b32 %s, %s, 5' % (sA, sA))
                a('s_and_b32 %s, s2, 31' % sB); a('s_add_u32 %s, %s, %s' % (sA, sA, sB))
                a('s_lshl_b32 %s, %s, 8' % (sA, sA)); a('s_add_u32 %s, %s, 0x%x' % (sDP, sA, WS_FLAG2))
            else:
                a('s_bfe_u32 %s, %s, 0x30003' % (sA, sT)); a('s_lshl3_add_u32 %s, %s, %s' % (sA, sP, sA))
                a('s_lshr_b32 %s, %s, 6' % (sCh2, sT))
                a('s_lshl1_add_u32 %s, %s, %s' % (sA, sA, sCh2))
                a('s_and_b32 %s, %s, 7' % (sB, sT)); a('s_lshl3_add_u32 %s, %s, %s' % (sA, sA, sB))
                a('s_lshl_b32 %s, %s, 10' % (sA, sA)); a('s_add_u32 %s, %s, 0x%x' % (sDP, sA, WS_FLAG2))
            a('s_xor_b32 %s, %s, 0x2000' % (sDM, sDP))
            a('s_mov_b64 s[92:93], 0')
            a('s_atomic_swap s92, s[24:25], %s glc' % sDP)
            a('s_atomic_swap s93, s[24:25], %s glc' % sDM)
        self.cond(sW, PW, f)
    def p2_probe_eval(self):
        a = self.a; T = V.T
        def f():
            if self.o['r2']:
                a('s_waitcnt lgkmcnt(0)')
                a('s_atomic_swap s92, s[24:25], %s glc' % sDP)
                a('s_atomic_swap s93, s[24:25], %s glc' % sDM)
            a('s_waitcnt lgkmcnt(1)')
            a('s_nop %s' % self.o['pnop'])
            a('s_getreg_b32 %s, hwreg(HW_REG_IB_STS, 8, 4)' % sA)
            a('s_cmp_eq_u32 %s, 0' % sA)
            a('s_cselect_b32 %s, 1, 0' % sA)
            a('s_xor_b32 %s, %s, %s' % (sCh2, sCh2, sA))
            if self.o['force'] != '': a('s_xor_b32 %s, %s, %s' % (sCh2, sP, self.o['force']))
            if not self.o['ib3']:
                a('v_mov_b32 %s, %d' % (v(T), CNT)); a('v_mov_b32 %s, %s' % (v(T+1), sCh2))
                a('ds_write_b32 %s, %s offset:4' % (v(T), v(T+1)))
            if self.o['ib3']:
                l = self.label('nv')
                a('s_and_b32 %s, s2, 0x8f' % sA); a('s_cmp_lg_u32 %s, 8' % sA); a('s_cbranch_scc1 %s' % l)
                a('s_cmp_eq_u32 s2, 120'); a('s_cbranch_scc1 %s' % l)
                a('s_lshl_b32 s94, %s, 8' % sCh2); a('s_add_u32 s94, s94, 0x1001')
                a('s_atomic_add s94, s[20:21], 0x0')
                a(l+':')
        self.cond(sW, PW, f)
    def vote_read(self):
        a = self.a
        if self.o['novr']: return
        def f():
            a('s_mov_b32 s22, 256'); a('s_mov_b32 s23, 0x20000')
            a('v_mov_b32 %s, 0' % v(V.EL))
            a('buffer_load_dword %s, %s, %s, 0 offen sc1' % (v(V.dummy), v(V.EL), SDBG))
        self.cond(sW, PW, f)
    def vote_use(self):
        a = self.a; T = V.T
        def f():
            if not self.o['novr']:
                a('v_readfirstlane_b32 %s, %s' % (sA, v(V.dummy)))
                a('s_bfe_u32 %s, %s, 0x40008' % (sB, sA)); a('s_bfe_u32 %s, %s, 0x4000c' % (sC, sA))
                a('s_sub_u32 %s, %s, %s' % (sC, sC, sB))
                a('s_xor_b32 %s, %s, 1' % (sA, sP))
                a('s_cmp_ge_u32 %s, 4' % sB); a('s_cselect_b32 %s, %s, %s' % (sCh2, sA, sCh2))
                a('s_cmp_ge_u32 %s, 4' % sC); a('s_cselect_b32 %s, %s, %s' % (sCh2, sP, sCh2))
            a('v_mov_b32 %s, %s' % (v(T+1), sCh2))
            a('ds_write_b32 %s, %s offset:4' % (v(V.dummy2), v(T+1)))
        self.cond(sW, PW, f)
    def zero3(self):
        a = self.a
        a('s_sub_u32 %s, s2, 16' % sZ)
        a('s_and_b32 %s, %s, 0xffffffef' % (sZ, sZ))
        def f():
            a('s_lshr_b32 %s, s2, 5' % sA)
            a('s_lshl1_add_u32 %s, %s, %s' % (sA, sW, sA))
            a('s_lshl_b32 %s, %s, 13' % (sA, sA)); a('s_add_u32 %s, %s, 0x%x' % (sA, sA, WS_FLAG))
            for i in range(0, 8, 2): a('s_mov_b64 s[%d:%d], 0' % (84+i, 85+i))
            for i in range(8):
                a('s_atomic_swap s%d, s[24:25], %s offset:0x%x glc' % (84+i, sA, i << 10))
        self.cond(sZ, 0, f)
    def ready3(self):
        a = self.a
        def f():
            a('s_mov_b32 s94, 1')
            a('s_waitcnt lgkmcnt(0)')
            a('s_atomic_add s94, s[20:21], 0x0')
        self.cond(sZ, 0, f)
    def flag_addrs3(self):
        a = self.a
        a('s_lshr_b32 %s, %s, 4' % (sB, sT))
        for dst, wp, gr in ((sF, sW, sB), (sE, sB, sW)):
            a('s_lshl4_add_u32 %s, %s, %s' % (sC, wp, gr)); a('s_lshl_b32 %s, %s, 10' % (sC, sC))
            a('s_add_u32 %s, %s, 0x%x' % (dst, sC, WS_FLAG))
    def side3(self):
        a = self.a
        a('s_bfe_u32 %s, %s, 0x1000a' % (sCh2, sRv))
        a('s_xor_b32 %s, %s, %s' % (sCh2, sCh2, sP)); a('s_lshl_b32 %s, %s, 13' % (sCh2, sCh2))
        a('s_add_u32 %s, %s, %s' % (sF, sF, sCh2))
    def side3b(self):
        a = self.a
        a('s_add_u32 %s, %s, %s' % (sE, sE, sCh2))
        a('s_xor_b32 %s, %s, %s' % (sZp, sEst, sCh2))
    def side3c(self):
        a = self.a
        a('s_and_b32 %s, %s, 0x2000' % (sA, sZ)); a('s_xor_b32 %s, %s, %s' % (sA, sA, sCh2)); a('s_add_u32 %s, %s, %s' % (sEld, sEld, sA))
    def p2_choice_read(self):
        self.a('ds_read_b32 %s, %s offset:4' % (v(V.dummy), v(V.dummy2)))
    def p2_choice_use(self):
        a = self.a
        a('s_waitcnt lgkmcnt(8)')
        a('v_readfirstlane_b32 %s, %s' % (sCh2, v(V.dummy)))
        a('s_lshl_b32 %s, %s, 13' % (sA, sCh2))
        a('s_xor_b32 %s, %s, %s' % (sZp, sEst, sA))
        if self.o['ts']: a('s_mov_b32 s%d, %s' % (sTS+24, sCh2))
    def ex_addrs_ib2(self):
        a = self.a; T = V.T
        a('s_lshl_b32 %s, %s, 4' % (sB, sW)); a('s_xor_b32 %s, %s, %s' % (sB, sB, sT)); a('s_lshl_b32 %s, %s, 8' % (sB, sB))
        a('v_lshlrev_b32 %s, 4, %s' % (v(T), v(V.n)))
        a('v_lshl_add_u32 %s, %s, 10, %s' % (v(T), v(V.g), v(T)))
        a('v_xor_b32 %s, %s, %s' % (v(T), sB, v(T)))
        a('v_and_b32 %s, 0x6000, %s' % (v(T+1), v(T)))
        a('v_add_u32 %s, %s, %s' % (v(T), v(T), v(T+1)))
        a('v_lshl_add_u32 %s, %s, 18, %s' % (v(V.Est), v(V.g), v(T)))
        a('v_and_b32 %s, 0xdcff, %s' % (v(V.Eld0), v(T)))
        a('s_lshl3_add_u32 %s, %s, %s' % (sEst, sP, sW)); a('s_lshl_b32 %s, %s, 20' % (sEst, sEst))
        a('s_and_b32 %s, %s, 2' % (sA, sW)); a('s_lshl_b32 %s, %s, 12' % (sA, sA)); a('s_add_u32 %s, %s, %s' % (sEst, sEst, sA))
    def misc_ib2(self):
        a = self.a
        a('s_lshl_b32 %s, %s, 7' % (sEld, sP)); a('s_add_u32 %s, %s, %s' % (sEld, sEld, sT)); a('s_lshl_b32 %s, %s, 16' % (sEld, sEld))
        a('s_and_b32 %s, %s, 15' % (sA, sT)); a('s_add_u32 %s, %s, 8' % (sA, sA))
        a('s_lshl_b32 %s, %s, %s' % (sInc, sCh2, sA)); a('s_add_u32 %s, %s, 1' % (sInc, sInc))
        a('v_lshl_add_u32 %s, %s, 2, 8' % (v(V.dummy), v(V.g)))
        a('s_bfe_i32 %s, %s, 0x10005' % (sZ, sT))
    def ld_addrs_ib2(self):
        a = self.a; T = V.T
        a('s_xor_b32 %s, %s, %s' % (sA, sRv, sZ))
        a('v_lshrrev_b32 %s, %s, %s' % (v(T), v(V.dummy), sA))
        for q in range(4):
            a('v_bfe_u32 %s, %s, %d, 1' % (v(T+1), v(T), q))
            a('v_lshl_add_u32 %s, %s, 13, %s' % (v(T+2+q), v(T+1), v(V.Eld0)))
    def major_post(self):
        a = self.a; T = V.T
        def f():
            a('s_bfe_u32 %s, %s, 0x100008' % (sA, sRv)); a('s_bcnt1_i32_b32 %s, %s' % (sA, sA))
            a('s_cmp_gt_u32 %s, 8' % sA); a('s_cselect_b32 %s, 0x2000, 0' % sA)
            a('v_mov_b32 %s, %s' % (v(T), sA))
            a('ds_write_b32 %s, %s offset:8' % (v(V.dummy2), v(T)))
        self.cond(sW, 0, f)
    def major_read(self):
        self.a('ds_read_b32 %s, %s offset:8' % (v(V.dummy), v(V.dummy2)))
    def major_use(self):
        a = self.a
        a('v_readfirstlane_b32 %s, %s' % (sCh2, v(V.dummy)))
        a('s_xor_b32 %s, %s, %s' % (sZp, sEst, sCh2))
    def major_use2(self):
        a = self.a
        a('s_and_b32 %s, %s, 0x2000' % (sA, sZ)); a('s_xor_b32 %s, %s, %s' % (sA, sA, sCh2)); a('s_add_u32 %s, %s, %s' % (sEld, sEld, sA))
        a('s_lshr_b32 %s, %s, 4' % (sB, sT))
        for dst, wp, gr in ((sF, sW, sB), (sE, sB, sW)):
            a('s_lshl3_add_u32 %s, %s, %s' % (sA, sP, wp)); a('s_lshl4_add_u32 %s, %s, %s' % (sA, sA, gr)); a('s_lshl_b32 %s, %s, 10' % (sA, sA))
            a('s_add_u32 %s, %s, %s' % (sA, sA, sCh2)); a('s_add_u32 %s, %s, 0x%x' % (dst, sA, WS_FLAG2))

    def gz_issue(self):
        a = self.a
        a('s_sub_u32 %s, s2, 16' % sZ)
        a('s_and_b32 %s, %s, 0xffffffef' % (sZ, sZ))
        def f():
            a('s_lshr_b32 %s, s2, 5' % sZp)
            a('s_lshl1_add_u32 %s, %s, %s' % (sCh, sW, sZp))
            a('s_lshl_b32 %s, %s, 13' % (sCh, sCh)); a('s_add_u32 %s, %s, 0x%x' % (sCh, sCh, WS_FLAG))
            for i in range(0, 8, 2): a('s_mov_b64 s[%d:%d], 0' % (84+i, 85+i))
            for i in range(8):
                a('s_atomic_swap s%d, s[24:25], %s offset:0x%x glc' % (84+i, sCh, i << 10))
        self.cond(sZ, 0, f)
    def gz_publish(self):
        a = self.a
        def f():
            a('s_waitcnt lgkmcnt(0)')
            a('s_memtime s[84:85]')
            a('s_mov_b32 s88, 0')
            a('s_waitcnt lgkmcnt(0)')
            a('s_atomic_add s88, s[24:25], %s glc' % sCh)
            a('s_waitcnt lgkmcnt(0)')
            a('s_memtime s[86:87]')
            a('s_mul_i32 %s, %s, 13' % (sZp, sZp)); a('s_add_u32 %s, %s, 5' % (sZp, sZp))
            a('s_waitcnt lgkmcnt(0)')
            a('s_sub_u32 s84, s86, s84'); a('s_lshr_b32 s84, s84, 3'); a('s_min_u32 s84, s84, 0x3ff')
            a('s_lshl_b32 s84, s84, %s' % sZp); a('s_add_u32 s84, s84, 1')
            a('s_atomic_add s84, s[20:21], 0x0')
        self.cond(sZ, 0, f)
    def gz_read(self):
        a = self.a
        a('v_mov_b32 %s, 0' % v(V.EL))
        a('buffer_load_dword %s, %s, %s, 0 offen sc1' % (v(V.dummy), v(V.EL), SDBG))
    def gz_check(self):
        a = self.a; l0, l1 = self.label('gz'), self.label('gzok')
        a('s_waitcnt vmcnt(0)')
        a('v_readfirstlane_b32 %s, %s' % (sRv, v(V.dummy)))
        a('s_bitcmp1_b32 %s, 4' % sRv)
        a('s_cbranch_scc1 %s' % l1)
        a('s_mov_b32 %s, 0' % sCnt)
        a(l0+':')
        a('buffer_load_dword %s, %s, %s, 0 offen sc1' % (v(V.dummy), v(V.EL), SDBG))
        a('s_add_u32 %s, %s, 1' % (sCnt, sCnt))
        a('s_cmp_gt_u32 %s, 0x%x' % (sCnt, SPIN_MAX))
        a('s_waitcnt vmcnt(0)')
        a('v_readfirstlane_b32 %s, %s' % (sRv, v(V.dummy)))
        a('s_cbranch_scc1 %s' % l1)
        a('s_bitcmp0_b32 %s, 4' % sRv)
        a('s_cbranch_scc1 %s' % l0)
        a(l1+':')
        a('s_bfe_u32 %s, %s, 0xd0005' % (sA, sRv)); a('s_bfe_u32 %s, %s, 0xd0012' % (sB, sRv))
        a('s_cmp_lt_u32 %s, %s' % (sB, sA))
        a('s_cselect_b32 %s, 0x2000, 0' % sCh)
        if self.o['force'] != '': a('s_mov_b32 %s, %d' % (sCh, int(self.o['force']) << 13))
        a('s_xor_b32 %s, %s, %s' % (sEst, sEst, sCh))
        if self.o['ts']: a('s_mov_b32 s%d, %s' % (sTS+24, sRv))
    def gz_flag_addrs(self):
        a = self.a
        a('s_xor_b32 %s, %s, %s' % (sEld, sEld, sCh))
        a('s_lshr_b32 %s, %s, 4' % (sB, sT))
        a('s_lshl_b32 %s, %s, 13' % (sA, sP)); a('s_xor_b32 %s, %s, %s' % (sA, sA, sCh)); a('s_add_u32 %s, %s, 0x%x' % (sA, sA, WS_FLAG))
        for dst, wp, gr in ((sF, sW, sB), (sE, sB, sW)):
            a('s_lshl4_add_u32 %s, %s, %s' % (sC, wp, gr)); a('s_lshl_b32 %s, %s, 10' % (sC, sC))
            a('s_add_u32 %s, %s, %s' % (dst, sC, sA))

    def zero_flags_ib(self):
        a = self.a
        def f():
            a('s_waitcnt lgkmcnt(0)')
            a('s_lshl_b32 %s, %s, 13' % (sA, sCh)); a('s_add_u32 %s, %s, %s' % (sA, sA, sEst)); a('s_add_u32 %s, %s, 0x%x' % (sA, sA, WS_FLAG_IB))
            for i in range(0, 8, 2): a('s_mov_b64 s[%d:%d], 0' % (84+i, 85+i))
            for i in range(8):
                a('s_atomic_swap s%d, s[24:25], %s offset:0x%x glc' % (84+i, sA, i << 10))
        self.cond(sT, 1, f)
    def set_ready_ib(self):
        a = self.a
        def f():
            a('s_add_u32 %s, %s, 8' % (sA, sW)); a('s_lshl_b32 %s, %s, %s' % (sZ, sCh, sA)); a('s_add_u32 %s, %s, 1' % (sZ, sZ))
            a('s_waitcnt lgkmcnt(0)')
            a('s_atomic_add %s, s[20:21], %s' % (sZ, sRd))
        self.cond(sT, 1, f)
    def flag_side(self):
        a = self.a
        a('s_lshr_b32 %s, %s, 8' % (sRv, sRv))
        a('s_lshr_b32 %s, %s, %s' % (sA, sRv, sW)); a('s_and_b32 %s, %s, 1' % (sA, sA)); a('s_lshl_b32 %s, %s, 13' % (sA, sA)); a('s_add_u32 %s, %s, %s' % (sF, sF, sA))
    def flag_side2(self):
        a = self.a
        a('s_lshr_b32 %s, %s, 4' % (sB, sT))
        a('s_lshr_b32 %s, %s, %s' % (sA, sRv, sB)); a('s_and_b32 %s, %s, 1' % (sA, sA)); a('s_lshl_b32 %s, %s, 13' % (sA, sA)); a('s_add_u32 %s, %s, %s' % (sE, sE, sA))
    def zero_flags(self):
        a = self.a
        a('s_sub_u32 %s, s2, 16' % sZ)
        a('s_and_b32 %s, %s, 0xffffffef' % (sZ, sZ))
        def f():
            fs = int(self.o['fstride'])
            a('s_lshr_b32 %s, s2, 5' % sZp)
            a('s_lshl3_add_u32 %s, %s, %s' % (sA, sZp, sW))
            if self.o['fl'] != '':
                pol = int(self.o['fl'][1]); mode = self.o['fl'][0]; fs = 10
                if mode == 'x': a('s_xor_b32 %s, %s, %d' % (sC, sZp, pol))
                else: a('s_lshr_b32 %s, %s, 2' % (sC, sW)); a('s_xor_b32 %s, %s, %d' % (sC, sC, pol))
                a('s_lshl1_add_u32 %s, %s, %s' % (sA, sA, sC))
            a('s_lshl_b32 %s, %s, %d' % (sA, sA, fs+3)); a('s_add_u32 %s, %s, 0x%x' % (sA, sA, WS_FLAG))
            for i in range(0, 8, 2): a('s_mov_b64 s[%d:%d], 0' % (84+i, 85+i))
            for i in range(8):
                a('s_atomic_swap s%d, s[24:25], %s offset:0x%x glc' % (84+i, sA, i << fs))
            a('s_lshl_b32 %s, %s, 7' % (sZp, sZp))
        self.cond(sZ, 0, f)
    def set_ready(self):
        a = self.a
        def f():
            a('s_mov_b32 %s, 1' % sInc)
            a('s_waitcnt lgkmcnt(0)')
            a('s_atomic_add %s, s[20:21], %s' % (sInc, sZp))
        self.cond(sZ, 0, f)
    def ready_issue(self):
        self.a('s_load_dword %s, s[20:21], %s' % (sRv, sRd))
    def ready_check(self):
        a = self.a; l0, l1 = self.label('rdy'), self.label('rdyok')
        def notready():
            if self.o['g1']: a('s_cmp_lt_u32 %s, 16' % sRv)
            elif self.o['ib3']: a('s_and_b32 %s, %s, 0xff' % (sA, sRv)); a('s_cmp_lt_u32 %s, 23' % sA)
            else: a('s_bitcmp0_b32 %s, 3' % sRv)
        notready()
        a('s_cbranch_scc1 %s' % l0)
        a(l1+':')
        def tail():
            lp = self.label('rdyl')
            a(l0+':')
            a('s_mov_b32 %s, 0' % sCnt)
            a('v_mov_b32 %s, 0' % v(V.O+1))
            a(lp+':')
            a('buffer_load_dword %s, %s, %s, %s offen sc1' % (v(V.O), v(V.O+1), SDBG, sRd))
            a('s_add_u32 %s, %s, 1' % (sCnt, sCnt))
            a('s_cmp_gt_u32 %s, 0x%x' % (sCnt, SPIN_MAX))
            a('s_waitcnt vmcnt(0)')
            a('v_readfirstlane_b32 %s, %s' % (sRv, v(V.O)))
            a('s_cbranch_scc1 %s' % l1)
            notready()
            a('s_cbranch_scc1 %s' % lp)
            a('s_branch %s' % l1)
        self.tail.append(tail)
    def set_flag(self, ex):
        a = self.a
        if not ((self.o['ib'] or self.o['ib2']) and ex == 0): a('s_mov_b32 %s, 0x%x' % (sInc, 1 << (24*ex)))
        a('s_atomic_add %s, s[24:25], %s' % (sInc, sF))
    def poll(self, ex, under=None):
        a = self.a; lp, ok = self.label('poll'), self.label('pollok')
        if under:
            a('s_mov_b32 %s, 0' % sRv)
            a('s_atomic_add %s, s[24:25], %s glc' % (sRv, sE))
            under()
            a('s_waitcnt lgkmcnt(0)')
            a('s_bitcmp1_b32 %s, %d' % (sRv, 4+24*ex))
            a('s_cbranch_scc1 %s' % ok)
        a('s_mov_b32 %s, 0' % sCnt)
        a(lp+':')
        a('s_mov_b32 %s, 0' % sRv)
        a('s_atomic_add %s, s[24:25], %s glc' % (sRv, sE))
        a('s_add_u32 %s, %s, 1' % (sCnt, sCnt))
        a('s_cmp_gt_u32 %s, 0x%x' % (sCnt, SPIN_MAX))
        a('s_waitcnt lgkmcnt(0)')
        a('s_cbranch_scc1 %s' % ok)
        if self.o['slp']:
            a('s_bitcmp1_b32 %s, %d' % (sRv, 4+24*ex))
            a('s_cbranch_scc1 %s' % ok)
            a('s_sleep %s' % self.o['slp'])
            a('s_branch %s' % lp)
        else:
            a('s_bitcmp0_b32 %s, %d' % (sRv, 4+24*ex))
            a('s_cbranch_scc1 %s' % lp)
        a(ok+':')
        if self.o['pbar']: a('s_barrier')
    def code_pf(self, name):
        a = self.a
        l = self.label('pc')
        a('s_getpc_b64 s[28:29]')
        a(l+':')
        a('s_sub_u32 s28, s28, %s-%s' % (l, name))
        a('s_subb_u32 s29, s29, 0')
        a('v_lshlrev_b32 %s, 5, v0' % v(V.O+6))
        a('global_load_dword %s, %s, s[28:29]' % (v(V.dummy), v(V.O+6)))

    def code_spf(self, name):
        a = self.a
        l = self.label('pc')
        a('s_getpc_b64 s[28:29]')
        a(l+':')
        a('s_sub_u32 s28, s28, %s-%s' % (l, name))
        a('s_subb_u32 s29, s29, 0')
        a('s_lshr_b32 %s, s2, 4' % sA)
        a('s_lshl3_add_u32 %s, %s, %s' % (sA, sA, sW))
        a('s_lshl_b32 %s, %s, 7' % (sA, sA))
        a('s_load_dword s94, s[28:29], %s' % sA)

    def ifelse(self, reg, val, feq, fne, eq_first=False):
        a = self.a; l0, l1 = self.label('ie'), self.label('iend')
        if eq_first:
            a('s_cmp_lg_u32 %s, %d' % (reg, val)); a('s_cbranch_scc1 %s' % l0)
            feq(); a('s_branch %s' % l1); a(l0+':'); fne()
        else:
            a('s_cmp_eq_u32 %s, %d' % (reg, val)); a('s_cbranch_scc1 %s' % l0)
            fne(); a('s_branch %s' % l1); a(l0+':'); feq()
        a(l1+':')
    def touch(self, rnd):
        a = self.a
        a('s_mov_b64 exec, 0')
        for k in range(7):
            a('s_cmp_eq_u32 %s, %d' % (sW, k)); a('s_cbranch_scc1 stub_%d' % (8*rnd+k))
        a('s_branch stub_%d' % (8*rnd+7))
        a('ret_%d:' % rnd)
        a('s_mov_b64 exec, -1')

    def cond(self, reg, val, f):
        a = self.a; l = self.label('c')
        a('s_cmp_lg_u32 %s, %d' % (reg, val)); a('s_cbranch_scc1 %s' % l)
        f()
        a(l+':')

    def build_one(self):
        a = self.a; o = self.o
        name = NAME + '_kernel'
        self.kernel_head(name); end = self.label('end')
        self.prologue1(end)
        wA, wB = o['wA'], o['wB']
        def wat(pos, rows=(0, 1, 2, 3)):
            f = lambda: [self.w_dma1(i) for i in rows]
            if wA == pos and wB == pos: f()
            elif wA == pos: self.cond(sP, 0, f)
            elif wB == pos: self.cond(sP, 1, f)
        self.wat = wat
        bd = int(o['bdelay'])
        if o['touch'] == 'pre': self.touch(0)
        self.mark('touched')
        a('s_waitcnt lgkmcnt(0)')
        self.mark('karg')
        if o['wsoff']:
            a('s_add_u32 s24, s24, 0x%x' % (int(o['wsoff']) << 20)); a('s_addc_u32 s25, s25, 0')
        gz = o['gz']
        g1 = o['g1']
        if g1: self.g1_probe(); self.g1_pre(); self.zero3(); a('s_mov_b32 %s, 0' % sRd)
        elif gz: self.gz_issue()
        elif o['ib']: self.probe_issue()
        elif o['ib3']: self.p2_probe_issue(); self.zero3(); a('s_mov_b32 %s, 0' % sRd)
        elif o['ib2']: self.p2_probe_issue(); self.zero_flags()
        else: self.zero_flags()
        misc = lambda: (self.srds(), self.calc_k0(), self.w_prep(), self.gz_flag_addrs() if (gz or g1) else self.flag_addrs3() if o['ib3'] else self.flag_addrs(), self.misc_ib2() if o['ib2'] else 0)
        if wB == 'first':
            def fb():
                misc(); self.w_dma()
                if bd == 0: self.p1_issue()
            self.ifelse(sP, 1, fb, self.p1_issue)
        elif bd: self.cond(sP, 0, self.p1_issue)
        else: self.p1_issue()
        if o['ib']: self.probe_eval(); self.zero_flags_ib()
        if g1: self.spec_early(); self.g1_eval(); a('s_mov_b32 s22, 256'); a('s_mov_b32 s23, 0x20000'); a('v_mov_b32 %s, 0' % v(V.EL))
        if gz: self.gz_publish(); a('s_mov_b32 s22, 256'); a('s_mov_b32 s23, 0x20000')
        if o['touch'] == 'post': self.touch(0)
        if o['touch']: self.cond(sT, 0, lambda: self.touch(1))
        if o['ib2']:
            if o['r2']: self.p1_addrs(); self.gen_F16(); self.p2_probe_eval(); self.coop_init()
            else: self.p2_probe_eval(); self.p1_addrs(); self.gen_F16(); self.coop_init()
        else: self.p1_addrs(); self.gen_F16(); self.coop_init()
        if bd == 1: self.cond(sP, 1, self.p1_issue)
        self.gen_M2()
        if o['ib']: self.ex_addrs_ib(); self.set_ready_ib()
        elif gz: self.ex_addrs()
        elif g1: self.ex_addrs(); self.ready3()
        elif o['ib3']: self.ex_addrs_ib2(); self.ready3()
        elif o['ib2']: self.ex_addrs_ib2(); self.set_ready()
        else: self.ex_addrs(); self.set_ready()
        X = [misc, self.coop_gen, lambda: self.gen_B(True, False), lambda: (self.p2_addrs(), self.w_addr())]
        nearly = max(0, bd-2)
        def early():
            for f in X[(1 if wB == 'first' else 0):nearly]: f()
            self.p1_issue()
        if bd >= 2: self.cond(sP, 1, early)
        self.mark('w1')
        def Xat(k):
            if k < nearly or (k == 0 and wB == 'first'): self.cond(sP, 0, X[k])
            else: X[k]()
        if gz: self.p1_compute(0, self.gz_read, None, lambda: (self.gz_check(), self.spec_early()))
        elif g1:
            self.p1_compute(0, lambda: self.g1_read(), None, self.g1_use, self.p2_choice_read, self.g1_wait)
        elif o['ib3']:
            self.vote_read()
            self.p1_compute(0, lambda: (self.vote_use(), self.spec_early()), None, self.p2_choice_use, self.p2_choice_read)
        elif o['ib2']: self.p1_compute(0, self.spec_early, None, self.p2_choice_use, self.p2_choice_read)
        else:
            def h1():
                if o['tlb1']:
                    a('s_add_u32 %s, %s, 0x%x' % (sA, sEst, self.ubase(0)))
                    a('v_and_b32 %s, 3, %s' % (v(V.T), v(V.lane)))
                    a('v_lshl_add_u32 %s, %s, 15, %s' % (v(V.T), v(V.T), v(V.Est)))
                    a('buffer_load_dword %s, %s, %s, %s offen' % (v(V.dummy), v(V.T), SWS, sA))
            if o['tlb1']: h1()
            self.p1_compute(1 if o['tlb1'] else 0, self.spec_early)
        self.stamp()
        if not gz: self.ready_issue()
        Xat(0)
        n = 0
        Xat(1)
        self.coop_post()
        self.mark('w2a')
        if 'da' in o: a('s_waitcnt vmcnt(0)'); self.mark('vm1')
        a('s_waitcnt vmcnt(%d) lgkmcnt(0)' % n)
        self.stamp()
        if not gz: self.ready_check()
        if o['ib']: self.flag_side()
        if o['ib3']: self.side3()
        self.mark('rdy')
        self.set_flag(0)
        if o['ib']: self.flag_side2()
        if o['ib3']: self.side3b()
        def under1():
            self.w_sload()
            if o['tlb2']:
                a('s_add_u32 %s, %s, 0x%x' % (sA, sEst, self.ubase(1)))
                a('v_and_b32 %s, 3, %s' % (v(V.T), v(V.lane)))
                a('v_lshl_add_u32 %s, %s, 15, %s' % (v(V.T), v(V.T), v(V.Est)))
                a('buffer_load_dword %s, %s, %s, %s offen' % (v(V.dummy), v(V.T), SWS, sA))
            Xat(2); self.B_dup()
            Xat(3)
            self.w_special()
        self.poll(0, under1)
        self.stamp()
        if self.o.get('fine'):
            a('s_memrealtime s[%d:%d]' % (sTS+2*self.nts, sTS+2*self.nts+1)); self.nts += 1
            self.fstamp()
        if o['ib']: self.ld_addrs_ib()
        if o.get('da') == 'votes':
            a('s_bfe_u32 s60, %s, 0x100008' % sRv); a('s_bcnt1_i32_b32 s60, s60')
            a('s_cmp_eq_u32 %s, 0' % sCh2); a('s_sub_u32 s58, 16, s60'); a('s_cmp_eq_u32 %s, 0' % sCh2); a('s_cselect_b32 s60, s60, s58')
            if 'dw' in o: a('s_cmp_eq_u32 %s, %s' % (sW, o['dw'])); a('s_cselect_b32 s60, s60, 0')
            a('s_mul_i32 s60, s60, 25'); a('s_mov_b32 s58, 0')
        if o['ib2']: self.ld_addrs_ib2()
        self.p2_issue()
        if o['ib3']: self.side3c()
        elif o['ib2']: self.major_post()
        self.coop_wait(); self.coop_read()
        self.p2_addrs2()
        a('s_waitcnt vmcnt(4)')
        self.w_edge()
        self.p2_compute(True)
        self.stamp()
        if o['ib2'] and not o['ib3']: self.major_use2()
        self.gen_M3()
        self.mark('w3a')
        a('s_waitcnt vmcnt(0)')
        self.stamp()
        self.set_flag(1)
        self.poll(1, self.p3_addrs)
        self.stamp()
        self.p3_issue()
        self.p3_soff()
        self.p3_compute()
        if 'da' in o:
            self.stamp(); a('s_waitcnt vmcnt(0)'); self.stamp()
            lp = self.label('dg')
            a('s_waitcnt lgkmcnt(0)')
            a('s_sub_u32 %s, s60, s58' % sA)
            a('s_lshl_b32 %s, %s, 2' % (sA, sA))
            if 'dp' in o:
                a('s_cmp_eq_u32 %s, %s' % (sP, o['dp'])); a('s_cselect_b32 %s, %s, 0' % (sA, sA))
            a('s_add_u32 %s, %s, 3000' % (sA, sA))
            a(lp+':')
            a('s_memrealtime s[28:29]')
            a('s_waitcnt lgkmcnt(0)')
            a('s_sub_u32 %s, s28, s56' % sB)
            a('s_cmp_lt_u32 %s, %s' % (sB, sA))
            a('s_cbranch_scc1 %s' % lp)
        if o['ts']:
            self.stamp(); a('s_waitcnt vmcnt(0)'); self.stamp()
            if 'diag' in o:
                i = int(o['diag']); lp = self.label('dg')
                a('s_waitcnt lgkmcnt(0)')
                if 'xw' in o:
                    a('s_getreg_b32 %s, hwreg(HW_REG_XCC_ID, 0, 4)' % sA)
                    a('s_sub_u32 %s, %s, s2' % (sA, sA)); a('s_and_b32 %s, %s, 7' % (sA, sA)); a('s_mul_i32 %s, %s, 400' % (sA, sA))
                    if int(o['xw']) >= 0:
                        a('s_cmp_eq_u32 s2, %s' % o['xw']); a('s_cselect_b32 %s, %s, 0' % (sA, sA))
                else:
                    a('s_sub_u32 %s, s%d, s%d' % (sA, sTS+2*i, sTS+2*int(o.get('dj', 0))))
                    a('s_lshl_b32 %s, %s, 2' % (sA, sA))
                    if 'dp' in o:
                        a('s_cmp_eq_u32 %s, %s' % (sP, o['dp'])); a('s_cselect_b32 %s, %s, 0' % (sA, sA))
                a('s_add_u32 %s, %s, 3000' % (sA, sA))
                a(lp+':')
                a('s_memrealtime s[28:29]')
                a('s_waitcnt lgkmcnt(0)')
                a('s_sub_u32 %s, s28, s%d' % (sB, sTS))
                a('s_cmp_lt_u32 %s, %s' % (sB, sA))
                a('s_cbranch_scc1 %s' % lp)
            else:
                if o['ib'] or o['gz'] or o['ib2'] or o['g1']: self.nts += 1
                self.dump_stamps(0)
        a(end+':'); a('s_endpgm'); self.flush_tail()
        if o['touch']: self.insert_stubs(name)
        a.raw('.fill (%s+16384-.)/4, 4, 0xbf810000' % name)
        launch = '; @launch grid=(256,1,1) block=(512,1,1) lds=%d\n' % LDS_TOTAL
        return self.finish(launch, [name])

    def insert_stubs(self, name):
        import subprocess, re
        from asmlib import Ins
        a = self.a
        txt = '.amdgcn_target "amdgcn-amd-amdhsa--gfx950"\n.text\n' + a.text() + ''.join('stub_%d:\n' % k for k in range(16)) + 's_endpgm\nspec_tab:\n'
        open('pass1.s', 'w').write(txt)
        subprocess.check_call(['clang', '-x', 'assembler', '-target', 'amdgcn-amd-amdhsa', '-mcpu=gfx950', '-c', 'pass1.s', '-o', 'pass1.o'])
        dis = subprocess.check_output(['llvm-objdump', '-d', '--mcpu=gfx950', 'pass1.o']).decode()
        addrs = [int(m.group(1), 16) for m in re.finditer(r'// ([0-9A-F]{12}):', dis)]
        real = [i for i, x in enumerate(a.ins) if x.kind != 'none']
        assert len(addrs) == len(real) + 1, (len(addrs), len(real))
        size = {real[k]: addrs[k+1] - addrs[k] for k in range(len(real))}
        pos = ENTRY_OFF; nxt = ENTRY_OFF + 1024 - 256
        nxt = (nxt + 1023)//1024*1024
        out = []; k = 0; prev = None; ez = False
        for i, x in enumerate(a.ins):
            if i in size:
                glued = prev is not None and (prev.op == 's_getpc_b64' or 'rel32' in x.text)
                if prev is not None and prev.text.strip() == 's_mov_b64 exec, 0': ez = True
                if prev is not None and prev.text.strip() == 's_mov_b64 exec, -1': ez = False
                glued = glued or ez
                if pos >= nxt and k < 16 and not glued:
                    out.append(Ins('stub_%d:' % k)); out.append(Ins('s_cbranch_execz ret_%d' % (k >> 3)))
                    pos += 4; k += 1; nxt += 1024
                pos += size[i]; prev = x
            out.append(x)
        self.code_end = pos
        while k < 16:
            out.append(Ins('stub_%d:' % k)); out.append(Ins('s_branch ret_%d' % (k >> 3))); k += 1
        a.ins = out

    def finish(self, launch, names):
        hdr = '; GFNet spectral filter (two heads): 2-D FFT via bf16 MFMA DFT stages. Generated by dev/gen.py\n' + launch
        s = hdr + '.amdgcn_target "amdgcn-amd-amdhsa--gfx950"\n.text\n' + self.a.text()
        s += '.section .rodata,"a"\n' + '\n'.join(self.kd(n) for n in names) + '\n' + self.spec_table() + '\n'
        return s

if __name__ == '__main__':
    mode = sys.argv[1]; out = sys.argv[2]
    opt = {}
    for kv in sys.argv[3:]:
        k, x = kv.split('=')
        opt[k] = {'True': True, 'False': False}.get(x, x.replace('+', ' '))
    g = Gen(mode, **opt)
    s = g.build_three() if mode == 'three' else g.build_one()
    assert g.a.verify() == 0
    open(out, 'w').write(s)
    print('vgprs', NVGPR, 'lds', LDS_TOTAL, 'nops', g.a.nops, 'lines', len(g.a.ins))
```

```python
import sys, struct, math
import numpy as np
from asmlib import Asm

NAME = 'concat_heads__spectral_gfnet__spectral_gfnet__prompt'

def f2u(x): return struct.unpack('<I', struct.pack('<f', x))[0]
def lit(x): return '0x%08x' % f2u(x)
def bf16bits(x):
    u = f2u(float(x)); return ((u + 0x7FFF + ((u >> 16) & 1)) >> 16) & 0xFFFF
def sigma(m): return (m & 1) | ((m >> 1) & 1) << 3 | ((m >> 2) & 1) << 1 | ((m >> 3) & 1) << 2 | (m & 16)

S11 = 2.0**-11
SPIN_MAX = 0x4000
ENTRY_OFF = 0x300
SENT = 0x13572468
WS_FLAG_IB = 32 << 20
WS_FLAG2 = 33 << 20
PW = 7
sCh2 = 's100'
R0 = 0
R1 = 33024
WL = 66048
SCR = WL + 8*4*1056
SCR_B = SCR + 36*256
TABL = SCR_B + 8192
CNT = TABL + 16384
LDS_TOTAL = CNT + 64
WS_U1 = 0
WS_U2 = 8 << 20
WS_FLAG = 32 << 20
WS_TS = 72 << 20
WS_SIZE = 80 << 20

class V: pass
_n = [0]
def alloc(n, align=1):
    b = (_n[0] + align - 1)//align*align
    _n[0] = b + n
    return b
V.tid = alloc(1); V.lane = alloc(1)
for nm in 'g n Xoff Est X0w X0r0 X0r1 X1w X1r X2w X2r WP WM l16 dummy dummy2'.split(): setattr(V, nm, alloc(1))
V.Ooff, V.X3w0, V.X3w1, V.X3r = V.Xoff, V.X0w, V.X0r0, V.X0r1
V.T = alloc(10, 1)
V.EL = alloc(4); V.Eld = V.EL+3; V.Eld0 = V.EL+3
V.O = alloc(16, 4)
V.DA = alloc(32, 4)
V.DB = alloc(32, 4)
V.L = V.DB
V.F16 = alloc(8, 4)
V.M2 = alloc(16, 4)
V.F32 = alloc(32, 4)
V.TW = alloc(32, 4)
V.W = alloc(32, 4)
V.B = alloc(12, 4)
V.Bp = alloc(8, 4)
V.WF = alloc(4)
NVGPR = _n[0]
assert NVGPR <= 256, NVGPR
def v(i): return 'v%d' % i
def vr(i, n): return 'v[%d:%d]' % (i, i+n-1)

SX, SWR, SWI, SOUT, SDBG, SWS = 's[4:7]', 's[8:11]', 's[12:15]', 's[16:19]', 's[20:23]', 's[24:27]'
sP, sT, sW, sSB, sCB, sK0 = 's30', 's31', 's32', 's33', 's34', 's35'
sKP, sKM = 's36', 's37'
sA, sB, sC, sD, sE, sF = 's40', 's41', 's42', 's43', 's44', 's45'
sEst, sEld, sCnt, sSpec = 's46', 's47', 's48', 's49'
sO = ['s52', 's53', 's54', 's55']
sRd, sRv, sInc, sWL = 's38', 's39', 's50', 's51'
ZT = 16
sDP, sDM, sZ, sZp, sCh = 's96', 's97', 's98', 's99', 's95'
sTS = 56

class Gen:
    def __init__(self, mode='one', **opt):
        self.mode = mode
        self.o = dict(ldx='', ldw='', st1='sc1', st2='sc1', sto='sc1', ld1='sc1', ld2='sc1', ts=False, stagger=True, pf=False, spf=False, touch='pre', fst='sc1', fld='sc1', slp='', fsh='', pbar=False, shear=True, prio=True, wA='postX1', wB='postX1', bdelay='4', optx=False, numa='', fl='', ib=False, wsoff='', tlb1=False, tlb2=False, ib2=False, g1=False, nb='6', pthr='2', pop='load_dword', pbase='0', r2=False, novr=False, ib3=False, pnop='15', gz=False, force='', skew=True, fstride=12)
        self.o.update(opt)
        self.a = Asm()
        self.lab = 0
        self.nts = 0
        self.tail = []

    def tstride(self): return 65536 if (self.o['numa'] != '' or self.o['ib'] or self.o['ib2']) else 32768
    def ubase(self, ex): return (ex << 24) if self.o['ib2'] else (ex << 20) if self.o['ib'] else (WS_U2 if ex else WS_U1)
    def eld(self, q, ex=0): return v(V.T+2+q) if (self.o['ib2'] and ex == 0) else v(V.EL+q) if self.o['ib'] else v(V.Eld)
    def est(self): return sZp if self.o['ib2'] else sEst
    def label(self, p='L'):
        self.lab += 1
        return '%s_%d' % (p, self.lab)

    def stamp(self):
        if 'da' in self.o:
            self.sid = getattr(self, 'sid', -1) + 1
            self.mark('s%d' % self.sid); return
        if not self.o['ts'] or self.o.get('fine'): return
        self.a('s_memrealtime s[%d:%d]' % (sTS+2*self.nts, sTS+2*self.nts+1))
        self.nts += 1

    def mark(self, nm):
        for key, reg in (('da', 58), ('db', 60)):
            if self.o.get(key) == nm: self.a('s_memrealtime s[%d:%d]' % (reg, reg+1))
    def fstamp(self):
        if not self.o.get('fine'): return
        self.a('s_memtime s[%d:%d]' % (sTS+2*self.nts, sTS+2*self.nts+1))
        self.nts += 1

    def dump_stamps(self, slot0=0):
        if not self.o['ts']: return
        a = self.a
        a('s_waitcnt lgkmcnt(0)')
        a('s_lshl_b32 %s, s2, 3' % sA); a('s_add_u32 %s, %s, %s' % (sA, sA, sW)); a('s_lshl_b32 %s, %s, 7' % (sA, sA))
        a('s_add_u32 %s, %s, 0x%x' % (sA, sA, WS_TS + slot0*4))
        a('s_mov_b64 exec, 1')
        a('v_mov_b32 %s, 0' % v(V.T+1))
        for i in range(self.nts):
            a('v_mov_b32 %s, s%d' % (v(V.T), sTS+2*i))
            a('buffer_store_dword %s, %s, %s, %s offen offset:%d' % (v(V.T), v(V.T+1), SWS, sA, 4*i))
            a('s_nop 1')
        a('s_mov_b64 exec, -1')
        self.nts = 0

    def prologue(self, end):
        a = self.a
        a('s_cmp_ge_u32 s2, 0x100')
        a('s_cbranch_scc1 %s' % end)
        self.stamp()
        a('s_bfe_u32 %s, s2, 0x10003' % sP)
        a('s_mul_i32 s3, %s, 24' % sP)
        a('s_add_u32 s28, s0, s3')
        a('s_addc_u32 s29, s1, 0')
        a('s_load_dwordx2 s[4:5], s[28:29], 0x0')
        a('s_load_dwordx2 s[8:9], s[28:29], 0x8')
        a('s_load_dwordx2 s[12:13], s[28:29], 0x10')
        a('s_load_dwordx2 s[16:17], s[0:1], 0x30')
        a('s_load_dwordx2 s[20:21], s[0:1], 0x38')
        a('s_load_dwordx2 s[24:25], s[0:1], 0x40')
        a('v_lshrrev_b32 %s, 6, v0' % v(V.T))
        a('v_and_b32 %s, 63, v0' % v(V.lane))
        a('v_readfirstlane_b32 %s, %s' % (sW, v(V.T)))
        a('s_and_b32 %s, s2, 7' % sA)
        a('s_xor_b32 %s, %s, 2' % (sA, sA))
        a('s_lshl_b32 %s, %s, 4' % (sT, sA))
        a('s_lshr_b32 %s, s2, 4' % sB)
        a('s_or_b32 %s, %s, %s' % (sT, sT, sB))
        a('s_lshl_b32 %s, %s, 1' % (sCB, sA))
        a('s_bfe_u32 %s, %s, 0x10001' % (sC, sB))
        a('s_or_b32 %s, %s, %s' % (sCB, sCB, sC))
        a('s_bfe_u32 %s, %s, 0x20002' % (sSB, sB))
        a('s_lshl_b32 %s, %s, 1' % (sSB, sSB))
        a('s_and_b32 %s, %s, 1' % (sC, sB))
        a('s_or_b32 %s, %s, %s' % (sSB, sSB, sC))
        a('s_mov_b32 s6, 0x400000'); a('s_mov_b32 s7, 0x20000')
        a('s_mov_b32 s10, 2101248'); a('s_mov_b32 s11, 0x20000')
        a('s_mov_b32 s14, 2101248'); a('s_mov_b32 s15, 0x20000')
        a('s_mov_b32 s18, 0x800000'); a('s_mov_b32 s19, 0x20000')
        a('s_mov_b32 s22, 256'); a('s_mov_b32 s23, 0x20000')
        a('s_mov_b32 s26, 0x%x' % WS_SIZE); a('s_mov_b32 s27, 0x20000')
        a('v_lshrrev_b32 %s, 4, %s' % (v(V.g), v(V.lane)))
        a('v_and_b32 %s, 15, %s' % (v(V.n), v(V.lane)))
        a('v_lshlrev_b32 %s, 4, %s' % (v(V.l16), v(V.lane)))

    def prologue1(self, end):
        a = self.a; T = V.T
        a('s_cmp_ge_u32 s2, 0x100')
        a('s_cbranch_scc1 %s' % end)
        if 'da' in self.o: a('s_memrealtime s[56:57]'); self.mark('start')
        a('s_bfe_u32 %s, s2, 0x%x' % (sP, 0x10002 if self.o['optx'] else 0x10003))
        a('s_mul_i32 s3, %s, 24' % sP)
        a('s_load_dwordx2 s[4:5], s[0:1], s3')
        a('s_load_dwordx2 s[24:25], s[0:1], 0x40')
        a('s_load_dwordx2 s[8:9], s[0:1], s3 offset:8')
        a('s_load_dwordx2 s[12:13], s[0:1], s3 offset:16')
        a('s_load_dwordx2 s[16:17], s[0:1], 0x30')
        a('s_load_dwordx2 s[20:21], s[0:1], 0x38')
        self.stamp()
        a('v_lshrrev_b32 %s, 6, v0' % v(T))
        a('v_and_b32 %s, 63, v0' % v(V.lane))
        a('v_readfirstlane_b32 %s, %s' % (sW, v(T)))
        if self.o['optx']:
            a('s_and_b32 %s, s2, 3' % sA)
            a('s_bfe_u32 %s, s2, 0x10003' % sB)
            a('s_lshl1_add_u32 %s, %s, %s' % (sA, sA, sB))
        else: a('s_and_b32 %s, s2, 7' % sA)
        a('s_lshr_b32 %s, s2, 4' % sB)
        a('s_lshl4_add_u32 %s, %s, %s' % (sT, sA, sB))
        a('s_bfe_u32 %s, %s, 0x10001' % (sC, sB))
        a('s_lshl1_add_u32 %s, %s, %s' % (sCB, sA, sC))
        a('s_lshr_b32 %s, %s, 2' % (sSB, sB))
        a('s_and_b32 %s, %s, 1' % (sC, sB))
        a('s_lshl1_add_u32 %s, %s, %s' % (sSB, sSB, sC))
        a('s_mov_b32 s6, 0x400000'); a('s_mov_b32 s7, 0x20000')
        a('v_lshrrev_b32 %s, 4, %s' % (v(V.g), v(V.lane)))
        a('v_lshlrev_b32 %s, 4, %s' % (v(V.l16), v(V.lane)))
        a('v_and_b32 %s, 8, v0' % v(T))
        a('v_lshlrev_b32 %s, 11, %s' % (v(T), v(T)))
        a('v_lshl_add_u32 %s, %s, 20, %s' % (v(T), v(V.g), v(T)))
        a('v_and_b32 %s, 0x70, %s' % (v(T+1), v(V.l16)))
        a('v_add_u32 %s, %s, %s' % (v(V.Xoff), v(T), v(T+1)))
        a('s_lshl4_add_u32 %s, %s, %s' % (sA, sW, sSB))
        a('s_lshl4_add_u32 %s, %s, %s' % (sA, sA, sCB))
        a('s_lshl_b32 %s, %s, 7' % (sO[0], sA))
        for r in range(1, 4): a('s_add_u32 %s, %s, 0x%x' % (sO[r], sO[0], r*262144))
        a('v_and_b32 %s, 15, %s' % (v(V.n), v(V.lane)))
        a('s_mov_b32 s26, 0x%x' % WS_SIZE); a('s_mov_b32 s27, 0x20000')
        a('s_lshl_b32 %s, %s, 7' % (sRd, sP))
    def srds(self):
        a = self.a
        a('s_mov_b32 s10, 2101248'); a('s_mov_b32 s11, 0x20000')
        a('s_mov_b32 s14, 2101248'); a('s_mov_b32 s15, 0x20000')
        a('s_mov_b32 s18, 0x800000'); a('s_mov_b32 s19, 0x20000')
        a('s_mov_b32 s22, 256'); a('s_mov_b32 s23, 0x20000')

    def probe_issue(self):
        a = self.a
        a('s_lshl3_add_u32 %s, %s, %s' % (sEst, sP, sW)); a('s_lshl_b32 %s, %s, 21' % (sEst, sEst))
        a('s_and_b32 %s, %s, 0x60' % (sA, sT)); a('s_add_u32 %s, %s, %s' % (sA, sA, sT)); a('s_lshl_b32 %s, %s, 8' % (sA, sA))
        a('s_add_u32 %s, %s, %s' % (sA, sA, sEst))
        for i in range(8): a('s_mov_b32 s%d, 0x%x' % (84+i, SENT))
        for k, side in ((0, 0), (0, 1), (1, 1), (1, 0), (2, 1), (2, 0), (3, 0), (3, 1)):
            a('s_load_dword s%d, s[24:25], %s offset:0x%x glc' % (84+4*side+k, sA, k*65536+side*8192))
    def probe_eval(self):
        a = self.a
        a('s_mov_b32 %s, 0' % sA); a('s_mov_b32 %s, 0' % sB)
        a('s_waitcnt lgkmcnt(4)')
        for k in range(4):
            a('s_cmp_lg_u32 s%d, 0x%x' % (84+k, SENT)); a('s_addc_u32 %s, %s, 0' % (sA, sA))
            a('s_cmp_lg_u32 s%d, 0x%x' % (88+k, SENT)); a('s_addc_u32 %s, %s, 0' % (sB, sB))
        a('s_cmp_gt_u32 %s, %s' % (sB, sA))
        a('s_cselect_b32 %s, 1, 0' % sCh)
        if self.o['force'] != '':
            a('s_and_b32 %s, %s, 1' % (sC, sW)); a('s_xor_b32 %s, %s, %s' % (sC, sC, sP)); a('s_xor_b32 %s, %s, %s' % (sCh, sC, self.o['force']))
        if self.o['ts']:
            a('s_lshl4_add_u32 s%d, %s, %s' % (sTS+24, sA, sB))
    def ex_addrs_ib(self):
        a = self.a; T = V.T
        a('s_lshl_b32 %s, %s, 4' % (sB, sW)); a('s_xor_b32 %s, %s, %s' % (sB, sB, sT)); a('s_lshl_b32 %s, %s, 8' % (sB, sB))
        a('v_lshlrev_b32 %s, 4, %s' % (v(T), v(V.n)))
        a('v_lshl_add_u32 %s, %s, 10, %s' % (v(T), v(V.g), v(T)))
        a('v_xor_b32 %s, %s, %s' % (v(T), sB, v(T)))
        a('v_and_b32 %s, 0x6000, %s' % (v(T+1), v(T)))
        a('v_add_u32 %s, %s, %s' % (v(T), v(T), v(T+1)))
        a('v_lshl_add_u32 %s, %s, 18, %s' % (v(V.Est), v(V.g), v(T)))
        a('v_and_b32 %s, 0xdcff, %s' % (v(V.Eld), v(T)))
        a('s_lshl_b32 %s, %s, 13' % (sA, sCh)); a('s_add_u32 %s, %s, %s' % (sEst, sEst, sA))
        a('s_lshr_b32 %s, %s, 4' % (sA, sT)); a('s_lshl3_add_u32 %s, %s, %s' % (sA, sP, sA)); a('s_lshl_b32 %s, %s, 21' % (sA, sA))
        a('s_and_b32 %s, %s, 15' % (sEld, sT)); a('s_lshl_b32 %s, %s, 16' % (sEld, sEld)); a('s_add_u32 %s, %s, %s' % (sEld, sEld, sA))
    def ld_addrs_ib(self):
        a = self.a; T = V.T
        a('v_lshrrev_b32 %s, %s, %s' % (v(T), v(V.dummy), sRv))
        for q in range(4):
            a('v_bfe_u32 %s, %s, %d, 1' % (v(T+1), v(T), q))
            a('v_lshl_add_u32 %s, %s, 13, %s' % (v(V.EL+q), v(T+1), v(V.Eld)))

    def ex_addrs(self):
        a = self.a
        if self.o['skew']:
            T = V.T
            a('s_lshl_b32 %s, %s, 4' % (sB, sW)); a('s_xor_b32 %s, %s, %s' % (sB, sB, sT)); a('s_lshl_b32 %s, %s, 8' % (sB, sB))
            a('v_lshlrev_b32 %s, 4, %s' % (v(T), v(V.n)))
            a('v_lshl_add_u32 %s, %s, 10, %s' % (v(T), v(V.g), v(T)))
            a('v_xor_b32 %s, %s, %s' % (v(T), sB, v(T)))
            if self.o['numa'] != '':
                pol = int(self.o['numa'][1]); mode = self.o['numa'][0]
                if mode == 'p':
                    a('v_and_b32 %s, 0x6000, %s' % (v(T+1), v(T)))
                    a('v_add_u32 %s, %s, %s' % (v(T), v(T), v(T+1)))
                    a('v_lshl_add_u32 %s, %s, 18, %s' % (v(V.Est), v(V.g), v(T)))
                    a('v_and_b32 %s, 0xdcff, %s' % (v(V.Eld), v(T)))
                    a('s_lshr_b32 %s, %s, 1' % (sA, sW)); a('s_lshr_b32 %s, %s, 6' % (sD, sT)); a('s_xor_b32 %s, %s, %s' % (sA, sA, sD))
                    a('s_lshr_b32 %s, %s, 5' % (sC, sT)); a('s_lshr_b32 %s, %s, 2' % (sD, sW)); a('s_xor_b32 %s, %s, %s' % (sC, sC, sD))
                    if pol: a('s_xor_b32 %s, %s, 1' % (sA, sA)); a('s_xor_b32 %s, %s, 1' % (sC, sC))
                    a('s_and_b32 %s, %s, 1' % (sA, sA)); a('s_and_b32 %s, %s, 1' % (sC, sC))
                    a('s_lshl_b32 %s, %s, 13' % (sA, sA)); a('s_lshl_b32 %s, %s, 13' % (sC, sC))
                    a('s_lshl_b32 %s, %s, 25' % (sD, sP)); a('s_add_u32 %s, %s, %s' % (sA, sA, sD)); a('s_add_u32 %s, %s, %s' % (sC, sC, sD))
                    a('s_lshl_b32 %s, %s, 20' % (sEst, sW)); a('s_add_u32 %s, %s, %s' % (sEst, sEst, sA))
                    a('s_lshl_b32 %s, %s, 16' % (sEld, sT)); a('s_add_u32 %s, %s, %s' % (sEld, sEld, sC))
                    return
                a('v_and_b32 %s, 0x6000, %s' % (v(T+1), v(T)))
                a('v_add_u32 %s, %s, %s' % (v(T), v(T), v(T+1)))
                a('v_lshl_add_u32 %s, %s, 18, %s' % (v(V.Est), v(V.g), v(T)))
                a('v_and_b32 %s, 0xdcff, %s' % (v(V.Eld), v(T)))
                if mode == 'x':
                    a('s_bfe_u32 %s, %s, 0x10001' % (sA, sW)); a('s_xor_b32 %s, %s, %s' % (sA, sA, sP))
                    a('s_bfe_u32 %s, %s, 0x10005' % (sC, sT)); a('s_xor_b32 %s, %s, %s' % (sC, sC, sP))
                    if pol: a('s_xor_b32 %s, %s, 1' % (sA, sA)); a('s_xor_b32 %s, %s, 1' % (sC, sC))
                    a('s_lshl_b32 %s, %s, 13' % (sA, sA)); a('s_lshl_b32 %s, %s, 13' % (sC, sC))
                    a('s_lshl_b32 %s, %s, 20' % (sEst, sW)); a('s_add_u32 %s, %s, %s' % (sEst, sEst, sA))
                    a('s_lshl_b32 %s, %s, 16' % (sEld, sT)); a('s_add_u32 %s, %s, %s' % (sEld, sEld, sC))
                else:
                    a('s_lshr_b32 %s, %s, 1' % (sA, sW)); a('s_lshr_b32 %s, %s, 2' % (sD, sW)); a('s_xor_b32 %s, %s, %s' % (sA, sA, sD))
                    a('s_lshr_b32 %s, %s, 5' % (sC, sT)); a('s_lshr_b32 %s, %s, 6' % (sD, sT)); a('s_xor_b32 %s, %s, %s' % (sC, sC, sD))
                    if pol: a('s_xor_b32 %s, %s, 1' % (sA, sA)); a('s_xor_b32 %s, %s, 1' % (sC, sC))
                    a('s_and_b32 %s, %s, 1' % (sA, sA)); a('s_and_b32 %s, %s, 1' % (sC, sC))
                    a('s_lshl_b32 %s, %s, 13' % (sA, sA)); a('s_lshl_b32 %s, %s, 13' % (sC, sC))
                    a('s_lshl_b32 %s, %s, 22' % (sD, sP)); a('s_add_u32 %s, %s, %s' % (sA, sA, sD)); a('s_add_u32 %s, %s, %s' % (sC, sC, sD))
                    a('s_and_b32 %s, %s, 3' % (sEst, sW)); a('s_lshl_b32 %s, %s, 20' % (sEst, sEst)); a('s_add_u32 %s, %s, %s' % (sEst, sEst, sA))
                    a('s_and_b32 %s, %s, 63' % (sEld, sT)); a('s_lshl_b32 %s, %s, 16' % (sEld, sEld)); a('s_add_u32 %s, %s, %s' % (sEld, sEld, sC))
                return
            a('v_lshl_add_u32 %s, %s, 17, %s' % (v(V.Est), v(V.g), v(T)))
            a('v_and_b32 %s, 0x7cff, %s' % (v(V.Eld), v(T)))
            a('s_lshl_b32 %s, %s, 22' % (sA, sP))
            a('s_lshl_b32 %s, %s, 19' % (sEst, sW)); a('s_add_u32 %s, %s, %s' % (sEst, sEst, sA))
            a('s_lshl_b32 %s, %s, 15' % (sEld, sT)); a('s_add_u32 %s, %s, %s' % (sEld, sEld, sA))
            return
        a('v_lshlrev_b32 %s, 4, %s' % (v(V.T), v(V.n)))
        a('v_lshl_add_u32 %s, %s, 17, %s' % (v(V.Est), v(V.g), v(V.T)))
        a('v_lshl_add_u32 %s, %s, 10, %s' % (v(V.Eld), v(V.g), v(V.T)))
        a('s_lshl_b32 %s, %s, 22' % (sA, sP))
        a('s_lshl_b32 %s, %s, 19' % (sEst, sW)); a('s_add_u32 %s, %s, %s' % (sEst, sEst, sA))
        a('s_lshl_b32 %s, %s, 8' % (sB, sT)); a('s_add_u32 %s, %s, %s' % (sEst, sEst, sB))
        a('s_lshl_b32 %s, %s, 15' % (sEld, sT)); a('s_add_u32 %s, %s, %s' % (sEld, sEld, sA))
        a('s_lshl_b32 %s, %s, 12' % (sB, sW)); a('s_add_u32 %s, %s, %s' % (sEld, sEld, sB))

    def trig(self, x, re, im, conj_re=None, conj_im=None):
        a = self.a; c, s = V.T+8, V.T+9
        a('v_cos_f32 %s, %s' % (v(c), v(x)))
        a('v_sin_f32 %s, %s' % (v(s), v(x)))
        a('v_cvt_pk_bf16_f32 %s, %s, %s' % (v(re), v(c), v(s)))
        a('v_cvt_pk_bf16_f32 %s, -%s, %s' % (v(im), v(s), v(c)))
        if conj_re is not None:
            a('v_cvt_pk_bf16_f32 %s, %s, -%s' % (v(conj_re), v(c), v(s)))
            a('v_cvt_pk_bf16_f32 %s, %s, %s' % (v(conj_im), v(s), v(c)))

    def gen_F16(self):
        a = self.a; T = V.T
        a('v_cvt_f32_u32 %s, %s' % (v(T), v(V.n)))
        a('v_mul_f32 %s, %s, %s' % (v(T), lit(1/16), v(T)))
        a('v_cvt_f32_u32 %s, %s' % (v(T+1), v(V.g)))
        a('v_mul_f32 %s, 4.0, %s' % (v(T+1), v(T+1)))
        a('v_mul_f32 %s, %s, %s' % (v(T+2), v(T), v(T+1)))
        for r in range(4):
            self.trig(T+2, V.F16+r, V.F16+4+r)
            if r < 3: a('v_add_f32 %s, %s, %s' % (v(T+2), v(T+2), v(T)))

    def gen_M2(self):
        a = self.a; T = V.T
        a('v_cvt_f32_u32 %s, %s' % (v(T+1), v(V.g)))
        a('v_mul_f32 %s, 4.0, %s' % (v(T+1), v(T+1)))
        def normal():
            a('v_lshl_add_u32 %s, %s, 4, %s' % (v(T), v(V.n), sW))
            a('v_cvt_f32_u32 %s, %s' % (v(T), v(T)))
            a('v_mul_f32 %s, %s, %s' % (v(T), lit(1/256), v(T)))
            a('v_mul_f32 %s, %s, %s' % (v(T+2), v(T), v(T+1)))
            for r in range(4):
                self.trig(T+2, V.M2+r, V.M2+4+r, V.M2+8+r, V.M2+12+r)
                if r < 3: a('v_add_f32 %s, %s, %s' % (v(T+2), v(T+2), v(T)))
        def w0():
            a('v_lshrrev_b32 %s, 1, %s' % (v(T), v(V.n)))
            a('v_cvt_f32_u32 %s, %s' % (v(T), v(T)))
            a('v_lshlrev_b32 %s, 31, %s' % (v(T+3), v(V.n)))
            a('v_add_f32 %s, 0.5, %s' % (v(T+4), v(T)))
            a('v_xor_b32 %s, %s, %s' % (v(T+3), lit(1/16), v(T+3)))
            a('v_mul_f32 %s, %s, %s' % (v(T), v(T), v(T+3)))
            a('v_mul_f32 %s, %s, %s' % (v(T+4), v(T+4), v(T+3)))
            a('v_cmp_ne_u32 vcc, 1, %s' % v(V.n))
            a('v_cndmask_b32 %s, 0.5, %s, vcc' % (v(T), v(T)))
            for ts in range(2):
                d = T+4*ts
                a('v_mul_f32 %s, %s, %s' % (v(T+2), v(d), v(T+1)))
                for r in range(4):
                    self.trig(T+2, V.M2+8*ts+r, V.M2+8*ts+4+r)
                    if r < 3: a('v_add_f32 %s, %s, %s' % (v(T+2), v(T+2), v(d)))
        self.ifelse(sW, 0, w0, normal)

    def gen_M3(self):
        a = self.a; T = V.T
        a('v_cvt_f32_u32 %s, %s' % (v(T), v(V.n)))
        a('v_mul_f32 %s, %s, %s' % (v(T+1), lit(1/256), v(T)))
        a('v_mul_f32 %s, %s, %s' % (v(T), lit(1/16), v(T)))
        def normal():
            a('v_lshl_add_u32 %s, %s, 6, %s' % (v(T+2), v(V.g), sW))
            a('v_cvt_f32_u32 %s, %s' % (v(T+2), v(T+2)))
            a('v_mul_f32 %s, %s, %s' % (v(T+2), v(T+2), v(T+1)))
            for r in range(4):
                self.trig(T+2, V.M2+r, V.M2+4+r, V.M2+8+r, V.M2+12+r)
                if r < 3: a('v_add_f32 %s, %s, %s' % (v(T+2), v(T+2), v(T)))
        def w0():
            for ts in range(2):
                a('v_lshlrev_b32 %s, 5, %s' % (v(T+2), v(V.g)))
                if ts: a('v_add_u32 %s, 8, %s' % (v(T+2), v(T+2)))
                a('v_cvt_f32_u32 %s, %s' % (v(T+2), v(T+2)))
                a('v_mul_f32 %s, %s, %s' % (v(T+2), v(T+2), v(T+1)))
                for eb in range(2):
                    b = V.M2+8*ts
                    self.trig(T+2, b+2*eb, b+4+2*eb, b+2*eb+1, b+4+2*eb+1)
                    if eb == 0: a('v_add_f32 %s, %s, %s' % (v(T+2), v(T+2), v(T)))
            a('s_mov_b64 exec, 0xffff')
            a('v_lshlrev_b32 %s, 15, %s' % (v(T+2), v(V.n)))
            a('v_and_b32 %s, 0x8000, %s' % (v(T+2), v(T+2)))
            a('v_or_b32 %s, 0x3f80, %s' % (v(V.M2+1), v(T+2)))
            a('v_lshlrev_b32 %s, 16, %s' % (v(V.M2+5), v(V.M2+1)))
            a('s_mov_b64 exec, -1')
        self.ifelse(sW, 0, w0, normal)

    def sigma_lane(self, dst):
        a = self.a; T = V.T
        a('v_and_b32 %s, 17, %s' % (v(dst), v(V.lane)))
        a('v_bfe_u32 %s, %s, 2, 2' % (v(T+7), v(V.lane)))
        a('v_lshl_add_u32 %s, %s, 1, %s' % (v(dst), v(T+7), v(dst)))
        a('v_bfe_u32 %s, %s, 1, 1' % (v(T+7), v(V.lane)))
        a('v_lshl_add_u32 %s, %s, 3, %s' % (v(dst), v(T+7), v(dst)))

    def gen_F32TW(self):
        a = self.a; T = V.T
        self.sigma_lane(T)
        a('v_cvt_f32_u32 %s, %s' % (v(T), v(T)))
        a('v_mul_f32 %s, %s, %s' % (v(T), lit(1/1024), v(T)))
        a('v_lshrrev_b32 %s, 5, %s' % (v(T+1), v(V.lane)))
        a('v_cvt_f32_u32 %s, %s' % (v(T+1), v(T+1)))
        a('v_add_f32 %s, %s, %s' % (v(T+1), v(T+1), v(T+1)))
        a('v_mul_f32 %s, %s, %s' % (v(T+1), v(T+1), v(T)))
        for rho in range(16):
            k = sigma(8*(rho >> 2) + (rho & 3))
            a('v_fmamk_f32 %s, %s, %s, %s' % (v(T+2), v(T), lit(float(k)), v(T+1)))
            a('v_mul_f32 %s, %s, %s' % (v(T+3), lit(32.0), v(T+2)))
            a('v_cos_f32 %s, %s' % (v(V.TW+rho), v(T+2)))
            a('v_sin_f32 %s, %s' % (v(V.TW+16+rho), v(T+2)))
            self.trig(T+3, V.F32+rho, V.F32+16+rho)

    def coop_gen(self):
        a = self.a; T = V.T; X = V.DA
        self.sigma_lane(T)
        a('v_cvt_f32_u32 %s, %s' % (v(T), v(T)))
        a('v_mul_f32 %s, %s, %s' % (v(T), lit(1/1024), v(T)))
        a('s_and_b32 %s, %s, 1' % (sA, sW)); a('s_lshl_b32 %s, %s, 3' % (sA, sA))
        a('s_and_b32 %s, %s, 2' % (sB, sW)); a('s_lshl_b32 %s, %s, 1' % (sB, sB)); a('s_add_u32 %s, %s, %s' % (sA, sA, sB))
        a('s_and_b32 %s, %s, 4' % (sB, sW)); a('s_lshl_b32 %s, %s, 2' % (sB, sB)); a('s_add_u32 %s, %s, %s' % (sA, sA, sB))
        a('v_lshrrev_b32 %s, 5, %s' % (v(T+1), v(V.lane)))
        a('v_lshl_add_u32 %s, %s, 1, %s' % (v(T+1), v(T+1), sA))
        a('v_cvt_f32_u32 %s, %s' % (v(T+1), v(T+1)))
        a('v_mul_f32 %s, %s, %s' % (v(T+2), v(T+1), v(T)))
        for e in range(2):
            a('v_mul_f32 %s, %s, %s' % (v(T+3), lit(32.0), v(T+2)))
            if self.o['shear']:
                a('v_mul_f32 %s, 0.5, %s' % (v(T+4), v(T+2)))
                a('v_cos_f32 %s, %s' % (v(T+5), v(T+4)))
                a('v_sin_f32 %s, %s' % (v(T+6), v(T+4)))
                a('v_rcp_f32 %s, %s' % (v(T+5), v(T+5)))
                a('v_mul_f32 %s, %s, %s' % (v(X+4+e), v(T+6), v(T+5)))
                a('v_fma_f32 %s, %s, %s, 1.0' % (v(T+5), v(X+4+e), v(X+4+e)))
                a('v_rcp_f32 %s, %s' % (v(T+6), v(T+5)))
                a('v_fma_f32 %s, -%s, %s, 1.0' % (v(T+5), v(T+5), v(T+6)))
                a('v_fmac_f32 %s, %s, %s' % (v(T+6), v(T+5), v(T+6)))
                a('v_mul_f32 %s, -2.0, %s' % (v(T+6), v(T+6)))
                a('v_mul_f32 %s, %s, %s' % (v(X+6+e), v(T+6), v(X+4+e)))
            else:
                a('v_cos_f32 %s, %s' % (v(X+4+e), v(T+2)))
                a('v_sin_f32 %s, %s' % (v(X+6+e), v(T+2)))
            self.trig(T+3, X+e, X+2+e)
            if e == 0: a('v_add_f32 %s, %s, %s' % (v(T+2), v(T+2), v(T)))
        a('s_lshr_b32 %s, %s, 1' % (sA, sW)); a('s_lshl_b32 %s, %s, 10' % (sA, sA))
        a('s_and_b32 %s, %s, 1' % (sB, sW)); a('s_lshl_b32 %s, %s, 3' % (sB, sB)); a('s_add_u32 %s, %s, %s' % (sA, sA, sB))
        a('s_add_u32 %s, %s, %d' % (sA, sA, TABL))
        a('v_add_u32 %s, %s, %s' % (v(T), sA, v(V.l16)))
        for k in range(4):
            a('ds_write_b64 %s, %s offset:%d' % (v(T), vr(X+2*k, 2), 4096*k))
    def coop_init(self):
        a = self.a; T = V.T
        a('v_mov_b32 %s, %d' % (v(V.dummy2), CNT)); a('v_mov_b32 %s, 0' % v(T))
        a('ds_write_b32 %s, %s' % (v(V.dummy2), v(T)))
    def coop_post(self):
        a = self.a; T = V.T
        a('v_mov_b32 %s, 1' % v(T+1))
        a('ds_add_u32 %s, %s' % (v(V.dummy2), v(T+1)))
    def coop_wait(self):
        a = self.a; T = V.T; lp, ok = self.label('cw'), self.label('cwok')
        a('s_mov_b32 %s, 0' % sCnt)
        a(lp+':')
        a('ds_read_b32 %s, %s' % (v(T), v(V.dummy2)))
        a('s_add_u32 %s, %s, 1' % (sCnt, sCnt))
        a('s_cmp_gt_u32 %s, 0x%x' % (sCnt, SPIN_MAX*8))
        a('s_waitcnt lgkmcnt(0)')
        a('s_cbranch_scc1 %s' % ok)
        a('v_cmp_gt_u32 vcc, 0x200, %s' % v(T))
        a('s_cbranch_vccnz %s' % lp)
        a(ok+':')
    def coop_read(self):
        a = self.a; T = V.T
        assert V.TW == V.F32+32
        a('v_add_u32 %s, %d, %s' % (v(T), TABL, v(V.l16)))
        for k in range(16):
            a('ds_read_b128 %s, %s offset:%d' % (vr(V.F32+4*k, 4), v(T), 1024*k))

    def calc_k0(self):
        a = self.a
        a('s_lshr_b32 %s, %s, 4' % (sA, sT))
        a('s_and_b32 %s, %s, 15' % (sB, sT))
        a('s_lshl_b32 %s, %s, 4' % (sK0, sB))
        a('s_add_u32 %s, %s, %s' % (sK0, sK0, sA))
        a('s_lshr_b32 %s, %s, 2' % (sC, sB)); a('s_lshl_b32 %s, %s, 5' % (sC, sC))
        a('s_and_b32 %s, %s, 1' % (sD, sB)); a('s_lshl_b32 %s, %s, 4' % (sD, sD)); a('s_add_u32 %s, %s, %s' % (sC, sC, sD))
        a('s_and_b32 %s, %s, 2' % (sD, sB)); a('s_lshl_b32 %s, %s, 2' % (sD, sD)); a('s_add_u32 %s, %s, %s' % (sC, sC, sD))
        a('s_cmp_eq_u32 %s, 0' % sA)
        a('s_cselect_b32 %s, %s, %s' % (sK0, sC, sK0))
        a('s_cmp_eq_u32 %s, 0' % sT)
        a('s_cselect_b32 %s, 7, 8' % sA)
        a('s_lshl_b32 %s, %s, %s' % (sKP, sW, sA))
        a('s_add_u32 %s, %s, %s' % (sKP, sKP, sK0))
        a('s_sub_u32 %s, 0x800, %s' % (sKM, sKP))
        a('s_cmp_eq_u32 %s, 0' % sKP)
        a('s_cselect_b32 %s, 0x400, %s' % (sKM, sKM))
        a('s_cselect_b32 %s, 1, 0' % sSpec)
        a('s_mul_i32 %s, %s, 1026' % (sKP, sKP))
        a('s_mul_i32 %s, %s, 1026' % (sKM, sKM))

    def wq(self, rho): return (rho & 1) + 8*((rho >> 1) & 1) + 4*((rho >> 2) & 1)
    def w_prep(self):
        a = self.a
        a('s_mul_i32 %s, %s, 4224' % (sWL, sW))
        a('s_add_u32 %s, %s, %d' % (sWL, sWL, WL))
        a('s_and_b32 %s, %s, 2' % (sA, sKP))
        a('s_add_u32 %s, %s, %s' % (sDP, sKP, sA)); a('s_add_u32 %s, %s, %s' % (sDM, sKM, sA))
    def w_dma1(self, i):
        a = self.a
        srd, so = [(SWR, sDP), (SWI, sDP), (SWR, sDM), (SWI, sDM)][i]
        a('s_add_u32 m0, %s, %d' % (sWL, 1056*i))
        a('buffer_load_dwordx4 %s, %s, %s offen %s lds' % (v(V.l16), srd, so, self.o['ldw']))
    def w_dma(self):
        for i in range(4): self.w_dma1(i)
    def w_sload(self):
        a = self.a; T = V.T
        a('s_mov_b64 exec, 15')
        a('v_mov_b32 %s, %s' % (v(T), sKP)); a('v_mov_b32 %s, %s' % (v(T+1), sKM))
        a('s_mov_b64 vcc, 10')
        a('v_cndmask_b32 %s, %s, %s, vcc' % (v(T), v(T), v(T+1)))
        a('v_and_b32 %s, 2, %s' % (v(T+1), v(V.lane)))
        a('v_lshl_add_u32 %s, %s, 9, %s' % (v(T), v(T+1), v(T)))
        a('buffer_load_short_d16_hi %s, %s, %s, 0 offen' % (v(V.WF), v(T), SWR))
        a('buffer_load_short_d16_hi %s, %s, %s, 0 offen' % (v(V.WF+1), v(T), SWI))
        a('s_mov_b64 exec, -1')
    def w_edge_rl(self):
        a = self.a
        for l in range(4):
            for im in range(2):
                a('v_readlane_b32 s%d, %s, %d' % (84+2*l+im, v(V.WF+im), l))
    def w_edge(self):
        a = self.a; T = V.T
        self.w_edge_rl()
        for i, (x, y, op) in enumerate(((84, 86, 'add'), (85, 87, 'sub'), (90, 88, 'add'), (91, 89, 'sub'))):
            a('v_mov_b32 %s, s%d' % (v(T), y))
            a('v_%s_f32 %s, s%d, %s' % (op, v(V.WF+i), x, v(T)))
            a('v_mul_f32 %s, 0.5, %s' % (v(V.WF+i), v(V.WF+i)))
        a('s_mov_b64 s[92:93], 1')
    def w_addr(self):
        a = self.a; T = V.T
        self.sigma_lane(T)
        a('v_lshrrev_b32 %s, 5, %s' % (v(T+1), v(V.lane)))
        a('v_lshlrev_b32 %s, 7, %s' % (v(T+1), v(T+1)))
        a('v_lshl_add_u32 %s, %s, 1, %s' % (v(T), v(T), v(T+1)))
        a('s_and_b32 %s, %s, 2' % (sD, sKP)); a('s_sub_u32 %s, %s, %s' % (sD, sWL, sD))
        a('v_add_u32 %s, %s, %s' % (v(V.WP), sD, v(T)))
        a('s_add_u32 %s, %s, %d' % (sD, sD, 1024-832))
        a('v_sub_u32 %s, %s, %s' % (v(V.WM), sD, v(T)))
    def w_read(self, rho, dst=None, swap=False):
        a = self.a; dst = V.W if dst is None else dst
        for im in range(2):
            if rho < 8: ad, off = V.WP, 64*self.wq(rho) + (2112 if swap else 0)
            else: ad, off = V.WM, 64*(13-self.wq(rho)) + (0 if swap else 2112)
            a('ds_read_u16_d16_hi %s, %s offset:%d' % (v(dst+16*im+rho), v(ad), off+1056*im))
    def w_fix(self, half):
        a = self.a
        for im in range(2):
            r = V.W+8*half+16*im
            a('v_cndmask_b32 %s, %s, %s, s[92:93]' % (v(r), v(r), v(V.WF+2*half+im)))
    def w_regs_early(self):
        a = self.a
        for rho in range(16): self.w_read(rho)
        a('s_waitcnt lgkmcnt(0)')
        self.w_fix(0); self.w_fix(1)
    def w_special(self):
        a = self.a; T = V.T
        l0, l1 = self.label('Wspec'), self.label('Wend')
        a('s_cmp_eq_u32 %s, 1' % sSpec)
        a('s_cbranch_scc1 %s' % l0)
        a(l1+':')
        def tail():
            X = V.DA
            a(l0+':')
            for rho in range(16): self.w_read(rho)
            for rho in range(16): self.w_read(rho, X, True)
            a('s_waitcnt lgkmcnt(0) vmcnt(0)')
            self.w_edge_rl()
            a('s_mov_b64 exec, 1')
            for r in (V.W+16, V.W+24, X+16, X+24): a('v_mov_b32 %s, 0' % v(r))
            a('v_mov_b32 %s, s90' % v(V.W+8)); a('v_mov_b32 %s, s88' % v(X+8))
            a('s_mov_b64 exec, -1')
            for i in range(32):
                a('v_add_f32 %s, %s, %s' % (v(T+3), v(V.W+i), v(X+i)))
                if (i & 15) < 8: a('v_sub_f32 %s, %s, %s' % (v(X+i), v(V.W+i), v(X+i)))
                else: a('v_sub_f32 %s, %s, %s' % (v(X+i), v(X+i), v(V.W+i)))
                a('v_mov_b32 %s, %s' % (v(V.W+i), v(T+3)))
            a('v_add_u32 %s, %d, %s' % (v(T+1), SCR_B, v(V.l16)))
            for i in range(8):
                a('ds_write_b128 %s, %s offset:%d' % (v(T+1), vr(X+4*i, 4), 1024*i))
            a('s_waitcnt lgkmcnt(0)')
            a('s_branch %s' % l1)
        self.tail.append(tail)

    def B_dup(self):
        a = self.a
        a('v_mov_b32 %s, %s' % (v(V.B+4), v(V.B))); a('v_mov_b32 %s, %s' % (v(V.B+5), v(V.B+1)))
        a('v_mov_b32 %s, %s' % (v(V.B+10), v(V.B+6))); a('v_mov_b32 %s, %s' % (v(V.B+11), v(V.B+7)))
    def gen_B(self, early=False, dup=True):
        a = self.a; T = V.T
        l0, l1 = self.label('Bspec'), self.label('Bend')
        a('s_cmp_eq_u32 %s, 0' % sT)
        a('s_cbranch_scc1 %s' % (l1 if early else l0))
        c, s = T+8, T+9
        a('v_lshrrev_b32 %s, 1, %s' % (v(T), v(V.n)))
        a('v_lshl_add_u32 %s, %s, 8, %s' % (v(T+1), v(T), sK0))
        a('v_cvt_f32_u32 %s, %s' % (v(T+1), v(T+1)))
        a('v_mul_f32 %s, %s, %s' % (v(T+1), lit(1/2048), v(T+1)))
        a('v_cvt_f32_u32 %s, %s' % (v(T+2), v(V.g)))
        a('v_add_f32 %s, %s, %s' % (v(T+2), v(T+2), v(T+2)))
        a('v_and_b32 %s, 1, %s' % (v(T+3), v(V.n)))
        a('v_cvt_f32_u32 %s, %s' % (v(T+3), v(T+3)))
        a('v_mul_f32 %s, %s, %s' % (v(T+4), lit(0.25), v(T+3)))
        a('v_mul_f32 %s, %s, %s' % (v(T+5), v(T+1), v(T+2)))
        for sbb in range(2):
            for half in range(2):
                a('v_%s_f32 %s, %s, %s' % ('sub' if half else 'add', v(T+6), v(T+5), v(T+4)))
                a('v_cos_f32 %s, %s' % (v(c), v(T+6)))
                a('v_sin_f32 %s, %s' % (v(s), v(T+6)))
                a('v_mul_f32 %s, %s, %s' % (v(c), lit(S11), v(c)))
                a('v_mul_f32 %s, %s, %s' % (v(s), lit(S11), v(s)))
                ng = '-' if half else ''
                a('v_cvt_pk_bf16_f32 %s, %s, %s%s' % (v(V.B+2*sbb+half), v(c), ng, v(s)))
                a('v_cvt_pk_bf16_f32 %s, -%s, %s%s' % (v(V.B+6+2*sbb+half), v(s), ng, v(c)))
            if sbb == 0: a('v_add_f32 %s, %s, %s' % (v(T+5), v(T+5), v(T+1)))
        a('v_cvt_f32_u32 %s, %s' % (v(T), v(T)))
        a('v_lshlrev_b32 %s, 31, %s' % (v(T+4), v(V.n)))
        a('v_xor_b32 %s, %s, %s' % (v(T), v(T), v(T+4)))
        a('v_xor_b32 %s, %s, %s' % (v(T+4), lit(S11), v(T+4)))
        a('v_lshl_add_u32 %s, %s, 9, %s' % (v(T+1), v(V.g), sK0))
        a('v_cvt_f32_u32 %s, %s' % (v(T+1), v(T+1)))
        a('v_mul_f32 %s, %s, %s' % (v(T+1), lit(1/2048), v(T+1)))
        a('v_mul_f32 %s, %s, %s' % (v(T+5), v(T+1), v(T)))
        a('v_fmac_f32 %s, 0.5, %s' % (v(T+5), v(T+3)))
        for ii in range(2):
            a('v_cos_f32 %s, %s' % (v(c), v(T+5)))
            a('v_sin_f32 %s, %s' % (v(s), v(T+5)))
            a('v_mul_f32 %s, %s, %s' % (v(T+6), v(T+4), v(c)))
            a('v_mul_f32 %s, %s, %s' % (v(T+7), v(T+4), v(s)))
            a('v_mul_f32 %s, %s, %s' % (v(c), lit(S11), v(c)))
            a('v_mul_f32 %s, %s, %s' % (v(s), lit(S11), v(s)))
            a('v_cvt_pk_bf16_f32 %s, %s, %s' % (v(V.Bp+2*ii), v(c), v(T+7)))
            a('v_cvt_pk_bf16_f32 %s, -%s, %s' % (v(V.Bp+4+2*ii), v(s), v(T+6)))
            a('v_cvt_pk_bf16_f32 %s, -%s, %s' % (v(V.Bp+2*ii+1), v(s), v(T+6)))
            a('v_cvt_pk_bf16_f32 %s, -%s, -%s' % (v(V.Bp+4+2*ii+1), v(c), v(T+7)))
            if ii == 0: a('v_fmac_f32 %s, %s, %s' % (v(T+5), lit(0.125), v(T)))
        a(l1+':')
        if dup: self.B_dup()
        def tail():
            a(l0+':')
            if not early: self.spec_load(); a('s_waitcnt vmcnt(0)')
            a('s_branch %s' % l1)
        if not early: self.tail.append(tail)
    def spec_load(self):
        a = self.a
        a('s_getpc_b64 s[28:29]')
        a('s_add_u32 s28, s28, spec_tab@rel32@lo+4')
        a('s_addc_u32 s29, s29, spec_tab@rel32@hi+12')
        a('global_load_dwordx4 %s, %s, s[28:29]' % (vr(V.B, 4), v(V.l16)))
        a('global_load_dwordx4 %s, %s, s[28:29] offset:1024' % (vr(V.B+6, 4), v(V.l16)))
        a('global_load_dwordx4 %s, %s, s[28:29] offset:2048' % (vr(V.Bp, 4), v(V.l16)))
        a('global_load_dwordx4 %s, %s, s[28:29] offset:3072' % (vr(V.Bp+4, 4), v(V.l16)))
    def spec_early(self):
        a = self.a
        def g():
            self.srds()
            a('s_mov_b32 %s, 0' % sDP); a('s_mov_b32 %s, %d' % (sDM, 1024*1026)); a('s_mov_b32 %s, %d' % (sWL, WL))
            self.w_dma()
        def f():
            self.spec_load(); self.cond(sW, 0, g)
        self.cond(sT, 0, f)

    def spec_table(self):
        tab = np.zeros((4, 64, 4, 2))
        for lane in range(64):
            m, g = lane & 15, lane >> 4
            for r in range(4):
                t, c = m >> 1, m & 1; sb, hf = 2*g + (r >> 1), r & 1
                if hf == (t & 1):
                    th = 2*math.pi*sb*t/16
                    tab[0, lane, r, c] = (2*S11 if t else S11)*math.cos(th)
                    tab[1, lane, r, c] = -2*S11*math.sin(th) if t else S11*(-1.0)**sb
                sb, hf = m >> 1, m & 1; t, c = 2*g + (r >> 1), r & 1
                if hf == (t & 1):
                    th = 2*math.pi*sb*t/16
                    if t: cre, cim = 2*math.cos(th), -2*math.sin(th)
                    else: cre, cim = 1.0, (-1.0)**sb
                    pl = 2 + (1 - c)
                    tab[pl, lane, r, 0] = S11*cim
                    tab[pl, lane, r, 1] = S11*cre
        tab[abs(tab) < 1e-12] = 0
        out = ['.p2align 6', '.type spec_tab,@object', 'spec_tab:']
        w = [bf16bits(tab[p, l, r, 0]) | bf16bits(tab[p, l, r, 1]) << 16 for p in range(4) for l in range(64) for r in range(4)]
        for i in range(0, len(w), 8):
            out.append('.long ' + ','.join('0x%x' % x for x in w[i:i+8]))
        return '\n'.join(out)

    def p1_load(self):
        a = self.a; T = V.T
        a('v_bfe_u32 %s, %s, 3, 1' % (v(T), v(V.lane)))
        a('v_lshlrev_b32 %s, 14, %s' % (v(T), v(T)))
        a('v_lshl_add_u32 %s, %s, 20, %s' % (v(T), v(V.g), v(T)))
        a('v_and_b32 %s, 0x70, %s' % (v(T+1), v(V.l16)))
        a('v_add_u32 %s, %s, %s' % (v(V.Xoff), v(T), v(T+1)))
        a('s_lshl_b32 %s, %s, 15' % (sO[0], sW))
        a('s_lshl_b32 %s, %s, 11' % (sA, sSB)); a('s_add_u32 %s, %s, %s' % (sO[0], sO[0], sA))
        a('s_lshl_b32 %s, %s, 7' % (sA, sCB)); a('s_add_u32 %s, %s, %s' % (sO[0], sO[0], sA))
        for r in range(1, 4): a('s_add_u32 %s, %s, 0x%x' % (sO[r], sO[0], r*262144))
    def p1_issue(self):
        a = self.a
        for r in range(4):
            a('buffer_load_dwordx4 %s, %s, %s, %s offen %s' % (vr(V.L+4*r, 4), v(V.Xoff), SX, sO[r], self.o['ldx']))
    def p1_addrs(self):
        a = self.a; T = V.T
        a('v_xor_b32 %s, %s, %s' % (v(T), sSB, v(V.lane)))
        a('v_and_b32 %s, 1, %s' % (v(T), v(T)))
        a('v_mul_u32_u24 %s, 16448, %s' % (v(T), v(T)))
        a('v_lshl_add_u32 %s, %s, 12, %s' % (v(T), v(V.g), v(T)))
        a('v_and_b32 %s, 14, %s' % (v(T+1), v(V.lane)))
        a('v_lshl_add_u32 %s, %s, 3, %s' % (v(T), v(T+1), v(T)))
        a('s_lshr_b32 %s, %s, 2' % (sA, sW)); a('s_lshl_b32 %s, %s, 9' % (sA, sA))
        a('s_and_b32 %s, %s, 1' % (sB, sW)); a('s_lshl_b32 %s, %s, 8' % (sB, sB)); a('s_add_u32 %s, %s, %s' % (sA, sA, sB))
        a('s_and_b32 %s, %s, 2' % (sB, sW)); a('s_lshl_b32 %s, %s, 6' % (sB, sB)); a('s_add_u32 %s, %s, %s' % (sA, sA, sB))
        if R0: a('s_add_u32 %s, %s, %d' % (sA, sA, R0))
        a('v_add_u32 %s, %s, %s' % (v(V.X0w), sA, v(T)))
        self.tr_lane(T, 512, 128)
        a('s_lshl_b32 %s, %s, 10' % (sA, sW))
        a('s_sub_u32 %s, 0x4000, %s' % (sB, sA))
        a('s_cmp_eq_u32 %s, 0' % sW)
        a('s_cselect_b32 %s, 0x2000, %s' % (sB, sB))
        if R0: a('s_add_u32 %s, %s, %d' % (sA, sA, R0)); a('s_add_u32 %s, %s, %d' % (sB, sB, R0))
        a('v_add_u32 %s, %s, %s' % (v(V.X0r0), sA, v(T)))
        a('v_add_u32 %s, %s, %s' % (v(V.X0r1), sB, v(T)))
    def tr_lane(self, dst, g1s, g0s, b3s=64):
        a = self.a; t = V.T+7
        sh = lambda x: int(math.log2(x))
        a('v_and_b32 %s, 0x30, %s' % (v(dst), v(V.l16)))
        for bit, st in ((2, 8), (3, b3s), (4, g0s), (5, g1s)):
            a('v_bfe_u32 %s, %s, %d, 1' % (v(t), v(V.lane), bit))
            a('v_lshl_add_u32 %s, %s, %d, %s' % (v(dst), v(t), sh(st), v(dst)))

    def mf16(self, d, A, B):
        self.a('v_mfma_f32_16x16x32_bf16 %s, %s, %s, 0' % (vr(d, 4), vr(A, 4), vr(B, 4)))
    def cvt(self, d, lo, hi):
        self.a('v_cvt_pk_bf16_f32 %s, %s, %s' % (v(d), v(lo), v(hi)))

    def p1_compute(self, nafter, hook=None, hook2=None, hook3=None, hook4=None, hook5=None):
        a = self.a; O, L, D = V.O, V.L, V.DA
        for r in range(4):
            a('s_waitcnt vmcnt(%d)' % (nafter + 3 - r))
            if r == 3: self.stamp()
            for t in range(4):
                a('v_mov_b32 %s, %s' % (v(O+4*t+r), v(L+4*r+t)))
        for t in range(4):
            self.mf16(D+4*t, V.F16, O+4*t)
            self.mf16(D+16+4*t, V.F16+4, O+4*t)
        if hook: hook()
        P = V.DB
        for r in range(4):
            self.cvt(P+4*r, D+r, D+4+r); self.cvt(P+4*r+2, D+16+r, D+20+r)
        for r in range(4):
            self.cvt(P+4*r+1, D+8+r, D+12+r); self.cvt(P+4*r+3, D+24+r, D+28+r)
            a('ds_write_b128 %s, %s offset:%d' % (v(V.X0w), vr(P+4*r, 4), 1024*r))
        self.mark('g1a')
        if hook5: hook5()
        self.mark('g1b')
        a('s_waitcnt lgkmcnt(0)')
        a('s_barrier')
        if hook4: hook4()
        for sel in range(2):
            for tau in range(2):
                for ii in range(2):
                    a('ds_read_b64_tr_b16 %s, %s offset:%d' % (vr(O+4*(2*sel+tau)+2*ii, 2), v(V.X0r1 if sel else V.X0r0), tau*16448+ii*256))
        if hook2: hook2()
        if hook3: hook3()
        for r in range(4): a('s_add_u32 %s, %s, 0x%x' % (sO[r], self.est(), self.ubase(0) + r*self.tstride()))
        for ti in range(4):
            a('s_waitcnt lgkmcnt(%d)' % (6-2*ti))
            self.mf16(D+4*ti, V.M2+8*(ti >> 1), O+4*ti)
            self.mf16(D+16+4*ti, V.M2+8*(ti >> 1)+4, O+4*ti)
        st = lambda i: a('buffer_store_dwordx4 %s, %s, %s, %s offen %s' % (vr(P+4*i, 4), v(V.Est), SWS, sO[i], self.o['st1']))
        def normal():
            for i in range(4):
                for tau in range(2): self.cvt(P+4*i+2*tau, D+4*tau+i, D+16+4*tau+i)
            for i in range(4):
                for tau in range(2): self.cvt(P+4*i+2*tau+1, D+4*(2+tau)+i, D+16+4*(2+tau)+i)
                st(i)
        def w0():
            for i in range(4):
                ts, eb = i >> 1, i & 1
                for tau in range(2):
                    for sg in range(2):
                        x = 4*(2*ts+tau)+2*eb+sg
                        self.cvt(P+4*i+2*tau+sg, D+x, D+16+x)
                st(i)
        self.ifelse(sW, 0, w0, normal)

    def p2_addrs(self):
        a = self.a; T = V.T
        a('v_lshlrev_b32 %s, 4, %s' % (v(T), v(V.n)))
        a('v_lshl_add_u32 %s, %s, 13, %s' % (v(T), v(V.g), v(T)))
        a('s_lshl_b32 %s, %s, 9' % (sA, sW)); a('s_add_u32 %s, %s, %d' % (sA, sA, R1))
        a('v_add_u32 %s, %s, %s' % (v(V.X1w), sA, v(T)))
    def p2_addrs2(self):
        a = self.a; T = V.T
        self.tr_lane(T, 256, 64, 128)
        a('s_lshl_b32 %s, %s, 12' % (sA, sW)); a('s_add_u32 %s, %s, %d' % (sA, sA, R1))
        a('v_add_u32 %s, %s, %s' % (v(V.X1r), sA, v(T)))
        a('v_and_b32 %s, 16, %s' % (v(T), v(V.l16)))
        for bit, st in ((1, 16448), (2, 8224)):
            a('v_bfe_u32 %s, %s, %d, 1' % (v(T+1), v(V.lane), bit))
            a('v_mul_u32_u24 %s, %d, %s' % (v(T+1), st, v(T+1)))
            a('v_add_u32 %s, %s, %s' % (v(T), v(T), v(T+1)))
        a('v_bfe_u32 %s, %s, 3, 2' % (v(T+1), v(V.lane)))
        a('v_lshl_add_u32 %s, %s, 11, %s' % (v(T), v(T+1), v(T)))
        a('v_and_b32 %s, 32, %s' % (v(T+1), v(V.lane)))
        a('v_add_u32 %s, %s, %s' % (v(T), v(T), v(T+1)))
        a('s_lshr_b32 %s, %s, 2' % (sA, sW)); a('s_lshl_b32 %s, %s, 9' % (sA, sA))
        a('s_and_b32 %s, %s, 1' % (sB, sW)); a('s_lshl_b32 %s, %s, 8' % (sB, sB)); a('s_add_u32 %s, %s, %s' % (sA, sA, sB))
        a('s_and_b32 %s, %s, 2' % (sB, sW)); a('s_lshl_b32 %s, %s, 6' % (sB, sB)); a('s_add_u32 %s, %s, %s' % (sA, sA, sB))
        if R0: a('s_add_u32 %s, %s, %d' % (sA, sA, R0))
        a('v_add_u32 %s, %s, %s' % (v(V.X2w), sA, v(T)))
        self.tr_lane(T, 512, 128)
        a('s_and_b32 %s, %s, 1' % (sA, sW)); a('s_lshl_b32 %s, %s, 11' % (sA, sA))
        a('s_bfe_u32 %s, %s, 0x10001' % (sB, sW)); a('s_mul_i32 %s, %s, 16448' % (sB, sB)); a('s_add_u32 %s, %s, %s' % (sA, sA, sB))
        a('s_lshr_b32 %s, %s, 2' % (sB, sW)); a('s_lshl_b32 %s, %s, 12' % (sB, sB)); a('s_add_u32 %s, %s, %s' % (sA, sA, sB))
        if R0: a('s_add_u32 %s, %s, %d' % (sA, sA, R0))
        a('v_add_u32 %s, %s, %s' % (v(V.X2r), sA, v(T)))

    def p2_issue(self):
        a = self.a
        a('s_add_u32 %s, %s, 0x%x' % (sA, sEld, self.ubase(0)))
        for q in range(4):
            a('buffer_load_dwordx4 %s, %s, %s, %s offen offset:%d %s' % (vr(V.L+12*(q >> 1)+4*(q & 1), 4), self.eld(q), SWS, sA, 256*q, self.o['ld1']))

    def mf32(self, d, i, dataA):
        for pl in range(2):
            M = vr(V.F32+16*pl+4*i, 4); X = vr(V.O+4*i, 4)
            A, B = (X, M) if dataA else (M, X)
            D = vr(d+16*pl, 16)
            self.a('v_mfma_f32_32x32x16_bf16 %s, %s, %s, %s' % (D, A, B, D if i else '0'))

    def cmul_stage(self, src, dst, dataA, coef, kind, prio=None, late=False):
        a = self.a; T = V.T
        if prio is not None and self.o['prio']: a('s_setprio %d' % prio)
        if kind == 'tw' and self.o['shear']:
            for i in range(4):
                for st in range(3):
                    for r in range(4):
                        rho = 4*i+r
                        x, y = v(src+rho), v(src+16+rho)
                        if st == 1: a('v_fmac_f32 %s, %s, %s' % (y, v(coef+16+rho), x))
                        else: a('v_fmac_f32 %s, %s, %s' % (x, v(coef+rho), y))
                for r in range(4): self.cvt(V.O+4*i+r, src+4*i+r, src+16+4*i+r)
                self.mf32(dst, i, dataA)
            return
        if late:
            a('s_waitcnt vmcnt(2)')
            for rho in range(8): self.w_read(rho)
        for i in range(4):
            if late:
                if i == 0: a('s_waitcnt lgkmcnt(8)'); self.w_fix(0)
                if i == 1:
                    a('s_waitcnt vmcnt(0)')
                    for rho in range(8, 12): self.w_read(rho)
                    a('s_waitcnt lgkmcnt(8)')
                if i == 2:
                    for rho in range(12, 16): self.w_read(rho)
                    a('s_waitcnt lgkmcnt(8)'); self.w_fix(1)
                if i == 3: a('s_waitcnt lgkmcnt(0)')
            for r in range(4):
                rho = 4*i+r
                x, y = v(src+rho), v(src+16+rho)
                c, s = v(coef+rho), v(coef+16+rho)
                t0, t1 = v(T+2*r), v(T+2*r+1)
                a('v_mul_f32 %s, %s, %s' % (t0, x, c))
                a('v_mul_f32 %s, %s, %s' % (t1, y, c))
            for r in range(4):
                rho = 4*i+r
                x, y = v(src+rho), v(src+16+rho)
                c, s = v(coef+rho), v(coef+16+rho)
                t0, t1 = v(T+2*r), v(T+2*r+1)
                if kind == 'tw' or rho >= 8:
                    a('v_fmac_f32 %s, %s, %s' % (t0, y, s))
                    a('v_fma_f32 %s, -%s, %s, %s' % (t1, x, s, t1))
                else:
                    a('v_fma_f32 %s, -%s, %s, %s' % (t0, y, s, t0))
                    a('v_fmac_f32 %s, %s, %s' % (t1, x, s))
            for r in range(4):
                if kind == 'tw': self.cvt(V.O+4*i+r, T+2*r, T+2*r+1)
                else: self.cvt(V.O+4*i+r, T+2*r+1, T+2*r)
            self.mf32(dst, i, dataA)

    def p2_compute(self, wl=None):
        a = self.a; O, L, D, T = V.O, V.L, V.DA, V.T
        late = wl is not None
        na = 0
        for cbb in range(2):
            b = L+12*cbb
            a('s_waitcnt vmcnt(%d)' % (na+3-2*cbb))
            a('v_mov_b32 %s, %s' % (v(b+8), v(b))); a('v_mov_b32 %s, %s' % (v(b+9), v(b+1)))
            a('s_waitcnt vmcnt(%d)' % (na+2-2*cbb))
            if cbb: self.stamp(); self.fstamp()
            for jj2 in (1, 0):
                ti = 2*cbb+jj2
                op = b+2 if jj2 else b+6
                mo = 0 if jj2 else 2
                self.mf16(D+4*ti, V.B+mo, op)
                self.mf16(D+16+4*ti, V.B+6+mo, op)
        for cbb in range(2):
            for k1b in range(2):
                P = O+4*(2*cbb+k1b)
                for pl in range(2):
                    for jj2 in (1, 0):
                        x = D+16*pl+4*(2*cbb+jj2)+2*k1b
                        self.cvt(P+2*pl+jj2, x, x+1)
                a('ds_write_b128 %s, %s offset:%d' % (v(V.X1w), vr(P, 4), k1b*4096+cbb*256))
        self.fstamp()
        a('s_waitcnt lgkmcnt(0)')
        self.fstamp()
        if self.o.get('fine'): a('s_waitcnt lgkmcnt(0)')
        a('s_barrier')
        if self.o['prio']: a('s_setprio 3')
        for i in range(4):
            for ii in range(2):
                a('ds_read_b64_tr_b16 %s, %s offset:%d' % (vr(O+4*i+2*ii, 2), v(V.X1r), ii*1024+(i & 1)*512+(i >> 1)*2048))
        for i in range(4):
            if late and i in (0, 2): self.wat('postX1', (i, i+1))
            a('s_waitcnt lgkmcnt(%d)' % (6-2*i))
            self.mf32(V.DA, i, True)
        self.fstamp()
        if late: self.wat('tw1')
        self.cmul_stage(V.DA, V.DB, False, V.TW, 'tw', 2)
        self.fstamp()
        l0, l1 = self.label('PWspec'), self.label('PWend')
        a('s_cmp_eq_u32 %s, 1' % sSpec)
        a('s_cbranch_scc1 %s' % l0)
        if self.o.get('fine'): a('s_waitcnt lgkmcnt(0)')
        self.cmul_stage(V.DB, V.DA, True, V.W, 'w', 1, late)
        a(l1+':')
        self.fstamp()
        self.cmul_stage(V.DA, V.DB, True, V.TW, 'tw', 0)
        self.fstamp()
        D = V.DB
        rho = lambda jj3, jj1, jj2, c: 4*(2*jj3+jj1)+2*jj2+c
        for c in range(2):
            for jj1 in range(2):
                P = O+4*(2*c+jj1)
                for pl in range(2):
                    for jj3 in range(2):
                        self.cvt(P+2*pl+jj3, D+16*pl+rho(jj3, jj1, 0, c), D+16*pl+rho(jj3, jj1, 1, c))
                a('ds_write_b128 %s, %s offset:%d' % (v(V.X2w), vr(P, 4), c*64+jj1*1024))
                if self.o['ib2'] and not self.o['ib3'] and c == 0 and jj1 == 0: self.major_read()
        self.fstamp()
        a('s_waitcnt lgkmcnt(0)')
        if self.o['ib2'] and not self.o['ib3']: self.major_use()
        self.fstamp()
        if self.o.get('fine'): a('s_waitcnt lgkmcnt(0)')
        a('s_barrier')
        for cbb in range(2):
            for jj1 in range(2):
                for ii in range(2):
                    a('ds_read_b64_tr_b16 %s, %s offset:%d' % (vr(O+4*(2*cbb+jj1)+2*ii, 2), v(V.X2r), ii*256+jj1*1024+cbb*8224))
        for r in range(4): a('s_add_u32 %s, %s, 0x%x' % (sO[r], self.est(), self.ubase(1) + r*self.tstride()))
        D = V.DA
        for ti in range(4):
            a('s_waitcnt lgkmcnt(%d)' % (6-2*ti))
            self.mf16(D+4*ti, V.Bp, O+4*ti)
            self.mf16(D+16+4*ti, V.Bp+4, O+4*ti)
        self.fstamp()
        P = V.DB
        for q in range(4):
            cbb, sbb = q >> 1, q & 1
            for jj1 in range(2):
                for hf in range(2):
                    x = 4*(2*cbb+jj1)+2*sbb+hf
                    self.cvt(P+4*q+2*jj1+hf, D+x, D+16+x)
            a('buffer_store_dwordx4 %s, %s, %s, %s offen %s' % (vr(P+4*q, 4), v(V.Est), SWS, sO[q], self.o['st2']))
        self.fstamp()
        if self.o.get('fine'):
            a('s_memrealtime s[%d:%d]' % (sTS+2*self.nts, sTS+2*self.nts+1)); self.nts += 1
        def tail():
            C = V.DB; X = V.DA
            a(l0+':')
            self.sigma_lane(T)
            a('v_lshrrev_b32 %s, 5, %s' % (v(T+1), v(V.lane)))
            a('v_lshlrev_b32 %s, 9, %s' % (v(T+1), v(T+1)))
            a('v_lshl_add_u32 %s, %s, 2, %s' % (v(T+2), v(T), v(T+1)))
            a('v_add_u32 %s, %d, %s' % (v(T+2), SCR, v(T+2)))
            a('v_add_u32 %s, 128, %s' % (v(T+3), v(T+2)))
            a('v_sub_u32 %s, 32, %s' % (v(T+4), v(T)))
            a('v_lshrrev_b32 %s, 5, %s' % (v(T+5), v(T+4)))
            a('v_and_b32 %s, 31, %s' % (v(T+4), v(T+4)))
            a('v_lshlrev_b32 %s, 2, %s' % (v(T+4), v(T+4)))
            a('v_lshl_add_u32 %s, %s, 8, %s' % (v(T+4), v(T+5), v(T+4)))
            a('v_sub_u32 %s, %s, %s' % (v(T+4), v(T+4), v(T+1)))
            a('v_add_u32 %s, %d, %s' % (v(T+4), SCR + 2*256, v(T+4)))
            a('v_add_u32 %s, 128, %s' % (v(T+5), v(T+4)))
            a('v_add_u32 %s, %d, %s' % (v(T+6), SCR_B, v(V.l16)))
            qs = lambda rho: sigma(8*(rho >> 2) + (rho & 3))
            for pl in range(2):
                for rho in range(0, 16, 2):
                    a('ds_write2st64_b32 %s, %s, %s offset0:%d offset1:%d' % (v(T+2+pl), v(C+16*pl+rho), v(C+16*pl+rho+1), qs(rho), qs(rho+1)))
                a('ds_write_b32 %s, %s offset:%d' % (v(T+2+pl), v(C+16*pl), 32*256))
            a('s_waitcnt lgkmcnt(0)')
            t0, t1 = v(T+8), v(T+9)
            for half in range(2):
                for pl in range(2):
                    for k in range(0, 8, 2):
                        rho_ = 8*half+k
                        a('ds_read2st64_b32 %s, %s offset0:%d offset1:%d' % (vr(X+8*pl+k, 2), v(T+4+pl), 29-qs(rho_), 29-qs(rho_+1)))
                    for k in range(2):
                        a('ds_read_b128 %s, %s offset:%d' % (vr(X+16+8*pl+4*k, 4), v(T+6), 1024*(4*pl+2*half+k)))
                a('s_waitcnt lgkmcnt(0)')
                for k in range(8):
                    rho_ = 8*half+k
                    x, y = v(C+rho_), v(C+16+rho_); ar, ai = v(V.W+rho_), v(V.W+16+rho_)
                    p, q_ = v(X+k), v(X+8+k); br, bi = v(X+16+k), v(X+24+k)
                    ng, ps = ('', '-') if half else ('-', '')
                    a('v_mul_f32 %s, %s, %s' % (t0, x, ar))
                    a('v_mul_f32 %s, %s, %s' % (t1, y, ar))
                    a('v_fma_f32 %s, %s%s, %s, %s' % (t0, ng, y, ai, t0))
                    a('v_fma_f32 %s, %s%s, %s, %s' % (t1, ps, x, ai, t1))
                    a('v_fmac_f32 %s, %s, %s' % (t0, p, br))
                    a('v_fma_f32 %s, -%s, %s, %s' % (t1, q_, br, t1))
                    a('v_fma_f32 %s, %s%s, %s, %s' % (t0, ps, q_, bi, t0))
                    a('v_fma_f32 %s, %s%s, %s, %s' % (t1, ps, p, bi, t1))
                    self.cvt(O+rho_, T+9, T+8)
            for i in range(4): self.mf32(V.DA, i, True)
            a('s_nop 11')
            a('s_branch %s' % l1)
        self.tail.append(tail)

    def p3_addrs(self):
        a = self.a; T = V.T
        a('v_and_b32 %s, 16, %s' % (v(T), v(V.lane)))
        for bit, st in ((0, 32), (3, 4096), (5, 1024)):
            a('v_bfe_u32 %s, %s, %d, 1' % (v(T+1), v(V.lane), bit))
            a('v_lshl_add_u32 %s, %s, %d, %s' % (v(T), v(T+1), int(math.log2(st)), v(T)))
        for bit, st in ((1, 8208), (2, 16448)):
            a('v_bfe_u32 %s, %s, %d, 1' % (v(T+1), v(V.lane), bit))
            a('v_mul_u32_u24 %s, %d, %s' % (v(T+1), st, v(T+1)))
            a('v_add_u32 %s, %s, %s' % (v(T), v(T), v(T+1)))
        a('s_sub_u32 %s, 16, %s' % (sC, sW))
        a('s_cmp_eq_u32 %s, 0' % sW)
        a('s_cselect_b32 %s, 8, %s' % (sC, sC))
        for kl, dst in ((sW, V.X3w0), (sC, V.X3w1)):
            a('s_and_b32 %s, %s, 9' % (sA, kl)); a('s_lshl_b32 %s, %s, 6' % (sA, sA))
            a('s_and_b32 %s, %s, 2' % (sB, kl)); a('s_lshl_b32 %s, %s, 7' % (sB, sB)); a('s_add_u32 %s, %s, %s' % (sA, sA, sB))
            a('s_and_b32 %s, %s, 4' % (sB, kl)); a('s_lshl_b32 %s, %s, 5' % (sB, sB)); a('s_add_u32 %s, %s, %s' % (sA, sA, sB))
            a('s_add_u32 %s, %s, %d' % (sA, sA, R1))
            a('v_add_u32 %s, %s, %s' % (v(dst), sA, v(T)))
        self.tr_lane(T, 512, 128)
        a('s_and_b32 %s, %s, 1' % (sA, sW)); a('s_mul_i32 %s, %s, 8208' % (sA, sA))
        a('s_bfe_u32 %s, %s, 0x10001' % (sB, sW)); a('s_mul_i32 %s, %s, 16448' % (sB, sB)); a('s_add_u32 %s, %s, %s' % (sA, sA, sB))
        a('s_lshr_b32 %s, %s, 2' % (sB, sW)); a('s_lshl_b32 %s, %s, 12' % (sB, sB)); a('s_add_u32 %s, %s, %s' % (sA, sA, sB))
        a('s_add_u32 %s, %s, %d' % (sA, sA, R1))
        a('v_add_u32 %s, %s, %s' % (v(V.X3r), sA, v(T)))
        a('v_bfe_u32 %s, %s, 3, 1' % (v(T), v(V.lane)))
        a('v_lshlrev_b32 %s, 15, %s' % (v(T), v(T)))
        a('v_lshl_add_u32 %s, %s, 21, %s' % (v(T), v(V.g), v(T)))
        a('v_and_b32 %s, 0x70, %s' % (v(T+1), v(V.l16)))
        a('v_add_u32 %s, %s, %s' % (v(V.Ooff), v(T), v(T+1)))
    def p3_soff(self):
        a = self.a
        a('s_lshl_b32 %s, %s, 16' % (sO[0], sW))
        a('s_lshl_b32 %s, %s, 12' % (sA, sSB)); a('s_add_u32 %s, %s, %s' % (sO[0], sO[0], sA))
        a('s_lshl_b32 %s, %s, 7' % (sA, sCB)); a('s_add_u32 %s, %s, %s' % (sO[0], sO[0], sA))
        a('s_lshl_b32 %s, %s, 11' % (sA, sP)); a('s_add_u32 %s, %s, %s' % (sO[0], sO[0], sA))
        for r in range(1, 4): a('s_add_u32 %s, %s, 0x%x' % (sO[r], sO[0], r*524288))
    def p3_issue(self):
        a = self.a
        a('s_add_u32 %s, %s, 0x%x' % (sA, sEld, self.ubase(1)))
        for q in range(4):
            a('buffer_load_dwordx4 %s, %s, %s, %s offen offset:%d %s' % (vr(V.L+4*q, 4), self.eld(q, 1), SWS, sA, 256*q, self.o['ld2']))
    def p3_compute(self):
        a = self.a; O, L, D = V.O, V.L, V.DA
        def normal():
            for i in range(4):
                a('s_waitcnt vmcnt(%d)' % (3-i))
                for sel in range(2):
                    for col in range(2):
                        a('v_mov_b32 %s, %s' % (v(O+4*(2*sel+col)+i), v(L+4*i+2*col+sel)))
        def w0():
            for i in range(4):
                ts, eb = i >> 1, i & 1
                a('s_waitcnt vmcnt(%d)' % (3-i))
                for col in range(2):
                    for sg in range(2):
                        a('v_mov_b32 %s, %s' % (v(O+4*(2*ts+col)+2*eb+sg), v(L+4*i+2*col+sg)))
        self.ifelse(sW, 0, w0, normal, True)
        self.stamp()
        for ti in range(4):
            self.mf16(D+4*ti, O+4*ti, V.M2+8*(ti >> 1))
            self.mf16(D+16+4*ti, O+4*ti, V.M2+8*(ti >> 1)+4)
        P = V.DB
        for ti in range(4):
            for pl in range(2):
                for k in range(2):
                    x = D+16*pl+4*ti+2*k
                    self.cvt(P+4*ti+2*pl+k, x, x+1)
            a('ds_write_b128 %s, %s offset:%d' % (v(V.X3w1 if ti >> 1 else V.X3w0), vr(P+4*ti, 4), (ti & 1)*2048))
        a('s_waitcnt lgkmcnt(0)')
        a('s_barrier')
        for t in range(4):
            for ii in range(2):
                a('ds_read_b64_tr_b16 %s, %s offset:%d' % (vr(O+4*t+2*ii, 2), v(V.X3r), ii*256+t*1024))
        for t in range(4):
            a('s_waitcnt lgkmcnt(%d)' % (6-2*t))
            self.mf16(D+4*t, V.F16, O+4*t)
            self.mf16(D+16+4*t, V.F16+4, O+4*t)
        for t in range(3):
            for r in range(4): self.cvt(P+4*r+t, D+16+4*t+r, D+4*t+r)
        for r in range(4):
            self.cvt(P+4*r+3, D+16+12+r, D+12+r)
            a('buffer_store_dwordx4 %s, %s, %s, %s offen %s' % (vr(P+4*r, 4), v(V.Ooff), SOUT, sO[r], self.o['sto']))

    def flush_tail(self):
        t, self.tail = self.tail, []
        for f in t: f()

    def kernel_head(self, name):
        self.a.raw('.globl %s\n.p2align 12\n.p2align 8\n.type %s,@function\n%s:' % (name, name, name))
    def kd(self, name):
        return '''.p2align 6
.amdhsa_kernel %s
  .amdhsa_next_free_vgpr %d
  .amdhsa_next_free_sgpr 102
  .amdhsa_accum_offset %d
  .amdhsa_group_segment_fixed_size 0
  .amdhsa_kernarg_size 72
  .amdhsa_user_sgpr_count 2
  .amdhsa_user_sgpr_kernarg_segment_ptr 1
  .amdhsa_system_sgpr_workgroup_id_x 1
.end_amdhsa_kernel''' % (name, NVGPR, (NVGPR+3)//4*4)

    def build_three(self):
        a = self.a
        names = ['gf_p1_kernel', 'gf_p2_kernel', 'gf_p3_kernel']
        self.kernel_head(names[0]); end = self.label('end')
        self.prologue(end); self.p1_load(); a('s_waitcnt lgkmcnt(0)'); self.p1_issue()
        self.ex_addrs(); self.p1_addrs(); self.gen_F16(); self.gen_M2()
        self.p1_compute(0)
        if self.o['ts']: self.stamp(); a('s_waitcnt vmcnt(0)'); self.stamp(); self.dump_stamps(0)
        a(end+':'); a('s_endpgm'); self.flush_tail()
        self.kernel_head(names[1]); end = self.label('end')
        self.prologue(end); self.ex_addrs(); self.calc_k0(); a('s_waitcnt lgkmcnt(0)')
        self.w_dma(); self.p2_addrs(); self.gen_B(); self.gen_F32TW()
        a('s_waitcnt vmcnt(0)'); self.w_regs(); a('s_waitcnt lgkmcnt(0)')
        self.p2_issue(); self.p2_compute()
        if self.o['ts']: self.stamp(); a('s_waitcnt vmcnt(0)'); self.stamp(); self.dump_stamps(8)
        a(end+':'); a('s_endpgm'); self.flush_tail()
        self.kernel_head(names[2]); end = self.label('end')
        self.prologue(end); self.ex_addrs(); a('s_waitcnt lgkmcnt(0)'); self.p3_issue()
        self.p3_addrs(); self.p3_soff(); self.gen_F16(); self.gen_M3()
        self.p3_compute()
        if self.o['ts']: self.stamp(); a('s_waitcnt vmcnt(0)'); self.stamp(); self.dump_stamps(16)
        a(end+':'); a('s_endpgm'); self.flush_tail()
        launch = ''.join('; @launch kernel=%s grid=(256,1,1) block=(512,1,1) lds=%d\n' % (n, LDS_TOTAL) for n in names)
        return self.finish(launch, names)

    def flag_addrs(self):
        a = self.a
        if self.o['ib']:
            a('s_lshr_b32 %s, %s, 4' % (sB, sT))
            for dst, wp, gr in ((sF, sW, sB), (sE, sB, sW)):
                a('s_lshl3_add_u32 %s, %s, %s' % (sA, sP, wp)); a('s_lshl_b32 %s, %s, 21' % (sA, sA))
                a('s_lshl_b32 %s, %s, 10' % (sC, gr)); a('s_add_u32 %s, %s, %s' % (sA, sA, sC))
                a('s_add_u32 %s, %s, 0x%x' % (dst, sA, WS_FLAG_IB))
            a('s_and_b32 %s, %s, 15' % (sA, sT)); a('s_add_u32 %s, %s, 8' % (sA, sA))
            a('s_lshl_b32 %s, %s, %s' % (sInc, sCh, sA)); a('s_add_u32 %s, %s, 1' % (sInc, sInc))
            a('v_lshl_add_u32 %s, %s, 2, 8' % (v(V.dummy), v(V.g)))
            return
        if self.o['fl'] != '':
            pol = int(self.o['fl'][1]); mode = self.o['fl'][0]
            a('s_lshr_b32 %s, %s, 4' % (sB, sT))
            for dst, wp, gr in ((sF, sW, sB), (sE, sB, sW)):
                a('s_lshl3_add_u32 %s, %s, %s' % (sA, sP, wp))
                if mode == 'x': a('s_xor_b32 %s, %s, %d' % (sC, sP, pol))
                else: a('s_lshr_b32 %s, %s, 2' % (sC, wp)); a('s_xor_b32 %s, %s, %d' % (sC, sC, pol))
                a('s_lshl1_add_u32 %s, %s, %s' % (sA, sA, sC))
                a('s_lshl3_add_u32 %s, %s, %s' % (sA, sA, gr))
                a('s_lshl_b32 %s, %s, 10' % (sA, sA))
                a('s_add_u32 %s, %s, 0x%x' % (dst, sA, WS_FLAG))
            return
        fs = int(self.o['fstride'])
        a('s_lshl_b32 %s, %s, %d' % (sA, sP, fs+6)); a('s_add_u32 %s, %s, 0x%x' % (sA, sA, WS_FLAG))
        a('s_lshr_b32 %s, %s, 4' % (sB, sT))
        a('s_lshl_b32 %s, %s, %d' % (sF, sW, fs+3)); a('s_add_u32 %s, %s, %s' % (sF, sF, sA))
        a('s_lshl_b32 %s, %s, %d' % (sC, sB, fs)); a('s_add_u32 %s, %s, %s' % (sF, sF, sC))
        a('s_lshl_b32 %s, %s, %d' % (sE, sB, fs+3)); a('s_add_u32 %s, %s, %s' % (sE, sE, sA))
        a('s_lshl_b32 %s, %s, %d' % (sC, sW, fs)); a('s_add_u32 %s, %s, %s' % (sE, sE, sC))
    def g1_probe(self):
        a = self.a
        NB = int(self.o['nb'])
        a('s_lshl3_add_u32 %s, s2, %s' % (sCh2, sW))
        def f():
            a('s_mov_b32 %s, 0x%x' % (sA, WS_FLAG2 + (int(self.o['pbase']) << 21)))
            for side in range(2):
                for k in range(NB):
                    r = 62+side*NB+k
                    a('s_mov_b32 s%d, 0x%x' % (r, SENT))
                    a('s_%s s%d, s[24:25], %s offset:0x%x glc' % (self.o['pop'], r, sA, side*0x2000 + (k & 1)*0x1000 + (k >> 1)*0x4000 + k*0x100))
        self.cond(sCh2, 8*8+PW, f)
    def g1_eval(self):
        a = self.a
        NB = int(self.o['nb'])
        def f():
            a('s_waitcnt lgkmcnt(%d)' % (NB+1))
            a('s_nop %s' % self.o['pnop'])
            a('s_mov_b32 %s, 0' % sA); a('s_mov_b32 %s, 0' % sB)
            for k in range(NB):
                a('s_cmp_lg_u32 s%d, 0x%x' % (62+NB+k, SENT)); a('s_addc_u32 %s, %s, 0' % (sB, sB))
            a('s_cmp_le_u32 %s, %s' % (sB, self.o['pthr']))
            a('s_cselect_b32 s94, 2, 3')
            if self.o['ts']:
                a('s_lshl_b32 %s, %s, 4' % (sA, sA)); a('s_lshl_b32 %s, %s, 8' % (sB, sB)); a('s_or_b32 s94, s94, %s' % sA); a('s_or_b32 s94, s94, %s' % sB)
            if self.o['force'] != '': a('s_mov_b32 s94, %d' % (2+int(self.o['force'])))
            a('s_atomic_or s94, s[20:21], 0x80')
        self.cond(sCh2, 8*8+PW, f)
    def g1_pre(self):
        a = self.a
        self.cond(sW, PW, lambda: a('s_load_dword s95, s[20:21], 0x80'))
    def g1_read(self):
        a = self.a
        def f():
            a('buffer_load_dword %s, %s, %s, 0 offen offset:128 sc1' % (v(V.dummy), v(V.EL), SDBG))
        self.cond(sW, PW, f)
    def g1_wait(self):
        a = self.a
        def f():
            lp, ok = self.label('g1'), self.label('g1ok')
            a('s_mov_b32 %s, 0' % sCnt)
            a(lp+':')
            a('s_waitcnt vmcnt(0)')
            a('v_cmp_ne_u32 vcc, 0, %s' % v(V.dummy))
            a('s_cbranch_vccnz %s' % ok)
            a('buffer_load_dword %s, %s, %s, 0 offen offset:128 sc1' % (v(V.dummy), v(V.EL), SDBG))
            a('s_add_u32 %s, %s, 1' % (sCnt, sCnt))
            a('s_cmp_lt_u32 %s, 0x%x' % (sCnt, SPIN_MAX))
            a('s_cbranch_scc1 %s' % lp)
            a('s_waitcnt vmcnt(0)')
            a(ok+':')
            a('ds_write_b32 %s, %s offset:4' % (v(V.dummy2), v(V.dummy)))
        self.cond(sW, PW, f)
    def g1_use(self):
        a = self.a
        a('s_waitcnt lgkmcnt(8)')
        a('v_readfirstlane_b32 %s, %s' % (sCh, v(V.dummy)))
        if self.o['ts']: a('s_mov_b32 s%d, %s' % (sTS+24, sCh))
        a('s_and_b32 %s, %s, 1' % (sCh, sCh)); a('s_lshl_b32 %s, %s, 13' % (sCh, sCh))
        a('s_xor_b32 %s, %s, %s' % (sEst, sEst, sCh))

    def p2_probe_issue(self):
        a = self.a
        def f():
            if self.o['ib3']:
                a('s_lshr_b32 %s, s2, 5' % sA); a('s_bfe_u32 %s, s2, 0x10004' % sCh2)
                a('s_lshl1_add_u32 %s, %s, %s' % (sA, sA, sCh2)); a('s_lshl_b32 %s, %s, 5' % (sA, sA))
                a('s_and_b32 %s, s2, 31' % sB); a('s_add_u32 %s, %s, %s' % (sA, sA, sB))
                a('s_lshl_b32 %s, %s, 8' % (sA, sA)); a('s_add_u32 %s, %s, 0x%x' % (sDP, sA, WS_FLAG2))
            else:
                a('s_bfe_u32 %s, %s, 0x30003' % (sA, sT)); a('s_lshl3_add_u32 %s, %s, %s' % (sA, sP, sA))
                a('s_lshr_b32 %s, %s, 6' % (sCh2, sT))
                a('s_lshl1_add_u32 %s, %s, %s' % (sA, sA, sCh2))
                a('s_and_b32 %s, %s, 7' % (sB, sT)); a('s_lshl3_add_u32 %s, %s, %s' % (sA, sA, sB))
                a('s_lshl_b32 %s, %s, 10' % (sA, sA)); a('s_add_u32 %s, %s, 0x%x' % (sDP, sA, WS_FLAG2))
            a('s_xor_b32 %s, %s, 0x2000' % (sDM, sDP))
            a('s_mov_b64 s[92:93], 0')
            a('s_atomic_swap s92, s[24:25], %s glc' % sDP)
            a('s_atomic_swap s93, s[24:25], %s glc' % sDM)
        self.cond(sW, PW, f)
    def p2_probe_eval(self):
        a = self.a; T = V.T
        def f():
            if self.o['r2']:
                a('s_waitcnt lgkmcnt(0)')
                a('s_atomic_swap s92, s[24:25], %s glc' % sDP)
                a('s_atomic_swap s93, s[24:25], %s glc' % sDM)
            a('s_waitcnt lgkmcnt(1)')
            a('s_nop %s' % self.o['pnop'])
            a('s_getreg_b32 %s, hwreg(HW_REG_IB_STS, 8, 4)' % sA)
            a('s_cmp_eq_u32 %s, 0' % sA)
            a('s_cselect_b32 %s, 1, 0' % sA)
            a('s_xor_b32 %s, %s, %s' % (sCh2, sCh2, sA))
            if self.o['force'] != '': a('s_xor_b32 %s, %s, %s' % (sCh2, sP, self.o['force']))
            if not self.o['ib3']:
                a('v_mov_b32 %s, %d' % (v(T), CNT)); a('v_mov_b32 %s, %s' % (v(T+1), sCh2))
                a('ds_write_b32 %s, %s offset:4' % (v(T), v(T+1)))
            if self.o['ib3']:
                l = self.label('nv')
                a('s_and_b32 %s, s2, 0x8f' % sA); a('s_cmp_lg_u32 %s, 8' % sA); a('s_cbranch_scc1 %s' % l)
                a('s_cmp_eq_u32 s2, 120'); a('s_cbranch_scc1 %s' % l)
                a('s_lshl_b32 s94, %s, 8' % sCh2); a('s_add_u32 s94, s94, 0x1001')
                a('s_atomic_add s94, s[20:21], 0x0')
                a(l+':')
        self.cond(sW, PW, f)
    def vote_read(self):
        a = self.a
        if self.o['novr']: return
        def f():
            a('s_mov_b32 s22, 256'); a('s_mov_b32 s23, 0x20000')
            a('v_mov_b32 %s, 0' % v(V.EL))
            a('buffer_load_dword %s, %s, %s, 0 offen sc1' % (v(V.dummy), v(V.EL), SDBG))
        self.cond(sW, PW, f)
    def vote_use(self):
        a = self.a; T = V.T
        def f():
            if not self.o['novr']:
                a('v_readfirstlane_b32 %s, %s' % (sA, v(V.dummy)))
                a('s_bfe_u32 %s, %s, 0x40008' % (sB, sA)); a('s_bfe_u32 %s, %s, 0x4000c' % (sC, sA))
                a('s_sub_u32 %s, %s, %s' % (sC, sC, sB))
                a('s_xor_b32 %s, %s, 1' % (sA, sP))
                a('s_cmp_ge_u32 %s, 4' % sB); a('s_cselect_b32 %s, %s, %s' % (sCh2, sA, sCh2))
                a('s_cmp_ge_u32 %s, 4' % sC); a('s_cselect_b32 %s, %s, %s' % (sCh2, sP, sCh2))
            a('v_mov_b32 %s, %s' % (v(T+1), sCh2))
            a('ds_write_b32 %s, %s offset:4' % (v(V.dummy2), v(T+1)))
        self.cond(sW, PW, f)
    def zero3(self):
        a = self.a
        a('s_sub_u32 %s, s2, 16' % sZ)
        a('s_and_b32 %s, %s, 0xffffffef' % (sZ, sZ))
        def f():
            a('s_lshr_b32 %s, s2, 5' % sA)
            a('s_lshl1_add_u32 %s, %s, %s' % (sA, sW, sA))
            a('s_lshl_b32 %s, %s, 13' % (sA, sA)); a('s_add_u32 %s, %s, 0x%x' % (sA, sA, WS_FLAG))
            for i in range(0, 8, 2): a('s_mov_b64 s[%d:%d], 0' % (84+i, 85+i))
            for i in range(8):
                a('s_atomic_swap s%d, s[24:25], %s offset:0x%x glc' % (84+i, sA, i << 10))
        self.cond(sZ, 0, f)
    def ready3(self):
        a = self.a
        def f():
            a('s_mov_b32 s94, 1')
            a('s_waitcnt lgkmcnt(0)')
            a('s_atomic_add s94, s[20:21], 0x0')
        self.cond(sZ, 0, f)
    def flag_addrs3(self):
        a = self.a
        a('s_lshr_b32 %s, %s, 4' % (sB, sT))
        for dst, wp, gr in ((sF, sW, sB), (sE, sB, sW)):
            a('s_lshl4_add_u32 %s, %s, %s' % (sC, wp, gr)); a('s_lshl_b32 %s, %s, 10' % (sC, sC))
            a('s_add_u32 %s, %s, 0x%x' % (dst, sC, WS_FLAG))
    def side3(self):
        a = self.a
        a('s_bfe_u32 %s, %s, 0x1000a' % (sCh2, sRv))
        a('s_xor_b32 %s, %s, %s' % (sCh2, sCh2, sP)); a('s_lshl_b32 %s, %s, 13' % (sCh2, sCh2))
        a('s_add_u32 %s, %s, %s' % (sF, sF, sCh2))
    def side3b(self):
        a = self.a
        a('s_add_u32 %s, %s, %s' % (sE, sE, sCh2))
        a('s_xor_b32 %s, %s, %s' % (sZp, sEst, sCh2))
    def side3c(self):
        a = self.a
        a('s_and_b32 %s, %s, 0x2000' % (sA, sZ)); a('s_xor_b32 %s, %s, %s' % (sA, sA, sCh2)); a('s_add_u32 %s, %s, %s' % (sEld, sEld, sA))
    def p2_choice_read(self):
        self.a('ds_read_b32 %s, %s offset:4' % (v(V.dummy), v(V.dummy2)))
    def p2_choice_use(self):
        a = self.a
        a('s_waitcnt lgkmcnt(8)')
        a('v_readfirstlane_b32 %s, %s' % (sCh2, v(V.dummy)))
        a('s_lshl_b32 %s, %s, 13' % (sA, sCh2))
        a('s_xor_b32 %s, %s, %s' % (sZp, sEst, sA))
        if self.o['ts']: a('s_mov_b32 s%d, %s' % (sTS+24, sCh2))
    def ex_addrs_ib2(self):
        a = self.a; T = V.T
        a('s_lshl_b32 %s, %s, 4' % (sB, sW)); a('s_xor_b32 %s, %s, %s' % (sB, sB, sT)); a('s_lshl_b32 %s, %s, 8' % (sB, sB))
        a('v_lshlrev_b32 %s, 4, %s' % (v(T), v(V.n)))
        a('v_lshl_add_u32 %s, %s, 10, %s' % (v(T), v(V.g), v(T)))
        a('v_xor_b32 %s, %s, %s' % (v(T), sB, v(T)))
        a('v_and_b32 %s, 0x6000, %s' % (v(T+1), v(T)))
        a('v_add_u32 %s, %s, %s' % (v(T), v(T), v(T+1)))
        a('v_lshl_add_u32 %s, %s, 18, %s' % (v(V.Est), v(V.g), v(T)))
        a('v_and_b32 %s, 0xdcff, %s' % (v(V.Eld0), v(T)))
        a('s_lshl3_add_u32 %s, %s, %s' % (sEst, sP, sW)); a('s_lshl_b32 %s, %s, 20' % (sEst, sEst))
        a('s_and_b32 %s, %s, 2' % (sA, sW)); a('s_lshl_b32 %s, %s, 12' % (sA, sA)); a('s_add_u32 %s, %s, %s' % (sEst, sEst, sA))
    def misc_ib2(self):
        a = self.a
        a('s_lshl_b32 %s, %s, 7' % (sEld, sP)); a('s_add_u32 %s, %s, %s' % (sEld, sEld, sT)); a('s_lshl_b32 %s, %s, 16' % (sEld, sEld))
        a('s_and_b32 %s, %s, 15' % (sA, sT)); a('s_add_u32 %s, %s, 8' % (sA, sA))
        a('s_lshl_b32 %s, %s, %s' % (sInc, sCh2, sA)); a('s_add_u32 %s, %s, 1' % (sInc, sInc))
        a('v_lshl_add_u32 %s, %s, 2, 8' % (v(V.dummy), v(V.g)))
        a('s_bfe_i32 %s, %s, 0x10005' % (sZ, sT))
    def ld_addrs_ib2(self):
        a = self.a; T = V.T
        a('s_xor_b32 %s, %s, %s' % (sA, sRv, sZ))
        a('v_lshrrev_b32 %s, %s, %s' % (v(T), v(V.dummy), sA))
        for q in range(4):
            a('v_bfe_u32 %s, %s, %d, 1' % (v(T+1), v(T), q))
            a('v_lshl_add_u32 %s, %s, 13, %s' % (v(T+2+q), v(T+1), v(V.Eld0)))
    def major_post(self):
        a = self.a; T = V.T
        def f():
            a('s_bfe_u32 %s, %s, 0x100008' % (sA, sRv)); a('s_bcnt1_i32_b32 %s, %s' % (sA, sA))
            a('s_cmp_gt_u32 %s, 8' % sA); a('s_cselect_b32 %s, 0x2000, 0' % sA)
            a('v_mov_b32 %s, %s' % (v(T), sA))
            a('ds_write_b32 %s, %s offset:8' % (v(V.dummy2), v(T)))
        self.cond(sW, 0, f)
    def major_read(self):
        self.a('ds_read_b32 %s, %s offset:8' % (v(V.dummy), v(V.dummy2)))
    def major_use(self):
        a = self.a
        a('v_readfirstlane_b32 %s, %s' % (sCh2, v(V.dummy)))
        a('s_xor_b32 %s, %s, %s' % (sZp, sEst, sCh2))
    def major_use2(self):
        a = self.a
        a('s_and_b32 %s, %s, 0x2000' % (sA, sZ)); a('s_xor_b32 %s, %s, %s' % (sA, sA, sCh2)); a('s_add_u32 %s, %s, %s' % (sEld, sEld, sA))
        a('s_lshr_b32 %s, %s, 4' % (sB, sT))
        for dst, wp, gr in ((sF, sW, sB), (sE, sB, sW)):
            a('s_lshl3_add_u32 %s, %s, %s' % (sA, sP, wp)); a('s_lshl4_add_u32 %s, %s, %s' % (sA, sA, gr)); a('s_lshl_b32 %s, %s, 10' % (sA, sA))
            a('s_add_u32 %s, %s, %s' % (sA, sA, sCh2)); a('s_add_u32 %s, %s, 0x%x' % (dst, sA, WS_FLAG2))

    def gz_issue(self):
        a = self.a
        a('s_sub_u32 %s, s2, 16' % sZ)
        a('s_and_b32 %s, %s, 0xffffffef' % (sZ, sZ))
        def f():
            a('s_lshr_b32 %s, s2, 5' % sZp)
            a('s_lshl1_add_u32 %s, %s, %s' % (sCh, sW, sZp))
            a('s_lshl_b32 %s, %s, 13' % (sCh, sCh)); a('s_add_u32 %s, %s, 0x%x' % (sCh, sCh, WS_FLAG))
            for i in range(0, 8, 2): a('s_mov_b64 s[%d:%d], 0' % (84+i, 85+i))
            for i in range(8):
                a('s_atomic_swap s%d, s[24:25], %s offset:0x%x glc' % (84+i, sCh, i << 10))
        self.cond(sZ, 0, f)
    def gz_publish(self):
        a = self.a
        def f():
            a('s_waitcnt lgkmcnt(0)')
            a('s_memtime s[84:85]')
            a('s_mov_b32 s88, 0')
            a('s_waitcnt lgkmcnt(0)')
            a('s_atomic_add s88, s[24:25], %s glc' % sCh)
            a('s_waitcnt lgkmcnt(0)')
            a('s_memtime s[86:87]')
            a('s_mul_i32 %s, %s, 13' % (sZp, sZp)); a('s_add_u32 %s, %s, 5' % (sZp, sZp))
            a('s_waitcnt lgkmcnt(0)')
            a('s_sub_u32 s84, s86, s84'); a('s_lshr_b32 s84, s84, 3'); a('s_min_u32 s84, s84, 0x3ff')
            a('s_lshl_b32 s84, s84, %s' % sZp); a('s_add_u32 s84, s84, 1')
            a('s_atomic_add s84, s[20:21], 0x0')
        self.cond(sZ, 0, f)
    def gz_read(self):
        a = self.a
        a('v_mov_b32 %s, 0' % v(V.EL))
        a('buffer_load_dword %s, %s, %s, 0 offen sc1' % (v(V.dummy), v(V.EL), SDBG))
    def gz_check(self):
        a = self.a; l0, l1 = self.label('gz'), self.label('gzok')
        a('s_waitcnt vmcnt(0)')
        a('v_readfirstlane_b32 %s, %s' % (sRv, v(V.dummy)))
        a('s_bitcmp1_b32 %s, 4' % sRv)
        a('s_cbranch_scc1 %s' % l1)
        a('s_mov_b32 %s, 0' % sCnt)
        a(l0+':')
        a('buffer_load_dword %s, %s, %s, 0 offen sc1' % (v(V.dummy), v(V.EL), SDBG))
        a('s_add_u32 %s, %s, 1' % (sCnt, sCnt))
        a('s_cmp_gt_u32 %s, 0x%x' % (sCnt, SPIN_MAX))
        a('s_waitcnt vmcnt(0)')
        a('v_readfirstlane_b32 %s, %s' % (sRv, v(V.dummy)))
        a('s_cbranch_scc1 %s' % l1)
        a('s_bitcmp0_b32 %s, 4' % sRv)
        a('s_cbranch_scc1 %s' % l0)
        a(l1+':')
        a('s_bfe_u32 %s, %s, 0xd0005' % (sA, sRv)); a('s_bfe_u32 %s, %s, 0xd0012' % (sB, sRv))
        a('s_cmp_lt_u32 %s, %s' % (sB, sA))
        a('s_cselect_b32 %s, 0x2000, 0' % sCh)
        if self.o['force'] != '': a('s_mov_b32 %s, %d' % (sCh, int(self.o['force']) << 13))
        a('s_xor_b32 %s, %s, %s' % (sEst, sEst, sCh))
        if self.o['ts']: a('s_mov_b32 s%d, %s' % (sTS+24, sRv))
    def gz_flag_addrs(self):
        a = self.a
        a('s_xor_b32 %s, %s, %s' % (sEld, sEld, sCh))
        a('s_lshr_b32 %s, %s, 4' % (sB, sT))
        if not self.o['optx']:
            for dst, wp, gr in ((sF, sW, sB), (sE, sB, sW)):
                a('s_and_b32 %s, %s, 3' % (sC, wp)); a('s_lshl2_add_u32 %s, %s, %s' % (sC, sP, sC))
                a('s_lshr_b32 %s, %s, 2' % (sA, wp)); a('s_lshl1_add_u32 %s, %s, %s' % (sC, sC, sA))
                a('s_lshl3_add_u32 %s, %s, %s' % (sC, sC, gr)); a('s_lshl_b32 %s, %s, 10' % (sC, sC))
                a('s_xor_b32 %s, %s, %s' % (sC, sC, sCh))
                a('s_add_u32 %s, %s, 0x%x' % (dst, sC, WS_FLAG))
            return
        a('s_lshl_b32 %s, %s, 13' % (sA, sP)); a('s_xor_b32 %s, %s, %s' % (sA, sA, sCh)); a('s_add_u32 %s, %s, 0x%x' % (sA, sA, WS_FLAG))
        for dst, wp, gr in ((sF, sW, sB), (sE, sB, sW)):
            a('s_lshl4_add_u32 %s, %s, %s' % (sC, wp, gr)); a('s_lshl_b32 %s, %s, 10' % (sC, sC))
            a('s_add_u32 %s, %s, %s' % (dst, sC, sA))

    def zero_flags_ib(self):
        a = self.a
        def f():
            a('s_waitcnt lgkmcnt(0)')
            a('s_lshl_b32 %s, %s, 13' % (sA, sCh)); a('s_add_u32 %s, %s, %s' % (sA, sA, sEst)); a('s_add_u32 %s, %s, 0x%x' % (sA, sA, WS_FLAG_IB))
            for i in range(0, 8, 2): a('s_mov_b64 s[%d:%d], 0' % (84+i, 85+i))
            for i in range(8):
                a('s_atomic_swap s%d, s[24:25], %s offset:0x%x glc' % (84+i, sA, i << 10))
        self.cond(sT, 1, f)
    def set_ready_ib(self):
        a = self.a
        def f():
            a('s_add_u32 %s, %s, 8' % (sA, sW)); a('s_lshl_b32 %s, %s, %s' % (sZ, sCh, sA)); a('s_add_u32 %s, %s, 1' % (sZ, sZ))
            a('s_waitcnt lgkmcnt(0)')
            a('s_atomic_add %s, s[20:21], %s' % (sZ, sRd))
        self.cond(sT, 1, f)
    def flag_side(self):
        a = self.a
        a('s_lshr_b32 %s, %s, 8' % (sRv, sRv))
        a('s_lshr_b32 %s, %s, %s' % (sA, sRv, sW)); a('s_and_b32 %s, %s, 1' % (sA, sA)); a('s_lshl_b32 %s, %s, 13' % (sA, sA)); a('s_add_u32 %s, %s, %s' % (sF, sF, sA))
    def flag_side2(self):
        a = self.a
        a('s_lshr_b32 %s, %s, 4' % (sB, sT))
        a('s_lshr_b32 %s, %s, %s' % (sA, sRv, sB)); a('s_and_b32 %s, %s, 1' % (sA, sA)); a('s_lshl_b32 %s, %s, 13' % (sA, sA)); a('s_add_u32 %s, %s, %s' % (sE, sE, sA))
    def zero_flags(self):
        a = self.a
        a('s_sub_u32 %s, s2, 16' % sZ)
        a('s_and_b32 %s, %s, 0xffffffef' % (sZ, sZ))
        def f():
            fs = int(self.o['fstride'])
            a('s_lshr_b32 %s, s2, 5' % sZp)
            a('s_lshl3_add_u32 %s, %s, %s' % (sA, sZp, sW))
            if self.o['fl'] != '':
                pol = int(self.o['fl'][1]); mode = self.o['fl'][0]; fs = 10
                if mode == 'x': a('s_xor_b32 %s, %s, %d' % (sC, sZp, pol))
                else: a('s_lshr_b32 %s, %s, 2' % (sC, sW)); a('s_xor_b32 %s, %s, %d' % (sC, sC, pol))
                a('s_lshl1_add_u32 %s, %s, %s' % (sA, sA, sC))
            a('s_lshl_b32 %s, %s, %d' % (sA, sA, fs+3)); a('s_add_u32 %s, %s, 0x%x' % (sA, sA, WS_FLAG))
            for i in range(0, 8, 2): a('s_mov_b64 s[%d:%d], 0' % (84+i, 85+i))
            for i in range(8):
                a('s_atomic_swap s%d, s[24:25], %s offset:0x%x glc' % (84+i, sA, i << fs))
            a('s_lshl_b32 %s, %s, 7' % (sZp, sZp))
        self.cond(sZ, 0, f)
    def set_ready(self):
        a = self.a
        def f():
            a('s_mov_b32 %s, 1' % sInc)
            a('s_waitcnt lgkmcnt(0)')
            a('s_atomic_add %s, s[20:21], %s' % (sInc, sZp))
        self.cond(sZ, 0, f)
    def ready_issue(self):
        self.a('s_load_dword %s, s[20:21], %s' % (sRv, sRd))
    def ready_check(self):
        a = self.a; l0, l1 = self.label('rdy'), self.label('rdyok')
        def notready():
            if self.o['g1']: a('s_cmp_lt_u32 %s, 16' % sRv)
            elif self.o['ib3']: a('s_and_b32 %s, %s, 0xff' % (sA, sRv)); a('s_cmp_lt_u32 %s, 23' % sA)
            else: a('s_bitcmp0_b32 %s, 3' % sRv)
        notready()
        a('s_cbranch_scc1 %s' % l0)
        a(l1+':')
        def tail():
            lp = self.label('rdyl')
            a(l0+':')
            a('s_mov_b32 %s, 0' % sCnt)
            a('v_mov_b32 %s, 0' % v(V.O+1))
            a(lp+':')
            a('buffer_load_dword %s, %s, %s, %s offen sc1' % (v(V.O), v(V.O+1), SDBG, sRd))
            a('s_add_u32 %s, %s, 1' % (sCnt, sCnt))
            a('s_cmp_gt_u32 %s, 0x%x' % (sCnt, SPIN_MAX))
            a('s_waitcnt vmcnt(0)')
            a('v_readfirstlane_b32 %s, %s' % (sRv, v(V.O)))
            a('s_cbranch_scc1 %s' % l1)
            notready()
            a('s_cbranch_scc1 %s' % lp)
            a('s_branch %s' % l1)
        self.tail.append(tail)
    def set_flag(self, ex):
        a = self.a
        if not ((self.o['ib'] or self.o['ib2']) and ex == 0): a('s_mov_b32 %s, 0x%x' % (sInc, 1 << (24*ex)))
        a('s_atomic_add %s, s[24:25], %s' % (sInc, sF))
    def poll(self, ex, under=None):
        a = self.a; lp, ok = self.label('poll'), self.label('pollok')
        if under:
            a('s_mov_b32 %s, 0' % sRv)
            a('s_atomic_add %s, s[24:25], %s glc' % (sRv, sE))
            under()
            a('s_waitcnt lgkmcnt(0)')
            a('s_bitcmp1_b32 %s, %d' % (sRv, 4+24*ex))
            a('s_cbranch_scc1 %s' % ok)
        a('s_mov_b32 %s, 0' % sCnt)
        a(lp+':')
        a('s_mov_b32 %s, 0' % sRv)
        a('s_atomic_add %s, s[24:25], %s glc' % (sRv, sE))
        a('s_add_u32 %s, %s, 1' % (sCnt, sCnt))
        a('s_cmp_gt_u32 %s, 0x%x' % (sCnt, SPIN_MAX))
        a('s_waitcnt lgkmcnt(0)')
        a('s_cbranch_scc1 %s' % ok)
        if self.o['slp']:
            a('s_bitcmp1_b32 %s, %d' % (sRv, 4+24*ex))
            a('s_cbranch_scc1 %s' % ok)
            a('s_sleep %s' % self.o['slp'])
            a('s_branch %s' % lp)
        else:
            a('s_bitcmp0_b32 %s, %d' % (sRv, 4+24*ex))
            a('s_cbranch_scc1 %s' % lp)
        a(ok+':')
        if self.o['pbar']: a('s_barrier')
    def code_pf(self, name):
        a = self.a
        l = self.label('pc')
        a('s_getpc_b64 s[28:29]')
        a(l+':')
        a('s_sub_u32 s28, s28, %s-%s' % (l, name))
        a('s_subb_u32 s29, s29, 0')
        a('v_lshlrev_b32 %s, 5, v0' % v(V.O+6))
        a('global_load_dword %s, %s, s[28:29]' % (v(V.dummy), v(V.O+6)))

    def code_spf(self, name):
        a = self.a
        l = self.label('pc')
        a('s_getpc_b64 s[28:29]')
        a(l+':')
        a('s_sub_u32 s28, s28, %s-%s' % (l, name))
        a('s_subb_u32 s29, s29, 0')
        a('s_lshr_b32 %s, s2, 4' % sA)
        a('s_lshl3_add_u32 %s, %s, %s' % (sA, sA, sW))
        a('s_lshl_b32 %s, %s, 7' % (sA, sA))
        a('s_load_dword s94, s[28:29], %s' % sA)

    def ifelse(self, reg, val, feq, fne, eq_first=False):
        a = self.a; l0, l1 = self.label('ie'), self.label('iend')
        if eq_first:
            a('s_cmp_lg_u32 %s, %d' % (reg, val)); a('s_cbranch_scc1 %s' % l0)
            feq(); a('s_branch %s' % l1); a(l0+':'); fne()
        else:
            a('s_cmp_eq_u32 %s, %d' % (reg, val)); a('s_cbranch_scc1 %s' % l0)
            fne(); a('s_branch %s' % l1); a(l0+':'); feq()
        a(l1+':')
    def touch(self, rnd):
        a = self.a
        a('s_mov_b64 exec, 0')
        for k in range(7):
            a('s_cmp_eq_u32 %s, %d' % (sW, k)); a('s_cbranch_scc1 stub_%d' % (8*rnd+k))
        a('s_branch stub_%d' % (8*rnd+7))
        a('ret_%d:' % rnd)
        a('s_mov_b64 exec, -1')

    def cond(self, reg, val, f):
        a = self.a; l = self.label('c')
        a('s_cmp_lg_u32 %s, %d' % (reg, val)); a('s_cbranch_scc1 %s' % l)
        f()
        a(l+':')

    def build_one(self):
        a = self.a; o = self.o
        name = NAME + '_kernel'
        self.kernel_head(name); end = self.label('end')
        self.prologue1(end)
        wA, wB = o['wA'], o['wB']
        def wat(pos, rows=(0, 1, 2, 3)):
            f = lambda: [self.w_dma1(i) for i in rows]
            if wA == pos and wB == pos: f()
            elif wA == pos: self.cond(sP, 0, f)
            elif wB == pos: self.cond(sP, 1, f)
        self.wat = wat
        bd = int(o['bdelay'])
        if o['touch'] == 'pre': self.touch(0)
        self.mark('touched')
        a('s_waitcnt lgkmcnt(0)')
        self.mark('karg')
        if o['wsoff']:
            a('s_add_u32 s24, s24, 0x%x' % (int(o['wsoff']) << 20)); a('s_addc_u32 s25, s25, 0')
        gz = o['gz']
        g1 = o['g1']
        if g1: self.g1_probe(); self.g1_pre(); self.zero3(); a('s_mov_b32 %s, 0' % sRd)
        elif gz: self.gz_issue()
        elif o['ib']: self.probe_issue()
        elif o['ib3']: self.p2_probe_issue(); self.zero3(); a('s_mov_b32 %s, 0' % sRd)
        elif o['ib2']: self.p2_probe_issue(); self.zero_flags()
        else: self.zero_flags()
        misc = lambda: (self.srds(), self.calc_k0(), self.w_prep(), 0 if g1 else self.gz_flag_addrs() if gz else self.flag_addrs3() if o['ib3'] else self.flag_addrs(), self.misc_ib2() if o['ib2'] else 0)
        if wB == 'first':
            def fb():
                misc(); self.w_dma()
                if bd == 0: self.p1_issue()
            self.ifelse(sP, 1, fb, self.p1_issue)
        elif bd: self.cond(sP, 0, self.p1_issue)
        else: self.p1_issue()
        if o['ib']: self.probe_eval(); self.zero_flags_ib()
        if g1: self.spec_early(); self.g1_eval(); a('s_mov_b32 s22, 256'); a('s_mov_b32 s23, 0x20000'); a('v_mov_b32 %s, 0' % v(V.EL))
        if gz: self.gz_publish(); a('s_mov_b32 s22, 256'); a('s_mov_b32 s23, 0x20000')
        if o['touch'] == 'post': self.touch(0)
        if o['touch']: self.cond(sT, 0, lambda: self.touch(1))
        if o['ib2']:
            if o['r2']: self.p1_addrs(); self.gen_F16(); self.p2_probe_eval(); self.coop_init()
            else: self.p2_probe_eval(); self.p1_addrs(); self.gen_F16(); self.coop_init()
        else: self.p1_addrs(); self.gen_F16(); self.coop_init()
        if bd == 1: self.cond(sP, 1, self.p1_issue)
        self.gen_M2()
        if o['ib']: self.ex_addrs_ib(); self.set_ready_ib()
        elif gz: self.ex_addrs()
        elif g1: self.ex_addrs(); self.ready3()
        elif o['ib3']: self.ex_addrs_ib2(); self.ready3()
        elif o['ib2']: self.ex_addrs_ib2(); self.set_ready()
        else: self.ex_addrs(); self.set_ready()
        X = [misc, self.coop_gen, lambda: self.gen_B(True, False), lambda: (self.p2_addrs(), self.w_addr())]
        nearly = max(0, bd-2)
        def early():
            for f in X[(1 if wB == 'first' else 0):nearly]: f()
            self.p1_issue()
        if bd >= 2: self.cond(sP, 1, early)
        self.mark('w1')
        def Xat(k):
            if k < nearly or (k == 0 and wB == 'first'): self.cond(sP, 0, X[k])
            else: X[k]()
        if gz: self.p1_compute(0, self.gz_read, None, lambda: (self.gz_check(), self.spec_early()))
        elif g1:
            self.p1_compute(0, lambda: self.g1_read(), None, self.g1_use, self.p2_choice_read, self.g1_wait)
        elif o['ib3']:
            self.vote_read()
            self.p1_compute(0, lambda: (self.vote_use(), self.spec_early()), None, self.p2_choice_use, self.p2_choice_read)
        elif o['ib2']: self.p1_compute(0, self.spec_early, None, self.p2_choice_use, self.p2_choice_read)
        else:
            def h1():
                if o['tlb1']:
                    a('s_add_u32 %s, %s, 0x%x' % (sA, sEst, self.ubase(0)))
                    a('v_and_b32 %s, 3, %s' % (v(V.T), v(V.lane)))
                    a('v_lshl_add_u32 %s, %s, 15, %s' % (v(V.T), v(V.T), v(V.Est)))
                    a('buffer_load_dword %s, %s, %s, %s offen' % (v(V.dummy), v(V.T), SWS, sA))
            if o['tlb1']: h1()
            self.p1_compute(1 if o['tlb1'] else 0, self.spec_early)
        self.stamp()
        if not gz: self.ready_issue()
        Xat(0)
        if g1: self.gz_flag_addrs()
        n = 0
        Xat(1)
        self.coop_post()
        self.mark('w2a')
        if 'da' in o: a('s_waitcnt vmcnt(0)'); self.mark('vm1')
        a('s_waitcnt vmcnt(%d) lgkmcnt(0)' % n)
        self.stamp()
        if not gz: self.ready_check()
        if o['ib']: self.flag_side()
        if o['ib3']: self.side3()
        self.mark('rdy')
        self.set_flag(0)
        if o['ib']: self.flag_side2()
        if o['ib3']: self.side3b()
        def under1():
            self.w_sload()
            if o['tlb2']:
                a('s_add_u32 %s, %s, 0x%x' % (sA, sEst, self.ubase(1)))
                a('v_and_b32 %s, 3, %s' % (v(V.T), v(V.lane)))
                a('v_lshl_add_u32 %s, %s, 15, %s' % (v(V.T), v(V.T), v(V.Est)))
                a('buffer_load_dword %s, %s, %s, %s offen' % (v(V.dummy), v(V.T), SWS, sA))
            Xat(2); self.B_dup()
            Xat(3)
            self.w_special()
        self.poll(0, under1)
        self.stamp()
        if self.o.get('fine'):
            a('s_memrealtime s[%d:%d]' % (sTS+2*self.nts, sTS+2*self.nts+1)); self.nts += 1
            self.fstamp()
        if o['ib']: self.ld_addrs_ib()
        if o.get('da') == 'votes':
            a('s_bfe_u32 s60, %s, 0x100008' % sRv); a('s_bcnt1_i32_b32 s60, s60')
            a('s_cmp_eq_u32 %s, 0' % sCh2); a('s_sub_u32 s58, 16, s60'); a('s_cmp_eq_u32 %s, 0' % sCh2); a('s_cselect_b32 s60, s60, s58')
            if 'dw' in o: a('s_cmp_eq_u32 %s, %s' % (sW, o['dw'])); a('s_cselect_b32 s60, s60, 0')
            a('s_mul_i32 s60, s60, 25'); a('s_mov_b32 s58, 0')
        if o['ib2']: self.ld_addrs_ib2()
        self.p2_issue()
        if o['ib3']: self.side3c()
        elif o['ib2']: self.major_post()
        self.coop_wait(); self.coop_read()
        self.p2_addrs2()
        a('s_waitcnt vmcnt(4)')
        self.w_edge()
        self.p2_compute(True)
        self.stamp()
        if o['ib2'] and not o['ib3']: self.major_use2()
        self.gen_M3()
        self.mark('w3a')
        a('s_waitcnt vmcnt(0)')
        self.stamp()
        self.set_flag(1)
        self.poll(1, self.p3_addrs)
        self.stamp()
        self.p3_issue()
        self.p3_soff()
        self.p3_compute()
        if 'da' in o:
            self.stamp(); a('s_waitcnt vmcnt(0)'); self.stamp()
            lp = self.label('dg')
            a('s_waitcnt lgkmcnt(0)')
            a('s_sub_u32 %s, s60, s58' % sA)
            a('s_lshl_b32 %s, %s, 2' % (sA, sA))
            if 'dp' in o:
                a('s_cmp_eq_u32 %s, %s' % (sP, o['dp'])); a('s_cselect_b32 %s, %s, 0' % (sA, sA))
            a('s_add_u32 %s, %s, 3000' % (sA, sA))
            a(lp+':')
            a('s_memrealtime s[28:29]')
            a('s_waitcnt lgkmcnt(0)')
            a('s_sub_u32 %s, s28, s56' % sB)
            a('s_cmp_lt_u32 %s, %s' % (sB, sA))
            a('s_cbranch_scc1 %s' % lp)
        if o['ts']:
            self.stamp(); a('s_waitcnt vmcnt(0)'); self.stamp()
            if 'diag' in o:
                i = int(o['diag']); lp = self.label('dg')
                a('s_waitcnt lgkmcnt(0)')
                if 'xw' in o:
                    a('s_getreg_b32 %s, hwreg(HW_REG_XCC_ID, 0, 4)' % sA)
                    a('s_sub_u32 %s, %s, s2' % (sA, sA)); a('s_and_b32 %s, %s, 7' % (sA, sA)); a('s_mul_i32 %s, %s, 400' % (sA, sA))
                    if int(o['xw']) >= 0:
                        a('s_cmp_eq_u32 s2, %s' % o['xw']); a('s_cselect_b32 %s, %s, 0' % (sA, sA))
                else:
                    a('s_sub_u32 %s, s%d, s%d' % (sA, sTS+2*i, sTS+2*int(o.get('dj', 0))))
                    a('s_lshl_b32 %s, %s, 2' % (sA, sA))
                    if 'dp' in o:
                        a('s_cmp_eq_u32 %s, %s' % (sP, o['dp'])); a('s_cselect_b32 %s, %s, 0' % (sA, sA))
                a('s_add_u32 %s, %s, 3000' % (sA, sA))
                a(lp+':')
                a('s_memrealtime s[28:29]')
                a('s_waitcnt lgkmcnt(0)')
                a('s_sub_u32 %s, s28, s%d' % (sB, sTS))
                a('s_cmp_lt_u32 %s, %s' % (sB, sA))
                a('s_cbranch_scc1 %s' % lp)
            else:
                if o['ib'] or o['gz'] or o['ib2'] or o['g1']: self.nts += 1
                self.dump_stamps(0)
        a(end+':'); a('s_endpgm'); self.flush_tail()
        if o['touch']: self.insert_stubs(name)
        a.raw('.fill (%s+16384-.)/4, 4, 0xbf810000' % name)
        launch = '; @launch grid=(256,1,1) block=(512,1,1) lds=%d\n' % LDS_TOTAL
        return self.finish(launch, [name])

    def insert_stubs(self, name):
        import subprocess, re
        from asmlib import Ins
        a = self.a
        txt = '.amdgcn_target "amdgcn-amd-amdhsa--gfx950"\n.text\n' + a.text() + ''.join('stub_%d:\n' % k for k in range(16)) + 's_endpgm\nspec_tab:\n'
        open('pass1.s', 'w').write(txt)
        subprocess.check_call(['clang', '-x', 'assembler', '-target', 'amdgcn-amd-amdhsa', '-mcpu=gfx950', '-c', 'pass1.s', '-o', 'pass1.o'])
        dis = subprocess.check_output(['llvm-objdump', '-d', '--mcpu=gfx950', 'pass1.o']).decode()
        addrs = [int(m.group(1), 16) for m in re.finditer(r'// ([0-9A-F]{12}):', dis)]
        real = [i for i, x in enumerate(a.ins) if x.kind != 'none']
        assert len(addrs) == len(real) + 1, (len(addrs), len(real))
        size = {real[k]: addrs[k+1] - addrs[k] for k in range(len(real))}
        pos = ENTRY_OFF; nxt = ENTRY_OFF + 1024 - 256
        nxt = (nxt + 1023)//1024*1024
        out = []; k = 0; prev = None; ez = False
        for i, x in enumerate(a.ins):
            if i in size:
                glued = prev is not None and (prev.op == 's_getpc_b64' or 'rel32' in x.text)
                if prev is not None and prev.text.strip() == 's_mov_b64 exec, 0': ez = True
                if prev is not None and prev.text.strip() == 's_mov_b64 exec, -1': ez = False
                glued = glued or ez
                if pos >= nxt and k < 16 and not glued:
                    out.append(Ins('stub_%d:' % k)); out.append(Ins('s_cbranch_execz ret_%d' % (k >> 3)))
                    pos += 4; k += 1; nxt += 1024
                pos += size[i]; prev = x
            out.append(x)
        self.code_end = pos
        while k < 16:
            out.append(Ins('stub_%d:' % k)); out.append(Ins('s_branch ret_%d' % (k >> 3))); k += 1
        a.ins = out

    def finish(self, launch, names):
        hdr = '; GFNet spectral filter (two heads): 2-D FFT via bf16 MFMA DFT stages. Generated by dev/gen.py\n' + launch
        s = hdr + '.amdgcn_target "amdgcn-amd-amdhsa--gfx950"\n.text\n' + self.a.text()
        s += '.section .rodata,"a"\n' + '\n'.join(self.kd(n) for n in names) + '\n' + self.spec_table() + '\n'
        return s

if __name__ == '__main__':
    mode = sys.argv[1]; out = sys.argv[2]
    opt = {}
    for kv in sys.argv[3:]:
        k, x = kv.split('=')
        opt[k] = {'True': True, 'False': False}.get(x, x.replace('+', ' '))
    g = Gen(mode, **opt)
    s = g.build_three() if mode == 'three' else g.build_one()
    assert g.a.verify() == 0
    open(out, 'w').write(s)
    print('vgprs', NVGPR, 'lds', LDS_TOTAL, 'nops', g.a.nops, 'lines', len(g.a.ins))
```

```python
import sys, struct, math
import numpy as np
from asmlib import Asm

NAME = 'concat_heads__spectral_gfnet__spectral_gfnet__prompt'

def f2u(x): return struct.unpack('<I', struct.pack('<f', x))[0]
def lit(x): return '0x%08x' % f2u(x)
def bf16bits(x):
    u = f2u(float(x)); return ((u + 0x7FFF + ((u >> 16) & 1)) >> 16) & 0xFFFF
def sigma(m): return (m & 1) | ((m >> 1) & 1) << 3 | ((m >> 2) & 1) << 1 | ((m >> 3) & 1) << 2 | (m & 16)

S11 = 2.0**-11
SPIN_MAX = 0x4000
ENTRY_OFF = 0x300
SENT = 0x13572468
WS_FLAG_IB = 32 << 20
WS_FLAG2 = 33 << 20
PW = 7
sCh2 = 's100'
R0 = 0
R1 = 33024
WL = 66048
SCR = WL + 8*4*1056
SCR_B = SCR + 36*256
TABL = SCR_B + 8192
CNT = TABL + 16384
LDS_TOTAL = CNT + 64
WS_U1 = 0
WS_U2 = 8 << 20
WS_FLAG = 32 << 20
WS_TS = 72 << 20
WS_SIZE = 80 << 20

class V: pass
_n = [0]
def alloc(n, align=1):
    b = (_n[0] + align - 1)//align*align
    _n[0] = b + n
    return b
V.tid = alloc(1); V.lane = alloc(1)
for nm in 'g n Xoff Est X0w X0r0 X0r1 X1w X1r X2w X2r WP WM l16 dummy dummy2'.split(): setattr(V, nm, alloc(1))
V.Ooff, V.X3w0, V.X3w1, V.X3r = V.Xoff, V.X0w, V.X0r0, V.X0r1
V.T = alloc(10, 1)
V.EL = alloc(4); V.Eld = V.EL+3; V.Eld0 = V.EL+3
V.O = alloc(16, 4)
V.DA = alloc(32, 4)
V.DB = alloc(32, 4)
V.L = V.DB
V.F16 = alloc(8, 4)
V.M2 = alloc(16, 4)
V.F32 = alloc(32, 4)
V.TW = alloc(32, 4)
V.W = alloc(32, 4)
V.B = alloc(12, 4)
V.Bp = alloc(8, 4)
V.WF = alloc(4)
NVGPR = _n[0]
assert NVGPR <= 256, NVGPR
def v(i): return 'v%d' % i
def vr(i, n): return 'v[%d:%d]' % (i, i+n-1)

SX, SWR, SWI, SOUT, SDBG, SWS = 's[4:7]', 's[8:11]', 's[12:15]', 's[16:19]', 's[20:23]', 's[24:27]'
sP, sT, sW, sSB, sCB, sK0 = 's30', 's31', 's32', 's33', 's34', 's35'
sKP, sKM = 's36', 's37'
sA, sB, sC, sD, sE, sF = 's40', 's41', 's42', 's43', 's44', 's45'
sEst, sEld, sCnt, sSpec = 's46', 's47', 's48', 's49'
sO = ['s52', 's53', 's54', 's55']
sRd, sRv, sInc, sWL = 's38', 's39', 's50', 's51'
ZT = 16
sDP, sDM, sZ, sZp, sCh = 's96', 's97', 's98', 's99', 's95'
sTS = 56

class Gen:
    def __init__(self, mode='one', **opt):
        self.mode = mode
        self.o = dict(ldx='', ldw='', st1='sc1', st2='sc1', sto='sc1', ld1='sc1', ld2='sc1', ts=False, stagger=True, pf=False, spf=False, touch='pre', fst='sc1', fld='sc1', slp='', fsh='', pbar=False, shear=True, prio=True, wA='postX1', wB='postX1', bdelay='4', optx=False, numa='', fl='', ib=False, wsoff='', tlb1=False, tlb2=False, ib2=False, g1=False, nb='6', pthr='2', pop='load_dword', pbase='0', r2=False, novr=False, ib3=False, pnop='15', gz=False, force='', skew=True, fstride=12)
        self.o.update(opt)
        self.a = Asm()
        self.lab = 0
        self.nts = 0
        self.tail = []

    def tstride(self): return 65536 if (self.o['numa'] != '' or self.o['ib'] or self.o['ib2']) else 32768
    def ubase(self, ex): return (ex << 24) if self.o['ib2'] else (ex << 20) if self.o['ib'] else (WS_U2 if ex else WS_U1)
    def eld(self, q, ex=0): return v(V.T+2+q) if (self.o['ib2'] and ex == 0) else v(V.EL+q) if self.o['ib'] else v(V.Eld)
    def est(self): return sZp if self.o['ib2'] else sEst
    def label(self, p='L'):
        self.lab += 1
        return '%s_%d' % (p, self.lab)

    def stamp(self):
        if 'da' in self.o:
            self.sid = getattr(self, 'sid', -1) + 1
            self.mark('s%d' % self.sid); return
        if not self.o['ts'] or self.o.get('fine'): return
        self.a('s_memrealtime s[%d:%d]' % (sTS+2*self.nts, sTS+2*self.nts+1))
        self.nts += 1

    def mark(self, nm):
        for key, reg in (('da', 58), ('db', 60)):
            if self.o.get(key) == nm: self.a('s_memrealtime s[%d:%d]' % (reg, reg+1))
    def fstamp(self):
        if not self.o.get('fine'): return
        self.a('s_memtime s[%d:%d]' % (sTS+2*self.nts, sTS+2*self.nts+1))
        self.nts += 1

    def dump_stamps(self, slot0=0):
        if not self.o['ts']: return
        a = self.a
        a('s_waitcnt lgkmcnt(0)')
        a('s_lshl_b32 %s, s2, 3' % sA); a('s_add_u32 %s, %s, %s' % (sA, sA, sW)); a('s_lshl_b32 %s, %s, 7' % (sA, sA))
        a('s_add_u32 %s, %s, 0x%x' % (sA, sA, WS_TS + slot0*4))
        a('s_mov_b64 exec, 1')
        a('v_mov_b32 %s, 0' % v(V.T+1))
        for i in range(self.nts):
            a('v_mov_b32 %s, s%d' % (v(V.T), sTS+2*i))
            a('buffer_store_dword %s, %s, %s, %s offen offset:%d' % (v(V.T), v(V.T+1), SWS, sA, 4*i))
            a('s_nop 1')
        a('s_mov_b64 exec, -1')
        self.nts = 0

    def prologue(self, end):
        a = self.a
        a('s_cmp_ge_u32 s2, 0x100')
        a('s_cbranch_scc1 %s' % end)
        self.stamp()
        a('s_bfe_u32 %s, s2, 0x10003' % sP)
        a('s_mul_i32 s3, %s, 24' % sP)
        a('s_add_u32 s28, s0, s3')
        a('s_addc_u32 s29, s1, 0')
        a('s_load_dwordx2 s[4:5], s[28:29], 0x0')
        a('s_load_dwordx2 s[8:9], s[28:29], 0x8')
        a('s_load_dwordx2 s[12:13], s[28:29], 0x10')
        a('s_load_dwordx2 s[16:17], s[0:1], 0x30')
        a('s_load_dwordx2 s[20:21], s[0:1], 0x38')
        a('s_load_dwordx2 s[24:25], s[0:1], 0x40')
        a('v_lshrrev_b32 %s, 6, v0' % v(V.T))
        a('v_and_b32 %s, 63, v0' % v(V.lane))
        a('v_readfirstlane_b32 %s, %s' % (sW, v(V.T)))
        a('s_and_b32 %s, s2, 7' % sA)
        a('s_xor_b32 %s, %s, 2' % (sA, sA))
        a('s_lshl_b32 %s, %s, 4' % (sT, sA))
        a('s_lshr_b32 %s, s2, 4' % sB)
        a('s_or_b32 %s, %s, %s' % (sT, sT, sB))
        a('s_lshl_b32 %s, %s, 1' % (sCB, sA))
        a('s_bfe_u32 %s, %s, 0x10001' % (sC, sB))
        a('s_or_b32 %s, %s, %s' % (sCB, sCB, sC))
        a('s_bfe_u32 %s, %s, 0x20002' % (sSB, sB))
        a('s_lshl_b32 %s, %s, 1' % (sSB, sSB))
        a('s_and_b32 %s, %s, 1' % (sC, sB))
        a('s_or_b32 %s, %s, %s' % (sSB, sSB, sC))
        a('s_mov_b32 s6, 0x400000'); a('s_mov_b32 s7, 0x20000')
        a('s_mov_b32 s10, 2101248'); a('s_mov_b32 s11, 0x20000')
        a('s_mov_b32 s14, 2101248'); a('s_mov_b32 s15, 0x20000')
        a('s_mov_b32 s18, 0x800000'); a('s_mov_b32 s19, 0x20000')
        a('s_mov_b32 s22, 256'); a('s_mov_b32 s23, 0x20000')
        a('s_mov_b32 s26, 0x%x' % WS_SIZE); a('s_mov_b32 s27, 0x20000')
        a('v_lshrrev_b32 %s, 4, %s' % (v(V.g), v(V.lane)))
        a('v_and_b32 %s, 15, %s' % (v(V.n), v(V.lane)))
        a('v_lshlrev_b32 %s, 4, %s' % (v(V.l16), v(V.lane)))

    def prologue1(self, end):
        a = self.a; T = V.T
        a('s_cmp_ge_u32 s2, 0x100')
        a('s_cbranch_scc1 %s' % end)
        if 'da' in self.o: a('s_memrealtime s[56:57]'); self.mark('start')
        a('s_bfe_u32 %s, s2, 0x%x' % (sP, 0x10002 if self.o['optx'] else 0x10003))
        a('s_mul_i32 s3, %s, 24' % sP)
        a('s_load_dwordx2 s[4:5], s[0:1], s3')
        a('s_load_dwordx2 s[24:25], s[0:1], 0x40')
        a('s_load_dwordx2 s[8:9], s[0:1], s3 offset:8')
        a('s_load_dwordx2 s[12:13], s[0:1], s3 offset:16')
        a('s_load_dwordx2 s[16:17], s[0:1], 0x30')
        a('s_load_dwordx2 s[20:21], s[0:1], 0x38')
        self.stamp()
        a('v_lshrrev_b32 %s, 6, v0' % v(T))
        a('v_and_b32 %s, 63, v0' % v(V.lane))
        a('v_readfirstlane_b32 %s, %s' % (sW, v(T)))
        if self.o['optx']:
            a('s_and_b32 %s, s2, 3' % sA)
            a('s_bfe_u32 %s, s2, 0x10003' % sB)
            a('s_lshl1_add_u32 %s, %s, %s' % (sA, sA, sB))
        else: a('s_and_b32 %s, s2, 7' % sA)
        a('s_lshr_b32 %s, s2, 4' % sB)
        a('s_lshl4_add_u32 %s, %s, %s' % (sT, sA, sB))
        a('s_bfe_u32 %s, %s, 0x10001' % (sC, sB))
        a('s_lshl1_add_u32 %s, %s, %s' % (sCB, sA, sC))
        a('s_lshr_b32 %s, %s, 2' % (sSB, sB))
        a('s_and_b32 %s, %s, 1' % (sC, sB))
        a('s_lshl1_add_u32 %s, %s, %s' % (sSB, sSB, sC))
        a('s_mov_b32 s6, 0x400000'); a('s_mov_b32 s7, 0x20000')
        a('v_lshrrev_b32 %s, 4, %s' % (v(V.g), v(V.lane)))
        a('v_lshlrev_b32 %s, 4, %s' % (v(V.l16), v(V.lane)))
        a('v_and_b32 %s, 8, v0' % v(T))
        a('v_lshlrev_b32 %s, 11, %s' % (v(T), v(T)))
        a('v_lshl_add_u32 %s, %s, 20, %s' % (v(T), v(V.g), v(T)))
        a('v_and_b32 %s, 0x70, %s' % (v(T+1), v(V.l16)))
        a('v_add_u32 %s, %s, %s' % (v(V.Xoff), v(T), v(T+1)))
        a('s_lshl4_add_u32 %s, %s, %s' % (sA, sW, sSB))
        a('s_lshl4_add_u32 %s, %s, %s' % (sA, sA, sCB))
        a('s_lshl_b32 %s, %s, 7' % (sO[0], sA))
        for r in range(1, 4): a('s_add_u32 %s, %s, 0x%x' % (sO[r], sO[0], r*262144))
        a('v_and_b32 %s, 15, %s' % (v(V.n), v(V.lane)))
        a('s_mov_b32 s26, 0x%x' % WS_SIZE); a('s_mov_b32 s27, 0x20000')
        a('s_lshl_b32 %s, %s, 7' % (sRd, sP))
    def srds(self):
        a = self.a
        a('s_mov_b32 s10, 2101248'); a('s_mov_b32 s11, 0x20000')
        a('s_mov_b32 s14, 2101248'); a('s_mov_b32 s15, 0x20000')
        a('s_mov_b32 s18, 0x800000'); a('s_mov_b32 s19, 0x20000')
        a('s_mov_b32 s22, 256'); a('s_mov_b32 s23, 0x20000')

    def probe_issue(self):
        a = self.a
        a('s_lshl3_add_u32 %s, %s, %s' % (sEst, sP, sW)); a('s_lshl_b32 %s, %s, 21' % (sEst, sEst))
        a('s_and_b32 %s, %s, 0x60' % (sA, sT)); a('s_add_u32 %s, %s, %s' % (sA, sA, sT)); a('s_lshl_b32 %s, %s, 8' % (sA, sA))
        a('s_add_u32 %s, %s, %s' % (sA, sA, sEst))
        for i in range(8): a('s_mov_b32 s%d, 0x%x' % (84+i, SENT))
        for k, side in ((0, 0), (0, 1), (1, 1), (1, 0), (2, 1), (2, 0), (3, 0), (3, 1)):
            a('s_load_dword s%d, s[24:25], %s offset:0x%x glc' % (84+4*side+k, sA, k*65536+side*8192))
    def probe_eval(self):
        a = self.a
        a('s_mov_b32 %s, 0' % sA); a('s_mov_b32 %s, 0' % sB)
        a('s_waitcnt lgkmcnt(4)')
        for k in range(4):
            a('s_cmp_lg_u32 s%d, 0x%x' % (84+k, SENT)); a('s_addc_u32 %s, %s, 0' % (sA, sA))
            a('s_cmp_lg_u32 s%d, 0x%x' % (88+k, SENT)); a('s_addc_u32 %s, %s, 0' % (sB, sB))
        a('s_cmp_gt_u32 %s, %s' % (sB, sA))
        a('s_cselect_b32 %s, 1, 0' % sCh)
        if self.o['force'] != '':
            a('s_and_b32 %s, %s, 1' % (sC, sW)); a('s_xor_b32 %s, %s, %s' % (sC, sC, sP)); a('s_xor_b32 %s, %s, %s' % (sCh, sC, self.o['force']))
        if self.o['ts']:
            a('s_lshl4_add_u32 s%d, %s, %s' % (sTS+24, sA, sB))
    def ex_addrs_ib(self):
        a = self.a; T = V.T
        a('s_lshl_b32 %s, %s, 4' % (sB, sW)); a('s_xor_b32 %s, %s, %s' % (sB, sB, sT)); a('s_lshl_b32 %s, %s, 8' % (sB, sB))
        a('v_lshlrev_b32 %s, 4, %s' % (v(T), v(V.n)))
        a('v_lshl_add_u32 %s, %s, 10, %s' % (v(T), v(V.g), v(T)))
        a('v_xor_b32 %s, %s, %s' % (v(T), sB, v(T)))
        a('v_and_b32 %s, 0x6000, %s' % (v(T+1), v(T)))
        a('v_add_u32 %s, %s, %s' % (v(T), v(T), v(T+1)))
        a('v_lshl_add_u32 %s, %s, 18, %s' % (v(V.Est), v(V.g), v(T)))
        a('v_and_b32 %s, 0xdcff, %s' % (v(V.Eld), v(T)))
        a('s_lshl_b32 %s, %s, 13' % (sA, sCh)); a('s_add_u32 %s, %s, %s' % (sEst, sEst, sA))
        a('s_lshr_b32 %s, %s, 4' % (sA, sT)); a('s_lshl3_add_u32 %s, %s, %s' % (sA, sP, sA)); a('s_lshl_b32 %s, %s, 21' % (sA, sA))
        a('s_and_b32 %s, %s, 15' % (sEld, sT)); a('s_lshl_b32 %s, %s, 16' % (sEld, sEld)); a('s_add_u32 %s, %s, %s' % (sEld, sEld, sA))
    def ld_addrs_ib(self):
        a = self.a; T = V.T
        a('v_lshrrev_b32 %s, %s, %s' % (v(T), v(V.dummy), sRv))
        for q in range(4):
            a('v_bfe_u32 %s, %s, %d, 1' % (v(T+1), v(T), q))
            a('v_lshl_add_u32 %s, %s, 13, %s' % (v(V.EL+q), v(T+1), v(V.Eld)))

    def ex_addrs(self):
        a = self.a
        if self.o['skew']:
            T = V.T
            a('s_lshl_b32 %s, %s, 4' % (sB, sW)); a('s_xor_b32 %s, %s, %s' % (sB, sB, sT)); a('s_lshl_b32 %s, %s, 8' % (sB, sB))
            a('v_lshlrev_b32 %s, 4, %s' % (v(T), v(V.n)))
            a('v_lshl_add_u32 %s, %s, 10, %s' % (v(T), v(V.g), v(T)))
            a('v_xor_b32 %s, %s, %s' % (v(T), sB, v(T)))
            if self.o['numa'] != '':
                pol = int(self.o['numa'][1]); mode = self.o['numa'][0]
                if mode == 'p':
                    a('v_and_b32 %s, 0x6000, %s' % (v(T+1), v(T)))
                    a('v_add_u32 %s, %s, %s' % (v(T), v(T), v(T+1)))
                    a('v_lshl_add_u32 %s, %s, 18, %s' % (v(V.Est), v(V.g), v(T)))
                    a('v_and_b32 %s, 0xdcff, %s' % (v(V.Eld), v(T)))
                    a('s_lshr_b32 %s, %s, 1' % (sA, sW)); a('s_lshr_b32 %s, %s, 6' % (sD, sT)); a('s_xor_b32 %s, %s, %s' % (sA, sA, sD))
                    a('s_lshr_b32 %s, %s, 5' % (sC, sT)); a('s_lshr_b32 %s, %s, 2' % (sD, sW)); a('s_xor_b32 %s, %s, %s' % (sC, sC, sD))
                    if pol: a('s_xor_b32 %s, %s, 1' % (sA, sA)); a('s_xor_b32 %s, %s, 1' % (sC, sC))
                    a('s_and_b32 %s, %s, 1' % (sA, sA)); a('s_and_b32 %s, %s, 1' % (sC, sC))
                    a('s_lshl_b32 %s, %s, 13' % (sA, sA)); a('s_lshl_b32 %s, %s, 13' % (sC, sC))
                    a('s_lshl_b32 %s, %s, 25' % (sD, sP)); a('s_add_u32 %s, %s, %s' % (sA, sA, sD)); a('s_add_u32 %s, %s, %s' % (sC, sC, sD))
                    a('s_lshl_b32 %s, %s, 20' % (sEst, sW)); a('s_add_u32 %s, %s, %s' % (sEst, sEst, sA))
                    a('s_lshl_b32 %s, %s, 16' % (sEld, sT)); a('s_add_u32 %s, %s, %s' % (sEld, sEld, sC))
                    return
                a('v_and_b32 %s, 0x6000, %s' % (v(T+1), v(T)))
                a('v_add_u32 %s, %s, %s' % (v(T), v(T), v(T+1)))
                a('v_lshl_add_u32 %s, %s, 18, %s' % (v(V.Est), v(V.g), v(T)))
                a('v_and_b32 %s, 0xdcff, %s' % (v(V.Eld), v(T)))
                if mode == 'x':
                    a('s_bfe_u32 %s, %s, 0x10001' % (sA, sW)); a('s_xor_b32 %s, %s, %s' % (sA, sA, sP))
                    a('s_bfe_u32 %s, %s, 0x10005' % (sC, sT)); a('s_xor_b32 %s, %s, %s' % (sC, sC, sP))
                    if pol: a('s_xor_b32 %s, %s, 1' % (sA, sA)); a('s_xor_b32 %s, %s, 1' % (sC, sC))
                    a('s_lshl_b32 %s, %s, 13' % (sA, sA)); a('s_lshl_b32 %s, %s, 13' % (sC, sC))
                    a('s_lshl_b32 %s, %s, 20' % (sEst, sW)); a('s_add_u32 %s, %s, %s' % (sEst, sEst, sA))
                    a('s_lshl_b32 %s, %s, 16' % (sEld, sT)); a('s_add_u32 %s, %s, %s' % (sEld, sEld, sC))
                else:
                    a('s_lshr_b32 %s, %s, 1' % (sA, sW)); a('s_lshr_b32 %s, %s, 2' % (sD, sW)); a('s_xor_b32 %s, %s, %s' % (sA, sA, sD))
                    a('s_lshr_b32 %s, %s, 5' % (sC, sT)); a('s_lshr_b32 %s, %s, 6' % (sD, sT)); a('s_xor_b32 %s, %s, %s' % (sC, sC, sD))
                    if pol: a('s_xor_b32 %s, %s, 1' % (sA, sA)); a('s_xor_b32 %s, %s, 1' % (sC, sC))
                    a('s_and_b32 %s, %s, 1' % (sA, sA)); a('s_and_b32 %s, %s, 1' % (sC, sC))
                    a('s_lshl_b32 %s, %s, 13' % (sA, sA)); a('s_lshl_b32 %s, %s, 13' % (sC, sC))
                    a('s_lshl_b32 %s, %s, 22' % (sD, sP)); a('s_add_u32 %s, %s, %s' % (sA, sA, sD)); a('s_add_u32 %s, %s, %s' % (sC, sC, sD))
                    a('s_and_b32 %s, %s, 3' % (sEst, sW)); a('s_lshl_b32 %s, %s, 20' % (sEst, sEst)); a('s_add_u32 %s, %s, %s' % (sEst, sEst, sA))
                    a('s_and_b32 %s, %s, 63' % (sEld, sT)); a('s_lshl_b32 %s, %s, 16' % (sEld, sEld)); a('s_add_u32 %s, %s, %s' % (sEld, sEld, sC))
                return
            a('v_lshl_add_u32 %s, %s, 17, %s' % (v(V.Est), v(V.g), v(T)))
            a('v_and_b32 %s, 0x7cff, %s' % (v(V.Eld), v(T)))
            a('s_lshl_b32 %s, %s, 22' % (sA, sP))
            a('s_lshl_b32 %s, %s, 19' % (sEst, sW)); a('s_add_u32 %s, %s, %s' % (sEst, sEst, sA))
            a('s_lshl_b32 %s, %s, 15' % (sEld, sT)); a('s_add_u32 %s, %s, %s' % (sEld, sEld, sA))
            return
        a('v_lshlrev_b32 %s, 4, %s' % (v(V.T), v(V.n)))
        a('v_lshl_add_u32 %s, %s, 17, %s' % (v(V.Est), v(V.g), v(V.T)))
        a('v_lshl_add_u32 %s, %s, 10, %s' % (v(V.Eld), v(V.g), v(V.T)))
        a('s_lshl_b32 %s, %s, 22' % (sA, sP))
        a('s_lshl_b32 %s, %s, 19' % (sEst, sW)); a('s_add_u32 %s, %s, %s' % (sEst, sEst, sA))
        a('s_lshl_b32 %s, %s, 8' % (sB, sT)); a('s_add_u32 %s, %s, %s' % (sEst, sEst, sB))
        a('s_lshl_b32 %s, %s, 15' % (sEld, sT)); a('s_add_u32 %s, %s, %s' % (sEld, sEld, sA))
        a('s_lshl_b32 %s, %s, 12' % (sB, sW)); a('s_add_u32 %s, %s, %s' % (sEld, sEld, sB))

    def trig(self, x, re, im, conj_re=None, conj_im=None):
        a = self.a; c, s = V.T+8, V.T+9
        a('v_cos_f32 %s, %s' % (v(c), v(x)))
        a('v_sin_f32 %s, %s' % (v(s), v(x)))
        a('v_cvt_pk_bf16_f32 %s, %s, %s' % (v(re), v(c), v(s)))
        a('v_cvt_pk_bf16_f32 %s, -%s, %s' % (v(im), v(s), v(c)))
        if conj_re is not None:
            a('v_cvt_pk_bf16_f32 %s, %s, -%s' % (v(conj_re), v(c), v(s)))
            a('v_cvt_pk_bf16_f32 %s, %s, %s' % (v(conj_im), v(s), v(c)))

    def gen_F16(self):
        a = self.a; T = V.T
        a('v_cvt_f32_u32 %s, %s' % (v(T), v(V.n)))
        a('v_mul_f32 %s, %s, %s' % (v(T), lit(1/16), v(T)))
        a('v_cvt_f32_u32 %s, %s' % (v(T+1), v(V.g)))
        a('v_mul_f32 %s, 4.0, %s' % (v(T+1), v(T+1)))
        a('v_mul_f32 %s, %s, %s' % (v(T+2), v(T), v(T+1)))
        for r in range(4):
            self.trig(T+2, V.F16+r, V.F16+4+r)
            if r < 3: a('v_add_f32 %s, %s, %s' % (v(T+2), v(T+2), v(T)))

    def gen_M2(self):
        a = self.a; T = V.T
        a('v_cvt_f32_u32 %s, %s' % (v(T+1), v(V.g)))
        a('v_mul_f32 %s, 4.0, %s' % (v(T+1), v(T+1)))
        def normal():
            a('v_lshl_add_u32 %s, %s, 4, %s' % (v(T), v(V.n), sW))
            a('v_cvt_f32_u32 %s, %s' % (v(T), v(T)))
            a('v_mul_f32 %s, %s, %s' % (v(T), lit(1/256), v(T)))
            a('v_mul_f32 %s, %s, %s' % (v(T+2), v(T), v(T+1)))
            for r in range(4):
                self.trig(T+2, V.M2+r, V.M2+4+r, V.M2+8+r, V.M2+12+r)
                if r < 3: a('v_add_f32 %s, %s, %s' % (v(T+2), v(T+2), v(T)))
        def w0():
            a('v_lshrrev_b32 %s, 1, %s' % (v(T), v(V.n)))
            a('v_cvt_f32_u32 %s, %s' % (v(T), v(T)))
            a('v_lshlrev_b32 %s, 31, %s' % (v(T+3), v(V.n)))
            a('v_add_f32 %s, 0.5, %s' % (v(T+4), v(T)))
            a('v_xor_b32 %s, %s, %s' % (v(T+3), lit(1/16), v(T+3)))
            a('v_mul_f32 %s, %s, %s' % (v(T), v(T), v(T+3)))
            a('v_mul_f32 %s, %s, %s' % (v(T+4), v(T+4), v(T+3)))
            a('v_cmp_ne_u32 vcc, 1, %s' % v(V.n))
            a('v_cndmask_b32 %s, 0.5, %s, vcc' % (v(T), v(T)))
            for ts in range(2):
                d = T+4*ts
                a('v_mul_f32 %s, %s, %s' % (v(T+2), v(d), v(T+1)))
                for r in range(4):
                    self.trig(T+2, V.M2+8*ts+r, V.M2+8*ts+4+r)
                    if r < 3: a('v_add_f32 %s, %s, %s' % (v(T+2), v(T+2), v(d)))
        self.ifelse(sW, 0, w0, normal)

    def gen_M3(self):
        a = self.a; T = V.T
        a('v_cvt_f32_u32 %s, %s' % (v(T), v(V.n)))
        a('v_mul_f32 %s, %s, %s' % (v(T+1), lit(1/256), v(T)))
        a('v_mul_f32 %s, %s, %s' % (v(T), lit(1/16), v(T)))
        def normal():
            a('v_lshl_add_u32 %s, %s, 6, %s' % (v(T+2), v(V.g), sW))
            a('v_cvt_f32_u32 %s, %s' % (v(T+2), v(T+2)))
            a('v_mul_f32 %s, %s, %s' % (v(T+2), v(T+2), v(T+1)))
            for r in range(4):
                self.trig(T+2, V.M2+r, V.M2+4+r, V.M2+8+r, V.M2+12+r)
                if r < 3: a('v_add_f32 %s, %s, %s' % (v(T+2), v(T+2), v(T)))
        def w0():
            for ts in range(2):
                a('v_lshlrev_b32 %s, 5, %s' % (v(T+2), v(V.g)))
                if ts: a('v_add_u32 %s, 8, %s' % (v(T+2), v(T+2)))
                a('v_cvt_f32_u32 %s, %s' % (v(T+2), v(T+2)))
                a('v_mul_f32 %s, %s, %s' % (v(T+2), v(T+2), v(T+1)))
                for eb in range(2):
                    b = V.M2+8*ts
                    self.trig(T+2, b+2*eb, b+4+2*eb, b+2*eb+1, b+4+2*eb+1)
                    if eb == 0: a('v_add_f32 %s, %s, %s' % (v(T+2), v(T+2), v(T)))
            a('s_mov_b64 exec, 0xffff')
            a('v_lshlrev_b32 %s, 15, %s' % (v(T+2), v(V.n)))
            a('v_and_b32 %s, 0x8000, %s' % (v(T+2), v(T+2)))
            a('v_or_b32 %s, 0x3f80, %s' % (v(V.M2+1), v(T+2)))
            a('v_lshlrev_b32 %s, 16, %s' % (v(V.M2+5), v(V.M2+1)))
            a('s_mov_b64 exec, -1')
        self.ifelse(sW, 0, w0, normal)

    def sigma_lane(self, dst):
        a = self.a; T = V.T
        a('v_and_b32 %s, 17, %s' % (v(dst), v(V.lane)))
        a('v_bfe_u32 %s, %s, 2, 2' % (v(T+7), v(V.lane)))
        a('v_lshl_add_u32 %s, %s, 1, %s' % (v(dst), v(T+7), v(dst)))
        a('v_bfe_u32 %s, %s, 1, 1' % (v(T+7), v(V.lane)))
        a('v_lshl_add_u32 %s, %s, 3, %s' % (v(dst), v(T+7), v(dst)))

    def gen_F32TW(self):
        a = self.a; T = V.T
        self.sigma_lane(T)
        a('v_cvt_f32_u32 %s, %s' % (v(T), v(T)))
        a('v_mul_f32 %s, %s, %s' % (v(T), lit(1/1024), v(T)))
        a('v_lshrrev_b32 %s, 5, %s' % (v(T+1), v(V.lane)))
        a('v_cvt_f32_u32 %s, %s' % (v(T+1), v(T+1)))
        a('v_add_f32 %s, %s, %s' % (v(T+1), v(T+1), v(T+1)))
        a('v_mul_f32 %s, %s, %s' % (v(T+1), v(T+1), v(T)))
        for rho in range(16):
            k = sigma(8*(rho >> 2) + (rho & 3))
            a('v_fmamk_f32 %s, %s, %s, %s' % (v(T+2), v(T), lit(float(k)), v(T+1)))
            a('v_mul_f32 %s, %s, %s' % (v(T+3), lit(32.0), v(T+2)))
            a('v_cos_f32 %s, %s' % (v(V.TW+rho), v(T+2)))
            a('v_sin_f32 %s, %s' % (v(V.TW+16+rho), v(T+2)))
            self.trig(T+3, V.F32+rho, V.F32+16+rho)

    def coop_gen(self):
        a = self.a; T = V.T; X = V.DA
        self.sigma_lane(T)
        a('v_cvt_f32_u32 %s, %s' % (v(T), v(T)))
        a('v_mul_f32 %s, %s, %s' % (v(T), lit(1/1024), v(T)))
        a('s_and_b32 %s, %s, 1' % (sA, sW)); a('s_lshl_b32 %s, %s, 3' % (sA, sA))
        a('s_and_b32 %s, %s, 2' % (sB, sW)); a('s_lshl_b32 %s, %s, 1' % (sB, sB)); a('s_add_u32 %s, %s, %s' % (sA, sA, sB))
        a('s_and_b32 %s, %s, 4' % (sB, sW)); a('s_lshl_b32 %s, %s, 2' % (sB, sB)); a('s_add_u32 %s, %s, %s' % (sA, sA, sB))
        a('v_lshrrev_b32 %s, 5, %s' % (v(T+1), v(V.lane)))
        a('v_lshl_add_u32 %s, %s, 1, %s' % (v(T+1), v(T+1), sA))
        a('v_cvt_f32_u32 %s, %s' % (v(T+1), v(T+1)))
        a('v_mul_f32 %s, %s, %s' % (v(T+2), v(T+1), v(T)))
        for e in range(2):
            a('v_mul_f32 %s, %s, %s' % (v(T+3), lit(32.0), v(T+2)))
            if self.o['shear']:
                a('v_mul_f32 %s, 0.5, %s' % (v(T+4), v(T+2)))
                a('v_cos_f32 %s, %s' % (v(T+5), v(T+4)))
                a('v_sin_f32 %s, %s' % (v(T+6), v(T+4)))
                a('v_rcp_f32 %s, %s' % (v(T+5), v(T+5)))
                a('v_mul_f32 %s, %s, %s' % (v(X+4+e), v(T+6), v(T+5)))
                a('v_fma_f32 %s, %s, %s, 1.0' % (v(T+5), v(X+4+e), v(X+4+e)))
                a('v_rcp_f32 %s, %s' % (v(T+6), v(T+5)))
                a('v_fma_f32 %s, -%s, %s, 1.0' % (v(T+5), v(T+5), v(T+6)))
                a('v_fmac_f32 %s, %s, %s' % (v(T+6), v(T+5), v(T+6)))
                a('v_mul_f32 %s, -2.0, %s' % (v(T+6), v(T+6)))
                a('v_mul_f32 %s, %s, %s' % (v(X+6+e), v(T+6), v(X+4+e)))
            else:
                a('v_cos_f32 %s, %s' % (v(X+4+e), v(T+2)))
                a('v_sin_f32 %s, %s' % (v(X+6+e), v(T+2)))
            self.trig(T+3, X+e, X+2+e)
            if e == 0: a('v_add_f32 %s, %s, %s' % (v(T+2), v(T+2), v(T)))
        a('s_lshr_b32 %s, %s, 1' % (sA, sW)); a('s_lshl_b32 %s, %s, 10' % (sA, sA))
        a('s_and_b32 %s, %s, 1' % (sB, sW)); a('s_lshl_b32 %s, %s, 3' % (sB, sB)); a('s_add_u32 %s, %s, %s' % (sA, sA, sB))
        a('s_add_u32 %s, %s, %d' % (sA, sA, TABL))
        a('v_add_u32 %s, %s, %s' % (v(T), sA, v(V.l16)))
        for k in range(4):
            a('ds_write_b64 %s, %s offset:%d' % (v(T), vr(X+2*k, 2), 4096*k))
    def coop_init(self):
        a = self.a; T = V.T
        a('v_mov_b32 %s, %d' % (v(V.dummy2), CNT)); a('v_mov_b32 %s, 0' % v(T))
        a('ds_write_b32 %s, %s' % (v(V.dummy2), v(T)))
    def coop_post(self):
        a = self.a; T = V.T
        a('v_mov_b32 %s, 1' % v(T+1))
        a('ds_add_u32 %s, %s' % (v(V.dummy2), v(T+1)))
    def coop_wait(self):
        a = self.a; T = V.T; lp, ok = self.label('cw'), self.label('cwok')
        a('s_mov_b32 %s, 0' % sCnt)
        a(lp+':')
        a('ds_read_b32 %s, %s' % (v(T), v(V.dummy2)))
        a('s_add_u32 %s, %s, 1' % (sCnt, sCnt))
        a('s_cmp_gt_u32 %s, 0x%x' % (sCnt, SPIN_MAX*8))
        a('s_waitcnt lgkmcnt(0)')
        a('s_cbranch_scc1 %s' % ok)
        a('v_cmp_gt_u32 vcc, 0x200, %s' % v(T))
        a('s_cbranch_vccnz %s' % lp)
        a(ok+':')
    def coop_read(self):
        a = self.a; T = V.T
        assert V.TW == V.F32+32
        a('v_add_u32 %s, %d, %s' % (v(T), TABL, v(V.l16)))
        for k in range(16):
            a('ds_read_b128 %s, %s offset:%d' % (vr(V.F32+4*k, 4), v(T), 1024*k))

    def calc_k0(self):
        a = self.a
        a('s_lshr_b32 %s, %s, 4' % (sA, sT))
        a('s_and_b32 %s, %s, 15' % (sB, sT))
        a('s_lshl_b32 %s, %s, 4' % (sK0, sB))
        a('s_add_u32 %s, %s, %s' % (sK0, sK0, sA))
        a('s_lshr_b32 %s, %s, 2' % (sC, sB)); a('s_lshl_b32 %s, %s, 5' % (sC, sC))
        a('s_and_b32 %s, %s, 1' % (sD, sB)); a('s_lshl_b32 %s, %s, 4' % (sD, sD)); a('s_add_u32 %s, %s, %s' % (sC, sC, sD))
        a('s_and_b32 %s, %s, 2' % (sD, sB)); a('s_lshl_b32 %s, %s, 2' % (sD, sD)); a('s_add_u32 %s, %s, %s' % (sC, sC, sD))
        a('s_cmp_eq_u32 %s, 0' % sA)
        a('s_cselect_b32 %s, %s, %s' % (sK0, sC, sK0))
        a('s_cmp_eq_u32 %s, 0' % sT)
        a('s_cselect_b32 %s, 7, 8' % sA)
        a('s_lshl_b32 %s, %s, %s' % (sKP, sW, sA))
        a('s_add_u32 %s, %s, %s' % (sKP, sKP, sK0))
        a('s_sub_u32 %s, 0x800, %s' % (sKM, sKP))
        a('s_cmp_eq_u32 %s, 0' % sKP)
        a('s_cselect_b32 %s, 0x400, %s' % (sKM, sKM))
        a('s_cselect_b32 %s, 1, 0' % sSpec)
        a('s_mul_i32 %s, %s, 1026' % (sKP, sKP))
        a('s_mul_i32 %s, %s, 1026' % (sKM, sKM))

    def wq(self, rho): return (rho & 1) + 8*((rho >> 1) & 1) + 4*((rho >> 2) & 1)
    def w_prep(self):
        a = self.a
        a('s_mul_i32 %s, %s, 4224' % (sWL, sW))
        a('s_add_u32 %s, %s, %d' % (sWL, sWL, WL))
        a('s_and_b32 %s, %s, 2' % (sA, sKP))
        a('s_add_u32 %s, %s, %s' % (sDP, sKP, sA)); a('s_add_u32 %s, %s, %s' % (sDM, sKM, sA))
    def w_dma1(self, i):
        a = self.a
        srd, so = [(SWR, sDP), (SWI, sDP), (SWR, sDM), (SWI, sDM)][i]
        a('s_add_u32 m0, %s, %d' % (sWL, 1056*i))
        a('buffer_load_dwordx4 %s, %s, %s offen %s lds' % (v(V.l16), srd, so, self.o['ldw']))
    def w_dma(self):
        for i in range(4): self.w_dma1(i)
    def w_sload(self):
        a = self.a; T = V.T
        a('s_mov_b64 exec, 15')
        a('v_mov_b32 %s, %s' % (v(T), sKP)); a('v_mov_b32 %s, %s' % (v(T+1), sKM))
        a('s_mov_b64 vcc, 10')
        a('v_cndmask_b32 %s, %s, %s, vcc' % (v(T), v(T), v(T+1)))
        a('v_and_b32 %s, 2, %s' % (v(T+1), v(V.lane)))
        a('v_lshl_add_u32 %s, %s, 9, %s' % (v(T), v(T+1), v(T)))
        a('buffer_load_short_d16_hi %s, %s, %s, 0 offen' % (v(V.WF), v(T), SWR))
        a('buffer_load_short_d16_hi %s, %s, %s, 0 offen' % (v(V.WF+1), v(T), SWI))
        a('s_mov_b64 exec, -1')
    def w_edge_rl(self):
        a = self.a
        for l in range(4):
            for im in range(2):
                a('v_readlane_b32 s%d, %s, %d' % (84+2*l+im, v(V.WF+im), l))
    def w_edge(self):
        a = self.a; T = V.T
        self.w_edge_rl()
        for i, (x, y, op) in enumerate(((84, 86, 'add'), (85, 87, 'sub'), (90, 88, 'add'), (91, 89, 'sub'))):
            a('v_mov_b32 %s, s%d' % (v(T), y))
            a('v_%s_f32 %s, s%d, %s' % (op, v(V.WF+i), x, v(T)))
            a('v_mul_f32 %s, 0.5, %s' % (v(V.WF+i), v(V.WF+i)))
        a('s_mov_b64 s[92:93], 1')
    def w_addr(self):
        a = self.a; T = V.T
        self.sigma_lane(T)
        a('v_lshrrev_b32 %s, 5, %s' % (v(T+1), v(V.lane)))
        a('v_lshlrev_b32 %s, 7, %s' % (v(T+1), v(T+1)))
        a('v_lshl_add_u32 %s, %s, 1, %s' % (v(T), v(T), v(T+1)))
        a('s_and_b32 %s, %s, 2' % (sD, sKP)); a('s_sub_u32 %s, %s, %s' % (sD, sWL, sD))
        a('v_add_u32 %s, %s, %s' % (v(V.WP), sD, v(T)))
        a('s_add_u32 %s, %s, %d' % (sD, sD, 1024-832))
        a('v_sub_u32 %s, %s, %s' % (v(V.WM), sD, v(T)))
    def w_read(self, rho, dst=None, swap=False):
        a = self.a; dst = V.W if dst is None else dst
        for im in range(2):
            if rho < 8: ad, off = V.WP, 64*self.wq(rho) + (2112 if swap else 0)
            else: ad, off = V.WM, 64*(13-self.wq(rho)) + (0 if swap else 2112)
            a('ds_read_u16_d16_hi %s, %s offset:%d' % (v(dst+16*im+rho), v(ad), off+1056*im))
    def w_fix(self, half):
        a = self.a
        for im in range(2):
            r = V.W+8*half+16*im
            a('v_cndmask_b32 %s, %s, %s, s[92:93]' % (v(r), v(r), v(V.WF+2*half+im)))
    def w_regs_early(self):
        a = self.a
        for rho in range(16): self.w_read(rho)
        a('s_waitcnt lgkmcnt(0)')
        self.w_fix(0); self.w_fix(1)
    def w_special(self):
        a = self.a; T = V.T
        l0, l1 = self.label('Wspec'), self.label('Wend')
        a('s_cmp_eq_u32 %s, 1' % sSpec)
        a('s_cbranch_scc1 %s' % l0)
        a(l1+':')
        def tail():
            X = V.DA
            a(l0+':')
            for rho in range(16): self.w_read(rho)
            for rho in range(16): self.w_read(rho, X, True)
            a('s_waitcnt lgkmcnt(0) vmcnt(0)')
            self.w_edge_rl()
            a('s_mov_b64 exec, 1')
            for r in (V.W+16, V.W+24, X+16, X+24): a('v_mov_b32 %s, 0' % v(r))
            a('v_mov_b32 %s, s90' % v(V.W+8)); a('v_mov_b32 %s, s88' % v(X+8))
            a('s_mov_b64 exec, -1')
            for i in range(32):
                a('v_add_f32 %s, %s, %s' % (v(T+3), v(V.W+i), v(X+i)))
                if (i & 15) < 8: a('v_sub_f32 %s, %s, %s' % (v(X+i), v(V.W+i), v(X+i)))
                else: a('v_sub_f32 %s, %s, %s' % (v(X+i), v(X+i), v(V.W+i)))
                a('v_mov_b32 %s, %s' % (v(V.W+i), v(T+3)))
            a('v_add_u32 %s, %d, %s' % (v(T+1), SCR_B, v(V.l16)))
            for i in range(8):
                a('ds_write_b128 %s, %s offset:%d' % (v(T+1), vr(X+4*i, 4), 1024*i))
            a('s_waitcnt lgkmcnt(0)')
            a('s_branch %s' % l1)
        self.tail.append(tail)

    def B_dup(self):
        a = self.a
        a('v_mov_b32 %s, %s' % (v(V.B+4), v(V.B))); a('v_mov_b32 %s, %s' % (v(V.B+5), v(V.B+1)))
        a('v_mov_b32 %s, %s' % (v(V.B+10), v(V.B+6))); a('v_mov_b32 %s, %s' % (v(V.B+11), v(V.B+7)))
    def gen_B(self, early=False, dup=True):
        a = self.a; T = V.T
        l0, l1 = self.label('Bspec'), self.label('Bend')
        a('s_cmp_eq_u32 %s, 0' % sT)
        a('s_cbranch_scc1 %s' % (l1 if early else l0))
        c, s = T+8, T+9
        a('v_lshrrev_b32 %s, 1, %s' % (v(T), v(V.n)))
        a('v_lshl_add_u32 %s, %s, 8, %s' % (v(T+1), v(T), sK0))
        a('v_cvt_f32_u32 %s, %s' % (v(T+1), v(T+1)))
        a('v_mul_f32 %s, %s, %s' % (v(T+1), lit(1/2048), v(T+1)))
        a('v_cvt_f32_u32 %s, %s' % (v(T+2), v(V.g)))
        a('v_add_f32 %s, %s, %s' % (v(T+2), v(T+2), v(T+2)))
        a('v_and_b32 %s, 1, %s' % (v(T+3), v(V.n)))
        a('v_cvt_f32_u32 %s, %s' % (v(T+3), v(T+3)))
        a('v_mul_f32 %s, %s, %s' % (v(T+4), lit(0.25), v(T+3)))
        a('v_mul_f32 %s, %s, %s' % (v(T+5), v(T+1), v(T+2)))
        for sbb in range(2):
            for half in range(2):
                a('v_%s_f32 %s, %s, %s' % ('sub' if half else 'add', v(T+6), v(T+5), v(T+4)))
                a('v_cos_f32 %s, %s' % (v(c), v(T+6)))
                a('v_sin_f32 %s, %s' % (v(s), v(T+6)))
                a('v_mul_f32 %s, %s, %s' % (v(c), lit(S11), v(c)))
                a('v_mul_f32 %s, %s, %s' % (v(s), lit(S11), v(s)))
                ng = '-' if half else ''
                a('v_cvt_pk_bf16_f32 %s, %s, %s%s' % (v(V.B+2*sbb+half), v(c), ng, v(s)))
                a('v_cvt_pk_bf16_f32 %s, -%s, %s%s' % (v(V.B+6+2*sbb+half), v(s), ng, v(c)))
            if sbb == 0: a('v_add_f32 %s, %s, %s' % (v(T+5), v(T+5), v(T+1)))
        a('v_cvt_f32_u32 %s, %s' % (v(T), v(T)))
        a('v_lshlrev_b32 %s, 31, %s' % (v(T+4), v(V.n)))
        a('v_xor_b32 %s, %s, %s' % (v(T), v(T), v(T+4)))
        a('v_xor_b32 %s, %s, %s' % (v(T+4), lit(S11), v(T+4)))
        a('v_lshl_add_u32 %s, %s, 9, %s' % (v(T+1), v(V.g), sK0))
        a('v_cvt_f32_u32 %s, %s' % (v(T+1), v(T+1)))
        a('v_mul_f32 %s, %s, %s' % (v(T+1), lit(1/2048), v(T+1)))
        a('v_mul_f32 %s, %s, %s' % (v(T+5), v(T+1), v(T)))
        a('v_fmac_f32 %s, 0.5, %s' % (v(T+5), v(T+3)))
        for ii in range(2):
            a('v_cos_f32 %s, %s' % (v(c), v(T+5)))
            a('v_sin_f32 %s, %s' % (v(s), v(T+5)))
            a('v_mul_f32 %s, %s, %s' % (v(T+6), v(T+4), v(c)))
            a('v_mul_f32 %s, %s, %s' % (v(T+7), v(T+4), v(s)))
            a('v_mul_f32 %s, %s, %s' % (v(c), lit(S11), v(c)))
            a('v_mul_f32 %s, %s, %s' % (v(s), lit(S11), v(s)))
            a('v_cvt_pk_bf16_f32 %s, %s, %s' % (v(V.Bp+2*ii), v(c), v(T+7)))
            a('v_cvt_pk_bf16_f32 %s, -%s, %s' % (v(V.Bp+4+2*ii), v(s), v(T+6)))
            a('v_cvt_pk_bf16_f32 %s, -%s, %s' % (v(V.Bp+2*ii+1), v(s), v(T+6)))
            a('v_cvt_pk_bf16_f32 %s, -%s, -%s' % (v(V.Bp+4+2*ii+1), v(c), v(T+7)))
            if ii == 0: a('v_fmac_f32 %s, %s, %s' % (v(T+5), lit(0.125), v(T)))
        a(l1+':')
        if dup: self.B_dup()
        def tail():
            a(l0+':')
            if not early: self.spec_load(); a('s_waitcnt vmcnt(0)')
            a('s_branch %s' % l1)
        if not early: self.tail.append(tail)
    def spec_load(self):
        a = self.a
        a('s_getpc_b64 s[28:29]')
        a('s_add_u32 s28, s28, spec_tab@rel32@lo+4')
        a('s_addc_u32 s29, s29, spec_tab@rel32@hi+12')
        a('global_load_dwordx4 %s, %s, s[28:29]' % (vr(V.B, 4), v(V.l16)))
        a('global_load_dwordx4 %s, %s, s[28:29] offset:1024' % (vr(V.B+6, 4), v(V.l16)))
        a('global_load_dwordx4 %s, %s, s[28:29] offset:2048' % (vr(V.Bp, 4), v(V.l16)))
        a('global_load_dwordx4 %s, %s, s[28:29] offset:3072' % (vr(V.Bp+4, 4), v(V.l16)))
    def spec_early(self):
        a = self.a
        def g():
            self.srds()
            a('s_mov_b32 %s, 0' % sDP); a('s_mov_b32 %s, %d' % (sDM, 1024*1026)); a('s_mov_b32 %s, %d' % (sWL, WL))
            self.w_dma()
        def f():
            self.spec_load(); self.cond(sW, 0, g)
        self.cond(sT, 0, f)

    def spec_table(self):
        tab = np.zeros((4, 64, 4, 2))
        for lane in range(64):
            m, g = lane & 15, lane >> 4
            for r in range(4):
                t, c = m >> 1, m & 1; sb, hf = 2*g + (r >> 1), r & 1
                if hf == (t & 1):
                    th = 2*math.pi*sb*t/16
                    tab[0, lane, r, c] = (2*S11 if t else S11)*math.cos(th)
                    tab[1, lane, r, c] = -2*S11*math.sin(th) if t else S11*(-1.0)**sb
                sb, hf = m >> 1, m & 1; t, c = 2*g + (r >> 1), r & 1
                if hf == (t & 1):
                    th = 2*math.pi*sb*t/16
                    if t: cre, cim = 2*math.cos(th), -2*math.sin(th)
                    else: cre, cim = 1.0, (-1.0)**sb
                    pl = 2 + (1 - c)
                    tab[pl, lane, r, 0] = S11*cim
                    tab[pl, lane, r, 1] = S11*cre
        tab[abs(tab) < 1e-12] = 0
        out = ['.p2align 6', '.type spec_tab,@object', 'spec_tab:']
        w = [bf16bits(tab[p, l, r, 0]) | bf16bits(tab[p, l, r, 1]) << 16 for p in range(4) for l in range(64) for r in range(4)]
        for i in range(0, len(w), 8):
            out.append('.long ' + ','.join('0x%x' % x for x in w[i:i+8]))
        return '\n'.join(out)

    def p1_load(self):
        a = self.a; T = V.T
        a('v_bfe_u32 %s, %s, 3, 1' % (v(T), v(V.lane)))
        a('v_lshlrev_b32 %s, 14, %s' % (v(T), v(T)))
        a('v_lshl_add_u32 %s, %s, 20, %s' % (v(T), v(V.g), v(T)))
        a('v_and_b32 %s, 0x70, %s' % (v(T+1), v(V.l16)))
        a('v_add_u32 %s, %s, %s' % (v(V.Xoff), v(T), v(T+1)))
        a('s_lshl_b32 %s, %s, 15' % (sO[0], sW))
        a('s_lshl_b32 %s, %s, 11' % (sA, sSB)); a('s_add_u32 %s, %s, %s' % (sO[0], sO[0], sA))
        a('s_lshl_b32 %s, %s, 7' % (sA, sCB)); a('s_add_u32 %s, %s, %s' % (sO[0], sO[0], sA))
        for r in range(1, 4): a('s_add_u32 %s, %s, 0x%x' % (sO[r], sO[0], r*262144))
    def p1_issue(self):
        a = self.a
        for r in range(4):
            a('buffer_load_dwordx4 %s, %s, %s, %s offen %s' % (vr(V.L+4*r, 4), v(V.Xoff), SX, sO[r], self.o['ldx']))
    def p1_addrs(self):
        a = self.a; T = V.T
        a('v_xor_b32 %s, %s, %s' % (v(T), sSB, v(V.lane)))
        a('v_and_b32 %s, 1, %s' % (v(T), v(T)))
        a('v_mul_u32_u24 %s, 16448, %s' % (v(T), v(T)))
        a('v_lshl_add_u32 %s, %s, 12, %s' % (v(T), v(V.g), v(T)))
        a('v_and_b32 %s, 14, %s' % (v(T+1), v(V.lane)))
        a('v_lshl_add_u32 %s, %s, 3, %s' % (v(T), v(T+1), v(T)))
        a('s_lshr_b32 %s, %s, 2' % (sA, sW)); a('s_lshl_b32 %s, %s, 9' % (sA, sA))
        a('s_and_b32 %s, %s, 1' % (sB, sW)); a('s_lshl_b32 %s, %s, 8' % (sB, sB)); a('s_add_u32 %s, %s, %s' % (sA, sA, sB))
        a('s_and_b32 %s, %s, 2' % (sB, sW)); a('s_lshl_b32 %s, %s, 6' % (sB, sB)); a('s_add_u32 %s, %s, %s' % (sA, sA, sB))
        if R0: a('s_add_u32 %s, %s, %d' % (sA, sA, R0))
        a('v_add_u32 %s, %s, %s' % (v(V.X0w), sA, v(T)))
        self.tr_lane(T, 512, 128)
        a('s_lshl_b32 %s, %s, 10' % (sA, sW))
        a('s_sub_u32 %s, 0x4000, %s' % (sB, sA))
        a('s_cmp_eq_u32 %s, 0' % sW)
        a('s_cselect_b32 %s, 0x2000, %s' % (sB, sB))
        if R0: a('s_add_u32 %s, %s, %d' % (sA, sA, R0)); a('s_add_u32 %s, %s, %d' % (sB, sB, R0))
        a('v_add_u32 %s, %s, %s' % (v(V.X0r0), sA, v(T)))
        a('v_add_u32 %s, %s, %s' % (v(V.X0r1), sB, v(T)))
    def tr_lane(self, dst, g1s, g0s, b3s=64):
        a = self.a; t = V.T+7
        sh = lambda x: int(math.log2(x))
        a('v_and_b32 %s, 0x30, %s' % (v(dst), v(V.l16)))
        for bit, st in ((2, 8), (3, b3s), (4, g0s), (5, g1s)):
            a('v_bfe_u32 %s, %s, %d, 1' % (v(t), v(V.lane), bit))
            a('v_lshl_add_u32 %s, %s, %d, %s' % (v(dst), v(t), sh(st), v(dst)))

    def mf16(self, d, A, B):
        self.a('v_mfma_f32_16x16x32_bf16 %s, %s, %s, 0' % (vr(d, 4), vr(A, 4), vr(B, 4)))
    def cvt(self, d, lo, hi):
        self.a('v_cvt_pk_bf16_f32 %s, %s, %s' % (v(d), v(lo), v(hi)))

    def p1_compute(self, nafter, hook=None, hook2=None, hook3=None, hook4=None, hook5=None):
        a = self.a; O, L, D = V.O, V.L, V.DA
        for r in range(4):
            a('s_waitcnt vmcnt(%d)' % (nafter + 3 - r))
            if r == 3: self.stamp()
            for t in range(4):
                a('v_mov_b32 %s, %s' % (v(O+4*t+r), v(L+4*r+t)))
        for t in range(4):
            self.mf16(D+4*t, V.F16, O+4*t)
            self.mf16(D+16+4*t, V.F16+4, O+4*t)
        if hook: hook()
        P = V.DB
        for r in range(4):
            self.cvt(P+4*r, D+r, D+4+r); self.cvt(P+4*r+2, D+16+r, D+20+r)
        for r in range(4):
            self.cvt(P+4*r+1, D+8+r, D+12+r); self.cvt(P+4*r+3, D+24+r, D+28+r)
            a('ds_write_b128 %s, %s offset:%d' % (v(V.X0w), vr(P+4*r, 4), 1024*r))
        self.mark('g1a')
        if hook5: hook5()
        self.mark('g1b')
        a('s_waitcnt lgkmcnt(0)')
        a('s_barrier')
        if hook4: hook4()
        for sel in range(2):
            for tau in range(2):
                for ii in range(2):
                    a('ds_read_b64_tr_b16 %s, %s offset:%d' % (vr(O+4*(2*sel+tau)+2*ii, 2), v(V.X0r1 if sel else V.X0r0), tau*16448+ii*256))
        if hook2: hook2()
        if hook3: hook3()
        for r in range(4): a('s_add_u32 %s, %s, 0x%x' % (sO[r], self.est(), self.ubase(0) + r*self.tstride()))
        for ti in range(4):
            a('s_waitcnt lgkmcnt(%d)' % (6-2*ti))
            self.mf16(D+4*ti, V.M2+8*(ti >> 1), O+4*ti)
            self.mf16(D+16+4*ti, V.M2+8*(ti >> 1)+4, O+4*ti)
        st = lambda i: a('buffer_store_dwordx4 %s, %s, %s, %s offen %s' % (vr(P+4*i, 4), v(V.Est), SWS, sO[i], self.o['st1']))
        def normal():
            for i in range(4):
                for tau in range(2): self.cvt(P+4*i+2*tau, D+4*tau+i, D+16+4*tau+i)
            for i in range(4):
                for tau in range(2): self.cvt(P+4*i+2*tau+1, D+4*(2+tau)+i, D+16+4*(2+tau)+i)
                st(i)
        def w0():
            for i in range(4):
                ts, eb = i >> 1, i & 1
                for tau in range(2):
                    for sg in range(2):
                        x = 4*(2*ts+tau)+2*eb+sg
                        self.cvt(P+4*i+2*tau+sg, D+x, D+16+x)
                st(i)
        self.ifelse(sW, 0, w0, normal)

    def p2_addrs(self):
        a = self.a; T = V.T
        a('v_lshlrev_b32 %s, 4, %s' % (v(T), v(V.n)))
        a('v_lshl_add_u32 %s, %s, 13, %s' % (v(T), v(V.g), v(T)))
        a('s_lshl_b32 %s, %s, 9' % (sA, sW)); a('s_add_u32 %s, %s, %d' % (sA, sA, R1))
        a('v_add_u32 %s, %s, %s' % (v(V.X1w), sA, v(T)))
    def p2_addrs2(self):
        a = self.a; T = V.T
        self.tr_lane(T, 256, 64, 128)
        a('s_lshl_b32 %s, %s, 12' % (sA, sW)); a('s_add_u32 %s, %s, %d' % (sA, sA, R1))
        a('v_add_u32 %s, %s, %s' % (v(V.X1r), sA, v(T)))
        a('v_and_b32 %s, 16, %s' % (v(T), v(V.l16)))
        for bit, st in ((1, 16448), (2, 8224)):
            a('v_bfe_u32 %s, %s, %d, 1' % (v(T+1), v(V.lane), bit))
            a('v_mul_u32_u24 %s, %d, %s' % (v(T+1), st, v(T+1)))
            a('v_add_u32 %s, %s, %s' % (v(T), v(T), v(T+1)))
        a('v_bfe_u32 %s, %s, 3, 2' % (v(T+1), v(V.lane)))
        a('v_lshl_add_u32 %s, %s, 11, %s' % (v(T), v(T+1), v(T)))
        a('v_and_b32 %s, 32, %s' % (v(T+1), v(V.lane)))
        a('v_add_u32 %s, %s, %s' % (v(T), v(T), v(T+1)))
        a('s_lshr_b32 %s, %s, 2' % (sA, sW)); a('s_lshl_b32 %s, %s, 9' % (sA, sA))
        a('s_and_b32 %s, %s, 1' % (sB, sW)); a('s_lshl_b32 %s, %s, 8' % (sB, sB)); a('s_add_u32 %s, %s, %s' % (sA, sA, sB))
        a('s_and_b32 %s, %s, 2' % (sB, sW)); a('s_lshl_b32 %s, %s, 6' % (sB, sB)); a('s_add_u32 %s, %s, %s' % (sA, sA, sB))
        if R0: a('s_add_u32 %s, %s, %d' % (sA, sA, R0))
        a('v_add_u32 %s, %s, %s' % (v(V.X2w), sA, v(T)))
        self.tr_lane(T, 512, 128)
        a('s_and_b32 %s, %s, 1' % (sA, sW)); a('s_lshl_b32 %s, %s, 11' % (sA, sA))
        a('s_bfe_u32 %s, %s, 0x10001' % (sB, sW)); a('s_mul_i32 %s, %s, 16448' % (sB, sB)); a('s_add_u32 %s, %s, %s' % (sA, sA, sB))
        a('s_lshr_b32 %s, %s, 2' % (sB, sW)); a('s_lshl_b32 %s, %s, 12' % (sB, sB)); a('s_add_u32 %s, %s, %s' % (sA, sA, sB))
        if R0: a('s_add_u32 %s, %s, %d' % (sA, sA, R0))
        a('v_add_u32 %s, %s, %s' % (v(V.X2r), sA, v(T)))

    def p2_issue(self):
        a = self.a
        a('s_add_u32 %s, %s, 0x%x' % (sA, sEld, self.ubase(0)))
        for q in range(4):
            a('buffer_load_dwordx4 %s, %s, %s, %s offen offset:%d %s' % (vr(V.L+12*(q >> 1)+4*(q & 1), 4), self.eld(q), SWS, sA, 256*q, self.o['ld1']))

    def mf32(self, d, i, dataA):
        for pl in range(2):
            M = vr(V.F32+16*pl+4*i, 4); X = vr(V.O+4*i, 4)
            A, B = (X, M) if dataA else (M, X)
            D = vr(d+16*pl, 16)
            self.a('v_mfma_f32_32x32x16_bf16 %s, %s, %s, %s' % (D, A, B, D if i else '0'))

    def cmul_stage(self, src, dst, dataA, coef, kind, prio=None, late=False):
        a = self.a; T = V.T
        if prio is not None and self.o['prio']: a('s_setprio %d' % prio)
        if kind == 'tw' and self.o['shear']:
            for i in range(4):
                for st in range(3):
                    for r in range(4):
                        rho = 4*i+r
                        x, y = v(src+rho), v(src+16+rho)
                        if st == 1: a('v_fmac_f32 %s, %s, %s' % (y, v(coef+16+rho), x))
                        else: a('v_fmac_f32 %s, %s, %s' % (x, v(coef+rho), y))
                for r in range(4): self.cvt(V.O+4*i+r, src+4*i+r, src+16+4*i+r)
                self.mf32(dst, i, dataA)
            return
        if late:
            a('s_waitcnt vmcnt(2)')
            for rho in range(8): self.w_read(rho)
        for i in range(4):
            if late:
                if i == 0: a('s_waitcnt lgkmcnt(8)'); self.w_fix(0)
                if i == 1:
                    a('s_waitcnt vmcnt(0)')
                    for rho in range(8, 12): self.w_read(rho)
                    a('s_waitcnt lgkmcnt(8)')
                if i == 2:
                    for rho in range(12, 16): self.w_read(rho)
                    a('s_waitcnt lgkmcnt(8)'); self.w_fix(1)
                if i == 3: a('s_waitcnt lgkmcnt(0)')
            for r in range(4):
                rho = 4*i+r
                x, y = v(src+rho), v(src+16+rho)
                c, s = v(coef+rho), v(coef+16+rho)
                t0, t1 = v(T+2*r), v(T+2*r+1)
                a('v_mul_f32 %s, %s, %s' % (t0, x, c))
                a('v_mul_f32 %s, %s, %s' % (t1, y, c))
            for r in range(4):
                rho = 4*i+r
                x, y = v(src+rho), v(src+16+rho)
                c, s = v(coef+rho), v(coef+16+rho)
                t0, t1 = v(T+2*r), v(T+2*r+1)
                if kind == 'tw' or rho >= 8:
                    a('v_fmac_f32 %s, %s, %s' % (t0, y, s))
                    a('v_fma_f32 %s, -%s, %s, %s' % (t1, x, s, t1))
                else:
                    a('v_fma_f32 %s, -%s, %s, %s' % (t0, y, s, t0))
                    a('v_fmac_f32 %s, %s, %s' % (t1, x, s))
            for r in range(4):
                if kind == 'tw': self.cvt(V.O+4*i+r, T+2*r, T+2*r+1)
                else: self.cvt(V.O+4*i+r, T+2*r+1, T+2*r)
            self.mf32(dst, i, dataA)

    def p2_compute(self, wl=None):
        a = self.a; O, L, D, T = V.O, V.L, V.DA, V.T
        late = wl is not None
        na = 0
        for cbb in range(2):
            b = L+12*cbb
            a('s_waitcnt vmcnt(%d)' % (na+3-2*cbb))
            a('v_mov_b32 %s, %s' % (v(b+8), v(b))); a('v_mov_b32 %s, %s' % (v(b+9), v(b+1)))
            a('s_waitcnt vmcnt(%d)' % (na+2-2*cbb))
            if cbb: self.stamp(); self.fstamp()
            for jj2 in (1, 0):
                ti = 2*cbb+jj2
                op = b+2 if jj2 else b+6
                mo = 0 if jj2 else 2
                self.mf16(D+4*ti, V.B+mo, op)
                self.mf16(D+16+4*ti, V.B+6+mo, op)
        for cbb in range(2):
            for k1b in range(2):
                P = O+4*(2*cbb+k1b)
                for pl in range(2):
                    for jj2 in (1, 0):
                        x = D+16*pl+4*(2*cbb+jj2)+2*k1b
                        self.cvt(P+2*pl+jj2, x, x+1)
                a('ds_write_b128 %s, %s offset:%d' % (v(V.X1w), vr(P, 4), k1b*4096+cbb*256))
        self.fstamp()
        a('s_waitcnt lgkmcnt(0)')
        self.fstamp()
        if self.o.get('fine'): a('s_waitcnt lgkmcnt(0)')
        a('s_barrier')
        if self.o['prio']: a('s_setprio 3')
        for i in range(4):
            for ii in range(2):
                a('ds_read_b64_tr_b16 %s, %s offset:%d' % (vr(O+4*i+2*ii, 2), v(V.X1r), ii*1024+(i & 1)*512+(i >> 1)*2048))
        for i in range(4):
            if late and i in (0, 2): self.wat('postX1', (i, i+1))
            a('s_waitcnt lgkmcnt(%d)' % (6-2*i))
            self.mf32(V.DA, i, True)
        self.fstamp()
        if late: self.wat('tw1')
        self.cmul_stage(V.DA, V.DB, False, V.TW, 'tw', 2)
        self.fstamp()
        l0, l1 = self.label('PWspec'), self.label('PWend')
        a('s_cmp_eq_u32 %s, 1' % sSpec)
        a('s_cbranch_scc1 %s' % l0)
        if self.o.get('fine'): a('s_waitcnt lgkmcnt(0)')
        self.cmul_stage(V.DB, V.DA, True, V.W, 'w', 1, late)
        a(l1+':')
        self.fstamp()
        self.cmul_stage(V.DA, V.DB, True, V.TW, 'tw', 0)
        self.fstamp()
        D = V.DB
        rho = lambda jj3, jj1, jj2, c: 4*(2*jj3+jj1)+2*jj2+c
        for c in range(2):
            for jj1 in range(2):
                P = O+4*(2*c+jj1)
                for pl in range(2):
                    for jj3 in range(2):
                        self.cvt(P+2*pl+jj3, D+16*pl+rho(jj3, jj1, 0, c), D+16*pl+rho(jj3, jj1, 1, c))
                a('ds_write_b128 %s, %s offset:%d' % (v(V.X2w), vr(P, 4), c*64+jj1*1024))
                if self.o['ib2'] and not self.o['ib3'] and c == 0 and jj1 == 0: self.major_read()
        self.fstamp()
        a('s_waitcnt lgkmcnt(0)')
        if self.o['ib2'] and not self.o['ib3']: self.major_use()
        self.fstamp()
        if self.o.get('fine'): a('s_waitcnt lgkmcnt(0)')
        a('s_barrier')
        for cbb in range(2):
            for jj1 in range(2):
                for ii in range(2):
                    a('ds_read_b64_tr_b16 %s, %s offset:%d' % (vr(O+4*(2*cbb+jj1)+2*ii, 2), v(V.X2r), ii*256+jj1*1024+cbb*8224))
        for r in range(4): a('s_add_u32 %s, %s, 0x%x' % (sO[r], self.est(), self.ubase(1) + r*self.tstride()))
        D = V.DA
        for ti in range(4):
            a('s_waitcnt lgkmcnt(%d)' % (6-2*ti))
            self.mf16(D+4*ti, V.Bp, O+4*ti)
            self.mf16(D+16+4*ti, V.Bp+4, O+4*ti)
        self.fstamp()
        P = V.DB
        for q in range(4):
            cbb, sbb = q >> 1, q & 1
            for jj1 in range(2):
                for hf in range(2):
                    x = 4*(2*cbb+jj1)+2*sbb+hf
                    self.cvt(P+4*q+2*jj1+hf, D+x, D+16+x)
            a('buffer_store_dwordx4 %s, %s, %s, %s offen %s' % (vr(P+4*q, 4), v(V.Est), SWS, sO[q], self.o['st2']))
        self.fstamp()
        if self.o.get('fine'):
            a('s_memrealtime s[%d:%d]' % (sTS+2*self.nts, sTS+2*self.nts+1)); self.nts += 1
        def tail():
            C = V.DB; X = V.DA
            a(l0+':')
            self.sigma_lane(T)
            a('v_lshrrev_b32 %s, 5, %s' % (v(T+1), v(V.lane)))
            a('v_lshlrev_b32 %s, 9, %s' % (v(T+1), v(T+1)))
            a('v_lshl_add_u32 %s, %s, 2, %s' % (v(T+2), v(T), v(T+1)))
            a('v_add_u32 %s, %d, %s' % (v(T+2), SCR, v(T+2)))
            a('v_add_u32 %s, 128, %s' % (v(T+3), v(T+2)))
            a('v_sub_u32 %s, 32, %s' % (v(T+4), v(T)))
            a('v_lshrrev_b32 %s, 5, %s' % (v(T+5), v(T+4)))
            a('v_and_b32 %s, 31, %s' % (v(T+4), v(T+4)))
            a('v_lshlrev_b32 %s, 2, %s' % (v(T+4), v(T+4)))
            a('v_lshl_add_u32 %s, %s, 8, %s' % (v(T+4), v(T+5), v(T+4)))
            a('v_sub_u32 %s, %s, %s' % (v(T+4), v(T+4), v(T+1)))
            a('v_add_u32 %s, %d, %s' % (v(T+4), SCR + 2*256, v(T+4)))
            a('v_add_u32 %s, 128, %s' % (v(T+5), v(T+4)))
            a('v_add_u32 %s, %d, %s' % (v(T+6), SCR_B, v(V.l16)))
            qs = lambda rho: sigma(8*(rho >> 2) + (rho & 3))
            for pl in range(2):
                for rho in range(0, 16, 2):
                    a('ds_write2st64_b32 %s, %s, %s offset0:%d offset1:%d' % (v(T+2+pl), v(C+16*pl+rho), v(C+16*pl+rho+1), qs(rho), qs(rho+1)))
                a('ds_write_b32 %s, %s offset:%d' % (v(T+2+pl), v(C+16*pl), 32*256))
            a('s_waitcnt lgkmcnt(0)')
            t0, t1 = v(T+8), v(T+9)
            for half in range(2):
                for pl in range(2):
                    for k in range(0, 8, 2):
                        rho_ = 8*half+k
                        a('ds_read2st64_b32 %s, %s offset0:%d offset1:%d' % (vr(X+8*pl+k, 2), v(T+4+pl), 29-qs(rho_), 29-qs(rho_+1)))
                    for k in range(2):
                        a('ds_read_b128 %s, %s offset:%d' % (vr(X+16+8*pl+4*k, 4), v(T+6), 1024*(4*pl+2*half+k)))
                a('s_waitcnt lgkmcnt(0)')
                for k in range(8):
                    rho_ = 8*half+k
                    x, y = v(C+rho_), v(C+16+rho_); ar, ai = v(V.W+rho_), v(V.W+16+rho_)
                    p, q_ = v(X+k), v(X+8+k); br, bi = v(X+16+k), v(X+24+k)
                    ng, ps = ('', '-') if half else ('-', '')
                    a('v_mul_f32 %s, %s, %s' % (t0, x, ar))
                    a('v_mul_f32 %s, %s, %s' % (t1, y, ar))
                    a('v_fma_f32 %s, %s%s, %s, %s' % (t0, ng, y, ai, t0))
                    a('v_fma_f32 %s, %s%s, %s, %s' % (t1, ps, x, ai, t1))
                    a('v_fmac_f32 %s, %s, %s' % (t0, p, br))
                    a('v_fma_f32 %s, -%s, %s, %s' % (t1, q_, br, t1))
                    a('v_fma_f32 %s, %s%s, %s, %s' % (t0, ps, q_, bi, t0))
                    a('v_fma_f32 %s, %s%s, %s, %s' % (t1, ps, p, bi, t1))
                    self.cvt(O+rho_, T+9, T+8)
            for i in range(4): self.mf32(V.DA, i, True)
            a('s_nop 11')
            a('s_branch %s' % l1)
        self.tail.append(tail)

    def p3_addrs(self):
        a = self.a; T = V.T
        a('v_and_b32 %s, 16, %s' % (v(T), v(V.lane)))
        for bit, st in ((0, 32), (3, 4096), (5, 1024)):
            a('v_bfe_u32 %s, %s, %d, 1' % (v(T+1), v(V.lane), bit))
            a('v_lshl_add_u32 %s, %s, %d, %s' % (v(T), v(T+1), int(math.log2(st)), v(T)))
        for bit, st in ((1, 8208), (2, 16448)):
            a('v_bfe_u32 %s, %s, %d, 1' % (v(T+1), v(V.lane), bit))
            a('v_mul_u32_u24 %s, %d, %s' % (v(T+1), st, v(T+1)))
            a('v_add_u32 %s, %s, %s' % (v(T), v(T), v(T+1)))
        a('s_sub_u32 %s, 16, %s' % (sC, sW))
        a('s_cmp_eq_u32 %s, 0' % sW)
        a('s_cselect_b32 %s, 8, %s' % (sC, sC))
        for kl, dst in ((sW, V.X3w0), (sC, V.X3w1)):
            a('s_and_b32 %s, %s, 9' % (sA, kl)); a('s_lshl_b32 %s, %s, 6' % (sA, sA))
            a('s_and_b32 %s, %s, 2' % (sB, kl)); a('s_lshl_b32 %s, %s, 7' % (sB, sB)); a('s_add_u32 %s, %s, %s' % (sA, sA, sB))
            a('s_and_b32 %s, %s, 4' % (sB, kl)); a('s_lshl_b32 %s, %s, 5' % (sB, sB)); a('s_add_u32 %s, %s, %s' % (sA, sA, sB))
            a('s_add_u32 %s, %s, %d' % (sA, sA, R1))
            a('v_add_u32 %s, %s, %s' % (v(dst), sA, v(T)))
        self.tr_lane(T, 512, 128)
        a('s_and_b32 %s, %s, 1' % (sA, sW)); a('s_mul_i32 %s, %s, 8208' % (sA, sA))
        a('s_bfe_u32 %s, %s, 0x10001' % (sB, sW)); a('s_mul_i32 %s, %s, 16448' % (sB, sB)); a('s_add_u32 %s, %s, %s' % (sA, sA, sB))
        a('s_lshr_b32 %s, %s, 2' % (sB, sW)); a('s_lshl_b32 %s, %s, 12' % (sB, sB)); a('s_add_u32 %s, %s, %s' % (sA, sA, sB))
        a('s_add_u32 %s, %s, %d' % (sA, sA, R1))
        a('v_add_u32 %s, %s, %s' % (v(V.X3r), sA, v(T)))
        a('v_bfe_u32 %s, %s, 3, 1' % (v(T), v(V.lane)))
        a('v_lshlrev_b32 %s, 15, %s' % (v(T), v(T)))
        a('v_lshl_add_u32 %s, %s, 21, %s' % (v(T), v(V.g), v(T)))
        a('v_and_b32 %s, 0x70, %s' % (v(T+1), v(V.l16)))
        a('v_add_u32 %s, %s, %s' % (v(V.Ooff), v(T), v(T+1)))
    def p3_soff(self):
        a = self.a
        a('s_lshl_b32 %s, %s, 16' % (sO[0], sW))
        a('s_lshl_b32 %s, %s, 12' % (sA, sSB)); a('s_add_u32 %s, %s, %s' % (sO[0], sO[0], sA))
        a('s_lshl_b32 %s, %s, 7' % (sA, sCB)); a('s_add_u32 %s, %s, %s' % (sO[0], sO[0], sA))
        a('s_lshl_b32 %s, %s, 11' % (sA, sP)); a('s_add_u32 %s, %s, %s' % (sO[0], sO[0], sA))
        for r in range(1, 4): a('s_add_u32 %s, %s, 0x%x' % (sO[r], sO[0], r*524288))
    def p3_issue(self):
        a = self.a
        a('s_add_u32 %s, %s, 0x%x' % (sA, sEld, self.ubase(1)))
        for q in range(4):
            a('buffer_load_dwordx4 %s, %s, %s, %s offen offset:%d %s' % (vr(V.L+4*q, 4), self.eld(q, 1), SWS, sA, 256*q, self.o['ld2']))
    def p3_compute(self):
        a = self.a; O, L, D = V.O, V.L, V.DA
        def normal():
            for i in range(4):
                a('s_waitcnt vmcnt(%d)' % (3-i))
                for sel in range(2):
                    for col in range(2):
                        a('v_mov_b32 %s, %s' % (v(O+4*(2*sel+col)+i), v(L+4*i+2*col+sel)))
        def w0():
            for i in range(4):
                ts, eb = i >> 1, i & 1
                a('s_waitcnt vmcnt(%d)' % (3-i))
                for col in range(2):
                    for sg in range(2):
                        a('v_mov_b32 %s, %s' % (v(O+4*(2*ts+col)+2*eb+sg), v(L+4*i+2*col+sg)))
        self.ifelse(sW, 0, w0, normal, True)
        self.stamp()
        for ti in range(4):
            self.mf16(D+4*ti, O+4*ti, V.M2+8*(ti >> 1))
            self.mf16(D+16+4*ti, O+4*ti, V.M2+8*(ti >> 1)+4)
        P = V.DB
        for ti in range(4):
            for pl in range(2):
                for k in range(2):
                    x = D+16*pl+4*ti+2*k
                    self.cvt(P+4*ti+2*pl+k, x, x+1)
            a('ds_write_b128 %s, %s offset:%d' % (v(V.X3w1 if ti >> 1 else V.X3w0), vr(P+4*ti, 4), (ti & 1)*2048))
        a('s_waitcnt lgkmcnt(0)')
        a('s_barrier')
        for t in range(4):
            for ii in range(2):
                a('ds_read_b64_tr_b16 %s, %s offset:%d' % (vr(O+4*t+2*ii, 2), v(V.X3r), ii*256+t*1024))
        for t in range(4):
            a('s_waitcnt lgkmcnt(%d)' % (6-2*t))
            self.mf16(D+4*t, V.F16, O+4*t)
            self.mf16(D+16+4*t, V.F16+4, O+4*t)
        for t in range(3):
            for r in range(4): self.cvt(P+4*r+t, D+16+4*t+r, D+4*t+r)
        for r in range(4):
            self.cvt(P+4*r+3, D+16+12+r, D+12+r)
            a('buffer_store_dwordx4 %s, %s, %s, %s offen %s' % (vr(P+4*r, 4), v(V.Ooff), SOUT, sO[r], self.o['sto']))

    def flush_tail(self):
        t, self.tail = self.tail, []
        for f in t: f()

    def kernel_head(self, name):
        self.a.raw('.globl %s\n.p2align 12\n.p2align 8\n.type %s,@function\n%s:' % (name, name, name))
    def kd(self, name):
        return '''.p2align 6
.amdhsa_kernel %s
  .amdhsa_next_free_vgpr %d
  .amdhsa_next_free_sgpr 102
  .amdhsa_accum_offset %d
  .amdhsa_group_segment_fixed_size 0
  .amdhsa_kernarg_size 72
  .amdhsa_user_sgpr_count 2
  .amdhsa_user_sgpr_kernarg_segment_ptr 1
  .amdhsa_system_sgpr_workgroup_id_x 1
.end_amdhsa_kernel''' % (name, NVGPR, (NVGPR+3)//4*4)

    def build_three(self):
        a = self.a
        names = ['gf_p1_kernel', 'gf_p2_kernel', 'gf_p3_kernel']
        self.kernel_head(names[0]); end = self.label('end')
        self.prologue(end); self.p1_load(); a('s_waitcnt lgkmcnt(0)'); self.p1_issue()
        self.ex_addrs(); self.p1_addrs(); self.gen_F16(); self.gen_M2()
        self.p1_compute(0)
        if self.o['ts']: self.stamp(); a('s_waitcnt vmcnt(0)'); self.stamp(); self.dump_stamps(0)
        a(end+':'); a('s_endpgm'); self.flush_tail()
        self.kernel_head(names[1]); end = self.label('end')
        self.prologue(end); self.ex_addrs(); self.calc_k0(); a('s_waitcnt lgkmcnt(0)')
        self.w_dma(); self.p2_addrs(); self.gen_B(); self.gen_F32TW()
        a('s_waitcnt vmcnt(0)'); self.w_regs(); a('s_waitcnt lgkmcnt(0)')
        self.p2_issue(); self.p2_compute()
        if self.o['ts']: self.stamp(); a('s_waitcnt vmcnt(0)'); self.stamp(); self.dump_stamps(8)
        a(end+':'); a('s_endpgm'); self.flush_tail()
        self.kernel_head(names[2]); end = self.label('end')
        self.prologue(end); self.ex_addrs(); a('s_waitcnt lgkmcnt(0)'); self.p3_issue()
        self.p3_addrs(); self.p3_soff(); self.gen_F16(); self.gen_M3()
        self.p3_compute()
        if self.o['ts']: self.stamp(); a('s_waitcnt vmcnt(0)'); self.stamp(); self.dump_stamps(16)
        a(end+':'); a('s_endpgm'); self.flush_tail()
        launch = ''.join('; @launch kernel=%s grid=(256,1,1) block=(512,1,1) lds=%d\n' % (n, LDS_TOTAL) for n in names)
        return self.finish(launch, names)

    def flag_addrs(self):
        a = self.a
        if self.o['ib']:
            a('s_lshr_b32 %s, %s, 4' % (sB, sT))
            for dst, wp, gr in ((sF, sW, sB), (sE, sB, sW)):
                a('s_lshl3_add_u32 %s, %s, %s' % (sA, sP, wp)); a('s_lshl_b32 %s, %s, 21' % (sA, sA))
                a('s_lshl_b32 %s, %s, 10' % (sC, gr)); a('s_add_u32 %s, %s, %s' % (sA, sA, sC))
                a('s_add_u32 %s, %s, 0x%x' % (dst, sA, WS_FLAG_IB))
            a('s_and_b32 %s, %s, 15' % (sA, sT)); a('s_add_u32 %s, %s, 8' % (sA, sA))
            a('s_lshl_b32 %s, %s, %s' % (sInc, sCh, sA)); a('s_add_u32 %s, %s, 1' % (sInc, sInc))
            a('v_lshl_add_u32 %s, %s, 2, 8' % (v(V.dummy), v(V.g)))
            return
        if self.o['fl'] != '':
            pol = int(self.o['fl'][1]); mode = self.o['fl'][0]
            a('s_lshr_b32 %s, %s, 4' % (sB, sT))
            for dst, wp, gr in ((sF, sW, sB), (sE, sB, sW)):
                a('s_lshl3_add_u32 %s, %s, %s' % (sA, sP, wp))
                if mode == 'x': a('s_xor_b32 %s, %s, %d' % (sC, sP, pol))
                else: a('s_lshr_b32 %s, %s, 2' % (sC, wp)); a('s_xor_b32 %s, %s, %d' % (sC, sC, pol))
                a('s_lshl1_add_u32 %s, %s, %s' % (sA, sA, sC))
                a('s_lshl3_add_u32 %s, %s, %s' % (sA, sA, gr))
                a('s_lshl_b32 %s, %s, 10' % (sA, sA))
                a('s_add_u32 %s, %s, 0x%x' % (dst, sA, WS_FLAG))
            return
        fs = int(self.o['fstride'])
        a('s_lshl_b32 %s, %s, %d' % (sA, sP, fs+6)); a('s_add_u32 %s, %s, 0x%x' % (sA, sA, WS_FLAG))
        a('s_lshr_b32 %s, %s, 4' % (sB, sT))
        a('s_lshl_b32 %s, %s, %d' % (sF, sW, fs+3)); a('s_add_u32 %s, %s, %s' % (sF, sF, sA))
        a('s_lshl_b32 %s, %s, %d' % (sC, sB, fs)); a('s_add_u32 %s, %s, %s' % (sF, sF, sC))
        a('s_lshl_b32 %s, %s, %d' % (sE, sB, fs+3)); a('s_add_u32 %s, %s, %s' % (sE, sE, sA))
        a('s_lshl_b32 %s, %s, %d' % (sC, sW, fs)); a('s_add_u32 %s, %s, %s' % (sE, sE, sC))
    def g1_probe(self):
        a = self.a
        NB = int(self.o['nb'])
        a('s_lshl3_add_u32 %s, s2, %s' % (sCh2, sW))
        def f():
            a('s_mov_b32 %s, 0x%x' % (sA, WS_FLAG2 + (int(self.o['pbase']) << 21)))
            for side in range(2):
                for k in range(NB):
                    r = 62+side*NB+k
                    a('s_mov_b32 s%d, 0x%x' % (r, SENT))
                    a('s_%s s%d, s[24:25], %s offset:0x%x glc' % (self.o['pop'], r, sA, side*0x2000 + (k & 1)*0x1000 + (k >> 1)*0x4000 + k*0x100))
        self.cond(sCh2, 8*8+PW, f)
    def g1_eval(self):
        a = self.a
        NB = int(self.o['nb'])
        def f():
            a('s_waitcnt lgkmcnt(%d)' % (NB+1))
            a('s_nop %s' % self.o['pnop'])
            a('s_mov_b32 %s, 0' % sA); a('s_mov_b32 %s, 0' % sB)
            for k in range(NB):
                a('s_cmp_lg_u32 s%d, 0x%x' % (62+NB+k, SENT)); a('s_addc_u32 %s, %s, 0' % (sB, sB))
            a('s_cmp_le_u32 %s, %s' % (sB, self.o['pthr']))
            a('s_cselect_b32 s94, 2, 3')
            if self.o['ts']:
                a('s_lshl_b32 %s, %s, 4' % (sA, sA)); a('s_lshl_b32 %s, %s, 8' % (sB, sB)); a('s_or_b32 s94, s94, %s' % sA); a('s_or_b32 s94, s94, %s' % sB)
            if self.o['force'] != '': a('s_mov_b32 s94, %d' % (2+int(self.o['force'])))
            a('s_atomic_or s94, s[20:21], 0x80')
        self.cond(sCh2, 8*8+PW, f)
    def g1_pre(self):
        a = self.a
        self.cond(sW, PW, lambda: a('s_load_dword s95, s[20:21], 0x80'))
    def g1_read(self):
        a = self.a
        def f():
            a('buffer_load_dword %s, %s, %s, 0 offen offset:128 sc1' % (v(V.dummy), v(V.EL), SDBG))
        self.cond(sW, PW, f)
    def g1_wait(self):
        a = self.a
        def f():
            lp, ok = self.label('g1'), self.label('g1ok')
            a('s_mov_b32 %s, 0' % sCnt)
            a(lp+':')
            a('s_waitcnt vmcnt(0)')
            a('v_cmp_ne_u32 vcc, 0, %s' % v(V.dummy))
            a('s_cbranch_vccnz %s' % ok)
            a('buffer_load_dword %s, %s, %s, 0 offen offset:128 sc1' % (v(V.dummy), v(V.EL), SDBG))
            a('s_add_u32 %s, %s, 1' % (sCnt, sCnt))
            a('s_cmp_lt_u32 %s, 0x%x' % (sCnt, SPIN_MAX))
            a('s_cbranch_scc1 %s' % lp)
            a('s_waitcnt vmcnt(0)')
            a(ok+':')
            a('ds_write_b32 %s, %s offset:4' % (v(V.dummy2), v(V.dummy)))
        self.cond(sW, PW, f)
    def g1_use(self):
        a = self.a
        a('s_waitcnt lgkmcnt(8)')
        a('v_readfirstlane_b32 %s, %s' % (sCh, v(V.dummy)))
        if self.o['ts']: a('s_mov_b32 s%d, %s' % (sTS+24, sCh))
        a('s_and_b32 %s, %s, 1' % (sCh, sCh)); a('s_lshl_b32 %s, %s, 13' % (sCh, sCh))
        a('s_xor_b32 %s, %s, %s' % (sEst, sEst, sCh))

    def p2_probe_issue(self):
        a = self.a
        def f():
            if self.o['ib3']:
                a('s_lshr_b32 %s, s2, 5' % sA); a('s_bfe_u32 %s, s2, 0x10004' % sCh2)
                a('s_lshl1_add_u32 %s, %s, %s' % (sA, sA, sCh2)); a('s_lshl_b32 %s, %s, 5' % (sA, sA))
                a('s_and_b32 %s, s2, 31' % sB); a('s_add_u32 %s, %s, %s' % (sA, sA, sB))
                a('s_lshl_b32 %s, %s, 8' % (sA, sA)); a('s_add_u32 %s, %s, 0x%x' % (sDP, sA, WS_FLAG2))
            else:
                a('s_bfe_u32 %s, %s, 0x30003' % (sA, sT)); a('s_lshl3_add_u32 %s, %s, %s' % (sA, sP, sA))
                a('s_lshr_b32 %s, %s, 6' % (sCh2, sT))
                a('s_lshl1_add_u32 %s, %s, %s' % (sA, sA, sCh2))
                a('s_and_b32 %s, %s, 7' % (sB, sT)); a('s_lshl3_add_u32 %s, %s, %s' % (sA, sA, sB))
                a('s_lshl_b32 %s, %s, 10' % (sA, sA)); a('s_add_u32 %s, %s, 0x%x' % (sDP, sA, WS_FLAG2))
            a('s_xor_b32 %s, %s, 0x2000' % (sDM, sDP))
            a('s_mov_b64 s[92:93], 0')
            a('s_atomic_swap s92, s[24:25], %s glc' % sDP)
            a('s_atomic_swap s93, s[24:25], %s glc' % sDM)
        self.cond(sW, PW, f)
    def p2_probe_eval(self):
        a = self.a; T = V.T
        def f():
            if self.o['r2']:
                a('s_waitcnt lgkmcnt(0)')
                a('s_atomic_swap s92, s[24:25], %s glc' % sDP)
                a('s_atomic_swap s93, s[24:25], %s glc' % sDM)
            a('s_waitcnt lgkmcnt(1)')
            a('s_nop %s' % self.o['pnop'])
            a('s_getreg_b32 %s, hwreg(HW_REG_IB_STS, 8, 4)' % sA)
            a('s_cmp_eq_u32 %s, 0' % sA)
            a('s_cselect_b32 %s, 1, 0' % sA)
            a('s_xor_b32 %s, %s, %s' % (sCh2, sCh2, sA))
            if self.o['force'] != '': a('s_xor_b32 %s, %s, %s' % (sCh2, sP, self.o['force']))
            if not self.o['ib3']:
                a('v_mov_b32 %s, %d' % (v(T), CNT)); a('v_mov_b32 %s, %s' % (v(T+1), sCh2))
                a('ds_write_b32 %s, %s offset:4' % (v(T), v(T+1)))
            if self.o['ib3']:
                l = self.label('nv')
                a('s_and_b32 %s, s2, 0x8f' % sA); a('s_cmp_lg_u32 %s, 8' % sA); a('s_cbranch_scc1 %s' % l)
                a('s_cmp_eq_u32 s2, 120'); a('s_cbranch_scc1 %s' % l)
                a('s_lshl_b32 s94, %s, 8' % sCh2); a('s_add_u32 s94, s94, 0x1001')
                a('s_atomic_add s94, s[20:21], 0x0')
                a(l+':')
        self.cond(sW, PW, f)
    def vote_read(self):
        a = self.a
        if self.o['novr']: return
        def f():
            a('s_mov_b32 s22, 256'); a('s_mov_b32 s23, 0x20000')
            a('v_mov_b32 %s, 0' % v(V.EL))
            a('buffer_load_dword %s, %s, %s, 0 offen sc1' % (v(V.dummy), v(V.EL), SDBG))
        self.cond(sW, PW, f)
    def vote_use(self):
        a = self.a; T = V.T
        def f():
            if not self.o['novr']:
                a('v_readfirstlane_b32 %s, %s' % (sA, v(V.dummy)))
                a('s_bfe_u32 %s, %s, 0x40008' % (sB, sA)); a('s_bfe_u32 %s, %s, 0x4000c' % (sC, sA))
                a('s_sub_u32 %s, %s, %s' % (sC, sC, sB))
                a('s_xor_b32 %s, %s, 1' % (sA, sP))
                a('s_cmp_ge_u32 %s, 4' % sB); a('s_cselect_b32 %s, %s, %s' % (sCh2, sA, sCh2))
                a('s_cmp_ge_u32 %s, 4' % sC); a('s_cselect_b32 %s, %s, %s' % (sCh2, sP, sCh2))
            a('v_mov_b32 %s, %s' % (v(T+1), sCh2))
            a('ds_write_b32 %s, %s offset:4' % (v(V.dummy2), v(T+1)))
        self.cond(sW, PW, f)
    def zero3(self):
        a = self.a
        a('s_sub_u32 %s, s2, 16' % sZ)
        a('s_and_b32 %s, %s, 0xffffffef' % (sZ, sZ))
        def f():
            a('s_lshr_b32 %s, s2, 5' % sA)
            a('s_lshl1_add_u32 %s, %s, %s' % (sA, sW, sA))
            a('s_lshl_b32 %s, %s, 13' % (sA, sA)); a('s_add_u32 %s, %s, 0x%x' % (sA, sA, WS_FLAG))
            for i in range(0, 8, 2): a('s_mov_b64 s[%d:%d], 0' % (84+i, 85+i))
            for i in range(8):
                a('s_atomic_swap s%d, s[24:25], %s offset:0x%x glc' % (84+i, sA, i << 10))
        self.cond(sZ, 0, f)
    def ready3(self):
        a = self.a
        def f():
            a('s_mov_b32 s94, 1')
            a('s_waitcnt lgkmcnt(0)')
            a('s_atomic_add s94, s[20:21], 0x0')
        self.cond(sZ, 0, f)
    def flag_addrs3(self):
        a = self.a
        a('s_lshr_b32 %s, %s, 4' % (sB, sT))
        for dst, wp, gr in ((sF, sW, sB), (sE, sB, sW)):
            a('s_lshl4_add_u32 %s, %s, %s' % (sC, wp, gr)); a('s_lshl_b32 %s, %s, 10' % (sC, sC))
            a('s_add_u32 %s, %s, 0x%x' % (dst, sC, WS_FLAG))
    def side3(self):
        a = self.a
        a('s_bfe_u32 %s, %s, 0x1000a' % (sCh2, sRv))
        a('s_xor_b32 %s, %s, %s' % (sCh2, sCh2, sP)); a('s_lshl_b32 %s, %s, 13' % (sCh2, sCh2))
        a('s_add_u32 %s, %s, %s' % (sF, sF, sCh2))
    def side3b(self):
        a = self.a
        a('s_add_u32 %s, %s, %s' % (sE, sE, sCh2))
        a('s_xor_b32 %s, %s, %s' % (sZp, sEst, sCh2))
    def side3c(self):
        a = self.a
        a('s_and_b32 %s, %s, 0x2000' % (sA, sZ)); a('s_xor_b32 %s, %s, %s' % (sA, sA, sCh2)); a('s_add_u32 %s, %s, %s' % (sEld, sEld, sA))
    def p2_choice_read(self):
        self.a('ds_read_b32 %s, %s offset:4' % (v(V.dummy), v(V.dummy2)))
    def p2_choice_use(self):
        a = self.a
        a('s_waitcnt lgkmcnt(8)')
        a('v_readfirstlane_b32 %s, %s' % (sCh2, v(V.dummy)))
        a('s_lshl_b32 %s, %s, 13' % (sA, sCh2))
        a('s_xor_b32 %s, %s, %s' % (sZp, sEst, sA))
        if self.o['ts']: a('s_mov_b32 s%d, %s' % (sTS+24, sCh2))
    def ex_addrs_ib2(self):
        a = self.a; T = V.T
        a('s_lshl_b32 %s, %s, 4' % (sB, sW)); a('s_xor_b32 %s, %s, %s' % (sB, sB, sT)); a('s_lshl_b32 %s, %s, 8' % (sB, sB))
        a('v_lshlrev_b32 %s, 4, %s' % (v(T), v(V.n)))
        a('v_lshl_add_u32 %s, %s, 10, %s' % (v(T), v(V.g), v(T)))
        a('v_xor_b32 %s, %s, %s' % (v(T), sB, v(T)))
        a('v_and_b32 %s, 0x6000, %s' % (v(T+1), v(T)))
        a('v_add_u32 %s, %s, %s' % (v(T), v(T), v(T+1)))
        a('v_lshl_add_u32 %s, %s, 18, %s' % (v(V.Est), v(V.g), v(T)))
        a('v_and_b32 %s, 0xdcff, %s' % (v(V.Eld0), v(T)))
        a('s_lshl3_add_u32 %s, %s, %s' % (sEst, sP, sW)); a('s_lshl_b32 %s, %s, 20' % (sEst, sEst))
        a('s_and_b32 %s, %s, 2' % (sA, sW)); a('s_lshl_b32 %s, %s, 12' % (sA, sA)); a('s_add_u32 %s, %s, %s' % (sEst, sEst, sA))
    def misc_ib2(self):
        a = self.a
        a('s_lshl_b32 %s, %s, 7' % (sEld, sP)); a('s_add_u32 %s, %s, %s' % (sEld, sEld, sT)); a('s_lshl_b32 %s, %s, 16' % (sEld, sEld))
        a('s_and_b32 %s, %s, 15' % (sA, sT)); a('s_add_u32 %s, %s, 8' % (sA, sA))
        a('s_lshl_b32 %s, %s, %s' % (sInc, sCh2, sA)); a('s_add_u32 %s, %s, 1' % (sInc, sInc))
        a('v_lshl_add_u32 %s, %s, 2, 8' % (v(V.dummy), v(V.g)))
        a('s_bfe_i32 %s, %s, 0x10005' % (sZ, sT))
    def ld_addrs_ib2(self):
        a = self.a; T = V.T
        a('s_xor_b32 %s, %s, %s' % (sA, sRv, sZ))
        a('v_lshrrev_b32 %s, %s, %s' % (v(T), v(V.dummy), sA))
        for q in range(4):
            a('v_bfe_u32 %s, %s, %d, 1' % (v(T+1), v(T), q))
            a('v_lshl_add_u32 %s, %s, 13, %s' % (v(T+2+q), v(T+1), v(V.Eld0)))
    def major_post(self):
        a = self.a; T = V.T
        def f():
            a('s_bfe_u32 %s, %s, 0x100008' % (sA, sRv)); a('s_bcnt1_i32_b32 %s, %s' % (sA, sA))
            a('s_cmp_gt_u32 %s, 8' % sA); a('s_cselect_b32 %s, 0x2000, 0' % sA)
            a('v_mov_b32 %s, %s' % (v(T), sA))
            a('ds_write_b32 %s, %s offset:8' % (v(V.dummy2), v(T)))
        self.cond(sW, 0, f)
    def major_read(self):
        self.a('ds_read_b32 %s, %s offset:8' % (v(V.dummy), v(V.dummy2)))
    def major_use(self):
        a = self.a
        a('v_readfirstlane_b32 %s, %s' % (sCh2, v(V.dummy)))
        a('s_xor_b32 %s, %s, %s' % (sZp, sEst, sCh2))
    def major_use2(self):
        a = self.a
        a('s_and_b32 %s, %s, 0x2000' % (sA, sZ)); a('s_xor_b32 %s, %s, %s' % (sA, sA, sCh2)); a('s_add_u32 %s, %s, %s' % (sEld, sEld, sA))
        a('s_lshr_b32 %s, %s, 4' % (sB, sT))
        for dst, wp, gr in ((sF, sW, sB), (sE, sB, sW)):
            a('s_lshl3_add_u32 %s, %s, %s' % (sA, sP, wp)); a('s_lshl4_add_u32 %s, %s, %s' % (sA, sA, gr)); a('s_lshl_b32 %s, %s, 10' % (sA, sA))
            a('s_add_u32 %s, %s, %s' % (sA, sA, sCh2)); a('s_add_u32 %s, %s, 0x%x' % (dst, sA, WS_FLAG2))

    def gz_issue(self):
        a = self.a
        a('s_sub_u32 %s, s2, 16' % sZ)
        a('s_and_b32 %s, %s, 0xffffffef' % (sZ, sZ))
        def f():
            a('s_lshr_b32 %s, s2, 5' % sZp)
            a('s_lshl1_add_u32 %s, %s, %s' % (sCh, sW, sZp))
            a('s_lshl_b32 %s, %s, 13' % (sCh, sCh)); a('s_add_u32 %s, %s, 0x%x' % (sCh, sCh, WS_FLAG))
            for i in range(0, 8, 2): a('s_mov_b64 s[%d:%d], 0' % (84+i, 85+i))
            for i in range(8):
                a('s_atomic_swap s%d, s[24:25], %s offset:0x%x glc' % (84+i, sCh, i << 10))
        self.cond(sZ, 0, f)
    def gz_publish(self):
        a = self.a
        def f():
            a('s_waitcnt lgkmcnt(0)')
            a('s_memtime s[84:85]')
            a('s_mov_b32 s88, 0')
            a('s_waitcnt lgkmcnt(0)')
            a('s_atomic_add s88, s[24:25], %s glc' % sCh)
            a('s_waitcnt lgkmcnt(0)')
            a('s_memtime s[86:87]')
            a('s_mul_i32 %s, %s, 13' % (sZp, sZp)); a('s_add_u32 %s, %s, 5' % (sZp, sZp))
            a('s_waitcnt lgkmcnt(0)')
            a('s_sub_u32 s84, s86, s84'); a('s_lshr_b32 s84, s84, 3'); a('s_min_u32 s84, s84, 0x3ff')
            a('s_lshl_b32 s84, s84, %s' % sZp); a('s_add_u32 s84, s84, 1')
            a('s_atomic_add s84, s[20:21], 0x0')
        self.cond(sZ, 0, f)
    def gz_read(self):
        a = self.a
        a('v_mov_b32 %s, 0' % v(V.EL))
        a('buffer_load_dword %s, %s, %s, 0 offen sc1' % (v(V.dummy), v(V.EL), SDBG))
    def gz_check(self):
        a = self.a; l0, l1 = self.label('gz'), self.label('gzok')
        a('s_waitcnt vmcnt(0)')
        a('v_readfirstlane_b32 %s, %s' % (sRv, v(V.dummy)))
        a('s_bitcmp1_b32 %s, 4' % sRv)
        a('s_cbranch_scc1 %s' % l1)
        a('s_mov_b32 %s, 0' % sCnt)
        a(l0+':')
        a('buffer_load_dword %s, %s, %s, 0 offen sc1' % (v(V.dummy), v(V.EL), SDBG))
        a('s_add_u32 %s, %s, 1' % (sCnt, sCnt))
        a('s_cmp_gt_u32 %s, 0x%x' % (sCnt, SPIN_MAX))
        a('s_waitcnt vmcnt(0)')
        a('v_readfirstlane_b32 %s, %s' % (sRv, v(V.dummy)))
        a('s_cbranch_scc1 %s' % l1)
        a('s_bitcmp0_b32 %s, 4' % sRv)
        a('s_cbranch_scc1 %s' % l0)
        a(l1+':')
        a('s_bfe_u32 %s, %s, 0xd0005' % (sA, sRv)); a('s_bfe_u32 %s, %s, 0xd0012' % (sB, sRv))
        a('s_cmp_lt_u32 %s, %s' % (sB, sA))
        a('s_cselect_b32 %s, 0x2000, 0' % sCh)
        if self.o['force'] != '': a('s_mov_b32 %s, %d' % (sCh, int(self.o['force']) << 13))
        a('s_xor_b32 %s, %s, %s' % (sEst, sEst, sCh))
        if self.o['ts']: a('s_mov_b32 s%d, %s' % (sTS+24, sRv))
    def gz_flag_addrs(self):
        a = self.a
        a('s_xor_b32 %s, %s, %s' % (sEld, sEld, sCh))
        a('s_lshr_b32 %s, %s, 4' % (sB, sT))
        if not self.o['optx']:
            for dst, wp, gr in ((sF, sW, sB), (sE, sB, sW)):
                a('s_and_b32 %s, %s, 3' % (sC, wp)); a('s_lshl2_add_u32 %s, %s, %s' % (sC, sP, sC))
                a('s_lshr_b32 %s, %s, 2' % (sA, wp)); a('s_lshl1_add_u32 %s, %s, %s' % (sC, sC, sA))
                a('s_lshl3_add_u32 %s, %s, %s' % (sC, sC, gr)); a('s_lshl_b32 %s, %s, 10' % (sC, sC))
                a('s_xor_b32 %s, %s, %s' % (sC, sC, sCh))
                a('s_add_u32 %s, %s, 0x%x' % (dst, sC, WS_FLAG))
            return
        a('s_lshl_b32 %s, %s, 13' % (sA, sP)); a('s_xor_b32 %s, %s, %s' % (sA, sA, sCh)); a('s_add_u32 %s, %s, 0x%x' % (sA, sA, WS_FLAG))
        for dst, wp, gr in ((sF, sW, sB), (sE, sB, sW)):
            a('s_lshl4_add_u32 %s, %s, %s' % (sC, wp, gr)); a('s_lshl_b32 %s, %s, 10' % (sC, sC))
            a('s_add_u32 %s, %s, %s' % (dst, sC, sA))

    def zero_flags_ib(self):
        a = self.a
        def f():
            a('s_waitcnt lgkmcnt(0)')
            a('s_lshl_b32 %s, %s, 13' % (sA, sCh)); a('s_add_u32 %s, %s, %s' % (sA, sA, sEst)); a('s_add_u32 %s, %s, 0x%x' % (sA, sA, WS_FLAG_IB))
            for i in range(0, 8, 2): a('s_mov_b64 s[%d:%d], 0' % (84+i, 85+i))
            for i in range(8):
                a('s_atomic_swap s%d, s[24:25], %s offset:0x%x glc' % (84+i, sA, i << 10))
        self.cond(sT, 1, f)
    def set_ready_ib(self):
        a = self.a
        def f():
            a('s_add_u32 %s, %s, 8' % (sA, sW)); a('s_lshl_b32 %s, %s, %s' % (sZ, sCh, sA)); a('s_add_u32 %s, %s, 1' % (sZ, sZ))
            a('s_waitcnt lgkmcnt(0)')
            a('s_atomic_add %s, s[20:21], %s' % (sZ, sRd))
        self.cond(sT, 1, f)
    def flag_side(self):
        a = self.a
        a('s_lshr_b32 %s, %s, 8' % (sRv, sRv))
        a('s_lshr_b32 %s, %s, %s' % (sA, sRv, sW)); a('s_and_b32 %s, %s, 1' % (sA, sA)); a('s_lshl_b32 %s, %s, 13' % (sA, sA)); a('s_add_u32 %s, %s, %s' % (sF, sF, sA))
    def flag_side2(self):
        a = self.a
        a('s_lshr_b32 %s, %s, 4' % (sB, sT))
        a('s_lshr_b32 %s, %s, %s' % (sA, sRv, sB)); a('s_and_b32 %s, %s, 1' % (sA, sA)); a('s_lshl_b32 %s, %s, 13' % (sA, sA)); a('s_add_u32 %s, %s, %s' % (sE, sE, sA))
    def zero_flags(self):
        a = self.a
        a('s_sub_u32 %s, s2, 16' % sZ)
        a('s_and_b32 %s, %s, 0xffffffef' % (sZ, sZ))
        def f():
            fs = int(self.o['fstride'])
            a('s_lshr_b32 %s, s2, 5' % sZp)
            a('s_lshl3_add_u32 %s, %s, %s' % (sA, sZp, sW))
            if self.o['fl'] != '':
                pol = int(self.o['fl'][1]); mode = self.o['fl'][0]; fs = 10
                if mode == 'x': a('s_xor_b32 %s, %s, %d' % (sC, sZp, pol))
                else: a('s_lshr_b32 %s, %s, 2' % (sC, sW)); a('s_xor_b32 %s, %s, %d' % (sC, sC, pol))
                a('s_lshl1_add_u32 %s, %s, %s' % (sA, sA, sC))
            a('s_lshl_b32 %s, %s, %d' % (sA, sA, fs+3)); a('s_add_u32 %s, %s, 0x%x' % (sA, sA, WS_FLAG))
            for i in range(0, 8, 2): a('s_mov_b64 s[%d:%d], 0' % (84+i, 85+i))
            for i in range(8):
                a('s_atomic_swap s%d, s[24:25], %s offset:0x%x glc' % (84+i, sA, i << fs))
            a('s_lshl_b32 %s, %s, 7' % (sZp, sZp))
        self.cond(sZ, 0, f)
    def set_ready(self):
        a = self.a
        def f():
            a('s_mov_b32 %s, 1' % sInc)
            a('s_waitcnt lgkmcnt(0)')
            a('s_atomic_add %s, s[20:21], %s' % (sInc, sZp))
        self.cond(sZ, 0, f)
    def ready_issue(self):
        self.a('s_load_dword %s, s[20:21], %s' % (sRv, sRd))
    def ready_check(self):
        a = self.a; l0, l1 = self.label('rdy'), self.label('rdyok')
        def notready():
            if self.o['g1']: a('s_cmp_lt_u32 %s, 16' % sRv)
            elif self.o['ib3']: a('s_and_b32 %s, %s, 0xff' % (sA, sRv)); a('s_cmp_lt_u32 %s, 23' % sA)
            else: a('s_bitcmp0_b32 %s, 3' % sRv)
        notready()
        a('s_cbranch_scc1 %s' % l0)
        a(l1+':')
        def tail():
            lp = self.label('rdyl')
            a(l0+':')
            a('s_mov_b32 %s, 0' % sCnt)
            a('v_mov_b32 %s, 0' % v(V.O+1))
            a(lp+':')
            a('buffer_load_dword %s, %s, %s, %s offen sc1' % (v(V.O), v(V.O+1), SDBG, sRd))
            a('s_add_u32 %s, %s, 1' % (sCnt, sCnt))
            a('s_cmp_gt_u32 %s, 0x%x' % (sCnt, SPIN_MAX))
            a('s_waitcnt vmcnt(0)')
            a('v_readfirstlane_b32 %s, %s' % (sRv, v(V.O)))
            a('s_cbranch_scc1 %s' % l1)
            notready()
            a('s_cbranch_scc1 %s' % lp)
            a('s_branch %s' % l1)
        self.tail.append(tail)
    def set_flag(self, ex):
        a = self.a
        if not ((self.o['ib'] or self.o['ib2']) and ex == 0): a('s_mov_b32 %s, 0x%x' % (sInc, 1 << (24*ex)))
        a('s_atomic_add %s, s[24:25], %s' % (sInc, sF))
    def poll(self, ex, under=None):
        a = self.a; lp, ok = self.label('poll'), self.label('pollok')
        if under:
            a('s_mov_b32 %s, 0' % sRv)
            a('s_atomic_add %s, s[24:25], %s glc' % (sRv, sE))
            under()
            a('s_waitcnt lgkmcnt(0)')
            a('s_bitcmp1_b32 %s, %d' % (sRv, 4+24*ex))
            a('s_cbranch_scc1 %s' % ok)
        a('s_mov_b32 %s, 0' % sCnt)
        a(lp+':')
        a('s_mov_b32 %s, 0' % sRv)
        a('s_atomic_add %s, s[24:25], %s glc' % (sRv, sE))
        a('s_add_u32 %s, %s, 1' % (sCnt, sCnt))
        a('s_cmp_gt_u32 %s, 0x%x' % (sCnt, SPIN_MAX))
        a('s_waitcnt lgkmcnt(0)')
        a('s_cbranch_scc1 %s' % ok)
        if self.o['slp']:
            a('s_bitcmp1_b32 %s, %d' % (sRv, 4+24*ex))
            a('s_cbranch_scc1 %s' % ok)
            a('s_sleep %s' % self.o['slp'])
            a('s_branch %s' % lp)
        else:
            a('s_bitcmp0_b32 %s, %d' % (sRv, 4+24*ex))
            a('s_cbranch_scc1 %s' % lp)
        a(ok+':')
        if self.o['pbar']: a('s_barrier')
    def code_pf(self, name):
        a = self.a
        l = self.label('pc')
        a('s_getpc_b64 s[28:29]')
        a(l+':')
        a('s_sub_u32 s28, s28, %s-%s' % (l, name))
        a('s_subb_u32 s29, s29, 0')
        a('v_lshlrev_b32 %s, 5, v0' % v(V.O+6))
        a('global_load_dword %s, %s, s[28:29]' % (v(V.dummy), v(V.O+6)))

    def code_spf(self, name):
        a = self.a
        l = self.label('pc')
        a('s_getpc_b64 s[28:29]')
        a(l+':')
        a('s_sub_u32 s28, s28, %s-%s' % (l, name))
        a('s_subb_u32 s29, s29, 0')
        a('s_lshr_b32 %s, s2, 4' % sA)
        a('s_lshl3_add_u32 %s, %s, %s' % (sA, sA, sW))
        a('s_lshl_b32 %s, %s, 7' % (sA, sA))
        a('s_load_dword s94, s[28:29], %s' % sA)

    def ifelse(self, reg, val, feq, fne, eq_first=False):
        a = self.a; l0, l1 = self.label('ie'), self.label('iend')
        if eq_first:
            a('s_cmp_lg_u32 %s, %d' % (reg, val)); a('s_cbranch_scc1 %s' % l0)
            feq(); a('s_branch %s' % l1); a(l0+':'); fne()
        else:
            a('s_cmp_eq_u32 %s, %d' % (reg, val)); a('s_cbranch_scc1 %s' % l0)
            fne(); a('s_branch %s' % l1); a(l0+':'); feq()
        a(l1+':')
    def touch(self, rnd):
        a = self.a
        a('s_mov_b64 exec, 0')
        for k in range(7):
            a('s_cmp_eq_u32 %s, %d' % (sW, k)); a('s_cbranch_scc1 stub_%d' % (8*rnd+k))
        a('s_branch stub_%d' % (8*rnd+7))
        a('ret_%d:' % rnd)
        a('s_mov_b64 exec, -1')

    def cond(self, reg, val, f):
        a = self.a; l = self.label('c')
        a('s_cmp_lg_u32 %s, %d' % (reg, val)); a('s_cbranch_scc1 %s' % l)
        f()
        a(l+':')

    def build_one(self):
        a = self.a; o = self.o
        name = NAME + '_kernel'
        self.kernel_head(name); end = self.label('end')
        self.prologue1(end)
        wA, wB = o['wA'], o['wB']
        def wat(pos, rows=(0, 1, 2, 3)):
            f = lambda: [self.w_dma1(i) for i in rows]
            if wA == pos and wB == pos: f()
            elif wA == pos: self.cond(sP, 0, f)
            elif wB == pos: self.cond(sP, 1, f)
        self.wat = wat
        bd = int(o['bdelay'])
        if o['touch'] == 'pre': self.touch(0)
        self.mark('touched')
        a('s_waitcnt lgkmcnt(0)')
        self.mark('karg')
        if o['wsoff']:
            a('s_add_u32 s24, s24, 0x%x' % (int(o['wsoff']) << 20)); a('s_addc_u32 s25, s25, 0')
        gz = o['gz']
        g1 = o['g1']
        if g1: self.g1_probe(); self.g1_pre(); self.zero3(); a('s_mov_b32 %s, 0' % sRd)
        elif gz: self.gz_issue()
        elif o['ib']: self.probe_issue()
        elif o['ib3']: self.p2_probe_issue(); self.zero3(); a('s_mov_b32 %s, 0' % sRd)
        elif o['ib2']: self.p2_probe_issue(); self.zero_flags()
        else: self.zero_flags()
        misc = lambda: (self.srds(), self.calc_k0(), self.w_prep(), 0 if g1 else self.gz_flag_addrs() if gz else self.flag_addrs3() if o['ib3'] else self.flag_addrs(), self.misc_ib2() if o['ib2'] else 0)
        if wB == 'first':
            def fb():
                misc(); self.w_dma()
                if bd == 0: self.p1_issue()
            self.ifelse(sP, 1, fb, self.p1_issue)
        elif bd: self.cond(sP, 0, self.p1_issue)
        else: self.p1_issue()
        if o['ib']: self.probe_eval(); self.zero_flags_ib()
        if g1: self.spec_early(); self.g1_eval(); a('s_mov_b32 s22, 256'); a('s_mov_b32 s23, 0x20000'); a('v_mov_b32 %s, 0' % v(V.EL))
        if gz: self.gz_publish(); a('s_mov_b32 s22, 256'); a('s_mov_b32 s23, 0x20000')
        if o['touch'] == 'post': self.touch(0)
        if o['touch']: self.cond(sT, 0, lambda: self.touch(1))
        if o['ib2']:
            if o['r2']: self.p1_addrs(); self.gen_F16(); self.p2_probe_eval(); self.coop_init()
            else: self.p2_probe_eval(); self.p1_addrs(); self.gen_F16(); self.coop_init()
        else: self.p1_addrs(); self.gen_F16(); self.coop_init()
        if bd == 1: self.cond(sP, 1, self.p1_issue)
        self.gen_M2()
        if o['ib']: self.ex_addrs_ib(); self.set_ready_ib()
        elif gz: self.ex_addrs()
        elif g1: self.ex_addrs(); self.ready3()
        elif o['ib3']: self.ex_addrs_ib2(); self.ready3()
        elif o['ib2']: self.ex_addrs_ib2(); self.set_ready()
        else: self.ex_addrs(); self.set_ready()
        X = [misc, self.coop_gen, lambda: self.gen_B(True, False), lambda: (self.p2_addrs(), self.w_addr())]
        nearly = max(0, bd-2)
        def early():
            for f in X[(1 if wB == 'first' else 0):nearly]: f()
            self.p1_issue()
        if bd >= 2: self.cond(sP, 1, early)
        self.mark('w1')
        def Xat(k):
            if k < nearly or (k == 0 and wB == 'first'): self.cond(sP, 0, X[k])
            else: X[k]()
        if gz: self.p1_compute(0, self.gz_read, None, lambda: (self.gz_check(), self.spec_early()))
        elif g1:
            if wA == 'c1': misc()
            self.p1_compute(0, lambda: self.g1_read(), (self.w_dma if wA == 'c1' else None), self.g1_use, self.p2_choice_read, self.g1_wait)
        elif o['ib3']:
            self.vote_read()
            self.p1_compute(0, lambda: (self.vote_use(), self.spec_early()), None, self.p2_choice_use, self.p2_choice_read)
        elif o['ib2']: self.p1_compute(0, self.spec_early, None, self.p2_choice_use, self.p2_choice_read)
        else:
            def h1():
                if o['tlb1']:
                    a('s_add_u32 %s, %s, 0x%x' % (sA, sEst, self.ubase(0)))
                    a('v_and_b32 %s, 3, %s' % (v(V.T), v(V.lane)))
                    a('v_lshl_add_u32 %s, %s, 15, %s' % (v(V.T), v(V.T), v(V.Est)))
                    a('buffer_load_dword %s, %s, %s, %s offen' % (v(V.dummy), v(V.T), SWS, sA))
            if o['tlb1']: h1()
            self.p1_compute(1 if o['tlb1'] else 0, self.spec_early)
        self.stamp()
        if not gz: self.ready_issue()
        if wA != 'c1': Xat(0)
        n = 0
        if wA == 'postS1':
            assert wB == wA
            self.w_dma(); n = 4
        if wA == 'half':
            self.w_dma1(0); self.w_dma1(1); n = 2
        if g1: self.gz_flag_addrs()
        Xat(1)
        self.coop_post()
        self.mark('w2a')
        a('s_waitcnt vmcnt(%d) lgkmcnt(0)' % n)
        self.stamp()
        if not gz: self.ready_check()
        if o['ib']: self.flag_side()
        if o['ib3']: self.side3()
        self.mark('rdy')
        self.set_flag(0)
        if o['ib']: self.flag_side2()
        if o['ib3']: self.side3b()
        def under1():
            self.w_sload()
            if wA == 'postF': self.w_dma()
            if wA == 'half': self.w_dma1(2); self.w_dma1(3)
            if o['tlb2']:
                a('s_add_u32 %s, %s, 0x%x' % (sA, sEst, self.ubase(1)))
                a('v_and_b32 %s, 3, %s' % (v(V.T), v(V.lane)))
                a('v_lshl_add_u32 %s, %s, 15, %s' % (v(V.T), v(V.T), v(V.Est)))
                a('buffer_load_dword %s, %s, %s, %s offen' % (v(V.dummy), v(V.T), SWS, sA))
            Xat(2); self.B_dup()
            Xat(3)
            self.w_special()
        self.poll(0, under1)
        self.stamp()
        if self.o.get('fine'):
            a('s_memrealtime s[%d:%d]' % (sTS+2*self.nts, sTS+2*self.nts+1)); self.nts += 1
            self.fstamp()
        if o['ib']: self.ld_addrs_ib()
        if o.get('da') == 'votes':
            a('s_bfe_u32 s60, %s, 0x100008' % sRv); a('s_bcnt1_i32_b32 s60, s60')
            a('s_cmp_eq_u32 %s, 0' % sCh2); a('s_sub_u32 s58, 16, s60'); a('s_cmp_eq_u32 %s, 0' % sCh2); a('s_cselect_b32 s60, s60, s58')
            if 'dw' in o: a('s_cmp_eq_u32 %s, %s' % (sW, o['dw'])); a('s_cselect_b32 s60, s60, 0')
            a('s_mul_i32 s60, s60, 25'); a('s_mov_b32 s58, 0')
        if o['ib2']: self.ld_addrs_ib2()
        self.p2_issue()
        if o['ib3']: self.side3c()
        elif o['ib2']: self.major_post()
        self.coop_wait(); self.coop_read()
        self.p2_addrs2()
        a('s_waitcnt vmcnt(4)')
        self.w_edge()
        self.p2_compute(True)
        self.stamp()
        if o['ib2'] and not o['ib3']: self.major_use2()
        self.gen_M3()
        self.mark('w3a')
        a('s_waitcnt vmcnt(0)')
        self.stamp()
        self.set_flag(1)
        self.poll(1, self.p3_addrs)
        self.stamp()
        self.p3_issue()
        self.p3_soff()
        self.p3_compute()
        if 'da' in o:
            self.stamp(); a('s_waitcnt vmcnt(0)'); self.stamp()
            lp = self.label('dg')
            a('s_waitcnt lgkmcnt(0)')
            a('s_sub_u32 %s, s60, s58' % sA)
            a('s_lshl_b32 %s, %s, 2' % (sA, sA))
            if 'dp' in o:
                a('s_cmp_eq_u32 %s, %s' % (sP, o['dp'])); a('s_cselect_b32 %s, %s, 0' % (sA, sA))
            a('s_add_u32 %s, %s, 3000' % (sA, sA))
            a(lp+':')
            a('s_memrealtime s[28:29]')
            a('s_waitcnt lgkmcnt(0)')
            a('s_sub_u32 %s, s28, s56' % sB)
            a('s_cmp_lt_u32 %s, %s' % (sB, sA))
            a('s_cbranch_scc1 %s' % lp)
        if o['ts']:
            self.stamp(); a('s_waitcnt vmcnt(0)'); self.stamp()
            if 'diag' in o:
                i = int(o['diag']); lp = self.label('dg')
                a('s_waitcnt lgkmcnt(0)')
                if 'xw' in o:
                    a('s_getreg_b32 %s, hwreg(HW_REG_XCC_ID, 0, 4)' % sA)
                    a('s_sub_u32 %s, %s, s2' % (sA, sA)); a('s_and_b32 %s, %s, 7' % (sA, sA)); a('s_mul_i32 %s, %s, 400' % (sA, sA))
                    if int(o['xw']) >= 0:
                        a('s_cmp_eq_u32 s2, %s' % o['xw']); a('s_cselect_b32 %s, %s, 0' % (sA, sA))
                else:
                    a('s_sub_u32 %s, s%d, s%d' % (sA, sTS+2*i, sTS+2*int(o.get('dj', 0))))
                    a('s_lshl_b32 %s, %s, 2' % (sA, sA))
                    if 'dp' in o:
                        a('s_cmp_eq_u32 %s, %s' % (sP, o['dp'])); a('s_cselect_b32 %s, %s, 0' % (sA, sA))
                a('s_add_u32 %s, %s, 3000' % (sA, sA))
                a(lp+':')
                a('s_memrealtime s[28:29]')
                a('s_waitcnt lgkmcnt(0)')
                a('s_sub_u32 %s, s28, s%d' % (sB, sTS))
                a('s_cmp_lt_u32 %s, %s' % (sB, sA))
                a('s_cbranch_scc1 %s' % lp)
            else:
                if o['ib'] or o['gz'] or o['ib2'] or o['g1']: self.nts += 1
                self.dump_stamps(0)
        a(end+':'); a('s_endpgm'); self.flush_tail()
        if o['touch']: self.insert_stubs(name)
        a.raw('.fill (%s+16384-.)/4, 4, 0xbf810000' % name)
        launch = '; @launch grid=(256,1,1) block=(512,1,1) lds=%d\n' % LDS_TOTAL
        return self.finish(launch, [name])

    def insert_stubs(self, name):
        import subprocess, re
        from asmlib import Ins
        a = self.a
        txt = '.amdgcn_target "amdgcn-amd-amdhsa--gfx950"\n.text\n' + a.text() + ''.join('stub_%d:\n' % k for k in range(16)) + 's_endpgm\nspec_tab:\n'
        open('pass1.s', 'w').write(txt)
        subprocess.check_call(['clang', '-x', 'assembler', '-target', 'amdgcn-amd-amdhsa', '-mcpu=gfx950', '-c', 'pass1.s', '-o', 'pass1.o'])
        dis = subprocess.check_output(['llvm-objdump', '-d', '--mcpu=gfx950', 'pass1.o']).decode()
        addrs = [int(m.group(1), 16) for m in re.finditer(r'// ([0-9A-F]{12}):', dis)]
        real = [i for i, x in enumerate(a.ins) if x.kind != 'none']
        assert len(addrs) == len(real) + 1, (len(addrs), len(real))
        size = {real[k]: addrs[k+1] - addrs[k] for k in range(len(real))}
        pos = ENTRY_OFF; nxt = ENTRY_OFF + 1024 - 256
        nxt = (nxt + 1023)//1024*1024
        out = []; k = 0; prev = None; ez = False
        for i, x in enumerate(a.ins):
            if i in size:
                glued = prev is not None and (prev.op == 's_getpc_b64' or 'rel32' in x.text)
                if prev is not None and prev.text.strip() == 's_mov_b64 exec, 0': ez = True
                if prev is not None and prev.text.strip() == 's_mov_b64 exec, -1': ez = False
                glued = glued or ez
                if pos >= nxt and k < 16 and not glued:
                    out.append(Ins('stub_%d:' % k)); out.append(Ins('s_cbranch_execz ret_%d' % (k >> 3)))
                    pos += 4; k += 1; nxt += 1024
                pos += size[i]; prev = x
            out.append(x)
        self.code_end = pos
        while k < 16:
            out.append(Ins('stub_%d:' % k)); out.append(Ins('s_branch ret_%d' % (k >> 3))); k += 1
        a.ins = out

    def finish(self, launch, names):
        hdr = '; GFNet spectral filter (two heads): 2-D FFT via bf16 MFMA DFT stages. Generated by dev/gen.py\n' + launch
        s = hdr + '.amdgcn_target "amdgcn-amd-amdhsa--gfx950"\n.text\n' + self.a.text()
        s += '.section .rodata,"a"\n' + '\n'.join(self.kd(n) for n in names) + '\n' + self.spec_table() + '\n'
        return s

if __name__ == '__main__':
    mode = sys.argv[1]; out = sys.argv[2]
    opt = {}
    for kv in sys.argv[3:]:
        k, x = kv.split('=')
        opt[k] = {'True': True, 'False': False}.get(x, x.replace('+', ' '))
    g = Gen(mode, **opt)
    s = g.build_three() if mode == 'three' else g.build_one()
    assert g.a.verify() == 0
    open(out, 'w').write(s)
    print('vgprs', NVGPR, 'lds', LDS_TOTAL, 'nops', g.a.nops, 'lines', len(g.a.ins))
```

```python
import sys, struct, math
import numpy as np
from asmlib import Asm

NAME = 'concat_heads__spectral_gfnet__spectral_gfnet__prompt'

def f2u(x): return struct.unpack('<I', struct.pack('<f', x))[0]
def lit(x): return '0x%08x' % f2u(x)
def bf16bits(x):
    u = f2u(float(x)); return ((u + 0x7FFF + ((u >> 16) & 1)) >> 16) & 0xFFFF
def sigma(m): return (m & 1) | ((m >> 1) & 1) << 3 | ((m >> 2) & 1) << 1 | ((m >> 3) & 1) << 2 | (m & 16)

S11 = 2.0**-11
SPIN_MAX = 0x4000
ENTRY_OFF = 0x300
SENT = 0x13572468
WS_FLAG_IB = 32 << 20
WS_FLAG2 = 33 << 20
PW = 7
sCh2 = 's100'
R0 = 0
R1 = 33024
WL = 66048
SCR = WL + 8*4*1056
SCR_B = SCR + 36*256
TABL = SCR_B + 8192
CNT = TABL + 16384
LDS_TOTAL = CNT + 64
WS_U1 = 0
WS_U2 = 8 << 20
WS_FLAG = 32 << 20
WS_TS = 72 << 20
WS_SIZE = 80 << 20

class V: pass
_n = [0]
def alloc(n, align=1):
    b = (_n[0] + align - 1)//align*align
    _n[0] = b + n
    return b
V.tid = alloc(1); V.lane = alloc(1)
for nm in 'g n Xoff Est X0w X0r0 X0r1 X1w X1r X2w X2r WP WM l16 dummy dummy2'.split(): setattr(V, nm, alloc(1))
V.Ooff, V.X3w0, V.X3w1, V.X3r = V.Xoff, V.X0w, V.X0r0, V.X0r1
V.T = alloc(10, 1)
V.EL = alloc(4); V.Eld = V.EL+3; V.Eld0 = V.EL+3
V.O = alloc(16, 4)
V.DA = alloc(32, 4)
V.DB = alloc(32, 4)
V.L = V.DB
V.F16 = alloc(8, 4)
V.M2 = alloc(16, 4)
V.F32 = alloc(32, 4)
V.TW = alloc(32, 4)
V.W = alloc(32, 4)
V.B = alloc(12, 4)
V.Bp = alloc(8, 4)
V.WF = alloc(4)
NVGPR = _n[0]
assert NVGPR <= 256, NVGPR
def v(i): return 'v%d' % i
def vr(i, n): return 'v[%d:%d]' % (i, i+n-1)

SX, SWR, SWI, SOUT, SDBG, SWS = 's[4:7]', 's[8:11]', 's[12:15]', 's[16:19]', 's[20:23]', 's[24:27]'
sP, sT, sW, sSB, sCB, sK0 = 's30', 's31', 's32', 's33', 's34', 's35'
sKP, sKM = 's36', 's37'
sA, sB, sC, sD, sE, sF = 's40', 's41', 's42', 's43', 's44', 's45'
sEst, sEld, sCnt, sSpec = 's46', 's47', 's48', 's49'
sO = ['s52', 's53', 's54', 's55']
sRd, sRv, sInc, sWL = 's38', 's39', 's50', 's51'
ZT = 16
sDP, sDM, sZ, sZp, sCh = 's96', 's97', 's98', 's99', 's95'
sTS = 56

class Gen:
    def __init__(self, mode='one', **opt):
        self.mode = mode
        self.o = dict(ldx='', ldw='', st1='sc1', st2='sc1', sto='sc1', ld1='sc1', ld2='sc1', ts=False, stagger=True, pf=False, spf=False, touch='pre', fst='sc1', fld='sc1', slp='', fsh='', pbar=False, shear=True, prio=True, wA='postX1', wB='postX1', bdelay='4', optx=False, numa='', fl='', ib=False, wsoff='', tlb1=False, tlb2=False, ib2=False, g1=False, nb='6', pthr='2', pop='load_dword', pbase='0', r2=False, novr=False, ib3=False, pnop='15', gz=False, force='', skew=True, fstride=12)
        self.o.update(opt)
        self.a = Asm()
        self.lab = 0
        self.nts = 0
        self.tail = []

    def tstride(self): return 65536 if (self.o['numa'] != '' or self.o['ib'] or self.o['ib2']) else 32768
    def ubase(self, ex): return (ex << 24) if self.o['ib2'] else (ex << 20) if self.o['ib'] else (WS_U2 if ex else WS_U1)
    def eld(self, q, ex=0): return v(V.T+2+q) if (self.o['ib2'] and ex == 0) else v(V.EL+q) if self.o['ib'] else v(V.Eld)
    def est(self): return sZp if self.o['ib2'] else sEst
    def label(self, p='L'):
        self.lab += 1
        return '%s_%d' % (p, self.lab)

    def stamp(self):
        if 'da' in self.o:
            self.sid = getattr(self, 'sid', -1) + 1
            self.mark('s%d' % self.sid); return
        if not self.o['ts'] or self.o.get('fine'): return
        self.a('s_memrealtime s[%d:%d]' % (sTS+2*self.nts, sTS+2*self.nts+1))
        self.nts += 1

    def mark(self, nm):
        for key, reg in (('da', 58), ('db', 60)):
            if self.o.get(key) == nm: self.a('s_memrealtime s[%d:%d]' % (reg, reg+1))
    def fstamp(self):
        if not self.o.get('fine'): return
        self.a('s_memtime s[%d:%d]' % (sTS+2*self.nts, sTS+2*self.nts+1))
        self.nts += 1

    def dump_stamps(self, slot0=0):
        if not self.o['ts']: return
        a = self.a
        a('s_waitcnt lgkmcnt(0)')
        a('s_lshl_b32 %s, s2, 3' % sA); a('s_add_u32 %s, %s, %s' % (sA, sA, sW)); a('s_lshl_b32 %s, %s, 7' % (sA, sA))
        a('s_add_u32 %s, %s, 0x%x' % (sA, sA, WS_TS + slot0*4))
        a('s_mov_b64 exec, 1')
        a('v_mov_b32 %s, 0' % v(V.T+1))
        for i in range(self.nts):
            a('v_mov_b32 %s, s%d' % (v(V.T), sTS+2*i))
            a('buffer_store_dword %s, %s, %s, %s offen offset:%d' % (v(V.T), v(V.T+1), SWS, sA, 4*i))
            a('s_nop 1')
        a('s_mov_b64 exec, -1')
        self.nts = 0

    def prologue(self, end):
        a = self.a
        a('s_cmp_ge_u32 s2, 0x100')
        a('s_cbranch_scc1 %s' % end)
        self.stamp()
        a('s_bfe_u32 %s, s2, 0x10003' % sP)
        a('s_mul_i32 s3, %s, 24' % sP)
        a('s_add_u32 s28, s0, s3')
        a('s_addc_u32 s29, s1, 0')
        a('s_load_dwordx2 s[4:5], s[28:29], 0x0')
        a('s_load_dwordx2 s[8:9], s[28:29], 0x8')
        a('s_load_dwordx2 s[12:13], s[28:29], 0x10')
        a('s_load_dwordx2 s[16:17], s[0:1], 0x30')
        a('s_load_dwordx2 s[20:21], s[0:1], 0x38')
        a('s_load_dwordx2 s[24:25], s[0:1], 0x40')
        a('v_lshrrev_b32 %s, 6, v0' % v(V.T))
        a('v_and_b32 %s, 63, v0' % v(V.lane))
        a('v_readfirstlane_b32 %s, %s' % (sW, v(V.T)))
        a('s_and_b32 %s, s2, 7' % sA)
        a('s_xor_b32 %s, %s, 2' % (sA, sA))
        a('s_lshl_b32 %s, %s, 4' % (sT, sA))
        a('s_lshr_b32 %s, s2, 4' % sB)
        a('s_or_b32 %s, %s, %s' % (sT, sT, sB))
        a('s_lshl_b32 %s, %s, 1' % (sCB, sA))
        a('s_bfe_u32 %s, %s, 0x10001' % (sC, sB))
        a('s_or_b32 %s, %s, %s' % (sCB, sCB, sC))
        a('s_bfe_u32 %s, %s, 0x20002' % (sSB, sB))
        a('s_lshl_b32 %s, %s, 1' % (sSB, sSB))
        a('s_and_b32 %s, %s, 1' % (sC, sB))
        a('s_or_b32 %s, %s, %s' % (sSB, sSB, sC))
        a('s_mov_b32 s6, 0x400000'); a('s_mov_b32 s7, 0x20000')
        a('s_mov_b32 s10, 2101248'); a('s_mov_b32 s11, 0x20000')
        a('s_mov_b32 s14, 2101248'); a('s_mov_b32 s15, 0x20000')
        a('s_mov_b32 s18, 0x800000'); a('s_mov_b32 s19, 0x20000')
        a('s_mov_b32 s22, 256'); a('s_mov_b32 s23, 0x20000')
        a('s_mov_b32 s26, 0x%x' % WS_SIZE); a('s_mov_b32 s27, 0x20000')
        a('v_lshrrev_b32 %s, 4, %s' % (v(V.g), v(V.lane)))
        a('v_and_b32 %s, 15, %s' % (v(V.n), v(V.lane)))
        a('v_lshlrev_b32 %s, 4, %s' % (v(V.l16), v(V.lane)))

    def prologue1(self, end):
        a = self.a; T = V.T
        a('s_cmp_ge_u32 s2, 0x100')
        a('s_cbranch_scc1 %s' % end)
        if 'da' in self.o: a('s_memrealtime s[56:57]'); self.mark('start')
        a('s_bfe_u32 %s, s2, 0x%x' % (sP, 0x10002 if self.o['optx'] else 0x10003))
        a('s_mul_i32 s3, %s, 24' % sP)
        a('s_load_dwordx2 s[4:5], s[0:1], s3')
        a('s_load_dwordx2 s[24:25], s[0:1], 0x40')
        a('s_load_dwordx2 s[8:9], s[0:1], s3 offset:8')
        a('s_load_dwordx2 s[12:13], s[0:1], s3 offset:16')
        a('s_load_dwordx2 s[16:17], s[0:1], 0x30')
        a('s_load_dwordx2 s[20:21], s[0:1], 0x38')
        self.stamp()
        a('v_lshrrev_b32 %s, 6, v0' % v(T))
        a('v_and_b32 %s, 63, v0' % v(V.lane))
        a('v_readfirstlane_b32 %s, %s' % (sW, v(T)))
        if self.o['optx']:
            a('s_and_b32 %s, s2, 3' % sA)
            a('s_bfe_u32 %s, s2, 0x10003' % sB)
            a('s_lshl1_add_u32 %s, %s, %s' % (sA, sA, sB))
        else: a('s_and_b32 %s, s2, 7' % sA)
        a('s_lshr_b32 %s, s2, 4' % sB)
        a('s_lshl4_add_u32 %s, %s, %s' % (sT, sA, sB))
        a('s_bfe_u32 %s, %s, 0x10001' % (sC, sB))
        a('s_lshl1_add_u32 %s, %s, %s' % (sCB, sA, sC))
        a('s_lshr_b32 %s, %s, 2' % (sSB, sB))
        a('s_and_b32 %s, %s, 1' % (sC, sB))
        a('s_lshl1_add_u32 %s, %s, %s' % (sSB, sSB, sC))
        a('s_mov_b32 s6, 0x400000'); a('s_mov_b32 s7, 0x20000')
        a('v_lshrrev_b32 %s, 4, %s' % (v(V.g), v(V.lane)))
        a('v_lshlrev_b32 %s, 4, %s' % (v(V.l16), v(V.lane)))
        a('v_and_b32 %s, 8, v0' % v(T))
        a('v_lshlrev_b32 %s, 11, %s' % (v(T), v(T)))
        a('v_lshl_add_u32 %s, %s, 20, %s' % (v(T), v(V.g), v(T)))
        a('v_and_b32 %s, 0x70, %s' % (v(T+1), v(V.l16)))
        a('v_add_u32 %s, %s, %s' % (v(V.Xoff), v(T), v(T+1)))
        a('s_lshl4_add_u32 %s, %s, %s' % (sA, sW, sSB))
        a('s_lshl4_add_u32 %s, %s, %s' % (sA, sA, sCB))
        a('s_lshl_b32 %s, %s, 7' % (sO[0], sA))
        for r in range(1, 4): a('s_add_u32 %s, %s, 0x%x' % (sO[r], sO[0], r*262144))
        a('v_and_b32 %s, 15, %s' % (v(V.n), v(V.lane)))
        a('s_mov_b32 s26, 0x%x' % WS_SIZE); a('s_mov_b32 s27, 0x20000')
        a('s_lshl_b32 %s, %s, 7' % (sRd, sP))
    def srds(self):
        a = self.a
        a('s_mov_b32 s10, 2101248'); a('s_mov_b32 s11, 0x20000')
        a('s_mov_b32 s14, 2101248'); a('s_mov_b32 s15, 0x20000')
        a('s_mov_b32 s18, 0x800000'); a('s_mov_b32 s19, 0x20000')
        a('s_mov_b32 s22, 256'); a('s_mov_b32 s23, 0x20000')

    def probe_issue(self):
        a = self.a
        a('s_lshl3_add_u32 %s, %s, %s' % (sEst, sP, sW)); a('s_lshl_b32 %s, %s, 21' % (sEst, sEst))
        a('s_and_b32 %s, %s, 0x60' % (sA, sT)); a('s_add_u32 %s, %s, %s' % (sA, sA, sT)); a('s_lshl_b32 %s, %s, 8' % (sA, sA))
        a('s_add_u32 %s, %s, %s' % (sA, sA, sEst))
        for i in range(8): a('s_mov_b32 s%d, 0x%x' % (84+i, SENT))
        for k, side in ((0, 0), (0, 1), (1, 1), (1, 0), (2, 1), (2, 0), (3, 0), (3, 1)):
            a('s_load_dword s%d, s[24:25], %s offset:0x%x glc' % (84+4*side+k, sA, k*65536+side*8192))
    def probe_eval(self):
        a = self.a
        a('s_mov_b32 %s, 0' % sA); a('s_mov_b32 %s, 0' % sB)
        a('s_waitcnt lgkmcnt(4)')
        for k in range(4):
            a('s_cmp_lg_u32 s%d, 0x%x' % (84+k, SENT)); a('s_addc_u32 %s, %s, 0' % (sA, sA))
            a('s_cmp_lg_u32 s%d, 0x%x' % (88+k, SENT)); a('s_addc_u32 %s, %s, 0' % (sB, sB))
        a('s_cmp_gt_u32 %s, %s' % (sB, sA))
        a('s_cselect_b32 %s, 1, 0' % sCh)
        if self.o['force'] != '':
            a('s_and_b32 %s, %s, 1' % (sC, sW)); a('s_xor_b32 %s, %s, %s' % (sC, sC, sP)); a('s_xor_b32 %s, %s, %s' % (sCh, sC, self.o['force']))
        if self.o['ts']:
            a('s_lshl4_add_u32 s%d, %s, %s' % (sTS+24, sA, sB))
    def ex_addrs_ib(self):
        a = self.a; T = V.T
        a('s_lshl_b32 %s, %s, 4' % (sB, sW)); a('s_xor_b32 %s, %s, %s' % (sB, sB, sT)); a('s_lshl_b32 %s, %s, 8' % (sB, sB))
        a('v_lshlrev_b32 %s, 4, %s' % (v(T), v(V.n)))
        a('v_lshl_add_u32 %s, %s, 10, %s' % (v(T), v(V.g), v(T)))
        a('v_xor_b32 %s, %s, %s' % (v(T), sB, v(T)))
        a('v_and_b32 %s, 0x6000, %s' % (v(T+1), v(T)))
        a('v_add_u32 %s, %s, %s' % (v(T), v(T), v(T+1)))
        a('v_lshl_add_u32 %s, %s, 18, %s' % (v(V.Est), v(V.g), v(T)))
        a('v_and_b32 %s, 0xdcff, %s' % (v(V.Eld), v(T)))
        a('s_lshl_b32 %s, %s, 13' % (sA, sCh)); a('s_add_u32 %s, %s, %s' % (sEst, sEst, sA))
        a('s_lshr_b32 %s, %s, 4' % (sA, sT)); a('s_lshl3_add_u32 %s, %s, %s' % (sA, sP, sA)); a('s_lshl_b32 %s, %s, 21' % (sA, sA))
        a('s_and_b32 %s, %s, 15' % (sEld, sT)); a('s_lshl_b32 %s, %s, 16' % (sEld, sEld)); a('s_add_u32 %s, %s, %s' % (sEld, sEld, sA))
    def ld_addrs_ib(self):
        a = self.a; T = V.T
        a('v_lshrrev_b32 %s, %s, %s' % (v(T), v(V.dummy), sRv))
        for q in range(4):
            a('v_bfe_u32 %s, %s, %d, 1' % (v(T+1), v(T), q))
            a('v_lshl_add_u32 %s, %s, 13, %s' % (v(V.EL+q), v(T+1), v(V.Eld)))

    def ex_addrs(self):
        a = self.a
        if self.o['skew']:
            T = V.T
            a('s_lshl_b32 %s, %s, 4' % (sB, sW)); a('s_xor_b32 %s, %s, %s' % (sB, sB, sT)); a('s_lshl_b32 %s, %s, 8' % (sB, sB))
            a('v_lshlrev_b32 %s, 4, %s' % (v(T), v(V.n)))
            a('v_lshl_add_u32 %s, %s, 10, %s' % (v(T), v(V.g), v(T)))
            a('v_xor_b32 %s, %s, %s' % (v(T), sB, v(T)))
            if self.o['numa'] != '':
                pol = int(self.o['numa'][1]); mode = self.o['numa'][0]
                if mode == 'p':
                    a('v_and_b32 %s, 0x6000, %s' % (v(T+1), v(T)))
                    a('v_add_u32 %s, %s, %s' % (v(T), v(T), v(T+1)))
                    a('v_lshl_add_u32 %s, %s, 18, %s' % (v(V.Est), v(V.g), v(T)))
                    a('v_and_b32 %s, 0xdcff, %s' % (v(V.Eld), v(T)))
                    a('s_lshr_b32 %s, %s, 1' % (sA, sW)); a('s_lshr_b32 %s, %s, 6' % (sD, sT)); a('s_xor_b32 %s, %s, %s' % (sA, sA, sD))
                    a('s_lshr_b32 %s, %s, 5' % (sC, sT)); a('s_lshr_b32 %s, %s, 2' % (sD, sW)); a('s_xor_b32 %s, %s, %s' % (sC, sC, sD))
                    if pol: a('s_xor_b32 %s, %s, 1' % (sA, sA)); a('s_xor_b32 %s, %s, 1' % (sC, sC))
                    a('s_and_b32 %s, %s, 1' % (sA, sA)); a('s_and_b32 %s, %s, 1' % (sC, sC))
                    a('s_lshl_b32 %s, %s, 13' % (sA, sA)); a('s_lshl_b32 %s, %s, 13' % (sC, sC))
                    a('s_lshl_b32 %s, %s, 25' % (sD, sP)); a('s_add_u32 %s, %s, %s' % (sA, sA, sD)); a('s_add_u32 %s, %s, %s' % (sC, sC, sD))
                    a('s_lshl_b32 %s, %s, 20' % (sEst, sW)); a('s_add_u32 %s, %s, %s' % (sEst, sEst, sA))
                    a('s_lshl_b32 %s, %s, 16' % (sEld, sT)); a('s_add_u32 %s, %s, %s' % (sEld, sEld, sC))
                    return
                a('v_and_b32 %s, 0x6000, %s' % (v(T+1), v(T)))
                a('v_add_u32 %s, %s, %s' % (v(T), v(T), v(T+1)))
                a('v_lshl_add_u32 %s, %s, 18, %s' % (v(V.Est), v(V.g), v(T)))
                a('v_and_b32 %s, 0xdcff, %s' % (v(V.Eld), v(T)))
                if mode == 'x':
                    a('s_bfe_u32 %s, %s, 0x10001' % (sA, sW)); a('s_xor_b32 %s, %s, %s' % (sA, sA, sP))
                    a('s_bfe_u32 %s, %s, 0x10005' % (sC, sT)); a('s_xor_b32 %s, %s, %s' % (sC, sC, sP))
                    if pol: a('s_xor_b32 %s, %s, 1' % (sA, sA)); a('s_xor_b32 %s, %s, 1' % (sC, sC))
                    a('s_lshl_b32 %s, %s, 13' % (sA, sA)); a('s_lshl_b32 %s, %s, 13' % (sC, sC))
                    a('s_lshl_b32 %s, %s, 20' % (sEst, sW)); a('s_add_u32 %s, %s, %s' % (sEst, sEst, sA))
                    a('s_lshl_b32 %s, %s, 16' % (sEld, sT)); a('s_add_u32 %s, %s, %s' % (sEld, sEld, sC))
                else:
                    a('s_lshr_b32 %s, %s, 1' % (sA, sW)); a('s_lshr_b32 %s, %s, 2' % (sD, sW)); a('s_xor_b32 %s, %s, %s' % (sA, sA, sD))
                    a('s_lshr_b32 %s, %s, 5' % (sC, sT)); a('s_lshr_b32 %s, %s, 6' % (sD, sT)); a('s_xor_b32 %s, %s, %s' % (sC, sC, sD))
                    if pol: a('s_xor_b32 %s, %s, 1' % (sA, sA)); a('s_xor_b32 %s, %s, 1' % (sC, sC))
                    a('s_and_b32 %s, %s, 1' % (sA, sA)); a('s_and_b32 %s, %s, 1' % (sC, sC))
                    a('s_lshl_b32 %s, %s, 13' % (sA, sA)); a('s_lshl_b32 %s, %s, 13' % (sC, sC))
                    a('s_lshl_b32 %s, %s, 22' % (sD, sP)); a('s_add_u32 %s, %s, %s' % (sA, sA, sD)); a('s_add_u32 %s, %s, %s' % (sC, sC, sD))
                    a('s_and_b32 %s, %s, 3' % (sEst, sW)); a('s_lshl_b32 %s, %s, 20' % (sEst, sEst)); a('s_add_u32 %s, %s, %s' % (sEst, sEst, sA))
                    a('s_and_b32 %s, %s, 63' % (sEld, sT)); a('s_lshl_b32 %s, %s, 16' % (sEld, sEld)); a('s_add_u32 %s, %s, %s' % (sEld, sEld, sC))
                return
            a('v_lshl_add_u32 %s, %s, 17, %s' % (v(V.Est), v(V.g), v(T)))
            a('v_and_b32 %s, 0x7cff, %s' % (v(V.Eld), v(T)))
            a('s_lshl_b32 %s, %s, 22' % (sA, sP))
            a('s_lshl_b32 %s, %s, 19' % (sEst, sW)); a('s_add_u32 %s, %s, %s' % (sEst, sEst, sA))
            a('s_lshl_b32 %s, %s, 15' % (sEld, sT)); a('s_add_u32 %s, %s, %s' % (sEld, sEld, sA))
            return
        a('v_lshlrev_b32 %s, 4, %s' % (v(V.T), v(V.n)))
        a('v_lshl_add_u32 %s, %s, 17, %s' % (v(V.Est), v(V.g), v(V.T)))
        a('v_lshl_add_u32 %s, %s, 10, %s' % (v(V.Eld), v(V.g), v(V.T)))
        a('s_lshl_b32 %s, %s, 22' % (sA, sP))
        a('s_lshl_b32 %s, %s, 19' % (sEst, sW)); a('s_add_u32 %s, %s, %s' % (sEst, sEst, sA))
        a('s_lshl_b32 %s, %s, 8' % (sB, sT)); a('s_add_u32 %s, %s, %s' % (sEst, sEst, sB))
        a('s_lshl_b32 %s, %s, 15' % (sEld, sT)); a('s_add_u32 %s, %s, %s' % (sEld, sEld, sA))
        a('s_lshl_b32 %s, %s, 12' % (sB, sW)); a('s_add_u32 %s, %s, %s' % (sEld, sEld, sB))

    def trig(self, x, re, im, conj_re=None, conj_im=None):
        a = self.a; c, s = V.T+8, V.T+9
        a('v_cos_f32 %s, %s' % (v(c), v(x)))
        a('v_sin_f32 %s, %s' % (v(s), v(x)))
        a('v_cvt_pk_bf16_f32 %s, %s, %s' % (v(re), v(c), v(s)))
        a('v_cvt_pk_bf16_f32 %s, -%s, %s' % (v(im), v(s), v(c)))
        if conj_re is not None:
            a('v_cvt_pk_bf16_f32 %s, %s, -%s' % (v(conj_re), v(c), v(s)))
            a('v_cvt_pk_bf16_f32 %s, %s, %s' % (v(conj_im), v(s), v(c)))

    def gen_F16(self):
        a = self.a; T = V.T
        a('v_cvt_f32_u32 %s, %s' % (v(T), v(V.n)))
        a('v_mul_f32 %s, %s, %s' % (v(T), lit(1/16), v(T)))
        a('v_cvt_f32_u32 %s, %s' % (v(T+1), v(V.g)))
        a('v_mul_f32 %s, 4.0, %s' % (v(T+1), v(T+1)))
        a('v_mul_f32 %s, %s, %s' % (v(T+2), v(T), v(T+1)))
        for r in range(4):
            self.trig(T+2, V.F16+r, V.F16+4+r)
            if r < 3: a('v_add_f32 %s, %s, %s' % (v(T+2), v(T+2), v(T)))

    def gen_M2(self):
        a = self.a; T = V.T
        a('v_cvt_f32_u32 %s, %s' % (v(T+1), v(V.g)))
        a('v_mul_f32 %s, 4.0, %s' % (v(T+1), v(T+1)))
        def normal():
            a('v_lshl_add_u32 %s, %s, 4, %s' % (v(T), v(V.n), sW))
            a('v_cvt_f32_u32 %s, %s' % (v(T), v(T)))
            a('v_mul_f32 %s, %s, %s' % (v(T), lit(1/256), v(T)))
            a('v_mul_f32 %s, %s, %s' % (v(T+2), v(T), v(T+1)))
            for r in range(4):
                self.trig(T+2, V.M2+r, V.M2+4+r, V.M2+8+r, V.M2+12+r)
                if r < 3: a('v_add_f32 %s, %s, %s' % (v(T+2), v(T+2), v(T)))
        def w0():
            a('v_lshrrev_b32 %s, 1, %s' % (v(T), v(V.n)))
            a('v_cvt_f32_u32 %s, %s' % (v(T), v(T)))
            a('v_lshlrev_b32 %s, 31, %s' % (v(T+3), v(V.n)))
            a('v_add_f32 %s, 0.5, %s' % (v(T+4), v(T)))
            a('v_xor_b32 %s, %s, %s' % (v(T+3), lit(1/16), v(T+3)))
            a('v_mul_f32 %s, %s, %s' % (v(T), v(T), v(T+3)))
            a('v_mul_f32 %s, %s, %s' % (v(T+4), v(T+4), v(T+3)))
            a('v_cmp_ne_u32 vcc, 1, %s' % v(V.n))
            a('v_cndmask_b32 %s, 0.5, %s, vcc' % (v(T), v(T)))
            for ts in range(2):
                d = T+4*ts
                a('v_mul_f32 %s, %s, %s' % (v(T+2), v(d), v(T+1)))
                for r in range(4):
                    self.trig(T+2, V.M2+8*ts+r, V.M2+8*ts+4+r)
                    if r < 3: a('v_add_f32 %s, %s, %s' % (v(T+2), v(T+2), v(d)))
        self.ifelse(sW, 0, w0, normal)

    def gen_M3(self):
        a = self.a; T = V.T
        a('v_cvt_f32_u32 %s, %s' % (v(T), v(V.n)))
        a('v_mul_f32 %s, %s, %s' % (v(T+1), lit(1/256), v(T)))
        a('v_mul_f32 %s, %s, %s' % (v(T), lit(1/16), v(T)))
        def normal():
            a('v_lshl_add_u32 %s, %s, 6, %s' % (v(T+2), v(V.g), sW))
            a('v_cvt_f32_u32 %s, %s' % (v(T+2), v(T+2)))
            a('v_mul_f32 %s, %s, %s' % (v(T+2), v(T+2), v(T+1)))
            for r in range(4):
                self.trig(T+2, V.M2+r, V.M2+4+r, V.M2+8+r, V.M2+12+r)
                if r < 3: a('v_add_f32 %s, %s, %s' % (v(T+2), v(T+2), v(T)))
        def w0():
            for ts in range(2):
                a('v_lshlrev_b32 %s, 5, %s' % (v(T+2), v(V.g)))
                if ts: a('v_add_u32 %s, 8, %s' % (v(T+2), v(T+2)))
                a('v_cvt_f32_u32 %s, %s' % (v(T+2), v(T+2)))
                a('v_mul_f32 %s, %s, %s' % (v(T+2), v(T+2), v(T+1)))
                for eb in range(2):
                    b = V.M2+8*ts
                    self.trig(T+2, b+2*eb, b+4+2*eb, b+2*eb+1, b+4+2*eb+1)
                    if eb == 0: a('v_add_f32 %s, %s, %s' % (v(T+2), v(T+2), v(T)))
            a('s_mov_b64 exec, 0xffff')
            a('v_lshlrev_b32 %s, 15, %s' % (v(T+2), v(V.n)))
            a('v_and_b32 %s, 0x8000, %s' % (v(T+2), v(T+2)))
            a('v_or_b32 %s, 0x3f80, %s' % (v(V.M2+1), v(T+2)))
            a('v_lshlrev_b32 %s, 16, %s' % (v(V.M2+5), v(V.M2+1)))
            a('s_mov_b64 exec, -1')
        self.ifelse(sW, 0, w0, normal)

    def sigma_lane(self, dst):
        a = self.a; T = V.T
        a('v_and_b32 %s, 17, %s' % (v(dst), v(V.lane)))
        a('v_bfe_u32 %s, %s, 2, 2' % (v(T+7), v(V.lane)))
        a('v_lshl_add_u32 %s, %s, 1, %s' % (v(dst), v(T+7), v(dst)))
        a('v_bfe_u32 %s, %s, 1, 1' % (v(T+7), v(V.lane)))
        a('v_lshl_add_u32 %s, %s, 3, %s' % (v(dst), v(T+7), v(dst)))

    def gen_F32TW(self):
        a = self.a; T = V.T
        self.sigma_lane(T)
        a('v_cvt_f32_u32 %s, %s' % (v(T), v(T)))
        a('v_mul_f32 %s, %s, %s' % (v(T), lit(1/1024), v(T)))
        a('v_lshrrev_b32 %s, 5, %s' % (v(T+1), v(V.lane)))
        a('v_cvt_f32_u32 %s, %s' % (v(T+1), v(T+1)))
        a('v_add_f32 %s, %s, %s' % (v(T+1), v(T+1), v(T+1)))
        a('v_mul_f32 %s, %s, %s' % (v(T+1), v(T+1), v(T)))
        for rho in range(16):
            k = sigma(8*(rho >> 2) + (rho & 3))
            a('v_fmamk_f32 %s, %s, %s, %s' % (v(T+2), v(T), lit(float(k)), v(T+1)))
            a('v_mul_f32 %s, %s, %s' % (v(T+3), lit(32.0), v(T+2)))
            a('v_cos_f32 %s, %s' % (v(V.TW+rho), v(T+2)))
            a('v_sin_f32 %s, %s' % (v(V.TW+16+rho), v(T+2)))
            self.trig(T+3, V.F32+rho, V.F32+16+rho)

    def coop_gen(self):
        a = self.a; T = V.T; X = V.DA
        self.sigma_lane(T)
        a('v_cvt_f32_u32 %s, %s' % (v(T), v(T)))
        a('v_mul_f32 %s, %s, %s' % (v(T), lit(1/1024), v(T)))
        a('s_and_b32 %s, %s, 1' % (sA, sW)); a('s_lshl_b32 %s, %s, 3' % (sA, sA))
        a('s_and_b32 %s, %s, 2' % (sB, sW)); a('s_lshl_b32 %s, %s, 1' % (sB, sB)); a('s_add_u32 %s, %s, %s' % (sA, sA, sB))
        a('s_and_b32 %s, %s, 4' % (sB, sW)); a('s_lshl_b32 %s, %s, 2' % (sB, sB)); a('s_add_u32 %s, %s, %s' % (sA, sA, sB))
        a('v_lshrrev_b32 %s, 5, %s' % (v(T+1), v(V.lane)))
        a('v_lshl_add_u32 %s, %s, 1, %s' % (v(T+1), v(T+1), sA))
        a('v_cvt_f32_u32 %s, %s' % (v(T+1), v(T+1)))
        a('v_mul_f32 %s, %s, %s' % (v(T+2), v(T+1), v(T)))
        for e in range(2):
            a('v_mul_f32 %s, %s, %s' % (v(T+3), lit(32.0), v(T+2)))
            if self.o['shear']:
                a('v_mul_f32 %s, 0.5, %s' % (v(T+4), v(T+2)))
                a('v_cos_f32 %s, %s' % (v(T+5), v(T+4)))
                a('v_sin_f32 %s, %s' % (v(T+6), v(T+4)))
                a('v_rcp_f32 %s, %s' % (v(T+5), v(T+5)))
                a('v_mul_f32 %s, %s, %s' % (v(X+4+e), v(T+6), v(T+5)))
                a('v_fma_f32 %s, %s, %s, 1.0' % (v(T+5), v(X+4+e), v(X+4+e)))
                a('v_rcp_f32 %s, %s' % (v(T+6), v(T+5)))
                a('v_fma_f32 %s, -%s, %s, 1.0' % (v(T+5), v(T+5), v(T+6)))
                a('v_fmac_f32 %s, %s, %s' % (v(T+6), v(T+5), v(T+6)))
                a('v_mul_f32 %s, -2.0, %s' % (v(T+6), v(T+6)))
                a('v_mul_f32 %s, %s, %s' % (v(X+6+e), v(T+6), v(X+4+e)))
            else:
                a('v_cos_f32 %s, %s' % (v(X+4+e), v(T+2)))
                a('v_sin_f32 %s, %s' % (v(X+6+e), v(T+2)))
            self.trig(T+3, X+e, X+2+e)
            if e == 0: a('v_add_f32 %s, %s, %s' % (v(T+2), v(T+2), v(T)))
        a('s_lshr_b32 %s, %s, 1' % (sA, sW)); a('s_lshl_b32 %s, %s, 10' % (sA, sA))
        a('s_and_b32 %s, %s, 1' % (sB, sW)); a('s_lshl_b32 %s, %s, 3' % (sB, sB)); a('s_add_u32 %s, %s, %s' % (sA, sA, sB))
        a('s_add_u32 %s, %s, %d' % (sA, sA, TABL))
        a('v_add_u32 %s, %s, %s' % (v(T), sA, v(V.l16)))
        for k in range(4):
            a('ds_write_b64 %s, %s offset:%d' % (v(T), vr(X+2*k, 2), 4096*k))
    def coop_init(self):
        a = self.a; T = V.T
        a('v_mov_b32 %s, %d' % (v(V.dummy2), CNT)); a('v_mov_b32 %s, 0' % v(T))
        a('ds_write_b32 %s, %s' % (v(V.dummy2), v(T)))
    def coop_post(self):
        a = self.a; T = V.T
        a('v_mov_b32 %s, 1' % v(T+1))
        a('ds_add_u32 %s, %s' % (v(V.dummy2), v(T+1)))
    def coop_wait(self):
        a = self.a; T = V.T; lp, ok = self.label('cw'), self.label('cwok')
        a('s_mov_b32 %s, 0' % sCnt)
        a(lp+':')
        a('ds_read_b32 %s, %s' % (v(T), v(V.dummy2)))
        a('s_add_u32 %s, %s, 1' % (sCnt, sCnt))
        a('s_cmp_gt_u32 %s, 0x%x' % (sCnt, SPIN_MAX*8))
        a('s_waitcnt lgkmcnt(0)')
        a('s_cbranch_scc1 %s' % ok)
        a('v_cmp_gt_u32 vcc, 0x200, %s' % v(T))
        a('s_cbranch_vccnz %s' % lp)
        a(ok+':')
    def coop_read(self):
        a = self.a; T = V.T
        assert V.TW == V.F32+32
        a('v_add_u32 %s, %d, %s' % (v(T), TABL, v(V.l16)))
        for k in range(16):
            a('ds_read_b128 %s, %s offset:%d' % (vr(V.F32+4*k, 4), v(T), 1024*k))

    def calc_k0(self):
        a = self.a
        a('s_lshr_b32 %s, %s, 4' % (sA, sT))
        a('s_and_b32 %s, %s, 15' % (sB, sT))
        a('s_lshl_b32 %s, %s, 4' % (sK0, sB))
        a('s_add_u32 %s, %s, %s' % (sK0, sK0, sA))
        a('s_lshr_b32 %s, %s, 2' % (sC, sB)); a('s_lshl_b32 %s, %s, 5' % (sC, sC))
        a('s_and_b32 %s, %s, 1' % (sD, sB)); a('s_lshl_b32 %s, %s, 4' % (sD, sD)); a('s_add_u32 %s, %s, %s' % (sC, sC, sD))
        a('s_and_b32 %s, %s, 2' % (sD, sB)); a('s_lshl_b32 %s, %s, 2' % (sD, sD)); a('s_add_u32 %s, %s, %s' % (sC, sC, sD))
        a('s_cmp_eq_u32 %s, 0' % sA)
        a('s_cselect_b32 %s, %s, %s' % (sK0, sC, sK0))
        a('s_cmp_eq_u32 %s, 0' % sT)
        a('s_cselect_b32 %s, 7, 8' % sA)
        a('s_lshl_b32 %s, %s, %s' % (sKP, sW, sA))
        a('s_add_u32 %s, %s, %s' % (sKP, sKP, sK0))
        a('s_sub_u32 %s, 0x800, %s' % (sKM, sKP))
        a('s_cmp_eq_u32 %s, 0' % sKP)
        a('s_cselect_b32 %s, 0x400, %s' % (sKM, sKM))
        a('s_cselect_b32 %s, 1, 0' % sSpec)
        a('s_mul_i32 %s, %s, 1026' % (sKP, sKP))
        a('s_mul_i32 %s, %s, 1026' % (sKM, sKM))

    def wq(self, rho): return (rho & 1) + 8*((rho >> 1) & 1) + 4*((rho >> 2) & 1)
    def w_prep(self):
        a = self.a
        a('s_mul_i32 %s, %s, 4224' % (sWL, sW))
        a('s_add_u32 %s, %s, %d' % (sWL, sWL, WL))
        a('s_and_b32 %s, %s, 2' % (sA, sKP))
        a('s_add_u32 %s, %s, %s' % (sDP, sKP, sA)); a('s_add_u32 %s, %s, %s' % (sDM, sKM, sA))
    def w_dma1(self, i):
        a = self.a
        srd, so = [(SWR, sDP), (SWI, sDP), (SWR, sDM), (SWI, sDM)][i]
        a('s_add_u32 m0, %s, %d' % (sWL, 1056*i))
        a('buffer_load_dwordx4 %s, %s, %s offen %s lds' % (v(V.l16), srd, so, self.o['ldw']))
    def w_dma(self):
        for i in range(4): self.w_dma1(i)
    def w_sload(self):
        a = self.a; T = V.T
        a('s_mov_b64 exec, 15')
        a('v_mov_b32 %s, %s' % (v(T), sKP)); a('v_mov_b32 %s, %s' % (v(T+1), sKM))
        a('s_mov_b64 vcc, 10')
        a('v_cndmask_b32 %s, %s, %s, vcc' % (v(T), v(T), v(T+1)))
        a('v_and_b32 %s, 2, %s' % (v(T+1), v(V.lane)))
        a('v_lshl_add_u32 %s, %s, 9, %s' % (v(T), v(T+1), v(T)))
        a('buffer_load_short_d16_hi %s, %s, %s, 0 offen' % (v(V.WF), v(T), SWR))
        a('buffer_load_short_d16_hi %s, %s, %s, 0 offen' % (v(V.WF+1), v(T), SWI))
        a('s_mov_b64 exec, -1')
    def w_edge_rl(self):
        a = self.a
        for l in range(4):
            for im in range(2):
                a('v_readlane_b32 s%d, %s, %d' % (84+2*l+im, v(V.WF+im), l))
    def w_edge(self):
        a = self.a; T = V.T
        self.w_edge_rl()
        for i, (x, y, op) in enumerate(((84, 86, 'add'), (85, 87, 'sub'), (90, 88, 'add'), (91, 89, 'sub'))):
            a('v_mov_b32 %s, s%d' % (v(T), y))
            a('v_%s_f32 %s, s%d, %s' % (op, v(V.WF+i), x, v(T)))
            a('v_mul_f32 %s, 0.5, %s' % (v(V.WF+i), v(V.WF+i)))
        a('s_mov_b64 s[92:93], 1')
    def w_addr(self):
        a = self.a; T = V.T
        self.sigma_lane(T)
        a('v_lshrrev_b32 %s, 5, %s' % (v(T+1), v(V.lane)))
        a('v_lshlrev_b32 %s, 7, %s' % (v(T+1), v(T+1)))
        a('v_lshl_add_u32 %s, %s, 1, %s' % (v(T), v(T), v(T+1)))
        a('s_and_b32 %s, %s, 2' % (sD, sKP)); a('s_sub_u32 %s, %s, %s' % (sD, sWL, sD))
        a('v_add_u32 %s, %s, %s' % (v(V.WP), sD, v(T)))
        a('s_add_u32 %s, %s, %d' % (sD, sD, 1024-832))
        a('v_sub_u32 %s, %s, %s' % (v(V.WM), sD, v(T)))
    def w_read(self, rho, dst=None, swap=False):
        a = self.a; dst = V.W if dst is None else dst
        for im in range(2):
            if rho < 8: ad, off = V.WP, 64*self.wq(rho) + (2112 if swap else 0)
            else: ad, off = V.WM, 64*(13-self.wq(rho)) + (0 if swap else 2112)
            a('ds_read_u16_d16_hi %s, %s offset:%d' % (v(dst+16*im+rho), v(ad), off+1056*im))
    def w_fix(self, half):
        a = self.a
        for im in range(2):
            r = V.W+8*half+16*im
            a('v_cndmask_b32 %s, %s, %s, s[92:93]' % (v(r), v(r), v(V.WF+2*half+im)))
    def w_regs_early(self):
        a = self.a
        for rho in range(16): self.w_read(rho)
        a('s_waitcnt lgkmcnt(0)')
        self.w_fix(0); self.w_fix(1)
    def w_special(self):
        a = self.a; T = V.T
        l0, l1 = self.label('Wspec'), self.label('Wend')
        a('s_cmp_eq_u32 %s, 1' % sSpec)
        a('s_cbranch_scc1 %s' % l0)
        a(l1+':')
        def tail():
            X = V.DA
            a(l0+':')
            for rho in range(16): self.w_read(rho)
            for rho in range(16): self.w_read(rho, X, True)
            a('s_waitcnt lgkmcnt(0) vmcnt(0)')
            self.w_edge_rl()
            a('s_mov_b64 exec, 1')
            for r in (V.W+16, V.W+24, X+16, X+24): a('v_mov_b32 %s, 0' % v(r))
            a('v_mov_b32 %s, s90' % v(V.W+8)); a('v_mov_b32 %s, s88' % v(X+8))
            a('s_mov_b64 exec, -1')
            for i in range(32):
                a('v_add_f32 %s, %s, %s' % (v(T+3), v(V.W+i), v(X+i)))
                if (i & 15) < 8: a('v_sub_f32 %s, %s, %s' % (v(X+i), v(V.W+i), v(X+i)))
                else: a('v_sub_f32 %s, %s, %s' % (v(X+i), v(X+i), v(V.W+i)))
                a('v_mov_b32 %s, %s' % (v(V.W+i), v(T+3)))
            a('v_add_u32 %s, %d, %s' % (v(T+1), SCR_B, v(V.l16)))
            for i in range(8):
                a('ds_write_b128 %s, %s offset:%d' % (v(T+1), vr(X+4*i, 4), 1024*i))
            a('s_waitcnt lgkmcnt(0)')
            a('s_branch %s' % l1)
        self.tail.append(tail)

    def B_dup(self):
        a = self.a
        a('v_mov_b32 %s, %s' % (v(V.B+4), v(V.B))); a('v_mov_b32 %s, %s' % (v(V.B+5), v(V.B+1)))
        a('v_mov_b32 %s, %s' % (v(V.B+10), v(V.B+6))); a('v_mov_b32 %s, %s' % (v(V.B+11), v(V.B+7)))
    def gen_B(self, early=False, dup=True):
        a = self.a; T = V.T
        l0, l1 = self.label('Bspec'), self.label('Bend')
        a('s_cmp_eq_u32 %s, 0' % sT)
        a('s_cbranch_scc1 %s' % (l1 if early else l0))
        c, s = T+8, T+9
        a('v_lshrrev_b32 %s, 1, %s' % (v(T), v(V.n)))
        a('v_lshl_add_u32 %s, %s, 8, %s' % (v(T+1), v(T), sK0))
        a('v_cvt_f32_u32 %s, %s' % (v(T+1), v(T+1)))
        a('v_mul_f32 %s, %s, %s' % (v(T+1), lit(1/2048), v(T+1)))
        a('v_cvt_f32_u32 %s, %s' % (v(T+2), v(V.g)))
        a('v_add_f32 %s, %s, %s' % (v(T+2), v(T+2), v(T+2)))
        a('v_and_b32 %s, 1, %s' % (v(T+3), v(V.n)))
        a('v_cvt_f32_u32 %s, %s' % (v(T+3), v(T+3)))
        a('v_mul_f32 %s, %s, %s' % (v(T+4), lit(0.25), v(T+3)))
        a('v_mul_f32 %s, %s, %s' % (v(T+5), v(T+1), v(T+2)))
        for sbb in range(2):
            for half in range(2):
                a('v_%s_f32 %s, %s, %s' % ('sub' if half else 'add', v(T+6), v(T+5), v(T+4)))
                a('v_cos_f32 %s, %s' % (v(c), v(T+6)))
                a('v_sin_f32 %s, %s' % (v(s), v(T+6)))
                a('v_mul_f32 %s, %s, %s' % (v(c), lit(S11), v(c)))
                a('v_mul_f32 %s, %s, %s' % (v(s), lit(S11), v(s)))
                ng = '-' if half else ''
                a('v_cvt_pk_bf16_f32 %s, %s, %s%s' % (v(V.B+2*sbb+half), v(c), ng, v(s)))
                a('v_cvt_pk_bf16_f32 %s, -%s, %s%s' % (v(V.B+6+2*sbb+half), v(s), ng, v(c)))
            if sbb == 0: a('v_add_f32 %s, %s, %s' % (v(T+5), v(T+5), v(T+1)))
        a('v_cvt_f32_u32 %s, %s' % (v(T), v(T)))
        a('v_lshlrev_b32 %s, 31, %s' % (v(T+4), v(V.n)))
        a('v_xor_b32 %s, %s, %s' % (v(T), v(T), v(T+4)))
        a('v_xor_b32 %s, %s, %s' % (v(T+4), lit(S11), v(T+4)))
        a('v_lshl_add_u32 %s, %s, 9, %s' % (v(T+1), v(V.g), sK0))
        a('v_cvt_f32_u32 %s, %s' % (v(T+1), v(T+1)))
        a('v_mul_f32 %s, %s, %s' % (v(T+1), lit(1/2048), v(T+1)))
        a('v_mul_f32 %s, %s, %s' % (v(T+5), v(T+1), v(T)))
        a('v_fmac_f32 %s, 0.5, %s' % (v(T+5), v(T+3)))
        for ii in range(2):
            a('v_cos_f32 %s, %s' % (v(c), v(T+5)))
            a('v_sin_f32 %s, %s' % (v(s), v(T+5)))
            a('v_mul_f32 %s, %s, %s' % (v(T+6), v(T+4), v(c)))
            a('v_mul_f32 %s, %s, %s' % (v(T+7), v(T+4), v(s)))
            a('v_mul_f32 %s, %s, %s' % (v(c), lit(S11), v(c)))
            a('v_mul_f32 %s, %s, %s' % (v(s), lit(S11), v(s)))
            a('v_cvt_pk_bf16_f32 %s, %s, %s' % (v(V.Bp+2*ii), v(c), v(T+7)))
            a('v_cvt_pk_bf16_f32 %s, -%s, %s' % (v(V.Bp+4+2*ii), v(s), v(T+6)))
            a('v_cvt_pk_bf16_f32 %s, -%s, %s' % (v(V.Bp+2*ii+1), v(s), v(T+6)))
            a('v_cvt_pk_bf16_f32 %s, -%s, -%s' % (v(V.Bp+4+2*ii+1), v(c), v(T+7)))
            if ii == 0: a('v_fmac_f32 %s, %s, %s' % (v(T+5), lit(0.125), v(T)))
        a(l1+':')
        if dup: self.B_dup()
        def tail():
            a(l0+':')
            if not early: self.spec_load(); a('s_waitcnt vmcnt(0)')
            a('s_branch %s' % l1)
        if not early: self.tail.append(tail)
    def spec_load(self):
        a = self.a
        a('s_getpc_b64 s[28:29]')
        a('s_add_u32 s28, s28, spec_tab@rel32@lo+4')
        a('s_addc_u32 s29, s29, spec_tab@rel32@hi+12')
        a('global_load_dwordx4 %s, %s, s[28:29]' % (vr(V.B, 4), v(V.l16)))
        a('global_load_dwordx4 %s, %s, s[28:29] offset:1024' % (vr(V.B+6, 4), v(V.l16)))
        a('global_load_dwordx4 %s, %s, s[28:29] offset:2048' % (vr(V.Bp, 4), v(V.l16)))
        a('global_load_dwordx4 %s, %s, s[28:29] offset:3072' % (vr(V.Bp+4, 4), v(V.l16)))
    def spec_early(self):
        a = self.a
        def g():
            self.srds()
            a('s_mov_b32 %s, 0' % sDP); a('s_mov_b32 %s, %d' % (sDM, 1024*1026)); a('s_mov_b32 %s, %d' % (sWL, WL))
            self.w_dma()
        def f():
            self.spec_load(); self.cond(sW, 0, g)
        self.cond(sT, 0, f)

    def spec_table(self):
        tab = np.zeros((4, 64, 4, 2))
        for lane in range(64):
            m, g = lane & 15, lane >> 4
            for r in range(4):
                t, c = m >> 1, m & 1; sb, hf = 2*g + (r >> 1), r & 1
                if hf == (t & 1):
                    th = 2*math.pi*sb*t/16
                    tab[0, lane, r, c] = (2*S11 if t else S11)*math.cos(th)
                    tab[1, lane, r, c] = -2*S11*math.sin(th) if t else S11*(-1.0)**sb
                sb, hf = m >> 1, m & 1; t, c = 2*g + (r >> 1), r & 1
                if hf == (t & 1):
                    th = 2*math.pi*sb*t/16
                    if t: cre, cim = 2*math.cos(th), -2*math.sin(th)
                    else: cre, cim = 1.0, (-1.0)**sb
                    pl = 2 + (1 - c)
                    tab[pl, lane, r, 0] = S11*cim
                    tab[pl, lane, r, 1] = S11*cre
        tab[abs(tab) < 1e-12] = 0
        out = ['.p2align 6', '.type spec_tab,@object', 'spec_tab:']
        w = [bf16bits(tab[p, l, r, 0]) | bf16bits(tab[p, l, r, 1]) << 16 for p in range(4) for l in range(64) for r in range(4)]
        for i in range(0, len(w), 8):
            out.append('.long ' + ','.join('0x%x' % x for x in w[i:i+8]))
        return '\n'.join(out)

    def p1_load(self):
        a = self.a; T = V.T
        a('v_bfe_u32 %s, %s, 3, 1' % (v(T), v(V.lane)))
        a('v_lshlrev_b32 %s, 14, %s' % (v(T), v(T)))
        a('v_lshl_add_u32 %s, %s, 20, %s' % (v(T), v(V.g), v(T)))
        a('v_and_b32 %s, 0x70, %s' % (v(T+1), v(V.l16)))
        a('v_add_u32 %s, %s, %s' % (v(V.Xoff), v(T), v(T+1)))
        a('s_lshl_b32 %s, %s, 15' % (sO[0], sW))
        a('s_lshl_b32 %s, %s, 11' % (sA, sSB)); a('s_add_u32 %s, %s, %s' % (sO[0], sO[0], sA))
        a('s_lshl_b32 %s, %s, 7' % (sA, sCB)); a('s_add_u32 %s, %s, %s' % (sO[0], sO[0], sA))
        for r in range(1, 4): a('s_add_u32 %s, %s, 0x%x' % (sO[r], sO[0], r*262144))
    def p1_issue(self):
        a = self.a
        for r in range(4):
            a('buffer_load_dwordx4 %s, %s, %s, %s offen %s' % (vr(V.L+4*r, 4), v(V.Xoff), SX, sO[r], self.o['ldx']))
    def p1_addrs(self):
        a = self.a; T = V.T
        a('v_xor_b32 %s, %s, %s' % (v(T), sSB, v(V.lane)))
        a('v_and_b32 %s, 1, %s' % (v(T), v(T)))
        a('v_mul_u32_u24 %s, 16448, %s' % (v(T), v(T)))
        a('v_lshl_add_u32 %s, %s, 12, %s' % (v(T), v(V.g), v(T)))
        a('v_and_b32 %s, 14, %s' % (v(T+1), v(V.lane)))
        a('v_lshl_add_u32 %s, %s, 3, %s' % (v(T), v(T+1), v(T)))
        a('s_lshr_b32 %s, %s, 2' % (sA, sW)); a('s_lshl_b32 %s, %s, 9' % (sA, sA))
        a('s_and_b32 %s, %s, 1' % (sB, sW)); a('s_lshl_b32 %s, %s, 8' % (sB, sB)); a('s_add_u32 %s, %s, %s' % (sA, sA, sB))
        a('s_and_b32 %s, %s, 2' % (sB, sW)); a('s_lshl_b32 %s, %s, 6' % (sB, sB)); a('s_add_u32 %s, %s, %s' % (sA, sA, sB))
        if R0: a('s_add_u32 %s, %s, %d' % (sA, sA, R0))
        a('v_add_u32 %s, %s, %s' % (v(V.X0w), sA, v(T)))
        self.tr_lane(T, 512, 128)
        a('s_lshl_b32 %s, %s, 10' % (sA, sW))
        a('s_sub_u32 %s, 0x4000, %s' % (sB, sA))
        a('s_cmp_eq_u32 %s, 0' % sW)
        a('s_cselect_b32 %s, 0x2000, %s' % (sB, sB))
        if R0: a('s_add_u32 %s, %s, %d' % (sA, sA, R0)); a('s_add_u32 %s, %s, %d' % (sB, sB, R0))
        a('v_add_u32 %s, %s, %s' % (v(V.X0r0), sA, v(T)))
        a('v_add_u32 %s, %s, %s' % (v(V.X0r1), sB, v(T)))
    def tr_lane(self, dst, g1s, g0s, b3s=64):
        a = self.a; t = V.T+7
        sh = lambda x: int(math.log2(x))
        a('v_and_b32 %s, 0x30, %s' % (v(dst), v(V.l16)))
        for bit, st in ((2, 8), (3, b3s), (4, g0s), (5, g1s)):
            a('v_bfe_u32 %s, %s, %d, 1' % (v(t), v(V.lane), bit))
            a('v_lshl_add_u32 %s, %s, %d, %s' % (v(dst), v(t), sh(st), v(dst)))

    def mf16(self, d, A, B):
        self.a('v_mfma_f32_16x16x32_bf16 %s, %s, %s, 0' % (vr(d, 4), vr(A, 4), vr(B, 4)))
    def cvt(self, d, lo, hi):
        self.a('v_cvt_pk_bf16_f32 %s, %s, %s' % (v(d), v(lo), v(hi)))

    def p1_compute(self, nafter, hook=None, hook2=None, hook3=None, hook4=None, hook5=None):
        a = self.a; O, L, D = V.O, V.L, V.DA
        for r in range(4):
            a('s_waitcnt vmcnt(%d)' % (nafter + 3 - r))
            if r == 3: self.stamp()
            for t in range(4):
                a('v_mov_b32 %s, %s' % (v(O+4*t+r), v(L+4*r+t)))
        for t in range(4):
            self.mf16(D+4*t, V.F16, O+4*t)
            self.mf16(D+16+4*t, V.F16+4, O+4*t)
        if hook: hook()
        P = V.DB
        for r in range(4):
            self.cvt(P+4*r, D+r, D+4+r); self.cvt(P+4*r+2, D+16+r, D+20+r)
        for r in range(4):
            self.cvt(P+4*r+1, D+8+r, D+12+r); self.cvt(P+4*r+3, D+24+r, D+28+r)
            a('ds_write_b128 %s, %s offset:%d' % (v(V.X0w), vr(P+4*r, 4), 1024*r))
        self.mark('g1a')
        if hook5: hook5()
        self.mark('g1b')
        a('s_waitcnt lgkmcnt(0)')
        a('s_barrier')
        if hook4: hook4()
        for sel in range(2):
            for tau in range(2):
                for ii in range(2):
                    a('ds_read_b64_tr_b16 %s, %s offset:%d' % (vr(O+4*(2*sel+tau)+2*ii, 2), v(V.X0r1 if sel else V.X0r0), tau*16448+ii*256))
        if hook2: hook2()
        if hook3: hook3()
        for r in range(4): a('s_add_u32 %s, %s, 0x%x' % (sO[r], self.est(), self.ubase(0) + r*self.tstride()))
        for ti in range(4):
            a('s_waitcnt lgkmcnt(%d)' % (6-2*ti))
            self.mf16(D+4*ti, V.M2+8*(ti >> 1), O+4*ti)
            self.mf16(D+16+4*ti, V.M2+8*(ti >> 1)+4, O+4*ti)
        st = lambda i: a('buffer_store_dwordx4 %s, %s, %s, %s offen %s' % (vr(P+4*i, 4), v(V.Est), SWS, sO[i], self.o['st1']))
        def normal():
            for i in range(4):
                for tau in range(2): self.cvt(P+4*i+2*tau, D+4*tau+i, D+16+4*tau+i)
            for i in range(4):
                for tau in range(2): self.cvt(P+4*i+2*tau+1, D+4*(2+tau)+i, D+16+4*(2+tau)+i)
                st(i)
        def w0():
            for i in range(4):
                ts, eb = i >> 1, i & 1
                for tau in range(2):
                    for sg in range(2):
                        x = 4*(2*ts+tau)+2*eb+sg
                        self.cvt(P+4*i+2*tau+sg, D+x, D+16+x)
                st(i)
        self.ifelse(sW, 0, w0, normal)

    def p2_addrs(self):
        a = self.a; T = V.T
        a('v_lshlrev_b32 %s, 4, %s' % (v(T), v(V.n)))
        a('v_lshl_add_u32 %s, %s, 13, %s' % (v(T), v(V.g), v(T)))
        a('s_lshl_b32 %s, %s, 9' % (sA, sW)); a('s_add_u32 %s, %s, %d' % (sA, sA, R1))
        a('v_add_u32 %s, %s, %s' % (v(V.X1w), sA, v(T)))
    def p2_addrs2(self):
        a = self.a; T = V.T
        self.tr_lane(T, 256, 64, 128)
        a('s_lshl_b32 %s, %s, 12' % (sA, sW)); a('s_add_u32 %s, %s, %d' % (sA, sA, R1))
        a('v_add_u32 %s, %s, %s' % (v(V.X1r), sA, v(T)))
        a('v_and_b32 %s, 16, %s' % (v(T), v(V.l16)))
        for bit, st in ((1, 16448), (2, 8224)):
            a('v_bfe_u32 %s, %s, %d, 1' % (v(T+1), v(V.lane), bit))
            a('v_mul_u32_u24 %s, %d, %s' % (v(T+1), st, v(T+1)))
            a('v_add_u32 %s, %s, %s' % (v(T), v(T), v(T+1)))
        a('v_bfe_u32 %s, %s, 3, 2' % (v(T+1), v(V.lane)))
        a('v_lshl_add_u32 %s, %s, 11, %s' % (v(T), v(T+1), v(T)))
        a('v_and_b32 %s, 32, %s' % (v(T+1), v(V.lane)))
        a('v_add_u32 %s, %s, %s' % (v(T), v(T), v(T+1)))
        a('s_lshr_b32 %s, %s, 2' % (sA, sW)); a('s_lshl_b32 %s, %s, 9' % (sA, sA))
        a('s_and_b32 %s, %s, 1' % (sB, sW)); a('s_lshl_b32 %s, %s, 8' % (sB, sB)); a('s_add_u32 %s, %s, %s' % (sA, sA, sB))
        a('s_and_b32 %s, %s, 2' % (sB, sW)); a('s_lshl_b32 %s, %s, 6' % (sB, sB)); a('s_add_u32 %s, %s, %s' % (sA, sA, sB))
        if R0: a('s_add_u32 %s, %s, %d' % (sA, sA, R0))
        a('v_add_u32 %s, %s, %s' % (v(V.X2w), sA, v(T)))
        self.tr_lane(T, 512, 128)
        a('s_and_b32 %s, %s, 1' % (sA, sW)); a('s_lshl_b32 %s, %s, 11' % (sA, sA))
        a('s_bfe_u32 %s, %s, 0x10001' % (sB, sW)); a('s_mul_i32 %s, %s, 16448' % (sB, sB)); a('s_add_u32 %s, %s, %s' % (sA, sA, sB))
        a('s_lshr_b32 %s, %s, 2' % (sB, sW)); a('s_lshl_b32 %s, %s, 12' % (sB, sB)); a('s_add_u32 %s, %s, %s' % (sA, sA, sB))
        if R0: a('s_add_u32 %s, %s, %d' % (sA, sA, R0))
        a('v_add_u32 %s, %s, %s' % (v(V.X2r), sA, v(T)))

    def p2_issue(self):
        a = self.a
        a('s_add_u32 %s, %s, 0x%x' % (sA, sEld, self.ubase(0)))
        for q in range(4):
            a('buffer_load_dwordx4 %s, %s, %s, %s offen offset:%d %s' % (vr(V.L+12*(q >> 1)+4*(q & 1), 4), self.eld(q), SWS, sA, 256*q, self.o['ld1']))

    def mf32(self, d, i, dataA):
        for pl in range(2):
            M = vr(V.F32+16*pl+4*i, 4); X = vr(V.O+4*i, 4)
            A, B = (X, M) if dataA else (M, X)
            D = vr(d+16*pl, 16)
            self.a('v_mfma_f32_32x32x16_bf16 %s, %s, %s, %s' % (D, A, B, D if i else '0'))

    def cmul_stage(self, src, dst, dataA, coef, kind, prio=None, late=False):
        a = self.a; T = V.T
        if prio is not None and self.o['prio']: a('s_setprio %d' % prio)
        if kind == 'tw' and self.o['shear']:
            for i in range(4):
                for st in range(3):
                    for r in range(4):
                        rho = 4*i+r
                        x, y = v(src+rho), v(src+16+rho)
                        if st == 1: a('v_fmac_f32 %s, %s, %s' % (y, v(coef+16+rho), x))
                        else: a('v_fmac_f32 %s, %s, %s' % (x, v(coef+rho), y))
                for r in range(4): self.cvt(V.O+4*i+r, src+4*i+r, src+16+4*i+r)
                self.mf32(dst, i, dataA)
            return
        if late and self.o.get('db') == 'wb':
            self.mark('wa'); a('s_waitcnt vmcnt(0)'); self.mark('wb'); a('s_waitcnt lgkmcnt(0)')
        if late:
            a('s_waitcnt vmcnt(2)')
            for rho in range(8): self.w_read(rho)
        for i in range(4):
            if late:
                if i == 0: a('s_waitcnt lgkmcnt(8)'); self.w_fix(0)
                if i == 1:
                    a('s_waitcnt vmcnt(0)')
                    for rho in range(8, 12): self.w_read(rho)
                    a('s_waitcnt lgkmcnt(8)')
                if i == 2:
                    for rho in range(12, 16): self.w_read(rho)
                    a('s_waitcnt lgkmcnt(8)'); self.w_fix(1)
                if i == 3: a('s_waitcnt lgkmcnt(0)')
            for r in range(4):
                rho = 4*i+r
                x, y = v(src+rho), v(src+16+rho)
                c, s = v(coef+rho), v(coef+16+rho)
                t0, t1 = v(T+2*r), v(T+2*r+1)
                a('v_mul_f32 %s, %s, %s' % (t0, x, c))
                a('v_mul_f32 %s, %s, %s' % (t1, y, c))
            for r in range(4):
                rho = 4*i+r
                x, y = v(src+rho), v(src+16+rho)
                c, s = v(coef+rho), v(coef+16+rho)
                t0, t1 = v(T+2*r), v(T+2*r+1)
                if kind == 'tw' or rho >= 8:
                    a('v_fmac_f32 %s, %s, %s' % (t0, y, s))
                    a('v_fma_f32 %s, -%s, %s, %s' % (t1, x, s, t1))
                else:
                    a('v_fma_f32 %s, -%s, %s, %s' % (t0, y, s, t0))
                    a('v_fmac_f32 %s, %s, %s' % (t1, x, s))
            for r in range(4):
                if kind == 'tw': self.cvt(V.O+4*i+r, T+2*r, T+2*r+1)
                else: self.cvt(V.O+4*i+r, T+2*r+1, T+2*r)
            self.mf32(dst, i, dataA)

    def p2_compute(self, wl=None):
        a = self.a; O, L, D, T = V.O, V.L, V.DA, V.T
        late = wl is not None
        na = 0
        for cbb in range(2):
            b = L+12*cbb
            a('s_waitcnt vmcnt(%d)' % (na+3-2*cbb))
            a('v_mov_b32 %s, %s' % (v(b+8), v(b))); a('v_mov_b32 %s, %s' % (v(b+9), v(b+1)))
            a('s_waitcnt vmcnt(%d)' % (na+2-2*cbb))
            if cbb: self.stamp(); self.fstamp()
            for jj2 in (1, 0):
                ti = 2*cbb+jj2
                op = b+2 if jj2 else b+6
                mo = 0 if jj2 else 2
                self.mf16(D+4*ti, V.B+mo, op)
                self.mf16(D+16+4*ti, V.B+6+mo, op)
        for cbb in range(2):
            for k1b in range(2):
                P = O+4*(2*cbb+k1b)
                for pl in range(2):
                    for jj2 in (1, 0):
                        x = D+16*pl+4*(2*cbb+jj2)+2*k1b
                        self.cvt(P+2*pl+jj2, x, x+1)
                a('ds_write_b128 %s, %s offset:%d' % (v(V.X1w), vr(P, 4), k1b*4096+cbb*256))
        self.fstamp()
        a('s_waitcnt lgkmcnt(0)')
        self.fstamp()
        if self.o.get('fine'): a('s_waitcnt lgkmcnt(0)')
        a('s_barrier')
        if self.o.get('da') == 'x1': self.mark('x1'); a('s_waitcnt lgkmcnt(0)')
        if self.o['prio']: a('s_setprio 3')
        for i in range(4):
            for ii in range(2):
                a('ds_read_b64_tr_b16 %s, %s offset:%d' % (vr(O+4*i+2*ii, 2), v(V.X1r), ii*1024+(i & 1)*512+(i >> 1)*2048))
        for i in range(4):
            if late and i in (0, 2): self.wat('postX1', (i, i+1))
            a('s_waitcnt lgkmcnt(%d)' % (6-2*i))
            self.mf32(V.DA, i, True)
        self.fstamp()
        if late: self.wat('tw1')
        self.cmul_stage(V.DA, V.DB, False, V.TW, 'tw', 2)
        self.fstamp()
        l0, l1 = self.label('PWspec'), self.label('PWend')
        a('s_cmp_eq_u32 %s, 1' % sSpec)
        a('s_cbranch_scc1 %s' % l0)
        if self.o.get('fine'): a('s_waitcnt lgkmcnt(0)')
        self.cmul_stage(V.DB, V.DA, True, V.W, 'w', 1, late)
        a(l1+':')
        self.fstamp()
        self.cmul_stage(V.DA, V.DB, True, V.TW, 'tw', 0)
        self.fstamp()
        D = V.DB
        rho = lambda jj3, jj1, jj2, c: 4*(2*jj3+jj1)+2*jj2+c
        for c in range(2):
            for jj1 in range(2):
                P = O+4*(2*c+jj1)
                for pl in range(2):
                    for jj3 in range(2):
                        self.cvt(P+2*pl+jj3, D+16*pl+rho(jj3, jj1, 0, c), D+16*pl+rho(jj3, jj1, 1, c))
                a('ds_write_b128 %s, %s offset:%d' % (v(V.X2w), vr(P, 4), c*64+jj1*1024))
                if self.o['ib2'] and not self.o['ib3'] and c == 0 and jj1 == 0: self.major_read()
        self.fstamp()
        a('s_waitcnt lgkmcnt(0)')
        if self.o['ib2'] and not self.o['ib3']: self.major_use()
        self.fstamp()
        if self.o.get('fine'): a('s_waitcnt lgkmcnt(0)')
        a('s_barrier')
        for cbb in range(2):
            for jj1 in range(2):
                for ii in range(2):
                    a('ds_read_b64_tr_b16 %s, %s offset:%d' % (vr(O+4*(2*cbb+jj1)+2*ii, 2), v(V.X2r), ii*256+jj1*1024+cbb*8224))
        for r in range(4): a('s_add_u32 %s, %s, 0x%x' % (sO[r], self.est(), self.ubase(1) + r*self.tstride()))
        D = V.DA
        for ti in range(4):
            a('s_waitcnt lgkmcnt(%d)' % (6-2*ti))
            self.mf16(D+4*ti, V.Bp, O+4*ti)
            self.mf16(D+16+4*ti, V.Bp+4, O+4*ti)
        self.fstamp()
        P = V.DB
        for q in range(4):
            cbb, sbb = q >> 1, q & 1
            for jj1 in range(2):
                for hf in range(2):
                    x = 4*(2*cbb+jj1)+2*sbb+hf
                    self.cvt(P+4*q+2*jj1+hf, D+x, D+16+x)
            a('buffer_store_dwordx4 %s, %s, %s, %s offen %s' % (vr(P+4*q, 4), v(V.Est), SWS, sO[q], self.o['st2']))
        self.fstamp()
        if self.o.get('fine'):
            a('s_memrealtime s[%d:%d]' % (sTS+2*self.nts, sTS+2*self.nts+1)); self.nts += 1
        def tail():
            C = V.DB; X = V.DA
            a(l0+':')
            self.sigma_lane(T)
            a('v_lshrrev_b32 %s, 5, %s' % (v(T+1), v(V.lane)))
            a('v_lshlrev_b32 %s, 9, %s' % (v(T+1), v(T+1)))
            a('v_lshl_add_u32 %s, %s, 2, %s' % (v(T+2), v(T), v(T+1)))
            a('v_add_u32 %s, %d, %s' % (v(T+2), SCR, v(T+2)))
            a('v_add_u32 %s, 128, %s' % (v(T+3), v(T+2)))
            a('v_sub_u32 %s, 32, %s' % (v(T+4), v(T)))
            a('v_lshrrev_b32 %s, 5, %s' % (v(T+5), v(T+4)))
            a('v_and_b32 %s, 31, %s' % (v(T+4), v(T+4)))
            a('v_lshlrev_b32 %s, 2, %s' % (v(T+4), v(T+4)))
            a('v_lshl_add_u32 %s, %s, 8, %s' % (v(T+4), v(T+5), v(T+4)))
            a('v_sub_u32 %s, %s, %s' % (v(T+4), v(T+4), v(T+1)))
            a('v_add_u32 %s, %d, %s' % (v(T+4), SCR + 2*256, v(T+4)))
            a('v_add_u32 %s, 128, %s' % (v(T+5), v(T+4)))
            a('v_add_u32 %s, %d, %s' % (v(T+6), SCR_B, v(V.l16)))
            qs = lambda rho: sigma(8*(rho >> 2) + (rho & 3))
            for pl in range(2):
                for rho in range(0, 16, 2):
                    a('ds_write2st64_b32 %s, %s, %s offset0:%d offset1:%d' % (v(T+2+pl), v(C+16*pl+rho), v(C+16*pl+rho+1), qs(rho), qs(rho+1)))
                a('ds_write_b32 %s, %s offset:%d' % (v(T+2+pl), v(C+16*pl), 32*256))
            a('s_waitcnt lgkmcnt(0)')
            t0, t1 = v(T+8), v(T+9)
            for half in range(2):
                for pl in range(2):
                    for k in range(0, 8, 2):
                        rho_ = 8*half+k
                        a('ds_read2st64_b32 %s, %s offset0:%d offset1:%d' % (vr(X+8*pl+k, 2), v(T+4+pl), 29-qs(rho_), 29-qs(rho_+1)))
                    for k in range(2):
                        a('ds_read_b128 %s, %s offset:%d' % (vr(X+16+8*pl+4*k, 4), v(T+6), 1024*(4*pl+2*half+k)))
                a('s_waitcnt lgkmcnt(0)')
                for k in range(8):
                    rho_ = 8*half+k
                    x, y = v(C+rho_), v(C+16+rho_); ar, ai = v(V.W+rho_), v(V.W+16+rho_)
                    p, q_ = v(X+k), v(X+8+k); br, bi = v(X+16+k), v(X+24+k)
                    ng, ps = ('', '-') if half else ('-', '')
                    a('v_mul_f32 %s, %s, %s' % (t0, x, ar))
                    a('v_mul_f32 %s, %s, %s' % (t1, y, ar))
                    a('v_fma_f32 %s, %s%s, %s, %s' % (t0, ng, y, ai, t0))
                    a('v_fma_f32 %s, %s%s, %s, %s' % (t1, ps, x, ai, t1))
                    a('v_fmac_f32 %s, %s, %s' % (t0, p, br))
                    a('v_fma_f32 %s, -%s, %s, %s' % (t1, q_, br, t1))
                    a('v_fma_f32 %s, %s%s, %s, %s' % (t0, ps, q_, bi, t0))
                    a('v_fma_f32 %s, %s%s, %s, %s' % (t1, ps, p, bi, t1))
                    self.cvt(O+rho_, T+9, T+8)
            for i in range(4): self.mf32(V.DA, i, True)
            a('s_nop 11')
            a('s_branch %s' % l1)
        self.tail.append(tail)

    def p3_addrs(self):
        a = self.a; T = V.T
        a('v_and_b32 %s, 16, %s' % (v(T), v(V.lane)))
        for bit, st in ((0, 32), (3, 4096), (5, 1024)):
            a('v_bfe_u32 %s, %s, %d, 1' % (v(T+1), v(V.lane), bit))
            a('v_lshl_add_u32 %s, %s, %d, %s' % (v(T), v(T+1), int(math.log2(st)), v(T)))
        for bit, st in ((1, 8208), (2, 16448)):
            a('v_bfe_u32 %s, %s, %d, 1' % (v(T+1), v(V.lane), bit))
            a('v_mul_u32_u24 %s, %d, %s' % (v(T+1), st, v(T+1)))
            a('v_add_u32 %s, %s, %s' % (v(T), v(T), v(T+1)))
        a('s_sub_u32 %s, 16, %s' % (sC, sW))
        a('s_cmp_eq_u32 %s, 0' % sW)
        a('s_cselect_b32 %s, 8, %s' % (sC, sC))
        for kl, dst in ((sW, V.X3w0), (sC, V.X3w1)):
            a('s_and_b32 %s, %s, 9' % (sA, kl)); a('s_lshl_b32 %s, %s, 6' % (sA, sA))
            a('s_and_b32 %s, %s, 2' % (sB, kl)); a('s_lshl_b32 %s, %s, 7' % (sB, sB)); a('s_add_u32 %s, %s, %s' % (sA, sA, sB))
            a('s_and_b32 %s, %s, 4' % (sB, kl)); a('s_lshl_b32 %s, %s, 5' % (sB, sB)); a('s_add_u32 %s, %s, %s' % (sA, sA, sB))
            a('s_add_u32 %s, %s, %d' % (sA, sA, R1))
            a('v_add_u32 %s, %s, %s' % (v(dst), sA, v(T)))
        self.tr_lane(T, 512, 128)
        a('s_and_b32 %s, %s, 1' % (sA, sW)); a('s_mul_i32 %s, %s, 8208' % (sA, sA))
        a('s_bfe_u32 %s, %s, 0x10001' % (sB, sW)); a('s_mul_i32 %s, %s, 16448' % (sB, sB)); a('s_add_u32 %s, %s, %s' % (sA, sA, sB))
        a('s_lshr_b32 %s, %s, 2' % (sB, sW)); a('s_lshl_b32 %s, %s, 12' % (sB, sB)); a('s_add_u32 %s, %s, %s' % (sA, sA, sB))
        a('s_add_u32 %s, %s, %d' % (sA, sA, R1))
        a('v_add_u32 %s, %s, %s' % (v(V.X3r), sA, v(T)))
        a('v_bfe_u32 %s, %s, 3, 1' % (v(T), v(V.lane)))
        a('v_lshlrev_b32 %s, 15, %s' % (v(T), v(T)))
        a('v_lshl_add_u32 %s, %s, 21, %s' % (v(T), v(V.g), v(T)))
        a('v_and_b32 %s, 0x70, %s' % (v(T+1), v(V.l16)))
        a('v_add_u32 %s, %s, %s' % (v(V.Ooff), v(T), v(T+1)))
    def p3_soff(self):
        a = self.a
        a('s_lshl_b32 %s, %s, 16' % (sO[0], sW))
        a('s_lshl_b32 %s, %s, 12' % (sA, sSB)); a('s_add_u32 %s, %s, %s' % (sO[0], sO[0], sA))
        a('s_lshl_b32 %s, %s, 7' % (sA, sCB)); a('s_add_u32 %s, %s, %s' % (sO[0], sO[0], sA))
        a('s_lshl_b32 %s, %s, 11' % (sA, sP)); a('s_add_u32 %s, %s, %s' % (sO[0], sO[0], sA))
        for r in range(1, 4): a('s_add_u32 %s, %s, 0x%x' % (sO[r], sO[0], r*524288))
    def p3_issue(self):
        a = self.a
        a('s_add_u32 %s, %s, 0x%x' % (sA, sEld, self.ubase(1)))
        for q in range(4):
            a('buffer_load_dwordx4 %s, %s, %s, %s offen offset:%d %s' % (vr(V.L+4*q, 4), self.eld(q, 1), SWS, sA, 256*q, self.o['ld2']))
    def p3_compute(self):
        a = self.a; O, L, D = V.O, V.L, V.DA
        def normal():
            for i in range(4):
                a('s_waitcnt vmcnt(%d)' % (3-i))
                for sel in range(2):
                    for col in range(2):
                        a('v_mov_b32 %s, %s' % (v(O+4*(2*sel+col)+i), v(L+4*i+2*col+sel)))
        def w0():
            for i in range(4):
                ts, eb = i >> 1, i & 1
                a('s_waitcnt vmcnt(%d)' % (3-i))
                for col in range(2):
                    for sg in range(2):
                        a('v_mov_b32 %s, %s' % (v(O+4*(2*ts+col)+2*eb+sg), v(L+4*i+2*col+sg)))
        self.ifelse(sW, 0, w0, normal, True)
        self.stamp()
        for ti in range(4):
            self.mf16(D+4*ti, O+4*ti, V.M2+8*(ti >> 1))
            self.mf16(D+16+4*ti, O+4*ti, V.M2+8*(ti >> 1)+4)
        P = V.DB
        for ti in range(4):
            for pl in range(2):
                for k in range(2):
                    x = D+16*pl+4*ti+2*k
                    self.cvt(P+4*ti+2*pl+k, x, x+1)
            a('ds_write_b128 %s, %s offset:%d' % (v(V.X3w1 if ti >> 1 else V.X3w0), vr(P+4*ti, 4), (ti & 1)*2048))
        a('s_waitcnt lgkmcnt(0)')
        a('s_barrier')
        for t in range(4):
            for ii in range(2):
                a('ds_read_b64_tr_b16 %s, %s offset:%d' % (vr(O+4*t+2*ii, 2), v(V.X3r), ii*256+t*1024))
        for t in range(4):
            a('s_waitcnt lgkmcnt(%d)' % (6-2*t))
            self.mf16(D+4*t, V.F16, O+4*t)
            self.mf16(D+16+4*t, V.F16+4, O+4*t)
        for t in range(3):
            for r in range(4): self.cvt(P+4*r+t, D+16+4*t+r, D+4*t+r)
        for r in range(4):
            self.cvt(P+4*r+3, D+16+12+r, D+12+r)
            a('buffer_store_dwordx4 %s, %s, %s, %s offen %s' % (vr(P+4*r, 4), v(V.Ooff), SOUT, sO[r], self.o['sto']))

    def flush_tail(self):
        t, self.tail = self.tail, []
        for f in t: f()

    def kernel_head(self, name):
        self.a.raw('.globl %s\n.p2align 12\n.p2align 8\n.type %s,@function\n%s:' % (name, name, name))
    def kd(self, name):
        return '''.p2align 6
.amdhsa_kernel %s
  .amdhsa_next_free_vgpr %d
  .amdhsa_next_free_sgpr 102
  .amdhsa_accum_offset %d
  .amdhsa_group_segment_fixed_size 0
  .amdhsa_kernarg_size 72
  .amdhsa_user_sgpr_count 2
  .amdhsa_user_sgpr_kernarg_segment_ptr 1
  .amdhsa_system_sgpr_workgroup_id_x 1
.end_amdhsa_kernel''' % (name, NVGPR, (NVGPR+3)//4*4)

    def build_three(self):
        a = self.a
        names = ['gf_p1_kernel', 'gf_p2_kernel', 'gf_p3_kernel']
        self.kernel_head(names[0]); end = self.label('end')
        self.prologue(end); self.p1_load(); a('s_waitcnt lgkmcnt(0)'); self.p1_issue()
        self.ex_addrs(); self.p1_addrs(); self.gen_F16(); self.gen_M2()
        self.p1_compute(0)
        if self.o['ts']: self.stamp(); a('s_waitcnt vmcnt(0)'); self.stamp(); self.dump_stamps(0)
        a(end+':'); a('s_endpgm'); self.flush_tail()
        self.kernel_head(names[1]); end = self.label('end')
        self.prologue(end); self.ex_addrs(); self.calc_k0(); a('s_waitcnt lgkmcnt(0)')
        self.w_dma(); self.p2_addrs(); self.gen_B(); self.gen_F32TW()
        a('s_waitcnt vmcnt(0)'); self.w_regs(); a('s_waitcnt lgkmcnt(0)')
        self.p2_issue(); self.p2_compute()
        if self.o['ts']: self.stamp(); a('s_waitcnt vmcnt(0)'); self.stamp(); self.dump_stamps(8)
        a(end+':'); a('s_endpgm'); self.flush_tail()
        self.kernel_head(names[2]); end = self.label('end')
        self.prologue(end); self.ex_addrs(); a('s_waitcnt lgkmcnt(0)'); self.p3_issue()
        self.p3_addrs(); self.p3_soff(); self.gen_F16(); self.gen_M3()
        self.p3_compute()
        if self.o['ts']: self.stamp(); a('s_waitcnt vmcnt(0)'); self.stamp(); self.dump_stamps(16)
        a(end+':'); a('s_endpgm'); self.flush_tail()
        launch = ''.join('; @launch kernel=%s grid=(256,1,1) block=(512,1,1) lds=%d\n' % (n, LDS_TOTAL) for n in names)
        return self.finish(launch, names)

    def flag_addrs(self):
        a = self.a
        if self.o['ib']:
            a('s_lshr_b32 %s, %s, 4' % (sB, sT))
            for dst, wp, gr in ((sF, sW, sB), (sE, sB, sW)):
                a('s_lshl3_add_u32 %s, %s, %s' % (sA, sP, wp)); a('s_lshl_b32 %s, %s, 21' % (sA, sA))
                a('s_lshl_b32 %s, %s, 10' % (sC, gr)); a('s_add_u32 %s, %s, %s' % (sA, sA, sC))
                a('s_add_u32 %s, %s, 0x%x' % (dst, sA, WS_FLAG_IB))
            a('s_and_b32 %s, %s, 15' % (sA, sT)); a('s_add_u32 %s, %s, 8' % (sA, sA))
            a('s_lshl_b32 %s, %s, %s' % (sInc, sCh, sA)); a('s_add_u32 %s, %s, 1' % (sInc, sInc))
            a('v_lshl_add_u32 %s, %s, 2, 8' % (v(V.dummy), v(V.g)))
            return
        if self.o['fl'] != '':
            pol = int(self.o['fl'][1]); mode = self.o['fl'][0]
            a('s_lshr_b32 %s, %s, 4' % (sB, sT))
            for dst, wp, gr in ((sF, sW, sB), (sE, sB, sW)):
                a('s_lshl3_add_u32 %s, %s, %s' % (sA, sP, wp))
                if mode == 'x': a('s_xor_b32 %s, %s, %d' % (sC, sP, pol))
                else: a('s_lshr_b32 %s, %s, 2' % (sC, wp)); a('s_xor_b32 %s, %s, %d' % (sC, sC, pol))
                a('s_lshl1_add_u32 %s, %s, %s' % (sA, sA, sC))
                a('s_lshl3_add_u32 %s, %s, %s' % (sA, sA, gr))
                a('s_lshl_b32 %s, %s, 10' % (sA, sA))
                a('s_add_u32 %s, %s, 0x%x' % (dst, sA, WS_FLAG))
            return
        fs = int(self.o['fstride'])
        a('s_lshl_b32 %s, %s, %d' % (sA, sP, fs+6)); a('s_add_u32 %s, %s, 0x%x' % (sA, sA, WS_FLAG))
        a('s_lshr_b32 %s, %s, 4' % (sB, sT))
        a('s_lshl_b32 %s, %s, %d' % (sF, sW, fs+3)); a('s_add_u32 %s, %s, %s' % (sF, sF, sA))
        a('s_lshl_b32 %s, %s, %d' % (sC, sB, fs)); a('s_add_u32 %s, %s, %s' % (sF, sF, sC))
        a('s_lshl_b32 %s, %s, %d' % (sE, sB, fs+3)); a('s_add_u32 %s, %s, %s' % (sE, sE, sA))
        a('s_lshl_b32 %s, %s, %d' % (sC, sW, fs)); a('s_add_u32 %s, %s, %s' % (sE, sE, sC))
    def g1_probe(self):
        a = self.a
        NB = int(self.o['nb'])
        a('s_lshl3_add_u32 %s, s2, %s' % (sCh2, sW))
        def f():
            a('s_mov_b32 %s, 0x%x' % (sA, WS_FLAG2 + (int(self.o['pbase']) << 21)))
            for side in range(2):
                for k in range(NB):
                    r = 62+side*NB+k
                    a('s_mov_b32 s%d, 0x%x' % (r, SENT))
                    a('s_%s s%d, s[24:25], %s offset:0x%x glc' % (self.o['pop'], r, sA, side*0x2000 + (k & 1)*0x1000 + (k >> 1)*0x4000 + k*0x100))
        self.cond(sCh2, 8*8+PW, f)
    def g1_eval(self):
        a = self.a
        NB = int(self.o['nb'])
        def f():
            a('s_waitcnt lgkmcnt(%d)' % (NB+1))
            a('s_nop %s' % self.o['pnop'])
            a('s_mov_b32 %s, 0' % sA); a('s_mov_b32 %s, 0' % sB)
            for k in range(NB):
                a('s_cmp_lg_u32 s%d, 0x%x' % (62+NB+k, SENT)); a('s_addc_u32 %s, %s, 0' % (sB, sB))
            a('s_cmp_le_u32 %s, %s' % (sB, self.o['pthr']))
            a('s_cselect_b32 s94, 2, 3')
            if self.o['ts']:
                a('s_lshl_b32 %s, %s, 4' % (sA, sA)); a('s_lshl_b32 %s, %s, 8' % (sB, sB)); a('s_or_b32 s94, s94, %s' % sA); a('s_or_b32 s94, s94, %s' % sB)
            if self.o['force'] != '': a('s_mov_b32 s94, %d' % (2+int(self.o['force'])))
            a('s_atomic_or s94, s[20:21], 0x80')
        self.cond(sCh2, 8*8+PW, f)
    def g1_pre(self):
        a = self.a
        self.cond(sW, PW, lambda: a('s_load_dword s95, s[20:21], 0x80'))
    def g1_read(self):
        a = self.a
        def f():
            a('buffer_load_dword %s, %s, %s, 0 offen offset:128 sc1' % (v(V.dummy), v(V.EL), SDBG))
        self.cond(sW, PW, f)
    def g1_wait(self):
        a = self.a
        def f():
            lp, ok = self.label('g1'), self.label('g1ok')
            a('s_mov_b32 %s, 0' % sCnt)
            a(lp+':')
            a('s_waitcnt vmcnt(0)')
            a('v_cmp_ne_u32 vcc, 0, %s' % v(V.dummy))
            a('s_cbranch_vccnz %s' % ok)
            a('buffer_load_dword %s, %s, %s, 0 offen offset:128 sc1' % (v(V.dummy), v(V.EL), SDBG))
            a('s_add_u32 %s, %s, 1' % (sCnt, sCnt))
            a('s_cmp_lt_u32 %s, 0x%x' % (sCnt, SPIN_MAX))
            a('s_cbranch_scc1 %s' % lp)
            a('s_waitcnt vmcnt(0)')
            a(ok+':')
            a('ds_write_b32 %s, %s offset:4' % (v(V.dummy2), v(V.dummy)))
        self.cond(sW, PW, f)
    def g1_use(self):
        a = self.a
        a('s_waitcnt lgkmcnt(8)')
        a('v_readfirstlane_b32 %s, %s' % (sCh, v(V.dummy)))
        if self.o['ts']: a('s_mov_b32 s%d, %s' % (sTS+24, sCh))
        a('s_and_b32 %s, %s, 1' % (sCh, sCh)); a('s_lshl_b32 %s, %s, 13' % (sCh, sCh))
        a('s_xor_b32 %s, %s, %s' % (sEst, sEst, sCh))

    def p2_probe_issue(self):
        a = self.a
        def f():
            if self.o['ib3']:
                a('s_lshr_b32 %s, s2, 5' % sA); a('s_bfe_u32 %s, s2, 0x10004' % sCh2)
                a('s_lshl1_add_u32 %s, %s, %s' % (sA, sA, sCh2)); a('s_lshl_b32 %s, %s, 5' % (sA, sA))
                a('s_and_b32 %s, s2, 31' % sB); a('s_add_u32 %s, %s, %s' % (sA, sA, sB))
                a('s_lshl_b32 %s, %s, 8' % (sA, sA)); a('s_add_u32 %s, %s, 0x%x' % (sDP, sA, WS_FLAG2))
            else:
                a('s_bfe_u32 %s, %s, 0x30003' % (sA, sT)); a('s_lshl3_add_u32 %s, %s, %s' % (sA, sP, sA))
                a('s_lshr_b32 %s, %s, 6' % (sCh2, sT))
                a('s_lshl1_add_u32 %s, %s, %s' % (sA, sA, sCh2))
                a('s_and_b32 %s, %s, 7' % (sB, sT)); a('s_lshl3_add_u32 %s, %s, %s' % (sA, sA, sB))
                a('s_lshl_b32 %s, %s, 10' % (sA, sA)); a('s_add_u32 %s, %s, 0x%x' % (sDP, sA, WS_FLAG2))
            a('s_xor_b32 %s, %s, 0x2000' % (sDM, sDP))
            a('s_mov_b64 s[92:93], 0')
            a('s_atomic_swap s92, s[24:25], %s glc' % sDP)
            a('s_atomic_swap s93, s[24:25], %s glc' % sDM)
        self.cond(sW, PW, f)
    def p2_probe_eval(self):
        a = self.a; T = V.T
        def f():
            if self.o['r2']:
                a('s_waitcnt lgkmcnt(0)')
                a('s_atomic_swap s92, s[24:25], %s glc' % sDP)
                a('s_atomic_swap s93, s[24:25], %s glc' % sDM)
            a('s_waitcnt lgkmcnt(1)')
            a('s_nop %s' % self.o['pnop'])
            a('s_getreg_b32 %s, hwreg(HW_REG_IB_STS, 8, 4)' % sA)
            a('s_cmp_eq_u32 %s, 0' % sA)
            a('s_cselect_b32 %s, 1, 0' % sA)
            a('s_xor_b32 %s, %s, %s' % (sCh2, sCh2, sA))
            if self.o['force'] != '': a('s_xor_b32 %s, %s, %s' % (sCh2, sP, self.o['force']))
            if not self.o['ib3']:
                a('v_mov_b32 %s, %d' % (v(T), CNT)); a('v_mov_b32 %s, %s' % (v(T+1), sCh2))
                a('ds_write_b32 %s, %s offset:4' % (v(T), v(T+1)))
            if self.o['ib3']:
                l = self.label('nv')
                a('s_and_b32 %s, s2, 0x8f' % sA); a('s_cmp_lg_u32 %s, 8' % sA); a('s_cbranch_scc1 %s' % l)
                a('s_cmp_eq_u32 s2, 120'); a('s_cbranch_scc1 %s' % l)
                a('s_lshl_b32 s94, %s, 8' % sCh2); a('s_add_u32 s94, s94, 0x1001')
                a('s_atomic_add s94, s[20:21], 0x0')
                a(l+':')
        self.cond(sW, PW, f)
    def vote_read(self):
        a = self.a
        if self.o['novr']: return
        def f():
            a('s_mov_b32 s22, 256'); a('s_mov_b32 s23, 0x20000')
            a('v_mov_b32 %s, 0' % v(V.EL))
            a('buffer_load_dword %s, %s, %s, 0 offen sc1' % (v(V.dummy), v(V.EL), SDBG))
        self.cond(sW, PW, f)
    def vote_use(self):
        a = self.a; T = V.T
        def f():
            if not self.o['novr']:
                a('v_readfirstlane_b32 %s, %s' % (sA, v(V.dummy)))
                a('s_bfe_u32 %s, %s, 0x40008' % (sB, sA)); a('s_bfe_u32 %s, %s, 0x4000c' % (sC, sA))
                a('s_sub_u32 %s, %s, %s' % (sC, sC, sB))
                a('s_xor_b32 %s, %s, 1' % (sA, sP))
                a('s_cmp_ge_u32 %s, 4' % sB); a('s_cselect_b32 %s, %s, %s' % (sCh2, sA, sCh2))
                a('s_cmp_ge_u32 %s, 4' % sC); a('s_cselect_b32 %s, %s, %s' % (sCh2, sP, sCh2))
            a('v_mov_b32 %s, %s' % (v(T+1), sCh2))
            a('ds_write_b32 %s, %s offset:4' % (v(V.dummy2), v(T+1)))
        self.cond(sW, PW, f)
    def zero3(self):
        a = self.a
        a('s_sub_u32 %s, s2, 16' % sZ)
        a('s_and_b32 %s, %s, 0xffffffef' % (sZ, sZ))
        def f():
            a('s_lshr_b32 %s, s2, 5' % sA)
            a('s_lshl1_add_u32 %s, %s, %s' % (sA, sW, sA))
            a('s_lshl_b32 %s, %s, 13' % (sA, sA)); a('s_add_u32 %s, %s, 0x%x' % (sA, sA, WS_FLAG))
            for i in range(0, 8, 2): a('s_mov_b64 s[%d:%d], 0' % (84+i, 85+i))
            for i in range(8):
                a('s_atomic_swap s%d, s[24:25], %s offset:0x%x glc' % (84+i, sA, i << 10))
        self.cond(sZ, 0, f)
    def ready3(self):
        a = self.a
        def f():
            a('s_mov_b32 s94, 1')
            a('s_waitcnt lgkmcnt(0)')
            a('s_atomic_add s94, s[20:21], 0x0')
        self.cond(sZ, 0, f)
    def flag_addrs3(self):
        a = self.a
        a('s_lshr_b32 %s, %s, 4' % (sB, sT))
        for dst, wp, gr in ((sF, sW, sB), (sE, sB, sW)):
            a('s_lshl4_add_u32 %s, %s, %s' % (sC, wp, gr)); a('s_lshl_b32 %s, %s, 10' % (sC, sC))
            a('s_add_u32 %s, %s, 0x%x' % (dst, sC, WS_FLAG))
    def side3(self):
        a = self.a
        a('s_bfe_u32 %s, %s, 0x1000a' % (sCh2, sRv))
        a('s_xor_b32 %s, %s, %s' % (sCh2, sCh2, sP)); a('s_lshl_b32 %s, %s, 13' % (sCh2, sCh2))
        a('s_add_u32 %s, %s, %s' % (sF, sF, sCh2))
    def side3b(self):
        a = self.a
        a('s_add_u32 %s, %s, %s' % (sE, sE, sCh2))
        a('s_xor_b32 %s, %s, %s' % (sZp, sEst, sCh2))
    def side3c(self):
        a = self.a
        a('s_and_b32 %s, %s, 0x2000' % (sA, sZ)); a('s_xor_b32 %s, %s, %s' % (sA, sA, sCh2)); a('s_add_u32 %s, %s, %s' % (sEld, sEld, sA))
    def p2_choice_read(self):
        self.a('ds_read_b32 %s, %s offset:4' % (v(V.dummy), v(V.dummy2)))
    def p2_choice_use(self):
        a = self.a
        a('s_waitcnt lgkmcnt(8)')
        a('v_readfirstlane_b32 %s, %s' % (sCh2, v(V.dummy)))
        a('s_lshl_b32 %s, %s, 13' % (sA, sCh2))
        a('s_xor_b32 %s, %s, %s' % (sZp, sEst, sA))
        if self.o['ts']: a('s_mov_b32 s%d, %s' % (sTS+24, sCh2))
    def ex_addrs_ib2(self):
        a = self.a; T = V.T
        a('s_lshl_b32 %s, %s, 4' % (sB, sW)); a('s_xor_b32 %s, %s, %s' % (sB, sB, sT)); a('s_lshl_b32 %s, %s, 8' % (sB, sB))
        a('v_lshlrev_b32 %s, 4, %s' % (v(T), v(V.n)))
        a('v_lshl_add_u32 %s, %s, 10, %s' % (v(T), v(V.g), v(T)))
        a('v_xor_b32 %s, %s, %s' % (v(T), sB, v(T)))
        a('v_and_b32 %s, 0x6000, %s' % (v(T+1), v(T)))
        a('v_add_u32 %s, %s, %s' % (v(T), v(T), v(T+1)))
        a('v_lshl_add_u32 %s, %s, 18, %s' % (v(V.Est), v(V.g), v(T)))
        a('v_and_b32 %s, 0xdcff, %s' % (v(V.Eld0), v(T)))
        a('s_lshl3_add_u32 %s, %s, %s' % (sEst, sP, sW)); a('s_lshl_b32 %s, %s, 20' % (sEst, sEst))
        a('s_and_b32 %s, %s, 2' % (sA, sW)); a('s_lshl_b32 %s, %s, 12' % (sA, sA)); a('s_add_u32 %s, %s, %s' % (sEst, sEst, sA))
    def misc_ib2(self):
        a = self.a
        a('s_lshl_b32 %s, %s, 7' % (sEld, sP)); a('s_add_u32 %s, %s, %s' % (sEld, sEld, sT)); a('s_lshl_b32 %s, %s, 16' % (sEld, sEld))
        a('s_and_b32 %s, %s, 15' % (sA, sT)); a('s_add_u32 %s, %s, 8' % (sA, sA))
        a('s_lshl_b32 %s, %s, %s' % (sInc, sCh2, sA)); a('s_add_u32 %s, %s, 1' % (sInc, sInc))
        a('v_lshl_add_u32 %s, %s, 2, 8' % (v(V.dummy), v(V.g)))
        a('s_bfe_i32 %s, %s, 0x10005' % (sZ, sT))
    def ld_addrs_ib2(self):
        a = self.a; T = V.T
        a('s_xor_b32 %s, %s, %s' % (sA, sRv, sZ))
        a('v_lshrrev_b32 %s, %s, %s' % (v(T), v(V.dummy), sA))
        for q in range(4):
            a('v_bfe_u32 %s, %s, %d, 1' % (v(T+1), v(T), q))
            a('v_lshl_add_u32 %s, %s, 13, %s' % (v(T+2+q), v(T+1), v(V.Eld0)))
    def major_post(self):
        a = self.a; T = V.T
        def f():
            a('s_bfe_u32 %s, %s, 0x100008' % (sA, sRv)); a('s_bcnt1_i32_b32 %s, %s' % (sA, sA))
            a('s_cmp_gt_u32 %s, 8' % sA); a('s_cselect_b32 %s, 0x2000, 0' % sA)
            a('v_mov_b32 %s, %s' % (v(T), sA))
            a('ds_write_b32 %s, %s offset:8' % (v(V.dummy2), v(T)))
        self.cond(sW, 0, f)
    def major_read(self):
        self.a('ds_read_b32 %s, %s offset:8' % (v(V.dummy), v(V.dummy2)))
    def major_use(self):
        a = self.a
        a('v_readfirstlane_b32 %s, %s' % (sCh2, v(V.dummy)))
        a('s_xor_b32 %s, %s, %s' % (sZp, sEst, sCh2))
    def major_use2(self):
        a = self.a
        a('s_and_b32 %s, %s, 0x2000' % (sA, sZ)); a('s_xor_b32 %s, %s, %s' % (sA, sA, sCh2)); a('s_add_u32 %s, %s, %s' % (sEld, sEld, sA))
        a('s_lshr_b32 %s, %s, 4' % (sB, sT))
        for dst, wp, gr in ((sF, sW, sB), (sE, sB, sW)):
            a('s_lshl3_add_u32 %s, %s, %s' % (sA, sP, wp)); a('s_lshl4_add_u32 %s, %s, %s' % (sA, sA, gr)); a('s_lshl_b32 %s, %s, 10' % (sA, sA))
            a('s_add_u32 %s, %s, %s' % (sA, sA, sCh2)); a('s_add_u32 %s, %s, 0x%x' % (dst, sA, WS_FLAG2))

    def gz_issue(self):
        a = self.a
        a('s_sub_u32 %s, s2, 16' % sZ)
        a('s_and_b32 %s, %s, 0xffffffef' % (sZ, sZ))
        def f():
            a('s_lshr_b32 %s, s2, 5' % sZp)
            a('s_lshl1_add_u32 %s, %s, %s' % (sCh, sW, sZp))
            a('s_lshl_b32 %s, %s, 13' % (sCh, sCh)); a('s_add_u32 %s, %s, 0x%x' % (sCh, sCh, WS_FLAG))
            for i in range(0, 8, 2): a('s_mov_b64 s[%d:%d], 0' % (84+i, 85+i))
            for i in range(8):
                a('s_atomic_swap s%d, s[24:25], %s offset:0x%x glc' % (84+i, sCh, i << 10))
        self.cond(sZ, 0, f)
    def gz_publish(self):
        a = self.a
        def f():
            a('s_waitcnt lgkmcnt(0)')
            a('s_memtime s[84:85]')
            a('s_mov_b32 s88, 0')
            a('s_waitcnt lgkmcnt(0)')
            a('s_atomic_add s88, s[24:25], %s glc' % sCh)
            a('s_waitcnt lgkmcnt(0)')
            a('s_memtime s[86:87]')
            a('s_mul_i32 %s, %s, 13' % (sZp, sZp)); a('s_add_u32 %s, %s, 5' % (sZp, sZp))
            a('s_waitcnt lgkmcnt(0)')
            a('s_sub_u32 s84, s86, s84'); a('s_lshr_b32 s84, s84, 3'); a('s_min_u32 s84, s84, 0x3ff')
            a('s_lshl_b32 s84, s84, %s' % sZp); a('s_add_u32 s84, s84, 1')
            a('s_atomic_add s84, s[20:21], 0x0')
        self.cond(sZ, 0, f)
    def gz_read(self):
        a = self.a
        a('v_mov_b32 %s, 0' % v(V.EL))
        a('buffer_load_dword %s, %s, %s, 0 offen sc1' % (v(V.dummy), v(V.EL), SDBG))
    def gz_check(self):
        a = self.a; l0, l1 = self.label('gz'), self.label('gzok')
        a('s_waitcnt vmcnt(0)')
        a('v_readfirstlane_b32 %s, %s' % (sRv, v(V.dummy)))
        a('s_bitcmp1_b32 %s, 4' % sRv)
        a('s_cbranch_scc1 %s' % l1)
        a('s_mov_b32 %s, 0' % sCnt)
        a(l0+':')
        a('buffer_load_dword %s, %s, %s, 0 offen sc1' % (v(V.dummy), v(V.EL), SDBG))
        a('s_add_u32 %s, %s, 1' % (sCnt, sCnt))
        a('s_cmp_gt_u32 %s, 0x%x' % (sCnt, SPIN_MAX))
        a('s_waitcnt vmcnt(0)')
        a('v_readfirstlane_b32 %s, %s' % (sRv, v(V.dummy)))
        a('s_cbranch_scc1 %s' % l1)
        a('s_bitcmp0_b32 %s, 4' % sRv)
        a('s_cbranch_scc1 %s' % l0)
        a(l1+':')
        a('s_bfe_u32 %s, %s, 0xd0005' % (sA, sRv)); a('s_bfe_u32 %s, %s, 0xd0012' % (sB, sRv))
        a('s_cmp_lt_u32 %s, %s' % (sB, sA))
        a('s_cselect_b32 %s, 0x2000, 0' % sCh)
        if self.o['force'] != '': a('s_mov_b32 %s, %d' % (sCh, int(self.o['force']) << 13))
        a('s_xor_b32 %s, %s, %s' % (sEst, sEst, sCh))
        if self.o['ts']: a('s_mov_b32 s%d, %s' % (sTS+24, sRv))
    def gz_flag_addrs(self):
        a = self.a
        a('s_xor_b32 %s, %s, %s' % (sEld, sEld, sCh))
        a('s_lshr_b32 %s, %s, 4' % (sB, sT))
        if not self.o['optx']:
            for dst, wp, gr in ((sF, sW, sB), (sE, sB, sW)):
                a('s_and_b32 %s, %s, 3' % (sC, wp)); a('s_lshl2_add_u32 %s, %s, %s' % (sC, sP, sC))
                a('s_lshr_b32 %s, %s, 2' % (sA, wp)); a('s_lshl1_add_u32 %s, %s, %s' % (sC, sC, sA))
                a('s_lshl3_add_u32 %s, %s, %s' % (sC, sC, gr)); a('s_lshl_b32 %s, %s, 10' % (sC, sC))
                a('s_xor_b32 %s, %s, %s' % (sC, sC, sCh))
                a('s_add_u32 %s, %s, 0x%x' % (dst, sC, WS_FLAG))
            return
        a('s_lshl_b32 %s, %s, 13' % (sA, sP)); a('s_xor_b32 %s, %s, %s' % (sA, sA, sCh)); a('s_add_u32 %s, %s, 0x%x' % (sA, sA, WS_FLAG))
        for dst, wp, gr in ((sF, sW, sB), (sE, sB, sW)):
            a('s_lshl4_add_u32 %s, %s, %s' % (sC, wp, gr)); a('s_lshl_b32 %s, %s, 10' % (sC, sC))
            a('s_add_u32 %s, %s, %s' % (dst, sC, sA))

    def zero_flags_ib(self):
        a = self.a
        def f():
            a('s_waitcnt lgkmcnt(0)')
            a('s_lshl_b32 %s, %s, 13' % (sA, sCh)); a('s_add_u32 %s, %s, %s' % (sA, sA, sEst)); a('s_add_u32 %s, %s, 0x%x' % (sA, sA, WS_FLAG_IB))
            for i in range(0, 8, 2): a('s_mov_b64 s[%d:%d], 0' % (84+i, 85+i))
            for i in range(8):
                a('s_atomic_swap s%d, s[24:25], %s offset:0x%x glc' % (84+i, sA, i << 10))
        self.cond(sT, 1, f)
    def set_ready_ib(self):
        a = self.a
        def f():
            a('s_add_u32 %s, %s, 8' % (sA, sW)); a('s_lshl_b32 %s, %s, %s' % (sZ, sCh, sA)); a('s_add_u32 %s, %s, 1' % (sZ, sZ))
            a('s_waitcnt lgkmcnt(0)')
            a('s_atomic_add %s, s[20:21], %s' % (sZ, sRd))
        self.cond(sT, 1, f)
    def flag_side(self):
        a = self.a
        a('s_lshr_b32 %s, %s, 8' % (sRv, sRv))
        a('s_lshr_b32 %s, %s, %s' % (sA, sRv, sW)); a('s_and_b32 %s, %s, 1' % (sA, sA)); a('s_lshl_b32 %s, %s, 13' % (sA, sA)); a('s_add_u32 %s, %s, %s' % (sF, sF, sA))
    def flag_side2(self):
        a = self.a
        a('s_lshr_b32 %s, %s, 4' % (sB, sT))
        a('s_lshr_b32 %s, %s, %s' % (sA, sRv, sB)); a('s_and_b32 %s, %s, 1' % (sA, sA)); a('s_lshl_b32 %s, %s, 13' % (sA, sA)); a('s_add_u32 %s, %s, %s' % (sE, sE, sA))
    def zero_flags(self):
        a = self.a
        a('s_sub_u32 %s, s2, 16' % sZ)
        a('s_and_b32 %s, %s, 0xffffffef' % (sZ, sZ))
        def f():
            fs = int(self.o['fstride'])
            a('s_lshr_b32 %s, s2, 5' % sZp)
            a('s_lshl3_add_u32 %s, %s, %s' % (sA, sZp, sW))
            if self.o['fl'] != '':
                pol = int(self.o['fl'][1]); mode = self.o['fl'][0]; fs = 10
                if mode == 'x': a('s_xor_b32 %s, %s, %d' % (sC, sZp, pol))
                else: a('s_lshr_b32 %s, %s, 2' % (sC, sW)); a('s_xor_b32 %s, %s, %d' % (sC, sC, pol))
                a('s_lshl1_add_u32 %s, %s, %s' % (sA, sA, sC))
            a('s_lshl_b32 %s, %s, %d' % (sA, sA, fs+3)); a('s_add_u32 %s, %s, 0x%x' % (sA, sA, WS_FLAG))
            for i in range(0, 8, 2): a('s_mov_b64 s[%d:%d], 0' % (84+i, 85+i))
            for i in range(8):
                a('s_atomic_swap s%d, s[24:25], %s offset:0x%x glc' % (84+i, sA, i << fs))
            a('s_lshl_b32 %s, %s, 7' % (sZp, sZp))
        self.cond(sZ, 0, f)
    def set_ready(self):
        a = self.a
        def f():
            a('s_mov_b32 %s, 1' % sInc)
            a('s_waitcnt lgkmcnt(0)')
            a('s_atomic_add %s, s[20:21], %s' % (sInc, sZp))
        self.cond(sZ, 0, f)
    def ready_issue(self):
        self.a('s_load_dword %s, s[20:21], %s' % (sRv, sRd))
    def ready_check(self):
        a = self.a; l0, l1 = self.label('rdy'), self.label('rdyok')
        def notready():
            if self.o['g1']: a('s_cmp_lt_u32 %s, 16' % sRv)
            elif self.o['ib3']: a('s_and_b32 %s, %s, 0xff' % (sA, sRv)); a('s_cmp_lt_u32 %s, 23' % sA)
            else: a('s_bitcmp0_b32 %s, 3' % sRv)
        notready()
        a('s_cbranch_scc1 %s' % l0)
        a(l1+':')
        def tail():
            lp = self.label('rdyl')
            a(l0+':')
            a('s_mov_b32 %s, 0' % sCnt)
            a('v_mov_b32 %s, 0' % v(V.O+1))
            a(lp+':')
            a('buffer_load_dword %s, %s, %s, %s offen sc1' % (v(V.O), v(V.O+1), SDBG, sRd))
            a('s_add_u32 %s, %s, 1' % (sCnt, sCnt))
            a('s_cmp_gt_u32 %s, 0x%x' % (sCnt, SPIN_MAX))
            a('s_waitcnt vmcnt(0)')
            a('v_readfirstlane_b32 %s, %s' % (sRv, v(V.O)))
            a('s_cbranch_scc1 %s' % l1)
            notready()
            a('s_cbranch_scc1 %s' % lp)
            a('s_branch %s' % l1)
        self.tail.append(tail)
    def set_flag(self, ex):
        a = self.a
        if not ((self.o['ib'] or self.o['ib2']) and ex == 0): a('s_mov_b32 %s, 0x%x' % (sInc, 1 << (24*ex)))
        a('s_atomic_add %s, s[24:25], %s' % (sInc, sF))
    def poll(self, ex, under=None):
        a = self.a; lp, ok = self.label('poll'), self.label('pollok')
        if under:
            a('s_mov_b32 %s, 0' % sRv)
            a('s_atomic_add %s, s[24:25], %s glc' % (sRv, sE))
            under()
            a('s_waitcnt lgkmcnt(0)')
            a('s_bitcmp1_b32 %s, %d' % (sRv, 4+24*ex))
            a('s_cbranch_scc1 %s' % ok)
        a('s_mov_b32 %s, 0' % sCnt)
        a(lp+':')
        a('s_mov_b32 %s, 0' % sRv)
        a('s_atomic_add %s, s[24:25], %s glc' % (sRv, sE))
        a('s_add_u32 %s, %s, 1' % (sCnt, sCnt))
        a('s_cmp_gt_u32 %s, 0x%x' % (sCnt, SPIN_MAX))
        a('s_waitcnt lgkmcnt(0)')
        a('s_cbranch_scc1 %s' % ok)
        if self.o['slp']:
            a('s_bitcmp1_b32 %s, %d' % (sRv, 4+24*ex))
            a('s_cbranch_scc1 %s' % ok)
            a('s_sleep %s' % self.o['slp'])
            a('s_branch %s' % lp)
        else:
            a('s_bitcmp0_b32 %s, %d' % (sRv, 4+24*ex))
            a('s_cbranch_scc1 %s' % lp)
        a(ok+':')
        if self.o['pbar']: a('s_barrier')
    def code_pf(self, name):
        a = self.a
        l = self.label('pc')
        a('s_getpc_b64 s[28:29]')
        a(l+':')
        a('s_sub_u32 s28, s28, %s-%s' % (l, name))
        a('s_subb_u32 s29, s29, 0')
        a('v_lshlrev_b32 %s, 5, v0' % v(V.O+6))
        a('global_load_dword %s, %s, s[28:29]' % (v(V.dummy), v(V.O+6)))

    def code_spf(self, name):
        a = self.a
        l = self.label('pc')
        a('s_getpc_b64 s[28:29]')
        a(l+':')
        a('s_sub_u32 s28, s28, %s-%s' % (l, name))
        a('s_subb_u32 s29, s29, 0')
        a('s_lshr_b32 %s, s2, 4' % sA)
        a('s_lshl3_add_u32 %s, %s, %s' % (sA, sA, sW))
        a('s_lshl_b32 %s, %s, 7' % (sA, sA))
        a('s_load_dword s94, s[28:29], %s' % sA)

    def ifelse(self, reg, val, feq, fne, eq_first=False):
        a = self.a; l0, l1 = self.label('ie'), self.label('iend')
        if eq_first:
            a('s_cmp_lg_u32 %s, %d' % (reg, val)); a('s_cbranch_scc1 %s' % l0)
            feq(); a('s_branch %s' % l1); a(l0+':'); fne()
        else:
            a('s_cmp_eq_u32 %s, %d' % (reg, val)); a('s_cbranch_scc1 %s' % l0)
            fne(); a('s_branch %s' % l1); a(l0+':'); feq()
        a(l1+':')
    def touch(self, rnd):
        a = self.a
        a('s_mov_b64 exec, 0')
        for k in range(7):
            a('s_cmp_eq_u32 %s, %d' % (sW, k)); a('s_cbranch_scc1 stub_%d' % (8*rnd+k))
        a('s_branch stub_%d' % (8*rnd+7))
        a('ret_%d:' % rnd)
        a('s_mov_b64 exec, -1')

    def cond(self, reg, val, f):
        a = self.a; l = self.label('c')
        a('s_cmp_lg_u32 %s, %d' % (reg, val)); a('s_cbranch_scc1 %s' % l)
        f()
        a(l+':')

    def build_one(self):
        a = self.a; o = self.o
        name = NAME + '_kernel'
        self.kernel_head(name); end = self.label('end')
        self.prologue1(end)
        wA, wB = o['wA'], o['wB']
        def wat(pos, rows=(0, 1, 2, 3)):
            f = lambda: [self.w_dma1(i) for i in rows]
            if wA == pos and wB == pos: f()
            elif wA == pos: self.cond(sP, 0, f)
            elif wB == pos: self.cond(sP, 1, f)
        self.wat = wat
        bd = int(o['bdelay'])
        if o['touch'] == 'pre': self.touch(0)
        self.mark('touched')
        a('s_waitcnt lgkmcnt(0)')
        self.mark('karg')
        if o['wsoff']:
            a('s_add_u32 s24, s24, 0x%x' % (int(o['wsoff']) << 20)); a('s_addc_u32 s25, s25, 0')
        gz = o['gz']
        g1 = o['g1']
        if g1: self.g1_probe(); self.g1_pre(); self.zero3(); a('s_mov_b32 %s, 0' % sRd)
        elif gz: self.gz_issue()
        elif o['ib']: self.probe_issue()
        elif o['ib3']: self.p2_probe_issue(); self.zero3(); a('s_mov_b32 %s, 0' % sRd)
        elif o['ib2']: self.p2_probe_issue(); self.zero_flags()
        else: self.zero_flags()
        misc = lambda: (self.srds(), self.calc_k0(), self.w_prep(), 0 if g1 else self.gz_flag_addrs() if gz else self.flag_addrs3() if o['ib3'] else self.flag_addrs(), self.misc_ib2() if o['ib2'] else 0)
        if wB == 'first':
            def fb():
                misc(); self.w_dma()
                if bd == 0: self.p1_issue()
            self.ifelse(sP, 1, fb, self.p1_issue)
        elif bd: self.cond(sP, 0, self.p1_issue)
        else: self.p1_issue()
        if o['ib']: self.probe_eval(); self.zero_flags_ib()
        if g1: self.spec_early(); self.g1_eval(); a('s_mov_b32 s22, 256'); a('s_mov_b32 s23, 0x20000'); a('v_mov_b32 %s, 0' % v(V.EL))
        if gz: self.gz_publish(); a('s_mov_b32 s22, 256'); a('s_mov_b32 s23, 0x20000')
        if o['touch'] == 'post': self.touch(0)
        if o['touch']: self.cond(sT, 0, lambda: self.touch(1))
        if o['ib2']:
            if o['r2']: self.p1_addrs(); self.gen_F16(); self.p2_probe_eval(); self.coop_init()
            else: self.p2_probe_eval(); self.p1_addrs(); self.gen_F16(); self.coop_init()
        else: self.p1_addrs(); self.gen_F16(); self.coop_init()
        if bd == 1: self.cond(sP, 1, self.p1_issue)
        self.gen_M2()
        if o['ib']: self.ex_addrs_ib(); self.set_ready_ib()
        elif gz: self.ex_addrs()
        elif g1: self.ex_addrs(); self.ready3()
        elif o['ib3']: self.ex_addrs_ib2(); self.ready3()
        elif o['ib2']: self.ex_addrs_ib2(); self.set_ready()
        else: self.ex_addrs(); self.set_ready()
        X = [misc, self.coop_gen, lambda: self.gen_B(True, False), lambda: (self.p2_addrs(), self.w_addr())]
        nearly = max(0, bd-2)
        def early():
            for f in X[(1 if wB == 'first' else 0):nearly]: f()
            self.p1_issue()
        if bd >= 2: self.cond(sP, 1, early)
        self.mark('w1')
        def Xat(k):
            if k < nearly or (k == 0 and wB == 'first'): self.cond(sP, 0, X[k])
            else: X[k]()
        if gz: self.p1_compute(0, self.gz_read, None, lambda: (self.gz_check(), self.spec_early()))
        elif g1:
            if wA == 'c1': misc()
            self.p1_compute(0, lambda: self.g1_read(), (self.w_dma if wA == 'c1' else None), self.g1_use, self.p2_choice_read, self.g1_wait)
        elif o['ib3']:
            self.vote_read()
            self.p1_compute(0, lambda: (self.vote_use(), self.spec_early()), None, self.p2_choice_use, self.p2_choice_read)
        elif o['ib2']: self.p1_compute(0, self.spec_early, None, self.p2_choice_use, self.p2_choice_read)
        else:
            def h1():
                if o['tlb1']:
                    a('s_add_u32 %s, %s, 0x%x' % (sA, sEst, self.ubase(0)))
                    a('v_and_b32 %s, 3, %s' % (v(V.T), v(V.lane)))
                    a('v_lshl_add_u32 %s, %s, 15, %s' % (v(V.T), v(V.T), v(V.Est)))
                    a('buffer_load_dword %s, %s, %s, %s offen' % (v(V.dummy), v(V.T), SWS, sA))
            if o['tlb1']: h1()
            self.p1_compute(1 if o['tlb1'] else 0, self.spec_early)
        self.stamp()
        if not gz: self.ready_issue()
        if wA != 'c1': Xat(0)
        n = 0
        if wA == 'postS1':
            assert wB == wA
            self.w_dma(); n = 4
        if wA == 'half':
            self.w_dma1(0); self.w_dma1(1); n = 2
        if g1: self.gz_flag_addrs()
        Xat(1)
        self.coop_post()
        self.mark('w2a')
        a('s_waitcnt vmcnt(%d) lgkmcnt(0)' % n)
        self.stamp()
        if not gz: self.ready_check()
        if o['ib']: self.flag_side()
        if o['ib3']: self.side3()
        self.mark('rdy')
        self.set_flag(0)
        if o['ib']: self.flag_side2()
        if o['ib3']: self.side3b()
        def under1():
            self.w_sload()
            if wA == 'postF': self.w_dma()
            if wA == 'half': self.w_dma1(2); self.w_dma1(3)
            if o['tlb2']:
                a('s_add_u32 %s, %s, 0x%x' % (sA, sEst, self.ubase(1)))
                a('v_and_b32 %s, 3, %s' % (v(V.T), v(V.lane)))
                a('v_lshl_add_u32 %s, %s, 15, %s' % (v(V.T), v(V.T), v(V.Est)))
                a('buffer_load_dword %s, %s, %s, %s offen' % (v(V.dummy), v(V.T), SWS, sA))
            Xat(2); self.B_dup()
            Xat(3)
            self.w_special()
        self.poll(0, under1)
        self.stamp()
        if self.o.get('fine'):
            a('s_memrealtime s[%d:%d]' % (sTS+2*self.nts, sTS+2*self.nts+1)); self.nts += 1
            self.fstamp()
        if o['ib']: self.ld_addrs_ib()
        if o.get('da') == 'votes':
            a('s_bfe_u32 s60, %s, 0x100008' % sRv); a('s_bcnt1_i32_b32 s60, s60')
            a('s_cmp_eq_u32 %s, 0' % sCh2); a('s_sub_u32 s58, 16, s60'); a('s_cmp_eq_u32 %s, 0' % sCh2); a('s_cselect_b32 s60, s60, s58')
            if 'dw' in o: a('s_cmp_eq_u32 %s, %s' % (sW, o['dw'])); a('s_cselect_b32 s60, s60, 0')
            a('s_mul_i32 s60, s60, 25'); a('s_mov_b32 s58, 0')
        if o['ib2']: self.ld_addrs_ib2()
        self.p2_issue()
        if o['ib3']: self.side3c()
        elif o['ib2']: self.major_post()
        self.coop_wait(); self.coop_read()
        self.p2_addrs2()
        a('s_waitcnt vmcnt(4)')
        self.w_edge()
        self.p2_compute(True)
        self.stamp()
        if o['ib2'] and not o['ib3']: self.major_use2()
        self.gen_M3()
        self.mark('w3a')
        a('s_waitcnt vmcnt(0)')
        self.stamp()
        self.set_flag(1)
        self.poll(1, self.p3_addrs)
        self.stamp()
        self.p3_issue()
        self.p3_soff()
        self.p3_compute()
        if 'da' in o:
            self.stamp(); a('s_waitcnt vmcnt(0)'); self.stamp()
            lp = self.label('dg')
            a('s_waitcnt lgkmcnt(0)')
            if o.get('db') == 'wb':
                a('s_cmp_eq_u32 %s, 1' % sSpec); a('s_cselect_b32 s60, s58, s60')
            a('s_sub_u32 %s, s60, s58' % sA)
            a('s_lshl_b32 %s, %s, 2' % (sA, sA))
            if 'dp' in o:
                a('s_cmp_eq_u32 %s, %s' % (sP, o['dp'])); a('s_cselect_b32 %s, %s, 0' % (sA, sA))
            a('s_add_u32 %s, %s, 3000' % (sA, sA))
            a(lp+':')
            a('s_memrealtime s[28:29]')
            a('s_waitcnt lgkmcnt(0)')
            a('s_sub_u32 %s, s28, s56' % sB)
            a('s_cmp_lt_u32 %s, %s' % (sB, sA))
            a('s_cbranch_scc1 %s' % lp)
        if o['ts']:
            self.stamp(); a('s_waitcnt vmcnt(0)'); self.stamp()
            if 'diag' in o:
                i = int(o['diag']); lp = self.label('dg')
                a('s_waitcnt lgkmcnt(0)')
                if 'xw' in o:
                    a('s_getreg_b32 %s, hwreg(HW_REG_XCC_ID, 0, 4)' % sA)
                    a('s_sub_u32 %s, %s, s2' % (sA, sA)); a('s_and_b32 %s, %s, 7' % (sA, sA)); a('s_mul_i32 %s, %s, 400' % (sA, sA))
                    if int(o['xw']) >= 0:
                        a('s_cmp_eq_u32 s2, %s' % o['xw']); a('s_cselect_b32 %s, %s, 0' % (sA, sA))
                else:
                    a('s_sub_u32 %s, s%d, s%d' % (sA, sTS+2*i, sTS+2*int(o.get('dj', 0))))
                    a('s_lshl_b32 %s, %s, 2' % (sA, sA))
                    if 'dp' in o:
                        a('s_cmp_eq_u32 %s, %s' % (sP, o['dp'])); a('s_cselect_b32 %s, %s, 0' % (sA, sA))
                a('s_add_u32 %s, %s, 3000' % (sA, sA))
                a(lp+':')
                a('s_memrealtime s[28:29]')
                a('s_waitcnt lgkmcnt(0)')
                a('s_sub_u32 %s, s28, s%d' % (sB, sTS))
                a('s_cmp_lt_u32 %s, %s' % (sB, sA))
                a('s_cbranch_scc1 %s' % lp)
            else:
                if o['ib'] or o['gz'] or o['ib2'] or o['g1']: self.nts += 1
                self.dump_stamps(0)
        a(end+':'); a('s_endpgm'); self.flush_tail()
        if o['touch']: self.insert_stubs(name)
        a.raw('.fill (%s+16384-.)/4, 4, 0xbf810000' % name)
        launch = '; @launch grid=(256,1,1) block=(512,1,1) lds=%d\n' % LDS_TOTAL
        return self.finish(launch, [name])

    def insert_stubs(self, name):
        import subprocess, re
        from asmlib import Ins
        a = self.a
        txt = '.amdgcn_target "amdgcn-amd-amdhsa--gfx950"\n.text\n' + a.text() + ''.join('stub_%d:\n' % k for k in range(16)) + 's_endpgm\nspec_tab:\n'
        open('pass1.s', 'w').write(txt)
        subprocess.check_call(['clang', '-x', 'assembler', '-target', 'amdgcn-amd-amdhsa', '-mcpu=gfx950', '-c', 'pass1.s', '-o', 'pass1.o'])
        dis = subprocess.check_output(['llvm-objdump', '-d', '--mcpu=gfx950', 'pass1.o']).decode()
        addrs = [int(m.group(1), 16) for m in re.finditer(r'// ([0-9A-F]{12}):', dis)]
        real = [i for i, x in enumerate(a.ins) if x.kind != 'none']
        assert len(addrs) == len(real) + 1, (len(addrs), len(real))
        size = {real[k]: addrs[k+1] - addrs[k] for k in range(len(real))}
        pos = ENTRY_OFF; nxt = ENTRY_OFF + 1024 - 256
        nxt = (nxt + 1023)//1024*1024
        out = []; k = 0; prev = None; ez = False
        for i, x in enumerate(a.ins):
            if i in size:
                glued = prev is not None and (prev.op == 's_getpc_b64' or 'rel32' in x.text)
                if prev is not None and prev.text.strip() == 's_mov_b64 exec, 0': ez = True
                if prev is not None and prev.text.strip() == 's_mov_b64 exec, -1': ez = False
                glued = glued or ez
                if pos >= nxt and k < 16 and not glued:
                    out.append(Ins('stub_%d:' % k)); out.append(Ins('s_cbranch_execz ret_%d' % (k >> 3)))
                    pos += 4; k += 1; nxt += 1024
                pos += size[i]; prev = x
            out.append(x)
        self.code_end = pos
        while k < 16:
            out.append(Ins('stub_%d:' % k)); out.append(Ins('s_branch ret_%d' % (k >> 3))); k += 1
        a.ins = out

    def finish(self, launch, names):
        hdr = '; GFNet spectral filter (two heads): 2-D FFT via bf16 MFMA DFT stages. Generated by dev/gen.py\n' + launch
        s = hdr + '.amdgcn_target "amdgcn-amd-amdhsa--gfx950"\n.text\n' + self.a.text()
        s += '.section .rodata,"a"\n' + '\n'.join(self.kd(n) for n in names) + '\n' + self.spec_table() + '\n'
        return s

if __name__ == '__main__':
    mode = sys.argv[1]; out = sys.argv[2]
    opt = {}
    for kv in sys.argv[3:]:
        k, x = kv.split('=')
        opt[k] = {'True': True, 'False': False}.get(x, x.replace('+', ' '))
    g = Gen(mode, **opt)
    s = g.build_three() if mode == 'three' else g.build_one()
    assert g.a.verify() == 0
    open(out, 'w').write(s)
    print('vgprs', NVGPR, 'lds', LDS_TOTAL, 'nops', g.a.nops, 'lines', len(g.a.ins))
```

```python
import sys, struct, math
import numpy as np
from asmlib import Asm

NAME = 'concat_heads__spectral_gfnet__spectral_gfnet__prompt'

def f2u(x): return struct.unpack('<I', struct.pack('<f', x))[0]
def lit(x): return '0x%08x' % f2u(x)
def bf16bits(x):
    u = f2u(float(x)); return ((u + 0x7FFF + ((u >> 16) & 1)) >> 16) & 0xFFFF
def sigma(m): return (m & 1) | ((m >> 1) & 1) << 3 | ((m >> 2) & 1) << 1 | ((m >> 3) & 1) << 2 | (m & 16)

S11 = 2.0**-11
SPIN_MAX = 0x4000
ENTRY_OFF = 0x300
SENT = 0x13572468
WS_FLAG_IB = 32 << 20
WS_FLAG2 = 33 << 20
PW = 7
sCh2 = 's100'
R0 = 0
R1 = 33024
WL = 66048
SCR = WL + 8*4*1056
SCR_B = SCR + 36*256
TABL = SCR_B + 8192
CNT = TABL + 16384
LDS_TOTAL = CNT + 64
WS_U1 = 0
WS_U2 = 8 << 20
WS_FLAG = 32 << 20
WS_TS = 72 << 20
WS_SIZE = 80 << 20

class V: pass
_n = [0]
def alloc(n, align=1):
    b = (_n[0] + align - 1)//align*align
    _n[0] = b + n
    return b
V.tid = alloc(1); V.lane = alloc(1)
for nm in 'g n Xoff Est X0w X0r0 X0r1 X1w X1r X2w X2r WP WM l16 dummy dummy2'.split(): setattr(V, nm, alloc(1))
V.Ooff, V.X3w0, V.X3w1, V.X3r = V.Xoff, V.X0w, V.X0r0, V.X0r1
V.T = alloc(10, 1)
V.EL = alloc(4); V.Eld = V.EL+3; V.Eld0 = V.EL+3
V.O = alloc(16, 4)
V.DA = alloc(32, 4)
V.DB = alloc(32, 4)
V.L = V.DB
V.F16 = alloc(8, 4)
V.M2 = alloc(16, 4)
V.F32 = alloc(32, 4)
V.TW = alloc(32, 4)
V.W = alloc(32, 4)
V.B = alloc(12, 4)
V.Bp = alloc(8, 4)
V.WF = alloc(4)
NVGPR = _n[0]
assert NVGPR <= 256, NVGPR
def v(i): return 'v%d' % i
def vr(i, n): return 'v[%d:%d]' % (i, i+n-1)

SX, SWR, SWI, SOUT, SDBG, SWS = 's[4:7]', 's[8:11]', 's[12:15]', 's[16:19]', 's[20:23]', 's[24:27]'
sP, sT, sW, sSB, sCB, sK0 = 's30', 's31', 's32', 's33', 's34', 's35'
sKP, sKM = 's36', 's37'
sA, sB, sC, sD, sE, sF = 's40', 's41', 's42', 's43', 's44', 's45'
sEst, sEld, sCnt, sSpec = 's46', 's47', 's48', 's49'
sO = ['s52', 's53', 's54', 's55']
sRd, sRv, sInc, sWL = 's38', 's39', 's50', 's51'
ZT = 16
sDP, sDM, sZ, sZp, sCh = 's96', 's97', 's98', 's99', 's95'
sTS = 56

class Gen:
    def __init__(self, mode='one', **opt):
        self.mode = mode
        self.o = dict(ldx='', ldw='', st1='sc1', st2='sc1', sto='sc1', ld1='sc1', ld2='sc1', ts=False, stagger=True, pf=False, spf=False, touch='pre', fst='sc1', fld='sc1', slp='', fsh='', pbar=False, shear=True, prio=True, wA='postX1', wB='postX1', bdelay='4', optx=False, numa='', fl='', ib=False, wsoff='', tlb1=False, tlb2=False, ib2=False, g1=False, nb='6', pthr='2', pop='load_dword', pbase='0', r2=False, novr=False, ib3=False, pnop='15', gz=False, force='', skew=True, fstride=12)
        self.o.update(opt)
        self.a = Asm()
        self.lab = 0
        self.nts = 0
        self.tail = []

    def tstride(self): return 65536 if (self.o['numa'] != '' or self.o['ib'] or self.o['ib2']) else 32768
    def ubase(self, ex): return (ex << 24) if self.o['ib2'] else (ex << 20) if self.o['ib'] else (WS_U2 if ex else WS_U1)
    def eld(self, q, ex=0): return v(V.T+2+q) if (self.o['ib2'] and ex == 0) else v(V.EL+q) if self.o['ib'] else v(V.Eld)
    def est(self): return sZp if self.o['ib2'] else sEst
    def label(self, p='L'):
        self.lab += 1
        return '%s_%d' % (p, self.lab)

    def stamp(self):
        if 'da' in self.o:
            self.sid = getattr(self, 'sid', -1) + 1
            self.mark('s%d' % self.sid); return
        if not self.o['ts'] or self.o.get('fine'): return
        self.a('s_memrealtime s[%d:%d]' % (sTS+2*self.nts, sTS+2*self.nts+1))
        self.nts += 1

    def mark(self, nm):
        for key, reg in (('da', 58), ('db', 60)):
            if self.o.get(key) == nm: self.a('%s s[%d:%d]' % ('s_memtime' if 'cyc' in self.o else 's_memrealtime', reg, reg+1))
    def fstamp(self):
        if not self.o.get('fine'): return
        self.a('s_memtime s[%d:%d]' % (sTS+2*self.nts, sTS+2*self.nts+1))
        self.nts += 1

    def dump_stamps(self, slot0=0):
        if not self.o['ts']: return
        a = self.a
        a('s_waitcnt lgkmcnt(0)')
        a('s_lshl_b32 %s, s2, 3' % sA); a('s_add_u32 %s, %s, %s' % (sA, sA, sW)); a('s_lshl_b32 %s, %s, 7' % (sA, sA))
        a('s_add_u32 %s, %s, 0x%x' % (sA, sA, WS_TS + slot0*4))
        a('s_mov_b64 exec, 1')
        a('v_mov_b32 %s, 0' % v(V.T+1))
        for i in range(self.nts):
            a('v_mov_b32 %s, s%d' % (v(V.T), sTS+2*i))
            a('buffer_store_dword %s, %s, %s, %s offen offset:%d' % (v(V.T), v(V.T+1), SWS, sA, 4*i))
            a('s_nop 1')
        a('s_mov_b64 exec, -1')
        self.nts = 0

    def prologue(self, end):
        a = self.a
        a('s_cmp_ge_u32 s2, 0x100')
        a('s_cbranch_scc1 %s' % end)
        self.stamp()
        a('s_bfe_u32 %s, s2, 0x10003' % sP)
        a('s_mul_i32 s3, %s, 24' % sP)
        a('s_add_u32 s28, s0, s3')
        a('s_addc_u32 s29, s1, 0')
        a('s_load_dwordx2 s[4:5], s[28:29], 0x0')
        a('s_load_dwordx2 s[8:9], s[28:29], 0x8')
        a('s_load_dwordx2 s[12:13], s[28:29], 0x10')
        a('s_load_dwordx2 s[16:17], s[0:1], 0x30')
        a('s_load_dwordx2 s[20:21], s[0:1], 0x38')
        a('s_load_dwordx2 s[24:25], s[0:1], 0x40')
        a('v_lshrrev_b32 %s, 6, v0' % v(V.T))
        a('v_and_b32 %s, 63, v0' % v(V.lane))
        a('v_readfirstlane_b32 %s, %s' % (sW, v(V.T)))
        a('s_and_b32 %s, s2, 7' % sA)
        a('s_xor_b32 %s, %s, 2' % (sA, sA))
        a('s_lshl_b32 %s, %s, 4' % (sT, sA))
        a('s_lshr_b32 %s, s2, 4' % sB)
        a('s_or_b32 %s, %s, %s' % (sT, sT, sB))
        a('s_lshl_b32 %s, %s, 1' % (sCB, sA))
        a('s_bfe_u32 %s, %s, 0x10001' % (sC, sB))
        a('s_or_b32 %s, %s, %s' % (sCB, sCB, sC))
        a('s_bfe_u32 %s, %s, 0x20002' % (sSB, sB))
        a('s_lshl_b32 %s, %s, 1' % (sSB, sSB))
        a('s_and_b32 %s, %s, 1' % (sC, sB))
        a('s_or_b32 %s, %s, %s' % (sSB, sSB, sC))
        a('s_mov_b32 s6, 0x400000'); a('s_mov_b32 s7, 0x20000')
        a('s_mov_b32 s10, 2101248'); a('s_mov_b32 s11, 0x20000')
        a('s_mov_b32 s14, 2101248'); a('s_mov_b32 s15, 0x20000')
        a('s_mov_b32 s18, 0x800000'); a('s_mov_b32 s19, 0x20000')
        a('s_mov_b32 s22, 256'); a('s_mov_b32 s23, 0x20000')
        a('s_mov_b32 s26, 0x%x' % WS_SIZE); a('s_mov_b32 s27, 0x20000')
        a('v_lshrrev_b32 %s, 4, %s' % (v(V.g), v(V.lane)))
        a('v_and_b32 %s, 15, %s' % (v(V.n), v(V.lane)))
        a('v_lshlrev_b32 %s, 4, %s' % (v(V.l16), v(V.lane)))

    def prologue1(self, end):
        a = self.a; T = V.T
        a('s_cmp_ge_u32 s2, 0x100')
        a('s_cbranch_scc1 %s' % end)
        if 'da' in self.o: a('s_memrealtime s[56:57]'); self.mark('start')
        a('s_bfe_u32 %s, s2, 0x%x' % (sP, 0x10002 if self.o['optx'] else 0x10003))
        a('s_mul_i32 s3, %s, 24' % sP)
        a('s_load_dwordx2 s[4:5], s[0:1], s3')
        a('s_load_dwordx2 s[24:25], s[0:1], 0x40')
        a('s_load_dwordx2 s[8:9], s[0:1], s3 offset:8')
        a('s_load_dwordx2 s[12:13], s[0:1], s3 offset:16')
        a('s_load_dwordx2 s[16:17], s[0:1], 0x30')
        a('s_load_dwordx2 s[20:21], s[0:1], 0x38')
        self.stamp()
        a('v_lshrrev_b32 %s, 6, v0' % v(T))
        a('v_and_b32 %s, 63, v0' % v(V.lane))
        a('v_readfirstlane_b32 %s, %s' % (sW, v(T)))
        if self.o['optx']:
            a('s_and_b32 %s, s2, 3' % sA)
            a('s_bfe_u32 %s, s2, 0x10003' % sB)
            a('s_lshl1_add_u32 %s, %s, %s' % (sA, sA, sB))
        else: a('s_and_b32 %s, s2, 7' % sA)
        a('s_lshr_b32 %s, s2, 4' % sB)
        a('s_lshl4_add_u32 %s, %s, %s' % (sT, sA, sB))
        a('s_bfe_u32 %s, %s, 0x10001' % (sC, sB))
        a('s_lshl1_add_u32 %s, %s, %s' % (sCB, sA, sC))
        a('s_lshr_b32 %s, %s, 2' % (sSB, sB))
        a('s_and_b32 %s, %s, 1' % (sC, sB))
        a('s_lshl1_add_u32 %s, %s, %s' % (sSB, sSB, sC))
        a('s_mov_b32 s6, 0x400000'); a('s_mov_b32 s7, 0x20000')
        a('v_lshrrev_b32 %s, 4, %s' % (v(V.g), v(V.lane)))
        a('v_lshlrev_b32 %s, 4, %s' % (v(V.l16), v(V.lane)))
        a('v_and_b32 %s, 8, v0' % v(T))
        a('v_lshlrev_b32 %s, 11, %s' % (v(T), v(T)))
        a('v_lshl_add_u32 %s, %s, 20, %s' % (v(T), v(V.g), v(T)))
        a('v_and_b32 %s, 0x70, %s' % (v(T+1), v(V.l16)))
        a('v_add_u32 %s, %s, %s' % (v(V.Xoff), v(T), v(T+1)))
        a('s_lshl4_add_u32 %s, %s, %s' % (sA, sW, sSB))
        a('s_lshl4_add_u32 %s, %s, %s' % (sA, sA, sCB))
        a('s_lshl_b32 %s, %s, 7' % (sO[0], sA))
        for r in range(1, 4): a('s_add_u32 %s, %s, 0x%x' % (sO[r], sO[0], r*262144))
        a('v_and_b32 %s, 15, %s' % (v(V.n), v(V.lane)))
        a('s_mov_b32 s26, 0x%x' % WS_SIZE); a('s_mov_b32 s27, 0x20000')
        a('s_lshl_b32 %s, %s, 7' % (sRd, sP))
    def srds(self):
        a = self.a
        a('s_mov_b32 s10, 2101248'); a('s_mov_b32 s11, 0x20000')
        a('s_mov_b32 s14, 2101248'); a('s_mov_b32 s15, 0x20000')
        a('s_mov_b32 s18, 0x800000'); a('s_mov_b32 s19, 0x20000')
        a('s_mov_b32 s22, 256'); a('s_mov_b32 s23, 0x20000')

    def probe_issue(self):
        a = self.a
        a('s_lshl3_add_u32 %s, %s, %s' % (sEst, sP, sW)); a('s_lshl_b32 %s, %s, 21' % (sEst, sEst))
        a('s_and_b32 %s, %s, 0x60' % (sA, sT)); a('s_add_u32 %s, %s, %s' % (sA, sA, sT)); a('s_lshl_b32 %s, %s, 8' % (sA, sA))
        a('s_add_u32 %s, %s, %s' % (sA, sA, sEst))
        for i in range(8): a('s_mov_b32 s%d, 0x%x' % (84+i, SENT))
        for k, side in ((0, 0), (0, 1), (1, 1), (1, 0), (2, 1), (2, 0), (3, 0), (3, 1)):
            a('s_load_dword s%d, s[24:25], %s offset:0x%x glc' % (84+4*side+k, sA, k*65536+side*8192))
    def probe_eval(self):
        a = self.a
        a('s_mov_b32 %s, 0' % sA); a('s_mov_b32 %s, 0' % sB)
        a('s_waitcnt lgkmcnt(4)')
        for k in range(4):
            a('s_cmp_lg_u32 s%d, 0x%x' % (84+k, SENT)); a('s_addc_u32 %s, %s, 0' % (sA, sA))
            a('s_cmp_lg_u32 s%d, 0x%x' % (88+k, SENT)); a('s_addc_u32 %s, %s, 0' % (sB, sB))
        a('s_cmp_gt_u32 %s, %s' % (sB, sA))
        a('s_cselect_b32 %s, 1, 0' % sCh)
        if self.o['force'] != '':
            a('s_and_b32 %s, %s, 1' % (sC, sW)); a('s_xor_b32 %s, %s, %s' % (sC, sC, sP)); a('s_xor_b32 %s, %s, %s' % (sCh, sC, self.o['force']))
        if self.o['ts']:
            a('s_lshl4_add_u32 s%d, %s, %s' % (sTS+24, sA, sB))
    def ex_addrs_ib(self):
        a = self.a; T = V.T
        a('s_lshl_b32 %s, %s, 4' % (sB, sW)); a('s_xor_b32 %s, %s, %s' % (sB, sB, sT)); a('s_lshl_b32 %s, %s, 8' % (sB, sB))
        a('v_lshlrev_b32 %s, 4, %s' % (v(T), v(V.n)))
        a('v_lshl_add_u32 %s, %s, 10, %s' % (v(T), v(V.g), v(T)))
        a('v_xor_b32 %s, %s, %s' % (v(T), sB, v(T)))
        a('v_and_b32 %s, 0x6000, %s' % (v(T+1), v(T)))
        a('v_add_u32 %s, %s, %s' % (v(T), v(T), v(T+1)))
        a('v_lshl_add_u32 %s, %s, 18, %s' % (v(V.Est), v(V.g), v(T)))
        a('v_and_b32 %s, 0xdcff, %s' % (v(V.Eld), v(T)))
        a('s_lshl_b32 %s, %s, 13' % (sA, sCh)); a('s_add_u32 %s, %s, %s' % (sEst, sEst, sA))
        a('s_lshr_b32 %s, %s, 4' % (sA, sT)); a('s_lshl3_add_u32 %s, %s, %s' % (sA, sP, sA)); a('s_lshl_b32 %s, %s, 21' % (sA, sA))
        a('s_and_b32 %s, %s, 15' % (sEld, sT)); a('s_lshl_b32 %s, %s, 16' % (sEld, sEld)); a('s_add_u32 %s, %s, %s' % (sEld, sEld, sA))
    def ld_addrs_ib(self):
        a = self.a; T = V.T
        a('v_lshrrev_b32 %s, %s, %s' % (v(T), v(V.dummy), sRv))
        for q in range(4):
            a('v_bfe_u32 %s, %s, %d, 1' % (v(T+1), v(T), q))
            a('v_lshl_add_u32 %s, %s, 13, %s' % (v(V.EL+q), v(T+1), v(V.Eld)))

    def ex_addrs(self):
        a = self.a
        if self.o['skew']:
            T = V.T
            a('s_lshl_b32 %s, %s, 4' % (sB, sW)); a('s_xor_b32 %s, %s, %s' % (sB, sB, sT)); a('s_lshl_b32 %s, %s, 8' % (sB, sB))
            a('v_lshlrev_b32 %s, 4, %s' % (v(T), v(V.n)))
            a('v_lshl_add_u32 %s, %s, 10, %s' % (v(T), v(V.g), v(T)))
            a('v_xor_b32 %s, %s, %s' % (v(T), sB, v(T)))
            if self.o['numa'] != '':
                pol = int(self.o['numa'][1]); mode = self.o['numa'][0]
                if mode == 'p':
                    a('v_and_b32 %s, 0x6000, %s' % (v(T+1), v(T)))
                    a('v_add_u32 %s, %s, %s' % (v(T), v(T), v(T+1)))
                    a('v_lshl_add_u32 %s, %s, 18, %s' % (v(V.Est), v(V.g), v(T)))
                    a('v_and_b32 %s, 0xdcff, %s' % (v(V.Eld), v(T)))
                    a('s_lshr_b32 %s, %s, 1' % (sA, sW)); a('s_lshr_b32 %s, %s, 6' % (sD, sT)); a('s_xor_b32 %s, %s, %s' % (sA, sA, sD))
                    a('s_lshr_b32 %s, %s, 5' % (sC, sT)); a('s_lshr_b32 %s, %s, 2' % (sD, sW)); a('s_xor_b32 %s, %s, %s' % (sC, sC, sD))
                    if pol: a('s_xor_b32 %s, %s, 1' % (sA, sA)); a('s_xor_b32 %s, %s, 1' % (sC, sC))
                    a('s_and_b32 %s, %s, 1' % (sA, sA)); a('s_and_b32 %s, %s, 1' % (sC, sC))
                    a('s_lshl_b32 %s, %s, 13' % (sA, sA)); a('s_lshl_b32 %s, %s, 13' % (sC, sC))
                    a('s_lshl_b32 %s, %s, 25' % (sD, sP)); a('s_add_u32 %s, %s, %s' % (sA, sA, sD)); a('s_add_u32 %s, %s, %s' % (sC, sC, sD))
                    a('s_lshl_b32 %s, %s, 20' % (sEst, sW)); a('s_add_u32 %s, %s, %s' % (sEst, sEst, sA))
                    a('s_lshl_b32 %s, %s, 16' % (sEld, sT)); a('s_add_u32 %s, %s, %s' % (sEld, sEld, sC))
                    return
                a('v_and_b32 %s, 0x6000, %s' % (v(T+1), v(T)))
                a('v_add_u32 %s, %s, %s' % (v(T), v(T), v(T+1)))
                a('v_lshl_add_u32 %s, %s, 18, %s' % (v(V.Est), v(V.g), v(T)))
                a('v_and_b32 %s, 0xdcff, %s' % (v(V.Eld), v(T)))
                if mode == 'x':
                    a('s_bfe_u32 %s, %s, 0x10001' % (sA, sW)); a('s_xor_b32 %s, %s, %s' % (sA, sA, sP))
                    a('s_bfe_u32 %s, %s, 0x10005' % (sC, sT)); a('s_xor_b32 %s, %s, %s' % (sC, sC, sP))
                    if pol: a('s_xor_b32 %s, %s, 1' % (sA, sA)); a('s_xor_b32 %s, %s, 1' % (sC, sC))
                    a('s_lshl_b32 %s, %s, 13' % (sA, sA)); a('s_lshl_b32 %s, %s, 13' % (sC, sC))
                    a('s_lshl_b32 %s, %s, 20' % (sEst, sW)); a('s_add_u32 %s, %s, %s' % (sEst, sEst, sA))
                    a('s_lshl_b32 %s, %s, 16' % (sEld, sT)); a('s_add_u32 %s, %s, %s' % (sEld, sEld, sC))
                else:
                    a('s_lshr_b32 %s, %s, 1' % (sA, sW)); a('s_lshr_b32 %s, %s, 2' % (sD, sW)); a('s_xor_b32 %s, %s, %s' % (sA, sA, sD))
                    a('s_lshr_b32 %s, %s, 5' % (sC, sT)); a('s_lshr_b32 %s, %s, 6' % (sD, sT)); a('s_xor_b32 %s, %s, %s' % (sC, sC, sD))
                    if pol: a('s_xor_b32 %s, %s, 1' % (sA, sA)); a('s_xor_b32 %s, %s, 1' % (sC, sC))
                    a('s_and_b32 %s, %s, 1' % (sA, sA)); a('s_and_b32 %s, %s, 1' % (sC, sC))
                    a('s_lshl_b32 %s, %s, 13' % (sA, sA)); a('s_lshl_b32 %s, %s, 13' % (sC, sC))
                    a('s_lshl_b32 %s, %s, 22' % (sD, sP)); a('s_add_u32 %s, %s, %s' % (sA, sA, sD)); a('s_add_u32 %s, %s, %s' % (sC, sC, sD))
                    a('s_and_b32 %s, %s, 3' % (sEst, sW)); a('s_lshl_b32 %s, %s, 20' % (sEst, sEst)); a('s_add_u32 %s, %s, %s' % (sEst, sEst, sA))
                    a('s_and_b32 %s, %s, 63' % (sEld, sT)); a('s_lshl_b32 %s, %s, 16' % (sEld, sEld)); a('s_add_u32 %s, %s, %s' % (sEld, sEld, sC))
                return
            a('v_lshl_add_u32 %s, %s, 17, %s' % (v(V.Est), v(V.g), v(T)))
            a('v_and_b32 %s, 0x7cff, %s' % (v(V.Eld), v(T)))
            a('s_lshl_b32 %s, %s, 22' % (sA, sP))
            a('s_lshl_b32 %s, %s, 19' % (sEst, sW)); a('s_add_u32 %s, %s, %s' % (sEst, sEst, sA))
            a('s_lshl_b32 %s, %s, 15' % (sEld, sT)); a('s_add_u32 %s, %s, %s' % (sEld, sEld, sA))
            return
        a('v_lshlrev_b32 %s, 4, %s' % (v(V.T), v(V.n)))
        a('v_lshl_add_u32 %s, %s, 17, %s' % (v(V.Est), v(V.g), v(V.T)))
        a('v_lshl_add_u32 %s, %s, 10, %s' % (v(V.Eld), v(V.g), v(V.T)))
        a('s_lshl_b32 %s, %s, 22' % (sA, sP))
        a('s_lshl_b32 %s, %s, 19' % (sEst, sW)); a('s_add_u32 %s, %s, %s' % (sEst, sEst, sA))
        a('s_lshl_b32 %s, %s, 8' % (sB, sT)); a('s_add_u32 %s, %s, %s' % (sEst, sEst, sB))
        a('s_lshl_b32 %s, %s, 15' % (sEld, sT)); a('s_add_u32 %s, %s, %s' % (sEld, sEld, sA))
        a('s_lshl_b32 %s, %s, 12' % (sB, sW)); a('s_add_u32 %s, %s, %s' % (sEld, sEld, sB))

    def trig(self, x, re, im, conj_re=None, conj_im=None):
        a = self.a; c, s = V.T+8, V.T+9
        a('v_cos_f32 %s, %s' % (v(c), v(x)))
        a('v_sin_f32 %s, %s' % (v(s), v(x)))
        a('v_cvt_pk_bf16_f32 %s, %s, %s' % (v(re), v(c), v(s)))
        a('v_cvt_pk_bf16_f32 %s, -%s, %s' % (v(im), v(s), v(c)))
        if conj_re is not None:
            a('v_cvt_pk_bf16_f32 %s, %s, -%s' % (v(conj_re), v(c), v(s)))
            a('v_cvt_pk_bf16_f32 %s, %s, %s' % (v(conj_im), v(s), v(c)))

    def gen_F16(self):
        a = self.a; T = V.T
        a('v_cvt_f32_u32 %s, %s' % (v(T), v(V.n)))
        a('v_mul_f32 %s, %s, %s' % (v(T), lit(1/16), v(T)))
        a('v_cvt_f32_u32 %s, %s' % (v(T+1), v(V.g)))
        a('v_mul_f32 %s, 4.0, %s' % (v(T+1), v(T+1)))
        a('v_mul_f32 %s, %s, %s' % (v(T+2), v(T), v(T+1)))
        for r in range(4):
            self.trig(T+2, V.F16+r, V.F16+4+r)
            if r < 3: a('v_add_f32 %s, %s, %s' % (v(T+2), v(T+2), v(T)))

    def gen_M2(self):
        a = self.a; T = V.T
        a('v_cvt_f32_u32 %s, %s' % (v(T+1), v(V.g)))
        a('v_mul_f32 %s, 4.0, %s' % (v(T+1), v(T+1)))
        def normal():
            a('v_lshl_add_u32 %s, %s, 4, %s' % (v(T), v(V.n), sW))
            a('v_cvt_f32_u32 %s, %s' % (v(T), v(T)))
            a('v_mul_f32 %s, %s, %s' % (v(T), lit(1/256), v(T)))
            a('v_mul_f32 %s, %s, %s' % (v(T+2), v(T), v(T+1)))
            for r in range(4):
                self.trig(T+2, V.M2+r, V.M2+4+r, V.M2+8+r, V.M2+12+r)
                if r < 3: a('v_add_f32 %s, %s, %s' % (v(T+2), v(T+2), v(T)))
        def w0():
            a('v_lshrrev_b32 %s, 1, %s' % (v(T), v(V.n)))
            a('v_cvt_f32_u32 %s, %s' % (v(T), v(T)))
            a('v_lshlrev_b32 %s, 31, %s' % (v(T+3), v(V.n)))
            a('v_add_f32 %s, 0.5, %s' % (v(T+4), v(T)))
            a('v_xor_b32 %s, %s, %s' % (v(T+3), lit(1/16), v(T+3)))
            a('v_mul_f32 %s, %s, %s' % (v(T), v(T), v(T+3)))
            a('v_mul_f32 %s, %s, %s' % (v(T+4), v(T+4), v(T+3)))
            a('v_cmp_ne_u32 vcc, 1, %s' % v(V.n))
            a('v_cndmask_b32 %s, 0.5, %s, vcc' % (v(T), v(T)))
            for ts in range(2):
                d = T+4*ts
                a('v_mul_f32 %s, %s, %s' % (v(T+2), v(d), v(T+1)))
                for r in range(4):
                    self.trig(T+2, V.M2+8*ts+r, V.M2+8*ts+4+r)
                    if r < 3: a('v_add_f32 %s, %s, %s' % (v(T+2), v(T+2), v(d)))
        self.ifelse(sW, 0, w0, normal)

    def gen_M3(self):
        a = self.a; T = V.T
        a('v_cvt_f32_u32 %s, %s' % (v(T), v(V.n)))
        a('v_mul_f32 %s, %s, %s' % (v(T+1), lit(1/256), v(T)))
        a('v_mul_f32 %s, %s, %s' % (v(T), lit(1/16), v(T)))
        def normal():
            a('v_lshl_add_u32 %s, %s, 6, %s' % (v(T+2), v(V.g), sW))
            a('v_cvt_f32_u32 %s, %s' % (v(T+2), v(T+2)))
            a('v_mul_f32 %s, %s, %s' % (v(T+2), v(T+2), v(T+1)))
            for r in range(4):
                self.trig(T+2, V.M2+r, V.M2+4+r, V.M2+8+r, V.M2+12+r)
                if r < 3: a('v_add_f32 %s, %s, %s' % (v(T+2), v(T+2), v(T)))
        def w0():
            for ts in range(2):
                a('v_lshlrev_b32 %s, 5, %s' % (v(T+2), v(V.g)))
                if ts: a('v_add_u32 %s, 8, %s' % (v(T+2), v(T+2)))
                a('v_cvt_f32_u32 %s, %s' % (v(T+2), v(T+2)))
                a('v_mul_f32 %s, %s, %s' % (v(T+2), v(T+2), v(T+1)))
                for eb in range(2):
                    b = V.M2+8*ts
                    self.trig(T+2, b+2*eb, b+4+2*eb, b+2*eb+1, b+4+2*eb+1)
                    if eb == 0: a('v_add_f32 %s, %s, %s' % (v(T+2), v(T+2), v(T)))
            a('s_mov_b64 exec, 0xffff')
            a('v_lshlrev_b32 %s, 15, %s' % (v(T+2), v(V.n)))
            a('v_and_b32 %s, 0x8000, %s' % (v(T+2), v(T+2)))
            a('v_or_b32 %s, 0x3f80, %s' % (v(V.M2+1), v(T+2)))
            a('v_lshlrev_b32 %s, 16, %s' % (v(V.M2+5), v(V.M2+1)))
            a('s_mov_b64 exec, -1')
        self.ifelse(sW, 0, w0, normal)

    def sigma_lane(self, dst):
        a = self.a; T = V.T
        a('v_and_b32 %s, 17, %s' % (v(dst), v(V.lane)))
        a('v_bfe_u32 %s, %s, 2, 2' % (v(T+7), v(V.lane)))
        a('v_lshl_add_u32 %s, %s, 1, %s' % (v(dst), v(T+7), v(dst)))
        a('v_bfe_u32 %s, %s, 1, 1' % (v(T+7), v(V.lane)))
        a('v_lshl_add_u32 %s, %s, 3, %s' % (v(dst), v(T+7), v(dst)))

    def gen_F32TW(self):
        a = self.a; T = V.T
        self.sigma_lane(T)
        a('v_cvt_f32_u32 %s, %s' % (v(T), v(T)))
        a('v_mul_f32 %s, %s, %s' % (v(T), lit(1/1024), v(T)))
        a('v_lshrrev_b32 %s, 5, %s' % (v(T+1), v(V.lane)))
        a('v_cvt_f32_u32 %s, %s' % (v(T+1), v(T+1)))
        a('v_add_f32 %s, %s, %s' % (v(T+1), v(T+1), v(T+1)))
        a('v_mul_f32 %s, %s, %s' % (v(T+1), v(T+1), v(T)))
        for rho in range(16):
            k = sigma(8*(rho >> 2) + (rho & 3))
            a('v_fmamk_f32 %s, %s, %s, %s' % (v(T+2), v(T), lit(float(k)), v(T+1)))
            a('v_mul_f32 %s, %s, %s' % (v(T+3), lit(32.0), v(T+2)))
            a('v_cos_f32 %s, %s' % (v(V.TW+rho), v(T+2)))
            a('v_sin_f32 %s, %s' % (v(V.TW+16+rho), v(T+2)))
            self.trig(T+3, V.F32+rho, V.F32+16+rho)

    def coop_gen(self):
        a = self.a; T = V.T; X = V.DA
        self.sigma_lane(T)
        a('v_cvt_f32_u32 %s, %s' % (v(T), v(T)))
        a('v_mul_f32 %s, %s, %s' % (v(T), lit(1/1024), v(T)))
        a('s_and_b32 %s, %s, 1' % (sA, sW)); a('s_lshl_b32 %s, %s, 3' % (sA, sA))
        a('s_and_b32 %s, %s, 2' % (sB, sW)); a('s_lshl_b32 %s, %s, 1' % (sB, sB)); a('s_add_u32 %s, %s, %s' % (sA, sA, sB))
        a('s_and_b32 %s, %s, 4' % (sB, sW)); a('s_lshl_b32 %s, %s, 2' % (sB, sB)); a('s_add_u32 %s, %s, %s' % (sA, sA, sB))
        a('v_lshrrev_b32 %s, 5, %s' % (v(T+1), v(V.lane)))
        a('v_lshl_add_u32 %s, %s, 1, %s' % (v(T+1), v(T+1), sA))
        a('v_cvt_f32_u32 %s, %s' % (v(T+1), v(T+1)))
        a('v_mul_f32 %s, %s, %s' % (v(T+2), v(T+1), v(T)))
        for e in range(2):
            a('v_mul_f32 %s, %s, %s' % (v(T+3), lit(32.0), v(T+2)))
            if self.o['shear']:
                a('v_mul_f32 %s, 0.5, %s' % (v(T+4), v(T+2)))
                a('v_cos_f32 %s, %s' % (v(T+5), v(T+4)))
                a('v_sin_f32 %s, %s' % (v(T+6), v(T+4)))
                a('v_rcp_f32 %s, %s' % (v(T+5), v(T+5)))
                a('v_mul_f32 %s, %s, %s' % (v(X+4+e), v(T+6), v(T+5)))
                a('v_fma_f32 %s, %s, %s, 1.0' % (v(T+5), v(X+4+e), v(X+4+e)))
                a('v_rcp_f32 %s, %s' % (v(T+6), v(T+5)))
                a('v_fma_f32 %s, -%s, %s, 1.0' % (v(T+5), v(T+5), v(T+6)))
                a('v_fmac_f32 %s, %s, %s' % (v(T+6), v(T+5), v(T+6)))
                a('v_mul_f32 %s, -2.0, %s' % (v(T+6), v(T+6)))
                a('v_mul_f32 %s, %s, %s' % (v(X+6+e), v(T+6), v(X+4+e)))
            else:
                a('v_cos_f32 %s, %s' % (v(X+4+e), v(T+2)))
                a('v_sin_f32 %s, %s' % (v(X+6+e), v(T+2)))
            self.trig(T+3, X+e, X+2+e)
            if e == 0: a('v_add_f32 %s, %s, %s' % (v(T+2), v(T+2), v(T)))
        a('s_lshr_b32 %s, %s, 1' % (sA, sW)); a('s_lshl_b32 %s, %s, 10' % (sA, sA))
        a('s_and_b32 %s, %s, 1' % (sB, sW)); a('s_lshl_b32 %s, %s, 3' % (sB, sB)); a('s_add_u32 %s, %s, %s' % (sA, sA, sB))
        a('s_add_u32 %s, %s, %d' % (sA, sA, TABL))
        a('v_add_u32 %s, %s, %s' % (v(T), sA, v(V.l16)))
        for k in range(4):
            a('ds_write_b64 %s, %s offset:%d' % (v(T), vr(X+2*k, 2), 4096*k))
    def coop_init(self):
        a = self.a; T = V.T
        a('v_mov_b32 %s, %d' % (v(V.dummy2), CNT)); a('v_mov_b32 %s, 0' % v(T))
        a('ds_write_b32 %s, %s' % (v(V.dummy2), v(T)))
    def coop_post(self):
        a = self.a; T = V.T
        a('v_mov_b32 %s, 1' % v(T+1))
        a('ds_add_u32 %s, %s' % (v(V.dummy2), v(T+1)))
    def coop_wait(self):
        a = self.a; T = V.T; lp, ok = self.label('cw'), self.label('cwok')
        a('s_mov_b32 %s, 0' % sCnt)
        a(lp+':')
        a('ds_read_b32 %s, %s' % (v(T), v(V.dummy2)))
        a('s_add_u32 %s, %s, 1' % (sCnt, sCnt))
        a('s_cmp_gt_u32 %s, 0x%x' % (sCnt, SPIN_MAX*8))
        a('s_waitcnt lgkmcnt(0)')
        a('s_cbranch_scc1 %s' % ok)
        a('v_cmp_gt_u32 vcc, 0x200, %s' % v(T))
        a('s_cbranch_vccnz %s' % lp)
        a(ok+':')
    def coop_read(self):
        a = self.a; T = V.T
        assert V.TW == V.F32+32
        a('v_add_u32 %s, %d, %s' % (v(T), TABL, v(V.l16)))
        for k in range(16):
            a('ds_read_b128 %s, %s offset:%d' % (vr(V.F32+4*k, 4), v(T), 1024*k))

    def calc_k0(self):
        a = self.a
        a('s_lshr_b32 %s, %s, 4' % (sA, sT))
        a('s_and_b32 %s, %s, 15' % (sB, sT))
        a('s_lshl_b32 %s, %s, 4' % (sK0, sB))
        a('s_add_u32 %s, %s, %s' % (sK0, sK0, sA))
        a('s_lshr_b32 %s, %s, 2' % (sC, sB)); a('s_lshl_b32 %s, %s, 5' % (sC, sC))
        a('s_and_b32 %s, %s, 1' % (sD, sB)); a('s_lshl_b32 %s, %s, 4' % (sD, sD)); a('s_add_u32 %s, %s, %s' % (sC, sC, sD))
        a('s_and_b32 %s, %s, 2' % (sD, sB)); a('s_lshl_b32 %s, %s, 2' % (sD, sD)); a('s_add_u32 %s, %s, %s' % (sC, sC, sD))
        a('s_cmp_eq_u32 %s, 0' % sA)
        a('s_cselect_b32 %s, %s, %s' % (sK0, sC, sK0))
        a('s_cmp_eq_u32 %s, 0' % sT)
        a('s_cselect_b32 %s, 7, 8' % sA)
        a('s_lshl_b32 %s, %s, %s' % (sKP, sW, sA))
        a('s_add_u32 %s, %s, %s' % (sKP, sKP, sK0))
        a('s_sub_u32 %s, 0x800, %s' % (sKM, sKP))
        a('s_cmp_eq_u32 %s, 0' % sKP)
        a('s_cselect_b32 %s, 0x400, %s' % (sKM, sKM))
        a('s_cselect_b32 %s, 1, 0' % sSpec)
        a('s_mul_i32 %s, %s, 1026' % (sKP, sKP))
        a('s_mul_i32 %s, %s, 1026' % (sKM, sKM))

    def wq(self, rho): return (rho & 1) + 8*((rho >> 1) & 1) + 4*((rho >> 2) & 1)
    def w_prep(self):
        a = self.a
        a('s_mul_i32 %s, %s, 4224' % (sWL, sW))
        a('s_add_u32 %s, %s, %d' % (sWL, sWL, WL))
        a('s_and_b32 %s, %s, 2' % (sA, sKP))
        a('s_add_u32 %s, %s, %s' % (sDP, sKP, sA)); a('s_add_u32 %s, %s, %s' % (sDM, sKM, sA))
    def w_dma1(self, i):
        a = self.a
        srd, so = [(SWR, sDP), (SWI, sDP), (SWR, sDM), (SWI, sDM)][i]
        a('s_add_u32 m0, %s, %d' % (sWL, 1056*i))
        a('buffer_load_dwordx4 %s, %s, %s offen %s lds' % (v(V.l16), srd, so, self.o['ldw']))
    def w_dma(self):
        for i in range(4): self.w_dma1(i)
    def w_sload(self):
        a = self.a; T = V.T
        a('s_mov_b64 exec, 15')
        a('v_mov_b32 %s, %s' % (v(T), sKP)); a('v_mov_b32 %s, %s' % (v(T+1), sKM))
        a('s_mov_b64 vcc, 10')
        a('v_cndmask_b32 %s, %s, %s, vcc' % (v(T), v(T), v(T+1)))
        a('v_and_b32 %s, 2, %s' % (v(T+1), v(V.lane)))
        a('v_lshl_add_u32 %s, %s, 9, %s' % (v(T), v(T+1), v(T)))
        a('buffer_load_short_d16_hi %s, %s, %s, 0 offen' % (v(V.WF), v(T), SWR))
        a('buffer_load_short_d16_hi %s, %s, %s, 0 offen' % (v(V.WF+1), v(T), SWI))
        a('s_mov_b64 exec, -1')
    def w_edge_rl(self):
        a = self.a
        for l in range(4):
            for im in range(2):
                a('v_readlane_b32 s%d, %s, %d' % (84+2*l+im, v(V.WF+im), l))
    def w_edge(self):
        a = self.a; T = V.T
        self.w_edge_rl()
        for i, (x, y, op) in enumerate(((84, 86, 'add'), (85, 87, 'sub'), (90, 88, 'add'), (91, 89, 'sub'))):
            a('v_mov_b32 %s, s%d' % (v(T), y))
            a('v_%s_f32 %s, s%d, %s' % (op, v(V.WF+i), x, v(T)))
            a('v_mul_f32 %s, 0.5, %s' % (v(V.WF+i), v(V.WF+i)))
        a('s_mov_b64 s[92:93], 1')
    def w_addr(self):
        a = self.a; T = V.T
        self.sigma_lane(T)
        a('v_lshrrev_b32 %s, 5, %s' % (v(T+1), v(V.lane)))
        a('v_lshlrev_b32 %s, 7, %s' % (v(T+1), v(T+1)))
        a('v_lshl_add_u32 %s, %s, 1, %s' % (v(T), v(T), v(T+1)))
        a('s_and_b32 %s, %s, 2' % (sD, sKP)); a('s_sub_u32 %s, %s, %s' % (sD, sWL, sD))
        a('v_add_u32 %s, %s, %s' % (v(V.WP), sD, v(T)))
        a('s_add_u32 %s, %s, %d' % (sD, sD, 1024-832))
        a('v_sub_u32 %s, %s, %s' % (v(V.WM), sD, v(T)))
    def w_read(self, rho, dst=None, swap=False):
        a = self.a; dst = V.W if dst is None else dst
        for im in range(2):
            if rho < 8: ad, off = V.WP, 64*self.wq(rho) + (2112 if swap else 0)
            else: ad, off = V.WM, 64*(13-self.wq(rho)) + (0 if swap else 2112)
            a('ds_read_u16_d16_hi %s, %s offset:%d' % (v(dst+16*im+rho), v(ad), off+1056*im))
    def w_fix(self, half):
        a = self.a
        for im in range(2):
            r = V.W+8*half+16*im
            a('v_cndmask_b32 %s, %s, %s, s[92:93]' % (v(r), v(r), v(V.WF+2*half+im)))
    def w_regs_early(self):
        a = self.a
        for rho in range(16): self.w_read(rho)
        a('s_waitcnt lgkmcnt(0)')
        self.w_fix(0); self.w_fix(1)
    def w_special(self):
        a = self.a; T = V.T
        l0, l1 = self.label('Wspec'), self.label('Wend')
        a('s_cmp_eq_u32 %s, 1' % sSpec)
        a('s_cbranch_scc1 %s' % l0)
        a(l1+':')
        def tail():
            X = V.DA
            a(l0+':')
            for rho in range(16): self.w_read(rho)
            for rho in range(16): self.w_read(rho, X, True)
            a('s_waitcnt lgkmcnt(0) vmcnt(0)')
            self.w_edge_rl()
            a('s_mov_b64 exec, 1')
            for r in (V.W+16, V.W+24, X+16, X+24): a('v_mov_b32 %s, 0' % v(r))
            a('v_mov_b32 %s, s90' % v(V.W+8)); a('v_mov_b32 %s, s88' % v(X+8))
            a('s_mov_b64 exec, -1')
            for i in range(32):
                a('v_add_f32 %s, %s, %s' % (v(T+3), v(V.W+i), v(X+i)))
                if (i & 15) < 8: a('v_sub_f32 %s, %s, %s' % (v(X+i), v(V.W+i), v(X+i)))
                else: a('v_sub_f32 %s, %s, %s' % (v(X+i), v(X+i), v(V.W+i)))
                a('v_mov_b32 %s, %s' % (v(V.W+i), v(T+3)))
            a('v_add_u32 %s, %d, %s' % (v(T+1), SCR_B, v(V.l16)))
            for i in range(8):
                a('ds_write_b128 %s, %s offset:%d' % (v(T+1), vr(X+4*i, 4), 1024*i))
            a('s_waitcnt lgkmcnt(0)')
            a('s_branch %s' % l1)
        self.tail.append(tail)

    def B_dup(self):
        a = self.a
        a('v_mov_b32 %s, %s' % (v(V.B+4), v(V.B))); a('v_mov_b32 %s, %s' % (v(V.B+5), v(V.B+1)))
        a('v_mov_b32 %s, %s' % (v(V.B+10), v(V.B+6))); a('v_mov_b32 %s, %s' % (v(V.B+11), v(V.B+7)))
    def gen_B(self, early=False, dup=True):
        a = self.a; T = V.T
        l0, l1 = self.label('Bspec'), self.label('Bend')
        a('s_cmp_eq_u32 %s, 0' % sT)
        a('s_cbranch_scc1 %s' % (l1 if early else l0))
        c, s = T+8, T+9
        a('v_lshrrev_b32 %s, 1, %s' % (v(T), v(V.n)))
        a('v_lshl_add_u32 %s, %s, 8, %s' % (v(T+1), v(T), sK0))
        a('v_cvt_f32_u32 %s, %s' % (v(T+1), v(T+1)))
        a('v_mul_f32 %s, %s, %s' % (v(T+1), lit(1/2048), v(T+1)))
        a('v_cvt_f32_u32 %s, %s' % (v(T+2), v(V.g)))
        a('v_add_f32 %s, %s, %s' % (v(T+2), v(T+2), v(T+2)))
        a('v_and_b32 %s, 1, %s' % (v(T+3), v(V.n)))
        a('v_cvt_f32_u32 %s, %s' % (v(T+3), v(T+3)))
        a('v_mul_f32 %s, %s, %s' % (v(T+4), lit(0.25), v(T+3)))
        a('v_mul_f32 %s, %s, %s' % (v(T+5), v(T+1), v(T+2)))
        for sbb in range(2):
            for half in range(2):
                a('v_%s_f32 %s, %s, %s' % ('sub' if half else 'add', v(T+6), v(T+5), v(T+4)))
                a('v_cos_f32 %s, %s' % (v(c), v(T+6)))
                a('v_sin_f32 %s, %s' % (v(s), v(T+6)))
                a('v_mul_f32 %s, %s, %s' % (v(c), lit(S11), v(c)))
                a('v_mul_f32 %s, %s, %s' % (v(s), lit(S11), v(s)))
                ng = '-' if half else ''
                a('v_cvt_pk_bf16_f32 %s, %s, %s%s' % (v(V.B+2*sbb+half), v(c), ng, v(s)))
                a('v_cvt_pk_bf16_f32 %s, -%s, %s%s' % (v(V.B+6+2*sbb+half), v(s), ng, v(c)))
            if sbb == 0: a('v_add_f32 %s, %s, %s' % (v(T+5), v(T+5), v(T+1)))
        a('v_cvt_f32_u32 %s, %s' % (v(T), v(T)))
        a('v_lshlrev_b32 %s, 31, %s' % (v(T+4), v(V.n)))
        a('v_xor_b32 %s, %s, %s' % (v(T), v(T), v(T+4)))
        a('v_xor_b32 %s, %s, %s' % (v(T+4), lit(S11), v(T+4)))
        a('v_lshl_add_u32 %s, %s, 9, %s' % (v(T+1), v(V.g), sK0))
        a('v_cvt_f32_u32 %s, %s' % (v(T+1), v(T+1)))
        a('v_mul_f32 %s, %s, %s' % (v(T+1), lit(1/2048), v(T+1)))
        a('v_mul_f32 %s, %s, %s' % (v(T+5), v(T+1), v(T)))
        a('v_fmac_f32 %s, 0.5, %s' % (v(T+5), v(T+3)))
        for ii in range(2):
            a('v_cos_f32 %s, %s' % (v(c), v(T+5)))
            a('v_sin_f32 %s, %s' % (v(s), v(T+5)))
            a('v_mul_f32 %s, %s, %s' % (v(T+6), v(T+4), v(c)))
            a('v_mul_f32 %s, %s, %s' % (v(T+7), v(T+4), v(s)))
            a('v_mul_f32 %s, %s, %s' % (v(c), lit(S11), v(c)))
            a('v_mul_f32 %s, %s, %s' % (v(s), lit(S11), v(s)))
            a('v_cvt_pk_bf16_f32 %s, %s, %s' % (v(V.Bp+2*ii), v(c), v(T+7)))
            a('v_cvt_pk_bf16_f32 %s, -%s, %s' % (v(V.Bp+4+2*ii), v(s), v(T+6)))
            a('v_cvt_pk_bf16_f32 %s, -%s, %s' % (v(V.Bp+2*ii+1), v(s), v(T+6)))
            a('v_cvt_pk_bf16_f32 %s, -%s, -%s' % (v(V.Bp+4+2*ii+1), v(c), v(T+7)))
            if ii == 0: a('v_fmac_f32 %s, %s, %s' % (v(T+5), lit(0.125), v(T)))
        a(l1+':')
        if dup: self.B_dup()
        def tail():
            a(l0+':')
            if not early: self.spec_load(); a('s_waitcnt vmcnt(0)')
            a('s_branch %s' % l1)
        if not early: self.tail.append(tail)
    def spec_load(self):
        a = self.a
        a('s_getpc_b64 s[28:29]')
        a('s_add_u32 s28, s28, spec_tab@rel32@lo+4')
        a('s_addc_u32 s29, s29, spec_tab@rel32@hi+12')
        a('global_load_dwordx4 %s, %s, s[28:29]' % (vr(V.B, 4), v(V.l16)))
        a('global_load_dwordx4 %s, %s, s[28:29] offset:1024' % (vr(V.B+6, 4), v(V.l16)))
        a('global_load_dwordx4 %s, %s, s[28:29] offset:2048' % (vr(V.Bp, 4), v(V.l16)))
        a('global_load_dwordx4 %s, %s, s[28:29] offset:3072' % (vr(V.Bp+4, 4), v(V.l16)))
    def spec_early(self):
        a = self.a
        def g():
            self.srds()
            a('s_mov_b32 %s, 0' % sDP); a('s_mov_b32 %s, %d' % (sDM, 1024*1026)); a('s_mov_b32 %s, %d' % (sWL, WL))
            self.w_dma()
        def f():
            self.spec_load(); self.cond(sW, 0, g)
        self.cond(sT, 0, f)

    def spec_table(self):
        tab = np.zeros((4, 64, 4, 2))
        for lane in range(64):
            m, g = lane & 15, lane >> 4
            for r in range(4):
                t, c = m >> 1, m & 1; sb, hf = 2*g + (r >> 1), r & 1
                if hf == (t & 1):
                    th = 2*math.pi*sb*t/16
                    tab[0, lane, r, c] = (2*S11 if t else S11)*math.cos(th)
                    tab[1, lane, r, c] = -2*S11*math.sin(th) if t else S11*(-1.0)**sb
                sb, hf = m >> 1, m & 1; t, c = 2*g + (r >> 1), r & 1
                if hf == (t & 1):
                    th = 2*math.pi*sb*t/16
                    if t: cre, cim = 2*math.cos(th), -2*math.sin(th)
                    else: cre, cim = 1.0, (-1.0)**sb
                    pl = 2 + (1 - c)
                    tab[pl, lane, r, 0] = S11*cim
                    tab[pl, lane, r, 1] = S11*cre
        tab[abs(tab) < 1e-12] = 0
        out = ['.p2align 6', '.type spec_tab,@object', 'spec_tab:']
        w = [bf16bits(tab[p, l, r, 0]) | bf16bits(tab[p, l, r, 1]) << 16 for p in range(4) for l in range(64) for r in range(4)]
        for i in range(0, len(w), 8):
            out.append('.long ' + ','.join('0x%x' % x for x in w[i:i+8]))
        return '\n'.join(out)

    def p1_load(self):
        a = self.a; T = V.T
        a('v_bfe_u32 %s, %s, 3, 1' % (v(T), v(V.lane)))
        a('v_lshlrev_b32 %s, 14, %s' % (v(T), v(T)))
        a('v_lshl_add_u32 %s, %s, 20, %s' % (v(T), v(V.g), v(T)))
        a('v_and_b32 %s, 0x70, %s' % (v(T+1), v(V.l16)))
        a('v_add_u32 %s, %s, %s' % (v(V.Xoff), v(T), v(T+1)))
        a('s_lshl_b32 %s, %s, 15' % (sO[0], sW))
        a('s_lshl_b32 %s, %s, 11' % (sA, sSB)); a('s_add_u32 %s, %s, %s' % (sO[0], sO[0], sA))
        a('s_lshl_b32 %s, %s, 7' % (sA, sCB)); a('s_add_u32 %s, %s, %s' % (sO[0], sO[0], sA))
        for r in range(1, 4): a('s_add_u32 %s, %s, 0x%x' % (sO[r], sO[0], r*262144))
    def p1_issue(self):
        a = self.a
        for r in range(4):
            a('buffer_load_dwordx4 %s, %s, %s, %s offen %s' % (vr(V.L+4*r, 4), v(V.Xoff), SX, sO[r], self.o['ldx']))
    def p1_addrs(self):
        a = self.a; T = V.T
        a('v_xor_b32 %s, %s, %s' % (v(T), sSB, v(V.lane)))
        a('v_and_b32 %s, 1, %s' % (v(T), v(T)))
        a('v_mul_u32_u24 %s, 16448, %s' % (v(T), v(T)))
        a('v_lshl_add_u32 %s, %s, 12, %s' % (v(T), v(V.g), v(T)))
        a('v_and_b32 %s, 14, %s' % (v(T+1), v(V.lane)))
        a('v_lshl_add_u32 %s, %s, 3, %s' % (v(T), v(T+1), v(T)))
        a('s_lshr_b32 %s, %s, 2' % (sA, sW)); a('s_lshl_b32 %s, %s, 9' % (sA, sA))
        a('s_and_b32 %s, %s, 1' % (sB, sW)); a('s_lshl_b32 %s, %s, 8' % (sB, sB)); a('s_add_u32 %s, %s, %s' % (sA, sA, sB))
        a('s_and_b32 %s, %s, 2' % (sB, sW)); a('s_lshl_b32 %s, %s, 6' % (sB, sB)); a('s_add_u32 %s, %s, %s' % (sA, sA, sB))
        if R0: a('s_add_u32 %s, %s, %d' % (sA, sA, R0))
        a('v_add_u32 %s, %s, %s' % (v(V.X0w), sA, v(T)))
        self.tr_lane(T, 512, 128)
        a('s_lshl_b32 %s, %s, 10' % (sA, sW))
        a('s_sub_u32 %s, 0x4000, %s' % (sB, sA))
        a('s_cmp_eq_u32 %s, 0' % sW)
        a('s_cselect_b32 %s, 0x2000, %s' % (sB, sB))
        if R0: a('s_add_u32 %s, %s, %d' % (sA, sA, R0)); a('s_add_u32 %s, %s, %d' % (sB, sB, R0))
        a('v_add_u32 %s, %s, %s' % (v(V.X0r0), sA, v(T)))
        a('v_add_u32 %s, %s, %s' % (v(V.X0r1), sB, v(T)))
    def tr_lane(self, dst, g1s, g0s, b3s=64):
        a = self.a; t = V.T+7
        sh = lambda x: int(math.log2(x))
        a('v_and_b32 %s, 0x30, %s' % (v(dst), v(V.l16)))
        for bit, st in ((2, 8), (3, b3s), (4, g0s), (5, g1s)):
            a('v_bfe_u32 %s, %s, %d, 1' % (v(t), v(V.lane), bit))
            a('v_lshl_add_u32 %s, %s, %d, %s' % (v(dst), v(t), sh(st), v(dst)))

    def mf16(self, d, A, B):
        self.a('v_mfma_f32_16x16x32_bf16 %s, %s, %s, 0' % (vr(d, 4), vr(A, 4), vr(B, 4)))
    def cvt(self, d, lo, hi):
        self.a('v_cvt_pk_bf16_f32 %s, %s, %s' % (v(d), v(lo), v(hi)))

    def p1_compute(self, nafter, hook=None, hook2=None, hook3=None, hook4=None, hook5=None):
        a = self.a; O, L, D = V.O, V.L, V.DA
        for r in range(4):
            a('s_waitcnt vmcnt(%d)' % (nafter + 3 - r))
            if r == 3: self.stamp()
            for t in range(4):
                a('v_mov_b32 %s, %s' % (v(O+4*t+r), v(L+4*r+t)))
        for t in range(4):
            self.mf16(D+4*t, V.F16, O+4*t)
            self.mf16(D+16+4*t, V.F16+4, O+4*t)
        if hook: hook()
        P = V.DB
        for r in range(4):
            self.cvt(P+4*r, D+r, D+4+r); self.cvt(P+4*r+2, D+16+r, D+20+r)
        for r in range(4):
            self.cvt(P+4*r+1, D+8+r, D+12+r); self.cvt(P+4*r+3, D+24+r, D+28+r)
            a('ds_write_b128 %s, %s offset:%d' % (v(V.X0w), vr(P+4*r, 4), 1024*r))
        self.mark('g1a')
        if hook5: hook5()
        self.mark('g1b')
        a('s_waitcnt lgkmcnt(0)')
        a('s_barrier')
        if hook4: hook4()
        for sel in range(2):
            for tau in range(2):
                for ii in range(2):
                    a('ds_read_b64_tr_b16 %s, %s offset:%d' % (vr(O+4*(2*sel+tau)+2*ii, 2), v(V.X0r1 if sel else V.X0r0), tau*16448+ii*256))
        if hook2: hook2()
        if hook3: hook3()
        for r in range(4): a('s_add_u32 %s, %s, 0x%x' % (sO[r], self.est(), self.ubase(0) + r*self.tstride()))
        for ti in range(4):
            a('s_waitcnt lgkmcnt(%d)' % (6-2*ti))
            self.mf16(D+4*ti, V.M2+8*(ti >> 1), O+4*ti)
            self.mf16(D+16+4*ti, V.M2+8*(ti >> 1)+4, O+4*ti)
        st = lambda i: a('buffer_store_dwordx4 %s, %s, %s, %s offen %s' % (vr(P+4*i, 4), v(V.Est), SWS, sO[i], self.o['st1']))
        def normal():
            for i in range(4):
                for tau in range(2): self.cvt(P+4*i+2*tau, D+4*tau+i, D+16+4*tau+i)
            for i in range(4):
                for tau in range(2): self.cvt(P+4*i+2*tau+1, D+4*(2+tau)+i, D+16+4*(2+tau)+i)
                st(i)
        def w0():
            for i in range(4):
                ts, eb = i >> 1, i & 1
                for tau in range(2):
                    for sg in range(2):
                        x = 4*(2*ts+tau)+2*eb+sg
                        self.cvt(P+4*i+2*tau+sg, D+x, D+16+x)
                st(i)
        self.ifelse(sW, 0, w0, normal)

    def p2_addrs(self):
        a = self.a; T = V.T
        a('v_lshlrev_b32 %s, 4, %s' % (v(T), v(V.n)))
        a('v_lshl_add_u32 %s, %s, 13, %s' % (v(T), v(V.g), v(T)))
        a('s_lshl_b32 %s, %s, 9' % (sA, sW)); a('s_add_u32 %s, %s, %d' % (sA, sA, R1))
        a('v_add_u32 %s, %s, %s' % (v(V.X1w), sA, v(T)))
    def p2_addrs2(self):
        a = self.a; T = V.T
        self.tr_lane(T, 256, 64, 128)
        a('s_lshl_b32 %s, %s, 12' % (sA, sW)); a('s_add_u32 %s, %s, %d' % (sA, sA, R1))
        a('v_add_u32 %s, %s, %s' % (v(V.X1r), sA, v(T)))
        a('v_and_b32 %s, 16, %s' % (v(T), v(V.l16)))
        for bit, st in ((1, 16448), (2, 8224)):
            a('v_bfe_u32 %s, %s, %d, 1' % (v(T+1), v(V.lane), bit))
            a('v_mul_u32_u24 %s, %d, %s' % (v(T+1), st, v(T+1)))
            a('v_add_u32 %s, %s, %s' % (v(T), v(T), v(T+1)))
        a('v_bfe_u32 %s, %s, 3, 2' % (v(T+1), v(V.lane)))
        a('v_lshl_add_u32 %s, %s, 11, %s' % (v(T), v(T+1), v(T)))
        a('v_and_b32 %s, 32, %s' % (v(T+1), v(V.lane)))
        a('v_add_u32 %s, %s, %s' % (v(T), v(T), v(T+1)))
        a('s_lshr_b32 %s, %s, 2' % (sA, sW)); a('s_lshl_b32 %s, %s, 9' % (sA, sA))
        a('s_and_b32 %s, %s, 1' % (sB, sW)); a('s_lshl_b32 %s, %s, 8' % (sB, sB)); a('s_add_u32 %s, %s, %s' % (sA, sA, sB))
        a('s_and_b32 %s, %s, 2' % (sB, sW)); a('s_lshl_b32 %s, %s, 6' % (sB, sB)); a('s_add_u32 %s, %s, %s' % (sA, sA, sB))
        if R0: a('s_add_u32 %s, %s, %d' % (sA, sA, R0))
        a('v_add_u32 %s, %s, %s' % (v(V.X2w), sA, v(T)))
        self.tr_lane(T, 512, 128)
        a('s_and_b32 %s, %s, 1' % (sA, sW)); a('s_lshl_b32 %s, %s, 11' % (sA, sA))
        a('s_bfe_u32 %s, %s, 0x10001' % (sB, sW)); a('s_mul_i32 %s, %s, 16448' % (sB, sB)); a('s_add_u32 %s, %s, %s' % (sA, sA, sB))
        a('s_lshr_b32 %s, %s, 2' % (sB, sW)); a('s_lshl_b32 %s, %s, 12' % (sB, sB)); a('s_add_u32 %s, %s, %s' % (sA, sA, sB))
        if R0: a('s_add_u32 %s, %s, %d' % (sA, sA, R0))
        a('v_add_u32 %s, %s, %s' % (v(V.X2r), sA, v(T)))

    def p2_issue(self):
        a = self.a
        a('s_add_u32 %s, %s, 0x%x' % (sA, sEld, self.ubase(0)))
        for q in range(4):
            a('buffer_load_dwordx4 %s, %s, %s, %s offen offset:%d %s' % (vr(V.L+12*(q >> 1)+4*(q & 1), 4), self.eld(q), SWS, sA, 256*q, self.o['ld1']))

    def mf32(self, d, i, dataA):
        for pl in range(2):
            M = vr(V.F32+16*pl+4*i, 4); X = vr(V.O+4*i, 4)
            A, B = (X, M) if dataA else (M, X)
            D = vr(d+16*pl, 16)
            self.a('v_mfma_f32_32x32x16_bf16 %s, %s, %s, %s' % (D, A, B, D if i else '0'))

    def cmul_stage(self, src, dst, dataA, coef, kind, prio=None, late=False):
        a = self.a; T = V.T
        if prio is not None and self.o['prio']: a('s_setprio %d' % prio)
        if kind == 'tw' and self.o['shear']:
            for i in range(4):
                for st in range(3):
                    for r in range(4):
                        rho = 4*i+r
                        x, y = v(src+rho), v(src+16+rho)
                        if st == 1: a('v_fmac_f32 %s, %s, %s' % (y, v(coef+16+rho), x))
                        else: a('v_fmac_f32 %s, %s, %s' % (x, v(coef+rho), y))
                for r in range(4): self.cvt(V.O+4*i+r, src+4*i+r, src+16+4*i+r)
                self.mf32(dst, i, dataA)
            return
        if late and self.o.get('db') == 'wb':
            self.mark('wa'); a('s_waitcnt vmcnt(0)'); self.mark('wb'); a('s_waitcnt lgkmcnt(0)')
        if late:
            a('s_waitcnt vmcnt(2)')
            for rho in range(8): self.w_read(rho)
        for i in range(4):
            if late:
                if i == 0: a('s_waitcnt lgkmcnt(8)'); self.w_fix(0)
                if i == 1:
                    a('s_waitcnt vmcnt(0)')
                    for rho in range(8, 12): self.w_read(rho)
                    a('s_waitcnt lgkmcnt(8)')
                if i == 2:
                    for rho in range(12, 16): self.w_read(rho)
                    a('s_waitcnt lgkmcnt(8)'); self.w_fix(1)
                if i == 3: a('s_waitcnt lgkmcnt(0)')
            for r in range(4):
                rho = 4*i+r
                x, y = v(src+rho), v(src+16+rho)
                c, s = v(coef+rho), v(coef+16+rho)
                t0, t1 = v(T+2*r), v(T+2*r+1)
                a('v_mul_f32 %s, %s, %s' % (t0, x, c))
                a('v_mul_f32 %s, %s, %s' % (t1, y, c))
            for r in range(4):
                rho = 4*i+r
                x, y = v(src+rho), v(src+16+rho)
                c, s = v(coef+rho), v(coef+16+rho)
                t0, t1 = v(T+2*r), v(T+2*r+1)
                if kind == 'tw' or rho >= 8:
                    a('v_fmac_f32 %s, %s, %s' % (t0, y, s))
                    a('v_fma_f32 %s, -%s, %s, %s' % (t1, x, s, t1))
                else:
                    a('v_fma_f32 %s, -%s, %s, %s' % (t0, y, s, t0))
                    a('v_fmac_f32 %s, %s, %s' % (t1, x, s))
            for r in range(4):
                if kind == 'tw': self.cvt(V.O+4*i+r, T+2*r, T+2*r+1)
                else: self.cvt(V.O+4*i+r, T+2*r+1, T+2*r)
            self.mf32(dst, i, dataA)

    def p2_compute(self, wl=None):
        a = self.a; O, L, D, T = V.O, V.L, V.DA, V.T
        late = wl is not None
        na = 0
        for cbb in range(2):
            b = L+12*cbb
            a('s_waitcnt vmcnt(%d)' % (na+3-2*cbb))
            a('v_mov_b32 %s, %s' % (v(b+8), v(b))); a('v_mov_b32 %s, %s' % (v(b+9), v(b+1)))
            a('s_waitcnt vmcnt(%d)' % (na+2-2*cbb))
            if cbb: self.stamp(); self.fstamp()
            for jj2 in (1, 0):
                ti = 2*cbb+jj2
                op = b+2 if jj2 else b+6
                mo = 0 if jj2 else 2
                self.mf16(D+4*ti, V.B+mo, op)
                self.mf16(D+16+4*ti, V.B+6+mo, op)
        for cbb in range(2):
            for k1b in range(2):
                P = O+4*(2*cbb+k1b)
                for pl in range(2):
                    for jj2 in (1, 0):
                        x = D+16*pl+4*(2*cbb+jj2)+2*k1b
                        self.cvt(P+2*pl+jj2, x, x+1)
                a('ds_write_b128 %s, %s offset:%d' % (v(V.X1w), vr(P, 4), k1b*4096+cbb*256))
        self.fstamp()
        a('s_waitcnt lgkmcnt(0)')
        self.fstamp()
        if self.o.get('fine'): a('s_waitcnt lgkmcnt(0)')
        a('s_barrier')
        if self.o.get('da') == 'x1': self.mark('x1'); a('s_waitcnt lgkmcnt(0)')
        if self.o['prio']: a('s_setprio 3')
        for i in range(4):
            for ii in range(2):
                a('ds_read_b64_tr_b16 %s, %s offset:%d' % (vr(O+4*i+2*ii, 2), v(V.X1r), ii*1024+(i & 1)*512+(i >> 1)*2048))
        for i in range(4):
            if late and i in (0, 2): self.wat('postX1', (i, i+1))
            a('s_waitcnt lgkmcnt(%d)' % (6-2*i))
            self.mf32(V.DA, i, True)
        self.fstamp()
        if late: self.wat('tw1')
        self.cmul_stage(V.DA, V.DB, False, V.TW, 'tw', 2)
        self.fstamp()
        l0, l1 = self.label('PWspec'), self.label('PWend')
        a('s_cmp_eq_u32 %s, 1' % sSpec)
        a('s_cbranch_scc1 %s' % l0)
        if self.o.get('fine'): a('s_waitcnt lgkmcnt(0)')
        self.cmul_stage(V.DB, V.DA, True, V.W, 'w', 1, late)
        a(l1+':')
        self.fstamp()
        self.cmul_stage(V.DA, V.DB, True, V.TW, 'tw', 0)
        self.fstamp()
        D = V.DB
        rho = lambda jj3, jj1, jj2, c: 4*(2*jj3+jj1)+2*jj2+c
        for c in range(2):
            for jj1 in range(2):
                P = O+4*(2*c+jj1)
                for pl in range(2):
                    for jj3 in range(2):
                        self.cvt(P+2*pl+jj3, D+16*pl+rho(jj3, jj1, 0, c), D+16*pl+rho(jj3, jj1, 1, c))
                a('ds_write_b128 %s, %s offset:%d' % (v(V.X2w), vr(P, 4), c*64+jj1*1024))
                if self.o['ib2'] and not self.o['ib3'] and c == 0 and jj1 == 0: self.major_read()
        self.fstamp()
        self.mark('x2')
        a('s_waitcnt lgkmcnt(0)')
        if self.o['ib2'] and not self.o['ib3']: self.major_use()
        self.fstamp()
        if self.o.get('fine'): a('s_waitcnt lgkmcnt(0)')
        a('s_barrier')
        for cbb in range(2):
            for jj1 in range(2):
                for ii in range(2):
                    a('ds_read_b64_tr_b16 %s, %s offset:%d' % (vr(O+4*(2*cbb+jj1)+2*ii, 2), v(V.X2r), ii*256+jj1*1024+cbb*8224))
        for r in range(4): a('s_add_u32 %s, %s, 0x%x' % (sO[r], self.est(), self.ubase(1) + r*self.tstride()))
        D = V.DA
        for ti in range(4):
            a('s_waitcnt lgkmcnt(%d)' % (6-2*ti))
            self.mf16(D+4*ti, V.Bp, O+4*ti)
            self.mf16(D+16+4*ti, V.Bp+4, O+4*ti)
        self.fstamp()
        P = V.DB
        for q in range(4):
            cbb, sbb = q >> 1, q & 1
            for jj1 in range(2):
                for hf in range(2):
                    x = 4*(2*cbb+jj1)+2*sbb+hf
                    self.cvt(P+4*q+2*jj1+hf, D+x, D+16+x)
            a('buffer_store_dwordx4 %s, %s, %s, %s offen %s' % (vr(P+4*q, 4), v(V.Est), SWS, sO[q], self.o['st2']))
        self.fstamp()
        if self.o.get('fine'):
            a('s_memrealtime s[%d:%d]' % (sTS+2*self.nts, sTS+2*self.nts+1)); self.nts += 1
        def tail():
            C = V.DB; X = V.DA
            a(l0+':')
            self.sigma_lane(T)
            a('v_lshrrev_b32 %s, 5, %s' % (v(T+1), v(V.lane)))
            a('v_lshlrev_b32 %s, 9, %s' % (v(T+1), v(T+1)))
            a('v_lshl_add_u32 %s, %s, 2, %s' % (v(T+2), v(T), v(T+1)))
            a('v_add_u32 %s, %d, %s' % (v(T+2), SCR, v(T+2)))
            a('v_add_u32 %s, 128, %s' % (v(T+3), v(T+2)))
            a('v_sub_u32 %s, 32, %s' % (v(T+4), v(T)))
            a('v_lshrrev_b32 %s, 5, %s' % (v(T+5), v(T+4)))
            a('v_and_b32 %s, 31, %s' % (v(T+4), v(T+4)))
            a('v_lshlrev_b32 %s, 2, %s' % (v(T+4), v(T+4)))
            a('v_lshl_add_u32 %s, %s, 8, %s' % (v(T+4), v(T+5), v(T+4)))
            a('v_sub_u32 %s, %s, %s' % (v(T+4), v(T+4), v(T+1)))
            a('v_add_u32 %s, %d, %s' % (v(T+4), SCR + 2*256, v(T+4)))
            a('v_add_u32 %s, 128, %s' % (v(T+5), v(T+4)))
            a('v_add_u32 %s, %d, %s' % (v(T+6), SCR_B, v(V.l16)))
            qs = lambda rho: sigma(8*(rho >> 2) + (rho & 3))
            for pl in range(2):
                for rho in range(0, 16, 2):
                    a('ds_write2st64_b32 %s, %s, %s offset0:%d offset1:%d' % (v(T+2+pl), v(C+16*pl+rho), v(C+16*pl+rho+1), qs(rho), qs(rho+1)))
                a('ds_write_b32 %s, %s offset:%d' % (v(T+2+pl), v(C+16*pl), 32*256))
            a('s_waitcnt lgkmcnt(0)')
            t0, t1 = v(T+8), v(T+9)
            for half in range(2):
                for pl in range(2):
                    for k in range(0, 8, 2):
                        rho_ = 8*half+k
                        a('ds_read2st64_b32 %s, %s offset0:%d offset1:%d' % (vr(X+8*pl+k, 2), v(T+4+pl), 29-qs(rho_), 29-qs(rho_+1)))
                    for k in range(2):
                        a('ds_read_b128 %s, %s offset:%d' % (vr(X+16+8*pl+4*k, 4), v(T+6), 1024*(4*pl+2*half+k)))
                a('s_waitcnt lgkmcnt(0)')
                for k in range(8):
                    rho_ = 8*half+k
                    x, y = v(C+rho_), v(C+16+rho_); ar, ai = v(V.W+rho_), v(V.W+16+rho_)
                    p, q_ = v(X+k), v(X+8+k); br, bi = v(X+16+k), v(X+24+k)
                    ng, ps = ('', '-') if half else ('-', '')
                    a('v_mul_f32 %s, %s, %s' % (t0, x, ar))
                    a('v_mul_f32 %s, %s, %s' % (t1, y, ar))
                    a('v_fma_f32 %s, %s%s, %s, %s' % (t0, ng, y, ai, t0))
                    a('v_fma_f32 %s, %s%s, %s, %s' % (t1, ps, x, ai, t1))
                    a('v_fmac_f32 %s, %s, %s' % (t0, p, br))
                    a('v_fma_f32 %s, -%s, %s, %s' % (t1, q_, br, t1))
                    a('v_fma_f32 %s, %s%s, %s, %s' % (t0, ps, q_, bi, t0))
                    a('v_fma_f32 %s, %s%s, %s, %s' % (t1, ps, p, bi, t1))
                    self.cvt(O+rho_, T+9, T+8)
            for i in range(4): self.mf32(V.DA, i, True)
            a('s_nop 11')
            a('s_branch %s' % l1)
        self.tail.append(tail)

    def p3_addrs(self):
        a = self.a; T = V.T
        a('v_and_b32 %s, 16, %s' % (v(T), v(V.lane)))
        for bit, st in ((0, 32), (3, 4096), (5, 1024)):
            a('v_bfe_u32 %s, %s, %d, 1' % (v(T+1), v(V.lane), bit))
            a('v_lshl_add_u32 %s, %s, %d, %s' % (v(T), v(T+1), int(math.log2(st)), v(T)))
        for bit, st in ((1, 8208), (2, 16448)):
            a('v_bfe_u32 %s, %s, %d, 1' % (v(T+1), v(V.lane), bit))
            a('v_mul_u32_u24 %s, %d, %s' % (v(T+1), st, v(T+1)))
            a('v_add_u32 %s, %s, %s' % (v(T), v(T), v(T+1)))
        a('s_sub_u32 %s, 16, %s' % (sC, sW))
        a('s_cmp_eq_u32 %s, 0' % sW)
        a('s_cselect_b32 %s, 8, %s' % (sC, sC))
        for kl, dst in ((sW, V.X3w0), (sC, V.X3w1)):
            a('s_and_b32 %s, %s, 9' % (sA, kl)); a('s_lshl_b32 %s, %s, 6' % (sA, sA))
            a('s_and_b32 %s, %s, 2' % (sB, kl)); a('s_lshl_b32 %s, %s, 7' % (sB, sB)); a('s_add_u32 %s, %s, %s' % (sA, sA, sB))
            a('s_and_b32 %s, %s, 4' % (sB, kl)); a('s_lshl_b32 %s, %s, 5' % (sB, sB)); a('s_add_u32 %s, %s, %s' % (sA, sA, sB))
            a('s_add_u32 %s, %s, %d' % (sA, sA, R1))
            a('v_add_u32 %s, %s, %s' % (v(dst), sA, v(T)))
        self.tr_lane(T, 512, 128)
        a('s_and_b32 %s, %s, 1' % (sA, sW)); a('s_mul_i32 %s, %s, 8208' % (sA, sA))
        a('s_bfe_u32 %s, %s, 0x10001' % (sB, sW)); a('s_mul_i32 %s, %s, 16448' % (sB, sB)); a('s_add_u32 %s, %s, %s' % (sA, sA, sB))
        a('s_lshr_b32 %s, %s, 2' % (sB, sW)); a('s_lshl_b32 %s, %s, 12' % (sB, sB)); a('s_add_u32 %s, %s, %s' % (sA, sA, sB))
        a('s_add_u32 %s, %s, %d' % (sA, sA, R1))
        a('v_add_u32 %s, %s, %s' % (v(V.X3r), sA, v(T)))
        a('v_bfe_u32 %s, %s, 3, 1' % (v(T), v(V.lane)))
        a('v_lshlrev_b32 %s, 15, %s' % (v(T), v(T)))
        a('v_lshl_add_u32 %s, %s, 21, %s' % (v(T), v(V.g), v(T)))
        a('v_and_b32 %s, 0x70, %s' % (v(T+1), v(V.l16)))
        a('v_add_u32 %s, %s, %s' % (v(V.Ooff), v(T), v(T+1)))
    def p3_soff(self):
        a = self.a
        a('s_lshl_b32 %s, %s, 16' % (sO[0], sW))
        a('s_lshl_b32 %s, %s, 12' % (sA, sSB)); a('s_add_u32 %s, %s, %s' % (sO[0], sO[0], sA))
        a('s_lshl_b32 %s, %s, 7' % (sA, sCB)); a('s_add_u32 %s, %s, %s' % (sO[0], sO[0], sA))
        a('s_lshl_b32 %s, %s, 11' % (sA, sP)); a('s_add_u32 %s, %s, %s' % (sO[0], sO[0], sA))
        for r in range(1, 4): a('s_add_u32 %s, %s, 0x%x' % (sO[r], sO[0], r*524288))
    def p3_issue(self):
        a = self.a
        a('s_add_u32 %s, %s, 0x%x' % (sA, sEld, self.ubase(1)))
        for q in range(4):
            a('buffer_load_dwordx4 %s, %s, %s, %s offen offset:%d %s' % (vr(V.L+4*q, 4), self.eld(q, 1), SWS, sA, 256*q, self.o['ld2']))
    def p3_compute(self):
        a = self.a; O, L, D = V.O, V.L, V.DA
        def normal():
            for i in range(4):
                a('s_waitcnt vmcnt(%d)' % (3-i))
                for sel in range(2):
                    for col in range(2):
                        a('v_mov_b32 %s, %s' % (v(O+4*(2*sel+col)+i), v(L+4*i+2*col+sel)))
        def w0():
            for i in range(4):
                ts, eb = i >> 1, i & 1
                a('s_waitcnt vmcnt(%d)' % (3-i))
                for col in range(2):
                    for sg in range(2):
                        a('v_mov_b32 %s, %s' % (v(O+4*(2*ts+col)+2*eb+sg), v(L+4*i+2*col+sg)))
        self.ifelse(sW, 0, w0, normal, True)
        self.stamp()
        for ti in range(4):
            self.mf16(D+4*ti, O+4*ti, V.M2+8*(ti >> 1))
            self.mf16(D+16+4*ti, O+4*ti, V.M2+8*(ti >> 1)+4)
        P = V.DB
        for ti in range(4):
            for pl in range(2):
                for k in range(2):
                    x = D+16*pl+4*ti+2*k
                    self.cvt(P+4*ti+2*pl+k, x, x+1)
            a('ds_write_b128 %s, %s offset:%d' % (v(V.X3w1 if ti >> 1 else V.X3w0), vr(P+4*ti, 4), (ti & 1)*2048))
        a('s_waitcnt lgkmcnt(0)')
        a('s_barrier')
        for t in range(4):
            for ii in range(2):
                a('ds_read_b64_tr_b16 %s, %s offset:%d' % (vr(O+4*t+2*ii, 2), v(V.X3r), ii*256+t*1024))
        for t in range(4):
            a('s_waitcnt lgkmcnt(%d)' % (6-2*t))
            self.mf16(D+4*t, V.F16, O+4*t)
            self.mf16(D+16+4*t, V.F16+4, O+4*t)
        for t in range(3):
            for r in range(4): self.cvt(P+4*r+t, D+16+4*t+r, D+4*t+r)
        for r in range(4):
            self.cvt(P+4*r+3, D+16+12+r, D+12+r)
            a('buffer_store_dwordx4 %s, %s, %s, %s offen %s' % (vr(P+4*r, 4), v(V.Ooff), SOUT, sO[r], self.o['sto']))

    def flush_tail(self):
        t, self.tail = self.tail, []
        for f in t: f()

    def kernel_head(self, name):
        self.a.raw('.globl %s\n.p2align 12\n.p2align 8\n.type %s,@function\n%s:' % (name, name, name))
    def kd(self, name):
        return '''.p2align 6
.amdhsa_kernel %s
  .amdhsa_next_free_vgpr %d
  .amdhsa_next_free_sgpr 102
  .amdhsa_accum_offset %d
  .amdhsa_group_segment_fixed_size 0
  .amdhsa_kernarg_size 72
  .amdhsa_user_sgpr_count 2
  .amdhsa_user_sgpr_kernarg_segment_ptr 1
  .amdhsa_system_sgpr_workgroup_id_x 1
.end_amdhsa_kernel''' % (name, NVGPR, (NVGPR+3)//4*4)

    def build_three(self):
        a = self.a
        names = ['gf_p1_kernel', 'gf_p2_kernel', 'gf_p3_kernel']
        self.kernel_head(names[0]); end = self.label('end')
        self.prologue(end); self.p1_load(); a('s_waitcnt lgkmcnt(0)'); self.p1_issue()
        self.ex_addrs(); self.p1_addrs(); self.gen_F16(); self.gen_M2()
        self.p1_compute(0)
        if self.o['ts']: self.stamp(); a('s_waitcnt vmcnt(0)'); self.stamp(); self.dump_stamps(0)
        a(end+':'); a('s_endpgm'); self.flush_tail()
        self.kernel_head(names[1]); end = self.label('end')
        self.prologue(end); self.ex_addrs(); self.calc_k0(); a('s_waitcnt lgkmcnt(0)')
        self.w_dma(); self.p2_addrs(); self.gen_B(); self.gen_F32TW()
        a('s_waitcnt vmcnt(0)'); self.w_regs(); a('s_waitcnt lgkmcnt(0)')
        self.p2_issue(); self.p2_compute()
        if self.o['ts']: self.stamp(); a('s_waitcnt vmcnt(0)'); self.stamp(); self.dump_stamps(8)
        a(end+':'); a('s_endpgm'); self.flush_tail()
        self.kernel_head(names[2]); end = self.label('end')
        self.prologue(end); self.ex_addrs(); a('s_waitcnt lgkmcnt(0)'); self.p3_issue()
        self.p3_addrs(); self.p3_soff(); self.gen_F16(); self.gen_M3()
        self.p3_compute()
        if self.o['ts']: self.stamp(); a('s_waitcnt vmcnt(0)'); self.stamp(); self.dump_stamps(16)
        a(end+':'); a('s_endpgm'); self.flush_tail()
        launch = ''.join('; @launch kernel=%s grid=(256,1,1) block=(512,1,1) lds=%d\n' % (n, LDS_TOTAL) for n in names)
        return self.finish(launch, names)

    def flag_addrs(self):
        a = self.a
        if self.o['ib']:
            a('s_lshr_b32 %s, %s, 4' % (sB, sT))
            for dst, wp, gr in ((sF, sW, sB), (sE, sB, sW)):
                a('s_lshl3_add_u32 %s, %s, %s' % (sA, sP, wp)); a('s_lshl_b32 %s, %s, 21' % (sA, sA))
                a('s_lshl_b32 %s, %s, 10' % (sC, gr)); a('s_add_u32 %s, %s, %s' % (sA, sA, sC))
                a('s_add_u32 %s, %s, 0x%x' % (dst, sA, WS_FLAG_IB))
            a('s_and_b32 %s, %s, 15' % (sA, sT)); a('s_add_u32 %s, %s, 8' % (sA, sA))
            a('s_lshl_b32 %s, %s, %s' % (sInc, sCh, sA)); a('s_add_u32 %s, %s, 1' % (sInc, sInc))
            a('v_lshl_add_u32 %s, %s, 2, 8' % (v(V.dummy), v(V.g)))
            return
        if self.o['fl'] != '':
            pol = int(self.o['fl'][1]); mode = self.o['fl'][0]
            a('s_lshr_b32 %s, %s, 4' % (sB, sT))
            for dst, wp, gr in ((sF, sW, sB), (sE, sB, sW)):
                a('s_lshl3_add_u32 %s, %s, %s' % (sA, sP, wp))
                if mode == 'x': a('s_xor_b32 %s, %s, %d' % (sC, sP, pol))
                else: a('s_lshr_b32 %s, %s, 2' % (sC, wp)); a('s_xor_b32 %s, %s, %d' % (sC, sC, pol))
                a('s_lshl1_add_u32 %s, %s, %s' % (sA, sA, sC))
                a('s_lshl3_add_u32 %s, %s, %s' % (sA, sA, gr))
                a('s_lshl_b32 %s, %s, 10' % (sA, sA))
                a('s_add_u32 %s, %s, 0x%x' % (dst, sA, WS_FLAG))
            return
        fs = int(self.o['fstride'])
        a('s_lshl_b32 %s, %s, %d' % (sA, sP, fs+6)); a('s_add_u32 %s, %s, 0x%x' % (sA, sA, WS_FLAG))
        a('s_lshr_b32 %s, %s, 4' % (sB, sT))
        a('s_lshl_b32 %s, %s, %d' % (sF, sW, fs+3)); a('s_add_u32 %s, %s, %s' % (sF, sF, sA))
        a('s_lshl_b32 %s, %s, %d' % (sC, sB, fs)); a('s_add_u32 %s, %s, %s' % (sF, sF, sC))
        a('s_lshl_b32 %s, %s, %d' % (sE, sB, fs+3)); a('s_add_u32 %s, %s, %s' % (sE, sE, sA))
        a('s_lshl_b32 %s, %s, %d' % (sC, sW, fs)); a('s_add_u32 %s, %s, %s' % (sE, sE, sC))
    def g1_probe(self):
        a = self.a
        NB = int(self.o['nb'])
        a('s_lshl3_add_u32 %s, s2, %s' % (sCh2, sW))
        def f():
            a('s_mov_b32 %s, 0x%x' % (sA, WS_FLAG2 + (int(self.o['pbase']) << 21)))
            for side in range(2):
                for k in range(NB):
                    r = 62+side*NB+k
                    a('s_mov_b32 s%d, 0x%x' % (r, SENT))
                    a('s_%s s%d, s[24:25], %s offset:0x%x glc' % (self.o['pop'], r, sA, side*0x2000 + (k & 1)*0x1000 + (k >> 1)*0x4000 + k*0x100))
        self.cond(sCh2, 8*8+PW, f)
    def g1_eval(self):
        a = self.a
        NB = int(self.o['nb'])
        def f():
            a('s_waitcnt lgkmcnt(%d)' % (NB+1))
            a('s_nop %s' % self.o['pnop'])
            a('s_mov_b32 %s, 0' % sA); a('s_mov_b32 %s, 0' % sB)
            for k in range(NB):
                a('s_cmp_lg_u32 s%d, 0x%x' % (62+NB+k, SENT)); a('s_addc_u32 %s, %s, 0' % (sB, sB))
            a('s_cmp_le_u32 %s, %s' % (sB, self.o['pthr']))
            a('s_cselect_b32 s94, 2, 3')
            if self.o['ts']:
                a('s_lshl_b32 %s, %s, 4' % (sA, sA)); a('s_lshl_b32 %s, %s, 8' % (sB, sB)); a('s_or_b32 s94, s94, %s' % sA); a('s_or_b32 s94, s94, %s' % sB)
            if self.o['force'] != '': a('s_mov_b32 s94, %d' % (2+int(self.o['force'])))
            a('s_atomic_or s94, s[20:21], 0x80')
        self.cond(sCh2, 8*8+PW, f)
    def g1_pre(self):
        a = self.a
        self.cond(sW, PW, lambda: a('s_load_dword s95, s[20:21], 0x80'))
    def g1_read(self):
        a = self.a
        def f():
            a('buffer_load_dword %s, %s, %s, 0 offen offset:128 sc1' % (v(V.dummy), v(V.EL), SDBG))
        self.cond(sW, PW, f)
    def g1_wait(self):
        a = self.a
        def f():
            lp, ok = self.label('g1'), self.label('g1ok')
            a('s_mov_b32 %s, 0' % sCnt)
            a(lp+':')
            a('s_waitcnt vmcnt(0)')
            a('v_cmp_ne_u32 vcc, 0, %s' % v(V.dummy))
            a('s_cbranch_vccnz %s' % ok)
            a('buffer_load_dword %s, %s, %s, 0 offen offset:128 sc1' % (v(V.dummy), v(V.EL), SDBG))
            a('s_add_u32 %s, %s, 1' % (sCnt, sCnt))
            a('s_cmp_lt_u32 %s, 0x%x' % (sCnt, SPIN_MAX))
            a('s_cbranch_scc1 %s' % lp)
            a('s_waitcnt vmcnt(0)')
            a(ok+':')
            a('ds_write_b32 %s, %s offset:4' % (v(V.dummy2), v(V.dummy)))
        self.cond(sW, PW, f)
    def g1_use(self):
        a = self.a
        a('s_waitcnt lgkmcnt(8)')
        a('v_readfirstlane_b32 %s, %s' % (sCh, v(V.dummy)))
        if self.o['ts']: a('s_mov_b32 s%d, %s' % (sTS+24, sCh))
        a('s_and_b32 %s, %s, 1' % (sCh, sCh)); a('s_lshl_b32 %s, %s, 13' % (sCh, sCh))
        a('s_xor_b32 %s, %s, %s' % (sEst, sEst, sCh))

    def p2_probe_issue(self):
        a = self.a
        def f():
            if self.o['ib3']:
                a('s_lshr_b32 %s, s2, 5' % sA); a('s_bfe_u32 %s, s2, 0x10004' % sCh2)
                a('s_lshl1_add_u32 %s, %s, %s' % (sA, sA, sCh2)); a('s_lshl_b32 %s, %s, 5' % (sA, sA))
                a('s_and_b32 %s, s2, 31' % sB); a('s_add_u32 %s, %s, %s' % (sA, sA, sB))
                a('s_lshl_b32 %s, %s, 8' % (sA, sA)); a('s_add_u32 %s, %s, 0x%x' % (sDP, sA, WS_FLAG2))
            else:
                a('s_bfe_u32 %s, %s, 0x30003' % (sA, sT)); a('s_lshl3_add_u32 %s, %s, %s' % (sA, sP, sA))
                a('s_lshr_b32 %s, %s, 6' % (sCh2, sT))
                a('s_lshl1_add_u32 %s, %s, %s' % (sA, sA, sCh2))
                a('s_and_b32 %s, %s, 7' % (sB, sT)); a('s_lshl3_add_u32 %s, %s, %s' % (sA, sA, sB))
                a('s_lshl_b32 %s, %s, 10' % (sA, sA)); a('s_add_u32 %s, %s, 0x%x' % (sDP, sA, WS_FLAG2))
            a('s_xor_b32 %s, %s, 0x2000' % (sDM, sDP))
            a('s_mov_b64 s[92:93], 0')
            a('s_atomic_swap s92, s[24:25], %s glc' % sDP)
            a('s_atomic_swap s93, s[24:25], %s glc' % sDM)
        self.cond(sW, PW, f)
    def p2_probe_eval(self):
        a = self.a; T = V.T
        def f():
            if self.o['r2']:
                a('s_waitcnt lgkmcnt(0)')
                a('s_atomic_swap s92, s[24:25], %s glc' % sDP)
                a('s_atomic_swap s93, s[24:25], %s glc' % sDM)
            a('s_waitcnt lgkmcnt(1)')
            a('s_nop %s' % self.o['pnop'])
            a('s_getreg_b32 %s, hwreg(HW_REG_IB_STS, 8, 4)' % sA)
            a('s_cmp_eq_u32 %s, 0' % sA)
            a('s_cselect_b32 %s, 1, 0' % sA)
            a('s_xor_b32 %s, %s, %s' % (sCh2, sCh2, sA))
            if self.o['force'] != '': a('s_xor_b32 %s, %s, %s' % (sCh2, sP, self.o['force']))
            if not self.o['ib3']:
                a('v_mov_b32 %s, %d' % (v(T), CNT)); a('v_mov_b32 %s, %s' % (v(T+1), sCh2))
                a('ds_write_b32 %s, %s offset:4' % (v(T), v(T+1)))
            if self.o['ib3']:
                l = self.label('nv')
                a('s_and_b32 %s, s2, 0x8f' % sA); a('s_cmp_lg_u32 %s, 8' % sA); a('s_cbranch_scc1 %s' % l)
                a('s_cmp_eq_u32 s2, 120'); a('s_cbranch_scc1 %s' % l)
                a('s_lshl_b32 s94, %s, 8' % sCh2); a('s_add_u32 s94, s94, 0x1001')
                a('s_atomic_add s94, s[20:21], 0x0')
                a(l+':')
        self.cond(sW, PW, f)
    def vote_read(self):
        a = self.a
        if self.o['novr']: return
        def f():
            a('s_mov_b32 s22, 256'); a('s_mov_b32 s23, 0x20000')
            a('v_mov_b32 %s, 0' % v(V.EL))
            a('buffer_load_dword %s, %s, %s, 0 offen sc1' % (v(V.dummy), v(V.EL), SDBG))
        self.cond(sW, PW, f)
    def vote_use(self):
        a = self.a; T = V.T
        def f():
            if not self.o['novr']:
                a('v_readfirstlane_b32 %s, %s' % (sA, v(V.dummy)))
                a('s_bfe_u32 %s, %s, 0x40008' % (sB, sA)); a('s_bfe_u32 %s, %s, 0x4000c' % (sC, sA))
                a('s_sub_u32 %s, %s, %s' % (sC, sC, sB))
                a('s_xor_b32 %s, %s, 1' % (sA, sP))
                a('s_cmp_ge_u32 %s, 4' % sB); a('s_cselect_b32 %s, %s, %s' % (sCh2, sA, sCh2))
                a('s_cmp_ge_u32 %s, 4' % sC); a('s_cselect_b32 %s, %s, %s' % (sCh2, sP, sCh2))
            a('v_mov_b32 %s, %s' % (v(T+1), sCh2))
            a('ds_write_b32 %s, %s offset:4' % (v(V.dummy2), v(T+1)))
        self.cond(sW, PW, f)
    def zero3(self):
        a = self.a
        a('s_sub_u32 %s, s2, 16' % sZ)
        a('s_and_b32 %s, %s, 0xffffffef' % (sZ, sZ))
        def f():
            a('s_lshr_b32 %s, s2, 5' % sA)
            a('s_lshl1_add_u32 %s, %s, %s' % (sA, sW, sA))
            a('s_lshl_b32 %s, %s, 13' % (sA, sA)); a('s_add_u32 %s, %s, 0x%x' % (sA, sA, WS_FLAG))
            for i in range(0, 8, 2): a('s_mov_b64 s[%d:%d], 0' % (84+i, 85+i))
            for i in range(8):
                a('s_atomic_swap s%d, s[24:25], %s offset:0x%x glc' % (84+i, sA, i << 10))
        self.cond(sZ, 0, f)
    def ready3(self):
        a = self.a
        def f():
            a('s_mov_b32 s94, 1')
            a('s_waitcnt lgkmcnt(0)')
            a('s_atomic_add s94, s[20:21], 0x0')
        self.cond(sZ, 0, f)
    def flag_addrs3(self):
        a = self.a
        a('s_lshr_b32 %s, %s, 4' % (sB, sT))
        for dst, wp, gr in ((sF, sW, sB), (sE, sB, sW)):
            a('s_lshl4_add_u32 %s, %s, %s' % (sC, wp, gr)); a('s_lshl_b32 %s, %s, 10' % (sC, sC))
            a('s_add_u32 %s, %s, 0x%x' % (dst, sC, WS_FLAG))
    def side3(self):
        a = self.a
        a('s_bfe_u32 %s, %s, 0x1000a' % (sCh2, sRv))
        a('s_xor_b32 %s, %s, %s' % (sCh2, sCh2, sP)); a('s_lshl_b32 %s, %s, 13' % (sCh2, sCh2))
        a('s_add_u32 %s, %s, %s' % (sF, sF, sCh2))
    def side3b(self):
        a = self.a
        a('s_add_u32 %s, %s, %s' % (sE, sE, sCh2))
        a('s_xor_b32 %s, %s, %s' % (sZp, sEst, sCh2))
    def side3c(self):
        a = self.a
        a('s_and_b32 %s, %s, 0x2000' % (sA, sZ)); a('s_xor_b32 %s, %s, %s' % (sA, sA, sCh2)); a('s_add_u32 %s, %s, %s' % (sEld, sEld, sA))
    def p2_choice_read(self):
        self.a('ds_read_b32 %s, %s offset:4' % (v(V.dummy), v(V.dummy2)))
    def p2_choice_use(self):
        a = self.a
        a('s_waitcnt lgkmcnt(8)')
        a('v_readfirstlane_b32 %s, %s' % (sCh2, v(V.dummy)))
        a('s_lshl_b32 %s, %s, 13' % (sA, sCh2))
        a('s_xor_b32 %s, %s, %s' % (sZp, sEst, sA))
        if self.o['ts']: a('s_mov_b32 s%d, %s' % (sTS+24, sCh2))
    def ex_addrs_ib2(self):
        a = self.a; T = V.T
        a('s_lshl_b32 %s, %s, 4' % (sB, sW)); a('s_xor_b32 %s, %s, %s' % (sB, sB, sT)); a('s_lshl_b32 %s, %s, 8' % (sB, sB))
        a('v_lshlrev_b32 %s, 4, %s' % (v(T), v(V.n)))
        a('v_lshl_add_u32 %s, %s, 10, %s' % (v(T), v(V.g), v(T)))
        a('v_xor_b32 %s, %s, %s' % (v(T), sB, v(T)))
        a('v_and_b32 %s, 0x6000, %s' % (v(T+1), v(T)))
        a('v_add_u32 %s, %s, %s' % (v(T), v(T), v(T+1)))
        a('v_lshl_add_u32 %s, %s, 18, %s' % (v(V.Est), v(V.g), v(T)))
        a('v_and_b32 %s, 0xdcff, %s' % (v(V.Eld0), v(T)))
        a('s_lshl3_add_u32 %s, %s, %s' % (sEst, sP, sW)); a('s_lshl_b32 %s, %s, 20' % (sEst, sEst))
        a('s_and_b32 %s, %s, 2' % (sA, sW)); a('s_lshl_b32 %s, %s, 12' % (sA, sA)); a('s_add_u32 %s, %s, %s' % (sEst, sEst, sA))
    def misc_ib2(self):
        a = self.a
        a('s_lshl_b32 %s, %s, 7' % (sEld, sP)); a('s_add_u32 %s, %s, %s' % (sEld, sEld, sT)); a('s_lshl_b32 %s, %s, 16' % (sEld, sEld))
        a('s_and_b32 %s, %s, 15' % (sA, sT)); a('s_add_u32 %s, %s, 8' % (sA, sA))
        a('s_lshl_b32 %s, %s, %s' % (sInc, sCh2, sA)); a('s_add_u32 %s, %s, 1' % (sInc, sInc))
        a('v_lshl_add_u32 %s, %s, 2, 8' % (v(V.dummy), v(V.g)))
        a('s_bfe_i32 %s, %s, 0x10005' % (sZ, sT))
    def ld_addrs_ib2(self):
        a = self.a; T = V.T
        a('s_xor_b32 %s, %s, %s' % (sA, sRv, sZ))
        a('v_lshrrev_b32 %s, %s, %s' % (v(T), v(V.dummy), sA))
        for q in range(4):
            a('v_bfe_u32 %s, %s, %d, 1' % (v(T+1), v(T), q))
            a('v_lshl_add_u32 %s, %s, 13, %s' % (v(T+2+q), v(T+1), v(V.Eld0)))
    def major_post(self):
        a = self.a; T = V.T
        def f():
            a('s_bfe_u32 %s, %s, 0x100008' % (sA, sRv)); a('s_bcnt1_i32_b32 %s, %s' % (sA, sA))
            a('s_cmp_gt_u32 %s, 8' % sA); a('s_cselect_b32 %s, 0x2000, 0' % sA)
            a('v_mov_b32 %s, %s' % (v(T), sA))
            a('ds_write_b32 %s, %s offset:8' % (v(V.dummy2), v(T)))
        self.cond(sW, 0, f)
    def major_read(self):
        self.a('ds_read_b32 %s, %s offset:8' % (v(V.dummy), v(V.dummy2)))
    def major_use(self):
        a = self.a
        a('v_readfirstlane_b32 %s, %s' % (sCh2, v(V.dummy)))
        a('s_xor_b32 %s, %s, %s' % (sZp, sEst, sCh2))
    def major_use2(self):
        a = self.a
        a('s_and_b32 %s, %s, 0x2000' % (sA, sZ)); a('s_xor_b32 %s, %s, %s' % (sA, sA, sCh2)); a('s_add_u32 %s, %s, %s' % (sEld, sEld, sA))
        a('s_lshr_b32 %s, %s, 4' % (sB, sT))
        for dst, wp, gr in ((sF, sW, sB), (sE, sB, sW)):
            a('s_lshl3_add_u32 %s, %s, %s' % (sA, sP, wp)); a('s_lshl4_add_u32 %s, %s, %s' % (sA, sA, gr)); a('s_lshl_b32 %s, %s, 10' % (sA, sA))
            a('s_add_u32 %s, %s, %s' % (sA, sA, sCh2)); a('s_add_u32 %s, %s, 0x%x' % (dst, sA, WS_FLAG2))

    def gz_issue(self):
        a = self.a
        a('s_sub_u32 %s, s2, 16' % sZ)
        a('s_and_b32 %s, %s, 0xffffffef' % (sZ, sZ))
        def f():
            a('s_lshr_b32 %s, s2, 5' % sZp)
            a('s_lshl1_add_u32 %s, %s, %s' % (sCh, sW, sZp))
            a('s_lshl_b32 %s, %s, 13' % (sCh, sCh)); a('s_add_u32 %s, %s, 0x%x' % (sCh, sCh, WS_FLAG))
            for i in range(0, 8, 2): a('s_mov_b64 s[%d:%d], 0' % (84+i, 85+i))
            for i in range(8):
                a('s_atomic_swap s%d, s[24:25], %s offset:0x%x glc' % (84+i, sCh, i << 10))
        self.cond(sZ, 0, f)
    def gz_publish(self):
        a = self.a
        def f():
            a('s_waitcnt lgkmcnt(0)')
            a('s_memtime s[84:85]')
            a('s_mov_b32 s88, 0')
            a('s_waitcnt lgkmcnt(0)')
            a('s_atomic_add s88, s[24:25], %s glc' % sCh)
            a('s_waitcnt lgkmcnt(0)')
            a('s_memtime s[86:87]')
            a('s_mul_i32 %s, %s, 13' % (sZp, sZp)); a('s_add_u32 %s, %s, 5' % (sZp, sZp))
            a('s_waitcnt lgkmcnt(0)')
            a('s_sub_u32 s84, s86, s84'); a('s_lshr_b32 s84, s84, 3'); a('s_min_u32 s84, s84, 0x3ff')
            a('s_lshl_b32 s84, s84, %s' % sZp); a('s_add_u32 s84, s84, 1')
            a('s_atomic_add s84, s[20:21], 0x0')
        self.cond(sZ, 0, f)
    def gz_read(self):
        a = self.a
        a('v_mov_b32 %s, 0' % v(V.EL))
        a('buffer_load_dword %s, %s, %s, 0 offen sc1' % (v(V.dummy), v(V.EL), SDBG))
    def gz_check(self):
        a = self.a; l0, l1 = self.label('gz'), self.label('gzok')
        a('s_waitcnt vmcnt(0)')
        a('v_readfirstlane_b32 %s, %s' % (sRv, v(V.dummy)))
        a('s_bitcmp1_b32 %s, 4' % sRv)
        a('s_cbranch_scc1 %s' % l1)
        a('s_mov_b32 %s, 0' % sCnt)
        a(l0+':')
        a('buffer_load_dword %s, %s, %s, 0 offen sc1' % (v(V.dummy), v(V.EL), SDBG))
        a('s_add_u32 %s, %s, 1' % (sCnt, sCnt))
        a('s_cmp_gt_u32 %s, 0x%x' % (sCnt, SPIN_MAX))
        a('s_waitcnt vmcnt(0)')
        a('v_readfirstlane_b32 %s, %s' % (sRv, v(V.dummy)))
        a('s_cbranch_scc1 %s' % l1)
        a('s_bitcmp0_b32 %s, 4' % sRv)
        a('s_cbranch_scc1 %s' % l0)
        a(l1+':')
        a('s_bfe_u32 %s, %s, 0xd0005' % (sA, sRv)); a('s_bfe_u32 %s, %s, 0xd0012' % (sB, sRv))
        a('s_cmp_lt_u32 %s, %s' % (sB, sA))
        a('s_cselect_b32 %s, 0x2000, 0' % sCh)
        if self.o['force'] != '': a('s_mov_b32 %s, %d' % (sCh, int(self.o['force']) << 13))
        a('s_xor_b32 %s, %s, %s' % (sEst, sEst, sCh))
        if self.o['ts']: a('s_mov_b32 s%d, %s' % (sTS+24, sRv))
    def gz_flag_addrs(self):
        a = self.a
        a('s_xor_b32 %s, %s, %s' % (sEld, sEld, sCh))
        a('s_lshr_b32 %s, %s, 4' % (sB, sT))
        if not self.o['optx']:
            for dst, wp, gr in ((sF, sW, sB), (sE, sB, sW)):
                a('s_and_b32 %s, %s, 3' % (sC, wp)); a('s_lshl2_add_u32 %s, %s, %s' % (sC, sP, sC))
                a('s_lshr_b32 %s, %s, 2' % (sA, wp)); a('s_lshl1_add_u32 %s, %s, %s' % (sC, sC, sA))
                a('s_lshl3_add_u32 %s, %s, %s' % (sC, sC, gr)); a('s_lshl_b32 %s, %s, 10' % (sC, sC))
                a('s_xor_b32 %s, %s, %s' % (sC, sC, sCh))
                a('s_add_u32 %s, %s, 0x%x' % (dst, sC, WS_FLAG))
            return
        a('s_lshl_b32 %s, %s, 13' % (sA, sP)); a('s_xor_b32 %s, %s, %s' % (sA, sA, sCh)); a('s_add_u32 %s, %s, 0x%x' % (sA, sA, WS_FLAG))
        for dst, wp, gr in ((sF, sW, sB), (sE, sB, sW)):
            a('s_lshl4_add_u32 %s, %s, %s' % (sC, wp, gr)); a('s_lshl_b32 %s, %s, 10' % (sC, sC))
            a('s_add_u32 %s, %s, %s' % (dst, sC, sA))

    def zero_flags_ib(self):
        a = self.a
        def f():
            a('s_waitcnt lgkmcnt(0)')
            a('s_lshl_b32 %s, %s, 13' % (sA, sCh)); a('s_add_u32 %s, %s, %s' % (sA, sA, sEst)); a('s_add_u32 %s, %s, 0x%x' % (sA, sA, WS_FLAG_IB))
            for i in range(0, 8, 2): a('s_mov_b64 s[%d:%d], 0' % (84+i, 85+i))
            for i in range(8):
                a('s_atomic_swap s%d, s[24:25], %s offset:0x%x glc' % (84+i, sA, i << 10))
        self.cond(sT, 1, f)
    def set_ready_ib(self):
        a = self.a
        def f():
            a('s_add_u32 %s, %s, 8' % (sA, sW)); a('s_lshl_b32 %s, %s, %s' % (sZ, sCh, sA)); a('s_add_u32 %s, %s, 1' % (sZ, sZ))
            a('s_waitcnt lgkmcnt(0)')
            a('s_atomic_add %s, s[20:21], %s' % (sZ, sRd))
        self.cond(sT, 1, f)
    def flag_side(self):
        a = self.a
        a('s_lshr_b32 %s, %s, 8' % (sRv, sRv))
        a('s_lshr_b32 %s, %s, %s' % (sA, sRv, sW)); a('s_and_b32 %s, %s, 1' % (sA, sA)); a('s_lshl_b32 %s, %s, 13' % (sA, sA)); a('s_add_u32 %s, %s, %s' % (sF, sF, sA))
    def flag_side2(self):
        a = self.a
        a('s_lshr_b32 %s, %s, 4' % (sB, sT))
        a('s_lshr_b32 %s, %s, %s' % (sA, sRv, sB)); a('s_and_b32 %s, %s, 1' % (sA, sA)); a('s_lshl_b32 %s, %s, 13' % (sA, sA)); a('s_add_u32 %s, %s, %s' % (sE, sE, sA))
    def zero_flags(self):
        a = self.a
        a('s_sub_u32 %s, s2, 16' % sZ)
        a('s_and_b32 %s, %s, 0xffffffef' % (sZ, sZ))
        def f():
            fs = int(self.o['fstride'])
            a('s_lshr_b32 %s, s2, 5' % sZp)
            a('s_lshl3_add_u32 %s, %s, %s' % (sA, sZp, sW))
            if self.o['fl'] != '':
                pol = int(self.o['fl'][1]); mode = self.o['fl'][0]; fs = 10
                if mode == 'x': a('s_xor_b32 %s, %s, %d' % (sC, sZp, pol))
                else: a('s_lshr_b32 %s, %s, 2' % (sC, sW)); a('s_xor_b32 %s, %s, %d' % (sC, sC, pol))
                a('s_lshl1_add_u32 %s, %s, %s' % (sA, sA, sC))
            a('s_lshl_b32 %s, %s, %d' % (sA, sA, fs+3)); a('s_add_u32 %s, %s, 0x%x' % (sA, sA, WS_FLAG))
            for i in range(0, 8, 2): a('s_mov_b64 s[%d:%d], 0' % (84+i, 85+i))
            for i in range(8):
                a('s_atomic_swap s%d, s[24:25], %s offset:0x%x glc' % (84+i, sA, i << fs))
            a('s_lshl_b32 %s, %s, 7' % (sZp, sZp))
        self.cond(sZ, 0, f)
    def set_ready(self):
        a = self.a
        def f():
            a('s_mov_b32 %s, 1' % sInc)
            a('s_waitcnt lgkmcnt(0)')
            a('s_atomic_add %s, s[20:21], %s' % (sInc, sZp))
        self.cond(sZ, 0, f)
    def ready_issue(self):
        self.a('s_load_dword %s, s[20:21], %s' % (sRv, sRd))
    def ready_check(self):
        a = self.a; l0, l1 = self.label('rdy'), self.label('rdyok')
        def notready():
            if self.o['g1']: a('s_cmp_lt_u32 %s, 16' % sRv)
            elif self.o['ib3']: a('s_and_b32 %s, %s, 0xff' % (sA, sRv)); a('s_cmp_lt_u32 %s, 23' % sA)
            else: a('s_bitcmp0_b32 %s, 3' % sRv)
        notready()
        a('s_cbranch_scc1 %s' % l0)
        a(l1+':')
        def tail():
            lp = self.label('rdyl')
            a(l0+':')
            a('s_mov_b32 %s, 0' % sCnt)
            a('v_mov_b32 %s, 0' % v(V.O+1))
            a(lp+':')
            a('buffer_load_dword %s, %s, %s, %s offen sc1' % (v(V.O), v(V.O+1), SDBG, sRd))
            a('s_add_u32 %s, %s, 1' % (sCnt, sCnt))
            a('s_cmp_gt_u32 %s, 0x%x' % (sCnt, SPIN_MAX))
            a('s_waitcnt vmcnt(0)')
            a('v_readfirstlane_b32 %s, %s' % (sRv, v(V.O)))
            a('s_cbranch_scc1 %s' % l1)
            notready()
            a('s_cbranch_scc1 %s' % lp)
            a('s_branch %s' % l1)
        self.tail.append(tail)
    def set_flag(self, ex):
        a = self.a
        if not ((self.o['ib'] or self.o['ib2']) and ex == 0): a('s_mov_b32 %s, 0x%x' % (sInc, 1 << (24*ex)))
        a('s_atomic_add %s, s[24:25], %s' % (sInc, sF))
    def poll(self, ex, under=None):
        a = self.a; lp, ok = self.label('poll'), self.label('pollok')
        if under:
            a('s_mov_b32 %s, 0' % sRv)
            a('s_atomic_add %s, s[24:25], %s glc' % (sRv, sE))
            under()
            a('s_waitcnt lgkmcnt(0)')
            a('s_bitcmp1_b32 %s, %d' % (sRv, 4+24*ex))
            a('s_cbranch_scc1 %s' % ok)
        a('s_mov_b32 %s, 0' % sCnt)
        a(lp+':')
        a('s_mov_b32 %s, 0' % sRv)
        a('s_atomic_add %s, s[24:25], %s glc' % (sRv, sE))
        a('s_add_u32 %s, %s, 1' % (sCnt, sCnt))
        a('s_cmp_gt_u32 %s, 0x%x' % (sCnt, SPIN_MAX))
        a('s_waitcnt lgkmcnt(0)')
        a('s_cbranch_scc1 %s' % ok)
        if self.o['slp']:
            a('s_bitcmp1_b32 %s, %d' % (sRv, 4+24*ex))
            a('s_cbranch_scc1 %s' % ok)
            a('s_sleep %s' % self.o['slp'])
            a('s_branch %s' % lp)
        else:
            a('s_bitcmp0_b32 %s, %d' % (sRv, 4+24*ex))
            a('s_cbranch_scc1 %s' % lp)
        a(ok+':')
        if self.o['pbar']: a('s_barrier')
    def code_pf(self, name):
        a = self.a
        l = self.label('pc')
        a('s_getpc_b64 s[28:29]')
        a(l+':')
        a('s_sub_u32 s28, s28, %s-%s' % (l, name))
        a('s_subb_u32 s29, s29, 0')
        a('v_lshlrev_b32 %s, 5, v0' % v(V.O+6))
        a('global_load_dword %s, %s, s[28:29]' % (v(V.dummy), v(V.O+6)))

    def code_spf(self, name):
        a = self.a
        l = self.label('pc')
        a('s_getpc_b64 s[28:29]')
        a(l+':')
        a('s_sub_u32 s28, s28, %s-%s' % (l, name))
        a('s_subb_u32 s29, s29, 0')
        a('s_lshr_b32 %s, s2, 4' % sA)
        a('s_lshl3_add_u32 %s, %s, %s' % (sA, sA, sW))
        a('s_lshl_b32 %s, %s, 7' % (sA, sA))
        a('s_load_dword s94, s[28:29], %s' % sA)

    def ifelse(self, reg, val, feq, fne, eq_first=False):
        a = self.a; l0, l1 = self.label('ie'), self.label('iend')
        if eq_first:
            a('s_cmp_lg_u32 %s, %d' % (reg, val)); a('s_cbranch_scc1 %s' % l0)
            feq(); a('s_branch %s' % l1); a(l0+':'); fne()
        else:
            a('s_cmp_eq_u32 %s, %d' % (reg, val)); a('s_cbranch_scc1 %s' % l0)
            fne(); a('s_branch %s' % l1); a(l0+':'); feq()
        a(l1+':')
    def touch(self, rnd):
        a = self.a
        a('s_mov_b64 exec, 0')
        for k in range(7):
            a('s_cmp_eq_u32 %s, %d' % (sW, k)); a('s_cbranch_scc1 stub_%d' % (8*rnd+k))
        a('s_branch stub_%d' % (8*rnd+7))
        a('ret_%d:' % rnd)
        a('s_mov_b64 exec, -1')

    def cond(self, reg, val, f):
        a = self.a; l = self.label('c')
        a('s_cmp_lg_u32 %s, %d' % (reg, val)); a('s_cbranch_scc1 %s' % l)
        f()
        a(l+':')

    def build_one(self):
        a = self.a; o = self.o
        name = NAME + '_kernel'
        self.kernel_head(name); end = self.label('end')
        self.prologue1(end)
        wA, wB = o['wA'], o['wB']
        def wat(pos, rows=(0, 1, 2, 3)):
            f = lambda: [self.w_dma1(i) for i in rows]
            if wA == pos and wB == pos: f()
            elif wA == pos: self.cond(sP, 0, f)
            elif wB == pos: self.cond(sP, 1, f)
        self.wat = wat
        bd = int(o['bdelay'])
        if o['touch'] == 'pre': self.touch(0)
        self.mark('touched')
        a('s_waitcnt lgkmcnt(0)')
        self.mark('karg')
        if o['wsoff']:
            a('s_add_u32 s24, s24, 0x%x' % (int(o['wsoff']) << 20)); a('s_addc_u32 s25, s25, 0')
        gz = o['gz']
        g1 = o['g1']
        if g1: self.g1_probe(); self.g1_pre(); self.zero3(); a('s_mov_b32 %s, 0' % sRd)
        elif gz: self.gz_issue()
        elif o['ib']: self.probe_issue()
        elif o['ib3']: self.p2_probe_issue(); self.zero3(); a('s_mov_b32 %s, 0' % sRd)
        elif o['ib2']: self.p2_probe_issue(); self.zero_flags()
        else: self.zero_flags()
        misc = lambda: (self.srds(), self.calc_k0(), self.w_prep(), 0 if g1 else self.gz_flag_addrs() if gz else self.flag_addrs3() if o['ib3'] else self.flag_addrs(), self.misc_ib2() if o['ib2'] else 0)
        if wB == 'first':
            def fb():
                misc(); self.w_dma()
                if bd == 0: self.p1_issue()
            self.ifelse(sP, 1, fb, self.p1_issue)
        elif bd: self.cond(sP, 0, self.p1_issue)
        else: self.p1_issue()
        if o['ib']: self.probe_eval(); self.zero_flags_ib()
        if g1: self.spec_early(); self.g1_eval(); a('s_mov_b32 s22, 256'); a('s_mov_b32 s23, 0x20000'); a('v_mov_b32 %s, 0' % v(V.EL))
        if gz: self.gz_publish(); a('s_mov_b32 s22, 256'); a('s_mov_b32 s23, 0x20000')
        if o['touch'] == 'post': self.touch(0)
        if o['touch']: self.cond(sT, 0, lambda: self.touch(1))
        if o['ib2']:
            if o['r2']: self.p1_addrs(); self.gen_F16(); self.p2_probe_eval(); self.coop_init()
            else: self.p2_probe_eval(); self.p1_addrs(); self.gen_F16(); self.coop_init()
        else: self.p1_addrs(); self.gen_F16(); self.coop_init()
        if bd == 1: self.cond(sP, 1, self.p1_issue)
        self.gen_M2()
        if o['ib']: self.ex_addrs_ib(); self.set_ready_ib()
        elif gz: self.ex_addrs()
        elif g1: self.ex_addrs(); self.ready3()
        elif o['ib3']: self.ex_addrs_ib2(); self.ready3()
        elif o['ib2']: self.ex_addrs_ib2(); self.set_ready()
        else: self.ex_addrs(); self.set_ready()
        X = [misc, self.coop_gen, lambda: self.gen_B(True, False), lambda: (self.p2_addrs(), self.w_addr())]
        nearly = max(0, bd-2)
        def early():
            for f in X[(1 if wB == 'first' else 0):nearly]: f()
            self.p1_issue()
        if bd >= 2: self.cond(sP, 1, early)
        self.mark('w1')
        def Xat(k):
            if k < nearly or (k == 0 and wB == 'first'): self.cond(sP, 0, X[k])
            else: X[k]()
        if gz: self.p1_compute(0, self.gz_read, None, lambda: (self.gz_check(), self.spec_early()))
        elif g1:
            if wA == 'c1': misc()
            self.p1_compute(0, lambda: self.g1_read(), (self.w_dma if wA == 'c1' else None), self.g1_use, self.p2_choice_read, self.g1_wait)
        elif o['ib3']:
            self.vote_read()
            self.p1_compute(0, lambda: (self.vote_use(), self.spec_early()), None, self.p2_choice_use, self.p2_choice_read)
        elif o['ib2']: self.p1_compute(0, self.spec_early, None, self.p2_choice_use, self.p2_choice_read)
        else:
            def h1():
                if o['tlb1']:
                    a('s_add_u32 %s, %s, 0x%x' % (sA, sEst, self.ubase(0)))
                    a('v_and_b32 %s, 3, %s' % (v(V.T), v(V.lane)))
                    a('v_lshl_add_u32 %s, %s, 15, %s' % (v(V.T), v(V.T), v(V.Est)))
                    a('buffer_load_dword %s, %s, %s, %s offen' % (v(V.dummy), v(V.T), SWS, sA))
            if o['tlb1']: h1()
            self.p1_compute(1 if o['tlb1'] else 0, self.spec_early)
        self.stamp()
        if not gz: self.ready_issue()
        if wA != 'c1': Xat(0)
        n = 0
        if wA == 'postS1':
            assert wB == wA
            self.w_dma(); n = 4
        if wA == 'half':
            self.w_dma1(0); self.w_dma1(1); n = 2
        if g1: self.gz_flag_addrs()
        Xat(1)
        self.coop_post()
        self.mark('w2a')
        a('s_waitcnt vmcnt(%d) lgkmcnt(0)' % n)
        self.stamp()
        if not gz: self.ready_check()
        if o['ib']: self.flag_side()
        if o['ib3']: self.side3()
        self.mark('rdy')
        self.set_flag(0)
        if o['ib']: self.flag_side2()
        if o['ib3']: self.side3b()
        def under1():
            self.w_sload()
            if wA == 'postF': self.w_dma()
            if wA == 'half': self.w_dma1(2); self.w_dma1(3)
            if o['tlb2']:
                a('s_add_u32 %s, %s, 0x%x' % (sA, sEst, self.ubase(1)))
                a('v_and_b32 %s, 3, %s' % (v(V.T), v(V.lane)))
                a('v_lshl_add_u32 %s, %s, 15, %s' % (v(V.T), v(V.T), v(V.Est)))
                a('buffer_load_dword %s, %s, %s, %s offen' % (v(V.dummy), v(V.T), SWS, sA))
            Xat(2); self.B_dup()
            Xat(3)
            self.w_special()
        self.poll(0, under1)
        self.stamp()
        if self.o.get('fine'):
            a('s_memrealtime s[%d:%d]' % (sTS+2*self.nts, sTS+2*self.nts+1)); self.nts += 1
            self.fstamp()
        if o['ib']: self.ld_addrs_ib()
        if o.get('da') == 'votes':
            a('s_bfe_u32 s60, %s, 0x100008' % sRv); a('s_bcnt1_i32_b32 s60, s60')
            a('s_cmp_eq_u32 %s, 0' % sCh2); a('s_sub_u32 s58, 16, s60'); a('s_cmp_eq_u32 %s, 0' % sCh2); a('s_cselect_b32 s60, s60, s58')
            if 'dw' in o: a('s_cmp_eq_u32 %s, %s' % (sW, o['dw'])); a('s_cselect_b32 s60, s60, 0')
            a('s_mul_i32 s60, s60, 25'); a('s_mov_b32 s58, 0')
        if o['ib2']: self.ld_addrs_ib2()
        self.p2_issue()
        if o['ib3']: self.side3c()
        elif o['ib2']: self.major_post()
        self.coop_wait(); self.coop_read()
        self.p2_addrs2()
        a('s_waitcnt vmcnt(4)')
        self.w_edge()
        self.p2_compute(True)
        self.stamp()
        if o['ib2'] and not o['ib3']: self.major_use2()
        self.gen_M3()
        self.mark('w3a')
        a('s_waitcnt vmcnt(0)')
        self.stamp()
        self.set_flag(1)
        self.poll(1, self.p3_addrs)
        self.stamp()
        self.p3_issue()
        self.p3_soff()
        self.p3_compute()
        if 'da' in o:
            self.stamp(); a('s_waitcnt vmcnt(0)'); self.stamp()
            lp = self.label('dg')
            a('s_waitcnt lgkmcnt(0)')
            if o.get('db') == 'wb':
                a('s_cmp_eq_u32 %s, 1' % sSpec); a('s_cselect_b32 s60, s58, s60')
            a('s_sub_u32 %s, s60, s58' % sA)
            if 'cyc' in o: a('s_lshr_b32 %s, %s, 2' % (sA, sA))
            else: a('s_lshl_b32 %s, %s, 2' % (sA, sA))
            if 'dt' in o:
                a('s_cmp_eq_u32 %s, %s' % (sT, o['dt'])); a('s_cselect_b32 %s, %s, 0' % (sA, sA))
            if 'dp' in o:
                a('s_cmp_eq_u32 %s, %s' % (sP, o['dp'])); a('s_cselect_b32 %s, %s, 0' % (sA, sA))
            a('s_add_u32 %s, %s, 3000' % (sA, sA))
            a(lp+':')
            a('s_memrealtime s[28:29]')
            a('s_waitcnt lgkmcnt(0)')
            a('s_sub_u32 %s, s28, s56' % sB)
            a('s_cmp_lt_u32 %s, %s' % (sB, sA))
            a('s_cbranch_scc1 %s' % lp)
        if o['ts']:
            self.stamp(); a('s_waitcnt vmcnt(0)'); self.stamp()
            if 'diag' in o:
                i = int(o['diag']); lp = self.label('dg')
                a('s_waitcnt lgkmcnt(0)')
                if 'xw' in o:
                    a('s_getreg_b32 %s, hwreg(HW_REG_XCC_ID, 0, 4)' % sA)
                    a('s_sub_u32 %s, %s, s2' % (sA, sA)); a('s_and_b32 %s, %s, 7' % (sA, sA)); a('s_mul_i32 %s, %s, 400' % (sA, sA))
                    if int(o['xw']) >= 0:
                        a('s_cmp_eq_u32 s2, %s' % o['xw']); a('s_cselect_b32 %s, %s, 0' % (sA, sA))
                else:
                    a('s_sub_u32 %s, s%d, s%d' % (sA, sTS+2*i, sTS+2*int(o.get('dj', 0))))
                    a('s_lshl_b32 %s, %s, 2' % (sA, sA))
                    if 'dp' in o:
                        a('s_cmp_eq_u32 %s, %s' % (sP, o['dp'])); a('s_cselect_b32 %s, %s, 0' % (sA, sA))
                a('s_add_u32 %s, %s, 3000' % (sA, sA))
                a(lp+':')
                a('s_memrealtime s[28:29]')
                a('s_waitcnt lgkmcnt(0)')
                a('s_sub_u32 %s, s28, s%d' % (sB, sTS))
                a('s_cmp_lt_u32 %s, %s' % (sB, sA))
                a('s_cbranch_scc1 %s' % lp)
            else:
                if o['ib'] or o['gz'] or o['ib2'] or o['g1']: self.nts += 1
                self.dump_stamps(0)
        a(end+':'); a('s_endpgm'); self.flush_tail()
        if o['touch']: self.insert_stubs(name)
        a.raw('.fill (%s+16384-.)/4, 4, 0xbf810000' % name)
        launch = '; @launch grid=(256,1,1) block=(512,1,1) lds=%d\n' % LDS_TOTAL
        return self.finish(launch, [name])

    def insert_stubs(self, name):
        import subprocess, re
        from asmlib import Ins
        a = self.a
        txt = '.amdgcn_target "amdgcn-amd-amdhsa--gfx950"\n.text\n' + a.text() + ''.join('stub_%d:\n' % k for k in range(16)) + 's_endpgm\nspec_tab:\n'
        open('pass1.s', 'w').write(txt)
        subprocess.check_call(['clang', '-x', 'assembler', '-target', 'amdgcn-amd-amdhsa', '-mcpu=gfx950', '-c', 'pass1.s', '-o', 'pass1.o'])
        dis = subprocess.check_output(['llvm-objdump', '-d', '--mcpu=gfx950', 'pass1.o']).decode()
        addrs = [int(m.group(1), 16) for m in re.finditer(r'// ([0-9A-F]{12}):', dis)]
        real = [i for i, x in enumerate(a.ins) if x.kind != 'none']
        assert len(addrs) == len(real) + 1, (len(addrs), len(real))
        size = {real[k]: addrs[k+1] - addrs[k] for k in range(len(real))}
        pos = ENTRY_OFF; nxt = ENTRY_OFF + 1024 - 256
        nxt = (nxt + 1023)//1024*1024
        out = []; k = 0; prev = None; ez = False
        for i, x in enumerate(a.ins):
            if i in size:
                glued = prev is not None and (prev.op == 's_getpc_b64' or 'rel32' in x.text)
                if prev is not None and prev.text.strip() == 's_mov_b64 exec, 0': ez = True
                if prev is not None and prev.text.strip() == 's_mov_b64 exec, -1': ez = False
                glued = glued or ez
                if pos >= nxt and k < 16 and not glued:
                    out.append(Ins('stub_%d:' % k)); out.append(Ins('s_cbranch_execz ret_%d' % (k >> 3)))
                    pos += 4; k += 1; nxt += 1024
                pos += size[i]; prev = x
            out.append(x)
        self.code_end = pos
        while k < 16:
            out.append(Ins('stub_%d:' % k)); out.append(Ins('s_branch ret_%d' % (k >> 3))); k += 1
        a.ins = out

    def finish(self, launch, names):
        hdr = '; GFNet spectral filter (two heads): 2-D FFT via bf16 MFMA DFT stages. Generated by dev/gen.py\n' + launch
        s = hdr + '.amdgcn_target "amdgcn-amd-amdhsa--gfx950"\n.text\n' + self.a.text()
        s += '.section .rodata,"a"\n' + '\n'.join(self.kd(n) for n in names) + '\n' + self.spec_table() + '\n'
        return s

if __name__ == '__main__':
    mode = sys.argv[1]; out = sys.argv[2]
    opt = {}
    for kv in sys.argv[3:]:
        k, x = kv.split('=')
        opt[k] = {'True': True, 'False': False}.get(x, x.replace('+', ' '))
    g = Gen(mode, **opt)
    s = g.build_three() if mode == 'three' else g.build_one()
    assert g.a.verify() == 0
    open(out, 'w').write(s)
    print('vgprs', NVGPR, 'lds', LDS_TOTAL, 'nops', g.a.nops, 'lines', len(g.a.ins))
```

```python
import sys, struct, math
import numpy as np
from asmlib import Asm

NAME = 'concat_heads__spectral_gfnet__spectral_gfnet__prompt'

def f2u(x): return struct.unpack('<I', struct.pack('<f', x))[0]
def lit(x): return '0x%08x' % f2u(x)
def bf16bits(x):
    u = f2u(float(x)); return ((u + 0x7FFF + ((u >> 16) & 1)) >> 16) & 0xFFFF
def sigma(m): return (m & 1) | ((m >> 1) & 1) << 3 | ((m >> 2) & 1) << 1 | ((m >> 3) & 1) << 2 | (m & 16)

S11 = 2.0**-11
SPIN_MAX = 0x4000
ENTRY_OFF = 0x300
SENT = 0x13572468
WS_FLAG_IB = 32 << 20
WS_FLAG2 = 33 << 20
PW = 7
sCh2 = 's100'
R0 = 0
R1 = 33024
WL = 66048
SCR = WL + 8*4*1056
SCR_B = SCR + 36*256
TABL = SCR_B + 8192
CNT = TABL + 16384
LDS_TOTAL = CNT + 64
WS_U1 = 0
WS_U2 = 8 << 20
WS_FLAG = 32 << 20
WS_TS = 72 << 20
WS_SIZE = 80 << 20

class V: pass
_n = [0]
def alloc(n, align=1):
    b = (_n[0] + align - 1)//align*align
    _n[0] = b + n
    return b
V.tid = alloc(1); V.lane = alloc(1)
for nm in 'g n Xoff Est X0w X0r0 X0r1 X1w X1r X2w X2r WP WM l16 dummy dummy2'.split(): setattr(V, nm, alloc(1))
V.Ooff, V.X3w0, V.X3w1, V.X3r = V.Xoff, V.X0w, V.X0r0, V.X0r1
V.T = alloc(10, 1)
V.EL = alloc(4); V.Eld = V.EL+3; V.Eld0 = V.EL+3
V.O = alloc(16, 4)
V.DA = alloc(32, 4)
V.DB = alloc(32, 4)
V.L = V.DB
V.F16 = alloc(8, 4)
V.M2 = alloc(16, 4)
V.F32 = alloc(32, 4)
V.TW = alloc(32, 4)
V.W = alloc(32, 4)
V.B = alloc(12, 4)
V.Bp = alloc(8, 4)
V.WF = alloc(4)
NVGPR = _n[0]
assert NVGPR <= 256, NVGPR
def v(i): return 'v%d' % i
def vr(i, n): return 'v[%d:%d]' % (i, i+n-1)

SX, SWR, SWI, SOUT, SDBG, SWS = 's[4:7]', 's[8:11]', 's[12:15]', 's[16:19]', 's[20:23]', 's[24:27]'
sP, sT, sW, sSB, sCB, sK0 = 's30', 's31', 's32', 's33', 's34', 's35'
sKP, sKM = 's36', 's37'
sA, sB, sC, sD, sE, sF = 's40', 's41', 's42', 's43', 's44', 's45'
sEst, sEld, sCnt, sSpec = 's46', 's47', 's48', 's49'
sO = ['s52', 's53', 's54', 's55']
sRd, sRv, sInc, sWL = 's38', 's39', 's50', 's51'
ZT = 16
sDP, sDM, sZ, sZp, sCh = 's96', 's97', 's98', 's99', 's95'
sTS = 56

class Gen:
    def __init__(self, mode='one', **opt):
        self.mode = mode
        self.o = dict(ldx='', ldw='', st1='sc1', st2='sc1', sto='sc1', ld1='sc1', ld2='sc1', ts=False, stagger=True, pf=False, spf=False, touch='pre', fst='sc1', fld='sc1', slp='', fsh='', pbar=False, shear=True, prio=True, wA='postX1', wB='postX1', bdelay='4', optx=False, numa='', fl='', ib=False, wsoff='', tlb1=False, tlb2=False, ib2=False, g1=False, wearly=False, nb='6', pthr='2', pop='load_dword', pbase='0', r2=False, novr=False, ib3=False, pnop='15', gz=False, force='', skew=True, fstride=12)
        self.o.update(opt)
        self.a = Asm()
        self.lab = 0
        self.nts = 0
        self.tail = []

    def tstride(self): return 65536 if (self.o['numa'] != '' or self.o['ib'] or self.o['ib2']) else 32768
    def ubase(self, ex): return (ex << 24) if self.o['ib2'] else (ex << 20) if self.o['ib'] else (WS_U2 if ex else WS_U1)
    def eld(self, q, ex=0): return v(V.T+2+q) if (self.o['ib2'] and ex == 0) else v(V.EL+q) if self.o['ib'] else v(V.Eld)
    def est(self): return sZp if self.o['ib2'] else sEst
    def label(self, p='L'):
        self.lab += 1
        return '%s_%d' % (p, self.lab)

    def stamp(self):
        if 'da' in self.o:
            self.sid = getattr(self, 'sid', -1) + 1
            self.mark('s%d' % self.sid); return
        if not self.o['ts'] or self.o.get('fine') or self.o.get('clk'): return
        self.a('s_memrealtime s[%d:%d]' % (sTS+2*self.nts, sTS+2*self.nts+1))
        self.nts += 1

    def clk(self):
        if not self.o.get('clk'): return
        for op in ('s_memrealtime', 's_memtime'):
            self.a('%s s[%d:%d]' % (op, sTS+2*self.nts, sTS+2*self.nts+1)); self.nts += 1
        self.a('s_waitcnt lgkmcnt(0)')
    def mark(self, nm):
        if nm in ('w1', 'g1a', 'x1', 'x2', 'w3a', 'end'): self.clk()
        for key, reg in (('da', 58), ('db', 60)):
            if self.o.get(key) == nm: self.a('%s s[%d:%d]' % ('s_memtime' if 'cyc' in self.o else 's_memrealtime', reg, reg+1))
    def fstamp(self):
        if not self.o.get('fine'): return
        self.a('s_memtime s[%d:%d]' % (sTS+2*self.nts, sTS+2*self.nts+1))
        self.nts += 1

    def dump_stamps(self, slot0=0):
        if not self.o['ts']: return
        a = self.a
        a('s_waitcnt lgkmcnt(0)')
        a('s_lshl_b32 %s, s2, 3' % sA); a('s_add_u32 %s, %s, %s' % (sA, sA, sW)); a('s_lshl_b32 %s, %s, 7' % (sA, sA))
        a('s_add_u32 %s, %s, 0x%x' % (sA, sA, WS_TS + slot0*4))
        a('s_mov_b64 exec, 1')
        a('v_mov_b32 %s, 0' % v(V.T+1))
        for i in range(self.nts):
            a('v_mov_b32 %s, s%d' % (v(V.T), sTS+2*i))
            a('buffer_store_dword %s, %s, %s, %s offen offset:%d' % (v(V.T), v(V.T+1), SWS, sA, 4*i))
            a('s_nop 1')
        a('s_mov_b64 exec, -1')
        self.nts = 0

    def prologue(self, end):
        a = self.a
        a('s_cmp_ge_u32 s2, 0x100')
        a('s_cbranch_scc1 %s' % end)
        self.stamp()
        a('s_bfe_u32 %s, s2, 0x10003' % sP)
        a('s_mul_i32 s3, %s, 24' % sP)
        a('s_add_u32 s28, s0, s3')
        a('s_addc_u32 s29, s1, 0')
        a('s_load_dwordx2 s[4:5], s[28:29], 0x0')
        a('s_load_dwordx2 s[8:9], s[28:29], 0x8')
        a('s_load_dwordx2 s[12:13], s[28:29], 0x10')
        a('s_load_dwordx2 s[16:17], s[0:1], 0x30')
        a('s_load_dwordx2 s[20:21], s[0:1], 0x38')
        a('s_load_dwordx2 s[24:25], s[0:1], 0x40')
        a('v_lshrrev_b32 %s, 6, v0' % v(V.T))
        a('v_and_b32 %s, 63, v0' % v(V.lane))
        a('v_readfirstlane_b32 %s, %s' % (sW, v(V.T)))
        a('s_and_b32 %s, s2, 7' % sA)
        a('s_xor_b32 %s, %s, 2' % (sA, sA))
        a('s_lshl_b32 %s, %s, 4' % (sT, sA))
        a('s_lshr_b32 %s, s2, 4' % sB)
        a('s_or_b32 %s, %s, %s' % (sT, sT, sB))
        a('s_lshl_b32 %s, %s, 1' % (sCB, sA))
        a('s_bfe_u32 %s, %s, 0x10001' % (sC, sB))
        a('s_or_b32 %s, %s, %s' % (sCB, sCB, sC))
        a('s_bfe_u32 %s, %s, 0x20002' % (sSB, sB))
        a('s_lshl_b32 %s, %s, 1' % (sSB, sSB))
        a('s_and_b32 %s, %s, 1' % (sC, sB))
        a('s_or_b32 %s, %s, %s' % (sSB, sSB, sC))
        a('s_mov_b32 s6, 0x400000'); a('s_mov_b32 s7, 0x20000')
        a('s_mov_b32 s10, 2101248'); a('s_mov_b32 s11, 0x20000')
        a('s_mov_b32 s14, 2101248'); a('s_mov_b32 s15, 0x20000')
        a('s_mov_b32 s18, 0x800000'); a('s_mov_b32 s19, 0x20000')
        a('s_mov_b32 s22, 256'); a('s_mov_b32 s23, 0x20000')
        a('s_mov_b32 s26, 0x%x' % WS_SIZE); a('s_mov_b32 s27, 0x20000')
        a('v_lshrrev_b32 %s, 4, %s' % (v(V.g), v(V.lane)))
        a('v_and_b32 %s, 15, %s' % (v(V.n), v(V.lane)))
        a('v_lshlrev_b32 %s, 4, %s' % (v(V.l16), v(V.lane)))

    def prologue1(self, end):
        a = self.a; T = V.T
        a('s_cmp_ge_u32 s2, 0x100')
        a('s_cbranch_scc1 %s' % end)
        if 'da' in self.o: a('s_memrealtime s[56:57]'); self.mark('start')
        a('s_bfe_u32 %s, s2, 0x%x' % (sP, 0x10002 if self.o['optx'] else 0x10003))
        a('s_mul_i32 s3, %s, 24' % sP)
        a('s_load_dwordx2 s[4:5], s[0:1], s3')
        a('s_load_dwordx2 s[24:25], s[0:1], 0x40')
        a('s_load_dwordx2 s[8:9], s[0:1], s3 offset:8')
        a('s_load_dwordx2 s[12:13], s[0:1], s3 offset:16')
        a('s_load_dwordx2 s[16:17], s[0:1], 0x30')
        a('s_load_dwordx2 s[20:21], s[0:1], 0x38')
        self.stamp()
        a('v_lshrrev_b32 %s, 6, v0' % v(T))
        a('v_and_b32 %s, 63, v0' % v(V.lane))
        a('v_readfirstlane_b32 %s, %s' % (sW, v(T)))
        if self.o['optx']:
            a('s_and_b32 %s, s2, 3' % sA)
            a('s_bfe_u32 %s, s2, 0x10003' % sB)
            a('s_lshl1_add_u32 %s, %s, %s' % (sA, sA, sB))
        else: a('s_and_b32 %s, s2, 7' % sA)
        a('s_lshr_b32 %s, s2, 4' % sB)
        a('s_lshl4_add_u32 %s, %s, %s' % (sT, sA, sB))
        a('s_bfe_u32 %s, %s, 0x10001' % (sC, sB))
        a('s_lshl1_add_u32 %s, %s, %s' % (sCB, sA, sC))
        a('s_lshr_b32 %s, %s, 2' % (sSB, sB))
        a('s_and_b32 %s, %s, 1' % (sC, sB))
        a('s_lshl1_add_u32 %s, %s, %s' % (sSB, sSB, sC))
        a('s_mov_b32 s6, 0x400000'); a('s_mov_b32 s7, 0x20000')
        a('v_lshrrev_b32 %s, 4, %s' % (v(V.g), v(V.lane)))
        a('v_lshlrev_b32 %s, 4, %s' % (v(V.l16), v(V.lane)))
        a('v_and_b32 %s, 8, v0' % v(T))
        a('v_lshlrev_b32 %s, 11, %s' % (v(T), v(T)))
        a('v_lshl_add_u32 %s, %s, 20, %s' % (v(T), v(V.g), v(T)))
        a('v_and_b32 %s, 0x70, %s' % (v(T+1), v(V.l16)))
        a('v_add_u32 %s, %s, %s' % (v(V.Xoff), v(T), v(T+1)))
        a('s_lshl4_add_u32 %s, %s, %s' % (sA, sW, sSB))
        a('s_lshl4_add_u32 %s, %s, %s' % (sA, sA, sCB))
        a('s_lshl_b32 %s, %s, 7' % (sO[0], sA))
        for r in range(1, 4): a('s_add_u32 %s, %s, 0x%x' % (sO[r], sO[0], r*262144))
        a('v_and_b32 %s, 15, %s' % (v(V.n), v(V.lane)))
        a('s_mov_b32 s26, 0x%x' % WS_SIZE); a('s_mov_b32 s27, 0x20000')
        a('s_lshl_b32 %s, %s, 7' % (sRd, sP))
    def srds(self):
        a = self.a
        a('s_mov_b32 s10, 2101248'); a('s_mov_b32 s11, 0x20000')
        a('s_mov_b32 s14, 2101248'); a('s_mov_b32 s15, 0x20000')
        a('s_mov_b32 s18, 0x800000'); a('s_mov_b32 s19, 0x20000')
        a('s_mov_b32 s22, 256'); a('s_mov_b32 s23, 0x20000')

    def probe_issue(self):
        a = self.a
        a('s_lshl3_add_u32 %s, %s, %s' % (sEst, sP, sW)); a('s_lshl_b32 %s, %s, 21' % (sEst, sEst))
        a('s_and_b32 %s, %s, 0x60' % (sA, sT)); a('s_add_u32 %s, %s, %s' % (sA, sA, sT)); a('s_lshl_b32 %s, %s, 8' % (sA, sA))
        a('s_add_u32 %s, %s, %s' % (sA, sA, sEst))
        for i in range(8): a('s_mov_b32 s%d, 0x%x' % (84+i, SENT))
        for k, side in ((0, 0), (0, 1), (1, 1), (1, 0), (2, 1), (2, 0), (3, 0), (3, 1)):
            a('s_load_dword s%d, s[24:25], %s offset:0x%x glc' % (84+4*side+k, sA, k*65536+side*8192))
    def probe_eval(self):
        a = self.a
        a('s_mov_b32 %s, 0' % sA); a('s_mov_b32 %s, 0' % sB)
        a('s_waitcnt lgkmcnt(4)')
        for k in range(4):
            a('s_cmp_lg_u32 s%d, 0x%x' % (84+k, SENT)); a('s_addc_u32 %s, %s, 0' % (sA, sA))
            a('s_cmp_lg_u32 s%d, 0x%x' % (88+k, SENT)); a('s_addc_u32 %s, %s, 0' % (sB, sB))
        a('s_cmp_gt_u32 %s, %s' % (sB, sA))
        a('s_cselect_b32 %s, 1, 0' % sCh)
        if self.o['force'] != '':
            a('s_and_b32 %s, %s, 1' % (sC, sW)); a('s_xor_b32 %s, %s, %s' % (sC, sC, sP)); a('s_xor_b32 %s, %s, %s' % (sCh, sC, self.o['force']))
        if self.o['ts']:
            a('s_lshl4_add_u32 s%d, %s, %s' % (sTS+24, sA, sB))
    def ex_addrs_ib(self):
        a = self.a; T = V.T
        a('s_lshl_b32 %s, %s, 4' % (sB, sW)); a('s_xor_b32 %s, %s, %s' % (sB, sB, sT)); a('s_lshl_b32 %s, %s, 8' % (sB, sB))
        a('v_lshlrev_b32 %s, 4, %s' % (v(T), v(V.n)))
        a('v_lshl_add_u32 %s, %s, 10, %s' % (v(T), v(V.g), v(T)))
        a('v_xor_b32 %s, %s, %s' % (v(T), sB, v(T)))
        a('v_and_b32 %s, 0x6000, %s' % (v(T+1), v(T)))
        a('v_add_u32 %s, %s, %s' % (v(T), v(T), v(T+1)))
        a('v_lshl_add_u32 %s, %s, 18, %s' % (v(V.Est), v(V.g), v(T)))
        a('v_and_b32 %s, 0xdcff, %s' % (v(V.Eld), v(T)))
        a('s_lshl_b32 %s, %s, 13' % (sA, sCh)); a('s_add_u32 %s, %s, %s' % (sEst, sEst, sA))
        a('s_lshr_b32 %s, %s, 4' % (sA, sT)); a('s_lshl3_add_u32 %s, %s, %s' % (sA, sP, sA)); a('s_lshl_b32 %s, %s, 21' % (sA, sA))
        a('s_and_b32 %s, %s, 15' % (sEld, sT)); a('s_lshl_b32 %s, %s, 16' % (sEld, sEld)); a('s_add_u32 %s, %s, %s' % (sEld, sEld, sA))
    def ld_addrs_ib(self):
        a = self.a; T = V.T
        a('v_lshrrev_b32 %s, %s, %s' % (v(T), v(V.dummy), sRv))
        for q in range(4):
            a('v_bfe_u32 %s, %s, %d, 1' % (v(T+1), v(T), q))
            a('v_lshl_add_u32 %s, %s, 13, %s' % (v(V.EL+q), v(T+1), v(V.Eld)))

    def ex_addrs(self):
        a = self.a
        if self.o['skew']:
            T = V.T
            a('s_lshl_b32 %s, %s, 4' % (sB, sW)); a('s_xor_b32 %s, %s, %s' % (sB, sB, sT)); a('s_lshl_b32 %s, %s, 8' % (sB, sB))
            a('v_lshlrev_b32 %s, 4, %s' % (v(T), v(V.n)))
            a('v_lshl_add_u32 %s, %s, 10, %s' % (v(T), v(V.g), v(T)))
            a('v_xor_b32 %s, %s, %s' % (v(T), sB, v(T)))
            if self.o['numa'] != '':
                pol = int(self.o['numa'][1]); mode = self.o['numa'][0]
                if mode == 'p':
                    a('v_and_b32 %s, 0x6000, %s' % (v(T+1), v(T)))
                    a('v_add_u32 %s, %s, %s' % (v(T), v(T), v(T+1)))
                    a('v_lshl_add_u32 %s, %s, 18, %s' % (v(V.Est), v(V.g), v(T)))
                    a('v_and_b32 %s, 0xdcff, %s' % (v(V.Eld), v(T)))
                    a('s_lshr_b32 %s, %s, 1' % (sA, sW)); a('s_lshr_b32 %s, %s, 6' % (sD, sT)); a('s_xor_b32 %s, %s, %s' % (sA, sA, sD))
                    a('s_lshr_b32 %s, %s, 5' % (sC, sT)); a('s_lshr_b32 %s, %s, 2' % (sD, sW)); a('s_xor_b32 %s, %s, %s' % (sC, sC, sD))
                    if pol: a('s_xor_b32 %s, %s, 1' % (sA, sA)); a('s_xor_b32 %s, %s, 1' % (sC, sC))
                    a('s_and_b32 %s, %s, 1' % (sA, sA)); a('s_and_b32 %s, %s, 1' % (sC, sC))
                    a('s_lshl_b32 %s, %s, 13' % (sA, sA)); a('s_lshl_b32 %s, %s, 13' % (sC, sC))
                    a('s_lshl_b32 %s, %s, 25' % (sD, sP)); a('s_add_u32 %s, %s, %s' % (sA, sA, sD)); a('s_add_u32 %s, %s, %s' % (sC, sC, sD))
                    a('s_lshl_b32 %s, %s, 20' % (sEst, sW)); a('s_add_u32 %s, %s, %s' % (sEst, sEst, sA))
                    a('s_lshl_b32 %s, %s, 16' % (sEld, sT)); a('s_add_u32 %s, %s, %s' % (sEld, sEld, sC))
                    return
                a('v_and_b32 %s, 0x6000, %s' % (v(T+1), v(T)))
                a('v_add_u32 %s, %s, %s' % (v(T), v(T), v(T+1)))
                a('v_lshl_add_u32 %s, %s, 18, %s' % (v(V.Est), v(V.g), v(T)))
                a('v_and_b32 %s, 0xdcff, %s' % (v(V.Eld), v(T)))
                if mode == 'x':
                    a('s_bfe_u32 %s, %s, 0x10001' % (sA, sW)); a('s_xor_b32 %s, %s, %s' % (sA, sA, sP))
                    a('s_bfe_u32 %s, %s, 0x10005' % (sC, sT)); a('s_xor_b32 %s, %s, %s' % (sC, sC, sP))
                    if pol: a('s_xor_b32 %s, %s, 1' % (sA, sA)); a('s_xor_b32 %s, %s, 1' % (sC, sC))
                    a('s_lshl_b32 %s, %s, 13' % (sA, sA)); a('s_lshl_b32 %s, %s, 13' % (sC, sC))
                    a('s_lshl_b32 %s, %s, 20' % (sEst, sW)); a('s_add_u32 %s, %s, %s' % (sEst, sEst, sA))
                    a('s_lshl_b32 %s, %s, 16' % (sEld, sT)); a('s_add_u32 %s, %s, %s' % (sEld, sEld, sC))
                else:
                    a('s_lshr_b32 %s, %s, 1' % (sA, sW)); a('s_lshr_b32 %s, %s, 2' % (sD, sW)); a('s_xor_b32 %s, %s, %s' % (sA, sA, sD))
                    a('s_lshr_b32 %s, %s, 5' % (sC, sT)); a('s_lshr_b32 %s, %s, 6' % (sD, sT)); a('s_xor_b32 %s, %s, %s' % (sC, sC, sD))
                    if pol: a('s_xor_b32 %s, %s, 1' % (sA, sA)); a('s_xor_b32 %s, %s, 1' % (sC, sC))
                    a('s_and_b32 %s, %s, 1' % (sA, sA)); a('s_and_b32 %s, %s, 1' % (sC, sC))
                    a('s_lshl_b32 %s, %s, 13' % (sA, sA)); a('s_lshl_b32 %s, %s, 13' % (sC, sC))
                    a('s_lshl_b32 %s, %s, 22' % (sD, sP)); a('s_add_u32 %s, %s, %s' % (sA, sA, sD)); a('s_add_u32 %s, %s, %s' % (sC, sC, sD))
                    a('s_and_b32 %s, %s, 3' % (sEst, sW)); a('s_lshl_b32 %s, %s, 20' % (sEst, sEst)); a('s_add_u32 %s, %s, %s' % (sEst, sEst, sA))
                    a('s_and_b32 %s, %s, 63' % (sEld, sT)); a('s_lshl_b32 %s, %s, 16' % (sEld, sEld)); a('s_add_u32 %s, %s, %s' % (sEld, sEld, sC))
                return
            a('v_lshl_add_u32 %s, %s, 17, %s' % (v(V.Est), v(V.g), v(T)))
            a('v_and_b32 %s, 0x7cff, %s' % (v(V.Eld), v(T)))
            a('s_lshl_b32 %s, %s, 22' % (sA, sP))
            a('s_lshl_b32 %s, %s, 19' % (sEst, sW)); a('s_add_u32 %s, %s, %s' % (sEst, sEst, sA))
            a('s_lshl_b32 %s, %s, 15' % (sEld, sT)); a('s_add_u32 %s, %s, %s' % (sEld, sEld, sA))
            return
        a('v_lshlrev_b32 %s, 4, %s' % (v(V.T), v(V.n)))
        a('v_lshl_add_u32 %s, %s, 17, %s' % (v(V.Est), v(V.g), v(V.T)))
        a('v_lshl_add_u32 %s, %s, 10, %s' % (v(V.Eld), v(V.g), v(V.T)))
        a('s_lshl_b32 %s, %s, 22' % (sA, sP))
        a('s_lshl_b32 %s, %s, 19' % (sEst, sW)); a('s_add_u32 %s, %s, %s' % (sEst, sEst, sA))
        a('s_lshl_b32 %s, %s, 8' % (sB, sT)); a('s_add_u32 %s, %s, %s' % (sEst, sEst, sB))
        a('s_lshl_b32 %s, %s, 15' % (sEld, sT)); a('s_add_u32 %s, %s, %s' % (sEld, sEld, sA))
        a('s_lshl_b32 %s, %s, 12' % (sB, sW)); a('s_add_u32 %s, %s, %s' % (sEld, sEld, sB))

    def trig(self, x, re, im, conj_re=None, conj_im=None):
        a = self.a; c, s = V.T+8, V.T+9
        a('v_cos_f32 %s, %s' % (v(c), v(x)))
        a('v_sin_f32 %s, %s' % (v(s), v(x)))
        a('v_cvt_pk_bf16_f32 %s, %s, %s' % (v(re), v(c), v(s)))
        a('v_cvt_pk_bf16_f32 %s, -%s, %s' % (v(im), v(s), v(c)))
        if conj_re is not None:
            a('v_cvt_pk_bf16_f32 %s, %s, -%s' % (v(conj_re), v(c), v(s)))
            a('v_cvt_pk_bf16_f32 %s, %s, %s' % (v(conj_im), v(s), v(c)))

    def gen_F16(self):
        a = self.a; T = V.T
        a('v_cvt_f32_u32 %s, %s' % (v(T), v(V.n)))
        a('v_mul_f32 %s, %s, %s' % (v(T), lit(1/16), v(T)))
        a('v_cvt_f32_u32 %s, %s' % (v(T+1), v(V.g)))
        a('v_mul_f32 %s, 4.0, %s' % (v(T+1), v(T+1)))
        a('v_mul_f32 %s, %s, %s' % (v(T+2), v(T), v(T+1)))
        for r in range(4):
            self.trig(T+2, V.F16+r, V.F16+4+r)
            if r < 3: a('v_add_f32 %s, %s, %s' % (v(T+2), v(T+2), v(T)))

    def gen_M2(self):
        a = self.a; T = V.T
        a('v_cvt_f32_u32 %s, %s' % (v(T+1), v(V.g)))
        a('v_mul_f32 %s, 4.0, %s' % (v(T+1), v(T+1)))
        def normal():
            a('v_lshl_add_u32 %s, %s, 4, %s' % (v(T), v(V.n), sW))
            a('v_cvt_f32_u32 %s, %s' % (v(T), v(T)))
            a('v_mul_f32 %s, %s, %s' % (v(T), lit(1/256), v(T)))
            a('v_mul_f32 %s, %s, %s' % (v(T+2), v(T), v(T+1)))
            for r in range(4):
                self.trig(T+2, V.M2+r, V.M2+4+r, V.M2+8+r, V.M2+12+r)
                if r < 3: a('v_add_f32 %s, %s, %s' % (v(T+2), v(T+2), v(T)))
        def w0():
            a('v_lshrrev_b32 %s, 1, %s' % (v(T), v(V.n)))
            a('v_cvt_f32_u32 %s, %s' % (v(T), v(T)))
            a('v_lshlrev_b32 %s, 31, %s' % (v(T+3), v(V.n)))
            a('v_add_f32 %s, 0.5, %s' % (v(T+4), v(T)))
            a('v_xor_b32 %s, %s, %s' % (v(T+3), lit(1/16), v(T+3)))
            a('v_mul_f32 %s, %s, %s' % (v(T), v(T), v(T+3)))
            a('v_mul_f32 %s, %s, %s' % (v(T+4), v(T+4), v(T+3)))
            a('v_cmp_ne_u32 vcc, 1, %s' % v(V.n))
            a('v_cndmask_b32 %s, 0.5, %s, vcc' % (v(T), v(T)))
            for ts in range(2):
                d = T+4*ts
                a('v_mul_f32 %s, %s, %s' % (v(T+2), v(d), v(T+1)))
                for r in range(4):
                    self.trig(T+2, V.M2+8*ts+r, V.M2+8*ts+4+r)
                    if r < 3: a('v_add_f32 %s, %s, %s' % (v(T+2), v(T+2), v(d)))
        self.ifelse(sW, 0, w0, normal)

    def gen_M3(self):
        a = self.a; T = V.T
        a('v_cvt_f32_u32 %s, %s' % (v(T), v(V.n)))
        a('v_mul_f32 %s, %s, %s' % (v(T+1), lit(1/256), v(T)))
        a('v_mul_f32 %s, %s, %s' % (v(T), lit(1/16), v(T)))
        def normal():
            a('v_lshl_add_u32 %s, %s, 6, %s' % (v(T+2), v(V.g), sW))
            a('v_cvt_f32_u32 %s, %s' % (v(T+2), v(T+2)))
            a('v_mul_f32 %s, %s, %s' % (v(T+2), v(T+2), v(T+1)))
            for r in range(4):
                self.trig(T+2, V.M2+r, V.M2+4+r, V.M2+8+r, V.M2+12+r)
                if r < 3: a('v_add_f32 %s, %s, %s' % (v(T+2), v(T+2), v(T)))
        def w0():
            for ts in range(2):
                a('v_lshlrev_b32 %s, 5, %s' % (v(T+2), v(V.g)))
                if ts: a('v_add_u32 %s, 8, %s' % (v(T+2), v(T+2)))
                a('v_cvt_f32_u32 %s, %s' % (v(T+2), v(T+2)))
                a('v_mul_f32 %s, %s, %s' % (v(T+2), v(T+2), v(T+1)))
                for eb in range(2):
                    b = V.M2+8*ts
                    self.trig(T+2, b+2*eb, b+4+2*eb, b+2*eb+1, b+4+2*eb+1)
                    if eb == 0: a('v_add_f32 %s, %s, %s' % (v(T+2), v(T+2), v(T)))
            a('s_mov_b64 exec, 0xffff')
            a('v_lshlrev_b32 %s, 15, %s' % (v(T+2), v(V.n)))
            a('v_and_b32 %s, 0x8000, %s' % (v(T+2), v(T+2)))
            a('v_or_b32 %s, 0x3f80, %s' % (v(V.M2+1), v(T+2)))
            a('v_lshlrev_b32 %s, 16, %s' % (v(V.M2+5), v(V.M2+1)))
            a('s_mov_b64 exec, -1')
        self.ifelse(sW, 0, w0, normal)

    def sigma_lane(self, dst):
        a = self.a; T = V.T
        a('v_and_b32 %s, 17, %s' % (v(dst), v(V.lane)))
        a('v_bfe_u32 %s, %s, 2, 2' % (v(T+7), v(V.lane)))
        a('v_lshl_add_u32 %s, %s, 1, %s' % (v(dst), v(T+7), v(dst)))
        a('v_bfe_u32 %s, %s, 1, 1' % (v(T+7), v(V.lane)))
        a('v_lshl_add_u32 %s, %s, 3, %s' % (v(dst), v(T+7), v(dst)))

    def gen_F32TW(self):
        a = self.a; T = V.T
        self.sigma_lane(T)
        a('v_cvt_f32_u32 %s, %s' % (v(T), v(T)))
        a('v_mul_f32 %s, %s, %s' % (v(T), lit(1/1024), v(T)))
        a('v_lshrrev_b32 %s, 5, %s' % (v(T+1), v(V.lane)))
        a('v_cvt_f32_u32 %s, %s' % (v(T+1), v(T+1)))
        a('v_add_f32 %s, %s, %s' % (v(T+1), v(T+1), v(T+1)))
        a('v_mul_f32 %s, %s, %s' % (v(T+1), v(T+1), v(T)))
        for rho in range(16):
            k = sigma(8*(rho >> 2) + (rho & 3))
            a('v_fmamk_f32 %s, %s, %s, %s' % (v(T+2), v(T), lit(float(k)), v(T+1)))
            a('v_mul_f32 %s, %s, %s' % (v(T+3), lit(32.0), v(T+2)))
            a('v_cos_f32 %s, %s' % (v(V.TW+rho), v(T+2)))
            a('v_sin_f32 %s, %s' % (v(V.TW+16+rho), v(T+2)))
            self.trig(T+3, V.F32+rho, V.F32+16+rho)

    def coop_gen(self):
        a = self.a; T = V.T; X = V.DA
        self.sigma_lane(T)
        a('v_cvt_f32_u32 %s, %s' % (v(T), v(T)))
        a('v_mul_f32 %s, %s, %s' % (v(T), lit(1/1024), v(T)))
        a('s_and_b32 %s, %s, 1' % (sA, sW)); a('s_lshl_b32 %s, %s, 3' % (sA, sA))
        a('s_and_b32 %s, %s, 2' % (sB, sW)); a('s_lshl_b32 %s, %s, 1' % (sB, sB)); a('s_add_u32 %s, %s, %s' % (sA, sA, sB))
        a('s_and_b32 %s, %s, 4' % (sB, sW)); a('s_lshl_b32 %s, %s, 2' % (sB, sB)); a('s_add_u32 %s, %s, %s' % (sA, sA, sB))
        a('v_lshrrev_b32 %s, 5, %s' % (v(T+1), v(V.lane)))
        a('v_lshl_add_u32 %s, %s, 1, %s' % (v(T+1), v(T+1), sA))
        a('v_cvt_f32_u32 %s, %s' % (v(T+1), v(T+1)))
        a('v_mul_f32 %s, %s, %s' % (v(T+2), v(T+1), v(T)))
        for e in range(2):
            a('v_mul_f32 %s, %s, %s' % (v(T+3), lit(32.0), v(T+2)))
            if self.o['shear']:
                a('v_mul_f32 %s, 0.5, %s' % (v(T+4), v(T+2)))
                a('v_cos_f32 %s, %s' % (v(T+5), v(T+4)))
                a('v_sin_f32 %s, %s' % (v(T+6), v(T+4)))
                a('v_rcp_f32 %s, %s' % (v(T+5), v(T+5)))
                a('v_mul_f32 %s, %s, %s' % (v(X+4+e), v(T+6), v(T+5)))
                a('v_fma_f32 %s, %s, %s, 1.0' % (v(T+5), v(X+4+e), v(X+4+e)))
                a('v_rcp_f32 %s, %s' % (v(T+6), v(T+5)))
                a('v_fma_f32 %s, -%s, %s, 1.0' % (v(T+5), v(T+5), v(T+6)))
                a('v_fmac_f32 %s, %s, %s' % (v(T+6), v(T+5), v(T+6)))
                a('v_mul_f32 %s, -2.0, %s' % (v(T+6), v(T+6)))
                a('v_mul_f32 %s, %s, %s' % (v(X+6+e), v(T+6), v(X+4+e)))
            else:
                a('v_cos_f32 %s, %s' % (v(X+4+e), v(T+2)))
                a('v_sin_f32 %s, %s' % (v(X+6+e), v(T+2)))
            self.trig(T+3, X+e, X+2+e)
            if e == 0: a('v_add_f32 %s, %s, %s' % (v(T+2), v(T+2), v(T)))
        a('s_lshr_b32 %s, %s, 1' % (sA, sW)); a('s_lshl_b32 %s, %s, 10' % (sA, sA))
        a('s_and_b32 %s, %s, 1' % (sB, sW)); a('s_lshl_b32 %s, %s, 3' % (sB, sB)); a('s_add_u32 %s, %s, %s' % (sA, sA, sB))
        a('s_add_u32 %s, %s, %d' % (sA, sA, TABL))
        a('v_add_u32 %s, %s, %s' % (v(T), sA, v(V.l16)))
        for k in range(4):
            a('ds_write_b64 %s, %s offset:%d' % (v(T), vr(X+2*k, 2), 4096*k))
    def coop_init(self):
        a = self.a; T = V.T
        a('v_mov_b32 %s, %d' % (v(V.dummy2), CNT)); a('v_mov_b32 %s, 0' % v(T))
        a('ds_write_b32 %s, %s' % (v(V.dummy2), v(T)))
    def coop_post(self):
        a = self.a; T = V.T
        a('v_mov_b32 %s, 1' % v(T+1))
        a('ds_add_u32 %s, %s' % (v(V.dummy2), v(T+1)))
    def coop_wait(self):
        a = self.a; T = V.T; lp, ok = self.label('cw'), self.label('cwok')
        a('s_mov_b32 %s, 0' % sCnt)
        a(lp+':')
        a('ds_read_b32 %s, %s' % (v(T), v(V.dummy2)))
        a('s_add_u32 %s, %s, 1' % (sCnt, sCnt))
        a('s_cmp_gt_u32 %s, 0x%x' % (sCnt, SPIN_MAX*8))
        a('s_waitcnt lgkmcnt(0)')
        a('s_cbranch_scc1 %s' % ok)
        a('v_cmp_gt_u32 vcc, 0x200, %s' % v(T))
        a('s_cbranch_vccnz %s' % lp)
        a(ok+':')
    def coop_read(self):
        a = self.a; T = V.T
        assert V.TW == V.F32+32
        a('v_add_u32 %s, %d, %s' % (v(T), TABL, v(V.l16)))
        for k in range(16):
            a('ds_read_b128 %s, %s offset:%d' % (vr(V.F32+4*k, 4), v(T), 1024*k))

    def calc_k0(self):
        a = self.a
        a('s_lshr_b32 %s, %s, 4' % (sA, sT))
        a('s_and_b32 %s, %s, 15' % (sB, sT))
        a('s_lshl_b32 %s, %s, 4' % (sK0, sB))
        a('s_add_u32 %s, %s, %s' % (sK0, sK0, sA))
        a('s_lshr_b32 %s, %s, 2' % (sC, sB)); a('s_lshl_b32 %s, %s, 5' % (sC, sC))
        a('s_and_b32 %s, %s, 1' % (sD, sB)); a('s_lshl_b32 %s, %s, 4' % (sD, sD)); a('s_add_u32 %s, %s, %s' % (sC, sC, sD))
        a('s_and_b32 %s, %s, 2' % (sD, sB)); a('s_lshl_b32 %s, %s, 2' % (sD, sD)); a('s_add_u32 %s, %s, %s' % (sC, sC, sD))
        a('s_cmp_eq_u32 %s, 0' % sA)
        a('s_cselect_b32 %s, %s, %s' % (sK0, sC, sK0))
        a('s_cmp_eq_u32 %s, 0' % sT)
        a('s_cselect_b32 %s, 7, 8' % sA)
        a('s_lshl_b32 %s, %s, %s' % (sKP, sW, sA))
        a('s_add_u32 %s, %s, %s' % (sKP, sKP, sK0))
        a('s_sub_u32 %s, 0x800, %s' % (sKM, sKP))
        a('s_cmp_eq_u32 %s, 0' % sKP)
        a('s_cselect_b32 %s, 0x400, %s' % (sKM, sKM))
        a('s_cselect_b32 %s, 1, 0' % sSpec)
        a('s_mul_i32 %s, %s, 1026' % (sKP, sKP))
        a('s_mul_i32 %s, %s, 1026' % (sKM, sKM))

    def wq(self, rho): return (rho & 1) + 8*((rho >> 1) & 1) + 4*((rho >> 2) & 1)
    def w_prep(self):
        a = self.a
        a('s_mul_i32 %s, %s, 4224' % (sWL, sW))
        a('s_add_u32 %s, %s, %d' % (sWL, sWL, WL))
        a('s_and_b32 %s, %s, 2' % (sA, sKP))
        a('s_add_u32 %s, %s, %s' % (sDP, sKP, sA)); a('s_add_u32 %s, %s, %s' % (sDM, sKM, sA))
    def w_dma1(self, i):
        a = self.a
        srd, so = [(SWR, sDP), (SWI, sDP), (SWR, sDM), (SWI, sDM)][i]
        a('s_add_u32 m0, %s, %d' % (sWL, 1056*i))
        a('buffer_load_dwordx4 %s, %s, %s offen %s lds' % (v(V.l16), srd, so, self.o['ldw']))
    def w_dma(self):
        for i in range(4): self.w_dma1(i)
    def w_sload(self):
        a = self.a; T = V.T
        a('s_mov_b64 exec, 15')
        a('v_mov_b32 %s, %s' % (v(T), sKP)); a('v_mov_b32 %s, %s' % (v(T+1), sKM))
        a('s_mov_b64 vcc, 10')
        a('v_cndmask_b32 %s, %s, %s, vcc' % (v(T), v(T), v(T+1)))
        a('v_and_b32 %s, 2, %s' % (v(T+1), v(V.lane)))
        a('v_lshl_add_u32 %s, %s, 9, %s' % (v(T), v(T+1), v(T)))
        a('buffer_load_short_d16_hi %s, %s, %s, 0 offen' % (v(V.WF), v(T), SWR))
        a('buffer_load_short_d16_hi %s, %s, %s, 0 offen' % (v(V.WF+1), v(T), SWI))
        a('s_mov_b64 exec, -1')
    def w_edge_rl(self):
        a = self.a
        for l in range(4):
            for im in range(2):
                a('v_readlane_b32 s%d, %s, %d' % (84+2*l+im, v(V.WF+im), l))
    def w_edge(self):
        a = self.a; T = V.T
        self.w_edge_rl()
        for i, (x, y, op) in enumerate(((84, 86, 'add'), (85, 87, 'sub'), (90, 88, 'add'), (91, 89, 'sub'))):
            a('v_mov_b32 %s, s%d' % (v(T), y))
            a('v_%s_f32 %s, s%d, %s' % (op, v(V.WF+i), x, v(T)))
            a('v_mul_f32 %s, 0.5, %s' % (v(V.WF+i), v(V.WF+i)))
        a('s_mov_b64 s[92:93], 1')
    def w_addr(self):
        a = self.a; T = V.T
        self.sigma_lane(T)
        a('v_lshrrev_b32 %s, 5, %s' % (v(T+1), v(V.lane)))
        a('v_lshlrev_b32 %s, 7, %s' % (v(T+1), v(T+1)))
        a('v_lshl_add_u32 %s, %s, 1, %s' % (v(T), v(T), v(T+1)))
        a('s_and_b32 %s, %s, 2' % (sD, sKP)); a('s_sub_u32 %s, %s, %s' % (sD, sWL, sD))
        a('v_add_u32 %s, %s, %s' % (v(V.WP), sD, v(T)))
        a('s_add_u32 %s, %s, %d' % (sD, sD, 1024-832))
        a('v_sub_u32 %s, %s, %s' % (v(V.WM), sD, v(T)))
    def w_read(self, rho, dst=None, swap=False):
        a = self.a; dst = V.W if dst is None else dst
        for im in range(2):
            if rho < 8: ad, off = V.WP, 64*self.wq(rho) + (2112 if swap else 0)
            else: ad, off = V.WM, 64*(13-self.wq(rho)) + (0 if swap else 2112)
            a('ds_read_u16_d16_hi %s, %s offset:%d' % (v(dst+16*im+rho), v(ad), off+1056*im))
    def w_fix(self, half):
        a = self.a
        for im in range(2):
            r = V.W+8*half+16*im
            a('v_cndmask_b32 %s, %s, %s, s[92:93]' % (v(r), v(r), v(V.WF+2*half+im)))
    def w_regs_early(self):
        a = self.a
        for rho in range(16): self.w_read(rho)
        a('s_waitcnt lgkmcnt(0)')
        self.w_fix(0); self.w_fix(1)
    def w_special(self):
        a = self.a; T = V.T
        l0, l1 = self.label('Wspec'), self.label('Wend')
        a('s_cmp_eq_u32 %s, 1' % sSpec)
        a('s_cbranch_scc1 %s' % l0)
        a(l1+':')
        def tail():
            X = V.DA
            a(l0+':')
            for rho in range(16): self.w_read(rho)
            for rho in range(16): self.w_read(rho, X, True)
            a('s_waitcnt lgkmcnt(0) vmcnt(0)')
            self.w_edge_rl()
            a('s_mov_b64 exec, 1')
            for r in (V.W+16, V.W+24, X+16, X+24): a('v_mov_b32 %s, 0' % v(r))
            a('v_mov_b32 %s, s90' % v(V.W+8)); a('v_mov_b32 %s, s88' % v(X+8))
            a('s_mov_b64 exec, -1')
            for i in range(32):
                a('v_add_f32 %s, %s, %s' % (v(T+3), v(V.W+i), v(X+i)))
                if (i & 15) < 8: a('v_sub_f32 %s, %s, %s' % (v(X+i), v(V.W+i), v(X+i)))
                else: a('v_sub_f32 %s, %s, %s' % (v(X+i), v(X+i), v(V.W+i)))
                a('v_mov_b32 %s, %s' % (v(V.W+i), v(T+3)))
            a('v_add_u32 %s, %d, %s' % (v(T+1), SCR_B, v(V.l16)))
            for i in range(8):
                a('ds_write_b128 %s, %s offset:%d' % (v(T+1), vr(X+4*i, 4), 1024*i))
            a('s_waitcnt lgkmcnt(0)')
            a('s_branch %s' % l1)
        self.tail.append(tail)

    def B_dup(self):
        a = self.a
        a('v_mov_b32 %s, %s' % (v(V.B+4), v(V.B))); a('v_mov_b32 %s, %s' % (v(V.B+5), v(V.B+1)))
        a('v_mov_b32 %s, %s' % (v(V.B+10), v(V.B+6))); a('v_mov_b32 %s, %s' % (v(V.B+11), v(V.B+7)))
    def gen_B(self, early=False, dup=True):
        a = self.a; T = V.T
        l0, l1 = self.label('Bspec'), self.label('Bend')
        a('s_cmp_eq_u32 %s, 0' % sT)
        a('s_cbranch_scc1 %s' % (l1 if early else l0))
        c, s = T+8, T+9
        a('v_lshrrev_b32 %s, 1, %s' % (v(T), v(V.n)))
        a('v_lshl_add_u32 %s, %s, 8, %s' % (v(T+1), v(T), sK0))
        a('v_cvt_f32_u32 %s, %s' % (v(T+1), v(T+1)))
        a('v_mul_f32 %s, %s, %s' % (v(T+1), lit(1/2048), v(T+1)))
        a('v_cvt_f32_u32 %s, %s' % (v(T+2), v(V.g)))
        a('v_add_f32 %s, %s, %s' % (v(T+2), v(T+2), v(T+2)))
        a('v_and_b32 %s, 1, %s' % (v(T+3), v(V.n)))
        a('v_cvt_f32_u32 %s, %s' % (v(T+3), v(T+3)))
        a('v_mul_f32 %s, %s, %s' % (v(T+4), lit(0.25), v(T+3)))
        a('v_mul_f32 %s, %s, %s' % (v(T+5), v(T+1), v(T+2)))
        for sbb in range(2):
            for half in range(2):
                a('v_%s_f32 %s, %s, %s' % ('sub' if half else 'add', v(T+6), v(T+5), v(T+4)))
                a('v_cos_f32 %s, %s' % (v(c), v(T+6)))
                a('v_sin_f32 %s, %s' % (v(s), v(T+6)))
                a('v_mul_f32 %s, %s, %s' % (v(c), lit(S11), v(c)))
                a('v_mul_f32 %s, %s, %s' % (v(s), lit(S11), v(s)))
                ng = '-' if half else ''
                a('v_cvt_pk_bf16_f32 %s, %s, %s%s' % (v(V.B+2*sbb+half), v(c), ng, v(s)))
                a('v_cvt_pk_bf16_f32 %s, -%s, %s%s' % (v(V.B+6+2*sbb+half), v(s), ng, v(c)))
            if sbb == 0: a('v_add_f32 %s, %s, %s' % (v(T+5), v(T+5), v(T+1)))
        a('v_cvt_f32_u32 %s, %s' % (v(T), v(T)))
        a('v_lshlrev_b32 %s, 31, %s' % (v(T+4), v(V.n)))
        a('v_xor_b32 %s, %s, %s' % (v(T), v(T), v(T+4)))
        a('v_xor_b32 %s, %s, %s' % (v(T+4), lit(S11), v(T+4)))
        a('v_lshl_add_u32 %s, %s, 9, %s' % (v(T+1), v(V.g), sK0))
        a('v_cvt_f32_u32 %s, %s' % (v(T+1), v(T+1)))
        a('v_mul_f32 %s, %s, %s' % (v(T+1), lit(1/2048), v(T+1)))
        a('v_mul_f32 %s, %s, %s' % (v(T+5), v(T+1), v(T)))
        a('v_fmac_f32 %s, 0.5, %s' % (v(T+5), v(T+3)))
        for ii in range(2):
            a('v_cos_f32 %s, %s' % (v(c), v(T+5)))
            a('v_sin_f32 %s, %s' % (v(s), v(T+5)))
            a('v_mul_f32 %s, %s, %s' % (v(T+6), v(T+4), v(c)))
            a('v_mul_f32 %s, %s, %s' % (v(T+7), v(T+4), v(s)))
            a('v_mul_f32 %s, %s, %s' % (v(c), lit(S11), v(c)))
            a('v_mul_f32 %s, %s, %s' % (v(s), lit(S11), v(s)))
            a('v_cvt_pk_bf16_f32 %s, %s, %s' % (v(V.Bp+2*ii), v(c), v(T+7)))
            a('v_cvt_pk_bf16_f32 %s, -%s, %s' % (v(V.Bp+4+2*ii), v(s), v(T+6)))
            a('v_cvt_pk_bf16_f32 %s, -%s, %s' % (v(V.Bp+2*ii+1), v(s), v(T+6)))
            a('v_cvt_pk_bf16_f32 %s, -%s, -%s' % (v(V.Bp+4+2*ii+1), v(c), v(T+7)))
            if ii == 0: a('v_fmac_f32 %s, %s, %s' % (v(T+5), lit(0.125), v(T)))
        a(l1+':')
        if dup: self.B_dup()
        def tail():
            a(l0+':')
            if not early: self.spec_load(); a('s_waitcnt vmcnt(0)')
            a('s_branch %s' % l1)
        if not early: self.tail.append(tail)
    def spec_load(self):
        a = self.a
        a('s_getpc_b64 s[28:29]')
        a('s_add_u32 s28, s28, spec_tab@rel32@lo+4')
        a('s_addc_u32 s29, s29, spec_tab@rel32@hi+12')
        a('global_load_dwordx4 %s, %s, s[28:29]' % (vr(V.B, 4), v(V.l16)))
        a('global_load_dwordx4 %s, %s, s[28:29] offset:1024' % (vr(V.B+6, 4), v(V.l16)))
        a('global_load_dwordx4 %s, %s, s[28:29] offset:2048' % (vr(V.Bp, 4), v(V.l16)))
        a('global_load_dwordx4 %s, %s, s[28:29] offset:3072' % (vr(V.Bp+4, 4), v(V.l16)))
    def spec_early(self):
        a = self.a
        def g():
            self.srds()
            a('s_mov_b32 %s, 0' % sDP); a('s_mov_b32 %s, %d' % (sDM, 1024*1026)); a('s_mov_b32 %s, %d' % (sWL, WL))
            self.w_dma()
        def f():
            self.spec_load(); self.cond(sW, 0, g)
        self.cond(sT, 0, f)

    def spec_table(self):
        tab = np.zeros((4, 64, 4, 2))
        for lane in range(64):
            m, g = lane & 15, lane >> 4
            for r in range(4):
                t, c = m >> 1, m & 1; sb, hf = 2*g + (r >> 1), r & 1
                if hf == (t & 1):
                    th = 2*math.pi*sb*t/16
                    tab[0, lane, r, c] = (2*S11 if t else S11)*math.cos(th)
                    tab[1, lane, r, c] = -2*S11*math.sin(th) if t else S11*(-1.0)**sb
                sb, hf = m >> 1, m & 1; t, c = 2*g + (r >> 1), r & 1
                if hf == (t & 1):
                    th = 2*math.pi*sb*t/16
                    if t: cre, cim = 2*math.cos(th), -2*math.sin(th)
                    else: cre, cim = 1.0, (-1.0)**sb
                    pl = 2 + (1 - c)
                    tab[pl, lane, r, 0] = S11*cim
                    tab[pl, lane, r, 1] = S11*cre
        tab[abs(tab) < 1e-12] = 0
        out = ['.p2align 6', '.type spec_tab,@object', 'spec_tab:']
        w = [bf16bits(tab[p, l, r, 0]) | bf16bits(tab[p, l, r, 1]) << 16 for p in range(4) for l in range(64) for r in range(4)]
        for i in range(0, len(w), 8):
            out.append('.long ' + ','.join('0x%x' % x for x in w[i:i+8]))
        return '\n'.join(out)

    def p1_load(self):
        a = self.a; T = V.T
        a('v_bfe_u32 %s, %s, 3, 1' % (v(T), v(V.lane)))
        a('v_lshlrev_b32 %s, 14, %s' % (v(T), v(T)))
        a('v_lshl_add_u32 %s, %s, 20, %s' % (v(T), v(V.g), v(T)))
        a('v_and_b32 %s, 0x70, %s' % (v(T+1), v(V.l16)))
        a('v_add_u32 %s, %s, %s' % (v(V.Xoff), v(T), v(T+1)))
        a('s_lshl_b32 %s, %s, 15' % (sO[0], sW))
        a('s_lshl_b32 %s, %s, 11' % (sA, sSB)); a('s_add_u32 %s, %s, %s' % (sO[0], sO[0], sA))
        a('s_lshl_b32 %s, %s, 7' % (sA, sCB)); a('s_add_u32 %s, %s, %s' % (sO[0], sO[0], sA))
        for r in range(1, 4): a('s_add_u32 %s, %s, 0x%x' % (sO[r], sO[0], r*262144))
    def p1_issue(self):
        a = self.a
        for r in range(4):
            a('buffer_load_dwordx4 %s, %s, %s, %s offen %s' % (vr(V.L+4*r, 4), v(V.Xoff), SX, sO[r], self.o['ldx']))
    def p1_addrs(self):
        a = self.a; T = V.T
        a('v_xor_b32 %s, %s, %s' % (v(T), sSB, v(V.lane)))
        a('v_and_b32 %s, 1, %s' % (v(T), v(T)))
        a('v_mul_u32_u24 %s, 16448, %s' % (v(T), v(T)))
        a('v_lshl_add_u32 %s, %s, 12, %s' % (v(T), v(V.g), v(T)))
        a('v_and_b32 %s, 14, %s' % (v(T+1), v(V.lane)))
        a('v_lshl_add_u32 %s, %s, 3, %s' % (v(T), v(T+1), v(T)))
        a('s_lshr_b32 %s, %s, 2' % (sA, sW)); a('s_lshl_b32 %s, %s, 9' % (sA, sA))
        a('s_and_b32 %s, %s, 1' % (sB, sW)); a('s_lshl_b32 %s, %s, 8' % (sB, sB)); a('s_add_u32 %s, %s, %s' % (sA, sA, sB))
        a('s_and_b32 %s, %s, 2' % (sB, sW)); a('s_lshl_b32 %s, %s, 6' % (sB, sB)); a('s_add_u32 %s, %s, %s' % (sA, sA, sB))
        if R0: a('s_add_u32 %s, %s, %d' % (sA, sA, R0))
        a('v_add_u32 %s, %s, %s' % (v(V.X0w), sA, v(T)))
        self.tr_lane(T, 512, 128)
        a('s_lshl_b32 %s, %s, 10' % (sA, sW))
        a('s_sub_u32 %s, 0x4000, %s' % (sB, sA))
        a('s_cmp_eq_u32 %s, 0' % sW)
        a('s_cselect_b32 %s, 0x2000, %s' % (sB, sB))
        if R0: a('s_add_u32 %s, %s, %d' % (sA, sA, R0)); a('s_add_u32 %s, %s, %d' % (sB, sB, R0))
        a('v_add_u32 %s, %s, %s' % (v(V.X0r0), sA, v(T)))
        a('v_add_u32 %s, %s, %s' % (v(V.X0r1), sB, v(T)))
    def tr_lane(self, dst, g1s, g0s, b3s=64):
        a = self.a; t = V.T+7
        sh = lambda x: int(math.log2(x))
        a('v_and_b32 %s, 0x30, %s' % (v(dst), v(V.l16)))
        for bit, st in ((2, 8), (3, b3s), (4, g0s), (5, g1s)):
            a('v_bfe_u32 %s, %s, %d, 1' % (v(t), v(V.lane), bit))
            a('v_lshl_add_u32 %s, %s, %d, %s' % (v(dst), v(t), sh(st), v(dst)))

    def mf16(self, d, A, B):
        self.a('v_mfma_f32_16x16x32_bf16 %s, %s, %s, 0' % (vr(d, 4), vr(A, 4), vr(B, 4)))
    def cvt(self, d, lo, hi):
        self.a('v_cvt_pk_bf16_f32 %s, %s, %s' % (v(d), v(lo), v(hi)))

    def p1_compute(self, nafter, hook=None, hook2=None, hook3=None, hook4=None, hook5=None):
        a = self.a; O, L, D = V.O, V.L, V.DA
        for r in range(4):
            a('s_waitcnt vmcnt(%d)' % (nafter + 3 - r))
            if r == 3: self.stamp()
            for t in range(4):
                a('v_mov_b32 %s, %s' % (v(O+4*t+r), v(L+4*r+t)))
        for t in range(4):
            self.mf16(D+4*t, V.F16, O+4*t)
            self.mf16(D+16+4*t, V.F16+4, O+4*t)
        if hook: hook()
        P = V.DB
        for r in range(4):
            self.cvt(P+4*r, D+r, D+4+r); self.cvt(P+4*r+2, D+16+r, D+20+r)
        for r in range(4):
            self.cvt(P+4*r+1, D+8+r, D+12+r); self.cvt(P+4*r+3, D+24+r, D+28+r)
            a('ds_write_b128 %s, %s offset:%d' % (v(V.X0w), vr(P+4*r, 4), 1024*r))
        self.mark('g1a')
        if hook5: hook5()
        self.mark('g1b')
        a('s_waitcnt lgkmcnt(0)')
        a('s_barrier')
        if hook4: hook4()
        for sel in range(2):
            for tau in range(2):
                for ii in range(2):
                    a('ds_read_b64_tr_b16 %s, %s offset:%d' % (vr(O+4*(2*sel+tau)+2*ii, 2), v(V.X0r1 if sel else V.X0r0), tau*16448+ii*256))
        if hook2: hook2()
        if hook3: hook3()
        for r in range(4): a('s_add_u32 %s, %s, 0x%x' % (sO[r], self.est(), self.ubase(0) + r*self.tstride()))
        for ti in range(4):
            a('s_waitcnt lgkmcnt(%d)' % (6-2*ti))
            self.mf16(D+4*ti, V.M2+8*(ti >> 1), O+4*ti)
            self.mf16(D+16+4*ti, V.M2+8*(ti >> 1)+4, O+4*ti)
        st = lambda i: a('buffer_store_dwordx4 %s, %s, %s, %s offen %s' % (vr(P+4*i, 4), v(V.Est), SWS, sO[i], self.o['st1']))
        def normal():
            for i in range(4):
                for tau in range(2): self.cvt(P+4*i+2*tau, D+4*tau+i, D+16+4*tau+i)
            for i in range(4):
                for tau in range(2): self.cvt(P+4*i+2*tau+1, D+4*(2+tau)+i, D+16+4*(2+tau)+i)
                st(i)
        def w0():
            for i in range(4):
                ts, eb = i >> 1, i & 1
                for tau in range(2):
                    for sg in range(2):
                        x = 4*(2*ts+tau)+2*eb+sg
                        self.cvt(P+4*i+2*tau+sg, D+x, D+16+x)
                st(i)
        self.ifelse(sW, 0, w0, normal)

    def p2_addrs(self):
        a = self.a; T = V.T
        a('v_lshlrev_b32 %s, 4, %s' % (v(T), v(V.n)))
        a('v_lshl_add_u32 %s, %s, 13, %s' % (v(T), v(V.g), v(T)))
        a('s_lshl_b32 %s, %s, 9' % (sA, sW)); a('s_add_u32 %s, %s, %d' % (sA, sA, R1))
        a('v_add_u32 %s, %s, %s' % (v(V.X1w), sA, v(T)))
    def p2_addrs2(self):
        a = self.a; T = V.T
        self.tr_lane(T, 256, 64, 128)
        a('s_lshl_b32 %s, %s, 12' % (sA, sW)); a('s_add_u32 %s, %s, %d' % (sA, sA, R1))
        a('v_add_u32 %s, %s, %s' % (v(V.X1r), sA, v(T)))
        a('v_and_b32 %s, 16, %s' % (v(T), v(V.l16)))
        for bit, st in ((1, 16448), (2, 8224)):
            a('v_bfe_u32 %s, %s, %d, 1' % (v(T+1), v(V.lane), bit))
            a('v_mul_u32_u24 %s, %d, %s' % (v(T+1), st, v(T+1)))
            a('v_add_u32 %s, %s, %s' % (v(T), v(T), v(T+1)))
        a('v_bfe_u32 %s, %s, 3, 2' % (v(T+1), v(V.lane)))
        a('v_lshl_add_u32 %s, %s, 11, %s' % (v(T), v(T+1), v(T)))
        a('v_and_b32 %s, 32, %s' % (v(T+1), v(V.lane)))
        a('v_add_u32 %s, %s, %s' % (v(T), v(T), v(T+1)))
        a('s_lshr_b32 %s, %s, 2' % (sA, sW)); a('s_lshl_b32 %s, %s, 9' % (sA, sA))
        a('s_and_b32 %s, %s, 1' % (sB, sW)); a('s_lshl_b32 %s, %s, 8' % (sB, sB)); a('s_add_u32 %s, %s, %s' % (sA, sA, sB))
        a('s_and_b32 %s, %s, 2' % (sB, sW)); a('s_lshl_b32 %s, %s, 6' % (sB, sB)); a('s_add_u32 %s, %s, %s' % (sA, sA, sB))
        if R0: a('s_add_u32 %s, %s, %d' % (sA, sA, R0))
        a('v_add_u32 %s, %s, %s' % (v(V.X2w), sA, v(T)))
        self.tr_lane(T, 512, 128)
        a('s_and_b32 %s, %s, 1' % (sA, sW)); a('s_lshl_b32 %s, %s, 11' % (sA, sA))
        a('s_bfe_u32 %s, %s, 0x10001' % (sB, sW)); a('s_mul_i32 %s, %s, 16448' % (sB, sB)); a('s_add_u32 %s, %s, %s' % (sA, sA, sB))
        a('s_lshr_b32 %s, %s, 2' % (sB, sW)); a('s_lshl_b32 %s, %s, 12' % (sB, sB)); a('s_add_u32 %s, %s, %s' % (sA, sA, sB))
        if R0: a('s_add_u32 %s, %s, %d' % (sA, sA, R0))
        a('v_add_u32 %s, %s, %s' % (v(V.X2r), sA, v(T)))

    def p2_issue(self):
        a = self.a
        a('s_add_u32 %s, %s, 0x%x' % (sA, sEld, self.ubase(0)))
        for q in range(4):
            a('buffer_load_dwordx4 %s, %s, %s, %s offen offset:%d %s' % (vr(V.L+12*(q >> 1)+4*(q & 1), 4), self.eld(q), SWS, sA, 256*q, self.o['ld1']))

    def mf32(self, d, i, dataA):
        for pl in range(2):
            M = vr(V.F32+16*pl+4*i, 4); X = vr(V.O+4*i, 4)
            A, B = (X, M) if dataA else (M, X)
            D = vr(d+16*pl, 16)
            ex = self.o.get('exp', '')
            if ex == 'm16':
                for hh in range(2):
                    D4 = vr(d+16*pl+8*(i & 1)+4*hh, 4)
                    self.a('v_mfma_f32_16x16x32_bf16 %s, %s, %s, %s' % (D4, A, B, D4 if i >= 2 else '0'))
            elif ex == 'nomf':
                if i == 0: self.a('v_mfma_f32_32x32x16_bf16 %s, %s, %s, %s' % (D, A, B, D if i else '0'))
            elif ex == 'half':
                if i < 2: self.a('v_mfma_f32_32x32x16_bf16 %s, %s, %s, %s' % (D, A, B, D if i else '0'))
            else: self.a('v_mfma_f32_32x32x16_bf16 %s, %s, %s, %s' % (D, A, B, D if i else '0'))

    def cmul_stage(self, src, dst, dataA, coef, kind, prio=None, late=False):
        a = self.a; T = V.T
        if prio is not None and self.o['prio']: a('s_setprio %d' % prio)
        if kind == 'tw' and self.o['shear']:
            for i in range(4):
                for st in range(3):
                    for r in range(4):
                        rho = 4*i+r
                        x, y = v(src+rho), v(src+16+rho)
                        if st == 1: a('v_fmac_f32 %s, %s, %s' % (y, v(coef+16+rho), x))
                        else: a('v_fmac_f32 %s, %s, %s' % (x, v(coef+rho), y))
                for r in range(4): self.cvt(V.O+4*i+r, src+4*i+r, src+16+4*i+r)
                self.mf32(dst, i, dataA)
            return
        if late and self.o.get('db') == 'wb':
            self.mark('wa'); a('s_waitcnt vmcnt(0)'); self.mark('wb'); a('s_waitcnt lgkmcnt(0)')
        if late:
            a('s_waitcnt vmcnt(2)')
            for rho in range(8): self.w_read(rho)
        for i in range(4):
            if late:
                if i == 0: a('s_waitcnt lgkmcnt(8)'); self.w_fix(0)
                if i == 1:
                    a('s_waitcnt vmcnt(0)')
                    for rho in range(8, 12): self.w_read(rho)
                    a('s_waitcnt lgkmcnt(8)')
                if i == 2:
                    for rho in range(12, 16): self.w_read(rho)
                    a('s_waitcnt lgkmcnt(8)'); self.w_fix(1)
                if i == 3: a('s_waitcnt lgkmcnt(0)')
            for r in range(4):
                rho = 4*i+r
                x, y = v(src+rho), v(src+16+rho)
                c, s = v(coef+rho), v(coef+16+rho)
                t0, t1 = v(T+2*r), v(T+2*r+1)
                a('v_mul_f32 %s, %s, %s' % (t0, x, c))
                a('v_mul_f32 %s, %s, %s' % (t1, y, c))
            for r in range(4):
                rho = 4*i+r
                x, y = v(src+rho), v(src+16+rho)
                c, s = v(coef+rho), v(coef+16+rho)
                t0, t1 = v(T+2*r), v(T+2*r+1)
                if kind == 'tw' or rho >= 8:
                    a('v_fmac_f32 %s, %s, %s' % (t0, y, s))
                    a('v_fma_f32 %s, -%s, %s, %s' % (t1, x, s, t1))
                else:
                    a('v_fma_f32 %s, -%s, %s, %s' % (t0, y, s, t0))
                    a('v_fmac_f32 %s, %s, %s' % (t1, x, s))
            for r in range(4):
                if kind == 'tw': self.cvt(V.O+4*i+r, T+2*r, T+2*r+1)
                else: self.cvt(V.O+4*i+r, T+2*r+1, T+2*r)
            self.mf32(dst, i, dataA)

    def p2_compute(self, wl=None):
        a = self.a; O, L, D, T = V.O, V.L, V.DA, V.T
        late = wl is not None
        na = 0
        for cbb in range(2):
            b = L+12*cbb
            a('s_waitcnt vmcnt(%d)' % (na+3-2*cbb))
            a('v_mov_b32 %s, %s' % (v(b+8), v(b))); a('v_mov_b32 %s, %s' % (v(b+9), v(b+1)))
            a('s_waitcnt vmcnt(%d)' % (na+2-2*cbb))
            if cbb: self.stamp(); self.fstamp()
            for jj2 in (1, 0):
                ti = 2*cbb+jj2
                op = b+2 if jj2 else b+6
                mo = 0 if jj2 else 2
                self.mf16(D+4*ti, V.B+mo, op)
                self.mf16(D+16+4*ti, V.B+6+mo, op)
        for cbb in range(2):
            for k1b in range(2):
                P = O+4*(2*cbb+k1b)
                for pl in range(2):
                    for jj2 in (1, 0):
                        x = D+16*pl+4*(2*cbb+jj2)+2*k1b
                        self.cvt(P+2*pl+jj2, x, x+1)
                a('ds_write_b128 %s, %s offset:%d' % (v(V.X1w), vr(P, 4), k1b*4096+cbb*256))
        self.fstamp()
        a('s_waitcnt lgkmcnt(0)')
        self.fstamp()
        if self.o.get('fine'): a('s_waitcnt lgkmcnt(0)')
        a('s_barrier')
        if self.o.get('da') == 'x1' or self.o.get('clk'): self.mark('x1'); a('s_waitcnt lgkmcnt(0)')
        if self.o['prio']: a('s_setprio 3')
        for i in range(4):
            for ii in range(2):
                a('ds_read_b64_tr_b16 %s, %s offset:%d' % (vr(O+4*i+2*ii, 2), v(V.X1r), ii*1024+(i & 1)*512+(i >> 1)*2048))
        for i in range(4):
            if late and i in (0, 2): self.wat('postX1', (i, i+1))
            if late and i == 0: self.wat('w1h', (2, 3))
            a('s_waitcnt lgkmcnt(%d)' % (6-2*i))
            self.mf32(V.DA, i, True)
        self.fstamp()
        if late: self.wat('tw1')
        self.cmul_stage(V.DA, V.DB, False, V.TW, 'tw', 2)
        self.fstamp()
        l0, l1 = self.label('PWspec'), self.label('PWend')
        a('s_cmp_eq_u32 %s, 1' % sSpec)
        a('s_cbranch_scc1 %s' % l0)
        if self.o.get('fine'): a('s_waitcnt lgkmcnt(0)')
        self.cmul_stage(V.DB, V.DA, True, V.W, 'w', 1, late)
        a(l1+':')
        self.fstamp()
        self.cmul_stage(V.DA, V.DB, True, V.TW, 'tw', 0)
        self.fstamp()
        D = V.DB
        rho = lambda jj3, jj1, jj2, c: 4*(2*jj3+jj1)+2*jj2+c
        for c in range(2):
            for jj1 in range(2):
                P = O+4*(2*c+jj1)
                for pl in range(2):
                    for jj3 in range(2):
                        self.cvt(P+2*pl+jj3, D+16*pl+rho(jj3, jj1, 0, c), D+16*pl+rho(jj3, jj1, 1, c))
                a('ds_write_b128 %s, %s offset:%d' % (v(V.X2w), vr(P, 4), c*64+jj1*1024))
                if self.o['ib2'] and not self.o['ib3'] and c == 0 and jj1 == 0: self.major_read()
        self.fstamp()
        self.mark('x2')
        a('s_waitcnt lgkmcnt(0)')
        if self.o['ib2'] and not self.o['ib3']: self.major_use()
        self.fstamp()
        if self.o.get('fine'): a('s_waitcnt lgkmcnt(0)')
        a('s_barrier')
        for cbb in range(2):
            for jj1 in range(2):
                for ii in range(2):
                    a('ds_read_b64_tr_b16 %s, %s offset:%d' % (vr(O+4*(2*cbb+jj1)+2*ii, 2), v(V.X2r), ii*256+jj1*1024+cbb*8224))
        for r in range(4): a('s_add_u32 %s, %s, 0x%x' % (sO[r], self.est(), self.ubase(1) + r*self.tstride()))
        D = V.DA
        for ti in range(4):
            a('s_waitcnt lgkmcnt(%d)' % (6-2*ti))
            self.mf16(D+4*ti, V.Bp, O+4*ti)
            self.mf16(D+16+4*ti, V.Bp+4, O+4*ti)
        self.fstamp()
        P = V.DB
        for q in range(4):
            cbb, sbb = q >> 1, q & 1
            for jj1 in range(2):
                for hf in range(2):
                    x = 4*(2*cbb+jj1)+2*sbb+hf
                    self.cvt(P+4*q+2*jj1+hf, D+x, D+16+x)
            a('buffer_store_dwordx4 %s, %s, %s, %s offen %s' % (vr(P+4*q, 4), v(V.Est), SWS, sO[q], self.o['st2']))
        self.fstamp()
        if self.o.get('fine'):
            a('s_memrealtime s[%d:%d]' % (sTS+2*self.nts, sTS+2*self.nts+1)); self.nts += 1
        def tail():
            C = V.DB; X = V.DA
            a(l0+':')
            self.sigma_lane(T)
            a('v_lshrrev_b32 %s, 5, %s' % (v(T+1), v(V.lane)))
            a('v_lshlrev_b32 %s, 9, %s' % (v(T+1), v(T+1)))
            a('v_lshl_add_u32 %s, %s, 2, %s' % (v(T+2), v(T), v(T+1)))
            a('v_add_u32 %s, %d, %s' % (v(T+2), SCR, v(T+2)))
            a('v_add_u32 %s, 128, %s' % (v(T+3), v(T+2)))
            a('v_sub_u32 %s, 32, %s' % (v(T+4), v(T)))
            a('v_lshrrev_b32 %s, 5, %s' % (v(T+5), v(T+4)))
            a('v_and_b32 %s, 31, %s' % (v(T+4), v(T+4)))
            a('v_lshlrev_b32 %s, 2, %s' % (v(T+4), v(T+4)))
            a('v_lshl_add_u32 %s, %s, 8, %s' % (v(T+4), v(T+5), v(T+4)))
            a('v_sub_u32 %s, %s, %s' % (v(T+4), v(T+4), v(T+1)))
            a('v_add_u32 %s, %d, %s' % (v(T+4), SCR + 2*256, v(T+4)))
            a('v_add_u32 %s, 128, %s' % (v(T+5), v(T+4)))
            a('v_add_u32 %s, %d, %s' % (v(T+6), SCR_B, v(V.l16)))
            qs = lambda rho: sigma(8*(rho >> 2) + (rho & 3))
            for pl in range(2):
                for rho in range(0, 16, 2):
                    a('ds_write2st64_b32 %s, %s, %s offset0:%d offset1:%d' % (v(T+2+pl), v(C+16*pl+rho), v(C+16*pl+rho+1), qs(rho), qs(rho+1)))
                a('ds_write_b32 %s, %s offset:%d' % (v(T+2+pl), v(C+16*pl), 32*256))
            a('s_waitcnt lgkmcnt(0)')
            t0, t1 = v(T+8), v(T+9)
            for half in range(2):
                for pl in range(2):
                    for k in range(0, 8, 2):
                        rho_ = 8*half+k
                        a('ds_read2st64_b32 %s, %s offset0:%d offset1:%d' % (vr(X+8*pl+k, 2), v(T+4+pl), 29-qs(rho_), 29-qs(rho_+1)))
                    for k in range(2):
                        a('ds_read_b128 %s, %s offset:%d' % (vr(X+16+8*pl+4*k, 4), v(T+6), 1024*(4*pl+2*half+k)))
                a('s_waitcnt lgkmcnt(0)')
                for k in range(8):
                    rho_ = 8*half+k
                    x, y = v(C+rho_), v(C+16+rho_); ar, ai = v(V.W+rho_), v(V.W+16+rho_)
                    p, q_ = v(X+k), v(X+8+k); br, bi = v(X+16+k), v(X+24+k)
                    ng, ps = ('', '-') if half else ('-', '')
                    a('v_mul_f32 %s, %s, %s' % (t0, x, ar))
                    a('v_mul_f32 %s, %s, %s' % (t1, y, ar))
                    a('v_fma_f32 %s, %s%s, %s, %s' % (t0, ng, y, ai, t0))
                    a('v_fma_f32 %s, %s%s, %s, %s' % (t1, ps, x, ai, t1))
                    a('v_fmac_f32 %s, %s, %s' % (t0, p, br))
                    a('v_fma_f32 %s, -%s, %s, %s' % (t1, q_, br, t1))
                    a('v_fma_f32 %s, %s%s, %s, %s' % (t0, ps, q_, bi, t0))
                    a('v_fma_f32 %s, %s%s, %s, %s' % (t1, ps, p, bi, t1))
                    self.cvt(O+rho_, T+9, T+8)
            for i in range(4): self.mf32(V.DA, i, True)
            a('s_nop 11')
            a('s_branch %s' % l1)
        self.tail.append(tail)

    def p3_addrs(self):
        a = self.a; T = V.T
        a('v_and_b32 %s, 16, %s' % (v(T), v(V.lane)))
        for bit, st in ((0, 32), (3, 4096), (5, 1024)):
            a('v_bfe_u32 %s, %s, %d, 1' % (v(T+1), v(V.lane), bit))
            a('v_lshl_add_u32 %s, %s, %d, %s' % (v(T), v(T+1), int(math.log2(st)), v(T)))
        for bit, st in ((1, 8208), (2, 16448)):
            a('v_bfe_u32 %s, %s, %d, 1' % (v(T+1), v(V.lane), bit))
            a('v_mul_u32_u24 %s, %d, %s' % (v(T+1), st, v(T+1)))
            a('v_add_u32 %s, %s, %s' % (v(T), v(T), v(T+1)))
        a('s_sub_u32 %s, 16, %s' % (sC, sW))
        a('s_cmp_eq_u32 %s, 0' % sW)
        a('s_cselect_b32 %s, 8, %s' % (sC, sC))
        for kl, dst in ((sW, V.X3w0), (sC, V.X3w1)):
            a('s_and_b32 %s, %s, 9' % (sA, kl)); a('s_lshl_b32 %s, %s, 6' % (sA, sA))
            a('s_and_b32 %s, %s, 2' % (sB, kl)); a('s_lshl_b32 %s, %s, 7' % (sB, sB)); a('s_add_u32 %s, %s, %s' % (sA, sA, sB))
            a('s_and_b32 %s, %s, 4' % (sB, kl)); a('s_lshl_b32 %s, %s, 5' % (sB, sB)); a('s_add_u32 %s, %s, %s' % (sA, sA, sB))
            a('s_add_u32 %s, %s, %d' % (sA, sA, R1))
            a('v_add_u32 %s, %s, %s' % (v(dst), sA, v(T)))
        self.tr_lane(T, 512, 128)
        a('s_and_b32 %s, %s, 1' % (sA, sW)); a('s_mul_i32 %s, %s, 8208' % (sA, sA))
        a('s_bfe_u32 %s, %s, 0x10001' % (sB, sW)); a('s_mul_i32 %s, %s, 16448' % (sB, sB)); a('s_add_u32 %s, %s, %s' % (sA, sA, sB))
        a('s_lshr_b32 %s, %s, 2' % (sB, sW)); a('s_lshl_b32 %s, %s, 12' % (sB, sB)); a('s_add_u32 %s, %s, %s' % (sA, sA, sB))
        a('s_add_u32 %s, %s, %d' % (sA, sA, R1))
        a('v_add_u32 %s, %s, %s' % (v(V.X3r), sA, v(T)))
        a('v_bfe_u32 %s, %s, 3, 1' % (v(T), v(V.lane)))
        a('v_lshlrev_b32 %s, 15, %s' % (v(T), v(T)))
        a('v_lshl_add_u32 %s, %s, 21, %s' % (v(T), v(V.g), v(T)))
        a('v_and_b32 %s, 0x70, %s' % (v(T+1), v(V.l16)))
        a('v_add_u32 %s, %s, %s' % (v(V.Ooff), v(T), v(T+1)))
    def p3_soff(self):
        a = self.a
        a('s_lshl_b32 %s, %s, 16' % (sO[0], sW))
        a('s_lshl_b32 %s, %s, 12' % (sA, sSB)); a('s_add_u32 %s, %s, %s' % (sO[0], sO[0], sA))
        a('s_lshl_b32 %s, %s, 7' % (sA, sCB)); a('s_add_u32 %s, %s, %s' % (sO[0], sO[0], sA))
        a('s_lshl_b32 %s, %s, 11' % (sA, sP)); a('s_add_u32 %s, %s, %s' % (sO[0], sO[0], sA))
        for r in range(1, 4): a('s_add_u32 %s, %s, 0x%x' % (sO[r], sO[0], r*524288))
    def p3_issue(self):
        a = self.a
        a('s_add_u32 %s, %s, 0x%x' % (sA, sEld, self.ubase(1)))
        for q in range(4):
            a('buffer_load_dwordx4 %s, %s, %s, %s offen offset:%d %s' % (vr(V.L+4*q, 4), self.eld(q, 1), SWS, sA, 256*q, self.o['ld2']))
    def p3_compute(self):
        a = self.a; O, L, D = V.O, V.L, V.DA
        def normal():
            for i in range(4):
                a('s_waitcnt vmcnt(%d)' % (3-i))
                for sel in range(2):
                    for col in range(2):
                        a('v_mov_b32 %s, %s' % (v(O+4*(2*sel+col)+i), v(L+4*i+2*col+sel)))
        def w0():
            for i in range(4):
                ts, eb = i >> 1, i & 1
                a('s_waitcnt vmcnt(%d)' % (3-i))
                for col in range(2):
                    for sg in range(2):
                        a('v_mov_b32 %s, %s' % (v(O+4*(2*ts+col)+2*eb+sg), v(L+4*i+2*col+sg)))
        self.ifelse(sW, 0, w0, normal, True)
        self.stamp()
        for ti in range(4):
            self.mf16(D+4*ti, O+4*ti, V.M2+8*(ti >> 1))
            self.mf16(D+16+4*ti, O+4*ti, V.M2+8*(ti >> 1)+4)
        P = V.DB
        for ti in range(4):
            for pl in range(2):
                for k in range(2):
                    x = D+16*pl+4*ti+2*k
                    self.cvt(P+4*ti+2*pl+k, x, x+1)
            a('ds_write_b128 %s, %s offset:%d' % (v(V.X3w1 if ti >> 1 else V.X3w0), vr(P+4*ti, 4), (ti & 1)*2048))
        a('s_waitcnt lgkmcnt(0)')
        a('s_barrier')
        for t in range(4):
            for ii in range(2):
                a('ds_read_b64_tr_b16 %s, %s offset:%d' % (vr(O+4*t+2*ii, 2), v(V.X3r), ii*256+t*1024))
        for t in range(4):
            a('s_waitcnt lgkmcnt(%d)' % (6-2*t))
            self.mf16(D+4*t, V.F16, O+4*t)
            self.mf16(D+16+4*t, V.F16+4, O+4*t)
        for t in range(3):
            for r in range(4): self.cvt(P+4*r+t, D+16+4*t+r, D+4*t+r)
        for r in range(4):
            self.cvt(P+4*r+3, D+16+12+r, D+12+r)
            a('buffer_store_dwordx4 %s, %s, %s, %s offen %s' % (vr(P+4*r, 4), v(V.Ooff), SOUT, sO[r], self.o['sto']))

    def flush_tail(self):
        t, self.tail = self.tail, []
        for f in t: f()

    def kernel_head(self, name):
        self.a.raw('.globl %s\n.p2align 12\n.p2align 8\n.type %s,@function\n%s:' % (name, name, name))
    def kd(self, name):
        return '''.p2align 6
.amdhsa_kernel %s
  .amdhsa_next_free_vgpr %d
  .amdhsa_next_free_sgpr 102
  .amdhsa_accum_offset %d
  .amdhsa_group_segment_fixed_size 0
  .amdhsa_kernarg_size 72
  .amdhsa_user_sgpr_count 2
  .amdhsa_user_sgpr_kernarg_segment_ptr 1
  .amdhsa_system_sgpr_workgroup_id_x 1
.end_amdhsa_kernel''' % (name, NVGPR, (NVGPR+3)//4*4)

    def build_three(self):
        a = self.a
        names = ['gf_p1_kernel', 'gf_p2_kernel', 'gf_p3_kernel']
        self.kernel_head(names[0]); end = self.label('end')
        self.prologue(end); self.p1_load(); a('s_waitcnt lgkmcnt(0)'); self.p1_issue()
        self.ex_addrs(); self.p1_addrs(); self.gen_F16(); self.gen_M2()
        self.p1_compute(0)
        if self.o['ts']: self.stamp(); a('s_waitcnt vmcnt(0)'); self.stamp(); self.dump_stamps(0)
        a(end+':'); a('s_endpgm'); self.flush_tail()
        self.kernel_head(names[1]); end = self.label('end')
        self.prologue(end); self.ex_addrs(); self.calc_k0(); a('s_waitcnt lgkmcnt(0)')
        self.w_dma(); self.p2_addrs(); self.gen_B(); self.gen_F32TW()
        a('s_waitcnt vmcnt(0)'); self.w_regs(); a('s_waitcnt lgkmcnt(0)')
        self.p2_issue(); self.p2_compute()
        if self.o['ts']: self.stamp(); a('s_waitcnt vmcnt(0)'); self.stamp(); self.dump_stamps(8)
        a(end+':'); a('s_endpgm'); self.flush_tail()
        self.kernel_head(names[2]); end = self.label('end')
        self.prologue(end); self.ex_addrs(); a('s_waitcnt lgkmcnt(0)'); self.p3_issue()
        self.p3_addrs(); self.p3_soff(); self.gen_F16(); self.gen_M3()
        self.p3_compute()
        if self.o['ts']: self.stamp(); a('s_waitcnt vmcnt(0)'); self.stamp(); self.dump_stamps(16)
        a(end+':'); a('s_endpgm'); self.flush_tail()
        launch = ''.join('; @launch kernel=%s grid=(256,1,1) block=(512,1,1) lds=%d\n' % (n, LDS_TOTAL) for n in names)
        return self.finish(launch, names)

    def flag_addrs(self):
        a = self.a
        if self.o['ib']:
            a('s_lshr_b32 %s, %s, 4' % (sB, sT))
            for dst, wp, gr in ((sF, sW, sB), (sE, sB, sW)):
                a('s_lshl3_add_u32 %s, %s, %s' % (sA, sP, wp)); a('s_lshl_b32 %s, %s, 21' % (sA, sA))
                a('s_lshl_b32 %s, %s, 10' % (sC, gr)); a('s_add_u32 %s, %s, %s' % (sA, sA, sC))
                a('s_add_u32 %s, %s, 0x%x' % (dst, sA, WS_FLAG_IB))
            a('s_and_b32 %s, %s, 15' % (sA, sT)); a('s_add_u32 %s, %s, 8' % (sA, sA))
            a('s_lshl_b32 %s, %s, %s' % (sInc, sCh, sA)); a('s_add_u32 %s, %s, 1' % (sInc, sInc))
            a('v_lshl_add_u32 %s, %s, 2, 8' % (v(V.dummy), v(V.g)))
            return
        if self.o['fl'] != '':
            pol = int(self.o['fl'][1]); mode = self.o['fl'][0]
            a('s_lshr_b32 %s, %s, 4' % (sB, sT))
            for dst, wp, gr in ((sF, sW, sB), (sE, sB, sW)):
                a('s_lshl3_add_u32 %s, %s, %s' % (sA, sP, wp))
                if mode == 'x': a('s_xor_b32 %s, %s, %d' % (sC, sP, pol))
                else: a('s_lshr_b32 %s, %s, 2' % (sC, wp)); a('s_xor_b32 %s, %s, %d' % (sC, sC, pol))
                a('s_lshl1_add_u32 %s, %s, %s' % (sA, sA, sC))
                a('s_lshl3_add_u32 %s, %s, %s' % (sA, sA, gr))
                a('s_lshl_b32 %s, %s, 10' % (sA, sA))
                a('s_add_u32 %s, %s, 0x%x' % (dst, sA, WS_FLAG))
            return
        fs = int(self.o['fstride'])
        a('s_lshl_b32 %s, %s, %d' % (sA, sP, fs+6)); a('s_add_u32 %s, %s, 0x%x' % (sA, sA, WS_FLAG))
        a('s_lshr_b32 %s, %s, 4' % (sB, sT))
        a('s_lshl_b32 %s, %s, %d' % (sF, sW, fs+3)); a('s_add_u32 %s, %s, %s' % (sF, sF, sA))
        a('s_lshl_b32 %s, %s, %d' % (sC, sB, fs)); a('s_add_u32 %s, %s, %s' % (sF, sF, sC))
        a('s_lshl_b32 %s, %s, %d' % (sE, sB, fs+3)); a('s_add_u32 %s, %s, %s' % (sE, sE, sA))
        a('s_lshl_b32 %s, %s, %d' % (sC, sW, fs)); a('s_add_u32 %s, %s, %s' % (sE, sE, sC))
    def g1_probe(self):
        a = self.a
        NB = int(self.o['nb'])
        a('s_lshl3_add_u32 %s, s2, %s' % (sCh2, sW))
        def f():
            a('s_mov_b32 %s, 0x%x' % (sA, WS_FLAG2 + (int(self.o['pbase']) << 21)))
            for side in range(2):
                for k in range(NB):
                    r = 62+side*NB+k
                    a('s_mov_b32 s%d, 0x%x' % (r, SENT))
                    a('s_%s s%d, s[24:25], %s offset:0x%x glc' % (self.o['pop'], r, sA, side*0x2000 + (k & 1)*0x1000 + (k >> 1)*0x4000 + k*0x100))
        self.cond(sCh2, 8*8+PW, f)
    def g1_eval(self):
        a = self.a
        NB = int(self.o['nb'])
        def f():
            a('s_waitcnt lgkmcnt(%d)' % (NB+1))
            a('s_nop %s' % self.o['pnop'])
            a('s_mov_b32 %s, 0' % sA); a('s_mov_b32 %s, 0' % sB)
            for k in range(NB):
                a('s_cmp_lg_u32 s%d, 0x%x' % (62+NB+k, SENT)); a('s_addc_u32 %s, %s, 0' % (sB, sB))
            a('s_cmp_le_u32 %s, %s' % (sB, self.o['pthr']))
            a('s_cselect_b32 s94, 2, 3')
            if self.o['ts']:
                a('s_lshl_b32 %s, %s, 4' % (sA, sA)); a('s_lshl_b32 %s, %s, 8' % (sB, sB)); a('s_or_b32 s94, s94, %s' % sA); a('s_or_b32 s94, s94, %s' % sB)
            if self.o['force'] != '': a('s_mov_b32 s94, %d' % (2+int(self.o['force'])))
            a('s_atomic_or s94, s[20:21], 0x80')
        self.cond(sCh2, 8*8+PW, f)
    def g1_pre(self):
        a = self.a
        self.cond(sW, PW, lambda: a('s_load_dword s95, s[20:21], 0x80'))
    def g1_read(self):
        a = self.a
        def f():
            a('buffer_load_dword %s, %s, %s, 0 offen offset:128 sc1' % (v(V.dummy), v(V.EL), SDBG))
        self.cond(sW, PW, f)
    def g1_wait(self):
        a = self.a
        def f():
            lp, ok = self.label('g1'), self.label('g1ok')
            if self.g1na:
                a('v_cmp_ne_u32 vcc, 0, %s' % v(V.dummy))
                a('s_cbranch_vccnz %s' % ok)
            a('s_mov_b32 %s, 0' % sCnt)
            a(lp+':')
            a('s_waitcnt vmcnt(0)')
            a('v_cmp_ne_u32 vcc, 0, %s' % v(V.dummy))
            a('s_cbranch_vccnz %s' % ok)
            a('buffer_load_dword %s, %s, %s, 0 offen offset:128 sc1' % (v(V.dummy), v(V.EL), SDBG))
            a('s_add_u32 %s, %s, 1' % (sCnt, sCnt))
            a('s_cmp_lt_u32 %s, 0x%x' % (sCnt, SPIN_MAX))
            a('s_cbranch_scc1 %s' % lp)
            a('s_waitcnt vmcnt(0)')
            a(ok+':')
            a('ds_write_b32 %s, %s offset:4' % (v(V.dummy2), v(V.dummy)))
        self.cond(sW, PW, f)
    def g1_use(self):
        a = self.a
        a('s_waitcnt lgkmcnt(8)')
        a('v_readfirstlane_b32 %s, %s' % (sCh, v(V.dummy)))
        if self.o['ts']: a('s_mov_b32 s%d, %s' % (sTS+24, sCh))
        a('s_and_b32 %s, %s, 1' % (sCh, sCh)); a('s_lshl_b32 %s, %s, 13' % (sCh, sCh))
        a('s_xor_b32 %s, %s, %s' % (sEst, sEst, sCh))

    def p2_probe_issue(self):
        a = self.a
        def f():
            if self.o['ib3']:
                a('s_lshr_b32 %s, s2, 5' % sA); a('s_bfe_u32 %s, s2, 0x10004' % sCh2)
                a('s_lshl1_add_u32 %s, %s, %s' % (sA, sA, sCh2)); a('s_lshl_b32 %s, %s, 5' % (sA, sA))
                a('s_and_b32 %s, s2, 31' % sB); a('s_add_u32 %s, %s, %s' % (sA, sA, sB))
                a('s_lshl_b32 %s, %s, 8' % (sA, sA)); a('s_add_u32 %s, %s, 0x%x' % (sDP, sA, WS_FLAG2))
            else:
                a('s_bfe_u32 %s, %s, 0x30003' % (sA, sT)); a('s_lshl3_add_u32 %s, %s, %s' % (sA, sP, sA))
                a('s_lshr_b32 %s, %s, 6' % (sCh2, sT))
                a('s_lshl1_add_u32 %s, %s, %s' % (sA, sA, sCh2))
                a('s_and_b32 %s, %s, 7' % (sB, sT)); a('s_lshl3_add_u32 %s, %s, %s' % (sA, sA, sB))
                a('s_lshl_b32 %s, %s, 10' % (sA, sA)); a('s_add_u32 %s, %s, 0x%x' % (sDP, sA, WS_FLAG2))
            a('s_xor_b32 %s, %s, 0x2000' % (sDM, sDP))
            a('s_mov_b64 s[92:93], 0')
            a('s_atomic_swap s92, s[24:25], %s glc' % sDP)
            a('s_atomic_swap s93, s[24:25], %s glc' % sDM)
        self.cond(sW, PW, f)
    def p2_probe_eval(self):
        a = self.a; T = V.T
        def f():
            if self.o['r2']:
                a('s_waitcnt lgkmcnt(0)')
                a('s_atomic_swap s92, s[24:25], %s glc' % sDP)
                a('s_atomic_swap s93, s[24:25], %s glc' % sDM)
            a('s_waitcnt lgkmcnt(1)')
            a('s_nop %s' % self.o['pnop'])
            a('s_getreg_b32 %s, hwreg(HW_REG_IB_STS, 8, 4)' % sA)
            a('s_cmp_eq_u32 %s, 0' % sA)
            a('s_cselect_b32 %s, 1, 0' % sA)
            a('s_xor_b32 %s, %s, %s' % (sCh2, sCh2, sA))
            if self.o['force'] != '': a('s_xor_b32 %s, %s, %s' % (sCh2, sP, self.o['force']))
            if not self.o['ib3']:
                a('v_mov_b32 %s, %d' % (v(T), CNT)); a('v_mov_b32 %s, %s' % (v(T+1), sCh2))
                a('ds_write_b32 %s, %s offset:4' % (v(T), v(T+1)))
            if self.o['ib3']:
                l = self.label('nv')
                a('s_and_b32 %s, s2, 0x8f' % sA); a('s_cmp_lg_u32 %s, 8' % sA); a('s_cbranch_scc1 %s' % l)
                a('s_cmp_eq_u32 s2, 120'); a('s_cbranch_scc1 %s' % l)
                a('s_lshl_b32 s94, %s, 8' % sCh2); a('s_add_u32 s94, s94, 0x1001')
                a('s_atomic_add s94, s[20:21], 0x0')
                a(l+':')
        self.cond(sW, PW, f)
    def vote_read(self):
        a = self.a
        if self.o['novr']: return
        def f():
            a('s_mov_b32 s22, 256'); a('s_mov_b32 s23, 0x20000')
            a('v_mov_b32 %s, 0' % v(V.EL))
            a('buffer_load_dword %s, %s, %s, 0 offen sc1' % (v(V.dummy), v(V.EL), SDBG))
        self.cond(sW, PW, f)
    def vote_use(self):
        a = self.a; T = V.T
        def f():
            if not self.o['novr']:
                a('v_readfirstlane_b32 %s, %s' % (sA, v(V.dummy)))
                a('s_bfe_u32 %s, %s, 0x40008' % (sB, sA)); a('s_bfe_u32 %s, %s, 0x4000c' % (sC, sA))
                a('s_sub_u32 %s, %s, %s' % (sC, sC, sB))
                a('s_xor_b32 %s, %s, 1' % (sA, sP))
                a('s_cmp_ge_u32 %s, 4' % sB); a('s_cselect_b32 %s, %s, %s' % (sCh2, sA, sCh2))
                a('s_cmp_ge_u32 %s, 4' % sC); a('s_cselect_b32 %s, %s, %s' % (sCh2, sP, sCh2))
            a('v_mov_b32 %s, %s' % (v(T+1), sCh2))
            a('ds_write_b32 %s, %s offset:4' % (v(V.dummy2), v(T+1)))
        self.cond(sW, PW, f)
    def zero3(self):
        a = self.a
        a('s_sub_u32 %s, s2, 16' % sZ)
        a('s_and_b32 %s, %s, 0xffffffef' % (sZ, sZ))
        def f():
            a('s_lshr_b32 %s, s2, 5' % sA)
            a('s_lshl1_add_u32 %s, %s, %s' % (sA, sW, sA))
            a('s_lshl_b32 %s, %s, 13' % (sA, sA)); a('s_add_u32 %s, %s, 0x%x' % (sA, sA, WS_FLAG))
            for i in range(0, 8, 2): a('s_mov_b64 s[%d:%d], 0' % (84+i, 85+i))
            for i in range(8):
                a('s_atomic_swap s%d, s[24:25], %s offset:0x%x glc' % (84+i, sA, i << 10))
        self.cond(sZ, 0, f)
    def ready3(self):
        a = self.a
        def f():
            a('s_mov_b32 s94, 1')
            a('s_waitcnt lgkmcnt(0)')
            a('s_atomic_add s94, s[20:21], 0x0')
        self.cond(sZ, 0, f)
    def flag_addrs3(self):
        a = self.a
        a('s_lshr_b32 %s, %s, 4' % (sB, sT))
        for dst, wp, gr in ((sF, sW, sB), (sE, sB, sW)):
            a('s_lshl4_add_u32 %s, %s, %s' % (sC, wp, gr)); a('s_lshl_b32 %s, %s, 10' % (sC, sC))
            a('s_add_u32 %s, %s, 0x%x' % (dst, sC, WS_FLAG))
    def side3(self):
        a = self.a
        a('s_bfe_u32 %s, %s, 0x1000a' % (sCh2, sRv))
        a('s_xor_b32 %s, %s, %s' % (sCh2, sCh2, sP)); a('s_lshl_b32 %s, %s, 13' % (sCh2, sCh2))
        a('s_add_u32 %s, %s, %s' % (sF, sF, sCh2))
    def side3b(self):
        a = self.a
        a('s_add_u32 %s, %s, %s' % (sE, sE, sCh2))
        a('s_xor_b32 %s, %s, %s' % (sZp, sEst, sCh2))
    def side3c(self):
        a = self.a
        a('s_and_b32 %s, %s, 0x2000' % (sA, sZ)); a('s_xor_b32 %s, %s, %s' % (sA, sA, sCh2)); a('s_add_u32 %s, %s, %s' % (sEld, sEld, sA))
    def p2_choice_read(self):
        self.a('ds_read_b32 %s, %s offset:4' % (v(V.dummy), v(V.dummy2)))
    def p2_choice_use(self):
        a = self.a
        a('s_waitcnt lgkmcnt(8)')
        a('v_readfirstlane_b32 %s, %s' % (sCh2, v(V.dummy)))
        a('s_lshl_b32 %s, %s, 13' % (sA, sCh2))
        a('s_xor_b32 %s, %s, %s' % (sZp, sEst, sA))
        if self.o['ts']: a('s_mov_b32 s%d, %s' % (sTS+24, sCh2))
    def ex_addrs_ib2(self):
        a = self.a; T = V.T
        a('s_lshl_b32 %s, %s, 4' % (sB, sW)); a('s_xor_b32 %s, %s, %s' % (sB, sB, sT)); a('s_lshl_b32 %s, %s, 8' % (sB, sB))
        a('v_lshlrev_b32 %s, 4, %s' % (v(T), v(V.n)))
        a('v_lshl_add_u32 %s, %s, 10, %s' % (v(T), v(V.g), v(T)))
        a('v_xor_b32 %s, %s, %s' % (v(T), sB, v(T)))
        a('v_and_b32 %s, 0x6000, %s' % (v(T+1), v(T)))
        a('v_add_u32 %s, %s, %s' % (v(T), v(T), v(T+1)))
        a('v_lshl_add_u32 %s, %s, 18, %s' % (v(V.Est), v(V.g), v(T)))
        a('v_and_b32 %s, 0xdcff, %s' % (v(V.Eld0), v(T)))
        a('s_lshl3_add_u32 %s, %s, %s' % (sEst, sP, sW)); a('s_lshl_b32 %s, %s, 20' % (sEst, sEst))
        a('s_and_b32 %s, %s, 2' % (sA, sW)); a('s_lshl_b32 %s, %s, 12' % (sA, sA)); a('s_add_u32 %s, %s, %s' % (sEst, sEst, sA))
    def misc_ib2(self):
        a = self.a
        a('s_lshl_b32 %s, %s, 7' % (sEld, sP)); a('s_add_u32 %s, %s, %s' % (sEld, sEld, sT)); a('s_lshl_b32 %s, %s, 16' % (sEld, sEld))
        a('s_and_b32 %s, %s, 15' % (sA, sT)); a('s_add_u32 %s, %s, 8' % (sA, sA))
        a('s_lshl_b32 %s, %s, %s' % (sInc, sCh2, sA)); a('s_add_u32 %s, %s, 1' % (sInc, sInc))
        a('v_lshl_add_u32 %s, %s, 2, 8' % (v(V.dummy), v(V.g)))
        a('s_bfe_i32 %s, %s, 0x10005' % (sZ, sT))
    def ld_addrs_ib2(self):
        a = self.a; T = V.T
        a('s_xor_b32 %s, %s, %s' % (sA, sRv, sZ))
        a('v_lshrrev_b32 %s, %s, %s' % (v(T), v(V.dummy), sA))
        for q in range(4):
            a('v_bfe_u32 %s, %s, %d, 1' % (v(T+1), v(T), q))
            a('v_lshl_add_u32 %s, %s, 13, %s' % (v(T+2+q), v(T+1), v(V.Eld0)))
    def major_post(self):
        a = self.a; T = V.T
        def f():
            a('s_bfe_u32 %s, %s, 0x100008' % (sA, sRv)); a('s_bcnt1_i32_b32 %s, %s' % (sA, sA))
            a('s_cmp_gt_u32 %s, 8' % sA); a('s_cselect_b32 %s, 0x2000, 0' % sA)
            a('v_mov_b32 %s, %s' % (v(T), sA))
            a('ds_write_b32 %s, %s offset:8' % (v(V.dummy2), v(T)))
        self.cond(sW, 0, f)
    def major_read(self):
        self.a('ds_read_b32 %s, %s offset:8' % (v(V.dummy), v(V.dummy2)))
    def major_use(self):
        a = self.a
        a('v_readfirstlane_b32 %s, %s' % (sCh2, v(V.dummy)))
        a('s_xor_b32 %s, %s, %s' % (sZp, sEst, sCh2))
    def major_use2(self):
        a = self.a
        a('s_and_b32 %s, %s, 0x2000' % (sA, sZ)); a('s_xor_b32 %s, %s, %s' % (sA, sA, sCh2)); a('s_add_u32 %s, %s, %s' % (sEld, sEld, sA))
        a('s_lshr_b32 %s, %s, 4' % (sB, sT))
        for dst, wp, gr in ((sF, sW, sB), (sE, sB, sW)):
            a('s_lshl3_add_u32 %s, %s, %s' % (sA, sP, wp)); a('s_lshl4_add_u32 %s, %s, %s' % (sA, sA, gr)); a('s_lshl_b32 %s, %s, 10' % (sA, sA))
            a('s_add_u32 %s, %s, %s' % (sA, sA, sCh2)); a('s_add_u32 %s, %s, 0x%x' % (dst, sA, WS_FLAG2))

    def gz_issue(self):
        a = self.a
        a('s_sub_u32 %s, s2, 16' % sZ)
        a('s_and_b32 %s, %s, 0xffffffef' % (sZ, sZ))
        def f():
            a('s_lshr_b32 %s, s2, 5' % sZp)
            a('s_lshl1_add_u32 %s, %s, %s' % (sCh, sW, sZp))
            a('s_lshl_b32 %s, %s, 13' % (sCh, sCh)); a('s_add_u32 %s, %s, 0x%x' % (sCh, sCh, WS_FLAG))
            for i in range(0, 8, 2): a('s_mov_b64 s[%d:%d], 0' % (84+i, 85+i))
            for i in range(8):
                a('s_atomic_swap s%d, s[24:25], %s offset:0x%x glc' % (84+i, sCh, i << 10))
        self.cond(sZ, 0, f)
    def gz_publish(self):
        a = self.a
        def f():
            a('s_waitcnt lgkmcnt(0)')
            a('s_memtime s[84:85]')
            a('s_mov_b32 s88, 0')
            a('s_waitcnt lgkmcnt(0)')
            a('s_atomic_add s88, s[24:25], %s glc' % sCh)
            a('s_waitcnt lgkmcnt(0)')
            a('s_memtime s[86:87]')
            a('s_mul_i32 %s, %s, 13' % (sZp, sZp)); a('s_add_u32 %s, %s, 5' % (sZp, sZp))
            a('s_waitcnt lgkmcnt(0)')
            a('s_sub_u32 s84, s86, s84'); a('s_lshr_b32 s84, s84, 3'); a('s_min_u32 s84, s84, 0x3ff')
            a('s_lshl_b32 s84, s84, %s' % sZp); a('s_add_u32 s84, s84, 1')
            a('s_atomic_add s84, s[20:21], 0x0')
        self.cond(sZ, 0, f)
    def gz_read(self):
        a = self.a
        a('v_mov_b32 %s, 0' % v(V.EL))
        a('buffer_load_dword %s, %s, %s, 0 offen sc1' % (v(V.dummy), v(V.EL), SDBG))
    def gz_check(self):
        a = self.a; l0, l1 = self.label('gz'), self.label('gzok')
        a('s_waitcnt vmcnt(0)')
        a('v_readfirstlane_b32 %s, %s' % (sRv, v(V.dummy)))
        a('s_bitcmp1_b32 %s, 4' % sRv)
        a('s_cbranch_scc1 %s' % l1)
        a('s_mov_b32 %s, 0' % sCnt)
        a(l0+':')
        a('buffer_load_dword %s, %s, %s, 0 offen sc1' % (v(V.dummy), v(V.EL), SDBG))
        a('s_add_u32 %s, %s, 1' % (sCnt, sCnt))
        a('s_cmp_gt_u32 %s, 0x%x' % (sCnt, SPIN_MAX))
        a('s_waitcnt vmcnt(0)')
        a('v_readfirstlane_b32 %s, %s' % (sRv, v(V.dummy)))
        a('s_cbranch_scc1 %s' % l1)
        a('s_bitcmp0_b32 %s, 4' % sRv)
        a('s_cbranch_scc1 %s' % l0)
        a(l1+':')
        a('s_bfe_u32 %s, %s, 0xd0005' % (sA, sRv)); a('s_bfe_u32 %s, %s, 0xd0012' % (sB, sRv))
        a('s_cmp_lt_u32 %s, %s' % (sB, sA))
        a('s_cselect_b32 %s, 0x2000, 0' % sCh)
        if self.o['force'] != '': a('s_mov_b32 %s, %d' % (sCh, int(self.o['force']) << 13))
        a('s_xor_b32 %s, %s, %s' % (sEst, sEst, sCh))
        if self.o['ts']: a('s_mov_b32 s%d, %s' % (sTS+24, sRv))
    def gz_flag_addrs(self):
        a = self.a
        a('s_xor_b32 %s, %s, %s' % (sEld, sEld, sCh))
        a('s_lshr_b32 %s, %s, 4' % (sB, sT))
        if not self.o['optx']:
            for dst, wp, gr in ((sF, sW, sB), (sE, sB, sW)):
                a('s_and_b32 %s, %s, 3' % (sC, wp)); a('s_lshl2_add_u32 %s, %s, %s' % (sC, sP, sC))
                a('s_lshr_b32 %s, %s, 2' % (sA, wp)); a('s_lshl1_add_u32 %s, %s, %s' % (sC, sC, sA))
                a('s_lshl3_add_u32 %s, %s, %s' % (sC, sC, gr)); a('s_lshl_b32 %s, %s, 10' % (sC, sC))
                a('s_xor_b32 %s, %s, %s' % (sC, sC, sCh))
                a('s_add_u32 %s, %s, 0x%x' % (dst, sC, WS_FLAG))
            return
        a('s_lshl_b32 %s, %s, 13' % (sA, sP)); a('s_xor_b32 %s, %s, %s' % (sA, sA, sCh)); a('s_add_u32 %s, %s, 0x%x' % (sA, sA, WS_FLAG))
        for dst, wp, gr in ((sF, sW, sB), (sE, sB, sW)):
            a('s_lshl4_add_u32 %s, %s, %s' % (sC, wp, gr)); a('s_lshl_b32 %s, %s, 10' % (sC, sC))
            a('s_add_u32 %s, %s, %s' % (dst, sC, sA))

    def zero_flags_ib(self):
        a = self.a
        def f():
            a('s_waitcnt lgkmcnt(0)')
            a('s_lshl_b32 %s, %s, 13' % (sA, sCh)); a('s_add_u32 %s, %s, %s' % (sA, sA, sEst)); a('s_add_u32 %s, %s, 0x%x' % (sA, sA, WS_FLAG_IB))
            for i in range(0, 8, 2): a('s_mov_b64 s[%d:%d], 0' % (84+i, 85+i))
            for i in range(8):
                a('s_atomic_swap s%d, s[24:25], %s offset:0x%x glc' % (84+i, sA, i << 10))
        self.cond(sT, 1, f)
    def set_ready_ib(self):
        a = self.a
        def f():
            a('s_add_u32 %s, %s, 8' % (sA, sW)); a('s_lshl_b32 %s, %s, %s' % (sZ, sCh, sA)); a('s_add_u32 %s, %s, 1' % (sZ, sZ))
            a('s_waitcnt lgkmcnt(0)')
            a('s_atomic_add %s, s[20:21], %s' % (sZ, sRd))
        self.cond(sT, 1, f)
    def flag_side(self):
        a = self.a
        a('s_lshr_b32 %s, %s, 8' % (sRv, sRv))
        a('s_lshr_b32 %s, %s, %s' % (sA, sRv, sW)); a('s_and_b32 %s, %s, 1' % (sA, sA)); a('s_lshl_b32 %s, %s, 13' % (sA, sA)); a('s_add_u32 %s, %s, %s' % (sF, sF, sA))
    def flag_side2(self):
        a = self.a
        a('s_lshr_b32 %s, %s, 4' % (sB, sT))
        a('s_lshr_b32 %s, %s, %s' % (sA, sRv, sB)); a('s_and_b32 %s, %s, 1' % (sA, sA)); a('s_lshl_b32 %s, %s, 13' % (sA, sA)); a('s_add_u32 %s, %s, %s' % (sE, sE, sA))
    def zero_flags(self):
        a = self.a
        a('s_sub_u32 %s, s2, 16' % sZ)
        a('s_and_b32 %s, %s, 0xffffffef' % (sZ, sZ))
        def f():
            fs = int(self.o['fstride'])
            a('s_lshr_b32 %s, s2, 5' % sZp)
            a('s_lshl3_add_u32 %s, %s, %s' % (sA, sZp, sW))
            if self.o['fl'] != '':
                pol = int(self.o['fl'][1]); mode = self.o['fl'][0]; fs = 10
                if mode == 'x': a('s_xor_b32 %s, %s, %d' % (sC, sZp, pol))
                else: a('s_lshr_b32 %s, %s, 2' % (sC, sW)); a('s_xor_b32 %s, %s, %d' % (sC, sC, pol))
                a('s_lshl1_add_u32 %s, %s, %s' % (sA, sA, sC))
            a('s_lshl_b32 %s, %s, %d' % (sA, sA, fs+3)); a('s_add_u32 %s, %s, 0x%x' % (sA, sA, WS_FLAG))
            for i in range(0, 8, 2): a('s_mov_b64 s[%d:%d], 0' % (84+i, 85+i))
            for i in range(8):
                a('s_atomic_swap s%d, s[24:25], %s offset:0x%x glc' % (84+i, sA, i << fs))
            a('s_lshl_b32 %s, %s, 7' % (sZp, sZp))
        self.cond(sZ, 0, f)
    def set_ready(self):
        a = self.a
        def f():
            a('s_mov_b32 %s, 1' % sInc)
            a('s_waitcnt lgkmcnt(0)')
            a('s_atomic_add %s, s[20:21], %s' % (sInc, sZp))
        self.cond(sZ, 0, f)
    def ready_issue(self):
        self.a('s_load_dword %s, s[20:21], %s' % (sRv, sRd))
    def ready_check(self):
        a = self.a; l0, l1 = self.label('rdy'), self.label('rdyok')
        def notready():
            if self.o['g1']: a('s_cmp_lt_u32 %s, 16' % sRv)
            elif self.o['ib3']: a('s_and_b32 %s, %s, 0xff' % (sA, sRv)); a('s_cmp_lt_u32 %s, 23' % sA)
            else: a('s_bitcmp0_b32 %s, 3' % sRv)
        notready()
        a('s_cbranch_scc1 %s' % l0)
        a(l1+':')
        def tail():
            lp = self.label('rdyl')
            a(l0+':')
            a('s_mov_b32 %s, 0' % sCnt)
            a('v_mov_b32 %s, 0' % v(V.O+1))
            a(lp+':')
            a('buffer_load_dword %s, %s, %s, %s offen sc1' % (v(V.O), v(V.O+1), SDBG, sRd))
            a('s_add_u32 %s, %s, 1' % (sCnt, sCnt))
            a('s_cmp_gt_u32 %s, 0x%x' % (sCnt, SPIN_MAX))
            a('s_waitcnt vmcnt(0)')
            a('v_readfirstlane_b32 %s, %s' % (sRv, v(V.O)))
            a('s_cbranch_scc1 %s' % l1)
            notready()
            a('s_cbranch_scc1 %s' % lp)
            a('s_branch %s' % l1)
        self.tail.append(tail)
    def set_flag(self, ex):
        a = self.a
        if not ((self.o['ib'] or self.o['ib2']) and ex == 0): a('s_mov_b32 %s, 0x%x' % (sInc, 1 << (24*ex)))
        a('s_atomic_add %s, s[24:25], %s' % (sInc, sF))
    def poll(self, ex, under=None):
        a = self.a; lp, ok = self.label('poll'), self.label('pollok')
        if under:
            a('s_mov_b32 %s, 0' % sRv)
            a('s_atomic_add %s, s[24:25], %s glc' % (sRv, sE))
            under()
            a('s_waitcnt lgkmcnt(0)')
            a('s_bitcmp1_b32 %s, %d' % (sRv, 4+24*ex))
            a('s_cbranch_scc1 %s' % ok)
        a('s_mov_b32 %s, 0' % sCnt)
        a(lp+':')
        a('s_mov_b32 %s, 0' % sRv)
        a('s_atomic_add %s, s[24:25], %s glc' % (sRv, sE))
        a('s_add_u32 %s, %s, 1' % (sCnt, sCnt))
        a('s_cmp_gt_u32 %s, 0x%x' % (sCnt, SPIN_MAX))
        a('s_waitcnt lgkmcnt(0)')
        a('s_cbranch_scc1 %s' % ok)
        if self.o['slp']:
            a('s_bitcmp1_b32 %s, %d' % (sRv, 4+24*ex))
            a('s_cbranch_scc1 %s' % ok)
            a('s_sleep %s' % self.o['slp'])
            a('s_branch %s' % lp)
        else:
            a('s_bitcmp0_b32 %s, %d' % (sRv, 4+24*ex))
            a('s_cbranch_scc1 %s' % lp)
        a(ok+':')
        if self.o['pbar']: a('s_barrier')
    def code_pf(self, name):
        a = self.a
        l = self.label('pc')
        a('s_getpc_b64 s[28:29]')
        a(l+':')
        a('s_sub_u32 s28, s28, %s-%s' % (l, name))
        a('s_subb_u32 s29, s29, 0')
        a('v_lshlrev_b32 %s, 5, v0' % v(V.O+6))
        a('global_load_dword %s, %s, s[28:29]' % (v(V.dummy), v(V.O+6)))

    def code_spf(self, name):
        a = self.a
        l = self.label('pc')
        a('s_getpc_b64 s[28:29]')
        a(l+':')
        a('s_sub_u32 s28, s28, %s-%s' % (l, name))
        a('s_subb_u32 s29, s29, 0')
        a('s_lshr_b32 %s, s2, 4' % sA)
        a('s_lshl3_add_u32 %s, %s, %s' % (sA, sA, sW))
        a('s_lshl_b32 %s, %s, 7' % (sA, sA))
        a('s_load_dword s94, s[28:29], %s' % sA)

    def ifelse(self, reg, val, feq, fne, eq_first=False):
        a = self.a; l0, l1 = self.label('ie'), self.label('iend')
        if eq_first:
            a('s_cmp_lg_u32 %s, %d' % (reg, val)); a('s_cbranch_scc1 %s' % l0)
            feq(); a('s_branch %s' % l1); a(l0+':'); fne()
        else:
            a('s_cmp_eq_u32 %s, %d' % (reg, val)); a('s_cbranch_scc1 %s' % l0)
            fne(); a('s_branch %s' % l1); a(l0+':'); feq()
        a(l1+':')
    def touch(self, rnd):
        a = self.a
        a('s_mov_b64 exec, 0')
        for k in range(7):
            a('s_cmp_eq_u32 %s, %d' % (sW, k)); a('s_cbranch_scc1 stub_%d' % (8*rnd+k))
        a('s_branch stub_%d' % (8*rnd+7))
        a('ret_%d:' % rnd)
        a('s_mov_b64 exec, -1')

    def cond(self, reg, val, f):
        a = self.a; l = self.label('c')
        a('s_cmp_lg_u32 %s, %d' % (reg, val)); a('s_cbranch_scc1 %s' % l)
        f()
        a(l+':')

    def build_one(self):
        a = self.a; o = self.o
        name = NAME + '_kernel'
        self.kernel_head(name); end = self.label('end')
        self.prologue1(end)
        wA, wB = o['wA'], o['wB']
        def wat(pos, rows=(0, 1, 2, 3)):
            f = lambda: [self.w_dma1(i) for i in rows]
            if wA == pos and wB == pos: f()
            elif wA == pos: self.cond(sP, 0, f)
            elif wB == pos: self.cond(sP, 1, f)
        self.wat = wat
        bd = int(o['bdelay'])
        if o['touch'] == 'pre': self.touch(0)
        self.mark('touched')
        a('s_waitcnt lgkmcnt(0)')
        self.mark('karg')
        if o['wsoff']:
            a('s_add_u32 s24, s24, 0x%x' % (int(o['wsoff']) << 20)); a('s_addc_u32 s25, s25, 0')
        gz = o['gz']
        g1 = o['g1']
        if g1: self.g1_probe(); self.g1_pre(); self.zero3(); a('s_mov_b32 %s, 0' % sRd)
        elif gz: self.gz_issue()
        elif o['ib']: self.probe_issue()
        elif o['ib3']: self.p2_probe_issue(); self.zero3(); a('s_mov_b32 %s, 0' % sRd)
        elif o['ib2']: self.p2_probe_issue(); self.zero_flags()
        else: self.zero_flags()
        misc = lambda: (self.srds(), self.calc_k0(), self.w_prep(), 0 if g1 else self.gz_flag_addrs() if gz else self.flag_addrs3() if o['ib3'] else self.flag_addrs(), self.misc_ib2() if o['ib2'] else 0)
        if wB == 'first':
            def fb():
                misc(); self.w_dma()
                if bd == 0: self.p1_issue()
            self.ifelse(sP, 1, fb, self.p1_issue)
        elif bd: self.cond(sP, 0, self.p1_issue)
        else: self.p1_issue()
        if o['ib']: self.probe_eval(); self.zero_flags_ib()
        if g1: self.spec_early(); self.g1_eval(); a('s_mov_b32 s22, 256'); a('s_mov_b32 s23, 0x20000'); a('v_mov_b32 %s, 0' % v(V.EL))
        if gz: self.gz_publish(); a('s_mov_b32 s22, 256'); a('s_mov_b32 s23, 0x20000')
        if o['touch'] == 'post': self.touch(0)
        if o['touch']: self.cond(sT, 0, lambda: self.touch(1))
        if o['ib2']:
            if o['r2']: self.p1_addrs(); self.gen_F16(); self.p2_probe_eval(); self.coop_init()
            else: self.p2_probe_eval(); self.p1_addrs(); self.gen_F16(); self.coop_init()
        else: self.p1_addrs(); self.gen_F16(); self.coop_init()
        if bd == 1: self.cond(sP, 1, self.p1_issue)
        self.gen_M2()
        if o['ib']: self.ex_addrs_ib(); self.set_ready_ib()
        elif gz: self.ex_addrs()
        elif g1: self.ex_addrs(); self.ready3()
        elif o['ib3']: self.ex_addrs_ib2(); self.ready3()
        elif o['ib2']: self.ex_addrs_ib2(); self.set_ready()
        else: self.ex_addrs(); self.set_ready()
        X = [misc, self.coop_gen, lambda: self.gen_B(True, False), lambda: (self.p2_addrs(), self.w_addr())]
        nearly = max(0, bd-2)
        def early():
            for f in X[(1 if wB == 'first' else 0):nearly]: f()
            self.p1_issue()
        if bd >= 2: self.cond(sP, 1, early)
        self.mark('w1')
        def Xat(k):
            if k < nearly or (k == 0 and wB == 'first'): self.cond(sP, 0, X[k])
            else: X[k]()
        if gz: self.p1_compute(0, self.gz_read, None, lambda: (self.gz_check(), self.spec_early()))
        elif g1:
            if wA in ('c1', 'w1', 'w1h'): misc()
            na = 0
            if wA == 'w1': self.g1_read(); self.w_dma(); na = 4
            if wA == 'w1h': self.g1_read(); self.w_dma1(0); self.w_dma1(1); na = 2
            self.g1na = na
            self.p1_compute(na, (lambda: self.g1_read()) if not na else None, (self.w_dma if wA == 'c1' else None), self.g1_use, self.p2_choice_read, self.g1_wait)
        elif o['ib3']:
            self.vote_read()
            self.p1_compute(0, lambda: (self.vote_use(), self.spec_early()), None, self.p2_choice_use, self.p2_choice_read)
        elif o['ib2']: self.p1_compute(0, self.spec_early, None, self.p2_choice_use, self.p2_choice_read)
        else:
            def h1():
                if o['tlb1']:
                    a('s_add_u32 %s, %s, 0x%x' % (sA, sEst, self.ubase(0)))
                    a('v_and_b32 %s, 3, %s' % (v(V.T), v(V.lane)))
                    a('v_lshl_add_u32 %s, %s, 15, %s' % (v(V.T), v(V.T), v(V.Est)))
                    a('buffer_load_dword %s, %s, %s, %s offen' % (v(V.dummy), v(V.T), SWS, sA))
            if o['tlb1']: h1()
            self.p1_compute(1 if o['tlb1'] else 0, self.spec_early)
        self.stamp()
        if not gz: self.ready_issue()
        if wA not in ('c1', 'w1', 'w1h'): Xat(0)
        n = 0
        if wA == 'postS1':
            assert wB == wA
            self.w_dma(); n = 4
        if wA == 'half':
            self.w_dma1(0); self.w_dma1(1); n = 2
        if g1: self.gz_flag_addrs()
        Xat(1)
        self.coop_post()
        self.mark('w2a')
        a('s_waitcnt vmcnt(%d) lgkmcnt(0)' % n)
        self.stamp()
        if not gz: self.ready_check()
        if o['ib']: self.flag_side()
        if o['ib3']: self.side3()
        self.mark('rdy')
        self.set_flag(0)
        if o['ib']: self.flag_side2()
        if o['ib3']: self.side3b()
        def under1():
            self.w_sload()
            if wA == 'postF': self.w_dma()
            if wA == 'half': self.w_dma1(2); self.w_dma1(3)
            if o['tlb2']:
                a('s_add_u32 %s, %s, 0x%x' % (sA, sEst, self.ubase(1)))
                a('v_and_b32 %s, 3, %s' % (v(V.T), v(V.lane)))
                a('v_lshl_add_u32 %s, %s, 15, %s' % (v(V.T), v(V.T), v(V.Est)))
                a('buffer_load_dword %s, %s, %s, %s offen' % (v(V.dummy), v(V.T), SWS, sA))
            Xat(2); self.B_dup()
            Xat(3)
            if o['wearly']:
                for rho in range(16): self.w_read(rho)
            self.w_special()
        self.poll(0, under1)
        self.stamp()
        if self.o.get('fine'):
            a('s_memrealtime s[%d:%d]' % (sTS+2*self.nts, sTS+2*self.nts+1)); self.nts += 1
            self.fstamp()
        if o['ib']: self.ld_addrs_ib()
        if o.get('da') == 'votes':
            a('s_bfe_u32 s60, %s, 0x100008' % sRv); a('s_bcnt1_i32_b32 s60, s60')
            a('s_cmp_eq_u32 %s, 0' % sCh2); a('s_sub_u32 s58, 16, s60'); a('s_cmp_eq_u32 %s, 0' % sCh2); a('s_cselect_b32 s60, s60, s58')
            if 'dw' in o: a('s_cmp_eq_u32 %s, %s' % (sW, o['dw'])); a('s_cselect_b32 s60, s60, 0')
            a('s_mul_i32 s60, s60, 25'); a('s_mov_b32 s58, 0')
        if o['ib2']: self.ld_addrs_ib2()
        self.p2_issue()
        if o['ib3']: self.side3c()
        elif o['ib2']: self.major_post()
        self.coop_wait(); self.coop_read()
        self.p2_addrs2()
        a('s_waitcnt vmcnt(4)')
        self.w_edge()
        if o['wearly']:
            self.cond(sSpec, 0, lambda: (a('s_waitcnt lgkmcnt(0)'), self.w_fix(0), self.w_fix(1)))
        self.p2_compute(None if o['wearly'] else True)
        self.stamp()
        if o['ib2'] and not o['ib3']: self.major_use2()
        self.gen_M3()
        self.mark('w3a')
        a('s_waitcnt vmcnt(0)')
        self.stamp()
        self.set_flag(1)
        self.poll(1, self.p3_addrs)
        self.stamp()
        self.p3_issue()
        self.p3_soff()
        self.p3_compute()
        if 'da' in o:
            self.stamp(); a('s_waitcnt vmcnt(0)'); self.stamp()
            lp = self.label('dg')
            a('s_waitcnt lgkmcnt(0)')
            if o.get('db') == 'wb':
                a('s_cmp_eq_u32 %s, 1' % sSpec); a('s_cselect_b32 s60, s58, s60')
            a('s_sub_u32 %s, s60, s58' % sA)
            if 'cyc' in o: a('s_lshr_b32 %s, %s, 2' % (sA, sA))
            else: a('s_lshl_b32 %s, %s, 2' % (sA, sA))
            if 'dt' in o:
                a('s_cmp_eq_u32 %s, %s' % (sT, o['dt'])); a('s_cselect_b32 %s, %s, 0' % (sA, sA))
            if 'dp' in o:
                a('s_cmp_eq_u32 %s, %s' % (sP, o['dp'])); a('s_cselect_b32 %s, %s, 0' % (sA, sA))
            a('s_add_u32 %s, %s, 3000' % (sA, sA))
            a(lp+':')
            a('s_memrealtime s[28:29]')
            a('s_waitcnt lgkmcnt(0)')
            a('s_sub_u32 %s, s28, s56' % sB)
            a('s_cmp_lt_u32 %s, %s' % (sB, sA))
            a('s_cbranch_scc1 %s' % lp)
        self.mark('end')
        if o['ts']:
            self.stamp(); a('s_waitcnt vmcnt(0)'); self.stamp()
            if 'diag' in o:
                i = int(o['diag']); lp = self.label('dg')
                a('s_waitcnt lgkmcnt(0)')
                if 'xw' in o:
                    a('s_getreg_b32 %s, hwreg(HW_REG_XCC_ID, 0, 4)' % sA)
                    a('s_sub_u32 %s, %s, s2' % (sA, sA)); a('s_and_b32 %s, %s, 7' % (sA, sA)); a('s_mul_i32 %s, %s, 400' % (sA, sA))
                    if int(o['xw']) >= 0:
                        a('s_cmp_eq_u32 s2, %s' % o['xw']); a('s_cselect_b32 %s, %s, 0' % (sA, sA))
                else:
                    a('s_sub_u32 %s, s%d, s%d' % (sA, sTS+2*i, sTS+2*int(o.get('dj', 0))))
                    a('s_lshl_b32 %s, %s, 2' % (sA, sA))
                    if 'dp' in o:
                        a('s_cmp_eq_u32 %s, %s' % (sP, o['dp'])); a('s_cselect_b32 %s, %s, 0' % (sA, sA))
                a('s_add_u32 %s, %s, 3000' % (sA, sA))
                a(lp+':')
                a('s_memrealtime s[28:29]')
                a('s_waitcnt lgkmcnt(0)')
                a('s_sub_u32 %s, s28, s%d' % (sB, sTS))
                a('s_cmp_lt_u32 %s, %s' % (sB, sA))
                a('s_cbranch_scc1 %s' % lp)
            else:
                if o['ib'] or o['gz'] or o['ib2'] or o['g1']: self.nts += 1
                self.dump_stamps(0)
        a(end+':'); a('s_endpgm'); self.flush_tail()
        if o['touch']: self.insert_stubs(name)
        a.raw('.fill (%s+16384-.)/4, 4, 0xbf810000' % name)
        launch = '; @launch grid=(256,1,1) block=(512,1,1) lds=%d\n' % LDS_TOTAL
        return self.finish(launch, [name])

    def insert_stubs(self, name):
        import subprocess, re
        from asmlib import Ins
        a = self.a
        txt = '.amdgcn_target "amdgcn-amd-amdhsa--gfx950"\n.text\n' + a.text() + ''.join('stub_%d:\n' % k for k in range(16)) + 's_endpgm\nspec_tab:\n'
        open('pass1.s', 'w').write(txt)
        subprocess.check_call(['clang', '-x', 'assembler', '-target', 'amdgcn-amd-amdhsa', '-mcpu=gfx950', '-c', 'pass1.s', '-o', 'pass1.o'])
        dis = subprocess.check_output(['llvm-objdump', '-d', '--mcpu=gfx950', 'pass1.o']).decode()
        addrs = [int(m.group(1), 16) for m in re.finditer(r'// ([0-9A-F]{12}):', dis)]
        real = [i for i, x in enumerate(a.ins) if x.kind != 'none']
        assert len(addrs) == len(real) + 1, (len(addrs), len(real))
        size = {real[k]: addrs[k+1] - addrs[k] for k in range(len(real))}
        pos = ENTRY_OFF; nxt = ENTRY_OFF + 1024 - 256
        nxt = (nxt + 1023)//1024*1024
        out = []; k = 0; prev = None; ez = False
        for i, x in enumerate(a.ins):
            if i in size:
                glued = prev is not None and (prev.op == 's_getpc_b64' or 'rel32' in x.text)
                if prev is not None and prev.text.strip() == 's_mov_b64 exec, 0': ez = True
                if prev is not None and prev.text.strip() == 's_mov_b64 exec, -1': ez = False
                glued = glued or ez
                if pos >= nxt and k < 16 and not glued:
                    out.append(Ins('stub_%d:' % k)); out.append(Ins('s_cbranch_execz ret_%d' % (k >> 3)))
                    pos += 4; k += 1; nxt += 1024
                pos += size[i]; prev = x
            out.append(x)
        self.code_end = pos
        while k < 16:
            out.append(Ins('stub_%d:' % k)); out.append(Ins('s_branch ret_%d' % (k >> 3))); k += 1
        a.ins = out

    def finish(self, launch, names):
        hdr = '; GFNet spectral filter (two heads): 2-D FFT via bf16 MFMA DFT stages. Generated by dev/gen.py\n' + launch
        s = hdr + '.amdgcn_target "amdgcn-amd-amdhsa--gfx950"\n.text\n' + self.a.text()
        s += '.section .rodata,"a"\n' + '\n'.join(self.kd(n) for n in names) + '\n' + self.spec_table() + '\n'
        return s

if __name__ == '__main__':
    mode = sys.argv[1]; out = sys.argv[2]
    opt = {}
    for kv in sys.argv[3:]:
        k, x = kv.split('=')
        opt[k] = {'True': True, 'False': False}.get(x, x.replace('+', ' '))
    g = Gen(mode, **opt)
    s = g.build_three() if mode == 'three' else g.build_one()
    assert g.a.verify() == 0
    open(out, 'w').write(s)
    print('vgprs', NVGPR, 'lds', LDS_TOTAL, 'nops', g.a.nops, 'lines', len(g.a.ins))
```

```python
import sys, struct, math
import numpy as np
from asmlib import Asm

NAME = 'concat_heads__spectral_gfnet__spectral_gfnet__prompt'

def f2u(x): return struct.unpack('<I', struct.pack('<f', x))[0]
def lit(x): return '0x%08x' % f2u(x)
def bf16bits(x):
    u = f2u(float(x)); return ((u + 0x7FFF + ((u >> 16) & 1)) >> 16) & 0xFFFF
def sigma(m): return (m & 1) | ((m >> 1) & 1) << 3 | ((m >> 2) & 1) << 1 | ((m >> 3) & 1) << 2 | (m & 16)

S11 = 2.0**-11
SPIN_MAX = 0x4000
ENTRY_OFF = 0x300
SENT = 0x13572468
WS_FLAG_IB = 32 << 20
WS_FLAG2 = 33 << 20
PW = 7
sCh2 = 's100'
R0 = 0
R1 = 33024
WL = 66048
SCR = WL + 8*4*1056
SCR_B = SCR + 36*256
TABL = SCR_B + 8192
CNT = TABL + 16384
LDS_TOTAL = CNT + 64
WS_U1 = 0
WS_U2 = 8 << 20
WS_FLAG = 32 << 20
WS_TS = 72 << 20
WS_SIZE = 80 << 20

class V: pass
_n = [0]
def alloc(n, align=1):
    b = (_n[0] + align - 1)//align*align
    _n[0] = b + n
    return b
V.tid = alloc(1); V.lane = alloc(1)
for nm in 'g n Xoff Est X0w X0r0 X0r1 X1w X1r X2w X2r WP WM l16 dummy dummy2'.split(): setattr(V, nm, alloc(1))
V.Ooff, V.X3w0, V.X3w1, V.X3r = V.Xoff, V.X0w, V.X0r0, V.X0r1
V.T = alloc(10, 1)
V.EL = alloc(4); V.Eld = V.EL+3; V.Eld0 = V.EL+3
V.O = alloc(16, 4)
V.DA = alloc(32, 4)
V.DB = alloc(32, 4)
V.L = V.DB
V.F16 = alloc(8, 4)
V.M2 = alloc(16, 4)
V.F32 = alloc(32, 4)
V.TW = alloc(32, 4)
V.W = alloc(32, 4)
V.B = alloc(12, 4)
V.Bp = alloc(8, 4)
V.WF = alloc(4)
NVGPR = _n[0]
assert NVGPR <= 256, NVGPR
def v(i): return 'v%d' % i
def vr(i, n): return 'v[%d:%d]' % (i, i+n-1)

SX, SWR, SWI, SOUT, SDBG, SWS = 's[4:7]', 's[8:11]', 's[12:15]', 's[16:19]', 's[20:23]', 's[24:27]'
sP, sT, sW, sSB, sCB, sK0 = 's30', 's31', 's32', 's33', 's34', 's35'
sKP, sKM = 's36', 's37'
sA, sB, sC, sD, sE, sF = 's40', 's41', 's42', 's43', 's44', 's45'
sEst, sEld, sCnt, sSpec = 's46', 's47', 's48', 's49'
sO = ['s52', 's53', 's54', 's55']
sRd, sRv, sInc, sWL = 's38', 's39', 's50', 's51'
ZT = 16
sDP, sDM, sZ, sZp, sCh = 's96', 's97', 's98', 's99', 's95'
sTS = 56

class Gen:
    def __init__(self, mode='one', **opt):
        self.mode = mode
        self.o = dict(ldx='', ldw='', st1='sc1', st2='sc1', sto='sc1', ld1='sc1', ld2='sc1', ts=False, stagger=True, pf=False, spf=False, touch='pre', fst='sc1', fld='sc1', slp='', fsh='', pbar=False, shear=True, prio=True, wA='postX1', wB='postX1', bdelay='4', optx=False, numa='', fl='', ib=False, wsoff='', tlb1=False, tlb2=False, ib2=False, g1=False, wearly=False, nb='6', pthr='2', pop='load_dword', pbase='0', r2=False, novr=False, ib3=False, pnop='15', gz=False, force='', skew=True, fstride=12)
        self.o.update(opt)
        self.a = Asm()
        self.lab = 0
        self.nts = 0
        self.tail = []

    def tstride(self): return 65536 if (self.o['numa'] != '' or self.o['ib'] or self.o['ib2']) else 32768
    def ubase(self, ex): return (ex << 24) if self.o['ib2'] else (ex << 20) if self.o['ib'] else (WS_U2 if ex else WS_U1)
    def eld(self, q, ex=0): return v(V.T+2+q) if (self.o['ib2'] and ex == 0) else v(V.EL+q) if self.o['ib'] else v(V.Eld)
    def est(self): return sZp if self.o['ib2'] else sEst
    def label(self, p='L'):
        self.lab += 1
        return '%s_%d' % (p, self.lab)

    def stamp(self):
        if 'da' in self.o:
            self.sid = getattr(self, 'sid', -1) + 1
            self.mark('s%d' % self.sid); return
        if not self.o['ts'] or self.o.get('fine') or self.o.get('clk'): return
        self.a('s_memrealtime s[%d:%d]' % (sTS+2*self.nts, sTS+2*self.nts+1))
        self.nts += 1

    def clk(self):
        if not self.o.get('clk'): return
        for op in ('s_memrealtime', 's_memtime'):
            self.a('%s s[%d:%d]' % (op, sTS+2*self.nts, sTS+2*self.nts+1)); self.nts += 1
        self.a('s_waitcnt lgkmcnt(0)')
    def mark(self, nm):
        if nm in ('w1', 'g1a', 'x1', 'x2', 'w3a', 'end'): self.clk()
        for key, reg in (('da', 58), ('db', 60)):
            if self.o.get(key) == nm: self.a('%s s[%d:%d]' % ('s_memtime' if 'cyc' in self.o else 's_memrealtime', reg, reg+1))
    def fstamp(self):
        if not self.o.get('fine'): return
        self.a('s_memtime s[%d:%d]' % (sTS+2*self.nts, sTS+2*self.nts+1))
        self.nts += 1

    def dump_stamps(self, slot0=0):
        if not self.o['ts']: return
        a = self.a
        a('s_waitcnt lgkmcnt(0)')
        a('s_lshl_b32 %s, s2, 3' % sA); a('s_add_u32 %s, %s, %s' % (sA, sA, sW)); a('s_lshl_b32 %s, %s, 7' % (sA, sA))
        a('s_add_u32 %s, %s, 0x%x' % (sA, sA, WS_TS + slot0*4))
        a('s_mov_b64 exec, 1')
        a('v_mov_b32 %s, 0' % v(V.T+1))
        for i in range(self.nts):
            a('v_mov_b32 %s, s%d' % (v(V.T), sTS+2*i))
            a('buffer_store_dword %s, %s, %s, %s offen offset:%d' % (v(V.T), v(V.T+1), SWS, sA, 4*i))
            a('s_nop 1')
        a('s_mov_b64 exec, -1')
        self.nts = 0

    def prologue(self, end):
        a = self.a
        a('s_cmp_ge_u32 s2, 0x100')
        a('s_cbranch_scc1 %s' % end)
        self.stamp()
        a('s_bfe_u32 %s, s2, 0x10003' % sP)
        a('s_mul_i32 s3, %s, 24' % sP)
        a('s_add_u32 s28, s0, s3')
        a('s_addc_u32 s29, s1, 0')
        a('s_load_dwordx2 s[4:5], s[28:29], 0x0')
        a('s_load_dwordx2 s[8:9], s[28:29], 0x8')
        a('s_load_dwordx2 s[12:13], s[28:29], 0x10')
        a('s_load_dwordx2 s[16:17], s[0:1], 0x30')
        a('s_load_dwordx2 s[20:21], s[0:1], 0x38')
        a('s_load_dwordx2 s[24:25], s[0:1], 0x40')
        a('v_lshrrev_b32 %s, 6, v0' % v(V.T))
        a('v_and_b32 %s, 63, v0' % v(V.lane))
        a('v_readfirstlane_b32 %s, %s' % (sW, v(V.T)))
        a('s_and_b32 %s, s2, 7' % sA)
        a('s_xor_b32 %s, %s, 2' % (sA, sA))
        a('s_lshl_b32 %s, %s, 4' % (sT, sA))
        a('s_lshr_b32 %s, s2, 4' % sB)
        a('s_or_b32 %s, %s, %s' % (sT, sT, sB))
        a('s_lshl_b32 %s, %s, 1' % (sCB, sA))
        a('s_bfe_u32 %s, %s, 0x10001' % (sC, sB))
        a('s_or_b32 %s, %s, %s' % (sCB, sCB, sC))
        a('s_bfe_u32 %s, %s, 0x20002' % (sSB, sB))
        a('s_lshl_b32 %s, %s, 1' % (sSB, sSB))
        a('s_and_b32 %s, %s, 1' % (sC, sB))
        a('s_or_b32 %s, %s, %s' % (sSB, sSB, sC))
        a('s_mov_b32 s6, 0x400000'); a('s_mov_b32 s7, 0x20000')
        a('s_mov_b32 s10, 2101248'); a('s_mov_b32 s11, 0x20000')
        a('s_mov_b32 s14, 2101248'); a('s_mov_b32 s15, 0x20000')
        a('s_mov_b32 s18, 0x800000'); a('s_mov_b32 s19, 0x20000')
        a('s_mov_b32 s22, 256'); a('s_mov_b32 s23, 0x20000')
        a('s_mov_b32 s26, 0x%x' % WS_SIZE); a('s_mov_b32 s27, 0x20000')
        a('v_lshrrev_b32 %s, 4, %s' % (v(V.g), v(V.lane)))
        a('v_and_b32 %s, 15, %s' % (v(V.n), v(V.lane)))
        a('v_lshlrev_b32 %s, 4, %s' % (v(V.l16), v(V.lane)))

    def prologue1(self, end):
        a = self.a; T = V.T
        a('s_cmp_ge_u32 s2, 0x100')
        a('s_cbranch_scc1 %s' % end)
        if 'da' in self.o: a('s_memrealtime s[56:57]'); self.mark('start')
        a('s_bfe_u32 %s, s2, 0x%x' % (sP, 0x10002 if self.o['optx'] else 0x10003))
        a('s_mul_i32 s3, %s, 24' % sP)
        a('s_load_dwordx2 s[4:5], s[0:1], s3')
        a('s_load_dwordx2 s[24:25], s[0:1], 0x40')
        a('s_load_dwordx2 s[8:9], s[0:1], s3 offset:8')
        a('s_load_dwordx2 s[12:13], s[0:1], s3 offset:16')
        a('s_load_dwordx2 s[16:17], s[0:1], 0x30')
        a('s_load_dwordx2 s[20:21], s[0:1], 0x38')
        self.stamp()
        a('v_lshrrev_b32 %s, 6, v0' % v(T))
        a('v_and_b32 %s, 63, v0' % v(V.lane))
        a('v_readfirstlane_b32 %s, %s' % (sW, v(T)))
        if self.o['optx']:
            a('s_and_b32 %s, s2, 3' % sA)
            a('s_bfe_u32 %s, s2, 0x10003' % sB)
            a('s_lshl1_add_u32 %s, %s, %s' % (sA, sA, sB))
        else: a('s_and_b32 %s, s2, 7' % sA)
        a('s_lshr_b32 %s, s2, 4' % sB)
        a('s_lshl4_add_u32 %s, %s, %s' % (sT, sA, sB))
        a('s_bfe_u32 %s, %s, 0x10001' % (sC, sB))
        a('s_lshl1_add_u32 %s, %s, %s' % (sCB, sA, sC))
        a('s_lshr_b32 %s, %s, 2' % (sSB, sB))
        a('s_and_b32 %s, %s, 1' % (sC, sB))
        a('s_lshl1_add_u32 %s, %s, %s' % (sSB, sSB, sC))
        a('s_mov_b32 s6, 0x400000'); a('s_mov_b32 s7, 0x20000')
        a('v_lshrrev_b32 %s, 4, %s' % (v(V.g), v(V.lane)))
        a('v_lshlrev_b32 %s, 4, %s' % (v(V.l16), v(V.lane)))
        a('v_and_b32 %s, 8, v0' % v(T))
        a('v_lshlrev_b32 %s, 11, %s' % (v(T), v(T)))
        a('v_lshl_add_u32 %s, %s, 20, %s' % (v(T), v(V.g), v(T)))
        a('v_and_b32 %s, 0x70, %s' % (v(T+1), v(V.l16)))
        a('v_add_u32 %s, %s, %s' % (v(V.Xoff), v(T), v(T+1)))
        a('s_lshl4_add_u32 %s, %s, %s' % (sA, sW, sSB))
        a('s_lshl4_add_u32 %s, %s, %s' % (sA, sA, sCB))
        a('s_lshl_b32 %s, %s, 7' % (sO[0], sA))
        for r in range(1, 4): a('s_add_u32 %s, %s, 0x%x' % (sO[r], sO[0], r*262144))
        a('v_and_b32 %s, 15, %s' % (v(V.n), v(V.lane)))
        a('s_mov_b32 s26, 0x%x' % WS_SIZE); a('s_mov_b32 s27, 0x20000')
        a('s_lshl_b32 %s, %s, 7' % (sRd, sP))
    def srds(self):
        a = self.a
        a('s_mov_b32 s10, 2101248'); a('s_mov_b32 s11, 0x20000')
        a('s_mov_b32 s14, 2101248'); a('s_mov_b32 s15, 0x20000')
        a('s_mov_b32 s18, 0x800000'); a('s_mov_b32 s19, 0x20000')
        a('s_mov_b32 s22, 256'); a('s_mov_b32 s23, 0x20000')

    def probe_issue(self):
        a = self.a
        a('s_lshl3_add_u32 %s, %s, %s' % (sEst, sP, sW)); a('s_lshl_b32 %s, %s, 21' % (sEst, sEst))
        a('s_and_b32 %s, %s, 0x60' % (sA, sT)); a('s_add_u32 %s, %s, %s' % (sA, sA, sT)); a('s_lshl_b32 %s, %s, 8' % (sA, sA))
        a('s_add_u32 %s, %s, %s' % (sA, sA, sEst))
        for i in range(8): a('s_mov_b32 s%d, 0x%x' % (84+i, SENT))
        for k, side in ((0, 0), (0, 1), (1, 1), (1, 0), (2, 1), (2, 0), (3, 0), (3, 1)):
            a('s_load_dword s%d, s[24:25], %s offset:0x%x glc' % (84+4*side+k, sA, k*65536+side*8192))
    def probe_eval(self):
        a = self.a
        a('s_mov_b32 %s, 0' % sA); a('s_mov_b32 %s, 0' % sB)
        a('s_waitcnt lgkmcnt(4)')
        for k in range(4):
            a('s_cmp_lg_u32 s%d, 0x%x' % (84+k, SENT)); a('s_addc_u32 %s, %s, 0' % (sA, sA))
            a('s_cmp_lg_u32 s%d, 0x%x' % (88+k, SENT)); a('s_addc_u32 %s, %s, 0' % (sB, sB))
        a('s_cmp_gt_u32 %s, %s' % (sB, sA))
        a('s_cselect_b32 %s, 1, 0' % sCh)
        if self.o['force'] != '':
            a('s_and_b32 %s, %s, 1' % (sC, sW)); a('s_xor_b32 %s, %s, %s' % (sC, sC, sP)); a('s_xor_b32 %s, %s, %s' % (sCh, sC, self.o['force']))
        if self.o['ts']:
            a('s_lshl4_add_u32 s%d, %s, %s' % (sTS+24, sA, sB))
    def ex_addrs_ib(self):
        a = self.a; T = V.T
        a('s_lshl_b32 %s, %s, 4' % (sB, sW)); a('s_xor_b32 %s, %s, %s' % (sB, sB, sT)); a('s_lshl_b32 %s, %s, 8' % (sB, sB))
        a('v_lshlrev_b32 %s, 4, %s' % (v(T), v(V.n)))
        a('v_lshl_add_u32 %s, %s, 10, %s' % (v(T), v(V.g), v(T)))
        a('v_xor_b32 %s, %s, %s' % (v(T), sB, v(T)))
        a('v_and_b32 %s, 0x6000, %s' % (v(T+1), v(T)))
        a('v_add_u32 %s, %s, %s' % (v(T), v(T), v(T+1)))
        a('v_lshl_add_u32 %s, %s, 18, %s' % (v(V.Est), v(V.g), v(T)))
        a('v_and_b32 %s, 0xdcff, %s' % (v(V.Eld), v(T)))
        a('s_lshl_b32 %s, %s, 13' % (sA, sCh)); a('s_add_u32 %s, %s, %s' % (sEst, sEst, sA))
        a('s_lshr_b32 %s, %s, 4' % (sA, sT)); a('s_lshl3_add_u32 %s, %s, %s' % (sA, sP, sA)); a('s_lshl_b32 %s, %s, 21' % (sA, sA))
        a('s_and_b32 %s, %s, 15' % (sEld, sT)); a('s_lshl_b32 %s, %s, 16' % (sEld, sEld)); a('s_add_u32 %s, %s, %s' % (sEld, sEld, sA))
    def ld_addrs_ib(self):
        a = self.a; T = V.T
        a('v_lshrrev_b32 %s, %s, %s' % (v(T), v(V.dummy), sRv))
        for q in range(4):
            a('v_bfe_u32 %s, %s, %d, 1' % (v(T+1), v(T), q))
            a('v_lshl_add_u32 %s, %s, 13, %s' % (v(V.EL+q), v(T+1), v(V.Eld)))

    def ex_addrs(self):
        a = self.a
        if self.o['skew']:
            T = V.T
            a('s_lshl_b32 %s, %s, 4' % (sB, sW)); a('s_xor_b32 %s, %s, %s' % (sB, sB, sT)); a('s_lshl_b32 %s, %s, 8' % (sB, sB))
            a('v_lshlrev_b32 %s, 4, %s' % (v(T), v(V.n)))
            a('v_lshl_add_u32 %s, %s, 10, %s' % (v(T), v(V.g), v(T)))
            a('v_xor_b32 %s, %s, %s' % (v(T), sB, v(T)))
            if self.o['numa'] != '':
                pol = int(self.o['numa'][1]); mode = self.o['numa'][0]
                if mode == 'p':
                    a('v_and_b32 %s, 0x6000, %s' % (v(T+1), v(T)))
                    a('v_add_u32 %s, %s, %s' % (v(T), v(T), v(T+1)))
                    a('v_lshl_add_u32 %s, %s, 18, %s' % (v(V.Est), v(V.g), v(T)))
                    a('v_and_b32 %s, 0xdcff, %s' % (v(V.Eld), v(T)))
                    a('s_lshr_b32 %s, %s, 1' % (sA, sW)); a('s_lshr_b32 %s, %s, 6' % (sD, sT)); a('s_xor_b32 %s, %s, %s' % (sA, sA, sD))
                    a('s_lshr_b32 %s, %s, 5' % (sC, sT)); a('s_lshr_b32 %s, %s, 2' % (sD, sW)); a('s_xor_b32 %s, %s, %s' % (sC, sC, sD))
                    if pol: a('s_xor_b32 %s, %s, 1' % (sA, sA)); a('s_xor_b32 %s, %s, 1' % (sC, sC))
                    a('s_and_b32 %s, %s, 1' % (sA, sA)); a('s_and_b32 %s, %s, 1' % (sC, sC))
                    a('s_lshl_b32 %s, %s, 13' % (sA, sA)); a('s_lshl_b32 %s, %s, 13' % (sC, sC))
                    a('s_lshl_b32 %s, %s, 25' % (sD, sP)); a('s_add_u32 %s, %s, %s' % (sA, sA, sD)); a('s_add_u32 %s, %s, %s' % (sC, sC, sD))
                    a('s_lshl_b32 %s, %s, 20' % (sEst, sW)); a('s_add_u32 %s, %s, %s' % (sEst, sEst, sA))
                    a('s_lshl_b32 %s, %s, 16' % (sEld, sT)); a('s_add_u32 %s, %s, %s' % (sEld, sEld, sC))
                    return
                a('v_and_b32 %s, 0x6000, %s' % (v(T+1), v(T)))
                a('v_add_u32 %s, %s, %s' % (v(T), v(T), v(T+1)))
                a('v_lshl_add_u32 %s, %s, 18, %s' % (v(V.Est), v(V.g), v(T)))
                a('v_and_b32 %s, 0xdcff, %s' % (v(V.Eld), v(T)))
                if mode == 'x':
                    a('s_bfe_u32 %s, %s, 0x10001' % (sA, sW)); a('s_xor_b32 %s, %s, %s' % (sA, sA, sP))
                    a('s_bfe_u32 %s, %s, 0x10005' % (sC, sT)); a('s_xor_b32 %s, %s, %s' % (sC, sC, sP))
                    if pol: a('s_xor_b32 %s, %s, 1' % (sA, sA)); a('s_xor_b32 %s, %s, 1' % (sC, sC))
                    a('s_lshl_b32 %s, %s, 13' % (sA, sA)); a('s_lshl_b32 %s, %s, 13' % (sC, sC))
                    a('s_lshl_b32 %s, %s, 20' % (sEst, sW)); a('s_add_u32 %s, %s, %s' % (sEst, sEst, sA))
                    a('s_lshl_b32 %s, %s, 16' % (sEld, sT)); a('s_add_u32 %s, %s, %s' % (sEld, sEld, sC))
                else:
                    a('s_lshr_b32 %s, %s, 1' % (sA, sW)); a('s_lshr_b32 %s, %s, 2' % (sD, sW)); a('s_xor_b32 %s, %s, %s' % (sA, sA, sD))
                    a('s_lshr_b32 %s, %s, 5' % (sC, sT)); a('s_lshr_b32 %s, %s, 6' % (sD, sT)); a('s_xor_b32 %s, %s, %s' % (sC, sC, sD))
                    if pol: a('s_xor_b32 %s, %s, 1' % (sA, sA)); a('s_xor_b32 %s, %s, 1' % (sC, sC))
                    a('s_and_b32 %s, %s, 1' % (sA, sA)); a('s_and_b32 %s, %s, 1' % (sC, sC))
                    a('s_lshl_b32 %s, %s, 13' % (sA, sA)); a('s_lshl_b32 %s, %s, 13' % (sC, sC))
                    a('s_lshl_b32 %s, %s, 22' % (sD, sP)); a('s_add_u32 %s, %s, %s' % (sA, sA, sD)); a('s_add_u32 %s, %s, %s' % (sC, sC, sD))
                    a('s_and_b32 %s, %s, 3' % (sEst, sW)); a('s_lshl_b32 %s, %s, 20' % (sEst, sEst)); a('s_add_u32 %s, %s, %s' % (sEst, sEst, sA))
                    a('s_and_b32 %s, %s, 63' % (sEld, sT)); a('s_lshl_b32 %s, %s, 16' % (sEld, sEld)); a('s_add_u32 %s, %s, %s' % (sEld, sEld, sC))
                return
            a('v_lshl_add_u32 %s, %s, 17, %s' % (v(V.Est), v(V.g), v(T)))
            a('v_and_b32 %s, 0x7cff, %s' % (v(V.Eld), v(T)))
            a('s_lshl_b32 %s, %s, 22' % (sA, sP))
            a('s_lshl_b32 %s, %s, 19' % (sEst, sW)); a('s_add_u32 %s, %s, %s' % (sEst, sEst, sA))
            a('s_lshl_b32 %s, %s, 15' % (sEld, sT)); a('s_add_u32 %s, %s, %s' % (sEld, sEld, sA))
            return
        a('v_lshlrev_b32 %s, 4, %s' % (v(V.T), v(V.n)))
        a('v_lshl_add_u32 %s, %s, 17, %s' % (v(V.Est), v(V.g), v(V.T)))
        a('v_lshl_add_u32 %s, %s, 10, %s' % (v(V.Eld), v(V.g), v(V.T)))
        a('s_lshl_b32 %s, %s, 22' % (sA, sP))
        a('s_lshl_b32 %s, %s, 19' % (sEst, sW)); a('s_add_u32 %s, %s, %s' % (sEst, sEst, sA))
        a('s_lshl_b32 %s, %s, 8' % (sB, sT)); a('s_add_u32 %s, %s, %s' % (sEst, sEst, sB))
        a('s_lshl_b32 %s, %s, 15' % (sEld, sT)); a('s_add_u32 %s, %s, %s' % (sEld, sEld, sA))
        a('s_lshl_b32 %s, %s, 12' % (sB, sW)); a('s_add_u32 %s, %s, %s' % (sEld, sEld, sB))

    def trig(self, x, re, im, conj_re=None, conj_im=None):
        a = self.a; c, s = V.T+8, V.T+9
        a('v_cos_f32 %s, %s' % (v(c), v(x)))
        a('v_sin_f32 %s, %s' % (v(s), v(x)))
        a('v_cvt_pk_bf16_f32 %s, %s, %s' % (v(re), v(c), v(s)))
        a('v_cvt_pk_bf16_f32 %s, -%s, %s' % (v(im), v(s), v(c)))
        if conj_re is not None:
            a('v_cvt_pk_bf16_f32 %s, %s, -%s' % (v(conj_re), v(c), v(s)))
            a('v_cvt_pk_bf16_f32 %s, %s, %s' % (v(conj_im), v(s), v(c)))

    def gen_F16(self):
        a = self.a; T = V.T
        a('v_cvt_f32_u32 %s, %s' % (v(T), v(V.n)))
        a('v_mul_f32 %s, %s, %s' % (v(T), lit(1/16), v(T)))
        a('v_cvt_f32_u32 %s, %s' % (v(T+1), v(V.g)))
        a('v_mul_f32 %s, 4.0, %s' % (v(T+1), v(T+1)))
        a('v_mul_f32 %s, %s, %s' % (v(T+2), v(T), v(T+1)))
        for r in range(4):
            self.trig(T+2, V.F16+r, V.F16+4+r)
            if r < 3: a('v_add_f32 %s, %s, %s' % (v(T+2), v(T+2), v(T)))

    def gen_M2(self):
        a = self.a; T = V.T
        a('v_cvt_f32_u32 %s, %s' % (v(T+1), v(V.g)))
        a('v_mul_f32 %s, 4.0, %s' % (v(T+1), v(T+1)))
        def normal():
            a('v_lshl_add_u32 %s, %s, 4, %s' % (v(T), v(V.n), sW))
            a('v_cvt_f32_u32 %s, %s' % (v(T), v(T)))
            a('v_mul_f32 %s, %s, %s' % (v(T), lit(1/256), v(T)))
            a('v_mul_f32 %s, %s, %s' % (v(T+2), v(T), v(T+1)))
            for r in range(4):
                self.trig(T+2, V.M2+r, V.M2+4+r, V.M2+8+r, V.M2+12+r)
                if r < 3: a('v_add_f32 %s, %s, %s' % (v(T+2), v(T+2), v(T)))
        def w0():
            a('v_lshrrev_b32 %s, 1, %s' % (v(T), v(V.n)))
            a('v_cvt_f32_u32 %s, %s' % (v(T), v(T)))
            a('v_lshlrev_b32 %s, 31, %s' % (v(T+3), v(V.n)))
            a('v_add_f32 %s, 0.5, %s' % (v(T+4), v(T)))
            a('v_xor_b32 %s, %s, %s' % (v(T+3), lit(1/16), v(T+3)))
            a('v_mul_f32 %s, %s, %s' % (v(T), v(T), v(T+3)))
            a('v_mul_f32 %s, %s, %s' % (v(T+4), v(T+4), v(T+3)))
            a('v_cmp_ne_u32 vcc, 1, %s' % v(V.n))
            a('v_cndmask_b32 %s, 0.5, %s, vcc' % (v(T), v(T)))
            for ts in range(2):
                d = T+4*ts
                a('v_mul_f32 %s, %s, %s' % (v(T+2), v(d), v(T+1)))
                for r in range(4):
                    self.trig(T+2, V.M2+8*ts+r, V.M2+8*ts+4+r)
                    if r < 3: a('v_add_f32 %s, %s, %s' % (v(T+2), v(T+2), v(d)))
        self.ifelse(sW, 0, w0, normal)

    def gen_M3(self):
        a = self.a; T = V.T
        a('v_cvt_f32_u32 %s, %s' % (v(T), v(V.n)))
        a('v_mul_f32 %s, %s, %s' % (v(T+1), lit(1/256), v(T)))
        a('v_mul_f32 %s, %s, %s' % (v(T), lit(1/16), v(T)))
        def normal():
            a('v_lshl_add_u32 %s, %s, 6, %s' % (v(T+2), v(V.g), sW))
            a('v_cvt_f32_u32 %s, %s' % (v(T+2), v(T+2)))
            a('v_mul_f32 %s, %s, %s' % (v(T+2), v(T+2), v(T+1)))
            for r in range(4):
                self.trig(T+2, V.M2+r, V.M2+4+r, V.M2+8+r, V.M2+12+r)
                if r < 3: a('v_add_f32 %s, %s, %s' % (v(T+2), v(T+2), v(T)))
        def w0():
            for ts in range(2):
                a('v_lshlrev_b32 %s, 5, %s' % (v(T+2), v(V.g)))
                if ts: a('v_add_u32 %s, 8, %s' % (v(T+2), v(T+2)))
                a('v_cvt_f32_u32 %s, %s' % (v(T+2), v(T+2)))
                a('v_mul_f32 %s, %s, %s' % (v(T+2), v(T+2), v(T+1)))
                for eb in range(2):
                    b = V.M2+8*ts
                    self.trig(T+2, b+2*eb, b+4+2*eb, b+2*eb+1, b+4+2*eb+1)
                    if eb == 0: a('v_add_f32 %s, %s, %s' % (v(T+2), v(T+2), v(T)))
            a('s_mov_b64 exec, 0xffff')
            a('v_lshlrev_b32 %s, 15, %s' % (v(T+2), v(V.n)))
            a('v_and_b32 %s, 0x8000, %s' % (v(T+2), v(T+2)))
            a('v_or_b32 %s, 0x3f80, %s' % (v(V.M2+1), v(T+2)))
            a('v_lshlrev_b32 %s, 16, %s' % (v(V.M2+5), v(V.M2+1)))
            a('s_mov_b64 exec, -1')
        self.ifelse(sW, 0, w0, normal)

    def sigma_lane(self, dst):
        a = self.a; T = V.T
        a('v_and_b32 %s, 17, %s' % (v(dst), v(V.lane)))
        a('v_bfe_u32 %s, %s, 2, 2' % (v(T+7), v(V.lane)))
        a('v_lshl_add_u32 %s, %s, 1, %s' % (v(dst), v(T+7), v(dst)))
        a('v_bfe_u32 %s, %s, 1, 1' % (v(T+7), v(V.lane)))
        a('v_lshl_add_u32 %s, %s, 3, %s' % (v(dst), v(T+7), v(dst)))

    def gen_F32TW(self):
        a = self.a; T = V.T
        self.sigma_lane(T)
        a('v_cvt_f32_u32 %s, %s' % (v(T), v(T)))
        a('v_mul_f32 %s, %s, %s' % (v(T), lit(1/1024), v(T)))
        a('v_lshrrev_b32 %s, 5, %s' % (v(T+1), v(V.lane)))
        a('v_cvt_f32_u32 %s, %s' % (v(T+1), v(T+1)))
        a('v_add_f32 %s, %s, %s' % (v(T+1), v(T+1), v(T+1)))
        a('v_mul_f32 %s, %s, %s' % (v(T+1), v(T+1), v(T)))
        for rho in range(16):
            k = sigma(8*(rho >> 2) + (rho & 3))
            a('v_fmamk_f32 %s, %s, %s, %s' % (v(T+2), v(T), lit(float(k)), v(T+1)))
            a('v_mul_f32 %s, %s, %s' % (v(T+3), lit(32.0), v(T+2)))
            a('v_cos_f32 %s, %s' % (v(V.TW+rho), v(T+2)))
            a('v_sin_f32 %s, %s' % (v(V.TW+16+rho), v(T+2)))
            self.trig(T+3, V.F32+rho, V.F32+16+rho)

    def coop_gen(self):
        a = self.a; T = V.T; X = V.DA
        self.sigma_lane(T)
        a('v_cvt_f32_u32 %s, %s' % (v(T), v(T)))
        a('v_mul_f32 %s, %s, %s' % (v(T), lit(1/1024), v(T)))
        a('s_and_b32 %s, %s, 1' % (sA, sW)); a('s_lshl_b32 %s, %s, 3' % (sA, sA))
        a('s_and_b32 %s, %s, 2' % (sB, sW)); a('s_lshl_b32 %s, %s, 1' % (sB, sB)); a('s_add_u32 %s, %s, %s' % (sA, sA, sB))
        a('s_and_b32 %s, %s, 4' % (sB, sW)); a('s_lshl_b32 %s, %s, 2' % (sB, sB)); a('s_add_u32 %s, %s, %s' % (sA, sA, sB))
        a('v_lshrrev_b32 %s, 5, %s' % (v(T+1), v(V.lane)))
        a('v_lshl_add_u32 %s, %s, 1, %s' % (v(T+1), v(T+1), sA))
        a('v_cvt_f32_u32 %s, %s' % (v(T+1), v(T+1)))
        a('v_mul_f32 %s, %s, %s' % (v(T+2), v(T+1), v(T)))
        for e in range(2):
            a('v_mul_f32 %s, %s, %s' % (v(T+3), lit(32.0), v(T+2)))
            if self.o['shear']:
                a('v_mul_f32 %s, 0.5, %s' % (v(T+4), v(T+2)))
                a('v_cos_f32 %s, %s' % (v(T+5), v(T+4)))
                a('v_sin_f32 %s, %s' % (v(T+6), v(T+4)))
                a('v_rcp_f32 %s, %s' % (v(T+5), v(T+5)))
                a('v_mul_f32 %s, %s, %s' % (v(X+4+e), v(T+6), v(T+5)))
                a('v_fma_f32 %s, %s, %s, 1.0' % (v(T+5), v(X+4+e), v(X+4+e)))
                a('v_rcp_f32 %s, %s' % (v(T+6), v(T+5)))
                a('v_fma_f32 %s, -%s, %s, 1.0' % (v(T+5), v(T+5), v(T+6)))
                a('v_fmac_f32 %s, %s, %s' % (v(T+6), v(T+5), v(T+6)))
                a('v_mul_f32 %s, -2.0, %s' % (v(T+6), v(T+6)))
                a('v_mul_f32 %s, %s, %s' % (v(X+6+e), v(T+6), v(X+4+e)))
            else:
                a('v_cos_f32 %s, %s' % (v(X+4+e), v(T+2)))
                a('v_sin_f32 %s, %s' % (v(X+6+e), v(T+2)))
            self.trig(T+3, X+e, X+2+e)
            if e == 0: a('v_add_f32 %s, %s, %s' % (v(T+2), v(T+2), v(T)))
        a('s_lshr_b32 %s, %s, 1' % (sA, sW)); a('s_lshl_b32 %s, %s, 10' % (sA, sA))
        a('s_and_b32 %s, %s, 1' % (sB, sW)); a('s_lshl_b32 %s, %s, 3' % (sB, sB)); a('s_add_u32 %s, %s, %s' % (sA, sA, sB))
        a('s_add_u32 %s, %s, %d' % (sA, sA, TABL))
        a('v_add_u32 %s, %s, %s' % (v(T), sA, v(V.l16)))
        for k in range(4):
            a('ds_write_b64 %s, %s offset:%d' % (v(T), vr(X+2*k, 2), 4096*k))
    def coop_init(self):
        a = self.a; T = V.T
        a('v_mov_b32 %s, %d' % (v(V.dummy2), CNT)); a('v_mov_b32 %s, 0' % v(T))
        a('ds_write_b32 %s, %s' % (v(V.dummy2), v(T)))
    def coop_post(self):
        a = self.a; T = V.T
        a('v_mov_b32 %s, 1' % v(T+1))
        a('ds_add_u32 %s, %s' % (v(V.dummy2), v(T+1)))
    def coop_wait(self):
        a = self.a; T = V.T; lp, ok = self.label('cw'), self.label('cwok')
        a('s_mov_b32 %s, 0' % sCnt)
        a(lp+':')
        a('ds_read_b32 %s, %s' % (v(T), v(V.dummy2)))
        a('s_add_u32 %s, %s, 1' % (sCnt, sCnt))
        a('s_cmp_gt_u32 %s, 0x%x' % (sCnt, SPIN_MAX*8))
        a('s_waitcnt lgkmcnt(0)')
        a('s_cbranch_scc1 %s' % ok)
        a('v_cmp_gt_u32 vcc, 0x200, %s' % v(T))
        a('s_cbranch_vccnz %s' % lp)
        a(ok+':')
    def coop_read(self):
        a = self.a; T = V.T
        assert V.TW == V.F32+32
        a('v_add_u32 %s, %d, %s' % (v(T), TABL, v(V.l16)))
        for k in range(16):
            a('ds_read_b128 %s, %s offset:%d' % (vr(V.F32+4*k, 4), v(T), 1024*k))

    def calc_k0(self):
        a = self.a
        a('s_lshr_b32 %s, %s, 4' % (sA, sT))
        a('s_and_b32 %s, %s, 15' % (sB, sT))
        a('s_lshl_b32 %s, %s, 4' % (sK0, sB))
        a('s_add_u32 %s, %s, %s' % (sK0, sK0, sA))
        a('s_lshr_b32 %s, %s, 2' % (sC, sB)); a('s_lshl_b32 %s, %s, 5' % (sC, sC))
        a('s_and_b32 %s, %s, 1' % (sD, sB)); a('s_lshl_b32 %s, %s, 4' % (sD, sD)); a('s_add_u32 %s, %s, %s' % (sC, sC, sD))
        a('s_and_b32 %s, %s, 2' % (sD, sB)); a('s_lshl_b32 %s, %s, 2' % (sD, sD)); a('s_add_u32 %s, %s, %s' % (sC, sC, sD))
        a('s_cmp_eq_u32 %s, 0' % sA)
        a('s_cselect_b32 %s, %s, %s' % (sK0, sC, sK0))
        a('s_cmp_eq_u32 %s, 0' % sT)
        a('s_cselect_b32 %s, 7, 8' % sA)
        a('s_lshl_b32 %s, %s, %s' % (sKP, sW, sA))
        a('s_add_u32 %s, %s, %s' % (sKP, sKP, sK0))
        a('s_sub_u32 %s, 0x800, %s' % (sKM, sKP))
        a('s_cmp_eq_u32 %s, 0' % sKP)
        a('s_cselect_b32 %s, 0x400, %s' % (sKM, sKM))
        a('s_cselect_b32 %s, 1, 0' % sSpec)
        a('s_mul_i32 %s, %s, 1026' % (sKP, sKP))
        a('s_mul_i32 %s, %s, 1026' % (sKM, sKM))

    def wq(self, rho): return (rho & 1) + 8*((rho >> 1) & 1) + 4*((rho >> 2) & 1)
    def w_prep(self):
        a = self.a
        a('s_mul_i32 %s, %s, 4224' % (sWL, sW))
        a('s_add_u32 %s, %s, %d' % (sWL, sWL, WL))
        a('s_and_b32 %s, %s, 2' % (sA, sKP))
        a('s_add_u32 %s, %s, %s' % (sDP, sKP, sA)); a('s_add_u32 %s, %s, %s' % (sDM, sKM, sA))
    def w_dma1(self, i):
        a = self.a
        srd, so = [(SWR, sDP), (SWI, sDP), (SWR, sDM), (SWI, sDM)][i]
        a('s_add_u32 m0, %s, %d' % (sWL, 1056*i))
        a('buffer_load_dwordx4 %s, %s, %s offen %s lds' % (v(V.l16), srd, so, self.o['ldw']))
    def w_dma(self):
        for i in range(4): self.w_dma1(i)
    def w_sload(self):
        a = self.a; T = V.T
        a('s_mov_b64 exec, 15')
        a('v_mov_b32 %s, %s' % (v(T), sKP)); a('v_mov_b32 %s, %s' % (v(T+1), sKM))
        a('s_mov_b64 vcc, 10')
        a('v_cndmask_b32 %s, %s, %s, vcc' % (v(T), v(T), v(T+1)))
        a('v_and_b32 %s, 2, %s' % (v(T+1), v(V.lane)))
        a('v_lshl_add_u32 %s, %s, 9, %s' % (v(T), v(T+1), v(T)))
        a('buffer_load_short_d16_hi %s, %s, %s, 0 offen' % (v(V.WF), v(T), SWR))
        a('buffer_load_short_d16_hi %s, %s, %s, 0 offen' % (v(V.WF+1), v(T), SWI))
        a('s_mov_b64 exec, -1')
    def w_edge_rl(self):
        a = self.a
        for l in range(4):
            for im in range(2):
                a('v_readlane_b32 s%d, %s, %d' % (84+2*l+im, v(V.WF+im), l))
    def w_edge(self):
        a = self.a; T = V.T
        self.w_edge_rl()
        for i, (x, y, op) in enumerate(((84, 86, 'add'), (85, 87, 'sub'), (90, 88, 'add'), (91, 89, 'sub'))):
            a('v_mov_b32 %s, s%d' % (v(T), y))
            a('v_%s_f32 %s, s%d, %s' % (op, v(V.WF+i), x, v(T)))
            a('v_mul_f32 %s, 0.5, %s' % (v(V.WF+i), v(V.WF+i)))
        a('s_mov_b64 s[92:93], 1')
    def w_addr(self):
        a = self.a; T = V.T
        self.sigma_lane(T)
        a('v_lshrrev_b32 %s, 5, %s' % (v(T+1), v(V.lane)))
        a('v_lshlrev_b32 %s, 7, %s' % (v(T+1), v(T+1)))
        a('v_lshl_add_u32 %s, %s, 1, %s' % (v(T), v(T), v(T+1)))
        a('s_and_b32 %s, %s, 2' % (sD, sKP)); a('s_sub_u32 %s, %s, %s' % (sD, sWL, sD))
        a('v_add_u32 %s, %s, %s' % (v(V.WP), sD, v(T)))
        a('s_add_u32 %s, %s, %d' % (sD, sD, 1024-832))
        a('v_sub_u32 %s, %s, %s' % (v(V.WM), sD, v(T)))
    def w_read(self, rho, dst=None, swap=False):
        a = self.a; dst = V.W if dst is None else dst
        for im in range(2):
            if rho < 8: ad, off = V.WP, 64*self.wq(rho) + (2112 if swap else 0)
            else: ad, off = V.WM, 64*(13-self.wq(rho)) + (0 if swap else 2112)
            a('ds_read_u16_d16_hi %s, %s offset:%d' % (v(dst+16*im+rho), v(ad), off+1056*im))
    def w_fix(self, half):
        a = self.a
        for im in range(2):
            r = V.W+8*half+16*im
            a('v_cndmask_b32 %s, %s, %s, s[92:93]' % (v(r), v(r), v(V.WF+2*half+im)))
    def w_regs_early(self):
        a = self.a
        for rho in range(16): self.w_read(rho)
        a('s_waitcnt lgkmcnt(0)')
        self.w_fix(0); self.w_fix(1)
    def w_special(self):
        a = self.a; T = V.T
        l0, l1 = self.label('Wspec'), self.label('Wend')
        a('s_cmp_eq_u32 %s, 1' % sSpec)
        a('s_cbranch_scc1 %s' % l0)
        a(l1+':')
        def tail():
            X = V.DA
            a(l0+':')
            for rho in range(16): self.w_read(rho)
            for rho in range(16): self.w_read(rho, X, True)
            a('s_waitcnt lgkmcnt(0) vmcnt(0)')
            self.w_edge_rl()
            a('s_mov_b64 exec, 1')
            for r in (V.W+16, V.W+24, X+16, X+24): a('v_mov_b32 %s, 0' % v(r))
            a('v_mov_b32 %s, s90' % v(V.W+8)); a('v_mov_b32 %s, s88' % v(X+8))
            a('s_mov_b64 exec, -1')
            for i in range(32):
                a('v_add_f32 %s, %s, %s' % (v(T+3), v(V.W+i), v(X+i)))
                if (i & 15) < 8: a('v_sub_f32 %s, %s, %s' % (v(X+i), v(V.W+i), v(X+i)))
                else: a('v_sub_f32 %s, %s, %s' % (v(X+i), v(X+i), v(V.W+i)))
                a('v_mov_b32 %s, %s' % (v(V.W+i), v(T+3)))
            a('v_add_u32 %s, %d, %s' % (v(T+1), SCR_B, v(V.l16)))
            for i in range(8):
                a('ds_write_b128 %s, %s offset:%d' % (v(T+1), vr(X+4*i, 4), 1024*i))
            a('s_waitcnt lgkmcnt(0)')
            a('s_branch %s' % l1)
        self.tail.append(tail)

    def B_dup(self):
        a = self.a
        a('v_mov_b32 %s, %s' % (v(V.B+4), v(V.B))); a('v_mov_b32 %s, %s' % (v(V.B+5), v(V.B+1)))
        a('v_mov_b32 %s, %s' % (v(V.B+10), v(V.B+6))); a('v_mov_b32 %s, %s' % (v(V.B+11), v(V.B+7)))
    def gen_B(self, early=False, dup=True):
        a = self.a; T = V.T
        l0, l1 = self.label('Bspec'), self.label('Bend')
        a('s_cmp_eq_u32 %s, 0' % sT)
        a('s_cbranch_scc1 %s' % (l1 if early else l0))
        c, s = T+8, T+9
        a('v_lshrrev_b32 %s, 1, %s' % (v(T), v(V.n)))
        a('v_lshl_add_u32 %s, %s, 8, %s' % (v(T+1), v(T), sK0))
        a('v_cvt_f32_u32 %s, %s' % (v(T+1), v(T+1)))
        a('v_mul_f32 %s, %s, %s' % (v(T+1), lit(1/2048), v(T+1)))
        a('v_cvt_f32_u32 %s, %s' % (v(T+2), v(V.g)))
        a('v_add_f32 %s, %s, %s' % (v(T+2), v(T+2), v(T+2)))
        a('v_and_b32 %s, 1, %s' % (v(T+3), v(V.n)))
        a('v_cvt_f32_u32 %s, %s' % (v(T+3), v(T+3)))
        a('v_mul_f32 %s, %s, %s' % (v(T+4), lit(0.25), v(T+3)))
        a('v_mul_f32 %s, %s, %s' % (v(T+5), v(T+1), v(T+2)))
        for sbb in range(2):
            for half in range(2):
                a('v_%s_f32 %s, %s, %s' % ('sub' if half else 'add', v(T+6), v(T+5), v(T+4)))
                a('v_cos_f32 %s, %s' % (v(c), v(T+6)))
                a('v_sin_f32 %s, %s' % (v(s), v(T+6)))
                a('v_mul_f32 %s, %s, %s' % (v(c), lit(S11), v(c)))
                a('v_mul_f32 %s, %s, %s' % (v(s), lit(S11), v(s)))
                ng = '-' if half else ''
                a('v_cvt_pk_bf16_f32 %s, %s, %s%s' % (v(V.B+2*sbb+half), v(c), ng, v(s)))
                a('v_cvt_pk_bf16_f32 %s, -%s, %s%s' % (v(V.B+6+2*sbb+half), v(s), ng, v(c)))
            if sbb == 0: a('v_add_f32 %s, %s, %s' % (v(T+5), v(T+5), v(T+1)))
        a('v_cvt_f32_u32 %s, %s' % (v(T), v(T)))
        a('v_lshlrev_b32 %s, 31, %s' % (v(T+4), v(V.n)))
        a('v_xor_b32 %s, %s, %s' % (v(T), v(T), v(T+4)))
        a('v_xor_b32 %s, %s, %s' % (v(T+4), lit(S11), v(T+4)))
        a('v_lshl_add_u32 %s, %s, 9, %s' % (v(T+1), v(V.g), sK0))
        a('v_cvt_f32_u32 %s, %s' % (v(T+1), v(T+1)))
        a('v_mul_f32 %s, %s, %s' % (v(T+1), lit(1/2048), v(T+1)))
        a('v_mul_f32 %s, %s, %s' % (v(T+5), v(T+1), v(T)))
        a('v_fmac_f32 %s, 0.5, %s' % (v(T+5), v(T+3)))
        for ii in range(2):
            a('v_cos_f32 %s, %s' % (v(c), v(T+5)))
            a('v_sin_f32 %s, %s' % (v(s), v(T+5)))
            a('v_mul_f32 %s, %s, %s' % (v(T+6), v(T+4), v(c)))
            a('v_mul_f32 %s, %s, %s' % (v(T+7), v(T+4), v(s)))
            a('v_mul_f32 %s, %s, %s' % (v(c), lit(S11), v(c)))
            a('v_mul_f32 %s, %s, %s' % (v(s), lit(S11), v(s)))
            a('v_cvt_pk_bf16_f32 %s, %s, %s' % (v(V.Bp+2*ii), v(c), v(T+7)))
            a('v_cvt_pk_bf16_f32 %s, -%s, %s' % (v(V.Bp+4+2*ii), v(s), v(T+6)))
            a('v_cvt_pk_bf16_f32 %s, -%s, %s' % (v(V.Bp+2*ii+1), v(s), v(T+6)))
            a('v_cvt_pk_bf16_f32 %s, -%s, -%s' % (v(V.Bp+4+2*ii+1), v(c), v(T+7)))
            if ii == 0: a('v_fmac_f32 %s, %s, %s' % (v(T+5), lit(0.125), v(T)))
        a(l1+':')
        if dup: self.B_dup()
        def tail():
            a(l0+':')
            if not early: self.spec_load(); a('s_waitcnt vmcnt(0)')
            a('s_branch %s' % l1)
        if not early: self.tail.append(tail)
    def spec_load(self):
        a = self.a
        a('s_getpc_b64 s[28:29]')
        a('s_add_u32 s28, s28, spec_tab@rel32@lo+4')
        a('s_addc_u32 s29, s29, spec_tab@rel32@hi+12')
        a('global_load_dwordx4 %s, %s, s[28:29]' % (vr(V.B, 4), v(V.l16)))
        a('global_load_dwordx4 %s, %s, s[28:29] offset:1024' % (vr(V.B+6, 4), v(V.l16)))
        a('global_load_dwordx4 %s, %s, s[28:29] offset:2048' % (vr(V.Bp, 4), v(V.l16)))
        a('global_load_dwordx4 %s, %s, s[28:29] offset:3072' % (vr(V.Bp+4, 4), v(V.l16)))
    def spec_early(self):
        a = self.a
        def g():
            self.srds()
            a('s_mov_b32 %s, 0' % sDP); a('s_mov_b32 %s, %d' % (sDM, 1024*1026)); a('s_mov_b32 %s, %d' % (sWL, WL))
            self.w_dma()
        def f():
            self.spec_load(); self.cond(sW, 0, g)
        self.cond(sT, 0, f)

    def spec_table(self):
        tab = np.zeros((4, 64, 4, 2))
        for lane in range(64):
            m, g = lane & 15, lane >> 4
            for r in range(4):
                t, c = m >> 1, m & 1; sb, hf = 2*g + (r >> 1), r & 1
                if hf == (t & 1):
                    th = 2*math.pi*sb*t/16
                    tab[0, lane, r, c] = (2*S11 if t else S11)*math.cos(th)
                    tab[1, lane, r, c] = -2*S11*math.sin(th) if t else S11*(-1.0)**sb
                sb, hf = m >> 1, m & 1; t, c = 2*g + (r >> 1), r & 1
                if hf == (t & 1):
                    th = 2*math.pi*sb*t/16
                    if t: cre, cim = 2*math.cos(th), -2*math.sin(th)
                    else: cre, cim = 1.0, (-1.0)**sb
                    pl = 2 + (1 - c)
                    tab[pl, lane, r, 0] = S11*cim
                    tab[pl, lane, r, 1] = S11*cre
        tab[abs(tab) < 1e-12] = 0
        out = ['.p2align 6', '.type spec_tab,@object', 'spec_tab:']
        w = [bf16bits(tab[p, l, r, 0]) | bf16bits(tab[p, l, r, 1]) << 16 for p in range(4) for l in range(64) for r in range(4)]
        for i in range(0, len(w), 8):
            out.append('.long ' + ','.join('0x%x' % x for x in w[i:i+8]))
        return '\n'.join(out)

    def p1_load(self):
        a = self.a; T = V.T
        a('v_bfe_u32 %s, %s, 3, 1' % (v(T), v(V.lane)))
        a('v_lshlrev_b32 %s, 14, %s' % (v(T), v(T)))
        a('v_lshl_add_u32 %s, %s, 20, %s' % (v(T), v(V.g), v(T)))
        a('v_and_b32 %s, 0x70, %s' % (v(T+1), v(V.l16)))
        a('v_add_u32 %s, %s, %s' % (v(V.Xoff), v(T), v(T+1)))
        a('s_lshl_b32 %s, %s, 15' % (sO[0], sW))
        a('s_lshl_b32 %s, %s, 11' % (sA, sSB)); a('s_add_u32 %s, %s, %s' % (sO[0], sO[0], sA))
        a('s_lshl_b32 %s, %s, 7' % (sA, sCB)); a('s_add_u32 %s, %s, %s' % (sO[0], sO[0], sA))
        for r in range(1, 4): a('s_add_u32 %s, %s, 0x%x' % (sO[r], sO[0], r*262144))
    def p1_issue(self):
        a = self.a
        for r in range(4):
            a('buffer_load_dwordx4 %s, %s, %s, %s offen %s' % (vr(V.L+4*r, 4), v(V.Xoff), SX, sO[r], self.o['ldx']))
    def p1_addrs(self):
        a = self.a; T = V.T
        a('v_xor_b32 %s, %s, %s' % (v(T), sSB, v(V.lane)))
        a('v_and_b32 %s, 1, %s' % (v(T), v(T)))
        a('v_mul_u32_u24 %s, 16448, %s' % (v(T), v(T)))
        a('v_lshl_add_u32 %s, %s, 12, %s' % (v(T), v(V.g), v(T)))
        a('v_and_b32 %s, 14, %s' % (v(T+1), v(V.lane)))
        a('v_lshl_add_u32 %s, %s, 3, %s' % (v(T), v(T+1), v(T)))
        a('s_lshr_b32 %s, %s, 2' % (sA, sW)); a('s_lshl_b32 %s, %s, 9' % (sA, sA))
        a('s_and_b32 %s, %s, 1' % (sB, sW)); a('s_lshl_b32 %s, %s, 8' % (sB, sB)); a('s_add_u32 %s, %s, %s' % (sA, sA, sB))
        a('s_and_b32 %s, %s, 2' % (sB, sW)); a('s_lshl_b32 %s, %s, 6' % (sB, sB)); a('s_add_u32 %s, %s, %s' % (sA, sA, sB))
        if R0: a('s_add_u32 %s, %s, %d' % (sA, sA, R0))
        a('v_add_u32 %s, %s, %s' % (v(V.X0w), sA, v(T)))
        self.tr_lane(T, 512, 128)
        a('s_lshl_b32 %s, %s, 10' % (sA, sW))
        a('s_sub_u32 %s, 0x4000, %s' % (sB, sA))
        a('s_cmp_eq_u32 %s, 0' % sW)
        a('s_cselect_b32 %s, 0x2000, %s' % (sB, sB))
        if R0: a('s_add_u32 %s, %s, %d' % (sA, sA, R0)); a('s_add_u32 %s, %s, %d' % (sB, sB, R0))
        a('v_add_u32 %s, %s, %s' % (v(V.X0r0), sA, v(T)))
        a('v_add_u32 %s, %s, %s' % (v(V.X0r1), sB, v(T)))
    def tr_lane(self, dst, g1s, g0s, b3s=64):
        a = self.a; t = V.T+7
        sh = lambda x: int(math.log2(x))
        a('v_and_b32 %s, 0x30, %s' % (v(dst), v(V.l16)))
        for bit, st in ((2, 8), (3, b3s), (4, g0s), (5, g1s)):
            a('v_bfe_u32 %s, %s, %d, 1' % (v(t), v(V.lane), bit))
            a('v_lshl_add_u32 %s, %s, %d, %s' % (v(dst), v(t), sh(st), v(dst)))

    def mf16(self, d, A, B):
        self.a('v_mfma_f32_16x16x32_bf16 %s, %s, %s, 0' % (vr(d, 4), vr(A, 4), vr(B, 4)))
    def cvt(self, d, lo, hi):
        self.a('v_cvt_pk_bf16_f32 %s, %s, %s' % (v(d), v(lo), v(hi)))

    def p1_compute(self, nafter, hook=None, hook2=None, hook3=None, hook4=None, hook5=None):
        a = self.a; O, L, D = V.O, V.L, V.DA
        for r in range(4):
            a('s_waitcnt vmcnt(%d)' % (nafter + 3 - r))
            if r == 3: self.stamp()
            for t in range(4):
                a('v_mov_b32 %s, %s' % (v(O+4*t+r), v(L+4*r+t)))
        for t in range(4):
            self.mf16(D+4*t, V.F16, O+4*t)
            self.mf16(D+16+4*t, V.F16+4, O+4*t)
        if hook: hook()
        P = V.DB
        for r in range(4):
            self.cvt(P+4*r, D+r, D+4+r); self.cvt(P+4*r+2, D+16+r, D+20+r)
        for r in range(4):
            self.cvt(P+4*r+1, D+8+r, D+12+r); self.cvt(P+4*r+3, D+24+r, D+28+r)
            a('ds_write_b128 %s, %s offset:%d' % (v(V.X0w), vr(P+4*r, 4), 1024*r))
        self.mark('g1a')
        if hook5: hook5()
        self.mark('g1b')
        a('s_waitcnt lgkmcnt(0)')
        a('s_barrier')
        if hook4: hook4()
        for sel in range(2):
            for tau in range(2):
                for ii in range(2):
                    a('ds_read_b64_tr_b16 %s, %s offset:%d' % (vr(O+4*(2*sel+tau)+2*ii, 2), v(V.X0r1 if sel else V.X0r0), tau*16448+ii*256))
        if hook2: hook2()
        if hook3: hook3()
        for r in range(4): a('s_add_u32 %s, %s, 0x%x' % (sO[r], self.est(), self.ubase(0) + r*self.tstride()))
        for ti in range(4):
            a('s_waitcnt lgkmcnt(%d)' % (6-2*ti))
            self.mf16(D+4*ti, V.M2+8*(ti >> 1), O+4*ti)
            self.mf16(D+16+4*ti, V.M2+8*(ti >> 1)+4, O+4*ti)
        st = lambda i: a('buffer_store_dwordx4 %s, %s, %s, %s offen %s' % (vr(P+4*i, 4), v(V.Est), SWS, sO[i], self.o['st1']))
        def normal():
            for i in range(4):
                for tau in range(2): self.cvt(P+4*i+2*tau, D+4*tau+i, D+16+4*tau+i)
            for i in range(4):
                for tau in range(2): self.cvt(P+4*i+2*tau+1, D+4*(2+tau)+i, D+16+4*(2+tau)+i)
                st(i)
        def w0():
            for i in range(4):
                ts, eb = i >> 1, i & 1
                for tau in range(2):
                    for sg in range(2):
                        x = 4*(2*ts+tau)+2*eb+sg
                        self.cvt(P+4*i+2*tau+sg, D+x, D+16+x)
                st(i)
        self.ifelse(sW, 0, w0, normal)

    def p2_addrs(self):
        a = self.a; T = V.T
        a('v_lshlrev_b32 %s, 4, %s' % (v(T), v(V.n)))
        a('v_lshl_add_u32 %s, %s, 13, %s' % (v(T), v(V.g), v(T)))
        a('s_lshl_b32 %s, %s, 9' % (sA, sW)); a('s_add_u32 %s, %s, %d' % (sA, sA, R1))
        a('v_add_u32 %s, %s, %s' % (v(V.X1w), sA, v(T)))
    def p2_addrs2(self):
        a = self.a; T = V.T
        self.tr_lane(T, 256, 64, 128)
        a('s_lshl_b32 %s, %s, 12' % (sA, sW)); a('s_add_u32 %s, %s, %d' % (sA, sA, R1))
        a('v_add_u32 %s, %s, %s' % (v(V.X1r), sA, v(T)))
        a('v_and_b32 %s, 16, %s' % (v(T), v(V.l16)))
        for bit, st in ((1, 16448), (2, 8224)):
            a('v_bfe_u32 %s, %s, %d, 1' % (v(T+1), v(V.lane), bit))
            a('v_mul_u32_u24 %s, %d, %s' % (v(T+1), st, v(T+1)))
            a('v_add_u32 %s, %s, %s' % (v(T), v(T), v(T+1)))
        a('v_bfe_u32 %s, %s, 3, 2' % (v(T+1), v(V.lane)))
        a('v_lshl_add_u32 %s, %s, 11, %s' % (v(T), v(T+1), v(T)))
        a('v_and_b32 %s, 32, %s' % (v(T+1), v(V.lane)))
        a('v_add_u32 %s, %s, %s' % (v(T), v(T), v(T+1)))
        a('s_lshr_b32 %s, %s, 2' % (sA, sW)); a('s_lshl_b32 %s, %s, 9' % (sA, sA))
        a('s_and_b32 %s, %s, 1' % (sB, sW)); a('s_lshl_b32 %s, %s, 8' % (sB, sB)); a('s_add_u32 %s, %s, %s' % (sA, sA, sB))
        a('s_and_b32 %s, %s, 2' % (sB, sW)); a('s_lshl_b32 %s, %s, 6' % (sB, sB)); a('s_add_u32 %s, %s, %s' % (sA, sA, sB))
        if R0: a('s_add_u32 %s, %s, %d' % (sA, sA, R0))
        a('v_add_u32 %s, %s, %s' % (v(V.X2w), sA, v(T)))
        self.tr_lane(T, 512, 128)
        a('s_and_b32 %s, %s, 1' % (sA, sW)); a('s_lshl_b32 %s, %s, 11' % (sA, sA))
        a('s_bfe_u32 %s, %s, 0x10001' % (sB, sW)); a('s_mul_i32 %s, %s, 16448' % (sB, sB)); a('s_add_u32 %s, %s, %s' % (sA, sA, sB))
        a('s_lshr_b32 %s, %s, 2' % (sB, sW)); a('s_lshl_b32 %s, %s, 12' % (sB, sB)); a('s_add_u32 %s, %s, %s' % (sA, sA, sB))
        if R0: a('s_add_u32 %s, %s, %d' % (sA, sA, R0))
        a('v_add_u32 %s, %s, %s' % (v(V.X2r), sA, v(T)))

    def p2_issue(self):
        a = self.a
        a('s_add_u32 %s, %s, 0x%x' % (sA, sEld, self.ubase(0)))
        for q in range(4):
            a('buffer_load_dwordx4 %s, %s, %s, %s offen offset:%d %s' % (vr(V.L+12*(q >> 1)+4*(q & 1), 4), self.eld(q), SWS, sA, 256*q, self.o['ld1']))

    def mf32(self, d, i, dataA):
        for pl in range(2):
            M = vr(V.F32+16*pl+4*i, 4); X = vr(V.O+4*i, 4)
            A, B = (X, M) if dataA else (M, X)
            D = vr(d+16*pl, 16)
            ex = self.o.get('exp', '')
            if ex == 'm16':
                for hh in range(2):
                    D4 = vr(d+16*pl+8*(i & 1)+4*hh, 4)
                    self.a('v_mfma_f32_16x16x32_bf16 %s, %s, %s, %s' % (D4, A, B, D4 if i >= 2 else '0'))
            elif ex == 'nomf':
                if i == 0: self.a('v_mfma_f32_32x32x16_bf16 %s, %s, %s, %s' % (D, A, B, D if i else '0'))
            elif ex == 'half':
                if i < 2: self.a('v_mfma_f32_32x32x16_bf16 %s, %s, %s, %s' % (D, A, B, D if i else '0'))
            else: self.a('v_mfma_f32_32x32x16_bf16 %s, %s, %s, %s' % (D, A, B, D if i else '0'))

    def cmul_stage(self, src, dst, dataA, coef, kind, prio=None, late=False):
        a = self.a; T = V.T
        if prio is not None and self.o['prio']: a('s_setprio %d' % prio)
        if kind == 'tw' and self.o['shear']:
            for i in range(4):
                for st in range(3):
                    for r in range(4):
                        rho = 4*i+r
                        x, y = v(src+rho), v(src+16+rho)
                        if st == 1: a('v_fmac_f32 %s, %s, %s' % (y, v(coef+16+rho), x))
                        else: a('v_fmac_f32 %s, %s, %s' % (x, v(coef+rho), y))
                for r in range(4): self.cvt(V.O+4*i+r, src+4*i+r, src+16+4*i+r)
                self.mf32(dst, i, dataA)
            return
        if late and self.o.get('db') == 'wb':
            self.mark('wa'); a('s_waitcnt vmcnt(0)'); self.mark('wb'); a('s_waitcnt lgkmcnt(0)')
        if late:
            a('s_waitcnt vmcnt(2)')
            for rho in range(8): self.w_read(rho)
        for i in range(4):
            if late:
                if i == 0: a('s_waitcnt lgkmcnt(8)'); self.w_fix(0)
                if i == 1:
                    a('s_waitcnt vmcnt(0)')
                    for rho in range(8, 12): self.w_read(rho)
                    a('s_waitcnt lgkmcnt(8)')
                if i == 2:
                    for rho in range(12, 16): self.w_read(rho)
                    a('s_waitcnt lgkmcnt(8)'); self.w_fix(1)
                if i == 3: a('s_waitcnt lgkmcnt(0)')
            for r in range(4):
                rho = 4*i+r
                x, y = v(src+rho), v(src+16+rho)
                c, s = v(coef+rho), v(coef+16+rho)
                t0, t1 = v(T+2*r), v(T+2*r+1)
                a('v_mul_f32 %s, %s, %s' % (t0, x, c))
                a('v_mul_f32 %s, %s, %s' % (t1, y, c))
            for r in range(4):
                rho = 4*i+r
                x, y = v(src+rho), v(src+16+rho)
                c, s = v(coef+rho), v(coef+16+rho)
                t0, t1 = v(T+2*r), v(T+2*r+1)
                if kind == 'tw' or rho >= 8:
                    a('v_fmac_f32 %s, %s, %s' % (t0, y, s))
                    a('v_fma_f32 %s, -%s, %s, %s' % (t1, x, s, t1))
                else:
                    a('v_fma_f32 %s, -%s, %s, %s' % (t0, y, s, t0))
                    a('v_fmac_f32 %s, %s, %s' % (t1, x, s))
            for r in range(4):
                if kind == 'tw': self.cvt(V.O+4*i+r, T+2*r, T+2*r+1)
                else: self.cvt(V.O+4*i+r, T+2*r+1, T+2*r)
            self.mf32(dst, i, dataA)

    def p2_compute(self, wl=None):
        a = self.a; O, L, D, T = V.O, V.L, V.DA, V.T
        late = wl is not None
        na = getattr(self, 'p2na', 0)
        for cbb in range(2):
            b = L+12*cbb
            a('s_waitcnt vmcnt(%d)' % (na+3-2*cbb))
            a('v_mov_b32 %s, %s' % (v(b+8), v(b))); a('v_mov_b32 %s, %s' % (v(b+9), v(b+1)))
            a('s_waitcnt vmcnt(%d)' % (na+2-2*cbb))
            if cbb: self.stamp(); self.fstamp()
            for jj2 in (1, 0):
                ti = 2*cbb+jj2
                op = b+2 if jj2 else b+6
                mo = 0 if jj2 else 2
                self.mf16(D+4*ti, V.B+mo, op)
                self.mf16(D+16+4*ti, V.B+6+mo, op)
        for cbb in range(2):
            for k1b in range(2):
                P = O+4*(2*cbb+k1b)
                for pl in range(2):
                    for jj2 in (1, 0):
                        x = D+16*pl+4*(2*cbb+jj2)+2*k1b
                        self.cvt(P+2*pl+jj2, x, x+1)
                a('ds_write_b128 %s, %s offset:%d' % (v(V.X1w), vr(P, 4), k1b*4096+cbb*256))
        self.fstamp()
        a('s_waitcnt lgkmcnt(0)')
        self.fstamp()
        if self.o.get('fine'): a('s_waitcnt lgkmcnt(0)')
        a('s_barrier')
        if self.o.get('da') == 'x1' or self.o.get('clk'): self.mark('x1'); a('s_waitcnt lgkmcnt(0)')
        if self.o['prio']: a('s_setprio 3')
        for i in range(4):
            for ii in range(2):
                a('ds_read_b64_tr_b16 %s, %s offset:%d' % (vr(O+4*i+2*ii, 2), v(V.X1r), ii*1024+(i & 1)*512+(i >> 1)*2048))
        for i in range(4):
            if late and i in (0, 2): self.wat('postX1', (i, i+1))
            if late and i == 0: self.wat('w1h', (2, 3)); self.wat('barh', (2, 3))
            a('s_waitcnt lgkmcnt(%d)' % (6-2*i))
            self.mf32(V.DA, i, True)
        self.fstamp()
        if late: self.wat('tw1')
        self.cmul_stage(V.DA, V.DB, False, V.TW, 'tw', 2)
        self.fstamp()
        l0, l1 = self.label('PWspec'), self.label('PWend')
        a('s_cmp_eq_u32 %s, 1' % sSpec)
        a('s_cbranch_scc1 %s' % l0)
        if self.o.get('fine'): a('s_waitcnt lgkmcnt(0)')
        self.cmul_stage(V.DB, V.DA, True, V.W, 'w', 1, late)
        a(l1+':')
        self.fstamp()
        self.cmul_stage(V.DA, V.DB, True, V.TW, 'tw', 0)
        self.fstamp()
        D = V.DB
        rho = lambda jj3, jj1, jj2, c: 4*(2*jj3+jj1)+2*jj2+c
        for c in range(2):
            for jj1 in range(2):
                P = O+4*(2*c+jj1)
                for pl in range(2):
                    for jj3 in range(2):
                        self.cvt(P+2*pl+jj3, D+16*pl+rho(jj3, jj1, 0, c), D+16*pl+rho(jj3, jj1, 1, c))
                a('ds_write_b128 %s, %s offset:%d' % (v(V.X2w), vr(P, 4), c*64+jj1*1024))
                if self.o['ib2'] and not self.o['ib3'] and c == 0 and jj1 == 0: self.major_read()
        self.fstamp()
        self.mark('x2')
        a('s_waitcnt lgkmcnt(0)')
        if self.o['ib2'] and not self.o['ib3']: self.major_use()
        self.fstamp()
        if self.o.get('fine'): a('s_waitcnt lgkmcnt(0)')
        a('s_barrier')
        for cbb in range(2):
            for jj1 in range(2):
                for ii in range(2):
                    a('ds_read_b64_tr_b16 %s, %s offset:%d' % (vr(O+4*(2*cbb+jj1)+2*ii, 2), v(V.X2r), ii*256+jj1*1024+cbb*8224))
        for r in range(4): a('s_add_u32 %s, %s, 0x%x' % (sO[r], self.est(), self.ubase(1) + r*self.tstride()))
        D = V.DA
        for ti in range(4):
            a('s_waitcnt lgkmcnt(%d)' % (6-2*ti))
            self.mf16(D+4*ti, V.Bp, O+4*ti)
            self.mf16(D+16+4*ti, V.Bp+4, O+4*ti)
        self.fstamp()
        P = V.DB
        for q in range(4):
            cbb, sbb = q >> 1, q & 1
            for jj1 in range(2):
                for hf in range(2):
                    x = 4*(2*cbb+jj1)+2*sbb+hf
                    self.cvt(P+4*q+2*jj1+hf, D+x, D+16+x)
            a('buffer_store_dwordx4 %s, %s, %s, %s offen %s' % (vr(P+4*q, 4), v(V.Est), SWS, sO[q], self.o['st2']))
        self.fstamp()
        if self.o.get('fine'):
            a('s_memrealtime s[%d:%d]' % (sTS+2*self.nts, sTS+2*self.nts+1)); self.nts += 1
        def tail():
            C = V.DB; X = V.DA
            a(l0+':')
            self.sigma_lane(T)
            a('v_lshrrev_b32 %s, 5, %s' % (v(T+1), v(V.lane)))
            a('v_lshlrev_b32 %s, 9, %s' % (v(T+1), v(T+1)))
            a('v_lshl_add_u32 %s, %s, 2, %s' % (v(T+2), v(T), v(T+1)))
            a('v_add_u32 %s, %d, %s' % (v(T+2), SCR, v(T+2)))
            a('v_add_u32 %s, 128, %s' % (v(T+3), v(T+2)))
            a('v_sub_u32 %s, 32, %s' % (v(T+4), v(T)))
            a('v_lshrrev_b32 %s, 5, %s' % (v(T+5), v(T+4)))
            a('v_and_b32 %s, 31, %s' % (v(T+4), v(T+4)))
            a('v_lshlrev_b32 %s, 2, %s' % (v(T+4), v(T+4)))
            a('v_lshl_add_u32 %s, %s, 8, %s' % (v(T+4), v(T+5), v(T+4)))
            a('v_sub_u32 %s, %s, %s' % (v(T+4), v(T+4), v(T+1)))
            a('v_add_u32 %s, %d, %s' % (v(T+4), SCR + 2*256, v(T+4)))
            a('v_add_u32 %s, 128, %s' % (v(T+5), v(T+4)))
            a('v_add_u32 %s, %d, %s' % (v(T+6), SCR_B, v(V.l16)))
            qs = lambda rho: sigma(8*(rho >> 2) + (rho & 3))
            for pl in range(2):
                for rho in range(0, 16, 2):
                    a('ds_write2st64_b32 %s, %s, %s offset0:%d offset1:%d' % (v(T+2+pl), v(C+16*pl+rho), v(C+16*pl+rho+1), qs(rho), qs(rho+1)))
                a('ds_write_b32 %s, %s offset:%d' % (v(T+2+pl), v(C+16*pl), 32*256))
            a('s_waitcnt lgkmcnt(0)')
            t0, t1 = v(T+8), v(T+9)
            for half in range(2):
                for pl in range(2):
                    for k in range(0, 8, 2):
                        rho_ = 8*half+k
                        a('ds_read2st64_b32 %s, %s offset0:%d offset1:%d' % (vr(X+8*pl+k, 2), v(T+4+pl), 29-qs(rho_), 29-qs(rho_+1)))
                    for k in range(2):
                        a('ds_read_b128 %s, %s offset:%d' % (vr(X+16+8*pl+4*k, 4), v(T+6), 1024*(4*pl+2*half+k)))
                a('s_waitcnt lgkmcnt(0)')
                for k in range(8):
                    rho_ = 8*half+k
                    x, y = v(C+rho_), v(C+16+rho_); ar, ai = v(V.W+rho_), v(V.W+16+rho_)
                    p, q_ = v(X+k), v(X+8+k); br, bi = v(X+16+k), v(X+24+k)
                    ng, ps = ('', '-') if half else ('-', '')
                    a('v_mul_f32 %s, %s, %s' % (t0, x, ar))
                    a('v_mul_f32 %s, %s, %s' % (t1, y, ar))
                    a('v_fma_f32 %s, %s%s, %s, %s' % (t0, ng, y, ai, t0))
                    a('v_fma_f32 %s, %s%s, %s, %s' % (t1, ps, x, ai, t1))
                    a('v_fmac_f32 %s, %s, %s' % (t0, p, br))
                    a('v_fma_f32 %s, -%s, %s, %s' % (t1, q_, br, t1))
                    a('v_fma_f32 %s, %s%s, %s, %s' % (t0, ps, q_, bi, t0))
                    a('v_fma_f32 %s, %s%s, %s, %s' % (t1, ps, p, bi, t1))
                    self.cvt(O+rho_, T+9, T+8)
            for i in range(4): self.mf32(V.DA, i, True)
            a('s_nop 11')
            a('s_branch %s' % l1)
        self.tail.append(tail)

    def p3_addrs(self):
        a = self.a; T = V.T
        a('v_and_b32 %s, 16, %s' % (v(T), v(V.lane)))
        for bit, st in ((0, 32), (3, 4096), (5, 1024)):
            a('v_bfe_u32 %s, %s, %d, 1' % (v(T+1), v(V.lane), bit))
            a('v_lshl_add_u32 %s, %s, %d, %s' % (v(T), v(T+1), int(math.log2(st)), v(T)))
        for bit, st in ((1, 8208), (2, 16448)):
            a('v_bfe_u32 %s, %s, %d, 1' % (v(T+1), v(V.lane), bit))
            a('v_mul_u32_u24 %s, %d, %s' % (v(T+1), st, v(T+1)))
            a('v_add_u32 %s, %s, %s' % (v(T), v(T), v(T+1)))
        a('s_sub_u32 %s, 16, %s' % (sC, sW))
        a('s_cmp_eq_u32 %s, 0' % sW)
        a('s_cselect_b32 %s, 8, %s' % (sC, sC))
        for kl, dst in ((sW, V.X3w0), (sC, V.X3w1)):
            a('s_and_b32 %s, %s, 9' % (sA, kl)); a('s_lshl_b32 %s, %s, 6' % (sA, sA))
            a('s_and_b32 %s, %s, 2' % (sB, kl)); a('s_lshl_b32 %s, %s, 7' % (sB, sB)); a('s_add_u32 %s, %s, %s' % (sA, sA, sB))
            a('s_and_b32 %s, %s, 4' % (sB, kl)); a('s_lshl_b32 %s, %s, 5' % (sB, sB)); a('s_add_u32 %s, %s, %s' % (sA, sA, sB))
            a('s_add_u32 %s, %s, %d' % (sA, sA, R1))
            a('v_add_u32 %s, %s, %s' % (v(dst), sA, v(T)))
        self.tr_lane(T, 512, 128)
        a('s_and_b32 %s, %s, 1' % (sA, sW)); a('s_mul_i32 %s, %s, 8208' % (sA, sA))
        a('s_bfe_u32 %s, %s, 0x10001' % (sB, sW)); a('s_mul_i32 %s, %s, 16448' % (sB, sB)); a('s_add_u32 %s, %s, %s' % (sA, sA, sB))
        a('s_lshr_b32 %s, %s, 2' % (sB, sW)); a('s_lshl_b32 %s, %s, 12' % (sB, sB)); a('s_add_u32 %s, %s, %s' % (sA, sA, sB))
        a('s_add_u32 %s, %s, %d' % (sA, sA, R1))
        a('v_add_u32 %s, %s, %s' % (v(V.X3r), sA, v(T)))
        a('v_bfe_u32 %s, %s, 3, 1' % (v(T), v(V.lane)))
        a('v_lshlrev_b32 %s, 15, %s' % (v(T), v(T)))
        a('v_lshl_add_u32 %s, %s, 21, %s' % (v(T), v(V.g), v(T)))
        a('v_and_b32 %s, 0x70, %s' % (v(T+1), v(V.l16)))
        a('v_add_u32 %s, %s, %s' % (v(V.Ooff), v(T), v(T+1)))
    def p3_soff(self):
        a = self.a
        a('s_lshl_b32 %s, %s, 16' % (sO[0], sW))
        a('s_lshl_b32 %s, %s, 12' % (sA, sSB)); a('s_add_u32 %s, %s, %s' % (sO[0], sO[0], sA))
        a('s_lshl_b32 %s, %s, 7' % (sA, sCB)); a('s_add_u32 %s, %s, %s' % (sO[0], sO[0], sA))
        a('s_lshl_b32 %s, %s, 11' % (sA, sP)); a('s_add_u32 %s, %s, %s' % (sO[0], sO[0], sA))
        for r in range(1, 4): a('s_add_u32 %s, %s, 0x%x' % (sO[r], sO[0], r*524288))
    def p3_issue(self):
        a = self.a
        a('s_add_u32 %s, %s, 0x%x' % (sA, sEld, self.ubase(1)))
        for q in range(4):
            a('buffer_load_dwordx4 %s, %s, %s, %s offen offset:%d %s' % (vr(V.L+4*q, 4), self.eld(q, 1), SWS, sA, 256*q, self.o['ld2']))
    def p3_compute(self):
        a = self.a; O, L, D = V.O, V.L, V.DA
        def normal():
            for i in range(4):
                a('s_waitcnt vmcnt(%d)' % (3-i))
                for sel in range(2):
                    for col in range(2):
                        a('v_mov_b32 %s, %s' % (v(O+4*(2*sel+col)+i), v(L+4*i+2*col+sel)))
        def w0():
            for i in range(4):
                ts, eb = i >> 1, i & 1
                a('s_waitcnt vmcnt(%d)' % (3-i))
                for col in range(2):
                    for sg in range(2):
                        a('v_mov_b32 %s, %s' % (v(O+4*(2*ts+col)+2*eb+sg), v(L+4*i+2*col+sg)))
        self.ifelse(sW, 0, w0, normal, True)
        self.stamp()
        for ti in range(4):
            self.mf16(D+4*ti, O+4*ti, V.M2+8*(ti >> 1))
            self.mf16(D+16+4*ti, O+4*ti, V.M2+8*(ti >> 1)+4)
        P = V.DB
        for ti in range(4):
            for pl in range(2):
                for k in range(2):
                    x = D+16*pl+4*ti+2*k
                    self.cvt(P+4*ti+2*pl+k, x, x+1)
            a('ds_write_b128 %s, %s offset:%d' % (v(V.X3w1 if ti >> 1 else V.X3w0), vr(P+4*ti, 4), (ti & 1)*2048))
        a('s_waitcnt lgkmcnt(0)')
        a('s_barrier')
        for t in range(4):
            for ii in range(2):
                a('ds_read_b64_tr_b16 %s, %s offset:%d' % (vr(O+4*t+2*ii, 2), v(V.X3r), ii*256+t*1024))
        for t in range(4):
            a('s_waitcnt lgkmcnt(%d)' % (6-2*t))
            self.mf16(D+4*t, V.F16, O+4*t)
            self.mf16(D+16+4*t, V.F16+4, O+4*t)
        for t in range(3):
            for r in range(4): self.cvt(P+4*r+t, D+16+4*t+r, D+4*t+r)
        for r in range(4):
            self.cvt(P+4*r+3, D+16+12+r, D+12+r)
            a('buffer_store_dwordx4 %s, %s, %s, %s offen %s' % (vr(P+4*r, 4), v(V.Ooff), SOUT, sO[r], self.o['sto']))

    def flush_tail(self):
        t, self.tail = self.tail, []
        for f in t: f()

    def kernel_head(self, name):
        self.a.raw('.globl %s\n.p2align 12\n.p2align 8\n.type %s,@function\n%s:' % (name, name, name))
    def kd(self, name):
        return '''.p2align 6
.amdhsa_kernel %s
  .amdhsa_next_free_vgpr %d
  .amdhsa_next_free_sgpr 102
  .amdhsa_accum_offset %d
  .amdhsa_group_segment_fixed_size 0
  .amdhsa_kernarg_size 72
  .amdhsa_user_sgpr_count 2
  .amdhsa_user_sgpr_kernarg_segment_ptr 1
  .amdhsa_system_sgpr_workgroup_id_x 1
.end_amdhsa_kernel''' % (name, NVGPR, (NVGPR+3)//4*4)

    def build_three(self):
        a = self.a
        names = ['gf_p1_kernel', 'gf_p2_kernel', 'gf_p3_kernel']
        self.kernel_head(names[0]); end = self.label('end')
        self.prologue(end); self.p1_load(); a('s_waitcnt lgkmcnt(0)'); self.p1_issue()
        self.ex_addrs(); self.p1_addrs(); self.gen_F16(); self.gen_M2()
        self.p1_compute(0)
        if self.o['ts']: self.stamp(); a('s_waitcnt vmcnt(0)'); self.stamp(); self.dump_stamps(0)
        a(end+':'); a('s_endpgm'); self.flush_tail()
        self.kernel_head(names[1]); end = self.label('end')
        self.prologue(end); self.ex_addrs(); self.calc_k0(); a('s_waitcnt lgkmcnt(0)')
        self.w_dma(); self.p2_addrs(); self.gen_B(); self.gen_F32TW()
        a('s_waitcnt vmcnt(0)'); self.w_regs(); a('s_waitcnt lgkmcnt(0)')
        self.p2_issue(); self.p2_compute()
        if self.o['ts']: self.stamp(); a('s_waitcnt vmcnt(0)'); self.stamp(); self.dump_stamps(8)
        a(end+':'); a('s_endpgm'); self.flush_tail()
        self.kernel_head(names[2]); end = self.label('end')
        self.prologue(end); self.ex_addrs(); a('s_waitcnt lgkmcnt(0)'); self.p3_issue()
        self.p3_addrs(); self.p3_soff(); self.gen_F16(); self.gen_M3()
        self.p3_compute()
        if self.o['ts']: self.stamp(); a('s_waitcnt vmcnt(0)'); self.stamp(); self.dump_stamps(16)
        a(end+':'); a('s_endpgm'); self.flush_tail()
        launch = ''.join('; @launch kernel=%s grid=(256,1,1) block=(512,1,1) lds=%d\n' % (n, LDS_TOTAL) for n in names)
        return self.finish(launch, names)

    def flag_addrs(self):
        a = self.a
        if self.o['ib']:
            a('s_lshr_b32 %s, %s, 4' % (sB, sT))
            for dst, wp, gr in ((sF, sW, sB), (sE, sB, sW)):
                a('s_lshl3_add_u32 %s, %s, %s' % (sA, sP, wp)); a('s_lshl_b32 %s, %s, 21' % (sA, sA))
                a('s_lshl_b32 %s, %s, 10' % (sC, gr)); a('s_add_u32 %s, %s, %s' % (sA, sA, sC))
                a('s_add_u32 %s, %s, 0x%x' % (dst, sA, WS_FLAG_IB))
            a('s_and_b32 %s, %s, 15' % (sA, sT)); a('s_add_u32 %s, %s, 8' % (sA, sA))
            a('s_lshl_b32 %s, %s, %s' % (sInc, sCh, sA)); a('s_add_u32 %s, %s, 1' % (sInc, sInc))
            a('v_lshl_add_u32 %s, %s, 2, 8' % (v(V.dummy), v(V.g)))
            return
        if self.o['fl'] != '':
            pol = int(self.o['fl'][1]); mode = self.o['fl'][0]
            a('s_lshr_b32 %s, %s, 4' % (sB, sT))
            for dst, wp, gr in ((sF, sW, sB), (sE, sB, sW)):
                a('s_lshl3_add_u32 %s, %s, %s' % (sA, sP, wp))
                if mode == 'x': a('s_xor_b32 %s, %s, %d' % (sC, sP, pol))
                else: a('s_lshr_b32 %s, %s, 2' % (sC, wp)); a('s_xor_b32 %s, %s, %d' % (sC, sC, pol))
                a('s_lshl1_add_u32 %s, %s, %s' % (sA, sA, sC))
                a('s_lshl3_add_u32 %s, %s, %s' % (sA, sA, gr))
                a('s_lshl_b32 %s, %s, 10' % (sA, sA))
                a('s_add_u32 %s, %s, 0x%x' % (dst, sA, WS_FLAG))
            return
        fs = int(self.o['fstride'])
        a('s_lshl_b32 %s, %s, %d' % (sA, sP, fs+6)); a('s_add_u32 %s, %s, 0x%x' % (sA, sA, WS_FLAG))
        a('s_lshr_b32 %s, %s, 4' % (sB, sT))
        a('s_lshl_b32 %s, %s, %d' % (sF, sW, fs+3)); a('s_add_u32 %s, %s, %s' % (sF, sF, sA))
        a('s_lshl_b32 %s, %s, %d' % (sC, sB, fs)); a('s_add_u32 %s, %s, %s' % (sF, sF, sC))
        a('s_lshl_b32 %s, %s, %d' % (sE, sB, fs+3)); a('s_add_u32 %s, %s, %s' % (sE, sE, sA))
        a('s_lshl_b32 %s, %s, %d' % (sC, sW, fs)); a('s_add_u32 %s, %s, %s' % (sE, sE, sC))
    def g1_probe(self):
        a = self.a
        NB = int(self.o['nb'])
        a('s_lshl3_add_u32 %s, s2, %s' % (sCh2, sW))
        def f():
            a('s_mov_b32 %s, 0x%x' % (sA, WS_FLAG2 + (int(self.o['pbase']) << 21)))
            for side in range(2):
                for k in range(NB):
                    r = 62+side*NB+k
                    a('s_mov_b32 s%d, 0x%x' % (r, SENT))
                    a('s_%s s%d, s[24:25], %s offset:0x%x glc' % (self.o['pop'], r, sA, side*0x2000 + (k & 1)*0x1000 + (k >> 1)*0x4000 + k*0x100))
        self.cond(sCh2, 8*8+PW, f)
    def g1_eval(self):
        a = self.a
        NB = int(self.o['nb'])
        def f():
            a('s_waitcnt lgkmcnt(%d)' % (NB+1))
            a('s_nop %s' % self.o['pnop'])
            a('s_mov_b32 %s, 0' % sA); a('s_mov_b32 %s, 0' % sB)
            for k in range(NB):
                a('s_cmp_lg_u32 s%d, 0x%x' % (62+NB+k, SENT)); a('s_addc_u32 %s, %s, 0' % (sB, sB))
            a('s_cmp_le_u32 %s, %s' % (sB, self.o['pthr']))
            a('s_cselect_b32 s94, 2, 3')
            if self.o['ts']:
                a('s_lshl_b32 %s, %s, 4' % (sA, sA)); a('s_lshl_b32 %s, %s, 8' % (sB, sB)); a('s_or_b32 s94, s94, %s' % sA); a('s_or_b32 s94, s94, %s' % sB)
            if self.o['force'] != '': a('s_mov_b32 s94, %d' % (2+int(self.o['force'])))
            a('s_atomic_or s94, s[20:21], 0x80')
        self.cond(sCh2, 8*8+PW, f)
    def g1_pre(self):
        a = self.a
        self.cond(sW, PW, lambda: a('s_load_dword s95, s[20:21], 0x80'))
    def g1_read(self):
        a = self.a
        def f():
            a('buffer_load_dword %s, %s, %s, 0 offen offset:128 sc1' % (v(V.dummy), v(V.EL), SDBG))
        self.cond(sW, PW, f)
    def g1_wait(self):
        a = self.a
        def f():
            lp, ok = self.label('g1'), self.label('g1ok')
            if self.g1na:
                a('v_cmp_ne_u32 vcc, 0, %s' % v(V.dummy))
                a('s_cbranch_vccnz %s' % ok)
            a('s_mov_b32 %s, 0' % sCnt)
            a(lp+':')
            a('s_waitcnt vmcnt(0)')
            a('v_cmp_ne_u32 vcc, 0, %s' % v(V.dummy))
            a('s_cbranch_vccnz %s' % ok)
            a('buffer_load_dword %s, %s, %s, 0 offen offset:128 sc1' % (v(V.dummy), v(V.EL), SDBG))
            a('s_add_u32 %s, %s, 1' % (sCnt, sCnt))
            a('s_cmp_lt_u32 %s, 0x%x' % (sCnt, SPIN_MAX))
            a('s_cbranch_scc1 %s' % lp)
            a('s_waitcnt vmcnt(0)')
            a(ok+':')
            a('ds_write_b32 %s, %s offset:4' % (v(V.dummy2), v(V.dummy)))
        self.cond(sW, PW, f)
    def g1_use(self):
        a = self.a
        a('s_waitcnt lgkmcnt(8)')
        a('v_readfirstlane_b32 %s, %s' % (sCh, v(V.dummy)))
        if self.o['ts']: a('s_mov_b32 s%d, %s' % (sTS+24, sCh))
        a('s_and_b32 %s, %s, 1' % (sCh, sCh)); a('s_lshl_b32 %s, %s, 13' % (sCh, sCh))
        a('s_xor_b32 %s, %s, %s' % (sEst, sEst, sCh))

    def p2_probe_issue(self):
        a = self.a
        def f():
            if self.o['ib3']:
                a('s_lshr_b32 %s, s2, 5' % sA); a('s_bfe_u32 %s, s2, 0x10004' % sCh2)
                a('s_lshl1_add_u32 %s, %s, %s' % (sA, sA, sCh2)); a('s_lshl_b32 %s, %s, 5' % (sA, sA))
                a('s_and_b32 %s, s2, 31' % sB); a('s_add_u32 %s, %s, %s' % (sA, sA, sB))
                a('s_lshl_b32 %s, %s, 8' % (sA, sA)); a('s_add_u32 %s, %s, 0x%x' % (sDP, sA, WS_FLAG2))
            else:
                a('s_bfe_u32 %s, %s, 0x30003' % (sA, sT)); a('s_lshl3_add_u32 %s, %s, %s' % (sA, sP, sA))
                a('s_lshr_b32 %s, %s, 6' % (sCh2, sT))
                a('s_lshl1_add_u32 %s, %s, %s' % (sA, sA, sCh2))
                a('s_and_b32 %s, %s, 7' % (sB, sT)); a('s_lshl3_add_u32 %s, %s, %s' % (sA, sA, sB))
                a('s_lshl_b32 %s, %s, 10' % (sA, sA)); a('s_add_u32 %s, %s, 0x%x' % (sDP, sA, WS_FLAG2))
            a('s_xor_b32 %s, %s, 0x2000' % (sDM, sDP))
            a('s_mov_b64 s[92:93], 0')
            a('s_atomic_swap s92, s[24:25], %s glc' % sDP)
            a('s_atomic_swap s93, s[24:25], %s glc' % sDM)
        self.cond(sW, PW, f)
    def p2_probe_eval(self):
        a = self.a; T = V.T
        def f():
            if self.o['r2']:
                a('s_waitcnt lgkmcnt(0)')
                a('s_atomic_swap s92, s[24:25], %s glc' % sDP)
                a('s_atomic_swap s93, s[24:25], %s glc' % sDM)
            a('s_waitcnt lgkmcnt(1)')
            a('s_nop %s' % self.o['pnop'])
            a('s_getreg_b32 %s, hwreg(HW_REG_IB_STS, 8, 4)' % sA)
            a('s_cmp_eq_u32 %s, 0' % sA)
            a('s_cselect_b32 %s, 1, 0' % sA)
            a('s_xor_b32 %s, %s, %s' % (sCh2, sCh2, sA))
            if self.o['force'] != '': a('s_xor_b32 %s, %s, %s' % (sCh2, sP, self.o['force']))
            if not self.o['ib3']:
                a('v_mov_b32 %s, %d' % (v(T), CNT)); a('v_mov_b32 %s, %s' % (v(T+1), sCh2))
                a('ds_write_b32 %s, %s offset:4' % (v(T), v(T+1)))
            if self.o['ib3']:
                l = self.label('nv')
                a('s_and_b32 %s, s2, 0x8f' % sA); a('s_cmp_lg_u32 %s, 8' % sA); a('s_cbranch_scc1 %s' % l)
                a('s_cmp_eq_u32 s2, 120'); a('s_cbranch_scc1 %s' % l)
                a('s_lshl_b32 s94, %s, 8' % sCh2); a('s_add_u32 s94, s94, 0x1001')
                a('s_atomic_add s94, s[20:21], 0x0')
                a(l+':')
        self.cond(sW, PW, f)
    def vote_read(self):
        a = self.a
        if self.o['novr']: return
        def f():
            a('s_mov_b32 s22, 256'); a('s_mov_b32 s23, 0x20000')
            a('v_mov_b32 %s, 0' % v(V.EL))
            a('buffer_load_dword %s, %s, %s, 0 offen sc1' % (v(V.dummy), v(V.EL), SDBG))
        self.cond(sW, PW, f)
    def vote_use(self):
        a = self.a; T = V.T
        def f():
            if not self.o['novr']:
                a('v_readfirstlane_b32 %s, %s' % (sA, v(V.dummy)))
                a('s_bfe_u32 %s, %s, 0x40008' % (sB, sA)); a('s_bfe_u32 %s, %s, 0x4000c' % (sC, sA))
                a('s_sub_u32 %s, %s, %s' % (sC, sC, sB))
                a('s_xor_b32 %s, %s, 1' % (sA, sP))
                a('s_cmp_ge_u32 %s, 4' % sB); a('s_cselect_b32 %s, %s, %s' % (sCh2, sA, sCh2))
                a('s_cmp_ge_u32 %s, 4' % sC); a('s_cselect_b32 %s, %s, %s' % (sCh2, sP, sCh2))
            a('v_mov_b32 %s, %s' % (v(T+1), sCh2))
            a('ds_write_b32 %s, %s offset:4' % (v(V.dummy2), v(T+1)))
        self.cond(sW, PW, f)
    def zero3(self):
        a = self.a
        a('s_sub_u32 %s, s2, 16' % sZ)
        a('s_and_b32 %s, %s, 0xffffffef' % (sZ, sZ))
        def f():
            a('s_lshr_b32 %s, s2, 5' % sA)
            a('s_lshl1_add_u32 %s, %s, %s' % (sA, sW, sA))
            a('s_lshl_b32 %s, %s, 13' % (sA, sA)); a('s_add_u32 %s, %s, 0x%x' % (sA, sA, WS_FLAG))
            for i in range(0, 8, 2): a('s_mov_b64 s[%d:%d], 0' % (84+i, 85+i))
            for i in range(8):
                a('s_atomic_swap s%d, s[24:25], %s offset:0x%x glc' % (84+i, sA, i << 10))
        self.cond(sZ, 0, f)
    def ready3(self):
        a = self.a
        def f():
            a('s_mov_b32 s94, 1')
            a('s_waitcnt lgkmcnt(0)')
            a('s_atomic_add s94, s[20:21], 0x0')
        self.cond(sZ, 0, f)
    def flag_addrs3(self):
        a = self.a
        a('s_lshr_b32 %s, %s, 4' % (sB, sT))
        for dst, wp, gr in ((sF, sW, sB), (sE, sB, sW)):
            a('s_lshl4_add_u32 %s, %s, %s' % (sC, wp, gr)); a('s_lshl_b32 %s, %s, 10' % (sC, sC))
            a('s_add_u32 %s, %s, 0x%x' % (dst, sC, WS_FLAG))
    def side3(self):
        a = self.a
        a('s_bfe_u32 %s, %s, 0x1000a' % (sCh2, sRv))
        a('s_xor_b32 %s, %s, %s' % (sCh2, sCh2, sP)); a('s_lshl_b32 %s, %s, 13' % (sCh2, sCh2))
        a('s_add_u32 %s, %s, %s' % (sF, sF, sCh2))
    def side3b(self):
        a = self.a
        a('s_add_u32 %s, %s, %s' % (sE, sE, sCh2))
        a('s_xor_b32 %s, %s, %s' % (sZp, sEst, sCh2))
    def side3c(self):
        a = self.a
        a('s_and_b32 %s, %s, 0x2000' % (sA, sZ)); a('s_xor_b32 %s, %s, %s' % (sA, sA, sCh2)); a('s_add_u32 %s, %s, %s' % (sEld, sEld, sA))
    def p2_choice_read(self):
        self.a('ds_read_b32 %s, %s offset:4' % (v(V.dummy), v(V.dummy2)))
    def p2_choice_use(self):
        a = self.a
        a('s_waitcnt lgkmcnt(8)')
        a('v_readfirstlane_b32 %s, %s' % (sCh2, v(V.dummy)))
        a('s_lshl_b32 %s, %s, 13' % (sA, sCh2))
        a('s_xor_b32 %s, %s, %s' % (sZp, sEst, sA))
        if self.o['ts']: a('s_mov_b32 s%d, %s' % (sTS+24, sCh2))
    def ex_addrs_ib2(self):
        a = self.a; T = V.T
        a('s_lshl_b32 %s, %s, 4' % (sB, sW)); a('s_xor_b32 %s, %s, %s' % (sB, sB, sT)); a('s_lshl_b32 %s, %s, 8' % (sB, sB))
        a('v_lshlrev_b32 %s, 4, %s' % (v(T), v(V.n)))
        a('v_lshl_add_u32 %s, %s, 10, %s' % (v(T), v(V.g), v(T)))
        a('v_xor_b32 %s, %s, %s' % (v(T), sB, v(T)))
        a('v_and_b32 %s, 0x6000, %s' % (v(T+1), v(T)))
        a('v_add_u32 %s, %s, %s' % (v(T), v(T), v(T+1)))
        a('v_lshl_add_u32 %s, %s, 18, %s' % (v(V.Est), v(V.g), v(T)))
        a('v_and_b32 %s, 0xdcff, %s' % (v(V.Eld0), v(T)))
        a('s_lshl3_add_u32 %s, %s, %s' % (sEst, sP, sW)); a('s_lshl_b32 %s, %s, 20' % (sEst, sEst))
        a('s_and_b32 %s, %s, 2' % (sA, sW)); a('s_lshl_b32 %s, %s, 12' % (sA, sA)); a('s_add_u32 %s, %s, %s' % (sEst, sEst, sA))
    def misc_ib2(self):
        a = self.a
        a('s_lshl_b32 %s, %s, 7' % (sEld, sP)); a('s_add_u32 %s, %s, %s' % (sEld, sEld, sT)); a('s_lshl_b32 %s, %s, 16' % (sEld, sEld))
        a('s_and_b32 %s, %s, 15' % (sA, sT)); a('s_add_u32 %s, %s, 8' % (sA, sA))
        a('s_lshl_b32 %s, %s, %s' % (sInc, sCh2, sA)); a('s_add_u32 %s, %s, 1' % (sInc, sInc))
        a('v_lshl_add_u32 %s, %s, 2, 8' % (v(V.dummy), v(V.g)))
        a('s_bfe_i32 %s, %s, 0x10005' % (sZ, sT))
    def ld_addrs_ib2(self):
        a = self.a; T = V.T
        a('s_xor_b32 %s, %s, %s' % (sA, sRv, sZ))
        a('v_lshrrev_b32 %s, %s, %s' % (v(T), v(V.dummy), sA))
        for q in range(4):
            a('v_bfe_u32 %s, %s, %d, 1' % (v(T+1), v(T), q))
            a('v_lshl_add_u32 %s, %s, 13, %s' % (v(T+2+q), v(T+1), v(V.Eld0)))
    def major_post(self):
        a = self.a; T = V.T
        def f():
            a('s_bfe_u32 %s, %s, 0x100008' % (sA, sRv)); a('s_bcnt1_i32_b32 %s, %s' % (sA, sA))
            a('s_cmp_gt_u32 %s, 8' % sA); a('s_cselect_b32 %s, 0x2000, 0' % sA)
            a('v_mov_b32 %s, %s' % (v(T), sA))
            a('ds_write_b32 %s, %s offset:8' % (v(V.dummy2), v(T)))
        self.cond(sW, 0, f)
    def major_read(self):
        self.a('ds_read_b32 %s, %s offset:8' % (v(V.dummy), v(V.dummy2)))
    def major_use(self):
        a = self.a
        a('v_readfirstlane_b32 %s, %s' % (sCh2, v(V.dummy)))
        a('s_xor_b32 %s, %s, %s' % (sZp, sEst, sCh2))
    def major_use2(self):
        a = self.a
        a('s_and_b32 %s, %s, 0x2000' % (sA, sZ)); a('s_xor_b32 %s, %s, %s' % (sA, sA, sCh2)); a('s_add_u32 %s, %s, %s' % (sEld, sEld, sA))
        a('s_lshr_b32 %s, %s, 4' % (sB, sT))
        for dst, wp, gr in ((sF, sW, sB), (sE, sB, sW)):
            a('s_lshl3_add_u32 %s, %s, %s' % (sA, sP, wp)); a('s_lshl4_add_u32 %s, %s, %s' % (sA, sA, gr)); a('s_lshl_b32 %s, %s, 10' % (sA, sA))
            a('s_add_u32 %s, %s, %s' % (sA, sA, sCh2)); a('s_add_u32 %s, %s, 0x%x' % (dst, sA, WS_FLAG2))

    def gz_issue(self):
        a = self.a
        a('s_sub_u32 %s, s2, 16' % sZ)
        a('s_and_b32 %s, %s, 0xffffffef' % (sZ, sZ))
        def f():
            a('s_lshr_b32 %s, s2, 5' % sZp)
            a('s_lshl1_add_u32 %s, %s, %s' % (sCh, sW, sZp))
            a('s_lshl_b32 %s, %s, 13' % (sCh, sCh)); a('s_add_u32 %s, %s, 0x%x' % (sCh, sCh, WS_FLAG))
            for i in range(0, 8, 2): a('s_mov_b64 s[%d:%d], 0' % (84+i, 85+i))
            for i in range(8):
                a('s_atomic_swap s%d, s[24:25], %s offset:0x%x glc' % (84+i, sCh, i << 10))
        self.cond(sZ, 0, f)
    def gz_publish(self):
        a = self.a
        def f():
            a('s_waitcnt lgkmcnt(0)')
            a('s_memtime s[84:85]')
            a('s_mov_b32 s88, 0')
            a('s_waitcnt lgkmcnt(0)')
            a('s_atomic_add s88, s[24:25], %s glc' % sCh)
            a('s_waitcnt lgkmcnt(0)')
            a('s_memtime s[86:87]')
            a('s_mul_i32 %s, %s, 13' % (sZp, sZp)); a('s_add_u32 %s, %s, 5' % (sZp, sZp))
            a('s_waitcnt lgkmcnt(0)')
            a('s_sub_u32 s84, s86, s84'); a('s_lshr_b32 s84, s84, 3'); a('s_min_u32 s84, s84, 0x3ff')
            a('s_lshl_b32 s84, s84, %s' % sZp); a('s_add_u32 s84, s84, 1')
            a('s_atomic_add s84, s[20:21], 0x0')
        self.cond(sZ, 0, f)
    def gz_read(self):
        a = self.a
        a('v_mov_b32 %s, 0' % v(V.EL))
        a('buffer_load_dword %s, %s, %s, 0 offen sc1' % (v(V.dummy), v(V.EL), SDBG))
    def gz_check(self):
        a = self.a; l0, l1 = self.label('gz'), self.label('gzok')
        a('s_waitcnt vmcnt(0)')
        a('v_readfirstlane_b32 %s, %s' % (sRv, v(V.dummy)))
        a('s_bitcmp1_b32 %s, 4' % sRv)
        a('s_cbranch_scc1 %s' % l1)
        a('s_mov_b32 %s, 0' % sCnt)
        a(l0+':')
        a('buffer_load_dword %s, %s, %s, 0 offen sc1' % (v(V.dummy), v(V.EL), SDBG))
        a('s_add_u32 %s, %s, 1' % (sCnt, sCnt))
        a('s_cmp_gt_u32 %s, 0x%x' % (sCnt, SPIN_MAX))
        a('s_waitcnt vmcnt(0)')
        a('v_readfirstlane_b32 %s, %s' % (sRv, v(V.dummy)))
        a('s_cbranch_scc1 %s' % l1)
        a('s_bitcmp0_b32 %s, 4' % sRv)
        a('s_cbranch_scc1 %s' % l0)
        a(l1+':')
        a('s_bfe_u32 %s, %s, 0xd0005' % (sA, sRv)); a('s_bfe_u32 %s, %s, 0xd0012' % (sB, sRv))
        a('s_cmp_lt_u32 %s, %s' % (sB, sA))
        a('s_cselect_b32 %s, 0x2000, 0' % sCh)
        if self.o['force'] != '': a('s_mov_b32 %s, %d' % (sCh, int(self.o['force']) << 13))
        a('s_xor_b32 %s, %s, %s' % (sEst, sEst, sCh))
        if self.o['ts']: a('s_mov_b32 s%d, %s' % (sTS+24, sRv))
    def gz_flag_addrs(self):
        a = self.a
        a('s_xor_b32 %s, %s, %s' % (sEld, sEld, sCh))
        a('s_lshr_b32 %s, %s, 4' % (sB, sT))
        if not self.o['optx']:
            for dst, wp, gr in ((sF, sW, sB), (sE, sB, sW)):
                a('s_and_b32 %s, %s, 3' % (sC, wp)); a('s_lshl2_add_u32 %s, %s, %s' % (sC, sP, sC))
                a('s_lshr_b32 %s, %s, 2' % (sA, wp)); a('s_lshl1_add_u32 %s, %s, %s' % (sC, sC, sA))
                a('s_lshl3_add_u32 %s, %s, %s' % (sC, sC, gr)); a('s_lshl_b32 %s, %s, 10' % (sC, sC))
                a('s_xor_b32 %s, %s, %s' % (sC, sC, sCh))
                a('s_add_u32 %s, %s, 0x%x' % (dst, sC, WS_FLAG))
            return
        a('s_lshl_b32 %s, %s, 13' % (sA, sP)); a('s_xor_b32 %s, %s, %s' % (sA, sA, sCh)); a('s_add_u32 %s, %s, 0x%x' % (sA, sA, WS_FLAG))
        for dst, wp, gr in ((sF, sW, sB), (sE, sB, sW)):
            a('s_lshl4_add_u32 %s, %s, %s' % (sC, wp, gr)); a('s_lshl_b32 %s, %s, 10' % (sC, sC))
            a('s_add_u32 %s, %s, %s' % (dst, sC, sA))

    def zero_flags_ib(self):
        a = self.a
        def f():
            a('s_waitcnt lgkmcnt(0)')
            a('s_lshl_b32 %s, %s, 13' % (sA, sCh)); a('s_add_u32 %s, %s, %s' % (sA, sA, sEst)); a('s_add_u32 %s, %s, 0x%x' % (sA, sA, WS_FLAG_IB))
            for i in range(0, 8, 2): a('s_mov_b64 s[%d:%d], 0' % (84+i, 85+i))
            for i in range(8):
                a('s_atomic_swap s%d, s[24:25], %s offset:0x%x glc' % (84+i, sA, i << 10))
        self.cond(sT, 1, f)
    def set_ready_ib(self):
        a = self.a
        def f():
            a('s_add_u32 %s, %s, 8' % (sA, sW)); a('s_lshl_b32 %s, %s, %s' % (sZ, sCh, sA)); a('s_add_u32 %s, %s, 1' % (sZ, sZ))
            a('s_waitcnt lgkmcnt(0)')
            a('s_atomic_add %s, s[20:21], %s' % (sZ, sRd))
        self.cond(sT, 1, f)
    def flag_side(self):
        a = self.a
        a('s_lshr_b32 %s, %s, 8' % (sRv, sRv))
        a('s_lshr_b32 %s, %s, %s' % (sA, sRv, sW)); a('s_and_b32 %s, %s, 1' % (sA, sA)); a('s_lshl_b32 %s, %s, 13' % (sA, sA)); a('s_add_u32 %s, %s, %s' % (sF, sF, sA))
    def flag_side2(self):
        a = self.a
        a('s_lshr_b32 %s, %s, 4' % (sB, sT))
        a('s_lshr_b32 %s, %s, %s' % (sA, sRv, sB)); a('s_and_b32 %s, %s, 1' % (sA, sA)); a('s_lshl_b32 %s, %s, 13' % (sA, sA)); a('s_add_u32 %s, %s, %s' % (sE, sE, sA))
    def zero_flags(self):
        a = self.a
        a('s_sub_u32 %s, s2, 16' % sZ)
        a('s_and_b32 %s, %s, 0xffffffef' % (sZ, sZ))
        def f():
            fs = int(self.o['fstride'])
            a('s_lshr_b32 %s, s2, 5' % sZp)
            a('s_lshl3_add_u32 %s, %s, %s' % (sA, sZp, sW))
            if self.o['fl'] != '':
                pol = int(self.o['fl'][1]); mode = self.o['fl'][0]; fs = 10
                if mode == 'x': a('s_xor_b32 %s, %s, %d' % (sC, sZp, pol))
                else: a('s_lshr_b32 %s, %s, 2' % (sC, sW)); a('s_xor_b32 %s, %s, %d' % (sC, sC, pol))
                a('s_lshl1_add_u32 %s, %s, %s' % (sA, sA, sC))
            a('s_lshl_b32 %s, %s, %d' % (sA, sA, fs+3)); a('s_add_u32 %s, %s, 0x%x' % (sA, sA, WS_FLAG))
            for i in range(0, 8, 2): a('s_mov_b64 s[%d:%d], 0' % (84+i, 85+i))
            for i in range(8):
                a('s_atomic_swap s%d, s[24:25], %s offset:0x%x glc' % (84+i, sA, i << fs))
            a('s_lshl_b32 %s, %s, 7' % (sZp, sZp))
        self.cond(sZ, 0, f)
    def set_ready(self):
        a = self.a
        def f():
            a('s_mov_b32 %s, 1' % sInc)
            a('s_waitcnt lgkmcnt(0)')
            a('s_atomic_add %s, s[20:21], %s' % (sInc, sZp))
        self.cond(sZ, 0, f)
    def ready_issue(self):
        self.a('s_load_dword %s, s[20:21], %s' % (sRv, sRd))
    def ready_check(self):
        a = self.a; l0, l1 = self.label('rdy'), self.label('rdyok')
        def notready():
            if self.o['g1']: a('s_cmp_lt_u32 %s, 16' % sRv)
            elif self.o['ib3']: a('s_and_b32 %s, %s, 0xff' % (sA, sRv)); a('s_cmp_lt_u32 %s, 23' % sA)
            else: a('s_bitcmp0_b32 %s, 3' % sRv)
        notready()
        a('s_cbranch_scc1 %s' % l0)
        a(l1+':')
        def tail():
            lp = self.label('rdyl')
            a(l0+':')
            a('s_mov_b32 %s, 0' % sCnt)
            a('v_mov_b32 %s, 0' % v(V.O+1))
            a(lp+':')
            a('buffer_load_dword %s, %s, %s, %s offen sc1' % (v(V.O), v(V.O+1), SDBG, sRd))
            a('s_add_u32 %s, %s, 1' % (sCnt, sCnt))
            a('s_cmp_gt_u32 %s, 0x%x' % (sCnt, SPIN_MAX))
            a('s_waitcnt vmcnt(0)')
            a('v_readfirstlane_b32 %s, %s' % (sRv, v(V.O)))
            a('s_cbranch_scc1 %s' % l1)
            notready()
            a('s_cbranch_scc1 %s' % lp)
            a('s_branch %s' % l1)
        self.tail.append(tail)
    def set_flag(self, ex):
        a = self.a
        if not ((self.o['ib'] or self.o['ib2']) and ex == 0): a('s_mov_b32 %s, 0x%x' % (sInc, 1 << (24*ex)))
        a('s_atomic_add %s, s[24:25], %s' % (sInc, sF))
    def poll(self, ex, under=None):
        a = self.a; lp, ok = self.label('poll'), self.label('pollok')
        if under:
            a('s_mov_b32 %s, 0' % sRv)
            a('s_atomic_add %s, s[24:25], %s glc' % (sRv, sE))
            under()
            a('s_waitcnt lgkmcnt(0)')
            a('s_bitcmp1_b32 %s, %d' % (sRv, 4+24*ex))
            a('s_cbranch_scc1 %s' % ok)
        a('s_mov_b32 %s, 0' % sCnt)
        a(lp+':')
        a('s_mov_b32 %s, 0' % sRv)
        a('s_atomic_add %s, s[24:25], %s glc' % (sRv, sE))
        a('s_add_u32 %s, %s, 1' % (sCnt, sCnt))
        a('s_cmp_gt_u32 %s, 0x%x' % (sCnt, SPIN_MAX))
        a('s_waitcnt lgkmcnt(0)')
        a('s_cbranch_scc1 %s' % ok)
        if self.o['slp']:
            a('s_bitcmp1_b32 %s, %d' % (sRv, 4+24*ex))
            a('s_cbranch_scc1 %s' % ok)
            a('s_sleep %s' % self.o['slp'])
            a('s_branch %s' % lp)
        else:
            a('s_bitcmp0_b32 %s, %d' % (sRv, 4+24*ex))
            a('s_cbranch_scc1 %s' % lp)
        a(ok+':')
        if self.o['pbar']: a('s_barrier')
    def code_pf(self, name):
        a = self.a
        l = self.label('pc')
        a('s_getpc_b64 s[28:29]')
        a(l+':')
        a('s_sub_u32 s28, s28, %s-%s' % (l, name))
        a('s_subb_u32 s29, s29, 0')
        a('v_lshlrev_b32 %s, 5, v0' % v(V.O+6))
        a('global_load_dword %s, %s, s[28:29]' % (v(V.dummy), v(V.O+6)))

    def code_spf(self, name):
        a = self.a
        l = self.label('pc')
        a('s_getpc_b64 s[28:29]')
        a(l+':')
        a('s_sub_u32 s28, s28, %s-%s' % (l, name))
        a('s_subb_u32 s29, s29, 0')
        a('s_lshr_b32 %s, s2, 4' % sA)
        a('s_lshl3_add_u32 %s, %s, %s' % (sA, sA, sW))
        a('s_lshl_b32 %s, %s, 7' % (sA, sA))
        a('s_load_dword s94, s[28:29], %s' % sA)

    def ifelse(self, reg, val, feq, fne, eq_first=False):
        a = self.a; l0, l1 = self.label('ie'), self.label('iend')
        if eq_first:
            a('s_cmp_lg_u32 %s, %d' % (reg, val)); a('s_cbranch_scc1 %s' % l0)
            feq(); a('s_branch %s' % l1); a(l0+':'); fne()
        else:
            a('s_cmp_eq_u32 %s, %d' % (reg, val)); a('s_cbranch_scc1 %s' % l0)
            fne(); a('s_branch %s' % l1); a(l0+':'); feq()
        a(l1+':')
    def touch(self, rnd):
        a = self.a
        a('s_mov_b64 exec, 0')
        for k in range(7):
            a('s_cmp_eq_u32 %s, %d' % (sW, k)); a('s_cbranch_scc1 stub_%d' % (8*rnd+k))
        a('s_branch stub_%d' % (8*rnd+7))
        a('ret_%d:' % rnd)
        a('s_mov_b64 exec, -1')

    def cond(self, reg, val, f):
        a = self.a; l = self.label('c')
        a('s_cmp_lg_u32 %s, %d' % (reg, val)); a('s_cbranch_scc1 %s' % l)
        f()
        a(l+':')

    def build_one(self):
        a = self.a; o = self.o
        name = NAME + '_kernel'
        self.kernel_head(name); end = self.label('end')
        self.prologue1(end)
        wA, wB = o['wA'], o['wB']
        def wat(pos, rows=(0, 1, 2, 3)):
            f = lambda: [self.w_dma1(i) for i in rows]
            if wA == pos and wB == pos: f()
            elif wA == pos: self.cond(sP, 0, f)
            elif wB == pos: self.cond(sP, 1, f)
        self.wat = wat
        bd = int(o['bdelay'])
        if o['touch'] == 'pre': self.touch(0)
        self.mark('touched')
        a('s_waitcnt lgkmcnt(0)')
        self.mark('karg')
        if o['wsoff']:
            a('s_add_u32 s24, s24, 0x%x' % (int(o['wsoff']) << 20)); a('s_addc_u32 s25, s25, 0')
        gz = o['gz']
        g1 = o['g1']
        if g1: self.g1_probe(); self.g1_pre(); self.zero3(); a('s_mov_b32 %s, 0' % sRd)
        elif gz: self.gz_issue()
        elif o['ib']: self.probe_issue()
        elif o['ib3']: self.p2_probe_issue(); self.zero3(); a('s_mov_b32 %s, 0' % sRd)
        elif o['ib2']: self.p2_probe_issue(); self.zero_flags()
        else: self.zero_flags()
        misc = lambda: (self.srds(), self.calc_k0(), self.w_prep(), 0 if g1 else self.gz_flag_addrs() if gz else self.flag_addrs3() if o['ib3'] else self.flag_addrs(), self.misc_ib2() if o['ib2'] else 0)
        if wB == 'first':
            def fb():
                misc(); self.w_dma()
                if bd == 0: self.p1_issue()
            self.ifelse(sP, 1, fb, self.p1_issue)
        elif bd: self.cond(sP, 0, self.p1_issue)
        else: self.p1_issue()
        if o['ib']: self.probe_eval(); self.zero_flags_ib()
        if g1: self.spec_early(); self.g1_eval(); a('s_mov_b32 s22, 256'); a('s_mov_b32 s23, 0x20000'); a('v_mov_b32 %s, 0' % v(V.EL))
        if gz: self.gz_publish(); a('s_mov_b32 s22, 256'); a('s_mov_b32 s23, 0x20000')
        if o['touch'] == 'post': self.touch(0)
        if o['touch']: self.cond(sT, 0, lambda: self.touch(1))
        if o['ib2']:
            if o['r2']: self.p1_addrs(); self.gen_F16(); self.p2_probe_eval(); self.coop_init()
            else: self.p2_probe_eval(); self.p1_addrs(); self.gen_F16(); self.coop_init()
        else: self.p1_addrs(); self.gen_F16(); self.coop_init()
        if bd == 1: self.cond(sP, 1, self.p1_issue)
        self.gen_M2()
        if o['ib']: self.ex_addrs_ib(); self.set_ready_ib()
        elif gz: self.ex_addrs()
        elif g1: self.ex_addrs(); self.ready3()
        elif o['ib3']: self.ex_addrs_ib2(); self.ready3()
        elif o['ib2']: self.ex_addrs_ib2(); self.set_ready()
        else: self.ex_addrs(); self.set_ready()
        X = [misc, self.coop_gen, lambda: self.gen_B(True, False), lambda: (self.p2_addrs(), self.w_addr())]
        nearly = max(0, bd-2)
        def early():
            for f in X[(1 if wB == 'first' else 0):nearly]: f()
            self.p1_issue()
        if bd >= 2: self.cond(sP, 1, early)
        self.mark('w1')
        def Xat(k):
            if k < nearly or (k == 0 and wB == 'first'): self.cond(sP, 0, X[k])
            else: X[k]()
        if gz: self.p1_compute(0, self.gz_read, None, lambda: (self.gz_check(), self.spec_early()))
        elif g1:
            if wA in ('c1', 'w1', 'w1h'): misc()
            na = 0
            if wA == 'w1': self.g1_read(); self.w_dma(); na = 4
            if wA == 'w1h': self.g1_read(); self.w_dma1(0); self.w_dma1(1); na = 2
            self.g1na = na
            self.p1_compute(na, (lambda: self.g1_read()) if not na else None, (self.w_dma if wA == 'c1' else None), self.g1_use, self.p2_choice_read, self.g1_wait)
        elif o['ib3']:
            self.vote_read()
            self.p1_compute(0, lambda: (self.vote_use(), self.spec_early()), None, self.p2_choice_use, self.p2_choice_read)
        elif o['ib2']: self.p1_compute(0, self.spec_early, None, self.p2_choice_use, self.p2_choice_read)
        else:
            def h1():
                if o['tlb1']:
                    a('s_add_u32 %s, %s, 0x%x' % (sA, sEst, self.ubase(0)))
                    a('v_and_b32 %s, 3, %s' % (v(V.T), v(V.lane)))
                    a('v_lshl_add_u32 %s, %s, 15, %s' % (v(V.T), v(V.T), v(V.Est)))
                    a('buffer_load_dword %s, %s, %s, %s offen' % (v(V.dummy), v(V.T), SWS, sA))
            if o['tlb1']: h1()
            self.p1_compute(1 if o['tlb1'] else 0, self.spec_early)
        self.stamp()
        if not gz: self.ready_issue()
        if wA not in ('c1', 'w1', 'w1h'): Xat(0)
        n = 0
        if wA == 'postS1':
            assert wB == wA
            self.w_dma(); n = 4
        if wA == 'half':
            self.w_dma1(0); self.w_dma1(1); n = 2
        if g1: self.gz_flag_addrs()
        Xat(1)
        self.coop_post()
        self.mark('w2a')
        a('s_waitcnt vmcnt(%d) lgkmcnt(0)' % n)
        self.stamp()
        if not gz: self.ready_check()
        if o['ib']: self.flag_side()
        if o['ib3']: self.side3()
        self.mark('rdy')
        self.set_flag(0)
        if o['ib']: self.flag_side2()
        if o['ib3']: self.side3b()
        def under1():
            self.w_sload()
            if wA == 'postF': self.w_dma()
            if wA == 'half': self.w_dma1(2); self.w_dma1(3)
            if o['tlb2']:
                a('s_add_u32 %s, %s, 0x%x' % (sA, sEst, self.ubase(1)))
                a('v_and_b32 %s, 3, %s' % (v(V.T), v(V.lane)))
                a('v_lshl_add_u32 %s, %s, 15, %s' % (v(V.T), v(V.T), v(V.Est)))
                a('buffer_load_dword %s, %s, %s, %s offen' % (v(V.dummy), v(V.T), SWS, sA))
            Xat(2); self.B_dup()
            Xat(3)
            if o['wearly']:
                for rho in range(16): self.w_read(rho)
            self.w_special()
        self.poll(0, under1)
        self.stamp()
        if self.o.get('fine'):
            a('s_memrealtime s[%d:%d]' % (sTS+2*self.nts, sTS+2*self.nts+1)); self.nts += 1
            self.fstamp()
        if o['ib']: self.ld_addrs_ib()
        if o.get('da') == 'votes':
            a('s_bfe_u32 s60, %s, 0x100008' % sRv); a('s_bcnt1_i32_b32 s60, s60')
            a('s_cmp_eq_u32 %s, 0' % sCh2); a('s_sub_u32 s58, 16, s60'); a('s_cmp_eq_u32 %s, 0' % sCh2); a('s_cselect_b32 s60, s60, s58')
            if 'dw' in o: a('s_cmp_eq_u32 %s, %s' % (sW, o['dw'])); a('s_cselect_b32 s60, s60, 0')
            a('s_mul_i32 s60, s60, 25'); a('s_mov_b32 s58, 0')
        if o['ib2']: self.ld_addrs_ib2()
        self.p2_issue()
        if o['ib3']: self.side3c()
        elif o['ib2']: self.major_post()
        self.p2na = 0
        if wA == 'bar':
            a('s_barrier'); self.w_dma(); self.p2na = 4
        elif wA == 'barh':
            a('s_barrier'); self.w_dma1(0); self.w_dma1(1); self.p2na = 2
        else: self.coop_wait()
        self.coop_read()
        self.p2_addrs2()
        a('s_waitcnt vmcnt(%d)' % (4+self.p2na))
        self.w_edge()
        if o['wearly']:
            self.cond(sSpec, 0, lambda: (a('s_waitcnt lgkmcnt(0)'), self.w_fix(0), self.w_fix(1)))
        self.p2_compute(None if o['wearly'] else True)
        self.stamp()
        if o['ib2'] and not o['ib3']: self.major_use2()
        self.gen_M3()
        self.mark('w3a')
        a('s_waitcnt vmcnt(0)')
        self.stamp()
        self.set_flag(1)
        self.poll(1, self.p3_addrs)
        self.stamp()
        self.p3_issue()
        self.p3_soff()
        self.p3_compute()
        if 'da' in o:
            self.stamp(); a('s_waitcnt vmcnt(0)'); self.stamp()
            lp = self.label('dg')
            a('s_waitcnt lgkmcnt(0)')
            if o.get('db') == 'wb':
                a('s_cmp_eq_u32 %s, 1' % sSpec); a('s_cselect_b32 s60, s58, s60')
            a('s_sub_u32 %s, s60, s58' % sA)
            if 'cyc' in o: a('s_lshr_b32 %s, %s, 2' % (sA, sA))
            else: a('s_lshl_b32 %s, %s, 2' % (sA, sA))
            if 'dt' in o:
                a('s_cmp_eq_u32 %s, %s' % (sT, o['dt'])); a('s_cselect_b32 %s, %s, 0' % (sA, sA))
            if 'dp' in o:
                a('s_cmp_eq_u32 %s, %s' % (sP, o['dp'])); a('s_cselect_b32 %s, %s, 0' % (sA, sA))
            a('s_add_u32 %s, %s, 3000' % (sA, sA))
            a(lp+':')
            a('s_memrealtime s[28:29]')
            a('s_waitcnt lgkmcnt(0)')
            a('s_sub_u32 %s, s28, s56' % sB)
            a('s_cmp_lt_u32 %s, %s' % (sB, sA))
            a('s_cbranch_scc1 %s' % lp)
        self.mark('end')
        if o['ts']:
            self.stamp(); a('s_waitcnt vmcnt(0)'); self.stamp()
            if 'diag' in o:
                i = int(o['diag']); lp = self.label('dg')
                a('s_waitcnt lgkmcnt(0)')
                if 'xw' in o:
                    a('s_getreg_b32 %s, hwreg(HW_REG_XCC_ID, 0, 4)' % sA)
                    a('s_sub_u32 %s, %s, s2' % (sA, sA)); a('s_and_b32 %s, %s, 7' % (sA, sA)); a('s_mul_i32 %s, %s, 400' % (sA, sA))
                    if int(o['xw']) >= 0:
                        a('s_cmp_eq_u32 s2, %s' % o['xw']); a('s_cselect_b32 %s, %s, 0' % (sA, sA))
                else:
                    a('s_sub_u32 %s, s%d, s%d' % (sA, sTS+2*i, sTS+2*int(o.get('dj', 0))))
                    a('s_lshl_b32 %s, %s, 2' % (sA, sA))
                    if 'dp' in o:
                        a('s_cmp_eq_u32 %s, %s' % (sP, o['dp'])); a('s_cselect_b32 %s, %s, 0' % (sA, sA))
                a('s_add_u32 %s, %s, 3000' % (sA, sA))
                a(lp+':')
                a('s_memrealtime s[28:29]')
                a('s_waitcnt lgkmcnt(0)')
                a('s_sub_u32 %s, s28, s%d' % (sB, sTS))
                a('s_cmp_lt_u32 %s, %s' % (sB, sA))
                a('s_cbranch_scc1 %s' % lp)
            else:
                if o['ib'] or o['gz'] or o['ib2'] or o['g1']: self.nts += 1
                self.dump_stamps(0)
        a(end+':'); a('s_endpgm'); self.flush_tail()
        if o['touch']: self.insert_stubs(name)
        a.raw('.fill (%s+16384-.)/4, 4, 0xbf810000' % name)
        launch = '; @launch grid=(256,1,1) block=(512,1,1) lds=%d\n' % LDS_TOTAL
        return self.finish(launch, [name])

    def insert_stubs(self, name):
        import subprocess, re
        from asmlib import Ins
        a = self.a
        txt = '.amdgcn_target "amdgcn-amd-amdhsa--gfx950"\n.text\n' + a.text() + ''.join('stub_%d:\n' % k for k in range(16)) + 's_endpgm\nspec_tab:\n'
        open('pass1.s', 'w').write(txt)
        subprocess.check_call(['clang', '-x', 'assembler', '-target', 'amdgcn-amd-amdhsa', '-mcpu=gfx950', '-c', 'pass1.s', '-o', 'pass1.o'])
        dis = subprocess.check_output(['llvm-objdump', '-d', '--mcpu=gfx950', 'pass1.o']).decode()
        addrs = [int(m.group(1), 16) for m in re.finditer(r'// ([0-9A-F]{12}):', dis)]
        real = [i for i, x in enumerate(a.ins) if x.kind != 'none']
        assert len(addrs) == len(real) + 1, (len(addrs), len(real))
        size = {real[k]: addrs[k+1] - addrs[k] for k in range(len(real))}
        pos = ENTRY_OFF; nxt = ENTRY_OFF + 1024 - 256
        nxt = (nxt + 1023)//1024*1024
        out = []; k = 0; prev = None; ez = False
        for i, x in enumerate(a.ins):
            if i in size:
                glued = prev is not None and (prev.op == 's_getpc_b64' or 'rel32' in x.text)
                if prev is not None and prev.text.strip() == 's_mov_b64 exec, 0': ez = True
                if prev is not None and prev.text.strip() == 's_mov_b64 exec, -1': ez = False
                glued = glued or ez
                if pos >= nxt and k < 16 and not glued:
                    out.append(Ins('stub_%d:' % k)); out.append(Ins('s_cbranch_execz ret_%d' % (k >> 3)))
                    pos += 4; k += 1; nxt += 1024
                pos += size[i]; prev = x
            out.append(x)
        self.code_end = pos
        while k < 16:
            out.append(Ins('stub_%d:' % k)); out.append(Ins('s_branch ret_%d' % (k >> 3))); k += 1
        a.ins = out

    def finish(self, launch, names):
        hdr = '; GFNet spectral filter (two heads): 2-D FFT via bf16 MFMA DFT stages. Generated by dev/gen.py\n' + launch
        s = hdr + '.amdgcn_target "amdgcn-amd-amdhsa--gfx950"\n.text\n' + self.a.text()
        s += '.section .rodata,"a"\n' + '\n'.join(self.kd(n) for n in names) + '\n' + self.spec_table() + '\n'
        return s

if __name__ == '__main__':
    mode = sys.argv[1]; out = sys.argv[2]
    opt = {}
    for kv in sys.argv[3:]:
        k, x = kv.split('=')
        opt[k] = {'True': True, 'False': False}.get(x, x.replace('+', ' '))
    g = Gen(mode, **opt)
    s = g.build_three() if mode == 'three' else g.build_one()
    assert g.a.verify() == 0
    open(out, 'w').write(s)
    print('vgprs', NVGPR, 'lds', LDS_TOTAL, 'nops', g.a.nops, 'lines', len(g.a.ins))
```

```python
import sys, struct, math, subprocess, re
from asmlib import Asm, Ins

NAME = 'concat_heads__spectral_gfnet__spectral_gfnet__prompt'
def f2u(x): return struct.unpack('<I', struct.pack('<f', x))[0]
def lit(x): return '0x%08x' % f2u(x)
def sigma(m): return (m & 1) | ((m >> 1) & 1) << 3 | ((m >> 2) & 1) << 1 | ((m >> 3) & 1) << 2 | (m & 16)

SC = 2.0**-22
SPIN_MAX = 0x4000
ENTRY_OFF = 0x300
PW = int([x for x in sys.argv if x.startswith('pw=')][0][3:]) if any(x.startswith('pw=') for x in sys.argv) else 7
R0 = 0
R1 = 33024
WL = 66048
SCR = WL + 8*4*1056
SCR_B = SCR + 36*256
TABL = SCR_B + 8192
CNT = TABL + 16384
LDS_TOTAL = CNT + 64
WS_U = (0, 8 << 20)
WS_FLAG = 16 << 20
WS_PROBE = 17 << 20
WS_TS = 72 << 20
class V: pass
_n = [0]
def alloc(n, align=1):
    b = (_n[0] + align - 1)//align*align
    _n[0] = b + n
    return b
V.tid = alloc(1); V.lane = alloc(1)
for nm in 'g n l16 TR Xoff Est Eld X0w X0r0 X0r1 X1w X1r X2w X2r WP WM zero cnt tmp'.split(): setattr(V, nm, alloc(1))
V.Ooff, V.X3w0, V.X3w1, V.X3r = V.Xoff, V.X0w, V.X0r0, V.X0r1
V.T = alloc(10)
V.O = alloc(16, 4)
V.DA = alloc(32, 4); V.DB = alloc(32, 4); V.L = V.DB
V.F16 = alloc(8, 4); V.M2 = alloc(16, 4)
V.F32 = alloc(32, 4); V.TW = alloc(32, 4); V.W = alloc(32, 4)
V.B = alloc(12, 4); V.Bp = alloc(8, 4); V.WF = alloc(4)
NVGPR = _n[0]
assert NVGPR <= 256, NVGPR
def v(i): return 'v%d' % i
def vr(i, n): return 'v[%d:%d]' % (i, i+n-1)
SX, SWR, SWI, SOUT, SDBG, SWS = 's[4:7]', 's[8:11]', 's[12:15]', 's[16:19]', 's[20:23]', 's[24:27]'
sP, sT, sW, sSB, sCB, sK0, sKP, sKM, sWp, sRv = ['s%d' % i for i in range(30, 40)]
sA, sB, sC, sD, sE, sF, sEst, sEld, sCnt, sSpec, sInc, sWL = ['s%d' % i for i in range(40, 52)]
sO = ['s52', 's53', 's54', 's55']
sTS = 56
sDP, sDM, sZ, sCh, sId = 's96', 's97', 's98', 's99', 's100'

class Gen:
    def __init__(self, **opt):
        self.o = dict(ldx='', ldw='', st1='sc1', st2='sc1', sto='sc1', ld1='sc1', ld2='sc1', ts=False,
                      prio=True, nb='6', pnop='15', force='', wpos='postX1', touch=True, w1n='9', spos='mid', split=False, map='2', rep='1', slp='', sthr='')
        self.o.update(opt)
        self.a = Asm(); self.lab = 0; self.nts = 0; self.sid = -1; self.tail = []
    def label(self, p='L'):
        self.lab += 1
        return '%s_%d' % (p, self.lab)

    def mark(self, nm, drain=False):
        o = self.o; hit = False
        if o.get('clk') and nm in ('w1', 'g1a', 'x1', 'x2', 'w3a', 'end'):
            for op in ('s_memrealtime', 's_memtime'):
                self.a('%s s[%d:%d]' % (op, sTS+2*self.nts, sTS+2*self.nts+1)); self.nts += 1
            self.a('s_waitcnt lgkmcnt(0)')
        if o.get('fine') and nm[0] == 'f':
            self.a('s_memtime s[%d:%d]' % (sTS+2*self.nts, sTS+2*self.nts+1)); self.nts += 1; hit = True
        for key, reg in (('da', 58), ('db', 60)):
            if o.get(key) == nm:
                self.a('%s s[%d:%d]' % ('s_memtime' if 'cyc' in o else 's_memrealtime', reg, reg+1)); hit = True
        if hit and drain: self.a('s_waitcnt lgkmcnt(0)')
    def stamp(self):
        self.sid += 1
        self.mark('s%d' % self.sid)
        if not self.o['ts'] or self.o.get('clk') or self.o.get('fine'): return
        self.a('s_memrealtime s[%d:%d]' % (sTS+2*self.nts, sTS+2*self.nts+1)); self.nts += 1
    def diag_end(self):
        a = self.a; o = self.o
        self.mark('end')
        if not (o['ts'] or 'da' in o): return
        self.stamp(); a('s_waitcnt vmcnt(0)'); self.stamp()
        a('s_waitcnt lgkmcnt(0)')
        if 'da' in o:
            lp = self.label('dg')
            a('s_sub_u32 %s, s60, s58' % sA)
            a('s_lshr_b32 %s, %s, 2' % (sA, sA) if 'cyc' in o else 's_lshl_b32 %s, %s, 2' % (sA, sA))
            for key, reg in (('dp', sP), ('dt', sT)):
                if key in o: a('s_cmp_eq_u32 %s, %s' % (reg, o[key])); a('s_cselect_b32 %s, %s, 0' % (sA, sA))
            a('s_add_u32 %s, %s, 3000' % (sA, sA))
            a(lp+':')
            a('s_memrealtime s[28:29]'); a('s_waitcnt lgkmcnt(0)')
            a('s_sub_u32 %s, s28, s56' % sB); a('s_cmp_lt_u32 %s, %s' % (sB, sA)); a('s_cbranch_scc1 %s' % lp)
            return
        a('s_lshl_b32 %s, %s, 7' % (sA, sId)); a('s_add_u32 %s, %s, 0x%x' % (sA, sA, WS_TS))
        a('s_mov_b64 exec, 1')
        for i in range(14):
            a('v_mov_b32 %s, s%d' % (v(V.T), sTS+2*i))
            a('buffer_store_dword %s, %s, %s, %s offen offset:%d' % (v(V.T), v(V.zero), SWS, sA, 4*i))
            a('s_nop 1')

    def cond(self, reg, val, f):
        a = self.a; l = self.label('c')
        a('s_cmp_lg_u32 %s, %d' % (reg, val)); a('s_cbranch_scc1 %s' % l)
        f(); a(l+':')
    def ifelse(self, reg, val, feq, fne, eq_first=False):
        a = self.a; l0, l1 = self.label('ie'), self.label('iend')
        if eq_first:
            a('s_cmp_lg_u32 %s, %d' % (reg, val)); a('s_cbranch_scc1 %s' % l0)
            feq(); a('s_branch %s' % l1); a(l0+':'); fne()
        else:
            a('s_cmp_eq_u32 %s, %d' % (reg, val)); a('s_cbranch_scc1 %s' % l0)
            fne(); a('s_branch %s' % l1); a(l0+':'); feq()
        a(l1+':')
    def far(self, reg, val, feq, fne=None):
        a = self.a; l0, l1 = self.label('far'), self.label('back')
        a('s_cmp_eq_u32 %s, %d' % (reg, val)); a('s_cbranch_scc1 %s' % l0)
        if fne: fne()
        a(l1+':')
        def t():
            a(l0+':'); feq(); a('s_branch %s' % l1)
        self.tail.append(t)
    def touch(self, rnd, half=False):
        a = self.a
        a('s_mov_b64 exec, 0')
        if half:
            for k in range(3):
                a('s_cmp_eq_u32 %s, %d' % (sW, 4+k)); a('s_cbranch_scc1 stub_%d' % (2*k))
            a('s_branch stub_6')
        else:
            for k in range(7):
                a('s_cmp_eq_u32 %s, %d' % (sW, k)); a('s_cbranch_scc1 stub_%d' % (8*rnd+k))
            a('s_branch stub_%d' % (8*rnd+7))
        a('ret_%d:' % rnd)
        a('s_mov_b64 exec, -1')

    def prologue(self, end):
        a = self.a; T = V.T
        a('s_cmp_ge_u32 s2, 0x100')
        a('s_cbranch_scc1 %s' % end)
        if 'da' in self.o: a('s_memrealtime s[56:57]'); self.mark('start')
        a('s_bfe_u32 %s, s2, 0x10002' % sP)
        a('s_mul_i32 s3, %s, 24' % sP)
        a('s_load_dwordx2 s[4:5], s[0:1], s3')
        a('s_load_dwordx2 s[24:25], s[0:1], 0x40')
        a('s_load_dwordx2 s[20:21], s[0:1], 0x38')
        a('s_load_dwordx2 s[8:9], s[0:1], s3 offset:8')
        a('s_load_dwordx2 s[12:13], s[0:1], s3 offset:16')
        a('s_load_dwordx2 s[16:17], s[0:1], 0x30')
        self.stamp()
        a('v_lshrrev_b32 %s, 6, v0' % v(T))
        a('v_and_b32 %s, 63, v0' % v(V.lane))
        a('v_readfirstlane_b32 %s, %s' % (sW, v(T)))
        mp = self.o['map']
        a('s_and_b32 %s, s2, 3' % sA)
        if mp in ('0', '1'):
            a('s_bfe_u32 %s, s2, 0x10003' % sB)
            if mp == '0': a('s_lshl1_add_u32 %s, %s, %s' % (sA, sA, sB))
            else: a('s_lshl2_add_u32 %s, %s, %s' % (sA, sB, sA))
            a('s_lshr_b32 %s, s2, 4' % sB)
            a('s_lshl4_add_u32 %s, %s, %s' % (sT, sA, sB))
        else:
            a('s_lshr_b32 %s, s2, 3' % sB)
            a('s_lshl2_add_u32 %s, %s, %s' % (sT, sB, sA))
            a('s_lshr_b32 %s, %s, 4' % (sA, sT)); a('s_and_b32 %s, %s, 15' % (sB, sT))
        a('s_bfe_u32 %s, %s, 0x10001' % (sC, sB))
        a('s_lshl1_add_u32 %s, %s, %s' % (sCB, sA, sC))
        a('s_lshr_b32 %s, %s, 2' % (sSB, sB))
        a('s_and_b32 %s, %s, 1' % (sC, sB))
        a('s_lshl1_add_u32 %s, %s, %s' % (sSB, sSB, sC))
        a('s_mov_b32 s6, 0x400000'); a('s_mov_b32 s7, 0x20000')
        a('v_lshrrev_b32 %s, 4, %s' % (v(V.g), v(V.lane)))
        a('v_lshlrev_b32 %s, 4, %s' % (v(V.l16), v(V.lane)))
        a('v_and_b32 %s, 8, v0' % v(T))
        a('v_lshlrev_b32 %s, 11, %s' % (v(T), v(T)))
        a('v_lshl_add_u32 %s, %s, 20, %s' % (v(T), v(V.g), v(T)))
        a('v_and_b32 %s, 0x70, %s' % (v(T+1), v(V.l16)))
        a('v_add_u32 %s, %s, %s' % (v(V.Xoff), v(T), v(T+1)))
        a('s_lshl4_add_u32 %s, %s, %s' % (sA, sW, sSB))
        a('s_lshl4_add_u32 %s, %s, %s' % (sA, sA, sCB))
        a('s_lshl_b32 %s, %s, 7' % (sO[0], sA))
        for r in range(1, 4): a('s_add_u32 %s, %s, 0x%x' % (sO[r], sO[0], r*262144))
        a('s_lshl3_add_u32 %s, s2, %s' % (sId, sW))
        a('s_xor_b32 %s, %s, %d' % (sCh, sId, 8*8+PW)); a('s_and_b32 %s, %s, 0xffffff7f' % (sCh, sCh))
        a('s_sub_u32 %s, s2, 16' % sZ); a('s_and_b32 %s, %s, 0xffffffef' % (sZ, sZ))
    def srds(self):
        a = self.a
        a('s_mov_b32 s10, 2101248'); a('s_mov_b32 s11, 0x20000')
        a('s_mov_b32 s14, 2101248'); a('s_mov_b32 s15, 0x20000')
        a('s_mov_b32 s18, 0x800000'); a('s_mov_b32 s19, 0x20000')
    def srds0(self):
        a = self.a
        a('s_mov_b32 s22, 256'); a('s_mov_b32 s23, 0x20000')
        a('s_mov_b32 s26, 0x%x' % ((80 if self.o['ts'] else 18) << 20)); a('s_mov_b32 s27, 0x20000')
        a('v_and_b32 %s, 15, %s' % (v(V.n), v(V.lane)))
        a('v_mov_b32 %s, 0' % v(V.zero)); a('v_mov_b32 %s, %d' % (v(V.cnt), CNT))

    def probe_issue(self):
        a = self.a; NB = int(self.o['nb'])
        def f():
            a('s_lshl_b32 %s, s2, 9' % sA); a('s_and_b32 %s, %s, 0x2000' % (sA, sA))
            a('s_mul_i32 %s, %s, 9' % (sA, sA)); a('s_add_u32 %s, %s, 0x%x' % (sA, sA, WS_PROBE))
            a('s_xor_b32 %s, %s, 0x2000' % (sB, sA))
            for side, base in enumerate((sA, sB)):
                for k in range(NB):
                    a('s_load_dword s%d, s[24:25], %s offset:0x%x glc' % (62+side*NB+k, base, (k & 1)*0x1000 + (k >> 1)*0x4000 + k*0x100))
        def g():
            self.cond(sW, PW, lambda: a('s_load_dword s95, s[20:21], 0x80'))
        self.ifelse(sCh, 0, f, g)
    def probe_eval(self):
        a = self.a; NB = int(self.o['nb'])
        def f():
            a('s_lshr_b32 %s, s2, 1' % sB); a('s_and_b32 %s, %s, 8' % (sB, sB))
            a('s_waitcnt lgkmcnt(%d)' % NB)
            a('s_nop %s' % self.o['pnop'])
            a('s_getreg_b32 %s, hwreg(HW_REG_IB_STS, 8, 4)' % sA)
            a('s_or_b32 %s, %s, 16' % (sA, sA)); a('s_lshl_b32 s94, %s, %s' % (sA, sB))
            a('s_atomic_or s94, s[20:21], 0x80')
        self.cond(sCh, 0, f)
    def clear_issue(self):
        a = self.a
        def f():
            a('s_lshr_b32 %s, s2, 5' % sA)
            a('s_lshl1_add_u32 %s, %s, %s' % (sA, sW, sA))
            a('s_lshl_b32 %s, %s, 13' % (sA, sA)); a('s_add_u32 %s, %s, 0x%x' % (sA, sA, WS_FLAG))
            for i in range(0, 8, 2): a('s_mov_b64 s[%d:%d], 0' % (84+i, 85+i))
            R = int(self.o['rep'])
            for i in range(8):
                for r in range(R-1): a('s_atomic_and s84, s[24:25], %s offset:0x%x' % (sA, (i << 10) + 256*(r+1)))
            for i in range(8): a('s_atomic_swap s%d, s[24:25], %s offset:0x%x glc' % (84+i, sA, i << 10))
        self.cond(sZ, 0, f)
    def clear_done(self):
        a = self.a
        def f():
            a('s_mov_b32 s94, 1'); a('s_waitcnt lgkmcnt(0)')
            a('s_atomic_add s94, s[20:21], 0x0')
        self.cond(sZ, 0, f)
    def side_load(self):
        self.a('buffer_load_dword %s, %s, %s, 0 offen offset:128 sc1' % (v(V.tmp), v(V.zero), SDBG))
    def side_wait(self):
        a = self.a
        def f():
            lp, ok = self.label('sw'), self.label('swok')
            a('s_mov_b32 %s, 0' % sCnt)
            a(lp+':')
            a('s_waitcnt vmcnt(0)')
            a('v_and_b32 %s, 0x1010, %s' % (v(V.T), v(V.tmp)))
            a('v_cmp_eq_u32 vcc, 0x1010, %s' % v(V.T))
            a('s_cbranch_vccnz %s' % ok)
            self.side_load()
            a('s_add_u32 %s, %s, 1' % (sCnt, sCnt))
            a('s_cmp_lt_u32 %s, 0x%x' % (sCnt, SPIN_MAX))
            a('s_cbranch_scc1 %s' % lp)
            a('s_waitcnt vmcnt(0)')
            a(ok+':')
            a('ds_write2_b32 %s, %s, %s offset0:0 offset1:1' % (v(V.cnt), v(V.tmp), v(V.zero)))
        self.cond(sW, PW, f)
    def side_use(self):
        a = self.a
        a('v_readfirstlane_b32 %s, %s' % (sA, v(V.tmp)))
        if self.o['ts']: a('s_mov_b32 s%d, %s' % (sTS+24, sA))
        a('s_and_b32 %s, %s, 15' % (sB, sA)); a('s_bfe_u32 %s, %s, 0x40008' % (sA, sA))
        a('s_cmp_gt_u32 %s, %s' % (sA, sB))
        a('s_cselect_b32 %s, 0x2000, 0' % sCh)
        if self.o['force'] != '': a('s_mov_b32 %s, %d' % (sCh, int(self.o['force']) << 13))
        a('s_xor_b32 %s, %s, %s' % (sEst, sEst, sCh))
    def flag_addrs(self):
        a = self.a
        a('s_lshr_b32 %s, %s, 4' % (sB, sT))
        a('s_lshl_b32 %s, %s, 13' % (sA, sP)); a('s_add_u32 %s, %s, 0x%x' % (sA, sA, WS_FLAG))
        for dst, wp, gr in ((sF, sW, sB), (sE, sB, sW)):
            a('s_lshl4_add_u32 %s, %s, %s' % (sC, wp, gr)); a('s_lshl_b32 %s, %s, 10' % (sC, sC))
            a('s_add_u32 %s, %s, %s' % (dst, sC, sA))
        R = int(self.o['rep'])
        if R > 1:
            a('s_and_b32 %s, %s, %d' % (sC, sT, R-1)); a('s_lshl_b32 %s, %s, 8' % (sC, sC)); a('s_add_u32 %s, %s, %s' % (sE, sE, sC))
    def side_apply(self):
        for r in (sF, sE, sEld): self.a('s_xor_b32 %s, %s, %s' % (r, r, sCh))
    def ready_check(self):
        a = self.a; l0, l1 = self.label('rdy'), self.label('rdyok')
        a('s_cmp_ge_u32 %s, 16' % sRv)
        a('s_cbranch_scc1 %s' % l1)
        a('s_mov_b32 %s, 0' % sCnt)
        a(l0+':')
        a('buffer_load_dword %s, %s, %s, 0 offen sc1' % (v(V.tmp), v(V.zero), SDBG))
        a('s_add_u32 %s, %s, 1' % (sCnt, sCnt))
        a('s_cmp_gt_u32 %s, 0x%x' % (sCnt, SPIN_MAX))
        a('s_waitcnt vmcnt(0)')
        a('s_cbranch_scc1 %s' % l1)
        a('v_cmp_gt_u32 vcc, 16, %s' % v(V.tmp))
        a('s_cbranch_vccnz %s' % l0)
        a(l1+':')
    def arrive(self):
        for r in range(int(self.o['rep'])): self.a('s_atomic_add %s, s[24:25], %s offset:%d' % (sInc, sF, 256*r))
    def poll(self, ex, under=None):
        a = self.a; lp, ok = self.label('poll'), self.label('pollok')
        if under:
            a('s_mov_b32 %s, 0' % sRv)
            a('s_atomic_add %s, s[24:25], %s glc' % (sRv, sE))
            under()
            a('s_waitcnt lgkmcnt(0)')
            a('s_bitcmp1_b32 %s, %d' % (sRv, 4+16*ex))
            a('s_cbranch_scc1 %s' % ok)
        a('s_mov_b32 %s, 0' % sCnt)
        a(lp+':')
        a('s_mov_b32 %s, 0' % sRv)
        a('s_atomic_add %s, s[24:25], %s glc' % (sRv, sE))
        a('s_add_u32 %s, %s, 1' % (sCnt, sCnt))
        a('s_cmp_gt_u32 %s, 0x%x' % (sCnt, SPIN_MAX))
        a('s_waitcnt lgkmcnt(0)')
        a('s_cbranch_scc1 %s' % ok)
        if self.o['slp']:
            a('s_bitcmp1_b32 %s, %d' % (sRv, 4+16*ex))
            a('s_cbranch_scc1 %s' % ok)
            if self.o['sthr']:
                a('s_bfe_u32 %s, %s, 0x%x' % (sA, sRv, 0x50000+16*ex))
                a('s_cmp_ge_u32 %s, %s' % (sA, self.o['sthr'])); a('s_cbranch_scc1 %s' % lp)
            a('s_sleep %s' % self.o['slp'])
            a('s_branch %s' % lp)
        else:
            a('s_bitcmp0_b32 %s, %d' % (sRv, 4+16*ex))
            a('s_cbranch_scc1 %s' % lp)
        a(ok+':')
    def ex_addrs(self):
        a = self.a; T = V.T
        a('s_lshl_b32 %s, %s, 4' % (sB, sW)); a('s_xor_b32 %s, %s, %s' % (sB, sB, sT)); a('s_lshl_b32 %s, %s, 8' % (sB, sB))
        a('v_lshlrev_b32 %s, 4, %s' % (v(T), v(V.n)))
        a('v_lshl_add_u32 %s, %s, 10, %s' % (v(T), v(V.g), v(T)))
        a('v_xor_b32 %s, %s, %s' % (v(T), sB, v(T)))
        a('v_and_b32 %s, 0x6000, %s' % (v(T+1), v(T)))
        a('v_add_u32 %s, %s, %s' % (v(T), v(T), v(T+1)))
        a('v_lshl_add_u32 %s, %s, 18, %s' % (v(V.Est), v(V.g), v(T)))
        a('v_and_b32 %s, 0xdcff, %s' % (v(V.Eld), v(T)))
        a('s_bfe_u32 %s, %s, 0x10001' % (sA, sW)); a('s_xor_b32 %s, %s, %s' % (sA, sA, sP))
        a('s_bfe_u32 %s, %s, 0x10005' % (sC, sT)); a('s_xor_b32 %s, %s, %s' % (sC, sC, sP))
        a('s_lshl_b32 %s, %s, 7' % (sEst, sW)); a('s_add_u32 %s, %s, %s' % (sEst, sEst, sA)); a('s_lshl_b32 %s, %s, 13' % (sEst, sEst))
        a('s_lshl3_add_u32 %s, %s, %s' % (sEld, sT, sC)); a('s_lshl_b32 %s, %s, 13' % (sEld, sEld))

    def trig(self, x, re, im, conj_re=None, conj_im=None):
        a = self.a; c, s = V.T+8, V.T+9
        a('v_cos_f32 %s, %s' % (v(c), v(x)))
        a('v_sin_f32 %s, %s' % (v(s), v(x)))
        if getattr(self, 'fill', None): self.fill(); self.fill = None
        a('v_cvt_pk_bf16_f32 %s, %s, %s' % (v(re), v(c), v(s)))
        a('v_cvt_pk_bf16_f32 %s, -%s, %s' % (v(im), v(s), v(c)))
        if conj_re is not None:
            a('v_xor_b32 %s, 0x80000000, %s' % (v(conj_re), v(re)))
            a('v_xor_b32 %s, 0x8000, %s' % (v(conj_im), v(im)))
    def ladder(self, x, step, regs):
        a = self.a
        for k, r in enumerate(regs):
            if k < len(regs)-1: self.fill = lambda: a('v_add_f32 %s, %s, %s' % (v(x), v(x), v(step)))
            self.trig(x, *r)
    def gen_F16(self):
        a = self.a; T = V.T
        a('v_cvt_f32_u32 %s, %s' % (v(T), v(V.n)))
        a('v_cvt_f32_u32 %s, %s' % (v(T+1), v(V.g)))
        a('v_mul_f32 %s, %s, %s' % (v(T), lit(1/16), v(T)))
        a('v_mul_f32 %s, 4.0, %s' % (v(T+1), v(T+1)))
        a('v_mul_f32 %s, %s, %s' % (v(T+2), v(T), v(T+1)))
        self.ladder(T+2, T, [(V.F16+r, V.F16+4+r) for r in range(4)])
    def gen_M2(self):
        a = self.a; T = V.T
        def normal():
            a('v_cvt_f32_u32 %s, %s' % (v(T+2), sW))
            a('v_fmac_f32 %s, %s, %s' % (v(T), lit(1/256), v(T+2)))
            a('v_mul_f32 %s, %s, %s' % (v(T+2), v(T), v(T+1)))
            self.ladder(T+2, T, [(V.M2+r, V.M2+4+r, V.M2+8+r, V.M2+12+r) for r in range(4)])
        def w0():
            a('v_lshrrev_b32 %s, 1, %s' % (v(T), v(V.n)))
            a('v_cvt_f32_u32 %s, %s' % (v(T), v(T)))
            a('v_lshlrev_b32 %s, 31, %s' % (v(T+3), v(V.n)))
            a('v_add_f32 %s, 0.5, %s' % (v(T+4), v(T)))
            a('v_xor_b32 %s, %s, %s' % (v(T+3), lit(1/16), v(T+3)))
            a('v_cmp_ne_u32 vcc, 1, %s' % v(V.n))
            a('v_mul_f32 %s, %s, %s' % (v(T), v(T), v(T+3)))
            a('v_mul_f32 %s, %s, %s' % (v(T+4), v(T+4), v(T+3)))
            a('v_cndmask_b32 %s, 0.5, %s, vcc' % (v(T), v(T)))
            for ts in range(2):
                d = T+4*ts
                a('v_mul_f32 %s, %s, %s' % (v(T+2), v(d), v(T+1)))
                self.ladder(T+2, d, [(V.M2+8*ts+r, V.M2+8*ts+4+r) for r in range(4)])
        self.ifelse(sW, 0, w0, normal)
    def gen_M3(self):
        a = self.a; T = V.T
        a('v_cvt_f32_u32 %s, %s' % (v(T), v(V.n)))
        a('v_mul_f32 %s, %s, %s' % (v(T+1), lit(1/256), v(T)))
        a('v_mul_f32 %s, %s, %s' % (v(T), lit(1/16), v(T)))
        def normal():
            a('v_lshl_add_u32 %s, %s, 6, %s' % (v(T+2), v(V.g), sW))
            a('v_cvt_f32_u32 %s, %s' % (v(T+2), v(T+2)))
            a('v_mul_f32 %s, %s, %s' % (v(T+2), v(T+2), v(T+1)))
            self.ladder(T+2, T, [(V.M2+r, V.M2+4+r, V.M2+8+r, V.M2+12+r) for r in range(4)])
        def w0():
            a('v_lshlrev_b32 %s, 5, %s' % (v(T+2), v(V.g)))
            a('v_cvt_f32_u32 %s, %s' % (v(T+2), v(T+2)))
            a('v_mul_f32 %s, 0.5, %s' % (v(T), v(T)))
            a('v_mul_f32 %s, %s, %s' % (v(T+2), v(T+2), v(T+1)))
            regs = []
            for k in range(4):
                b = V.M2+8*(k & 1)+2*(k >> 1)
                regs.append((b, b+4, b+1, b+5))
            self.ladder(T+2, T, regs)
            a('s_mov_b64 exec, 0xffff')
            a('v_lshlrev_b32 %s, 15, %s' % (v(T+2), v(V.n)))
            a('v_and_b32 %s, 0x8000, %s' % (v(T+2), v(T+2)))
            a('v_or_b32 %s, 0x3f80, %s' % (v(V.M2+1), v(T+2)))
            a('v_lshlrev_b32 %s, 16, %s' % (v(V.M2+5), v(V.M2+1)))
            a('s_mov_b64 exec, -1')
        self.ifelse(sW, 0, w0, normal)
    def sigma_lane(self, dst):
        a = self.a; t = V.T+7
        a('v_and_b32 %s, 17, %s' % (v(dst), v(V.lane)))
        a('v_bfe_u32 %s, %s, 2, 2' % (v(t), v(V.lane)))
        a('v_lshl_add_u32 %s, %s, 1, %s' % (v(dst), v(t), v(dst)))
        a('v_and_b32 %s, 2, %s' % (v(t), v(V.lane)))
        a('v_lshl_add_u32 %s, %s, 2, %s' % (v(dst), v(t), v(dst)))
    def coop_gen(self):
        a = self.a; T = V.T; X = V.DA
        self.sigma_lane(T)
        a('v_lshrrev_b32 %s, 5, %s' % (v(T+1), v(V.lane)))
        a('v_lshlrev_b32 %s, 7, %s' % (v(T+2), v(T+1)))
        a('v_lshl_add_u32 %s, %s, 1, %s' % (v(T+2), v(T), v(T+2)))
        a('s_and_b32 %s, %s, 2' % (sD, sKP)); a('s_sub_u32 %s, %s, %s' % (sD, sWL, sD))
        a('v_add_u32 %s, %s, %s' % (v(V.WP), sD, v(T+2)))
        a('s_add_u32 %s, %s, %d' % (sD, sD, 1024-832))
        a('v_sub_u32 %s, %s, %s' % (v(V.WM), sD, v(T+2)))
        a('v_cvt_f32_u32 %s, %s' % (v(T), v(T)))
        a('s_mul_i32 %s, %s, 4' % (sA, sW)); a('s_lshr_b32 %s, 0x75643120, %s' % (sA, sA)); a('s_and_b32 %s, %s, 7' % (sA, sA)); a('s_lshl_b32 %s, %s, 2' % (sA, sA))
        a('v_lshl_add_u32 %s, %s, 1, %s' % (v(T+1), v(T+1), sA))
        a('v_mul_f32 %s, %s, %s' % (v(T), lit(1/2048), v(T)))
        a('v_cvt_f32_u32 %s, %s' % (v(T+1), v(T+1)))
        a('v_mul_f32 %s, %s, %s' % (v(T+2), v(T+1), v(T)))
        for e in range(2):
            a('v_cos_f32 %s, %s' % (v(T+5), v(T+2)))
            a('v_sin_f32 %s, %s' % (v(T+6), v(T+2)))
            a('v_rcp_f32 %s, %s' % (v(T+5), v(T+5)))
            a('v_mul_f32 %s, %s, %s' % (v(T+3), lit(64.0), v(T+2)))
            a('v_mul_f32 %s, %s, %s' % (v(X+4+e), v(T+6), v(T+5)))
            a('v_fma_f32 %s, %s, %s, 1.0' % (v(T+5), v(X+4+e), v(X+4+e)))
            a('v_rcp_f32 %s, %s' % (v(T+6), v(T+5)))
            a('v_mul_f32 %s, -2.0, %s' % (v(T+4), v(X+4+e)))
            a('v_fma_f32 %s, -%s, %s, 1.0' % (v(T+5), v(T+5), v(T+6)))
            a('v_fmac_f32 %s, %s, %s' % (v(T+6), v(T+5), v(T+6)))
            a('v_mul_f32 %s, %s, %s' % (v(X+6+e), v(T+6), v(T+4)))
            if e == 0: self.fill = lambda: a('v_add_f32 %s, %s, %s' % (v(T+2), v(T+2), v(T)))
            self.trig(T+3, X+e, X+2+e)
        a('s_lshr_b32 %s, %s, 1' % (sA, sW)); a('s_lshl_b32 %s, %s, 7' % (sA, sA))
        a('s_and_b32 %s, %s, 1' % (sB, sW)); a('s_add_u32 %s, %s, %s' % (sA, sA, sB))
        a('s_lshl3_add_u32 %s, %s, %d' % (sA, sA, TABL))
        a('v_add_u32 %s, %s, %s' % (v(T), sA, v(V.l16)))
        for k in range(4): a('ds_write_b64 %s, %s offset:%d' % (v(T), vr(X+2*k, 2), 4096*k))
    def coop_post(self):
        a = self.a
        a('v_mov_b32 %s, 1' % v(V.T+1))
        a('ds_add_u32 %s, %s offset:4' % (v(V.cnt), v(V.T+1)))
    def coop_wait(self):
        a = self.a; T = V.T; lp, ok = self.label('cw'), self.label('cwok')
        a('s_mov_b32 %s, 0' % sCnt)
        a(lp+':')
        a('ds_read_b32 %s, %s offset:4' % (v(T), v(V.cnt)))
        a('s_add_u32 %s, %s, 1' % (sCnt, sCnt))
        a('s_cmp_gt_u32 %s, 0x%x' % (sCnt, SPIN_MAX*8))
        a('s_waitcnt lgkmcnt(0)')
        a('s_cbranch_scc1 %s' % ok)
        a('v_cmp_gt_u32 vcc, 0x200, %s' % v(T))
        a('s_cbranch_vccnz %s' % lp)
        a(ok+':')
    def coop_read(self):
        a = self.a; T = V.T
        a('v_add_u32 %s, %d, %s' % (v(T), TABL, v(V.l16)))
        for k in range(16): a('ds_read_b128 %s, %s offset:%d' % (vr(V.F32+4*k, 4), v(T), 1024*k))
    def calc_k0(self):
        a = self.a
        a('s_lshr_b32 %s, %s, 4' % (sA, sT)); a('s_and_b32 %s, %s, 15' % (sB, sT))
        a('s_lshl4_add_u32 %s, %s, %s' % (sK0, sB, sA))
        a('s_and_b32 %s, %s, 12' % (sC, sB)); a('s_bfe_u32 %s, %s, 0x10001' % (sD, sB)); a('s_add_u32 %s, %s, %s' % (sC, sC, sD))
        a('s_and_b32 %s, %s, 1' % (sD, sB)); a('s_lshl1_add_u32 %s, %s, %s' % (sC, sD, sC)); a('s_lshl_b32 %s, %s, 3' % (sC, sC))
        a('s_cmp_eq_u32 %s, 0' % sA); a('s_cselect_b32 %s, %s, %s' % (sK0, sC, sK0))
        a('s_cmp_eq_u32 %s, 0' % sT); a('s_cselect_b32 %s, 7, 8' % sA)
        a('s_lshl_b32 %s, %s, %s' % (sKP, sW, sA)); a('s_add_u32 %s, %s, %s' % (sKP, sKP, sK0))
        a('s_sub_u32 %s, 0x800, %s' % (sKM, sKP))
        a('s_cmp_eq_u32 %s, 0' % sKP)
        a('s_cselect_b32 %s, 0x400, %s' % (sKM, sKM)); a('s_cselect_b32 %s, 1, 0' % sSpec)
        a('s_mul_i32 %s, %s, 1026' % (sKP, sKP)); a('s_mul_i32 %s, %s, 1026' % (sKM, sKM))
        a('s_mul_i32 %s, %s, 4224' % (sWL, sW)); a('s_add_u32 %s, %s, %d' % (sWL, sWL, WL))
        a('s_and_b32 %s, %s, 2' % (sA, sKP))
        a('s_add_u32 %s, %s, %s' % (sDP, sKP, sA)); a('s_add_u32 %s, %s, %s' % (sDM, sKM, sA))
    def gen_B(self):
        a = self.a; T = V.T; c, s = T+8, T+9
        a('v_lshrrev_b32 %s, 1, %s' % (v(T), v(V.n)))
        a('v_cvt_f32_u32 %s, %s' % (v(T+2), v(V.g)))
        a('v_and_b32 %s, 1, %s' % (v(T+3), v(V.n)))
        a('v_add_f32 %s, %s, %s' % (v(T+2), v(T+2), v(T+2)))
        def normal():
            a('v_lshl_add_u32 %s, %s, 8, %s' % (v(T+1), v(T), sK0))
            a('v_lshlrev_b32 %s, 4, %s' % (v(T+4), v(T+3)))
            a('v_cvt_f32_u32 %s, %s' % (v(T+1), v(T+1)))
            a('v_lshlrev_b32 %s, 31, %s' % (v(T+6), v(V.n)))
            a('v_cvt_f32_u32 %s, %s' % (v(T+3), v(T+3)))
            a('v_mul_f32 %s, %s, %s' % (v(T+1), lit(1/2048), v(T+1)))
            a('s_brev_b32 %s, 1' % sA)
            a('v_lshrrev_b32 %s, %s, %s' % (v(T+4), v(T+4), sA))
            a('v_mul_f32 %s, %s, %s' % (v(T+5), v(T+1), v(T+2)))
            a('v_fmac_f32 %s, %s, %s' % (v(T+5), lit(0.25), v(T+3)))
            for sbb in range(2):
                if sbb == 0: self.fill = lambda: a('v_add_f32 %s, %s, %s' % (v(T+5), v(T+5), v(T+1)))
                else: self.fill = lambda: a('v_cvt_f32_u32 %s, %s' % (v(T), v(T)))
                self.trig(T+5, V.B+2*sbb, V.B+6+2*sbb)
                a('v_xor_b32 %s, %s, %s' % (v(V.B+2*sbb+1), v(V.B+2*sbb), v(T+4)))
                a('v_xor_b32 %s, %s, %s' % (v(V.B+6+2*sbb+1), v(V.B+6+2*sbb), v(T+4)))
            a('v_lshl_add_u32 %s, %s, 9, %s' % (v(T+1), v(V.g), sK0))
            a('v_xor_b32 %s, %s, %s' % (v(T), v(T), v(T+6)))
            a('v_cvt_f32_u32 %s, %s' % (v(T+1), v(T+1)))
            a('v_mul_f32 %s, 0.5, %s' % (v(T+5), v(T+3)))
            a('v_mul_f32 %s, %s, %s' % (v(T+1), lit(1/2048), v(T+1)))
            a('v_fmac_f32 %s, %s, %s' % (v(T+5), v(T+1), v(T)))
            for ii in range(2):
                a('v_cos_f32 %s, %s' % (v(c), v(T+5)))
                a('v_sin_f32 %s, %s' % (v(s), v(T+5)))
                a('v_mul_f32 %s, %s, %s' % (v(c), lit(SC), v(c)))
                a('v_mul_f32 %s, %s, %s' % (v(s), lit(SC), v(s)))
                if ii == 0: a('v_fmac_f32 %s, %s, %s' % (v(T+5), lit(0.125), v(T)))
                a('v_cvt_pk_bf16_f32 %s, %s, %s' % (v(T+1), v(c), v(s)))
                a('v_cvt_pk_bf16_f32 %s, -%s, %s' % (v(T+2), v(s), v(c)))
                a('v_xor_b32 %s, %s, %s' % (v(V.Bp+2*ii), v(T+1), v(T+6)))
                a('v_xor_b32 %s, %s, %s' % (v(V.Bp+4+2*ii), v(T+2), v(T+6)))
                a('v_xor_b32 %s, %s, %s' % (v(V.Bp+2*ii+1), v(T+2), v(T+6)))
                a('v_xor_b32 %s, 0x80008000, %s' % (v(V.Bp+4+2*ii+1), v(V.Bp+2*ii)))
        def special():
            a('v_cvt_f32_u32 %s, %s' % (v(T+1), v(T)))
            a('v_mul_f32 %s, %s, %s' % (v(T+1), lit(1/16), v(T+1)))
            a('v_lshlrev_b32 %s, 4, %s' % (v(T+4), v(T+3)))
            a('v_cmp_eq_u32 s[84:85], 0, %s' % v(T))
            a('v_and_b32 %s, 1, %s' % (v(T+6), v(T)))
            a('v_cmp_eq_u32 s[86:87], 1, %s' % v(T+6))
            a('v_mul_f32 %s, %s, %s' % (v(T+5), v(T+1), v(T+2)))
            for sbb in range(2):
                a('v_cos_f32 %s, %s' % (v(c), v(T+5)))
                a('v_sin_f32 %s, %s' % (v(s), v(T+5)))
                a('v_mul_f32 %s, 2.0, %s' % (v(c), v(c)))
                a('v_mul_f32 %s, -2.0, %s' % (v(s), v(s)))
                a('v_cndmask_b32 %s, %s, 1.0, s[84:85]' % (v(c), v(c)))
                a('v_cndmask_b32 %s, %s, %s, s[84:85]' % (v(s), v(s), '-1.0' if sbb else '1.0'))
                for src, dst in ((c, V.B+2*sbb), (s, V.B+6+2*sbb)):
                    a('v_cvt_pk_bf16_f32 %s, %s, 0' % (v(T+7), v(src)))
                    a('v_lshlrev_b32 %s, %s, %s' % (v(T+7), v(T+4), v(T+7)))
                    a('v_cndmask_b32 %s, %s, 0, s[86:87]' % (v(dst), v(T+7)))
                    a('v_cndmask_b32 %s, 0, %s, s[86:87]' % (v(dst+1), v(T+7)))
                a('v_add_f32 %s, %s, %s' % (v(T+5), v(T+5), v(T+1)))
            a('v_cmp_eq_u32 s[88:89], 0, %s' % v(V.g))
            a('v_cmp_eq_u32 s[90:91], 1, %s' % v(T+3))
            a('v_lshlrev_b32 %s, 31, %s' % (v(T+6), v(T)))
            a('v_xor_b32 %s, %s, %s' % (v(T+6), lit(SC), v(T+6)))
            a('v_mov_b32 %s, %s' % (v(T+4), lit(SC)))
            a('v_mul_f32 %s, %s, %s' % (v(T+5), v(T+1), v(T+2)))
            for ii in range(2):
                a('v_cos_f32 %s, %s' % (v(c), v(T+5)))
                a('v_sin_f32 %s, %s' % (v(s), v(T+5)))
                a('v_mul_f32 %s, %s, %s' % (v(c), lit(2*SC), v(c)))
                a('v_mul_f32 %s, %s, %s' % (v(s), lit(-2*SC), v(s)))
                if ii == 0:
                    a('v_cndmask_b32 %s, %s, %s, s[88:89]' % (v(c), v(c), v(T+4)))
                    a('v_cndmask_b32 %s, %s, %s, s[88:89]' % (v(s), v(s), v(T+6)))
                a('v_cvt_pk_bf16_f32 %s, %s, %s' % (v(T+7), v(s), v(c)))
                if ii: a('v_cndmask_b32 %s, 0, %s, s[90:91]' % (v(T+7), v(T+7)))
                else: a('v_cndmask_b32 %s, %s, 0, s[90:91]' % (v(T+7), v(T+7)))
                a('v_mov_b32 %s, 0' % v(V.Bp+2*ii)); a('v_mov_b32 %s, %s' % (v(V.Bp+2*ii+1), v(T+7)))
                a('v_mov_b32 %s, %s' % (v(V.Bp+4+2*ii), v(T+7))); a('v_mov_b32 %s, 0' % v(V.Bp+4+2*ii+1))
                a('v_add_f32 %s, %s, %s' % (v(T+5), v(T+5), v(T+1)))
        self.far(sT, 0, special, normal)
        for d, r in ((4, 0), (5, 1), (10, 6), (11, 7)): a('v_mov_b32 %s, %s' % (v(V.B+d), v(V.B+r)))

    def wq(self, rho): return (rho & 1) + 8*((rho >> 1) & 1) + 4*((rho >> 2) & 1)
    def w_dma1(self, i):
        a = self.a
        srd, so = [(SWR, sDP), (SWI, sDP), (SWR, sDM), (SWI, sDM)][i]
        a('s_add_u32 m0, %s, %d' % (sWL, 1056*i))
        a('buffer_load_dwordx4 %s, %s, %s offen %s lds' % (v(V.l16), srd, so, self.o['ldw']))
    def w_dma(self):
        for i in range(4): self.w_dma1(i)
    def w_edge_load(self):
        a = self.a; T = V.T
        a('s_mov_b64 exec, 15')
        a('v_mov_b32 %s, %s' % (v(T), sKP)); a('v_mov_b32 %s, %s' % (v(T+1), sKM))
        a('s_mov_b64 vcc, 10')
        a('v_cndmask_b32 %s, %s, %s, vcc' % (v(T), v(T), v(T+1)))
        a('v_and_b32 %s, 2, %s' % (v(T+1), v(V.lane)))
        a('v_lshl_add_u32 %s, %s, 9, %s' % (v(T), v(T+1), v(T)))
        a('buffer_load_short_d16_hi %s, %s, %s, 0 offen' % (v(V.WF), v(T), SWR))
        a('buffer_load_short_d16_hi %s, %s, %s, 0 offen' % (v(V.WF+1), v(T), SWI))
        a('s_mov_b64 exec, -1')
    def w_edge_rl(self):
        for l in range(4):
            for im in range(2): self.a('v_readlane_b32 s%d, %s, %d' % (84+2*l+im, v(V.WF+im), l))
    def w_edge(self):
        a = self.a; T = V.T
        self.w_edge_rl()
        q = ((84, 86, 'add'), (85, 87, 'sub'), (90, 88, 'add'), (91, 89, 'sub'))
        for i, (x, y, op) in enumerate(q): a('v_mov_b32 %s, s%d' % (v(T+i), y))
        for i, (x, y, op) in enumerate(q): a('v_%s_f32 %s, s%d, %s' % (op, v(V.WF+i), x, v(T+i)))
        for i in range(4): a('v_mul_f32 %s, 0.5, %s' % (v(V.WF+i), v(V.WF+i)))
        a('s_mov_b64 s[92:93], 1')
    def w_read1(self, rho, im, dst=None, swap=False):
        dst = V.W if dst is None else dst
        if rho < 8: ad, off = V.WP, 64*self.wq(rho) + (2112 if swap else 0)
        else: ad, off = V.WM, 64*(13-self.wq(rho)) + (0 if swap else 2112)
        return 'ds_read_u16_d16_hi %s, %s offset:%d' % (v(dst+16*im+rho), v(ad), off+1056*im)
    def w_fix(self, half):
        return ['v_cndmask_b32 %s, %s, %s, s[92:93]' % (v(V.W+8*half+16*im), v(V.W+8*half+16*im), v(V.WF+2*half+im)) for im in range(2)]
    def w_special(self):
        a = self.a; T = V.T; X = V.DA
        def f():
            for sw, dst in ((False, V.W), (True, X)):
                for rho in range(16):
                    for im in range(2): a(self.w_read1(rho, im, dst, sw))
            a('s_waitcnt lgkmcnt(0) vmcnt(0)')
            self.w_edge_rl()
            a('s_mov_b64 exec, 1')
            for r in (V.W+16, V.W+24, X+16, X+24): a('v_mov_b32 %s, 0' % v(r))
            a('v_mov_b32 %s, s90' % v(V.W+8)); a('v_mov_b32 %s, s88' % v(X+8))
            a('s_mov_b64 exec, -1')
            for i in range(32):
                a('v_add_f32 %s, %s, %s' % (v(V.W+i), v(V.W+i), v(X+i)))
                if (i & 15) < 8: a('v_fma_f32 %s, -2.0, %s, %s' % (v(X+i), v(X+i), v(V.W+i)))
                else: a('v_fma_f32 %s, 2.0, %s, -%s' % (v(X+i), v(X+i), v(V.W+i)))
            a('v_add_u32 %s, %d, %s' % (v(T+1), SCR_B, v(V.l16)))
            for i in range(8): a('ds_write_b128 %s, %s offset:%d' % (v(T+1), vr(X+4*i, 4), 1024*i))
        self.far(sSpec, 1, f)

    def addrs1(self):
        a = self.a; T = V.T
        a('v_lshrrev_b32 %s, 3, %s' % (v(T), v(V.lane)))
        a('v_and_b32 %s, 0x30, %s' % (v(T+1), v(V.l16)))
        a('v_lshl_add_u32 %s, %s, 6, %s' % (v(T), v(T), v(T+1)))
        a('v_and_b32 %s, 4, %s' % (v(T+1), v(V.lane)))
        a('v_lshl_add_u32 %s, %s, 1, %s' % (v(V.TR), v(T+1), v(T)))
        a('v_xor_b32 %s, %s, %s' % (v(T), sSB, v(V.lane)))
        a('v_and_b32 %s, 1, %s' % (v(T), v(T)))
        a('v_mul_u32_u24 %s, 16448, %s' % (v(T), v(T)))
        a('v_lshl_add_u32 %s, %s, 12, %s' % (v(T), v(V.g), v(T)))
        a('v_lshl_add_u32 %s, %s, 2, %s' % (v(T), v(T+1), v(T)))
        a('v_and_b32 %s, 0x60, %s' % (v(T+1), v(V.TR)))
        a('s_lshr_b32 %s, %s, 1' % (sWp, sW)); a('s_and_b32 %s, %s, 1' % (sA, sW))
        a('s_lshl2_add_u32 %s, %s, %s' % (sWp, sA, sWp)); a('s_lshl_b32 %s, %s, 7' % (sWp, sWp))
        a('v_add3_u32 %s, %s, %s, %s' % (v(V.X0w), v(T), v(T+1), sWp))
        a('s_lshl_b32 %s, %s, 10' % (sA, sW))
        a('s_sub_u32 %s, 0x4000, %s' % (sB, sA))
        a('s_cmp_eq_u32 %s, 0' % sW); a('s_cselect_b32 %s, 0x2000, %s' % (sB, sB))
        a('v_add_u32 %s, %s, %s' % (v(V.X0r0), sA, v(V.TR)))
        a('v_add_u32 %s, %s, %s' % (v(V.X0r1), sB, v(V.TR)))
    def addrs2(self):
        a = self.a; T = V.T
        a('v_lshlrev_b32 %s, 4, %s' % (v(T), v(V.n)))
        a('v_lshl_add_u32 %s, %s, 13, %s' % (v(T), v(V.g), v(T)))
        a('s_lshl_b32 %s, %s, 9' % (sA, sW)); a('s_add_u32 %s, %s, %d' % (sA, sA, R1))
        a('v_add_u32 %s, %s, %s' % (v(V.X1w), sA, v(T)))
        a('s_lshl_b32 %s, %s, 12' % (sA, sW)); a('s_add_u32 %s, %s, %d' % (sA, sA, R1))
        a('v_add_u32 %s, %s, %s' % (v(V.X1r), sA, v(V.TR)))
        a('v_and_b32 %s, 16, %s' % (v(T), v(V.l16)))
        a('v_and_b32 %s, 2, %s' % (v(T+1), v(V.lane)))
        a('v_bfe_u32 %s, %s, 2, 1' % (v(T+2), v(V.lane)))
        a('v_add_u32 %s, %s, %s' % (v(T+1), v(T+1), v(T+2)))
        a('v_mul_u32_u24 %s, 8224, %s' % (v(T+1), v(T+1)))
        a('v_bfe_u32 %s, %s, 3, 2' % (v(T+2), v(V.lane)))
        a('v_lshl_add_u32 %s, %s, 11, %s' % (v(T), v(T+2), v(T)))
        a('v_and_b32 %s, 32, %s' % (v(T+2), v(V.lane)))
        a('v_add3_u32 %s, %s, %s, %s' % (v(T), v(T), v(T+1), v(T+2)))
        a('v_add_u32 %s, %s, %s' % (v(V.X2w), sWp, v(T)))
        a('s_and_b32 %s, %s, 1' % (sA, sW)); a('s_lshr_b32 %s, %s, 2' % (sB, sW)); a('s_lshl1_add_u32 %s, %s, %s' % (sA, sB, sA)); a('s_lshl_b32 %s, %s, 11' % (sA, sA))
        a('s_and_b32 %s, %s, 2' % (sB, sW)); a('s_mul_i32 %s, %s, 8224' % (sB, sB)); a('s_add_u32 %s, %s, %s' % (sA, sA, sB))
        a('v_add_u32 %s, %s, %s' % (v(V.X2r), sA, v(V.TR)))
    def addrs3(self):
        a = self.a; T = V.T
        a('v_and_b32 %s, 16, %s' % (v(T), v(V.lane)))
        a('v_and_b32 %s, 33, %s' % (v(T+1), v(V.lane)))
        a('v_lshl_add_u32 %s, %s, 5, %s' % (v(T), v(T+1), v(T)))
        a('v_and_b32 %s, 8, %s' % (v(T+1), v(V.lane)))
        a('v_lshl_add_u32 %s, %s, 9, %s' % (v(T), v(T+1), v(T)))
        a('v_and_b32 %s, 2, %s' % (v(T+1), v(V.lane)))
        a('v_and_b32 %s, 4, %s' % (v(T+2), v(V.lane)))
        a('v_mul_u32_u24 %s, 4104, %s' % (v(T+1), v(T+1)))
        a('v_mul_u32_u24 %s, 4112, %s' % (v(T+2), v(T+2)))
        a('v_add3_u32 %s, %s, %s, %s' % (v(T), v(T), v(T+1), v(T+2)))
        a('s_sub_u32 %s, 16, %s' % (sC, sW))
        a('s_cmp_eq_u32 %s, 0' % sW); a('s_cselect_b32 %s, 8, %s' % (sC, sC))
        for kl, dst in ((sW, V.X3w0), (sC, V.X3w1)):
            a('s_lshr_b32 %s, %s, 2' % (sA, kl)); a('s_and_b32 %s, %s, 1' % (sB, kl)); a('s_lshl1_add_u32 %s, %s, %s' % (sA, sA, sB))
            a('s_and_b32 %s, %s, 2' % (sB, kl)); a('s_lshl2_add_u32 %s, %s, %s' % (sA, sB, sA))
            a('s_lshl_b32 %s, %s, 6' % (sA, sA)); a('s_add_u32 %s, %s, %d' % (sA, sA, R1))
            a('v_add_u32 %s, %s, %s' % (v(dst), sA, v(T)))
        a('s_and_b32 %s, %s, 1' % (sA, sW)); a('s_mul_i32 %s, %s, 8208' % (sA, sA))
        a('s_and_b32 %s, %s, 2' % (sB, sW)); a('s_mul_i32 %s, %s, 8224' % (sB, sB)); a('s_add_u32 %s, %s, %s' % (sA, sA, sB))
        a('s_and_b32 %s, %s, 4' % (sB, sW)); a('s_lshl_b32 %s, %s, 10' % (sB, sB)); a('s_add_u32 %s, %s, %s' % (sA, sA, sB))
        a('s_add_u32 %s, %s, %d' % (sA, sA, R1))
        a('v_add_u32 %s, %s, %s' % (v(V.X3r), sA, v(V.TR)))
        a('v_and_b32 %s, 0x70, %s' % (v(T), v(V.l16)))
        a('v_lshlrev_b32 %s, 1, %s' % (v(V.Ooff), v(V.Xoff)))
        a('v_sub_u32 %s, %s, %s' % (v(V.Ooff), v(V.Ooff), v(T)))

    def mf16(self, d, A, B): return 'v_mfma_f32_16x16x32_bf16 %s, %s, %s, 0' % (vr(d, 4), vr(A, 4), vr(B, 4))
    def cvt(self, d, lo, hi): return 'v_cvt_pk_bf16_f32 %s, %s, %s' % (v(d), v(lo), v(hi))
    def mf32(self, d, i, pl, dataA):
        M = vr(V.F32+16*pl+4*i, 4); X = vr(V.O+4*i, 4)
        A, B = (X, M) if dataA else (M, X)
        D = vr(d+16*pl, 16)
        return 'v_mfma_f32_32x32x16_bf16 %s, %s, %s, %s' % (D, A, B, D if i else '0')
    def emit(self, L):
        for x in L: self.a(x)

    def p1(self):
        a = self.a; O, L, D, P = V.O, V.L, V.DA, V.DB
        for r in range(4):
            a('s_waitcnt vmcnt(%d)' % (3-r))
            if r == 3:
                self.stamp()
                if self.o['spos'] == 'mid': self.cond(sW, PW, self.side_load)
            for t in range(4): a('v_mov_b32 %s, %s' % (v(O+4*t+r), v(L+4*r+t)))
        for t in range(4):
            a(self.mf16(D+4*t, V.F16, O+4*t)); a(self.mf16(D+16+4*t, V.F16+4, O+4*t))
        if self.o['spos'] == 'late': self.cond(sW, PW, self.side_load)
        def sp():
            self.srds()
            a('s_mov_b32 %s, 0' % sDP); a('s_mov_b32 %s, %d' % (sDM, 1024*1026)); a('s_mov_b32 %s, %d' % (sWL, WL))
            self.w_dma()
        a('s_or_b32 %s, %s, %s' % (sA, sT, sW))
        self.far(sA, 0, sp)
        for r in range(4):
            a(self.cvt(P+4*r, D+r, D+4+r)); a(self.cvt(P+4*r+2, D+16+r, D+20+r))
        for r in range(4):
            a(self.cvt(P+4*r+1, D+8+r, D+12+r)); a(self.cvt(P+4*r+3, D+24+r, D+28+r))
            a('ds_write_b128 %s, %s offset:%d' % (v(V.X0w), vr(P+4*r, 4), 1024*r))
        self.mark('g1a')
        self.side_wait()
        self.mark('g1b')
        a('s_waitcnt lgkmcnt(0)')
        a('s_barrier')
        for ti in range(4):
            for ii in range(2):
                a('ds_read_b64_tr_b16 %s, %s offset:%d' % (vr(O+4*ti+2*ii, 2), v(V.X0r1 if ti >> 1 else V.X0r0), (ti & 1)*16448+ii*512))
        a('ds_read_b32 %s, %s' % (v(V.tmp), v(V.cnt)))
        for ti in range(4):
            a('s_waitcnt lgkmcnt(%d)' % (7-2*ti))
            a(self.mf16(D+4*ti, V.M2+8*(ti >> 1), O+4*ti)); a(self.mf16(D+16+4*ti, V.M2+8*(ti >> 1)+4, O+4*ti))
        a('s_waitcnt lgkmcnt(0)')
        self.side_use()
        for r in range(4): a('s_add_u32 %s, %s, 0x%x' % (sO[r], sEst, WS_U[0] + r*65536))
        st = lambda i: a('buffer_store_dwordx4 %s, %s, %s, %s offen %s' % (vr(P+4*i, 4), v(V.Est), SWS, sO[i], self.o['st1']))
        def normal():
            for i in range(4):
                for k in range(4): a(self.cvt(P+4*i+2*(k & 1)+(k >> 1), D+4*k+i, D+16+4*k+i))
                st(i)
        def w0():
            for i in range(4):
                ts, eb = i >> 1, i & 1
                for tau in range(2):
                    for sg in range(2):
                        x = 4*(2*ts+tau)+2*eb+sg
                        a(self.cvt(P+4*i+2*tau+sg, D+x, D+16+x))
                st(i)
        self.ifelse(sW, 0, w0, normal)

    def stage(self, src, dst, dataA, kind, prio, pre=None):
        a = self.a; T = V.T
        if self.o['prio']: a('s_setprio %d' % prio)
        G = []
        for i in range(4):
            g = []
            if kind == 'tw':
                for st in range(3):
                    for r in range(4):
                        rho = 4*i+r; x, y = v(src+rho), v(src+16+rho)
                        g.append('v_fmac_f32 %s, %s, %s' % ((y, v(V.TW+16+rho), x) if st == 1 else (x, v(V.TW+rho), y)))
                for r in range(4): g.append(self.cvt(V.O+4*i+r, src+4*i+r, src+16+4*i+r))
            else:
                t = T+4*(i & 1)
                for r in range(4):
                    rho = 4*i+r
                    g.append('v_mul_f32 %s, %s, %s' % (v(t+r), v(src+rho), v(V.W+rho)))
                for r in range(4):
                    rho = 4*i+r
                    if rho < 8: g.append('v_fma_f32 %s, -%s, %s, %s' % (v(t+r), v(src+16+rho), v(V.W+16+rho), v(t+r)))
                    else: g.append('v_fmac_f32 %s, %s, %s' % (v(t+r), v(src+16+rho), v(V.W+16+rho)))
                for r in range(4):
                    rho = 4*i+r
                    g.append('v_mul_f32 %s, %s, %s' % (v(src+16+rho), v(src+16+rho), v(V.W+rho)))
                for r in range(4):
                    rho = 4*i+r
                    if rho < 8: g.append('v_fmac_f32 %s, %s, %s' % (v(src+16+rho), v(src+rho), v(V.W+16+rho)))
                    else: g.append('v_fma_f32 %s, -%s, %s, %s' % (v(src+16+rho), v(src+rho), v(V.W+16+rho), v(src+16+rho)))
                for r in range(4): g.append(self.cvt(V.O+4*i+r, src+16+4*i+r, t+r))
            G.append(g)
        W = [[self.w_read1(4*i+r, im) for im in range(2) for r in range(4)] for i in range(4)] if kind == 'w' else None
        if kind == 'w':
            a('s_waitcnt vmcnt(2)')
            self.emit(W[0]); self.emit(W[1])
        for i in range(4):
            g = list(G[i]); n = len(g)
            ins = {}
            if i:
                ins.setdefault(2, []).append(self.mf32(dst, i-1, 0, dataA))
                ins.setdefault(2+n//2, []).append(self.mf32(dst, i-1, 1, dataA))
            if kind == 'w':
                a('s_waitcnt lgkmcnt(%d)' % (8 if i < 3 else 0))
                if i in (0, 2): self.emit(self.w_fix(i >> 1))
                if i < 2:
                    if i == 0: ins.setdefault(3, []).append('s_waitcnt vmcnt(0)')
                    for k, x in enumerate(W[i+2]): ins.setdefault(3+2*k, []).append(x)
            for k, x in enumerate(g):
                self.emit(ins.get(k, []))
                a(x)
        a(self.mf32(dst, 3, 0, dataA)); a(self.mf32(dst, 3, 1, dataA))

    def p2(self):
        a = self.a; O, L, D, T = V.O, V.L, V.DA, V.T
        na = self.p2na
        for cbb in range(2):
            b = L+12*cbb
            a('s_waitcnt vmcnt(%d)' % (na+3-2*cbb))
            a('v_mov_b32 %s, %s' % (v(b+8), v(b))); a('v_mov_b32 %s, %s' % (v(b+9), v(b+1)))
            a('s_waitcnt vmcnt(%d)' % (na+2-2*cbb))
            if cbb: self.stamp(); self.mark('f0')
            for jj2 in (1, 0):
                ti = 2*cbb+jj2; op = b+2 if jj2 else b+6; mo = 0 if jj2 else 2
                a(self.mf16(D+4*ti, V.B+mo, op)); a(self.mf16(D+16+4*ti, V.B+6+mo, op))
        for cbb in range(2):
            for k1b in range(2):
                P = O+4*(2*cbb+k1b)
                for jj2 in (1, 0):
                    for pl in range(2):
                        x = D+16*pl+4*(2*cbb+jj2)+2*k1b
                        a(self.cvt(P+2*pl+jj2, x, x+1))
                a('ds_write_b128 %s, %s offset:%d' % (v(V.X1w), vr(P, 4), k1b*4096+cbb*256))
        self.mark('f1')
        a('s_waitcnt lgkmcnt(0)')
        self.mark('f2', True)
        a('s_barrier')
        self.mark('x1', True)
        if self.o['prio']: a('s_setprio 3')
        for i in range(4):
            for ii in range(2):
                a('ds_read_b64_tr_b16 %s, %s offset:%d' % (vr(O+4*i+2*ii, 2), v(V.X1r), ii*1024+(i & 1)*512+(i >> 1)*2048))
        rows = {'postX1': (0, 1, 2, 3), 'barh': (2, 3), 'bar': ()}[self.o['wpos']]
        for i in range(4):
            if i < len(rows): self.w_dma1(rows[i])
            a('s_waitcnt lgkmcnt(%d)' % (6-2*i))
            a(self.mf32(V.DA, i, 0, True)); a(self.mf32(V.DA, i, 1, True))
        self.mark('f3')
        self.stage(V.DA, V.DB, False, 'tw', 2)
        self.mark('f4', True)
        self.far(sSpec, 1, self.pw_special, lambda: self.stage(V.DB, V.DA, True, 'w', 1))
        self.mark('f5')
        self.stage(V.DA, V.DB, True, 'tw', 0)
        self.mark('f6')
        D = V.DB
        for r in range(4): a('s_add_u32 %s, %s, 0x%x' % (sO[r], sEst, WS_U[1] + r*65536))
        rho = lambda jj3, jj1, jj2, c: 4*(2*jj3+jj1)+2*jj2+c
        for pl in range(2):
            for k in range(4):
                c, jj1 = k >> 1, k & 1
                P = V.DA+4*k
                for jj3 in range(2):
                    a(self.cvt(P+2*pl+jj3, D+16*pl+rho(jj3, jj1, 0, c), D+16*pl+rho(jj3, jj1, 1, c)))
                if pl: a('ds_write_b128 %s, %s offset:%d' % (v(V.X2w), vr(P, 4), c*64+jj1*1024))
        self.mark('f7'); self.mark('x2')
        a('s_waitcnt lgkmcnt(0)')
        self.mark('f8', True)
        a('s_barrier')
        for ti in range(4):
            for ii in range(2):
                a('ds_read_b64_tr_b16 %s, %s offset:%d' % (vr(O+4*ti+2*ii, 2), v(V.X2r), ii*512+(ti & 1)*1024+(ti >> 1)*8224))
        D = V.DA; P = V.DB
        for ti in range(4):
            a('s_waitcnt lgkmcnt(%d)' % (6-2*ti))
            a(self.mf16(D+4*ti, V.Bp, O+4*ti)); a(self.mf16(D+16+4*ti, V.Bp+4, O+4*ti))
        self.mark('f9')
        for q in range(4):
            cbb, sbb = q >> 1, q & 1
            for jj1 in range(2):
                for hf in range(2):
                    x = 4*(2*cbb+jj1)+2*sbb+hf
                    a(self.cvt(P+4*q+2*jj1+hf, D+x, D+16+x))
            a('buffer_store_dwordx4 %s, %s, %s, %s offen %s' % (vr(P+4*q, 4), v(V.Est), SWS, sO[q], self.o['st2']))
        self.mark('f10')

    def pw_special(self):
        a = self.a; T = V.T; O = V.O; C = V.DB; X = V.DA
        self.sigma_lane(T)
        a('v_lshrrev_b32 %s, 5, %s' % (v(T+1), v(V.lane)))
        a('v_lshlrev_b32 %s, 9, %s' % (v(T+1), v(T+1)))
        a('v_lshl_add_u32 %s, %s, 2, %s' % (v(T+2), v(T), v(T+1)))
        a('v_add_u32 %s, %d, %s' % (v(T+2), SCR, v(T+2)))
        a('v_add_u32 %s, 128, %s' % (v(T+3), v(T+2)))
        a('v_sub_u32 %s, 32, %s' % (v(T+4), v(T)))
        a('v_lshrrev_b32 %s, 5, %s' % (v(T+5), v(T+4)))
        a('v_and_b32 %s, 31, %s' % (v(T+4), v(T+4)))
        a('v_lshlrev_b32 %s, 2, %s' % (v(T+4), v(T+4)))
        a('v_lshl_add_u32 %s, %s, 8, %s' % (v(T+4), v(T+5), v(T+4)))
        a('v_sub_u32 %s, %s, %s' % (v(T+4), v(T+4), v(T+1)))
        a('v_add_u32 %s, %d, %s' % (v(T+4), SCR + 2*256, v(T+4)))
        a('v_add_u32 %s, 128, %s' % (v(T+5), v(T+4)))
        a('v_add_u32 %s, %d, %s' % (v(T+6), SCR_B, v(V.l16)))
        qs = lambda rho: sigma(8*(rho >> 2) + (rho & 3))
        for pl in range(2):
            for rho in range(0, 16, 2):
                a('ds_write2st64_b32 %s, %s, %s offset0:%d offset1:%d' % (v(T+2+pl), v(C+16*pl+rho), v(C+16*pl+rho+1), qs(rho), qs(rho+1)))
            a('ds_write_b32 %s, %s offset:%d' % (v(T+2+pl), v(C+16*pl), 32*256))
        t0, t1 = v(T+8), v(T+9)
        for half in range(2):
            for pl in range(2):
                for k in range(0, 8, 2):
                    r_ = 8*half+k
                    a('ds_read2st64_b32 %s, %s offset0:%d offset1:%d' % (vr(X+8*pl+k, 2), v(T+4+pl), 29-qs(r_), 29-qs(r_+1)))
                for k in range(2):
                    a('ds_read_b128 %s, %s offset:%d' % (vr(X+16+8*pl+4*k, 4), v(T+6), 1024*(4*pl+2*half+k)))
            a('s_waitcnt lgkmcnt(0)')
            for k in range(8):
                r_ = 8*half+k
                x, y = v(C+r_), v(C+16+r_); ar, ai = v(V.W+r_), v(V.W+16+r_)
                p, q_ = v(X+k), v(X+8+k); br, bi = v(X+16+k), v(X+24+k)
                ng, ps = ('', '-') if half else ('-', '')
                a('v_mul_f32 %s, %s, %s' % (t0, x, ar))
                a('v_mul_f32 %s, %s, %s' % (t1, y, ar))
                a('v_fma_f32 %s, %s%s, %s, %s' % (t0, ng, y, ai, t0))
                a('v_fma_f32 %s, %s%s, %s, %s' % (t1, ps, x, ai, t1))
                a('v_fmac_f32 %s, %s, %s' % (t0, p, br))
                a('v_fma_f32 %s, -%s, %s, %s' % (t1, q_, br, t1))
                a('v_fma_f32 %s, %s%s, %s, %s' % (t0, ps, q_, bi, t0))
                a('v_fma_f32 %s, %s%s, %s, %s' % (t1, ps, p, bi, t1))
                a(self.cvt(O+r_, T+9, T+8))
        for i in range(4): a(self.mf32(V.DA, i, 0, True)); a(self.mf32(V.DA, i, 1, True))

    def p3(self):
        a = self.a; O, L, D, P = V.O, V.L, V.DA, V.DB
        a('s_lshl4_add_u32 %s, %s, %s' % (sA, sW, sSB)); a('s_lshl1_add_u32 %s, %s, %s' % (sA, sA, sP))
        a('s_lshl4_add_u32 %s, %s, %s' % (sA, sA, sCB)); a('s_lshl_b32 %s, %s, 7' % (sO[0], sA))
        for r in range(1, 4): a('s_add_u32 %s, %s, 0x%x' % (sO[r], sO[0], r*524288))
        def normal():
            for i in range(4):
                a('s_waitcnt vmcnt(%d)' % (3-i))
                for sel in range(2):
                    for col in range(2): a('v_mov_b32 %s, %s' % (v(O+4*(2*sel+col)+i), v(L+4*i+2*col+sel)))
        def w0():
            for i in range(4):
                ts, eb = i >> 1, i & 1
                a('s_waitcnt vmcnt(%d)' % (3-i))
                for col in range(2):
                    for sg in range(2): a('v_mov_b32 %s, %s' % (v(O+4*(2*ts+col)+2*eb+sg), v(L+4*i+2*col+sg)))
        self.ifelse(sW, 0, w0, normal, True)
        self.stamp()
        for ti in range(4):
            a(self.mf16(D+4*ti, O+4*ti, V.M2+8*(ti >> 1))); a(self.mf16(D+16+4*ti, O+4*ti, V.M2+8*(ti >> 1)+4))
        for ti in range(4):
            for pl in range(2):
                for k in range(2):
                    x = D+16*pl+4*ti+2*k
                    a(self.cvt(P+4*ti+2*pl+k, x, x+1))
            a('ds_write_b128 %s, %s offset:%d' % (v(V.X3w1 if ti >> 1 else V.X3w0), vr(P+4*ti, 4), (ti & 1)*2048))
        a('s_waitcnt lgkmcnt(0)')
        a('s_barrier')
        for t in range(4):
            for ii in range(2):
                a('ds_read_b64_tr_b16 %s, %s offset:%d' % (vr(O+4*t+2*ii, 2), v(V.X3r), ii*512+t*1024))
        for t in range(4):
            a('s_waitcnt lgkmcnt(%d)' % (6-2*t))
            a(self.mf16(D+4*t, V.F16, O+4*t)); a(self.mf16(D+16+4*t, V.F16+4, O+4*t))
        for t in range(2):
            for r in range(4): a(self.cvt(P+4*r+t, D+16+4*t+r, D+4*t+r))
        for r in range(4):
            for t in (2, 3): a(self.cvt(P+4*r+t, D+16+4*t+r, D+4*t+r))
            a('buffer_store_dwordx4 %s, %s, %s, %s offen %s' % (vr(P+4*r, 4), v(V.Ooff), SOUT, sO[r], self.o['sto']))

    def ex_load(self, ex):
        a = self.a
        a('s_add_u32 %s, %s, 0x%x' % (sA, sEld, WS_U[ex]))
        for q in range(4):
            d = V.L+12*(q >> 1)+4*(q & 1) if ex == 0 else V.L+4*q
            a('buffer_load_dwordx4 %s, %s, %s, %s offen offset:%d %s' % (vr(d, 4), v(V.Eld), SWS, sA, 256*q, self.o['ld1' if ex == 0 else 'ld2']))

    def build(self):
        a = self.a; o = self.o
        name = NAME + '_kernel'
        a.raw('.globl %s\n.p2align 12\n.p2align 8\n.type %s,@function\n%s:' % (name, name, name))
        end = self.label('end')
        self.prologue(end)
        work1 = lambda: (self.srds0(), self.addrs1(), self.gen_F16())
        if o['split']:
            a('s_lshr_b32 %s, %s, 2' % (sSpec, sW))
            self.ifelse(sSpec, 1, lambda: self.touch(0, True), work1, True)
        elif o['touch']: self.touch(0)
        a('s_waitcnt lgkmcnt(0)')
        self.mark('karg')
        self.probe_issue(); self.clear_issue()
        for r in range(4):
            a('buffer_load_dwordx4 %s, %s, %s, %s offen %s' % (vr(V.L+4*r, 4), v(V.Xoff), SX, sO[r], o['ldx']))
        self.probe_eval()
        if o['split']: self.cond(sSpec, 1, work1)
        else: work1()
        self.gen_M2(); self.ex_addrs()
        self.clear_done()
        if o['touch']: self.cond(sT, 0, lambda: self.touch(1))
        if o['spos'] == 'early': self.cond(sW, PW, self.side_load)
        self.mark('w1')
        self.p1()
        self.stamp()
        a('s_load_dword %s, s[20:21], 0x0' % sRv)
        self.flag_addrs(); self.side_apply(); self.srds(); self.calc_k0()
        a('s_mov_b32 %s, 1' % sInc)
        self.coop_gen(); self.coop_post()
        a('s_waitcnt vmcnt(0) lgkmcnt(0)')
        self.stamp()
        self.ready_check()
        self.arrive()
        self.poll(0, lambda: (self.w_edge_load(), self.gen_B(), self.w_special()))
        self.stamp()
        self.ex_load(0)
        self.p2na = 0
        if o['wpos'] in ('bar', 'barh'):
            a('s_barrier'); self.p2na = 4 if o['wpos'] == 'bar' else 2
            for i in range(self.p2na): self.w_dma1(i)
        else: self.coop_wait()
        self.coop_read(); self.addrs2()
        a('s_waitcnt vmcnt(%d)' % (4+self.p2na))
        self.w_edge()
        a('s_mov_b32 %s, 0x10000' % sInc)
        self.p2()
        self.stamp()
        self.gen_M3()
        self.mark('w3a')
        a('s_waitcnt vmcnt(0)')
        self.stamp()
        self.arrive()
        self.poll(1, self.addrs3)
        if o['ts']: a('s_mov_b32 s%d, %s' % (sTS+26, sCnt))
        self.stamp()
        self.ex_load(1)
        self.p3()
        self.diag_end()
        a(end+':'); a('s_endpgm')
        t, self.tail = self.tail, []
        for f in t: f()
        if o['touch']: self.insert_stubs()
        hdr = ('; GFNet spectral filter, two heads: 2-D FFT as bf16 MFMA DFT stages in one persistent launch (generated)\n'
               '; @launch grid=(256,1,1) block=(512,1,1) lds=%d\n' % LDS_TOTAL)
        kd = '''.section .rodata,"a"
.p2align 6
.amdhsa_kernel %s
  .amdhsa_next_free_vgpr %d
  .amdhsa_next_free_sgpr 102
  .amdhsa_accum_offset %d
  .amdhsa_group_segment_fixed_size 0
  .amdhsa_kernarg_size 72
  .amdhsa_user_sgpr_count 2
  .amdhsa_user_sgpr_kernarg_segment_ptr 1
  .amdhsa_system_sgpr_workgroup_id_x 1
.end_amdhsa_kernel
''' % (name, NVGPR, (NVGPR+3)//4*4)
        return hdr + '.amdgcn_target "amdgcn-amd-amdhsa--gfx950"\n.text\n' + a.text() + kd

    def insert_stubs(self):
        a = self.a
        txt = '.amdgcn_target "amdgcn-amd-amdhsa--gfx950"\n.text\n' + a.text() + ''.join('stub_%d:\n' % k for k in range(16)) + 's_endpgm\n'
        open('pass1.s', 'w').write(txt)
        subprocess.check_call(['clang', '-x', 'assembler', '-target', 'amdgcn-amd-amdhsa', '-mcpu=gfx950', '-c', 'pass1.s', '-o', 'pass1.o'])
        dis = subprocess.check_output(['llvm-objdump', '-d', '--mcpu=gfx950', 'pass1.o']).decode()
        addrs = [int(m.group(1), 16) for m in re.finditer(r'// ([0-9A-F]{12}):', dis)]
        real = [i for i, x in enumerate(a.ins) if x.kind != 'none']
        assert len(addrs) == len(real) + 1, (len(addrs), len(real))
        size = {real[k]: addrs[k+1] - addrs[k] for k in range(len(real))}
        pos = ENTRY_OFF; nxt = 2048
        out = []; k = 0; prev = None; ez = False
        for i, x in enumerate(a.ins):
            if i in size:
                if prev is not None and prev.text.strip() == 's_mov_b64 exec, 0': ez = True
                if prev is not None and prev.text.strip() == 's_mov_b64 exec, -1': ez = False
                if pos >= nxt and k < 16 and not ez:
                    out.append(Ins('stub_%d:' % k)); out.append(Ins('s_cbranch_execz ret_%d' % (k >> 3)))
                    pos += 4; k += 1; nxt += 1024
                pos += size[i]; prev = x
                if x.op == 's_endpgm': self.hot_end = pos
            out.append(x)
        self.code_end = pos
        while k < 16:
            out.append(Ins('stub_%d:' % k)); out.append(Ins('s_branch ret_%d' % (k >> 3))); k += 1
        a.ins = out

if __name__ == '__main__':
    out = sys.argv[1]; opt = {}
    for kv in sys.argv[2:]:
        k, x = kv.split('=')
        opt[k] = {'True': True, 'False': False}.get(x, x.replace('+', ' '))
    g = Gen(**opt)
    s = g.build()
    assert g.a.verify() == 0
    open(out, 'w').write(s)
    print(out, 'vgprs', NVGPR, 'lds', LDS_TOTAL, 'nops', g.a.nops, 'lines', len(g.a.ins), 'hot end 0x%x code end 0x%x' % (getattr(g, 'hot_end', 0), getattr(g, 'code_end', 0)))
```

```python
import sys, struct, math, subprocess, re
from asmlib import Asm, Ins

NAME = 'concat_heads__spectral_gfnet__spectral_gfnet__prompt'
def f2u(x): return struct.unpack('<I', struct.pack('<f', x))[0]
def lit(x): return '0x%08x' % f2u(x)
def sigma(m): return (m & 1) | ((m >> 1) & 1) << 3 | ((m >> 2) & 1) << 1 | ((m >> 3) & 1) << 2 | (m & 16)

SC = 2.0**-22
SPIN_MAX = 0x4000
ENTRY_OFF = 0x300
PW = int([x for x in sys.argv if x.startswith('pw=')][0][3:]) if any(x.startswith('pw=') for x in sys.argv) else 7
R0 = 0
R1 = 33024
WL = 66048
SCR = WL + 8*4*1056
SCR_B = SCR + 36*256
TABL = SCR_B + 8192
CNT = TABL + 16384
LDS_TOTAL = CNT + 64
WS_U = (0, 8 << 20)
WS_FLAG = 16 << 20
WS_PROBE = 17 << 20
WS_TS = 72 << 20
class V: pass
_n = [0]
def alloc(n, align=1):
    b = (_n[0] + align - 1)//align*align
    _n[0] = b + n
    return b
V.tid = alloc(1); V.lane = alloc(1)
for nm in 'g n l16 TR Xoff Est Eld X0w X0r0 X0r1 X1w X1r X2w X2r WP WM zero cnt tmp'.split(): setattr(V, nm, alloc(1))
V.Ooff, V.X3w0, V.X3w1, V.X3r = V.Xoff, V.X0w, V.X0r0, V.X0r1
V.T = alloc(10)
V.O = alloc(16, 4)
V.DA = alloc(32, 4); V.DB = alloc(32, 4); V.L = V.DB
V.F16 = alloc(8, 4); V.M2 = alloc(16, 4)
V.F32 = alloc(32, 4); V.TW = alloc(32, 4); V.W = alloc(32, 4)
V.B = alloc(12, 4); V.Bp = alloc(8, 4); V.WF = alloc(4)
NVGPR = _n[0]
assert NVGPR <= 256, NVGPR
def v(i): return 'v%d' % i
def vr(i, n): return 'v[%d:%d]' % (i, i+n-1)
SX, SWR, SWI, SOUT, SDBG, SWS = 's[4:7]', 's[8:11]', 's[12:15]', 's[16:19]', 's[20:23]', 's[24:27]'
sP, sT, sW, sSB, sCB, sK0, sKP, sKM, sWp, sRv = ['s%d' % i for i in range(30, 40)]
sA, sB, sC, sD, sE, sF, sEst, sEld, sCnt, sSpec, sInc, sWL = ['s%d' % i for i in range(40, 52)]
sO = ['s52', 's53', 's54', 's55']
sTS = 56
sDP, sDM, sZ, sCh, sId = 's96', 's97', 's98', 's99', 's100'

class Gen:
    def __init__(self, **opt):
        self.o = dict(ldx='', ldw='', st1='sc1', st2='sc1', sto='sc1', ld1='sc1', ld2='sc1', ts=False,
                      prio=True, nb='6', pnop='15', force='', wpos='postX1', touch=True, w1n='9', spos='mid', qw='0', skip=True, pre=True, split=False, map='2', rep='1', slp='', sthr='')
        self.o.update(opt)
        self.a = Asm(); self.lab = 0; self.nts = 0; self.sid = -1; self.tail = []
    def label(self, p='L'):
        self.lab += 1
        return '%s_%d' % (p, self.lab)

    def mark(self, nm, drain=False):
        o = self.o; hit = False
        if o.get('clk') and nm in ('w1', 'g1a', 'x1', 'x2', 'w3a', 'end'):
            for op in ('s_memrealtime', 's_memtime'):
                self.a('%s s[%d:%d]' % (op, sTS+2*self.nts, sTS+2*self.nts+1)); self.nts += 1
            self.a('s_waitcnt lgkmcnt(0)')
        if o.get('fine') and nm[0] == 'f':
            self.a('s_memtime s[%d:%d]' % (sTS+2*self.nts, sTS+2*self.nts+1)); self.nts += 1; hit = True
        for key, reg in (('da', 58), ('db', 60)):
            if o.get(key) == nm:
                self.a('%s s[%d:%d]' % ('s_memtime' if 'cyc' in o else 's_memrealtime', reg, reg+1)); hit = True
        if hit and drain: self.a('s_waitcnt lgkmcnt(0)')
    def stamp(self):
        self.sid += 1
        self.mark('s%d' % self.sid)
        if not self.o['ts'] or self.o.get('clk') or self.o.get('fine'): return
        self.a('s_memrealtime s[%d:%d]' % (sTS+2*self.nts, sTS+2*self.nts+1)); self.nts += 1
    def diag_end(self):
        a = self.a; o = self.o
        self.mark('end')
        if not (o['ts'] or 'da' in o): return
        self.stamp(); a('s_waitcnt vmcnt(0)'); self.stamp()
        a('s_waitcnt lgkmcnt(0)')
        if 'da' in o:
            lp = self.label('dg')
            if o['da'] == 'glob':
                a('buffer_load_dword %s, %s, %s, 0 offen offset:64 sc1' % (v(V.tmp), v(V.zero), SDBG))
                a('s_waitcnt vmcnt(0)')
                a('v_readfirstlane_b32 s58, %s' % v(V.tmp)); a('s_mov_b32 s56, s58')
            a('s_sub_u32 %s, s60, s58' % sA)
            a('s_lshr_b32 %s, %s, 2' % (sA, sA) if 'cyc' in o else 's_lshl_b32 %s, %s, 2' % (sA, sA))
            for key, reg in (('dp', sP), ('dt', sT)):
                if key in o: a('s_cmp_eq_u32 %s, %s' % (reg, o[key])); a('s_cselect_b32 %s, %s, 0' % (sA, sA))
            a('s_add_u32 %s, %s, 3000' % (sA, sA))
            a(lp+':')
            a('s_memrealtime s[28:29]'); a('s_waitcnt lgkmcnt(0)')
            a('s_sub_u32 %s, s28, s56' % sB); a('s_cmp_lt_u32 %s, %s' % (sB, sA)); a('s_cbranch_scc1 %s' % lp)
            return
        a('s_lshl_b32 %s, %s, 7' % (sA, sId)); a('s_add_u32 %s, %s, 0x%x' % (sA, sA, WS_TS))
        a('s_mov_b64 exec, 1')
        for i in range(14):
            a('v_mov_b32 %s, s%d' % (v(V.T), sTS+2*i))
            a('buffer_store_dword %s, %s, %s, %s offen offset:%d' % (v(V.T), v(V.zero), SWS, sA, 4*i))
            a('s_nop 1')

    def cond(self, reg, val, f):
        a = self.a; l = self.label('c')
        a('s_cmp_lg_u32 %s, %d' % (reg, val)); a('s_cbranch_scc1 %s' % l)
        f(); a(l+':')
    def ifelse(self, reg, val, feq, fne, eq_first=False):
        a = self.a; l0, l1 = self.label('ie'), self.label('iend')
        if eq_first:
            a('s_cmp_lg_u32 %s, %d' % (reg, val)); a('s_cbranch_scc1 %s' % l0)
            feq(); a('s_branch %s' % l1); a(l0+':'); fne()
        else:
            a('s_cmp_eq_u32 %s, %d' % (reg, val)); a('s_cbranch_scc1 %s' % l0)
            fne(); a('s_branch %s' % l1); a(l0+':'); feq()
        a(l1+':')
    def far(self, reg, val, feq, fne=None):
        a = self.a; l0, l1 = self.label('far'), self.label('back')
        a('s_cmp_eq_u32 %s, %d' % (reg, val)); a('s_cbranch_scc1 %s' % l0)
        if fne: fne()
        a(l1+':')
        def t():
            a(l0+':'); feq(); a('s_branch %s' % l1)
        self.tail.append(t)
    def touch(self, rnd, half=False):
        a = self.a
        a('s_mov_b64 exec, 0')
        if half:
            for k in range(3):
                a('s_cmp_eq_u32 %s, %d' % (sW, 4+k)); a('s_cbranch_scc1 stub_%d' % (2*k))
            a('s_branch stub_6')
        else:
            for k in range(7):
                a('s_cmp_eq_u32 %s, %d' % (sW, k)); a('s_cbranch_scc1 stub_%d' % (8*rnd+k))
            a('s_branch stub_%d' % (8*rnd+7))
        a('ret_%d:' % rnd)
        a('s_mov_b64 exec, -1')

    def prologue(self, end):
        a = self.a; T = V.T
        a('s_cmp_ge_u32 s2, 0x100')
        a('s_cbranch_scc1 %s' % end)
        if 'da' in self.o: a('s_memrealtime s[56:57]'); self.mark('start')
        a('s_bfe_u32 %s, s2, 0x10002' % sP)
        a('s_mul_i32 s3, %s, 24' % sP)
        a('s_load_dwordx2 s[4:5], s[0:1], s3')
        a('s_load_dwordx2 s[24:25], s[0:1], 0x40')
        a('s_load_dwordx2 s[20:21], s[0:1], 0x38')
        a('s_load_dwordx2 s[8:9], s[0:1], s3 offset:8')
        a('s_load_dwordx2 s[12:13], s[0:1], s3 offset:16')
        a('s_load_dwordx2 s[16:17], s[0:1], 0x30')
        self.stamp()
        a('v_lshrrev_b32 %s, 6, v0' % v(T))
        a('v_and_b32 %s, 63, v0' % v(V.lane))
        a('v_readfirstlane_b32 %s, %s' % (sW, v(T)))
        mp = self.o['map']
        a('s_and_b32 %s, s2, 3' % sA)
        if mp in ('0', '1'):
            a('s_bfe_u32 %s, s2, 0x10003' % sB)
            if mp == '0': a('s_lshl1_add_u32 %s, %s, %s' % (sA, sA, sB))
            else: a('s_lshl2_add_u32 %s, %s, %s' % (sA, sB, sA))
            a('s_lshr_b32 %s, s2, 4' % sB)
            a('s_lshl4_add_u32 %s, %s, %s' % (sT, sA, sB))
        else:
            a('s_lshr_b32 %s, s2, 3' % sB)
            a('s_lshl2_add_u32 %s, %s, %s' % (sT, sB, sA))
            a('s_lshr_b32 %s, %s, 4' % (sA, sT)); a('s_and_b32 %s, %s, 15' % (sB, sT))
        a('s_bfe_u32 %s, %s, 0x10001' % (sC, sB))
        a('s_lshl1_add_u32 %s, %s, %s' % (sCB, sA, sC))
        a('s_lshr_b32 %s, %s, 2' % (sSB, sB))
        a('s_and_b32 %s, %s, 1' % (sC, sB))
        a('s_lshl1_add_u32 %s, %s, %s' % (sSB, sSB, sC))
        a('s_mov_b32 s6, 0x400000'); a('s_mov_b32 s7, 0x20000')
        a('v_lshrrev_b32 %s, 4, %s' % (v(V.g), v(V.lane)))
        a('v_lshlrev_b32 %s, 4, %s' % (v(V.l16), v(V.lane)))
        a('v_and_b32 %s, 8, v0' % v(T))
        a('v_lshlrev_b32 %s, 11, %s' % (v(T), v(T)))
        a('v_lshl_add_u32 %s, %s, 20, %s' % (v(T), v(V.g), v(T)))
        a('v_and_b32 %s, 0x70, %s' % (v(T+1), v(V.l16)))
        a('v_add_u32 %s, %s, %s' % (v(V.Xoff), v(T), v(T+1)))
        a('s_lshl4_add_u32 %s, %s, %s' % (sA, sW, sSB))
        a('s_lshl4_add_u32 %s, %s, %s' % (sA, sA, sCB))
        a('s_lshl_b32 %s, %s, 7' % (sO[0], sA))
        for r in range(1, 4): a('s_add_u32 %s, %s, 0x%x' % (sO[r], sO[0], r*262144))
        a('s_lshl3_add_u32 %s, s2, %s' % (sId, sW))
        a('s_xor_b32 %s, %s, %d' % (sCh, sId, 8*8+int(self.o['qw']))); a('s_and_b32 %s, %s, 0xffffff7f' % (sCh, sCh))
        a('s_sub_u32 %s, s2, 16' % sZ); a('s_and_b32 %s, %s, 0xffffffef' % (sZ, sZ))
    def srds(self):
        a = self.a
        a('s_mov_b32 s10, 2101248'); a('s_mov_b32 s11, 0x20000')
        a('s_mov_b32 s14, 2101248'); a('s_mov_b32 s15, 0x20000')
        a('s_mov_b32 s18, 0x800000'); a('s_mov_b32 s19, 0x20000')
    def srds0(self):
        a = self.a
        a('s_mov_b32 s22, 256'); a('s_mov_b32 s23, 0x20000')
        a('s_mov_b32 s26, 0x%x' % ((80 if self.o['ts'] else 18) << 20)); a('s_mov_b32 s27, 0x20000')
        a('v_and_b32 %s, 15, %s' % (v(V.n), v(V.lane)))
        a('v_mov_b32 %s, 0' % v(V.zero)); a('v_mov_b32 %s, %d' % (v(V.cnt), CNT))

    def probe_issue(self):
        a = self.a; NB = int(self.o['nb'])
        def f():
            a('s_lshl_b32 %s, s2, 9' % sA); a('s_and_b32 %s, %s, 0x2000' % (sA, sA))
            a('s_mul_i32 %s, %s, 9' % (sA, sA)); a('s_add_u32 %s, %s, 0x%x' % (sA, sA, WS_PROBE))
            a('s_xor_b32 %s, %s, 0x2000' % (sB, sA))
            for side, base in enumerate((sA, sB)):
                for k in range(NB):
                    a('s_load_dword s%d, s[24:25], %s offset:0x%x glc' % (62+side*NB+k, base, (k & 1)*0x1000 + (k >> 1)*0x4000 + k*0x100))
        def g():
            a('s_lshr_b32 %s, %s, 3' % (sA, sCh)); a('s_cmp_eq_u32 %s, 0' % sA); a('s_cselect_b32 %s, 9, %s' % (sA, sW))
            if self.o['pre']: self.cond(sA, PW, lambda: a('s_load_dword s95, s[20:21], 0x80'))
        self.ifelse(sCh, 0, f, g)
    def probe_eval(self):
        a = self.a; NB = int(self.o['nb'])
        def f():
            a('s_lshr_b32 %s, s2, 1' % sB); a('s_and_b32 %s, %s, 8' % (sB, sB))
            a('s_waitcnt lgkmcnt(%d)' % NB)
            a('s_nop %s' % self.o['pnop'])
            a('s_getreg_b32 %s, hwreg(HW_REG_IB_STS, 8, 4)' % sA)
            a('s_or_b32 %s, %s, 16' % (sA, sA)); a('s_lshl_b32 s94, %s, %s' % (sA, sB))
            a('s_atomic_or s94, s[20:21], 0x80')
        self.cond(sCh, 0, f)
    def clear_issue(self):
        a = self.a
        def f():
            a('s_lshr_b32 %s, s2, 5' % sA)
            a('s_lshl1_add_u32 %s, %s, %s' % (sA, sW, sA))
            a('s_lshl_b32 %s, %s, 13' % (sA, sA)); a('s_add_u32 %s, %s, 0x%x' % (sA, sA, WS_FLAG))
            for i in range(0, 8, 2): a('s_mov_b64 s[%d:%d], 0' % (84+i, 85+i))
            R = int(self.o['rep'])
            for i in range(8):
                for r in range(R-1): a('s_atomic_and s84, s[24:25], %s offset:0x%x' % (sA, (i << 10) + 256*(r+1)))
            for i in range(8): a('s_atomic_swap s%d, s[24:25], %s offset:0x%x glc' % (84+i, sA, i << 10))
        self.cond(sZ, 0, f)
    def clear_done(self):
        a = self.a
        def f():
            a('s_mov_b32 s94, 1'); a('s_waitcnt lgkmcnt(0)')
            a('s_atomic_add s94, s[20:21], 0x0')
        self.cond(sZ, 0, f)
    def side_load(self):
        self.a('buffer_load_dword %s, %s, %s, 0 offen offset:128 sc1' % (v(V.tmp), v(V.zero), SDBG))
    def side_wait(self):
        a = self.a
        def f():
            lp, ok = self.label('sw'), self.label('swok')
            a('s_mov_b32 %s, 0' % sCnt)
            a(lp+':')
            a('s_waitcnt vmcnt(0)')
            a('v_and_b32 %s, 0x1010, %s' % (v(V.T), v(V.tmp)))
            a('v_cmp_eq_u32 vcc, 0x1010, %s' % v(V.T))
            a('s_cbranch_vccnz %s' % ok)
            self.side_load()
            a('s_add_u32 %s, %s, 1' % (sCnt, sCnt))
            a('s_cmp_lt_u32 %s, 0x%x' % (sCnt, SPIN_MAX))
            a('s_cbranch_scc1 %s' % lp)
            a('s_waitcnt vmcnt(0)')
            a(ok+':')
            a('ds_write2_b32 %s, %s, %s offset0:0 offset1:1' % (v(V.cnt), v(V.tmp), v(V.zero)))
        self.cond(sW, PW, f)
    def side_use(self):
        a = self.a
        a('v_readfirstlane_b32 %s, %s' % (sA, v(V.tmp)))
        if self.o['ts']: a('s_mov_b32 s%d, %s' % (sTS+24, sA))
        a('s_and_b32 %s, %s, 15' % (sB, sA)); a('s_bfe_u32 %s, %s, 0x40008' % (sA, sA))
        a('s_cmp_gt_u32 %s, %s' % (sA, sB))
        a('s_cselect_b32 %s, 0x2000, 0' % sCh)
        if self.o['force'] != '': a('s_mov_b32 %s, %d' % (sCh, int(self.o['force']) << 13))
        a('s_xor_b32 %s, %s, %s' % (sEst, sEst, sCh))
    def flag_addrs(self):
        a = self.a
        a('s_lshr_b32 %s, %s, 4' % (sB, sT))
        a('s_lshl_b32 %s, %s, 13' % (sA, sP)); a('s_add_u32 %s, %s, 0x%x' % (sA, sA, WS_FLAG))
        for dst, wp, gr in ((sF, sW, sB), (sE, sB, sW)):
            a('s_lshl4_add_u32 %s, %s, %s' % (sC, wp, gr)); a('s_lshl_b32 %s, %s, 10' % (sC, sC))
            a('s_add_u32 %s, %s, %s' % (dst, sC, sA))
        R = int(self.o['rep'])
        if R > 1:
            a('s_and_b32 %s, %s, %d' % (sC, sT, R-1)); a('s_lshl_b32 %s, %s, 8' % (sC, sC)); a('s_add_u32 %s, %s, %s' % (sE, sE, sC))
    def side_apply(self):
        for r in (sF, sE, sEld): self.a('s_xor_b32 %s, %s, %s' % (r, r, sCh))
    def ready_check(self):
        a = self.a; l0, l1 = self.label('rdy'), self.label('rdyok')
        a('s_cmp_ge_u32 %s, 16' % sRv)
        a('s_cbranch_scc1 %s' % l1)
        a('s_mov_b32 %s, 0' % sCnt)
        a(l0+':')
        a('buffer_load_dword %s, %s, %s, 0 offen sc1' % (v(V.tmp), v(V.zero), SDBG))
        a('s_add_u32 %s, %s, 1' % (sCnt, sCnt))
        a('s_cmp_gt_u32 %s, 0x%x' % (sCnt, SPIN_MAX))
        a('s_waitcnt vmcnt(0)')
        a('s_cbranch_scc1 %s' % l1)
        a('v_cmp_gt_u32 vcc, 16, %s' % v(V.tmp))
        a('s_cbranch_vccnz %s' % l0)
        a(l1+':')
    def arrive(self):
        for r in range(int(self.o['rep'])): self.a('s_atomic_add %s, s[24:25], %s offset:%d' % (sInc, sF, 256*r))
    def poll(self, ex, under=None):
        a = self.a; lp, ok = self.label('poll'), self.label('pollok')
        if under:
            a('s_mov_b32 %s, 0' % sRv)
            a('s_atomic_add %s, s[24:25], %s glc' % (sRv, sE))
            under()
            a('s_waitcnt lgkmcnt(0)')
            a('s_bitcmp1_b32 %s, %d' % (sRv, 4+16*ex))
            a('s_cbranch_scc1 %s' % ok)
        a('s_mov_b32 %s, 0' % sCnt)
        a(lp+':')
        a('s_mov_b32 %s, 0' % sRv)
        a('s_atomic_add %s, s[24:25], %s glc' % (sRv, sE))
        a('s_add_u32 %s, %s, 1' % (sCnt, sCnt))
        a('s_cmp_gt_u32 %s, 0x%x' % (sCnt, SPIN_MAX))
        a('s_waitcnt lgkmcnt(0)')
        a('s_cbranch_scc1 %s' % ok)
        if self.o['slp']:
            a('s_bitcmp1_b32 %s, %d' % (sRv, 4+16*ex))
            a('s_cbranch_scc1 %s' % ok)
            if self.o['sthr']:
                a('s_bfe_u32 %s, %s, 0x%x' % (sA, sRv, 0x50000+16*ex))
                a('s_cmp_ge_u32 %s, %s' % (sA, self.o['sthr'])); a('s_cbranch_scc1 %s' % lp)
            a('s_sleep %s' % self.o['slp'])
            a('s_branch %s' % lp)
        else:
            a('s_bitcmp0_b32 %s, %d' % (sRv, 4+16*ex))
            a('s_cbranch_scc1 %s' % lp)
        a(ok+':')
    def ex_addrs(self):
        a = self.a; T = V.T
        a('s_lshl_b32 %s, %s, 4' % (sB, sW)); a('s_xor_b32 %s, %s, %s' % (sB, sB, sT)); a('s_lshl_b32 %s, %s, 8' % (sB, sB))
        a('v_lshlrev_b32 %s, 4, %s' % (v(T), v(V.n)))
        a('v_lshl_add_u32 %s, %s, 10, %s' % (v(T), v(V.g), v(T)))
        a('v_xor_b32 %s, %s, %s' % (v(T), sB, v(T)))
        a('v_and_b32 %s, 0x6000, %s' % (v(T+1), v(T)))
        a('v_add_u32 %s, %s, %s' % (v(T), v(T), v(T+1)))
        a('v_lshl_add_u32 %s, %s, 18, %s' % (v(V.Est), v(V.g), v(T)))
        a('v_and_b32 %s, 0xdcff, %s' % (v(V.Eld), v(T)))
        a('s_bfe_u32 %s, %s, 0x10001' % (sA, sW)); a('s_xor_b32 %s, %s, %s' % (sA, sA, sP))
        a('s_bfe_u32 %s, %s, 0x10005' % (sC, sT)); a('s_xor_b32 %s, %s, %s' % (sC, sC, sP))
        a('s_lshl_b32 %s, %s, 7' % (sEst, sW)); a('s_add_u32 %s, %s, %s' % (sEst, sEst, sA)); a('s_lshl_b32 %s, %s, 13' % (sEst, sEst))
        a('s_lshl3_add_u32 %s, %s, %s' % (sEld, sT, sC)); a('s_lshl_b32 %s, %s, 13' % (sEld, sEld))

    def trig(self, x, re, im, conj_re=None, conj_im=None):
        a = self.a; c, s = V.T+8, V.T+9
        a('v_cos_f32 %s, %s' % (v(c), v(x)))
        a('v_sin_f32 %s, %s' % (v(s), v(x)))
        if getattr(self, 'fill', None): self.fill(); self.fill = None
        a('v_cvt_pk_bf16_f32 %s, %s, %s' % (v(re), v(c), v(s)))
        a('v_cvt_pk_bf16_f32 %s, -%s, %s' % (v(im), v(s), v(c)))
        if conj_re is not None:
            a('v_xor_b32 %s, 0x80000000, %s' % (v(conj_re), v(re)))
            a('v_xor_b32 %s, 0x8000, %s' % (v(conj_im), v(im)))
    def ladder(self, x, step, regs):
        a = self.a
        for k, r in enumerate(regs):
            if k < len(regs)-1: self.fill = lambda: a('v_add_f32 %s, %s, %s' % (v(x), v(x), v(step)))
            self.trig(x, *r)
    def gen_F16(self):
        a = self.a; T = V.T
        a('v_cvt_f32_u32 %s, %s' % (v(T), v(V.n)))
        a('v_cvt_f32_u32 %s, %s' % (v(T+1), v(V.g)))
        a('v_mul_f32 %s, %s, %s' % (v(T), lit(1/16), v(T)))
        a('v_mul_f32 %s, 4.0, %s' % (v(T+1), v(T+1)))
        a('v_mul_f32 %s, %s, %s' % (v(T+2), v(T), v(T+1)))
        self.ladder(T+2, T, [(V.F16+r, V.F16+4+r) for r in range(4)])
    def gen_M2(self):
        a = self.a; T = V.T
        def normal():
            a('v_cvt_f32_u32 %s, %s' % (v(T+2), sW))
            a('v_fmac_f32 %s, %s, %s' % (v(T), lit(1/256), v(T+2)))
            a('v_mul_f32 %s, %s, %s' % (v(T+2), v(T), v(T+1)))
            self.ladder(T+2, T, [(V.M2+r, V.M2+4+r, V.M2+8+r, V.M2+12+r) for r in range(4)])
        def w0():
            a('v_lshrrev_b32 %s, 1, %s' % (v(T), v(V.n)))
            a('v_cvt_f32_u32 %s, %s' % (v(T), v(T)))
            a('v_lshlrev_b32 %s, 31, %s' % (v(T+3), v(V.n)))
            a('v_add_f32 %s, 0.5, %s' % (v(T+4), v(T)))
            a('v_xor_b32 %s, %s, %s' % (v(T+3), lit(1/16), v(T+3)))
            a('v_cmp_ne_u32 vcc, 1, %s' % v(V.n))
            a('v_mul_f32 %s, %s, %s' % (v(T), v(T), v(T+3)))
            a('v_mul_f32 %s, %s, %s' % (v(T+4), v(T+4), v(T+3)))
            a('v_cndmask_b32 %s, 0.5, %s, vcc' % (v(T), v(T)))
            for ts in range(2):
                d = T+4*ts
                a('v_mul_f32 %s, %s, %s' % (v(T+2), v(d), v(T+1)))
                self.ladder(T+2, d, [(V.M2+8*ts+r, V.M2+8*ts+4+r) for r in range(4)])
        self.ifelse(sW, 0, w0, normal)
    def gen_M3(self):
        a = self.a; T = V.T
        a('v_cvt_f32_u32 %s, %s' % (v(T), v(V.n)))
        a('v_mul_f32 %s, %s, %s' % (v(T+1), lit(1/256), v(T)))
        a('v_mul_f32 %s, %s, %s' % (v(T), lit(1/16), v(T)))
        def normal():
            a('v_lshl_add_u32 %s, %s, 6, %s' % (v(T+2), v(V.g), sW))
            a('v_cvt_f32_u32 %s, %s' % (v(T+2), v(T+2)))
            a('v_mul_f32 %s, %s, %s' % (v(T+2), v(T+2), v(T+1)))
            self.ladder(T+2, T, [(V.M2+r, V.M2+4+r, V.M2+8+r, V.M2+12+r) for r in range(4)])
        def w0():
            a('v_lshlrev_b32 %s, 5, %s' % (v(T+2), v(V.g)))
            a('v_cvt_f32_u32 %s, %s' % (v(T+2), v(T+2)))
            a('v_mul_f32 %s, 0.5, %s' % (v(T), v(T)))
            a('v_mul_f32 %s, %s, %s' % (v(T+2), v(T+2), v(T+1)))
            regs = []
            for k in range(4):
                b = V.M2+8*(k & 1)+2*(k >> 1)
                regs.append((b, b+4, b+1, b+5))
            self.ladder(T+2, T, regs)
            a('s_mov_b64 exec, 0xffff')
            a('v_lshlrev_b32 %s, 15, %s' % (v(T+2), v(V.n)))
            a('v_and_b32 %s, 0x8000, %s' % (v(T+2), v(T+2)))
            a('v_or_b32 %s, 0x3f80, %s' % (v(V.M2+1), v(T+2)))
            a('v_lshlrev_b32 %s, 16, %s' % (v(V.M2+5), v(V.M2+1)))
            a('s_mov_b64 exec, -1')
        self.ifelse(sW, 0, w0, normal)
    def sigma_lane(self, dst):
        a = self.a; t = V.T+7
        a('v_and_b32 %s, 17, %s' % (v(dst), v(V.lane)))
        a('v_bfe_u32 %s, %s, 2, 2' % (v(t), v(V.lane)))
        a('v_lshl_add_u32 %s, %s, 1, %s' % (v(dst), v(t), v(dst)))
        a('v_and_b32 %s, 2, %s' % (v(t), v(V.lane)))
        a('v_lshl_add_u32 %s, %s, 2, %s' % (v(dst), v(t), v(dst)))
    def coop_gen(self):
        a = self.a; T = V.T; X = V.DA
        self.sigma_lane(T)
        a('v_lshrrev_b32 %s, 5, %s' % (v(T+1), v(V.lane)))
        a('v_lshlrev_b32 %s, 7, %s' % (v(T+2), v(T+1)))
        a('v_lshl_add_u32 %s, %s, 1, %s' % (v(T+2), v(T), v(T+2)))
        a('s_and_b32 %s, %s, 2' % (sD, sKP)); a('s_sub_u32 %s, %s, %s' % (sD, sWL, sD))
        a('v_add_u32 %s, %s, %s' % (v(V.WP), sD, v(T+2)))
        a('s_add_u32 %s, %s, %d' % (sD, sD, 1024-832))
        a('v_sub_u32 %s, %s, %s' % (v(V.WM), sD, v(T+2)))
        a('v_cvt_f32_u32 %s, %s' % (v(T), v(T)))
        a('s_mul_i32 %s, %s, 4' % (sA, sW)); a('s_lshr_b32 %s, 0x75643120, %s' % (sA, sA)); a('s_and_b32 %s, %s, 7' % (sA, sA)); a('s_lshl_b32 %s, %s, 2' % (sA, sA))
        a('v_lshl_add_u32 %s, %s, 1, %s' % (v(T+1), v(T+1), sA))
        a('v_mul_f32 %s, %s, %s' % (v(T), lit(1/2048), v(T)))
        a('v_cvt_f32_u32 %s, %s' % (v(T+1), v(T+1)))
        a('v_mul_f32 %s, %s, %s' % (v(T+2), v(T+1), v(T)))
        for e in range(2):
            a('v_cos_f32 %s, %s' % (v(T+5), v(T+2)))
            a('v_sin_f32 %s, %s' % (v(T+6), v(T+2)))
            a('v_rcp_f32 %s, %s' % (v(T+5), v(T+5)))
            a('v_mul_f32 %s, %s, %s' % (v(T+3), lit(64.0), v(T+2)))
            a('v_mul_f32 %s, %s, %s' % (v(X+4+e), v(T+6), v(T+5)))
            a('v_fma_f32 %s, %s, %s, 1.0' % (v(T+5), v(X+4+e), v(X+4+e)))
            a('v_rcp_f32 %s, %s' % (v(T+6), v(T+5)))
            a('v_mul_f32 %s, -2.0, %s' % (v(T+4), v(X+4+e)))
            a('v_fma_f32 %s, -%s, %s, 1.0' % (v(T+5), v(T+5), v(T+6)))
            a('v_fmac_f32 %s, %s, %s' % (v(T+6), v(T+5), v(T+6)))
            a('v_mul_f32 %s, %s, %s' % (v(X+6+e), v(T+6), v(T+4)))
            if e == 0: self.fill = lambda: a('v_add_f32 %s, %s, %s' % (v(T+2), v(T+2), v(T)))
            self.trig(T+3, X+e, X+2+e)
        a('s_lshr_b32 %s, %s, 1' % (sA, sW)); a('s_lshl_b32 %s, %s, 7' % (sA, sA))
        a('s_and_b32 %s, %s, 1' % (sB, sW)); a('s_add_u32 %s, %s, %s' % (sA, sA, sB))
        a('s_lshl3_add_u32 %s, %s, %d' % (sA, sA, TABL))
        a('v_add_u32 %s, %s, %s' % (v(T), sA, v(V.l16)))
        for k in range(4): a('ds_write_b64 %s, %s offset:%d' % (v(T), vr(X+2*k, 2), 4096*k))
    def coop_post(self):
        a = self.a
        a('v_mov_b32 %s, 1' % v(V.T+1))
        a('ds_add_u32 %s, %s offset:4' % (v(V.cnt), v(V.T+1)))
    def coop_wait(self):
        a = self.a; T = V.T; lp, ok = self.label('cw'), self.label('cwok')
        a('s_mov_b32 %s, 0' % sCnt)
        a(lp+':')
        a('ds_read_b32 %s, %s offset:4' % (v(T), v(V.cnt)))
        a('s_add_u32 %s, %s, 1' % (sCnt, sCnt))
        a('s_cmp_gt_u32 %s, 0x%x' % (sCnt, SPIN_MAX*8))
        a('s_waitcnt lgkmcnt(0)')
        a('s_cbranch_scc1 %s' % ok)
        a('v_cmp_gt_u32 vcc, 0x200, %s' % v(T))
        a('s_cbranch_vccnz %s' % lp)
        a(ok+':')
    def coop_read(self):
        a = self.a; T = V.T
        a('v_add_u32 %s, %d, %s' % (v(T), TABL, v(V.l16)))
        for k in range(16): a('ds_read_b128 %s, %s offset:%d' % (vr(V.F32+4*k, 4), v(T), 1024*k))
    def calc_k0(self):
        a = self.a
        a('s_lshr_b32 %s, %s, 4' % (sA, sT)); a('s_and_b32 %s, %s, 15' % (sB, sT))
        a('s_lshl4_add_u32 %s, %s, %s' % (sK0, sB, sA))
        a('s_and_b32 %s, %s, 12' % (sC, sB)); a('s_bfe_u32 %s, %s, 0x10001' % (sD, sB)); a('s_add_u32 %s, %s, %s' % (sC, sC, sD))
        a('s_and_b32 %s, %s, 1' % (sD, sB)); a('s_lshl1_add_u32 %s, %s, %s' % (sC, sD, sC)); a('s_lshl_b32 %s, %s, 3' % (sC, sC))
        a('s_cmp_eq_u32 %s, 0' % sA); a('s_cselect_b32 %s, %s, %s' % (sK0, sC, sK0))
        a('s_cmp_eq_u32 %s, 0' % sT); a('s_cselect_b32 %s, 7, 8' % sA)
        a('s_lshl_b32 %s, %s, %s' % (sKP, sW, sA)); a('s_add_u32 %s, %s, %s' % (sKP, sKP, sK0))
        a('s_sub_u32 %s, 0x800, %s' % (sKM, sKP))
        a('s_cmp_eq_u32 %s, 0' % sKP)
        a('s_cselect_b32 %s, 0x400, %s' % (sKM, sKM)); a('s_cselect_b32 %s, 1, 0' % sSpec)
        a('s_mul_i32 %s, %s, 1026' % (sKP, sKP)); a('s_mul_i32 %s, %s, 1026' % (sKM, sKM))
        a('s_mul_i32 %s, %s, 4224' % (sWL, sW)); a('s_add_u32 %s, %s, %d' % (sWL, sWL, WL))
        a('s_and_b32 %s, %s, 2' % (sA, sKP))
        a('s_add_u32 %s, %s, %s' % (sDP, sKP, sA)); a('s_add_u32 %s, %s, %s' % (sDM, sKM, sA))
    def gen_B(self):
        a = self.a; T = V.T; c, s = T+8, T+9
        a('v_lshrrev_b32 %s, 1, %s' % (v(T), v(V.n)))
        a('v_cvt_f32_u32 %s, %s' % (v(T+2), v(V.g)))
        a('v_and_b32 %s, 1, %s' % (v(T+3), v(V.n)))
        a('v_add_f32 %s, %s, %s' % (v(T+2), v(T+2), v(T+2)))
        def normal():
            a('v_lshl_add_u32 %s, %s, 8, %s' % (v(T+1), v(T), sK0))
            a('v_lshlrev_b32 %s, 4, %s' % (v(T+4), v(T+3)))
            a('v_cvt_f32_u32 %s, %s' % (v(T+1), v(T+1)))
            a('v_lshlrev_b32 %s, 31, %s' % (v(T+6), v(V.n)))
            a('v_cvt_f32_u32 %s, %s' % (v(T+3), v(T+3)))
            a('v_mul_f32 %s, %s, %s' % (v(T+1), lit(1/2048), v(T+1)))
            a('s_brev_b32 %s, 1' % sA)
            a('v_lshrrev_b32 %s, %s, %s' % (v(T+4), v(T+4), sA))
            a('v_mul_f32 %s, %s, %s' % (v(T+5), v(T+1), v(T+2)))
            a('v_fmac_f32 %s, %s, %s' % (v(T+5), lit(0.25), v(T+3)))
            for sbb in range(2):
                if sbb == 0: self.fill = lambda: a('v_add_f32 %s, %s, %s' % (v(T+5), v(T+5), v(T+1)))
                else: self.fill = lambda: a('v_cvt_f32_u32 %s, %s' % (v(T), v(T)))
                self.trig(T+5, V.B+2*sbb, V.B+6+2*sbb)
                a('v_xor_b32 %s, %s, %s' % (v(V.B+2*sbb+1), v(V.B+2*sbb), v(T+4)))
                a('v_xor_b32 %s, %s, %s' % (v(V.B+6+2*sbb+1), v(V.B+6+2*sbb), v(T+4)))
            a('v_lshl_add_u32 %s, %s, 9, %s' % (v(T+1), v(V.g), sK0))
            a('v_xor_b32 %s, %s, %s' % (v(T), v(T), v(T+6)))
            a('v_cvt_f32_u32 %s, %s' % (v(T+1), v(T+1)))
            a('v_mul_f32 %s, 0.5, %s' % (v(T+5), v(T+3)))
            a('v_mul_f32 %s, %s, %s' % (v(T+1), lit(1/2048), v(T+1)))
            a('v_fmac_f32 %s, %s, %s' % (v(T+5), v(T+1), v(T)))
            for ii in range(2):
                a('v_cos_f32 %s, %s' % (v(c), v(T+5)))
                a('v_sin_f32 %s, %s' % (v(s), v(T+5)))
                a('v_mul_f32 %s, %s, %s' % (v(c), lit(SC), v(c)))
                a('v_mul_f32 %s, %s, %s' % (v(s), lit(SC), v(s)))
                if ii == 0: a('v_fmac_f32 %s, %s, %s' % (v(T+5), lit(0.125), v(T)))
                a('v_cvt_pk_bf16_f32 %s, %s, %s' % (v(T+1), v(c), v(s)))
                a('v_cvt_pk_bf16_f32 %s, -%s, %s' % (v(T+2), v(s), v(c)))
                a('v_xor_b32 %s, %s, %s' % (v(V.Bp+2*ii), v(T+1), v(T+6)))
                a('v_xor_b32 %s, %s, %s' % (v(V.Bp+4+2*ii), v(T+2), v(T+6)))
                a('v_xor_b32 %s, %s, %s' % (v(V.Bp+2*ii+1), v(T+2), v(T+6)))
                a('v_xor_b32 %s, 0x80008000, %s' % (v(V.Bp+4+2*ii+1), v(V.Bp+2*ii)))
        def special():
            a('v_cvt_f32_u32 %s, %s' % (v(T+1), v(T)))
            a('v_mul_f32 %s, %s, %s' % (v(T+1), lit(1/16), v(T+1)))
            a('v_lshlrev_b32 %s, 4, %s' % (v(T+4), v(T+3)))
            a('v_cmp_eq_u32 s[84:85], 0, %s' % v(T))
            a('v_and_b32 %s, 1, %s' % (v(T+6), v(T)))
            a('v_cmp_eq_u32 s[86:87], 1, %s' % v(T+6))
            a('v_mul_f32 %s, %s, %s' % (v(T+5), v(T+1), v(T+2)))
            for sbb in range(2):
                a('v_cos_f32 %s, %s' % (v(c), v(T+5)))
                a('v_sin_f32 %s, %s' % (v(s), v(T+5)))
                a('v_mul_f32 %s, 2.0, %s' % (v(c), v(c)))
                a('v_mul_f32 %s, -2.0, %s' % (v(s), v(s)))
                a('v_cndmask_b32 %s, %s, 1.0, s[84:85]' % (v(c), v(c)))
                a('v_cndmask_b32 %s, %s, %s, s[84:85]' % (v(s), v(s), '-1.0' if sbb else '1.0'))
                for src, dst in ((c, V.B+2*sbb), (s, V.B+6+2*sbb)):
                    a('v_cvt_pk_bf16_f32 %s, %s, 0' % (v(T+7), v(src)))
                    a('v_lshlrev_b32 %s, %s, %s' % (v(T+7), v(T+4), v(T+7)))
                    a('v_cndmask_b32 %s, %s, 0, s[86:87]' % (v(dst), v(T+7)))
                    a('v_cndmask_b32 %s, 0, %s, s[86:87]' % (v(dst+1), v(T+7)))
                a('v_add_f32 %s, %s, %s' % (v(T+5), v(T+5), v(T+1)))
            a('v_cmp_eq_u32 s[88:89], 0, %s' % v(V.g))
            a('v_cmp_eq_u32 s[90:91], 1, %s' % v(T+3))
            a('v_lshlrev_b32 %s, 31, %s' % (v(T+6), v(T)))
            a('v_xor_b32 %s, %s, %s' % (v(T+6), lit(SC), v(T+6)))
            a('v_mov_b32 %s, %s' % (v(T+4), lit(SC)))
            a('v_mul_f32 %s, %s, %s' % (v(T+5), v(T+1), v(T+2)))
            for ii in range(2):
                a('v_cos_f32 %s, %s' % (v(c), v(T+5)))
                a('v_sin_f32 %s, %s' % (v(s), v(T+5)))
                a('v_mul_f32 %s, %s, %s' % (v(c), lit(2*SC), v(c)))
                a('v_mul_f32 %s, %s, %s' % (v(s), lit(-2*SC), v(s)))
                if ii == 0:
                    a('v_cndmask_b32 %s, %s, %s, s[88:89]' % (v(c), v(c), v(T+4)))
                    a('v_cndmask_b32 %s, %s, %s, s[88:89]' % (v(s), v(s), v(T+6)))
                a('v_cvt_pk_bf16_f32 %s, %s, %s' % (v(T+7), v(s), v(c)))
                if ii: a('v_cndmask_b32 %s, 0, %s, s[90:91]' % (v(T+7), v(T+7)))
                else: a('v_cndmask_b32 %s, %s, 0, s[90:91]' % (v(T+7), v(T+7)))
                a('v_mov_b32 %s, 0' % v(V.Bp+2*ii)); a('v_mov_b32 %s, %s' % (v(V.Bp+2*ii+1), v(T+7)))
                a('v_mov_b32 %s, %s' % (v(V.Bp+4+2*ii), v(T+7))); a('v_mov_b32 %s, 0' % v(V.Bp+4+2*ii+1))
                a('v_add_f32 %s, %s, %s' % (v(T+5), v(T+5), v(T+1)))
        self.far(sT, 0, special, normal)
        for d, r in ((4, 0), (5, 1), (10, 6), (11, 7)): a('v_mov_b32 %s, %s' % (v(V.B+d), v(V.B+r)))

    def wq(self, rho): return (rho & 1) + 8*((rho >> 1) & 1) + 4*((rho >> 2) & 1)
    def w_dma1(self, i):
        a = self.a
        srd, so = [(SWR, sDP), (SWI, sDP), (SWR, sDM), (SWI, sDM)][i]
        a('s_add_u32 m0, %s, %d' % (sWL, 1056*i))
        a('buffer_load_dwordx4 %s, %s, %s offen %s lds' % (v(V.l16), srd, so, self.o['ldw']))
    def w_dma(self):
        for i in range(4): self.w_dma1(i)
    def w_edge_load(self):
        a = self.a; T = V.T
        a('s_mov_b64 exec, 15')
        a('v_mov_b32 %s, %s' % (v(T), sKP)); a('v_mov_b32 %s, %s' % (v(T+1), sKM))
        a('s_mov_b64 vcc, 10')
        a('v_cndmask_b32 %s, %s, %s, vcc' % (v(T), v(T), v(T+1)))
        a('v_and_b32 %s, 2, %s' % (v(T+1), v(V.lane)))
        a('v_lshl_add_u32 %s, %s, 9, %s' % (v(T), v(T+1), v(T)))
        a('buffer_load_short_d16_hi %s, %s, %s, 0 offen' % (v(V.WF), v(T), SWR))
        a('buffer_load_short_d16_hi %s, %s, %s, 0 offen' % (v(V.WF+1), v(T), SWI))
        a('s_mov_b64 exec, -1')
    def w_edge_rl(self):
        for l in range(4):
            for im in range(2): self.a('v_readlane_b32 s%d, %s, %d' % (84+2*l+im, v(V.WF+im), l))
    def w_edge(self):
        a = self.a; T = V.T
        self.w_edge_rl()
        q = ((84, 86, 'add'), (85, 87, 'sub'), (90, 88, 'add'), (91, 89, 'sub'))
        for i, (x, y, op) in enumerate(q): a('v_mov_b32 %s, s%d' % (v(T+i), y))
        for i, (x, y, op) in enumerate(q): a('v_%s_f32 %s, s%d, %s' % (op, v(V.WF+i), x, v(T+i)))
        for i in range(4): a('v_mul_f32 %s, 0.5, %s' % (v(V.WF+i), v(V.WF+i)))
        a('s_mov_b64 s[92:93], 1')
    def w_read1(self, rho, im, dst=None, swap=False):
        dst = V.W if dst is None else dst
        if rho < 8: ad, off = V.WP, 64*self.wq(rho) + (2112 if swap else 0)
        else: ad, off = V.WM, 64*(13-self.wq(rho)) + (0 if swap else 2112)
        return 'ds_read_u16_d16_hi %s, %s offset:%d' % (v(dst+16*im+rho), v(ad), off+1056*im)
    def w_fix(self, half):
        return ['v_cndmask_b32 %s, %s, %s, s[92:93]' % (v(V.W+8*half+16*im), v(V.W+8*half+16*im), v(V.WF+2*half+im)) for im in range(2)]
    def w_special(self):
        a = self.a; T = V.T; X = V.DA
        def f():
            for sw, dst in ((False, V.W), (True, X)):
                for rho in range(16):
                    for im in range(2): a(self.w_read1(rho, im, dst, sw))
            a('s_waitcnt lgkmcnt(0) vmcnt(0)')
            self.w_edge_rl()
            a('s_mov_b64 exec, 1')
            for r in (V.W+16, V.W+24, X+16, X+24): a('v_mov_b32 %s, 0' % v(r))
            a('v_mov_b32 %s, s90' % v(V.W+8)); a('v_mov_b32 %s, s88' % v(X+8))
            a('s_mov_b64 exec, -1')
            for i in range(32):
                a('v_add_f32 %s, %s, %s' % (v(V.W+i), v(V.W+i), v(X+i)))
                if (i & 15) < 8: a('v_fma_f32 %s, -2.0, %s, %s' % (v(X+i), v(X+i), v(V.W+i)))
                else: a('v_fma_f32 %s, 2.0, %s, -%s' % (v(X+i), v(X+i), v(V.W+i)))
            a('v_add_u32 %s, %d, %s' % (v(T+1), SCR_B, v(V.l16)))
            for i in range(8): a('ds_write_b128 %s, %s offset:%d' % (v(T+1), vr(X+4*i, 4), 1024*i))
        self.far(sSpec, 1, f)

    def addrs1(self):
        a = self.a; T = V.T
        a('v_lshrrev_b32 %s, 3, %s' % (v(T), v(V.lane)))
        a('v_and_b32 %s, 0x30, %s' % (v(T+1), v(V.l16)))
        a('v_lshl_add_u32 %s, %s, 6, %s' % (v(T), v(T), v(T+1)))
        a('v_and_b32 %s, 4, %s' % (v(T+1), v(V.lane)))
        a('v_lshl_add_u32 %s, %s, 1, %s' % (v(V.TR), v(T+1), v(T)))
        a('v_xor_b32 %s, %s, %s' % (v(T), sSB, v(V.lane)))
        a('v_and_b32 %s, 1, %s' % (v(T), v(T)))
        a('v_mul_u32_u24 %s, 16448, %s' % (v(T), v(T)))
        a('v_lshl_add_u32 %s, %s, 12, %s' % (v(T), v(V.g), v(T)))
        a('v_lshl_add_u32 %s, %s, 2, %s' % (v(T), v(T+1), v(T)))
        a('v_and_b32 %s, 0x60, %s' % (v(T+1), v(V.TR)))
        a('s_lshr_b32 %s, %s, 1' % (sWp, sW)); a('s_and_b32 %s, %s, 1' % (sA, sW))
        a('s_lshl2_add_u32 %s, %s, %s' % (sWp, sA, sWp)); a('s_lshl_b32 %s, %s, 7' % (sWp, sWp))
        a('v_add3_u32 %s, %s, %s, %s' % (v(V.X0w), v(T), v(T+1), sWp))
        a('s_lshl_b32 %s, %s, 10' % (sA, sW))
        a('s_sub_u32 %s, 0x4000, %s' % (sB, sA))
        a('s_cmp_eq_u32 %s, 0' % sW); a('s_cselect_b32 %s, 0x2000, %s' % (sB, sB))
        a('v_add_u32 %s, %s, %s' % (v(V.X0r0), sA, v(V.TR)))
        a('v_add_u32 %s, %s, %s' % (v(V.X0r1), sB, v(V.TR)))
    def addrs2(self):
        a = self.a; T = V.T
        a('v_lshlrev_b32 %s, 4, %s' % (v(T), v(V.n)))
        a('v_lshl_add_u32 %s, %s, 13, %s' % (v(T), v(V.g), v(T)))
        a('s_lshl_b32 %s, %s, 9' % (sA, sW)); a('s_add_u32 %s, %s, %d' % (sA, sA, R1))
        a('v_add_u32 %s, %s, %s' % (v(V.X1w), sA, v(T)))
        a('s_lshl_b32 %s, %s, 12' % (sA, sW)); a('s_add_u32 %s, %s, %d' % (sA, sA, R1))
        a('v_add_u32 %s, %s, %s' % (v(V.X1r), sA, v(V.TR)))
        a('v_and_b32 %s, 16, %s' % (v(T), v(V.l16)))
        a('v_and_b32 %s, 2, %s' % (v(T+1), v(V.lane)))
        a('v_bfe_u32 %s, %s, 2, 1' % (v(T+2), v(V.lane)))
        a('v_add_u32 %s, %s, %s' % (v(T+1), v(T+1), v(T+2)))
        a('v_mul_u32_u24 %s, 8224, %s' % (v(T+1), v(T+1)))
        a('v_bfe_u32 %s, %s, 3, 2' % (v(T+2), v(V.lane)))
        a('v_lshl_add_u32 %s, %s, 11, %s' % (v(T), v(T+2), v(T)))
        a('v_and_b32 %s, 32, %s' % (v(T+2), v(V.lane)))
        a('v_add3_u32 %s, %s, %s, %s' % (v(T), v(T), v(T+1), v(T+2)))
        a('v_add_u32 %s, %s, %s' % (v(V.X2w), sWp, v(T)))
        a('s_and_b32 %s, %s, 1' % (sA, sW)); a('s_lshr_b32 %s, %s, 2' % (sB, sW)); a('s_lshl1_add_u32 %s, %s, %s' % (sA, sB, sA)); a('s_lshl_b32 %s, %s, 11' % (sA, sA))
        a('s_and_b32 %s, %s, 2' % (sB, sW)); a('s_mul_i32 %s, %s, 8224' % (sB, sB)); a('s_add_u32 %s, %s, %s' % (sA, sA, sB))
        a('v_add_u32 %s, %s, %s' % (v(V.X2r), sA, v(V.TR)))
    def addrs3(self):
        a = self.a; T = V.T
        a('v_and_b32 %s, 16, %s' % (v(T), v(V.lane)))
        a('v_and_b32 %s, 33, %s' % (v(T+1), v(V.lane)))
        a('v_lshl_add_u32 %s, %s, 5, %s' % (v(T), v(T+1), v(T)))
        a('v_and_b32 %s, 8, %s' % (v(T+1), v(V.lane)))
        a('v_lshl_add_u32 %s, %s, 9, %s' % (v(T), v(T+1), v(T)))
        a('v_and_b32 %s, 2, %s' % (v(T+1), v(V.lane)))
        a('v_and_b32 %s, 4, %s' % (v(T+2), v(V.lane)))
        a('v_mul_u32_u24 %s, 4104, %s' % (v(T+1), v(T+1)))
        a('v_mul_u32_u24 %s, 4112, %s' % (v(T+2), v(T+2)))
        a('v_add3_u32 %s, %s, %s, %s' % (v(T), v(T), v(T+1), v(T+2)))
        a('s_sub_u32 %s, 16, %s' % (sC, sW))
        a('s_cmp_eq_u32 %s, 0' % sW); a('s_cselect_b32 %s, 8, %s' % (sC, sC))
        for kl, dst in ((sW, V.X3w0), (sC, V.X3w1)):
            a('s_lshr_b32 %s, %s, 2' % (sA, kl)); a('s_and_b32 %s, %s, 1' % (sB, kl)); a('s_lshl1_add_u32 %s, %s, %s' % (sA, sA, sB))
            a('s_and_b32 %s, %s, 2' % (sB, kl)); a('s_lshl2_add_u32 %s, %s, %s' % (sA, sB, sA))
            a('s_lshl_b32 %s, %s, 6' % (sA, sA)); a('s_add_u32 %s, %s, %d' % (sA, sA, R1))
            a('v_add_u32 %s, %s, %s' % (v(dst), sA, v(T)))
        a('s_and_b32 %s, %s, 1' % (sA, sW)); a('s_mul_i32 %s, %s, 8208' % (sA, sA))
        a('s_and_b32 %s, %s, 2' % (sB, sW)); a('s_mul_i32 %s, %s, 8224' % (sB, sB)); a('s_add_u32 %s, %s, %s' % (sA, sA, sB))
        a('s_and_b32 %s, %s, 4' % (sB, sW)); a('s_lshl_b32 %s, %s, 10' % (sB, sB)); a('s_add_u32 %s, %s, %s' % (sA, sA, sB))
        a('s_add_u32 %s, %s, %d' % (sA, sA, R1))
        a('v_add_u32 %s, %s, %s' % (v(V.X3r), sA, v(V.TR)))
        a('v_and_b32 %s, 0x70, %s' % (v(T), v(V.l16)))
        a('v_lshlrev_b32 %s, 1, %s' % (v(V.Ooff), v(V.Xoff)))
        a('v_sub_u32 %s, %s, %s' % (v(V.Ooff), v(V.Ooff), v(T)))

    def mf16(self, d, A, B): return 'v_mfma_f32_16x16x32_bf16 %s, %s, %s, 0' % (vr(d, 4), vr(A, 4), vr(B, 4))
    def cvt(self, d, lo, hi): return 'v_cvt_pk_bf16_f32 %s, %s, %s' % (v(d), v(lo), v(hi))
    def mf32(self, d, i, pl, dataA):
        M = vr(V.F32+16*pl+4*i, 4); X = vr(V.O+4*i, 4)
        A, B = (X, M) if dataA else (M, X)
        D = vr(d+16*pl, 16)
        return 'v_mfma_f32_32x32x16_bf16 %s, %s, %s, %s' % (D, A, B, D if i else '0')
    def emit(self, L):
        for x in L: self.a(x)

    def p1(self):
        a = self.a; O, L, D, P = V.O, V.L, V.DA, V.DB
        for r in range(4):
            a('s_waitcnt vmcnt(%d)' % (3-r))
            if r == 3:
                self.stamp()
                if self.o['spos'] == 'mid': self.cond(sW, PW, self.side_load)
            for t in range(4): a('v_mov_b32 %s, %s' % (v(O+4*t+r), v(L+4*r+t)))
        for t in range(4):
            a(self.mf16(D+4*t, V.F16, O+4*t)); a(self.mf16(D+16+4*t, V.F16+4, O+4*t))
        if self.o['spos'] == 'late': self.cond(sW, PW, self.side_load)
        def sp():
            self.srds()
            a('s_mov_b32 %s, 0' % sDP); a('s_mov_b32 %s, %d' % (sDM, 1024*1026)); a('s_mov_b32 %s, %d' % (sWL, WL))
            self.w_dma()
        a('s_or_b32 %s, %s, %s' % (sA, sT, sW))
        self.far(sA, 0, sp)
        for r in range(4):
            a(self.cvt(P+4*r, D+r, D+4+r)); a(self.cvt(P+4*r+2, D+16+r, D+20+r))
        for r in range(4):
            a(self.cvt(P+4*r+1, D+8+r, D+12+r)); a(self.cvt(P+4*r+3, D+24+r, D+28+r))
            a('ds_write_b128 %s, %s offset:%d' % (v(V.X0w), vr(P+4*r, 4), 1024*r))
        self.mark('g1a')
        self.side_wait()
        self.mark('g1b')
        a('s_waitcnt lgkmcnt(0)')
        a('s_barrier')
        for ti in range(4):
            for ii in range(2):
                a('ds_read_b64_tr_b16 %s, %s offset:%d' % (vr(O+4*ti+2*ii, 2), v(V.X0r1 if ti >> 1 else V.X0r0), (ti & 1)*16448+ii*512))
        a('ds_read_b32 %s, %s' % (v(V.tmp), v(V.cnt)))
        for ti in range(4):
            a('s_waitcnt lgkmcnt(%d)' % (7-2*ti))
            a(self.mf16(D+4*ti, V.M2+8*(ti >> 1), O+4*ti)); a(self.mf16(D+16+4*ti, V.M2+8*(ti >> 1)+4, O+4*ti))
        a('s_waitcnt lgkmcnt(0)')
        self.side_use()
        for r in range(4): a('s_add_u32 %s, %s, 0x%x' % (sO[r], sEst, WS_U[0] + r*65536))
        st = lambda i: a('buffer_store_dwordx4 %s, %s, %s, %s offen %s' % (vr(P+4*i, 4), v(V.Est), SWS, sO[i], self.o['st1']))
        def normal():
            for i in range(4):
                for k in range(4): a(self.cvt(P+4*i+2*(k & 1)+(k >> 1), D+4*k+i, D+16+4*k+i))
                st(i)
        def w0():
            for i in range(4):
                ts, eb = i >> 1, i & 1
                for tau in range(2):
                    for sg in range(2):
                        x = 4*(2*ts+tau)+2*eb+sg
                        a(self.cvt(P+4*i+2*tau+sg, D+x, D+16+x))
                st(i)
        self.ifelse(sW, 0, w0, normal)

    def stage(self, src, dst, dataA, kind, prio, pre=None):
        a = self.a; T = V.T
        if self.o['prio']: a('s_setprio %d' % prio)
        G = []
        for i in range(4):
            g = []
            if kind == 'tw':
                for st in range(3):
                    for r in range(4):
                        rho = 4*i+r; x, y = v(src+rho), v(src+16+rho)
                        g.append('v_fmac_f32 %s, %s, %s' % ((y, v(V.TW+16+rho), x) if st == 1 else (x, v(V.TW+rho), y)))
                for r in range(4): g.append(self.cvt(V.O+4*i+r, src+4*i+r, src+16+4*i+r))
            else:
                t = T+4*(i & 1)
                for r in range(4):
                    rho = 4*i+r
                    g.append('v_mul_f32 %s, %s, %s' % (v(t+r), v(src+rho), v(V.W+rho)))
                for r in range(4):
                    rho = 4*i+r
                    if rho < 8: g.append('v_fma_f32 %s, -%s, %s, %s' % (v(t+r), v(src+16+rho), v(V.W+16+rho), v(t+r)))
                    else: g.append('v_fmac_f32 %s, %s, %s' % (v(t+r), v(src+16+rho), v(V.W+16+rho)))
                for r in range(4):
                    rho = 4*i+r
                    g.append('v_mul_f32 %s, %s, %s' % (v(src+16+rho), v(src+16+rho), v(V.W+rho)))
                for r in range(4):
                    rho = 4*i+r
                    if rho < 8: g.append('v_fmac_f32 %s, %s, %s' % (v(src+16+rho), v(src+rho), v(V.W+16+rho)))
                    else: g.append('v_fma_f32 %s, -%s, %s, %s' % (v(src+16+rho), v(src+rho), v(V.W+16+rho), v(src+16+rho)))
                for r in range(4): g.append(self.cvt(V.O+4*i+r, src+16+4*i+r, t+r))
            G.append(g)
        W = [[self.w_read1(4*i+r, im) for im in range(2) for r in range(4)] for i in range(4)] if kind == 'w' else None
        if kind == 'w':
            a('s_waitcnt vmcnt(2)')
            self.emit(W[0]); self.emit(W[1])
        for i in range(4):
            g = list(G[i]); n = len(g)
            ins = {}
            if i:
                ins.setdefault(2, []).append(self.mf32(dst, i-1, 0, dataA))
                ins.setdefault(2+n//2, []).append(self.mf32(dst, i-1, 1, dataA))
            if kind == 'w':
                a('s_waitcnt lgkmcnt(%d)' % (8 if i < 3 else 0))
                if i in (0, 2): self.emit(self.w_fix(i >> 1))
                if i < 2:
                    if i == 0: ins.setdefault(3, []).append('s_waitcnt vmcnt(0)')
                    for k, x in enumerate(W[i+2]): ins.setdefault(3+2*k, []).append(x)
            for k, x in enumerate(g):
                self.emit(ins.get(k, []))
                a(x)
        a(self.mf32(dst, 3, 0, dataA)); a(self.mf32(dst, 3, 1, dataA))

    def p2(self):
        a = self.a; O, L, D, T = V.O, V.L, V.DA, V.T
        na = self.p2na
        for cbb in range(2):
            b = L+12*cbb
            a('s_waitcnt vmcnt(%d)' % (na+3-2*cbb))
            a('v_mov_b32 %s, %s' % (v(b+8), v(b))); a('v_mov_b32 %s, %s' % (v(b+9), v(b+1)))
            a('s_waitcnt vmcnt(%d)' % (na+2-2*cbb))
            if cbb: self.stamp(); self.mark('f0')
            for jj2 in (1, 0):
                ti = 2*cbb+jj2; op = b+2 if jj2 else b+6; mo = 0 if jj2 else 2
                a(self.mf16(D+4*ti, V.B+mo, op)); a(self.mf16(D+16+4*ti, V.B+6+mo, op))
        for cbb in range(2):
            for k1b in range(2):
                P = O+4*(2*cbb+k1b)
                for jj2 in (1, 0):
                    for pl in range(2):
                        x = D+16*pl+4*(2*cbb+jj2)+2*k1b
                        a(self.cvt(P+2*pl+jj2, x, x+1))
                a('ds_write_b128 %s, %s offset:%d' % (v(V.X1w), vr(P, 4), k1b*4096+cbb*256))
        self.mark('f1')
        a('s_waitcnt lgkmcnt(0)')
        self.mark('f2', True)
        a('s_barrier')
        self.mark('x1', True)
        if self.o['prio']: a('s_setprio 3')
        for i in range(4):
            for ii in range(2):
                a('ds_read_b64_tr_b16 %s, %s offset:%d' % (vr(O+4*i+2*ii, 2), v(V.X1r), ii*1024+(i & 1)*512+(i >> 1)*2048))
        rows = {'postX1': (0, 1, 2, 3), 'barh': (2, 3), 'bar': ()}[self.o['wpos']]
        for i in range(4):
            if i < len(rows): self.w_dma1(rows[i])
            a('s_waitcnt lgkmcnt(%d)' % (6-2*i))
            a(self.mf32(V.DA, i, 0, True)); a(self.mf32(V.DA, i, 1, True))
        self.mark('f3')
        self.stage(V.DA, V.DB, False, 'tw', 2)
        self.mark('f4', True)
        self.far(sSpec, 1, self.pw_special, lambda: self.stage(V.DB, V.DA, True, 'w', 1))
        self.mark('f5')
        self.stage(V.DA, V.DB, True, 'tw', 0)
        self.mark('f6')
        D = V.DB
        for r in range(4): a('s_add_u32 %s, %s, 0x%x' % (sO[r], sEst, WS_U[1] + r*65536))
        rho = lambda jj3, jj1, jj2, c: 4*(2*jj3+jj1)+2*jj2+c
        for pl in range(2):
            for k in range(4):
                c, jj1 = k >> 1, k & 1
                P = V.DA+4*k
                for jj3 in range(2):
                    a(self.cvt(P+2*pl+jj3, D+16*pl+rho(jj3, jj1, 0, c), D+16*pl+rho(jj3, jj1, 1, c)))
                if pl: a('ds_write_b128 %s, %s offset:%d' % (v(V.X2w), vr(P, 4), c*64+jj1*1024))
        self.mark('f7'); self.mark('x2')
        a('s_waitcnt lgkmcnt(0)')
        self.mark('f8', True)
        a('s_barrier')
        for ti in range(4):
            for ii in range(2):
                a('ds_read_b64_tr_b16 %s, %s offset:%d' % (vr(O+4*ti+2*ii, 2), v(V.X2r), ii*512+(ti & 1)*1024+(ti >> 1)*8224))
        D = V.DA; P = V.DB
        for ti in range(4):
            a('s_waitcnt lgkmcnt(%d)' % (6-2*ti))
            a(self.mf16(D+4*ti, V.Bp, O+4*ti)); a(self.mf16(D+16+4*ti, V.Bp+4, O+4*ti))
        self.mark('f9')
        for q in range(4):
            cbb, sbb = q >> 1, q & 1
            for jj1 in range(2):
                for hf in range(2):
                    x = 4*(2*cbb+jj1)+2*sbb+hf
                    a(self.cvt(P+4*q+2*jj1+hf, D+x, D+16+x))
            a('buffer_store_dwordx4 %s, %s, %s, %s offen %s' % (vr(P+4*q, 4), v(V.Est), SWS, sO[q], self.o['st2']))
        self.mark('f10')

    def pw_special(self):
        a = self.a; T = V.T; O = V.O; C = V.DB; X = V.DA
        self.sigma_lane(T)
        a('v_lshrrev_b32 %s, 5, %s' % (v(T+1), v(V.lane)))
        a('v_lshlrev_b32 %s, 9, %s' % (v(T+1), v(T+1)))
        a('v_lshl_add_u32 %s, %s, 2, %s' % (v(T+2), v(T), v(T+1)))
        a('v_add_u32 %s, %d, %s' % (v(T+2), SCR, v(T+2)))
        a('v_add_u32 %s, 128, %s' % (v(T+3), v(T+2)))
        a('v_sub_u32 %s, 32, %s' % (v(T+4), v(T)))
        a('v_lshrrev_b32 %s, 5, %s' % (v(T+5), v(T+4)))
        a('v_and_b32 %s, 31, %s' % (v(T+4), v(T+4)))
        a('v_lshlrev_b32 %s, 2, %s' % (v(T+4), v(T+4)))
        a('v_lshl_add_u32 %s, %s, 8, %s' % (v(T+4), v(T+5), v(T+4)))
        a('v_sub_u32 %s, %s, %s' % (v(T+4), v(T+4), v(T+1)))
        a('v_add_u32 %s, %d, %s' % (v(T+4), SCR + 2*256, v(T+4)))
        a('v_add_u32 %s, 128, %s' % (v(T+5), v(T+4)))
        a('v_add_u32 %s, %d, %s' % (v(T+6), SCR_B, v(V.l16)))
        qs = lambda rho: sigma(8*(rho >> 2) + (rho & 3))
        for pl in range(2):
            for rho in range(0, 16, 2):
                a('ds_write2st64_b32 %s, %s, %s offset0:%d offset1:%d' % (v(T+2+pl), v(C+16*pl+rho), v(C+16*pl+rho+1), qs(rho), qs(rho+1)))
            a('ds_write_b32 %s, %s offset:%d' % (v(T+2+pl), v(C+16*pl), 32*256))
        t0, t1 = v(T+8), v(T+9)
        for half in range(2):
            for pl in range(2):
                for k in range(0, 8, 2):
                    r_ = 8*half+k
                    a('ds_read2st64_b32 %s, %s offset0:%d offset1:%d' % (vr(X+8*pl+k, 2), v(T+4+pl), 29-qs(r_), 29-qs(r_+1)))
                for k in range(2):
                    a('ds_read_b128 %s, %s offset:%d' % (vr(X+16+8*pl+4*k, 4), v(T+6), 1024*(4*pl+2*half+k)))
            a('s_waitcnt lgkmcnt(0)')
            for k in range(8):
                r_ = 8*half+k
                x, y = v(C+r_), v(C+16+r_); ar, ai = v(V.W+r_), v(V.W+16+r_)
                p, q_ = v(X+k), v(X+8+k); br, bi = v(X+16+k), v(X+24+k)
                ng, ps = ('', '-') if half else ('-', '')
                a('v_mul_f32 %s, %s, %s' % (t0, x, ar))
                a('v_mul_f32 %s, %s, %s' % (t1, y, ar))
                a('v_fma_f32 %s, %s%s, %s, %s' % (t0, ng, y, ai, t0))
                a('v_fma_f32 %s, %s%s, %s, %s' % (t1, ps, x, ai, t1))
                a('v_fmac_f32 %s, %s, %s' % (t0, p, br))
                a('v_fma_f32 %s, -%s, %s, %s' % (t1, q_, br, t1))
                a('v_fma_f32 %s, %s%s, %s, %s' % (t0, ps, q_, bi, t0))
                a('v_fma_f32 %s, %s%s, %s, %s' % (t1, ps, p, bi, t1))
                a(self.cvt(O+r_, T+9, T+8))
        for i in range(4): a(self.mf32(V.DA, i, 0, True)); a(self.mf32(V.DA, i, 1, True))

    def p3(self):
        a = self.a; O, L, D, P = V.O, V.L, V.DA, V.DB
        a('s_lshl4_add_u32 %s, %s, %s' % (sA, sW, sSB)); a('s_lshl1_add_u32 %s, %s, %s' % (sA, sA, sP))
        a('s_lshl4_add_u32 %s, %s, %s' % (sA, sA, sCB)); a('s_lshl_b32 %s, %s, 7' % (sO[0], sA))
        for r in range(1, 4): a('s_add_u32 %s, %s, 0x%x' % (sO[r], sO[0], r*524288))
        def normal():
            for i in range(4):
                a('s_waitcnt vmcnt(%d)' % (3-i))
                for sel in range(2):
                    for col in range(2): a('v_mov_b32 %s, %s' % (v(O+4*(2*sel+col)+i), v(L+4*i+2*col+sel)))
        def w0():
            for i in range(4):
                ts, eb = i >> 1, i & 1
                a('s_waitcnt vmcnt(%d)' % (3-i))
                for col in range(2):
                    for sg in range(2): a('v_mov_b32 %s, %s' % (v(O+4*(2*ts+col)+2*eb+sg), v(L+4*i+2*col+sg)))
        self.ifelse(sW, 0, w0, normal, True)
        self.stamp()
        for ti in range(4):
            a(self.mf16(D+4*ti, O+4*ti, V.M2+8*(ti >> 1))); a(self.mf16(D+16+4*ti, O+4*ti, V.M2+8*(ti >> 1)+4))
        for ti in range(4):
            for pl in range(2):
                for k in range(2):
                    x = D+16*pl+4*ti+2*k
                    a(self.cvt(P+4*ti+2*pl+k, x, x+1))
            a('ds_write_b128 %s, %s offset:%d' % (v(V.X3w1 if ti >> 1 else V.X3w0), vr(P+4*ti, 4), (ti & 1)*2048))
        a('s_waitcnt lgkmcnt(0)')
        a('s_barrier')
        for t in range(4):
            for ii in range(2):
                a('ds_read_b64_tr_b16 %s, %s offset:%d' % (vr(O+4*t+2*ii, 2), v(V.X3r), ii*512+t*1024))
        for t in range(4):
            a('s_waitcnt lgkmcnt(%d)' % (6-2*t))
            a(self.mf16(D+4*t, V.F16, O+4*t)); a(self.mf16(D+16+4*t, V.F16+4, O+4*t))
        for t in range(2):
            for r in range(4): a(self.cvt(P+4*r+t, D+16+4*t+r, D+4*t+r))
        for r in range(4):
            for t in (2, 3): a(self.cvt(P+4*r+t, D+16+4*t+r, D+4*t+r))
            a('buffer_store_dwordx4 %s, %s, %s, %s offen %s' % (vr(P+4*r, 4), v(V.Ooff), SOUT, sO[r], self.o['sto']))

    def ex_load(self, ex):
        a = self.a
        a('s_add_u32 %s, %s, 0x%x' % (sA, sEld, WS_U[ex]))
        for q in range(4):
            d = V.L+12*(q >> 1)+4*(q & 1) if ex == 0 else V.L+4*q
            a('buffer_load_dwordx4 %s, %s, %s, %s offen offset:%d %s' % (vr(d, 4), v(V.Eld), SWS, sA, 256*q, self.o['ld1' if ex == 0 else 'ld2']))

    def build(self):
        a = self.a; o = self.o
        name = NAME + '_kernel'
        a.raw('.globl %s\n.p2align 12\n.p2align 8\n.type %s,@function\n%s:' % (name, name, name))
        end = self.label('end')
        self.prologue(end)
        work1 = lambda: (self.srds0(), self.addrs1(), self.gen_F16())
        if o['split']:
            a('s_lshr_b32 %s, %s, 2' % (sSpec, sW))
            self.ifelse(sSpec, 1, lambda: self.touch(0, True), work1, True)
        elif o['skip']:
            a('s_cmp_eq_u32 %s, 0' % sCh); a('s_cbranch_scc1 ret_0')
            self.touch(0)
        elif o['touch']: self.touch(0)
        a('s_waitcnt lgkmcnt(0)')
        self.mark('karg')
        self.probe_issue(); self.clear_issue()
        for r in range(4):
            a('buffer_load_dwordx4 %s, %s, %s, %s offen %s' % (vr(V.L+4*r, 4), v(V.Xoff), SX, sO[r], o['ldx']))
        self.probe_eval()
        if o['split']: self.cond(sSpec, 1, work1)
        else: work1()
        self.gen_M2(); self.ex_addrs()
        self.clear_done()
        if o['touch']: self.cond(sT, 0, lambda: self.touch(1))
        if o['spos'] == 'early': self.cond(sW, PW, self.side_load)
        self.mark('w1')
        self.p1()
        self.stamp()
        a('s_load_dword %s, s[20:21], 0x0' % sRv)
        self.flag_addrs(); self.side_apply(); self.srds(); self.calc_k0()
        a('s_mov_b32 %s, 1' % sInc)
        self.coop_gen(); self.coop_post()
        a('s_waitcnt vmcnt(0) lgkmcnt(0)')
        self.stamp()
        self.ready_check()
        self.arrive()
        self.poll(0, lambda: (self.w_edge_load(), self.gen_B(), self.w_special()))
        self.stamp()
        self.ex_load(0)
        self.p2na = 0
        if o['wpos'] in ('bar', 'barh'):
            a('s_barrier'); self.p2na = 4 if o['wpos'] == 'bar' else 2
            for i in range(self.p2na): self.w_dma1(i)
        else: self.coop_wait()
        self.coop_read(); self.addrs2()
        a('s_waitcnt vmcnt(%d)' % (4+self.p2na))
        self.w_edge()
        a('s_mov_b32 %s, 0x10000' % sInc)
        if o.get('da') == 'glob': self.cond(sId, 0, lambda: a('s_atomic_add s56, s[20:21], 0x40'))
        self.p2()
        self.stamp()
        self.gen_M3()
        self.mark('w3a')
        a('s_waitcnt vmcnt(0)')
        self.stamp()
        self.arrive()
        self.poll(1, self.addrs3)
        if o['ts']: a('s_mov_b32 s%d, %s' % (sTS+26, sCnt))
        self.stamp()
        self.ex_load(1)
        self.p3()
        self.diag_end()
        a(end+':'); a('s_endpgm')
        t, self.tail = self.tail, []
        for f in t: f()
        if o['touch']: self.insert_stubs()
        hdr = ('; GFNet spectral filter, two heads: 2-D FFT as bf16 MFMA DFT stages in one persistent launch (generated)\n'
               '; @launch grid=(256,1,1) block=(512,1,1) lds=%d\n' % LDS_TOTAL)
        kd = '''.section .rodata,"a"
.p2align 6
.amdhsa_kernel %s
  .amdhsa_next_free_vgpr %d
  .amdhsa_next_free_sgpr 102
  .amdhsa_accum_offset %d
  .amdhsa_group_segment_fixed_size 0
  .amdhsa_kernarg_size 72
  .amdhsa_user_sgpr_count 2
  .amdhsa_user_sgpr_kernarg_segment_ptr 1
  .amdhsa_system_sgpr_workgroup_id_x 1
.end_amdhsa_kernel
''' % (name, NVGPR, (NVGPR+3)//4*4)
        return hdr + '.amdgcn_target "amdgcn-amd-amdhsa--gfx950"\n.text\n' + a.text() + kd

    def insert_stubs(self):
        a = self.a
        txt = '.amdgcn_target "amdgcn-amd-amdhsa--gfx950"\n.text\n' + a.text() + ''.join('stub_%d:\n' % k for k in range(16)) + 's_endpgm\n'
        open('pass1.s', 'w').write(txt)
        subprocess.check_call(['clang', '-x', 'assembler', '-target', 'amdgcn-amd-amdhsa', '-mcpu=gfx950', '-c', 'pass1.s', '-o', 'pass1.o'])
        dis = subprocess.check_output(['llvm-objdump', '-d', '--mcpu=gfx950', 'pass1.o']).decode()
        addrs = [int(m.group(1), 16) for m in re.finditer(r'// ([0-9A-F]{12}):', dis)]
        real = [i for i, x in enumerate(a.ins) if x.kind != 'none']
        assert len(addrs) == len(real) + 1, (len(addrs), len(real))
        size = {real[k]: addrs[k+1] - addrs[k] for k in range(len(real))}
        pos = ENTRY_OFF; nxt = 2048
        out = []; k = 0; prev = None; ez = False
        for i, x in enumerate(a.ins):
            if i in size:
                if prev is not None and prev.text.strip() == 's_mov_b64 exec, 0': ez = True
                if prev is not None and prev.text.strip() == 's_mov_b64 exec, -1': ez = False
                if pos >= nxt and k < 16 and not ez:
                    out.append(Ins('stub_%d:' % k)); out.append(Ins('s_cbranch_execz ret_%d' % (k >> 3)))
                    pos += 4; k += 1; nxt += 1024
                pos += size[i]; prev = x
                if x.op == 's_endpgm': self.hot_end = pos
            out.append(x)
        self.code_end = pos
        while k < 16:
            out.append(Ins('stub_%d:' % k)); out.append(Ins('s_branch ret_%d' % (k >> 3))); k += 1
        a.ins = out

if __name__ == '__main__':
    out = sys.argv[1]; opt = {}
    for kv in sys.argv[2:]:
        k, x = kv.split('=')
        opt[k] = {'True': True, 'False': False}.get(x, x.replace('+', ' '))
    g = Gen(**opt)
    s = g.build()
    assert g.a.verify() == 0
    open(out, 'w').write(s)
    print(out, 'vgprs', NVGPR, 'lds', LDS_TOTAL, 'nops', g.a.nops, 'lines', len(g.a.ins), 'hot end 0x%x code end 0x%x' % (getattr(g, 'hot_end', 0), getattr(g, 'code_end', 0)))
```

```python
import sys, struct, math, subprocess, re
from asmlib import Asm, Ins

NAME = 'concat_heads__spectral_gfnet__spectral_gfnet__prompt'
def f2u(x): return struct.unpack('<I', struct.pack('<f', x))[0]
def lit(x): return '0x%08x' % f2u(x)
def sigma(m): return (m & 1) | ((m >> 1) & 1) << 3 | ((m >> 2) & 1) << 1 | ((m >> 3) & 1) << 2 | (m & 16)

SC = 2.0**-22
SPIN_MAX = 0x4000
ENTRY_OFF = 0x300
PW = int([x for x in sys.argv if x.startswith('pw=')][0][3:]) if any(x.startswith('pw=') for x in sys.argv) else 1
R0 = 0
R1 = 33024
WL = 66048
SCR = WL + 8*4*1056
SCR_B = SCR + 36*256
TABL = SCR_B + 8192
CNT = TABL + 16384
LDS_TOTAL = CNT + 64
WS_U = (0, 8 << 20)
WS_FLAG = 16 << 20
WS_PROBE = 17 << 20
WS_TS = 72 << 20
class V: pass
_n = [0]
def alloc(n, align=1):
    b = (_n[0] + align - 1)//align*align
    _n[0] = b + n
    return b
V.tid = alloc(1); V.lane = alloc(1)
for nm in 'g n l16 TR Xoff Est Eld X0w X0r0 X0r1 X1w X1r X2w X2r WP WM zero cnt tmp'.split(): setattr(V, nm, alloc(1))
V.Ooff, V.X3w0, V.X3w1, V.X3r = V.Xoff, V.X0w, V.X0r0, V.X0r1
V.T = alloc(10)
V.O = alloc(16, 4)
V.DA = alloc(32, 4); V.DB = alloc(32, 4); V.L = V.DB
V.F16 = alloc(8, 4); V.M2 = alloc(16, 4)
V.F32 = alloc(32, 4); V.TW = alloc(32, 4); V.W = alloc(32, 4)
V.B = alloc(12, 4); V.Bp = alloc(8, 4); V.WF = alloc(4)
NVGPR = _n[0]
assert NVGPR <= 256, NVGPR
def v(i): return 'v%d' % i
def vr(i, n): return 'v[%d:%d]' % (i, i+n-1)
SX, SWR, SWI, SOUT, SDBG, SWS = 's[4:7]', 's[8:11]', 's[12:15]', 's[16:19]', 's[20:23]', 's[24:27]'
sP, sT, sW, sSB, sCB, sK0, sKP, sKM, sWp, sRv = ['s%d' % i for i in range(30, 40)]
sA, sB, sC, sD, sE, sF, sEst, sEld, sCnt, sSpec, sInc, sWL = ['s%d' % i for i in range(40, 52)]
sO = ['s52', 's53', 's54', 's55']
sTS = 56
sDP, sDM, sZ, sCh, sId = 's96', 's97', 's98', 's99', 's100'

class Gen:
    def __init__(self, **opt):
        self.o = dict(ldx='', ldw='', st1='sc1', st2='sc1', sto='sc1', ld1='sc1', ld2='sc1', ts=False,
                      prio=True, nb='6', pnop='15', force='', wpos='postX1', touch=True, w1n='9', spos='mid', qw='1', pb='17', wsoff='0', skip=True, pre=True, split=False, map='2', rep='1', slp='', sthr='')
        self.o.update(opt)
        self.a = Asm(); self.lab = 0; self.nts = 0; self.sid = -1; self.tail = []
    def label(self, p='L'):
        self.lab += 1
        return '%s_%d' % (p, self.lab)

    def mark(self, nm, drain=False):
        o = self.o; hit = False
        if o.get('clk') and nm in ('w1', 'g1a', 'x1', 'x2', 'w3a', 'end'):
            for op in ('s_memrealtime', 's_memtime'):
                self.a('%s s[%d:%d]' % (op, sTS+2*self.nts, sTS+2*self.nts+1)); self.nts += 1
            self.a('s_waitcnt lgkmcnt(0)')
        if o.get('fine') and nm[0] == 'f':
            self.a('s_memtime s[%d:%d]' % (sTS+2*self.nts, sTS+2*self.nts+1)); self.nts += 1; hit = True
        for key, reg in (('da', 58), ('db', 60)):
            if o.get(key) == nm:
                self.a('%s s[%d:%d]' % ('s_memtime' if 'cyc' in o else 's_memrealtime', reg, reg+1)); hit = True
        if hit and drain: self.a('s_waitcnt lgkmcnt(0)')
    def stamp(self):
        self.sid += 1
        self.mark('s%d' % self.sid)
        if not self.o['ts'] or self.o.get('clk') or self.o.get('fine'): return
        self.a('s_memrealtime s[%d:%d]' % (sTS+2*self.nts, sTS+2*self.nts+1)); self.nts += 1
    def diag_end(self):
        a = self.a; o = self.o
        self.mark('end')
        if not (o['ts'] or 'da' in o): return
        self.stamp(); a('s_waitcnt vmcnt(0)'); self.stamp()
        a('s_waitcnt lgkmcnt(0)')
        if 'da' in o:
            lp = self.label('dg')
            if o['da'] == 'glob':
                a('buffer_load_dword %s, %s, %s, 0 offen offset:64 sc1' % (v(V.tmp), v(V.zero), SDBG))
                a('s_waitcnt vmcnt(0)')
                a('v_readfirstlane_b32 s58, %s' % v(V.tmp)); a('s_mov_b32 s56, s58')
            a('s_sub_u32 %s, s60, s58' % sA)
            a('s_lshr_b32 %s, %s, 2' % (sA, sA) if 'cyc' in o else 's_lshl_b32 %s, %s, 2' % (sA, sA))
            for key, reg in (('dp', sP), ('dt', sT)):
                if key in o: a('s_cmp_eq_u32 %s, %s' % (reg, o[key])); a('s_cselect_b32 %s, %s, 0' % (sA, sA))
            a('s_min_u32 %s, %s, 9000' % (sA, sA))
            if 'enc' in o:
                a('s_and_b32 %s, s62, 7' % sB); a('s_mul_i32 %s, %s, 10000' % (sB, sB)); a('s_add_u32 %s, %s, %s' % (sA, sA, sB))
                a('s_bfe_u32 %s, s62, 0x30008' % sB); a('s_mul_i32 %s, %s, 100000' % (sB, sB)); a('s_add_u32 %s, %s, %s' % (sA, sA, sB))
            a('s_add_u32 %s, %s, 3000' % (sA, sA))
            a(lp+':')
            a('s_memrealtime s[28:29]'); a('s_waitcnt lgkmcnt(0)')
            a('s_sub_u32 %s, s28, s56' % sB); a('s_cmp_lt_u32 %s, %s' % (sB, sA)); a('s_cbranch_scc1 %s' % lp)
            return
        a('s_lshl_b32 %s, %s, 7' % (sA, sId)); a('s_add_u32 %s, %s, 0x%x' % (sA, sA, WS_TS))
        a('s_mov_b64 exec, 1')
        for i in range(14):
            a('v_mov_b32 %s, s%d' % (v(V.T), sTS+2*i))
            a('buffer_store_dword %s, %s, %s, %s offen offset:%d' % (v(V.T), v(V.zero), SWS, sA, 4*i))
            a('s_nop 1')

    def cond(self, reg, val, f):
        a = self.a; l = self.label('c')
        a('s_cmp_lg_u32 %s, %d' % (reg, val)); a('s_cbranch_scc1 %s' % l)
        f(); a(l+':')
    def ifelse(self, reg, val, feq, fne, eq_first=False):
        a = self.a; l0, l1 = self.label('ie'), self.label('iend')
        if eq_first:
            a('s_cmp_lg_u32 %s, %d' % (reg, val)); a('s_cbranch_scc1 %s' % l0)
            feq(); a('s_branch %s' % l1); a(l0+':'); fne()
        else:
            a('s_cmp_eq_u32 %s, %d' % (reg, val)); a('s_cbranch_scc1 %s' % l0)
            fne(); a('s_branch %s' % l1); a(l0+':'); feq()
        a(l1+':')
    def far(self, reg, val, feq, fne=None):
        a = self.a; l0, l1 = self.label('far'), self.label('back')
        a('s_cmp_eq_u32 %s, %d' % (reg, val)); a('s_cbranch_scc1 %s' % l0)
        if fne: fne()
        a(l1+':')
        def t():
            a(l0+':'); feq(); a('s_branch %s' % l1)
        self.tail.append(t)
    def touch(self, rnd, half=False):
        a = self.a
        a('s_mov_b64 exec, 0')
        if half:
            for k in range(3):
                a('s_cmp_eq_u32 %s, %d' % (sW, 4+k)); a('s_cbranch_scc1 stub_%d' % (2*k))
            a('s_branch stub_6')
        else:
            for k in range(7):
                a('s_cmp_eq_u32 %s, %d' % (sW, k)); a('s_cbranch_scc1 stub_%d' % (8*rnd+k))
            a('s_branch stub_%d' % (8*rnd+7))
        a('ret_%d:' % rnd)
        a('s_mov_b64 exec, -1')

    def prologue(self, end):
        a = self.a; T = V.T
        a('s_cmp_ge_u32 s2, 0x100')
        a('s_cbranch_scc1 %s' % end)
        if 'da' in self.o: a('s_memrealtime s[56:57]'); self.mark('start')
        a('s_bfe_u32 %s, s2, 0x10002' % sP)
        a('s_mul_i32 s3, %s, 24' % sP)
        a('s_load_dwordx2 s[4:5], s[0:1], s3')
        a('s_load_dwordx2 s[24:25], s[0:1], 0x40')
        a('s_load_dwordx2 s[20:21], s[0:1], 0x38')
        a('s_load_dwordx2 s[8:9], s[0:1], s3 offset:8')
        a('s_load_dwordx2 s[12:13], s[0:1], s3 offset:16')
        a('s_load_dwordx2 s[16:17], s[0:1], 0x30')
        self.stamp()
        a('v_lshrrev_b32 %s, 6, v0' % v(T))
        a('v_and_b32 %s, 63, v0' % v(V.lane))
        a('v_readfirstlane_b32 %s, %s' % (sW, v(T)))
        mp = self.o['map']
        a('s_and_b32 %s, s2, 3' % sA)
        if mp in ('0', '1'):
            a('s_bfe_u32 %s, s2, 0x10003' % sB)
            if mp == '0': a('s_lshl1_add_u32 %s, %s, %s' % (sA, sA, sB))
            else: a('s_lshl2_add_u32 %s, %s, %s' % (sA, sB, sA))
            a('s_lshr_b32 %s, s2, 4' % sB)
            a('s_lshl4_add_u32 %s, %s, %s' % (sT, sA, sB))
        else:
            a('s_lshr_b32 %s, s2, 3' % sB)
            a('s_lshl2_add_u32 %s, %s, %s' % (sT, sB, sA))
            a('s_lshr_b32 %s, %s, 4' % (sA, sT)); a('s_and_b32 %s, %s, 15' % (sB, sT))
        a('s_bfe_u32 %s, %s, 0x10001' % (sC, sB))
        a('s_lshl1_add_u32 %s, %s, %s' % (sCB, sA, sC))
        a('s_lshr_b32 %s, %s, 2' % (sSB, sB))
        a('s_and_b32 %s, %s, 1' % (sC, sB))
        a('s_lshl1_add_u32 %s, %s, %s' % (sSB, sSB, sC))
        a('s_mov_b32 s6, 0x400000'); a('s_mov_b32 s7, 0x20000')
        a('v_lshrrev_b32 %s, 4, %s' % (v(V.g), v(V.lane)))
        a('v_lshlrev_b32 %s, 4, %s' % (v(V.l16), v(V.lane)))
        a('v_and_b32 %s, 8, v0' % v(T))
        a('v_lshlrev_b32 %s, 11, %s' % (v(T), v(T)))
        a('v_lshl_add_u32 %s, %s, 20, %s' % (v(T), v(V.g), v(T)))
        a('v_and_b32 %s, 0x70, %s' % (v(T+1), v(V.l16)))
        a('v_add_u32 %s, %s, %s' % (v(V.Xoff), v(T), v(T+1)))
        a('s_lshl4_add_u32 %s, %s, %s' % (sA, sW, sSB))
        a('s_lshl4_add_u32 %s, %s, %s' % (sA, sA, sCB))
        a('s_lshl_b32 %s, %s, 7' % (sO[0], sA))
        for r in range(1, 4): a('s_add_u32 %s, %s, 0x%x' % (sO[r], sO[0], r*262144))
        a('s_lshl3_add_u32 %s, s2, %s' % (sId, sW))
        a('s_xor_b32 %s, %s, %d' % (sCh, sId, 8*8+int(self.o['qw']))); a('s_and_b32 %s, %s, 0xffffff7f' % (sCh, sCh))
        a('s_sub_u32 %s, s2, 16' % sZ); a('s_and_b32 %s, %s, 0xffffffef' % (sZ, sZ))
    def srds(self):
        a = self.a
        a('s_mov_b32 s10, 2101248'); a('s_mov_b32 s11, 0x20000')
        a('s_mov_b32 s14, 2101248'); a('s_mov_b32 s15, 0x20000')
        a('s_mov_b32 s18, 0x800000'); a('s_mov_b32 s19, 0x20000')
    def srds0(self):
        a = self.a
        a('s_mov_b32 s22, 256'); a('s_mov_b32 s23, 0x20000')
        a('s_mov_b32 s26, 0x%x' % ((80 if self.o['ts'] else 18) << 20)); a('s_mov_b32 s27, 0x20000')
        a('v_and_b32 %s, 15, %s' % (v(V.n), v(V.lane)))
        a('v_mov_b32 %s, 0' % v(V.zero)); a('v_mov_b32 %s, %d' % (v(V.cnt), CNT))

    def probe_issue(self):
        a = self.a; NB = int(self.o['nb'])
        def f():
            a('s_lshl_b32 %s, s2, 9' % sA); a('s_and_b32 %s, %s, 0x2000' % (sA, sA))
            a('s_mul_i32 %s, %s, 9' % (sA, sA)); a('s_add_u32 %s, %s, 0x%x' % (sA, sA, int(self.o['pb']) << 20))
            a('s_xor_b32 %s, %s, 0x2000' % (sB, sA))
            for side, base in enumerate((sA, sB)):
                for k in range(NB):
                    a('s_load_dword s%d, s[24:25], %s offset:0x%x glc' % (62+side*NB+k, base, (k & 1)*0x1000 + (k >> 1)*0x4000 + k*0x100))
        def g():
            a('s_lshr_b32 %s, %s, 3' % (sA, sCh)); a('s_cmp_eq_u32 %s, 0' % sA); a('s_cselect_b32 %s, 9, %s' % (sA, sW))
            if self.o['pre']: self.cond(sA, PW, lambda: a('s_load_dword s95, s[20:21], 0x80'))
        self.ifelse(sCh, 0, f, g)
    def probe_eval(self):
        a = self.a; NB = int(self.o['nb'])
        def f():
            a('s_lshr_b32 %s, s2, 1' % sB); a('s_and_b32 %s, %s, 8' % (sB, sB))
            a('s_waitcnt lgkmcnt(%d)' % NB)
            a('s_nop %s' % self.o['pnop'])
            a('s_getreg_b32 %s, hwreg(HW_REG_IB_STS, 8, 4)' % sA)
            a('s_or_b32 %s, %s, 16' % (sA, sA)); a('s_lshl_b32 s94, %s, %s' % (sA, sB))
            a('s_atomic_or s94, s[20:21], 0x80')
        self.cond(sCh, 0, f)
    def clear_issue(self):
        a = self.a
        def f():
            a('s_lshr_b32 %s, s2, 5' % sA)
            a('s_lshl1_add_u32 %s, %s, %s' % (sA, sW, sA))
            a('s_lshl_b32 %s, %s, 13' % (sA, sA)); a('s_add_u32 %s, %s, 0x%x' % (sA, sA, WS_FLAG))
            for i in range(0, 8, 2): a('s_mov_b64 s[%d:%d], 0' % (84+i, 85+i))
            R = int(self.o['rep'])
            for i in range(8):
                for r in range(R-1): a('s_atomic_and s84, s[24:25], %s offset:0x%x' % (sA, (i << 10) + 256*(r+1)))
            for i in range(8): a('s_atomic_swap s%d, s[24:25], %s offset:0x%x glc' % (84+i, sA, i << 10))
        self.cond(sZ, 0, f)
    def clear_done(self):
        a = self.a
        def f():
            a('s_mov_b32 s94, 1'); a('s_waitcnt lgkmcnt(0)')
            a('s_atomic_add s94, s[20:21], 0x0')
        self.cond(sZ, 0, f)
    def side_load(self):
        self.a('buffer_load_dword %s, %s, %s, 0 offen offset:128 sc1' % (v(V.tmp), v(V.zero), SDBG))
    def side_wait(self):
        a = self.a
        def f():
            lp, ok = self.label('sw'), self.label('swok')
            a('s_mov_b32 %s, 0' % sCnt)
            a(lp+':')
            a('s_waitcnt vmcnt(0)')
            a('v_and_b32 %s, 0x1010, %s' % (v(V.T), v(V.tmp)))
            a('v_cmp_eq_u32 vcc, 0x1010, %s' % v(V.T))
            a('s_cbranch_vccnz %s' % ok)
            self.side_load()
            a('s_add_u32 %s, %s, 1' % (sCnt, sCnt))
            a('s_cmp_lt_u32 %s, 0x%x' % (sCnt, SPIN_MAX))
            a('s_cbranch_scc1 %s' % lp)
            a('s_waitcnt vmcnt(0)')
            a(ok+':')
            a('ds_write2_b32 %s, %s, %s offset0:0 offset1:1' % (v(V.cnt), v(V.tmp), v(V.zero)))
        self.cond(sW, PW, f)
    def side_use(self):
        a = self.a
        a('v_readfirstlane_b32 %s, %s' % (sA, v(V.tmp)))
        if self.o['ts']: a('s_mov_b32 s%d, %s' % (sTS+24, sA))
        if 'enc' in self.o: a('s_mov_b32 s62, %s' % sA)
        a('s_and_b32 %s, %s, 15' % (sB, sA)); a('s_bfe_u32 %s, %s, 0x40008' % (sA, sA))
        a('s_cmp_gt_u32 %s, %s' % (sA, sB))
        a('s_cselect_b32 %s, 0x2000, 0' % sCh)
        if self.o['force'] != '': a('s_mov_b32 %s, %d' % (sCh, int(self.o['force']) << 13))
        a('s_xor_b32 %s, %s, %s' % (sEst, sEst, sCh))
    def flag_addrs(self):
        a = self.a
        a('s_lshr_b32 %s, %s, 4' % (sB, sT))
        a('s_lshl_b32 %s, %s, 13' % (sA, sP)); a('s_add_u32 %s, %s, 0x%x' % (sA, sA, WS_FLAG))
        for dst, wp, gr in ((sF, sW, sB), (sE, sB, sW)):
            a('s_lshl4_add_u32 %s, %s, %s' % (sC, wp, gr)); a('s_lshl_b32 %s, %s, 10' % (sC, sC))
            a('s_add_u32 %s, %s, %s' % (dst, sC, sA))
        R = int(self.o['rep'])
        if R > 1:
            a('s_and_b32 %s, %s, %d' % (sC, sT, R-1)); a('s_lshl_b32 %s, %s, 8' % (sC, sC)); a('s_add_u32 %s, %s, %s' % (sE, sE, sC))
    def side_apply(self):
        for r in (sF, sE, sEld): self.a('s_xor_b32 %s, %s, %s' % (r, r, sCh))
    def ready_check(self):
        a = self.a; l0, l1 = self.label('rdy'), self.label('rdyok')
        a('s_cmp_ge_u32 %s, 16' % sRv)
        a('s_cbranch_scc1 %s' % l1)
        a('s_mov_b32 %s, 0' % sCnt)
        a(l0+':')
        a('buffer_load_dword %s, %s, %s, 0 offen sc1' % (v(V.tmp), v(V.zero), SDBG))
        a('s_add_u32 %s, %s, 1' % (sCnt, sCnt))
        a('s_cmp_gt_u32 %s, 0x%x' % (sCnt, SPIN_MAX))
        a('s_waitcnt vmcnt(0)')
        a('s_cbranch_scc1 %s' % l1)
        a('v_cmp_gt_u32 vcc, 16, %s' % v(V.tmp))
        a('s_cbranch_vccnz %s' % l0)
        a(l1+':')
    def arrive(self):
        for r in range(int(self.o['rep'])): self.a('s_atomic_add %s, s[24:25], %s offset:%d' % (sInc, sF, 256*r))
    def poll(self, ex, under=None):
        a = self.a; lp, ok = self.label('poll'), self.label('pollok')
        if under:
            a('s_mov_b32 %s, 0' % sRv)
            a('s_atomic_add %s, s[24:25], %s glc' % (sRv, sE))
            under()
            a('s_waitcnt lgkmcnt(0)')
            a('s_bitcmp1_b32 %s, %d' % (sRv, 4+16*ex))
            a('s_cbranch_scc1 %s' % ok)
        a('s_mov_b32 %s, 0' % sCnt)
        a(lp+':')
        a('s_mov_b32 %s, 0' % sRv)
        a('s_atomic_add %s, s[24:25], %s glc' % (sRv, sE))
        a('s_add_u32 %s, %s, 1' % (sCnt, sCnt))
        a('s_cmp_gt_u32 %s, 0x%x' % (sCnt, SPIN_MAX))
        a('s_waitcnt lgkmcnt(0)')
        a('s_cbranch_scc1 %s' % ok)
        if self.o['slp']:
            a('s_bitcmp1_b32 %s, %d' % (sRv, 4+16*ex))
            a('s_cbranch_scc1 %s' % ok)
            if self.o['sthr']:
                a('s_bfe_u32 %s, %s, 0x%x' % (sA, sRv, 0x50000+16*ex))
                a('s_cmp_ge_u32 %s, %s' % (sA, self.o['sthr'])); a('s_cbranch_scc1 %s' % lp)
            a('s_sleep %s' % self.o['slp'])
            a('s_branch %s' % lp)
        else:
            a('s_bitcmp0_b32 %s, %d' % (sRv, 4+16*ex))
            a('s_cbranch_scc1 %s' % lp)
        a(ok+':')
    def ex_addrs(self):
        a = self.a; T = V.T
        a('s_lshl_b32 %s, %s, 4' % (sB, sW)); a('s_xor_b32 %s, %s, %s' % (sB, sB, sT)); a('s_lshl_b32 %s, %s, 8' % (sB, sB))
        a('v_lshlrev_b32 %s, 4, %s' % (v(T), v(V.n)))
        a('v_lshl_add_u32 %s, %s, 10, %s' % (v(T), v(V.g), v(T)))
        a('v_xor_b32 %s, %s, %s' % (v(T), sB, v(T)))
        a('v_and_b32 %s, 0x6000, %s' % (v(T+1), v(T)))
        a('v_add_u32 %s, %s, %s' % (v(T), v(T), v(T+1)))
        a('v_lshl_add_u32 %s, %s, 18, %s' % (v(V.Est), v(V.g), v(T)))
        a('v_and_b32 %s, 0xdcff, %s' % (v(V.Eld), v(T)))
        a('s_bfe_u32 %s, %s, 0x10001' % (sA, sW)); a('s_xor_b32 %s, %s, %s' % (sA, sA, sP))
        a('s_bfe_u32 %s, %s, 0x10005' % (sC, sT)); a('s_xor_b32 %s, %s, %s' % (sC, sC, sP))
        a('s_lshl_b32 %s, %s, 7' % (sEst, sW)); a('s_add_u32 %s, %s, %s' % (sEst, sEst, sA)); a('s_lshl_b32 %s, %s, 13' % (sEst, sEst))
        a('s_lshl3_add_u32 %s, %s, %s' % (sEld, sT, sC)); a('s_lshl_b32 %s, %s, 13' % (sEld, sEld))

    def trig(self, x, re, im, conj_re=None, conj_im=None):
        a = self.a; c, s = V.T+8, V.T+9
        a('v_cos_f32 %s, %s' % (v(c), v(x)))
        a('v_sin_f32 %s, %s' % (v(s), v(x)))
        if getattr(self, 'fill', None): self.fill(); self.fill = None
        a('v_cvt_pk_bf16_f32 %s, %s, %s' % (v(re), v(c), v(s)))
        a('v_cvt_pk_bf16_f32 %s, -%s, %s' % (v(im), v(s), v(c)))
        if conj_re is not None:
            a('v_xor_b32 %s, 0x80000000, %s' % (v(conj_re), v(re)))
            a('v_xor_b32 %s, 0x8000, %s' % (v(conj_im), v(im)))
    def ladder(self, x, step, regs):
        a = self.a
        for k, r in enumerate(regs):
            if k < len(regs)-1: self.fill = lambda: a('v_add_f32 %s, %s, %s' % (v(x), v(x), v(step)))
            self.trig(x, *r)
    def gen_F16(self):
        a = self.a; T = V.T
        a('v_cvt_f32_u32 %s, %s' % (v(T), v(V.n)))
        a('v_cvt_f32_u32 %s, %s' % (v(T+1), v(V.g)))
        a('v_mul_f32 %s, %s, %s' % (v(T), lit(1/16), v(T)))
        a('v_mul_f32 %s, 4.0, %s' % (v(T+1), v(T+1)))
        a('v_mul_f32 %s, %s, %s' % (v(T+2), v(T), v(T+1)))
        self.ladder(T+2, T, [(V.F16+r, V.F16+4+r) for r in range(4)])
    def gen_M2(self):
        a = self.a; T = V.T
        def normal():
            a('v_cvt_f32_u32 %s, %s' % (v(T+2), sW))
            a('v_fmac_f32 %s, %s, %s' % (v(T), lit(1/256), v(T+2)))
            a('v_mul_f32 %s, %s, %s' % (v(T+2), v(T), v(T+1)))
            self.ladder(T+2, T, [(V.M2+r, V.M2+4+r, V.M2+8+r, V.M2+12+r) for r in range(4)])
        def w0():
            a('v_lshrrev_b32 %s, 1, %s' % (v(T), v(V.n)))
            a('v_cvt_f32_u32 %s, %s' % (v(T), v(T)))
            a('v_lshlrev_b32 %s, 31, %s' % (v(T+3), v(V.n)))
            a('v_add_f32 %s, 0.5, %s' % (v(T+4), v(T)))
            a('v_xor_b32 %s, %s, %s' % (v(T+3), lit(1/16), v(T+3)))
            a('v_cmp_ne_u32 vcc, 1, %s' % v(V.n))
            a('v_mul_f32 %s, %s, %s' % (v(T), v(T), v(T+3)))
            a('v_mul_f32 %s, %s, %s' % (v(T+4), v(T+4), v(T+3)))
            a('v_cndmask_b32 %s, 0.5, %s, vcc' % (v(T), v(T)))
            for ts in range(2):
                d = T+4*ts
                a('v_mul_f32 %s, %s, %s' % (v(T+2), v(d), v(T+1)))
                self.ladder(T+2, d, [(V.M2+8*ts+r, V.M2+8*ts+4+r) for r in range(4)])
        self.ifelse(sW, 0, w0, normal)
    def gen_M3(self):
        a = self.a; T = V.T
        a('v_cvt_f32_u32 %s, %s' % (v(T), v(V.n)))
        a('v_mul_f32 %s, %s, %s' % (v(T+1), lit(1/256), v(T)))
        a('v_mul_f32 %s, %s, %s' % (v(T), lit(1/16), v(T)))
        def normal():
            a('v_lshl_add_u32 %s, %s, 6, %s' % (v(T+2), v(V.g), sW))
            a('v_cvt_f32_u32 %s, %s' % (v(T+2), v(T+2)))
            a('v_mul_f32 %s, %s, %s' % (v(T+2), v(T+2), v(T+1)))
            self.ladder(T+2, T, [(V.M2+r, V.M2+4+r, V.M2+8+r, V.M2+12+r) for r in range(4)])
        def w0():
            a('v_lshlrev_b32 %s, 5, %s' % (v(T+2), v(V.g)))
            a('v_cvt_f32_u32 %s, %s' % (v(T+2), v(T+2)))
            a('v_mul_f32 %s, 0.5, %s' % (v(T), v(T)))
            a('v_mul_f32 %s, %s, %s' % (v(T+2), v(T+2), v(T+1)))
            regs = []
            for k in range(4):
                b = V.M2+8*(k & 1)+2*(k >> 1)
                regs.append((b, b+4, b+1, b+5))
            self.ladder(T+2, T, regs)
            a('s_mov_b64 exec, 0xffff')
            a('v_lshlrev_b32 %s, 15, %s' % (v(T+2), v(V.n)))
            a('v_and_b32 %s, 0x8000, %s' % (v(T+2), v(T+2)))
            a('v_or_b32 %s, 0x3f80, %s' % (v(V.M2+1), v(T+2)))
            a('v_lshlrev_b32 %s, 16, %s' % (v(V.M2+5), v(V.M2+1)))
            a('s_mov_b64 exec, -1')
        self.ifelse(sW, 0, w0, normal)
    def sigma_lane(self, dst):
        a = self.a; t = V.T+7
        a('v_and_b32 %s, 17, %s' % (v(dst), v(V.lane)))
        a('v_bfe_u32 %s, %s, 2, 2' % (v(t), v(V.lane)))
        a('v_lshl_add_u32 %s, %s, 1, %s' % (v(dst), v(t), v(dst)))
        a('v_and_b32 %s, 2, %s' % (v(t), v(V.lane)))
        a('v_lshl_add_u32 %s, %s, 2, %s' % (v(dst), v(t), v(dst)))
    def coop_gen(self):
        a = self.a; T = V.T; X = V.DA
        self.sigma_lane(T)
        a('v_lshrrev_b32 %s, 5, %s' % (v(T+1), v(V.lane)))
        a('v_lshlrev_b32 %s, 7, %s' % (v(T+2), v(T+1)))
        a('v_lshl_add_u32 %s, %s, 1, %s' % (v(T+2), v(T), v(T+2)))
        a('s_and_b32 %s, %s, 2' % (sD, sKP)); a('s_sub_u32 %s, %s, %s' % (sD, sWL, sD))
        a('v_add_u32 %s, %s, %s' % (v(V.WP), sD, v(T+2)))
        a('s_add_u32 %s, %s, %d' % (sD, sD, 1024-832))
        a('v_sub_u32 %s, %s, %s' % (v(V.WM), sD, v(T+2)))
        a('v_cvt_f32_u32 %s, %s' % (v(T), v(T)))
        a('s_mul_i32 %s, %s, 4' % (sA, sW)); a('s_lshr_b32 %s, 0x75643120, %s' % (sA, sA)); a('s_and_b32 %s, %s, 7' % (sA, sA)); a('s_lshl_b32 %s, %s, 2' % (sA, sA))
        a('v_lshl_add_u32 %s, %s, 1, %s' % (v(T+1), v(T+1), sA))
        a('v_mul_f32 %s, %s, %s' % (v(T), lit(1/2048), v(T)))
        a('v_cvt_f32_u32 %s, %s' % (v(T+1), v(T+1)))
        a('v_mul_f32 %s, %s, %s' % (v(T+2), v(T+1), v(T)))
        for e in range(2):
            a('v_cos_f32 %s, %s' % (v(T+5), v(T+2)))
            a('v_sin_f32 %s, %s' % (v(T+6), v(T+2)))
            a('v_rcp_f32 %s, %s' % (v(T+5), v(T+5)))
            a('v_mul_f32 %s, %s, %s' % (v(T+3), lit(64.0), v(T+2)))
            a('v_mul_f32 %s, %s, %s' % (v(X+4+e), v(T+6), v(T+5)))
            a('v_fma_f32 %s, %s, %s, 1.0' % (v(T+5), v(X+4+e), v(X+4+e)))
            a('v_rcp_f32 %s, %s' % (v(T+6), v(T+5)))
            a('v_mul_f32 %s, -2.0, %s' % (v(T+4), v(X+4+e)))
            a('v_fma_f32 %s, -%s, %s, 1.0' % (v(T+5), v(T+5), v(T+6)))
            a('v_fmac_f32 %s, %s, %s' % (v(T+6), v(T+5), v(T+6)))
            a('v_mul_f32 %s, %s, %s' % (v(X+6+e), v(T+6), v(T+4)))
            if e == 0: self.fill = lambda: a('v_add_f32 %s, %s, %s' % (v(T+2), v(T+2), v(T)))
            self.trig(T+3, X+e, X+2+e)
        a('s_lshr_b32 %s, %s, 1' % (sA, sW)); a('s_lshl_b32 %s, %s, 7' % (sA, sA))
        a('s_and_b32 %s, %s, 1' % (sB, sW)); a('s_add_u32 %s, %s, %s' % (sA, sA, sB))
        a('s_lshl3_add_u32 %s, %s, %d' % (sA, sA, TABL))
        a('v_add_u32 %s, %s, %s' % (v(T), sA, v(V.l16)))
        for k in range(4): a('ds_write_b64 %s, %s offset:%d' % (v(T), vr(X+2*k, 2), 4096*k))
    def coop_post(self):
        a = self.a
        a('v_mov_b32 %s, 1' % v(V.T+1))
        a('ds_add_u32 %s, %s offset:4' % (v(V.cnt), v(V.T+1)))
    def coop_wait(self):
        a = self.a; T = V.T; lp, ok = self.label('cw'), self.label('cwok')
        a('s_mov_b32 %s, 0' % sCnt)
        a(lp+':')
        a('ds_read_b32 %s, %s offset:4' % (v(T), v(V.cnt)))
        a('s_add_u32 %s, %s, 1' % (sCnt, sCnt))
        a('s_cmp_gt_u32 %s, 0x%x' % (sCnt, SPIN_MAX*8))
        a('s_waitcnt lgkmcnt(0)')
        a('s_cbranch_scc1 %s' % ok)
        a('v_cmp_gt_u32 vcc, 0x200, %s' % v(T))
        a('s_cbranch_vccnz %s' % lp)
        a(ok+':')
    def coop_read(self):
        a = self.a; T = V.T
        a('v_add_u32 %s, %d, %s' % (v(T), TABL, v(V.l16)))
        for k in range(16): a('ds_read_b128 %s, %s offset:%d' % (vr(V.F32+4*k, 4), v(T), 1024*k))
    def calc_k0(self):
        a = self.a
        a('s_lshr_b32 %s, %s, 4' % (sA, sT)); a('s_and_b32 %s, %s, 15' % (sB, sT))
        a('s_lshl4_add_u32 %s, %s, %s' % (sK0, sB, sA))
        a('s_and_b32 %s, %s, 12' % (sC, sB)); a('s_bfe_u32 %s, %s, 0x10001' % (sD, sB)); a('s_add_u32 %s, %s, %s' % (sC, sC, sD))
        a('s_and_b32 %s, %s, 1' % (sD, sB)); a('s_lshl1_add_u32 %s, %s, %s' % (sC, sD, sC)); a('s_lshl_b32 %s, %s, 3' % (sC, sC))
        a('s_cmp_eq_u32 %s, 0' % sA); a('s_cselect_b32 %s, %s, %s' % (sK0, sC, sK0))
        a('s_cmp_eq_u32 %s, 0' % sT); a('s_cselect_b32 %s, 7, 8' % sA)
        a('s_lshl_b32 %s, %s, %s' % (sKP, sW, sA)); a('s_add_u32 %s, %s, %s' % (sKP, sKP, sK0))
        a('s_sub_u32 %s, 0x800, %s' % (sKM, sKP))
        a('s_cmp_eq_u32 %s, 0' % sKP)
        a('s_cselect_b32 %s, 0x400, %s' % (sKM, sKM)); a('s_cselect_b32 %s, 1, 0' % sSpec)
        a('s_mul_i32 %s, %s, 1026' % (sKP, sKP)); a('s_mul_i32 %s, %s, 1026' % (sKM, sKM))
        a('s_mul_i32 %s, %s, 4224' % (sWL, sW)); a('s_add_u32 %s, %s, %d' % (sWL, sWL, WL))
        a('s_and_b32 %s, %s, 2' % (sA, sKP))
        a('s_add_u32 %s, %s, %s' % (sDP, sKP, sA)); a('s_add_u32 %s, %s, %s' % (sDM, sKM, sA))
    def gen_B(self):
        a = self.a; T = V.T; c, s = T+8, T+9
        a('v_lshrrev_b32 %s, 1, %s' % (v(T), v(V.n)))
        a('v_cvt_f32_u32 %s, %s' % (v(T+2), v(V.g)))
        a('v_and_b32 %s, 1, %s' % (v(T+3), v(V.n)))
        a('v_add_f32 %s, %s, %s' % (v(T+2), v(T+2), v(T+2)))
        def normal():
            a('v_lshl_add_u32 %s, %s, 8, %s' % (v(T+1), v(T), sK0))
            a('v_lshlrev_b32 %s, 4, %s' % (v(T+4), v(T+3)))
            a('v_cvt_f32_u32 %s, %s' % (v(T+1), v(T+1)))
            a('v_lshlrev_b32 %s, 31, %s' % (v(T+6), v(V.n)))
            a('v_cvt_f32_u32 %s, %s' % (v(T+3), v(T+3)))
            a('v_mul_f32 %s, %s, %s' % (v(T+1), lit(1/2048), v(T+1)))
            a('s_brev_b32 %s, 1' % sA)
            a('v_lshrrev_b32 %s, %s, %s' % (v(T+4), v(T+4), sA))
            a('v_mul_f32 %s, %s, %s' % (v(T+5), v(T+1), v(T+2)))
            a('v_fmac_f32 %s, %s, %s' % (v(T+5), lit(0.25), v(T+3)))
            for sbb in range(2):
                if sbb == 0: self.fill = lambda: a('v_add_f32 %s, %s, %s' % (v(T+5), v(T+5), v(T+1)))
                else: self.fill = lambda: a('v_cvt_f32_u32 %s, %s' % (v(T), v(T)))
                self.trig(T+5, V.B+2*sbb, V.B+6+2*sbb)
                a('v_xor_b32 %s, %s, %s' % (v(V.B+2*sbb+1), v(V.B+2*sbb), v(T+4)))
                a('v_xor_b32 %s, %s, %s' % (v(V.B+6+2*sbb+1), v(V.B+6+2*sbb), v(T+4)))
            a('v_lshl_add_u32 %s, %s, 9, %s' % (v(T+1), v(V.g), sK0))
            a('v_xor_b32 %s, %s, %s' % (v(T), v(T), v(T+6)))
            a('v_cvt_f32_u32 %s, %s' % (v(T+1), v(T+1)))
            a('v_mul_f32 %s, 0.5, %s' % (v(T+5), v(T+3)))
            a('v_mul_f32 %s, %s, %s' % (v(T+1), lit(1/2048), v(T+1)))
            a('v_fmac_f32 %s, %s, %s' % (v(T+5), v(T+1), v(T)))
            for ii in range(2):
                a('v_cos_f32 %s, %s' % (v(c), v(T+5)))
                a('v_sin_f32 %s, %s' % (v(s), v(T+5)))
                a('v_mul_f32 %s, %s, %s' % (v(c), lit(SC), v(c)))
                a('v_mul_f32 %s, %s, %s' % (v(s), lit(SC), v(s)))
                if ii == 0: a('v_fmac_f32 %s, %s, %s' % (v(T+5), lit(0.125), v(T)))
                a('v_cvt_pk_bf16_f32 %s, %s, %s' % (v(T+1), v(c), v(s)))
                a('v_cvt_pk_bf16_f32 %s, -%s, %s' % (v(T+2), v(s), v(c)))
                a('v_xor_b32 %s, %s, %s' % (v(V.Bp+2*ii), v(T+1), v(T+6)))
                a('v_xor_b32 %s, %s, %s' % (v(V.Bp+4+2*ii), v(T+2), v(T+6)))
                a('v_xor_b32 %s, %s, %s' % (v(V.Bp+2*ii+1), v(T+2), v(T+6)))
                a('v_xor_b32 %s, 0x80008000, %s' % (v(V.Bp+4+2*ii+1), v(V.Bp+2*ii)))
        def special():
            a('v_cvt_f32_u32 %s, %s' % (v(T+1), v(T)))
            a('v_mul_f32 %s, %s, %s' % (v(T+1), lit(1/16), v(T+1)))
            a('v_lshlrev_b32 %s, 4, %s' % (v(T+4), v(T+3)))
            a('v_cmp_eq_u32 s[84:85], 0, %s' % v(T))
            a('v_and_b32 %s, 1, %s' % (v(T+6), v(T)))
            a('v_cmp_eq_u32 s[86:87], 1, %s' % v(T+6))
            a('v_mul_f32 %s, %s, %s' % (v(T+5), v(T+1), v(T+2)))
            for sbb in range(2):
                a('v_cos_f32 %s, %s' % (v(c), v(T+5)))
                a('v_sin_f32 %s, %s' % (v(s), v(T+5)))
                a('v_mul_f32 %s, 2.0, %s' % (v(c), v(c)))
                a('v_mul_f32 %s, -2.0, %s' % (v(s), v(s)))
                a('v_cndmask_b32 %s, %s, 1.0, s[84:85]' % (v(c), v(c)))
                a('v_cndmask_b32 %s, %s, %s, s[84:85]' % (v(s), v(s), '-1.0' if sbb else '1.0'))
                for src, dst in ((c, V.B+2*sbb), (s, V.B+6+2*sbb)):
                    a('v_cvt_pk_bf16_f32 %s, %s, 0' % (v(T+7), v(src)))
                    a('v_lshlrev_b32 %s, %s, %s' % (v(T+7), v(T+4), v(T+7)))
                    a('v_cndmask_b32 %s, %s, 0, s[86:87]' % (v(dst), v(T+7)))
                    a('v_cndmask_b32 %s, 0, %s, s[86:87]' % (v(dst+1), v(T+7)))
                a('v_add_f32 %s, %s, %s' % (v(T+5), v(T+5), v(T+1)))
            a('v_cmp_eq_u32 s[88:89], 0, %s' % v(V.g))
            a('v_cmp_eq_u32 s[90:91], 1, %s' % v(T+3))
            a('v_lshlrev_b32 %s, 31, %s' % (v(T+6), v(T)))
            a('v_xor_b32 %s, %s, %s' % (v(T+6), lit(SC), v(T+6)))
            a('v_mov_b32 %s, %s' % (v(T+4), lit(SC)))
            a('v_mul_f32 %s, %s, %s' % (v(T+5), v(T+1), v(T+2)))
            for ii in range(2):
                a('v_cos_f32 %s, %s' % (v(c), v(T+5)))
                a('v_sin_f32 %s, %s' % (v(s), v(T+5)))
                a('v_mul_f32 %s, %s, %s' % (v(c), lit(2*SC), v(c)))
                a('v_mul_f32 %s, %s, %s' % (v(s), lit(-2*SC), v(s)))
                if ii == 0:
                    a('v_cndmask_b32 %s, %s, %s, s[88:89]' % (v(c), v(c), v(T+4)))
                    a('v_cndmask_b32 %s, %s, %s, s[88:89]' % (v(s), v(s), v(T+6)))
                a('v_cvt_pk_bf16_f32 %s, %s, %s' % (v(T+7), v(s), v(c)))
                if ii: a('v_cndmask_b32 %s, 0, %s, s[90:91]' % (v(T+7), v(T+7)))
                else: a('v_cndmask_b32 %s, %s, 0, s[90:91]' % (v(T+7), v(T+7)))
                a('v_mov_b32 %s, 0' % v(V.Bp+2*ii)); a('v_mov_b32 %s, %s' % (v(V.Bp+2*ii+1), v(T+7)))
                a('v_mov_b32 %s, %s' % (v(V.Bp+4+2*ii), v(T+7))); a('v_mov_b32 %s, 0' % v(V.Bp+4+2*ii+1))
                a('v_add_f32 %s, %s, %s' % (v(T+5), v(T+5), v(T+1)))
        self.far(sT, 0, special, normal)
        for d, r in ((4, 0), (5, 1), (10, 6), (11, 7)): a('v_mov_b32 %s, %s' % (v(V.B+d), v(V.B+r)))

    def wq(self, rho): return (rho & 1) + 8*((rho >> 1) & 1) + 4*((rho >> 2) & 1)
    def w_dma1(self, i):
        a = self.a
        srd, so = [(SWR, sDP), (SWI, sDP), (SWR, sDM), (SWI, sDM)][i]
        a('s_add_u32 m0, %s, %d' % (sWL, 1056*i))
        a('buffer_load_dwordx4 %s, %s, %s offen %s lds' % (v(V.l16), srd, so, self.o['ldw']))
    def w_dma(self):
        for i in range(4): self.w_dma1(i)
    def w_edge_load(self):
        a = self.a; T = V.T
        a('s_mov_b64 exec, 15')
        a('v_mov_b32 %s, %s' % (v(T), sKP)); a('v_mov_b32 %s, %s' % (v(T+1), sKM))
        a('s_mov_b64 vcc, 10')
        a('v_cndmask_b32 %s, %s, %s, vcc' % (v(T), v(T), v(T+1)))
        a('v_and_b32 %s, 2, %s' % (v(T+1), v(V.lane)))
        a('v_lshl_add_u32 %s, %s, 9, %s' % (v(T), v(T+1), v(T)))
        a('buffer_load_short_d16_hi %s, %s, %s, 0 offen' % (v(V.WF), v(T), SWR))
        a('buffer_load_short_d16_hi %s, %s, %s, 0 offen' % (v(V.WF+1), v(T), SWI))
        a('s_mov_b64 exec, -1')
    def w_edge_rl(self):
        for l in range(4):
            for im in range(2): self.a('v_readlane_b32 s%d, %s, %d' % (84+2*l+im, v(V.WF+im), l))
    def w_edge(self):
        a = self.a; T = V.T
        self.w_edge_rl()
        q = ((84, 86, 'add'), (85, 87, 'sub'), (90, 88, 'add'), (91, 89, 'sub'))
        for i, (x, y, op) in enumerate(q): a('v_mov_b32 %s, s%d' % (v(T+i), y))
        for i, (x, y, op) in enumerate(q): a('v_%s_f32 %s, s%d, %s' % (op, v(V.WF+i), x, v(T+i)))
        for i in range(4): a('v_mul_f32 %s, 0.5, %s' % (v(V.WF+i), v(V.WF+i)))
        a('s_mov_b64 s[92:93], 1')
    def w_read1(self, rho, im, dst=None, swap=False):
        dst = V.W if dst is None else dst
        if rho < 8: ad, off = V.WP, 64*self.wq(rho) + (2112 if swap else 0)
        else: ad, off = V.WM, 64*(13-self.wq(rho)) + (0 if swap else 2112)
        return 'ds_read_u16_d16_hi %s, %s offset:%d' % (v(dst+16*im+rho), v(ad), off+1056*im)
    def w_fix(self, half):
        return ['v_cndmask_b32 %s, %s, %s, s[92:93]' % (v(V.W+8*half+16*im), v(V.W+8*half+16*im), v(V.WF+2*half+im)) for im in range(2)]
    def w_special(self):
        a = self.a; T = V.T; X = V.DA
        def f():
            for sw, dst in ((False, V.W), (True, X)):
                for rho in range(16):
                    for im in range(2): a(self.w_read1(rho, im, dst, sw))
            a('s_waitcnt lgkmcnt(0) vmcnt(0)')
            self.w_edge_rl()
            a('s_mov_b64 exec, 1')
            for r in (V.W+16, V.W+24, X+16, X+24): a('v_mov_b32 %s, 0' % v(r))
            a('v_mov_b32 %s, s90' % v(V.W+8)); a('v_mov_b32 %s, s88' % v(X+8))
            a('s_mov_b64 exec, -1')
            for i in range(32):
                a('v_add_f32 %s, %s, %s' % (v(V.W+i), v(V.W+i), v(X+i)))
                if (i & 15) < 8: a('v_fma_f32 %s, -2.0, %s, %s' % (v(X+i), v(X+i), v(V.W+i)))
                else: a('v_fma_f32 %s, 2.0, %s, -%s' % (v(X+i), v(X+i), v(V.W+i)))
            a('v_add_u32 %s, %d, %s' % (v(T+1), SCR_B, v(V.l16)))
            for i in range(8): a('ds_write_b128 %s, %s offset:%d' % (v(T+1), vr(X+4*i, 4), 1024*i))
        self.far(sSpec, 1, f)

    def addrs1(self):
        a = self.a; T = V.T
        a('v_lshrrev_b32 %s, 3, %s' % (v(T), v(V.lane)))
        a('v_and_b32 %s, 0x30, %s' % (v(T+1), v(V.l16)))
        a('v_lshl_add_u32 %s, %s, 6, %s' % (v(T), v(T), v(T+1)))
        a('v_and_b32 %s, 4, %s' % (v(T+1), v(V.lane)))
        a('v_lshl_add_u32 %s, %s, 1, %s' % (v(V.TR), v(T+1), v(T)))
        a('v_xor_b32 %s, %s, %s' % (v(T), sSB, v(V.lane)))
        a('v_and_b32 %s, 1, %s' % (v(T), v(T)))
        a('v_mul_u32_u24 %s, 16448, %s' % (v(T), v(T)))
        a('v_lshl_add_u32 %s, %s, 12, %s' % (v(T), v(V.g), v(T)))
        a('v_lshl_add_u32 %s, %s, 2, %s' % (v(T), v(T+1), v(T)))
        a('v_and_b32 %s, 0x60, %s' % (v(T+1), v(V.TR)))
        a('s_lshr_b32 %s, %s, 1' % (sWp, sW)); a('s_and_b32 %s, %s, 1' % (sA, sW))
        a('s_lshl2_add_u32 %s, %s, %s' % (sWp, sA, sWp)); a('s_lshl_b32 %s, %s, 7' % (sWp, sWp))
        a('v_add3_u32 %s, %s, %s, %s' % (v(V.X0w), v(T), v(T+1), sWp))
        a('s_lshl_b32 %s, %s, 10' % (sA, sW))
        a('s_sub_u32 %s, 0x4000, %s' % (sB, sA))
        a('s_cmp_eq_u32 %s, 0' % sW); a('s_cselect_b32 %s, 0x2000, %s' % (sB, sB))
        a('v_add_u32 %s, %s, %s' % (v(V.X0r0), sA, v(V.TR)))
        a('v_add_u32 %s, %s, %s' % (v(V.X0r1), sB, v(V.TR)))
    def addrs2(self):
        a = self.a; T = V.T
        a('v_lshlrev_b32 %s, 4, %s' % (v(T), v(V.n)))
        a('v_lshl_add_u32 %s, %s, 13, %s' % (v(T), v(V.g), v(T)))
        a('s_lshl_b32 %s, %s, 9' % (sA, sW)); a('s_add_u32 %s, %s, %d' % (sA, sA, R1))
        a('v_add_u32 %s, %s, %s' % (v(V.X1w), sA, v(T)))
        a('s_lshl_b32 %s, %s, 12' % (sA, sW)); a('s_add_u32 %s, %s, %d' % (sA, sA, R1))
        a('v_add_u32 %s, %s, %s' % (v(V.X1r), sA, v(V.TR)))
        a('v_and_b32 %s, 16, %s' % (v(T), v(V.l16)))
        a('v_and_b32 %s, 2, %s' % (v(T+1), v(V.lane)))
        a('v_bfe_u32 %s, %s, 2, 1' % (v(T+2), v(V.lane)))
        a('v_add_u32 %s, %s, %s' % (v(T+1), v(T+1), v(T+2)))
        a('v_mul_u32_u24 %s, 8224, %s' % (v(T+1), v(T+1)))
        a('v_bfe_u32 %s, %s, 3, 2' % (v(T+2), v(V.lane)))
        a('v_lshl_add_u32 %s, %s, 11, %s' % (v(T), v(T+2), v(T)))
        a('v_and_b32 %s, 32, %s' % (v(T+2), v(V.lane)))
        a('v_add3_u32 %s, %s, %s, %s' % (v(T), v(T), v(T+1), v(T+2)))
        a('v_add_u32 %s, %s, %s' % (v(V.X2w), sWp, v(T)))
        a('s_and_b32 %s, %s, 1' % (sA, sW)); a('s_lshr_b32 %s, %s, 2' % (sB, sW)); a('s_lshl1_add_u32 %s, %s, %s' % (sA, sB, sA)); a('s_lshl_b32 %s, %s, 11' % (sA, sA))
        a('s_and_b32 %s, %s, 2' % (sB, sW)); a('s_mul_i32 %s, %s, 8224' % (sB, sB)); a('s_add_u32 %s, %s, %s' % (sA, sA, sB))
        a('v_add_u32 %s, %s, %s' % (v(V.X2r), sA, v(V.TR)))
    def addrs3(self):
        a = self.a; T = V.T
        a('v_and_b32 %s, 16, %s' % (v(T), v(V.lane)))
        a('v_and_b32 %s, 33, %s' % (v(T+1), v(V.lane)))
        a('v_lshl_add_u32 %s, %s, 5, %s' % (v(T), v(T+1), v(T)))
        a('v_and_b32 %s, 8, %s' % (v(T+1), v(V.lane)))
        a('v_lshl_add_u32 %s, %s, 9, %s' % (v(T), v(T+1), v(T)))
        a('v_and_b32 %s, 2, %s' % (v(T+1), v(V.lane)))
        a('v_and_b32 %s, 4, %s' % (v(T+2), v(V.lane)))
        a('v_mul_u32_u24 %s, 4104, %s' % (v(T+1), v(T+1)))
        a('v_mul_u32_u24 %s, 4112, %s' % (v(T+2), v(T+2)))
        a('v_add3_u32 %s, %s, %s, %s' % (v(T), v(T), v(T+1), v(T+2)))
        a('s_sub_u32 %s, 16, %s' % (sC, sW))
        a('s_cmp_eq_u32 %s, 0' % sW); a('s_cselect_b32 %s, 8, %s' % (sC, sC))
        for kl, dst in ((sW, V.X3w0), (sC, V.X3w1)):
            a('s_lshr_b32 %s, %s, 2' % (sA, kl)); a('s_and_b32 %s, %s, 1' % (sB, kl)); a('s_lshl1_add_u32 %s, %s, %s' % (sA, sA, sB))
            a('s_and_b32 %s, %s, 2' % (sB, kl)); a('s_lshl2_add_u32 %s, %s, %s' % (sA, sB, sA))
            a('s_lshl_b32 %s, %s, 6' % (sA, sA)); a('s_add_u32 %s, %s, %d' % (sA, sA, R1))
            a('v_add_u32 %s, %s, %s' % (v(dst), sA, v(T)))
        a('s_and_b32 %s, %s, 1' % (sA, sW)); a('s_mul_i32 %s, %s, 8208' % (sA, sA))
        a('s_and_b32 %s, %s, 2' % (sB, sW)); a('s_mul_i32 %s, %s, 8224' % (sB, sB)); a('s_add_u32 %s, %s, %s' % (sA, sA, sB))
        a('s_and_b32 %s, %s, 4' % (sB, sW)); a('s_lshl_b32 %s, %s, 10' % (sB, sB)); a('s_add_u32 %s, %s, %s' % (sA, sA, sB))
        a('s_add_u32 %s, %s, %d' % (sA, sA, R1))
        a('v_add_u32 %s, %s, %s' % (v(V.X3r), sA, v(V.TR)))
        a('v_and_b32 %s, 0x70, %s' % (v(T), v(V.l16)))
        a('v_lshlrev_b32 %s, 1, %s' % (v(V.Ooff), v(V.Xoff)))
        a('v_sub_u32 %s, %s, %s' % (v(V.Ooff), v(V.Ooff), v(T)))

    def mf16(self, d, A, B): return 'v_mfma_f32_16x16x32_bf16 %s, %s, %s, 0' % (vr(d, 4), vr(A, 4), vr(B, 4))
    def cvt(self, d, lo, hi): return 'v_cvt_pk_bf16_f32 %s, %s, %s' % (v(d), v(lo), v(hi))
    def mf32(self, d, i, pl, dataA):
        M = vr(V.F32+16*pl+4*i, 4); X = vr(V.O+4*i, 4)
        A, B = (X, M) if dataA else (M, X)
        D = vr(d+16*pl, 16)
        return 'v_mfma_f32_32x32x16_bf16 %s, %s, %s, %s' % (D, A, B, D if i else '0')
    def emit(self, L):
        for x in L: self.a(x)

    def p1(self):
        a = self.a; O, L, D, P = V.O, V.L, V.DA, V.DB
        for r in range(4):
            a('s_waitcnt vmcnt(%d)' % (3-r))
            if r == 3:
                self.stamp()
                if self.o['spos'] == 'mid': self.cond(sW, PW, self.side_load)
            for t in range(4): a('v_mov_b32 %s, %s' % (v(O+4*t+r), v(L+4*r+t)))
        for t in range(4):
            a(self.mf16(D+4*t, V.F16, O+4*t)); a(self.mf16(D+16+4*t, V.F16+4, O+4*t))
        if self.o['spos'] == 'late': self.cond(sW, PW, self.side_load)
        def sp():
            self.srds()
            a('s_mov_b32 %s, 0' % sDP); a('s_mov_b32 %s, %d' % (sDM, 1024*1026)); a('s_mov_b32 %s, %d' % (sWL, WL))
            self.w_dma()
        a('s_or_b32 %s, %s, %s' % (sA, sT, sW))
        self.far(sA, 0, sp)
        for r in range(4):
            a(self.cvt(P+4*r, D+r, D+4+r)); a(self.cvt(P+4*r+2, D+16+r, D+20+r))
        for r in range(4):
            a(self.cvt(P+4*r+1, D+8+r, D+12+r)); a(self.cvt(P+4*r+3, D+24+r, D+28+r))
            a('ds_write_b128 %s, %s offset:%d' % (v(V.X0w), vr(P+4*r, 4), 1024*r))
        self.mark('g1a')
        self.side_wait()
        self.mark('g1b')
        a('s_waitcnt lgkmcnt(0)')
        a('s_barrier')
        for ti in range(4):
            for ii in range(2):
                a('ds_read_b64_tr_b16 %s, %s offset:%d' % (vr(O+4*ti+2*ii, 2), v(V.X0r1 if ti >> 1 else V.X0r0), (ti & 1)*16448+ii*512))
        a('ds_read_b32 %s, %s' % (v(V.tmp), v(V.cnt)))
        for ti in range(4):
            a('s_waitcnt lgkmcnt(%d)' % (7-2*ti))
            a(self.mf16(D+4*ti, V.M2+8*(ti >> 1), O+4*ti)); a(self.mf16(D+16+4*ti, V.M2+8*(ti >> 1)+4, O+4*ti))
        a('s_waitcnt lgkmcnt(0)')
        self.side_use()
        for r in range(4): a('s_add_u32 %s, %s, 0x%x' % (sO[r], sEst, WS_U[0] + r*65536))
        st = lambda i: a('buffer_store_dwordx4 %s, %s, %s, %s offen %s' % (vr(P+4*i, 4), v(V.Est), SWS, sO[i], self.o['st1']))
        def normal():
            for i in range(4):
                for k in range(4): a(self.cvt(P+4*i+2*(k & 1)+(k >> 1), D+4*k+i, D+16+4*k+i))
                st(i)
        def w0():
            for i in range(4):
                ts, eb = i >> 1, i & 1
                for tau in range(2):
                    for sg in range(2):
                        x = 4*(2*ts+tau)+2*eb+sg
                        a(self.cvt(P+4*i+2*tau+sg, D+x, D+16+x))
                st(i)
        self.ifelse(sW, 0, w0, normal)

    def stage(self, src, dst, dataA, kind, prio, pre=None):
        a = self.a; T = V.T
        if self.o['prio']: a('s_setprio %d' % prio)
        G = []
        for i in range(4):
            g = []
            if kind == 'tw':
                for st in range(3):
                    for r in range(4):
                        rho = 4*i+r; x, y = v(src+rho), v(src+16+rho)
                        g.append('v_fmac_f32 %s, %s, %s' % ((y, v(V.TW+16+rho), x) if st == 1 else (x, v(V.TW+rho), y)))
                for r in range(4): g.append(self.cvt(V.O+4*i+r, src+4*i+r, src+16+4*i+r))
            else:
                t = T+4*(i & 1)
                for r in range(4):
                    rho = 4*i+r
                    g.append('v_mul_f32 %s, %s, %s' % (v(t+r), v(src+rho), v(V.W+rho)))
                for r in range(4):
                    rho = 4*i+r
                    if rho < 8: g.append('v_fma_f32 %s, -%s, %s, %s' % (v(t+r), v(src+16+rho), v(V.W+16+rho), v(t+r)))
                    else: g.append('v_fmac_f32 %s, %s, %s' % (v(t+r), v(src+16+rho), v(V.W+16+rho)))
                for r in range(4):
                    rho = 4*i+r
                    g.append('v_mul_f32 %s, %s, %s' % (v(src+16+rho), v(src+16+rho), v(V.W+rho)))
                for r in range(4):
                    rho = 4*i+r
                    if rho < 8: g.append('v_fmac_f32 %s, %s, %s' % (v(src+16+rho), v(src+rho), v(V.W+16+rho)))
                    else: g.append('v_fma_f32 %s, -%s, %s, %s' % (v(src+16+rho), v(src+rho), v(V.W+16+rho), v(src+16+rho)))
                for r in range(4): g.append(self.cvt(V.O+4*i+r, src+16+4*i+r, t+r))
            G.append(g)
        W = [[self.w_read1(4*i+r, im) for im in range(2) for r in range(4)] for i in range(4)] if kind == 'w' else None
        if kind == 'w':
            a('s_waitcnt vmcnt(2)')
            self.emit(W[0]); self.emit(W[1])
        for i in range(4):
            g = list(G[i]); n = len(g)
            ins = {}
            if i:
                ins.setdefault(2, []).append(self.mf32(dst, i-1, 0, dataA))
                ins.setdefault(2+n//2, []).append(self.mf32(dst, i-1, 1, dataA))
            if kind == 'w':
                a('s_waitcnt lgkmcnt(%d)' % (8 if i < 3 else 0))
                if i in (0, 2): self.emit(self.w_fix(i >> 1))
                if i < 2:
                    if i == 0: ins.setdefault(3, []).append('s_waitcnt vmcnt(0)')
                    for k, x in enumerate(W[i+2]): ins.setdefault(3+2*k, []).append(x)
            for k, x in enumerate(g):
                self.emit(ins.get(k, []))
                a(x)
        a(self.mf32(dst, 3, 0, dataA)); a(self.mf32(dst, 3, 1, dataA))

    def p2(self):
        a = self.a; O, L, D, T = V.O, V.L, V.DA, V.T
        na = self.p2na
        for cbb in range(2):
            b = L+12*cbb
            a('s_waitcnt vmcnt(%d)' % (na+3-2*cbb))
            a('v_mov_b32 %s, %s' % (v(b+8), v(b))); a('v_mov_b32 %s, %s' % (v(b+9), v(b+1)))
            a('s_waitcnt vmcnt(%d)' % (na+2-2*cbb))
            if cbb: self.stamp(); self.mark('f0')
            for jj2 in (1, 0):
                ti = 2*cbb+jj2; op = b+2 if jj2 else b+6; mo = 0 if jj2 else 2
                a(self.mf16(D+4*ti, V.B+mo, op)); a(self.mf16(D+16+4*ti, V.B+6+mo, op))
        for cbb in range(2):
            for k1b in range(2):
                P = O+4*(2*cbb+k1b)
                for jj2 in (1, 0):
                    for pl in range(2):
                        x = D+16*pl+4*(2*cbb+jj2)+2*k1b
                        a(self.cvt(P+2*pl+jj2, x, x+1))
                a('ds_write_b128 %s, %s offset:%d' % (v(V.X1w), vr(P, 4), k1b*4096+cbb*256))
        self.mark('f1')
        a('s_waitcnt lgkmcnt(0)')
        self.mark('f2', True)
        a('s_barrier')
        self.mark('x1', True)
        if self.o['prio']: a('s_setprio 3')
        for i in range(4):
            for ii in range(2):
                a('ds_read_b64_tr_b16 %s, %s offset:%d' % (vr(O+4*i+2*ii, 2), v(V.X1r), ii*1024+(i & 1)*512+(i >> 1)*2048))
        rows = {'postX1': (0, 1, 2, 3), 'barh': (2, 3), 'bar': ()}[self.o['wpos']]
        for i in range(4):
            if i < len(rows): self.w_dma1(rows[i])
            a('s_waitcnt lgkmcnt(%d)' % (6-2*i))
            a(self.mf32(V.DA, i, 0, True)); a(self.mf32(V.DA, i, 1, True))
        self.mark('f3')
        self.stage(V.DA, V.DB, False, 'tw', 2)
        self.mark('f4', True)
        self.far(sSpec, 1, self.pw_special, lambda: self.stage(V.DB, V.DA, True, 'w', 1))
        self.mark('f5')
        self.stage(V.DA, V.DB, True, 'tw', 0)
        self.mark('f6')
        D = V.DB
        for r in range(4): a('s_add_u32 %s, %s, 0x%x' % (sO[r], sEst, WS_U[1] + r*65536))
        rho = lambda jj3, jj1, jj2, c: 4*(2*jj3+jj1)+2*jj2+c
        for pl in range(2):
            for k in range(4):
                c, jj1 = k >> 1, k & 1
                P = V.DA+4*k
                for jj3 in range(2):
                    a(self.cvt(P+2*pl+jj3, D+16*pl+rho(jj3, jj1, 0, c), D+16*pl+rho(jj3, jj1, 1, c)))
                if pl: a('ds_write_b128 %s, %s offset:%d' % (v(V.X2w), vr(P, 4), c*64+jj1*1024))
        self.mark('f7'); self.mark('x2')
        a('s_waitcnt lgkmcnt(0)')
        self.mark('f8', True)
        a('s_barrier')
        for ti in range(4):
            for ii in range(2):
                a('ds_read_b64_tr_b16 %s, %s offset:%d' % (vr(O+4*ti+2*ii, 2), v(V.X2r), ii*512+(ti & 1)*1024+(ti >> 1)*8224))
        D = V.DA; P = V.DB
        for ti in range(4):
            a('s_waitcnt lgkmcnt(%d)' % (6-2*ti))
            a(self.mf16(D+4*ti, V.Bp, O+4*ti)); a(self.mf16(D+16+4*ti, V.Bp+4, O+4*ti))
        self.mark('f9')
        for q in range(4):
            cbb, sbb = q >> 1, q & 1
            for jj1 in range(2):
                for hf in range(2):
                    x = 4*(2*cbb+jj1)+2*sbb+hf
                    a(self.cvt(P+4*q+2*jj1+hf, D+x, D+16+x))
            a('buffer_store_dwordx4 %s, %s, %s, %s offen %s' % (vr(P+4*q, 4), v(V.Est), SWS, sO[q], self.o['st2']))
        self.mark('f10')

    def pw_special(self):
        a = self.a; T = V.T; O = V.O; C = V.DB; X = V.DA
        self.sigma_lane(T)
        a('v_lshrrev_b32 %s, 5, %s' % (v(T+1), v(V.lane)))
        a('v_lshlrev_b32 %s, 9, %s' % (v(T+1), v(T+1)))
        a('v_lshl_add_u32 %s, %s, 2, %s' % (v(T+2), v(T), v(T+1)))
        a('v_add_u32 %s, %d, %s' % (v(T+2), SCR, v(T+2)))
        a('v_add_u32 %s, 128, %s' % (v(T+3), v(T+2)))
        a('v_sub_u32 %s, 32, %s' % (v(T+4), v(T)))
        a('v_lshrrev_b32 %s, 5, %s' % (v(T+5), v(T+4)))
        a('v_and_b32 %s, 31, %s' % (v(T+4), v(T+4)))
        a('v_lshlrev_b32 %s, 2, %s' % (v(T+4), v(T+4)))
        a('v_lshl_add_u32 %s, %s, 8, %s' % (v(T+4), v(T+5), v(T+4)))
        a('v_sub_u32 %s, %s, %s' % (v(T+4), v(T+4), v(T+1)))
        a('v_add_u32 %s, %d, %s' % (v(T+4), SCR + 2*256, v(T+4)))
        a('v_add_u32 %s, 128, %s' % (v(T+5), v(T+4)))
        a('v_add_u32 %s, %d, %s' % (v(T+6), SCR_B, v(V.l16)))
        qs = lambda rho: sigma(8*(rho >> 2) + (rho & 3))
        for pl in range(2):
            for rho in range(0, 16, 2):
                a('ds_write2st64_b32 %s, %s, %s offset0:%d offset1:%d' % (v(T+2+pl), v(C+16*pl+rho), v(C+16*pl+rho+1), qs(rho), qs(rho+1)))
            a('ds_write_b32 %s, %s offset:%d' % (v(T+2+pl), v(C+16*pl), 32*256))
        t0, t1 = v(T+8), v(T+9)
        for half in range(2):
            for pl in range(2):
                for k in range(0, 8, 2):
                    r_ = 8*half+k
                    a('ds_read2st64_b32 %s, %s offset0:%d offset1:%d' % (vr(X+8*pl+k, 2), v(T+4+pl), 29-qs(r_), 29-qs(r_+1)))
                for k in range(2):
                    a('ds_read_b128 %s, %s offset:%d' % (vr(X+16+8*pl+4*k, 4), v(T+6), 1024*(4*pl+2*half+k)))
            a('s_waitcnt lgkmcnt(0)')
            for k in range(8):
                r_ = 8*half+k
                x, y = v(C+r_), v(C+16+r_); ar, ai = v(V.W+r_), v(V.W+16+r_)
                p, q_ = v(X+k), v(X+8+k); br, bi = v(X+16+k), v(X+24+k)
                ng, ps = ('', '-') if half else ('-', '')
                a('v_mul_f32 %s, %s, %s' % (t0, x, ar))
                a('v_mul_f32 %s, %s, %s' % (t1, y, ar))
                a('v_fma_f32 %s, %s%s, %s, %s' % (t0, ng, y, ai, t0))
                a('v_fma_f32 %s, %s%s, %s, %s' % (t1, ps, x, ai, t1))
                a('v_fmac_f32 %s, %s, %s' % (t0, p, br))
                a('v_fma_f32 %s, -%s, %s, %s' % (t1, q_, br, t1))
                a('v_fma_f32 %s, %s%s, %s, %s' % (t0, ps, q_, bi, t0))
                a('v_fma_f32 %s, %s%s, %s, %s' % (t1, ps, p, bi, t1))
                a(self.cvt(O+r_, T+9, T+8))
        for i in range(4): a(self.mf32(V.DA, i, 0, True)); a(self.mf32(V.DA, i, 1, True))

    def p3(self):
        a = self.a; O, L, D, P = V.O, V.L, V.DA, V.DB
        a('s_lshl4_add_u32 %s, %s, %s' % (sA, sW, sSB)); a('s_lshl1_add_u32 %s, %s, %s' % (sA, sA, sP))
        a('s_lshl4_add_u32 %s, %s, %s' % (sA, sA, sCB)); a('s_lshl_b32 %s, %s, 7' % (sO[0], sA))
        for r in range(1, 4): a('s_add_u32 %s, %s, 0x%x' % (sO[r], sO[0], r*524288))
        def normal():
            for i in range(4):
                a('s_waitcnt vmcnt(%d)' % (3-i))
                for sel in range(2):
                    for col in range(2): a('v_mov_b32 %s, %s' % (v(O+4*(2*sel+col)+i), v(L+4*i+2*col+sel)))
        def w0():
            for i in range(4):
                ts, eb = i >> 1, i & 1
                a('s_waitcnt vmcnt(%d)' % (3-i))
                for col in range(2):
                    for sg in range(2): a('v_mov_b32 %s, %s' % (v(O+4*(2*ts+col)+2*eb+sg), v(L+4*i+2*col+sg)))
        self.ifelse(sW, 0, w0, normal, True)
        self.stamp()
        for ti in range(4):
            a(self.mf16(D+4*ti, O+4*ti, V.M2+8*(ti >> 1))); a(self.mf16(D+16+4*ti, O+4*ti, V.M2+8*(ti >> 1)+4))
        for ti in range(4):
            for pl in range(2):
                for k in range(2):
                    x = D+16*pl+4*ti+2*k
                    a(self.cvt(P+4*ti+2*pl+k, x, x+1))
            a('ds_write_b128 %s, %s offset:%d' % (v(V.X3w1 if ti >> 1 else V.X3w0), vr(P+4*ti, 4), (ti & 1)*2048))
        a('s_waitcnt lgkmcnt(0)')
        a('s_barrier')
        for t in range(4):
            for ii in range(2):
                a('ds_read_b64_tr_b16 %s, %s offset:%d' % (vr(O+4*t+2*ii, 2), v(V.X3r), ii*512+t*1024))
        for t in range(4):
            a('s_waitcnt lgkmcnt(%d)' % (6-2*t))
            a(self.mf16(D+4*t, V.F16, O+4*t)); a(self.mf16(D+16+4*t, V.F16+4, O+4*t))
        for t in range(2):
            for r in range(4): a(self.cvt(P+4*r+t, D+16+4*t+r, D+4*t+r))
        for r in range(4):
            for t in (2, 3): a(self.cvt(P+4*r+t, D+16+4*t+r, D+4*t+r))
            a('buffer_store_dwordx4 %s, %s, %s, %s offen %s' % (vr(P+4*r, 4), v(V.Ooff), SOUT, sO[r], self.o['sto']))

    def ex_load(self, ex):
        a = self.a
        a('s_add_u32 %s, %s, 0x%x' % (sA, sEld, WS_U[ex]))
        for q in range(4):
            d = V.L+12*(q >> 1)+4*(q & 1) if ex == 0 else V.L+4*q
            a('buffer_load_dwordx4 %s, %s, %s, %s offen offset:%d %s' % (vr(d, 4), v(V.Eld), SWS, sA, 256*q, self.o['ld1' if ex == 0 else 'ld2']))

    def build(self):
        a = self.a; o = self.o
        name = NAME + '_kernel'
        a.raw('.globl %s\n.p2align 12\n.p2align 8\n.type %s,@function\n%s:' % (name, name, name))
        end = self.label('end')
        self.prologue(end)
        work1 = lambda: (self.srds0(), self.addrs1(), self.gen_F16())
        if o['split']:
            a('s_lshr_b32 %s, %s, 2' % (sSpec, sW))
            self.ifelse(sSpec, 1, lambda: self.touch(0, True), work1, True)
        elif o['skip']:
            a('s_cmp_eq_u32 %s, 0' % sCh); a('s_cbranch_scc1 ret_0')
            self.touch(0)
        elif o['touch']: self.touch(0)
        a('s_waitcnt lgkmcnt(0)')
        self.mark('karg')
        if int(o['wsoff']):
            a('s_add_u32 s24, s24, 0x%x' % (int(o['wsoff']) << 20)); a('s_addc_u32 s25, s25, 0')
        self.probe_issue(); self.clear_issue()
        for r in range(4):
            a('buffer_load_dwordx4 %s, %s, %s, %s offen %s' % (vr(V.L+4*r, 4), v(V.Xoff), SX, sO[r], o['ldx']))
        self.probe_eval()
        if o['split']: self.cond(sSpec, 1, work1)
        else: work1()
        self.gen_M2(); self.ex_addrs()
        self.clear_done()
        if o['touch']: self.cond(sT, 0, lambda: self.touch(1))
        if o['spos'] == 'early': self.cond(sW, PW, self.side_load)
        self.mark('w1')
        self.p1()
        self.stamp()
        a('s_load_dword %s, s[20:21], 0x0' % sRv)
        self.flag_addrs(); self.side_apply(); self.srds(); self.calc_k0()
        a('s_mov_b32 %s, 1' % sInc)
        self.coop_gen(); self.coop_post()
        a('s_waitcnt vmcnt(0) lgkmcnt(0)')
        self.stamp()
        self.ready_check()
        self.arrive()
        self.poll(0, lambda: (self.w_edge_load(), self.gen_B(), self.w_special()))
        self.stamp()
        self.ex_load(0)
        self.p2na = 0
        if o['wpos'] in ('bar', 'barh'):
            a('s_barrier'); self.p2na = 4 if o['wpos'] == 'bar' else 2
            for i in range(self.p2na): self.w_dma1(i)
        else: self.coop_wait()
        self.coop_read(); self.addrs2()
        a('s_waitcnt vmcnt(%d)' % (4+self.p2na))
        self.w_edge()
        a('s_mov_b32 %s, 0x10000' % sInc)
        if o.get('da') == 'glob': self.cond(sId, 0, lambda: a('s_atomic_swap s56, s[20:21], 0x40'))
        self.p2()
        self.stamp()
        self.gen_M3()
        self.mark('w3a')
        a('s_waitcnt vmcnt(0)')
        self.stamp()
        self.arrive()
        self.poll(1, self.addrs3)
        if o['ts']: a('s_mov_b32 s%d, %s' % (sTS+26, sCnt))
        self.stamp()
        self.ex_load(1)
        self.p3()
        self.diag_end()
        a(end+':'); a('s_endpgm')
        t, self.tail = self.tail, []
        for f in t: f()
        if o['touch']: self.insert_stubs()
        hdr = ('; GFNet spectral filter, two heads: 2-D FFT as bf16 MFMA DFT stages in one persistent launch (generated)\n'
               '; @launch grid=(256,1,1) block=(512,1,1) lds=%d\n' % LDS_TOTAL)
        kd = '''.section .rodata,"a"
.p2align 6
.amdhsa_kernel %s
  .amdhsa_next_free_vgpr %d
  .amdhsa_next_free_sgpr 102
  .amdhsa_accum_offset %d
  .amdhsa_group_segment_fixed_size 0
  .amdhsa_kernarg_size 72
  .amdhsa_user_sgpr_count 2
  .amdhsa_user_sgpr_kernarg_segment_ptr 1
  .amdhsa_system_sgpr_workgroup_id_x 1
.end_amdhsa_kernel
''' % (name, NVGPR, (NVGPR+3)//4*4)
        return hdr + '.amdgcn_target "amdgcn-amd-amdhsa--gfx950"\n.text\n' + a.text() + kd

    def insert_stubs(self):
        a = self.a
        txt = '.amdgcn_target "amdgcn-amd-amdhsa--gfx950"\n.text\n' + a.text() + ''.join('stub_%d:\n' % k for k in range(16)) + 's_endpgm\n'
        open('pass1.s', 'w').write(txt)
        subprocess.check_call(['clang', '-x', 'assembler', '-target', 'amdgcn-amd-amdhsa', '-mcpu=gfx950', '-c', 'pass1.s', '-o', 'pass1.o'])
        dis = subprocess.check_output(['llvm-objdump', '-d', '--mcpu=gfx950', 'pass1.o']).decode()
        addrs = [int(m.group(1), 16) for m in re.finditer(r'// ([0-9A-F]{12}):', dis)]
        real = [i for i, x in enumerate(a.ins) if x.kind != 'none']
        assert len(addrs) == len(real) + 1, (len(addrs), len(real))
        size = {real[k]: addrs[k+1] - addrs[k] for k in range(len(real))}
        pos = ENTRY_OFF; nxt = 2048
        out = []; k = 0; prev = None; ez = False
        for i, x in enumerate(a.ins):
            if i in size:
                if prev is not None and prev.text.strip() == 's_mov_b64 exec, 0': ez = True
                if prev is not None and prev.text.strip() == 's_mov_b64 exec, -1': ez = False
                if pos >= nxt and k < 16 and not ez:
                    out.append(Ins('stub_%d:' % k)); out.append(Ins('s_cbranch_execz ret_%d' % (k >> 3)))
                    pos += 4; k += 1; nxt += 1024
                pos += size[i]; prev = x
                if x.op == 's_endpgm': self.hot_end = pos
            out.append(x)
        self.code_end = pos
        while k < 16:
            out.append(Ins('stub_%d:' % k)); out.append(Ins('s_branch ret_%d' % (k >> 3))); k += 1
        a.ins = out

if __name__ == '__main__':
    out = sys.argv[1]; opt = {}
    for kv in sys.argv[2:]:
        k, x = kv.split('=')
        opt[k] = {'True': True, 'False': False}.get(x, x.replace('+', ' '))
    g = Gen(**opt)
    s = g.build()
    assert g.a.verify() == 0
    open(out, 'w').write(s)
    print(out, 'vgprs', NVGPR, 'lds', LDS_TOTAL, 'nops', g.a.nops, 'lines', len(g.a.ins), 'hot end 0x%x code end 0x%x' % (getattr(g, 'hot_end', 0), getattr(g, 'code_end', 0)))
```

```python
import sys, struct, math, subprocess, re
from asmlib import Asm, Ins

NAME = 'concat_heads__spectral_gfnet__spectral_gfnet__prompt'
def f2u(x): return struct.unpack('<I', struct.pack('<f', x))[0]
def lit(x): return '0x%08x' % f2u(x)
def sigma(m): return (m & 1) | ((m >> 1) & 1) << 3 | ((m >> 2) & 1) << 1 | ((m >> 3) & 1) << 2 | (m & 16)

SC = 2.0**-22
SPIN_MAX = 0x4000
ENTRY_OFF = 0x300
PW = int([x for x in sys.argv if x.startswith('pw=')][0][3:]) if any(x.startswith('pw=') for x in sys.argv) else 1
R0 = 0
R1 = 33024
WL = 66048
SCR = WL + 8*4*1056
SCR_B = SCR + 36*256
TABL = SCR_B + 8192
CNT = TABL + 16384
LDS_TOTAL = CNT + 64
WS_U = (0, 8 << 20)
WS_FLAG = 16 << 20
WS_PROBE = 17 << 20
WS_TS = 72 << 20
class V: pass
_n = [0]
def alloc(n, align=1):
    b = (_n[0] + align - 1)//align*align
    _n[0] = b + n
    return b
V.tid = alloc(1); V.lane = alloc(1)
for nm in 'g n l16 TR Xoff Est Eld X0w X0r0 X0r1 X1w X1r X2w X2r WP WM zero cnt tmp'.split(): setattr(V, nm, alloc(1))
V.Ooff, V.X3w0, V.X3w1, V.X3r = V.Xoff, V.X0w, V.X0r0, V.X0r1
V.T = alloc(10)
V.O = alloc(16, 4)
V.DA = alloc(32, 4); V.DB = alloc(32, 4); V.L = V.DB
V.F16 = alloc(8, 4); V.M2 = alloc(16, 4)
V.F32 = alloc(32, 4); V.TW = alloc(32, 4); V.W = alloc(32, 4)
V.B = alloc(12, 4); V.Bp = alloc(8, 4); V.WF = alloc(4)
NVGPR = _n[0]
assert NVGPR <= 256, NVGPR
def v(i): return 'v%d' % i
def vr(i, n): return 'v[%d:%d]' % (i, i+n-1)
SX, SWR, SWI, SOUT, SDBG, SWS = 's[4:7]', 's[8:11]', 's[12:15]', 's[16:19]', 's[20:23]', 's[24:27]'
sP, sT, sW, sSB, sCB, sK0, sKP, sKM, sWp, sRv = ['s%d' % i for i in range(30, 40)]
sA, sB, sC, sD, sE, sF, sEst, sEld, sCnt, sSpec, sInc, sWL = ['s%d' % i for i in range(40, 52)]
sO = ['s52', 's53', 's54', 's55']
sTS = 56
sDP, sDM, sZ, sCh, sId = 's96', 's97', 's98', 's99', 's100'

class Gen:
    def __init__(self, **opt):
        self.o = dict(ldx='', ldw='', st1='sc1', st2='sc1', sto='nt', ld1='sc1', ld2='sc1', ts=False,
                      prio=True, nb='6', pnop='15', force='', wpos='postX1', touch=True, w1n='9', spos='mid', qw='1', qg='1', zg='9', xm='2', pb='17', wsoff='0', skip=True, pre=True, split=False, map='2', rep='1', slp='', sthr='')
        self.o.update(opt)
        self.a = Asm(); self.lab = 0; self.nts = 0; self.sid = -1; self.tail = []
    def label(self, p='L'):
        self.lab += 1
        return '%s_%d' % (p, self.lab)

    def mark(self, nm, drain=False):
        o = self.o; hit = False
        if o.get('clk') and nm in ('w1', 'g1a', 'x1', 'x2', 'w3a', 'end'):
            for op in ('s_memrealtime', 's_memtime'):
                self.a('%s s[%d:%d]' % (op, sTS+2*self.nts, sTS+2*self.nts+1)); self.nts += 1
            self.a('s_waitcnt lgkmcnt(0)')
        if o.get('fine') and nm[0] == 'f':
            self.a('s_memtime s[%d:%d]' % (sTS+2*self.nts, sTS+2*self.nts+1)); self.nts += 1; hit = True
        for key, reg in (('da', 58), ('db', 60)):
            if o.get(key) == nm:
                self.a('%s s[%d:%d]' % ('s_memtime' if 'cyc' in o else 's_memrealtime', reg, reg+1)); hit = True
        if hit and drain: self.a('s_waitcnt lgkmcnt(0)')
    def stamp(self):
        self.sid += 1
        self.mark('s%d' % self.sid)
        if not self.o['ts'] or self.o.get('clk') or self.o.get('fine'): return
        self.a('s_memrealtime s[%d:%d]' % (sTS+2*self.nts, sTS+2*self.nts+1)); self.nts += 1
    def diag_end(self):
        a = self.a; o = self.o
        self.mark('end')
        if not (o['ts'] or 'da' in o): return
        self.stamp(); a('s_waitcnt vmcnt(0)'); self.stamp()
        a('s_waitcnt lgkmcnt(0)')
        if 'da' in o:
            lp = self.label('dg')
            if o['da'] == 'glob':
                a('buffer_load_dword %s, %s, %s, 0 offen offset:64 sc1' % (v(V.tmp), v(V.zero), SDBG))
                a('s_waitcnt vmcnt(0)')
                a('v_readfirstlane_b32 s58, %s' % v(V.tmp)); a('s_mov_b32 s56, s58')
            a('s_sub_u32 %s, s60, s58' % sA)
            if 'db0' in o: a('s_add_u32 %s, %s, 250' % (sA, sA)); a('s_lshl_b32 %s, %s, 1' % (sA, sA))
            a('s_lshr_b32 %s, %s, 2' % (sA, sA) if 'cyc' in o else 's_lshl_b32 %s, %s, 2' % (sA, sA))
            for key, reg in (('dp', sP), ('dt', sT), ('db0', sId)):
                if key in o: a('s_cmp_eq_u32 %s, %s' % (reg, o[key])); a('s_cselect_b32 %s, %s, 0' % (sA, sA))
            a('s_min_u32 %s, %s, 9000' % (sA, sA))
            if 'enc' in o:
                a('s_and_b32 %s, s62, 7' % sB); a('s_mul_i32 %s, %s, 10000' % (sB, sB)); a('s_add_u32 %s, %s, %s' % (sA, sA, sB))
                a('s_bfe_u32 %s, s62, 0x30008' % sB); a('s_mul_i32 %s, %s, 100000' % (sB, sB)); a('s_add_u32 %s, %s, %s' % (sA, sA, sB))
            a('s_add_u32 %s, %s, 3000' % (sA, sA))
            a(lp+':')
            a('s_memrealtime s[28:29]'); a('s_waitcnt lgkmcnt(0)')
            a('s_sub_u32 %s, s28, s56' % sB); a('s_cmp_lt_u32 %s, %s' % (sB, sA)); a('s_cbranch_scc1 %s' % lp)
            return
        a('s_lshl_b32 %s, %s, 7' % (sA, sId)); a('s_add_u32 %s, %s, 0x%x' % (sA, sA, WS_TS))
        a('s_mov_b64 exec, 1')
        for i in range(14):
            a('v_mov_b32 %s, s%d' % (v(V.T), sTS+2*i))
            a('buffer_store_dword %s, %s, %s, %s offen offset:%d' % (v(V.T), v(V.zero), SWS, sA, 4*i))
            a('s_nop 1')

    def cond(self, reg, val, f):
        a = self.a; l = self.label('c')
        a('s_cmp_lg_u32 %s, %d' % (reg, val)); a('s_cbranch_scc1 %s' % l)
        f(); a(l+':')
    def ifelse(self, reg, val, feq, fne, eq_first=False):
        a = self.a; l0, l1 = self.label('ie'), self.label('iend')
        if eq_first:
            a('s_cmp_lg_u32 %s, %d' % (reg, val)); a('s_cbranch_scc1 %s' % l0)
            feq(); a('s_branch %s' % l1); a(l0+':'); fne()
        else:
            a('s_cmp_eq_u32 %s, %d' % (reg, val)); a('s_cbranch_scc1 %s' % l0)
            fne(); a('s_branch %s' % l1); a(l0+':'); feq()
        a(l1+':')
    def far(self, reg, val, feq, fne=None):
        a = self.a; l0, l1 = self.label('far'), self.label('back')
        a('s_cmp_eq_u32 %s, %d' % (reg, val)); a('s_cbranch_scc1 %s' % l0)
        if fne: fne()
        a(l1+':')
        def t():
            a(l0+':'); feq(); a('s_branch %s' % l1)
        self.tail.append(t)
    def touch(self, rnd, half=False):
        a = self.a
        a('s_mov_b64 exec, 0')
        if half:
            for k in range(3):
                a('s_cmp_eq_u32 %s, %d' % (sW, 4+k)); a('s_cbranch_scc1 stub_%d' % (2*k))
            a('s_branch stub_6')
        else:
            for k in range(7):
                a('s_cmp_eq_u32 %s, %d' % (sW, k)); a('s_cbranch_scc1 stub_%d' % (8*rnd+k))
            a('s_branch stub_%d' % (8*rnd+7))
        a('ret_%d:' % rnd)
        a('s_mov_b64 exec, -1')

    def prologue(self, end):
        a = self.a; T = V.T
        a('s_cmp_ge_u32 s2, 0x100')
        a('s_cbranch_scc1 %s' % end)
        if 'da' in self.o: a('s_memrealtime s[56:57]'); self.mark('start')
        a('s_bfe_u32 %s, s2, 0x10002' % sP)
        a('s_mul_i32 s3, %s, 24' % sP)
        a('s_load_dwordx2 s[4:5], s[0:1], s3')
        a('s_load_dwordx2 s[24:25], s[0:1], 0x40')
        a('s_load_dwordx2 s[20:21], s[0:1], 0x38')
        a('s_load_dwordx2 s[8:9], s[0:1], s3 offset:8')
        a('s_load_dwordx2 s[12:13], s[0:1], s3 offset:16')
        a('s_load_dwordx2 s[16:17], s[0:1], 0x30')
        self.stamp()
        a('v_lshrrev_b32 %s, 6, v0' % v(T))
        a('v_and_b32 %s, 63, v0' % v(V.lane))
        a('v_readfirstlane_b32 %s, %s' % (sW, v(T)))
        mp = self.o['map']
        a('s_and_b32 %s, s2, 3' % sA)
        if int(self.o['xm']): a('s_xor_b32 %s, %s, %s' % (sA, sA, self.o['xm']))
        if mp in ('0', '1'):
            a('s_bfe_u32 %s, s2, 0x10003' % sB)
            if mp == '0': a('s_lshl1_add_u32 %s, %s, %s' % (sA, sA, sB))
            else: a('s_lshl2_add_u32 %s, %s, %s' % (sA, sB, sA))
            a('s_lshr_b32 %s, s2, 4' % sB)
            a('s_lshl4_add_u32 %s, %s, %s' % (sT, sA, sB))
        else:
            a('s_lshr_b32 %s, s2, 3' % sB)
            a('s_lshl2_add_u32 %s, %s, %s' % (sT, sB, sA))
            a('s_lshr_b32 %s, %s, 4' % (sA, sT)); a('s_and_b32 %s, %s, 15' % (sB, sT))
        a('s_bfe_u32 %s, %s, 0x10001' % (sC, sB))
        a('s_lshl1_add_u32 %s, %s, %s' % (sCB, sA, sC))
        a('s_lshr_b32 %s, %s, 2' % (sSB, sB))
        a('s_and_b32 %s, %s, 1' % (sC, sB))
        a('s_lshl1_add_u32 %s, %s, %s' % (sSB, sSB, sC))
        a('s_mov_b32 s6, 0x400000'); a('s_mov_b32 s7, 0x20000')
        a('v_lshrrev_b32 %s, 4, %s' % (v(V.g), v(V.lane)))
        a('v_lshlrev_b32 %s, 4, %s' % (v(V.l16), v(V.lane)))
        a('v_and_b32 %s, 8, v0' % v(T))
        a('v_lshlrev_b32 %s, 11, %s' % (v(T), v(T)))
        a('v_lshl_add_u32 %s, %s, 20, %s' % (v(T), v(V.g), v(T)))
        a('v_and_b32 %s, 0x70, %s' % (v(T+1), v(V.l16)))
        a('v_add_u32 %s, %s, %s' % (v(V.Xoff), v(T), v(T+1)))
        a('s_lshl4_add_u32 %s, %s, %s' % (sA, sW, sSB))
        a('s_lshl4_add_u32 %s, %s, %s' % (sA, sA, sCB))
        a('s_lshl_b32 %s, %s, 7' % (sO[0], sA))
        for r in range(1, 4): a('s_add_u32 %s, %s, 0x%x' % (sO[r], sO[0], r*262144))
        a('s_lshl3_add_u32 %s, s2, %s' % (sId, sW))
        a('s_xor_b32 %s, %s, %d' % (sCh, sId, 8*int(self.o['qg'])+int(self.o['qw']))); a('s_and_b32 %s, %s, 0xffffff7f' % (sCh, sCh))
        a('s_xor_b32 %s, s2, %s' % (sZ, self.o['zg'])); a('s_and_b32 %s, %s, 0xffffffef' % (sZ, sZ))
    def srds(self):
        a = self.a
        a('s_mov_b32 s10, 2101248'); a('s_mov_b32 s11, 0x20000')
        a('s_mov_b32 s14, 2101248'); a('s_mov_b32 s15, 0x20000')
        a('s_mov_b32 s18, 0x800000'); a('s_mov_b32 s19, 0x20000')
    def srds0(self):
        a = self.a
        a('s_mov_b32 s22, 256'); a('s_mov_b32 s23, 0x20000')
        a('s_mov_b32 s26, 0x%x' % ((80 if self.o['ts'] else 18) << 20)); a('s_mov_b32 s27, 0x20000')
        a('v_and_b32 %s, 15, %s' % (v(V.n), v(V.lane)))
        a('v_mov_b32 %s, 0' % v(V.zero)); a('v_mov_b32 %s, %d' % (v(V.cnt), CNT))

    def probe_issue(self):
        a = self.a; NB = int(self.o['nb'])
        def f():
            a('s_lshl_b32 %s, s2, 9' % sA); a('s_and_b32 %s, %s, 0x2000' % (sA, sA))
            a('s_mul_i32 %s, %s, 9' % (sA, sA)); a('s_add_u32 %s, %s, 0x%x' % (sA, sA, int(self.o['pb']) << 20))
            a('s_xor_b32 %s, %s, 0x2000' % (sB, sA))
            for side, base in enumerate((sA, sB)):
                for k in range(NB):
                    a('s_load_dword s%d, s[24:25], %s offset:0x%x glc' % (62+side*NB+k, base, (k & 1)*0x1000 + (k >> 1)*0x4000 + k*0x100))
        def g():
            a('s_lshr_b32 %s, %s, 3' % (sA, sCh)); a('s_cmp_eq_u32 %s, 0' % sA); a('s_cselect_b32 %s, 9, %s' % (sA, sW))
            if self.o['pre']: self.cond(sA, PW, lambda: a('s_load_dword s95, s[20:21], 0x80'))
        self.ifelse(sCh, 0, f, g)
    def probe_eval(self):
        a = self.a; NB = int(self.o['nb'])
        def f():
            a('s_lshr_b32 %s, s2, 1' % sB); a('s_and_b32 %s, %s, 8' % (sB, sB))
            a('s_waitcnt lgkmcnt(%d)' % NB)
            a('s_nop %s' % self.o['pnop'])
            a('s_getreg_b32 %s, hwreg(HW_REG_IB_STS, 8, 4)' % sA)
            a('s_or_b32 %s, %s, 16' % (sA, sA)); a('s_lshl_b32 s94, %s, %s' % (sA, sB))
            a('s_atomic_or s94, s[20:21], 0x80')
        self.cond(sCh, 0, f)
    def clear_issue(self):
        a = self.a
        def f():
            a('s_lshr_b32 %s, s2, 4' % sA)
            a('s_lshl1_add_u32 %s, %s, %s' % (sA, sW, sA))
            a('s_lshl_b32 %s, %s, 13' % (sA, sA)); a('s_add_u32 %s, %s, 0x%x' % (sA, sA, WS_FLAG))
            for i in range(0, 8, 2): a('s_mov_b64 s[%d:%d], 0' % (84+i, 85+i))
            R = int(self.o['rep'])
            for i in range(8):
                for r in range(R-1): a('s_atomic_and s84, s[24:25], %s offset:0x%x' % (sA, (i << 10) + 256*(r+1)))
            for i in range(8): a('s_atomic_swap s%d, s[24:25], %s offset:0x%x glc' % (84+i, sA, i << 10))
        self.cond(sZ, 0, f)
    def clear_done(self):
        a = self.a
        def f():
            a('s_mov_b32 s94, 1'); a('s_waitcnt lgkmcnt(0)')
            a('s_atomic_add s94, s[20:21], 0x0')
        self.cond(sZ, 0, f)
    def side_load(self):
        self.a('buffer_load_dword %s, %s, %s, 0 offen offset:128 sc1' % (v(V.tmp), v(V.zero), SDBG))
    def side_wait(self):
        a = self.a
        def f():
            lp, ok = self.label('sw'), self.label('swok')
            a('s_mov_b32 %s, 0' % sCnt)
            a(lp+':')
            a('s_waitcnt vmcnt(0)')
            a('v_and_b32 %s, 0x1010, %s' % (v(V.T), v(V.tmp)))
            a('v_cmp_eq_u32 vcc, 0x1010, %s' % v(V.T))
            a('s_cbranch_vccnz %s' % ok)
            self.side_load()
            a('s_add_u32 %s, %s, 1' % (sCnt, sCnt))
            a('s_cmp_lt_u32 %s, 0x%x' % (sCnt, SPIN_MAX))
            a('s_cbranch_scc1 %s' % lp)
            a('s_waitcnt vmcnt(0)')
            a(ok+':')
            a('ds_write2_b32 %s, %s, %s offset0:0 offset1:1' % (v(V.cnt), v(V.tmp), v(V.zero)))
        self.cond(sW, PW, f)
    def side_use(self):
        a = self.a
        a('v_readfirstlane_b32 %s, %s' % (sA, v(V.tmp)))
        if self.o['ts']: a('s_mov_b32 s%d, %s' % (sTS+24, sA))
        if 'enc' in self.o: a('s_mov_b32 s62, %s' % sA)
        a('s_and_b32 %s, %s, 15' % (sB, sA)); a('s_bfe_u32 %s, %s, 0x40008' % (sA, sA))
        a('s_cmp_gt_u32 %s, %s' % (sA, sB))
        a('s_cselect_b32 %s, 0x2000, 0' % sCh)
        if self.o['force'] != '': a('s_mov_b32 %s, %d' % (sCh, int(self.o['force']) << 13))
        a('s_xor_b32 %s, %s, %s' % (sEst, sEst, sCh))
    def flag_addrs(self):
        a = self.a
        a('s_lshr_b32 %s, %s, 4' % (sB, sT))
        a('s_lshl_b32 %s, %s, 13' % (sA, sP)); a('s_add_u32 %s, %s, 0x%x' % (sA, sA, WS_FLAG))
        for dst, wp, gr in ((sF, sW, sB), (sE, sB, sW)):
            a('s_lshl4_add_u32 %s, %s, %s' % (sC, wp, gr)); a('s_lshl_b32 %s, %s, 10' % (sC, sC))
            a('s_add_u32 %s, %s, %s' % (dst, sC, sA))
        R = int(self.o['rep'])
        if R > 1:
            a('s_and_b32 %s, %s, %d' % (sC, sT, R-1)); a('s_lshl_b32 %s, %s, 8' % (sC, sC)); a('s_add_u32 %s, %s, %s' % (sE, sE, sC))
    def side_apply(self):
        for r in (sF, sE, sEld): self.a('s_xor_b32 %s, %s, %s' % (r, r, sCh))
    def ready_check(self):
        a = self.a; l0, l1 = self.label('rdy'), self.label('rdyok')
        a('s_cmp_ge_u32 %s, 16' % sRv)
        a('s_cbranch_scc1 %s' % l1)
        a('s_mov_b32 %s, 0' % sCnt)
        a(l0+':')
        a('buffer_load_dword %s, %s, %s, 0 offen sc1' % (v(V.tmp), v(V.zero), SDBG))
        a('s_add_u32 %s, %s, 1' % (sCnt, sCnt))
        a('s_cmp_gt_u32 %s, 0x%x' % (sCnt, SPIN_MAX))
        a('s_waitcnt vmcnt(0)')
        a('s_cbranch_scc1 %s' % l1)
        a('v_cmp_gt_u32 vcc, 16, %s' % v(V.tmp))
        a('s_cbranch_vccnz %s' % l0)
        a(l1+':')
    def arrive(self):
        for r in range(int(self.o['rep'])): self.a('s_atomic_add %s, s[24:25], %s offset:%d' % (sInc, sF, 256*r))
    def poll(self, ex, under=None):
        a = self.a; lp, ok = self.label('poll'), self.label('pollok')
        if under:
            a('s_mov_b32 %s, 0' % sRv)
            a('s_atomic_add %s, s[24:25], %s glc' % (sRv, sE))
            under()
            a('s_waitcnt lgkmcnt(0)')
            a('s_bitcmp1_b32 %s, %d' % (sRv, 4+16*ex))
            a('s_cbranch_scc1 %s' % ok)
        a('s_mov_b32 %s, 0' % sCnt)
        a(lp+':')
        a('s_mov_b32 %s, 0' % sRv)
        a('s_atomic_add %s, s[24:25], %s glc' % (sRv, sE))
        a('s_add_u32 %s, %s, 1' % (sCnt, sCnt))
        a('s_cmp_gt_u32 %s, 0x%x' % (sCnt, SPIN_MAX))
        a('s_waitcnt lgkmcnt(0)')
        a('s_cbranch_scc1 %s' % ok)
        if self.o['slp']:
            a('s_bitcmp1_b32 %s, %d' % (sRv, 4+16*ex))
            a('s_cbranch_scc1 %s' % ok)
            if self.o['sthr']:
                a('s_bfe_u32 %s, %s, 0x%x' % (sA, sRv, 0x50000+16*ex))
                a('s_cmp_ge_u32 %s, %s' % (sA, self.o['sthr'])); a('s_cbranch_scc1 %s' % lp)
            a('s_sleep %s' % self.o['slp'])
            a('s_branch %s' % lp)
        else:
            a('s_bitcmp0_b32 %s, %d' % (sRv, 4+16*ex))
            a('s_cbranch_scc1 %s' % lp)
        a(ok+':')
    def ex_addrs(self):
        a = self.a; T = V.T
        a('s_lshl_b32 %s, %s, 4' % (sB, sW)); a('s_xor_b32 %s, %s, %s' % (sB, sB, sT)); a('s_lshl_b32 %s, %s, 8' % (sB, sB))
        a('v_lshlrev_b32 %s, 4, %s' % (v(T), v(V.n)))
        a('v_lshl_add_u32 %s, %s, 10, %s' % (v(T), v(V.g), v(T)))
        a('v_xor_b32 %s, %s, %s' % (v(T), sB, v(T)))
        a('v_and_b32 %s, 0x6000, %s' % (v(T+1), v(T)))
        a('v_add_u32 %s, %s, %s' % (v(T), v(T), v(T+1)))
        a('v_lshl_add_u32 %s, %s, 18, %s' % (v(V.Est), v(V.g), v(T)))
        a('v_and_b32 %s, 0xdcff, %s' % (v(V.Eld), v(T)))
        a('s_bfe_u32 %s, %s, 0x10001' % (sA, sW)); a('s_xor_b32 %s, %s, %s' % (sA, sA, sP))
        a('s_bfe_u32 %s, %s, 0x10005' % (sC, sT)); a('s_xor_b32 %s, %s, %s' % (sC, sC, sP))
        a('s_lshl_b32 %s, %s, 7' % (sEst, sW)); a('s_add_u32 %s, %s, %s' % (sEst, sEst, sA)); a('s_lshl_b32 %s, %s, 13' % (sEst, sEst))
        a('s_lshl3_add_u32 %s, %s, %s' % (sEld, sT, sC)); a('s_lshl_b32 %s, %s, 13' % (sEld, sEld))

    def trig(self, x, re, im, conj_re=None, conj_im=None):
        a = self.a; c, s = V.T+8, V.T+9
        a('v_cos_f32 %s, %s' % (v(c), v(x)))
        a('v_sin_f32 %s, %s' % (v(s), v(x)))
        if getattr(self, 'fill', None): self.fill(); self.fill = None
        a('v_cvt_pk_bf16_f32 %s, %s, %s' % (v(re), v(c), v(s)))
        a('v_cvt_pk_bf16_f32 %s, -%s, %s' % (v(im), v(s), v(c)))
        if conj_re is not None:
            a('v_xor_b32 %s, 0x80000000, %s' % (v(conj_re), v(re)))
            a('v_xor_b32 %s, 0x8000, %s' % (v(conj_im), v(im)))
    def ladder(self, x, step, regs):
        a = self.a
        for k, r in enumerate(regs):
            if k < len(regs)-1: self.fill = lambda: a('v_add_f32 %s, %s, %s' % (v(x), v(x), v(step)))
            self.trig(x, *r)
    def gen_F16(self):
        a = self.a; T = V.T
        a('v_cvt_f32_u32 %s, %s' % (v(T), v(V.n)))
        a('v_cvt_f32_u32 %s, %s' % (v(T+1), v(V.g)))
        a('v_mul_f32 %s, %s, %s' % (v(T), lit(1/16), v(T)))
        a('v_mul_f32 %s, 4.0, %s' % (v(T+1), v(T+1)))
        a('v_mul_f32 %s, %s, %s' % (v(T+2), v(T), v(T+1)))
        self.ladder(T+2, T, [(V.F16+r, V.F16+4+r) for r in range(4)])
    def gen_M2(self):
        a = self.a; T = V.T
        def normal():
            a('v_cvt_f32_u32 %s, %s' % (v(T+2), sW))
            a('v_fmac_f32 %s, %s, %s' % (v(T), lit(1/256), v(T+2)))
            a('v_mul_f32 %s, %s, %s' % (v(T+2), v(T), v(T+1)))
            self.ladder(T+2, T, [(V.M2+r, V.M2+4+r, V.M2+8+r, V.M2+12+r) for r in range(4)])
        def w0():
            a('v_lshrrev_b32 %s, 1, %s' % (v(T), v(V.n)))
            a('v_cvt_f32_u32 %s, %s' % (v(T), v(T)))
            a('v_lshlrev_b32 %s, 31, %s' % (v(T+3), v(V.n)))
            a('v_add_f32 %s, 0.5, %s' % (v(T+4), v(T)))
            a('v_xor_b32 %s, %s, %s' % (v(T+3), lit(1/16), v(T+3)))
            a('v_cmp_ne_u32 vcc, 1, %s' % v(V.n))
            a('v_mul_f32 %s, %s, %s' % (v(T), v(T), v(T+3)))
            a('v_mul_f32 %s, %s, %s' % (v(T+4), v(T+4), v(T+3)))
            a('v_cndmask_b32 %s, 0.5, %s, vcc' % (v(T), v(T)))
            for ts in range(2):
                d = T+4*ts
                a('v_mul_f32 %s, %s, %s' % (v(T+2), v(d), v(T+1)))
                self.ladder(T+2, d, [(V.M2+8*ts+r, V.M2+8*ts+4+r) for r in range(4)])
        self.ifelse(sW, 0, w0, normal)
    def gen_M3(self):
        a = self.a; T = V.T
        a('v_cvt_f32_u32 %s, %s' % (v(T), v(V.n)))
        a('v_mul_f32 %s, %s, %s' % (v(T+1), lit(1/256), v(T)))
        a('v_mul_f32 %s, %s, %s' % (v(T), lit(1/16), v(T)))
        def normal():
            a('v_lshl_add_u32 %s, %s, 6, %s' % (v(T+2), v(V.g), sW))
            a('v_cvt_f32_u32 %s, %s' % (v(T+2), v(T+2)))
            a('v_mul_f32 %s, %s, %s' % (v(T+2), v(T+2), v(T+1)))
            self.ladder(T+2, T, [(V.M2+r, V.M2+4+r, V.M2+8+r, V.M2+12+r) for r in range(4)])
        def w0():
            a('v_lshlrev_b32 %s, 5, %s' % (v(T+2), v(V.g)))
            a('v_cvt_f32_u32 %s, %s' % (v(T+2), v(T+2)))
            a('v_mul_f32 %s, 0.5, %s' % (v(T), v(T)))
            a('v_mul_f32 %s, %s, %s' % (v(T+2), v(T+2), v(T+1)))
            regs = []
            for k in range(4):
                b = V.M2+8*(k & 1)+2*(k >> 1)
                regs.append((b, b+4, b+1, b+5))
            self.ladder(T+2, T, regs)
            a('s_mov_b64 exec, 0xffff')
            a('v_lshlrev_b32 %s, 15, %s' % (v(T+2), v(V.n)))
            a('v_and_b32 %s, 0x8000, %s' % (v(T+2), v(T+2)))
            a('v_or_b32 %s, 0x3f80, %s' % (v(V.M2+1), v(T+2)))
            a('v_lshlrev_b32 %s, 16, %s' % (v(V.M2+5), v(V.M2+1)))
            a('s_mov_b64 exec, -1')
        self.ifelse(sW, 0, w0, normal)
    def sigma_lane(self, dst):
        a = self.a; t = V.T+7
        a('v_and_b32 %s, 17, %s' % (v(dst), v(V.lane)))
        a('v_bfe_u32 %s, %s, 2, 2' % (v(t), v(V.lane)))
        a('v_lshl_add_u32 %s, %s, 1, %s' % (v(dst), v(t), v(dst)))
        a('v_and_b32 %s, 2, %s' % (v(t), v(V.lane)))
        a('v_lshl_add_u32 %s, %s, 2, %s' % (v(dst), v(t), v(dst)))
    def coop_gen(self):
        a = self.a; T = V.T; X = V.DA
        self.sigma_lane(T)
        a('v_lshrrev_b32 %s, 5, %s' % (v(T+1), v(V.lane)))
        a('v_lshlrev_b32 %s, 7, %s' % (v(T+2), v(T+1)))
        a('v_lshl_add_u32 %s, %s, 1, %s' % (v(T+2), v(T), v(T+2)))
        a('s_and_b32 %s, %s, 2' % (sD, sKP)); a('s_sub_u32 %s, %s, %s' % (sD, sWL, sD))
        a('v_add_u32 %s, %s, %s' % (v(V.WP), sD, v(T+2)))
        a('s_add_u32 %s, %s, %d' % (sD, sD, 1024-832))
        a('v_sub_u32 %s, %s, %s' % (v(V.WM), sD, v(T+2)))
        a('v_cvt_f32_u32 %s, %s' % (v(T), v(T)))
        a('s_mul_i32 %s, %s, 4' % (sA, sW)); a('s_lshr_b32 %s, 0x75643120, %s' % (sA, sA)); a('s_and_b32 %s, %s, 7' % (sA, sA)); a('s_lshl_b32 %s, %s, 2' % (sA, sA))
        a('v_lshl_add_u32 %s, %s, 1, %s' % (v(T+1), v(T+1), sA))
        a('v_mul_f32 %s, %s, %s' % (v(T), lit(1/2048), v(T)))
        a('v_cvt_f32_u32 %s, %s' % (v(T+1), v(T+1)))
        a('v_mul_f32 %s, %s, %s' % (v(T+2), v(T+1), v(T)))
        for e in range(2):
            a('v_cos_f32 %s, %s' % (v(T+5), v(T+2)))
            a('v_sin_f32 %s, %s' % (v(T+6), v(T+2)))
            a('v_rcp_f32 %s, %s' % (v(T+5), v(T+5)))
            a('v_mul_f32 %s, %s, %s' % (v(T+3), lit(64.0), v(T+2)))
            a('v_mul_f32 %s, %s, %s' % (v(X+4+e), v(T+6), v(T+5)))
            a('v_fma_f32 %s, %s, %s, 1.0' % (v(T+5), v(X+4+e), v(X+4+e)))
            a('v_rcp_f32 %s, %s' % (v(T+6), v(T+5)))
            a('v_mul_f32 %s, -2.0, %s' % (v(T+4), v(X+4+e)))
            a('v_fma_f32 %s, -%s, %s, 1.0' % (v(T+5), v(T+5), v(T+6)))
            a('v_fmac_f32 %s, %s, %s' % (v(T+6), v(T+5), v(T+6)))
            a('v_mul_f32 %s, %s, %s' % (v(X+6+e), v(T+6), v(T+4)))
            if e == 0: self.fill = lambda: a('v_add_f32 %s, %s, %s' % (v(T+2), v(T+2), v(T)))
            self.trig(T+3, X+e, X+2+e)
        a('s_lshr_b32 %s, %s, 1' % (sA, sW)); a('s_lshl_b32 %s, %s, 7' % (sA, sA))
        a('s_and_b32 %s, %s, 1' % (sB, sW)); a('s_add_u32 %s, %s, %s' % (sA, sA, sB))
        a('s_lshl3_add_u32 %s, %s, %d' % (sA, sA, TABL))
        a('v_add_u32 %s, %s, %s' % (v(T), sA, v(V.l16)))
        for k in range(4): a('ds_write_b64 %s, %s offset:%d' % (v(T), vr(X+2*k, 2), 4096*k))
    def coop_post(self):
        a = self.a
        a('v_mov_b32 %s, 1' % v(V.T+1))
        a('ds_add_u32 %s, %s offset:4' % (v(V.cnt), v(V.T+1)))
    def coop_wait(self):
        a = self.a; T = V.T; lp, ok = self.label('cw'), self.label('cwok')
        a('s_mov_b32 %s, 0' % sCnt)
        a(lp+':')
        a('ds_read_b32 %s, %s offset:4' % (v(T), v(V.cnt)))
        a('s_add_u32 %s, %s, 1' % (sCnt, sCnt))
        a('s_cmp_gt_u32 %s, 0x%x' % (sCnt, SPIN_MAX*8))
        a('s_waitcnt lgkmcnt(0)')
        a('s_cbranch_scc1 %s' % ok)
        a('v_cmp_gt_u32 vcc, 0x200, %s' % v(T))
        a('s_cbranch_vccnz %s' % lp)
        a(ok+':')
    def coop_read(self):
        a = self.a; T = V.T
        a('v_add_u32 %s, %d, %s' % (v(T), TABL, v(V.l16)))
        for k in range(16): a('ds_read_b128 %s, %s offset:%d' % (vr(V.F32+4*k, 4), v(T), 1024*k))
    def calc_k0(self):
        a = self.a
        a('s_lshr_b32 %s, %s, 4' % (sA, sT)); a('s_and_b32 %s, %s, 15' % (sB, sT))
        a('s_lshl4_add_u32 %s, %s, %s' % (sK0, sB, sA))
        a('s_and_b32 %s, %s, 12' % (sC, sB)); a('s_bfe_u32 %s, %s, 0x10001' % (sD, sB)); a('s_add_u32 %s, %s, %s' % (sC, sC, sD))
        a('s_and_b32 %s, %s, 1' % (sD, sB)); a('s_lshl1_add_u32 %s, %s, %s' % (sC, sD, sC)); a('s_lshl_b32 %s, %s, 3' % (sC, sC))
        a('s_cmp_eq_u32 %s, 0' % sA); a('s_cselect_b32 %s, %s, %s' % (sK0, sC, sK0))
        a('s_cmp_eq_u32 %s, 0' % sT); a('s_cselect_b32 %s, 7, 8' % sA)
        a('s_lshl_b32 %s, %s, %s' % (sKP, sW, sA)); a('s_add_u32 %s, %s, %s' % (sKP, sKP, sK0))
        a('s_sub_u32 %s, 0x800, %s' % (sKM, sKP))
        a('s_cmp_eq_u32 %s, 0' % sKP)
        a('s_cselect_b32 %s, 0x400, %s' % (sKM, sKM)); a('s_cselect_b32 %s, 1, 0' % sSpec)
        a('s_mul_i32 %s, %s, 1026' % (sKP, sKP)); a('s_mul_i32 %s, %s, 1026' % (sKM, sKM))
        a('s_mul_i32 %s, %s, 4224' % (sWL, sW)); a('s_add_u32 %s, %s, %d' % (sWL, sWL, WL))
        a('s_and_b32 %s, %s, 2' % (sA, sKP))
        a('s_add_u32 %s, %s, %s' % (sDP, sKP, sA)); a('s_add_u32 %s, %s, %s' % (sDM, sKM, sA))
    def gen_B(self):
        a = self.a; T = V.T; c, s = T+8, T+9
        a('v_lshrrev_b32 %s, 1, %s' % (v(T), v(V.n)))
        a('v_cvt_f32_u32 %s, %s' % (v(T+2), v(V.g)))
        a('v_and_b32 %s, 1, %s' % (v(T+3), v(V.n)))
        a('v_add_f32 %s, %s, %s' % (v(T+2), v(T+2), v(T+2)))
        def normal():
            a('v_lshl_add_u32 %s, %s, 8, %s' % (v(T+1), v(T), sK0))
            a('v_lshlrev_b32 %s, 4, %s' % (v(T+4), v(T+3)))
            a('v_cvt_f32_u32 %s, %s' % (v(T+1), v(T+1)))
            a('v_lshlrev_b32 %s, 31, %s' % (v(T+6), v(V.n)))
            a('v_cvt_f32_u32 %s, %s' % (v(T+3), v(T+3)))
            a('v_mul_f32 %s, %s, %s' % (v(T+1), lit(1/2048), v(T+1)))
            a('s_brev_b32 %s, 1' % sA)
            a('v_lshrrev_b32 %s, %s, %s' % (v(T+4), v(T+4), sA))
            a('v_mul_f32 %s, %s, %s' % (v(T+5), v(T+1), v(T+2)))
            a('v_fmac_f32 %s, %s, %s' % (v(T+5), lit(0.25), v(T+3)))
            for sbb in range(2):
                if sbb == 0: self.fill = lambda: a('v_add_f32 %s, %s, %s' % (v(T+5), v(T+5), v(T+1)))
                else: self.fill = lambda: a('v_cvt_f32_u32 %s, %s' % (v(T), v(T)))
                self.trig(T+5, V.B+2*sbb, V.B+6+2*sbb)
                a('v_xor_b32 %s, %s, %s' % (v(V.B+2*sbb+1), v(V.B+2*sbb), v(T+4)))
                a('v_xor_b32 %s, %s, %s' % (v(V.B+6+2*sbb+1), v(V.B+6+2*sbb), v(T+4)))
            a('v_lshl_add_u32 %s, %s, 9, %s' % (v(T+1), v(V.g), sK0))
            a('v_xor_b32 %s, %s, %s' % (v(T), v(T), v(T+6)))
            a('v_cvt_f32_u32 %s, %s' % (v(T+1), v(T+1)))
            a('v_mul_f32 %s, 0.5, %s' % (v(T+5), v(T+3)))
            a('v_mul_f32 %s, %s, %s' % (v(T+1), lit(1/2048), v(T+1)))
            a('v_fmac_f32 %s, %s, %s' % (v(T+5), v(T+1), v(T)))
            for ii in range(2):
                a('v_cos_f32 %s, %s' % (v(c), v(T+5)))
                a('v_sin_f32 %s, %s' % (v(s), v(T+5)))
                a('v_mul_f32 %s, %s, %s' % (v(c), lit(SC), v(c)))
                a('v_mul_f32 %s, %s, %s' % (v(s), lit(SC), v(s)))
                if ii == 0: a('v_fmac_f32 %s, %s, %s' % (v(T+5), lit(0.125), v(T)))
                a('v_cvt_pk_bf16_f32 %s, %s, %s' % (v(T+1), v(c), v(s)))
                a('v_cvt_pk_bf16_f32 %s, -%s, %s' % (v(T+2), v(s), v(c)))
                a('v_xor_b32 %s, %s, %s' % (v(V.Bp+2*ii), v(T+1), v(T+6)))
                a('v_xor_b32 %s, %s, %s' % (v(V.Bp+4+2*ii), v(T+2), v(T+6)))
                a('v_xor_b32 %s, %s, %s' % (v(V.Bp+2*ii+1), v(T+2), v(T+6)))
                a('v_xor_b32 %s, 0x80008000, %s' % (v(V.Bp+4+2*ii+1), v(V.Bp+2*ii)))
        def special():
            a('v_cvt_f32_u32 %s, %s' % (v(T+1), v(T)))
            a('v_mul_f32 %s, %s, %s' % (v(T+1), lit(1/16), v(T+1)))
            a('v_lshlrev_b32 %s, 4, %s' % (v(T+4), v(T+3)))
            a('v_cmp_eq_u32 s[84:85], 0, %s' % v(T))
            a('v_and_b32 %s, 1, %s' % (v(T+6), v(T)))
            a('v_cmp_eq_u32 s[86:87], 1, %s' % v(T+6))
            a('v_mul_f32 %s, %s, %s' % (v(T+5), v(T+1), v(T+2)))
            for sbb in range(2):
                a('v_cos_f32 %s, %s' % (v(c), v(T+5)))
                a('v_sin_f32 %s, %s' % (v(s), v(T+5)))
                a('v_mul_f32 %s, 2.0, %s' % (v(c), v(c)))
                a('v_mul_f32 %s, -2.0, %s' % (v(s), v(s)))
                a('v_cndmask_b32 %s, %s, 1.0, s[84:85]' % (v(c), v(c)))
                a('v_cndmask_b32 %s, %s, %s, s[84:85]' % (v(s), v(s), '-1.0' if sbb else '1.0'))
                for src, dst in ((c, V.B+2*sbb), (s, V.B+6+2*sbb)):
                    a('v_cvt_pk_bf16_f32 %s, %s, 0' % (v(T+7), v(src)))
                    a('v_lshlrev_b32 %s, %s, %s' % (v(T+7), v(T+4), v(T+7)))
                    a('v_cndmask_b32 %s, %s, 0, s[86:87]' % (v(dst), v(T+7)))
                    a('v_cndmask_b32 %s, 0, %s, s[86:87]' % (v(dst+1), v(T+7)))
                a('v_add_f32 %s, %s, %s' % (v(T+5), v(T+5), v(T+1)))
            a('v_cmp_eq_u32 s[88:89], 0, %s' % v(V.g))
            a('v_cmp_eq_u32 s[90:91], 1, %s' % v(T+3))
            a('v_lshlrev_b32 %s, 31, %s' % (v(T+6), v(T)))
            a('v_xor_b32 %s, %s, %s' % (v(T+6), lit(SC), v(T+6)))
            a('v_mov_b32 %s, %s' % (v(T+4), lit(SC)))
            a('v_mul_f32 %s, %s, %s' % (v(T+5), v(T+1), v(T+2)))
            for ii in range(2):
                a('v_cos_f32 %s, %s' % (v(c), v(T+5)))
                a('v_sin_f32 %s, %s' % (v(s), v(T+5)))
                a('v_mul_f32 %s, %s, %s' % (v(c), lit(2*SC), v(c)))
                a('v_mul_f32 %s, %s, %s' % (v(s), lit(-2*SC), v(s)))
                if ii == 0:
                    a('v_cndmask_b32 %s, %s, %s, s[88:89]' % (v(c), v(c), v(T+4)))
                    a('v_cndmask_b32 %s, %s, %s, s[88:89]' % (v(s), v(s), v(T+6)))
                a('v_cvt_pk_bf16_f32 %s, %s, %s' % (v(T+7), v(s), v(c)))
                if ii: a('v_cndmask_b32 %s, 0, %s, s[90:91]' % (v(T+7), v(T+7)))
                else: a('v_cndmask_b32 %s, %s, 0, s[90:91]' % (v(T+7), v(T+7)))
                a('v_mov_b32 %s, 0' % v(V.Bp+2*ii)); a('v_mov_b32 %s, %s' % (v(V.Bp+2*ii+1), v(T+7)))
                a('v_mov_b32 %s, %s' % (v(V.Bp+4+2*ii), v(T+7))); a('v_mov_b32 %s, 0' % v(V.Bp+4+2*ii+1))
                a('v_add_f32 %s, %s, %s' % (v(T+5), v(T+5), v(T+1)))
        self.far(sT, 0, special, normal)
        for d, r in ((4, 0), (5, 1), (10, 6), (11, 7)): a('v_mov_b32 %s, %s' % (v(V.B+d), v(V.B+r)))

    def wq(self, rho): return (rho & 1) + 8*((rho >> 1) & 1) + 4*((rho >> 2) & 1)
    def w_dma1(self, i):
        a = self.a
        srd, so = [(SWR, sDP), (SWI, sDP), (SWR, sDM), (SWI, sDM)][i]
        a('s_add_u32 m0, %s, %d' % (sWL, 1056*i))
        a('buffer_load_dwordx4 %s, %s, %s offen %s lds' % (v(V.l16), srd, so, self.o['ldw']))
    def w_dma(self):
        for i in range(4): self.w_dma1(i)
    def w_edge_load(self):
        a = self.a; T = V.T
        a('s_mov_b64 exec, 15')
        a('v_mov_b32 %s, %s' % (v(T), sKP)); a('v_mov_b32 %s, %s' % (v(T+1), sKM))
        a('s_mov_b64 vcc, 10')
        a('v_cndmask_b32 %s, %s, %s, vcc' % (v(T), v(T), v(T+1)))
        a('v_and_b32 %s, 2, %s' % (v(T+1), v(V.lane)))
        a('v_lshl_add_u32 %s, %s, 9, %s' % (v(T), v(T+1), v(T)))
        a('buffer_load_short_d16_hi %s, %s, %s, 0 offen' % (v(V.WF), v(T), SWR))
        a('buffer_load_short_d16_hi %s, %s, %s, 0 offen' % (v(V.WF+1), v(T), SWI))
        a('s_mov_b64 exec, -1')
    def w_edge_rl(self):
        for l in range(4):
            for im in range(2): self.a('v_readlane_b32 s%d, %s, %d' % (84+2*l+im, v(V.WF+im), l))
    def w_edge(self):
        a = self.a; T = V.T
        self.w_edge_rl()
        q = ((84, 86, 'add'), (85, 87, 'sub'), (90, 88, 'add'), (91, 89, 'sub'))
        for i, (x, y, op) in enumerate(q): a('v_mov_b32 %s, s%d' % (v(T+i), y))
        for i, (x, y, op) in enumerate(q): a('v_%s_f32 %s, s%d, %s' % (op, v(V.WF+i), x, v(T+i)))
        for i in range(4): a('v_mul_f32 %s, 0.5, %s' % (v(V.WF+i), v(V.WF+i)))
        a('s_mov_b64 s[92:93], 1')
    def w_read1(self, rho, im, dst=None, swap=False):
        dst = V.W if dst is None else dst
        if rho < 8: ad, off = V.WP, 64*self.wq(rho) + (2112 if swap else 0)
        else: ad, off = V.WM, 64*(13-self.wq(rho)) + (0 if swap else 2112)
        return 'ds_read_u16_d16_hi %s, %s offset:%d' % (v(dst+16*im+rho), v(ad), off+1056*im)
    def w_fix(self, half):
        return ['v_cndmask_b32 %s, %s, %s, s[92:93]' % (v(V.W+8*half+16*im), v(V.W+8*half+16*im), v(V.WF+2*half+im)) for im in range(2)]
    def w_special(self):
        a = self.a; T = V.T; X = V.DA
        def f():
            for sw, dst in ((False, V.W), (True, X)):
                for rho in range(16):
                    for im in range(2): a(self.w_read1(rho, im, dst, sw))
            a('s_waitcnt lgkmcnt(0) vmcnt(0)')
            self.w_edge_rl()
            a('s_mov_b64 exec, 1')
            for r in (V.W+16, V.W+24, X+16, X+24): a('v_mov_b32 %s, 0' % v(r))
            a('v_mov_b32 %s, s90' % v(V.W+8)); a('v_mov_b32 %s, s88' % v(X+8))
            a('s_mov_b64 exec, -1')
            for i in range(32):
                a('v_add_f32 %s, %s, %s' % (v(V.W+i), v(V.W+i), v(X+i)))
                if (i & 15) < 8: a('v_fma_f32 %s, -2.0, %s, %s' % (v(X+i), v(X+i), v(V.W+i)))
                else: a('v_fma_f32 %s, 2.0, %s, -%s' % (v(X+i), v(X+i), v(V.W+i)))
            a('v_add_u32 %s, %d, %s' % (v(T+1), SCR_B, v(V.l16)))
            for i in range(8): a('ds_write_b128 %s, %s offset:%d' % (v(T+1), vr(X+4*i, 4), 1024*i))
        self.far(sSpec, 1, f)

    def addrs1(self):
        a = self.a; T = V.T
        a('v_lshrrev_b32 %s, 3, %s' % (v(T), v(V.lane)))
        a('v_and_b32 %s, 0x30, %s' % (v(T+1), v(V.l16)))
        a('v_lshl_add_u32 %s, %s, 6, %s' % (v(T), v(T), v(T+1)))
        a('v_and_b32 %s, 4, %s' % (v(T+1), v(V.lane)))
        a('v_lshl_add_u32 %s, %s, 1, %s' % (v(V.TR), v(T+1), v(T)))
        a('v_xor_b32 %s, %s, %s' % (v(T), sSB, v(V.lane)))
        a('v_and_b32 %s, 1, %s' % (v(T), v(T)))
        a('v_mul_u32_u24 %s, 16448, %s' % (v(T), v(T)))
        a('v_lshl_add_u32 %s, %s, 12, %s' % (v(T), v(V.g), v(T)))
        a('v_lshl_add_u32 %s, %s, 2, %s' % (v(T), v(T+1), v(T)))
        a('v_and_b32 %s, 0x60, %s' % (v(T+1), v(V.TR)))
        a('s_lshr_b32 %s, %s, 1' % (sWp, sW)); a('s_and_b32 %s, %s, 1' % (sA, sW))
        a('s_lshl2_add_u32 %s, %s, %s' % (sWp, sA, sWp)); a('s_lshl_b32 %s, %s, 7' % (sWp, sWp))
        a('v_add3_u32 %s, %s, %s, %s' % (v(V.X0w), v(T), v(T+1), sWp))
        a('s_lshl_b32 %s, %s, 10' % (sA, sW))
        a('s_sub_u32 %s, 0x4000, %s' % (sB, sA))
        a('s_cmp_eq_u32 %s, 0' % sW); a('s_cselect_b32 %s, 0x2000, %s' % (sB, sB))
        a('v_add_u32 %s, %s, %s' % (v(V.X0r0), sA, v(V.TR)))
        a('v_add_u32 %s, %s, %s' % (v(V.X0r1), sB, v(V.TR)))
    def addrs2(self):
        a = self.a; T = V.T
        a('v_lshlrev_b32 %s, 4, %s' % (v(T), v(V.n)))
        a('v_lshl_add_u32 %s, %s, 13, %s' % (v(T), v(V.g), v(T)))
        a('s_lshl_b32 %s, %s, 9' % (sA, sW)); a('s_add_u32 %s, %s, %d' % (sA, sA, R1))
        a('v_add_u32 %s, %s, %s' % (v(V.X1w), sA, v(T)))
        a('s_lshl_b32 %s, %s, 12' % (sA, sW)); a('s_add_u32 %s, %s, %d' % (sA, sA, R1))
        a('v_add_u32 %s, %s, %s' % (v(V.X1r), sA, v(V.TR)))
        a('v_and_b32 %s, 16, %s' % (v(T), v(V.l16)))
        a('v_and_b32 %s, 2, %s' % (v(T+1), v(V.lane)))
        a('v_bfe_u32 %s, %s, 2, 1' % (v(T+2), v(V.lane)))
        a('v_add_u32 %s, %s, %s' % (v(T+1), v(T+1), v(T+2)))
        a('v_mul_u32_u24 %s, 8224, %s' % (v(T+1), v(T+1)))
        a('v_bfe_u32 %s, %s, 3, 2' % (v(T+2), v(V.lane)))
        a('v_lshl_add_u32 %s, %s, 11, %s' % (v(T), v(T+2), v(T)))
        a('v_and_b32 %s, 32, %s' % (v(T+2), v(V.lane)))
        a('v_add3_u32 %s, %s, %s, %s' % (v(T), v(T), v(T+1), v(T+2)))
        a('v_add_u32 %s, %s, %s' % (v(V.X2w), sWp, v(T)))
        a('s_and_b32 %s, %s, 1' % (sA, sW)); a('s_lshr_b32 %s, %s, 2' % (sB, sW)); a('s_lshl1_add_u32 %s, %s, %s' % (sA, sB, sA)); a('s_lshl_b32 %s, %s, 11' % (sA, sA))
        a('s_and_b32 %s, %s, 2' % (sB, sW)); a('s_mul_i32 %s, %s, 8224' % (sB, sB)); a('s_add_u32 %s, %s, %s' % (sA, sA, sB))
        a('v_add_u32 %s, %s, %s' % (v(V.X2r), sA, v(V.TR)))
    def addrs3(self):
        a = self.a; T = V.T
        a('v_and_b32 %s, 16, %s' % (v(T), v(V.lane)))
        a('v_and_b32 %s, 33, %s' % (v(T+1), v(V.lane)))
        a('v_lshl_add_u32 %s, %s, 5, %s' % (v(T), v(T+1), v(T)))
        a('v_and_b32 %s, 8, %s' % (v(T+1), v(V.lane)))
        a('v_lshl_add_u32 %s, %s, 9, %s' % (v(T), v(T+1), v(T)))
        a('v_and_b32 %s, 2, %s' % (v(T+1), v(V.lane)))
        a('v_and_b32 %s, 4, %s' % (v(T+2), v(V.lane)))
        a('v_mul_u32_u24 %s, 4104, %s' % (v(T+1), v(T+1)))
        a('v_mul_u32_u24 %s, 4112, %s' % (v(T+2), v(T+2)))
        a('v_add3_u32 %s, %s, %s, %s' % (v(T), v(T), v(T+1), v(T+2)))
        a('s_sub_u32 %s, 16, %s' % (sC, sW))
        a('s_cmp_eq_u32 %s, 0' % sW); a('s_cselect_b32 %s, 8, %s' % (sC, sC))
        for kl, dst in ((sW, V.X3w0), (sC, V.X3w1)):
            a('s_lshr_b32 %s, %s, 2' % (sA, kl)); a('s_and_b32 %s, %s, 1' % (sB, kl)); a('s_lshl1_add_u32 %s, %s, %s' % (sA, sA, sB))
            a('s_and_b32 %s, %s, 2' % (sB, kl)); a('s_lshl2_add_u32 %s, %s, %s' % (sA, sB, sA))
            a('s_lshl_b32 %s, %s, 6' % (sA, sA)); a('s_add_u32 %s, %s, %d' % (sA, sA, R1))
            a('v_add_u32 %s, %s, %s' % (v(dst), sA, v(T)))
        a('s_and_b32 %s, %s, 1' % (sA, sW)); a('s_mul_i32 %s, %s, 8208' % (sA, sA))
        a('s_and_b32 %s, %s, 2' % (sB, sW)); a('s_mul_i32 %s, %s, 8224' % (sB, sB)); a('s_add_u32 %s, %s, %s' % (sA, sA, sB))
        a('s_and_b32 %s, %s, 4' % (sB, sW)); a('s_lshl_b32 %s, %s, 10' % (sB, sB)); a('s_add_u32 %s, %s, %s' % (sA, sA, sB))
        a('s_add_u32 %s, %s, %d' % (sA, sA, R1))
        a('v_add_u32 %s, %s, %s' % (v(V.X3r), sA, v(V.TR)))
        a('v_and_b32 %s, 0x70, %s' % (v(T), v(V.l16)))
        a('v_lshlrev_b32 %s, 1, %s' % (v(V.Ooff), v(V.Xoff)))
        a('v_sub_u32 %s, %s, %s' % (v(V.Ooff), v(V.Ooff), v(T)))

    def mf16(self, d, A, B): return 'v_mfma_f32_16x16x32_bf16 %s, %s, %s, 0' % (vr(d, 4), vr(A, 4), vr(B, 4))
    def cvt(self, d, lo, hi): return 'v_cvt_pk_bf16_f32 %s, %s, %s' % (v(d), v(lo), v(hi))
    def mf32(self, d, i, pl, dataA):
        M = vr(V.F32+16*pl+4*i, 4); X = vr(V.O+4*i, 4)
        A, B = (X, M) if dataA else (M, X)
        D = vr(d+16*pl, 16)
        return 'v_mfma_f32_32x32x16_bf16 %s, %s, %s, %s' % (D, A, B, D if i else '0')
    def emit(self, L):
        for x in L: self.a(x)

    def p1(self):
        a = self.a; O, L, D, P = V.O, V.L, V.DA, V.DB
        for r in range(4):
            a('s_waitcnt vmcnt(%d)' % (3-r))
            if r == 3:
                self.stamp()
                if self.o['spos'] == 'mid': self.cond(sW, PW, self.side_load)
            for t in range(4): a('v_mov_b32 %s, %s' % (v(O+4*t+r), v(L+4*r+t)))
        for t in range(4):
            a(self.mf16(D+4*t, V.F16, O+4*t)); a(self.mf16(D+16+4*t, V.F16+4, O+4*t))
        if self.o['spos'] == 'late': self.cond(sW, PW, self.side_load)
        def sp():
            self.srds()
            a('s_mov_b32 %s, 0' % sDP); a('s_mov_b32 %s, %d' % (sDM, 1024*1026)); a('s_mov_b32 %s, %d' % (sWL, WL))
            self.w_dma()
        a('s_or_b32 %s, %s, %s' % (sA, sT, sW))
        self.far(sA, 0, sp)
        for r in range(4):
            a(self.cvt(P+4*r, D+r, D+4+r)); a(self.cvt(P+4*r+2, D+16+r, D+20+r))
        for r in range(4):
            a(self.cvt(P+4*r+1, D+8+r, D+12+r)); a(self.cvt(P+4*r+3, D+24+r, D+28+r))
            a('ds_write_b128 %s, %s offset:%d' % (v(V.X0w), vr(P+4*r, 4), 1024*r))
        self.mark('g1a')
        self.side_wait()
        self.mark('g1b')
        a('s_waitcnt lgkmcnt(0)')
        a('s_barrier')
        for ti in range(4):
            for ii in range(2):
                a('ds_read_b64_tr_b16 %s, %s offset:%d' % (vr(O+4*ti+2*ii, 2), v(V.X0r1 if ti >> 1 else V.X0r0), (ti & 1)*16448+ii*512))
        a('ds_read_b32 %s, %s' % (v(V.tmp), v(V.cnt)))
        for ti in range(4):
            a('s_waitcnt lgkmcnt(%d)' % (7-2*ti))
            a(self.mf16(D+4*ti, V.M2+8*(ti >> 1), O+4*ti)); a(self.mf16(D+16+4*ti, V.M2+8*(ti >> 1)+4, O+4*ti))
        a('s_waitcnt lgkmcnt(0)')
        self.side_use()
        for r in range(4): a('s_add_u32 %s, %s, 0x%x' % (sO[r], sEst, WS_U[0] + r*65536))
        st = lambda i: a('buffer_store_dwordx4 %s, %s, %s, %s offen %s' % (vr(P+4*i, 4), v(V.Est), SWS, sO[i], self.o['st1']))
        def normal():
            for i in range(4):
                for k in range(4): a(self.cvt(P+4*i+2*(k & 1)+(k >> 1), D+4*k+i, D+16+4*k+i))
                st(i)
        def w0():
            for i in range(4):
                ts, eb = i >> 1, i & 1
                for tau in range(2):
                    for sg in range(2):
                        x = 4*(2*ts+tau)+2*eb+sg
                        a(self.cvt(P+4*i+2*tau+sg, D+x, D+16+x))
                st(i)
        self.ifelse(sW, 0, w0, normal)

    def stage(self, src, dst, dataA, kind, prio, pre=None):
        a = self.a; T = V.T
        if self.o['prio']: a('s_setprio %d' % prio)
        G = []
        for i in range(4):
            g = []
            if kind == 'tw':
                for st in range(3):
                    for r in range(4):
                        rho = 4*i+r; x, y = v(src+rho), v(src+16+rho)
                        g.append('v_fmac_f32 %s, %s, %s' % ((y, v(V.TW+16+rho), x) if st == 1 else (x, v(V.TW+rho), y)))
                for r in range(4): g.append(self.cvt(V.O+4*i+r, src+4*i+r, src+16+4*i+r))
            else:
                t = T+4*(i & 1)
                for r in range(4):
                    rho = 4*i+r
                    g.append('v_mul_f32 %s, %s, %s' % (v(t+r), v(src+rho), v(V.W+rho)))
                for r in range(4):
                    rho = 4*i+r
                    if rho < 8: g.append('v_fma_f32 %s, -%s, %s, %s' % (v(t+r), v(src+16+rho), v(V.W+16+rho), v(t+r)))
                    else: g.append('v_fmac_f32 %s, %s, %s' % (v(t+r), v(src+16+rho), v(V.W+16+rho)))
                for r in range(4):
                    rho = 4*i+r
                    g.append('v_mul_f32 %s, %s, %s' % (v(src+16+rho), v(src+16+rho), v(V.W+rho)))
                for r in range(4):
                    rho = 4*i+r
                    if rho < 8: g.append('v_fmac_f32 %s, %s, %s' % (v(src+16+rho), v(src+rho), v(V.W+16+rho)))
                    else: g.append('v_fma_f32 %s, -%s, %s, %s' % (v(src+16+rho), v(src+rho), v(V.W+16+rho), v(src+16+rho)))
                for r in range(4): g.append(self.cvt(V.O+4*i+r, src+16+4*i+r, t+r))
            G.append(g)
        W = [[self.w_read1(4*i+r, im) for im in range(2) for r in range(4)] for i in range(4)] if kind == 'w' else None
        if kind == 'w':
            a('s_waitcnt vmcnt(2)')
            self.emit(W[0]); self.emit(W[1])
        for i in range(4):
            g = list(G[i]); n = len(g)
            ins = {}
            if i:
                ins.setdefault(2, []).append(self.mf32(dst, i-1, 0, dataA))
                ins.setdefault(2+n//2, []).append(self.mf32(dst, i-1, 1, dataA))
            if kind == 'w':
                a('s_waitcnt lgkmcnt(%d)' % (8 if i < 3 else 0))
                if i in (0, 2): self.emit(self.w_fix(i >> 1))
                if i < 2:
                    if i == 0: ins.setdefault(3, []).append('s_waitcnt vmcnt(0)')
                    for k, x in enumerate(W[i+2]): ins.setdefault(3+2*k, []).append(x)
            for k, x in enumerate(g):
                self.emit(ins.get(k, []))
                a(x)
        a(self.mf32(dst, 3, 0, dataA)); a(self.mf32(dst, 3, 1, dataA))

    def p2(self):
        a = self.a; O, L, D, T = V.O, V.L, V.DA, V.T
        na = self.p2na
        for cbb in range(2):
            b = L+12*cbb
            a('s_waitcnt vmcnt(%d)' % (na+3-2*cbb))
            a('v_mov_b32 %s, %s' % (v(b+8), v(b))); a('v_mov_b32 %s, %s' % (v(b+9), v(b+1)))
            a('s_waitcnt vmcnt(%d)' % (na+2-2*cbb))
            if cbb: self.stamp(); self.mark('f0')
            for jj2 in (1, 0):
                ti = 2*cbb+jj2; op = b+2 if jj2 else b+6; mo = 0 if jj2 else 2
                a(self.mf16(D+4*ti, V.B+mo, op)); a(self.mf16(D+16+4*ti, V.B+6+mo, op))
        for cbb in range(2):
            for k1b in range(2):
                P = O+4*(2*cbb+k1b)
                for jj2 in (1, 0):
                    for pl in range(2):
                        x = D+16*pl+4*(2*cbb+jj2)+2*k1b
                        a(self.cvt(P+2*pl+jj2, x, x+1))
                a('ds_write_b128 %s, %s offset:%d' % (v(V.X1w), vr(P, 4), k1b*4096+cbb*256))
        self.mark('f1')
        a('s_waitcnt lgkmcnt(0)')
        self.mark('f2', True)
        a('s_barrier')
        self.mark('x1', True)
        if self.o['prio']: a('s_setprio 3')
        for i in range(4):
            for ii in range(2):
                a('ds_read_b64_tr_b16 %s, %s offset:%d' % (vr(O+4*i+2*ii, 2), v(V.X1r), ii*1024+(i & 1)*512+(i >> 1)*2048))
        rows = {'postX1': (0, 1, 2, 3), 'barh': (2, 3), 'bar': ()}[self.o['wpos']]
        for i in range(4):
            if i < len(rows): self.w_dma1(rows[i])
            a('s_waitcnt lgkmcnt(%d)' % (6-2*i))
            a(self.mf32(V.DA, i, 0, True)); a(self.mf32(V.DA, i, 1, True))
        self.mark('f3')
        self.stage(V.DA, V.DB, False, 'tw', 2)
        self.mark('f4', True)
        self.far(sSpec, 1, self.pw_special, lambda: self.stage(V.DB, V.DA, True, 'w', 1))
        self.mark('f5')
        self.stage(V.DA, V.DB, True, 'tw', 0)
        self.mark('f6')
        D = V.DB
        for r in range(4): a('s_add_u32 %s, %s, 0x%x' % (sO[r], sEst, WS_U[1] + r*65536))
        rho = lambda jj3, jj1, jj2, c: 4*(2*jj3+jj1)+2*jj2+c
        for pl in range(2):
            for k in range(4):
                c, jj1 = k >> 1, k & 1
                P = V.DA+4*k
                for jj3 in range(2):
                    a(self.cvt(P+2*pl+jj3, D+16*pl+rho(jj3, jj1, 0, c), D+16*pl+rho(jj3, jj1, 1, c)))
                if pl: a('ds_write_b128 %s, %s offset:%d' % (v(V.X2w), vr(P, 4), c*64+jj1*1024))
        self.mark('f7'); self.mark('x2')
        a('s_waitcnt lgkmcnt(0)')
        self.mark('f8', True)
        a('s_barrier')
        for ti in range(4):
            for ii in range(2):
                a('ds_read_b64_tr_b16 %s, %s offset:%d' % (vr(O+4*ti+2*ii, 2), v(V.X2r), ii*512+(ti & 1)*1024+(ti >> 1)*8224))
        D = V.DA; P = V.DB
        for ti in range(4):
            a('s_waitcnt lgkmcnt(%d)' % (6-2*ti))
            a(self.mf16(D+4*ti, V.Bp, O+4*ti)); a(self.mf16(D+16+4*ti, V.Bp+4, O+4*ti))
        self.mark('f9')
        for q in range(4):
            cbb, sbb = q >> 1, q & 1
            for jj1 in range(2):
                for hf in range(2):
                    x = 4*(2*cbb+jj1)+2*sbb+hf
                    a(self.cvt(P+4*q+2*jj1+hf, D+x, D+16+x))
            a('buffer_store_dwordx4 %s, %s, %s, %s offen %s' % (vr(P+4*q, 4), v(V.Est), SWS, sO[q], self.o['st2']))
        self.mark('f10')

    def pw_special(self):
        a = self.a; T = V.T; O = V.O; C = V.DB; X = V.DA
        self.sigma_lane(T)
        a('v_lshrrev_b32 %s, 5, %s' % (v(T+1), v(V.lane)))
        a('v_lshlrev_b32 %s, 9, %s' % (v(T+1), v(T+1)))
        a('v_lshl_add_u32 %s, %s, 2, %s' % (v(T+2), v(T), v(T+1)))
        a('v_add_u32 %s, %d, %s' % (v(T+2), SCR, v(T+2)))
        a('v_add_u32 %s, 128, %s' % (v(T+3), v(T+2)))
        a('v_sub_u32 %s, 32, %s' % (v(T+4), v(T)))
        a('v_lshrrev_b32 %s, 5, %s' % (v(T+5), v(T+4)))
        a('v_and_b32 %s, 31, %s' % (v(T+4), v(T+4)))
        a('v_lshlrev_b32 %s, 2, %s' % (v(T+4), v(T+4)))
        a('v_lshl_add_u32 %s, %s, 8, %s' % (v(T+4), v(T+5), v(T+4)))
        a('v_sub_u32 %s, %s, %s' % (v(T+4), v(T+4), v(T+1)))
        a('v_add_u32 %s, %d, %s' % (v(T+4), SCR + 2*256, v(T+4)))
        a('v_add_u32 %s, 128, %s' % (v(T+5), v(T+4)))
        a('v_add_u32 %s, %d, %s' % (v(T+6), SCR_B, v(V.l16)))
        qs = lambda rho: sigma(8*(rho >> 2) + (rho & 3))
        for pl in range(2):
            for rho in range(0, 16, 2):
                a('ds_write2st64_b32 %s, %s, %s offset0:%d offset1:%d' % (v(T+2+pl), v(C+16*pl+rho), v(C+16*pl+rho+1), qs(rho), qs(rho+1)))
            a('ds_write_b32 %s, %s offset:%d' % (v(T+2+pl), v(C+16*pl), 32*256))
        t0, t1 = v(T+8), v(T+9)
        for half in range(2):
            for pl in range(2):
                for k in range(0, 8, 2):
                    r_ = 8*half+k
                    a('ds_read2st64_b32 %s, %s offset0:%d offset1:%d' % (vr(X+8*pl+k, 2), v(T+4+pl), 29-qs(r_), 29-qs(r_+1)))
                for k in range(2):
                    a('ds_read_b128 %s, %s offset:%d' % (vr(X+16+8*pl+4*k, 4), v(T+6), 1024*(4*pl+2*half+k)))
            a('s_waitcnt lgkmcnt(0)')
            for k in range(8):
                r_ = 8*half+k
                x, y = v(C+r_), v(C+16+r_); ar, ai = v(V.W+r_), v(V.W+16+r_)
                p, q_ = v(X+k), v(X+8+k); br, bi = v(X+16+k), v(X+24+k)
                ng, ps = ('', '-') if half else ('-', '')
                a('v_mul_f32 %s, %s, %s' % (t0, x, ar))
                a('v_mul_f32 %s, %s, %s' % (t1, y, ar))
                a('v_fma_f32 %s, %s%s, %s, %s' % (t0, ng, y, ai, t0))
                a('v_fma_f32 %s, %s%s, %s, %s' % (t1, ps, x, ai, t1))
                a('v_fmac_f32 %s, %s, %s' % (t0, p, br))
                a('v_fma_f32 %s, -%s, %s, %s' % (t1, q_, br, t1))
                a('v_fma_f32 %s, %s%s, %s, %s' % (t0, ps, q_, bi, t0))
                a('v_fma_f32 %s, %s%s, %s, %s' % (t1, ps, p, bi, t1))
                a(self.cvt(O+r_, T+9, T+8))
        for i in range(4): a(self.mf32(V.DA, i, 0, True)); a(self.mf32(V.DA, i, 1, True))

    def p3(self):
        a = self.a; O, L, D, P = V.O, V.L, V.DA, V.DB
        a('s_lshl4_add_u32 %s, %s, %s' % (sA, sW, sSB)); a('s_lshl1_add_u32 %s, %s, %s' % (sA, sA, sP))
        a('s_lshl4_add_u32 %s, %s, %s' % (sA, sA, sCB)); a('s_lshl_b32 %s, %s, 7' % (sO[0], sA))
        for r in range(1, 4): a('s_add_u32 %s, %s, 0x%x' % (sO[r], sO[0], r*524288))
        def normal():
            for i in range(4):
                a('s_waitcnt vmcnt(%d)' % (3-i))
                for sel in range(2):
                    for col in range(2): a('v_mov_b32 %s, %s' % (v(O+4*(2*sel+col)+i), v(L+4*i+2*col+sel)))
        def w0():
            for i in range(4):
                ts, eb = i >> 1, i & 1
                a('s_waitcnt vmcnt(%d)' % (3-i))
                for col in range(2):
                    for sg in range(2): a('v_mov_b32 %s, %s' % (v(O+4*(2*ts+col)+2*eb+sg), v(L+4*i+2*col+sg)))
        self.ifelse(sW, 0, w0, normal, True)
        self.stamp()
        for ti in range(4):
            a(self.mf16(D+4*ti, O+4*ti, V.M2+8*(ti >> 1))); a(self.mf16(D+16+4*ti, O+4*ti, V.M2+8*(ti >> 1)+4))
        for ti in range(4):
            for pl in range(2):
                for k in range(2):
                    x = D+16*pl+4*ti+2*k
                    a(self.cvt(P+4*ti+2*pl+k, x, x+1))
            a('ds_write_b128 %s, %s offset:%d' % (v(V.X3w1 if ti >> 1 else V.X3w0), vr(P+4*ti, 4), (ti & 1)*2048))
        a('s_waitcnt lgkmcnt(0)')
        a('s_barrier')
        for t in range(4):
            for ii in range(2):
                a('ds_read_b64_tr_b16 %s, %s offset:%d' % (vr(O+4*t+2*ii, 2), v(V.X3r), ii*512+t*1024))
        for t in range(4):
            a('s_waitcnt lgkmcnt(%d)' % (6-2*t))
            a(self.mf16(D+4*t, V.F16, O+4*t)); a(self.mf16(D+16+4*t, V.F16+4, O+4*t))
        for t in range(2):
            for r in range(4): a(self.cvt(P+4*r+t, D+16+4*t+r, D+4*t+r))
        for r in range(4):
            for t in (2, 3): a(self.cvt(P+4*r+t, D+16+4*t+r, D+4*t+r))
            a('buffer_store_dwordx4 %s, %s, %s, %s offen %s' % (vr(P+4*r, 4), v(V.Ooff), SOUT, sO[r], self.o['sto']))

    def ex_load(self, ex):
        a = self.a
        a('s_add_u32 %s, %s, 0x%x' % (sA, sEld, WS_U[ex]))
        for q in range(4):
            d = V.L+12*(q >> 1)+4*(q & 1) if ex == 0 else V.L+4*q
            a('buffer_load_dwordx4 %s, %s, %s, %s offen offset:%d %s' % (vr(d, 4), v(V.Eld), SWS, sA, 256*q, self.o['ld1' if ex == 0 else 'ld2']))

    def build(self):
        a = self.a; o = self.o
        name = NAME + '_kernel'
        a.raw('.globl %s\n.p2align 12\n.p2align 8\n.type %s,@function\n%s:' % (name, name, name))
        end = self.label('end')
        self.prologue(end)
        work1 = lambda: (self.srds0(), self.addrs1(), self.gen_F16())
        if o['split']:
            a('s_lshr_b32 %s, %s, 2' % (sSpec, sW))
            self.ifelse(sSpec, 1, lambda: self.touch(0, True), work1, True)
        elif o['skip']:
            a('s_cmp_eq_u32 %s, 0' % sCh); a('s_cbranch_scc1 ret_0')
            self.touch(0)
        elif o['touch']: self.touch(0)
        a('s_waitcnt lgkmcnt(0)')
        self.mark('karg')
        if int(o['wsoff']):
            a('s_add_u32 s24, s24, 0x%x' % (int(o['wsoff']) << 20)); a('s_addc_u32 s25, s25, 0')
        self.probe_issue(); self.clear_issue()
        for r in range(4):
            a('buffer_load_dwordx4 %s, %s, %s, %s offen %s' % (vr(V.L+4*r, 4), v(V.Xoff), SX, sO[r], o['ldx']))
        self.probe_eval()
        if o['split']: self.cond(sSpec, 1, work1)
        else: work1()
        self.gen_M2(); self.ex_addrs()
        self.clear_done()
        if o['touch']: self.cond(sT, 0, lambda: self.touch(1))
        if o['spos'] == 'early': self.cond(sW, PW, self.side_load)
        self.mark('w1')
        self.p1()
        self.stamp()
        a('s_load_dword %s, s[20:21], 0x0' % sRv)
        self.flag_addrs(); self.side_apply(); self.srds(); self.calc_k0()
        a('s_mov_b32 %s, 1' % sInc)
        self.coop_gen(); self.coop_post()
        a('s_waitcnt vmcnt(0) lgkmcnt(0)')
        self.stamp()
        self.ready_check()
        self.arrive()
        self.poll(0, lambda: (self.w_edge_load(), self.gen_B(), self.w_special()))
        self.stamp()
        self.ex_load(0)
        self.p2na = 0
        if o['wpos'] in ('bar', 'barh'):
            a('s_barrier'); self.p2na = 4 if o['wpos'] == 'bar' else 2
            for i in range(self.p2na): self.w_dma1(i)
        else: self.coop_wait()
        self.coop_read(); self.addrs2()
        a('s_waitcnt vmcnt(%d)' % (4+self.p2na))
        self.w_edge()
        a('s_mov_b32 %s, 0x10000' % sInc)
        if o.get('da') == 'glob': self.cond(sId, 0, lambda: a('s_atomic_swap s56, s[20:21], 0x40'))
        self.p2()
        self.stamp()
        self.gen_M3()
        self.mark('w3a')
        a('s_waitcnt vmcnt(0)')
        self.stamp()
        self.arrive()
        self.poll(1, self.addrs3)
        if o['ts']: a('s_mov_b32 s%d, %s' % (sTS+26, sCnt))
        self.stamp()
        self.ex_load(1)
        self.p3()
        self.diag_end()
        a(end+':'); a('s_endpgm')
        t, self.tail = self.tail, []
        for f in t: f()
        if o['touch']: self.insert_stubs()
        hdr = ('; GFNet spectral filter, two heads: 2-D FFT as bf16 MFMA DFT stages in one persistent launch (generated)\n'
               '; @launch grid=(256,1,1) block=(512,1,1) lds=%d\n' % LDS_TOTAL)
        kd = '''.section .rodata,"a"
.p2align 6
.amdhsa_kernel %s
  .amdhsa_next_free_vgpr %d
  .amdhsa_next_free_sgpr 102
  .amdhsa_accum_offset %d
  .amdhsa_group_segment_fixed_size 0
  .amdhsa_kernarg_size 72
  .amdhsa_user_sgpr_count 2
  .amdhsa_user_sgpr_kernarg_segment_ptr 1
  .amdhsa_system_sgpr_workgroup_id_x 1
.end_amdhsa_kernel
''' % (name, NVGPR, (NVGPR+3)//4*4)
        return hdr + '.amdgcn_target "amdgcn-amd-amdhsa--gfx950"\n.text\n' + a.text() + kd

    def insert_stubs(self):
        a = self.a
        txt = '.amdgcn_target "amdgcn-amd-amdhsa--gfx950"\n.text\n' + a.text() + ''.join('stub_%d:\n' % k for k in range(16)) + 's_endpgm\n'
        open('pass1.s', 'w').write(txt)
        subprocess.check_call(['clang', '-x', 'assembler', '-target', 'amdgcn-amd-amdhsa', '-mcpu=gfx950', '-c', 'pass1.s', '-o', 'pass1.o'])
        dis = subprocess.check_output(['llvm-objdump', '-d', '--mcpu=gfx950', 'pass1.o']).decode()
        addrs = [int(m.group(1), 16) for m in re.finditer(r'// ([0-9A-F]{12}):', dis)]
        real = [i for i, x in enumerate(a.ins) if x.kind != 'none']
        assert len(addrs) == len(real) + 1, (len(addrs), len(real))
        size = {real[k]: addrs[k+1] - addrs[k] for k in range(len(real))}
        pos = ENTRY_OFF; nxt = 2048
        out = []; k = 0; prev = None; ez = False
        for i, x in enumerate(a.ins):
            if i in size:
                if prev is not None and prev.text.strip() == 's_mov_b64 exec, 0': ez = True
                if prev is not None and prev.text.strip() == 's_mov_b64 exec, -1': ez = False
                if pos >= nxt and k < 16 and not ez:
                    out.append(Ins('stub_%d:' % k)); out.append(Ins('s_cbranch_execz ret_%d' % (k >> 3)))
                    pos += 4; k += 1; nxt += 1024
                pos += size[i]; prev = x
                if x.op == 's_endpgm': self.hot_end = pos
            out.append(x)
        self.code_end = pos
        while k < 16:
            out.append(Ins('stub_%d:' % k)); out.append(Ins('s_branch ret_%d' % (k >> 3))); k += 1
        a.ins = out

if __name__ == '__main__':
    out = sys.argv[1]; opt = {}
    for kv in sys.argv[2:]:
        k, x = kv.split('=')
        opt[k] = {'True': True, 'False': False}.get(x, x.replace('+', ' '))
    g = Gen(**opt)
    s = g.build()
    assert g.a.verify() == 0
    open(out, 'w').write(s)
    print(out, 'vgprs', NVGPR, 'lds', LDS_TOTAL, 'nops', g.a.nops, 'lines', len(g.a.ins), 'hot end 0x%x code end 0x%x' % (getattr(g, 'hot_end', 0), getattr(g, 'code_end', 0)))
```

```python
import sys, struct, math, subprocess, re
from asmlib import Asm, Ins

NAME = 'concat_heads__spectral_gfnet__spectral_gfnet__prompt'
def f2u(x): return struct.unpack('<I', struct.pack('<f', x))[0]
def lit(x): return '0x%08x' % f2u(x)
def sigma(m): return (m & 1) | ((m >> 1) & 1) << 3 | ((m >> 2) & 1) << 1 | ((m >> 3) & 1) << 2 | (m & 16)

SC = 2.0**-22
SPIN_MAX = 0x4000
ENTRY_OFF = 0x300
PW = int([x for x in sys.argv if x.startswith('pw=')][0][3:]) if any(x.startswith('pw=') for x in sys.argv) else 1
R0 = 0
R1 = 33024
WL = 66048
SCR = WL + 8*4*1056
SCR_B = SCR + 36*256
TABL = SCR_B + 8192
CNT = TABL + 16384
LDS_TOTAL = CNT + 64
WS_U = (0, 8 << 20)
WS_FLAG = 16 << 20
WS_PROBE = 17 << 20
WS_TS = 72 << 20
class V: pass
_n = [0]
def alloc(n, align=1):
    b = (_n[0] + align - 1)//align*align
    _n[0] = b + n
    return b
V.tid = alloc(1); V.lane = alloc(1)
for nm in 'g n l16 TR Xoff Est Eld X0w X0r0 X0r1 X1w X1r X2w X2r WP WM zero cnt tmp'.split(): setattr(V, nm, alloc(1))
V.Ooff, V.X3w0, V.X3w1, V.X3r = V.Xoff, V.X0w, V.X0r0, V.X0r1
V.T = alloc(10)
V.O = alloc(16, 4)
V.DA = alloc(32, 4); V.DB = alloc(32, 4); V.L = V.DB
V.F16 = alloc(8, 4); V.M2 = alloc(16, 4)
V.F32 = alloc(32, 4); V.TW = alloc(32, 4); V.W = alloc(32, 4)
V.B = alloc(12, 4); V.Bp = alloc(8, 4); V.WF = alloc(4)
NVGPR = _n[0]
assert NVGPR <= 256, NVGPR
def v(i): return 'v%d' % i
def vr(i, n): return 'v[%d:%d]' % (i, i+n-1)
SX, SWR, SWI, SOUT, SDBG, SWS = 's[4:7]', 's[8:11]', 's[12:15]', 's[16:19]', 's[20:23]', 's[24:27]'
sP, sT, sW, sSB, sCB, sK0, sKP, sKM, sWp, sRv = ['s%d' % i for i in range(30, 40)]
sA, sB, sC, sD, sE, sF, sEst, sEld, sCnt, sSpec, sInc, sWL = ['s%d' % i for i in range(40, 52)]
sO = ['s52', 's53', 's54', 's55']
sTS = 56
sDP, sDM, sZ, sCh, sId = 's96', 's97', 's98', 's99', 's100'

class Gen:
    def __init__(self, **opt):
        self.o = dict(ldx='', ldw='', st1='sc1', st2='sc1', sto='nt', ld1='sc1', ld2='sc1', ts=False,
                      prio=True, nb='6', pnop='15', force='', wpos='postX1', touch=True, w1n='9', spos='mid', qw='1', qg='1', zg='3', xm='2', pb='17', wsoff='0', skip=False, now=False, pre=True, split=False, map='2', rep='1', slp='', sthr='')
        self.o.update(opt)
        self.a = Asm(); self.lab = 0; self.nts = 0; self.sid = -1; self.tail = []
    def label(self, p='L'):
        self.lab += 1
        return '%s_%d' % (p, self.lab)

    def mark(self, nm, drain=False):
        o = self.o; hit = False
        if o.get('clk') and nm in ('w1', 'g1a', 'x1', 'x2', 'w3a', 'end'):
            for op in ('s_memrealtime', 's_memtime'):
                self.a('%s s[%d:%d]' % (op, sTS+2*self.nts, sTS+2*self.nts+1)); self.nts += 1
            self.a('s_waitcnt lgkmcnt(0)')
        if o.get('fine') and nm[0] == 'f':
            self.a('s_memtime s[%d:%d]' % (sTS+2*self.nts, sTS+2*self.nts+1)); self.nts += 1; hit = True
        for key, reg in (('da', 58), ('db', 60)):
            if o.get(key) == nm:
                self.a('%s s[%d:%d]' % ('s_memtime' if 'cyc' in o else 's_memrealtime', reg, reg+1)); hit = True
        if hit and drain: self.a('s_waitcnt lgkmcnt(0)')
    def stamp(self):
        self.sid += 1
        self.mark('s%d' % self.sid)
        if not self.o['ts'] or self.o.get('clk') or self.o.get('fine'): return
        self.a('s_memrealtime s[%d:%d]' % (sTS+2*self.nts, sTS+2*self.nts+1)); self.nts += 1
    def diag_end(self):
        a = self.a; o = self.o
        self.mark('end')
        if not (o['ts'] or 'da' in o): return
        self.stamp(); a('s_waitcnt vmcnt(0)'); self.stamp()
        a('s_waitcnt lgkmcnt(0)')
        if 'da' in o:
            lp = self.label('dg')
            if o['da'] == 'glob':
                a('buffer_load_dword %s, %s, %s, 0 offen offset:64 sc1' % (v(V.tmp), v(V.zero), SDBG))
                a('s_waitcnt vmcnt(0)')
                a('v_readfirstlane_b32 s58, %s' % v(V.tmp)); a('s_mov_b32 s56, s58')
            a('s_sub_u32 %s, s60, s58' % sA)
            if 'db0' in o: a('s_add_u32 %s, %s, 250' % (sA, sA)); a('s_lshl_b32 %s, %s, 1' % (sA, sA))
            a('s_lshr_b32 %s, %s, 2' % (sA, sA) if 'cyc' in o else 's_lshl_b32 %s, %s, 2' % (sA, sA))
            for key, reg in (('dp', sP), ('dt', sT), ('db0', sId)):
                if key in o: a('s_cmp_eq_u32 %s, %s' % (reg, o[key])); a('s_cselect_b32 %s, %s, 0' % (sA, sA))
            a('s_min_u32 %s, %s, 9000' % (sA, sA))
            if 'enc' in o:
                a('s_and_b32 %s, s62, 7' % sB); a('s_mul_i32 %s, %s, 10000' % (sB, sB)); a('s_add_u32 %s, %s, %s' % (sA, sA, sB))
                a('s_bfe_u32 %s, s62, 0x30008' % sB); a('s_mul_i32 %s, %s, 100000' % (sB, sB)); a('s_add_u32 %s, %s, %s' % (sA, sA, sB))
            a('s_add_u32 %s, %s, 3000' % (sA, sA))
            a(lp+':')
            a('s_memrealtime s[28:29]'); a('s_waitcnt lgkmcnt(0)')
            a('s_sub_u32 %s, s28, s56' % sB); a('s_cmp_lt_u32 %s, %s' % (sB, sA)); a('s_cbranch_scc1 %s' % lp)
            return
        a('s_lshl_b32 %s, %s, 7' % (sA, sId)); a('s_add_u32 %s, %s, 0x%x' % (sA, sA, WS_TS))
        a('s_mov_b64 exec, 1')
        for i in range(14):
            a('v_mov_b32 %s, s%d' % (v(V.T), sTS+2*i))
            a('buffer_store_dword %s, %s, %s, %s offen offset:%d' % (v(V.T), v(V.zero), SWS, sA, 4*i))
            a('s_nop 1')

    def cond(self, reg, val, f):
        a = self.a; l = self.label('c')
        a('s_cmp_lg_u32 %s, %d' % (reg, val)); a('s_cbranch_scc1 %s' % l)
        f(); a(l+':')
    def ifelse(self, reg, val, feq, fne, eq_first=False):
        a = self.a; l0, l1 = self.label('ie'), self.label('iend')
        if eq_first:
            a('s_cmp_lg_u32 %s, %d' % (reg, val)); a('s_cbranch_scc1 %s' % l0)
            feq(); a('s_branch %s' % l1); a(l0+':'); fne()
        else:
            a('s_cmp_eq_u32 %s, %d' % (reg, val)); a('s_cbranch_scc1 %s' % l0)
            fne(); a('s_branch %s' % l1); a(l0+':'); feq()
        a(l1+':')
    def far(self, reg, val, feq, fne=None):
        a = self.a; l0, l1 = self.label('far'), self.label('back')
        a('s_cmp_eq_u32 %s, %d' % (reg, val)); a('s_cbranch_scc1 %s' % l0)
        if fne: fne()
        a(l1+':')
        def t():
            a(l0+':'); feq(); a('s_branch %s' % l1)
        self.tail.append(t)
    def touch(self, rnd, half=False):
        a = self.a
        a('s_mov_b64 exec, 0')
        if half:
            for k in range(3):
                a('s_cmp_eq_u32 %s, %d' % (sW, 4+k)); a('s_cbranch_scc1 stub_%d' % (2*k))
            a('s_branch stub_6')
        else:
            for k in range(7):
                a('s_cmp_eq_u32 %s, %d' % (sW, k)); a('s_cbranch_scc1 stub_%d' % (8*rnd+k))
            a('s_branch stub_%d' % (8*rnd+7))
        a('ret_%d:' % rnd)
        a('s_mov_b64 exec, -1')

    def prologue(self, end):
        a = self.a; T = V.T
        a('s_cmp_ge_u32 s2, 0x100')
        a('s_cbranch_scc1 %s' % end)
        if 'da' in self.o: a('s_memrealtime s[56:57]'); self.mark('start')
        a('s_bfe_u32 %s, s2, 0x10002' % sP)
        a('s_mul_i32 s3, %s, 24' % sP)
        a('s_load_dwordx2 s[4:5], s[0:1], s3')
        a('s_load_dwordx2 s[24:25], s[0:1], 0x40')
        a('s_load_dwordx2 s[20:21], s[0:1], 0x38')
        a('s_load_dwordx2 s[8:9], s[0:1], s3 offset:8')
        a('s_load_dwordx2 s[12:13], s[0:1], s3 offset:16')
        a('s_load_dwordx2 s[16:17], s[0:1], 0x30')
        self.stamp()
        a('v_lshrrev_b32 %s, 6, v0' % v(T))
        a('v_and_b32 %s, 63, v0' % v(V.lane))
        a('v_readfirstlane_b32 %s, %s' % (sW, v(T)))
        mp = self.o['map']
        a('s_and_b32 %s, s2, 3' % sA)
        if int(self.o['xm']): a('s_xor_b32 %s, %s, %s' % (sA, sA, self.o['xm']))
        if mp in ('0', '1'):
            a('s_bfe_u32 %s, s2, 0x10003' % sB)
            if mp == '0': a('s_lshl1_add_u32 %s, %s, %s' % (sA, sA, sB))
            else: a('s_lshl2_add_u32 %s, %s, %s' % (sA, sB, sA))
            a('s_lshr_b32 %s, s2, 4' % sB)
            a('s_lshl4_add_u32 %s, %s, %s' % (sT, sA, sB))
        else:
            a('s_lshr_b32 %s, s2, 3' % sB)
            a('s_lshl2_add_u32 %s, %s, %s' % (sT, sB, sA))
            a('s_lshr_b32 %s, %s, 4' % (sA, sT)); a('s_and_b32 %s, %s, 15' % (sB, sT))
        a('s_bfe_u32 %s, %s, 0x10001' % (sC, sB))
        a('s_lshl1_add_u32 %s, %s, %s' % (sCB, sA, sC))
        a('s_lshr_b32 %s, %s, 2' % (sSB, sB))
        a('s_and_b32 %s, %s, 1' % (sC, sB))
        a('s_lshl1_add_u32 %s, %s, %s' % (sSB, sSB, sC))
        a('s_mov_b32 s6, 0x400000'); a('s_mov_b32 s7, 0x20000')
        a('v_lshrrev_b32 %s, 4, %s' % (v(V.g), v(V.lane)))
        a('v_lshlrev_b32 %s, 4, %s' % (v(V.l16), v(V.lane)))
        a('v_and_b32 %s, 8, v0' % v(T))
        a('v_lshlrev_b32 %s, 11, %s' % (v(T), v(T)))
        a('v_lshl_add_u32 %s, %s, 20, %s' % (v(T), v(V.g), v(T)))
        a('v_and_b32 %s, 0x70, %s' % (v(T+1), v(V.l16)))
        a('v_add_u32 %s, %s, %s' % (v(V.Xoff), v(T), v(T+1)))
        a('s_lshl4_add_u32 %s, %s, %s' % (sA, sW, sSB))
        a('s_lshl4_add_u32 %s, %s, %s' % (sA, sA, sCB))
        a('s_lshl_b32 %s, %s, 7' % (sO[0], sA))
        for r in range(1, 4): a('s_add_u32 %s, %s, 0x%x' % (sO[r], sO[0], r*262144))
        a('s_lshl3_add_u32 %s, s2, %s' % (sId, sW))
        a('s_xor_b32 %s, %s, %d' % (sCh, sId, 8*int(self.o['qg'])+int(self.o['qw']))); a('s_and_b32 %s, %s, 0xffffff7f' % (sCh, sCh))
        a('s_xor_b32 %s, s2, %s' % (sZ, self.o['zg'])); a('s_and_b32 %s, %s, 0xffffffef' % (sZ, sZ))
    def srds(self):
        a = self.a
        a('s_mov_b32 s10, 2101248'); a('s_mov_b32 s11, 0x20000')
        a('s_mov_b32 s14, 2101248'); a('s_mov_b32 s15, 0x20000')
        a('s_mov_b32 s18, 0x800000'); a('s_mov_b32 s19, 0x20000')
    def srds0(self):
        a = self.a
        a('s_mov_b32 s22, 256'); a('s_mov_b32 s23, 0x20000')
        a('s_mov_b32 s26, 0x%x' % ((80 if self.o['ts'] else 18) << 20)); a('s_mov_b32 s27, 0x20000')
        a('v_and_b32 %s, 15, %s' % (v(V.n), v(V.lane)))
        a('v_mov_b32 %s, 0' % v(V.zero)); a('v_mov_b32 %s, %d' % (v(V.cnt), CNT))

    def probe_issue(self):
        a = self.a; NB = int(self.o['nb'])
        def f():
            a('s_lshl_b32 %s, s2, 9' % sA); a('s_and_b32 %s, %s, 0x2000' % (sA, sA))
            a('s_mul_i32 %s, %s, 9' % (sA, sA)); a('s_add_u32 %s, %s, 0x%x' % (sA, sA, int(self.o['pb']) << 20))
            a('s_xor_b32 %s, %s, 0x2000' % (sB, sA))
            for side, base in enumerate((sA, sB)):
                for k in range(NB):
                    a('s_load_dword s%d, s[24:25], %s offset:0x%x glc' % (62+side*NB+k, base, (k & 1)*0x1000 + (k >> 1)*0x4000 + k*0x100))
            if self.o['now']: self.probe_eval(True)
        def g():
            a('s_lshr_b32 %s, %s, 3' % (sA, sCh)); a('s_cmp_eq_u32 %s, 0' % sA); a('s_cselect_b32 %s, 9, %s' % (sA, sW))
            if self.o['pre']: self.cond(sA, PW, lambda: a('s_load_dword s95, s[20:21], 0x80'))
        self.ifelse(sCh, 0, f, g)
    def probe_eval(self, inline=False):
        a = self.a; NB = int(self.o['nb'])
        if self.o['now'] and not inline: return
        def f():
            a('s_lshr_b32 %s, s2, 1' % sC); a('s_and_b32 %s, %s, 8' % (sC, sC))
            a('s_waitcnt lgkmcnt(%d)' % NB)
            a('s_nop %s' % self.o['pnop'])
            a('s_getreg_b32 %s, hwreg(HW_REG_IB_STS, 8, 4)' % sA)
            a('s_or_b32 %s, %s, 16' % (sA, sA)); a('s_lshl_b32 s94, %s, %s' % (sA, sC))
            a('s_atomic_or s94, s[20:21], 0x80')
        if inline: f()
        else: self.cond(sCh, 0, f)
    def clear_issue(self):
        a = self.a
        def f():
            a('s_lshr_b32 %s, s2, 4' % sA)
            a('s_lshl1_add_u32 %s, %s, %s' % (sA, sW, sA))
            a('s_lshl_b32 %s, %s, 13' % (sA, sA)); a('s_add_u32 %s, %s, 0x%x' % (sA, sA, WS_FLAG))
            for i in range(0, 8, 2): a('s_mov_b64 s[%d:%d], 0' % (84+i, 85+i))
            R = int(self.o['rep'])
            for i in range(8):
                for r in range(R-1): a('s_atomic_and s84, s[24:25], %s offset:0x%x' % (sA, (i << 10) + 256*(r+1)))
            for i in range(8): a('s_atomic_swap s%d, s[24:25], %s offset:0x%x glc' % (84+i, sA, i << 10))
        self.cond(sZ, 0, f)
    def clear_done(self):
        a = self.a
        def f():
            a('s_mov_b32 s94, 1'); a('s_waitcnt lgkmcnt(0)')
            a('s_atomic_add s94, s[20:21], 0x0')
        self.cond(sZ, 0, f)
    def side_load(self):
        self.a('buffer_load_dword %s, %s, %s, 0 offen offset:128 sc1' % (v(V.tmp), v(V.zero), SDBG))
    def side_wait(self):
        a = self.a
        def f():
            lp, ok = self.label('sw'), self.label('swok')
            a('s_mov_b32 %s, 0' % sCnt)
            a(lp+':')
            a('s_waitcnt vmcnt(0)')
            a('v_and_b32 %s, 0x1010, %s' % (v(V.T), v(V.tmp)))
            a('v_cmp_eq_u32 vcc, 0x1010, %s' % v(V.T))
            a('s_cbranch_vccnz %s' % ok)
            self.side_load()
            a('s_add_u32 %s, %s, 1' % (sCnt, sCnt))
            a('s_cmp_lt_u32 %s, 0x%x' % (sCnt, SPIN_MAX))
            a('s_cbranch_scc1 %s' % lp)
            a('s_waitcnt vmcnt(0)')
            a(ok+':')
            a('ds_write2_b32 %s, %s, %s offset0:0 offset1:1' % (v(V.cnt), v(V.tmp), v(V.zero)))
        self.cond(sW, PW, f)
    def side_use(self):
        a = self.a
        a('v_readfirstlane_b32 %s, %s' % (sA, v(V.tmp)))
        if self.o['ts']: a('s_mov_b32 s%d, %s' % (sTS+24, sA))
        if 'enc' in self.o: a('s_mov_b32 s62, %s' % sA)
        a('s_and_b32 %s, %s, 15' % (sB, sA)); a('s_bfe_u32 %s, %s, 0x40008' % (sA, sA))
        a('s_cmp_gt_u32 %s, %s' % (sA, sB))
        a('s_cselect_b32 %s, 0x2000, 0' % sCh)
        if self.o['force'] != '': a('s_mov_b32 %s, %d' % (sCh, int(self.o['force']) << 13))
        a('s_xor_b32 %s, %s, %s' % (sEst, sEst, sCh))
    def flag_addrs(self):
        a = self.a
        a('s_lshr_b32 %s, %s, 4' % (sB, sT))
        a('s_lshl_b32 %s, %s, 13' % (sA, sP)); a('s_add_u32 %s, %s, 0x%x' % (sA, sA, WS_FLAG))
        for dst, wp, gr in ((sF, sW, sB), (sE, sB, sW)):
            a('s_lshl4_add_u32 %s, %s, %s' % (sC, wp, gr)); a('s_lshl_b32 %s, %s, 10' % (sC, sC))
            a('s_add_u32 %s, %s, %s' % (dst, sC, sA))
        R = int(self.o['rep'])
        if R > 1:
            a('s_and_b32 %s, %s, %d' % (sC, sT, R-1)); a('s_lshl_b32 %s, %s, 8' % (sC, sC)); a('s_add_u32 %s, %s, %s' % (sE, sE, sC))
    def side_apply(self):
        for r in (sF, sE, sEld): self.a('s_xor_b32 %s, %s, %s' % (r, r, sCh))
    def ready_check(self):
        a = self.a; l0, l1 = self.label('rdy'), self.label('rdyok')
        a('s_cmp_ge_u32 %s, 16' % sRv)
        a('s_cbranch_scc1 %s' % l1)
        a('s_mov_b32 %s, 0' % sCnt)
        a(l0+':')
        a('buffer_load_dword %s, %s, %s, 0 offen sc1' % (v(V.tmp), v(V.zero), SDBG))
        a('s_add_u32 %s, %s, 1' % (sCnt, sCnt))
        a('s_cmp_gt_u32 %s, 0x%x' % (sCnt, SPIN_MAX))
        a('s_waitcnt vmcnt(0)')
        a('s_cbranch_scc1 %s' % l1)
        a('v_cmp_gt_u32 vcc, 16, %s' % v(V.tmp))
        a('s_cbranch_vccnz %s' % l0)
        a(l1+':')
    def arrive(self):
        for r in range(int(self.o['rep'])): self.a('s_atomic_add %s, s[24:25], %s offset:%d' % (sInc, sF, 256*r))
    def poll(self, ex, under=None):
        a = self.a; lp, ok = self.label('poll'), self.label('pollok')
        if under:
            a('s_mov_b32 %s, 0' % sRv)
            a('s_atomic_add %s, s[24:25], %s glc' % (sRv, sE))
            under()
            a('s_waitcnt lgkmcnt(0)')
            a('s_bitcmp1_b32 %s, %d' % (sRv, 4+16*ex))
            a('s_cbranch_scc1 %s' % ok)
        a('s_mov_b32 %s, 0' % sCnt)
        a(lp+':')
        a('s_mov_b32 %s, 0' % sRv)
        a('s_atomic_add %s, s[24:25], %s glc' % (sRv, sE))
        a('s_add_u32 %s, %s, 1' % (sCnt, sCnt))
        a('s_cmp_gt_u32 %s, 0x%x' % (sCnt, SPIN_MAX))
        a('s_waitcnt lgkmcnt(0)')
        a('s_cbranch_scc1 %s' % ok)
        if self.o['slp']:
            a('s_bitcmp1_b32 %s, %d' % (sRv, 4+16*ex))
            a('s_cbranch_scc1 %s' % ok)
            if self.o['sthr']:
                a('s_bfe_u32 %s, %s, 0x%x' % (sA, sRv, 0x50000+16*ex))
                a('s_cmp_ge_u32 %s, %s' % (sA, self.o['sthr'])); a('s_cbranch_scc1 %s' % lp)
            a('s_sleep %s' % self.o['slp'])
            a('s_branch %s' % lp)
        else:
            a('s_bitcmp0_b32 %s, %d' % (sRv, 4+16*ex))
            a('s_cbranch_scc1 %s' % lp)
        a(ok+':')
    def ex_addrs(self):
        a = self.a; T = V.T
        a('s_lshl_b32 %s, %s, 4' % (sB, sW)); a('s_xor_b32 %s, %s, %s' % (sB, sB, sT)); a('s_lshl_b32 %s, %s, 8' % (sB, sB))
        a('v_lshlrev_b32 %s, 4, %s' % (v(T), v(V.n)))
        a('v_lshl_add_u32 %s, %s, 10, %s' % (v(T), v(V.g), v(T)))
        a('v_xor_b32 %s, %s, %s' % (v(T), sB, v(T)))
        a('v_and_b32 %s, 0x6000, %s' % (v(T+1), v(T)))
        a('v_add_u32 %s, %s, %s' % (v(T), v(T), v(T+1)))
        a('v_lshl_add_u32 %s, %s, 18, %s' % (v(V.Est), v(V.g), v(T)))
        a('v_and_b32 %s, 0xdcff, %s' % (v(V.Eld), v(T)))
        a('s_bfe_u32 %s, %s, 0x10001' % (sA, sW)); a('s_xor_b32 %s, %s, %s' % (sA, sA, sP))
        a('s_bfe_u32 %s, %s, 0x10005' % (sC, sT)); a('s_xor_b32 %s, %s, %s' % (sC, sC, sP))
        a('s_lshl_b32 %s, %s, 7' % (sEst, sW)); a('s_add_u32 %s, %s, %s' % (sEst, sEst, sA)); a('s_lshl_b32 %s, %s, 13' % (sEst, sEst))
        a('s_lshl3_add_u32 %s, %s, %s' % (sEld, sT, sC)); a('s_lshl_b32 %s, %s, 13' % (sEld, sEld))

    def trig(self, x, re, im, conj_re=None, conj_im=None):
        a = self.a; c, s = V.T+8, V.T+9
        a('v_cos_f32 %s, %s' % (v(c), v(x)))
        a('v_sin_f32 %s, %s' % (v(s), v(x)))
        if getattr(self, 'fill', None): self.fill(); self.fill = None
        a('v_cvt_pk_bf16_f32 %s, %s, %s' % (v(re), v(c), v(s)))
        a('v_cvt_pk_bf16_f32 %s, -%s, %s' % (v(im), v(s), v(c)))
        if conj_re is not None:
            a('v_xor_b32 %s, 0x80000000, %s' % (v(conj_re), v(re)))
            a('v_xor_b32 %s, 0x8000, %s' % (v(conj_im), v(im)))
    def ladder(self, x, step, regs):
        a = self.a
        for k, r in enumerate(regs):
            if k < len(regs)-1: self.fill = lambda: a('v_add_f32 %s, %s, %s' % (v(x), v(x), v(step)))
            self.trig(x, *r)
    def gen_F16(self):
        a = self.a; T = V.T
        a('v_cvt_f32_u32 %s, %s' % (v(T), v(V.n)))
        a('v_cvt_f32_u32 %s, %s' % (v(T+1), v(V.g)))
        a('v_mul_f32 %s, %s, %s' % (v(T), lit(1/16), v(T)))
        a('v_mul_f32 %s, 4.0, %s' % (v(T+1), v(T+1)))
        a('v_mul_f32 %s, %s, %s' % (v(T+2), v(T), v(T+1)))
        self.ladder(T+2, T, [(V.F16+r, V.F16+4+r) for r in range(4)])
    def gen_M2(self):
        a = self.a; T = V.T
        def normal():
            a('v_cvt_f32_u32 %s, %s' % (v(T+2), sW))
            a('v_fmac_f32 %s, %s, %s' % (v(T), lit(1/256), v(T+2)))
            a('v_mul_f32 %s, %s, %s' % (v(T+2), v(T), v(T+1)))
            self.ladder(T+2, T, [(V.M2+r, V.M2+4+r, V.M2+8+r, V.M2+12+r) for r in range(4)])
        def w0():
            a('v_lshrrev_b32 %s, 1, %s' % (v(T), v(V.n)))
            a('v_cvt_f32_u32 %s, %s' % (v(T), v(T)))
            a('v_lshlrev_b32 %s, 31, %s' % (v(T+3), v(V.n)))
            a('v_add_f32 %s, 0.5, %s' % (v(T+4), v(T)))
            a('v_xor_b32 %s, %s, %s' % (v(T+3), lit(1/16), v(T+3)))
            a('v_cmp_ne_u32 vcc, 1, %s' % v(V.n))
            a('v_mul_f32 %s, %s, %s' % (v(T), v(T), v(T+3)))
            a('v_mul_f32 %s, %s, %s' % (v(T+4), v(T+4), v(T+3)))
            a('v_cndmask_b32 %s, 0.5, %s, vcc' % (v(T), v(T)))
            for ts in range(2):
                d = T+4*ts
                a('v_mul_f32 %s, %s, %s' % (v(T+2), v(d), v(T+1)))
                self.ladder(T+2, d, [(V.M2+8*ts+r, V.M2+8*ts+4+r) for r in range(4)])
        self.ifelse(sW, 0, w0, normal)
    def gen_M3(self):
        a = self.a; T = V.T
        a('v_cvt_f32_u32 %s, %s' % (v(T), v(V.n)))
        a('v_mul_f32 %s, %s, %s' % (v(T+1), lit(1/256), v(T)))
        a('v_mul_f32 %s, %s, %s' % (v(T), lit(1/16), v(T)))
        def normal():
            a('v_lshl_add_u32 %s, %s, 6, %s' % (v(T+2), v(V.g), sW))
            a('v_cvt_f32_u32 %s, %s' % (v(T+2), v(T+2)))
            a('v_mul_f32 %s, %s, %s' % (v(T+2), v(T+2), v(T+1)))
            self.ladder(T+2, T, [(V.M2+r, V.M2+4+r, V.M2+8+r, V.M2+12+r) for r in range(4)])
        def w0():
            a('v_lshlrev_b32 %s, 5, %s' % (v(T+2), v(V.g)))
            a('v_cvt_f32_u32 %s, %s' % (v(T+2), v(T+2)))
            a('v_mul_f32 %s, 0.5, %s' % (v(T), v(T)))
            a('v_mul_f32 %s, %s, %s' % (v(T+2), v(T+2), v(T+1)))
            regs = []
            for k in range(4):
                b = V.M2+8*(k & 1)+2*(k >> 1)
                regs.append((b, b+4, b+1, b+5))
            self.ladder(T+2, T, regs)
            a('s_mov_b64 exec, 0xffff')
            a('v_lshlrev_b32 %s, 15, %s' % (v(T+2), v(V.n)))
            a('v_and_b32 %s, 0x8000, %s' % (v(T+2), v(T+2)))
            a('v_or_b32 %s, 0x3f80, %s' % (v(V.M2+1), v(T+2)))
            a('v_lshlrev_b32 %s, 16, %s' % (v(V.M2+5), v(V.M2+1)))
            a('s_mov_b64 exec, -1')
        self.ifelse(sW, 0, w0, normal)
    def sigma_lane(self, dst):
        a = self.a; t = V.T+7
        a('v_and_b32 %s, 17, %s' % (v(dst), v(V.lane)))
        a('v_bfe_u32 %s, %s, 2, 2' % (v(t), v(V.lane)))
        a('v_lshl_add_u32 %s, %s, 1, %s' % (v(dst), v(t), v(dst)))
        a('v_and_b32 %s, 2, %s' % (v(t), v(V.lane)))
        a('v_lshl_add_u32 %s, %s, 2, %s' % (v(dst), v(t), v(dst)))
    def coop_gen(self):
        a = self.a; T = V.T; X = V.DA
        self.sigma_lane(T)
        a('v_lshrrev_b32 %s, 5, %s' % (v(T+1), v(V.lane)))
        a('v_lshlrev_b32 %s, 7, %s' % (v(T+2), v(T+1)))
        a('v_lshl_add_u32 %s, %s, 1, %s' % (v(T+2), v(T), v(T+2)))
        a('s_and_b32 %s, %s, 2' % (sD, sKP)); a('s_sub_u32 %s, %s, %s' % (sD, sWL, sD))
        a('v_add_u32 %s, %s, %s' % (v(V.WP), sD, v(T+2)))
        a('s_add_u32 %s, %s, %d' % (sD, sD, 1024-832))
        a('v_sub_u32 %s, %s, %s' % (v(V.WM), sD, v(T+2)))
        a('v_cvt_f32_u32 %s, %s' % (v(T), v(T)))
        a('s_mul_i32 %s, %s, 4' % (sA, sW)); a('s_lshr_b32 %s, 0x75643120, %s' % (sA, sA)); a('s_and_b32 %s, %s, 7' % (sA, sA)); a('s_lshl_b32 %s, %s, 2' % (sA, sA))
        a('v_lshl_add_u32 %s, %s, 1, %s' % (v(T+1), v(T+1), sA))
        a('v_mul_f32 %s, %s, %s' % (v(T), lit(1/2048), v(T)))
        a('v_cvt_f32_u32 %s, %s' % (v(T+1), v(T+1)))
        a('v_mul_f32 %s, %s, %s' % (v(T+2), v(T+1), v(T)))
        for e in range(2):
            a('v_cos_f32 %s, %s' % (v(T+5), v(T+2)))
            a('v_sin_f32 %s, %s' % (v(T+6), v(T+2)))
            a('v_rcp_f32 %s, %s' % (v(T+5), v(T+5)))
            a('v_mul_f32 %s, %s, %s' % (v(T+3), lit(64.0), v(T+2)))
            a('v_mul_f32 %s, %s, %s' % (v(X+4+e), v(T+6), v(T+5)))
            a('v_fma_f32 %s, %s, %s, 1.0' % (v(T+5), v(X+4+e), v(X+4+e)))
            a('v_rcp_f32 %s, %s' % (v(T+6), v(T+5)))
            a('v_mul_f32 %s, -2.0, %s' % (v(T+4), v(X+4+e)))
            a('v_fma_f32 %s, -%s, %s, 1.0' % (v(T+5), v(T+5), v(T+6)))
            a('v_fmac_f32 %s, %s, %s' % (v(T+6), v(T+5), v(T+6)))
            a('v_mul_f32 %s, %s, %s' % (v(X+6+e), v(T+6), v(T+4)))
            if e == 0: self.fill = lambda: a('v_add_f32 %s, %s, %s' % (v(T+2), v(T+2), v(T)))
            self.trig(T+3, X+e, X+2+e)
        a('s_lshr_b32 %s, %s, 1' % (sA, sW)); a('s_lshl_b32 %s, %s, 7' % (sA, sA))
        a('s_and_b32 %s, %s, 1' % (sB, sW)); a('s_add_u32 %s, %s, %s' % (sA, sA, sB))
        a('s_lshl3_add_u32 %s, %s, %d' % (sA, sA, TABL))
        a('v_add_u32 %s, %s, %s' % (v(T), sA, v(V.l16)))
        for k in range(4): a('ds_write_b64 %s, %s offset:%d' % (v(T), vr(X+2*k, 2), 4096*k))
    def coop_post(self):
        a = self.a
        a('v_mov_b32 %s, 1' % v(V.T+1))
        a('ds_add_u32 %s, %s offset:4' % (v(V.cnt), v(V.T+1)))
    def coop_wait(self):
        a = self.a; T = V.T; lp, ok = self.label('cw'), self.label('cwok')
        a('s_mov_b32 %s, 0' % sCnt)
        a(lp+':')
        a('ds_read_b32 %s, %s offset:4' % (v(T), v(V.cnt)))
        a('s_add_u32 %s, %s, 1' % (sCnt, sCnt))
        a('s_cmp_gt_u32 %s, 0x%x' % (sCnt, SPIN_MAX*8))
        a('s_waitcnt lgkmcnt(0)')
        a('s_cbranch_scc1 %s' % ok)
        a('v_cmp_gt_u32 vcc, 0x200, %s' % v(T))
        a('s_cbranch_vccnz %s' % lp)
        a(ok+':')
    def coop_read(self):
        a = self.a; T = V.T
        a('v_add_u32 %s, %d, %s' % (v(T), TABL, v(V.l16)))
        for k in range(16): a('ds_read_b128 %s, %s offset:%d' % (vr(V.F32+4*k, 4), v(T), 1024*k))
    def calc_k0(self):
        a = self.a
        a('s_lshr_b32 %s, %s, 4' % (sA, sT)); a('s_and_b32 %s, %s, 15' % (sB, sT))
        a('s_lshl4_add_u32 %s, %s, %s' % (sK0, sB, sA))
        a('s_and_b32 %s, %s, 12' % (sC, sB)); a('s_bfe_u32 %s, %s, 0x10001' % (sD, sB)); a('s_add_u32 %s, %s, %s' % (sC, sC, sD))
        a('s_and_b32 %s, %s, 1' % (sD, sB)); a('s_lshl1_add_u32 %s, %s, %s' % (sC, sD, sC)); a('s_lshl_b32 %s, %s, 3' % (sC, sC))
        a('s_cmp_eq_u32 %s, 0' % sA); a('s_cselect_b32 %s, %s, %s' % (sK0, sC, sK0))
        a('s_cmp_eq_u32 %s, 0' % sT); a('s_cselect_b32 %s, 7, 8' % sA)
        a('s_lshl_b32 %s, %s, %s' % (sKP, sW, sA)); a('s_add_u32 %s, %s, %s' % (sKP, sKP, sK0))
        a('s_sub_u32 %s, 0x800, %s' % (sKM, sKP))
        a('s_cmp_eq_u32 %s, 0' % sKP)
        a('s_cselect_b32 %s, 0x400, %s' % (sKM, sKM)); a('s_cselect_b32 %s, 1, 0' % sSpec)
        a('s_mul_i32 %s, %s, 1026' % (sKP, sKP)); a('s_mul_i32 %s, %s, 1026' % (sKM, sKM))
        a('s_mul_i32 %s, %s, 4224' % (sWL, sW)); a('s_add_u32 %s, %s, %d' % (sWL, sWL, WL))
        a('s_and_b32 %s, %s, 2' % (sA, sKP))
        a('s_add_u32 %s, %s, %s' % (sDP, sKP, sA)); a('s_add_u32 %s, %s, %s' % (sDM, sKM, sA))
    def gen_B(self):
        a = self.a; T = V.T; c, s = T+8, T+9
        a('v_lshrrev_b32 %s, 1, %s' % (v(T), v(V.n)))
        a('v_cvt_f32_u32 %s, %s' % (v(T+2), v(V.g)))
        a('v_and_b32 %s, 1, %s' % (v(T+3), v(V.n)))
        a('v_add_f32 %s, %s, %s' % (v(T+2), v(T+2), v(T+2)))
        def normal():
            a('v_lshl_add_u32 %s, %s, 8, %s' % (v(T+1), v(T), sK0))
            a('v_lshlrev_b32 %s, 4, %s' % (v(T+4), v(T+3)))
            a('v_cvt_f32_u32 %s, %s' % (v(T+1), v(T+1)))
            a('v_lshlrev_b32 %s, 31, %s' % (v(T+6), v(V.n)))
            a('v_cvt_f32_u32 %s, %s' % (v(T+3), v(T+3)))
            a('v_mul_f32 %s, %s, %s' % (v(T+1), lit(1/2048), v(T+1)))
            a('s_brev_b32 %s, 1' % sA)
            a('v_lshrrev_b32 %s, %s, %s' % (v(T+4), v(T+4), sA))
            a('v_mul_f32 %s, %s, %s' % (v(T+5), v(T+1), v(T+2)))
            a('v_fmac_f32 %s, %s, %s' % (v(T+5), lit(0.25), v(T+3)))
            for sbb in range(2):
                if sbb == 0: self.fill = lambda: a('v_add_f32 %s, %s, %s' % (v(T+5), v(T+5), v(T+1)))
                else: self.fill = lambda: a('v_cvt_f32_u32 %s, %s' % (v(T), v(T)))
                self.trig(T+5, V.B+2*sbb, V.B+6+2*sbb)
                a('v_xor_b32 %s, %s, %s' % (v(V.B+2*sbb+1), v(V.B+2*sbb), v(T+4)))
                a('v_xor_b32 %s, %s, %s' % (v(V.B+6+2*sbb+1), v(V.B+6+2*sbb), v(T+4)))
            a('v_lshl_add_u32 %s, %s, 9, %s' % (v(T+1), v(V.g), sK0))
            a('v_xor_b32 %s, %s, %s' % (v(T), v(T), v(T+6)))
            a('v_cvt_f32_u32 %s, %s' % (v(T+1), v(T+1)))
            a('v_mul_f32 %s, 0.5, %s' % (v(T+5), v(T+3)))
            a('v_mul_f32 %s, %s, %s' % (v(T+1), lit(1/2048), v(T+1)))
            a('v_fmac_f32 %s, %s, %s' % (v(T+5), v(T+1), v(T)))
            for ii in range(2):
                a('v_cos_f32 %s, %s' % (v(c), v(T+5)))
                a('v_sin_f32 %s, %s' % (v(s), v(T+5)))
                a('v_mul_f32 %s, %s, %s' % (v(c), lit(SC), v(c)))
                a('v_mul_f32 %s, %s, %s' % (v(s), lit(SC), v(s)))
                if ii == 0: a('v_fmac_f32 %s, %s, %s' % (v(T+5), lit(0.125), v(T)))
                a('v_cvt_pk_bf16_f32 %s, %s, %s' % (v(T+1), v(c), v(s)))
                a('v_cvt_pk_bf16_f32 %s, -%s, %s' % (v(T+2), v(s), v(c)))
                a('v_xor_b32 %s, %s, %s' % (v(V.Bp+2*ii), v(T+1), v(T+6)))
                a('v_xor_b32 %s, %s, %s' % (v(V.Bp+4+2*ii), v(T+2), v(T+6)))
                a('v_xor_b32 %s, %s, %s' % (v(V.Bp+2*ii+1), v(T+2), v(T+6)))
                a('v_xor_b32 %s, 0x80008000, %s' % (v(V.Bp+4+2*ii+1), v(V.Bp+2*ii)))
        def special():
            a('v_cvt_f32_u32 %s, %s' % (v(T+1), v(T)))
            a('v_mul_f32 %s, %s, %s' % (v(T+1), lit(1/16), v(T+1)))
            a('v_lshlrev_b32 %s, 4, %s' % (v(T+4), v(T+3)))
            a('v_cmp_eq_u32 s[84:85], 0, %s' % v(T))
            a('v_and_b32 %s, 1, %s' % (v(T+6), v(T)))
            a('v_cmp_eq_u32 s[86:87], 1, %s' % v(T+6))
            a('v_mul_f32 %s, %s, %s' % (v(T+5), v(T+1), v(T+2)))
            for sbb in range(2):
                a('v_cos_f32 %s, %s' % (v(c), v(T+5)))
                a('v_sin_f32 %s, %s' % (v(s), v(T+5)))
                a('v_mul_f32 %s, 2.0, %s' % (v(c), v(c)))
                a('v_mul_f32 %s, -2.0, %s' % (v(s), v(s)))
                a('v_cndmask_b32 %s, %s, 1.0, s[84:85]' % (v(c), v(c)))
                a('v_cndmask_b32 %s, %s, %s, s[84:85]' % (v(s), v(s), '-1.0' if sbb else '1.0'))
                for src, dst in ((c, V.B+2*sbb), (s, V.B+6+2*sbb)):
                    a('v_cvt_pk_bf16_f32 %s, %s, 0' % (v(T+7), v(src)))
                    a('v_lshlrev_b32 %s, %s, %s' % (v(T+7), v(T+4), v(T+7)))
                    a('v_cndmask_b32 %s, %s, 0, s[86:87]' % (v(dst), v(T+7)))
                    a('v_cndmask_b32 %s, 0, %s, s[86:87]' % (v(dst+1), v(T+7)))
                a('v_add_f32 %s, %s, %s' % (v(T+5), v(T+5), v(T+1)))
            a('v_cmp_eq_u32 s[88:89], 0, %s' % v(V.g))
            a('v_cmp_eq_u32 s[90:91], 1, %s' % v(T+3))
            a('v_lshlrev_b32 %s, 31, %s' % (v(T+6), v(T)))
            a('v_xor_b32 %s, %s, %s' % (v(T+6), lit(SC), v(T+6)))
            a('v_mov_b32 %s, %s' % (v(T+4), lit(SC)))
            a('v_mul_f32 %s, %s, %s' % (v(T+5), v(T+1), v(T+2)))
            for ii in range(2):
                a('v_cos_f32 %s, %s' % (v(c), v(T+5)))
                a('v_sin_f32 %s, %s' % (v(s), v(T+5)))
                a('v_mul_f32 %s, %s, %s' % (v(c), lit(2*SC), v(c)))
                a('v_mul_f32 %s, %s, %s' % (v(s), lit(-2*SC), v(s)))
                if ii == 0:
                    a('v_cndmask_b32 %s, %s, %s, s[88:89]' % (v(c), v(c), v(T+4)))
                    a('v_cndmask_b32 %s, %s, %s, s[88:89]' % (v(s), v(s), v(T+6)))
                a('v_cvt_pk_bf16_f32 %s, %s, %s' % (v(T+7), v(s), v(c)))
                if ii: a('v_cndmask_b32 %s, 0, %s, s[90:91]' % (v(T+7), v(T+7)))
                else: a('v_cndmask_b32 %s, %s, 0, s[90:91]' % (v(T+7), v(T+7)))
                a('v_mov_b32 %s, 0' % v(V.Bp+2*ii)); a('v_mov_b32 %s, %s' % (v(V.Bp+2*ii+1), v(T+7)))
                a('v_mov_b32 %s, %s' % (v(V.Bp+4+2*ii), v(T+7))); a('v_mov_b32 %s, 0' % v(V.Bp+4+2*ii+1))
                a('v_add_f32 %s, %s, %s' % (v(T+5), v(T+5), v(T+1)))
        self.far(sT, 0, special, normal)
        for d, r in ((4, 0), (5, 1), (10, 6), (11, 7)): a('v_mov_b32 %s, %s' % (v(V.B+d), v(V.B+r)))

    def wq(self, rho): return (rho & 1) + 8*((rho >> 1) & 1) + 4*((rho >> 2) & 1)
    def w_dma1(self, i):
        a = self.a
        srd, so = [(SWR, sDP), (SWI, sDP), (SWR, sDM), (SWI, sDM)][i]
        a('s_add_u32 m0, %s, %d' % (sWL, 1056*i))
        a('buffer_load_dwordx4 %s, %s, %s offen %s lds' % (v(V.l16), srd, so, self.o['ldw']))
    def w_dma(self):
        for i in range(4): self.w_dma1(i)
    def w_edge_load(self):
        a = self.a; T = V.T
        a('s_mov_b64 exec, 15')
        a('v_mov_b32 %s, %s' % (v(T), sKP)); a('v_mov_b32 %s, %s' % (v(T+1), sKM))
        a('s_mov_b64 vcc, 10')
        a('v_cndmask_b32 %s, %s, %s, vcc' % (v(T), v(T), v(T+1)))
        a('v_and_b32 %s, 2, %s' % (v(T+1), v(V.lane)))
        a('v_lshl_add_u32 %s, %s, 9, %s' % (v(T), v(T+1), v(T)))
        a('buffer_load_short_d16_hi %s, %s, %s, 0 offen' % (v(V.WF), v(T), SWR))
        a('buffer_load_short_d16_hi %s, %s, %s, 0 offen' % (v(V.WF+1), v(T), SWI))
        a('s_mov_b64 exec, -1')
    def w_edge_rl(self):
        for l in range(4):
            for im in range(2): self.a('v_readlane_b32 s%d, %s, %d' % (84+2*l+im, v(V.WF+im), l))
    def w_edge(self):
        a = self.a; T = V.T
        self.w_edge_rl()
        q = ((84, 86, 'add'), (85, 87, 'sub'), (90, 88, 'add'), (91, 89, 'sub'))
        for i, (x, y, op) in enumerate(q): a('v_mov_b32 %s, s%d' % (v(T+i), y))
        for i, (x, y, op) in enumerate(q): a('v_%s_f32 %s, s%d, %s' % (op, v(V.WF+i), x, v(T+i)))
        for i in range(4): a('v_mul_f32 %s, 0.5, %s' % (v(V.WF+i), v(V.WF+i)))
        a('s_mov_b64 s[92:93], 1')
    def w_read1(self, rho, im, dst=None, swap=False):
        dst = V.W if dst is None else dst
        if rho < 8: ad, off = V.WP, 64*self.wq(rho) + (2112 if swap else 0)
        else: ad, off = V.WM, 64*(13-self.wq(rho)) + (0 if swap else 2112)
        return 'ds_read_u16_d16_hi %s, %s offset:%d' % (v(dst+16*im+rho), v(ad), off+1056*im)
    def w_fix(self, half):
        return ['v_cndmask_b32 %s, %s, %s, s[92:93]' % (v(V.W+8*half+16*im), v(V.W+8*half+16*im), v(V.WF+2*half+im)) for im in range(2)]
    def w_special(self):
        a = self.a; T = V.T; X = V.DA
        def f():
            for sw, dst in ((False, V.W), (True, X)):
                for rho in range(16):
                    for im in range(2): a(self.w_read1(rho, im, dst, sw))
            a('s_waitcnt lgkmcnt(0) vmcnt(0)')
            self.w_edge_rl()
            a('s_mov_b64 exec, 1')
            for r in (V.W+16, V.W+24, X+16, X+24): a('v_mov_b32 %s, 0' % v(r))
            a('v_mov_b32 %s, s90' % v(V.W+8)); a('v_mov_b32 %s, s88' % v(X+8))
            a('s_mov_b64 exec, -1')
            for i in range(32):
                a('v_add_f32 %s, %s, %s' % (v(V.W+i), v(V.W+i), v(X+i)))
                if (i & 15) < 8: a('v_fma_f32 %s, -2.0, %s, %s' % (v(X+i), v(X+i), v(V.W+i)))
                else: a('v_fma_f32 %s, 2.0, %s, -%s' % (v(X+i), v(X+i), v(V.W+i)))
            a('v_add_u32 %s, %d, %s' % (v(T+1), SCR_B, v(V.l16)))
            for i in range(8): a('ds_write_b128 %s, %s offset:%d' % (v(T+1), vr(X+4*i, 4), 1024*i))
        self.far(sSpec, 1, f)

    def addrs1(self):
        a = self.a; T = V.T
        a('v_lshrrev_b32 %s, 3, %s' % (v(T), v(V.lane)))
        a('v_and_b32 %s, 0x30, %s' % (v(T+1), v(V.l16)))
        a('v_lshl_add_u32 %s, %s, 6, %s' % (v(T), v(T), v(T+1)))
        a('v_and_b32 %s, 4, %s' % (v(T+1), v(V.lane)))
        a('v_lshl_add_u32 %s, %s, 1, %s' % (v(V.TR), v(T+1), v(T)))
        a('v_xor_b32 %s, %s, %s' % (v(T), sSB, v(V.lane)))
        a('v_and_b32 %s, 1, %s' % (v(T), v(T)))
        a('v_mul_u32_u24 %s, 16448, %s' % (v(T), v(T)))
        a('v_lshl_add_u32 %s, %s, 12, %s' % (v(T), v(V.g), v(T)))
        a('v_lshl_add_u32 %s, %s, 2, %s' % (v(T), v(T+1), v(T)))
        a('v_and_b32 %s, 0x60, %s' % (v(T+1), v(V.TR)))
        a('s_lshr_b32 %s, %s, 1' % (sWp, sW)); a('s_and_b32 %s, %s, 1' % (sA, sW))
        a('s_lshl2_add_u32 %s, %s, %s' % (sWp, sA, sWp)); a('s_lshl_b32 %s, %s, 7' % (sWp, sWp))
        a('v_add3_u32 %s, %s, %s, %s' % (v(V.X0w), v(T), v(T+1), sWp))
        a('s_lshl_b32 %s, %s, 10' % (sA, sW))
        a('s_sub_u32 %s, 0x4000, %s' % (sB, sA))
        a('s_cmp_eq_u32 %s, 0' % sW); a('s_cselect_b32 %s, 0x2000, %s' % (sB, sB))
        a('v_add_u32 %s, %s, %s' % (v(V.X0r0), sA, v(V.TR)))
        a('v_add_u32 %s, %s, %s' % (v(V.X0r1), sB, v(V.TR)))
    def addrs2(self):
        a = self.a; T = V.T
        a('v_lshlrev_b32 %s, 4, %s' % (v(T), v(V.n)))
        a('v_lshl_add_u32 %s, %s, 13, %s' % (v(T), v(V.g), v(T)))
        a('s_lshl_b32 %s, %s, 9' % (sA, sW)); a('s_add_u32 %s, %s, %d' % (sA, sA, R1))
        a('v_add_u32 %s, %s, %s' % (v(V.X1w), sA, v(T)))
        a('s_lshl_b32 %s, %s, 12' % (sA, sW)); a('s_add_u32 %s, %s, %d' % (sA, sA, R1))
        a('v_add_u32 %s, %s, %s' % (v(V.X1r), sA, v(V.TR)))
        a('v_and_b32 %s, 16, %s' % (v(T), v(V.l16)))
        a('v_and_b32 %s, 2, %s' % (v(T+1), v(V.lane)))
        a('v_bfe_u32 %s, %s, 2, 1' % (v(T+2), v(V.lane)))
        a('v_add_u32 %s, %s, %s' % (v(T+1), v(T+1), v(T+2)))
        a('v_mul_u32_u24 %s, 8224, %s' % (v(T+1), v(T+1)))
        a('v_bfe_u32 %s, %s, 3, 2' % (v(T+2), v(V.lane)))
        a('v_lshl_add_u32 %s, %s, 11, %s' % (v(T), v(T+2), v(T)))
        a('v_and_b32 %s, 32, %s' % (v(T+2), v(V.lane)))
        a('v_add3_u32 %s, %s, %s, %s' % (v(T), v(T), v(T+1), v(T+2)))
        a('v_add_u32 %s, %s, %s' % (v(V.X2w), sWp, v(T)))
        a('s_and_b32 %s, %s, 1' % (sA, sW)); a('s_lshr_b32 %s, %s, 2' % (sB, sW)); a('s_lshl1_add_u32 %s, %s, %s' % (sA, sB, sA)); a('s_lshl_b32 %s, %s, 11' % (sA, sA))
        a('s_and_b32 %s, %s, 2' % (sB, sW)); a('s_mul_i32 %s, %s, 8224' % (sB, sB)); a('s_add_u32 %s, %s, %s' % (sA, sA, sB))
        a('v_add_u32 %s, %s, %s' % (v(V.X2r), sA, v(V.TR)))
    def addrs3(self):
        a = self.a; T = V.T
        a('v_and_b32 %s, 16, %s' % (v(T), v(V.lane)))
        a('v_and_b32 %s, 33, %s' % (v(T+1), v(V.lane)))
        a('v_lshl_add_u32 %s, %s, 5, %s' % (v(T), v(T+1), v(T)))
        a('v_and_b32 %s, 8, %s' % (v(T+1), v(V.lane)))
        a('v_lshl_add_u32 %s, %s, 9, %s' % (v(T), v(T+1), v(T)))
        a('v_and_b32 %s, 2, %s' % (v(T+1), v(V.lane)))
        a('v_and_b32 %s, 4, %s' % (v(T+2), v(V.lane)))
        a('v_mul_u32_u24 %s, 4104, %s' % (v(T+1), v(T+1)))
        a('v_mul_u32_u24 %s, 4112, %s' % (v(T+2), v(T+2)))
        a('v_add3_u32 %s, %s, %s, %s' % (v(T), v(T), v(T+1), v(T+2)))
        a('s_sub_u32 %s, 16, %s' % (sC, sW))
        a('s_cmp_eq_u32 %s, 0' % sW); a('s_cselect_b32 %s, 8, %s' % (sC, sC))
        for kl, dst in ((sW, V.X3w0), (sC, V.X3w1)):
            a('s_lshr_b32 %s, %s, 2' % (sA, kl)); a('s_and_b32 %s, %s, 1' % (sB, kl)); a('s_lshl1_add_u32 %s, %s, %s' % (sA, sA, sB))
            a('s_and_b32 %s, %s, 2' % (sB, kl)); a('s_lshl2_add_u32 %s, %s, %s' % (sA, sB, sA))
            a('s_lshl_b32 %s, %s, 6' % (sA, sA)); a('s_add_u32 %s, %s, %d' % (sA, sA, R1))
            a('v_add_u32 %s, %s, %s' % (v(dst), sA, v(T)))
        a('s_and_b32 %s, %s, 1' % (sA, sW)); a('s_mul_i32 %s, %s, 8208' % (sA, sA))
        a('s_and_b32 %s, %s, 2' % (sB, sW)); a('s_mul_i32 %s, %s, 8224' % (sB, sB)); a('s_add_u32 %s, %s, %s' % (sA, sA, sB))
        a('s_and_b32 %s, %s, 4' % (sB, sW)); a('s_lshl_b32 %s, %s, 10' % (sB, sB)); a('s_add_u32 %s, %s, %s' % (sA, sA, sB))
        a('s_add_u32 %s, %s, %d' % (sA, sA, R1))
        a('v_add_u32 %s, %s, %s' % (v(V.X3r), sA, v(V.TR)))
        a('v_and_b32 %s, 0x70, %s' % (v(T), v(V.l16)))
        a('v_lshlrev_b32 %s, 1, %s' % (v(V.Ooff), v(V.Xoff)))
        a('v_sub_u32 %s, %s, %s' % (v(V.Ooff), v(V.Ooff), v(T)))

    def mf16(self, d, A, B): return 'v_mfma_f32_16x16x32_bf16 %s, %s, %s, 0' % (vr(d, 4), vr(A, 4), vr(B, 4))
    def cvt(self, d, lo, hi): return 'v_cvt_pk_bf16_f32 %s, %s, %s' % (v(d), v(lo), v(hi))
    def mf32(self, d, i, pl, dataA):
        M = vr(V.F32+16*pl+4*i, 4); X = vr(V.O+4*i, 4)
        A, B = (X, M) if dataA else (M, X)
        D = vr(d+16*pl, 16)
        return 'v_mfma_f32_32x32x16_bf16 %s, %s, %s, %s' % (D, A, B, D if i else '0')
    def emit(self, L):
        for x in L: self.a(x)

    def p1(self):
        a = self.a; O, L, D, P = V.O, V.L, V.DA, V.DB
        for r in range(4):
            a('s_waitcnt vmcnt(%d)' % (3-r))
            if r == 3:
                self.stamp()
                if self.o['spos'] == 'mid': self.cond(sW, PW, self.side_load)
            for t in range(4): a('v_mov_b32 %s, %s' % (v(O+4*t+r), v(L+4*r+t)))
        for t in range(4):
            a(self.mf16(D+4*t, V.F16, O+4*t)); a(self.mf16(D+16+4*t, V.F16+4, O+4*t))
        if self.o['spos'] == 'late': self.cond(sW, PW, self.side_load)
        def sp():
            self.srds()
            a('s_mov_b32 %s, 0' % sDP); a('s_mov_b32 %s, %d' % (sDM, 1024*1026)); a('s_mov_b32 %s, %d' % (sWL, WL))
            self.w_dma()
        a('s_or_b32 %s, %s, %s' % (sA, sT, sW))
        self.far(sA, 0, sp)
        for r in range(4):
            a(self.cvt(P+4*r, D+r, D+4+r)); a(self.cvt(P+4*r+2, D+16+r, D+20+r))
        for r in range(4):
            a(self.cvt(P+4*r+1, D+8+r, D+12+r)); a(self.cvt(P+4*r+3, D+24+r, D+28+r))
            a('ds_write_b128 %s, %s offset:%d' % (v(V.X0w), vr(P+4*r, 4), 1024*r))
        self.mark('g1a')
        self.side_wait()
        self.mark('g1b')
        a('s_waitcnt lgkmcnt(0)')
        a('s_barrier')
        for ti in range(4):
            for ii in range(2):
                a('ds_read_b64_tr_b16 %s, %s offset:%d' % (vr(O+4*ti+2*ii, 2), v(V.X0r1 if ti >> 1 else V.X0r0), (ti & 1)*16448+ii*512))
        a('ds_read_b32 %s, %s' % (v(V.tmp), v(V.cnt)))
        for ti in range(4):
            a('s_waitcnt lgkmcnt(%d)' % (7-2*ti))
            a(self.mf16(D+4*ti, V.M2+8*(ti >> 1), O+4*ti)); a(self.mf16(D+16+4*ti, V.M2+8*(ti >> 1)+4, O+4*ti))
        a('s_waitcnt lgkmcnt(0)')
        self.side_use()
        for r in range(4): a('s_add_u32 %s, %s, 0x%x' % (sO[r], sEst, WS_U[0] + r*65536))
        st = lambda i: a('buffer_store_dwordx4 %s, %s, %s, %s offen %s' % (vr(P+4*i, 4), v(V.Est), SWS, sO[i], self.o['st1']))
        def normal():
            for i in range(4):
                for k in range(4): a(self.cvt(P+4*i+2*(k & 1)+(k >> 1), D+4*k+i, D+16+4*k+i))
                st(i)
        def w0():
            for i in range(4):
                ts, eb = i >> 1, i & 1
                for tau in range(2):
                    for sg in range(2):
                        x = 4*(2*ts+tau)+2*eb+sg
                        a(self.cvt(P+4*i+2*tau+sg, D+x, D+16+x))
                st(i)
        self.ifelse(sW, 0, w0, normal)

    def stage(self, src, dst, dataA, kind, prio, pre=None):
        a = self.a; T = V.T
        if self.o['prio']: a('s_setprio %d' % prio)
        G = []
        for i in range(4):
            g = []
            if kind == 'tw':
                for st in range(3):
                    for r in range(4):
                        rho = 4*i+r; x, y = v(src+rho), v(src+16+rho)
                        g.append('v_fmac_f32 %s, %s, %s' % ((y, v(V.TW+16+rho), x) if st == 1 else (x, v(V.TW+rho), y)))
                for r in range(4): g.append(self.cvt(V.O+4*i+r, src+4*i+r, src+16+4*i+r))
            else:
                t = T+4*(i & 1)
                for r in range(4):
                    rho = 4*i+r
                    g.append('v_mul_f32 %s, %s, %s' % (v(t+r), v(src+rho), v(V.W+rho)))
                for r in range(4):
                    rho = 4*i+r
                    if rho < 8: g.append('v_fma_f32 %s, -%s, %s, %s' % (v(t+r), v(src+16+rho), v(V.W+16+rho), v(t+r)))
                    else: g.append('v_fmac_f32 %s, %s, %s' % (v(t+r), v(src+16+rho), v(V.W+16+rho)))
                for r in range(4):
                    rho = 4*i+r
                    g.append('v_mul_f32 %s, %s, %s' % (v(src+16+rho), v(src+16+rho), v(V.W+rho)))
                for r in range(4):
                    rho = 4*i+r
                    if rho < 8: g.append('v_fmac_f32 %s, %s, %s' % (v(src+16+rho), v(src+rho), v(V.W+16+rho)))
                    else: g.append('v_fma_f32 %s, -%s, %s, %s' % (v(src+16+rho), v(src+rho), v(V.W+16+rho), v(src+16+rho)))
                for r in range(4): g.append(self.cvt(V.O+4*i+r, src+16+4*i+r, t+r))
            G.append(g)
        W = [[self.w_read1(4*i+r, im) for im in range(2) for r in range(4)] for i in range(4)] if kind == 'w' else None
        if kind == 'w':
            a('s_waitcnt vmcnt(2)')
            self.emit(W[0]); self.emit(W[1])
        for i in range(4):
            g = list(G[i]); n = len(g)
            ins = {}
            if i:
                ins.setdefault(2, []).append(self.mf32(dst, i-1, 0, dataA))
                ins.setdefault(2+n//2, []).append(self.mf32(dst, i-1, 1, dataA))
            if kind == 'w':
                a('s_waitcnt lgkmcnt(%d)' % (8 if i < 3 else 0))
                if i in (0, 2): self.emit(self.w_fix(i >> 1))
                if i < 2:
                    if i == 0: ins.setdefault(3, []).append('s_waitcnt vmcnt(0)')
                    for k, x in enumerate(W[i+2]): ins.setdefault(3+2*k, []).append(x)
            for k, x in enumerate(g):
                self.emit(ins.get(k, []))
                a(x)
        a(self.mf32(dst, 3, 0, dataA)); a(self.mf32(dst, 3, 1, dataA))

    def p2(self):
        a = self.a; O, L, D, T = V.O, V.L, V.DA, V.T
        na = self.p2na
        for cbb in range(2):
            b = L+12*cbb
            a('s_waitcnt vmcnt(%d)' % (na+3-2*cbb))
            a('v_mov_b32 %s, %s' % (v(b+8), v(b))); a('v_mov_b32 %s, %s' % (v(b+9), v(b+1)))
            a('s_waitcnt vmcnt(%d)' % (na+2-2*cbb))
            if cbb: self.stamp(); self.mark('f0')
            for jj2 in (1, 0):
                ti = 2*cbb+jj2; op = b+2 if jj2 else b+6; mo = 0 if jj2 else 2
                a(self.mf16(D+4*ti, V.B+mo, op)); a(self.mf16(D+16+4*ti, V.B+6+mo, op))
        for cbb in range(2):
            for k1b in range(2):
                P = O+4*(2*cbb+k1b)
                for jj2 in (1, 0):
                    for pl in range(2):
                        x = D+16*pl+4*(2*cbb+jj2)+2*k1b
                        a(self.cvt(P+2*pl+jj2, x, x+1))
                a('ds_write_b128 %s, %s offset:%d' % (v(V.X1w), vr(P, 4), k1b*4096+cbb*256))
        self.mark('f1')
        a('s_waitcnt lgkmcnt(0)')
        self.mark('f2', True)
        a('s_barrier')
        self.mark('x1', True)
        if self.o['prio']: a('s_setprio 3')
        for i in range(4):
            for ii in range(2):
                a('ds_read_b64_tr_b16 %s, %s offset:%d' % (vr(O+4*i+2*ii, 2), v(V.X1r), ii*1024+(i & 1)*512+(i >> 1)*2048))
        rows = {'postX1': (0, 1, 2, 3), 'barh': (2, 3), 'bar': ()}[self.o['wpos']]
        for i in range(4):
            if i < len(rows): self.w_dma1(rows[i])
            a('s_waitcnt lgkmcnt(%d)' % (6-2*i))
            a(self.mf32(V.DA, i, 0, True)); a(self.mf32(V.DA, i, 1, True))
        self.mark('f3')
        self.stage(V.DA, V.DB, False, 'tw', 2)
        self.mark('f4', True)
        self.far(sSpec, 1, self.pw_special, lambda: self.stage(V.DB, V.DA, True, 'w', 1))
        self.mark('f5')
        self.stage(V.DA, V.DB, True, 'tw', 0)
        self.mark('f6')
        D = V.DB
        for r in range(4): a('s_add_u32 %s, %s, 0x%x' % (sO[r], sEst, WS_U[1] + r*65536))
        rho = lambda jj3, jj1, jj2, c: 4*(2*jj3+jj1)+2*jj2+c
        for pl in range(2):
            for k in range(4):
                c, jj1 = k >> 1, k & 1
                P = V.DA+4*k
                for jj3 in range(2):
                    a(self.cvt(P+2*pl+jj3, D+16*pl+rho(jj3, jj1, 0, c), D+16*pl+rho(jj3, jj1, 1, c)))
                if pl: a('ds_write_b128 %s, %s offset:%d' % (v(V.X2w), vr(P, 4), c*64+jj1*1024))
        self.mark('f7'); self.mark('x2')
        a('s_waitcnt lgkmcnt(0)')
        self.mark('f8', True)
        a('s_barrier')
        for ti in range(4):
            for ii in range(2):
                a('ds_read_b64_tr_b16 %s, %s offset:%d' % (vr(O+4*ti+2*ii, 2), v(V.X2r), ii*512+(ti & 1)*1024+(ti >> 1)*8224))
        D = V.DA; P = V.DB
        for ti in range(4):
            a('s_waitcnt lgkmcnt(%d)' % (6-2*ti))
            a(self.mf16(D+4*ti, V.Bp, O+4*ti)); a(self.mf16(D+16+4*ti, V.Bp+4, O+4*ti))
        self.mark('f9')
        for q in range(4):
            cbb, sbb = q >> 1, q & 1
            for jj1 in range(2):
                for hf in range(2):
                    x = 4*(2*cbb+jj1)+2*sbb+hf
                    a(self.cvt(P+4*q+2*jj1+hf, D+x, D+16+x))
            a('buffer_store_dwordx4 %s, %s, %s, %s offen %s' % (vr(P+4*q, 4), v(V.Est), SWS, sO[q], self.o['st2']))
        self.mark('f10')

    def pw_special(self):
        a = self.a; T = V.T; O = V.O; C = V.DB; X = V.DA
        self.sigma_lane(T)
        a('v_lshrrev_b32 %s, 5, %s' % (v(T+1), v(V.lane)))
        a('v_lshlrev_b32 %s, 9, %s' % (v(T+1), v(T+1)))
        a('v_lshl_add_u32 %s, %s, 2, %s' % (v(T+2), v(T), v(T+1)))
        a('v_add_u32 %s, %d, %s' % (v(T+2), SCR, v(T+2)))
        a('v_add_u32 %s, 128, %s' % (v(T+3), v(T+2)))
        a('v_sub_u32 %s, 32, %s' % (v(T+4), v(T)))
        a('v_lshrrev_b32 %s, 5, %s' % (v(T+5), v(T+4)))
        a('v_and_b32 %s, 31, %s' % (v(T+4), v(T+4)))
        a('v_lshlrev_b32 %s, 2, %s' % (v(T+4), v(T+4)))
        a('v_lshl_add_u32 %s, %s, 8, %s' % (v(T+4), v(T+5), v(T+4)))
        a('v_sub_u32 %s, %s, %s' % (v(T+4), v(T+4), v(T+1)))
        a('v_add_u32 %s, %d, %s' % (v(T+4), SCR + 2*256, v(T+4)))
        a('v_add_u32 %s, 128, %s' % (v(T+5), v(T+4)))
        a('v_add_u32 %s, %d, %s' % (v(T+6), SCR_B, v(V.l16)))
        qs = lambda rho: sigma(8*(rho >> 2) + (rho & 3))
        for pl in range(2):
            for rho in range(0, 16, 2):
                a('ds_write2st64_b32 %s, %s, %s offset0:%d offset1:%d' % (v(T+2+pl), v(C+16*pl+rho), v(C+16*pl+rho+1), qs(rho), qs(rho+1)))
            a('ds_write_b32 %s, %s offset:%d' % (v(T+2+pl), v(C+16*pl), 32*256))
        t0, t1 = v(T+8), v(T+9)
        for half in range(2):
            for pl in range(2):
                for k in range(0, 8, 2):
                    r_ = 8*half+k
                    a('ds_read2st64_b32 %s, %s offset0:%d offset1:%d' % (vr(X+8*pl+k, 2), v(T+4+pl), 29-qs(r_), 29-qs(r_+1)))
                for k in range(2):
                    a('ds_read_b128 %s, %s offset:%d' % (vr(X+16+8*pl+4*k, 4), v(T+6), 1024*(4*pl+2*half+k)))
            a('s_waitcnt lgkmcnt(0)')
            for k in range(8):
                r_ = 8*half+k
                x, y = v(C+r_), v(C+16+r_); ar, ai = v(V.W+r_), v(V.W+16+r_)
                p, q_ = v(X+k), v(X+8+k); br, bi = v(X+16+k), v(X+24+k)
                ng, ps = ('', '-') if half else ('-', '')
                a('v_mul_f32 %s, %s, %s' % (t0, x, ar))
                a('v_mul_f32 %s, %s, %s' % (t1, y, ar))
                a('v_fma_f32 %s, %s%s, %s, %s' % (t0, ng, y, ai, t0))
                a('v_fma_f32 %s, %s%s, %s, %s' % (t1, ps, x, ai, t1))
                a('v_fmac_f32 %s, %s, %s' % (t0, p, br))
                a('v_fma_f32 %s, -%s, %s, %s' % (t1, q_, br, t1))
                a('v_fma_f32 %s, %s%s, %s, %s' % (t0, ps, q_, bi, t0))
                a('v_fma_f32 %s, %s%s, %s, %s' % (t1, ps, p, bi, t1))
                a(self.cvt(O+r_, T+9, T+8))
        for i in range(4): a(self.mf32(V.DA, i, 0, True)); a(self.mf32(V.DA, i, 1, True))

    def p3(self):
        a = self.a; O, L, D, P = V.O, V.L, V.DA, V.DB
        a('s_lshl4_add_u32 %s, %s, %s' % (sA, sW, sSB)); a('s_lshl1_add_u32 %s, %s, %s' % (sA, sA, sP))
        a('s_lshl4_add_u32 %s, %s, %s' % (sA, sA, sCB)); a('s_lshl_b32 %s, %s, 7' % (sO[0], sA))
        for r in range(1, 4): a('s_add_u32 %s, %s, 0x%x' % (sO[r], sO[0], r*524288))
        def normal():
            for i in range(4):
                a('s_waitcnt vmcnt(%d)' % (3-i))
                for sel in range(2):
                    for col in range(2): a('v_mov_b32 %s, %s' % (v(O+4*(2*sel+col)+i), v(L+4*i+2*col+sel)))
        def w0():
            for i in range(4):
                ts, eb = i >> 1, i & 1
                a('s_waitcnt vmcnt(%d)' % (3-i))
                for col in range(2):
                    for sg in range(2): a('v_mov_b32 %s, %s' % (v(O+4*(2*ts+col)+2*eb+sg), v(L+4*i+2*col+sg)))
        self.ifelse(sW, 0, w0, normal, True)
        self.stamp()
        for ti in range(4):
            a(self.mf16(D+4*ti, O+4*ti, V.M2+8*(ti >> 1))); a(self.mf16(D+16+4*ti, O+4*ti, V.M2+8*(ti >> 1)+4))
        for ti in range(4):
            for pl in range(2):
                for k in range(2):
                    x = D+16*pl+4*ti+2*k
                    a(self.cvt(P+4*ti+2*pl+k, x, x+1))
            a('ds_write_b128 %s, %s offset:%d' % (v(V.X3w1 if ti >> 1 else V.X3w0), vr(P+4*ti, 4), (ti & 1)*2048))
        a('s_waitcnt lgkmcnt(0)')
        a('s_barrier')
        for t in range(4):
            for ii in range(2):
                a('ds_read_b64_tr_b16 %s, %s offset:%d' % (vr(O+4*t+2*ii, 2), v(V.X3r), ii*512+t*1024))
        for t in range(4):
            a('s_waitcnt lgkmcnt(%d)' % (6-2*t))
            a(self.mf16(D+4*t, V.F16, O+4*t)); a(self.mf16(D+16+4*t, V.F16+4, O+4*t))
        for t in range(2):
            for r in range(4): a(self.cvt(P+4*r+t, D+16+4*t+r, D+4*t+r))
        for r in range(4):
            for t in (2, 3): a(self.cvt(P+4*r+t, D+16+4*t+r, D+4*t+r))
            a('buffer_store_dwordx4 %s, %s, %s, %s offen %s' % (vr(P+4*r, 4), v(V.Ooff), SOUT, sO[r], self.o['sto']))

    def ex_load(self, ex):
        a = self.a
        a('s_add_u32 %s, %s, 0x%x' % (sA, sEld, WS_U[ex]))
        for q in range(4):
            d = V.L+12*(q >> 1)+4*(q & 1) if ex == 0 else V.L+4*q
            a('buffer_load_dwordx4 %s, %s, %s, %s offen offset:%d %s' % (vr(d, 4), v(V.Eld), SWS, sA, 256*q, self.o['ld1' if ex == 0 else 'ld2']))

    def build(self):
        a = self.a; o = self.o
        name = NAME + '_kernel'
        a.raw('.globl %s\n.p2align 12\n.p2align 8\n.type %s,@function\n%s:' % (name, name, name))
        end = self.label('end')
        self.prologue(end)
        work1 = lambda: (self.srds0(), self.addrs1(), self.gen_F16())
        if o['split']:
            a('s_lshr_b32 %s, %s, 2' % (sSpec, sW))
            self.ifelse(sSpec, 1, lambda: self.touch(0, True), work1, True)
        elif o['skip']:
            a('s_cmp_eq_u32 %s, 0' % sCh); a('s_cbranch_scc1 ret_0')
            self.touch(0)
        elif o['touch']: self.touch(0)
        a('s_waitcnt lgkmcnt(0)')
        self.mark('karg')
        if int(o['wsoff']):
            a('s_add_u32 s24, s24, 0x%x' % (int(o['wsoff']) << 20)); a('s_addc_u32 s25, s25, 0')
        self.probe_issue(); self.clear_issue()
        for r in range(4):
            a('buffer_load_dwordx4 %s, %s, %s, %s offen %s' % (vr(V.L+4*r, 4), v(V.Xoff), SX, sO[r], o['ldx']))
        self.probe_eval()
        if o['split']: self.cond(sSpec, 1, work1)
        else: work1()
        self.gen_M2(); self.ex_addrs()
        self.clear_done()
        if o['touch']: self.cond(sT, 0, lambda: self.touch(1))
        if o['spos'] == 'early': self.cond(sW, PW, self.side_load)
        self.mark('w1')
        self.p1()
        self.stamp()
        a('s_load_dword %s, s[20:21], 0x0' % sRv)
        self.flag_addrs(); self.side_apply(); self.srds(); self.calc_k0()
        a('s_mov_b32 %s, 1' % sInc)
        self.coop_gen(); self.coop_post()
        a('s_waitcnt vmcnt(0) lgkmcnt(0)')
        self.stamp()
        self.ready_check()
        self.arrive()
        self.poll(0, lambda: (self.w_edge_load(), self.gen_B(), self.w_special()))
        self.stamp()
        self.ex_load(0)
        self.p2na = 0
        if o['wpos'] in ('bar', 'barh'):
            a('s_barrier'); self.p2na = 4 if o['wpos'] == 'bar' else 2
            for i in range(self.p2na): self.w_dma1(i)
        else: self.coop_wait()
        self.coop_read(); self.addrs2()
        a('s_waitcnt vmcnt(%d)' % (4+self.p2na))
        self.w_edge()
        a('s_mov_b32 %s, 0x10000' % sInc)
        if o.get('da') == 'glob': self.cond(sId, 0, lambda: a('s_atomic_swap s56, s[20:21], 0x40'))
        self.p2()
        self.stamp()
        self.gen_M3()
        self.mark('w3a')
        a('s_waitcnt vmcnt(0)')
        self.stamp()
        self.arrive()
        self.poll(1, self.addrs3)
        if o['ts']: a('s_mov_b32 s%d, %s' % (sTS+26, sCnt))
        self.stamp()
        self.ex_load(1)
        self.p3()
        self.diag_end()
        a(end+':'); a('s_endpgm')
        t, self.tail = self.tail, []
        for f in t: f()
        if o['touch']: self.insert_stubs()
        hdr = ('; GFNet spectral filter, two heads: 2-D FFT as bf16 MFMA DFT stages in one persistent launch (generated)\n'
               '; @launch grid=(256,1,1) block=(512,1,1) lds=%d\n' % LDS_TOTAL)
        kd = '''.section .rodata,"a"
.p2align 6
.amdhsa_kernel %s
  .amdhsa_next_free_vgpr %d
  .amdhsa_next_free_sgpr 102
  .amdhsa_accum_offset %d
  .amdhsa_group_segment_fixed_size 0
  .amdhsa_kernarg_size 72
  .amdhsa_user_sgpr_count 2
  .amdhsa_user_sgpr_kernarg_segment_ptr 1
  .amdhsa_system_sgpr_workgroup_id_x 1
.end_amdhsa_kernel
''' % (name, NVGPR, (NVGPR+3)//4*4)
        return hdr + '.amdgcn_target "amdgcn-amd-amdhsa--gfx950"\n.text\n' + a.text() + kd

    def insert_stubs(self):
        a = self.a
        txt = '.amdgcn_target "amdgcn-amd-amdhsa--gfx950"\n.text\n' + a.text() + ''.join('stub_%d:\n' % k for k in range(16)) + 's_endpgm\n'
        open('pass1.s', 'w').write(txt)
        subprocess.check_call(['clang', '-x', 'assembler', '-target', 'amdgcn-amd-amdhsa', '-mcpu=gfx950', '-c', 'pass1.s', '-o', 'pass1.o'])
        dis = subprocess.check_output(['llvm-objdump', '-d', '--mcpu=gfx950', 'pass1.o']).decode()
        addrs = [int(m.group(1), 16) for m in re.finditer(r'// ([0-9A-F]{12}):', dis)]
        real = [i for i, x in enumerate(a.ins) if x.kind != 'none']
        assert len(addrs) == len(real) + 1, (len(addrs), len(real))
        size = {real[k]: addrs[k+1] - addrs[k] for k in range(len(real))}
        pos = ENTRY_OFF; nxt = 2048
        out = []; k = 0; prev = None; ez = False
        for i, x in enumerate(a.ins):
            if i in size:
                if prev is not None and prev.text.strip() == 's_mov_b64 exec, 0': ez = True
                if prev is not None and prev.text.strip() == 's_mov_b64 exec, -1': ez = False
                if pos >= nxt and k < 16 and not ez:
                    out.append(Ins('stub_%d:' % k)); out.append(Ins('s_cbranch_execz ret_%d' % (k >> 3)))
                    pos += 4; k += 1; nxt += 1024
                pos += size[i]; prev = x
                if x.op == 's_endpgm': self.hot_end = pos
            out.append(x)
        self.code_end = pos
        while k < 16:
            out.append(Ins('stub_%d:' % k)); out.append(Ins('s_branch ret_%d' % (k >> 3))); k += 1
        a.ins = out

if __name__ == '__main__':
    out = sys.argv[1]; opt = {}
    for kv in sys.argv[2:]:
        k, x = kv.split('=')
        opt[k] = {'True': True, 'False': False}.get(x, x.replace('+', ' '))
    g = Gen(**opt)
    s = g.build()
    assert g.a.verify() == 0
    open(out, 'w').write(s)
    print(out, 'vgprs', NVGPR, 'lds', LDS_TOTAL, 'nops', g.a.nops, 'lines', len(g.a.ins), 'hot end 0x%x code end 0x%x' % (getattr(g, 'hot_end', 0), getattr(g, 'code_end', 0)))
```

```python
import sys, struct, math, subprocess, re
from asmlib import Asm, Ins

NAME = 'concat_heads__spectral_gfnet__spectral_gfnet__prompt'
def f2u(x): return struct.unpack('<I', struct.pack('<f', x))[0]
def lit(x): return '0x%08x' % f2u(x)
def sigma(m): return (m & 1) | ((m >> 1) & 1) << 3 | ((m >> 2) & 1) << 1 | ((m >> 3) & 1) << 2 | (m & 16)

SC = 2.0**-22
SPIN_MAX = 0x4000
ENTRY_OFF = 0x300
PW = int([x for x in sys.argv if x.startswith('pw=')][0][3:]) if any(x.startswith('pw=') for x in sys.argv) else 1
R0 = 0
R1 = 33024
WL = 66048
SCR = WL + 8*4*1056
SCR_B = SCR + 36*256
TABL = SCR_B + 8192
CNT = TABL + 16384
LDS_TOTAL = CNT + 64
WS_U = (0, 8 << 20)
WS_FLAG = 16 << 20
WS_PROBE = 17 << 20
WS_TS = 72 << 20
class V: pass
_n = [0]
def alloc(n, align=1):
    b = (_n[0] + align - 1)//align*align
    _n[0] = b + n
    return b
V.tid = alloc(1); V.lane = alloc(1)
for nm in 'g n l16 TR Xoff Est Eld X0w X0r0 X0r1 X1w X1r X2w X2r WP WM zero cnt tmp'.split(): setattr(V, nm, alloc(1))
V.Ooff, V.X3w0, V.X3w1, V.X3r = V.Xoff, V.X0w, V.X0r0, V.X0r1
V.T = alloc(10)
V.O = alloc(16, 4)
V.DA = alloc(32, 4); V.DB = alloc(32, 4); V.L = V.DB
V.F16 = alloc(8, 4); V.M2 = alloc(16, 4)
V.F32 = alloc(32, 4); V.TW = alloc(32, 4); V.W = alloc(32, 4)
V.B = alloc(12, 4); V.Bp = alloc(8, 4); V.WF = alloc(4)
NVGPR = _n[0]
assert NVGPR <= 256, NVGPR
def v(i): return 'v%d' % i
def vr(i, n): return 'v[%d:%d]' % (i, i+n-1)
SX, SWR, SWI, SOUT, SDBG, SWS = 's[4:7]', 's[8:11]', 's[12:15]', 's[16:19]', 's[20:23]', 's[24:27]'
sP, sT, sW, sSB, sCB, sK0, sKP, sKM, sWp, sRv = ['s%d' % i for i in range(30, 40)]
sA, sB, sC, sD, sE, sF, sEst, sEld, sCnt, sSpec, sInc, sWL = ['s%d' % i for i in range(40, 52)]
sO = ['s52', 's53', 's54', 's55']
sTS = 56
sDP, sDM, sZ, sCh, sId = 's96', 's97', 's98', 's99', 's100'

class Gen:
    def __init__(self, **opt):
        self.o = dict(ldx='', ldw='', st1='sc1', st2='sc1', sto='nt', ld1='sc1', ld2='sc1', ts=False,
                      prio=True, nb='4', pnop='15', force='', wpos='postX1', touch=True, w1n='9', spos='mid', qw='1', qg='1', zg='3', xm='2', pb='17', wsoff='0', skip=True, pre=True, split=False, map='2', rep='1', slp='', sthr='')
        self.o.update(opt)
        self.a = Asm(); self.lab = 0; self.nts = 0; self.sid = -1; self.tail = []
    def label(self, p='L'):
        self.lab += 1
        return '%s_%d' % (p, self.lab)

    def mark(self, nm, drain=False):
        o = self.o; hit = False
        if o.get('clk') and nm in ('w1', 'g1a', 'x1', 'x2', 'w3a', 'end'):
            for op in ('s_memrealtime', 's_memtime'):
                self.a('%s s[%d:%d]' % (op, sTS+2*self.nts, sTS+2*self.nts+1)); self.nts += 1
            self.a('s_waitcnt lgkmcnt(0)')
        if o.get('fine') and nm[0] == 'f':
            self.a('s_memtime s[%d:%d]' % (sTS+2*self.nts, sTS+2*self.nts+1)); self.nts += 1; hit = True
        for key, reg in (('da', 58), ('db', 60)):
            if o.get(key) == nm:
                self.a('%s s[%d:%d]' % ('s_memtime' if 'cyc' in o else 's_memrealtime', reg, reg+1)); hit = True
        if hit and drain: self.a('s_waitcnt lgkmcnt(0)')
    def stamp(self):
        self.sid += 1
        self.mark('s%d' % self.sid)
        if not self.o['ts'] or self.o.get('clk') or self.o.get('fine'): return
        self.a('s_memrealtime s[%d:%d]' % (sTS+2*self.nts, sTS+2*self.nts+1)); self.nts += 1
    def diag_end(self):
        a = self.a; o = self.o
        self.mark('end')
        if not (o['ts'] or 'da' in o): return
        self.stamp(); a('s_waitcnt vmcnt(0)'); self.stamp()
        a('s_waitcnt lgkmcnt(0)')
        if 'da' in o:
            lp = self.label('dg')
            if o['da'] == 'glob':
                a('buffer_load_dword %s, %s, %s, 0 offen offset:64 sc1' % (v(V.tmp), v(V.zero), SDBG))
                a('s_waitcnt vmcnt(0)')
                a('v_readfirstlane_b32 s58, %s' % v(V.tmp)); a('s_mov_b32 s56, s58')
            a('s_sub_u32 %s, s60, s58' % sA)
            if 'db0' in o: a('s_add_u32 %s, %s, 250' % (sA, sA)); a('s_lshl_b32 %s, %s, 1' % (sA, sA))
            a('s_lshr_b32 %s, %s, 2' % (sA, sA) if 'cyc' in o else 's_lshl_b32 %s, %s, 2' % (sA, sA))
            for key, reg in (('dp', sP), ('dt', sT), ('db0', sId)):
                if key in o: a('s_cmp_eq_u32 %s, %s' % (reg, o[key])); a('s_cselect_b32 %s, %s, 0' % (sA, sA))
            a('s_min_u32 %s, %s, 9000' % (sA, sA))
            if 'enc' in o:
                a('s_and_b32 %s, s62, 7' % sB); a('s_mul_i32 %s, %s, 10000' % (sB, sB)); a('s_add_u32 %s, %s, %s' % (sA, sA, sB))
                a('s_bfe_u32 %s, s62, 0x30008' % sB); a('s_mul_i32 %s, %s, 100000' % (sB, sB)); a('s_add_u32 %s, %s, %s' % (sA, sA, sB))
            a('s_add_u32 %s, %s, 3000' % (sA, sA))
            a(lp+':')
            a('s_memrealtime s[28:29]'); a('s_waitcnt lgkmcnt(0)')
            a('s_sub_u32 %s, s28, s56' % sB); a('s_cmp_lt_u32 %s, %s' % (sB, sA)); a('s_cbranch_scc1 %s' % lp)
            return
        a('s_lshl_b32 %s, %s, 7' % (sA, sId)); a('s_add_u32 %s, %s, 0x%x' % (sA, sA, WS_TS))
        a('s_mov_b64 exec, 1')
        for i in range(14):
            a('v_mov_b32 %s, s%d' % (v(V.T), sTS+2*i))
            a('buffer_store_dword %s, %s, %s, %s offen offset:%d' % (v(V.T), v(V.zero), SWS, sA, 4*i))
            a('s_nop 1')

    def cond(self, reg, val, f):
        a = self.a; l = self.label('c')
        a('s_cmp_lg_u32 %s, %d' % (reg, val)); a('s_cbranch_scc1 %s' % l)
        f(); a(l+':')
    def ifelse(self, reg, val, feq, fne, eq_first=False):
        a = self.a; l0, l1 = self.label('ie'), self.label('iend')
        if eq_first:
            a('s_cmp_lg_u32 %s, %d' % (reg, val)); a('s_cbranch_scc1 %s' % l0)
            feq(); a('s_branch %s' % l1); a(l0+':'); fne()
        else:
            a('s_cmp_eq_u32 %s, %d' % (reg, val)); a('s_cbranch_scc1 %s' % l0)
            fne(); a('s_branch %s' % l1); a(l0+':'); feq()
        a(l1+':')
    def far(self, reg, val, feq, fne=None):
        a = self.a; l0, l1 = self.label('far'), self.label('back')
        a('s_cmp_eq_u32 %s, %d' % (reg, val)); a('s_cbranch_scc1 %s' % l0)
        if fne: fne()
        a(l1+':')
        def t():
            a(l0+':'); feq(); a('s_branch %s' % l1)
        self.tail.append(t)
    def touch(self, rnd, half=False):
        a = self.a
        a('s_mov_b64 exec, 0')
        if half:
            for k in range(3):
                a('s_cmp_eq_u32 %s, %d' % (sW, 4+k)); a('s_cbranch_scc1 stub_%d' % (2*k))
            a('s_branch stub_6')
        else:
            for k in range(7):
                a('s_cmp_eq_u32 %s, %d' % (sW, k)); a('s_cbranch_scc1 stub_%d' % (8*rnd+k))
            a('s_branch stub_%d' % (8*rnd+7))
        a('ret_%d:' % rnd)
        a('s_mov_b64 exec, -1')

    def prologue(self, end):
        a = self.a; T = V.T
        a('s_cmp_ge_u32 s2, 0x100')
        a('s_cbranch_scc1 %s' % end)
        if 'da' in self.o: a('s_memrealtime s[56:57]'); self.mark('start')
        a('s_bfe_u32 %s, s2, 0x10002' % sP)
        a('s_mul_i32 s3, %s, 24' % sP)
        a('s_load_dwordx2 s[4:5], s[0:1], s3')
        a('s_load_dwordx2 s[24:25], s[0:1], 0x40')
        a('s_load_dwordx2 s[20:21], s[0:1], 0x38')
        a('s_load_dwordx2 s[8:9], s[0:1], s3 offset:8')
        a('s_load_dwordx2 s[12:13], s[0:1], s3 offset:16')
        a('s_load_dwordx2 s[16:17], s[0:1], 0x30')
        self.stamp()
        a('v_lshrrev_b32 %s, 6, v0' % v(T))
        a('v_and_b32 %s, 63, v0' % v(V.lane))
        a('v_readfirstlane_b32 %s, %s' % (sW, v(T)))
        mp = self.o['map']
        a('s_and_b32 %s, s2, 3' % sA)
        if int(self.o['xm']): a('s_xor_b32 %s, %s, %s' % (sA, sA, self.o['xm']))
        if mp in ('0', '1'):
            a('s_bfe_u32 %s, s2, 0x10003' % sB)
            if mp == '0': a('s_lshl1_add_u32 %s, %s, %s' % (sA, sA, sB))
            else: a('s_lshl2_add_u32 %s, %s, %s' % (sA, sB, sA))
            a('s_lshr_b32 %s, s2, 4' % sB)
            a('s_lshl4_add_u32 %s, %s, %s' % (sT, sA, sB))
        else:
            a('s_lshr_b32 %s, s2, 3' % sB)
            a('s_lshl2_add_u32 %s, %s, %s' % (sT, sB, sA))
            a('s_lshr_b32 %s, %s, 4' % (sA, sT)); a('s_and_b32 %s, %s, 15' % (sB, sT))
        a('s_bfe_u32 %s, %s, 0x10001' % (sC, sB))
        a('s_lshl1_add_u32 %s, %s, %s' % (sCB, sA, sC))
        a('s_lshr_b32 %s, %s, 2' % (sSB, sB))
        a('s_and_b32 %s, %s, 1' % (sC, sB))
        a('s_lshl1_add_u32 %s, %s, %s' % (sSB, sSB, sC))
        a('s_mov_b32 s6, 0x400000'); a('s_mov_b32 s7, 0x20000')
        a('v_lshrrev_b32 %s, 4, %s' % (v(V.g), v(V.lane)))
        a('v_lshlrev_b32 %s, 4, %s' % (v(V.l16), v(V.lane)))
        a('v_and_b32 %s, 8, v0' % v(T))
        a('v_lshlrev_b32 %s, 11, %s' % (v(T), v(T)))
        a('v_lshl_add_u32 %s, %s, 20, %s' % (v(T), v(V.g), v(T)))
        a('v_and_b32 %s, 0x70, %s' % (v(T+1), v(V.l16)))
        a('v_add_u32 %s, %s, %s' % (v(V.Xoff), v(T), v(T+1)))
        a('s_lshl4_add_u32 %s, %s, %s' % (sA, sW, sSB))
        a('s_lshl4_add_u32 %s, %s, %s' % (sA, sA, sCB))
        a('s_lshl_b32 %s, %s, 7' % (sO[0], sA))
        for r in range(1, 4): a('s_add_u32 %s, %s, 0x%x' % (sO[r], sO[0], r*262144))
        a('s_lshl3_add_u32 %s, s2, %s' % (sId, sW))
        a('s_xor_b32 %s, %s, %d' % (sCh, sId, 8*int(self.o['qg'])+int(self.o['qw']))); a('s_and_b32 %s, %s, 0xffffff7f' % (sCh, sCh))
        a('s_xor_b32 %s, s2, %s' % (sZ, self.o['zg'])); a('s_and_b32 %s, %s, 0xffffffef' % (sZ, sZ))
    def srds(self):
        a = self.a
        a('s_mov_b32 s10, 2101248'); a('s_mov_b32 s11, 0x20000')
        a('s_mov_b32 s14, 2101248'); a('s_mov_b32 s15, 0x20000')
        a('s_mov_b32 s18, 0x800000'); a('s_mov_b32 s19, 0x20000')
    def srds0(self):
        a = self.a
        a('s_mov_b32 s22, 256'); a('s_mov_b32 s23, 0x20000')
        a('s_mov_b32 s26, 0x%x' % ((80 if self.o['ts'] else 18) << 20)); a('s_mov_b32 s27, 0x20000')
        a('v_and_b32 %s, 15, %s' % (v(V.n), v(V.lane)))
        a('v_mov_b32 %s, 0' % v(V.zero)); a('v_mov_b32 %s, %d' % (v(V.cnt), CNT))

    def probe_issue(self):
        a = self.a; NB = int(self.o['nb']); T = V.T
        def f():
            a('s_lshl_b32 %s, s2, 9' % sA); a('s_and_b32 %s, %s, 0x2000' % (sA, sA))
            a('s_mul_i32 %s, %s, 9' % (sA, sA)); a('s_add_u32 %s, %s, 0x%x' % (sA, sA, int(self.o['pb']) << 20))
            a('s_xor_b32 %s, %s, 0x2000' % (sB, sA))
            a('s_mov_b32 s26, 0x%x' % (18 << 20)); a('s_mov_b32 s27, 0x20000')
            a('s_mov_b64 exec, 3')
            a('v_mul_u32_u24 %s, 0x5080, %s' % (v(T), v(V.lane)))
            for k in range(2*NB): a('v_mov_b32 %s, 0' % v(V.DA+k))
            for side, base in enumerate((sA, sB)):
                for k in range(NB):
                    a('buffer_atomic_add %s, %s, %s, %s offen offset:%d sc0 sc1' % (v(V.DA+side*NB+k), v(T), SWS, base, k*0x300))
            a('s_mov_b64 exec, -1')
        def wg():
            self.cond(sCh, 0, f)
            a('s_barrier')
        def g():
            if self.o['pre']: self.cond(sW, PW, lambda: a('s_load_dword s95, s[20:21], 0x80'))
        a('s_lshr_b32 %s, %s, 3' % (sA, sCh))
        self.cond(sA, 0, wg)
        g()
    def probe_eval(self):
        a = self.a; NB = int(self.o['nb'])
        def f():
            a('s_lshr_b32 %s, s2, 1' % sC); a('s_and_b32 %s, %s, 8' % (sC, sC))
            a('s_waitcnt vmcnt(%d)' % (NB+4))
            a('s_nop %s' % self.o['pnop'])
            a('s_getreg_b32 %s, hwreg(HW_REG_IB_STS, 0, 4)' % sA)
            a('s_or_b32 %s, %s, 16' % (sA, sA)); a('s_lshl_b32 s94, %s, %s' % (sA, sC))
            a('s_atomic_or s94, s[20:21], 0x80')
        self.cond(sCh, 0, f)
    def clear_issue(self):
        a = self.a
        def f():
            a('s_lshr_b32 %s, s2, 4' % sA)
            a('s_lshl1_add_u32 %s, %s, %s' % (sA, sW, sA))
            a('s_lshl_b32 %s, %s, 13' % (sA, sA)); a('s_add_u32 %s, %s, 0x%x' % (sA, sA, WS_FLAG))
            for i in range(0, 8, 2): a('s_mov_b64 s[%d:%d], 0' % (84+i, 85+i))
            R = int(self.o['rep'])
            for i in range(8):
                for r in range(R-1): a('s_atomic_and s84, s[24:25], %s offset:0x%x' % (sA, (i << 10) + 256*(r+1)))
            for i in range(8): a('s_atomic_swap s%d, s[24:25], %s offset:0x%x glc' % (84+i, sA, i << 10))
        self.cond(sZ, 0, f)
    def clear_done(self):
        a = self.a
        def f():
            a('s_mov_b32 s94, 1'); a('s_waitcnt lgkmcnt(0)')
            a('s_atomic_add s94, s[20:21], 0x0')
        self.cond(sZ, 0, f)
    def side_load(self):
        self.a('buffer_load_dword %s, %s, %s, 0 offen offset:128 sc1' % (v(V.tmp), v(V.zero), SDBG))
    def side_wait(self):
        a = self.a
        def f():
            lp, ok = self.label('sw'), self.label('swok')
            a('s_mov_b32 %s, 0' % sCnt)
            a(lp+':')
            a('s_waitcnt vmcnt(0)')
            a('v_and_b32 %s, 0x1010, %s' % (v(V.T), v(V.tmp)))
            a('v_cmp_eq_u32 vcc, 0x1010, %s' % v(V.T))
            a('s_cbranch_vccnz %s' % ok)
            self.side_load()
            a('s_add_u32 %s, %s, 1' % (sCnt, sCnt))
            a('s_cmp_lt_u32 %s, 0x%x' % (sCnt, SPIN_MAX))
            a('s_cbranch_scc1 %s' % lp)
            a('s_waitcnt vmcnt(0)')
            a(ok+':')
            a('ds_write2_b32 %s, %s, %s offset0:0 offset1:1' % (v(V.cnt), v(V.tmp), v(V.zero)))
        self.cond(sW, PW, f)
    def side_use(self):
        a = self.a
        a('v_readfirstlane_b32 %s, %s' % (sA, v(V.tmp)))
        if self.o['ts']: a('s_mov_b32 s%d, %s' % (sTS+24, sA))
        if 'enc' in self.o: a('s_mov_b32 s62, %s' % sA)
        a('s_and_b32 %s, %s, 15' % (sB, sA)); a('s_bfe_u32 %s, %s, 0x40008' % (sA, sA))
        a('s_cmp_gt_u32 %s, %s' % (sA, sB))
        a('s_cselect_b32 %s, 0x2000, 0' % sCh)
        if self.o['force'] != '': a('s_mov_b32 %s, %d' % (sCh, int(self.o['force']) << 13))
        a('s_xor_b32 %s, %s, %s' % (sEst, sEst, sCh))
    def flag_addrs(self):
        a = self.a
        a('s_lshr_b32 %s, %s, 4' % (sB, sT))
        a('s_lshl_b32 %s, %s, 13' % (sA, sP)); a('s_add_u32 %s, %s, 0x%x' % (sA, sA, WS_FLAG))
        for dst, wp, gr in ((sF, sW, sB), (sE, sB, sW)):
            a('s_lshl4_add_u32 %s, %s, %s' % (sC, wp, gr)); a('s_lshl_b32 %s, %s, 10' % (sC, sC))
            a('s_add_u32 %s, %s, %s' % (dst, sC, sA))
        R = int(self.o['rep'])
        if R > 1:
            a('s_and_b32 %s, %s, %d' % (sC, sT, R-1)); a('s_lshl_b32 %s, %s, 8' % (sC, sC)); a('s_add_u32 %s, %s, %s' % (sE, sE, sC))
    def side_apply(self):
        for r in (sF, sE, sEld): self.a('s_xor_b32 %s, %s, %s' % (r, r, sCh))
    def ready_check(self):
        a = self.a; l0, l1 = self.label('rdy'), self.label('rdyok')
        a('s_cmp_ge_u32 %s, 16' % sRv)
        a('s_cbranch_scc1 %s' % l1)
        a('s_mov_b32 %s, 0' % sCnt)
        a(l0+':')
        a('buffer_load_dword %s, %s, %s, 0 offen sc1' % (v(V.tmp), v(V.zero), SDBG))
        a('s_add_u32 %s, %s, 1' % (sCnt, sCnt))
        a('s_cmp_gt_u32 %s, 0x%x' % (sCnt, SPIN_MAX))
        a('s_waitcnt vmcnt(0)')
        a('s_cbranch_scc1 %s' % l1)
        a('v_cmp_gt_u32 vcc, 16, %s' % v(V.tmp))
        a('s_cbranch_vccnz %s' % l0)
        a(l1+':')
    def arrive(self):
        for r in range(int(self.o['rep'])): self.a('s_atomic_add %s, s[24:25], %s offset:%d' % (sInc, sF, 256*r))
    def poll(self, ex, under=None):
        a = self.a; lp, ok = self.label('poll'), self.label('pollok')
        if under:
            a('s_mov_b32 %s, 0' % sRv)
            a('s_atomic_add %s, s[24:25], %s glc' % (sRv, sE))
            under()
            a('s_waitcnt lgkmcnt(0)')
            a('s_bitcmp1_b32 %s, %d' % (sRv, 4+16*ex))
            a('s_cbranch_scc1 %s' % ok)
        a('s_mov_b32 %s, 0' % sCnt)
        a(lp+':')
        a('s_mov_b32 %s, 0' % sRv)
        a('s_atomic_add %s, s[24:25], %s glc' % (sRv, sE))
        a('s_add_u32 %s, %s, 1' % (sCnt, sCnt))
        a('s_cmp_gt_u32 %s, 0x%x' % (sCnt, SPIN_MAX))
        a('s_waitcnt lgkmcnt(0)')
        a('s_cbranch_scc1 %s' % ok)
        if self.o['slp']:
            a('s_bitcmp1_b32 %s, %d' % (sRv, 4+16*ex))
            a('s_cbranch_scc1 %s' % ok)
            if self.o['sthr']:
                a('s_bfe_u32 %s, %s, 0x%x' % (sA, sRv, 0x50000+16*ex))
                a('s_cmp_ge_u32 %s, %s' % (sA, self.o['sthr'])); a('s_cbranch_scc1 %s' % lp)
            a('s_sleep %s' % self.o['slp'])
            a('s_branch %s' % lp)
        else:
            a('s_bitcmp0_b32 %s, %d' % (sRv, 4+16*ex))
            a('s_cbranch_scc1 %s' % lp)
        a(ok+':')
    def ex_addrs(self):
        a = self.a; T = V.T
        a('s_lshl_b32 %s, %s, 4' % (sB, sW)); a('s_xor_b32 %s, %s, %s' % (sB, sB, sT)); a('s_lshl_b32 %s, %s, 8' % (sB, sB))
        a('v_lshlrev_b32 %s, 4, %s' % (v(T), v(V.n)))
        a('v_lshl_add_u32 %s, %s, 10, %s' % (v(T), v(V.g), v(T)))
        a('v_xor_b32 %s, %s, %s' % (v(T), sB, v(T)))
        a('v_and_b32 %s, 0x6000, %s' % (v(T+1), v(T)))
        a('v_add_u32 %s, %s, %s' % (v(T), v(T), v(T+1)))
        a('v_lshl_add_u32 %s, %s, 18, %s' % (v(V.Est), v(V.g), v(T)))
        a('v_and_b32 %s, 0xdcff, %s' % (v(V.Eld), v(T)))
        a('s_bfe_u32 %s, %s, 0x10001' % (sA, sW)); a('s_xor_b32 %s, %s, %s' % (sA, sA, sP))
        a('s_bfe_u32 %s, %s, 0x10005' % (sC, sT)); a('s_xor_b32 %s, %s, %s' % (sC, sC, sP))
        a('s_lshl_b32 %s, %s, 7' % (sEst, sW)); a('s_add_u32 %s, %s, %s' % (sEst, sEst, sA)); a('s_lshl_b32 %s, %s, 13' % (sEst, sEst))
        a('s_lshl3_add_u32 %s, %s, %s' % (sEld, sT, sC)); a('s_lshl_b32 %s, %s, 13' % (sEld, sEld))

    def trig(self, x, re, im, conj_re=None, conj_im=None):
        a = self.a; c, s = V.T+8, V.T+9
        a('v_cos_f32 %s, %s' % (v(c), v(x)))
        a('v_sin_f32 %s, %s' % (v(s), v(x)))
        if getattr(self, 'fill', None): self.fill(); self.fill = None
        a('v_cvt_pk_bf16_f32 %s, %s, %s' % (v(re), v(c), v(s)))
        a('v_cvt_pk_bf16_f32 %s, -%s, %s' % (v(im), v(s), v(c)))
        if conj_re is not None:
            a('v_xor_b32 %s, 0x80000000, %s' % (v(conj_re), v(re)))
            a('v_xor_b32 %s, 0x8000, %s' % (v(conj_im), v(im)))
    def ladder(self, x, step, regs):
        a = self.a
        for k, r in enumerate(regs):
            if k < len(regs)-1: self.fill = lambda: a('v_add_f32 %s, %s, %s' % (v(x), v(x), v(step)))
            self.trig(x, *r)
    def gen_F16(self):
        a = self.a; T = V.T
        a('v_cvt_f32_u32 %s, %s' % (v(T), v(V.n)))
        a('v_cvt_f32_u32 %s, %s' % (v(T+1), v(V.g)))
        a('v_mul_f32 %s, %s, %s' % (v(T), lit(1/16), v(T)))
        a('v_mul_f32 %s, 4.0, %s' % (v(T+1), v(T+1)))
        a('v_mul_f32 %s, %s, %s' % (v(T+2), v(T), v(T+1)))
        self.ladder(T+2, T, [(V.F16+r, V.F16+4+r) for r in range(4)])
    def gen_M2(self):
        a = self.a; T = V.T
        def normal():
            a('v_cvt_f32_u32 %s, %s' % (v(T+2), sW))
            a('v_fmac_f32 %s, %s, %s' % (v(T), lit(1/256), v(T+2)))
            a('v_mul_f32 %s, %s, %s' % (v(T+2), v(T), v(T+1)))
            self.ladder(T+2, T, [(V.M2+r, V.M2+4+r, V.M2+8+r, V.M2+12+r) for r in range(4)])
        def w0():
            a('v_lshrrev_b32 %s, 1, %s' % (v(T), v(V.n)))
            a('v_cvt_f32_u32 %s, %s' % (v(T), v(T)))
            a('v_lshlrev_b32 %s, 31, %s' % (v(T+3), v(V.n)))
            a('v_add_f32 %s, 0.5, %s' % (v(T+4), v(T)))
            a('v_xor_b32 %s, %s, %s' % (v(T+3), lit(1/16), v(T+3)))
            a('v_cmp_ne_u32 vcc, 1, %s' % v(V.n))
            a('v_mul_f32 %s, %s, %s' % (v(T), v(T), v(T+3)))
            a('v_mul_f32 %s, %s, %s' % (v(T+4), v(T+4), v(T+3)))
            a('v_cndmask_b32 %s, 0.5, %s, vcc' % (v(T), v(T)))
            for ts in range(2):
                d = T+4*ts
                a('v_mul_f32 %s, %s, %s' % (v(T+2), v(d), v(T+1)))
                self.ladder(T+2, d, [(V.M2+8*ts+r, V.M2+8*ts+4+r) for r in range(4)])
        self.ifelse(sW, 0, w0, normal)
    def gen_M3(self):
        a = self.a; T = V.T
        a('v_cvt_f32_u32 %s, %s' % (v(T), v(V.n)))
        a('v_mul_f32 %s, %s, %s' % (v(T+1), lit(1/256), v(T)))
        a('v_mul_f32 %s, %s, %s' % (v(T), lit(1/16), v(T)))
        def normal():
            a('v_lshl_add_u32 %s, %s, 6, %s' % (v(T+2), v(V.g), sW))
            a('v_cvt_f32_u32 %s, %s' % (v(T+2), v(T+2)))
            a('v_mul_f32 %s, %s, %s' % (v(T+2), v(T+2), v(T+1)))
            self.ladder(T+2, T, [(V.M2+r, V.M2+4+r, V.M2+8+r, V.M2+12+r) for r in range(4)])
        def w0():
            a('v_lshlrev_b32 %s, 5, %s' % (v(T+2), v(V.g)))
            a('v_cvt_f32_u32 %s, %s' % (v(T+2), v(T+2)))
            a('v_mul_f32 %s, 0.5, %s' % (v(T), v(T)))
            a('v_mul_f32 %s, %s, %s' % (v(T+2), v(T+2), v(T+1)))
            regs = []
            for k in range(4):
                b = V.M2+8*(k & 1)+2*(k >> 1)
                regs.append((b, b+4, b+1, b+5))
            self.ladder(T+2, T, regs)
            a('s_mov_b64 exec, 0xffff')
            a('v_lshlrev_b32 %s, 15, %s' % (v(T+2), v(V.n)))
            a('v_and_b32 %s, 0x8000, %s' % (v(T+2), v(T+2)))
            a('v_or_b32 %s, 0x3f80, %s' % (v(V.M2+1), v(T+2)))
            a('v_lshlrev_b32 %s, 16, %s' % (v(V.M2+5), v(V.M2+1)))
            a('s_mov_b64 exec, -1')
        self.ifelse(sW, 0, w0, normal)
    def sigma_lane(self, dst):
        a = self.a; t = V.T+7
        a('v_and_b32 %s, 17, %s' % (v(dst), v(V.lane)))
        a('v_bfe_u32 %s, %s, 2, 2' % (v(t), v(V.lane)))
        a('v_lshl_add_u32 %s, %s, 1, %s' % (v(dst), v(t), v(dst)))
        a('v_and_b32 %s, 2, %s' % (v(t), v(V.lane)))
        a('v_lshl_add_u32 %s, %s, 2, %s' % (v(dst), v(t), v(dst)))
    def coop_gen(self):
        a = self.a; T = V.T; X = V.DA
        self.sigma_lane(T)
        a('v_lshrrev_b32 %s, 5, %s' % (v(T+1), v(V.lane)))
        a('v_lshlrev_b32 %s, 7, %s' % (v(T+2), v(T+1)))
        a('v_lshl_add_u32 %s, %s, 1, %s' % (v(T+2), v(T), v(T+2)))
        a('s_and_b32 %s, %s, 2' % (sD, sKP)); a('s_sub_u32 %s, %s, %s' % (sD, sWL, sD))
        a('v_add_u32 %s, %s, %s' % (v(V.WP), sD, v(T+2)))
        a('s_add_u32 %s, %s, %d' % (sD, sD, 1024-832))
        a('v_sub_u32 %s, %s, %s' % (v(V.WM), sD, v(T+2)))
        a('v_cvt_f32_u32 %s, %s' % (v(T), v(T)))
        a('s_mul_i32 %s, %s, 4' % (sA, sW)); a('s_lshr_b32 %s, 0x75643120, %s' % (sA, sA)); a('s_and_b32 %s, %s, 7' % (sA, sA)); a('s_lshl_b32 %s, %s, 2' % (sA, sA))
        a('v_lshl_add_u32 %s, %s, 1, %s' % (v(T+1), v(T+1), sA))
        a('v_mul_f32 %s, %s, %s' % (v(T), lit(1/2048), v(T)))
        a('v_cvt_f32_u32 %s, %s' % (v(T+1), v(T+1)))
        a('v_mul_f32 %s, %s, %s' % (v(T+2), v(T+1), v(T)))
        for e in range(2):
            a('v_cos_f32 %s, %s' % (v(T+5), v(T+2)))
            a('v_sin_f32 %s, %s' % (v(T+6), v(T+2)))
            a('v_rcp_f32 %s, %s' % (v(T+5), v(T+5)))
            a('v_mul_f32 %s, %s, %s' % (v(T+3), lit(64.0), v(T+2)))
            a('v_mul_f32 %s, %s, %s' % (v(X+4+e), v(T+6), v(T+5)))
            a('v_fma_f32 %s, %s, %s, 1.0' % (v(T+5), v(X+4+e), v(X+4+e)))
            a('v_rcp_f32 %s, %s' % (v(T+6), v(T+5)))
            a('v_mul_f32 %s, -2.0, %s' % (v(T+4), v(X+4+e)))
            a('v_fma_f32 %s, -%s, %s, 1.0' % (v(T+5), v(T+5), v(T+6)))
            a('v_fmac_f32 %s, %s, %s' % (v(T+6), v(T+5), v(T+6)))
            a('v_mul_f32 %s, %s, %s' % (v(X+6+e), v(T+6), v(T+4)))
            if e == 0: self.fill = lambda: a('v_add_f32 %s, %s, %s' % (v(T+2), v(T+2), v(T)))
            self.trig(T+3, X+e, X+2+e)
        a('s_lshr_b32 %s, %s, 1' % (sA, sW)); a('s_lshl_b32 %s, %s, 7' % (sA, sA))
        a('s_and_b32 %s, %s, 1' % (sB, sW)); a('s_add_u32 %s, %s, %s' % (sA, sA, sB))
        a('s_lshl3_add_u32 %s, %s, %d' % (sA, sA, TABL))
        a('v_add_u32 %s, %s, %s' % (v(T), sA, v(V.l16)))
        for k in range(4): a('ds_write_b64 %s, %s offset:%d' % (v(T), vr(X+2*k, 2), 4096*k))
    def coop_post(self):
        a = self.a
        a('v_mov_b32 %s, 1' % v(V.T+1))
        a('ds_add_u32 %s, %s offset:4' % (v(V.cnt), v(V.T+1)))
    def coop_wait(self):
        a = self.a; T = V.T; lp, ok = self.label('cw'), self.label('cwok')
        a('s_mov_b32 %s, 0' % sCnt)
        a(lp+':')
        a('ds_read_b32 %s, %s offset:4' % (v(T), v(V.cnt)))
        a('s_add_u32 %s, %s, 1' % (sCnt, sCnt))
        a('s_cmp_gt_u32 %s, 0x%x' % (sCnt, SPIN_MAX*8))
        a('s_waitcnt lgkmcnt(0)')
        a('s_cbranch_scc1 %s' % ok)
        a('v_cmp_gt_u32 vcc, 0x200, %s' % v(T))
        a('s_cbranch_vccnz %s' % lp)
        a(ok+':')
    def coop_read(self):
        a = self.a; T = V.T
        a('v_add_u32 %s, %d, %s' % (v(T), TABL, v(V.l16)))
        for k in range(16): a('ds_read_b128 %s, %s offset:%d' % (vr(V.F32+4*k, 4), v(T), 1024*k))
    def calc_k0(self):
        a = self.a
        a('s_lshr_b32 %s, %s, 4' % (sA, sT)); a('s_and_b32 %s, %s, 15' % (sB, sT))
        a('s_lshl4_add_u32 %s, %s, %s' % (sK0, sB, sA))
        a('s_and_b32 %s, %s, 12' % (sC, sB)); a('s_bfe_u32 %s, %s, 0x10001' % (sD, sB)); a('s_add_u32 %s, %s, %s' % (sC, sC, sD))
        a('s_and_b32 %s, %s, 1' % (sD, sB)); a('s_lshl1_add_u32 %s, %s, %s' % (sC, sD, sC)); a('s_lshl_b32 %s, %s, 3' % (sC, sC))
        a('s_cmp_eq_u32 %s, 0' % sA); a('s_cselect_b32 %s, %s, %s' % (sK0, sC, sK0))
        a('s_cmp_eq_u32 %s, 0' % sT); a('s_cselect_b32 %s, 7, 8' % sA)
        a('s_lshl_b32 %s, %s, %s' % (sKP, sW, sA)); a('s_add_u32 %s, %s, %s' % (sKP, sKP, sK0))
        a('s_sub_u32 %s, 0x800, %s' % (sKM, sKP))
        a('s_cmp_eq_u32 %s, 0' % sKP)
        a('s_cselect_b32 %s, 0x400, %s' % (sKM, sKM)); a('s_cselect_b32 %s, 1, 0' % sSpec)
        a('s_mul_i32 %s, %s, 1026' % (sKP, sKP)); a('s_mul_i32 %s, %s, 1026' % (sKM, sKM))
        a('s_mul_i32 %s, %s, 4224' % (sWL, sW)); a('s_add_u32 %s, %s, %d' % (sWL, sWL, WL))
        a('s_and_b32 %s, %s, 2' % (sA, sKP))
        a('s_add_u32 %s, %s, %s' % (sDP, sKP, sA)); a('s_add_u32 %s, %s, %s' % (sDM, sKM, sA))
    def gen_B(self):
        a = self.a; T = V.T; c, s = T+8, T+9
        a('v_lshrrev_b32 %s, 1, %s' % (v(T), v(V.n)))
        a('v_cvt_f32_u32 %s, %s' % (v(T+2), v(V.g)))
        a('v_and_b32 %s, 1, %s' % (v(T+3), v(V.n)))
        a('v_add_f32 %s, %s, %s' % (v(T+2), v(T+2), v(T+2)))
        def normal():
            a('v_lshl_add_u32 %s, %s, 8, %s' % (v(T+1), v(T), sK0))
            a('v_lshlrev_b32 %s, 4, %s' % (v(T+4), v(T+3)))
            a('v_cvt_f32_u32 %s, %s' % (v(T+1), v(T+1)))
            a('v_lshlrev_b32 %s, 31, %s' % (v(T+6), v(V.n)))
            a('v_cvt_f32_u32 %s, %s' % (v(T+3), v(T+3)))
            a('v_mul_f32 %s, %s, %s' % (v(T+1), lit(1/2048), v(T+1)))
            a('s_brev_b32 %s, 1' % sA)
            a('v_lshrrev_b32 %s, %s, %s' % (v(T+4), v(T+4), sA))
            a('v_mul_f32 %s, %s, %s' % (v(T+5), v(T+1), v(T+2)))
            a('v_fmac_f32 %s, %s, %s' % (v(T+5), lit(0.25), v(T+3)))
            for sbb in range(2):
                if sbb == 0: self.fill = lambda: a('v_add_f32 %s, %s, %s' % (v(T+5), v(T+5), v(T+1)))
                else: self.fill = lambda: a('v_cvt_f32_u32 %s, %s' % (v(T), v(T)))
                self.trig(T+5, V.B+2*sbb, V.B+6+2*sbb)
                a('v_xor_b32 %s, %s, %s' % (v(V.B+2*sbb+1), v(V.B+2*sbb), v(T+4)))
                a('v_xor_b32 %s, %s, %s' % (v(V.B+6+2*sbb+1), v(V.B+6+2*sbb), v(T+4)))
            a('v_lshl_add_u32 %s, %s, 9, %s' % (v(T+1), v(V.g), sK0))
            a('v_xor_b32 %s, %s, %s' % (v(T), v(T), v(T+6)))
            a('v_cvt_f32_u32 %s, %s' % (v(T+1), v(T+1)))
            a('v_mul_f32 %s, 0.5, %s' % (v(T+5), v(T+3)))
            a('v_mul_f32 %s, %s, %s' % (v(T+1), lit(1/2048), v(T+1)))
            a('v_fmac_f32 %s, %s, %s' % (v(T+5), v(T+1), v(T)))
            for ii in range(2):
                a('v_cos_f32 %s, %s' % (v(c), v(T+5)))
                a('v_sin_f32 %s, %s' % (v(s), v(T+5)))
                a('v_mul_f32 %s, %s, %s' % (v(c), lit(SC), v(c)))
                a('v_mul_f32 %s, %s, %s' % (v(s), lit(SC), v(s)))
                if ii == 0: a('v_fmac_f32 %s, %s, %s' % (v(T+5), lit(0.125), v(T)))
                a('v_cvt_pk_bf16_f32 %s, %s, %s' % (v(T+1), v(c), v(s)))
                a('v_cvt_pk_bf16_f32 %s, -%s, %s' % (v(T+2), v(s), v(c)))
                a('v_xor_b32 %s, %s, %s' % (v(V.Bp+2*ii), v(T+1), v(T+6)))
                a('v_xor_b32 %s, %s, %s' % (v(V.Bp+4+2*ii), v(T+2), v(T+6)))
                a('v_xor_b32 %s, %s, %s' % (v(V.Bp+2*ii+1), v(T+2), v(T+6)))
                a('v_xor_b32 %s, 0x80008000, %s' % (v(V.Bp+4+2*ii+1), v(V.Bp+2*ii)))
        def special():
            a('v_cvt_f32_u32 %s, %s' % (v(T+1), v(T)))
            a('v_mul_f32 %s, %s, %s' % (v(T+1), lit(1/16), v(T+1)))
            a('v_lshlrev_b32 %s, 4, %s' % (v(T+4), v(T+3)))
            a('v_cmp_eq_u32 s[84:85], 0, %s' % v(T))
            a('v_and_b32 %s, 1, %s' % (v(T+6), v(T)))
            a('v_cmp_eq_u32 s[86:87], 1, %s' % v(T+6))
            a('v_mul_f32 %s, %s, %s' % (v(T+5), v(T+1), v(T+2)))
            for sbb in range(2):
                a('v_cos_f32 %s, %s' % (v(c), v(T+5)))
                a('v_sin_f32 %s, %s' % (v(s), v(T+5)))
                a('v_mul_f32 %s, 2.0, %s' % (v(c), v(c)))
                a('v_mul_f32 %s, -2.0, %s' % (v(s), v(s)))
                a('v_cndmask_b32 %s, %s, 1.0, s[84:85]' % (v(c), v(c)))
                a('v_cndmask_b32 %s, %s, %s, s[84:85]' % (v(s), v(s), '-1.0' if sbb else '1.0'))
                for src, dst in ((c, V.B+2*sbb), (s, V.B+6+2*sbb)):
                    a('v_cvt_pk_bf16_f32 %s, %s, 0' % (v(T+7), v(src)))
                    a('v_lshlrev_b32 %s, %s, %s' % (v(T+7), v(T+4), v(T+7)))
                    a('v_cndmask_b32 %s, %s, 0, s[86:87]' % (v(dst), v(T+7)))
                    a('v_cndmask_b32 %s, 0, %s, s[86:87]' % (v(dst+1), v(T+7)))
                a('v_add_f32 %s, %s, %s' % (v(T+5), v(T+5), v(T+1)))
            a('v_cmp_eq_u32 s[88:89], 0, %s' % v(V.g))
            a('v_cmp_eq_u32 s[90:91], 1, %s' % v(T+3))
            a('v_lshlrev_b32 %s, 31, %s' % (v(T+6), v(T)))
            a('v_xor_b32 %s, %s, %s' % (v(T+6), lit(SC), v(T+6)))
            a('v_mov_b32 %s, %s' % (v(T+4), lit(SC)))
            a('v_mul_f32 %s, %s, %s' % (v(T+5), v(T+1), v(T+2)))
            for ii in range(2):
                a('v_cos_f32 %s, %s' % (v(c), v(T+5)))
                a('v_sin_f32 %s, %s' % (v(s), v(T+5)))
                a('v_mul_f32 %s, %s, %s' % (v(c), lit(2*SC), v(c)))
                a('v_mul_f32 %s, %s, %s' % (v(s), lit(-2*SC), v(s)))
                if ii == 0:
                    a('v_cndmask_b32 %s, %s, %s, s[88:89]' % (v(c), v(c), v(T+4)))
                    a('v_cndmask_b32 %s, %s, %s, s[88:89]' % (v(s), v(s), v(T+6)))
                a('v_cvt_pk_bf16_f32 %s, %s, %s' % (v(T+7), v(s), v(c)))
                if ii: a('v_cndmask_b32 %s, 0, %s, s[90:91]' % (v(T+7), v(T+7)))
                else: a('v_cndmask_b32 %s, %s, 0, s[90:91]' % (v(T+7), v(T+7)))
                a('v_mov_b32 %s, 0' % v(V.Bp+2*ii)); a('v_mov_b32 %s, %s' % (v(V.Bp+2*ii+1), v(T+7)))
                a('v_mov_b32 %s, %s' % (v(V.Bp+4+2*ii), v(T+7))); a('v_mov_b32 %s, 0' % v(V.Bp+4+2*ii+1))
                a('v_add_f32 %s, %s, %s' % (v(T+5), v(T+5), v(T+1)))
        self.far(sT, 0, special, normal)
        for d, r in ((4, 0), (5, 1), (10, 6), (11, 7)): a('v_mov_b32 %s, %s' % (v(V.B+d), v(V.B+r)))

    def wq(self, rho): return (rho & 1) + 8*((rho >> 1) & 1) + 4*((rho >> 2) & 1)
    def w_dma1(self, i):
        a = self.a
        srd, so = [(SWR, sDP), (SWI, sDP), (SWR, sDM), (SWI, sDM)][i]
        a('s_add_u32 m0, %s, %d' % (sWL, 1056*i))
        a('buffer_load_dwordx4 %s, %s, %s offen %s lds' % (v(V.l16), srd, so, self.o['ldw']))
    def w_dma(self):
        for i in range(4): self.w_dma1(i)
    def w_edge_load(self):
        a = self.a; T = V.T
        a('s_mov_b64 exec, 15')
        a('v_mov_b32 %s, %s' % (v(T), sKP)); a('v_mov_b32 %s, %s' % (v(T+1), sKM))
        a('s_mov_b64 vcc, 10')
        a('v_cndmask_b32 %s, %s, %s, vcc' % (v(T), v(T), v(T+1)))
        a('v_and_b32 %s, 2, %s' % (v(T+1), v(V.lane)))
        a('v_lshl_add_u32 %s, %s, 9, %s' % (v(T), v(T+1), v(T)))
        a('buffer_load_short_d16_hi %s, %s, %s, 0 offen' % (v(V.WF), v(T), SWR))
        a('buffer_load_short_d16_hi %s, %s, %s, 0 offen' % (v(V.WF+1), v(T), SWI))
        a('s_mov_b64 exec, -1')
    def w_edge_rl(self):
        for l in range(4):
            for im in range(2): self.a('v_readlane_b32 s%d, %s, %d' % (84+2*l+im, v(V.WF+im), l))
    def w_edge(self):
        a = self.a; T = V.T
        self.w_edge_rl()
        q = ((84, 86, 'add'), (85, 87, 'sub'), (90, 88, 'add'), (91, 89, 'sub'))
        for i, (x, y, op) in enumerate(q): a('v_mov_b32 %s, s%d' % (v(T+i), y))
        for i, (x, y, op) in enumerate(q): a('v_%s_f32 %s, s%d, %s' % (op, v(V.WF+i), x, v(T+i)))
        for i in range(4): a('v_mul_f32 %s, 0.5, %s' % (v(V.WF+i), v(V.WF+i)))
        a('s_mov_b64 s[92:93], 1')
    def w_read1(self, rho, im, dst=None, swap=False):
        dst = V.W if dst is None else dst
        if rho < 8: ad, off = V.WP, 64*self.wq(rho) + (2112 if swap else 0)
        else: ad, off = V.WM, 64*(13-self.wq(rho)) + (0 if swap else 2112)
        return 'ds_read_u16_d16_hi %s, %s offset:%d' % (v(dst+16*im+rho), v(ad), off+1056*im)
    def w_fix(self, half):
        return ['v_cndmask_b32 %s, %s, %s, s[92:93]' % (v(V.W+8*half+16*im), v(V.W+8*half+16*im), v(V.WF+2*half+im)) for im in range(2)]
    def w_special(self):
        a = self.a; T = V.T; X = V.DA
        def f():
            for sw, dst in ((False, V.W), (True, X)):
                for rho in range(16):
                    for im in range(2): a(self.w_read1(rho, im, dst, sw))
            a('s_waitcnt lgkmcnt(0) vmcnt(0)')
            self.w_edge_rl()
            a('s_mov_b64 exec, 1')
            for r in (V.W+16, V.W+24, X+16, X+24): a('v_mov_b32 %s, 0' % v(r))
            a('v_mov_b32 %s, s90' % v(V.W+8)); a('v_mov_b32 %s, s88' % v(X+8))
            a('s_mov_b64 exec, -1')
            for i in range(32):
                a('v_add_f32 %s, %s, %s' % (v(V.W+i), v(V.W+i), v(X+i)))
                if (i & 15) < 8: a('v_fma_f32 %s, -2.0, %s, %s' % (v(X+i), v(X+i), v(V.W+i)))
                else: a('v_fma_f32 %s, 2.0, %s, -%s' % (v(X+i), v(X+i), v(V.W+i)))
            a('v_add_u32 %s, %d, %s' % (v(T+1), SCR_B, v(V.l16)))
            for i in range(8): a('ds_write_b128 %s, %s offset:%d' % (v(T+1), vr(X+4*i, 4), 1024*i))
        self.far(sSpec, 1, f)

    def addrs1(self):
        a = self.a; T = V.T
        a('v_lshrrev_b32 %s, 3, %s' % (v(T), v(V.lane)))
        a('v_and_b32 %s, 0x30, %s' % (v(T+1), v(V.l16)))
        a('v_lshl_add_u32 %s, %s, 6, %s' % (v(T), v(T), v(T+1)))
        a('v_and_b32 %s, 4, %s' % (v(T+1), v(V.lane)))
        a('v_lshl_add_u32 %s, %s, 1, %s' % (v(V.TR), v(T+1), v(T)))
        a('v_xor_b32 %s, %s, %s' % (v(T), sSB, v(V.lane)))
        a('v_and_b32 %s, 1, %s' % (v(T), v(T)))
        a('v_mul_u32_u24 %s, 16448, %s' % (v(T), v(T)))
        a('v_lshl_add_u32 %s, %s, 12, %s' % (v(T), v(V.g), v(T)))
        a('v_lshl_add_u32 %s, %s, 2, %s' % (v(T), v(T+1), v(T)))
        a('v_and_b32 %s, 0x60, %s' % (v(T+1), v(V.TR)))
        a('s_lshr_b32 %s, %s, 1' % (sWp, sW)); a('s_and_b32 %s, %s, 1' % (sA, sW))
        a('s_lshl2_add_u32 %s, %s, %s' % (sWp, sA, sWp)); a('s_lshl_b32 %s, %s, 7' % (sWp, sWp))
        a('v_add3_u32 %s, %s, %s, %s' % (v(V.X0w), v(T), v(T+1), sWp))
        a('s_lshl_b32 %s, %s, 10' % (sA, sW))
        a('s_sub_u32 %s, 0x4000, %s' % (sB, sA))
        a('s_cmp_eq_u32 %s, 0' % sW); a('s_cselect_b32 %s, 0x2000, %s' % (sB, sB))
        a('v_add_u32 %s, %s, %s' % (v(V.X0r0), sA, v(V.TR)))
        a('v_add_u32 %s, %s, %s' % (v(V.X0r1), sB, v(V.TR)))
    def addrs2(self):
        a = self.a; T = V.T
        a('v_lshlrev_b32 %s, 4, %s' % (v(T), v(V.n)))
        a('v_lshl_add_u32 %s, %s, 13, %s' % (v(T), v(V.g), v(T)))
        a('s_lshl_b32 %s, %s, 9' % (sA, sW)); a('s_add_u32 %s, %s, %d' % (sA, sA, R1))
        a('v_add_u32 %s, %s, %s' % (v(V.X1w), sA, v(T)))
        a('s_lshl_b32 %s, %s, 12' % (sA, sW)); a('s_add_u32 %s, %s, %d' % (sA, sA, R1))
        a('v_add_u32 %s, %s, %s' % (v(V.X1r), sA, v(V.TR)))
        a('v_and_b32 %s, 16, %s' % (v(T), v(V.l16)))
        a('v_and_b32 %s, 2, %s' % (v(T+1), v(V.lane)))
        a('v_bfe_u32 %s, %s, 2, 1' % (v(T+2), v(V.lane)))
        a('v_add_u32 %s, %s, %s' % (v(T+1), v(T+1), v(T+2)))
        a('v_mul_u32_u24 %s, 8224, %s' % (v(T+1), v(T+1)))
        a('v_bfe_u32 %s, %s, 3, 2' % (v(T+2), v(V.lane)))
        a('v_lshl_add_u32 %s, %s, 11, %s' % (v(T), v(T+2), v(T)))
        a('v_and_b32 %s, 32, %s' % (v(T+2), v(V.lane)))
        a('v_add3_u32 %s, %s, %s, %s' % (v(T), v(T), v(T+1), v(T+2)))
        a('v_add_u32 %s, %s, %s' % (v(V.X2w), sWp, v(T)))
        a('s_and_b32 %s, %s, 1' % (sA, sW)); a('s_lshr_b32 %s, %s, 2' % (sB, sW)); a('s_lshl1_add_u32 %s, %s, %s' % (sA, sB, sA)); a('s_lshl_b32 %s, %s, 11' % (sA, sA))
        a('s_and_b32 %s, %s, 2' % (sB, sW)); a('s_mul_i32 %s, %s, 8224' % (sB, sB)); a('s_add_u32 %s, %s, %s' % (sA, sA, sB))
        a('v_add_u32 %s, %s, %s' % (v(V.X2r), sA, v(V.TR)))
    def addrs3(self):
        a = self.a; T = V.T
        a('v_and_b32 %s, 16, %s' % (v(T), v(V.lane)))
        a('v_and_b32 %s, 33, %s' % (v(T+1), v(V.lane)))
        a('v_lshl_add_u32 %s, %s, 5, %s' % (v(T), v(T+1), v(T)))
        a('v_and_b32 %s, 8, %s' % (v(T+1), v(V.lane)))
        a('v_lshl_add_u32 %s, %s, 9, %s' % (v(T), v(T+1), v(T)))
        a('v_and_b32 %s, 2, %s' % (v(T+1), v(V.lane)))
        a('v_and_b32 %s, 4, %s' % (v(T+2), v(V.lane)))
        a('v_mul_u32_u24 %s, 4104, %s' % (v(T+1), v(T+1)))
        a('v_mul_u32_u24 %s, 4112, %s' % (v(T+2), v(T+2)))
        a('v_add3_u32 %s, %s, %s, %s' % (v(T), v(T), v(T+1), v(T+2)))
        a('s_sub_u32 %s, 16, %s' % (sC, sW))
        a('s_cmp_eq_u32 %s, 0' % sW); a('s_cselect_b32 %s, 8, %s' % (sC, sC))
        for kl, dst in ((sW, V.X3w0), (sC, V.X3w1)):
            a('s_lshr_b32 %s, %s, 2' % (sA, kl)); a('s_and_b32 %s, %s, 1' % (sB, kl)); a('s_lshl1_add_u32 %s, %s, %s' % (sA, sA, sB))
            a('s_and_b32 %s, %s, 2' % (sB, kl)); a('s_lshl2_add_u32 %s, %s, %s' % (sA, sB, sA))
            a('s_lshl_b32 %s, %s, 6' % (sA, sA)); a('s_add_u32 %s, %s, %d' % (sA, sA, R1))
            a('v_add_u32 %s, %s, %s' % (v(dst), sA, v(T)))
        a('s_and_b32 %s, %s, 1' % (sA, sW)); a('s_mul_i32 %s, %s, 8208' % (sA, sA))
        a('s_and_b32 %s, %s, 2' % (sB, sW)); a('s_mul_i32 %s, %s, 8224' % (sB, sB)); a('s_add_u32 %s, %s, %s' % (sA, sA, sB))
        a('s_and_b32 %s, %s, 4' % (sB, sW)); a('s_lshl_b32 %s, %s, 10' % (sB, sB)); a('s_add_u32 %s, %s, %s' % (sA, sA, sB))
        a('s_add_u32 %s, %s, %d' % (sA, sA, R1))
        a('v_add_u32 %s, %s, %s' % (v(V.X3r), sA, v(V.TR)))
        a('v_and_b32 %s, 0x70, %s' % (v(T), v(V.l16)))
        a('v_lshlrev_b32 %s, 1, %s' % (v(V.Ooff), v(V.Xoff)))
        a('v_sub_u32 %s, %s, %s' % (v(V.Ooff), v(V.Ooff), v(T)))

    def mf16(self, d, A, B): return 'v_mfma_f32_16x16x32_bf16 %s, %s, %s, 0' % (vr(d, 4), vr(A, 4), vr(B, 4))
    def cvt(self, d, lo, hi): return 'v_cvt_pk_bf16_f32 %s, %s, %s' % (v(d), v(lo), v(hi))
    def mf32(self, d, i, pl, dataA):
        M = vr(V.F32+16*pl+4*i, 4); X = vr(V.O+4*i, 4)
        A, B = (X, M) if dataA else (M, X)
        D = vr(d+16*pl, 16)
        return 'v_mfma_f32_32x32x16_bf16 %s, %s, %s, %s' % (D, A, B, D if i else '0')
    def emit(self, L):
        for x in L: self.a(x)

    def p1(self):
        a = self.a; O, L, D, P = V.O, V.L, V.DA, V.DB
        for r in range(4):
            a('s_waitcnt vmcnt(%d)' % (3-r))
            if r == 3:
                self.stamp()
                if self.o['spos'] == 'mid': self.cond(sW, PW, self.side_load)
            for t in range(4): a('v_mov_b32 %s, %s' % (v(O+4*t+r), v(L+4*r+t)))
        for t in range(4):
            a(self.mf16(D+4*t, V.F16, O+4*t)); a(self.mf16(D+16+4*t, V.F16+4, O+4*t))
        if self.o['spos'] == 'late': self.cond(sW, PW, self.side_load)
        def sp():
            self.srds()
            a('s_mov_b32 %s, 0' % sDP); a('s_mov_b32 %s, %d' % (sDM, 1024*1026)); a('s_mov_b32 %s, %d' % (sWL, WL))
            self.w_dma()
        a('s_or_b32 %s, %s, %s' % (sA, sT, sW))
        self.far(sA, 0, sp)
        for r in range(4):
            a(self.cvt(P+4*r, D+r, D+4+r)); a(self.cvt(P+4*r+2, D+16+r, D+20+r))
        for r in range(4):
            a(self.cvt(P+4*r+1, D+8+r, D+12+r)); a(self.cvt(P+4*r+3, D+24+r, D+28+r))
            a('ds_write_b128 %s, %s offset:%d' % (v(V.X0w), vr(P+4*r, 4), 1024*r))
        self.mark('g1a')
        self.side_wait()
        self.mark('g1b')
        a('s_waitcnt lgkmcnt(0)')
        a('s_barrier')
        for ti in range(4):
            for ii in range(2):
                a('ds_read_b64_tr_b16 %s, %s offset:%d' % (vr(O+4*ti+2*ii, 2), v(V.X0r1 if ti >> 1 else V.X0r0), (ti & 1)*16448+ii*512))
        a('ds_read_b32 %s, %s' % (v(V.tmp), v(V.cnt)))
        for ti in range(4):
            a('s_waitcnt lgkmcnt(%d)' % (7-2*ti))
            a(self.mf16(D+4*ti, V.M2+8*(ti >> 1), O+4*ti)); a(self.mf16(D+16+4*ti, V.M2+8*(ti >> 1)+4, O+4*ti))
        a('s_waitcnt lgkmcnt(0)')
        self.side_use()
        for r in range(4): a('s_add_u32 %s, %s, 0x%x' % (sO[r], sEst, WS_U[0] + r*65536))
        st = lambda i: a('buffer_store_dwordx4 %s, %s, %s, %s offen %s' % (vr(P+4*i, 4), v(V.Est), SWS, sO[i], self.o['st1']))
        def normal():
            for i in range(4):
                for k in range(4): a(self.cvt(P+4*i+2*(k & 1)+(k >> 1), D+4*k+i, D+16+4*k+i))
                st(i)
        def w0():
            for i in range(4):
                ts, eb = i >> 1, i & 1
                for tau in range(2):
                    for sg in range(2):
                        x = 4*(2*ts+tau)+2*eb+sg
                        a(self.cvt(P+4*i+2*tau+sg, D+x, D+16+x))
                st(i)
        self.ifelse(sW, 0, w0, normal)

    def stage(self, src, dst, dataA, kind, prio, pre=None):
        a = self.a; T = V.T
        if self.o['prio']: a('s_setprio %d' % prio)
        G = []
        for i in range(4):
            g = []
            if kind == 'tw':
                for st in range(3):
                    for r in range(4):
                        rho = 4*i+r; x, y = v(src+rho), v(src+16+rho)
                        g.append('v_fmac_f32 %s, %s, %s' % ((y, v(V.TW+16+rho), x) if st == 1 else (x, v(V.TW+rho), y)))
                for r in range(4): g.append(self.cvt(V.O+4*i+r, src+4*i+r, src+16+4*i+r))
            else:
                t = T+4*(i & 1)
                for r in range(4):
                    rho = 4*i+r
                    g.append('v_mul_f32 %s, %s, %s' % (v(t+r), v(src+rho), v(V.W+rho)))
                for r in range(4):
                    rho = 4*i+r
                    if rho < 8: g.append('v_fma_f32 %s, -%s, %s, %s' % (v(t+r), v(src+16+rho), v(V.W+16+rho), v(t+r)))
                    else: g.append('v_fmac_f32 %s, %s, %s' % (v(t+r), v(src+16+rho), v(V.W+16+rho)))
                for r in range(4):
                    rho = 4*i+r
                    g.append('v_mul_f32 %s, %s, %s' % (v(src+16+rho), v(src+16+rho), v(V.W+rho)))
                for r in range(4):
                    rho = 4*i+r
                    if rho < 8: g.append('v_fmac_f32 %s, %s, %s' % (v(src+16+rho), v(src+rho), v(V.W+16+rho)))
                    else: g.append('v_fma_f32 %s, -%s, %s, %s' % (v(src+16+rho), v(src+rho), v(V.W+16+rho), v(src+16+rho)))
                for r in range(4): g.append(self.cvt(V.O+4*i+r, src+16+4*i+r, t+r))
            G.append(g)
        W = [[self.w_read1(4*i+r, im) for im in range(2) for r in range(4)] for i in range(4)] if kind == 'w' else None
        if kind == 'w':
            a('s_waitcnt vmcnt(2)')
            self.emit(W[0]); self.emit(W[1])
        for i in range(4):
            g = list(G[i]); n = len(g)
            ins = {}
            if i:
                ins.setdefault(2, []).append(self.mf32(dst, i-1, 0, dataA))
                ins.setdefault(2+n//2, []).append(self.mf32(dst, i-1, 1, dataA))
            if kind == 'w':
                a('s_waitcnt lgkmcnt(%d)' % (8 if i < 3 else 0))
                if i in (0, 2): self.emit(self.w_fix(i >> 1))
                if i < 2:
                    if i == 0: ins.setdefault(3, []).append('s_waitcnt vmcnt(0)')
                    for k, x in enumerate(W[i+2]): ins.setdefault(3+2*k, []).append(x)
            for k, x in enumerate(g):
                self.emit(ins.get(k, []))
                a(x)
        a(self.mf32(dst, 3, 0, dataA)); a(self.mf32(dst, 3, 1, dataA))

    def p2(self):
        a = self.a; O, L, D, T = V.O, V.L, V.DA, V.T
        na = self.p2na
        for cbb in range(2):
            b = L+12*cbb
            a('s_waitcnt vmcnt(%d)' % (na+3-2*cbb))
            a('v_mov_b32 %s, %s' % (v(b+8), v(b))); a('v_mov_b32 %s, %s' % (v(b+9), v(b+1)))
            a('s_waitcnt vmcnt(%d)' % (na+2-2*cbb))
            if cbb: self.stamp(); self.mark('f0')
            for jj2 in (1, 0):
                ti = 2*cbb+jj2; op = b+2 if jj2 else b+6; mo = 0 if jj2 else 2
                a(self.mf16(D+4*ti, V.B+mo, op)); a(self.mf16(D+16+4*ti, V.B+6+mo, op))
        for cbb in range(2):
            for k1b in range(2):
                P = O+4*(2*cbb+k1b)
                for jj2 in (1, 0):
                    for pl in range(2):
                        x = D+16*pl+4*(2*cbb+jj2)+2*k1b
                        a(self.cvt(P+2*pl+jj2, x, x+1))
                a('ds_write_b128 %s, %s offset:%d' % (v(V.X1w), vr(P, 4), k1b*4096+cbb*256))
        self.mark('f1')
        a('s_waitcnt lgkmcnt(0)')
        self.mark('f2', True)
        a('s_barrier')
        self.mark('x1', True)
        if self.o['prio']: a('s_setprio 3')
        for i in range(4):
            for ii in range(2):
                a('ds_read_b64_tr_b16 %s, %s offset:%d' % (vr(O+4*i+2*ii, 2), v(V.X1r), ii*1024+(i & 1)*512+(i >> 1)*2048))
        rows = {'postX1': (0, 1, 2, 3), 'barh': (2, 3), 'bar': ()}[self.o['wpos']]
        for i in range(4):
            if i < len(rows): self.w_dma1(rows[i])
            a('s_waitcnt lgkmcnt(%d)' % (6-2*i))
            a(self.mf32(V.DA, i, 0, True)); a(self.mf32(V.DA, i, 1, True))
        self.mark('f3')
        self.stage(V.DA, V.DB, False, 'tw', 2)
        self.mark('f4', True)
        self.far(sSpec, 1, self.pw_special, lambda: self.stage(V.DB, V.DA, True, 'w', 1))
        self.mark('f5')
        self.stage(V.DA, V.DB, True, 'tw', 0)
        self.mark('f6')
        D = V.DB
        for r in range(4): a('s_add_u32 %s, %s, 0x%x' % (sO[r], sEst, WS_U[1] + r*65536))
        rho = lambda jj3, jj1, jj2, c: 4*(2*jj3+jj1)+2*jj2+c
        for pl in range(2):
            for k in range(4):
                c, jj1 = k >> 1, k & 1
                P = V.DA+4*k
                for jj3 in range(2):
                    a(self.cvt(P+2*pl+jj3, D+16*pl+rho(jj3, jj1, 0, c), D+16*pl+rho(jj3, jj1, 1, c)))
                if pl: a('ds_write_b128 %s, %s offset:%d' % (v(V.X2w), vr(P, 4), c*64+jj1*1024))
        self.mark('f7'); self.mark('x2')
        a('s_waitcnt lgkmcnt(0)')
        self.mark('f8', True)
        a('s_barrier')
        for ti in range(4):
            for ii in range(2):
                a('ds_read_b64_tr_b16 %s, %s offset:%d' % (vr(O+4*ti+2*ii, 2), v(V.X2r), ii*512+(ti & 1)*1024+(ti >> 1)*8224))
        D = V.DA; P = V.DB
        for ti in range(4):
            a('s_waitcnt lgkmcnt(%d)' % (6-2*ti))
            a(self.mf16(D+4*ti, V.Bp, O+4*ti)); a(self.mf16(D+16+4*ti, V.Bp+4, O+4*ti))
        self.mark('f9')
        for q in range(4):
            cbb, sbb = q >> 1, q & 1
            for jj1 in range(2):
                for hf in range(2):
                    x = 4*(2*cbb+jj1)+2*sbb+hf
                    a(self.cvt(P+4*q+2*jj1+hf, D+x, D+16+x))
            a('buffer_store_dwordx4 %s, %s, %s, %s offen %s' % (vr(P+4*q, 4), v(V.Est), SWS, sO[q], self.o['st2']))
        self.mark('f10')

    def pw_special(self):
        a = self.a; T = V.T; O = V.O; C = V.DB; X = V.DA
        self.sigma_lane(T)
        a('v_lshrrev_b32 %s, 5, %s' % (v(T+1), v(V.lane)))
        a('v_lshlrev_b32 %s, 9, %s' % (v(T+1), v(T+1)))
        a('v_lshl_add_u32 %s, %s, 2, %s' % (v(T+2), v(T), v(T+1)))
        a('v_add_u32 %s, %d, %s' % (v(T+2), SCR, v(T+2)))
        a('v_add_u32 %s, 128, %s' % (v(T+3), v(T+2)))
        a('v_sub_u32 %s, 32, %s' % (v(T+4), v(T)))
        a('v_lshrrev_b32 %s, 5, %s' % (v(T+5), v(T+4)))
        a('v_and_b32 %s, 31, %s' % (v(T+4), v(T+4)))
        a('v_lshlrev_b32 %s, 2, %s' % (v(T+4), v(T+4)))
        a('v_lshl_add_u32 %s, %s, 8, %s' % (v(T+4), v(T+5), v(T+4)))
        a('v_sub_u32 %s, %s, %s' % (v(T+4), v(T+4), v(T+1)))
        a('v_add_u32 %s, %d, %s' % (v(T+4), SCR + 2*256, v(T+4)))
        a('v_add_u32 %s, 128, %s' % (v(T+5), v(T+4)))
        a('v_add_u32 %s, %d, %s' % (v(T+6), SCR_B, v(V.l16)))
        qs = lambda rho: sigma(8*(rho >> 2) + (rho & 3))
        for pl in range(2):
            for rho in range(0, 16, 2):
                a('ds_write2st64_b32 %s, %s, %s offset0:%d offset1:%d' % (v(T+2+pl), v(C+16*pl+rho), v(C+16*pl+rho+1), qs(rho), qs(rho+1)))
            a('ds_write_b32 %s, %s offset:%d' % (v(T+2+pl), v(C+16*pl), 32*256))
        t0, t1 = v(T+8), v(T+9)
        for half in range(2):
            for pl in range(2):
                for k in range(0, 8, 2):
                    r_ = 8*half+k
                    a('ds_read2st64_b32 %s, %s offset0:%d offset1:%d' % (vr(X+8*pl+k, 2), v(T+4+pl), 29-qs(r_), 29-qs(r_+1)))
                for k in range(2):
                    a('ds_read_b128 %s, %s offset:%d' % (vr(X+16+8*pl+4*k, 4), v(T+6), 1024*(4*pl+2*half+k)))
            a('s_waitcnt lgkmcnt(0)')
            for k in range(8):
                r_ = 8*half+k
                x, y = v(C+r_), v(C+16+r_); ar, ai = v(V.W+r_), v(V.W+16+r_)
                p, q_ = v(X+k), v(X+8+k); br, bi = v(X+16+k), v(X+24+k)
                ng, ps = ('', '-') if half else ('-', '')
                a('v_mul_f32 %s, %s, %s' % (t0, x, ar))
                a('v_mul_f32 %s, %s, %s' % (t1, y, ar))
                a('v_fma_f32 %s, %s%s, %s, %s' % (t0, ng, y, ai, t0))
                a('v_fma_f32 %s, %s%s, %s, %s' % (t1, ps, x, ai, t1))
                a('v_fmac_f32 %s, %s, %s' % (t0, p, br))
                a('v_fma_f32 %s, -%s, %s, %s' % (t1, q_, br, t1))
                a('v_fma_f32 %s, %s%s, %s, %s' % (t0, ps, q_, bi, t0))
                a('v_fma_f32 %s, %s%s, %s, %s' % (t1, ps, p, bi, t1))
                a(self.cvt(O+r_, T+9, T+8))
        for i in range(4): a(self.mf32(V.DA, i, 0, True)); a(self.mf32(V.DA, i, 1, True))

    def p3(self):
        a = self.a; O, L, D, P = V.O, V.L, V.DA, V.DB
        a('s_lshl4_add_u32 %s, %s, %s' % (sA, sW, sSB)); a('s_lshl1_add_u32 %s, %s, %s' % (sA, sA, sP))
        a('s_lshl4_add_u32 %s, %s, %s' % (sA, sA, sCB)); a('s_lshl_b32 %s, %s, 7' % (sO[0], sA))
        for r in range(1, 4): a('s_add_u32 %s, %s, 0x%x' % (sO[r], sO[0], r*524288))
        def normal():
            for i in range(4):
                a('s_waitcnt vmcnt(%d)' % (3-i))
                for sel in range(2):
                    for col in range(2): a('v_mov_b32 %s, %s' % (v(O+4*(2*sel+col)+i), v(L+4*i+2*col+sel)))
        def w0():
            for i in range(4):
                ts, eb = i >> 1, i & 1
                a('s_waitcnt vmcnt(%d)' % (3-i))
                for col in range(2):
                    for sg in range(2): a('v_mov_b32 %s, %s' % (v(O+4*(2*ts+col)+2*eb+sg), v(L+4*i+2*col+sg)))
        self.ifelse(sW, 0, w0, normal, True)
        self.stamp()
        for ti in range(4):
            a(self.mf16(D+4*ti, O+4*ti, V.M2+8*(ti >> 1))); a(self.mf16(D+16+4*ti, O+4*ti, V.M2+8*(ti >> 1)+4))
        for ti in range(4):
            for pl in range(2):
                for k in range(2):
                    x = D+16*pl+4*ti+2*k
                    a(self.cvt(P+4*ti+2*pl+k, x, x+1))
            a('ds_write_b128 %s, %s offset:%d' % (v(V.X3w1 if ti >> 1 else V.X3w0), vr(P+4*ti, 4), (ti & 1)*2048))
        a('s_waitcnt lgkmcnt(0)')
        a('s_barrier')
        for t in range(4):
            for ii in range(2):
                a('ds_read_b64_tr_b16 %s, %s offset:%d' % (vr(O+4*t+2*ii, 2), v(V.X3r), ii*512+t*1024))
        for t in range(4):
            a('s_waitcnt lgkmcnt(%d)' % (6-2*t))
            a(self.mf16(D+4*t, V.F16, O+4*t)); a(self.mf16(D+16+4*t, V.F16+4, O+4*t))
        for t in range(2):
            for r in range(4): a(self.cvt(P+4*r+t, D+16+4*t+r, D+4*t+r))
        for r in range(4):
            for t in (2, 3): a(self.cvt(P+4*r+t, D+16+4*t+r, D+4*t+r))
            a('buffer_store_dwordx4 %s, %s, %s, %s offen %s' % (vr(P+4*r, 4), v(V.Ooff), SOUT, sO[r], self.o['sto']))

    def ex_load(self, ex):
        a = self.a
        a('s_add_u32 %s, %s, 0x%x' % (sA, sEld, WS_U[ex]))
        for q in range(4):
            d = V.L+12*(q >> 1)+4*(q & 1) if ex == 0 else V.L+4*q
            a('buffer_load_dwordx4 %s, %s, %s, %s offen offset:%d %s' % (vr(d, 4), v(V.Eld), SWS, sA, 256*q, self.o['ld1' if ex == 0 else 'ld2']))

    def build(self):
        a = self.a; o = self.o
        name = NAME + '_kernel'
        a.raw('.globl %s\n.p2align 12\n.p2align 8\n.type %s,@function\n%s:' % (name, name, name))
        end = self.label('end')
        self.prologue(end)
        work1 = lambda: (self.srds0(), self.addrs1(), self.gen_F16())
        if o['split']:
            a('s_lshr_b32 %s, %s, 2' % (sSpec, sW))
            self.ifelse(sSpec, 1, lambda: self.touch(0, True), work1, True)
        elif o['skip']:
            a('s_cmp_eq_u32 %s, 0' % sCh); a('s_cbranch_scc1 ret_0')
            self.touch(0)
        elif o['touch']: self.touch(0)
        a('s_waitcnt lgkmcnt(0)')
        self.mark('karg')
        if int(o['wsoff']):
            a('s_add_u32 s24, s24, 0x%x' % (int(o['wsoff']) << 20)); a('s_addc_u32 s25, s25, 0')
        self.probe_issue(); self.clear_issue()
        for r in range(4):
            a('buffer_load_dwordx4 %s, %s, %s, %s offen %s' % (vr(V.L+4*r, 4), v(V.Xoff), SX, sO[r], o['ldx']))
        self.probe_eval()
        if o['split']: self.cond(sSpec, 1, work1)
        else: work1()
        self.gen_M2(); self.ex_addrs()
        self.clear_done()
        if o['touch']: self.cond(sT, 0, lambda: self.touch(1))
        if o['spos'] == 'early': self.cond(sW, PW, self.side_load)
        self.mark('w1')
        self.p1()
        self.stamp()
        a('s_load_dword %s, s[20:21], 0x0' % sRv)
        self.flag_addrs(); self.side_apply(); self.srds(); self.calc_k0()
        a('s_mov_b32 %s, 1' % sInc)
        self.coop_gen(); self.coop_post()
        a('s_waitcnt vmcnt(0) lgkmcnt(0)')
        self.stamp()
        self.ready_check()
        self.arrive()
        self.poll(0, lambda: (self.w_edge_load(), self.gen_B(), self.w_special()))
        self.stamp()
        self.ex_load(0)
        self.p2na = 0
        if o['wpos'] in ('bar', 'barh'):
            a('s_barrier'); self.p2na = 4 if o['wpos'] == 'bar' else 2
            for i in range(self.p2na): self.w_dma1(i)
        else: self.coop_wait()
        self.coop_read(); self.addrs2()
        a('s_waitcnt vmcnt(%d)' % (4+self.p2na))
        self.w_edge()
        a('s_mov_b32 %s, 0x10000' % sInc)
        if o.get('da') == 'glob': self.cond(sId, 0, lambda: a('s_atomic_swap s56, s[20:21], 0x40'))
        self.p2()
        self.stamp()
        self.gen_M3()
        self.mark('w3a')
        a('s_waitcnt vmcnt(0)')
        self.stamp()
        self.arrive()
        self.poll(1, self.addrs3)
        if o['ts']: a('s_mov_b32 s%d, %s' % (sTS+26, sCnt))
        self.stamp()
        self.ex_load(1)
        self.p3()
        self.diag_end()
        a(end+':'); a('s_endpgm')
        t, self.tail = self.tail, []
        for f in t: f()
        if o['touch']: self.insert_stubs()
        hdr = ('; GFNet spectral filter, two heads: 2-D FFT as bf16 MFMA DFT stages in one persistent launch (generated)\n'
               '; @launch grid=(256,1,1) block=(512,1,1) lds=%d\n' % LDS_TOTAL)
        kd = '''.section .rodata,"a"
.p2align 6
.amdhsa_kernel %s
  .amdhsa_next_free_vgpr %d
  .amdhsa_next_free_sgpr 102
  .amdhsa_accum_offset %d
  .amdhsa_group_segment_fixed_size 0
  .amdhsa_kernarg_size 72
  .amdhsa_user_sgpr_count 2
  .amdhsa_user_sgpr_kernarg_segment_ptr 1
  .amdhsa_system_sgpr_workgroup_id_x 1
.end_amdhsa_kernel
''' % (name, NVGPR, (NVGPR+3)//4*4)
        return hdr + '.amdgcn_target "amdgcn-amd-amdhsa--gfx950"\n.text\n' + a.text() + kd

    def insert_stubs(self):
        a = self.a
        txt = '.amdgcn_target "amdgcn-amd-amdhsa--gfx950"\n.text\n' + a.text() + ''.join('stub_%d:\n' % k for k in range(16)) + 's_endpgm\n'
        open('pass1.s', 'w').write(txt)
        subprocess.check_call(['clang', '-x', 'assembler', '-target', 'amdgcn-amd-amdhsa', '-mcpu=gfx950', '-c', 'pass1.s', '-o', 'pass1.o'])
        dis = subprocess.check_output(['llvm-objdump', '-d', '--mcpu=gfx950', 'pass1.o']).decode()
        addrs = [int(m.group(1), 16) for m in re.finditer(r'// ([0-9A-F]{12}):', dis)]
        real = [i for i, x in enumerate(a.ins) if x.kind != 'none']
        assert len(addrs) == len(real) + 1, (len(addrs), len(real))
        size = {real[k]: addrs[k+1] - addrs[k] for k in range(len(real))}
        pos = ENTRY_OFF; nxt = 2048
        out = []; k = 0; prev = None; ez = False
        for i, x in enumerate(a.ins):
            if i in size:
                if prev is not None and prev.text.strip() == 's_mov_b64 exec, 0': ez = True
                if prev is not None and prev.text.strip() == 's_mov_b64 exec, -1': ez = False
                if pos >= nxt and k < 16 and not ez:
                    out.append(Ins('stub_%d:' % k)); out.append(Ins('s_cbranch_execz ret_%d' % (k >> 3)))
                    pos += 4; k += 1; nxt += 1024
                pos += size[i]; prev = x
                if x.op == 's_endpgm': self.hot_end = pos
            out.append(x)
        self.code_end = pos
        while k < 16:
            out.append(Ins('stub_%d:' % k)); out.append(Ins('s_branch ret_%d' % (k >> 3))); k += 1
        a.ins = out

if __name__ == '__main__':
    out = sys.argv[1]; opt = {}
    for kv in sys.argv[2:]:
        k, x = kv.split('=')
        opt[k] = {'True': True, 'False': False}.get(x, x.replace('+', ' '))
    g = Gen(**opt)
    s = g.build()
    assert g.a.verify() == 0
    open(out, 'w').write(s)
    print(out, 'vgprs', NVGPR, 'lds', LDS_TOTAL, 'nops', g.a.nops, 'lines', len(g.a.ins), 'hot end 0x%x code end 0x%x' % (getattr(g, 'hot_end', 0), getattr(g, 'code_end', 0)))
```

```python
import sys, struct, math, subprocess, re
from asmlib import Asm, Ins

NAME = 'concat_heads__spectral_gfnet__spectral_gfnet__prompt'
def f2u(x): return struct.unpack('<I', struct.pack('<f', x))[0]
def lit(x): return '0x%08x' % f2u(x)
def sigma(m): return (m & 1) | ((m >> 1) & 1) << 3 | ((m >> 2) & 1) << 1 | ((m >> 3) & 1) << 2 | (m & 16)

SC = 2.0**-22
SPIN_MAX = 0x4000
ENTRY_OFF = 0x300
PW = int([x for x in sys.argv if x.startswith('pw=')][0][3:]) if any(x.startswith('pw=') for x in sys.argv) else 1
R0 = 0
R1 = 33024
WL = 66048
SCR = WL + 8*4*1056
SCR_B = SCR + 36*256
TABL = SCR_B + 8192
CNT = TABL + 16384
LDS_TOTAL = CNT + 64
WS_U = (0, 8 << 20)
WS_FLAG = 16 << 20
WS_PROBE = 17 << 20
WS_TS = 72 << 20
class V: pass
_n = [0]
def alloc(n, align=1):
    b = (_n[0] + align - 1)//align*align
    _n[0] = b + n
    return b
V.tid = alloc(1); V.lane = alloc(1)
for nm in 'g n l16 TR Xoff Est Eld X0w X0r0 X0r1 X1w X1r X2w X2r WP WM zero cnt tmp'.split(): setattr(V, nm, alloc(1))
V.Ooff, V.X3w0, V.X3w1, V.X3r = V.Xoff, V.X0w, V.X0r0, V.X0r1
V.T = alloc(10)
V.O = alloc(16, 4)
V.DA = alloc(32, 4); V.DB = alloc(32, 4); V.L = V.DB
V.F16 = alloc(8, 4); V.M2 = alloc(16, 4)
V.F32 = alloc(32, 4); V.TW = alloc(32, 4); V.W = alloc(32, 4)
V.B = alloc(12, 4); V.Bp = alloc(8, 4); V.WF = alloc(4)
NVGPR = _n[0]
assert NVGPR <= 256, NVGPR
def v(i): return 'v%d' % i
def vr(i, n): return 'v[%d:%d]' % (i, i+n-1)
SX, SWR, SWI, SOUT, SDBG, SWS = 's[4:7]', 's[8:11]', 's[12:15]', 's[16:19]', 's[20:23]', 's[24:27]'
sP, sT, sW, sSB, sCB, sK0, sKP, sKM, sWp, sRv = ['s%d' % i for i in range(30, 40)]
sA, sB, sC, sD, sE, sF, sEst, sEld, sCnt, sSpec, sInc, sWL = ['s%d' % i for i in range(40, 52)]
sO = ['s52', 's53', 's54', 's55']
sTS = 56
sDP, sDM, sZ, sCh, sId = 's96', 's97', 's98', 's99', 's100'

class Gen:
    def __init__(self, **opt):
        self.o = dict(ldx='', ldw='', st1='sc1', st2='sc1', sto='nt', ld1='sc1', ld2='sc1', ts=False,
                      prio=True, nb='4', pnop='15', force='', wpos='postX1', touch=True, w1n='9', spos='mid', qw='1', qg='1', zg='3', xm='2', pb='17', wsoff='0', skip=True, pre=True, split=False, map='2', rep='1', slp='', sthr='')
        self.o.update(opt)
        self.a = Asm(); self.lab = 0; self.nts = 0; self.sid = -1; self.tail = []
    def label(self, p='L'):
        self.lab += 1
        return '%s_%d' % (p, self.lab)

    def mark(self, nm, drain=False):
        o = self.o; hit = False
        if o.get('clk') and nm in ('w1', 'g1a', 'x1', 'x2', 'w3a', 'end'):
            for op in ('s_memrealtime', 's_memtime'):
                self.a('%s s[%d:%d]' % (op, sTS+2*self.nts, sTS+2*self.nts+1)); self.nts += 1
            self.a('s_waitcnt lgkmcnt(0)')
        if o.get('fine') and nm[0] == 'f':
            self.a('s_memtime s[%d:%d]' % (sTS+2*self.nts, sTS+2*self.nts+1)); self.nts += 1; hit = True
        for key, reg in (('da', 58), ('db', 60)):
            if o.get(key) == nm:
                self.a('%s s[%d:%d]' % ('s_memtime' if 'cyc' in o else 's_memrealtime', reg, reg+1)); hit = True
        if hit and drain: self.a('s_waitcnt lgkmcnt(0)')
    def stamp(self):
        self.sid += 1
        self.mark('s%d' % self.sid)
        if not self.o['ts'] or self.o.get('clk') or self.o.get('fine'): return
        self.a('s_memrealtime s[%d:%d]' % (sTS+2*self.nts, sTS+2*self.nts+1)); self.nts += 1
    def diag_end(self):
        a = self.a; o = self.o
        self.mark('end')
        if not (o['ts'] or 'da' in o): return
        self.stamp(); a('s_waitcnt vmcnt(0)'); self.stamp()
        a('s_waitcnt lgkmcnt(0)')
        if 'da' in o:
            lp = self.label('dg')
            if o['da'] == 'glob':
                a('buffer_load_dword %s, %s, %s, 0 offen offset:64 sc1' % (v(V.tmp), v(V.zero), SDBG))
                a('s_waitcnt vmcnt(0)')
                a('v_readfirstlane_b32 s58, %s' % v(V.tmp)); a('s_mov_b32 s56, s58')
            a('s_sub_u32 %s, s60, s58' % sA)
            if 'db0' in o: a('s_add_u32 %s, %s, 250' % (sA, sA)); a('s_lshl_b32 %s, %s, 1' % (sA, sA))
            a('s_lshr_b32 %s, %s, 2' % (sA, sA) if 'cyc' in o else 's_lshl_b32 %s, %s, 2' % (sA, sA))
            for key, reg in (('dp', sP), ('dt', sT), ('db0', sId)):
                if key in o: a('s_cmp_eq_u32 %s, %s' % (reg, o[key])); a('s_cselect_b32 %s, %s, 0' % (sA, sA))
            a('s_min_u32 %s, %s, 9000' % (sA, sA))
            if 'enc' in o:
                a('s_and_b32 %s, s62, 7' % sB); a('s_mul_i32 %s, %s, 10000' % (sB, sB)); a('s_add_u32 %s, %s, %s' % (sA, sA, sB))
                a('s_bfe_u32 %s, s62, 0x30008' % sB); a('s_mul_i32 %s, %s, 100000' % (sB, sB)); a('s_add_u32 %s, %s, %s' % (sA, sA, sB))
            a('s_add_u32 %s, %s, 3000' % (sA, sA))
            a(lp+':')
            a('s_memrealtime s[28:29]'); a('s_waitcnt lgkmcnt(0)')
            a('s_sub_u32 %s, s28, s56' % sB); a('s_cmp_lt_u32 %s, %s' % (sB, sA)); a('s_cbranch_scc1 %s' % lp)
            return
        a('s_lshl_b32 %s, %s, 7' % (sA, sId)); a('s_add_u32 %s, %s, 0x%x' % (sA, sA, WS_TS))
        a('s_mov_b64 exec, 1')
        for i in range(14):
            a('v_mov_b32 %s, s%d' % (v(V.T), sTS+2*i))
            a('buffer_store_dword %s, %s, %s, %s offen offset:%d' % (v(V.T), v(V.zero), SWS, sA, 4*i))
            a('s_nop 1')

    def cond(self, reg, val, f):
        a = self.a; l = self.label('c')
        a('s_cmp_lg_u32 %s, %d' % (reg, val)); a('s_cbranch_scc1 %s' % l)
        f(); a(l+':')
    def ifelse(self, reg, val, feq, fne, eq_first=False):
        a = self.a; l0, l1 = self.label('ie'), self.label('iend')
        if eq_first:
            a('s_cmp_lg_u32 %s, %d' % (reg, val)); a('s_cbranch_scc1 %s' % l0)
            feq(); a('s_branch %s' % l1); a(l0+':'); fne()
        else:
            a('s_cmp_eq_u32 %s, %d' % (reg, val)); a('s_cbranch_scc1 %s' % l0)
            fne(); a('s_branch %s' % l1); a(l0+':'); feq()
        a(l1+':')
    def far(self, reg, val, feq, fne=None):
        a = self.a; l0, l1 = self.label('far'), self.label('back')
        a('s_cmp_eq_u32 %s, %d' % (reg, val)); a('s_cbranch_scc1 %s' % l0)
        if fne: fne()
        a(l1+':')
        def t():
            a(l0+':'); feq(); a('s_branch %s' % l1)
        self.tail.append(t)
    def touch(self, rnd, half=False):
        a = self.a
        a('s_mov_b64 exec, 0')
        if half:
            for k in range(3):
                a('s_cmp_eq_u32 %s, %d' % (sW, 4+k)); a('s_cbranch_scc1 stub_%d' % (2*k))
            a('s_branch stub_6')
        else:
            for k in range(7):
                a('s_cmp_eq_u32 %s, %d' % (sW, k)); a('s_cbranch_scc1 stub_%d' % (8*rnd+k))
            a('s_branch stub_%d' % (8*rnd+7))
        a('ret_%d:' % rnd)
        a('s_mov_b64 exec, -1')

    def prologue(self, end):
        a = self.a; T = V.T
        a('s_cmp_ge_u32 s2, 0x100')
        a('s_cbranch_scc1 %s' % end)
        if 'da' in self.o: a('s_memrealtime s[56:57]'); self.mark('start')
        a('s_bfe_u32 %s, s2, 0x10002' % sP)
        a('s_mul_i32 s3, %s, 24' % sP)
        a('s_load_dwordx2 s[4:5], s[0:1], s3')
        a('s_load_dwordx2 s[24:25], s[0:1], 0x40')
        a('s_load_dwordx2 s[20:21], s[0:1], 0x38')
        a('s_load_dwordx2 s[8:9], s[0:1], s3 offset:8')
        a('s_load_dwordx2 s[12:13], s[0:1], s3 offset:16')
        a('s_load_dwordx2 s[16:17], s[0:1], 0x30')
        self.stamp()
        a('v_lshrrev_b32 %s, 6, v0' % v(T))
        a('v_and_b32 %s, 63, v0' % v(V.lane))
        a('v_readfirstlane_b32 %s, %s' % (sW, v(T)))
        mp = self.o['map']
        a('s_and_b32 %s, s2, 3' % sA)
        if int(self.o['xm']): a('s_xor_b32 %s, %s, %s' % (sA, sA, self.o['xm']))
        if mp in ('0', '1'):
            a('s_bfe_u32 %s, s2, 0x10003' % sB)
            if mp == '0': a('s_lshl1_add_u32 %s, %s, %s' % (sA, sA, sB))
            else: a('s_lshl2_add_u32 %s, %s, %s' % (sA, sB, sA))
            a('s_lshr_b32 %s, s2, 4' % sB)
            a('s_lshl4_add_u32 %s, %s, %s' % (sT, sA, sB))
        else:
            a('s_lshr_b32 %s, s2, 3' % sB)
            a('s_lshl2_add_u32 %s, %s, %s' % (sT, sB, sA))
            a('s_lshr_b32 %s, %s, 4' % (sA, sT)); a('s_and_b32 %s, %s, 15' % (sB, sT))
        a('s_bfe_u32 %s, %s, 0x10001' % (sC, sB))
        a('s_lshl1_add_u32 %s, %s, %s' % (sCB, sA, sC))
        a('s_lshr_b32 %s, %s, 2' % (sSB, sB))
        a('s_and_b32 %s, %s, 1' % (sC, sB))
        a('s_lshl1_add_u32 %s, %s, %s' % (sSB, sSB, sC))
        a('s_mov_b32 s6, 0x400000'); a('s_mov_b32 s7, 0x20000')
        a('v_lshrrev_b32 %s, 4, %s' % (v(V.g), v(V.lane)))
        a('v_lshlrev_b32 %s, 4, %s' % (v(V.l16), v(V.lane)))
        a('v_and_b32 %s, 8, v0' % v(T))
        a('v_lshlrev_b32 %s, 11, %s' % (v(T), v(T)))
        a('v_lshl_add_u32 %s, %s, 20, %s' % (v(T), v(V.g), v(T)))
        a('v_and_b32 %s, 0x70, %s' % (v(T+1), v(V.l16)))
        a('v_add_u32 %s, %s, %s' % (v(V.Xoff), v(T), v(T+1)))
        a('s_lshl4_add_u32 %s, %s, %s' % (sA, sW, sSB))
        a('s_lshl4_add_u32 %s, %s, %s' % (sA, sA, sCB))
        a('s_lshl_b32 %s, %s, 7' % (sO[0], sA))
        for r in range(1, 4): a('s_add_u32 %s, %s, 0x%x' % (sO[r], sO[0], r*262144))
        a('s_lshl3_add_u32 %s, s2, %s' % (sId, sW))
        a('s_xor_b32 %s, %s, %d' % (sCh, sId, 8*int(self.o['qg'])+int(self.o['qw']))); a('s_and_b32 %s, %s, 0xffffff7f' % (sCh, sCh))
        a('s_xor_b32 %s, s2, %s' % (sZ, self.o['zg'])); a('s_and_b32 %s, %s, 0xffffffef' % (sZ, sZ))
    def srds(self):
        a = self.a
        a('s_mov_b32 s10, 2101248'); a('s_mov_b32 s11, 0x20000')
        a('s_mov_b32 s14, 2101248'); a('s_mov_b32 s15, 0x20000')
        a('s_mov_b32 s18, 0x800000'); a('s_mov_b32 s19, 0x20000')
    def srds0(self):
        a = self.a
        a('s_mov_b32 s22, 256'); a('s_mov_b32 s23, 0x20000')
        a('s_mov_b32 s26, 0x%x' % ((80 if self.o['ts'] else 18) << 20)); a('s_mov_b32 s27, 0x20000')
        a('v_and_b32 %s, 15, %s' % (v(V.n), v(V.lane)))
        a('v_mov_b32 %s, 0' % v(V.zero)); a('v_mov_b32 %s, %d' % (v(V.cnt), CNT))

    def x_issue(self):
        for r in range(4):
            self.a('buffer_load_dwordx4 %s, %s, %s, %s offen %s' % (vr(V.L+4*r, 4), v(V.Xoff), SX, sO[r], self.o['ldx']))
    def probe(self):
        a = self.a; NB = int(self.o['nb']); T = V.T
        a('s_lshl_b32 %s, s2, 9' % sA); a('s_and_b32 %s, %s, 0x2000' % (sA, sA))
        a('s_mul_i32 %s, %s, 9' % (sA, sA)); a('s_add_u32 %s, %s, 0x%x' % (sA, sA, int(self.o['pb']) << 20))
        a('s_xor_b32 %s, %s, 0x2000' % (sB, sA))
        a('s_mov_b32 s26, 0x%x' % (18 << 20)); a('s_mov_b32 s27, 0x20000')
        a('s_lshr_b32 %s, s2, 1' % sC); a('s_and_b32 %s, %s, 8' % (sC, sC))
        a('v_mul_u32_u24 %s, 0x5080, %s' % (v(T), v(V.lane)))
        for k in range(2*NB): a('v_mov_b32 %s, 0' % v(V.DA+k))
        a('s_mov_b64 exec, 3')
        a('s_waitcnt lgkmcnt(0)')
        for side, base in enumerate((sA, sB)):
            for k in range(NB):
                a('buffer_atomic_add %s, %s, %s, %s offen offset:%d sc0 sc1' % (v(V.DA+side*NB+k), v(T), SWS, base, k*0x300))
        a('s_mov_b64 exec, -1')
        if self.o['pre']: a('s_load_dword s95, s[20:21], 0x80')
        self.x_issue()
        a('s_waitcnt vmcnt(%d)' % (NB+4))
        a('s_nop %s' % self.o['pnop'])
        a('s_getreg_b32 %s, hwreg(HW_REG_IB_STS, 0, 4)' % sA)
        a('s_or_b32 %s, %s, 16' % (sA, sA)); a('s_lshl_b32 s94, %s, %s' % (sA, sC))
        a('s_atomic_or s94, s[20:21], 0x80')
    def clear_issue(self):
        a = self.a
        def f():
            a('s_lshr_b32 %s, s2, 4' % sA)
            a('s_lshl1_add_u32 %s, %s, %s' % (sA, sW, sA))
            a('s_lshl_b32 %s, %s, 13' % (sA, sA)); a('s_add_u32 %s, %s, 0x%x' % (sA, sA, WS_FLAG))
            for i in range(0, 8, 2): a('s_mov_b64 s[%d:%d], 0' % (84+i, 85+i))
            R = int(self.o['rep'])
            for i in range(8):
                for r in range(R-1): a('s_atomic_and s84, s[24:25], %s offset:0x%x' % (sA, (i << 10) + 256*(r+1)))
            for i in range(8): a('s_atomic_swap s%d, s[24:25], %s offset:0x%x glc' % (84+i, sA, i << 10))
        self.cond(sZ, 0, f)
    def clear_done(self):
        a = self.a
        def f():
            a('s_mov_b32 s94, 1'); a('s_waitcnt lgkmcnt(0)')
            a('s_atomic_add s94, s[20:21], 0x0')
        self.cond(sZ, 0, f)
    def side_load(self):
        self.a('buffer_load_dword %s, %s, %s, 0 offen offset:128 sc1' % (v(V.tmp), v(V.zero), SDBG))
    def side_wait(self):
        a = self.a
        def f():
            lp, ok = self.label('sw'), self.label('swok')
            a('s_mov_b32 %s, 0' % sCnt)
            a(lp+':')
            a('s_waitcnt vmcnt(0)')
            a('v_and_b32 %s, 0x1010, %s' % (v(V.T), v(V.tmp)))
            a('v_cmp_eq_u32 vcc, 0x1010, %s' % v(V.T))
            a('s_cbranch_vccnz %s' % ok)
            self.side_load()
            a('s_add_u32 %s, %s, 1' % (sCnt, sCnt))
            a('s_cmp_lt_u32 %s, 0x%x' % (sCnt, SPIN_MAX))
            a('s_cbranch_scc1 %s' % lp)
            a('s_waitcnt vmcnt(0)')
            a(ok+':')
            a('ds_write2_b32 %s, %s, %s offset0:0 offset1:1' % (v(V.cnt), v(V.tmp), v(V.zero)))
        self.cond(sW, PW, f)
    def side_use(self):
        a = self.a
        a('v_readfirstlane_b32 %s, %s' % (sA, v(V.tmp)))
        if self.o['ts']: a('s_mov_b32 s%d, %s' % (sTS+24, sA))
        if 'enc' in self.o: a('s_mov_b32 s62, %s' % sA)
        a('s_and_b32 %s, %s, 15' % (sB, sA)); a('s_bfe_u32 %s, %s, 0x40008' % (sA, sA))
        a('s_cmp_gt_u32 %s, %s' % (sA, sB))
        a('s_cselect_b32 %s, 0x2000, 0' % sCh)
        if self.o['force'] != '': a('s_mov_b32 %s, %d' % (sCh, int(self.o['force']) << 13))
        a('s_xor_b32 %s, %s, %s' % (sEst, sEst, sCh))
    def flag_addrs(self):
        a = self.a
        a('s_lshr_b32 %s, %s, 4' % (sB, sT))
        a('s_lshl_b32 %s, %s, 13' % (sA, sP)); a('s_add_u32 %s, %s, 0x%x' % (sA, sA, WS_FLAG))
        for dst, wp, gr in ((sF, sW, sB), (sE, sB, sW)):
            a('s_lshl4_add_u32 %s, %s, %s' % (sC, wp, gr)); a('s_lshl_b32 %s, %s, 10' % (sC, sC))
            a('s_add_u32 %s, %s, %s' % (dst, sC, sA))
        R = int(self.o['rep'])
        if R > 1:
            a('s_and_b32 %s, %s, %d' % (sC, sT, R-1)); a('s_lshl_b32 %s, %s, 8' % (sC, sC)); a('s_add_u32 %s, %s, %s' % (sE, sE, sC))
    def side_apply(self):
        for r in (sF, sE, sEld): self.a('s_xor_b32 %s, %s, %s' % (r, r, sCh))
    def ready_check(self):
        a = self.a; l0, l1 = self.label('rdy'), self.label('rdyok')
        a('s_cmp_ge_u32 %s, 16' % sRv)
        a('s_cbranch_scc1 %s' % l1)
        a('s_mov_b32 %s, 0' % sCnt)
        a(l0+':')
        a('buffer_load_dword %s, %s, %s, 0 offen sc1' % (v(V.tmp), v(V.zero), SDBG))
        a('s_add_u32 %s, %s, 1' % (sCnt, sCnt))
        a('s_cmp_gt_u32 %s, 0x%x' % (sCnt, SPIN_MAX))
        a('s_waitcnt vmcnt(0)')
        a('s_cbranch_scc1 %s' % l1)
        a('v_cmp_gt_u32 vcc, 16, %s' % v(V.tmp))
        a('s_cbranch_vccnz %s' % l0)
        a(l1+':')
    def arrive(self):
        for r in range(int(self.o['rep'])): self.a('s_atomic_add %s, s[24:25], %s offset:%d' % (sInc, sF, 256*r))
    def poll(self, ex, under=None):
        a = self.a; lp, ok = self.label('poll'), self.label('pollok')
        if under:
            a('s_mov_b32 %s, 0' % sRv)
            a('s_atomic_add %s, s[24:25], %s glc' % (sRv, sE))
            under()
            a('s_waitcnt lgkmcnt(0)')
            a('s_bitcmp1_b32 %s, %d' % (sRv, 4+16*ex))
            a('s_cbranch_scc1 %s' % ok)
        a('s_mov_b32 %s, 0' % sCnt)
        a(lp+':')
        a('s_mov_b32 %s, 0' % sRv)
        a('s_atomic_add %s, s[24:25], %s glc' % (sRv, sE))
        a('s_add_u32 %s, %s, 1' % (sCnt, sCnt))
        a('s_cmp_gt_u32 %s, 0x%x' % (sCnt, SPIN_MAX))
        a('s_waitcnt lgkmcnt(0)')
        a('s_cbranch_scc1 %s' % ok)
        if self.o['slp']:
            a('s_bitcmp1_b32 %s, %d' % (sRv, 4+16*ex))
            a('s_cbranch_scc1 %s' % ok)
            if self.o['sthr']:
                a('s_bfe_u32 %s, %s, 0x%x' % (sA, sRv, 0x50000+16*ex))
                a('s_cmp_ge_u32 %s, %s' % (sA, self.o['sthr'])); a('s_cbranch_scc1 %s' % lp)
            a('s_sleep %s' % self.o['slp'])
            a('s_branch %s' % lp)
        else:
            a('s_bitcmp0_b32 %s, %d' % (sRv, 4+16*ex))
            a('s_cbranch_scc1 %s' % lp)
        a(ok+':')
    def ex_addrs(self):
        a = self.a; T = V.T
        a('s_lshl_b32 %s, %s, 4' % (sB, sW)); a('s_xor_b32 %s, %s, %s' % (sB, sB, sT)); a('s_lshl_b32 %s, %s, 8' % (sB, sB))
        a('v_lshlrev_b32 %s, 4, %s' % (v(T), v(V.n)))
        a('v_lshl_add_u32 %s, %s, 10, %s' % (v(T), v(V.g), v(T)))
        a('v_xor_b32 %s, %s, %s' % (v(T), sB, v(T)))
        a('v_and_b32 %s, 0x6000, %s' % (v(T+1), v(T)))
        a('v_add_u32 %s, %s, %s' % (v(T), v(T), v(T+1)))
        a('v_lshl_add_u32 %s, %s, 18, %s' % (v(V.Est), v(V.g), v(T)))
        a('v_and_b32 %s, 0xdcff, %s' % (v(V.Eld), v(T)))
        a('s_bfe_u32 %s, %s, 0x10001' % (sA, sW)); a('s_xor_b32 %s, %s, %s' % (sA, sA, sP))
        a('s_bfe_u32 %s, %s, 0x10005' % (sC, sT)); a('s_xor_b32 %s, %s, %s' % (sC, sC, sP))
        a('s_lshl_b32 %s, %s, 7' % (sEst, sW)); a('s_add_u32 %s, %s, %s' % (sEst, sEst, sA)); a('s_lshl_b32 %s, %s, 13' % (sEst, sEst))
        a('s_lshl3_add_u32 %s, %s, %s' % (sEld, sT, sC)); a('s_lshl_b32 %s, %s, 13' % (sEld, sEld))

    def trig(self, x, re, im, conj_re=None, conj_im=None):
        a = self.a; c, s = V.T+8, V.T+9
        a('v_cos_f32 %s, %s' % (v(c), v(x)))
        a('v_sin_f32 %s, %s' % (v(s), v(x)))
        if getattr(self, 'fill', None): self.fill(); self.fill = None
        a('v_cvt_pk_bf16_f32 %s, %s, %s' % (v(re), v(c), v(s)))
        a('v_cvt_pk_bf16_f32 %s, -%s, %s' % (v(im), v(s), v(c)))
        if conj_re is not None:
            a('v_xor_b32 %s, 0x80000000, %s' % (v(conj_re), v(re)))
            a('v_xor_b32 %s, 0x8000, %s' % (v(conj_im), v(im)))
    def ladder(self, x, step, regs):
        a = self.a
        for k, r in enumerate(regs):
            if k < len(regs)-1: self.fill = lambda: a('v_add_f32 %s, %s, %s' % (v(x), v(x), v(step)))
            self.trig(x, *r)
    def gen_F16(self):
        a = self.a; T = V.T
        a('v_cvt_f32_u32 %s, %s' % (v(T), v(V.n)))
        a('v_cvt_f32_u32 %s, %s' % (v(T+1), v(V.g)))
        a('v_mul_f32 %s, %s, %s' % (v(T), lit(1/16), v(T)))
        a('v_mul_f32 %s, 4.0, %s' % (v(T+1), v(T+1)))
        a('v_mul_f32 %s, %s, %s' % (v(T+2), v(T), v(T+1)))
        self.ladder(T+2, T, [(V.F16+r, V.F16+4+r) for r in range(4)])
    def gen_M2(self):
        a = self.a; T = V.T
        def normal():
            a('v_cvt_f32_u32 %s, %s' % (v(T+2), sW))
            a('v_fmac_f32 %s, %s, %s' % (v(T), lit(1/256), v(T+2)))
            a('v_mul_f32 %s, %s, %s' % (v(T+2), v(T), v(T+1)))
            self.ladder(T+2, T, [(V.M2+r, V.M2+4+r, V.M2+8+r, V.M2+12+r) for r in range(4)])
        def w0():
            a('v_lshrrev_b32 %s, 1, %s' % (v(T), v(V.n)))
            a('v_cvt_f32_u32 %s, %s' % (v(T), v(T)))
            a('v_lshlrev_b32 %s, 31, %s' % (v(T+3), v(V.n)))
            a('v_add_f32 %s, 0.5, %s' % (v(T+4), v(T)))
            a('v_xor_b32 %s, %s, %s' % (v(T+3), lit(1/16), v(T+3)))
            a('v_cmp_ne_u32 vcc, 1, %s' % v(V.n))
            a('v_mul_f32 %s, %s, %s' % (v(T), v(T), v(T+3)))
            a('v_mul_f32 %s, %s, %s' % (v(T+4), v(T+4), v(T+3)))
            a('v_cndmask_b32 %s, 0.5, %s, vcc' % (v(T), v(T)))
            for ts in range(2):
                d = T+4*ts
                a('v_mul_f32 %s, %s, %s' % (v(T+2), v(d), v(T+1)))
                self.ladder(T+2, d, [(V.M2+8*ts+r, V.M2+8*ts+4+r) for r in range(4)])
        self.ifelse(sW, 0, w0, normal)
    def gen_M3(self):
        a = self.a; T = V.T
        a('v_cvt_f32_u32 %s, %s' % (v(T), v(V.n)))
        a('v_mul_f32 %s, %s, %s' % (v(T+1), lit(1/256), v(T)))
        a('v_mul_f32 %s, %s, %s' % (v(T), lit(1/16), v(T)))
        def normal():
            a('v_lshl_add_u32 %s, %s, 6, %s' % (v(T+2), v(V.g), sW))
            a('v_cvt_f32_u32 %s, %s' % (v(T+2), v(T+2)))
            a('v_mul_f32 %s, %s, %s' % (v(T+2), v(T+2), v(T+1)))
            self.ladder(T+2, T, [(V.M2+r, V.M2+4+r, V.M2+8+r, V.M2+12+r) for r in range(4)])
        def w0():
            a('v_lshlrev_b32 %s, 5, %s' % (v(T+2), v(V.g)))
            a('v_cvt_f32_u32 %s, %s' % (v(T+2), v(T+2)))
            a('v_mul_f32 %s, 0.5, %s' % (v(T), v(T)))
            a('v_mul_f32 %s, %s, %s' % (v(T+2), v(T+2), v(T+1)))
            regs = []
            for k in range(4):
                b = V.M2+8*(k & 1)+2*(k >> 1)
                regs.append((b, b+4, b+1, b+5))
            self.ladder(T+2, T, regs)
            a('s_mov_b64 exec, 0xffff')
            a('v_lshlrev_b32 %s, 15, %s' % (v(T+2), v(V.n)))
            a('v_and_b32 %s, 0x8000, %s' % (v(T+2), v(T+2)))
            a('v_or_b32 %s, 0x3f80, %s' % (v(V.M2+1), v(T+2)))
            a('v_lshlrev_b32 %s, 16, %s' % (v(V.M2+5), v(V.M2+1)))
            a('s_mov_b64 exec, -1')
        self.ifelse(sW, 0, w0, normal)
    def sigma_lane(self, dst):
        a = self.a; t = V.T+7
        a('v_and_b32 %s, 17, %s' % (v(dst), v(V.lane)))
        a('v_bfe_u32 %s, %s, 2, 2' % (v(t), v(V.lane)))
        a('v_lshl_add_u32 %s, %s, 1, %s' % (v(dst), v(t), v(dst)))
        a('v_and_b32 %s, 2, %s' % (v(t), v(V.lane)))
        a('v_lshl_add_u32 %s, %s, 2, %s' % (v(dst), v(t), v(dst)))
    def coop_gen(self):
        a = self.a; T = V.T; X = V.DA
        self.sigma_lane(T)
        a('v_lshrrev_b32 %s, 5, %s' % (v(T+1), v(V.lane)))
        a('v_lshlrev_b32 %s, 7, %s' % (v(T+2), v(T+1)))
        a('v_lshl_add_u32 %s, %s, 1, %s' % (v(T+2), v(T), v(T+2)))
        a('s_and_b32 %s, %s, 2' % (sD, sKP)); a('s_sub_u32 %s, %s, %s' % (sD, sWL, sD))
        a('v_add_u32 %s, %s, %s' % (v(V.WP), sD, v(T+2)))
        a('s_add_u32 %s, %s, %d' % (sD, sD, 1024-832))
        a('v_sub_u32 %s, %s, %s' % (v(V.WM), sD, v(T+2)))
        a('v_cvt_f32_u32 %s, %s' % (v(T), v(T)))
        a('s_mul_i32 %s, %s, 4' % (sA, sW)); a('s_lshr_b32 %s, 0x75643120, %s' % (sA, sA)); a('s_and_b32 %s, %s, 7' % (sA, sA)); a('s_lshl_b32 %s, %s, 2' % (sA, sA))
        a('v_lshl_add_u32 %s, %s, 1, %s' % (v(T+1), v(T+1), sA))
        a('v_mul_f32 %s, %s, %s' % (v(T), lit(1/2048), v(T)))
        a('v_cvt_f32_u32 %s, %s' % (v(T+1), v(T+1)))
        a('v_mul_f32 %s, %s, %s' % (v(T+2), v(T+1), v(T)))
        for e in range(2):
            a('v_cos_f32 %s, %s' % (v(T+5), v(T+2)))
            a('v_sin_f32 %s, %s' % (v(T+6), v(T+2)))
            a('v_rcp_f32 %s, %s' % (v(T+5), v(T+5)))
            a('v_mul_f32 %s, %s, %s' % (v(T+3), lit(64.0), v(T+2)))
            a('v_mul_f32 %s, %s, %s' % (v(X+4+e), v(T+6), v(T+5)))
            a('v_fma_f32 %s, %s, %s, 1.0' % (v(T+5), v(X+4+e), v(X+4+e)))
            a('v_rcp_f32 %s, %s' % (v(T+6), v(T+5)))
            a('v_mul_f32 %s, -2.0, %s' % (v(T+4), v(X+4+e)))
            a('v_fma_f32 %s, -%s, %s, 1.0' % (v(T+5), v(T+5), v(T+6)))
            a('v_fmac_f32 %s, %s, %s' % (v(T+6), v(T+5), v(T+6)))
            a('v_mul_f32 %s, %s, %s' % (v(X+6+e), v(T+6), v(T+4)))
            if e == 0: self.fill = lambda: a('v_add_f32 %s, %s, %s' % (v(T+2), v(T+2), v(T)))
            self.trig(T+3, X+e, X+2+e)
        a('s_lshr_b32 %s, %s, 1' % (sA, sW)); a('s_lshl_b32 %s, %s, 7' % (sA, sA))
        a('s_and_b32 %s, %s, 1' % (sB, sW)); a('s_add_u32 %s, %s, %s' % (sA, sA, sB))
        a('s_lshl3_add_u32 %s, %s, %d' % (sA, sA, TABL))
        a('v_add_u32 %s, %s, %s' % (v(T), sA, v(V.l16)))
        for k in range(4): a('ds_write_b64 %s, %s offset:%d' % (v(T), vr(X+2*k, 2), 4096*k))
    def coop_post(self):
        a = self.a
        a('v_mov_b32 %s, 1' % v(V.T+1))
        a('ds_add_u32 %s, %s offset:4' % (v(V.cnt), v(V.T+1)))
    def coop_wait(self):
        a = self.a; T = V.T; lp, ok = self.label('cw'), self.label('cwok')
        a('s_mov_b32 %s, 0' % sCnt)
        a(lp+':')
        a('ds_read_b32 %s, %s offset:4' % (v(T), v(V.cnt)))
        a('s_add_u32 %s, %s, 1' % (sCnt, sCnt))
        a('s_cmp_gt_u32 %s, 0x%x' % (sCnt, SPIN_MAX*8))
        a('s_waitcnt lgkmcnt(0)')
        a('s_cbranch_scc1 %s' % ok)
        a('v_cmp_gt_u32 vcc, 0x200, %s' % v(T))
        a('s_cbranch_vccnz %s' % lp)
        a(ok+':')
    def coop_read(self):
        a = self.a; T = V.T
        a('v_add_u32 %s, %d, %s' % (v(T), TABL, v(V.l16)))
        for k in range(16): a('ds_read_b128 %s, %s offset:%d' % (vr(V.F32+4*k, 4), v(T), 1024*k))
    def calc_k0(self):
        a = self.a
        a('s_lshr_b32 %s, %s, 4' % (sA, sT)); a('s_and_b32 %s, %s, 15' % (sB, sT))
        a('s_lshl4_add_u32 %s, %s, %s' % (sK0, sB, sA))
        a('s_and_b32 %s, %s, 12' % (sC, sB)); a('s_bfe_u32 %s, %s, 0x10001' % (sD, sB)); a('s_add_u32 %s, %s, %s' % (sC, sC, sD))
        a('s_and_b32 %s, %s, 1' % (sD, sB)); a('s_lshl1_add_u32 %s, %s, %s' % (sC, sD, sC)); a('s_lshl_b32 %s, %s, 3' % (sC, sC))
        a('s_cmp_eq_u32 %s, 0' % sA); a('s_cselect_b32 %s, %s, %s' % (sK0, sC, sK0))
        a('s_cmp_eq_u32 %s, 0' % sT); a('s_cselect_b32 %s, 7, 8' % sA)
        a('s_lshl_b32 %s, %s, %s' % (sKP, sW, sA)); a('s_add_u32 %s, %s, %s' % (sKP, sKP, sK0))
        a('s_sub_u32 %s, 0x800, %s' % (sKM, sKP))
        a('s_cmp_eq_u32 %s, 0' % sKP)
        a('s_cselect_b32 %s, 0x400, %s' % (sKM, sKM)); a('s_cselect_b32 %s, 1, 0' % sSpec)
        a('s_mul_i32 %s, %s, 1026' % (sKP, sKP)); a('s_mul_i32 %s, %s, 1026' % (sKM, sKM))
        a('s_mul_i32 %s, %s, 4224' % (sWL, sW)); a('s_add_u32 %s, %s, %d' % (sWL, sWL, WL))
        a('s_and_b32 %s, %s, 2' % (sA, sKP))
        a('s_add_u32 %s, %s, %s' % (sDP, sKP, sA)); a('s_add_u32 %s, %s, %s' % (sDM, sKM, sA))
    def gen_B(self):
        a = self.a; T = V.T; c, s = T+8, T+9
        a('v_lshrrev_b32 %s, 1, %s' % (v(T), v(V.n)))
        a('v_cvt_f32_u32 %s, %s' % (v(T+2), v(V.g)))
        a('v_and_b32 %s, 1, %s' % (v(T+3), v(V.n)))
        a('v_add_f32 %s, %s, %s' % (v(T+2), v(T+2), v(T+2)))
        def normal():
            a('v_lshl_add_u32 %s, %s, 8, %s' % (v(T+1), v(T), sK0))
            a('v_lshlrev_b32 %s, 4, %s' % (v(T+4), v(T+3)))
            a('v_cvt_f32_u32 %s, %s' % (v(T+1), v(T+1)))
            a('v_lshlrev_b32 %s, 31, %s' % (v(T+6), v(V.n)))
            a('v_cvt_f32_u32 %s, %s' % (v(T+3), v(T+3)))
            a('v_mul_f32 %s, %s, %s' % (v(T+1), lit(1/2048), v(T+1)))
            a('s_brev_b32 %s, 1' % sA)
            a('v_lshrrev_b32 %s, %s, %s' % (v(T+4), v(T+4), sA))
            a('v_mul_f32 %s, %s, %s' % (v(T+5), v(T+1), v(T+2)))
            a('v_fmac_f32 %s, %s, %s' % (v(T+5), lit(0.25), v(T+3)))
            for sbb in range(2):
                if sbb == 0: self.fill = lambda: a('v_add_f32 %s, %s, %s' % (v(T+5), v(T+5), v(T+1)))
                else: self.fill = lambda: a('v_cvt_f32_u32 %s, %s' % (v(T), v(T)))
                self.trig(T+5, V.B+2*sbb, V.B+6+2*sbb)
                a('v_xor_b32 %s, %s, %s' % (v(V.B+2*sbb+1), v(V.B+2*sbb), v(T+4)))
                a('v_xor_b32 %s, %s, %s' % (v(V.B+6+2*sbb+1), v(V.B+6+2*sbb), v(T+4)))
            a('v_lshl_add_u32 %s, %s, 9, %s' % (v(T+1), v(V.g), sK0))
            a('v_xor_b32 %s, %s, %s' % (v(T), v(T), v(T+6)))
            a('v_cvt_f32_u32 %s, %s' % (v(T+1), v(T+1)))
            a('v_mul_f32 %s, 0.5, %s' % (v(T+5), v(T+3)))
            a('v_mul_f32 %s, %s, %s' % (v(T+1), lit(1/2048), v(T+1)))
            a('v_fmac_f32 %s, %s, %s' % (v(T+5), v(T+1), v(T)))
            for ii in range(2):
                a('v_cos_f32 %s, %s' % (v(c), v(T+5)))
                a('v_sin_f32 %s, %s' % (v(s), v(T+5)))
                a('v_mul_f32 %s, %s, %s' % (v(c), lit(SC), v(c)))
                a('v_mul_f32 %s, %s, %s' % (v(s), lit(SC), v(s)))
                if ii == 0: a('v_fmac_f32 %s, %s, %s' % (v(T+5), lit(0.125), v(T)))
                a('v_cvt_pk_bf16_f32 %s, %s, %s' % (v(T+1), v(c), v(s)))
                a('v_cvt_pk_bf16_f32 %s, -%s, %s' % (v(T+2), v(s), v(c)))
                a('v_xor_b32 %s, %s, %s' % (v(V.Bp+2*ii), v(T+1), v(T+6)))
                a('v_xor_b32 %s, %s, %s' % (v(V.Bp+4+2*ii), v(T+2), v(T+6)))
                a('v_xor_b32 %s, %s, %s' % (v(V.Bp+2*ii+1), v(T+2), v(T+6)))
                a('v_xor_b32 %s, 0x80008000, %s' % (v(V.Bp+4+2*ii+1), v(V.Bp+2*ii)))
        def special():
            a('v_cvt_f32_u32 %s, %s' % (v(T+1), v(T)))
            a('v_mul_f32 %s, %s, %s' % (v(T+1), lit(1/16), v(T+1)))
            a('v_lshlrev_b32 %s, 4, %s' % (v(T+4), v(T+3)))
            a('v_cmp_eq_u32 s[84:85], 0, %s' % v(T))
            a('v_and_b32 %s, 1, %s' % (v(T+6), v(T)))
            a('v_cmp_eq_u32 s[86:87], 1, %s' % v(T+6))
            a('v_mul_f32 %s, %s, %s' % (v(T+5), v(T+1), v(T+2)))
            for sbb in range(2):
                a('v_cos_f32 %s, %s' % (v(c), v(T+5)))
                a('v_sin_f32 %s, %s' % (v(s), v(T+5)))
                a('v_mul_f32 %s, 2.0, %s' % (v(c), v(c)))
                a('v_mul_f32 %s, -2.0, %s' % (v(s), v(s)))
                a('v_cndmask_b32 %s, %s, 1.0, s[84:85]' % (v(c), v(c)))
                a('v_cndmask_b32 %s, %s, %s, s[84:85]' % (v(s), v(s), '-1.0' if sbb else '1.0'))
                for src, dst in ((c, V.B+2*sbb), (s, V.B+6+2*sbb)):
                    a('v_cvt_pk_bf16_f32 %s, %s, 0' % (v(T+7), v(src)))
                    a('v_lshlrev_b32 %s, %s, %s' % (v(T+7), v(T+4), v(T+7)))
                    a('v_cndmask_b32 %s, %s, 0, s[86:87]' % (v(dst), v(T+7)))
                    a('v_cndmask_b32 %s, 0, %s, s[86:87]' % (v(dst+1), v(T+7)))
                a('v_add_f32 %s, %s, %s' % (v(T+5), v(T+5), v(T+1)))
            a('v_cmp_eq_u32 s[88:89], 0, %s' % v(V.g))
            a('v_cmp_eq_u32 s[90:91], 1, %s' % v(T+3))
            a('v_lshlrev_b32 %s, 31, %s' % (v(T+6), v(T)))
            a('v_xor_b32 %s, %s, %s' % (v(T+6), lit(SC), v(T+6)))
            a('v_mov_b32 %s, %s' % (v(T+4), lit(SC)))
            a('v_mul_f32 %s, %s, %s' % (v(T+5), v(T+1), v(T+2)))
            for ii in range(2):
                a('v_cos_f32 %s, %s' % (v(c), v(T+5)))
                a('v_sin_f32 %s, %s' % (v(s), v(T+5)))
                a('v_mul_f32 %s, %s, %s' % (v(c), lit(2*SC), v(c)))
                a('v_mul_f32 %s, %s, %s' % (v(s), lit(-2*SC), v(s)))
                if ii == 0:
                    a('v_cndmask_b32 %s, %s, %s, s[88:89]' % (v(c), v(c), v(T+4)))
                    a('v_cndmask_b32 %s, %s, %s, s[88:89]' % (v(s), v(s), v(T+6)))
                a('v_cvt_pk_bf16_f32 %s, %s, %s' % (v(T+7), v(s), v(c)))
                if ii: a('v_cndmask_b32 %s, 0, %s, s[90:91]' % (v(T+7), v(T+7)))
                else: a('v_cndmask_b32 %s, %s, 0, s[90:91]' % (v(T+7), v(T+7)))
                a('v_mov_b32 %s, 0' % v(V.Bp+2*ii)); a('v_mov_b32 %s, %s' % (v(V.Bp+2*ii+1), v(T+7)))
                a('v_mov_b32 %s, %s' % (v(V.Bp+4+2*ii), v(T+7))); a('v_mov_b32 %s, 0' % v(V.Bp+4+2*ii+1))
                a('v_add_f32 %s, %s, %s' % (v(T+5), v(T+5), v(T+1)))
        self.far(sT, 0, special, normal)
        for d, r in ((4, 0), (5, 1), (10, 6), (11, 7)): a('v_mov_b32 %s, %s' % (v(V.B+d), v(V.B+r)))

    def wq(self, rho): return (rho & 1) + 8*((rho >> 1) & 1) + 4*((rho >> 2) & 1)
    def w_dma1(self, i):
        a = self.a
        srd, so = [(SWR, sDP), (SWI, sDP), (SWR, sDM), (SWI, sDM)][i]
        a('s_add_u32 m0, %s, %d' % (sWL, 1056*i))
        a('buffer_load_dwordx4 %s, %s, %s offen %s lds' % (v(V.l16), srd, so, self.o['ldw']))
    def w_dma(self):
        for i in range(4): self.w_dma1(i)
    def w_edge_load(self):
        a = self.a; T = V.T
        a('s_mov_b64 exec, 15')
        a('v_mov_b32 %s, %s' % (v(T), sKP)); a('v_mov_b32 %s, %s' % (v(T+1), sKM))
        a('s_mov_b64 vcc, 10')
        a('v_cndmask_b32 %s, %s, %s, vcc' % (v(T), v(T), v(T+1)))
        a('v_and_b32 %s, 2, %s' % (v(T+1), v(V.lane)))
        a('v_lshl_add_u32 %s, %s, 9, %s' % (v(T), v(T+1), v(T)))
        a('buffer_load_short_d16_hi %s, %s, %s, 0 offen' % (v(V.WF), v(T), SWR))
        a('buffer_load_short_d16_hi %s, %s, %s, 0 offen' % (v(V.WF+1), v(T), SWI))
        a('s_mov_b64 exec, -1')
    def w_edge_rl(self):
        for l in range(4):
            for im in range(2): self.a('v_readlane_b32 s%d, %s, %d' % (84+2*l+im, v(V.WF+im), l))
    def w_edge(self):
        a = self.a; T = V.T
        self.w_edge_rl()
        q = ((84, 86, 'add'), (85, 87, 'sub'), (90, 88, 'add'), (91, 89, 'sub'))
        for i, (x, y, op) in enumerate(q): a('v_mov_b32 %s, s%d' % (v(T+i), y))
        for i, (x, y, op) in enumerate(q): a('v_%s_f32 %s, s%d, %s' % (op, v(V.WF+i), x, v(T+i)))
        for i in range(4): a('v_mul_f32 %s, 0.5, %s' % (v(V.WF+i), v(V.WF+i)))
        a('s_mov_b64 s[92:93], 1')
    def w_read1(self, rho, im, dst=None, swap=False):
        dst = V.W if dst is None else dst
        if rho < 8: ad, off = V.WP, 64*self.wq(rho) + (2112 if swap else 0)
        else: ad, off = V.WM, 64*(13-self.wq(rho)) + (0 if swap else 2112)
        return 'ds_read_u16_d16_hi %s, %s offset:%d' % (v(dst+16*im+rho), v(ad), off+1056*im)
    def w_fix(self, half):
        return ['v_cndmask_b32 %s, %s, %s, s[92:93]' % (v(V.W+8*half+16*im), v(V.W+8*half+16*im), v(V.WF+2*half+im)) for im in range(2)]
    def w_special(self):
        a = self.a; T = V.T; X = V.DA
        def f():
            for sw, dst in ((False, V.W), (True, X)):
                for rho in range(16):
                    for im in range(2): a(self.w_read1(rho, im, dst, sw))
            a('s_waitcnt lgkmcnt(0) vmcnt(0)')
            self.w_edge_rl()
            a('s_mov_b64 exec, 1')
            for r in (V.W+16, V.W+24, X+16, X+24): a('v_mov_b32 %s, 0' % v(r))
            a('v_mov_b32 %s, s90' % v(V.W+8)); a('v_mov_b32 %s, s88' % v(X+8))
            a('s_mov_b64 exec, -1')
            for i in range(32):
                a('v_add_f32 %s, %s, %s' % (v(V.W+i), v(V.W+i), v(X+i)))
                if (i & 15) < 8: a('v_fma_f32 %s, -2.0, %s, %s' % (v(X+i), v(X+i), v(V.W+i)))
                else: a('v_fma_f32 %s, 2.0, %s, -%s' % (v(X+i), v(X+i), v(V.W+i)))
            a('v_add_u32 %s, %d, %s' % (v(T+1), SCR_B, v(V.l16)))
            for i in range(8): a('ds_write_b128 %s, %s offset:%d' % (v(T+1), vr(X+4*i, 4), 1024*i))
        self.far(sSpec, 1, f)

    def addrs1(self):
        a = self.a; T = V.T
        a('v_lshrrev_b32 %s, 3, %s' % (v(T), v(V.lane)))
        a('v_and_b32 %s, 0x30, %s' % (v(T+1), v(V.l16)))
        a('v_lshl_add_u32 %s, %s, 6, %s' % (v(T), v(T), v(T+1)))
        a('v_and_b32 %s, 4, %s' % (v(T+1), v(V.lane)))
        a('v_lshl_add_u32 %s, %s, 1, %s' % (v(V.TR), v(T+1), v(T)))
        a('v_xor_b32 %s, %s, %s' % (v(T), sSB, v(V.lane)))
        a('v_and_b32 %s, 1, %s' % (v(T), v(T)))
        a('v_mul_u32_u24 %s, 16448, %s' % (v(T), v(T)))
        a('v_lshl_add_u32 %s, %s, 12, %s' % (v(T), v(V.g), v(T)))
        a('v_lshl_add_u32 %s, %s, 2, %s' % (v(T), v(T+1), v(T)))
        a('v_and_b32 %s, 0x60, %s' % (v(T+1), v(V.TR)))
        a('s_lshr_b32 %s, %s, 1' % (sWp, sW)); a('s_and_b32 %s, %s, 1' % (sA, sW))
        a('s_lshl2_add_u32 %s, %s, %s' % (sWp, sA, sWp)); a('s_lshl_b32 %s, %s, 7' % (sWp, sWp))
        a('v_add3_u32 %s, %s, %s, %s' % (v(V.X0w), v(T), v(T+1), sWp))
        a('s_lshl_b32 %s, %s, 10' % (sA, sW))
        a('s_sub_u32 %s, 0x4000, %s' % (sB, sA))
        a('s_cmp_eq_u32 %s, 0' % sW); a('s_cselect_b32 %s, 0x2000, %s' % (sB, sB))
        a('v_add_u32 %s, %s, %s' % (v(V.X0r0), sA, v(V.TR)))
        a('v_add_u32 %s, %s, %s' % (v(V.X0r1), sB, v(V.TR)))
    def addrs2(self):
        a = self.a; T = V.T
        a('v_lshlrev_b32 %s, 4, %s' % (v(T), v(V.n)))
        a('v_lshl_add_u32 %s, %s, 13, %s' % (v(T), v(V.g), v(T)))
        a('s_lshl_b32 %s, %s, 9' % (sA, sW)); a('s_add_u32 %s, %s, %d' % (sA, sA, R1))
        a('v_add_u32 %s, %s, %s' % (v(V.X1w), sA, v(T)))
        a('s_lshl_b32 %s, %s, 12' % (sA, sW)); a('s_add_u32 %s, %s, %d' % (sA, sA, R1))
        a('v_add_u32 %s, %s, %s' % (v(V.X1r), sA, v(V.TR)))
        a('v_and_b32 %s, 16, %s' % (v(T), v(V.l16)))
        a('v_and_b32 %s, 2, %s' % (v(T+1), v(V.lane)))
        a('v_bfe_u32 %s, %s, 2, 1' % (v(T+2), v(V.lane)))
        a('v_add_u32 %s, %s, %s' % (v(T+1), v(T+1), v(T+2)))
        a('v_mul_u32_u24 %s, 8224, %s' % (v(T+1), v(T+1)))
        a('v_bfe_u32 %s, %s, 3, 2' % (v(T+2), v(V.lane)))
        a('v_lshl_add_u32 %s, %s, 11, %s' % (v(T), v(T+2), v(T)))
        a('v_and_b32 %s, 32, %s' % (v(T+2), v(V.lane)))
        a('v_add3_u32 %s, %s, %s, %s' % (v(T), v(T), v(T+1), v(T+2)))
        a('v_add_u32 %s, %s, %s' % (v(V.X2w), sWp, v(T)))
        a('s_and_b32 %s, %s, 1' % (sA, sW)); a('s_lshr_b32 %s, %s, 2' % (sB, sW)); a('s_lshl1_add_u32 %s, %s, %s' % (sA, sB, sA)); a('s_lshl_b32 %s, %s, 11' % (sA, sA))
        a('s_and_b32 %s, %s, 2' % (sB, sW)); a('s_mul_i32 %s, %s, 8224' % (sB, sB)); a('s_add_u32 %s, %s, %s' % (sA, sA, sB))
        a('v_add_u32 %s, %s, %s' % (v(V.X2r), sA, v(V.TR)))
    def addrs3(self):
        a = self.a; T = V.T
        a('v_and_b32 %s, 16, %s' % (v(T), v(V.lane)))
        a('v_and_b32 %s, 33, %s' % (v(T+1), v(V.lane)))
        a('v_lshl_add_u32 %s, %s, 5, %s' % (v(T), v(T+1), v(T)))
        a('v_and_b32 %s, 8, %s' % (v(T+1), v(V.lane)))
        a('v_lshl_add_u32 %s, %s, 9, %s' % (v(T), v(T+1), v(T)))
        a('v_and_b32 %s, 2, %s' % (v(T+1), v(V.lane)))
        a('v_and_b32 %s, 4, %s' % (v(T+2), v(V.lane)))
        a('v_mul_u32_u24 %s, 4104, %s' % (v(T+1), v(T+1)))
        a('v_mul_u32_u24 %s, 4112, %s' % (v(T+2), v(T+2)))
        a('v_add3_u32 %s, %s, %s, %s' % (v(T), v(T), v(T+1), v(T+2)))
        a('s_sub_u32 %s, 16, %s' % (sC, sW))
        a('s_cmp_eq_u32 %s, 0' % sW); a('s_cselect_b32 %s, 8, %s' % (sC, sC))
        for kl, dst in ((sW, V.X3w0), (sC, V.X3w1)):
            a('s_lshr_b32 %s, %s, 2' % (sA, kl)); a('s_and_b32 %s, %s, 1' % (sB, kl)); a('s_lshl1_add_u32 %s, %s, %s' % (sA, sA, sB))
            a('s_and_b32 %s, %s, 2' % (sB, kl)); a('s_lshl2_add_u32 %s, %s, %s' % (sA, sB, sA))
            a('s_lshl_b32 %s, %s, 6' % (sA, sA)); a('s_add_u32 %s, %s, %d' % (sA, sA, R1))
            a('v_add_u32 %s, %s, %s' % (v(dst), sA, v(T)))
        a('s_and_b32 %s, %s, 1' % (sA, sW)); a('s_mul_i32 %s, %s, 8208' % (sA, sA))
        a('s_and_b32 %s, %s, 2' % (sB, sW)); a('s_mul_i32 %s, %s, 8224' % (sB, sB)); a('s_add_u32 %s, %s, %s' % (sA, sA, sB))
        a('s_and_b32 %s, %s, 4' % (sB, sW)); a('s_lshl_b32 %s, %s, 10' % (sB, sB)); a('s_add_u32 %s, %s, %s' % (sA, sA, sB))
        a('s_add_u32 %s, %s, %d' % (sA, sA, R1))
        a('v_add_u32 %s, %s, %s' % (v(V.X3r), sA, v(V.TR)))
        a('v_and_b32 %s, 0x70, %s' % (v(T), v(V.l16)))
        a('v_lshlrev_b32 %s, 1, %s' % (v(V.Ooff), v(V.Xoff)))
        a('v_sub_u32 %s, %s, %s' % (v(V.Ooff), v(V.Ooff), v(T)))

    def mf16(self, d, A, B): return 'v_mfma_f32_16x16x32_bf16 %s, %s, %s, 0' % (vr(d, 4), vr(A, 4), vr(B, 4))
    def cvt(self, d, lo, hi): return 'v_cvt_pk_bf16_f32 %s, %s, %s' % (v(d), v(lo), v(hi))
    def mf32(self, d, i, pl, dataA):
        M = vr(V.F32+16*pl+4*i, 4); X = vr(V.O+4*i, 4)
        A, B = (X, M) if dataA else (M, X)
        D = vr(d+16*pl, 16)
        return 'v_mfma_f32_32x32x16_bf16 %s, %s, %s, %s' % (D, A, B, D if i else '0')
    def emit(self, L):
        for x in L: self.a(x)

    def p1(self):
        a = self.a; O, L, D, P = V.O, V.L, V.DA, V.DB
        for r in range(4):
            a('s_waitcnt vmcnt(%d)' % (3-r))
            if r == 3:
                self.stamp()
                if self.o['spos'] == 'mid': self.cond(sW, PW, self.side_load)
            for t in range(4): a('v_mov_b32 %s, %s' % (v(O+4*t+r), v(L+4*r+t)))
        for t in range(4):
            a(self.mf16(D+4*t, V.F16, O+4*t)); a(self.mf16(D+16+4*t, V.F16+4, O+4*t))
        if self.o['spos'] == 'late': self.cond(sW, PW, self.side_load)
        def sp():
            self.srds()
            a('s_mov_b32 %s, 0' % sDP); a('s_mov_b32 %s, %d' % (sDM, 1024*1026)); a('s_mov_b32 %s, %d' % (sWL, WL))
            self.w_dma()
        a('s_or_b32 %s, %s, %s' % (sA, sT, sW))
        self.far(sA, 0, sp)
        for r in range(4):
            a(self.cvt(P+4*r, D+r, D+4+r)); a(self.cvt(P+4*r+2, D+16+r, D+20+r))
        for r in range(4):
            a(self.cvt(P+4*r+1, D+8+r, D+12+r)); a(self.cvt(P+4*r+3, D+24+r, D+28+r))
            a('ds_write_b128 %s, %s offset:%d' % (v(V.X0w), vr(P+4*r, 4), 1024*r))
        self.mark('g1a')
        self.side_wait()
        self.mark('g1b')
        a('s_waitcnt lgkmcnt(0)')
        a('s_barrier')
        for ti in range(4):
            for ii in range(2):
                a('ds_read_b64_tr_b16 %s, %s offset:%d' % (vr(O+4*ti+2*ii, 2), v(V.X0r1 if ti >> 1 else V.X0r0), (ti & 1)*16448+ii*512))
        a('ds_read_b32 %s, %s' % (v(V.tmp), v(V.cnt)))
        for ti in range(4):
            a('s_waitcnt lgkmcnt(%d)' % (7-2*ti))
            a(self.mf16(D+4*ti, V.M2+8*(ti >> 1), O+4*ti)); a(self.mf16(D+16+4*ti, V.M2+8*(ti >> 1)+4, O+4*ti))
        a('s_waitcnt lgkmcnt(0)')
        self.side_use()
        for r in range(4): a('s_add_u32 %s, %s, 0x%x' % (sO[r], sEst, WS_U[0] + r*65536))
        st = lambda i: a('buffer_store_dwordx4 %s, %s, %s, %s offen %s' % (vr(P+4*i, 4), v(V.Est), SWS, sO[i], self.o['st1']))
        def normal():
            for i in range(4):
                for k in range(4): a(self.cvt(P+4*i+2*(k & 1)+(k >> 1), D+4*k+i, D+16+4*k+i))
                st(i)
        def w0():
            for i in range(4):
                ts, eb = i >> 1, i & 1
                for tau in range(2):
                    for sg in range(2):
                        x = 4*(2*ts+tau)+2*eb+sg
                        a(self.cvt(P+4*i+2*tau+sg, D+x, D+16+x))
                st(i)
        self.ifelse(sW, 0, w0, normal)

    def stage(self, src, dst, dataA, kind, prio, pre=None):
        a = self.a; T = V.T
        if self.o['prio']: a('s_setprio %d' % prio)
        G = []
        for i in range(4):
            g = []
            if kind == 'tw':
                for st in range(3):
                    for r in range(4):
                        rho = 4*i+r; x, y = v(src+rho), v(src+16+rho)
                        g.append('v_fmac_f32 %s, %s, %s' % ((y, v(V.TW+16+rho), x) if st == 1 else (x, v(V.TW+rho), y)))
                for r in range(4): g.append(self.cvt(V.O+4*i+r, src+4*i+r, src+16+4*i+r))
            else:
                t = T+4*(i & 1)
                for r in range(4):
                    rho = 4*i+r
                    g.append('v_mul_f32 %s, %s, %s' % (v(t+r), v(src+rho), v(V.W+rho)))
                for r in range(4):
                    rho = 4*i+r
                    if rho < 8: g.append('v_fma_f32 %s, -%s, %s, %s' % (v(t+r), v(src+16+rho), v(V.W+16+rho), v(t+r)))
                    else: g.append('v_fmac_f32 %s, %s, %s' % (v(t+r), v(src+16+rho), v(V.W+16+rho)))
                for r in range(4):
                    rho = 4*i+r
                    g.append('v_mul_f32 %s, %s, %s' % (v(src+16+rho), v(src+16+rho), v(V.W+rho)))
                for r in range(4):
                    rho = 4*i+r
                    if rho < 8: g.append('v_fmac_f32 %s, %s, %s' % (v(src+16+rho), v(src+rho), v(V.W+16+rho)))
                    else: g.append('v_fma_f32 %s, -%s, %s, %s' % (v(src+16+rho), v(src+rho), v(V.W+16+rho), v(src+16+rho)))
                for r in range(4): g.append(self.cvt(V.O+4*i+r, src+16+4*i+r, t+r))
            G.append(g)
        W = [[self.w_read1(4*i+r, im) for im in range(2) for r in range(4)] for i in range(4)] if kind == 'w' else None
        if kind == 'w':
            a('s_waitcnt vmcnt(2)')
            self.emit(W[0]); self.emit(W[1])
        for i in range(4):
            g = list(G[i]); n = len(g)
            ins = {}
            if i:
                ins.setdefault(2, []).append(self.mf32(dst, i-1, 0, dataA))
                ins.setdefault(2+n//2, []).append(self.mf32(dst, i-1, 1, dataA))
            if kind == 'w':
                a('s_waitcnt lgkmcnt(%d)' % (8 if i < 3 else 0))
                if i in (0, 2): self.emit(self.w_fix(i >> 1))
                if i < 2:
                    if i == 0: ins.setdefault(3, []).append('s_waitcnt vmcnt(0)')
                    for k, x in enumerate(W[i+2]): ins.setdefault(3+2*k, []).append(x)
            for k, x in enumerate(g):
                self.emit(ins.get(k, []))
                a(x)
        a(self.mf32(dst, 3, 0, dataA)); a(self.mf32(dst, 3, 1, dataA))

    def p2(self):
        a = self.a; O, L, D, T = V.O, V.L, V.DA, V.T
        na = self.p2na
        for cbb in range(2):
            b = L+12*cbb
            a('s_waitcnt vmcnt(%d)' % (na+3-2*cbb))
            a('v_mov_b32 %s, %s' % (v(b+8), v(b))); a('v_mov_b32 %s, %s' % (v(b+9), v(b+1)))
            a('s_waitcnt vmcnt(%d)' % (na+2-2*cbb))
            if cbb: self.stamp(); self.mark('f0')
            for jj2 in (1, 0):
                ti = 2*cbb+jj2; op = b+2 if jj2 else b+6; mo = 0 if jj2 else 2
                a(self.mf16(D+4*ti, V.B+mo, op)); a(self.mf16(D+16+4*ti, V.B+6+mo, op))
        for cbb in range(2):
            for k1b in range(2):
                P = O+4*(2*cbb+k1b)
                for jj2 in (1, 0):
                    for pl in range(2):
                        x = D+16*pl+4*(2*cbb+jj2)+2*k1b
                        a(self.cvt(P+2*pl+jj2, x, x+1))
                a('ds_write_b128 %s, %s offset:%d' % (v(V.X1w), vr(P, 4), k1b*4096+cbb*256))
        self.mark('f1')
        a('s_waitcnt lgkmcnt(0)')
        self.mark('f2', True)
        a('s_barrier')
        self.mark('x1', True)
        if self.o['prio']: a('s_setprio 3')
        for i in range(4):
            for ii in range(2):
                a('ds_read_b64_tr_b16 %s, %s offset:%d' % (vr(O+4*i+2*ii, 2), v(V.X1r), ii*1024+(i & 1)*512+(i >> 1)*2048))
        rows = {'postX1': (0, 1, 2, 3), 'barh': (2, 3), 'bar': ()}[self.o['wpos']]
        for i in range(4):
            if i < len(rows): self.w_dma1(rows[i])
            a('s_waitcnt lgkmcnt(%d)' % (6-2*i))
            a(self.mf32(V.DA, i, 0, True)); a(self.mf32(V.DA, i, 1, True))
        self.mark('f3')
        self.stage(V.DA, V.DB, False, 'tw', 2)
        self.mark('f4', True)
        self.far(sSpec, 1, self.pw_special, lambda: self.stage(V.DB, V.DA, True, 'w', 1))
        self.mark('f5')
        self.stage(V.DA, V.DB, True, 'tw', 0)
        self.mark('f6')
        D = V.DB
        for r in range(4): a('s_add_u32 %s, %s, 0x%x' % (sO[r], sEst, WS_U[1] + r*65536))
        rho = lambda jj3, jj1, jj2, c: 4*(2*jj3+jj1)+2*jj2+c
        for pl in range(2):
            for k in range(4):
                c, jj1 = k >> 1, k & 1
                P = V.DA+4*k
                for jj3 in range(2):
                    a(self.cvt(P+2*pl+jj3, D+16*pl+rho(jj3, jj1, 0, c), D+16*pl+rho(jj3, jj1, 1, c)))
                if pl: a('ds_write_b128 %s, %s offset:%d' % (v(V.X2w), vr(P, 4), c*64+jj1*1024))
        self.mark('f7'); self.mark('x2')
        a('s_waitcnt lgkmcnt(0)')
        self.mark('f8', True)
        a('s_barrier')
        for ti in range(4):
            for ii in range(2):
                a('ds_read_b64_tr_b16 %s, %s offset:%d' % (vr(O+4*ti+2*ii, 2), v(V.X2r), ii*512+(ti & 1)*1024+(ti >> 1)*8224))
        D = V.DA; P = V.DB
        for ti in range(4):
            a('s_waitcnt lgkmcnt(%d)' % (6-2*ti))
            a(self.mf16(D+4*ti, V.Bp, O+4*ti)); a(self.mf16(D+16+4*ti, V.Bp+4, O+4*ti))
        self.mark('f9')
        for q in range(4):
            cbb, sbb = q >> 1, q & 1
            for jj1 in range(2):
                for hf in range(2):
                    x = 4*(2*cbb+jj1)+2*sbb+hf
                    a(self.cvt(P+4*q+2*jj1+hf, D+x, D+16+x))
            a('buffer_store_dwordx4 %s, %s, %s, %s offen %s' % (vr(P+4*q, 4), v(V.Est), SWS, sO[q], self.o['st2']))
        self.mark('f10')

    def pw_special(self):
        a = self.a; T = V.T; O = V.O; C = V.DB; X = V.DA
        self.sigma_lane(T)
        a('v_lshrrev_b32 %s, 5, %s' % (v(T+1), v(V.lane)))
        a('v_lshlrev_b32 %s, 9, %s' % (v(T+1), v(T+1)))
        a('v_lshl_add_u32 %s, %s, 2, %s' % (v(T+2), v(T), v(T+1)))
        a('v_add_u32 %s, %d, %s' % (v(T+2), SCR, v(T+2)))
        a('v_add_u32 %s, 128, %s' % (v(T+3), v(T+2)))
        a('v_sub_u32 %s, 32, %s' % (v(T+4), v(T)))
        a('v_lshrrev_b32 %s, 5, %s' % (v(T+5), v(T+4)))
        a('v_and_b32 %s, 31, %s' % (v(T+4), v(T+4)))
        a('v_lshlrev_b32 %s, 2, %s' % (v(T+4), v(T+4)))
        a('v_lshl_add_u32 %s, %s, 8, %s' % (v(T+4), v(T+5), v(T+4)))
        a('v_sub_u32 %s, %s, %s' % (v(T+4), v(T+4), v(T+1)))
        a('v_add_u32 %s, %d, %s' % (v(T+4), SCR + 2*256, v(T+4)))
        a('v_add_u32 %s, 128, %s' % (v(T+5), v(T+4)))
        a('v_add_u32 %s, %d, %s' % (v(T+6), SCR_B, v(V.l16)))
        qs = lambda rho: sigma(8*(rho >> 2) + (rho & 3))
        for pl in range(2):
            for rho in range(0, 16, 2):
                a('ds_write2st64_b32 %s, %s, %s offset0:%d offset1:%d' % (v(T+2+pl), v(C+16*pl+rho), v(C+16*pl+rho+1), qs(rho), qs(rho+1)))
            a('ds_write_b32 %s, %s offset:%d' % (v(T+2+pl), v(C+16*pl), 32*256))
        t0, t1 = v(T+8), v(T+9)
        for half in range(2):
            for pl in range(2):
                for k in range(0, 8, 2):
                    r_ = 8*half+k
                    a('ds_read2st64_b32 %s, %s offset0:%d offset1:%d' % (vr(X+8*pl+k, 2), v(T+4+pl), 29-qs(r_), 29-qs(r_+1)))
                for k in range(2):
                    a('ds_read_b128 %s, %s offset:%d' % (vr(X+16+8*pl+4*k, 4), v(T+6), 1024*(4*pl+2*half+k)))
            a('s_waitcnt lgkmcnt(0)')
            for k in range(8):
                r_ = 8*half+k
                x, y = v(C+r_), v(C+16+r_); ar, ai = v(V.W+r_), v(V.W+16+r_)
                p, q_ = v(X+k), v(X+8+k); br, bi = v(X+16+k), v(X+24+k)
                ng, ps = ('', '-') if half else ('-', '')
                a('v_mul_f32 %s, %s, %s' % (t0, x, ar))
                a('v_mul_f32 %s, %s, %s' % (t1, y, ar))
                a('v_fma_f32 %s, %s%s, %s, %s' % (t0, ng, y, ai, t0))
                a('v_fma_f32 %s, %s%s, %s, %s' % (t1, ps, x, ai, t1))
                a('v_fmac_f32 %s, %s, %s' % (t0, p, br))
                a('v_fma_f32 %s, -%s, %s, %s' % (t1, q_, br, t1))
                a('v_fma_f32 %s, %s%s, %s, %s' % (t0, ps, q_, bi, t0))
                a('v_fma_f32 %s, %s%s, %s, %s' % (t1, ps, p, bi, t1))
                a(self.cvt(O+r_, T+9, T+8))
        for i in range(4): a(self.mf32(V.DA, i, 0, True)); a(self.mf32(V.DA, i, 1, True))

    def p3(self):
        a = self.a; O, L, D, P = V.O, V.L, V.DA, V.DB
        a('s_lshl4_add_u32 %s, %s, %s' % (sA, sW, sSB)); a('s_lshl1_add_u32 %s, %s, %s' % (sA, sA, sP))
        a('s_lshl4_add_u32 %s, %s, %s' % (sA, sA, sCB)); a('s_lshl_b32 %s, %s, 7' % (sO[0], sA))
        for r in range(1, 4): a('s_add_u32 %s, %s, 0x%x' % (sO[r], sO[0], r*524288))
        def normal():
            for i in range(4):
                a('s_waitcnt vmcnt(%d)' % (3-i))
                for sel in range(2):
                    for col in range(2): a('v_mov_b32 %s, %s' % (v(O+4*(2*sel+col)+i), v(L+4*i+2*col+sel)))
        def w0():
            for i in range(4):
                ts, eb = i >> 1, i & 1
                a('s_waitcnt vmcnt(%d)' % (3-i))
                for col in range(2):
                    for sg in range(2): a('v_mov_b32 %s, %s' % (v(O+4*(2*ts+col)+2*eb+sg), v(L+4*i+2*col+sg)))
        self.ifelse(sW, 0, w0, normal, True)
        self.stamp()
        for ti in range(4):
            a(self.mf16(D+4*ti, O+4*ti, V.M2+8*(ti >> 1))); a(self.mf16(D+16+4*ti, O+4*ti, V.M2+8*(ti >> 1)+4))
        for ti in range(4):
            for pl in range(2):
                for k in range(2):
                    x = D+16*pl+4*ti+2*k
                    a(self.cvt(P+4*ti+2*pl+k, x, x+1))
            a('ds_write_b128 %s, %s offset:%d' % (v(V.X3w1 if ti >> 1 else V.X3w0), vr(P+4*ti, 4), (ti & 1)*2048))
        a('s_waitcnt lgkmcnt(0)')
        a('s_barrier')
        for t in range(4):
            for ii in range(2):
                a('ds_read_b64_tr_b16 %s, %s offset:%d' % (vr(O+4*t+2*ii, 2), v(V.X3r), ii*512+t*1024))
        for t in range(4):
            a('s_waitcnt lgkmcnt(%d)' % (6-2*t))
            a(self.mf16(D+4*t, V.F16, O+4*t)); a(self.mf16(D+16+4*t, V.F16+4, O+4*t))
        for t in range(2):
            for r in range(4): a(self.cvt(P+4*r+t, D+16+4*t+r, D+4*t+r))
        for r in range(4):
            for t in (2, 3): a(self.cvt(P+4*r+t, D+16+4*t+r, D+4*t+r))
            a('buffer_store_dwordx4 %s, %s, %s, %s offen %s' % (vr(P+4*r, 4), v(V.Ooff), SOUT, sO[r], self.o['sto']))

    def ex_load(self, ex):
        a = self.a
        a('s_add_u32 %s, %s, 0x%x' % (sA, sEld, WS_U[ex]))
        for q in range(4):
            d = V.L+12*(q >> 1)+4*(q & 1) if ex == 0 else V.L+4*q
            a('buffer_load_dwordx4 %s, %s, %s, %s offen offset:%d %s' % (vr(d, 4), v(V.Eld), SWS, sA, 256*q, self.o['ld1' if ex == 0 else 'ld2']))

    def build(self):
        a = self.a; o = self.o
        name = NAME + '_kernel'
        a.raw('.globl %s\n.p2align 12\n.p2align 8\n.type %s,@function\n%s:' % (name, name, name))
        end = self.label('end')
        self.prologue(end)
        def others():
            self.touch(0)
            a('s_waitcnt lgkmcnt(0)')
            self.mark('karg')
            self.clear_issue()
            l = self.label('hold')
            a('s_cmp_lt_u32 %s, 8' % sCh); a('s_cbranch_scc1 %s' % l)
            self.x_issue()
            if o['pre']: self.cond(sW, PW, lambda: a('s_load_dword s95, s[20:21], 0x80'))
            a(l+':')
        self.ifelse(sCh, 0, self.probe, others, True)
        self.srds0(); self.addrs1()
        l = self.label('held')
        a('s_sub_u32 %s, %s, 1' % (sA, sCh)); a('s_cmp_ge_u32 %s, 7' % sA); a('s_cbranch_scc1 %s' % l)
        self.x_issue()
        a(l+':')
        self.gen_F16()
        self.gen_M2(); self.ex_addrs()
        self.clear_done()
        if o['touch']: self.cond(sT, 0, lambda: self.touch(1))
        if o['spos'] == 'early': self.cond(sW, PW, self.side_load)
        self.mark('w1')
        self.p1()
        self.stamp()
        a('s_load_dword %s, s[20:21], 0x0' % sRv)
        self.flag_addrs(); self.side_apply(); self.srds(); self.calc_k0()
        a('s_mov_b32 %s, 1' % sInc)
        self.coop_gen(); self.coop_post()
        a('s_waitcnt vmcnt(0) lgkmcnt(0)')
        self.stamp()
        self.ready_check()
        self.arrive()
        self.poll(0, lambda: (self.w_edge_load(), self.gen_B(), self.w_special()))
        self.stamp()
        self.ex_load(0)
        self.p2na = 0
        if o['wpos'] in ('bar', 'barh'):
            a('s_barrier'); self.p2na = 4 if o['wpos'] == 'bar' else 2
            for i in range(self.p2na): self.w_dma1(i)
        else: self.coop_wait()
        self.coop_read(); self.addrs2()
        a('s_waitcnt vmcnt(%d)' % (4+self.p2na))
        self.w_edge()
        a('s_mov_b32 %s, 0x10000' % sInc)
        if o.get('da') == 'glob': self.cond(sId, 0, lambda: a('s_atomic_swap s56, s[20:21], 0x40'))
        self.p2()
        self.stamp()
        self.gen_M3()
        self.mark('w3a')
        a('s_waitcnt vmcnt(0)')
        self.stamp()
        self.arrive()
        self.poll(1, self.addrs3)
        if o['ts']: a('s_mov_b32 s%d, %s' % (sTS+26, sCnt))
        self.stamp()
        self.ex_load(1)
        self.p3()
        self.diag_end()
        a(end+':'); a('s_endpgm')
        t, self.tail = self.tail, []
        for f in t: f()
        if o['touch']: self.insert_stubs()
        hdr = ('; GFNet spectral filter, two heads: 2-D FFT as bf16 MFMA DFT stages in one persistent launch (generated)\n'
               '; @launch grid=(256,1,1) block=(512,1,1) lds=%d\n' % LDS_TOTAL)
        kd = '''.section .rodata,"a"
.p2align 6
.amdhsa_kernel %s
  .amdhsa_next_free_vgpr %d
  .amdhsa_next_free_sgpr 102
  .amdhsa_accum_offset %d
  .amdhsa_group_segment_fixed_size 0
  .amdhsa_kernarg_size 72
  .amdhsa_user_sgpr_count 2
  .amdhsa_user_sgpr_kernarg_segment_ptr 1
  .amdhsa_system_sgpr_workgroup_id_x 1
.end_amdhsa_kernel
''' % (name, NVGPR, (NVGPR+3)//4*4)
        return hdr + '.amdgcn_target "amdgcn-amd-amdhsa--gfx950"\n.text\n' + a.text() + kd

    def insert_stubs(self):
        a = self.a
        txt = '.amdgcn_target "amdgcn-amd-amdhsa--gfx950"\n.text\n' + a.text() + ''.join('stub_%d:\n' % k for k in range(16)) + 's_endpgm\n'
        open('pass1.s', 'w').write(txt)
        subprocess.check_call(['clang', '-x', 'assembler', '-target', 'amdgcn-amd-amdhsa', '-mcpu=gfx950', '-c', 'pass1.s', '-o', 'pass1.o'])
        dis = subprocess.check_output(['llvm-objdump', '-d', '--mcpu=gfx950', 'pass1.o']).decode()
        addrs = [int(m.group(1), 16) for m in re.finditer(r'// ([0-9A-F]{12}):', dis)]
        real = [i for i, x in enumerate(a.ins) if x.kind != 'none']
        assert len(addrs) == len(real) + 1, (len(addrs), len(real))
        size = {real[k]: addrs[k+1] - addrs[k] for k in range(len(real))}
        pos = ENTRY_OFF; nxt = 2048
        out = []; k = 0; prev = None; ez = False
        for i, x in enumerate(a.ins):
            if i in size:
                if prev is not None and prev.text.strip() == 's_mov_b64 exec, 0': ez = True
                if prev is not None and prev.text.strip() == 's_mov_b64 exec, -1': ez = False
                if pos >= nxt and k < 16 and not ez:
                    out.append(Ins('stub_%d:' % k)); out.append(Ins('s_cbranch_execz ret_%d' % (k >> 3)))
                    pos += 4; k += 1; nxt += 1024
                pos += size[i]; prev = x
                if x.op == 's_endpgm': self.hot_end = pos
            out.append(x)
        self.code_end = pos
        while k < 16:
            out.append(Ins('stub_%d:' % k)); out.append(Ins('s_branch ret_%d' % (k >> 3))); k += 1
        a.ins = out

if __name__ == '__main__':
    out = sys.argv[1]; opt = {}
    for kv in sys.argv[2:]:
        k, x = kv.split('=')
        opt[k] = {'True': True, 'False': False}.get(x, x.replace('+', ' '))
    g = Gen(**opt)
    s = g.build()
    assert g.a.verify() == 0
    open(out, 'w').write(s)
    print(out, 'vgprs', NVGPR, 'lds', LDS_TOTAL, 'nops', g.a.nops, 'lines', len(g.a.ins), 'hot end 0x%x code end 0x%x' % (getattr(g, 'hot_end', 0), getattr(g, 'code_end', 0)))
```

```python
import sys, struct, math, subprocess, re
from asmlib import Asm, Ins

NAME = 'concat_heads__spectral_gfnet__spectral_gfnet__prompt'
def f2u(x): return struct.unpack('<I', struct.pack('<f', x))[0]
def lit(x): return '0x%08x' % f2u(x)
def sigma(m): return (m & 1) | ((m >> 1) & 1) << 3 | ((m >> 2) & 1) << 1 | ((m >> 3) & 1) << 2 | (m & 16)

SC = 2.0**-22
SPIN_MAX = 0x4000
ENTRY_OFF = 0x300
PW = int([x for x in sys.argv if x.startswith('pw=')][0][3:]) if any(x.startswith('pw=') for x in sys.argv) else 1
R0 = 0
R1 = 33024
WL = 66048
SCR = WL + 8*4*1056
SCR_B = SCR + 36*256
TABL = SCR_B + 8192
CNT = TABL + 16384
LDS_TOTAL = CNT + 64
WS_U = (0, 8 << 20)
WS_FLAG = 16 << 20
WS_PROBE = 17 << 20
WS_TS = 72 << 20
class V: pass
_n = [0]
def alloc(n, align=1):
    b = (_n[0] + align - 1)//align*align
    _n[0] = b + n
    return b
V.tid = alloc(1); V.lane = alloc(1)
for nm in 'g n l16 TR Xoff Est Eld X0w X0r0 X0r1 X1w X1r X2w X2r WP WM zero cnt tmp'.split(): setattr(V, nm, alloc(1))
V.Ooff, V.X3w0, V.X3w1, V.X3r = V.Xoff, V.X0w, V.X0r0, V.X0r1
V.T = alloc(10)
V.O = alloc(16, 4)
V.DA = alloc(32, 4); V.DB = alloc(32, 4); V.L = V.DB
V.F16 = alloc(8, 4); V.M2 = alloc(16, 4)
V.F32 = alloc(32, 4); V.TW = alloc(32, 4); V.W = alloc(32, 4)
V.B = alloc(12, 4); V.Bp = alloc(8, 4); V.WF = alloc(4)
NVGPR = _n[0]
assert NVGPR <= 256, NVGPR
def v(i): return 'v%d' % i
def vr(i, n): return 'v[%d:%d]' % (i, i+n-1)
SX, SWR, SWI, SOUT, SDBG, SWS = 's[4:7]', 's[8:11]', 's[12:15]', 's[16:19]', 's[20:23]', 's[24:27]'
sP, sT, sW, sSB, sCB, sK0, sKP, sKM, sWp, sRv = ['s%d' % i for i in range(30, 40)]
sA, sB, sC, sD, sE, sF, sEst, sEld, sCnt, sSpec, sInc, sWL = ['s%d' % i for i in range(40, 52)]
sO = ['s52', 's53', 's54', 's55']
sTS = 56
sDP, sDM, sZ, sCh, sId = 's96', 's97', 's98', 's99', 's100'

class Gen:
    def __init__(self, **opt):
        self.o = dict(ldx='', ldw='', st1='sc1', st2='sc1', sto='nt', ld1='sc1', ld2='sc1', ts=False,
                      prio=True, nb='4', pnop='15', force='', wpos='postX1', touch=True, w1n='9', spos='early', qw='1', qg='1', zg='3', xm='2', pb='17', wsoff='0', skip=True, pre=True, split=False, map='2', rep='1', slp='', sthr='')
        self.o.update(opt)
        self.a = Asm(); self.lab = 0; self.nts = 0; self.sid = -1; self.tail = []
    def label(self, p='L'):
        self.lab += 1
        return '%s_%d' % (p, self.lab)

    def mark(self, nm, drain=False):
        o = self.o; hit = False
        if o.get('clk') and nm in ('w1', 'g1a', 'x1', 'x2', 'w3a', 'end'):
            for op in ('s_memrealtime', 's_memtime'):
                self.a('%s s[%d:%d]' % (op, sTS+2*self.nts, sTS+2*self.nts+1)); self.nts += 1
            self.a('s_waitcnt lgkmcnt(0)')
        if o.get('fine') and nm[0] == 'f':
            self.a('s_memtime s[%d:%d]' % (sTS+2*self.nts, sTS+2*self.nts+1)); self.nts += 1; hit = True
        for key, reg in (('da', 58), ('db', 60)):
            if o.get(key) == nm:
                self.a('%s s[%d:%d]' % ('s_memtime' if 'cyc' in o else 's_memrealtime', reg, reg+1)); hit = True
        if hit and drain: self.a('s_waitcnt lgkmcnt(0)')
    def stamp(self):
        self.sid += 1
        self.mark('s%d' % self.sid)
        if not self.o['ts'] or self.o.get('clk') or self.o.get('fine'): return
        self.a('s_memrealtime s[%d:%d]' % (sTS+2*self.nts, sTS+2*self.nts+1)); self.nts += 1
    def diag_end(self):
        a = self.a; o = self.o
        self.mark('end')
        if not (o['ts'] or 'da' in o): return
        self.stamp(); a('s_waitcnt vmcnt(0)'); self.stamp()
        a('s_waitcnt lgkmcnt(0)')
        if 'da' in o:
            lp = self.label('dg')
            if o['da'] == 'glob':
                a('buffer_load_dword %s, %s, %s, 0 offen offset:64 sc1' % (v(V.tmp), v(V.zero), SDBG))
                a('s_waitcnt vmcnt(0)')
                a('v_readfirstlane_b32 s58, %s' % v(V.tmp)); a('s_mov_b32 s56, s58')
            a('s_sub_u32 %s, s60, s58' % sA)
            if 'db0' in o: a('s_add_u32 %s, %s, 250' % (sA, sA)); a('s_lshl_b32 %s, %s, 1' % (sA, sA))
            a('s_lshr_b32 %s, %s, 2' % (sA, sA) if 'cyc' in o else 's_lshl_b32 %s, %s, 2' % (sA, sA))
            for key, reg in (('dp', sP), ('dt', sT), ('db0', sId)):
                if key in o: a('s_cmp_eq_u32 %s, %s' % (reg, o[key])); a('s_cselect_b32 %s, %s, 0' % (sA, sA))
            a('s_min_u32 %s, %s, 9000' % (sA, sA))
            if 'enc' in o:
                a('s_and_b32 %s, s62, 7' % sB); a('s_mul_i32 %s, %s, 10000' % (sB, sB)); a('s_add_u32 %s, %s, %s' % (sA, sA, sB))
                a('s_bfe_u32 %s, s62, 0x30008' % sB); a('s_mul_i32 %s, %s, 100000' % (sB, sB)); a('s_add_u32 %s, %s, %s' % (sA, sA, sB))
            a('s_add_u32 %s, %s, 3000' % (sA, sA))
            a(lp+':')
            a('s_memrealtime s[28:29]'); a('s_waitcnt lgkmcnt(0)')
            a('s_sub_u32 %s, s28, s56' % sB); a('s_cmp_lt_u32 %s, %s' % (sB, sA)); a('s_cbranch_scc1 %s' % lp)
            return
        a('s_lshl_b32 %s, %s, 7' % (sA, sId)); a('s_add_u32 %s, %s, 0x%x' % (sA, sA, WS_TS))
        a('s_mov_b64 exec, 1')
        for i in range(14):
            a('v_mov_b32 %s, s%d' % (v(V.T), sTS+2*i))
            a('buffer_store_dword %s, %s, %s, %s offen offset:%d' % (v(V.T), v(V.zero), SWS, sA, 4*i))
            a('s_nop 1')

    def cond(self, reg, val, f):
        a = self.a; l = self.label('c')
        a('s_cmp_lg_u32 %s, %d' % (reg, val)); a('s_cbranch_scc1 %s' % l)
        f(); a(l+':')
    def ifelse(self, reg, val, feq, fne, eq_first=False):
        a = self.a; l0, l1 = self.label('ie'), self.label('iend')
        if eq_first:
            a('s_cmp_lg_u32 %s, %d' % (reg, val)); a('s_cbranch_scc1 %s' % l0)
            feq(); a('s_branch %s' % l1); a(l0+':'); fne()
        else:
            a('s_cmp_eq_u32 %s, %d' % (reg, val)); a('s_cbranch_scc1 %s' % l0)
            fne(); a('s_branch %s' % l1); a(l0+':'); feq()
        a(l1+':')
    def far(self, reg, val, feq, fne=None):
        a = self.a; l0, l1 = self.label('far'), self.label('back')
        a('s_cmp_eq_u32 %s, %d' % (reg, val)); a('s_cbranch_scc1 %s' % l0)
        if fne: fne()
        a(l1+':')
        def t():
            a(l0+':'); feq(); a('s_branch %s' % l1)
        self.tail.append(t)
    def touch(self, rnd, half=False):
        a = self.a
        a('s_mov_b64 exec, 0')
        if half:
            for k in range(3):
                a('s_cmp_eq_u32 %s, %d' % (sW, 4+k)); a('s_cbranch_scc1 stub_%d' % (2*k))
            a('s_branch stub_6')
        else:
            for k in range(7):
                a('s_cmp_eq_u32 %s, %d' % (sW, k)); a('s_cbranch_scc1 stub_%d' % (8*rnd+k))
            a('s_branch stub_%d' % (8*rnd+7))
        a('ret_%d:' % rnd)
        a('s_mov_b64 exec, -1')

    def prologue(self, end):
        a = self.a; T = V.T
        a('s_cmp_ge_u32 s2, 0x100')
        a('s_cbranch_scc1 %s' % end)
        if 'da' in self.o: a('s_memrealtime s[56:57]'); self.mark('start')
        a('s_bfe_u32 %s, s2, 0x10002' % sP)
        a('s_mul_i32 s3, %s, 24' % sP)
        a('s_load_dwordx2 s[4:5], s[0:1], s3')
        a('s_load_dwordx2 s[24:25], s[0:1], 0x40')
        a('s_load_dwordx2 s[20:21], s[0:1], 0x38')
        a('s_load_dwordx2 s[8:9], s[0:1], s3 offset:8')
        a('s_load_dwordx2 s[12:13], s[0:1], s3 offset:16')
        a('s_load_dwordx2 s[16:17], s[0:1], 0x30')
        self.stamp()
        a('v_lshrrev_b32 %s, 6, v0' % v(T))
        a('v_and_b32 %s, 63, v0' % v(V.lane))
        a('v_readfirstlane_b32 %s, %s' % (sW, v(T)))
        mp = self.o['map']
        a('s_and_b32 %s, s2, 3' % sA)
        if int(self.o['xm']): a('s_xor_b32 %s, %s, %s' % (sA, sA, self.o['xm']))
        if mp in ('0', '1'):
            a('s_bfe_u32 %s, s2, 0x10003' % sB)
            if mp == '0': a('s_lshl1_add_u32 %s, %s, %s' % (sA, sA, sB))
            else: a('s_lshl2_add_u32 %s, %s, %s' % (sA, sB, sA))
            a('s_lshr_b32 %s, s2, 4' % sB)
            a('s_lshl4_add_u32 %s, %s, %s' % (sT, sA, sB))
        else:
            a('s_lshr_b32 %s, s2, 3' % sB)
            a('s_lshl2_add_u32 %s, %s, %s' % (sT, sB, sA))
            a('s_lshr_b32 %s, %s, 4' % (sA, sT)); a('s_and_b32 %s, %s, 15' % (sB, sT))
        a('s_bfe_u32 %s, %s, 0x10001' % (sC, sB))
        a('s_lshl1_add_u32 %s, %s, %s' % (sCB, sA, sC))
        a('s_lshr_b32 %s, %s, 2' % (sSB, sB))
        a('s_and_b32 %s, %s, 1' % (sC, sB))
        a('s_lshl1_add_u32 %s, %s, %s' % (sSB, sSB, sC))
        a('s_mov_b32 s6, 0x400000'); a('s_mov_b32 s7, 0x20000')
        a('v_lshrrev_b32 %s, 4, %s' % (v(V.g), v(V.lane)))
        a('v_lshlrev_b32 %s, 4, %s' % (v(V.l16), v(V.lane)))
        a('v_and_b32 %s, 8, v0' % v(T))
        a('v_lshlrev_b32 %s, 11, %s' % (v(T), v(T)))
        a('v_lshl_add_u32 %s, %s, 20, %s' % (v(T), v(V.g), v(T)))
        a('v_and_b32 %s, 0x70, %s' % (v(T+1), v(V.l16)))
        a('v_add_u32 %s, %s, %s' % (v(V.Xoff), v(T), v(T+1)))
        a('s_lshl4_add_u32 %s, %s, %s' % (sA, sW, sSB))
        a('s_lshl4_add_u32 %s, %s, %s' % (sA, sA, sCB))
        a('s_lshl_b32 %s, %s, 7' % (sO[0], sA))
        for r in range(1, 4): a('s_add_u32 %s, %s, 0x%x' % (sO[r], sO[0], r*262144))
        a('s_lshl3_add_u32 %s, s2, %s' % (sId, sW))
        a('s_xor_b32 %s, %s, %d' % (sCh, sId, 8*int(self.o['qg'])+int(self.o['qw']))); a('s_and_b32 %s, %s, 0xffffff7f' % (sCh, sCh))
    def srds(self):
        a = self.a
        a('s_mov_b32 s10, 2101248'); a('s_mov_b32 s11, 0x20000')
        a('s_mov_b32 s14, 2101248'); a('s_mov_b32 s15, 0x20000')
        a('s_mov_b32 s18, 0x800000'); a('s_mov_b32 s19, 0x20000')
    def srds0(self):
        a = self.a
        a('s_mov_b32 s22, 256'); a('s_mov_b32 s23, 0x20000')
        a('s_mov_b32 s26, 0x%x' % ((80 if self.o['ts'] else 18) << 20)); a('s_mov_b32 s27, 0x20000')
        a('v_and_b32 %s, 15, %s' % (v(V.n), v(V.lane)))
        a('v_mov_b32 %s, 0' % v(V.zero)); a('v_mov_b32 %s, %d' % (v(V.cnt), CNT))

    def x_issue(self):
        for r in range(4):
            self.a('buffer_load_dwordx4 %s, %s, %s, %s offen %s' % (vr(V.L+4*r, 4), v(V.Xoff), SX, sO[r], self.o['ldx']))
    def probe(self):
        a = self.a; T = V.T
        a('s_bfe_u32 %s, s2, 0x10004' % sC)
        a('s_mul_i32 %s, %s, 0x3000' % (sA, sC)); a('s_add_u32 %s, %s, 0x%x' % (sA, sA, WS_FLAG))
        a('s_xor_b32 %s, %s, 0x2000' % (sB, sA))
        a('s_mov_b32 s26, 0x%x' % (18 << 20)); a('s_mov_b32 s27, 0x20000')
        a('s_lshl_b32 %s, %s, 3' % (sC, sC))
        a('v_lshlrev_b32 %s, 14, %s' % (v(T), v(V.lane)))
        for k in range(8): a('v_mov_b32 %s, 0' % v(V.DA+k))
        a('s_mov_b64 exec, 0xff')
        a('s_waitcnt lgkmcnt(0)')
        for side, base in enumerate((sA, sB)):
            for k in range(4):
                a('buffer_atomic_swap %s, %s, %s, %s offen offset:%d sc0 sc1' % (v(V.DA+side*4+k), v(T), SWS, base, k*1024))
        a('s_mov_b64 exec, -1')
        if self.o['pre']: a('s_load_dword s95, s[20:21], 0x80')
        self.x_issue()
        a('s_waitcnt vmcnt(8)')
        for x in self.o['pnop'].split(','): a('s_nop %s' % x)
        a('s_getreg_b32 %s, hwreg(HW_REG_IB_STS, 0, 4)' % sA)
        a('s_or_b32 %s, %s, 16' % (sA, sA)); a('s_lshl_b32 s94, %s, %s' % (sA, sC))
        a('s_waitcnt vmcnt(4)')
        a('s_atomic_or s94, s[20:21], 0x80')
    def side_load(self):
        self.a('buffer_load_dword %s, %s, %s, 0 offen offset:128 sc1' % (v(V.tmp), v(V.zero), SDBG))
    def side_wait(self):
        a = self.a
        def f():
            lp, ok = self.label('sw'), self.label('swok')
            a('s_mov_b32 %s, 0' % sCnt)
            a(lp+':')
            a('s_waitcnt vmcnt(0)')
            a('v_and_b32 %s, 0x1010, %s' % (v(V.T), v(V.tmp)))
            a('v_cmp_eq_u32 vcc, 0x1010, %s' % v(V.T))
            a('s_cbranch_vccnz %s' % ok)
            self.side_load()
            a('s_add_u32 %s, %s, 1' % (sCnt, sCnt))
            a('s_cmp_lt_u32 %s, 0x%x' % (sCnt, SPIN_MAX))
            a('s_cbranch_scc1 %s' % lp)
            a('s_waitcnt vmcnt(0)')
            a(ok+':')
            a('ds_write2_b32 %s, %s, %s offset0:0 offset1:1' % (v(V.cnt), v(V.tmp), v(V.zero)))
        self.cond(sW, PW, f)
    def side_use(self):
        a = self.a
        a('v_readfirstlane_b32 %s, %s' % (sA, v(V.tmp)))
        if self.o['ts']: a('s_mov_b32 s%d, %s' % (sTS+24, sA))
        if 'enc' in self.o: a('s_mov_b32 s62, %s' % sA)
        a('s_and_b32 %s, %s, 15' % (sB, sA)); a('s_bfe_u32 %s, %s, 0x40008' % (sA, sA))
        a('s_cmp_gt_u32 %s, %s' % (sA, sB))
        a('s_cselect_b32 %s, 0x2000, 0' % sCh)
        if self.o['force'] != '': a('s_mov_b32 %s, %d' % (sCh, int(self.o['force']) << 13))
        a('s_xor_b32 %s, %s, %s' % (sEst, sEst, sCh))
    def flag_addrs(self):
        a = self.a
        a('s_lshr_b32 %s, %s, 4' % (sB, sT))
        a('s_lshl_b32 %s, %s, 13' % (sA, sP)); a('s_add_u32 %s, %s, 0x%x' % (sA, sA, WS_FLAG))
        for dst, wp, gr in ((sF, sW, sB), (sE, sB, sW)):
            a('s_lshl4_add_u32 %s, %s, %s' % (sC, wp, gr)); a('s_lshl_b32 %s, %s, 10' % (sC, sC))
            a('s_add_u32 %s, %s, %s' % (dst, sC, sA))
        R = int(self.o['rep'])
        if R > 1:
            a('s_and_b32 %s, %s, %d' % (sC, sT, R-1)); a('s_lshl_b32 %s, %s, 8' % (sC, sC)); a('s_add_u32 %s, %s, %s' % (sE, sE, sC))
    def side_apply(self):
        for r in (sF, sE, sEld): self.a('s_xor_b32 %s, %s, %s' % (r, r, sCh))
    def arrive(self):
        for r in range(int(self.o['rep'])): self.a('s_atomic_add %s, s[24:25], %s offset:%d' % (sInc, sF, 256*r))
    def poll(self, ex, under=None):
        a = self.a; lp, ok = self.label('poll'), self.label('pollok')
        if under:
            a('s_mov_b32 %s, 0' % sRv)
            a('s_atomic_add %s, s[24:25], %s glc' % (sRv, sE))
            under()
            a('s_waitcnt lgkmcnt(0)')
            a('s_bitcmp1_b32 %s, %d' % (sRv, 4+16*ex))
            a('s_cbranch_scc1 %s' % ok)
        a('s_mov_b32 %s, 0' % sCnt)
        a(lp+':')
        a('s_mov_b32 %s, 0' % sRv)
        a('s_atomic_add %s, s[24:25], %s glc' % (sRv, sE))
        a('s_add_u32 %s, %s, 1' % (sCnt, sCnt))
        a('s_cmp_gt_u32 %s, 0x%x' % (sCnt, SPIN_MAX))
        a('s_waitcnt lgkmcnt(0)')
        a('s_cbranch_scc1 %s' % ok)
        if self.o['slp']:
            a('s_bitcmp1_b32 %s, %d' % (sRv, 4+16*ex))
            a('s_cbranch_scc1 %s' % ok)
            if self.o['sthr']:
                a('s_bfe_u32 %s, %s, 0x%x' % (sA, sRv, 0x50000+16*ex))
                a('s_cmp_ge_u32 %s, %s' % (sA, self.o['sthr'])); a('s_cbranch_scc1 %s' % lp)
            a('s_sleep %s' % self.o['slp'])
            a('s_branch %s' % lp)
        else:
            a('s_bitcmp0_b32 %s, %d' % (sRv, 4+16*ex))
            a('s_cbranch_scc1 %s' % lp)
        a(ok+':')
    def ex_addrs(self):
        a = self.a; T = V.T
        a('s_lshl_b32 %s, %s, 4' % (sB, sW)); a('s_xor_b32 %s, %s, %s' % (sB, sB, sT)); a('s_lshl_b32 %s, %s, 8' % (sB, sB))
        a('v_lshlrev_b32 %s, 4, %s' % (v(T), v(V.n)))
        a('v_lshl_add_u32 %s, %s, 10, %s' % (v(T), v(V.g), v(T)))
        a('v_xor_b32 %s, %s, %s' % (v(T), sB, v(T)))
        a('v_and_b32 %s, 0x6000, %s' % (v(T+1), v(T)))
        a('v_add_u32 %s, %s, %s' % (v(T), v(T), v(T+1)))
        a('v_lshl_add_u32 %s, %s, 18, %s' % (v(V.Est), v(V.g), v(T)))
        a('v_and_b32 %s, 0xdcff, %s' % (v(V.Eld), v(T)))
        a('s_bfe_u32 %s, %s, 0x10001' % (sA, sW)); a('s_xor_b32 %s, %s, %s' % (sA, sA, sP))
        a('s_bfe_u32 %s, %s, 0x10005' % (sC, sT)); a('s_xor_b32 %s, %s, %s' % (sC, sC, sP))
        a('s_lshl_b32 %s, %s, 7' % (sEst, sW)); a('s_add_u32 %s, %s, %s' % (sEst, sEst, sA)); a('s_lshl_b32 %s, %s, 13' % (sEst, sEst))
        a('s_lshl3_add_u32 %s, %s, %s' % (sEld, sT, sC)); a('s_lshl_b32 %s, %s, 13' % (sEld, sEld))

    def trig(self, x, re, im, conj_re=None, conj_im=None):
        a = self.a; c, s = V.T+8, V.T+9
        a('v_cos_f32 %s, %s' % (v(c), v(x)))
        a('v_sin_f32 %s, %s' % (v(s), v(x)))
        if getattr(self, 'fill', None): self.fill(); self.fill = None
        a('v_cvt_pk_bf16_f32 %s, %s, %s' % (v(re), v(c), v(s)))
        a('v_cvt_pk_bf16_f32 %s, -%s, %s' % (v(im), v(s), v(c)))
        if conj_re is not None:
            a('v_xor_b32 %s, 0x80000000, %s' % (v(conj_re), v(re)))
            a('v_xor_b32 %s, 0x8000, %s' % (v(conj_im), v(im)))
    def ladder(self, x, step, regs):
        a = self.a
        for k, r in enumerate(regs):
            if k < len(regs)-1: self.fill = lambda: a('v_add_f32 %s, %s, %s' % (v(x), v(x), v(step)))
            self.trig(x, *r)
    def gen_F16(self):
        a = self.a; T = V.T
        a('v_cvt_f32_u32 %s, %s' % (v(T), v(V.n)))
        a('v_cvt_f32_u32 %s, %s' % (v(T+1), v(V.g)))
        a('v_mul_f32 %s, %s, %s' % (v(T), lit(1/16), v(T)))
        a('v_mul_f32 %s, 4.0, %s' % (v(T+1), v(T+1)))
        a('v_mul_f32 %s, %s, %s' % (v(T+2), v(T), v(T+1)))
        self.ladder(T+2, T, [(V.F16+r, V.F16+4+r) for r in range(4)])
    def gen_M2(self):
        a = self.a; T = V.T
        def normal():
            a('v_cvt_f32_u32 %s, %s' % (v(T+2), sW))
            a('v_fmac_f32 %s, %s, %s' % (v(T), lit(1/256), v(T+2)))
            a('v_mul_f32 %s, %s, %s' % (v(T+2), v(T), v(T+1)))
            self.ladder(T+2, T, [(V.M2+r, V.M2+4+r, V.M2+8+r, V.M2+12+r) for r in range(4)])
        def w0():
            a('v_lshrrev_b32 %s, 1, %s' % (v(T), v(V.n)))
            a('v_cvt_f32_u32 %s, %s' % (v(T), v(T)))
            a('v_lshlrev_b32 %s, 31, %s' % (v(T+3), v(V.n)))
            a('v_add_f32 %s, 0.5, %s' % (v(T+4), v(T)))
            a('v_xor_b32 %s, %s, %s' % (v(T+3), lit(1/16), v(T+3)))
            a('v_cmp_ne_u32 vcc, 1, %s' % v(V.n))
            a('v_mul_f32 %s, %s, %s' % (v(T), v(T), v(T+3)))
            a('v_mul_f32 %s, %s, %s' % (v(T+4), v(T+4), v(T+3)))
            a('v_cndmask_b32 %s, 0.5, %s, vcc' % (v(T), v(T)))
            for ts in range(2):
                d = T+4*ts
                a('v_mul_f32 %s, %s, %s' % (v(T+2), v(d), v(T+1)))
                self.ladder(T+2, d, [(V.M2+8*ts+r, V.M2+8*ts+4+r) for r in range(4)])
        self.ifelse(sW, 0, w0, normal)
    def gen_M3(self):
        a = self.a; T = V.T
        a('v_cvt_f32_u32 %s, %s' % (v(T), v(V.n)))
        a('v_mul_f32 %s, %s, %s' % (v(T+1), lit(1/256), v(T)))
        a('v_mul_f32 %s, %s, %s' % (v(T), lit(1/16), v(T)))
        def normal():
            a('v_lshl_add_u32 %s, %s, 6, %s' % (v(T+2), v(V.g), sW))
            a('v_cvt_f32_u32 %s, %s' % (v(T+2), v(T+2)))
            a('v_mul_f32 %s, %s, %s' % (v(T+2), v(T+2), v(T+1)))
            self.ladder(T+2, T, [(V.M2+r, V.M2+4+r, V.M2+8+r, V.M2+12+r) for r in range(4)])
        def w0():
            a('v_lshlrev_b32 %s, 5, %s' % (v(T+2), v(V.g)))
            a('v_cvt_f32_u32 %s, %s' % (v(T+2), v(T+2)))
            a('v_mul_f32 %s, 0.5, %s' % (v(T), v(T)))
            a('v_mul_f32 %s, %s, %s' % (v(T+2), v(T+2), v(T+1)))
            regs = []
            for k in range(4):
                b = V.M2+8*(k & 1)+2*(k >> 1)
                regs.append((b, b+4, b+1, b+5))
            self.ladder(T+2, T, regs)
            a('s_mov_b64 exec, 0xffff')
            a('v_lshlrev_b32 %s, 15, %s' % (v(T+2), v(V.n)))
            a('v_and_b32 %s, 0x8000, %s' % (v(T+2), v(T+2)))
            a('v_or_b32 %s, 0x3f80, %s' % (v(V.M2+1), v(T+2)))
            a('v_lshlrev_b32 %s, 16, %s' % (v(V.M2+5), v(V.M2+1)))
            a('s_mov_b64 exec, -1')
        self.ifelse(sW, 0, w0, normal)
    def sigma_lane(self, dst):
        a = self.a; t = V.T+7
        a('v_and_b32 %s, 17, %s' % (v(dst), v(V.lane)))
        a('v_bfe_u32 %s, %s, 2, 2' % (v(t), v(V.lane)))
        a('v_lshl_add_u32 %s, %s, 1, %s' % (v(dst), v(t), v(dst)))
        a('v_and_b32 %s, 2, %s' % (v(t), v(V.lane)))
        a('v_lshl_add_u32 %s, %s, 2, %s' % (v(dst), v(t), v(dst)))
    def coop_gen(self):
        a = self.a; T = V.T; X = V.DA
        self.sigma_lane(T)
        a('v_lshrrev_b32 %s, 5, %s' % (v(T+1), v(V.lane)))
        a('v_lshlrev_b32 %s, 7, %s' % (v(T+2), v(T+1)))
        a('v_lshl_add_u32 %s, %s, 1, %s' % (v(T+2), v(T), v(T+2)))
        a('s_and_b32 %s, %s, 2' % (sD, sKP)); a('s_sub_u32 %s, %s, %s' % (sD, sWL, sD))
        a('v_add_u32 %s, %s, %s' % (v(V.WP), sD, v(T+2)))
        a('s_add_u32 %s, %s, %d' % (sD, sD, 1024-832))
        a('v_sub_u32 %s, %s, %s' % (v(V.WM), sD, v(T+2)))
        a('v_cvt_f32_u32 %s, %s' % (v(T), v(T)))
        a('s_mul_i32 %s, %s, 4' % (sA, sW)); a('s_lshr_b32 %s, 0x75643120, %s' % (sA, sA)); a('s_and_b32 %s, %s, 7' % (sA, sA)); a('s_lshl_b32 %s, %s, 2' % (sA, sA))
        a('v_lshl_add_u32 %s, %s, 1, %s' % (v(T+1), v(T+1), sA))
        a('v_mul_f32 %s, %s, %s' % (v(T), lit(1/2048), v(T)))
        a('v_cvt_f32_u32 %s, %s' % (v(T+1), v(T+1)))
        a('v_mul_f32 %s, %s, %s' % (v(T+2), v(T+1), v(T)))
        for e in range(2):
            a('v_cos_f32 %s, %s' % (v(T+5), v(T+2)))
            a('v_sin_f32 %s, %s' % (v(T+6), v(T+2)))
            a('v_rcp_f32 %s, %s' % (v(T+5), v(T+5)))
            a('v_mul_f32 %s, %s, %s' % (v(T+3), lit(64.0), v(T+2)))
            a('v_mul_f32 %s, %s, %s' % (v(X+4+e), v(T+6), v(T+5)))
            a('v_fma_f32 %s, %s, %s, 1.0' % (v(T+5), v(X+4+e), v(X+4+e)))
            a('v_rcp_f32 %s, %s' % (v(T+6), v(T+5)))
            a('v_mul_f32 %s, -2.0, %s' % (v(T+4), v(X+4+e)))
            a('v_fma_f32 %s, -%s, %s, 1.0' % (v(T+5), v(T+5), v(T+6)))
            a('v_fmac_f32 %s, %s, %s' % (v(T+6), v(T+5), v(T+6)))
            a('v_mul_f32 %s, %s, %s' % (v(X+6+e), v(T+6), v(T+4)))
            if e == 0: self.fill = lambda: a('v_add_f32 %s, %s, %s' % (v(T+2), v(T+2), v(T)))
            self.trig(T+3, X+e, X+2+e)
        a('s_lshr_b32 %s, %s, 1' % (sA, sW)); a('s_lshl_b32 %s, %s, 7' % (sA, sA))
        a('s_and_b32 %s, %s, 1' % (sB, sW)); a('s_add_u32 %s, %s, %s' % (sA, sA, sB))
        a('s_lshl3_add_u32 %s, %s, %d' % (sA, sA, TABL))
        a('v_add_u32 %s, %s, %s' % (v(T), sA, v(V.l16)))
        for k in range(4): a('ds_write_b64 %s, %s offset:%d' % (v(T), vr(X+2*k, 2), 4096*k))
    def coop_post(self):
        a = self.a
        a('v_mov_b32 %s, 1' % v(V.T+1))
        a('ds_add_u32 %s, %s offset:4' % (v(V.cnt), v(V.T+1)))
    def coop_wait(self):
        a = self.a; T = V.T; lp, ok = self.label('cw'), self.label('cwok')
        a('s_mov_b32 %s, 0' % sCnt)
        a(lp+':')
        a('ds_read_b32 %s, %s offset:4' % (v(T), v(V.cnt)))
        a('s_add_u32 %s, %s, 1' % (sCnt, sCnt))
        a('s_cmp_gt_u32 %s, 0x%x' % (sCnt, SPIN_MAX*8))
        a('s_waitcnt lgkmcnt(0)')
        a('s_cbranch_scc1 %s' % ok)
        a('v_cmp_gt_u32 vcc, 0x200, %s' % v(T))
        a('s_cbranch_vccnz %s' % lp)
        a(ok+':')
    def coop_read(self):
        a = self.a; T = V.T
        a('v_add_u32 %s, %d, %s' % (v(T), TABL, v(V.l16)))
        for k in range(16): a('ds_read_b128 %s, %s offset:%d' % (vr(V.F32+4*k, 4), v(T), 1024*k))
    def calc_k0(self):
        a = self.a
        a('s_lshr_b32 %s, %s, 4' % (sA, sT)); a('s_and_b32 %s, %s, 15' % (sB, sT))
        a('s_lshl4_add_u32 %s, %s, %s' % (sK0, sB, sA))
        a('s_and_b32 %s, %s, 12' % (sC, sB)); a('s_bfe_u32 %s, %s, 0x10001' % (sD, sB)); a('s_add_u32 %s, %s, %s' % (sC, sC, sD))
        a('s_and_b32 %s, %s, 1' % (sD, sB)); a('s_lshl1_add_u32 %s, %s, %s' % (sC, sD, sC)); a('s_lshl_b32 %s, %s, 3' % (sC, sC))
        a('s_cmp_eq_u32 %s, 0' % sA); a('s_cselect_b32 %s, %s, %s' % (sK0, sC, sK0))
        a('s_cmp_eq_u32 %s, 0' % sT); a('s_cselect_b32 %s, 7, 8' % sA)
        a('s_lshl_b32 %s, %s, %s' % (sKP, sW, sA)); a('s_add_u32 %s, %s, %s' % (sKP, sKP, sK0))
        a('s_sub_u32 %s, 0x800, %s' % (sKM, sKP))
        a('s_cmp_eq_u32 %s, 0' % sKP)
        a('s_cselect_b32 %s, 0x400, %s' % (sKM, sKM)); a('s_cselect_b32 %s, 1, 0' % sSpec)
        a('s_mul_i32 %s, %s, 1026' % (sKP, sKP)); a('s_mul_i32 %s, %s, 1026' % (sKM, sKM))
        a('s_mul_i32 %s, %s, 4224' % (sWL, sW)); a('s_add_u32 %s, %s, %d' % (sWL, sWL, WL))
        a('s_and_b32 %s, %s, 2' % (sA, sKP))
        a('s_add_u32 %s, %s, %s' % (sDP, sKP, sA)); a('s_add_u32 %s, %s, %s' % (sDM, sKM, sA))
    def gen_B(self):
        a = self.a; T = V.T; c, s = T+8, T+9
        a('v_lshrrev_b32 %s, 1, %s' % (v(T), v(V.n)))
        a('v_cvt_f32_u32 %s, %s' % (v(T+2), v(V.g)))
        a('v_and_b32 %s, 1, %s' % (v(T+3), v(V.n)))
        a('v_add_f32 %s, %s, %s' % (v(T+2), v(T+2), v(T+2)))
        def normal():
            a('v_lshl_add_u32 %s, %s, 8, %s' % (v(T+1), v(T), sK0))
            a('v_lshlrev_b32 %s, 4, %s' % (v(T+4), v(T+3)))
            a('v_cvt_f32_u32 %s, %s' % (v(T+1), v(T+1)))
            a('v_lshlrev_b32 %s, 31, %s' % (v(T+6), v(V.n)))
            a('v_cvt_f32_u32 %s, %s' % (v(T+3), v(T+3)))
            a('v_mul_f32 %s, %s, %s' % (v(T+1), lit(1/2048), v(T+1)))
            a('s_brev_b32 %s, 1' % sA)
            a('v_lshrrev_b32 %s, %s, %s' % (v(T+4), v(T+4), sA))
            a('v_mul_f32 %s, %s, %s' % (v(T+5), v(T+1), v(T+2)))
            a('v_fmac_f32 %s, %s, %s' % (v(T+5), lit(0.25), v(T+3)))
            for sbb in range(2):
                if sbb == 0: self.fill = lambda: a('v_add_f32 %s, %s, %s' % (v(T+5), v(T+5), v(T+1)))
                else: self.fill = lambda: a('v_cvt_f32_u32 %s, %s' % (v(T), v(T)))
                self.trig(T+5, V.B+2*sbb, V.B+6+2*sbb)
                a('v_xor_b32 %s, %s, %s' % (v(V.B+2*sbb+1), v(V.B+2*sbb), v(T+4)))
                a('v_xor_b32 %s, %s, %s' % (v(V.B+6+2*sbb+1), v(V.B+6+2*sbb), v(T+4)))
            a('v_lshl_add_u32 %s, %s, 9, %s' % (v(T+1), v(V.g), sK0))
            a('v_xor_b32 %s, %s, %s' % (v(T), v(T), v(T+6)))
            a('v_cvt_f32_u32 %s, %s' % (v(T+1), v(T+1)))
            a('v_mul_f32 %s, 0.5, %s' % (v(T+5), v(T+3)))
            a('v_mul_f32 %s, %s, %s' % (v(T+1), lit(1/2048), v(T+1)))
            a('v_fmac_f32 %s, %s, %s' % (v(T+5), v(T+1), v(T)))
            for ii in range(2):
                a('v_cos_f32 %s, %s' % (v(c), v(T+5)))
                a('v_sin_f32 %s, %s' % (v(s), v(T+5)))
                a('v_mul_f32 %s, %s, %s' % (v(c), lit(SC), v(c)))
                a('v_mul_f32 %s, %s, %s' % (v(s), lit(SC), v(s)))
                if ii == 0: a('v_fmac_f32 %s, %s, %s' % (v(T+5), lit(0.125), v(T)))
                a('v_cvt_pk_bf16_f32 %s, %s, %s' % (v(T+1), v(c), v(s)))
                a('v_cvt_pk_bf16_f32 %s, -%s, %s' % (v(T+2), v(s), v(c)))
                a('v_xor_b32 %s, %s, %s' % (v(V.Bp+2*ii), v(T+1), v(T+6)))
                a('v_xor_b32 %s, %s, %s' % (v(V.Bp+4+2*ii), v(T+2), v(T+6)))
                a('v_xor_b32 %s, %s, %s' % (v(V.Bp+2*ii+1), v(T+2), v(T+6)))
                a('v_xor_b32 %s, 0x80008000, %s' % (v(V.Bp+4+2*ii+1), v(V.Bp+2*ii)))
        def special():
            a('v_cvt_f32_u32 %s, %s' % (v(T+1), v(T)))
            a('v_mul_f32 %s, %s, %s' % (v(T+1), lit(1/16), v(T+1)))
            a('v_lshlrev_b32 %s, 4, %s' % (v(T+4), v(T+3)))
            a('v_cmp_eq_u32 s[84:85], 0, %s' % v(T))
            a('v_and_b32 %s, 1, %s' % (v(T+6), v(T)))
            a('v_cmp_eq_u32 s[86:87], 1, %s' % v(T+6))
            a('v_mul_f32 %s, %s, %s' % (v(T+5), v(T+1), v(T+2)))
            for sbb in range(2):
                a('v_cos_f32 %s, %s' % (v(c), v(T+5)))
                a('v_sin_f32 %s, %s' % (v(s), v(T+5)))
                a('v_mul_f32 %s, 2.0, %s' % (v(c), v(c)))
                a('v_mul_f32 %s, -2.0, %s' % (v(s), v(s)))
                a('v_cndmask_b32 %s, %s, 1.0, s[84:85]' % (v(c), v(c)))
                a('v_cndmask_b32 %s, %s, %s, s[84:85]' % (v(s), v(s), '-1.0' if sbb else '1.0'))
                for src, dst in ((c, V.B+2*sbb), (s, V.B+6+2*sbb)):
                    a('v_cvt_pk_bf16_f32 %s, %s, 0' % (v(T+7), v(src)))
                    a('v_lshlrev_b32 %s, %s, %s' % (v(T+7), v(T+4), v(T+7)))
                    a('v_cndmask_b32 %s, %s, 0, s[86:87]' % (v(dst), v(T+7)))
                    a('v_cndmask_b32 %s, 0, %s, s[86:87]' % (v(dst+1), v(T+7)))
                a('v_add_f32 %s, %s, %s' % (v(T+5), v(T+5), v(T+1)))
            a('v_cmp_eq_u32 s[88:89], 0, %s' % v(V.g))
            a('v_cmp_eq_u32 s[90:91], 1, %s' % v(T+3))
            a('v_lshlrev_b32 %s, 31, %s' % (v(T+6), v(T)))
            a('v_xor_b32 %s, %s, %s' % (v(T+6), lit(SC), v(T+6)))
            a('v_mov_b32 %s, %s' % (v(T+4), lit(SC)))
            a('v_mul_f32 %s, %s, %s' % (v(T+5), v(T+1), v(T+2)))
            for ii in range(2):
                a('v_cos_f32 %s, %s' % (v(c), v(T+5)))
                a('v_sin_f32 %s, %s' % (v(s), v(T+5)))
                a('v_mul_f32 %s, %s, %s' % (v(c), lit(2*SC), v(c)))
                a('v_mul_f32 %s, %s, %s' % (v(s), lit(-2*SC), v(s)))
                if ii == 0:
                    a('v_cndmask_b32 %s, %s, %s, s[88:89]' % (v(c), v(c), v(T+4)))
                    a('v_cndmask_b32 %s, %s, %s, s[88:89]' % (v(s), v(s), v(T+6)))
                a('v_cvt_pk_bf16_f32 %s, %s, %s' % (v(T+7), v(s), v(c)))
                if ii: a('v_cndmask_b32 %s, 0, %s, s[90:91]' % (v(T+7), v(T+7)))
                else: a('v_cndmask_b32 %s, %s, 0, s[90:91]' % (v(T+7), v(T+7)))
                a('v_mov_b32 %s, 0' % v(V.Bp+2*ii)); a('v_mov_b32 %s, %s' % (v(V.Bp+2*ii+1), v(T+7)))
                a('v_mov_b32 %s, %s' % (v(V.Bp+4+2*ii), v(T+7))); a('v_mov_b32 %s, 0' % v(V.Bp+4+2*ii+1))
                a('v_add_f32 %s, %s, %s' % (v(T+5), v(T+5), v(T+1)))
        self.far(sT, 0, special, normal)
        for d, r in ((4, 0), (5, 1), (10, 6), (11, 7)): a('v_mov_b32 %s, %s' % (v(V.B+d), v(V.B+r)))

    def wq(self, rho): return (rho & 1) + 8*((rho >> 1) & 1) + 4*((rho >> 2) & 1)
    def w_dma1(self, i):
        a = self.a
        srd, so = [(SWR, sDP), (SWI, sDP), (SWR, sDM), (SWI, sDM)][i]
        a('s_add_u32 m0, %s, %d' % (sWL, 1056*i))
        a('buffer_load_dwordx4 %s, %s, %s offen %s lds' % (v(V.l16), srd, so, self.o['ldw']))
    def w_dma(self):
        for i in range(4): self.w_dma1(i)
    def w_edge_load(self):
        a = self.a; T = V.T
        a('s_mov_b64 exec, 15')
        a('v_mov_b32 %s, %s' % (v(T), sKP)); a('v_mov_b32 %s, %s' % (v(T+1), sKM))
        a('s_mov_b64 vcc, 10')
        a('v_cndmask_b32 %s, %s, %s, vcc' % (v(T), v(T), v(T+1)))
        a('v_and_b32 %s, 2, %s' % (v(T+1), v(V.lane)))
        a('v_lshl_add_u32 %s, %s, 9, %s' % (v(T), v(T+1), v(T)))
        a('buffer_load_short_d16_hi %s, %s, %s, 0 offen' % (v(V.WF), v(T), SWR))
        a('buffer_load_short_d16_hi %s, %s, %s, 0 offen' % (v(V.WF+1), v(T), SWI))
        a('s_mov_b64 exec, -1')
    def w_edge_rl(self):
        for l in range(4):
            for im in range(2): self.a('v_readlane_b32 s%d, %s, %d' % (84+2*l+im, v(V.WF+im), l))
    def w_edge(self):
        a = self.a; T = V.T
        self.w_edge_rl()
        q = ((84, 86, 'add'), (85, 87, 'sub'), (90, 88, 'add'), (91, 89, 'sub'))
        for i, (x, y, op) in enumerate(q): a('v_mov_b32 %s, s%d' % (v(T+i), y))
        for i, (x, y, op) in enumerate(q): a('v_%s_f32 %s, s%d, %s' % (op, v(V.WF+i), x, v(T+i)))
        for i in range(4): a('v_mul_f32 %s, 0.5, %s' % (v(V.WF+i), v(V.WF+i)))
        a('s_mov_b64 s[92:93], 1')
    def w_read1(self, rho, im, dst=None, swap=False):
        dst = V.W if dst is None else dst
        if rho < 8: ad, off = V.WP, 64*self.wq(rho) + (2112 if swap else 0)
        else: ad, off = V.WM, 64*(13-self.wq(rho)) + (0 if swap else 2112)
        return 'ds_read_u16_d16_hi %s, %s offset:%d' % (v(dst+16*im+rho), v(ad), off+1056*im)
    def w_fix(self, half):
        return ['v_cndmask_b32 %s, %s, %s, s[92:93]' % (v(V.W+8*half+16*im), v(V.W+8*half+16*im), v(V.WF+2*half+im)) for im in range(2)]
    def w_special(self):
        a = self.a; T = V.T; X = V.DA
        def f():
            for sw, dst in ((False, V.W), (True, X)):
                for rho in range(16):
                    for im in range(2): a(self.w_read1(rho, im, dst, sw))
            a('s_waitcnt lgkmcnt(0) vmcnt(0)')
            self.w_edge_rl()
            a('s_mov_b64 exec, 1')
            for r in (V.W+16, V.W+24, X+16, X+24): a('v_mov_b32 %s, 0' % v(r))
            a('v_mov_b32 %s, s90' % v(V.W+8)); a('v_mov_b32 %s, s88' % v(X+8))
            a('s_mov_b64 exec, -1')
            for i in range(32):
                a('v_add_f32 %s, %s, %s' % (v(V.W+i), v(V.W+i), v(X+i)))
                if (i & 15) < 8: a('v_fma_f32 %s, -2.0, %s, %s' % (v(X+i), v(X+i), v(V.W+i)))
                else: a('v_fma_f32 %s, 2.0, %s, -%s' % (v(X+i), v(X+i), v(V.W+i)))
            a('v_add_u32 %s, %d, %s' % (v(T+1), SCR_B, v(V.l16)))
            for i in range(8): a('ds_write_b128 %s, %s offset:%d' % (v(T+1), vr(X+4*i, 4), 1024*i))
        self.far(sSpec, 1, f)

    def addrs1(self):
        a = self.a; T = V.T
        a('v_lshrrev_b32 %s, 3, %s' % (v(T), v(V.lane)))
        a('v_and_b32 %s, 0x30, %s' % (v(T+1), v(V.l16)))
        a('v_lshl_add_u32 %s, %s, 6, %s' % (v(T), v(T), v(T+1)))
        a('v_and_b32 %s, 4, %s' % (v(T+1), v(V.lane)))
        a('v_lshl_add_u32 %s, %s, 1, %s' % (v(V.TR), v(T+1), v(T)))
        a('v_xor_b32 %s, %s, %s' % (v(T), sSB, v(V.lane)))
        a('v_and_b32 %s, 1, %s' % (v(T), v(T)))
        a('v_mul_u32_u24 %s, 16448, %s' % (v(T), v(T)))
        a('v_lshl_add_u32 %s, %s, 12, %s' % (v(T), v(V.g), v(T)))
        a('v_lshl_add_u32 %s, %s, 2, %s' % (v(T), v(T+1), v(T)))
        a('v_and_b32 %s, 0x60, %s' % (v(T+1), v(V.TR)))
        a('s_lshr_b32 %s, %s, 1' % (sWp, sW)); a('s_and_b32 %s, %s, 1' % (sA, sW))
        a('s_lshl2_add_u32 %s, %s, %s' % (sWp, sA, sWp)); a('s_lshl_b32 %s, %s, 7' % (sWp, sWp))
        a('v_add3_u32 %s, %s, %s, %s' % (v(V.X0w), v(T), v(T+1), sWp))
        a('s_lshl_b32 %s, %s, 10' % (sA, sW))
        a('s_sub_u32 %s, 0x4000, %s' % (sB, sA))
        a('s_cmp_eq_u32 %s, 0' % sW); a('s_cselect_b32 %s, 0x2000, %s' % (sB, sB))
        a('v_add_u32 %s, %s, %s' % (v(V.X0r0), sA, v(V.TR)))
        a('v_add_u32 %s, %s, %s' % (v(V.X0r1), sB, v(V.TR)))
    def addrs2(self):
        a = self.a; T = V.T
        a('v_lshlrev_b32 %s, 4, %s' % (v(T), v(V.n)))
        a('v_lshl_add_u32 %s, %s, 13, %s' % (v(T), v(V.g), v(T)))
        a('s_lshl_b32 %s, %s, 9' % (sA, sW)); a('s_add_u32 %s, %s, %d' % (sA, sA, R1))
        a('v_add_u32 %s, %s, %s' % (v(V.X1w), sA, v(T)))
        a('s_lshl_b32 %s, %s, 12' % (sA, sW)); a('s_add_u32 %s, %s, %d' % (sA, sA, R1))
        a('v_add_u32 %s, %s, %s' % (v(V.X1r), sA, v(V.TR)))
        a('v_and_b32 %s, 16, %s' % (v(T), v(V.l16)))
        a('v_and_b32 %s, 2, %s' % (v(T+1), v(V.lane)))
        a('v_bfe_u32 %s, %s, 2, 1' % (v(T+2), v(V.lane)))
        a('v_add_u32 %s, %s, %s' % (v(T+1), v(T+1), v(T+2)))
        a('v_mul_u32_u24 %s, 8224, %s' % (v(T+1), v(T+1)))
        a('v_bfe_u32 %s, %s, 3, 2' % (v(T+2), v(V.lane)))
        a('v_lshl_add_u32 %s, %s, 11, %s' % (v(T), v(T+2), v(T)))
        a('v_and_b32 %s, 32, %s' % (v(T+2), v(V.lane)))
        a('v_add3_u32 %s, %s, %s, %s' % (v(T), v(T), v(T+1), v(T+2)))
        a('v_add_u32 %s, %s, %s' % (v(V.X2w), sWp, v(T)))
        a('s_and_b32 %s, %s, 1' % (sA, sW)); a('s_lshr_b32 %s, %s, 2' % (sB, sW)); a('s_lshl1_add_u32 %s, %s, %s' % (sA, sB, sA)); a('s_lshl_b32 %s, %s, 11' % (sA, sA))
        a('s_and_b32 %s, %s, 2' % (sB, sW)); a('s_mul_i32 %s, %s, 8224' % (sB, sB)); a('s_add_u32 %s, %s, %s' % (sA, sA, sB))
        a('v_add_u32 %s, %s, %s' % (v(V.X2r), sA, v(V.TR)))
    def addrs3(self):
        a = self.a; T = V.T
        a('v_and_b32 %s, 16, %s' % (v(T), v(V.lane)))
        a('v_and_b32 %s, 33, %s' % (v(T+1), v(V.lane)))
        a('v_lshl_add_u32 %s, %s, 5, %s' % (v(T), v(T+1), v(T)))
        a('v_and_b32 %s, 8, %s' % (v(T+1), v(V.lane)))
        a('v_lshl_add_u32 %s, %s, 9, %s' % (v(T), v(T+1), v(T)))
        a('v_and_b32 %s, 2, %s' % (v(T+1), v(V.lane)))
        a('v_and_b32 %s, 4, %s' % (v(T+2), v(V.lane)))
        a('v_mul_u32_u24 %s, 4104, %s' % (v(T+1), v(T+1)))
        a('v_mul_u32_u24 %s, 4112, %s' % (v(T+2), v(T+2)))
        a('v_add3_u32 %s, %s, %s, %s' % (v(T), v(T), v(T+1), v(T+2)))
        a('s_sub_u32 %s, 16, %s' % (sC, sW))
        a('s_cmp_eq_u32 %s, 0' % sW); a('s_cselect_b32 %s, 8, %s' % (sC, sC))
        for kl, dst in ((sW, V.X3w0), (sC, V.X3w1)):
            a('s_lshr_b32 %s, %s, 2' % (sA, kl)); a('s_and_b32 %s, %s, 1' % (sB, kl)); a('s_lshl1_add_u32 %s, %s, %s' % (sA, sA, sB))
            a('s_and_b32 %s, %s, 2' % (sB, kl)); a('s_lshl2_add_u32 %s, %s, %s' % (sA, sB, sA))
            a('s_lshl_b32 %s, %s, 6' % (sA, sA)); a('s_add_u32 %s, %s, %d' % (sA, sA, R1))
            a('v_add_u32 %s, %s, %s' % (v(dst), sA, v(T)))
        a('s_and_b32 %s, %s, 1' % (sA, sW)); a('s_mul_i32 %s, %s, 8208' % (sA, sA))
        a('s_and_b32 %s, %s, 2' % (sB, sW)); a('s_mul_i32 %s, %s, 8224' % (sB, sB)); a('s_add_u32 %s, %s, %s' % (sA, sA, sB))
        a('s_and_b32 %s, %s, 4' % (sB, sW)); a('s_lshl_b32 %s, %s, 10' % (sB, sB)); a('s_add_u32 %s, %s, %s' % (sA, sA, sB))
        a('s_add_u32 %s, %s, %d' % (sA, sA, R1))
        a('v_add_u32 %s, %s, %s' % (v(V.X3r), sA, v(V.TR)))
        a('v_and_b32 %s, 0x70, %s' % (v(T), v(V.l16)))
        a('v_lshlrev_b32 %s, 1, %s' % (v(V.Ooff), v(V.Xoff)))
        a('v_sub_u32 %s, %s, %s' % (v(V.Ooff), v(V.Ooff), v(T)))

    def mf16(self, d, A, B): return 'v_mfma_f32_16x16x32_bf16 %s, %s, %s, 0' % (vr(d, 4), vr(A, 4), vr(B, 4))
    def cvt(self, d, lo, hi): return 'v_cvt_pk_bf16_f32 %s, %s, %s' % (v(d), v(lo), v(hi))
    def mf32(self, d, i, pl, dataA):
        M = vr(V.F32+16*pl+4*i, 4); X = vr(V.O+4*i, 4)
        A, B = (X, M) if dataA else (M, X)
        D = vr(d+16*pl, 16)
        return 'v_mfma_f32_32x32x16_bf16 %s, %s, %s, %s' % (D, A, B, D if i else '0')
    def emit(self, L):
        for x in L: self.a(x)

    def p1(self):
        a = self.a; O, L, D, P = V.O, V.L, V.DA, V.DB
        for r in range(4):
            a('s_waitcnt vmcnt(%d)' % (3-r))
            if r == 3:
                self.stamp()
                if self.o['spos'] == 'mid': self.cond(sW, PW, self.side_load)
            for t in range(4): a('v_mov_b32 %s, %s' % (v(O+4*t+r), v(L+4*r+t)))
        for t in range(4):
            a(self.mf16(D+4*t, V.F16, O+4*t)); a(self.mf16(D+16+4*t, V.F16+4, O+4*t))
        if self.o['spos'] == 'late': self.cond(sW, PW, self.side_load)
        def sp():
            self.srds()
            a('s_mov_b32 %s, 0' % sDP); a('s_mov_b32 %s, %d' % (sDM, 1024*1026)); a('s_mov_b32 %s, %d' % (sWL, WL))
            self.w_dma()
        a('s_or_b32 %s, %s, %s' % (sA, sT, sW))
        self.far(sA, 0, sp)
        for r in range(4):
            a(self.cvt(P+4*r, D+r, D+4+r)); a(self.cvt(P+4*r+2, D+16+r, D+20+r))
        for r in range(4):
            a(self.cvt(P+4*r+1, D+8+r, D+12+r)); a(self.cvt(P+4*r+3, D+24+r, D+28+r))
            a('ds_write_b128 %s, %s offset:%d' % (v(V.X0w), vr(P+4*r, 4), 1024*r))
        self.mark('g1a')
        self.side_wait()
        self.mark('g1b')
        a('s_waitcnt lgkmcnt(0)')
        a('s_barrier')
        for ti in range(4):
            for ii in range(2):
                a('ds_read_b64_tr_b16 %s, %s offset:%d' % (vr(O+4*ti+2*ii, 2), v(V.X0r1 if ti >> 1 else V.X0r0), (ti & 1)*16448+ii*512))
        a('ds_read_b32 %s, %s' % (v(V.tmp), v(V.cnt)))
        for ti in range(4):
            a('s_waitcnt lgkmcnt(%d)' % (7-2*ti))
            a(self.mf16(D+4*ti, V.M2+8*(ti >> 1), O+4*ti)); a(self.mf16(D+16+4*ti, V.M2+8*(ti >> 1)+4, O+4*ti))
        a('s_waitcnt lgkmcnt(0)')
        self.side_use()
        for r in range(4): a('s_add_u32 %s, %s, 0x%x' % (sO[r], sEst, WS_U[0] + r*65536))
        st = lambda i: a('buffer_store_dwordx4 %s, %s, %s, %s offen %s' % (vr(P+4*i, 4), v(V.Est), SWS, sO[i], self.o['st1']))
        def normal():
            for i in range(4):
                for k in range(4): a(self.cvt(P+4*i+2*(k & 1)+(k >> 1), D+4*k+i, D+16+4*k+i))
                st(i)
        def w0():
            for i in range(4):
                ts, eb = i >> 1, i & 1
                for tau in range(2):
                    for sg in range(2):
                        x = 4*(2*ts+tau)+2*eb+sg
                        a(self.cvt(P+4*i+2*tau+sg, D+x, D+16+x))
                st(i)
        self.ifelse(sW, 0, w0, normal)

    def stage(self, src, dst, dataA, kind, prio, pre=None):
        a = self.a; T = V.T
        if self.o['prio']: a('s_setprio %d' % prio)
        G = []
        for i in range(4):
            g = []
            if kind == 'tw':
                for st in range(3):
                    for r in range(4):
                        rho = 4*i+r; x, y = v(src+rho), v(src+16+rho)
                        g.append('v_fmac_f32 %s, %s, %s' % ((y, v(V.TW+16+rho), x) if st == 1 else (x, v(V.TW+rho), y)))
                for r in range(4): g.append(self.cvt(V.O+4*i+r, src+4*i+r, src+16+4*i+r))
            else:
                t = T+4*(i & 1)
                for r in range(4):
                    rho = 4*i+r
                    g.append('v_mul_f32 %s, %s, %s' % (v(t+r), v(src+rho), v(V.W+rho)))
                for r in range(4):
                    rho = 4*i+r
                    if rho < 8: g.append('v_fma_f32 %s, -%s, %s, %s' % (v(t+r), v(src+16+rho), v(V.W+16+rho), v(t+r)))
                    else: g.append('v_fmac_f32 %s, %s, %s' % (v(t+r), v(src+16+rho), v(V.W+16+rho)))
                for r in range(4):
                    rho = 4*i+r
                    g.append('v_mul_f32 %s, %s, %s' % (v(src+16+rho), v(src+16+rho), v(V.W+rho)))
                for r in range(4):
                    rho = 4*i+r
                    if rho < 8: g.append('v_fmac_f32 %s, %s, %s' % (v(src+16+rho), v(src+rho), v(V.W+16+rho)))
                    else: g.append('v_fma_f32 %s, -%s, %s, %s' % (v(src+16+rho), v(src+rho), v(V.W+16+rho), v(src+16+rho)))
                for r in range(4): g.append(self.cvt(V.O+4*i+r, src+16+4*i+r, t+r))
            G.append(g)
        W = [[self.w_read1(4*i+r, im) for im in range(2) for r in range(4)] for i in range(4)] if kind == 'w' else None
        if kind == 'w':
            a('s_waitcnt vmcnt(2)')
            self.emit(W[0]); self.emit(W[1])
        for i in range(4):
            g = list(G[i]); n = len(g)
            ins = {}
            if i:
                ins.setdefault(2, []).append(self.mf32(dst, i-1, 0, dataA))
                ins.setdefault(2+n//2, []).append(self.mf32(dst, i-1, 1, dataA))
            if kind == 'w':
                a('s_waitcnt lgkmcnt(%d)' % (8 if i < 3 else 0))
                if i in (0, 2): self.emit(self.w_fix(i >> 1))
                if i < 2:
                    if i == 0: ins.setdefault(3, []).append('s_waitcnt vmcnt(0)')
                    for k, x in enumerate(W[i+2]): ins.setdefault(3+2*k, []).append(x)
            for k, x in enumerate(g):
                self.emit(ins.get(k, []))
                a(x)
        a(self.mf32(dst, 3, 0, dataA)); a(self.mf32(dst, 3, 1, dataA))

    def p2(self):
        a = self.a; O, L, D, T = V.O, V.L, V.DA, V.T
        na = self.p2na
        for cbb in range(2):
            b = L+12*cbb
            a('s_waitcnt vmcnt(%d)' % (na+3-2*cbb))
            a('v_mov_b32 %s, %s' % (v(b+8), v(b))); a('v_mov_b32 %s, %s' % (v(b+9), v(b+1)))
            a('s_waitcnt vmcnt(%d)' % (na+2-2*cbb))
            if cbb: self.stamp(); self.mark('f0')
            for jj2 in (1, 0):
                ti = 2*cbb+jj2; op = b+2 if jj2 else b+6; mo = 0 if jj2 else 2
                a(self.mf16(D+4*ti, V.B+mo, op)); a(self.mf16(D+16+4*ti, V.B+6+mo, op))
        for cbb in range(2):
            for k1b in range(2):
                P = O+4*(2*cbb+k1b)
                for jj2 in (1, 0):
                    for pl in range(2):
                        x = D+16*pl+4*(2*cbb+jj2)+2*k1b
                        a(self.cvt(P+2*pl+jj2, x, x+1))
                a('ds_write_b128 %s, %s offset:%d' % (v(V.X1w), vr(P, 4), k1b*4096+cbb*256))
        self.mark('f1')
        a('s_waitcnt lgkmcnt(0)')
        self.mark('f2', True)
        a('s_barrier')
        self.mark('x1', True)
        if self.o['prio']: a('s_setprio 3')
        for i in range(4):
            for ii in range(2):
                a('ds_read_b64_tr_b16 %s, %s offset:%d' % (vr(O+4*i+2*ii, 2), v(V.X1r), ii*1024+(i & 1)*512+(i >> 1)*2048))
        rows = {'postX1': (0, 1, 2, 3), 'barh': (2, 3), 'bar': ()}[self.o['wpos']]
        for i in range(4):
            if i < len(rows): self.w_dma1(rows[i])
            a('s_waitcnt lgkmcnt(%d)' % (6-2*i))
            a(self.mf32(V.DA, i, 0, True)); a(self.mf32(V.DA, i, 1, True))
        self.mark('f3')
        self.stage(V.DA, V.DB, False, 'tw', 2)
        self.mark('f4', True)
        self.far(sSpec, 1, self.pw_special, lambda: self.stage(V.DB, V.DA, True, 'w', 1))
        self.mark('f5')
        self.stage(V.DA, V.DB, True, 'tw', 0)
        self.mark('f6')
        D = V.DB
        for r in range(4): a('s_add_u32 %s, %s, 0x%x' % (sO[r], sEst, WS_U[1] + r*65536))
        rho = lambda jj3, jj1, jj2, c: 4*(2*jj3+jj1)+2*jj2+c
        for pl in range(2):
            for k in range(4):
                c, jj1 = k >> 1, k & 1
                P = V.DA+4*k
                for jj3 in range(2):
                    a(self.cvt(P+2*pl+jj3, D+16*pl+rho(jj3, jj1, 0, c), D+16*pl+rho(jj3, jj1, 1, c)))
                if pl: a('ds_write_b128 %s, %s offset:%d' % (v(V.X2w), vr(P, 4), c*64+jj1*1024))
        self.mark('f7'); self.mark('x2')
        a('s_waitcnt lgkmcnt(0)')
        self.mark('f8', True)
        a('s_barrier')
        for ti in range(4):
            for ii in range(2):
                a('ds_read_b64_tr_b16 %s, %s offset:%d' % (vr(O+4*ti+2*ii, 2), v(V.X2r), ii*512+(ti & 1)*1024+(ti >> 1)*8224))
        D = V.DA; P = V.DB
        for ti in range(4):
            a('s_waitcnt lgkmcnt(%d)' % (6-2*ti))
            a(self.mf16(D+4*ti, V.Bp, O+4*ti)); a(self.mf16(D+16+4*ti, V.Bp+4, O+4*ti))
        self.mark('f9')
        for q in range(4):
            cbb, sbb = q >> 1, q & 1
            for jj1 in range(2):
                for hf in range(2):
                    x = 4*(2*cbb+jj1)+2*sbb+hf
                    a(self.cvt(P+4*q+2*jj1+hf, D+x, D+16+x))
            a('buffer_store_dwordx4 %s, %s, %s, %s offen %s' % (vr(P+4*q, 4), v(V.Est), SWS, sO[q], self.o['st2']))
        self.mark('f10')

    def pw_special(self):
        a = self.a; T = V.T; O = V.O; C = V.DB; X = V.DA
        self.sigma_lane(T)
        a('v_lshrrev_b32 %s, 5, %s' % (v(T+1), v(V.lane)))
        a('v_lshlrev_b32 %s, 9, %s' % (v(T+1), v(T+1)))
        a('v_lshl_add_u32 %s, %s, 2, %s' % (v(T+2), v(T), v(T+1)))
        a('v_add_u32 %s, %d, %s' % (v(T+2), SCR, v(T+2)))
        a('v_add_u32 %s, 128, %s' % (v(T+3), v(T+2)))
        a('v_sub_u32 %s, 32, %s' % (v(T+4), v(T)))
        a('v_lshrrev_b32 %s, 5, %s' % (v(T+5), v(T+4)))
        a('v_and_b32 %s, 31, %s' % (v(T+4), v(T+4)))
        a('v_lshlrev_b32 %s, 2, %s' % (v(T+4), v(T+4)))
        a('v_lshl_add_u32 %s, %s, 8, %s' % (v(T+4), v(T+5), v(T+4)))
        a('v_sub_u32 %s, %s, %s' % (v(T+4), v(T+4), v(T+1)))
        a('v_add_u32 %s, %d, %s' % (v(T+4), SCR + 2*256, v(T+4)))
        a('v_add_u32 %s, 128, %s' % (v(T+5), v(T+4)))
        a('v_add_u32 %s, %d, %s' % (v(T+6), SCR_B, v(V.l16)))
        qs = lambda rho: sigma(8*(rho >> 2) + (rho & 3))
        for pl in range(2):
            for rho in range(0, 16, 2):
                a('ds_write2st64_b32 %s, %s, %s offset0:%d offset1:%d' % (v(T+2+pl), v(C+16*pl+rho), v(C+16*pl+rho+1), qs(rho), qs(rho+1)))
            a('ds_write_b32 %s, %s offset:%d' % (v(T+2+pl), v(C+16*pl), 32*256))
        t0, t1 = v(T+8), v(T+9)
        for half in range(2):
            for pl in range(2):
                for k in range(0, 8, 2):
                    r_ = 8*half+k
                    a('ds_read2st64_b32 %s, %s offset0:%d offset1:%d' % (vr(X+8*pl+k, 2), v(T+4+pl), 29-qs(r_), 29-qs(r_+1)))
                for k in range(2):
                    a('ds_read_b128 %s, %s offset:%d' % (vr(X+16+8*pl+4*k, 4), v(T+6), 1024*(4*pl+2*half+k)))
            a('s_waitcnt lgkmcnt(0)')
            for k in range(8):
                r_ = 8*half+k
                x, y = v(C+r_), v(C+16+r_); ar, ai = v(V.W+r_), v(V.W+16+r_)
                p, q_ = v(X+k), v(X+8+k); br, bi = v(X+16+k), v(X+24+k)
                ng, ps = ('', '-') if half else ('-', '')
                a('v_mul_f32 %s, %s, %s' % (t0, x, ar))
                a('v_mul_f32 %s, %s, %s' % (t1, y, ar))
                a('v_fma_f32 %s, %s%s, %s, %s' % (t0, ng, y, ai, t0))
                a('v_fma_f32 %s, %s%s, %s, %s' % (t1, ps, x, ai, t1))
                a('v_fmac_f32 %s, %s, %s' % (t0, p, br))
                a('v_fma_f32 %s, -%s, %s, %s' % (t1, q_, br, t1))
                a('v_fma_f32 %s, %s%s, %s, %s' % (t0, ps, q_, bi, t0))
                a('v_fma_f32 %s, %s%s, %s, %s' % (t1, ps, p, bi, t1))
                a(self.cvt(O+r_, T+9, T+8))
        for i in range(4): a(self.mf32(V.DA, i, 0, True)); a(self.mf32(V.DA, i, 1, True))

    def p3(self):
        a = self.a; O, L, D, P = V.O, V.L, V.DA, V.DB
        a('s_lshl4_add_u32 %s, %s, %s' % (sA, sW, sSB)); a('s_lshl1_add_u32 %s, %s, %s' % (sA, sA, sP))
        a('s_lshl4_add_u32 %s, %s, %s' % (sA, sA, sCB)); a('s_lshl_b32 %s, %s, 7' % (sO[0], sA))
        for r in range(1, 4): a('s_add_u32 %s, %s, 0x%x' % (sO[r], sO[0], r*524288))
        def normal():
            for i in range(4):
                a('s_waitcnt vmcnt(%d)' % (3-i))
                for sel in range(2):
                    for col in range(2): a('v_mov_b32 %s, %s' % (v(O+4*(2*sel+col)+i), v(L+4*i+2*col+sel)))
        def w0():
            for i in range(4):
                ts, eb = i >> 1, i & 1
                a('s_waitcnt vmcnt(%d)' % (3-i))
                for col in range(2):
                    for sg in range(2): a('v_mov_b32 %s, %s' % (v(O+4*(2*ts+col)+2*eb+sg), v(L+4*i+2*col+sg)))
        self.ifelse(sW, 0, w0, normal, True)
        self.stamp()
        for ti in range(4):
            a(self.mf16(D+4*ti, O+4*ti, V.M2+8*(ti >> 1))); a(self.mf16(D+16+4*ti, O+4*ti, V.M2+8*(ti >> 1)+4))
        for ti in range(4):
            for pl in range(2):
                for k in range(2):
                    x = D+16*pl+4*ti+2*k
                    a(self.cvt(P+4*ti+2*pl+k, x, x+1))
            a('ds_write_b128 %s, %s offset:%d' % (v(V.X3w1 if ti >> 1 else V.X3w0), vr(P+4*ti, 4), (ti & 1)*2048))
        a('s_waitcnt lgkmcnt(0)')
        a('s_barrier')
        for t in range(4):
            for ii in range(2):
                a('ds_read_b64_tr_b16 %s, %s offset:%d' % (vr(O+4*t+2*ii, 2), v(V.X3r), ii*512+t*1024))
        for t in range(4):
            a('s_waitcnt lgkmcnt(%d)' % (6-2*t))
            a(self.mf16(D+4*t, V.F16, O+4*t)); a(self.mf16(D+16+4*t, V.F16+4, O+4*t))
        for t in range(2):
            for r in range(4): a(self.cvt(P+4*r+t, D+16+4*t+r, D+4*t+r))
        for r in range(4):
            for t in (2, 3): a(self.cvt(P+4*r+t, D+16+4*t+r, D+4*t+r))
            a('buffer_store_dwordx4 %s, %s, %s, %s offen %s' % (vr(P+4*r, 4), v(V.Ooff), SOUT, sO[r], self.o['sto']))

    def ex_load(self, ex):
        a = self.a
        a('s_add_u32 %s, %s, 0x%x' % (sA, sEld, WS_U[ex]))
        for q in range(4):
            d = V.L+12*(q >> 1)+4*(q & 1) if ex == 0 else V.L+4*q
            a('buffer_load_dwordx4 %s, %s, %s, %s offen offset:%d %s' % (vr(d, 4), v(V.Eld), SWS, sA, 256*q, self.o['ld1' if ex == 0 else 'ld2']))

    def build(self):
        a = self.a; o = self.o
        name = NAME + '_kernel'
        a.raw('.globl %s\n.p2align 12\n.p2align 8\n.type %s,@function\n%s:' % (name, name, name))
        end = self.label('end')
        self.prologue(end)
        def others():
            self.touch(0)
            a('s_waitcnt lgkmcnt(0)')
            self.mark('karg')
            l = self.label('hold')
            a('s_cmp_lt_u32 %s, 8' % sCh); a('s_cbranch_scc1 %s' % l)
            self.x_issue()
            if o['pre']: self.cond(sW, PW, lambda: a('s_load_dword s95, s[20:21], 0x80'))
            a(l+':')
        self.ifelse(sCh, 0, self.probe, others, True)
        self.srds0(); self.addrs1()
        l = self.label('held')
        a('s_sub_u32 %s, %s, 1' % (sA, sCh)); a('s_cmp_ge_u32 %s, 7' % sA); a('s_cbranch_scc1 %s' % l)
        self.x_issue()
        a(l+':')
        self.gen_F16()
        self.gen_M2(); self.ex_addrs()
        if o['touch']: self.cond(sT, 0, lambda: self.touch(1))
        if o['spos'] == 'early': self.cond(sW, PW, self.side_load)
        self.mark('w1')
        self.p1()
        self.stamp()
        self.flag_addrs(); self.side_apply(); self.srds(); self.calc_k0()
        a('s_mov_b32 %s, 1' % sInc)
        self.coop_gen(); self.coop_post()
        a('s_waitcnt vmcnt(0)')
        self.stamp()
        self.arrive()
        self.poll(0, lambda: (self.w_edge_load(), self.gen_B(), self.w_special()))
        self.stamp()
        self.ex_load(0)
        self.p2na = 0
        if o['wpos'] in ('bar', 'barh'):
            a('s_barrier'); self.p2na = 4 if o['wpos'] == 'bar' else 2
            for i in range(self.p2na): self.w_dma1(i)
        else: self.coop_wait()
        self.coop_read(); self.addrs2()
        a('s_waitcnt vmcnt(%d)' % (4+self.p2na))
        self.w_edge()
        a('s_mov_b32 %s, 0x10000' % sInc)
        if o.get('da') == 'glob': self.cond(sId, 0, lambda: a('s_atomic_swap s56, s[20:21], 0x40'))
        self.p2()
        self.stamp()
        self.gen_M3()
        self.mark('w3a')
        a('s_waitcnt vmcnt(0)')
        self.stamp()
        self.arrive()
        self.poll(1, self.addrs3)
        if o['ts']: a('s_mov_b32 s%d, %s' % (sTS+26, sCnt))
        self.stamp()
        self.ex_load(1)
        self.p3()
        self.diag_end()
        a(end+':'); a('s_endpgm')
        t, self.tail = self.tail, []
        for f in t: f()
        if o['touch']: self.insert_stubs()
        hdr = ('; GFNet spectral filter, two heads: 2-D FFT as bf16 MFMA DFT stages in one persistent launch (generated)\n'
               '; @launch grid=(256,1,1) block=(512,1,1) lds=%d\n' % LDS_TOTAL)
        kd = '''.section .rodata,"a"
.p2align 6
.amdhsa_kernel %s
  .amdhsa_next_free_vgpr %d
  .amdhsa_next_free_sgpr 102
  .amdhsa_accum_offset %d
  .amdhsa_group_segment_fixed_size 0
  .amdhsa_kernarg_size 72
  .amdhsa_user_sgpr_count 2
  .amdhsa_user_sgpr_kernarg_segment_ptr 1
  .amdhsa_system_sgpr_workgroup_id_x 1
.end_amdhsa_kernel
''' % (name, NVGPR, (NVGPR+3)//4*4)
        return hdr + '.amdgcn_target "amdgcn-amd-amdhsa--gfx950"\n.text\n' + a.text() + kd

    def insert_stubs(self):
        a = self.a
        txt = '.amdgcn_target "amdgcn-amd-amdhsa--gfx950"\n.text\n' + a.text() + ''.join('stub_%d:\n' % k for k in range(16)) + 's_endpgm\n'
        open('pass1.s', 'w').write(txt)
        subprocess.check_call(['clang', '-x', 'assembler', '-target', 'amdgcn-amd-amdhsa', '-mcpu=gfx950', '-c', 'pass1.s', '-o', 'pass1.o'])
        dis = subprocess.check_output(['llvm-objdump', '-d', '--mcpu=gfx950', 'pass1.o']).decode()
        addrs = [int(m.group(1), 16) for m in re.finditer(r'// ([0-9A-F]{12}):', dis)]
        real = [i for i, x in enumerate(a.ins) if x.kind != 'none']
        assert len(addrs) == len(real) + 1, (len(addrs), len(real))
        size = {real[k]: addrs[k+1] - addrs[k] for k in range(len(real))}
        pos = ENTRY_OFF; nxt = 2048
        out = []; k = 0; prev = None; ez = False
        for i, x in enumerate(a.ins):
            if i in size:
                if prev is not None and prev.text.strip() == 's_mov_b64 exec, 0': ez = True
                if prev is not None and prev.text.strip() == 's_mov_b64 exec, -1': ez = False
                if pos >= nxt and k < 16 and not ez:
                    out.append(Ins('stub_%d:' % k)); out.append(Ins('s_cbranch_execz ret_%d' % (k >> 3)))
                    pos += 4; k += 1; nxt += 1024
                pos += size[i]; prev = x
                if x.op == 's_endpgm': self.hot_end = pos
            out.append(x)
        self.code_end = pos
        while k < 16:
            out.append(Ins('stub_%d:' % k)); out.append(Ins('s_branch ret_%d' % (k >> 3))); k += 1
        a.ins = out

if __name__ == '__main__':
    out = sys.argv[1]; opt = {}
    for kv in sys.argv[2:]:
        k, x = kv.split('=')
        opt[k] = {'True': True, 'False': False}.get(x, x.replace('+', ' '))
    g = Gen(**opt)
    s = g.build()
    assert g.a.verify() == 0
    open(out, 'w').write(s)
    print(out, 'vgprs', NVGPR, 'lds', LDS_TOTAL, 'nops', g.a.nops, 'lines', len(g.a.ins), 'hot end 0x%x code end 0x%x' % (getattr(g, 'hot_end', 0), getattr(g, 'code_end', 0)))
```

```python
import sys, struct, math, subprocess, re
from asmlib import Asm, Ins

NAME = 'concat_heads__spectral_gfnet__spectral_gfnet__prompt'
def f2u(x): return struct.unpack('<I', struct.pack('<f', x))[0]
def lit(x): return '0x%08x' % f2u(x)
def sigma(m): return (m & 1) | ((m >> 1) & 1) << 3 | ((m >> 2) & 1) << 1 | ((m >> 3) & 1) << 2 | (m & 16)

SC = 2.0**-22
SPIN_MAX = 0x4000
ENTRY_OFF = 0x300
PW = int([x for x in sys.argv if x.startswith('pw=')][0][3:]) if any(x.startswith('pw=') for x in sys.argv) else 1
R0 = 0
R1 = 33024
WL = 66048
SCR = WL + 8*4*1056
SCR_B = SCR + 36*256
TABL = SCR_B + 8192
CNT = TABL + 16384
LDS_TOTAL = CNT + 64
WS_U = (0, 8 << 20)
WS_FLAG = 16 << 20
WS_PROBE = 17 << 20
WS_TS = 72 << 20
class V: pass
_n = [0]
def alloc(n, align=1):
    b = (_n[0] + align - 1)//align*align
    _n[0] = b + n
    return b
V.tid = alloc(1); V.lane = alloc(1)
for nm in 'g n l16 TR Xoff Est Eld X0w X0r0 X0r1 X1w X1r X2w X2r WP WM zero cnt tmp'.split(): setattr(V, nm, alloc(1))
V.Ooff, V.X3w0, V.X3w1, V.X3r = V.Xoff, V.X0w, V.X0r0, V.X0r1
V.T = alloc(10)
V.O = alloc(16, 4)
V.DA = alloc(32, 4); V.DB = alloc(32, 4); V.L = V.DB
V.F16 = alloc(8, 4); V.M2 = alloc(16, 4)
V.F32 = alloc(32, 4); V.TW = alloc(32, 4); V.W = alloc(32, 4)
V.B = alloc(12, 4); V.Bp = alloc(8, 4); V.WF = alloc(4)
NVGPR = _n[0]
assert NVGPR <= 256, NVGPR
def v(i): return 'v%d' % i
def vr(i, n): return 'v[%d:%d]' % (i, i+n-1)
SX, SWR, SWI, SOUT, SDBG, SWS = 's[4:7]', 's[8:11]', 's[12:15]', 's[16:19]', 's[20:23]', 's[24:27]'
sP, sT, sW, sSB, sCB, sK0, sKP, sKM, sWp, sRv = ['s%d' % i for i in range(30, 40)]
sA, sB, sC, sD, sE, sF, sEst, sEld, sCnt, sSpec, sInc, sWL = ['s%d' % i for i in range(40, 52)]
sO = ['s52', 's53', 's54', 's55']
sTS = 56
sDP, sDM, sZ, sCh, sId = 's96', 's97', 's98', 's99', 's100'

class Gen:
    def __init__(self, **opt):
        self.o = dict(ldx='', ldw='', st1='sc1', st2='sc1', sto='nt', ld1='sc1', ld2='sc1', ts=False,
                      prio=True, nb='4', pnop='15', force='', wpos='postX1', touch=True, w1n='9', spos='early', qw='1', qg='1', zg='3', xm='2', pb='17', wsoff='0', pld='', pex='3', merge=False, pre=True, split=False, map='2', rep='1', slp='', sthr='')
        self.o.update(opt)
        self.a = Asm(); self.lab = 0; self.nts = 0; self.sid = -1; self.tail = []
    def label(self, p='L'):
        self.lab += 1
        return '%s_%d' % (p, self.lab)

    def mark(self, nm, drain=False):
        o = self.o; hit = False
        if o.get('clk') and nm in ('w1', 'g1a', 'x1', 'x2', 'w3a', 'end'):
            for op in ('s_memrealtime', 's_memtime'):
                self.a('%s s[%d:%d]' % (op, sTS+2*self.nts, sTS+2*self.nts+1)); self.nts += 1
            self.a('s_waitcnt lgkmcnt(0)')
        if o.get('fine') and nm[0] == 'f':
            self.a('s_memtime s[%d:%d]' % (sTS+2*self.nts, sTS+2*self.nts+1)); self.nts += 1; hit = True
        for key, reg in (('da', 58), ('db', 60)):
            if o.get(key) == nm:
                self.a('%s s[%d:%d]' % ('s_memtime' if 'cyc' in o else 's_memrealtime', reg, reg+1)); hit = True
        if hit and drain: self.a('s_waitcnt lgkmcnt(0)')
    def stamp(self):
        self.sid += 1
        self.mark('s%d' % self.sid)
        if not self.o['ts'] or self.o.get('clk') or self.o.get('fine'): return
        self.a('s_memrealtime s[%d:%d]' % (sTS+2*self.nts, sTS+2*self.nts+1)); self.nts += 1
    def diag_end(self):
        a = self.a; o = self.o
        self.mark('end')
        if not (o['ts'] or 'da' in o): return
        self.stamp(); a('s_waitcnt vmcnt(0)'); self.stamp()
        a('s_waitcnt lgkmcnt(0)')
        if 'da' in o:
            lp = self.label('dg')
            if o['da'] == 'glob':
                a('buffer_load_dword %s, %s, %s, 0 offen offset:64 sc1' % (v(V.tmp), v(V.zero), SDBG))
                a('s_waitcnt vmcnt(0)')
                a('v_readfirstlane_b32 s58, %s' % v(V.tmp)); a('s_mov_b32 s56, s58')
            a('s_sub_u32 %s, s60, s58' % sA)
            if 'db0' in o: a('s_add_u32 %s, %s, 250' % (sA, sA)); a('s_lshl_b32 %s, %s, 1' % (sA, sA))
            a('s_lshr_b32 %s, %s, 2' % (sA, sA) if 'cyc' in o else 's_lshl_b32 %s, %s, 2' % (sA, sA))
            for key, reg in (('dp', sP), ('dt', sT), ('db0', sId)):
                if key in o: a('s_cmp_eq_u32 %s, %s' % (reg, o[key])); a('s_cselect_b32 %s, %s, 0' % (sA, sA))
            a('s_min_u32 %s, %s, 9000' % (sA, sA))
            if 'enc' in o:
                a('s_and_b32 %s, s62, 7' % sB); a('s_mul_i32 %s, %s, 10000' % (sB, sB)); a('s_add_u32 %s, %s, %s' % (sA, sA, sB))
                a('s_bfe_u32 %s, s62, 0x30008' % sB); a('s_mul_i32 %s, %s, 100000' % (sB, sB)); a('s_add_u32 %s, %s, %s' % (sA, sA, sB))
            a('s_add_u32 %s, %s, 3000' % (sA, sA))
            a(lp+':')
            a('s_memrealtime s[28:29]'); a('s_waitcnt lgkmcnt(0)')
            a('s_sub_u32 %s, s28, s56' % sB); a('s_cmp_lt_u32 %s, %s' % (sB, sA)); a('s_cbranch_scc1 %s' % lp)
            return
        a('s_lshl_b32 %s, %s, 7' % (sA, sId)); a('s_add_u32 %s, %s, 0x%x' % (sA, sA, WS_TS))
        a('s_mov_b64 exec, 1')
        for i in range(14):
            a('v_mov_b32 %s, s%d' % (v(V.T), sTS+2*i))
            a('buffer_store_dword %s, %s, %s, %s offen offset:%d' % (v(V.T), v(V.zero), SWS, sA, 4*i))
            a('s_nop 1')

    def cond(self, reg, val, f):
        a = self.a; l = self.label('c')
        a('s_cmp_lg_u32 %s, %d' % (reg, val)); a('s_cbranch_scc1 %s' % l)
        f(); a(l+':')
    def ifelse(self, reg, val, feq, fne, eq_first=False):
        a = self.a; l0, l1 = self.label('ie'), self.label('iend')
        if eq_first:
            a('s_cmp_lg_u32 %s, %d' % (reg, val)); a('s_cbranch_scc1 %s' % l0)
            feq(); a('s_branch %s' % l1); a(l0+':'); fne()
        else:
            a('s_cmp_eq_u32 %s, %d' % (reg, val)); a('s_cbranch_scc1 %s' % l0)
            fne(); a('s_branch %s' % l1); a(l0+':'); feq()
        a(l1+':')
    def far(self, reg, val, feq, fne=None):
        a = self.a; l0, l1 = self.label('far'), self.label('back')
        a('s_cmp_eq_u32 %s, %d' % (reg, val)); a('s_cbranch_scc1 %s' % l0)
        if fne: fne()
        a(l1+':')
        def t():
            a(l0+':'); feq(); a('s_branch %s' % l1)
        self.tail.append(t)
    def touch(self, rnd, half=False):
        a = self.a
        a('s_mov_b64 exec, 0')
        if half:
            for k in range(3):
                a('s_cmp_eq_u32 %s, %d' % (sW, 4+k)); a('s_cbranch_scc1 stub_%d' % (2*k))
            a('s_branch stub_6')
        else:
            for k in range(7):
                a('s_cmp_eq_u32 %s, %d' % (sW, k)); a('s_cbranch_scc1 stub_%d' % (8*rnd+k))
            a('s_branch stub_%d' % (8*rnd+7))
        a('ret_%d:' % rnd)
        a('s_mov_b64 exec, -1')

    def prologue(self, end):
        a = self.a; T = V.T
        a('s_cmp_ge_u32 s2, 0x100')
        a('s_cbranch_scc1 %s' % end)
        if 'da' in self.o: a('s_memrealtime s[56:57]'); self.mark('start')
        a('s_bfe_u32 %s, s2, 0x10002' % sP)
        a('s_mul_i32 s3, %s, 24' % sP)
        a('s_load_dwordx2 s[4:5], s[0:1], s3')
        a('s_load_dwordx2 s[24:25], s[0:1], 0x40')
        a('s_load_dwordx2 s[20:21], s[0:1], 0x38')
        a('s_load_dwordx2 s[8:9], s[0:1], s3 offset:8')
        a('s_load_dwordx2 s[12:13], s[0:1], s3 offset:16')
        a('s_load_dwordx2 s[16:17], s[0:1], 0x30')
        self.stamp()
        a('v_lshrrev_b32 %s, 6, v0' % v(T))
        a('v_and_b32 %s, 63, v0' % v(V.lane))
        a('v_readfirstlane_b32 %s, %s' % (sW, v(T)))
        mp = self.o['map']
        a('s_and_b32 %s, s2, 3' % sA)
        if int(self.o['xm']): a('s_xor_b32 %s, %s, %s' % (sA, sA, self.o['xm']))
        if mp in ('0', '1'):
            a('s_bfe_u32 %s, s2, 0x10003' % sB)
            if mp == '0': a('s_lshl1_add_u32 %s, %s, %s' % (sA, sA, sB))
            else: a('s_lshl2_add_u32 %s, %s, %s' % (sA, sB, sA))
            a('s_lshr_b32 %s, s2, 4' % sB)
            a('s_lshl4_add_u32 %s, %s, %s' % (sT, sA, sB))
        else:
            a('s_lshr_b32 %s, s2, 3' % sB)
            a('s_lshl2_add_u32 %s, %s, %s' % (sT, sB, sA))
            a('s_lshr_b32 %s, %s, 4' % (sA, sT)); a('s_and_b32 %s, %s, 15' % (sB, sT))
        a('s_bfe_u32 %s, %s, 0x10001' % (sC, sB))
        a('s_lshl1_add_u32 %s, %s, %s' % (sCB, sA, sC))
        a('s_lshr_b32 %s, %s, 2' % (sSB, sB))
        a('s_and_b32 %s, %s, 1' % (sC, sB))
        a('s_lshl1_add_u32 %s, %s, %s' % (sSB, sSB, sC))
        a('s_mov_b32 s6, 0x400000'); a('s_mov_b32 s7, 0x20000')
        a('v_lshrrev_b32 %s, 4, %s' % (v(V.g), v(V.lane)))
        a('v_lshlrev_b32 %s, 4, %s' % (v(V.l16), v(V.lane)))
        a('v_and_b32 %s, 8, v0' % v(T))
        a('v_lshlrev_b32 %s, 11, %s' % (v(T), v(T)))
        a('v_lshl_add_u32 %s, %s, 20, %s' % (v(T), v(V.g), v(T)))
        a('v_and_b32 %s, 0x70, %s' % (v(T+1), v(V.l16)))
        a('v_add_u32 %s, %s, %s' % (v(V.Xoff), v(T), v(T+1)))
        a('s_lshl4_add_u32 %s, %s, %s' % (sA, sW, sSB))
        a('s_lshl4_add_u32 %s, %s, %s' % (sA, sA, sCB))
        a('s_lshl_b32 %s, %s, 7' % (sO[0], sA))
        for r in range(1, 4): a('s_add_u32 %s, %s, 0x%x' % (sO[r], sO[0], r*262144))
        a('s_lshl3_add_u32 %s, s2, %s' % (sId, sW))
        a('s_xor_b32 %s, %s, %d' % (sCh, sId, 8*int(self.o['qg'])+int(self.o['qw']))); a('s_and_b32 %s, %s, 0xffffff7f' % (sCh, sCh))
    def srds(self):
        a = self.a
        a('s_mov_b32 s10, 2101248'); a('s_mov_b32 s11, 0x20000')
        a('s_mov_b32 s14, 2101248'); a('s_mov_b32 s15, 0x20000')
        a('s_mov_b32 s18, 0x800000'); a('s_mov_b32 s19, 0x20000')
    def srds0(self):
        a = self.a
        a('s_mov_b32 s22, 256'); a('s_mov_b32 s23, 0x20000')
        a('s_mov_b32 s26, 0x%x' % ((80 if self.o['ts'] else 18) << 20)); a('s_mov_b32 s27, 0x20000')
        a('v_and_b32 %s, 15, %s' % (v(V.n), v(V.lane)))
        a('v_mov_b32 %s, 0' % v(V.zero)); a('v_mov_b32 %s, %d' % (v(V.cnt), CNT))

    def x_issue(self):
        for r in range(4):
            self.a('buffer_load_dwordx4 %s, %s, %s, %s offen %s' % (vr(V.L+4*r, 4), v(V.Xoff), SX, sO[r], self.o['ldx']))
    def probe(self):
        a = self.a; T = V.T; NB = int(self.o['nb']); ld = self.o['pld']
        a('s_bfe_u32 %s, s2, 0x10004' % sC)
        a('s_mul_i32 %s, %s, 0x12000' % (sA, sC)); a('s_add_u32 %s, %s, 0x%x' % (sA, sA, int(self.o['pb']) << 20))
        a('s_xor_b32 %s, %s, 0x2000' % (sB, sA))
        a('s_lshl_b32 %s, %s, 16' % (sD, sC)); a('s_add_u32 %s, %s, 0x%x' % (sD, sD, WS_FLAG))
        a('s_mov_b32 s26, 0x%x' % (18 << 20)); a('s_mov_b32 s27, 0x20000')
        a('s_lshl_b32 %s, %s, 3' % (sC, sC))
        a('v_mul_u32_u24 %s, 0x5080, %s' % (v(T), v(V.lane)))
        a('v_lshlrev_b32 %s, 10, %s' % (v(T+1), v(V.lane)))
        a('v_mov_b32 %s, 0' % v(T+2))
        if not ld:
            for k in range(2*NB): a('v_mov_b32 %s, 0' % v(V.DA+k))
        a('s_mov_b64 exec, %s' % self.o['pex'])
        a('s_waitcnt lgkmcnt(0)')
        for side, base in enumerate((sA, sB)):
            for k in range(NB):
                if ld: a('buffer_load_dword %s, %s, %s, %s offen offset:%d %s' % (v(V.DA+side*NB+k), v(T), SWS, base, k*0x300, ld))
                else: a('buffer_atomic_add %s, %s, %s, %s offen offset:%d sc0 sc1' % (v(V.DA+side*NB+k), v(T), SWS, base, k*0x300))
        a('s_mov_b64 exec, -1')
        a('buffer_store_dword %s, %s, %s, %s offen sc1' % (v(T+2), v(T+1), SWS, sD))
        if self.o['pre']: a('s_load_dword s95, s[20:21], 0x80')
        self.x_issue()
        a('s_waitcnt vmcnt(%d)' % (NB+5))
        for x in self.o['pnop'].split(','): a('s_nop %s' % x)
        a('s_getreg_b32 %s, hwreg(HW_REG_IB_STS, 0, 4)' % sA)
        a('s_or_b32 %s, %s, 16' % (sA, sA)); a('s_lshl_b32 s94, %s, %s' % (sA, sC))
        if self.o['merge']: a('s_waitcnt vmcnt(4)')
        a('s_atomic_or s94, s[20:21], 0x80')
    def clear_done(self):
        a = self.a
        if self.o['merge']: return
        def f():
            a('s_mov_b32 s93, 1'); a('s_waitcnt vmcnt(4)')
            a('s_atomic_add s93, s[20:21], 0x0')
        self.cond(sCh, 0, f)
    def ready_check(self):
        a = self.a; l0, l1 = self.label('rdy'), self.label('rdyok')
        a('s_cmp_ge_u32 %s, 2' % sRv)
        a('s_cbranch_scc1 %s' % l1)
        a('s_mov_b32 %s, 0' % sCnt)
        a(l0+':')
        a('buffer_load_dword %s, %s, %s, 0 offen sc1' % (v(V.tmp), v(V.zero), SDBG))
        a('s_add_u32 %s, %s, 1' % (sCnt, sCnt))
        a('s_cmp_gt_u32 %s, 0x%x' % (sCnt, SPIN_MAX))
        a('s_waitcnt vmcnt(0)')
        a('s_cbranch_scc1 %s' % l1)
        a('v_cmp_gt_u32 vcc, 2, %s' % v(V.tmp))
        a('s_cbranch_vccnz %s' % l0)
        a(l1+':')
    def side_load(self):
        self.a('buffer_load_dword %s, %s, %s, 0 offen offset:128 sc1' % (v(V.tmp), v(V.zero), SDBG))
    def side_wait(self):
        a = self.a
        def f():
            lp, ok = self.label('sw'), self.label('swok')
            a('s_mov_b32 %s, 0' % sCnt)
            a(lp+':')
            a('s_waitcnt vmcnt(0)')
            a('v_and_b32 %s, 0x1010, %s' % (v(V.T), v(V.tmp)))
            a('v_cmp_eq_u32 vcc, 0x1010, %s' % v(V.T))
            a('s_cbranch_vccnz %s' % ok)
            self.side_load()
            a('s_add_u32 %s, %s, 1' % (sCnt, sCnt))
            a('s_cmp_lt_u32 %s, 0x%x' % (sCnt, SPIN_MAX))
            a('s_cbranch_scc1 %s' % lp)
            a('s_waitcnt vmcnt(0)')
            a(ok+':')
            a('ds_write2_b32 %s, %s, %s offset0:0 offset1:1' % (v(V.cnt), v(V.tmp), v(V.zero)))
        self.cond(sW, PW, f)
    def side_use(self):
        a = self.a
        a('v_readfirstlane_b32 %s, %s' % (sA, v(V.tmp)))
        if self.o['ts']: a('s_mov_b32 s%d, %s' % (sTS+24, sA))
        if 'enc' in self.o: a('s_mov_b32 s62, %s' % sA)
        a('s_and_b32 %s, %s, 15' % (sB, sA)); a('s_bfe_u32 %s, %s, 0x40008' % (sA, sA))
        a('s_cmp_gt_u32 %s, %s' % (sA, sB))
        a('s_cselect_b32 %s, 0x2000, 0' % sCh)
        if self.o['force'] != '': a('s_mov_b32 %s, %d' % (sCh, int(self.o['force']) << 13))
        a('s_xor_b32 %s, %s, %s' % (sEst, sEst, sCh))
    def flag_addrs(self):
        a = self.a
        a('s_lshr_b32 %s, %s, 4' % (sB, sT))
        a('s_lshl_b32 %s, %s, 13' % (sA, sP)); a('s_add_u32 %s, %s, 0x%x' % (sA, sA, WS_FLAG))
        for dst, wp, gr in ((sF, sW, sB), (sE, sB, sW)):
            a('s_lshl4_add_u32 %s, %s, %s' % (sC, wp, gr)); a('s_lshl_b32 %s, %s, 10' % (sC, sC))
            a('s_add_u32 %s, %s, %s' % (dst, sC, sA))
        R = int(self.o['rep'])
        if R > 1:
            a('s_and_b32 %s, %s, %d' % (sC, sT, R-1)); a('s_lshl_b32 %s, %s, 8' % (sC, sC)); a('s_add_u32 %s, %s, %s' % (sE, sE, sC))
    def side_apply(self):
        for r in (sF, sE, sEld): self.a('s_xor_b32 %s, %s, %s' % (r, r, sCh))
    def arrive(self):
        for r in range(int(self.o['rep'])): self.a('s_atomic_add %s, s[24:25], %s offset:%d' % (sInc, sF, 256*r))
    def poll(self, ex, under=None):
        a = self.a; lp, ok = self.label('poll'), self.label('pollok')
        if under:
            a('s_mov_b32 %s, 0' % sRv)
            a('s_atomic_add %s, s[24:25], %s glc' % (sRv, sE))
            under()
            a('s_waitcnt lgkmcnt(0)')
            a('s_bitcmp1_b32 %s, %d' % (sRv, 4+16*ex))
            a('s_cbranch_scc1 %s' % ok)
        a('s_mov_b32 %s, 0' % sCnt)
        a(lp+':')
        a('s_mov_b32 %s, 0' % sRv)
        a('s_atomic_add %s, s[24:25], %s glc' % (sRv, sE))
        a('s_add_u32 %s, %s, 1' % (sCnt, sCnt))
        a('s_cmp_gt_u32 %s, 0x%x' % (sCnt, SPIN_MAX))
        a('s_waitcnt lgkmcnt(0)')
        a('s_cbranch_scc1 %s' % ok)
        if self.o['slp']:
            a('s_bitcmp1_b32 %s, %d' % (sRv, 4+16*ex))
            a('s_cbranch_scc1 %s' % ok)
            if self.o['sthr']:
                a('s_bfe_u32 %s, %s, 0x%x' % (sA, sRv, 0x50000+16*ex))
                a('s_cmp_ge_u32 %s, %s' % (sA, self.o['sthr'])); a('s_cbranch_scc1 %s' % lp)
            a('s_sleep %s' % self.o['slp'])
            a('s_branch %s' % lp)
        else:
            a('s_bitcmp0_b32 %s, %d' % (sRv, 4+16*ex))
            a('s_cbranch_scc1 %s' % lp)
        a(ok+':')
    def ex_addrs(self):
        a = self.a; T = V.T
        a('s_lshl_b32 %s, %s, 4' % (sB, sW)); a('s_xor_b32 %s, %s, %s' % (sB, sB, sT)); a('s_lshl_b32 %s, %s, 8' % (sB, sB))
        a('v_lshlrev_b32 %s, 4, %s' % (v(T), v(V.n)))
        a('v_lshl_add_u32 %s, %s, 10, %s' % (v(T), v(V.g), v(T)))
        a('v_xor_b32 %s, %s, %s' % (v(T), sB, v(T)))
        a('v_and_b32 %s, 0x6000, %s' % (v(T+1), v(T)))
        a('v_add_u32 %s, %s, %s' % (v(T), v(T), v(T+1)))
        a('v_lshl_add_u32 %s, %s, 18, %s' % (v(V.Est), v(V.g), v(T)))
        a('v_and_b32 %s, 0xdcff, %s' % (v(V.Eld), v(T)))
        a('s_bfe_u32 %s, %s, 0x10001' % (sA, sW)); a('s_xor_b32 %s, %s, %s' % (sA, sA, sP))
        a('s_bfe_u32 %s, %s, 0x10005' % (sC, sT)); a('s_xor_b32 %s, %s, %s' % (sC, sC, sP))
        a('s_lshl_b32 %s, %s, 7' % (sEst, sW)); a('s_add_u32 %s, %s, %s' % (sEst, sEst, sA)); a('s_lshl_b32 %s, %s, 13' % (sEst, sEst))
        a('s_lshl3_add_u32 %s, %s, %s' % (sEld, sT, sC)); a('s_lshl_b32 %s, %s, 13' % (sEld, sEld))

    def trig(self, x, re, im, conj_re=None, conj_im=None):
        a = self.a; c, s = V.T+8, V.T+9
        a('v_cos_f32 %s, %s' % (v(c), v(x)))
        a('v_sin_f32 %s, %s' % (v(s), v(x)))
        if getattr(self, 'fill', None): self.fill(); self.fill = None
        a('v_cvt_pk_bf16_f32 %s, %s, %s' % (v(re), v(c), v(s)))
        a('v_cvt_pk_bf16_f32 %s, -%s, %s' % (v(im), v(s), v(c)))
        if conj_re is not None:
            a('v_xor_b32 %s, 0x80000000, %s' % (v(conj_re), v(re)))
            a('v_xor_b32 %s, 0x8000, %s' % (v(conj_im), v(im)))
    def ladder(self, x, step, regs):
        a = self.a
        for k, r in enumerate(regs):
            if k < len(regs)-1: self.fill = lambda: a('v_add_f32 %s, %s, %s' % (v(x), v(x), v(step)))
            self.trig(x, *r)
    def gen_F16(self):
        a = self.a; T = V.T
        a('v_cvt_f32_u32 %s, %s' % (v(T), v(V.n)))
        a('v_cvt_f32_u32 %s, %s' % (v(T+1), v(V.g)))
        a('v_mul_f32 %s, %s, %s' % (v(T), lit(1/16), v(T)))
        a('v_mul_f32 %s, 4.0, %s' % (v(T+1), v(T+1)))
        a('v_mul_f32 %s, %s, %s' % (v(T+2), v(T), v(T+1)))
        self.ladder(T+2, T, [(V.F16+r, V.F16+4+r) for r in range(4)])
    def gen_M2(self):
        a = self.a; T = V.T
        def normal():
            a('v_cvt_f32_u32 %s, %s' % (v(T+2), sW))
            a('v_fmac_f32 %s, %s, %s' % (v(T), lit(1/256), v(T+2)))
            a('v_mul_f32 %s, %s, %s' % (v(T+2), v(T), v(T+1)))
            self.ladder(T+2, T, [(V.M2+r, V.M2+4+r, V.M2+8+r, V.M2+12+r) for r in range(4)])
        def w0():
            a('v_lshrrev_b32 %s, 1, %s' % (v(T), v(V.n)))
            a('v_cvt_f32_u32 %s, %s' % (v(T), v(T)))
            a('v_lshlrev_b32 %s, 31, %s' % (v(T+3), v(V.n)))
            a('v_add_f32 %s, 0.5, %s' % (v(T+4), v(T)))
            a('v_xor_b32 %s, %s, %s' % (v(T+3), lit(1/16), v(T+3)))
            a('v_cmp_ne_u32 vcc, 1, %s' % v(V.n))
            a('v_mul_f32 %s, %s, %s' % (v(T), v(T), v(T+3)))
            a('v_mul_f32 %s, %s, %s' % (v(T+4), v(T+4), v(T+3)))
            a('v_cndmask_b32 %s, 0.5, %s, vcc' % (v(T), v(T)))
            for ts in range(2):
                d = T+4*ts
                a('v_mul_f32 %s, %s, %s' % (v(T+2), v(d), v(T+1)))
                self.ladder(T+2, d, [(V.M2+8*ts+r, V.M2+8*ts+4+r) for r in range(4)])
        self.ifelse(sW, 0, w0, normal)
    def gen_M3(self):
        a = self.a; T = V.T
        a('v_cvt_f32_u32 %s, %s' % (v(T), v(V.n)))
        a('v_mul_f32 %s, %s, %s' % (v(T+1), lit(1/256), v(T)))
        a('v_mul_f32 %s, %s, %s' % (v(T), lit(1/16), v(T)))
        def normal():
            a('v_lshl_add_u32 %s, %s, 6, %s' % (v(T+2), v(V.g), sW))
            a('v_cvt_f32_u32 %s, %s' % (v(T+2), v(T+2)))
            a('v_mul_f32 %s, %s, %s' % (v(T+2), v(T+2), v(T+1)))
            self.ladder(T+2, T, [(V.M2+r, V.M2+4+r, V.M2+8+r, V.M2+12+r) for r in range(4)])
        def w0():
            a('v_lshlrev_b32 %s, 5, %s' % (v(T+2), v(V.g)))
            a('v_cvt_f32_u32 %s, %s' % (v(T+2), v(T+2)))
            a('v_mul_f32 %s, 0.5, %s' % (v(T), v(T)))
            a('v_mul_f32 %s, %s, %s' % (v(T+2), v(T+2), v(T+1)))
            regs = []
            for k in range(4):
                b = V.M2+8*(k & 1)+2*(k >> 1)
                regs.append((b, b+4, b+1, b+5))
            self.ladder(T+2, T, regs)
            a('s_mov_b64 exec, 0xffff')
            a('v_lshlrev_b32 %s, 15, %s' % (v(T+2), v(V.n)))
            a('v_and_b32 %s, 0x8000, %s' % (v(T+2), v(T+2)))
            a('v_or_b32 %s, 0x3f80, %s' % (v(V.M2+1), v(T+2)))
            a('v_lshlrev_b32 %s, 16, %s' % (v(V.M2+5), v(V.M2+1)))
            a('s_mov_b64 exec, -1')
        self.ifelse(sW, 0, w0, normal)
    def sigma_lane(self, dst):
        a = self.a; t = V.T+7
        a('v_and_b32 %s, 17, %s' % (v(dst), v(V.lane)))
        a('v_bfe_u32 %s, %s, 2, 2' % (v(t), v(V.lane)))
        a('v_lshl_add_u32 %s, %s, 1, %s' % (v(dst), v(t), v(dst)))
        a('v_and_b32 %s, 2, %s' % (v(t), v(V.lane)))
        a('v_lshl_add_u32 %s, %s, 2, %s' % (v(dst), v(t), v(dst)))
    def coop_gen(self):
        a = self.a; T = V.T; X = V.DA
        self.sigma_lane(T)
        a('v_lshrrev_b32 %s, 5, %s' % (v(T+1), v(V.lane)))
        a('v_lshlrev_b32 %s, 7, %s' % (v(T+2), v(T+1)))
        a('v_lshl_add_u32 %s, %s, 1, %s' % (v(T+2), v(T), v(T+2)))
        a('s_and_b32 %s, %s, 2' % (sD, sKP)); a('s_sub_u32 %s, %s, %s' % (sD, sWL, sD))
        a('v_add_u32 %s, %s, %s' % (v(V.WP), sD, v(T+2)))
        a('s_add_u32 %s, %s, %d' % (sD, sD, 1024-832))
        a('v_sub_u32 %s, %s, %s' % (v(V.WM), sD, v(T+2)))
        a('v_cvt_f32_u32 %s, %s' % (v(T), v(T)))
        a('s_mul_i32 %s, %s, 4' % (sA, sW)); a('s_lshr_b32 %s, 0x75643120, %s' % (sA, sA)); a('s_and_b32 %s, %s, 7' % (sA, sA)); a('s_lshl_b32 %s, %s, 2' % (sA, sA))
        a('v_lshl_add_u32 %s, %s, 1, %s' % (v(T+1), v(T+1), sA))
        a('v_mul_f32 %s, %s, %s' % (v(T), lit(1/2048), v(T)))
        a('v_cvt_f32_u32 %s, %s' % (v(T+1), v(T+1)))
        a('v_mul_f32 %s, %s, %s' % (v(T+2), v(T+1), v(T)))
        for e in range(2):
            a('v_cos_f32 %s, %s' % (v(T+5), v(T+2)))
            a('v_sin_f32 %s, %s' % (v(T+6), v(T+2)))
            a('v_rcp_f32 %s, %s' % (v(T+5), v(T+5)))
            a('v_mul_f32 %s, %s, %s' % (v(T+3), lit(64.0), v(T+2)))
            a('v_mul_f32 %s, %s, %s' % (v(X+4+e), v(T+6), v(T+5)))
            a('v_fma_f32 %s, %s, %s, 1.0' % (v(T+5), v(X+4+e), v(X+4+e)))
            a('v_rcp_f32 %s, %s' % (v(T+6), v(T+5)))
            a('v_mul_f32 %s, -2.0, %s' % (v(T+4), v(X+4+e)))
            a('v_fma_f32 %s, -%s, %s, 1.0' % (v(T+5), v(T+5), v(T+6)))
            a('v_fmac_f32 %s, %s, %s' % (v(T+6), v(T+5), v(T+6)))
            a('v_mul_f32 %s, %s, %s' % (v(X+6+e), v(T+6), v(T+4)))
            if e == 0: self.fill = lambda: a('v_add_f32 %s, %s, %s' % (v(T+2), v(T+2), v(T)))
            self.trig(T+3, X+e, X+2+e)
        a('s_lshr_b32 %s, %s, 1' % (sA, sW)); a('s_lshl_b32 %s, %s, 7' % (sA, sA))
        a('s_and_b32 %s, %s, 1' % (sB, sW)); a('s_add_u32 %s, %s, %s' % (sA, sA, sB))
        a('s_lshl3_add_u32 %s, %s, %d' % (sA, sA, TABL))
        a('v_add_u32 %s, %s, %s' % (v(T), sA, v(V.l16)))
        for k in range(4): a('ds_write_b64 %s, %s offset:%d' % (v(T), vr(X+2*k, 2), 4096*k))
    def coop_post(self):
        a = self.a
        a('v_mov_b32 %s, 1' % v(V.T+1))
        a('ds_add_u32 %s, %s offset:4' % (v(V.cnt), v(V.T+1)))
    def coop_wait(self):
        a = self.a; T = V.T; lp, ok = self.label('cw'), self.label('cwok')
        a('s_mov_b32 %s, 0' % sCnt)
        a(lp+':')
        a('ds_read_b32 %s, %s offset:4' % (v(T), v(V.cnt)))
        a('s_add_u32 %s, %s, 1' % (sCnt, sCnt))
        a('s_cmp_gt_u32 %s, 0x%x' % (sCnt, SPIN_MAX*8))
        a('s_waitcnt lgkmcnt(0)')
        a('s_cbranch_scc1 %s' % ok)
        a('v_cmp_gt_u32 vcc, 0x200, %s' % v(T))
        a('s_cbranch_vccnz %s' % lp)
        a(ok+':')
    def coop_read(self):
        a = self.a; T = V.T
        a('v_add_u32 %s, %d, %s' % (v(T), TABL, v(V.l16)))
        for k in range(16): a('ds_read_b128 %s, %s offset:%d' % (vr(V.F32+4*k, 4), v(T), 1024*k))
    def calc_k0(self):
        a = self.a
        a('s_lshr_b32 %s, %s, 4' % (sA, sT)); a('s_and_b32 %s, %s, 15' % (sB, sT))
        a('s_lshl4_add_u32 %s, %s, %s' % (sK0, sB, sA))
        a('s_and_b32 %s, %s, 12' % (sC, sB)); a('s_bfe_u32 %s, %s, 0x10001' % (sD, sB)); a('s_add_u32 %s, %s, %s' % (sC, sC, sD))
        a('s_and_b32 %s, %s, 1' % (sD, sB)); a('s_lshl1_add_u32 %s, %s, %s' % (sC, sD, sC)); a('s_lshl_b32 %s, %s, 3' % (sC, sC))
        a('s_cmp_eq_u32 %s, 0' % sA); a('s_cselect_b32 %s, %s, %s' % (sK0, sC, sK0))
        a('s_cmp_eq_u32 %s, 0' % sT); a('s_cselect_b32 %s, 7, 8' % sA)
        a('s_lshl_b32 %s, %s, %s' % (sKP, sW, sA)); a('s_add_u32 %s, %s, %s' % (sKP, sKP, sK0))
        a('s_sub_u32 %s, 0x800, %s' % (sKM, sKP))
        a('s_cmp_eq_u32 %s, 0' % sKP)
        a('s_cselect_b32 %s, 0x400, %s' % (sKM, sKM)); a('s_cselect_b32 %s, 1, 0' % sSpec)
        a('s_mul_i32 %s, %s, 1026' % (sKP, sKP)); a('s_mul_i32 %s, %s, 1026' % (sKM, sKM))
        a('s_mul_i32 %s, %s, 4224' % (sWL, sW)); a('s_add_u32 %s, %s, %d' % (sWL, sWL, WL))
        a('s_and_b32 %s, %s, 2' % (sA, sKP))
        a('s_add_u32 %s, %s, %s' % (sDP, sKP, sA)); a('s_add_u32 %s, %s, %s' % (sDM, sKM, sA))
    def gen_B(self):
        a = self.a; T = V.T; c, s = T+8, T+9
        a('v_lshrrev_b32 %s, 1, %s' % (v(T), v(V.n)))
        a('v_cvt_f32_u32 %s, %s' % (v(T+2), v(V.g)))
        a('v_and_b32 %s, 1, %s' % (v(T+3), v(V.n)))
        a('v_add_f32 %s, %s, %s' % (v(T+2), v(T+2), v(T+2)))
        def normal():
            a('v_lshl_add_u32 %s, %s, 8, %s' % (v(T+1), v(T), sK0))
            a('v_lshlrev_b32 %s, 4, %s' % (v(T+4), v(T+3)))
            a('v_cvt_f32_u32 %s, %s' % (v(T+1), v(T+1)))
            a('v_lshlrev_b32 %s, 31, %s' % (v(T+6), v(V.n)))
            a('v_cvt_f32_u32 %s, %s' % (v(T+3), v(T+3)))
            a('v_mul_f32 %s, %s, %s' % (v(T+1), lit(1/2048), v(T+1)))
            a('s_brev_b32 %s, 1' % sA)
            a('v_lshrrev_b32 %s, %s, %s' % (v(T+4), v(T+4), sA))
            a('v_mul_f32 %s, %s, %s' % (v(T+5), v(T+1), v(T+2)))
            a('v_fmac_f32 %s, %s, %s' % (v(T+5), lit(0.25), v(T+3)))
            for sbb in range(2):
                if sbb == 0: self.fill = lambda: a('v_add_f32 %s, %s, %s' % (v(T+5), v(T+5), v(T+1)))
                else: self.fill = lambda: a('v_cvt_f32_u32 %s, %s' % (v(T), v(T)))
                self.trig(T+5, V.B+2*sbb, V.B+6+2*sbb)
                a('v_xor_b32 %s, %s, %s' % (v(V.B+2*sbb+1), v(V.B+2*sbb), v(T+4)))
                a('v_xor_b32 %s, %s, %s' % (v(V.B+6+2*sbb+1), v(V.B+6+2*sbb), v(T+4)))
            a('v_lshl_add_u32 %s, %s, 9, %s' % (v(T+1), v(V.g), sK0))
            a('v_xor_b32 %s, %s, %s' % (v(T), v(T), v(T+6)))
            a('v_cvt_f32_u32 %s, %s' % (v(T+1), v(T+1)))
            a('v_mul_f32 %s, 0.5, %s' % (v(T+5), v(T+3)))
            a('v_mul_f32 %s, %s, %s' % (v(T+1), lit(1/2048), v(T+1)))
            a('v_fmac_f32 %s, %s, %s' % (v(T+5), v(T+1), v(T)))
            for ii in range(2):
                a('v_cos_f32 %s, %s' % (v(c), v(T+5)))
                a('v_sin_f32 %s, %s' % (v(s), v(T+5)))
                a('v_mul_f32 %s, %s, %s' % (v(c), lit(SC), v(c)))
                a('v_mul_f32 %s, %s, %s' % (v(s), lit(SC), v(s)))
                if ii == 0: a('v_fmac_f32 %s, %s, %s' % (v(T+5), lit(0.125), v(T)))
                a('v_cvt_pk_bf16_f32 %s, %s, %s' % (v(T+1), v(c), v(s)))
                a('v_cvt_pk_bf16_f32 %s, -%s, %s' % (v(T+2), v(s), v(c)))
                a('v_xor_b32 %s, %s, %s' % (v(V.Bp+2*ii), v(T+1), v(T+6)))
                a('v_xor_b32 %s, %s, %s' % (v(V.Bp+4+2*ii), v(T+2), v(T+6)))
                a('v_xor_b32 %s, %s, %s' % (v(V.Bp+2*ii+1), v(T+2), v(T+6)))
                a('v_xor_b32 %s, 0x80008000, %s' % (v(V.Bp+4+2*ii+1), v(V.Bp+2*ii)))
        def special():
            a('v_cvt_f32_u32 %s, %s' % (v(T+1), v(T)))
            a('v_mul_f32 %s, %s, %s' % (v(T+1), lit(1/16), v(T+1)))
            a('v_lshlrev_b32 %s, 4, %s' % (v(T+4), v(T+3)))
            a('v_cmp_eq_u32 s[84:85], 0, %s' % v(T))
            a('v_and_b32 %s, 1, %s' % (v(T+6), v(T)))
            a('v_cmp_eq_u32 s[86:87], 1, %s' % v(T+6))
            a('v_mul_f32 %s, %s, %s' % (v(T+5), v(T+1), v(T+2)))
            for sbb in range(2):
                a('v_cos_f32 %s, %s' % (v(c), v(T+5)))
                a('v_sin_f32 %s, %s' % (v(s), v(T+5)))
                a('v_mul_f32 %s, 2.0, %s' % (v(c), v(c)))
                a('v_mul_f32 %s, -2.0, %s' % (v(s), v(s)))
                a('v_cndmask_b32 %s, %s, 1.0, s[84:85]' % (v(c), v(c)))
                a('v_cndmask_b32 %s, %s, %s, s[84:85]' % (v(s), v(s), '-1.0' if sbb else '1.0'))
                for src, dst in ((c, V.B+2*sbb), (s, V.B+6+2*sbb)):
                    a('v_cvt_pk_bf16_f32 %s, %s, 0' % (v(T+7), v(src)))
                    a('v_lshlrev_b32 %s, %s, %s' % (v(T+7), v(T+4), v(T+7)))
                    a('v_cndmask_b32 %s, %s, 0, s[86:87]' % (v(dst), v(T+7)))
                    a('v_cndmask_b32 %s, 0, %s, s[86:87]' % (v(dst+1), v(T+7)))
                a('v_add_f32 %s, %s, %s' % (v(T+5), v(T+5), v(T+1)))
            a('v_cmp_eq_u32 s[88:89], 0, %s' % v(V.g))
            a('v_cmp_eq_u32 s[90:91], 1, %s' % v(T+3))
            a('v_lshlrev_b32 %s, 31, %s' % (v(T+6), v(T)))
            a('v_xor_b32 %s, %s, %s' % (v(T+6), lit(SC), v(T+6)))
            a('v_mov_b32 %s, %s' % (v(T+4), lit(SC)))
            a('v_mul_f32 %s, %s, %s' % (v(T+5), v(T+1), v(T+2)))
            for ii in range(2):
                a('v_cos_f32 %s, %s' % (v(c), v(T+5)))
                a('v_sin_f32 %s, %s' % (v(s), v(T+5)))
                a('v_mul_f32 %s, %s, %s' % (v(c), lit(2*SC), v(c)))
                a('v_mul_f32 %s, %s, %s' % (v(s), lit(-2*SC), v(s)))
                if ii == 0:
                    a('v_cndmask_b32 %s, %s, %s, s[88:89]' % (v(c), v(c), v(T+4)))
                    a('v_cndmask_b32 %s, %s, %s, s[88:89]' % (v(s), v(s), v(T+6)))
                a('v_cvt_pk_bf16_f32 %s, %s, %s' % (v(T+7), v(s), v(c)))
                if ii: a('v_cndmask_b32 %s, 0, %s, s[90:91]' % (v(T+7), v(T+7)))
                else: a('v_cndmask_b32 %s, %s, 0, s[90:91]' % (v(T+7), v(T+7)))
                a('v_mov_b32 %s, 0' % v(V.Bp+2*ii)); a('v_mov_b32 %s, %s' % (v(V.Bp+2*ii+1), v(T+7)))
                a('v_mov_b32 %s, %s' % (v(V.Bp+4+2*ii), v(T+7))); a('v_mov_b32 %s, 0' % v(V.Bp+4+2*ii+1))
                a('v_add_f32 %s, %s, %s' % (v(T+5), v(T+5), v(T+1)))
        self.far(sT, 0, special, normal)
        for d, r in ((4, 0), (5, 1), (10, 6), (11, 7)): a('v_mov_b32 %s, %s' % (v(V.B+d), v(V.B+r)))

    def wq(self, rho): return (rho & 1) + 8*((rho >> 1) & 1) + 4*((rho >> 2) & 1)
    def w_dma1(self, i):
        a = self.a
        srd, so = [(SWR, sDP), (SWI, sDP), (SWR, sDM), (SWI, sDM)][i]
        a('s_add_u32 m0, %s, %d' % (sWL, 1056*i))
        a('buffer_load_dwordx4 %s, %s, %s offen %s lds' % (v(V.l16), srd, so, self.o['ldw']))
    def w_dma(self):
        for i in range(4): self.w_dma1(i)
    def w_edge_load(self):
        a = self.a; T = V.T
        a('s_mov_b64 exec, 15')
        a('v_mov_b32 %s, %s' % (v(T), sKP)); a('v_mov_b32 %s, %s' % (v(T+1), sKM))
        a('s_mov_b64 vcc, 10')
        a('v_cndmask_b32 %s, %s, %s, vcc' % (v(T), v(T), v(T+1)))
        a('v_and_b32 %s, 2, %s' % (v(T+1), v(V.lane)))
        a('v_lshl_add_u32 %s, %s, 9, %s' % (v(T), v(T+1), v(T)))
        a('buffer_load_short_d16_hi %s, %s, %s, 0 offen' % (v(V.WF), v(T), SWR))
        a('buffer_load_short_d16_hi %s, %s, %s, 0 offen' % (v(V.WF+1), v(T), SWI))
        a('s_mov_b64 exec, -1')
    def w_edge_rl(self):
        for l in range(4):
            for im in range(2): self.a('v_readlane_b32 s%d, %s, %d' % (84+2*l+im, v(V.WF+im), l))
    def w_edge(self):
        a = self.a; T = V.T
        self.w_edge_rl()
        q = ((84, 86, 'add'), (85, 87, 'sub'), (90, 88, 'add'), (91, 89, 'sub'))
        for i, (x, y, op) in enumerate(q): a('v_mov_b32 %s, s%d' % (v(T+i), y))
        for i, (x, y, op) in enumerate(q): a('v_%s_f32 %s, s%d, %s' % (op, v(V.WF+i), x, v(T+i)))
        for i in range(4): a('v_mul_f32 %s, 0.5, %s' % (v(V.WF+i), v(V.WF+i)))
        a('s_mov_b64 s[92:93], 1')
    def w_read1(self, rho, im, dst=None, swap=False):
        dst = V.W if dst is None else dst
        if rho < 8: ad, off = V.WP, 64*self.wq(rho) + (2112 if swap else 0)
        else: ad, off = V.WM, 64*(13-self.wq(rho)) + (0 if swap else 2112)
        return 'ds_read_u16_d16_hi %s, %s offset:%d' % (v(dst+16*im+rho), v(ad), off+1056*im)
    def w_fix(self, half):
        return ['v_cndmask_b32 %s, %s, %s, s[92:93]' % (v(V.W+8*half+16*im), v(V.W+8*half+16*im), v(V.WF+2*half+im)) for im in range(2)]
    def w_special(self):
        a = self.a; T = V.T; X = V.DA
        def f():
            for sw, dst in ((False, V.W), (True, X)):
                for rho in range(16):
                    for im in range(2): a(self.w_read1(rho, im, dst, sw))
            a('s_waitcnt lgkmcnt(0) vmcnt(0)')
            self.w_edge_rl()
            a('s_mov_b64 exec, 1')
            for r in (V.W+16, V.W+24, X+16, X+24): a('v_mov_b32 %s, 0' % v(r))
            a('v_mov_b32 %s, s90' % v(V.W+8)); a('v_mov_b32 %s, s88' % v(X+8))
            a('s_mov_b64 exec, -1')
            for i in range(32):
                a('v_add_f32 %s, %s, %s' % (v(V.W+i), v(V.W+i), v(X+i)))
                if (i & 15) < 8: a('v_fma_f32 %s, -2.0, %s, %s' % (v(X+i), v(X+i), v(V.W+i)))
                else: a('v_fma_f32 %s, 2.0, %s, -%s' % (v(X+i), v(X+i), v(V.W+i)))
            a('v_add_u32 %s, %d, %s' % (v(T+1), SCR_B, v(V.l16)))
            for i in range(8): a('ds_write_b128 %s, %s offset:%d' % (v(T+1), vr(X+4*i, 4), 1024*i))
        self.far(sSpec, 1, f)

    def addrs1(self):
        a = self.a; T = V.T
        a('v_lshrrev_b32 %s, 3, %s' % (v(T), v(V.lane)))
        a('v_and_b32 %s, 0x30, %s' % (v(T+1), v(V.l16)))
        a('v_lshl_add_u32 %s, %s, 6, %s' % (v(T), v(T), v(T+1)))
        a('v_and_b32 %s, 4, %s' % (v(T+1), v(V.lane)))
        a('v_lshl_add_u32 %s, %s, 1, %s' % (v(V.TR), v(T+1), v(T)))
        a('v_xor_b32 %s, %s, %s' % (v(T), sSB, v(V.lane)))
        a('v_and_b32 %s, 1, %s' % (v(T), v(T)))
        a('v_mul_u32_u24 %s, 16448, %s' % (v(T), v(T)))
        a('v_lshl_add_u32 %s, %s, 12, %s' % (v(T), v(V.g), v(T)))
        a('v_lshl_add_u32 %s, %s, 2, %s' % (v(T), v(T+1), v(T)))
        a('v_and_b32 %s, 0x60, %s' % (v(T+1), v(V.TR)))
        a('s_lshr_b32 %s, %s, 1' % (sWp, sW)); a('s_and_b32 %s, %s, 1' % (sA, sW))
        a('s_lshl2_add_u32 %s, %s, %s' % (sWp, sA, sWp)); a('s_lshl_b32 %s, %s, 7' % (sWp, sWp))
        a('v_add3_u32 %s, %s, %s, %s' % (v(V.X0w), v(T), v(T+1), sWp))
        a('s_lshl_b32 %s, %s, 10' % (sA, sW))
        a('s_sub_u32 %s, 0x4000, %s' % (sB, sA))
        a('s_cmp_eq_u32 %s, 0' % sW); a('s_cselect_b32 %s, 0x2000, %s' % (sB, sB))
        a('v_add_u32 %s, %s, %s' % (v(V.X0r0), sA, v(V.TR)))
        a('v_add_u32 %s, %s, %s' % (v(V.X0r1), sB, v(V.TR)))
    def addrs2(self):
        a = self.a; T = V.T
        a('v_lshlrev_b32 %s, 4, %s' % (v(T), v(V.n)))
        a('v_lshl_add_u32 %s, %s, 13, %s' % (v(T), v(V.g), v(T)))
        a('s_lshl_b32 %s, %s, 9' % (sA, sW)); a('s_add_u32 %s, %s, %d' % (sA, sA, R1))
        a('v_add_u32 %s, %s, %s' % (v(V.X1w), sA, v(T)))
        a('s_lshl_b32 %s, %s, 12' % (sA, sW)); a('s_add_u32 %s, %s, %d' % (sA, sA, R1))
        a('v_add_u32 %s, %s, %s' % (v(V.X1r), sA, v(V.TR)))
        a('v_and_b32 %s, 16, %s' % (v(T), v(V.l16)))
        a('v_and_b32 %s, 2, %s' % (v(T+1), v(V.lane)))
        a('v_bfe_u32 %s, %s, 2, 1' % (v(T+2), v(V.lane)))
        a('v_add_u32 %s, %s, %s' % (v(T+1), v(T+1), v(T+2)))
        a('v_mul_u32_u24 %s, 8224, %s' % (v(T+1), v(T+1)))
        a('v_bfe_u32 %s, %s, 3, 2' % (v(T+2), v(V.lane)))
        a('v_lshl_add_u32 %s, %s, 11, %s' % (v(T), v(T+2), v(T)))
        a('v_and_b32 %s, 32, %s' % (v(T+2), v(V.lane)))
        a('v_add3_u32 %s, %s, %s, %s' % (v(T), v(T), v(T+1), v(T+2)))
        a('v_add_u32 %s, %s, %s' % (v(V.X2w), sWp, v(T)))
        a('s_and_b32 %s, %s, 1' % (sA, sW)); a('s_lshr_b32 %s, %s, 2' % (sB, sW)); a('s_lshl1_add_u32 %s, %s, %s' % (sA, sB, sA)); a('s_lshl_b32 %s, %s, 11' % (sA, sA))
        a('s_and_b32 %s, %s, 2' % (sB, sW)); a('s_mul_i32 %s, %s, 8224' % (sB, sB)); a('s_add_u32 %s, %s, %s' % (sA, sA, sB))
        a('v_add_u32 %s, %s, %s' % (v(V.X2r), sA, v(V.TR)))
    def addrs3(self):
        a = self.a; T = V.T
        a('v_and_b32 %s, 16, %s' % (v(T), v(V.lane)))
        a('v_and_b32 %s, 33, %s' % (v(T+1), v(V.lane)))
        a('v_lshl_add_u32 %s, %s, 5, %s' % (v(T), v(T+1), v(T)))
        a('v_and_b32 %s, 8, %s' % (v(T+1), v(V.lane)))
        a('v_lshl_add_u32 %s, %s, 9, %s' % (v(T), v(T+1), v(T)))
        a('v_and_b32 %s, 2, %s' % (v(T+1), v(V.lane)))
        a('v_and_b32 %s, 4, %s' % (v(T+2), v(V.lane)))
        a('v_mul_u32_u24 %s, 4104, %s' % (v(T+1), v(T+1)))
        a('v_mul_u32_u24 %s, 4112, %s' % (v(T+2), v(T+2)))
        a('v_add3_u32 %s, %s, %s, %s' % (v(T), v(T), v(T+1), v(T+2)))
        a('s_sub_u32 %s, 16, %s' % (sC, sW))
        a('s_cmp_eq_u32 %s, 0' % sW); a('s_cselect_b32 %s, 8, %s' % (sC, sC))
        for kl, dst in ((sW, V.X3w0), (sC, V.X3w1)):
            a('s_lshr_b32 %s, %s, 2' % (sA, kl)); a('s_and_b32 %s, %s, 1' % (sB, kl)); a('s_lshl1_add_u32 %s, %s, %s' % (sA, sA, sB))
            a('s_and_b32 %s, %s, 2' % (sB, kl)); a('s_lshl2_add_u32 %s, %s, %s' % (sA, sB, sA))
            a('s_lshl_b32 %s, %s, 6' % (sA, sA)); a('s_add_u32 %s, %s, %d' % (sA, sA, R1))
            a('v_add_u32 %s, %s, %s' % (v(dst), sA, v(T)))
        a('s_and_b32 %s, %s, 1' % (sA, sW)); a('s_mul_i32 %s, %s, 8208' % (sA, sA))
        a('s_and_b32 %s, %s, 2' % (sB, sW)); a('s_mul_i32 %s, %s, 8224' % (sB, sB)); a('s_add_u32 %s, %s, %s' % (sA, sA, sB))
        a('s_and_b32 %s, %s, 4' % (sB, sW)); a('s_lshl_b32 %s, %s, 10' % (sB, sB)); a('s_add_u32 %s, %s, %s' % (sA, sA, sB))
        a('s_add_u32 %s, %s, %d' % (sA, sA, R1))
        a('v_add_u32 %s, %s, %s' % (v(V.X3r), sA, v(V.TR)))
        a('v_and_b32 %s, 0x70, %s' % (v(T), v(V.l16)))
        a('v_lshlrev_b32 %s, 1, %s' % (v(V.Ooff), v(V.Xoff)))
        a('v_sub_u32 %s, %s, %s' % (v(V.Ooff), v(V.Ooff), v(T)))

    def mf16(self, d, A, B): return 'v_mfma_f32_16x16x32_bf16 %s, %s, %s, 0' % (vr(d, 4), vr(A, 4), vr(B, 4))
    def cvt(self, d, lo, hi): return 'v_cvt_pk_bf16_f32 %s, %s, %s' % (v(d), v(lo), v(hi))
    def mf32(self, d, i, pl, dataA):
        M = vr(V.F32+16*pl+4*i, 4); X = vr(V.O+4*i, 4)
        A, B = (X, M) if dataA else (M, X)
        D = vr(d+16*pl, 16)
        return 'v_mfma_f32_32x32x16_bf16 %s, %s, %s, %s' % (D, A, B, D if i else '0')
    def emit(self, L):
        for x in L: self.a(x)

    def p1(self):
        a = self.a; O, L, D, P = V.O, V.L, V.DA, V.DB
        for r in range(4):
            a('s_waitcnt vmcnt(%d)' % (3-r))
            if r == 3:
                self.stamp()
                if self.o['spos'] == 'mid': self.cond(sW, PW, self.side_load)
            for t in range(4): a('v_mov_b32 %s, %s' % (v(O+4*t+r), v(L+4*r+t)))
        for t in range(4):
            a(self.mf16(D+4*t, V.F16, O+4*t)); a(self.mf16(D+16+4*t, V.F16+4, O+4*t))
        if self.o['spos'] == 'late': self.cond(sW, PW, self.side_load)
        def sp():
            self.srds()
            a('s_mov_b32 %s, 0' % sDP); a('s_mov_b32 %s, %d' % (sDM, 1024*1026)); a('s_mov_b32 %s, %d' % (sWL, WL))
            self.w_dma()
        a('s_or_b32 %s, %s, %s' % (sA, sT, sW))
        self.far(sA, 0, sp)
        for r in range(4):
            a(self.cvt(P+4*r, D+r, D+4+r)); a(self.cvt(P+4*r+2, D+16+r, D+20+r))
        for r in range(4):
            a(self.cvt(P+4*r+1, D+8+r, D+12+r)); a(self.cvt(P+4*r+3, D+24+r, D+28+r))
            a('ds_write_b128 %s, %s offset:%d' % (v(V.X0w), vr(P+4*r, 4), 1024*r))
        self.mark('g1a')
        self.side_wait()
        self.mark('g1b')
        a('s_waitcnt lgkmcnt(0)')
        a('s_barrier')
        for ti in range(4):
            for ii in range(2):
                a('ds_read_b64_tr_b16 %s, %s offset:%d' % (vr(O+4*ti+2*ii, 2), v(V.X0r1 if ti >> 1 else V.X0r0), (ti & 1)*16448+ii*512))
        a('ds_read_b32 %s, %s' % (v(V.tmp), v(V.cnt)))
        for ti in range(4):
            a('s_waitcnt lgkmcnt(%d)' % (7-2*ti))
            a(self.mf16(D+4*ti, V.M2+8*(ti >> 1), O+4*ti)); a(self.mf16(D+16+4*ti, V.M2+8*(ti >> 1)+4, O+4*ti))
        a('s_waitcnt lgkmcnt(0)')
        self.side_use()
        for r in range(4): a('s_add_u32 %s, %s, 0x%x' % (sO[r], sEst, WS_U[0] + r*65536))
        st = lambda i: a('buffer_store_dwordx4 %s, %s, %s, %s offen %s' % (vr(P+4*i, 4), v(V.Est), SWS, sO[i], self.o['st1']))
        def normal():
            for i in range(4):
                for k in range(4): a(self.cvt(P+4*i+2*(k & 1)+(k >> 1), D+4*k+i, D+16+4*k+i))
                st(i)
        def w0():
            for i in range(4):
                ts, eb = i >> 1, i & 1
                for tau in range(2):
                    for sg in range(2):
                        x = 4*(2*ts+tau)+2*eb+sg
                        a(self.cvt(P+4*i+2*tau+sg, D+x, D+16+x))
                st(i)
        self.ifelse(sW, 0, w0, normal)

    def stage(self, src, dst, dataA, kind, prio, pre=None):
        a = self.a; T = V.T
        if self.o['prio']: a('s_setprio %d' % prio)
        G = []
        for i in range(4):
            g = []
            if kind == 'tw':
                for st in range(3):
                    for r in range(4):
                        rho = 4*i+r; x, y = v(src+rho), v(src+16+rho)
                        g.append('v_fmac_f32 %s, %s, %s' % ((y, v(V.TW+16+rho), x) if st == 1 else (x, v(V.TW+rho), y)))
                for r in range(4): g.append(self.cvt(V.O+4*i+r, src+4*i+r, src+16+4*i+r))
            else:
                t = T+4*(i & 1)
                for r in range(4):
                    rho = 4*i+r
                    g.append('v_mul_f32 %s, %s, %s' % (v(t+r), v(src+rho), v(V.W+rho)))
                for r in range(4):
                    rho = 4*i+r
                    if rho < 8: g.append('v_fma_f32 %s, -%s, %s, %s' % (v(t+r), v(src+16+rho), v(V.W+16+rho), v(t+r)))
                    else: g.append('v_fmac_f32 %s, %s, %s' % (v(t+r), v(src+16+rho), v(V.W+16+rho)))
                for r in range(4):
                    rho = 4*i+r
                    g.append('v_mul_f32 %s, %s, %s' % (v(src+16+rho), v(src+16+rho), v(V.W+rho)))
                for r in range(4):
                    rho = 4*i+r
                    if rho < 8: g.append('v_fmac_f32 %s, %s, %s' % (v(src+16+rho), v(src+rho), v(V.W+16+rho)))
                    else: g.append('v_fma_f32 %s, -%s, %s, %s' % (v(src+16+rho), v(src+rho), v(V.W+16+rho), v(src+16+rho)))
                for r in range(4): g.append(self.cvt(V.O+4*i+r, src+16+4*i+r, t+r))
            G.append(g)
        W = [[self.w_read1(4*i+r, im) for im in range(2) for r in range(4)] for i in range(4)] if kind == 'w' else None
        if kind == 'w':
            a('s_waitcnt vmcnt(2)')
            self.emit(W[0]); self.emit(W[1])
        for i in range(4):
            g = list(G[i]); n = len(g)
            ins = {}
            if i:
                ins.setdefault(2, []).append(self.mf32(dst, i-1, 0, dataA))
                ins.setdefault(2+n//2, []).append(self.mf32(dst, i-1, 1, dataA))
            if kind == 'w':
                a('s_waitcnt lgkmcnt(%d)' % (8 if i < 3 else 0))
                if i in (0, 2): self.emit(self.w_fix(i >> 1))
                if i < 2:
                    if i == 0: ins.setdefault(3, []).append('s_waitcnt vmcnt(0)')
                    for k, x in enumerate(W[i+2]): ins.setdefault(3+2*k, []).append(x)
            for k, x in enumerate(g):
                self.emit(ins.get(k, []))
                a(x)
        a(self.mf32(dst, 3, 0, dataA)); a(self.mf32(dst, 3, 1, dataA))

    def p2(self):
        a = self.a; O, L, D, T = V.O, V.L, V.DA, V.T
        na = self.p2na
        for cbb in range(2):
            b = L+12*cbb
            a('s_waitcnt vmcnt(%d)' % (na+3-2*cbb))
            a('v_mov_b32 %s, %s' % (v(b+8), v(b))); a('v_mov_b32 %s, %s' % (v(b+9), v(b+1)))
            a('s_waitcnt vmcnt(%d)' % (na+2-2*cbb))
            if cbb: self.stamp(); self.mark('f0')
            for jj2 in (1, 0):
                ti = 2*cbb+jj2; op = b+2 if jj2 else b+6; mo = 0 if jj2 else 2
                a(self.mf16(D+4*ti, V.B+mo, op)); a(self.mf16(D+16+4*ti, V.B+6+mo, op))
        for cbb in range(2):
            for k1b in range(2):
                P = O+4*(2*cbb+k1b)
                for jj2 in (1, 0):
                    for pl in range(2):
                        x = D+16*pl+4*(2*cbb+jj2)+2*k1b
                        a(self.cvt(P+2*pl+jj2, x, x+1))
                a('ds_write_b128 %s, %s offset:%d' % (v(V.X1w), vr(P, 4), k1b*4096+cbb*256))
        self.mark('f1')
        a('s_waitcnt lgkmcnt(0)')
        self.mark('f2', True)
        a('s_barrier')
        self.mark('x1', True)
        if self.o['prio']: a('s_setprio 3')
        for i in range(4):
            for ii in range(2):
                a('ds_read_b64_tr_b16 %s, %s offset:%d' % (vr(O+4*i+2*ii, 2), v(V.X1r), ii*1024+(i & 1)*512+(i >> 1)*2048))
        rows = {'postX1': (0, 1, 2, 3), 'barh': (2, 3), 'bar': ()}[self.o['wpos']]
        for i in range(4):
            if i < len(rows): self.w_dma1(rows[i])
            a('s_waitcnt lgkmcnt(%d)' % (6-2*i))
            a(self.mf32(V.DA, i, 0, True)); a(self.mf32(V.DA, i, 1, True))
        self.mark('f3')
        self.stage(V.DA, V.DB, False, 'tw', 2)
        self.mark('f4', True)
        self.far(sSpec, 1, self.pw_special, lambda: self.stage(V.DB, V.DA, True, 'w', 1))
        self.mark('f5')
        self.stage(V.DA, V.DB, True, 'tw', 0)
        self.mark('f6')
        D = V.DB
        for r in range(4): a('s_add_u32 %s, %s, 0x%x' % (sO[r], sEst, WS_U[1] + r*65536))
        rho = lambda jj3, jj1, jj2, c: 4*(2*jj3+jj1)+2*jj2+c
        for pl in range(2):
            for k in range(4):
                c, jj1 = k >> 1, k & 1
                P = V.DA+4*k
                for jj3 in range(2):
                    a(self.cvt(P+2*pl+jj3, D+16*pl+rho(jj3, jj1, 0, c), D+16*pl+rho(jj3, jj1, 1, c)))
                if pl: a('ds_write_b128 %s, %s offset:%d' % (v(V.X2w), vr(P, 4), c*64+jj1*1024))
        self.mark('f7'); self.mark('x2')
        a('s_waitcnt lgkmcnt(0)')
        self.mark('f8', True)
        a('s_barrier')
        for ti in range(4):
            for ii in range(2):
                a('ds_read_b64_tr_b16 %s, %s offset:%d' % (vr(O+4*ti+2*ii, 2), v(V.X2r), ii*512+(ti & 1)*1024+(ti >> 1)*8224))
        D = V.DA; P = V.DB
        for ti in range(4):
            a('s_waitcnt lgkmcnt(%d)' % (6-2*ti))
            a(self.mf16(D+4*ti, V.Bp, O+4*ti)); a(self.mf16(D+16+4*ti, V.Bp+4, O+4*ti))
        self.mark('f9')
        for q in range(4):
            cbb, sbb = q >> 1, q & 1
            for jj1 in range(2):
                for hf in range(2):
                    x = 4*(2*cbb+jj1)+2*sbb+hf
                    a(self.cvt(P+4*q+2*jj1+hf, D+x, D+16+x))
            a('buffer_store_dwordx4 %s, %s, %s, %s offen %s' % (vr(P+4*q, 4), v(V.Est), SWS, sO[q], self.o['st2']))
        self.mark('f10')

    def pw_special(self):
        a = self.a; T = V.T; O = V.O; C = V.DB; X = V.DA
        self.sigma_lane(T)
        a('v_lshrrev_b32 %s, 5, %s' % (v(T+1), v(V.lane)))
        a('v_lshlrev_b32 %s, 9, %s' % (v(T+1), v(T+1)))
        a('v_lshl_add_u32 %s, %s, 2, %s' % (v(T+2), v(T), v(T+1)))
        a('v_add_u32 %s, %d, %s' % (v(T+2), SCR, v(T+2)))
        a('v_add_u32 %s, 128, %s' % (v(T+3), v(T+2)))
        a('v_sub_u32 %s, 32, %s' % (v(T+4), v(T)))
        a('v_lshrrev_b32 %s, 5, %s' % (v(T+5), v(T+4)))
        a('v_and_b32 %s, 31, %s' % (v(T+4), v(T+4)))
        a('v_lshlrev_b32 %s, 2, %s' % (v(T+4), v(T+4)))
        a('v_lshl_add_u32 %s, %s, 8, %s' % (v(T+4), v(T+5), v(T+4)))
        a('v_sub_u32 %s, %s, %s' % (v(T+4), v(T+4), v(T+1)))
        a('v_add_u32 %s, %d, %s' % (v(T+4), SCR + 2*256, v(T+4)))
        a('v_add_u32 %s, 128, %s' % (v(T+5), v(T+4)))
        a('v_add_u32 %s, %d, %s' % (v(T+6), SCR_B, v(V.l16)))
        qs = lambda rho: sigma(8*(rho >> 2) + (rho & 3))
        for pl in range(2):
            for rho in range(0, 16, 2):
                a('ds_write2st64_b32 %s, %s, %s offset0:%d offset1:%d' % (v(T+2+pl), v(C+16*pl+rho), v(C+16*pl+rho+1), qs(rho), qs(rho+1)))
            a('ds_write_b32 %s, %s offset:%d' % (v(T+2+pl), v(C+16*pl), 32*256))
        t0, t1 = v(T+8), v(T+9)
        for half in range(2):
            for pl in range(2):
                for k in range(0, 8, 2):
                    r_ = 8*half+k
                    a('ds_read2st64_b32 %s, %s offset0:%d offset1:%d' % (vr(X+8*pl+k, 2), v(T+4+pl), 29-qs(r_), 29-qs(r_+1)))
                for k in range(2):
                    a('ds_read_b128 %s, %s offset:%d' % (vr(X+16+8*pl+4*k, 4), v(T+6), 1024*(4*pl+2*half+k)))
            a('s_waitcnt lgkmcnt(0)')
            for k in range(8):
                r_ = 8*half+k
                x, y = v(C+r_), v(C+16+r_); ar, ai = v(V.W+r_), v(V.W+16+r_)
                p, q_ = v(X+k), v(X+8+k); br, bi = v(X+16+k), v(X+24+k)
                ng, ps = ('', '-') if half else ('-', '')
                a('v_mul_f32 %s, %s, %s' % (t0, x, ar))
                a('v_mul_f32 %s, %s, %s' % (t1, y, ar))
                a('v_fma_f32 %s, %s%s, %s, %s' % (t0, ng, y, ai, t0))
                a('v_fma_f32 %s, %s%s, %s, %s' % (t1, ps, x, ai, t1))
                a('v_fmac_f32 %s, %s, %s' % (t0, p, br))
                a('v_fma_f32 %s, -%s, %s, %s' % (t1, q_, br, t1))
                a('v_fma_f32 %s, %s%s, %s, %s' % (t0, ps, q_, bi, t0))
                a('v_fma_f32 %s, %s%s, %s, %s' % (t1, ps, p, bi, t1))
                a(self.cvt(O+r_, T+9, T+8))
        for i in range(4): a(self.mf32(V.DA, i, 0, True)); a(self.mf32(V.DA, i, 1, True))

    def p3(self):
        a = self.a; O, L, D, P = V.O, V.L, V.DA, V.DB
        a('s_lshl4_add_u32 %s, %s, %s' % (sA, sW, sSB)); a('s_lshl1_add_u32 %s, %s, %s' % (sA, sA, sP))
        a('s_lshl4_add_u32 %s, %s, %s' % (sA, sA, sCB)); a('s_lshl_b32 %s, %s, 7' % (sO[0], sA))
        for r in range(1, 4): a('s_add_u32 %s, %s, 0x%x' % (sO[r], sO[0], r*524288))
        def normal():
            for i in range(4):
                a('s_waitcnt vmcnt(%d)' % (3-i))
                for sel in range(2):
                    for col in range(2): a('v_mov_b32 %s, %s' % (v(O+4*(2*sel+col)+i), v(L+4*i+2*col+sel)))
        def w0():
            for i in range(4):
                ts, eb = i >> 1, i & 1
                a('s_waitcnt vmcnt(%d)' % (3-i))
                for col in range(2):
                    for sg in range(2): a('v_mov_b32 %s, %s' % (v(O+4*(2*ts+col)+2*eb+sg), v(L+4*i+2*col+sg)))
        self.ifelse(sW, 0, w0, normal, True)
        self.stamp()
        for ti in range(4):
            a(self.mf16(D+4*ti, O+4*ti, V.M2+8*(ti >> 1))); a(self.mf16(D+16+4*ti, O+4*ti, V.M2+8*(ti >> 1)+4))
        for ti in range(4):
            for pl in range(2):
                for k in range(2):
                    x = D+16*pl+4*ti+2*k
                    a(self.cvt(P+4*ti+2*pl+k, x, x+1))
            a('ds_write_b128 %s, %s offset:%d' % (v(V.X3w1 if ti >> 1 else V.X3w0), vr(P+4*ti, 4), (ti & 1)*2048))
        a('s_waitcnt lgkmcnt(0)')
        a('s_barrier')
        for t in range(4):
            for ii in range(2):
                a('ds_read_b64_tr_b16 %s, %s offset:%d' % (vr(O+4*t+2*ii, 2), v(V.X3r), ii*512+t*1024))
        for t in range(4):
            a('s_waitcnt lgkmcnt(%d)' % (6-2*t))
            a(self.mf16(D+4*t, V.F16, O+4*t)); a(self.mf16(D+16+4*t, V.F16+4, O+4*t))
        for t in range(2):
            for r in range(4): a(self.cvt(P+4*r+t, D+16+4*t+r, D+4*t+r))
        for r in range(4):
            for t in (2, 3): a(self.cvt(P+4*r+t, D+16+4*t+r, D+4*t+r))
            a('buffer_store_dwordx4 %s, %s, %s, %s offen %s' % (vr(P+4*r, 4), v(V.Ooff), SOUT, sO[r], self.o['sto']))

    def ex_load(self, ex):
        a = self.a
        a('s_add_u32 %s, %s, 0x%x' % (sA, sEld, WS_U[ex]))
        for q in range(4):
            d = V.L+12*(q >> 1)+4*(q & 1) if ex == 0 else V.L+4*q
            a('buffer_load_dwordx4 %s, %s, %s, %s offen offset:%d %s' % (vr(d, 4), v(V.Eld), SWS, sA, 256*q, self.o['ld1' if ex == 0 else 'ld2']))

    def build(self):
        a = self.a; o = self.o
        name = NAME + '_kernel'
        a.raw('.globl %s\n.p2align 12\n.p2align 8\n.type %s,@function\n%s:' % (name, name, name))
        end = self.label('end')
        self.prologue(end)
        def others():
            self.touch(0)
            a('s_waitcnt lgkmcnt(0)')
            self.mark('karg')
            l = self.label('hold')
            a('s_cmp_lt_u32 %s, 8' % sCh); a('s_cbranch_scc1 %s' % l)
            self.x_issue()
            if o['pre']: self.cond(sW, PW, lambda: a('s_load_dword s95, s[20:21], 0x80'))
            a(l+':')
        self.ifelse(sCh, 0, self.probe, others, True)
        self.srds0(); self.addrs1()
        l = self.label('held')
        a('s_sub_u32 %s, %s, 1' % (sA, sCh)); a('s_cmp_ge_u32 %s, 7' % sA); a('s_cbranch_scc1 %s' % l)
        self.x_issue()
        a(l+':')
        self.gen_F16()
        self.clear_done()
        self.gen_M2(); self.ex_addrs()
        if o['touch']: self.cond(sT, 0, lambda: self.touch(1))
        if o['spos'] == 'early': self.cond(sW, PW, self.side_load)
        self.mark('w1')
        self.p1()
        self.stamp()
        if not o['merge']: a('s_load_dword %s, s[20:21], 0x0' % sRv)
        self.flag_addrs(); self.side_apply(); self.srds(); self.calc_k0()
        a('s_mov_b32 %s, 1' % sInc)
        self.coop_gen(); self.coop_post()
        a('s_waitcnt vmcnt(0)' if o['merge'] else 's_waitcnt vmcnt(0) lgkmcnt(0)')
        self.stamp()
        if not o['merge']: self.ready_check()
        self.arrive()
        self.poll(0, lambda: (self.w_edge_load(), self.gen_B(), self.w_special()))
        self.stamp()
        self.ex_load(0)
        self.p2na = 0
        if o['wpos'] in ('bar', 'barh'):
            a('s_barrier'); self.p2na = 4 if o['wpos'] == 'bar' else 2
            for i in range(self.p2na): self.w_dma1(i)
        else: self.coop_wait()
        self.coop_read(); self.addrs2()
        a('s_waitcnt vmcnt(%d)' % (4+self.p2na))
        self.w_edge()
        a('s_mov_b32 %s, 0x10000' % sInc)
        if o.get('da') == 'glob': self.cond(sId, 0, lambda: a('s_atomic_swap s56, s[20:21], 0x40'))
        self.p2()
        self.stamp()
        self.gen_M3()
        self.mark('w3a')
        a('s_waitcnt vmcnt(0)')
        self.stamp()
        self.arrive()
        self.poll(1, self.addrs3)
        if o['ts']: a('s_mov_b32 s%d, %s' % (sTS+26, sCnt))
        self.stamp()
        self.ex_load(1)
        self.p3()
        self.diag_end()
        a(end+':'); a('s_endpgm')
        t, self.tail = self.tail, []
        for f in t: f()
        if o['touch']: self.insert_stubs()
        hdr = ('; GFNet spectral filter, two heads: 2-D FFT as bf16 MFMA DFT stages in one persistent launch (generated)\n'
               '; @launch grid=(256,1,1) block=(512,1,1) lds=%d\n' % LDS_TOTAL)
        kd = '''.section .rodata,"a"
.p2align 6
.amdhsa_kernel %s
  .amdhsa_next_free_vgpr %d
  .amdhsa_next_free_sgpr 102
  .amdhsa_accum_offset %d
  .amdhsa_group_segment_fixed_size 0
  .amdhsa_kernarg_size 72
  .amdhsa_user_sgpr_count 2
  .amdhsa_user_sgpr_kernarg_segment_ptr 1
  .amdhsa_system_sgpr_workgroup_id_x 1
.end_amdhsa_kernel
''' % (name, NVGPR, (NVGPR+3)//4*4)
        return hdr + '.amdgcn_target "amdgcn-amd-amdhsa--gfx950"\n.text\n' + a.text() + kd

    def insert_stubs(self):
        a = self.a
        txt = '.amdgcn_target "amdgcn-amd-amdhsa--gfx950"\n.text\n' + a.text() + ''.join('stub_%d:\n' % k for k in range(16)) + 's_endpgm\n'
        open('pass1.s', 'w').write(txt)
        subprocess.check_call(['clang', '-x', 'assembler', '-target', 'amdgcn-amd-amdhsa', '-mcpu=gfx950', '-c', 'pass1.s', '-o', 'pass1.o'])
        dis = subprocess.check_output(['llvm-objdump', '-d', '--mcpu=gfx950', 'pass1.o']).decode()
        addrs = [int(m.group(1), 16) for m in re.finditer(r'// ([0-9A-F]{12}):', dis)]
        real = [i for i, x in enumerate(a.ins) if x.kind != 'none']
        assert len(addrs) == len(real) + 1, (len(addrs), len(real))
        size = {real[k]: addrs[k+1] - addrs[k] for k in range(len(real))}
        pos = ENTRY_OFF; nxt = 2048
        out = []; k = 0; prev = None; ez = False
        for i, x in enumerate(a.ins):
            if i in size:
                if prev is not None and prev.text.strip() == 's_mov_b64 exec, 0': ez = True
                if prev is not None and prev.text.strip() == 's_mov_b64 exec, -1': ez = False
                if pos >= nxt and k < 16 and not ez:
                    out.append(Ins('stub_%d:' % k)); out.append(Ins('s_cbranch_execz ret_%d' % (k >> 3)))
                    pos += 4; k += 1; nxt += 1024
                pos += size[i]; prev = x
                if x.op == 's_endpgm': self.hot_end = pos
            out.append(x)
        self.code_end = pos
        while k < 16:
            out.append(Ins('stub_%d:' % k)); out.append(Ins('s_branch ret_%d' % (k >> 3))); k += 1
        a.ins = out

if __name__ == '__main__':
    out = sys.argv[1]; opt = {}
    for kv in sys.argv[2:]:
        k, x = kv.split('=')
        opt[k] = {'True': True, 'False': False}.get(x, x.replace('+', ' '))
    g = Gen(**opt)
    s = g.build()
    assert g.a.verify() == 0
    open(out, 'w').write(s)
    print(out, 'vgprs', NVGPR, 'lds', LDS_TOTAL, 'nops', g.a.nops, 'lines', len(g.a.ins), 'hot end 0x%x code end 0x%x' % (getattr(g, 'hot_end', 0), getattr(g, 'code_end', 0)))
```

```python
import sys, struct, math, subprocess, re
from asmlib import Asm, Ins

NAME = 'concat_heads__spectral_gfnet__spectral_gfnet__prompt'
def f2u(x): return struct.unpack('<I', struct.pack('<f', x))[0]
def lit(x): return '0x%08x' % f2u(x)
def sigma(m): return (m & 1) | ((m >> 1) & 1) << 3 | ((m >> 2) & 1) << 1 | ((m >> 3) & 1) << 2 | (m & 16)

SC = 2.0**-22
SPIN_MAX = 0x4000
ENTRY_OFF = 0x300
PW = int([x for x in sys.argv if x.startswith('pw=')][0][3:]) if any(x.startswith('pw=') for x in sys.argv) else 1
R0 = 0
R1 = 33024
WL = 66048
SCR = WL + 8*4*1056
SCR_B = SCR + 36*256
TABL = SCR_B + 8192
CNT = TABL + 16384
LDS_TOTAL = CNT + 64
WS_U = (0, 8 << 20)
WS_FLAG = 16 << 20
WS_PROBE = 17 << 20
WS_TS = 72 << 20
class V: pass
_n = [0]
def alloc(n, align=1):
    b = (_n[0] + align - 1)//align*align
    _n[0] = b + n
    return b
V.tid = alloc(1); V.lane = alloc(1)
for nm in 'g n l16 TR Xoff Est Eld X0w X0r0 X0r1 X1w X1r X2w X2r WP WM zero cnt tmp'.split(): setattr(V, nm, alloc(1))
V.Ooff, V.X3w0, V.X3w1, V.X3r = V.Xoff, V.X0w, V.X0r0, V.X0r1
V.T = alloc(10)
V.O = alloc(16, 4)
V.DA = alloc(32, 4); V.DB = alloc(32, 4); V.L = V.DB
V.F16 = alloc(8, 4); V.M2 = alloc(16, 4)
V.F32 = alloc(32, 4); V.TW = alloc(32, 4); V.W = alloc(32, 4)
V.B = alloc(12, 4); V.Bp = alloc(8, 4); V.WF = alloc(4)
NVGPR = _n[0]
assert NVGPR <= 256, NVGPR
def v(i): return 'v%d' % i
def vr(i, n): return 'v[%d:%d]' % (i, i+n-1)
SX, SWR, SWI, SOUT, SDBG, SWS = 's[4:7]', 's[8:11]', 's[12:15]', 's[16:19]', 's[20:23]', 's[24:27]'
sP, sT, sW, sSB, sCB, sK0, sKP, sKM, sWp, sRv = ['s%d' % i for i in range(30, 40)]
sA, sB, sC, sD, sE, sF, sEst, sEld, sCnt, sSpec, sInc, sWL = ['s%d' % i for i in range(40, 52)]
sO = ['s52', 's53', 's54', 's55']
sTS = 56
sDP, sDM, sZ, sCh, sId = 's96', 's97', 's98', 's99', 's100'

class Gen:
    def __init__(self, **opt):
        self.o = dict(ldx='', ldw='', st1='sc1', st2='sc1', sto='nt', ld1='sc1', ld2='sc1', ts=False,
                      prio=True, nb='4', pnop='15', force='', wpos='postX1', touch=True, w1n='9', spos='early', qw='1', qg='1', zg='3', xm='2', pb='17', wsoff='0', pld='', pex='1', merge=True, pre=True, split=False, map='2', rep='1', slp='', sthr='')
        self.o.update(opt)
        self.a = Asm(); self.lab = 0; self.nts = 0; self.sid = -1; self.tail = []
    def label(self, p='L'):
        self.lab += 1
        return '%s_%d' % (p, self.lab)

    def mark(self, nm, drain=False):
        o = self.o; hit = False
        if o.get('clk') and nm in ('w1', 'g1a', 'x1', 'x2', 'w3a', 'end'):
            for op in ('s_memrealtime', 's_memtime'):
                self.a('%s s[%d:%d]' % (op, sTS+2*self.nts, sTS+2*self.nts+1)); self.nts += 1
            self.a('s_waitcnt lgkmcnt(0)')
        if o.get('fine') and nm[0] == 'f':
            self.a('s_memtime s[%d:%d]' % (sTS+2*self.nts, sTS+2*self.nts+1)); self.nts += 1; hit = True
        for key, reg in (('da', 58), ('db', 60)):
            if o.get(key) == nm:
                self.a('%s s[%d:%d]' % ('s_memtime' if 'cyc' in o else 's_memrealtime', reg, reg+1)); hit = True
        if hit and drain: self.a('s_waitcnt lgkmcnt(0)')
    def stamp(self):
        self.sid += 1
        self.mark('s%d' % self.sid)
        if not self.o['ts'] or self.o.get('clk') or self.o.get('fine'): return
        self.a('s_memrealtime s[%d:%d]' % (sTS+2*self.nts, sTS+2*self.nts+1)); self.nts += 1
    def diag_end(self):
        a = self.a; o = self.o
        self.mark('end')
        if not (o['ts'] or 'da' in o): return
        self.stamp(); a('s_waitcnt vmcnt(0)'); self.stamp()
        a('s_waitcnt lgkmcnt(0)')
        if 'da' in o:
            lp = self.label('dg')
            if o['da'] == 'glob':
                a('buffer_load_dword %s, %s, %s, 0 offen offset:64 sc1' % (v(V.tmp), v(V.zero), SDBG))
                a('s_waitcnt vmcnt(0)')
                a('v_readfirstlane_b32 s58, %s' % v(V.tmp)); a('s_mov_b32 s56, s58')
            a('s_sub_u32 %s, s60, s58' % sA)
            if 'db0' in o: a('s_add_u32 %s, %s, 250' % (sA, sA)); a('s_lshl_b32 %s, %s, 1' % (sA, sA))
            a('s_lshr_b32 %s, %s, 2' % (sA, sA) if 'cyc' in o else 's_lshl_b32 %s, %s, 2' % (sA, sA))
            for key, reg in (('dp', sP), ('dt', sT), ('db0', sId)):
                if key in o: a('s_cmp_eq_u32 %s, %s' % (reg, o[key])); a('s_cselect_b32 %s, %s, 0' % (sA, sA))
            a('s_min_u32 %s, %s, 9000' % (sA, sA))
            if 'enc' in o:
                a('s_and_b32 %s, s62, 7' % sB); a('s_mul_i32 %s, %s, 10000' % (sB, sB)); a('s_add_u32 %s, %s, %s' % (sA, sA, sB))
                a('s_bfe_u32 %s, s62, 0x30008' % sB); a('s_mul_i32 %s, %s, 100000' % (sB, sB)); a('s_add_u32 %s, %s, %s' % (sA, sA, sB))
            a('s_add_u32 %s, %s, 3000' % (sA, sA))
            a(lp+':')
            a('s_memrealtime s[28:29]'); a('s_waitcnt lgkmcnt(0)')
            a('s_sub_u32 %s, s28, s56' % sB); a('s_cmp_lt_u32 %s, %s' % (sB, sA)); a('s_cbranch_scc1 %s' % lp)
            return
        a('s_lshl_b32 %s, %s, 7' % (sA, sId)); a('s_add_u32 %s, %s, 0x%x' % (sA, sA, WS_TS))
        a('s_mov_b64 exec, 1')
        for i in range(14):
            a('v_mov_b32 %s, s%d' % (v(V.T), sTS+2*i))
            a('buffer_store_dword %s, %s, %s, %s offen offset:%d' % (v(V.T), v(V.zero), SWS, sA, 4*i))
            a('s_nop 1')

    def cond(self, reg, val, f):
        a = self.a; l = self.label('c')
        a('s_cmp_lg_u32 %s, %d' % (reg, val)); a('s_cbranch_scc1 %s' % l)
        f(); a(l+':')
    def ifelse(self, reg, val, feq, fne, eq_first=False):
        a = self.a; l0, l1 = self.label('ie'), self.label('iend')
        if eq_first:
            a('s_cmp_lg_u32 %s, %d' % (reg, val)); a('s_cbranch_scc1 %s' % l0)
            feq(); a('s_branch %s' % l1); a(l0+':'); fne()
        else:
            a('s_cmp_eq_u32 %s, %d' % (reg, val)); a('s_cbranch_scc1 %s' % l0)
            fne(); a('s_branch %s' % l1); a(l0+':'); feq()
        a(l1+':')
    def far(self, reg, val, feq, fne=None):
        a = self.a; l0, l1 = self.label('far'), self.label('back')
        a('s_cmp_eq_u32 %s, %d' % (reg, val)); a('s_cbranch_scc1 %s' % l0)
        if fne: fne()
        a(l1+':')
        def t():
            a(l0+':'); feq(); a('s_branch %s' % l1)
        self.tail.append(t)
    def touch(self, rnd, half=False):
        a = self.a
        a('s_mov_b64 exec, 0')
        if half:
            for k in range(3):
                a('s_cmp_eq_u32 %s, %d' % (sW, 4+k)); a('s_cbranch_scc1 stub_%d' % (2*k))
            a('s_branch stub_6')
        else:
            for k in range(7):
                a('s_cmp_eq_u32 %s, %d' % (sW, k)); a('s_cbranch_scc1 stub_%d' % (8*rnd+k))
            a('s_branch stub_%d' % (8*rnd+7))
        a('ret_%d:' % rnd)
        a('s_mov_b64 exec, -1')

    def prologue(self, end):
        a = self.a; T = V.T
        a('s_cmp_ge_u32 s2, 0x100')
        a('s_cbranch_scc1 %s' % end)
        if 'da' in self.o: a('s_memrealtime s[56:57]'); self.mark('start')
        a('s_bfe_u32 %s, s2, 0x10002' % sP)
        a('s_mul_i32 s3, %s, 24' % sP)
        a('s_load_dwordx2 s[4:5], s[0:1], s3')
        a('s_load_dwordx2 s[24:25], s[0:1], 0x40')
        a('s_load_dwordx2 s[20:21], s[0:1], 0x38')
        a('s_load_dwordx2 s[8:9], s[0:1], s3 offset:8')
        a('s_load_dwordx2 s[12:13], s[0:1], s3 offset:16')
        a('s_load_dwordx2 s[16:17], s[0:1], 0x30')
        self.stamp()
        a('v_lshrrev_b32 %s, 6, v0' % v(T))
        a('v_and_b32 %s, 63, v0' % v(V.lane))
        a('v_readfirstlane_b32 %s, %s' % (sW, v(T)))
        mp = self.o['map']
        a('s_and_b32 %s, s2, 3' % sA)
        if int(self.o['xm']): a('s_xor_b32 %s, %s, %s' % (sA, sA, self.o['xm']))
        if mp in ('0', '1'):
            a('s_bfe_u32 %s, s2, 0x10003' % sB)
            if mp == '0': a('s_lshl1_add_u32 %s, %s, %s' % (sA, sA, sB))
            else: a('s_lshl2_add_u32 %s, %s, %s' % (sA, sB, sA))
            a('s_lshr_b32 %s, s2, 4' % sB)
            a('s_lshl4_add_u32 %s, %s, %s' % (sT, sA, sB))
        else:
            a('s_lshr_b32 %s, s2, 3' % sB)
            a('s_lshl2_add_u32 %s, %s, %s' % (sT, sB, sA))
            a('s_lshr_b32 %s, %s, 4' % (sA, sT)); a('s_and_b32 %s, %s, 15' % (sB, sT))
        a('s_bfe_u32 %s, %s, 0x10001' % (sC, sB))
        a('s_lshl1_add_u32 %s, %s, %s' % (sCB, sA, sC))
        a('s_lshr_b32 %s, %s, 2' % (sSB, sB))
        a('s_and_b32 %s, %s, 1' % (sC, sB))
        a('s_lshl1_add_u32 %s, %s, %s' % (sSB, sSB, sC))
        a('s_mov_b32 s6, 0x400000'); a('s_mov_b32 s7, 0x20000')
        a('v_lshrrev_b32 %s, 4, %s' % (v(V.g), v(V.lane)))
        a('v_lshlrev_b32 %s, 4, %s' % (v(V.l16), v(V.lane)))
        a('v_and_b32 %s, 8, v0' % v(T))
        a('v_lshlrev_b32 %s, 11, %s' % (v(T), v(T)))
        a('v_lshl_add_u32 %s, %s, 20, %s' % (v(T), v(V.g), v(T)))
        a('v_and_b32 %s, 0x70, %s' % (v(T+1), v(V.l16)))
        a('v_add_u32 %s, %s, %s' % (v(V.Xoff), v(T), v(T+1)))
        a('s_lshl4_add_u32 %s, %s, %s' % (sA, sW, sSB))
        a('s_lshl4_add_u32 %s, %s, %s' % (sA, sA, sCB))
        a('s_lshl_b32 %s, %s, 7' % (sO[0], sA))
        for r in range(1, 4): a('s_add_u32 %s, %s, 0x%x' % (sO[r], sO[0], r*262144))
        a('s_lshl3_add_u32 %s, s2, %s' % (sId, sW))
        a('s_xor_b32 %s, %s, %d' % (sCh, sId, 8*int(self.o['qg'])+int(self.o['qw']))); a('s_and_b32 %s, %s, 0xffffff7f' % (sCh, sCh))
    def srds(self):
        a = self.a
        a('s_mov_b32 s10, 2101248'); a('s_mov_b32 s11, 0x20000')
        a('s_mov_b32 s14, 2101248'); a('s_mov_b32 s15, 0x20000')
        a('s_mov_b32 s18, 0x800000'); a('s_mov_b32 s19, 0x20000')
    def srds0(self):
        a = self.a
        a('s_mov_b32 s22, 256'); a('s_mov_b32 s23, 0x20000')
        a('s_mov_b32 s26, 0x%x' % ((80 if self.o['ts'] else 18) << 20)); a('s_mov_b32 s27, 0x20000')
        a('v_and_b32 %s, 15, %s' % (v(V.n), v(V.lane)))
        a('v_mov_b32 %s, 0' % v(V.zero)); a('v_mov_b32 %s, %d' % (v(V.cnt), CNT))

    def x_issue(self):
        for r in range(4):
            self.a('buffer_load_dwordx4 %s, %s, %s, %s offen %s' % (vr(V.L+4*r, 4), v(V.Xoff), SX, sO[r], self.o['ldx']))
    def probe(self):
        a = self.a; T = V.T; NB = int(self.o['nb']); ld = self.o['pld']
        a('s_bfe_u32 %s, s2, 0x10004' % sC)
        a('s_mul_i32 %s, %s, 0x12000' % (sA, sC)); a('s_add_u32 %s, %s, 0x%x' % (sA, sA, int(self.o['pb']) << 20))
        a('s_xor_b32 %s, %s, 0x2000' % (sB, sA))
        a('s_lshl_b32 %s, %s, 16' % (sD, sC)); a('s_add_u32 %s, %s, 0x%x' % (sD, sD, WS_FLAG))
        a('s_mov_b32 s26, 0x%x' % (18 << 20)); a('s_mov_b32 s27, 0x20000')
        a('s_lshl_b32 %s, %s, 3' % (sC, sC))
        a('v_mul_u32_u24 %s, 0x5080, %s' % (v(T), v(V.lane)))
        a('v_lshlrev_b32 %s, 10, %s' % (v(T+1), v(V.lane)))
        a('v_mov_b32 %s, 0' % v(T+2))
        if not ld:
            for k in range(2*NB): a('v_mov_b32 %s, 0' % v(V.DA+k))
        a('s_mov_b64 exec, %s' % self.o['pex'])
        if 'da' in self.o: a('s_waitcnt lgkmcnt(0)'); a('s_mov_b32 s60, s56'); a('s_mov_b32 s58, s56')
        a('s_waitcnt lgkmcnt(0)')
        for side, base in enumerate((sA, sB)):
            for k in range(NB):
                if ld: a('buffer_load_dword %s, %s, %s, %s offen offset:%d %s' % (v(V.DA+side*NB+k), v(T), SWS, base, k*0x300, ld))
                else: a('buffer_atomic_add %s, %s, %s, %s offen offset:%d sc0 sc1' % (v(V.DA+side*NB+k), v(T), SWS, base, k*0x300))
        a('s_mov_b64 exec, -1')
        a('buffer_store_dword %s, %s, %s, %s offen sc1' % (v(T+2), v(T+1), SWS, sD))
        if self.o['pre']: a('s_load_dword s95, s[20:21], 0x80')
        self.x_issue()
        a('s_waitcnt vmcnt(%d)' % (NB+5))
        for x in self.o['pnop'].split(','): a('s_nop %s' % x)
        a('s_getreg_b32 %s, hwreg(HW_REG_IB_STS, 0, 4)' % sA)
        a('s_or_b32 %s, %s, 16' % (sA, sA)); a('s_lshl_b32 s94, %s, %s' % (sA, sC))
        if self.o['merge']: a('s_waitcnt vmcnt(4)')
        a('s_atomic_or s94, s[20:21], 0x80')
        self.mark('pub')
    def clear_done(self):
        a = self.a
        if self.o['merge']: return
        def f():
            a('s_mov_b32 s93, 1'); a('s_waitcnt vmcnt(4)')
            a('s_atomic_add s93, s[20:21], 0x0')
        self.cond(sCh, 0, f)
    def ready_check(self):
        a = self.a; l0, l1 = self.label('rdy'), self.label('rdyok')
        a('s_cmp_ge_u32 %s, 2' % sRv)
        a('s_cbranch_scc1 %s' % l1)
        a('s_mov_b32 %s, 0' % sCnt)
        a(l0+':')
        a('buffer_load_dword %s, %s, %s, 0 offen sc1' % (v(V.tmp), v(V.zero), SDBG))
        a('s_add_u32 %s, %s, 1' % (sCnt, sCnt))
        a('s_cmp_gt_u32 %s, 0x%x' % (sCnt, SPIN_MAX))
        a('s_waitcnt vmcnt(0)')
        a('s_cbranch_scc1 %s' % l1)
        a('v_cmp_gt_u32 vcc, 2, %s' % v(V.tmp))
        a('s_cbranch_vccnz %s' % l0)
        a(l1+':')
    def side_load(self):
        self.a('buffer_load_dword %s, %s, %s, 0 offen offset:128 sc1' % (v(V.tmp), v(V.zero), SDBG))
    def side_wait(self):
        a = self.a
        def f():
            lp, ok = self.label('sw'), self.label('swok')
            a('s_mov_b32 %s, 0' % sCnt)
            a(lp+':')
            a('s_waitcnt vmcnt(0)')
            a('v_and_b32 %s, 0x1010, %s' % (v(V.T), v(V.tmp)))
            a('v_cmp_eq_u32 vcc, 0x1010, %s' % v(V.T))
            a('s_cbranch_vccnz %s' % ok)
            self.side_load()
            a('s_add_u32 %s, %s, 1' % (sCnt, sCnt))
            a('s_cmp_lt_u32 %s, 0x%x' % (sCnt, SPIN_MAX))
            a('s_cbranch_scc1 %s' % lp)
            a('s_waitcnt vmcnt(0)')
            a(ok+':')
            a('ds_write2_b32 %s, %s, %s offset0:0 offset1:1' % (v(V.cnt), v(V.tmp), v(V.zero)))
        self.cond(sW, PW, f)
    def side_use(self):
        a = self.a
        a('v_readfirstlane_b32 %s, %s' % (sA, v(V.tmp)))
        if self.o['ts']: a('s_mov_b32 s%d, %s' % (sTS+24, sA))
        if 'enc' in self.o: a('s_mov_b32 s62, %s' % sA)
        a('s_and_b32 %s, %s, 15' % (sB, sA)); a('s_bfe_u32 %s, %s, 0x40008' % (sA, sA))
        a('s_cmp_gt_u32 %s, %s' % (sA, sB))
        a('s_cselect_b32 %s, 0x2000, 0' % sCh)
        if self.o['force'] != '': a('s_mov_b32 %s, %d' % (sCh, int(self.o['force']) << 13))
        a('s_xor_b32 %s, %s, %s' % (sEst, sEst, sCh))
    def flag_addrs(self):
        a = self.a
        a('s_lshr_b32 %s, %s, 4' % (sB, sT))
        a('s_lshl_b32 %s, %s, 13' % (sA, sP)); a('s_add_u32 %s, %s, 0x%x' % (sA, sA, WS_FLAG))
        for dst, wp, gr in ((sF, sW, sB), (sE, sB, sW)):
            a('s_lshl4_add_u32 %s, %s, %s' % (sC, wp, gr)); a('s_lshl_b32 %s, %s, 10' % (sC, sC))
            a('s_add_u32 %s, %s, %s' % (dst, sC, sA))
        R = int(self.o['rep'])
        if R > 1:
            a('s_and_b32 %s, %s, %d' % (sC, sT, R-1)); a('s_lshl_b32 %s, %s, 8' % (sC, sC)); a('s_add_u32 %s, %s, %s' % (sE, sE, sC))
    def side_apply(self):
        for r in (sF, sE, sEld): self.a('s_xor_b32 %s, %s, %s' % (r, r, sCh))
    def arrive(self):
        for r in range(int(self.o['rep'])): self.a('s_atomic_add %s, s[24:25], %s offset:%d' % (sInc, sF, 256*r))
    def poll(self, ex, under=None):
        a = self.a; lp, ok = self.label('poll'), self.label('pollok')
        if under:
            a('s_mov_b32 %s, 0' % sRv)
            a('s_atomic_add %s, s[24:25], %s glc' % (sRv, sE))
            under()
            a('s_waitcnt lgkmcnt(0)')
            a('s_bitcmp1_b32 %s, %d' % (sRv, 4+16*ex))
            a('s_cbranch_scc1 %s' % ok)
        a('s_mov_b32 %s, 0' % sCnt)
        a(lp+':')
        a('s_mov_b32 %s, 0' % sRv)
        a('s_atomic_add %s, s[24:25], %s glc' % (sRv, sE))
        a('s_add_u32 %s, %s, 1' % (sCnt, sCnt))
        a('s_cmp_gt_u32 %s, 0x%x' % (sCnt, SPIN_MAX))
        a('s_waitcnt lgkmcnt(0)')
        a('s_cbranch_scc1 %s' % ok)
        if self.o['slp']:
            a('s_bitcmp1_b32 %s, %d' % (sRv, 4+16*ex))
            a('s_cbranch_scc1 %s' % ok)
            if self.o['sthr']:
                a('s_bfe_u32 %s, %s, 0x%x' % (sA, sRv, 0x50000+16*ex))
                a('s_cmp_ge_u32 %s, %s' % (sA, self.o['sthr'])); a('s_cbranch_scc1 %s' % lp)
            a('s_sleep %s' % self.o['slp'])
            a('s_branch %s' % lp)
        else:
            a('s_bitcmp0_b32 %s, %d' % (sRv, 4+16*ex))
            a('s_cbranch_scc1 %s' % lp)
        a(ok+':')
    def ex_addrs(self):
        a = self.a; T = V.T
        a('s_lshl_b32 %s, %s, 4' % (sB, sW)); a('s_xor_b32 %s, %s, %s' % (sB, sB, sT)); a('s_lshl_b32 %s, %s, 8' % (sB, sB))
        a('v_lshlrev_b32 %s, 4, %s' % (v(T), v(V.n)))
        a('v_lshl_add_u32 %s, %s, 10, %s' % (v(T), v(V.g), v(T)))
        a('v_xor_b32 %s, %s, %s' % (v(T), sB, v(T)))
        a('v_and_b32 %s, 0x6000, %s' % (v(T+1), v(T)))
        a('v_add_u32 %s, %s, %s' % (v(T), v(T), v(T+1)))
        a('v_lshl_add_u32 %s, %s, 18, %s' % (v(V.Est), v(V.g), v(T)))
        a('v_and_b32 %s, 0xdcff, %s' % (v(V.Eld), v(T)))
        a('s_bfe_u32 %s, %s, 0x10001' % (sA, sW)); a('s_xor_b32 %s, %s, %s' % (sA, sA, sP))
        a('s_bfe_u32 %s, %s, 0x10005' % (sC, sT)); a('s_xor_b32 %s, %s, %s' % (sC, sC, sP))
        a('s_lshl_b32 %s, %s, 7' % (sEst, sW)); a('s_add_u32 %s, %s, %s' % (sEst, sEst, sA)); a('s_lshl_b32 %s, %s, 13' % (sEst, sEst))
        a('s_lshl3_add_u32 %s, %s, %s' % (sEld, sT, sC)); a('s_lshl_b32 %s, %s, 13' % (sEld, sEld))

    def trig(self, x, re, im, conj_re=None, conj_im=None):
        a = self.a; c, s = V.T+8, V.T+9
        a('v_cos_f32 %s, %s' % (v(c), v(x)))
        a('v_sin_f32 %s, %s' % (v(s), v(x)))
        if getattr(self, 'fill', None): self.fill(); self.fill = None
        a('v_cvt_pk_bf16_f32 %s, %s, %s' % (v(re), v(c), v(s)))
        a('v_cvt_pk_bf16_f32 %s, -%s, %s' % (v(im), v(s), v(c)))
        if conj_re is not None:
            a('v_xor_b32 %s, 0x80000000, %s' % (v(conj_re), v(re)))
            a('v_xor_b32 %s, 0x8000, %s' % (v(conj_im), v(im)))
    def ladder(self, x, step, regs):
        a = self.a
        for k, r in enumerate(regs):
            if k < len(regs)-1: self.fill = lambda: a('v_add_f32 %s, %s, %s' % (v(x), v(x), v(step)))
            self.trig(x, *r)
    def gen_F16(self):
        a = self.a; T = V.T
        a('v_cvt_f32_u32 %s, %s' % (v(T), v(V.n)))
        a('v_cvt_f32_u32 %s, %s' % (v(T+1), v(V.g)))
        a('v_mul_f32 %s, %s, %s' % (v(T), lit(1/16), v(T)))
        a('v_mul_f32 %s, 4.0, %s' % (v(T+1), v(T+1)))
        a('v_mul_f32 %s, %s, %s' % (v(T+2), v(T), v(T+1)))
        self.ladder(T+2, T, [(V.F16+r, V.F16+4+r) for r in range(4)])
    def gen_M2(self):
        a = self.a; T = V.T
        def normal():
            a('v_cvt_f32_u32 %s, %s' % (v(T+2), sW))
            a('v_fmac_f32 %s, %s, %s' % (v(T), lit(1/256), v(T+2)))
            a('v_mul_f32 %s, %s, %s' % (v(T+2), v(T), v(T+1)))
            self.ladder(T+2, T, [(V.M2+r, V.M2+4+r, V.M2+8+r, V.M2+12+r) for r in range(4)])
        def w0():
            a('v_lshrrev_b32 %s, 1, %s' % (v(T), v(V.n)))
            a('v_cvt_f32_u32 %s, %s' % (v(T), v(T)))
            a('v_lshlrev_b32 %s, 31, %s' % (v(T+3), v(V.n)))
            a('v_add_f32 %s, 0.5, %s' % (v(T+4), v(T)))
            a('v_xor_b32 %s, %s, %s' % (v(T+3), lit(1/16), v(T+3)))
            a('v_cmp_ne_u32 vcc, 1, %s' % v(V.n))
            a('v_mul_f32 %s, %s, %s' % (v(T), v(T), v(T+3)))
            a('v_mul_f32 %s, %s, %s' % (v(T+4), v(T+4), v(T+3)))
            a('v_cndmask_b32 %s, 0.5, %s, vcc' % (v(T), v(T)))
            for ts in range(2):
                d = T+4*ts
                a('v_mul_f32 %s, %s, %s' % (v(T+2), v(d), v(T+1)))
                self.ladder(T+2, d, [(V.M2+8*ts+r, V.M2+8*ts+4+r) for r in range(4)])
        self.ifelse(sW, 0, w0, normal)
    def gen_M3(self):
        a = self.a; T = V.T
        a('v_cvt_f32_u32 %s, %s' % (v(T), v(V.n)))
        a('v_mul_f32 %s, %s, %s' % (v(T+1), lit(1/256), v(T)))
        a('v_mul_f32 %s, %s, %s' % (v(T), lit(1/16), v(T)))
        def normal():
            a('v_lshl_add_u32 %s, %s, 6, %s' % (v(T+2), v(V.g), sW))
            a('v_cvt_f32_u32 %s, %s' % (v(T+2), v(T+2)))
            a('v_mul_f32 %s, %s, %s' % (v(T+2), v(T+2), v(T+1)))
            self.ladder(T+2, T, [(V.M2+r, V.M2+4+r, V.M2+8+r, V.M2+12+r) for r in range(4)])
        def w0():
            a('v_lshlrev_b32 %s, 5, %s' % (v(T+2), v(V.g)))
            a('v_cvt_f32_u32 %s, %s' % (v(T+2), v(T+2)))
            a('v_mul_f32 %s, 0.5, %s' % (v(T), v(T)))
            a('v_mul_f32 %s, %s, %s' % (v(T+2), v(T+2), v(T+1)))
            regs = []
            for k in range(4):
                b = V.M2+8*(k & 1)+2*(k >> 1)
                regs.append((b, b+4, b+1, b+5))
            self.ladder(T+2, T, regs)
            a('s_mov_b64 exec, 0xffff')
            a('v_lshlrev_b32 %s, 15, %s' % (v(T+2), v(V.n)))
            a('v_and_b32 %s, 0x8000, %s' % (v(T+2), v(T+2)))
            a('v_or_b32 %s, 0x3f80, %s' % (v(V.M2+1), v(T+2)))
            a('v_lshlrev_b32 %s, 16, %s' % (v(V.M2+5), v(V.M2+1)))
            a('s_mov_b64 exec, -1')
        self.ifelse(sW, 0, w0, normal)
    def sigma_lane(self, dst):
        a = self.a; t = V.T+7
        a('v_and_b32 %s, 17, %s' % (v(dst), v(V.lane)))
        a('v_bfe_u32 %s, %s, 2, 2' % (v(t), v(V.lane)))
        a('v_lshl_add_u32 %s, %s, 1, %s' % (v(dst), v(t), v(dst)))
        a('v_and_b32 %s, 2, %s' % (v(t), v(V.lane)))
        a('v_lshl_add_u32 %s, %s, 2, %s' % (v(dst), v(t), v(dst)))
    def coop_gen(self):
        a = self.a; T = V.T; X = V.DA
        self.sigma_lane(T)
        a('v_lshrrev_b32 %s, 5, %s' % (v(T+1), v(V.lane)))
        a('v_lshlrev_b32 %s, 7, %s' % (v(T+2), v(T+1)))
        a('v_lshl_add_u32 %s, %s, 1, %s' % (v(T+2), v(T), v(T+2)))
        a('s_and_b32 %s, %s, 2' % (sD, sKP)); a('s_sub_u32 %s, %s, %s' % (sD, sWL, sD))
        a('v_add_u32 %s, %s, %s' % (v(V.WP), sD, v(T+2)))
        a('s_add_u32 %s, %s, %d' % (sD, sD, 1024-832))
        a('v_sub_u32 %s, %s, %s' % (v(V.WM), sD, v(T+2)))
        a('v_cvt_f32_u32 %s, %s' % (v(T), v(T)))
        a('s_mul_i32 %s, %s, 4' % (sA, sW)); a('s_lshr_b32 %s, 0x75643120, %s' % (sA, sA)); a('s_and_b32 %s, %s, 7' % (sA, sA)); a('s_lshl_b32 %s, %s, 2' % (sA, sA))
        a('v_lshl_add_u32 %s, %s, 1, %s' % (v(T+1), v(T+1), sA))
        a('v_mul_f32 %s, %s, %s' % (v(T), lit(1/2048), v(T)))
        a('v_cvt_f32_u32 %s, %s' % (v(T+1), v(T+1)))
        a('v_mul_f32 %s, %s, %s' % (v(T+2), v(T+1), v(T)))
        for e in range(2):
            a('v_cos_f32 %s, %s' % (v(T+5), v(T+2)))
            a('v_sin_f32 %s, %s' % (v(T+6), v(T+2)))
            a('v_rcp_f32 %s, %s' % (v(T+5), v(T+5)))
            a('v_mul_f32 %s, %s, %s' % (v(T+3), lit(64.0), v(T+2)))
            a('v_mul_f32 %s, %s, %s' % (v(X+4+e), v(T+6), v(T+5)))
            a('v_fma_f32 %s, %s, %s, 1.0' % (v(T+5), v(X+4+e), v(X+4+e)))
            a('v_rcp_f32 %s, %s' % (v(T+6), v(T+5)))
            a('v_mul_f32 %s, -2.0, %s' % (v(T+4), v(X+4+e)))
            a('v_fma_f32 %s, -%s, %s, 1.0' % (v(T+5), v(T+5), v(T+6)))
            a('v_fmac_f32 %s, %s, %s' % (v(T+6), v(T+5), v(T+6)))
            a('v_mul_f32 %s, %s, %s' % (v(X+6+e), v(T+6), v(T+4)))
            if e == 0: self.fill = lambda: a('v_add_f32 %s, %s, %s' % (v(T+2), v(T+2), v(T)))
            self.trig(T+3, X+e, X+2+e)
        a('s_lshr_b32 %s, %s, 1' % (sA, sW)); a('s_lshl_b32 %s, %s, 7' % (sA, sA))
        a('s_and_b32 %s, %s, 1' % (sB, sW)); a('s_add_u32 %s, %s, %s' % (sA, sA, sB))
        a('s_lshl3_add_u32 %s, %s, %d' % (sA, sA, TABL))
        a('v_add_u32 %s, %s, %s' % (v(T), sA, v(V.l16)))
        for k in range(4): a('ds_write_b64 %s, %s offset:%d' % (v(T), vr(X+2*k, 2), 4096*k))
    def coop_post(self):
        a = self.a
        a('v_mov_b32 %s, 1' % v(V.T+1))
        a('ds_add_u32 %s, %s offset:4' % (v(V.cnt), v(V.T+1)))
    def coop_wait(self):
        a = self.a; T = V.T; lp, ok = self.label('cw'), self.label('cwok')
        a('s_mov_b32 %s, 0' % sCnt)
        a(lp+':')
        a('ds_read_b32 %s, %s offset:4' % (v(T), v(V.cnt)))
        a('s_add_u32 %s, %s, 1' % (sCnt, sCnt))
        a('s_cmp_gt_u32 %s, 0x%x' % (sCnt, SPIN_MAX*8))
        a('s_waitcnt lgkmcnt(0)')
        a('s_cbranch_scc1 %s' % ok)
        a('v_cmp_gt_u32 vcc, 0x200, %s' % v(T))
        a('s_cbranch_vccnz %s' % lp)
        a(ok+':')
    def coop_read(self):
        a = self.a; T = V.T
        a('v_add_u32 %s, %d, %s' % (v(T), TABL, v(V.l16)))
        for k in range(16): a('ds_read_b128 %s, %s offset:%d' % (vr(V.F32+4*k, 4), v(T), 1024*k))
    def calc_k0(self):
        a = self.a
        a('s_lshr_b32 %s, %s, 4' % (sA, sT)); a('s_and_b32 %s, %s, 15' % (sB, sT))
        a('s_lshl4_add_u32 %s, %s, %s' % (sK0, sB, sA))
        a('s_and_b32 %s, %s, 12' % (sC, sB)); a('s_bfe_u32 %s, %s, 0x10001' % (sD, sB)); a('s_add_u32 %s, %s, %s' % (sC, sC, sD))
        a('s_and_b32 %s, %s, 1' % (sD, sB)); a('s_lshl1_add_u32 %s, %s, %s' % (sC, sD, sC)); a('s_lshl_b32 %s, %s, 3' % (sC, sC))
        a('s_cmp_eq_u32 %s, 0' % sA); a('s_cselect_b32 %s, %s, %s' % (sK0, sC, sK0))
        a('s_cmp_eq_u32 %s, 0' % sT); a('s_cselect_b32 %s, 7, 8' % sA)
        a('s_lshl_b32 %s, %s, %s' % (sKP, sW, sA)); a('s_add_u32 %s, %s, %s' % (sKP, sKP, sK0))
        a('s_sub_u32 %s, 0x800, %s' % (sKM, sKP))
        a('s_cmp_eq_u32 %s, 0' % sKP)
        a('s_cselect_b32 %s, 0x400, %s' % (sKM, sKM)); a('s_cselect_b32 %s, 1, 0' % sSpec)
        a('s_mul_i32 %s, %s, 1026' % (sKP, sKP)); a('s_mul_i32 %s, %s, 1026' % (sKM, sKM))
        a('s_mul_i32 %s, %s, 4224' % (sWL, sW)); a('s_add_u32 %s, %s, %d' % (sWL, sWL, WL))
        a('s_and_b32 %s, %s, 2' % (sA, sKP))
        a('s_add_u32 %s, %s, %s' % (sDP, sKP, sA)); a('s_add_u32 %s, %s, %s' % (sDM, sKM, sA))
    def gen_B(self):
        a = self.a; T = V.T; c, s = T+8, T+9
        a('v_lshrrev_b32 %s, 1, %s' % (v(T), v(V.n)))
        a('v_cvt_f32_u32 %s, %s' % (v(T+2), v(V.g)))
        a('v_and_b32 %s, 1, %s' % (v(T+3), v(V.n)))
        a('v_add_f32 %s, %s, %s' % (v(T+2), v(T+2), v(T+2)))
        def normal():
            a('v_lshl_add_u32 %s, %s, 8, %s' % (v(T+1), v(T), sK0))
            a('v_lshlrev_b32 %s, 4, %s' % (v(T+4), v(T+3)))
            a('v_cvt_f32_u32 %s, %s' % (v(T+1), v(T+1)))
            a('v_lshlrev_b32 %s, 31, %s' % (v(T+6), v(V.n)))
            a('v_cvt_f32_u32 %s, %s' % (v(T+3), v(T+3)))
            a('v_mul_f32 %s, %s, %s' % (v(T+1), lit(1/2048), v(T+1)))
            a('s_brev_b32 %s, 1' % sA)
            a('v_lshrrev_b32 %s, %s, %s' % (v(T+4), v(T+4), sA))
            a('v_mul_f32 %s, %s, %s' % (v(T+5), v(T+1), v(T+2)))
            a('v_fmac_f32 %s, %s, %s' % (v(T+5), lit(0.25), v(T+3)))
            for sbb in range(2):
                if sbb == 0: self.fill = lambda: a('v_add_f32 %s, %s, %s' % (v(T+5), v(T+5), v(T+1)))
                else: self.fill = lambda: a('v_cvt_f32_u32 %s, %s' % (v(T), v(T)))
                self.trig(T+5, V.B+2*sbb, V.B+6+2*sbb)
                a('v_xor_b32 %s, %s, %s' % (v(V.B+2*sbb+1), v(V.B+2*sbb), v(T+4)))
                a('v_xor_b32 %s, %s, %s' % (v(V.B+6+2*sbb+1), v(V.B+6+2*sbb), v(T+4)))
            a('v_lshl_add_u32 %s, %s, 9, %s' % (v(T+1), v(V.g), sK0))
            a('v_xor_b32 %s, %s, %s' % (v(T), v(T), v(T+6)))
            a('v_cvt_f32_u32 %s, %s' % (v(T+1), v(T+1)))
            a('v_mul_f32 %s, 0.5, %s' % (v(T+5), v(T+3)))
            a('v_mul_f32 %s, %s, %s' % (v(T+1), lit(1/2048), v(T+1)))
            a('v_fmac_f32 %s, %s, %s' % (v(T+5), v(T+1), v(T)))
            for ii in range(2):
                a('v_cos_f32 %s, %s' % (v(c), v(T+5)))
                a('v_sin_f32 %s, %s' % (v(s), v(T+5)))
                a('v_mul_f32 %s, %s, %s' % (v(c), lit(SC), v(c)))
                a('v_mul_f32 %s, %s, %s' % (v(s), lit(SC), v(s)))
                if ii == 0: a('v_fmac_f32 %s, %s, %s' % (v(T+5), lit(0.125), v(T)))
                a('v_cvt_pk_bf16_f32 %s, %s, %s' % (v(T+1), v(c), v(s)))
                a('v_cvt_pk_bf16_f32 %s, -%s, %s' % (v(T+2), v(s), v(c)))
                a('v_xor_b32 %s, %s, %s' % (v(V.Bp+2*ii), v(T+1), v(T+6)))
                a('v_xor_b32 %s, %s, %s' % (v(V.Bp+4+2*ii), v(T+2), v(T+6)))
                a('v_xor_b32 %s, %s, %s' % (v(V.Bp+2*ii+1), v(T+2), v(T+6)))
                a('v_xor_b32 %s, 0x80008000, %s' % (v(V.Bp+4+2*ii+1), v(V.Bp+2*ii)))
        def special():
            a('v_cvt_f32_u32 %s, %s' % (v(T+1), v(T)))
            a('v_mul_f32 %s, %s, %s' % (v(T+1), lit(1/16), v(T+1)))
            a('v_lshlrev_b32 %s, 4, %s' % (v(T+4), v(T+3)))
            a('v_cmp_eq_u32 s[84:85], 0, %s' % v(T))
            a('v_and_b32 %s, 1, %s' % (v(T+6), v(T)))
            a('v_cmp_eq_u32 s[86:87], 1, %s' % v(T+6))
            a('v_mul_f32 %s, %s, %s' % (v(T+5), v(T+1), v(T+2)))
            for sbb in range(2):
                a('v_cos_f32 %s, %s' % (v(c), v(T+5)))
                a('v_sin_f32 %s, %s' % (v(s), v(T+5)))
                a('v_mul_f32 %s, 2.0, %s' % (v(c), v(c)))
                a('v_mul_f32 %s, -2.0, %s' % (v(s), v(s)))
                a('v_cndmask_b32 %s, %s, 1.0, s[84:85]' % (v(c), v(c)))
                a('v_cndmask_b32 %s, %s, %s, s[84:85]' % (v(s), v(s), '-1.0' if sbb else '1.0'))
                for src, dst in ((c, V.B+2*sbb), (s, V.B+6+2*sbb)):
                    a('v_cvt_pk_bf16_f32 %s, %s, 0' % (v(T+7), v(src)))
                    a('v_lshlrev_b32 %s, %s, %s' % (v(T+7), v(T+4), v(T+7)))
                    a('v_cndmask_b32 %s, %s, 0, s[86:87]' % (v(dst), v(T+7)))
                    a('v_cndmask_b32 %s, 0, %s, s[86:87]' % (v(dst+1), v(T+7)))
                a('v_add_f32 %s, %s, %s' % (v(T+5), v(T+5), v(T+1)))
            a('v_cmp_eq_u32 s[88:89], 0, %s' % v(V.g))
            a('v_cmp_eq_u32 s[90:91], 1, %s' % v(T+3))
            a('v_lshlrev_b32 %s, 31, %s' % (v(T+6), v(T)))
            a('v_xor_b32 %s, %s, %s' % (v(T+6), lit(SC), v(T+6)))
            a('v_mov_b32 %s, %s' % (v(T+4), lit(SC)))
            a('v_mul_f32 %s, %s, %s' % (v(T+5), v(T+1), v(T+2)))
            for ii in range(2):
                a('v_cos_f32 %s, %s' % (v(c), v(T+5)))
                a('v_sin_f32 %s, %s' % (v(s), v(T+5)))
                a('v_mul_f32 %s, %s, %s' % (v(c), lit(2*SC), v(c)))
                a('v_mul_f32 %s, %s, %s' % (v(s), lit(-2*SC), v(s)))
                if ii == 0:
                    a('v_cndmask_b32 %s, %s, %s, s[88:89]' % (v(c), v(c), v(T+4)))
                    a('v_cndmask_b32 %s, %s, %s, s[88:89]' % (v(s), v(s), v(T+6)))
                a('v_cvt_pk_bf16_f32 %s, %s, %s' % (v(T+7), v(s), v(c)))
                if ii: a('v_cndmask_b32 %s, 0, %s, s[90:91]' % (v(T+7), v(T+7)))
                else: a('v_cndmask_b32 %s, %s, 0, s[90:91]' % (v(T+7), v(T+7)))
                a('v_mov_b32 %s, 0' % v(V.Bp+2*ii)); a('v_mov_b32 %s, %s' % (v(V.Bp+2*ii+1), v(T+7)))
                a('v_mov_b32 %s, %s' % (v(V.Bp+4+2*ii), v(T+7))); a('v_mov_b32 %s, 0' % v(V.Bp+4+2*ii+1))
                a('v_add_f32 %s, %s, %s' % (v(T+5), v(T+5), v(T+1)))
        self.far(sT, 0, special, normal)
        for d, r in ((4, 0), (5, 1), (10, 6), (11, 7)): a('v_mov_b32 %s, %s' % (v(V.B+d), v(V.B+r)))

    def wq(self, rho): return (rho & 1) + 8*((rho >> 1) & 1) + 4*((rho >> 2) & 1)
    def w_dma1(self, i):
        a = self.a
        srd, so = [(SWR, sDP), (SWI, sDP), (SWR, sDM), (SWI, sDM)][i]
        a('s_add_u32 m0, %s, %d' % (sWL, 1056*i))
        a('buffer_load_dwordx4 %s, %s, %s offen %s lds' % (v(V.l16), srd, so, self.o['ldw']))
    def w_dma(self):
        for i in range(4): self.w_dma1(i)
    def w_edge_load(self):
        a = self.a; T = V.T
        a('s_mov_b64 exec, 15')
        a('v_mov_b32 %s, %s' % (v(T), sKP)); a('v_mov_b32 %s, %s' % (v(T+1), sKM))
        a('s_mov_b64 vcc, 10')
        a('v_cndmask_b32 %s, %s, %s, vcc' % (v(T), v(T), v(T+1)))
        a('v_and_b32 %s, 2, %s' % (v(T+1), v(V.lane)))
        a('v_lshl_add_u32 %s, %s, 9, %s' % (v(T), v(T+1), v(T)))
        a('buffer_load_short_d16_hi %s, %s, %s, 0 offen' % (v(V.WF), v(T), SWR))
        a('buffer_load_short_d16_hi %s, %s, %s, 0 offen' % (v(V.WF+1), v(T), SWI))
        a('s_mov_b64 exec, -1')
    def w_edge_rl(self):
        for l in range(4):
            for im in range(2): self.a('v_readlane_b32 s%d, %s, %d' % (84+2*l+im, v(V.WF+im), l))
    def w_edge(self):
        a = self.a; T = V.T
        self.w_edge_rl()
        q = ((84, 86, 'add'), (85, 87, 'sub'), (90, 88, 'add'), (91, 89, 'sub'))
        for i, (x, y, op) in enumerate(q): a('v_mov_b32 %s, s%d' % (v(T+i), y))
        for i, (x, y, op) in enumerate(q): a('v_%s_f32 %s, s%d, %s' % (op, v(V.WF+i), x, v(T+i)))
        for i in range(4): a('v_mul_f32 %s, 0.5, %s' % (v(V.WF+i), v(V.WF+i)))
        a('s_mov_b64 s[92:93], 1')
    def w_read1(self, rho, im, dst=None, swap=False):
        dst = V.W if dst is None else dst
        if rho < 8: ad, off = V.WP, 64*self.wq(rho) + (2112 if swap else 0)
        else: ad, off = V.WM, 64*(13-self.wq(rho)) + (0 if swap else 2112)
        return 'ds_read_u16_d16_hi %s, %s offset:%d' % (v(dst+16*im+rho), v(ad), off+1056*im)
    def w_fix(self, half):
        return ['v_cndmask_b32 %s, %s, %s, s[92:93]' % (v(V.W+8*half+16*im), v(V.W+8*half+16*im), v(V.WF+2*half+im)) for im in range(2)]
    def w_special(self):
        a = self.a; T = V.T; X = V.DA
        def f():
            for sw, dst in ((False, V.W), (True, X)):
                for rho in range(16):
                    for im in range(2): a(self.w_read1(rho, im, dst, sw))
            a('s_waitcnt lgkmcnt(0) vmcnt(0)')
            self.w_edge_rl()
            a('s_mov_b64 exec, 1')
            for r in (V.W+16, V.W+24, X+16, X+24): a('v_mov_b32 %s, 0' % v(r))
            a('v_mov_b32 %s, s90' % v(V.W+8)); a('v_mov_b32 %s, s88' % v(X+8))
            a('s_mov_b64 exec, -1')
            for i in range(32):
                a('v_add_f32 %s, %s, %s' % (v(V.W+i), v(V.W+i), v(X+i)))
                if (i & 15) < 8: a('v_fma_f32 %s, -2.0, %s, %s' % (v(X+i), v(X+i), v(V.W+i)))
                else: a('v_fma_f32 %s, 2.0, %s, -%s' % (v(X+i), v(X+i), v(V.W+i)))
            a('v_add_u32 %s, %d, %s' % (v(T+1), SCR_B, v(V.l16)))
            for i in range(8): a('ds_write_b128 %s, %s offset:%d' % (v(T+1), vr(X+4*i, 4), 1024*i))
        self.far(sSpec, 1, f)

    def addrs1(self):
        a = self.a; T = V.T
        a('v_lshrrev_b32 %s, 3, %s' % (v(T), v(V.lane)))
        a('v_and_b32 %s, 0x30, %s' % (v(T+1), v(V.l16)))
        a('v_lshl_add_u32 %s, %s, 6, %s' % (v(T), v(T), v(T+1)))
        a('v_and_b32 %s, 4, %s' % (v(T+1), v(V.lane)))
        a('v_lshl_add_u32 %s, %s, 1, %s' % (v(V.TR), v(T+1), v(T)))
        a('v_xor_b32 %s, %s, %s' % (v(T), sSB, v(V.lane)))
        a('v_and_b32 %s, 1, %s' % (v(T), v(T)))
        a('v_mul_u32_u24 %s, 16448, %s' % (v(T), v(T)))
        a('v_lshl_add_u32 %s, %s, 12, %s' % (v(T), v(V.g), v(T)))
        a('v_lshl_add_u32 %s, %s, 2, %s' % (v(T), v(T+1), v(T)))
        a('v_and_b32 %s, 0x60, %s' % (v(T+1), v(V.TR)))
        a('s_lshr_b32 %s, %s, 1' % (sWp, sW)); a('s_and_b32 %s, %s, 1' % (sA, sW))
        a('s_lshl2_add_u32 %s, %s, %s' % (sWp, sA, sWp)); a('s_lshl_b32 %s, %s, 7' % (sWp, sWp))
        a('v_add3_u32 %s, %s, %s, %s' % (v(V.X0w), v(T), v(T+1), sWp))
        a('s_lshl_b32 %s, %s, 10' % (sA, sW))
        a('s_sub_u32 %s, 0x4000, %s' % (sB, sA))
        a('s_cmp_eq_u32 %s, 0' % sW); a('s_cselect_b32 %s, 0x2000, %s' % (sB, sB))
        a('v_add_u32 %s, %s, %s' % (v(V.X0r0), sA, v(V.TR)))
        a('v_add_u32 %s, %s, %s' % (v(V.X0r1), sB, v(V.TR)))
    def addrs2(self):
        a = self.a; T = V.T
        a('v_lshlrev_b32 %s, 4, %s' % (v(T), v(V.n)))
        a('v_lshl_add_u32 %s, %s, 13, %s' % (v(T), v(V.g), v(T)))
        a('s_lshl_b32 %s, %s, 9' % (sA, sW)); a('s_add_u32 %s, %s, %d' % (sA, sA, R1))
        a('v_add_u32 %s, %s, %s' % (v(V.X1w), sA, v(T)))
        a('s_lshl_b32 %s, %s, 12' % (sA, sW)); a('s_add_u32 %s, %s, %d' % (sA, sA, R1))
        a('v_add_u32 %s, %s, %s' % (v(V.X1r), sA, v(V.TR)))
        a('v_and_b32 %s, 16, %s' % (v(T), v(V.l16)))
        a('v_and_b32 %s, 2, %s' % (v(T+1), v(V.lane)))
        a('v_bfe_u32 %s, %s, 2, 1' % (v(T+2), v(V.lane)))
        a('v_add_u32 %s, %s, %s' % (v(T+1), v(T+1), v(T+2)))
        a('v_mul_u32_u24 %s, 8224, %s' % (v(T+1), v(T+1)))
        a('v_bfe_u32 %s, %s, 3, 2' % (v(T+2), v(V.lane)))
        a('v_lshl_add_u32 %s, %s, 11, %s' % (v(T), v(T+2), v(T)))
        a('v_and_b32 %s, 32, %s' % (v(T+2), v(V.lane)))
        a('v_add3_u32 %s, %s, %s, %s' % (v(T), v(T), v(T+1), v(T+2)))
        a('v_add_u32 %s, %s, %s' % (v(V.X2w), sWp, v(T)))
        a('s_and_b32 %s, %s, 1' % (sA, sW)); a('s_lshr_b32 %s, %s, 2' % (sB, sW)); a('s_lshl1_add_u32 %s, %s, %s' % (sA, sB, sA)); a('s_lshl_b32 %s, %s, 11' % (sA, sA))
        a('s_and_b32 %s, %s, 2' % (sB, sW)); a('s_mul_i32 %s, %s, 8224' % (sB, sB)); a('s_add_u32 %s, %s, %s' % (sA, sA, sB))
        a('v_add_u32 %s, %s, %s' % (v(V.X2r), sA, v(V.TR)))
    def addrs3(self):
        a = self.a; T = V.T
        a('v_and_b32 %s, 16, %s' % (v(T), v(V.lane)))
        a('v_and_b32 %s, 33, %s' % (v(T+1), v(V.lane)))
        a('v_lshl_add_u32 %s, %s, 5, %s' % (v(T), v(T+1), v(T)))
        a('v_and_b32 %s, 8, %s' % (v(T+1), v(V.lane)))
        a('v_lshl_add_u32 %s, %s, 9, %s' % (v(T), v(T+1), v(T)))
        a('v_and_b32 %s, 2, %s' % (v(T+1), v(V.lane)))
        a('v_and_b32 %s, 4, %s' % (v(T+2), v(V.lane)))
        a('v_mul_u32_u24 %s, 4104, %s' % (v(T+1), v(T+1)))
        a('v_mul_u32_u24 %s, 4112, %s' % (v(T+2), v(T+2)))
        a('v_add3_u32 %s, %s, %s, %s' % (v(T), v(T), v(T+1), v(T+2)))
        a('s_sub_u32 %s, 16, %s' % (sC, sW))
        a('s_cmp_eq_u32 %s, 0' % sW); a('s_cselect_b32 %s, 8, %s' % (sC, sC))
        for kl, dst in ((sW, V.X3w0), (sC, V.X3w1)):
            a('s_lshr_b32 %s, %s, 2' % (sA, kl)); a('s_and_b32 %s, %s, 1' % (sB, kl)); a('s_lshl1_add_u32 %s, %s, %s' % (sA, sA, sB))
            a('s_and_b32 %s, %s, 2' % (sB, kl)); a('s_lshl2_add_u32 %s, %s, %s' % (sA, sB, sA))
            a('s_lshl_b32 %s, %s, 6' % (sA, sA)); a('s_add_u32 %s, %s, %d' % (sA, sA, R1))
            a('v_add_u32 %s, %s, %s' % (v(dst), sA, v(T)))
        a('s_and_b32 %s, %s, 1' % (sA, sW)); a('s_mul_i32 %s, %s, 8208' % (sA, sA))
        a('s_and_b32 %s, %s, 2' % (sB, sW)); a('s_mul_i32 %s, %s, 8224' % (sB, sB)); a('s_add_u32 %s, %s, %s' % (sA, sA, sB))
        a('s_and_b32 %s, %s, 4' % (sB, sW)); a('s_lshl_b32 %s, %s, 10' % (sB, sB)); a('s_add_u32 %s, %s, %s' % (sA, sA, sB))
        a('s_add_u32 %s, %s, %d' % (sA, sA, R1))
        a('v_add_u32 %s, %s, %s' % (v(V.X3r), sA, v(V.TR)))
        a('v_and_b32 %s, 0x70, %s' % (v(T), v(V.l16)))
        a('v_lshlrev_b32 %s, 1, %s' % (v(V.Ooff), v(V.Xoff)))
        a('v_sub_u32 %s, %s, %s' % (v(V.Ooff), v(V.Ooff), v(T)))

    def mf16(self, d, A, B): return 'v_mfma_f32_16x16x32_bf16 %s, %s, %s, 0' % (vr(d, 4), vr(A, 4), vr(B, 4))
    def cvt(self, d, lo, hi): return 'v_cvt_pk_bf16_f32 %s, %s, %s' % (v(d), v(lo), v(hi))
    def mf32(self, d, i, pl, dataA):
        M = vr(V.F32+16*pl+4*i, 4); X = vr(V.O+4*i, 4)
        A, B = (X, M) if dataA else (M, X)
        D = vr(d+16*pl, 16)
        return 'v_mfma_f32_32x32x16_bf16 %s, %s, %s, %s' % (D, A, B, D if i else '0')
    def emit(self, L):
        for x in L: self.a(x)

    def p1(self):
        a = self.a; O, L, D, P = V.O, V.L, V.DA, V.DB
        for r in range(4):
            a('s_waitcnt vmcnt(%d)' % (3-r))
            if r == 3:
                self.stamp()
                if self.o['spos'] == 'mid': self.cond(sW, PW, self.side_load)
            for t in range(4): a('v_mov_b32 %s, %s' % (v(O+4*t+r), v(L+4*r+t)))
        for t in range(4):
            a(self.mf16(D+4*t, V.F16, O+4*t)); a(self.mf16(D+16+4*t, V.F16+4, O+4*t))
        if self.o['spos'] == 'late': self.cond(sW, PW, self.side_load)
        def sp():
            self.srds()
            a('s_mov_b32 %s, 0' % sDP); a('s_mov_b32 %s, %d' % (sDM, 1024*1026)); a('s_mov_b32 %s, %d' % (sWL, WL))
            self.w_dma()
        a('s_or_b32 %s, %s, %s' % (sA, sT, sW))
        self.far(sA, 0, sp)
        for r in range(4):
            a(self.cvt(P+4*r, D+r, D+4+r)); a(self.cvt(P+4*r+2, D+16+r, D+20+r))
        for r in range(4):
            a(self.cvt(P+4*r+1, D+8+r, D+12+r)); a(self.cvt(P+4*r+3, D+24+r, D+28+r))
            a('ds_write_b128 %s, %s offset:%d' % (v(V.X0w), vr(P+4*r, 4), 1024*r))
        self.mark('g1a')
        self.side_wait()
        self.mark('g1b')
        a('s_waitcnt lgkmcnt(0)')
        a('s_barrier')
        for ti in range(4):
            for ii in range(2):
                a('ds_read_b64_tr_b16 %s, %s offset:%d' % (vr(O+4*ti+2*ii, 2), v(V.X0r1 if ti >> 1 else V.X0r0), (ti & 1)*16448+ii*512))
        a('ds_read_b32 %s, %s' % (v(V.tmp), v(V.cnt)))
        for ti in range(4):
            a('s_waitcnt lgkmcnt(%d)' % (7-2*ti))
            a(self.mf16(D+4*ti, V.M2+8*(ti >> 1), O+4*ti)); a(self.mf16(D+16+4*ti, V.M2+8*(ti >> 1)+4, O+4*ti))
        a('s_waitcnt lgkmcnt(0)')
        self.side_use()
        for r in range(4): a('s_add_u32 %s, %s, 0x%x' % (sO[r], sEst, WS_U[0] + r*65536))
        st = lambda i: a('buffer_store_dwordx4 %s, %s, %s, %s offen %s' % (vr(P+4*i, 4), v(V.Est), SWS, sO[i], self.o['st1']))
        def normal():
            for i in range(4):
                for k in range(4): a(self.cvt(P+4*i+2*(k & 1)+(k >> 1), D+4*k+i, D+16+4*k+i))
                st(i)
        def w0():
            for i in range(4):
                ts, eb = i >> 1, i & 1
                for tau in range(2):
                    for sg in range(2):
                        x = 4*(2*ts+tau)+2*eb+sg
                        a(self.cvt(P+4*i+2*tau+sg, D+x, D+16+x))
                st(i)
        self.ifelse(sW, 0, w0, normal)

    def stage(self, src, dst, dataA, kind, prio, pre=None):
        a = self.a; T = V.T
        if self.o['prio']: a('s_setprio %d' % prio)
        G = []
        for i in range(4):
            g = []
            if kind == 'tw':
                for st in range(3):
                    for r in range(4):
                        rho = 4*i+r; x, y = v(src+rho), v(src+16+rho)
                        g.append('v_fmac_f32 %s, %s, %s' % ((y, v(V.TW+16+rho), x) if st == 1 else (x, v(V.TW+rho), y)))
                for r in range(4): g.append(self.cvt(V.O+4*i+r, src+4*i+r, src+16+4*i+r))
            else:
                t = T+4*(i & 1)
                for r in range(4):
                    rho = 4*i+r
                    g.append('v_mul_f32 %s, %s, %s' % (v(t+r), v(src+rho), v(V.W+rho)))
                for r in range(4):
                    rho = 4*i+r
                    if rho < 8: g.append('v_fma_f32 %s, -%s, %s, %s' % (v(t+r), v(src+16+rho), v(V.W+16+rho), v(t+r)))
                    else: g.append('v_fmac_f32 %s, %s, %s' % (v(t+r), v(src+16+rho), v(V.W+16+rho)))
                for r in range(4):
                    rho = 4*i+r
                    g.append('v_mul_f32 %s, %s, %s' % (v(src+16+rho), v(src+16+rho), v(V.W+rho)))
                for r in range(4):
                    rho = 4*i+r
                    if rho < 8: g.append('v_fmac_f32 %s, %s, %s' % (v(src+16+rho), v(src+rho), v(V.W+16+rho)))
                    else: g.append('v_fma_f32 %s, -%s, %s, %s' % (v(src+16+rho), v(src+rho), v(V.W+16+rho), v(src+16+rho)))
                for r in range(4): g.append(self.cvt(V.O+4*i+r, src+16+4*i+r, t+r))
            G.append(g)
        W = [[self.w_read1(4*i+r, im) for im in range(2) for r in range(4)] for i in range(4)] if kind == 'w' else None
        if kind == 'w':
            a('s_waitcnt vmcnt(2)')
            self.emit(W[0]); self.emit(W[1])
        for i in range(4):
            g = list(G[i]); n = len(g)
            ins = {}
            if i:
                ins.setdefault(2, []).append(self.mf32(dst, i-1, 0, dataA))
                ins.setdefault(2+n//2, []).append(self.mf32(dst, i-1, 1, dataA))
            if kind == 'w':
                a('s_waitcnt lgkmcnt(%d)' % (8 if i < 3 else 0))
                if i in (0, 2): self.emit(self.w_fix(i >> 1))
                if i < 2:
                    if i == 0: ins.setdefault(3, []).append('s_waitcnt vmcnt(0)')
                    for k, x in enumerate(W[i+2]): ins.setdefault(3+2*k, []).append(x)
            for k, x in enumerate(g):
                self.emit(ins.get(k, []))
                a(x)
        a(self.mf32(dst, 3, 0, dataA)); a(self.mf32(dst, 3, 1, dataA))

    def p2(self):
        a = self.a; O, L, D, T = V.O, V.L, V.DA, V.T
        na = self.p2na
        for cbb in range(2):
            b = L+12*cbb
            a('s_waitcnt vmcnt(%d)' % (na+3-2*cbb))
            a('v_mov_b32 %s, %s' % (v(b+8), v(b))); a('v_mov_b32 %s, %s' % (v(b+9), v(b+1)))
            a('s_waitcnt vmcnt(%d)' % (na+2-2*cbb))
            if cbb: self.stamp(); self.mark('f0')
            for jj2 in (1, 0):
                ti = 2*cbb+jj2; op = b+2 if jj2 else b+6; mo = 0 if jj2 else 2
                a(self.mf16(D+4*ti, V.B+mo, op)); a(self.mf16(D+16+4*ti, V.B+6+mo, op))
        for cbb in range(2):
            for k1b in range(2):
                P = O+4*(2*cbb+k1b)
                for jj2 in (1, 0):
                    for pl in range(2):
                        x = D+16*pl+4*(2*cbb+jj2)+2*k1b
                        a(self.cvt(P+2*pl+jj2, x, x+1))
                a('ds_write_b128 %s, %s offset:%d' % (v(V.X1w), vr(P, 4), k1b*4096+cbb*256))
        self.mark('f1')
        a('s_waitcnt lgkmcnt(0)')
        self.mark('f2', True)
        a('s_barrier')
        self.mark('x1', True)
        if self.o['prio']: a('s_setprio 3')
        for i in range(4):
            for ii in range(2):
                a('ds_read_b64_tr_b16 %s, %s offset:%d' % (vr(O+4*i+2*ii, 2), v(V.X1r), ii*1024+(i & 1)*512+(i >> 1)*2048))
        rows = {'postX1': (0, 1, 2, 3), 'barh': (2, 3), 'bar': ()}[self.o['wpos']]
        for i in range(4):
            if i < len(rows): self.w_dma1(rows[i])
            a('s_waitcnt lgkmcnt(%d)' % (6-2*i))
            a(self.mf32(V.DA, i, 0, True)); a(self.mf32(V.DA, i, 1, True))
        self.mark('f3')
        self.stage(V.DA, V.DB, False, 'tw', 2)
        self.mark('f4', True)
        self.far(sSpec, 1, self.pw_special, lambda: self.stage(V.DB, V.DA, True, 'w', 1))
        self.mark('f5')
        self.stage(V.DA, V.DB, True, 'tw', 0)
        self.mark('f6')
        D = V.DB
        for r in range(4): a('s_add_u32 %s, %s, 0x%x' % (sO[r], sEst, WS_U[1] + r*65536))
        rho = lambda jj3, jj1, jj2, c: 4*(2*jj3+jj1)+2*jj2+c
        for pl in range(2):
            for k in range(4):
                c, jj1 = k >> 1, k & 1
                P = V.DA+4*k
                for jj3 in range(2):
                    a(self.cvt(P+2*pl+jj3, D+16*pl+rho(jj3, jj1, 0, c), D+16*pl+rho(jj3, jj1, 1, c)))
                if pl: a('ds_write_b128 %s, %s offset:%d' % (v(V.X2w), vr(P, 4), c*64+jj1*1024))
        self.mark('f7'); self.mark('x2')
        a('s_waitcnt lgkmcnt(0)')
        self.mark('f8', True)
        a('s_barrier')
        for ti in range(4):
            for ii in range(2):
                a('ds_read_b64_tr_b16 %s, %s offset:%d' % (vr(O+4*ti+2*ii, 2), v(V.X2r), ii*512+(ti & 1)*1024+(ti >> 1)*8224))
        D = V.DA; P = V.DB
        for ti in range(4):
            a('s_waitcnt lgkmcnt(%d)' % (6-2*ti))
            a(self.mf16(D+4*ti, V.Bp, O+4*ti)); a(self.mf16(D+16+4*ti, V.Bp+4, O+4*ti))
        self.mark('f9')
        for q in range(4):
            cbb, sbb = q >> 1, q & 1
            for jj1 in range(2):
                for hf in range(2):
                    x = 4*(2*cbb+jj1)+2*sbb+hf
                    a(self.cvt(P+4*q+2*jj1+hf, D+x, D+16+x))
            a('buffer_store_dwordx4 %s, %s, %s, %s offen %s' % (vr(P+4*q, 4), v(V.Est), SWS, sO[q], self.o['st2']))
        self.mark('f10')

    def pw_special(self):
        a = self.a; T = V.T; O = V.O; C = V.DB; X = V.DA
        self.sigma_lane(T)
        a('v_lshrrev_b32 %s, 5, %s' % (v(T+1), v(V.lane)))
        a('v_lshlrev_b32 %s, 9, %s' % (v(T+1), v(T+1)))
        a('v_lshl_add_u32 %s, %s, 2, %s' % (v(T+2), v(T), v(T+1)))
        a('v_add_u32 %s, %d, %s' % (v(T+2), SCR, v(T+2)))
        a('v_add_u32 %s, 128, %s' % (v(T+3), v(T+2)))
        a('v_sub_u32 %s, 32, %s' % (v(T+4), v(T)))
        a('v_lshrrev_b32 %s, 5, %s' % (v(T+5), v(T+4)))
        a('v_and_b32 %s, 31, %s' % (v(T+4), v(T+4)))
        a('v_lshlrev_b32 %s, 2, %s' % (v(T+4), v(T+4)))
        a('v_lshl_add_u32 %s, %s, 8, %s' % (v(T+4), v(T+5), v(T+4)))
        a('v_sub_u32 %s, %s, %s' % (v(T+4), v(T+4), v(T+1)))
        a('v_add_u32 %s, %d, %s' % (v(T+4), SCR + 2*256, v(T+4)))
        a('v_add_u32 %s, 128, %s' % (v(T+5), v(T+4)))
        a('v_add_u32 %s, %d, %s' % (v(T+6), SCR_B, v(V.l16)))
        qs = lambda rho: sigma(8*(rho >> 2) + (rho & 3))
        for pl in range(2):
            for rho in range(0, 16, 2):
                a('ds_write2st64_b32 %s, %s, %s offset0:%d offset1:%d' % (v(T+2+pl), v(C+16*pl+rho), v(C+16*pl+rho+1), qs(rho), qs(rho+1)))
            a('ds_write_b32 %s, %s offset:%d' % (v(T+2+pl), v(C+16*pl), 32*256))
        t0, t1 = v(T+8), v(T+9)
        for half in range(2):
            for pl in range(2):
                for k in range(0, 8, 2):
                    r_ = 8*half+k
                    a('ds_read2st64_b32 %s, %s offset0:%d offset1:%d' % (vr(X+8*pl+k, 2), v(T+4+pl), 29-qs(r_), 29-qs(r_+1)))
                for k in range(2):
                    a('ds_read_b128 %s, %s offset:%d' % (vr(X+16+8*pl+4*k, 4), v(T+6), 1024*(4*pl+2*half+k)))
            a('s_waitcnt lgkmcnt(0)')
            for k in range(8):
                r_ = 8*half+k
                x, y = v(C+r_), v(C+16+r_); ar, ai = v(V.W+r_), v(V.W+16+r_)
                p, q_ = v(X+k), v(X+8+k); br, bi = v(X+16+k), v(X+24+k)
                ng, ps = ('', '-') if half else ('-', '')
                a('v_mul_f32 %s, %s, %s' % (t0, x, ar))
                a('v_mul_f32 %s, %s, %s' % (t1, y, ar))
                a('v_fma_f32 %s, %s%s, %s, %s' % (t0, ng, y, ai, t0))
                a('v_fma_f32 %s, %s%s, %s, %s' % (t1, ps, x, ai, t1))
                a('v_fmac_f32 %s, %s, %s' % (t0, p, br))
                a('v_fma_f32 %s, -%s, %s, %s' % (t1, q_, br, t1))
                a('v_fma_f32 %s, %s%s, %s, %s' % (t0, ps, q_, bi, t0))
                a('v_fma_f32 %s, %s%s, %s, %s' % (t1, ps, p, bi, t1))
                a(self.cvt(O+r_, T+9, T+8))
        for i in range(4): a(self.mf32(V.DA, i, 0, True)); a(self.mf32(V.DA, i, 1, True))

    def p3(self):
        a = self.a; O, L, D, P = V.O, V.L, V.DA, V.DB
        a('s_lshl4_add_u32 %s, %s, %s' % (sA, sW, sSB)); a('s_lshl1_add_u32 %s, %s, %s' % (sA, sA, sP))
        a('s_lshl4_add_u32 %s, %s, %s' % (sA, sA, sCB)); a('s_lshl_b32 %s, %s, 7' % (sO[0], sA))
        for r in range(1, 4): a('s_add_u32 %s, %s, 0x%x' % (sO[r], sO[0], r*524288))
        def normal():
            for i in range(4):
                a('s_waitcnt vmcnt(%d)' % (3-i))
                for sel in range(2):
                    for col in range(2): a('v_mov_b32 %s, %s' % (v(O+4*(2*sel+col)+i), v(L+4*i+2*col+sel)))
        def w0():
            for i in range(4):
                ts, eb = i >> 1, i & 1
                a('s_waitcnt vmcnt(%d)' % (3-i))
                for col in range(2):
                    for sg in range(2): a('v_mov_b32 %s, %s' % (v(O+4*(2*ts+col)+2*eb+sg), v(L+4*i+2*col+sg)))
        self.ifelse(sW, 0, w0, normal, True)
        self.stamp()
        for ti in range(4):
            a(self.mf16(D+4*ti, O+4*ti, V.M2+8*(ti >> 1))); a(self.mf16(D+16+4*ti, O+4*ti, V.M2+8*(ti >> 1)+4))
        for ti in range(4):
            for pl in range(2):
                for k in range(2):
                    x = D+16*pl+4*ti+2*k
                    a(self.cvt(P+4*ti+2*pl+k, x, x+1))
            a('ds_write_b128 %s, %s offset:%d' % (v(V.X3w1 if ti >> 1 else V.X3w0), vr(P+4*ti, 4), (ti & 1)*2048))
        a('s_waitcnt lgkmcnt(0)')
        a('s_barrier')
        for t in range(4):
            for ii in range(2):
                a('ds_read_b64_tr_b16 %s, %s offset:%d' % (vr(O+4*t+2*ii, 2), v(V.X3r), ii*512+t*1024))
        for t in range(4):
            a('s_waitcnt lgkmcnt(%d)' % (6-2*t))
            a(self.mf16(D+4*t, V.F16, O+4*t)); a(self.mf16(D+16+4*t, V.F16+4, O+4*t))
        for t in range(2):
            for r in range(4): a(self.cvt(P+4*r+t, D+16+4*t+r, D+4*t+r))
        for r in range(4):
            for t in (2, 3): a(self.cvt(P+4*r+t, D+16+4*t+r, D+4*t+r))
            a('buffer_store_dwordx4 %s, %s, %s, %s offen %s' % (vr(P+4*r, 4), v(V.Ooff), SOUT, sO[r], self.o['sto']))

    def ex_load(self, ex):
        a = self.a
        a('s_add_u32 %s, %s, 0x%x' % (sA, sEld, WS_U[ex]))
        for q in range(4):
            d = V.L+12*(q >> 1)+4*(q & 1) if ex == 0 else V.L+4*q
            a('buffer_load_dwordx4 %s, %s, %s, %s offen offset:%d %s' % (vr(d, 4), v(V.Eld), SWS, sA, 256*q, self.o['ld1' if ex == 0 else 'ld2']))

    def build(self):
        a = self.a; o = self.o
        name = NAME + '_kernel'
        a.raw('.globl %s\n.p2align 12\n.p2align 8\n.type %s,@function\n%s:' % (name, name, name))
        end = self.label('end')
        self.prologue(end)
        def others():
            if o.get('kfirst'): a('s_waitcnt lgkmcnt(0)'); self.mark('karg0')
            self.touch(0)
            self.mark('touched')
            a('s_waitcnt lgkmcnt(0)')
            self.mark('karg')
            l = self.label('hold')
            a('s_cmp_lt_u32 %s, 8' % sCh); a('s_cbranch_scc1 %s' % l)
            self.x_issue()
            if o['pre']: self.cond(sW, PW, lambda: a('s_load_dword s95, s[20:21], 0x80'))
            a(l+':')
        self.ifelse(sCh, 0, self.probe, others, True)
        self.srds0(); self.addrs1()
        l = self.label('held')
        a('s_sub_u32 %s, %s, 1' % (sA, sCh)); a('s_cmp_ge_u32 %s, 7' % sA); a('s_cbranch_scc1 %s' % l)
        self.x_issue()
        a(l+':')
        self.gen_F16()
        self.clear_done()
        self.gen_M2(); self.ex_addrs()
        if o['touch']: self.cond(sT, 0, lambda: self.touch(1))
        if o['spos'] == 'early': self.cond(sW, PW, self.side_load)
        self.mark('w1')
        self.p1()
        self.stamp()
        if not o['merge']: a('s_load_dword %s, s[20:21], 0x0' % sRv)
        self.flag_addrs(); self.side_apply(); self.srds(); self.calc_k0()
        a('s_mov_b32 %s, 1' % sInc)
        self.coop_gen(); self.coop_post()
        a('s_waitcnt vmcnt(0)' if o['merge'] else 's_waitcnt vmcnt(0) lgkmcnt(0)')
        self.stamp()
        if not o['merge']: self.ready_check()
        self.arrive()
        self.poll(0, lambda: (self.w_edge_load(), self.gen_B(), self.w_special()))
        self.stamp()
        self.ex_load(0)
        self.p2na = 0
        if o['wpos'] in ('bar', 'barh'):
            a('s_barrier'); self.p2na = 4 if o['wpos'] == 'bar' else 2
            for i in range(self.p2na): self.w_dma1(i)
        else: self.coop_wait()
        self.coop_read(); self.addrs2()
        a('s_waitcnt vmcnt(%d)' % (4+self.p2na))
        self.w_edge()
        a('s_mov_b32 %s, 0x10000' % sInc)
        if o.get('da') == 'glob': self.cond(sId, 0, lambda: a('s_atomic_swap s56, s[20:21], 0x40'))
        self.p2()
        self.stamp()
        self.gen_M3()
        self.mark('w3a')
        a('s_waitcnt vmcnt(0)')
        self.stamp()
        self.arrive()
        self.poll(1, self.addrs3)
        if o['ts']: a('s_mov_b32 s%d, %s' % (sTS+26, sCnt))
        self.stamp()
        self.ex_load(1)
        self.p3()
        self.diag_end()
        a(end+':'); a('s_endpgm')
        t, self.tail = self.tail, []
        for f in t: f()
        if o['touch']: self.insert_stubs()
        hdr = ('; GFNet spectral filter, two heads: 2-D FFT as bf16 MFMA DFT stages in one persistent launch (generated)\n'
               '; @launch grid=(256,1,1) block=(512,1,1) lds=%d\n' % LDS_TOTAL)
        kd = '''.section .rodata,"a"
.p2align 6
.amdhsa_kernel %s
  .amdhsa_next_free_vgpr %d
  .amdhsa_next_free_sgpr 102
  .amdhsa_accum_offset %d
  .amdhsa_group_segment_fixed_size 0
  .amdhsa_kernarg_size 72
  .amdhsa_user_sgpr_count 2
  .amdhsa_user_sgpr_kernarg_segment_ptr 1
  .amdhsa_system_sgpr_workgroup_id_x 1
.end_amdhsa_kernel
''' % (name, NVGPR, (NVGPR+3)//4*4)
        return hdr + '.amdgcn_target "amdgcn-amd-amdhsa--gfx950"\n.text\n' + a.text() + kd

    def insert_stubs(self):
        a = self.a
        txt = '.amdgcn_target "amdgcn-amd-amdhsa--gfx950"\n.text\n' + a.text() + ''.join('stub_%d:\n' % k for k in range(16)) + 's_endpgm\n'
        open('pass1.s', 'w').write(txt)
        subprocess.check_call(['clang', '-x', 'assembler', '-target', 'amdgcn-amd-amdhsa', '-mcpu=gfx950', '-c', 'pass1.s', '-o', 'pass1.o'])
        dis = subprocess.check_output(['llvm-objdump', '-d', '--mcpu=gfx950', 'pass1.o']).decode()
        addrs = [int(m.group(1), 16) for m in re.finditer(r'// ([0-9A-F]{12}):', dis)]
        real = [i for i, x in enumerate(a.ins) if x.kind != 'none']
        assert len(addrs) == len(real) + 1, (len(addrs), len(real))
        size = {real[k]: addrs[k+1] - addrs[k] for k in range(len(real))}
        pos = ENTRY_OFF; nxt = 2048
        out = []; k = 0; prev = None; ez = False
        for i, x in enumerate(a.ins):
            if i in size:
                if prev is not None and prev.text.strip() == 's_mov_b64 exec, 0': ez = True
                if prev is not None and prev.text.strip() == 's_mov_b64 exec, -1': ez = False
                if pos >= nxt and k < 16 and not ez:
                    out.append(Ins('stub_%d:' % k)); out.append(Ins('s_cbranch_execz ret_%d' % (k >> 3)))
                    pos += 4; k += 1; nxt += 1024
                pos += size[i]; prev = x
                if x.op == 's_endpgm': self.hot_end = pos
            out.append(x)
        self.code_end = pos
        while k < 16:
            out.append(Ins('stub_%d:' % k)); out.append(Ins('s_branch ret_%d' % (k >> 3))); k += 1
        a.ins = out

if __name__ == '__main__':
    out = sys.argv[1]; opt = {}
    for kv in sys.argv[2:]:
        k, x = kv.split('=')
        opt[k] = {'True': True, 'False': False}.get(x, x.replace('+', ' '))
    g = Gen(**opt)
    s = g.build()
    assert g.a.verify() == 0
    open(out, 'w').write(s)
    print(out, 'vgprs', NVGPR, 'lds', LDS_TOTAL, 'nops', g.a.nops, 'lines', len(g.a.ins), 'hot end 0x%x code end 0x%x' % (getattr(g, 'hot_end', 0), getattr(g, 'code_end', 0)))
```

```python
import sys, struct, math, subprocess, re
from asmlib import Asm, Ins

NAME = 'concat_heads__spectral_gfnet__spectral_gfnet__prompt'
def f2u(x): return struct.unpack('<I', struct.pack('<f', x))[0]
def lit(x): return '0x%08x' % f2u(x)
def sigma(m): return (m & 1) | ((m >> 1) & 1) << 3 | ((m >> 2) & 1) << 1 | ((m >> 3) & 1) << 2 | (m & 16)

SC = 2.0**-22
SPIN_MAX = 0x4000
ENTRY_OFF = 0x300
PW = int([x for x in sys.argv if x.startswith('pw=')][0][3:]) if any(x.startswith('pw=') for x in sys.argv) else 1
R0 = 0
R1 = 33024
WL = 66048
SCR = WL + 8*4*1056
SCR_B = SCR + 36*256
TABL = SCR_B + 8192
CNT = TABL + 16384
LDS_TOTAL = CNT + 64
WS_U = (0, 8 << 20)
WS_FLAG = 16 << 20
WS_PROBE = 17 << 20
WS_TS = 72 << 20
class V: pass
_n = [0]
def alloc(n, align=1):
    b = (_n[0] + align - 1)//align*align
    _n[0] = b + n
    return b
V.tid = alloc(1); V.lane = alloc(1)
for nm in 'g n l16 TR Xoff Est Eld X0w X0r0 X0r1 X1w X1r X2w X2r WP WM zero cnt tmp'.split(): setattr(V, nm, alloc(1))
V.Ooff, V.X3w0, V.X3w1, V.X3r = V.Xoff, V.X0w, V.X0r0, V.X0r1
V.T = alloc(10)
V.O = alloc(16, 4)
V.DA = alloc(32, 4); V.DB = alloc(32, 4); V.L = V.DB
V.F16 = alloc(8, 4); V.M2 = alloc(16, 4)
V.F32 = alloc(32, 4); V.TW = alloc(32, 4); V.W = alloc(32, 4)
V.B = alloc(12, 4); V.Bp = alloc(8, 4); V.WF = alloc(4)
NVGPR = _n[0]
assert NVGPR <= 256, NVGPR
def v(i): return 'v%d' % i
def vr(i, n): return 'v[%d:%d]' % (i, i+n-1)
SX, SWR, SWI, SOUT, SDBG, SWS = 's[4:7]', 's[8:11]', 's[12:15]', 's[16:19]', 's[20:23]', 's[24:27]'
sP, sT, sW, sSB, sCB, sK0, sKP, sKM, sWp, sRv = ['s%d' % i for i in range(30, 40)]
sA, sB, sC, sD, sE, sF, sEst, sEld, sCnt, sSpec, sInc, sWL = ['s%d' % i for i in range(40, 52)]
sO = ['s52', 's53', 's54', 's55']
sTS = 56
sDP, sDM, sZ, sCh, sId = 's96', 's97', 's98', 's99', 's100'

class Gen:
    def __init__(self, **opt):
        self.o = dict(ldx='', ldw='', st1='sc1', st2='sc1', sto='nt', ld1='sc1', ld2='sc1', ts=False,
                      prio=True, nb='4', pnop='15', force='', wpos='postX1', touch=True, w1n='9', spos='early', qw='1', qg='1', zg='3', xm='2', pb='17', wsoff='0', pld='', pex='1', merge=True, full=False, pre=True, split=False, map='2', rep='1', slp='', sthr='')
        self.o.update(opt)
        self.a = Asm(); self.lab = 0; self.nts = 0; self.sid = -1; self.tail = []
    def label(self, p='L'):
        self.lab += 1
        return '%s_%d' % (p, self.lab)

    def mark(self, nm, drain=False):
        o = self.o; hit = False
        if o.get('clk') and nm in ('w1', 'g1a', 'x1', 'x2', 'w3a', 'end'):
            for op in ('s_memrealtime', 's_memtime'):
                self.a('%s s[%d:%d]' % (op, sTS+2*self.nts, sTS+2*self.nts+1)); self.nts += 1
            self.a('s_waitcnt lgkmcnt(0)')
        if o.get('fine') and nm[0] == 'f':
            self.a('s_memtime s[%d:%d]' % (sTS+2*self.nts, sTS+2*self.nts+1)); self.nts += 1; hit = True
        for key, reg in (('da', 58), ('db', 60)):
            if o.get(key) == nm:
                self.a('%s s[%d:%d]' % ('s_memtime' if 'cyc' in o else 's_memrealtime', reg, reg+1)); hit = True
        if hit and drain: self.a('s_waitcnt lgkmcnt(0)')
    def stamp(self):
        self.sid += 1
        self.mark('s%d' % self.sid)
        if not self.o['ts'] or self.o.get('clk') or self.o.get('fine'): return
        self.a('s_memrealtime s[%d:%d]' % (sTS+2*self.nts, sTS+2*self.nts+1)); self.nts += 1
    def diag_end(self):
        a = self.a; o = self.o
        self.mark('end')
        if not (o['ts'] or 'da' in o): return
        self.stamp(); a('s_waitcnt vmcnt(0)'); self.stamp()
        a('s_waitcnt lgkmcnt(0)')
        if 'da' in o:
            lp = self.label('dg')
            if o['da'] == 'glob':
                a('buffer_load_dword %s, %s, %s, 0 offen offset:64 sc1' % (v(V.tmp), v(V.zero), SDBG))
                a('s_waitcnt vmcnt(0)')
                a('v_readfirstlane_b32 s58, %s' % v(V.tmp)); a('s_mov_b32 s56, s58')
            a('s_sub_u32 %s, s60, s58' % sA)
            if 'db0' in o: a('s_add_u32 %s, %s, 250' % (sA, sA)); a('s_lshl_b32 %s, %s, 1' % (sA, sA))
            a('s_lshr_b32 %s, %s, 2' % (sA, sA) if 'cyc' in o else 's_lshl_b32 %s, %s, 2' % (sA, sA))
            for key, reg in (('dp', sP), ('dt', sT), ('db0', sId)):
                if key in o: a('s_cmp_eq_u32 %s, %s' % (reg, o[key])); a('s_cselect_b32 %s, %s, 0' % (sA, sA))
            a('s_min_u32 %s, %s, 9000' % (sA, sA))
            if 'enc' in o:
                a('s_and_b32 %s, s62, 7' % sB); a('s_mul_i32 %s, %s, 10000' % (sB, sB)); a('s_add_u32 %s, %s, %s' % (sA, sA, sB))
                a('s_bfe_u32 %s, s62, 0x30008' % sB); a('s_mul_i32 %s, %s, 100000' % (sB, sB)); a('s_add_u32 %s, %s, %s' % (sA, sA, sB))
            a('s_add_u32 %s, %s, 3000' % (sA, sA))
            a(lp+':')
            a('s_memrealtime s[28:29]'); a('s_waitcnt lgkmcnt(0)')
            a('s_sub_u32 %s, s28, s56' % sB); a('s_cmp_lt_u32 %s, %s' % (sB, sA)); a('s_cbranch_scc1 %s' % lp)
            return
        a('s_lshl_b32 %s, %s, 7' % (sA, sId)); a('s_add_u32 %s, %s, 0x%x' % (sA, sA, WS_TS))
        a('s_mov_b64 exec, 1')
        for i in range(14):
            a('v_mov_b32 %s, s%d' % (v(V.T), sTS+2*i))
            a('buffer_store_dword %s, %s, %s, %s offen offset:%d' % (v(V.T), v(V.zero), SWS, sA, 4*i))
            a('s_nop 1')

    def cond(self, reg, val, f):
        a = self.a; l = self.label('c')
        a('s_cmp_lg_u32 %s, %d' % (reg, val)); a('s_cbranch_scc1 %s' % l)
        f(); a(l+':')
    def ifelse(self, reg, val, feq, fne, eq_first=False):
        a = self.a; l0, l1 = self.label('ie'), self.label('iend')
        if eq_first:
            a('s_cmp_lg_u32 %s, %d' % (reg, val)); a('s_cbranch_scc1 %s' % l0)
            feq(); a('s_branch %s' % l1); a(l0+':'); fne()
        else:
            a('s_cmp_eq_u32 %s, %d' % (reg, val)); a('s_cbranch_scc1 %s' % l0)
            fne(); a('s_branch %s' % l1); a(l0+':'); feq()
        a(l1+':')
    def far(self, reg, val, feq, fne=None):
        a = self.a; l0, l1 = self.label('far'), self.label('back')
        a('s_cmp_eq_u32 %s, %d' % (reg, val)); a('s_cbranch_scc1 %s' % l0)
        if fne: fne()
        a(l1+':')
        def t():
            a(l0+':'); feq(); a('s_branch %s' % l1)
        self.tail.append(t)
    def touch(self, rnd, half=False):
        a = self.a
        a('s_mov_b64 exec, 0')
        if half:
            for k in range(3):
                a('s_cmp_eq_u32 %s, %d' % (sW, 4+k)); a('s_cbranch_scc1 stub_%d' % (2*k))
            a('s_branch stub_6')
        else:
            for k in range(7):
                a('s_cmp_eq_u32 %s, %d' % (sW, k)); a('s_cbranch_scc1 stub_%d' % (8*rnd+k))
            a('s_branch stub_%d' % (8*rnd+7))
        a('ret_%d:' % rnd)
        a('s_mov_b64 exec, -1')

    def prologue(self, end):
        a = self.a; T = V.T
        a('s_cmp_ge_u32 s2, 0x100')
        a('s_cbranch_scc1 %s' % end)
        if 'da' in self.o: a('s_memrealtime s[56:57]'); self.mark('start')
        a('s_bfe_u32 %s, s2, 0x10002' % sP)
        a('s_mul_i32 s3, %s, 24' % sP)
        a('s_load_dwordx2 s[4:5], s[0:1], s3')
        a('s_load_dwordx2 s[24:25], s[0:1], 0x40')
        a('s_load_dwordx2 s[20:21], s[0:1], 0x38')
        a('s_load_dwordx2 s[8:9], s[0:1], s3 offset:8')
        a('s_load_dwordx2 s[12:13], s[0:1], s3 offset:16')
        a('s_load_dwordx2 s[16:17], s[0:1], 0x30')
        self.stamp()
        a('v_lshrrev_b32 %s, 6, v0' % v(T))
        a('v_and_b32 %s, 63, v0' % v(V.lane))
        a('v_readfirstlane_b32 %s, %s' % (sW, v(T)))
        mp = self.o['map']
        a('s_and_b32 %s, s2, 3' % sA)
        if int(self.o['xm']): a('s_xor_b32 %s, %s, %s' % (sA, sA, self.o['xm']))
        if mp in ('0', '1'):
            a('s_bfe_u32 %s, s2, 0x10003' % sB)
            if mp == '0': a('s_lshl1_add_u32 %s, %s, %s' % (sA, sA, sB))
            else: a('s_lshl2_add_u32 %s, %s, %s' % (sA, sB, sA))
            a('s_lshr_b32 %s, s2, 4' % sB)
            a('s_lshl4_add_u32 %s, %s, %s' % (sT, sA, sB))
        else:
            a('s_lshr_b32 %s, s2, 3' % sB)
            a('s_lshl2_add_u32 %s, %s, %s' % (sT, sB, sA))
            a('s_lshr_b32 %s, %s, 4' % (sA, sT)); a('s_and_b32 %s, %s, 15' % (sB, sT))
        a('s_bfe_u32 %s, %s, 0x10001' % (sC, sB))
        a('s_lshl1_add_u32 %s, %s, %s' % (sCB, sA, sC))
        a('s_lshr_b32 %s, %s, 2' % (sSB, sB))
        a('s_and_b32 %s, %s, 1' % (sC, sB))
        a('s_lshl1_add_u32 %s, %s, %s' % (sSB, sSB, sC))
        a('s_mov_b32 s6, 0x400000'); a('s_mov_b32 s7, 0x20000')
        a('v_lshrrev_b32 %s, 4, %s' % (v(V.g), v(V.lane)))
        a('v_lshlrev_b32 %s, 4, %s' % (v(V.l16), v(V.lane)))
        a('v_and_b32 %s, 8, v0' % v(T))
        a('v_lshlrev_b32 %s, 11, %s' % (v(T), v(T)))
        a('v_lshl_add_u32 %s, %s, 20, %s' % (v(T), v(V.g), v(T)))
        a('v_and_b32 %s, 0x70, %s' % (v(T+1), v(V.l16)))
        a('v_add_u32 %s, %s, %s' % (v(V.Xoff), v(T), v(T+1)))
        a('s_lshl4_add_u32 %s, %s, %s' % (sA, sW, sSB))
        a('s_lshl4_add_u32 %s, %s, %s' % (sA, sA, sCB))
        a('s_lshl_b32 %s, %s, 7' % (sO[0], sA))
        for r in range(1, 4): a('s_add_u32 %s, %s, 0x%x' % (sO[r], sO[0], r*262144))
        a('s_lshl3_add_u32 %s, s2, %s' % (sId, sW))
        a('s_xor_b32 %s, %s, %d' % (sCh, sId, 8*int(self.o['qg'])+int(self.o['qw']))); a('s_and_b32 %s, %s, 0xffffff7f' % (sCh, sCh))
    def srds(self):
        a = self.a
        a('s_mov_b32 s10, 2101248'); a('s_mov_b32 s11, 0x20000')
        a('s_mov_b32 s14, 2101248'); a('s_mov_b32 s15, 0x20000')
        a('s_mov_b32 s18, 0x800000'); a('s_mov_b32 s19, 0x20000')
    def srds0(self):
        a = self.a
        a('s_mov_b32 s22, 256'); a('s_mov_b32 s23, 0x20000')
        a('s_mov_b32 s26, 0x%x' % ((80 if self.o['ts'] else 18) << 20)); a('s_mov_b32 s27, 0x20000')
        a('v_and_b32 %s, 15, %s' % (v(V.n), v(V.lane)))
        a('v_mov_b32 %s, 0' % v(V.zero)); a('v_mov_b32 %s, %d' % (v(V.cnt), CNT))

    def x_issue(self):
        for r in range(4):
            self.a('buffer_load_dwordx4 %s, %s, %s, %s offen %s' % (vr(V.L+4*r, 4), v(V.Xoff), SX, sO[r], self.o['ldx']))
    def probe(self):
        a = self.a; T = V.T; NB = int(self.o['nb']); ld = self.o['pld']
        a('s_bfe_u32 %s, s2, 0x10004' % sC)
        a('s_mul_i32 %s, %s, 0x12000' % (sA, sC)); a('s_add_u32 %s, %s, 0x%x' % (sA, sA, int(self.o['pb']) << 20))
        a('s_xor_b32 %s, %s, 0x2000' % (sB, sA))
        a('s_lshl_b32 %s, %s, 16' % (sD, sC)); a('s_add_u32 %s, %s, 0x%x' % (sD, sD, WS_FLAG))
        a('s_mov_b32 s26, 0x%x' % (18 << 20)); a('s_mov_b32 s27, 0x20000')
        a('s_lshl_b32 %s, %s, 3' % (sC, sC))
        a('v_mul_u32_u24 %s, 0x5080, %s' % (v(T), v(V.lane)))
        a('v_lshlrev_b32 %s, 10, %s' % (v(T+1), v(V.lane)))
        a('v_mov_b32 %s, 0' % v(T+2))
        if not ld:
            for k in range(2*NB): a('v_mov_b32 %s, 0' % v(V.DA+k))
        a('s_mov_b64 exec, %s' % self.o['pex'])
        if 'da' in self.o: a('s_waitcnt lgkmcnt(0)'); a('s_mov_b32 s60, s56'); a('s_mov_b32 s58, s56')
        a('s_waitcnt lgkmcnt(0)')
        for side, base in enumerate((sA, sB)):
            for k in range(NB):
                if ld: a('buffer_load_dword %s, %s, %s, %s offen offset:%d %s' % (v(V.DA+side*NB+k), v(T), SWS, base, k*0x300, ld))
                else: a('buffer_atomic_add %s, %s, %s, %s offen offset:%d sc0 sc1' % (v(V.DA+side*NB+k), v(T), SWS, base, k*0x300))
        a('s_mov_b64 exec, -1')
        a('buffer_store_dword %s, %s, %s, %s offen sc1' % (v(T+2), v(T+1), SWS, sD))
        if self.o['pre']: a('s_load_dword s95, s[20:21], 0x80')
        self.x_issue()
        a('s_waitcnt vmcnt(%d)' % (NB+5))
        for x in self.o['pnop'].split(','): a('s_nop %s' % x)
        a('s_getreg_b32 %s, hwreg(HW_REG_IB_STS, 0, 4)' % sA)
        a('s_or_b32 %s, %s, 16' % (sA, sA)); a('s_lshl_b32 s94, %s, %s' % (sA, sC))
        if self.o['merge']: a('s_waitcnt vmcnt(4)')
        a('s_atomic_or s94, s[20:21], 0x80')
        self.mark('pub')
    def clear_done(self):
        a = self.a
        if self.o['merge']: return
        def f():
            a('s_mov_b32 s93, 1'); a('s_waitcnt vmcnt(4)')
            a('s_atomic_add s93, s[20:21], 0x0')
        self.cond(sCh, 0, f)
    def ready_check(self):
        a = self.a; l0, l1 = self.label('rdy'), self.label('rdyok')
        a('s_cmp_ge_u32 %s, 2' % sRv)
        a('s_cbranch_scc1 %s' % l1)
        a('s_mov_b32 %s, 0' % sCnt)
        a(l0+':')
        a('buffer_load_dword %s, %s, %s, 0 offen sc1' % (v(V.tmp), v(V.zero), SDBG))
        a('s_add_u32 %s, %s, 1' % (sCnt, sCnt))
        a('s_cmp_gt_u32 %s, 0x%x' % (sCnt, SPIN_MAX))
        a('s_waitcnt vmcnt(0)')
        a('s_cbranch_scc1 %s' % l1)
        a('v_cmp_gt_u32 vcc, 2, %s' % v(V.tmp))
        a('s_cbranch_vccnz %s' % l0)
        a(l1+':')
    def side_load(self):
        self.a('buffer_load_dword %s, %s, %s, 0 offen offset:128 sc1' % (v(V.tmp), v(V.zero), SDBG))
    def side_wait(self):
        a = self.a
        def f():
            lp, ok = self.label('sw'), self.label('swok')
            a('s_mov_b32 %s, 0' % sCnt)
            a(lp+':')
            a('s_waitcnt vmcnt(0)')
            a('v_and_b32 %s, 0x1010, %s' % (v(V.T), v(V.tmp)))
            a('v_cmp_eq_u32 vcc, 0x1010, %s' % v(V.T))
            a('s_cbranch_vccnz %s' % ok)
            self.side_load()
            a('s_add_u32 %s, %s, 1' % (sCnt, sCnt))
            a('s_cmp_lt_u32 %s, 0x%x' % (sCnt, SPIN_MAX))
            a('s_cbranch_scc1 %s' % lp)
            a('s_waitcnt vmcnt(0)')
            a(ok+':')
            a('ds_write2_b32 %s, %s, %s offset0:0 offset1:1' % (v(V.cnt), v(V.tmp), v(V.zero)))
        self.cond(sW, PW, f)
    def side_use(self):
        a = self.a
        a('v_readfirstlane_b32 %s, %s' % (sA, v(V.tmp)))
        if self.o['ts']: a('s_mov_b32 s%d, %s' % (sTS+24, sA))
        if 'enc' in self.o: a('s_mov_b32 s62, %s' % sA)
        a('s_and_b32 %s, %s, 15' % (sB, sA)); a('s_bfe_u32 %s, %s, 0x40008' % (sA, sA))
        a('s_cmp_gt_u32 %s, %s' % (sA, sB))
        a('s_cselect_b32 %s, 0x2000, 0' % sCh)
        if self.o['force'] != '': a('s_mov_b32 %s, %d' % (sCh, int(self.o['force']) << 13))
        a('s_xor_b32 %s, %s, %s' % (sEst, sEst, sCh))
    def flag_addrs(self):
        a = self.a
        a('s_lshr_b32 %s, %s, 4' % (sB, sT))
        a('s_lshl_b32 %s, %s, 13' % (sA, sP)); a('s_add_u32 %s, %s, 0x%x' % (sA, sA, WS_FLAG))
        for dst, wp, gr in ((sF, sW, sB), (sE, sB, sW)):
            a('s_lshl4_add_u32 %s, %s, %s' % (sC, wp, gr)); a('s_lshl_b32 %s, %s, 10' % (sC, sC))
            a('s_add_u32 %s, %s, %s' % (dst, sC, sA))
        R = int(self.o['rep'])
        if R > 1:
            a('s_and_b32 %s, %s, %d' % (sC, sT, R-1)); a('s_lshl_b32 %s, %s, 8' % (sC, sC)); a('s_add_u32 %s, %s, %s' % (sE, sE, sC))
    def side_apply(self):
        for r in (sF, sE, sEld): self.a('s_xor_b32 %s, %s, %s' % (r, r, sCh))
    def arrive(self):
        for r in range(int(self.o['rep'])): self.a('s_atomic_add %s, s[24:25], %s offset:%d' % (sInc, sF, 256*r))
    def poll(self, ex, under=None):
        a = self.a; lp, ok = self.label('poll'), self.label('pollok')
        if under:
            a('s_mov_b32 %s, 0' % sRv)
            a('s_atomic_add %s, s[24:25], %s glc' % (sRv, sE))
            under()
            a('s_waitcnt lgkmcnt(0)')
            a('s_bitcmp1_b32 %s, %d' % (sRv, 4+16*ex))
            a('s_cbranch_scc1 %s' % ok)
        a('s_mov_b32 %s, 0' % sCnt)
        a(lp+':')
        a('s_mov_b32 %s, 0' % sRv)
        a('s_atomic_add %s, s[24:25], %s glc' % (sRv, sE))
        a('s_add_u32 %s, %s, 1' % (sCnt, sCnt))
        a('s_cmp_gt_u32 %s, 0x%x' % (sCnt, SPIN_MAX))
        a('s_waitcnt lgkmcnt(0)')
        a('s_cbranch_scc1 %s' % ok)
        if self.o['slp']:
            a('s_bitcmp1_b32 %s, %d' % (sRv, 4+16*ex))
            a('s_cbranch_scc1 %s' % ok)
            if self.o['sthr']:
                a('s_bfe_u32 %s, %s, 0x%x' % (sA, sRv, 0x50000+16*ex))
                a('s_cmp_ge_u32 %s, %s' % (sA, self.o['sthr'])); a('s_cbranch_scc1 %s' % lp)
            a('s_sleep %s' % self.o['slp'])
            a('s_branch %s' % lp)
        else:
            a('s_bitcmp0_b32 %s, %d' % (sRv, 4+16*ex))
            a('s_cbranch_scc1 %s' % lp)
        a(ok+':')
    def ex_addrs(self):
        a = self.a; T = V.T
        a('s_lshl_b32 %s, %s, 4' % (sB, sW)); a('s_xor_b32 %s, %s, %s' % (sB, sB, sT)); a('s_lshl_b32 %s, %s, 8' % (sB, sB))
        a('v_lshlrev_b32 %s, 4, %s' % (v(T), v(V.n)))
        a('v_lshl_add_u32 %s, %s, 10, %s' % (v(T), v(V.g), v(T)))
        a('v_xor_b32 %s, %s, %s' % (v(T), sB, v(T)))
        a('v_and_b32 %s, 0x6000, %s' % (v(T+1), v(T)))
        a('v_add_u32 %s, %s, %s' % (v(T), v(T), v(T+1)))
        a('v_lshl_add_u32 %s, %s, 18, %s' % (v(V.Est), v(V.g), v(T)))
        a('v_and_b32 %s, 0xdcff, %s' % (v(V.Eld), v(T)))
        a('s_bfe_u32 %s, %s, 0x10001' % (sA, sW)); a('s_xor_b32 %s, %s, %s' % (sA, sA, sP))
        a('s_bfe_u32 %s, %s, 0x10005' % (sC, sT)); a('s_xor_b32 %s, %s, %s' % (sC, sC, sP))
        a('s_lshl_b32 %s, %s, 7' % (sEst, sW)); a('s_add_u32 %s, %s, %s' % (sEst, sEst, sA)); a('s_lshl_b32 %s, %s, 13' % (sEst, sEst))
        a('s_lshl3_add_u32 %s, %s, %s' % (sEld, sT, sC)); a('s_lshl_b32 %s, %s, 13' % (sEld, sEld))

    def trig(self, x, re, im, conj_re=None, conj_im=None):
        a = self.a; c, s = V.T+8, V.T+9
        a('v_cos_f32 %s, %s' % (v(c), v(x)))
        a('v_sin_f32 %s, %s' % (v(s), v(x)))
        if getattr(self, 'fill', None): self.fill(); self.fill = None
        a('v_cvt_pk_bf16_f32 %s, %s, %s' % (v(re), v(c), v(s)))
        a('v_cvt_pk_bf16_f32 %s, -%s, %s' % (v(im), v(s), v(c)))
        if conj_re is not None:
            a('v_xor_b32 %s, 0x80000000, %s' % (v(conj_re), v(re)))
            a('v_xor_b32 %s, 0x8000, %s' % (v(conj_im), v(im)))
    def ladder(self, x, step, regs):
        a = self.a
        for k, r in enumerate(regs):
            if k < len(regs)-1: self.fill = lambda: a('v_add_f32 %s, %s, %s' % (v(x), v(x), v(step)))
            self.trig(x, *r)
    def gen_F16(self):
        a = self.a; T = V.T
        a('v_cvt_f32_u32 %s, %s' % (v(T), v(V.n)))
        a('v_cvt_f32_u32 %s, %s' % (v(T+1), v(V.g)))
        a('v_mul_f32 %s, %s, %s' % (v(T), lit(1/16), v(T)))
        a('v_mul_f32 %s, 4.0, %s' % (v(T+1), v(T+1)))
        a('v_mul_f32 %s, %s, %s' % (v(T+2), v(T), v(T+1)))
        self.ladder(T+2, T, [(V.F16+r, V.F16+4+r) for r in range(4)])
    def gen_M2(self):
        a = self.a; T = V.T
        def normal():
            a('v_cvt_f32_u32 %s, %s' % (v(T+2), sW))
            a('v_fmac_f32 %s, %s, %s' % (v(T), lit(1/256), v(T+2)))
            a('v_mul_f32 %s, %s, %s' % (v(T+2), v(T), v(T+1)))
            self.ladder(T+2, T, [(V.M2+r, V.M2+4+r, V.M2+8+r, V.M2+12+r) for r in range(4)])
        def w0():
            a('v_lshrrev_b32 %s, 1, %s' % (v(T), v(V.n)))
            a('v_cvt_f32_u32 %s, %s' % (v(T), v(T)))
            a('v_lshlrev_b32 %s, 31, %s' % (v(T+3), v(V.n)))
            a('v_add_f32 %s, 0.5, %s' % (v(T+4), v(T)))
            a('v_xor_b32 %s, %s, %s' % (v(T+3), lit(1/16), v(T+3)))
            a('v_cmp_ne_u32 vcc, 1, %s' % v(V.n))
            a('v_mul_f32 %s, %s, %s' % (v(T), v(T), v(T+3)))
            a('v_mul_f32 %s, %s, %s' % (v(T+4), v(T+4), v(T+3)))
            a('v_cndmask_b32 %s, 0.5, %s, vcc' % (v(T), v(T)))
            for ts in range(2):
                d = T+4*ts
                a('v_mul_f32 %s, %s, %s' % (v(T+2), v(d), v(T+1)))
                self.ladder(T+2, d, [(V.M2+8*ts+r, V.M2+8*ts+4+r) for r in range(4)])
        self.ifelse(sW, 0, w0, normal)
    def gen_M3(self):
        a = self.a; T = V.T
        a('v_cvt_f32_u32 %s, %s' % (v(T), v(V.n)))
        a('v_mul_f32 %s, %s, %s' % (v(T+1), lit(1/256), v(T)))
        a('v_mul_f32 %s, %s, %s' % (v(T), lit(1/16), v(T)))
        def normal():
            a('v_lshl_add_u32 %s, %s, 6, %s' % (v(T+2), v(V.g), sW))
            a('v_cvt_f32_u32 %s, %s' % (v(T+2), v(T+2)))
            a('v_mul_f32 %s, %s, %s' % (v(T+2), v(T+2), v(T+1)))
            self.ladder(T+2, T, [(V.M2+r, V.M2+4+r, V.M2+8+r, V.M2+12+r) for r in range(4)])
        def w0():
            a('v_lshlrev_b32 %s, 5, %s' % (v(T+2), v(V.g)))
            a('v_cvt_f32_u32 %s, %s' % (v(T+2), v(T+2)))
            a('v_mul_f32 %s, 0.5, %s' % (v(T), v(T)))
            a('v_mul_f32 %s, %s, %s' % (v(T+2), v(T+2), v(T+1)))
            regs = []
            for k in range(4):
                b = V.M2+8*(k & 1)+2*(k >> 1)
                regs.append((b, b+4, b+1, b+5))
            self.ladder(T+2, T, regs)
            a('s_mov_b64 exec, 0xffff')
            a('v_lshlrev_b32 %s, 15, %s' % (v(T+2), v(V.n)))
            a('v_and_b32 %s, 0x8000, %s' % (v(T+2), v(T+2)))
            a('v_or_b32 %s, 0x3f80, %s' % (v(V.M2+1), v(T+2)))
            a('v_lshlrev_b32 %s, 16, %s' % (v(V.M2+5), v(V.M2+1)))
            a('s_mov_b64 exec, -1')
        self.ifelse(sW, 0, w0, normal)
    def sigma_lane(self, dst):
        a = self.a; t = V.T+7
        a('v_and_b32 %s, 17, %s' % (v(dst), v(V.lane)))
        a('v_bfe_u32 %s, %s, 2, 2' % (v(t), v(V.lane)))
        a('v_lshl_add_u32 %s, %s, 1, %s' % (v(dst), v(t), v(dst)))
        a('v_and_b32 %s, 2, %s' % (v(t), v(V.lane)))
        a('v_lshl_add_u32 %s, %s, 2, %s' % (v(dst), v(t), v(dst)))
    def coop_gen(self):
        a = self.a; T = V.T; X = V.DA
        self.sigma_lane(T)
        a('v_lshrrev_b32 %s, 5, %s' % (v(T+1), v(V.lane)))
        a('v_lshlrev_b32 %s, 7, %s' % (v(T+2), v(T+1)))
        a('v_lshl_add_u32 %s, %s, 1, %s' % (v(T+2), v(T), v(T+2)))
        a('s_and_b32 %s, %s, 2' % (sD, sKP)); a('s_sub_u32 %s, %s, %s' % (sD, sWL, sD))
        a('v_add_u32 %s, %s, %s' % (v(V.WP), sD, v(T+2)))
        a('s_add_u32 %s, %s, %d' % (sD, sD, 1024-832))
        a('v_sub_u32 %s, %s, %s' % (v(V.WM), sD, v(T+2)))
        a('v_cvt_f32_u32 %s, %s' % (v(T), v(T)))
        a('s_mul_i32 %s, %s, 4' % (sA, sW)); a('s_lshr_b32 %s, 0x75643120, %s' % (sA, sA)); a('s_and_b32 %s, %s, 7' % (sA, sA)); a('s_lshl_b32 %s, %s, 2' % (sA, sA))
        a('v_lshl_add_u32 %s, %s, 1, %s' % (v(T+1), v(T+1), sA))
        a('v_mul_f32 %s, %s, %s' % (v(T), lit(1/2048), v(T)))
        a('v_cvt_f32_u32 %s, %s' % (v(T+1), v(T+1)))
        a('v_mul_f32 %s, %s, %s' % (v(T+2), v(T+1), v(T)))
        for e in range(2):
            a('v_cos_f32 %s, %s' % (v(T+5), v(T+2)))
            a('v_sin_f32 %s, %s' % (v(T+6), v(T+2)))
            a('v_rcp_f32 %s, %s' % (v(T+5), v(T+5)))
            a('v_mul_f32 %s, %s, %s' % (v(T+3), lit(64.0), v(T+2)))
            a('v_mul_f32 %s, %s, %s' % (v(X+4+e), v(T+6), v(T+5)))
            a('v_fma_f32 %s, %s, %s, 1.0' % (v(T+5), v(X+4+e), v(X+4+e)))
            a('v_rcp_f32 %s, %s' % (v(T+6), v(T+5)))
            a('v_mul_f32 %s, -2.0, %s' % (v(T+4), v(X+4+e)))
            a('v_fma_f32 %s, -%s, %s, 1.0' % (v(T+5), v(T+5), v(T+6)))
            a('v_fmac_f32 %s, %s, %s' % (v(T+6), v(T+5), v(T+6)))
            a('v_mul_f32 %s, %s, %s' % (v(X+6+e), v(T+6), v(T+4)))
            if e == 0: self.fill = lambda: a('v_add_f32 %s, %s, %s' % (v(T+2), v(T+2), v(T)))
            self.trig(T+3, X+e, X+2+e)
        a('s_lshr_b32 %s, %s, 1' % (sA, sW)); a('s_lshl_b32 %s, %s, 7' % (sA, sA))
        a('s_and_b32 %s, %s, 1' % (sB, sW)); a('s_add_u32 %s, %s, %s' % (sA, sA, sB))
        a('s_lshl3_add_u32 %s, %s, %d' % (sA, sA, TABL))
        a('v_add_u32 %s, %s, %s' % (v(T), sA, v(V.l16)))
        for k in range(4): a('ds_write_b64 %s, %s offset:%d' % (v(T), vr(X+2*k, 2), 4096*k))
    def coop_post(self):
        a = self.a
        a('v_mov_b32 %s, 1' % v(V.T+1))
        a('ds_add_u32 %s, %s offset:4' % (v(V.cnt), v(V.T+1)))
    def coop_wait(self):
        a = self.a; T = V.T; lp, ok = self.label('cw'), self.label('cwok')
        a('s_mov_b32 %s, 0' % sCnt)
        a(lp+':')
        a('ds_read_b32 %s, %s offset:4' % (v(T), v(V.cnt)))
        a('s_add_u32 %s, %s, 1' % (sCnt, sCnt))
        a('s_cmp_gt_u32 %s, 0x%x' % (sCnt, SPIN_MAX*8))
        a('s_waitcnt lgkmcnt(0)')
        a('s_cbranch_scc1 %s' % ok)
        a('v_cmp_gt_u32 vcc, 0x200, %s' % v(T))
        a('s_cbranch_vccnz %s' % lp)
        a(ok+':')
    def coop_read(self):
        a = self.a; T = V.T
        a('v_add_u32 %s, %d, %s' % (v(T), TABL, v(V.l16)))
        for k in range(16): a('ds_read_b128 %s, %s offset:%d' % (vr(V.F32+4*k, 4), v(T), 1024*k))
    def calc_k0(self):
        a = self.a
        a('s_lshr_b32 %s, %s, 4' % (sA, sT)); a('s_and_b32 %s, %s, 15' % (sB, sT))
        a('s_lshl4_add_u32 %s, %s, %s' % (sK0, sB, sA))
        a('s_and_b32 %s, %s, 12' % (sC, sB)); a('s_bfe_u32 %s, %s, 0x10001' % (sD, sB)); a('s_add_u32 %s, %s, %s' % (sC, sC, sD))
        a('s_and_b32 %s, %s, 1' % (sD, sB)); a('s_lshl1_add_u32 %s, %s, %s' % (sC, sD, sC)); a('s_lshl_b32 %s, %s, 3' % (sC, sC))
        a('s_cmp_eq_u32 %s, 0' % sA); a('s_cselect_b32 %s, %s, %s' % (sK0, sC, sK0))
        a('s_cmp_eq_u32 %s, 0' % sT); a('s_cselect_b32 %s, 7, 8' % sA)
        a('s_lshl_b32 %s, %s, %s' % (sKP, sW, sA)); a('s_add_u32 %s, %s, %s' % (sKP, sKP, sK0))
        a('s_sub_u32 %s, 0x800, %s' % (sKM, sKP))
        a('s_cmp_eq_u32 %s, 0' % sKP)
        a('s_cselect_b32 %s, 0x400, %s' % (sKM, sKM)); a('s_cselect_b32 %s, 1, 0' % sSpec)
        a('s_mul_i32 %s, %s, 1026' % (sKP, sKP)); a('s_mul_i32 %s, %s, 1026' % (sKM, sKM))
        a('s_mul_i32 %s, %s, 4224' % (sWL, sW)); a('s_add_u32 %s, %s, %d' % (sWL, sWL, WL))
        a('s_and_b32 %s, %s, 2' % (sA, sKP))
        a('s_add_u32 %s, %s, %s' % (sDP, sKP, sA)); a('s_add_u32 %s, %s, %s' % (sDM, sKM, sA))
    def gen_B(self):
        a = self.a; T = V.T; c, s = T+8, T+9
        a('v_lshrrev_b32 %s, 1, %s' % (v(T), v(V.n)))
        a('v_cvt_f32_u32 %s, %s' % (v(T+2), v(V.g)))
        a('v_and_b32 %s, 1, %s' % (v(T+3), v(V.n)))
        a('v_add_f32 %s, %s, %s' % (v(T+2), v(T+2), v(T+2)))
        def normal():
            a('v_lshl_add_u32 %s, %s, 8, %s' % (v(T+1), v(T), sK0))
            a('v_lshlrev_b32 %s, 4, %s' % (v(T+4), v(T+3)))
            a('v_cvt_f32_u32 %s, %s' % (v(T+1), v(T+1)))
            a('v_lshlrev_b32 %s, 31, %s' % (v(T+6), v(V.n)))
            a('v_cvt_f32_u32 %s, %s' % (v(T+3), v(T+3)))
            a('v_mul_f32 %s, %s, %s' % (v(T+1), lit(1/2048), v(T+1)))
            a('s_brev_b32 %s, 1' % sA)
            a('v_lshrrev_b32 %s, %s, %s' % (v(T+4), v(T+4), sA))
            a('v_mul_f32 %s, %s, %s' % (v(T+5), v(T+1), v(T+2)))
            a('v_fmac_f32 %s, %s, %s' % (v(T+5), lit(0.25), v(T+3)))
            for sbb in range(2):
                if sbb == 0: self.fill = lambda: a('v_add_f32 %s, %s, %s' % (v(T+5), v(T+5), v(T+1)))
                else: self.fill = lambda: a('v_cvt_f32_u32 %s, %s' % (v(T), v(T)))
                self.trig(T+5, V.B+2*sbb, V.B+6+2*sbb)
                a('v_xor_b32 %s, %s, %s' % (v(V.B+2*sbb+1), v(V.B+2*sbb), v(T+4)))
                a('v_xor_b32 %s, %s, %s' % (v(V.B+6+2*sbb+1), v(V.B+6+2*sbb), v(T+4)))
            a('v_lshl_add_u32 %s, %s, 9, %s' % (v(T+1), v(V.g), sK0))
            a('v_xor_b32 %s, %s, %s' % (v(T), v(T), v(T+6)))
            a('v_cvt_f32_u32 %s, %s' % (v(T+1), v(T+1)))
            a('v_mul_f32 %s, 0.5, %s' % (v(T+5), v(T+3)))
            a('v_mul_f32 %s, %s, %s' % (v(T+1), lit(1/2048), v(T+1)))
            a('v_fmac_f32 %s, %s, %s' % (v(T+5), v(T+1), v(T)))
            for ii in range(2):
                a('v_cos_f32 %s, %s' % (v(c), v(T+5)))
                a('v_sin_f32 %s, %s' % (v(s), v(T+5)))
                a('v_mul_f32 %s, %s, %s' % (v(c), lit(SC), v(c)))
                a('v_mul_f32 %s, %s, %s' % (v(s), lit(SC), v(s)))
                if ii == 0: a('v_fmac_f32 %s, %s, %s' % (v(T+5), lit(0.125), v(T)))
                a('v_cvt_pk_bf16_f32 %s, %s, %s' % (v(T+1), v(c), v(s)))
                a('v_cvt_pk_bf16_f32 %s, -%s, %s' % (v(T+2), v(s), v(c)))
                a('v_xor_b32 %s, %s, %s' % (v(V.Bp+2*ii), v(T+1), v(T+6)))
                a('v_xor_b32 %s, %s, %s' % (v(V.Bp+4+2*ii), v(T+2), v(T+6)))
                a('v_xor_b32 %s, %s, %s' % (v(V.Bp+2*ii+1), v(T+2), v(T+6)))
                a('v_xor_b32 %s, 0x80008000, %s' % (v(V.Bp+4+2*ii+1), v(V.Bp+2*ii)))
        def special():
            a('v_cvt_f32_u32 %s, %s' % (v(T+1), v(T)))
            a('v_mul_f32 %s, %s, %s' % (v(T+1), lit(1/16), v(T+1)))
            a('v_lshlrev_b32 %s, 4, %s' % (v(T+4), v(T+3)))
            a('v_cmp_eq_u32 s[84:85], 0, %s' % v(T))
            a('v_and_b32 %s, 1, %s' % (v(T+6), v(T)))
            a('v_cmp_eq_u32 s[86:87], 1, %s' % v(T+6))
            a('v_mul_f32 %s, %s, %s' % (v(T+5), v(T+1), v(T+2)))
            for sbb in range(2):
                a('v_cos_f32 %s, %s' % (v(c), v(T+5)))
                a('v_sin_f32 %s, %s' % (v(s), v(T+5)))
                a('v_mul_f32 %s, 2.0, %s' % (v(c), v(c)))
                a('v_mul_f32 %s, -2.0, %s' % (v(s), v(s)))
                a('v_cndmask_b32 %s, %s, 1.0, s[84:85]' % (v(c), v(c)))
                a('v_cndmask_b32 %s, %s, %s, s[84:85]' % (v(s), v(s), '-1.0' if sbb else '1.0'))
                for src, dst in ((c, V.B+2*sbb), (s, V.B+6+2*sbb)):
                    a('v_cvt_pk_bf16_f32 %s, %s, 0' % (v(T+7), v(src)))
                    a('v_lshlrev_b32 %s, %s, %s' % (v(T+7), v(T+4), v(T+7)))
                    a('v_cndmask_b32 %s, %s, 0, s[86:87]' % (v(dst), v(T+7)))
                    a('v_cndmask_b32 %s, 0, %s, s[86:87]' % (v(dst+1), v(T+7)))
                a('v_add_f32 %s, %s, %s' % (v(T+5), v(T+5), v(T+1)))
            a('v_cmp_eq_u32 s[88:89], 0, %s' % v(V.g))
            a('v_cmp_eq_u32 s[90:91], 1, %s' % v(T+3))
            a('v_lshlrev_b32 %s, 31, %s' % (v(T+6), v(T)))
            a('v_xor_b32 %s, %s, %s' % (v(T+6), lit(SC), v(T+6)))
            a('v_mov_b32 %s, %s' % (v(T+4), lit(SC)))
            a('v_mul_f32 %s, %s, %s' % (v(T+5), v(T+1), v(T+2)))
            for ii in range(2):
                a('v_cos_f32 %s, %s' % (v(c), v(T+5)))
                a('v_sin_f32 %s, %s' % (v(s), v(T+5)))
                a('v_mul_f32 %s, %s, %s' % (v(c), lit(2*SC), v(c)))
                a('v_mul_f32 %s, %s, %s' % (v(s), lit(-2*SC), v(s)))
                if ii == 0:
                    a('v_cndmask_b32 %s, %s, %s, s[88:89]' % (v(c), v(c), v(T+4)))
                    a('v_cndmask_b32 %s, %s, %s, s[88:89]' % (v(s), v(s), v(T+6)))
                a('v_cvt_pk_bf16_f32 %s, %s, %s' % (v(T+7), v(s), v(c)))
                if ii: a('v_cndmask_b32 %s, 0, %s, s[90:91]' % (v(T+7), v(T+7)))
                else: a('v_cndmask_b32 %s, %s, 0, s[90:91]' % (v(T+7), v(T+7)))
                a('v_mov_b32 %s, 0' % v(V.Bp+2*ii)); a('v_mov_b32 %s, %s' % (v(V.Bp+2*ii+1), v(T+7)))
                a('v_mov_b32 %s, %s' % (v(V.Bp+4+2*ii), v(T+7))); a('v_mov_b32 %s, 0' % v(V.Bp+4+2*ii+1))
                a('v_add_f32 %s, %s, %s' % (v(T+5), v(T+5), v(T+1)))
        self.far(sT, 0, special, normal)
        for d, r in ((4, 0), (5, 1), (10, 6), (11, 7)): a('v_mov_b32 %s, %s' % (v(V.B+d), v(V.B+r)))

    def wq(self, rho): return (rho & 1) + 8*((rho >> 1) & 1) + 4*((rho >> 2) & 1)
    def w_dma1(self, i):
        a = self.a
        srd, so = [(SWR, sDP), (SWI, sDP), (SWR, sDM), (SWI, sDM)][i]
        a('s_add_u32 m0, %s, %d' % (sWL, 1056*i))
        a('buffer_load_dwordx4 %s, %s, %s offen %s lds' % (v(V.l16), srd, so, self.o['ldw']))
    def w_dma(self):
        for i in range(4): self.w_dma1(i)
    def w_edge_load(self):
        a = self.a; T = V.T
        a('s_mov_b64 exec, 15')
        a('v_mov_b32 %s, %s' % (v(T), sKP)); a('v_mov_b32 %s, %s' % (v(T+1), sKM))
        a('s_mov_b64 vcc, 10')
        a('v_cndmask_b32 %s, %s, %s, vcc' % (v(T), v(T), v(T+1)))
        a('v_and_b32 %s, 2, %s' % (v(T+1), v(V.lane)))
        a('v_lshl_add_u32 %s, %s, 9, %s' % (v(T), v(T+1), v(T)))
        a('buffer_load_short_d16_hi %s, %s, %s, 0 offen' % (v(V.WF), v(T), SWR))
        a('buffer_load_short_d16_hi %s, %s, %s, 0 offen' % (v(V.WF+1), v(T), SWI))
        a('s_mov_b64 exec, -1')
    def w_edge_rl(self):
        for l in range(4):
            for im in range(2): self.a('v_readlane_b32 s%d, %s, %d' % (84+2*l+im, v(V.WF+im), l))
    def w_edge(self):
        a = self.a; T = V.T
        self.w_edge_rl()
        q = ((84, 86, 'add'), (85, 87, 'sub'), (90, 88, 'add'), (91, 89, 'sub'))
        for i, (x, y, op) in enumerate(q): a('v_mov_b32 %s, s%d' % (v(T+i), y))
        for i, (x, y, op) in enumerate(q): a('v_%s_f32 %s, s%d, %s' % (op, v(V.WF+i), x, v(T+i)))
        for i in range(4): a('v_mul_f32 %s, 0.5, %s' % (v(V.WF+i), v(V.WF+i)))
        a('s_mov_b64 s[92:93], 1')
    def w_read1(self, rho, im, dst=None, swap=False):
        dst = V.W if dst is None else dst
        if rho < 8: ad, off = V.WP, 64*self.wq(rho) + (2112 if swap else 0)
        else: ad, off = V.WM, 64*(13-self.wq(rho)) + (0 if swap else 2112)
        return 'ds_read_u16_d16_hi %s, %s offset:%d' % (v(dst+16*im+rho), v(ad), off+1056*im)
    def w_fix(self, half):
        return ['v_cndmask_b32 %s, %s, %s, s[92:93]' % (v(V.W+8*half+16*im), v(V.W+8*half+16*im), v(V.WF+2*half+im)) for im in range(2)]
    def w_special(self):
        a = self.a; T = V.T; X = V.DA
        def f():
            for sw, dst in ((False, V.W), (True, X)):
                for rho in range(16):
                    for im in range(2): a(self.w_read1(rho, im, dst, sw))
            a('s_waitcnt lgkmcnt(0) vmcnt(0)')
            self.w_edge_rl()
            a('s_mov_b64 exec, 1')
            for r in (V.W+16, V.W+24, X+16, X+24): a('v_mov_b32 %s, 0' % v(r))
            a('v_mov_b32 %s, s90' % v(V.W+8)); a('v_mov_b32 %s, s88' % v(X+8))
            a('s_mov_b64 exec, -1')
            for i in range(32):
                a('v_add_f32 %s, %s, %s' % (v(V.W+i), v(V.W+i), v(X+i)))
                if (i & 15) < 8: a('v_fma_f32 %s, -2.0, %s, %s' % (v(X+i), v(X+i), v(V.W+i)))
                else: a('v_fma_f32 %s, 2.0, %s, -%s' % (v(X+i), v(X+i), v(V.W+i)))
            a('v_add_u32 %s, %d, %s' % (v(T+1), SCR_B, v(V.l16)))
            for i in range(8): a('ds_write_b128 %s, %s offset:%d' % (v(T+1), vr(X+4*i, 4), 1024*i))
        self.far(sSpec, 1, f)

    def addrs1(self):
        a = self.a; T = V.T
        a('v_lshrrev_b32 %s, 3, %s' % (v(T), v(V.lane)))
        a('v_and_b32 %s, 0x30, %s' % (v(T+1), v(V.l16)))
        a('v_lshl_add_u32 %s, %s, 6, %s' % (v(T), v(T), v(T+1)))
        a('v_and_b32 %s, 4, %s' % (v(T+1), v(V.lane)))
        a('v_lshl_add_u32 %s, %s, 1, %s' % (v(V.TR), v(T+1), v(T)))
        a('v_xor_b32 %s, %s, %s' % (v(T), sSB, v(V.lane)))
        a('v_and_b32 %s, 1, %s' % (v(T), v(T)))
        a('v_mul_u32_u24 %s, 16448, %s' % (v(T), v(T)))
        a('v_lshl_add_u32 %s, %s, 12, %s' % (v(T), v(V.g), v(T)))
        a('v_lshl_add_u32 %s, %s, 2, %s' % (v(T), v(T+1), v(T)))
        a('v_and_b32 %s, 0x60, %s' % (v(T+1), v(V.TR)))
        a('s_lshr_b32 %s, %s, 1' % (sWp, sW)); a('s_and_b32 %s, %s, 1' % (sA, sW))
        a('s_lshl2_add_u32 %s, %s, %s' % (sWp, sA, sWp)); a('s_lshl_b32 %s, %s, 7' % (sWp, sWp))
        a('v_add3_u32 %s, %s, %s, %s' % (v(V.X0w), v(T), v(T+1), sWp))
        a('s_lshl_b32 %s, %s, 10' % (sA, sW))
        a('s_sub_u32 %s, 0x4000, %s' % (sB, sA))
        a('s_cmp_eq_u32 %s, 0' % sW); a('s_cselect_b32 %s, 0x2000, %s' % (sB, sB))
        a('v_add_u32 %s, %s, %s' % (v(V.X0r0), sA, v(V.TR)))
        a('v_add_u32 %s, %s, %s' % (v(V.X0r1), sB, v(V.TR)))
    def addrs2(self):
        a = self.a; T = V.T
        a('v_lshlrev_b32 %s, 4, %s' % (v(T), v(V.n)))
        a('v_lshl_add_u32 %s, %s, 13, %s' % (v(T), v(V.g), v(T)))
        a('s_lshl_b32 %s, %s, 9' % (sA, sW)); a('s_add_u32 %s, %s, %d' % (sA, sA, R1))
        a('v_add_u32 %s, %s, %s' % (v(V.X1w), sA, v(T)))
        a('s_lshl_b32 %s, %s, 12' % (sA, sW)); a('s_add_u32 %s, %s, %d' % (sA, sA, R1))
        a('v_add_u32 %s, %s, %s' % (v(V.X1r), sA, v(V.TR)))
        a('v_and_b32 %s, 16, %s' % (v(T), v(V.l16)))
        a('v_and_b32 %s, 2, %s' % (v(T+1), v(V.lane)))
        a('v_bfe_u32 %s, %s, 2, 1' % (v(T+2), v(V.lane)))
        a('v_add_u32 %s, %s, %s' % (v(T+1), v(T+1), v(T+2)))
        a('v_mul_u32_u24 %s, 8224, %s' % (v(T+1), v(T+1)))
        a('v_bfe_u32 %s, %s, 3, 2' % (v(T+2), v(V.lane)))
        a('v_lshl_add_u32 %s, %s, 11, %s' % (v(T), v(T+2), v(T)))
        a('v_and_b32 %s, 32, %s' % (v(T+2), v(V.lane)))
        a('v_add3_u32 %s, %s, %s, %s' % (v(T), v(T), v(T+1), v(T+2)))
        a('v_add_u32 %s, %s, %s' % (v(V.X2w), sWp, v(T)))
        a('s_and_b32 %s, %s, 1' % (sA, sW)); a('s_lshr_b32 %s, %s, 2' % (sB, sW)); a('s_lshl1_add_u32 %s, %s, %s' % (sA, sB, sA)); a('s_lshl_b32 %s, %s, 11' % (sA, sA))
        a('s_and_b32 %s, %s, 2' % (sB, sW)); a('s_mul_i32 %s, %s, 8224' % (sB, sB)); a('s_add_u32 %s, %s, %s' % (sA, sA, sB))
        a('v_add_u32 %s, %s, %s' % (v(V.X2r), sA, v(V.TR)))
    def addrs3(self):
        a = self.a; T = V.T
        a('v_and_b32 %s, 16, %s' % (v(T), v(V.lane)))
        a('v_and_b32 %s, 33, %s' % (v(T+1), v(V.lane)))
        a('v_lshl_add_u32 %s, %s, 5, %s' % (v(T), v(T+1), v(T)))
        a('v_and_b32 %s, 8, %s' % (v(T+1), v(V.lane)))
        a('v_lshl_add_u32 %s, %s, 9, %s' % (v(T), v(T+1), v(T)))
        a('v_and_b32 %s, 2, %s' % (v(T+1), v(V.lane)))
        a('v_and_b32 %s, 4, %s' % (v(T+2), v(V.lane)))
        a('v_mul_u32_u24 %s, 4104, %s' % (v(T+1), v(T+1)))
        a('v_mul_u32_u24 %s, 4112, %s' % (v(T+2), v(T+2)))
        a('v_add3_u32 %s, %s, %s, %s' % (v(T), v(T), v(T+1), v(T+2)))
        a('s_sub_u32 %s, 16, %s' % (sC, sW))
        a('s_cmp_eq_u32 %s, 0' % sW); a('s_cselect_b32 %s, 8, %s' % (sC, sC))
        for kl, dst in ((sW, V.X3w0), (sC, V.X3w1)):
            a('s_lshr_b32 %s, %s, 2' % (sA, kl)); a('s_and_b32 %s, %s, 1' % (sB, kl)); a('s_lshl1_add_u32 %s, %s, %s' % (sA, sA, sB))
            a('s_and_b32 %s, %s, 2' % (sB, kl)); a('s_lshl2_add_u32 %s, %s, %s' % (sA, sB, sA))
            a('s_lshl_b32 %s, %s, 6' % (sA, sA)); a('s_add_u32 %s, %s, %d' % (sA, sA, R1))
            a('v_add_u32 %s, %s, %s' % (v(dst), sA, v(T)))
        a('s_and_b32 %s, %s, 1' % (sA, sW)); a('s_mul_i32 %s, %s, 8208' % (sA, sA))
        a('s_and_b32 %s, %s, 2' % (sB, sW)); a('s_mul_i32 %s, %s, 8224' % (sB, sB)); a('s_add_u32 %s, %s, %s' % (sA, sA, sB))
        a('s_and_b32 %s, %s, 4' % (sB, sW)); a('s_lshl_b32 %s, %s, 10' % (sB, sB)); a('s_add_u32 %s, %s, %s' % (sA, sA, sB))
        a('s_add_u32 %s, %s, %d' % (sA, sA, R1))
        a('v_add_u32 %s, %s, %s' % (v(V.X3r), sA, v(V.TR)))
        a('v_and_b32 %s, 0x70, %s' % (v(T), v(V.l16)))
        a('v_lshlrev_b32 %s, 1, %s' % (v(V.Ooff), v(V.Xoff)))
        a('v_sub_u32 %s, %s, %s' % (v(V.Ooff), v(V.Ooff), v(T)))

    def mf16(self, d, A, B): return 'v_mfma_f32_16x16x32_bf16 %s, %s, %s, 0' % (vr(d, 4), vr(A, 4), vr(B, 4))
    def cvt(self, d, lo, hi): return 'v_cvt_pk_bf16_f32 %s, %s, %s' % (v(d), v(lo), v(hi))
    def mf32(self, d, i, pl, dataA):
        M = vr(V.F32+16*pl+4*i, 4); X = vr(V.O+4*i, 4)
        A, B = (X, M) if dataA else (M, X)
        D = vr(d+16*pl, 16)
        return 'v_mfma_f32_32x32x16_bf16 %s, %s, %s, %s' % (D, A, B, D if i else '0')
    def emit(self, L):
        for x in L: self.a(x)

    def p1(self):
        a = self.a; O, L, D, P = V.O, V.L, V.DA, V.DB
        for r in range(4):
            a('s_waitcnt vmcnt(%d)' % (3-r))
            if r == 3:
                self.stamp()
                if self.o['spos'] == 'mid': self.cond(sW, PW, self.side_load)
            for t in range(4): a('v_mov_b32 %s, %s' % (v(O+4*t+r), v(L+4*r+t)))
        for t in range(4):
            a(self.mf16(D+4*t, V.F16, O+4*t)); a(self.mf16(D+16+4*t, V.F16+4, O+4*t))
        if self.o['spos'] == 'late': self.cond(sW, PW, self.side_load)
        def sp():
            self.srds()
            a('s_mov_b32 %s, 0' % sDP); a('s_mov_b32 %s, %d' % (sDM, 1024*1026)); a('s_mov_b32 %s, %d' % (sWL, WL))
            self.w_dma()
        a('s_or_b32 %s, %s, %s' % (sA, sT, sW))
        self.far(sA, 0, sp)
        for r in range(4):
            a(self.cvt(P+4*r, D+r, D+4+r)); a(self.cvt(P+4*r+2, D+16+r, D+20+r))
        for r in range(4):
            a(self.cvt(P+4*r+1, D+8+r, D+12+r)); a(self.cvt(P+4*r+3, D+24+r, D+28+r))
            a('ds_write_b128 %s, %s offset:%d' % (v(V.X0w), vr(P+4*r, 4), 1024*r))
        self.mark('g1a')
        self.side_wait()
        self.mark('g1b')
        a('s_waitcnt lgkmcnt(0)')
        a('s_barrier')
        for ti in range(4):
            for ii in range(2):
                a('ds_read_b64_tr_b16 %s, %s offset:%d' % (vr(O+4*ti+2*ii, 2), v(V.X0r1 if ti >> 1 else V.X0r0), (ti & 1)*16448+ii*512))
        a('ds_read_b32 %s, %s' % (v(V.tmp), v(V.cnt)))
        for ti in range(4):
            a('s_waitcnt lgkmcnt(%d)' % (7-2*ti))
            a(self.mf16(D+4*ti, V.M2+8*(ti >> 1), O+4*ti)); a(self.mf16(D+16+4*ti, V.M2+8*(ti >> 1)+4, O+4*ti))
        a('s_waitcnt lgkmcnt(0)')
        self.side_use()
        for r in range(4): a('s_add_u32 %s, %s, 0x%x' % (sO[r], sEst, WS_U[0] + r*65536))
        st = lambda i: a('buffer_store_dwordx4 %s, %s, %s, %s offen %s' % (vr(P+4*i, 4), v(V.Est), SWS, sO[i], self.o['st1']))
        def normal():
            for i in range(4):
                for k in range(4): a(self.cvt(P+4*i+2*(k & 1)+(k >> 1), D+4*k+i, D+16+4*k+i))
                st(i)
        def w0():
            for i in range(4):
                ts, eb = i >> 1, i & 1
                for tau in range(2):
                    for sg in range(2):
                        x = 4*(2*ts+tau)+2*eb+sg
                        a(self.cvt(P+4*i+2*tau+sg, D+x, D+16+x))
                st(i)
        self.ifelse(sW, 0, w0, normal)

    def stage(self, src, dst, dataA, kind, prio, pre=None):
        a = self.a; T = V.T
        if self.o['prio']: a('s_setprio %d' % prio)
        G = []
        for i in range(4):
            g = []
            if kind == 'tw':
                for st in range(3):
                    for r in range(4):
                        rho = 4*i+r; x, y = v(src+rho), v(src+16+rho)
                        g.append('v_fmac_f32 %s, %s, %s' % ((y, v(V.TW+16+rho), x) if st == 1 else (x, v(V.TW+rho), y)))
                for r in range(4): g.append(self.cvt(V.O+4*i+r, src+4*i+r, src+16+4*i+r))
            else:
                t = T+4*(i & 1)
                for r in range(4):
                    rho = 4*i+r
                    g.append('v_mul_f32 %s, %s, %s' % (v(t+r), v(src+rho), v(V.W+rho)))
                for r in range(4):
                    rho = 4*i+r
                    if rho < 8: g.append('v_fma_f32 %s, -%s, %s, %s' % (v(t+r), v(src+16+rho), v(V.W+16+rho), v(t+r)))
                    else: g.append('v_fmac_f32 %s, %s, %s' % (v(t+r), v(src+16+rho), v(V.W+16+rho)))
                for r in range(4):
                    rho = 4*i+r
                    g.append('v_mul_f32 %s, %s, %s' % (v(src+16+rho), v(src+16+rho), v(V.W+rho)))
                for r in range(4):
                    rho = 4*i+r
                    if rho < 8: g.append('v_fmac_f32 %s, %s, %s' % (v(src+16+rho), v(src+rho), v(V.W+16+rho)))
                    else: g.append('v_fma_f32 %s, -%s, %s, %s' % (v(src+16+rho), v(src+rho), v(V.W+16+rho), v(src+16+rho)))
                for r in range(4): g.append(self.cvt(V.O+4*i+r, src+16+4*i+r, t+r))
            G.append(g)
        W = [[self.w_read1(4*i+r, im) for im in range(2) for r in range(4)] for i in range(4)] if kind == 'w' else None
        if kind == 'w':
            a('s_waitcnt vmcnt(2)')
            self.emit(W[0]); self.emit(W[1])
        for i in range(4):
            g = list(G[i]); n = len(g)
            ins = {}
            if i:
                ins.setdefault(2, []).append(self.mf32(dst, i-1, 0, dataA))
                ins.setdefault(2+n//2, []).append(self.mf32(dst, i-1, 1, dataA))
            if kind == 'w':
                a('s_waitcnt lgkmcnt(%d)' % (8 if i < 3 else 0))
                if i in (0, 2): self.emit(self.w_fix(i >> 1))
                if i < 2:
                    if i == 0: ins.setdefault(3, []).append('s_waitcnt vmcnt(0)')
                    for k, x in enumerate(W[i+2]): ins.setdefault(3+2*k, []).append(x)
            for k, x in enumerate(g):
                self.emit(ins.get(k, []))
                a(x)
        a(self.mf32(dst, 3, 0, dataA)); a(self.mf32(dst, 3, 1, dataA))

    def p2(self):
        a = self.a; O, L, D, T = V.O, V.L, V.DA, V.T
        na = self.p2na
        for cbb in range(2):
            b = L+12*cbb
            a('s_waitcnt vmcnt(%d)' % (na+3-2*cbb))
            a('v_mov_b32 %s, %s' % (v(b+8), v(b))); a('v_mov_b32 %s, %s' % (v(b+9), v(b+1)))
            a('s_waitcnt vmcnt(%d)' % (na+2-2*cbb))
            if cbb: self.stamp(); self.mark('f0')
            for jj2 in (1, 0):
                ti = 2*cbb+jj2; op = b+2 if jj2 else b+6; mo = 0 if jj2 else 2
                a(self.mf16(D+4*ti, V.B+mo, op)); a(self.mf16(D+16+4*ti, V.B+6+mo, op))
        for cbb in range(2):
            for k1b in range(2):
                P = O+4*(2*cbb+k1b)
                for jj2 in (1, 0):
                    for pl in range(2):
                        x = D+16*pl+4*(2*cbb+jj2)+2*k1b
                        a(self.cvt(P+2*pl+jj2, x, x+1))
                a('ds_write_b128 %s, %s offset:%d' % (v(V.X1w), vr(P, 4), k1b*4096+cbb*256))
        self.mark('f1')
        a('s_waitcnt lgkmcnt(0)')
        self.mark('f2', True)
        a('s_barrier')
        self.mark('x1', True)
        if self.o['prio']: a('s_setprio 3')
        for i in range(4):
            for ii in range(2):
                a('ds_read_b64_tr_b16 %s, %s offset:%d' % (vr(O+4*i+2*ii, 2), v(V.X1r), ii*1024+(i & 1)*512+(i >> 1)*2048))
        rows = {'postX1': (0, 1, 2, 3), 'barh': (2, 3), 'bar': (), 'p2a': (2, 3), 'q2a': (1, 2, 3)}[self.o['wpos']]
        for i in range(4):
            if i < len(rows): self.w_dma1(rows[i])
            a('s_waitcnt lgkmcnt(%d)' % (6-2*i))
            a(self.mf32(V.DA, i, 0, True)); a(self.mf32(V.DA, i, 1, True))
        self.mark('f3')
        self.stage(V.DA, V.DB, False, 'tw', 2)
        self.mark('f4', True)
        self.far(sSpec, 1, self.pw_special, lambda: self.stage(V.DB, V.DA, True, 'w', 1))
        self.mark('f5')
        self.stage(V.DA, V.DB, True, 'tw', 0)
        self.mark('f6')
        D = V.DB
        for r in range(4): a('s_add_u32 %s, %s, 0x%x' % (sO[r], sEst, WS_U[1] + r*65536))
        rho = lambda jj3, jj1, jj2, c: 4*(2*jj3+jj1)+2*jj2+c
        for pl in range(2):
            for k in range(4):
                c, jj1 = k >> 1, k & 1
                P = V.DA+4*k
                for jj3 in range(2):
                    a(self.cvt(P+2*pl+jj3, D+16*pl+rho(jj3, jj1, 0, c), D+16*pl+rho(jj3, jj1, 1, c)))
                if pl: a('ds_write_b128 %s, %s offset:%d' % (v(V.X2w), vr(P, 4), c*64+jj1*1024))
        self.mark('f7'); self.mark('x2')
        a('s_waitcnt lgkmcnt(0)')
        self.mark('f8', True)
        a('s_barrier')
        for ti in range(4):
            for ii in range(2):
                a('ds_read_b64_tr_b16 %s, %s offset:%d' % (vr(O+4*ti+2*ii, 2), v(V.X2r), ii*512+(ti & 1)*1024+(ti >> 1)*8224))
        D = V.DA; P = V.DB
        for ti in range(4):
            a('s_waitcnt lgkmcnt(%d)' % (6-2*ti))
            a(self.mf16(D+4*ti, V.Bp, O+4*ti)); a(self.mf16(D+16+4*ti, V.Bp+4, O+4*ti))
        self.mark('f9')
        for q in range(4):
            cbb, sbb = q >> 1, q & 1
            for jj1 in range(2):
                for hf in range(2):
                    x = 4*(2*cbb+jj1)+2*sbb+hf
                    a(self.cvt(P+4*q+2*jj1+hf, D+x, D+16+x))
            a('buffer_store_dwordx4 %s, %s, %s, %s offen %s' % (vr(P+4*q, 4), v(V.Est), SWS, sO[q], self.o['st2']))
        self.mark('f10')

    def pw_special(self):
        a = self.a; T = V.T; O = V.O; C = V.DB; X = V.DA
        self.sigma_lane(T)
        a('v_lshrrev_b32 %s, 5, %s' % (v(T+1), v(V.lane)))
        a('v_lshlrev_b32 %s, 9, %s' % (v(T+1), v(T+1)))
        a('v_lshl_add_u32 %s, %s, 2, %s' % (v(T+2), v(T), v(T+1)))
        a('v_add_u32 %s, %d, %s' % (v(T+2), SCR, v(T+2)))
        a('v_add_u32 %s, 128, %s' % (v(T+3), v(T+2)))
        a('v_sub_u32 %s, 32, %s' % (v(T+4), v(T)))
        a('v_lshrrev_b32 %s, 5, %s' % (v(T+5), v(T+4)))
        a('v_and_b32 %s, 31, %s' % (v(T+4), v(T+4)))
        a('v_lshlrev_b32 %s, 2, %s' % (v(T+4), v(T+4)))
        a('v_lshl_add_u32 %s, %s, 8, %s' % (v(T+4), v(T+5), v(T+4)))
        a('v_sub_u32 %s, %s, %s' % (v(T+4), v(T+4), v(T+1)))
        a('v_add_u32 %s, %d, %s' % (v(T+4), SCR + 2*256, v(T+4)))
        a('v_add_u32 %s, 128, %s' % (v(T+5), v(T+4)))
        a('v_add_u32 %s, %d, %s' % (v(T+6), SCR_B, v(V.l16)))
        qs = lambda rho: sigma(8*(rho >> 2) + (rho & 3))
        for pl in range(2):
            for rho in range(0, 16, 2):
                a('ds_write2st64_b32 %s, %s, %s offset0:%d offset1:%d' % (v(T+2+pl), v(C+16*pl+rho), v(C+16*pl+rho+1), qs(rho), qs(rho+1)))
            a('ds_write_b32 %s, %s offset:%d' % (v(T+2+pl), v(C+16*pl), 32*256))
        t0, t1 = v(T+8), v(T+9)
        for half in range(2):
            for pl in range(2):
                for k in range(0, 8, 2):
                    r_ = 8*half+k
                    a('ds_read2st64_b32 %s, %s offset0:%d offset1:%d' % (vr(X+8*pl+k, 2), v(T+4+pl), 29-qs(r_), 29-qs(r_+1)))
                for k in range(2):
                    a('ds_read_b128 %s, %s offset:%d' % (vr(X+16+8*pl+4*k, 4), v(T+6), 1024*(4*pl+2*half+k)))
            a('s_waitcnt lgkmcnt(0)')
            for k in range(8):
                r_ = 8*half+k
                x, y = v(C+r_), v(C+16+r_); ar, ai = v(V.W+r_), v(V.W+16+r_)
                p, q_ = v(X+k), v(X+8+k); br, bi = v(X+16+k), v(X+24+k)
                ng, ps = ('', '-') if half else ('-', '')
                a('v_mul_f32 %s, %s, %s' % (t0, x, ar))
                a('v_mul_f32 %s, %s, %s' % (t1, y, ar))
                a('v_fma_f32 %s, %s%s, %s, %s' % (t0, ng, y, ai, t0))
                a('v_fma_f32 %s, %s%s, %s, %s' % (t1, ps, x, ai, t1))
                a('v_fmac_f32 %s, %s, %s' % (t0, p, br))
                a('v_fma_f32 %s, -%s, %s, %s' % (t1, q_, br, t1))
                a('v_fma_f32 %s, %s%s, %s, %s' % (t0, ps, q_, bi, t0))
                a('v_fma_f32 %s, %s%s, %s, %s' % (t1, ps, p, bi, t1))
                a(self.cvt(O+r_, T+9, T+8))
        for i in range(4): a(self.mf32(V.DA, i, 0, True)); a(self.mf32(V.DA, i, 1, True))

    def p3(self):
        a = self.a; O, L, D, P = V.O, V.L, V.DA, V.DB
        a('s_lshl4_add_u32 %s, %s, %s' % (sA, sW, sSB)); a('s_lshl1_add_u32 %s, %s, %s' % (sA, sA, sP))
        a('s_lshl4_add_u32 %s, %s, %s' % (sA, sA, sCB)); a('s_lshl_b32 %s, %s, 7' % (sO[0], sA))
        for r in range(1, 4): a('s_add_u32 %s, %s, 0x%x' % (sO[r], sO[0], r*524288))
        def normal():
            for i in range(4):
                a('s_waitcnt vmcnt(%d)' % (3-i))
                for sel in range(2):
                    for col in range(2): a('v_mov_b32 %s, %s' % (v(O+4*(2*sel+col)+i), v(L+4*i+2*col+sel)))
        def w0():
            for i in range(4):
                ts, eb = i >> 1, i & 1
                a('s_waitcnt vmcnt(%d)' % (3-i))
                for col in range(2):
                    for sg in range(2): a('v_mov_b32 %s, %s' % (v(O+4*(2*ts+col)+2*eb+sg), v(L+4*i+2*col+sg)))
        self.ifelse(sW, 0, w0, normal, True)
        self.stamp()
        for ti in range(4):
            a(self.mf16(D+4*ti, O+4*ti, V.M2+8*(ti >> 1))); a(self.mf16(D+16+4*ti, O+4*ti, V.M2+8*(ti >> 1)+4))
        for ti in range(4):
            for pl in range(2):
                for k in range(2):
                    x = D+16*pl+4*ti+2*k
                    a(self.cvt(P+4*ti+2*pl+k, x, x+1))
            a('ds_write_b128 %s, %s offset:%d' % (v(V.X3w1 if ti >> 1 else V.X3w0), vr(P+4*ti, 4), (ti & 1)*2048))
        a('s_waitcnt lgkmcnt(0)')
        a('s_barrier')
        for t in range(4):
            for ii in range(2):
                a('ds_read_b64_tr_b16 %s, %s offset:%d' % (vr(O+4*t+2*ii, 2), v(V.X3r), ii*512+t*1024))
        for t in range(4):
            a('s_waitcnt lgkmcnt(%d)' % (6-2*t))
            a(self.mf16(D+4*t, V.F16, O+4*t)); a(self.mf16(D+16+4*t, V.F16+4, O+4*t))
        for t in range(2):
            for r in range(4): a(self.cvt(P+4*r+t, D+16+4*t+r, D+4*t+r))
        for r in range(4):
            for t in (2, 3): a(self.cvt(P+4*r+t, D+16+4*t+r, D+4*t+r))
            a('buffer_store_dwordx4 %s, %s, %s, %s offen %s' % (vr(P+4*r, 4), v(V.Ooff), SOUT, sO[r], self.o['sto']))

    def ex_load(self, ex):
        a = self.a
        a('s_add_u32 %s, %s, 0x%x' % (sA, sEld, WS_U[ex]))
        for q in range(4):
            d = V.L+12*(q >> 1)+4*(q & 1) if ex == 0 else V.L+4*q
            a('buffer_load_dwordx4 %s, %s, %s, %s offen offset:%d %s' % (vr(d, 4), v(V.Eld), SWS, sA, 256*q, self.o['ld1' if ex == 0 else 'ld2']))

    def build(self):
        a = self.a; o = self.o
        name = NAME + '_kernel'
        a.raw('.globl %s\n.p2align 12\n.p2align 8\n.type %s,@function\n%s:' % (name, name, name))
        end = self.label('end')
        self.prologue(end)
        def others():
            if o.get('kfirst'): a('s_waitcnt lgkmcnt(0)'); self.mark('karg0')
            self.touch(0)
            self.mark('touched')
            a('s_waitcnt lgkmcnt(0)')
            self.mark('karg')
            l = self.label('hold')
            a('s_cmp_lt_u32 %s, 8' % sCh); a('s_cbranch_scc1 %s' % l)
            self.x_issue()
            if o['pre']: self.cond(sW, PW, lambda: a('s_load_dword s95, s[20:21], 0x80'))
            a(l+':')
        self.ifelse(sCh, 0, self.probe, others, True)
        self.srds0(); self.addrs1()
        l = self.label('held')
        a('s_sub_u32 %s, %s, 1' % (sA, sCh)); a('s_cmp_ge_u32 %s, 7' % sA); a('s_cbranch_scc1 %s' % l)
        self.x_issue()
        a(l+':')
        self.gen_F16()
        self.clear_done()
        self.gen_M2(); self.ex_addrs()
        if o['touch']: self.cond(sT, 0, lambda: self.touch(1))
        full = o['full']
        if full:
            self.srds(); self.calc_k0(); self.coop_gen(); self.gen_B(); self.addrs2(); self.flag_addrs()
        if o['spos'] == 'early': self.cond(sW, PW, self.side_load)
        self.mark('w1')
        self.p1()
        self.stamp()
        nP = {'p2a': 2, 'q2a': 1}.get(o['wpos'], 0)
        if full:
            self.side_apply(); a('s_mov_b32 %s, 1' % sInc)
            self.coop_read(); self.gen_M3()
            for i in range(nP): self.w_dma1(i)
            self.addrs3()
        else:
            self.flag_addrs(); self.side_apply(); self.srds(); self.calc_k0()
            a('s_mov_b32 %s, 1' % sInc)
            self.coop_gen(); self.coop_post()
            for i in range(nP): self.w_dma1(i)
        a('s_waitcnt vmcnt(%d)' % nP)
        self.stamp()
        self.arrive()
        if full: self.poll(0, lambda: (self.w_edge_load(), self.w_special()))
        else: self.poll(0, lambda: (self.w_edge_load(), self.gen_B(), self.w_special()))
        self.stamp()
        self.ex_load(0)
        self.p2na = 0
        if o['wpos'] in ('bar', 'barh'):
            a('s_barrier'); self.p2na = 4 if o['wpos'] == 'bar' else 2
            for i in range(self.p2na): self.w_dma1(i)
        elif not full: self.coop_wait()
        if not full: self.coop_read(); self.addrs2()
        a('s_waitcnt vmcnt(%d)' % (4+self.p2na))
        self.w_edge()
        a('s_mov_b32 %s, 0x10000' % sInc)
        if o.get('da') == 'glob': self.cond(sId, 0, lambda: a('s_atomic_swap s56, s[20:21], 0x40'))
        self.p2()
        self.stamp()
        if not full: self.gen_M3()
        self.mark('w3a')
        a('s_waitcnt vmcnt(0)')
        self.stamp()
        self.arrive()
        self.poll(1, None if full else self.addrs3)
        if o['ts']: a('s_mov_b32 s%d, %s' % (sTS+26, sCnt))
        self.stamp()
        self.ex_load(1)
        self.p3()
        self.diag_end()
        a(end+':'); a('s_endpgm')
        t, self.tail = self.tail, []
        for f in t: f()
        if o['touch']: self.insert_stubs()
        hdr = ('; GFNet spectral filter, two heads: 2-D FFT as bf16 MFMA DFT stages in one persistent launch (generated)\n'
               '; @launch grid=(256,1,1) block=(512,1,1) lds=%d\n' % LDS_TOTAL)
        kd = '''.section .rodata,"a"
.p2align 6
.amdhsa_kernel %s
  .amdhsa_next_free_vgpr %d
  .amdhsa_next_free_sgpr 102
  .amdhsa_accum_offset %d
  .amdhsa_group_segment_fixed_size 0
  .amdhsa_kernarg_size 72
  .amdhsa_user_sgpr_count 2
  .amdhsa_user_sgpr_kernarg_segment_ptr 1
  .amdhsa_system_sgpr_workgroup_id_x 1
.end_amdhsa_kernel
''' % (name, NVGPR, (NVGPR+3)//4*4)
        return hdr + '.amdgcn_target "amdgcn-amd-amdhsa--gfx950"\n.text\n' + a.text() + kd

    def insert_stubs(self):
        a = self.a
        txt = '.amdgcn_target "amdgcn-amd-amdhsa--gfx950"\n.text\n' + a.text() + ''.join('stub_%d:\n' % k for k in range(16)) + 's_endpgm\n'
        open('pass1.s', 'w').write(txt)
        subprocess.check_call(['clang', '-x', 'assembler', '-target', 'amdgcn-amd-amdhsa', '-mcpu=gfx950', '-c', 'pass1.s', '-o', 'pass1.o'])
        dis = subprocess.check_output(['llvm-objdump', '-d', '--mcpu=gfx950', 'pass1.o']).decode()
        addrs = [int(m.group(1), 16) for m in re.finditer(r'// ([0-9A-F]{12}):', dis)]
        real = [i for i, x in enumerate(a.ins) if x.kind != 'none']
        assert len(addrs) == len(real) + 1, (len(addrs), len(real))
        size = {real[k]: addrs[k+1] - addrs[k] for k in range(len(real))}
        pos = ENTRY_OFF; nxt = 2048
        out = []; k = 0; prev = None; ez = False
        for i, x in enumerate(a.ins):
            if i in size:
                if prev is not None and prev.text.strip() == 's_mov_b64 exec, 0': ez = True
                if prev is not None and prev.text.strip() == 's_mov_b64 exec, -1': ez = False
                if pos >= nxt and k < 16 and not ez:
                    out.append(Ins('stub_%d:' % k)); out.append(Ins('s_cbranch_execz ret_%d' % (k >> 3)))
                    pos += 4; k += 1; nxt += 1024
                pos += size[i]; prev = x
                if x.op == 's_endpgm': self.hot_end = pos
            out.append(x)
        self.code_end = pos
        while k < 16:
            out.append(Ins('stub_%d:' % k)); out.append(Ins('s_branch ret_%d' % (k >> 3))); k += 1
        a.ins = out

if __name__ == '__main__':
    out = sys.argv[1]; opt = {}
    for kv in sys.argv[2:]:
        k, x = kv.split('=')
        opt[k] = {'True': True, 'False': False}.get(x, x.replace('+', ' '))
    g = Gen(**opt)
    s = g.build()
    assert g.a.verify() == 0
    open(out, 'w').write(s)
    print(out, 'vgprs', NVGPR, 'lds', LDS_TOTAL, 'nops', g.a.nops, 'lines', len(g.a.ins), 'hot end 0x%x code end 0x%x' % (getattr(g, 'hot_end', 0), getattr(g, 'code_end', 0)))
```

```python
import sys, struct, math, subprocess, re
from asmlib import Asm, Ins

NAME = 'concat_heads__spectral_gfnet__spectral_gfnet__prompt'
def f2u(x): return struct.unpack('<I', struct.pack('<f', x))[0]
def lit(x): return '0x%08x' % f2u(x)
def sigma(m): return (m & 1) | ((m >> 1) & 1) << 3 | ((m >> 2) & 1) << 1 | ((m >> 3) & 1) << 2 | (m & 16)

SC = 2.0**-22
SPIN_MAX = 0x4000
ENTRY_OFF = 0x300
PW = int([x for x in sys.argv if x.startswith('pw=')][0][3:]) if any(x.startswith('pw=') for x in sys.argv) else 1
R0 = 0
R1 = 33024
WL = 66048
SCR = WL + 8*4*1056
SCR_B = SCR + 36*256
TABL = SCR_B + 8192
CNT = TABL + 16384
LDS_TOTAL = CNT + 64
WS_U = (0, 8 << 20)
WS_FLAG = 16 << 20
WS_PROBE = 17 << 20
WS_TS = 72 << 20
class V: pass
_n = [0]
def alloc(n, align=1):
    b = (_n[0] + align - 1)//align*align
    _n[0] = b + n
    return b
V.tid = alloc(1); V.lane = alloc(1)
for nm in 'g n l16 TR Xoff Est Eld X0w X0r0 X0r1 X1w X1r X2w X2r WP WM zero cnt tmp'.split(): setattr(V, nm, alloc(1))
V.Ooff, V.X3w0, V.X3w1, V.X3r = V.Xoff, V.X0w, V.X0r0, V.X0r1
V.T = alloc(10)
V.O = alloc(16, 4)
V.DA = alloc(32, 4); V.DB = alloc(32, 4); V.L = V.DB
V.F16 = alloc(8, 4); V.M2 = alloc(16, 4)
V.F32 = alloc(32, 4); V.TW = alloc(32, 4); V.W = alloc(32, 4)
V.B = alloc(12, 4); V.Bp = alloc(8, 4); V.WF = alloc(4)
NVGPR = _n[0]
assert NVGPR <= 256, NVGPR
def v(i): return 'v%d' % i
def vr(i, n): return 'v[%d:%d]' % (i, i+n-1)
SX, SWR, SWI, SOUT, SDBG, SWS = 's[4:7]', 's[8:11]', 's[12:15]', 's[16:19]', 's[20:23]', 's[24:27]'
sP, sT, sW, sSB, sCB, sK0, sKP, sKM, sWp, sRv = ['s%d' % i for i in range(30, 40)]
sA, sB, sC, sD, sE, sF, sEst, sEld, sCnt, sSpec, sInc, sWL = ['s%d' % i for i in range(40, 52)]
sO = ['s52', 's53', 's54', 's55']
sTS = 56
sDP, sDM, sZ, sCh, sId = 's96', 's97', 's98', 's99', 's100'

class Gen:
    def __init__(self, **opt):
        self.o = dict(ldx='', ldw='', st1='sc1', st2='sc1', sto='nt', ld1='sc1', ld2='sc1', ts=False,
                      prio=True, nb='4', pnop='15', force='', wpos='postX1', touch=True, w1n='9', spos='early', qw='1', qg='1', zg='3', xm='2', pb='17', wsoff='0', pld='', pex='1', merge=True, full=False, e1=False, pre=True, split=False, map='2', rep='1', slp='', sthr='')
        self.o.update(opt)
        self.a = Asm(); self.lab = 0; self.nts = 0; self.sid = -1; self.tail = []
    def label(self, p='L'):
        self.lab += 1
        return '%s_%d' % (p, self.lab)

    def mark(self, nm, drain=False):
        o = self.o; hit = False
        if o.get('clk') and nm in ('w1', 'g1a', 'x1', 'x2', 'w3a', 'end'):
            for op in ('s_memrealtime', 's_memtime'):
                self.a('%s s[%d:%d]' % (op, sTS+2*self.nts, sTS+2*self.nts+1)); self.nts += 1
            self.a('s_waitcnt lgkmcnt(0)')
        if o.get('fine') and nm[0] == 'f':
            self.a('s_memtime s[%d:%d]' % (sTS+2*self.nts, sTS+2*self.nts+1)); self.nts += 1; hit = True
        for key, reg in (('da', 58), ('db', 60)):
            if o.get(key) == nm:
                self.a('%s s[%d:%d]' % ('s_memtime' if 'cyc' in o else 's_memrealtime', reg, reg+1)); hit = True
        if hit and drain: self.a('s_waitcnt lgkmcnt(0)')
    def stamp(self):
        self.sid += 1
        self.mark('s%d' % self.sid)
        if not self.o['ts'] or self.o.get('clk') or self.o.get('fine'): return
        self.a('s_memrealtime s[%d:%d]' % (sTS+2*self.nts, sTS+2*self.nts+1)); self.nts += 1
    def diag_end(self):
        a = self.a; o = self.o
        self.mark('end')
        if not (o['ts'] or 'da' in o): return
        self.stamp(); a('s_waitcnt vmcnt(0)'); self.stamp()
        a('s_waitcnt lgkmcnt(0)')
        if 'da' in o:
            lp = self.label('dg')
            if o['da'] == 'glob':
                a('buffer_load_dword %s, %s, %s, 0 offen offset:64 sc1' % (v(V.tmp), v(V.zero), SDBG))
                a('s_waitcnt vmcnt(0)')
                a('v_readfirstlane_b32 s58, %s' % v(V.tmp)); a('s_mov_b32 s56, s58')
            a('s_sub_u32 %s, s60, s58' % sA)
            if 'db0' in o: a('s_add_u32 %s, %s, 250' % (sA, sA)); a('s_lshl_b32 %s, %s, 1' % (sA, sA))
            a('s_lshr_b32 %s, %s, 2' % (sA, sA) if 'cyc' in o else 's_lshl_b32 %s, %s, 2' % (sA, sA))
            for key, reg in (('dp', sP), ('dt', sT), ('db0', sId)):
                if key in o: a('s_cmp_eq_u32 %s, %s' % (reg, o[key])); a('s_cselect_b32 %s, %s, 0' % (sA, sA))
            a('s_min_u32 %s, %s, 9000' % (sA, sA))
            if 'enc' in o:
                a('s_and_b32 %s, s62, 7' % sB); a('s_mul_i32 %s, %s, 10000' % (sB, sB)); a('s_add_u32 %s, %s, %s' % (sA, sA, sB))
                a('s_bfe_u32 %s, s62, 0x30008' % sB); a('s_mul_i32 %s, %s, 100000' % (sB, sB)); a('s_add_u32 %s, %s, %s' % (sA, sA, sB))
            a('s_add_u32 %s, %s, 3000' % (sA, sA))
            a(lp+':')
            a('s_memrealtime s[28:29]'); a('s_waitcnt lgkmcnt(0)')
            a('s_sub_u32 %s, s28, s56' % sB); a('s_cmp_lt_u32 %s, %s' % (sB, sA)); a('s_cbranch_scc1 %s' % lp)
            return
        a('s_lshl_b32 %s, %s, 7' % (sA, sId)); a('s_add_u32 %s, %s, 0x%x' % (sA, sA, WS_TS))
        a('s_mov_b64 exec, 1')
        for i in range(14):
            a('v_mov_b32 %s, s%d' % (v(V.T), sTS+2*i))
            a('buffer_store_dword %s, %s, %s, %s offen offset:%d' % (v(V.T), v(V.zero), SWS, sA, 4*i))
            a('s_nop 1')

    def cond(self, reg, val, f):
        a = self.a; l = self.label('c')
        a('s_cmp_lg_u32 %s, %d' % (reg, val)); a('s_cbranch_scc1 %s' % l)
        f(); a(l+':')
    def ifelse(self, reg, val, feq, fne, eq_first=False):
        a = self.a; l0, l1 = self.label('ie'), self.label('iend')
        if eq_first:
            a('s_cmp_lg_u32 %s, %d' % (reg, val)); a('s_cbranch_scc1 %s' % l0)
            feq(); a('s_branch %s' % l1); a(l0+':'); fne()
        else:
            a('s_cmp_eq_u32 %s, %d' % (reg, val)); a('s_cbranch_scc1 %s' % l0)
            fne(); a('s_branch %s' % l1); a(l0+':'); feq()
        a(l1+':')
    def far(self, reg, val, feq, fne=None):
        a = self.a; l0, l1 = self.label('far'), self.label('back')
        a('s_cmp_eq_u32 %s, %d' % (reg, val)); a('s_cbranch_scc1 %s' % l0)
        if fne: fne()
        a(l1+':')
        def t():
            a(l0+':'); feq(); a('s_branch %s' % l1)
        self.tail.append(t)
    def touch(self, rnd, half=False):
        a = self.a
        a('s_mov_b64 exec, 0')
        if half:
            for k in range(3):
                a('s_cmp_eq_u32 %s, %d' % (sW, 4+k)); a('s_cbranch_scc1 stub_%d' % (2*k))
            a('s_branch stub_6')
        else:
            for k in range(7):
                a('s_cmp_eq_u32 %s, %d' % (sW, k)); a('s_cbranch_scc1 stub_%d' % (8*rnd+k))
            a('s_branch stub_%d' % (8*rnd+7))
        a('ret_%d:' % rnd)
        a('s_mov_b64 exec, -1')

    def prologue(self, end):
        a = self.a; T = V.T
        a('s_cmp_ge_u32 s2, 0x100')
        a('s_cbranch_scc1 %s' % end)
        if 'da' in self.o: a('s_memrealtime s[56:57]'); self.mark('start')
        a('s_bfe_u32 %s, s2, 0x10002' % sP)
        a('s_mul_i32 s3, %s, 24' % sP)
        a('s_load_dwordx2 s[4:5], s[0:1], s3')
        a('s_load_dwordx2 s[24:25], s[0:1], 0x40')
        a('s_load_dwordx2 s[20:21], s[0:1], 0x38')
        a('s_load_dwordx2 s[8:9], s[0:1], s3 offset:8')
        a('s_load_dwordx2 s[12:13], s[0:1], s3 offset:16')
        a('s_load_dwordx2 s[16:17], s[0:1], 0x30')
        self.stamp()
        a('v_lshrrev_b32 %s, 6, v0' % v(T))
        a('v_and_b32 %s, 63, v0' % v(V.lane))
        a('v_readfirstlane_b32 %s, %s' % (sW, v(T)))
        mp = self.o['map']
        a('s_and_b32 %s, s2, 3' % sA)
        if int(self.o['xm']): a('s_xor_b32 %s, %s, %s' % (sA, sA, self.o['xm']))
        if mp in ('0', '1'):
            a('s_bfe_u32 %s, s2, 0x10003' % sB)
            if mp == '0': a('s_lshl1_add_u32 %s, %s, %s' % (sA, sA, sB))
            else: a('s_lshl2_add_u32 %s, %s, %s' % (sA, sB, sA))
            a('s_lshr_b32 %s, s2, 4' % sB)
            a('s_lshl4_add_u32 %s, %s, %s' % (sT, sA, sB))
        else:
            a('s_lshr_b32 %s, s2, 3' % sB)
            a('s_lshl2_add_u32 %s, %s, %s' % (sT, sB, sA))
            a('s_lshr_b32 %s, %s, 4' % (sA, sT)); a('s_and_b32 %s, %s, 15' % (sB, sT))
        a('s_bfe_u32 %s, %s, 0x10001' % (sC, sB))
        a('s_lshl1_add_u32 %s, %s, %s' % (sCB, sA, sC))
        a('s_lshr_b32 %s, %s, 2' % (sSB, sB))
        a('s_and_b32 %s, %s, 1' % (sC, sB))
        a('s_lshl1_add_u32 %s, %s, %s' % (sSB, sSB, sC))
        a('s_mov_b32 s6, 0x400000'); a('s_mov_b32 s7, 0x20000')
        a('v_lshrrev_b32 %s, 4, %s' % (v(V.g), v(V.lane)))
        a('v_lshlrev_b32 %s, 4, %s' % (v(V.l16), v(V.lane)))
        a('v_and_b32 %s, 8, v0' % v(T))
        a('v_lshlrev_b32 %s, 11, %s' % (v(T), v(T)))
        a('v_lshl_add_u32 %s, %s, 20, %s' % (v(T), v(V.g), v(T)))
        a('v_and_b32 %s, 0x70, %s' % (v(T+1), v(V.l16)))
        a('v_add_u32 %s, %s, %s' % (v(V.Xoff), v(T), v(T+1)))
        a('s_lshl4_add_u32 %s, %s, %s' % (sA, sW, sSB))
        a('s_lshl4_add_u32 %s, %s, %s' % (sA, sA, sCB))
        a('s_lshl_b32 %s, %s, 7' % (sO[0], sA))
        for r in range(1, 4): a('s_add_u32 %s, %s, 0x%x' % (sO[r], sO[0], r*262144))
        a('s_lshl3_add_u32 %s, s2, %s' % (sId, sW))
        a('s_xor_b32 %s, %s, %d' % (sCh, sId, 8*int(self.o['qg'])+int(self.o['qw']))); a('s_and_b32 %s, %s, 0xffffff7f' % (sCh, sCh))
    def srds(self):
        a = self.a
        a('s_mov_b32 s10, 2101248'); a('s_mov_b32 s11, 0x20000')
        a('s_mov_b32 s14, 2101248'); a('s_mov_b32 s15, 0x20000')
        a('s_mov_b32 s18, 0x800000'); a('s_mov_b32 s19, 0x20000')
    def srds0(self):
        a = self.a
        a('s_mov_b32 s22, 256'); a('s_mov_b32 s23, 0x20000')
        a('s_mov_b32 s26, 0x%x' % ((80 if self.o['ts'] else 18) << 20)); a('s_mov_b32 s27, 0x20000')
        a('v_and_b32 %s, 15, %s' % (v(V.n), v(V.lane)))
        a('v_mov_b32 %s, 0' % v(V.zero)); a('v_mov_b32 %s, %d' % (v(V.cnt), CNT))

    def x_issue(self):
        for r in range(4):
            self.a('buffer_load_dwordx4 %s, %s, %s, %s offen %s' % (vr(V.L+4*r, 4), v(V.Xoff), SX, sO[r], self.o['ldx']))
    def probe(self):
        a = self.a; T = V.T; NB = int(self.o['nb']); ld = self.o['pld']
        a('s_bfe_u32 %s, s2, 0x10004' % sC)
        a('s_mul_i32 %s, %s, 0x12000' % (sA, sC)); a('s_add_u32 %s, %s, 0x%x' % (sA, sA, int(self.o['pb']) << 20))
        a('s_xor_b32 %s, %s, 0x2000' % (sB, sA))
        a('s_lshl_b32 %s, %s, 16' % (sD, sC)); a('s_add_u32 %s, %s, 0x%x' % (sD, sD, WS_FLAG))
        a('s_mov_b32 s26, 0x%x' % (18 << 20)); a('s_mov_b32 s27, 0x20000')
        a('s_lshl_b32 %s, %s, 3' % (sC, sC))
        a('v_mul_u32_u24 %s, 0x5080, %s' % (v(T), v(V.lane)))
        a('v_lshlrev_b32 %s, 10, %s' % (v(T+1), v(V.lane)))
        a('v_mov_b32 %s, 0' % v(T+2))
        if not ld:
            for k in range(2*NB): a('v_mov_b32 %s, 0' % v(V.DA+k))
        a('s_mov_b64 exec, %s' % self.o['pex'])
        if 'da' in self.o: a('s_waitcnt lgkmcnt(0)'); a('s_mov_b32 s60, s56'); a('s_mov_b32 s58, s56')
        a('s_waitcnt lgkmcnt(0)')
        for side, base in enumerate((sA, sB)):
            for k in range(NB):
                if ld: a('buffer_load_dword %s, %s, %s, %s offen offset:%d %s' % (v(V.DA+side*NB+k), v(T), SWS, base, k*0x300, ld))
                else: a('buffer_atomic_add %s, %s, %s, %s offen offset:%d sc0 sc1' % (v(V.DA+side*NB+k), v(T), SWS, base, k*0x300))
        a('s_mov_b64 exec, -1')
        a('buffer_store_dword %s, %s, %s, %s offen sc1' % (v(T+2), v(T+1), SWS, sD))
        if self.o['pre']: a('s_load_dword s95, s[20:21], 0x80')
        self.x_issue()
        a('s_waitcnt vmcnt(%d)' % (NB+5))
        for x in self.o['pnop'].split(','): a('s_nop %s' % x)
        a('s_getreg_b32 %s, hwreg(HW_REG_IB_STS, 0, 4)' % sA)
        a('s_or_b32 %s, %s, 16' % (sA, sA)); a('s_lshl_b32 s94, %s, %s' % (sA, sC))
        if self.o['merge']: a('s_waitcnt vmcnt(4)')
        a('s_atomic_or s94, s[20:21], 0x80')
        self.mark('pub')
    def clear_done(self):
        a = self.a
        if self.o['merge']: return
        def f():
            a('s_mov_b32 s93, 1'); a('s_waitcnt vmcnt(4)')
            a('s_atomic_add s93, s[20:21], 0x0')
        self.cond(sCh, 0, f)
    def ready_check(self):
        a = self.a; l0, l1 = self.label('rdy'), self.label('rdyok')
        a('s_cmp_ge_u32 %s, 2' % sRv)
        a('s_cbranch_scc1 %s' % l1)
        a('s_mov_b32 %s, 0' % sCnt)
        a(l0+':')
        a('buffer_load_dword %s, %s, %s, 0 offen sc1' % (v(V.tmp), v(V.zero), SDBG))
        a('s_add_u32 %s, %s, 1' % (sCnt, sCnt))
        a('s_cmp_gt_u32 %s, 0x%x' % (sCnt, SPIN_MAX))
        a('s_waitcnt vmcnt(0)')
        a('s_cbranch_scc1 %s' % l1)
        a('v_cmp_gt_u32 vcc, 2, %s' % v(V.tmp))
        a('s_cbranch_vccnz %s' % l0)
        a(l1+':')
    def side_load(self):
        self.a('buffer_load_dword %s, %s, %s, 0 offen offset:128 sc1' % (v(V.tmp), v(V.zero), SDBG))
    def side_wait(self):
        a = self.a
        def f():
            lp, ok = self.label('sw'), self.label('swok')
            a('s_mov_b32 %s, 0' % sCnt)
            a(lp+':')
            a('s_waitcnt vmcnt(0)')
            a('v_and_b32 %s, 0x1010, %s' % (v(V.T), v(V.tmp)))
            a('v_cmp_eq_u32 vcc, 0x1010, %s' % v(V.T))
            a('s_cbranch_vccnz %s' % ok)
            self.side_load()
            a('s_add_u32 %s, %s, 1' % (sCnt, sCnt))
            a('s_cmp_lt_u32 %s, 0x%x' % (sCnt, SPIN_MAX))
            a('s_cbranch_scc1 %s' % lp)
            a('s_waitcnt vmcnt(0)')
            a(ok+':')
            a('ds_write2_b32 %s, %s, %s offset0:0 offset1:1' % (v(V.cnt), v(V.tmp), v(V.zero)))
        self.cond(sW, PW, f)
    def side_use(self):
        a = self.a
        a('v_readfirstlane_b32 %s, %s' % (sA, v(V.tmp)))
        if self.o['ts']: a('s_mov_b32 s%d, %s' % (sTS+24, sA))
        if 'enc' in self.o: a('s_mov_b32 s62, %s' % sA)
        a('s_and_b32 %s, %s, 15' % (sB, sA)); a('s_bfe_u32 %s, %s, 0x40008' % (sA, sA))
        a('s_cmp_gt_u32 %s, %s' % (sA, sB))
        a('s_cselect_b32 %s, 0x2000, 0' % sCh)
        if self.o['force'] != '': a('s_mov_b32 %s, %d' % (sCh, int(self.o['force']) << 13))
        a('s_xor_b32 %s, %s, %s' % (sEst, sEst, sCh))
    def flag_addrs(self):
        a = self.a
        a('s_lshr_b32 %s, %s, 4' % (sB, sT))
        a('s_lshl_b32 %s, %s, 13' % (sA, sP)); a('s_add_u32 %s, %s, 0x%x' % (sA, sA, WS_FLAG))
        for dst, wp, gr in ((sF, sW, sB), (sE, sB, sW)):
            a('s_lshl4_add_u32 %s, %s, %s' % (sC, wp, gr)); a('s_lshl_b32 %s, %s, 10' % (sC, sC))
            a('s_add_u32 %s, %s, %s' % (dst, sC, sA))
        R = int(self.o['rep'])
        if R > 1:
            a('s_and_b32 %s, %s, %d' % (sC, sT, R-1)); a('s_lshl_b32 %s, %s, 8' % (sC, sC)); a('s_add_u32 %s, %s, %s' % (sE, sE, sC))
    def side_apply(self):
        for r in (sF, sE, sEld): self.a('s_xor_b32 %s, %s, %s' % (r, r, sCh))
    def arrive(self):
        for r in range(int(self.o['rep'])): self.a('s_atomic_add %s, s[24:25], %s offset:%d' % (sInc, sF, 256*r))
    def poll(self, ex, under=None):
        a = self.a; lp, ok = self.label('poll'), self.label('pollok')
        if under:
            a('s_mov_b32 %s, 0' % sRv)
            a('s_atomic_add %s, s[24:25], %s glc' % (sRv, sE))
            under()
            a('s_waitcnt lgkmcnt(0)')
            a('s_bitcmp1_b32 %s, %d' % (sRv, 4+16*ex))
            a('s_cbranch_scc1 %s' % ok)
        a('s_mov_b32 %s, 0' % sCnt)
        a(lp+':')
        a('s_mov_b32 %s, 0' % sRv)
        a('s_atomic_add %s, s[24:25], %s glc' % (sRv, sE))
        a('s_add_u32 %s, %s, 1' % (sCnt, sCnt))
        a('s_cmp_gt_u32 %s, 0x%x' % (sCnt, SPIN_MAX))
        a('s_waitcnt lgkmcnt(0)')
        a('s_cbranch_scc1 %s' % ok)
        if self.o['slp']:
            a('s_bitcmp1_b32 %s, %d' % (sRv, 4+16*ex))
            a('s_cbranch_scc1 %s' % ok)
            if self.o['sthr']:
                a('s_bfe_u32 %s, %s, 0x%x' % (sA, sRv, 0x50000+16*ex))
                a('s_cmp_ge_u32 %s, %s' % (sA, self.o['sthr'])); a('s_cbranch_scc1 %s' % lp)
            a('s_sleep %s' % self.o['slp'])
            a('s_branch %s' % lp)
        else:
            a('s_bitcmp0_b32 %s, %d' % (sRv, 4+16*ex))
            a('s_cbranch_scc1 %s' % lp)
        a(ok+':')
    def ex_addrs(self):
        a = self.a; T = V.T
        a('s_lshl_b32 %s, %s, 4' % (sB, sW)); a('s_xor_b32 %s, %s, %s' % (sB, sB, sT)); a('s_lshl_b32 %s, %s, 8' % (sB, sB))
        a('v_lshlrev_b32 %s, 4, %s' % (v(T), v(V.n)))
        a('v_lshl_add_u32 %s, %s, 10, %s' % (v(T), v(V.g), v(T)))
        a('v_xor_b32 %s, %s, %s' % (v(T), sB, v(T)))
        a('v_and_b32 %s, 0x6000, %s' % (v(T+1), v(T)))
        a('v_add_u32 %s, %s, %s' % (v(T), v(T), v(T+1)))
        a('v_lshl_add_u32 %s, %s, 18, %s' % (v(V.Est), v(V.g), v(T)))
        a('v_and_b32 %s, 0xdcff, %s' % (v(V.Eld), v(T)))
        a('s_bfe_u32 %s, %s, 0x10001' % (sA, sW)); a('s_xor_b32 %s, %s, %s' % (sA, sA, sP))
        a('s_bfe_u32 %s, %s, 0x10005' % (sC, sT)); a('s_xor_b32 %s, %s, %s' % (sC, sC, sP))
        a('s_lshl_b32 %s, %s, 7' % (sEst, sW)); a('s_add_u32 %s, %s, %s' % (sEst, sEst, sA)); a('s_lshl_b32 %s, %s, 13' % (sEst, sEst))
        a('s_lshl3_add_u32 %s, %s, %s' % (sEld, sT, sC)); a('s_lshl_b32 %s, %s, 13' % (sEld, sEld))

    def trig(self, x, re, im, conj_re=None, conj_im=None):
        a = self.a; c, s = V.T+8, V.T+9
        a('v_cos_f32 %s, %s' % (v(c), v(x)))
        a('v_sin_f32 %s, %s' % (v(s), v(x)))
        if getattr(self, 'fill', None): self.fill(); self.fill = None
        a('v_cvt_pk_bf16_f32 %s, %s, %s' % (v(re), v(c), v(s)))
        a('v_cvt_pk_bf16_f32 %s, -%s, %s' % (v(im), v(s), v(c)))
        if conj_re is not None:
            a('v_xor_b32 %s, 0x80000000, %s' % (v(conj_re), v(re)))
            a('v_xor_b32 %s, 0x8000, %s' % (v(conj_im), v(im)))
    def ladder(self, x, step, regs):
        a = self.a
        for k, r in enumerate(regs):
            if k < len(regs)-1: self.fill = lambda: a('v_add_f32 %s, %s, %s' % (v(x), v(x), v(step)))
            self.trig(x, *r)
    def gen_F16(self):
        a = self.a; T = V.T
        a('v_cvt_f32_u32 %s, %s' % (v(T), v(V.n)))
        a('v_cvt_f32_u32 %s, %s' % (v(T+1), v(V.g)))
        a('v_mul_f32 %s, %s, %s' % (v(T), lit(1/16), v(T)))
        a('v_mul_f32 %s, 4.0, %s' % (v(T+1), v(T+1)))
        a('v_mul_f32 %s, %s, %s' % (v(T+2), v(T), v(T+1)))
        self.ladder(T+2, T, [(V.F16+r, V.F16+4+r) for r in range(4)])
    def gen_M2(self):
        a = self.a; T = V.T
        def normal():
            a('v_cvt_f32_u32 %s, %s' % (v(T+2), sW))
            a('v_fmac_f32 %s, %s, %s' % (v(T), lit(1/256), v(T+2)))
            a('v_mul_f32 %s, %s, %s' % (v(T+2), v(T), v(T+1)))
            self.ladder(T+2, T, [(V.M2+r, V.M2+4+r, V.M2+8+r, V.M2+12+r) for r in range(4)])
        def w0():
            a('v_lshrrev_b32 %s, 1, %s' % (v(T), v(V.n)))
            a('v_cvt_f32_u32 %s, %s' % (v(T), v(T)))
            a('v_lshlrev_b32 %s, 31, %s' % (v(T+3), v(V.n)))
            a('v_add_f32 %s, 0.5, %s' % (v(T+4), v(T)))
            a('v_xor_b32 %s, %s, %s' % (v(T+3), lit(1/16), v(T+3)))
            a('v_cmp_ne_u32 vcc, 1, %s' % v(V.n))
            a('v_mul_f32 %s, %s, %s' % (v(T), v(T), v(T+3)))
            a('v_mul_f32 %s, %s, %s' % (v(T+4), v(T+4), v(T+3)))
            a('v_cndmask_b32 %s, 0.5, %s, vcc' % (v(T), v(T)))
            for ts in range(2):
                d = T+4*ts
                a('v_mul_f32 %s, %s, %s' % (v(T+2), v(d), v(T+1)))
                self.ladder(T+2, d, [(V.M2+8*ts+r, V.M2+8*ts+4+r) for r in range(4)])
        self.ifelse(sW, 0, w0, normal)
    def gen_M3(self):
        a = self.a; T = V.T
        a('v_cvt_f32_u32 %s, %s' % (v(T), v(V.n)))
        a('v_mul_f32 %s, %s, %s' % (v(T+1), lit(1/256), v(T)))
        a('v_mul_f32 %s, %s, %s' % (v(T), lit(1/16), v(T)))
        def normal():
            a('v_lshl_add_u32 %s, %s, 6, %s' % (v(T+2), v(V.g), sW))
            a('v_cvt_f32_u32 %s, %s' % (v(T+2), v(T+2)))
            a('v_mul_f32 %s, %s, %s' % (v(T+2), v(T+2), v(T+1)))
            self.ladder(T+2, T, [(V.M2+r, V.M2+4+r, V.M2+8+r, V.M2+12+r) for r in range(4)])
        def w0():
            a('v_lshlrev_b32 %s, 5, %s' % (v(T+2), v(V.g)))
            a('v_cvt_f32_u32 %s, %s' % (v(T+2), v(T+2)))
            a('v_mul_f32 %s, 0.5, %s' % (v(T), v(T)))
            a('v_mul_f32 %s, %s, %s' % (v(T+2), v(T+2), v(T+1)))
            regs = []
            for k in range(4):
                b = V.M2+8*(k & 1)+2*(k >> 1)
                regs.append((b, b+4, b+1, b+5))
            self.ladder(T+2, T, regs)
            a('s_mov_b64 exec, 0xffff')
            a('v_lshlrev_b32 %s, 15, %s' % (v(T+2), v(V.n)))
            a('v_and_b32 %s, 0x8000, %s' % (v(T+2), v(T+2)))
            a('v_or_b32 %s, 0x3f80, %s' % (v(V.M2+1), v(T+2)))
            a('v_lshlrev_b32 %s, 16, %s' % (v(V.M2+5), v(V.M2+1)))
            a('s_mov_b64 exec, -1')
        self.ifelse(sW, 0, w0, normal)
    def sigma_lane(self, dst):
        a = self.a; t = V.T+7
        a('v_and_b32 %s, 17, %s' % (v(dst), v(V.lane)))
        a('v_bfe_u32 %s, %s, 2, 2' % (v(t), v(V.lane)))
        a('v_lshl_add_u32 %s, %s, 1, %s' % (v(dst), v(t), v(dst)))
        a('v_and_b32 %s, 2, %s' % (v(t), v(V.lane)))
        a('v_lshl_add_u32 %s, %s, 2, %s' % (v(dst), v(t), v(dst)))
    def coop_gen(self):
        a = self.a; T = V.T; X = V.DA
        self.sigma_lane(T)
        a('v_lshrrev_b32 %s, 5, %s' % (v(T+1), v(V.lane)))
        a('v_lshlrev_b32 %s, 7, %s' % (v(T+2), v(T+1)))
        a('v_lshl_add_u32 %s, %s, 1, %s' % (v(T+2), v(T), v(T+2)))
        a('s_and_b32 %s, %s, 2' % (sD, sKP)); a('s_sub_u32 %s, %s, %s' % (sD, sWL, sD))
        a('v_add_u32 %s, %s, %s' % (v(V.WP), sD, v(T+2)))
        a('s_add_u32 %s, %s, %d' % (sD, sD, 1024-832))
        a('v_sub_u32 %s, %s, %s' % (v(V.WM), sD, v(T+2)))
        a('v_cvt_f32_u32 %s, %s' % (v(T), v(T)))
        a('s_mul_i32 %s, %s, 4' % (sA, sW)); a('s_lshr_b32 %s, 0x75643120, %s' % (sA, sA)); a('s_and_b32 %s, %s, 7' % (sA, sA)); a('s_lshl_b32 %s, %s, 2' % (sA, sA))
        a('v_lshl_add_u32 %s, %s, 1, %s' % (v(T+1), v(T+1), sA))
        a('v_mul_f32 %s, %s, %s' % (v(T), lit(1/2048), v(T)))
        a('v_cvt_f32_u32 %s, %s' % (v(T+1), v(T+1)))
        a('v_mul_f32 %s, %s, %s' % (v(T+2), v(T+1), v(T)))
        for e in range(2):
            a('v_cos_f32 %s, %s' % (v(T+5), v(T+2)))
            a('v_sin_f32 %s, %s' % (v(T+6), v(T+2)))
            a('v_rcp_f32 %s, %s' % (v(T+5), v(T+5)))
            a('v_mul_f32 %s, %s, %s' % (v(T+3), lit(64.0), v(T+2)))
            a('v_mul_f32 %s, %s, %s' % (v(X+4+e), v(T+6), v(T+5)))
            a('v_fma_f32 %s, %s, %s, 1.0' % (v(T+5), v(X+4+e), v(X+4+e)))
            a('v_rcp_f32 %s, %s' % (v(T+6), v(T+5)))
            a('v_mul_f32 %s, -2.0, %s' % (v(T+4), v(X+4+e)))
            a('v_fma_f32 %s, -%s, %s, 1.0' % (v(T+5), v(T+5), v(T+6)))
            a('v_fmac_f32 %s, %s, %s' % (v(T+6), v(T+5), v(T+6)))
            a('v_mul_f32 %s, %s, %s' % (v(X+6+e), v(T+6), v(T+4)))
            if e == 0: self.fill = lambda: a('v_add_f32 %s, %s, %s' % (v(T+2), v(T+2), v(T)))
            self.trig(T+3, X+e, X+2+e)
        a('s_lshr_b32 %s, %s, 1' % (sA, sW)); a('s_lshl_b32 %s, %s, 7' % (sA, sA))
        a('s_and_b32 %s, %s, 1' % (sB, sW)); a('s_add_u32 %s, %s, %s' % (sA, sA, sB))
        a('s_lshl3_add_u32 %s, %s, %d' % (sA, sA, TABL))
        a('v_add_u32 %s, %s, %s' % (v(T), sA, v(V.l16)))
        for k in range(4): a('ds_write_b64 %s, %s offset:%d' % (v(T), vr(X+2*k, 2), 4096*k))
    def coop_post(self):
        a = self.a
        a('v_mov_b32 %s, 1' % v(V.T+1))
        a('ds_add_u32 %s, %s offset:4' % (v(V.cnt), v(V.T+1)))
    def coop_wait(self):
        a = self.a; T = V.T; lp, ok = self.label('cw'), self.label('cwok')
        a('s_mov_b32 %s, 0' % sCnt)
        a(lp+':')
        a('ds_read_b32 %s, %s offset:4' % (v(T), v(V.cnt)))
        a('s_add_u32 %s, %s, 1' % (sCnt, sCnt))
        a('s_cmp_gt_u32 %s, 0x%x' % (sCnt, SPIN_MAX*8))
        a('s_waitcnt lgkmcnt(0)')
        a('s_cbranch_scc1 %s' % ok)
        a('v_cmp_gt_u32 vcc, 0x200, %s' % v(T))
        a('s_cbranch_vccnz %s' % lp)
        a(ok+':')
    def coop_read(self):
        a = self.a; T = V.T
        a('v_add_u32 %s, %d, %s' % (v(T), TABL, v(V.l16)))
        for k in range(16): a('ds_read_b128 %s, %s offset:%d' % (vr(V.F32+4*k, 4), v(T), 1024*k))
    def calc_k0(self):
        a = self.a
        a('s_lshr_b32 %s, %s, 4' % (sA, sT)); a('s_and_b32 %s, %s, 15' % (sB, sT))
        a('s_lshl4_add_u32 %s, %s, %s' % (sK0, sB, sA))
        a('s_and_b32 %s, %s, 12' % (sC, sB)); a('s_bfe_u32 %s, %s, 0x10001' % (sD, sB)); a('s_add_u32 %s, %s, %s' % (sC, sC, sD))
        a('s_and_b32 %s, %s, 1' % (sD, sB)); a('s_lshl1_add_u32 %s, %s, %s' % (sC, sD, sC)); a('s_lshl_b32 %s, %s, 3' % (sC, sC))
        a('s_cmp_eq_u32 %s, 0' % sA); a('s_cselect_b32 %s, %s, %s' % (sK0, sC, sK0))
        a('s_cmp_eq_u32 %s, 0' % sT); a('s_cselect_b32 %s, 7, 8' % sA)
        a('s_lshl_b32 %s, %s, %s' % (sKP, sW, sA)); a('s_add_u32 %s, %s, %s' % (sKP, sKP, sK0))
        a('s_sub_u32 %s, 0x800, %s' % (sKM, sKP))
        a('s_cmp_eq_u32 %s, 0' % sKP)
        a('s_cselect_b32 %s, 0x400, %s' % (sKM, sKM)); a('s_cselect_b32 %s, 1, 0' % sSpec)
        a('s_mul_i32 %s, %s, 1026' % (sKP, sKP)); a('s_mul_i32 %s, %s, 1026' % (sKM, sKM))
        a('s_mul_i32 %s, %s, 4224' % (sWL, sW)); a('s_add_u32 %s, %s, %d' % (sWL, sWL, WL))
        a('s_and_b32 %s, %s, 2' % (sA, sKP))
        a('s_add_u32 %s, %s, %s' % (sDP, sKP, sA)); a('s_add_u32 %s, %s, %s' % (sDM, sKM, sA))
    def gen_B(self):
        a = self.a; T = V.T; c, s = T+8, T+9
        a('v_lshrrev_b32 %s, 1, %s' % (v(T), v(V.n)))
        a('v_cvt_f32_u32 %s, %s' % (v(T+2), v(V.g)))
        a('v_and_b32 %s, 1, %s' % (v(T+3), v(V.n)))
        a('v_add_f32 %s, %s, %s' % (v(T+2), v(T+2), v(T+2)))
        def normal():
            a('v_lshl_add_u32 %s, %s, 8, %s' % (v(T+1), v(T), sK0))
            a('v_lshlrev_b32 %s, 4, %s' % (v(T+4), v(T+3)))
            a('v_cvt_f32_u32 %s, %s' % (v(T+1), v(T+1)))
            a('v_lshlrev_b32 %s, 31, %s' % (v(T+6), v(V.n)))
            a('v_cvt_f32_u32 %s, %s' % (v(T+3), v(T+3)))
            a('v_mul_f32 %s, %s, %s' % (v(T+1), lit(1/2048), v(T+1)))
            a('s_brev_b32 %s, 1' % sA)
            a('v_lshrrev_b32 %s, %s, %s' % (v(T+4), v(T+4), sA))
            a('v_mul_f32 %s, %s, %s' % (v(T+5), v(T+1), v(T+2)))
            a('v_fmac_f32 %s, %s, %s' % (v(T+5), lit(0.25), v(T+3)))
            for sbb in range(2):
                if sbb == 0: self.fill = lambda: a('v_add_f32 %s, %s, %s' % (v(T+5), v(T+5), v(T+1)))
                else: self.fill = lambda: a('v_cvt_f32_u32 %s, %s' % (v(T), v(T)))
                self.trig(T+5, V.B+2*sbb, V.B+6+2*sbb)
                a('v_xor_b32 %s, %s, %s' % (v(V.B+2*sbb+1), v(V.B+2*sbb), v(T+4)))
                a('v_xor_b32 %s, %s, %s' % (v(V.B+6+2*sbb+1), v(V.B+6+2*sbb), v(T+4)))
            a('v_lshl_add_u32 %s, %s, 9, %s' % (v(T+1), v(V.g), sK0))
            a('v_xor_b32 %s, %s, %s' % (v(T), v(T), v(T+6)))
            a('v_cvt_f32_u32 %s, %s' % (v(T+1), v(T+1)))
            a('v_mul_f32 %s, 0.5, %s' % (v(T+5), v(T+3)))
            a('v_mul_f32 %s, %s, %s' % (v(T+1), lit(1/2048), v(T+1)))
            a('v_fmac_f32 %s, %s, %s' % (v(T+5), v(T+1), v(T)))
            for ii in range(2):
                a('v_cos_f32 %s, %s' % (v(c), v(T+5)))
                a('v_sin_f32 %s, %s' % (v(s), v(T+5)))
                a('v_mul_f32 %s, %s, %s' % (v(c), lit(SC), v(c)))
                a('v_mul_f32 %s, %s, %s' % (v(s), lit(SC), v(s)))
                if ii == 0: a('v_fmac_f32 %s, %s, %s' % (v(T+5), lit(0.125), v(T)))
                a('v_cvt_pk_bf16_f32 %s, %s, %s' % (v(T+1), v(c), v(s)))
                a('v_cvt_pk_bf16_f32 %s, -%s, %s' % (v(T+2), v(s), v(c)))
                a('v_xor_b32 %s, %s, %s' % (v(V.Bp+2*ii), v(T+1), v(T+6)))
                a('v_xor_b32 %s, %s, %s' % (v(V.Bp+4+2*ii), v(T+2), v(T+6)))
                a('v_xor_b32 %s, %s, %s' % (v(V.Bp+2*ii+1), v(T+2), v(T+6)))
                a('v_xor_b32 %s, 0x80008000, %s' % (v(V.Bp+4+2*ii+1), v(V.Bp+2*ii)))
        def special():
            a('v_cvt_f32_u32 %s, %s' % (v(T+1), v(T)))
            a('v_mul_f32 %s, %s, %s' % (v(T+1), lit(1/16), v(T+1)))
            a('v_lshlrev_b32 %s, 4, %s' % (v(T+4), v(T+3)))
            a('v_cmp_eq_u32 s[84:85], 0, %s' % v(T))
            a('v_and_b32 %s, 1, %s' % (v(T+6), v(T)))
            a('v_cmp_eq_u32 s[86:87], 1, %s' % v(T+6))
            a('v_mul_f32 %s, %s, %s' % (v(T+5), v(T+1), v(T+2)))
            for sbb in range(2):
                a('v_cos_f32 %s, %s' % (v(c), v(T+5)))
                a('v_sin_f32 %s, %s' % (v(s), v(T+5)))
                a('v_mul_f32 %s, 2.0, %s' % (v(c), v(c)))
                a('v_mul_f32 %s, -2.0, %s' % (v(s), v(s)))
                a('v_cndmask_b32 %s, %s, 1.0, s[84:85]' % (v(c), v(c)))
                a('v_cndmask_b32 %s, %s, %s, s[84:85]' % (v(s), v(s), '-1.0' if sbb else '1.0'))
                for src, dst in ((c, V.B+2*sbb), (s, V.B+6+2*sbb)):
                    a('v_cvt_pk_bf16_f32 %s, %s, 0' % (v(T+7), v(src)))
                    a('v_lshlrev_b32 %s, %s, %s' % (v(T+7), v(T+4), v(T+7)))
                    a('v_cndmask_b32 %s, %s, 0, s[86:87]' % (v(dst), v(T+7)))
                    a('v_cndmask_b32 %s, 0, %s, s[86:87]' % (v(dst+1), v(T+7)))
                a('v_add_f32 %s, %s, %s' % (v(T+5), v(T+5), v(T+1)))
            a('v_cmp_eq_u32 s[88:89], 0, %s' % v(V.g))
            a('v_cmp_eq_u32 s[90:91], 1, %s' % v(T+3))
            a('v_lshlrev_b32 %s, 31, %s' % (v(T+6), v(T)))
            a('v_xor_b32 %s, %s, %s' % (v(T+6), lit(SC), v(T+6)))
            a('v_mov_b32 %s, %s' % (v(T+4), lit(SC)))
            a('v_mul_f32 %s, %s, %s' % (v(T+5), v(T+1), v(T+2)))
            for ii in range(2):
                a('v_cos_f32 %s, %s' % (v(c), v(T+5)))
                a('v_sin_f32 %s, %s' % (v(s), v(T+5)))
                a('v_mul_f32 %s, %s, %s' % (v(c), lit(2*SC), v(c)))
                a('v_mul_f32 %s, %s, %s' % (v(s), lit(-2*SC), v(s)))
                if ii == 0:
                    a('v_cndmask_b32 %s, %s, %s, s[88:89]' % (v(c), v(c), v(T+4)))
                    a('v_cndmask_b32 %s, %s, %s, s[88:89]' % (v(s), v(s), v(T+6)))
                a('v_cvt_pk_bf16_f32 %s, %s, %s' % (v(T+7), v(s), v(c)))
                if ii: a('v_cndmask_b32 %s, 0, %s, s[90:91]' % (v(T+7), v(T+7)))
                else: a('v_cndmask_b32 %s, %s, 0, s[90:91]' % (v(T+7), v(T+7)))
                a('v_mov_b32 %s, 0' % v(V.Bp+2*ii)); a('v_mov_b32 %s, %s' % (v(V.Bp+2*ii+1), v(T+7)))
                a('v_mov_b32 %s, %s' % (v(V.Bp+4+2*ii), v(T+7))); a('v_mov_b32 %s, 0' % v(V.Bp+4+2*ii+1))
                a('v_add_f32 %s, %s, %s' % (v(T+5), v(T+5), v(T+1)))
        self.far(sT, 0, special, normal)
        for d, r in ((4, 0), (5, 1), (10, 6), (11, 7)): a('v_mov_b32 %s, %s' % (v(V.B+d), v(V.B+r)))

    def wq(self, rho): return (rho & 1) + 8*((rho >> 1) & 1) + 4*((rho >> 2) & 1)
    def w_dma1(self, i):
        a = self.a
        srd, so = [(SWR, sDP), (SWI, sDP), (SWR, sDM), (SWI, sDM)][i]
        a('s_add_u32 m0, %s, %d' % (sWL, 1056*i))
        a('buffer_load_dwordx4 %s, %s, %s offen %s lds' % (v(V.l16), srd, so, self.o['ldw']))
    def w_dma(self):
        for i in range(4): self.w_dma1(i)
    def w_edge_load(self):
        a = self.a; T = V.T
        a('s_mov_b64 exec, 15')
        a('v_mov_b32 %s, %s' % (v(T), sKP)); a('v_mov_b32 %s, %s' % (v(T+1), sKM))
        a('s_mov_b64 vcc, 10')
        a('v_cndmask_b32 %s, %s, %s, vcc' % (v(T), v(T), v(T+1)))
        a('v_and_b32 %s, 2, %s' % (v(T+1), v(V.lane)))
        a('v_lshl_add_u32 %s, %s, 9, %s' % (v(T), v(T+1), v(T)))
        a('buffer_load_short_d16_hi %s, %s, %s, 0 offen' % (v(V.WF), v(T), SWR))
        a('buffer_load_short_d16_hi %s, %s, %s, 0 offen' % (v(V.WF+1), v(T), SWI))
        a('s_mov_b64 exec, -1')
    def w_edge_rl(self):
        for l in range(4):
            for im in range(2): self.a('v_readlane_b32 s%d, %s, %d' % (84+2*l+im, v(V.WF+im), l))
    def w_edge(self):
        a = self.a; T = V.T
        self.w_edge_rl()
        q = ((84, 86, 'add'), (85, 87, 'sub'), (90, 88, 'add'), (91, 89, 'sub'))
        for i, (x, y, op) in enumerate(q): a('v_mov_b32 %s, s%d' % (v(T+i), y))
        for i, (x, y, op) in enumerate(q): a('v_%s_f32 %s, s%d, %s' % (op, v(V.WF+i), x, v(T+i)))
        for i in range(4): a('v_mul_f32 %s, 0.5, %s' % (v(V.WF+i), v(V.WF+i)))
        a('s_mov_b64 s[92:93], 1')
    def w_read1(self, rho, im, dst=None, swap=False):
        dst = V.W if dst is None else dst
        if rho < 8: ad, off = V.WP, 64*self.wq(rho) + (2112 if swap else 0)
        else: ad, off = V.WM, 64*(13-self.wq(rho)) + (0 if swap else 2112)
        return 'ds_read_u16_d16_hi %s, %s offset:%d' % (v(dst+16*im+rho), v(ad), off+1056*im)
    def w_fix(self, half):
        return ['v_cndmask_b32 %s, %s, %s, s[92:93]' % (v(V.W+8*half+16*im), v(V.W+8*half+16*im), v(V.WF+2*half+im)) for im in range(2)]
    def w_special(self):
        a = self.a; T = V.T; X = V.DA
        def f():
            for sw, dst in ((False, V.W), (True, X)):
                for rho in range(16):
                    for im in range(2): a(self.w_read1(rho, im, dst, sw))
            a('s_waitcnt lgkmcnt(0) vmcnt(0)')
            self.w_edge_rl()
            a('s_mov_b64 exec, 1')
            for r in (V.W+16, V.W+24, X+16, X+24): a('v_mov_b32 %s, 0' % v(r))
            a('v_mov_b32 %s, s90' % v(V.W+8)); a('v_mov_b32 %s, s88' % v(X+8))
            a('s_mov_b64 exec, -1')
            for i in range(32):
                a('v_add_f32 %s, %s, %s' % (v(V.W+i), v(V.W+i), v(X+i)))
                if (i & 15) < 8: a('v_fma_f32 %s, -2.0, %s, %s' % (v(X+i), v(X+i), v(V.W+i)))
                else: a('v_fma_f32 %s, 2.0, %s, -%s' % (v(X+i), v(X+i), v(V.W+i)))
            a('v_add_u32 %s, %d, %s' % (v(T+1), SCR_B, v(V.l16)))
            for i in range(8): a('ds_write_b128 %s, %s offset:%d' % (v(T+1), vr(X+4*i, 4), 1024*i))
        self.far(sSpec, 1, f)

    def addrs1(self):
        a = self.a; T = V.T
        a('v_lshrrev_b32 %s, 3, %s' % (v(T), v(V.lane)))
        a('v_and_b32 %s, 0x30, %s' % (v(T+1), v(V.l16)))
        a('v_lshl_add_u32 %s, %s, 6, %s' % (v(T), v(T), v(T+1)))
        a('v_and_b32 %s, 4, %s' % (v(T+1), v(V.lane)))
        a('v_lshl_add_u32 %s, %s, 1, %s' % (v(V.TR), v(T+1), v(T)))
        a('v_xor_b32 %s, %s, %s' % (v(T), sSB, v(V.lane)))
        a('v_and_b32 %s, 1, %s' % (v(T), v(T)))
        a('v_mul_u32_u24 %s, 16448, %s' % (v(T), v(T)))
        a('v_lshl_add_u32 %s, %s, 12, %s' % (v(T), v(V.g), v(T)))
        a('v_lshl_add_u32 %s, %s, 2, %s' % (v(T), v(T+1), v(T)))
        a('v_and_b32 %s, 0x60, %s' % (v(T+1), v(V.TR)))
        a('s_lshr_b32 %s, %s, 1' % (sWp, sW)); a('s_and_b32 %s, %s, 1' % (sA, sW))
        a('s_lshl2_add_u32 %s, %s, %s' % (sWp, sA, sWp)); a('s_lshl_b32 %s, %s, 7' % (sWp, sWp))
        a('v_add3_u32 %s, %s, %s, %s' % (v(V.X0w), v(T), v(T+1), sWp))
        a('s_lshl_b32 %s, %s, 10' % (sA, sW))
        a('s_sub_u32 %s, 0x4000, %s' % (sB, sA))
        a('s_cmp_eq_u32 %s, 0' % sW); a('s_cselect_b32 %s, 0x2000, %s' % (sB, sB))
        a('v_add_u32 %s, %s, %s' % (v(V.X0r0), sA, v(V.TR)))
        a('v_add_u32 %s, %s, %s' % (v(V.X0r1), sB, v(V.TR)))
    def addrs2(self):
        a = self.a; T = V.T
        a('v_lshlrev_b32 %s, 4, %s' % (v(T), v(V.n)))
        a('v_lshl_add_u32 %s, %s, 13, %s' % (v(T), v(V.g), v(T)))
        a('s_lshl_b32 %s, %s, 9' % (sA, sW)); a('s_add_u32 %s, %s, %d' % (sA, sA, R1))
        a('v_add_u32 %s, %s, %s' % (v(V.X1w), sA, v(T)))
        a('s_lshl_b32 %s, %s, 12' % (sA, sW)); a('s_add_u32 %s, %s, %d' % (sA, sA, R1))
        a('v_add_u32 %s, %s, %s' % (v(V.X1r), sA, v(V.TR)))
        a('v_and_b32 %s, 16, %s' % (v(T), v(V.l16)))
        a('v_and_b32 %s, 2, %s' % (v(T+1), v(V.lane)))
        a('v_bfe_u32 %s, %s, 2, 1' % (v(T+2), v(V.lane)))
        a('v_add_u32 %s, %s, %s' % (v(T+1), v(T+1), v(T+2)))
        a('v_mul_u32_u24 %s, 8224, %s' % (v(T+1), v(T+1)))
        a('v_bfe_u32 %s, %s, 3, 2' % (v(T+2), v(V.lane)))
        a('v_lshl_add_u32 %s, %s, 11, %s' % (v(T), v(T+2), v(T)))
        a('v_and_b32 %s, 32, %s' % (v(T+2), v(V.lane)))
        a('v_add3_u32 %s, %s, %s, %s' % (v(T), v(T), v(T+1), v(T+2)))
        a('v_add_u32 %s, %s, %s' % (v(V.X2w), sWp, v(T)))
        a('s_and_b32 %s, %s, 1' % (sA, sW)); a('s_lshr_b32 %s, %s, 2' % (sB, sW)); a('s_lshl1_add_u32 %s, %s, %s' % (sA, sB, sA)); a('s_lshl_b32 %s, %s, 11' % (sA, sA))
        a('s_and_b32 %s, %s, 2' % (sB, sW)); a('s_mul_i32 %s, %s, 8224' % (sB, sB)); a('s_add_u32 %s, %s, %s' % (sA, sA, sB))
        a('v_add_u32 %s, %s, %s' % (v(V.X2r), sA, v(V.TR)))
    def addrs3(self):
        a = self.a; T = V.T
        a('v_and_b32 %s, 16, %s' % (v(T), v(V.lane)))
        a('v_and_b32 %s, 33, %s' % (v(T+1), v(V.lane)))
        a('v_lshl_add_u32 %s, %s, 5, %s' % (v(T), v(T+1), v(T)))
        a('v_and_b32 %s, 8, %s' % (v(T+1), v(V.lane)))
        a('v_lshl_add_u32 %s, %s, 9, %s' % (v(T), v(T+1), v(T)))
        a('v_and_b32 %s, 2, %s' % (v(T+1), v(V.lane)))
        a('v_and_b32 %s, 4, %s' % (v(T+2), v(V.lane)))
        a('v_mul_u32_u24 %s, 4104, %s' % (v(T+1), v(T+1)))
        a('v_mul_u32_u24 %s, 4112, %s' % (v(T+2), v(T+2)))
        a('v_add3_u32 %s, %s, %s, %s' % (v(T), v(T), v(T+1), v(T+2)))
        a('s_sub_u32 %s, 16, %s' % (sC, sW))
        a('s_cmp_eq_u32 %s, 0' % sW); a('s_cselect_b32 %s, 8, %s' % (sC, sC))
        for kl, dst in ((sW, V.X3w0), (sC, V.X3w1)):
            a('s_lshr_b32 %s, %s, 2' % (sA, kl)); a('s_and_b32 %s, %s, 1' % (sB, kl)); a('s_lshl1_add_u32 %s, %s, %s' % (sA, sA, sB))
            a('s_and_b32 %s, %s, 2' % (sB, kl)); a('s_lshl2_add_u32 %s, %s, %s' % (sA, sB, sA))
            a('s_lshl_b32 %s, %s, 6' % (sA, sA)); a('s_add_u32 %s, %s, %d' % (sA, sA, R1))
            a('v_add_u32 %s, %s, %s' % (v(dst), sA, v(T)))
        a('s_and_b32 %s, %s, 1' % (sA, sW)); a('s_mul_i32 %s, %s, 8208' % (sA, sA))
        a('s_and_b32 %s, %s, 2' % (sB, sW)); a('s_mul_i32 %s, %s, 8224' % (sB, sB)); a('s_add_u32 %s, %s, %s' % (sA, sA, sB))
        a('s_and_b32 %s, %s, 4' % (sB, sW)); a('s_lshl_b32 %s, %s, 10' % (sB, sB)); a('s_add_u32 %s, %s, %s' % (sA, sA, sB))
        a('s_add_u32 %s, %s, %d' % (sA, sA, R1))
        a('v_add_u32 %s, %s, %s' % (v(V.X3r), sA, v(V.TR)))
        a('v_and_b32 %s, 0x70, %s' % (v(T), v(V.l16)))
        a('v_lshlrev_b32 %s, 1, %s' % (v(V.Ooff), v(V.Xoff)))
        a('v_sub_u32 %s, %s, %s' % (v(V.Ooff), v(V.Ooff), v(T)))

    def mf16(self, d, A, B): return 'v_mfma_f32_16x16x32_bf16 %s, %s, %s, 0' % (vr(d, 4), vr(A, 4), vr(B, 4))
    def cvt(self, d, lo, hi): return 'v_cvt_pk_bf16_f32 %s, %s, %s' % (v(d), v(lo), v(hi))
    def mf32(self, d, i, pl, dataA):
        M = vr(V.F32+16*pl+4*i, 4); X = vr(V.O+4*i, 4)
        A, B = (X, M) if dataA else (M, X)
        D = vr(d+16*pl, 16)
        return 'v_mfma_f32_32x32x16_bf16 %s, %s, %s, %s' % (D, A, B, D if i else '0')
    def emit(self, L):
        for x in L: self.a(x)

    def p1(self):
        a = self.a; O, L, D, P = V.O, V.L, V.DA, V.DB
        for r in range(4):
            a('s_waitcnt vmcnt(%d)' % (3-r+(2 if self.o['e1'] else 0)))
            if r == 3:
                self.stamp()
                if self.o['spos'] == 'mid': self.cond(sW, PW, self.side_load)
            for t in range(4): a('v_mov_b32 %s, %s' % (v(O+4*t+r), v(L+4*r+t)))
        for t in range(4):
            a(self.mf16(D+4*t, V.F16, O+4*t)); a(self.mf16(D+16+4*t, V.F16+4, O+4*t))
        if self.o['spos'] == 'late': self.cond(sW, PW, self.side_load)
        def sp():
            self.srds()
            a('s_mov_b32 %s, 0' % sDP); a('s_mov_b32 %s, %d' % (sDM, 1024*1026)); a('s_mov_b32 %s, %d' % (sWL, WL))
            self.w_dma()
        a('s_or_b32 %s, %s, %s' % (sA, sT, sW))
        self.far(sA, 0, sp)
        for r in range(4):
            a(self.cvt(P+4*r, D+r, D+4+r)); a(self.cvt(P+4*r+2, D+16+r, D+20+r))
        for r in range(4):
            a(self.cvt(P+4*r+1, D+8+r, D+12+r)); a(self.cvt(P+4*r+3, D+24+r, D+28+r))
            a('ds_write_b128 %s, %s offset:%d' % (v(V.X0w), vr(P+4*r, 4), 1024*r))
        self.mark('g1a')
        self.side_wait()
        self.mark('g1b')
        a('s_waitcnt lgkmcnt(0)')
        a('s_barrier')
        for ti in range(4):
            for ii in range(2):
                a('ds_read_b64_tr_b16 %s, %s offset:%d' % (vr(O+4*ti+2*ii, 2), v(V.X0r1 if ti >> 1 else V.X0r0), (ti & 1)*16448+ii*512))
        a('ds_read_b32 %s, %s' % (v(V.tmp), v(V.cnt)))
        for ti in range(4):
            a('s_waitcnt lgkmcnt(%d)' % (7-2*ti))
            a(self.mf16(D+4*ti, V.M2+8*(ti >> 1), O+4*ti)); a(self.mf16(D+16+4*ti, V.M2+8*(ti >> 1)+4, O+4*ti))
        a('s_waitcnt lgkmcnt(0)')
        self.side_use()
        for r in range(4): a('s_add_u32 %s, %s, 0x%x' % (sO[r], sEst, WS_U[0] + r*65536))
        st = lambda i: a('buffer_store_dwordx4 %s, %s, %s, %s offen %s' % (vr(P+4*i, 4), v(V.Est), SWS, sO[i], self.o['st1']))
        def normal():
            for i in range(4):
                for k in range(4): a(self.cvt(P+4*i+2*(k & 1)+(k >> 1), D+4*k+i, D+16+4*k+i))
                st(i)
        def w0():
            for i in range(4):
                ts, eb = i >> 1, i & 1
                for tau in range(2):
                    for sg in range(2):
                        x = 4*(2*ts+tau)+2*eb+sg
                        a(self.cvt(P+4*i+2*tau+sg, D+x, D+16+x))
                st(i)
        self.ifelse(sW, 0, w0, normal)

    def stage(self, src, dst, dataA, kind, prio, pre=None):
        a = self.a; T = V.T
        if self.o['prio']: a('s_setprio %d' % prio)
        G = []
        for i in range(4):
            g = []
            if kind == 'tw':
                for st in range(3):
                    for r in range(4):
                        rho = 4*i+r; x, y = v(src+rho), v(src+16+rho)
                        g.append('v_fmac_f32 %s, %s, %s' % ((y, v(V.TW+16+rho), x) if st == 1 else (x, v(V.TW+rho), y)))
                for r in range(4): g.append(self.cvt(V.O+4*i+r, src+4*i+r, src+16+4*i+r))
            else:
                t = T+4*(i & 1)
                for r in range(4):
                    rho = 4*i+r
                    g.append('v_mul_f32 %s, %s, %s' % (v(t+r), v(src+rho), v(V.W+rho)))
                for r in range(4):
                    rho = 4*i+r
                    if rho < 8: g.append('v_fma_f32 %s, -%s, %s, %s' % (v(t+r), v(src+16+rho), v(V.W+16+rho), v(t+r)))
                    else: g.append('v_fmac_f32 %s, %s, %s' % (v(t+r), v(src+16+rho), v(V.W+16+rho)))
                for r in range(4):
                    rho = 4*i+r
                    g.append('v_mul_f32 %s, %s, %s' % (v(src+16+rho), v(src+16+rho), v(V.W+rho)))
                for r in range(4):
                    rho = 4*i+r
                    if rho < 8: g.append('v_fmac_f32 %s, %s, %s' % (v(src+16+rho), v(src+rho), v(V.W+16+rho)))
                    else: g.append('v_fma_f32 %s, -%s, %s, %s' % (v(src+16+rho), v(src+rho), v(V.W+16+rho), v(src+16+rho)))
                for r in range(4): g.append(self.cvt(V.O+4*i+r, src+16+4*i+r, t+r))
            G.append(g)
        W = [[self.w_read1(4*i+r, im) for im in range(2) for r in range(4)] for i in range(4)] if kind == 'w' else None
        if kind == 'w':
            a('s_waitcnt vmcnt(2)')
            self.emit(W[0]); self.emit(W[1])
        for i in range(4):
            g = list(G[i]); n = len(g)
            ins = {}
            if i:
                ins.setdefault(2, []).append(self.mf32(dst, i-1, 0, dataA))
                ins.setdefault(2+n//2, []).append(self.mf32(dst, i-1, 1, dataA))
            if kind == 'w':
                a('s_waitcnt lgkmcnt(%d)' % (8 if i < 3 else 0))
                if i in (0, 2): self.emit(self.w_fix(i >> 1))
                if i < 2:
                    if i == 0: ins.setdefault(3, []).append('s_waitcnt vmcnt(0)')
                    for k, x in enumerate(W[i+2]): ins.setdefault(3+2*k, []).append(x)
            for k, x in enumerate(g):
                self.emit(ins.get(k, []))
                a(x)
        a(self.mf32(dst, 3, 0, dataA)); a(self.mf32(dst, 3, 1, dataA))

    def p2(self):
        a = self.a; O, L, D, T = V.O, V.L, V.DA, V.T
        na = self.p2na
        for cbb in range(2):
            b = L+12*cbb
            a('s_waitcnt vmcnt(%d)' % (na+3-2*cbb))
            a('v_mov_b32 %s, %s' % (v(b+8), v(b))); a('v_mov_b32 %s, %s' % (v(b+9), v(b+1)))
            a('s_waitcnt vmcnt(%d)' % (na+2-2*cbb))
            if cbb: self.stamp(); self.mark('f0')
            for jj2 in (1, 0):
                ti = 2*cbb+jj2; op = b+2 if jj2 else b+6; mo = 0 if jj2 else 2
                a(self.mf16(D+4*ti, V.B+mo, op)); a(self.mf16(D+16+4*ti, V.B+6+mo, op))
        for cbb in range(2):
            for k1b in range(2):
                P = O+4*(2*cbb+k1b)
                for jj2 in (1, 0):
                    for pl in range(2):
                        x = D+16*pl+4*(2*cbb+jj2)+2*k1b
                        a(self.cvt(P+2*pl+jj2, x, x+1))
                a('ds_write_b128 %s, %s offset:%d' % (v(V.X1w), vr(P, 4), k1b*4096+cbb*256))
        self.mark('f1')
        a('s_waitcnt lgkmcnt(0)')
        self.mark('f2', True)
        a('s_barrier')
        self.mark('x1', True)
        if self.o['prio']: a('s_setprio 3')
        for i in range(4):
            for ii in range(2):
                a('ds_read_b64_tr_b16 %s, %s offset:%d' % (vr(O+4*i+2*ii, 2), v(V.X1r), ii*1024+(i & 1)*512+(i >> 1)*2048))
        rows = {'postX1': (0, 1, 2, 3), 'barh': (2, 3), 'bar': (), 'p2a': (2, 3), 'q2a': (1, 2, 3)}[self.o['wpos']]
        for i in range(4):
            if i < len(rows): self.w_dma1(rows[i])
            a('s_waitcnt lgkmcnt(%d)' % (6-2*i))
            a(self.mf32(V.DA, i, 0, True)); a(self.mf32(V.DA, i, 1, True))
        self.mark('f3')
        self.stage(V.DA, V.DB, False, 'tw', 2)
        self.mark('f4', True)
        self.far(sSpec, 1, self.pw_special, lambda: self.stage(V.DB, V.DA, True, 'w', 1))
        self.mark('f5')
        self.stage(V.DA, V.DB, True, 'tw', 0)
        self.mark('f6')
        D = V.DB
        for r in range(4): a('s_add_u32 %s, %s, 0x%x' % (sO[r], sEst, WS_U[1] + r*65536))
        rho = lambda jj3, jj1, jj2, c: 4*(2*jj3+jj1)+2*jj2+c
        for pl in range(2):
            for k in range(4):
                c, jj1 = k >> 1, k & 1
                P = V.DA+4*k
                for jj3 in range(2):
                    a(self.cvt(P+2*pl+jj3, D+16*pl+rho(jj3, jj1, 0, c), D+16*pl+rho(jj3, jj1, 1, c)))
                if pl: a('ds_write_b128 %s, %s offset:%d' % (v(V.X2w), vr(P, 4), c*64+jj1*1024))
        self.mark('f7'); self.mark('x2')
        a('s_waitcnt lgkmcnt(0)')
        self.mark('f8', True)
        a('s_barrier')
        for ti in range(4):
            for ii in range(2):
                a('ds_read_b64_tr_b16 %s, %s offset:%d' % (vr(O+4*ti+2*ii, 2), v(V.X2r), ii*512+(ti & 1)*1024+(ti >> 1)*8224))
        D = V.DA; P = V.DB
        for ti in range(4):
            a('s_waitcnt lgkmcnt(%d)' % (6-2*ti))
            a(self.mf16(D+4*ti, V.Bp, O+4*ti)); a(self.mf16(D+16+4*ti, V.Bp+4, O+4*ti))
        self.mark('f9')
        for q in range(4):
            cbb, sbb = q >> 1, q & 1
            for jj1 in range(2):
                for hf in range(2):
                    x = 4*(2*cbb+jj1)+2*sbb+hf
                    a(self.cvt(P+4*q+2*jj1+hf, D+x, D+16+x))
            a('buffer_store_dwordx4 %s, %s, %s, %s offen %s' % (vr(P+4*q, 4), v(V.Est), SWS, sO[q], self.o['st2']))
        self.mark('f10')

    def pw_special(self):
        a = self.a; T = V.T; O = V.O; C = V.DB; X = V.DA
        self.sigma_lane(T)
        a('v_lshrrev_b32 %s, 5, %s' % (v(T+1), v(V.lane)))
        a('v_lshlrev_b32 %s, 9, %s' % (v(T+1), v(T+1)))
        a('v_lshl_add_u32 %s, %s, 2, %s' % (v(T+2), v(T), v(T+1)))
        a('v_add_u32 %s, %d, %s' % (v(T+2), SCR, v(T+2)))
        a('v_add_u32 %s, 128, %s' % (v(T+3), v(T+2)))
        a('v_sub_u32 %s, 32, %s' % (v(T+4), v(T)))
        a('v_lshrrev_b32 %s, 5, %s' % (v(T+5), v(T+4)))
        a('v_and_b32 %s, 31, %s' % (v(T+4), v(T+4)))
        a('v_lshlrev_b32 %s, 2, %s' % (v(T+4), v(T+4)))
        a('v_lshl_add_u32 %s, %s, 8, %s' % (v(T+4), v(T+5), v(T+4)))
        a('v_sub_u32 %s, %s, %s' % (v(T+4), v(T+4), v(T+1)))
        a('v_add_u32 %s, %d, %s' % (v(T+4), SCR + 2*256, v(T+4)))
        a('v_add_u32 %s, 128, %s' % (v(T+5), v(T+4)))
        a('v_add_u32 %s, %d, %s' % (v(T+6), SCR_B, v(V.l16)))
        qs = lambda rho: sigma(8*(rho >> 2) + (rho & 3))
        for pl in range(2):
            for rho in range(0, 16, 2):
                a('ds_write2st64_b32 %s, %s, %s offset0:%d offset1:%d' % (v(T+2+pl), v(C+16*pl+rho), v(C+16*pl+rho+1), qs(rho), qs(rho+1)))
            a('ds_write_b32 %s, %s offset:%d' % (v(T+2+pl), v(C+16*pl), 32*256))
        t0, t1 = v(T+8), v(T+9)
        for half in range(2):
            for pl in range(2):
                for k in range(0, 8, 2):
                    r_ = 8*half+k
                    a('ds_read2st64_b32 %s, %s offset0:%d offset1:%d' % (vr(X+8*pl+k, 2), v(T+4+pl), 29-qs(r_), 29-qs(r_+1)))
                for k in range(2):
                    a('ds_read_b128 %s, %s offset:%d' % (vr(X+16+8*pl+4*k, 4), v(T+6), 1024*(4*pl+2*half+k)))
            a('s_waitcnt lgkmcnt(0)')
            for k in range(8):
                r_ = 8*half+k
                x, y = v(C+r_), v(C+16+r_); ar, ai = v(V.W+r_), v(V.W+16+r_)
                p, q_ = v(X+k), v(X+8+k); br, bi = v(X+16+k), v(X+24+k)
                ng, ps = ('', '-') if half else ('-', '')
                a('v_mul_f32 %s, %s, %s' % (t0, x, ar))
                a('v_mul_f32 %s, %s, %s' % (t1, y, ar))
                a('v_fma_f32 %s, %s%s, %s, %s' % (t0, ng, y, ai, t0))
                a('v_fma_f32 %s, %s%s, %s, %s' % (t1, ps, x, ai, t1))
                a('v_fmac_f32 %s, %s, %s' % (t0, p, br))
                a('v_fma_f32 %s, -%s, %s, %s' % (t1, q_, br, t1))
                a('v_fma_f32 %s, %s%s, %s, %s' % (t0, ps, q_, bi, t0))
                a('v_fma_f32 %s, %s%s, %s, %s' % (t1, ps, p, bi, t1))
                a(self.cvt(O+r_, T+9, T+8))
        for i in range(4): a(self.mf32(V.DA, i, 0, True)); a(self.mf32(V.DA, i, 1, True))

    def p3(self):
        a = self.a; O, L, D, P = V.O, V.L, V.DA, V.DB
        a('s_lshl4_add_u32 %s, %s, %s' % (sA, sW, sSB)); a('s_lshl1_add_u32 %s, %s, %s' % (sA, sA, sP))
        a('s_lshl4_add_u32 %s, %s, %s' % (sA, sA, sCB)); a('s_lshl_b32 %s, %s, 7' % (sO[0], sA))
        for r in range(1, 4): a('s_add_u32 %s, %s, 0x%x' % (sO[r], sO[0], r*524288))
        def normal():
            for i in range(4):
                a('s_waitcnt vmcnt(%d)' % (3-i))
                for sel in range(2):
                    for col in range(2): a('v_mov_b32 %s, %s' % (v(O+4*(2*sel+col)+i), v(L+4*i+2*col+sel)))
        def w0():
            for i in range(4):
                ts, eb = i >> 1, i & 1
                a('s_waitcnt vmcnt(%d)' % (3-i))
                for col in range(2):
                    for sg in range(2): a('v_mov_b32 %s, %s' % (v(O+4*(2*ts+col)+2*eb+sg), v(L+4*i+2*col+sg)))
        self.ifelse(sW, 0, w0, normal, True)
        self.stamp()
        for ti in range(4):
            a(self.mf16(D+4*ti, O+4*ti, V.M2+8*(ti >> 1))); a(self.mf16(D+16+4*ti, O+4*ti, V.M2+8*(ti >> 1)+4))
        for ti in range(4):
            for pl in range(2):
                for k in range(2):
                    x = D+16*pl+4*ti+2*k
                    a(self.cvt(P+4*ti+2*pl+k, x, x+1))
            a('ds_write_b128 %s, %s offset:%d' % (v(V.X3w1 if ti >> 1 else V.X3w0), vr(P+4*ti, 4), (ti & 1)*2048))
        a('s_waitcnt lgkmcnt(0)')
        a('s_barrier')
        for t in range(4):
            for ii in range(2):
                a('ds_read_b64_tr_b16 %s, %s offset:%d' % (vr(O+4*t+2*ii, 2), v(V.X3r), ii*512+t*1024))
        for t in range(4):
            a('s_waitcnt lgkmcnt(%d)' % (6-2*t))
            a(self.mf16(D+4*t, V.F16, O+4*t)); a(self.mf16(D+16+4*t, V.F16+4, O+4*t))
        for t in range(2):
            for r in range(4): a(self.cvt(P+4*r+t, D+16+4*t+r, D+4*t+r))
        for r in range(4):
            for t in (2, 3): a(self.cvt(P+4*r+t, D+16+4*t+r, D+4*t+r))
            a('buffer_store_dwordx4 %s, %s, %s, %s offen %s' % (vr(P+4*r, 4), v(V.Ooff), SOUT, sO[r], self.o['sto']))

    def ex_load(self, ex):
        a = self.a
        a('s_add_u32 %s, %s, 0x%x' % (sA, sEld, WS_U[ex]))
        for q in range(4):
            d = V.L+12*(q >> 1)+4*(q & 1) if ex == 0 else V.L+4*q
            a('buffer_load_dwordx4 %s, %s, %s, %s offen offset:%d %s' % (vr(d, 4), v(V.Eld), SWS, sA, 256*q, self.o['ld1' if ex == 0 else 'ld2']))

    def build(self):
        a = self.a; o = self.o
        name = NAME + '_kernel'
        a.raw('.globl %s\n.p2align 12\n.p2align 8\n.type %s,@function\n%s:' % (name, name, name))
        end = self.label('end')
        self.prologue(end)
        def others():
            if o.get('kfirst'): a('s_waitcnt lgkmcnt(0)'); self.mark('karg0')
            self.touch(0)
            self.mark('touched')
            a('s_waitcnt lgkmcnt(0)')
            self.mark('karg')
            l = self.label('hold')
            a('s_cmp_lt_u32 %s, 8' % sCh); a('s_cbranch_scc1 %s' % l)
            self.x_issue()
            if o['pre']: self.cond(sW, PW, lambda: a('s_load_dword s95, s[20:21], 0x80'))
            a(l+':')
        self.ifelse(sCh, 0, self.probe, others, True)
        self.srds0(); self.addrs1()
        l = self.label('held')
        a('s_sub_u32 %s, %s, 1' % (sA, sCh)); a('s_cmp_ge_u32 %s, 7' % sA); a('s_cbranch_scc1 %s' % l)
        self.x_issue()
        a(l+':')
        self.gen_F16()
        self.clear_done()
        self.gen_M2(); self.ex_addrs()
        if o['touch']: self.cond(sT, 0, lambda: self.touch(1))
        full = o['full']
        e1 = o['e1']
        if full or e1: self.srds(); self.calc_k0()
        if e1: self.w_edge_load()
        if full:
            self.coop_gen(); self.gen_B(); self.addrs2(); self.flag_addrs()
        if o['spos'] == 'early': self.cond(sW, PW, self.side_load)
        self.mark('w1')
        self.p1()
        self.stamp()
        nP = {'p2a': 2, 'q2a': 1}.get(o['wpos'], 0)
        if full:
            self.side_apply(); a('s_mov_b32 %s, 1' % sInc)
            self.coop_read(); self.gen_M3()
            for i in range(nP): self.w_dma1(i)
            self.addrs3()
        else:
            self.flag_addrs(); self.side_apply()
            if not e1: self.srds(); self.calc_k0()
            a('s_mov_b32 %s, 1' % sInc)
            self.coop_gen(); self.coop_post()
            for i in range(nP): self.w_dma1(i)
        a('s_waitcnt vmcnt(%d)' % nP)
        self.stamp()
        self.arrive()
        el = (lambda: 0) if e1 else self.w_edge_load
        if full: self.poll(0, lambda: (el(), self.w_special()))
        else: self.poll(0, lambda: (el(), self.gen_B(), self.w_special()))
        self.stamp()
        self.ex_load(0)
        self.p2na = 0
        if o['wpos'] in ('bar', 'barh'):
            a('s_barrier'); self.p2na = 4 if o['wpos'] == 'bar' else 2
            for i in range(self.p2na): self.w_dma1(i)
        elif not full: self.coop_wait()
        if not full: self.coop_read(); self.addrs2()
        a('s_waitcnt vmcnt(%d)' % (4+self.p2na))
        self.w_edge()
        a('s_mov_b32 %s, 0x10000' % sInc)
        if o.get('da') == 'glob': self.cond(sId, 0, lambda: a('s_atomic_swap s56, s[20:21], 0x40'))
        self.p2()
        self.stamp()
        if not full: self.gen_M3()
        self.mark('w3a')
        a('s_waitcnt vmcnt(0)')
        self.stamp()
        self.arrive()
        self.poll(1, None if full else self.addrs3)
        if o['ts']: a('s_mov_b32 s%d, %s' % (sTS+26, sCnt))
        self.stamp()
        self.ex_load(1)
        self.p3()
        self.diag_end()
        a(end+':'); a('s_endpgm')
        t, self.tail = self.tail, []
        for f in t: f()
        if o['touch']: self.insert_stubs()
        hdr = ('; GFNet spectral filter, two heads: 2-D FFT as bf16 MFMA DFT stages in one persistent launch (generated)\n'
               '; @launch grid=(256,1,1) block=(512,1,1) lds=%d\n' % LDS_TOTAL)
        kd = '''.section .rodata,"a"
.p2align 6
.amdhsa_kernel %s
  .amdhsa_next_free_vgpr %d
  .amdhsa_next_free_sgpr 102
  .amdhsa_accum_offset %d
  .amdhsa_group_segment_fixed_size 0
  .amdhsa_kernarg_size 72
  .amdhsa_user_sgpr_count 2
  .amdhsa_user_sgpr_kernarg_segment_ptr 1
  .amdhsa_system_sgpr_workgroup_id_x 1
.end_amdhsa_kernel
''' % (name, NVGPR, (NVGPR+3)//4*4)
        return hdr + '.amdgcn_target "amdgcn-amd-amdhsa--gfx950"\n.text\n' + a.text() + kd

    def insert_stubs(self):
        a = self.a
        txt = '.amdgcn_target "amdgcn-amd-amdhsa--gfx950"\n.text\n' + a.text() + ''.join('stub_%d:\n' % k for k in range(16)) + 's_endpgm\n'
        open('pass1.s', 'w').write(txt)
        subprocess.check_call(['clang', '-x', 'assembler', '-target', 'amdgcn-amd-amdhsa', '-mcpu=gfx950', '-c', 'pass1.s', '-o', 'pass1.o'])
        dis = subprocess.check_output(['llvm-objdump', '-d', '--mcpu=gfx950', 'pass1.o']).decode()
        addrs = [int(m.group(1), 16) for m in re.finditer(r'// ([0-9A-F]{12}):', dis)]
        real = [i for i, x in enumerate(a.ins) if x.kind != 'none']
        assert len(addrs) == len(real) + 1, (len(addrs), len(real))
        size = {real[k]: addrs[k+1] - addrs[k] for k in range(len(real))}
        pos = ENTRY_OFF; nxt = 2048
        out = []; k = 0; prev = None; ez = False
        for i, x in enumerate(a.ins):
            if i in size:
                if prev is not None and prev.text.strip() == 's_mov_b64 exec, 0': ez = True
                if prev is not None and prev.text.strip() == 's_mov_b64 exec, -1': ez = False
                if pos >= nxt and k < 16 and not ez:
                    out.append(Ins('stub_%d:' % k)); out.append(Ins('s_cbranch_execz ret_%d' % (k >> 3)))
                    pos += 4; k += 1; nxt += 1024
                pos += size[i]; prev = x
                if x.op == 's_endpgm': self.hot_end = pos
            out.append(x)
        self.code_end = pos
        while k < 16:
            out.append(Ins('stub_%d:' % k)); out.append(Ins('s_branch ret_%d' % (k >> 3))); k += 1
        a.ins = out

if __name__ == '__main__':
    out = sys.argv[1]; opt = {}
    for kv in sys.argv[2:]:
        k, x = kv.split('=')
        opt[k] = {'True': True, 'False': False}.get(x, x.replace('+', ' '))
    g = Gen(**opt)
    s = g.build()
    assert g.a.verify() == 0
    open(out, 'w').write(s)
    print(out, 'vgprs', NVGPR, 'lds', LDS_TOTAL, 'nops', g.a.nops, 'lines', len(g.a.ins), 'hot end 0x%x code end 0x%x' % (getattr(g, 'hot_end', 0), getattr(g, 'code_end', 0)))
```

```python
import sys, struct, math, subprocess, re
from asmlib import Asm, Ins

NAME = 'concat_heads__spectral_gfnet__spectral_gfnet__prompt'
def f2u(x): return struct.unpack('<I', struct.pack('<f', x))[0]
def lit(x): return '0x%08x' % f2u(x)
def sigma(m): return (m & 1) | ((m >> 1) & 1) << 3 | ((m >> 2) & 1) << 1 | ((m >> 3) & 1) << 2 | (m & 16)

SC = 2.0**-22
SPIN_MAX = 0x4000
ENTRY_OFF = 0x300
PW = int([x for x in sys.argv if x.startswith('pw=')][0][3:]) if any(x.startswith('pw=') for x in sys.argv) else 1
R0 = 0
R1 = 33024
WL = 66048
SCR = WL + 8*4*1056
SCR_B = SCR + 36*256
TABL = SCR_B + 8192
CNT = TABL + 16384
LDS_TOTAL = CNT + 64
WS_U = (0, 8 << 20)
WS_FLAG = 16 << 20
WS_PROBE = 17 << 20
WS_TS = 72 << 20
class V: pass
_n = [0]
def alloc(n, align=1):
    b = (_n[0] + align - 1)//align*align
    _n[0] = b + n
    return b
V.tid = alloc(1); V.lane = alloc(1)
for nm in 'g n l16 TR Xoff Est Eld X0w X0r0 X0r1 X1w X1r X2w X2r WP WM zero cnt tmp'.split(): setattr(V, nm, alloc(1))
V.Ooff, V.X3w0, V.X3w1, V.X3r = V.Xoff, V.X0w, V.X0r0, V.X0r1
V.T = alloc(10)
V.O = alloc(16, 4)
V.DA = alloc(32, 4); V.DB = alloc(32, 4); V.L = V.DB
V.F16 = alloc(8, 4); V.M2 = alloc(16, 4)
V.F32 = alloc(32, 4); V.TW = alloc(32, 4); V.W = alloc(32, 4)
V.B = alloc(12, 4); V.Bp = alloc(8, 4); V.WF = alloc(4)
NVGPR = _n[0]
assert NVGPR <= 256, NVGPR
def v(i): return 'v%d' % i
def vr(i, n): return 'v[%d:%d]' % (i, i+n-1)
SX, SWR, SWI, SOUT, SDBG, SWS = 's[4:7]', 's[8:11]', 's[12:15]', 's[16:19]', 's[20:23]', 's[24:27]'
sP, sT, sW, sSB, sCB, sK0, sKP, sKM, sWp, sRv = ['s%d' % i for i in range(30, 40)]
sA, sB, sC, sD, sE, sF, sEst, sEld, sCnt, sSpec, sInc, sWL = ['s%d' % i for i in range(40, 52)]
sO = ['s52', 's53', 's54', 's55']
sTS = 56
sDP, sDM, sZ, sCh, sId = 's96', 's97', 's98', 's99', 's100'

class Gen:
    def __init__(self, **opt):
        self.o = dict(ldx='', ldw='', st1='sc1', st2='sc1', sto='nt', ld1='sc1', ld2='sc1', ts=False,
                      prio=True, nb='4', pnop='15', force='', wpos='postX1', touch=True, w1n='9', spos='early', qw='1', qg='1', zg='3', xm='2', pb='17', wsoff='0', pld='', pex='1', merge=True, full=False, e1=False, pre=True, split=False, map='2', rep='1', slp='', sthr='')
        self.o.update(opt)
        self.a = Asm(); self.lab = 0; self.nts = 0; self.sid = -1; self.tail = []
    def label(self, p='L'):
        self.lab += 1
        return '%s_%d' % (p, self.lab)

    def mark(self, nm, drain=False):
        o = self.o; hit = False
        if o.get('clk') and nm in ('w1', 'g1a', 'x1', 'x2', 'w3a', 'end'):
            for op in ('s_memrealtime', 's_memtime'):
                self.a('%s s[%d:%d]' % (op, sTS+2*self.nts, sTS+2*self.nts+1)); self.nts += 1
            self.a('s_waitcnt lgkmcnt(0)')
        if o.get('fine') and nm[0] == 'f':
            self.a('s_memtime s[%d:%d]' % (sTS+2*self.nts, sTS+2*self.nts+1)); self.nts += 1; hit = True
        for key, reg in (('da', 58), ('db', 60)):
            if o.get(key) == nm:
                self.a('%s s[%d:%d]' % ('s_memtime' if 'cyc' in o else 's_memrealtime', reg, reg+1)); hit = True
        if hit and drain: self.a('s_waitcnt lgkmcnt(0)')
    def stamp(self):
        self.sid += 1
        self.mark('s%d' % self.sid)
        if not self.o['ts'] or self.o.get('clk') or self.o.get('fine'): return
        self.a('s_memrealtime s[%d:%d]' % (sTS+2*self.nts, sTS+2*self.nts+1)); self.nts += 1
    def diag_end(self):
        a = self.a; o = self.o
        self.mark('end')
        if not (o['ts'] or 'da' in o): return
        self.stamp(); a('s_waitcnt vmcnt(0)'); self.stamp()
        a('s_waitcnt lgkmcnt(0)')
        if 'da' in o:
            lp = self.label('dg')
            if o['da'] == 'glob':
                a('buffer_load_dword %s, %s, %s, 0 offen offset:64 sc1' % (v(V.tmp), v(V.zero), SDBG))
                a('s_waitcnt vmcnt(0)')
                a('v_readfirstlane_b32 s58, %s' % v(V.tmp)); a('s_mov_b32 s56, s58')
            a('s_sub_u32 %s, s60, s58' % sA)
            if 'db0' in o: a('s_add_u32 %s, %s, 250' % (sA, sA)); a('s_lshl_b32 %s, %s, 1' % (sA, sA))
            a('s_lshr_b32 %s, %s, 2' % (sA, sA) if 'cyc' in o else 's_lshl_b32 %s, %s, 2' % (sA, sA))
            for key, reg in (('dp', sP), ('dt', sT), ('db0', sId)):
                if key in o: a('s_cmp_eq_u32 %s, %s' % (reg, o[key])); a('s_cselect_b32 %s, %s, 0' % (sA, sA))
            a('s_min_u32 %s, %s, %d' % (sA, sA, 5800 if 'enc' in o else 9000))
            if 'enc' in o:
                a('s_and_b32 %s, s62, 15' % sB); a('s_mul_i32 %s, %s, 10000' % (sB, sB)); a('s_add_u32 %s, %s, %s' % (sA, sA, sB))
                a('s_bfe_u32 %s, s62, 0x40008' % sB); a('s_mul_i32 %s, %s, 100000' % (sB, sB)); a('s_add_u32 %s, %s, %s' % (sA, sA, sB))
            a('s_add_u32 %s, %s, 3000' % (sA, sA))
            a(lp+':')
            a('s_memrealtime s[28:29]'); a('s_waitcnt lgkmcnt(0)')
            a('s_sub_u32 %s, s28, s56' % sB); a('s_cmp_lt_u32 %s, %s' % (sB, sA)); a('s_cbranch_scc1 %s' % lp)
            return
        a('s_lshl_b32 %s, %s, 7' % (sA, sId)); a('s_add_u32 %s, %s, 0x%x' % (sA, sA, WS_TS))
        a('s_mov_b64 exec, 1')
        for i in range(14):
            a('v_mov_b32 %s, s%d' % (v(V.T), sTS+2*i))
            a('buffer_store_dword %s, %s, %s, %s offen offset:%d' % (v(V.T), v(V.zero), SWS, sA, 4*i))
            a('s_nop 1')

    def cond(self, reg, val, f):
        a = self.a; l = self.label('c')
        a('s_cmp_lg_u32 %s, %d' % (reg, val)); a('s_cbranch_scc1 %s' % l)
        f(); a(l+':')
    def ifelse(self, reg, val, feq, fne, eq_first=False):
        a = self.a; l0, l1 = self.label('ie'), self.label('iend')
        if eq_first:
            a('s_cmp_lg_u32 %s, %d' % (reg, val)); a('s_cbranch_scc1 %s' % l0)
            feq(); a('s_branch %s' % l1); a(l0+':'); fne()
        else:
            a('s_cmp_eq_u32 %s, %d' % (reg, val)); a('s_cbranch_scc1 %s' % l0)
            fne(); a('s_branch %s' % l1); a(l0+':'); feq()
        a(l1+':')
    def far(self, reg, val, feq, fne=None):
        a = self.a; l0, l1 = self.label('far'), self.label('back')
        a('s_cmp_eq_u32 %s, %d' % (reg, val)); a('s_cbranch_scc1 %s' % l0)
        if fne: fne()
        a(l1+':')
        def t():
            a(l0+':'); feq(); a('s_branch %s' % l1)
        self.tail.append(t)
    def touch(self, rnd, half=False):
        a = self.a
        a('s_mov_b64 exec, 0')
        if half:
            for k in range(3):
                a('s_cmp_eq_u32 %s, %d' % (sW, 4+k)); a('s_cbranch_scc1 stub_%d' % (2*k))
            a('s_branch stub_6')
        else:
            for k in range(7):
                a('s_cmp_eq_u32 %s, %d' % (sW, k)); a('s_cbranch_scc1 stub_%d' % (8*rnd+k))
            a('s_branch stub_%d' % (8*rnd+7))
        a('ret_%d:' % rnd)
        a('s_mov_b64 exec, -1')

    def prologue(self, end):
        a = self.a; T = V.T
        a('s_cmp_ge_u32 s2, 0x100')
        a('s_cbranch_scc1 %s' % end)
        if 'da' in self.o: a('s_memrealtime s[56:57]'); self.mark('start')
        a('s_bfe_u32 %s, s2, 0x10002' % sP)
        a('s_mul_i32 s3, %s, 24' % sP)
        a('s_load_dwordx2 s[4:5], s[0:1], s3')
        a('s_load_dwordx2 s[24:25], s[0:1], 0x40')
        a('s_load_dwordx2 s[20:21], s[0:1], 0x38')
        a('s_load_dwordx2 s[8:9], s[0:1], s3 offset:8')
        a('s_load_dwordx2 s[12:13], s[0:1], s3 offset:16')
        a('s_load_dwordx2 s[16:17], s[0:1], 0x30')
        self.stamp()
        a('v_lshrrev_b32 %s, 6, v0' % v(T))
        a('v_and_b32 %s, 63, v0' % v(V.lane))
        a('v_readfirstlane_b32 %s, %s' % (sW, v(T)))
        mp = self.o['map']
        a('s_and_b32 %s, s2, 3' % sA)
        if int(self.o['xm']): a('s_xor_b32 %s, %s, %s' % (sA, sA, self.o['xm']))
        if mp in ('0', '1'):
            a('s_bfe_u32 %s, s2, 0x10003' % sB)
            if mp == '0': a('s_lshl1_add_u32 %s, %s, %s' % (sA, sA, sB))
            else: a('s_lshl2_add_u32 %s, %s, %s' % (sA, sB, sA))
            a('s_lshr_b32 %s, s2, 4' % sB)
            a('s_lshl4_add_u32 %s, %s, %s' % (sT, sA, sB))
        else:
            a('s_lshr_b32 %s, s2, 3' % sB)
            a('s_lshl2_add_u32 %s, %s, %s' % (sT, sB, sA))
            a('s_lshr_b32 %s, %s, 4' % (sA, sT)); a('s_and_b32 %s, %s, 15' % (sB, sT))
        a('s_bfe_u32 %s, %s, 0x10001' % (sC, sB))
        a('s_lshl1_add_u32 %s, %s, %s' % (sCB, sA, sC))
        a('s_lshr_b32 %s, %s, 2' % (sSB, sB))
        a('s_and_b32 %s, %s, 1' % (sC, sB))
        a('s_lshl1_add_u32 %s, %s, %s' % (sSB, sSB, sC))
        a('s_mov_b32 s6, 0x400000'); a('s_mov_b32 s7, 0x20000')
        a('v_lshrrev_b32 %s, 4, %s' % (v(V.g), v(V.lane)))
        a('v_lshlrev_b32 %s, 4, %s' % (v(V.l16), v(V.lane)))
        a('v_and_b32 %s, 8, v0' % v(T))
        a('v_lshlrev_b32 %s, 11, %s' % (v(T), v(T)))
        a('v_lshl_add_u32 %s, %s, 20, %s' % (v(T), v(V.g), v(T)))
        a('v_and_b32 %s, 0x70, %s' % (v(T+1), v(V.l16)))
        a('v_add_u32 %s, %s, %s' % (v(V.Xoff), v(T), v(T+1)))
        a('s_lshl4_add_u32 %s, %s, %s' % (sA, sW, sSB))
        a('s_lshl4_add_u32 %s, %s, %s' % (sA, sA, sCB))
        a('s_lshl_b32 %s, %s, 7' % (sO[0], sA))
        for r in range(1, 4): a('s_add_u32 %s, %s, 0x%x' % (sO[r], sO[0], r*262144))
        a('s_lshl3_add_u32 %s, s2, %s' % (sId, sW))
        a('s_xor_b32 %s, %s, %d' % (sCh, sId, 8*int(self.o['qg'])+int(self.o['qw']))); a('s_and_b32 %s, %s, 0xffffff7f' % (sCh, sCh))
    def srds(self):
        a = self.a
        a('s_mov_b32 s10, 2101248'); a('s_mov_b32 s11, 0x20000')
        a('s_mov_b32 s14, 2101248'); a('s_mov_b32 s15, 0x20000')
        a('s_mov_b32 s18, 0x800000'); a('s_mov_b32 s19, 0x20000')
    def srds0(self):
        a = self.a
        a('s_mov_b32 s22, 256'); a('s_mov_b32 s23, 0x20000')
        a('s_mov_b32 s26, 0x%x' % ((80 if self.o['ts'] else 18) << 20)); a('s_mov_b32 s27, 0x20000')
        a('v_and_b32 %s, 15, %s' % (v(V.n), v(V.lane)))
        a('v_mov_b32 %s, 0' % v(V.zero)); a('v_mov_b32 %s, %d' % (v(V.cnt), CNT))

    def x_issue(self):
        for r in range(4):
            self.a('buffer_load_dwordx4 %s, %s, %s, %s offen %s' % (vr(V.L+4*r, 4), v(V.Xoff), SX, sO[r], self.o['ldx']))
    def probe(self):
        a = self.a; T = V.T; NB = int(self.o['nb']); ld = self.o['pld']
        a('s_bfe_u32 %s, s2, 0x10004' % sC)
        a('s_mul_i32 %s, %s, 0x12000' % (sA, sC)); a('s_add_u32 %s, %s, 0x%x' % (sA, sA, int(self.o['pb']) << 20))
        a('s_xor_b32 %s, %s, 0x2000' % (sB, sA))
        a('s_lshl_b32 %s, %s, 16' % (sD, sC)); a('s_add_u32 %s, %s, 0x%x' % (sD, sD, WS_FLAG))
        a('s_mov_b32 s26, 0x%x' % (18 << 20)); a('s_mov_b32 s27, 0x20000')
        a('s_lshl_b32 %s, %s, 3' % (sC, sC))
        a('v_mul_u32_u24 %s, 0x5080, %s' % (v(T), v(V.lane)))
        a('v_lshlrev_b32 %s, 10, %s' % (v(T+1), v(V.lane)))
        a('v_mov_b32 %s, 0' % v(T+2))
        if not ld:
            for k in range(2*NB): a('v_mov_b32 %s, 0' % v(V.DA+k))
        a('s_mov_b64 exec, %s' % self.o['pex'])
        if 'da' in self.o: a('s_waitcnt lgkmcnt(0)'); a('s_mov_b32 s60, s56'); a('s_mov_b32 s58, s56')
        a('s_waitcnt lgkmcnt(0)')
        for side, base in enumerate((sA, sB)):
            for k in range(NB):
                if ld: a('buffer_load_dword %s, %s, %s, %s offen offset:%d %s' % (v(V.DA+side*NB+k), v(T), SWS, base, k*0x300, ld))
                else: a('buffer_atomic_add %s, %s, %s, %s offen offset:%d sc0 sc1' % (v(V.DA+side*NB+k), v(T), SWS, base, k*0x300))
        a('s_mov_b64 exec, -1')
        a('buffer_store_dword %s, %s, %s, %s offen sc1' % (v(T+2), v(T+1), SWS, sD))
        if self.o['pre']: a('s_load_dword s95, s[20:21], 0x80')
        self.x_issue()
        a('s_waitcnt vmcnt(%d)' % (NB+5))
        for x in self.o['pnop'].split(','): a('s_nop %s' % x)
        a('s_getreg_b32 %s, hwreg(HW_REG_IB_STS, 0, 4)' % sA)
        a('s_or_b32 %s, %s, 16' % (sA, sA)); a('s_lshl_b32 s94, %s, %s' % (sA, sC))
        if self.o['merge']: a('s_waitcnt vmcnt(4)')
        a('s_atomic_or s94, s[20:21], 0x80')
        self.mark('pub')
    def clear_done(self):
        a = self.a
        if self.o['merge']: return
        def f():
            a('s_mov_b32 s93, 1'); a('s_waitcnt vmcnt(4)')
            a('s_atomic_add s93, s[20:21], 0x0')
        self.cond(sCh, 0, f)
    def ready_check(self):
        a = self.a; l0, l1 = self.label('rdy'), self.label('rdyok')
        a('s_cmp_ge_u32 %s, 2' % sRv)
        a('s_cbranch_scc1 %s' % l1)
        a('s_mov_b32 %s, 0' % sCnt)
        a(l0+':')
        a('buffer_load_dword %s, %s, %s, 0 offen sc1' % (v(V.tmp), v(V.zero), SDBG))
        a('s_add_u32 %s, %s, 1' % (sCnt, sCnt))
        a('s_cmp_gt_u32 %s, 0x%x' % (sCnt, SPIN_MAX))
        a('s_waitcnt vmcnt(0)')
        a('s_cbranch_scc1 %s' % l1)
        a('v_cmp_gt_u32 vcc, 2, %s' % v(V.tmp))
        a('s_cbranch_vccnz %s' % l0)
        a(l1+':')
    def side_load(self):
        self.a('buffer_load_dword %s, %s, %s, 0 offen offset:128 sc1' % (v(V.tmp), v(V.zero), SDBG))
    def side_wait(self):
        a = self.a
        def f():
            lp, ok = self.label('sw'), self.label('swok')
            a('s_mov_b32 %s, 0' % sCnt)
            a(lp+':')
            a('s_waitcnt vmcnt(0)')
            a('v_and_b32 %s, 0x1010, %s' % (v(V.T), v(V.tmp)))
            a('v_cmp_eq_u32 vcc, 0x1010, %s' % v(V.T))
            a('s_cbranch_vccnz %s' % ok)
            self.side_load()
            a('s_add_u32 %s, %s, 1' % (sCnt, sCnt))
            a('s_cmp_lt_u32 %s, 0x%x' % (sCnt, SPIN_MAX))
            a('s_cbranch_scc1 %s' % lp)
            a('s_waitcnt vmcnt(0)')
            a(ok+':')
            a('ds_write2_b32 %s, %s, %s offset0:0 offset1:1' % (v(V.cnt), v(V.tmp), v(V.zero)))
        self.cond(sW, PW, f)
    def side_use(self):
        a = self.a
        a('v_readfirstlane_b32 %s, %s' % (sA, v(V.tmp)))
        if self.o['ts']: a('s_mov_b32 s%d, %s' % (sTS+24, sA))
        if 'enc' in self.o: a('s_mov_b32 s62, %s' % sA)
        a('s_and_b32 %s, %s, 15' % (sB, sA)); a('s_bfe_u32 %s, %s, 0x40008' % (sA, sA))
        a('s_cmp_gt_u32 %s, %s' % (sA, sB))
        a('s_cselect_b32 %s, 0x2000, 0' % sCh)
        if self.o['force'] != '': a('s_mov_b32 %s, %d' % (sCh, int(self.o['force']) << 13))
        a('s_xor_b32 %s, %s, %s' % (sEst, sEst, sCh))
    def flag_addrs(self):
        a = self.a
        a('s_lshr_b32 %s, %s, 4' % (sB, sT))
        a('s_lshl_b32 %s, %s, 13' % (sA, sP)); a('s_add_u32 %s, %s, 0x%x' % (sA, sA, WS_FLAG))
        for dst, wp, gr in ((sF, sW, sB), (sE, sB, sW)):
            a('s_lshl4_add_u32 %s, %s, %s' % (sC, wp, gr)); a('s_lshl_b32 %s, %s, 10' % (sC, sC))
            a('s_add_u32 %s, %s, %s' % (dst, sC, sA))
        R = int(self.o['rep'])
        if R > 1:
            a('s_and_b32 %s, %s, %d' % (sC, sT, R-1)); a('s_lshl_b32 %s, %s, 8' % (sC, sC)); a('s_add_u32 %s, %s, %s' % (sE, sE, sC))
    def side_apply(self):
        for r in (sF, sE, sEld): self.a('s_xor_b32 %s, %s, %s' % (r, r, sCh))
    def arrive(self):
        for r in range(int(self.o['rep'])): self.a('s_atomic_add %s, s[24:25], %s offset:%d' % (sInc, sF, 256*r))
    def poll(self, ex, under=None):
        a = self.a; lp, ok = self.label('poll'), self.label('pollok')
        if under:
            a('s_mov_b32 %s, 0' % sRv)
            a('s_atomic_add %s, s[24:25], %s glc' % (sRv, sE))
            under()
            a('s_waitcnt lgkmcnt(0)')
            a('s_bitcmp1_b32 %s, %d' % (sRv, 4+16*ex))
            a('s_cbranch_scc1 %s' % ok)
        a('s_mov_b32 %s, 0' % sCnt)
        a(lp+':')
        a('s_mov_b32 %s, 0' % sRv)
        a('s_atomic_add %s, s[24:25], %s glc' % (sRv, sE))
        a('s_add_u32 %s, %s, 1' % (sCnt, sCnt))
        a('s_cmp_gt_u32 %s, 0x%x' % (sCnt, SPIN_MAX))
        a('s_waitcnt lgkmcnt(0)')
        a('s_cbranch_scc1 %s' % ok)
        if self.o['slp']:
            a('s_bitcmp1_b32 %s, %d' % (sRv, 4+16*ex))
            a('s_cbranch_scc1 %s' % ok)
            if self.o['sthr']:
                a('s_bfe_u32 %s, %s, 0x%x' % (sA, sRv, 0x50000+16*ex))
                a('s_cmp_ge_u32 %s, %s' % (sA, self.o['sthr'])); a('s_cbranch_scc1 %s' % lp)
            a('s_sleep %s' % self.o['slp'])
            a('s_branch %s' % lp)
        else:
            a('s_bitcmp0_b32 %s, %d' % (sRv, 4+16*ex))
            a('s_cbranch_scc1 %s' % lp)
        a(ok+':')
    def ex_addrs(self):
        a = self.a; T = V.T
        a('s_lshl_b32 %s, %s, 4' % (sB, sW)); a('s_xor_b32 %s, %s, %s' % (sB, sB, sT)); a('s_lshl_b32 %s, %s, 8' % (sB, sB))
        a('v_lshlrev_b32 %s, 4, %s' % (v(T), v(V.n)))
        a('v_lshl_add_u32 %s, %s, 10, %s' % (v(T), v(V.g), v(T)))
        a('v_xor_b32 %s, %s, %s' % (v(T), sB, v(T)))
        a('v_and_b32 %s, 0x6000, %s' % (v(T+1), v(T)))
        a('v_add_u32 %s, %s, %s' % (v(T), v(T), v(T+1)))
        a('v_lshl_add_u32 %s, %s, 18, %s' % (v(V.Est), v(V.g), v(T)))
        a('v_and_b32 %s, 0xdcff, %s' % (v(V.Eld), v(T)))
        a('s_bfe_u32 %s, %s, 0x10001' % (sA, sW)); a('s_xor_b32 %s, %s, %s' % (sA, sA, sP))
        a('s_bfe_u32 %s, %s, 0x10005' % (sC, sT)); a('s_xor_b32 %s, %s, %s' % (sC, sC, sP))
        a('s_lshl_b32 %s, %s, 7' % (sEst, sW)); a('s_add_u32 %s, %s, %s' % (sEst, sEst, sA)); a('s_lshl_b32 %s, %s, 13' % (sEst, sEst))
        a('s_lshl3_add_u32 %s, %s, %s' % (sEld, sT, sC)); a('s_lshl_b32 %s, %s, 13' % (sEld, sEld))

    def trig(self, x, re, im, conj_re=None, conj_im=None):
        a = self.a; c, s = V.T+8, V.T+9
        a('v_cos_f32 %s, %s' % (v(c), v(x)))
        a('v_sin_f32 %s, %s' % (v(s), v(x)))
        if getattr(self, 'fill', None): self.fill(); self.fill = None
        a('v_cvt_pk_bf16_f32 %s, %s, %s' % (v(re), v(c), v(s)))
        a('v_cvt_pk_bf16_f32 %s, -%s, %s' % (v(im), v(s), v(c)))
        if conj_re is not None:
            a('v_xor_b32 %s, 0x80000000, %s' % (v(conj_re), v(re)))
            a('v_xor_b32 %s, 0x8000, %s' % (v(conj_im), v(im)))
    def ladder(self, x, step, regs):
        a = self.a
        for k, r in enumerate(regs):
            if k < len(regs)-1: self.fill = lambda: a('v_add_f32 %s, %s, %s' % (v(x), v(x), v(step)))
            self.trig(x, *r)
    def gen_F16(self):
        a = self.a; T = V.T
        a('v_cvt_f32_u32 %s, %s' % (v(T), v(V.n)))
        a('v_cvt_f32_u32 %s, %s' % (v(T+1), v(V.g)))
        a('v_mul_f32 %s, %s, %s' % (v(T), lit(1/16), v(T)))
        a('v_mul_f32 %s, 4.0, %s' % (v(T+1), v(T+1)))
        a('v_mul_f32 %s, %s, %s' % (v(T+2), v(T), v(T+1)))
        self.ladder(T+2, T, [(V.F16+r, V.F16+4+r) for r in range(4)])
    def gen_M2(self):
        a = self.a; T = V.T
        def normal():
            a('v_cvt_f32_u32 %s, %s' % (v(T+2), sW))
            a('v_fmac_f32 %s, %s, %s' % (v(T), lit(1/256), v(T+2)))
            a('v_mul_f32 %s, %s, %s' % (v(T+2), v(T), v(T+1)))
            self.ladder(T+2, T, [(V.M2+r, V.M2+4+r, V.M2+8+r, V.M2+12+r) for r in range(4)])
        def w0():
            a('v_lshrrev_b32 %s, 1, %s' % (v(T), v(V.n)))
            a('v_cvt_f32_u32 %s, %s' % (v(T), v(T)))
            a('v_lshlrev_b32 %s, 31, %s' % (v(T+3), v(V.n)))
            a('v_add_f32 %s, 0.5, %s' % (v(T+4), v(T)))
            a('v_xor_b32 %s, %s, %s' % (v(T+3), lit(1/16), v(T+3)))
            a('v_cmp_ne_u32 vcc, 1, %s' % v(V.n))
            a('v_mul_f32 %s, %s, %s' % (v(T), v(T), v(T+3)))
            a('v_mul_f32 %s, %s, %s' % (v(T+4), v(T+4), v(T+3)))
            a('v_cndmask_b32 %s, 0.5, %s, vcc' % (v(T), v(T)))
            for ts in range(2):
                d = T+4*ts
                a('v_mul_f32 %s, %s, %s' % (v(T+2), v(d), v(T+1)))
                self.ladder(T+2, d, [(V.M2+8*ts+r, V.M2+8*ts+4+r) for r in range(4)])
        self.ifelse(sW, 0, w0, normal)
    def gen_M3(self):
        a = self.a; T = V.T
        a('v_cvt_f32_u32 %s, %s' % (v(T), v(V.n)))
        a('v_mul_f32 %s, %s, %s' % (v(T+1), lit(1/256), v(T)))
        a('v_mul_f32 %s, %s, %s' % (v(T), lit(1/16), v(T)))
        def normal():
            a('v_lshl_add_u32 %s, %s, 6, %s' % (v(T+2), v(V.g), sW))
            a('v_cvt_f32_u32 %s, %s' % (v(T+2), v(T+2)))
            a('v_mul_f32 %s, %s, %s' % (v(T+2), v(T+2), v(T+1)))
            self.ladder(T+2, T, [(V.M2+r, V.M2+4+r, V.M2+8+r, V.M2+12+r) for r in range(4)])
        def w0():
            a('v_lshlrev_b32 %s, 5, %s' % (v(T+2), v(V.g)))
            a('v_cvt_f32_u32 %s, %s' % (v(T+2), v(T+2)))
            a('v_mul_f32 %s, 0.5, %s' % (v(T), v(T)))
            a('v_mul_f32 %s, %s, %s' % (v(T+2), v(T+2), v(T+1)))
            regs = []
            for k in range(4):
                b = V.M2+8*(k & 1)+2*(k >> 1)
                regs.append((b, b+4, b+1, b+5))
            self.ladder(T+2, T, regs)
            a('s_mov_b64 exec, 0xffff')
            a('v_lshlrev_b32 %s, 15, %s' % (v(T+2), v(V.n)))
            a('v_and_b32 %s, 0x8000, %s' % (v(T+2), v(T+2)))
            a('v_or_b32 %s, 0x3f80, %s' % (v(V.M2+1), v(T+2)))
            a('v_lshlrev_b32 %s, 16, %s' % (v(V.M2+5), v(V.M2+1)))
            a('s_mov_b64 exec, -1')
        self.ifelse(sW, 0, w0, normal)
    def sigma_lane(self, dst):
        a = self.a; t = V.T+7
        a('v_and_b32 %s, 17, %s' % (v(dst), v(V.lane)))
        a('v_bfe_u32 %s, %s, 2, 2' % (v(t), v(V.lane)))
        a('v_lshl_add_u32 %s, %s, 1, %s' % (v(dst), v(t), v(dst)))
        a('v_and_b32 %s, 2, %s' % (v(t), v(V.lane)))
        a('v_lshl_add_u32 %s, %s, 2, %s' % (v(dst), v(t), v(dst)))
    def coop_gen(self):
        a = self.a; T = V.T; X = V.DA
        self.sigma_lane(T)
        a('v_lshrrev_b32 %s, 5, %s' % (v(T+1), v(V.lane)))
        a('v_lshlrev_b32 %s, 7, %s' % (v(T+2), v(T+1)))
        a('v_lshl_add_u32 %s, %s, 1, %s' % (v(T+2), v(T), v(T+2)))
        a('s_and_b32 %s, %s, 2' % (sD, sKP)); a('s_sub_u32 %s, %s, %s' % (sD, sWL, sD))
        a('v_add_u32 %s, %s, %s' % (v(V.WP), sD, v(T+2)))
        a('s_add_u32 %s, %s, %d' % (sD, sD, 1024-832))
        a('v_sub_u32 %s, %s, %s' % (v(V.WM), sD, v(T+2)))
        a('v_cvt_f32_u32 %s, %s' % (v(T), v(T)))
        a('s_mul_i32 %s, %s, 4' % (sA, sW)); a('s_lshr_b32 %s, 0x75643120, %s' % (sA, sA)); a('s_and_b32 %s, %s, 7' % (sA, sA)); a('s_lshl_b32 %s, %s, 2' % (sA, sA))
        a('v_lshl_add_u32 %s, %s, 1, %s' % (v(T+1), v(T+1), sA))
        a('v_mul_f32 %s, %s, %s' % (v(T), lit(1/2048), v(T)))
        a('v_cvt_f32_u32 %s, %s' % (v(T+1), v(T+1)))
        a('v_mul_f32 %s, %s, %s' % (v(T+2), v(T+1), v(T)))
        for e in range(2):
            a('v_cos_f32 %s, %s' % (v(T+5), v(T+2)))
            a('v_sin_f32 %s, %s' % (v(T+6), v(T+2)))
            a('v_rcp_f32 %s, %s' % (v(T+5), v(T+5)))
            a('v_mul_f32 %s, %s, %s' % (v(T+3), lit(64.0), v(T+2)))
            a('v_mul_f32 %s, %s, %s' % (v(X+4+e), v(T+6), v(T+5)))
            a('v_fma_f32 %s, %s, %s, 1.0' % (v(T+5), v(X+4+e), v(X+4+e)))
            a('v_rcp_f32 %s, %s' % (v(T+6), v(T+5)))
            a('v_mul_f32 %s, -2.0, %s' % (v(T+4), v(X+4+e)))
            a('v_fma_f32 %s, -%s, %s, 1.0' % (v(T+5), v(T+5), v(T+6)))
            a('v_fmac_f32 %s, %s, %s' % (v(T+6), v(T+5), v(T+6)))
            a('v_mul_f32 %s, %s, %s' % (v(X+6+e), v(T+6), v(T+4)))
            if e == 0: self.fill = lambda: a('v_add_f32 %s, %s, %s' % (v(T+2), v(T+2), v(T)))
            self.trig(T+3, X+e, X+2+e)
        a('s_lshr_b32 %s, %s, 1' % (sA, sW)); a('s_lshl_b32 %s, %s, 7' % (sA, sA))
        a('s_and_b32 %s, %s, 1' % (sB, sW)); a('s_add_u32 %s, %s, %s' % (sA, sA, sB))
        a('s_lshl3_add_u32 %s, %s, %d' % (sA, sA, TABL))
        a('v_add_u32 %s, %s, %s' % (v(T), sA, v(V.l16)))
        for k in range(4): a('ds_write_b64 %s, %s offset:%d' % (v(T), vr(X+2*k, 2), 4096*k))
    def coop_post(self):
        a = self.a
        a('v_mov_b32 %s, 1' % v(V.T+1))
        a('ds_add_u32 %s, %s offset:4' % (v(V.cnt), v(V.T+1)))
    def coop_wait(self):
        a = self.a; T = V.T; lp, ok = self.label('cw'), self.label('cwok')
        a('s_mov_b32 %s, 0' % sCnt)
        a(lp+':')
        a('ds_read_b32 %s, %s offset:4' % (v(T), v(V.cnt)))
        a('s_add_u32 %s, %s, 1' % (sCnt, sCnt))
        a('s_cmp_gt_u32 %s, 0x%x' % (sCnt, SPIN_MAX*8))
        a('s_waitcnt lgkmcnt(0)')
        a('s_cbranch_scc1 %s' % ok)
        a('v_cmp_gt_u32 vcc, 0x200, %s' % v(T))
        a('s_cbranch_vccnz %s' % lp)
        a(ok+':')
    def coop_read(self):
        a = self.a; T = V.T
        a('v_add_u32 %s, %d, %s' % (v(T), TABL, v(V.l16)))
        for k in range(16): a('ds_read_b128 %s, %s offset:%d' % (vr(V.F32+4*k, 4), v(T), 1024*k))
    def calc_k0(self):
        a = self.a
        a('s_lshr_b32 %s, %s, 4' % (sA, sT)); a('s_and_b32 %s, %s, 15' % (sB, sT))
        a('s_lshl4_add_u32 %s, %s, %s' % (sK0, sB, sA))
        a('s_and_b32 %s, %s, 12' % (sC, sB)); a('s_bfe_u32 %s, %s, 0x10001' % (sD, sB)); a('s_add_u32 %s, %s, %s' % (sC, sC, sD))
        a('s_and_b32 %s, %s, 1' % (sD, sB)); a('s_lshl1_add_u32 %s, %s, %s' % (sC, sD, sC)); a('s_lshl_b32 %s, %s, 3' % (sC, sC))
        a('s_cmp_eq_u32 %s, 0' % sA); a('s_cselect_b32 %s, %s, %s' % (sK0, sC, sK0))
        a('s_cmp_eq_u32 %s, 0' % sT); a('s_cselect_b32 %s, 7, 8' % sA)
        a('s_lshl_b32 %s, %s, %s' % (sKP, sW, sA)); a('s_add_u32 %s, %s, %s' % (sKP, sKP, sK0))
        a('s_sub_u32 %s, 0x800, %s' % (sKM, sKP))
        a('s_cmp_eq_u32 %s, 0' % sKP)
        a('s_cselect_b32 %s, 0x400, %s' % (sKM, sKM)); a('s_cselect_b32 %s, 1, 0' % sSpec)
        a('s_mul_i32 %s, %s, 1026' % (sKP, sKP)); a('s_mul_i32 %s, %s, 1026' % (sKM, sKM))
        a('s_mul_i32 %s, %s, 4224' % (sWL, sW)); a('s_add_u32 %s, %s, %d' % (sWL, sWL, WL))
        a('s_and_b32 %s, %s, 2' % (sA, sKP))
        a('s_add_u32 %s, %s, %s' % (sDP, sKP, sA)); a('s_add_u32 %s, %s, %s' % (sDM, sKM, sA))
    def gen_B(self):
        a = self.a; T = V.T; c, s = T+8, T+9
        a('v_lshrrev_b32 %s, 1, %s' % (v(T), v(V.n)))
        a('v_cvt_f32_u32 %s, %s' % (v(T+2), v(V.g)))
        a('v_and_b32 %s, 1, %s' % (v(T+3), v(V.n)))
        a('v_add_f32 %s, %s, %s' % (v(T+2), v(T+2), v(T+2)))
        def normal():
            a('v_lshl_add_u32 %s, %s, 8, %s' % (v(T+1), v(T), sK0))
            a('v_lshlrev_b32 %s, 4, %s' % (v(T+4), v(T+3)))
            a('v_cvt_f32_u32 %s, %s' % (v(T+1), v(T+1)))
            a('v_lshlrev_b32 %s, 31, %s' % (v(T+6), v(V.n)))
            a('v_cvt_f32_u32 %s, %s' % (v(T+3), v(T+3)))
            a('v_mul_f32 %s, %s, %s' % (v(T+1), lit(1/2048), v(T+1)))
            a('s_brev_b32 %s, 1' % sA)
            a('v_lshrrev_b32 %s, %s, %s' % (v(T+4), v(T+4), sA))
            a('v_mul_f32 %s, %s, %s' % (v(T+5), v(T+1), v(T+2)))
            a('v_fmac_f32 %s, %s, %s' % (v(T+5), lit(0.25), v(T+3)))
            for sbb in range(2):
                if sbb == 0: self.fill = lambda: a('v_add_f32 %s, %s, %s' % (v(T+5), v(T+5), v(T+1)))
                else: self.fill = lambda: a('v_cvt_f32_u32 %s, %s' % (v(T), v(T)))
                self.trig(T+5, V.B+2*sbb, V.B+6+2*sbb)
                a('v_xor_b32 %s, %s, %s' % (v(V.B+2*sbb+1), v(V.B+2*sbb), v(T+4)))
                a('v_xor_b32 %s, %s, %s' % (v(V.B+6+2*sbb+1), v(V.B+6+2*sbb), v(T+4)))
            a('v_lshl_add_u32 %s, %s, 9, %s' % (v(T+1), v(V.g), sK0))
            a('v_xor_b32 %s, %s, %s' % (v(T), v(T), v(T+6)))
            a('v_cvt_f32_u32 %s, %s' % (v(T+1), v(T+1)))
            a('v_mul_f32 %s, 0.5, %s' % (v(T+5), v(T+3)))
            a('v_mul_f32 %s, %s, %s' % (v(T+1), lit(1/2048), v(T+1)))
            a('v_fmac_f32 %s, %s, %s' % (v(T+5), v(T+1), v(T)))
            for ii in range(2):
                a('v_cos_f32 %s, %s' % (v(c), v(T+5)))
                a('v_sin_f32 %s, %s' % (v(s), v(T+5)))
                a('v_mul_f32 %s, %s, %s' % (v(c), lit(SC), v(c)))
                a('v_mul_f32 %s, %s, %s' % (v(s), lit(SC), v(s)))
                if ii == 0: a('v_fmac_f32 %s, %s, %s' % (v(T+5), lit(0.125), v(T)))
                a('v_cvt_pk_bf16_f32 %s, %s, %s' % (v(T+1), v(c), v(s)))
                a('v_cvt_pk_bf16_f32 %s, -%s, %s' % (v(T+2), v(s), v(c)))
                a('v_xor_b32 %s, %s, %s' % (v(V.Bp+2*ii), v(T+1), v(T+6)))
                a('v_xor_b32 %s, %s, %s' % (v(V.Bp+4+2*ii), v(T+2), v(T+6)))
                a('v_xor_b32 %s, %s, %s' % (v(V.Bp+2*ii+1), v(T+2), v(T+6)))
                a('v_xor_b32 %s, 0x80008000, %s' % (v(V.Bp+4+2*ii+1), v(V.Bp+2*ii)))
        def special():
            a('v_cvt_f32_u32 %s, %s' % (v(T+1), v(T)))
            a('v_mul_f32 %s, %s, %s' % (v(T+1), lit(1/16), v(T+1)))
            a('v_lshlrev_b32 %s, 4, %s' % (v(T+4), v(T+3)))
            a('v_cmp_eq_u32 s[84:85], 0, %s' % v(T))
            a('v_and_b32 %s, 1, %s' % (v(T+6), v(T)))
            a('v_cmp_eq_u32 s[86:87], 1, %s' % v(T+6))
            a('v_mul_f32 %s, %s, %s' % (v(T+5), v(T+1), v(T+2)))
            for sbb in range(2):
                a('v_cos_f32 %s, %s' % (v(c), v(T+5)))
                a('v_sin_f32 %s, %s' % (v(s), v(T+5)))
                a('v_mul_f32 %s, 2.0, %s' % (v(c), v(c)))
                a('v_mul_f32 %s, -2.0, %s' % (v(s), v(s)))
                a('v_cndmask_b32 %s, %s, 1.0, s[84:85]' % (v(c), v(c)))
                a('v_cndmask_b32 %s, %s, %s, s[84:85]' % (v(s), v(s), '-1.0' if sbb else '1.0'))
                for src, dst in ((c, V.B+2*sbb), (s, V.B+6+2*sbb)):
                    a('v_cvt_pk_bf16_f32 %s, %s, 0' % (v(T+7), v(src)))
                    a('v_lshlrev_b32 %s, %s, %s' % (v(T+7), v(T+4), v(T+7)))
                    a('v_cndmask_b32 %s, %s, 0, s[86:87]' % (v(dst), v(T+7)))
                    a('v_cndmask_b32 %s, 0, %s, s[86:87]' % (v(dst+1), v(T+7)))
                a('v_add_f32 %s, %s, %s' % (v(T+5), v(T+5), v(T+1)))
            a('v_cmp_eq_u32 s[88:89], 0, %s' % v(V.g))
            a('v_cmp_eq_u32 s[90:91], 1, %s' % v(T+3))
            a('v_lshlrev_b32 %s, 31, %s' % (v(T+6), v(T)))
            a('v_xor_b32 %s, %s, %s' % (v(T+6), lit(SC), v(T+6)))
            a('v_mov_b32 %s, %s' % (v(T+4), lit(SC)))
            a('v_mul_f32 %s, %s, %s' % (v(T+5), v(T+1), v(T+2)))
            for ii in range(2):
                a('v_cos_f32 %s, %s' % (v(c), v(T+5)))
                a('v_sin_f32 %s, %s' % (v(s), v(T+5)))
                a('v_mul_f32 %s, %s, %s' % (v(c), lit(2*SC), v(c)))
                a('v_mul_f32 %s, %s, %s' % (v(s), lit(-2*SC), v(s)))
                if ii == 0:
                    a('v_cndmask_b32 %s, %s, %s, s[88:89]' % (v(c), v(c), v(T+4)))
                    a('v_cndmask_b32 %s, %s, %s, s[88:89]' % (v(s), v(s), v(T+6)))
                a('v_cvt_pk_bf16_f32 %s, %s, %s' % (v(T+7), v(s), v(c)))
                if ii: a('v_cndmask_b32 %s, 0, %s, s[90:91]' % (v(T+7), v(T+7)))
                else: a('v_cndmask_b32 %s, %s, 0, s[90:91]' % (v(T+7), v(T+7)))
                a('v_mov_b32 %s, 0' % v(V.Bp+2*ii)); a('v_mov_b32 %s, %s' % (v(V.Bp+2*ii+1), v(T+7)))
                a('v_mov_b32 %s, %s' % (v(V.Bp+4+2*ii), v(T+7))); a('v_mov_b32 %s, 0' % v(V.Bp+4+2*ii+1))
                a('v_add_f32 %s, %s, %s' % (v(T+5), v(T+5), v(T+1)))
        self.far(sT, 0, special, normal)
        for d, r in ((4, 0), (5, 1), (10, 6), (11, 7)): a('v_mov_b32 %s, %s' % (v(V.B+d), v(V.B+r)))

    def wq(self, rho): return (rho & 1) + 8*((rho >> 1) & 1) + 4*((rho >> 2) & 1)
    def w_dma1(self, i):
        a = self.a
        srd, so = [(SWR, sDP), (SWI, sDP), (SWR, sDM), (SWI, sDM)][i]
        a('s_add_u32 m0, %s, %d' % (sWL, 1056*i))
        a('buffer_load_dwordx4 %s, %s, %s offen %s lds' % (v(V.l16), srd, so, self.o['ldw']))
    def w_dma(self):
        for i in range(4): self.w_dma1(i)
    def w_edge_load(self):
        a = self.a; T = V.T
        a('s_mov_b64 exec, 15')
        a('v_mov_b32 %s, %s' % (v(T), sKP)); a('v_mov_b32 %s, %s' % (v(T+1), sKM))
        a('s_mov_b64 vcc, 10')
        a('v_cndmask_b32 %s, %s, %s, vcc' % (v(T), v(T), v(T+1)))
        a('v_and_b32 %s, 2, %s' % (v(T+1), v(V.lane)))
        a('v_lshl_add_u32 %s, %s, 9, %s' % (v(T), v(T+1), v(T)))
        a('buffer_load_short_d16_hi %s, %s, %s, 0 offen' % (v(V.WF), v(T), SWR))
        a('buffer_load_short_d16_hi %s, %s, %s, 0 offen' % (v(V.WF+1), v(T), SWI))
        a('s_mov_b64 exec, -1')
    def w_edge_rl(self):
        for l in range(4):
            for im in range(2): self.a('v_readlane_b32 s%d, %s, %d' % (84+2*l+im, v(V.WF+im), l))
    def w_edge(self):
        a = self.a; T = V.T
        self.w_edge_rl()
        q = ((84, 86, 'add'), (85, 87, 'sub'), (90, 88, 'add'), (91, 89, 'sub'))
        for i, (x, y, op) in enumerate(q): a('v_mov_b32 %s, s%d' % (v(T+i), y))
        for i, (x, y, op) in enumerate(q): a('v_%s_f32 %s, s%d, %s' % (op, v(V.WF+i), x, v(T+i)))
        for i in range(4): a('v_mul_f32 %s, 0.5, %s' % (v(V.WF+i), v(V.WF+i)))
        a('s_mov_b64 s[92:93], 1')
    def w_read1(self, rho, im, dst=None, swap=False):
        dst = V.W if dst is None else dst
        if rho < 8: ad, off = V.WP, 64*self.wq(rho) + (2112 if swap else 0)
        else: ad, off = V.WM, 64*(13-self.wq(rho)) + (0 if swap else 2112)
        return 'ds_read_u16_d16_hi %s, %s offset:%d' % (v(dst+16*im+rho), v(ad), off+1056*im)
    def w_fix(self, half):
        return ['v_cndmask_b32 %s, %s, %s, s[92:93]' % (v(V.W+8*half+16*im), v(V.W+8*half+16*im), v(V.WF+2*half+im)) for im in range(2)]
    def w_special(self):
        a = self.a; T = V.T; X = V.DA
        def f():
            for sw, dst in ((False, V.W), (True, X)):
                for rho in range(16):
                    for im in range(2): a(self.w_read1(rho, im, dst, sw))
            a('s_waitcnt lgkmcnt(0) vmcnt(0)')
            self.w_edge_rl()
            a('s_mov_b64 exec, 1')
            for r in (V.W+16, V.W+24, X+16, X+24): a('v_mov_b32 %s, 0' % v(r))
            a('v_mov_b32 %s, s90' % v(V.W+8)); a('v_mov_b32 %s, s88' % v(X+8))
            a('s_mov_b64 exec, -1')
            for i in range(32):
                a('v_add_f32 %s, %s, %s' % (v(V.W+i), v(V.W+i), v(X+i)))
                if (i & 15) < 8: a('v_fma_f32 %s, -2.0, %s, %s' % (v(X+i), v(X+i), v(V.W+i)))
                else: a('v_fma_f32 %s, 2.0, %s, -%s' % (v(X+i), v(X+i), v(V.W+i)))
            a('v_add_u32 %s, %d, %s' % (v(T+1), SCR_B, v(V.l16)))
            for i in range(8): a('ds_write_b128 %s, %s offset:%d' % (v(T+1), vr(X+4*i, 4), 1024*i))
        self.far(sSpec, 1, f)

    def addrs1(self):
        a = self.a; T = V.T
        a('v_lshrrev_b32 %s, 3, %s' % (v(T), v(V.lane)))
        a('v_and_b32 %s, 0x30, %s' % (v(T+1), v(V.l16)))
        a('v_lshl_add_u32 %s, %s, 6, %s' % (v(T), v(T), v(T+1)))
        a('v_and_b32 %s, 4, %s' % (v(T+1), v(V.lane)))
        a('v_lshl_add_u32 %s, %s, 1, %s' % (v(V.TR), v(T+1), v(T)))
        a('v_xor_b32 %s, %s, %s' % (v(T), sSB, v(V.lane)))
        a('v_and_b32 %s, 1, %s' % (v(T), v(T)))
        a('v_mul_u32_u24 %s, 16448, %s' % (v(T), v(T)))
        a('v_lshl_add_u32 %s, %s, 12, %s' % (v(T), v(V.g), v(T)))
        a('v_lshl_add_u32 %s, %s, 2, %s' % (v(T), v(T+1), v(T)))
        a('v_and_b32 %s, 0x60, %s' % (v(T+1), v(V.TR)))
        a('s_lshr_b32 %s, %s, 1' % (sWp, sW)); a('s_and_b32 %s, %s, 1' % (sA, sW))
        a('s_lshl2_add_u32 %s, %s, %s' % (sWp, sA, sWp)); a('s_lshl_b32 %s, %s, 7' % (sWp, sWp))
        a('v_add3_u32 %s, %s, %s, %s' % (v(V.X0w), v(T), v(T+1), sWp))
        a('s_lshl_b32 %s, %s, 10' % (sA, sW))
        a('s_sub_u32 %s, 0x4000, %s' % (sB, sA))
        a('s_cmp_eq_u32 %s, 0' % sW); a('s_cselect_b32 %s, 0x2000, %s' % (sB, sB))
        a('v_add_u32 %s, %s, %s' % (v(V.X0r0), sA, v(V.TR)))
        a('v_add_u32 %s, %s, %s' % (v(V.X0r1), sB, v(V.TR)))
    def addrs2(self):
        a = self.a; T = V.T
        a('v_lshlrev_b32 %s, 4, %s' % (v(T), v(V.n)))
        a('v_lshl_add_u32 %s, %s, 13, %s' % (v(T), v(V.g), v(T)))
        a('s_lshl_b32 %s, %s, 9' % (sA, sW)); a('s_add_u32 %s, %s, %d' % (sA, sA, R1))
        a('v_add_u32 %s, %s, %s' % (v(V.X1w), sA, v(T)))
        a('s_lshl_b32 %s, %s, 12' % (sA, sW)); a('s_add_u32 %s, %s, %d' % (sA, sA, R1))
        a('v_add_u32 %s, %s, %s' % (v(V.X1r), sA, v(V.TR)))
        a('v_and_b32 %s, 16, %s' % (v(T), v(V.l16)))
        a('v_and_b32 %s, 2, %s' % (v(T+1), v(V.lane)))
        a('v_bfe_u32 %s, %s, 2, 1' % (v(T+2), v(V.lane)))
        a('v_add_u32 %s, %s, %s' % (v(T+1), v(T+1), v(T+2)))
        a('v_mul_u32_u24 %s, 8224, %s' % (v(T+1), v(T+1)))
        a('v_bfe_u32 %s, %s, 3, 2' % (v(T+2), v(V.lane)))
        a('v_lshl_add_u32 %s, %s, 11, %s' % (v(T), v(T+2), v(T)))
        a('v_and_b32 %s, 32, %s' % (v(T+2), v(V.lane)))
        a('v_add3_u32 %s, %s, %s, %s' % (v(T), v(T), v(T+1), v(T+2)))
        a('v_add_u32 %s, %s, %s' % (v(V.X2w), sWp, v(T)))
        a('s_and_b32 %s, %s, 1' % (sA, sW)); a('s_lshr_b32 %s, %s, 2' % (sB, sW)); a('s_lshl1_add_u32 %s, %s, %s' % (sA, sB, sA)); a('s_lshl_b32 %s, %s, 11' % (sA, sA))
        a('s_and_b32 %s, %s, 2' % (sB, sW)); a('s_mul_i32 %s, %s, 8224' % (sB, sB)); a('s_add_u32 %s, %s, %s' % (sA, sA, sB))
        a('v_add_u32 %s, %s, %s' % (v(V.X2r), sA, v(V.TR)))
    def addrs3(self):
        a = self.a; T = V.T
        a('v_and_b32 %s, 16, %s' % (v(T), v(V.lane)))
        a('v_and_b32 %s, 33, %s' % (v(T+1), v(V.lane)))
        a('v_lshl_add_u32 %s, %s, 5, %s' % (v(T), v(T+1), v(T)))
        a('v_and_b32 %s, 8, %s' % (v(T+1), v(V.lane)))
        a('v_lshl_add_u32 %s, %s, 9, %s' % (v(T), v(T+1), v(T)))
        a('v_and_b32 %s, 2, %s' % (v(T+1), v(V.lane)))
        a('v_and_b32 %s, 4, %s' % (v(T+2), v(V.lane)))
        a('v_mul_u32_u24 %s, 4104, %s' % (v(T+1), v(T+1)))
        a('v_mul_u32_u24 %s, 4112, %s' % (v(T+2), v(T+2)))
        a('v_add3_u32 %s, %s, %s, %s' % (v(T), v(T), v(T+1), v(T+2)))
        a('s_sub_u32 %s, 16, %s' % (sC, sW))
        a('s_cmp_eq_u32 %s, 0' % sW); a('s_cselect_b32 %s, 8, %s' % (sC, sC))
        for kl, dst in ((sW, V.X3w0), (sC, V.X3w1)):
            a('s_lshr_b32 %s, %s, 2' % (sA, kl)); a('s_and_b32 %s, %s, 1' % (sB, kl)); a('s_lshl1_add_u32 %s, %s, %s' % (sA, sA, sB))
            a('s_and_b32 %s, %s, 2' % (sB, kl)); a('s_lshl2_add_u32 %s, %s, %s' % (sA, sB, sA))
            a('s_lshl_b32 %s, %s, 6' % (sA, sA)); a('s_add_u32 %s, %s, %d' % (sA, sA, R1))
            a('v_add_u32 %s, %s, %s' % (v(dst), sA, v(T)))
        a('s_and_b32 %s, %s, 1' % (sA, sW)); a('s_mul_i32 %s, %s, 8208' % (sA, sA))
        a('s_and_b32 %s, %s, 2' % (sB, sW)); a('s_mul_i32 %s, %s, 8224' % (sB, sB)); a('s_add_u32 %s, %s, %s' % (sA, sA, sB))
        a('s_and_b32 %s, %s, 4' % (sB, sW)); a('s_lshl_b32 %s, %s, 10' % (sB, sB)); a('s_add_u32 %s, %s, %s' % (sA, sA, sB))
        a('s_add_u32 %s, %s, %d' % (sA, sA, R1))
        a('v_add_u32 %s, %s, %s' % (v(V.X3r), sA, v(V.TR)))
        a('v_and_b32 %s, 0x70, %s' % (v(T), v(V.l16)))
        a('v_lshlrev_b32 %s, 1, %s' % (v(V.Ooff), v(V.Xoff)))
        a('v_sub_u32 %s, %s, %s' % (v(V.Ooff), v(V.Ooff), v(T)))

    def mf16(self, d, A, B): return 'v_mfma_f32_16x16x32_bf16 %s, %s, %s, 0' % (vr(d, 4), vr(A, 4), vr(B, 4))
    def cvt(self, d, lo, hi): return 'v_cvt_pk_bf16_f32 %s, %s, %s' % (v(d), v(lo), v(hi))
    def mf32(self, d, i, pl, dataA):
        M = vr(V.F32+16*pl+4*i, 4); X = vr(V.O+4*i, 4)
        A, B = (X, M) if dataA else (M, X)
        D = vr(d+16*pl, 16)
        return 'v_mfma_f32_32x32x16_bf16 %s, %s, %s, %s' % (D, A, B, D if i else '0')
    def emit(self, L):
        for x in L: self.a(x)

    def p1(self):
        a = self.a; O, L, D, P = V.O, V.L, V.DA, V.DB
        for r in range(4):
            a('s_waitcnt vmcnt(%d)' % (3-r+(2 if self.o['e1'] else 0)))
            if r == 3:
                self.stamp()
                if self.o['spos'] == 'mid': self.cond(sW, PW, self.side_load)
            for t in range(4): a('v_mov_b32 %s, %s' % (v(O+4*t+r), v(L+4*r+t)))
        for t in range(4):
            a(self.mf16(D+4*t, V.F16, O+4*t)); a(self.mf16(D+16+4*t, V.F16+4, O+4*t))
        if self.o['spos'] == 'late': self.cond(sW, PW, self.side_load)
        def sp():
            self.srds()
            a('s_mov_b32 %s, 0' % sDP); a('s_mov_b32 %s, %d' % (sDM, 1024*1026)); a('s_mov_b32 %s, %d' % (sWL, WL))
            self.w_dma()
        a('s_or_b32 %s, %s, %s' % (sA, sT, sW))
        self.far(sA, 0, sp)
        for r in range(4):
            a(self.cvt(P+4*r, D+r, D+4+r)); a(self.cvt(P+4*r+2, D+16+r, D+20+r))
        for r in range(4):
            a(self.cvt(P+4*r+1, D+8+r, D+12+r)); a(self.cvt(P+4*r+3, D+24+r, D+28+r))
            a('ds_write_b128 %s, %s offset:%d' % (v(V.X0w), vr(P+4*r, 4), 1024*r))
        self.mark('g1a')
        self.side_wait()
        self.mark('g1b')
        a('s_waitcnt lgkmcnt(0)')
        a('s_barrier')
        for ti in range(4):
            for ii in range(2):
                a('ds_read_b64_tr_b16 %s, %s offset:%d' % (vr(O+4*ti+2*ii, 2), v(V.X0r1 if ti >> 1 else V.X0r0), (ti & 1)*16448+ii*512))
        a('ds_read_b32 %s, %s' % (v(V.tmp), v(V.cnt)))
        for ti in range(4):
            a('s_waitcnt lgkmcnt(%d)' % (7-2*ti))
            a(self.mf16(D+4*ti, V.M2+8*(ti >> 1), O+4*ti)); a(self.mf16(D+16+4*ti, V.M2+8*(ti >> 1)+4, O+4*ti))
        a('s_waitcnt lgkmcnt(0)')
        self.side_use()
        for r in range(4): a('s_add_u32 %s, %s, 0x%x' % (sO[r], sEst, WS_U[0] + r*65536))
        st = lambda i: a('buffer_store_dwordx4 %s, %s, %s, %s offen %s' % (vr(P+4*i, 4), v(V.Est), SWS, sO[i], self.o['st1']))
        def normal():
            for i in range(4):
                for k in range(4): a(self.cvt(P+4*i+2*(k & 1)+(k >> 1), D+4*k+i, D+16+4*k+i))
                st(i)
        def w0():
            for i in range(4):
                ts, eb = i >> 1, i & 1
                for tau in range(2):
                    for sg in range(2):
                        x = 4*(2*ts+tau)+2*eb+sg
                        a(self.cvt(P+4*i+2*tau+sg, D+x, D+16+x))
                st(i)
        self.ifelse(sW, 0, w0, normal)

    def stage(self, src, dst, dataA, kind, prio, pre=None):
        a = self.a; T = V.T
        if self.o['prio']: a('s_setprio %d' % prio)
        G = []
        for i in range(4):
            g = []
            if kind == 'tw':
                for st in range(3):
                    for r in range(4):
                        rho = 4*i+r; x, y = v(src+rho), v(src+16+rho)
                        g.append('v_fmac_f32 %s, %s, %s' % ((y, v(V.TW+16+rho), x) if st == 1 else (x, v(V.TW+rho), y)))
                for r in range(4): g.append(self.cvt(V.O+4*i+r, src+4*i+r, src+16+4*i+r))
            else:
                t = T+4*(i & 1)
                for r in range(4):
                    rho = 4*i+r
                    g.append('v_mul_f32 %s, %s, %s' % (v(t+r), v(src+rho), v(V.W+rho)))
                for r in range(4):
                    rho = 4*i+r
                    if rho < 8: g.append('v_fma_f32 %s, -%s, %s, %s' % (v(t+r), v(src+16+rho), v(V.W+16+rho), v(t+r)))
                    else: g.append('v_fmac_f32 %s, %s, %s' % (v(t+r), v(src+16+rho), v(V.W+16+rho)))
                for r in range(4):
                    rho = 4*i+r
                    g.append('v_mul_f32 %s, %s, %s' % (v(src+16+rho), v(src+16+rho), v(V.W+rho)))
                for r in range(4):
                    rho = 4*i+r
                    if rho < 8: g.append('v_fmac_f32 %s, %s, %s' % (v(src+16+rho), v(src+rho), v(V.W+16+rho)))
                    else: g.append('v_fma_f32 %s, -%s, %s, %s' % (v(src+16+rho), v(src+rho), v(V.W+16+rho), v(src+16+rho)))
                for r in range(4): g.append(self.cvt(V.O+4*i+r, src+16+4*i+r, t+r))
            G.append(g)
        W = [[self.w_read1(4*i+r, im) for im in range(2) for r in range(4)] for i in range(4)] if kind == 'w' else None
        if kind == 'w':
            a('s_waitcnt vmcnt(2)')
            self.emit(W[0]); self.emit(W[1])
        for i in range(4):
            g = list(G[i]); n = len(g)
            ins = {}
            if i:
                ins.setdefault(2, []).append(self.mf32(dst, i-1, 0, dataA))
                ins.setdefault(2+n//2, []).append(self.mf32(dst, i-1, 1, dataA))
            if kind == 'w':
                a('s_waitcnt lgkmcnt(%d)' % (8 if i < 3 else 0))
                if i in (0, 2): self.emit(self.w_fix(i >> 1))
                if i < 2:
                    if i == 0: ins.setdefault(3, []).append('s_waitcnt vmcnt(0)')
                    for k, x in enumerate(W[i+2]): ins.setdefault(3+2*k, []).append(x)
            for k, x in enumerate(g):
                self.emit(ins.get(k, []))
                a(x)
        a(self.mf32(dst, 3, 0, dataA)); a(self.mf32(dst, 3, 1, dataA))

    def p2(self):
        a = self.a; O, L, D, T = V.O, V.L, V.DA, V.T
        na = self.p2na
        for cbb in range(2):
            b = L+12*cbb
            a('s_waitcnt vmcnt(%d)' % (na+3-2*cbb))
            a('v_mov_b32 %s, %s' % (v(b+8), v(b))); a('v_mov_b32 %s, %s' % (v(b+9), v(b+1)))
            a('s_waitcnt vmcnt(%d)' % (na+2-2*cbb))
            if cbb: self.stamp(); self.mark('f0')
            for jj2 in (1, 0):
                ti = 2*cbb+jj2; op = b+2 if jj2 else b+6; mo = 0 if jj2 else 2
                a(self.mf16(D+4*ti, V.B+mo, op)); a(self.mf16(D+16+4*ti, V.B+6+mo, op))
        for cbb in range(2):
            for k1b in range(2):
                P = O+4*(2*cbb+k1b)
                for jj2 in (1, 0):
                    for pl in range(2):
                        x = D+16*pl+4*(2*cbb+jj2)+2*k1b
                        a(self.cvt(P+2*pl+jj2, x, x+1))
                a('ds_write_b128 %s, %s offset:%d' % (v(V.X1w), vr(P, 4), k1b*4096+cbb*256))
        self.mark('f1')
        a('s_waitcnt lgkmcnt(0)')
        self.mark('f2', True)
        a('s_barrier')
        self.mark('x1', True)
        if self.o['prio']: a('s_setprio 3')
        for i in range(4):
            for ii in range(2):
                a('ds_read_b64_tr_b16 %s, %s offset:%d' % (vr(O+4*i+2*ii, 2), v(V.X1r), ii*1024+(i & 1)*512+(i >> 1)*2048))
        rows = {'postX1': (0, 1, 2, 3), 'barh': (2, 3), 'bar': (), 'p2a': (2, 3), 'q2a': (1, 2, 3)}[self.o['wpos']]
        for i in range(4):
            if i < len(rows): self.w_dma1(rows[i])
            a('s_waitcnt lgkmcnt(%d)' % (6-2*i))
            a(self.mf32(V.DA, i, 0, True)); a(self.mf32(V.DA, i, 1, True))
        self.mark('f3')
        self.stage(V.DA, V.DB, False, 'tw', 2)
        self.mark('f4', True)
        self.far(sSpec, 1, self.pw_special, lambda: self.stage(V.DB, V.DA, True, 'w', 1))
        self.mark('f5')
        self.stage(V.DA, V.DB, True, 'tw', 0)
        self.mark('f6')
        D = V.DB
        for r in range(4): a('s_add_u32 %s, %s, 0x%x' % (sO[r], sEst, WS_U[1] + r*65536))
        rho = lambda jj3, jj1, jj2, c: 4*(2*jj3+jj1)+2*jj2+c
        for pl in range(2):
            for k in range(4):
                c, jj1 = k >> 1, k & 1
                P = V.DA+4*k
                for jj3 in range(2):
                    a(self.cvt(P+2*pl+jj3, D+16*pl+rho(jj3, jj1, 0, c), D+16*pl+rho(jj3, jj1, 1, c)))
                if pl: a('ds_write_b128 %s, %s offset:%d' % (v(V.X2w), vr(P, 4), c*64+jj1*1024))
        self.mark('f7'); self.mark('x2')
        a('s_waitcnt lgkmcnt(0)')
        self.mark('f8', True)
        a('s_barrier')
        for ti in range(4):
            for ii in range(2):
                a('ds_read_b64_tr_b16 %s, %s offset:%d' % (vr(O+4*ti+2*ii, 2), v(V.X2r), ii*512+(ti & 1)*1024+(ti >> 1)*8224))
        D = V.DA; P = V.DB
        for ti in range(4):
            a('s_waitcnt lgkmcnt(%d)' % (6-2*ti))
            a(self.mf16(D+4*ti, V.Bp, O+4*ti)); a(self.mf16(D+16+4*ti, V.Bp+4, O+4*ti))
        self.mark('f9')
        for q in range(4):
            cbb, sbb = q >> 1, q & 1
            for jj1 in range(2):
                for hf in range(2):
                    x = 4*(2*cbb+jj1)+2*sbb+hf
                    a(self.cvt(P+4*q+2*jj1+hf, D+x, D+16+x))
            a('buffer_store_dwordx4 %s, %s, %s, %s offen %s' % (vr(P+4*q, 4), v(V.Est), SWS, sO[q], self.o['st2']))
        self.mark('f10')

    def pw_special(self):
        a = self.a; T = V.T; O = V.O; C = V.DB; X = V.DA
        self.sigma_lane(T)
        a('v_lshrrev_b32 %s, 5, %s' % (v(T+1), v(V.lane)))
        a('v_lshlrev_b32 %s, 9, %s' % (v(T+1), v(T+1)))
        a('v_lshl_add_u32 %s, %s, 2, %s' % (v(T+2), v(T), v(T+1)))
        a('v_add_u32 %s, %d, %s' % (v(T+2), SCR, v(T+2)))
        a('v_add_u32 %s, 128, %s' % (v(T+3), v(T+2)))
        a('v_sub_u32 %s, 32, %s' % (v(T+4), v(T)))
        a('v_lshrrev_b32 %s, 5, %s' % (v(T+5), v(T+4)))
        a('v_and_b32 %s, 31, %s' % (v(T+4), v(T+4)))
        a('v_lshlrev_b32 %s, 2, %s' % (v(T+4), v(T+4)))
        a('v_lshl_add_u32 %s, %s, 8, %s' % (v(T+4), v(T+5), v(T+4)))
        a('v_sub_u32 %s, %s, %s' % (v(T+4), v(T+4), v(T+1)))
        a('v_add_u32 %s, %d, %s' % (v(T+4), SCR + 2*256, v(T+4)))
        a('v_add_u32 %s, 128, %s' % (v(T+5), v(T+4)))
        a('v_add_u32 %s, %d, %s' % (v(T+6), SCR_B, v(V.l16)))
        qs = lambda rho: sigma(8*(rho >> 2) + (rho & 3))
        for pl in range(2):
            for rho in range(0, 16, 2):
                a('ds_write2st64_b32 %s, %s, %s offset0:%d offset1:%d' % (v(T+2+pl), v(C+16*pl+rho), v(C+16*pl+rho+1), qs(rho), qs(rho+1)))
            a('ds_write_b32 %s, %s offset:%d' % (v(T+2+pl), v(C+16*pl), 32*256))
        t0, t1 = v(T+8), v(T+9)
        for half in range(2):
            for pl in range(2):
                for k in range(0, 8, 2):
                    r_ = 8*half+k
                    a('ds_read2st64_b32 %s, %s offset0:%d offset1:%d' % (vr(X+8*pl+k, 2), v(T+4+pl), 29-qs(r_), 29-qs(r_+1)))
                for k in range(2):
                    a('ds_read_b128 %s, %s offset:%d' % (vr(X+16+8*pl+4*k, 4), v(T+6), 1024*(4*pl+2*half+k)))
            a('s_waitcnt lgkmcnt(0)')
            for k in range(8):
                r_ = 8*half+k
                x, y = v(C+r_), v(C+16+r_); ar, ai = v(V.W+r_), v(V.W+16+r_)
                p, q_ = v(X+k), v(X+8+k); br, bi = v(X+16+k), v(X+24+k)
                ng, ps = ('', '-') if half else ('-', '')
                a('v_mul_f32 %s, %s, %s' % (t0, x, ar))
                a('v_mul_f32 %s, %s, %s' % (t1, y, ar))
                a('v_fma_f32 %s, %s%s, %s, %s' % (t0, ng, y, ai, t0))
                a('v_fma_f32 %s, %s%s, %s, %s' % (t1, ps, x, ai, t1))
                a('v_fmac_f32 %s, %s, %s' % (t0, p, br))
                a('v_fma_f32 %s, -%s, %s, %s' % (t1, q_, br, t1))
                a('v_fma_f32 %s, %s%s, %s, %s' % (t0, ps, q_, bi, t0))
                a('v_fma_f32 %s, %s%s, %s, %s' % (t1, ps, p, bi, t1))
                a(self.cvt(O+r_, T+9, T+8))
        for i in range(4): a(self.mf32(V.DA, i, 0, True)); a(self.mf32(V.DA, i, 1, True))

    def p3(self):
        a = self.a; O, L, D, P = V.O, V.L, V.DA, V.DB
        a('s_lshl4_add_u32 %s, %s, %s' % (sA, sW, sSB)); a('s_lshl1_add_u32 %s, %s, %s' % (sA, sA, sP))
        a('s_lshl4_add_u32 %s, %s, %s' % (sA, sA, sCB)); a('s_lshl_b32 %s, %s, 7' % (sO[0], sA))
        for r in range(1, 4): a('s_add_u32 %s, %s, 0x%x' % (sO[r], sO[0], r*524288))
        def normal():
            for i in range(4):
                a('s_waitcnt vmcnt(%d)' % (3-i))
                for sel in range(2):
                    for col in range(2): a('v_mov_b32 %s, %s' % (v(O+4*(2*sel+col)+i), v(L+4*i+2*col+sel)))
        def w0():
            for i in range(4):
                ts, eb = i >> 1, i & 1
                a('s_waitcnt vmcnt(%d)' % (3-i))
                for col in range(2):
                    for sg in range(2): a('v_mov_b32 %s, %s' % (v(O+4*(2*ts+col)+2*eb+sg), v(L+4*i+2*col+sg)))
        self.ifelse(sW, 0, w0, normal, True)
        self.stamp()
        for ti in range(4):
            a(self.mf16(D+4*ti, O+4*ti, V.M2+8*(ti >> 1))); a(self.mf16(D+16+4*ti, O+4*ti, V.M2+8*(ti >> 1)+4))
        for ti in range(4):
            for pl in range(2):
                for k in range(2):
                    x = D+16*pl+4*ti+2*k
                    a(self.cvt(P+4*ti+2*pl+k, x, x+1))
            a('ds_write_b128 %s, %s offset:%d' % (v(V.X3w1 if ti >> 1 else V.X3w0), vr(P+4*ti, 4), (ti & 1)*2048))
        a('s_waitcnt lgkmcnt(0)')
        a('s_barrier')
        for t in range(4):
            for ii in range(2):
                a('ds_read_b64_tr_b16 %s, %s offset:%d' % (vr(O+4*t+2*ii, 2), v(V.X3r), ii*512+t*1024))
        for t in range(4):
            a('s_waitcnt lgkmcnt(%d)' % (6-2*t))
            a(self.mf16(D+4*t, V.F16, O+4*t)); a(self.mf16(D+16+4*t, V.F16+4, O+4*t))
        for t in range(2):
            for r in range(4): a(self.cvt(P+4*r+t, D+16+4*t+r, D+4*t+r))
        for r in range(4):
            for t in (2, 3): a(self.cvt(P+4*r+t, D+16+4*t+r, D+4*t+r))
            a('buffer_store_dwordx4 %s, %s, %s, %s offen %s' % (vr(P+4*r, 4), v(V.Ooff), SOUT, sO[r], self.o['sto']))

    def ex_load(self, ex):
        a = self.a
        a('s_add_u32 %s, %s, 0x%x' % (sA, sEld, WS_U[ex]))
        for q in range(4):
            d = V.L+12*(q >> 1)+4*(q & 1) if ex == 0 else V.L+4*q
            a('buffer_load_dwordx4 %s, %s, %s, %s offen offset:%d %s' % (vr(d, 4), v(V.Eld), SWS, sA, 256*q, self.o['ld1' if ex == 0 else 'ld2']))

    def build(self):
        a = self.a; o = self.o
        name = NAME + '_kernel'
        a.raw('.globl %s\n.p2align 12\n.p2align 8\n.type %s,@function\n%s:' % (name, name, name))
        end = self.label('end')
        self.prologue(end)
        def others():
            if o.get('kfirst'): a('s_waitcnt lgkmcnt(0)'); self.mark('karg0')
            self.touch(0)
            self.mark('touched')
            a('s_waitcnt lgkmcnt(0)')
            self.mark('karg')
            l = self.label('hold')
            a('s_cmp_lt_u32 %s, 8' % sCh); a('s_cbranch_scc1 %s' % l)
            self.x_issue()
            if o['pre']: self.cond(sW, PW, lambda: a('s_load_dword s95, s[20:21], 0x80'))
            a(l+':')
        self.ifelse(sCh, 0, self.probe, others, True)
        self.srds0(); self.addrs1()
        l = self.label('held')
        a('s_sub_u32 %s, %s, 1' % (sA, sCh)); a('s_cmp_ge_u32 %s, 7' % sA); a('s_cbranch_scc1 %s' % l)
        self.x_issue()
        a(l+':')
        self.gen_F16()
        self.clear_done()
        self.gen_M2(); self.ex_addrs()
        if o['touch']: self.cond(sT, 0, lambda: self.touch(1))
        full = o['full']
        e1 = o['e1']
        if full or e1: self.srds(); self.calc_k0()
        if e1: self.w_edge_load()
        if full:
            self.coop_gen(); self.gen_B(); self.addrs2(); self.flag_addrs()
        if o['spos'] == 'early': self.cond(sW, PW, self.side_load)
        self.mark('w1')
        self.p1()
        self.stamp()
        nP = {'p2a': 2, 'q2a': 1}.get(o['wpos'], 0)
        if full:
            self.side_apply(); a('s_mov_b32 %s, 1' % sInc)
            self.coop_read(); self.gen_M3()
            for i in range(nP): self.w_dma1(i)
            self.addrs3()
        else:
            self.flag_addrs(); self.side_apply()
            if not e1: self.srds(); self.calc_k0()
            a('s_mov_b32 %s, 1' % sInc)
            self.coop_gen(); self.coop_post()
            for i in range(nP): self.w_dma1(i)
        a('s_waitcnt vmcnt(%d)' % nP)
        self.stamp()
        self.arrive()
        el = (lambda: 0) if e1 else self.w_edge_load
        if full: self.poll(0, lambda: (el(), self.w_special()))
        else: self.poll(0, lambda: (el(), self.gen_B(), self.w_special()))
        self.stamp()
        self.ex_load(0)
        self.p2na = 0
        if o['wpos'] in ('bar', 'barh'):
            a('s_barrier'); self.p2na = 4 if o['wpos'] == 'bar' else 2
            for i in range(self.p2na): self.w_dma1(i)
        elif not full: self.coop_wait()
        if not full: self.coop_read(); self.addrs2()
        a('s_waitcnt vmcnt(%d)' % (4+self.p2na))
        self.w_edge()
        a('s_mov_b32 %s, 0x10000' % sInc)
        if o.get('da') == 'glob': self.cond(sId, 0, lambda: a('s_atomic_swap s56, s[20:21], 0x40'))
        self.p2()
        self.stamp()
        if not full: self.gen_M3()
        self.mark('w3a')
        a('s_waitcnt vmcnt(0)')
        self.stamp()
        self.arrive()
        self.poll(1, None if full else self.addrs3)
        if o['ts']: a('s_mov_b32 s%d, %s' % (sTS+26, sCnt))
        self.stamp()
        self.ex_load(1)
        self.p3()
        self.diag_end()
        a(end+':'); a('s_endpgm')
        t, self.tail = self.tail, []
        for f in t: f()
        if o['touch']: self.insert_stubs()
        hdr = ('; GFNet spectral filter, two heads: 2-D FFT as bf16 MFMA DFT stages in one persistent launch (generated)\n'
               '; @launch grid=(256,1,1) block=(512,1,1) lds=%d\n' % LDS_TOTAL)
        kd = '''.section .rodata,"a"
.p2align 6
.amdhsa_kernel %s
  .amdhsa_next_free_vgpr %d
  .amdhsa_next_free_sgpr 102
  .amdhsa_accum_offset %d
  .amdhsa_group_segment_fixed_size 0
  .amdhsa_kernarg_size 72
  .amdhsa_user_sgpr_count 2
  .amdhsa_user_sgpr_kernarg_segment_ptr 1
  .amdhsa_system_sgpr_workgroup_id_x 1
.end_amdhsa_kernel
''' % (name, NVGPR, (NVGPR+3)//4*4)
        return hdr + '.amdgcn_target "amdgcn-amd-amdhsa--gfx950"\n.text\n' + a.text() + kd

    def insert_stubs(self):
        a = self.a
        txt = '.amdgcn_target "amdgcn-amd-amdhsa--gfx950"\n.text\n' + a.text() + ''.join('stub_%d:\n' % k for k in range(16)) + 's_endpgm\n'
        open('pass1.s', 'w').write(txt)
        subprocess.check_call(['clang', '-x', 'assembler', '-target', 'amdgcn-amd-amdhsa', '-mcpu=gfx950', '-c', 'pass1.s', '-o', 'pass1.o'])
        dis = subprocess.check_output(['llvm-objdump', '-d', '--mcpu=gfx950', 'pass1.o']).decode()
        addrs = [int(m.group(1), 16) for m in re.finditer(r'// ([0-9A-F]{12}):', dis)]
        real = [i for i, x in enumerate(a.ins) if x.kind != 'none']
        assert len(addrs) == len(real) + 1, (len(addrs), len(real))
        size = {real[k]: addrs[k+1] - addrs[k] for k in range(len(real))}
        pos = ENTRY_OFF; nxt = 2048
        out = []; k = 0; prev = None; ez = False
        for i, x in enumerate(a.ins):
            if i in size:
                if prev is not None and prev.text.strip() == 's_mov_b64 exec, 0': ez = True
                if prev is not None and prev.text.strip() == 's_mov_b64 exec, -1': ez = False
                if pos >= nxt and k < 16 and not ez:
                    out.append(Ins('stub_%d:' % k)); out.append(Ins('s_cbranch_execz ret_%d' % (k >> 3)))
                    pos += 4; k += 1; nxt += 1024
                pos += size[i]; prev = x
                if x.op == 's_endpgm': self.hot_end = pos
            out.append(x)
        self.code_end = pos
        while k < 16:
            out.append(Ins('stub_%d:' % k)); out.append(Ins('s_branch ret_%d' % (k >> 3))); k += 1
        a.ins = out

if __name__ == '__main__':
    out = sys.argv[1]; opt = {}
    for kv in sys.argv[2:]:
        k, x = kv.split('=')
        opt[k] = {'True': True, 'False': False}.get(x, x.replace('+', ' '))
    g = Gen(**opt)
    s = g.build()
    assert g.a.verify() == 0
    open(out, 'w').write(s)
    print(out, 'vgprs', NVGPR, 'lds', LDS_TOTAL, 'nops', g.a.nops, 'lines', len(g.a.ins), 'hot end 0x%x code end 0x%x' % (getattr(g, 'hot_end', 0), getattr(g, 'code_end', 0)))
```

```python
import sys, struct, math, subprocess, re
from asmlib import Asm, Ins

NAME = 'concat_heads__spectral_gfnet__spectral_gfnet__prompt'
def f2u(x): return struct.unpack('<I', struct.pack('<f', x))[0]
def lit(x): return '0x%08x' % f2u(x)
def sigma(m): return (m & 1) | ((m >> 1) & 1) << 3 | ((m >> 2) & 1) << 1 | ((m >> 3) & 1) << 2 | (m & 16)

SC = 2.0**-22
SPIN_MAX = 0x4000
ENTRY_OFF = 0x300
PW = int([x for x in sys.argv if x.startswith('pw=')][0][3:]) if any(x.startswith('pw=') for x in sys.argv) else 1
R0 = 0
R1 = 33024
WL = 66048
SCR = WL + 8*4*1056
SCR_B = SCR + 36*256
TABL = SCR_B + 8192
CNT = TABL + 16384
LDS_TOTAL = CNT + 64
WS_U = (0, 8 << 20)
WS_FLAG = 16 << 20
WS_PROBE = 17 << 20
WS_TS = 72 << 20
class V: pass
_n = [0]
def alloc(n, align=1):
    b = (_n[0] + align - 1)//align*align
    _n[0] = b + n
    return b
V.tid = alloc(1); V.lane = alloc(1)
for nm in 'g n l16 TR Xoff Est Eld X0w X0r0 X0r1 X1w X1r X2w X2r WP WM zero cnt tmp'.split(): setattr(V, nm, alloc(1))
V.Ooff, V.X3w0, V.X3w1, V.X3r = V.Xoff, V.X0w, V.X0r0, V.X0r1
V.T = alloc(10)
V.O = alloc(16, 4)
V.DA = alloc(32, 4); V.DB = alloc(32, 4); V.L = V.DB
V.F16 = alloc(8, 4); V.M2 = alloc(16, 4)
V.F32 = alloc(32, 4); V.TW = alloc(32, 4); V.W = alloc(32, 4)
V.B = alloc(12, 4); V.Bp = alloc(8, 4); V.WF = alloc(4)
NVGPR = _n[0]
assert NVGPR <= 256, NVGPR
def v(i): return 'v%d' % i
def vr(i, n): return 'v[%d:%d]' % (i, i+n-1)
SX, SWR, SWI, SOUT, SDBG, SWS = 's[4:7]', 's[8:11]', 's[12:15]', 's[16:19]', 's[20:23]', 's[24:27]'
sP, sT, sW, sSB, sCB, sK0, sKP, sKM, sWp, sRv = ['s%d' % i for i in range(30, 40)]
sA, sB, sC, sD, sE, sF, sEst, sEld, sCnt, sSpec, sInc, sWL = ['s%d' % i for i in range(40, 52)]
sO = ['s52', 's53', 's54', 's55']
sTS = 56
sDP, sDM, sZ, sCh, sId = 's96', 's97', 's98', 's99', 's100'

class Gen:
    def __init__(self, **opt):
        self.o = dict(ldx='', ldw='', st1='sc1', st2='sc1', sto='nt', ld1='sc1', ld2='sc1', ts=False,
                      prio=True, nb='4', pnop='15', force='', wpos='postX1', touch=True, w1n='9', spos='early', qw='1', qg='1', zg='3', xm='2', pb='17', wsoff='0', pld='', pex='1', merge=True, full=False, e1=False, pre=True, split=False, map='2', rep='1', slp='', sthr='')
        self.o.update(opt)
        self.a = Asm(); self.lab = 0; self.nts = 0; self.sid = -1; self.tail = []
    def label(self, p='L'):
        self.lab += 1
        return '%s_%d' % (p, self.lab)

    def mark(self, nm, drain=False):
        o = self.o; hit = False
        if o.get('clk') and nm in ('w1', 'g1a', 'x1', 'x2', 'w3a', 'end'):
            for op in ('s_memrealtime', 's_memtime'):
                self.a('%s s[%d:%d]' % (op, sTS+2*self.nts, sTS+2*self.nts+1)); self.nts += 1
            self.a('s_waitcnt lgkmcnt(0)')
        if o.get('fine') and nm[0] == 'f':
            self.a('s_memtime s[%d:%d]' % (sTS+2*self.nts, sTS+2*self.nts+1)); self.nts += 1; hit = True
        for key, reg in (('da', 58), ('db', 60)):
            if o.get(key) == nm:
                self.a('%s s[%d:%d]' % ('s_memtime' if 'cyc' in o else 's_memrealtime', reg, reg+1)); hit = True
        if hit and drain: self.a('s_waitcnt lgkmcnt(0)')
    def stamp(self):
        self.sid += 1
        self.mark('s%d' % self.sid)
        if not self.o['ts'] or self.o.get('clk') or self.o.get('fine'): return
        self.a('s_memrealtime s[%d:%d]' % (sTS+2*self.nts, sTS+2*self.nts+1)); self.nts += 1
    def diag_end(self):
        a = self.a; o = self.o
        self.mark('end')
        if not (o['ts'] or 'da' in o): return
        self.stamp(); a('s_waitcnt vmcnt(0)'); self.stamp()
        a('s_waitcnt lgkmcnt(0)')
        if 'da' in o:
            lp = self.label('dg')
            if o['da'] == 'glob':
                a('buffer_load_dword %s, %s, %s, 0 offen offset:64 sc1' % (v(V.tmp), v(V.zero), SDBG))
                a('s_waitcnt vmcnt(0)')
                a('v_readfirstlane_b32 s58, %s' % v(V.tmp)); a('s_mov_b32 s56, s58')
            a('s_sub_u32 %s, s60, s58' % sA)
            if 'db0' in o: a('s_add_u32 %s, %s, 250' % (sA, sA)); a('s_lshl_b32 %s, %s, 1' % (sA, sA))
            a('s_lshr_b32 %s, %s, 2' % (sA, sA) if 'cyc' in o else 's_lshl_b32 %s, %s, 2' % (sA, sA))
            for key, reg in (('dp', sP), ('dt', sT), ('db0', sId)):
                if key in o: a('s_cmp_eq_u32 %s, %s' % (reg, o[key])); a('s_cselect_b32 %s, %s, 0' % (sA, sA))
            a('s_min_u32 %s, %s, %d' % (sA, sA, 5800 if 'enc' in o else 9000))
            if 'enc' in o:
                a('s_and_b32 %s, s62, 15' % sB); a('s_mul_i32 %s, %s, 10000' % (sB, sB)); a('s_add_u32 %s, %s, %s' % (sA, sA, sB))
                a('s_bfe_u32 %s, s62, 0x40008' % sB); a('s_mul_i32 %s, %s, 100000' % (sB, sB)); a('s_add_u32 %s, %s, %s' % (sA, sA, sB))
            a('s_add_u32 %s, %s, 3000' % (sA, sA))
            a(lp+':')
            a('s_memrealtime s[28:29]'); a('s_waitcnt lgkmcnt(0)')
            a('s_sub_u32 %s, s28, s56' % sB); a('s_cmp_lt_u32 %s, %s' % (sB, sA)); a('s_cbranch_scc1 %s' % lp)
            return
        a('s_lshl_b32 %s, %s, 7' % (sA, sId)); a('s_add_u32 %s, %s, 0x%x' % (sA, sA, WS_TS))
        a('s_mov_b64 exec, 1')
        for i in range(14):
            a('v_mov_b32 %s, s%d' % (v(V.T), sTS+2*i))
            a('buffer_store_dword %s, %s, %s, %s offen offset:%d' % (v(V.T), v(V.zero), SWS, sA, 4*i))
            a('s_nop 1')

    def cond(self, reg, val, f):
        a = self.a; l = self.label('c')
        a('s_cmp_lg_u32 %s, %d' % (reg, val)); a('s_cbranch_scc1 %s' % l)
        f(); a(l+':')
    def ifelse(self, reg, val, feq, fne, eq_first=False):
        a = self.a; l0, l1 = self.label('ie'), self.label('iend')
        if eq_first:
            a('s_cmp_lg_u32 %s, %d' % (reg, val)); a('s_cbranch_scc1 %s' % l0)
            feq(); a('s_branch %s' % l1); a(l0+':'); fne()
        else:
            a('s_cmp_eq_u32 %s, %d' % (reg, val)); a('s_cbranch_scc1 %s' % l0)
            fne(); a('s_branch %s' % l1); a(l0+':'); feq()
        a(l1+':')
    def far(self, reg, val, feq, fne=None):
        a = self.a; l0, l1 = self.label('far'), self.label('back')
        a('s_cmp_eq_u32 %s, %d' % (reg, val)); a('s_cbranch_scc1 %s' % l0)
        if fne: fne()
        a(l1+':')
        def t():
            a(l0+':'); feq(); a('s_branch %s' % l1)
        self.tail.append(t)
    def touch(self, rnd, half=False):
        a = self.a
        a('s_mov_b64 exec, 0')
        if half:
            for k in range(3):
                a('s_cmp_eq_u32 %s, %d' % (sW, 4+k)); a('s_cbranch_scc1 stub_%d' % (2*k))
            a('s_branch stub_6')
        else:
            for k in range(7):
                a('s_cmp_eq_u32 %s, %d' % (sW, k)); a('s_cbranch_scc1 stub_%d' % (8*rnd+k))
            a('s_branch stub_%d' % (8*rnd+7))
        a('ret_%d:' % rnd)
        a('s_mov_b64 exec, -1')

    def prologue(self, end):
        a = self.a; T = V.T
        a('s_cmp_ge_u32 s2, 0x100')
        a('s_cbranch_scc1 %s' % end)
        if 'da' in self.o: a('s_memrealtime s[56:57]'); self.mark('start')
        a('s_bfe_u32 %s, s2, 0x10002' % sP)
        a('s_mul_i32 s3, %s, 24' % sP)
        a('s_load_dwordx2 s[4:5], s[0:1], s3')
        a('s_load_dwordx2 s[24:25], s[0:1], 0x40')
        a('s_load_dwordx2 s[20:21], s[0:1], 0x38')
        a('s_load_dwordx2 s[8:9], s[0:1], s3 offset:8')
        a('s_load_dwordx2 s[12:13], s[0:1], s3 offset:16')
        a('s_load_dwordx2 s[16:17], s[0:1], 0x30')
        self.stamp()
        a('v_lshrrev_b32 %s, 6, v0' % v(T))
        a('v_and_b32 %s, 63, v0' % v(V.lane))
        a('v_readfirstlane_b32 %s, %s' % (sW, v(T)))
        mp = self.o['map']
        a('s_and_b32 %s, s2, 3' % sA)
        if int(self.o['xm']): a('s_xor_b32 %s, %s, %s' % (sA, sA, self.o['xm']))
        if mp in ('0', '1'):
            a('s_bfe_u32 %s, s2, 0x10003' % sB)
            if mp == '0': a('s_lshl1_add_u32 %s, %s, %s' % (sA, sA, sB))
            else: a('s_lshl2_add_u32 %s, %s, %s' % (sA, sB, sA))
            a('s_lshr_b32 %s, s2, 4' % sB)
            a('s_lshl4_add_u32 %s, %s, %s' % (sT, sA, sB))
        else:
            a('s_lshr_b32 %s, s2, 3' % sB)
            a('s_lshl2_add_u32 %s, %s, %s' % (sT, sB, sA))
            a('s_lshr_b32 %s, %s, 4' % (sA, sT)); a('s_and_b32 %s, %s, 15' % (sB, sT))
        a('s_bfe_u32 %s, %s, 0x10001' % (sC, sB))
        a('s_lshl1_add_u32 %s, %s, %s' % (sCB, sA, sC))
        a('s_lshr_b32 %s, %s, 2' % (sSB, sB))
        a('s_and_b32 %s, %s, 1' % (sC, sB))
        a('s_lshl1_add_u32 %s, %s, %s' % (sSB, sSB, sC))
        a('s_mov_b32 s6, 0x400000'); a('s_mov_b32 s7, 0x20000')
        a('v_lshrrev_b32 %s, 4, %s' % (v(V.g), v(V.lane)))
        a('v_lshlrev_b32 %s, 4, %s' % (v(V.l16), v(V.lane)))
        a('v_and_b32 %s, 8, v0' % v(T))
        a('v_lshlrev_b32 %s, 11, %s' % (v(T), v(T)))
        a('v_lshl_add_u32 %s, %s, 20, %s' % (v(T), v(V.g), v(T)))
        a('v_and_b32 %s, 0x70, %s' % (v(T+1), v(V.l16)))
        a('v_add_u32 %s, %s, %s' % (v(V.Xoff), v(T), v(T+1)))
        a('s_lshl4_add_u32 %s, %s, %s' % (sA, sW, sSB))
        a('s_lshl4_add_u32 %s, %s, %s' % (sA, sA, sCB))
        a('s_lshl_b32 %s, %s, 7' % (sO[0], sA))
        for r in range(1, 4): a('s_add_u32 %s, %s, 0x%x' % (sO[r], sO[0], r*262144))
        a('s_lshl3_add_u32 %s, s2, %s' % (sId, sW))
        a('s_xor_b32 %s, %s, %d' % (sCh, sId, 8*int(self.o['qg'])+int(self.o['qw']))); a('s_and_b32 %s, %s, 0xffffff3f' % (sCh, sCh))
    def srds(self):
        a = self.a
        a('s_mov_b32 s10, 2101248'); a('s_mov_b32 s11, 0x20000')
        a('s_mov_b32 s14, 2101248'); a('s_mov_b32 s15, 0x20000')
        a('s_mov_b32 s18, 0x800000'); a('s_mov_b32 s19, 0x20000')
    def srds0(self):
        a = self.a
        a('s_mov_b32 s22, 256'); a('s_mov_b32 s23, 0x20000')
        a('s_mov_b32 s26, 0x%x' % ((80 if self.o['ts'] else 18) << 20)); a('s_mov_b32 s27, 0x20000')
        a('v_and_b32 %s, 15, %s' % (v(V.n), v(V.lane)))
        a('v_mov_b32 %s, 0' % v(V.zero)); a('v_mov_b32 %s, %d' % (v(V.cnt), CNT))

    def x_issue(self):
        for r in range(4):
            self.a('buffer_load_dwordx4 %s, %s, %s, %s offen %s' % (vr(V.L+4*r, 4), v(V.Xoff), SX, sO[r], self.o['ldx']))
    def probe(self):
        a = self.a; T = V.T; NB = int(self.o['nb']); ld = self.o['pld']
        a('s_bfe_u32 %s, s2, 0x10004' % sC)
        a('s_mul_i32 %s, %s, 0x12000' % (sA, sC)); a('s_add_u32 %s, %s, 0x%x' % (sA, sA, int(self.o['pb']) << 20))
        a('s_and_b32 %s, s2, 8' % sE)
        a('s_lshl_b32 %s, %s, 14' % (sD, sE)); a('s_add_u32 %s, %s, %s' % (sA, sA, sD))
        a('s_xor_b32 %s, %s, 0x2000' % (sB, sA))
        a('s_lshl_b32 %s, %s, 16' % (sF, sC)); a('s_add_u32 %s, %s, %s' % (sD, sD, sF)); a('s_add_u32 %s, %s, 0x%x' % (sD, sD, WS_FLAG))
        a('s_lshl_b32 %s, %s, 4' % (sE, sE)); a('s_xor_b32 %s, %s, 0x80' % (sE, sE))
        a('s_mov_b32 s26, 0x%x' % (18 << 20)); a('s_mov_b32 s27, 0x20000')
        a('s_lshl_b32 %s, %s, 3' % (sC, sC))
        a('v_mul_u32_u24 %s, 0x5080, %s' % (v(T), v(V.lane)))
        a('v_lshlrev_b32 %s, 10, %s' % (v(T+1), v(V.lane)))
        a('v_mov_b32 %s, 0' % v(T+2))
        if not ld:
            for k in range(2*NB): a('v_mov_b32 %s, 0' % v(V.DA+k))
        a('s_mov_b64 exec, %s' % self.o['pex'])
        if 'da' in self.o: a('s_waitcnt lgkmcnt(0)'); a('s_mov_b32 s60, s56'); a('s_mov_b32 s58, s56')
        a('s_waitcnt lgkmcnt(0)')
        for side, base in enumerate((sA, sB)):
            for k in range(NB):
                if ld: a('buffer_load_dword %s, %s, %s, %s offen offset:%d %s' % (v(V.DA+side*NB+k), v(T), SWS, base, k*0x300, ld))
                else: a('buffer_atomic_add %s, %s, %s, %s offen offset:%d sc0 sc1' % (v(V.DA+side*NB+k), v(T), SWS, base, k*0x300))
        a('s_mov_b64 exec, -1')
        a('buffer_store_dword %s, %s, %s, %s offen sc1' % (v(T+2), v(T+1), SWS, sD))
        if self.o['pre']: a('s_load_dword s95, s[20:21], 0x80')
        self.x_issue()
        a('s_waitcnt vmcnt(%d)' % (NB+5))
        for x in self.o['pnop'].split(','): a('s_nop %s' % x)
        a('s_getreg_b32 %s, hwreg(HW_REG_IB_STS, 0, 4)' % sA)
        a('s_or_b32 %s, %s, 16' % (sA, sA)); a('s_lshl_b32 s94, %s, %s' % (sA, sC))
        if self.o['merge']: a('s_waitcnt vmcnt(4)')
        a('s_atomic_or s94, s[20:21], %s' % sE)
        self.mark('pub')
    def clear_done(self):
        a = self.a
        if self.o['merge']: return
        def f():
            a('s_mov_b32 s93, 1'); a('s_waitcnt vmcnt(4)')
            a('s_atomic_add s93, s[20:21], 0x0')
        self.cond(sCh, 0, f)
    def ready_check(self):
        a = self.a; l0, l1 = self.label('rdy'), self.label('rdyok')
        a('s_cmp_ge_u32 %s, 2' % sRv)
        a('s_cbranch_scc1 %s' % l1)
        a('s_mov_b32 %s, 0' % sCnt)
        a(l0+':')
        a('buffer_load_dword %s, %s, %s, 0 offen sc1' % (v(V.tmp), v(V.zero), SDBG))
        a('s_add_u32 %s, %s, 1' % (sCnt, sCnt))
        a('s_cmp_gt_u32 %s, 0x%x' % (sCnt, SPIN_MAX))
        a('s_waitcnt vmcnt(0)')
        a('s_cbranch_scc1 %s' % l1)
        a('v_cmp_gt_u32 vcc, 2, %s' % v(V.tmp))
        a('s_cbranch_vccnz %s' % l0)
        a(l1+':')
    def side_load(self, off=128):
        self.a('buffer_load_dword %s, %s, %s, 0 offen offset:%d sc1' % (v(V.tmp), v(V.zero), SDBG, off))
    def side_poll(self, off, dst):
        a = self.a; lp, ok = self.label('sw'), self.label('swok')
        a('s_mov_b32 %s, 0' % sCnt)
        a(lp+':')
        a('s_waitcnt vmcnt(0)')
        a('v_readfirstlane_b32 %s, %s' % (sA, v(V.tmp)))
        a('s_and_b32 %s, %s, 0x1010' % (sB, sA)); a('s_cmp_eq_u32 %s, 0x1010' % sB)
        a('s_cbranch_scc1 %s' % ok)
        self.side_load(off)
        a('s_add_u32 %s, %s, 1' % (sCnt, sCnt))
        a('s_cmp_lt_u32 %s, 0x%x' % (sCnt, SPIN_MAX))
        a('s_cbranch_scc1 %s' % lp)
        a('s_waitcnt vmcnt(0)')
        a(ok+':')
        a('s_and_b32 %s, %s, 15' % (sB, sA)); a('s_bfe_u32 %s, %s, 0x40008' % (sA, sA))
        a('s_sub_i32 %s, %s, %s' % (dst, sA, sB))
    def side_wait(self):
        a = self.a
        def f():
            l = self.label('clean')
            self.side_poll(128, sC)
            a('s_abs_i32 %s, %s' % (sA, sC)); a('s_cmp_ge_u32 %s, 3' % sA); a('s_cbranch_scc1 %s' % l)
            self.side_load(0)
            self.side_poll(0, sD)
            a('s_add_i32 %s, %s, %s' % (sC, sC, sD))
            a(l+':')
            a('s_cmp_gt_i32 %s, 0' % sC); a('s_cselect_b32 %s, 0x2000, 0' % sA)
            if self.o['ts']: a('s_add_u32 %s, %s, 0x80' % (sC, sC)); a('s_or_b32 %s, %s, %s' % (sA, sA, sC))
            a('v_mov_b32 %s, %s' % (v(V.tmp), sA))
            a('ds_write2_b32 %s, %s, %s offset0:0 offset1:1' % (v(V.cnt), v(V.tmp), v(V.zero)))
        self.cond(sW, PW, f)
    def side_use(self):
        a = self.a
        a('v_readfirstlane_b32 %s, %s' % (sCh, v(V.tmp)))
        if self.o['ts']: a('s_mov_b32 s%d, %s' % (sTS+24, sCh)); a('s_and_b32 %s, %s, 0x2000' % (sCh, sCh))
        if 'enc' in self.o: a('s_lshr_b32 s62, %s, 13' % sCh)
        if self.o['force'] != '': a('s_mov_b32 %s, %d' % (sCh, int(self.o['force']) << 13))
        a('s_xor_b32 %s, %s, %s' % (sEst, sEst, sCh))
    def flag_addrs(self):
        a = self.a
        a('s_lshr_b32 %s, %s, 4' % (sB, sT))
        a('s_lshl_b32 %s, %s, 13' % (sA, sP)); a('s_add_u32 %s, %s, 0x%x' % (sA, sA, WS_FLAG))
        for dst, wp, gr in ((sF, sW, sB), (sE, sB, sW)):
            a('s_lshl4_add_u32 %s, %s, %s' % (sC, wp, gr)); a('s_lshl_b32 %s, %s, 10' % (sC, sC))
            a('s_add_u32 %s, %s, %s' % (dst, sC, sA))
        R = int(self.o['rep'])
        if R > 1:
            a('s_and_b32 %s, %s, %d' % (sC, sT, R-1)); a('s_lshl_b32 %s, %s, 8' % (sC, sC)); a('s_add_u32 %s, %s, %s' % (sE, sE, sC))
    def side_apply(self):
        for r in (sF, sE, sEld): self.a('s_xor_b32 %s, %s, %s' % (r, r, sCh))
    def arrive(self):
        for r in range(int(self.o['rep'])): self.a('s_atomic_add %s, s[24:25], %s offset:%d' % (sInc, sF, 256*r))
    def poll(self, ex, under=None):
        a = self.a; lp, ok = self.label('poll'), self.label('pollok')
        if under:
            a('s_mov_b32 %s, 0' % sRv)
            a('s_atomic_add %s, s[24:25], %s glc' % (sRv, sE))
            under()
            a('s_waitcnt lgkmcnt(0)')
            a('s_bitcmp1_b32 %s, %d' % (sRv, 4+16*ex))
            a('s_cbranch_scc1 %s' % ok)
        a('s_mov_b32 %s, 0' % sCnt)
        a(lp+':')
        a('s_mov_b32 %s, 0' % sRv)
        a('s_atomic_add %s, s[24:25], %s glc' % (sRv, sE))
        a('s_add_u32 %s, %s, 1' % (sCnt, sCnt))
        a('s_cmp_gt_u32 %s, 0x%x' % (sCnt, SPIN_MAX))
        a('s_waitcnt lgkmcnt(0)')
        a('s_cbranch_scc1 %s' % ok)
        if self.o['slp']:
            a('s_bitcmp1_b32 %s, %d' % (sRv, 4+16*ex))
            a('s_cbranch_scc1 %s' % ok)
            if self.o['sthr']:
                a('s_bfe_u32 %s, %s, 0x%x' % (sA, sRv, 0x50000+16*ex))
                a('s_cmp_ge_u32 %s, %s' % (sA, self.o['sthr'])); a('s_cbranch_scc1 %s' % lp)
            a('s_sleep %s' % self.o['slp'])
            a('s_branch %s' % lp)
        else:
            a('s_bitcmp0_b32 %s, %d' % (sRv, 4+16*ex))
            a('s_cbranch_scc1 %s' % lp)
        a(ok+':')
    def ex_addrs(self):
        a = self.a; T = V.T
        a('s_lshl_b32 %s, %s, 4' % (sB, sW)); a('s_xor_b32 %s, %s, %s' % (sB, sB, sT)); a('s_lshl_b32 %s, %s, 8' % (sB, sB))
        a('v_lshlrev_b32 %s, 4, %s' % (v(T), v(V.n)))
        a('v_lshl_add_u32 %s, %s, 10, %s' % (v(T), v(V.g), v(T)))
        a('v_xor_b32 %s, %s, %s' % (v(T), sB, v(T)))
        a('v_and_b32 %s, 0x6000, %s' % (v(T+1), v(T)))
        a('v_add_u32 %s, %s, %s' % (v(T), v(T), v(T+1)))
        a('v_lshl_add_u32 %s, %s, 18, %s' % (v(V.Est), v(V.g), v(T)))
        a('v_and_b32 %s, 0xdcff, %s' % (v(V.Eld), v(T)))
        a('s_bfe_u32 %s, %s, 0x10001' % (sA, sW)); a('s_xor_b32 %s, %s, %s' % (sA, sA, sP))
        a('s_bfe_u32 %s, %s, 0x10005' % (sC, sT)); a('s_xor_b32 %s, %s, %s' % (sC, sC, sP))
        a('s_lshl_b32 %s, %s, 7' % (sEst, sW)); a('s_add_u32 %s, %s, %s' % (sEst, sEst, sA)); a('s_lshl_b32 %s, %s, 13' % (sEst, sEst))
        a('s_lshl3_add_u32 %s, %s, %s' % (sEld, sT, sC)); a('s_lshl_b32 %s, %s, 13' % (sEld, sEld))

    def trig(self, x, re, im, conj_re=None, conj_im=None):
        a = self.a; c, s = V.T+8, V.T+9
        a('v_cos_f32 %s, %s' % (v(c), v(x)))
        a('v_sin_f32 %s, %s' % (v(s), v(x)))
        if getattr(self, 'fill', None): self.fill(); self.fill = None
        a('v_cvt_pk_bf16_f32 %s, %s, %s' % (v(re), v(c), v(s)))
        a('v_cvt_pk_bf16_f32 %s, -%s, %s' % (v(im), v(s), v(c)))
        if conj_re is not None:
            a('v_xor_b32 %s, 0x80000000, %s' % (v(conj_re), v(re)))
            a('v_xor_b32 %s, 0x8000, %s' % (v(conj_im), v(im)))
    def ladder(self, x, step, regs):
        a = self.a
        for k, r in enumerate(regs):
            if k < len(regs)-1: self.fill = lambda: a('v_add_f32 %s, %s, %s' % (v(x), v(x), v(step)))
            self.trig(x, *r)
    def gen_F16(self):
        a = self.a; T = V.T
        a('v_cvt_f32_u32 %s, %s' % (v(T), v(V.n)))
        a('v_cvt_f32_u32 %s, %s' % (v(T+1), v(V.g)))
        a('v_mul_f32 %s, %s, %s' % (v(T), lit(1/16), v(T)))
        a('v_mul_f32 %s, 4.0, %s' % (v(T+1), v(T+1)))
        a('v_mul_f32 %s, %s, %s' % (v(T+2), v(T), v(T+1)))
        self.ladder(T+2, T, [(V.F16+r, V.F16+4+r) for r in range(4)])
    def gen_M2(self):
        a = self.a; T = V.T
        def normal():
            a('v_cvt_f32_u32 %s, %s' % (v(T+2), sW))
            a('v_fmac_f32 %s, %s, %s' % (v(T), lit(1/256), v(T+2)))
            a('v_mul_f32 %s, %s, %s' % (v(T+2), v(T), v(T+1)))
            self.ladder(T+2, T, [(V.M2+r, V.M2+4+r, V.M2+8+r, V.M2+12+r) for r in range(4)])
        def w0():
            a('v_lshrrev_b32 %s, 1, %s' % (v(T), v(V.n)))
            a('v_cvt_f32_u32 %s, %s' % (v(T), v(T)))
            a('v_lshlrev_b32 %s, 31, %s' % (v(T+3), v(V.n)))
            a('v_add_f32 %s, 0.5, %s' % (v(T+4), v(T)))
            a('v_xor_b32 %s, %s, %s' % (v(T+3), lit(1/16), v(T+3)))
            a('v_cmp_ne_u32 vcc, 1, %s' % v(V.n))
            a('v_mul_f32 %s, %s, %s' % (v(T), v(T), v(T+3)))
            a('v_mul_f32 %s, %s, %s' % (v(T+4), v(T+4), v(T+3)))
            a('v_cndmask_b32 %s, 0.5, %s, vcc' % (v(T), v(T)))
            for ts in range(2):
                d = T+4*ts
                a('v_mul_f32 %s, %s, %s' % (v(T+2), v(d), v(T+1)))
                self.ladder(T+2, d, [(V.M2+8*ts+r, V.M2+8*ts+4+r) for r in range(4)])
        self.ifelse(sW, 0, w0, normal)
    def gen_M3(self):
        a = self.a; T = V.T
        a('v_cvt_f32_u32 %s, %s' % (v(T), v(V.n)))
        a('v_mul_f32 %s, %s, %s' % (v(T+1), lit(1/256), v(T)))
        a('v_mul_f32 %s, %s, %s' % (v(T), lit(1/16), v(T)))
        def normal():
            a('v_lshl_add_u32 %s, %s, 6, %s' % (v(T+2), v(V.g), sW))
            a('v_cvt_f32_u32 %s, %s' % (v(T+2), v(T+2)))
            a('v_mul_f32 %s, %s, %s' % (v(T+2), v(T+2), v(T+1)))
            self.ladder(T+2, T, [(V.M2+r, V.M2+4+r, V.M2+8+r, V.M2+12+r) for r in range(4)])
        def w0():
            a('v_lshlrev_b32 %s, 5, %s' % (v(T+2), v(V.g)))
            a('v_cvt_f32_u32 %s, %s' % (v(T+2), v(T+2)))
            a('v_mul_f32 %s, 0.5, %s' % (v(T), v(T)))
            a('v_mul_f32 %s, %s, %s' % (v(T+2), v(T+2), v(T+1)))
            regs = []
            for k in range(4):
                b = V.M2+8*(k & 1)+2*(k >> 1)
                regs.append((b, b+4, b+1, b+5))
            self.ladder(T+2, T, regs)
            a('s_mov_b64 exec, 0xffff')
            a('v_lshlrev_b32 %s, 15, %s' % (v(T+2), v(V.n)))
            a('v_and_b32 %s, 0x8000, %s' % (v(T+2), v(T+2)))
            a('v_or_b32 %s, 0x3f80, %s' % (v(V.M2+1), v(T+2)))
            a('v_lshlrev_b32 %s, 16, %s' % (v(V.M2+5), v(V.M2+1)))
            a('s_mov_b64 exec, -1')
        self.ifelse(sW, 0, w0, normal)
    def sigma_lane(self, dst):
        a = self.a; t = V.T+7
        a('v_and_b32 %s, 17, %s' % (v(dst), v(V.lane)))
        a('v_bfe_u32 %s, %s, 2, 2' % (v(t), v(V.lane)))
        a('v_lshl_add_u32 %s, %s, 1, %s' % (v(dst), v(t), v(dst)))
        a('v_and_b32 %s, 2, %s' % (v(t), v(V.lane)))
        a('v_lshl_add_u32 %s, %s, 2, %s' % (v(dst), v(t), v(dst)))
    def coop_gen(self):
        a = self.a; T = V.T; X = V.DA
        self.sigma_lane(T)
        a('v_lshrrev_b32 %s, 5, %s' % (v(T+1), v(V.lane)))
        a('v_lshlrev_b32 %s, 7, %s' % (v(T+2), v(T+1)))
        a('v_lshl_add_u32 %s, %s, 1, %s' % (v(T+2), v(T), v(T+2)))
        a('s_and_b32 %s, %s, 2' % (sD, sKP)); a('s_sub_u32 %s, %s, %s' % (sD, sWL, sD))
        a('v_add_u32 %s, %s, %s' % (v(V.WP), sD, v(T+2)))
        a('s_add_u32 %s, %s, %d' % (sD, sD, 1024-832))
        a('v_sub_u32 %s, %s, %s' % (v(V.WM), sD, v(T+2)))
        a('v_cvt_f32_u32 %s, %s' % (v(T), v(T)))
        a('s_mul_i32 %s, %s, 4' % (sA, sW)); a('s_lshr_b32 %s, 0x75643120, %s' % (sA, sA)); a('s_and_b32 %s, %s, 7' % (sA, sA)); a('s_lshl_b32 %s, %s, 2' % (sA, sA))
        a('v_lshl_add_u32 %s, %s, 1, %s' % (v(T+1), v(T+1), sA))
        a('v_mul_f32 %s, %s, %s' % (v(T), lit(1/2048), v(T)))
        a('v_cvt_f32_u32 %s, %s' % (v(T+1), v(T+1)))
        a('v_mul_f32 %s, %s, %s' % (v(T+2), v(T+1), v(T)))
        for e in range(2):
            a('v_cos_f32 %s, %s' % (v(T+5), v(T+2)))
            a('v_sin_f32 %s, %s' % (v(T+6), v(T+2)))
            a('v_rcp_f32 %s, %s' % (v(T+5), v(T+5)))
            a('v_mul_f32 %s, %s, %s' % (v(T+3), lit(64.0), v(T+2)))
            a('v_mul_f32 %s, %s, %s' % (v(X+4+e), v(T+6), v(T+5)))
            a('v_fma_f32 %s, %s, %s, 1.0' % (v(T+5), v(X+4+e), v(X+4+e)))
            a('v_rcp_f32 %s, %s' % (v(T+6), v(T+5)))
            a('v_mul_f32 %s, -2.0, %s' % (v(T+4), v(X+4+e)))
            a('v_fma_f32 %s, -%s, %s, 1.0' % (v(T+5), v(T+5), v(T+6)))
            a('v_fmac_f32 %s, %s, %s' % (v(T+6), v(T+5), v(T+6)))
            a('v_mul_f32 %s, %s, %s' % (v(X+6+e), v(T+6), v(T+4)))
            if e == 0: self.fill = lambda: a('v_add_f32 %s, %s, %s' % (v(T+2), v(T+2), v(T)))
            self.trig(T+3, X+e, X+2+e)
        a('s_lshr_b32 %s, %s, 1' % (sA, sW)); a('s_lshl_b32 %s, %s, 7' % (sA, sA))
        a('s_and_b32 %s, %s, 1' % (sB, sW)); a('s_add_u32 %s, %s, %s' % (sA, sA, sB))
        a('s_lshl3_add_u32 %s, %s, %d' % (sA, sA, TABL))
        a('v_add_u32 %s, %s, %s' % (v(T), sA, v(V.l16)))
        for k in range(4): a('ds_write_b64 %s, %s offset:%d' % (v(T), vr(X+2*k, 2), 4096*k))
    def coop_post(self):
        a = self.a
        a('v_mov_b32 %s, 1' % v(V.T+1))
        a('ds_add_u32 %s, %s offset:4' % (v(V.cnt), v(V.T+1)))
    def coop_wait(self):
        a = self.a; T = V.T; lp, ok = self.label('cw'), self.label('cwok')
        a('s_mov_b32 %s, 0' % sCnt)
        a(lp+':')
        a('ds_read_b32 %s, %s offset:4' % (v(T), v(V.cnt)))
        a('s_add_u32 %s, %s, 1' % (sCnt, sCnt))
        a('s_cmp_gt_u32 %s, 0x%x' % (sCnt, SPIN_MAX*8))
        a('s_waitcnt lgkmcnt(0)')
        a('s_cbranch_scc1 %s' % ok)
        a('v_cmp_gt_u32 vcc, 0x200, %s' % v(T))
        a('s_cbranch_vccnz %s' % lp)
        a(ok+':')
    def coop_read(self):
        a = self.a; T = V.T
        a('v_add_u32 %s, %d, %s' % (v(T), TABL, v(V.l16)))
        for k in range(16): a('ds_read_b128 %s, %s offset:%d' % (vr(V.F32+4*k, 4), v(T), 1024*k))
    def calc_k0(self):
        a = self.a
        a('s_lshr_b32 %s, %s, 4' % (sA, sT)); a('s_and_b32 %s, %s, 15' % (sB, sT))
        a('s_lshl4_add_u32 %s, %s, %s' % (sK0, sB, sA))
        a('s_and_b32 %s, %s, 12' % (sC, sB)); a('s_bfe_u32 %s, %s, 0x10001' % (sD, sB)); a('s_add_u32 %s, %s, %s' % (sC, sC, sD))
        a('s_and_b32 %s, %s, 1' % (sD, sB)); a('s_lshl1_add_u32 %s, %s, %s' % (sC, sD, sC)); a('s_lshl_b32 %s, %s, 3' % (sC, sC))
        a('s_cmp_eq_u32 %s, 0' % sA); a('s_cselect_b32 %s, %s, %s' % (sK0, sC, sK0))
        a('s_cmp_eq_u32 %s, 0' % sT); a('s_cselect_b32 %s, 7, 8' % sA)
        a('s_lshl_b32 %s, %s, %s' % (sKP, sW, sA)); a('s_add_u32 %s, %s, %s' % (sKP, sKP, sK0))
        a('s_sub_u32 %s, 0x800, %s' % (sKM, sKP))
        a('s_cmp_eq_u32 %s, 0' % sKP)
        a('s_cselect_b32 %s, 0x400, %s' % (sKM, sKM)); a('s_cselect_b32 %s, 1, 0' % sSpec)
        a('s_mul_i32 %s, %s, 1026' % (sKP, sKP)); a('s_mul_i32 %s, %s, 1026' % (sKM, sKM))
        a('s_mul_i32 %s, %s, 4224' % (sWL, sW)); a('s_add_u32 %s, %s, %d' % (sWL, sWL, WL))
        a('s_and_b32 %s, %s, 2' % (sA, sKP))
        a('s_add_u32 %s, %s, %s' % (sDP, sKP, sA)); a('s_add_u32 %s, %s, %s' % (sDM, sKM, sA))
    def gen_B(self):
        a = self.a; T = V.T; c, s = T+8, T+9
        a('v_lshrrev_b32 %s, 1, %s' % (v(T), v(V.n)))
        a('v_cvt_f32_u32 %s, %s' % (v(T+2), v(V.g)))
        a('v_and_b32 %s, 1, %s' % (v(T+3), v(V.n)))
        a('v_add_f32 %s, %s, %s' % (v(T+2), v(T+2), v(T+2)))
        def normal():
            a('v_lshl_add_u32 %s, %s, 8, %s' % (v(T+1), v(T), sK0))
            a('v_lshlrev_b32 %s, 4, %s' % (v(T+4), v(T+3)))
            a('v_cvt_f32_u32 %s, %s' % (v(T+1), v(T+1)))
            a('v_lshlrev_b32 %s, 31, %s' % (v(T+6), v(V.n)))
            a('v_cvt_f32_u32 %s, %s' % (v(T+3), v(T+3)))
            a('v_mul_f32 %s, %s, %s' % (v(T+1), lit(1/2048), v(T+1)))
            a('s_brev_b32 %s, 1' % sA)
            a('v_lshrrev_b32 %s, %s, %s' % (v(T+4), v(T+4), sA))
            a('v_mul_f32 %s, %s, %s' % (v(T+5), v(T+1), v(T+2)))
            a('v_fmac_f32 %s, %s, %s' % (v(T+5), lit(0.25), v(T+3)))
            for sbb in range(2):
                if sbb == 0: self.fill = lambda: a('v_add_f32 %s, %s, %s' % (v(T+5), v(T+5), v(T+1)))
                else: self.fill = lambda: a('v_cvt_f32_u32 %s, %s' % (v(T), v(T)))
                self.trig(T+5, V.B+2*sbb, V.B+6+2*sbb)
                a('v_xor_b32 %s, %s, %s' % (v(V.B+2*sbb+1), v(V.B+2*sbb), v(T+4)))
                a('v_xor_b32 %s, %s, %s' % (v(V.B+6+2*sbb+1), v(V.B+6+2*sbb), v(T+4)))
            a('v_lshl_add_u32 %s, %s, 9, %s' % (v(T+1), v(V.g), sK0))
            a('v_xor_b32 %s, %s, %s' % (v(T), v(T), v(T+6)))
            a('v_cvt_f32_u32 %s, %s' % (v(T+1), v(T+1)))
            a('v_mul_f32 %s, 0.5, %s' % (v(T+5), v(T+3)))
            a('v_mul_f32 %s, %s, %s' % (v(T+1), lit(1/2048), v(T+1)))
            a('v_fmac_f32 %s, %s, %s' % (v(T+5), v(T+1), v(T)))
            for ii in range(2):
                a('v_cos_f32 %s, %s' % (v(c), v(T+5)))
                a('v_sin_f32 %s, %s' % (v(s), v(T+5)))
                a('v_mul_f32 %s, %s, %s' % (v(c), lit(SC), v(c)))
                a('v_mul_f32 %s, %s, %s' % (v(s), lit(SC), v(s)))
                if ii == 0: a('v_fmac_f32 %s, %s, %s' % (v(T+5), lit(0.125), v(T)))
                a('v_cvt_pk_bf16_f32 %s, %s, %s' % (v(T+1), v(c), v(s)))
                a('v_cvt_pk_bf16_f32 %s, -%s, %s' % (v(T+2), v(s), v(c)))
                a('v_xor_b32 %s, %s, %s' % (v(V.Bp+2*ii), v(T+1), v(T+6)))
                a('v_xor_b32 %s, %s, %s' % (v(V.Bp+4+2*ii), v(T+2), v(T+6)))
                a('v_xor_b32 %s, %s, %s' % (v(V.Bp+2*ii+1), v(T+2), v(T+6)))
                a('v_xor_b32 %s, 0x80008000, %s' % (v(V.Bp+4+2*ii+1), v(V.Bp+2*ii)))
        def special():
            a('v_cvt_f32_u32 %s, %s' % (v(T+1), v(T)))
            a('v_mul_f32 %s, %s, %s' % (v(T+1), lit(1/16), v(T+1)))
            a('v_lshlrev_b32 %s, 4, %s' % (v(T+4), v(T+3)))
            a('v_cmp_eq_u32 s[84:85], 0, %s' % v(T))
            a('v_and_b32 %s, 1, %s' % (v(T+6), v(T)))
            a('v_cmp_eq_u32 s[86:87], 1, %s' % v(T+6))
            a('v_mul_f32 %s, %s, %s' % (v(T+5), v(T+1), v(T+2)))
            for sbb in range(2):
                a('v_cos_f32 %s, %s' % (v(c), v(T+5)))
                a('v_sin_f32 %s, %s' % (v(s), v(T+5)))
                a('v_mul_f32 %s, 2.0, %s' % (v(c), v(c)))
                a('v_mul_f32 %s, -2.0, %s' % (v(s), v(s)))
                a('v_cndmask_b32 %s, %s, 1.0, s[84:85]' % (v(c), v(c)))
                a('v_cndmask_b32 %s, %s, %s, s[84:85]' % (v(s), v(s), '-1.0' if sbb else '1.0'))
                for src, dst in ((c, V.B+2*sbb), (s, V.B+6+2*sbb)):
                    a('v_cvt_pk_bf16_f32 %s, %s, 0' % (v(T+7), v(src)))
                    a('v_lshlrev_b32 %s, %s, %s' % (v(T+7), v(T+4), v(T+7)))
                    a('v_cndmask_b32 %s, %s, 0, s[86:87]' % (v(dst), v(T+7)))
                    a('v_cndmask_b32 %s, 0, %s, s[86:87]' % (v(dst+1), v(T+7)))
                a('v_add_f32 %s, %s, %s' % (v(T+5), v(T+5), v(T+1)))
            a('v_cmp_eq_u32 s[88:89], 0, %s' % v(V.g))
            a('v_cmp_eq_u32 s[90:91], 1, %s' % v(T+3))
            a('v_lshlrev_b32 %s, 31, %s' % (v(T+6), v(T)))
            a('v_xor_b32 %s, %s, %s' % (v(T+6), lit(SC), v(T+6)))
            a('v_mov_b32 %s, %s' % (v(T+4), lit(SC)))
            a('v_mul_f32 %s, %s, %s' % (v(T+5), v(T+1), v(T+2)))
            for ii in range(2):
                a('v_cos_f32 %s, %s' % (v(c), v(T+5)))
                a('v_sin_f32 %s, %s' % (v(s), v(T+5)))
                a('v_mul_f32 %s, %s, %s' % (v(c), lit(2*SC), v(c)))
                a('v_mul_f32 %s, %s, %s' % (v(s), lit(-2*SC), v(s)))
                if ii == 0:
                    a('v_cndmask_b32 %s, %s, %s, s[88:89]' % (v(c), v(c), v(T+4)))
                    a('v_cndmask_b32 %s, %s, %s, s[88:89]' % (v(s), v(s), v(T+6)))
                a('v_cvt_pk_bf16_f32 %s, %s, %s' % (v(T+7), v(s), v(c)))
                if ii: a('v_cndmask_b32 %s, 0, %s, s[90:91]' % (v(T+7), v(T+7)))
                else: a('v_cndmask_b32 %s, %s, 0, s[90:91]' % (v(T+7), v(T+7)))
                a('v_mov_b32 %s, 0' % v(V.Bp+2*ii)); a('v_mov_b32 %s, %s' % (v(V.Bp+2*ii+1), v(T+7)))
                a('v_mov_b32 %s, %s' % (v(V.Bp+4+2*ii), v(T+7))); a('v_mov_b32 %s, 0' % v(V.Bp+4+2*ii+1))
                a('v_add_f32 %s, %s, %s' % (v(T+5), v(T+5), v(T+1)))
        self.far(sT, 0, special, normal)
        for d, r in ((4, 0), (5, 1), (10, 6), (11, 7)): a('v_mov_b32 %s, %s' % (v(V.B+d), v(V.B+r)))

    def wq(self, rho): return (rho & 1) + 8*((rho >> 1) & 1) + 4*((rho >> 2) & 1)
    def w_dma1(self, i):
        a = self.a
        srd, so = [(SWR, sDP), (SWI, sDP), (SWR, sDM), (SWI, sDM)][i]
        a('s_add_u32 m0, %s, %d' % (sWL, 1056*i))
        a('buffer_load_dwordx4 %s, %s, %s offen %s lds' % (v(V.l16), srd, so, self.o['ldw']))
    def w_dma(self):
        for i in range(4): self.w_dma1(i)
    def w_edge_load(self):
        a = self.a; T = V.T
        a('s_mov_b64 exec, 15')
        a('v_mov_b32 %s, %s' % (v(T), sKP)); a('v_mov_b32 %s, %s' % (v(T+1), sKM))
        a('s_mov_b64 vcc, 10')
        a('v_cndmask_b32 %s, %s, %s, vcc' % (v(T), v(T), v(T+1)))
        a('v_and_b32 %s, 2, %s' % (v(T+1), v(V.lane)))
        a('v_lshl_add_u32 %s, %s, 9, %s' % (v(T), v(T+1), v(T)))
        a('buffer_load_short_d16_hi %s, %s, %s, 0 offen' % (v(V.WF), v(T), SWR))
        a('buffer_load_short_d16_hi %s, %s, %s, 0 offen' % (v(V.WF+1), v(T), SWI))
        a('s_mov_b64 exec, -1')
    def w_edge_rl(self):
        for l in range(4):
            for im in range(2): self.a('v_readlane_b32 s%d, %s, %d' % (84+2*l+im, v(V.WF+im), l))
    def w_edge(self):
        a = self.a; T = V.T
        self.w_edge_rl()
        q = ((84, 86, 'add'), (85, 87, 'sub'), (90, 88, 'add'), (91, 89, 'sub'))
        for i, (x, y, op) in enumerate(q): a('v_mov_b32 %s, s%d' % (v(T+i), y))
        for i, (x, y, op) in enumerate(q): a('v_%s_f32 %s, s%d, %s' % (op, v(V.WF+i), x, v(T+i)))
        for i in range(4): a('v_mul_f32 %s, 0.5, %s' % (v(V.WF+i), v(V.WF+i)))
        a('s_mov_b64 s[92:93], 1')
    def w_read1(self, rho, im, dst=None, swap=False):
        dst = V.W if dst is None else dst
        if rho < 8: ad, off = V.WP, 64*self.wq(rho) + (2112 if swap else 0)
        else: ad, off = V.WM, 64*(13-self.wq(rho)) + (0 if swap else 2112)
        return 'ds_read_u16_d16_hi %s, %s offset:%d' % (v(dst+16*im+rho), v(ad), off+1056*im)
    def w_fix(self, half):
        return ['v_cndmask_b32 %s, %s, %s, s[92:93]' % (v(V.W+8*half+16*im), v(V.W+8*half+16*im), v(V.WF+2*half+im)) for im in range(2)]
    def w_special(self):
        a = self.a; T = V.T; X = V.DA
        def f():
            for sw, dst in ((False, V.W), (True, X)):
                for rho in range(16):
                    for im in range(2): a(self.w_read1(rho, im, dst, sw))
            a('s_waitcnt lgkmcnt(0) vmcnt(0)')
            self.w_edge_rl()
            a('s_mov_b64 exec, 1')
            for r in (V.W+16, V.W+24, X+16, X+24): a('v_mov_b32 %s, 0' % v(r))
            a('v_mov_b32 %s, s90' % v(V.W+8)); a('v_mov_b32 %s, s88' % v(X+8))
            a('s_mov_b64 exec, -1')
            for i in range(32):
                a('v_add_f32 %s, %s, %s' % (v(V.W+i), v(V.W+i), v(X+i)))
                if (i & 15) < 8: a('v_fma_f32 %s, -2.0, %s, %s' % (v(X+i), v(X+i), v(V.W+i)))
                else: a('v_fma_f32 %s, 2.0, %s, -%s' % (v(X+i), v(X+i), v(V.W+i)))
            a('v_add_u32 %s, %d, %s' % (v(T+1), SCR_B, v(V.l16)))
            for i in range(8): a('ds_write_b128 %s, %s offset:%d' % (v(T+1), vr(X+4*i, 4), 1024*i))
        self.far(sSpec, 1, f)

    def addrs1(self):
        a = self.a; T = V.T
        a('v_lshrrev_b32 %s, 3, %s' % (v(T), v(V.lane)))
        a('v_and_b32 %s, 0x30, %s' % (v(T+1), v(V.l16)))
        a('v_lshl_add_u32 %s, %s, 6, %s' % (v(T), v(T), v(T+1)))
        a('v_and_b32 %s, 4, %s' % (v(T+1), v(V.lane)))
        a('v_lshl_add_u32 %s, %s, 1, %s' % (v(V.TR), v(T+1), v(T)))
        a('v_xor_b32 %s, %s, %s' % (v(T), sSB, v(V.lane)))
        a('v_and_b32 %s, 1, %s' % (v(T), v(T)))
        a('v_mul_u32_u24 %s, 16448, %s' % (v(T), v(T)))
        a('v_lshl_add_u32 %s, %s, 12, %s' % (v(T), v(V.g), v(T)))
        a('v_lshl_add_u32 %s, %s, 2, %s' % (v(T), v(T+1), v(T)))
        a('v_and_b32 %s, 0x60, %s' % (v(T+1), v(V.TR)))
        a('s_lshr_b32 %s, %s, 1' % (sWp, sW)); a('s_and_b32 %s, %s, 1' % (sA, sW))
        a('s_lshl2_add_u32 %s, %s, %s' % (sWp, sA, sWp)); a('s_lshl_b32 %s, %s, 7' % (sWp, sWp))
        a('v_add3_u32 %s, %s, %s, %s' % (v(V.X0w), v(T), v(T+1), sWp))
        a('s_lshl_b32 %s, %s, 10' % (sA, sW))
        a('s_sub_u32 %s, 0x4000, %s' % (sB, sA))
        a('s_cmp_eq_u32 %s, 0' % sW); a('s_cselect_b32 %s, 0x2000, %s' % (sB, sB))
        a('v_add_u32 %s, %s, %s' % (v(V.X0r0), sA, v(V.TR)))
        a('v_add_u32 %s, %s, %s' % (v(V.X0r1), sB, v(V.TR)))
    def addrs2(self):
        a = self.a; T = V.T
        a('v_lshlrev_b32 %s, 4, %s' % (v(T), v(V.n)))
        a('v_lshl_add_u32 %s, %s, 13, %s' % (v(T), v(V.g), v(T)))
        a('s_lshl_b32 %s, %s, 9' % (sA, sW)); a('s_add_u32 %s, %s, %d' % (sA, sA, R1))
        a('v_add_u32 %s, %s, %s' % (v(V.X1w), sA, v(T)))
        a('s_lshl_b32 %s, %s, 12' % (sA, sW)); a('s_add_u32 %s, %s, %d' % (sA, sA, R1))
        a('v_add_u32 %s, %s, %s' % (v(V.X1r), sA, v(V.TR)))
        a('v_and_b32 %s, 16, %s' % (v(T), v(V.l16)))
        a('v_and_b32 %s, 2, %s' % (v(T+1), v(V.lane)))
        a('v_bfe_u32 %s, %s, 2, 1' % (v(T+2), v(V.lane)))
        a('v_add_u32 %s, %s, %s' % (v(T+1), v(T+1), v(T+2)))
        a('v_mul_u32_u24 %s, 8224, %s' % (v(T+1), v(T+1)))
        a('v_bfe_u32 %s, %s, 3, 2' % (v(T+2), v(V.lane)))
        a('v_lshl_add_u32 %s, %s, 11, %s' % (v(T), v(T+2), v(T)))
        a('v_and_b32 %s, 32, %s' % (v(T+2), v(V.lane)))
        a('v_add3_u32 %s, %s, %s, %s' % (v(T), v(T), v(T+1), v(T+2)))
        a('v_add_u32 %s, %s, %s' % (v(V.X2w), sWp, v(T)))
        a('s_and_b32 %s, %s, 1' % (sA, sW)); a('s_lshr_b32 %s, %s, 2' % (sB, sW)); a('s_lshl1_add_u32 %s, %s, %s' % (sA, sB, sA)); a('s_lshl_b32 %s, %s, 11' % (sA, sA))
        a('s_and_b32 %s, %s, 2' % (sB, sW)); a('s_mul_i32 %s, %s, 8224' % (sB, sB)); a('s_add_u32 %s, %s, %s' % (sA, sA, sB))
        a('v_add_u32 %s, %s, %s' % (v(V.X2r), sA, v(V.TR)))
    def addrs3(self):
        a = self.a; T = V.T
        a('v_and_b32 %s, 16, %s' % (v(T), v(V.lane)))
        a('v_and_b32 %s, 33, %s' % (v(T+1), v(V.lane)))
        a('v_lshl_add_u32 %s, %s, 5, %s' % (v(T), v(T+1), v(T)))
        a('v_and_b32 %s, 8, %s' % (v(T+1), v(V.lane)))
        a('v_lshl_add_u32 %s, %s, 9, %s' % (v(T), v(T+1), v(T)))
        a('v_and_b32 %s, 2, %s' % (v(T+1), v(V.lane)))
        a('v_and_b32 %s, 4, %s' % (v(T+2), v(V.lane)))
        a('v_mul_u32_u24 %s, 4104, %s' % (v(T+1), v(T+1)))
        a('v_mul_u32_u24 %s, 4112, %s' % (v(T+2), v(T+2)))
        a('v_add3_u32 %s, %s, %s, %s' % (v(T), v(T), v(T+1), v(T+2)))
        a('s_sub_u32 %s, 16, %s' % (sC, sW))
        a('s_cmp_eq_u32 %s, 0' % sW); a('s_cselect_b32 %s, 8, %s' % (sC, sC))
        for kl, dst in ((sW, V.X3w0), (sC, V.X3w1)):
            a('s_lshr_b32 %s, %s, 2' % (sA, kl)); a('s_and_b32 %s, %s, 1' % (sB, kl)); a('s_lshl1_add_u32 %s, %s, %s' % (sA, sA, sB))
            a('s_and_b32 %s, %s, 2' % (sB, kl)); a('s_lshl2_add_u32 %s, %s, %s' % (sA, sB, sA))
            a('s_lshl_b32 %s, %s, 6' % (sA, sA)); a('s_add_u32 %s, %s, %d' % (sA, sA, R1))
            a('v_add_u32 %s, %s, %s' % (v(dst), sA, v(T)))
        a('s_and_b32 %s, %s, 1' % (sA, sW)); a('s_mul_i32 %s, %s, 8208' % (sA, sA))
        a('s_and_b32 %s, %s, 2' % (sB, sW)); a('s_mul_i32 %s, %s, 8224' % (sB, sB)); a('s_add_u32 %s, %s, %s' % (sA, sA, sB))
        a('s_and_b32 %s, %s, 4' % (sB, sW)); a('s_lshl_b32 %s, %s, 10' % (sB, sB)); a('s_add_u32 %s, %s, %s' % (sA, sA, sB))
        a('s_add_u32 %s, %s, %d' % (sA, sA, R1))
        a('v_add_u32 %s, %s, %s' % (v(V.X3r), sA, v(V.TR)))
        a('v_and_b32 %s, 0x70, %s' % (v(T), v(V.l16)))
        a('v_lshlrev_b32 %s, 1, %s' % (v(V.Ooff), v(V.Xoff)))
        a('v_sub_u32 %s, %s, %s' % (v(V.Ooff), v(V.Ooff), v(T)))

    def mf16(self, d, A, B): return 'v_mfma_f32_16x16x32_bf16 %s, %s, %s, 0' % (vr(d, 4), vr(A, 4), vr(B, 4))
    def cvt(self, d, lo, hi): return 'v_cvt_pk_bf16_f32 %s, %s, %s' % (v(d), v(lo), v(hi))
    def mf32(self, d, i, pl, dataA):
        M = vr(V.F32+16*pl+4*i, 4); X = vr(V.O+4*i, 4)
        A, B = (X, M) if dataA else (M, X)
        D = vr(d+16*pl, 16)
        return 'v_mfma_f32_32x32x16_bf16 %s, %s, %s, %s' % (D, A, B, D if i else '0')
    def emit(self, L):
        for x in L: self.a(x)

    def p1(self):
        a = self.a; O, L, D, P = V.O, V.L, V.DA, V.DB
        for r in range(4):
            a('s_waitcnt vmcnt(%d)' % (3-r+(2 if self.o['e1'] else 0)))
            if r == 3:
                self.stamp()
                if self.o['spos'] == 'mid': self.cond(sW, PW, self.side_load)
            for t in range(4): a('v_mov_b32 %s, %s' % (v(O+4*t+r), v(L+4*r+t)))
        for t in range(4):
            a(self.mf16(D+4*t, V.F16, O+4*t)); a(self.mf16(D+16+4*t, V.F16+4, O+4*t))
        if self.o['spos'] == 'late': self.cond(sW, PW, self.side_load)
        def sp():
            self.srds()
            a('s_mov_b32 %s, 0' % sDP); a('s_mov_b32 %s, %d' % (sDM, 1024*1026)); a('s_mov_b32 %s, %d' % (sWL, WL))
            self.w_dma()
        a('s_or_b32 %s, %s, %s' % (sA, sT, sW))
        self.far(sA, 0, sp)
        for r in range(4):
            a(self.cvt(P+4*r, D+r, D+4+r)); a(self.cvt(P+4*r+2, D+16+r, D+20+r))
        for r in range(4):
            a(self.cvt(P+4*r+1, D+8+r, D+12+r)); a(self.cvt(P+4*r+3, D+24+r, D+28+r))
            a('ds_write_b128 %s, %s offset:%d' % (v(V.X0w), vr(P+4*r, 4), 1024*r))
        self.mark('g1a')
        self.side_wait()
        self.mark('g1b')
        a('s_waitcnt lgkmcnt(0)')
        a('s_barrier')
        for ti in range(4):
            for ii in range(2):
                a('ds_read_b64_tr_b16 %s, %s offset:%d' % (vr(O+4*ti+2*ii, 2), v(V.X0r1 if ti >> 1 else V.X0r0), (ti & 1)*16448+ii*512))
        a('ds_read_b32 %s, %s' % (v(V.tmp), v(V.cnt)))
        for ti in range(4):
            a('s_waitcnt lgkmcnt(%d)' % (7-2*ti))
            a(self.mf16(D+4*ti, V.M2+8*(ti >> 1), O+4*ti)); a(self.mf16(D+16+4*ti, V.M2+8*(ti >> 1)+4, O+4*ti))
        a('s_waitcnt lgkmcnt(0)')
        self.side_use()
        for r in range(4): a('s_add_u32 %s, %s, 0x%x' % (sO[r], sEst, WS_U[0] + r*65536))
        st = lambda i: a('buffer_store_dwordx4 %s, %s, %s, %s offen %s' % (vr(P+4*i, 4), v(V.Est), SWS, sO[i], self.o['st1']))
        def normal():
            for i in range(4):
                for k in range(4): a(self.cvt(P+4*i+2*(k & 1)+(k >> 1), D+4*k+i, D+16+4*k+i))
                st(i)
        def w0():
            for i in range(4):
                ts, eb = i >> 1, i & 1
                for tau in range(2):
                    for sg in range(2):
                        x = 4*(2*ts+tau)+2*eb+sg
                        a(self.cvt(P+4*i+2*tau+sg, D+x, D+16+x))
                st(i)
        self.ifelse(sW, 0, w0, normal)

    def stage(self, src, dst, dataA, kind, prio, pre=None):
        a = self.a; T = V.T
        if self.o['prio']: a('s_setprio %d' % prio)
        G = []
        for i in range(4):
            g = []
            if kind == 'tw':
                for st in range(3):
                    for r in range(4):
                        rho = 4*i+r; x, y = v(src+rho), v(src+16+rho)
                        g.append('v_fmac_f32 %s, %s, %s' % ((y, v(V.TW+16+rho), x) if st == 1 else (x, v(V.TW+rho), y)))
                for r in range(4): g.append(self.cvt(V.O+4*i+r, src+4*i+r, src+16+4*i+r))
            else:
                t = T+4*(i & 1)
                for r in range(4):
                    rho = 4*i+r
                    g.append('v_mul_f32 %s, %s, %s' % (v(t+r), v(src+rho), v(V.W+rho)))
                for r in range(4):
                    rho = 4*i+r
                    if rho < 8: g.append('v_fma_f32 %s, -%s, %s, %s' % (v(t+r), v(src+16+rho), v(V.W+16+rho), v(t+r)))
                    else: g.append('v_fmac_f32 %s, %s, %s' % (v(t+r), v(src+16+rho), v(V.W+16+rho)))
                for r in range(4):
                    rho = 4*i+r
                    g.append('v_mul_f32 %s, %s, %s' % (v(src+16+rho), v(src+16+rho), v(V.W+rho)))
                for r in range(4):
                    rho = 4*i+r
                    if rho < 8: g.append('v_fmac_f32 %s, %s, %s' % (v(src+16+rho), v(src+rho), v(V.W+16+rho)))
                    else: g.append('v_fma_f32 %s, -%s, %s, %s' % (v(src+16+rho), v(src+rho), v(V.W+16+rho), v(src+16+rho)))
                for r in range(4): g.append(self.cvt(V.O+4*i+r, src+16+4*i+r, t+r))
            G.append(g)
        W = [[self.w_read1(4*i+r, im) for im in range(2) for r in range(4)] for i in range(4)] if kind == 'w' else None
        if kind == 'w':
            a('s_waitcnt vmcnt(2)')
            self.emit(W[0]); self.emit(W[1])
        for i in range(4):
            g = list(G[i]); n = len(g)
            ins = {}
            if i:
                ins.setdefault(2, []).append(self.mf32(dst, i-1, 0, dataA))
                ins.setdefault(2+n//2, []).append(self.mf32(dst, i-1, 1, dataA))
            if kind == 'w':
                a('s_waitcnt lgkmcnt(%d)' % (8 if i < 3 else 0))
                if i in (0, 2): self.emit(self.w_fix(i >> 1))
                if i < 2:
                    if i == 0: ins.setdefault(3, []).append('s_waitcnt vmcnt(0)')
                    for k, x in enumerate(W[i+2]): ins.setdefault(3+2*k, []).append(x)
            for k, x in enumerate(g):
                self.emit(ins.get(k, []))
                a(x)
        a(self.mf32(dst, 3, 0, dataA)); a(self.mf32(dst, 3, 1, dataA))

    def p2(self):
        a = self.a; O, L, D, T = V.O, V.L, V.DA, V.T
        na = self.p2na
        for cbb in range(2):
            b = L+12*cbb
            a('s_waitcnt vmcnt(%d)' % (na+3-2*cbb))
            a('v_mov_b32 %s, %s' % (v(b+8), v(b))); a('v_mov_b32 %s, %s' % (v(b+9), v(b+1)))
            a('s_waitcnt vmcnt(%d)' % (na+2-2*cbb))
            if cbb: self.stamp(); self.mark('f0')
            for jj2 in (1, 0):
                ti = 2*cbb+jj2; op = b+2 if jj2 else b+6; mo = 0 if jj2 else 2
                a(self.mf16(D+4*ti, V.B+mo, op)); a(self.mf16(D+16+4*ti, V.B+6+mo, op))
        for cbb in range(2):
            for k1b in range(2):
                P = O+4*(2*cbb+k1b)
                for jj2 in (1, 0):
                    for pl in range(2):
                        x = D+16*pl+4*(2*cbb+jj2)+2*k1b
                        a(self.cvt(P+2*pl+jj2, x, x+1))
                a('ds_write_b128 %s, %s offset:%d' % (v(V.X1w), vr(P, 4), k1b*4096+cbb*256))
        self.mark('f1')
        a('s_waitcnt lgkmcnt(0)')
        self.mark('f2', True)
        a('s_barrier')
        self.mark('x1', True)
        if self.o['prio']: a('s_setprio 3')
        for i in range(4):
            for ii in range(2):
                a('ds_read_b64_tr_b16 %s, %s offset:%d' % (vr(O+4*i+2*ii, 2), v(V.X1r), ii*1024+(i & 1)*512+(i >> 1)*2048))
        rows = {'postX1': (0, 1, 2, 3), 'barh': (2, 3), 'bar': (), 'p2a': (2, 3), 'q2a': (1, 2, 3)}[self.o['wpos']]
        for i in range(4):
            if i < len(rows): self.w_dma1(rows[i])
            a('s_waitcnt lgkmcnt(%d)' % (6-2*i))
            a(self.mf32(V.DA, i, 0, True)); a(self.mf32(V.DA, i, 1, True))
        self.mark('f3')
        self.stage(V.DA, V.DB, False, 'tw', 2)
        self.mark('f4', True)
        self.far(sSpec, 1, self.pw_special, lambda: self.stage(V.DB, V.DA, True, 'w', 1))
        self.mark('f5')
        self.stage(V.DA, V.DB, True, 'tw', 0)
        self.mark('f6')
        D = V.DB
        for r in range(4): a('s_add_u32 %s, %s, 0x%x' % (sO[r], sEst, WS_U[1] + r*65536))
        rho = lambda jj3, jj1, jj2, c: 4*(2*jj3+jj1)+2*jj2+c
        for pl in range(2):
            for k in range(4):
                c, jj1 = k >> 1, k & 1
                P = V.DA+4*k
                for jj3 in range(2):
                    a(self.cvt(P+2*pl+jj3, D+16*pl+rho(jj3, jj1, 0, c), D+16*pl+rho(jj3, jj1, 1, c)))
                if pl: a('ds_write_b128 %s, %s offset:%d' % (v(V.X2w), vr(P, 4), c*64+jj1*1024))
        self.mark('f7'); self.mark('x2')
        a('s_waitcnt lgkmcnt(0)')
        self.mark('f8', True)
        a('s_barrier')
        for ti in range(4):
            for ii in range(2):
                a('ds_read_b64_tr_b16 %s, %s offset:%d' % (vr(O+4*ti+2*ii, 2), v(V.X2r), ii*512+(ti & 1)*1024+(ti >> 1)*8224))
        D = V.DA; P = V.DB
        for ti in range(4):
            a('s_waitcnt lgkmcnt(%d)' % (6-2*ti))
            a(self.mf16(D+4*ti, V.Bp, O+4*ti)); a(self.mf16(D+16+4*ti, V.Bp+4, O+4*ti))
        self.mark('f9')
        for q in range(4):
            cbb, sbb = q >> 1, q & 1
            for jj1 in range(2):
                for hf in range(2):
                    x = 4*(2*cbb+jj1)+2*sbb+hf
                    a(self.cvt(P+4*q+2*jj1+hf, D+x, D+16+x))
            a('buffer_store_dwordx4 %s, %s, %s, %s offen %s' % (vr(P+4*q, 4), v(V.Est), SWS, sO[q], self.o['st2']))
        self.mark('f10')

    def pw_special(self):
        a = self.a; T = V.T; O = V.O; C = V.DB; X = V.DA
        self.sigma_lane(T)
        a('v_lshrrev_b32 %s, 5, %s' % (v(T+1), v(V.lane)))
        a('v_lshlrev_b32 %s, 9, %s' % (v(T+1), v(T+1)))
        a('v_lshl_add_u32 %s, %s, 2, %s' % (v(T+2), v(T), v(T+1)))
        a('v_add_u32 %s, %d, %s' % (v(T+2), SCR, v(T+2)))
        a('v_add_u32 %s, 128, %s' % (v(T+3), v(T+2)))
        a('v_sub_u32 %s, 32, %s' % (v(T+4), v(T)))
        a('v_lshrrev_b32 %s, 5, %s' % (v(T+5), v(T+4)))
        a('v_and_b32 %s, 31, %s' % (v(T+4), v(T+4)))
        a('v_lshlrev_b32 %s, 2, %s' % (v(T+4), v(T+4)))
        a('v_lshl_add_u32 %s, %s, 8, %s' % (v(T+4), v(T+5), v(T+4)))
        a('v_sub_u32 %s, %s, %s' % (v(T+4), v(T+4), v(T+1)))
        a('v_add_u32 %s, %d, %s' % (v(T+4), SCR + 2*256, v(T+4)))
        a('v_add_u32 %s, 128, %s' % (v(T+5), v(T+4)))
        a('v_add_u32 %s, %d, %s' % (v(T+6), SCR_B, v(V.l16)))
        qs = lambda rho: sigma(8*(rho >> 2) + (rho & 3))
        for pl in range(2):
            for rho in range(0, 16, 2):
                a('ds_write2st64_b32 %s, %s, %s offset0:%d offset1:%d' % (v(T+2+pl), v(C+16*pl+rho), v(C+16*pl+rho+1), qs(rho), qs(rho+1)))
            a('ds_write_b32 %s, %s offset:%d' % (v(T+2+pl), v(C+16*pl), 32*256))
        t0, t1 = v(T+8), v(T+9)
        for half in range(2):
            for pl in range(2):
                for k in range(0, 8, 2):
                    r_ = 8*half+k
                    a('ds_read2st64_b32 %s, %s offset0:%d offset1:%d' % (vr(X+8*pl+k, 2), v(T+4+pl), 29-qs(r_), 29-qs(r_+1)))
                for k in range(2):
                    a('ds_read_b128 %s, %s offset:%d' % (vr(X+16+8*pl+4*k, 4), v(T+6), 1024*(4*pl+2*half+k)))
            a('s_waitcnt lgkmcnt(0)')
            for k in range(8):
                r_ = 8*half+k
                x, y = v(C+r_), v(C+16+r_); ar, ai = v(V.W+r_), v(V.W+16+r_)
                p, q_ = v(X+k), v(X+8+k); br, bi = v(X+16+k), v(X+24+k)
                ng, ps = ('', '-') if half else ('-', '')
                a('v_mul_f32 %s, %s, %s' % (t0, x, ar))
                a('v_mul_f32 %s, %s, %s' % (t1, y, ar))
                a('v_fma_f32 %s, %s%s, %s, %s' % (t0, ng, y, ai, t0))
                a('v_fma_f32 %s, %s%s, %s, %s' % (t1, ps, x, ai, t1))
                a('v_fmac_f32 %s, %s, %s' % (t0, p, br))
                a('v_fma_f32 %s, -%s, %s, %s' % (t1, q_, br, t1))
                a('v_fma_f32 %s, %s%s, %s, %s' % (t0, ps, q_, bi, t0))
                a('v_fma_f32 %s, %s%s, %s, %s' % (t1, ps, p, bi, t1))
                a(self.cvt(O+r_, T+9, T+8))
        for i in range(4): a(self.mf32(V.DA, i, 0, True)); a(self.mf32(V.DA, i, 1, True))

    def p3(self):
        a = self.a; O, L, D, P = V.O, V.L, V.DA, V.DB
        a('s_lshl4_add_u32 %s, %s, %s' % (sA, sW, sSB)); a('s_lshl1_add_u32 %s, %s, %s' % (sA, sA, sP))
        a('s_lshl4_add_u32 %s, %s, %s' % (sA, sA, sCB)); a('s_lshl_b32 %s, %s, 7' % (sO[0], sA))
        for r in range(1, 4): a('s_add_u32 %s, %s, 0x%x' % (sO[r], sO[0], r*524288))
        def normal():
            for i in range(4):
                a('s_waitcnt vmcnt(%d)' % (3-i))
                for sel in range(2):
                    for col in range(2): a('v_mov_b32 %s, %s' % (v(O+4*(2*sel+col)+i), v(L+4*i+2*col+sel)))
        def w0():
            for i in range(4):
                ts, eb = i >> 1, i & 1
                a('s_waitcnt vmcnt(%d)' % (3-i))
                for col in range(2):
                    for sg in range(2): a('v_mov_b32 %s, %s' % (v(O+4*(2*ts+col)+2*eb+sg), v(L+4*i+2*col+sg)))
        self.ifelse(sW, 0, w0, normal, True)
        self.stamp()
        for ti in range(4):
            a(self.mf16(D+4*ti, O+4*ti, V.M2+8*(ti >> 1))); a(self.mf16(D+16+4*ti, O+4*ti, V.M2+8*(ti >> 1)+4))
        for ti in range(4):
            for pl in range(2):
                for k in range(2):
                    x = D+16*pl+4*ti+2*k
                    a(self.cvt(P+4*ti+2*pl+k, x, x+1))
            a('ds_write_b128 %s, %s offset:%d' % (v(V.X3w1 if ti >> 1 else V.X3w0), vr(P+4*ti, 4), (ti & 1)*2048))
        a('s_waitcnt lgkmcnt(0)')
        a('s_barrier')
        for t in range(4):
            for ii in range(2):
                a('ds_read_b64_tr_b16 %s, %s offset:%d' % (vr(O+4*t+2*ii, 2), v(V.X3r), ii*512+t*1024))
        for t in range(4):
            a('s_waitcnt lgkmcnt(%d)' % (6-2*t))
            a(self.mf16(D+4*t, V.F16, O+4*t)); a(self.mf16(D+16+4*t, V.F16+4, O+4*t))
        for t in range(2):
            for r in range(4): a(self.cvt(P+4*r+t, D+16+4*t+r, D+4*t+r))
        for r in range(4):
            for t in (2, 3): a(self.cvt(P+4*r+t, D+16+4*t+r, D+4*t+r))
            a('buffer_store_dwordx4 %s, %s, %s, %s offen %s' % (vr(P+4*r, 4), v(V.Ooff), SOUT, sO[r], self.o['sto']))

    def ex_load(self, ex):
        a = self.a
        a('s_add_u32 %s, %s, 0x%x' % (sA, sEld, WS_U[ex]))
        for q in range(4):
            d = V.L+12*(q >> 1)+4*(q & 1) if ex == 0 else V.L+4*q
            a('buffer_load_dwordx4 %s, %s, %s, %s offen offset:%d %s' % (vr(d, 4), v(V.Eld), SWS, sA, 256*q, self.o['ld1' if ex == 0 else 'ld2']))

    def build(self):
        a = self.a; o = self.o
        name = NAME + '_kernel'
        a.raw('.globl %s\n.p2align 12\n.p2align 8\n.type %s,@function\n%s:' % (name, name, name))
        end = self.label('end')
        self.prologue(end)
        def others():
            if o.get('kfirst'): a('s_waitcnt lgkmcnt(0)'); self.mark('karg0')
            self.touch(0)
            self.mark('touched')
            a('s_waitcnt lgkmcnt(0)')
            self.mark('karg')
            l = self.label('hold')
            a('s_cmp_lt_u32 %s, 8' % sCh); a('s_cbranch_scc1 %s' % l)
            self.x_issue()
            if o['pre']: self.cond(sW, PW, lambda: a('s_load_dword s95, s[20:21], 0x80'))
            a(l+':')
        self.ifelse(sCh, 0, self.probe, others, True)
        self.srds0(); self.addrs1()
        l = self.label('held')
        a('s_sub_u32 %s, %s, 1' % (sA, sCh)); a('s_cmp_ge_u32 %s, 7' % sA); a('s_cbranch_scc1 %s' % l)
        self.x_issue()
        a(l+':')
        self.gen_F16()
        self.clear_done()
        self.gen_M2(); self.ex_addrs()
        if o['touch']: self.cond(sT, 0, lambda: self.touch(1))
        full = o['full']
        e1 = o['e1']
        if full or e1: self.srds(); self.calc_k0()
        if e1: self.w_edge_load()
        if full:
            self.coop_gen(); self.gen_B(); self.addrs2(); self.flag_addrs()
        if o['spos'] == 'early': self.cond(sW, PW, self.side_load)
        self.mark('w1')
        self.p1()
        self.stamp()
        nP = {'p2a': 2, 'q2a': 1}.get(o['wpos'], 0)
        if full:
            self.side_apply(); a('s_mov_b32 %s, 1' % sInc)
            self.coop_read(); self.gen_M3()
            for i in range(nP): self.w_dma1(i)
            self.addrs3()
        else:
            self.flag_addrs(); self.side_apply()
            if not e1: self.srds(); self.calc_k0()
            a('s_mov_b32 %s, 1' % sInc)
            self.coop_gen(); self.coop_post()
            for i in range(nP): self.w_dma1(i)
        a('s_waitcnt vmcnt(%d)' % nP)
        self.stamp()
        self.arrive()
        el = (lambda: 0) if e1 else self.w_edge_load
        if full: self.poll(0, lambda: (el(), self.w_special()))
        else: self.poll(0, lambda: (el(), self.gen_B(), self.w_special()))
        self.stamp()
        self.ex_load(0)
        self.p2na = 0
        if o['wpos'] in ('bar', 'barh'):
            a('s_barrier'); self.p2na = 4 if o['wpos'] == 'bar' else 2
            for i in range(self.p2na): self.w_dma1(i)
        elif not full: self.coop_wait()
        if not full: self.coop_read(); self.addrs2()
        a('s_waitcnt vmcnt(%d)' % (4+self.p2na))
        self.w_edge()
        a('s_mov_b32 %s, 0x10000' % sInc)
        if o.get('da') == 'glob': self.cond(sId, 0, lambda: a('s_atomic_swap s56, s[20:21], 0x40'))
        self.p2()
        self.stamp()
        if not full: self.gen_M3()
        self.mark('w3a')
        a('s_waitcnt vmcnt(0)')
        self.stamp()
        self.arrive()
        self.poll(1, None if full else self.addrs3)
        if o['ts']: a('s_mov_b32 s%d, %s' % (sTS+26, sCnt))
        self.stamp()
        self.ex_load(1)
        self.p3()
        self.diag_end()
        a(end+':'); a('s_endpgm')
        t, self.tail = self.tail, []
        for f in t: f()
        if o['touch']: self.insert_stubs()
        hdr = ('; GFNet spectral filter, two heads: 2-D FFT as bf16 MFMA DFT stages in one persistent launch (generated)\n'
               '; @launch grid=(256,1,1) block=(512,1,1) lds=%d\n' % LDS_TOTAL)
        kd = '''.section .rodata,"a"
.p2align 6
.amdhsa_kernel %s
  .amdhsa_next_free_vgpr %d
  .amdhsa_next_free_sgpr 102
  .amdhsa_accum_offset %d
  .amdhsa_group_segment_fixed_size 0
  .amdhsa_kernarg_size 72
  .amdhsa_user_sgpr_count 2
  .amdhsa_user_sgpr_kernarg_segment_ptr 1
  .amdhsa_system_sgpr_workgroup_id_x 1
.end_amdhsa_kernel
''' % (name, NVGPR, (NVGPR+3)//4*4)
        return hdr + '.amdgcn_target "amdgcn-amd-amdhsa--gfx950"\n.text\n' + a.text() + kd

    def insert_stubs(self):
        a = self.a
        txt = '.amdgcn_target "amdgcn-amd-amdhsa--gfx950"\n.text\n' + a.text() + ''.join('stub_%d:\n' % k for k in range(16)) + 's_endpgm\n'
        open('pass1.s', 'w').write(txt)
        subprocess.check_call(['clang', '-x', 'assembler', '-target', 'amdgcn-amd-amdhsa', '-mcpu=gfx950', '-c', 'pass1.s', '-o', 'pass1.o'])
        dis = subprocess.check_output(['llvm-objdump', '-d', '--mcpu=gfx950', 'pass1.o']).decode()
        addrs = [int(m.group(1), 16) for m in re.finditer(r'// ([0-9A-F]{12}):', dis)]
        real = [i for i, x in enumerate(a.ins) if x.kind != 'none']
        assert len(addrs) == len(real) + 1, (len(addrs), len(real))
        size = {real[k]: addrs[k+1] - addrs[k] for k in range(len(real))}
        pos = ENTRY_OFF; nxt = 2048
        out = []; k = 0; prev = None; ez = False
        for i, x in enumerate(a.ins):
            if i in size:
                if prev is not None and prev.text.strip() == 's_mov_b64 exec, 0': ez = True
                if prev is not None and prev.text.strip() == 's_mov_b64 exec, -1': ez = False
                if pos >= nxt and k < 16 and not ez:
                    out.append(Ins('stub_%d:' % k)); out.append(Ins('s_cbranch_execz ret_%d' % (k >> 3)))
                    pos += 4; k += 1; nxt += 1024
                pos += size[i]; prev = x
                if x.op == 's_endpgm': self.hot_end = pos
            out.append(x)
        self.code_end = pos
        while k < 16:
            out.append(Ins('stub_%d:' % k)); out.append(Ins('s_branch ret_%d' % (k >> 3))); k += 1
        a.ins = out

if __name__ == '__main__':
    out = sys.argv[1]; opt = {}
    for kv in sys.argv[2:]:
        k, x = kv.split('=')
        opt[k] = {'True': True, 'False': False}.get(x, x.replace('+', ' '))
    g = Gen(**opt)
    s = g.build()
    assert g.a.verify() == 0
    open(out, 'w').write(s)
    print(out, 'vgprs', NVGPR, 'lds', LDS_TOTAL, 'nops', g.a.nops, 'lines', len(g.a.ins), 'hot end 0x%x code end 0x%x' % (getattr(g, 'hot_end', 0), getattr(g, 'code_end', 0)))
```

```python
import sys, struct, math, subprocess, re
from asmlib import Asm, Ins

NAME = 'concat_heads__spectral_gfnet__spectral_gfnet__prompt'
def f2u(x): return struct.unpack('<I', struct.pack('<f', x))[0]
def lit(x): return '0x%08x' % f2u(x)
def sigma(m): return (m & 1) | ((m >> 1) & 1) << 3 | ((m >> 2) & 1) << 1 | ((m >> 3) & 1) << 2 | (m & 16)

SC = 2.0**-22
SPIN_MAX = 0x4000
ENTRY_OFF = 0x300
PW = int([x for x in sys.argv if x.startswith('pw=')][0][3:]) if any(x.startswith('pw=') for x in sys.argv) else 1
R0 = 0
R1 = 33024
WL = 66048
SCR = WL + 8*4*1056
SCR_B = SCR + 36*256
TABL = SCR_B + 8192
CNT = TABL + 16384
LDS_TOTAL = CNT + 64
WS_U = (0, 8 << 20)
WS_FLAG = 16 << 20
WS_PROBE = 17 << 20
WS_TS = 72 << 20
class V: pass
_n = [0]
def alloc(n, align=1):
    b = (_n[0] + align - 1)//align*align
    _n[0] = b + n
    return b
V.tid = alloc(1); V.lane = alloc(1)
for nm in 'g n l16 TR Xoff Est Eld X0w X0r0 X0r1 X1w X1r X2w X2r WP WM zero cnt tmp'.split(): setattr(V, nm, alloc(1))
V.Ooff, V.X3w0, V.X3w1, V.X3r = V.Xoff, V.X0w, V.X0r0, V.X0r1
V.T = alloc(10)
V.O = alloc(16, 4)
V.DA = alloc(32, 4); V.DB = alloc(32, 4); V.L = V.DB
V.F16 = alloc(8, 4); V.M2 = alloc(16, 4)
V.F32 = alloc(32, 4); V.TW = alloc(32, 4); V.W = alloc(32, 4)
V.B = alloc(12, 4); V.Bp = alloc(8, 4); V.WF = alloc(4)
NVGPR = _n[0]
assert NVGPR <= 256, NVGPR
def v(i): return 'v%d' % i
def vr(i, n): return 'v[%d:%d]' % (i, i+n-1)
SX, SWR, SWI, SOUT, SDBG, SWS = 's[4:7]', 's[8:11]', 's[12:15]', 's[16:19]', 's[20:23]', 's[24:27]'
sP, sT, sW, sSB, sCB, sK0, sKP, sKM, sWp, sRv = ['s%d' % i for i in range(30, 40)]
sA, sB, sC, sD, sE, sF, sEst, sEld, sCnt, sSpec, sInc, sWL = ['s%d' % i for i in range(40, 52)]
sO = ['s52', 's53', 's54', 's55']
sTS = 56
sDP, sDM, sZ, sCh, sId = 's96', 's97', 's98', 's99', 's100'

class Gen:
    def __init__(self, **opt):
        self.o = dict(ldx='', ldw='', st1='sc1', st2='sc1', sto='nt', ld1='sc1', ld2='sc1', ts=False,
                      prio=True, nb='2', pnop='15', force='', wpos='postX1', touch=True, w1n='9', spos='early', qw='1', qg='1', zg='3', xm='2', pb='17', wsoff='0', pld='', pex='1', merge=True, full=False, e1=False, preoff='0x80', pre=True, split=False, map='2', rep='1', slp='', sthr='')
        self.o.update(opt)
        self.a = Asm(); self.lab = 0; self.nts = 0; self.sid = -1; self.tail = []
    def label(self, p='L'):
        self.lab += 1
        return '%s_%d' % (p, self.lab)

    def mark(self, nm, drain=False):
        o = self.o; hit = False
        if o.get('clk') and nm in ('w1', 'g1a', 'x1', 'x2', 'w3a', 'end'):
            for op in ('s_memrealtime', 's_memtime'):
                self.a('%s s[%d:%d]' % (op, sTS+2*self.nts, sTS+2*self.nts+1)); self.nts += 1
            self.a('s_waitcnt lgkmcnt(0)')
        if o.get('fine') and nm[0] == 'f':
            self.a('s_memtime s[%d:%d]' % (sTS+2*self.nts, sTS+2*self.nts+1)); self.nts += 1; hit = True
        for key, reg in (('da', 58), ('db', 60)):
            if o.get(key) == nm:
                self.a('%s s[%d:%d]' % ('s_memtime' if 'cyc' in o else 's_memrealtime', reg, reg+1)); hit = True
        if hit and drain: self.a('s_waitcnt lgkmcnt(0)')
    def stamp(self):
        self.sid += 1
        self.mark('s%d' % self.sid)
        if not self.o['ts'] or self.o.get('clk') or self.o.get('fine'): return
        self.a('s_memrealtime s[%d:%d]' % (sTS+2*self.nts, sTS+2*self.nts+1)); self.nts += 1
    def diag_end(self):
        a = self.a; o = self.o
        self.mark('end')
        if not (o['ts'] or 'da' in o): return
        self.stamp(); a('s_waitcnt vmcnt(0)'); self.stamp()
        a('s_waitcnt lgkmcnt(0)')
        if 'da' in o:
            lp = self.label('dg')
            if o['da'] == 'glob':
                a('buffer_load_dword %s, %s, %s, 0 offen offset:64 sc1' % (v(V.tmp), v(V.zero), SDBG))
                a('s_waitcnt vmcnt(0)')
                a('v_readfirstlane_b32 s58, %s' % v(V.tmp)); a('s_mov_b32 s56, s58')
            a('s_sub_u32 %s, s60, s58' % sA)
            if 'db0' in o: a('s_add_u32 %s, %s, 250' % (sA, sA)); a('s_lshl_b32 %s, %s, 1' % (sA, sA))
            a('s_lshr_b32 %s, %s, 2' % (sA, sA) if 'cyc' in o else 's_lshl_b32 %s, %s, 2' % (sA, sA))
            for key, reg in (('dp', sP), ('dt', sT), ('db0', sId)):
                if key in o: a('s_cmp_eq_u32 %s, %s' % (reg, o[key])); a('s_cselect_b32 %s, %s, 0' % (sA, sA))
            a('s_min_u32 %s, %s, %d' % (sA, sA, 5800 if 'enc' in o else 9000))
            if 'enc' in o:
                a('s_and_b32 %s, s62, 15' % sB); a('s_mul_i32 %s, %s, 10000' % (sB, sB)); a('s_add_u32 %s, %s, %s' % (sA, sA, sB))
                a('s_bfe_u32 %s, s62, 0x40008' % sB); a('s_mul_i32 %s, %s, 100000' % (sB, sB)); a('s_add_u32 %s, %s, %s' % (sA, sA, sB))
            a('s_add_u32 %s, %s, 3000' % (sA, sA))
            a(lp+':')
            a('s_memrealtime s[28:29]'); a('s_waitcnt lgkmcnt(0)')
            a('s_sub_u32 %s, s28, s56' % sB); a('s_cmp_lt_u32 %s, %s' % (sB, sA)); a('s_cbranch_scc1 %s' % lp)
            return
        a('s_lshl_b32 %s, %s, 7' % (sA, sId)); a('s_add_u32 %s, %s, 0x%x' % (sA, sA, WS_TS))
        a('s_mov_b64 exec, 1')
        for i in range(14):
            a('v_mov_b32 %s, s%d' % (v(V.T), sTS+2*i))
            a('buffer_store_dword %s, %s, %s, %s offen offset:%d' % (v(V.T), v(V.zero), SWS, sA, 4*i))
            a('s_nop 1')

    def cond(self, reg, val, f):
        a = self.a; l = self.label('c')
        a('s_cmp_lg_u32 %s, %d' % (reg, val)); a('s_cbranch_scc1 %s' % l)
        f(); a(l+':')
    def ifelse(self, reg, val, feq, fne, eq_first=False):
        a = self.a; l0, l1 = self.label('ie'), self.label('iend')
        if eq_first:
            a('s_cmp_lg_u32 %s, %d' % (reg, val)); a('s_cbranch_scc1 %s' % l0)
            feq(); a('s_branch %s' % l1); a(l0+':'); fne()
        else:
            a('s_cmp_eq_u32 %s, %d' % (reg, val)); a('s_cbranch_scc1 %s' % l0)
            fne(); a('s_branch %s' % l1); a(l0+':'); feq()
        a(l1+':')
    def far(self, reg, val, feq, fne=None):
        a = self.a; l0, l1 = self.label('far'), self.label('back')
        a('s_cmp_eq_u32 %s, %d' % (reg, val)); a('s_cbranch_scc1 %s' % l0)
        if fne: fne()
        a(l1+':')
        def t():
            a(l0+':'); feq(); a('s_branch %s' % l1)
        self.tail.append(t)
    def touch(self, rnd, half=False):
        a = self.a
        a('s_mov_b64 exec, 0')
        if half:
            for k in range(3):
                a('s_cmp_eq_u32 %s, %d' % (sW, 4+k)); a('s_cbranch_scc1 stub_%d' % (2*k))
            a('s_branch stub_6')
        else:
            for k in range(7):
                a('s_cmp_eq_u32 %s, %d' % (sW, k)); a('s_cbranch_scc1 stub_%d' % (8*rnd+k))
            a('s_branch stub_%d' % (8*rnd+7))
        a('ret_%d:' % rnd)
        a('s_mov_b64 exec, -1')

    def prologue(self, end):
        a = self.a; T = V.T
        a('s_cmp_ge_u32 s2, 0x100')
        a('s_cbranch_scc1 %s' % end)
        if 'da' in self.o: a('s_memrealtime s[56:57]'); self.mark('start')
        a('s_bfe_u32 %s, s2, 0x10002' % sP)
        a('s_mul_i32 s3, %s, 24' % sP)
        a('s_load_dwordx2 s[4:5], s[0:1], s3')
        a('s_load_dwordx2 s[24:25], s[0:1], 0x40')
        a('s_load_dwordx2 s[20:21], s[0:1], 0x38')
        a('s_load_dwordx2 s[8:9], s[0:1], s3 offset:8')
        a('s_load_dwordx2 s[12:13], s[0:1], s3 offset:16')
        a('s_load_dwordx2 s[16:17], s[0:1], 0x30')
        self.stamp()
        a('v_lshrrev_b32 %s, 6, v0' % v(T))
        a('v_and_b32 %s, 63, v0' % v(V.lane))
        a('v_readfirstlane_b32 %s, %s' % (sW, v(T)))
        mp = self.o['map']
        a('s_and_b32 %s, s2, 3' % sA)
        if int(self.o['xm']): a('s_xor_b32 %s, %s, %s' % (sA, sA, self.o['xm']))
        if mp in ('0', '1'):
            a('s_bfe_u32 %s, s2, 0x10003' % sB)
            if mp == '0': a('s_lshl1_add_u32 %s, %s, %s' % (sA, sA, sB))
            else: a('s_lshl2_add_u32 %s, %s, %s' % (sA, sB, sA))
            a('s_lshr_b32 %s, s2, 4' % sB)
            a('s_lshl4_add_u32 %s, %s, %s' % (sT, sA, sB))
        else:
            a('s_lshr_b32 %s, s2, 3' % sB)
            a('s_lshl2_add_u32 %s, %s, %s' % (sT, sB, sA))
            a('s_lshr_b32 %s, %s, 4' % (sA, sT)); a('s_and_b32 %s, %s, 15' % (sB, sT))
        a('s_bfe_u32 %s, %s, 0x10001' % (sC, sB))
        a('s_lshl1_add_u32 %s, %s, %s' % (sCB, sA, sC))
        a('s_lshr_b32 %s, %s, 2' % (sSB, sB))
        a('s_and_b32 %s, %s, 1' % (sC, sB))
        a('s_lshl1_add_u32 %s, %s, %s' % (sSB, sSB, sC))
        a('s_mov_b32 s6, 0x400000'); a('s_mov_b32 s7, 0x20000')
        a('v_lshrrev_b32 %s, 4, %s' % (v(V.g), v(V.lane)))
        a('v_lshlrev_b32 %s, 4, %s' % (v(V.l16), v(V.lane)))
        a('v_and_b32 %s, 8, v0' % v(T))
        a('v_lshlrev_b32 %s, 11, %s' % (v(T), v(T)))
        a('v_lshl_add_u32 %s, %s, 20, %s' % (v(T), v(V.g), v(T)))
        a('v_and_b32 %s, 0x70, %s' % (v(T+1), v(V.l16)))
        a('v_add_u32 %s, %s, %s' % (v(V.Xoff), v(T), v(T+1)))
        a('s_lshl4_add_u32 %s, %s, %s' % (sA, sW, sSB))
        a('s_lshl4_add_u32 %s, %s, %s' % (sA, sA, sCB))
        a('s_lshl_b32 %s, %s, 7' % (sO[0], sA))
        for r in range(1, 4): a('s_add_u32 %s, %s, 0x%x' % (sO[r], sO[0], r*262144))
        a('s_lshl3_add_u32 %s, s2, %s' % (sId, sW))
        a('s_xor_b32 %s, %s, %d' % (sCh, sId, 8*int(self.o['qg'])+int(self.o['qw']))); a('s_and_b32 %s, %s, 0xffffff3f' % (sCh, sCh))
    def srds(self):
        a = self.a
        a('s_mov_b32 s10, 2101248'); a('s_mov_b32 s11, 0x20000')
        a('s_mov_b32 s14, 2101248'); a('s_mov_b32 s15, 0x20000')
        a('s_mov_b32 s18, 0x800000'); a('s_mov_b32 s19, 0x20000')
    def srds0(self):
        a = self.a
        a('s_mov_b32 s22, 256'); a('s_mov_b32 s23, 0x20000')
        a('s_mov_b32 s26, 0x%x' % ((80 if self.o['ts'] else 18) << 20)); a('s_mov_b32 s27, 0x20000')
        a('v_and_b32 %s, 15, %s' % (v(V.n), v(V.lane)))
        a('v_mov_b32 %s, 0' % v(V.zero)); a('v_mov_b32 %s, %d' % (v(V.cnt), CNT))

    def x_issue(self):
        for r in range(4):
            self.a('buffer_load_dwordx4 %s, %s, %s, %s offen %s' % (vr(V.L+4*r, 4), v(V.Xoff), SX, sO[r], self.o['ldx']))
    def probe(self):
        a = self.a; T = V.T; NB = int(self.o['nb']); ld = self.o['pld']
        a('s_bfe_u32 %s, s2, 0x10004' % sC)
        a('s_mul_i32 %s, %s, 0x12000' % (sA, sC)); a('s_add_u32 %s, %s, 0x%x' % (sA, sA, int(self.o['pb']) << 20))
        a('s_and_b32 %s, s2, 8' % sE)
        a('s_mul_i32 %s, %s, 0x4a20' % (sD, sE)); a('s_add_u32 %s, %s, %s' % (sA, sA, sD)); a('s_lshl_b32 %s, %s, 14' % (sD, sE))
        a('s_xor_b32 %s, %s, 0x2000' % (sB, sA))
        a('s_lshl_b32 %s, %s, 16' % (sF, sC)); a('s_add_u32 %s, %s, %s' % (sD, sD, sF)); a('s_add_u32 %s, %s, 0x%x' % (sD, sD, WS_FLAG))
        a('s_lshl_b32 %s, %s, 4' % (sE, sE)); a('s_xor_b32 %s, %s, 0x80' % (sE, sE))
        a('s_mov_b32 s26, 0x%x' % (18 << 20)); a('s_mov_b32 s27, 0x20000')
        a('s_lshl_b32 %s, %s, 3' % (sC, sC))
        a('v_mul_u32_u24 %s, 0x5080, %s' % (v(T), v(V.lane)))
        a('v_lshlrev_b32 %s, 10, %s' % (v(T+1), v(V.lane)))
        a('v_mov_b32 %s, 0' % v(T+2))
        if not ld:
            for k in range(2*NB): a('v_mov_b32 %s, 0' % v(V.DA+k))
        a('s_mov_b64 exec, %s' % self.o['pex'])
        if 'da' in self.o: a('s_waitcnt lgkmcnt(0)'); a('s_mov_b32 s60, s56'); a('s_mov_b32 s58, s56')
        a('s_waitcnt lgkmcnt(0)')
        for side, base in enumerate((sA, sB)):
            for k in range(NB):
                if ld: a('buffer_load_dword %s, %s, %s, %s offen offset:%d %s' % (v(V.DA+side*NB+k), v(T), SWS, base, k*0x600, ld))
                else: a('buffer_atomic_add %s, %s, %s, %s offen offset:%d sc0 sc1' % (v(V.DA+side*NB+k), v(T), SWS, base, k*0x600))
        a('s_mov_b64 exec, -1')
        a('buffer_store_dword %s, %s, %s, %s offen sc1' % (v(T+2), v(T+1), SWS, sD))
        if self.o['pre']: a('s_load_dword s95, s[20:21], %s' % self.o['preoff'])
        self.x_issue()
        a('s_waitcnt vmcnt(%d)' % (NB+5))
        for x in self.o['pnop'].split(','): a('s_nop %s' % x)
        a('s_getreg_b32 %s, hwreg(HW_REG_IB_STS, 0, 4)' % sA)
        a('s_or_b32 %s, %s, 16' % (sA, sA)); a('s_lshl_b32 s94, %s, %s' % (sA, sC))
        if self.o['merge']: a('s_waitcnt vmcnt(4)')
        a('s_atomic_or s94, s[20:21], %s' % sE)
        self.mark('pub')
    def clear_done(self):
        a = self.a
        if self.o['merge']: return
        def f():
            a('s_mov_b32 s93, 1'); a('s_waitcnt vmcnt(4)')
            a('s_atomic_add s93, s[20:21], 0x0')
        self.cond(sCh, 0, f)
    def ready_check(self):
        a = self.a; l0, l1 = self.label('rdy'), self.label('rdyok')
        a('s_cmp_ge_u32 %s, 2' % sRv)
        a('s_cbranch_scc1 %s' % l1)
        a('s_mov_b32 %s, 0' % sCnt)
        a(l0+':')
        a('buffer_load_dword %s, %s, %s, 0 offen sc1' % (v(V.tmp), v(V.zero), SDBG))
        a('s_add_u32 %s, %s, 1' % (sCnt, sCnt))
        a('s_cmp_gt_u32 %s, 0x%x' % (sCnt, SPIN_MAX))
        a('s_waitcnt vmcnt(0)')
        a('s_cbranch_scc1 %s' % l1)
        a('v_cmp_gt_u32 vcc, 2, %s' % v(V.tmp))
        a('s_cbranch_vccnz %s' % l0)
        a(l1+':')
    def side_load(self, off=128):
        self.a('buffer_load_dword %s, %s, %s, 0 offen offset:%d sc1' % (v(V.tmp), v(V.zero), SDBG, off))
    def side_poll(self, off, dst):
        a = self.a; lp, ok = self.label('sw'), self.label('swok')
        a('s_mov_b32 %s, 0' % sCnt)
        a(lp+':')
        a('s_waitcnt vmcnt(0)')
        a('v_readfirstlane_b32 %s, %s' % (sA, v(V.tmp)))
        a('s_and_b32 %s, %s, 0x1010' % (sB, sA)); a('s_cmp_eq_u32 %s, 0x1010' % sB)
        a('s_cbranch_scc1 %s' % ok)
        self.side_load(off)
        a('s_add_u32 %s, %s, 1' % (sCnt, sCnt))
        a('s_cmp_lt_u32 %s, 0x%x' % (sCnt, SPIN_MAX))
        a('s_cbranch_scc1 %s' % lp)
        a('s_waitcnt vmcnt(0)')
        a(ok+':')
        a('s_and_b32 %s, %s, 15' % (sB, sA)); a('s_bfe_u32 %s, %s, 0x40008' % (sA, sA))
        a('s_sub_i32 %s, %s, %s' % (dst, sA, sB))
    def side_wait(self):
        a = self.a
        def f():
            l = self.label('clean')
            if self.o['force'] != '':
                a('ds_write2_b32 %s, %s, %s offset0:0 offset1:1' % (v(V.cnt), v(V.zero), v(V.zero))); return
            self.side_poll(128, sC)
            a('s_abs_i32 %s, %s' % (sA, sC)); a('s_cmp_ge_u32 %s, 2' % sA); a('s_cbranch_scc1 %s' % l)
            self.side_load(0)
            self.side_poll(0, sD)
            a('s_add_i32 %s, %s, %s' % (sC, sC, sD))
            a(l+':')
            a('s_cmp_gt_i32 %s, 0' % sC); a('s_cselect_b32 %s, 0x2000, 0' % sA)
            if self.o['ts']: a('s_add_u32 %s, %s, 0x80' % (sC, sC)); a('s_or_b32 %s, %s, %s' % (sA, sA, sC))
            a('v_mov_b32 %s, %s' % (v(V.tmp), sA))
            a('ds_write2_b32 %s, %s, %s offset0:0 offset1:1' % (v(V.cnt), v(V.tmp), v(V.zero)))
        self.cond(sW, PW, f)
    def side_use(self):
        a = self.a
        a('v_readfirstlane_b32 %s, %s' % (sCh, v(V.tmp)))
        if self.o['ts']: a('s_mov_b32 s%d, %s' % (sTS+24, sCh)); a('s_and_b32 %s, %s, 0x2000' % (sCh, sCh))
        if 'enc' in self.o: a('s_lshr_b32 s62, %s, 13' % sCh)
        if self.o['force'] != '': a('s_mov_b32 %s, %d' % (sCh, int(self.o['force']) << 13))
        a('s_xor_b32 %s, %s, %s' % (sEst, sEst, sCh))
    def flag_addrs(self):
        a = self.a
        a('s_lshr_b32 %s, %s, 4' % (sB, sT))
        a('s_lshl_b32 %s, %s, 13' % (sA, sP)); a('s_add_u32 %s, %s, 0x%x' % (sA, sA, WS_FLAG))
        for dst, wp, gr in ((sF, sW, sB), (sE, sB, sW)):
            a('s_lshl4_add_u32 %s, %s, %s' % (sC, wp, gr)); a('s_lshl_b32 %s, %s, 10' % (sC, sC))
            a('s_add_u32 %s, %s, %s' % (dst, sC, sA))
        R = int(self.o['rep'])
        if R > 1:
            a('s_and_b32 %s, %s, %d' % (sC, sT, R-1)); a('s_lshl_b32 %s, %s, 8' % (sC, sC)); a('s_add_u32 %s, %s, %s' % (sE, sE, sC))
    def side_apply(self):
        for r in (sF, sE, sEld): self.a('s_xor_b32 %s, %s, %s' % (r, r, sCh))
    def arrive(self):
        for r in range(int(self.o['rep'])): self.a('s_atomic_add %s, s[24:25], %s offset:%d' % (sInc, sF, 256*r))
    def poll(self, ex, under=None):
        a = self.a; lp, ok = self.label('poll'), self.label('pollok')
        if under:
            a('s_mov_b32 %s, 0' % sRv)
            a('s_atomic_add %s, s[24:25], %s glc' % (sRv, sE))
            under()
            a('s_waitcnt lgkmcnt(0)')
            a('s_bitcmp1_b32 %s, %d' % (sRv, 4+16*ex))
            a('s_cbranch_scc1 %s' % ok)
        a('s_mov_b32 %s, 0' % sCnt)
        a(lp+':')
        a('s_mov_b32 %s, 0' % sRv)
        a('s_atomic_add %s, s[24:25], %s glc' % (sRv, sE))
        a('s_add_u32 %s, %s, 1' % (sCnt, sCnt))
        a('s_cmp_gt_u32 %s, 0x%x' % (sCnt, SPIN_MAX))
        a('s_waitcnt lgkmcnt(0)')
        a('s_cbranch_scc1 %s' % ok)
        if self.o['slp']:
            a('s_bitcmp1_b32 %s, %d' % (sRv, 4+16*ex))
            a('s_cbranch_scc1 %s' % ok)
            if self.o['sthr']:
                a('s_bfe_u32 %s, %s, 0x%x' % (sA, sRv, 0x50000+16*ex))
                a('s_cmp_ge_u32 %s, %s' % (sA, self.o['sthr'])); a('s_cbranch_scc1 %s' % lp)
            a('s_sleep %s' % self.o['slp'])
            a('s_branch %s' % lp)
        else:
            a('s_bitcmp0_b32 %s, %d' % (sRv, 4+16*ex))
            a('s_cbranch_scc1 %s' % lp)
        a(ok+':')
    def ex_addrs(self):
        a = self.a; T = V.T
        a('s_lshl_b32 %s, %s, 4' % (sB, sW)); a('s_xor_b32 %s, %s, %s' % (sB, sB, sT)); a('s_lshl_b32 %s, %s, 8' % (sB, sB))
        a('v_lshlrev_b32 %s, 4, %s' % (v(T), v(V.n)))
        a('v_lshl_add_u32 %s, %s, 10, %s' % (v(T), v(V.g), v(T)))
        a('v_xor_b32 %s, %s, %s' % (v(T), sB, v(T)))
        a('v_and_b32 %s, 0x6000, %s' % (v(T+1), v(T)))
        a('v_add_u32 %s, %s, %s' % (v(T), v(T), v(T+1)))
        a('v_lshl_add_u32 %s, %s, 18, %s' % (v(V.Est), v(V.g), v(T)))
        a('v_and_b32 %s, 0xdcff, %s' % (v(V.Eld), v(T)))
        a('s_bfe_u32 %s, %s, 0x10001' % (sA, sW)); a('s_xor_b32 %s, %s, %s' % (sA, sA, sP))
        a('s_bfe_u32 %s, %s, 0x10005' % (sC, sT)); a('s_xor_b32 %s, %s, %s' % (sC, sC, sP))
        a('s_lshl_b32 %s, %s, 7' % (sEst, sW)); a('s_add_u32 %s, %s, %s' % (sEst, sEst, sA)); a('s_lshl_b32 %s, %s, 13' % (sEst, sEst))
        a('s_lshl3_add_u32 %s, %s, %s' % (sEld, sT, sC)); a('s_lshl_b32 %s, %s, 13' % (sEld, sEld))

    def trig(self, x, re, im, conj_re=None, conj_im=None):
        a = self.a; c, s = V.T+8, V.T+9
        a('v_cos_f32 %s, %s' % (v(c), v(x)))
        a('v_sin_f32 %s, %s' % (v(s), v(x)))
        if getattr(self, 'fill', None): self.fill(); self.fill = None
        a('v_cvt_pk_bf16_f32 %s, %s, %s' % (v(re), v(c), v(s)))
        a('v_cvt_pk_bf16_f32 %s, -%s, %s' % (v(im), v(s), v(c)))
        if conj_re is not None:
            a('v_xor_b32 %s, 0x80000000, %s' % (v(conj_re), v(re)))
            a('v_xor_b32 %s, 0x8000, %s' % (v(conj_im), v(im)))
    def ladder(self, x, step, regs):
        a = self.a
        for k, r in enumerate(regs):
            if k < len(regs)-1: self.fill = lambda: a('v_add_f32 %s, %s, %s' % (v(x), v(x), v(step)))
            self.trig(x, *r)
    def gen_F16(self):
        a = self.a; T = V.T
        a('v_cvt_f32_u32 %s, %s' % (v(T), v(V.n)))
        a('v_cvt_f32_u32 %s, %s' % (v(T+1), v(V.g)))
        a('v_mul_f32 %s, %s, %s' % (v(T), lit(1/16), v(T)))
        a('v_mul_f32 %s, 4.0, %s' % (v(T+1), v(T+1)))
        a('v_mul_f32 %s, %s, %s' % (v(T+2), v(T), v(T+1)))
        self.ladder(T+2, T, [(V.F16+r, V.F16+4+r) for r in range(4)])
    def gen_M2(self):
        a = self.a; T = V.T
        def normal():
            a('v_cvt_f32_u32 %s, %s' % (v(T+2), sW))
            a('v_fmac_f32 %s, %s, %s' % (v(T), lit(1/256), v(T+2)))
            a('v_mul_f32 %s, %s, %s' % (v(T+2), v(T), v(T+1)))
            self.ladder(T+2, T, [(V.M2+r, V.M2+4+r, V.M2+8+r, V.M2+12+r) for r in range(4)])
        def w0():
            a('v_lshrrev_b32 %s, 1, %s' % (v(T), v(V.n)))
            a('v_cvt_f32_u32 %s, %s' % (v(T), v(T)))
            a('v_lshlrev_b32 %s, 31, %s' % (v(T+3), v(V.n)))
            a('v_add_f32 %s, 0.5, %s' % (v(T+4), v(T)))
            a('v_xor_b32 %s, %s, %s' % (v(T+3), lit(1/16), v(T+3)))
            a('v_cmp_ne_u32 vcc, 1, %s' % v(V.n))
            a('v_mul_f32 %s, %s, %s' % (v(T), v(T), v(T+3)))
            a('v_mul_f32 %s, %s, %s' % (v(T+4), v(T+4), v(T+3)))
            a('v_cndmask_b32 %s, 0.5, %s, vcc' % (v(T), v(T)))
            for ts in range(2):
                d = T+4*ts
                a('v_mul_f32 %s, %s, %s' % (v(T+2), v(d), v(T+1)))
                self.ladder(T+2, d, [(V.M2+8*ts+r, V.M2+8*ts+4+r) for r in range(4)])
        self.ifelse(sW, 0, w0, normal)
    def gen_M3(self):
        a = self.a; T = V.T
        a('v_cvt_f32_u32 %s, %s' % (v(T), v(V.n)))
        a('v_mul_f32 %s, %s, %s' % (v(T+1), lit(1/256), v(T)))
        a('v_mul_f32 %s, %s, %s' % (v(T), lit(1/16), v(T)))
        def normal():
            a('v_lshl_add_u32 %s, %s, 6, %s' % (v(T+2), v(V.g), sW))
            a('v_cvt_f32_u32 %s, %s' % (v(T+2), v(T+2)))
            a('v_mul_f32 %s, %s, %s' % (v(T+2), v(T+2), v(T+1)))
            self.ladder(T+2, T, [(V.M2+r, V.M2+4+r, V.M2+8+r, V.M2+12+r) for r in range(4)])
        def w0():
            a('v_lshlrev_b32 %s, 5, %s' % (v(T+2), v(V.g)))
            a('v_cvt_f32_u32 %s, %s' % (v(T+2), v(T+2)))
            a('v_mul_f32 %s, 0.5, %s' % (v(T), v(T)))
            a('v_mul_f32 %s, %s, %s' % (v(T+2), v(T+2), v(T+1)))
            regs = []
            for k in range(4):
                b = V.M2+8*(k & 1)+2*(k >> 1)
                regs.append((b, b+4, b+1, b+5))
            self.ladder(T+2, T, regs)
            a('s_mov_b64 exec, 0xffff')
            a('v_lshlrev_b32 %s, 15, %s' % (v(T+2), v(V.n)))
            a('v_and_b32 %s, 0x8000, %s' % (v(T+2), v(T+2)))
            a('v_or_b32 %s, 0x3f80, %s' % (v(V.M2+1), v(T+2)))
            a('v_lshlrev_b32 %s, 16, %s' % (v(V.M2+5), v(V.M2+1)))
            a('s_mov_b64 exec, -1')
        self.ifelse(sW, 0, w0, normal)
    def sigma_lane(self, dst):
        a = self.a; t = V.T+7
        a('v_and_b32 %s, 17, %s' % (v(dst), v(V.lane)))
        a('v_bfe_u32 %s, %s, 2, 2' % (v(t), v(V.lane)))
        a('v_lshl_add_u32 %s, %s, 1, %s' % (v(dst), v(t), v(dst)))
        a('v_and_b32 %s, 2, %s' % (v(t), v(V.lane)))
        a('v_lshl_add_u32 %s, %s, 2, %s' % (v(dst), v(t), v(dst)))
    def coop_gen(self):
        a = self.a; T = V.T; X = V.DA
        self.sigma_lane(T)
        a('v_lshrrev_b32 %s, 5, %s' % (v(T+1), v(V.lane)))
        a('v_lshlrev_b32 %s, 7, %s' % (v(T+2), v(T+1)))
        a('v_lshl_add_u32 %s, %s, 1, %s' % (v(T+2), v(T), v(T+2)))
        a('s_and_b32 %s, %s, 2' % (sD, sKP)); a('s_sub_u32 %s, %s, %s' % (sD, sWL, sD))
        a('v_add_u32 %s, %s, %s' % (v(V.WP), sD, v(T+2)))
        a('s_add_u32 %s, %s, %d' % (sD, sD, 1024-832))
        a('v_sub_u32 %s, %s, %s' % (v(V.WM), sD, v(T+2)))
        a('v_cvt_f32_u32 %s, %s' % (v(T), v(T)))
        a('s_mul_i32 %s, %s, 4' % (sA, sW)); a('s_lshr_b32 %s, 0x75643120, %s' % (sA, sA)); a('s_and_b32 %s, %s, 7' % (sA, sA)); a('s_lshl_b32 %s, %s, 2' % (sA, sA))
        a('v_lshl_add_u32 %s, %s, 1, %s' % (v(T+1), v(T+1), sA))
        a('v_mul_f32 %s, %s, %s' % (v(T), lit(1/2048), v(T)))
        a('v_cvt_f32_u32 %s, %s' % (v(T+1), v(T+1)))
        a('v_mul_f32 %s, %s, %s' % (v(T+2), v(T+1), v(T)))
        for e in range(2):
            a('v_cos_f32 %s, %s' % (v(T+5), v(T+2)))
            a('v_sin_f32 %s, %s' % (v(T+6), v(T+2)))
            a('v_rcp_f32 %s, %s' % (v(T+5), v(T+5)))
            a('v_mul_f32 %s, %s, %s' % (v(T+3), lit(64.0), v(T+2)))
            a('v_mul_f32 %s, %s, %s' % (v(X+4+e), v(T+6), v(T+5)))
            a('v_fma_f32 %s, %s, %s, 1.0' % (v(T+5), v(X+4+e), v(X+4+e)))
            a('v_rcp_f32 %s, %s' % (v(T+6), v(T+5)))
            a('v_mul_f32 %s, -2.0, %s' % (v(T+4), v(X+4+e)))
            a('v_fma_f32 %s, -%s, %s, 1.0' % (v(T+5), v(T+5), v(T+6)))
            a('v_fmac_f32 %s, %s, %s' % (v(T+6), v(T+5), v(T+6)))
            a('v_mul_f32 %s, %s, %s' % (v(X+6+e), v(T+6), v(T+4)))
            if e == 0: self.fill = lambda: a('v_add_f32 %s, %s, %s' % (v(T+2), v(T+2), v(T)))
            self.trig(T+3, X+e, X+2+e)
        a('s_lshr_b32 %s, %s, 1' % (sA, sW)); a('s_lshl_b32 %s, %s, 7' % (sA, sA))
        a('s_and_b32 %s, %s, 1' % (sB, sW)); a('s_add_u32 %s, %s, %s' % (sA, sA, sB))
        a('s_lshl3_add_u32 %s, %s, %d' % (sA, sA, TABL))
        a('v_add_u32 %s, %s, %s' % (v(T), sA, v(V.l16)))
        for k in range(4): a('ds_write_b64 %s, %s offset:%d' % (v(T), vr(X+2*k, 2), 4096*k))
    def coop_post(self):
        a = self.a
        a('v_mov_b32 %s, 1' % v(V.T+1))
        a('ds_add_u32 %s, %s offset:4' % (v(V.cnt), v(V.T+1)))
    def coop_wait(self):
        a = self.a; T = V.T; lp, ok = self.label('cw'), self.label('cwok')
        a('s_mov_b32 %s, 0' % sCnt)
        a(lp+':')
        a('ds_read_b32 %s, %s offset:4' % (v(T), v(V.cnt)))
        a('s_add_u32 %s, %s, 1' % (sCnt, sCnt))
        a('s_cmp_gt_u32 %s, 0x%x' % (sCnt, SPIN_MAX*8))
        a('s_waitcnt lgkmcnt(0)')
        a('s_cbranch_scc1 %s' % ok)
        a('v_cmp_gt_u32 vcc, 0x200, %s' % v(T))
        a('s_cbranch_vccnz %s' % lp)
        a(ok+':')
    def coop_read(self):
        a = self.a; T = V.T
        a('v_add_u32 %s, %d, %s' % (v(T), TABL, v(V.l16)))
        for k in range(16): a('ds_read_b128 %s, %s offset:%d' % (vr(V.F32+4*k, 4), v(T), 1024*k))
    def calc_k0(self):
        a = self.a
        a('s_lshr_b32 %s, %s, 4' % (sA, sT)); a('s_and_b32 %s, %s, 15' % (sB, sT))
        a('s_lshl4_add_u32 %s, %s, %s' % (sK0, sB, sA))
        a('s_and_b32 %s, %s, 12' % (sC, sB)); a('s_bfe_u32 %s, %s, 0x10001' % (sD, sB)); a('s_add_u32 %s, %s, %s' % (sC, sC, sD))
        a('s_and_b32 %s, %s, 1' % (sD, sB)); a('s_lshl1_add_u32 %s, %s, %s' % (sC, sD, sC)); a('s_lshl_b32 %s, %s, 3' % (sC, sC))
        a('s_cmp_eq_u32 %s, 0' % sA); a('s_cselect_b32 %s, %s, %s' % (sK0, sC, sK0))
        a('s_cmp_eq_u32 %s, 0' % sT); a('s_cselect_b32 %s, 7, 8' % sA)
        a('s_lshl_b32 %s, %s, %s' % (sKP, sW, sA)); a('s_add_u32 %s, %s, %s' % (sKP, sKP, sK0))
        a('s_sub_u32 %s, 0x800, %s' % (sKM, sKP))
        a('s_cmp_eq_u32 %s, 0' % sKP)
        a('s_cselect_b32 %s, 0x400, %s' % (sKM, sKM)); a('s_cselect_b32 %s, 1, 0' % sSpec)
        a('s_mul_i32 %s, %s, 1026' % (sKP, sKP)); a('s_mul_i32 %s, %s, 1026' % (sKM, sKM))
        a('s_mul_i32 %s, %s, 4224' % (sWL, sW)); a('s_add_u32 %s, %s, %d' % (sWL, sWL, WL))
        a('s_and_b32 %s, %s, 2' % (sA, sKP))
        a('s_add_u32 %s, %s, %s' % (sDP, sKP, sA)); a('s_add_u32 %s, %s, %s' % (sDM, sKM, sA))
    def gen_B(self):
        a = self.a; T = V.T; c, s = T+8, T+9
        a('v_lshrrev_b32 %s, 1, %s' % (v(T), v(V.n)))
        a('v_cvt_f32_u32 %s, %s' % (v(T+2), v(V.g)))
        a('v_and_b32 %s, 1, %s' % (v(T+3), v(V.n)))
        a('v_add_f32 %s, %s, %s' % (v(T+2), v(T+2), v(T+2)))
        def normal():
            a('v_lshl_add_u32 %s, %s, 8, %s' % (v(T+1), v(T), sK0))
            a('v_lshlrev_b32 %s, 4, %s' % (v(T+4), v(T+3)))
            a('v_cvt_f32_u32 %s, %s' % (v(T+1), v(T+1)))
            a('v_lshlrev_b32 %s, 31, %s' % (v(T+6), v(V.n)))
            a('v_cvt_f32_u32 %s, %s' % (v(T+3), v(T+3)))
            a('v_mul_f32 %s, %s, %s' % (v(T+1), lit(1/2048), v(T+1)))
            a('s_brev_b32 %s, 1' % sA)
            a('v_lshrrev_b32 %s, %s, %s' % (v(T+4), v(T+4), sA))
            a('v_mul_f32 %s, %s, %s' % (v(T+5), v(T+1), v(T+2)))
            a('v_fmac_f32 %s, %s, %s' % (v(T+5), lit(0.25), v(T+3)))
            for sbb in range(2):
                if sbb == 0: self.fill = lambda: a('v_add_f32 %s, %s, %s' % (v(T+5), v(T+5), v(T+1)))
                else: self.fill = lambda: a('v_cvt_f32_u32 %s, %s' % (v(T), v(T)))
                self.trig(T+5, V.B+2*sbb, V.B+6+2*sbb)
                a('v_xor_b32 %s, %s, %s' % (v(V.B+2*sbb+1), v(V.B+2*sbb), v(T+4)))
                a('v_xor_b32 %s, %s, %s' % (v(V.B+6+2*sbb+1), v(V.B+6+2*sbb), v(T+4)))
            a('v_lshl_add_u32 %s, %s, 9, %s' % (v(T+1), v(V.g), sK0))
            a('v_xor_b32 %s, %s, %s' % (v(T), v(T), v(T+6)))
            a('v_cvt_f32_u32 %s, %s' % (v(T+1), v(T+1)))
            a('v_mul_f32 %s, 0.5, %s' % (v(T+5), v(T+3)))
            a('v_mul_f32 %s, %s, %s' % (v(T+1), lit(1/2048), v(T+1)))
            a('v_fmac_f32 %s, %s, %s' % (v(T+5), v(T+1), v(T)))
            for ii in range(2):
                a('v_cos_f32 %s, %s' % (v(c), v(T+5)))
                a('v_sin_f32 %s, %s' % (v(s), v(T+5)))
                a('v_mul_f32 %s, %s, %s' % (v(c), lit(SC), v(c)))
                a('v_mul_f32 %s, %s, %s' % (v(s), lit(SC), v(s)))
                if ii == 0: a('v_fmac_f32 %s, %s, %s' % (v(T+5), lit(0.125), v(T)))
                a('v_cvt_pk_bf16_f32 %s, %s, %s' % (v(T+1), v(c), v(s)))
                a('v_cvt_pk_bf16_f32 %s, -%s, %s' % (v(T+2), v(s), v(c)))
                a('v_xor_b32 %s, %s, %s' % (v(V.Bp+2*ii), v(T+1), v(T+6)))
                a('v_xor_b32 %s, %s, %s' % (v(V.Bp+4+2*ii), v(T+2), v(T+6)))
                a('v_xor_b32 %s, %s, %s' % (v(V.Bp+2*ii+1), v(T+2), v(T+6)))
                a('v_xor_b32 %s, 0x80008000, %s' % (v(V.Bp+4+2*ii+1), v(V.Bp+2*ii)))
        def special():
            a('v_cvt_f32_u32 %s, %s' % (v(T+1), v(T)))
            a('v_mul_f32 %s, %s, %s' % (v(T+1), lit(1/16), v(T+1)))
            a('v_lshlrev_b32 %s, 4, %s' % (v(T+4), v(T+3)))
            a('v_cmp_eq_u32 s[84:85], 0, %s' % v(T))
            a('v_and_b32 %s, 1, %s' % (v(T+6), v(T)))
            a('v_cmp_eq_u32 s[86:87], 1, %s' % v(T+6))
            a('v_mul_f32 %s, %s, %s' % (v(T+5), v(T+1), v(T+2)))
            for sbb in range(2):
                a('v_cos_f32 %s, %s' % (v(c), v(T+5)))
                a('v_sin_f32 %s, %s' % (v(s), v(T+5)))
                a('v_mul_f32 %s, 2.0, %s' % (v(c), v(c)))
                a('v_mul_f32 %s, -2.0, %s' % (v(s), v(s)))
                a('v_cndmask_b32 %s, %s, 1.0, s[84:85]' % (v(c), v(c)))
                a('v_cndmask_b32 %s, %s, %s, s[84:85]' % (v(s), v(s), '-1.0' if sbb else '1.0'))
                for src, dst in ((c, V.B+2*sbb), (s, V.B+6+2*sbb)):
                    a('v_cvt_pk_bf16_f32 %s, %s, 0' % (v(T+7), v(src)))
                    a('v_lshlrev_b32 %s, %s, %s' % (v(T+7), v(T+4), v(T+7)))
                    a('v_cndmask_b32 %s, %s, 0, s[86:87]' % (v(dst), v(T+7)))
                    a('v_cndmask_b32 %s, 0, %s, s[86:87]' % (v(dst+1), v(T+7)))
                a('v_add_f32 %s, %s, %s' % (v(T+5), v(T+5), v(T+1)))
            a('v_cmp_eq_u32 s[88:89], 0, %s' % v(V.g))
            a('v_cmp_eq_u32 s[90:91], 1, %s' % v(T+3))
            a('v_lshlrev_b32 %s, 31, %s' % (v(T+6), v(T)))
            a('v_xor_b32 %s, %s, %s' % (v(T+6), lit(SC), v(T+6)))
            a('v_mov_b32 %s, %s' % (v(T+4), lit(SC)))
            a('v_mul_f32 %s, %s, %s' % (v(T+5), v(T+1), v(T+2)))
            for ii in range(2):
                a('v_cos_f32 %s, %s' % (v(c), v(T+5)))
                a('v_sin_f32 %s, %s' % (v(s), v(T+5)))
                a('v_mul_f32 %s, %s, %s' % (v(c), lit(2*SC), v(c)))
                a('v_mul_f32 %s, %s, %s' % (v(s), lit(-2*SC), v(s)))
                if ii == 0:
                    a('v_cndmask_b32 %s, %s, %s, s[88:89]' % (v(c), v(c), v(T+4)))
                    a('v_cndmask_b32 %s, %s, %s, s[88:89]' % (v(s), v(s), v(T+6)))
                a('v_cvt_pk_bf16_f32 %s, %s, %s' % (v(T+7), v(s), v(c)))
                if ii: a('v_cndmask_b32 %s, 0, %s, s[90:91]' % (v(T+7), v(T+7)))
                else: a('v_cndmask_b32 %s, %s, 0, s[90:91]' % (v(T+7), v(T+7)))
                a('v_mov_b32 %s, 0' % v(V.Bp+2*ii)); a('v_mov_b32 %s, %s' % (v(V.Bp+2*ii+1), v(T+7)))
                a('v_mov_b32 %s, %s' % (v(V.Bp+4+2*ii), v(T+7))); a('v_mov_b32 %s, 0' % v(V.Bp+4+2*ii+1))
                a('v_add_f32 %s, %s, %s' % (v(T+5), v(T+5), v(T+1)))
        self.far(sT, 0, special, normal)
        for d, r in ((4, 0), (5, 1), (10, 6), (11, 7)): a('v_mov_b32 %s, %s' % (v(V.B+d), v(V.B+r)))

    def wq(self, rho): return (rho & 1) + 8*((rho >> 1) & 1) + 4*((rho >> 2) & 1)
    def w_dma1(self, i):
        a = self.a
        srd, so = [(SWR, sDP), (SWI, sDP), (SWR, sDM), (SWI, sDM)][i]
        a('s_add_u32 m0, %s, %d' % (sWL, 1056*i))
        a('buffer_load_dwordx4 %s, %s, %s offen %s lds' % (v(V.l16), srd, so, self.o['ldw']))
    def w_dma(self):
        for i in range(4): self.w_dma1(i)
    def w_edge_load(self):
        a = self.a; T = V.T
        a('s_mov_b64 exec, 15')
        a('v_mov_b32 %s, %s' % (v(T), sKP)); a('v_mov_b32 %s, %s' % (v(T+1), sKM))
        a('s_mov_b64 vcc, 10')
        a('v_cndmask_b32 %s, %s, %s, vcc' % (v(T), v(T), v(T+1)))
        a('v_and_b32 %s, 2, %s' % (v(T+1), v(V.lane)))
        a('v_lshl_add_u32 %s, %s, 9, %s' % (v(T), v(T+1), v(T)))
        a('buffer_load_short_d16_hi %s, %s, %s, 0 offen' % (v(V.WF), v(T), SWR))
        a('buffer_load_short_d16_hi %s, %s, %s, 0 offen' % (v(V.WF+1), v(T), SWI))
        a('s_mov_b64 exec, -1')
    def w_edge_rl(self):
        for l in range(4):
            for im in range(2): self.a('v_readlane_b32 s%d, %s, %d' % (84+2*l+im, v(V.WF+im), l))
    def w_edge(self):
        a = self.a; T = V.T
        self.w_edge_rl()
        q = ((84, 86, 'add'), (85, 87, 'sub'), (90, 88, 'add'), (91, 89, 'sub'))
        for i, (x, y, op) in enumerate(q): a('v_mov_b32 %s, s%d' % (v(T+i), y))
        for i, (x, y, op) in enumerate(q): a('v_%s_f32 %s, s%d, %s' % (op, v(V.WF+i), x, v(T+i)))
        for i in range(4): a('v_mul_f32 %s, 0.5, %s' % (v(V.WF+i), v(V.WF+i)))
        a('s_mov_b64 s[92:93], 1')
    def w_read1(self, rho, im, dst=None, swap=False):
        dst = V.W if dst is None else dst
        if rho < 8: ad, off = V.WP, 64*self.wq(rho) + (2112 if swap else 0)
        else: ad, off = V.WM, 64*(13-self.wq(rho)) + (0 if swap else 2112)
        return 'ds_read_u16_d16_hi %s, %s offset:%d' % (v(dst+16*im+rho), v(ad), off+1056*im)
    def w_fix(self, half):
        return ['v_cndmask_b32 %s, %s, %s, s[92:93]' % (v(V.W+8*half+16*im), v(V.W+8*half+16*im), v(V.WF+2*half+im)) for im in range(2)]
    def w_special(self):
        a = self.a; T = V.T; X = V.DA
        def f():
            for sw, dst in ((False, V.W), (True, X)):
                for rho in range(16):
                    for im in range(2): a(self.w_read1(rho, im, dst, sw))
            a('s_waitcnt lgkmcnt(0) vmcnt(0)')
            self.w_edge_rl()
            a('s_mov_b64 exec, 1')
            for r in (V.W+16, V.W+24, X+16, X+24): a('v_mov_b32 %s, 0' % v(r))
            a('v_mov_b32 %s, s90' % v(V.W+8)); a('v_mov_b32 %s, s88' % v(X+8))
            a('s_mov_b64 exec, -1')
            for i in range(32):
                a('v_add_f32 %s, %s, %s' % (v(V.W+i), v(V.W+i), v(X+i)))
                if (i & 15) < 8: a('v_fma_f32 %s, -2.0, %s, %s' % (v(X+i), v(X+i), v(V.W+i)))
                else: a('v_fma_f32 %s, 2.0, %s, -%s' % (v(X+i), v(X+i), v(V.W+i)))
            a('v_add_u32 %s, %d, %s' % (v(T+1), SCR_B, v(V.l16)))
            for i in range(8): a('ds_write_b128 %s, %s offset:%d' % (v(T+1), vr(X+4*i, 4), 1024*i))
        self.far(sSpec, 1, f)

    def addrs1(self):
        a = self.a; T = V.T
        a('v_lshrrev_b32 %s, 3, %s' % (v(T), v(V.lane)))
        a('v_and_b32 %s, 0x30, %s' % (v(T+1), v(V.l16)))
        a('v_lshl_add_u32 %s, %s, 6, %s' % (v(T), v(T), v(T+1)))
        a('v_and_b32 %s, 4, %s' % (v(T+1), v(V.lane)))
        a('v_lshl_add_u32 %s, %s, 1, %s' % (v(V.TR), v(T+1), v(T)))
        a('v_xor_b32 %s, %s, %s' % (v(T), sSB, v(V.lane)))
        a('v_and_b32 %s, 1, %s' % (v(T), v(T)))
        a('v_mul_u32_u24 %s, 16448, %s' % (v(T), v(T)))
        a('v_lshl_add_u32 %s, %s, 12, %s' % (v(T), v(V.g), v(T)))
        a('v_lshl_add_u32 %s, %s, 2, %s' % (v(T), v(T+1), v(T)))
        a('v_and_b32 %s, 0x60, %s' % (v(T+1), v(V.TR)))
        a('s_lshr_b32 %s, %s, 1' % (sWp, sW)); a('s_and_b32 %s, %s, 1' % (sA, sW))
        a('s_lshl2_add_u32 %s, %s, %s' % (sWp, sA, sWp)); a('s_lshl_b32 %s, %s, 7' % (sWp, sWp))
        a('v_add3_u32 %s, %s, %s, %s' % (v(V.X0w), v(T), v(T+1), sWp))
        a('s_lshl_b32 %s, %s, 10' % (sA, sW))
        a('s_sub_u32 %s, 0x4000, %s' % (sB, sA))
        a('s_cmp_eq_u32 %s, 0' % sW); a('s_cselect_b32 %s, 0x2000, %s' % (sB, sB))
        a('v_add_u32 %s, %s, %s' % (v(V.X0r0), sA, v(V.TR)))
        a('v_add_u32 %s, %s, %s' % (v(V.X0r1), sB, v(V.TR)))
    def addrs2(self):
        a = self.a; T = V.T
        a('v_lshlrev_b32 %s, 4, %s' % (v(T), v(V.n)))
        a('v_lshl_add_u32 %s, %s, 13, %s' % (v(T), v(V.g), v(T)))
        a('s_lshl_b32 %s, %s, 9' % (sA, sW)); a('s_add_u32 %s, %s, %d' % (sA, sA, R1))
        a('v_add_u32 %s, %s, %s' % (v(V.X1w), sA, v(T)))
        a('s_lshl_b32 %s, %s, 12' % (sA, sW)); a('s_add_u32 %s, %s, %d' % (sA, sA, R1))
        a('v_add_u32 %s, %s, %s' % (v(V.X1r), sA, v(V.TR)))
        a('v_and_b32 %s, 16, %s' % (v(T), v(V.l16)))
        a('v_and_b32 %s, 2, %s' % (v(T+1), v(V.lane)))
        a('v_bfe_u32 %s, %s, 2, 1' % (v(T+2), v(V.lane)))
        a('v_add_u32 %s, %s, %s' % (v(T+1), v(T+1), v(T+2)))
        a('v_mul_u32_u24 %s, 8224, %s' % (v(T+1), v(T+1)))
        a('v_bfe_u32 %s, %s, 3, 2' % (v(T+2), v(V.lane)))
        a('v_lshl_add_u32 %s, %s, 11, %s' % (v(T), v(T+2), v(T)))
        a('v_and_b32 %s, 32, %s' % (v(T+2), v(V.lane)))
        a('v_add3_u32 %s, %s, %s, %s' % (v(T), v(T), v(T+1), v(T+2)))
        a('v_add_u32 %s, %s, %s' % (v(V.X2w), sWp, v(T)))
        a('s_and_b32 %s, %s, 1' % (sA, sW)); a('s_lshr_b32 %s, %s, 2' % (sB, sW)); a('s_lshl1_add_u32 %s, %s, %s' % (sA, sB, sA)); a('s_lshl_b32 %s, %s, 11' % (sA, sA))
        a('s_and_b32 %s, %s, 2' % (sB, sW)); a('s_mul_i32 %s, %s, 8224' % (sB, sB)); a('s_add_u32 %s, %s, %s' % (sA, sA, sB))
        a('v_add_u32 %s, %s, %s' % (v(V.X2r), sA, v(V.TR)))
    def addrs3(self):
        a = self.a; T = V.T
        a('v_and_b32 %s, 16, %s' % (v(T), v(V.lane)))
        a('v_and_b32 %s, 33, %s' % (v(T+1), v(V.lane)))
        a('v_lshl_add_u32 %s, %s, 5, %s' % (v(T), v(T+1), v(T)))
        a('v_and_b32 %s, 8, %s' % (v(T+1), v(V.lane)))
        a('v_lshl_add_u32 %s, %s, 9, %s' % (v(T), v(T+1), v(T)))
        a('v_and_b32 %s, 2, %s' % (v(T+1), v(V.lane)))
        a('v_and_b32 %s, 4, %s' % (v(T+2), v(V.lane)))
        a('v_mul_u32_u24 %s, 4104, %s' % (v(T+1), v(T+1)))
        a('v_mul_u32_u24 %s, 4112, %s' % (v(T+2), v(T+2)))
        a('v_add3_u32 %s, %s, %s, %s' % (v(T), v(T), v(T+1), v(T+2)))
        a('s_sub_u32 %s, 16, %s' % (sC, sW))
        a('s_cmp_eq_u32 %s, 0' % sW); a('s_cselect_b32 %s, 8, %s' % (sC, sC))
        for kl, dst in ((sW, V.X3w0), (sC, V.X3w1)):
            a('s_lshr_b32 %s, %s, 2' % (sA, kl)); a('s_and_b32 %s, %s, 1' % (sB, kl)); a('s_lshl1_add_u32 %s, %s, %s' % (sA, sA, sB))
            a('s_and_b32 %s, %s, 2' % (sB, kl)); a('s_lshl2_add_u32 %s, %s, %s' % (sA, sB, sA))
            a('s_lshl_b32 %s, %s, 6' % (sA, sA)); a('s_add_u32 %s, %s, %d' % (sA, sA, R1))
            a('v_add_u32 %s, %s, %s' % (v(dst), sA, v(T)))
        a('s_and_b32 %s, %s, 1' % (sA, sW)); a('s_mul_i32 %s, %s, 8208' % (sA, sA))
        a('s_and_b32 %s, %s, 2' % (sB, sW)); a('s_mul_i32 %s, %s, 8224' % (sB, sB)); a('s_add_u32 %s, %s, %s' % (sA, sA, sB))
        a('s_and_b32 %s, %s, 4' % (sB, sW)); a('s_lshl_b32 %s, %s, 10' % (sB, sB)); a('s_add_u32 %s, %s, %s' % (sA, sA, sB))
        a('s_add_u32 %s, %s, %d' % (sA, sA, R1))
        a('v_add_u32 %s, %s, %s' % (v(V.X3r), sA, v(V.TR)))
        a('v_and_b32 %s, 0x70, %s' % (v(T), v(V.l16)))
        a('v_lshlrev_b32 %s, 1, %s' % (v(V.Ooff), v(V.Xoff)))
        a('v_sub_u32 %s, %s, %s' % (v(V.Ooff), v(V.Ooff), v(T)))

    def mf16(self, d, A, B): return 'v_mfma_f32_16x16x32_bf16 %s, %s, %s, 0' % (vr(d, 4), vr(A, 4), vr(B, 4))
    def cvt(self, d, lo, hi): return 'v_cvt_pk_bf16_f32 %s, %s, %s' % (v(d), v(lo), v(hi))
    def mf32(self, d, i, pl, dataA):
        M = vr(V.F32+16*pl+4*i, 4); X = vr(V.O+4*i, 4)
        A, B = (X, M) if dataA else (M, X)
        D = vr(d+16*pl, 16)
        return 'v_mfma_f32_32x32x16_bf16 %s, %s, %s, %s' % (D, A, B, D if i else '0')
    def emit(self, L):
        for x in L: self.a(x)

    def p1(self):
        a = self.a; O, L, D, P = V.O, V.L, V.DA, V.DB
        for r in range(4):
            a('s_waitcnt vmcnt(%d)' % (3-r+(2 if self.o['e1'] else 0)))
            if r == 3:
                self.stamp()
                if self.o['spos'] == 'mid': self.cond(sW, PW, self.side_load)
            for t in range(4): a('v_mov_b32 %s, %s' % (v(O+4*t+r), v(L+4*r+t)))
        for t in range(4):
            a(self.mf16(D+4*t, V.F16, O+4*t)); a(self.mf16(D+16+4*t, V.F16+4, O+4*t))
        if self.o['spos'] == 'late': self.cond(sW, PW, self.side_load)
        def sp():
            self.srds()
            a('s_mov_b32 %s, 0' % sDP); a('s_mov_b32 %s, %d' % (sDM, 1024*1026)); a('s_mov_b32 %s, %d' % (sWL, WL))
            self.w_dma()
        a('s_or_b32 %s, %s, %s' % (sA, sT, sW))
        self.far(sA, 0, sp)
        for r in range(4):
            a(self.cvt(P+4*r, D+r, D+4+r)); a(self.cvt(P+4*r+2, D+16+r, D+20+r))
        for r in range(4):
            a(self.cvt(P+4*r+1, D+8+r, D+12+r)); a(self.cvt(P+4*r+3, D+24+r, D+28+r))
            a('ds_write_b128 %s, %s offset:%d' % (v(V.X0w), vr(P+4*r, 4), 1024*r))
        self.mark('g1a')
        self.side_wait()
        self.mark('g1b')
        a('s_waitcnt lgkmcnt(0)')
        a('s_barrier')
        for ti in range(4):
            for ii in range(2):
                a('ds_read_b64_tr_b16 %s, %s offset:%d' % (vr(O+4*ti+2*ii, 2), v(V.X0r1 if ti >> 1 else V.X0r0), (ti & 1)*16448+ii*512))
        a('ds_read_b32 %s, %s' % (v(V.tmp), v(V.cnt)))
        for ti in range(4):
            a('s_waitcnt lgkmcnt(%d)' % (7-2*ti))
            a(self.mf16(D+4*ti, V.M2+8*(ti >> 1), O+4*ti)); a(self.mf16(D+16+4*ti, V.M2+8*(ti >> 1)+4, O+4*ti))
        a('s_waitcnt lgkmcnt(0)')
        self.side_use()
        for r in range(4): a('s_add_u32 %s, %s, 0x%x' % (sO[r], sEst, WS_U[0] + r*65536))
        st = lambda i: a('buffer_store_dwordx4 %s, %s, %s, %s offen %s' % (vr(P+4*i, 4), v(V.Est), SWS, sO[i], self.o['st1']))
        def normal():
            for i in range(4):
                for k in range(4): a(self.cvt(P+4*i+2*(k & 1)+(k >> 1), D+4*k+i, D+16+4*k+i))
                st(i)
        def w0():
            for i in range(4):
                ts, eb = i >> 1, i & 1
                for tau in range(2):
                    for sg in range(2):
                        x = 4*(2*ts+tau)+2*eb+sg
                        a(self.cvt(P+4*i+2*tau+sg, D+x, D+16+x))
                st(i)
        self.ifelse(sW, 0, w0, normal)

    def stage(self, src, dst, dataA, kind, prio, pre=None):
        a = self.a; T = V.T
        if self.o['prio']: a('s_setprio %d' % prio)
        G = []
        for i in range(4):
            g = []
            if kind == 'tw':
                for st in range(3):
                    for r in range(4):
                        rho = 4*i+r; x, y = v(src+rho), v(src+16+rho)
                        g.append('v_fmac_f32 %s, %s, %s' % ((y, v(V.TW+16+rho), x) if st == 1 else (x, v(V.TW+rho), y)))
                for r in range(4): g.append(self.cvt(V.O+4*i+r, src+4*i+r, src+16+4*i+r))
            else:
                t = T+4*(i & 1)
                for r in range(4):
                    rho = 4*i+r
                    g.append('v_mul_f32 %s, %s, %s' % (v(t+r), v(src+rho), v(V.W+rho)))
                for r in range(4):
                    rho = 4*i+r
                    if rho < 8: g.append('v_fma_f32 %s, -%s, %s, %s' % (v(t+r), v(src+16+rho), v(V.W+16+rho), v(t+r)))
                    else: g.append('v_fmac_f32 %s, %s, %s' % (v(t+r), v(src+16+rho), v(V.W+16+rho)))
                for r in range(4):
                    rho = 4*i+r
                    g.append('v_mul_f32 %s, %s, %s' % (v(src+16+rho), v(src+16+rho), v(V.W+rho)))
                for r in range(4):
                    rho = 4*i+r
                    if rho < 8: g.append('v_fmac_f32 %s, %s, %s' % (v(src+16+rho), v(src+rho), v(V.W+16+rho)))
                    else: g.append('v_fma_f32 %s, -%s, %s, %s' % (v(src+16+rho), v(src+rho), v(V.W+16+rho), v(src+16+rho)))
                for r in range(4): g.append(self.cvt(V.O+4*i+r, src+16+4*i+r, t+r))
            G.append(g)
        W = [[self.w_read1(4*i+r, im) for im in range(2) for r in range(4)] for i in range(4)] if kind == 'w' else None
        if kind == 'w':
            a('s_waitcnt vmcnt(2)')
            self.emit(W[0]); self.emit(W[1])
        for i in range(4):
            g = list(G[i]); n = len(g)
            ins = {}
            if i:
                ins.setdefault(2, []).append(self.mf32(dst, i-1, 0, dataA))
                ins.setdefault(2+n//2, []).append(self.mf32(dst, i-1, 1, dataA))
            if kind == 'w':
                a('s_waitcnt lgkmcnt(%d)' % (8 if i < 3 else 0))
                if i in (0, 2): self.emit(self.w_fix(i >> 1))
                if i < 2:
                    if i == 0: ins.setdefault(3, []).append('s_waitcnt vmcnt(0)')
                    for k, x in enumerate(W[i+2]): ins.setdefault(3+2*k, []).append(x)
            for k, x in enumerate(g):
                self.emit(ins.get(k, []))
                a(x)
        a(self.mf32(dst, 3, 0, dataA)); a(self.mf32(dst, 3, 1, dataA))

    def p2(self):
        a = self.a; O, L, D, T = V.O, V.L, V.DA, V.T
        na = self.p2na
        for cbb in range(2):
            b = L+12*cbb
            a('s_waitcnt vmcnt(%d)' % (na+3-2*cbb))
            a('v_mov_b32 %s, %s' % (v(b+8), v(b))); a('v_mov_b32 %s, %s' % (v(b+9), v(b+1)))
            a('s_waitcnt vmcnt(%d)' % (na+2-2*cbb))
            if cbb: self.stamp(); self.mark('f0')
            for jj2 in (1, 0):
                ti = 2*cbb+jj2; op = b+2 if jj2 else b+6; mo = 0 if jj2 else 2
                a(self.mf16(D+4*ti, V.B+mo, op)); a(self.mf16(D+16+4*ti, V.B+6+mo, op))
        for cbb in range(2):
            for k1b in range(2):
                P = O+4*(2*cbb+k1b)
                for jj2 in (1, 0):
                    for pl in range(2):
                        x = D+16*pl+4*(2*cbb+jj2)+2*k1b
                        a(self.cvt(P+2*pl+jj2, x, x+1))
                a('ds_write_b128 %s, %s offset:%d' % (v(V.X1w), vr(P, 4), k1b*4096+cbb*256))
        self.mark('f1')
        a('s_waitcnt lgkmcnt(0)')
        self.mark('f2', True)
        a('s_barrier')
        self.mark('x1', True)
        if self.o['prio']: a('s_setprio 3')
        for i in range(4):
            for ii in range(2):
                a('ds_read_b64_tr_b16 %s, %s offset:%d' % (vr(O+4*i+2*ii, 2), v(V.X1r), ii*1024+(i & 1)*512+(i >> 1)*2048))
        rows = {'postX1': (0, 1, 2, 3), 'barh': (2, 3), 'bar': (), 'p2a': (2, 3), 'q2a': (1, 2, 3)}[self.o['wpos']]
        for i in range(4):
            if i < len(rows): self.w_dma1(rows[i])
            a('s_waitcnt lgkmcnt(%d)' % (6-2*i))
            a(self.mf32(V.DA, i, 0, True)); a(self.mf32(V.DA, i, 1, True))
        self.mark('f3')
        self.stage(V.DA, V.DB, False, 'tw', 2)
        self.mark('f4', True)
        self.far(sSpec, 1, self.pw_special, lambda: self.stage(V.DB, V.DA, True, 'w', 1))
        self.mark('f5')
        self.stage(V.DA, V.DB, True, 'tw', 0)
        self.mark('f6')
        D = V.DB
        for r in range(4): a('s_add_u32 %s, %s, 0x%x' % (sO[r], sEst, WS_U[1] + r*65536))
        rho = lambda jj3, jj1, jj2, c: 4*(2*jj3+jj1)+2*jj2+c
        for pl in range(2):
            for k in range(4):
                c, jj1 = k >> 1, k & 1
                P = V.DA+4*k
                for jj3 in range(2):
                    a(self.cvt(P+2*pl+jj3, D+16*pl+rho(jj3, jj1, 0, c), D+16*pl+rho(jj3, jj1, 1, c)))
                if pl: a('ds_write_b128 %s, %s offset:%d' % (v(V.X2w), vr(P, 4), c*64+jj1*1024))
        self.mark('f7'); self.mark('x2')
        a('s_waitcnt lgkmcnt(0)')
        self.mark('f8', True)
        a('s_barrier')
        for ti in range(4):
            for ii in range(2):
                a('ds_read_b64_tr_b16 %s, %s offset:%d' % (vr(O+4*ti+2*ii, 2), v(V.X2r), ii*512+(ti & 1)*1024+(ti >> 1)*8224))
        D = V.DA; P = V.DB
        for ti in range(4):
            a('s_waitcnt lgkmcnt(%d)' % (6-2*ti))
            a(self.mf16(D+4*ti, V.Bp, O+4*ti)); a(self.mf16(D+16+4*ti, V.Bp+4, O+4*ti))
        self.mark('f9')
        for q in range(4):
            cbb, sbb = q >> 1, q & 1
            for jj1 in range(2):
                for hf in range(2):
                    x = 4*(2*cbb+jj1)+2*sbb+hf
                    a(self.cvt(P+4*q+2*jj1+hf, D+x, D+16+x))
            a('buffer_store_dwordx4 %s, %s, %s, %s offen %s' % (vr(P+4*q, 4), v(V.Est), SWS, sO[q], self.o['st2']))
        self.mark('f10')

    def pw_special(self):
        a = self.a; T = V.T; O = V.O; C = V.DB; X = V.DA
        self.sigma_lane(T)
        a('v_lshrrev_b32 %s, 5, %s' % (v(T+1), v(V.lane)))
        a('v_lshlrev_b32 %s, 9, %s' % (v(T+1), v(T+1)))
        a('v_lshl_add_u32 %s, %s, 2, %s' % (v(T+2), v(T), v(T+1)))
        a('v_add_u32 %s, %d, %s' % (v(T+2), SCR, v(T+2)))
        a('v_add_u32 %s, 128, %s' % (v(T+3), v(T+2)))
        a('v_sub_u32 %s, 32, %s' % (v(T+4), v(T)))
        a('v_lshrrev_b32 %s, 5, %s' % (v(T+5), v(T+4)))
        a('v_and_b32 %s, 31, %s' % (v(T+4), v(T+4)))
        a('v_lshlrev_b32 %s, 2, %s' % (v(T+4), v(T+4)))
        a('v_lshl_add_u32 %s, %s, 8, %s' % (v(T+4), v(T+5), v(T+4)))
        a('v_sub_u32 %s, %s, %s' % (v(T+4), v(T+4), v(T+1)))
        a('v_add_u32 %s, %d, %s' % (v(T+4), SCR + 2*256, v(T+4)))
        a('v_add_u32 %s, 128, %s' % (v(T+5), v(T+4)))
        a('v_add_u32 %s, %d, %s' % (v(T+6), SCR_B, v(V.l16)))
        qs = lambda rho: sigma(8*(rho >> 2) + (rho & 3))
        for pl in range(2):
            for rho in range(0, 16, 2):
                a('ds_write2st64_b32 %s, %s, %s offset0:%d offset1:%d' % (v(T+2+pl), v(C+16*pl+rho), v(C+16*pl+rho+1), qs(rho), qs(rho+1)))
            a('ds_write_b32 %s, %s offset:%d' % (v(T+2+pl), v(C+16*pl), 32*256))
        t0, t1 = v(T+8), v(T+9)
        for half in range(2):
            for pl in range(2):
                for k in range(0, 8, 2):
                    r_ = 8*half+k
                    a('ds_read2st64_b32 %s, %s offset0:%d offset1:%d' % (vr(X+8*pl+k, 2), v(T+4+pl), 29-qs(r_), 29-qs(r_+1)))
                for k in range(2):
                    a('ds_read_b128 %s, %s offset:%d' % (vr(X+16+8*pl+4*k, 4), v(T+6), 1024*(4*pl+2*half+k)))
            a('s_waitcnt lgkmcnt(0)')
            for k in range(8):
                r_ = 8*half+k
                x, y = v(C+r_), v(C+16+r_); ar, ai = v(V.W+r_), v(V.W+16+r_)
                p, q_ = v(X+k), v(X+8+k); br, bi = v(X+16+k), v(X+24+k)
                ng, ps = ('', '-') if half else ('-', '')
                a('v_mul_f32 %s, %s, %s' % (t0, x, ar))
                a('v_mul_f32 %s, %s, %s' % (t1, y, ar))
                a('v_fma_f32 %s, %s%s, %s, %s' % (t0, ng, y, ai, t0))
                a('v_fma_f32 %s, %s%s, %s, %s' % (t1, ps, x, ai, t1))
                a('v_fmac_f32 %s, %s, %s' % (t0, p, br))
                a('v_fma_f32 %s, -%s, %s, %s' % (t1, q_, br, t1))
                a('v_fma_f32 %s, %s%s, %s, %s' % (t0, ps, q_, bi, t0))
                a('v_fma_f32 %s, %s%s, %s, %s' % (t1, ps, p, bi, t1))
                a(self.cvt(O+r_, T+9, T+8))
        for i in range(4): a(self.mf32(V.DA, i, 0, True)); a(self.mf32(V.DA, i, 1, True))

    def p3(self):
        a = self.a; O, L, D, P = V.O, V.L, V.DA, V.DB
        a('s_lshl4_add_u32 %s, %s, %s' % (sA, sW, sSB)); a('s_lshl1_add_u32 %s, %s, %s' % (sA, sA, sP))
        a('s_lshl4_add_u32 %s, %s, %s' % (sA, sA, sCB)); a('s_lshl_b32 %s, %s, 7' % (sO[0], sA))
        for r in range(1, 4): a('s_add_u32 %s, %s, 0x%x' % (sO[r], sO[0], r*524288))
        def normal():
            for i in range(4):
                a('s_waitcnt vmcnt(%d)' % (3-i))
                for sel in range(2):
                    for col in range(2): a('v_mov_b32 %s, %s' % (v(O+4*(2*sel+col)+i), v(L+4*i+2*col+sel)))
        def w0():
            for i in range(4):
                ts, eb = i >> 1, i & 1
                a('s_waitcnt vmcnt(%d)' % (3-i))
                for col in range(2):
                    for sg in range(2): a('v_mov_b32 %s, %s' % (v(O+4*(2*ts+col)+2*eb+sg), v(L+4*i+2*col+sg)))
        self.ifelse(sW, 0, w0, normal, True)
        self.stamp()
        for ti in range(4):
            a(self.mf16(D+4*ti, O+4*ti, V.M2+8*(ti >> 1))); a(self.mf16(D+16+4*ti, O+4*ti, V.M2+8*(ti >> 1)+4))
        for ti in range(4):
            for pl in range(2):
                for k in range(2):
                    x = D+16*pl+4*ti+2*k
                    a(self.cvt(P+4*ti+2*pl+k, x, x+1))
            a('ds_write_b128 %s, %s offset:%d' % (v(V.X3w1 if ti >> 1 else V.X3w0), vr(P+4*ti, 4), (ti & 1)*2048))
        a('s_waitcnt lgkmcnt(0)')
        a('s_barrier')
        for t in range(4):
            for ii in range(2):
                a('ds_read_b64_tr_b16 %s, %s offset:%d' % (vr(O+4*t+2*ii, 2), v(V.X3r), ii*512+t*1024))
        for t in range(4):
            a('s_waitcnt lgkmcnt(%d)' % (6-2*t))
            a(self.mf16(D+4*t, V.F16, O+4*t)); a(self.mf16(D+16+4*t, V.F16+4, O+4*t))
        for t in range(2):
            for r in range(4): a(self.cvt(P+4*r+t, D+16+4*t+r, D+4*t+r))
        for r in range(4):
            for t in (2, 3): a(self.cvt(P+4*r+t, D+16+4*t+r, D+4*t+r))
            a('buffer_store_dwordx4 %s, %s, %s, %s offen %s' % (vr(P+4*r, 4), v(V.Ooff), SOUT, sO[r], self.o['sto']))

    def ex_load(self, ex):
        a = self.a
        a('s_add_u32 %s, %s, 0x%x' % (sA, sEld, WS_U[ex]))
        for q in range(4):
            d = V.L+12*(q >> 1)+4*(q & 1) if ex == 0 else V.L+4*q
            a('buffer_load_dwordx4 %s, %s, %s, %s offen offset:%d %s' % (vr(d, 4), v(V.Eld), SWS, sA, 256*q, self.o['ld1' if ex == 0 else 'ld2']))

    def build(self):
        a = self.a; o = self.o
        name = NAME + '_kernel'
        a.raw('.globl %s\n.p2align 12\n.p2align 8\n.type %s,@function\n%s:' % (name, name, name))
        end = self.label('end')
        self.prologue(end)
        def others():
            if o.get('kfirst'): a('s_waitcnt lgkmcnt(0)'); self.mark('karg0')
            self.touch(0)
            self.mark('touched')
            a('s_waitcnt lgkmcnt(0)')
            self.mark('karg')
            l = self.label('hold')
            a('s_cmp_lt_u32 %s, 8' % sCh); a('s_cbranch_scc1 %s' % l)
            self.x_issue()
            if o['pre']: self.cond(sW, PW, lambda: a('s_load_dword s95, s[20:21], %s' % self.o['preoff']))
            a(l+':')
        self.ifelse(sCh, 0, self.probe, others, True)
        self.srds0(); self.addrs1()
        l = self.label('held')
        a('s_sub_u32 %s, %s, 1' % (sA, sCh)); a('s_cmp_ge_u32 %s, 7' % sA); a('s_cbranch_scc1 %s' % l)
        self.x_issue()
        a(l+':')
        self.gen_F16()
        self.clear_done()
        self.gen_M2(); self.ex_addrs()
        if o['touch']: self.cond(sT, 0, lambda: self.touch(1))
        full = o['full']
        e1 = o['e1']
        if full or e1: self.srds(); self.calc_k0()
        if e1: self.w_edge_load()
        if full:
            self.coop_gen(); self.gen_B(); self.addrs2(); self.flag_addrs()
        if o['spos'] == 'early': self.cond(sW, PW, self.side_load)
        self.mark('w1')
        self.p1()
        self.stamp()
        nP = {'p2a': 2, 'q2a': 1}.get(o['wpos'], 0)
        if full:
            self.side_apply(); a('s_mov_b32 %s, 1' % sInc)
            self.coop_read(); self.gen_M3()
            for i in range(nP): self.w_dma1(i)
            self.addrs3()
        else:
            self.flag_addrs(); self.side_apply()
            if not e1: self.srds(); self.calc_k0()
            a('s_mov_b32 %s, 1' % sInc)
            self.coop_gen(); self.coop_post()
            for i in range(nP): self.w_dma1(i)
        a('s_waitcnt vmcnt(%d)' % nP)
        self.stamp()
        self.arrive()
        el = (lambda: 0) if e1 else self.w_edge_load
        if full: self.poll(0, lambda: (el(), self.w_special()))
        else: self.poll(0, lambda: (el(), self.gen_B(), self.w_special()))
        self.stamp()
        self.ex_load(0)
        self.p2na = 0
        if o['wpos'] in ('bar', 'barh'):
            a('s_barrier'); self.p2na = 4 if o['wpos'] == 'bar' else 2
            for i in range(self.p2na): self.w_dma1(i)
        elif not full: self.coop_wait()
        if not full: self.coop_read(); self.addrs2()
        a('s_waitcnt vmcnt(%d)' % (4+self.p2na))
        self.w_edge()
        a('s_mov_b32 %s, 0x10000' % sInc)
        if o.get('da') == 'glob': self.cond(sId, 0, lambda: a('s_atomic_swap s56, s[20:21], 0x40'))
        self.p2()
        self.stamp()
        if not full: self.gen_M3()
        self.mark('w3a')
        a('s_waitcnt vmcnt(0)')
        self.stamp()
        self.arrive()
        self.poll(1, None if full else self.addrs3)
        if o['ts']: a('s_mov_b32 s%d, %s' % (sTS+26, sCnt))
        self.stamp()
        self.ex_load(1)
        self.p3()
        self.diag_end()
        a(end+':'); a('s_endpgm')
        t, self.tail = self.tail, []
        for f in t: f()
        if o['touch']: self.insert_stubs()
        hdr = ('; GFNet spectral filter, two heads: 2-D FFT as bf16 MFMA DFT stages in one persistent launch (generated)\n'
               '; @launch grid=(256,1,1) block=(512,1,1) lds=%d\n' % LDS_TOTAL)
        kd = '''.section .rodata,"a"
.p2align 6
.amdhsa_kernel %s
  .amdhsa_next_free_vgpr %d
  .amdhsa_next_free_sgpr 102
  .amdhsa_accum_offset %d
  .amdhsa_group_segment_fixed_size 0
  .amdhsa_kernarg_size 72
  .amdhsa_user_sgpr_count 2
  .amdhsa_user_sgpr_kernarg_segment_ptr 1
  .amdhsa_system_sgpr_workgroup_id_x 1
.end_amdhsa_kernel
''' % (name, NVGPR, (NVGPR+3)//4*4)
        return hdr + '.amdgcn_target "amdgcn-amd-amdhsa--gfx950"\n.text\n' + a.text() + kd

    def insert_stubs(self):
        a = self.a
        txt = '.amdgcn_target "amdgcn-amd-amdhsa--gfx950"\n.text\n' + a.text() + ''.join('stub_%d:\n' % k for k in range(16)) + 's_endpgm\n'
        open('pass1.s', 'w').write(txt)
        subprocess.check_call(['clang', '-x', 'assembler', '-target', 'amdgcn-amd-amdhsa', '-mcpu=gfx950', '-c', 'pass1.s', '-o', 'pass1.o'])
        dis = subprocess.check_output(['llvm-objdump', '-d', '--mcpu=gfx950', 'pass1.o']).decode()
        addrs = [int(m.group(1), 16) for m in re.finditer(r'// ([0-9A-F]{12}):', dis)]
        real = [i for i, x in enumerate(a.ins) if x.kind != 'none']
        assert len(addrs) == len(real) + 1, (len(addrs), len(real))
        size = {real[k]: addrs[k+1] - addrs[k] for k in range(len(real))}
        pos = ENTRY_OFF; nxt = 2048
        out = []; k = 0; prev = None; ez = False
        for i, x in enumerate(a.ins):
            if i in size:
                if prev is not None and prev.text.strip() == 's_mov_b64 exec, 0': ez = True
                if prev is not None and prev.text.strip() == 's_mov_b64 exec, -1': ez = False
                if pos >= nxt and k < 16 and not ez:
                    out.append(Ins('stub_%d:' % k)); out.append(Ins('s_cbranch_execz ret_%d' % (k >> 3)))
                    pos += 4; k += 1; nxt += 1024
                pos += size[i]; prev = x
                if x.op == 's_endpgm': self.hot_end = pos
            out.append(x)
        self.code_end = pos
        while k < 16:
            out.append(Ins('stub_%d:' % k)); out.append(Ins('s_branch ret_%d' % (k >> 3))); k += 1
        a.ins = out

if __name__ == '__main__':
    out = sys.argv[1]; opt = {}
    for kv in sys.argv[2:]:
        k, x = kv.split('=')
        opt[k] = {'True': True, 'False': False}.get(x, x.replace('+', ' '))
    g = Gen(**opt)
    s = g.build()
    assert g.a.verify() == 0
    open(out, 'w').write(s)
    print(out, 'vgprs', NVGPR, 'lds', LDS_TOTAL, 'nops', g.a.nops, 'lines', len(g.a.ins), 'hot end 0x%x code end 0x%x' % (getattr(g, 'hot_end', 0), getattr(g, 'code_end', 0)))
```

```python
import sys, struct, math, subprocess, re
from asmlib import Asm, Ins

NAME = 'concat_heads__spectral_gfnet__spectral_gfnet__prompt'
def f2u(x): return struct.unpack('<I', struct.pack('<f', x))[0]
def lit(x): return '0x%08x' % f2u(x)
def sigma(m): return (m & 1) | ((m >> 1) & 1) << 3 | ((m >> 2) & 1) << 1 | ((m >> 3) & 1) << 2 | (m & 16)

SC = 2.0**-22
SPIN_MAX = 0x80000
ENTRY_OFF = 0x300
PW = int([x for x in sys.argv if x.startswith('pw=')][0][3:]) if any(x.startswith('pw=') for x in sys.argv) else 1
R0 = 0
R1 = 33024
WL = 66048
SCR = WL + 8*4*1056
SCR_B = SCR + 36*256
TABL = SCR_B + 8192
CNT = TABL + 16384
LDS_TOTAL = CNT + 64
WS_U = (0, 8 << 20)
WS_FLAG = 16 << 20
WS_PROBE = 17 << 20
WS_TS = 72 << 20
class V: pass
_n = [0]
def alloc(n, align=1):
    b = (_n[0] + align - 1)//align*align
    _n[0] = b + n
    return b
V.tid = alloc(1); V.lane = alloc(1)
for nm in 'g n l16 TR Xoff Est Eld X0w X0r0 X0r1 X1w X1r X2w X2r WP WM zero cnt tmp'.split(): setattr(V, nm, alloc(1))
V.Ooff, V.X3w0, V.X3w1, V.X3r = V.Xoff, V.X0w, V.X0r0, V.X0r1
V.T = alloc(10)
V.O = alloc(16, 4)
V.DA = alloc(32, 4); V.DB = alloc(32, 4); V.L = V.DB
V.F16 = alloc(8, 4); V.M2 = alloc(16, 4)
V.F32 = alloc(32, 4); V.TW = alloc(32, 4); V.W = alloc(32, 4)
V.B = alloc(12, 4); V.Bp = alloc(8, 4); V.WF = alloc(4)
NVGPR = _n[0]
assert NVGPR <= 256, NVGPR
def v(i): return 'v%d' % i
def vr(i, n): return 'v[%d:%d]' % (i, i+n-1)
SX, SWR, SWI, SOUT, SDBG, SWS = 's[4:7]', 's[8:11]', 's[12:15]', 's[16:19]', 's[20:23]', 's[24:27]'
sP, sT, sW, sSB, sCB, sK0, sKP, sKM, sWp, sRv = ['s%d' % i for i in range(30, 40)]
sA, sB, sC, sD, sE, sF, sEst, sEld, sCnt, sSpec, sInc, sWL = ['s%d' % i for i in range(40, 52)]
sO = ['s52', 's53', 's54', 's55']
sTS = 56
sDP, sDM, sZ, sCh, sId = 's96', 's97', 's98', 's99', 's100'

class Gen:
    def __init__(self, **opt):
        self.o = dict(ldx='', ldw='', st1='sc1', st2='sc1', sto='nt', ld1='sc1', ld2='sc1', ts=False,
                      prio=True, nb='2', pnop='15', force='', wpos='postX1', touch=True, w1n='9', spos='mid', qw='1', qg='1', zg='3', xm='2', pb='17', wsoff='0', pld='', pex='1', merge=True, full=False, e1=False, preoff='0', tag=False, pre=True, split=False, map='2', rep='1', slp='', sthr='')
        self.o.update(opt)
        self.a = Asm(); self.lab = 0; self.nts = 0; self.sid = -1; self.tail = []
    def label(self, p='L'):
        self.lab += 1
        return '%s_%d' % (p, self.lab)

    def mark(self, nm, drain=False):
        o = self.o; hit = False
        if o.get('clk') and nm in ('w1', 'g1a', 'x1', 'x2', 'w3a', 'end'):
            for op in ('s_memrealtime', 's_memtime'):
                self.a('%s s[%d:%d]' % (op, sTS+2*self.nts, sTS+2*self.nts+1)); self.nts += 1
            self.a('s_waitcnt lgkmcnt(0)')
        if o.get('fine') and nm[0] == 'f':
            self.a('s_memtime s[%d:%d]' % (sTS+2*self.nts, sTS+2*self.nts+1)); self.nts += 1; hit = True
        for key, reg in (('da', 58), ('db', 60)):
            if o.get(key) == nm:
                self.a('%s s[%d:%d]' % ('s_memtime' if 'cyc' in o else 's_memrealtime', reg, reg+1)); hit = True
        if hit and drain: self.a('s_waitcnt lgkmcnt(0)')
    def stamp(self):
        self.sid += 1
        self.mark('s%d' % self.sid)
        if not self.o['ts'] or self.o.get('clk') or self.o.get('fine'): return
        self.a('s_memrealtime s[%d:%d]' % (sTS+2*self.nts, sTS+2*self.nts+1)); self.nts += 1
    def diag_end(self):
        a = self.a; o = self.o
        self.mark('end')
        if not (o['ts'] or 'da' in o): return
        self.stamp(); a('s_waitcnt vmcnt(0)'); self.stamp()
        a('s_waitcnt lgkmcnt(0)')
        if 'da' in o:
            lp = self.label('dg')
            if o['da'] == 'glob':
                a('buffer_load_dword %s, %s, %s, 0 offen offset:64 sc1' % (v(V.tmp), v(V.zero), SDBG))
                a('s_waitcnt vmcnt(0)')
                a('v_readfirstlane_b32 s58, %s' % v(V.tmp)); a('s_mov_b32 s56, s58')
            a('s_sub_u32 %s, s60, s58' % sA)
            if 'db0' in o: a('s_add_u32 %s, %s, 250' % (sA, sA)); a('s_lshl_b32 %s, %s, 1' % (sA, sA))
            a('s_lshr_b32 %s, %s, 2' % (sA, sA) if 'cyc' in o else 's_lshl_b32 %s, %s, 2' % (sA, sA))
            for key, reg in (('dp', sP), ('dt', sT), ('db0', sId)):
                if key in o: a('s_cmp_eq_u32 %s, %s' % (reg, o[key])); a('s_cselect_b32 %s, %s, 0' % (sA, sA))
            a('s_min_u32 %s, %s, %d' % (sA, sA, 5800 if 'enc' in o else 9000))
            if 'enc' in o:
                a('s_and_b32 %s, s62, 15' % sB); a('s_mul_i32 %s, %s, 10000' % (sB, sB)); a('s_add_u32 %s, %s, %s' % (sA, sA, sB))
                a('s_bfe_u32 %s, s62, 0x40008' % sB); a('s_mul_i32 %s, %s, 100000' % (sB, sB)); a('s_add_u32 %s, %s, %s' % (sA, sA, sB))
            a('s_add_u32 %s, %s, 3000' % (sA, sA))
            a(lp+':')
            a('s_memrealtime s[28:29]'); a('s_waitcnt lgkmcnt(0)')
            a('s_sub_u32 %s, s28, s56' % sB); a('s_cmp_lt_u32 %s, %s' % (sB, sA)); a('s_cbranch_scc1 %s' % lp)
            return
        a('s_lshl_b32 %s, %s, 7' % (sA, sId)); a('s_add_u32 %s, %s, 0x%x' % (sA, sA, WS_TS))
        a('s_mov_b64 exec, 1')
        for i in range(14):
            a('v_mov_b32 %s, s%d' % (v(V.T), sTS+2*i))
            a('buffer_store_dword %s, %s, %s, %s offen offset:%d' % (v(V.T), v(V.zero), SWS, sA, 4*i))
            a('s_nop 1')

    def cond(self, reg, val, f):
        a = self.a; l = self.label('c')
        a('s_cmp_lg_u32 %s, %d' % (reg, val)); a('s_cbranch_scc1 %s' % l)
        f(); a(l+':')
    def ifelse(self, reg, val, feq, fne, eq_first=False):
        a = self.a; l0, l1 = self.label('ie'), self.label('iend')
        if eq_first:
            a('s_cmp_lg_u32 %s, %d' % (reg, val)); a('s_cbranch_scc1 %s' % l0)
            feq(); a('s_branch %s' % l1); a(l0+':'); fne()
        else:
            a('s_cmp_eq_u32 %s, %d' % (reg, val)); a('s_cbranch_scc1 %s' % l0)
            fne(); a('s_branch %s' % l1); a(l0+':'); feq()
        a(l1+':')
    def far(self, reg, val, feq, fne=None):
        a = self.a; l0, l1 = self.label('far'), self.label('back')
        a('s_cmp_eq_u32 %s, %d' % (reg, val)); a('s_cbranch_scc1 %s' % l0)
        if fne: fne()
        a(l1+':')
        def t():
            a(l0+':'); feq(); a('s_branch %s' % l1)
        self.tail.append(t)
    def touch(self, rnd, half=False):
        a = self.a
        a('s_mov_b64 exec, 0')
        if half:
            for k in range(3):
                a('s_cmp_eq_u32 %s, %d' % (sW, 4+k)); a('s_cbranch_scc1 stub_%d' % (2*k))
            a('s_branch stub_6')
        else:
            for k in range(7):
                a('s_cmp_eq_u32 %s, %d' % (sW, k)); a('s_cbranch_scc1 stub_%d' % (8*rnd+k))
            a('s_branch stub_%d' % (8*rnd+7))
        a('ret_%d:' % rnd)
        a('s_mov_b64 exec, -1')

    def prologue(self, end):
        a = self.a; T = V.T
        a('s_cmp_ge_u32 s2, 0x100')
        a('s_cbranch_scc1 %s' % end)
        if 'da' in self.o: a('s_memrealtime s[56:57]'); self.mark('start')
        a('s_bfe_u32 %s, s2, 0x10002' % sP)
        a('s_mul_i32 s3, %s, 24' % sP)
        a('s_load_dwordx2 s[4:5], s[0:1], s3')
        a('s_load_dwordx2 s[24:25], s[0:1], 0x40')
        a('s_load_dwordx2 s[20:21], s[0:1], 0x38')
        a('s_load_dwordx2 s[8:9], s[0:1], s3 offset:8')
        a('s_load_dwordx2 s[12:13], s[0:1], s3 offset:16')
        a('s_load_dwordx2 s[16:17], s[0:1], 0x30')
        self.stamp()
        a('v_lshrrev_b32 %s, 6, v0' % v(T))
        a('v_and_b32 %s, 63, v0' % v(V.lane))
        a('v_readfirstlane_b32 %s, %s' % (sW, v(T)))
        mp = self.o['map']
        a('s_and_b32 %s, s2, 3' % sA)
        if int(self.o['xm']): a('s_xor_b32 %s, %s, %s' % (sA, sA, self.o['xm']))
        if mp in ('0', '1'):
            a('s_bfe_u32 %s, s2, 0x10003' % sB)
            if mp == '0': a('s_lshl1_add_u32 %s, %s, %s' % (sA, sA, sB))
            else: a('s_lshl2_add_u32 %s, %s, %s' % (sA, sB, sA))
            a('s_lshr_b32 %s, s2, 4' % sB)
            a('s_lshl4_add_u32 %s, %s, %s' % (sT, sA, sB))
        else:
            a('s_lshr_b32 %s, s2, 3' % sB)
            a('s_lshl2_add_u32 %s, %s, %s' % (sT, sB, sA))
            a('s_lshr_b32 %s, %s, 4' % (sA, sT)); a('s_and_b32 %s, %s, 15' % (sB, sT))
        a('s_bfe_u32 %s, %s, 0x10001' % (sC, sB))
        a('s_lshl1_add_u32 %s, %s, %s' % (sCB, sA, sC))
        a('s_lshr_b32 %s, %s, 2' % (sSB, sB))
        a('s_and_b32 %s, %s, 1' % (sC, sB))
        a('s_lshl1_add_u32 %s, %s, %s' % (sSB, sSB, sC))
        a('s_mov_b32 s6, 0x400000'); a('s_mov_b32 s7, 0x20000')
        a('v_lshrrev_b32 %s, 4, %s' % (v(V.g), v(V.lane)))
        a('v_lshlrev_b32 %s, 4, %s' % (v(V.l16), v(V.lane)))
        a('v_and_b32 %s, 8, v0' % v(T))
        a('v_lshlrev_b32 %s, 11, %s' % (v(T), v(T)))
        a('v_lshl_add_u32 %s, %s, 20, %s' % (v(T), v(V.g), v(T)))
        a('v_and_b32 %s, 0x70, %s' % (v(T+1), v(V.l16)))
        a('v_add_u32 %s, %s, %s' % (v(V.Xoff), v(T), v(T+1)))
        a('s_lshl4_add_u32 %s, %s, %s' % (sA, sW, sSB))
        a('s_lshl4_add_u32 %s, %s, %s' % (sA, sA, sCB))
        a('s_lshl_b32 %s, %s, 7' % (sO[0], sA))
        for r in range(1, 4): a('s_add_u32 %s, %s, 0x%x' % (sO[r], sO[0], r*262144))
        a('s_lshl3_add_u32 %s, s2, %s' % (sId, sW))
        a('s_xor_b32 %s, %s, %d' % (sCh, sId, 8*int(self.o['qg'])+int(self.o['qw']))); a('s_and_b32 %s, %s, 0xffffff3f' % (sCh, sCh))
    def srds(self):
        a = self.a
        a('s_mov_b32 s10, 2101248'); a('s_mov_b32 s11, 0x20000')
        a('s_mov_b32 s14, 2101248'); a('s_mov_b32 s15, 0x20000')
        a('s_mov_b32 s18, 0x800000'); a('s_mov_b32 s19, 0x20000')
    def srds0(self):
        a = self.a
        a('s_mov_b32 s22, 256'); a('s_mov_b32 s23, 0x20000')
        a('s_mov_b32 s26, 0x%x' % ((80 if self.o['ts'] else 18) << 20)); a('s_mov_b32 s27, 0x20000')
        a('v_and_b32 %s, 15, %s' % (v(V.n), v(V.lane)))
        a('v_mov_b32 %s, 0' % v(V.zero)); a('v_mov_b32 %s, %d' % (v(V.cnt), CNT))

    def x_issue(self):
        for r in range(4):
            self.a('buffer_load_dwordx4 %s, %s, %s, %s offen %s' % (vr(V.L+4*r, 4), v(V.Xoff), SX, sO[r], self.o['ldx']))
    def probe(self):
        a = self.a; T = V.T; NB = int(self.o['nb']); ld = self.o['pld']
        a('s_bfe_u32 %s, s2, 0x10004' % sC)
        a('s_mul_i32 %s, %s, 0x12000' % (sA, sC)); a('s_add_u32 %s, %s, 0x%x' % (sA, sA, int(self.o['pb']) << 20))
        a('s_and_b32 %s, s2, 8' % sE)
        a('s_mul_i32 %s, %s, 0x4a20' % (sD, sE)); a('s_add_u32 %s, %s, %s' % (sA, sA, sD)); a('s_lshl_b32 %s, %s, 14' % (sD, sE))
        a('s_xor_b32 %s, %s, 0x2000' % (sB, sA))
        a('s_lshl_b32 %s, %s, 16' % (sF, sC)); a('s_add_u32 %s, %s, %s' % (sD, sD, sF)); a('s_add_u32 %s, %s, 0x%x' % (sD, sD, WS_FLAG))
        a('s_lshl_b32 %s, %s, 4' % (sE, sE)); a('s_xor_b32 %s, %s, 0x80' % (sE, sE))
        a('s_mov_b32 s26, 0x%x' % (18 << 20)); a('s_mov_b32 s27, 0x20000')
        a('s_lshl_b32 %s, %s, 3' % (sC, sC))
        a('v_mul_u32_u24 %s, 0x5080, %s' % (v(T), v(V.lane)))
        a('v_lshlrev_b32 %s, 10, %s' % (v(T+1), v(V.lane)))
        a('v_mov_b32 %s, 0' % v(T+2))
        if not ld:
            for k in range(2*NB): a('v_mov_b32 %s, 0' % v(V.DA+k))
        a('s_mov_b64 exec, %s' % self.o['pex'])
        if 'da' in self.o: a('s_waitcnt lgkmcnt(0)'); a('s_mov_b32 s60, s56'); a('s_mov_b32 s58, s56')
        a('s_waitcnt lgkmcnt(0)')
        for side, base in enumerate((sA, sB)):
            for k in range(NB):
                if ld: a('buffer_load_dword %s, %s, %s, %s offen offset:%d %s' % (v(V.DA+side*NB+k), v(T), SWS, base, k*0x600, ld))
                else: a('buffer_atomic_add %s, %s, %s, %s offen offset:%d sc0 sc1' % (v(V.DA+side*NB+k), v(T), SWS, base, k*0x600))
        a('s_mov_b64 exec, -1')
        a('buffer_store_dword %s, %s, %s, %s offen sc1' % (v(T+2), v(T+1), SWS, sD))
        if self.o['pre']: a('s_load_dword s95, s[20:21], %s' % self.o['preoff'])
        self.x_issue()
        a('s_waitcnt vmcnt(%d)' % (NB+5))
        for x in self.o['pnop'].split(','): a('s_nop %s' % x)
        a('s_getreg_b32 %s, hwreg(HW_REG_IB_STS, 0, 4)' % sA)
        a('s_or_b32 %s, %s, 16' % (sA, sA)); a('s_lshl_b32 s94, %s, %s' % (sA, sC))
        if self.o['merge']: a('s_waitcnt vmcnt(4)')
        a('s_atomic_or s94, s[20:21], %s' % sE)
        self.mark('pub')
    def clear_done(self):
        a = self.a
        if self.o['merge']: return
        def f():
            a('s_mov_b32 s93, 1'); a('s_waitcnt vmcnt(4)')
            a('s_atomic_add s93, s[20:21], 0x0')
        self.cond(sCh, 0, f)
    def ready_check(self):
        a = self.a; l0, l1 = self.label('rdy'), self.label('rdyok')
        a('s_cmp_ge_u32 %s, 2' % sRv)
        a('s_cbranch_scc1 %s' % l1)
        a('s_mov_b32 %s, 0' % sCnt)
        a(l0+':')
        a('buffer_load_dword %s, %s, %s, 0 offen sc1' % (v(V.tmp), v(V.zero), SDBG))
        a('s_add_u32 %s, %s, 1' % (sCnt, sCnt))
        a('s_cmp_gt_u32 %s, 0x%x' % (sCnt, SPIN_MAX))
        a('s_waitcnt vmcnt(0)')
        a('s_cbranch_scc1 %s' % l1)
        a('v_cmp_gt_u32 vcc, 2, %s' % v(V.tmp))
        a('s_cbranch_vccnz %s' % l0)
        a(l1+':')
    def side_load(self, off=128):
        self.a('buffer_load_dword %s, %s, %s, 0 offen offset:%d sc1' % (v(V.tmp), v(V.zero), SDBG, off))
    def side_poll(self, off, dst):
        a = self.a; lp, ok = self.label('sw'), self.label('swok')
        a('s_mov_b32 %s, 0' % sCnt)
        a(lp+':')
        a('s_waitcnt vmcnt(0)')
        a('v_readfirstlane_b32 %s, %s' % (sA, v(V.tmp)))
        a('s_and_b32 %s, %s, 0x1010' % (sB, sA)); a('s_cmp_eq_u32 %s, 0x1010' % sB)
        a('s_cbranch_scc1 %s' % ok)
        self.side_load(off)
        a('s_add_u32 %s, %s, 1' % (sCnt, sCnt))
        a('s_cmp_lt_u32 %s, 0x%x' % (sCnt, SPIN_MAX))
        a('s_cbranch_scc1 %s' % lp)
        a('s_waitcnt vmcnt(0)')
        a(ok+':')
        a('s_and_b32 %s, %s, 15' % (sB, sA)); a('s_bfe_u32 %s, %s, 0x40008' % (sA, sA))
        a('s_sub_i32 %s, %s, %s' % (dst, sA, sB))
    def side_wait(self):
        a = self.a
        def f():
            l = self.label('clean')
            if self.o['force'] != '':
                a('ds_write2_b32 %s, %s, %s offset0:0 offset1:1' % (v(V.cnt), v(V.zero), v(V.zero))); return
            self.side_poll(128, sC)
            a('s_abs_i32 %s, %s' % (sA, sC)); a('s_cmp_ge_u32 %s, 2' % sA); a('s_cbranch_scc1 %s' % l)
            self.side_load(0)
            self.side_poll(0, sD)
            a('s_add_i32 %s, %s, %s' % (sC, sC, sD))
            a(l+':')
            a('s_cmp_gt_i32 %s, 0' % sC); a('s_cselect_b32 %s, 0x2000, 0' % sA)
            if self.o['ts']: a('s_add_u32 %s, %s, 0x80' % (sC, sC)); a('s_or_b32 %s, %s, %s' % (sA, sA, sC))
            a('v_mov_b32 %s, %s' % (v(V.tmp), sA))
            a('ds_write2_b32 %s, %s, %s offset0:0 offset1:1' % (v(V.cnt), v(V.tmp), v(V.zero)))
        self.cond(sW, PW, f)
    def side_use(self):
        a = self.a
        a('v_readfirstlane_b32 %s, %s' % (sCh, v(V.tmp)))
        if self.o['ts']: a('s_mov_b32 s%d, %s' % (sTS+24, sCh)); a('s_and_b32 %s, %s, 0x2000' % (sCh, sCh))
        if 'enc' in self.o: a('s_lshr_b32 s62, %s, 13' % sCh)
        if self.o['force'] != '': a('s_mov_b32 %s, %d' % (sCh, int(self.o['force']) << 13))
        a('s_xor_b32 %s, %s, %s' % (sEst, sEst, sCh))
    def flag_addrs(self):
        a = self.a
        a('s_lshr_b32 %s, %s, 4' % (sB, sT))
        a('s_lshl_b32 %s, %s, 13' % (sA, sP)); a('s_add_u32 %s, %s, 0x%x' % (sA, sA, WS_FLAG))
        for dst, wp, gr in ((sF, sW, sB), (sE, sB, sW)):
            a('s_lshl4_add_u32 %s, %s, %s' % (sC, wp, gr)); a('s_lshl_b32 %s, %s, 10' % (sC, sC))
            a('s_add_u32 %s, %s, %s' % (dst, sC, sA))
        R = int(self.o['rep'])
        if R > 1:
            a('s_and_b32 %s, %s, %d' % (sC, sT, R-1)); a('s_lshl_b32 %s, %s, 8' % (sC, sC)); a('s_add_u32 %s, %s, %s' % (sE, sE, sC))
    def side_apply(self):
        for r in (sF, sE, sEld): self.a('s_xor_b32 %s, %s, %s' % (r, r, sCh))
    def arrive(self):
        for r in range(int(self.o['rep'])): self.a('s_atomic_add %s, s[24:25], %s offset:%d' % (sInc, sF, 256*r))
    def poll(self, ex, under=None):
        a = self.a; lp, ok = self.label('poll'), self.label('pollok')
        if under:
            a('s_mov_b32 %s, 0' % sRv)
            a('s_atomic_add %s, s[24:25], %s glc' % (sRv, sE))
            under()
            a('s_waitcnt lgkmcnt(0)')
            a('s_bitcmp1_b32 %s, %d' % (sRv, 4+16*ex))
            a('s_cbranch_scc1 %s' % ok)
        a('s_mov_b32 %s, 0' % sCnt)
        a(lp+':')
        a('s_mov_b32 %s, 0' % sRv)
        a('s_atomic_add %s, s[24:25], %s glc' % (sRv, sE))
        a('s_add_u32 %s, %s, 1' % (sCnt, sCnt))
        a('s_cmp_gt_u32 %s, 0x%x' % (sCnt, SPIN_MAX))
        a('s_waitcnt lgkmcnt(0)')
        a('s_cbranch_scc1 %s' % ok)
        if self.o['slp']:
            a('s_bitcmp1_b32 %s, %d' % (sRv, 4+16*ex))
            a('s_cbranch_scc1 %s' % ok)
            if self.o['sthr']:
                a('s_bfe_u32 %s, %s, 0x%x' % (sA, sRv, 0x50000+16*ex))
                a('s_cmp_ge_u32 %s, %s' % (sA, self.o['sthr'])); a('s_cbranch_scc1 %s' % lp)
            a('s_sleep %s' % self.o['slp'])
            a('s_branch %s' % lp)
        else:
            a('s_bitcmp0_b32 %s, %d' % (sRv, 4+16*ex))
            a('s_cbranch_scc1 %s' % lp)
        a(ok+':')
    def ex_addrs(self):
        a = self.a; T = V.T
        a('s_lshl_b32 %s, %s, 4' % (sB, sW)); a('s_xor_b32 %s, %s, %s' % (sB, sB, sT)); a('s_lshl_b32 %s, %s, 8' % (sB, sB))
        a('v_lshlrev_b32 %s, 4, %s' % (v(T), v(V.n)))
        a('v_lshl_add_u32 %s, %s, 10, %s' % (v(T), v(V.g), v(T)))
        a('v_xor_b32 %s, %s, %s' % (v(T), sB, v(T)))
        a('v_and_b32 %s, 0x6000, %s' % (v(T+1), v(T)))
        a('v_add_u32 %s, %s, %s' % (v(T), v(T), v(T+1)))
        a('v_lshl_add_u32 %s, %s, 18, %s' % (v(V.Est), v(V.g), v(T)))
        a('v_and_b32 %s, 0xdcff, %s' % (v(V.Eld), v(T)))
        a('s_bfe_u32 %s, %s, 0x10001' % (sA, sW)); a('s_xor_b32 %s, %s, %s' % (sA, sA, sP))
        a('s_bfe_u32 %s, %s, 0x10005' % (sC, sT)); a('s_xor_b32 %s, %s, %s' % (sC, sC, sP))
        a('s_lshl_b32 %s, %s, 7' % (sEst, sW)); a('s_add_u32 %s, %s, %s' % (sEst, sEst, sA)); a('s_lshl_b32 %s, %s, 13' % (sEst, sEst))
        a('s_lshl3_add_u32 %s, %s, %s' % (sEld, sT, sC)); a('s_lshl_b32 %s, %s, 13' % (sEld, sEld))

    def trig(self, x, re, im, conj_re=None, conj_im=None):
        a = self.a; c, s = V.T+8, V.T+9
        a('v_cos_f32 %s, %s' % (v(c), v(x)))
        a('v_sin_f32 %s, %s' % (v(s), v(x)))
        if getattr(self, 'fill', None): self.fill(); self.fill = None
        a('v_cvt_pk_bf16_f32 %s, %s, %s' % (v(re), v(c), v(s)))
        a('v_cvt_pk_bf16_f32 %s, -%s, %s' % (v(im), v(s), v(c)))
        if conj_re is not None:
            a('v_xor_b32 %s, 0x80000000, %s' % (v(conj_re), v(re)))
            a('v_xor_b32 %s, 0x8000, %s' % (v(conj_im), v(im)))
    def ladder(self, x, step, regs):
        a = self.a
        for k, r in enumerate(regs):
            if k < len(regs)-1: self.fill = lambda: a('v_add_f32 %s, %s, %s' % (v(x), v(x), v(step)))
            self.trig(x, *r)
    def gen_F16(self):
        a = self.a; T = V.T
        a('v_cvt_f32_u32 %s, %s' % (v(T), v(V.n)))
        a('v_cvt_f32_u32 %s, %s' % (v(T+1), v(V.g)))
        a('v_mul_f32 %s, %s, %s' % (v(T), lit(1/16), v(T)))
        a('v_mul_f32 %s, 4.0, %s' % (v(T+1), v(T+1)))
        a('v_mul_f32 %s, %s, %s' % (v(T+2), v(T), v(T+1)))
        self.ladder(T+2, T, [(V.F16+r, V.F16+4+r) for r in range(4)])
    def gen_M2(self):
        a = self.a; T = V.T
        def normal():
            a('v_cvt_f32_u32 %s, %s' % (v(T+2), sW))
            a('v_fmac_f32 %s, %s, %s' % (v(T), lit(1/256), v(T+2)))
            a('v_mul_f32 %s, %s, %s' % (v(T+2), v(T), v(T+1)))
            self.ladder(T+2, T, [(V.M2+r, V.M2+4+r, V.M2+8+r, V.M2+12+r) for r in range(4)])
        def w0():
            a('v_lshrrev_b32 %s, 1, %s' % (v(T), v(V.n)))
            a('v_cvt_f32_u32 %s, %s' % (v(T), v(T)))
            a('v_lshlrev_b32 %s, 31, %s' % (v(T+3), v(V.n)))
            a('v_add_f32 %s, 0.5, %s' % (v(T+4), v(T)))
            a('v_xor_b32 %s, %s, %s' % (v(T+3), lit(1/16), v(T+3)))
            a('v_cmp_ne_u32 vcc, 1, %s' % v(V.n))
            a('v_mul_f32 %s, %s, %s' % (v(T), v(T), v(T+3)))
            a('v_mul_f32 %s, %s, %s' % (v(T+4), v(T+4), v(T+3)))
            a('v_cndmask_b32 %s, 0.5, %s, vcc' % (v(T), v(T)))
            for ts in range(2):
                d = T+4*ts
                a('v_mul_f32 %s, %s, %s' % (v(T+2), v(d), v(T+1)))
                self.ladder(T+2, d, [(V.M2+8*ts+r, V.M2+8*ts+4+r) for r in range(4)])
        self.ifelse(sW, 0, w0, normal)
    def gen_M3(self):
        a = self.a; T = V.T
        a('v_cvt_f32_u32 %s, %s' % (v(T), v(V.n)))
        a('v_mul_f32 %s, %s, %s' % (v(T+1), lit(1/256), v(T)))
        a('v_mul_f32 %s, %s, %s' % (v(T), lit(1/16), v(T)))
        def normal():
            a('v_lshl_add_u32 %s, %s, 6, %s' % (v(T+2), v(V.g), sW))
            a('v_cvt_f32_u32 %s, %s' % (v(T+2), v(T+2)))
            a('v_mul_f32 %s, %s, %s' % (v(T+2), v(T+2), v(T+1)))
            self.ladder(T+2, T, [(V.M2+r, V.M2+4+r, V.M2+8+r, V.M2+12+r) for r in range(4)])
        def w0():
            a('v_lshlrev_b32 %s, 5, %s' % (v(T+2), v(V.g)))
            a('v_cvt_f32_u32 %s, %s' % (v(T+2), v(T+2)))
            a('v_mul_f32 %s, 0.5, %s' % (v(T), v(T)))
            a('v_mul_f32 %s, %s, %s' % (v(T+2), v(T+2), v(T+1)))
            regs = []
            for k in range(4):
                b = V.M2+8*(k & 1)+2*(k >> 1)
                regs.append((b, b+4, b+1, b+5))
            self.ladder(T+2, T, regs)
            a('s_mov_b64 exec, 0xffff')
            a('v_lshlrev_b32 %s, 15, %s' % (v(T+2), v(V.n)))
            a('v_and_b32 %s, 0x8000, %s' % (v(T+2), v(T+2)))
            a('v_or_b32 %s, 0x3f80, %s' % (v(V.M2+1), v(T+2)))
            a('v_lshlrev_b32 %s, 16, %s' % (v(V.M2+5), v(V.M2+1)))
            a('s_mov_b64 exec, -1')
        self.ifelse(sW, 0, w0, normal)
    def sigma_lane(self, dst):
        a = self.a; t = V.T+7
        a('v_and_b32 %s, 17, %s' % (v(dst), v(V.lane)))
        a('v_bfe_u32 %s, %s, 2, 2' % (v(t), v(V.lane)))
        a('v_lshl_add_u32 %s, %s, 1, %s' % (v(dst), v(t), v(dst)))
        a('v_and_b32 %s, 2, %s' % (v(t), v(V.lane)))
        a('v_lshl_add_u32 %s, %s, 2, %s' % (v(dst), v(t), v(dst)))
    def coop_gen(self):
        a = self.a; T = V.T; X = V.DA
        self.sigma_lane(T)
        a('v_lshrrev_b32 %s, 5, %s' % (v(T+1), v(V.lane)))
        a('v_lshlrev_b32 %s, 7, %s' % (v(T+2), v(T+1)))
        a('v_lshl_add_u32 %s, %s, 1, %s' % (v(T+2), v(T), v(T+2)))
        a('s_and_b32 %s, %s, 2' % (sD, sKP)); a('s_sub_u32 %s, %s, %s' % (sD, sWL, sD))
        a('v_add_u32 %s, %s, %s' % (v(V.WP), sD, v(T+2)))
        a('s_add_u32 %s, %s, %d' % (sD, sD, 1024-832))
        a('v_sub_u32 %s, %s, %s' % (v(V.WM), sD, v(T+2)))
        a('v_cvt_f32_u32 %s, %s' % (v(T), v(T)))
        a('s_mul_i32 %s, %s, 4' % (sA, sW)); a('s_lshr_b32 %s, 0x75643120, %s' % (sA, sA)); a('s_and_b32 %s, %s, 7' % (sA, sA)); a('s_lshl_b32 %s, %s, 2' % (sA, sA))
        a('v_lshl_add_u32 %s, %s, 1, %s' % (v(T+1), v(T+1), sA))
        a('v_mul_f32 %s, %s, %s' % (v(T), lit(1/2048), v(T)))
        a('v_cvt_f32_u32 %s, %s' % (v(T+1), v(T+1)))
        a('v_mul_f32 %s, %s, %s' % (v(T+2), v(T+1), v(T)))
        for e in range(2):
            a('v_cos_f32 %s, %s' % (v(T+5), v(T+2)))
            a('v_sin_f32 %s, %s' % (v(T+6), v(T+2)))
            a('v_rcp_f32 %s, %s' % (v(T+5), v(T+5)))
            a('v_mul_f32 %s, %s, %s' % (v(T+3), lit(64.0), v(T+2)))
            a('v_mul_f32 %s, %s, %s' % (v(X+4+e), v(T+6), v(T+5)))
            a('v_fma_f32 %s, %s, %s, 1.0' % (v(T+5), v(X+4+e), v(X+4+e)))
            a('v_rcp_f32 %s, %s' % (v(T+6), v(T+5)))
            a('v_mul_f32 %s, -2.0, %s' % (v(T+4), v(X+4+e)))
            a('v_fma_f32 %s, -%s, %s, 1.0' % (v(T+5), v(T+5), v(T+6)))
            a('v_fmac_f32 %s, %s, %s' % (v(T+6), v(T+5), v(T+6)))
            a('v_mul_f32 %s, %s, %s' % (v(X+6+e), v(T+6), v(T+4)))
            if e == 0: self.fill = lambda: a('v_add_f32 %s, %s, %s' % (v(T+2), v(T+2), v(T)))
            self.trig(T+3, X+e, X+2+e)
        a('s_lshr_b32 %s, %s, 1' % (sA, sW)); a('s_lshl_b32 %s, %s, 7' % (sA, sA))
        a('s_and_b32 %s, %s, 1' % (sB, sW)); a('s_add_u32 %s, %s, %s' % (sA, sA, sB))
        a('s_lshl3_add_u32 %s, %s, %d' % (sA, sA, TABL))
        a('v_add_u32 %s, %s, %s' % (v(T), sA, v(V.l16)))
        for k in range(4): a('ds_write_b64 %s, %s offset:%d' % (v(T), vr(X+2*k, 2), 4096*k))
    def coop_post(self):
        a = self.a
        a('v_mov_b32 %s, 1' % v(V.T+1))
        a('ds_add_u32 %s, %s offset:4' % (v(V.cnt), v(V.T+1)))
    def coop_wait(self):
        a = self.a; T = V.T; lp, ok = self.label('cw'), self.label('cwok')
        a('s_mov_b32 %s, 0' % sCnt)
        a(lp+':')
        a('ds_read_b32 %s, %s offset:4' % (v(T), v(V.cnt)))
        a('s_add_u32 %s, %s, 1' % (sCnt, sCnt))
        a('s_cmp_gt_u32 %s, 0x%x' % (sCnt, SPIN_MAX*4))
        a('s_waitcnt lgkmcnt(0)')
        a('s_cbranch_scc1 %s' % ok)
        a('v_cmp_gt_u32 vcc, 0x200, %s' % v(T))
        a('s_cbranch_vccnz %s' % lp)
        a(ok+':')
    def coop_read(self):
        a = self.a; T = V.T
        a('v_add_u32 %s, %d, %s' % (v(T), TABL, v(V.l16)))
        for k in range(16): a('ds_read_b128 %s, %s offset:%d' % (vr(V.F32+4*k, 4), v(T), 1024*k))
    def calc_k0(self):
        a = self.a
        a('s_lshr_b32 %s, %s, 4' % (sA, sT)); a('s_and_b32 %s, %s, 15' % (sB, sT))
        a('s_lshl4_add_u32 %s, %s, %s' % (sK0, sB, sA))
        a('s_and_b32 %s, %s, 12' % (sC, sB)); a('s_bfe_u32 %s, %s, 0x10001' % (sD, sB)); a('s_add_u32 %s, %s, %s' % (sC, sC, sD))
        a('s_and_b32 %s, %s, 1' % (sD, sB)); a('s_lshl1_add_u32 %s, %s, %s' % (sC, sD, sC)); a('s_lshl_b32 %s, %s, 3' % (sC, sC))
        a('s_cmp_eq_u32 %s, 0' % sA); a('s_cselect_b32 %s, %s, %s' % (sK0, sC, sK0))
        a('s_cmp_eq_u32 %s, 0' % sT); a('s_cselect_b32 %s, 7, 8' % sA)
        a('s_lshl_b32 %s, %s, %s' % (sKP, sW, sA)); a('s_add_u32 %s, %s, %s' % (sKP, sKP, sK0))
        a('s_sub_u32 %s, 0x800, %s' % (sKM, sKP))
        a('s_cmp_eq_u32 %s, 0' % sKP)
        a('s_cselect_b32 %s, 0x400, %s' % (sKM, sKM)); a('s_cselect_b32 %s, 1, 0' % sSpec)
        a('s_mul_i32 %s, %s, 1026' % (sKP, sKP)); a('s_mul_i32 %s, %s, 1026' % (sKM, sKM))
        a('s_mul_i32 %s, %s, 4224' % (sWL, sW)); a('s_add_u32 %s, %s, %d' % (sWL, sWL, WL))
        a('s_and_b32 %s, %s, 2' % (sA, sKP))
        a('s_add_u32 %s, %s, %s' % (sDP, sKP, sA)); a('s_add_u32 %s, %s, %s' % (sDM, sKM, sA))
    def gen_B(self):
        a = self.a; T = V.T; c, s = T+8, T+9
        a('v_lshrrev_b32 %s, 1, %s' % (v(T), v(V.n)))
        a('v_cvt_f32_u32 %s, %s' % (v(T+2), v(V.g)))
        a('v_and_b32 %s, 1, %s' % (v(T+3), v(V.n)))
        a('v_add_f32 %s, %s, %s' % (v(T+2), v(T+2), v(T+2)))
        def normal():
            a('v_lshl_add_u32 %s, %s, 8, %s' % (v(T+1), v(T), sK0))
            a('v_lshlrev_b32 %s, 4, %s' % (v(T+4), v(T+3)))
            a('v_cvt_f32_u32 %s, %s' % (v(T+1), v(T+1)))
            a('v_lshlrev_b32 %s, 31, %s' % (v(T+6), v(V.n)))
            a('v_cvt_f32_u32 %s, %s' % (v(T+3), v(T+3)))
            a('v_mul_f32 %s, %s, %s' % (v(T+1), lit(1/2048), v(T+1)))
            a('s_brev_b32 %s, 1' % sA)
            a('v_lshrrev_b32 %s, %s, %s' % (v(T+4), v(T+4), sA))
            a('v_mul_f32 %s, %s, %s' % (v(T+5), v(T+1), v(T+2)))
            a('v_fmac_f32 %s, %s, %s' % (v(T+5), lit(0.25), v(T+3)))
            for sbb in range(2):
                if sbb == 0: self.fill = lambda: a('v_add_f32 %s, %s, %s' % (v(T+5), v(T+5), v(T+1)))
                else: self.fill = lambda: a('v_cvt_f32_u32 %s, %s' % (v(T), v(T)))
                self.trig(T+5, V.B+2*sbb, V.B+6+2*sbb)
                a('v_xor_b32 %s, %s, %s' % (v(V.B+2*sbb+1), v(V.B+2*sbb), v(T+4)))
                a('v_xor_b32 %s, %s, %s' % (v(V.B+6+2*sbb+1), v(V.B+6+2*sbb), v(T+4)))
            a('v_lshl_add_u32 %s, %s, 9, %s' % (v(T+1), v(V.g), sK0))
            a('v_xor_b32 %s, %s, %s' % (v(T), v(T), v(T+6)))
            a('v_cvt_f32_u32 %s, %s' % (v(T+1), v(T+1)))
            a('v_mul_f32 %s, 0.5, %s' % (v(T+5), v(T+3)))
            a('v_mul_f32 %s, %s, %s' % (v(T+1), lit(1/2048), v(T+1)))
            a('v_fmac_f32 %s, %s, %s' % (v(T+5), v(T+1), v(T)))
            for ii in range(2):
                a('v_cos_f32 %s, %s' % (v(c), v(T+5)))
                a('v_sin_f32 %s, %s' % (v(s), v(T+5)))
                a('v_mul_f32 %s, %s, %s' % (v(c), lit(SC), v(c)))
                a('v_mul_f32 %s, %s, %s' % (v(s), lit(SC), v(s)))
                if ii == 0: a('v_fmac_f32 %s, %s, %s' % (v(T+5), lit(0.125), v(T)))
                a('v_cvt_pk_bf16_f32 %s, %s, %s' % (v(T+1), v(c), v(s)))
                a('v_cvt_pk_bf16_f32 %s, -%s, %s' % (v(T+2), v(s), v(c)))
                a('v_xor_b32 %s, %s, %s' % (v(V.Bp+2*ii), v(T+1), v(T+6)))
                a('v_xor_b32 %s, %s, %s' % (v(V.Bp+4+2*ii), v(T+2), v(T+6)))
                a('v_xor_b32 %s, %s, %s' % (v(V.Bp+2*ii+1), v(T+2), v(T+6)))
                a('v_xor_b32 %s, 0x80008000, %s' % (v(V.Bp+4+2*ii+1), v(V.Bp+2*ii)))
        def special():
            a('v_cvt_f32_u32 %s, %s' % (v(T+1), v(T)))
            a('v_mul_f32 %s, %s, %s' % (v(T+1), lit(1/16), v(T+1)))
            a('v_lshlrev_b32 %s, 4, %s' % (v(T+4), v(T+3)))
            a('v_cmp_eq_u32 s[84:85], 0, %s' % v(T))
            a('v_and_b32 %s, 1, %s' % (v(T+6), v(T)))
            a('v_cmp_eq_u32 s[86:87], 1, %s' % v(T+6))
            a('v_mul_f32 %s, %s, %s' % (v(T+5), v(T+1), v(T+2)))
            for sbb in range(2):
                a('v_cos_f32 %s, %s' % (v(c), v(T+5)))
                a('v_sin_f32 %s, %s' % (v(s), v(T+5)))
                a('v_mul_f32 %s, 2.0, %s' % (v(c), v(c)))
                a('v_mul_f32 %s, -2.0, %s' % (v(s), v(s)))
                a('v_cndmask_b32 %s, %s, 1.0, s[84:85]' % (v(c), v(c)))
                a('v_cndmask_b32 %s, %s, %s, s[84:85]' % (v(s), v(s), '-1.0' if sbb else '1.0'))
                for src, dst in ((c, V.B+2*sbb), (s, V.B+6+2*sbb)):
                    a('v_cvt_pk_bf16_f32 %s, %s, 0' % (v(T+7), v(src)))
                    a('v_lshlrev_b32 %s, %s, %s' % (v(T+7), v(T+4), v(T+7)))
                    a('v_cndmask_b32 %s, %s, 0, s[86:87]' % (v(dst), v(T+7)))
                    a('v_cndmask_b32 %s, 0, %s, s[86:87]' % (v(dst+1), v(T+7)))
                a('v_add_f32 %s, %s, %s' % (v(T+5), v(T+5), v(T+1)))
            a('v_cmp_eq_u32 s[88:89], 0, %s' % v(V.g))
            a('v_cmp_eq_u32 s[90:91], 1, %s' % v(T+3))
            a('v_lshlrev_b32 %s, 31, %s' % (v(T+6), v(T)))
            a('v_xor_b32 %s, %s, %s' % (v(T+6), lit(SC), v(T+6)))
            a('v_mov_b32 %s, %s' % (v(T+4), lit(SC)))
            a('v_mul_f32 %s, %s, %s' % (v(T+5), v(T+1), v(T+2)))
            for ii in range(2):
                a('v_cos_f32 %s, %s' % (v(c), v(T+5)))
                a('v_sin_f32 %s, %s' % (v(s), v(T+5)))
                a('v_mul_f32 %s, %s, %s' % (v(c), lit(2*SC), v(c)))
                a('v_mul_f32 %s, %s, %s' % (v(s), lit(-2*SC), v(s)))
                if ii == 0:
                    a('v_cndmask_b32 %s, %s, %s, s[88:89]' % (v(c), v(c), v(T+4)))
                    a('v_cndmask_b32 %s, %s, %s, s[88:89]' % (v(s), v(s), v(T+6)))
                a('v_cvt_pk_bf16_f32 %s, %s, %s' % (v(T+7), v(s), v(c)))
                if ii: a('v_cndmask_b32 %s, 0, %s, s[90:91]' % (v(T+7), v(T+7)))
                else: a('v_cndmask_b32 %s, %s, 0, s[90:91]' % (v(T+7), v(T+7)))
                a('v_mov_b32 %s, 0' % v(V.Bp+2*ii)); a('v_mov_b32 %s, %s' % (v(V.Bp+2*ii+1), v(T+7)))
                a('v_mov_b32 %s, %s' % (v(V.Bp+4+2*ii), v(T+7))); a('v_mov_b32 %s, 0' % v(V.Bp+4+2*ii+1))
                a('v_add_f32 %s, %s, %s' % (v(T+5), v(T+5), v(T+1)))
        self.far(sT, 0, special, normal)
        for d, r in ((4, 0), (5, 1), (10, 6), (11, 7)): a('v_mov_b32 %s, %s' % (v(V.B+d), v(V.B+r)))

    def wq(self, rho): return (rho & 1) + 8*((rho >> 1) & 1) + 4*((rho >> 2) & 1)
    def w_dma1(self, i):
        a = self.a
        srd, so = [(SWR, sDP), (SWI, sDP), (SWR, sDM), (SWI, sDM)][i]
        a('s_add_u32 m0, %s, %d' % (sWL, 1056*i))
        a('buffer_load_dwordx4 %s, %s, %s offen %s lds' % (v(V.l16), srd, so, self.o['ldw']))
    def w_dma(self):
        for i in range(4): self.w_dma1(i)
    def w_edge_load(self):
        a = self.a; T = V.T
        a('s_mov_b64 exec, 15')
        a('v_mov_b32 %s, %s' % (v(T), sKP)); a('v_mov_b32 %s, %s' % (v(T+1), sKM))
        a('s_mov_b64 vcc, 10')
        a('v_cndmask_b32 %s, %s, %s, vcc' % (v(T), v(T), v(T+1)))
        a('v_and_b32 %s, 2, %s' % (v(T+1), v(V.lane)))
        a('v_lshl_add_u32 %s, %s, 9, %s' % (v(T), v(T+1), v(T)))
        a('buffer_load_short_d16_hi %s, %s, %s, 0 offen' % (v(V.WF), v(T), SWR))
        a('buffer_load_short_d16_hi %s, %s, %s, 0 offen' % (v(V.WF+1), v(T), SWI))
        a('s_mov_b64 exec, -1')
    def w_edge_rl(self):
        for l in range(4):
            for im in range(2): self.a('v_readlane_b32 s%d, %s, %d' % (84+2*l+im, v(V.WF+im), l))
    def w_edge(self):
        a = self.a; T = V.T
        self.w_edge_rl()
        q = ((84, 86, 'add'), (85, 87, 'sub'), (90, 88, 'add'), (91, 89, 'sub'))
        for i, (x, y, op) in enumerate(q): a('v_mov_b32 %s, s%d' % (v(T+i), y))
        for i, (x, y, op) in enumerate(q): a('v_%s_f32 %s, s%d, %s' % (op, v(V.WF+i), x, v(T+i)))
        for i in range(4): a('v_mul_f32 %s, 0.5, %s' % (v(V.WF+i), v(V.WF+i)))
        a('s_mov_b64 s[92:93], 1')
    def w_read1(self, rho, im, dst=None, swap=False):
        dst = V.W if dst is None else dst
        if rho < 8: ad, off = V.WP, 64*self.wq(rho) + (2112 if swap else 0)
        else: ad, off = V.WM, 64*(13-self.wq(rho)) + (0 if swap else 2112)
        return 'ds_read_u16_d16_hi %s, %s offset:%d' % (v(dst+16*im+rho), v(ad), off+1056*im)
    def w_fix(self, half):
        return ['v_cndmask_b32 %s, %s, %s, s[92:93]' % (v(V.W+8*half+16*im), v(V.W+8*half+16*im), v(V.WF+2*half+im)) for im in range(2)]
    def w_special(self):
        a = self.a; T = V.T; X = V.DA
        def f():
            for sw, dst in ((False, V.W), (True, X)):
                for rho in range(16):
                    for im in range(2): a(self.w_read1(rho, im, dst, sw))
            a('s_waitcnt lgkmcnt(0) vmcnt(0)')
            self.w_edge_rl()
            a('s_mov_b64 exec, 1')
            for r in (V.W+16, V.W+24, X+16, X+24): a('v_mov_b32 %s, 0' % v(r))
            a('v_mov_b32 %s, s90' % v(V.W+8)); a('v_mov_b32 %s, s88' % v(X+8))
            a('s_mov_b64 exec, -1')
            for i in range(32):
                a('v_add_f32 %s, %s, %s' % (v(V.W+i), v(V.W+i), v(X+i)))
                if (i & 15) < 8: a('v_fma_f32 %s, -2.0, %s, %s' % (v(X+i), v(X+i), v(V.W+i)))
                else: a('v_fma_f32 %s, 2.0, %s, -%s' % (v(X+i), v(X+i), v(V.W+i)))
            a('v_add_u32 %s, %d, %s' % (v(T+1), SCR_B, v(V.l16)))
            for i in range(8): a('ds_write_b128 %s, %s offset:%d' % (v(T+1), vr(X+4*i, 4), 1024*i))
        self.far(sSpec, 1, f)

    def addrs1(self):
        a = self.a; T = V.T
        a('v_lshrrev_b32 %s, 3, %s' % (v(T), v(V.lane)))
        a('v_and_b32 %s, 0x30, %s' % (v(T+1), v(V.l16)))
        a('v_lshl_add_u32 %s, %s, 6, %s' % (v(T), v(T), v(T+1)))
        a('v_and_b32 %s, 4, %s' % (v(T+1), v(V.lane)))
        a('v_lshl_add_u32 %s, %s, 1, %s' % (v(V.TR), v(T+1), v(T)))
        a('v_xor_b32 %s, %s, %s' % (v(T), sSB, v(V.lane)))
        a('v_and_b32 %s, 1, %s' % (v(T), v(T)))
        a('v_mul_u32_u24 %s, 16448, %s' % (v(T), v(T)))
        a('v_lshl_add_u32 %s, %s, 12, %s' % (v(T), v(V.g), v(T)))
        a('v_lshl_add_u32 %s, %s, 2, %s' % (v(T), v(T+1), v(T)))
        a('v_and_b32 %s, 0x60, %s' % (v(T+1), v(V.TR)))
        a('s_lshr_b32 %s, %s, 1' % (sWp, sW)); a('s_and_b32 %s, %s, 1' % (sA, sW))
        a('s_lshl2_add_u32 %s, %s, %s' % (sWp, sA, sWp)); a('s_lshl_b32 %s, %s, 7' % (sWp, sWp))
        a('v_add3_u32 %s, %s, %s, %s' % (v(V.X0w), v(T), v(T+1), sWp))
        a('s_lshl_b32 %s, %s, 10' % (sA, sW))
        a('s_sub_u32 %s, 0x4000, %s' % (sB, sA))
        a('s_cmp_eq_u32 %s, 0' % sW); a('s_cselect_b32 %s, 0x2000, %s' % (sB, sB))
        a('v_add_u32 %s, %s, %s' % (v(V.X0r0), sA, v(V.TR)))
        a('v_add_u32 %s, %s, %s' % (v(V.X0r1), sB, v(V.TR)))
    def addrs2(self):
        a = self.a; T = V.T
        a('v_lshlrev_b32 %s, 4, %s' % (v(T), v(V.n)))
        a('v_lshl_add_u32 %s, %s, 13, %s' % (v(T), v(V.g), v(T)))
        a('s_lshl_b32 %s, %s, 9' % (sA, sW)); a('s_add_u32 %s, %s, %d' % (sA, sA, R1))
        a('v_add_u32 %s, %s, %s' % (v(V.X1w), sA, v(T)))
        a('s_lshl_b32 %s, %s, 12' % (sA, sW)); a('s_add_u32 %s, %s, %d' % (sA, sA, R1))
        a('v_add_u32 %s, %s, %s' % (v(V.X1r), sA, v(V.TR)))
        a('v_and_b32 %s, 16, %s' % (v(T), v(V.l16)))
        a('v_and_b32 %s, 2, %s' % (v(T+1), v(V.lane)))
        a('v_bfe_u32 %s, %s, 2, 1' % (v(T+2), v(V.lane)))
        a('v_add_u32 %s, %s, %s' % (v(T+1), v(T+1), v(T+2)))
        a('v_mul_u32_u24 %s, 8224, %s' % (v(T+1), v(T+1)))
        a('v_bfe_u32 %s, %s, 3, 2' % (v(T+2), v(V.lane)))
        a('v_lshl_add_u32 %s, %s, 11, %s' % (v(T), v(T+2), v(T)))
        a('v_and_b32 %s, 32, %s' % (v(T+2), v(V.lane)))
        a('v_add3_u32 %s, %s, %s, %s' % (v(T), v(T), v(T+1), v(T+2)))
        a('v_add_u32 %s, %s, %s' % (v(V.X2w), sWp, v(T)))
        a('s_and_b32 %s, %s, 1' % (sA, sW)); a('s_lshr_b32 %s, %s, 2' % (sB, sW)); a('s_lshl1_add_u32 %s, %s, %s' % (sA, sB, sA)); a('s_lshl_b32 %s, %s, 11' % (sA, sA))
        a('s_and_b32 %s, %s, 2' % (sB, sW)); a('s_mul_i32 %s, %s, 8224' % (sB, sB)); a('s_add_u32 %s, %s, %s' % (sA, sA, sB))
        a('v_add_u32 %s, %s, %s' % (v(V.X2r), sA, v(V.TR)))
    def addrs3(self):
        a = self.a; T = V.T
        a('v_and_b32 %s, 16, %s' % (v(T), v(V.lane)))
        a('v_and_b32 %s, 33, %s' % (v(T+1), v(V.lane)))
        a('v_lshl_add_u32 %s, %s, 5, %s' % (v(T), v(T+1), v(T)))
        a('v_and_b32 %s, 8, %s' % (v(T+1), v(V.lane)))
        a('v_lshl_add_u32 %s, %s, 9, %s' % (v(T), v(T+1), v(T)))
        a('v_and_b32 %s, 2, %s' % (v(T+1), v(V.lane)))
        a('v_and_b32 %s, 4, %s' % (v(T+2), v(V.lane)))
        a('v_mul_u32_u24 %s, 4104, %s' % (v(T+1), v(T+1)))
        a('v_mul_u32_u24 %s, 4112, %s' % (v(T+2), v(T+2)))
        a('v_add3_u32 %s, %s, %s, %s' % (v(T), v(T), v(T+1), v(T+2)))
        a('s_sub_u32 %s, 16, %s' % (sC, sW))
        a('s_cmp_eq_u32 %s, 0' % sW); a('s_cselect_b32 %s, 8, %s' % (sC, sC))
        for kl, dst in ((sW, V.X3w0), (sC, V.X3w1)):
            a('s_lshr_b32 %s, %s, 2' % (sA, kl)); a('s_and_b32 %s, %s, 1' % (sB, kl)); a('s_lshl1_add_u32 %s, %s, %s' % (sA, sA, sB))
            a('s_and_b32 %s, %s, 2' % (sB, kl)); a('s_lshl2_add_u32 %s, %s, %s' % (sA, sB, sA))
            a('s_lshl_b32 %s, %s, 6' % (sA, sA)); a('s_add_u32 %s, %s, %d' % (sA, sA, R1))
            a('v_add_u32 %s, %s, %s' % (v(dst), sA, v(T)))
        a('s_and_b32 %s, %s, 1' % (sA, sW)); a('s_mul_i32 %s, %s, 8208' % (sA, sA))
        a('s_and_b32 %s, %s, 2' % (sB, sW)); a('s_mul_i32 %s, %s, 8224' % (sB, sB)); a('s_add_u32 %s, %s, %s' % (sA, sA, sB))
        a('s_and_b32 %s, %s, 4' % (sB, sW)); a('s_lshl_b32 %s, %s, 10' % (sB, sB)); a('s_add_u32 %s, %s, %s' % (sA, sA, sB))
        a('s_add_u32 %s, %s, %d' % (sA, sA, R1))
        a('v_add_u32 %s, %s, %s' % (v(V.X3r), sA, v(V.TR)))
        a('v_and_b32 %s, 0x70, %s' % (v(T), v(V.l16)))
        a('v_lshlrev_b32 %s, 1, %s' % (v(V.Ooff), v(V.Xoff)))
        a('v_sub_u32 %s, %s, %s' % (v(V.Ooff), v(V.Ooff), v(T)))

    def mf16(self, d, A, B): return 'v_mfma_f32_16x16x32_bf16 %s, %s, %s, 0' % (vr(d, 4), vr(A, 4), vr(B, 4))
    def cvt(self, d, lo, hi): return 'v_cvt_pk_bf16_f32 %s, %s, %s' % (v(d), v(lo), v(hi))
    def mf32(self, d, i, pl, dataA):
        M = vr(V.F32+16*pl+4*i, 4); X = vr(V.O+4*i, 4)
        A, B = (X, M) if dataA else (M, X)
        D = vr(d+16*pl, 16)
        return 'v_mfma_f32_32x32x16_bf16 %s, %s, %s, %s' % (D, A, B, D if i else '0')
    def emit(self, L):
        for x in L: self.a(x)

    def p1(self):
        a = self.a; O, L, D, P = V.O, V.L, V.DA, V.DB
        for r in range(4):
            a('s_waitcnt vmcnt(%d)' % (3-r+(2 if self.o['e1'] else 0)))
            if r == 3:
                self.stamp()
                if self.o['spos'] == 'mid': self.cond(sW, PW, self.side_load)
            for t in range(4): a('v_mov_b32 %s, %s' % (v(O+4*t+r), v(L+4*r+t)))
        for t in range(4):
            a(self.mf16(D+4*t, V.F16, O+4*t)); a(self.mf16(D+16+4*t, V.F16+4, O+4*t))
        if self.o['spos'] == 'late': self.cond(sW, PW, self.side_load)
        def sp():
            self.srds()
            a('s_mov_b32 %s, 0' % sDP); a('s_mov_b32 %s, %d' % (sDM, 1024*1026)); a('s_mov_b32 %s, %d' % (sWL, WL))
            self.w_dma()
        a('s_or_b32 %s, %s, %s' % (sA, sT, sW))
        self.far(sA, 0, sp)
        for r in range(4):
            a(self.cvt(P+4*r, D+r, D+4+r)); a(self.cvt(P+4*r+2, D+16+r, D+20+r))
        for r in range(4):
            a(self.cvt(P+4*r+1, D+8+r, D+12+r)); a(self.cvt(P+4*r+3, D+24+r, D+28+r))
            a('ds_write_b128 %s, %s offset:%d' % (v(V.X0w), vr(P+4*r, 4), 1024*r))
        self.mark('g1a')
        self.side_wait()
        self.mark('g1b')
        a('s_waitcnt lgkmcnt(0)')
        a('s_barrier')
        for ti in range(4):
            for ii in range(2):
                a('ds_read_b64_tr_b16 %s, %s offset:%d' % (vr(O+4*ti+2*ii, 2), v(V.X0r1 if ti >> 1 else V.X0r0), (ti & 1)*16448+ii*512))
        a('ds_read_b32 %s, %s' % (v(V.tmp), v(V.cnt)))
        for ti in range(4):
            a('s_waitcnt lgkmcnt(%d)' % (7-2*ti))
            a(self.mf16(D+4*ti, V.M2+8*(ti >> 1), O+4*ti)); a(self.mf16(D+16+4*ti, V.M2+8*(ti >> 1)+4, O+4*ti))
        a('s_waitcnt lgkmcnt(0)')
        self.side_use()
        for r in range(4): a('s_add_u32 %s, %s, 0x%x' % (sO[r], sEst, WS_U[0] + r*65536))
        def st(i):
            if self.o['tag']: a('v_and_b32 %s, -2, %s' % (v(P+4*i), v(P+4*i)))
            a('buffer_store_dwordx4 %s, %s, %s, %s offen %s' % (vr(P+4*i, 4), v(V.Est), SWS, sO[i], self.o['st1']))
        def normal():
            for i in range(4):
                for k in range(4): a(self.cvt(P+4*i+2*(k & 1)+(k >> 1), D+4*k+i, D+16+4*k+i))
                st(i)
        def w0():
            for i in range(4):
                ts, eb = i >> 1, i & 1
                for tau in range(2):
                    for sg in range(2):
                        x = 4*(2*ts+tau)+2*eb+sg
                        a(self.cvt(P+4*i+2*tau+sg, D+x, D+16+x))
                st(i)
        self.ifelse(sW, 0, w0, normal)

    def stage(self, src, dst, dataA, kind, prio, pre=None):
        a = self.a; T = V.T
        if self.o['prio']: a('s_setprio %d' % prio)
        G = []
        for i in range(4):
            g = []
            if kind == 'tw':
                for st in range(3):
                    for r in range(4):
                        rho = 4*i+r; x, y = v(src+rho), v(src+16+rho)
                        g.append('v_fmac_f32 %s, %s, %s' % ((y, v(V.TW+16+rho), x) if st == 1 else (x, v(V.TW+rho), y)))
                for r in range(4): g.append(self.cvt(V.O+4*i+r, src+4*i+r, src+16+4*i+r))
            else:
                t = T+4*(i & 1)
                for r in range(4):
                    rho = 4*i+r
                    g.append('v_mul_f32 %s, %s, %s' % (v(t+r), v(src+rho), v(V.W+rho)))
                for r in range(4):
                    rho = 4*i+r
                    if rho < 8: g.append('v_fma_f32 %s, -%s, %s, %s' % (v(t+r), v(src+16+rho), v(V.W+16+rho), v(t+r)))
                    else: g.append('v_fmac_f32 %s, %s, %s' % (v(t+r), v(src+16+rho), v(V.W+16+rho)))
                for r in range(4):
                    rho = 4*i+r
                    g.append('v_mul_f32 %s, %s, %s' % (v(src+16+rho), v(src+16+rho), v(V.W+rho)))
                for r in range(4):
                    rho = 4*i+r
                    if rho < 8: g.append('v_fmac_f32 %s, %s, %s' % (v(src+16+rho), v(src+rho), v(V.W+16+rho)))
                    else: g.append('v_fma_f32 %s, -%s, %s, %s' % (v(src+16+rho), v(src+rho), v(V.W+16+rho), v(src+16+rho)))
                for r in range(4): g.append(self.cvt(V.O+4*i+r, src+16+4*i+r, t+r))
            G.append(g)
        W = [[self.w_read1(4*i+r, im) for im in range(2) for r in range(4)] for i in range(4)] if kind == 'w' else None
        if kind == 'w':
            a('s_waitcnt vmcnt(2) lgkmcnt(0)')
            self.emit(W[0]); self.emit(W[1])
        for i in range(4):
            g = list(G[i]); n = len(g)
            ins = {}
            if i:
                ins.setdefault(2, []).append(self.mf32(dst, i-1, 0, dataA))
                ins.setdefault(2+n//2, []).append(self.mf32(dst, i-1, 1, dataA))
            if kind == 'w':
                a('s_waitcnt lgkmcnt(%d)' % (8 if i < 3 else 0))
                if i in (0, 2): self.emit(self.w_fix(i >> 1))
                if i < 2:
                    if i == 0: ins.setdefault(3, []).append('s_waitcnt vmcnt(0)')
                    for k, x in enumerate(W[i+2]): ins.setdefault(3+2*k, []).append(x)
            for k, x in enumerate(g):
                self.emit(ins.get(k, []))
                a(x)
        a(self.mf32(dst, 3, 0, dataA)); a(self.mf32(dst, 3, 1, dataA))

    def p2(self):
        a = self.a; O, L, D, T = V.O, V.L, V.DA, V.T
        na = self.p2na
        for cbb in range(2):
            b = L+12*cbb
            a('s_waitcnt vmcnt(%d)' % (na+3-2*cbb))
            a('v_mov_b32 %s, %s' % (v(b+8), v(b))); a('v_mov_b32 %s, %s' % (v(b+9), v(b+1)))
            a('s_waitcnt vmcnt(%d)' % (na+2-2*cbb))
            if cbb:
                self.stamp(); self.mark('f0')
            for jj2 in (1, 0):
                ti = 2*cbb+jj2; op = b+2 if jj2 else b+6; mo = 0 if jj2 else 2
                a(self.mf16(D+4*ti, V.B+mo, op)); a(self.mf16(D+16+4*ti, V.B+6+mo, op))
        for cbb in range(2):
            for k1b in range(2):
                P = O+4*(2*cbb+k1b)
                for jj2 in (1, 0):
                    for pl in range(2):
                        x = D+16*pl+4*(2*cbb+jj2)+2*k1b
                        a(self.cvt(P+2*pl+jj2, x, x+1))
                a('ds_write_b128 %s, %s offset:%d' % (v(V.X1w), vr(P, 4), k1b*4096+cbb*256))
        self.mark('f1')
        a('s_waitcnt lgkmcnt(0)')
        self.mark('f2', True)
        a('s_barrier')
        self.mark('x1', True)
        if self.o['prio']: a('s_setprio 3')
        for i in range(4):
            for ii in range(2):
                a('ds_read_b64_tr_b16 %s, %s offset:%d' % (vr(O+4*i+2*ii, 2), v(V.X1r), ii*1024+(i & 1)*512+(i >> 1)*2048))
        rows = {'postX1': (0, 1, 2, 3), 'barh': (2, 3), 'bar': (), 'p2a': (2, 3), 'q2a': (1, 2, 3)}[self.o['wpos']]
        for i in range(4):
            if i < len(rows): self.w_dma1(rows[i])
            a('s_waitcnt lgkmcnt(%d)' % (6-2*i))
            a(self.mf32(V.DA, i, 0, True)); a(self.mf32(V.DA, i, 1, True))
        self.mark('f3')
        if self.o['tag']: self.arrive()
        self.stage(V.DA, V.DB, False, 'tw', 2)
        self.mark('f4', True)
        self.far(sSpec, 1, self.pw_special, lambda: self.stage(V.DB, V.DA, True, 'w', 1))
        self.mark('f5')
        if self.o['tag']:
            a('s_mov_b32 %s, 0' % sRv)
            a('s_atomic_add %s, s[24:25], %s glc' % (sRv, sE))
        self.stage(V.DA, V.DB, True, 'tw', 0)
        self.mark('f6')
        D = V.DB
        if not self.o['tag']:
            for r in range(4): a('s_add_u32 %s, %s, 0x%x' % (sO[r], sEst, WS_U[1] + r*65536))
        rho = lambda jj3, jj1, jj2, c: 4*(2*jj3+jj1)+2*jj2+c
        for pl in range(2):
            for k in range(4):
                c, jj1 = k >> 1, k & 1
                P = V.DA+4*k
                for jj3 in range(2):
                    a(self.cvt(P+2*pl+jj3, D+16*pl+rho(jj3, jj1, 0, c), D+16*pl+rho(jj3, jj1, 1, c)))
                if pl: a('ds_write_b128 %s, %s offset:%d' % (v(V.X2w), vr(P, 4), c*64+jj1*1024))
        self.mark('f7'); self.mark('x2')
        a('s_waitcnt lgkmcnt(0)')
        self.mark('f8', True)
        if self.o['tag']:
            l = self.label('free')
            a('s_bitcmp1_b32 %s, 20' % sRv); a('s_cbranch_scc1 %s' % l)
            self.poll(1)
            a(l+':')
        a('s_barrier')
        for ti in range(4):
            for ii in range(2):
                a('ds_read_b64_tr_b16 %s, %s offset:%d' % (vr(O+4*ti+2*ii, 2), v(V.X2r), ii*512+(ti & 1)*1024+(ti >> 1)*8224))
        D = V.DA; P = V.DB
        for ti in range(4):
            a('s_waitcnt lgkmcnt(%d)' % (6-2*ti))
            a(self.mf16(D+4*ti, V.Bp, O+4*ti)); a(self.mf16(D+16+4*ti, V.Bp+4, O+4*ti))
        self.mark('f9')
        for q in range(4):
            cbb, sbb = q >> 1, q & 1
            for jj1 in range(2):
                for hf in range(2):
                    x = 4*(2*cbb+jj1)+2*sbb+hf
                    a(self.cvt(P+4*q+2*jj1+hf, D+x, D+16+x))
                if self.o['tag'] and jj1 == 0: a('v_or_b32 %s, 1, %s' % (v(P+4*q), v(P+4*q)))
            a('buffer_store_dwordx4 %s, %s, %s, %s offen %s' % (vr(P+4*q, 4), v(V.Est), SWS, sO[q], self.o['st2']))
        self.mark('f10')

    def pw_special(self):
        a = self.a; T = V.T; O = V.O; C = V.DB; X = V.DA
        self.sigma_lane(T)
        a('v_lshrrev_b32 %s, 5, %s' % (v(T+1), v(V.lane)))
        a('v_lshlrev_b32 %s, 9, %s' % (v(T+1), v(T+1)))
        a('v_lshl_add_u32 %s, %s, 2, %s' % (v(T+2), v(T), v(T+1)))
        a('v_add_u32 %s, %d, %s' % (v(T+2), SCR, v(T+2)))
        a('v_add_u32 %s, 128, %s' % (v(T+3), v(T+2)))
        a('v_sub_u32 %s, 32, %s' % (v(T+4), v(T)))
        a('v_lshrrev_b32 %s, 5, %s' % (v(T+5), v(T+4)))
        a('v_and_b32 %s, 31, %s' % (v(T+4), v(T+4)))
        a('v_lshlrev_b32 %s, 2, %s' % (v(T+4), v(T+4)))
        a('v_lshl_add_u32 %s, %s, 8, %s' % (v(T+4), v(T+5), v(T+4)))
        a('v_sub_u32 %s, %s, %s' % (v(T+4), v(T+4), v(T+1)))
        a('v_add_u32 %s, %d, %s' % (v(T+4), SCR + 2*256, v(T+4)))
        a('v_add_u32 %s, 128, %s' % (v(T+5), v(T+4)))
        a('v_add_u32 %s, %d, %s' % (v(T+6), SCR_B, v(V.l16)))
        qs = lambda rho: sigma(8*(rho >> 2) + (rho & 3))
        for pl in range(2):
            for rho in range(0, 16, 2):
                a('ds_write2st64_b32 %s, %s, %s offset0:%d offset1:%d' % (v(T+2+pl), v(C+16*pl+rho), v(C+16*pl+rho+1), qs(rho), qs(rho+1)))
            a('ds_write_b32 %s, %s offset:%d' % (v(T+2+pl), v(C+16*pl), 32*256))
        t0, t1 = v(T+8), v(T+9)
        for half in range(2):
            for pl in range(2):
                for k in range(0, 8, 2):
                    r_ = 8*half+k
                    a('ds_read2st64_b32 %s, %s offset0:%d offset1:%d' % (vr(X+8*pl+k, 2), v(T+4+pl), 29-qs(r_), 29-qs(r_+1)))
                for k in range(2):
                    a('ds_read_b128 %s, %s offset:%d' % (vr(X+16+8*pl+4*k, 4), v(T+6), 1024*(4*pl+2*half+k)))
            a('s_waitcnt lgkmcnt(0)')
            for k in range(8):
                r_ = 8*half+k
                x, y = v(C+r_), v(C+16+r_); ar, ai = v(V.W+r_), v(V.W+16+r_)
                p, q_ = v(X+k), v(X+8+k); br, bi = v(X+16+k), v(X+24+k)
                ng, ps = ('', '-') if half else ('-', '')
                a('v_mul_f32 %s, %s, %s' % (t0, x, ar))
                a('v_mul_f32 %s, %s, %s' % (t1, y, ar))
                a('v_fma_f32 %s, %s%s, %s, %s' % (t0, ng, y, ai, t0))
                a('v_fma_f32 %s, %s%s, %s, %s' % (t1, ps, x, ai, t1))
                a('v_fmac_f32 %s, %s, %s' % (t0, p, br))
                a('v_fma_f32 %s, -%s, %s, %s' % (t1, q_, br, t1))
                a('v_fma_f32 %s, %s%s, %s, %s' % (t0, ps, q_, bi, t0))
                a('v_fma_f32 %s, %s%s, %s, %s' % (t1, ps, p, bi, t1))
                a(self.cvt(O+r_, T+9, T+8))
        for i in range(4): a(self.mf32(V.DA, i, 0, True)); a(self.mf32(V.DA, i, 1, True))

    def tag_wait(self):
        a = self.a; T = V.T; lp, ok = self.label('tw'), self.label('twok')
        a('v_and_b32 %s, 0xd000, %s' % (v(T), v(V.Eld)))
        a('v_lshl_add_u32 %s, %s, 6, %s' % (v(T), v(V.lane), v(T)))
        a('s_mov_b32 %s, 0' % sCnt)
        self.retry = self.label('retry')
        a(self.retry+':')
        a(lp+':')
        a('buffer_load_dword %s, %s, %s, %s offen %s' % (v(T+1), v(T), SWS, sEld, self.o['ld2']))
        a('s_add_u32 %s, %s, 1' % (sCnt, sCnt))
        a('s_cmp_gt_u32 %s, 0x%x' % (sCnt, SPIN_MAX))
        a('s_waitcnt vmcnt(0)')
        a('s_cbranch_scc1 %s' % ok)
        a('v_and_b32 %s, 1, %s' % (v(T+1), v(T+1)))
        a('v_cmp_eq_u32 vcc, 0, %s' % v(T+1))
        if self.o.get('nar'):
            a('s_and_b64 exec, exec, vcc')
            a('s_cbranch_execnz %s' % lp)
        else: a('s_cbranch_vccnz %s' % lp)
        a(ok+':')
        if self.o.get('nar'): a('s_mov_b64 exec, -1')
        if self.o['ts']: a('s_mov_b32 s%d, %s' % (sTS+26, sCnt))
        self.stamp()
        self.ex_load(1)
    def p3_soff(self):
        a = self.a
        a('s_lshl4_add_u32 %s, %s, %s' % (sA, sW, sSB)); a('s_lshl1_add_u32 %s, %s, %s' % (sA, sA, sP))
        a('s_lshl4_add_u32 %s, %s, %s' % (sA, sA, sCB)); a('s_lshl_b32 %s, %s, 7' % (sO[0], sA))
        for r in range(1, 4): a('s_add_u32 %s, %s, 0x%x' % (sO[r], sO[0], r*524288))
    def p3(self):
        a = self.a; O, L, D, P = V.O, V.L, V.DA, V.DB
        def normal():
            for i in range(4):
                a('s_waitcnt vmcnt(%d)' % (3-i))
                for sel in range(2):
                    for col in range(2): a('v_mov_b32 %s, %s' % (v(O+4*(2*sel+col)+i), v(L+4*i+2*col+sel)))
        def w0():
            for i in range(4):
                ts, eb = i >> 1, i & 1
                a('s_waitcnt vmcnt(%d)' % (3-i))
                for col in range(2):
                    for sg in range(2): a('v_mov_b32 %s, %s' % (v(O+4*(2*ts+col)+2*eb+sg), v(L+4*i+2*col+sg)))
        self.ifelse(sW, 0, w0, normal, True)
        self.stamp()
        for ti in range(4):
            a(self.mf16(D+4*ti, O+4*ti, V.M2+8*(ti >> 1))); a(self.mf16(D+16+4*ti, O+4*ti, V.M2+8*(ti >> 1)+4))
            if self.o['tag']:
                T = V.T
                if ti == 0: a('v_and_b32 %s, %s, %s' % (v(T+2), v(L), v(L+4))); a('v_and_b32 %s, %s, %s' % (v(T+3), v(L+8), v(L+12)))
                if ti == 1: a('v_and_b32 %s, %s, %s' % (v(T+2), v(T+2), v(T+3))); a('v_and_b32 %s, 1, %s' % (v(T+2), v(T+2)))
                if ti == 2: a('v_cmp_eq_u32 vcc, 0, %s' % v(T+2))
        if self.o['tag']:
            l = self.label('good')
            a('s_cbranch_vccz %s' % l)
            a('s_cmp_le_u32 %s, 0x%x' % (sCnt, SPIN_MAX))
            a('s_nop 7')
            a('s_cbranch_scc1 %s' % self.retry)
            a(l+':')
        for ti in range(4):
            for pl in range(2):
                for k in range(2):
                    x = D+16*pl+4*ti+2*k
                    a(self.cvt(P+4*ti+2*pl+k, x, x+1))
            a('ds_write_b128 %s, %s offset:%d' % (v(V.X3w1 if ti >> 1 else V.X3w0), vr(P+4*ti, 4), (ti & 1)*2048))
        a('s_waitcnt lgkmcnt(0)')
        a('s_barrier')
        for t in range(4):
            for ii in range(2):
                a('ds_read_b64_tr_b16 %s, %s offset:%d' % (vr(O+4*t+2*ii, 2), v(V.X3r), ii*512+t*1024))
        for t in range(4):
            a('s_waitcnt lgkmcnt(%d)' % (6-2*t))
            a(self.mf16(D+4*t, V.F16, O+4*t)); a(self.mf16(D+16+4*t, V.F16+4, O+4*t))
        for t in range(2):
            for r in range(4): a(self.cvt(P+4*r+t, D+16+4*t+r, D+4*t+r))
        for r in range(4):
            for t in (2, 3): a(self.cvt(P+4*r+t, D+16+4*t+r, D+4*t+r))
            a('buffer_store_dwordx4 %s, %s, %s, %s offen %s' % (vr(P+4*r, 4), v(V.Ooff), SOUT, sO[r], self.o['sto']))

    def ex_load(self, ex):
        a = self.a
        a('s_add_u32 %s, %s, 0x%x' % (sA, sEld, WS_U[0 if self.o['tag'] else ex]))
        for q in range(4):
            d = V.L+12*(q >> 1)+4*(q & 1) if ex == 0 else V.L+4*q
            a('buffer_load_dwordx4 %s, %s, %s, %s offen offset:%d %s' % (vr(d, 4), v(V.Eld), SWS, sA, 256*q, self.o['ld1' if ex == 0 else 'ld2']))

    def build(self):
        a = self.a; o = self.o
        name = NAME + '_kernel'
        a.raw('.globl %s\n.p2align 12\n.p2align 8\n.type %s,@function\n%s:' % (name, name, name))
        end = self.label('end')
        self.prologue(end)
        def others():
            if o.get('kfirst'): a('s_waitcnt lgkmcnt(0)'); self.mark('karg0')
            self.touch(0)
            self.mark('touched')
            a('s_waitcnt lgkmcnt(0)')
            self.mark('karg')
            l = self.label('hold')
            a('s_cmp_lt_u32 %s, 8' % sCh); a('s_cbranch_scc1 %s' % l)
            self.x_issue()
            if o['pre']: self.cond(sW, PW, lambda: a('s_load_dword s95, s[20:21], %s' % self.o['preoff']))
            a(l+':')
        self.ifelse(sCh, 0, self.probe, others, True)
        self.srds0(); self.addrs1()
        l = self.label('held')
        a('s_sub_u32 %s, %s, 1' % (sA, sCh)); a('s_cmp_ge_u32 %s, 7' % sA); a('s_cbranch_scc1 %s' % l)
        self.x_issue()
        a(l+':')
        self.gen_F16()
        self.clear_done()
        self.gen_M2(); self.ex_addrs()
        if o['touch']: self.cond(sT, 0, lambda: self.touch(1))
        full = o['full']
        e1 = o['e1']
        if full or e1: self.srds(); self.calc_k0()
        if e1: self.w_edge_load()
        if full:
            self.coop_gen(); self.gen_B(); self.addrs2(); self.flag_addrs()
        if o['spos'] == 'early': self.cond(sW, PW, self.side_load)
        self.mark('w1')
        self.p1()
        self.stamp()
        nP = {'p2a': 2, 'q2a': 1}.get(o['wpos'], 0)
        if full:
            self.side_apply(); a('s_mov_b32 %s, 1' % sInc)
            self.coop_read(); self.gen_M3()
            for i in range(nP): self.w_dma1(i)
            self.addrs3()
        else:
            self.flag_addrs(); self.side_apply()
            if not e1: self.srds(); self.calc_k0()
            a('s_mov_b32 %s, 1' % sInc)
            self.coop_gen(); self.coop_post()
            for i in range(nP): self.w_dma1(i)
        a('s_waitcnt vmcnt(%d)' % nP)
        self.stamp()
        self.arrive()
        el = (lambda: 0) if e1 else self.w_edge_load
        if full: self.poll(0, lambda: (el(), self.w_special()))
        else: self.poll(0, lambda: (el(), self.gen_B(), self.w_special()))
        self.stamp()
        self.ex_load(0)
        self.p2na = 0
        if o['wpos'] in ('bar', 'barh'):
            a('s_barrier'); self.p2na = 4 if o['wpos'] == 'bar' else 2
            for i in range(self.p2na): self.w_dma1(i)
        elif not full: self.coop_wait()
        if not full: self.coop_read(); self.addrs2()
        a('s_waitcnt vmcnt(%d)' % (4+self.p2na))
        self.w_edge()
        a('s_mov_b32 %s, 0x10000' % sInc)
        if o.get('da') == 'glob': self.cond(sId, 0, lambda: a('s_atomic_swap s56, s[20:21], 0x40'))
        self.p2()
        self.stamp()
        if not full: self.gen_M3()
        self.mark('w3a')
        if o['tag']:
            if not full: self.addrs3()
            self.stamp()
            self.p3_soff()
            self.tag_wait()
        else:
            a('s_waitcnt vmcnt(0)')
            self.stamp()
            self.arrive()
            self.poll(1, None if full else self.addrs3)
            if o['ts']: a('s_mov_b32 s%d, %s' % (sTS+26, sCnt))
            self.stamp()
            self.ex_load(1)
            self.p3_soff()
        self.p3()
        self.diag_end()
        a(end+':'); a('s_endpgm')
        t, self.tail = self.tail, []
        for f in t: f()
        if o['touch']: self.insert_stubs()
        hdr = ('; GFNet spectral filter, two heads: 2-D FFT as bf16 MFMA DFT stages in one persistent launch (generated)\n'
               '; @launch grid=(256,1,1) block=(512,1,1) lds=%d\n' % LDS_TOTAL)
        kd = '''.section .rodata,"a"
.p2align 6
.amdhsa_kernel %s
  .amdhsa_next_free_vgpr %d
  .amdhsa_next_free_sgpr 102
  .amdhsa_accum_offset %d
  .amdhsa_group_segment_fixed_size 0
  .amdhsa_kernarg_size 72
  .amdhsa_user_sgpr_count 2
  .amdhsa_user_sgpr_kernarg_segment_ptr 1
  .amdhsa_system_sgpr_workgroup_id_x 1
.end_amdhsa_kernel
''' % (name, NVGPR, (NVGPR+3)//4*4)
        return hdr + '.amdgcn_target "amdgcn-amd-amdhsa--gfx950"\n.text\n' + a.text() + kd

    def insert_stubs(self):
        a = self.a
        txt = '.amdgcn_target "amdgcn-amd-amdhsa--gfx950"\n.text\n' + a.text() + ''.join('stub_%d:\n' % k for k in range(16)) + 's_endpgm\n'
        open('pass1.s', 'w').write(txt)
        subprocess.check_call(['clang', '-x', 'assembler', '-target', 'amdgcn-amd-amdhsa', '-mcpu=gfx950', '-c', 'pass1.s', '-o', 'pass1.o'])
        dis = subprocess.check_output(['llvm-objdump', '-d', '--mcpu=gfx950', 'pass1.o']).decode()
        addrs = [int(m.group(1), 16) for m in re.finditer(r'// ([0-9A-F]{12}):', dis)]
        real = [i for i, x in enumerate(a.ins) if x.kind != 'none']
        assert len(addrs) == len(real) + 1, (len(addrs), len(real))
        size = {real[k]: addrs[k+1] - addrs[k] for k in range(len(real))}
        pos = ENTRY_OFF; nxt = 2048
        out = []; k = 0; prev = None; ez = False
        for i, x in enumerate(a.ins):
            if i in size:
                if prev is not None and prev.text.strip() == 's_mov_b64 exec, 0': ez = True
                if prev is not None and prev.text.strip() == 's_mov_b64 exec, -1': ez = False
                if pos >= nxt and k < 16 and not ez:
                    out.append(Ins('stub_%d:' % k)); out.append(Ins('s_cbranch_execz ret_%d' % (k >> 3)))
                    pos += 4; k += 1; nxt += 1024
                pos += size[i]; prev = x
                if x.op == 's_endpgm': self.hot_end = pos
            out.append(x)
        self.code_end = pos
        while k < 16:
            out.append(Ins('stub_%d:' % k)); out.append(Ins('s_branch ret_%d' % (k >> 3))); k += 1
        a.ins = out

if __name__ == '__main__':
    out = sys.argv[1]; opt = {}
    for kv in sys.argv[2:]:
        k, x = kv.split('=')
        opt[k] = {'True': True, 'False': False}.get(x, x.replace('+', ' '))
    g = Gen(**opt)
    s = g.build()
    assert g.a.verify() == 0
    open(out, 'w').write(s)
    print(out, 'vgprs', NVGPR, 'lds', LDS_TOTAL, 'nops', g.a.nops, 'lines', len(g.a.ins), 'hot end 0x%x code end 0x%x' % (getattr(g, 'hot_end', 0), getattr(g, 'code_end', 0)))
```

```python
import sys, struct, math, subprocess, re
from asmlib import Asm, Ins

NAME = 'concat_heads__spectral_gfnet__spectral_gfnet__prompt'
def f2u(x): return struct.unpack('<I', struct.pack('<f', x))[0]
def lit(x): return '0x%08x' % f2u(x)
def sigma(m): return (m & 1) | ((m >> 1) & 1) << 3 | ((m >> 2) & 1) << 1 | ((m >> 3) & 1) << 2 | (m & 16)

SC = 2.0**-22
SPIN_MAX = 0x80000
ENTRY_OFF = 0x300
PW = int([x for x in sys.argv if x.startswith('pw=')][0][3:]) if any(x.startswith('pw=') for x in sys.argv) else 1
R0 = 0
R1 = 33024
WL = 66048
SCR = WL + 8*4*1056
SCR_B = SCR + 36*256
TABL = SCR_B + 8192
CNT = TABL + 16384
LDS_TOTAL = CNT + 64
WS_U = (0, 8 << 20)
WS_FLAG = 16 << 20
WS_PROBE = 17 << 20
WS_TS = 72 << 20
class V: pass
_n = [0]
def alloc(n, align=1):
    b = (_n[0] + align - 1)//align*align
    _n[0] = b + n
    return b
V.tid = alloc(1); V.lane = alloc(1)
for nm in 'g n l16 TR Xoff Est Eld X0w X0r0 X0r1 X1w X1r X2w X2r WP WM zero cnt tmp'.split(): setattr(V, nm, alloc(1))
V.Ooff, V.X3w0, V.X3w1, V.X3r = V.Xoff, V.X0w, V.X0r0, V.X0r1
V.T = alloc(10)
V.O = alloc(16, 4)
V.DA = alloc(32, 4); V.DB = alloc(32, 4); V.L = V.DB
V.F16 = alloc(8, 4); V.M2 = alloc(16, 4)
V.F32 = alloc(32, 4); V.TW = alloc(32, 4); V.W = alloc(32, 4)
V.B = alloc(12, 4); V.Bp = alloc(8, 4); V.WF = alloc(4)
NVGPR = _n[0]
assert NVGPR <= 256, NVGPR
def v(i): return 'v%d' % i
def vr(i, n): return 'v[%d:%d]' % (i, i+n-1)
SX, SWR, SWI, SOUT, SDBG, SWS = 's[4:7]', 's[8:11]', 's[12:15]', 's[16:19]', 's[20:23]', 's[24:27]'
sP, sT, sW, sSB, sCB, sK0, sKP, sKM, sWp, sRv = ['s%d' % i for i in range(30, 40)]
sA, sB, sC, sD, sE, sF, sEst, sEld, sCnt, sSpec, sInc, sWL = ['s%d' % i for i in range(40, 52)]
sO = ['s52', 's53', 's54', 's55']
sTS = 56
sDP, sDM, sZ, sCh, sId = 's96', 's97', 's98', 's99', 's100'

class Gen:
    def __init__(self, **opt):
        self.o = dict(ldx='', ldw='', st1='sc1', st2='sc1', sto='nt', ld1='sc1', ld2='sc1', ts=False,
                      prio=True, nb='2', pnop='15', force='', wpos='postX1', touch=True, w1n='9', spos='mid', qw='1', qg='1', zg='3', xm='2', pb='17', wsoff='0', pld='', pex='1', merge=True, full=False, e1=False, preoff='0', tag=False, stag='0', sbit='7', pre=True, split=False, map='2', rep='1', slp='', sthr='')
        self.o.update(opt)
        self.a = Asm(); self.lab = 0; self.nts = 0; self.sid = -1; self.tail = []
    def label(self, p='L'):
        self.lab += 1
        return '%s_%d' % (p, self.lab)

    def mark(self, nm, drain=False):
        o = self.o; hit = False
        if o.get('clk') and nm in ('w1', 'g1a', 'x1', 'x2', 'w3a', 'end'):
            for op in ('s_memrealtime', 's_memtime'):
                self.a('%s s[%d:%d]' % (op, sTS+2*self.nts, sTS+2*self.nts+1)); self.nts += 1
            self.a('s_waitcnt lgkmcnt(0)')
        if o.get('fine') and nm[0] == 'f':
            self.a('s_memtime s[%d:%d]' % (sTS+2*self.nts, sTS+2*self.nts+1)); self.nts += 1; hit = True
        for key, reg in (('da', 58), ('db', 60)):
            if o.get(key) == nm:
                self.a('%s s[%d:%d]' % ('s_memtime' if 'cyc' in o else 's_memrealtime', reg, reg+1)); hit = True
        if hit and drain: self.a('s_waitcnt lgkmcnt(0)')
    def stamp(self):
        self.sid += 1
        self.mark('s%d' % self.sid)
        if not self.o['ts'] or self.o.get('clk') or self.o.get('fine'): return
        self.a('s_memrealtime s[%d:%d]' % (sTS+2*self.nts, sTS+2*self.nts+1)); self.nts += 1
    def diag_end(self):
        a = self.a; o = self.o
        self.mark('end')
        if not (o['ts'] or 'da' in o): return
        self.stamp(); a('s_waitcnt vmcnt(0)'); self.stamp()
        a('s_waitcnt lgkmcnt(0)')
        if 'da' in o:
            lp = self.label('dg')
            if o['da'] == 'glob':
                a('buffer_load_dword %s, %s, %s, 0 offen offset:64 sc1' % (v(V.tmp), v(V.zero), SDBG))
                a('s_waitcnt vmcnt(0)')
                a('v_readfirstlane_b32 s58, %s' % v(V.tmp)); a('s_mov_b32 s56, s58')
            a('s_sub_u32 %s, s60, s58' % sA)
            if 'db0' in o: a('s_add_u32 %s, %s, 250' % (sA, sA)); a('s_lshl_b32 %s, %s, 1' % (sA, sA))
            a('s_lshr_b32 %s, %s, 2' % (sA, sA) if 'cyc' in o else 's_lshl_b32 %s, %s, 2' % (sA, sA))
            for key, reg in (('dp', sP), ('dt', sT), ('db0', sId)):
                if key in o: a('s_cmp_eq_u32 %s, %s' % (reg, o[key])); a('s_cselect_b32 %s, %s, 0' % (sA, sA))
            a('s_min_u32 %s, %s, %d' % (sA, sA, 5800 if 'enc' in o else 9000))
            if 'enc' in o:
                a('s_and_b32 %s, s62, 15' % sB); a('s_mul_i32 %s, %s, 10000' % (sB, sB)); a('s_add_u32 %s, %s, %s' % (sA, sA, sB))
                a('s_bfe_u32 %s, s62, 0x40008' % sB); a('s_mul_i32 %s, %s, 100000' % (sB, sB)); a('s_add_u32 %s, %s, %s' % (sA, sA, sB))
            a('s_add_u32 %s, %s, 3000' % (sA, sA))
            a(lp+':')
            a('s_memrealtime s[28:29]'); a('s_waitcnt lgkmcnt(0)')
            a('s_sub_u32 %s, s28, s56' % sB); a('s_cmp_lt_u32 %s, %s' % (sB, sA)); a('s_cbranch_scc1 %s' % lp)
            return
        a('s_lshl_b32 %s, %s, 7' % (sA, sId)); a('s_add_u32 %s, %s, 0x%x' % (sA, sA, WS_TS))
        a('s_mov_b64 exec, 1')
        for i in range(14):
            a('v_mov_b32 %s, s%d' % (v(V.T), sTS+2*i))
            a('buffer_store_dword %s, %s, %s, %s offen offset:%d' % (v(V.T), v(V.zero), SWS, sA, 4*i))
            a('s_nop 1')

    def cond(self, reg, val, f):
        a = self.a; l = self.label('c')
        a('s_cmp_lg_u32 %s, %d' % (reg, val)); a('s_cbranch_scc1 %s' % l)
        f(); a(l+':')
    def ifelse(self, reg, val, feq, fne, eq_first=False):
        a = self.a; l0, l1 = self.label('ie'), self.label('iend')
        if eq_first:
            a('s_cmp_lg_u32 %s, %d' % (reg, val)); a('s_cbranch_scc1 %s' % l0)
            feq(); a('s_branch %s' % l1); a(l0+':'); fne()
        else:
            a('s_cmp_eq_u32 %s, %d' % (reg, val)); a('s_cbranch_scc1 %s' % l0)
            fne(); a('s_branch %s' % l1); a(l0+':'); feq()
        a(l1+':')
    def far(self, reg, val, feq, fne=None):
        a = self.a; l0, l1 = self.label('far'), self.label('back')
        a('s_cmp_eq_u32 %s, %d' % (reg, val)); a('s_cbranch_scc1 %s' % l0)
        if fne: fne()
        a(l1+':')
        def t():
            a(l0+':'); feq(); a('s_branch %s' % l1)
        self.tail.append(t)
    def touch(self, rnd, half=False):
        a = self.a
        a('s_mov_b64 exec, 0')
        if half:
            for k in range(3):
                a('s_cmp_eq_u32 %s, %d' % (sW, 4+k)); a('s_cbranch_scc1 stub_%d' % (2*k))
            a('s_branch stub_6')
        else:
            for k in range(7):
                a('s_cmp_eq_u32 %s, %d' % (sW, k)); a('s_cbranch_scc1 stub_%d' % (8*rnd+k))
            a('s_branch stub_%d' % (8*rnd+7))
        a('ret_%d:' % rnd)
        a('s_mov_b64 exec, -1')

    def prologue(self, end):
        a = self.a; T = V.T
        a('s_cmp_ge_u32 s2, 0x100')
        a('s_cbranch_scc1 %s' % end)
        if 'da' in self.o: a('s_memrealtime s[56:57]'); self.mark('start')
        a('s_bfe_u32 %s, s2, 0x10002' % sP)
        a('s_mul_i32 s3, %s, 24' % sP)
        a('s_load_dwordx2 s[4:5], s[0:1], s3')
        a('s_load_dwordx2 s[24:25], s[0:1], 0x40')
        a('s_load_dwordx2 s[20:21], s[0:1], 0x38')
        a('s_load_dwordx2 s[8:9], s[0:1], s3 offset:8')
        a('s_load_dwordx2 s[12:13], s[0:1], s3 offset:16')
        a('s_load_dwordx2 s[16:17], s[0:1], 0x30')
        self.stamp()
        a('v_lshrrev_b32 %s, 6, v0' % v(T))
        a('v_and_b32 %s, 63, v0' % v(V.lane))
        a('v_readfirstlane_b32 %s, %s' % (sW, v(T)))
        mp = self.o['map']
        a('s_and_b32 %s, s2, 3' % sA)
        if int(self.o['xm']): a('s_xor_b32 %s, %s, %s' % (sA, sA, self.o['xm']))
        if mp in ('0', '1'):
            a('s_bfe_u32 %s, s2, 0x10003' % sB)
            if mp == '0': a('s_lshl1_add_u32 %s, %s, %s' % (sA, sA, sB))
            else: a('s_lshl2_add_u32 %s, %s, %s' % (sA, sB, sA))
            a('s_lshr_b32 %s, s2, 4' % sB)
            a('s_lshl4_add_u32 %s, %s, %s' % (sT, sA, sB))
        else:
            a('s_lshr_b32 %s, s2, 3' % sB)
            a('s_lshl2_add_u32 %s, %s, %s' % (sT, sB, sA))
            a('s_lshr_b32 %s, %s, 4' % (sA, sT)); a('s_and_b32 %s, %s, 15' % (sB, sT))
        a('s_bfe_u32 %s, %s, 0x10001' % (sC, sB))
        a('s_lshl1_add_u32 %s, %s, %s' % (sCB, sA, sC))
        a('s_lshr_b32 %s, %s, 2' % (sSB, sB))
        a('s_and_b32 %s, %s, 1' % (sC, sB))
        a('s_lshl1_add_u32 %s, %s, %s' % (sSB, sSB, sC))
        a('s_mov_b32 s6, 0x400000'); a('s_mov_b32 s7, 0x20000')
        a('v_lshrrev_b32 %s, 4, %s' % (v(V.g), v(V.lane)))
        a('v_lshlrev_b32 %s, 4, %s' % (v(V.l16), v(V.lane)))
        a('v_and_b32 %s, 8, v0' % v(T))
        a('v_lshlrev_b32 %s, 11, %s' % (v(T), v(T)))
        a('v_lshl_add_u32 %s, %s, 20, %s' % (v(T), v(V.g), v(T)))
        a('v_and_b32 %s, 0x70, %s' % (v(T+1), v(V.l16)))
        a('v_add_u32 %s, %s, %s' % (v(V.Xoff), v(T), v(T+1)))
        a('s_lshl4_add_u32 %s, %s, %s' % (sA, sW, sSB))
        a('s_lshl4_add_u32 %s, %s, %s' % (sA, sA, sCB))
        a('s_lshl_b32 %s, %s, 7' % (sO[0], sA))
        for r in range(1, 4): a('s_add_u32 %s, %s, 0x%x' % (sO[r], sO[0], r*262144))
        a('s_lshl3_add_u32 %s, s2, %s' % (sId, sW))
        a('s_xor_b32 %s, %s, %d' % (sCh, sId, 8*int(self.o['qg'])+int(self.o['qw']))); a('s_and_b32 %s, %s, 0xffffff3f' % (sCh, sCh))
    def srds(self):
        a = self.a
        a('s_mov_b32 s10, 2101248'); a('s_mov_b32 s11, 0x20000')
        a('s_mov_b32 s14, 2101248'); a('s_mov_b32 s15, 0x20000')
        a('s_mov_b32 s18, 0x800000'); a('s_mov_b32 s19, 0x20000')
    def srds0(self):
        a = self.a
        a('s_mov_b32 s22, 256'); a('s_mov_b32 s23, 0x20000')
        a('s_mov_b32 s26, 0x%x' % ((80 if self.o['ts'] else 18) << 20)); a('s_mov_b32 s27, 0x20000')
        a('v_and_b32 %s, 15, %s' % (v(V.n), v(V.lane)))
        a('v_mov_b32 %s, 0' % v(V.zero)); a('v_mov_b32 %s, %d' % (v(V.cnt), CNT))

    def x_issue(self):
        for r in range(4):
            self.a('buffer_load_dwordx4 %s, %s, %s, %s offen %s' % (vr(V.L+4*r, 4), v(V.Xoff), SX, sO[r], self.o['ldx']))
    def probe(self):
        a = self.a; T = V.T; NB = int(self.o['nb']); ld = self.o['pld']
        a('s_bfe_u32 %s, s2, 0x10004' % sC)
        a('s_mul_i32 %s, %s, 0x12000' % (sA, sC)); a('s_add_u32 %s, %s, 0x%x' % (sA, sA, int(self.o['pb']) << 20))
        a('s_and_b32 %s, s2, 8' % sE)
        a('s_mul_i32 %s, %s, 0x4a20' % (sD, sE)); a('s_add_u32 %s, %s, %s' % (sA, sA, sD)); a('s_lshl_b32 %s, %s, 14' % (sD, sE))
        a('s_xor_b32 %s, %s, 0x2000' % (sB, sA))
        a('s_lshl_b32 %s, %s, 16' % (sF, sC)); a('s_add_u32 %s, %s, %s' % (sD, sD, sF)); a('s_add_u32 %s, %s, 0x%x' % (sD, sD, WS_FLAG))
        a('s_lshl_b32 %s, %s, 4' % (sE, sE)); a('s_xor_b32 %s, %s, 0x80' % (sE, sE))
        a('s_mov_b32 s26, 0x%x' % (18 << 20)); a('s_mov_b32 s27, 0x20000')
        a('s_lshl_b32 %s, %s, 3' % (sC, sC))
        a('v_mul_u32_u24 %s, 0x5080, %s' % (v(T), v(V.lane)))
        a('v_lshlrev_b32 %s, 10, %s' % (v(T+1), v(V.lane)))
        a('v_mov_b32 %s, 0' % v(T+2))
        if not ld:
            for k in range(2*NB): a('v_mov_b32 %s, 0' % v(V.DA+k))
        a('s_mov_b64 exec, %s' % self.o['pex'])
        if 'da' in self.o: a('s_waitcnt lgkmcnt(0)'); a('s_mov_b32 s60, s56'); a('s_mov_b32 s58, s56')
        a('s_waitcnt lgkmcnt(0)')
        for side, base in enumerate((sA, sB)):
            for k in range(NB):
                if ld: a('buffer_load_dword %s, %s, %s, %s offen offset:%d %s' % (v(V.DA+side*NB+k), v(T), SWS, base, k*0x600, ld))
                else: a('buffer_atomic_add %s, %s, %s, %s offen offset:%d sc0 sc1' % (v(V.DA+side*NB+k), v(T), SWS, base, k*0x600))
        a('s_mov_b64 exec, -1')
        a('buffer_store_dword %s, %s, %s, %s offen sc1' % (v(T+2), v(T+1), SWS, sD))
        if self.o['pre']: a('s_load_dword s95, s[20:21], %s' % self.o['preoff'])
        self.x_issue()
        a('s_waitcnt vmcnt(%d)' % (NB+5))
        for x in self.o['pnop'].split(','): a('s_nop %s' % x)
        a('s_getreg_b32 %s, hwreg(HW_REG_IB_STS, 0, 4)' % sA)
        a('s_or_b32 %s, %s, 16' % (sA, sA)); a('s_lshl_b32 s94, %s, %s' % (sA, sC))
        if self.o['merge']: a('s_waitcnt vmcnt(4)')
        a('s_atomic_or s94, s[20:21], %s' % sE)
        self.mark('pub')
    def clear_done(self):
        a = self.a
        if self.o['merge']: return
        def f():
            a('s_mov_b32 s93, 1'); a('s_waitcnt vmcnt(4)')
            a('s_atomic_add s93, s[20:21], 0x0')
        self.cond(sCh, 0, f)
    def ready_check(self):
        a = self.a; l0, l1 = self.label('rdy'), self.label('rdyok')
        a('s_cmp_ge_u32 %s, 2' % sRv)
        a('s_cbranch_scc1 %s' % l1)
        a('s_mov_b32 %s, 0' % sCnt)
        a(l0+':')
        a('buffer_load_dword %s, %s, %s, 0 offen sc1' % (v(V.tmp), v(V.zero), SDBG))
        a('s_add_u32 %s, %s, 1' % (sCnt, sCnt))
        a('s_cmp_gt_u32 %s, 0x%x' % (sCnt, SPIN_MAX))
        a('s_waitcnt vmcnt(0)')
        a('s_cbranch_scc1 %s' % l1)
        a('v_cmp_gt_u32 vcc, 2, %s' % v(V.tmp))
        a('s_cbranch_vccnz %s' % l0)
        a(l1+':')
    def side_load(self, off=128):
        self.a('buffer_load_dword %s, %s, %s, 0 offen offset:%d sc1' % (v(V.tmp), v(V.zero), SDBG, off))
    def side_poll(self, off, dst):
        a = self.a; lp, ok = self.label('sw'), self.label('swok')
        a('s_mov_b32 %s, 0' % sCnt)
        a(lp+':')
        a('s_waitcnt vmcnt(0)')
        a('v_readfirstlane_b32 %s, %s' % (sA, v(V.tmp)))
        a('s_and_b32 %s, %s, 0x1010' % (sB, sA)); a('s_cmp_eq_u32 %s, 0x1010' % sB)
        a('s_cbranch_scc1 %s' % ok)
        self.side_load(off)
        a('s_add_u32 %s, %s, 1' % (sCnt, sCnt))
        a('s_cmp_lt_u32 %s, 0x%x' % (sCnt, SPIN_MAX))
        a('s_cbranch_scc1 %s' % lp)
        a('s_waitcnt vmcnt(0)')
        a(ok+':')
        a('s_and_b32 %s, %s, 15' % (sB, sA)); a('s_bfe_u32 %s, %s, 0x40008' % (sA, sA))
        a('s_sub_i32 %s, %s, %s' % (dst, sA, sB))
    def side_wait(self):
        a = self.a
        def f():
            l = self.label('clean')
            if self.o['force'] != '':
                a('ds_write2_b32 %s, %s, %s offset0:0 offset1:1' % (v(V.cnt), v(V.zero), v(V.zero))); return
            self.side_poll(128, sC)
            a('s_abs_i32 %s, %s' % (sA, sC)); a('s_cmp_ge_u32 %s, 2' % sA); a('s_cbranch_scc1 %s' % l)
            self.side_load(0)
            self.side_poll(0, sD)
            a('s_add_i32 %s, %s, %s' % (sC, sC, sD))
            a(l+':')
            a('s_cmp_gt_i32 %s, 0' % sC); a('s_cselect_b32 %s, 0x2000, 0' % sA)
            if self.o['ts']: a('s_add_u32 %s, %s, 0x80' % (sC, sC)); a('s_or_b32 %s, %s, %s' % (sA, sA, sC))
            a('v_mov_b32 %s, %s' % (v(V.tmp), sA))
            a('ds_write2_b32 %s, %s, %s offset0:0 offset1:1' % (v(V.cnt), v(V.tmp), v(V.zero)))
        self.cond(sW, PW, f)
    def side_use(self):
        a = self.a
        a('v_readfirstlane_b32 %s, %s' % (sCh, v(V.tmp)))
        if self.o['ts']: a('s_mov_b32 s%d, %s' % (sTS+24, sCh)); a('s_and_b32 %s, %s, 0x2000' % (sCh, sCh))
        if 'enc' in self.o: a('s_lshr_b32 s62, %s, 13' % sCh)
        if self.o['force'] != '': a('s_mov_b32 %s, %d' % (sCh, int(self.o['force']) << 13))
        a('s_xor_b32 %s, %s, %s' % (sEst, sEst, sCh))
    def flag_addrs(self):
        a = self.a
        a('s_lshr_b32 %s, %s, 4' % (sB, sT))
        a('s_lshl_b32 %s, %s, 13' % (sA, sP)); a('s_add_u32 %s, %s, 0x%x' % (sA, sA, WS_FLAG))
        for dst, wp, gr in ((sF, sW, sB), (sE, sB, sW)):
            a('s_lshl4_add_u32 %s, %s, %s' % (sC, wp, gr)); a('s_lshl_b32 %s, %s, 10' % (sC, sC))
            a('s_add_u32 %s, %s, %s' % (dst, sC, sA))
        R = int(self.o['rep'])
        if R > 1:
            a('s_and_b32 %s, %s, %d' % (sC, sT, R-1)); a('s_lshl_b32 %s, %s, 8' % (sC, sC)); a('s_add_u32 %s, %s, %s' % (sE, sE, sC))
    def side_apply(self):
        for r in (sF, sE, sEld): self.a('s_xor_b32 %s, %s, %s' % (r, r, sCh))
    def arrive(self):
        for r in range(int(self.o['rep'])): self.a('s_atomic_add %s, s[24:25], %s offset:%d' % (sInc, sF, 256*r))
    def poll(self, ex, under=None):
        a = self.a; lp, ok = self.label('poll'), self.label('pollok')
        if under:
            a('s_mov_b32 %s, 0' % sRv)
            a('s_atomic_add %s, s[24:25], %s glc' % (sRv, sE))
            under()
            a('s_waitcnt lgkmcnt(0)')
            a('s_bitcmp1_b32 %s, %d' % (sRv, 4+16*ex))
            a('s_cbranch_scc1 %s' % ok)
        a('s_mov_b32 %s, 0' % sCnt)
        a(lp+':')
        a('s_mov_b32 %s, 0' % sRv)
        a('s_atomic_add %s, s[24:25], %s glc' % (sRv, sE))
        a('s_add_u32 %s, %s, 1' % (sCnt, sCnt))
        a('s_cmp_gt_u32 %s, 0x%x' % (sCnt, SPIN_MAX))
        a('s_waitcnt lgkmcnt(0)')
        a('s_cbranch_scc1 %s' % ok)
        if self.o['slp']:
            a('s_bitcmp1_b32 %s, %d' % (sRv, 4+16*ex))
            a('s_cbranch_scc1 %s' % ok)
            if self.o['sthr']:
                a('s_bfe_u32 %s, %s, 0x%x' % (sA, sRv, 0x50000+16*ex))
                a('s_cmp_ge_u32 %s, %s' % (sA, self.o['sthr'])); a('s_cbranch_scc1 %s' % lp)
            a('s_sleep %s' % self.o['slp'])
            a('s_branch %s' % lp)
        else:
            a('s_bitcmp0_b32 %s, %d' % (sRv, 4+16*ex))
            a('s_cbranch_scc1 %s' % lp)
        a(ok+':')
    def ex_addrs(self):
        a = self.a; T = V.T
        a('s_lshl_b32 %s, %s, 4' % (sB, sW)); a('s_xor_b32 %s, %s, %s' % (sB, sB, sT)); a('s_lshl_b32 %s, %s, 8' % (sB, sB))
        a('v_lshlrev_b32 %s, 4, %s' % (v(T), v(V.n)))
        a('v_lshl_add_u32 %s, %s, 10, %s' % (v(T), v(V.g), v(T)))
        a('v_xor_b32 %s, %s, %s' % (v(T), sB, v(T)))
        a('v_and_b32 %s, 0x6000, %s' % (v(T+1), v(T)))
        a('v_add_u32 %s, %s, %s' % (v(T), v(T), v(T+1)))
        a('v_lshl_add_u32 %s, %s, 18, %s' % (v(V.Est), v(V.g), v(T)))
        a('v_and_b32 %s, 0xdcff, %s' % (v(V.Eld), v(T)))
        a('s_bfe_u32 %s, %s, 0x10001' % (sA, sW)); a('s_xor_b32 %s, %s, %s' % (sA, sA, sP))
        a('s_bfe_u32 %s, %s, 0x10005' % (sC, sT)); a('s_xor_b32 %s, %s, %s' % (sC, sC, sP))
        a('s_lshl_b32 %s, %s, 7' % (sEst, sW)); a('s_add_u32 %s, %s, %s' % (sEst, sEst, sA)); a('s_lshl_b32 %s, %s, 13' % (sEst, sEst))
        a('s_lshl3_add_u32 %s, %s, %s' % (sEld, sT, sC)); a('s_lshl_b32 %s, %s, 13' % (sEld, sEld))

    def trig(self, x, re, im, conj_re=None, conj_im=None):
        a = self.a; c, s = V.T+8, V.T+9
        a('v_cos_f32 %s, %s' % (v(c), v(x)))
        a('v_sin_f32 %s, %s' % (v(s), v(x)))
        if getattr(self, 'fill', None): self.fill(); self.fill = None
        a('v_cvt_pk_bf16_f32 %s, %s, %s' % (v(re), v(c), v(s)))
        a('v_cvt_pk_bf16_f32 %s, -%s, %s' % (v(im), v(s), v(c)))
        if conj_re is not None:
            a('v_xor_b32 %s, 0x80000000, %s' % (v(conj_re), v(re)))
            a('v_xor_b32 %s, 0x8000, %s' % (v(conj_im), v(im)))
    def ladder(self, x, step, regs):
        a = self.a
        for k, r in enumerate(regs):
            if k < len(regs)-1: self.fill = lambda: a('v_add_f32 %s, %s, %s' % (v(x), v(x), v(step)))
            self.trig(x, *r)
    def gen_F16(self):
        a = self.a; T = V.T
        a('v_cvt_f32_u32 %s, %s' % (v(T), v(V.n)))
        a('v_cvt_f32_u32 %s, %s' % (v(T+1), v(V.g)))
        a('v_mul_f32 %s, %s, %s' % (v(T), lit(1/16), v(T)))
        a('v_mul_f32 %s, 4.0, %s' % (v(T+1), v(T+1)))
        a('v_mul_f32 %s, %s, %s' % (v(T+2), v(T), v(T+1)))
        self.ladder(T+2, T, [(V.F16+r, V.F16+4+r) for r in range(4)])
    def gen_M2(self):
        a = self.a; T = V.T
        def normal():
            a('v_cvt_f32_u32 %s, %s' % (v(T+2), sW))
            a('v_fmac_f32 %s, %s, %s' % (v(T), lit(1/256), v(T+2)))
            a('v_mul_f32 %s, %s, %s' % (v(T+2), v(T), v(T+1)))
            self.ladder(T+2, T, [(V.M2+r, V.M2+4+r, V.M2+8+r, V.M2+12+r) for r in range(4)])
        def w0():
            a('v_lshrrev_b32 %s, 1, %s' % (v(T), v(V.n)))
            a('v_cvt_f32_u32 %s, %s' % (v(T), v(T)))
            a('v_lshlrev_b32 %s, 31, %s' % (v(T+3), v(V.n)))
            a('v_add_f32 %s, 0.5, %s' % (v(T+4), v(T)))
            a('v_xor_b32 %s, %s, %s' % (v(T+3), lit(1/16), v(T+3)))
            a('v_cmp_ne_u32 vcc, 1, %s' % v(V.n))
            a('v_mul_f32 %s, %s, %s' % (v(T), v(T), v(T+3)))
            a('v_mul_f32 %s, %s, %s' % (v(T+4), v(T+4), v(T+3)))
            a('v_cndmask_b32 %s, 0.5, %s, vcc' % (v(T), v(T)))
            for ts in range(2):
                d = T+4*ts
                a('v_mul_f32 %s, %s, %s' % (v(T+2), v(d), v(T+1)))
                self.ladder(T+2, d, [(V.M2+8*ts+r, V.M2+8*ts+4+r) for r in range(4)])
        self.ifelse(sW, 0, w0, normal)
    def gen_M3(self):
        a = self.a; T = V.T
        a('v_cvt_f32_u32 %s, %s' % (v(T), v(V.n)))
        a('v_mul_f32 %s, %s, %s' % (v(T+1), lit(1/256), v(T)))
        a('v_mul_f32 %s, %s, %s' % (v(T), lit(1/16), v(T)))
        def normal():
            a('v_lshl_add_u32 %s, %s, 6, %s' % (v(T+2), v(V.g), sW))
            a('v_cvt_f32_u32 %s, %s' % (v(T+2), v(T+2)))
            a('v_mul_f32 %s, %s, %s' % (v(T+2), v(T+2), v(T+1)))
            self.ladder(T+2, T, [(V.M2+r, V.M2+4+r, V.M2+8+r, V.M2+12+r) for r in range(4)])
        def w0():
            a('v_lshlrev_b32 %s, 5, %s' % (v(T+2), v(V.g)))
            a('v_cvt_f32_u32 %s, %s' % (v(T+2), v(T+2)))
            a('v_mul_f32 %s, 0.5, %s' % (v(T), v(T)))
            a('v_mul_f32 %s, %s, %s' % (v(T+2), v(T+2), v(T+1)))
            regs = []
            for k in range(4):
                b = V.M2+8*(k & 1)+2*(k >> 1)
                regs.append((b, b+4, b+1, b+5))
            self.ladder(T+2, T, regs)
            a('s_mov_b64 exec, 0xffff')
            a('v_lshlrev_b32 %s, 15, %s' % (v(T+2), v(V.n)))
            a('v_and_b32 %s, 0x8000, %s' % (v(T+2), v(T+2)))
            a('v_or_b32 %s, 0x3f80, %s' % (v(V.M2+1), v(T+2)))
            a('v_lshlrev_b32 %s, 16, %s' % (v(V.M2+5), v(V.M2+1)))
            a('s_mov_b64 exec, -1')
        self.ifelse(sW, 0, w0, normal)
    def sigma_lane(self, dst):
        a = self.a; t = V.T+7
        a('v_and_b32 %s, 17, %s' % (v(dst), v(V.lane)))
        a('v_bfe_u32 %s, %s, 2, 2' % (v(t), v(V.lane)))
        a('v_lshl_add_u32 %s, %s, 1, %s' % (v(dst), v(t), v(dst)))
        a('v_and_b32 %s, 2, %s' % (v(t), v(V.lane)))
        a('v_lshl_add_u32 %s, %s, 2, %s' % (v(dst), v(t), v(dst)))
    def coop_gen(self):
        a = self.a; T = V.T; X = V.DA
        self.sigma_lane(T)
        a('v_lshrrev_b32 %s, 5, %s' % (v(T+1), v(V.lane)))
        a('v_lshlrev_b32 %s, 7, %s' % (v(T+2), v(T+1)))
        a('v_lshl_add_u32 %s, %s, 1, %s' % (v(T+2), v(T), v(T+2)))
        a('s_and_b32 %s, %s, 2' % (sD, sKP)); a('s_sub_u32 %s, %s, %s' % (sD, sWL, sD))
        a('v_add_u32 %s, %s, %s' % (v(V.WP), sD, v(T+2)))
        a('s_add_u32 %s, %s, %d' % (sD, sD, 1024-832))
        a('v_sub_u32 %s, %s, %s' % (v(V.WM), sD, v(T+2)))
        a('v_cvt_f32_u32 %s, %s' % (v(T), v(T)))
        a('s_mul_i32 %s, %s, 4' % (sA, sW)); a('s_lshr_b32 %s, 0x75643120, %s' % (sA, sA)); a('s_and_b32 %s, %s, 7' % (sA, sA)); a('s_lshl_b32 %s, %s, 2' % (sA, sA))
        a('v_lshl_add_u32 %s, %s, 1, %s' % (v(T+1), v(T+1), sA))
        a('v_mul_f32 %s, %s, %s' % (v(T), lit(1/2048), v(T)))
        a('v_cvt_f32_u32 %s, %s' % (v(T+1), v(T+1)))
        a('v_mul_f32 %s, %s, %s' % (v(T+2), v(T+1), v(T)))
        for e in range(2):
            a('v_cos_f32 %s, %s' % (v(T+5), v(T+2)))
            a('v_sin_f32 %s, %s' % (v(T+6), v(T+2)))
            a('v_rcp_f32 %s, %s' % (v(T+5), v(T+5)))
            a('v_mul_f32 %s, %s, %s' % (v(T+3), lit(64.0), v(T+2)))
            a('v_mul_f32 %s, %s, %s' % (v(X+4+e), v(T+6), v(T+5)))
            a('v_fma_f32 %s, %s, %s, 1.0' % (v(T+5), v(X+4+e), v(X+4+e)))
            a('v_rcp_f32 %s, %s' % (v(T+6), v(T+5)))
            a('v_mul_f32 %s, -2.0, %s' % (v(T+4), v(X+4+e)))
            a('v_fma_f32 %s, -%s, %s, 1.0' % (v(T+5), v(T+5), v(T+6)))
            a('v_fmac_f32 %s, %s, %s' % (v(T+6), v(T+5), v(T+6)))
            a('v_mul_f32 %s, %s, %s' % (v(X+6+e), v(T+6), v(T+4)))
            if e == 0: self.fill = lambda: a('v_add_f32 %s, %s, %s' % (v(T+2), v(T+2), v(T)))
            self.trig(T+3, X+e, X+2+e)
        a('s_lshr_b32 %s, %s, 1' % (sA, sW)); a('s_lshl_b32 %s, %s, 7' % (sA, sA))
        a('s_and_b32 %s, %s, 1' % (sB, sW)); a('s_add_u32 %s, %s, %s' % (sA, sA, sB))
        a('s_lshl3_add_u32 %s, %s, %d' % (sA, sA, TABL))
        a('v_add_u32 %s, %s, %s' % (v(T), sA, v(V.l16)))
        for k in range(4): a('ds_write_b64 %s, %s offset:%d' % (v(T), vr(X+2*k, 2), 4096*k))
    def coop_post(self):
        a = self.a
        a('v_mov_b32 %s, 1' % v(V.T+1))
        a('ds_add_u32 %s, %s offset:4' % (v(V.cnt), v(V.T+1)))
    def coop_wait(self):
        a = self.a; T = V.T; lp, ok = self.label('cw'), self.label('cwok')
        a('s_mov_b32 %s, 0' % sCnt)
        a(lp+':')
        a('ds_read_b32 %s, %s offset:4' % (v(T), v(V.cnt)))
        a('s_add_u32 %s, %s, 1' % (sCnt, sCnt))
        a('s_cmp_gt_u32 %s, 0x%x' % (sCnt, SPIN_MAX*4))
        a('s_waitcnt lgkmcnt(0)')
        a('s_cbranch_scc1 %s' % ok)
        a('v_cmp_gt_u32 vcc, 0x200, %s' % v(T))
        a('s_cbranch_vccnz %s' % lp)
        a(ok+':')
    def coop_read(self):
        a = self.a; T = V.T
        a('v_add_u32 %s, %d, %s' % (v(T), TABL, v(V.l16)))
        for k in range(16): a('ds_read_b128 %s, %s offset:%d' % (vr(V.F32+4*k, 4), v(T), 1024*k))
    def calc_k0(self):
        a = self.a
        a('s_lshr_b32 %s, %s, 4' % (sA, sT)); a('s_and_b32 %s, %s, 15' % (sB, sT))
        a('s_lshl4_add_u32 %s, %s, %s' % (sK0, sB, sA))
        a('s_and_b32 %s, %s, 12' % (sC, sB)); a('s_bfe_u32 %s, %s, 0x10001' % (sD, sB)); a('s_add_u32 %s, %s, %s' % (sC, sC, sD))
        a('s_and_b32 %s, %s, 1' % (sD, sB)); a('s_lshl1_add_u32 %s, %s, %s' % (sC, sD, sC)); a('s_lshl_b32 %s, %s, 3' % (sC, sC))
        a('s_cmp_eq_u32 %s, 0' % sA); a('s_cselect_b32 %s, %s, %s' % (sK0, sC, sK0))
        a('s_cmp_eq_u32 %s, 0' % sT); a('s_cselect_b32 %s, 7, 8' % sA)
        a('s_lshl_b32 %s, %s, %s' % (sKP, sW, sA)); a('s_add_u32 %s, %s, %s' % (sKP, sKP, sK0))
        a('s_sub_u32 %s, 0x800, %s' % (sKM, sKP))
        a('s_cmp_eq_u32 %s, 0' % sKP)
        a('s_cselect_b32 %s, 0x400, %s' % (sKM, sKM)); a('s_cselect_b32 %s, 1, 0' % sSpec)
        a('s_mul_i32 %s, %s, 1026' % (sKP, sKP)); a('s_mul_i32 %s, %s, 1026' % (sKM, sKM))
        a('s_mul_i32 %s, %s, 4224' % (sWL, sW)); a('s_add_u32 %s, %s, %d' % (sWL, sWL, WL))
        a('s_and_b32 %s, %s, 2' % (sA, sKP))
        a('s_add_u32 %s, %s, %s' % (sDP, sKP, sA)); a('s_add_u32 %s, %s, %s' % (sDM, sKM, sA))
    def gen_B(self):
        a = self.a; T = V.T; c, s = T+8, T+9
        a('v_lshrrev_b32 %s, 1, %s' % (v(T), v(V.n)))
        a('v_cvt_f32_u32 %s, %s' % (v(T+2), v(V.g)))
        a('v_and_b32 %s, 1, %s' % (v(T+3), v(V.n)))
        a('v_add_f32 %s, %s, %s' % (v(T+2), v(T+2), v(T+2)))
        def normal():
            a('v_lshl_add_u32 %s, %s, 8, %s' % (v(T+1), v(T), sK0))
            a('v_lshlrev_b32 %s, 4, %s' % (v(T+4), v(T+3)))
            a('v_cvt_f32_u32 %s, %s' % (v(T+1), v(T+1)))
            a('v_lshlrev_b32 %s, 31, %s' % (v(T+6), v(V.n)))
            a('v_cvt_f32_u32 %s, %s' % (v(T+3), v(T+3)))
            a('v_mul_f32 %s, %s, %s' % (v(T+1), lit(1/2048), v(T+1)))
            a('s_brev_b32 %s, 1' % sA)
            a('v_lshrrev_b32 %s, %s, %s' % (v(T+4), v(T+4), sA))
            a('v_mul_f32 %s, %s, %s' % (v(T+5), v(T+1), v(T+2)))
            a('v_fmac_f32 %s, %s, %s' % (v(T+5), lit(0.25), v(T+3)))
            for sbb in range(2):
                if sbb == 0: self.fill = lambda: a('v_add_f32 %s, %s, %s' % (v(T+5), v(T+5), v(T+1)))
                else: self.fill = lambda: a('v_cvt_f32_u32 %s, %s' % (v(T), v(T)))
                self.trig(T+5, V.B+2*sbb, V.B+6+2*sbb)
                a('v_xor_b32 %s, %s, %s' % (v(V.B+2*sbb+1), v(V.B+2*sbb), v(T+4)))
                a('v_xor_b32 %s, %s, %s' % (v(V.B+6+2*sbb+1), v(V.B+6+2*sbb), v(T+4)))
            a('v_lshl_add_u32 %s, %s, 9, %s' % (v(T+1), v(V.g), sK0))
            a('v_xor_b32 %s, %s, %s' % (v(T), v(T), v(T+6)))
            a('v_cvt_f32_u32 %s, %s' % (v(T+1), v(T+1)))
            a('v_mul_f32 %s, 0.5, %s' % (v(T+5), v(T+3)))
            a('v_mul_f32 %s, %s, %s' % (v(T+1), lit(1/2048), v(T+1)))
            a('v_fmac_f32 %s, %s, %s' % (v(T+5), v(T+1), v(T)))
            for ii in range(2):
                a('v_cos_f32 %s, %s' % (v(c), v(T+5)))
                a('v_sin_f32 %s, %s' % (v(s), v(T+5)))
                a('v_mul_f32 %s, %s, %s' % (v(c), lit(SC), v(c)))
                a('v_mul_f32 %s, %s, %s' % (v(s), lit(SC), v(s)))
                if ii == 0: a('v_fmac_f32 %s, %s, %s' % (v(T+5), lit(0.125), v(T)))
                a('v_cvt_pk_bf16_f32 %s, %s, %s' % (v(T+1), v(c), v(s)))
                a('v_cvt_pk_bf16_f32 %s, -%s, %s' % (v(T+2), v(s), v(c)))
                a('v_xor_b32 %s, %s, %s' % (v(V.Bp+2*ii), v(T+1), v(T+6)))
                a('v_xor_b32 %s, %s, %s' % (v(V.Bp+4+2*ii), v(T+2), v(T+6)))
                a('v_xor_b32 %s, %s, %s' % (v(V.Bp+2*ii+1), v(T+2), v(T+6)))
                a('v_xor_b32 %s, 0x80008000, %s' % (v(V.Bp+4+2*ii+1), v(V.Bp+2*ii)))
        def special():
            a('v_cvt_f32_u32 %s, %s' % (v(T+1), v(T)))
            a('v_mul_f32 %s, %s, %s' % (v(T+1), lit(1/16), v(T+1)))
            a('v_lshlrev_b32 %s, 4, %s' % (v(T+4), v(T+3)))
            a('v_cmp_eq_u32 s[84:85], 0, %s' % v(T))
            a('v_and_b32 %s, 1, %s' % (v(T+6), v(T)))
            a('v_cmp_eq_u32 s[86:87], 1, %s' % v(T+6))
            a('v_mul_f32 %s, %s, %s' % (v(T+5), v(T+1), v(T+2)))
            for sbb in range(2):
                a('v_cos_f32 %s, %s' % (v(c), v(T+5)))
                a('v_sin_f32 %s, %s' % (v(s), v(T+5)))
                a('v_mul_f32 %s, 2.0, %s' % (v(c), v(c)))
                a('v_mul_f32 %s, -2.0, %s' % (v(s), v(s)))
                a('v_cndmask_b32 %s, %s, 1.0, s[84:85]' % (v(c), v(c)))
                a('v_cndmask_b32 %s, %s, %s, s[84:85]' % (v(s), v(s), '-1.0' if sbb else '1.0'))
                for src, dst in ((c, V.B+2*sbb), (s, V.B+6+2*sbb)):
                    a('v_cvt_pk_bf16_f32 %s, %s, 0' % (v(T+7), v(src)))
                    a('v_lshlrev_b32 %s, %s, %s' % (v(T+7), v(T+4), v(T+7)))
                    a('v_cndmask_b32 %s, %s, 0, s[86:87]' % (v(dst), v(T+7)))
                    a('v_cndmask_b32 %s, 0, %s, s[86:87]' % (v(dst+1), v(T+7)))
                a('v_add_f32 %s, %s, %s' % (v(T+5), v(T+5), v(T+1)))
            a('v_cmp_eq_u32 s[88:89], 0, %s' % v(V.g))
            a('v_cmp_eq_u32 s[90:91], 1, %s' % v(T+3))
            a('v_lshlrev_b32 %s, 31, %s' % (v(T+6), v(T)))
            a('v_xor_b32 %s, %s, %s' % (v(T+6), lit(SC), v(T+6)))
            a('v_mov_b32 %s, %s' % (v(T+4), lit(SC)))
            a('v_mul_f32 %s, %s, %s' % (v(T+5), v(T+1), v(T+2)))
            for ii in range(2):
                a('v_cos_f32 %s, %s' % (v(c), v(T+5)))
                a('v_sin_f32 %s, %s' % (v(s), v(T+5)))
                a('v_mul_f32 %s, %s, %s' % (v(c), lit(2*SC), v(c)))
                a('v_mul_f32 %s, %s, %s' % (v(s), lit(-2*SC), v(s)))
                if ii == 0:
                    a('v_cndmask_b32 %s, %s, %s, s[88:89]' % (v(c), v(c), v(T+4)))
                    a('v_cndmask_b32 %s, %s, %s, s[88:89]' % (v(s), v(s), v(T+6)))
                a('v_cvt_pk_bf16_f32 %s, %s, %s' % (v(T+7), v(s), v(c)))
                if ii: a('v_cndmask_b32 %s, 0, %s, s[90:91]' % (v(T+7), v(T+7)))
                else: a('v_cndmask_b32 %s, %s, 0, s[90:91]' % (v(T+7), v(T+7)))
                a('v_mov_b32 %s, 0' % v(V.Bp+2*ii)); a('v_mov_b32 %s, %s' % (v(V.Bp+2*ii+1), v(T+7)))
                a('v_mov_b32 %s, %s' % (v(V.Bp+4+2*ii), v(T+7))); a('v_mov_b32 %s, 0' % v(V.Bp+4+2*ii+1))
                a('v_add_f32 %s, %s, %s' % (v(T+5), v(T+5), v(T+1)))
        self.far(sT, 0, special, normal)
        for d, r in ((4, 0), (5, 1), (10, 6), (11, 7)): a('v_mov_b32 %s, %s' % (v(V.B+d), v(V.B+r)))

    def wq(self, rho): return (rho & 1) + 8*((rho >> 1) & 1) + 4*((rho >> 2) & 1)
    def w_dma1(self, i):
        a = self.a
        srd, so = [(SWR, sDP), (SWI, sDP), (SWR, sDM), (SWI, sDM)][i]
        a('s_add_u32 m0, %s, %d' % (sWL, 1056*i))
        a('buffer_load_dwordx4 %s, %s, %s offen %s lds' % (v(V.l16), srd, so, self.o['ldw']))
    def w_dma(self):
        for i in range(4): self.w_dma1(i)
    def w_edge_load(self):
        a = self.a; T = V.T
        a('s_mov_b64 exec, 15')
        a('v_mov_b32 %s, %s' % (v(T), sKP)); a('v_mov_b32 %s, %s' % (v(T+1), sKM))
        a('s_mov_b64 vcc, 10')
        a('v_cndmask_b32 %s, %s, %s, vcc' % (v(T), v(T), v(T+1)))
        a('v_and_b32 %s, 2, %s' % (v(T+1), v(V.lane)))
        a('v_lshl_add_u32 %s, %s, 9, %s' % (v(T), v(T+1), v(T)))
        a('buffer_load_short_d16_hi %s, %s, %s, 0 offen' % (v(V.WF), v(T), SWR))
        a('buffer_load_short_d16_hi %s, %s, %s, 0 offen' % (v(V.WF+1), v(T), SWI))
        a('s_mov_b64 exec, -1')
    def w_edge_rl(self):
        for l in range(4):
            for im in range(2): self.a('v_readlane_b32 s%d, %s, %d' % (84+2*l+im, v(V.WF+im), l))
    def w_edge(self):
        a = self.a; T = V.T
        self.w_edge_rl()
        q = ((84, 86, 'add'), (85, 87, 'sub'), (90, 88, 'add'), (91, 89, 'sub'))
        for i, (x, y, op) in enumerate(q): a('v_mov_b32 %s, s%d' % (v(T+i), y))
        for i, (x, y, op) in enumerate(q): a('v_%s_f32 %s, s%d, %s' % (op, v(V.WF+i), x, v(T+i)))
        for i in range(4): a('v_mul_f32 %s, 0.5, %s' % (v(V.WF+i), v(V.WF+i)))
        a('s_mov_b64 s[92:93], 1')
    def w_read1(self, rho, im, dst=None, swap=False):
        dst = V.W if dst is None else dst
        if rho < 8: ad, off = V.WP, 64*self.wq(rho) + (2112 if swap else 0)
        else: ad, off = V.WM, 64*(13-self.wq(rho)) + (0 if swap else 2112)
        return 'ds_read_u16_d16_hi %s, %s offset:%d' % (v(dst+16*im+rho), v(ad), off+1056*im)
    def w_fix(self, half):
        return ['v_cndmask_b32 %s, %s, %s, s[92:93]' % (v(V.W+8*half+16*im), v(V.W+8*half+16*im), v(V.WF+2*half+im)) for im in range(2)]
    def w_special(self):
        a = self.a; T = V.T; X = V.DA
        def f():
            for sw, dst in ((False, V.W), (True, X)):
                for rho in range(16):
                    for im in range(2): a(self.w_read1(rho, im, dst, sw))
            a('s_waitcnt lgkmcnt(0) vmcnt(0)')
            self.w_edge_rl()
            a('s_mov_b64 exec, 1')
            for r in (V.W+16, V.W+24, X+16, X+24): a('v_mov_b32 %s, 0' % v(r))
            a('v_mov_b32 %s, s90' % v(V.W+8)); a('v_mov_b32 %s, s88' % v(X+8))
            a('s_mov_b64 exec, -1')
            for i in range(32):
                a('v_add_f32 %s, %s, %s' % (v(V.W+i), v(V.W+i), v(X+i)))
                if (i & 15) < 8: a('v_fma_f32 %s, -2.0, %s, %s' % (v(X+i), v(X+i), v(V.W+i)))
                else: a('v_fma_f32 %s, 2.0, %s, -%s' % (v(X+i), v(X+i), v(V.W+i)))
            a('v_add_u32 %s, %d, %s' % (v(T+1), SCR_B, v(V.l16)))
            for i in range(8): a('ds_write_b128 %s, %s offset:%d' % (v(T+1), vr(X+4*i, 4), 1024*i))
        self.far(sSpec, 1, f)

    def addrs1(self):
        a = self.a; T = V.T
        a('v_lshrrev_b32 %s, 3, %s' % (v(T), v(V.lane)))
        a('v_and_b32 %s, 0x30, %s' % (v(T+1), v(V.l16)))
        a('v_lshl_add_u32 %s, %s, 6, %s' % (v(T), v(T), v(T+1)))
        a('v_and_b32 %s, 4, %s' % (v(T+1), v(V.lane)))
        a('v_lshl_add_u32 %s, %s, 1, %s' % (v(V.TR), v(T+1), v(T)))
        a('v_xor_b32 %s, %s, %s' % (v(T), sSB, v(V.lane)))
        a('v_and_b32 %s, 1, %s' % (v(T), v(T)))
        a('v_mul_u32_u24 %s, 16448, %s' % (v(T), v(T)))
        a('v_lshl_add_u32 %s, %s, 12, %s' % (v(T), v(V.g), v(T)))
        a('v_lshl_add_u32 %s, %s, 2, %s' % (v(T), v(T+1), v(T)))
        a('v_and_b32 %s, 0x60, %s' % (v(T+1), v(V.TR)))
        a('s_lshr_b32 %s, %s, 1' % (sWp, sW)); a('s_and_b32 %s, %s, 1' % (sA, sW))
        a('s_lshl2_add_u32 %s, %s, %s' % (sWp, sA, sWp)); a('s_lshl_b32 %s, %s, 7' % (sWp, sWp))
        a('v_add3_u32 %s, %s, %s, %s' % (v(V.X0w), v(T), v(T+1), sWp))
        a('s_lshl_b32 %s, %s, 10' % (sA, sW))
        a('s_sub_u32 %s, 0x4000, %s' % (sB, sA))
        a('s_cmp_eq_u32 %s, 0' % sW); a('s_cselect_b32 %s, 0x2000, %s' % (sB, sB))
        a('v_add_u32 %s, %s, %s' % (v(V.X0r0), sA, v(V.TR)))
        a('v_add_u32 %s, %s, %s' % (v(V.X0r1), sB, v(V.TR)))
    def addrs2(self):
        a = self.a; T = V.T
        a('v_lshlrev_b32 %s, 4, %s' % (v(T), v(V.n)))
        a('v_lshl_add_u32 %s, %s, 13, %s' % (v(T), v(V.g), v(T)))
        a('s_lshl_b32 %s, %s, 9' % (sA, sW)); a('s_add_u32 %s, %s, %d' % (sA, sA, R1))
        a('v_add_u32 %s, %s, %s' % (v(V.X1w), sA, v(T)))
        a('s_lshl_b32 %s, %s, 12' % (sA, sW)); a('s_add_u32 %s, %s, %d' % (sA, sA, R1))
        a('v_add_u32 %s, %s, %s' % (v(V.X1r), sA, v(V.TR)))
        a('v_and_b32 %s, 16, %s' % (v(T), v(V.l16)))
        a('v_and_b32 %s, 2, %s' % (v(T+1), v(V.lane)))
        a('v_bfe_u32 %s, %s, 2, 1' % (v(T+2), v(V.lane)))
        a('v_add_u32 %s, %s, %s' % (v(T+1), v(T+1), v(T+2)))
        a('v_mul_u32_u24 %s, 8224, %s' % (v(T+1), v(T+1)))
        a('v_bfe_u32 %s, %s, 3, 2' % (v(T+2), v(V.lane)))
        a('v_lshl_add_u32 %s, %s, 11, %s' % (v(T), v(T+2), v(T)))
        a('v_and_b32 %s, 32, %s' % (v(T+2), v(V.lane)))
        a('v_add3_u32 %s, %s, %s, %s' % (v(T), v(T), v(T+1), v(T+2)))
        a('v_add_u32 %s, %s, %s' % (v(V.X2w), sWp, v(T)))
        a('s_and_b32 %s, %s, 1' % (sA, sW)); a('s_lshr_b32 %s, %s, 2' % (sB, sW)); a('s_lshl1_add_u32 %s, %s, %s' % (sA, sB, sA)); a('s_lshl_b32 %s, %s, 11' % (sA, sA))
        a('s_and_b32 %s, %s, 2' % (sB, sW)); a('s_mul_i32 %s, %s, 8224' % (sB, sB)); a('s_add_u32 %s, %s, %s' % (sA, sA, sB))
        a('v_add_u32 %s, %s, %s' % (v(V.X2r), sA, v(V.TR)))
    def addrs3(self):
        a = self.a; T = V.T
        a('v_and_b32 %s, 16, %s' % (v(T), v(V.lane)))
        a('v_and_b32 %s, 33, %s' % (v(T+1), v(V.lane)))
        a('v_lshl_add_u32 %s, %s, 5, %s' % (v(T), v(T+1), v(T)))
        a('v_and_b32 %s, 8, %s' % (v(T+1), v(V.lane)))
        a('v_lshl_add_u32 %s, %s, 9, %s' % (v(T), v(T+1), v(T)))
        a('v_and_b32 %s, 2, %s' % (v(T+1), v(V.lane)))
        a('v_and_b32 %s, 4, %s' % (v(T+2), v(V.lane)))
        a('v_mul_u32_u24 %s, 4104, %s' % (v(T+1), v(T+1)))
        a('v_mul_u32_u24 %s, 4112, %s' % (v(T+2), v(T+2)))
        a('v_add3_u32 %s, %s, %s, %s' % (v(T), v(T), v(T+1), v(T+2)))
        a('s_sub_u32 %s, 16, %s' % (sC, sW))
        a('s_cmp_eq_u32 %s, 0' % sW); a('s_cselect_b32 %s, 8, %s' % (sC, sC))
        for kl, dst in ((sW, V.X3w0), (sC, V.X3w1)):
            a('s_lshr_b32 %s, %s, 2' % (sA, kl)); a('s_and_b32 %s, %s, 1' % (sB, kl)); a('s_lshl1_add_u32 %s, %s, %s' % (sA, sA, sB))
            a('s_and_b32 %s, %s, 2' % (sB, kl)); a('s_lshl2_add_u32 %s, %s, %s' % (sA, sB, sA))
            a('s_lshl_b32 %s, %s, 6' % (sA, sA)); a('s_add_u32 %s, %s, %d' % (sA, sA, R1))
            a('v_add_u32 %s, %s, %s' % (v(dst), sA, v(T)))
        a('s_and_b32 %s, %s, 1' % (sA, sW)); a('s_mul_i32 %s, %s, 8208' % (sA, sA))
        a('s_and_b32 %s, %s, 2' % (sB, sW)); a('s_mul_i32 %s, %s, 8224' % (sB, sB)); a('s_add_u32 %s, %s, %s' % (sA, sA, sB))
        a('s_and_b32 %s, %s, 4' % (sB, sW)); a('s_lshl_b32 %s, %s, 10' % (sB, sB)); a('s_add_u32 %s, %s, %s' % (sA, sA, sB))
        a('s_add_u32 %s, %s, %d' % (sA, sA, R1))
        a('v_add_u32 %s, %s, %s' % (v(V.X3r), sA, v(V.TR)))
        a('v_and_b32 %s, 0x70, %s' % (v(T), v(V.l16)))
        a('v_lshlrev_b32 %s, 1, %s' % (v(V.Ooff), v(V.Xoff)))
        a('v_sub_u32 %s, %s, %s' % (v(V.Ooff), v(V.Ooff), v(T)))

    def mf16(self, d, A, B): return 'v_mfma_f32_16x16x32_bf16 %s, %s, %s, 0' % (vr(d, 4), vr(A, 4), vr(B, 4))
    def cvt(self, d, lo, hi): return 'v_cvt_pk_bf16_f32 %s, %s, %s' % (v(d), v(lo), v(hi))
    def mf32(self, d, i, pl, dataA):
        M = vr(V.F32+16*pl+4*i, 4); X = vr(V.O+4*i, 4)
        A, B = (X, M) if dataA else (M, X)
        D = vr(d+16*pl, 16)
        return 'v_mfma_f32_32x32x16_bf16 %s, %s, %s, %s' % (D, A, B, D if i else '0')
    def emit(self, L):
        for x in L: self.a(x)

    def p1(self):
        a = self.a; O, L, D, P = V.O, V.L, V.DA, V.DB
        for r in range(4):
            a('s_waitcnt vmcnt(%d)' % (3-r+(2 if self.o['e1'] else 0)))
            if r == 3:
                self.stamp()
                if self.o['spos'] == 'mid': self.cond(sW, PW, self.side_load)
            for t in range(4): a('v_mov_b32 %s, %s' % (v(O+4*t+r), v(L+4*r+t)))
        for t in range(4):
            a(self.mf16(D+4*t, V.F16, O+4*t)); a(self.mf16(D+16+4*t, V.F16+4, O+4*t))
        if self.o['spos'] == 'late': self.cond(sW, PW, self.side_load)
        def sp():
            self.srds()
            a('s_mov_b32 %s, 0' % sDP); a('s_mov_b32 %s, %d' % (sDM, 1024*1026)); a('s_mov_b32 %s, %d' % (sWL, WL))
            self.w_dma()
        a('s_or_b32 %s, %s, %s' % (sA, sT, sW))
        self.far(sA, 0, sp)
        for r in range(4):
            a(self.cvt(P+4*r, D+r, D+4+r)); a(self.cvt(P+4*r+2, D+16+r, D+20+r))
        for r in range(4):
            a(self.cvt(P+4*r+1, D+8+r, D+12+r)); a(self.cvt(P+4*r+3, D+24+r, D+28+r))
            a('ds_write_b128 %s, %s offset:%d' % (v(V.X0w), vr(P+4*r, 4), 1024*r))
        self.mark('g1a')
        self.side_wait()
        self.mark('g1b')
        a('s_waitcnt lgkmcnt(0)')
        a('s_barrier')
        for ti in range(4):
            for ii in range(2):
                a('ds_read_b64_tr_b16 %s, %s offset:%d' % (vr(O+4*ti+2*ii, 2), v(V.X0r1 if ti >> 1 else V.X0r0), (ti & 1)*16448+ii*512))
        a('ds_read_b32 %s, %s' % (v(V.tmp), v(V.cnt)))
        for ti in range(4):
            a('s_waitcnt lgkmcnt(%d)' % (7-2*ti))
            a(self.mf16(D+4*ti, V.M2+8*(ti >> 1), O+4*ti)); a(self.mf16(D+16+4*ti, V.M2+8*(ti >> 1)+4, O+4*ti))
        a('s_waitcnt lgkmcnt(0)')
        self.side_use()
        for r in range(4): a('s_add_u32 %s, %s, 0x%x' % (sO[r], sEst, WS_U[0] + r*65536))
        def st(i):
            if self.o['tag']: a('v_and_b32 %s, -2, %s' % (v(P+4*i), v(P+4*i)))
            a('buffer_store_dwordx4 %s, %s, %s, %s offen %s' % (vr(P+4*i, 4), v(V.Est), SWS, sO[i], self.o['st1']))
        def normal():
            for i in range(4):
                for k in range(4): a(self.cvt(P+4*i+2*(k & 1)+(k >> 1), D+4*k+i, D+16+4*k+i))
                st(i)
        def w0():
            for i in range(4):
                ts, eb = i >> 1, i & 1
                for tau in range(2):
                    for sg in range(2):
                        x = 4*(2*ts+tau)+2*eb+sg
                        a(self.cvt(P+4*i+2*tau+sg, D+x, D+16+x))
                st(i)
        self.ifelse(sW, 0, w0, normal)

    def stage(self, src, dst, dataA, kind, prio, pre=None):
        a = self.a; T = V.T
        if self.o['prio']: a('s_setprio %d' % prio)
        G = []
        for i in range(4):
            g = []
            if kind == 'tw':
                for st in range(3):
                    for r in range(4):
                        rho = 4*i+r; x, y = v(src+rho), v(src+16+rho)
                        g.append('v_fmac_f32 %s, %s, %s' % ((y, v(V.TW+16+rho), x) if st == 1 else (x, v(V.TW+rho), y)))
                for r in range(4): g.append(self.cvt(V.O+4*i+r, src+4*i+r, src+16+4*i+r))
            else:
                t = T+4*(i & 1)
                for r in range(4):
                    rho = 4*i+r
                    g.append('v_mul_f32 %s, %s, %s' % (v(t+r), v(src+rho), v(V.W+rho)))
                for r in range(4):
                    rho = 4*i+r
                    if rho < 8: g.append('v_fma_f32 %s, -%s, %s, %s' % (v(t+r), v(src+16+rho), v(V.W+16+rho), v(t+r)))
                    else: g.append('v_fmac_f32 %s, %s, %s' % (v(t+r), v(src+16+rho), v(V.W+16+rho)))
                for r in range(4):
                    rho = 4*i+r
                    g.append('v_mul_f32 %s, %s, %s' % (v(src+16+rho), v(src+16+rho), v(V.W+rho)))
                for r in range(4):
                    rho = 4*i+r
                    if rho < 8: g.append('v_fmac_f32 %s, %s, %s' % (v(src+16+rho), v(src+rho), v(V.W+16+rho)))
                    else: g.append('v_fma_f32 %s, -%s, %s, %s' % (v(src+16+rho), v(src+rho), v(V.W+16+rho), v(src+16+rho)))
                for r in range(4): g.append(self.cvt(V.O+4*i+r, src+16+4*i+r, t+r))
            G.append(g)
        W = [[self.w_read1(4*i+r, im) for im in range(2) for r in range(4)] for i in range(4)] if kind == 'w' else None
        if kind == 'w':
            a('s_waitcnt vmcnt(2) lgkmcnt(0)')
            self.emit(W[0]); self.emit(W[1])
        for i in range(4):
            g = list(G[i]); n = len(g)
            ins = {}
            if i:
                ins.setdefault(2, []).append(self.mf32(dst, i-1, 0, dataA))
                ins.setdefault(2+n//2, []).append(self.mf32(dst, i-1, 1, dataA))
            if kind == 'w':
                a('s_waitcnt lgkmcnt(%d)' % (8 if i < 3 else 0))
                if i in (0, 2): self.emit(self.w_fix(i >> 1))
                if i < 2:
                    if i == 0: ins.setdefault(3, []).append('s_waitcnt vmcnt(0)')
                    for k, x in enumerate(W[i+2]): ins.setdefault(3+2*k, []).append(x)
            for k, x in enumerate(g):
                self.emit(ins.get(k, []))
                a(x)
        a(self.mf32(dst, 3, 0, dataA)); a(self.mf32(dst, 3, 1, dataA))

    def p2(self):
        a = self.a; O, L, D, T = V.O, V.L, V.DA, V.T
        na = self.p2na
        for cbb in range(2):
            b = L+12*cbb
            a('s_waitcnt vmcnt(%d)' % (na+3-2*cbb))
            a('v_mov_b32 %s, %s' % (v(b+8), v(b))); a('v_mov_b32 %s, %s' % (v(b+9), v(b+1)))
            a('s_waitcnt vmcnt(%d)' % (na+2-2*cbb))
            if cbb:
                self.stamp(); self.mark('f0')
            for jj2 in (1, 0):
                ti = 2*cbb+jj2; op = b+2 if jj2 else b+6; mo = 0 if jj2 else 2
                a(self.mf16(D+4*ti, V.B+mo, op)); a(self.mf16(D+16+4*ti, V.B+6+mo, op))
        for cbb in range(2):
            for k1b in range(2):
                P = O+4*(2*cbb+k1b)
                for jj2 in (1, 0):
                    for pl in range(2):
                        x = D+16*pl+4*(2*cbb+jj2)+2*k1b
                        a(self.cvt(P+2*pl+jj2, x, x+1))
                a('ds_write_b128 %s, %s offset:%d' % (v(V.X1w), vr(P, 4), k1b*4096+cbb*256))
        self.mark('f1')
        a('s_waitcnt lgkmcnt(0)')
        self.mark('f2', True)
        a('s_barrier')
        self.mark('x1', True)
        if self.o['prio']: a('s_setprio 3')
        for i in range(4):
            for ii in range(2):
                a('ds_read_b64_tr_b16 %s, %s offset:%d' % (vr(O+4*i+2*ii, 2), v(V.X1r), ii*1024+(i & 1)*512+(i >> 1)*2048))
        rows = {'postX1': (0, 1, 2, 3), 'barh': (2, 3), 'bar': (), 'p2a': (2, 3), 'q2a': (1, 2, 3)}[self.o['wpos']]
        for i in range(4):
            if i < len(rows): self.w_dma1(rows[i])
            a('s_waitcnt lgkmcnt(%d)' % (6-2*i))
            a(self.mf32(V.DA, i, 0, True)); a(self.mf32(V.DA, i, 1, True))
        self.mark('f3')
        if self.o['tag']: self.arrive()
        self.stage(V.DA, V.DB, False, 'tw', 2)
        self.mark('f4', True)
        self.far(sSpec, 1, self.pw_special, lambda: self.stage(V.DB, V.DA, True, 'w', 1))
        self.mark('f5')
        if self.o['tag']:
            a('s_mov_b32 %s, 0' % sRv)
            a('s_atomic_add %s, s[24:25], %s glc' % (sRv, sE))
        self.stage(V.DA, V.DB, True, 'tw', 0)
        self.mark('f6')
        D = V.DB
        if not self.o['tag']:
            for r in range(4): a('s_add_u32 %s, %s, 0x%x' % (sO[r], sEst, WS_U[1] + r*65536))
        rho = lambda jj3, jj1, jj2, c: 4*(2*jj3+jj1)+2*jj2+c
        for pl in range(2):
            for k in range(4):
                c, jj1 = k >> 1, k & 1
                P = V.DA+4*k
                for jj3 in range(2):
                    a(self.cvt(P+2*pl+jj3, D+16*pl+rho(jj3, jj1, 0, c), D+16*pl+rho(jj3, jj1, 1, c)))
                if pl: a('ds_write_b128 %s, %s offset:%d' % (v(V.X2w), vr(P, 4), c*64+jj1*1024))
        self.mark('f7'); self.mark('x2')
        a('s_waitcnt lgkmcnt(0)')
        self.mark('f8', True)
        if self.o['tag']:
            l = self.label('free')
            a('s_bitcmp1_b32 %s, 20' % sRv); a('s_cbranch_scc1 %s' % l)
            self.poll(1)
            a(l+':')
        a('s_barrier')
        for ti in range(4):
            for ii in range(2):
                a('ds_read_b64_tr_b16 %s, %s offset:%d' % (vr(O+4*ti+2*ii, 2), v(V.X2r), ii*512+(ti & 1)*1024+(ti >> 1)*8224))
        D = V.DA; P = V.DB
        for ti in range(4):
            a('s_waitcnt lgkmcnt(%d)' % (6-2*ti))
            a(self.mf16(D+4*ti, V.Bp, O+4*ti)); a(self.mf16(D+16+4*ti, V.Bp+4, O+4*ti))
        self.mark('f9')
        for q in range(4):
            cbb, sbb = q >> 1, q & 1
            for jj1 in range(2):
                for hf in range(2):
                    x = 4*(2*cbb+jj1)+2*sbb+hf
                    a(self.cvt(P+4*q+2*jj1+hf, D+x, D+16+x))
                if self.o['tag'] and jj1 == 0: a('v_or_b32 %s, 1, %s' % (v(P+4*q), v(P+4*q)))
            a('buffer_store_dwordx4 %s, %s, %s, %s offen %s' % (vr(P+4*q, 4), v(V.Est), SWS, sO[q], self.o['st2']))
        self.mark('f10')

    def pw_special(self):
        a = self.a; T = V.T; O = V.O; C = V.DB; X = V.DA
        self.sigma_lane(T)
        a('v_lshrrev_b32 %s, 5, %s' % (v(T+1), v(V.lane)))
        a('v_lshlrev_b32 %s, 9, %s' % (v(T+1), v(T+1)))
        a('v_lshl_add_u32 %s, %s, 2, %s' % (v(T+2), v(T), v(T+1)))
        a('v_add_u32 %s, %d, %s' % (v(T+2), SCR, v(T+2)))
        a('v_add_u32 %s, 128, %s' % (v(T+3), v(T+2)))
        a('v_sub_u32 %s, 32, %s' % (v(T+4), v(T)))
        a('v_lshrrev_b32 %s, 5, %s' % (v(T+5), v(T+4)))
        a('v_and_b32 %s, 31, %s' % (v(T+4), v(T+4)))
        a('v_lshlrev_b32 %s, 2, %s' % (v(T+4), v(T+4)))
        a('v_lshl_add_u32 %s, %s, 8, %s' % (v(T+4), v(T+5), v(T+4)))
        a('v_sub_u32 %s, %s, %s' % (v(T+4), v(T+4), v(T+1)))
        a('v_add_u32 %s, %d, %s' % (v(T+4), SCR + 2*256, v(T+4)))
        a('v_add_u32 %s, 128, %s' % (v(T+5), v(T+4)))
        a('v_add_u32 %s, %d, %s' % (v(T+6), SCR_B, v(V.l16)))
        qs = lambda rho: sigma(8*(rho >> 2) + (rho & 3))
        for pl in range(2):
            for rho in range(0, 16, 2):
                a('ds_write2st64_b32 %s, %s, %s offset0:%d offset1:%d' % (v(T+2+pl), v(C+16*pl+rho), v(C+16*pl+rho+1), qs(rho), qs(rho+1)))
            a('ds_write_b32 %s, %s offset:%d' % (v(T+2+pl), v(C+16*pl), 32*256))
        t0, t1 = v(T+8), v(T+9)
        for half in range(2):
            for pl in range(2):
                for k in range(0, 8, 2):
                    r_ = 8*half+k
                    a('ds_read2st64_b32 %s, %s offset0:%d offset1:%d' % (vr(X+8*pl+k, 2), v(T+4+pl), 29-qs(r_), 29-qs(r_+1)))
                for k in range(2):
                    a('ds_read_b128 %s, %s offset:%d' % (vr(X+16+8*pl+4*k, 4), v(T+6), 1024*(4*pl+2*half+k)))
            a('s_waitcnt lgkmcnt(0)')
            for k in range(8):
                r_ = 8*half+k
                x, y = v(C+r_), v(C+16+r_); ar, ai = v(V.W+r_), v(V.W+16+r_)
                p, q_ = v(X+k), v(X+8+k); br, bi = v(X+16+k), v(X+24+k)
                ng, ps = ('', '-') if half else ('-', '')
                a('v_mul_f32 %s, %s, %s' % (t0, x, ar))
                a('v_mul_f32 %s, %s, %s' % (t1, y, ar))
                a('v_fma_f32 %s, %s%s, %s, %s' % (t0, ng, y, ai, t0))
                a('v_fma_f32 %s, %s%s, %s, %s' % (t1, ps, x, ai, t1))
                a('v_fmac_f32 %s, %s, %s' % (t0, p, br))
                a('v_fma_f32 %s, -%s, %s, %s' % (t1, q_, br, t1))
                a('v_fma_f32 %s, %s%s, %s, %s' % (t0, ps, q_, bi, t0))
                a('v_fma_f32 %s, %s%s, %s, %s' % (t1, ps, p, bi, t1))
                a(self.cvt(O+r_, T+9, T+8))
        for i in range(4): a(self.mf32(V.DA, i, 0, True)); a(self.mf32(V.DA, i, 1, True))

    def tag_wait(self):
        a = self.a; T = V.T; lp, ok = self.label('tw'), self.label('twok')
        a('v_and_b32 %s, 0xd000, %s' % (v(T), v(V.Eld)))
        a('v_lshl_add_u32 %s, %s, 6, %s' % (v(T), v(V.lane), v(T)))
        a('s_mov_b32 %s, 0' % sCnt)
        self.retry = self.label('retry')
        a(self.retry+':')
        a(lp+':')
        a('buffer_load_dword %s, %s, %s, %s offen %s' % (v(T+1), v(T), SWS, sEld, self.o['ld2']))
        a('s_add_u32 %s, %s, 1' % (sCnt, sCnt))
        a('s_cmp_gt_u32 %s, 0x%x' % (sCnt, SPIN_MAX))
        a('s_waitcnt vmcnt(0)')
        a('s_cbranch_scc1 %s' % ok)
        a('v_and_b32 %s, 1, %s' % (v(T+1), v(T+1)))
        a('v_cmp_eq_u32 vcc, 0, %s' % v(T+1))
        if self.o.get('nar'):
            a('s_and_b64 exec, exec, vcc')
            a('s_cbranch_execnz %s' % lp)
        else: a('s_cbranch_vccnz %s' % lp)
        a(ok+':')
        if self.o.get('nar'): a('s_mov_b64 exec, -1')
        if self.o['ts']: a('s_mov_b32 s%d, %s' % (sTS+26, sCnt))
        self.stamp()
        self.ex_load(1)
    def p3_soff(self):
        a = self.a
        a('s_lshl4_add_u32 %s, %s, %s' % (sA, sW, sSB)); a('s_lshl1_add_u32 %s, %s, %s' % (sA, sA, sP))
        a('s_lshl4_add_u32 %s, %s, %s' % (sA, sA, sCB)); a('s_lshl_b32 %s, %s, 7' % (sO[0], sA))
        for r in range(1, 4): a('s_add_u32 %s, %s, 0x%x' % (sO[r], sO[0], r*524288))
    def p3(self):
        a = self.a; O, L, D, P = V.O, V.L, V.DA, V.DB
        def normal():
            for i in range(4):
                a('s_waitcnt vmcnt(%d)' % (3-i))
                for sel in range(2):
                    for col in range(2): a('v_mov_b32 %s, %s' % (v(O+4*(2*sel+col)+i), v(L+4*i+2*col+sel)))
        def w0():
            for i in range(4):
                ts, eb = i >> 1, i & 1
                a('s_waitcnt vmcnt(%d)' % (3-i))
                for col in range(2):
                    for sg in range(2): a('v_mov_b32 %s, %s' % (v(O+4*(2*ts+col)+2*eb+sg), v(L+4*i+2*col+sg)))
        self.ifelse(sW, 0, w0, normal, True)
        self.stamp()
        for ti in range(4):
            a(self.mf16(D+4*ti, O+4*ti, V.M2+8*(ti >> 1))); a(self.mf16(D+16+4*ti, O+4*ti, V.M2+8*(ti >> 1)+4))
            if self.o['tag']:
                T = V.T
                if ti == 0: a('v_and_b32 %s, %s, %s' % (v(T+2), v(L), v(L+4))); a('v_and_b32 %s, %s, %s' % (v(T+3), v(L+8), v(L+12)))
                if ti == 1: a('v_and_b32 %s, %s, %s' % (v(T+2), v(T+2), v(T+3))); a('v_and_b32 %s, 1, %s' % (v(T+2), v(T+2)))
                if ti == 2: a('v_cmp_eq_u32 vcc, 0, %s' % v(T+2))
        if self.o['tag']:
            l = self.label('good')
            a('s_cbranch_vccz %s' % l)
            a('s_cmp_le_u32 %s, 0x%x' % (sCnt, SPIN_MAX))
            a('s_nop 7')
            a('s_cbranch_scc1 %s' % self.retry)
            a(l+':')
        for ti in range(4):
            for pl in range(2):
                for k in range(2):
                    x = D+16*pl+4*ti+2*k
                    a(self.cvt(P+4*ti+2*pl+k, x, x+1))
            a('ds_write_b128 %s, %s offset:%d' % (v(V.X3w1 if ti >> 1 else V.X3w0), vr(P+4*ti, 4), (ti & 1)*2048))
        a('s_waitcnt lgkmcnt(0)')
        a('s_barrier')
        for t in range(4):
            for ii in range(2):
                a('ds_read_b64_tr_b16 %s, %s offset:%d' % (vr(O+4*t+2*ii, 2), v(V.X3r), ii*512+t*1024))
        for t in range(4):
            a('s_waitcnt lgkmcnt(%d)' % (6-2*t))
            a(self.mf16(D+4*t, V.F16, O+4*t)); a(self.mf16(D+16+4*t, V.F16+4, O+4*t))
        for t in range(2):
            for r in range(4): a(self.cvt(P+4*r+t, D+16+4*t+r, D+4*t+r))
        for r in range(4):
            for t in (2, 3): a(self.cvt(P+4*r+t, D+16+4*t+r, D+4*t+r))
            a('buffer_store_dwordx4 %s, %s, %s, %s offen %s' % (vr(P+4*r, 4), v(V.Ooff), SOUT, sO[r], self.o['sto']))

    def ex_load(self, ex):
        a = self.a
        a('s_add_u32 %s, %s, 0x%x' % (sA, sEld, WS_U[0 if self.o['tag'] else ex]))
        for q in range(4):
            d = V.L+12*(q >> 1)+4*(q & 1) if ex == 0 else V.L+4*q
            a('buffer_load_dwordx4 %s, %s, %s, %s offen offset:%d %s' % (vr(d, 4), v(V.Eld), SWS, sA, 256*q, self.o['ld1' if ex == 0 else 'ld2']))

    def build(self):
        a = self.a; o = self.o
        name = NAME + '_kernel'
        a.raw('.globl %s\n.p2align 12\n.p2align 8\n.type %s,@function\n%s:' % (name, name, name))
        end = self.label('end')
        self.prologue(end)
        stag = int(o['stag'])
        def late(k):
            if stag != k: return
            l = self.label('late')
            a('s_bitcmp0_b32 s2, %s' % o['sbit']); a('s_cbranch_scc1 %s' % l)
            self.x_issue()
            a(l+':')
        def others():
            if o.get('kfirst'): a('s_waitcnt lgkmcnt(0)'); self.mark('karg0')
            self.touch(0)
            self.mark('touched')
            a('s_waitcnt lgkmcnt(0)')
            self.mark('karg')
            l = self.label('hold')
            a('s_cmp_lt_u32 %s, 8' % sCh); a('s_cbranch_scc1 %s' % l)
            if stag: a('s_bitcmp1_b32 s2, %s' % o['sbit']); a('s_cbranch_scc1 %s' % l)
            self.x_issue()
            if o['pre']: self.cond(sW, PW, lambda: a('s_load_dword s95, s[20:21], %s' % self.o['preoff']))
            a(l+':')
        self.ifelse(sCh, 0, self.probe, others, True)
        self.srds0(); self.addrs1()
        l = self.label('held')
        a('s_sub_u32 %s, %s, 1' % (sA, sCh)); a('s_cmp_ge_u32 %s, 7' % sA); a('s_cbranch_scc1 %s' % l)
        self.x_issue()
        a(l+':')
        self.gen_F16()
        late(1)
        self.clear_done()
        self.gen_M2(); self.ex_addrs()
        late(2)
        if o['touch']: self.cond(sT, 0, lambda: self.touch(1))
        full = o['full']
        e1 = o['e1']
        if full or e1: self.srds(); self.calc_k0()
        if e1: self.w_edge_load()
        if full:
            self.coop_gen(); self.gen_B(); self.addrs2(); self.flag_addrs()
        if stag >= 3:
            l = self.label('late')
            a('s_bitcmp0_b32 s2, %s' % o['sbit']); a('s_cbranch_scc1 %s' % l)
            self.srds(); self.calc_k0(); self.coop_gen()
            if stag >= 4: self.gen_B()
            self.x_issue()
            a(l+':')
        def early_only(f, k):
            if stag < k: f(); return
            l = self.label('eo')
            a('s_bitcmp1_b32 s2, %s' % o['sbit']); a('s_cbranch_scc1 %s' % l)
            f(); a(l+':')
        if o['spos'] == 'early': self.cond(sW, PW, self.side_load)
        self.mark('w1')
        self.p1()
        self.stamp()
        nP = {'p2a': 2, 'q2a': 1}.get(o['wpos'], 0)
        if full:
            self.side_apply(); a('s_mov_b32 %s, 1' % sInc)
            self.coop_read(); self.gen_M3()
            for i in range(nP): self.w_dma1(i)
            self.addrs3()
        else:
            self.flag_addrs(); self.side_apply()
            a('s_mov_b32 %s, 1' % sInc)
            if stag >= 3: self.srds()
            early_only(lambda: ((self.srds(), self.calc_k0()) if not e1 else 0, self.coop_gen()), 3)
            self.coop_post()
            for i in range(nP): self.w_dma1(i)
        a('s_waitcnt vmcnt(%d)' % nP)
        self.stamp()
        self.arrive()
        el = (lambda: 0) if e1 else self.w_edge_load
        if full: self.poll(0, lambda: (el(), self.w_special()))
        else: self.poll(0, lambda: (el(), early_only(self.gen_B, 4), self.w_special()))
        self.stamp()
        self.ex_load(0)
        self.p2na = 0
        if o['wpos'] in ('bar', 'barh'):
            a('s_barrier'); self.p2na = 4 if o['wpos'] == 'bar' else 2
            for i in range(self.p2na): self.w_dma1(i)
        elif not full: self.coop_wait()
        if not full: self.coop_read(); self.addrs2()
        a('s_waitcnt vmcnt(%d)' % (4+self.p2na))
        self.w_edge()
        a('s_mov_b32 %s, 0x10000' % sInc)
        if o.get('da') == 'glob': self.cond(sId, 0, lambda: a('s_atomic_swap s56, s[20:21], 0x40'))
        self.p2()
        self.stamp()
        if not full: self.gen_M3()
        self.mark('w3a')
        if o['tag']:
            if not full: self.addrs3()
            self.stamp()
            self.p3_soff()
            self.tag_wait()
        else:
            a('s_waitcnt vmcnt(0)')
            self.stamp()
            self.arrive()
            self.poll(1, None if full else self.addrs3)
            if o['ts']: a('s_mov_b32 s%d, %s' % (sTS+26, sCnt))
            self.stamp()
            self.ex_load(1)
            self.p3_soff()
        self.p3()
        self.diag_end()
        a(end+':'); a('s_endpgm')
        t, self.tail = self.tail, []
        for f in t: f()
        if o['touch']: self.insert_stubs()
        hdr = ('; GFNet spectral filter, two heads: 2-D FFT as bf16 MFMA DFT stages in one persistent launch (generated)\n'
               '; @launch grid=(256,1,1) block=(512,1,1) lds=%d\n' % LDS_TOTAL)
        kd = '''.section .rodata,"a"
.p2align 6
.amdhsa_kernel %s
  .amdhsa_next_free_vgpr %d
  .amdhsa_next_free_sgpr 102
  .amdhsa_accum_offset %d
  .amdhsa_group_segment_fixed_size 0
  .amdhsa_kernarg_size 72
  .amdhsa_user_sgpr_count 2
  .amdhsa_user_sgpr_kernarg_segment_ptr 1
  .amdhsa_system_sgpr_workgroup_id_x 1
.end_amdhsa_kernel
''' % (name, NVGPR, (NVGPR+3)//4*4)
        return hdr + '.amdgcn_target "amdgcn-amd-amdhsa--gfx950"\n.text\n' + a.text() + kd

    def insert_stubs(self):
        a = self.a
        txt = '.amdgcn_target "amdgcn-amd-amdhsa--gfx950"\n.text\n' + a.text() + ''.join('stub_%d:\n' % k for k in range(16)) + 's_endpgm\n'
        open('pass1.s', 'w').write(txt)
        subprocess.check_call(['clang', '-x', 'assembler', '-target', 'amdgcn-amd-amdhsa', '-mcpu=gfx950', '-c', 'pass1.s', '-o', 'pass1.o'])
        dis = subprocess.check_output(['llvm-objdump', '-d', '--mcpu=gfx950', 'pass1.o']).decode()
        addrs = [int(m.group(1), 16) for m in re.finditer(r'// ([0-9A-F]{12}):', dis)]
        real = [i for i, x in enumerate(a.ins) if x.kind != 'none']
        assert len(addrs) == len(real) + 1, (len(addrs), len(real))
        size = {real[k]: addrs[k+1] - addrs[k] for k in range(len(real))}
        pos = ENTRY_OFF; nxt = 2048
        out = []; k = 0; prev = None; ez = False
        for i, x in enumerate(a.ins):
            if i in size:
                if prev is not None and prev.text.strip() == 's_mov_b64 exec, 0': ez = True
                if prev is not None and prev.text.strip() == 's_mov_b64 exec, -1': ez = False
                if pos >= nxt and k < 16 and not ez:
                    out.append(Ins('stub_%d:' % k)); out.append(Ins('s_cbranch_execz ret_%d' % (k >> 3)))
                    pos += 4; k += 1; nxt += 1024
                pos += size[i]; prev = x
                if x.op == 's_endpgm': self.hot_end = pos
            out.append(x)
        self.code_end = pos
        while k < 16:
            out.append(Ins('stub_%d:' % k)); out.append(Ins('s_branch ret_%d' % (k >> 3))); k += 1
        a.ins = out

if __name__ == '__main__':
    out = sys.argv[1]; opt = {}
    for kv in sys.argv[2:]:
        k, x = kv.split('=')
        opt[k] = {'True': True, 'False': False}.get(x, x.replace('+', ' '))
    g = Gen(**opt)
    s = g.build()
    assert g.a.verify() == 0
    open(out, 'w').write(s)
    print(out, 'vgprs', NVGPR, 'lds', LDS_TOTAL, 'nops', g.a.nops, 'lines', len(g.a.ins), 'hot end 0x%x code end 0x%x' % (getattr(g, 'hot_end', 0), getattr(g, 'code_end', 0)))
```

```python
import sys, struct, math, subprocess, re
from asmlib import Asm, Ins

NAME = 'concat_heads__spectral_gfnet__spectral_gfnet__prompt'
def f2u(x): return struct.unpack('<I', struct.pack('<f', x))[0]
def lit(x): return '0x%08x' % f2u(x)
def sigma(m): return (m & 1) | ((m >> 1) & 1) << 3 | ((m >> 2) & 1) << 1 | ((m >> 3) & 1) << 2 | (m & 16)

SC = 2.0**-22
SPIN_MAX = 0x80000
ENTRY_OFF = 0x300
PW = int([x for x in sys.argv if x.startswith('pw=')][0][3:]) if any(x.startswith('pw=') for x in sys.argv) else 1
R0 = 0
R1 = 33024
WL = 66048
SCR = WL + 8*4*1056
SCR_B = SCR + 36*256
TABL = SCR_B + 8192
CNT = TABL + 16384
LDS_TOTAL = CNT + 64
WS_U = (0, 8 << 20)
WS_FLAG = 16 << 20
WS_PROBE = 17 << 20
WS_TS = 72 << 20
class V: pass
_n = [0]
def alloc(n, align=1):
    b = (_n[0] + align - 1)//align*align
    _n[0] = b + n
    return b
V.tid = alloc(1); V.lane = alloc(1)
for nm in 'g n l16 TR Xoff Est Eld X0w X0r0 X0r1 X1w X1r X2w X2r WP WM zero cnt tmp'.split(): setattr(V, nm, alloc(1))
V.Ooff, V.X3w0, V.X3w1, V.X3r = V.Xoff, V.X0w, V.X0r0, V.X0r1
V.T = alloc(10)
V.O = alloc(16, 4)
V.DA = alloc(32, 4); V.DB = alloc(32, 4); V.L = V.DB
V.F16 = alloc(8, 4); V.M2 = alloc(16, 4)
V.F32 = alloc(32, 4); V.TW = alloc(32, 4); V.W = alloc(32, 4)
V.B = alloc(12, 4); V.Bp = alloc(8, 4); V.WF = alloc(4)
NVGPR = _n[0]
assert NVGPR <= 256, NVGPR
def v(i): return 'v%d' % i
def vr(i, n): return 'v[%d:%d]' % (i, i+n-1)
SX, SWR, SWI, SOUT, SDBG, SWS = 's[4:7]', 's[8:11]', 's[12:15]', 's[16:19]', 's[20:23]', 's[24:27]'
sP, sT, sW, sSB, sCB, sK0, sKP, sKM, sWp, sRv = ['s%d' % i for i in range(30, 40)]
sA, sB, sC, sD, sE, sF, sEst, sEld, sCnt, sSpec, sInc, sWL = ['s%d' % i for i in range(40, 52)]
sO = ['s52', 's53', 's54', 's55']
sTS = 56
sDP, sDM, sZ, sCh, sId = 's96', 's97', 's98', 's99', 's100'

class Gen:
    def __init__(self, **opt):
        self.o = dict(ldx='', ldw='', st1='sc1', st2='sc1', sto='nt', ld1='sc1', ld2='sc1', ts=False,
                      prio=True, nb='2', pnop='15', force='', wpos='postX1', touch=True, w1n='9', spos='mid', qw='1', qg='1', zg='3', xm='2', pb='17', wsoff='0', pld='', pex='1', merge=True, full=False, e1=False, preoff='0', tag=False, mid='', stag='0', sbit='7', pre=True, split=False, map='2', rep='1', slp='', sthr='')
        self.o.update(opt)
        self.a = Asm(); self.lab = 0; self.nts = 0; self.sid = -1; self.tail = []
    def label(self, p='L'):
        self.lab += 1
        return '%s_%d' % (p, self.lab)

    def mark(self, nm, drain=False):
        o = self.o; hit = False
        if o.get('clk') and nm in ('w1', 'g1a', 'x1', 'x2', 'w3a', 'end'):
            for op in ('s_memrealtime', 's_memtime'):
                self.a('%s s[%d:%d]' % (op, sTS+2*self.nts, sTS+2*self.nts+1)); self.nts += 1
            self.a('s_waitcnt lgkmcnt(0)')
        if o.get('fine') and nm[0] == 'f':
            self.a('s_memtime s[%d:%d]' % (sTS+2*self.nts, sTS+2*self.nts+1)); self.nts += 1; hit = True
        for key, reg in (('da', 58), ('db', 60)):
            if o.get(key) == nm:
                self.a('%s s[%d:%d]' % ('s_memtime' if 'cyc' in o else 's_memrealtime', reg, reg+1)); hit = True
        if hit and drain: self.a('s_waitcnt lgkmcnt(0)')
    def stamp(self):
        self.sid += 1
        self.mark('s%d' % self.sid)
        if not self.o['ts'] or self.o.get('clk') or self.o.get('fine'): return
        self.a('s_memrealtime s[%d:%d]' % (sTS+2*self.nts, sTS+2*self.nts+1)); self.nts += 1
    def diag_end(self):
        a = self.a; o = self.o
        self.mark('end')
        if not (o['ts'] or 'da' in o): return
        self.stamp(); a('s_waitcnt vmcnt(0)'); self.stamp()
        a('s_waitcnt lgkmcnt(0)')
        if 'da' in o:
            lp = self.label('dg')
            if o['da'] == 'glob':
                a('buffer_load_dword %s, %s, %s, 0 offen offset:64 sc1' % (v(V.tmp), v(V.zero), SDBG))
                a('s_waitcnt vmcnt(0)')
                a('v_readfirstlane_b32 s58, %s' % v(V.tmp)); a('s_mov_b32 s56, s58')
            a('s_sub_u32 %s, s60, s58' % sA)
            if 'db0' in o: a('s_add_u32 %s, %s, 250' % (sA, sA)); a('s_lshl_b32 %s, %s, 1' % (sA, sA))
            a('s_lshr_b32 %s, %s, 2' % (sA, sA) if 'cyc' in o else 's_lshl_b32 %s, %s, 2' % (sA, sA))
            for key, reg in (('dp', sP), ('dt', sT), ('db0', sId)):
                if key in o: a('s_cmp_eq_u32 %s, %s' % (reg, o[key])); a('s_cselect_b32 %s, %s, 0' % (sA, sA))
            a('s_min_u32 %s, %s, %d' % (sA, sA, 5800 if 'enc' in o else 9000))
            if 'enc' in o:
                a('s_and_b32 %s, s62, 15' % sB); a('s_mul_i32 %s, %s, 10000' % (sB, sB)); a('s_add_u32 %s, %s, %s' % (sA, sA, sB))
                a('s_bfe_u32 %s, s62, 0x40008' % sB); a('s_mul_i32 %s, %s, 100000' % (sB, sB)); a('s_add_u32 %s, %s, %s' % (sA, sA, sB))
            a('s_add_u32 %s, %s, 3000' % (sA, sA))
            a(lp+':')
            a('s_memrealtime s[28:29]'); a('s_waitcnt lgkmcnt(0)')
            a('s_sub_u32 %s, s28, s56' % sB); a('s_cmp_lt_u32 %s, %s' % (sB, sA)); a('s_cbranch_scc1 %s' % lp)
            return
        a('s_lshl_b32 %s, %s, 7' % (sA, sId)); a('s_add_u32 %s, %s, 0x%x' % (sA, sA, WS_TS))
        a('s_mov_b64 exec, 1')
        for i in range(14):
            a('v_mov_b32 %s, s%d' % (v(V.T), sTS+2*i))
            a('buffer_store_dword %s, %s, %s, %s offen offset:%d' % (v(V.T), v(V.zero), SWS, sA, 4*i))
            a('s_nop 1')

    def cond(self, reg, val, f):
        a = self.a; l = self.label('c')
        a('s_cmp_lg_u32 %s, %d' % (reg, val)); a('s_cbranch_scc1 %s' % l)
        f(); a(l+':')
    def ifelse(self, reg, val, feq, fne, eq_first=False):
        a = self.a; l0, l1 = self.label('ie'), self.label('iend')
        if eq_first:
            a('s_cmp_lg_u32 %s, %d' % (reg, val)); a('s_cbranch_scc1 %s' % l0)
            feq(); a('s_branch %s' % l1); a(l0+':'); fne()
        else:
            a('s_cmp_eq_u32 %s, %d' % (reg, val)); a('s_cbranch_scc1 %s' % l0)
            fne(); a('s_branch %s' % l1); a(l0+':'); feq()
        a(l1+':')
    def far(self, reg, val, feq, fne=None):
        a = self.a; l0, l1 = self.label('far'), self.label('back')
        a('s_cmp_eq_u32 %s, %d' % (reg, val)); a('s_cbranch_scc1 %s' % l0)
        if fne: fne()
        a(l1+':')
        def t():
            a(l0+':'); feq(); a('s_branch %s' % l1)
        self.tail.append(t)
    def touch(self, rnd, half=False):
        a = self.a
        a('s_mov_b64 exec, 0')
        if half:
            for k in range(3):
                a('s_cmp_eq_u32 %s, %d' % (sW, 4+k)); a('s_cbranch_scc1 stub_%d' % (2*k))
            a('s_branch stub_6')
        else:
            for k in range(7):
                a('s_cmp_eq_u32 %s, %d' % (sW, k)); a('s_cbranch_scc1 stub_%d' % (8*rnd+k))
            a('s_branch stub_%d' % (8*rnd+7))
        a('ret_%d:' % rnd)
        a('s_mov_b64 exec, -1')

    def prologue(self, end):
        a = self.a; T = V.T
        a('s_cmp_ge_u32 s2, 0x100')
        a('s_cbranch_scc1 %s' % end)
        if 'da' in self.o: a('s_memrealtime s[56:57]'); self.mark('start')
        a('s_bfe_u32 %s, s2, 0x10002' % sP)
        a('s_mul_i32 s3, %s, 24' % sP)
        a('s_load_dwordx2 s[4:5], s[0:1], s3')
        a('s_load_dwordx2 s[24:25], s[0:1], 0x40')
        a('s_load_dwordx2 s[20:21], s[0:1], 0x38')
        a('s_load_dwordx2 s[8:9], s[0:1], s3 offset:8')
        a('s_load_dwordx2 s[12:13], s[0:1], s3 offset:16')
        a('s_load_dwordx2 s[16:17], s[0:1], 0x30')
        self.stamp()
        a('v_lshrrev_b32 %s, 6, v0' % v(T))
        a('v_and_b32 %s, 63, v0' % v(V.lane))
        a('v_readfirstlane_b32 %s, %s' % (sW, v(T)))
        mp = self.o['map']
        a('s_and_b32 %s, s2, 3' % sA)
        if int(self.o['xm']): a('s_xor_b32 %s, %s, %s' % (sA, sA, self.o['xm']))
        if mp in ('0', '1'):
            a('s_bfe_u32 %s, s2, 0x10003' % sB)
            if mp == '0': a('s_lshl1_add_u32 %s, %s, %s' % (sA, sA, sB))
            else: a('s_lshl2_add_u32 %s, %s, %s' % (sA, sB, sA))
            a('s_lshr_b32 %s, s2, 4' % sB)
            a('s_lshl4_add_u32 %s, %s, %s' % (sT, sA, sB))
        else:
            a('s_lshr_b32 %s, s2, 3' % sB)
            a('s_lshl2_add_u32 %s, %s, %s' % (sT, sB, sA))
            a('s_lshr_b32 %s, %s, 4' % (sA, sT)); a('s_and_b32 %s, %s, 15' % (sB, sT))
        a('s_bfe_u32 %s, %s, 0x10001' % (sC, sB))
        a('s_lshl1_add_u32 %s, %s, %s' % (sCB, sA, sC))
        a('s_lshr_b32 %s, %s, 2' % (sSB, sB))
        a('s_and_b32 %s, %s, 1' % (sC, sB))
        a('s_lshl1_add_u32 %s, %s, %s' % (sSB, sSB, sC))
        a('s_mov_b32 s6, 0x400000'); a('s_mov_b32 s7, 0x20000')
        a('v_lshrrev_b32 %s, 4, %s' % (v(V.g), v(V.lane)))
        a('v_lshlrev_b32 %s, 4, %s' % (v(V.l16), v(V.lane)))
        a('v_and_b32 %s, 8, v0' % v(T))
        a('v_lshlrev_b32 %s, 11, %s' % (v(T), v(T)))
        a('v_lshl_add_u32 %s, %s, 20, %s' % (v(T), v(V.g), v(T)))
        a('v_and_b32 %s, 0x70, %s' % (v(T+1), v(V.l16)))
        a('v_add_u32 %s, %s, %s' % (v(V.Xoff), v(T), v(T+1)))
        a('s_lshl4_add_u32 %s, %s, %s' % (sA, sW, sSB))
        a('s_lshl4_add_u32 %s, %s, %s' % (sA, sA, sCB))
        a('s_lshl_b32 %s, %s, 7' % (sO[0], sA))
        for r in range(1, 4): a('s_add_u32 %s, %s, 0x%x' % (sO[r], sO[0], r*262144))
        a('s_lshl3_add_u32 %s, s2, %s' % (sId, sW))
        a('s_xor_b32 %s, %s, %d' % (sCh, sId, 8*int(self.o['qg'])+int(self.o['qw']))); a('s_and_b32 %s, %s, 0xffffff3f' % (sCh, sCh))
    def srds(self):
        a = self.a
        a('s_mov_b32 s10, 2101248'); a('s_mov_b32 s11, 0x20000')
        a('s_mov_b32 s14, 2101248'); a('s_mov_b32 s15, 0x20000')
        a('s_mov_b32 s18, 0x800000'); a('s_mov_b32 s19, 0x20000')
    def srds0(self):
        a = self.a
        a('s_mov_b32 s22, 256'); a('s_mov_b32 s23, 0x20000')
        a('s_mov_b32 s26, 0x%x' % ((80 if self.o['ts'] else 18) << 20)); a('s_mov_b32 s27, 0x20000')
        a('v_and_b32 %s, 15, %s' % (v(V.n), v(V.lane)))
        a('v_mov_b32 %s, 0' % v(V.zero)); a('v_mov_b32 %s, %d' % (v(V.cnt), CNT))

    def x_issue(self):
        for r in range(4):
            self.a('buffer_load_dwordx4 %s, %s, %s, %s offen %s' % (vr(V.L+4*r, 4), v(V.Xoff), SX, sO[r], self.o['ldx']))
    def probe(self):
        a = self.a; T = V.T; NB = int(self.o['nb']); ld = self.o['pld']
        a('s_bfe_u32 %s, s2, 0x10004' % sC)
        a('s_mul_i32 %s, %s, 0x12000' % (sA, sC)); a('s_add_u32 %s, %s, 0x%x' % (sA, sA, int(self.o['pb']) << 20))
        a('s_and_b32 %s, s2, 8' % sE)
        a('s_mul_i32 %s, %s, 0x4a20' % (sD, sE)); a('s_add_u32 %s, %s, %s' % (sA, sA, sD)); a('s_lshl_b32 %s, %s, 14' % (sD, sE))
        a('s_xor_b32 %s, %s, 0x2000' % (sB, sA))
        a('s_lshl_b32 %s, %s, 16' % (sF, sC)); a('s_add_u32 %s, %s, %s' % (sD, sD, sF)); a('s_add_u32 %s, %s, 0x%x' % (sD, sD, WS_FLAG))
        a('s_lshl_b32 %s, %s, 4' % (sE, sE)); a('s_xor_b32 %s, %s, 0x80' % (sE, sE))
        a('s_mov_b32 s26, 0x%x' % (18 << 20)); a('s_mov_b32 s27, 0x20000')
        a('s_lshl_b32 %s, %s, 3' % (sC, sC))
        a('v_mul_u32_u24 %s, 0x5080, %s' % (v(T), v(V.lane)))
        a('v_lshlrev_b32 %s, 10, %s' % (v(T+1), v(V.lane)))
        a('v_mov_b32 %s, 0' % v(T+2))
        if not ld:
            for k in range(2*NB): a('v_mov_b32 %s, 0' % v(V.DA+k))
        a('s_mov_b64 exec, %s' % self.o['pex'])
        if 'da' in self.o: a('s_waitcnt lgkmcnt(0)'); a('s_mov_b32 s60, s56'); a('s_mov_b32 s58, s56')
        a('s_waitcnt lgkmcnt(0)')
        for side, base in enumerate((sA, sB)):
            for k in range(NB):
                if ld: a('buffer_load_dword %s, %s, %s, %s offen offset:%d %s' % (v(V.DA+side*NB+k), v(T), SWS, base, k*0x600, ld))
                else: a('buffer_atomic_add %s, %s, %s, %s offen offset:%d sc0 sc1' % (v(V.DA+side*NB+k), v(T), SWS, base, k*0x600))
        a('s_mov_b64 exec, -1')
        a('buffer_store_dword %s, %s, %s, %s offen sc1' % (v(T+2), v(T+1), SWS, sD))
        if self.o['pre']: a('s_load_dword s95, s[20:21], %s' % self.o['preoff'])
        self.x_issue()
        a('s_waitcnt vmcnt(%d)' % (NB+5))
        for x in self.o['pnop'].split(','): a('s_nop %s' % x)
        a('s_getreg_b32 %s, hwreg(HW_REG_IB_STS, 0, 4)' % sA)
        a('s_or_b32 %s, %s, 16' % (sA, sA)); a('s_lshl_b32 s94, %s, %s' % (sA, sC))
        if self.o['merge']: a('s_waitcnt vmcnt(4)')
        a('s_atomic_or s94, s[20:21], %s' % sE)
        self.mark('pub')
    def clear_done(self):
        a = self.a
        if self.o['merge']: return
        def f():
            a('s_mov_b32 s93, 1'); a('s_waitcnt vmcnt(4)')
            a('s_atomic_add s93, s[20:21], 0x0')
        self.cond(sCh, 0, f)
    def ready_check(self):
        a = self.a; l0, l1 = self.label('rdy'), self.label('rdyok')
        a('s_cmp_ge_u32 %s, 2' % sRv)
        a('s_cbranch_scc1 %s' % l1)
        a('s_mov_b32 %s, 0' % sCnt)
        a(l0+':')
        a('buffer_load_dword %s, %s, %s, 0 offen sc1' % (v(V.tmp), v(V.zero), SDBG))
        a('s_add_u32 %s, %s, 1' % (sCnt, sCnt))
        a('s_cmp_gt_u32 %s, 0x%x' % (sCnt, SPIN_MAX))
        a('s_waitcnt vmcnt(0)')
        a('s_cbranch_scc1 %s' % l1)
        a('v_cmp_gt_u32 vcc, 2, %s' % v(V.tmp))
        a('s_cbranch_vccnz %s' % l0)
        a(l1+':')
    def side_load(self, off=128):
        self.a('buffer_load_dword %s, %s, %s, 0 offen offset:%d sc1' % (v(V.tmp), v(V.zero), SDBG, off))
    def side_poll(self, off, dst):
        a = self.a; lp, ok = self.label('sw'), self.label('swok')
        a('s_mov_b32 %s, 0' % sCnt)
        a(lp+':')
        a('s_waitcnt vmcnt(0)')
        a('v_readfirstlane_b32 %s, %s' % (sA, v(V.tmp)))
        a('s_and_b32 %s, %s, 0x1010' % (sB, sA)); a('s_cmp_eq_u32 %s, 0x1010' % sB)
        a('s_cbranch_scc1 %s' % ok)
        self.side_load(off)
        a('s_add_u32 %s, %s, 1' % (sCnt, sCnt))
        a('s_cmp_lt_u32 %s, 0x%x' % (sCnt, SPIN_MAX))
        a('s_cbranch_scc1 %s' % lp)
        a('s_waitcnt vmcnt(0)')
        a(ok+':')
        a('s_and_b32 %s, %s, 15' % (sB, sA)); a('s_bfe_u32 %s, %s, 0x40008' % (sA, sA))
        a('s_sub_i32 %s, %s, %s' % (dst, sA, sB))
    def side_wait(self):
        a = self.a
        def f():
            l = self.label('clean')
            if self.o['force'] != '':
                a('ds_write2_b32 %s, %s, %s offset0:0 offset1:1' % (v(V.cnt), v(V.zero), v(V.zero))); return
            self.side_poll(128, sC)
            a('s_abs_i32 %s, %s' % (sA, sC)); a('s_cmp_ge_u32 %s, 2' % sA); a('s_cbranch_scc1 %s' % l)
            self.side_load(0)
            self.side_poll(0, sD)
            a('s_add_i32 %s, %s, %s' % (sC, sC, sD))
            a(l+':')
            a('s_cmp_gt_i32 %s, 0' % sC); a('s_cselect_b32 %s, 0x2000, 0' % sA)
            if self.o['ts']: a('s_add_u32 %s, %s, 0x80' % (sC, sC)); a('s_or_b32 %s, %s, %s' % (sA, sA, sC))
            a('v_mov_b32 %s, %s' % (v(V.tmp), sA))
            a('ds_write2_b32 %s, %s, %s offset0:0 offset1:1' % (v(V.cnt), v(V.tmp), v(V.zero)))
        self.cond(sW, PW, f)
    def side_use(self):
        a = self.a
        a('v_readfirstlane_b32 %s, %s' % (sCh, v(V.tmp)))
        if self.o['ts']: a('s_mov_b32 s%d, %s' % (sTS+24, sCh)); a('s_and_b32 %s, %s, 0x2000' % (sCh, sCh))
        if 'enc' in self.o: a('s_lshr_b32 s62, %s, 13' % sCh)
        if self.o['force'] != '': a('s_mov_b32 %s, %d' % (sCh, int(self.o['force']) << 13))
        a('s_xor_b32 %s, %s, %s' % (sEst, sEst, sCh))
    def flag_addrs(self):
        a = self.a
        a('s_lshr_b32 %s, %s, 4' % (sB, sT))
        a('s_lshl_b32 %s, %s, 13' % (sA, sP)); a('s_add_u32 %s, %s, 0x%x' % (sA, sA, WS_FLAG))
        for dst, wp, gr in ((sF, sW, sB), (sE, sB, sW)):
            a('s_lshl4_add_u32 %s, %s, %s' % (sC, wp, gr)); a('s_lshl_b32 %s, %s, 10' % (sC, sC))
            a('s_add_u32 %s, %s, %s' % (dst, sC, sA))
        R = int(self.o['rep'])
        if R > 1:
            a('s_and_b32 %s, %s, %d' % (sC, sT, R-1)); a('s_lshl_b32 %s, %s, 8' % (sC, sC)); a('s_add_u32 %s, %s, %s' % (sE, sE, sC))
    def side_apply(self):
        for r in (sF, sE, sEld): self.a('s_xor_b32 %s, %s, %s' % (r, r, sCh))
    def arrive(self):
        for r in range(int(self.o['rep'])): self.a('s_atomic_add %s, s[24:25], %s offset:%d' % (sInc, sF, 256*r))
    def poll(self, ex, under=None):
        a = self.a; lp, ok = self.label('poll'), self.label('pollok')
        if under:
            a('s_mov_b32 %s, 0' % sRv)
            a('s_atomic_add %s, s[24:25], %s glc' % (sRv, sE))
            under()
            a('s_waitcnt lgkmcnt(0)')
            a('s_bitcmp1_b32 %s, %d' % (sRv, 4+16*ex))
            a('s_cbranch_scc1 %s' % ok)
        a('s_mov_b32 %s, 0' % sCnt)
        a(lp+':')
        a('s_mov_b32 %s, 0' % sRv)
        a('s_atomic_add %s, s[24:25], %s glc' % (sRv, sE))
        a('s_add_u32 %s, %s, 1' % (sCnt, sCnt))
        a('s_cmp_gt_u32 %s, 0x%x' % (sCnt, SPIN_MAX))
        a('s_waitcnt lgkmcnt(0)')
        a('s_cbranch_scc1 %s' % ok)
        if self.o['slp']:
            a('s_bitcmp1_b32 %s, %d' % (sRv, 4+16*ex))
            a('s_cbranch_scc1 %s' % ok)
            if self.o['sthr']:
                a('s_bfe_u32 %s, %s, 0x%x' % (sA, sRv, 0x50000+16*ex))
                a('s_cmp_ge_u32 %s, %s' % (sA, self.o['sthr'])); a('s_cbranch_scc1 %s' % lp)
            a('s_sleep %s' % self.o['slp'])
            a('s_branch %s' % lp)
        else:
            a('s_bitcmp0_b32 %s, %d' % (sRv, 4+16*ex))
            a('s_cbranch_scc1 %s' % lp)
        a(ok+':')
    def ex_addrs(self):
        a = self.a; T = V.T
        a('s_lshl_b32 %s, %s, 4' % (sB, sW)); a('s_xor_b32 %s, %s, %s' % (sB, sB, sT)); a('s_lshl_b32 %s, %s, 8' % (sB, sB))
        a('v_lshlrev_b32 %s, 4, %s' % (v(T), v(V.n)))
        a('v_lshl_add_u32 %s, %s, 10, %s' % (v(T), v(V.g), v(T)))
        a('v_xor_b32 %s, %s, %s' % (v(T), sB, v(T)))
        a('v_and_b32 %s, 0x6000, %s' % (v(T+1), v(T)))
        a('v_add_u32 %s, %s, %s' % (v(T), v(T), v(T+1)))
        a('v_lshl_add_u32 %s, %s, 18, %s' % (v(V.Est), v(V.g), v(T)))
        a('v_and_b32 %s, 0xdcff, %s' % (v(V.Eld), v(T)))
        a('s_bfe_u32 %s, %s, 0x10001' % (sA, sW)); a('s_xor_b32 %s, %s, %s' % (sA, sA, sP))
        a('s_bfe_u32 %s, %s, 0x10005' % (sC, sT)); a('s_xor_b32 %s, %s, %s' % (sC, sC, sP))
        a('s_lshl_b32 %s, %s, 7' % (sEst, sW)); a('s_add_u32 %s, %s, %s' % (sEst, sEst, sA)); a('s_lshl_b32 %s, %s, 13' % (sEst, sEst))
        a('s_lshl3_add_u32 %s, %s, %s' % (sEld, sT, sC)); a('s_lshl_b32 %s, %s, 13' % (sEld, sEld))

    def trig(self, x, re, im, conj_re=None, conj_im=None):
        a = self.a; c, s = V.T+8, V.T+9
        a('v_cos_f32 %s, %s' % (v(c), v(x)))
        a('v_sin_f32 %s, %s' % (v(s), v(x)))
        if getattr(self, 'fill', None): self.fill(); self.fill = None
        a('v_cvt_pk_bf16_f32 %s, %s, %s' % (v(re), v(c), v(s)))
        a('v_cvt_pk_bf16_f32 %s, -%s, %s' % (v(im), v(s), v(c)))
        if conj_re is not None:
            a('v_xor_b32 %s, 0x80000000, %s' % (v(conj_re), v(re)))
            a('v_xor_b32 %s, 0x8000, %s' % (v(conj_im), v(im)))
    def ladder(self, x, step, regs):
        a = self.a
        for k, r in enumerate(regs):
            if k < len(regs)-1: self.fill = lambda: a('v_add_f32 %s, %s, %s' % (v(x), v(x), v(step)))
            self.trig(x, *r)
    def gen_F16(self):
        a = self.a; T = V.T
        a('v_cvt_f32_u32 %s, %s' % (v(T), v(V.n)))
        a('v_cvt_f32_u32 %s, %s' % (v(T+1), v(V.g)))
        a('v_mul_f32 %s, %s, %s' % (v(T), lit(1/16), v(T)))
        a('v_mul_f32 %s, 4.0, %s' % (v(T+1), v(T+1)))
        a('v_mul_f32 %s, %s, %s' % (v(T+2), v(T), v(T+1)))
        self.ladder(T+2, T, [(V.F16+r, V.F16+4+r) for r in range(4)])
    def gen_M2(self):
        a = self.a; T = V.T
        def normal():
            a('v_cvt_f32_u32 %s, %s' % (v(T+2), sW))
            a('v_fmac_f32 %s, %s, %s' % (v(T), lit(1/256), v(T+2)))
            a('v_mul_f32 %s, %s, %s' % (v(T+2), v(T), v(T+1)))
            self.ladder(T+2, T, [(V.M2+r, V.M2+4+r, V.M2+8+r, V.M2+12+r) for r in range(4)])
        def w0():
            a('v_lshrrev_b32 %s, 1, %s' % (v(T), v(V.n)))
            a('v_cvt_f32_u32 %s, %s' % (v(T), v(T)))
            a('v_lshlrev_b32 %s, 31, %s' % (v(T+3), v(V.n)))
            a('v_add_f32 %s, 0.5, %s' % (v(T+4), v(T)))
            a('v_xor_b32 %s, %s, %s' % (v(T+3), lit(1/16), v(T+3)))
            a('v_cmp_ne_u32 vcc, 1, %s' % v(V.n))
            a('v_mul_f32 %s, %s, %s' % (v(T), v(T), v(T+3)))
            a('v_mul_f32 %s, %s, %s' % (v(T+4), v(T+4), v(T+3)))
            a('v_cndmask_b32 %s, 0.5, %s, vcc' % (v(T), v(T)))
            for ts in range(2):
                d = T+4*ts
                a('v_mul_f32 %s, %s, %s' % (v(T+2), v(d), v(T+1)))
                self.ladder(T+2, d, [(V.M2+8*ts+r, V.M2+8*ts+4+r) for r in range(4)])
        self.ifelse(sW, 0, w0, normal)
    def gen_M3(self):
        a = self.a; T = V.T
        a('v_cvt_f32_u32 %s, %s' % (v(T), v(V.n)))
        a('v_mul_f32 %s, %s, %s' % (v(T+1), lit(1/256), v(T)))
        a('v_mul_f32 %s, %s, %s' % (v(T), lit(1/16), v(T)))
        def normal():
            a('v_lshl_add_u32 %s, %s, 6, %s' % (v(T+2), v(V.g), sW))
            a('v_cvt_f32_u32 %s, %s' % (v(T+2), v(T+2)))
            a('v_mul_f32 %s, %s, %s' % (v(T+2), v(T+2), v(T+1)))
            self.ladder(T+2, T, [(V.M2+r, V.M2+4+r, V.M2+8+r, V.M2+12+r) for r in range(4)])
        def w0():
            a('v_lshlrev_b32 %s, 5, %s' % (v(T+2), v(V.g)))
            a('v_cvt_f32_u32 %s, %s' % (v(T+2), v(T+2)))
            a('v_mul_f32 %s, 0.5, %s' % (v(T), v(T)))
            a('v_mul_f32 %s, %s, %s' % (v(T+2), v(T+2), v(T+1)))
            regs = []
            for k in range(4):
                b = V.M2+8*(k & 1)+2*(k >> 1)
                regs.append((b, b+4, b+1, b+5))
            self.ladder(T+2, T, regs)
            a('s_mov_b64 exec, 0xffff')
            a('v_lshlrev_b32 %s, 15, %s' % (v(T+2), v(V.n)))
            a('v_and_b32 %s, 0x8000, %s' % (v(T+2), v(T+2)))
            a('v_or_b32 %s, 0x3f80, %s' % (v(V.M2+1), v(T+2)))
            a('v_lshlrev_b32 %s, 16, %s' % (v(V.M2+5), v(V.M2+1)))
            a('s_mov_b64 exec, -1')
        self.ifelse(sW, 0, w0, normal)
    def sigma_lane(self, dst):
        a = self.a; t = V.T+7
        a('v_and_b32 %s, 17, %s' % (v(dst), v(V.lane)))
        a('v_bfe_u32 %s, %s, 2, 2' % (v(t), v(V.lane)))
        a('v_lshl_add_u32 %s, %s, 1, %s' % (v(dst), v(t), v(dst)))
        a('v_and_b32 %s, 2, %s' % (v(t), v(V.lane)))
        a('v_lshl_add_u32 %s, %s, 2, %s' % (v(dst), v(t), v(dst)))
    def coop_gen(self):
        a = self.a; T = V.T; X = V.DA
        self.sigma_lane(T)
        a('v_lshrrev_b32 %s, 5, %s' % (v(T+1), v(V.lane)))
        a('v_lshlrev_b32 %s, 7, %s' % (v(T+2), v(T+1)))
        a('v_lshl_add_u32 %s, %s, 1, %s' % (v(T+2), v(T), v(T+2)))
        a('s_and_b32 %s, %s, 2' % (sD, sKP)); a('s_sub_u32 %s, %s, %s' % (sD, sWL, sD))
        a('v_add_u32 %s, %s, %s' % (v(V.WP), sD, v(T+2)))
        a('s_add_u32 %s, %s, %d' % (sD, sD, 1024-832))
        a('v_sub_u32 %s, %s, %s' % (v(V.WM), sD, v(T+2)))
        a('v_cvt_f32_u32 %s, %s' % (v(T), v(T)))
        a('s_mul_i32 %s, %s, 4' % (sA, sW)); a('s_lshr_b32 %s, 0x75643120, %s' % (sA, sA)); a('s_and_b32 %s, %s, 7' % (sA, sA)); a('s_lshl_b32 %s, %s, 2' % (sA, sA))
        a('v_lshl_add_u32 %s, %s, 1, %s' % (v(T+1), v(T+1), sA))
        a('v_mul_f32 %s, %s, %s' % (v(T), lit(1/2048), v(T)))
        a('v_cvt_f32_u32 %s, %s' % (v(T+1), v(T+1)))
        a('v_mul_f32 %s, %s, %s' % (v(T+2), v(T+1), v(T)))
        for e in range(2):
            a('v_cos_f32 %s, %s' % (v(T+5), v(T+2)))
            a('v_sin_f32 %s, %s' % (v(T+6), v(T+2)))
            a('v_rcp_f32 %s, %s' % (v(T+5), v(T+5)))
            a('v_mul_f32 %s, %s, %s' % (v(T+3), lit(64.0), v(T+2)))
            a('v_mul_f32 %s, %s, %s' % (v(X+4+e), v(T+6), v(T+5)))
            a('v_fma_f32 %s, %s, %s, 1.0' % (v(T+5), v(X+4+e), v(X+4+e)))
            a('v_rcp_f32 %s, %s' % (v(T+6), v(T+5)))
            a('v_mul_f32 %s, -2.0, %s' % (v(T+4), v(X+4+e)))
            a('v_fma_f32 %s, -%s, %s, 1.0' % (v(T+5), v(T+5), v(T+6)))
            a('v_fmac_f32 %s, %s, %s' % (v(T+6), v(T+5), v(T+6)))
            a('v_mul_f32 %s, %s, %s' % (v(X+6+e), v(T+6), v(T+4)))
            if e == 0: self.fill = lambda: a('v_add_f32 %s, %s, %s' % (v(T+2), v(T+2), v(T)))
            self.trig(T+3, X+e, X+2+e)
        a('s_lshr_b32 %s, %s, 1' % (sA, sW)); a('s_lshl_b32 %s, %s, 7' % (sA, sA))
        a('s_and_b32 %s, %s, 1' % (sB, sW)); a('s_add_u32 %s, %s, %s' % (sA, sA, sB))
        a('s_lshl3_add_u32 %s, %s, %d' % (sA, sA, TABL))
        a('v_add_u32 %s, %s, %s' % (v(T), sA, v(V.l16)))
        for k in range(4): a('ds_write_b64 %s, %s offset:%d' % (v(T), vr(X+2*k, 2), 4096*k))
    def coop_post(self):
        a = self.a
        a('v_mov_b32 %s, 1' % v(V.T+1))
        a('ds_add_u32 %s, %s offset:4' % (v(V.cnt), v(V.T+1)))
    def coop_wait(self):
        a = self.a; T = V.T; lp, ok = self.label('cw'), self.label('cwok')
        a('s_mov_b32 %s, 0' % sCnt)
        a(lp+':')
        a('ds_read_b32 %s, %s offset:4' % (v(T), v(V.cnt)))
        a('s_add_u32 %s, %s, 1' % (sCnt, sCnt))
        a('s_cmp_gt_u32 %s, 0x%x' % (sCnt, SPIN_MAX*4))
        a('s_waitcnt lgkmcnt(0)')
        a('s_cbranch_scc1 %s' % ok)
        a('v_cmp_gt_u32 vcc, 0x200, %s' % v(T))
        a('s_cbranch_vccnz %s' % lp)
        a(ok+':')
    def coop_read(self):
        a = self.a; T = V.T
        a('v_add_u32 %s, %d, %s' % (v(T), TABL, v(V.l16)))
        for k in range(16): a('ds_read_b128 %s, %s offset:%d' % (vr(V.F32+4*k, 4), v(T), 1024*k))
    def calc_k0(self):
        a = self.a
        a('s_lshr_b32 %s, %s, 4' % (sA, sT)); a('s_and_b32 %s, %s, 15' % (sB, sT))
        a('s_lshl4_add_u32 %s, %s, %s' % (sK0, sB, sA))
        a('s_and_b32 %s, %s, 12' % (sC, sB)); a('s_bfe_u32 %s, %s, 0x10001' % (sD, sB)); a('s_add_u32 %s, %s, %s' % (sC, sC, sD))
        a('s_and_b32 %s, %s, 1' % (sD, sB)); a('s_lshl1_add_u32 %s, %s, %s' % (sC, sD, sC)); a('s_lshl_b32 %s, %s, 3' % (sC, sC))
        a('s_cmp_eq_u32 %s, 0' % sA); a('s_cselect_b32 %s, %s, %s' % (sK0, sC, sK0))
        a('s_cmp_eq_u32 %s, 0' % sT); a('s_cselect_b32 %s, 7, 8' % sA)
        a('s_lshl_b32 %s, %s, %s' % (sKP, sW, sA)); a('s_add_u32 %s, %s, %s' % (sKP, sKP, sK0))
        a('s_sub_u32 %s, 0x800, %s' % (sKM, sKP))
        a('s_cmp_eq_u32 %s, 0' % sKP)
        a('s_cselect_b32 %s, 0x400, %s' % (sKM, sKM)); a('s_cselect_b32 %s, 1, 0' % sSpec)
        a('s_mul_i32 %s, %s, 1026' % (sKP, sKP)); a('s_mul_i32 %s, %s, 1026' % (sKM, sKM))
        a('s_mul_i32 %s, %s, 4224' % (sWL, sW)); a('s_add_u32 %s, %s, %d' % (sWL, sWL, WL))
        a('s_and_b32 %s, %s, 2' % (sA, sKP))
        a('s_add_u32 %s, %s, %s' % (sDP, sKP, sA)); a('s_add_u32 %s, %s, %s' % (sDM, sKM, sA))
    def gen_B(self):
        a = self.a; T = V.T; c, s = T+8, T+9
        a('v_lshrrev_b32 %s, 1, %s' % (v(T), v(V.n)))
        a('v_cvt_f32_u32 %s, %s' % (v(T+2), v(V.g)))
        a('v_and_b32 %s, 1, %s' % (v(T+3), v(V.n)))
        a('v_add_f32 %s, %s, %s' % (v(T+2), v(T+2), v(T+2)))
        def normal():
            a('v_lshl_add_u32 %s, %s, 8, %s' % (v(T+1), v(T), sK0))
            a('v_lshlrev_b32 %s, 4, %s' % (v(T+4), v(T+3)))
            a('v_cvt_f32_u32 %s, %s' % (v(T+1), v(T+1)))
            a('v_lshlrev_b32 %s, 31, %s' % (v(T+6), v(V.n)))
            a('v_cvt_f32_u32 %s, %s' % (v(T+3), v(T+3)))
            a('v_mul_f32 %s, %s, %s' % (v(T+1), lit(1/2048), v(T+1)))
            a('s_brev_b32 %s, 1' % sA)
            a('v_lshrrev_b32 %s, %s, %s' % (v(T+4), v(T+4), sA))
            a('v_mul_f32 %s, %s, %s' % (v(T+5), v(T+1), v(T+2)))
            a('v_fmac_f32 %s, %s, %s' % (v(T+5), lit(0.25), v(T+3)))
            for sbb in range(2):
                if sbb == 0: self.fill = lambda: a('v_add_f32 %s, %s, %s' % (v(T+5), v(T+5), v(T+1)))
                else: self.fill = lambda: a('v_cvt_f32_u32 %s, %s' % (v(T), v(T)))
                self.trig(T+5, V.B+2*sbb, V.B+6+2*sbb)
                a('v_xor_b32 %s, %s, %s' % (v(V.B+2*sbb+1), v(V.B+2*sbb), v(T+4)))
                a('v_xor_b32 %s, %s, %s' % (v(V.B+6+2*sbb+1), v(V.B+6+2*sbb), v(T+4)))
            a('v_lshl_add_u32 %s, %s, 9, %s' % (v(T+1), v(V.g), sK0))
            a('v_xor_b32 %s, %s, %s' % (v(T), v(T), v(T+6)))
            a('v_cvt_f32_u32 %s, %s' % (v(T+1), v(T+1)))
            a('v_mul_f32 %s, 0.5, %s' % (v(T+5), v(T+3)))
            a('v_mul_f32 %s, %s, %s' % (v(T+1), lit(1/2048), v(T+1)))
            a('v_fmac_f32 %s, %s, %s' % (v(T+5), v(T+1), v(T)))
            for ii in range(2):
                a('v_cos_f32 %s, %s' % (v(c), v(T+5)))
                a('v_sin_f32 %s, %s' % (v(s), v(T+5)))
                a('v_mul_f32 %s, %s, %s' % (v(c), lit(SC), v(c)))
                a('v_mul_f32 %s, %s, %s' % (v(s), lit(SC), v(s)))
                if ii == 0: a('v_fmac_f32 %s, %s, %s' % (v(T+5), lit(0.125), v(T)))
                a('v_cvt_pk_bf16_f32 %s, %s, %s' % (v(T+1), v(c), v(s)))
                a('v_cvt_pk_bf16_f32 %s, -%s, %s' % (v(T+2), v(s), v(c)))
                a('v_xor_b32 %s, %s, %s' % (v(V.Bp+2*ii), v(T+1), v(T+6)))
                a('v_xor_b32 %s, %s, %s' % (v(V.Bp+4+2*ii), v(T+2), v(T+6)))
                a('v_xor_b32 %s, %s, %s' % (v(V.Bp+2*ii+1), v(T+2), v(T+6)))
                a('v_xor_b32 %s, 0x80008000, %s' % (v(V.Bp+4+2*ii+1), v(V.Bp+2*ii)))
        def special():
            a('v_cvt_f32_u32 %s, %s' % (v(T+1), v(T)))
            a('v_mul_f32 %s, %s, %s' % (v(T+1), lit(1/16), v(T+1)))
            a('v_lshlrev_b32 %s, 4, %s' % (v(T+4), v(T+3)))
            a('v_cmp_eq_u32 s[84:85], 0, %s' % v(T))
            a('v_and_b32 %s, 1, %s' % (v(T+6), v(T)))
            a('v_cmp_eq_u32 s[86:87], 1, %s' % v(T+6))
            a('v_mul_f32 %s, %s, %s' % (v(T+5), v(T+1), v(T+2)))
            for sbb in range(2):
                a('v_cos_f32 %s, %s' % (v(c), v(T+5)))
                a('v_sin_f32 %s, %s' % (v(s), v(T+5)))
                a('v_mul_f32 %s, 2.0, %s' % (v(c), v(c)))
                a('v_mul_f32 %s, -2.0, %s' % (v(s), v(s)))
                a('v_cndmask_b32 %s, %s, 1.0, s[84:85]' % (v(c), v(c)))
                a('v_cndmask_b32 %s, %s, %s, s[84:85]' % (v(s), v(s), '-1.0' if sbb else '1.0'))
                for src, dst in ((c, V.B+2*sbb), (s, V.B+6+2*sbb)):
                    a('v_cvt_pk_bf16_f32 %s, %s, 0' % (v(T+7), v(src)))
                    a('v_lshlrev_b32 %s, %s, %s' % (v(T+7), v(T+4), v(T+7)))
                    a('v_cndmask_b32 %s, %s, 0, s[86:87]' % (v(dst), v(T+7)))
                    a('v_cndmask_b32 %s, 0, %s, s[86:87]' % (v(dst+1), v(T+7)))
                a('v_add_f32 %s, %s, %s' % (v(T+5), v(T+5), v(T+1)))
            a('v_cmp_eq_u32 s[88:89], 0, %s' % v(V.g))
            a('v_cmp_eq_u32 s[90:91], 1, %s' % v(T+3))
            a('v_lshlrev_b32 %s, 31, %s' % (v(T+6), v(T)))
            a('v_xor_b32 %s, %s, %s' % (v(T+6), lit(SC), v(T+6)))
            a('v_mov_b32 %s, %s' % (v(T+4), lit(SC)))
            a('v_mul_f32 %s, %s, %s' % (v(T+5), v(T+1), v(T+2)))
            for ii in range(2):
                a('v_cos_f32 %s, %s' % (v(c), v(T+5)))
                a('v_sin_f32 %s, %s' % (v(s), v(T+5)))
                a('v_mul_f32 %s, %s, %s' % (v(c), lit(2*SC), v(c)))
                a('v_mul_f32 %s, %s, %s' % (v(s), lit(-2*SC), v(s)))
                if ii == 0:
                    a('v_cndmask_b32 %s, %s, %s, s[88:89]' % (v(c), v(c), v(T+4)))
                    a('v_cndmask_b32 %s, %s, %s, s[88:89]' % (v(s), v(s), v(T+6)))
                a('v_cvt_pk_bf16_f32 %s, %s, %s' % (v(T+7), v(s), v(c)))
                if ii: a('v_cndmask_b32 %s, 0, %s, s[90:91]' % (v(T+7), v(T+7)))
                else: a('v_cndmask_b32 %s, %s, 0, s[90:91]' % (v(T+7), v(T+7)))
                a('v_mov_b32 %s, 0' % v(V.Bp+2*ii)); a('v_mov_b32 %s, %s' % (v(V.Bp+2*ii+1), v(T+7)))
                a('v_mov_b32 %s, %s' % (v(V.Bp+4+2*ii), v(T+7))); a('v_mov_b32 %s, 0' % v(V.Bp+4+2*ii+1))
                a('v_add_f32 %s, %s, %s' % (v(T+5), v(T+5), v(T+1)))
        self.far(sT, 0, special, normal)
        for d, r in ((4, 0), (5, 1), (10, 6), (11, 7)): a('v_mov_b32 %s, %s' % (v(V.B+d), v(V.B+r)))

    def wq(self, rho): return (rho & 1) + 8*((rho >> 1) & 1) + 4*((rho >> 2) & 1)
    def w_dma1(self, i):
        a = self.a
        srd, so = [(SWR, sDP), (SWI, sDP), (SWR, sDM), (SWI, sDM)][i]
        a('s_add_u32 m0, %s, %d' % (sWL, 1056*i))
        a('buffer_load_dwordx4 %s, %s, %s offen %s lds' % (v(V.l16), srd, so, self.o['ldw']))
    def w_dma(self):
        for i in range(4): self.w_dma1(i)
    def w_edge_load(self):
        a = self.a; T = V.T
        a('s_mov_b64 exec, 15')
        a('v_mov_b32 %s, %s' % (v(T), sKP)); a('v_mov_b32 %s, %s' % (v(T+1), sKM))
        a('s_mov_b64 vcc, 10')
        a('v_cndmask_b32 %s, %s, %s, vcc' % (v(T), v(T), v(T+1)))
        a('v_and_b32 %s, 2, %s' % (v(T+1), v(V.lane)))
        a('v_lshl_add_u32 %s, %s, 9, %s' % (v(T), v(T+1), v(T)))
        a('buffer_load_short_d16_hi %s, %s, %s, 0 offen' % (v(V.WF), v(T), SWR))
        a('buffer_load_short_d16_hi %s, %s, %s, 0 offen' % (v(V.WF+1), v(T), SWI))
        a('s_mov_b64 exec, -1')
    def w_edge_rl(self):
        for l in range(4):
            for im in range(2): self.a('v_readlane_b32 s%d, %s, %d' % (84+2*l+im, v(V.WF+im), l))
    def w_edge(self):
        a = self.a; T = V.T
        self.w_edge_rl()
        q = ((84, 86, 'add'), (85, 87, 'sub'), (90, 88, 'add'), (91, 89, 'sub'))
        for i, (x, y, op) in enumerate(q): a('v_mov_b32 %s, s%d' % (v(T+i), y))
        for i, (x, y, op) in enumerate(q): a('v_%s_f32 %s, s%d, %s' % (op, v(V.WF+i), x, v(T+i)))
        for i in range(4): a('v_mul_f32 %s, 0.5, %s' % (v(V.WF+i), v(V.WF+i)))
        a('s_mov_b64 s[92:93], 1')
    def w_read1(self, rho, im, dst=None, swap=False):
        dst = V.W if dst is None else dst
        if rho < 8: ad, off = V.WP, 64*self.wq(rho) + (2112 if swap else 0)
        else: ad, off = V.WM, 64*(13-self.wq(rho)) + (0 if swap else 2112)
        return 'ds_read_u16_d16_hi %s, %s offset:%d' % (v(dst+16*im+rho), v(ad), off+1056*im)
    def w_fix(self, half):
        return ['v_cndmask_b32 %s, %s, %s, s[92:93]' % (v(V.W+8*half+16*im), v(V.W+8*half+16*im), v(V.WF+2*half+im)) for im in range(2)]
    def w_special(self):
        a = self.a; T = V.T; X = V.DA
        def f():
            for sw, dst in ((False, V.W), (True, X)):
                for rho in range(16):
                    for im in range(2): a(self.w_read1(rho, im, dst, sw))
            a('s_waitcnt lgkmcnt(0) vmcnt(0)')
            self.w_edge_rl()
            a('s_mov_b64 exec, 1')
            for r in (V.W+16, V.W+24, X+16, X+24): a('v_mov_b32 %s, 0' % v(r))
            a('v_mov_b32 %s, s90' % v(V.W+8)); a('v_mov_b32 %s, s88' % v(X+8))
            a('s_mov_b64 exec, -1')
            for i in range(32):
                a('v_add_f32 %s, %s, %s' % (v(V.W+i), v(V.W+i), v(X+i)))
                if (i & 15) < 8: a('v_fma_f32 %s, -2.0, %s, %s' % (v(X+i), v(X+i), v(V.W+i)))
                else: a('v_fma_f32 %s, 2.0, %s, -%s' % (v(X+i), v(X+i), v(V.W+i)))
            a('v_add_u32 %s, %d, %s' % (v(T+1), SCR_B, v(V.l16)))
            for i in range(8): a('ds_write_b128 %s, %s offset:%d' % (v(T+1), vr(X+4*i, 4), 1024*i))
        self.far(sSpec, 1, f)

    def addrs1(self):
        a = self.a; T = V.T
        a('v_lshrrev_b32 %s, 3, %s' % (v(T), v(V.lane)))
        a('v_and_b32 %s, 0x30, %s' % (v(T+1), v(V.l16)))
        a('v_lshl_add_u32 %s, %s, 6, %s' % (v(T), v(T), v(T+1)))
        a('v_and_b32 %s, 4, %s' % (v(T+1), v(V.lane)))
        a('v_lshl_add_u32 %s, %s, 1, %s' % (v(V.TR), v(T+1), v(T)))
        a('v_xor_b32 %s, %s, %s' % (v(T), sSB, v(V.lane)))
        a('v_and_b32 %s, 1, %s' % (v(T), v(T)))
        a('v_mul_u32_u24 %s, 16448, %s' % (v(T), v(T)))
        a('v_lshl_add_u32 %s, %s, 12, %s' % (v(T), v(V.g), v(T)))
        a('v_lshl_add_u32 %s, %s, 2, %s' % (v(T), v(T+1), v(T)))
        a('v_and_b32 %s, 0x60, %s' % (v(T+1), v(V.TR)))
        a('s_lshr_b32 %s, %s, 1' % (sWp, sW)); a('s_and_b32 %s, %s, 1' % (sA, sW))
        a('s_lshl2_add_u32 %s, %s, %s' % (sWp, sA, sWp)); a('s_lshl_b32 %s, %s, 7' % (sWp, sWp))
        a('v_add3_u32 %s, %s, %s, %s' % (v(V.X0w), v(T), v(T+1), sWp))
        a('s_lshl_b32 %s, %s, 10' % (sA, sW))
        a('s_sub_u32 %s, 0x4000, %s' % (sB, sA))
        a('s_cmp_eq_u32 %s, 0' % sW); a('s_cselect_b32 %s, 0x2000, %s' % (sB, sB))
        a('v_add_u32 %s, %s, %s' % (v(V.X0r0), sA, v(V.TR)))
        a('v_add_u32 %s, %s, %s' % (v(V.X0r1), sB, v(V.TR)))
    def addrs2(self):
        a = self.a; T = V.T
        a('v_lshlrev_b32 %s, 4, %s' % (v(T), v(V.n)))
        a('v_lshl_add_u32 %s, %s, 13, %s' % (v(T), v(V.g), v(T)))
        a('s_lshl_b32 %s, %s, 9' % (sA, sW)); a('s_add_u32 %s, %s, %d' % (sA, sA, R1))
        a('v_add_u32 %s, %s, %s' % (v(V.X1w), sA, v(T)))
        a('s_lshl_b32 %s, %s, 12' % (sA, sW)); a('s_add_u32 %s, %s, %d' % (sA, sA, R1))
        a('v_add_u32 %s, %s, %s' % (v(V.X1r), sA, v(V.TR)))
        a('v_and_b32 %s, 16, %s' % (v(T), v(V.l16)))
        a('v_and_b32 %s, 2, %s' % (v(T+1), v(V.lane)))
        a('v_bfe_u32 %s, %s, 2, 1' % (v(T+2), v(V.lane)))
        a('v_add_u32 %s, %s, %s' % (v(T+1), v(T+1), v(T+2)))
        a('v_mul_u32_u24 %s, 8224, %s' % (v(T+1), v(T+1)))
        a('v_bfe_u32 %s, %s, 3, 2' % (v(T+2), v(V.lane)))
        a('v_lshl_add_u32 %s, %s, 11, %s' % (v(T), v(T+2), v(T)))
        a('v_and_b32 %s, 32, %s' % (v(T+2), v(V.lane)))
        a('v_add3_u32 %s, %s, %s, %s' % (v(T), v(T), v(T+1), v(T+2)))
        a('v_add_u32 %s, %s, %s' % (v(V.X2w), sWp, v(T)))
        a('s_and_b32 %s, %s, 1' % (sA, sW)); a('s_lshr_b32 %s, %s, 2' % (sB, sW)); a('s_lshl1_add_u32 %s, %s, %s' % (sA, sB, sA)); a('s_lshl_b32 %s, %s, 11' % (sA, sA))
        a('s_and_b32 %s, %s, 2' % (sB, sW)); a('s_mul_i32 %s, %s, 8224' % (sB, sB)); a('s_add_u32 %s, %s, %s' % (sA, sA, sB))
        a('v_add_u32 %s, %s, %s' % (v(V.X2r), sA, v(V.TR)))
    def addrs3(self):
        a = self.a; T = V.T
        a('v_and_b32 %s, 16, %s' % (v(T), v(V.lane)))
        a('v_and_b32 %s, 33, %s' % (v(T+1), v(V.lane)))
        a('v_lshl_add_u32 %s, %s, 5, %s' % (v(T), v(T+1), v(T)))
        a('v_and_b32 %s, 8, %s' % (v(T+1), v(V.lane)))
        a('v_lshl_add_u32 %s, %s, 9, %s' % (v(T), v(T+1), v(T)))
        a('v_and_b32 %s, 2, %s' % (v(T+1), v(V.lane)))
        a('v_and_b32 %s, 4, %s' % (v(T+2), v(V.lane)))
        a('v_mul_u32_u24 %s, 4104, %s' % (v(T+1), v(T+1)))
        a('v_mul_u32_u24 %s, 4112, %s' % (v(T+2), v(T+2)))
        a('v_add3_u32 %s, %s, %s, %s' % (v(T), v(T), v(T+1), v(T+2)))
        a('s_sub_u32 %s, 16, %s' % (sC, sW))
        a('s_cmp_eq_u32 %s, 0' % sW); a('s_cselect_b32 %s, 8, %s' % (sC, sC))
        for kl, dst in ((sW, V.X3w0), (sC, V.X3w1)):
            a('s_lshr_b32 %s, %s, 2' % (sA, kl)); a('s_and_b32 %s, %s, 1' % (sB, kl)); a('s_lshl1_add_u32 %s, %s, %s' % (sA, sA, sB))
            a('s_and_b32 %s, %s, 2' % (sB, kl)); a('s_lshl2_add_u32 %s, %s, %s' % (sA, sB, sA))
            a('s_lshl_b32 %s, %s, 6' % (sA, sA)); a('s_add_u32 %s, %s, %d' % (sA, sA, R1))
            a('v_add_u32 %s, %s, %s' % (v(dst), sA, v(T)))
        a('s_and_b32 %s, %s, 1' % (sA, sW)); a('s_mul_i32 %s, %s, 8208' % (sA, sA))
        a('s_and_b32 %s, %s, 2' % (sB, sW)); a('s_mul_i32 %s, %s, 8224' % (sB, sB)); a('s_add_u32 %s, %s, %s' % (sA, sA, sB))
        a('s_and_b32 %s, %s, 4' % (sB, sW)); a('s_lshl_b32 %s, %s, 10' % (sB, sB)); a('s_add_u32 %s, %s, %s' % (sA, sA, sB))
        a('s_add_u32 %s, %s, %d' % (sA, sA, R1))
        a('v_add_u32 %s, %s, %s' % (v(V.X3r), sA, v(V.TR)))
        a('v_and_b32 %s, 0x70, %s' % (v(T), v(V.l16)))
        a('v_lshlrev_b32 %s, 1, %s' % (v(V.Ooff), v(V.Xoff)))
        a('v_sub_u32 %s, %s, %s' % (v(V.Ooff), v(V.Ooff), v(T)))

    def mf16(self, d, A, B): return 'v_mfma_f32_16x16x32_bf16 %s, %s, %s, 0' % (vr(d, 4), vr(A, 4), vr(B, 4))
    def cvt(self, d, lo, hi): return 'v_cvt_pk_bf16_f32 %s, %s, %s' % (v(d), v(lo), v(hi))
    def mf32(self, d, i, pl, dataA):
        M = vr(V.F32+16*pl+4*i, 4); X = vr(V.O+4*i, 4)
        A, B = (X, M) if dataA else (M, X)
        D = vr(d+16*pl, 16)
        return 'v_mfma_f32_32x32x16_bf16 %s, %s, %s, %s' % (D, A, B, D if i else '0')
    def emit(self, L):
        for x in L: self.a(x)

    def p1(self):
        a = self.a; O, L, D, P = V.O, V.L, V.DA, V.DB
        for r in range(4):
            a('s_waitcnt vmcnt(%d)' % (3-r+(2 if self.o['e1'] else 0)))
            if r == 3:
                self.stamp()
                if self.o['spos'] == 'mid': self.cond(sW, PW, self.side_load)
            for t in range(4): a('v_mov_b32 %s, %s' % (v(O+4*t+r), v(L+4*r+t)))
        for t in range(4):
            a(self.mf16(D+4*t, V.F16, O+4*t)); a(self.mf16(D+16+4*t, V.F16+4, O+4*t))
        if self.o['spos'] == 'late': self.cond(sW, PW, self.side_load)
        def sp():
            self.srds()
            a('s_mov_b32 %s, 0' % sDP); a('s_mov_b32 %s, %d' % (sDM, 1024*1026)); a('s_mov_b32 %s, %d' % (sWL, WL))
            self.w_dma()
        a('s_or_b32 %s, %s, %s' % (sA, sT, sW))
        self.far(sA, 0, sp)
        for r in range(4):
            a(self.cvt(P+4*r, D+r, D+4+r)); a(self.cvt(P+4*r+2, D+16+r, D+20+r))
        for r in range(4):
            a(self.cvt(P+4*r+1, D+8+r, D+12+r)); a(self.cvt(P+4*r+3, D+24+r, D+28+r))
            a('ds_write_b128 %s, %s offset:%d' % (v(V.X0w), vr(P+4*r, 4), 1024*r))
        self.mark('g1a')
        self.side_wait()
        self.mark('g1b')
        a('s_waitcnt lgkmcnt(0)')
        a('s_barrier')
        for ti in range(4):
            for ii in range(2):
                a('ds_read_b64_tr_b16 %s, %s offset:%d' % (vr(O+4*ti+2*ii, 2), v(V.X0r1 if ti >> 1 else V.X0r0), (ti & 1)*16448+ii*512))
        a('ds_read_b32 %s, %s' % (v(V.tmp), v(V.cnt)))
        for ti in range(4):
            a('s_waitcnt lgkmcnt(%d)' % (7-2*ti))
            a(self.mf16(D+4*ti, V.M2+8*(ti >> 1), O+4*ti)); a(self.mf16(D+16+4*ti, V.M2+8*(ti >> 1)+4, O+4*ti))
        a('s_waitcnt lgkmcnt(0)')
        self.side_use()
        for r in range(4): a('s_add_u32 %s, %s, 0x%x' % (sO[r], sEst, WS_U[0] + r*65536))
        def st(i):
            if self.o['tag']: a('v_and_b32 %s, -2, %s' % (v(P+4*i), v(P+4*i)))
            a('buffer_store_dwordx4 %s, %s, %s, %s offen %s' % (vr(P+4*i, 4), v(V.Est), SWS, sO[i], self.o['st1']))
        def normal():
            for i in range(4):
                for k in range(4): a(self.cvt(P+4*i+2*(k & 1)+(k >> 1), D+4*k+i, D+16+4*k+i))
                st(i)
        def w0():
            for i in range(4):
                ts, eb = i >> 1, i & 1
                for tau in range(2):
                    for sg in range(2):
                        x = 4*(2*ts+tau)+2*eb+sg
                        a(self.cvt(P+4*i+2*tau+sg, D+x, D+16+x))
                st(i)
        self.ifelse(sW, 0, w0, normal)

    def stage(self, src, dst, dataA, kind, prio, pre=None):
        a = self.a; T = V.T
        if self.o['prio']: a('s_setprio %d' % prio)
        G = []
        for i in range(4):
            g = []
            if kind == 'tw':
                for st in range(3):
                    for r in range(4):
                        rho = 4*i+r; x, y = v(src+rho), v(src+16+rho)
                        g.append('v_fmac_f32 %s, %s, %s' % ((y, v(V.TW+16+rho), x) if st == 1 else (x, v(V.TW+rho), y)))
                for r in range(4): g.append(self.cvt(V.O+4*i+r, src+4*i+r, src+16+4*i+r))
            else:
                t = T+4*(i & 1)
                for r in range(4):
                    rho = 4*i+r
                    g.append('v_mul_f32 %s, %s, %s' % (v(t+r), v(src+rho), v(V.W+rho)))
                for r in range(4):
                    rho = 4*i+r
                    if rho < 8: g.append('v_fma_f32 %s, -%s, %s, %s' % (v(t+r), v(src+16+rho), v(V.W+16+rho), v(t+r)))
                    else: g.append('v_fmac_f32 %s, %s, %s' % (v(t+r), v(src+16+rho), v(V.W+16+rho)))
                for r in range(4):
                    rho = 4*i+r
                    g.append('v_mul_f32 %s, %s, %s' % (v(src+16+rho), v(src+16+rho), v(V.W+rho)))
                for r in range(4):
                    rho = 4*i+r
                    if rho < 8: g.append('v_fmac_f32 %s, %s, %s' % (v(src+16+rho), v(src+rho), v(V.W+16+rho)))
                    else: g.append('v_fma_f32 %s, -%s, %s, %s' % (v(src+16+rho), v(src+rho), v(V.W+16+rho), v(src+16+rho)))
                for r in range(4): g.append(self.cvt(V.O+4*i+r, src+16+4*i+r, t+r))
            G.append(g)
        W = [[self.w_read1(4*i+r, im) for im in range(2) for r in range(4)] for i in range(4)] if kind == 'w' else None
        if kind == 'w':
            a('s_waitcnt vmcnt(2) lgkmcnt(0)')
            self.emit(W[0]); self.emit(W[1])
        for i in range(4):
            g = list(G[i]); n = len(g)
            ins = {}
            if i:
                ins.setdefault(2, []).append(self.mf32(dst, i-1, 0, dataA))
                ins.setdefault(2+n//2, []).append(self.mf32(dst, i-1, 1, dataA))
            if kind == 'w':
                a('s_waitcnt lgkmcnt(%d)' % (8 if i < 3 else 0))
                if i in (0, 2): self.emit(self.w_fix(i >> 1))
                if i < 2:
                    if i == 0: ins.setdefault(3, []).append('s_waitcnt vmcnt(0)')
                    for k, x in enumerate(W[i+2]): ins.setdefault(3+2*k, []).append(x)
            for k, x in enumerate(g):
                self.emit(ins.get(k, []))
                a(x)
        a(self.mf32(dst, 3, 0, dataA)); a(self.mf32(dst, 3, 1, dataA))

    def p2(self):
        a = self.a; O, L, D, T = V.O, V.L, V.DA, V.T
        na = self.p2na
        for cbb in range(2):
            b = L+12*cbb
            a('s_waitcnt vmcnt(%d)' % (na+3-2*cbb))
            a('v_mov_b32 %s, %s' % (v(b+8), v(b))); a('v_mov_b32 %s, %s' % (v(b+9), v(b+1)))
            a('s_waitcnt vmcnt(%d)' % (na+2-2*cbb))
            if cbb:
                self.stamp(); self.mark('f0')
            for jj2 in (1, 0):
                ti = 2*cbb+jj2; op = b+2 if jj2 else b+6; mo = 0 if jj2 else 2
                a(self.mf16(D+4*ti, V.B+mo, op)); a(self.mf16(D+16+4*ti, V.B+6+mo, op))
        for cbb in range(2):
            for k1b in range(2):
                P = O+4*(2*cbb+k1b)
                for jj2 in (1, 0):
                    for pl in range(2):
                        x = D+16*pl+4*(2*cbb+jj2)+2*k1b
                        a(self.cvt(P+2*pl+jj2, x, x+1))
                a('ds_write_b128 %s, %s offset:%d' % (v(V.X1w), vr(P, 4), k1b*4096+cbb*256))
        self.mark('f1')
        a('s_waitcnt lgkmcnt(0)')
        self.mark('f2', True)
        a('s_barrier')
        self.mark('x1', True)
        if self.o['prio']: a('s_setprio 3')
        for i in range(4):
            for ii in range(2):
                a('ds_read_b64_tr_b16 %s, %s offset:%d' % (vr(O+4*i+2*ii, 2), v(V.X1r), ii*1024+(i & 1)*512+(i >> 1)*2048))
        rows = {'postX1': (0, 1, 2, 3), 'barh': (2, 3), 'bar': (), 'p2a': (2, 3), 'q2a': (1, 2, 3)}[self.o['wpos']]
        for i in range(4):
            if i < len(rows): self.w_dma1(rows[i])
            a('s_waitcnt lgkmcnt(%d)' % (6-2*i))
            a(self.mf32(V.DA, i, 0, True)); a(self.mf32(V.DA, i, 1, True))
        self.mark('f3')
        if self.o['tag']: self.arrive()
        self.stage(V.DA, V.DB, False, 'tw', 2)
        self.mark('f4', True)
        self.far(sSpec, 1, self.pw_special, lambda: self.stage(V.DB, V.DA, True, 'w', 1))
        self.mark('f5')
        if self.o['tag']:
            a('s_mov_b32 %s, 0' % sRv)
            a('s_atomic_add %s, s[24:25], %s glc' % (sRv, sE))
        self.stage(V.DA, V.DB, True, 'tw', 0)
        self.mark('f6')
        D = V.DB
        if not self.o['tag']:
            for r in range(4): a('s_add_u32 %s, %s, 0x%x' % (sO[r], sEst, WS_U[1] + r*65536))
        rho = lambda jj3, jj1, jj2, c: 4*(2*jj3+jj1)+2*jj2+c
        for pl in range(2):
            for k in range(4):
                c, jj1 = k >> 1, k & 1
                P = V.DA+4*k
                for jj3 in range(2):
                    a(self.cvt(P+2*pl+jj3, D+16*pl+rho(jj3, jj1, 0, c), D+16*pl+rho(jj3, jj1, 1, c)))
                if pl: a('ds_write_b128 %s, %s offset:%d' % (v(V.X2w), vr(P, 4), c*64+jj1*1024))
        self.mark('f7'); self.mark('x2')
        a('s_waitcnt lgkmcnt(0)')
        self.mark('f8', True)
        if self.o['tag']:
            l = self.label('free')
            a('s_bitcmp1_b32 %s, 20' % sRv); a('s_cbranch_scc1 %s' % l)
            self.poll(1)
            a(l+':')
        a('s_barrier')
        for ti in range(4):
            for ii in range(2):
                a('ds_read_b64_tr_b16 %s, %s offset:%d' % (vr(O+4*ti+2*ii, 2), v(V.X2r), ii*512+(ti & 1)*1024+(ti >> 1)*8224))
        D = V.DA; P = V.DB
        for ti in range(4):
            a('s_waitcnt lgkmcnt(%d)' % (6-2*ti))
            a(self.mf16(D+4*ti, V.Bp, O+4*ti)); a(self.mf16(D+16+4*ti, V.Bp+4, O+4*ti))
        self.mark('f9')
        for q in range(4):
            cbb, sbb = q >> 1, q & 1
            for jj1 in range(2):
                for hf in range(2):
                    x = 4*(2*cbb+jj1)+2*sbb+hf
                    a(self.cvt(P+4*q+2*jj1+hf, D+x, D+16+x))
                if self.o['tag'] and jj1 == 0: a('v_or_b32 %s, 1, %s' % (v(P+4*q), v(P+4*q)))
            a('buffer_store_dwordx4 %s, %s, %s, %s offen %s' % (vr(P+4*q, 4), v(V.Est), SWS, sO[q], self.o['st2']))
        self.mark('f10')

    def pw_special(self):
        a = self.a; T = V.T; O = V.O; C = V.DB; X = V.DA
        self.sigma_lane(T)
        a('v_lshrrev_b32 %s, 5, %s' % (v(T+1), v(V.lane)))
        a('v_lshlrev_b32 %s, 9, %s' % (v(T+1), v(T+1)))
        a('v_lshl_add_u32 %s, %s, 2, %s' % (v(T+2), v(T), v(T+1)))
        a('v_add_u32 %s, %d, %s' % (v(T+2), SCR, v(T+2)))
        a('v_add_u32 %s, 128, %s' % (v(T+3), v(T+2)))
        a('v_sub_u32 %s, 32, %s' % (v(T+4), v(T)))
        a('v_lshrrev_b32 %s, 5, %s' % (v(T+5), v(T+4)))
        a('v_and_b32 %s, 31, %s' % (v(T+4), v(T+4)))
        a('v_lshlrev_b32 %s, 2, %s' % (v(T+4), v(T+4)))
        a('v_lshl_add_u32 %s, %s, 8, %s' % (v(T+4), v(T+5), v(T+4)))
        a('v_sub_u32 %s, %s, %s' % (v(T+4), v(T+4), v(T+1)))
        a('v_add_u32 %s, %d, %s' % (v(T+4), SCR + 2*256, v(T+4)))
        a('v_add_u32 %s, 128, %s' % (v(T+5), v(T+4)))
        a('v_add_u32 %s, %d, %s' % (v(T+6), SCR_B, v(V.l16)))
        qs = lambda rho: sigma(8*(rho >> 2) + (rho & 3))
        for pl in range(2):
            for rho in range(0, 16, 2):
                a('ds_write2st64_b32 %s, %s, %s offset0:%d offset1:%d' % (v(T+2+pl), v(C+16*pl+rho), v(C+16*pl+rho+1), qs(rho), qs(rho+1)))
            a('ds_write_b32 %s, %s offset:%d' % (v(T+2+pl), v(C+16*pl), 32*256))
        t0, t1 = v(T+8), v(T+9)
        for half in range(2):
            for pl in range(2):
                for k in range(0, 8, 2):
                    r_ = 8*half+k
                    a('ds_read2st64_b32 %s, %s offset0:%d offset1:%d' % (vr(X+8*pl+k, 2), v(T+4+pl), 29-qs(r_), 29-qs(r_+1)))
                for k in range(2):
                    a('ds_read_b128 %s, %s offset:%d' % (vr(X+16+8*pl+4*k, 4), v(T+6), 1024*(4*pl+2*half+k)))
            a('s_waitcnt lgkmcnt(0)')
            for k in range(8):
                r_ = 8*half+k
                x, y = v(C+r_), v(C+16+r_); ar, ai = v(V.W+r_), v(V.W+16+r_)
                p, q_ = v(X+k), v(X+8+k); br, bi = v(X+16+k), v(X+24+k)
                ng, ps = ('', '-') if half else ('-', '')
                a('v_mul_f32 %s, %s, %s' % (t0, x, ar))
                a('v_mul_f32 %s, %s, %s' % (t1, y, ar))
                a('v_fma_f32 %s, %s%s, %s, %s' % (t0, ng, y, ai, t0))
                a('v_fma_f32 %s, %s%s, %s, %s' % (t1, ps, x, ai, t1))
                a('v_fmac_f32 %s, %s, %s' % (t0, p, br))
                a('v_fma_f32 %s, -%s, %s, %s' % (t1, q_, br, t1))
                a('v_fma_f32 %s, %s%s, %s, %s' % (t0, ps, q_, bi, t0))
                a('v_fma_f32 %s, %s%s, %s, %s' % (t1, ps, p, bi, t1))
                a(self.cvt(O+r_, T+9, T+8))
        for i in range(4): a(self.mf32(V.DA, i, 0, True)); a(self.mf32(V.DA, i, 1, True))

    def tag_wait(self):
        a = self.a; T = V.T; lp, ok = self.label('tw'), self.label('twok')
        a('v_and_b32 %s, 0xd000, %s' % (v(T), v(V.Eld)))
        a('v_lshl_add_u32 %s, %s, 6, %s' % (v(T), v(V.lane), v(T)))
        a('s_mov_b32 %s, 0' % sCnt)
        self.retry = self.label('retry')
        a(self.retry+':')
        a(lp+':')
        a('buffer_load_dword %s, %s, %s, %s offen %s' % (v(T+1), v(T), SWS, sEld, self.o['ld2']))
        a('s_add_u32 %s, %s, 1' % (sCnt, sCnt))
        a('s_cmp_gt_u32 %s, 0x%x' % (sCnt, SPIN_MAX))
        a('s_waitcnt vmcnt(0)')
        a('s_cbranch_scc1 %s' % ok)
        a('v_and_b32 %s, 1, %s' % (v(T+1), v(T+1)))
        a('v_cmp_eq_u32 vcc, 0, %s' % v(T+1))
        if self.o.get('nar'):
            a('s_and_b64 exec, exec, vcc')
            a('s_cbranch_execnz %s' % lp)
        else: a('s_cbranch_vccnz %s' % lp)
        a(ok+':')
        if self.o.get('nar'): a('s_mov_b64 exec, -1')
        if self.o['ts']: a('s_mov_b32 s%d, %s' % (sTS+26, sCnt))
        self.stamp()
        self.ex_load(1)
    def p3_soff(self):
        a = self.a
        a('s_lshl4_add_u32 %s, %s, %s' % (sA, sW, sSB)); a('s_lshl1_add_u32 %s, %s, %s' % (sA, sA, sP))
        a('s_lshl4_add_u32 %s, %s, %s' % (sA, sA, sCB)); a('s_lshl_b32 %s, %s, 7' % (sO[0], sA))
        for r in range(1, 4): a('s_add_u32 %s, %s, 0x%x' % (sO[r], sO[0], r*524288))
    def p3(self):
        a = self.a; O, L, D, P = V.O, V.L, V.DA, V.DB
        def normal():
            for i in range(4):
                a('s_waitcnt vmcnt(%d)' % (3-i))
                for sel in range(2):
                    for col in range(2): a('v_mov_b32 %s, %s' % (v(O+4*(2*sel+col)+i), v(L+4*i+2*col+sel)))
        def w0():
            for i in range(4):
                ts, eb = i >> 1, i & 1
                a('s_waitcnt vmcnt(%d)' % (3-i))
                for col in range(2):
                    for sg in range(2): a('v_mov_b32 %s, %s' % (v(O+4*(2*ts+col)+2*eb+sg), v(L+4*i+2*col+sg)))
        self.ifelse(sW, 0, w0, normal, True)
        self.stamp()
        for ti in range(4):
            a(self.mf16(D+4*ti, O+4*ti, V.M2+8*(ti >> 1))); a(self.mf16(D+16+4*ti, O+4*ti, V.M2+8*(ti >> 1)+4))
            if self.o['tag']:
                T = V.T
                if ti == 0: a('v_and_b32 %s, %s, %s' % (v(T+2), v(L), v(L+4))); a('v_and_b32 %s, %s, %s' % (v(T+3), v(L+8), v(L+12)))
                if ti == 1: a('v_and_b32 %s, %s, %s' % (v(T+2), v(T+2), v(T+3))); a('v_and_b32 %s, 1, %s' % (v(T+2), v(T+2)))
                if ti == 2: a('v_cmp_eq_u32 vcc, 0, %s' % v(T+2))
        if self.o['tag']:
            l = self.label('good')
            a('s_cbranch_vccz %s' % l)
            a('s_cmp_le_u32 %s, 0x%x' % (sCnt, SPIN_MAX))
            a('s_nop 7')
            a('s_cbranch_scc1 %s' % self.retry)
            a(l+':')
        for ti in range(4):
            for pl in range(2):
                for k in range(2):
                    x = D+16*pl+4*ti+2*k
                    a(self.cvt(P+4*ti+2*pl+k, x, x+1))
            a('ds_write_b128 %s, %s offset:%d' % (v(V.X3w1 if ti >> 1 else V.X3w0), vr(P+4*ti, 4), (ti & 1)*2048))
        a('s_waitcnt lgkmcnt(0)')
        a('s_barrier')
        for t in range(4):
            for ii in range(2):
                a('ds_read_b64_tr_b16 %s, %s offset:%d' % (vr(O+4*t+2*ii, 2), v(V.X3r), ii*512+t*1024))
        for t in range(4):
            a('s_waitcnt lgkmcnt(%d)' % (6-2*t))
            a(self.mf16(D+4*t, V.F16, O+4*t)); a(self.mf16(D+16+4*t, V.F16+4, O+4*t))
        for t in range(2):
            for r in range(4): a(self.cvt(P+4*r+t, D+16+4*t+r, D+4*t+r))
        for r in range(4):
            for t in (2, 3): a(self.cvt(P+4*r+t, D+16+4*t+r, D+4*t+r))
            a('buffer_store_dwordx4 %s, %s, %s, %s offen %s' % (vr(P+4*r, 4), v(V.Ooff), SOUT, sO[r], self.o['sto']))

    def ex_load(self, ex):
        a = self.a
        a('s_add_u32 %s, %s, 0x%x' % (sA, sEld, WS_U[0 if self.o['tag'] else ex]))
        for q in range(4):
            d = V.L+12*(q >> 1)+4*(q & 1) if ex == 0 else V.L+4*q
            a('buffer_load_dwordx4 %s, %s, %s, %s offen offset:%d %s' % (vr(d, 4), v(V.Eld), SWS, sA, 256*q, self.o['ld1' if ex == 0 else 'ld2']))

    def build(self):
        a = self.a; o = self.o
        name = NAME + '_kernel'
        a.raw('.globl %s\n.p2align 12\n.p2align 8\n.type %s,@function\n%s:' % (name, name, name))
        end = self.label('end')
        self.prologue(end)
        stag = int(o['stag'])
        def late(k):
            if stag != k: return
            l = self.label('late')
            a('s_bitcmp0_b32 s2, %s' % o['sbit']); a('s_cbranch_scc1 %s' % l)
            self.x_issue()
            a(l+':')
        def others():
            if o.get('kfirst'): a('s_waitcnt lgkmcnt(0)'); self.mark('karg0')
            self.touch(0)
            self.mark('touched')
            a('s_waitcnt lgkmcnt(0)')
            self.mark('karg')
            l = self.label('hold')
            a('s_cmp_lt_u32 %s, 8' % sCh); a('s_cbranch_scc1 %s' % l)
            if stag: a('s_bitcmp1_b32 s2, %s' % o['sbit']); a('s_cbranch_scc1 %s' % l)
            self.x_issue()
            if o['pre']: self.cond(sW, PW, lambda: a('s_load_dword s95, s[20:21], %s' % self.o['preoff']))
            a(l+':')
        self.ifelse(sCh, 0, self.probe, others, True)
        self.srds0(); self.addrs1()
        l = self.label('held')
        a('s_sub_u32 %s, %s, 1' % (sA, sCh)); a('s_cmp_ge_u32 %s, 7' % sA); a('s_cbranch_scc1 %s' % l)
        self.x_issue()
        a(l+':')
        self.gen_F16()
        late(1)
        self.clear_done()
        self.gen_M2(); self.ex_addrs()
        late(2)
        if o['touch']: self.cond(sT, 0, lambda: self.touch(1))
        full = o['full']
        e1 = o['e1']
        if full or e1: self.srds(); self.calc_k0()
        if e1: self.w_edge_load()
        if full:
            self.coop_gen(); self.gen_B(); self.addrs2(); self.flag_addrs()
        if stag >= 3:
            l = self.label('late')
            a('s_bitcmp0_b32 s2, %s' % o['sbit']); a('s_cbranch_scc1 %s' % l)
            self.srds(); self.calc_k0(); self.coop_gen()
            if stag >= 4: self.gen_B()
            self.x_issue()
            a(l+':')
        def early_only(f, k):
            if stag < k: f(); return
            l = self.label('eo')
            a('s_bitcmp1_b32 s2, %s' % o['sbit']); a('s_cbranch_scc1 %s' % l)
            f(); a(l+':')
        if o['spos'] == 'early': self.cond(sW, PW, self.side_load)
        self.mark('w1')
        self.p1()
        self.stamp()
        nP = {'p2a': 2, 'q2a': 1}.get(o['wpos'], 0)
        if full:
            self.side_apply(); a('s_mov_b32 %s, 1' % sInc)
            self.coop_read(); self.gen_M3()
            for i in range(nP): self.w_dma1(i)
            self.addrs3()
        else:
            self.flag_addrs(); self.side_apply()
            a('s_mov_b32 %s, 1' % sInc)
            if stag >= 3: self.srds()
            early_only(lambda: ((self.srds(), self.calc_k0()) if not e1 else 0, self.coop_gen()), 3)
            self.coop_post()
            for i in range(nP): self.w_dma1(i)
        a('s_waitcnt vmcnt(%d)' % nP)
        self.stamp()
        self.arrive()
        el = (lambda: 0) if e1 else self.w_edge_load
        if full: self.poll(0, lambda: (el(), self.w_special()))
        else: self.poll(0, lambda: (el(), early_only(self.gen_B, 4), self.w_special()))
        self.stamp()
        self.ex_load(0)
        self.p2na = 0
        if o['wpos'] in ('bar', 'barh'):
            a('s_barrier'); self.p2na = 4 if o['wpos'] == 'bar' else 2
            for i in range(self.p2na): self.w_dma1(i)
        elif not full: self.coop_wait()
        if not full: self.coop_read(); self.addrs2()
        a('s_waitcnt vmcnt(%d)' % (4+self.p2na))
        self.w_edge()
        a('s_mov_b32 %s, 0x10000' % sInc)
        if o.get('da') == 'glob': self.cond(sId, 0, lambda: a('s_atomic_swap s56, s[20:21], 0x40'))
        self.p2()
        self.stamp()
        if not full: self.gen_M3()
        self.mark('w3a')
        if o['tag']:
            if not full: self.addrs3()
            self.stamp()
            self.p3_soff()
            self.tag_wait()
        else:
            a('s_waitcnt vmcnt(0)')
            self.stamp()
            self.arrive()
            self.poll(1, None if full else self.addrs3)
            if o['ts']: a('s_mov_b32 s%d, %s' % (sTS+26, sCnt))
            self.stamp()
            self.ex_load(1)
            self.p3_soff()
        self.p3()
        self.diag_end()
        a(end+':'); a('s_endpgm')
        t, self.tail = self.tail, []
        for f in t: f()
        if o['touch']: self.insert_stubs()
        hdr = ('; GFNet spectral filter, two heads: 2-D FFT as bf16 MFMA DFT stages in one persistent launch (generated)\n'
               '; @launch grid=(256,1,1) block=(512,1,1) lds=%d\n' % LDS_TOTAL)
        kd = '''.section .rodata,"a"
.p2align 6
.amdhsa_kernel %s
  .amdhsa_next_free_vgpr %d
  .amdhsa_next_free_sgpr 102
  .amdhsa_accum_offset %d
  .amdhsa_group_segment_fixed_size 0
  .amdhsa_kernarg_size 72
  .amdhsa_user_sgpr_count 2
  .amdhsa_user_sgpr_kernarg_segment_ptr 1
  .amdhsa_system_sgpr_workgroup_id_x 1
.end_amdhsa_kernel
''' % (name, NVGPR, (NVGPR+3)//4*4)
        return hdr + '.amdgcn_target "amdgcn-amd-amdhsa--gfx950"\n.text\n' + a.text() + kd

    def insert_stubs(self):
        a = self.a
        txt = '.amdgcn_target "amdgcn-amd-amdhsa--gfx950"\n.text\n' + a.text() + ''.join('stub_%d:\n' % k for k in range(16)) + 's_endpgm\n'
        open('pass1.s', 'w').write(txt)
        subprocess.check_call(['clang', '-x', 'assembler', '-target', 'amdgcn-amd-amdhsa', '-mcpu=gfx950', '-c', 'pass1.s', '-o', 'pass1.o'])
        dis = subprocess.check_output(['llvm-objdump', '-d', '--mcpu=gfx950', 'pass1.o']).decode()
        addrs = [int(m.group(1), 16) for m in re.finditer(r'// ([0-9A-F]{12}):', dis)]
        real = [i for i, x in enumerate(a.ins) if x.kind != 'none']
        assert len(addrs) == len(real) + 1, (len(addrs), len(real))
        size = {real[k]: addrs[k+1] - addrs[k] for k in range(len(real))}
        mid = self.o['mid']
        pts = []
        for k in range(16):
            pts.append((2048+1024*k, 'stub_%d' % k, ('mid_%d' % k) if (mid and k < 8) else 'ret_%d' % (k >> 3)))
            if mid and k < 8: pts.append((2048+1024*k-512, 'mid_%d' % ((k+int(mid)) & 7), 'ret_0'))
        pts.sort()
        pos = ENTRY_OFF
        out = []; k = 0; prev = None; ez = False
        for i, x in enumerate(a.ins):
            if i in size:
                if prev is not None and prev.text.strip() == 's_mov_b64 exec, 0': ez = True
                if prev is not None and prev.text.strip() == 's_mov_b64 exec, -1': ez = False
                if k < len(pts) and pos >= pts[k][0] and not ez:
                    out.append(Ins(pts[k][1]+':')); out.append(Ins('s_cbranch_execz '+pts[k][2]))
                    pos += 4; k += 1
                pos += size[i]; prev = x
                if x.op == 's_endpgm': self.hot_end = pos
            out.append(x)
        self.code_end = pos
        while k < len(pts):
            out.append(Ins(pts[k][1]+':')); out.append(Ins('s_branch '+pts[k][2])); k += 1
        a.ins = out

if __name__ == '__main__':
    out = sys.argv[1]; opt = {}
    for kv in sys.argv[2:]:
        k, x = kv.split('=')
        opt[k] = {'True': True, 'False': False}.get(x, x.replace('+', ' '))
    g = Gen(**opt)
    s = g.build()
    assert g.a.verify() == 0
    open(out, 'w').write(s)
    print(out, 'vgprs', NVGPR, 'lds', LDS_TOTAL, 'nops', g.a.nops, 'lines', len(g.a.ins), 'hot end 0x%x code end 0x%x' % (getattr(g, 'hot_end', 0), getattr(g, 'code_end', 0)))
```
